```python
import torch

def _softmax(x, axis=-1):
    return torch.softmax(x, dim=axis)

def _gelu(x):
    return torch.nn.functional.gelu(x, approximate='tanh')

def _silu(x):
    return torch.nn.functional.silu(x)

def _sigmoid(x):
    return torch.sigmoid(x)

def _layernorm(x, axis=-1, eps=1e-05):
    m = x.mean(dim=axis, keepdim=True)
    v = x.var(dim=axis, keepdim=True, unbiased=False)
    return (x - m) / torch.sqrt(v + eps)

def _scatter_add(tgt, idx, src, axis=0):
    return tgt.clone().index_add_(axis, idx, src)

def _segment_sum(src, seg, n):
    out = torch.zeros((n,) + src.shape[1:], dtype=src.dtype)
    return out.index_add_(0, seg, src)

def _pad(x, pw):
    flat = tuple((v for pair in reversed(pw) for v in pair))
    return torch.nn.functional.pad(x, flat)
kernel_name = 'standalone__autoregressive_conv_wavernn__speech'

def setup_inputs():

    _w = lambda a: (lambda t: t.to(torch.bfloat16) if t.is_floating_point() else t)(torch.as_tensor(a))
    B, T, D, K = (2, 4000, 144, 31)
    return {'x': _w((lambda *s: torch.randn(*s, dtype=torch.bfloat16) * 0.1)(B, T, D)), 'w': _w((lambda *s: torch.randn(*s, dtype=torch.bfloat16) * 0.1)(K, D, 2 * D))}

def reference(x, w):
    B, T, D = x.shape
    K = w.shape[0]
    dil = 2
    pad = (K - 1) * dil
    xp = _pad(x, ((0, 0), (pad, 0), (0, 0)))
    h = torch.einsum('btd,de->bte', xp[:, 0:T, :], w[0])
    for i in range(1, K):
        h = h + torch.einsum('btd,de->bte', xp[:, i * dil:i * dil + T, :], w[i])
    f, g = (h[..., :D].clone(), h[..., D:].clone())
    return torch.tanh(f) * _sigmoid(g)
```

```python
import re, sys, argparse

KN = 'standalone__autoregressive_conv_wavernn__speech_kernel'
NWG = 252
NPROD = 162
SL = 162
ARR = 18 * SL * 16
X_D0, X_O, X_D1 = 0, ARR, 2 * ARR
CNT = 3 * ARR
LDS_BYTES = CNT + 64
NSTEP = 106
WOFF = 0x100000
FOFF = 0x0
NONCE = 0x10000
DIAG = 0x800000
WS_REC = 0x1000000
TAGINC = 0x9E3779B9

class Em:
    def __init__(self):
        self.L = []
    def __call__(self, s):
        self.L.append(s)
    def text(self):
        return '\n'.join(self.L) + '\n'

def vr(a, n=1):
    return f'v{a}' if n == 1 else f'v[{a}:{a+n-1}]'

def streams():
    out = []
    for typ in (0, 1):
        S = []
        pid = 0
        def add(arr, chunk, cs, acc):
            nonlocal pid
            for c in cs:
                S.append((pid, arr, chunk, c, acc))
            pid += 1
        if typ == 0:
            add('O', 0, range(16), 'P'); add('O', 1, range(16), 'P'); add('O', 'rem', range(0, 2), 'P')
            for q in range(4): add('D', q, range(16), 'Q')
            add('D', 'rem', range(8), 'Q')
        else:
            add('O', 2, range(16), 'P'); add('O', 3, range(16), 'P'); add('O', 'rem', range(2, 8), 'P')
            for q in range(4): add('D', q, range(15), 'Q')
            add('D', 'rem', range(8), 'Q')
        assert len(S) == NSTEP
        out.append(S)
    return out

TRANS = ('v_exp_f32', 'v_rcp_f32', 'v_log_f32', 'v_rsq_f32', 'v_sqrt_f32')
def regs(op):
    op = op.strip().lstrip('-').strip('|')
    m = re.fullmatch(r'v(\d+)', op)
    if m: return {int(m.group(1))}
    m = re.fullmatch(r'v\[(\d+):(\d+)\]', op)
    if m: return set(range(int(m.group(1)), int(m.group(2)) + 1))
    return set()
def parse(ins):
    ins = ins.split(';')[0].strip()
    if not ins or ins.endswith(':') or ins.startswith('.'): return None
    parts = ins.split(None, 1)
    mn = parts[0]
    ops = []
    if len(parts) > 1:
        ops = [o.strip() for o in re.split(r',\s*(?![^\[]*\])', parts[1])]
        ops = [o.split(' ')[0] for o in ops]
    d = dict(mn=mn, w=set(), r=set(), c=set(), kind='s', states=1)
    if mn == 's_nop': d['states'] = int(ops[0]) + 1
    if mn.startswith('v_mfma'):
        d['kind'] = 'mfma'; d['w'] = regs(ops[0]); d['r'] = regs(ops[1]) | regs(ops[2]); d['c'] = regs(ops[3])
    elif mn.startswith('v_'):
        d['kind'] = 'valu'
        if mn.startswith('v_cmp') or mn.startswith('v_readfirstlane') or mn.startswith('v_readlane'):
            for o in ops[1:]: d['r'] |= regs(o)
        else:
            d['w'] = regs(ops[0])
            for o in ops[1:]: d['r'] |= regs(o)
            if mn.startswith('v_fmac') or 'swap' in mn or mn.startswith('v_writelane'): d['r'] |= d['w']
            if 'swap' in mn: d['w'] |= regs(ops[1])
    elif mn.startswith('ds_read'):
        d['kind'] = 'mem'; d['w'] = regs(ops[0]); d['r'] = regs(ops[1])
    elif mn.startswith('ds_write'):
        d['kind'] = 'mem'
        for o in ops: d['r'] |= regs(o)
    elif mn.startswith('ds_'):
        d['kind'] = 'mem'; d['w'] = regs(ops[0])
        for o in ops[1:]: d['r'] |= regs(o)
    elif mn.startswith('buffer_load'):
        d['kind'] = 'mem'; d['w'] = regs(ops[0]); d['r'] = regs(ops[1])
    elif mn.startswith('buffer_store') or mn.startswith('buffer_atomic'):
        d['kind'] = 'mem'; d['r'] = regs(ops[0]) | regs(ops[1]); d['store'] = regs(ops[0])
    return d
def check(lines):
    P = [(l, parse(l)) for l in lines]
    P = [(l, p) for l, p in P if p]
    errs = 0
    for i, (li, a) in enumerate(P):
        dist = 0
        for k in range(i + 1, min(i + 24, len(P))):
            lk, b = P[k]
            need = 0
            if a['kind'] == 'mfma':
                if b['kind'] in ('valu', 'mem') and (a['w'] & (b['r'] | b['w'])): need = 8
                if b['kind'] == 'mfma' and (a['w'] & b['r']): need = 8
                if b['kind'] == 'mfma' and (a['w'] & b['c']) and a['w'] != b['c']: need = 6
                if b['kind'] == 'valu' and (a['c'] & b['w']): need = max(need, 3)
            if a['kind'] == 'valu':
                if b['kind'] == 'mfma' and (a['w'] & (b['r'] | b['c'])): need = 2
                if a['mn'] in TRANS and b['kind'] == 'valu' and b['mn'] not in TRANS and (a['w'] & b['r']): need = max(need, 1)
                if b['mn'].startswith(('v_readfirstlane', 'v_readlane')) and (a['w'] & b['r']): need = max(need, 1)
                if b['mn'].startswith('v_permlane') and (a['w'] & b['r']): need = max(need, 2)
                if '_dpp' in b['mn'] and (a['w'] & b['r']): need = max(need, 2)
            if a.get('store') and len(a['store']) >= 3 and b['kind'] == 'valu' and (a['store'] & b['w']): need = max(need, 2)
            if dist < need:
                print(f'HAZARD need {need} have {dist}:\n   {li}\n   {lk}', file=sys.stderr); errs += 1
            dist += b['states']
            if b['mn'] in ('s_branch', 's_endpgm'): break
    return errs

S_X, S_W, S_WO, S_WS, S_OUT, S_DBG = 20, 24, 28, 32, 36, 40
def srd(e, d, ptr, rec, add=None):
    if add is None:
        e(f's_mov_b32 s{d}, s{ptr}')
        e(f's_and_b32 s{d+1}, s{ptr+1}, 0xffff')
    else:
        e(f's_add_u32 s{d}, s{ptr}, s{add}')
        e(f's_addc_u32 s{d+1}, s{ptr+1}, 0')
        e(f's_and_b32 s{d+1}, s{d+1}, 0xffff')
    e(f's_mov_b32 s{d+2}, {rec}')
    e(f's_mov_b32 s{d+3}, 0x20000')

def stamp(e, o, k):
    if o.diag: e(f's_memrealtime s[{70+2*k}:{71+2*k}]')

def dump(e, o, nst, lane):
    if not o.diag: return
    e('s_waitcnt lgkmcnt(0)')
    e('v_mov_b32 v250, 0')
    for k in range(nst):
        e(f'v_writelane_b32 v250, s{70+2*k}, {k}')
    e('s_getreg_b32 s60, hwreg(HW_REG_XCC_ID)')
    e('v_writelane_b32 v250, s60, 15')
    e('s_lshl_b32 s60, s2, 3'); e('s_add_u32 s60, s60, s14'); e('s_lshl_b32 s60, s60, 6'); e(f's_add_u32 s60, s60, {DIAG}')
    e(f'v_lshl_add_u32 v251, v{lane}, 2, s60')
    e(f'v_cmp_gt_u32 vcc, 16, v{lane}')
    e('s_and_saveexec_b64 s[62:63], vcc')
    e(f'buffer_store_dword v250, v251, s[{S_WS}:{S_WS+3}], 0 offen')
    e('s_mov_b64 exec, s[62:63]')

def prod_lane_setup(e):
    e('s_lshl_b32 s45, s44, 6')
    e('v_add_u32 v4, s45, v1')
    e('v_cmp_le_u32 vcc, 288, v4')
    e('v_subrev_u32 v5, 288, v4')
    e('s_nop 0')
    e('v_cndmask_b32 v6, 0, 1, vcc')
    e('v_cndmask_b32 v4, v4, v5, vcc')
    e('v_lshrrev_b32 v5, 4, v4')
    e('v_and_b32 v7, 15, v4')
    e('v_lshrrev_b32 v8, 2, v7')
    e('v_lshlrev_b32 v8, 1, v8')
    e('v_lshl_add_u32 v8, v5, 3, v8')
    e('v_and_b32 v9, 1, v7')
    e('v_add_u32 v8, v8, v9')
    e('v_bfe_u32 v9, v7, 1, 1')
    e('v_mul_u32_u24 v9, 144, v9')
    e('v_add_u32 v8, v8, v9')
    e('v_mul_u32_u24 v9, 4608, v6')
    e('v_lshl_add_u32 v2, v8, 1, v9')
    e(f'v_mul_u32_u24 v3, {2*NSTEP*1024}, v5')
    e('v_lshlrev_b32 v9, 8, v6')
    e('v_lshl_add_u32 v9, v7, 4, v9')
    e('v_add_u32 v3, v3, v9')

def prod_task_scalars(e, pair, base):
    c, kp, q, cc, kk, t = 46, 47, 48, 49, 50, 51
    e(f's_and_b32 s{c}, s{pair}, 15')
    e(f's_lshr_b32 s{kp}, s{pair}, 4')
    e(f's_mul_i32 s{base}, s{c}, 165888')
    e(f's_mul_i32 s{t}, s{kp}, 9216')
    e(f's_add_u32 s{base}, s{base}, s{t}')
    e(f's_add_u32 s{base+1}, s{base}, 82944')
    e(f's_lshr_b32 s{q}, s{kp}, 1')
    e(f's_and_b32 s{cc}, s{c}, 7')
    e(f's_lshr_b32 s{kk}, s{c}, 3')
    e(f's_and_b32 s{t}, s{kp}, 1')
    e(f's_cmp_eq_u32 s{kp}, 8')
    e(f's_cselect_b32 s{cc}, s{cc}, s{c}')
    e(f's_cselect_b32 s{kk}, s{kk}, s{t}')
    e(f's_lshl_b32 s{kk}, s{kk}, 9')
    e(f's_add_u32 s{kk}, s{kk}, {WOFF}')
    e(f's_lshl_b32 s{t}, s{q}, 4')
    e(f's_add_u32 s{base+2}, s{t}, s{cc}')
    e(f's_sub_u32 s{base+3}, s{base+2}, s{q}')
    e(f's_cmp_ge_u32 s{q}, 2')
    e(f's_cselect_b32 s{base+4}, 74, 0')
    e(f's_add_u32 s{base+4}, s{base+4}, s{base+2}')
    e(f's_cmp_lt_u32 s{cc}, 2')
    e(f's_cselect_b32 s{t}, 32, 136')
    e(f's_add_u32 s{t}, s{t}, s{cc}')
    e(f's_cmp_eq_u32 s{kp}, 8')
    e(f's_cselect_b32 s{base+4}, s{t}, s{base+4}')
    e(f's_add_u32 s{base+2}, s{base+2}, 34')
    e(f's_add_u32 s{base+3}, s{base+3}, 144')
    for k in (2, 3, 4):
        e(f's_lshl_b32 s{base+k}, s{base+k}, 10')
        e(f's_add_u32 s{base+k}, s{base+k}, s{kk}')
    e(f's_cmp_eq_u32 s{kp}, 8')
    e(f's_cselect_b32 s{t}, 1, 2')
    e(f's_cmp_eq_u32 s{c}, 15')
    e(f's_cselect_b32 s{base+5}, s{t}, 0')

def gen(o):
    e = Em()
    hdr = Em()
    hdr(f'; @launch grid=({NWG},1,1) block=(512,1,1) lds={LDS_BYTES}')
    e('.amdgcn_target "amdgcn-amd-amdhsa--gfx950"')
    e('.text')
    e(f'.globl {KN}')
    e('.p2align 8')
    e(f'.type {KN},@function')
    e(f'{KN}:')
    e(f's_cmp_ge_u32 s2, {NWG}')
    e('s_cbranch_scc1 L_end')
    stamp(e, o, 0)
    e('s_load_dwordx4 s[4:7], s[0:1], 0')
    e('s_load_dwordx4 s[8:11], s[0:1], 16')
    e('s_load_dwordx2 s[12:13], s[0:1], 32')
    e('v_lshrrev_b32 v2, 6, v0')
    e('v_and_b32 v1, 63, v0')
    e('v_readfirstlane_b32 s14, v2')
    e('s_and_b32 s44, s2, 7')
    e('s_lshr_b32 s45, s2, 3')
    e('s_mul_i32 s46, s44, 31')
    e('s_min_u32 s44, s44, 4')
    e('s_add_u32 s46, s46, s44')
    e('s_add_u32 s46, s46, s45')
    if o.map == 0:
        e('s_mul_hi_u32 s47, s46, 68174085')
        e('s_mul_i32 s48, s47, 63')
        e('s_sub_u32 s48, s46, s48')
        e('s_mul_hi_u32 s15, s48, 613566757')
        e('s_mul_i32 s49, s15, 7')
        e('s_sub_u32 s49, s48, s49')
        e('s_mul_i32 s47, s47, 7')
        e('s_add_u32 s47, s47, s49')
    else:
        e('s_mul_hi_u32 s47, s46, 477218589')
        e('s_mul_i32 s48, s47, 9')
        e('s_sub_u32 s15, s46, s48')
    e('s_and_b32 s17, s47, 1')
    e('s_lshr_b32 s47, s47, 1')
    e('s_cmp_ge_u32 s47, 7')
    e('s_cselect_b32 s16, 1, 0')
    e('s_cselect_b32 s48, 7, 0')
    e('s_sub_u32 s18, s47, s48')
    e('s_mul_i32 s19, s16, 1152000')
    e('s_cmp_ge_u32 s14, 4')
    e('s_cbranch_scc1 L_helper')

    e('s_mul_i32 s44, s18, 144')
    e('s_mul_i32 s45, s14, 40')
    e('s_add_u32 s46, s44, s45')
    e('s_lshl_b32 s46, s46, 2')
    e('s_add_u32 s46, s46, s17')
    e('s_sub_u32 s46, s46, 60')
    e('s_mul_i32 s46, s46, 288')
    e('v_and_b32 v2, 7, v1')
    e('v_lshrrev_b32 v3, 3, v1')
    e('v_mul_u32_u24 v4, 5760, v3')
    e('v_lshl_add_u32 v4, v2, 4, v4')
    e('v_add_u32 v10, s46, v4')
    for k in range(1, 11):
        e(f'v_add_u32 v{10+k}, {576*k}, v10')
    e('v_lshrrev_b32 v5, 1, v1')
    e('v_and_b32 v6, 1, v1')
    e('v_mul_u32_u24 v7, 2304, v5')
    e('v_lshl_add_u32 v7, v6, 4, v7')
    e('v_add_u32 v7, 256, v7')
    e('v_add_u32 v21, s46, v7')
    for k in range(1, 5):
        e(f'v_add_u32 v{21+k}, {576*k}, v21')
    e(f'v_mul_u32_u24 v26, {SL}, v2')
    e('v_mul_u32_u24 v27, 5, v3')
    e('v_add3_u32 v26, v26, v27, s45')
    e('v_lshlrev_b32 v26, 4, v26')
    e(f'v_add_u32 v27, {X_O + 8*SL*16}, v26')
    e(f'v_mul_u32_u24 v28, {SL}, v6')
    e('v_lshl_add_u32 v28, v5, 1, v28')
    e('v_add_u32 v28, s45, v28')
    e(f'v_add_u32 v28, {16*SL}, v28')
    e('v_lshlrev_b32 v28, 4, v28')
    e(f'v_add_u32 v29, {X_D1}, v28')
    e('s_mov_b32 s52, 0xffff0000')
    e('s_waitcnt lgkmcnt(0)')
    srd(e, S_X, 4, 1152000, add=19)
    srd(e, S_WS, 12, WS_REC)
    srd(e, S_OUT, 8, 1152000, add=19)
    e('s_barrier')
    stamp(e, o, 1)
    RAW = 64
    order = [('E', 0, 0), ('E', 0, 1)]
    for j in range(5):
        order += [('O', j, 0), ('E', j + 1, 0), ('O', j, 1), ('E', j + 1, 1)]
        if j == 1: order += [('E', 0, 2), ('O', 0, 2), ('E', 1, 2), ('O', 1, 2), ('E', 2, 2)]
    raw = {}
    for idx, (a, j, sg) in enumerate(order):
        raw[(a, j, sg)] = (RAW + 4 * idx, idx)
        k = 2 * j + (a == 'O')
        if sg < 2:
            e(f'buffer_load_dwordx4 {vr(RAW+4*idx,4)}, v{10+k}, s[{S_X}:{S_X+3}], 0 offen' + (' offset:128' if sg else ''))
        else:
            e(f'buffer_load_dwordx4 {vr(RAW+4*idx,4)}, v{21+k}, s[{S_X}:{S_X+3}], 0 offen')
    NL = len(order)
    e('v_and_b32 v2, 15, v1')
    e('v_lshrrev_b32 v3, 4, v1')
    e('v_lshlrev_b32 v4, 1, v2')
    e('v_subrev_u32 v5, 8, v4')
    e('v_add_u32 v6, 1, v4')
    e('v_subrev_u32 v7, 15, v4')
    e('v_cmp_gt_u32 vcc, 4, v2')
    e('s_nop 1')
    e('v_cndmask_b32 v5, v5, v6, vcc')
    e('v_cmp_le_u32 vcc, 12, v2')
    e('s_nop 1')
    e('v_cndmask_b32 v5, v5, v7, vcc')
    e('v_mul_u32_u24 v5, 9, v5')
    e(f'v_mul_u32_u24 v6, {SL}, v3')
    e('v_add_lshl_u32 v6, v6, v5, 4')
    e('v_and_b32 v7, 1, v3')
    e(f'v_mul_u32_u24 v7, {SL}, v7')
    e('v_lshrrev_b32 v8, 1, v3')
    e('v_lshl_add_u32 v7, v8, 3, v7')
    e(f'v_add_u32 v7, {16*SL}, v7')
    e('v_add_lshl_u32 v7, v7, v5, 4')
    e('s_and_b32 s53, s14, 1')
    e('s_lshr_b32 s54, s14, 1')
    e(f's_mul_i32 s55, s53, {X_D1}')
    VXO, VXOR, VXD, VXDR, VWL, VEX, VEXP, VOUT = 30, 31, 32, 33, 34, 35, 36, 37
    e(f'v_add_u32 v{VXO}, {X_O}, v6')
    e(f'v_add_u32 v{VXOR}, {X_O}, v7')
    e(f'v_add_u32 v{VXD}, s55, v6')
    e(f'v_add_u32 v{VXDR}, s55, v7')
    e(f'v_lshlrev_b32 v{VWL}, 4, v1')
    e('s_mul_i32 s55, s14, 9216')
    e(f's_add_u32 s55, s55, {X_O}')
    e(f'v_add_u32 v{VEX}, s55, v{VWL}')
    e('s_xor_b32 s55, s14, 1')
    e('s_mul_i32 s55, s55, 9216')
    e(f's_add_u32 s55, s55, {X_O}')
    e(f'v_add_u32 v{VEXP}, s55, v{VWL}')
    e('s_lshl_b32 s55, s44, 2')
    e('s_lshl_b32 s56, s53, 1')
    e('s_add_u32 s55, s55, s56')
    e('s_add_u32 s55, s55, s17')
    e('s_mul_i32 s55, s55, 288')
    e('s_lshl_b32 s56, s15, 5')
    e('s_add_u32 s55, s55, s56')
    e('s_lshl_b32 s56, s54, 4')
    e('s_add_u32 s55, s55, s56')
    e('v_mul_u32_u24 v8, 1152, v5')
    e('v_lshl_add_u32 v8, v3, 2, v8')
    e(f'v_add_u32 v{VOUT}, s55, v8')
    e(f'v_add_u32 v{VOUT+1}, 3456, v{VOUT}')
    e(f'v_add_u32 v{VOUT+2}, 6912, v{VOUT}')
    e('s_lshl_b32 s55, s15, 1')
    e('s_add_u32 s55, s55, s54')
    e('s_lshl_b32 s55, s55, 1')
    e('s_add_u32 s55, s55, s53')
    e(f's_mul_i32 s57, s55, {NSTEP*1024}')
    e(f's_add_u32 s57, s57, {WOFF}')
    e('s_mov_b32 s58, 0x4038aa3b')
    e('s_mov_b32 s59, 0x4038aa3b')
    e('s_mov_b32 s60, 0xbfb8aa3b')
    e('s_mov_b32 s61, 0xbfb8aa3b')
    e('s_mov_b32 s64, 0x42700000')
    EU = {(0, 0): 176, (0, 1): 184, (1, 0): 192, (1, 1): 200}
    OU, DT, DO = 208, 216, 224
    waited = [-1]
    def need(key):
        idx = raw[key][1]
        if idx > waited[0]:
            e(f's_waitcnt vmcnt({NL-1-idx})')
            waited[0] = idx
    def unpack(dst, key):
        need(key)
        s = raw[key][0]
        for i in range(4):
            e(f'v_lshlrev_b32 v{dst+2*i}, 16, v{s+i}')
            e(f'v_and_b32 v{dst+2*i+1}, s52, v{s+i}')
    flip = [0]
    def diff(eu, out):
        for i in range(4):
            e(f'v_pk_add_f32 {vr(DT+2*i,2)}, {vr(eu+2*i,2)}, {vr(OU+2*i,2)} neg_lo:[0,1] neg_hi:[0,1]')
        for i in range(4):
            e(f'v_cvt_pk_bf16_f32 v{out+i}, v{DT+2*i}, v{DT+2*i+1}')
    def rowtask(j, sg, eu_cur, eu_nxt, wr):
        unpack(OU, ('O', j, sg))
        o0 = DO + 8 * (flip[0] & 1); flip[0] += 1
        wr('O', raw[('O', j, sg)][0])
        diff(eu_cur, o0)
        wr('D0', o0)
        unpack(eu_nxt, ('E', j + 1, sg))
        diff(eu_nxt, o0 + 4)
        wr('D1', o0 + 4)
    unpack(EU[(0, 0)], ('E', 0, 0))
    unpack(EU[(1, 0)], ('E', 0, 1))
    for j in range(5):
        for sg in range(2):
            def wr(a, src, j=j, sg=sg):
                off = {'D0': X_D0, 'O': X_O, 'D1': X_D1}[a] + sg * 8 * SL * 16 + 16 * j
                base = 26
                if off >= 65536 - 16:
                    base = 27; off -= X_O + 8 * SL * 16
                e(f'ds_write_b128 v{base}, {vr(src,4)} offset:{off}')
            rowtask(j, sg, EU[(sg, j & 1)], EU[(sg, (j + 1) & 1)], wr)
        if j == 1:
            ER = [232, 240]
            e('s_mov_b32 exec_hi, 0xff')
            unpack(ER[0], ('E', 0, 2))
            for j2 in range(2):
                def wr(a, src, j2=j2):
                    if a == 'D1': e(f'ds_write_b128 v29, {vr(src,4)} offset:{16*j2}')
                    else: e(f'ds_write_b128 v28, {vr(src,4)} offset:{(X_O if a == "O" else 0) + 16*j2}')
                rowtask(j2, 2, ER[j2 & 1], ER[(j2 + 1) & 1], wr)
            e('s_mov_b64 exec, -1')
    e('s_waitcnt lgkmcnt(0)')
    stamp(e, o, 2)
    e('s_barrier')
    stamp(e, o, 3)
    e('s_setprio 2')
    e('s_cmp_eq_u32 s53, 1')
    e('s_cbranch_scc1 L_typeB')

    ACC = {'P': 64, 'Q': 100}
    WR, XR, TMP = 136, 200, 224
    NXR = 6
    PF = o.pf
    wflags = ' sc1' if o.wsc1 else ''
    for typ, S in enumerate(streams()):
        if typ == 1: e('.p2align 6'); e('L_typeB:')
        sec = len(e.L)
        issued = [0]
        def wload():
            g = issued[0]
            if g >= NSTEP: return
            e(f'buffer_load_dwordx4 {vr(WR+4*(g%16),4)}, v{VWL}, s[{S_WS}:{S_WS+3}], s57 offen offset:{1024*(g%4)}{wflags}')
            if g % 4 == 3: e('s_add_u32 s57, s57, 4096')
            issued[0] += 1
        def keys(v):
            ks = []
            for j in range(8, -1, -1):
                g = v - j
                if 0 <= g < NSTEP:
                    pid, arr, ch, c, acc = S[g]
                    k = (pid, arr, ch, c + j)
                    if k not in ks: ks.append(k)
            return ks
        xreg = {}
        xn = [0]
        def xread(k):
            pid, arr, ch, s = k
            r = XR + 4 * (xn[0] % NXR); xn[0] += 1
            xreg[k] = r
            if ch == 'rem':
                return f'ds_read_b128 {vr(r,4)}, v{VXOR if arr == "O" else VXDR} offset:{16*s}'
            return f'ds_read_b128 {vr(r,4)}, v{VXO if arr == "O" else VXD} offset:{(4*ch*SL+s)*16}'
        for _ in range(PF): wload()
        for k in keys(0): e(xread(k))
        NV = NSTEP + 8
        lastP = max(g for g in range(NSTEP) if S[g][4] == 'P')
        VB1, VB2 = 47, 58
        fill = []
        def epi(j):
            q = ACC['Q'] + 4 * j
            t = TMP + 8 * (j & 1)
            I = []
            I.append(f'v_pk_mul_f32 {vr(t,2)}, {vr(q,2)}, s[58:59]')
            I.append(f'v_pk_mul_f32 {vr(t+2,2)}, {vr(q+2,2)}, s[60:61]')
            I.append(f'v_min_f32 v{t}, s64, v{t}')
            I.append(f'v_min_f32 v{t+1}, s64, v{t+1}')
            for i in (2, 3, 0, 1): I.append(f'v_exp_f32 v{t+i}, v{t+i}')
            I.append('s_nop 0')
            I.append(f'v_pk_add_f32 {vr(t+4,2)}, {vr(t,2)}, 1.0 op_sel_hi:[1,0]')
            I.append(f'v_pk_add_f32 {vr(t+6,2)}, {vr(t,2)}, -1.0 op_sel_hi:[1,0]')
            I.append(f'v_pk_fma_f32 {vr(t+4,2)}, {vr(t+4,2)}, {vr(t+2,2)}, {vr(t+4,2)}')
            I.append(f'v_rcp_f32 v{t+4}, v{t+4}')
            I.append(f'v_rcp_f32 v{t+5}, v{t+5}')
            I.append('s_nop 0')
            I.append(f'v_pk_mul_f32 {vr(t+6,2)}, {vr(t+6,2)}, {vr(t+4,2)}')
            I.append(f'v_cvt_pk_bf16_f32 v{ACC["P"]+j}, v{t+6}, v{t+7}')
            I.append(f'buffer_store_dword v{ACC["P"]+j}, v{VOUT + j//3}, s[{S_OUT}:{S_OUT+3}], 0 offen offset:{1152*(j%3)}')
            return I
        since = {}
        for v in range(NV):
            slots = {}
            js = [j for j in range(8, -1, -1) if 0 <= v - j < NSTEP]
            nxt = keys(v + 1) if v + 1 < NV else []
            pre = ['s_waitcnt lgkmcnt(0)']
            extra = []
            if v - 8 >= -8 and issued[0] < NSTEP and issued[0] <= v + PF: extra.append('W')
            extra += [('X', k) for k in nxt]
            if VB1 < v <= VB1 + 9: extra.append(f'ds_write_b128 v{VEX}, {vr(ACC["P"]+4*(v-VB1-1),4)} offset:{1024*(v-VB1-1)}')
            jr = v - (VB2 + 1)
            if 0 <= jr < 9: extra.append(f'ds_read_b128 {vr(TMP+4*(jr&1),4)}, v{VEXP} offset:{1024*jr}')
            ja = v - (VB2 + 2)
            for x in pre: e(x)
            if v == VB1 or v == VB2: e('s_barrier')
            for n, j in enumerate(js):
                g = v - j
                pid, arr, ch, c, acc = S[g]
                k = (pid, arr, ch, c + j)
                if 0 <= ja < 9:
                    if j == ja + 2 and ja <= 6:
                        q = ACC['Q'] + 4 * ja; t = TMP + 4 * (ja & 1)
                        e(f'v_pk_add_f32 {vr(q,2)}, {vr(q,2)}, {vr(t,2)}')
                        e(f'v_pk_add_f32 {vr(q+2,2)}, {vr(q+2,2)}, {vr(t+2,2)}')
                    if ja >= 7 and j == ja - 7:
                        q = ACC['Q'] + 4 * ja; t = TMP + 4 * (ja & 1)
                        e(f'v_pk_add_f32 {vr(q,2)}, {vr(q,2)}, {vr(t,2)}')
                        e(f'v_pk_add_f32 {vr(q+2,2)}, {vr(q+2,2)}, {vr(t+2,2)}')
                if j == 0:
                    e(f's_waitcnt vmcnt({issued[0]-1-g})')
                d = ACC[acc] + 4 * j
                if g == 0: cs = '0'
                elif acc == 'Q' and S[g-1][4] == 'P': cs = vr(ACC['P'] + 4 * j, 4)
                else: cs = vr(d, 4)
                e(f'v_mfma_f32_16x16x32_bf16 {vr(d,4)}, {vr(WR+4*(g%16),4)}, {vr(xreg[k],4)}, {cs}')
                for jj in since: since[jj] += 1
                if g == NSTEP - 1: since[j] = 0
                if extra:
                    x = extra.pop(0)
                    if x == 'W': wload()
                    elif isinstance(x, tuple): e(xread(x[1]))
                    else: e(x)
                    for jj in since: since[jj] += 1
                for jj in sorted(since):
                    if since[jj] >= 8 and since[jj] < 10**6:
                        fill += epi(jj); since[jj] = 10**6
                nf = o.nfill
                while fill and nf > 0:
                    e(fill.pop(0)); nf -= 1
                    for jj in since: since[jj] += 1
            for x in extra:
                if x == 'W': wload()
                elif isinstance(x, tuple): e(xread(x[1]))
                else: e(x)
        stamp(e, o, 4)
        rem = [jj for jj in sorted(since) if since[jj] < 10**6]
        while fill:
            e(fill.pop(0))
            for jj in since: since[jj] += 1
        for jj in rem:
            if since[jj] < 8: e(f's_nop {8-since[jj]-1}')
            for x in epi(jj):
                e(x)
                for j2 in since: since[j2] += 1
        stamp(e, o, 5)
        if o.diag:
            e('s_waitcnt vmcnt(0)')
            stamp(e, o, 6)
            dump(e, o, 7, 1)
        e('s_endpgm')

    e('.p2align 6')
    e('L_helper:')
    e('s_sub_u32 s53, s14, 4')
    e('s_mul_hi_u32 s54, s2, 477218589')
    e('s_mul_i32 s44, s54, 9')
    e('s_sub_u32 s44, s2, s44')
    e('s_lshl_b32 s55, s54, 3')
    e('s_lshl_b32 s56, s53, 1')
    e('s_add_u32 s55, s55, s56')
    e('s_mov_b32 s65, 0')
    e('s_mov_b32 s66, 0x07060302')
    e(f'v_mov_b32 v10, {CNT}')
    e('v_mov_b32 v11, 0')
    e('s_cmp_lg_u32 s53, 0')
    e('s_cbranch_scc1 L_noinit')
    e('ds_write_b32 v10, v11')
    e('L_noinit:')
    e('s_waitcnt lgkmcnt(0)')
    e(f's_load_dword s67, s[12:13], {NONCE}')
    srd(e, S_W, 6, 2571264)
    srd(e, S_WO, 6, 2571264)
    srd(e, S_WS, 12, WS_REC)
    srd(e, S_DBG, 10, 256)
    e(f's_cmp_ge_u32 s2, {NPROD}')
    e('s_cbranch_scc1 L_noprod')
    e('L_prod:')
    prod_lane_setup(e)
    T = [(64, 84), (128, 90)]
    for ti, (vb, sb) in enumerate(T):
        e(f's_add_u32 s56, s55, {ti}')
        prod_task_scalars(e, 56, sb)
        for r in range(16): e(f'v_mov_b32 v{vb+r}, 0')
        e(f's_cmp_eq_u32 s{sb+5}, 0')
        e(f's_cselect_b32 s{S_WO+2}, 2571264, 0')
        for r in range(8):
            e(f'buffer_load_short_d16_hi v{vb+r}, v2, s[{S_W}:{S_W+3}], s{sb} offen offset:{576*r}')
        for r in range(8):
            e(f'buffer_load_short_d16_hi v{vb+8+r}, v2, s[{S_WO}:{S_WO+3}], s{sb+1} offen offset:{576*r}')
    e('s_cmp_lg_u32 s65, 0')
    e('s_cbranch_scc1 L_nob0')
    e('s_barrier')
    e('L_nob0:')
    stamp(e, o, 1)
    for ti, (vb, sb) in enumerate(T):
        e(f's_waitcnt vmcnt({24 if ti == 0 else 8+2})')
        for i in range(4):
            e(f'v_perm_b32 v{vb+16+i}, v{vb+2*i+1}, v{vb+2*i}, s66')
        e(f'buffer_store_dwordx4 {vr(vb+16,4)}, v3, s[{S_WS}:{S_WS+3}], s{sb+2} offen sc1')
        e(f's_waitcnt vmcnt({17 if ti == 0 else 3})')
        for i in range(4):
            e(f'v_pk_add_f32 {vr(vb+28+2*i,2)}, {vr(vb+2*i,2)}, {vr(vb+8+2*i,2)}')
        for i in range(4):
            e(f'v_cvt_pk_bf16_f32 v{vb+24+i}, v{vb+28+2*i}, v{vb+29+2*i}')
        e(f'buffer_store_dwordx4 {vr(vb+24,4)}, v3, s[{S_WS}:{S_WS+3}], s{sb+4} offen sc1')
        for i in range(4):
            e(f'v_perm_b32 v{vb+20+i}, v{vb+8+2*i+1}, v{vb+8+2*i}, s66')
        e(f's_cmp_eq_u32 s{sb+5}, 2')
        e(f's_cbranch_scc1 L_skip{ti}')
        e(f'buffer_store_dwordx4 {vr(vb+20,4)}, v3, s[{S_WS}:{S_WS+3}], s{sb+3} offen sc1')
        e(f'L_skip{ti}:')
    stamp(e, o, 2)
    e('s_waitcnt vmcnt(0)')
    e('s_cmp_lg_u32 s65, 0')
    e('s_cbranch_scc1 L_fbnext')
    e('s_branch L_arrive')
    e('L_noprod:')
    e('s_barrier')
    stamp(e, o, 1)
    stamp(e, o, 2)
    e('L_arrive:')
    stamp(e, o, 3)
    e('s_waitcnt lgkmcnt(0)')
    e(f's_add_u32 s67, s67, {TAGINC}')
    e('v_mov_b32 v12, 1')
    e('v_mov_b32 v14, s67')
    e('s_mov_b64 exec, 1')
    e('ds_add_rtn_u32 v13, v10, v12')
    e('s_waitcnt lgkmcnt(0)')
    e('v_readfirstlane_b32 s68, v13')
    e('s_nop 3')
    e('s_cmp_lg_u32 s68, 3')
    e('s_cbranch_scc1 L_notlast')
    e(f's_cmp_ge_u32 s2, {NPROD}')
    e('s_cbranch_scc1 L_noflag')
    e(f's_mul_i32 s44, s2, {o.fstride}')
    e(f's_add_u32 s44, s44, {FOFF}')
    e('v_mov_b32 v15, s44')
    e(f'buffer_store_dword v14, v15, s[{S_WS}:{S_WS+3}], 0 offen sc1')
    e('L_noflag:')
    e('L_notlast:')
    e('s_mov_b64 exec, -1')
    e('s_mov_b32 s69, 0')
    e('s_cmp_lg_u32 s53, 0')
    e('s_cbranch_scc1 L_go')
    e('s_lshr_b32 s44, s15, 1')
    e('s_add_u32 s45, s15, 9')
    e('s_lshr_b32 s45, s45, 1')
    e('v_mov_b32 v14, s67')
    e('v_and_b32 v16, 31, v1')
    e('v_min_u32 v16, 17, v16')
    e('v_mul_u32_u24 v16, 9, v16')
    e('v_mov_b32 v17, s44')
    e('v_mov_b32 v18, s45')
    e('v_cmp_gt_u32 vcc, 32, v1')
    e('s_nop 1')
    e('v_cndmask_b32 v17, v18, v17, vcc')
    e('v_add_u32 v16, v16, v17')
    e(f'v_mul_u32_u24 v16, {o.fstride}, v16')
    if FOFF: e(f'v_add_u32 v16, {FOFF}, v16')
    e('s_mov_b32 s69, 0')
    e('L_poll:')
    e(f'buffer_load_dword v17, v16, s[{S_WS}:{S_WS+3}], 0 offen sc1')
    e('s_add_u32 s69, s69, 1')
    e('s_waitcnt vmcnt(0)')
    e('v_cmp_ne_u32 vcc, v17, v14')
    e('s_nop 4')
    e('s_cbranch_vccz L_go')
    if o.sleep: e(f's_sleep {o.sleep}')
    e(f's_cmp_lt_u32 s69, {o.maxpoll}')
    e('s_cbranch_scc1 L_poll')
    e('s_mov_b32 s65, 1')
    e('s_lshr_b32 s44, s15, 1')
    e('s_mov_b32 s55, 0')
    e('s_branch L_prod')
    e('L_fbnext:')
    e('s_add_u32 s55, s55, 2')
    e('s_cmp_lt_u32 s55, 144')
    e('s_cbranch_scc1 L_prod')
    e('s_mov_b32 s55, 0')
    e('s_add_u32 s44, s15, 9')
    e('s_lshr_b32 s44, s44, 1')
    e('s_add_u32 s65, s65, 1')
    e('s_cmp_eq_u32 s65, 2')
    e('s_cbranch_scc1 L_prod')
    e('L_go:')
    stamp(e, o, 4)
    e('s_barrier')
    e('s_cmp_lg_u32 s68, 3')
    e('s_cbranch_scc1 L_hend')
    e(f'v_mov_b32 v15, {NONCE}')
    e('v_mov_b32 v14, s67')
    e('s_mov_b64 exec, 1')
    e(f'buffer_atomic_add v12, v11, s[{S_DBG}:{S_DBG+3}], 0 offen sc0 sc1')
    e('s_waitcnt vmcnt(0)')
    e('v_readfirstlane_b32 s44, v12')
    e('s_nop 3')
    e(f's_cmp_lg_u32 s44, {NWG-1}')
    e('s_cbranch_scc1 L_hend0')
    e(f'buffer_store_dword v14, v15, s[{S_WS}:{S_WS+3}], 0 offen sc1')
    e('L_hend0:')
    e('s_mov_b64 exec, -1')
    e('L_hend:')
    if o.diag:
        e('s_mov_b32 s80, s69')
        dump(e, o, 6, 1)
    e('L_end:')
    e('s_endpgm')
    e('.section .rodata,"a"')
    e('.p2align 6')
    e(f'.amdhsa_kernel {KN}')
    e('  .amdhsa_next_free_vgpr 256')
    e('  .amdhsa_next_free_sgpr 102')
    e('  .amdhsa_accum_offset 256')
    e('  .amdhsa_group_segment_fixed_size 0')
    e('  .amdhsa_kernarg_size 40')
    e('  .amdhsa_user_sgpr_count 2')
    e('  .amdhsa_user_sgpr_kernarg_segment_ptr 1')
    e('  .amdhsa_system_sgpr_workgroup_id_x 1')
    e('.end_amdhsa_kernel')
    n = check(e.L)
    if n: print(f'{n} hazards', file=sys.stderr)
    return hdr.text() + e.text()

def opts(argv=None):
    ap = argparse.ArgumentParser()
    ap.add_argument('-o', default='k.s')
    ap.add_argument('--diag', type=int, default=0)
    ap.add_argument('--pf', type=int, default=7)
    ap.add_argument('--wsc1', type=int, default=1)
    ap.add_argument('--map', type=int, default=0)
    ap.add_argument('--nfill', type=int, default=2)
    ap.add_argument('--fstride', type=int, default=128)
    ap.add_argument('--sleep', type=int, default=0)
    ap.add_argument('--maxpoll', type=int, default=3000)
    return ap.parse_args(argv)

if __name__ == '__main__':
    o = opts()
    open(o.o, 'w').write(gen(o))
```

```python
import re, sys
TRANS = ('v_exp_f32', 'v_rcp_f32', 'v_log_f32', 'v_rsq_f32', 'v_sqrt_f32')
def regs(op):
    op = op.strip().lstrip('-').strip('|')
    m = re.fullmatch(r'v(\d+)', op)
    if m: return {int(m.group(1))}
    m = re.fullmatch(r'v\[(\d+):(\d+)\]', op)
    if m: return set(range(int(m.group(1)), int(m.group(2)) + 1))
    return set()
def parse(ins):
    ins = ins.split(';')[0].strip()
    if not ins or ins.endswith(':') or ins.startswith('.'): return None
    parts = ins.split(None, 1)
    mn = parts[0]
    ops = []
    if len(parts) > 1:
        ops = [o.strip() for o in re.split(r',\s*(?![^\[]*\])', parts[1])]
        ops = [o.split(' ')[0] for o in ops]
    d = dict(mn=mn, w=set(), r=set(), c=set(), kind='s', states=1)
    if mn == 's_nop': d['states'] = int(ops[0]) + 1
    if mn.startswith('v_mfma'):
        d['kind'] = 'mfma'; d['w'] = regs(ops[0]); d['r'] = regs(ops[1]) | regs(ops[2]); d['c'] = regs(ops[3])
    elif mn.startswith('v_'):
        d['kind'] = 'valu'
        if mn.startswith('v_cmp') or mn.startswith('v_readfirstlane') or mn.startswith('v_readlane'):
            for o in ops[1:]: d['r'] |= regs(o)
        else:
            d['w'] = regs(ops[0])
            for o in ops[1:]: d['r'] |= regs(o)
            if mn.startswith('v_fmac') or 'swap' in mn or mn.startswith('v_writelane'): d['r'] |= d['w']
            if 'swap' in mn: d['w'] |= regs(ops[1])
    elif mn.startswith('ds_read'):
        d['kind'] = 'mem'; d['w'] = regs(ops[0]); d['r'] = regs(ops[1])
    elif mn.startswith('ds_write'):
        d['kind'] = 'mem'
        for o in ops: d['r'] |= regs(o)
    elif mn.startswith('ds_'):
        d['kind'] = 'mem'; d['w'] = regs(ops[0])
        for o in ops[1:]: d['r'] |= regs(o)
    elif mn.startswith('buffer_load'):
        d['kind'] = 'mem'; d['w'] = regs(ops[0]); d['r'] = regs(ops[1])
    elif mn.startswith('buffer_store') or mn.startswith('buffer_atomic'):
        d['kind'] = 'mem'; d['r'] = regs(ops[0]) | regs(ops[1]); d['store'] = regs(ops[0])
    return d
def check(lines):
    P = [(l, parse(l)) for l in lines]
    P = [(l, p) for l, p in P if p]
    errs = 0
    for i, (li, a) in enumerate(P):
        dist = 0
        for k in range(i + 1, min(i + 24, len(P))):
            lk, b = P[k]
            need = 0
            if a['kind'] == 'mfma':
                if b['kind'] in ('valu', 'mem') and (a['w'] & (b['r'] | b['w'])): need = 8
                if b['kind'] == 'mfma' and (a['w'] & b['r']): need = 8
                if b['kind'] == 'mfma' and (a['w'] & b['c']) and a['w'] != b['c']: need = 6
                if b['kind'] == 'valu' and (a['c'] & b['w']): need = max(need, 3)
            if a['kind'] == 'valu':
                if b['kind'] == 'mfma' and (a['w'] & (b['r'] | b['c'])): need = 2
                if a['mn'] in TRANS and b['kind'] == 'valu' and b['mn'] not in TRANS and (a['w'] & b['r']): need = max(need, 1)
                if b['mn'].startswith(('v_readfirstlane', 'v_readlane')) and (a['w'] & b['r']): need = max(need, 1)
                if b['mn'].startswith('v_permlane') and (a['w'] & b['r']): need = max(need, 2)
                if '_dpp' in b['mn'] and (a['w'] & b['r']): need = max(need, 2)
            if a.get('store') and len(a['store']) >= 3 and b['kind'] == 'valu' and (a['store'] & b['w']): need = max(need, 2)
            if dist < need:
                print(f'HAZARD need {need} have {dist}:\n   {li}\n   {lk}', file=sys.stderr); errs += 1
            dist += b['states']
            if b['mn'] in ('s_branch', 's_endpgm'): break
    return errs
```

```python
import re, sys, argparse
from haz import check

KN = 'standalone__autoregressive_conv_wavernn__speech_kernel'
NWG = 252
NPROD = 144
ARR = 160 * 288
X_D0, X_O, X_D1 = 0, ARR, 2 * ARR
CNT = 3 * ARR
SCR = CNT + 64
LDS_BYTES = SCR + 18432
NSTEP = 106
WOFF = 0x100000
NONCE = 0x10000
DIAG = 0x800000
WS_REC = 0x1000000
TAGINC = 0x9E3779B9
R = 12

class Em:
    def __init__(self): self.L = []
    def __call__(self, s): self.L.append(s)
    def text(self): return '\n'.join(self.L) + '\n'

def vr(a, n=1): return f'v{a}' if n == 1 else f'v[{a}:{a+n-1}]'
def sr(a, n=4): return f's[{a}:{a+n-1}]'

def streams():
    out = []
    for typ in (0, 1):
        S = []
        pid = [0]
        def add(arr, chunk, cs, acc):
            for c in cs: S.append((pid[0], arr, chunk, c, acc))
            pid[0] += 1
        if typ == 0:
            add('O', 0, range(16), 'P'); add('O', 1, range(16), 'P'); add('O', 'rem', range(0, 2), 'P')
            for q in range(4): add('D', q, range(16), 'Q')
            add('D', 'rem', range(8), 'Q')
        else:
            add('O', 2, range(16), 'P'); add('O', 3, range(16), 'P'); add('O', 'rem', range(2, 8), 'P')
            for q in range(4): add('D', q, range(15), 'Q')
            add('D', 'rem', range(8), 'Q')
        assert len(S) == NSTEP
        out.append(S)
    return out

S_X, S_W, S_WO, S_WS, S_OUT, S_DBG = 20, 24, 28, 32, 36, 40
WAVE, NB, BAT, PAR, MB, BOFF = 14, 15, 16, 17, 18, 19
PAIR0 = 3
XB = 52
MASK = 53
TW0, TW1, TW2, PAIR, HAS3, MODE, SCRB, TAG, LAST, NPOLL = 44, 45, 54, 55, 56, 57, 58, 59, 60, 61
TS = 62
TYP, WSO = 68, 69
C2L, CNL, C60 = 90, 92, 94
ST0 = 70

def srd(e, d, ptr, rec, add=None):
    if add is None:
        e(f's_mov_b32 s{d}, s{ptr}')
        e(f's_and_b32 s{d+1}, s{ptr+1}, 0xffff')
    else:
        e(f's_add_u32 s{d}, s{ptr}, s{add}')
        e(f's_addc_u32 s{d+1}, s{ptr+1}, 0')
        e(f's_and_b32 s{d+1}, s{d+1}, 0xffff')
    e(f's_mov_b32 s{d+2}, {rec}')
    e(f's_mov_b32 s{d+3}, 0x20000')

def gen(o):
    e = Em()
    def stamp(k, lvl=1):
        if o.diag == lvl: e(f's_memrealtime s[{ST0+2*k}:{ST0+2*k+1}]')
    def dump(nst):
        e('s_waitcnt lgkmcnt(0)')
        e('v_mov_b32 v250, 0')
        for k in range(nst): e(f'v_writelane_b32 v250, s{ST0+2*k}, {k}')
        e(f'v_writelane_b32 v250, s{NPOLL}, 13')
        e(f'v_writelane_b32 v250, s{PAIR0}, 14')
        e('s_getreg_b32 s46, hwreg(HW_REG_XCC_ID)')
        e('v_writelane_b32 v250, s46, 15')
        e(f's_lshl_b32 s46, s2, 3'); e(f's_add_u32 s46, s46, s{WAVE}'); e('s_lshl_b32 s46, s46, 6'); e(f's_add_u32 s46, s46, {DIAG}')
        e('v_lshl_add_u32 v251, v1, 2, s46')
        e('s_mov_b64 exec, 0xffff')
        e(f'buffer_store_dword v250, v251, {sr(S_WS)}, 0 offen')
        e('s_mov_b64 exec, -1')

    e('.amdgcn_target "amdgcn-amd-amdhsa--gfx950"')
    e('.text')
    e(f'.globl {KN}')
    e('.p2align 8')
    e(f'.type {KN},@function')
    e(f'{KN}:')
    e(f's_cmp_ge_u32 s2, {NWG}')
    e('s_cbranch_scc1 L_end')
    stamp(0)
    e('s_load_dwordx4 s[4:7], s[0:1], 0')
    e('s_load_dwordx4 s[8:11], s[0:1], 16')
    e('s_load_dwordx2 s[12:13], s[0:1], 32')
    e('v_lshrrev_b32 v2, 6, v0')
    e('v_and_b32 v1, 63, v0')
    e(f'v_readfirstlane_b32 s{WAVE}, v2')
    e('s_and_b32 s44, s2, 7')
    e('s_lshr_b32 s45, s2, 3')
    e('s_mul_i32 s46, s44, 31')
    e('s_min_u32 s44, s44, 4')
    e('s_add_u32 s46, s46, s44')
    e('s_add_u32 s46, s46, s45')
    e('s_mul_hi_u32 s47, s46, 68174085')
    e('s_mul_i32 s48, s47, 63')
    e('s_sub_u32 s48, s46, s48')
    e(f's_mul_hi_u32 s{NB}, s48, 613566757')
    e(f's_mul_i32 s49, s{NB}, 7')
    e('s_sub_u32 s49, s48, s49')
    e('s_mul_i32 s50, s47, 6')
    e('s_add_u32 s50, s50, s49')
    e('s_mul_i32 s50, s50, 6')
    e(f's_sub_u32 s51, s{NB}, 2')
    e(f's_cmp_ge_u32 s{NB}, 5')
    e(f's_cselect_b32 s51, s51, s{NB}')
    e(f's_add_u32 s{PAIR0}, s50, s51')
    e(f's_lshr_b32 s51, 0x118, s{NB}')
    e('s_and_b32 s51, s51, 1')
    e('s_cmp_eq_u32 s49, 6')
    e('s_cselect_b32 s51, 1, s51')
    e('s_cmp_lg_u32 s51, 0')
    e(f's_cselect_b32 s{PAIR0}, 255, s{PAIR0}')
    e('s_mul_i32 s47, s47, 7')
    e('s_add_u32 s47, s47, s49')
    e(f's_and_b32 s{PAR}, s47, 1')
    e('s_lshr_b32 s47, s47, 1')
    e('s_cmp_ge_u32 s47, 7')
    e(f's_cselect_b32 s{BAT}, 1, 0')
    e('s_cselect_b32 s48, 7, 0')
    e(f's_sub_u32 s{MB}, s47, s48')
    e(f's_mul_i32 s{BOFF}, s{BAT}, 1152000')
    e(f's_mul_i32 s{XB}, s{MB}, 576')
    e(f's_add_u32 s{XB}, s{XB}, s{PAR}')
    e(f's_sub_u32 s{XB}, s{XB}, 60')
    e(f's_mul_i32 s{XB}, s{XB}, 288')
    e(f's_mov_b32 s{MASK}, 0xffff0000')
    e(f's_mov_b32 s{NPOLL}, 0')
    e(f's_cmp_ge_u32 s{WAVE}, 4')
    e('s_cbranch_scc1 L_helper')

    VXO, VXOR, VXD, VXDR, VWL, VEX, VEXP, VOUT = 30, 31, 32, 33, 34, 35, 36, 37
    VF = 40
    VA = 48
    e('v_mul_u32_u24 v3, 3641, v0')
    e('v_lshrrev_b32 v3, 16, v3')
    e('v_mul_u32_u24 v2, 18, v3')
    e('v_sub_u32 v2, v0, v2')
    e('v_mul_u32_u24 v3, 1152, v3')
    e('v_lshl_add_u32 v3, v2, 4, v3')
    e(f's_add_u32 s46, s{XB}, 576')
    e(f'v_add_u32 v{VA}, s46, v3')
    e('v_mov_b32 v5, 16192')
    e('v_mov_b32 v6, 17056')
    for k in range(1, 12):
        e('v_cmp_le_u32 vcc, 14, v2')
        e('v_add_u32 v3, 4, v2')
        e('v_subrev_u32 v4, 14, v2')
        e('v_cndmask_b32 v7, v5, v6, vcc')
        e('v_cndmask_b32 v2, v3, v4, vcc')
        e(f'v_add_u32 v{VA+k}, v{VA+k-1}, v7')
    e('v_and_b32 v2, 15, v1')
    e('v_lshrrev_b32 v3, 4, v1')
    e('v_subrev_u32 v5, 4, v2')
    e('v_add_u32 v6, 8, v2')
    e('v_cmp_gt_u32 vcc, 4, v2')
    e('v_cmp_le_u32 s[46:47], 12, v2')
    e(f's_and_b32 s{TYP}, s{WAVE}, 1')
    e(f's_lshr_b32 s48, s{WAVE}, 1')
    e('v_cndmask_b32 v5, v5, v6, vcc')
    e('v_cndmask_b32 v5, v5, v2, s[46:47]')
    e('v_mul_u32_u24 v5, 9, v5')
    e('v_mul_u32_u24 v4, 288, v5')
    e('v_lshl_add_u32 v6, v3, 4, v4')
    e('v_and_b32 v7, 1, v3')
    e('v_lshl_add_u32 v7, v7, 4, v4')
    e('v_lshrrev_b32 v8, 1, v3')
    e('v_mul_u32_u24 v8, 2304, v8')
    e('v_add_u32 v7, v7, v8')
    e('v_add_u32 v7, 256, v7')
    e(f's_mul_i32 s49, s{TYP}, {X_D1}')
    e(f'v_add_u32 v{VXO}, {X_O}, v6')
    e(f'v_add_u32 v{VXOR}, {X_O}, v7')
    e(f'v_add_u32 v{VXD}, s49, v6')
    e(f'v_add_u32 v{VXDR}, s49, v7')
    e('v_lshlrev_b32 v6, 4, v1')
    e(f's_mul_i32 s49, s{WAVE}, 9216')
    e(f's_add_u32 s49, s49, {X_O}')
    e(f'v_add_u32 v{VEX}, s49, v6')
    e(f's_xor_b32 s49, s{WAVE}, 1')
    e('s_mul_i32 s49, s49, 9216')
    e(f's_add_u32 s49, s49, {X_O}')
    e(f'v_add_u32 v{VEXP}, s49, v6')
    e('v_and_b32 v8, 0x39, v1')
    e('v_bfe_u32 v9, v1, 1, 1')
    e('v_lshl_add_u32 v8, v9, 2, v8')
    e('v_bfe_u32 v9, v1, 2, 1')
    e('v_lshl_add_u32 v8, v9, 1, v8')
    e(f'v_lshlrev_b32 v{VWL}, 4, v8')
    e(f's_mul_i32 s49, s{TYP}, 576')
    e(f's_add_u32 s49, s49, s{XB}')
    e(f's_add_u32 s49, s49, {60*288}')
    e(f's_lshl_b32 s50, s{NB}, 5')
    e('s_add_u32 s49, s49, s50')
    e('s_lshl_b32 s50, s48, 4')
    e('s_add_u32 s49, s49, s50')
    e('v_mul_u32_u24 v8, 1152, v5')
    e('v_lshl_add_u32 v8, v3, 2, v8')
    e(f'v_add_u32 v{VOUT}, s49, v8')
    e(f'v_add_u32 v{VOUT+1}, 3456, v{VOUT}')
    e(f'v_add_u32 v{VOUT+2}, 6912, v{VOUT}')
    e(f's_lshl_b32 s49, s{NB}, 1')
    e('s_add_u32 s49, s49, s48')
    e('s_lshl_b32 s49, s49, 1')
    e(f's_add_u32 s49, s49, s{TYP}')
    e(f's_mul_i32 s{WSO}, s49, {NSTEP*1024}')
    e(f's_add_u32 s{WSO}, s{WSO}, {WOFF}')
    e(f's_mov_b32 s{C2L}, 0x4038aa3b'); e(f's_mov_b32 s{C2L+1}, 0x4038aa3b')
    e(f's_mov_b32 s{CNL}, 0xbfb8aa3b'); e(f's_mov_b32 s{CNL+1}, 0xbfb8aa3b')
    e(f's_mov_b32 s{C60}, 0x42700000')
    e(f'v_mul_u32_u24 v{VF}, {o.fstride}, v1')
    e(f'v_add_u32 v{VF+1}, {64*o.fstride}, v{VF}')
    e(f'v_min_u32 v{VF+2}, 15, v1')
    e(f'v_mul_u32_u24 v{VF+2}, {o.fstride}, v{VF+2}')
    e(f'v_add_u32 v{VF+2}, {128*o.fstride}, v{VF+2}')
    e(f's_lshl_b32 s50, s{WAVE}, 10')
    e(f's_add_u32 s50, s50, {X_O}')
    e('s_waitcnt lgkmcnt(0)')
    e(f's_load_dword s{TAG}, s[12:13], {NONCE}')
    srd(e, S_X, 4, 1152000, add=BOFF)
    srd(e, S_WS, 12, WS_REC)
    srd(e, S_OUT, 8, 1152000, add=BOFF)
    e('s_barrier')
    stamp(1)
    for k in range(12):
        if k == 11:
            e(f's_cmp_lg_u32 s{WAVE}, 0')
            e('s_cbranch_scc1 L_o11')
        e(f's_add_u32 m0, s50, {4096*k}')
        e('s_nop 0')
        e(f'buffer_load_dwordx4 v{VA+k}, {sr(S_X)}, 0 offen lds')
    e('L_o11:')
    e('s_waitcnt vmcnt(0) lgkmcnt(0)')
    stamp(2)
    e(f's_cmp_lg_u32 s{WAVE}, 0')
    e('s_cbranch_scc1 L_go')
    e(f's_add_u32 s{TAG}, s{TAG}, {TAGINC}')
    e(f'v_mov_b32 v{VF+3}, s{TAG}')
    if o.nopoll: e('s_branch L_go')
    e('L_poll:')
    for i in range(3):
        e(f'buffer_load_dword v{VF+4+i}, v{VF+i}, {sr(S_WS)}, 0 offen sc1')
    e(f's_add_u32 s{NPOLL}, s{NPOLL}, 1')
    e('s_waitcnt vmcnt(1)')
    e(f'v_xor_b32 v{VF+4}, v{VF+4}, v{VF+3}')
    e(f'v_xor_b32 v{VF+5}, v{VF+5}, v{VF+3}')
    e('s_waitcnt vmcnt(0)')
    e(f'v_xor_b32 v{VF+6}, v{VF+6}, v{VF+3}')
    e(f'v_or3_b32 v{VF+4}, v{VF+4}, v{VF+5}, v{VF+6}')
    e(f'v_cmp_ne_u32 vcc, 0, v{VF+4}')
    e('s_nop 4')
    e('s_cbranch_vccz L_go')
    if o.sleep: e(f's_sleep {o.sleep}')
    e(f's_cmp_lt_u32 s{NPOLL}, {o.maxpoll}')
    e('s_cbranch_scc1 L_poll')
    e(f's_mov_b32 s{MODE}, 1')
    e(f's_mov_b32 s{HAS3}, 1')
    e(f's_lshr_b32 s{TW0}, s{NB}, 1')
    e(f's_add_u32 s{TW1}, s{NB}, 9')
    e(f's_lshr_b32 s{TW1}, s{TW1}, 1')
    e(f's_mov_b32 s{TW2}, 8')
    e(f's_mov_b32 s{PAIR}, 0')
    e(f's_mov_b32 s{SCRB}, {SCR}')
    e('s_branch L_prodsetup')
    e('L_go:')
    stamp(3)
    e('s_barrier')
    stamp(4)
    e(f's_setprio {o.mprio}')
    e(f's_cmp_eq_u32 s{TYP}, 1')
    e('s_cbranch_scc1 L_typeB')

    ACC = {'P': 64, 'Q': 100}
    WR, XR, TMP = 136, 200, 224
    NXR = 6
    PF = o.pf
    wflags = ' sc1' if o.wsc1 else ''
    VBD, VB1, VB2 = o.vbd, 47, 58
    for typ, S in enumerate(streams()):
        if typ == 1: e('.p2align 6'); e('L_typeB:')
        issued = [0]
        def wload():
            g = issued[0]
            if g >= NSTEP: return
            e(f'buffer_load_dwordx4 {vr(WR+4*(g%16),4)}, v{VWL}, {sr(S_WS)}, s{WSO} offen offset:{1024*(g%4)}{wflags}')
            if g % 4 == 3: e(f's_add_u32 s{WSO}, s{WSO}, 4096')
            issued[0] += 1
        def keys(v):
            ks = []
            for j in range(8, -1, -1):
                g = v - j
                if 0 <= g < NSTEP:
                    pid, arr, ch, c, acc = S[g]
                    k = (pid, arr, ch, c + j)
                    if k not in ks: ks.append(k)
            return ks
        xreg = {}
        xn = [0]
        def xread(k):
            pid, arr, ch, s = k
            r = XR + 4 * (xn[0] % NXR); xn[0] += 1
            xreg[k] = r
            if ch == 'rem':
                return f'ds_read_b128 {vr(r,4)}, v{VXOR if arr == "O" else VXDR} offset:{288*s}'
            return f'ds_read_b128 {vr(r,4)}, v{VXO if arr == "O" else VXD} offset:{64*ch+288*s}'
        for _ in range(PF): wload()
        for k in keys(0): e(xread(k))
        NV = NSTEP + 8
        firstD = min(g for g in range(NSTEP) if S[g][1] == 'D')
        assert VBD <= firstD - 1
        fill = []
        def epi(j):
            q = ACC['Q'] + 4 * j
            t = TMP + 8 * (j & 1)
            I = []
            I.append(f'v_pk_mul_f32 {vr(t,2)}, {vr(q,2)}, s[{C2L}:{C2L+1}]')
            I.append(f'v_pk_mul_f32 {vr(t+2,2)}, {vr(q+2,2)}, s[{CNL}:{CNL+1}]')
            I.append(f'v_min_f32 v{t}, s{C60}, v{t}')
            I.append(f'v_min_f32 v{t+1}, s{C60}, v{t+1}')
            for i in (2, 3, 0, 1): I.append(f'v_exp_f32 v{t+i}, v{t+i}')
            I.append('s_nop 0')
            I.append(f'v_pk_add_f32 {vr(t+4,2)}, {vr(t,2)}, 1.0 op_sel_hi:[1,0]')
            I.append(f'v_pk_add_f32 {vr(t+6,2)}, {vr(t,2)}, -1.0 op_sel_hi:[1,0]')
            I.append(f'v_pk_fma_f32 {vr(t+4,2)}, {vr(t+4,2)}, {vr(t+2,2)}, {vr(t+4,2)}')
            I.append(f'v_rcp_f32 v{t+4}, v{t+4}')
            I.append(f'v_rcp_f32 v{t+5}, v{t+5}')
            I.append('s_nop 0')
            I.append(f'v_pk_mul_f32 {vr(t+6,2)}, {vr(t+6,2)}, {vr(t+4,2)}')
            I.append(f'v_cvt_pk_bf16_f32 v{ACC["P"]+j}, v{t+6}, v{t+7}')
            I.append(f'buffer_store_dword v{ACC["P"]+j}, v{VOUT + j//3}, {sr(S_OUT)}, 0 offen offset:{1152*(j%3)}')
            return I
        since = {}
        for v in range(NV):
            js = [j for j in range(8, -1, -1) if 0 <= v - j < NSTEP]
            nxt = keys(v + 1) if v + 1 < NV else []
            extra = []
            if issued[0] < NSTEP and issued[0] <= v + PF: extra.append('W')
            extra += [('X', k) for k in nxt]
            if VB1 < v <= VB1 + 9: extra.append(f'ds_write_b128 v{VEX}, {vr(ACC["P"]+4*(v-VB1-1),4)} offset:{1024*(v-VB1-1)}')
            jr = v - (VB2 + 1)
            if 0 <= jr < 9: extra.append(f'ds_read_b128 {vr(TMP+4*(jr&1),4)}, v{VEXP} offset:{1024*jr}')
            ja = v - (VB2 + 2)
            e('s_waitcnt lgkmcnt(0)')
            if o.diag == 2 and v in o.marks:
                kk = o.marks.index(v)
                e(f's_memtime s[{ST0+2*kk}:{ST0+2*kk+1}]')
            if o.diag == 1 and v == VBD: stamp(5)
            if v in (VBD, VB1, VB2): e('s_barrier')
            if o.diag == 1 and v == VBD: stamp(6)
            for n, j in enumerate(js):
                g = v - j
                pid, arr, ch, c, acc = S[g]
                k = (pid, arr, ch, c + j)
                if 0 <= ja < 9 and ((j == ja + 2 and ja <= 6) or (ja >= 7 and j == ja - 7)):
                    q = ACC['Q'] + 4 * ja; t = TMP + 4 * (ja & 1)
                    if o.nopk:
                        for i in range(4): e(f'v_add_f32 v{q+i}, v{q+i}, v{t+i}')
                    else:
                        e(f'v_pk_add_f32 {vr(q,2)}, {vr(q,2)}, {vr(t,2)}')
                        e(f'v_pk_add_f32 {vr(q+2,2)}, {vr(q+2,2)}, {vr(t+2,2)}')
                if j == 0:
                    e(f's_waitcnt vmcnt({issued[0]-1-g})')
                d = ACC[acc] + 4 * j
                if g == 0: cs = '0'
                elif acc == 'Q' and S[g-1][4] == 'P': cs = vr(ACC['P'] + 4 * j, 4)
                else: cs = vr(d, 4)
                e(f'v_mfma_f32_16x16x32_bf16 {vr(d,4)}, {vr(WR+4*(g%16),4)}, {vr(xreg[k],4)}, {cs}')
                for jj in since: since[jj] += 1
                if g == NSTEP - 1: since[j] = 0
                if extra:
                    x = extra.pop(0)
                    if x == 'W': wload()
                    elif isinstance(x, tuple): e(xread(x[1]))
                    else: e(x)
                    for jj in since: since[jj] += 1
                for jj in sorted(since):
                    if 8 <= since[jj] < 10**6:
                        fill += epi(jj); since[jj] = 10**6
                nf = o.nfill
                while fill and nf > 0:
                    e(fill.pop(0)); nf -= 1
                    for jj in since: since[jj] += 1
            for x in extra:
                if x == 'W': wload()
                elif isinstance(x, tuple): e(xread(x[1]))
                else: e(x)
        stamp(7)
        rem = [jj for jj in sorted(since) if since[jj] < 10**6]
        while fill:
            e(fill.pop(0))
            for jj in since: since[jj] += 1
        for jj in rem:
            if since[jj] < 8: e(f's_nop {8-since[jj]-1}')
            for x in epi(jj):
                e(x)
                for j2 in since: since[j2] += 1
        stamp(8)
        if o.diag == 1:
            e('s_waitcnt vmcnt(0)')
            stamp(9)
            dump(10)
        if o.diag == 2:
            kk = len(o.marks)
            e(f's_memtime s[{ST0+2*kk}:{ST0+2*kk+1}]')
            dump(10)
        e('s_endpgm')

    e('.p2align 6')
    e('L_helper:')
    e(f's_setprio {o.hprio}')
    e(f's_sub_u32 s{TW0}, s{WAVE}, 4')
    e(f's_mov_b32 s{TW1}, s{WAVE}')
    e(f's_mov_b32 s{TW2}, 8')
    e(f's_mov_b32 s{PAIR}, s{PAIR0}')
    e(f's_mov_b32 s{MODE}, 0')
    e(f's_mov_b32 s{HAS3}, s{TW0}')
    e(f's_lshl_b32 s{SCRB}, s{TW0}, 12')
    e(f's_add_u32 s{SCRB}, s{SCRB}, {SCR}')
    e(f'v_mov_b32 v10, {CNT}')
    e('v_mov_b32 v11, 0')
    e(f's_cmp_lg_u32 s{TW0}, 0')
    e('s_cbranch_scc1 L_prodsetup')
    e('ds_write_b32 v10, v11')
    e('L_prodsetup:')
    e('v_mov_b32 v19, 4320')
    e(f'v_mov_b32 v20, {(256 - 18*2*NSTEP*1024) & 0xffffffff}')
    e(f'v_mov_b32 v26, {2*NSTEP*1024}')
    e('v_bfe_u32 v21, v1, 2, 2')
    e('v_lshlrev_b32 v21, 7, v21')
    e('v_and_b32 v22, 1, v1')
    e('v_lshl_add_u32 v21, v22, 6, v21')
    e('v_bfe_u32 v22, v1, 1, 1')
    e('v_lshl_add_u32 v21, v22, 3, v21')
    e('v_lshrrev_b32 v22, 4, v1')
    e('v_lshl_add_u32 v21, v22, 4, v21')
    e(f'v_add_u32 v21, s{SCRB}, v21')
    e('v_and_b32 v23, 3, v1')
    e('v_lshrrev_b32 v24, 3, v1')
    e('v_mul_u32_u24 v24, 576, v24')
    e('v_bfe_u32 v25, v1, 2, 1')
    e('v_mul_u32_u24 v25, 288, v25')
    e('v_add_u32 v24, v24, v25')
    e('v_and_b32 v25, 15, v1')
    e('v_lshlrev_b32 v25, 4, v25')
    T = [(64, TW0, 2, 3, 0), (96, TW1, 4, 5, 2048), (128, TW2, 6, 7, 16384)]
    for (vb, sw, vl, vs, so) in T:
        e(f's_lshl_b32 s47, s{sw}, 2')
        e('v_add_u32 v8, s47, v23')
        e('v_add_u32 v9, s47, v22')
        e('v_cmp_le_u32 vcc, 18, v8')
        e('v_cmp_le_u32 s[48:49], 18, v9')
        e(f'v_lshl_add_u32 v{vl}, v8, 4, v24')
        e(f'v_mad_u32_u24 v{vs}, v9, v26, v25')
        e('v_cndmask_b32 v8, 0, v19, vcc')
        e('v_cndmask_b32 v9, 0, v20, s[48:49]')
        e(f'v_add_u32 v{vl}, v{vl}, v8')
        e(f'v_add_u32 v{vs}, v{vs}, v9')
    e('L_prod:')
    c, kp, q, cc, kk, t = 46, 47, 48, 49, 50, 51
    b = TS
    e(f's_and_b32 s{c}, s{PAIR}, 15')
    e(f's_lshr_b32 s{kp}, s{PAIR}, 4')
    e(f's_mul_i32 s{b}, s{c}, 165888')
    e(f's_mul_i32 s{t}, s{kp}, 9216')
    e(f's_add_u32 s{b}, s{b}, s{t}')
    e(f's_add_u32 s{b+1}, s{b}, 82944')
    e(f's_lshr_b32 s{q}, s{kp}, 1')
    e(f's_and_b32 s{cc}, s{c}, 7')
    e(f's_lshr_b32 s{kk}, s{c}, 3')
    e(f's_and_b32 s{t}, s{kp}, 1')
    e(f's_cmp_eq_u32 s{kp}, 8')
    e(f's_cselect_b32 s{cc}, s{cc}, s{c}')
    e(f's_cselect_b32 s{kk}, s{kk}, s{t}')
    e(f's_lshl_b32 s{kk}, s{kk}, 9')
    e(f's_add_u32 s{kk}, s{kk}, {WOFF}')
    e(f's_lshl_b32 s{t}, s{q}, 4')
    e(f's_add_u32 s{b+2}, s{t}, s{cc}')
    e(f's_sub_u32 s{b+3}, s{b+2}, s{q}')
    e(f's_cmp_ge_u32 s{q}, 2')
    e(f's_cselect_b32 s{b+4}, 74, 0')
    e(f's_add_u32 s{b+4}, s{b+4}, s{b+2}')
    e(f's_cmp_lt_u32 s{cc}, 2')
    e(f's_cselect_b32 s{t}, 32, 136')
    e(f's_add_u32 s{t}, s{t}, s{cc}')
    e(f's_cmp_eq_u32 s{kp}, 8')
    e(f's_cselect_b32 s{b+4}, s{t}, s{b+4}')
    e(f's_add_u32 s{b+2}, s{b+2}, 34')
    e(f's_add_u32 s{b+3}, s{b+3}, 144')
    for k in (2, 3, 4):
        e(f's_lshl_b32 s{b+k}, s{b+k}, 10')
        e(f's_add_u32 s{b+k}, s{b+k}, s{kk}')
    e(f's_cmp_eq_u32 s{kp}, 8')
    e(f's_cselect_b32 s{t}, 1, 2')
    e(f's_cmp_eq_u32 s{c}, 15')
    e(f's_cselect_b32 s{b+5}, s{t}, 0')
    e('s_waitcnt lgkmcnt(0)')
    srd(e, S_W, 6, 2571264)
    srd(e, S_WO, 6, 2571264)
    e(f's_cmp_eq_u32 s{b+5}, 0')
    e(f's_cselect_b32 s{S_WO+2}, 2571264, 0')
    e(f's_cmp_ge_u32 s{PAIR}, {NPROD}')
    e('s_cbranch_scc1 L_noprod')
    def cond3(lbl):
        e(f's_cmp_lg_u32 s{HAS3}, 0')
        e(f's_cbranch_scc1 {lbl}')
    for ti, (vb, sw, vl, vs, so) in enumerate(T):
        if ti == 2: cond3('L_a3')
        e(f's_add_u32 m0, s{SCRB}, {so}')
        e('s_nop 0')
        e(f'buffer_load_dwordx4 v{vl}, {sr(S_W)}, s{b} offen lds')
        e(f's_add_u32 m0, s{SCRB}, {so+1024}')
        e('s_nop 0')
        e(f'buffer_load_dwordx4 v{vl}, {sr(S_WO)}, s{b+1} offen lds')
    e('L_a3:')
    e(f's_cmp_lg_u32 s{MODE}, 0')
    e('s_cbranch_scc1 L_a4')
    e(f's_load_dword s{TAG}, s[12:13], {NONCE}')
    e('L_a4:')
    srd(e, S_WS, 12, WS_REC)
    stamp(1)
    e('s_waitcnt vmcnt(0) lgkmcnt(0)')
    stamp(2)
    def trreads(vb, so):
        for tap in range(2):
            for half in range(2):
                e(f'ds_read_b64_tr_b16 {vr(vb+4*tap+2*half,2)}, v21 offset:{so+1024*tap+512*half}')
    def st01(vb, vs, n0, n1, tag):
        e(f's_waitcnt lgkmcnt({n0})')
        e(f'buffer_store_dwordx4 {vr(vb,4)}, v{vs}, {sr(S_WS)}, s{b+2} offen sc1')
        e(f's_waitcnt lgkmcnt({n1})')
        e(f's_cmp_eq_u32 s{b+5}, 2')
        e(f's_cbranch_scc1 L_skip{tag}')
        e(f'buffer_store_dwordx4 {vr(vb+4,4)}, v{vs}, {sr(S_WS)}, s{b+3} offen sc1')
        e(f'L_skip{tag}:')
    def stsum(vb, vs):
        for i in range(8):
            e(f'v_lshlrev_b32 v{vb+8+2*i}, 16, v{vb+i}')
            e(f'v_and_b32 v{vb+9+2*i}, s{MASK}, v{vb+i}')
        for i in range(4):
            e(f'v_pk_add_f32 {vr(vb+8+2*i,2)}, {vr(vb+8+2*i,2)}, {vr(vb+16+2*i,2)}')
        for i in range(4):
            e(f'v_cvt_pk_bf16_f32 v{vb+24+i}, v{vb+8+2*i}, v{vb+9+2*i}')
        e(f'buffer_store_dwordx4 {vr(vb+24,4)}, v{vs}, {sr(S_WS)}, s{b+4} offen sc1')
    for tt in T: trreads(tt[0], tt[4])
    st01(T[0][0], T[0][3], 10, 8, 0)
    st01(T[1][0], T[1][3], 6, 4, 1)
    stsum(T[0][0], T[0][3])
    stsum(T[1][0], T[1][3])
    cond3('L_b3')
    st01(T[2][0], T[2][3], 2, 0, 2)
    stsum(T[2][0], T[2][3])
    e('L_b3:')
    e(f's_cmp_eq_u32 s{MODE}, 0')
    e('s_cbranch_scc1 L_b4')
    e('s_waitcnt vmcnt(0) lgkmcnt(0)')
    e(f's_add_u32 s{PAIR}, s{PAIR}, 1')
    e(f's_cmp_lt_u32 s{PAIR}, {NPROD}')
    e('s_cbranch_scc1 L_prod')
    e('s_branch L_go')
    e('L_noprod:')
    e(f's_load_dword s{TAG}, s[12:13], {NONCE}')
    srd(e, S_WS, 12, WS_REC)
    stamp(1); stamp(2)
    e('L_b4:')
    e('s_barrier')
    stamp(3)
    e('v_subrev_u32 v4, 256, v0')
    e('v_min_u32 v4, 251, v4')
    e('v_mul_u32_u24 v3, 3641, v4')
    e('v_lshrrev_b32 v3, 16, v3')
    e('v_mul_u32_u24 v2, 18, v3')
    e('v_sub_u32 v2, v4, v2')
    e(f'v_mul_u32_u24 v3, {R}, v3')
    e(f'v_min_u32 v3, {160-R}, v3')
    e('v_mul_u32_u24 v4, 1152, v3')
    e('v_lshl_add_u32 v4, v2, 4, v4')
    e(f'v_add_u32 v12, s{XB}, v4')
    e('v_mul_u32_u24 v18, 288, v3')
    e('v_lshl_add_u32 v18, v2, 4, v18')
    e(f'v_add_u32 v19, {X_D1}, v18')
    srd(e, S_X, 4, 1152000, add=BOFF)
    srd(e, S_DBG, 10, 256)
    e(f's_mov_b32 s{LAST}, 0')
    e(f's_cmp_ge_u32 s{PAIR0}, {NPROD}')
    e('s_cbranch_scc1 L_noflag')
    e('s_waitcnt vmcnt(0) lgkmcnt(0)')
    stamp(4)
    e('v_mov_b32 v13, 1')
    e('s_mov_b64 exec, 1')
    e('ds_add_rtn_u32 v14, v10, v13')
    e(f's_add_u32 s46, s{TAG}, {TAGINC}')
    e('v_mov_b32 v15, s46')
    e(f's_mul_i32 s46, s{PAIR0}, {o.fstride}')
    e('v_mov_b32 v16, s46')
    e('s_waitcnt lgkmcnt(0)')
    e(f'v_readfirstlane_b32 s{LAST}, v14')
    e('s_nop 3')
    e(f's_cmp_lg_u32 s{LAST}, 3')
    e('s_cbranch_scc1 L_notlast')
    e(f'buffer_store_dword v15, v16, {sr(S_WS)}, 0 offen sc1')
    e('L_notlast:')
    e('s_mov_b64 exec, -1')
    e('L_noflag:')
    e(f's_setprio {o.hprio2}')
    RAW, ORAW = 64, 120
    EU = [184, 192]
    OU, DT, DO = 200, 208, 216
    xi = [0]
    NL = R + 1
    def eload():
        k = xi[0]
        if k >= NL: return
        a_ = 12
        if k:
            a_ = 13 + (k & 3)
            e(f'v_add_u32 v{a_}, {1152*k}, v12')
        e(f'buffer_load_dwordx4 {vr(RAW+4*k,4)}, v{a_}, {sr(S_X)}, 0 offen')
        xi[0] += 1
    for _ in range(o.epre): eload()
    e('s_waitcnt lgkmcnt(0)')
    stamp(5)
    e('s_barrier')
    stamp(6)
    for _ in range(max(0, o.ein - o.epre)): eload()
    for j in range(R):
        e(f'ds_read_b128 {vr(ORAW+4*j,4)}, v18 offset:{X_O+288*j}')
    def unpack(dst, s_):
        for i in range(4):
            e(f'v_lshlrev_b32 v{dst+2*i}, 16, v{s_+i}')
            e(f'v_and_b32 v{dst+2*i+1}, s{MASK}, v{s_+i}')
    def unpackE(dst, k):
        e(f's_waitcnt vmcnt({xi[0]-1-k})')
        unpack(dst, RAW + 4 * k)
        eload()
    def diff(eu, out):
        if o.nopk:
            for i in range(8): e(f'v_sub_f32 v{DT+i}, v{eu+i}, v{OU+i}')
        else:
          for i in range(4):
            e(f'v_pk_add_f32 {vr(DT+2*i,2)}, {vr(eu+2*i,2)}, {vr(OU+2*i,2)} neg_lo:[0,1] neg_hi:[0,1]')
        for i in range(4):
            e(f'v_cvt_pk_bf16_f32 v{out+i}, v{DT+2*i}, v{DT+2*i+1}')
    unpackE(EU[0], 0)
    e('s_waitcnt lgkmcnt(0)')
    for j in range(R):
        o0 = DO + 8 * (j & 1)
        unpack(OU, ORAW + 4 * j)
        diff(EU[j & 1], o0)
        e(f'ds_write_b128 v18, {vr(o0,4)} offset:{X_D0+288*j}')
        unpackE(EU[(j + 1) & 1], j + 1)
        diff(EU[(j + 1) & 1], o0 + 4)
        e(f'ds_write_b128 v19, {vr(o0+4,4)} offset:{288*j}')
    e(f's_cmp_lg_u32 s{WAVE}, 4')
    e('s_cbranch_scc1 L_noat')
    e('v_mov_b32 v13, 1')
    e('v_mov_b32 v11, 0')
    e('s_mov_b64 exec, 1')
    e(f'buffer_atomic_add v13, v11, {sr(S_DBG)}, 0 offen sc0 sc1')
    e('s_mov_b64 exec, -1')
    e('L_noat:')
    e('s_waitcnt lgkmcnt(0)')
    stamp(7)
    e('s_barrier')
    e(f's_cmp_lg_u32 s{WAVE}, 4')
    e('s_cbranch_scc1 L_hend')
    e('s_waitcnt vmcnt(0)')
    e('v_readfirstlane_b32 s46, v13')
    e(f's_add_u32 s47, s{TAG}, {TAGINC}')
    e('v_mov_b32 v14, s47')
    e(f'v_mov_b32 v15, {NONCE}')
    e(f's_cmp_lg_u32 s46, {NWG-1}')
    e('s_cbranch_scc1 L_hend')
    e('s_mov_b64 exec, 1')
    e(f'buffer_store_dword v14, v15, {sr(S_WS)}, 0 offen sc1')
    e('s_mov_b64 exec, -1')
    e('L_hend:')
    if o.diag == 1:
        stamp(8); stamp(9)
        dump(10)
    e('L_end:')
    e('s_endpgm')
    e('.section .rodata,"a"')
    e('.p2align 6')
    e(f'.amdhsa_kernel {KN}')
    for x in ['next_free_vgpr 256', 'next_free_sgpr 102', 'accum_offset 256', 'group_segment_fixed_size 0', 'kernarg_size 40',
              'user_sgpr_count 2', 'user_sgpr_kernarg_segment_ptr 1', 'system_sgpr_workgroup_id_x 1']:
        e('  .amdhsa_' + x)
    e('.end_amdhsa_kernel')
    n = check(e.L)
    if n: print(f'{n} hazards', file=sys.stderr)
    return f'; @launch grid=({NWG},1,1) block=(512,1,1) lds={LDS_BYTES}\n' + e.text()

def opts(argv=None):
    ap = argparse.ArgumentParser()
    ap.add_argument('-o', default='k.s')
    for nm, d in [('diag', 0), ('pf', 7), ('wsc1', 0), ('nfill', 2), ('fstride', 128), ('sleep', 0), ('maxpoll', 3000), ('nopoll', 0),
                  ('hprio', 3), ('hprio2', 0), ('mprio', 2), ('epre', 13), ('ein', 4), ('vbd', 33), ('nopk', 1)]:
        ap.add_argument('--' + nm, type=int, default=d)
    ap.add_argument('--marks', default='0,4,8,12,16,24,33,47,58')
    o = ap.parse_args(argv)
    o.marks = [int(x) for x in o.marks.split(',')]
    return o

if __name__ == '__main__':
    o = opts()
    open(o.o, 'w').write(gen(o))
```

```python
import re, sys, argparse
from haz import check

KN = 'standalone__autoregressive_conv_wavernn__speech_kernel'
NWG = 252
NPROD = 144
ARR = 160 * 288
X_D0, X_O, X_D1 = 0, ARR, 2 * ARR
CNT = 3 * ARR
SCR = CNT + 64
LDS_BYTES = SCR + 18432
NSTEP = 106
WOFF = 0x100000
NONCE = 0x10000
DIAG = 0x800000
WS_REC = 0x1000000
TAGINC = 0x9E3779B9
R = 12

class Em:
    def __init__(self): self.L = []
    def __call__(self, s): self.L.append(s)
    def text(self): return '\n'.join(self.L) + '\n'

def vr(a, n=1): return f'v{a}' if n == 1 else f'v[{a}:{a+n-1}]'
def sr(a, n=4): return f's[{a}:{a+n-1}]'

def streams():
    out = []
    for typ in (0, 1):
        S = []
        pid = [0]
        def add(arr, chunk, cs, acc):
            for c in cs: S.append((pid[0], arr, chunk, c, acc))
            pid[0] += 1
        if typ == 0:
            add('O', 0, range(16), 'P'); add('O', 1, range(16), 'P'); add('O', 'rem', range(0, 2), 'P')
            for q in range(4): add('D', q, range(16), 'Q')
            add('D', 'rem', range(8), 'Q')
        else:
            add('O', 2, range(16), 'P'); add('O', 3, range(16), 'P'); add('O', 'rem', range(2, 8), 'P')
            for q in range(4): add('D', q, range(15), 'Q')
            add('D', 'rem', range(8), 'Q')
        assert len(S) == NSTEP
        out.append(S)
    return out

S_X, S_W, S_WO, S_WS, S_OUT, S_DBG = 20, 24, 28, 32, 36, 40
WAVE, NB, BAT, PAR, MB, BOFF = 14, 15, 16, 17, 18, 19
PAIR0 = 3
XB = 52
MASK = 53
TW0, TW1, TW2, PAIR, HAS3, MODE, SCRB, TAG, LAST, NPOLL = 44, 45, 54, 55, 56, 57, 58, 59, 60, 61
TS = 62
TYP, WSO = 68, 69
C2L, CNL, C60 = 90, 92, 94
ST0 = 70

def srd(e, d, ptr, rec, add=None):
    if add is None:
        e(f's_mov_b32 s{d}, s{ptr}')
        e(f's_and_b32 s{d+1}, s{ptr+1}, 0xffff')
    else:
        e(f's_add_u32 s{d}, s{ptr}, s{add}')
        e(f's_addc_u32 s{d+1}, s{ptr+1}, 0')
        e(f's_and_b32 s{d+1}, s{d+1}, 0xffff')
    e(f's_mov_b32 s{d+2}, {rec}')
    e(f's_mov_b32 s{d+3}, 0x20000')

def gen(o):
    e = Em()
    def stamp(k, lvl=1):
        if o.diag == lvl or (o.diag == 4 and lvl == 1): e(f's_memrealtime s[{ST0+2*k}:{ST0+2*k+1}]')
    def dump(nst):
        e('s_waitcnt lgkmcnt(0)')
        e('v_mov_b32 v250, 0')
        for k in range(nst): e(f'v_writelane_b32 v250, s{ST0+2*k}, {k}')
        e(f'v_writelane_b32 v250, s{NPOLL}, 13')
        e(f'v_writelane_b32 v250, s{PAIR0}, 14')
        e('s_getreg_b32 s46, hwreg(HW_REG_XCC_ID)')
        e('v_writelane_b32 v250, s46, 15')
        e(f's_lshl_b32 s46, s2, 3'); e(f's_add_u32 s46, s46, s{WAVE}'); e('s_lshl_b32 s46, s46, 6'); e(f's_add_u32 s46, s46, {DIAG}')
        e('v_lshl_add_u32 v251, v1, 2, s46')
        e('s_mov_b64 exec, 0xffff')
        e(f'buffer_store_dword v250, v251, {sr(S_WS)}, 0 offen')
        e('s_mov_b64 exec, -1')

    e('.amdgcn_target "amdgcn-amd-amdhsa--gfx950"')
    e('.text')
    e(f'.globl {KN}')
    e('.p2align 8')
    e(f'.type {KN},@function')
    e(f'{KN}:')
    e(f's_cmp_ge_u32 s2, {NWG}')
    e('s_cbranch_scc1 L_end')
    stamp(0)
    e('s_load_dwordx4 s[4:7], s[0:1], 0')
    e('s_load_dwordx4 s[8:11], s[0:1], 16')
    e('s_load_dwordx2 s[12:13], s[0:1], 32')
    e('v_lshrrev_b32 v2, 6, v0')
    e('v_and_b32 v1, 63, v0')
    e(f'v_readfirstlane_b32 s{WAVE}, v2')
    e('s_and_b32 s44, s2, 7')
    e('s_lshr_b32 s45, s2, 3')
    e('s_mul_i32 s46, s44, 31')
    e('s_min_u32 s44, s44, 4')
    e('s_add_u32 s46, s46, s44')
    e('s_add_u32 s46, s46, s45')
    e('s_mul_hi_u32 s47, s46, 68174085')
    e('s_mul_i32 s48, s47, 63')
    e('s_sub_u32 s48, s46, s48')
    e(f's_mul_hi_u32 s{NB}, s48, 613566757')
    e(f's_mul_i32 s49, s{NB}, 7')
    e('s_sub_u32 s49, s48, s49')
    e('s_mul_i32 s50, s47, 6')
    e('s_add_u32 s50, s50, s49')
    e('s_mul_i32 s50, s50, 6')
    e(f's_sub_u32 s51, s{NB}, 2')
    e(f's_cmp_ge_u32 s{NB}, 5')
    e(f's_cselect_b32 s51, s51, s{NB}')
    e(f's_add_u32 s{PAIR0}, s50, s51')
    e(f's_lshr_b32 s51, 0x118, s{NB}')
    e('s_and_b32 s51, s51, 1')
    e('s_cmp_eq_u32 s49, 6')
    e('s_cselect_b32 s51, 1, s51')
    e('s_cmp_lg_u32 s51, 0')
    e(f's_cselect_b32 s{PAIR0}, 255, s{PAIR0}')
    e('s_mul_i32 s47, s47, 7')
    e('s_add_u32 s47, s47, s49')
    e(f's_and_b32 s{PAR}, s47, 1')
    e('s_lshr_b32 s47, s47, 1')
    e('s_cmp_ge_u32 s47, 7')
    e(f's_cselect_b32 s{BAT}, 1, 0')
    e('s_cselect_b32 s48, 7, 0')
    e(f's_sub_u32 s{MB}, s47, s48')
    e(f's_mul_i32 s{BOFF}, s{BAT}, 1152000')
    e(f's_mul_i32 s{XB}, s{MB}, 576')
    e(f's_add_u32 s{XB}, s{XB}, s{PAR}')
    e(f's_sub_u32 s{XB}, s{XB}, 60')
    e(f's_mul_i32 s{XB}, s{XB}, 288')
    e(f's_mov_b32 s{MASK}, 0xffff0000')
    e(f's_mov_b32 s{NPOLL}, 0')
    e(f's_cmp_ge_u32 s{WAVE}, 4')
    e('s_cbranch_scc1 L_helper')

    VXO, VXOR, VXD, VXDR, VWL, VEX, VEXP, VOUT = 30, 31, 32, 33, 34, 35, 36, 37
    VF = 40
    VA = 48
    e('v_mul_u32_u24 v3, 3641, v0')
    e('v_lshrrev_b32 v3, 16, v3')
    e('v_mul_u32_u24 v2, 18, v3')
    e('v_sub_u32 v2, v0, v2')
    e('v_mul_u32_u24 v3, 1152, v3')
    e('v_lshl_add_u32 v3, v2, 4, v3')
    e(f's_add_u32 s46, s{XB}, 576')
    e(f'v_add_u32 v{VA}, s46, v3')
    e('v_mov_b32 v5, 16192')
    e('v_mov_b32 v6, 17056')
    for k in range(1, 12):
        e('v_cmp_le_u32 vcc, 14, v2')
        e('v_add_u32 v3, 4, v2')
        e('v_subrev_u32 v4, 14, v2')
        e('v_cndmask_b32 v7, v5, v6, vcc')
        e('v_cndmask_b32 v2, v3, v4, vcc')
        e(f'v_add_u32 v{VA+k}, v{VA+k-1}, v7')
    e('v_and_b32 v2, 15, v1')
    e('v_lshrrev_b32 v3, 4, v1')
    e('v_subrev_u32 v5, 4, v2')
    e('v_add_u32 v6, 8, v2')
    e('v_cmp_gt_u32 vcc, 4, v2')
    e('v_cmp_le_u32 s[46:47], 12, v2')
    e(f's_and_b32 s{TYP}, s{WAVE}, 1')
    e(f's_lshr_b32 s48, s{WAVE}, 1')
    e('v_cndmask_b32 v5, v5, v6, vcc')
    e('v_cndmask_b32 v5, v5, v2, s[46:47]')
    e('v_mul_u32_u24 v5, 9, v5')
    e('v_mul_u32_u24 v4, 288, v5')
    e('v_lshl_add_u32 v6, v3, 4, v4')
    e('v_and_b32 v7, 1, v3')
    e('v_lshl_add_u32 v7, v7, 4, v4')
    e('v_lshrrev_b32 v8, 1, v3')
    e('v_mul_u32_u24 v8, 2304, v8')
    e('v_add_u32 v7, v7, v8')
    e('v_add_u32 v7, 256, v7')
    e(f's_mul_i32 s49, s{TYP}, {X_D1}')
    e(f'v_add_u32 v{VXO}, {X_O}, v6')
    e(f'v_add_u32 v{VXOR}, {X_O}, v7')
    e(f'v_add_u32 v{VXD}, s49, v6')
    e(f'v_add_u32 v{VXDR}, s49, v7')
    e('v_lshlrev_b32 v6, 4, v1')
    e(f's_mul_i32 s49, s{WAVE}, 9216')
    e(f's_add_u32 s49, s49, {X_O}')
    e(f'v_add_u32 v{VEX}, s49, v6')
    e(f's_xor_b32 s49, s{WAVE}, 1')
    e('s_mul_i32 s49, s49, 9216')
    e(f's_add_u32 s49, s49, {X_O}')
    e(f'v_add_u32 v{VEXP}, s49, v6')
    e('v_and_b32 v8, 0x39, v1')
    e('v_bfe_u32 v9, v1, 1, 1')
    e('v_lshl_add_u32 v8, v9, 2, v8')
    e('v_bfe_u32 v9, v1, 2, 1')
    e('v_lshl_add_u32 v8, v9, 1, v8')
    e(f'v_lshlrev_b32 v{VWL}, 4, v8')
    e(f's_mul_i32 s49, s{TYP}, 576')
    e(f's_add_u32 s49, s49, s{XB}')
    e(f's_add_u32 s49, s49, {60*288}')
    e(f's_lshl_b32 s50, s{NB}, 5')
    e('s_add_u32 s49, s49, s50')
    e('s_lshl_b32 s50, s48, 4')
    e('s_add_u32 s49, s49, s50')
    e('v_mul_u32_u24 v8, 1152, v5')
    e('v_lshl_add_u32 v8, v3, 2, v8')
    e(f'v_add_u32 v{VOUT}, s49, v8')
    e(f'v_add_u32 v{VOUT+1}, 3456, v{VOUT}')
    e(f'v_add_u32 v{VOUT+2}, 6912, v{VOUT}')
    e(f's_lshl_b32 s49, s{NB}, 1')
    e('s_add_u32 s49, s49, s48')
    e('s_lshl_b32 s49, s49, 1')
    e(f's_add_u32 s49, s49, s{TYP}')
    e(f's_mul_i32 s{WSO}, s49, {NSTEP*1024}')
    e(f's_add_u32 s{WSO}, s{WSO}, {WOFF}')
    e(f's_mov_b32 s{C2L}, 0x4038aa3b'); e(f's_mov_b32 s{C2L+1}, 0x4038aa3b')
    e(f's_mov_b32 s{CNL}, 0xbfb8aa3b'); e(f's_mov_b32 s{CNL+1}, 0xbfb8aa3b')
    e(f's_mov_b32 s{C60}, 0x42700000')
    e(f'v_mul_u32_u24 v{VF}, {o.fstride}, v1')
    e(f'v_add_u32 v{VF+1}, {64*o.fstride}, v{VF}')
    e(f'v_min_u32 v{VF+2}, 15, v1')
    e(f'v_mul_u32_u24 v{VF+2}, {o.fstride}, v{VF+2}')
    e(f'v_add_u32 v{VF+2}, {128*o.fstride}, v{VF+2}')
    e(f's_lshl_b32 s50, s{WAVE}, 10')
    e(f's_add_u32 s50, s50, {X_O}')
    e('s_waitcnt lgkmcnt(0)')
    e(f's_load_dword s{TAG}, s[12:13], {NONCE}')
    srd(e, S_X, 4, 1152000, add=BOFF)
    srd(e, S_WS, 12, WS_REC)
    srd(e, S_OUT, 8, 1152000, add=BOFF)
    e('s_barrier')
    stamp(1)
    for k in range(12):
        if k == 11:
            e(f's_cmp_lg_u32 s{WAVE}, 0')
            e('s_cbranch_scc1 L_o11')
        e(f's_add_u32 m0, s50, {4096*k}')
        e('s_nop 0')
        e(f'buffer_load_dwordx4 v{VA+k}, {sr(S_X)}, 0 offen lds')
    e('L_o11:')
    e('s_waitcnt vmcnt(0) lgkmcnt(0)')
    stamp(2)
    e(f's_cmp_lg_u32 s{WAVE}, 0')
    e('s_cbranch_scc1 L_go')
    e(f's_add_u32 s{TAG}, s{TAG}, {TAGINC}')
    e(f'v_mov_b32 v{VF+3}, s{TAG}')
    if o.nopoll: e('s_branch L_go')
    e('L_poll:')
    for i in range(3):
        e(f'buffer_load_dword v{VF+4+i}, v{VF+i}, {sr(S_WS)}, 0 offen sc1')
    e(f's_add_u32 s{NPOLL}, s{NPOLL}, 1')
    e('s_waitcnt vmcnt(1)')
    e(f'v_xor_b32 v{VF+4}, v{VF+4}, v{VF+3}')
    e(f'v_xor_b32 v{VF+5}, v{VF+5}, v{VF+3}')
    e('s_waitcnt vmcnt(0)')
    e(f'v_xor_b32 v{VF+6}, v{VF+6}, v{VF+3}')
    e(f'v_or3_b32 v{VF+4}, v{VF+4}, v{VF+5}, v{VF+6}')
    e(f'v_cmp_ne_u32 vcc, 0, v{VF+4}')
    e('s_nop 4')
    e('s_cbranch_vccz L_go')
    if o.sleep: e(f's_sleep {o.sleep}')
    e(f's_cmp_lt_u32 s{NPOLL}, {o.maxpoll}')
    e('s_cbranch_scc1 L_poll')
    e(f's_mov_b32 s{MODE}, 1')
    e(f's_mov_b32 s{HAS3}, 1')
    e(f's_lshr_b32 s{TW0}, s{NB}, 1')
    e(f's_add_u32 s{TW1}, s{NB}, 9')
    e(f's_lshr_b32 s{TW1}, s{TW1}, 1')
    e(f's_mov_b32 s{TW2}, 8')
    e(f's_mov_b32 s{PAIR}, 0')
    e(f's_mov_b32 s{SCRB}, {SCR}')
    e('s_branch L_prodsetup')
    e('L_go:')
    stamp(3)
    e('s_barrier')
    stamp(4)
    e(f's_setprio {o.mprio}')
    e(f's_cmp_eq_u32 s{TYP}, 1')
    e('s_cbranch_scc1 L_typeB')

    ACC = {'P': 64, 'Q': 100}
    WR, XR, TMP = 136, 200, 224
    NXR = 6
    PF = o.pf
    wflags = ' sc1' if o.wsc1 else ''
    VBD, VB1, VB2 = o.vbd, 47, 58
    for typ, S in enumerate(streams()):
        if typ == 1: e('.p2align 6'); e('L_typeB:')
        issued = [0]
        def wload():
            g = issued[0]
            if g >= NSTEP: return
            e(f'buffer_load_dwordx4 {vr(WR+4*(g%16),4)}, v{VWL}, {sr(S_WS)}, s{WSO} offen offset:{1024*(g%4)}{wflags}')
            if g % 4 == 3: e(f's_add_u32 s{WSO}, s{WSO}, 4096')
            issued[0] += 1
        def keys(v):
            ks = []
            for j in range(8, -1, -1):
                g = v - j
                if 0 <= g < NSTEP:
                    pid, arr, ch, c, acc = S[g]
                    k = (pid, arr, ch, c + j)
                    if k not in ks: ks.append(k)
            return ks
        xreg = {}
        xn = [0]
        def xread(k):
            pid, arr, ch, s = k
            r = XR + 4 * (xn[0] % NXR); xn[0] += 1
            xreg[k] = r
            if ch == 'rem':
                return f'ds_read_b128 {vr(r,4)}, v{VXOR if arr == "O" else VXDR} offset:{288*s}'
            return f'ds_read_b128 {vr(r,4)}, v{VXO if arr == "O" else VXD} offset:{64*ch+288*s}'
        for _ in range(PF): wload()
        for k in keys(0): e(xread(k))
        NV = NSTEP + 8
        firstD = min(g for g in range(NSTEP) if S[g][1] == 'D')
        assert VBD <= firstD - 1
        fill = []
        def epi(j):
            q = ACC['Q'] + 4 * j
            t = TMP + 8 * (j & 1)
            I = []
            I.append(f'v_pk_mul_f32 {vr(t,2)}, {vr(q,2)}, s[{C2L}:{C2L+1}]')
            I.append(f'v_pk_mul_f32 {vr(t+2,2)}, {vr(q+2,2)}, s[{CNL}:{CNL+1}]')
            I.append(f'v_min_f32 v{t}, s{C60}, v{t}')
            I.append(f'v_min_f32 v{t+1}, s{C60}, v{t+1}')
            for i in (2, 3, 0, 1): I.append(f'v_exp_f32 v{t+i}, v{t+i}')
            I.append('s_nop 0')
            I.append(f'v_pk_add_f32 {vr(t+4,2)}, {vr(t,2)}, 1.0 op_sel_hi:[1,0]')
            I.append(f'v_pk_add_f32 {vr(t+6,2)}, {vr(t,2)}, -1.0 op_sel_hi:[1,0]')
            I.append(f'v_pk_fma_f32 {vr(t+4,2)}, {vr(t+4,2)}, {vr(t+2,2)}, {vr(t+4,2)}')
            I.append(f'v_rcp_f32 v{t+4}, v{t+4}')
            I.append(f'v_rcp_f32 v{t+5}, v{t+5}')
            I.append('s_nop 0')
            I.append(f'v_pk_mul_f32 {vr(t+6,2)}, {vr(t+6,2)}, {vr(t+4,2)}')
            I.append(f'v_cvt_pk_bf16_f32 v{ACC["P"]+j}, v{t+6}, v{t+7}')
            I.append(f'buffer_store_dword v{ACC["P"]+j}, v{VOUT + j//3}, {sr(S_OUT)}, 0 offen offset:{1152*(j%3)}')
            return I
        since = {}
        for v in range(NV):
            js = [j for j in range(8, -1, -1) if 0 <= v - j < NSTEP]
            nxt = keys(v + 1) if v + 1 < NV else []
            extra = []
            if issued[0] < NSTEP and issued[0] <= v + PF: extra.append('W')
            extra += [('X', k) for k in nxt]
            if VB1 < v <= VB1 + 9: extra.append(f'ds_write_b128 v{VEX}, {vr(ACC["P"]+4*(v-VB1-1),4)} offset:{1024*(v-VB1-1)}')
            jr = v - (VB2 + 1)
            if 0 <= jr < 9: extra.append(f'ds_read_b128 {vr(TMP+4*(jr&1),4)}, v{VEXP} offset:{1024*jr}')
            ja = v - (VB2 + 2)
            e('s_waitcnt lgkmcnt(0)')
            if o.diag == 2 and v in o.marks:
                kk = o.marks.index(v)
                e(f's_memtime s[{ST0+2*kk}:{ST0+2*kk+1}]')
            if o.diag in (1, 4) and v == VBD: stamp(5)
            if v in (VBD, VB1, VB2): e('s_barrier')
            if o.diag in (1, 4) and v == VBD: stamp(6)
            for n, j in enumerate(js):
                g = v - j
                pid, arr, ch, c, acc = S[g]
                k = (pid, arr, ch, c + j)
                if 0 <= ja < 9 and ((j == ja + 2 and ja <= 6) or (ja >= 7 and j == ja - 7)):
                    q = ACC['Q'] + 4 * ja; t = TMP + 4 * (ja & 1)
                    if o.nopk:
                        for i in range(4): e(f'v_add_f32 v{q+i}, v{q+i}, v{t+i}')
                    else:
                        e(f'v_pk_add_f32 {vr(q,2)}, {vr(q,2)}, {vr(t,2)}')
                        e(f'v_pk_add_f32 {vr(q+2,2)}, {vr(q+2,2)}, {vr(t+2,2)}')
                if j == 0:
                    e(f's_waitcnt vmcnt({issued[0]-1-g})')
                d = ACC[acc] + 4 * j
                if g == 0: cs = '0'
                elif acc == 'Q' and S[g-1][4] == 'P': cs = vr(ACC['P'] + 4 * j, 4)
                else: cs = vr(d, 4)
                e(f'v_mfma_f32_16x16x32_bf16 {vr(d,4)}, {vr(WR+4*(g%16),4)}, {vr(xreg[k],4)}, {cs}')
                for jj in since: since[jj] += 1
                if g == NSTEP - 1: since[j] = 0
                if extra:
                    x = extra.pop(0)
                    if x == 'W': wload()
                    elif isinstance(x, tuple): e(xread(x[1]))
                    else: e(x)
                    for jj in since: since[jj] += 1
                for jj in sorted(since):
                    if 8 <= since[jj] < 10**6:
                        fill += epi(jj); since[jj] = 10**6
                nf = o.nfill
                while fill and nf > 0:
                    e(fill.pop(0)); nf -= 1
                    for jj in since: since[jj] += 1
            for x in extra:
                if x == 'W': wload()
                elif isinstance(x, tuple): e(xread(x[1]))
                else: e(x)
        stamp(7)
        rem = [jj for jj in sorted(since) if since[jj] < 10**6]
        while fill:
            e(fill.pop(0))
            for jj in since: since[jj] += 1
        for jj in rem:
            if since[jj] < 8: e(f's_nop {8-since[jj]-1}')
            for x in epi(jj):
                e(x)
                for j2 in since: since[j2] += 1
        stamp(8)
        if o.diag == 1:
            e('s_waitcnt vmcnt(0)')
            stamp(9)
            dump(10)
        if o.diag == 4:
            e('s_waitcnt vmcnt(0)')
            stamp(9)
            e('s_waitcnt lgkmcnt(0)')
            srd(e, S_DBG, 10, 256)
            e('v_mov_b32 v250, 0')
            e(f's_not_b32 s46, s{ST0}')
            e('v_writelane_b32 v250, s46, 1')
            for k in range(10): e(f'v_writelane_b32 v250, s{ST0+2*k}, {k+2}')
            e(f's_not_b32 s46, s{ST0+8}')
            e('v_writelane_b32 v250, s46, 12')
            e(f's_not_b32 s46, s{ST0+18}')
            e('v_writelane_b32 v250, s46, 13')
            e(f'v_writelane_b32 v250, s{NPOLL}, 14')
            e('v_lshlrev_b32 v251, 2, v1')
            e(f's_cmp_lg_u32 s{WAVE}, 0')
            e(f's_cbranch_scc1 L_d4_{typ}')
            e('s_mov_b64 exec, 0x7ffe')
            e(f'buffer_atomic_umax v250, v251, {sr(S_DBG)}, 0 offen sc1')
            e(f'L_d4_{typ}:')
        if o.diag == 2:
            kk = len(o.marks)
            e(f's_memtime s[{ST0+2*kk}:{ST0+2*kk+1}]')
            dump(10)
        e('s_endpgm')

    e('.p2align 6')
    e('L_helper:')
    e(f's_setprio {o.hprio}')
    e(f's_sub_u32 s{TW0}, s{WAVE}, 4')
    e(f's_mov_b32 s{TW1}, s{WAVE}')
    e(f's_mov_b32 s{TW2}, 8')
    e(f's_mov_b32 s{PAIR}, s{PAIR0}')
    e(f's_mov_b32 s{MODE}, 0')
    e(f's_mov_b32 s{HAS3}, s{TW0}')
    e(f's_lshl_b32 s{SCRB}, s{TW0}, 12')
    e(f's_add_u32 s{SCRB}, s{SCRB}, {SCR}')
    e(f'v_mov_b32 v10, {CNT}')
    e('v_mov_b32 v11, 0')
    e(f's_cmp_lg_u32 s{TW0}, 0')
    e('s_cbranch_scc1 L_prodsetup')
    e('ds_write_b32 v10, v11')
    e('L_prodsetup:')
    e('v_mov_b32 v19, 4320')
    e(f'v_mov_b32 v20, {(256 - 18*2*NSTEP*1024) & 0xffffffff}')
    e(f'v_mov_b32 v26, {2*NSTEP*1024}')
    e('v_bfe_u32 v21, v1, 2, 2')
    e('v_lshlrev_b32 v21, 7, v21')
    e('v_and_b32 v22, 1, v1')
    e('v_lshl_add_u32 v21, v22, 6, v21')
    e('v_bfe_u32 v22, v1, 1, 1')
    e('v_lshl_add_u32 v21, v22, 3, v21')
    e('v_lshrrev_b32 v22, 4, v1')
    e('v_lshl_add_u32 v21, v22, 4, v21')
    e(f'v_add_u32 v21, s{SCRB}, v21')
    e('v_and_b32 v23, 3, v1')
    e('v_lshrrev_b32 v24, 3, v1')
    e('v_mul_u32_u24 v24, 576, v24')
    e('v_bfe_u32 v25, v1, 2, 1')
    e('v_mul_u32_u24 v25, 288, v25')
    e('v_add_u32 v24, v24, v25')
    e('v_and_b32 v25, 15, v1')
    e('v_lshlrev_b32 v25, 4, v25')
    T = [(64, TW0, 2, 3, 0), (96, TW1, 4, 5, 2048), (128, TW2, 6, 7, 16384)]
    for (vb, sw, vl, vs, so) in T:
        e(f's_lshl_b32 s47, s{sw}, 2')
        e('v_add_u32 v8, s47, v23')
        e('v_add_u32 v9, s47, v22')
        e('v_cmp_le_u32 vcc, 18, v8')
        e('v_cmp_le_u32 s[48:49], 18, v9')
        e(f'v_lshl_add_u32 v{vl}, v8, 4, v24')
        e(f'v_mad_u32_u24 v{vs}, v9, v26, v25')
        e('v_cndmask_b32 v8, 0, v19, vcc')
        e('v_cndmask_b32 v9, 0, v20, s[48:49]')
        e(f'v_add_u32 v{vl}, v{vl}, v8')
        e(f'v_add_u32 v{vs}, v{vs}, v9')
    e('L_prod:')
    c, kp, q, cc, kk, t = 46, 47, 48, 49, 50, 51
    b = TS
    e(f's_and_b32 s{c}, s{PAIR}, 15')
    e(f's_lshr_b32 s{kp}, s{PAIR}, 4')
    e(f's_mul_i32 s{b}, s{c}, 165888')
    e(f's_mul_i32 s{t}, s{kp}, 9216')
    e(f's_add_u32 s{b}, s{b}, s{t}')
    e(f's_add_u32 s{b+1}, s{b}, 82944')
    e(f's_lshr_b32 s{q}, s{kp}, 1')
    e(f's_and_b32 s{cc}, s{c}, 7')
    e(f's_lshr_b32 s{kk}, s{c}, 3')
    e(f's_and_b32 s{t}, s{kp}, 1')
    e(f's_cmp_eq_u32 s{kp}, 8')
    e(f's_cselect_b32 s{cc}, s{cc}, s{c}')
    e(f's_cselect_b32 s{kk}, s{kk}, s{t}')
    e(f's_lshl_b32 s{kk}, s{kk}, 9')
    e(f's_add_u32 s{kk}, s{kk}, {WOFF}')
    e(f's_lshl_b32 s{t}, s{q}, 4')
    e(f's_add_u32 s{b+2}, s{t}, s{cc}')
    e(f's_sub_u32 s{b+3}, s{b+2}, s{q}')
    e(f's_cmp_ge_u32 s{q}, 2')
    e(f's_cselect_b32 s{b+4}, 74, 0')
    e(f's_add_u32 s{b+4}, s{b+4}, s{b+2}')
    e(f's_cmp_lt_u32 s{cc}, 2')
    e(f's_cselect_b32 s{t}, 32, 136')
    e(f's_add_u32 s{t}, s{t}, s{cc}')
    e(f's_cmp_eq_u32 s{kp}, 8')
    e(f's_cselect_b32 s{b+4}, s{t}, s{b+4}')
    e(f's_add_u32 s{b+2}, s{b+2}, 34')
    e(f's_add_u32 s{b+3}, s{b+3}, 144')
    for k in (2, 3, 4):
        e(f's_lshl_b32 s{b+k}, s{b+k}, 10')
        e(f's_add_u32 s{b+k}, s{b+k}, s{kk}')
    e(f's_cmp_eq_u32 s{kp}, 8')
    e(f's_cselect_b32 s{t}, 1, 2')
    e(f's_cmp_eq_u32 s{c}, 15')
    e(f's_cselect_b32 s{b+5}, s{t}, 0')
    e('s_waitcnt lgkmcnt(0)')
    srd(e, S_W, 6, 2571264)
    srd(e, S_WO, 6, 2571264)
    e(f's_cmp_eq_u32 s{b+5}, 0')
    e(f's_cselect_b32 s{S_WO+2}, 2571264, 0')
    e(f's_cmp_ge_u32 s{PAIR}, {NPROD}')
    e('s_cbranch_scc1 L_noprod')
    def cond3(lbl):
        e(f's_cmp_lg_u32 s{HAS3}, 0')
        e(f's_cbranch_scc1 {lbl}')
    for ti, (vb, sw, vl, vs, so) in enumerate(T):
        if ti == 2: cond3('L_a3')
        e(f's_add_u32 m0, s{SCRB}, {so}')
        e('s_nop 0')
        e(f'buffer_load_dwordx4 v{vl}, {sr(S_W)}, s{b} offen lds')
        e(f's_add_u32 m0, s{SCRB}, {so+1024}')
        e('s_nop 0')
        e(f'buffer_load_dwordx4 v{vl}, {sr(S_WO)}, s{b+1} offen lds')
    e('L_a3:')
    e(f's_cmp_lg_u32 s{MODE}, 0')
    e('s_cbranch_scc1 L_a4')
    e(f's_load_dword s{TAG}, s[12:13], {NONCE}')
    e('L_a4:')
    srd(e, S_WS, 12, WS_REC)
    stamp(1)
    e('s_waitcnt vmcnt(0) lgkmcnt(0)')
    stamp(2)
    def trreads(vb, so):
        for tap in range(2):
            for half in range(2):
                e(f'ds_read_b64_tr_b16 {vr(vb+4*tap+2*half,2)}, v21 offset:{so+1024*tap+512*half}')
    def st01(vb, vs, n0, n1, tag):
        e(f's_waitcnt lgkmcnt({n0})')
        e(f'buffer_store_dwordx4 {vr(vb,4)}, v{vs}, {sr(S_WS)}, s{b+2} offen sc1')
        e(f's_waitcnt lgkmcnt({n1})')
        e(f's_cmp_eq_u32 s{b+5}, 2')
        e(f's_cbranch_scc1 L_skip{tag}')
        e(f'buffer_store_dwordx4 {vr(vb+4,4)}, v{vs}, {sr(S_WS)}, s{b+3} offen sc1')
        e(f'L_skip{tag}:')
    def stsum(vb, vs):
        for i in range(8):
            e(f'v_lshlrev_b32 v{vb+8+2*i}, 16, v{vb+i}')
            e(f'v_and_b32 v{vb+9+2*i}, s{MASK}, v{vb+i}')
        for i in range(4):
            e(f'v_pk_add_f32 {vr(vb+8+2*i,2)}, {vr(vb+8+2*i,2)}, {vr(vb+16+2*i,2)}')
        for i in range(4):
            e(f'v_cvt_pk_bf16_f32 v{vb+24+i}, v{vb+8+2*i}, v{vb+9+2*i}')
        e(f'buffer_store_dwordx4 {vr(vb+24,4)}, v{vs}, {sr(S_WS)}, s{b+4} offen sc1')
    for tt in T: trreads(tt[0], tt[4])
    st01(T[0][0], T[0][3], 10, 8, 0)
    st01(T[1][0], T[1][3], 6, 4, 1)
    stsum(T[0][0], T[0][3])
    stsum(T[1][0], T[1][3])
    cond3('L_b3')
    st01(T[2][0], T[2][3], 2, 0, 2)
    stsum(T[2][0], T[2][3])
    e('L_b3:')
    e(f's_cmp_eq_u32 s{MODE}, 0')
    e('s_cbranch_scc1 L_b4')
    e('s_waitcnt vmcnt(0) lgkmcnt(0)')
    e(f's_add_u32 s{PAIR}, s{PAIR}, 1')
    e(f's_cmp_lt_u32 s{PAIR}, {NPROD}')
    e('s_cbranch_scc1 L_prod')
    e('s_branch L_go')
    e('L_noprod:')
    e(f's_load_dword s{TAG}, s[12:13], {NONCE}')
    srd(e, S_WS, 12, WS_REC)
    stamp(1); stamp(2)
    e('L_b4:')
    e('s_barrier')
    stamp(3)
    e('v_subrev_u32 v4, 256, v0')
    e('v_min_u32 v4, 251, v4')
    e('v_mul_u32_u24 v3, 3641, v4')
    e('v_lshrrev_b32 v3, 16, v3')
    e('v_mul_u32_u24 v2, 18, v3')
    e('v_sub_u32 v2, v4, v2')
    e(f'v_mul_u32_u24 v3, {R}, v3')
    e(f'v_min_u32 v3, {160-R}, v3')
    e('v_mul_u32_u24 v4, 1152, v3')
    e('v_lshl_add_u32 v4, v2, 4, v4')
    e(f'v_add_u32 v12, s{XB}, v4')
    e('v_mul_u32_u24 v18, 288, v3')
    e('v_lshl_add_u32 v18, v2, 4, v18')
    e(f'v_add_u32 v19, {X_D1}, v18')
    srd(e, S_X, 4, 1152000, add=BOFF)
    srd(e, S_DBG, 10, 256)
    e(f's_mov_b32 s{LAST}, 0')
    e(f's_cmp_ge_u32 s{PAIR0}, {NPROD}')
    e('s_cbranch_scc1 L_noflag')
    e('s_waitcnt vmcnt(0) lgkmcnt(0)')
    stamp(4)
    e('v_mov_b32 v13, 1')
    e('s_mov_b64 exec, 1')
    e('ds_add_rtn_u32 v14, v10, v13')
    e(f's_add_u32 s46, s{TAG}, {TAGINC}')
    e('v_mov_b32 v15, s46')
    e(f's_mul_i32 s46, s{PAIR0}, {o.fstride}')
    e('v_mov_b32 v16, s46')
    e('s_waitcnt lgkmcnt(0)')
    e(f'v_readfirstlane_b32 s{LAST}, v14')
    e('s_nop 3')
    e(f's_cmp_lg_u32 s{LAST}, 3')
    e('s_cbranch_scc1 L_notlast')
    e(f'buffer_store_dword v15, v16, {sr(S_WS)}, 0 offen sc1')
    e('L_notlast:')
    e('s_mov_b64 exec, -1')
    e('L_noflag:')
    e(f's_setprio {o.hprio2}')
    RAW, ORAW = 64, 120
    EU = [184, 192]
    OU, DT, DO = 200, 208, 216
    xi = [0]
    NL = R + 1
    def eload():
        k = xi[0]
        if k >= NL: return
        a_ = 12
        if k:
            a_ = 13 + (k & 3)
            e(f'v_add_u32 v{a_}, {1152*k}, v12')
        e(f'buffer_load_dwordx4 {vr(RAW+4*k,4)}, v{a_}, {sr(S_X)}, 0 offen')
        xi[0] += 1
    for _ in range(o.epre): eload()
    e('s_waitcnt lgkmcnt(0)')
    stamp(5)
    e('s_barrier')
    stamp(6)
    for _ in range(max(0, o.ein - o.epre)): eload()
    for j in range(R):
        e(f'ds_read_b128 {vr(ORAW+4*j,4)}, v18 offset:{X_O+288*j}')
    def unpack(dst, s_):
        for i in range(4):
            e(f'v_lshlrev_b32 v{dst+2*i}, 16, v{s_+i}')
            e(f'v_and_b32 v{dst+2*i+1}, s{MASK}, v{s_+i}')
    def unpackE(dst, k):
        e(f's_waitcnt vmcnt({xi[0]-1-k})')
        unpack(dst, RAW + 4 * k)
        eload()
    def diff(eu, out):
        if o.nopk:
            for i in range(8): e(f'v_sub_f32 v{DT+i}, v{eu+i}, v{OU+i}')
        else:
          for i in range(4):
            e(f'v_pk_add_f32 {vr(DT+2*i,2)}, {vr(eu+2*i,2)}, {vr(OU+2*i,2)} neg_lo:[0,1] neg_hi:[0,1]')
        for i in range(4):
            e(f'v_cvt_pk_bf16_f32 v{out+i}, v{DT+2*i}, v{DT+2*i+1}')
    unpackE(EU[0], 0)
    e('s_waitcnt lgkmcnt(0)')
    for j in range(R):
        o0 = DO + 8 * (j & 1)
        unpack(OU, ORAW + 4 * j)
        diff(EU[j & 1], o0)
        e(f'ds_write_b128 v18, {vr(o0,4)} offset:{X_D0+288*j}')
        unpackE(EU[(j + 1) & 1], j + 1)
        diff(EU[(j + 1) & 1], o0 + 4)
        e(f'ds_write_b128 v19, {vr(o0+4,4)} offset:{288*j}')
    e(f's_cmp_lg_u32 s{WAVE}, 4')
    e('s_cbranch_scc1 L_noat')
    e('v_mov_b32 v13, 1')
    e('v_mov_b32 v11, 0')
    e('s_mov_b64 exec, 1')
    e(f'buffer_atomic_add v13, v11, {sr(S_DBG)}, 0 offen sc0 sc1')
    e('s_mov_b64 exec, -1')
    e('L_noat:')
    e('s_waitcnt lgkmcnt(0)')
    stamp(7)
    e('s_barrier')
    e(f's_cmp_lg_u32 s{WAVE}, 4')
    e('s_cbranch_scc1 L_hend')
    e('s_waitcnt vmcnt(0)')
    e('v_readfirstlane_b32 s46, v13')
    e(f's_add_u32 s47, s{TAG}, {TAGINC}')
    e('v_mov_b32 v14, s47')
    e(f'v_mov_b32 v15, {NONCE}')
    e(f's_cmp_lg_u32 s46, {NWG-1}')
    e('s_cbranch_scc1 L_hend')
    e('s_mov_b64 exec, 1')
    e(f'buffer_store_dword v14, v15, {sr(S_WS)}, 0 offen sc1')
    e('s_mov_b64 exec, -1')
    e('L_hend:')
    if o.diag == 1:
        stamp(8); stamp(9)
        dump(10)
    e('L_end:')
    e('s_endpgm')
    e('.section .rodata,"a"')
    e('.p2align 6')
    e(f'.amdhsa_kernel {KN}')
    for x in ['next_free_vgpr 256', 'next_free_sgpr 102', 'accum_offset 256', 'group_segment_fixed_size 0', 'kernarg_size 40',
              'user_sgpr_count 2', 'user_sgpr_kernarg_segment_ptr 1', 'system_sgpr_workgroup_id_x 1']:
        e('  .amdhsa_' + x)
    e('.end_amdhsa_kernel')
    n = check(e.L)
    if n: print(f'{n} hazards', file=sys.stderr)
    return f'; @launch grid=({NWG},1,1) block=(512,1,1) lds={LDS_BYTES}\n' + e.text()

def opts(argv=None):
    ap = argparse.ArgumentParser()
    ap.add_argument('-o', default='k.s')
    for nm, d in [('diag', 0), ('pf', 7), ('wsc1', 0), ('nfill', 2), ('fstride', 128), ('sleep', 0), ('maxpoll', 3000), ('nopoll', 0),
                  ('hprio', 3), ('hprio2', 0), ('mprio', 2), ('epre', 13), ('ein', 4), ('vbd', 33), ('nopk', 1)]:
        ap.add_argument('--' + nm, type=int, default=d)
    ap.add_argument('--marks', default='0,4,8,12,16,24,33,47,58')
    o = ap.parse_args(argv)
    o.marks = [int(x) for x in o.marks.split(',')]
    return o

if __name__ == '__main__':
    o = opts()
    open(o.o, 'w').write(gen(o))
```

```python
import re, sys, argparse
from haz import check

KN = 'standalone__autoregressive_conv_wavernn__speech_kernel'
NWG = 252
NPROD = 144
ARR = 160 * 288
X_D0, X_O, X_D1 = 0, ARR, 2 * ARR
CNT = 3 * ARR
SCR = CNT + 64
LDS_BYTES = SCR + 18432
NSTEP = 106
WOFF = 0x100000
NONCE = 0x10000
DIAG = 0x800000
WS_REC = 0x1000000
TAGINC = 0x9E3779B9
R = 12

class Em:
    def __init__(self): self.L = []
    def __call__(self, s): self.L.append(s)
    def text(self): return '\n'.join(self.L) + '\n'

def vr(a, n=1): return f'v{a}' if n == 1 else f'v[{a}:{a+n-1}]'
def sr(a, n=4): return f's[{a}:{a+n-1}]'

def streams():
    out = []
    for typ in (0, 1):
        S = []
        pid = [0]
        def add(arr, chunk, cs, acc):
            for c in cs: S.append((pid[0], arr, chunk, c, acc))
            pid[0] += 1
        if typ == 0:
            add('O', 0, range(16), 'P'); add('O', 1, range(16), 'P'); add('O', 'rem', range(0, 2), 'P')
            for q in range(4): add('D', q, range(16), 'Q')
            add('D', 'rem', range(8), 'Q')
        else:
            add('O', 2, range(16), 'P'); add('O', 3, range(16), 'P'); add('O', 'rem', range(2, 8), 'P')
            for q in range(4): add('D', q, range(15), 'Q')
            add('D', 'rem', range(8), 'Q')
        assert len(S) == NSTEP
        out.append(S)
    return out

S_X, S_W, S_WO, S_WS, S_OUT, S_DBG = 20, 24, 28, 32, 36, 40
WAVE, NB, BAT, PAR, MB, BOFF = 14, 15, 16, 17, 18, 19
PAIR0 = 3
XB = 52
MASK = 53
TW0, TW1, TW2, PAIR, HAS3, MODE, SCRB, TAG, LAST, NPOLL = 44, 45, 54, 55, 56, 57, 58, 59, 60, 61
TS = 62
TYP, WSO = 68, 69
C2L, CNL, C60 = 90, 92, 94
ST0 = 70

def srd(e, d, ptr, rec, add=None):
    if add is None:
        e(f's_mov_b32 s{d}, s{ptr}')
        e(f's_and_b32 s{d+1}, s{ptr+1}, 0xffff')
    else:
        e(f's_add_u32 s{d}, s{ptr}, s{add}')
        e(f's_addc_u32 s{d+1}, s{ptr+1}, 0')
        e(f's_and_b32 s{d+1}, s{d+1}, 0xffff')
    e(f's_mov_b32 s{d+2}, {rec}')
    e(f's_mov_b32 s{d+3}, 0x20000')

def gen(o):
    e = Em()
    def stamp(k, lvl=1):
        if o.diag == lvl or (o.diag == 4 and lvl == 1): e(f's_memrealtime s[{ST0+2*k}:{ST0+2*k+1}]')
    def dump(nst):
        e('s_waitcnt lgkmcnt(0)')
        e('v_mov_b32 v250, 0')
        for k in range(nst): e(f'v_writelane_b32 v250, s{ST0+2*k}, {k}')
        e(f'v_writelane_b32 v250, s{NPOLL}, 13')
        e(f'v_writelane_b32 v250, s{PAIR0}, 14')
        e('s_getreg_b32 s46, hwreg(HW_REG_XCC_ID)')
        e('v_writelane_b32 v250, s46, 15')
        e(f's_lshl_b32 s46, s2, 3'); e(f's_add_u32 s46, s46, s{WAVE}'); e('s_lshl_b32 s46, s46, 6'); e(f's_add_u32 s46, s46, {DIAG}')
        e('v_lshl_add_u32 v251, v1, 2, s46')
        e('s_mov_b64 exec, 0xffff')
        e(f'buffer_store_dword v250, v251, {sr(S_WS)}, 0 offen')
        e('s_mov_b64 exec, -1')

    e('.amdgcn_target "amdgcn-amd-amdhsa--gfx950"')
    e('.text')
    e(f'.globl {KN}')
    e('.p2align 8')
    e(f'.type {KN},@function')
    e(f'{KN}:')
    e(f's_cmp_ge_u32 s2, {NWG}')
    e('s_cbranch_scc1 L_end')
    stamp(0)
    if o.padto: e('s_memrealtime s[96:97]')
    e('s_load_dwordx4 s[4:7], s[0:1], 0')
    e('s_load_dwordx4 s[8:11], s[0:1], 16')
    e('s_load_dwordx2 s[12:13], s[0:1], 32')
    e('v_lshrrev_b32 v2, 6, v0')
    e('v_and_b32 v1, 63, v0')
    e(f'v_readfirstlane_b32 s{WAVE}, v2')
    def decode():
        e('s_and_b32 s44, s2, 7')
        e('s_lshr_b32 s45, s2, 3')
        e('s_mul_i32 s46, s44, 31')
        e('s_min_u32 s44, s44, 4')
        e('s_add_u32 s46, s46, s44')
        e('s_add_u32 s46, s46, s45')
        e('s_mul_hi_u32 s47, s46, 68174085')
        e('s_mul_i32 s48, s47, 63')
        e('s_sub_u32 s48, s46, s48')
        e(f's_mul_hi_u32 s{NB}, s48, 613566757')
        e(f's_mul_i32 s49, s{NB}, 7')
        e('s_sub_u32 s49, s48, s49')
        e('s_mul_i32 s47, s47, 7')
        e('s_add_u32 s47, s47, s49')
        e(f's_and_b32 s{PAR}, s47, 1')
        e('s_lshr_b32 s47, s47, 1')
        e('s_cmp_ge_u32 s47, 7')
        e(f's_cselect_b32 s{BOFF}, 1152000, 0')
        e('s_cselect_b32 s48, 7, 0')
        e(f's_sub_u32 s{MB}, s47, s48')
        e(f's_mul_i32 s{XB}, s{MB}, 576')
        e(f's_add_u32 s{XB}, s{XB}, s{PAR}')
        e(f's_sub_u32 s{XB}, s{XB}, 60')
        e(f's_mul_i32 s{XB}, s{XB}, 288')
    e(f's_mov_b32 s{MASK}, 0xffff0000')
    e(f's_mov_b32 s{NPOLL}, 0')
    e(f's_mov_b32 s{PAIR0}, s2')
    e(f's_cmp_ge_u32 s{WAVE}, 4')
    e('s_cbranch_scc1 L_helper')
    decode()

    VXO, VXOR, VXD, VXDR, VWL, VEX, VEXP, VOUT = 30, 31, 32, 33, 34, 35, 36, 37
    VF = 40
    VA = 48
    VCL = 60
    e('v_mul_u32_u24 v3, 3641, v0')
    e('v_lshrrev_b32 v3, 16, v3')
    e('v_mul_u32_u24 v2, 18, v3')
    e('v_sub_u32 v2, v0, v2')
    e('v_mul_u32_u24 v3, 1152, v3')
    e('v_lshl_add_u32 v3, v2, 4, v3')
    e(f's_add_u32 s46, s{XB}, 576')
    e(f'v_add_u32 v{VA}, s46, v3')
    e('v_mov_b32 v5, 16192')
    e('v_mov_b32 v6, 17056')
    for k in range(1, 12):
        e('v_cmp_le_u32 vcc, 14, v2')
        e('v_add_u32 v3, 4, v2')
        e('v_subrev_u32 v4, 14, v2')
        e('v_cndmask_b32 v7, v5, v6, vcc')
        e('v_cndmask_b32 v2, v3, v4, vcc')
        e(f'v_add_u32 v{VA+k}, v{VA+k-1}, v7')
    e('v_and_b32 v2, 15, v1')
    e('v_lshrrev_b32 v3, 4, v1')
    e('v_subrev_u32 v5, 4, v2')
    e('v_add_u32 v6, 8, v2')
    e('v_cmp_gt_u32 vcc, 4, v2')
    e('v_cmp_le_u32 s[46:47], 12, v2')
    e(f's_and_b32 s{TYP}, s{WAVE}, 1')
    e(f's_lshr_b32 s48, s{WAVE}, 1')
    e('v_cndmask_b32 v5, v5, v6, vcc')
    e('v_cndmask_b32 v5, v5, v2, s[46:47]')
    e('v_mul_u32_u24 v5, 9, v5')
    e('v_mul_u32_u24 v4, 288, v5')
    e('v_lshl_add_u32 v6, v3, 4, v4')
    e('v_and_b32 v7, 1, v3')
    e('v_lshl_add_u32 v7, v7, 4, v4')
    e('v_lshrrev_b32 v8, 1, v3')
    e('v_mul_u32_u24 v8, 2304, v8')
    e('v_add_u32 v7, v7, v8')
    e('v_add_u32 v7, 256, v7')
    e(f's_mul_i32 s49, s{TYP}, {X_D1}')
    e(f'v_add_u32 v{VXO}, {X_O}, v6')
    e(f'v_add_u32 v{VXOR}, {X_O}, v7')
    e(f'v_add_u32 v{VXD}, s49, v6')
    e(f'v_add_u32 v{VXDR}, s49, v7')
    e('v_lshlrev_b32 v6, 4, v1')
    e(f's_mul_i32 s49, s{WAVE}, 9216')
    e(f's_add_u32 s49, s49, {X_O}')
    e(f'v_add_u32 v{VEX}, s49, v6')
    e(f's_xor_b32 s49, s{WAVE}, 1')
    e('s_mul_i32 s49, s49, 9216')
    e(f's_add_u32 s49, s49, {X_O}')
    e(f'v_add_u32 v{VEXP}, s49, v6')
    e('v_and_b32 v8, 0x39, v1')
    e('v_bfe_u32 v9, v1, 1, 1')
    e('v_lshl_add_u32 v8, v9, 2, v8')
    e('v_bfe_u32 v9, v1, 2, 1')
    e('v_lshl_add_u32 v8, v9, 1, v8')
    e(f'v_lshlrev_b32 v{VWL}, 4, v8')
    e(f's_mul_i32 s49, s{TYP}, 576')
    e(f's_add_u32 s49, s49, s{XB}')
    e(f's_add_u32 s49, s49, {60*288}')
    e(f's_lshl_b32 s50, s{NB}, 5')
    e('s_add_u32 s49, s49, s50')
    e('s_lshl_b32 s50, s48, 4')
    e('s_add_u32 s49, s49, s50')
    e('v_mul_u32_u24 v8, 1152, v5')
    e('v_lshl_add_u32 v8, v3, 2, v8')
    e(f'v_add_u32 v{VOUT}, s49, v8')
    e(f'v_add_u32 v{VOUT+1}, 3456, v{VOUT}')
    e(f'v_add_u32 v{VOUT+2}, 6912, v{VOUT}')
    e(f's_lshl_b32 s49, s{NB}, 1')
    e('s_add_u32 s49, s49, s48')
    e('s_lshl_b32 s49, s49, 1')
    e(f's_add_u32 s49, s49, s{TYP}')
    e(f's_mul_i32 s{WSO}, s49, {NSTEP*1024}')
    e(f's_add_u32 s{WSO}, s{WSO}, {WOFF}')
    e(f's_mov_b32 s{C2L}, 0x4038aa3b'); e(f's_mov_b32 s{C2L+1}, 0x4038aa3b')
    e(f's_mov_b32 s{CNL}, 0xbfb8aa3b'); e(f's_mov_b32 s{CNL+1}, 0xbfb8aa3b')
    e(f's_mov_b32 s{C60}, 0x42700000')
    e(f'v_mul_u32_u24 v{VF}, {o.fstride}, v1')
    e(f'v_add_u32 v{VF+1}, {64*o.fstride}, v{VF}')
    e(f'v_min_u32 v{VF+2}, 15, v1')
    e(f'v_mul_u32_u24 v{VF+2}, {o.fstride}, v{VF+2}')
    e(f'v_add_u32 v{VF+2}, {128*o.fstride}, v{VF+2}')
    e(f's_lshl_b32 s50, s{WAVE}, 10')
    e(f's_add_u32 s50, s50, {X_O}')
    e(f's_or_b32 s46, s2, s{WAVE}')
    e('v_or_b32 v2, s46, v1')
    e('v_cmp_eq_u32 vcc, 0, v2')
    e(f'v_mov_b32 v{VCL}, -16')
    e(f'v_mov_b32 v{VCL+1}, -16')
    e(f'v_mov_b32 v3, {NONCE}')
    e(f'v_cndmask_b32 v{VCL}, v{VCL}, 4, vcc')
    e(f'v_cndmask_b32 v{VCL+1}, v{VCL+1}, v3, vcc')
    e('s_waitcnt lgkmcnt(0)')
    e(f's_load_dword s{TAG}, s[12:13], {NONCE}')
    srd(e, S_X, 4, 1152000, add=BOFF)
    srd(e, S_WS, 12, WS_REC)
    srd(e, S_OUT, 8, 1152000, add=BOFF)
    srd(e, S_DBG, 10, 256)
    e('s_barrier')
    stamp(1)
    for k in range(12):
        if k == 11:
            e(f's_cmp_lg_u32 s{WAVE}, 0')
            e('s_cbranch_scc1 L_o11')
        e(f's_add_u32 m0, s50, {4096*k}')
        e('s_nop 0')
        e(f'buffer_load_dwordx4 v{VA+k}, {sr(S_X)}, 0 offen lds')
    e('L_o11:')
    e('s_waitcnt vmcnt(0) lgkmcnt(0)')
    stamp(2)
    e(f's_add_u32 s{TAG}, s{TAG}, {TAGINC}')
    e(f'v_mov_b32 v{VF+3}, s{TAG}')
    e(f's_cmp_lg_u32 s{WAVE}, 0')
    e('s_cbranch_scc1 L_go')
    if o.nopoll: e('s_branch L_go')
    e('L_poll:')
    for i in range(3):
        e(f'buffer_load_dword v{VF+4+i}, v{VF+i}, {sr(S_WS)}, 0 offen sc1')
    e(f's_add_u32 s{NPOLL}, s{NPOLL}, 1')
    e('s_waitcnt vmcnt(1)')
    e(f'v_xor_b32 v{VF+4}, v{VF+4}, v{VF+3}')
    e(f'v_xor_b32 v{VF+5}, v{VF+5}, v{VF+3}')
    e('s_waitcnt vmcnt(0)')
    e(f'v_xor_b32 v{VF+6}, v{VF+6}, v{VF+3}')
    e(f'v_or3_b32 v{VF+4}, v{VF+4}, v{VF+5}, v{VF+6}')
    e(f'v_cmp_ne_u32 vcc, 0, v{VF+4}')
    e('s_nop 4')
    e('s_cbranch_vccz L_go')
    if o.sleep: e(f's_sleep {o.sleep}')
    e(f's_cmp_lt_u32 s{NPOLL}, {o.maxpoll}')
    e('s_cbranch_scc1 L_poll')
    e(f's_mov_b32 s{MODE}, 1')
    e(f's_mov_b32 s{HAS3}, 1')
    e(f's_lshr_b32 s{TW0}, s{NB}, 1')
    e(f's_add_u32 s{TW1}, s{NB}, 9')
    e(f's_lshr_b32 s{TW1}, s{TW1}, 1')
    e(f's_mov_b32 s{TW2}, 8')
    e(f's_mov_b32 s{PAIR}, 0')
    e(f's_mov_b32 s{SCRB}, {SCR}')
    e('s_branch L_prod')
    e('L_go:')
    stamp(3)
    e('s_barrier')
    stamp(4)
    e(f's_setprio {o.mprio}')
    e(f's_cmp_eq_u32 s{TYP}, 1')
    e('s_cbranch_scc1 L_typeB')

    ACC = {'P': 64, 'Q': 100}
    WR, XR, TMP = 136, 200, 224
    NXR = 6
    PF = o.pf
    wflags = ' sc1' if o.wsc1 else ''
    VBD, VB1, VB2 = o.vbd, 47, 58
    for typ, S in enumerate(streams()):
        if typ == 1: e('.p2align 6'); e('L_typeB:')
        issued = [0]
        vq = []
        def doextra(x):
            if x == 'W': wload()
            elif isinstance(x, tuple) and x[0] == 'X': e(xread(x[1]))
            elif isinstance(x, tuple) and x[0] == 'S': e(x[1]); vq.append(-1)
            else: e(x)
        def wload():
            g = issued[0]
            if g >= NSTEP: return
            e(f'buffer_load_dwordx4 {vr(WR+4*(g%16),4)}, v{VWL}, {sr(S_WS)}, s{WSO} offen offset:{1024*(g%4)}{wflags}')
            if g % 4 == 3: e(f's_add_u32 s{WSO}, s{WSO}, 4096')
            issued[0] += 1
            vq.append(g)
        def keys(v):
            ks = []
            for j in range(8, -1, -1):
                g = v - j
                if 0 <= g < NSTEP:
                    pid, arr, ch, c, acc = S[g]
                    k = (pid, arr, ch, c + j)
                    if k not in ks: ks.append(k)
            return ks
        xreg = {}
        xn = [0]
        def xread(k):
            pid, arr, ch, s = k
            r = XR + 4 * (xn[0] % NXR); xn[0] += 1
            xreg[k] = r
            if ch == 'rem':
                return f'ds_read_b128 {vr(r,4)}, v{VXOR if arr == "O" else VXDR} offset:{288*s}'
            return f'ds_read_b128 {vr(r,4)}, v{VXO if arr == "O" else VXD} offset:{64*ch+288*s}'
        for _ in range(PF): wload()
        for k in keys(0): e(xread(k))
        NV = NSTEP + 8
        firstD = min(g for g in range(NSTEP) if S[g][1] == 'D')
        assert VBD <= firstD - 1
        fill = []
        def epi(j):
            q = ACC['Q'] + 4 * j
            t = TMP + 8 * (j & 1)
            I = []
            I.append(f'v_pk_mul_f32 {vr(t,2)}, {vr(q,2)}, s[{C2L}:{C2L+1}]')
            I.append(f'v_pk_mul_f32 {vr(t+2,2)}, {vr(q+2,2)}, s[{CNL}:{CNL+1}]')
            I.append(f'v_min_f32 v{t}, s{C60}, v{t}')
            I.append(f'v_min_f32 v{t+1}, s{C60}, v{t+1}')
            for i in (2, 3, 0, 1): I.append(f'v_exp_f32 v{t+i}, v{t+i}')
            I.append('s_nop 0')
            I.append(f'v_pk_add_f32 {vr(t+4,2)}, {vr(t,2)}, 1.0 op_sel_hi:[1,0]')
            I.append(f'v_pk_add_f32 {vr(t+6,2)}, {vr(t,2)}, -1.0 op_sel_hi:[1,0]')
            I.append(f'v_pk_fma_f32 {vr(t+4,2)}, {vr(t+4,2)}, {vr(t+2,2)}, {vr(t+4,2)}')
            I.append(f'v_rcp_f32 v{t+4}, v{t+4}')
            I.append(f'v_rcp_f32 v{t+5}, v{t+5}')
            I.append('s_nop 0')
            I.append(f'v_pk_mul_f32 {vr(t+6,2)}, {vr(t+6,2)}, {vr(t+4,2)}')
            I.append(f'v_cvt_pk_bf16_f32 v{ACC["P"]+j}, v{t+6}, v{t+7}')
            I.append(f'buffer_store_dword v{ACC["P"]+j}, v{VOUT + j//3}, {sr(S_OUT)}, 0 offen offset:{1152*(j%3)} {o.oflags}')
            return I
        since = {}
        for v in range(NV):
            js = [j for j in range(8, -1, -1) if 0 <= v - j < NSTEP]
            nxt = keys(v + 1) if v + 1 < NV else []
            extra = []
            if issued[0] < NSTEP and issued[0] <= v + PF: extra.append('W')
            extra += [('X', k) for k in nxt]
            if VB1 < v <= VB1 + 9: extra.append(f'ds_write_b128 v{VEX}, {vr(ACC["P"]+4*(v-VB1-1),4)} offset:{1024*(v-VB1-1)}')
            jr = v - (VB2 + 1)
            if 0 <= jr < 9: extra.append(f'ds_read_b128 {vr(TMP+4*(jr&1),4)}, v{VEXP} offset:{1024*jr}')
            ja = v - (VB2 + 2)
            if typ == 0 and v == 72: extra.append(('S', f'buffer_store_dword v{VCL+1}, v{VCL}, {sr(S_DBG)}, 0 offen sc1'))
            if typ == 0 and v == 92: extra.append(('S', f'buffer_store_dword v{VF+3}, v{VCL+1}, {sr(S_WS)}, 0 offen sc1'))
            e('s_waitcnt lgkmcnt(0)')
            if o.diag == 2 and v in o.marks:
                kk = o.marks.index(v)
                e(f's_memtime s[{ST0+2*kk}:{ST0+2*kk+1}]')
            if o.diag in (1, 4) and v == VBD: stamp(5)
            if v in (VBD, VB1, VB2): e('s_barrier')
            if o.diag in (1, 4) and v == VBD: stamp(6)
            for n, j in enumerate(js):
                g = v - j
                pid, arr, ch, c, acc = S[g]
                k = (pid, arr, ch, c + j)
                if 0 <= ja < 9 and ((j == ja + 2 and ja <= 6) or (ja >= 7 and j == ja - 7)):
                    q = ACC['Q'] + 4 * ja; t = TMP + 4 * (ja & 1)
                    if o.nopk:
                        for i in range(4): e(f'v_add_f32 v{q+i}, v{q+i}, v{t+i}')
                    else:
                        e(f'v_pk_add_f32 {vr(q,2)}, {vr(q,2)}, {vr(t,2)}')
                        e(f'v_pk_add_f32 {vr(q+2,2)}, {vr(q+2,2)}, {vr(t+2,2)}')
                if j == 0:
                    e(f's_waitcnt vmcnt({len(vq)-1-vq.index(g)})')
                d = ACC[acc] + 4 * j
                if g == 0: cs = '0'
                elif acc == 'Q' and S[g-1][4] == 'P': cs = vr(ACC['P'] + 4 * j, 4)
                else: cs = vr(d, 4)
                e(f'v_mfma_f32_16x16x32_bf16 {vr(d,4)}, {vr(WR+4*(g%16),4)}, {vr(xreg[k],4)}, {cs}')
                for jj in since: since[jj] += 1
                if g == NSTEP - 1: since[j] = 0
                if extra:
                    doextra(extra.pop(0))
                    for jj in since: since[jj] += 1
                for jj in sorted(since):
                    if 8 <= since[jj] < 10**6:
                        fill += epi(jj); since[jj] = 10**6
                nf = o.nfill
                while fill and nf > 0:
                    e(fill.pop(0)); nf -= 1
                    for jj in since: since[jj] += 1
            for x in extra: doextra(x)
        stamp(7)
        rem = [jj for jj in sorted(since) if since[jj] < 10**6]
        while fill:
            e(fill.pop(0))
            for jj in since: since[jj] += 1
        for jj in rem:
            if since[jj] < 8: e(f's_nop {8-since[jj]-1}')
            for x in epi(jj):
                e(x)
                for j2 in since: since[j2] += 1
        stamp(8)
        if o.diag == 1:
            e('s_waitcnt vmcnt(0)')
            stamp(9)
            dump(10)
        if o.padto:
            e(f'L_pad{typ}:')
            e('s_memrealtime s[98:99]')
            e('s_waitcnt lgkmcnt(0)')
            e('s_sub_u32 s98, s98, s96')
            e(f's_cmp_lt_u32 s98, {o.padto}')
            e(f's_cbranch_scc1 L_pad{typ}')
        if o.diag == 4:
            e('s_waitcnt vmcnt(0)')
            stamp(9)
            e('s_waitcnt lgkmcnt(0)')
            srd(e, S_DBG, 10, 256)
            e('v_mov_b32 v250, 0')
            e(f's_not_b32 s46, s{ST0}')
            e('v_writelane_b32 v250, s46, 1')
            for k in range(10): e(f'v_writelane_b32 v250, s{ST0+2*k}, {k+2}')
            e(f's_not_b32 s46, s{ST0+8}')
            e('v_writelane_b32 v250, s46, 12')
            e(f's_not_b32 s46, s{ST0+18}')
            e('v_writelane_b32 v250, s46, 13')
            e(f'v_writelane_b32 v250, s{NPOLL}, 14')
            e('v_lshlrev_b32 v251, 2, v1')
            e(f's_cmp_lg_u32 s{WAVE}, 0')
            e(f's_cbranch_scc1 L_d4_{typ}')
            e('s_mov_b64 exec, 0x7ffe')
            e(f'buffer_atomic_umax v250, v251, {sr(S_DBG)}, 0 offen sc1')
            e(f'L_d4_{typ}:')
        if o.diag == 2:
            kk = len(o.marks)
            e(f's_memtime s[{ST0+2*kk}:{ST0+2*kk+1}]')
            dump(10)
        e('s_endpgm')

    e('.p2align 6')
    e('L_helper:')
    e(f's_setprio {o.hprio}')
    e(f's_sub_u32 s{TW0}, s{WAVE}, 4')
    e(f's_mov_b32 s{TW1}, s{WAVE}')
    e(f's_mov_b32 s{TW2}, 8')
    e(f's_mov_b32 s{PAIR}, s2')
    e(f's_mov_b32 s{MODE}, 0')
    e(f's_mov_b32 s{HAS3}, s{TW0}')
    e(f's_lshl_b32 s{SCRB}, s{TW0}, 12')
    e(f's_add_u32 s{SCRB}, s{SCRB}, {SCR}')
    e('L_prod:')
    T = [(64, TW0, 2, 3, 0), (96, TW1, 4, 5, 2048), (128, TW2, 6, 7, 16384)]
    c, kp, q, cc, kk, t = 46, 47, 48, 49, 50, 51
    b = TS
    e('v_mov_b32 v19, 4320')
    e('v_and_b32 v23, 3, v1')
    e('v_lshrrev_b32 v24, 3, v1')
    e('v_mul_u32_u24 v24, 576, v24')
    e('v_bfe_u32 v25, v1, 2, 1')
    e('v_mul_u32_u24 v25, 288, v25')
    e('v_add_u32 v24, v24, v25')
    for (vb, sw, vl, vs, so) in T:
        e(f'v_lshl_add_u32 v8, s{sw}, 2, v23')
        e('v_cmp_le_u32 vcc, 18, v8')
        e(f'v_lshl_add_u32 v{vl}, v8, 4, v24')
        e(f'v_add_u32 v9, v{vl}, v19')
        e(f'v_cndmask_b32 v{vl}, v{vl}, v9, vcc')
    e(f's_and_b32 s{c}, s{PAIR}, 15')
    e(f's_lshr_b32 s{kp}, s{PAIR}, 4')
    e(f's_mul_i32 s{b}, s{c}, 165888')
    e(f's_mul_i32 s{t}, s{kp}, 9216')
    e(f's_add_u32 s{b}, s{b}, s{t}')
    e(f's_add_u32 s{b+1}, s{b}, 82944')
    e(f's_mov_b32 s{S_W+2}, 2571264')
    e(f's_mov_b32 s{S_W+3}, 0x20000')
    e(f's_mov_b32 s{S_WO+3}, 0x20000')
    e(f's_cmp_lg_u32 s{c}, 15')
    e(f's_cselect_b32 s{S_WO+2}, 2571264, 0')
    e(f's_mov_b32 m0, s{SCRB}')
    e('s_waitcnt lgkmcnt(0)')
    e(f's_mov_b32 s{S_W}, s6')
    e(f's_and_b32 s{S_W+1}, s7, 0xffff')
    e(f's_mov_b32 s{S_WO}, s6')
    e(f's_and_b32 s{S_WO+1}, s7, 0xffff')
    e(f's_cmp_ge_u32 s{PAIR}, {NPROD}')
    e('s_cbranch_scc1 L_noprod')
    def cond3(lbl):
        e(f's_cmp_lg_u32 s{HAS3}, 0')
        e(f's_cbranch_scc1 {lbl}')
    for ti, (vb, sw, vl, vs, so) in enumerate(T):
        if ti == 2: cond3('L_a3')
        if ti:
            e(f's_add_u32 m0, s{SCRB}, {so}')
            e('s_nop 0')
        e(f'buffer_load_dwordx4 v{vl}, {sr(S_W)}, s{b} offen lds')
        e(f's_add_u32 m0, s{SCRB}, {so+1024}')
        e('s_nop 0')
        e(f'buffer_load_dwordx4 v{vl}, {sr(S_WO)}, s{b+1} offen lds')
    e('L_a3:')
    stamp(1)
    e(f's_cmp_lg_u32 s{WAVE}, 4')
    e('s_cbranch_scc1 L_a4')
    e(f's_load_dword s{TAG}, s[12:13], {NONCE}')
    e(f'v_mov_b32 v10, {CNT}')
    e('v_mov_b32 v11, 0')
    e('ds_write_b32 v10, v11')
    e('L_a4:')
    srd(e, S_WS, 12, WS_REC)
    srd(e, S_DBG, 10, 256)
    e(f'v_mov_b32 v20, {(256 - 18*2*NSTEP*1024) & 0xffffffff}')
    e(f'v_mov_b32 v26, {2*NSTEP*1024}')
    e('v_bfe_u32 v21, v1, 2, 2')
    e('v_lshlrev_b32 v21, 7, v21')
    e('v_and_b32 v22, 1, v1')
    e('v_lshl_add_u32 v21, v22, 6, v21')
    e('v_bfe_u32 v22, v1, 1, 1')
    e('v_lshl_add_u32 v21, v22, 3, v21')
    e('v_lshrrev_b32 v22, 4, v1')
    e('v_lshl_add_u32 v21, v22, 4, v21')
    e(f'v_add_u32 v21, s{SCRB}, v21')
    e('v_and_b32 v25, 15, v1')
    e('v_lshlrev_b32 v25, 4, v25')
    for (vb, sw, vl, vs, so) in T:
        e(f'v_lshl_add_u32 v8, s{sw}, 2, v22')
        e('v_cmp_le_u32 vcc, 18, v8')
        e(f'v_mad_u32_u24 v{vs}, v8, v26, v25')
        e(f'v_add_u32 v9, v{vs}, v20')
        e(f'v_cndmask_b32 v{vs}, v{vs}, v9, vcc')
    e(f's_lshr_b32 s{q}, s{kp}, 1')
    e(f's_and_b32 s{cc}, s{c}, 7')
    e(f's_lshr_b32 s{kk}, s{c}, 3')
    e(f's_and_b32 s{t}, s{kp}, 1')
    e(f's_cmp_eq_u32 s{kp}, 8')
    e(f's_cselect_b32 s{cc}, s{cc}, s{c}')
    e(f's_cselect_b32 s{kk}, s{kk}, s{t}')
    e(f's_lshl_b32 s{kk}, s{kk}, 9')
    e(f's_add_u32 s{kk}, s{kk}, {WOFF}')
    e(f's_lshl_b32 s{t}, s{q}, 4')
    e(f's_add_u32 s{b+2}, s{t}, s{cc}')
    e(f's_sub_u32 s{b+3}, s{b+2}, s{q}')
    e(f's_cmp_ge_u32 s{q}, 2')
    e(f's_cselect_b32 s{b+4}, 74, 0')
    e(f's_add_u32 s{b+4}, s{b+4}, s{b+2}')
    e(f's_cmp_lt_u32 s{cc}, 2')
    e(f's_cselect_b32 s{t}, 32, 136')
    e(f's_add_u32 s{t}, s{t}, s{cc}')
    e(f's_cmp_eq_u32 s{kp}, 8')
    e(f's_cselect_b32 s{b+4}, s{t}, s{b+4}')
    e(f's_add_u32 s{b+2}, s{b+2}, 34')
    e(f's_add_u32 s{b+3}, s{b+3}, 144')
    for k in (2, 3, 4):
        e(f's_lshl_b32 s{b+k}, s{b+k}, 10')
        e(f's_add_u32 s{b+k}, s{b+k}, s{kk}')
    e(f's_cmp_eq_u32 s{kp}, 8')
    e(f's_cselect_b32 s{t}, 1, 2')
    e(f's_cmp_eq_u32 s{c}, 15')
    e(f's_cselect_b32 s{b+5}, s{t}, 0')
    e('s_waitcnt vmcnt(0) lgkmcnt(0)')
    stamp(2)
    e('v_mov_b32 v27, 0')
    e(f's_cmp_lg_u32 s{WAVE}, 4')
    e('s_cbranch_scc1 L_a5')
    e('v_mov_b32 v12, 4')
    e('s_mov_b64 exec, 1')
    e(f'buffer_load_dword v27, v12, {sr(S_DBG)}, 0 offen sc1')
    e('s_mov_b64 exec, -1')
    e('L_a5:')
    def trreads(vb, so):
        for tap in range(2):
            for half in range(2):
                e(f'ds_read_b64_tr_b16 {vr(vb+4*tap+2*half,2)}, v21 offset:{so+1024*tap+512*half}')
    def st01(vb, vs, n0, n1, tag):
        e(f's_waitcnt lgkmcnt({n0})')
        e(f'buffer_store_dwordx4 {vr(vb,4)}, v{vs}, {sr(S_WS)}, s{b+2} offen sc1')
        e(f's_waitcnt lgkmcnt({n1})')
        e(f's_cmp_eq_u32 s{b+5}, 2')
        e(f's_cbranch_scc1 L_skip{tag}')
        e(f'buffer_store_dwordx4 {vr(vb+4,4)}, v{vs}, {sr(S_WS)}, s{b+3} offen sc1')
        e(f'L_skip{tag}:')
    def stsum(vb, vs):
        for i in range(8):
            e(f'v_lshlrev_b32 v{vb+8+2*i}, 16, v{vb+i}')
            e(f'v_and_b32 v{vb+9+2*i}, s{MASK}, v{vb+i}')
        for i in range(4):
            e(f'v_pk_add_f32 {vr(vb+8+2*i,2)}, {vr(vb+8+2*i,2)}, {vr(vb+16+2*i,2)}')
        for i in range(4):
            e(f'v_cvt_pk_bf16_f32 v{vb+24+i}, v{vb+8+2*i}, v{vb+9+2*i}')
        e(f'buffer_store_dwordx4 {vr(vb+24,4)}, v{vs}, {sr(S_WS)}, s{b+4} offen sc1')
    for tt in T: trreads(tt[0], tt[4])
    st01(T[0][0], T[0][3], 10, 8, 0)
    st01(T[1][0], T[1][3], 6, 4, 1)
    stsum(T[0][0], T[0][3])
    stsum(T[1][0], T[1][3])
    cond3('L_b3')
    st01(T[2][0], T[2][3], 2, 0, 2)
    stsum(T[2][0], T[2][3])
    e('L_b3:')
    e(f's_cmp_eq_u32 s{MODE}, 0')
    e('s_cbranch_scc1 L_b4')
    e('s_waitcnt vmcnt(0) lgkmcnt(0)')
    e(f's_add_u32 s{PAIR}, s{PAIR}, 1')
    e(f's_cmp_lt_u32 s{PAIR}, {NPROD}')
    e('s_cbranch_scc1 L_prod')
    e('s_branch L_go')
    e('L_noprod:')
    srd(e, S_WS, 12, WS_REC)
    stamp(1); stamp(2)
    e('L_b4:')
    e('s_barrier')
    stamp(3)
    decode()
    e('v_subrev_u32 v4, 256, v0')
    e('v_min_u32 v4, 251, v4')
    e('v_mul_u32_u24 v3, 3641, v4')
    e('v_lshrrev_b32 v3, 16, v3')
    e('v_mul_u32_u24 v2, 18, v3')
    e('v_sub_u32 v2, v4, v2')
    e(f'v_mul_u32_u24 v3, {R}, v3')
    e(f'v_min_u32 v3, {160-R}, v3')
    e('v_mul_u32_u24 v4, 1152, v3')
    e('v_lshl_add_u32 v4, v2, 4, v4')
    e(f'v_add_u32 v12, s{XB}, v4')
    e('v_mul_u32_u24 v18, 288, v3')
    e('v_lshl_add_u32 v18, v2, 4, v18')
    e(f'v_add_u32 v19, {X_D1}, v18')
    srd(e, S_X, 4, 1152000, add=BOFF)
    e(f's_cmp_ge_u32 s2, {NPROD}')
    e('s_cbranch_scc1 L_noflag')
    e(f'v_mov_b32 v10, {CNT}')
    e(f's_mul_i32 s46, s2, {o.fstride}')
    e('v_mov_b32 v16, s46')
    e('s_mov_b64 exec, 1')
    e(f's_cmp_lg_u32 s{WAVE}, 4')
    e('s_cbranch_scc1 L_nottag')
    e(f's_add_u32 s46, s{TAG}, {TAGINC}')
    e('v_mov_b32 v15, s46')
    e('ds_write_b32 v10, v15 offset:4')
    e('L_nottag:')
    e('s_waitcnt vmcnt(0)')
    stamp(4)
    e('v_cmp_ne_u32 vcc, 0, v27')
    e('v_mov_b32 v13, 1')
    e('v_mov_b32 v14, 0x101')
    e('v_cndmask_b32 v13, v13, v14, vcc')
    e('ds_add_rtn_u32 v14, v10, v13')
    e('ds_read_b32 v15, v10 offset:4')
    e('s_waitcnt lgkmcnt(0)')
    e('v_add_u32 v14, v14, v13')
    e('v_cmp_eq_u32 vcc, 4, v14')
    e('s_and_b64 exec, exec, vcc')
    e('s_cbranch_execz L_notlast')
    e(f'buffer_store_dword v15, v16, {sr(S_WS)}, 0 offen sc1')
    e('L_notlast:')
    e('s_mov_b64 exec, -1')
    e('L_noflag:')
    e(f's_setprio {o.hprio2}')
    RAW, ORAW = 64, 120
    EU = [184, 192]
    OU, DT, DO = 200, 208, 216
    xi = [0]
    NL = R + 1
    def eload():
        k = xi[0]
        if k >= NL: return
        a_ = 12
        if k:
            a_ = 13 + (k & 3)
            e(f'v_add_u32 v{a_}, {1152*k}, v12')
        e(f'buffer_load_dwordx4 {vr(RAW+4*k,4)}, v{a_}, {sr(S_X)}, 0 offen')
        xi[0] += 1
    for _ in range(o.epre): eload()
    e('s_waitcnt lgkmcnt(0)')
    stamp(5)
    e('s_barrier')
    stamp(6)
    for _ in range(max(0, o.ein - o.epre)): eload()
    for j in range(R):
        e(f'ds_read_b128 {vr(ORAW+4*j,4)}, v18 offset:{X_O+288*j}')
    def unpack(dst, s_):
        for i in range(4):
            e(f'v_lshlrev_b32 v{dst+2*i}, 16, v{s_+i}')
            e(f'v_and_b32 v{dst+2*i+1}, s{MASK}, v{s_+i}')
    def unpackE(dst, k):
        e(f's_waitcnt vmcnt({xi[0]-1-k})')
        unpack(dst, RAW + 4 * k)
        eload()
    def diff(eu, out):
        if o.nopk:
            for i in range(8): e(f'v_sub_f32 v{DT+i}, v{eu+i}, v{OU+i}')
        else:
          for i in range(4):
            e(f'v_pk_add_f32 {vr(DT+2*i,2)}, {vr(eu+2*i,2)}, {vr(OU+2*i,2)} neg_lo:[0,1] neg_hi:[0,1]')
        for i in range(4):
            e(f'v_cvt_pk_bf16_f32 v{out+i}, v{DT+2*i}, v{DT+2*i+1}')
    unpackE(EU[0], 0)
    e('s_waitcnt lgkmcnt(0)')
    for j in range(R):
        o0 = DO + 8 * (j & 1)
        unpack(OU, ORAW + 4 * j)
        diff(EU[j & 1], o0)
        e(f'ds_write_b128 v18, {vr(o0,4)} offset:{X_D0+288*j}')
        unpackE(EU[(j + 1) & 1], j + 1)
        diff(EU[(j + 1) & 1], o0 + 4)
        e(f'ds_write_b128 v19, {vr(o0+4,4)} offset:{288*j}')
    e('s_waitcnt lgkmcnt(0)')
    stamp(7)
    e('s_barrier')
    if o.diag == 1:
        stamp(8); stamp(9)
        dump(10)
    e('L_end:')
    e('s_endpgm')
    e('.section .rodata,"a"')
    e('.p2align 6')
    e(f'.amdhsa_kernel {KN}')
    for x in ['next_free_vgpr 256', 'next_free_sgpr 102', 'accum_offset 256', 'group_segment_fixed_size 0', 'kernarg_size 40',
              'user_sgpr_count 2', 'user_sgpr_kernarg_segment_ptr 1', 'system_sgpr_workgroup_id_x 1']:
        e('  .amdhsa_' + x)
    e('.end_amdhsa_kernel')
    n = check(e.L)
    if n: print(f'{n} hazards', file=sys.stderr)
    return f'; @launch grid=({NWG},1,1) block=(512,1,1) lds={LDS_BYTES}\n' + e.text()

def opts(argv=None):
    ap = argparse.ArgumentParser()
    ap.add_argument('-o', default='k.s')
    for nm, d in [('diag', 0), ('pf', 7), ('wsc1', 0), ('nfill', 2), ('fstride', 128), ('sleep', 0), ('maxpoll', 3000), ('nopoll', 0),
                  ('hprio', 3), ('hprio2', 0), ('mprio', 2), ('epre', 13), ('ein', 4), ('vbd', 33), ('nopk', 1), ('padto', 0)]:
        ap.add_argument('--' + nm, type=int, default=d)
    ap.add_argument('--oflags', default='')
    ap.add_argument('--marks', default='0,4,8,12,16,24,33,47,58')
    o = ap.parse_args(argv)
    o.marks = [int(x) for x in o.marks.split(',')]
    return o

if __name__ == '__main__':
    o = opts()
    open(o.o, 'w').write(gen(o))
```

```python
import re, sys, argparse
from haz import check

KN = 'standalone__autoregressive_conv_wavernn__speech_kernel'
NWG = 252
NPROD = 144
ARR = 160 * 288
X_D0, X_O, X_D1 = 0, ARR, 2 * ARR
CNT = 3 * ARR
SCR = CNT + 64
LDS_BYTES = SCR + 18432
NSTEP = 106
WOFF = 0x100000
NONCE = 0x10000
DIAG = 0x800000
WS_REC = 0x1000000
TAGINC = 0x9E3779B9
R = 12

class Em:
    def __init__(self): self.L = []
    def __call__(self, s): self.L.append(s)
    def text(self): return '\n'.join(self.L) + '\n'

def vr(a, n=1): return f'v{a}' if n == 1 else f'v[{a}:{a+n-1}]'
def sr(a, n=4): return f's[{a}:{a+n-1}]'

def streams():
    out = []
    for typ in (0, 1):
        S = []
        pid = [0]
        def add(arr, chunk, cs, acc):
            for c in cs: S.append((pid[0], arr, chunk, c, acc))
            pid[0] += 1
        if typ == 0:
            add('O', 0, range(16), 'P'); add('O', 1, range(16), 'P'); add('O', 'rem', range(0, 2), 'P')
            for q in range(4): add('D', q, range(16), 'Q')
            add('D', 'rem', range(8), 'Q')
        else:
            add('O', 2, range(16), 'P'); add('O', 3, range(16), 'P'); add('O', 'rem', range(2, 8), 'P')
            for q in range(4): add('D', q, range(15), 'Q')
            add('D', 'rem', range(8), 'Q')
        assert len(S) == NSTEP
        out.append(S)
    return out

S_X, S_W, S_WO, S_WS, S_OUT, S_DBG = 20, 24, 28, 32, 36, 40
WAVE, NB, BAT, PAR, MB, BOFF = 14, 15, 16, 17, 18, 19
PAIR0 = 3
XB = 52
MASK = 53
TW0, TW1, TW2, PAIR, HAS3, MODE, SCRB, TAG, LAST, NPOLL = 44, 45, 54, 55, 56, 57, 58, 59, 60, 61
TS = 62
TYP, WSO = 68, 69
C2L, CNL, C60 = 90, 92, 94
ST0 = 70

def srd(e, d, ptr, rec, add=None):
    if add is None:
        e(f's_mov_b32 s{d}, s{ptr}')
        e(f's_and_b32 s{d+1}, s{ptr+1}, 0xffff')
    else:
        e(f's_add_u32 s{d}, s{ptr}, s{add}')
        e(f's_addc_u32 s{d+1}, s{ptr+1}, 0')
        e(f's_and_b32 s{d+1}, s{d+1}, 0xffff')
    e(f's_mov_b32 s{d+2}, {rec}')
    e(f's_mov_b32 s{d+3}, 0x20000')

def gen(o):
    e = Em()
    def stamp(k, lvl=1):
        if o.diag == lvl or (o.diag == 4 and lvl == 1): e(f's_memrealtime s[{ST0+2*k}:{ST0+2*k+1}]')
    def dump(nst):
        e('s_waitcnt lgkmcnt(0)')
        e('v_mov_b32 v250, 0')
        for k in range(nst): e(f'v_writelane_b32 v250, s{ST0+2*k}, {k}')
        e(f'v_writelane_b32 v250, s{NPOLL}, 13')
        e(f'v_writelane_b32 v250, s{PAIR0}, 14')
        e('s_getreg_b32 s46, hwreg(HW_REG_XCC_ID)')
        e('v_writelane_b32 v250, s46, 15')
        e(f's_lshl_b32 s46, s2, 3'); e(f's_add_u32 s46, s46, s{WAVE}'); e('s_lshl_b32 s46, s46, 6'); e(f's_add_u32 s46, s46, {DIAG}')
        e('v_lshl_add_u32 v251, v1, 2, s46')
        e('s_mov_b64 exec, 0xffff')
        e(f'buffer_store_dword v250, v251, {sr(S_WS)}, 0 offen')
        e('s_mov_b64 exec, -1')

    e('.amdgcn_target "amdgcn-amd-amdhsa--gfx950"')
    e('.text')
    e(f'.globl {KN}')
    e('.p2align 8')
    e(f'.type {KN},@function')
    e(f'{KN}:')
    e(f's_cmp_ge_u32 s2, {NWG}')
    e('s_cbranch_scc1 L_end')
    stamp(0)
    if o.padto: e('s_memrealtime s[96:97]')
    e('s_load_dwordx4 s[4:7], s[0:1], 0')
    e('s_load_dwordx4 s[8:11], s[0:1], 16')
    e('s_load_dwordx2 s[12:13], s[0:1], 32')
    e('v_lshrrev_b32 v2, 6, v0')
    e('v_and_b32 v1, 63, v0')
    e(f'v_readfirstlane_b32 s{WAVE}, v2')
    def decode():
        e('s_and_b32 s44, s2, 7')
        e('s_lshr_b32 s45, s2, 3')
        e('s_mul_i32 s46, s44, 31')
        e('s_min_u32 s44, s44, 4')
        e('s_add_u32 s46, s46, s44')
        e('s_add_u32 s46, s46, s45')
        e('s_mul_hi_u32 s47, s46, 68174085')
        e('s_mul_i32 s48, s47, 63')
        e('s_sub_u32 s48, s46, s48')
        e(f's_mul_hi_u32 s{NB}, s48, 613566757')
        e(f's_mul_i32 s49, s{NB}, 7')
        e('s_sub_u32 s49, s48, s49')
        e('s_mul_i32 s47, s47, 7')
        e('s_add_u32 s47, s47, s49')
        e(f's_and_b32 s{PAR}, s47, 1')
        e('s_lshr_b32 s47, s47, 1')
        e('s_cmp_ge_u32 s47, 7')
        e(f's_cselect_b32 s{BOFF}, 1152000, 0')
        e('s_cselect_b32 s48, 7, 0')
        e(f's_sub_u32 s{MB}, s47, s48')
        e(f's_mul_i32 s{XB}, s{MB}, 576')
        e(f's_add_u32 s{XB}, s{XB}, s{PAR}')
        e(f's_sub_u32 s{XB}, s{XB}, 60')
        e(f's_mul_i32 s{XB}, s{XB}, 288')
    e(f's_mov_b32 s{MASK}, 0xffff0000')
    e(f's_mov_b32 s{NPOLL}, 0')
    e(f's_mov_b32 s{PAIR0}, s2')
    e(f's_cmp_ge_u32 s{WAVE}, 4')
    e('s_cbranch_scc1 L_helper')
    decode()

    VXO, VXOR, VXD, VXDR, VWL, VEX, VEXP, VOUT = 30, 31, 32, 33, 34, 35, 36, 37
    VF = 40
    VA = 48
    VCL = 60
    e('v_mul_u32_u24 v3, 3641, v0')
    e('v_lshrrev_b32 v3, 16, v3')
    e('v_mul_u32_u24 v2, 18, v3')
    e('v_sub_u32 v2, v0, v2')
    e('v_mul_u32_u24 v3, 1152, v3')
    e('v_lshl_add_u32 v3, v2, 4, v3')
    e(f's_add_u32 s46, s{XB}, 576')
    e(f'v_add_u32 v{VA}, s46, v3')
    e('v_mov_b32 v5, 16192')
    e('v_mov_b32 v6, 17056')
    for k in range(1, 12):
        e('v_cmp_le_u32 vcc, 14, v2')
        e('v_add_u32 v3, 4, v2')
        e('v_subrev_u32 v4, 14, v2')
        e('v_cndmask_b32 v7, v5, v6, vcc')
        e('v_cndmask_b32 v2, v3, v4, vcc')
        e(f'v_add_u32 v{VA+k}, v{VA+k-1}, v7')
    e('v_and_b32 v2, 15, v1')
    e('v_lshrrev_b32 v3, 4, v1')
    e('v_subrev_u32 v5, 4, v2')
    e('v_add_u32 v6, 8, v2')
    e('v_cmp_gt_u32 vcc, 4, v2')
    e('v_cmp_le_u32 s[46:47], 12, v2')
    e(f's_and_b32 s{TYP}, s{WAVE}, 1')
    e(f's_lshr_b32 s48, s{WAVE}, 1')
    e('v_cndmask_b32 v5, v5, v6, vcc')
    e('v_cndmask_b32 v5, v5, v2, s[46:47]')
    e('v_mul_u32_u24 v5, 9, v5')
    e('v_mul_u32_u24 v4, 288, v5')
    e('v_lshl_add_u32 v6, v3, 4, v4')
    e('v_and_b32 v7, 1, v3')
    e('v_lshl_add_u32 v7, v7, 4, v4')
    e('v_lshrrev_b32 v8, 1, v3')
    e('v_mul_u32_u24 v8, 2304, v8')
    e('v_add_u32 v7, v7, v8')
    e('v_add_u32 v7, 256, v7')
    e(f's_mul_i32 s49, s{TYP}, {X_D1}')
    e(f'v_add_u32 v{VXO}, {X_O}, v6')
    e(f'v_add_u32 v{VXOR}, {X_O}, v7')
    e(f'v_add_u32 v{VXD}, s49, v6')
    e(f'v_add_u32 v{VXDR}, s49, v7')
    e('v_lshlrev_b32 v6, 4, v1')
    e(f's_mul_i32 s49, s{WAVE}, 9216')
    e(f's_add_u32 s49, s49, {X_O}')
    e(f'v_add_u32 v{VEX}, s49, v6')
    e(f's_xor_b32 s49, s{WAVE}, 1')
    e('s_mul_i32 s49, s49, 9216')
    e(f's_add_u32 s49, s49, {X_O}')
    e(f'v_add_u32 v{VEXP}, s49, v6')
    e('v_and_b32 v8, 0x39, v1')
    e('v_bfe_u32 v9, v1, 1, 1')
    e('v_lshl_add_u32 v8, v9, 2, v8')
    e('v_bfe_u32 v9, v1, 2, 1')
    e('v_lshl_add_u32 v8, v9, 1, v8')
    e(f'v_lshlrev_b32 v{VWL}, 4, v8')
    e(f's_mul_i32 s49, s{TYP}, 576')
    e(f's_add_u32 s49, s49, s{XB}')
    e(f's_add_u32 s49, s49, {60*288}')
    e(f's_lshl_b32 s50, s{NB}, 5')
    e('s_add_u32 s49, s49, s50')
    e('s_lshl_b32 s50, s48, 4')
    e('s_add_u32 s49, s49, s50')
    e('v_mul_u32_u24 v8, 1152, v5')
    e('v_lshl_add_u32 v8, v3, 2, v8')
    e(f'v_add_u32 v{VOUT}, s49, v8')
    e(f'v_add_u32 v{VOUT+1}, 3456, v{VOUT}')
    e(f'v_add_u32 v{VOUT+2}, 6912, v{VOUT}')
    e(f's_lshl_b32 s49, s{NB}, 1')
    e('s_add_u32 s49, s49, s48')
    e('s_lshl_b32 s49, s49, 1')
    e(f's_add_u32 s49, s49, s{TYP}')
    e(f's_mul_i32 s{WSO}, s49, {NSTEP*1024}')
    e(f's_add_u32 s{WSO}, s{WSO}, {WOFF}')
    e(f's_mov_b32 s{C2L}, 0x4038aa3b'); e(f's_mov_b32 s{C2L+1}, 0x4038aa3b')
    e(f's_mov_b32 s{CNL}, 0xbfb8aa3b'); e(f's_mov_b32 s{CNL+1}, 0xbfb8aa3b')
    e(f's_mov_b32 s{C60}, 0x42700000')
    e(f'v_min_u32 v{VF}, 35, v1')
    e(f's_mul_i32 s46, s{WAVE}, 36')
    e(f'v_add_u32 v{VF}, s46, v{VF}')
    e(f'v_mul_u32_u24 v{VF}, {o.fstride}, v{VF}')
    e(f's_lshl_b32 s50, s{WAVE}, 10')
    e(f's_add_u32 s50, s50, {X_O}')
    e(f's_add_u32 s51, s50, {4096*11}')
    e('s_movk_i32 s49, 4096')
    if o.orev:
        e(f's_bitcmp0_b32 s{NB}, 0')
        e('s_cbranch_scc1 L_fwd')
        for k in range(5): e(f'v_swap_b32 v{VA+k}, v{VA+10-k}')
        e(f's_add_u32 s50, s50, {4096*10}')
        e('s_movk_i32 s49, -4096')
        e('L_fwd:')
    e(f's_or_b32 s46, s2, s{WAVE}')
    e('v_or_b32 v2, s46, v1')
    e('v_cmp_eq_u32 vcc, 0, v2')
    e(f'v_mov_b32 v{VCL}, -16')
    e(f'v_mov_b32 v{VCL+1}, -16')
    e(f'v_mov_b32 v3, {NONCE}')
    e(f'v_cndmask_b32 v{VCL}, v{VCL}, 4, vcc')
    e(f'v_cndmask_b32 v{VCL+1}, v{VCL+1}, v3, vcc')
    e('s_waitcnt lgkmcnt(0)')
    e(f's_load_dword s{TAG}, s[12:13], {NONCE}')
    srd(e, S_X, 4, 1152000, add=BOFF)
    srd(e, S_WS, 12, WS_REC)
    srd(e, S_OUT, 8, 1152000, add=BOFF)
    srd(e, S_DBG, 10, 256)
    def odma(k):
        e(f's_mov_b32 m0, s{51 if k == 11 else 50}')
        e('s_add_u32 s50, s50, s49')
        e(f'buffer_load_dwordx4 v{VA+k}, {sr(S_X)}, 0 offen lds')
    if o.b0late: e('s_barrier')
    if o.npdelay:
        e(f's_cmp_lt_u32 s2, {NPROD}')
        e('s_cbranch_scc1 L_nd')
        e('s_waitcnt lgkmcnt(0)')
        e('L_nd:')
    for k in range(o.opre): odma(k)
    e('s_barrier')
    stamp(1)
    for k in range(o.opre, 12):
        if k == 11:
            e(f's_cmp_lg_u32 s{WAVE}, 0')
            e('s_cbranch_scc1 L_o11')
        odma(k)
    e('L_o11:')
    e(f'v_mov_b32 v{VF+1}, {CNT}')
    e(f'v_mov_b32 v{VF+2}, 1')
    e('s_waitcnt vmcnt(0) lgkmcnt(0)')
    stamp(2)
    if o.dec:
        e('s_mov_b64 exec, 1')
        e(f'ds_add_u32 v{VF+1}, v{VF+2} offset:8')
        e('s_mov_b64 exec, -1')
    e(f's_add_u32 s{TAG}, s{TAG}, {TAGINC}')
    e(f'v_mov_b32 v{VF+3}, s{TAG}')
    if o.nopoll: e('s_branch L_go')
    e('L_poll:')
    e(f'buffer_load_dword v{VF+4}, v{VF}, {sr(S_WS)}, 0 offen sc1')
    e(f's_add_u32 s{NPOLL}, s{NPOLL}, 1')
    e('s_waitcnt vmcnt(0)')
    e(f'v_cmp_ne_u32 vcc, v{VF+3}, v{VF+4}')
    e('s_nop 4')
    e('s_cbranch_vccz L_go')
    if o.sleep: e(f's_sleep {o.sleep}')
    e(f's_cmp_lt_u32 s{NPOLL}, {o.maxpoll}')
    e('s_cbranch_scc1 L_poll')
    e(f's_mov_b32 s{MODE}, 1')
    e(f's_mov_b32 s{HAS3}, 1')
    e(f's_lshr_b32 s{TW0}, s{NB}, 1')
    e(f's_add_u32 s{TW1}, s{NB}, 9')
    e(f's_lshr_b32 s{TW1}, s{TW1}, 1')
    e(f's_mov_b32 s{TW2}, 8')
    e(f's_mov_b32 s{PAIR}, 0')
    e(f's_lshl_b32 s{SCRB}, s{WAVE}, 12')
    e(f's_add_u32 s{SCRB}, s{SCRB}, {SCR}')
    e('s_branch L_prod')
    e('L_go:')
    stamp(3)
    if o.dec:
        e('s_mov_b64 exec, 1')
        e(f'ds_add_u32 v{VF+1}, v{VF+2} offset:12')
        e('L_gw:')
        e(f'ds_read_b32 v{VF+4}, v{VF+1} offset:12')
        e('s_waitcnt lgkmcnt(0)')
        e(f'v_cmp_ne_u32 vcc, 4, v{VF+4}')
        e('s_nop 4')
        e('s_cbranch_vccnz L_gw')
        e('s_mov_b64 exec, -1')
    else:
        e('s_barrier')
    stamp(4)
    e(f's_setprio {o.mprio}')
    e(f's_cmp_eq_u32 s{TYP}, 1')
    e('s_cbranch_scc1 L_typeB')

    ACC = {'P': 64, 'Q': 100}
    WR, XR, TMP = 136, 200, 224
    NXR = 6
    PF = o.pf
    wflags = ' sc1' if o.wsc1 else ''
    VBD, VB1, VB2 = o.vbd, 47, 58
    for typ, S in enumerate(streams()):
        if typ == 1: e('.p2align 6'); e('L_typeB:')
        issued = [0]
        vq = []
        def doextra(x):
            if x == 'W': wload()
            elif isinstance(x, tuple) and x[0] == 'X': e(xread(x[1]))
            elif isinstance(x, tuple) and x[0] == 'S': e(x[1]); vq.append(-1)
            else: e(x)
        def wload():
            g = issued[0]
            if g >= NSTEP: return
            e(f'buffer_load_dwordx4 {vr(WR+4*(g%16),4)}, v{VWL}, {sr(S_WS)}, s{WSO} offen offset:{1024*(g%4)}{wflags}')
            if g % 4 == 3: e(f's_add_u32 s{WSO}, s{WSO}, 4096')
            issued[0] += 1
            vq.append(g)
        def keys(v):
            ks = []
            for j in range(8, -1, -1):
                g = v - j
                if 0 <= g < NSTEP:
                    pid, arr, ch, c, acc = S[g]
                    k = (pid, arr, ch, c + j)
                    if k not in ks: ks.append(k)
            return ks
        xreg = {}
        xn = [0]
        def xread(k):
            pid, arr, ch, s = k
            r = XR + 4 * (xn[0] % NXR); xn[0] += 1
            xreg[k] = r
            if ch == 'rem':
                return f'ds_read_b128 {vr(r,4)}, v{VXOR if arr == "O" else VXDR} offset:{288*s}'
            return f'ds_read_b128 {vr(r,4)}, v{VXO if arr == "O" else VXD} offset:{64*ch+288*s}'
        for _ in range(PF): wload()
        for k in keys(0): e(xread(k))
        NV = NSTEP + 8
        firstD = min(g for g in range(NSTEP) if S[g][1] == 'D')
        assert VBD <= firstD - 1
        fill = []
        def epi(j):
            q = ACC['Q'] + 4 * j
            t = TMP + 8 * (j & 1)
            I = []
            I.append(f'v_pk_mul_f32 {vr(t,2)}, {vr(q,2)}, s[{C2L}:{C2L+1}]')
            I.append(f'v_pk_mul_f32 {vr(t+2,2)}, {vr(q+2,2)}, s[{CNL}:{CNL+1}]')
            I.append(f'v_min_f32 v{t}, s{C60}, v{t}')
            I.append(f'v_min_f32 v{t+1}, s{C60}, v{t+1}')
            for i in (2, 3, 0, 1): I.append(f'v_exp_f32 v{t+i}, v{t+i}')
            I.append('s_nop 0')
            I.append(f'v_pk_add_f32 {vr(t+4,2)}, {vr(t,2)}, 1.0 op_sel_hi:[1,0]')
            I.append(f'v_pk_add_f32 {vr(t+6,2)}, {vr(t,2)}, -1.0 op_sel_hi:[1,0]')
            I.append(f'v_pk_fma_f32 {vr(t+4,2)}, {vr(t+4,2)}, {vr(t+2,2)}, {vr(t+4,2)}')
            I.append(f'v_rcp_f32 v{t+4}, v{t+4}')
            I.append(f'v_rcp_f32 v{t+5}, v{t+5}')
            I.append('s_nop 0')
            I.append(f'v_pk_mul_f32 {vr(t+6,2)}, {vr(t+6,2)}, {vr(t+4,2)}')
            I.append(f'v_cvt_pk_bf16_f32 v{ACC["P"]+j}, v{t+6}, v{t+7}')
            I.append(f'buffer_store_dword v{ACC["P"]+j}, v{VOUT + j//3}, {sr(S_OUT)}, 0 offen offset:{1152*(j%3)} {o.oflags}')
            return I
        since = {}
        for v in range(NV):
            js = [j for j in range(8, -1, -1) if 0 <= v - j < NSTEP]
            nxt = keys(v + 1) if v + 1 < NV else []
            extra = []
            if issued[0] < NSTEP and issued[0] <= v + PF: extra.append('W')
            extra += [('X', k) for k in nxt]
            if VB1 < v <= VB1 + 9: extra.append(f'ds_write_b128 v{VEX}, {vr(ACC["P"]+4*(v-VB1-1),4)} offset:{1024*(v-VB1-1)}')
            jr = v - (VB2 + 1)
            if 0 <= jr < 9: extra.append(f'ds_read_b128 {vr(TMP+4*(jr&1),4)}, v{VEXP} offset:{1024*jr}')
            ja = v - (VB2 + 2)
            if typ == 0 and v == 72: extra.append(('S', f'buffer_store_dword v{VCL+1}, v{VCL}, {sr(S_DBG)}, 0 offen sc1'))
            if typ == 0 and v == 92: extra.append(('S', f'buffer_store_dword v{VF+3}, v{VCL+1}, {sr(S_WS)}, 0 offen sc1'))
            e('s_waitcnt lgkmcnt(0)')
            if o.diag == 2 and v in o.marks:
                kk = o.marks.index(v)
                e(f's_memtime s[{ST0+2*kk}:{ST0+2*kk+1}]')
            if o.diag in (1, 4) and v == VBD: stamp(5)
            if v in (VBD, VB1, VB2): e('s_barrier')
            if o.diag in (1, 4) and v == VBD: stamp(6)
            for n, j in enumerate(js):
                g = v - j
                pid, arr, ch, c, acc = S[g]
                k = (pid, arr, ch, c + j)
                if 0 <= ja < 9 and ((j == ja + 2 and ja <= 6) or (ja >= 7 and j == ja - 7)):
                    q = ACC['Q'] + 4 * ja; t = TMP + 4 * (ja & 1)
                    if o.nopk:
                        for i in range(4): e(f'v_add_f32 v{q+i}, v{q+i}, v{t+i}')
                    else:
                        e(f'v_pk_add_f32 {vr(q,2)}, {vr(q,2)}, {vr(t,2)}')
                        e(f'v_pk_add_f32 {vr(q+2,2)}, {vr(q+2,2)}, {vr(t+2,2)}')
                if j == 0:
                    e(f's_waitcnt vmcnt({len(vq)-1-vq.index(g)})')
                d = ACC[acc] + 4 * j
                if g == 0: cs = '0'
                elif acc == 'Q' and S[g-1][4] == 'P': cs = vr(ACC['P'] + 4 * j, 4)
                else: cs = vr(d, 4)
                e(f'v_mfma_f32_16x16x32_bf16 {vr(d,4)}, {vr(WR+4*(g%16),4)}, {vr(xreg[k],4)}, {cs}')
                for jj in since: since[jj] += 1
                if g == NSTEP - 1: since[j] = 0
                if extra:
                    doextra(extra.pop(0))
                    for jj in since: since[jj] += 1
                for jj in sorted(since):
                    if 8 <= since[jj] < 10**6:
                        fill += epi(jj); since[jj] = 10**6
                nf = o.nfill
                while fill and nf > 0:
                    e(fill.pop(0)); nf -= 1
                    for jj in since: since[jj] += 1
            for x in extra: doextra(x)
        stamp(7)
        rem = [jj for jj in sorted(since) if since[jj] < 10**6]
        while fill:
            e(fill.pop(0))
            for jj in since: since[jj] += 1
        for jj in rem:
            if since[jj] < 8: e(f's_nop {8-since[jj]-1}')
            for x in epi(jj):
                e(x)
                for j2 in since: since[j2] += 1
        stamp(8)
        if o.diag == 1:
            e('s_waitcnt vmcnt(0)')
            stamp(9)
            dump(10)
        if o.padto:
            e(f'L_pad{typ}:')
            e('s_memrealtime s[98:99]')
            e('s_waitcnt lgkmcnt(0)')
            e('s_sub_u32 s98, s98, s96')
            e(f's_cmp_lt_u32 s98, {o.padto}')
            e(f's_cbranch_scc1 L_pad{typ}')
        if o.diag == 4:
            e('s_waitcnt vmcnt(0)')
            stamp(9)
            e('s_waitcnt lgkmcnt(0)')
            srd(e, S_DBG, 10, 256)
            e('v_mov_b32 v250, 0')
            e(f's_not_b32 s46, s{ST0}')
            e('v_writelane_b32 v250, s46, 1')
            for k in range(10): e(f'v_writelane_b32 v250, s{ST0+2*k}, {k+2}')
            e(f's_not_b32 s46, s{ST0+8}')
            e('v_writelane_b32 v250, s46, 12')
            e(f's_not_b32 s46, s{ST0+18}')
            e('v_writelane_b32 v250, s46, 13')
            e(f'v_writelane_b32 v250, s{NPOLL}, 14')
            e('v_lshlrev_b32 v251, 2, v1')
            e(f's_cmp_lg_u32 s{WAVE}, 0')
            e(f's_cbranch_scc1 L_d4_{typ}')
            e('s_mov_b64 exec, 0x7ffe')
            e(f'buffer_atomic_umax v250, v251, {sr(S_DBG)}, 0 offen sc1')
            e(f'L_d4_{typ}:')
        if o.diag == 2:
            kk = len(o.marks)
            e(f's_memtime s[{ST0+2*kk}:{ST0+2*kk+1}]')
            dump(10)
        e('s_endpgm')

    e('.p2align 6')
    e('L_helper:')
    e(f's_setprio {o.hprio}')
    e(f's_sub_u32 s{TW0}, s{WAVE}, 4')
    e(f's_mov_b32 s{TW1}, s{WAVE}')
    e(f's_mov_b32 s{TW2}, 8')
    e(f's_mov_b32 s{PAIR}, s2')
    e(f's_mov_b32 s{MODE}, 0')
    e(f's_mov_b32 s{HAS3}, s{TW0}')
    e(f's_lshl_b32 s{SCRB}, s{TW0}, 12')
    e(f's_add_u32 s{SCRB}, s{SCRB}, {SCR}')
    e(f'v_mov_b32 v10, {CNT}')
    for r in range(12, 16): e(f'v_mov_b32 v{r}, 0')
    e('ds_write_b128 v10, v[12:15]')
    e('L_prod:')
    T = [(64, TW0, 2, 3, 0), (96, TW1, 4, 5, 2048), (128, TW2, 6, 7, 16384)]
    c, kp, q, cc, kk, t = 46, 47, 48, 49, 50, 51
    b = TS
    e('v_mov_b32 v19, 4320')
    e('v_and_b32 v23, 3, v1')
    e('v_lshrrev_b32 v24, 3, v1')
    e('v_mul_u32_u24 v24, 576, v24')
    e('v_bfe_u32 v25, v1, 2, 1')
    e('v_mul_u32_u24 v25, 288, v25')
    e('v_add_u32 v24, v24, v25')
    for (vb, sw, vl, vs, so) in T:
        e(f'v_lshl_add_u32 v8, s{sw}, 2, v23')
        e('v_cmp_le_u32 vcc, 18, v8')
        e(f'v_lshl_add_u32 v{vl}, v8, 4, v24')
        e(f'v_add_u32 v9, v{vl}, v19')
        e(f'v_cndmask_b32 v{vl}, v{vl}, v9, vcc')
    e(f's_and_b32 s{c}, s{PAIR}, 15')
    e(f's_lshr_b32 s{kp}, s{PAIR}, 4')
    e(f's_mul_i32 s{b}, s{c}, 165888')
    e(f's_mul_i32 s{t}, s{kp}, 9216')
    e(f's_add_u32 s{b}, s{b}, s{t}')
    e(f's_add_u32 s{b+1}, s{b}, 82944')
    e(f's_mov_b32 s{S_W+2}, 2571264')
    e(f's_mov_b32 s{S_W+3}, 0x20000')
    e(f's_mov_b32 s{S_WO+3}, 0x20000')
    e(f's_cmp_lg_u32 s{c}, 15')
    e(f's_cselect_b32 s{S_WO+2}, 2571264, 0')
    e(f's_mov_b32 m0, s{SCRB}')
    e('s_waitcnt lgkmcnt(0)')
    e(f's_mov_b32 s{S_W}, s6')
    e(f's_and_b32 s{S_W+1}, s7, 0xffff')
    e(f's_mov_b32 s{S_WO}, s6')
    e(f's_and_b32 s{S_WO+1}, s7, 0xffff')
    e(f's_cmp_ge_u32 s{PAIR}, {NPROD}')
    e('s_cbranch_scc1 L_noprod')
    def cond3(lbl):
        e(f's_cmp_lg_u32 s{HAS3}, 0')
        e(f's_cbranch_scc1 {lbl}')
    for ti, (vb, sw, vl, vs, so) in enumerate(T):
        if ti == 2: cond3('L_a3')
        if ti:
            e(f's_add_u32 m0, s{SCRB}, {so}')
            e('s_nop 0')
        e(f'buffer_load_dwordx4 v{vl}, {sr(S_W)}, s{b} offen lds')
        e(f's_add_u32 m0, s{SCRB}, {so+1024}')
        e('s_nop 0')
        e(f'buffer_load_dwordx4 v{vl}, {sr(S_WO)}, s{b+1} offen lds')
    e('L_a3:')
    stamp(1)
    e(f's_cmp_lg_u32 s{WAVE}, 4')
    e('s_cbranch_scc1 L_a4')
    e(f's_load_dword s{TAG}, s[12:13], {NONCE}')
    e('L_a4:')
    if o.b0late:
        e(f's_cmp_lg_u32 s{MODE}, 0')
        e('s_cbranch_scc1 L_a4b')
        e('s_barrier')
        e('L_a4b:')
    srd(e, S_WS, 12, WS_REC)
    srd(e, S_DBG, 10, 256)
    e(f'v_mov_b32 v20, {(256 - 18*2*NSTEP*1024) & 0xffffffff}')
    e(f'v_mov_b32 v26, {2*NSTEP*1024}')
    e('v_bfe_u32 v21, v1, 2, 2')
    e('v_lshlrev_b32 v21, 7, v21')
    e('v_and_b32 v22, 1, v1')
    e('v_lshl_add_u32 v21, v22, 6, v21')
    e('v_bfe_u32 v22, v1, 1, 1')
    e('v_lshl_add_u32 v21, v22, 3, v21')
    e('v_lshrrev_b32 v22, 4, v1')
    e('v_lshl_add_u32 v21, v22, 4, v21')
    e(f'v_add_u32 v21, s{SCRB}, v21')
    e('v_and_b32 v25, 15, v1')
    e('v_lshlrev_b32 v25, 4, v25')
    for (vb, sw, vl, vs, so) in T:
        e(f'v_lshl_add_u32 v8, s{sw}, 2, v22')
        e('v_cmp_le_u32 vcc, 18, v8')
        e(f'v_mad_u32_u24 v{vs}, v8, v26, v25')
        e(f'v_add_u32 v9, v{vs}, v20')
        e(f'v_cndmask_b32 v{vs}, v{vs}, v9, vcc')
    e(f's_lshr_b32 s{q}, s{kp}, 1')
    e(f's_and_b32 s{cc}, s{c}, 7')
    e(f's_lshr_b32 s{kk}, s{c}, 3')
    e(f's_and_b32 s{t}, s{kp}, 1')
    e(f's_cmp_eq_u32 s{kp}, 8')
    e(f's_cselect_b32 s{cc}, s{cc}, s{c}')
    e(f's_cselect_b32 s{kk}, s{kk}, s{t}')
    e(f's_lshl_b32 s{kk}, s{kk}, 9')
    e(f's_add_u32 s{kk}, s{kk}, {WOFF}')
    e(f's_lshl_b32 s{t}, s{q}, 4')
    e(f's_add_u32 s{b+2}, s{t}, s{cc}')
    e(f's_sub_u32 s{b+3}, s{b+2}, s{q}')
    e(f's_cmp_ge_u32 s{q}, 2')
    e(f's_cselect_b32 s{b+4}, 74, 0')
    e(f's_add_u32 s{b+4}, s{b+4}, s{b+2}')
    e(f's_cmp_lt_u32 s{cc}, 2')
    e(f's_cselect_b32 s{t}, 32, 136')
    e(f's_add_u32 s{t}, s{t}, s{cc}')
    e(f's_cmp_eq_u32 s{kp}, 8')
    e(f's_cselect_b32 s{b+4}, s{t}, s{b+4}')
    e(f's_add_u32 s{b+2}, s{b+2}, 34')
    e(f's_add_u32 s{b+3}, s{b+3}, 144')
    for k in (2, 3, 4):
        e(f's_lshl_b32 s{b+k}, s{b+k}, 10')
        e(f's_add_u32 s{b+k}, s{b+k}, s{kk}')
    e(f's_cmp_eq_u32 s{kp}, 8')
    e(f's_cselect_b32 s{t}, 1, 2')
    e(f's_cmp_eq_u32 s{c}, 15')
    e(f's_cselect_b32 s{b+5}, s{t}, 0')
    e('s_waitcnt vmcnt(0) lgkmcnt(0)')
    stamp(2)
    e('v_mov_b32 v27, 0')
    e(f's_cmp_lg_u32 s{WAVE}, 4')
    e('s_cbranch_scc1 L_a5')
    e('v_mov_b32 v12, 4')
    e('s_mov_b64 exec, 1')
    e(f'buffer_load_dword v27, v12, {sr(S_DBG)}, 0 offen sc1')
    e('s_mov_b64 exec, -1')
    e('L_a5:')
    def trreads(vb, so):
        for tap in range(2):
            for half in range(2):
                e(f'ds_read_b64_tr_b16 {vr(vb+4*tap+2*half,2)}, v21 offset:{so+1024*tap+512*half}')
    def st01(vb, vs, n0, n1, tag):
        e(f's_waitcnt lgkmcnt({n0})')
        e(f'buffer_store_dwordx4 {vr(vb,4)}, v{vs}, {sr(S_WS)}, s{b+2} offen sc1')
        e(f's_waitcnt lgkmcnt({n1})')
        e(f's_cmp_eq_u32 s{b+5}, 2')
        e(f's_cbranch_scc1 L_skip{tag}')
        e(f'buffer_store_dwordx4 {vr(vb+4,4)}, v{vs}, {sr(S_WS)}, s{b+3} offen sc1')
        e(f'L_skip{tag}:')
    def stsum(vb, vs):
        for i in range(8):
            e(f'v_lshlrev_b32 v{vb+8+2*i}, 16, v{vb+i}')
            e(f'v_and_b32 v{vb+9+2*i}, s{MASK}, v{vb+i}')
        for i in range(4):
            e(f'v_pk_add_f32 {vr(vb+8+2*i,2)}, {vr(vb+8+2*i,2)}, {vr(vb+16+2*i,2)}')
        for i in range(4):
            e(f'v_cvt_pk_bf16_f32 v{vb+24+i}, v{vb+8+2*i}, v{vb+9+2*i}')
        e(f'buffer_store_dwordx4 {vr(vb+24,4)}, v{vs}, {sr(S_WS)}, s{b+4} offen sc1')
    for tt in T: trreads(tt[0], tt[4])
    st01(T[0][0], T[0][3], 10, 8, 0)
    st01(T[1][0], T[1][3], 6, 4, 1)
    stsum(T[0][0], T[0][3])
    stsum(T[1][0], T[1][3])
    cond3('L_b3')
    st01(T[2][0], T[2][3], 2, 0, 2)
    stsum(T[2][0], T[2][3])
    e('L_b3:')
    e(f's_cmp_eq_u32 s{MODE}, 0')
    e('s_cbranch_scc1 L_b4')
    e('s_waitcnt vmcnt(0) lgkmcnt(0)')
    e(f's_add_u32 s{PAIR}, s{PAIR}, 1')
    e(f's_cmp_lt_u32 s{PAIR}, {NPROD}')
    e('s_cbranch_scc1 L_prod')
    e('s_branch L_go')
    e('L_noprod:')
    if o.b0late: e('s_barrier')
    srd(e, S_WS, 12, WS_REC)
    stamp(1); stamp(2)
    e('L_b4:')
    if not o.b0late: e('s_barrier')
    if o.b0late:
        pass
    stamp(3)
    decode()
    e('v_subrev_u32 v4, 256, v0')
    e('v_min_u32 v4, 251, v4')
    e('v_mul_u32_u24 v3, 3641, v4')
    e('v_lshrrev_b32 v3, 16, v3')
    e('v_mul_u32_u24 v2, 18, v3')
    e('v_sub_u32 v2, v4, v2')
    e(f'v_mul_u32_u24 v3, {R}, v3')
    e(f'v_min_u32 v3, {160-R}, v3')
    e('v_mul_u32_u24 v4, 1152, v3')
    e('v_lshl_add_u32 v4, v2, 4, v4')
    e(f'v_add_u32 v12, s{XB}, v4')
    e('v_mul_u32_u24 v18, 288, v3')
    e('v_lshl_add_u32 v18, v2, 4, v18')
    e(f'v_add_u32 v19, {X_D1}, v18')
    srd(e, S_X, 4, 1152000, add=BOFF)
    e(f's_cmp_ge_u32 s2, {NPROD}')
    e('s_cbranch_scc1 L_noflag')
    e(f'v_mov_b32 v10, {CNT}')
    e(f's_mul_i32 s46, s2, {o.fstride}')
    e('v_mov_b32 v16, s46')
    e('s_mov_b64 exec, 1')
    e(f's_cmp_lg_u32 s{WAVE}, 4')
    e('s_cbranch_scc1 L_nottag')
    e(f's_add_u32 s46, s{TAG}, {TAGINC}')
    e('v_mov_b32 v15, s46')
    e('ds_write_b32 v10, v15 offset:4')
    e('L_nottag:')
    e('s_waitcnt vmcnt(0)')
    stamp(4)
    e('v_cmp_ne_u32 vcc, 0, v27')
    e('v_mov_b32 v13, 1')
    e('v_mov_b32 v14, 0x101')
    e('v_cndmask_b32 v13, v13, v14, vcc')
    e('ds_add_rtn_u32 v14, v10, v13')
    e('ds_read_b32 v15, v10 offset:4')
    e('s_waitcnt lgkmcnt(0)')
    e('v_add_u32 v14, v14, v13')
    e('v_cmp_eq_u32 vcc, 4, v14')
    e('s_and_b64 exec, exec, vcc')
    e('s_cbranch_execz L_notlast')
    e(f'buffer_store_dword v15, v16, {sr(S_WS)}, 0 offen sc1')
    e('L_notlast:')
    e('s_mov_b64 exec, -1')
    e('L_noflag:')
    if o.b0late: e('s_barrier')
    e(f's_setprio {o.hprio2}')
    RAW, ORAW = 64, 120
    EU = [184, 192]
    OU, DT, DO = 200, 208, 216
    xi = [0]
    NL = R + 1
    def eload():
        k = xi[0]
        if k >= NL: return
        a_ = 12
        if k:
            a_ = 13 + (k & 3)
            e(f'v_add_u32 v{a_}, {1152*k}, v12')
        e(f'buffer_load_dwordx4 {vr(RAW+4*k,4)}, v{a_}, {sr(S_X)}, 0 offen')
        xi[0] += 1
    if o.etouch:
        e(f's_cmp_lt_u32 s2, {NPROD}')
        e('s_cbranch_scc1 L_net')
        if o.etouch == 2:
            e(f's_and_b32 s46, s{NB}, 1')
            e(f's_mul_i32 s46, s46, {1152*6}')
            e('v_add_u32 v12, s46, v12')
            for _ in range(7): eload()
            e('v_subrev_u32 v12, s46, v12')
        else:
            for _ in range(NL): eload()
        e('s_waitcnt vmcnt(0)')
        e('L_net:')
        xi[0] = 0
    for _ in range(o.epre): eload()
    e('s_waitcnt lgkmcnt(0)')
    stamp(5)
    if o.dec:
        for _ in range(max(0, o.ein - o.epre)): eload()
        e(f'v_mov_b32 v10, {CNT}')
        e('s_mov_b64 exec, 1')
        e('L_ow:')
        e('ds_read_b32 v11, v10 offset:8')
        e('s_waitcnt lgkmcnt(0)')
        e('v_cmp_ne_u32 vcc, 4, v11')
        e('s_nop 4')
        e('s_cbranch_vccz L_ow2')
        e('s_sleep 1')
        e('s_branch L_ow')
        e('L_ow2:')
        e('s_mov_b64 exec, -1')
    else:
        e('s_barrier')
    stamp(6)
    if not o.dec:
        for _ in range(max(0, o.ein - o.epre)): eload()
    for j in range(R):
        e(f'ds_read_b128 {vr(ORAW+4*j,4)}, v18 offset:{X_O+288*j}')
    def unpack(dst, s_):
        for i in range(4):
            e(f'v_lshlrev_b32 v{dst+2*i}, 16, v{s_+i}')
            e(f'v_and_b32 v{dst+2*i+1}, s{MASK}, v{s_+i}')
    def unpackE(dst, k):
        e(f's_waitcnt vmcnt({xi[0]-1-k})')
        unpack(dst, RAW + 4 * k)
        eload()
    def diff(eu, out):
        if o.nopk:
            for i in range(8): e(f'v_sub_f32 v{DT+i}, v{eu+i}, v{OU+i}')
        else:
          for i in range(4):
            e(f'v_pk_add_f32 {vr(DT+2*i,2)}, {vr(eu+2*i,2)}, {vr(OU+2*i,2)} neg_lo:[0,1] neg_hi:[0,1]')
        for i in range(4):
            e(f'v_cvt_pk_bf16_f32 v{out+i}, v{DT+2*i}, v{DT+2*i+1}')
    unpackE(EU[0], 0)
    e('s_waitcnt lgkmcnt(0)')
    for j in range(R):
        o0 = DO + 8 * (j & 1)
        unpack(OU, ORAW + 4 * j)
        diff(EU[j & 1], o0)
        e(f'ds_write_b128 v18, {vr(o0,4)} offset:{X_D0+288*j}')
        unpackE(EU[(j + 1) & 1], j + 1)
        diff(EU[(j + 1) & 1], o0 + 4)
        e(f'ds_write_b128 v19, {vr(o0+4,4)} offset:{288*j}')
    e('s_waitcnt lgkmcnt(0)')
    stamp(7)
    e('s_barrier')
    if o.diag == 1:
        stamp(8); stamp(9)
        dump(10)
    e('L_end:')
    e('s_endpgm')
    e('.section .rodata,"a"')
    e('.p2align 6')
    e(f'.amdhsa_kernel {KN}')
    for x in ['next_free_vgpr 256', 'next_free_sgpr 102', 'accum_offset 256', 'group_segment_fixed_size 0', 'kernarg_size 40',
              'user_sgpr_count 2', 'user_sgpr_kernarg_segment_ptr 1', 'system_sgpr_workgroup_id_x 1']:
        e('  .amdhsa_' + x)
    e('.end_amdhsa_kernel')
    n = check(e.L)
    if n: print(f'{n} hazards', file=sys.stderr)
    return f'; @launch grid=({NWG},1,1) block=(512,1,1) lds={LDS_BYTES}\n' + e.text()

def opts(argv=None):
    ap = argparse.ArgumentParser()
    ap.add_argument('-o', default='k.s')
    for nm, d in [('diag', 0), ('pf', 7), ('wsc1', 0), ('nfill', 2), ('fstride', 128), ('sleep', 0), ('maxpoll', 3000), ('nopoll', 0),
                  ('hprio', 3), ('hprio2', 0), ('mprio', 2), ('epre', 0), ('ein', 4), ('vbd', 33), ('nopk', 1), ('padto', 0), ('npdelay', 0), ('opre', 2), ('etouch', 2), ('orev', 1), ('b0late', 1), ('dec', 1)]:
        ap.add_argument('--' + nm, type=int, default=d)
    ap.add_argument('--oflags', default='')
    ap.add_argument('--marks', default='0,4,8,12,16,24,33,47,58')
    o = ap.parse_args(argv)
    o.marks = [int(x) for x in o.marks.split(',')]
    return o

if __name__ == '__main__':
    o = opts()
    open(o.o, 'w').write(gen(o))
```

```python
import re, sys, argparse
import haz

KN = 'standalone__autoregressive_conv_wavernn__speech_kernel'
NWG = 252
NPROD = 144
ARR = 160 * 288
X_D0, X_O, X_D1 = 0, ARR, 2 * ARR
CNT = 3 * ARR
SCR = CNT + 64
LDS_BYTES = SCR + 18432
NSTEP = 106
WOFF = 0x100000
NONCE = 0x10000
DIAG = 0x800000
WS_REC = 0x1000000
TAGINC = 0x9E3779B9
R = 12

class Em:
    def __init__(self): self.L = []
    def __call__(self, s): self.L.append(s)
    def text(self): return '\n'.join(self.L) + '\n'

def vr(a, n=1): return f'v{a}' if n == 1 else f'v[{a}:{a+n-1}]'
def sr(a, n=4): return f's[{a}:{a+n-1}]'

def streams():
    out = []
    for typ in (0, 1):
        S = []
        pid = [0]
        def add(arr, chunk, cs, acc):
            for c in cs: S.append((pid[0], arr, chunk, c, acc))
            pid[0] += 1
        if typ == 0:
            add('O', 0, range(16), 'P'); add('O', 1, range(16), 'P'); add('O', 'rem', range(0, 2), 'P')
            for q in range(4): add('D', q, range(16), 'Q')
            add('D', 'rem', range(8), 'Q')
        else:
            add('O', 2, range(16), 'P'); add('O', 3, range(16), 'P'); add('O', 'rem', range(2, 8), 'P')
            for q in range(4): add('D', q, range(15), 'Q')
            add('D', 'rem', range(8), 'Q')
        assert len(S) == NSTEP
        out.append(S)
    return out

S_X, S_W, S_WO, S_WS, S_OUT, S_DBG = 20, 24, 28, 32, 36, 40
WAVE, NB, BAT, PAR, MB, BOFF = 14, 15, 16, 17, 18, 19
PAIR0 = 3
XB = 52
MASK = 53
TW0, TW1, TW2, PAIR, HAS3, MODE, SCRB, TAG, LAST, NPOLL = 44, 45, 54, 55, 56, 57, 58, 59, 60, 61
TS = 62
TYP, WSO = 68, 69
C2L, CNL, C60 = 90, 92, 94
ST0 = 70

def srd(e, d, ptr, rec, add=None):
    if add is None:
        e(f's_mov_b32 s{d}, s{ptr}')
        e(f's_and_b32 s{d+1}, s{ptr+1}, 0xffff')
    else:
        e(f's_add_u32 s{d}, s{ptr}, s{add}')
        e(f's_addc_u32 s{d+1}, s{ptr+1}, 0')
        e(f's_and_b32 s{d+1}, s{d+1}, 0xffff')
    e(f's_mov_b32 s{d+2}, {rec}')
    e(f's_mov_b32 s{d+3}, 0x20000')

def gen(o):
    e = Em()
    def stamp(k, lvl=1):
        if o.diag == lvl or (o.diag == 4 and lvl == 1): e(f's_memrealtime s[{ST0+2*k}:{ST0+2*k+1}]')
    def dump(nst):
        e('s_waitcnt lgkmcnt(0)')
        e('v_mov_b32 v250, 0')
        for k in range(nst): e(f'v_writelane_b32 v250, s{ST0+2*k}, {k}')
        e(f'v_writelane_b32 v250, s{NPOLL}, 13')
        e(f'v_writelane_b32 v250, s{PAIR0}, 14')
        e('s_getreg_b32 s46, hwreg(HW_REG_XCC_ID)')
        e('v_writelane_b32 v250, s46, 15')
        e(f's_lshl_b32 s46, s2, 3'); e(f's_add_u32 s46, s46, s{WAVE}'); e('s_lshl_b32 s46, s46, 6'); e(f's_add_u32 s46, s46, {DIAG}')
        e('v_lshl_add_u32 v251, v1, 2, s46')
        e('s_mov_b64 exec, 0xffff')
        e(f'buffer_store_dword v250, v251, {sr(S_WS)}, 0 offen')
        e('s_mov_b64 exec, -1')

    e('.amdgcn_target "amdgcn-amd-amdhsa--gfx950"')
    e('.text')
    e(f'.globl {KN}')
    e('.p2align 8')
    e(f'.type {KN},@function')
    e(f'{KN}:')
    e(f's_cmp_ge_u32 s2, {NWG}')
    e('s_cbranch_scc1 L_end')
    stamp(0)
    if o.padto: e('s_memrealtime s[100:101]')
    e('s_load_dwordx4 s[4:7], s[0:1], 0')
    e('s_load_dwordx4 s[8:11], s[0:1], 16')
    e('s_load_dwordx2 s[12:13], s[0:1], 32')
    e('v_lshrrev_b32 v2, 6, v0')
    e('v_and_b32 v1, 63, v0')
    e(f'v_readfirstlane_b32 s{WAVE}, v2')
    def decode():
        e('s_and_b32 s44, s2, 7')
        e('s_lshr_b32 s45, s2, 3')
        e('s_mul_i32 s46, s44, 31')
        e('s_min_u32 s44, s44, 4')
        e('s_add_u32 s46, s46, s44')
        e('s_add_u32 s46, s46, s45')
        e('s_mul_hi_u32 s47, s46, 68174085')
        e('s_mul_i32 s48, s47, 63')
        e('s_sub_u32 s48, s46, s48')
        e(f's_mul_hi_u32 s{NB}, s48, 613566757')
        e(f's_mul_i32 s49, s{NB}, 7')
        e('s_sub_u32 s49, s48, s49')
        e('s_mul_i32 s47, s47, 7')
        e('s_add_u32 s47, s47, s49')
        e(f's_and_b32 s{PAR}, s47, 1')
        e('s_lshr_b32 s47, s47, 1')
        e('s_cmp_ge_u32 s47, 7')
        e(f's_cselect_b32 s{BOFF}, 1152000, 0')
        e('s_cselect_b32 s48, 7, 0')
        e(f's_sub_u32 s{MB}, s47, s48')
        e(f's_mul_i32 s{XB}, s{MB}, 576')
        e(f's_add_u32 s{XB}, s{XB}, s{PAR}')
        e(f's_sub_u32 s{XB}, s{XB}, 60')
        e(f's_mul_i32 s{XB}, s{XB}, 288')
    e(f's_mov_b32 s{MASK}, 0xffff0000')
    e(f's_mov_b32 s{NPOLL}, 0')
    e(f's_mov_b32 s{PAIR0}, s2')
    e(f's_cmp_ge_u32 s{WAVE}, 4')
    e('s_cbranch_scc1 L_helper')
    decode()

    VXO, VXOR, VXD, VXDR, VWL, VEX, VEXP, VOUT = 30, 31, 32, 33, 34, 35, 36, 37
    VF = 40
    VA = 48
    VCL = 60
    e('v_mul_u32_u24 v3, 3641, v0')
    e('v_lshrrev_b32 v3, 16, v3')
    e('v_mul_u32_u24 v2, 18, v3')
    e('v_sub_u32 v2, v0, v2')
    e('v_mul_u32_u24 v3, 1152, v3')
    e('v_lshl_add_u32 v3, v2, 4, v3')
    e(f's_add_u32 s46, s{XB}, 576')
    e(f'v_add_u32 v{VA}, s46, v3')
    e('v_mov_b32 v5, 16192')
    e('v_mov_b32 v6, 17056')
    for k in range(1, 12):
        e('v_cmp_le_u32 vcc, 14, v2')
        e('v_add_u32 v3, 4, v2')
        e('v_subrev_u32 v4, 14, v2')
        e('v_cndmask_b32 v7, v5, v6, vcc')
        e('v_cndmask_b32 v2, v3, v4, vcc')
        e(f'v_add_u32 v{VA+k}, v{VA+k-1}, v7')
    e('v_and_b32 v2, 15, v1')
    e('v_lshrrev_b32 v3, 4, v1')
    e('v_subrev_u32 v5, 4, v2')
    e('v_add_u32 v6, 8, v2')
    e('v_cmp_gt_u32 vcc, 4, v2')
    e('v_cmp_le_u32 s[46:47], 12, v2')
    e(f's_and_b32 s{TYP}, s{WAVE}, 1')
    e(f's_lshr_b32 s48, s{WAVE}, 1')
    e('v_cndmask_b32 v5, v5, v6, vcc')
    e('v_cndmask_b32 v5, v5, v2, s[46:47]')
    e('v_mul_u32_u24 v5, 9, v5')
    e('v_mul_u32_u24 v4, 288, v5')
    e('v_lshl_add_u32 v6, v3, 4, v4')
    e('v_and_b32 v7, 1, v3')
    e('v_lshl_add_u32 v7, v7, 4, v4')
    e('v_lshrrev_b32 v8, 1, v3')
    e('v_mul_u32_u24 v8, 2304, v8')
    e('v_add_u32 v7, v7, v8')
    e('v_add_u32 v7, 256, v7')
    e(f's_mul_i32 s49, s{TYP}, {X_D1}')
    e(f'v_add_u32 v{VXO}, {X_O}, v6')
    e(f'v_add_u32 v{VXOR}, {X_O}, v7')
    e(f'v_add_u32 v{VXD}, s49, v6')
    e(f'v_add_u32 v{VXDR}, s49, v7')
    e('v_lshlrev_b32 v6, 4, v1')
    e(f's_mul_i32 s49, s{WAVE}, 9216')
    e(f's_add_u32 s49, s49, {X_O}')
    e(f'v_add_u32 v{VEX}, s49, v6')
    e(f's_xor_b32 s49, s{WAVE}, 1')
    e('s_mul_i32 s49, s49, 9216')
    e(f's_add_u32 s49, s49, {X_O}')
    e(f'v_add_u32 v{VEXP}, s49, v6')
    e('v_and_b32 v8, 0x39, v1')
    e('v_bfe_u32 v9, v1, 1, 1')
    e('v_lshl_add_u32 v8, v9, 2, v8')
    e('v_bfe_u32 v9, v1, 2, 1')
    e('v_lshl_add_u32 v8, v9, 1, v8')
    e(f'v_lshlrev_b32 v{VWL}, 4, v8')
    e(f's_mul_i32 s49, s{TYP}, 576')
    e(f's_add_u32 s49, s49, s{XB}')
    e(f's_add_u32 s49, s49, {60*288}')
    e(f's_lshl_b32 s50, s{NB}, 5')
    e('s_add_u32 s49, s49, s50')
    e('s_lshl_b32 s50, s48, 4')
    e('s_add_u32 s49, s49, s50')
    e('v_mul_u32_u24 v8, 1152, v5')
    e('v_lshl_add_u32 v8, v3, 2, v8')
    e(f'v_add_u32 v{VOUT}, s49, v8')
    e(f'v_add_u32 v{VOUT+1}, 3456, v{VOUT}')
    e(f'v_add_u32 v{VOUT+2}, 6912, v{VOUT}')
    e(f's_lshl_b32 s49, s{NB}, 1')
    e('s_add_u32 s49, s49, s48')
    e('s_lshl_b32 s49, s49, 1')
    e(f's_add_u32 s49, s49, s{TYP}')
    e(f's_mul_i32 s{WSO}, s49, {NSTEP*1024}')
    e(f's_add_u32 s{WSO}, s{WSO}, {WOFF}')
    e(f's_mov_b32 s{C2L}, 0x4038aa3b'); e(f's_mov_b32 s{C2L+1}, 0x4038aa3b')
    e(f's_mov_b32 s{CNL}, 0xbfb8aa3b'); e(f's_mov_b32 s{CNL+1}, 0xbfb8aa3b')
    e(f's_mov_b32 s{C60}, 0x42700000')
    e(f'v_min_u32 v{VF}, 35, v1')
    e(f's_mul_i32 s46, s{WAVE}, 36')
    e(f'v_add_u32 v{VF}, s46, v{VF}')
    e(f'v_mul_u32_u24 v{VF}, {o.fstride}, v{VF}')
    e(f's_lshl_b32 s50, s{WAVE}, 10')
    e(f's_add_u32 s50, s50, {X_O}')
    e(f's_add_u32 s51, s50, {4096*11}')
    e('s_movk_i32 s49, 4096')
    if o.orev:
        e(f's_bitcmp0_b32 s{NB}, 0')
        e('s_cbranch_scc1 L_fwd')
        for k in range(5): e(f'v_swap_b32 v{VA+k}, v{VA+10-k}')
        e(f's_add_u32 s50, s50, {4096*10}')
        e('s_movk_i32 s49, -4096')
        e('L_fwd:')
    e(f's_or_b32 s46, s2, s{WAVE}')
    e('v_or_b32 v2, s46, v1')
    e('v_cmp_eq_u32 vcc, 0, v2')
    e(f'v_mov_b32 v{VCL}, -16')
    e(f'v_mov_b32 v{VCL+1}, -16')
    e(f'v_mov_b32 v3, {NONCE}')
    e(f'v_cndmask_b32 v{VCL}, v{VCL}, 4, vcc')
    e(f'v_cndmask_b32 v{VCL+1}, v{VCL+1}, v3, vcc')
    e('s_waitcnt lgkmcnt(0)')
    e(f's_load_dword s{TAG}, s[12:13], {NONCE}')
    srd(e, S_X, 4, 1152000, add=BOFF)
    srd(e, S_WS, 12, WS_REC)
    srd(e, S_OUT, 8, 1152000, add=BOFF)
    srd(e, S_DBG, 10, 256)
    def odma(k):
        e(f's_mov_b32 m0, s{51 if k == 11 else 50}')
        e('s_add_u32 s50, s50, s49')
        e(f'buffer_load_dwordx4 v{VA+k}, {sr(S_X)}, 0 offen lds')
    if o.b0late: e('s_barrier')
    if o.npdelay:
        e(f's_cmp_lt_u32 s2, {NPROD}')
        e('s_cbranch_scc1 L_nd')
        e('s_waitcnt lgkmcnt(0)')
        e('L_nd:')
    for k in range(o.opre): odma(k)
    e('s_barrier')
    stamp(1)
    for k in range(o.opre, 12):
        if k == 11:
            e(f's_cmp_lg_u32 s{WAVE}, 0')
            e('s_cbranch_scc1 L_o11')
        odma(k)
    e('L_o11:')
    e(f'v_mov_b32 v{VF+1}, {CNT}')
    e(f'v_mov_b32 v{VF+2}, 1')
    e(f's_lshr_b32 s46, s{WAVE}, 1')
    e('s_lshl_b32 s46, s46, 2')
    e(f'v_add_u32 v{VF+5}, s46, v{VF+1}')
    e('s_waitcnt vmcnt(0) lgkmcnt(0)')
    stamp(2)
    if o.dec:
        e('s_mov_b64 exec, 1')
        e(f'ds_add_u32 v{VF+1}, v{VF+2} offset:8')
        e('s_mov_b64 exec, -1')
    e(f's_add_u32 s{TAG}, s{TAG}, {TAGINC}')
    e(f'v_mov_b32 v{VF+3}, s{TAG}')
    if o.nopoll: e('s_branch L_go')
    e('L_poll:')
    e(f'buffer_load_dword v{VF+4}, v{VF}, {sr(S_WS)}, 0 offen sc1')
    e(f's_add_u32 s{NPOLL}, s{NPOLL}, 1')
    e('s_waitcnt vmcnt(0)')
    e(f'v_cmp_ne_u32 vcc, v{VF+3}, v{VF+4}')
    e('s_nop 4')
    e('s_cbranch_vccz L_go')
    if o.sleep: e(f's_sleep {o.sleep}')
    e(f's_cmp_lt_u32 s{NPOLL}, {o.maxpoll}')
    e('s_cbranch_scc1 L_poll')
    e(f's_mov_b32 s{MODE}, 1')
    e(f's_mov_b32 s{HAS3}, 1')
    e(f's_lshr_b32 s{TW0}, s{NB}, 1')
    e(f's_add_u32 s{TW1}, s{NB}, 9')
    e(f's_lshr_b32 s{TW1}, s{TW1}, 1')
    e(f's_mov_b32 s{TW2}, 8')
    e(f's_mov_b32 s{PAIR}, 0')
    e(f's_lshl_b32 s{SCRB}, s{WAVE}, 12')
    e(f's_add_u32 s{SCRB}, s{SCRB}, {SCR}')
    e('s_branch L_prod')
    e('L_go:')
    stamp(3)
    if o.dec:
        e('s_mov_b64 exec, 1')
        e(f'ds_add_u32 v{VF+1}, v{VF+2} offset:12')
        e('L_gw:')
        e(f'ds_read_b32 v{VF+4}, v{VF+1} offset:12')
        e('s_waitcnt lgkmcnt(0)')
        e(f'v_cmp_ne_u32 vcc, 4, v{VF+4}')
        e('s_nop 4')
        e('s_cbranch_vccnz L_gw')
        e('s_mov_b64 exec, -1')
    else:
        e('s_barrier')
    stamp(4)
    e(f's_setprio {o.mprio}')
    e(f's_cmp_eq_u32 s{TYP}, 1')
    e('s_cbranch_scc1 L_typeB')

    ACC = {'P': 64, 'Q': 100}
    WR, TMP = 136, 224
    XRING = [200 + 4 * i for i in range(6)]
    XWIN = [4 + 4 * i for i in range(6)] + [240 + 4 * i for i in range(4)]
    VC = 28
    PF = o.pf
    GT = 98
    wflags = ' sc1' if o.wsc1 else ''
    def wreg(g):
        return ACC['P'] + 4 * (g - GT) if (o.tail and g >= GT) else WR + 4 * (g % 16)
    for typ, S in enumerate(streams()):
        if typ == 1: e('.p2align 6'); e('L_typeB:')
        ops = []
        vstart = {}
        lastv = GT - 1 if o.tail else NSTEP + 7
        for v in range(lastv + 1):
            vstart[v] = len(ops)
            for j in range(8, -1, -1):
                if 0 <= v - j < NSTEP: ops.append((v - j, j))
        ntail = len(ops)
        if o.tail:
            for j in range(9):
                for g in range(GT - j, NSTEP): ops.append((g, j))
        assert len(ops) == NSTEP * 9 and len(set(ops)) == len(ops)
        N = len(ops)
        def key(n):
            g, j = ops[n]
            pid, arr, ch, c, acc = S[g]
            k = (pid, arr, ch, c + j)
            if n >= ntail and g < GT: k = k + ((n,) if not o.hold else ('h',))
            return k
        first, last = {}, {}
        for n in range(N):
            first.setdefault(key(n), n); last[key(n)] = n
        wfirst, wlast = {}, {}
        for n, (g, j) in enumerate(ops):
            wfirst.setdefault(g, n); wlast[g] = n
        tasks = []
        for k, n0 in first.items():
            win = o.tail and k[2] == 'rem' and k[1] == 'D'
            la = o.xla if n0 < ntail else 6
            if win: la = 40 if k[3] < 8 else 12
            tasks.append([n0 - la, n0 - 1, 'X', k])
        for g in range(NSTEP):
            if o.tail and g >= GT: rel = vstart[76 + 2 * (g - GT)] + 3
            elif g < PF: rel = -100 + g
            else: rel = vstart[g - PF] + (0 if g < 16 else 0)
            if g >= 16 and not (o.tail and g >= GT): rel = max(rel, wlast[g - 16])
            tasks.append([rel, wfirst[g] - 1, 'W', g])
        def at(v, off=0): return vstart[v] + off
        firstD = min(n for n in range(N) if S[ops[n][0]][1] == 'D')
        lastO = max(n for n in range(N) if S[ops[n][0]][1] == 'O')
        lastP = {j: max(n for n in range(N) if ops[n][1] == j and S[ops[n][0]][4] == 'P') for j in range(9)}
        slow = []
        def check(v, off, cnt, tag):
            tasks.append([at(v - 1, 3), at(v - 1, 8), 'L', (f'ds_read_b32 v{VC}, v{VF+1} offset:{off}', ('c', tag))])
            tasks.append([at(v, 0), at(v, 1), 'C', (f'v_cmp_ne_u32 vcc, {cnt}, v{VC}', ('c', tag))])
            tasks.append([at(v, 6), at(v, 7), 'I', [f's_cbranch_vccnz L_slow{typ}{tag}', f'L_back{typ}{tag}:']])
            slow.append((tag, off, cnt))
            return at(v, 8)
        def add1(pos, off):
            tasks.append([pos, pos + 4, 'A', off])
        vD = [v for v in vstart if vstart[v] <= firstD - o.xla][-1] - 1
        okD = check(vD, 16, 4, 'D')
        assert okD <= firstD - o.xla
        add1(lastO, 20)
        VP = 47
        okR = check(VP, 20, 4, 'R')
        for j in range(9):
            assert lastP[j] + 12 < at(VP + 1 + j, 2)
            tasks.append([at(VP + 1 + j, 2), at(VP + 1 + j, 8), 'L', (f'ds_write_b128 v{VEX}, {vr(ACC["P"]+4*j,4)} offset:{1024*j}', ('pw', j))])
        tasks.append([at(VP + 10, 0), at(VP + 10, 4), 'A', 'pair'])
        VQ = VP + 13
        okP = check(VQ, 'pair', 2, 'P')
        for j in range(9):
            tasks.append([at(VQ + 1 + j, 2), at(VQ + 1 + j, 8), 'L', (f'ds_read_b128 {vr(TMP+4*(j&1),4)}, v{VEXP} offset:{1024*j}', ('pr', j))])
            v = VQ + 2 + j
            pos = at(v, 8 - (j + 2) - 1) if j <= 6 else at(v, 8 - (j - 7) - 1)
            sh = 1 if j >= 7 else 0
            tasks.append([pos - 1 + sh, pos - 1 + sh, 'Q', (j, 0)])
            tasks.append([pos + sh, pos + sh, 'Q', (j, 1)])
        if typ == 0:
            tasks.append([at(72, 4), at(72, 8), 'S', f'buffer_store_dword v{VCL+1}, v{VCL}, {sr(S_DBG)}, 0 offen sc1'])
            tasks.append([at(92, 4), at(92, 8), 'S', f'buffer_store_dword v{VF+3}, v{VCL+1}, {sr(S_WS)}, 0 offen sc1'])
        tasks.sort(key=lambda t: (t[0], t[1]))
        vq, lq = [], []
        dirty = [False]
        xreg, busy = {}, {}
        wn = [0]
        since = {}
        fill = []
        def em(x):
            e(x)
            if not x.endswith(':'):
                for jj in since: since[jj] += 1
        def lwait(tag):
            if tag not in lq: return
            i = lq.index(tag)
            em(f's_waitcnt lgkmcnt({0 if dirty[0] else len(lq)-1-i})')
            if dirty[0]: lq.clear(); dirty[0] = False
            else: del lq[:i + 1]
        def vwait(g):
            if g not in vq: return
            i = vq.index(g)
            em(f's_waitcnt vmcnt({len(vq)-1-i})')
            del vq[:i + 1]
        def run(t, n):
            kind, p = t[2], t[3]
            if kind == 'X':
                pool = XWIN if (o.tail and p[2] == 'rem' and p[1] == 'D') else XRING
                if p[-1] == 'h':
                    pool = [WR + 4 * (g % 16) for g in range(GT - 16, GT - 8)]
                    for g in range(GT - 16, GT - 8): busy.setdefault(WR + 4 * (g % 16), wlast[g])
                r = [x for x in pool if busy.get(x, -1) <= n]
                assert r, ('no x register', p, n)
                r = min(r, key=lambda x: busy.get(x, -1))
                busy[r] = last[p]; xreg[p] = r
                arr, ch, s_ = p[1], p[2], p[3]
                if ch == 'rem': em(f'ds_read_b128 {vr(r,4)}, v{VXOR if arr == "O" else VXDR} offset:{288*s_}')
                else: em(f'ds_read_b128 {vr(r,4)}, v{VXO if arr == "O" else VXD} offset:{64*ch+288*s_}')
                lq.append(p)
            elif kind == 'W':
                g = p
                if o.tail and g >= GT:
                    em(f'buffer_load_dwordx4 {vr(wreg(g),4)}, v{VWL}, {sr(S_WS)}, s{WSO+27} offen offset:{1024*((g-GT)%4)}{wflags}')
                    if g == GT + 3: em(f's_add_u32 s{WSO+27}, s{WSO+27}, 4096')
                else:
                    assert g == wn[0]; wn[0] += 1
                    em(f'buffer_load_dwordx4 {vr(wreg(g),4)}, v{VWL}, {sr(S_WS)}, s{WSO} offen offset:{1024*(g%4)}{wflags}')
                    if g % 4 == 3: em(f's_add_u32 s{WSO}, s{WSO}, 4096')
                vq.append(g)
            elif kind == 'L':
                em(p[0].replace('offset:pair', 'offset:24').replace(f'v{VF+1} offset:24', f'v{VF+5} offset:24')); lq.append(p[1])
            elif kind == 'C':
                lwait(p[1]); em(p[0])
            elif kind == 'I':
                for x in p: em(x)
            elif kind == 'A':
                em('s_mov_b64 exec, 1')
                if p == 'pair': em(f'ds_add_u32 v{VF+5}, v{VF+2} offset:24')
                else: em(f'ds_add_u32 v{VF+1}, v{VF+2} offset:{p}')
                em('s_mov_b64 exec, -1')
                lq.append(('a', p))
            elif kind == 'Q':
                p, hf = p
                lwait(('pr', p))
                q = ACC['Q'] + 4 * p; t_ = TMP + 4 * (p & 1)
                for i in (2 * hf, 2 * hf + 1): em(f'v_add_f32 v{q+i}, v{q+i}, v{t_+i}')
            elif kind == 'S':
                em(p); vq.append(('s', n))
        def epi(j, pk):
            q = ACC['Q'] + 4 * j
            t = TMP + 8 * (j & 1)
            I = []
            if pk:
                I.append(f'v_pk_mul_f32 {vr(t,2)}, {vr(q,2)}, s[{C2L}:{C2L+1}]')
                I.append(f'v_pk_mul_f32 {vr(t+2,2)}, {vr(q+2,2)}, s[{CNL}:{CNL+1}]')
            else:
                for i in (0, 1): I.append(f'v_mul_f32 v{t+i}, s{C2L}, v{q+i}')
                for i in (2, 3): I.append(f'v_mul_f32 v{t+i}, s{CNL}, v{q+i}')
            I.append(f'v_min_f32 v{t}, s{C60}, v{t}')
            I.append(f'v_min_f32 v{t+1}, s{C60}, v{t+1}')
            for i in (0, 1, 2, 3): I.append(f'v_exp_f32 v{t+i}, v{t+i}')
            if pk:
                I.append(f'v_pk_add_f32 {vr(t+4,2)}, {vr(t,2)}, 1.0 op_sel_hi:[1,0]')
                I.append(f'v_pk_add_f32 {vr(t+6,2)}, {vr(t,2)}, -1.0 op_sel_hi:[1,0]')
                I.append(f'v_pk_fma_f32 {vr(t+4,2)}, {vr(t+4,2)}, {vr(t+2,2)}, {vr(t+4,2)}')
            else:
                for i in (0, 1): I.append(f'v_add_f32 v{t+4+i}, 1.0, v{t+i}')
                for i in (0, 1): I.append(f'v_fma_f32 v{t+4+i}, v{t+4+i}, v{t+2+i}, v{t+4+i}')
            I.append(f'v_rcp_f32 v{t+4}, v{t+4}')
            I.append(f'v_rcp_f32 v{t+5}, v{t+5}')
            if pk:
                I.append('s_nop 0')
                I.append(f'v_pk_mul_f32 {vr(t+6,2)}, {vr(t+6,2)}, {vr(t+4,2)}')
            else:
                for i in (0, 1): I.append(f'v_add_f32 v{t+6+i}, -1.0, v{t+i}')
                for i in (0, 1): I.append(f'v_mul_f32 v{t+6+i}, v{t+6+i}, v{t+4+i}')
            I.append(f'v_cvt_pk_bf16_f32 v{q}, v{t+6}, v{t+7}')
            I.append(f'buffer_store_dword v{q}, v{VOUT + j//3}, {sr(S_OUT)}, 0 offen offset:{1152*(j%3)} {o.oflags}')
            return I
        def cost(x): return 2 if x.startswith(('v_exp', 'v_rcp', 'buffer')) else 1
        e(f's_add_u32 s{WSO+27}, s{WSO}, {GT*1024}')
        while tasks and tasks[0][0] < 0: run(tasks.pop(0), -1)
        inv = {n: v for v, n in vstart.items()}
        lastop = {j: max(n for n in range(N) if ops[n][1] == j) for j in range(9)}
        for n, (g, j) in enumerate(ops):
            if n in inv and o.diag:
                v = inv[n]
                if o.diag == 2 and v in o.marks:
                    kk = o.marks.index(v)
                    e(f's_memtime s[{ST0+2*kk}:{ST0+2*kk+1}]'); dirty[0] = True
                if o.diag in (1, 4) and v == 33: stamp(5); stamp(6); dirty[0] = True
            k = key(n)
            assert k in xreg, (k, n)
            lwait(k); vwait(g)
            acc = S[g][4]
            d = ACC[acc] + 4 * j
            if g == 0: cs = '0'
            elif acc == 'Q' and S[g-1][4] == 'P': cs = vr(ACC['P'] + 4 * j, 4)
            else: cs = vr(d, 4)
            em(f'v_mfma_f32_16x16x32_bf16 {vr(d,4)}, {vr(wreg(g),4)}, {vr(xreg[k],4)}, {cs}')
            if n == lastop[j]: since[j] = 0
            budget = 2
            TC = {'X': 1, 'W': 2, 'L': 2, 'C': 1, 'I': 0, 'A': 1, 'Q': 2, 'S': 2}
            while True:
                ready = [t for t in tasks if t[0] <= n]
                if not ready: break
                t = min(ready, key=lambda t: t[1])
                assert t[1] >= n, ('late', t, n)
                if TC[t[2]] > budget and t[1] > n:
                    fit = [u for u in ready if TC[u[2]] <= budget]
                    if not fit: break
                    t = min(fit, key=lambda t: t[1])
                tasks.remove(t); run(t, n); budget -= TC[t[2]]
            for jj in sorted(since):
                if 8 <= since[jj] < 10**6:
                    fill += epi(jj, False); since[jj] = 10**6
            budget += o.nfill - 2
            while fill and budget >= cost(fill[0]):
                budget -= cost(fill[0]); em(fill.pop(0))
        assert not tasks
        stamp(7)
        while fill: em(fill.pop(0))
        for jj in [jj for jj in sorted(since) if since[jj] < 10**6]:
            if since[jj] < 8: em(f's_nop {8-since[jj]-1}')
            for x in epi(jj, True): em(x)
        stamp(8)
        if o.padto:
            e(f'L_pad{typ}:')
            e('s_memrealtime s[98:99]')
            e('s_waitcnt lgkmcnt(0)')
            e('s_sub_u32 s98, s98, s100')
            e(f's_cmp_lt_u32 s98, {o.padto}')
            e(f's_cbranch_scc1 L_pad{typ}')
        if o.diag == 1:
            e('s_waitcnt vmcnt(0)')
            stamp(9)
            dump(10)
        if o.diag == 2:
            kk = len(o.marks)
            e(f's_memtime s[{ST0+2*kk}:{ST0+2*kk+1}]')
            dump(10)
        e('s_endpgm')
        for tag, off, cnt in slow:
            e(f'L_slow{typ}{tag}:')
            e(f'ds_read_b32 v{VC}, v{VF+5 if off == "pair" else VF+1} offset:{24 if off == "pair" else off}')
            e('s_waitcnt lgkmcnt(0)')
            e(f'v_cmp_ne_u32 vcc, {cnt}, v{VC}')
            e('s_nop 4')
            e(f's_cbranch_vccnz L_slow{typ}{tag}')
            e(f's_branch L_back{typ}{tag}')

    e('.p2align 6')
    e('L_helper:')
    e(f's_setprio {o.hprio}')
    e(f's_sub_u32 s{TW0}, s{WAVE}, 4')
    e(f's_mov_b32 s{TW1}, s{WAVE}')
    e(f's_mov_b32 s{TW2}, 8')
    e(f's_mov_b32 s{PAIR}, s2')
    e(f's_mov_b32 s{MODE}, 0')
    e(f's_mov_b32 s{HAS3}, s{TW0}')
    e(f's_lshl_b32 s{SCRB}, s{TW0}, 12')
    e(f's_add_u32 s{SCRB}, s{SCRB}, {SCR}')
    e(f'v_mov_b32 v10, {CNT}')
    for r in range(12, 16): e(f'v_mov_b32 v{r}, 0')
    e('ds_write_b128 v10, v[12:15]')
    e('ds_write_b128 v10, v[12:15] offset:16')
    e('L_prod:')
    T = [(64, TW0, 2, 3, 0), (96, TW1, 4, 5, 2048), (128, TW2, 6, 7, 16384)]
    c, kp, q, cc, kk, t = 46, 47, 48, 49, 50, 51
    b = TS
    e('v_mov_b32 v19, 4320')
    e('v_and_b32 v23, 3, v1')
    e('v_lshrrev_b32 v24, 3, v1')
    e('v_mul_u32_u24 v24, 576, v24')
    e('v_bfe_u32 v25, v1, 2, 1')
    e('v_mul_u32_u24 v25, 288, v25')
    e('v_add_u32 v24, v24, v25')
    for (vb, sw, vl, vs, so) in T:
        e(f'v_lshl_add_u32 v8, s{sw}, 2, v23')
        e('v_cmp_le_u32 vcc, 18, v8')
        e(f'v_lshl_add_u32 v{vl}, v8, 4, v24')
        e(f'v_add_u32 v9, v{vl}, v19')
        e(f'v_cndmask_b32 v{vl}, v{vl}, v9, vcc')
    e(f's_and_b32 s{c}, s{PAIR}, 15')
    e(f's_lshr_b32 s{kp}, s{PAIR}, 4')
    e(f's_mul_i32 s{b}, s{c}, 165888')
    e(f's_mul_i32 s{t}, s{kp}, 9216')
    e(f's_add_u32 s{b}, s{b}, s{t}')
    e(f's_add_u32 s{b+1}, s{b}, 82944')
    e(f's_mov_b32 s{S_W+2}, 2571264')
    e(f's_mov_b32 s{S_W+3}, 0x20000')
    e(f's_mov_b32 s{S_WO+3}, 0x20000')
    e(f's_cmp_lg_u32 s{c}, 15')
    e(f's_cselect_b32 s{S_WO+2}, 2571264, 0')
    e(f's_mov_b32 m0, s{SCRB}')
    e('s_waitcnt lgkmcnt(0)')
    e(f's_mov_b32 s{S_W}, s6')
    e(f's_and_b32 s{S_W+1}, s7, 0xffff')
    e(f's_mov_b32 s{S_WO}, s6')
    e(f's_and_b32 s{S_WO+1}, s7, 0xffff')
    e(f's_cmp_ge_u32 s{PAIR}, {NPROD}')
    e('s_cbranch_scc1 L_noprod')
    def cond3(lbl):
        e(f's_cmp_lg_u32 s{HAS3}, 0')
        e(f's_cbranch_scc1 {lbl}')
    for ti, (vb, sw, vl, vs, so) in enumerate(T):
        if ti == 2: cond3('L_a3')
        if ti:
            e(f's_add_u32 m0, s{SCRB}, {so}')
            e('s_nop 0')
        e(f'buffer_load_dwordx4 v{vl}, {sr(S_W)}, s{b} offen lds')
        e(f's_add_u32 m0, s{SCRB}, {so+1024}')
        e('s_nop 0')
        e(f'buffer_load_dwordx4 v{vl}, {sr(S_WO)}, s{b+1} offen lds')
    e('L_a3:')
    stamp(1)
    e(f's_cmp_lg_u32 s{WAVE}, 4')
    e('s_cbranch_scc1 L_a4')
    e(f's_load_dword s{TAG}, s[12:13], {NONCE}')
    e('L_a4:')
    if o.b0late:
        e(f's_cmp_lg_u32 s{MODE}, 0')
        e('s_cbranch_scc1 L_a4b')
        e('s_barrier')
        e('L_a4b:')
    srd(e, S_WS, 12, WS_REC)
    srd(e, S_DBG, 10, 256)
    e(f'v_mov_b32 v20, {(256 - 18*2*NSTEP*1024) & 0xffffffff}')
    e(f'v_mov_b32 v26, {2*NSTEP*1024}')
    e('v_bfe_u32 v21, v1, 2, 2')
    e('v_lshlrev_b32 v21, 7, v21')
    e('v_and_b32 v22, 1, v1')
    e('v_lshl_add_u32 v21, v22, 6, v21')
    e('v_bfe_u32 v22, v1, 1, 1')
    e('v_lshl_add_u32 v21, v22, 3, v21')
    e('v_lshrrev_b32 v22, 4, v1')
    e('v_lshl_add_u32 v21, v22, 4, v21')
    e(f'v_add_u32 v21, s{SCRB}, v21')
    e('v_and_b32 v25, 15, v1')
    e('v_lshlrev_b32 v25, 4, v25')
    for (vb, sw, vl, vs, so) in T:
        e(f'v_lshl_add_u32 v8, s{sw}, 2, v22')
        e('v_cmp_le_u32 vcc, 18, v8')
        e(f'v_mad_u32_u24 v{vs}, v8, v26, v25')
        e(f'v_add_u32 v9, v{vs}, v20')
        e(f'v_cndmask_b32 v{vs}, v{vs}, v9, vcc')
    e(f's_lshr_b32 s{q}, s{kp}, 1')
    e(f's_and_b32 s{cc}, s{c}, 7')
    e(f's_lshr_b32 s{kk}, s{c}, 3')
    e(f's_and_b32 s{t}, s{kp}, 1')
    e(f's_cmp_eq_u32 s{kp}, 8')
    e(f's_cselect_b32 s{cc}, s{cc}, s{c}')
    e(f's_cselect_b32 s{kk}, s{kk}, s{t}')
    e(f's_lshl_b32 s{kk}, s{kk}, 9')
    e(f's_add_u32 s{kk}, s{kk}, {WOFF}')
    e(f's_lshl_b32 s{t}, s{q}, 4')
    e(f's_add_u32 s{b+2}, s{t}, s{cc}')
    e(f's_sub_u32 s{b+3}, s{b+2}, s{q}')
    e(f's_cmp_ge_u32 s{q}, 2')
    e(f's_cselect_b32 s{b+4}, 74, 0')
    e(f's_add_u32 s{b+4}, s{b+4}, s{b+2}')
    e(f's_cmp_lt_u32 s{cc}, 2')
    e(f's_cselect_b32 s{t}, 32, 136')
    e(f's_add_u32 s{t}, s{t}, s{cc}')
    e(f's_cmp_eq_u32 s{kp}, 8')
    e(f's_cselect_b32 s{b+4}, s{t}, s{b+4}')
    e(f's_add_u32 s{b+2}, s{b+2}, 34')
    e(f's_add_u32 s{b+3}, s{b+3}, 144')
    for k in (2, 3, 4):
        e(f's_lshl_b32 s{b+k}, s{b+k}, 10')
        e(f's_add_u32 s{b+k}, s{b+k}, s{kk}')
    e(f's_cmp_eq_u32 s{kp}, 8')
    e(f's_cselect_b32 s{t}, 1, 2')
    e(f's_cmp_eq_u32 s{c}, 15')
    e(f's_cselect_b32 s{b+5}, s{t}, 0')
    e('s_waitcnt vmcnt(0) lgkmcnt(0)')
    stamp(2)
    e('v_mov_b32 v27, 0')
    e(f's_cmp_lg_u32 s{WAVE}, 4')
    e('s_cbranch_scc1 L_a5')
    e('v_mov_b32 v12, 4')
    e('s_mov_b64 exec, 1')
    e(f'buffer_load_dword v27, v12, {sr(S_DBG)}, 0 offen sc1')
    e('s_mov_b64 exec, -1')
    e('L_a5:')
    def trreads(vb, so):
        for tap in range(2):
            for half in range(2):
                e(f'ds_read_b64_tr_b16 {vr(vb+4*tap+2*half,2)}, v21 offset:{so+1024*tap+512*half}')
    def st01(vb, vs, n0, n1, tag):
        e(f's_waitcnt lgkmcnt({n0})')
        e(f'buffer_store_dwordx4 {vr(vb,4)}, v{vs}, {sr(S_WS)}, s{b+2} offen sc1')
        e(f's_waitcnt lgkmcnt({n1})')
        e(f's_cmp_eq_u32 s{b+5}, 2')
        e(f's_cbranch_scc1 L_skip{tag}')
        e(f'buffer_store_dwordx4 {vr(vb+4,4)}, v{vs}, {sr(S_WS)}, s{b+3} offen sc1')
        e(f'L_skip{tag}:')
    def stsum(vb, vs):
        for i in range(8):
            e(f'v_lshlrev_b32 v{vb+8+2*i}, 16, v{vb+i}')
            e(f'v_and_b32 v{vb+9+2*i}, s{MASK}, v{vb+i}')
        for i in range(4):
            e(f'v_pk_add_f32 {vr(vb+8+2*i,2)}, {vr(vb+8+2*i,2)}, {vr(vb+16+2*i,2)}')
        for i in range(4):
            e(f'v_cvt_pk_bf16_f32 v{vb+24+i}, v{vb+8+2*i}, v{vb+9+2*i}')
        e(f'buffer_store_dwordx4 {vr(vb+24,4)}, v{vs}, {sr(S_WS)}, s{b+4} offen sc1')
    for tt in T: trreads(tt[0], tt[4])
    st01(T[0][0], T[0][3], 10, 8, 0)
    st01(T[1][0], T[1][3], 6, 4, 1)
    stsum(T[0][0], T[0][3])
    stsum(T[1][0], T[1][3])
    cond3('L_b3')
    st01(T[2][0], T[2][3], 2, 0, 2)
    stsum(T[2][0], T[2][3])
    e('L_b3:')
    e(f's_cmp_eq_u32 s{MODE}, 0')
    e('s_cbranch_scc1 L_b4')
    e('s_waitcnt vmcnt(0) lgkmcnt(0)')
    e(f's_add_u32 s{PAIR}, s{PAIR}, 1')
    e(f's_cmp_lt_u32 s{PAIR}, {NPROD}')
    e('s_cbranch_scc1 L_prod')
    e('s_branch L_go')
    e('L_noprod:')
    if o.b0late: e('s_barrier')
    srd(e, S_WS, 12, WS_REC)
    stamp(1); stamp(2)
    e('L_b4:')
    if not o.b0late: e('s_barrier')
    if o.b0late:
        pass
    stamp(3)
    decode()
    e('v_subrev_u32 v4, 256, v0')
    e('v_min_u32 v4, 251, v4')
    e('v_mul_u32_u24 v3, 3641, v4')
    e('v_lshrrev_b32 v3, 16, v3')
    e('v_mul_u32_u24 v2, 18, v3')
    e('v_sub_u32 v2, v4, v2')
    e(f'v_mul_u32_u24 v3, {R}, v3')
    e(f'v_min_u32 v3, {160-R}, v3')
    e('v_mul_u32_u24 v4, 1152, v3')
    e('v_lshl_add_u32 v4, v2, 4, v4')
    e(f'v_add_u32 v12, s{XB}, v4')
    e('v_mul_u32_u24 v18, 288, v3')
    e('v_lshl_add_u32 v18, v2, 4, v18')
    e(f'v_add_u32 v19, {X_D1}, v18')
    srd(e, S_X, 4, 1152000, add=BOFF)
    e(f's_cmp_ge_u32 s2, {NPROD}')
    e('s_cbranch_scc1 L_noflag')
    e(f'v_mov_b32 v10, {CNT}')
    e(f's_mul_i32 s46, s2, {o.fstride}')
    e('v_mov_b32 v16, s46')
    e('s_mov_b64 exec, 1')
    e(f's_cmp_lg_u32 s{WAVE}, 4')
    e('s_cbranch_scc1 L_nottag')
    e(f's_add_u32 s46, s{TAG}, {TAGINC}')
    e('v_mov_b32 v15, s46')
    e('ds_write_b32 v10, v15 offset:4')
    e('L_nottag:')
    e('s_waitcnt vmcnt(0)')
    stamp(4)
    e('v_cmp_ne_u32 vcc, 0, v27')
    e('v_mov_b32 v13, 1')
    e('v_mov_b32 v14, 0x101')
    e('v_cndmask_b32 v13, v13, v14, vcc')
    e('ds_add_rtn_u32 v14, v10, v13')
    e('ds_read_b32 v15, v10 offset:4')
    e('s_waitcnt lgkmcnt(0)')
    e('v_add_u32 v14, v14, v13')
    e('v_cmp_eq_u32 vcc, 4, v14')
    e('s_and_b64 exec, exec, vcc')
    e('s_cbranch_execz L_notlast')
    e(f'buffer_store_dword v15, v16, {sr(S_WS)}, 0 offen sc1')
    e('L_notlast:')
    e('s_mov_b64 exec, -1')
    e('L_noflag:')
    if o.b0late: e('s_barrier')
    e(f's_setprio {o.hprio2}')
    RAW, ORAW = 64, 120
    EU = [184, 192]
    OU, DT, DO = 200, 208, 216
    xi = [0]
    NL = R + 1
    def eload():
        k = xi[0]
        if k >= NL: return
        a_ = 12
        if k:
            a_ = 13 + (k & 3)
            e(f'v_add_u32 v{a_}, {1152*k}, v12')
        e(f'buffer_load_dwordx4 {vr(RAW+4*k,4)}, v{a_}, {sr(S_X)}, 0 offen')
        xi[0] += 1
    if o.etouch:
        e(f's_cmp_lt_u32 s2, {NPROD}')
        e('s_cbranch_scc1 L_net')
        if o.etouch == 2:
            e(f's_and_b32 s46, s{NB}, 1')
            e(f's_mul_i32 s46, s46, {1152*6}')
            e('v_add_u32 v12, s46, v12')
            for _ in range(7): eload()
            e('v_subrev_u32 v12, s46, v12')
        else:
            for _ in range(NL): eload()
        e('s_waitcnt vmcnt(0)')
        e('L_net:')
        xi[0] = 0
    for _ in range(o.epre): eload()
    e('s_waitcnt lgkmcnt(0)')
    stamp(5)
    if o.dec:
        for _ in range(max(0, o.ein - o.epre)): eload()
        e(f'v_mov_b32 v10, {CNT}')
        e('s_mov_b64 exec, 1')
        e('L_ow:')
        e('ds_read_b32 v11, v10 offset:8')
        e('s_waitcnt lgkmcnt(0)')
        e('v_cmp_ne_u32 vcc, 4, v11')
        e('s_nop 4')
        e('s_cbranch_vccz L_ow2')
        e('s_sleep 1')
        e('s_branch L_ow')
        e('L_ow2:')
        e('s_mov_b64 exec, -1')
    else:
        e('s_barrier')
    stamp(6)
    if not o.dec:
        for _ in range(max(0, o.ein - o.epre)): eload()
    for j in range(R):
        e(f'ds_read_b128 {vr(ORAW+4*j,4)}, v18 offset:{X_O+288*j}')
    def unpack(dst, s_):
        for i in range(4):
            e(f'v_lshlrev_b32 v{dst+2*i}, 16, v{s_+i}')
            e(f'v_and_b32 v{dst+2*i+1}, s{MASK}, v{s_+i}')
    def unpackE(dst, k):
        e(f's_waitcnt vmcnt({xi[0]-1-k})')
        unpack(dst, RAW + 4 * k)
        eload()
    def diff(eu, out):
        if o.nopk:
            for i in range(8): e(f'v_sub_f32 v{DT+i}, v{eu+i}, v{OU+i}')
        else:
          for i in range(4):
            e(f'v_pk_add_f32 {vr(DT+2*i,2)}, {vr(eu+2*i,2)}, {vr(OU+2*i,2)} neg_lo:[0,1] neg_hi:[0,1]')
        for i in range(4):
            e(f'v_cvt_pk_bf16_f32 v{out+i}, v{DT+2*i}, v{DT+2*i+1}')
    unpackE(EU[0], 0)
    e('s_waitcnt lgkmcnt(0)')
    for j in range(R):
        o0 = DO + 8 * (j & 1)
        unpack(OU, ORAW + 4 * j)
        diff(EU[j & 1], o0)
        e(f'ds_write_b128 v18, {vr(o0,4)} offset:{X_D0+288*j}')
        unpackE(EU[(j + 1) & 1], j + 1)
        diff(EU[(j + 1) & 1], o0 + 4)
        e(f'ds_write_b128 v19, {vr(o0+4,4)} offset:{288*j}')
    e('s_waitcnt lgkmcnt(0)')
    stamp(7)
    e('v_mov_b32 v11, 1')
    e('s_mov_b64 exec, 1')
    e('ds_add_u32 v10, v11 offset:16')
    e('s_mov_b64 exec, -1')
    if o.diag == 1:
        stamp(8); stamp(9)
        dump(10)
    e('L_end:')
    e('s_endpgm')
    e('.section .rodata,"a"')
    e('.p2align 6')
    e(f'.amdhsa_kernel {KN}')
    for x in ['next_free_vgpr 256', 'next_free_sgpr 102', 'accum_offset 256', 'group_segment_fixed_size 0', 'kernarg_size 40',
              'user_sgpr_count 2', 'user_sgpr_kernarg_segment_ptr 1', 'system_sgpr_workgroup_id_x 1']:
        e('  .amdhsa_' + x)
    e('.end_amdhsa_kernel')
    n = haz.check(e.L)
    if n: print(f'{n} hazards', file=sys.stderr)
    return f'; @launch grid=({NWG},1,1) block=(512,1,1) lds={LDS_BYTES}\n' + e.text()

def opts(argv=None):
    ap = argparse.ArgumentParser()
    ap.add_argument('-o', default='k.s')
    for nm, d in [('diag', 0), ('pf', 7), ('wsc1', 0), ('nfill', 2), ('fstride', 128), ('sleep', 0), ('maxpoll', 3000), ('nopoll', 0),
                  ('hprio', 3), ('hprio2', 0), ('mprio', 2), ('epre', 0), ('ein', 4), ('vbd', 33), ('nopk', 1), ('padto', 0), ('npdelay', 0), ('opre', 2), ('etouch', 2), ('orev', 1), ('b0late', 1), ('dec', 1), ('tail', 1), ('xla', 9), ('hold', 1)]:
        ap.add_argument('--' + nm, type=int, default=d)
    ap.add_argument('--oflags', default='')
    ap.add_argument('--marks', default='0,4,8,12,16,24,33,47,58')
    o = ap.parse_args(argv)
    o.marks = [int(x) for x in o.marks.split(',')]
    return o

if __name__ == '__main__':
    o = opts()
    open(o.o, 'w').write(gen(o))
```

```python
import re, sys, argparse
import haz

KN = 'standalone__autoregressive_conv_wavernn__speech_kernel'
NWG = 252
NPROD = 144
ARR = 160 * 288
X_D0, X_O, X_D1 = 0, ARR, 2 * ARR
CNT = 3 * ARR
SCR = CNT + 64
LDS_BYTES = SCR + 18432
NSTEP = 106
WOFF = 0x100000
NONCE = 0x10000
DIAG = 0x800000
WS_REC = 0x1000000
TAGINC = 0x9E3779B9
R = 12

class Em:
    def __init__(self): self.L = []
    def __call__(self, s): self.L.append(s)
    def text(self): return '\n'.join(self.L) + '\n'

def vr(a, n=1): return f'v{a}' if n == 1 else f'v[{a}:{a+n-1}]'
def sr(a, n=4): return f's[{a}:{a+n-1}]'

def streams():
    out = []
    for typ in (0, 1):
        S = []
        pid = [0]
        def add(arr, chunk, cs, acc):
            for c in cs: S.append((pid[0], arr, chunk, c, acc))
            pid[0] += 1
        if typ == 0:
            add('O', 0, range(16), 'P'); add('O', 1, range(16), 'P'); add('O', 'rem', range(0, 2), 'P')
            for q in range(4): add('D', q, range(16), 'Q')
            add('D', 'rem', range(8), 'Q')
        else:
            add('O', 2, range(16), 'P'); add('O', 3, range(16), 'P'); add('O', 'rem', range(2, 8), 'P')
            for q in range(4): add('D', q, range(15), 'Q')
            add('D', 'rem', range(8), 'Q')
        assert len(S) == NSTEP
        out.append(S)
    return out

S_X, S_W, S_WO, S_WS, S_OUT, S_DBG = 20, 24, 28, 32, 36, 40
WAVE, NB, BAT, PAR, MB, BOFF = 14, 15, 16, 17, 18, 19
PAIR0 = 3
XB = 52
MASK = 53
TW0, TW1, TW2, PAIR, HAS3, MODE, SCRB, TAG, LAST, NPOLL = 44, 45, 54, 55, 56, 57, 58, 59, 60, 61
TS = 62
TYP, WSO = 68, 69
C2L, CNL, C60 = 90, 92, 94
ST0 = 70

def srd(e, d, ptr, rec, add=None):
    if add is None:
        e(f's_mov_b32 s{d}, s{ptr}')
        e(f's_and_b32 s{d+1}, s{ptr+1}, 0xffff')
    else:
        e(f's_add_u32 s{d}, s{ptr}, s{add}')
        e(f's_addc_u32 s{d+1}, s{ptr+1}, 0')
        e(f's_and_b32 s{d+1}, s{d+1}, 0xffff')
    e(f's_mov_b32 s{d+2}, {rec}')
    e(f's_mov_b32 s{d+3}, 0x20000')

def gen(o):
    e = Em()
    def stamp(k, lvl=1):
        if o.diag == lvl or (o.diag == 4 and lvl == 1): e(f's_memrealtime s[{ST0+2*k}:{ST0+2*k+1}]')
    def dump(nst):
        e('s_waitcnt lgkmcnt(0)')
        e('v_mov_b32 v250, 0')
        for k in range(nst): e(f'v_writelane_b32 v250, s{ST0+2*k}, {k}')
        e(f'v_writelane_b32 v250, s{NPOLL}, 13')
        e(f'v_writelane_b32 v250, s{PAIR0}, 14')
        e('s_getreg_b32 s46, hwreg(HW_REG_XCC_ID)')
        e('v_writelane_b32 v250, s46, 15')
        e(f's_lshl_b32 s46, s2, 3'); e(f's_add_u32 s46, s46, s{WAVE}'); e('s_lshl_b32 s46, s46, 6'); e(f's_add_u32 s46, s46, {DIAG}')
        e('v_lshl_add_u32 v251, v1, 2, s46')
        e('s_mov_b64 exec, 0xffff')
        e(f'buffer_store_dword v250, v251, {sr(S_WS)}, 0 offen')
        e('s_mov_b64 exec, -1')

    e('.amdgcn_target "amdgcn-amd-amdhsa--gfx950"')
    e('.text')
    e(f'.globl {KN}')
    e('.p2align 8')
    e(f'.type {KN},@function')
    e(f'{KN}:')
    e(f's_cmp_ge_u32 s2, {NWG}')
    e('s_cbranch_scc1 L_end')
    stamp(0)
    if o.padto: e('s_memrealtime s[100:101]')
    e('s_load_dwordx4 s[4:7], s[0:1], 0')
    e('s_load_dwordx4 s[8:11], s[0:1], 16')
    e('s_load_dwordx2 s[12:13], s[0:1], 32')
    e('v_lshrrev_b32 v2, 6, v0')
    e('v_and_b32 v1, 63, v0')
    e(f'v_readfirstlane_b32 s{WAVE}, v2')
    def decode():
        e('s_and_b32 s44, s2, 7')
        e('s_lshr_b32 s45, s2, 3')
        e('s_mul_i32 s46, s44, 31')
        e('s_min_u32 s44, s44, 4')
        e('s_add_u32 s46, s46, s44')
        e('s_add_u32 s46, s46, s45')
        e('s_mul_hi_u32 s47, s46, 68174085')
        e('s_mul_i32 s48, s47, 63')
        e('s_sub_u32 s48, s46, s48')
        e(f's_mul_hi_u32 s{NB}, s48, 613566757')
        e(f's_mul_i32 s49, s{NB}, 7')
        e('s_sub_u32 s49, s48, s49')
        e('s_mul_i32 s47, s47, 7')
        e('s_add_u32 s47, s47, s49')
        e(f's_and_b32 s{PAR}, s47, 1')
        e('s_lshr_b32 s47, s47, 1')
        e('s_cmp_ge_u32 s47, 7')
        e(f's_cselect_b32 s{BOFF}, 1152000, 0')
        e('s_cselect_b32 s48, 7, 0')
        e(f's_sub_u32 s{MB}, s47, s48')
        e(f's_mul_i32 s{XB}, s{MB}, 576')
        e(f's_add_u32 s{XB}, s{XB}, s{PAR}')
        e(f's_sub_u32 s{XB}, s{XB}, 60')
        e(f's_mul_i32 s{XB}, s{XB}, 288')
    e(f's_mov_b32 s{MASK}, 0xffff0000')
    e(f's_mov_b32 s{NPOLL}, 0')
    cnts = [int(x) for x in o.pmap.split(',')]
    assert sum(cnts) == NPROD
    if cnts == [18] * 8:
        e(f's_mov_b32 s{PAIR0}, s2')
    else:
        base = [sum(cnts[:i]) for i in range(8)]
        pk = lambda L: sum(v << (8 * i) for i, v in enumerate(L))
        e('s_and_b32 s44, s2, 7')
        e('s_lshl_b32 s44, s44, 3')
        e(f's_mov_b32 s46, {pk(cnts[:4])}'); e(f's_mov_b32 s47, {pk(cnts[4:])}')
        e(f's_mov_b32 s48, {pk(base[:4])}'); e(f's_mov_b32 s49, {pk(base[4:])}')
        e('s_lshr_b64 s[46:47], s[46:47], s44')
        e('s_lshr_b64 s[48:49], s[48:49], s44')
        e('s_and_b32 s46, s46, 0xff')
        e('s_and_b32 s48, s48, 0xff')
        e('s_lshr_b32 s45, s2, 3')
        e('s_add_u32 s48, s48, s45')
        e('s_cmp_lt_u32 s45, s46')
        e(f's_cselect_b32 s{PAIR0}, s48, 255')
    e(f's_cmp_ge_u32 s{WAVE}, 4')
    e('s_cbranch_scc1 L_helper')
    decode()

    VXO, VXOR, VXD, VXDR, VWL, VEX, VEXP, VOUT = 30, 31, 32, 33, 34, 35, 36, 37
    VF = 40
    VA = 48
    VCL = 60
    e('v_mul_u32_u24 v3, 3641, v0')
    e('v_lshrrev_b32 v3, 16, v3')
    e('v_mul_u32_u24 v2, 18, v3')
    e('v_sub_u32 v2, v0, v2')
    e('v_mul_u32_u24 v3, 1152, v3')
    e('v_lshl_add_u32 v3, v2, 4, v3')
    e(f's_add_u32 s46, s{XB}, 576')
    e(f'v_add_u32 v{VA}, s46, v3')
    e('v_mov_b32 v5, 16192')
    e('v_mov_b32 v6, 17056')
    for k in range(1, 12):
        e('v_cmp_le_u32 vcc, 14, v2')
        e('v_add_u32 v3, 4, v2')
        e('v_subrev_u32 v4, 14, v2')
        e('v_cndmask_b32 v7, v5, v6, vcc')
        e('v_cndmask_b32 v2, v3, v4, vcc')
        e(f'v_add_u32 v{VA+k}, v{VA+k-1}, v7')
    e('v_and_b32 v2, 15, v1')
    e('v_lshrrev_b32 v3, 4, v1')
    e('v_subrev_u32 v5, 4, v2')
    e('v_add_u32 v6, 8, v2')
    e('v_cmp_gt_u32 vcc, 4, v2')
    e('v_cmp_le_u32 s[46:47], 12, v2')
    e(f's_and_b32 s{TYP}, s{WAVE}, 1')
    e(f's_lshr_b32 s48, s{WAVE}, 1')
    e('v_cndmask_b32 v5, v5, v6, vcc')
    e('v_cndmask_b32 v5, v5, v2, s[46:47]')
    e('v_mul_u32_u24 v5, 9, v5')
    e('v_mul_u32_u24 v4, 288, v5')
    e('v_lshl_add_u32 v6, v3, 4, v4')
    e('v_and_b32 v7, 1, v3')
    e('v_lshl_add_u32 v7, v7, 4, v4')
    e('v_lshrrev_b32 v8, 1, v3')
    e('v_mul_u32_u24 v8, 2304, v8')
    e('v_add_u32 v7, v7, v8')
    e('v_add_u32 v7, 256, v7')
    e(f's_mul_i32 s49, s{TYP}, {X_D1}')
    e(f'v_add_u32 v{VXO}, {X_O}, v6')
    e(f'v_add_u32 v{VXOR}, {X_O}, v7')
    e(f'v_add_u32 v{VXD}, s49, v6')
    e(f'v_add_u32 v{VXDR}, s49, v7')
    e('v_lshlrev_b32 v6, 4, v1')
    e(f's_mul_i32 s49, s{WAVE}, 9216')
    e(f's_add_u32 s49, s49, {X_O}')
    e(f'v_add_u32 v{VEX}, s49, v6')
    e(f's_xor_b32 s49, s{WAVE}, 1')
    e('s_mul_i32 s49, s49, 9216')
    e(f's_add_u32 s49, s49, {X_O}')
    e(f'v_add_u32 v{VEXP}, s49, v6')
    e('v_and_b32 v8, 0x39, v1')
    e('v_bfe_u32 v9, v1, 1, 1')
    e('v_lshl_add_u32 v8, v9, 2, v8')
    e('v_bfe_u32 v9, v1, 2, 1')
    e('v_lshl_add_u32 v8, v9, 1, v8')
    e(f'v_lshlrev_b32 v{VWL}, 4, v8')
    e(f's_mul_i32 s49, s{TYP}, 576')
    e(f's_add_u32 s49, s49, s{XB}')
    e(f's_add_u32 s49, s49, {60*288}')
    e(f's_lshl_b32 s50, s{NB}, 5')
    e('s_add_u32 s49, s49, s50')
    e('s_lshl_b32 s50, s48, 4')
    e('s_add_u32 s49, s49, s50')
    e('v_mul_u32_u24 v8, 1152, v5')
    e('v_lshl_add_u32 v8, v3, 2, v8')
    e(f'v_add_u32 v{VOUT}, s49, v8')
    e(f'v_add_u32 v{VOUT+1}, 3456, v{VOUT}')
    e(f'v_add_u32 v{VOUT+2}, 6912, v{VOUT}')
    e(f's_lshl_b32 s49, s{NB}, 1')
    e('s_add_u32 s49, s49, s48')
    e('s_lshl_b32 s49, s49, 1')
    e(f's_add_u32 s49, s49, s{TYP}')
    e(f's_mul_i32 s{WSO}, s49, {NSTEP*1024}')
    e(f's_add_u32 s{WSO}, s{WSO}, {WOFF}')
    e(f's_mov_b32 s{C2L}, 0x4038aa3b'); e(f's_mov_b32 s{C2L+1}, 0x4038aa3b')
    e(f's_mov_b32 s{CNL}, 0xbfb8aa3b'); e(f's_mov_b32 s{CNL+1}, 0xbfb8aa3b')
    e(f's_mov_b32 s{C60}, 0x42700000')
    e(f'v_min_u32 v{VF}, 35, v1')
    e(f's_mul_i32 s46, s{WAVE}, 36')
    e(f'v_add_u32 v{VF}, s46, v{VF}')
    e(f'v_mul_u32_u24 v{VF}, {o.fstride}, v{VF}')
    e(f's_lshl_b32 s50, s{WAVE}, 10')
    e(f's_add_u32 s50, s50, {X_O}')
    e(f's_add_u32 s51, s50, {4096*11}')
    e('s_movk_i32 s49, 4096')
    if o.orev:
        e(f's_bitcmp0_b32 s{NB}, 0')
        e('s_cbranch_scc1 L_fwd')
        for k in range(5): e(f'v_swap_b32 v{VA+k}, v{VA+10-k}')
        e(f's_add_u32 s50, s50, {4096*10}')
        e('s_movk_i32 s49, -4096')
        e('L_fwd:')
    e(f's_or_b32 s46, s2, s{WAVE}')
    e('v_or_b32 v2, s46, v1')
    e('v_cmp_eq_u32 vcc, 0, v2')
    e(f'v_mov_b32 v{VCL}, -16')
    e(f'v_mov_b32 v{VCL+1}, -16')
    e(f'v_mov_b32 v3, {NONCE}')
    e(f'v_cndmask_b32 v{VCL}, v{VCL}, 4, vcc')
    e(f'v_cndmask_b32 v{VCL+1}, v{VCL+1}, v3, vcc')
    e('s_waitcnt lgkmcnt(0)')
    e(f's_load_dword s{TAG}, s[12:13], {NONCE}')
    srd(e, S_X, 4, 1152000, add=BOFF)
    srd(e, S_WS, 12, WS_REC)
    srd(e, S_OUT, 8, 1152000, add=BOFF)
    srd(e, S_DBG, 10, 256)
    def odma(k):
        e(f's_mov_b32 m0, s{51 if k == 11 else 50}')
        e('s_add_u32 s50, s50, s49')
        e(f'buffer_load_dwordx4 v{VA+k}, {sr(S_X)}, 0 offen lds')
    if o.b0late: e('s_barrier')
    if o.npdelay:
        e(f's_cmp_lt_u32 s{PAIR0}, {NPROD}')
        e('s_cbranch_scc1 L_nd')
        e('s_waitcnt lgkmcnt(0)')
        e('L_nd:')
    for k in range(o.opre): odma(k)
    e('s_barrier')
    stamp(1)
    for k in range(o.opre, 12):
        if k == 11:
            e(f's_cmp_lg_u32 s{WAVE}, 0')
            e('s_cbranch_scc1 L_o11')
        odma(k)
    e('L_o11:')
    e(f'v_mov_b32 v{VF+1}, {CNT}')
    e(f'v_mov_b32 v{VF+2}, 1')
    e(f's_lshr_b32 s46, s{WAVE}, 1')
    e('s_lshl_b32 s46, s46, 2')
    e(f'v_add_u32 v{VF+5}, s46, v{VF+1}')
    e('s_waitcnt vmcnt(0) lgkmcnt(0)')
    stamp(2)
    if o.dec:
        e('s_mov_b64 exec, 1')
        e(f'ds_add_u32 v{VF+1}, v{VF+2} offset:8')
        e('s_mov_b64 exec, -1')
    e(f's_add_u32 s{TAG}, s{TAG}, {TAGINC}')
    e(f'v_mov_b32 v{VF+3}, s{TAG}')
    if o.nopoll: e('s_branch L_go')
    e('L_poll:')
    e(f'buffer_load_dword v{VF+4}, v{VF}, {sr(S_WS)}, 0 offen sc1')
    e(f's_add_u32 s{NPOLL}, s{NPOLL}, 1')
    e('s_waitcnt vmcnt(0)')
    e(f'v_cmp_ne_u32 vcc, v{VF+3}, v{VF+4}')
    e('s_nop 4')
    e('s_cbranch_vccz L_go')
    if o.sleep: e(f's_sleep {o.sleep}')
    e(f's_cmp_lt_u32 s{NPOLL}, {o.maxpoll}')
    e('s_cbranch_scc1 L_poll')
    e(f's_mov_b32 s{MODE}, 1')
    e(f's_mov_b32 s{HAS3}, 1')
    e(f's_lshr_b32 s{TW0}, s{NB}, 1')
    e(f's_add_u32 s{TW1}, s{NB}, 9')
    e(f's_lshr_b32 s{TW1}, s{TW1}, 1')
    e(f's_mov_b32 s{TW2}, 8')
    e(f's_mov_b32 s{PAIR}, 0')
    e(f's_lshl_b32 s{SCRB}, s{WAVE}, 12')
    e(f's_add_u32 s{SCRB}, s{SCRB}, {SCR}')
    e('s_branch L_prod')
    e('L_go:')
    stamp(3)
    if o.dec:
        e('s_mov_b64 exec, 1')
        e(f'ds_add_u32 v{VF+1}, v{VF+2} offset:12')
        e('L_gw:')
        e(f'ds_read_b32 v{VF+4}, v{VF+1} offset:12')
        e('s_waitcnt lgkmcnt(0)')
        e(f'v_cmp_ne_u32 vcc, 4, v{VF+4}')
        e('s_nop 4')
        e('s_cbranch_vccnz L_gw')
        e('s_mov_b64 exec, -1')
    else:
        e('s_barrier')
    stamp(4)
    e(f's_setprio {o.mprio}')
    e(f's_cmp_eq_u32 s{TYP}, 1')
    e('s_cbranch_scc1 L_typeB')

    ACC = {'P': 64, 'Q': 100}
    WR, TMP = 136, 224
    XRING = [200 + 4 * i for i in range(6)]
    XWIN = [4 + 4 * i for i in range(6)] + [240 + 4 * i for i in range(4)]
    VC = 28
    PF = o.pf
    GT = 98
    wflags = ' sc1' if o.wsc1 else ''
    def wreg(g):
        return ACC['P'] + 4 * (g - GT) if (o.tail and g >= GT) else WR + 4 * (g % 16)
    for typ, S in enumerate(streams()):
        if typ == 1: e('.p2align 6'); e('L_typeB:')
        ops = []
        vstart = {}
        lastv = GT - 1 if o.tail else NSTEP + 7
        for v in range(lastv + 1):
            vstart[v] = len(ops)
            for j in range(8, -1, -1):
                if 0 <= v - j < NSTEP: ops.append((v - j, j))
        ntail = len(ops)
        if o.tail:
            for j in range(9):
                for g in range(GT - j, NSTEP): ops.append((g, j))
        assert len(ops) == NSTEP * 9 and len(set(ops)) == len(ops)
        N = len(ops)
        def key(n):
            g, j = ops[n]
            pid, arr, ch, c, acc = S[g]
            k = (pid, arr, ch, c + j)
            if n >= ntail and g < GT: k = k + ((n,) if not o.hold else ('h',))
            return k
        first, last = {}, {}
        for n in range(N):
            first.setdefault(key(n), n); last[key(n)] = n
        wfirst, wlast = {}, {}
        for n, (g, j) in enumerate(ops):
            wfirst.setdefault(g, n); wlast[g] = n
        tasks = []
        for k, n0 in first.items():
            win = o.tail and k[2] == 'rem' and k[1] == 'D'
            la = o.xla if n0 < ntail else 6
            if win: la = 40 if k[3] < 8 else 12
            tasks.append([n0 - la, n0 - 1, 'X', k])
        for g in range(NSTEP):
            if o.tail and g >= GT: rel = vstart[76 + 2 * (g - GT)] + 3
            elif g < PF: rel = -100 + g
            else: rel = vstart[g - PF] + (0 if g < 16 else 0)
            if g >= 16 and not (o.tail and g >= GT): rel = max(rel, wlast[g - 16])
            tasks.append([rel, wfirst[g] - 1, 'W', g])
        def at(v, off=0): return vstart[v] + off
        firstD = min(n for n in range(N) if S[ops[n][0]][1] == 'D')
        lastO = max(n for n in range(N) if S[ops[n][0]][1] == 'O')
        lastP = {j: max(n for n in range(N) if ops[n][1] == j and S[ops[n][0]][4] == 'P') for j in range(9)}
        slow = []
        def check(v, off, cnt, tag):
            tasks.append([at(v - 1, 3), at(v - 1, 8), 'L', (f'ds_read_b32 v{VC}, v{VF+1} offset:{off}', ('c', tag))])
            tasks.append([at(v, 0), at(v, 1), 'C', (f'v_cmp_ne_u32 vcc, {cnt}, v{VC}', ('c', tag))])
            tasks.append([at(v, 6), at(v, 7), 'I', [f's_cbranch_vccnz L_slow{typ}{tag}', f'L_back{typ}{tag}:']])
            slow.append((tag, off, cnt))
            return at(v, 8)
        def add1(pos, off):
            tasks.append([pos, pos + 4, 'A', off])
        vD = [v for v in vstart if vstart[v] <= firstD - o.xla][-1] - 1
        okD = check(vD, 16, 4, 'D')
        assert okD <= firstD - o.xla
        add1(lastO, 20)
        VP = 47
        okR = check(VP, 20, 4, 'R')
        for j in range(9):
            assert lastP[j] + 12 < at(VP + 1 + j, 2)
            tasks.append([at(VP + 1 + j, 2), at(VP + 1 + j, 8), 'L', (f'ds_write_b128 v{VEX}, {vr(ACC["P"]+4*j,4)} offset:{1024*j}', ('pw', j))])
        tasks.append([at(VP + 10, 0), at(VP + 10, 4), 'A', 'pair'])
        VQ = VP + 13
        okP = check(VQ, 'pair', 2, 'P')
        for j in range(9):
            tasks.append([at(VQ + 1 + j, 2), at(VQ + 1 + j, 8), 'L', (f'ds_read_b128 {vr(TMP+4*(j&1),4)}, v{VEXP} offset:{1024*j}', ('pr', j))])
            v = VQ + 2 + j
            pos = at(v, 8 - (j + 2) - 1) if j <= 6 else at(v, 8 - (j - 7) - 1)
            sh = 1 if j >= 7 else 0
            tasks.append([pos - 1 + sh, pos - 1 + sh, 'Q', (j, 0)])
            tasks.append([pos + sh, pos + sh, 'Q', (j, 1)])
        if typ == 0:
            tasks.append([at(72, 4), at(72, 8), 'S', f'buffer_store_dword v{VCL+1}, v{VCL}, {sr(S_DBG)}, 0 offen sc1'])
            tasks.append([at(92, 4), at(92, 8), 'S', f'buffer_store_dword v{VF+3}, v{VCL+1}, {sr(S_WS)}, 0 offen sc1'])
        tasks.sort(key=lambda t: (t[0], t[1]))
        vq, lq = [], []
        dirty = [False]
        xreg, busy = {}, {}
        wn = [0]
        since = {}
        fill = []
        def em(x):
            e(x)
            if not x.endswith(':'):
                for jj in since: since[jj] += 1
        def lwait(tag):
            if tag not in lq: return
            i = lq.index(tag)
            em(f's_waitcnt lgkmcnt({0 if dirty[0] else len(lq)-1-i})')
            if dirty[0]: lq.clear(); dirty[0] = False
            else: del lq[:i + 1]
        def vwait(g):
            if g not in vq: return
            i = vq.index(g)
            em(f's_waitcnt vmcnt({len(vq)-1-i})')
            del vq[:i + 1]
        def run(t, n):
            kind, p = t[2], t[3]
            if kind == 'X':
                pool = XWIN if (o.tail and p[2] == 'rem' and p[1] == 'D') else XRING
                if p[-1] == 'h':
                    pool = [WR + 4 * (g % 16) for g in range(GT - 16, GT - 8)]
                    for g in range(GT - 16, GT - 8): busy.setdefault(WR + 4 * (g % 16), wlast[g])
                r = [x for x in pool if busy.get(x, -1) <= n]
                assert r, ('no x register', p, n)
                r = min(r, key=lambda x: busy.get(x, -1))
                busy[r] = last[p]; xreg[p] = r
                arr, ch, s_ = p[1], p[2], p[3]
                if ch == 'rem': em(f'ds_read_b128 {vr(r,4)}, v{VXOR if arr == "O" else VXDR} offset:{288*s_}')
                else: em(f'ds_read_b128 {vr(r,4)}, v{VXO if arr == "O" else VXD} offset:{64*ch+288*s_}')
                lq.append(p)
            elif kind == 'W':
                g = p
                if o.tail and g >= GT:
                    em(f'buffer_load_dwordx4 {vr(wreg(g),4)}, v{VWL}, {sr(S_WS)}, s{WSO+27} offen offset:{1024*((g-GT)%4)}{wflags}')
                    if g == GT + 3: em(f's_add_u32 s{WSO+27}, s{WSO+27}, 4096')
                else:
                    assert g == wn[0]; wn[0] += 1
                    em(f'buffer_load_dwordx4 {vr(wreg(g),4)}, v{VWL}, {sr(S_WS)}, s{WSO} offen offset:{1024*(g%4)}{wflags}')
                    if g % 4 == 3: em(f's_add_u32 s{WSO}, s{WSO}, 4096')
                vq.append(g)
            elif kind == 'L':
                em(p[0].replace('offset:pair', 'offset:24').replace(f'v{VF+1} offset:24', f'v{VF+5} offset:24')); lq.append(p[1])
            elif kind == 'C':
                lwait(p[1]); em(p[0])
            elif kind == 'I':
                for x in p: em(x)
            elif kind == 'A':
                em('s_mov_b64 exec, 1')
                if p == 'pair': em(f'ds_add_u32 v{VF+5}, v{VF+2} offset:24')
                else: em(f'ds_add_u32 v{VF+1}, v{VF+2} offset:{p}')
                em('s_mov_b64 exec, -1')
                lq.append(('a', p))
            elif kind == 'Q':
                p, hf = p
                lwait(('pr', p))
                q = ACC['Q'] + 4 * p; t_ = TMP + 4 * (p & 1)
                for i in (2 * hf, 2 * hf + 1): em(f'v_add_f32 v{q+i}, v{q+i}, v{t_+i}')
            elif kind == 'S':
                em(p); vq.append(('s', n))
        def epi(j, pk):
            q = ACC['Q'] + 4 * j
            t = TMP + 8 * (j & 1)
            I = []
            if pk:
                I.append(f'v_pk_mul_f32 {vr(t,2)}, {vr(q,2)}, s[{C2L}:{C2L+1}]')
                I.append(f'v_pk_mul_f32 {vr(t+2,2)}, {vr(q+2,2)}, s[{CNL}:{CNL+1}]')
            else:
                for i in (0, 1): I.append(f'v_mul_f32 v{t+i}, s{C2L}, v{q+i}')
                for i in (2, 3): I.append(f'v_mul_f32 v{t+i}, s{CNL}, v{q+i}')
            I.append(f'v_min_f32 v{t}, s{C60}, v{t}')
            I.append(f'v_min_f32 v{t+1}, s{C60}, v{t+1}')
            for i in (0, 1, 2, 3): I.append(f'v_exp_f32 v{t+i}, v{t+i}')
            if pk:
                I.append(f'v_pk_add_f32 {vr(t+4,2)}, {vr(t,2)}, 1.0 op_sel_hi:[1,0]')
                I.append(f'v_pk_add_f32 {vr(t+6,2)}, {vr(t,2)}, -1.0 op_sel_hi:[1,0]')
                I.append(f'v_pk_fma_f32 {vr(t+4,2)}, {vr(t+4,2)}, {vr(t+2,2)}, {vr(t+4,2)}')
            else:
                for i in (0, 1): I.append(f'v_add_f32 v{t+4+i}, 1.0, v{t+i}')
                for i in (0, 1): I.append(f'v_fma_f32 v{t+4+i}, v{t+4+i}, v{t+2+i}, v{t+4+i}')
            I.append(f'v_rcp_f32 v{t+4}, v{t+4}')
            I.append(f'v_rcp_f32 v{t+5}, v{t+5}')
            if pk:
                I.append('s_nop 0')
                I.append(f'v_pk_mul_f32 {vr(t+6,2)}, {vr(t+6,2)}, {vr(t+4,2)}')
            else:
                for i in (0, 1): I.append(f'v_add_f32 v{t+6+i}, -1.0, v{t+i}')
                for i in (0, 1): I.append(f'v_mul_f32 v{t+6+i}, v{t+6+i}, v{t+4+i}')
            I.append(f'v_cvt_pk_bf16_f32 v{q}, v{t+6}, v{t+7}')
            I.append(f'buffer_store_dword v{q}, v{VOUT + j//3}, {sr(S_OUT)}, 0 offen offset:{1152*(j%3)} {o.oflags}')
            return I
        def cost(x): return 2 if x.startswith(('v_exp', 'v_rcp', 'buffer')) else 1
        e(f's_add_u32 s{WSO+27}, s{WSO}, {GT*1024}')
        while tasks and tasks[0][0] < 0: run(tasks.pop(0), -1)
        inv = {n: v for v, n in vstart.items()}
        lastop = {j: max(n for n in range(N) if ops[n][1] == j) for j in range(9)}
        for n, (g, j) in enumerate(ops):
            if n in inv and o.diag:
                v = inv[n]
                if o.diag == 2 and v in o.marks:
                    kk = o.marks.index(v)
                    e(f's_memtime s[{ST0+2*kk}:{ST0+2*kk+1}]'); dirty[0] = True
                if o.diag in (1, 4) and v == 33: stamp(5); stamp(6); dirty[0] = True
            k = key(n)
            assert k in xreg, (k, n)
            lwait(k); vwait(g)
            acc = S[g][4]
            d = ACC[acc] + 4 * j
            if g == 0: cs = '0'
            elif acc == 'Q' and S[g-1][4] == 'P': cs = vr(ACC['P'] + 4 * j, 4)
            else: cs = vr(d, 4)
            em(f'v_mfma_f32_16x16x32_bf16 {vr(d,4)}, {vr(wreg(g),4)}, {vr(xreg[k],4)}, {cs}')
            if n == lastop[j]: since[j] = 0
            budget = 2
            TC = {'X': 1, 'W': 2, 'L': 2, 'C': 1, 'I': 0, 'A': 1, 'Q': 2, 'S': 2}
            while True:
                ready = [t for t in tasks if t[0] <= n]
                if not ready: break
                t = min(ready, key=lambda t: t[1])
                assert t[1] >= n, ('late', t, n)
                if TC[t[2]] > budget and t[1] > n:
                    fit = [u for u in ready if TC[u[2]] <= budget]
                    if not fit: break
                    t = min(fit, key=lambda t: t[1])
                tasks.remove(t); run(t, n); budget -= TC[t[2]]
            for jj in sorted(since):
                if 8 <= since[jj] < 10**6:
                    fill += epi(jj, False); since[jj] = 10**6
            budget += o.nfill - 2
            while fill and budget >= cost(fill[0]):
                budget -= cost(fill[0]); em(fill.pop(0))
        assert not tasks
        stamp(7)
        while fill: em(fill.pop(0))
        for jj in [jj for jj in sorted(since) if since[jj] < 10**6]:
            if since[jj] < 8: em(f's_nop {8-since[jj]-1}')
            for x in epi(jj, True): em(x)
        stamp(8)
        if o.padto:
            e(f'L_pad{typ}:')
            e('s_memrealtime s[98:99]')
            e('s_waitcnt lgkmcnt(0)')
            e('s_sub_u32 s98, s98, s100')
            e(f's_cmp_lt_u32 s98, {o.padto}')
            e(f's_cbranch_scc1 L_pad{typ}')
        if o.diag == 1:
            e('s_waitcnt vmcnt(0)')
            stamp(9)
            dump(10)
        if o.diag == 2:
            kk = len(o.marks)
            e(f's_memtime s[{ST0+2*kk}:{ST0+2*kk+1}]')
            dump(10)
        e('s_endpgm')
        for tag, off, cnt in slow:
            e(f'L_slow{typ}{tag}:')
            e(f'ds_read_b32 v{VC}, v{VF+5 if off == "pair" else VF+1} offset:{24 if off == "pair" else off}')
            e('s_waitcnt lgkmcnt(0)')
            e(f'v_cmp_ne_u32 vcc, {cnt}, v{VC}')
            e('s_nop 4')
            e(f's_cbranch_vccnz L_slow{typ}{tag}')
            e(f's_branch L_back{typ}{tag}')

    e('.p2align 6')
    e('L_helper:')
    e(f's_setprio {o.hprio}')
    e(f's_sub_u32 s{TW0}, s{WAVE}, 4')
    e(f's_mov_b32 s{TW1}, s{WAVE}')
    e(f's_mov_b32 s{TW2}, 8')
    e(f's_mov_b32 s{PAIR}, s{PAIR0}')
    e(f's_mov_b32 s{MODE}, 0')
    e(f's_mov_b32 s{HAS3}, s{TW0}')
    e(f's_lshl_b32 s{SCRB}, s{TW0}, 12')
    e(f's_add_u32 s{SCRB}, s{SCRB}, {SCR}')
    e(f'v_mov_b32 v10, {CNT}')
    for r in range(12, 16): e(f'v_mov_b32 v{r}, 0')
    e('ds_write_b128 v10, v[12:15]')
    e('ds_write_b128 v10, v[12:15] offset:16')
    e('L_prod:')
    T = [(64, TW0, 2, 3, 0), (96, TW1, 4, 5, 2048), (128, TW2, 6, 7, 16384)]
    c, kp, q, cc, kk, t = 46, 47, 48, 49, 50, 51
    b = TS
    e('v_mov_b32 v19, 4320')
    e('v_and_b32 v23, 3, v1')
    e('v_lshrrev_b32 v24, 3, v1')
    e('v_mul_u32_u24 v24, 576, v24')
    e('v_bfe_u32 v25, v1, 2, 1')
    e('v_mul_u32_u24 v25, 288, v25')
    e('v_add_u32 v24, v24, v25')
    for (vb, sw, vl, vs, so) in T:
        e(f'v_lshl_add_u32 v8, s{sw}, 2, v23')
        e('v_cmp_le_u32 vcc, 18, v8')
        e(f'v_lshl_add_u32 v{vl}, v8, 4, v24')
        e(f'v_add_u32 v9, v{vl}, v19')
        e(f'v_cndmask_b32 v{vl}, v{vl}, v9, vcc')
    e(f's_and_b32 s{c}, s{PAIR}, 15')
    e(f's_lshr_b32 s{kp}, s{PAIR}, 4')
    e(f's_mul_i32 s{b}, s{c}, 165888')
    e(f's_mul_i32 s{t}, s{kp}, 9216')
    e(f's_add_u32 s{b}, s{b}, s{t}')
    e(f's_add_u32 s{b+1}, s{b}, 82944')
    e(f's_mov_b32 s{S_W+2}, 2571264')
    e(f's_mov_b32 s{S_W+3}, 0x20000')
    e(f's_mov_b32 s{S_WO+3}, 0x20000')
    e(f's_cmp_lg_u32 s{c}, 15')
    e(f's_cselect_b32 s{S_WO+2}, 2571264, 0')
    e(f's_mov_b32 m0, s{SCRB}')
    e('s_waitcnt lgkmcnt(0)')
    e(f's_mov_b32 s{S_W}, s6')
    e(f's_and_b32 s{S_W+1}, s7, 0xffff')
    e(f's_mov_b32 s{S_WO}, s6')
    e(f's_and_b32 s{S_WO+1}, s7, 0xffff')
    e(f's_cmp_ge_u32 s{PAIR}, {NPROD}')
    e('s_cbranch_scc1 L_noprod')
    def cond3(lbl):
        e(f's_cmp_lg_u32 s{HAS3}, 0')
        e(f's_cbranch_scc1 {lbl}')
    for ti, (vb, sw, vl, vs, so) in enumerate(T):
        if ti == 2: cond3('L_a3')
        if ti:
            e(f's_add_u32 m0, s{SCRB}, {so}')
            e('s_nop 0')
        e(f'buffer_load_dwordx4 v{vl}, {sr(S_W)}, s{b} offen lds')
        e(f's_add_u32 m0, s{SCRB}, {so+1024}')
        e('s_nop 0')
        e(f'buffer_load_dwordx4 v{vl}, {sr(S_WO)}, s{b+1} offen lds')
    e('L_a3:')
    stamp(1)
    e(f's_cmp_lg_u32 s{WAVE}, 4')
    e('s_cbranch_scc1 L_a4')
    e(f's_load_dword s{TAG}, s[12:13], {NONCE}')
    e('L_a4:')
    if o.b0late:
        e(f's_cmp_lg_u32 s{MODE}, 0')
        e('s_cbranch_scc1 L_a4b')
        e('s_barrier')
        e('L_a4b:')
    srd(e, S_WS, 12, WS_REC)
    srd(e, S_DBG, 10, 256)
    e(f'v_mov_b32 v20, {(256 - 18*2*NSTEP*1024) & 0xffffffff}')
    e(f'v_mov_b32 v26, {2*NSTEP*1024}')
    e('v_bfe_u32 v21, v1, 2, 2')
    e('v_lshlrev_b32 v21, 7, v21')
    e('v_and_b32 v22, 1, v1')
    e('v_lshl_add_u32 v21, v22, 6, v21')
    e('v_bfe_u32 v22, v1, 1, 1')
    e('v_lshl_add_u32 v21, v22, 3, v21')
    e('v_lshrrev_b32 v22, 4, v1')
    e('v_lshl_add_u32 v21, v22, 4, v21')
    e(f'v_add_u32 v21, s{SCRB}, v21')
    e('v_and_b32 v25, 15, v1')
    e('v_lshlrev_b32 v25, 4, v25')
    for (vb, sw, vl, vs, so) in T:
        e(f'v_lshl_add_u32 v8, s{sw}, 2, v22')
        e('v_cmp_le_u32 vcc, 18, v8')
        e(f'v_mad_u32_u24 v{vs}, v8, v26, v25')
        e(f'v_add_u32 v9, v{vs}, v20')
        e(f'v_cndmask_b32 v{vs}, v{vs}, v9, vcc')
    e(f's_lshr_b32 s{q}, s{kp}, 1')
    e(f's_and_b32 s{cc}, s{c}, 7')
    e(f's_lshr_b32 s{kk}, s{c}, 3')
    e(f's_and_b32 s{t}, s{kp}, 1')
    e(f's_cmp_eq_u32 s{kp}, 8')
    e(f's_cselect_b32 s{cc}, s{cc}, s{c}')
    e(f's_cselect_b32 s{kk}, s{kk}, s{t}')
    e(f's_lshl_b32 s{kk}, s{kk}, 9')
    e(f's_add_u32 s{kk}, s{kk}, {WOFF}')
    e(f's_lshl_b32 s{t}, s{q}, 4')
    e(f's_add_u32 s{b+2}, s{t}, s{cc}')
    e(f's_sub_u32 s{b+3}, s{b+2}, s{q}')
    e(f's_cmp_ge_u32 s{q}, 2')
    e(f's_cselect_b32 s{b+4}, 74, 0')
    e(f's_add_u32 s{b+4}, s{b+4}, s{b+2}')
    e(f's_cmp_lt_u32 s{cc}, 2')
    e(f's_cselect_b32 s{t}, 32, 136')
    e(f's_add_u32 s{t}, s{t}, s{cc}')
    e(f's_cmp_eq_u32 s{kp}, 8')
    e(f's_cselect_b32 s{b+4}, s{t}, s{b+4}')
    e(f's_add_u32 s{b+2}, s{b+2}, 34')
    e(f's_add_u32 s{b+3}, s{b+3}, 144')
    for k in (2, 3, 4):
        e(f's_lshl_b32 s{b+k}, s{b+k}, 10')
        e(f's_add_u32 s{b+k}, s{b+k}, s{kk}')
    e(f's_cmp_eq_u32 s{kp}, 8')
    e(f's_cselect_b32 s{t}, 1, 2')
    e(f's_cmp_eq_u32 s{c}, 15')
    e(f's_cselect_b32 s{b+5}, s{t}, 0')
    e('s_waitcnt vmcnt(0) lgkmcnt(0)')
    stamp(2)
    e('v_mov_b32 v27, 0')
    e(f's_cmp_lg_u32 s{WAVE}, 4')
    e('s_cbranch_scc1 L_a5')
    e('v_mov_b32 v12, 4')
    e('s_mov_b64 exec, 1')
    e(f'buffer_load_dword v27, v12, {sr(S_DBG)}, 0 offen sc1')
    e('s_mov_b64 exec, -1')
    e('L_a5:')
    def trreads(vb, so):
        for tap in range(2):
            for half in range(2):
                e(f'ds_read_b64_tr_b16 {vr(vb+4*tap+2*half,2)}, v21 offset:{so+1024*tap+512*half}')
    def st01(vb, vs, n0, n1, tag):
        e(f's_waitcnt lgkmcnt({n0})')
        e(f'buffer_store_dwordx4 {vr(vb,4)}, v{vs}, {sr(S_WS)}, s{b+2} offen sc1')
        e(f's_waitcnt lgkmcnt({n1})')
        e(f's_cmp_eq_u32 s{b+5}, 2')
        e(f's_cbranch_scc1 L_skip{tag}')
        e(f'buffer_store_dwordx4 {vr(vb+4,4)}, v{vs}, {sr(S_WS)}, s{b+3} offen sc1')
        e(f'L_skip{tag}:')
    def stsum(vb, vs):
        for i in range(8):
            e(f'v_lshlrev_b32 v{vb+8+2*i}, 16, v{vb+i}')
            e(f'v_and_b32 v{vb+9+2*i}, s{MASK}, v{vb+i}')
        for i in range(4):
            e(f'v_pk_add_f32 {vr(vb+8+2*i,2)}, {vr(vb+8+2*i,2)}, {vr(vb+16+2*i,2)}')
        for i in range(4):
            e(f'v_cvt_pk_bf16_f32 v{vb+24+i}, v{vb+8+2*i}, v{vb+9+2*i}')
        e(f'buffer_store_dwordx4 {vr(vb+24,4)}, v{vs}, {sr(S_WS)}, s{b+4} offen sc1')
    for tt in T: trreads(tt[0], tt[4])
    st01(T[0][0], T[0][3], 10, 8, 0)
    st01(T[1][0], T[1][3], 6, 4, 1)
    stsum(T[0][0], T[0][3])
    stsum(T[1][0], T[1][3])
    cond3('L_b3')
    st01(T[2][0], T[2][3], 2, 0, 2)
    stsum(T[2][0], T[2][3])
    e('L_b3:')
    e(f's_cmp_eq_u32 s{MODE}, 0')
    e('s_cbranch_scc1 L_b4')
    e('s_waitcnt vmcnt(0) lgkmcnt(0)')
    e(f's_add_u32 s{PAIR}, s{PAIR}, 1')
    e(f's_cmp_lt_u32 s{PAIR}, {NPROD}')
    e('s_cbranch_scc1 L_prod')
    e('s_branch L_go')
    e('L_noprod:')
    if o.b0late: e('s_barrier')
    srd(e, S_WS, 12, WS_REC)
    stamp(1); stamp(2)
    e('L_b4:')
    if not o.b0late: e('s_barrier')
    if o.b0late:
        pass
    stamp(3)
    decode()
    e('v_subrev_u32 v4, 256, v0')
    e('v_min_u32 v4, 251, v4')
    e('v_mul_u32_u24 v3, 3641, v4')
    e('v_lshrrev_b32 v3, 16, v3')
    e('v_mul_u32_u24 v2, 18, v3')
    e('v_sub_u32 v2, v4, v2')
    e(f'v_mul_u32_u24 v3, {R}, v3')
    e(f'v_min_u32 v3, {160-R}, v3')
    e('v_mul_u32_u24 v4, 1152, v3')
    e('v_lshl_add_u32 v4, v2, 4, v4')
    e(f'v_add_u32 v12, s{XB}, v4')
    e('v_mul_u32_u24 v18, 288, v3')
    e('v_lshl_add_u32 v18, v2, 4, v18')
    e(f'v_add_u32 v19, {X_D1}, v18')
    srd(e, S_X, 4, 1152000, add=BOFF)
    e(f's_cmp_ge_u32 s{PAIR0}, {NPROD}')
    e('s_cbranch_scc1 L_noflag')
    e(f'v_mov_b32 v10, {CNT}')
    e(f's_mul_i32 s46, s{PAIR0}, {o.fstride}')
    e('v_mov_b32 v16, s46')
    e('s_mov_b64 exec, 1')
    e(f's_cmp_lg_u32 s{WAVE}, 4')
    e('s_cbranch_scc1 L_nottag')
    e(f's_add_u32 s46, s{TAG}, {TAGINC}')
    e('v_mov_b32 v15, s46')
    e('ds_write_b32 v10, v15 offset:4')
    e('L_nottag:')
    e('s_waitcnt vmcnt(0)')
    stamp(4)
    e('v_cmp_ne_u32 vcc, 0, v27')
    e('v_mov_b32 v13, 1')
    e('v_mov_b32 v14, 0x101')
    e('v_cndmask_b32 v13, v13, v14, vcc')
    e('ds_add_rtn_u32 v14, v10, v13')
    e('ds_read_b32 v15, v10 offset:4')
    e('s_waitcnt lgkmcnt(0)')
    e('v_add_u32 v14, v14, v13')
    e('v_cmp_eq_u32 vcc, 4, v14')
    e('s_and_b64 exec, exec, vcc')
    e('s_cbranch_execz L_notlast')
    e(f'buffer_store_dword v15, v16, {sr(S_WS)}, 0 offen sc1')
    e('L_notlast:')
    e('s_mov_b64 exec, -1')
    e('L_noflag:')
    if o.b0late: e('s_barrier')
    e(f's_setprio {o.hprio2}')
    RAW, ORAW = 64, 120
    EU = [184, 192]
    OU, DT, DO = 200, 208, 216
    xi = [0]
    NL = R + 1
    def eload():
        k = xi[0]
        if k >= NL: return
        a_ = 12
        if k:
            a_ = 13 + (k & 3)
            e(f'v_add_u32 v{a_}, {1152*k}, v12')
        e(f'buffer_load_dwordx4 {vr(RAW+4*k,4)}, v{a_}, {sr(S_X)}, 0 offen')
        xi[0] += 1
    if o.etouch:
        e(f's_cmp_lt_u32 s{PAIR0}, {NPROD}')
        e('s_cbranch_scc1 L_net')
        if o.etouch == 2:
            e(f's_and_b32 s46, s{NB}, 1')
            e(f's_mul_i32 s46, s46, {1152*6}')
            e('v_add_u32 v12, s46, v12')
            for _ in range(7): eload()
            e('v_subrev_u32 v12, s46, v12')
        else:
            for _ in range(NL): eload()
        e('s_waitcnt vmcnt(0)')
        e('L_net:')
        xi[0] = 0
    for _ in range(o.epre): eload()
    e('s_waitcnt lgkmcnt(0)')
    stamp(5)
    if o.dec:
        for _ in range(max(0, o.ein - o.epre)): eload()
        e(f'v_mov_b32 v10, {CNT}')
        e('s_mov_b64 exec, 1')
        e('L_ow:')
        e('ds_read_b32 v11, v10 offset:8')
        e('s_waitcnt lgkmcnt(0)')
        e('v_cmp_ne_u32 vcc, 4, v11')
        e('s_nop 4')
        e('s_cbranch_vccz L_ow2')
        e('s_sleep 1')
        e('s_branch L_ow')
        e('L_ow2:')
        e('s_mov_b64 exec, -1')
    else:
        e('s_barrier')
    stamp(6)
    if not o.dec:
        for _ in range(max(0, o.ein - o.epre)): eload()
    for j in range(R):
        e(f'ds_read_b128 {vr(ORAW+4*j,4)}, v18 offset:{X_O+288*j}')
    def unpack(dst, s_):
        for i in range(4):
            e(f'v_lshlrev_b32 v{dst+2*i}, 16, v{s_+i}')
            e(f'v_and_b32 v{dst+2*i+1}, s{MASK}, v{s_+i}')
    def unpackE(dst, k):
        e(f's_waitcnt vmcnt({xi[0]-1-k})')
        unpack(dst, RAW + 4 * k)
        eload()
    def diff(eu, out):
        if o.nopk:
            for i in range(8): e(f'v_sub_f32 v{DT+i}, v{eu+i}, v{OU+i}')
        else:
          for i in range(4):
            e(f'v_pk_add_f32 {vr(DT+2*i,2)}, {vr(eu+2*i,2)}, {vr(OU+2*i,2)} neg_lo:[0,1] neg_hi:[0,1]')
        for i in range(4):
            e(f'v_cvt_pk_bf16_f32 v{out+i}, v{DT+2*i}, v{DT+2*i+1}')
    unpackE(EU[0], 0)
    e('s_waitcnt lgkmcnt(0)')
    for j in range(R):
        o0 = DO + 8 * (j & 1)
        unpack(OU, ORAW + 4 * j)
        diff(EU[j & 1], o0)
        e(f'ds_write_b128 v18, {vr(o0,4)} offset:{X_D0+288*j}')
        unpackE(EU[(j + 1) & 1], j + 1)
        diff(EU[(j + 1) & 1], o0 + 4)
        e(f'ds_write_b128 v19, {vr(o0+4,4)} offset:{288*j}')
    e('s_waitcnt lgkmcnt(0)')
    stamp(7)
    e('v_mov_b32 v11, 1')
    e('s_mov_b64 exec, 1')
    e('ds_add_u32 v10, v11 offset:16')
    e('s_mov_b64 exec, -1')
    if o.diag == 1:
        stamp(8); stamp(9)
        dump(10)
    e('L_end:')
    e('s_endpgm')
    e('.section .rodata,"a"')
    e('.p2align 6')
    e(f'.amdhsa_kernel {KN}')
    for x in ['next_free_vgpr 256', 'next_free_sgpr 102', 'accum_offset 256', 'group_segment_fixed_size 0', 'kernarg_size 40',
              'user_sgpr_count 2', 'user_sgpr_kernarg_segment_ptr 1', 'system_sgpr_workgroup_id_x 1']:
        e('  .amdhsa_' + x)
    e('.end_amdhsa_kernel')
    n = haz.check(e.L)
    if n: print(f'{n} hazards', file=sys.stderr)
    return f'; @launch grid=({NWG},1,1) block=(512,1,1) lds={LDS_BYTES}\n' + e.text()

def opts(argv=None):
    ap = argparse.ArgumentParser()
    ap.add_argument('-o', default='k.s')
    for nm, d in [('diag', 0), ('pf', 7), ('wsc1', 0), ('nfill', 2), ('fstride', 128), ('sleep', 0), ('maxpoll', 3000), ('nopoll', 0),
                  ('hprio', 3), ('hprio2', 0), ('mprio', 2), ('epre', 0), ('ein', 4), ('vbd', 33), ('nopk', 1), ('padto', 0), ('npdelay', 0), ('opre', 2), ('etouch', 2), ('orev', 1), ('b0late', 1), ('dec', 1), ('tail', 1), ('xla', 9), ('hold', 1)]:
        ap.add_argument('--' + nm, type=int, default=d)
    ap.add_argument('--oflags', default='')
    ap.add_argument('--pmap', default='18,18,18,18,18,18,18,18')
    ap.add_argument('--marks', default='0,4,8,12,16,24,33,47,58')
    o = ap.parse_args(argv)
    o.marks = [int(x) for x in o.marks.split(',')]
    return o

if __name__ == '__main__':
    o = opts()
    open(o.o, 'w').write(gen(o))
```

```python
import re, sys, argparse
import haz

KN = 'standalone__autoregressive_conv_wavernn__speech_kernel'
NWG = 252
NPROD = 144
ARR = 160 * 288
X_D0, X_O, X_D1 = 0, ARR, 2 * ARR
CNT = 3 * ARR
SCR = CNT + 64
LDS_BYTES = SCR + 18432
NSTEP = 106
WOFF = 0x100000
NONCE = 0x10000
DIAG = 0x800000
WS_REC = 0x1000000
TAGINC = 0x9E3779B9
R = 12

class Em:
    def __init__(self): self.L = []
    def __call__(self, s): self.L.append(s)
    def text(self): return '\n'.join(self.L) + '\n'

def vr(a, n=1): return f'v{a}' if n == 1 else f'v[{a}:{a+n-1}]'
def sr(a, n=4): return f's[{a}:{a+n-1}]'

def streams():
    out = []
    for typ in (0, 1):
        S = []
        pid = [0]
        def add(arr, chunk, cs, acc):
            for c in cs: S.append((pid[0], arr, chunk, c, acc))
            pid[0] += 1
        if typ == 0:
            add('O', 0, range(16), 'P'); add('O', 1, range(16), 'P'); add('O', 'rem', range(0, 2), 'P')
            for q in range(4): add('D', q, range(16), 'Q')
            add('D', 'rem', range(8), 'Q')
        else:
            add('O', 2, range(16), 'P'); add('O', 3, range(16), 'P'); add('O', 'rem', range(2, 8), 'P')
            for q in range(4): add('D', q, range(15), 'Q')
            add('D', 'rem', range(8), 'Q')
        assert len(S) == NSTEP
        out.append(S)
    return out

S_X, S_W, S_WO, S_WS, S_OUT, S_DBG = 20, 24, 28, 32, 36, 40
WAVE, NB, BAT, PAR, MB, BOFF = 14, 15, 16, 17, 18, 19
PAIR0 = 3
XB = 52
MASK = 53
TW0, TW1, TW2, PAIR, HAS3, MODE, SCRB, TAG, LAST, NPOLL = 44, 45, 54, 55, 56, 57, 58, 59, 60, 61
TS = 62
TYP, WSO = 68, 69
C2L, CNL, C60 = 90, 92, 94
ST0 = 70

def srd(e, d, ptr, rec, add=None):
    if add is None:
        e(f's_mov_b32 s{d}, s{ptr}')
        e(f's_and_b32 s{d+1}, s{ptr+1}, 0xffff')
    else:
        e(f's_add_u32 s{d}, s{ptr}, s{add}')
        e(f's_addc_u32 s{d+1}, s{ptr+1}, 0')
        e(f's_and_b32 s{d+1}, s{d+1}, 0xffff')
    e(f's_mov_b32 s{d+2}, {rec}')
    e(f's_mov_b32 s{d+3}, 0x20000')

def gen(o):
    e = Em()
    role = ['m']
    def padloop(tag):
        e(f'L_pad{tag}:')
        e('s_memrealtime s[98:99]')
        e('s_waitcnt lgkmcnt(0)')
        e('s_sub_u32 s98, s98, s100')
        e(f's_cmp_lt_u32 s98, {o.padto}')
        e(f's_cbranch_scc1 L_pad{tag}')
    def stamp(k, lvl=1):
        if o.padto and lvl == 1 and o.padev == f'{role[0]}{k}':
            e('s_memrealtime s[100:101]'); e('s_waitcnt lgkmcnt(0)')
        if o.diag == lvl or (o.diag == 4 and lvl == 1): e(f's_memrealtime s[{ST0+2*k}:{ST0+2*k+1}]')
    def dump(nst):
        e('s_waitcnt lgkmcnt(0)')
        e('v_mov_b32 v250, 0')
        for k in range(nst): e(f'v_writelane_b32 v250, s{ST0+2*k}, {k}')
        e(f'v_writelane_b32 v250, s{NPOLL}, 13')
        e(f'v_writelane_b32 v250, s{PAIR0}, 14')
        e('s_getreg_b32 s46, hwreg(HW_REG_XCC_ID)')
        e('v_writelane_b32 v250, s46, 15')
        e(f's_lshl_b32 s46, s2, 3'); e(f's_add_u32 s46, s46, s{WAVE}'); e('s_lshl_b32 s46, s46, 6'); e(f's_add_u32 s46, s46, {DIAG}')
        e('v_lshl_add_u32 v251, v1, 2, s46')
        e('s_mov_b64 exec, 0xffff')
        e(f'buffer_store_dword v250, v251, {sr(S_WS)}, 0 offen')
        e('s_mov_b64 exec, -1')

    e('.amdgcn_target "amdgcn-amd-amdhsa--gfx950"')
    e('.text')
    e(f'.globl {KN}')
    e('.p2align 8')
    e(f'.type {KN},@function')
    e(f'{KN}:')
    e(f's_cmp_ge_u32 s2, {NWG}')
    e('s_cbranch_scc1 L_end')
    stamp(0)
    if o.padto and o.padev != 'm0': e('s_memrealtime s[100:101]')
    e('s_load_dwordx4 s[4:7], s[0:1], 0')
    e('s_load_dwordx4 s[8:11], s[0:1], 16')
    e('s_load_dwordx2 s[12:13], s[0:1], 32')
    e('v_lshrrev_b32 v2, 6, v0')
    e('v_and_b32 v1, 63, v0')
    e(f'v_readfirstlane_b32 s{WAVE}, v2')
    def decode():
        e('s_and_b32 s44, s2, 7')
        e('s_lshr_b32 s45, s2, 3')
        e('s_mul_i32 s46, s44, 31')
        e('s_min_u32 s44, s44, 4')
        e('s_add_u32 s46, s46, s44')
        e('s_add_u32 s46, s46, s45')
        e('s_mul_hi_u32 s47, s46, 68174085')
        e('s_mul_i32 s48, s47, 63')
        e('s_sub_u32 s48, s46, s48')
        e(f's_mul_hi_u32 s{NB}, s48, 613566757')
        e(f's_mul_i32 s49, s{NB}, 7')
        e('s_sub_u32 s49, s48, s49')
        e('s_mul_i32 s47, s47, 7')
        e('s_add_u32 s47, s47, s49')
        e(f's_and_b32 s{PAR}, s47, 1')
        e('s_lshr_b32 s47, s47, 1')
        e('s_cmp_ge_u32 s47, 7')
        e(f's_cselect_b32 s{BOFF}, 1152000, 0')
        e('s_cselect_b32 s48, 7, 0')
        e(f's_sub_u32 s{MB}, s47, s48')
        e(f's_mul_i32 s{XB}, s{MB}, 576')
        e(f's_add_u32 s{XB}, s{XB}, s{PAR}')
        e(f's_sub_u32 s{XB}, s{XB}, 60')
        e(f's_mul_i32 s{XB}, s{XB}, 288')
    e(f's_mov_b32 s{MASK}, 0xffff0000')
    e(f's_mov_b32 s{NPOLL}, 0')
    cnts = [int(x) for x in o.pmap.split(',')]
    assert sum(cnts) == NPROD
    if cnts == [18] * 8:
        e(f's_mov_b32 s{PAIR0}, s2')
    else:
        base = [sum(cnts[:i]) for i in range(8)]
        pk = lambda L: sum(v << (8 * i) for i, v in enumerate(L))
        e('s_and_b32 s44, s2, 7')
        e('s_lshl_b32 s44, s44, 3')
        e(f's_mov_b32 s46, {pk(cnts[:4])}'); e(f's_mov_b32 s47, {pk(cnts[4:])}')
        e(f's_mov_b32 s48, {pk(base[:4])}'); e(f's_mov_b32 s49, {pk(base[4:])}')
        e('s_lshr_b64 s[46:47], s[46:47], s44')
        e('s_lshr_b64 s[48:49], s[48:49], s44')
        e('s_and_b32 s46, s46, 0xff')
        e('s_and_b32 s48, s48, 0xff')
        e('s_lshr_b32 s45, s2, 3')
        e('s_add_u32 s48, s48, s45')
        e('s_cmp_lt_u32 s45, s46')
        e(f's_cselect_b32 s{PAIR0}, s48, 255')
    e(f's_cmp_ge_u32 s{WAVE}, 4')
    e('s_cbranch_scc1 L_helper')
    decode()

    VXO, VXOR, VXD, VXDR, VWL, VEX, VEXP, VOUT = 30, 31, 32, 33, 34, 35, 36, 37
    VF = 40
    VA = 48
    VCL = 60
    e('v_mul_u32_u24 v3, 3641, v0')
    e('v_lshrrev_b32 v3, 16, v3')
    e('v_mul_u32_u24 v2, 18, v3')
    e('v_sub_u32 v2, v0, v2')
    e('v_mul_u32_u24 v3, 1152, v3')
    e('v_lshl_add_u32 v3, v2, 4, v3')
    e(f's_add_u32 s46, s{XB}, 576')
    e(f'v_add_u32 v{VA}, s46, v3')
    e('v_mov_b32 v5, 16192')
    e('v_mov_b32 v6, 17056')
    for k in range(1, 12):
        e('v_cmp_le_u32 vcc, 14, v2')
        e('v_add_u32 v3, 4, v2')
        e('v_subrev_u32 v4, 14, v2')
        e('v_cndmask_b32 v7, v5, v6, vcc')
        e('v_cndmask_b32 v2, v3, v4, vcc')
        e(f'v_add_u32 v{VA+k}, v{VA+k-1}, v7')
    e('v_and_b32 v2, 15, v1')
    e('v_lshrrev_b32 v3, 4, v1')
    e('v_subrev_u32 v5, 4, v2')
    e('v_add_u32 v6, 8, v2')
    e('v_cmp_gt_u32 vcc, 4, v2')
    e('v_cmp_le_u32 s[46:47], 12, v2')
    e(f's_and_b32 s{TYP}, s{WAVE}, 1')
    e(f's_lshr_b32 s48, s{WAVE}, 1')
    e('v_cndmask_b32 v5, v5, v6, vcc')
    e('v_cndmask_b32 v5, v5, v2, s[46:47]')
    e('v_mul_u32_u24 v5, 9, v5')
    e('v_mul_u32_u24 v4, 288, v5')
    e('v_lshl_add_u32 v6, v3, 4, v4')
    e('v_and_b32 v7, 1, v3')
    e('v_lshl_add_u32 v7, v7, 4, v4')
    e('v_lshrrev_b32 v8, 1, v3')
    e('v_mul_u32_u24 v8, 2304, v8')
    e('v_add_u32 v7, v7, v8')
    e('v_add_u32 v7, 256, v7')
    e(f's_mul_i32 s49, s{TYP}, {X_D1}')
    e(f'v_add_u32 v{VXO}, {X_O}, v6')
    e(f'v_add_u32 v{VXOR}, {X_O}, v7')
    e(f'v_add_u32 v{VXD}, s49, v6')
    e(f'v_add_u32 v{VXDR}, s49, v7')
    e('v_lshlrev_b32 v6, 4, v1')
    e(f's_mul_i32 s49, s{WAVE}, 9216')
    e(f's_add_u32 s49, s49, {X_O}')
    e(f'v_add_u32 v{VEX}, s49, v6')
    e(f's_xor_b32 s49, s{WAVE}, 1')
    e('s_mul_i32 s49, s49, 9216')
    e(f's_add_u32 s49, s49, {X_O}')
    e(f'v_add_u32 v{VEXP}, s49, v6')
    e('v_and_b32 v8, 0x39, v1')
    e('v_bfe_u32 v9, v1, 1, 1')
    e('v_lshl_add_u32 v8, v9, 2, v8')
    e('v_bfe_u32 v9, v1, 2, 1')
    e('v_lshl_add_u32 v8, v9, 1, v8')
    e(f'v_lshlrev_b32 v{VWL}, 4, v8')
    e(f's_mul_i32 s49, s{TYP}, 576')
    e(f's_add_u32 s49, s49, s{XB}')
    e(f's_add_u32 s49, s49, {60*288}')
    e(f's_lshl_b32 s50, s{NB}, 5')
    e('s_add_u32 s49, s49, s50')
    e('s_lshl_b32 s50, s48, 4')
    e('s_add_u32 s49, s49, s50')
    e('v_mul_u32_u24 v8, 1152, v5')
    e('v_lshl_add_u32 v8, v3, 2, v8')
    e(f'v_add_u32 v{VOUT}, s49, v8')
    e(f'v_add_u32 v{VOUT+1}, 3456, v{VOUT}')
    e(f'v_add_u32 v{VOUT+2}, 6912, v{VOUT}')
    e(f's_lshl_b32 s49, s{NB}, 1')
    e('s_add_u32 s49, s49, s48')
    e('s_lshl_b32 s49, s49, 1')
    e(f's_add_u32 s49, s49, s{TYP}')
    e(f's_mul_i32 s{WSO}, s49, {NSTEP*1024}')
    e(f's_add_u32 s{WSO}, s{WSO}, {WOFF}')
    e(f's_mov_b32 s{C2L}, 0x4038aa3b'); e(f's_mov_b32 s{C2L+1}, 0x4038aa3b')
    e(f's_mov_b32 s{CNL}, 0xbfb8aa3b'); e(f's_mov_b32 s{CNL+1}, 0xbfb8aa3b')
    e(f's_mov_b32 s{C60}, 0x42700000')
    e(f'v_min_u32 v{VF}, 35, v1')
    e(f's_mul_i32 s46, s{WAVE}, 36')
    e(f'v_add_u32 v{VF}, s46, v{VF}')
    e(f'v_mul_u32_u24 v{VF}, {o.fstride}, v{VF}')
    e(f's_lshl_b32 s50, s{WAVE}, 10')
    e(f's_add_u32 s50, s50, {X_O}')
    e(f's_add_u32 s51, s50, {4096*11}')
    e('s_movk_i32 s49, 4096')
    if o.orev:
        e(f's_bitcmp0_b32 s{NB}, 0')
        e('s_cbranch_scc1 L_fwd')
        for k in range(5): e(f'v_swap_b32 v{VA+k}, v{VA+10-k}')
        e(f's_add_u32 s50, s50, {4096*10}')
        e('s_movk_i32 s49, -4096')
        e('L_fwd:')
    e(f's_or_b32 s46, s2, s{WAVE}')
    e('v_or_b32 v2, s46, v1')
    e('v_cmp_eq_u32 vcc, 0, v2')
    e(f'v_mov_b32 v{VCL}, -16')
    e(f'v_mov_b32 v{VCL+1}, -16')
    e(f'v_mov_b32 v3, {NONCE}')
    e(f'v_cndmask_b32 v{VCL}, v{VCL}, 4, vcc')
    e(f'v_cndmask_b32 v{VCL+1}, v{VCL+1}, v3, vcc')
    e('s_waitcnt lgkmcnt(0)')
    e(f's_load_dword s{TAG}, s[12:13], {NONCE}')
    srd(e, S_X, 4, 1152000, add=BOFF)
    srd(e, S_WS, 12, WS_REC)
    srd(e, S_OUT, 8, 1152000, add=BOFF)
    srd(e, S_DBG, 10, 256)
    def odma(k):
        e(f's_mov_b32 m0, s{51 if k == 11 else 50}')
        e('s_add_u32 s50, s50, s49')
        e(f'buffer_load_dwordx4 v{VA+k}, {sr(S_X)}, 0 offen lds')
    if o.b0late: e('s_barrier')
    if o.npdelay:
        e(f's_cmp_lt_u32 s{PAIR0}, {NPROD}')
        e('s_cbranch_scc1 L_nd')
        e('s_waitcnt lgkmcnt(0)')
        e('L_nd:')
    for k in range(o.opre): odma(k)
    e('s_barrier')
    stamp(1)
    for k in range(o.opre, 12):
        if k == 11:
            e(f's_cmp_lg_u32 s{WAVE}, 0')
            e('s_cbranch_scc1 L_o11')
        odma(k)
    e('L_o11:')
    e(f'v_mov_b32 v{VF+1}, {CNT}')
    e(f'v_mov_b32 v{VF+2}, 1')
    e(f's_lshr_b32 s46, s{WAVE}, 1')
    e('s_lshl_b32 s46, s46, 2')
    e(f'v_add_u32 v{VF+5}, s46, v{VF+1}')
    e('s_waitcnt vmcnt(0) lgkmcnt(0)')
    stamp(2)
    if o.dec:
        e('s_mov_b64 exec, 1')
        e(f'ds_add_u32 v{VF+1}, v{VF+2} offset:8')
        e('s_mov_b64 exec, -1')
    e(f's_add_u32 s{TAG}, s{TAG}, {TAGINC}')
    e(f'v_mov_b32 v{VF+3}, s{TAG}')
    if o.nopoll: e('s_branch L_go')
    e('L_poll:')
    e(f'buffer_load_dword v{VF+4}, v{VF}, {sr(S_WS)}, 0 offen sc1')
    e(f's_add_u32 s{NPOLL}, s{NPOLL}, 1')
    e('s_waitcnt vmcnt(0)')
    e(f'v_cmp_ne_u32 vcc, v{VF+3}, v{VF+4}')
    e('s_nop 4')
    e('s_cbranch_vccz L_go')
    if o.sleep: e(f's_sleep {o.sleep}')
    e(f's_cmp_lt_u32 s{NPOLL}, {o.maxpoll}')
    e('s_cbranch_scc1 L_poll')
    e(f's_mov_b32 s{MODE}, 1')
    e(f's_mov_b32 s{HAS3}, 1')
    e(f's_lshr_b32 s{TW0}, s{NB}, 1')
    e(f's_add_u32 s{TW1}, s{NB}, 9')
    e(f's_lshr_b32 s{TW1}, s{TW1}, 1')
    e(f's_mov_b32 s{TW2}, 8')
    e(f's_mov_b32 s{PAIR}, 0')
    e(f's_lshl_b32 s{SCRB}, s{WAVE}, 12')
    e(f's_add_u32 s{SCRB}, s{SCRB}, {SCR}')
    e('s_branch L_prod')
    e('L_go:')
    stamp(3)
    if o.dec:
        e('s_mov_b64 exec, 1')
        e(f'ds_add_u32 v{VF+1}, v{VF+2} offset:12')
        e('L_gw:')
        e(f'ds_read_b32 v{VF+4}, v{VF+1} offset:12')
        e('s_waitcnt lgkmcnt(0)')
        e(f'v_cmp_ne_u32 vcc, 4, v{VF+4}')
        e('s_nop 4')
        e('s_cbranch_vccnz L_gw')
        e('s_mov_b64 exec, -1')
    else:
        e('s_barrier')
    stamp(4)
    e(f's_setprio {o.mprio}')
    e(f's_cmp_eq_u32 s{TYP}, 1')
    e('s_cbranch_scc1 L_typeB')

    ACC = {'P': 64, 'Q': 100}
    WR, TMP = 136, 224
    XRING = [200 + 4 * i for i in range(6)]
    XWIN = [4 + 4 * i for i in range(6)] + [240 + 4 * i for i in range(4)]
    VC = 28
    PF = o.pf
    GT = 98
    wflags = ' sc1' if o.wsc1 else ''
    def wreg(g):
        return ACC['P'] + 4 * (g - GT) if (o.tail and g >= GT) else WR + 4 * (g % 16)
    for typ, S in enumerate(streams()):
        if typ == 1: e('.p2align 6'); e('L_typeB:')
        ops = []
        vstart = {}
        lastv = GT - 1 if o.tail else NSTEP + 7
        for v in range(lastv + 1):
            vstart[v] = len(ops)
            for j in range(8, -1, -1):
                if 0 <= v - j < NSTEP: ops.append((v - j, j))
        ntail = len(ops)
        if o.tail:
            for j in range(9):
                for g in range(GT - j, NSTEP): ops.append((g, j))
        assert len(ops) == NSTEP * 9 and len(set(ops)) == len(ops)
        N = len(ops)
        def key(n):
            g, j = ops[n]
            pid, arr, ch, c, acc = S[g]
            k = (pid, arr, ch, c + j)
            if n >= ntail and g < GT: k = k + ((n,) if not o.hold else ('h',))
            return k
        first, last = {}, {}
        for n in range(N):
            first.setdefault(key(n), n); last[key(n)] = n
        wfirst, wlast = {}, {}
        for n, (g, j) in enumerate(ops):
            wfirst.setdefault(g, n); wlast[g] = n
        tasks = []
        for k, n0 in first.items():
            win = o.tail and k[2] == 'rem' and k[1] == 'D'
            la = o.xla if n0 < ntail else 6
            if win: la = 40 if k[3] < 8 else 12
            tasks.append([n0 - la, n0 - 1, 'X', k])
        for g in range(NSTEP):
            if o.tail and g >= GT: rel = vstart[76 + 2 * (g - GT)] + 3
            elif g < PF: rel = -100 + g
            else: rel = vstart[g - PF] + (0 if g < 16 else 0)
            if g >= 16 and not (o.tail and g >= GT): rel = max(rel, wlast[g - 16])
            tasks.append([rel, wfirst[g] - 1, 'W', g])
        def at(v, off=0): return vstart[v] + off
        firstD = min(n for n in range(N) if S[ops[n][0]][1] == 'D')
        lastO = max(n for n in range(N) if S[ops[n][0]][1] == 'O')
        lastP = {j: max(n for n in range(N) if ops[n][1] == j and S[ops[n][0]][4] == 'P') for j in range(9)}
        slow = []
        def check(v, off, cnt, tag):
            tasks.append([at(v - 1, 3), at(v - 1, 8), 'L', (f'ds_read_b32 v{VC}, v{VF+1} offset:{off}', ('c', tag))])
            tasks.append([at(v, 0), at(v, 1), 'C', (f'v_cmp_ne_u32 vcc, {cnt}, v{VC}', ('c', tag))])
            tasks.append([at(v, 6), at(v, 7), 'I', [f's_cbranch_vccnz L_slow{typ}{tag}', f'L_back{typ}{tag}:']])
            slow.append((tag, off, cnt))
            return at(v, 8)
        def add1(pos, off):
            tasks.append([pos, pos + 4, 'A', off])
        vD = [v for v in vstart if vstart[v] <= firstD - o.xla][-1] - 1
        okD = check(vD, 16, 4, 'D')
        assert okD <= firstD - o.xla
        add1(lastO, 20)
        VP = 47
        okR = check(VP, 20, 4, 'R')
        for j in range(9):
            assert lastP[j] + 12 < at(VP + 1 + j, 2)
            tasks.append([at(VP + 1 + j, 2), at(VP + 1 + j, 8), 'L', (f'ds_write_b128 v{VEX}, {vr(ACC["P"]+4*j,4)} offset:{1024*j}', ('pw', j))])
        tasks.append([at(VP + 10, 0), at(VP + 10, 4), 'A', 'pair'])
        VQ = VP + 13
        okP = check(VQ, 'pair', 2, 'P')
        for j in range(9):
            tasks.append([at(VQ + 1 + j, 2), at(VQ + 1 + j, 8), 'L', (f'ds_read_b128 {vr(TMP+4*(j&1),4)}, v{VEXP} offset:{1024*j}', ('pr', j))])
            v = VQ + 2 + j
            pos = at(v, 8 - (j + 2) - 1) if j <= 6 else at(v, 8 - (j - 7) - 1)
            sh = 1 if j >= 7 else 0
            tasks.append([pos - 1 + sh, pos - 1 + sh, 'Q', (j, 0)])
            tasks.append([pos + sh, pos + sh, 'Q', (j, 1)])
        if typ == 0:
            tasks.append([at(72, 4), at(72, 8), 'S', f'buffer_store_dword v{VCL+1}, v{VCL}, {sr(S_DBG)}, 0 offen sc1'])
            tasks.append([at(92, 4), at(92, 8), 'S', f'buffer_store_dword v{VF+3}, v{VCL+1}, {sr(S_WS)}, 0 offen sc1'])
        tasks.sort(key=lambda t: (t[0], t[1]))
        vq, lq = [], []
        dirty = [False]
        xreg, busy = {}, {}
        wn = [0]
        since = {}
        fill = []
        def em(x):
            e(x)
            if not x.endswith(':'):
                for jj in since: since[jj] += 1
        def lwait(tag):
            if tag not in lq: return
            i = lq.index(tag)
            em(f's_waitcnt lgkmcnt({0 if dirty[0] else len(lq)-1-i})')
            if dirty[0]: lq.clear(); dirty[0] = False
            else: del lq[:i + 1]
        def vwait(g):
            if g not in vq: return
            i = vq.index(g)
            em(f's_waitcnt vmcnt({len(vq)-1-i})')
            del vq[:i + 1]
        def run(t, n):
            kind, p = t[2], t[3]
            if kind == 'X':
                pool = XWIN if (o.tail and p[2] == 'rem' and p[1] == 'D') else XRING
                if p[-1] == 'h':
                    pool = [WR + 4 * (g % 16) for g in range(GT - 16, GT - 8)]
                    for g in range(GT - 16, GT - 8): busy.setdefault(WR + 4 * (g % 16), wlast[g])
                r = [x for x in pool if busy.get(x, -1) <= n]
                assert r, ('no x register', p, n)
                r = min(r, key=lambda x: busy.get(x, -1))
                busy[r] = last[p]; xreg[p] = r
                arr, ch, s_ = p[1], p[2], p[3]
                if ch == 'rem': em(f'ds_read_b128 {vr(r,4)}, v{VXOR if arr == "O" else VXDR} offset:{288*s_}')
                else: em(f'ds_read_b128 {vr(r,4)}, v{VXO if arr == "O" else VXD} offset:{64*ch+288*s_}')
                lq.append(p)
            elif kind == 'W':
                g = p
                if o.tail and g >= GT:
                    em(f'buffer_load_dwordx4 {vr(wreg(g),4)}, v{VWL}, {sr(S_WS)}, s{WSO+27} offen offset:{1024*((g-GT)%4)}{wflags}')
                    if g == GT + 3: em(f's_add_u32 s{WSO+27}, s{WSO+27}, 4096')
                else:
                    assert g == wn[0]; wn[0] += 1
                    em(f'buffer_load_dwordx4 {vr(wreg(g),4)}, v{VWL}, {sr(S_WS)}, s{WSO} offen offset:{1024*(g%4)}{wflags}')
                    if g % 4 == 3: em(f's_add_u32 s{WSO}, s{WSO}, 4096')
                vq.append(g)
            elif kind == 'L':
                em(p[0].replace('offset:pair', 'offset:24').replace(f'v{VF+1} offset:24', f'v{VF+5} offset:24')); lq.append(p[1])
            elif kind == 'C':
                lwait(p[1]); em(p[0])
            elif kind == 'I':
                for x in p: em(x)
            elif kind == 'A':
                em('s_mov_b64 exec, 1')
                if p == 'pair': em(f'ds_add_u32 v{VF+5}, v{VF+2} offset:24')
                else: em(f'ds_add_u32 v{VF+1}, v{VF+2} offset:{p}')
                em('s_mov_b64 exec, -1')
                lq.append(('a', p))
            elif kind == 'Q':
                p, hf = p
                lwait(('pr', p))
                q = ACC['Q'] + 4 * p; t_ = TMP + 4 * (p & 1)
                for i in (2 * hf, 2 * hf + 1): em(f'v_add_f32 v{q+i}, v{q+i}, v{t_+i}')
            elif kind == 'S':
                em(p); vq.append(('s', n))
        def epi(j, pk):
            q = ACC['Q'] + 4 * j
            t = TMP + 8 * (j & 1)
            I = []
            if pk:
                I.append(f'v_pk_mul_f32 {vr(t,2)}, {vr(q,2)}, s[{C2L}:{C2L+1}]')
                I.append(f'v_pk_mul_f32 {vr(t+2,2)}, {vr(q+2,2)}, s[{CNL}:{CNL+1}]')
            else:
                for i in (0, 1): I.append(f'v_mul_f32 v{t+i}, s{C2L}, v{q+i}')
                for i in (2, 3): I.append(f'v_mul_f32 v{t+i}, s{CNL}, v{q+i}')
            I.append(f'v_min_f32 v{t}, s{C60}, v{t}')
            I.append(f'v_min_f32 v{t+1}, s{C60}, v{t+1}')
            for i in (0, 1, 2, 3): I.append(f'v_exp_f32 v{t+i}, v{t+i}')
            if pk:
                I.append(f'v_pk_add_f32 {vr(t+4,2)}, {vr(t,2)}, 1.0 op_sel_hi:[1,0]')
                I.append(f'v_pk_add_f32 {vr(t+6,2)}, {vr(t,2)}, -1.0 op_sel_hi:[1,0]')
                I.append(f'v_pk_fma_f32 {vr(t+4,2)}, {vr(t+4,2)}, {vr(t+2,2)}, {vr(t+4,2)}')
            else:
                for i in (0, 1): I.append(f'v_add_f32 v{t+4+i}, 1.0, v{t+i}')
                for i in (0, 1): I.append(f'v_fma_f32 v{t+4+i}, v{t+4+i}, v{t+2+i}, v{t+4+i}')
            I.append(f'v_rcp_f32 v{t+4}, v{t+4}')
            I.append(f'v_rcp_f32 v{t+5}, v{t+5}')
            if pk:
                I.append('s_nop 0')
                I.append(f'v_pk_mul_f32 {vr(t+6,2)}, {vr(t+6,2)}, {vr(t+4,2)}')
            else:
                for i in (0, 1): I.append(f'v_add_f32 v{t+6+i}, -1.0, v{t+i}')
                for i in (0, 1): I.append(f'v_mul_f32 v{t+6+i}, v{t+6+i}, v{t+4+i}')
            I.append(f'v_cvt_pk_bf16_f32 v{q}, v{t+6}, v{t+7}')
            I.append(f'buffer_store_dword v{q}, v{VOUT + j//3}, {sr(S_OUT)}, 0 offen offset:{1152*(j%3)} {o.oflags}')
            return I
        def cost(x): return 2 if x.startswith(('v_exp', 'v_rcp', 'buffer')) else 1
        e(f's_add_u32 s{WSO+27}, s{WSO}, {GT*1024}')
        while tasks and tasks[0][0] < 0: run(tasks.pop(0), -1)
        inv = {n: v for v, n in vstart.items()}
        lastop = {j: max(n for n in range(N) if ops[n][1] == j) for j in range(9)}
        for n, (g, j) in enumerate(ops):
            if n in inv and o.diag:
                v = inv[n]
                if o.diag == 2 and v in o.marks:
                    kk = o.marks.index(v)
                    e(f's_memtime s[{ST0+2*kk}:{ST0+2*kk+1}]'); dirty[0] = True
                if o.diag in (1, 4) and v == 33: stamp(5); stamp(6); dirty[0] = True
            k = key(n)
            assert k in xreg, (k, n)
            lwait(k); vwait(g)
            acc = S[g][4]
            d = ACC[acc] + 4 * j
            if g == 0: cs = '0'
            elif acc == 'Q' and S[g-1][4] == 'P': cs = vr(ACC['P'] + 4 * j, 4)
            else: cs = vr(d, 4)
            em(f'v_mfma_f32_16x16x32_bf16 {vr(d,4)}, {vr(wreg(g),4)}, {vr(xreg[k],4)}, {cs}')
            if n == lastop[j]: since[j] = 0
            budget = 2
            TC = {'X': 1, 'W': 2, 'L': 2, 'C': 1, 'I': 0, 'A': 1, 'Q': 2, 'S': 2}
            while True:
                ready = [t for t in tasks if t[0] <= n]
                if not ready: break
                t = min(ready, key=lambda t: t[1])
                assert t[1] >= n, ('late', t, n)
                if TC[t[2]] > budget and t[1] > n:
                    fit = [u for u in ready if TC[u[2]] <= budget]
                    if not fit: break
                    t = min(fit, key=lambda t: t[1])
                tasks.remove(t); run(t, n); budget -= TC[t[2]]
            for jj in sorted(since):
                if 8 <= since[jj] < 10**6:
                    fill += epi(jj, False); since[jj] = 10**6
            budget += o.nfill - 2
            while fill and budget >= cost(fill[0]):
                budget -= cost(fill[0]); em(fill.pop(0))
        assert not tasks
        stamp(7)
        while fill: em(fill.pop(0))
        for jj in [jj for jj in sorted(since) if since[jj] < 10**6]:
            if since[jj] < 8: em(f's_nop {8-since[jj]-1}')
            for x in epi(jj, True): em(x)
        stamp(8)
        if o.padto and o.padev[0] == 'm': padloop(typ)
        if o.diag == 1:
            e('s_waitcnt vmcnt(0)')
            stamp(9)
            dump(10)
        if o.diag == 2:
            kk = len(o.marks)
            e(f's_memtime s[{ST0+2*kk}:{ST0+2*kk+1}]')
            dump(10)
        e('s_endpgm')
        for tag, off, cnt in slow:
            e(f'L_slow{typ}{tag}:')
            e(f'ds_read_b32 v{VC}, v{VF+5 if off == "pair" else VF+1} offset:{24 if off == "pair" else off}')
            e('s_waitcnt lgkmcnt(0)')
            e(f'v_cmp_ne_u32 vcc, {cnt}, v{VC}')
            e('s_nop 4')
            e(f's_cbranch_vccnz L_slow{typ}{tag}')
            e(f's_branch L_back{typ}{tag}')

    e('.p2align 6')
    e('L_helper:')
    role[0] = 'h'
    e(f's_setprio {o.hprio}')
    e(f's_sub_u32 s{TW0}, s{WAVE}, 4')
    e(f's_mov_b32 s{TW1}, s{WAVE}')
    e(f's_mov_b32 s{TW2}, 8')
    e(f's_mov_b32 s{PAIR}, s{PAIR0}')
    e(f's_mov_b32 s{MODE}, 0')
    e(f's_mov_b32 s{HAS3}, s{TW0}')
    e(f's_lshl_b32 s{SCRB}, s{TW0}, 12')
    e(f's_add_u32 s{SCRB}, s{SCRB}, {SCR}')
    e(f'v_mov_b32 v10, {CNT}')
    for r in range(12, 16): e(f'v_mov_b32 v{r}, 0')
    e('ds_write_b128 v10, v[12:15]')
    e('ds_write_b128 v10, v[12:15] offset:16')
    e('L_prod:')
    T = [(64, TW0, 2, 3, 0), (96, TW1, 4, 5, 2048), (128, TW2, 6, 7, 16384)]
    c, kp, q, cc, kk, t = 46, 47, 48, 49, 50, 51
    b = TS
    e('v_mov_b32 v19, 4320')
    e('v_and_b32 v23, 3, v1')
    e('v_lshrrev_b32 v24, 3, v1')
    e('v_mul_u32_u24 v24, 576, v24')
    e('v_bfe_u32 v25, v1, 2, 1')
    e('v_mul_u32_u24 v25, 288, v25')
    e('v_add_u32 v24, v24, v25')
    for (vb, sw, vl, vs, so) in T:
        e(f'v_lshl_add_u32 v8, s{sw}, 2, v23')
        e('v_cmp_le_u32 vcc, 18, v8')
        e(f'v_lshl_add_u32 v{vl}, v8, 4, v24')
        e(f'v_add_u32 v9, v{vl}, v19')
        e(f'v_cndmask_b32 v{vl}, v{vl}, v9, vcc')
    e(f's_and_b32 s{c}, s{PAIR}, 15')
    e(f's_lshr_b32 s{kp}, s{PAIR}, 4')
    e(f's_mul_i32 s{b}, s{c}, 165888')
    e(f's_mul_i32 s{t}, s{kp}, 9216')
    e(f's_add_u32 s{b}, s{b}, s{t}')
    e(f's_add_u32 s{b+1}, s{b}, 82944')
    e(f's_mov_b32 s{S_W+2}, 2571264')
    e(f's_mov_b32 s{S_W+3}, 0x20000')
    e(f's_mov_b32 s{S_WO+3}, 0x20000')
    e(f's_cmp_lg_u32 s{c}, 15')
    e(f's_cselect_b32 s{S_WO+2}, 2571264, 0')
    e(f's_mov_b32 m0, s{SCRB}')
    e('s_waitcnt lgkmcnt(0)')
    e(f's_mov_b32 s{S_W}, s6')
    e(f's_and_b32 s{S_W+1}, s7, 0xffff')
    e(f's_mov_b32 s{S_WO}, s6')
    e(f's_and_b32 s{S_WO+1}, s7, 0xffff')
    e(f's_cmp_ge_u32 s{PAIR}, {NPROD}')
    e('s_cbranch_scc1 L_noprod')
    def cond3(lbl):
        e(f's_cmp_lg_u32 s{HAS3}, 0')
        e(f's_cbranch_scc1 {lbl}')
    for ti, (vb, sw, vl, vs, so) in enumerate(T):
        if ti == 2: cond3('L_a3')
        if ti:
            e(f's_add_u32 m0, s{SCRB}, {so}')
            e('s_nop 0')
        e(f'buffer_load_dwordx4 v{vl}, {sr(S_W)}, s{b} offen lds')
        e(f's_add_u32 m0, s{SCRB}, {so+1024}')
        e('s_nop 0')
        e(f'buffer_load_dwordx4 v{vl}, {sr(S_WO)}, s{b+1} offen lds')
    e('L_a3:')
    stamp(1)
    e(f's_cmp_lg_u32 s{WAVE}, 4')
    e('s_cbranch_scc1 L_a4')
    e(f's_load_dword s{TAG}, s[12:13], {NONCE}')
    e('L_a4:')
    if o.b0late:
        e(f's_cmp_lg_u32 s{MODE}, 0')
        e('s_cbranch_scc1 L_a4b')
        e('s_barrier')
        e('L_a4b:')
    srd(e, S_WS, 12, WS_REC)
    srd(e, S_DBG, 10, 256)
    e(f'v_mov_b32 v20, {(256 - 18*2*NSTEP*1024) & 0xffffffff}')
    e(f'v_mov_b32 v26, {2*NSTEP*1024}')
    e('v_bfe_u32 v21, v1, 2, 2')
    e('v_lshlrev_b32 v21, 7, v21')
    e('v_and_b32 v22, 1, v1')
    e('v_lshl_add_u32 v21, v22, 6, v21')
    e('v_bfe_u32 v22, v1, 1, 1')
    e('v_lshl_add_u32 v21, v22, 3, v21')
    e('v_lshrrev_b32 v22, 4, v1')
    e('v_lshl_add_u32 v21, v22, 4, v21')
    e(f'v_add_u32 v21, s{SCRB}, v21')
    e('v_and_b32 v25, 15, v1')
    e('v_lshlrev_b32 v25, 4, v25')
    for (vb, sw, vl, vs, so) in T:
        e(f'v_lshl_add_u32 v8, s{sw}, 2, v22')
        e('v_cmp_le_u32 vcc, 18, v8')
        e(f'v_mad_u32_u24 v{vs}, v8, v26, v25')
        e(f'v_add_u32 v9, v{vs}, v20')
        e(f'v_cndmask_b32 v{vs}, v{vs}, v9, vcc')
    e(f's_lshr_b32 s{q}, s{kp}, 1')
    e(f's_and_b32 s{cc}, s{c}, 7')
    e(f's_lshr_b32 s{kk}, s{c}, 3')
    e(f's_and_b32 s{t}, s{kp}, 1')
    e(f's_cmp_eq_u32 s{kp}, 8')
    e(f's_cselect_b32 s{cc}, s{cc}, s{c}')
    e(f's_cselect_b32 s{kk}, s{kk}, s{t}')
    e(f's_lshl_b32 s{kk}, s{kk}, 9')
    e(f's_add_u32 s{kk}, s{kk}, {WOFF}')
    e(f's_lshl_b32 s{t}, s{q}, 4')
    e(f's_add_u32 s{b+2}, s{t}, s{cc}')
    e(f's_sub_u32 s{b+3}, s{b+2}, s{q}')
    e(f's_cmp_ge_u32 s{q}, 2')
    e(f's_cselect_b32 s{b+4}, 74, 0')
    e(f's_add_u32 s{b+4}, s{b+4}, s{b+2}')
    e(f's_cmp_lt_u32 s{cc}, 2')
    e(f's_cselect_b32 s{t}, 32, 136')
    e(f's_add_u32 s{t}, s{t}, s{cc}')
    e(f's_cmp_eq_u32 s{kp}, 8')
    e(f's_cselect_b32 s{b+4}, s{t}, s{b+4}')
    e(f's_add_u32 s{b+2}, s{b+2}, 34')
    e(f's_add_u32 s{b+3}, s{b+3}, 144')
    for k in (2, 3, 4):
        e(f's_lshl_b32 s{b+k}, s{b+k}, 10')
        e(f's_add_u32 s{b+k}, s{b+k}, s{kk}')
    e(f's_cmp_eq_u32 s{kp}, 8')
    e(f's_cselect_b32 s{t}, 1, 2')
    e(f's_cmp_eq_u32 s{c}, 15')
    e(f's_cselect_b32 s{b+5}, s{t}, 0')
    e('s_waitcnt vmcnt(0) lgkmcnt(0)')
    stamp(2)
    e('v_mov_b32 v27, 0')
    e(f's_cmp_lg_u32 s{WAVE}, 4')
    e('s_cbranch_scc1 L_a5')
    e('v_mov_b32 v12, 4')
    e('s_mov_b64 exec, 1')
    e(f'buffer_load_dword v27, v12, {sr(S_DBG)}, 0 offen sc1')
    e('s_mov_b64 exec, -1')
    e('L_a5:')
    def trreads(vb, so):
        for tap in range(2):
            for half in range(2):
                e(f'ds_read_b64_tr_b16 {vr(vb+4*tap+2*half,2)}, v21 offset:{so+1024*tap+512*half}')
    def st01(vb, vs, n0, n1, tag):
        e(f's_waitcnt lgkmcnt({n0})')
        e(f'buffer_store_dwordx4 {vr(vb,4)}, v{vs}, {sr(S_WS)}, s{b+2} offen sc1')
        e(f's_waitcnt lgkmcnt({n1})')
        e(f's_cmp_eq_u32 s{b+5}, 2')
        e(f's_cbranch_scc1 L_skip{tag}')
        e(f'buffer_store_dwordx4 {vr(vb+4,4)}, v{vs}, {sr(S_WS)}, s{b+3} offen sc1')
        e(f'L_skip{tag}:')
    def stsum(vb, vs):
        for i in range(8):
            e(f'v_lshlrev_b32 v{vb+8+2*i}, 16, v{vb+i}')
            e(f'v_and_b32 v{vb+9+2*i}, s{MASK}, v{vb+i}')
        for i in range(4):
            e(f'v_pk_add_f32 {vr(vb+8+2*i,2)}, {vr(vb+8+2*i,2)}, {vr(vb+16+2*i,2)}')
        for i in range(4):
            e(f'v_cvt_pk_bf16_f32 v{vb+24+i}, v{vb+8+2*i}, v{vb+9+2*i}')
        e(f'buffer_store_dwordx4 {vr(vb+24,4)}, v{vs}, {sr(S_WS)}, s{b+4} offen sc1')
    for tt in T: trreads(tt[0], tt[4])
    st01(T[0][0], T[0][3], 10, 8, 0)
    st01(T[1][0], T[1][3], 6, 4, 1)
    stsum(T[0][0], T[0][3])
    stsum(T[1][0], T[1][3])
    cond3('L_b3')
    st01(T[2][0], T[2][3], 2, 0, 2)
    stsum(T[2][0], T[2][3])
    e('L_b3:')
    e(f's_cmp_eq_u32 s{MODE}, 0')
    e('s_cbranch_scc1 L_b4')
    e('s_waitcnt vmcnt(0) lgkmcnt(0)')
    e(f's_add_u32 s{PAIR}, s{PAIR}, 1')
    e(f's_cmp_lt_u32 s{PAIR}, {NPROD}')
    e('s_cbranch_scc1 L_prod')
    e('s_branch L_go')
    e('L_noprod:')
    if o.b0late: e('s_barrier')
    srd(e, S_WS, 12, WS_REC)
    stamp(1); stamp(2)
    e('L_b4:')
    if not o.b0late: e('s_barrier')
    if o.b0late:
        pass
    stamp(3)
    decode()
    e('v_subrev_u32 v4, 256, v0')
    e('v_min_u32 v4, 251, v4')
    e('v_mul_u32_u24 v3, 3641, v4')
    e('v_lshrrev_b32 v3, 16, v3')
    e('v_mul_u32_u24 v2, 18, v3')
    e('v_sub_u32 v2, v4, v2')
    e(f'v_mul_u32_u24 v3, {R}, v3')
    e(f'v_min_u32 v3, {160-R}, v3')
    e('v_mul_u32_u24 v4, 1152, v3')
    e('v_lshl_add_u32 v4, v2, 4, v4')
    e(f'v_add_u32 v12, s{XB}, v4')
    e('v_mul_u32_u24 v18, 288, v3')
    e('v_lshl_add_u32 v18, v2, 4, v18')
    e(f'v_add_u32 v19, {X_D1}, v18')
    srd(e, S_X, 4, 1152000, add=BOFF)
    e(f's_cmp_ge_u32 s{PAIR0}, {NPROD}')
    e('s_cbranch_scc1 L_noflag')
    e(f'v_mov_b32 v10, {CNT}')
    e(f's_mul_i32 s46, s{PAIR0}, {o.fstride}')
    e('v_mov_b32 v16, s46')
    e('s_mov_b64 exec, 1')
    e(f's_cmp_lg_u32 s{WAVE}, 4')
    e('s_cbranch_scc1 L_nottag')
    e(f's_add_u32 s46, s{TAG}, {TAGINC}')
    e('v_mov_b32 v15, s46')
    e('ds_write_b32 v10, v15 offset:4')
    e('L_nottag:')
    e('s_waitcnt vmcnt(0)')
    stamp(4)
    e('v_cmp_ne_u32 vcc, 0, v27')
    e('v_mov_b32 v13, 1')
    e('v_mov_b32 v14, 0x101')
    e('v_cndmask_b32 v13, v13, v14, vcc')
    e('ds_add_rtn_u32 v14, v10, v13')
    e('ds_read_b32 v15, v10 offset:4')
    e('s_waitcnt lgkmcnt(0)')
    e('v_add_u32 v14, v14, v13')
    e('v_cmp_eq_u32 vcc, 4, v14')
    e('s_and_b64 exec, exec, vcc')
    e('s_cbranch_execz L_notlast')
    e(f'buffer_store_dword v15, v16, {sr(S_WS)}, 0 offen sc1')
    e('L_notlast:')
    e('s_mov_b64 exec, -1')
    e('L_noflag:')
    if o.b0late: e('s_barrier')
    e(f's_setprio {o.hprio2}')
    RAW, ORAW = 64, 120
    EU = [184, 192]
    OU, DT, DO = 200, 208, 216
    xi = [0]
    NL = R + 1
    def eload():
        k = xi[0]
        if k >= NL: return
        a_ = 12
        if k:
            a_ = 13 + (k & 3)
            e(f'v_add_u32 v{a_}, {1152*k}, v12')
        e(f'buffer_load_dwordx4 {vr(RAW+4*k,4)}, v{a_}, {sr(S_X)}, 0 offen')
        xi[0] += 1
    if o.etouch:
        e(f's_cmp_lt_u32 s{PAIR0}, {NPROD}')
        e('s_cbranch_scc1 L_net')
        if o.etouch == 2:
            e(f's_and_b32 s46, s{NB}, 1')
            e(f's_mul_i32 s46, s46, {1152*6}')
            e('v_add_u32 v12, s46, v12')
            for _ in range(7): eload()
            e('v_subrev_u32 v12, s46, v12')
        else:
            for _ in range(NL): eload()
        e('s_waitcnt vmcnt(0)')
        e('L_net:')
        xi[0] = 0
    for _ in range(o.epre): eload()
    e('s_waitcnt lgkmcnt(0)')
    stamp(5)
    if o.dec:
        for _ in range(max(0, o.ein - o.epre)): eload()
        e(f'v_mov_b32 v10, {CNT}')
        e('s_mov_b64 exec, 1')
        e('L_ow:')
        e('ds_read_b32 v11, v10 offset:8')
        e('s_waitcnt lgkmcnt(0)')
        e('v_cmp_ne_u32 vcc, 4, v11')
        e('s_nop 4')
        e('s_cbranch_vccz L_ow2')
        e('s_sleep 1')
        e('s_branch L_ow')
        e('L_ow2:')
        e('s_mov_b64 exec, -1')
    else:
        e('s_barrier')
    stamp(6)
    if not o.dec:
        for _ in range(max(0, o.ein - o.epre)): eload()
    for j in range(R):
        e(f'ds_read_b128 {vr(ORAW+4*j,4)}, v18 offset:{X_O+288*j}')
    def unpack(dst, s_):
        for i in range(4):
            e(f'v_lshlrev_b32 v{dst+2*i}, 16, v{s_+i}')
            e(f'v_and_b32 v{dst+2*i+1}, s{MASK}, v{s_+i}')
    def unpackE(dst, k):
        e(f's_waitcnt vmcnt({xi[0]-1-k})')
        unpack(dst, RAW + 4 * k)
        eload()
    def diff(eu, out):
        if o.nopk:
            for i in range(8): e(f'v_sub_f32 v{DT+i}, v{eu+i}, v{OU+i}')
        else:
          for i in range(4):
            e(f'v_pk_add_f32 {vr(DT+2*i,2)}, {vr(eu+2*i,2)}, {vr(OU+2*i,2)} neg_lo:[0,1] neg_hi:[0,1]')
        for i in range(4):
            e(f'v_cvt_pk_bf16_f32 v{out+i}, v{DT+2*i}, v{DT+2*i+1}')
    unpackE(EU[0], 0)
    e('s_waitcnt lgkmcnt(0)')
    for j in range(R):
        o0 = DO + 8 * (j & 1)
        unpack(OU, ORAW + 4 * j)
        diff(EU[j & 1], o0)
        e(f'ds_write_b128 v18, {vr(o0,4)} offset:{X_D0+288*j}')
        unpackE(EU[(j + 1) & 1], j + 1)
        diff(EU[(j + 1) & 1], o0 + 4)
        e(f'ds_write_b128 v19, {vr(o0+4,4)} offset:{288*j}')
    e('s_waitcnt lgkmcnt(0)')
    stamp(7)
    e('v_mov_b32 v11, 1')
    e('s_mov_b64 exec, 1')
    e('ds_add_u32 v10, v11 offset:16')
    e('s_mov_b64 exec, -1')
    if o.padto and o.padev[0] == 'h': padloop('h')
    if o.diag == 1:
        stamp(8); stamp(9)
        dump(10)
    e('L_end:')
    e('s_endpgm')
    e('.section .rodata,"a"')
    e('.p2align 6')
    e(f'.amdhsa_kernel {KN}')
    for x in ['next_free_vgpr 256', 'next_free_sgpr 102', 'accum_offset 256', 'group_segment_fixed_size 0', 'kernarg_size 40',
              'user_sgpr_count 2', 'user_sgpr_kernarg_segment_ptr 1', 'system_sgpr_workgroup_id_x 1']:
        e('  .amdhsa_' + x)
    e('.end_amdhsa_kernel')
    n = haz.check(e.L)
    if n: print(f'{n} hazards', file=sys.stderr)
    return f'; @launch grid=({NWG},1,1) block=(512,1,1) lds={LDS_BYTES}\n' + e.text()

def opts(argv=None):
    ap = argparse.ArgumentParser()
    ap.add_argument('-o', default='k.s')
    for nm, d in [('diag', 0), ('pf', 7), ('wsc1', 0), ('nfill', 2), ('fstride', 128), ('sleep', 0), ('maxpoll', 3000), ('nopoll', 0),
                  ('hprio', 3), ('hprio2', 0), ('mprio', 2), ('epre', 0), ('ein', 4), ('vbd', 33), ('nopk', 1), ('padto', 0), ('npdelay', 0), ('opre', 2), ('etouch', 2), ('orev', 1), ('b0late', 1), ('dec', 1), ('tail', 1), ('xla', 9), ('hold', 1)]:
        ap.add_argument('--' + nm, type=int, default=d)
    ap.add_argument('--oflags', default='')
    ap.add_argument('--pmap', default='18,18,18,18,18,18,18,18')
    ap.add_argument('--padev', default='m0')
    ap.add_argument('--marks', default='0,4,8,12,16,24,33,47,58')
    o = ap.parse_args(argv)
    o.marks = [int(x) for x in o.marks.split(',')]
    return o

if __name__ == '__main__':
    o = opts()
    open(o.o, 'w').write(gen(o))
```

```python
import re, sys, argparse
import haz

KN = 'standalone__autoregressive_conv_wavernn__speech_kernel'
NWG = 252
NPROD = 144
ARR = 160 * 288
X_D0, X_O, X_D1 = 0, ARR, 2 * ARR
CNT = 3 * ARR
SCR = CNT + 64
LDS_BYTES = SCR + 18432
NSTEP = 106
WOFF = int(__import__('os').environ.get('WOFF', '0x100000'), 0)
NONCE = 0x10000
DIAG = 0x800000
WS_REC = max(0x1000000, WOFF + 0x400000)
TAGINC = 0x9E3779B9
R = 12

class Em:
    def __init__(self): self.L = []
    def __call__(self, s): self.L.append(s)
    def text(self): return '\n'.join(self.L) + '\n'

def vr(a, n=1): return f'v{a}' if n == 1 else f'v[{a}:{a+n-1}]'
def sr(a, n=4): return f's[{a}:{a+n-1}]'

def streams():
    out = []
    for typ in (0, 1):
        S = []
        pid = [0]
        def add(arr, chunk, cs, acc):
            for c in cs: S.append((pid[0], arr, chunk, c, acc))
            pid[0] += 1
        if typ == 0:
            add('O', 0, range(16), 'P'); add('O', 1, range(16), 'P'); add('O', 'rem', range(0, 2), 'P')
            for q in range(4): add('D', q, range(16), 'Q')
            add('D', 'rem', range(8), 'Q')
        else:
            add('O', 2, range(16), 'P'); add('O', 3, range(16), 'P'); add('O', 'rem', range(2, 8), 'P')
            for q in range(4): add('D', q, range(15), 'Q')
            add('D', 'rem', range(8), 'Q')
        assert len(S) == NSTEP
        out.append(S)
    return out

S_X, S_W, S_WO, S_WS, S_OUT, S_DBG = 20, 24, 28, 32, 36, 40
WAVE, NB, BAT, PAR, MB, BOFF = 14, 15, 16, 17, 18, 19
PAIR0 = 3
XB = 52
MASK = 53
TW0, TW1, TW2, PAIR, HAS3, MODE, SCRB, TAG, LAST, NPOLL = 44, 45, 54, 55, 56, 57, 58, 59, 60, 61
TS = 62
TYP, WSO = 68, 69
C2L, CNL, C60 = 90, 92, 94
ST0 = 70

def srd(e, d, ptr, rec, add=None):
    if add is None:
        e(f's_mov_b32 s{d}, s{ptr}')
        e(f's_and_b32 s{d+1}, s{ptr+1}, 0xffff')
    else:
        e(f's_add_u32 s{d}, s{ptr}, s{add}')
        e(f's_addc_u32 s{d+1}, s{ptr+1}, 0')
        e(f's_and_b32 s{d+1}, s{d+1}, 0xffff')
    e(f's_mov_b32 s{d+2}, {rec}')
    e(f's_mov_b32 s{d+3}, 0x20000')

def gen(o):
    e = Em()
    role = ['m']
    def padloop(tag):
        e(f'L_pad{tag}:')
        e('s_memrealtime s[98:99]')
        e('s_waitcnt lgkmcnt(0)')
        e('s_sub_u32 s98, s98, s100')
        e(f's_cmp_lt_u32 s98, {o.padto}')
        e(f's_cbranch_scc1 L_pad{tag}')
    def stamp(k, lvl=1):
        if o.padto and lvl == 1 and o.padev == f'{role[0]}{k}':
            e('s_memrealtime s[100:101]'); e('s_waitcnt lgkmcnt(0)')
        if o.diag == lvl or (o.diag == 4 and lvl == 1): e(f's_memrealtime s[{ST0+2*k}:{ST0+2*k+1}]')
    def dump(nst):
        e('s_waitcnt lgkmcnt(0)')
        e('v_mov_b32 v250, 0')
        for k in range(nst): e(f'v_writelane_b32 v250, s{ST0+2*k}, {k}')
        e(f'v_writelane_b32 v250, s{NPOLL}, 13')
        e(f'v_writelane_b32 v250, s{PAIR0}, 14')
        e('s_getreg_b32 s46, hwreg(HW_REG_XCC_ID)')
        e('v_writelane_b32 v250, s46, 15')
        e(f's_lshl_b32 s46, s2, 3'); e(f's_add_u32 s46, s46, s{WAVE}'); e('s_lshl_b32 s46, s46, 6'); e(f's_add_u32 s46, s46, {DIAG}')
        e('v_lshl_add_u32 v251, v1, 2, s46')
        e('s_mov_b64 exec, 0xffff')
        e(f'buffer_store_dword v250, v251, {sr(S_WS)}, 0 offen')
        e('s_mov_b64 exec, -1')

    e('.amdgcn_target "amdgcn-amd-amdhsa--gfx950"')
    e('.text')
    e(f'.globl {KN}')
    e('.p2align 8')
    e(f'.type {KN},@function')
    e(f'{KN}:')
    e(f's_cmp_ge_u32 s2, {NWG}')
    e('s_cbranch_scc1 L_end')
    stamp(0)
    if o.padto and o.padev != 'm0': e('s_memrealtime s[100:101]')
    e('s_load_dwordx4 s[4:7], s[0:1], 0')
    e('s_load_dwordx4 s[8:11], s[0:1], 16')
    e('s_load_dwordx2 s[12:13], s[0:1], 32')
    e('v_lshrrev_b32 v2, 6, v0')
    e('v_and_b32 v1, 63, v0')
    e(f'v_readfirstlane_b32 s{WAVE}, v2')
    def decode():
        e('s_and_b32 s44, s2, 7')
        e('s_lshr_b32 s45, s2, 3')
        e('s_mul_i32 s46, s44, 31')
        e('s_min_u32 s44, s44, 4')
        e('s_add_u32 s46, s46, s44')
        e('s_add_u32 s46, s46, s45')
        e('s_mul_hi_u32 s47, s46, 68174085')
        e('s_mul_i32 s48, s47, 63')
        e('s_sub_u32 s48, s46, s48')
        e(f's_mul_hi_u32 s{NB}, s48, 613566757')
        e(f's_mul_i32 s49, s{NB}, 7')
        e('s_sub_u32 s49, s48, s49')
        e('s_mul_i32 s47, s47, 7')
        e('s_add_u32 s47, s47, s49')
        e(f's_and_b32 s{PAR}, s47, 1')
        e('s_lshr_b32 s47, s47, 1')
        e('s_cmp_ge_u32 s47, 7')
        e(f's_cselect_b32 s{BOFF}, 1152000, 0')
        e('s_cselect_b32 s48, 7, 0')
        e(f's_sub_u32 s{MB}, s47, s48')
        e(f's_mul_i32 s{XB}, s{MB}, 576')
        e(f's_add_u32 s{XB}, s{XB}, s{PAR}')
        e(f's_sub_u32 s{XB}, s{XB}, 60')
        e(f's_mul_i32 s{XB}, s{XB}, 288')
    e(f's_mov_b32 s{MASK}, 0xffff0000')
    e(f's_mov_b32 s{NPOLL}, 0')
    cnts = [int(x) for x in o.pmap.split(',')]
    assert sum(cnts) == NPROD
    if cnts == [18] * 8:
        e(f's_mov_b32 s{PAIR0}, s2')
    else:
        base = [sum(cnts[:i]) for i in range(8)]
        pk = lambda L: sum(v << (8 * i) for i, v in enumerate(L))
        e('s_and_b32 s44, s2, 7')
        e('s_lshl_b32 s44, s44, 3')
        e(f's_mov_b32 s46, {pk(cnts[:4])}'); e(f's_mov_b32 s47, {pk(cnts[4:])}')
        e(f's_mov_b32 s48, {pk(base[:4])}'); e(f's_mov_b32 s49, {pk(base[4:])}')
        e('s_lshr_b64 s[46:47], s[46:47], s44')
        e('s_lshr_b64 s[48:49], s[48:49], s44')
        e('s_and_b32 s46, s46, 0xff')
        e('s_and_b32 s48, s48, 0xff')
        e('s_lshr_b32 s45, s2, 3')
        e('s_add_u32 s48, s48, s45')
        e('s_cmp_lt_u32 s45, s46')
        e(f's_cselect_b32 s{PAIR0}, s48, 255')
    e(f's_cmp_ge_u32 s{WAVE}, 4')
    e('s_cbranch_scc1 L_helper')
    decode()

    VXO, VXOR, VXD, VXDR, VWL, VEX, VEXP, VOUT = 30, 31, 32, 33, 34, 35, 36, 37
    VF = 40
    VA = 48
    VCL = 60
    e('v_mul_u32_u24 v3, 3641, v0')
    e('v_lshrrev_b32 v3, 16, v3')
    e('v_mul_u32_u24 v2, 18, v3')
    e('v_sub_u32 v2, v0, v2')
    e('v_mul_u32_u24 v3, 1152, v3')
    e('v_lshl_add_u32 v3, v2, 4, v3')
    e(f's_add_u32 s46, s{XB}, 576')
    e(f'v_add_u32 v{VA}, s46, v3')
    e('v_mov_b32 v5, 16192')
    e('v_mov_b32 v6, 17056')
    for k in range(1, 12):
        e('v_cmp_le_u32 vcc, 14, v2')
        e('v_add_u32 v3, 4, v2')
        e('v_subrev_u32 v4, 14, v2')
        e('v_cndmask_b32 v7, v5, v6, vcc')
        e('v_cndmask_b32 v2, v3, v4, vcc')
        e(f'v_add_u32 v{VA+k}, v{VA+k-1}, v7')
    e('v_and_b32 v2, 15, v1')
    e('v_lshrrev_b32 v3, 4, v1')
    e('v_subrev_u32 v5, 4, v2')
    e('v_add_u32 v6, 8, v2')
    e('v_cmp_gt_u32 vcc, 4, v2')
    e('v_cmp_le_u32 s[46:47], 12, v2')
    e(f's_and_b32 s{TYP}, s{WAVE}, 1')
    e(f's_lshr_b32 s48, s{WAVE}, 1')
    e('v_cndmask_b32 v5, v5, v6, vcc')
    e('v_cndmask_b32 v5, v5, v2, s[46:47]')
    e('v_mul_u32_u24 v5, 9, v5')
    e('v_mul_u32_u24 v4, 288, v5')
    e('v_lshl_add_u32 v6, v3, 4, v4')
    e('v_and_b32 v7, 1, v3')
    e('v_lshl_add_u32 v7, v7, 4, v4')
    e('v_lshrrev_b32 v8, 1, v3')
    e('v_mul_u32_u24 v8, 2304, v8')
    e('v_add_u32 v7, v7, v8')
    e('v_add_u32 v7, 256, v7')
    e(f's_mul_i32 s49, s{TYP}, {X_D1}')
    e(f'v_add_u32 v{VXO}, {X_O}, v6')
    e(f'v_add_u32 v{VXOR}, {X_O}, v7')
    e(f'v_add_u32 v{VXD}, s49, v6')
    e(f'v_add_u32 v{VXDR}, s49, v7')
    e('v_lshlrev_b32 v6, 4, v1')
    e(f's_mul_i32 s49, s{WAVE}, 9216')
    e(f's_add_u32 s49, s49, {X_O}')
    e(f'v_add_u32 v{VEX}, s49, v6')
    e(f's_xor_b32 s49, s{WAVE}, 1')
    e('s_mul_i32 s49, s49, 9216')
    e(f's_add_u32 s49, s49, {X_O}')
    e(f'v_add_u32 v{VEXP}, s49, v6')
    e('v_and_b32 v8, 0x39, v1')
    e('v_bfe_u32 v9, v1, 1, 1')
    e('v_lshl_add_u32 v8, v9, 2, v8')
    e('v_bfe_u32 v9, v1, 2, 1')
    e('v_lshl_add_u32 v8, v9, 1, v8')
    e(f'v_lshlrev_b32 v{VWL}, 4, v8')
    e(f's_mul_i32 s49, s{TYP}, 576')
    e(f's_add_u32 s49, s49, s{XB}')
    e(f's_add_u32 s49, s49, {60*288}')
    e(f's_lshl_b32 s50, s{NB}, 5')
    e('s_add_u32 s49, s49, s50')
    e('s_lshl_b32 s50, s48, 4')
    e('s_add_u32 s49, s49, s50')
    e('v_mul_u32_u24 v8, 1152, v5')
    e('v_lshl_add_u32 v8, v3, 2, v8')
    e(f'v_add_u32 v{VOUT}, s49, v8')
    e(f'v_add_u32 v{VOUT+1}, 3456, v{VOUT}')
    e(f'v_add_u32 v{VOUT+2}, 6912, v{VOUT}')
    e(f's_lshl_b32 s49, s{NB}, 1')
    e('s_add_u32 s49, s49, s48')
    e('s_lshl_b32 s49, s49, 1')
    e(f's_add_u32 s49, s49, s{TYP}')
    e(f's_mul_i32 s{WSO}, s49, {NSTEP*1024}')
    e(f's_add_u32 s{WSO}, s{WSO}, {WOFF}')
    e(f's_mov_b32 s{C2L}, 0x4038aa3b'); e(f's_mov_b32 s{C2L+1}, 0x4038aa3b')
    e(f's_mov_b32 s{CNL}, 0xbfb8aa3b'); e(f's_mov_b32 s{CNL+1}, 0xbfb8aa3b')
    e(f's_mov_b32 s{C60}, 0x42700000')
    e(f'v_min_u32 v{VF}, 35, v1')
    e(f's_mul_i32 s46, s{WAVE}, 36')
    e(f'v_add_u32 v{VF}, s46, v{VF}')
    e(f'v_mul_u32_u24 v{VF}, {o.fstride}, v{VF}')
    e(f's_lshl_b32 s50, s{WAVE}, 10')
    e(f's_add_u32 s50, s50, {X_O}')
    e(f's_add_u32 s51, s50, {4096*11}')
    e('s_movk_i32 s49, 4096')
    if o.orev:
        e(f's_bitcmp0_b32 s{NB}, 0')
        e('s_cbranch_scc1 L_fwd')
        for k in range(5): e(f'v_swap_b32 v{VA+k}, v{VA+10-k}')
        e(f's_add_u32 s50, s50, {4096*10}')
        e('s_movk_i32 s49, -4096')
        e('L_fwd:')
    e(f's_or_b32 s46, s2, s{WAVE}')
    e('v_or_b32 v2, s46, v1')
    e('v_cmp_eq_u32 vcc, 0, v2')
    e(f'v_mov_b32 v{VCL}, -16')
    e(f'v_mov_b32 v{VCL+1}, -16')
    e(f'v_mov_b32 v3, {NONCE}')
    e(f'v_cndmask_b32 v{VCL}, v{VCL}, 4, vcc')
    e(f'v_cndmask_b32 v{VCL+1}, v{VCL+1}, v3, vcc')
    e('s_waitcnt lgkmcnt(0)')
    e(f's_load_dword s{TAG}, s[12:13], {NONCE}')
    srd(e, S_X, 4, 1152000, add=BOFF)
    srd(e, S_WS, 12, WS_REC)
    srd(e, S_OUT, 8, 1152000, add=BOFF)
    srd(e, S_DBG, 10, 256)
    def odma(k):
        e(f's_mov_b32 m0, s{51 if k == 11 else 50}')
        e('s_add_u32 s50, s50, s49')
        e(f'buffer_load_dwordx4 v{VA+k}, {sr(S_X)}, 0 offen lds')
    if o.b0late: e('s_barrier')
    if o.npdelay:
        e(f's_cmp_lt_u32 s{PAIR0}, {NPROD}')
        e('s_cbranch_scc1 L_nd')
        e('s_waitcnt lgkmcnt(0)')
        e('L_nd:')
    for k in range(o.opre): odma(k)
    e('s_barrier')
    stamp(1)
    for k in range(o.opre, 12):
        if k == 11:
            e(f's_cmp_lg_u32 s{WAVE}, 0')
            e('s_cbranch_scc1 L_o11')
        odma(k)
    e('L_o11:')
    e(f'v_mov_b32 v{VF+1}, {CNT}')
    e(f'v_mov_b32 v{VF+2}, 1')
    e(f's_lshr_b32 s46, s{WAVE}, 1')
    e('s_lshl_b32 s46, s46, 2')
    e(f'v_add_u32 v{VF+5}, s46, v{VF+1}')
    e('s_waitcnt vmcnt(0) lgkmcnt(0)')
    stamp(2)
    if o.dec:
        e('s_mov_b64 exec, 1')
        e(f'ds_add_u32 v{VF+1}, v{VF+2} offset:8')
        e('s_mov_b64 exec, -1')
    e(f's_add_u32 s{TAG}, s{TAG}, {TAGINC}')
    e(f'v_mov_b32 v{VF+3}, s{TAG}')
    if o.nopoll: e('s_branch L_go')
    e('L_poll:')
    e(f'buffer_load_dword v{VF+4}, v{VF}, {sr(S_WS)}, 0 offen sc1')
    e(f's_add_u32 s{NPOLL}, s{NPOLL}, 1')
    e('s_waitcnt vmcnt(0)')
    e(f'v_cmp_ne_u32 vcc, v{VF+3}, v{VF+4}')
    e('s_nop 4')
    e('s_cbranch_vccz L_go')
    if o.sleep: e(f's_sleep {o.sleep}')
    e(f's_cmp_lt_u32 s{NPOLL}, {o.maxpoll}')
    e('s_cbranch_scc1 L_poll')
    e(f's_mov_b32 s{MODE}, 1')
    e(f's_mov_b32 s{HAS3}, 1')
    e(f's_lshr_b32 s{TW0}, s{NB}, 1')
    e(f's_add_u32 s{TW1}, s{NB}, 9')
    e(f's_lshr_b32 s{TW1}, s{TW1}, 1')
    e(f's_mov_b32 s{TW2}, 8')
    e(f's_mov_b32 s{PAIR}, 0')
    e(f's_lshl_b32 s{SCRB}, s{WAVE}, 12')
    e(f's_add_u32 s{SCRB}, s{SCRB}, {SCR}')
    e('s_branch L_prod')
    e('L_go:')
    stamp(3)
    if o.dec:
        e('s_mov_b64 exec, 1')
        e(f'ds_add_u32 v{VF+1}, v{VF+2} offset:12')
        e('L_gw:')
        e(f'ds_read_b32 v{VF+4}, v{VF+1} offset:12')
        e('s_waitcnt lgkmcnt(0)')
        e(f'v_cmp_ne_u32 vcc, 4, v{VF+4}')
        e('s_nop 4')
        e('s_cbranch_vccnz L_gw')
        e('s_mov_b64 exec, -1')
    else:
        e('s_barrier')
    stamp(4)
    e(f's_setprio {o.mprio}')
    e(f's_cmp_eq_u32 s{TYP}, 1')
    e('s_cbranch_scc1 L_typeB')

    ACC = {'P': 64, 'Q': 100}
    WR, TMP = 136, 224
    XRING = [200 + 4 * i for i in range(6)]
    XWIN = [4 + 4 * i for i in range(6)] + [240 + 4 * i for i in range(4)]
    VC = 28
    PF = o.pf
    GT = 98
    wflags = ' sc1' if o.wsc1 else ''
    def wreg(g):
        return ACC['P'] + 4 * (g - GT) if (o.tail and g >= GT) else WR + 4 * (g % 16)
    for typ, S in enumerate(streams()):
        if typ == 1: e('.p2align 6'); e('L_typeB:')
        ops = []
        vstart = {}
        lastv = GT - 1 if o.tail else NSTEP + 7
        for v in range(lastv + 1):
            vstart[v] = len(ops)
            for j in range(8, -1, -1):
                if 0 <= v - j < NSTEP: ops.append((v - j, j))
        ntail = len(ops)
        if o.tail:
            for j in range(9):
                for g in range(GT - j, NSTEP): ops.append((g, j))
        assert len(ops) == NSTEP * 9 and len(set(ops)) == len(ops)
        N = len(ops)
        def key(n):
            g, j = ops[n]
            pid, arr, ch, c, acc = S[g]
            k = (pid, arr, ch, c + j)
            if n >= ntail and g < GT: k = k + ((n,) if not o.hold else ('h',))
            return k
        first, last = {}, {}
        for n in range(N):
            first.setdefault(key(n), n); last[key(n)] = n
        wfirst, wlast = {}, {}
        for n, (g, j) in enumerate(ops):
            wfirst.setdefault(g, n); wlast[g] = n
        tasks = []
        for k, n0 in first.items():
            win = o.tail and k[2] == 'rem' and k[1] == 'D'
            la = o.xla if n0 < ntail else 6
            if win: la = 40 if k[3] < 8 else 12
            tasks.append([n0 - la, n0 - 1, 'X', k])
        for g in range(NSTEP):
            if o.tail and g >= GT: rel = vstart[76 + 2 * (g - GT)] + 3
            elif g < PF: rel = -100 + g
            else: rel = vstart[g - PF] + (0 if g < 16 else 0)
            if g >= 16 and not (o.tail and g >= GT): rel = max(rel, wlast[g - 16])
            tasks.append([rel, wfirst[g] - 1, 'W', g])
        def at(v, off=0): return vstart[v] + off
        firstD = min(n for n in range(N) if S[ops[n][0]][1] == 'D')
        lastO = max(n for n in range(N) if S[ops[n][0]][1] == 'O')
        lastP = {j: max(n for n in range(N) if ops[n][1] == j and S[ops[n][0]][4] == 'P') for j in range(9)}
        slow = []
        def check(v, off, cnt, tag):
            tasks.append([at(v - 1, 3), at(v - 1, 8), 'L', (f'ds_read_b32 v{VC}, v{VF+1} offset:{off}', ('c', tag))])
            tasks.append([at(v, 0), at(v, 1), 'C', (f'v_cmp_ne_u32 vcc, {cnt}, v{VC}', ('c', tag))])
            tasks.append([at(v, 6), at(v, 7), 'I', [f's_cbranch_vccnz L_slow{typ}{tag}', f'L_back{typ}{tag}:']])
            slow.append((tag, off, cnt))
            return at(v, 8)
        def add1(pos, off):
            tasks.append([pos, pos + 4, 'A', off])
        vD = [v for v in vstart if vstart[v] <= firstD - o.xla][-1] - 1
        okD = check(vD, 16, 4, 'D')
        assert okD <= firstD - o.xla
        add1(lastO, 20)
        VP = 47
        okR = check(VP, 20, 4, 'R')
        for j in range(9):
            assert lastP[j] + 12 < at(VP + 1 + j, 2)
            tasks.append([at(VP + 1 + j, 2), at(VP + 1 + j, 8), 'L', (f'ds_write_b128 v{VEX}, {vr(ACC["P"]+4*j,4)} offset:{1024*j}', ('pw', j))])
        tasks.append([at(VP + 10, 0), at(VP + 10, 4), 'A', 'pair'])
        VQ = VP + 13
        okP = check(VQ, 'pair', 2, 'P')
        for j in range(9):
            tasks.append([at(VQ + 1 + j, 2), at(VQ + 1 + j, 8), 'L', (f'ds_read_b128 {vr(TMP+4*(j&1),4)}, v{VEXP} offset:{1024*j}', ('pr', j))])
            v = VQ + 2 + j
            pos = at(v, 8 - (j + 2) - 1) if j <= 6 else at(v, 8 - (j - 7) - 1)
            sh = 1 if j >= 7 else 0
            tasks.append([pos - 1 + sh, pos - 1 + sh, 'Q', (j, 0)])
            tasks.append([pos + sh, pos + sh, 'Q', (j, 1)])
        if typ == 0:
            tasks.append([at(72, 4), at(72, 8), 'S', f'buffer_store_dword v{VCL+1}, v{VCL}, {sr(S_DBG)}, 0 offen sc1'])
            tasks.append([at(92, 4), at(92, 8), 'S', f'buffer_store_dword v{VF+3}, v{VCL+1}, {sr(S_WS)}, 0 offen sc1'])
        tasks.sort(key=lambda t: (t[0], t[1]))
        vq, lq = [], []
        dirty = [False]
        xreg, busy = {}, {}
        wn = [0]
        since = {}
        fill = []
        def em(x):
            e(x)
            if not x.endswith(':'):
                for jj in since: since[jj] += 1
        def lwait(tag):
            if tag not in lq: return
            i = lq.index(tag)
            em(f's_waitcnt lgkmcnt({0 if dirty[0] else len(lq)-1-i})')
            if dirty[0]: lq.clear(); dirty[0] = False
            else: del lq[:i + 1]
        def vwait(g):
            if g not in vq: return
            i = vq.index(g)
            em(f's_waitcnt vmcnt({len(vq)-1-i})')
            del vq[:i + 1]
        def run(t, n):
            kind, p = t[2], t[3]
            if kind == 'X':
                pool = XWIN if (o.tail and p[2] == 'rem' and p[1] == 'D') else XRING
                if p[-1] == 'h':
                    pool = [WR + 4 * (g % 16) for g in range(GT - 16, GT - 8)]
                    for g in range(GT - 16, GT - 8): busy.setdefault(WR + 4 * (g % 16), wlast[g])
                r = [x for x in pool if busy.get(x, -1) <= n]
                assert r, ('no x register', p, n)
                r = min(r, key=lambda x: busy.get(x, -1))
                busy[r] = last[p]; xreg[p] = r
                arr, ch, s_ = p[1], p[2], p[3]
                if ch == 'rem': em(f'ds_read_b128 {vr(r,4)}, v{VXOR if arr == "O" else VXDR} offset:{288*s_}')
                else: em(f'ds_read_b128 {vr(r,4)}, v{VXO if arr == "O" else VXD} offset:{64*ch+288*s_}')
                lq.append(p)
            elif kind == 'W':
                g = p
                if o.tail and g >= GT:
                    em(f'buffer_load_dwordx4 {vr(wreg(g),4)}, v{VWL}, {sr(S_WS)}, s{WSO+27} offen offset:{1024*((g-GT)%4)}{wflags}')
                    if g == GT + 3: em(f's_add_u32 s{WSO+27}, s{WSO+27}, 4096')
                else:
                    assert g == wn[0]; wn[0] += 1
                    em(f'buffer_load_dwordx4 {vr(wreg(g),4)}, v{VWL}, {sr(S_WS)}, s{WSO} offen offset:{1024*(g%4)}{wflags}')
                    if g % 4 == 3: em(f's_add_u32 s{WSO}, s{WSO}, 4096')
                vq.append(g)
            elif kind == 'L':
                em(p[0].replace('offset:pair', 'offset:24').replace(f'v{VF+1} offset:24', f'v{VF+5} offset:24')); lq.append(p[1])
            elif kind == 'C':
                lwait(p[1]); em(p[0])
            elif kind == 'I':
                for x in p: em(x)
            elif kind == 'A':
                em('s_mov_b64 exec, 1')
                if p == 'pair': em(f'ds_add_u32 v{VF+5}, v{VF+2} offset:24')
                else: em(f'ds_add_u32 v{VF+1}, v{VF+2} offset:{p}')
                em('s_mov_b64 exec, -1')
                lq.append(('a', p))
            elif kind == 'Q':
                p, hf = p
                lwait(('pr', p))
                q = ACC['Q'] + 4 * p; t_ = TMP + 4 * (p & 1)
                for i in (2 * hf, 2 * hf + 1): em(f'v_add_f32 v{q+i}, v{q+i}, v{t_+i}')
            elif kind == 'S':
                em(p); vq.append(('s', n))
        def epi(j, pk):
            q = ACC['Q'] + 4 * j
            t = TMP + 8 * (j & 1)
            I = []
            if pk:
                I.append(f'v_pk_mul_f32 {vr(t,2)}, {vr(q,2)}, s[{C2L}:{C2L+1}]')
                I.append(f'v_pk_mul_f32 {vr(t+2,2)}, {vr(q+2,2)}, s[{CNL}:{CNL+1}]')
            else:
                for i in (0, 1): I.append(f'v_mul_f32 v{t+i}, s{C2L}, v{q+i}')
                for i in (2, 3): I.append(f'v_mul_f32 v{t+i}, s{CNL}, v{q+i}')
            I.append(f'v_min_f32 v{t}, s{C60}, v{t}')
            I.append(f'v_min_f32 v{t+1}, s{C60}, v{t+1}')
            for i in (0, 1, 2, 3): I.append(f'v_exp_f32 v{t+i}, v{t+i}')
            if pk:
                I.append(f'v_pk_add_f32 {vr(t+4,2)}, {vr(t,2)}, 1.0 op_sel_hi:[1,0]')
                I.append(f'v_pk_add_f32 {vr(t+6,2)}, {vr(t,2)}, -1.0 op_sel_hi:[1,0]')
                I.append(f'v_pk_fma_f32 {vr(t+4,2)}, {vr(t+4,2)}, {vr(t+2,2)}, {vr(t+4,2)}')
            else:
                for i in (0, 1): I.append(f'v_add_f32 v{t+4+i}, 1.0, v{t+i}')
                for i in (0, 1): I.append(f'v_fma_f32 v{t+4+i}, v{t+4+i}, v{t+2+i}, v{t+4+i}')
            I.append(f'v_rcp_f32 v{t+4}, v{t+4}')
            I.append(f'v_rcp_f32 v{t+5}, v{t+5}')
            if pk:
                I.append('s_nop 0')
                I.append(f'v_pk_mul_f32 {vr(t+6,2)}, {vr(t+6,2)}, {vr(t+4,2)}')
            else:
                for i in (0, 1): I.append(f'v_add_f32 v{t+6+i}, -1.0, v{t+i}')
                for i in (0, 1): I.append(f'v_mul_f32 v{t+6+i}, v{t+6+i}, v{t+4+i}')
            I.append(f'v_cvt_pk_bf16_f32 v{q}, v{t+6}, v{t+7}')
            I.append(f'buffer_store_dword v{q}, v{VOUT + j//3}, {sr(S_OUT)}, 0 offen offset:{1152*(j%3)} {o.oflags}')
            return I
        def cost(x): return 2 if x.startswith(('v_exp', 'v_rcp', 'buffer')) else 1
        e(f's_add_u32 s{WSO+27}, s{WSO}, {GT*1024}')
        while tasks and tasks[0][0] < 0: run(tasks.pop(0), -1)
        inv = {n: v for v, n in vstart.items()}
        lastop = {j: max(n for n in range(N) if ops[n][1] == j) for j in range(9)}
        for n, (g, j) in enumerate(ops):
            if n in inv and o.diag:
                v = inv[n]
                if o.diag == 2 and v in o.marks:
                    kk = o.marks.index(v)
                    e(f's_memtime s[{ST0+2*kk}:{ST0+2*kk+1}]'); dirty[0] = True
                if o.diag in (1, 4) and v == 33: stamp(5); stamp(6); dirty[0] = True
            k = key(n)
            assert k in xreg, (k, n)
            lwait(k); vwait(g)
            acc = S[g][4]
            d = ACC[acc] + 4 * j
            if g == 0: cs = '0'
            elif acc == 'Q' and S[g-1][4] == 'P': cs = vr(ACC['P'] + 4 * j, 4)
            else: cs = vr(d, 4)
            em(f'v_mfma_f32_16x16x32_bf16 {vr(d,4)}, {vr(wreg(g),4)}, {vr(xreg[k],4)}, {cs}')
            if n == lastop[j]: since[j] = 0
            budget = 2
            TC = {'X': 1, 'W': 2, 'L': 2, 'C': 1, 'I': 0, 'A': 1, 'Q': 2, 'S': 2}
            while True:
                ready = [t for t in tasks if t[0] <= n]
                if not ready: break
                t = min(ready, key=lambda t: t[1])
                assert t[1] >= n, ('late', t, n)
                if TC[t[2]] > budget and t[1] > n:
                    fit = [u for u in ready if TC[u[2]] <= budget]
                    if not fit: break
                    t = min(fit, key=lambda t: t[1])
                tasks.remove(t); run(t, n); budget -= TC[t[2]]
            for jj in sorted(since):
                if 8 <= since[jj] < 10**6:
                    fill += epi(jj, False); since[jj] = 10**6
            budget += o.nfill - 2
            while fill and budget >= cost(fill[0]):
                budget -= cost(fill[0]); em(fill.pop(0))
        assert not tasks
        stamp(7)
        while fill: em(fill.pop(0))
        for jj in [jj for jj in sorted(since) if since[jj] < 10**6]:
            if since[jj] < 8: em(f's_nop {8-since[jj]-1}')
            for x in epi(jj, True): em(x)
        stamp(8)
        if o.padto and o.padev[0] == 'm': padloop(typ)
        if o.diag == 1:
            e('s_waitcnt vmcnt(0)')
            stamp(9)
            dump(10)
        if o.diag == 2:
            kk = len(o.marks)
            e(f's_memtime s[{ST0+2*kk}:{ST0+2*kk+1}]')
            dump(10)
        e('s_endpgm')
        for tag, off, cnt in slow:
            e(f'L_slow{typ}{tag}:')
            e(f'ds_read_b32 v{VC}, v{VF+5 if off == "pair" else VF+1} offset:{24 if off == "pair" else off}')
            e('s_waitcnt lgkmcnt(0)')
            e(f'v_cmp_ne_u32 vcc, {cnt}, v{VC}')
            e('s_nop 4')
            e(f's_cbranch_vccnz L_slow{typ}{tag}')
            e(f's_branch L_back{typ}{tag}')

    e('.p2align 6')
    e('L_helper:')
    role[0] = 'h'
    e(f's_setprio {o.hprio}')
    e(f's_sub_u32 s{TW0}, s{WAVE}, 4')
    e(f's_mov_b32 s{TW1}, s{WAVE}')
    e(f's_mov_b32 s{TW2}, 8')
    e(f's_mov_b32 s{PAIR}, s{PAIR0}')
    e(f's_mov_b32 s{MODE}, 0')
    e(f's_mov_b32 s{HAS3}, s{TW0}')
    e(f's_lshl_b32 s{SCRB}, s{TW0}, 12')
    e(f's_add_u32 s{SCRB}, s{SCRB}, {SCR}')
    e(f'v_mov_b32 v10, {CNT}')
    for r in range(12, 16): e(f'v_mov_b32 v{r}, 0')
    e('ds_write_b128 v10, v[12:15]')
    e('ds_write_b128 v10, v[12:15] offset:16')
    e('L_prod:')
    T = [(64, TW0, 2, 3, 0), (96, TW1, 4, 5, 2048), (128, TW2, 6, 7, 16384)]
    c, kp, q, cc, kk, t = 46, 47, 48, 49, 50, 51
    b = TS
    e('v_mov_b32 v19, 4320')
    e('v_and_b32 v23, 3, v1')
    e('v_lshrrev_b32 v24, 3, v1')
    e('v_mul_u32_u24 v24, 576, v24')
    e('v_bfe_u32 v25, v1, 2, 1')
    e('v_mul_u32_u24 v25, 288, v25')
    e('v_add_u32 v24, v24, v25')
    for (vb, sw, vl, vs, so) in T:
        e(f'v_lshl_add_u32 v8, s{sw}, 2, v23')
        e('v_cmp_le_u32 vcc, 18, v8')
        e(f'v_lshl_add_u32 v{vl}, v8, 4, v24')
        e(f'v_add_u32 v9, v{vl}, v19')
        e(f'v_cndmask_b32 v{vl}, v{vl}, v9, vcc')
    e(f's_and_b32 s{c}, s{PAIR}, 15')
    e(f's_lshr_b32 s{kp}, s{PAIR}, 4')
    e(f's_mul_i32 s{b}, s{c}, 165888')
    e(f's_mul_i32 s{t}, s{kp}, 9216')
    e(f's_add_u32 s{b}, s{b}, s{t}')
    e(f's_add_u32 s{b+1}, s{b}, 82944')
    e(f's_mov_b32 s{S_W+2}, 2571264')
    e(f's_mov_b32 s{S_W+3}, 0x20000')
    e(f's_mov_b32 s{S_WO+3}, 0x20000')
    e(f's_cmp_lg_u32 s{c}, 15')
    e(f's_cselect_b32 s{S_WO+2}, 2571264, 0')
    e(f's_mov_b32 m0, s{SCRB}')
    e('s_waitcnt lgkmcnt(0)')
    e(f's_mov_b32 s{S_W}, s6')
    e(f's_and_b32 s{S_W+1}, s7, 0xffff')
    e(f's_mov_b32 s{S_WO}, s6')
    e(f's_and_b32 s{S_WO+1}, s7, 0xffff')
    e(f's_cmp_ge_u32 s{PAIR}, {NPROD}')
    e('s_cbranch_scc1 L_noprod')
    def cond3(lbl):
        e(f's_cmp_lg_u32 s{HAS3}, 0')
        e(f's_cbranch_scc1 {lbl}')
    for ti, (vb, sw, vl, vs, so) in enumerate(T):
        if ti == 2: cond3('L_a3')
        if ti:
            e(f's_add_u32 m0, s{SCRB}, {so}')
            e('s_nop 0')
        e(f'buffer_load_dwordx4 v{vl}, {sr(S_W)}, s{b} offen lds')
        e(f's_add_u32 m0, s{SCRB}, {so+1024}')
        e('s_nop 0')
        e(f'buffer_load_dwordx4 v{vl}, {sr(S_WO)}, s{b+1} offen lds')
    e('L_a3:')
    stamp(1)
    e(f's_cmp_lg_u32 s{WAVE}, 4')
    e('s_cbranch_scc1 L_a4')
    e(f's_load_dword s{TAG}, s[12:13], {NONCE}')
    e('L_a4:')
    if o.b0late:
        e(f's_cmp_lg_u32 s{MODE}, 0')
        e('s_cbranch_scc1 L_a4b')
        e('s_barrier')
        e('L_a4b:')
    srd(e, S_WS, 12, WS_REC)
    srd(e, S_DBG, 10, 256)
    e(f'v_mov_b32 v20, {(256 - 18*2*NSTEP*1024) & 0xffffffff}')
    e(f'v_mov_b32 v26, {2*NSTEP*1024}')
    e('v_bfe_u32 v21, v1, 2, 2')
    e('v_lshlrev_b32 v21, 7, v21')
    e('v_and_b32 v22, 1, v1')
    e('v_lshl_add_u32 v21, v22, 6, v21')
    e('v_bfe_u32 v22, v1, 1, 1')
    e('v_lshl_add_u32 v21, v22, 3, v21')
    e('v_lshrrev_b32 v22, 4, v1')
    e('v_lshl_add_u32 v21, v22, 4, v21')
    e(f'v_add_u32 v21, s{SCRB}, v21')
    e('v_and_b32 v25, 15, v1')
    e('v_lshlrev_b32 v25, 4, v25')
    for (vb, sw, vl, vs, so) in T:
        e(f'v_lshl_add_u32 v8, s{sw}, 2, v22')
        e('v_cmp_le_u32 vcc, 18, v8')
        e(f'v_mad_u32_u24 v{vs}, v8, v26, v25')
        e(f'v_add_u32 v9, v{vs}, v20')
        e(f'v_cndmask_b32 v{vs}, v{vs}, v9, vcc')
    e(f's_lshr_b32 s{q}, s{kp}, 1')
    e(f's_and_b32 s{cc}, s{c}, 7')
    e(f's_lshr_b32 s{kk}, s{c}, 3')
    e(f's_and_b32 s{t}, s{kp}, 1')
    e(f's_cmp_eq_u32 s{kp}, 8')
    e(f's_cselect_b32 s{cc}, s{cc}, s{c}')
    e(f's_cselect_b32 s{kk}, s{kk}, s{t}')
    e(f's_lshl_b32 s{kk}, s{kk}, 9')
    e(f's_add_u32 s{kk}, s{kk}, {WOFF}')
    e(f's_lshl_b32 s{t}, s{q}, 4')
    e(f's_add_u32 s{b+2}, s{t}, s{cc}')
    e(f's_sub_u32 s{b+3}, s{b+2}, s{q}')
    e(f's_cmp_ge_u32 s{q}, 2')
    e(f's_cselect_b32 s{b+4}, 74, 0')
    e(f's_add_u32 s{b+4}, s{b+4}, s{b+2}')
    e(f's_cmp_lt_u32 s{cc}, 2')
    e(f's_cselect_b32 s{t}, 32, 136')
    e(f's_add_u32 s{t}, s{t}, s{cc}')
    e(f's_cmp_eq_u32 s{kp}, 8')
    e(f's_cselect_b32 s{b+4}, s{t}, s{b+4}')
    e(f's_add_u32 s{b+2}, s{b+2}, 34')
    e(f's_add_u32 s{b+3}, s{b+3}, 144')
    for k in (2, 3, 4):
        e(f's_lshl_b32 s{b+k}, s{b+k}, 10')
        e(f's_add_u32 s{b+k}, s{b+k}, s{kk}')
    e(f's_cmp_eq_u32 s{kp}, 8')
    e(f's_cselect_b32 s{t}, 1, 2')
    e(f's_cmp_eq_u32 s{c}, 15')
    e(f's_cselect_b32 s{b+5}, s{t}, 0')
    npre = 0
    if o.prest:
        e(f's_cmp_lg_u32 s{MODE}, 0')
        e('s_cbranch_scc1 L_p9')
        if o.prest == 2:
            e('s_mov_b32 exec_lo, 0x00010001'); e('s_mov_b32 exec_hi, 0x00010001')
        if o.prest == 3:
            e('s_mov_b32 exec_lo, 0x01010101'); e('s_mov_b32 exec_hi, 0x01010101')
        for ti, (vb, sw, vl, vs, so) in enumerate(T):
            if ti == 2: cond3('L_p8')
            for k in (4, 2, 3):
                if k == 3:
                    e(f's_cmp_eq_u32 s{b+5}, 2')
                    e(f's_cbranch_scc1 L_p7{ti}')
                if o.prest == 1: e(f'buffer_store_dwordx4 v[64:67], v{vs}, {sr(S_WS)}, s{b+k} offen sc1')
                else: e(f'buffer_store_dword v64, v{vs}, {sr(S_WS)}, s{b+k} offen sc1')
                if k == 3: e(f'L_p7{ti}:')
        e('L_p8:')
        e('s_mov_b64 exec, -1')
        e('s_waitcnt vmcnt(4) lgkmcnt(0)')
        e(f's_cmp_lg_u32 s{b+5}, 2')
        e('s_cbranch_scc0 L_p10')
        e('s_branch L_p10')
        e('L_p9:')
        e('s_waitcnt vmcnt(0) lgkmcnt(0)')
        e('L_p10:')
    else:
        e('s_waitcnt vmcnt(0) lgkmcnt(0)')
    stamp(2)
    e('v_mov_b32 v27, 0')
    e(f's_cmp_lg_u32 s{WAVE}, 4')
    e('s_cbranch_scc1 L_a5')
    e('v_mov_b32 v12, 4')
    e('s_mov_b64 exec, 1')
    e(f'buffer_load_dword v27, v12, {sr(S_DBG)}, 0 offen sc1')
    e('s_mov_b64 exec, -1')
    e('L_a5:')
    def trreads(vb, so):
        for tap in range(2):
            for half in range(2):
                e(f'ds_read_b64_tr_b16 {vr(vb+4*tap+2*half,2)}, v21 offset:{so+1024*tap+512*half}')
    def st01(vb, vs, n0, n1, tag):
        e(f's_waitcnt lgkmcnt({n0})')
        e(f'buffer_store_dwordx4 {vr(vb,4)}, v{vs}, {sr(S_WS)}, s{b+2} offen sc1')
        e(f's_waitcnt lgkmcnt({n1})')
        e(f's_cmp_eq_u32 s{b+5}, 2')
        e(f's_cbranch_scc1 L_skip{tag}')
        e(f'buffer_store_dwordx4 {vr(vb+4,4)}, v{vs}, {sr(S_WS)}, s{b+3} offen sc1')
        e(f'L_skip{tag}:')
    def stsum(vb, vs):
        for i in range(8):
            e(f'v_lshlrev_b32 v{vb+8+2*i}, 16, v{vb+i}')
            e(f'v_and_b32 v{vb+9+2*i}, s{MASK}, v{vb+i}')
        for i in range(4):
            e(f'v_pk_add_f32 {vr(vb+8+2*i,2)}, {vr(vb+8+2*i,2)}, {vr(vb+16+2*i,2)}')
        for i in range(4):
            e(f'v_cvt_pk_bf16_f32 v{vb+24+i}, v{vb+8+2*i}, v{vb+9+2*i}')
        e(f'buffer_store_dwordx4 {vr(vb+24,4)}, v{vs}, {sr(S_WS)}, s{b+4} offen sc1')
    for tt in T: trreads(tt[0], tt[4])
    st01(T[0][0], T[0][3], 10, 8, 0)
    st01(T[1][0], T[1][3], 6, 4, 1)
    stsum(T[0][0], T[0][3])
    stsum(T[1][0], T[1][3])
    cond3('L_b3')
    st01(T[2][0], T[2][3], 2, 0, 2)
    stsum(T[2][0], T[2][3])
    e('L_b3:')
    e(f's_cmp_eq_u32 s{MODE}, 0')
    e('s_cbranch_scc1 L_b4')
    e('s_waitcnt vmcnt(0) lgkmcnt(0)')
    e(f's_add_u32 s{PAIR}, s{PAIR}, 1')
    e(f's_cmp_lt_u32 s{PAIR}, {NPROD}')
    e('s_cbranch_scc1 L_prod')
    e('s_branch L_go')
    e('L_noprod:')
    if o.b0late: e('s_barrier')
    srd(e, S_WS, 12, WS_REC)
    stamp(1); stamp(2)
    e('L_b4:')
    if not o.b0late: e('s_barrier')
    if o.b0late:
        pass
    stamp(3)
    decode()
    e('v_subrev_u32 v4, 256, v0')
    e('v_min_u32 v4, 251, v4')
    e('v_mul_u32_u24 v3, 3641, v4')
    e('v_lshrrev_b32 v3, 16, v3')
    e('v_mul_u32_u24 v2, 18, v3')
    e('v_sub_u32 v2, v4, v2')
    e(f'v_mul_u32_u24 v3, {R}, v3')
    e(f'v_min_u32 v3, {160-R}, v3')
    e('v_mul_u32_u24 v4, 1152, v3')
    e('v_lshl_add_u32 v4, v2, 4, v4')
    e(f'v_add_u32 v12, s{XB}, v4')
    e('v_mul_u32_u24 v18, 288, v3')
    e('v_lshl_add_u32 v18, v2, 4, v18')
    e(f'v_add_u32 v19, {X_D1}, v18')
    srd(e, S_X, 4, 1152000, add=BOFF)
    e(f's_cmp_ge_u32 s{PAIR0}, {NPROD}')
    e('s_cbranch_scc1 L_noflag')
    e(f'v_mov_b32 v10, {CNT}')
    e(f's_mul_i32 s46, s{PAIR0}, {o.fstride}')
    e('v_mov_b32 v16, s46')
    e('s_mov_b64 exec, 1')
    e(f's_cmp_lg_u32 s{WAVE}, 4')
    e('s_cbranch_scc1 L_nottag')
    e(f's_add_u32 s46, s{TAG}, {TAGINC}')
    e('v_mov_b32 v15, s46')
    e('ds_write_b32 v10, v15 offset:4')
    e('L_nottag:')
    e('s_waitcnt vmcnt(0)')
    stamp(4)
    e('v_cmp_ne_u32 vcc, 0, v27')
    e('v_mov_b32 v13, 1')
    e('v_mov_b32 v14, 0x101')
    e('v_cndmask_b32 v13, v13, v14, vcc')
    e('ds_add_rtn_u32 v14, v10, v13')
    e('ds_read_b32 v15, v10 offset:4')
    e('s_waitcnt lgkmcnt(0)')
    e('v_add_u32 v14, v14, v13')
    e('v_cmp_eq_u32 vcc, 4, v14')
    e('s_and_b64 exec, exec, vcc')
    e('s_cbranch_execz L_notlast')
    e(f'buffer_store_dword v15, v16, {sr(S_WS)}, 0 offen sc1')
    e('L_notlast:')
    e('s_mov_b64 exec, -1')
    e('L_noflag:')
    if o.b0late: e('s_barrier')
    e(f's_setprio {o.hprio2}')
    RAW, ORAW = 64, 120
    EU = [184, 192]
    OU, DT, DO = 200, 208, 216
    xi = [0]
    NL = R + 1
    def eload():
        k = xi[0]
        if k >= NL: return
        a_ = 12
        if k:
            a_ = 13 + (k & 3)
            e(f'v_add_u32 v{a_}, {1152*k}, v12')
        e(f'buffer_load_dwordx4 {vr(RAW+4*k,4)}, v{a_}, {sr(S_X)}, 0 offen')
        xi[0] += 1
    if o.etouch:
        e(f's_cmp_lt_u32 s{PAIR0}, {NPROD}')
        e('s_cbranch_scc1 L_net')
        if o.etouch == 2:
            e(f's_and_b32 s46, s{NB}, 1')
            e(f's_mul_i32 s46, s46, {1152*6}')
            e('v_add_u32 v12, s46, v12')
            for _ in range(7): eload()
            e('v_subrev_u32 v12, s46, v12')
        else:
            for _ in range(NL): eload()
        e('s_waitcnt vmcnt(0)')
        e('L_net:')
        xi[0] = 0
    for _ in range(o.epre): eload()
    e('s_waitcnt lgkmcnt(0)')
    stamp(5)
    if o.dec:
        for _ in range(max(0, o.ein - o.epre)): eload()
        e(f'v_mov_b32 v10, {CNT}')
        e('s_mov_b64 exec, 1')
        e('L_ow:')
        e('ds_read_b32 v11, v10 offset:8')
        e('s_waitcnt lgkmcnt(0)')
        e('v_cmp_ne_u32 vcc, 4, v11')
        e('s_nop 4')
        e('s_cbranch_vccz L_ow2')
        e('s_sleep 1')
        e('s_branch L_ow')
        e('L_ow2:')
        e('s_mov_b64 exec, -1')
    else:
        e('s_barrier')
    stamp(6)
    if not o.dec:
        for _ in range(max(0, o.ein - o.epre)): eload()
    for j in range(R):
        e(f'ds_read_b128 {vr(ORAW+4*j,4)}, v18 offset:{X_O+288*j}')
    def unpack(dst, s_):
        for i in range(4):
            e(f'v_lshlrev_b32 v{dst+2*i}, 16, v{s_+i}')
            e(f'v_and_b32 v{dst+2*i+1}, s{MASK}, v{s_+i}')
    def unpackE(dst, k):
        e(f's_waitcnt vmcnt({xi[0]-1-k})')
        unpack(dst, RAW + 4 * k)
        eload()
    def diff(eu, out):
        if o.nopk:
            for i in range(8): e(f'v_sub_f32 v{DT+i}, v{eu+i}, v{OU+i}')
        else:
          for i in range(4):
            e(f'v_pk_add_f32 {vr(DT+2*i,2)}, {vr(eu+2*i,2)}, {vr(OU+2*i,2)} neg_lo:[0,1] neg_hi:[0,1]')
        for i in range(4):
            e(f'v_cvt_pk_bf16_f32 v{out+i}, v{DT+2*i}, v{DT+2*i+1}')
    unpackE(EU[0], 0)
    e('s_waitcnt lgkmcnt(0)')
    for j in range(R):
        o0 = DO + 8 * (j & 1)
        unpack(OU, ORAW + 4 * j)
        diff(EU[j & 1], o0)
        e(f'ds_write_b128 v18, {vr(o0,4)} offset:{X_D0+288*j}')
        unpackE(EU[(j + 1) & 1], j + 1)
        diff(EU[(j + 1) & 1], o0 + 4)
        e(f'ds_write_b128 v19, {vr(o0+4,4)} offset:{288*j}')
    e('s_waitcnt lgkmcnt(0)')
    stamp(7)
    e('v_mov_b32 v11, 1')
    e('s_mov_b64 exec, 1')
    e('ds_add_u32 v10, v11 offset:16')
    e('s_mov_b64 exec, -1')
    if o.padto and o.padev[0] == 'h': padloop('h')
    if o.diag == 1:
        stamp(8); stamp(9)
        dump(10)
    e('L_end:')
    e('s_endpgm')
    e('.section .rodata,"a"')
    e('.p2align 6')
    e(f'.amdhsa_kernel {KN}')
    for x in ['next_free_vgpr 256', 'next_free_sgpr 102', 'accum_offset 256', 'group_segment_fixed_size 0', 'kernarg_size 40',
              'user_sgpr_count 2', 'user_sgpr_kernarg_segment_ptr 1', 'system_sgpr_workgroup_id_x 1']:
        e('  .amdhsa_' + x)
    e('.end_amdhsa_kernel')
    n = haz.check(e.L)
    if n: print(f'{n} hazards', file=sys.stderr)
    return f'; @launch grid=({NWG},1,1) block=(512,1,1) lds={LDS_BYTES}\n' + e.text()

def opts(argv=None):
    ap = argparse.ArgumentParser()
    ap.add_argument('-o', default='k.s')
    for nm, d in [('diag', 0), ('pf', 8), ('wsc1', 0), ('nfill', 2), ('fstride', 128), ('sleep', 0), ('maxpoll', 3000), ('nopoll', 0),
                  ('hprio', 3), ('hprio2', 0), ('mprio', 2), ('epre', 0), ('ein', 4), ('vbd', 33), ('nopk', 1), ('padto', 0), ('npdelay', 0), ('opre', 2), ('etouch', 2), ('orev', 1), ('b0late', 1), ('dec', 1), ('tail', 1), ('xla', 9), ('hold', 1), ('prest', 0)]:
        ap.add_argument('--' + nm, type=int, default=d)
    ap.add_argument('--oflags', default='')
    ap.add_argument('--pmap', default='18,18,18,18,18,18,18,18')
    ap.add_argument('--padev', default='m0')
    ap.add_argument('--marks', default='0,4,8,12,16,24,33,47,58')
    o = ap.parse_args(argv)
    o.marks = [int(x) for x in o.marks.split(',')]
    return o

if __name__ == '__main__':
    o = opts()
    open(o.o, 'w').write(gen(o))
```

```python
import re, sys, argparse
import haz

KN = 'standalone__autoregressive_conv_wavernn__speech_kernel'
NWG = 252
NPROD = 144
ARR = 160 * 288
X_D0, X_O, X_D1 = 0, ARR, 2 * ARR
CNT = 3 * ARR
SCR = CNT + 64
LDS_BYTES = SCR + 18432
NSTEP = 106
WOFF = int(__import__('os').environ.get('WOFF', '0x100000'), 0)
NONCE = 0x10000
DIAG = 0x800000
WS_REC = max(0x1000000, WOFF + 0x400000, int(__import__('os').environ.get('WSREC', '0'), 0))
TAGINC = 0x9E3779B9
R = 12

class Em:
    def __init__(self): self.L = []
    def __call__(self, s): self.L.append(s)
    def text(self): return '\n'.join(self.L) + '\n'

def vr(a, n=1): return f'v{a}' if n == 1 else f'v[{a}:{a+n-1}]'
def sr(a, n=4): return f's[{a}:{a+n-1}]'

def streams():
    out = []
    for typ in (0, 1):
        S = []
        pid = [0]
        def add(arr, chunk, cs, acc):
            for c in cs: S.append((pid[0], arr, chunk, c, acc))
            pid[0] += 1
        if typ == 0:
            add('O', 0, range(16), 'P'); add('O', 1, range(16), 'P'); add('O', 'rem', range(0, 2), 'P')
            for q in range(4): add('D', q, range(16), 'Q')
            add('D', 'rem', range(8), 'Q')
        else:
            add('O', 2, range(16), 'P'); add('O', 3, range(16), 'P'); add('O', 'rem', range(2, 8), 'P')
            for q in range(4): add('D', q, range(15), 'Q')
            add('D', 'rem', range(8), 'Q')
        assert len(S) == NSTEP
        out.append(S)
    return out

S_X, S_W, S_WO, S_WS, S_OUT, S_DBG = 20, 24, 28, 32, 36, 40
WAVE, NB, BAT, PAR, MB, BOFF = 14, 15, 16, 17, 18, 19
PAIR0 = 3
XB = 52
MASK = 53
TW0, TW1, TW2, PAIR, HAS3, MODE, SCRB, TAG, LAST, NPOLL = 44, 45, 54, 55, 56, 57, 58, 59, 60, 61
TS = 62
TYP, WSO = 68, 69
C2L, CNL, C60 = 90, 92, 94
ST0 = 70

def srd(e, d, ptr, rec, add=None):
    if add is None:
        e(f's_mov_b32 s{d}, s{ptr}')
        e(f's_and_b32 s{d+1}, s{ptr+1}, 0xffff')
    else:
        e(f's_add_u32 s{d}, s{ptr}, s{add}')
        e(f's_addc_u32 s{d+1}, s{ptr+1}, 0')
        e(f's_and_b32 s{d+1}, s{d+1}, 0xffff')
    e(f's_mov_b32 s{d+2}, {rec}')
    e(f's_mov_b32 s{d+3}, 0x20000')

def gen(o):
    e = Em()
    role = ['m']
    def padloop(tag):
        e(f'L_pad{tag}:')
        e('s_memrealtime s[98:99]')
        e('s_waitcnt lgkmcnt(0)')
        e('s_sub_u32 s98, s98, s100')
        e(f's_cmp_lt_u32 s98, {o.padto}')
        e(f's_cbranch_scc1 L_pad{tag}')
    def stamp(k, lvl=1):
        if o.padto and lvl == 1 and o.padev == f'{role[0]}{k}':
            e('s_memrealtime s[100:101]'); e('s_waitcnt lgkmcnt(0)')
        if o.diag == lvl or (o.diag == 4 and lvl == 1): e(f's_memrealtime s[{ST0+2*k}:{ST0+2*k+1}]')
    def dump(nst):
        e('s_waitcnt lgkmcnt(0)')
        e('v_mov_b32 v250, 0')
        for k in range(nst): e(f'v_writelane_b32 v250, s{ST0+2*k}, {k}')
        e(f'v_writelane_b32 v250, s{NPOLL}, 13')
        e(f'v_writelane_b32 v250, s{PAIR0}, 14')
        e('s_getreg_b32 s46, hwreg(HW_REG_XCC_ID)')
        e('v_writelane_b32 v250, s46, 15')
        e(f's_lshl_b32 s46, s2, 3'); e(f's_add_u32 s46, s46, s{WAVE}'); e('s_lshl_b32 s46, s46, 6'); e(f's_add_u32 s46, s46, {DIAG}')
        e('v_lshl_add_u32 v251, v1, 2, s46')
        e('s_mov_b64 exec, 0xffff')
        e(f'buffer_store_dword v250, v251, {sr(S_WS)}, 0 offen')
        e('s_mov_b64 exec, -1')

    e('.amdgcn_target "amdgcn-amd-amdhsa--gfx950"')
    e('.text')
    e(f'.globl {KN}')
    e('.p2align 8')
    e(f'.type {KN},@function')
    e(f'{KN}:')
    e(f's_cmp_ge_u32 s2, {NWG}')
    e('s_cbranch_scc1 L_end')
    stamp(0)
    if o.padto and o.padev != 'm0': e('s_memrealtime s[100:101]')
    e('s_load_dwordx4 s[4:7], s[0:1], 0')
    e('s_load_dwordx4 s[8:11], s[0:1], 16')
    e('s_load_dwordx2 s[12:13], s[0:1], 32')
    e('v_lshrrev_b32 v2, 6, v0')
    e('v_and_b32 v1, 63, v0')
    e(f'v_readfirstlane_b32 s{WAVE}, v2')
    def decode():
        e('s_and_b32 s44, s2, 7')
        e('s_lshr_b32 s45, s2, 3')
        e('s_mul_i32 s46, s44, 31')
        e('s_min_u32 s44, s44, 4')
        e('s_add_u32 s46, s46, s44')
        e('s_add_u32 s46, s46, s45')
        e('s_mul_hi_u32 s47, s46, 68174085')
        e('s_mul_i32 s48, s47, 63')
        e('s_sub_u32 s48, s46, s48')
        e(f's_mul_hi_u32 s{NB}, s48, 613566757')
        e(f's_mul_i32 s49, s{NB}, 7')
        e('s_sub_u32 s49, s48, s49')
        e('s_mul_i32 s47, s47, 7')
        e('s_add_u32 s47, s47, s49')
        e(f's_and_b32 s{PAR}, s47, 1')
        e('s_lshr_b32 s47, s47, 1')
        e('s_cmp_ge_u32 s47, 7')
        e(f's_cselect_b32 s{BOFF}, 1152000, 0')
        e('s_cselect_b32 s48, 7, 0')
        e(f's_sub_u32 s{MB}, s47, s48')
        e(f's_mul_i32 s{XB}, s{MB}, 576')
        e(f's_add_u32 s{XB}, s{XB}, s{PAR}')
        e(f's_sub_u32 s{XB}, s{XB}, 60')
        e(f's_mul_i32 s{XB}, s{XB}, 288')
    e(f's_mov_b32 s{MASK}, 0xffff0000')
    e(f's_mov_b32 s{NPOLL}, 0')
    cnts = [int(x) for x in o.pmap.split(',')]
    assert sum(cnts) == NPROD
    if cnts == [18] * 8:
        e(f's_mov_b32 s{PAIR0}, s2')
    else:
        base = [sum(cnts[:i]) for i in range(8)]
        pk = lambda L: sum(v << (8 * i) for i, v in enumerate(L))
        e('s_and_b32 s44, s2, 7')
        e('s_lshl_b32 s44, s44, 3')
        e(f's_mov_b32 s46, {pk(cnts[:4])}'); e(f's_mov_b32 s47, {pk(cnts[4:])}')
        e(f's_mov_b32 s48, {pk(base[:4])}'); e(f's_mov_b32 s49, {pk(base[4:])}')
        e('s_lshr_b64 s[46:47], s[46:47], s44')
        e('s_lshr_b64 s[48:49], s[48:49], s44')
        e('s_and_b32 s46, s46, 0xff')
        e('s_and_b32 s48, s48, 0xff')
        e('s_lshr_b32 s45, s2, 3')
        e('s_add_u32 s48, s48, s45')
        e('s_cmp_lt_u32 s45, s46')
        e(f's_cselect_b32 s{PAIR0}, s48, 255')
    e(f's_cmp_ge_u32 s{WAVE}, 4')
    e('s_cbranch_scc1 L_helper')
    decode()

    VXO, VXOR, VXD, VXDR, VWL, VEX, VEXP, VOUT = 30, 31, 32, 33, 34, 35, 36, 37
    VF = 40
    VA = 48
    VCL = 60
    e('v_mul_u32_u24 v3, 3641, v0')
    e('v_lshrrev_b32 v3, 16, v3')
    e('v_mul_u32_u24 v2, 18, v3')
    e('v_sub_u32 v2, v0, v2')
    e('v_mul_u32_u24 v3, 1152, v3')
    e('v_lshl_add_u32 v3, v2, 4, v3')
    e(f's_add_u32 s46, s{XB}, 576')
    e(f'v_add_u32 v{VA}, s46, v3')
    e('v_mov_b32 v5, 16192')
    e('v_mov_b32 v6, 17056')
    for k in range(1, 12):
        e('v_cmp_le_u32 vcc, 14, v2')
        e('v_add_u32 v3, 4, v2')
        e('v_subrev_u32 v4, 14, v2')
        e('v_cndmask_b32 v7, v5, v6, vcc')
        e('v_cndmask_b32 v2, v3, v4, vcc')
        e(f'v_add_u32 v{VA+k}, v{VA+k-1}, v7')
    e('v_and_b32 v2, 15, v1')
    e('v_lshrrev_b32 v3, 4, v1')
    e('v_subrev_u32 v5, 4, v2')
    e('v_add_u32 v6, 8, v2')
    e('v_cmp_gt_u32 vcc, 4, v2')
    e('v_cmp_le_u32 s[46:47], 12, v2')
    e(f's_and_b32 s{TYP}, s{WAVE}, 1')
    e(f's_lshr_b32 s48, s{WAVE}, 1')
    e('v_cndmask_b32 v5, v5, v6, vcc')
    e('v_cndmask_b32 v5, v5, v2, s[46:47]')
    e('v_mul_u32_u24 v5, 9, v5')
    e('v_mul_u32_u24 v4, 288, v5')
    e('v_lshl_add_u32 v6, v3, 4, v4')
    e('v_and_b32 v7, 1, v3')
    e('v_lshl_add_u32 v7, v7, 4, v4')
    e('v_lshrrev_b32 v8, 1, v3')
    e('v_mul_u32_u24 v8, 2304, v8')
    e('v_add_u32 v7, v7, v8')
    e('v_add_u32 v7, 256, v7')
    e(f's_mul_i32 s49, s{TYP}, {X_D1}')
    e(f'v_add_u32 v{VXO}, {X_O}, v6')
    e(f'v_add_u32 v{VXOR}, {X_O}, v7')
    e(f'v_add_u32 v{VXD}, s49, v6')
    e(f'v_add_u32 v{VXDR}, s49, v7')
    e('v_lshlrev_b32 v6, 4, v1')
    e(f's_mul_i32 s49, s{WAVE}, 9216')
    e(f's_add_u32 s49, s49, {X_O}')
    e(f'v_add_u32 v{VEX}, s49, v6')
    e(f's_xor_b32 s49, s{WAVE}, 1')
    e('s_mul_i32 s49, s49, 9216')
    e(f's_add_u32 s49, s49, {X_O}')
    e(f'v_add_u32 v{VEXP}, s49, v6')
    e('v_and_b32 v8, 0x39, v1')
    e('v_bfe_u32 v9, v1, 1, 1')
    e('v_lshl_add_u32 v8, v9, 2, v8')
    e('v_bfe_u32 v9, v1, 2, 1')
    e('v_lshl_add_u32 v8, v9, 1, v8')
    e(f'v_lshlrev_b32 v{VWL}, 4, v8')
    e(f's_mul_i32 s49, s{TYP}, 576')
    e(f's_add_u32 s49, s49, s{XB}')
    e(f's_add_u32 s49, s49, {60*288}')
    e(f's_lshl_b32 s50, s{NB}, 5')
    e('s_add_u32 s49, s49, s50')
    e('s_lshl_b32 s50, s48, 4')
    e('s_add_u32 s49, s49, s50')
    e('v_mul_u32_u24 v8, 1152, v5')
    e('v_lshl_add_u32 v8, v3, 2, v8')
    e(f'v_add_u32 v{VOUT}, s49, v8')
    e(f'v_add_u32 v{VOUT+1}, 3456, v{VOUT}')
    e(f'v_add_u32 v{VOUT+2}, 6912, v{VOUT}')
    e(f's_lshl_b32 s49, s{NB}, 1')
    e('s_add_u32 s49, s49, s48')
    e('s_lshl_b32 s49, s49, 1')
    e(f's_add_u32 s49, s49, s{TYP}')
    e(f's_mul_i32 s{WSO}, s49, {NSTEP*1024}')
    e(f's_add_u32 s{WSO}, s{WSO}, {WOFF}')
    e(f's_mov_b32 s{C2L}, 0x4038aa3b'); e(f's_mov_b32 s{C2L+1}, 0x4038aa3b')
    e(f's_mov_b32 s{CNL}, 0xbfb8aa3b'); e(f's_mov_b32 s{CNL+1}, 0xbfb8aa3b')
    e(f's_mov_b32 s{C60}, 0x42700000')
    e(f'v_min_u32 v{VF}, 35, v1')
    e(f's_mul_i32 s46, s{WAVE}, 36')
    e(f'v_add_u32 v{VF}, s46, v{VF}')
    e(f'v_mul_u32_u24 v{VF}, {o.fstride}, v{VF}')
    e(f's_lshl_b32 s50, s{WAVE}, 10')
    e(f's_add_u32 s50, s50, {X_O}')
    e(f's_add_u32 s51, s50, {4096*11}')
    e('s_movk_i32 s49, 4096')
    if o.orev:
        e(f's_bitcmp0_b32 s{NB}, 0')
        e('s_cbranch_scc1 L_fwd')
        for k in range(5): e(f'v_swap_b32 v{VA+k}, v{VA+10-k}')
        e(f's_add_u32 s50, s50, {4096*10}')
        e('s_movk_i32 s49, -4096')
        e('L_fwd:')
    e(f's_or_b32 s46, s2, s{WAVE}')
    e('v_or_b32 v2, s46, v1')
    e('v_cmp_eq_u32 vcc, 0, v2')
    e(f'v_mov_b32 v{VCL}, -16')
    e(f'v_mov_b32 v{VCL+1}, -16')
    e(f'v_mov_b32 v3, {NONCE}')
    e(f'v_cndmask_b32 v{VCL}, v{VCL}, 4, vcc')
    e(f'v_cndmask_b32 v{VCL+1}, v{VCL+1}, v3, vcc')
    e('s_waitcnt lgkmcnt(0)')
    e(f's_load_dword s{TAG}, s[12:13], {NONCE}')
    srd(e, S_X, 4, 1152000, add=BOFF)
    srd(e, S_WS, 12, WS_REC)
    srd(e, S_OUT, 8, 1152000, add=BOFF)
    srd(e, S_DBG, 10, 256)
    def odma(k):
        e(f's_mov_b32 m0, s{51 if k == 11 else 50}')
        e('s_add_u32 s50, s50, s49')
        e(f'buffer_load_dwordx4 v{VA+k}, {sr(S_X)}, 0 offen lds')
    if o.b0late: e('s_barrier')
    if o.npdelay:
        e(f's_cmp_lt_u32 s{PAIR0}, {NPROD}')
        e('s_cbranch_scc1 L_nd')
        e('s_waitcnt lgkmcnt(0)')
        e('L_nd:')
    for k in range(o.opre): odma(k)
    e('s_barrier')
    stamp(1)
    for k in range(o.opre, 12):
        if k == 11:
            e(f's_cmp_lg_u32 s{WAVE}, 0')
            e('s_cbranch_scc1 L_o11')
        odma(k)
    e('L_o11:')
    e(f'v_mov_b32 v{VF+1}, {CNT}')
    e(f'v_mov_b32 v{VF+2}, 1')
    e(f's_lshr_b32 s46, s{WAVE}, 1')
    e('s_lshl_b32 s46, s46, 2')
    e(f'v_add_u32 v{VF+5}, s46, v{VF+1}')
    e('s_waitcnt vmcnt(0) lgkmcnt(0)')
    stamp(2)
    if o.dec:
        e('s_mov_b64 exec, 1')
        e(f'ds_add_u32 v{VF+1}, v{VF+2} offset:8')
        e('s_mov_b64 exec, -1')
    if o.xslot:
        e(f's_mul_i32 s46, s{TAG}, 0x2545F491')
        e('s_lshr_b32 s46, s46, 27')
        e('s_lshl_b32 s46, s46, 22')
        e(f's_add_u32 s{WSO}, s{WSO}, s46')
    e(f's_add_u32 s{TAG}, s{TAG}, {TAGINC}')
    e(f'v_mov_b32 v{VF+3}, s{TAG}')
    if o.nopoll: e('s_branch L_go')
    e('L_poll:')
    e(f'buffer_load_dword v{VF+4}, v{VF}, {sr(S_WS)}, 0 offen sc1')
    e(f's_add_u32 s{NPOLL}, s{NPOLL}, 1')
    e('s_waitcnt vmcnt(0)')
    e(f'v_cmp_ne_u32 vcc, v{VF+3}, v{VF+4}')
    e('s_nop 4')
    e('s_cbranch_vccz L_go')
    if o.sleep: e(f's_sleep {o.sleep}')
    e(f's_cmp_lt_u32 s{NPOLL}, {o.maxpoll}')
    e('s_cbranch_scc1 L_poll')
    e(f's_mov_b32 s{MODE}, 1')
    e(f's_mov_b32 s{HAS3}, 1')
    e(f's_lshr_b32 s{TW0}, s{NB}, 1')
    e(f's_add_u32 s{TW1}, s{NB}, 9')
    e(f's_lshr_b32 s{TW1}, s{TW1}, 1')
    e(f's_mov_b32 s{TW2}, 8')
    e(f's_mov_b32 s{PAIR}, 0')
    e(f's_lshl_b32 s{SCRB}, s{WAVE}, 12')
    e(f's_add_u32 s{SCRB}, s{SCRB}, {SCR}')
    e('s_branch L_prod')
    e('L_go:')
    stamp(3)
    if o.dec:
        e('s_mov_b64 exec, 1')
        e(f'ds_add_u32 v{VF+1}, v{VF+2} offset:12')
        e('L_gw:')
        e(f'ds_read_b32 v{VF+4}, v{VF+1} offset:12')
        e('s_waitcnt lgkmcnt(0)')
        e(f'v_cmp_ne_u32 vcc, 4, v{VF+4}')
        e('s_nop 4')
        e('s_cbranch_vccnz L_gw')
        e('s_mov_b64 exec, -1')
    else:
        e('s_barrier')
    stamp(4)
    e(f's_setprio {o.mprio}')
    e(f's_cmp_eq_u32 s{TYP}, 1')
    e('s_cbranch_scc1 L_typeB')

    ACC = {'P': 64, 'Q': 100}
    WR, TMP = 136, 224
    XRING = [200 + 4 * i for i in range(6)]
    XWIN = [4 + 4 * i for i in range(6)] + [240 + 4 * i for i in range(4)]
    VC = 28
    PF = o.pf
    GT = 98
    wflags = ' sc1' if o.wsc1 else ''
    def wreg(g):
        return ACC['P'] + 4 * (g - GT) if (o.tail and g >= GT) else WR + 4 * (g % 16)
    for typ, S in enumerate(streams()):
        if typ == 1: e('.p2align 6'); e('L_typeB:')
        ops = []
        vstart = {}
        lastv = GT - 1 if o.tail else NSTEP + 7
        for v in range(lastv + 1):
            vstart[v] = len(ops)
            for j in range(8, -1, -1):
                if 0 <= v - j < NSTEP: ops.append((v - j, j))
        ntail = len(ops)
        if o.tail:
            for j in range(9):
                for g in range(GT - j, NSTEP): ops.append((g, j))
        assert len(ops) == NSTEP * 9 and len(set(ops)) == len(ops)
        N = len(ops)
        def key(n):
            g, j = ops[n]
            pid, arr, ch, c, acc = S[g]
            k = (pid, arr, ch, c + j)
            if n >= ntail and g < GT: k = k + ((n,) if not o.hold else ('h',))
            return k
        first, last = {}, {}
        for n in range(N):
            first.setdefault(key(n), n); last[key(n)] = n
        wfirst, wlast = {}, {}
        for n, (g, j) in enumerate(ops):
            wfirst.setdefault(g, n); wlast[g] = n
        tasks = []
        for k, n0 in first.items():
            win = o.tail and k[2] == 'rem' and k[1] == 'D'
            la = o.xla if n0 < ntail else 6
            if win: la = 40 if k[3] < 8 else 12
            tasks.append([n0 - la, n0 - 1, 'X', k])
        for g in range(NSTEP):
            if o.tail and g >= GT: rel = vstart[76 + 2 * (g - GT)] + 3
            elif g < PF: rel = -100 + g
            else: rel = vstart[g - PF] + (0 if g < 16 else 0)
            if g >= 16 and not (o.tail and g >= GT): rel = max(rel, wlast[g - 16])
            tasks.append([rel, wfirst[g] - 1, 'W', g])
        def at(v, off=0): return vstart[v] + off
        firstD = min(n for n in range(N) if S[ops[n][0]][1] == 'D')
        lastO = max(n for n in range(N) if S[ops[n][0]][1] == 'O')
        lastP = {j: max(n for n in range(N) if ops[n][1] == j and S[ops[n][0]][4] == 'P') for j in range(9)}
        slow = []
        def check(v, off, cnt, tag):
            tasks.append([at(v - 1, 3), at(v - 1, 8), 'L', (f'ds_read_b32 v{VC}, v{VF+1} offset:{off}', ('c', tag))])
            tasks.append([at(v, 0), at(v, 1), 'C', (f'v_cmp_ne_u32 vcc, {cnt}, v{VC}', ('c', tag))])
            tasks.append([at(v, 6), at(v, 7), 'I', [f's_cbranch_vccnz L_slow{typ}{tag}', f'L_back{typ}{tag}:']])
            slow.append((tag, off, cnt))
            return at(v, 8)
        def add1(pos, off):
            tasks.append([pos, pos + 4, 'A', off])
        vD = [v for v in vstart if vstart[v] <= firstD - o.xla][-1] - 1
        okD = check(vD, 16, 4, 'D')
        assert okD <= firstD - o.xla
        add1(lastO, 20)
        VP = 47
        okR = check(VP, 20, 4, 'R')
        for j in range(9):
            assert lastP[j] + 12 < at(VP + 1 + j, 2)
            tasks.append([at(VP + 1 + j, 2), at(VP + 1 + j, 8), 'L', (f'ds_write_b128 v{VEX}, {vr(ACC["P"]+4*j,4)} offset:{1024*j}', ('pw', j))])
        tasks.append([at(VP + 10, 0), at(VP + 10, 4), 'A', 'pair'])
        VQ = VP + 13
        okP = check(VQ, 'pair', 2, 'P')
        for j in range(9):
            tasks.append([at(VQ + 1 + j, 2), at(VQ + 1 + j, 8), 'L', (f'ds_read_b128 {vr(TMP+4*(j&1),4)}, v{VEXP} offset:{1024*j}', ('pr', j))])
            v = VQ + 2 + j
            pos = at(v, 8 - (j + 2) - 1) if j <= 6 else at(v, 8 - (j - 7) - 1)
            sh = 1 if j >= 7 else 0
            tasks.append([pos - 1 + sh, pos - 1 + sh, 'Q', (j, 0)])
            tasks.append([pos + sh, pos + sh, 'Q', (j, 1)])
        if typ == 0:
            tasks.append([at(72, 4), at(72, 8), 'S', f'buffer_store_dword v{VCL+1}, v{VCL}, {sr(S_DBG)}, 0 offen sc1'])
            tasks.append([at(92, 4), at(92, 8), 'S', f'buffer_store_dword v{VF+3}, v{VCL+1}, {sr(S_WS)}, 0 offen sc1'])
        tasks.sort(key=lambda t: (t[0], t[1]))
        vq, lq = [], []
        dirty = [False]
        xreg, busy = {}, {}
        wn = [0]
        since = {}
        fill = []
        def em(x):
            e(x)
            if not x.endswith(':'):
                for jj in since: since[jj] += 1
        def lwait(tag):
            if tag not in lq: return
            i = lq.index(tag)
            em(f's_waitcnt lgkmcnt({0 if dirty[0] else len(lq)-1-i})')
            if dirty[0]: lq.clear(); dirty[0] = False
            else: del lq[:i + 1]
        def vwait(g):
            if g not in vq: return
            i = vq.index(g)
            em(f's_waitcnt vmcnt({len(vq)-1-i})')
            del vq[:i + 1]
        def run(t, n):
            kind, p = t[2], t[3]
            if kind == 'X':
                pool = XWIN if (o.tail and p[2] == 'rem' and p[1] == 'D') else XRING
                if p[-1] == 'h':
                    pool = [WR + 4 * (g % 16) for g in range(GT - 16, GT - 8)]
                    for g in range(GT - 16, GT - 8): busy.setdefault(WR + 4 * (g % 16), wlast[g])
                r = [x for x in pool if busy.get(x, -1) <= n]
                assert r, ('no x register', p, n)
                r = min(r, key=lambda x: busy.get(x, -1))
                busy[r] = last[p]; xreg[p] = r
                arr, ch, s_ = p[1], p[2], p[3]
                if ch == 'rem': em(f'ds_read_b128 {vr(r,4)}, v{VXOR if arr == "O" else VXDR} offset:{288*s_}')
                else: em(f'ds_read_b128 {vr(r,4)}, v{VXO if arr == "O" else VXD} offset:{64*ch+288*s_}')
                lq.append(p)
            elif kind == 'W':
                g = p
                if o.tail and g >= GT:
                    em(f'buffer_load_dwordx4 {vr(wreg(g),4)}, v{VWL}, {sr(S_WS)}, s{WSO+27} offen offset:{1024*((g-GT)%4)}{wflags}')
                    if g == GT + 3: em(f's_add_u32 s{WSO+27}, s{WSO+27}, 4096')
                else:
                    assert g == wn[0]; wn[0] += 1
                    em(f'buffer_load_dwordx4 {vr(wreg(g),4)}, v{VWL}, {sr(S_WS)}, s{WSO} offen offset:{1024*(g%4)}{wflags}')
                    if g % 4 == 3: em(f's_add_u32 s{WSO}, s{WSO}, 4096')
                vq.append(g)
            elif kind == 'L':
                em(p[0].replace('offset:pair', 'offset:24').replace(f'v{VF+1} offset:24', f'v{VF+5} offset:24')); lq.append(p[1])
            elif kind == 'C':
                lwait(p[1]); em(p[0])
            elif kind == 'I':
                for x in p: em(x)
            elif kind == 'A':
                em('s_mov_b64 exec, 1')
                if p == 'pair': em(f'ds_add_u32 v{VF+5}, v{VF+2} offset:24')
                else: em(f'ds_add_u32 v{VF+1}, v{VF+2} offset:{p}')
                em('s_mov_b64 exec, -1')
                lq.append(('a', p))
            elif kind == 'Q':
                p, hf = p
                lwait(('pr', p))
                q = ACC['Q'] + 4 * p; t_ = TMP + 4 * (p & 1)
                for i in (2 * hf, 2 * hf + 1): em(f'v_add_f32 v{q+i}, v{q+i}, v{t_+i}')
            elif kind == 'S':
                em(p); vq.append(('s', n))
        def epi(j, pk):
            q = ACC['Q'] + 4 * j
            t = TMP + 8 * (j & 1)
            I = []
            if pk:
                I.append(f'v_pk_mul_f32 {vr(t,2)}, {vr(q,2)}, s[{C2L}:{C2L+1}]')
                I.append(f'v_pk_mul_f32 {vr(t+2,2)}, {vr(q+2,2)}, s[{CNL}:{CNL+1}]')
            else:
                for i in (0, 1): I.append(f'v_mul_f32 v{t+i}, s{C2L}, v{q+i}')
                for i in (2, 3): I.append(f'v_mul_f32 v{t+i}, s{CNL}, v{q+i}')
            I.append(f'v_min_f32 v{t}, s{C60}, v{t}')
            I.append(f'v_min_f32 v{t+1}, s{C60}, v{t+1}')
            for i in (0, 1, 2, 3): I.append(f'v_exp_f32 v{t+i}, v{t+i}')
            if pk:
                I.append(f'v_pk_add_f32 {vr(t+4,2)}, {vr(t,2)}, 1.0 op_sel_hi:[1,0]')
                I.append(f'v_pk_add_f32 {vr(t+6,2)}, {vr(t,2)}, -1.0 op_sel_hi:[1,0]')
                I.append(f'v_pk_fma_f32 {vr(t+4,2)}, {vr(t+4,2)}, {vr(t+2,2)}, {vr(t+4,2)}')
            else:
                for i in (0, 1): I.append(f'v_add_f32 v{t+4+i}, 1.0, v{t+i}')
                for i in (0, 1): I.append(f'v_fma_f32 v{t+4+i}, v{t+4+i}, v{t+2+i}, v{t+4+i}')
            I.append(f'v_rcp_f32 v{t+4}, v{t+4}')
            I.append(f'v_rcp_f32 v{t+5}, v{t+5}')
            if pk:
                I.append('s_nop 0')
                I.append(f'v_pk_mul_f32 {vr(t+6,2)}, {vr(t+6,2)}, {vr(t+4,2)}')
            else:
                for i in (0, 1): I.append(f'v_add_f32 v{t+6+i}, -1.0, v{t+i}')
                for i in (0, 1): I.append(f'v_mul_f32 v{t+6+i}, v{t+6+i}, v{t+4+i}')
            I.append(f'v_cvt_pk_bf16_f32 v{q}, v{t+6}, v{t+7}')
            I.append(f'buffer_store_dword v{q}, v{VOUT + j//3}, {sr(S_OUT)}, 0 offen offset:{1152*(j%3)} {o.oflags}')
            return I
        def cost(x): return 2 if x.startswith(('v_exp', 'v_rcp', 'buffer')) else 1
        e(f's_add_u32 s{WSO+27}, s{WSO}, {GT*1024}')
        while tasks and tasks[0][0] < 0: run(tasks.pop(0), -1)
        inv = {n: v for v, n in vstart.items()}
        lastop = {j: max(n for n in range(N) if ops[n][1] == j) for j in range(9)}
        for n, (g, j) in enumerate(ops):
            if n in inv and o.diag:
                v = inv[n]
                if o.diag == 2 and v in o.marks:
                    kk = o.marks.index(v)
                    e(f's_memtime s[{ST0+2*kk}:{ST0+2*kk+1}]'); dirty[0] = True
                if o.diag in (1, 4) and v == 33: stamp(5); stamp(6); dirty[0] = True
            k = key(n)
            assert k in xreg, (k, n)
            lwait(k); vwait(g)
            acc = S[g][4]
            d = ACC[acc] + 4 * j
            if g == 0: cs = '0'
            elif acc == 'Q' and S[g-1][4] == 'P': cs = vr(ACC['P'] + 4 * j, 4)
            else: cs = vr(d, 4)
            em(f'v_mfma_f32_16x16x32_bf16 {vr(d,4)}, {vr(wreg(g),4)}, {vr(xreg[k],4)}, {cs}')
            if n == lastop[j]: since[j] = 0
            budget = 2
            TC = {'X': 1, 'W': 2, 'L': 2, 'C': 1, 'I': 0, 'A': 1, 'Q': 2, 'S': 2}
            while True:
                ready = [t for t in tasks if t[0] <= n]
                if not ready: break
                t = min(ready, key=lambda t: t[1])
                assert t[1] >= n, ('late', t, n)
                if TC[t[2]] > budget and t[1] > n:
                    fit = [u for u in ready if TC[u[2]] <= budget]
                    if not fit: break
                    t = min(fit, key=lambda t: t[1])
                tasks.remove(t); run(t, n); budget -= TC[t[2]]
            for jj in sorted(since):
                if 8 <= since[jj] < 10**6:
                    fill += epi(jj, False); since[jj] = 10**6
            budget += o.nfill - 2
            while fill and budget >= cost(fill[0]):
                budget -= cost(fill[0]); em(fill.pop(0))
        assert not tasks
        stamp(7)
        while fill: em(fill.pop(0))
        for jj in [jj for jj in sorted(since) if since[jj] < 10**6]:
            if since[jj] < 8: em(f's_nop {8-since[jj]-1}')
            for x in epi(jj, True): em(x)
        stamp(8)
        if o.padto and o.padev[0] == 'm': padloop(typ)
        if o.diag == 1:
            e('s_waitcnt vmcnt(0)')
            stamp(9)
            dump(10)
        if o.diag == 2:
            kk = len(o.marks)
            e(f's_memtime s[{ST0+2*kk}:{ST0+2*kk+1}]')
            dump(10)
        e('s_endpgm')
        for tag, off, cnt in slow:
            e(f'L_slow{typ}{tag}:')
            e(f'ds_read_b32 v{VC}, v{VF+5 if off == "pair" else VF+1} offset:{24 if off == "pair" else off}')
            e('s_waitcnt lgkmcnt(0)')
            e(f'v_cmp_ne_u32 vcc, {cnt}, v{VC}')
            e('s_nop 4')
            e(f's_cbranch_vccnz L_slow{typ}{tag}')
            e(f's_branch L_back{typ}{tag}')

    e('.p2align 6')
    e('L_helper:')
    role[0] = 'h'
    e(f's_setprio {o.hprio}')
    e(f's_sub_u32 s{TW0}, s{WAVE}, 4')
    e(f's_mov_b32 s{TW1}, s{WAVE}')
    e(f's_mov_b32 s{TW2}, 8')
    e(f's_mov_b32 s{PAIR}, s{PAIR0}')
    e(f's_mov_b32 s{MODE}, 0')
    e(f's_mov_b32 s{HAS3}, s{TW0}')
    e(f's_lshl_b32 s{SCRB}, s{TW0}, 12')
    e(f's_add_u32 s{SCRB}, s{SCRB}, {SCR}')
    e(f'v_mov_b32 v10, {CNT}')
    for r in range(12, 16): e(f'v_mov_b32 v{r}, 0')
    e('ds_write_b128 v10, v[12:15]')
    e('ds_write_b128 v10, v[12:15] offset:16')
    e('L_prod:')
    T = [(64, TW0, 2, 3, 0), (96, TW1, 4, 5, 2048), (128, TW2, 6, 7, 16384)]
    c, kp, q, cc, kk, t = 46, 47, 48, 49, 50, 51
    b = TS
    e('v_mov_b32 v19, 4320')
    e('v_and_b32 v23, 3, v1')
    e('v_lshrrev_b32 v24, 3, v1')
    e('v_mul_u32_u24 v24, 576, v24')
    e('v_bfe_u32 v25, v1, 2, 1')
    e('v_mul_u32_u24 v25, 288, v25')
    e('v_add_u32 v24, v24, v25')
    for (vb, sw, vl, vs, so) in T:
        e(f'v_lshl_add_u32 v8, s{sw}, 2, v23')
        e('v_cmp_le_u32 vcc, 18, v8')
        e(f'v_lshl_add_u32 v{vl}, v8, 4, v24')
        e(f'v_add_u32 v9, v{vl}, v19')
        e(f'v_cndmask_b32 v{vl}, v{vl}, v9, vcc')
    e(f's_and_b32 s{c}, s{PAIR}, 15')
    e(f's_lshr_b32 s{kp}, s{PAIR}, 4')
    e(f's_mul_i32 s{b}, s{c}, 165888')
    e(f's_mul_i32 s{t}, s{kp}, 9216')
    e(f's_add_u32 s{b}, s{b}, s{t}')
    e(f's_add_u32 s{b+1}, s{b}, 82944')
    e(f's_mov_b32 s{S_W+2}, 2571264')
    e(f's_mov_b32 s{S_W+3}, 0x20000')
    e(f's_mov_b32 s{S_WO+3}, 0x20000')
    e(f's_cmp_lg_u32 s{c}, 15')
    e(f's_cselect_b32 s{S_WO+2}, 2571264, 0')
    e(f's_mov_b32 m0, s{SCRB}')
    e('s_waitcnt lgkmcnt(0)')
    e(f's_mov_b32 s{S_W}, s6')
    e(f's_and_b32 s{S_W+1}, s7, 0xffff')
    e(f's_mov_b32 s{S_WO}, s6')
    e(f's_and_b32 s{S_WO+1}, s7, 0xffff')
    e(f's_cmp_ge_u32 s{PAIR}, {NPROD}')
    e('s_cbranch_scc1 L_noprod')
    def cond3(lbl):
        e(f's_cmp_lg_u32 s{HAS3}, 0')
        e(f's_cbranch_scc1 {lbl}')
    for ti, (vb, sw, vl, vs, so) in enumerate(T):
        if ti == 2: cond3('L_a3')
        if ti:
            e(f's_add_u32 m0, s{SCRB}, {so}')
            e('s_nop 0')
        e(f'buffer_load_dwordx4 v{vl}, {sr(S_W)}, s{b} offen lds')
        e(f's_add_u32 m0, s{SCRB}, {so+1024}')
        e('s_nop 0')
        e(f'buffer_load_dwordx4 v{vl}, {sr(S_WO)}, s{b+1} offen lds')
    e('L_a3:')
    stamp(1)
    if not o.xslot:
        e(f's_cmp_lg_u32 s{WAVE}, 4')
        e('s_cbranch_scc1 L_a4')
    else:
        e(f's_cmp_lg_u32 s{MODE}, 0')
        e('s_cbranch_scc1 L_a4')
    e(f's_load_dword s{TAG}, s[12:13], {NONCE}')
    e('L_a4:')
    if o.b0late:
        e(f's_cmp_lg_u32 s{MODE}, 0')
        e('s_cbranch_scc1 L_a4b')
        e('s_barrier')
        e('L_a4b:')
    srd(e, S_WS, 12, WS_REC)
    srd(e, S_DBG, 10, 256)
    e(f'v_mov_b32 v20, {(256 - 18*2*NSTEP*1024) & 0xffffffff}')
    e(f'v_mov_b32 v26, {2*NSTEP*1024}')
    e('v_bfe_u32 v21, v1, 2, 2')
    e('v_lshlrev_b32 v21, 7, v21')
    e('v_and_b32 v22, 1, v1')
    e('v_lshl_add_u32 v21, v22, 6, v21')
    e('v_bfe_u32 v22, v1, 1, 1')
    e('v_lshl_add_u32 v21, v22, 3, v21')
    e('v_lshrrev_b32 v22, 4, v1')
    e('v_lshl_add_u32 v21, v22, 4, v21')
    e(f'v_add_u32 v21, s{SCRB}, v21')
    e('v_and_b32 v25, 15, v1')
    e('v_lshlrev_b32 v25, 4, v25')
    for (vb, sw, vl, vs, so) in T:
        e(f'v_lshl_add_u32 v8, s{sw}, 2, v22')
        e('v_cmp_le_u32 vcc, 18, v8')
        e(f'v_mad_u32_u24 v{vs}, v8, v26, v25')
        e(f'v_add_u32 v9, v{vs}, v20')
        e(f'v_cndmask_b32 v{vs}, v{vs}, v9, vcc')
    e(f's_lshr_b32 s{q}, s{kp}, 1')
    e(f's_and_b32 s{cc}, s{c}, 7')
    e(f's_lshr_b32 s{kk}, s{c}, 3')
    e(f's_and_b32 s{t}, s{kp}, 1')
    e(f's_cmp_eq_u32 s{kp}, 8')
    e(f's_cselect_b32 s{cc}, s{cc}, s{c}')
    e(f's_cselect_b32 s{kk}, s{kk}, s{t}')
    e(f's_lshl_b32 s{kk}, s{kk}, 9')
    e(f's_add_u32 s{kk}, s{kk}, {WOFF}')
    e(f's_lshl_b32 s{t}, s{q}, 4')
    e(f's_add_u32 s{b+2}, s{t}, s{cc}')
    e(f's_sub_u32 s{b+3}, s{b+2}, s{q}')
    e(f's_cmp_ge_u32 s{q}, 2')
    e(f's_cselect_b32 s{b+4}, 74, 0')
    e(f's_add_u32 s{b+4}, s{b+4}, s{b+2}')
    e(f's_cmp_lt_u32 s{cc}, 2')
    e(f's_cselect_b32 s{t}, 32, 136')
    e(f's_add_u32 s{t}, s{t}, s{cc}')
    e(f's_cmp_eq_u32 s{kp}, 8')
    e(f's_cselect_b32 s{b+4}, s{t}, s{b+4}')
    e(f's_add_u32 s{b+2}, s{b+2}, 34')
    e(f's_add_u32 s{b+3}, s{b+3}, 144')
    for k in (2, 3, 4):
        e(f's_lshl_b32 s{b+k}, s{b+k}, 10')
        e(f's_add_u32 s{b+k}, s{b+k}, s{kk}')
    e(f's_cmp_eq_u32 s{kp}, 8')
    e(f's_cselect_b32 s{t}, 1, 2')
    e(f's_cmp_eq_u32 s{c}, 15')
    e(f's_cselect_b32 s{b+5}, s{t}, 0')
    npre = 0
    if o.prest:
        e(f's_cmp_lg_u32 s{MODE}, 0')
        e('s_cbranch_scc1 L_p9')
        if o.prest == 2:
            e('s_mov_b32 exec_lo, 0x00010001'); e('s_mov_b32 exec_hi, 0x00010001')
        if o.prest == 3:
            e('s_mov_b32 exec_lo, 0x01010101'); e('s_mov_b32 exec_hi, 0x01010101')
        e(f's_cmp_eq_u32 s{b+5}, 2')
        e(f's_cselect_b32 s46, s{b+4}, s{b+3}')
        e(f's_cmp_lg_u32 s{HAS3}, 0')
        e('s_cselect_b32 s47, 0x80000000, 0')
        e('v_or_b32 v7, s47, v7')
        for ti, (vb, sw, vl, vs, so) in enumerate(T):
            for k in (b + 4, b + 2, 46):
                if o.prest == 1: e(f'buffer_store_dwordx4 v[64:67], v{vs}, {sr(S_WS)}, s{k} offen sc1')
                else: e(f'buffer_store_dword v64, v{vs}, {sr(S_WS)}, s{k} offen sc1')
        e('s_mov_b64 exec, -1')
        e('s_waitcnt vmcnt(9) lgkmcnt(0)')
        e('s_branch L_p10')
        e('L_p9:')
        e('s_waitcnt vmcnt(0) lgkmcnt(0)')
        e('L_p10:')
    else:
        e('s_waitcnt vmcnt(0) lgkmcnt(0)')
    stamp(2)
    if o.xslot:
        e(f's_cmp_lg_u32 s{MODE}, 0')
        e(f's_cselect_b32 s46, {TAGINC}, 0')
        e(f's_sub_u32 s46, s{TAG}, s46')
        e('s_mul_i32 s46, s46, 0x2545F491')
        e('s_lshr_b32 s46, s46, 27')
        e('s_lshl_b32 s46, s46, 22')
        for k in (2, 3, 4): e(f's_add_u32 s{b+k}, s{b+k}, s46')
    e('v_mov_b32 v27, 0')
    if o.noclosed: e('s_branch L_a5')
    e(f's_cmp_lg_u32 s{WAVE}, 4')
    e('s_cbranch_scc1 L_a5')
    e('v_mov_b32 v12, 4')
    e('s_mov_b64 exec, 1')
    e(f'buffer_load_dword v27, v12, {sr(S_DBG)}, 0 offen sc1')
    e('s_mov_b64 exec, -1')
    e('L_a5:')
    def trreads(vb, so):
        for tap in range(2):
            for half in range(2):
                e(f'ds_read_b64_tr_b16 {vr(vb+4*tap+2*half,2)}, v21 offset:{so+1024*tap+512*half}')
    def st01(vb, vs, n0, n1, tag):
        e(f's_waitcnt lgkmcnt({n0})')
        e(f'buffer_store_dwordx4 {vr(vb,4)}, v{vs}, {sr(S_WS)}, s{b+2} offen sc1')
        e(f's_waitcnt lgkmcnt({n1})')
        e(f's_cmp_eq_u32 s{b+5}, 2')
        e(f's_cbranch_scc1 L_skip{tag}')
        e(f'buffer_store_dwordx4 {vr(vb+4,4)}, v{vs}, {sr(S_WS)}, s{b+3} offen sc1')
        e(f'L_skip{tag}:')
    def stsum(vb, vs):
        for i in range(8):
            e(f'v_lshlrev_b32 v{vb+8+2*i}, 16, v{vb+i}')
            e(f'v_and_b32 v{vb+9+2*i}, s{MASK}, v{vb+i}')
        for i in range(4):
            e(f'v_pk_add_f32 {vr(vb+8+2*i,2)}, {vr(vb+8+2*i,2)}, {vr(vb+16+2*i,2)}')
        for i in range(4):
            e(f'v_cvt_pk_bf16_f32 v{vb+24+i}, v{vb+8+2*i}, v{vb+9+2*i}')
        e(f'buffer_store_dwordx4 {vr(vb+24,4)}, v{vs}, {sr(S_WS)}, s{b+4} offen sc1')
    for tt in T: trreads(tt[0], tt[4])
    st01(T[0][0], T[0][3], 10, 8, 0)
    st01(T[1][0], T[1][3], 6, 4, 1)
    stsum(T[0][0], T[0][3])
    stsum(T[1][0], T[1][3])
    cond3('L_b3')
    st01(T[2][0], T[2][3], 2, 0, 2)
    stsum(T[2][0], T[2][3])
    e('L_b3:')
    e(f's_cmp_eq_u32 s{MODE}, 0')
    e('s_cbranch_scc1 L_b4')
    e('s_waitcnt vmcnt(0) lgkmcnt(0)')
    e(f's_add_u32 s{PAIR}, s{PAIR}, 1')
    e(f's_cmp_lt_u32 s{PAIR}, {NPROD}')
    e('s_cbranch_scc1 L_prod')
    e('s_branch L_go')
    e('L_noprod:')
    if o.b0late: e('s_barrier')
    srd(e, S_WS, 12, WS_REC)
    stamp(1); stamp(2)
    e('L_b4:')
    if not o.b0late: e('s_barrier')
    if o.b0late:
        pass
    stamp(3)
    decode()
    e('v_subrev_u32 v4, 256, v0')
    e('v_min_u32 v4, 251, v4')
    e('v_mul_u32_u24 v3, 3641, v4')
    e('v_lshrrev_b32 v3, 16, v3')
    e('v_mul_u32_u24 v2, 18, v3')
    e('v_sub_u32 v2, v4, v2')
    e(f'v_mul_u32_u24 v3, {R}, v3')
    e(f'v_min_u32 v3, {160-R}, v3')
    e('v_mul_u32_u24 v4, 1152, v3')
    e('v_lshl_add_u32 v4, v2, 4, v4')
    e(f'v_add_u32 v12, s{XB}, v4')
    e('v_mul_u32_u24 v18, 288, v3')
    e('v_lshl_add_u32 v18, v2, 4, v18')
    e(f'v_add_u32 v19, {X_D1}, v18')
    srd(e, S_X, 4, 1152000, add=BOFF)
    e(f's_cmp_ge_u32 s{PAIR0}, {NPROD}')
    e('s_cbranch_scc1 L_noflag')
    e(f'v_mov_b32 v10, {CNT}')
    e(f's_mul_i32 s46, s{PAIR0}, {o.fstride}')
    e('v_mov_b32 v16, s46')
    e('s_mov_b64 exec, 1')
    e(f's_cmp_lg_u32 s{WAVE}, 4')
    e('s_cbranch_scc1 L_nottag')
    e(f's_add_u32 s46, s{TAG}, {TAGINC}')
    e('v_mov_b32 v15, s46')
    e('ds_write_b32 v10, v15 offset:4')
    e('L_nottag:')
    if o.padto: stamp(8)
    e('s_waitcnt vmcnt(0)')
    stamp(4)
    e('v_cmp_ne_u32 vcc, 0, v27')
    e('v_mov_b32 v13, 1')
    e('v_mov_b32 v14, 0x101')
    e('v_cndmask_b32 v13, v13, v14, vcc')
    e('ds_add_rtn_u32 v14, v10, v13')
    e('ds_read_b32 v15, v10 offset:4')
    e('s_waitcnt lgkmcnt(0)')
    e('v_add_u32 v14, v14, v13')
    e('v_cmp_eq_u32 vcc, 4, v14')
    e('s_and_b64 exec, exec, vcc')
    e('s_cbranch_execz L_notlast')
    e(f'buffer_store_dword v15, v16, {sr(S_WS)}, 0 offen sc1')
    e('L_notlast:')
    e('s_mov_b64 exec, -1')
    e('L_noflag:')
    if o.b0late: e('s_barrier')
    e(f's_setprio {o.hprio2}')
    RAW, ORAW = 64, 120
    EU = [184, 192]
    OU, DT, DO = 200, 208, 216
    xi = [0]
    NL = R + 1
    def eload():
        k = xi[0]
        if k >= NL: return
        a_ = 12
        if k:
            a_ = 13 + (k & 3)
            e(f'v_add_u32 v{a_}, {1152*k}, v12')
        e(f'buffer_load_dwordx4 {vr(RAW+4*k,4)}, v{a_}, {sr(S_X)}, 0 offen')
        xi[0] += 1
    if o.etouch:
        e(f's_cmp_lt_u32 s{PAIR0}, {NPROD}')
        e('s_cbranch_scc1 L_net')
        if o.etouch == 2:
            e(f's_and_b32 s46, s{NB}, 1')
            e(f's_mul_i32 s46, s46, {1152*6}')
            e('v_add_u32 v12, s46, v12')
            for _ in range(7): eload()
            e('v_subrev_u32 v12, s46, v12')
        else:
            for _ in range(NL): eload()
        e('s_waitcnt vmcnt(0)')
        e('L_net:')
        xi[0] = 0
    for _ in range(o.epre): eload()
    e('s_waitcnt lgkmcnt(0)')
    stamp(5)
    if o.dec:
        for _ in range(max(0, o.ein - o.epre)): eload()
        e(f'v_mov_b32 v10, {CNT}')
        e('s_mov_b64 exec, 1')
        e('L_ow:')
        e('ds_read_b32 v11, v10 offset:8')
        e('s_waitcnt lgkmcnt(0)')
        e('v_cmp_ne_u32 vcc, 4, v11')
        e('s_nop 4')
        e('s_cbranch_vccz L_ow2')
        e('s_sleep 1')
        e('s_branch L_ow')
        e('L_ow2:')
        e('s_mov_b64 exec, -1')
    else:
        e('s_barrier')
    stamp(6)
    if not o.dec:
        for _ in range(max(0, o.ein - o.epre)): eload()
    for j in range(R):
        e(f'ds_read_b128 {vr(ORAW+4*j,4)}, v18 offset:{X_O+288*j}')
    def unpack(dst, s_):
        for i in range(4):
            e(f'v_lshlrev_b32 v{dst+2*i}, 16, v{s_+i}')
            e(f'v_and_b32 v{dst+2*i+1}, s{MASK}, v{s_+i}')
    def unpackE(dst, k):
        e(f's_waitcnt vmcnt({xi[0]-1-k})')
        unpack(dst, RAW + 4 * k)
        eload()
    def diff(eu, out):
        if o.nopk:
            for i in range(8): e(f'v_sub_f32 v{DT+i}, v{eu+i}, v{OU+i}')
        else:
          for i in range(4):
            e(f'v_pk_add_f32 {vr(DT+2*i,2)}, {vr(eu+2*i,2)}, {vr(OU+2*i,2)} neg_lo:[0,1] neg_hi:[0,1]')
        for i in range(4):
            e(f'v_cvt_pk_bf16_f32 v{out+i}, v{DT+2*i}, v{DT+2*i+1}')
    unpackE(EU[0], 0)
    e('s_waitcnt lgkmcnt(0)')
    for j in range(R):
        o0 = DO + 8 * (j & 1)
        unpack(OU, ORAW + 4 * j)
        diff(EU[j & 1], o0)
        e(f'ds_write_b128 v18, {vr(o0,4)} offset:{X_D0+288*j}')
        unpackE(EU[(j + 1) & 1], j + 1)
        diff(EU[(j + 1) & 1], o0 + 4)
        e(f'ds_write_b128 v19, {vr(o0+4,4)} offset:{288*j}')
    e('s_waitcnt lgkmcnt(0)')
    stamp(7)
    e('v_mov_b32 v11, 1')
    e('s_mov_b64 exec, 1')
    e('ds_add_u32 v10, v11 offset:16')
    e('s_mov_b64 exec, -1')
    if o.padto and o.padev[0] == 'h': padloop('h')
    if o.diag == 1:
        stamp(8); stamp(9)
        dump(10)
    e('L_end:')
    e('s_endpgm')
    e('.section .rodata,"a"')
    e('.p2align 6')
    e(f'.amdhsa_kernel {KN}')
    for x in ['next_free_vgpr 256', 'next_free_sgpr 102', 'accum_offset 256', 'group_segment_fixed_size 0', 'kernarg_size 40',
              'user_sgpr_count 2', 'user_sgpr_kernarg_segment_ptr 1', 'system_sgpr_workgroup_id_x 1']:
        e('  .amdhsa_' + x)
    e('.end_amdhsa_kernel')
    n = haz.check(e.L)
    if n: print(f'{n} hazards', file=sys.stderr)
    return f'; @launch grid=({NWG},1,1) block=(512,1,1) lds={LDS_BYTES}\n' + e.text()

def opts(argv=None):
    ap = argparse.ArgumentParser()
    ap.add_argument('-o', default='k.s')
    for nm, d in [('diag', 0), ('pf', 8), ('wsc1', 0), ('nfill', 2), ('fstride', 128), ('sleep', 0), ('maxpoll', 3000), ('nopoll', 0),
                  ('hprio', 3), ('hprio2', 0), ('mprio', 2), ('epre', 0), ('ein', 4), ('vbd', 33), ('nopk', 1), ('padto', 0), ('npdelay', 0), ('opre', 2), ('etouch', 2), ('orev', 1), ('b0late', 1), ('dec', 1), ('tail', 1), ('xla', 9), ('hold', 1), ('prest', 0), ('xslot', 0), ('noclosed', 0)]:
        ap.add_argument('--' + nm, type=int, default=d)
    ap.add_argument('--oflags', default='')
    ap.add_argument('--pmap', default='18,18,18,18,18,18,18,18')
    ap.add_argument('--padev', default='m0')
    ap.add_argument('--marks', default='0,4,8,12,16,24,33,47,58')
    o = ap.parse_args(argv)
    o.marks = [int(x) for x in o.marks.split(',')]
    return o

if __name__ == '__main__':
    o = opts()
    open(o.o, 'w').write(gen(o))
```

```python
import re, sys, argparse
import haz

KN = 'standalone__autoregressive_conv_wavernn__speech_kernel'
NWG = 252
NPROD = 144
ARR = 160 * 288
X_D0, X_O, X_D1 = 0, ARR, 2 * ARR
CNT = 3 * ARR
SCR = CNT + 64
LDS_BYTES = SCR + 18432
NSTEP = 106
WOFF = int(__import__('os').environ.get('WOFF', '0x100000'), 0)
NONCE = 0x10000
DIAG = 0x800000
WS_REC = max(0x1000000, WOFF + 0x400000, int(__import__('os').environ.get('WSREC', '0'), 0))
TAGINC = 0x9E3779B9
R = 12

class Em:
    def __init__(self): self.L = []
    def __call__(self, s): self.L.append(s)
    def text(self): return '\n'.join(self.L) + '\n'

def vr(a, n=1): return f'v{a}' if n == 1 else f'v[{a}:{a+n-1}]'
def sr(a, n=4): return f's[{a}:{a+n-1}]'

def streams():
    out = []
    for typ in (0, 1):
        S = []
        pid = [0]
        def add(arr, chunk, cs, acc):
            for c in cs: S.append((pid[0], arr, chunk, c, acc))
            pid[0] += 1
        if typ == 0:
            add('O', 0, range(16), 'P'); add('O', 1, range(16), 'P'); add('O', 'rem', range(0, 2), 'P')
            for q in range(4): add('D', q, range(16), 'Q')
            add('D', 'rem', range(8), 'Q')
        else:
            add('O', 2, range(16), 'P'); add('O', 3, range(16), 'P'); add('O', 'rem', range(2, 8), 'P')
            for q in range(4): add('D', q, range(15), 'Q')
            add('D', 'rem', range(8), 'Q')
        assert len(S) == NSTEP
        out.append(S)
    return out

S_X, S_W, S_WO, S_WS, S_OUT, S_DBG = 20, 24, 28, 32, 36, 40
WAVE, NB, BAT, PAR, MB, BOFF = 14, 15, 16, 17, 18, 19
PAIR0 = 3
XB = 52
MASK = 53
TW0, TW1, TW2, PAIR, HAS3, MODE, SCRB, TAG, LAST, NPOLL = 44, 45, 54, 55, 56, 57, 58, 59, 60, 61
TS = 62
TYP, WSO = 68, 69
C2L, CNL, C60 = 90, 92, 94
ST0 = 70

def srd(e, d, ptr, rec, add=None):
    if add is None:
        e(f's_mov_b32 s{d}, s{ptr}')
        e(f's_and_b32 s{d+1}, s{ptr+1}, 0xffff')
    else:
        e(f's_add_u32 s{d}, s{ptr}, s{add}')
        e(f's_addc_u32 s{d+1}, s{ptr+1}, 0')
        e(f's_and_b32 s{d+1}, s{d+1}, 0xffff')
    e(f's_mov_b32 s{d+2}, {rec}')
    e(f's_mov_b32 s{d+3}, 0x20000')

def gen(o):
    e = Em()
    role = ['m']
    def padloop(tag):
        e(f'L_pad{tag}:')
        e('s_memrealtime s[98:99]')
        e('s_waitcnt lgkmcnt(0)')
        e('s_sub_u32 s98, s98, s100')
        e(f's_cmp_lt_u32 s98, {o.padto}')
        e(f's_cbranch_scc1 L_pad{tag}')
    def stamp(k, lvl=1):
        if o.padto and lvl == 1 and o.padev == f'{role[0]}{k}':
            e('s_memrealtime s[100:101]'); e('s_waitcnt lgkmcnt(0)')
        if o.diag == lvl or (o.diag == 4 and lvl == 1): e(f's_memrealtime s[{ST0+2*k}:{ST0+2*k+1}]')
    def dump(nst):
        e('s_waitcnt lgkmcnt(0)')
        e('v_mov_b32 v250, 0')
        for k in range(nst): e(f'v_writelane_b32 v250, s{ST0+2*k}, {k}')
        e(f'v_writelane_b32 v250, s{NPOLL}, 13')
        e(f'v_writelane_b32 v250, s{PAIR0}, 14')
        e('s_getreg_b32 s46, hwreg(HW_REG_XCC_ID)')
        e('v_writelane_b32 v250, s46, 15')
        e(f's_lshl_b32 s46, s2, 3'); e(f's_add_u32 s46, s46, s{WAVE}'); e('s_lshl_b32 s46, s46, 6'); e(f's_add_u32 s46, s46, {DIAG}')
        e('v_lshl_add_u32 v251, v1, 2, s46')
        e('s_mov_b64 exec, 0xffff')
        e(f'buffer_store_dword v250, v251, {sr(S_WS)}, 0 offen')
        e('s_mov_b64 exec, -1')

    e('.amdgcn_target "amdgcn-amd-amdhsa--gfx950"')
    e('.text')
    e(f'.globl {KN}')
    e('.p2align 8')
    e(f'.type {KN},@function')
    e(f'{KN}:')
    e(f's_cmp_ge_u32 s2, {NWG}')
    e('s_cbranch_scc1 L_end')
    stamp(0)
    if o.padto and o.padev != 'm0': e('s_memrealtime s[100:101]')
    e('s_load_dwordx4 s[4:7], s[0:1], 0')
    e('s_load_dwordx4 s[8:11], s[0:1], 16')
    e('s_load_dwordx2 s[12:13], s[0:1], 32')
    e('v_lshrrev_b32 v2, 6, v0')
    e('v_and_b32 v1, 63, v0')
    e(f'v_readfirstlane_b32 s{WAVE}, v2')
    def decode():
        e('s_and_b32 s44, s2, 7')
        e('s_lshr_b32 s45, s2, 3')
        e('s_mul_i32 s46, s44, 31')
        e('s_min_u32 s44, s44, 4')
        e('s_add_u32 s46, s46, s44')
        e('s_add_u32 s46, s46, s45')
        e('s_mul_hi_u32 s47, s46, 68174085')
        e('s_mul_i32 s48, s47, 63')
        e('s_sub_u32 s48, s46, s48')
        e(f's_mul_hi_u32 s{NB}, s48, 613566757')
        e(f's_mul_i32 s49, s{NB}, 7')
        e('s_sub_u32 s49, s48, s49')
        e('s_mul_i32 s47, s47, 7')
        e('s_add_u32 s47, s47, s49')
        e(f's_and_b32 s{PAR}, s47, 1')
        e('s_lshr_b32 s47, s47, 1')
        e('s_cmp_ge_u32 s47, 7')
        e(f's_cselect_b32 s{BOFF}, 1152000, 0')
        e('s_cselect_b32 s48, 7, 0')
        e(f's_sub_u32 s{MB}, s47, s48')
        e(f's_mul_i32 s{XB}, s{MB}, 576')
        e(f's_add_u32 s{XB}, s{XB}, s{PAR}')
        e(f's_sub_u32 s{XB}, s{XB}, 60')
        e(f's_mul_i32 s{XB}, s{XB}, 288')
    cnts = [int(x) for x in o.pmap.split(',')]
    assert sum(cnts) == NPROD
    if cnts == [18] * 8:
        e(f's_mov_b32 s{PAIR0}, s2')
    else:
        base = [sum(cnts[:i]) for i in range(8)]
        pk = lambda L: sum(v << (8 * i) for i, v in enumerate(L))
        e('s_and_b32 s44, s2, 7')
        e('s_lshl_b32 s44, s44, 3')
        e(f's_mov_b32 s46, {pk(cnts[:4])}'); e(f's_mov_b32 s47, {pk(cnts[4:])}')
        e(f's_mov_b32 s48, {pk(base[:4])}'); e(f's_mov_b32 s49, {pk(base[4:])}')
        e('s_lshr_b64 s[46:47], s[46:47], s44')
        e('s_lshr_b64 s[48:49], s[48:49], s44')
        e('s_and_b32 s46, s46, 0xff')
        e('s_and_b32 s48, s48, 0xff')
        e('s_lshr_b32 s45, s2, 3')
        e('s_add_u32 s48, s48, s45')
        e('s_cmp_lt_u32 s45, s46')
        e(f's_cselect_b32 s{PAIR0}, s48, 255')
    e(f's_cmp_ge_u32 s{WAVE}, 4')
    e('s_cbranch_scc1 L_helper')
    if o.cpf:
        e('s_lshr_b32 s44, s2, 3')
        e(f's_lshl_b32 s45, s{WAVE}, 5')
        e('s_add_u32 s44, s44, s45')
        e('s_sub_u32 s44, s44, 18')
        e('s_cmp_ge_u32 s44, 10')
        e('s_cbranch_scc1 L_main')
        e('s_getpc_b64 s[46:47]')
        e('L_pc:')
        e('s_cmp_ge_u32 s44, 5')
        e('s_cselect_b32 s45, 5, 0')
        e('s_sub_u32 s44, s44, s45')
        e('s_lshl_b32 s44, s44, 13')
        e('v_lshl_add_u32 v2, v1, 7, s44')
        e('v_min_u32 v2, L_codeend-L_pc-4, v2')
        e('global_load_dword v63, v2, s[46:47]')
    if o.hfirst: e('s_branch L_main')
    mark = {'main0': len(e.L)}
    e('L_main:')
    e(f's_mov_b32 s{MASK}, 0xffff0000')
    e(f's_mov_b32 s{NPOLL}, 0')
    decode()

    VXO, VXOR, VXD, VXDR, VWL, VEX, VEXP, VOUT = 30, 31, 32, 33, 34, 35, 36, 37
    VF = 40
    VA = 48
    VCL = 60
    e('v_mul_u32_u24 v3, 3641, v0')
    e('v_lshrrev_b32 v3, 16, v3')
    e('v_mul_u32_u24 v2, 18, v3')
    e('v_sub_u32 v2, v0, v2')
    e('v_mul_u32_u24 v3, 1152, v3')
    e('v_lshl_add_u32 v3, v2, 4, v3')
    e(f's_add_u32 s46, s{XB}, 576')
    e(f'v_add_u32 v{VA}, s46, v3')
    e('v_mov_b32 v5, 16192')
    e('v_mov_b32 v6, 17056')
    for k in range(1, 12):
        e('v_cmp_le_u32 vcc, 14, v2')
        e('v_add_u32 v3, 4, v2')
        e('v_subrev_u32 v4, 14, v2')
        e('v_cndmask_b32 v7, v5, v6, vcc')
        e('v_cndmask_b32 v2, v3, v4, vcc')
        e(f'v_add_u32 v{VA+k}, v{VA+k-1}, v7')
    e('v_and_b32 v2, 15, v1')
    e('v_lshrrev_b32 v3, 4, v1')
    e('v_subrev_u32 v5, 4, v2')
    e('v_add_u32 v6, 8, v2')
    e('v_cmp_gt_u32 vcc, 4, v2')
    e('v_cmp_le_u32 s[46:47], 12, v2')
    e(f's_and_b32 s{TYP}, s{WAVE}, 1')
    e(f's_lshr_b32 s48, s{WAVE}, 1')
    e('v_cndmask_b32 v5, v5, v6, vcc')
    e('v_cndmask_b32 v5, v5, v2, s[46:47]')
    e('v_mul_u32_u24 v5, 9, v5')
    e('v_mul_u32_u24 v4, 288, v5')
    e('v_lshl_add_u32 v6, v3, 4, v4')
    e('v_and_b32 v7, 1, v3')
    e('v_lshl_add_u32 v7, v7, 4, v4')
    e('v_lshrrev_b32 v8, 1, v3')
    e('v_mul_u32_u24 v8, 2304, v8')
    e('v_add_u32 v7, v7, v8')
    e('v_add_u32 v7, 256, v7')
    e(f's_mul_i32 s49, s{TYP}, {X_D1}')
    e(f'v_add_u32 v{VXO}, {X_O}, v6')
    e(f'v_add_u32 v{VXOR}, {X_O}, v7')
    e(f'v_add_u32 v{VXD}, s49, v6')
    e(f'v_add_u32 v{VXDR}, s49, v7')
    e('v_lshlrev_b32 v6, 4, v1')
    e(f's_mul_i32 s49, s{WAVE}, 9216')
    e(f's_add_u32 s49, s49, {X_O}')
    e(f'v_add_u32 v{VEX}, s49, v6')
    e(f's_xor_b32 s49, s{WAVE}, 1')
    e('s_mul_i32 s49, s49, 9216')
    e(f's_add_u32 s49, s49, {X_O}')
    e(f'v_add_u32 v{VEXP}, s49, v6')
    e('v_and_b32 v8, 0x39, v1')
    e('v_bfe_u32 v9, v1, 1, 1')
    e('v_lshl_add_u32 v8, v9, 2, v8')
    e('v_bfe_u32 v9, v1, 2, 1')
    e('v_lshl_add_u32 v8, v9, 1, v8')
    e(f'v_lshlrev_b32 v{VWL}, 4, v8')
    e(f's_mul_i32 s49, s{TYP}, 576')
    e(f's_add_u32 s49, s49, s{XB}')
    e(f's_add_u32 s49, s49, {60*288}')
    e(f's_lshl_b32 s50, s{NB}, 5')
    e('s_add_u32 s49, s49, s50')
    e('s_lshl_b32 s50, s48, 4')
    e('s_add_u32 s49, s49, s50')
    e('v_mul_u32_u24 v8, 1152, v5')
    e('v_lshl_add_u32 v8, v3, 2, v8')
    e(f'v_add_u32 v{VOUT}, s49, v8')
    e(f'v_add_u32 v{VOUT+1}, 3456, v{VOUT}')
    e(f'v_add_u32 v{VOUT+2}, 6912, v{VOUT}')
    e(f's_lshl_b32 s49, s{NB}, 1')
    e('s_add_u32 s49, s49, s48')
    e('s_lshl_b32 s49, s49, 1')
    e(f's_add_u32 s49, s49, s{TYP}')
    e(f's_mul_i32 s{WSO}, s49, {NSTEP*1024}')
    e(f's_add_u32 s{WSO}, s{WSO}, {WOFF}')
    e(f's_mov_b32 s{C2L}, 0x4038aa3b'); e(f's_mov_b32 s{C2L+1}, 0x4038aa3b')
    e(f's_mov_b32 s{CNL}, 0xbfb8aa3b'); e(f's_mov_b32 s{CNL+1}, 0xbfb8aa3b')
    e(f's_mov_b32 s{C60}, 0x42700000')
    e(f'v_min_u32 v{VF}, 35, v1')
    e(f's_mul_i32 s46, s{WAVE}, 36')
    e(f'v_add_u32 v{VF}, s46, v{VF}')
    e(f'v_mul_u32_u24 v{VF}, {o.fstride}, v{VF}')
    e(f's_lshl_b32 s50, s{WAVE}, 10')
    e(f's_add_u32 s50, s50, {X_O}')
    e(f's_add_u32 s51, s50, {4096*11}')
    e('s_movk_i32 s49, 4096')
    if o.orev:
        e(f's_bitcmp0_b32 s{NB}, 0')
        e('s_cbranch_scc1 L_fwd')
        for k in range(5): e(f'v_swap_b32 v{VA+k}, v{VA+10-k}')
        e(f's_add_u32 s50, s50, {4096*10}')
        e('s_movk_i32 s49, -4096')
        e('L_fwd:')
    e(f's_or_b32 s46, s2, s{WAVE}')
    e('v_or_b32 v2, s46, v1')
    e('v_cmp_eq_u32 vcc, 0, v2')
    e(f'v_mov_b32 v{VCL}, -16')
    e(f'v_mov_b32 v{VCL+1}, -16')
    e(f'v_mov_b32 v3, {NONCE}')
    e(f'v_cndmask_b32 v{VCL}, v{VCL}, 4, vcc')
    e(f'v_cndmask_b32 v{VCL+1}, v{VCL+1}, v3, vcc')
    e(f'v_mov_b32 v2, {CNT}')
    for r in range(4, 8): e(f'v_mov_b32 v{r}, 0')
    e('ds_write_b128 v2, v[4:7]')
    e('ds_write_b128 v2, v[4:7] offset:16')
    e('s_waitcnt lgkmcnt(0)')
    e(f's_load_dword s{TAG}, s[12:13], {NONCE}')
    srd(e, S_X, 4, 1152000, add=BOFF)
    srd(e, S_WS, 12, WS_REC)
    srd(e, S_OUT, 8, 1152000, add=BOFF)
    srd(e, S_DBG, 10, 256)
    def odma(k):
        e(f's_mov_b32 m0, s{51 if k == 11 else 50}')
        e('s_add_u32 s50, s50, s49')
        e(f'buffer_load_dwordx4 v{VA+k}, {sr(S_X)}, 0 offen lds')
    if o.npdelay:
        e(f's_cmp_lt_u32 s{PAIR0}, {NPROD}')
        e('s_cbranch_scc1 L_nd')
        e('s_waitcnt lgkmcnt(0)')
        e('L_nd:')
    for k in range(o.opre): odma(k)
    e('s_barrier')
    stamp(1)
    for k in range(o.opre, 12):
        if k == 11:
            e(f's_cmp_lg_u32 s{WAVE}, 0')
            e('s_cbranch_scc1 L_o11')
        odma(k)
    e('L_o11:')
    e(f'v_mov_b32 v{VF+1}, {CNT}')
    e(f'v_mov_b32 v{VF+2}, 1')
    e(f's_lshr_b32 s46, s{WAVE}, 1')
    e('s_lshl_b32 s46, s46, 2')
    e(f'v_add_u32 v{VF+5}, s46, v{VF+1}')
    e('s_waitcnt vmcnt(0) lgkmcnt(0)')
    stamp(2)
    if o.dec:
        e('s_mov_b64 exec, 1')
        e(f'ds_add_u32 v{VF+1}, v{VF+2} offset:8')
        e('s_mov_b64 exec, -1')
    if o.xslot:
        e(f's_mul_i32 s46, s{TAG}, 0x2545F491')
        e('s_lshr_b32 s46, s46, 27')
        e('s_lshl_b32 s46, s46, 22')
        e(f's_add_u32 s{WSO}, s{WSO}, s46')
    e(f's_add_u32 s{TAG}, s{TAG}, {TAGINC}')
    e(f'v_mov_b32 v{VF+3}, s{TAG}')
    if o.warmb:
        e(f's_cmp_eq_u32 s{TYP}, 1')
        e('s_cbranch_scc1 L_warmB')
        e('L_warmret:')
    if o.nopoll: e('s_branch L_go')
    e('L_poll:')
    e(f'buffer_load_dword v{VF+4}, v{VF}, {sr(S_WS)}, 0 offen sc1')
    e(f's_add_u32 s{NPOLL}, s{NPOLL}, 1')
    e('s_waitcnt vmcnt(0)')
    e(f'v_cmp_ne_u32 vcc, v{VF+3}, v{VF+4}')
    e('s_nop 4')
    e('s_cbranch_vccz L_go')
    if o.sleep: e(f's_sleep {o.sleep}')
    e(f's_cmp_lt_u32 s{NPOLL}, {o.maxpoll}')
    e('s_cbranch_scc1 L_poll')
    e(f's_mov_b32 s{MODE}, 1')
    e(f's_mov_b32 s{HAS3}, 1')
    e(f's_lshr_b32 s{TW0}, s{NB}, 1')
    e(f's_add_u32 s{TW1}, s{NB}, 9')
    e(f's_lshr_b32 s{TW1}, s{TW1}, 1')
    e(f's_mov_b32 s{TW2}, 8')
    e(f's_mov_b32 s{PAIR}, 0')
    e(f's_lshl_b32 s{SCRB}, s{WAVE}, 12')
    e(f's_add_u32 s{SCRB}, s{SCRB}, {SCR}')
    e('s_branch L_prod')
    e('L_go:')
    stamp(3)
    if o.dec:
        e('s_mov_b64 exec, 1')
        e(f'ds_add_u32 v{VF+1}, v{VF+2} offset:12')
        e('L_gw:')
        e(f'ds_read_b32 v{VF+4}, v{VF+1} offset:12')
        e('s_waitcnt lgkmcnt(0)')
        e(f'v_cmp_ne_u32 vcc, 4, v{VF+4}')
        e('s_nop 4')
        e('s_cbranch_vccnz L_gw')
        e('s_mov_b64 exec, -1')
    else:
        e('s_barrier')
    stamp(4)
    e(f's_setprio {o.mprio}')
    e(f's_cmp_eq_u32 s{TYP}, 1')
    e('s_cbranch_scc1 L_typeB')

    ACC = {'P': 64, 'Q': 100}
    WR, TMP = 136, 224
    XRING = [200 + 4 * i for i in range(6)]
    XWIN = [4 + 4 * i for i in range(6)] + [240 + 4 * i for i in range(4)]
    VC = 28
    PF = o.pf
    GT = 98
    wflags = ' sc1' if o.wsc1 else ''
    def wreg(g):
        return ACC['P'] + 4 * (g - GT) if (o.tail and g >= GT) else WR + 4 * (g % 16)
    for typ, S in enumerate(streams()):
        if typ == 1:
            e('.p2align 6')
            if o.warmb: e('L_warmB:'); e('s_branch L_warmret')
            e('L_typeB:')
        ops = []
        vstart = {}
        lastv = GT - 1 if o.tail else NSTEP + 7
        for v in range(lastv + 1):
            vstart[v] = len(ops)
            for j in range(8, -1, -1):
                if 0 <= v - j < NSTEP: ops.append((v - j, j))
        ntail = len(ops)
        if o.tail:
            for j in range(9):
                for g in range(GT - j, NSTEP): ops.append((g, j))
        assert len(ops) == NSTEP * 9 and len(set(ops)) == len(ops)
        N = len(ops)
        def key(n):
            g, j = ops[n]
            pid, arr, ch, c, acc = S[g]
            k = (pid, arr, ch, c + j)
            if n >= ntail and g < GT: k = k + ((n,) if not o.hold else ('h',))
            return k
        first, last = {}, {}
        for n in range(N):
            first.setdefault(key(n), n); last[key(n)] = n
        wfirst, wlast = {}, {}
        for n, (g, j) in enumerate(ops):
            wfirst.setdefault(g, n); wlast[g] = n
        tasks = []
        for k, n0 in first.items():
            win = o.tail and k[2] == 'rem' and k[1] == 'D'
            la = o.xla if n0 < ntail else 6
            if win: la = 40 if k[3] < 8 else 12
            tasks.append([n0 - la, n0 - 1, 'X', k])
        for g in range(NSTEP):
            if o.tail and g >= GT: rel = vstart[76 + 2 * (g - GT)] + 3
            elif g < PF: rel = -100 + g
            else: rel = vstart[g - PF] + (0 if g < 16 else 0)
            if g >= 16 and not (o.tail and g >= GT): rel = max(rel, wlast[g - 16])
            tasks.append([rel, wfirst[g] - 1, 'W', g])
        def at(v, off=0): return vstart[v] + off
        firstD = min(n for n in range(N) if S[ops[n][0]][1] == 'D')
        lastO = max(n for n in range(N) if S[ops[n][0]][1] == 'O')
        lastP = {j: max(n for n in range(N) if ops[n][1] == j and S[ops[n][0]][4] == 'P') for j in range(9)}
        slow = []
        def check(v, off, cnt, tag):
            tasks.append([at(v - 1, 3), at(v - 1, 8), 'L', (f'ds_read_b32 v{VC}, v{VF+1} offset:{off}', ('c', tag))])
            tasks.append([at(v, 0), at(v, 1), 'C', (f'v_cmp_ne_u32 vcc, {cnt}, v{VC}', ('c', tag))])
            tasks.append([at(v, 6), at(v, 7), 'I', [f's_cbranch_vccnz L_slow{typ}{tag}', f'L_back{typ}{tag}:']])
            slow.append((tag, off, cnt))
            return at(v, 8)
        def add1(pos, off):
            tasks.append([pos, pos + 4, 'A', off])
        vD = [v for v in vstart if vstart[v] <= firstD - o.xla][-1] - 1
        okD = check(vD, 16, 4, 'D')
        assert okD <= firstD - o.xla
        add1(lastO, 20)
        VP = 47
        okR = check(VP, 20, 4, 'R')
        for j in range(9):
            assert lastP[j] + 12 < at(VP + 1 + j, 2)
            tasks.append([at(VP + 1 + j, 2), at(VP + 1 + j, 8), 'L', (f'ds_write_b128 v{VEX}, {vr(ACC["P"]+4*j,4)} offset:{1024*j}', ('pw', j))])
        tasks.append([at(VP + 10, 0), at(VP + 10, 4), 'A', 'pair'])
        VQ = VP + 13
        okP = check(VQ, 'pair', 2, 'P')
        for j in range(9):
            tasks.append([at(VQ + 1 + j, 2), at(VQ + 1 + j, 8), 'L', (f'ds_read_b128 {vr(TMP+4*(j&1),4)}, v{VEXP} offset:{1024*j}', ('pr', j))])
            v = VQ + 2 + j
            pos = at(v, 8 - (j + 2) - 1) if j <= 6 else at(v, 8 - (j - 7) - 1)
            sh = 1 if j >= 7 else 0
            tasks.append([pos - 1 + sh, pos - 1 + sh, 'Q', (j, 0)])
            tasks.append([pos + sh, pos + sh, 'Q', (j, 1)])
        if typ == 0:
            tasks.append([at(72, 4), at(72, 8), 'S', f'buffer_store_dword v{VCL+1}, v{VCL}, {sr(S_DBG)}, 0 offen sc1'])
            tasks.append([at(92, 4), at(92, 8), 'S', f'buffer_store_dword v{VF+3}, v{VCL+1}, {sr(S_WS)}, 0 offen sc1'])
        tasks.sort(key=lambda t: (t[0], t[1]))
        vq, lq = [], []
        dirty = [False]
        xreg, busy = {}, {}
        wn = [0]
        since = {}
        fill = []
        def em(x):
            e(x)
            if not x.endswith(':'):
                for jj in since: since[jj] += 1
        def lwait(tag):
            if tag not in lq: return
            i = lq.index(tag)
            em(f's_waitcnt lgkmcnt({0 if dirty[0] else len(lq)-1-i})')
            if dirty[0]: lq.clear(); dirty[0] = False
            else: del lq[:i + 1]
        def vwait(g):
            if g not in vq: return
            i = vq.index(g)
            em(f's_waitcnt vmcnt({len(vq)-1-i})')
            del vq[:i + 1]
        def run(t, n):
            kind, p = t[2], t[3]
            if kind == 'X':
                pool = XWIN if (o.tail and p[2] == 'rem' and p[1] == 'D') else XRING
                if p[-1] == 'h':
                    pool = [WR + 4 * (g % 16) for g in range(GT - 16, GT - 8)]
                    for g in range(GT - 16, GT - 8): busy.setdefault(WR + 4 * (g % 16), wlast[g])
                r = [x for x in pool if busy.get(x, -1) <= n]
                assert r, ('no x register', p, n)
                r = min(r, key=lambda x: busy.get(x, -1))
                busy[r] = last[p]; xreg[p] = r
                arr, ch, s_ = p[1], p[2], p[3]
                if ch == 'rem': em(f'ds_read_b128 {vr(r,4)}, v{VXOR if arr == "O" else VXDR} offset:{288*s_}')
                else: em(f'ds_read_b128 {vr(r,4)}, v{VXO if arr == "O" else VXD} offset:{64*ch+288*s_}')
                lq.append(p)
            elif kind == 'W':
                g = p
                if o.tail and g >= GT:
                    em(f'buffer_load_dwordx4 {vr(wreg(g),4)}, v{VWL}, {sr(S_WS)}, s{WSO+27} offen offset:{1024*((g-GT)%4)}{wflags}')
                    if g == GT + 3: em(f's_add_u32 s{WSO+27}, s{WSO+27}, 4096')
                else:
                    assert g == wn[0]; wn[0] += 1
                    em(f'buffer_load_dwordx4 {vr(wreg(g),4)}, v{VWL}, {sr(S_WS)}, s{WSO} offen offset:{1024*(g%4)}{wflags}')
                    if g % 4 == 3: em(f's_add_u32 s{WSO}, s{WSO}, 4096')
                vq.append(g)
            elif kind == 'L':
                em(p[0].replace('offset:pair', 'offset:24').replace(f'v{VF+1} offset:24', f'v{VF+5} offset:24')); lq.append(p[1])
            elif kind == 'C':
                lwait(p[1]); em(p[0])
            elif kind == 'I':
                for x in p: em(x)
            elif kind == 'A':
                em('s_mov_b64 exec, 1')
                if p == 'pair': em(f'ds_add_u32 v{VF+5}, v{VF+2} offset:24')
                else: em(f'ds_add_u32 v{VF+1}, v{VF+2} offset:{p}')
                em('s_mov_b64 exec, -1')
                lq.append(('a', p))
            elif kind == 'Q':
                p, hf = p
                lwait(('pr', p))
                q = ACC['Q'] + 4 * p; t_ = TMP + 4 * (p & 1)
                for i in (2 * hf, 2 * hf + 1): em(f'v_add_f32 v{q+i}, v{q+i}, v{t_+i}')
            elif kind == 'S':
                em(p); vq.append(('s', n))
        def epi(j, pk):
            q = ACC['Q'] + 4 * j
            t = TMP + 8 * (j & 1)
            I = []
            if pk:
                I.append(f'v_pk_mul_f32 {vr(t,2)}, {vr(q,2)}, s[{C2L}:{C2L+1}]')
                I.append(f'v_pk_mul_f32 {vr(t+2,2)}, {vr(q+2,2)}, s[{CNL}:{CNL+1}]')
            else:
                for i in (0, 1): I.append(f'v_mul_f32 v{t+i}, s{C2L}, v{q+i}')
                for i in (2, 3): I.append(f'v_mul_f32 v{t+i}, s{CNL}, v{q+i}')
            I.append(f'v_min_f32 v{t}, s{C60}, v{t}')
            I.append(f'v_min_f32 v{t+1}, s{C60}, v{t+1}')
            for i in (0, 1, 2, 3): I.append(f'v_exp_f32 v{t+i}, v{t+i}')
            if pk:
                I.append(f'v_pk_add_f32 {vr(t+4,2)}, {vr(t,2)}, 1.0 op_sel_hi:[1,0]')
                I.append(f'v_pk_add_f32 {vr(t+6,2)}, {vr(t,2)}, -1.0 op_sel_hi:[1,0]')
                I.append(f'v_pk_fma_f32 {vr(t+4,2)}, {vr(t+4,2)}, {vr(t+2,2)}, {vr(t+4,2)}')
            else:
                for i in (0, 1): I.append(f'v_add_f32 v{t+4+i}, 1.0, v{t+i}')
                for i in (0, 1): I.append(f'v_fma_f32 v{t+4+i}, v{t+4+i}, v{t+2+i}, v{t+4+i}')
            I.append(f'v_rcp_f32 v{t+4}, v{t+4}')
            I.append(f'v_rcp_f32 v{t+5}, v{t+5}')
            if pk:
                I.append('s_nop 0')
                I.append(f'v_pk_mul_f32 {vr(t+6,2)}, {vr(t+6,2)}, {vr(t+4,2)}')
            else:
                for i in (0, 1): I.append(f'v_add_f32 v{t+6+i}, -1.0, v{t+i}')
                for i in (0, 1): I.append(f'v_mul_f32 v{t+6+i}, v{t+6+i}, v{t+4+i}')
            I.append(f'v_cvt_pk_bf16_f32 v{q}, v{t+6}, v{t+7}')
            I.append(f'buffer_store_dword v{q}, v{VOUT + j//3}, {sr(S_OUT)}, 0 offen offset:{1152*(j%3)} {o.oflags}')
            return I
        def cost(x): return 2 if x.startswith(('v_exp', 'v_rcp', 'buffer')) else 1
        e(f's_add_u32 s{WSO+27}, s{WSO}, {GT*1024}')
        while tasks and tasks[0][0] < 0: run(tasks.pop(0), -1)
        inv = {n: v for v, n in vstart.items()}
        lastop = {j: max(n for n in range(N) if ops[n][1] == j) for j in range(9)}
        for n, (g, j) in enumerate(ops):
            if n in inv and o.diag:
                v = inv[n]
                if o.diag == 2 and v in o.marks:
                    kk = o.marks.index(v)
                    e(f's_memtime s[{ST0+2*kk}:{ST0+2*kk+1}]'); dirty[0] = True
                if o.diag in (1, 4) and v == 33: stamp(5); stamp(6); dirty[0] = True
            k = key(n)
            assert k in xreg, (k, n)
            lwait(k); vwait(g)
            acc = S[g][4]
            d = ACC[acc] + 4 * j
            if g == 0: cs = '0'
            elif acc == 'Q' and S[g-1][4] == 'P': cs = vr(ACC['P'] + 4 * j, 4)
            else: cs = vr(d, 4)
            em(f'v_mfma_f32_16x16x32_bf16 {vr(d,4)}, {vr(wreg(g),4)}, {vr(xreg[k],4)}, {cs}')
            if n == lastop[j]: since[j] = 0
            budget = 2
            TC = {'X': 1, 'W': 2, 'L': 2, 'C': 1, 'I': 0, 'A': 1, 'Q': 2, 'S': 2}
            while True:
                ready = [t for t in tasks if t[0] <= n]
                if not ready: break
                t = min(ready, key=lambda t: t[1])
                assert t[1] >= n, ('late', t, n)
                if TC[t[2]] > budget and t[1] > n:
                    fit = [u for u in ready if TC[u[2]] <= budget]
                    if not fit: break
                    t = min(fit, key=lambda t: t[1])
                tasks.remove(t); run(t, n); budget -= TC[t[2]]
            for jj in sorted(since):
                if 8 <= since[jj] < 10**6:
                    fill += epi(jj, False); since[jj] = 10**6
            budget += o.nfill - 2
            while fill and budget >= cost(fill[0]):
                budget -= cost(fill[0]); em(fill.pop(0))
        assert not tasks
        stamp(7)
        while fill: em(fill.pop(0))
        for jj in [jj for jj in sorted(since) if since[jj] < 10**6]:
            if since[jj] < 8: em(f's_nop {8-since[jj]-1}')
            for x in epi(jj, True): em(x)
        stamp(8)
        if o.padto and o.padev[0] == 'm': padloop(typ)
        if o.diag == 1:
            e('s_waitcnt vmcnt(0)')
            stamp(9)
            dump(10)
        if o.diag == 2:
            kk = len(o.marks)
            e(f's_memtime s[{ST0+2*kk}:{ST0+2*kk+1}]')
            dump(10)
        e('s_endpgm')
        for tag, off, cnt in slow:
            e(f'L_slow{typ}{tag}:')
            e(f'ds_read_b32 v{VC}, v{VF+5 if off == "pair" else VF+1} offset:{24 if off == "pair" else off}')
            e('s_waitcnt lgkmcnt(0)')
            e(f'v_cmp_ne_u32 vcc, {cnt}, v{VC}')
            e('s_nop 4')
            e(f's_cbranch_vccnz L_slow{typ}{tag}')
            e(f's_branch L_back{typ}{tag}')

    mark['help0'] = len(e.L)
    if not o.hfirst: e('.p2align 6')
    e('L_helper:')
    role[0] = 'h'
    e(f's_setprio {o.hprio}')
    e(f's_sub_u32 s{TW0}, s{WAVE}, 4')
    e(f's_mov_b32 s{TW1}, s{WAVE}')
    e(f's_mov_b32 s{TW2}, 8')
    e(f's_mov_b32 s{PAIR}, s{PAIR0}')
    e(f's_mov_b32 s{MODE}, 0')
    e(f's_mov_b32 s{HAS3}, s{TW0}')
    e(f's_lshl_b32 s{SCRB}, s{TW0}, 12')
    e(f's_add_u32 s{SCRB}, s{SCRB}, {SCR}')
    e('L_prod:')
    T = [(64, TW0, 2, 3, 0), (96, TW1, 4, 5, 2048), (128, TW2, 6, 7, 16384)]
    c, kp, q, cc, kk, t = 46, 47, 48, 49, 50, 51
    b = TS
    e('v_mov_b32 v19, 4320')
    e('v_and_b32 v23, 3, v1')
    e('v_lshrrev_b32 v24, 3, v1')
    e('v_mul_u32_u24 v24, 576, v24')
    e('v_bfe_u32 v25, v1, 2, 1')
    e('v_mul_u32_u24 v25, 288, v25')
    e('v_add_u32 v24, v24, v25')
    for (vb, sw, vl, vs, so) in T:
        e(f'v_lshl_add_u32 v8, s{sw}, 2, v23')
        e('v_cmp_le_u32 vcc, 18, v8')
        e(f'v_lshl_add_u32 v{vl}, v8, 4, v24')
        e(f'v_add_u32 v9, v{vl}, v19')
        e(f'v_cndmask_b32 v{vl}, v{vl}, v9, vcc')
    e(f's_and_b32 s{c}, s{PAIR}, 15')
    e(f's_lshr_b32 s{kp}, s{PAIR}, 4')
    e(f's_mul_i32 s{b}, s{c}, 165888')
    e(f's_mul_i32 s{t}, s{kp}, 9216')
    e(f's_add_u32 s{b}, s{b}, s{t}')
    e(f's_add_u32 s{b+1}, s{b}, 82944')
    e(f's_mov_b32 s{S_W+2}, 2571264')
    e(f's_mov_b32 s{S_W+3}, 0x20000')
    e(f's_mov_b32 s{S_WO+3}, 0x20000')
    e(f's_cmp_lg_u32 s{c}, 15')
    e(f's_cselect_b32 s{S_WO+2}, 2571264, 0')
    e(f's_mov_b32 m0, s{SCRB}')
    e('s_waitcnt lgkmcnt(0)')
    e(f's_mov_b32 s{S_W}, s6')
    e(f's_and_b32 s{S_W+1}, s7, 0xffff')
    e(f's_mov_b32 s{S_WO}, s6')
    e(f's_and_b32 s{S_WO+1}, s7, 0xffff')
    e(f's_cmp_ge_u32 s{PAIR}, {NPROD}')
    e('s_cbranch_scc1 L_noprod')
    def cond3(lbl):
        e(f's_cmp_lg_u32 s{HAS3}, 0')
        e(f's_cbranch_scc1 {lbl}')
    for ti, (vb, sw, vl, vs, so) in enumerate(T):
        if ti == 2: cond3('L_a3')
        if ti == 1: e('s_addk_i32 m0, 1024'); e('s_nop 0')
        e(f'buffer_load_dwordx4 v{vl}, {sr(S_W)}, s{b} offen lds')
        e('s_addk_i32 m0, 1024')
        e('s_nop 0')
        e(f'buffer_load_dwordx4 v{vl}, {sr(S_WO)}, s{b+1} offen lds')
        if ti == 1: e(f's_addk_i32 m0, {16384-3072}')
    e('L_a3:')
    stamp(1)
    e(f's_cmp_lg_u32 s{MODE}, 0')
    e('s_cbranch_scc1 L_a4')
    e(f's_load_dword s{TAG}, s[12:13], {NONCE}')
    e(f's_mov_b32 s{MASK}, 0xffff0000')
    e(f's_mov_b32 s{NPOLL}, 0')
    e('L_a4:')
    srd(e, S_WS, 12, WS_REC)
    srd(e, S_DBG, 10, 256)
    e(f'v_mov_b32 v20, {(256 - 18*2*NSTEP*1024) & 0xffffffff}')
    e(f'v_mov_b32 v26, {2*NSTEP*1024}')
    e('v_bfe_u32 v21, v1, 2, 2')
    e('v_lshlrev_b32 v21, 7, v21')
    e('v_and_b32 v22, 1, v1')
    e('v_lshl_add_u32 v21, v22, 6, v21')
    e('v_bfe_u32 v22, v1, 1, 1')
    e('v_lshl_add_u32 v21, v22, 3, v21')
    e('v_lshrrev_b32 v22, 4, v1')
    e('v_lshl_add_u32 v21, v22, 4, v21')
    e(f'v_add_u32 v21, s{SCRB}, v21')
    e('v_and_b32 v25, 15, v1')
    e('v_lshlrev_b32 v25, 4, v25')
    for (vb, sw, vl, vs, so) in T:
        e(f'v_lshl_add_u32 v8, s{sw}, 2, v22')
        e('v_cmp_le_u32 vcc, 18, v8')
        e(f'v_mad_u32_u24 v{vs}, v8, v26, v25')
        e(f'v_add_u32 v9, v{vs}, v20')
        e(f'v_cndmask_b32 v{vs}, v{vs}, v9, vcc')
    e(f's_lshr_b32 s{q}, s{kp}, 1')
    e(f's_and_b32 s{cc}, s{c}, 7')
    e(f's_lshr_b32 s{kk}, s{c}, 3')
    e(f's_and_b32 s{t}, s{kp}, 1')
    e(f's_cmp_eq_u32 s{kp}, 8')
    e(f's_cselect_b32 s{cc}, s{cc}, s{c}')
    e(f's_cselect_b32 s{kk}, s{kk}, s{t}')
    e(f's_lshl_b32 s{kk}, s{kk}, 9')
    e(f's_add_u32 s{kk}, s{kk}, {WOFF}')
    e(f's_lshl_b32 s{t}, s{q}, 4')
    e(f's_add_u32 s{b+2}, s{t}, s{cc}')
    e(f's_sub_u32 s{b+3}, s{b+2}, s{q}')
    e(f's_cmp_ge_u32 s{q}, 2')
    e(f's_cselect_b32 s{b+4}, 74, 0')
    e(f's_add_u32 s{b+4}, s{b+4}, s{b+2}')
    e(f's_cmp_lt_u32 s{cc}, 2')
    e(f's_cselect_b32 s{t}, 32, 136')
    e(f's_add_u32 s{t}, s{t}, s{cc}')
    e(f's_cmp_eq_u32 s{kp}, 8')
    e(f's_cselect_b32 s{b+4}, s{t}, s{b+4}')
    e(f's_add_u32 s{b+2}, s{b+2}, 34')
    e(f's_add_u32 s{b+3}, s{b+3}, 144')
    for k in (2, 3, 4):
        e(f's_lshl_b32 s{b+k}, s{b+k}, 10')
        e(f's_add_u32 s{b+k}, s{b+k}, s{kk}')
    e(f's_cmp_eq_u32 s{kp}, 8')
    e(f's_cselect_b32 s{t}, 1, 2')
    e(f's_cmp_eq_u32 s{c}, 15')
    e(f's_cselect_b32 s{b+5}, s{t}, 0')
    npre = 0
    if o.prest:
        e(f's_cmp_lg_u32 s{MODE}, 0')
        e('s_cbranch_scc1 L_p9')
        if o.prest == 2:
            e('s_mov_b32 exec_lo, 0x00010001'); e('s_mov_b32 exec_hi, 0x00010001')
        if o.prest == 3:
            e('s_mov_b32 exec_lo, 0x01010101'); e('s_mov_b32 exec_hi, 0x01010101')
        e(f's_cmp_eq_u32 s{b+5}, 2')
        e(f's_cselect_b32 s46, s{b+4}, s{b+3}')
        e(f's_cmp_lg_u32 s{HAS3}, 0')
        e('s_cselect_b32 s47, 0x80000000, 0')
        e('v_or_b32 v7, s47, v7')
        for ti, (vb, sw, vl, vs, so) in enumerate(T):
            for k in (b + 4, b + 2, 46):
                if o.prest == 1: e(f'buffer_store_dwordx4 v[64:67], v{vs}, {sr(S_WS)}, s{k} offen sc1')
                else: e(f'buffer_store_dword v64, v{vs}, {sr(S_WS)}, s{k} offen sc1')
        e('s_mov_b64 exec, -1')
        e('s_waitcnt vmcnt(9) lgkmcnt(0)')
        e('s_branch L_p10')
        e('L_p9:')
        e('s_waitcnt vmcnt(0) lgkmcnt(0)')
        e('L_p10:')
    else:
        e('s_waitcnt vmcnt(0) lgkmcnt(0)')
    stamp(2)
    if o.xslot:
        e(f's_cmp_lg_u32 s{MODE}, 0')
        e(f's_cselect_b32 s46, {TAGINC}, 0')
        e(f's_sub_u32 s46, s{TAG}, s46')
        e('s_mul_i32 s46, s46, 0x2545F491')
        e('s_lshr_b32 s46, s46, 27')
        e('s_lshl_b32 s46, s46, 22')
        for k in (2, 3, 4): e(f's_add_u32 s{b+k}, s{b+k}, s46')
    e('v_mov_b32 v27, 0')
    if o.noclosed: e('s_branch L_a5')
    e(f's_cmp_lg_u32 s{WAVE}, 4')
    e('s_cbranch_scc1 L_a5')
    e('v_mov_b32 v12, 4')
    e('s_mov_b64 exec, 1')
    e(f'buffer_load_dword v27, v12, {sr(S_DBG)}, 0 offen sc1')
    e('s_mov_b64 exec, -1')
    e('L_a5:')
    def trreads(vb, so):
        for tap in range(2):
            for half in range(2):
                e(f'ds_read_b64_tr_b16 {vr(vb+4*tap+2*half,2)}, v21 offset:{so+1024*tap+512*half}')
    def st01(vb, vs, n0, n1, tag):
        e(f's_waitcnt lgkmcnt({n0})')
        e(f'buffer_store_dwordx4 {vr(vb,4)}, v{vs}, {sr(S_WS)}, s{b+2} offen sc1')
        e(f's_waitcnt lgkmcnt({n1})')
        e(f's_cmp_eq_u32 s{b+5}, 2')
        e(f's_cbranch_scc1 L_skip{tag}')
        e(f'buffer_store_dwordx4 {vr(vb+4,4)}, v{vs}, {sr(S_WS)}, s{b+3} offen sc1')
        e(f'L_skip{tag}:')
    def stsum(vb, vs):
        for i in range(8):
            e(f'v_lshlrev_b32 v{vb+8+2*i}, 16, v{vb+i}')
            e(f'v_and_b32 v{vb+9+2*i}, s{MASK}, v{vb+i}')
        for i in range(4):
            e(f'v_pk_add_f32 {vr(vb+8+2*i,2)}, {vr(vb+8+2*i,2)}, {vr(vb+16+2*i,2)}')
        for i in range(4):
            e(f'v_cvt_pk_bf16_f32 v{vb+24+i}, v{vb+8+2*i}, v{vb+9+2*i}')
        e(f'buffer_store_dwordx4 {vr(vb+24,4)}, v{vs}, {sr(S_WS)}, s{b+4} offen sc1')
    for tt in T: trreads(tt[0], tt[4])
    st01(T[0][0], T[0][3], 10, 8, 0)
    st01(T[1][0], T[1][3], 6, 4, 1)
    if o.padto: stamp(9)
    stsum(T[0][0], T[0][3])
    if o.padto: stamp(10)
    stsum(T[1][0], T[1][3])
    cond3('L_b3')
    st01(T[2][0], T[2][3], 2, 0, 2)
    stsum(T[2][0], T[2][3])
    e('L_b3:')
    e(f's_cmp_eq_u32 s{MODE}, 0')
    e('s_cbranch_scc1 L_b4')
    e('s_waitcnt vmcnt(0) lgkmcnt(0)')
    e(f's_add_u32 s{PAIR}, s{PAIR}, 1')
    e(f's_cmp_lt_u32 s{PAIR}, {NPROD}')
    e('s_cbranch_scc1 L_prod')
    e('s_branch L_go')
    e('L_noprod:')
    e(f's_mov_b32 s{MASK}, 0xffff0000')
    e(f's_mov_b32 s{NPOLL}, 0')
    srd(e, S_WS, 12, WS_REC)
    stamp(1); stamp(2)
    e('L_b4:')
    if not o.b0late: e('s_barrier')
    if o.b0late:
        pass
    stamp(3)
    decode()
    e('v_subrev_u32 v4, 256, v0')
    e('v_min_u32 v4, 251, v4')
    e('v_mul_u32_u24 v3, 3641, v4')
    e('v_lshrrev_b32 v3, 16, v3')
    e('v_mul_u32_u24 v2, 18, v3')
    e('v_sub_u32 v2, v4, v2')
    e(f'v_mul_u32_u24 v3, {R}, v3')
    e(f'v_min_u32 v3, {160-R}, v3')
    e('v_mul_u32_u24 v4, 1152, v3')
    e('v_lshl_add_u32 v4, v2, 4, v4')
    e(f'v_add_u32 v12, s{XB}, v4')
    e('v_mul_u32_u24 v18, 288, v3')
    e('v_lshl_add_u32 v18, v2, 4, v18')
    e(f'v_add_u32 v19, {X_D1}, v18')
    srd(e, S_X, 4, 1152000, add=BOFF)
    e(f's_cmp_ge_u32 s{PAIR0}, {NPROD}')
    e('s_cbranch_scc1 L_noflag')
    e(f'v_mov_b32 v10, {CNT}')
    e(f's_lshl_b32 s46, s{WAVE}, 2')
    e(f's_add_u32 s46, s46, {CNT+16}')
    e('v_mov_b32 v11, s46')
    e(f's_mul_i32 s46, s{PAIR0}, {o.fstride}')
    e('v_mov_b32 v16, s46')
    e(f's_add_u32 s46, s{TAG}, {TAGINC}')
    e('v_mov_b32 v15, s46')
    e('v_not_b32 v14, v15')
    e('s_mov_b64 exec, 1')
    if o.padto: stamp(8)
    e('s_waitcnt vmcnt(0)')
    stamp(4)
    e('v_cmp_ne_u32 vcc, 0, v27')
    e('s_nop 1')
    e('v_cndmask_b32 v14, v15, v14, vcc')
    e('ds_write_b32 v11, v14')
    e('ds_read_b128 v[20:23], v10 offset:32')
    e('s_waitcnt lgkmcnt(0)')
    e('v_xor_b32 v20, v20, v15')
    e('v_xor_b32 v21, v21, v15')
    e('v_xor_b32 v22, v22, v15')
    e('v_xor_b32 v23, v23, v15')
    e('v_or3_b32 v20, v20, v21, v22')
    e('v_or_b32 v20, v20, v23')
    e('v_cmp_eq_u32 vcc, 0, v20')
    e('s_and_b64 exec, exec, vcc')
    e('s_cbranch_execz L_notlast')
    e(f'buffer_store_dword v15, v16, {sr(S_WS)}, 0 offen sc1')
    e('L_notlast:')
    e('s_mov_b64 exec, -1')
    e('L_noflag:')
    if o.b0late: e('s_barrier')
    e(f's_setprio {o.hprio2}')
    RAW, ORAW = 64, 120
    EU = [184, 192]
    OU, DT, DO = 200, 208, 216
    xi = [0]
    NL = R + 1
    def eload():
        k = xi[0]
        if k >= NL: return
        a_ = 12
        if k:
            a_ = 13 + (k & 3)
            e(f'v_add_u32 v{a_}, {1152*k}, v12')
        e(f'buffer_load_dwordx4 {vr(RAW+4*k,4)}, v{a_}, {sr(S_X)}, 0 offen')
        xi[0] += 1
    if o.etouch:
        e(f's_cmp_lt_u32 s{PAIR0}, {NPROD}')
        e('s_cbranch_scc1 L_net')
        if o.etouch == 2:
            e(f's_and_b32 s46, s{NB}, 1')
            e(f's_mul_i32 s46, s46, {1152*6}')
            e('v_add_u32 v12, s46, v12')
            for _ in range(7): eload()
            e('v_subrev_u32 v12, s46, v12')
        else:
            for _ in range(NL): eload()
        e('s_waitcnt vmcnt(0)')
        e('L_net:')
        xi[0] = 0
    for _ in range(o.epre): eload()
    e('s_waitcnt lgkmcnt(0)')
    stamp(5)
    if o.dec:
        for _ in range(max(0, o.ein - o.epre)): eload()
        e(f'v_mov_b32 v10, {CNT}')
        e('s_mov_b64 exec, 1')
        e('L_ow:')
        e('ds_read_b32 v11, v10 offset:8')
        e('s_waitcnt lgkmcnt(0)')
        e('v_cmp_ne_u32 vcc, 4, v11')
        e('s_nop 4')
        e('s_cbranch_vccz L_ow2')
        e('s_sleep 1')
        e('s_branch L_ow')
        e('L_ow2:')
        e('s_mov_b64 exec, -1')
    else:
        e('s_barrier')
    stamp(6)
    if not o.dec:
        for _ in range(max(0, o.ein - o.epre)): eload()
    for j in range(R):
        e(f'ds_read_b128 {vr(ORAW+4*j,4)}, v18 offset:{X_O+288*j}')
    def unpack(dst, s_):
        for i in range(4):
            e(f'v_lshlrev_b32 v{dst+2*i}, 16, v{s_+i}')
            e(f'v_and_b32 v{dst+2*i+1}, s{MASK}, v{s_+i}')
    def unpackE(dst, k):
        e(f's_waitcnt vmcnt({xi[0]-1-k})')
        unpack(dst, RAW + 4 * k)
        eload()
    def diff(eu, out):
        if o.nopk:
            for i in range(8): e(f'v_sub_f32 v{DT+i}, v{eu+i}, v{OU+i}')
        else:
          for i in range(4):
            e(f'v_pk_add_f32 {vr(DT+2*i,2)}, {vr(eu+2*i,2)}, {vr(OU+2*i,2)} neg_lo:[0,1] neg_hi:[0,1]')
        for i in range(4):
            e(f'v_cvt_pk_bf16_f32 v{out+i}, v{DT+2*i}, v{DT+2*i+1}')
    unpackE(EU[0], 0)
    e('s_waitcnt lgkmcnt(0)')
    for j in range(R):
        o0 = DO + 8 * (j & 1)
        unpack(OU, ORAW + 4 * j)
        diff(EU[j & 1], o0)
        e(f'ds_write_b128 v18, {vr(o0,4)} offset:{X_D0+288*j}')
        unpackE(EU[(j + 1) & 1], j + 1)
        diff(EU[(j + 1) & 1], o0 + 4)
        e(f'ds_write_b128 v19, {vr(o0+4,4)} offset:{288*j}')
    e('s_waitcnt lgkmcnt(0)')
    stamp(7)
    e('v_mov_b32 v11, 1')
    e('s_mov_b64 exec, 1')
    e('ds_add_u32 v10, v11 offset:16')
    e('s_mov_b64 exec, -1')
    if o.padto and o.padev[0] == 'h': padloop('h')
    if o.diag == 1:
        stamp(8); stamp(9)
        dump(10)
    e('L_end:')
    e('s_endpgm')
    if o.hfirst:
        m0, h0 = mark['main0'], mark['help0']
        e.L = e.L[:m0] + e.L[h0:] + ['.p2align 6'] + e.L[m0:h0]
    e('L_codeend:')
    e('.section .rodata,"a"')
    e('.p2align 6')
    e(f'.amdhsa_kernel {KN}')
    for x in ['next_free_vgpr 256', 'next_free_sgpr 102', 'accum_offset 256', 'group_segment_fixed_size 0', 'kernarg_size 40',
              'user_sgpr_count 2', 'user_sgpr_kernarg_segment_ptr 1', 'system_sgpr_workgroup_id_x 1']:
        e('  .amdhsa_' + x)
    e('.end_amdhsa_kernel')
    n = haz.check(e.L)
    if n: print(f'{n} hazards', file=sys.stderr)
    return f'; @launch grid=({NWG},1,1) block=(512,1,1) lds={LDS_BYTES}\n' + e.text()

def opts(argv=None):
    ap = argparse.ArgumentParser()
    ap.add_argument('-o', default='k.s')
    for nm, d in [('diag', 0), ('pf', 8), ('wsc1', 0), ('nfill', 2), ('fstride', 128), ('sleep', 0), ('maxpoll', 3000), ('nopoll', 0),
                  ('hprio', 3), ('hprio2', 0), ('mprio', 2), ('epre', 0), ('ein', 4), ('vbd', 33), ('nopk', 1), ('padto', 0), ('npdelay', 0), ('opre', 0), ('etouch', 2), ('orev', 1), ('b0late', 1), ('dec', 1), ('tail', 1), ('xla', 9), ('hold', 1), ('prest', 0), ('xslot', 0), ('noclosed', 0), ('cpf', 1), ('hfirst', 1), ('warmb', 1)]:
        ap.add_argument('--' + nm, type=int, default=d)
    ap.add_argument('--oflags', default='')
    ap.add_argument('--pmap', default='18,18,18,18,18,18,18,18')
    ap.add_argument('--padev', default='m0')
    ap.add_argument('--marks', default='0,4,8,12,16,24,33,47,58')
    o = ap.parse_args(argv)
    o.marks = [int(x) for x in o.marks.split(',')]
    return o

if __name__ == '__main__':
    o = opts()
    open(o.o, 'w').write(gen(o))
```

```python
import re, sys, argparse
import haz

KN = 'standalone__autoregressive_conv_wavernn__speech_kernel'
NWG = 252
NPROD = 144
ARR = 160 * 288
X_D0, X_O, X_D1 = 0, ARR, 2 * ARR
CNT = 3 * ARR
SCR = CNT + 64
LDS_BYTES = SCR + 18432
NSTEP = 106
WOFF = int(__import__('os').environ.get('WOFF', '0x100000'), 0)
NONCE = 0x10000
DIAG = 0x800000
WS_REC = max(0x1000000, WOFF + 0x400000, int(__import__('os').environ.get('WSREC', '0'), 0))
TAGINC = 0x9E3779B9
R = 12

class Em:
    def __init__(self): self.L = []
    def __call__(self, s): self.L.append(s)
    def text(self): return '\n'.join(self.L) + '\n'

def vr(a, n=1): return f'v{a}' if n == 1 else f'v[{a}:{a+n-1}]'
def sr(a, n=4): return f's[{a}:{a+n-1}]'

def streams():
    out = []
    for typ in (0, 1):
        S = []
        pid = [0]
        def add(arr, chunk, cs, acc):
            for c in cs: S.append((pid[0], arr, chunk, c, acc))
            pid[0] += 1
        if typ == 0:
            add('O', 0, range(16), 'P'); add('O', 1, range(16), 'P'); add('O', 'rem', range(0, 2), 'P')
            for q in range(4): add('D', q, range(16), 'Q')
            add('D', 'rem', range(8), 'Q')
        else:
            add('O', 2, range(16), 'P'); add('O', 3, range(16), 'P'); add('O', 'rem', range(2, 8), 'P')
            for q in range(4): add('D', q, range(15), 'Q')
            add('D', 'rem', range(8), 'Q')
        assert len(S) == NSTEP
        out.append(S)
    return out

S_X, S_W, S_WO, S_WS, S_OUT, S_DBG = 20, 24, 28, 32, 36, 40
WAVE, NB, BAT, PAR, MB, BOFF = 14, 15, 16, 17, 18, 19
PAIR0 = 3
XB = 52
MASK = 53
TW0, TW1, TW2, PAIR, HAS3, MODE, SCRB, TAG, LAST, NPOLL = 44, 45, 54, 55, 56, 57, 58, 59, 60, 61
TS = 62
TYP, WSO = 68, 69
C2L, CNL, C60 = 90, 92, 94
ST0 = 70

def srd(e, d, ptr, rec, add=None):
    if add is None:
        e(f's_mov_b32 s{d}, s{ptr}')
        e(f's_and_b32 s{d+1}, s{ptr+1}, 0xffff')
    else:
        e(f's_add_u32 s{d}, s{ptr}, s{add}')
        e(f's_addc_u32 s{d+1}, s{ptr+1}, 0')
        e(f's_and_b32 s{d+1}, s{d+1}, 0xffff')
    e(f's_mov_b32 s{d+2}, {rec}')
    e(f's_mov_b32 s{d+3}, 0x20000')

def gen(o):
    e = Em()
    role = ['m']
    def padloop(tag):
        e(f'L_pad{tag}:')
        e('s_memrealtime s[98:99]')
        e('s_waitcnt lgkmcnt(0)')
        e('s_sub_u32 s98, s98, s100')
        e(f's_cmp_lt_u32 s98, {o.padto}')
        e(f's_cbranch_scc1 L_pad{tag}')
    def stamp(k, lvl=1):
        if o.padto and lvl == 1 and o.padev == f'{role[0]}{k}':
            e('s_memrealtime s[100:101]'); e('s_waitcnt lgkmcnt(0)')
        if o.diag == lvl or (o.diag == 4 and lvl == 1): e(f's_memrealtime s[{ST0+2*k}:{ST0+2*k+1}]')
    def dump(nst):
        e('s_waitcnt lgkmcnt(0)')
        e('v_mov_b32 v250, 0')
        for k in range(nst): e(f'v_writelane_b32 v250, s{ST0+2*k}, {k}')
        e(f'v_writelane_b32 v250, s{NPOLL}, 13')
        e(f'v_writelane_b32 v250, s{PAIR0}, 14')
        e('s_getreg_b32 s46, hwreg(HW_REG_XCC_ID)')
        e('v_writelane_b32 v250, s46, 15')
        e(f's_lshl_b32 s46, s2, 3'); e(f's_add_u32 s46, s46, s{WAVE}'); e('s_lshl_b32 s46, s46, 6'); e(f's_add_u32 s46, s46, {DIAG}')
        e('v_lshl_add_u32 v251, v1, 2, s46')
        e('s_mov_b64 exec, 0xffff')
        e(f'buffer_store_dword v250, v251, {sr(S_WS)}, 0 offen')
        e('s_mov_b64 exec, -1')

    e('.amdgcn_target "amdgcn-amd-amdhsa--gfx950"')
    e('.text')
    e(f'.globl {KN}')
    e('.p2align 8')
    e(f'.type {KN},@function')
    e(f'{KN}:')
    e(f's_cmp_ge_u32 s2, {NWG}')
    e('s_cbranch_scc1 L_end')
    stamp(0)
    if o.padto and o.padev != 'm0': e('s_memrealtime s[100:101]')
    e('s_load_dwordx4 s[4:7], s[0:1], 0')
    e('s_load_dwordx4 s[8:11], s[0:1], 16')
    e('s_load_dwordx2 s[12:13], s[0:1], 32')
    e('v_lshrrev_b32 v2, 6, v0')
    e('v_and_b32 v1, 63, v0')
    e(f'v_readfirstlane_b32 s{WAVE}, v2')
    def decode():
        e('s_and_b32 s44, s2, 7')
        e('s_lshr_b32 s45, s2, 3')
        e('s_mul_i32 s46, s44, 31')
        e('s_min_u32 s44, s44, 4')
        e('s_add_u32 s46, s46, s44')
        e('s_add_u32 s46, s46, s45')
        e('s_mul_hi_u32 s47, s46, 68174085')
        e('s_mul_i32 s48, s47, 63')
        e('s_sub_u32 s48, s46, s48')
        e(f's_mul_hi_u32 s{NB}, s48, 613566757')
        e(f's_mul_i32 s49, s{NB}, 7')
        e('s_sub_u32 s49, s48, s49')
        e('s_mul_i32 s47, s47, 7')
        e('s_add_u32 s47, s47, s49')
        e(f's_and_b32 s{PAR}, s47, 1')
        e('s_lshr_b32 s47, s47, 1')
        e('s_cmp_ge_u32 s47, 7')
        e(f's_cselect_b32 s{BOFF}, 1152000, 0')
        e('s_cselect_b32 s48, 7, 0')
        e(f's_sub_u32 s{MB}, s47, s48')
        e(f's_mul_i32 s{XB}, s{MB}, 576')
        e(f's_add_u32 s{XB}, s{XB}, s{PAR}')
        e(f's_sub_u32 s{XB}, s{XB}, 60')
        e(f's_mul_i32 s{XB}, s{XB}, 288')
    cnts = [int(x) for x in o.pmap.split(',')]
    assert sum(cnts) == NPROD
    if cnts == [18] * 8:
        e(f's_mov_b32 s{PAIR0}, s2')
    else:
        base = [sum(cnts[:i]) for i in range(8)]
        pk = lambda L: sum(v << (8 * i) for i, v in enumerate(L))
        e('s_and_b32 s44, s2, 7')
        e('s_lshl_b32 s44, s44, 3')
        e(f's_mov_b32 s46, {pk(cnts[:4])}'); e(f's_mov_b32 s47, {pk(cnts[4:])}')
        e(f's_mov_b32 s48, {pk(base[:4])}'); e(f's_mov_b32 s49, {pk(base[4:])}')
        e('s_lshr_b64 s[46:47], s[46:47], s44')
        e('s_lshr_b64 s[48:49], s[48:49], s44')
        e('s_and_b32 s46, s46, 0xff')
        e('s_and_b32 s48, s48, 0xff')
        e('s_lshr_b32 s45, s2, 3')
        e('s_add_u32 s48, s48, s45')
        e('s_cmp_lt_u32 s45, s46')
        e(f's_cselect_b32 s{PAIR0}, s48, 255')
    e(f's_cmp_ge_u32 s{WAVE}, 4')
    e('s_cbranch_scc1 L_helper')
    if o.cpf:
        e('s_lshr_b32 s44, s2, 3')
        e(f's_lshl_b32 s45, s{WAVE}, 5')
        e('s_add_u32 s44, s44, s45')
        e('s_sub_u32 s44, s44, 18')
        e('s_cmp_ge_u32 s44, 10')
        e('s_cbranch_scc1 L_main')
        e('s_getpc_b64 s[46:47]')
        e('L_pc:')
        e('s_cmp_ge_u32 s44, 5')
        e('s_cselect_b32 s45, 5, 0')
        e('s_sub_u32 s44, s44, s45')
        e('s_lshl_b32 s44, s44, 13')
        e('v_lshl_add_u32 v2, v1, 7, s44')
        e('v_min_u32 v2, L_codeend-L_pc-4, v2')
        e('global_load_dword v63, v2, s[46:47]')
    if o.hfirst: e('s_branch L_main')
    mark = {'main0': len(e.L)}
    e('L_main:')
    e(f's_mov_b32 s{MASK}, 0xffff0000')
    e(f's_mov_b32 s{NPOLL}, 0')
    decode()

    VXO, VXOR, VXD, VXDR, VWL, VEX, VEXP, VOUT = 30, 31, 32, 33, 34, 35, 36, 37
    VF = 40
    VA = 48
    VCL = 60
    e('v_mul_u32_u24 v3, 3641, v0')
    e('v_lshrrev_b32 v3, 16, v3')
    e('v_mul_u32_u24 v2, 18, v3')
    e('v_sub_u32 v2, v0, v2')
    e('v_mul_u32_u24 v3, 1152, v3')
    e('v_lshl_add_u32 v3, v2, 4, v3')
    e(f's_add_u32 s46, s{XB}, 576')
    e(f'v_add_u32 v{VA}, s46, v3')
    e('v_mov_b32 v5, 16192')
    e('v_mov_b32 v6, 17056')
    for k in range(1, 12):
        e('v_cmp_le_u32 vcc, 14, v2')
        e('v_add_u32 v3, 4, v2')
        e('v_subrev_u32 v4, 14, v2')
        e('v_cndmask_b32 v7, v5, v6, vcc')
        e('v_cndmask_b32 v2, v3, v4, vcc')
        e(f'v_add_u32 v{VA+k}, v{VA+k-1}, v7')
    e('v_and_b32 v2, 15, v1')
    e('v_lshrrev_b32 v3, 4, v1')
    e('v_subrev_u32 v5, 4, v2')
    e('v_add_u32 v6, 8, v2')
    e('v_cmp_gt_u32 vcc, 4, v2')
    e('v_cmp_le_u32 s[46:47], 12, v2')
    e(f's_and_b32 s{TYP}, s{WAVE}, 1')
    e(f's_lshr_b32 s48, s{WAVE}, 1')
    e('v_cndmask_b32 v5, v5, v6, vcc')
    e('v_cndmask_b32 v5, v5, v2, s[46:47]')
    e('v_mul_u32_u24 v5, 9, v5')
    e('v_mul_u32_u24 v4, 288, v5')
    e('v_lshl_add_u32 v6, v3, 4, v4')
    e('v_and_b32 v7, 1, v3')
    e('v_lshl_add_u32 v7, v7, 4, v4')
    e('v_lshrrev_b32 v8, 1, v3')
    e('v_mul_u32_u24 v8, 2304, v8')
    e('v_add_u32 v7, v7, v8')
    e('v_add_u32 v7, 256, v7')
    e(f's_mul_i32 s49, s{TYP}, {X_D1}')
    e(f'v_add_u32 v{VXO}, {X_O}, v6')
    e(f'v_add_u32 v{VXOR}, {X_O}, v7')
    e(f'v_add_u32 v{VXD}, s49, v6')
    e(f'v_add_u32 v{VXDR}, s49, v7')
    e('v_lshlrev_b32 v6, 4, v1')
    e(f's_mul_i32 s49, s{WAVE}, 9216')
    e(f's_add_u32 s49, s49, {X_O}')
    e(f'v_add_u32 v{VEX}, s49, v6')
    e(f's_xor_b32 s49, s{WAVE}, 1')
    e('s_mul_i32 s49, s49, 9216')
    e(f's_add_u32 s49, s49, {X_O}')
    e(f'v_add_u32 v{VEXP}, s49, v6')
    e('v_and_b32 v8, 0x39, v1')
    e('v_bfe_u32 v9, v1, 1, 1')
    e('v_lshl_add_u32 v8, v9, 2, v8')
    e('v_bfe_u32 v9, v1, 2, 1')
    e('v_lshl_add_u32 v8, v9, 1, v8')
    e(f'v_lshlrev_b32 v{VWL}, 4, v8')
    e(f's_mul_i32 s49, s{TYP}, 576')
    e(f's_add_u32 s49, s49, s{XB}')
    e(f's_add_u32 s49, s49, {60*288}')
    e(f's_lshl_b32 s50, s{NB}, 5')
    e('s_add_u32 s49, s49, s50')
    e('s_lshl_b32 s50, s48, 4')
    e('s_add_u32 s49, s49, s50')
    e('v_mul_u32_u24 v8, 1152, v5')
    e('v_lshl_add_u32 v8, v3, 2, v8')
    e(f'v_add_u32 v{VOUT}, s49, v8')
    e(f'v_add_u32 v{VOUT+1}, 3456, v{VOUT}')
    e(f'v_add_u32 v{VOUT+2}, 6912, v{VOUT}')
    e(f's_lshl_b32 s49, s{NB}, 1')
    e('s_add_u32 s49, s49, s48')
    e('s_lshl_b32 s49, s49, 1')
    e(f's_add_u32 s49, s49, s{TYP}')
    e(f's_mul_i32 s{WSO}, s49, {NSTEP*1024}')
    e(f's_add_u32 s{WSO}, s{WSO}, {WOFF}')
    e(f's_mov_b32 s{C2L}, 0x4038aa3b'); e(f's_mov_b32 s{C2L+1}, 0x4038aa3b')
    e(f's_mov_b32 s{CNL}, 0xbfb8aa3b'); e(f's_mov_b32 s{CNL+1}, 0xbfb8aa3b')
    e(f's_mov_b32 s{C60}, 0x42700000')
    e(f'v_min_u32 v{VF}, 35, v1')
    e(f's_mul_i32 s46, s{WAVE}, 36')
    e(f'v_add_u32 v{VF}, s46, v{VF}')
    e(f'v_mul_u32_u24 v{VF}, {o.fstride}, v{VF}')
    e(f's_lshl_b32 s50, s{WAVE}, 10')
    e(f's_add_u32 s50, s50, {X_O}')
    e(f's_add_u32 s51, s50, {4096*11}')
    e('s_movk_i32 s49, 4096')
    if o.orev:
        e(f's_bitcmp0_b32 s{NB}, 0')
        e('s_cbranch_scc1 L_fwd')
        for k in range(5): e(f'v_swap_b32 v{VA+k}, v{VA+10-k}')
        e(f's_add_u32 s50, s50, {4096*10}')
        e('s_movk_i32 s49, -4096')
        e('L_fwd:')
    e(f's_or_b32 s46, s2, s{WAVE}')
    e('v_or_b32 v2, s46, v1')
    e('v_cmp_eq_u32 vcc, 0, v2')
    e(f'v_mov_b32 v{VCL}, -16')
    e(f'v_mov_b32 v{VCL+1}, -16')
    e(f'v_mov_b32 v3, {NONCE}')
    e(f'v_cndmask_b32 v{VCL}, v{VCL}, 4, vcc')
    e(f'v_cndmask_b32 v{VCL+1}, v{VCL+1}, v3, vcc')
    e(f'v_mov_b32 v2, {CNT}')
    for r in range(4, 8): e(f'v_mov_b32 v{r}, 0')
    e('ds_write_b128 v2, v[4:7]')
    e('ds_write_b128 v2, v[4:7] offset:16')
    e('s_waitcnt lgkmcnt(0)')
    e(f's_load_dword s{TAG}, s[12:13], {NONCE}')
    srd(e, S_X, 4, 1152000, add=BOFF)
    srd(e, S_WS, 12, WS_REC)
    srd(e, S_OUT, 8, 1152000, add=BOFF)
    srd(e, S_DBG, 10, 256)
    def odma(k):
        e(f's_mov_b32 m0, s{51 if k == 11 else 50}')
        e('s_add_u32 s50, s50, s49')
        e(f'buffer_load_dwordx4 v{VA+k}, {sr(S_X)}, 0 offen lds')
    if o.npdelay:
        e(f's_cmp_lt_u32 s{PAIR0}, {NPROD}')
        e('s_cbranch_scc1 L_nd')
        e('s_waitcnt lgkmcnt(0)')
        e('L_nd:')
    for k in range(o.opre): odma(k)
    e('s_barrier')
    stamp(1)
    for k in range(o.opre, 12):
        if k == 11:
            e(f's_cmp_lg_u32 s{WAVE}, 0')
            e('s_cbranch_scc1 L_o11')
        odma(k)
    e('L_o11:')
    e(f'v_mov_b32 v{VF+1}, {CNT}')
    e(f'v_mov_b32 v{VF+2}, 1')
    e(f's_lshr_b32 s46, s{WAVE}, 1')
    e('s_lshl_b32 s46, s46, 2')
    e(f'v_add_u32 v{VF+5}, s46, v{VF+1}')
    e('s_waitcnt vmcnt(0) lgkmcnt(0)')
    stamp(2)
    if o.dec:
        e('s_mov_b64 exec, 1')
        e(f'ds_add_u32 v{VF+1}, v{VF+2} offset:8')
        e('s_mov_b64 exec, -1')
    if o.xslot:
        e(f's_mul_i32 s46, s{TAG}, 0x2545F491')
        e('s_lshr_b32 s46, s46, 27')
        e('s_lshl_b32 s46, s46, 22')
        e(f's_add_u32 s{WSO}, s{WSO}, s46')
    e(f's_add_u32 s{TAG}, s{TAG}, {TAGINC}')
    e(f'v_mov_b32 v{VF+3}, s{TAG}')
    if o.warmb:
        e(f's_cmp_eq_u32 s{TYP}, 1')
        e('s_cbranch_scc1 L_warmB')
        e('L_warmret:')
    if o.nopoll: e('s_branch L_go')
    e('L_poll:')
    e(f'buffer_load_dword v{VF+4}, v{VF}, {sr(S_WS)}, 0 offen sc1')
    e(f's_add_u32 s{NPOLL}, s{NPOLL}, 1')
    e('s_waitcnt vmcnt(0)')
    e(f'v_cmp_ne_u32 vcc, v{VF+3}, v{VF+4}')
    e('s_nop 4')
    e('s_cbranch_vccz L_go')
    if o.sleep: e(f's_sleep {o.sleep}')
    e(f's_cmp_lt_u32 s{NPOLL}, {o.maxpoll}')
    e('s_cbranch_scc1 L_poll')
    e(f's_mov_b32 s{MODE}, 1')
    e(f's_mov_b32 s{HAS3}, 1')
    e(f's_lshr_b32 s{TW0}, s{NB}, 1')
    e(f's_add_u32 s{TW1}, s{NB}, 9')
    e(f's_lshr_b32 s{TW1}, s{TW1}, 1')
    e(f's_mov_b32 s{TW2}, 8')
    e(f's_mov_b32 s{PAIR}, 0')
    e(f's_lshl_b32 s{SCRB}, s{WAVE}, 12')
    e(f's_add_u32 s{SCRB}, s{SCRB}, {SCR}')
    e('s_branch L_prod')
    e('L_go:')
    stamp(3)
    if o.dec:
        e('s_mov_b64 exec, 1')
        e(f'ds_add_u32 v{VF+1}, v{VF+2} offset:12')
        e('L_gw:')
        e(f'ds_read_b32 v{VF+4}, v{VF+1} offset:12')
        e('s_waitcnt lgkmcnt(0)')
        e(f'v_cmp_ne_u32 vcc, 4, v{VF+4}')
        e('s_nop 4')
        e('s_cbranch_vccnz L_gw')
        e('s_mov_b64 exec, -1')
    else:
        e('s_barrier')
    stamp(4)
    e(f's_setprio {o.mprio}')
    e(f's_cmp_eq_u32 s{TYP}, 1')
    e('s_cbranch_scc1 L_typeB')

    ACC = {'P': 64, 'Q': 100}
    WR, TMP = 136, 224
    XRING = [200 + 4 * i for i in range(6)]
    XWIN = [4 + 4 * i for i in range(6)] + [240 + 4 * i for i in range(4)]
    VC = 28
    PF = o.pf
    GT = 98
    wflags = ' sc1' if o.wsc1 else ''
    def wreg(g):
        return ACC['P'] + 4 * (g - GT) if (o.tail and g >= GT) else WR + 4 * (g % 16)
    for typ, S in enumerate(streams()):
        if typ == 1:
            e('.p2align 6')
            if o.warmb: e('L_warmB:'); e('s_branch L_warmret')
            e('L_typeB:')
        ops = []
        vstart = {}
        lastv = GT - 1 if o.tail else NSTEP + 7
        for v in range(lastv + 1):
            vstart[v] = len(ops)
            for j in range(8, -1, -1):
                if 0 <= v - j < NSTEP: ops.append((v - j, j))
        ntail = len(ops)
        if o.tail:
            for j in range(9):
                for g in range(GT - j, NSTEP): ops.append((g, j))
        assert len(ops) == NSTEP * 9 and len(set(ops)) == len(ops)
        N = len(ops)
        def key(n):
            g, j = ops[n]
            pid, arr, ch, c, acc = S[g]
            k = (pid, arr, ch, c + j)
            if n >= ntail and g < GT: k = k + ((n,) if not o.hold else ('h',))
            return k
        first, last = {}, {}
        for n in range(N):
            first.setdefault(key(n), n); last[key(n)] = n
        wfirst, wlast = {}, {}
        for n, (g, j) in enumerate(ops):
            wfirst.setdefault(g, n); wlast[g] = n
        tasks = []
        for k, n0 in first.items():
            win = o.tail and k[2] == 'rem' and k[1] == 'D'
            la = o.xla if n0 < ntail else 6
            if win: la = 40 if k[3] < 8 else 12
            tasks.append([n0 - la, n0 - 1, 'X', k])
        for g in range(NSTEP):
            if o.tail and g >= GT: rel = vstart[76 + 2 * (g - GT)] + 3
            elif g < PF: rel = -100 + g
            else: rel = vstart[g - PF] + (0 if g < 16 else 0)
            if g >= 16 and not (o.tail and g >= GT): rel = max(rel, wlast[g - 16])
            tasks.append([rel, wfirst[g] - 1, 'W', g])
        def at(v, off=0): return vstart[v] + off
        firstD = min(n for n in range(N) if S[ops[n][0]][1] == 'D')
        lastO = max(n for n in range(N) if S[ops[n][0]][1] == 'O')
        lastP = {j: max(n for n in range(N) if ops[n][1] == j and S[ops[n][0]][4] == 'P') for j in range(9)}
        slow = []
        def check(v, off, cnt, tag):
            tasks.append([at(v - 1, 3), at(v - 1, 8), 'L', (f'ds_read_b32 v{VC}, v{VF+1} offset:{off}', ('c', tag))])
            tasks.append([at(v, 0), at(v, 1), 'C', (f'v_cmp_ne_u32 vcc, {cnt}, v{VC}', ('c', tag))])
            tasks.append([at(v, 6), at(v, 7), 'I', [f's_cbranch_vccnz L_slow{typ}{tag}', f'L_back{typ}{tag}:']])
            slow.append((tag, off, cnt))
            return at(v, 8)
        def add1(pos, off):
            tasks.append([pos, pos + 4, 'A', off])
        vD = [v for v in vstart if vstart[v] <= firstD - o.xla][-1] - 1
        okD = check(vD, 16, 4, 'D')
        assert okD <= firstD - o.xla
        add1(lastO, 20)
        VP = 47
        okR = check(VP, 20, 4, 'R')
        for j in range(9):
            assert lastP[j] + 12 < at(VP + 1 + j, 2)
            tasks.append([at(VP + 1 + j, 2), at(VP + 1 + j, 8), 'L', (f'ds_write_b128 v{VEX}, {vr(ACC["P"]+4*j,4)} offset:{1024*j}', ('pw', j))])
        tasks.append([at(VP + 10, 0), at(VP + 10, 4), 'A', 'pair'])
        VQ = VP + 13
        okP = check(VQ, 'pair', 2, 'P')
        for j in range(9):
            tasks.append([at(VQ + 1 + j, 2), at(VQ + 1 + j, 8), 'L', (f'ds_read_b128 {vr(TMP+4*(j&1),4)}, v{VEXP} offset:{1024*j}', ('pr', j))])
            v = VQ + 2 + j
            pos = at(v, 8 - (j + 2) - 1) if j <= 6 else at(v, 8 - (j - 7) - 1)
            sh = 1 if j >= 7 else 0
            tasks.append([pos - 1 + sh, pos - 1 + sh, 'Q', (j, 0)])
            tasks.append([pos + sh, pos + sh, 'Q', (j, 1)])
        if typ == 0:
            tasks.append([at(72, 4), at(72, 8), 'S', f'buffer_store_dword v{VCL+1}, v{VCL}, {sr(S_DBG)}, 0 offen sc1'])
            tasks.append([at(92, 4), at(92, 8), 'S', f'buffer_store_dword v{VF+3}, v{VCL+1}, {sr(S_WS)}, 0 offen sc1'])
        tasks.sort(key=lambda t: (t[0], t[1]))
        vq, lq = [], []
        dirty = [False]
        xreg, busy = {}, {}
        wn = [0]
        since = {}
        fill = []
        def em(x):
            e(x)
            if not x.endswith(':'):
                for jj in since: since[jj] += 1
        def lwait(tag):
            if tag not in lq: return
            i = lq.index(tag)
            em(f's_waitcnt lgkmcnt({0 if dirty[0] else len(lq)-1-i})')
            if dirty[0]: lq.clear(); dirty[0] = False
            else: del lq[:i + 1]
        def vwait(g):
            if g not in vq: return
            i = vq.index(g)
            em(f's_waitcnt vmcnt({len(vq)-1-i})')
            del vq[:i + 1]
        def run(t, n):
            kind, p = t[2], t[3]
            if kind == 'X':
                pool = XWIN if (o.tail and p[2] == 'rem' and p[1] == 'D') else XRING
                if p[-1] == 'h':
                    pool = [WR + 4 * (g % 16) for g in range(GT - 16, GT - 8)]
                    for g in range(GT - 16, GT - 8): busy.setdefault(WR + 4 * (g % 16), wlast[g])
                r = [x for x in pool if busy.get(x, -1) <= n]
                assert r, ('no x register', p, n)
                r = min(r, key=lambda x: busy.get(x, -1))
                busy[r] = last[p]; xreg[p] = r
                arr, ch, s_ = p[1], p[2], p[3]
                if ch == 'rem': em(f'ds_read_b128 {vr(r,4)}, v{VXOR if arr == "O" else VXDR} offset:{288*s_}')
                else: em(f'ds_read_b128 {vr(r,4)}, v{VXO if arr == "O" else VXD} offset:{64*ch+288*s_}')
                lq.append(p)
            elif kind == 'W':
                g = p
                if o.tail and g >= GT:
                    em(f'buffer_load_dwordx4 {vr(wreg(g),4)}, v{VWL}, {sr(S_WS)}, s{WSO+27} offen offset:{1024*((g-GT)%4)}{wflags}')
                    if g == GT + 3: em(f's_add_u32 s{WSO+27}, s{WSO+27}, 4096')
                else:
                    assert g == wn[0]; wn[0] += 1
                    em(f'buffer_load_dwordx4 {vr(wreg(g),4)}, v{VWL}, {sr(S_WS)}, s{WSO} offen offset:{1024*(g%4)}{wflags}')
                    if g % 4 == 3: em(f's_add_u32 s{WSO}, s{WSO}, 4096')
                vq.append(g)
            elif kind == 'L':
                em(p[0].replace('offset:pair', 'offset:24').replace(f'v{VF+1} offset:24', f'v{VF+5} offset:24')); lq.append(p[1])
            elif kind == 'C':
                lwait(p[1]); em(p[0])
            elif kind == 'I':
                for x in p: em(x)
            elif kind == 'A':
                em('s_mov_b64 exec, 1')
                if p == 'pair': em(f'ds_add_u32 v{VF+5}, v{VF+2} offset:24')
                else: em(f'ds_add_u32 v{VF+1}, v{VF+2} offset:{p}')
                em('s_mov_b64 exec, -1')
                lq.append(('a', p))
            elif kind == 'Q':
                p, hf = p
                lwait(('pr', p))
                q = ACC['Q'] + 4 * p; t_ = TMP + 4 * (p & 1)
                for i in (2 * hf, 2 * hf + 1): em(f'v_add_f32 v{q+i}, v{q+i}, v{t_+i}')
            elif kind == 'S':
                em(p); vq.append(('s', n))
        def epi(j, pk):
            q = ACC['Q'] + 4 * j
            t = TMP + 8 * (j & 1)
            I = []
            if pk:
                I.append(f'v_pk_mul_f32 {vr(t,2)}, {vr(q,2)}, s[{C2L}:{C2L+1}]')
                I.append(f'v_pk_mul_f32 {vr(t+2,2)}, {vr(q+2,2)}, s[{CNL}:{CNL+1}]')
            else:
                for i in (0, 1): I.append(f'v_mul_f32 v{t+i}, s{C2L}, v{q+i}')
                for i in (2, 3): I.append(f'v_mul_f32 v{t+i}, s{CNL}, v{q+i}')
            I.append(f'v_min_f32 v{t}, s{C60}, v{t}')
            I.append(f'v_min_f32 v{t+1}, s{C60}, v{t+1}')
            for i in (0, 1, 2, 3): I.append(f'v_exp_f32 v{t+i}, v{t+i}')
            if pk:
                I.append(f'v_pk_add_f32 {vr(t+4,2)}, {vr(t,2)}, 1.0 op_sel_hi:[1,0]')
                I.append(f'v_pk_add_f32 {vr(t+6,2)}, {vr(t,2)}, -1.0 op_sel_hi:[1,0]')
                I.append(f'v_pk_fma_f32 {vr(t+4,2)}, {vr(t+4,2)}, {vr(t+2,2)}, {vr(t+4,2)}')
            else:
                for i in (0, 1): I.append(f'v_add_f32 v{t+4+i}, 1.0, v{t+i}')
                for i in (0, 1): I.append(f'v_fma_f32 v{t+4+i}, v{t+4+i}, v{t+2+i}, v{t+4+i}')
            I.append(f'v_rcp_f32 v{t+4}, v{t+4}')
            I.append(f'v_rcp_f32 v{t+5}, v{t+5}')
            if pk:
                I.append('s_nop 0')
                I.append(f'v_pk_mul_f32 {vr(t+6,2)}, {vr(t+6,2)}, {vr(t+4,2)}')
            else:
                for i in (0, 1): I.append(f'v_add_f32 v{t+6+i}, -1.0, v{t+i}')
                for i in (0, 1): I.append(f'v_mul_f32 v{t+6+i}, v{t+6+i}, v{t+4+i}')
            I.append(f'v_cvt_pk_bf16_f32 v{q}, v{t+6}, v{t+7}')
            I.append(f'buffer_store_dword v{q}, v{VOUT + j//3}, {sr(S_OUT)}, 0 offen offset:{1152*(j%3)} {o.oflags}')
            return I
        def cost(x): return 2 if x.startswith(('v_exp', 'v_rcp', 'buffer')) else 1
        e(f's_add_u32 s{WSO+27}, s{WSO}, {GT*1024}')
        while tasks and tasks[0][0] < 0: run(tasks.pop(0), -1)
        inv = {n: v for v, n in vstart.items()}
        lastop = {j: max(n for n in range(N) if ops[n][1] == j) for j in range(9)}
        for n, (g, j) in enumerate(ops):
            if n in inv and o.diag:
                v = inv[n]
                if o.diag == 2 and v in o.marks:
                    kk = o.marks.index(v)
                    e(f's_memtime s[{ST0+2*kk}:{ST0+2*kk+1}]'); dirty[0] = True
                if o.diag in (1, 4) and v == 33: stamp(5); stamp(6); dirty[0] = True
            k = key(n)
            assert k in xreg, (k, n)
            lwait(k); vwait(g)
            acc = S[g][4]
            d = ACC[acc] + 4 * j
            if g == 0: cs = '0'
            elif acc == 'Q' and S[g-1][4] == 'P': cs = vr(ACC['P'] + 4 * j, 4)
            else: cs = vr(d, 4)
            em(f'v_mfma_f32_16x16x32_bf16 {vr(d,4)}, {vr(wreg(g),4)}, {vr(xreg[k],4)}, {cs}')
            if n == lastop[j]: since[j] = 0
            budget = 2
            TC = {'X': 1, 'W': 2, 'L': 2, 'C': 1, 'I': 0, 'A': 1, 'Q': 2, 'S': 2}
            while True:
                ready = [t for t in tasks if t[0] <= n]
                if not ready: break
                t = min(ready, key=lambda t: t[1])
                assert t[1] >= n, ('late', t, n)
                if TC[t[2]] > budget and t[1] > n:
                    fit = [u for u in ready if TC[u[2]] <= budget]
                    if not fit: break
                    t = min(fit, key=lambda t: t[1])
                tasks.remove(t); run(t, n); budget -= TC[t[2]]
            for jj in sorted(since):
                if 8 <= since[jj] < 10**6:
                    fill += epi(jj, False); since[jj] = 10**6
            budget += o.nfill - 2
            while fill and budget >= cost(fill[0]):
                budget -= cost(fill[0]); em(fill.pop(0))
        assert not tasks
        stamp(7)
        while fill: em(fill.pop(0))
        for jj in [jj for jj in sorted(since) if since[jj] < 10**6]:
            if since[jj] < 8: em(f's_nop {8-since[jj]-1}')
            for x in epi(jj, True): em(x)
        stamp(8)
        if o.padto and o.padev[0] == 'm': padloop(typ)
        if o.diag == 1:
            e('s_waitcnt vmcnt(0)')
            stamp(9)
            dump(10)
        if o.diag == 2:
            kk = len(o.marks)
            e(f's_memtime s[{ST0+2*kk}:{ST0+2*kk+1}]')
            dump(10)
        e('s_endpgm')
        for tag, off, cnt in slow:
            e(f'L_slow{typ}{tag}:')
            e(f'ds_read_b32 v{VC}, v{VF+5 if off == "pair" else VF+1} offset:{24 if off == "pair" else off}')
            e('s_waitcnt lgkmcnt(0)')
            e(f'v_cmp_ne_u32 vcc, {cnt}, v{VC}')
            e('s_nop 4')
            e(f's_cbranch_vccnz L_slow{typ}{tag}')
            e(f's_branch L_back{typ}{tag}')

    mark['help0'] = len(e.L)
    if not o.hfirst: e('.p2align 6')
    e('L_helper:')
    role[0] = 'h'
    e(f's_setprio {o.hprio}')
    e(f's_sub_u32 s{TW0}, s{WAVE}, 4')
    e(f's_mov_b32 s{TW1}, s{WAVE}')
    e(f's_mov_b32 s{TW2}, 8')
    e(f's_mov_b32 s{PAIR}, s{PAIR0}')
    e(f's_mov_b32 s{MODE}, 0')
    e(f's_mov_b32 s{HAS3}, s{TW0}')
    e(f's_lshl_b32 s{SCRB}, s{TW0}, 12')
    e(f's_add_u32 s{SCRB}, s{SCRB}, {SCR}')
    e('L_prod:')
    T = [(64, TW0, 2, 3, 0), (96, TW1, 4, 5, 2048), (128, TW2, 6, 7, 16384)]
    c, kp, q, cc, kk, t = 46, 47, 48, 49, 50, 51
    b = TS
    e('v_mov_b32 v19, 4320')
    e('v_and_b32 v23, 3, v1')
    e('v_lshrrev_b32 v24, 3, v1')
    e('v_mul_u32_u24 v24, 576, v24')
    e('v_bfe_u32 v25, v1, 2, 1')
    e('v_mul_u32_u24 v25, 288, v25')
    e('v_add_u32 v24, v24, v25')
    for (vb, sw, vl, vs, so) in T:
        e(f'v_lshl_add_u32 v8, s{sw}, 2, v23')
        e('v_cmp_le_u32 vcc, 18, v8')
        e(f'v_lshl_add_u32 v{vl}, v8, 4, v24')
        e(f'v_add_u32 v9, v{vl}, v19')
        e(f'v_cndmask_b32 v{vl}, v{vl}, v9, vcc')
    e(f's_and_b32 s{c}, s{PAIR}, 15')
    e(f's_lshr_b32 s{kp}, s{PAIR}, 4')
    e(f's_mul_i32 s{b}, s{c}, 165888')
    e(f's_mul_i32 s{t}, s{kp}, 9216')
    e(f's_add_u32 s{b}, s{b}, s{t}')
    e(f's_add_u32 s{b+1}, s{b}, 82944')
    e(f's_mov_b32 s{S_W+2}, 2571264')
    e(f's_mov_b32 s{S_W+3}, 0x20000')
    e(f's_mov_b32 s{S_WO+3}, 0x20000')
    e(f's_cmp_lg_u32 s{c}, 15')
    e(f's_cselect_b32 s{S_WO+2}, 2571264, 0')
    e(f's_mov_b32 m0, s{SCRB}')
    e('s_waitcnt lgkmcnt(0)')
    e(f's_mov_b32 s{S_W}, s6')
    e(f's_and_b32 s{S_W+1}, s7, 0xffff')
    e(f's_mov_b32 s{S_WO}, s6')
    e(f's_and_b32 s{S_WO+1}, s7, 0xffff')
    e(f's_cmp_ge_u32 s{PAIR}, {NPROD}')
    e('s_cbranch_scc1 L_noprod')
    def cond3(lbl):
        e(f's_cmp_lg_u32 s{HAS3}, 0')
        e(f's_cbranch_scc1 {lbl}')
    for ti, (vb, sw, vl, vs, so) in enumerate(T):
        if ti == 2: cond3('L_a3')
        if ti == 1: e('s_addk_i32 m0, 1024'); e('s_nop 0')
        e(f'buffer_load_dwordx4 v{vl}, {sr(S_W)}, s{b} offen lds')
        e('s_addk_i32 m0, 1024')
        e('s_nop 0')
        e(f'buffer_load_dwordx4 v{vl}, {sr(S_WO)}, s{b+1} offen lds')
        if ti == 1: e(f's_addk_i32 m0, {16384-3072}')
    e('L_a3:')
    stamp(1)
    e(f's_cmp_lg_u32 s{MODE}, 0')
    e('s_cbranch_scc1 L_a4')
    e(f's_load_dword s{TAG}, s[12:13], {NONCE}')
    e(f's_mov_b32 s{MASK}, 0xffff0000')
    e(f's_mov_b32 s{NPOLL}, 0')
    e('L_a4:')
    srd(e, S_WS, 12, WS_REC)
    srd(e, S_DBG, 10, 256)
    e(f'v_mov_b32 v20, {(256 - 18*2*NSTEP*1024) & 0xffffffff}')
    e(f'v_mov_b32 v26, {2*NSTEP*1024}')
    e('v_bfe_u32 v21, v1, 2, 2')
    e('v_lshlrev_b32 v21, 7, v21')
    e('v_and_b32 v22, 1, v1')
    e('v_lshl_add_u32 v21, v22, 6, v21')
    e('v_bfe_u32 v22, v1, 1, 1')
    e('v_lshl_add_u32 v21, v22, 3, v21')
    e('v_lshrrev_b32 v22, 4, v1')
    e('v_lshl_add_u32 v21, v22, 4, v21')
    e(f'v_add_u32 v21, s{SCRB}, v21')
    e('v_and_b32 v25, 15, v1')
    e('v_lshlrev_b32 v25, 4, v25')
    for (vb, sw, vl, vs, so) in T:
        e(f'v_lshl_add_u32 v8, s{sw}, 2, v22')
        e('v_cmp_le_u32 vcc, 18, v8')
        e(f'v_mad_u32_u24 v{vs}, v8, v26, v25')
        e(f'v_add_u32 v9, v{vs}, v20')
        e(f'v_cndmask_b32 v{vs}, v{vs}, v9, vcc')
    e(f's_lshr_b32 s{q}, s{kp}, 1')
    e(f's_and_b32 s{cc}, s{c}, 7')
    e(f's_lshr_b32 s{kk}, s{c}, 3')
    e(f's_and_b32 s{t}, s{kp}, 1')
    e(f's_cmp_eq_u32 s{kp}, 8')
    e(f's_cselect_b32 s{cc}, s{cc}, s{c}')
    e(f's_cselect_b32 s{kk}, s{kk}, s{t}')
    e(f's_lshl_b32 s{kk}, s{kk}, 9')
    e(f's_add_u32 s{kk}, s{kk}, {WOFF}')
    e(f's_lshl_b32 s{t}, s{q}, 4')
    e(f's_add_u32 s{b+2}, s{t}, s{cc}')
    e(f's_sub_u32 s{b+3}, s{b+2}, s{q}')
    e(f's_cmp_ge_u32 s{q}, 2')
    e(f's_cselect_b32 s{b+4}, 74, 0')
    e(f's_add_u32 s{b+4}, s{b+4}, s{b+2}')
    e(f's_cmp_lt_u32 s{cc}, 2')
    e(f's_cselect_b32 s{t}, 32, 136')
    e(f's_add_u32 s{t}, s{t}, s{cc}')
    e(f's_cmp_eq_u32 s{kp}, 8')
    e(f's_cselect_b32 s{b+4}, s{t}, s{b+4}')
    e(f's_add_u32 s{b+2}, s{b+2}, 34')
    e(f's_add_u32 s{b+3}, s{b+3}, 144')
    for k in (2, 3, 4):
        e(f's_lshl_b32 s{b+k}, s{b+k}, 10')
        e(f's_add_u32 s{b+k}, s{b+k}, s{kk}')
    e(f's_cmp_eq_u32 s{kp}, 8')
    e(f's_cselect_b32 s{t}, 1, 2')
    e(f's_cmp_eq_u32 s{c}, 15')
    e(f's_cselect_b32 s{b+5}, s{t}, 0')
    npre = 0
    if o.prest:
        e(f's_cmp_lg_u32 s{MODE}, 0')
        e('s_cbranch_scc1 L_p9')
        if o.prest == 2:
            e('s_mov_b32 exec_lo, 0x00010001'); e('s_mov_b32 exec_hi, 0x00010001')
        if o.prest == 3:
            e('s_mov_b32 exec_lo, 0x01010101'); e('s_mov_b32 exec_hi, 0x01010101')
        e(f's_cmp_eq_u32 s{b+5}, 2')
        e(f's_cselect_b32 s46, s{b+4}, s{b+3}')
        e(f's_cmp_lg_u32 s{HAS3}, 0')
        e('s_cselect_b32 s47, 0x80000000, 0')
        e('v_or_b32 v7, s47, v7')
        for ti, (vb, sw, vl, vs, so) in enumerate(T):
            for k in (b + 4, b + 2, 46):
                if o.prest == 1: e(f'buffer_store_dwordx4 v[64:67], v{vs}, {sr(S_WS)}, s{k} offen sc1')
                else: e(f'buffer_store_dword v64, v{vs}, {sr(S_WS)}, s{k} offen sc1')
        e('s_mov_b64 exec, -1')
        e('s_waitcnt vmcnt(9) lgkmcnt(0)')
        e('s_branch L_p10')
        e('L_p9:')
        e('s_waitcnt vmcnt(0) lgkmcnt(0)')
        e('L_p10:')
    else:
        e('s_waitcnt vmcnt(0) lgkmcnt(0)')
    stamp(2)
    if o.xslot:
        e(f's_cmp_lg_u32 s{MODE}, 0')
        e(f's_cselect_b32 s46, {TAGINC}, 0')
        e(f's_sub_u32 s46, s{TAG}, s46')
        e('s_mul_i32 s46, s46, 0x2545F491')
        e('s_lshr_b32 s46, s46, 27')
        e('s_lshl_b32 s46, s46, 22')
        for k in (2, 3, 4): e(f's_add_u32 s{b+k}, s{b+k}, s46')
    e('v_mov_b32 v27, 0')
    if o.noclosed: e('s_branch L_a5')
    e(f's_cmp_lg_u32 s{WAVE}, 4')
    e('s_cbranch_scc1 L_a5')
    e('v_mov_b32 v12, 4')
    e('s_mov_b64 exec, 1')
    e(f'buffer_load_dword v27, v12, {sr(S_DBG)}, 0 offen sc1')
    e('s_mov_b64 exec, -1')
    e('L_a5:')
    def trreads(vb, so):
        for tap in range(2):
            for half in range(2):
                e(f'ds_read_b64_tr_b16 {vr(vb+4*tap+2*half,2)}, v21 offset:{so+1024*tap+512*half}')
    def st01(vb, vs, n0, n1, tag):
        e(f's_waitcnt lgkmcnt({n0})')
        e(f'buffer_store_dwordx4 {vr(vb,4)}, v{vs}, {sr(S_WS)}, s{b+2} offen sc1')
        e(f's_waitcnt lgkmcnt({n1})')
        e(f's_cmp_eq_u32 s{b+5}, 2')
        e(f's_cbranch_scc1 L_skip{tag}')
        e(f'buffer_store_dwordx4 {vr(vb+4,4)}, v{vs}, {sr(S_WS)}, s{b+3} offen sc1')
        e(f'L_skip{tag}:')
    def stsum(vb, vs):
        for i in range(8):
            e(f'v_lshlrev_b32 v{vb+8+2*i}, 16, v{vb+i}')
            e(f'v_and_b32 v{vb+9+2*i}, s{MASK}, v{vb+i}')
        for i in range(4):
            e(f'v_pk_add_f32 {vr(vb+8+2*i,2)}, {vr(vb+8+2*i,2)}, {vr(vb+16+2*i,2)}')
        for i in range(4):
            e(f'v_cvt_pk_bf16_f32 v{vb+24+i}, v{vb+8+2*i}, v{vb+9+2*i}')
        e(f'buffer_store_dwordx4 {vr(vb+24,4)}, v{vs}, {sr(S_WS)}, s{b+4} offen sc1')
    for tt in T: trreads(tt[0], tt[4])
    if o.wsfirst:
        e('s_waitcnt lgkmcnt(8)')
        stsum(T[0][0], T[0][3])
        e('s_waitcnt lgkmcnt(4)')
        stsum(T[1][0], T[1][3])
        cond3('L_b3')
        e('s_waitcnt lgkmcnt(0)')
        stsum(T[2][0], T[2][3])
    else:
        st01(T[0][0], T[0][3], 10, 8, 0)
        st01(T[1][0], T[1][3], 6, 4, 1)
        if o.padto: stamp(9)
        stsum(T[0][0], T[0][3])
        if o.padto: stamp(10)
        stsum(T[1][0], T[1][3])
        cond3('L_b3')
        st01(T[2][0], T[2][3], 2, 0, 2)
        stsum(T[2][0], T[2][3])
    e('L_b3:')
    e(f's_cmp_eq_u32 s{MODE}, 0')
    e('s_cbranch_scc1 L_b4')
    if o.wsfirst:
        st01(T[0][0], T[0][3], 0, 0, 3)
        st01(T[1][0], T[1][3], 0, 0, 4)
    e('s_waitcnt vmcnt(0) lgkmcnt(0)')
    e(f's_add_u32 s{PAIR}, s{PAIR}, 1')
    e(f's_cmp_lt_u32 s{PAIR}, {NPROD}')
    e('s_cbranch_scc1 L_prod')
    e('s_branch L_go')
    e('L_noprod:')
    e(f's_mov_b32 s{MASK}, 0xffff0000')
    e(f's_mov_b32 s{NPOLL}, 0')
    srd(e, S_WS, 12, WS_REC)
    if o.probe:
        e('s_lshl_b32 s46, s2, 3')
        e(f's_add_u32 s46, s46, s{WAVE}')
        e('s_lshl_b32 s46, s46, 13')
        e(f's_add_u32 s46, s46, {o.probeoff}')
        e('v_lshlrev_b32 v64, 4, v1')
        if o.probe == 2: e('s_mov_b64 exec, 1')
        for k in range(6 if o.probe == 1 else 1):
            e(f'buffer_store_dwordx4 v[68:71], v64, {sr(S_WS)}, s46 offen sc1')
            e('s_add_u32 s46, s46, 1024')
        e('s_mov_b64 exec, -1')
        e('s_waitcnt vmcnt(0)')
        stamp(11)
    stamp(1); stamp(2)
    e('L_b4:')
    if not o.b0late: e('s_barrier')
    if o.b0late:
        pass
    stamp(3)
    if o.wsfirst:
        for i in range(3): e(f'v_mov_b32 v{28+i}, v{3+2*i}')
    decode()
    e('v_subrev_u32 v4, 256, v0')
    e('v_min_u32 v4, 251, v4')
    e('v_mul_u32_u24 v3, 3641, v4')
    e('v_lshrrev_b32 v3, 16, v3')
    e('v_mul_u32_u24 v2, 18, v3')
    e('v_sub_u32 v2, v4, v2')
    e(f'v_mul_u32_u24 v3, {R}, v3')
    e(f'v_min_u32 v3, {160-R}, v3')
    e('v_mul_u32_u24 v4, 1152, v3')
    e('v_lshl_add_u32 v4, v2, 4, v4')
    e(f'v_add_u32 v12, s{XB}, v4')
    e('v_mul_u32_u24 v18, 288, v3')
    e('v_lshl_add_u32 v18, v2, 4, v18')
    e(f'v_add_u32 v19, {X_D1}, v18')
    srd(e, S_X, 4, 1152000, add=BOFF)
    e(f's_cmp_ge_u32 s{PAIR0}, {NPROD}')
    e('s_cbranch_scc1 L_noflag')
    e(f'v_mov_b32 v10, {CNT}')
    e(f's_lshl_b32 s46, s{WAVE}, 2')
    e(f's_add_u32 s46, s46, {CNT+16}')
    e('v_mov_b32 v11, s46')
    e(f's_mul_i32 s46, s{PAIR0}, {o.fstride}')
    e('v_mov_b32 v16, s46')
    e(f's_add_u32 s46, s{TAG}, {TAGINC}')
    e('v_mov_b32 v15, s46')
    e('v_not_b32 v14, v15')
    e('s_mov_b64 exec, 1')
    if o.padto: stamp(8)
    e('s_waitcnt vmcnt(0)')
    stamp(4)
    e('v_cmp_ne_u32 vcc, 0, v27')
    e('s_nop 1')
    e('v_cndmask_b32 v14, v15, v14, vcc')
    e('ds_write_b32 v11, v14')
    e('ds_read_b128 v[20:23], v10 offset:32')
    e('s_waitcnt lgkmcnt(0)')
    e('v_xor_b32 v20, v20, v15')
    e('v_xor_b32 v21, v21, v15')
    e('v_xor_b32 v22, v22, v15')
    e('v_xor_b32 v23, v23, v15')
    e('v_or3_b32 v20, v20, v21, v22')
    e('v_or_b32 v20, v20, v23')
    e('v_cmp_eq_u32 vcc, 0, v20')
    e('s_and_b64 exec, exec, vcc')
    e('s_cbranch_execz L_notlast')
    e(f'buffer_store_dword v15, v16, {sr(S_WS)}, 0 offen sc1')
    e('L_notlast:')
    e('s_mov_b64 exec, -1')
    if o.wsfirst == 9:
        st01(T[0][0], 28, 0, 0, 0)
        st01(T[1][0], 29, 0, 0, 1)
        cond3('L_c3')
        st01(T[2][0], 30, 0, 0, 2)
        e('L_c3:')
    e('L_noflag:')
    if o.b0late: e('s_barrier')
    e(f's_setprio {o.hprio2}')
    RAW, ORAW = 64, 120
    EU = [184, 192]
    OU, DT, DO = 200, 208, 216
    xi = [0]
    NL = R + 1
    def eload():
        k = xi[0]
        if k >= NL: return
        a_ = 12
        if k:
            a_ = 13 + (k & 3)
            e(f'v_add_u32 v{a_}, {1152*k}, v12')
        e(f'buffer_load_dwordx4 {vr(RAW+4*k,4)}, v{a_}, {sr(S_X)}, 0 offen')
        xi[0] += 1
    if o.etouch:
        e(f's_cmp_lt_u32 s{PAIR0}, {NPROD}')
        e('s_cbranch_scc1 L_net')
        if o.etouch == 2:
            e(f's_and_b32 s46, s{NB}, 1')
            e(f's_mul_i32 s46, s46, {1152*6}')
            e('v_add_u32 v12, s46, v12')
            for _ in range(7): eload()
            e('v_subrev_u32 v12, s46, v12')
        else:
            for _ in range(NL): eload()
        e('s_waitcnt vmcnt(0)')
        e('L_net:')
        xi[0] = 0
    for _ in range(o.epre): eload()
    e('s_waitcnt lgkmcnt(0)')
    stamp(5)
    if o.dec:
        for _ in range(max(0, o.ein - o.epre)): eload()
        e(f'v_mov_b32 v10, {CNT}')
        e('s_mov_b64 exec, 1')
        e('L_ow:')
        e('ds_read_b32 v11, v10 offset:8')
        e('s_waitcnt lgkmcnt(0)')
        e('v_cmp_ne_u32 vcc, 4, v11')
        e('s_nop 4')
        e('s_cbranch_vccz L_ow2')
        e('s_sleep 1')
        e('s_branch L_ow')
        e('L_ow2:')
        e('s_mov_b64 exec, -1')
    else:
        e('s_barrier')
    stamp(6)
    if not o.dec:
        for _ in range(max(0, o.ein - o.epre)): eload()
    for j in range(R):
        e(f'ds_read_b128 {vr(ORAW+4*j,4)}, v18 offset:{X_O+288*j}')
    def unpack(dst, s_):
        for i in range(4):
            e(f'v_lshlrev_b32 v{dst+2*i}, 16, v{s_+i}')
            e(f'v_and_b32 v{dst+2*i+1}, s{MASK}, v{s_+i}')
    def unpackE(dst, k):
        e(f's_waitcnt vmcnt({xi[0]-1-k})')
        unpack(dst, RAW + 4 * k)
        eload()
    def diff(eu, out):
        if o.nopk:
            for i in range(8): e(f'v_sub_f32 v{DT+i}, v{eu+i}, v{OU+i}')
        else:
          for i in range(4):
            e(f'v_pk_add_f32 {vr(DT+2*i,2)}, {vr(eu+2*i,2)}, {vr(OU+2*i,2)} neg_lo:[0,1] neg_hi:[0,1]')
        for i in range(4):
            e(f'v_cvt_pk_bf16_f32 v{out+i}, v{DT+2*i}, v{DT+2*i+1}')
    unpackE(EU[0], 0)
    e('s_waitcnt lgkmcnt(0)')
    for j in range(R):
        o0 = DO + 8 * (j & 1)
        unpack(OU, ORAW + 4 * j)
        diff(EU[j & 1], o0)
        e(f'ds_write_b128 v18, {vr(o0,4)} offset:{X_D0+288*j}')
        unpackE(EU[(j + 1) & 1], j + 1)
        diff(EU[(j + 1) & 1], o0 + 4)
        e(f'ds_write_b128 v19, {vr(o0+4,4)} offset:{288*j}')
    e('s_waitcnt lgkmcnt(0)')
    stamp(7)
    e('v_mov_b32 v11, 1')
    e('s_mov_b64 exec, 1')
    e('ds_add_u32 v10, v11 offset:16')
    e('s_mov_b64 exec, -1')
    if o.padto and o.padev[0] == 'h': padloop('h')
    if o.diag == 1:
        stamp(8); stamp(9)
        dump(10)
    e('L_end:')
    e('s_endpgm')
    if o.hfirst:
        m0, h0 = mark['main0'], mark['help0']
        e.L = e.L[:m0] + e.L[h0:] + ['.p2align 6'] + e.L[m0:h0]
    e('L_codeend:')
    e('.section .rodata,"a"')
    e('.p2align 6')
    e(f'.amdhsa_kernel {KN}')
    for x in ['next_free_vgpr 256', 'next_free_sgpr 102', 'accum_offset 256', 'group_segment_fixed_size 0', 'kernarg_size 40',
              'user_sgpr_count 2', 'user_sgpr_kernarg_segment_ptr 1', 'system_sgpr_workgroup_id_x 1']:
        e('  .amdhsa_' + x)
    e('.end_amdhsa_kernel')
    n = haz.check(e.L)
    if n: print(f'{n} hazards', file=sys.stderr)
    return f'; @launch grid=({NWG},1,1) block=(512,1,1) lds={LDS_BYTES}\n' + e.text()

def opts(argv=None):
    ap = argparse.ArgumentParser()
    ap.add_argument('-o', default='k.s')
    for nm, d in [('diag', 0), ('pf', 8), ('wsc1', 0), ('nfill', 2), ('fstride', 128), ('sleep', 0), ('maxpoll', 3000), ('nopoll', 0),
                  ('hprio', 3), ('hprio2', 0), ('mprio', 2), ('epre', 0), ('ein', 4), ('vbd', 33), ('nopk', 1), ('padto', 0), ('npdelay', 0), ('opre', 0), ('etouch', 2), ('orev', 1), ('b0late', 1), ('dec', 1), ('tail', 1), ('xla', 9), ('hold', 1), ('prest', 0), ('xslot', 0), ('noclosed', 0), ('cpf', 1), ('hfirst', 1), ('warmb', 1), ('wsfirst', 0), ('probe', 0), ('probeoff', 0x4000000)]:
        ap.add_argument('--' + nm, type=int, default=d)
    ap.add_argument('--oflags', default='')
    ap.add_argument('--pmap', default='18,18,18,18,18,18,18,18')
    ap.add_argument('--padev', default='m0')
    ap.add_argument('--marks', default='0,4,8,12,16,24,33,47,58')
    o = ap.parse_args(argv)
    o.marks = [int(x) for x in o.marks.split(',')]
    return o

if __name__ == '__main__':
    o = opts()
    open(o.o, 'w').write(gen(o))
```

```python
import re, sys, argparse
import haz

KN = 'standalone__autoregressive_conv_wavernn__speech_kernel'
NWG = 252
NPROD = 144
ARR = 160 * 288
X_D0, X_O, X_D1 = 0, ARR, 2 * ARR
CNT = 3 * ARR
SCR = CNT + 64
LDS_BYTES = SCR + 18432
NSTEP = 106
WOFF = int(__import__('os').environ.get('WOFF', '0x100000'), 0)
NONCE = 0x10000
DIAG = 0x800000
WS_REC = max(0x1000000, WOFF + 0x400000, int(__import__('os').environ.get('WSREC', '0'), 0))
TAGINC = 0x9E3779B9
R = 12

class Em:
    def __init__(self): self.L = []
    def __call__(self, s): self.L.append(s)
    def text(self): return '\n'.join(self.L) + '\n'

def vr(a, n=1): return f'v{a}' if n == 1 else f'v[{a}:{a+n-1}]'
def sr(a, n=4): return f's[{a}:{a+n-1}]'

def streams():
    out = []
    for typ in (0, 1):
        S = []
        pid = [0]
        def add(arr, chunk, cs, acc):
            for c in cs: S.append((pid[0], arr, chunk, c, acc))
            pid[0] += 1
        if typ == 0:
            add('O', 0, range(16), 'P'); add('O', 1, range(16), 'P'); add('O', 'rem', range(0, 2), 'P')
            for q in range(4): add('D', q, range(16), 'Q')
            add('D', 'rem', range(8), 'Q')
        else:
            add('O', 2, range(16), 'P'); add('O', 3, range(16), 'P'); add('O', 'rem', range(2, 8), 'P')
            for q in range(4): add('D', q, range(15), 'Q')
            add('D', 'rem', range(8), 'Q')
        assert len(S) == NSTEP
        out.append(S)
    return out

S_X, S_W, S_WO, S_WS, S_OUT, S_DBG = 20, 24, 28, 32, 36, 40
WAVE, NB, BAT, PAR, MB, BOFF = 14, 15, 16, 17, 18, 19
PAIR0 = 3
XB = 52
MASK = 53
TW0, TW1, TW2, PAIR, HAS3, MODE, SCRB, TAG, LAST, NPOLL = 44, 45, 54, 55, 56, 57, 58, 59, 60, 61
TS = 62
TYP, WSO = 68, 69
EARLY, XK, YT, FIDX = 90, 91, 92, 93
NOTASK = 94
NTASK = NPROD + 32
FO = 97
C2L, CNL, C60 = 90, 92, 94
ST0 = 70

def srd(e, d, ptr, rec, add=None):
    if add is None:
        e(f's_mov_b32 s{d}, s{ptr}')
        e(f's_and_b32 s{d+1}, s{ptr+1}, 0xffff')
    else:
        e(f's_add_u32 s{d}, s{ptr}, s{add}')
        e(f's_addc_u32 s{d+1}, s{ptr+1}, 0')
        e(f's_and_b32 s{d+1}, s{d+1}, 0xffff')
    e(f's_mov_b32 s{d+2}, {rec}')
    e(f's_mov_b32 s{d+3}, 0x20000')

def gen(o):
    e = Em()
    role = ['m']
    def padloop(tag):
        e(f'L_pad{tag}:')
        e('s_memrealtime s[98:99]')
        e('s_waitcnt lgkmcnt(0)')
        e('s_sub_u32 s98, s98, s100')
        e(f's_cmp_lt_u32 s98, {o.padto}')
        e(f's_cbranch_scc1 L_pad{tag}')
    def stamp(k, lvl=1):
        if o.padto and lvl == 1 and o.padev == f'{role[0]}{k}':
            e('s_memrealtime s[100:101]'); e('s_waitcnt lgkmcnt(0)')
        if o.diag == lvl or (o.diag == 4 and lvl == 1): e(f's_memrealtime s[{ST0+2*k}:{ST0+2*k+1}]')
    def dump(nst):
        e('s_waitcnt lgkmcnt(0)')
        e('v_mov_b32 v250, 0')
        for k in range(nst): e(f'v_writelane_b32 v250, s{ST0+2*k}, {k}')
        e(f'v_writelane_b32 v250, s{NPOLL}, 13')
        e(f'v_writelane_b32 v250, s95, 12')
        e(f'v_writelane_b32 v250, s2, 14')
        e('s_getreg_b32 s46, hwreg(HW_REG_XCC_ID)')
        e('v_writelane_b32 v250, s46, 15')
        e(f's_lshl_b32 s46, s2, 3'); e(f's_add_u32 s46, s46, s{WAVE}'); e('s_lshl_b32 s46, s46, 6'); e(f's_add_u32 s46, s46, {DIAG}')
        e('v_lshl_add_u32 v251, v1, 2, s46')
        e('s_mov_b64 exec, 0xffff')
        e(f'buffer_store_dword v250, v251, {sr(S_WS)}, 0 offen')
        e('s_mov_b64 exec, -1')

    e('.amdgcn_target "amdgcn-amd-amdhsa--gfx950"')
    e('.text')
    e(f'.globl {KN}')
    e('.p2align 8')
    e(f'.type {KN},@function')
    e(f'{KN}:')
    e(f's_cmp_ge_u32 s2, {NWG}')
    e('s_cbranch_scc1 L_end')
    stamp(0)
    if o.padto and o.padev != 'm0': e('s_memrealtime s[100:101]')
    e('s_load_dwordx4 s[4:7], s[0:1], 0')
    e('s_load_dwordx4 s[8:11], s[0:1], 16')
    e('s_load_dwordx2 s[12:13], s[0:1], 32')
    e('v_lshrrev_b32 v2, 6, v0')
    e('v_and_b32 v1, 63, v0')
    e(f'v_readfirstlane_b32 s{WAVE}, v2')
    def decode():
        e('s_and_b32 s44, s2, 7')
        e('s_lshr_b32 s45, s2, 3')
        e('s_mul_i32 s46, s44, 31')
        e('s_min_u32 s44, s44, 4')
        e('s_add_u32 s46, s46, s44')
        e('s_add_u32 s46, s46, s45')
        e('s_mul_hi_u32 s47, s46, 68174085')
        e('s_mul_i32 s48, s47, 63')
        e('s_sub_u32 s48, s46, s48')
        e(f's_mul_hi_u32 s{NB}, s48, 613566757')
        e(f's_mul_i32 s49, s{NB}, 7')
        e('s_sub_u32 s49, s48, s49')
        e('s_mul_i32 s47, s47, 7')
        e('s_add_u32 s47, s47, s49')
        e(f's_and_b32 s{PAR}, s47, 1')
        e('s_lshr_b32 s47, s47, 1')
        e('s_cmp_ge_u32 s47, 7')
        e(f's_cselect_b32 s{BOFF}, 1152000, 0')
        e('s_cselect_b32 s48, 7, 0')
        e(f's_sub_u32 s{MB}, s47, s48')
        e(f's_mul_i32 s{XB}, s{MB}, 576')
        e(f's_add_u32 s{XB}, s{XB}, s{PAR}')
        e(f's_sub_u32 s{XB}, s{XB}, 60')
        e(f's_mul_i32 s{XB}, s{XB}, 288')
    e(f's_cmp_ge_u32 s{WAVE}, 4')
    e('s_cbranch_scc1 L_helper')
    if o.cpf:
        e('s_lshr_b32 s44, s2, 3')
        e(f's_lshl_b32 s45, s{WAVE}, 5')
        e('s_add_u32 s44, s44, s45')
        e('s_sub_u32 s44, s44, 22')
        e('s_cmp_ge_u32 s44, 9')
        e('s_cbranch_scc1 L_main')
        e('s_getpc_b64 s[46:47]')
        e('L_pc:')
        e('s_cmp_ge_u32 s44, 5')
        e('s_cselect_b32 s45, 5, 0')
        e('s_sub_u32 s44, s44, s45')
        e('s_lshl_b32 s44, s44, 13')
        e('v_lshl_add_u32 v2, v1, 7, s44')
        e('v_min_u32 v2, L_codeend-L_pc-4, v2')
        e('global_load_dword v63, v2, s[46:47]')
    if o.hfirst: e('s_branch L_main')
    mark = {'main0': len(e.L)}
    e('L_main:')
    e(f's_mov_b32 s{MASK}, 0xffff0000')
    e(f's_mov_b32 s{NPOLL}, 0')
    if o.diag: e('s_mov_b32 s95, 0')
    decode()

    VXO, VXOR, VXD, VXDR, VWL, VEX, VEXP, VOUT = 30, 31, 32, 33, 34, 35, 36, 37
    VF = 40
    VA = 48
    VCL = 60
    e('v_mul_u32_u24 v3, 3641, v0')
    e('v_lshrrev_b32 v3, 16, v3')
    e('v_mul_u32_u24 v2, 18, v3')
    e('v_sub_u32 v2, v0, v2')
    e('v_mul_u32_u24 v3, 1152, v3')
    e('v_lshl_add_u32 v3, v2, 4, v3')
    e(f's_add_u32 s46, s{XB}, 576')
    e(f'v_add_u32 v{VA}, s46, v3')
    e('v_mov_b32 v5, 16192')
    e('v_mov_b32 v6, 17056')
    for k in range(1, 12):
        e('v_cmp_le_u32 vcc, 14, v2')
        e('v_add_u32 v3, 4, v2')
        e('v_subrev_u32 v4, 14, v2')
        e('v_cndmask_b32 v7, v5, v6, vcc')
        e('v_cndmask_b32 v2, v3, v4, vcc')
        e(f'v_add_u32 v{VA+k}, v{VA+k-1}, v7')
    e(f's_lshl_b32 s50, s{WAVE}, 10')
    e(f's_add_u32 s50, s50, {X_O}')
    e(f's_add_u32 s51, s50, {4096*11}')
    e('s_movk_i32 s49, 4096')
    if o.orev:
        e(f's_bitcmp0_b32 s{NB}, 0')
        e('s_cbranch_scc1 L_fwd')
        for k in range(5): e(f'v_swap_b32 v{VA+k}, v{VA+10-k}')
        e(f's_add_u32 s50, s50, {4096*10}')
        e('s_movk_i32 s49, -4096')
        e('L_fwd:')
    e(f'v_mov_b32 v{VF+1}, {CNT}')
    for r in range(4, 8): e(f'v_mov_b32 v{r}, 0')
    e(f'ds_write_b128 v{VF+1}, v[4:7]')
    e(f'ds_write_b128 v{VF+1}, v[4:7] offset:16')
    e('s_waitcnt lgkmcnt(0)')
    e(f's_load_dword s{TAG}, s[12:13], {NONCE}')
    srd(e, S_X, 4, 1152000, add=BOFF)
    def odma(k):
        e(f's_mov_b32 m0, s{51 if k == 11 else 50}')
        e('s_add_u32 s50, s50, s49')
        e(f'buffer_load_dwordx4 v{VA+k}, {sr(S_X)}, 0 offen lds')
    for k in range(o.opre): odma(k)
    e('s_barrier')
    stamp(1)
    for k in range(o.opre, 12):
        if k == 11:
            e(f's_cmp_lg_u32 s{WAVE}, 0')
            e('s_cbranch_scc1 L_o11')
        odma(k)
    e('L_o11:')
    srd(e, S_WS, 12, WS_REC)
    srd(e, S_OUT, 8, 1152000, add=BOFF)
    srd(e, S_DBG, 10, 256)
    e('v_and_b32 v2, 15, v1')
    e('v_lshrrev_b32 v3, 4, v1')
    e('v_subrev_u32 v5, 4, v2')
    e('v_add_u32 v6, 8, v2')
    e('v_cmp_gt_u32 vcc, 4, v2')
    e('v_cmp_le_u32 s[46:47], 12, v2')
    e(f's_and_b32 s{TYP}, s{WAVE}, 1')
    e(f's_lshr_b32 s48, s{WAVE}, 1')
    e('v_cndmask_b32 v5, v5, v6, vcc')
    e('v_cndmask_b32 v5, v5, v2, s[46:47]')
    e('v_mul_u32_u24 v5, 9, v5')
    e('v_mul_u32_u24 v4, 288, v5')
    e('v_lshl_add_u32 v6, v3, 4, v4')
    e('v_and_b32 v7, 1, v3')
    e('v_lshl_add_u32 v7, v7, 4, v4')
    e('v_lshrrev_b32 v8, 1, v3')
    e('v_mul_u32_u24 v8, 2304, v8')
    e('v_add_u32 v7, v7, v8')
    e('v_add_u32 v7, 256, v7')
    e(f's_mul_i32 s49, s{TYP}, {X_D1}')
    e(f'v_add_u32 v{VXO}, {X_O}, v6')
    e(f'v_add_u32 v{VXOR}, {X_O}, v7')
    e(f'v_add_u32 v{VXD}, s49, v6')
    e(f'v_add_u32 v{VXDR}, s49, v7')
    e('v_lshlrev_b32 v6, 4, v1')
    e(f's_mul_i32 s49, s{WAVE}, 9216')
    e(f's_add_u32 s49, s49, {X_O}')
    e(f'v_add_u32 v{VEX}, s49, v6')
    e(f's_xor_b32 s49, s{WAVE}, 1')
    e('s_mul_i32 s49, s49, 9216')
    e(f's_add_u32 s49, s49, {X_O}')
    e(f'v_add_u32 v{VEXP}, s49, v6')
    e('v_and_b32 v8, 0x39, v1')
    e('v_bfe_u32 v9, v1, 1, 1')
    e('v_lshl_add_u32 v8, v9, 2, v8')
    e('v_bfe_u32 v9, v1, 2, 1')
    e('v_lshl_add_u32 v8, v9, 1, v8')
    e(f'v_lshlrev_b32 v{VWL}, 4, v8')
    e(f's_mul_i32 s49, s{TYP}, 576')
    e(f's_add_u32 s49, s49, s{XB}')
    e(f's_add_u32 s49, s49, {60*288}')
    e(f's_lshl_b32 s50, s{NB}, 5')
    e('s_add_u32 s49, s49, s50')
    e('s_lshl_b32 s50, s48, 4')
    e('s_add_u32 s49, s49, s50')
    e('v_mul_u32_u24 v8, 1152, v5')
    e('v_lshl_add_u32 v8, v3, 2, v8')
    e(f'v_add_u32 v{VOUT}, s49, v8')
    e(f'v_add_u32 v{VOUT+1}, 3456, v{VOUT}')
    e(f'v_add_u32 v{VOUT+2}, 6912, v{VOUT}')
    e(f's_lshl_b32 s49, s{NB}, 1')
    e('s_add_u32 s49, s49, s48')
    e('s_lshl_b32 s49, s49, 1')
    e(f's_add_u32 s49, s49, s{TYP}')
    e(f's_mul_i32 s{WSO}, s49, {NSTEP*1024}')
    e(f's_add_u32 s{WSO}, s{WSO}, {WOFF}')
    e(f's_mov_b32 s{C2L}, 0x4038aa3b'); e(f's_mov_b32 s{C2L+1}, 0x4038aa3b')
    e(f's_mov_b32 s{CNL}, 0xbfb8aa3b'); e(f's_mov_b32 s{CNL+1}, 0xbfb8aa3b')
    e(f's_mov_b32 s{C60}, 0x42700000')
    e(f'v_min_u32 v{VF}, 31, v1')
    e(f'v_lshlrev_b32 v{VF}, 7, v{VF}')
    e(f'v_min_u32 v{VF+6}, 47, v1')
    e(f'v_lshlrev_b32 v{VF+6}, 7, v{VF+6}')
    e(f'v_mov_b32 v{VF+2}, 1')
    e('s_lshl_b32 s46, s48, 2')
    e(f'v_add_u32 v{VF+5}, s46, v{VF+1}')
    e(f's_or_b32 s46, s2, s{WAVE}')
    e('v_or_b32 v2, s46, v1')
    e('v_cmp_eq_u32 vcc, 0, v2')
    e(f'v_mov_b32 v{VCL}, -16')
    e(f'v_mov_b32 v{VCL+1}, -16')
    e(f'v_mov_b32 v3, {NONCE}')
    e(f'v_cndmask_b32 v{VCL}, v{VCL}, 4, vcc')
    e(f'v_cndmask_b32 v{VCL+1}, v{VCL+1}, v3, vcc')
    e(f's_lshl_b32 s{FO}, s{TYP}, 13')
    if o.warmb:
        e(f's_cmp_eq_u32 s{TYP}, 1')
        e('s_cbranch_scc1 L_warmB')
        e('L_warmret:')
    e('s_waitcnt vmcnt(0) lgkmcnt(0)')
    stamp(2)
    e('s_mov_b64 exec, 1')
    e(f'ds_add_u32 v{VF+1}, v{VF+2} offset:8')
    e('s_mov_b64 exec, -1')
    e(f's_add_u32 s{TAG}, s{TAG}, {TAGINC}')
    e(f'v_mov_b32 v{VF+3}, s{TAG}')
    def flagwait(tag, vaddr, back):
        e(f'L_fw{tag}:')
        if o.diag and len(tag) == 2: e(f's_add_u32 s95, s95, {1 << (5 * int(tag[1]))}')
        e(f'buffer_load_dword v{VF+4}, v{vaddr}, {sr(S_WS)}, s{FO} offen sc1')
        e(f'ds_read_b32 v{VF+7}, v{VF+1} offset:12')
        e(f's_add_u32 s{NPOLL}, s{NPOLL}, 1')
        e('s_waitcnt vmcnt(0) lgkmcnt(0)')
        e(f'v_cmp_ne_u32 vcc, v{VF+3}, v{VF+4}')
        e(f'v_readfirstlane_b32 s46, v{VF+7}')
        e('s_nop 3')
        e(f's_cbranch_vccz {back}')
        e('s_cmp_lg_u32 s46, 0')
        e(f's_cbranch_scc1 {back}')
        e(f's_cmp_lg_u32 s{NPOLL}, {o.maxpoll}')
        e(f's_cbranch_scc1 L_fw{tag}')
        e(f'v_mov_b32 v{VF+7}, 0x10000')
        e('s_mov_b64 exec, 1')
        e(f'ds_add_u32 v{VF+1}, v{VF+7} offset:4')
        e('s_mov_b64 exec, -1')
        e(f's_branch L_fw{tag}')
    flagwait('0', VF, 'L_go')
    e('L_go:')
    stamp(3)
    e('L_gw:')
    e(f'ds_read_b32 v{VF+4}, v{VF+1} offset:8')
    e('s_waitcnt lgkmcnt(0)')
    e(f'v_cmp_ne_u32 vcc, 4, v{VF+4}')
    e('s_nop 4')
    e('s_cbranch_vccnz L_gw')
    stamp(4)
    e(f's_setprio {o.mprio}')
    e(f's_cmp_eq_u32 s{TYP}, 1')
    e('s_cbranch_scc1 L_typeB')

    ACC = {'P': 64, 'Q': 100}
    WR, TMP = 136, 224
    XRING = [200 + 4 * i for i in range(6)]
    XWIN = [4 + 4 * i for i in range(6)] + [240 + 4 * i for i in range(4)]
    VC = 28
    PF = o.pf
    GT = 98
    wflags = ' sc1' if o.wsc1 else ''
    def wreg(g):
        return ACC['P'] + 4 * (g - GT) if (o.tail and g >= GT) else WR + 4 * (g % 16)
    for typ, S in enumerate(streams()):
        if typ == 1:
            e('.p2align 6')
            if o.warmb: e('L_warmB:'); e('s_branch L_warmret')
            e('L_typeB:')
        ops = []
        vstart = {}
        lastv = GT - 1 if o.tail else NSTEP + 7
        for v in range(lastv + 1):
            vstart[v] = len(ops)
            for j in range(8, -1, -1):
                if 0 <= v - j < NSTEP: ops.append((v - j, j))
        ntail = len(ops)
        if o.tail:
            for j in range(9):
                for g in range(GT - j, NSTEP): ops.append((g, j))
        assert len(ops) == NSTEP * 9 and len(set(ops)) == len(ops)
        N = len(ops)
        def key(n):
            g, j = ops[n]
            pid, arr, ch, c, acc = S[g]
            k = (pid, arr, ch, c + j)
            if n >= ntail and g < GT: k = k + ((n,) if not o.hold else ('h',))
            return k
        first, last = {}, {}
        for n in range(N):
            first.setdefault(key(n), n); last[key(n)] = n
        wfirst, wlast = {}, {}
        for n, (g, j) in enumerate(ops):
            wfirst.setdefault(g, n); wlast[g] = n
        tasks = []
        for k, n0 in first.items():
            win = o.tail and k[2] == 'rem' and k[1] == 'D'
            la = o.xla if n0 < ntail else 6
            if win: la = 40 if k[3] < 8 else 12
            tasks.append([n0 - la, n0 - 1, 'X', k])
        for g in range(NSTEP):
            if o.tail and g >= GT: rel = vstart[78 + 2 * (g - GT)] + 3
            elif g < PF: rel = -100 + g
            else: rel = vstart[g - PF] + (0 if g < 16 else 0)
            if g >= 16 and not (o.tail and g >= GT): rel = max(rel, wlast[g - 16])
            tasks.append([rel, wfirst[g] - 1, 'W', g])
        def at(v, off=0): return vstart[v] + off
        firstD = min(n for n in range(N) if S[ops[n][0]][1] == 'D')
        lastO = max(n for n in range(N) if S[ops[n][0]][1] == 'O')
        lastP = {j: max(n for n in range(N) if ops[n][1] == j and S[ops[n][0]][4] == 'P') for j in range(9)}
        slow = []
        vused = set()
        def check(v, off, cnt, tag):
            tasks.append([at(v - 1, 3), at(v - 1, 8), 'L', (f'ds_read_b32 v{VC}, v{VF+1} offset:{off}', ('c', tag))])
            tasks.append([at(v, 0), at(v, 1), 'C', (f'v_cmp_ne_u32 vcc, {cnt}, v{VC}', ('c', tag))])
            tasks.append([at(v, 6), at(v, 7), 'I', [f's_cbranch_vccnz L_slow{typ}{tag}', f'L_back{typ}{tag}:']])
            slow.append((tag, off, cnt))
            vused.add(v)
            return at(v, 8)
        def add1(pos, off):
            tasks.append([pos, pos + 4, 'A', off])
        vD = [v for v in vstart if vstart[v] <= firstD - o.xla][-1] - 1
        okD = check(vD, 16, 4, 'D')
        assert okD <= firstD - o.xla
        add1(lastO, 20)
        VP = 47
        okR = check(VP, 20, 4, 'R')
        for j in range(9):
            assert lastP[j] + 12 < at(VP + 1 + j, 2)
            tasks.append([at(VP + 1 + j, 2), at(VP + 1 + j, 8), 'L', (f'ds_write_b128 v{VEX}, {vr(ACC["P"]+4*j,4)} offset:{1024*j}', ('pw', j))])
        tasks.append([at(VP + 10, 0), at(VP + 10, 4), 'A', 'pair'])
        VQ = VP + 13
        okP = check(VQ, 'pair', 2, 'P')
        for j in range(9):
            tasks.append([at(VQ + 1 + j, 2), at(VQ + 1 + j, 8), 'L', (f'ds_read_b128 {vr(TMP+4*(j&1),4)}, v{VEXP} offset:{1024*j}', ('pr', j))])
            v = VQ + 2 + j
            pos = at(v, 8 - (j + 2) - 1) if j <= 6 else at(v, 8 - (j - 7) - 1)
            sh = 1 if j >= 7 else 0
            tasks.append([pos - 1 + sh, pos - 1 + sh, 'Q', (j, 0)])
            tasks.append([pos + sh, pos + sh, 'Q', (j, 1)])
        if typ == 0:
            tasks.append([at(72, 4), at(72, 8), 'S', f'buffer_store_dword v{VCL+1}, v{VCL}, {sr(S_DBG)}, 0 offen sc1'])
            tasks.append([at(92, 4), at(92, 8), 'S', f'buffer_store_dword v{VF+3}, v{VCL+1}, {sr(S_WS)}, 0 offen sc1'])
        fslow = []
        passes = {}
        for g in range(NSTEP): passes.setdefault(S[g][0], g)
        need = [(passes[1], VF, 32 + 64 * typ), (32, VF + 6, 128), (passes[4], VF, 176), (passes[5], VF, 208), (passes[6], VF + 6, 240)]
        for ci, (gn, va, idx) in enumerate(need):
            v = gn - o.pfcs[ci] - 1
            while v in vused: v -= 1
            tasks.append([at(v - o.flead, 4), at(v - o.flead, 8), 'F', (va, idx, ci)])
            tasks.append([at(v, 0), at(v, 1), 'G', ci])
            tasks.append([at(v, 6), at(v, 7), 'I', [f's_cbranch_vccnz L_fw{typ}{ci}', f'L_fb{typ}{ci}:']])
            fslow.append((ci, va))
            assert v not in vused, v
            for t in tasks:
                if t[2] == 'W' and (t[3] >= gn): t[0] = max(t[0], at(v, 8))
        tasks.append([at(v + 1, 2), at(v + 1, 8), 'A', 4])
        if typ == 0:
            for lvl, v in enumerate(o.trig): tasks.append([at(v, 2), at(v, 8), 'P', lvl + 1])
        tasks.sort(key=lambda t: (t[0], t[1]))
        vq, lq = [], []
        dirty = [False]
        xreg, busy = {}, {}
        wn = [0]
        since = {}
        fill = []
        def em(x):
            e(x)
            if not x.endswith(':'):
                for jj in since: since[jj] += 1
        def lwait(tag):
            if tag not in lq: return
            i = lq.index(tag)
            em(f's_waitcnt lgkmcnt({0 if dirty[0] else len(lq)-1-i})')
            if dirty[0]: lq.clear(); dirty[0] = False
            else: del lq[:i + 1]
        def vwait(g):
            if g not in vq: return
            i = vq.index(g)
            em(f's_waitcnt vmcnt({len(vq)-1-i})')
            del vq[:i + 1]
        def run(t, n):
            kind, p = t[2], t[3]
            if kind == 'X':
                pool = XWIN if (o.tail and p[2] == 'rem' and p[1] == 'D') else XRING
                if p[-1] == 'h':
                    pool = [WR + 4 * (g % 16) for g in range(GT - 16, GT - 8)]
                    for g in range(GT - 16, GT - 8): busy.setdefault(WR + 4 * (g % 16), wlast[g])
                r = [x for x in pool if busy.get(x, -1) <= n]
                assert r, ('no x register', p, n)
                r = min(r, key=lambda x: busy.get(x, -1))
                busy[r] = last[p]; xreg[p] = r
                arr, ch, s_ = p[1], p[2], p[3]
                if ch == 'rem': em(f'ds_read_b128 {vr(r,4)}, v{VXOR if arr == "O" else VXDR} offset:{288*s_}')
                else: em(f'ds_read_b128 {vr(r,4)}, v{VXO if arr == "O" else VXD} offset:{64*ch+288*s_}')
                lq.append(p)
            elif kind == 'W':
                g = p
                if o.tail and g >= GT:
                    em(f'buffer_load_dwordx4 {vr(wreg(g),4)}, v{VWL}, {sr(S_WS)}, s{WSO+27} offen offset:{1024*((g-GT)%4)}{wflags}')
                    if g == GT + 3: em(f's_add_u32 s{WSO+27}, s{WSO+27}, 4096')
                else:
                    assert g == wn[0]; wn[0] += 1
                    em(f'buffer_load_dwordx4 {vr(wreg(g),4)}, v{VWL}, {sr(S_WS)}, s{WSO} offen offset:{1024*(g%4)}{wflags}')
                    if g % 4 == 3: em(f's_add_u32 s{WSO}, s{WSO}, 4096')
                vq.append(g)
            elif kind == 'L':
                em(p[0].replace('offset:pair', 'offset:24').replace(f'v{VF+1} offset:24', f'v{VF+5} offset:24')); lq.append(p[1])
            elif kind == 'C':
                lwait(p[1]); em(p[0])
            elif kind == 'I':
                for x in p: em(x)
            elif kind == 'A':
                em('s_mov_b64 exec, 1')
                if p == 'pair': em(f'ds_add_u32 v{VF+5}, v{VF+2} offset:24')
                else: em(f'ds_add_u32 v{VF+1}, v{VF+2} offset:{p}')
                em('s_mov_b64 exec, -1')
                lq.append(('a', p))
            elif kind == 'Q':
                p, hf = p
                lwait(('pr', p))
                q = ACC['Q'] + 4 * p; t_ = TMP + 4 * (p & 1)
                for i in (2 * hf, 2 * hf + 1): em(f'v_add_f32 v{q+i}, v{q+i}, v{t_+i}')
            elif kind == 'S':
                em(p); vq.append(('s', n))
            elif kind == 'F':
                em(f's_mov_b32 s{FO}, {128*p[1]}')
                em(f'buffer_load_dword v{VF+4}, v{p[0]}, {sr(S_WS)}, s{FO} offen {o.fflags}'); vq.append(('f', p[2]))
            elif kind == 'G':
                vwait(('f', p)); em(f'v_cmp_ne_u32 vcc, v{VF+3}, v{VF+4}')
            elif kind == 'P':
                em(f'v_mov_b32 v{VF+7}, {p}')
                em('s_mov_b64 exec, 1')
                em(f'ds_max_u32 v{VF+1}, v{VF+7}')
                em('s_mov_b64 exec, -1')
                lq.append(('p', p))
        def epi(j, pk):
            q = ACC['Q'] + 4 * j
            t = TMP + 8 * (j & 1)
            I = []
            if pk:
                I.append(f'v_pk_mul_f32 {vr(t,2)}, {vr(q,2)}, s[{C2L}:{C2L+1}]')
                I.append(f'v_pk_mul_f32 {vr(t+2,2)}, {vr(q+2,2)}, s[{CNL}:{CNL+1}]')
            else:
                for i in (0, 1): I.append(f'v_mul_f32 v{t+i}, s{C2L}, v{q+i}')
                for i in (2, 3): I.append(f'v_mul_f32 v{t+i}, s{CNL}, v{q+i}')
            I.append(f'v_min_f32 v{t}, s{C60}, v{t}')
            I.append(f'v_min_f32 v{t+1}, s{C60}, v{t+1}')
            for i in (0, 1, 2, 3): I.append(f'v_exp_f32 v{t+i}, v{t+i}')
            if pk:
                I.append(f'v_pk_add_f32 {vr(t+4,2)}, {vr(t,2)}, 1.0 op_sel_hi:[1,0]')
                I.append(f'v_pk_add_f32 {vr(t+6,2)}, {vr(t,2)}, -1.0 op_sel_hi:[1,0]')
                I.append(f'v_pk_fma_f32 {vr(t+4,2)}, {vr(t+4,2)}, {vr(t+2,2)}, {vr(t+4,2)}')
            else:
                for i in (0, 1): I.append(f'v_add_f32 v{t+4+i}, 1.0, v{t+i}')
                for i in (0, 1): I.append(f'v_fma_f32 v{t+4+i}, v{t+4+i}, v{t+2+i}, v{t+4+i}')
            I.append(f'v_rcp_f32 v{t+4}, v{t+4}')
            I.append(f'v_rcp_f32 v{t+5}, v{t+5}')
            if pk:
                I.append('s_nop 0')
                I.append(f'v_pk_mul_f32 {vr(t+6,2)}, {vr(t+6,2)}, {vr(t+4,2)}')
            else:
                for i in (0, 1): I.append(f'v_add_f32 v{t+6+i}, -1.0, v{t+i}')
                for i in (0, 1): I.append(f'v_mul_f32 v{t+6+i}, v{t+6+i}, v{t+4+i}')
            I.append(f'v_cvt_pk_bf16_f32 v{q}, v{t+6}, v{t+7}')
            I.append(f'buffer_store_dword v{q}, v{VOUT + j//3}, {sr(S_OUT)}, 0 offen offset:{1152*(j%3)} {o.oflags}')
            return I
        def cost(x): return 2 if x.startswith(('v_exp', 'v_rcp', 'buffer')) else 1
        e(f's_add_u32 s{WSO+27}, s{WSO}, {GT*1024}')
        while tasks and tasks[0][0] < 0: run(tasks.pop(0), -1)
        inv = {n: v for v, n in vstart.items()}
        lastop = {j: max(n for n in range(N) if ops[n][1] == j) for j in range(9)}
        for n, (g, j) in enumerate(ops):
            if n in inv and o.padto and o.padev == 'm5' and inv[n] == o.padstep:
                e('s_memrealtime s[100:101]'); dirty[0] = True
            if n in inv and o.diag:
                v = inv[n]
                if o.diag == 2 and v in o.marks:
                    kk = o.marks.index(v)
                    e(f's_memtime s[{ST0+2*kk}:{ST0+2*kk+1}]'); dirty[0] = True
                if o.diag in (1, 4) and v == 33: stamp(5); stamp(6); dirty[0] = True
            k = key(n)
            assert k in xreg, (k, n)
            lwait(k); vwait(g)
            acc = S[g][4]
            d = ACC[acc] + 4 * j
            if g == 0: cs = '0'
            elif acc == 'Q' and S[g-1][4] == 'P': cs = vr(ACC['P'] + 4 * j, 4)
            else: cs = vr(d, 4)
            em(f'v_mfma_f32_16x16x32_bf16 {vr(d,4)}, {vr(wreg(g),4)}, {vr(xreg[k],4)}, {cs}')
            if n == lastop[j]: since[j] = 0
            budget = 2
            TC = {'X': 1, 'W': 2, 'L': 2, 'C': 1, 'I': 0, 'A': 1, 'Q': 2, 'S': 2, 'F': 2, 'G': 1, 'P': 2}
            while True:
                ready = [t for t in tasks if t[0] <= n]
                if not ready: break
                t = min(ready, key=lambda t: t[1])
                assert t[1] >= n, ('late', t, n)
                if TC[t[2]] > budget and t[1] > n:
                    fit = [u for u in ready if TC[u[2]] <= budget]
                    if not fit: break
                    t = min(fit, key=lambda t: t[1])
                tasks.remove(t); run(t, n); budget -= TC[t[2]]
            for jj in sorted(since):
                if 8 <= since[jj] < 10**6:
                    fill += epi(jj, False); since[jj] = 10**6
            budget += o.nfill - 2
            while fill and budget >= cost(fill[0]):
                budget -= cost(fill[0]); em(fill.pop(0))
        assert not tasks
        stamp(7)
        while fill: em(fill.pop(0))
        for jj in [jj for jj in sorted(since) if since[jj] < 10**6]:
            if since[jj] < 8: em(f's_nop {8-since[jj]-1}')
            for x in epi(jj, True): em(x)
        stamp(8)
        if o.padto and o.padev[0] == 'm': padloop(typ)
        if o.diag == 1:
            e('s_waitcnt vmcnt(0)')
            stamp(9)
            dump(10)
        if o.diag == 2:
            kk = len(o.marks)
            e(f's_memtime s[{ST0+2*kk}:{ST0+2*kk+1}]')
            dump(10)
        e('s_endpgm')
        for tag, off, cnt in slow:
            e(f'L_slow{typ}{tag}:')
            e(f'ds_read_b32 v{VC}, v{VF+5 if off == "pair" else VF+1} offset:{24 if off == "pair" else off}')
            e('s_waitcnt lgkmcnt(0)')
            e(f'v_cmp_ne_u32 vcc, {cnt}, v{VC}')
            e('s_nop 4')
            e(f's_cbranch_vccnz L_slow{typ}{tag}')
            e(f's_branch L_back{typ}{tag}')
        for ci, va in fslow: flagwait(f'{typ}{ci}', va, f'L_fb{typ}{ci}')

    mark['help0'] = len(e.L)
    if not o.hfirst: e('.p2align 6')
    e('L_helper:')
    role[0] = 'h'
    e(f's_setprio {o.hprio}')
    e(f's_sub_u32 s{TW0}, s{WAVE}, 4')
    e(f's_mov_b32 s{TW1}, s{WAVE}')
    e(f's_sub_u32 s{PAIR}, s2, {NPROD}')
    e(f's_cselect_b32 s{PAIR}, s2, s{PAIR}')
    e(f's_mov_b32 s{MODE}, 0')
    e(f's_mov_b32 s{NOTASK}, s2')
    e(f's_mov_b32 s{HAS3}, s{TW0}')
    e(f's_lshl_b32 s{SCRB}, s{TW0}, 12')
    e(f's_add_u32 s{SCRB}, s{SCRB}, {SCR}')
    e('L_prod:')
    T = [(28, TW0, 2, 52, 0), (36, TW1, 4, 53, 2048), (44, TW2, 6, 54, 16384)]
    c, kp, q, cc, kk, t = 46, 47, 48, 49, 50, 51
    b = TS
    e('v_mov_b32 v19, 4320')
    e('v_and_b32 v23, 3, v1')
    e('v_lshrrev_b32 v24, 3, v1')
    e('v_mul_u32_u24 v24, 576, v24')
    e('v_bfe_u32 v25, v1, 2, 1')
    e('v_mul_u32_u24 v25, 288, v25')
    e('v_add_u32 v24, v24, v25')
    for (vb, sw, vl, vs, so) in T:
        e(f'v_lshl_add_u32 v8, s{sw}, 2, v23' if sw != TW2 else 'v_add_u32 v8, 32, v23')
        e('v_cmp_le_u32 vcc, 18, v8')
        e(f'v_lshl_add_u32 v{vl}, v8, 4, v24')
        e(f'v_add_u32 v9, v{vl}, v19')
        e(f'v_cndmask_b32 v{vl}, v{vl}, v9, vcc')
    e(f's_and_b32 s{c}, s{PAIR}, 15')
    e(f's_lshr_b32 s{kp}, s{PAIR}, 4')
    e(f's_mul_i32 s{b}, s{c}, 165888')
    e(f's_mul_i32 s{t}, s{kp}, 9216')
    e(f's_add_u32 s{b}, s{b}, s{t}')
    e(f's_add_u32 s{b+1}, s{b}, 82944')
    e(f's_mov_b32 s{S_W+2}, 2571264')
    e(f's_mov_b32 s{S_W+3}, 0x20000')
    e(f's_mov_b32 s{S_WO+3}, 0x20000')
    e(f's_cmp_lg_u32 s{c}, 15')
    e(f's_cselect_b32 s{S_WO+2}, 2571264, 0')
    e(f's_mov_b32 m0, s{SCRB}')
    e('s_waitcnt lgkmcnt(0)')
    e(f's_mov_b32 s{S_W}, s6')
    e(f's_and_b32 s{S_W+1}, s7, 0xffff')
    e(f's_mov_b32 s{S_WO}, s6')
    e(f's_and_b32 s{S_WO+1}, s7, 0xffff')
    e(f's_cmp_ge_u32 s{NOTASK}, {NTASK}')
    e('s_cbranch_scc1 L_a3')
    def cond3(lbl):
        e(f's_cmp_lg_u32 s{HAS3}, 0')
        e(f's_cbranch_scc1 {lbl}')
    for ti, (vb, sw, vl, vs, so) in enumerate(T):
        if ti == 2: cond3('L_a3')
        if ti == 1: e('s_addk_i32 m0, 1024'); e('s_nop 0')
        e(f'buffer_load_dwordx4 v{vl}, {sr(S_W)}, s{b} offen lds')
        e('s_addk_i32 m0, 1024')
        e('s_nop 0')
        e(f'buffer_load_dwordx4 v{vl}, {sr(S_WO)}, s{b+1} offen lds')
        if ti == 1: e(f's_addk_i32 m0, {16384-3072}')
    e('L_a3:')
    stamp(1)
    e(f's_cmp_lg_u32 s{MODE}, 0')
    e('s_cbranch_scc1 L_a4')
    e(f's_load_dword s{TAG}, s[12:13], {NONCE}')
    e(f's_lshr_b32 s{EARLY}, 0x33, s{kp}')
    e(f's_and_b32 s{EARLY}, s{EARLY}, 1')
    e(f's_lshl_b32 s{t}, s{kp}, 1')
    e(f's_lshr_b32 s{YT}, 260688, s{t}')
    e(f's_and_b32 s{YT}, s{YT}, 3')
    e(f's_cmp_ge_u32 s2, {NPROD}')
    e(f's_cselect_b32 s{XK}, 1, 0')
    e(f's_cselect_b32 s{EARLY}, 0, s{EARLY}')
    e(f's_cselect_b32 s{t}, 0, s{YT}')
    e(f's_cmp_lt_u32 s2, {NTASK}')
    e(f's_cselect_b32 s{YT}, s{XK}, 0')
    e(f's_lshl_b32 s{YT}, s{YT}, 2')
    e(f's_or_b32 s{YT}, s{YT}, s{t}')
    e(f's_cmp_lg_u32 s{EARLY}, 0')
    e('s_cbranch_scc1 L_a4')
    e('s_barrier')
    e('L_a4:')
    e(f's_mov_b32 s{MASK}, 0xffff0000')
    e(f's_mov_b32 s{NPOLL}, 0')
    srd(e, S_WS, 12, WS_REC)
    srd(e, S_DBG, 10, 256)
    e(f'v_mov_b32 v10, {CNT}')
    e(f'v_mov_b32 v20, {(256 - 18*2*NSTEP*1024) & 0xffffffff}')
    e(f'v_mov_b32 v26, {2*NSTEP*1024}')
    e('v_bfe_u32 v21, v1, 2, 2')
    e('v_lshlrev_b32 v21, 7, v21')
    e('v_and_b32 v22, 1, v1')
    e('v_lshl_add_u32 v21, v22, 6, v21')
    e('v_bfe_u32 v22, v1, 1, 1')
    e('v_lshl_add_u32 v21, v22, 3, v21')
    e('v_lshrrev_b32 v22, 4, v1')
    e('v_lshl_add_u32 v21, v22, 4, v21')
    e(f'v_add_u32 v21, s{SCRB}, v21')
    e('v_and_b32 v25, 15, v1')
    e('v_lshlrev_b32 v25, 4, v25')
    for (vb, sw, vl, vs, so) in T:
        e(f'v_lshl_add_u32 v8, s{sw}, 2, v22' if sw != TW2 else 'v_add_u32 v8, 32, v22')
        e('v_cmp_le_u32 vcc, 18, v8')
        e(f'v_mad_u32_u24 v{vs}, v8, v26, v25')
        e(f'v_add_u32 v9, v{vs}, v20')
        e(f'v_cndmask_b32 v{vs}, v{vs}, v9, vcc')
    e(f's_lshr_b32 s{q}, s{kp}, 1')
    e(f's_and_b32 s{cc}, s{c}, 7')
    e(f's_lshr_b32 s{kk}, s{c}, 3')
    e(f's_and_b32 s{t}, s{kp}, 1')
    e(f's_cmp_eq_u32 s{kp}, 8')
    e(f's_cselect_b32 s{cc}, s{cc}, s{c}')
    e(f's_cselect_b32 s{kk}, s{kk}, s{t}')
    e(f's_lshl_b32 s{kk}, s{kk}, 9')
    e(f's_add_u32 s{kk}, s{kk}, {WOFF}')
    e(f's_lshl_b32 s{t}, s{q}, 4')
    e(f's_add_u32 s{b+2}, s{t}, s{cc}')
    e(f's_sub_u32 s{b+3}, s{b+2}, s{q}')
    e(f's_cmp_ge_u32 s{q}, 2')
    e(f's_cselect_b32 s{b+4}, 74, 0')
    e(f's_add_u32 s{b+4}, s{b+4}, s{b+2}')
    e(f's_cmp_lt_u32 s{cc}, 2')
    e(f's_cselect_b32 s{t}, 32, 136')
    e(f's_add_u32 s{t}, s{t}, s{cc}')
    e(f's_cmp_eq_u32 s{kp}, 8')
    e(f's_cselect_b32 s{b+4}, s{t}, s{b+4}')
    e(f's_add_u32 s{b+2}, s{b+2}, 34')
    e(f's_add_u32 s{b+3}, s{b+3}, 144')
    for k in (2, 3, 4):
        e(f's_lshl_b32 s{b+k}, s{b+k}, 10')
        e(f's_add_u32 s{b+k}, s{b+k}, s{kk}')
    e(f's_cmp_eq_u32 s{kp}, 8')
    e(f's_cselect_b32 s{t}, 1, 2')
    e(f's_cmp_eq_u32 s{c}, 15')
    e(f's_cselect_b32 s{b+5}, s{t}, 0')
    e(f's_lshl_b32 s46, s{WAVE}, 2')
    e(f's_add_u32 s46, s46, {CNT+16}')
    e('v_mov_b32 v55, s46')
    e('v_mov_b32 v27, 0')
    e('v_mov_b32 v9, 4')
    e('s_waitcnt vmcnt(0) lgkmcnt(0)')
    stamp(2)
    e(f's_cmp_ge_u32 s{NOTASK}, {NTASK}')
    e('s_cbranch_scc1 L_x9')
    e(f's_cmp_lg_u32 s{WAVE}, 4')
    e('s_cbranch_scc1 L_a5')
    e('s_mov_b64 exec, 1')
    e(f'buffer_load_dword v27, v9, {sr(S_DBG)}, 0 offen sc1')
    e('s_mov_b64 exec, -1')
    e('L_a5:')
    for (vb, sw, vl, vs, so) in T:
        for tap in range(2):
            for half in range(2):
                e(f'ds_read_b64_tr_b16 {vr(vb+4*tap+2*half,2)}, v21 offset:{so+1024*tap+512*half}')
    nlab = [0]
    def st01(vb, vs):
        nlab[0] += 1
        e(f'buffer_store_dwordx4 {vr(vb,4)}, v{vs}, {sr(S_WS)}, s{b+2} offen sc1')
        e(f's_cmp_eq_u32 s{b+5}, 2')
        e(f's_cbranch_scc1 L_skip{nlab[0]}')
        e(f'buffer_store_dwordx4 {vr(vb+4,4)}, v{vs}, {sr(S_WS)}, s{b+3} offen sc1')
        e(f'L_skip{nlab[0]}:')
    def st01all(lbl):
        st01(T[0][0], T[0][3]); st01(T[1][0], T[1][3])
        cond3(lbl)
        st01(T[2][0], T[2][3])
    def dosum(vb, tb):
        for i in range(8):
            e(f'v_lshlrev_b32 v{tb+2*i}, 16, v{vb+i}')
            e(f'v_and_b32 v{tb+2*i+1}, s{MASK}, v{vb+i}')
        for i in range(4):
            e(f'v_pk_add_f32 {vr(tb+2*i,2)}, {vr(tb+2*i,2)}, {vr(tb+8+2*i,2)}')
        for i in range(4):
            e(f'v_cvt_pk_bf16_f32 v{tb+16+i}, v{tb+2*i}, v{tb+2*i+1}')
    def ldswait(off, cmp, operand, tag, slp):
        e(f'L_lw{tag}:')
        e(f'ds_read_b32 v11, v10 offset:{off}')
        e('s_waitcnt lgkmcnt(0)')
        e(f'v_cmp_{cmp}_u32 vcc, {operand}, v11')
        e('s_nop 4')
        e(f's_cbranch_vccnz L_lx{tag}')
        e(f's_sleep {slp}')
        e(f's_branch L_lw{tag}')
        e(f'L_lx{tag}:')
    e(f's_or_b32 s46, s{EARLY}, s{MODE}')
    e('s_cbranch_scc1 L_x1')
    e(f's_cmp_lg_u32 s{XK}, 0')
    e('s_cbranch_scc1 L_x9')
    ldswait(8, 'eq', 4, 'a', 1)
    e('L_x1:')
    for ti, (vb, sw, vl, vs, so) in enumerate(T):
        if ti == 2: cond3('L_x3')
        e(f's_waitcnt lgkmcnt({8-4*ti})')
        dosum(vb, 64 + 24 * ti)
        e(f'buffer_store_dwordx4 {vr(64+24*ti+16,4)}, v{vs}, {sr(S_WS)}, s{b+4} offen sc1')
    e('L_x3:')
    e(f's_cmp_eq_u32 s{MODE}, 0')
    e('s_cbranch_scc1 L_x9')
    e('L_x2:')
    e('s_waitcnt lgkmcnt(0)')
    st01all('L_x4')
    e('L_x4:')
    e(f's_cmp_eq_u32 s{MODE}, 0')
    e('s_cbranch_scc1 L_x9')
    e('s_waitcnt vmcnt(0)')
    e(f's_add_u32 s{PAIR}, s{PAIR}, 1')
    e(f's_cmp_lt_u32 s{PAIR}, {NPROD}')
    e('s_cbranch_scc1 L_prod')
    e('v_mov_b32 v11, 1')
    e('ds_write_b32 v10, v11 offset:12')
    e('s_endpgm')
    e('L_x9:')
    stamp(3)
    decode()
    e('v_subrev_u32 v4, 256, v0')
    e('v_min_u32 v4, 251, v4')
    e('v_mul_u32_u24 v3, 3641, v4')
    e('v_lshrrev_b32 v3, 16, v3')
    e('v_mul_u32_u24 v2, 18, v3')
    e('v_sub_u32 v2, v4, v2')
    e(f'v_mul_u32_u24 v3, {R}, v3')
    e(f'v_min_u32 v3, {160-R}, v3')
    e('v_mul_u32_u24 v4, 1152, v3')
    e('v_lshl_add_u32 v4, v2, 4, v4')
    e(f'v_add_u32 v12, s{XB}, v4')
    e('v_mul_u32_u24 v18, 288, v3')
    e('v_lshl_add_u32 v18, v2, 4, v18')
    e(f'v_add_u32 v19, {X_D1}, v18')
    srd(e, S_X, 4, 1152000, add=BOFF)
    e(f's_add_u32 s46, s{TAG}, {TAGINC}')
    e('v_mov_b32 v56, s46')
    e('s_lshl_b32 s46, s2, 7')
    e('v_mov_b32 v58, s46')
    e(f's_add_u32 s46, s{PAIR}, {NPROD}')
    e('s_lshl_b32 s46, s46, 7')
    e('v_mov_b32 v59, s46')
    def publish(slot, vflag, tag, first):
        e('s_mov_b64 exec, 1')
        e('s_waitcnt vmcnt(0)')
        if first: stamp(4)
        e('v_cmp_ne_u32 vcc, 0, v27')
        e('v_not_b32 v57, v56')
        e('s_nop 0')
        e('v_cndmask_b32 v57, v56, v57, vcc')
        e(f'ds_write_b32 v55, v57 offset:{slot}')
        e(f'ds_read_b128 v[20:23], v10 offset:{32+slot}')
        e('s_waitcnt lgkmcnt(0)')
        for i in range(4): e(f'v_xor_b32 v{20+i}, v{20+i}, v56')
        e('v_or3_b32 v20, v20, v21, v22')
        e('v_or_b32 v20, v20, v23')
        e('v_cmp_eq_u32 vcc, 0, v20')
        e('s_and_b64 exec, exec, vcc')
        e(f's_cbranch_execz L_nl{tag}')
        e(f'buffer_store_dword v56, v{vflag}, {sr(S_WS)}, 0 offen sc1')
        e(f'L_nl{tag}:')
        e('s_mov_b64 exec, -1')
    e(f's_cmp_ge_u32 s2, {NPROD}')
    e('s_cbranch_scc1 L_noflag')
    publish(0, 58, 'x', True)
    e(f's_cmp_eq_u32 s{EARLY}, 0')
    e('s_cbranch_scc1 L_noflag')
    e('s_barrier')
    e('L_noflag:')
    e(f's_setprio {o.hprio2}')
    RAW, ORAW = 64, 120
    EU = [184, 192]
    OU, DT, DO = 200, 208, 216
    xi = [0]
    NL = R + 1
    def eload():
        k = xi[0]
        if k >= NL: return
        a_ = 12
        if k:
            a_ = 13 + (k & 3)
            e(f'v_add_u32 v{a_}, {1152*k}, v12')
        e(f'buffer_load_dwordx4 {vr(RAW+4*k,4)}, v{a_}, {sr(S_X)}, 0 offen')
        xi[0] += 1
    if o.etouch:
        e(f's_cmp_lt_u32 s2, {NTASK}')
        e('s_cbranch_scc1 L_net')
        if o.etouch == 2:
            e(f's_and_b32 s46, s{NB}, 1')
            e(f's_mul_i32 s46, s46, {1152*6}')
            e('v_add_u32 v12, s46, v12')
            for _ in range(7): eload()
            e('v_subrev_u32 v12, s46, v12')
        else:
            for _ in range(NL): eload()
        e('s_waitcnt vmcnt(0)')
        e('L_net:')
        xi[0] = 0
    for _ in range(o.epre): eload()
    e('s_waitcnt lgkmcnt(0)')
    stamp(5)
    ldswait(8, 'eq', 4, 'o', 1)
    for _ in range(max(0, o.ein - o.epre)): eload()
    if o.yrow[4] < 0:
        e(f's_cmp_lg_u32 s{YT}, 4')
        e('s_cbranch_scc1 L_yd')
        st01all('L_yd2')
        e('L_yd2:')
        publish(16, 59, 'yd', False)
        if o.diag == 1: stamp(8)
        e('L_yd:')
    stamp(6)
    for j in range(R):
        e(f'ds_read_b128 {vr(ORAW+4*j,4)}, v18 offset:{X_O+288*j}')
    def unpack(dst, s_):
        for i in range(4):
            e(f'v_lshlrev_b32 v{dst+2*i}, 16, v{s_+i}')
            e(f'v_and_b32 v{dst+2*i+1}, s{MASK}, v{s_+i}')
    def unpackE(dst, k):
        e(f's_waitcnt vmcnt({xi[0]-1-k})')
        unpack(dst, RAW + 4 * k)
        eload()
    def diff(eu, out):
        if o.nopk:
            for i in range(8): e(f'v_sub_f32 v{DT+i}, v{eu+i}, v{OU+i}')
        else:
          for i in range(4):
            e(f'v_pk_add_f32 {vr(DT+2*i,2)}, {vr(eu+2*i,2)}, {vr(OU+2*i,2)} neg_lo:[0,1] neg_hi:[0,1]')
        for i in range(4):
            e(f'v_cvt_pk_bf16_f32 v{out+i}, v{DT+2*i}, v{DT+2*i+1}')
    unpackE(EU[0], 0)
    e('s_waitcnt lgkmcnt(0)')
    for j in range(R):
        o0 = DO + 8 * (j & 1)
        unpack(OU, ORAW + 4 * j)
        diff(EU[j & 1], o0)
        e(f'ds_write_b128 v18, {vr(o0,4)} offset:{X_D0+288*j}')
        unpackE(EU[(j + 1) & 1], j + 1)
        diff(EU[(j + 1) & 1], o0 + 4)
        e(f'ds_write_b128 v19, {vr(o0+4,4)} offset:{288*j}')
        for lvl, (rs, rp) in ((1, o.yrow[0:2]), (2, o.yrow[2:4]), (4, o.yrow[4:6])):
            if j == rs:
                e(f's_cmp_lg_u32 s{YT}, {lvl}')
                e(f's_cbranch_scc1 L_ys{lvl}')
                st01all(f'L_ys{lvl}')
                e(f'L_ys{lvl}:')
            if j == rp:
                e(f's_cmp_lg_u32 s{YT}, {lvl}')
                e(f's_cbranch_scc1 L_yp{lvl}')
                publish(16, 59, f'y{lvl}', False)
                if o.diag == 1: stamp(8)
                e(f'L_yp{lvl}:')
    e('s_waitcnt lgkmcnt(0)')
    stamp(7)
    e('v_mov_b32 v11, 1')
    e('s_mov_b64 exec, 1')
    e('ds_add_u32 v10, v11 offset:16')
    e('s_mov_b64 exec, -1')
    e(f's_cmp_lg_u32 s{YT}, 3')
    e('s_cbranch_scc1 L_noy')
    e(f's_setprio {o.hprio}')
    e('L_yw:')
    e('ds_read_b64 v[20:21], v10')
    e('s_waitcnt lgkmcnt(0)')
    e('v_lshrrev_b32 v21, 16, v21')
    e('v_or_b32 v20, v20, v21')
    e('v_cmp_ne_u32 vcc, 0, v20')
    e('s_nop 4')
    e('s_cbranch_vccnz L_yx')
    e('s_sleep 4')
    e('s_branch L_yw')
    e('L_yx:')
    st01all('L_y4')
    e('L_y4:')
    publish(16, 59, 'y', False)
    if o.diag == 1: stamp(8)
    e('L_noy:')
    e(f's_cmp_lg_u32 s{WAVE}, 4')
    e('s_cbranch_scc1 L_hend')
    e('L_guard:')
    e('ds_read_b32 v11, v10 offset:4')
    e('s_waitcnt lgkmcnt(0)')
    e('v_readfirstlane_b32 s46, v11')
    e('s_nop 3')
    e('s_cmp_eq_u32 s46, 4')
    e('s_cbranch_scc1 L_hend')
    e('s_cmp_lt_u32 s46, 0x10000')
    e('s_cbranch_scc0 L_rescue')
    e('s_sleep 16')
    e('s_branch L_guard')
    e('L_rescue:')
    e(f's_mov_b32 s{MODE}, 1')
    e(f's_mov_b32 s{HAS3}, 1')
    e(f's_mov_b32 s{NOTASK}, 0')
    e(f's_lshr_b32 s{TW0}, s{NB}, 1')
    e(f's_add_u32 s{TW1}, s{NB}, 9')
    e(f's_lshr_b32 s{TW1}, s{TW1}, 1')
    e(f's_mov_b32 s{PAIR}, 0')
    e('s_branch L_prod')
    e('L_hend:')
    if o.padto and o.padev[0] == 'h': padloop('h')
    if o.diag == 1:
        stamp(9)
        dump(10)
    e('L_end:')
    e('s_endpgm')
    if o.hfirst:
        m0, h0 = mark['main0'], mark['help0']
        e.L = e.L[:m0] + e.L[h0:] + ['.p2align 6'] + e.L[m0:h0]
    e('L_codeend:')
    e('.section .rodata,"a"')
    e('.p2align 6')
    e(f'.amdhsa_kernel {KN}')
    for x in ['next_free_vgpr 256', 'next_free_sgpr 102', 'accum_offset 256', 'group_segment_fixed_size 0', 'kernarg_size 40',
              'user_sgpr_count 2', 'user_sgpr_kernarg_segment_ptr 1', 'system_sgpr_workgroup_id_x 1']:
        e('  .amdhsa_' + x)
    e('.end_amdhsa_kernel')
    n = haz.check(e.L)
    if n: print(f'{n} hazards', file=sys.stderr)
    return f'; @launch grid=({NWG},1,1) block=(512,1,1) lds={LDS_BYTES}\n' + e.text()

def opts(argv=None):
    ap = argparse.ArgumentParser()
    ap.add_argument('-o', default='k.s')
    for nm, d in [('diag', 0), ('pf', 8), ('wsc1', 0), ('nfill', 2), ('fstride', 128), ('sleep', 0), ('maxpoll', 3000), ('nopoll', 0),
                  ('hprio', 3), ('hprio2', 0), ('mprio', 2), ('epre', 0), ('ein', 7), ('vbd', 33), ('nopk', 1), ('padto', 0), ('npdelay', 0), ('opre', 0), ('etouch', 2), ('orev', 1), ('b0late', 1), ('dec', 1), ('tail', 1), ('xla', 9), ('hold', 1), ('prest', 0), ('xslot', 0), ('noclosed', 0), ('cpf', 1), ('hfirst', 1), ('warmb', 1), ('wsfirst', 0), ('flead', 6), ('padstep', 33), ('probe', 0), ('probeoff', 0x4000000)]:
        ap.add_argument('--' + nm, type=int, default=d)
    ap.add_argument('--oflags', default='')
    ap.add_argument('--pmap', default='18,18,18,18,18,18,18,18')
    ap.add_argument('--padev', default='m0')
    ap.add_argument('--trig', default='28')
    ap.add_argument('--yrow', default='3,6,6,9,-1,-1')
    ap.add_argument('--pfcs', default='4,5,5,5,5')
    ap.add_argument('--fflags', default='')
    ap.add_argument('--marks', default='0,4,8,12,16,24,33,47,58')
    o = ap.parse_args(argv)
    o.marks = [int(x) for x in o.marks.split(',')]
    o.yrow = [int(x) for x in o.yrow.split(',')]
    o.pfcs = [int(x) for x in o.pfcs.split(',')]
    o.trig = [int(x) for x in o.trig.split(',')]
    return o

if __name__ == '__main__':
    o = opts()
    open(o.o, 'w').write(gen(o))
```

```python
import re, sys, argparse
import haz

KN = 'standalone__autoregressive_conv_wavernn__speech_kernel'
NWG = 252
NPROD = 144
ARR = 160 * 288
X_D0, X_O, X_D1 = 0, ARR, 2 * ARR
CNT = 3 * ARR
SCR = CNT + 64
LDS_BYTES = SCR + 18432
NSTEP = 106
WOFF = int(__import__('os').environ.get('WOFF', '0x100000'), 0)
NONCE = 0x10000
DIAG = 0x800000
WS_REC = max(0x1000000, WOFF + 0x400000, int(__import__('os').environ.get('WSREC', '0'), 0))
TAGINC = 0x9E3779B9
R = 12

class Em:
    def __init__(self): self.L = []
    def __call__(self, s): self.L.append(s)
    def text(self): return '\n'.join(self.L) + '\n'

def vr(a, n=1): return f'v{a}' if n == 1 else f'v[{a}:{a+n-1}]'
def sr(a, n=4): return f's[{a}:{a+n-1}]'

def streams():
    out = []
    for typ in (0, 1):
        S = []
        pid = [0]
        def add(arr, chunk, cs, acc):
            for c in cs: S.append((pid[0], arr, chunk, c, acc))
            pid[0] += 1
        if typ == 0:
            add('O', 0, range(16), 'P'); add('O', 1, range(16), 'P'); add('O', 'rem', range(0, 2), 'P')
            for q in range(4): add('D', q, range(16), 'Q')
            add('D', 'rem', range(8), 'Q')
        else:
            add('O', 2, range(16), 'P'); add('O', 3, range(16), 'P'); add('O', 'rem', range(2, 8), 'P')
            for q in range(4): add('D', q, range(15), 'Q')
            add('D', 'rem', range(8), 'Q')
        assert len(S) == NSTEP
        out.append(S)
    return out

S_X, S_W, S_WO, S_WS, S_OUT, S_DBG = 20, 24, 28, 32, 36, 40
WAVE, NB, BAT, PAR, MB, BOFF = 14, 15, 16, 17, 18, 19
PAIR0 = 3
XB = 52
MASK = 53
TW0, TW1, TW2, PAIR, HAS3, MODE, SCRB, TAG, LAST, NPOLL = 44, 45, 54, 55, 56, 57, 58, 59, 60, 61
TS = 62
TYP, WSO = 68, 69
EARLY, XK, YT, FIDX = 90, 91, 92, 93
NOTASK = 94
NTASK = NPROD + 96
FO = 97
C2L, CNL, C60 = 90, 92, 94
ST0 = 70

def srd(e, d, ptr, rec, add=None):
    if add is None:
        e(f's_mov_b32 s{d}, s{ptr}')
        e(f's_and_b32 s{d+1}, s{ptr+1}, 0xffff')
    else:
        e(f's_add_u32 s{d}, s{ptr}, s{add}')
        e(f's_addc_u32 s{d+1}, s{ptr+1}, 0')
        e(f's_and_b32 s{d+1}, s{d+1}, 0xffff')
    e(f's_mov_b32 s{d+2}, {rec}')
    e(f's_mov_b32 s{d+3}, 0x20000')

def gen(o):
    e = Em()
    role = ['m']
    def padloop(tag):
        e(f'L_pad{tag}:')
        e('s_memrealtime s[98:99]')
        e('s_waitcnt lgkmcnt(0)')
        e('s_sub_u32 s98, s98, s100')
        e(f's_cmp_lt_u32 s98, {o.padto}')
        e(f's_cbranch_scc1 L_pad{tag}')
    def stamp(k, lvl=1):
        if o.padto and lvl == 1 and o.padev == f'{role[0]}{k}':
            e('s_memrealtime s[100:101]'); e('s_waitcnt lgkmcnt(0)')
        if o.diag == lvl or (o.diag == 4 and lvl == 1): e(f's_memrealtime s[{ST0+2*k}:{ST0+2*k+1}]')
    def dump(nst):
        e('s_waitcnt lgkmcnt(0)')
        e('v_mov_b32 v250, 0')
        for k in range(nst): e(f'v_writelane_b32 v250, s{ST0+2*k}, {k}')
        e(f'v_writelane_b32 v250, s{NPOLL}, 13')
        e(f'v_writelane_b32 v250, s95, 12')
        e(f'v_writelane_b32 v250, s2, 14')
        e('s_getreg_b32 s46, hwreg(HW_REG_XCC_ID)')
        e('v_writelane_b32 v250, s46, 15')
        e(f's_lshl_b32 s46, s2, 3'); e(f's_add_u32 s46, s46, s{WAVE}'); e('s_lshl_b32 s46, s46, 6'); e(f's_add_u32 s46, s46, {DIAG}')
        e('v_lshl_add_u32 v251, v1, 2, s46')
        e('s_mov_b64 exec, 0xffff')
        e(f'buffer_store_dword v250, v251, {sr(S_WS)}, 0 offen')
        e('s_mov_b64 exec, -1')

    e('.amdgcn_target "amdgcn-amd-amdhsa--gfx950"')
    e('.text')
    e(f'.globl {KN}')
    e('.p2align 8')
    e(f'.type {KN},@function')
    e(f'{KN}:')
    e(f's_cmp_ge_u32 s2, {NWG}')
    e('s_cbranch_scc1 L_end')
    stamp(0)
    if o.padto and o.padev != 'm0': e('s_memrealtime s[100:101]')
    e('s_load_dwordx4 s[4:7], s[0:1], 0')
    e('s_load_dwordx4 s[8:11], s[0:1], 16')
    e('s_load_dwordx2 s[12:13], s[0:1], 32')
    e('v_lshrrev_b32 v2, 6, v0')
    e('v_and_b32 v1, 63, v0')
    e(f'v_readfirstlane_b32 s{WAVE}, v2')
    def decode():
        e('s_and_b32 s44, s2, 7')
        e('s_lshr_b32 s45, s2, 3')
        e('s_mul_i32 s46, s44, 31')
        e('s_min_u32 s44, s44, 4')
        e('s_add_u32 s46, s46, s44')
        e('s_add_u32 s46, s46, s45')
        e('s_mul_hi_u32 s47, s46, 68174085')
        e('s_mul_i32 s48, s47, 63')
        e('s_sub_u32 s48, s46, s48')
        e(f's_mul_hi_u32 s{NB}, s48, 613566757')
        e(f's_mul_i32 s49, s{NB}, 7')
        e('s_sub_u32 s49, s48, s49')
        e('s_mul_i32 s47, s47, 7')
        e('s_add_u32 s47, s47, s49')
        e(f's_and_b32 s{PAR}, s47, 1')
        e('s_lshr_b32 s47, s47, 1')
        e('s_cmp_ge_u32 s47, 7')
        e(f's_cselect_b32 s{BOFF}, 1152000, 0')
        e('s_cselect_b32 s48, 7, 0')
        e(f's_sub_u32 s{MB}, s47, s48')
        e(f's_mul_i32 s{XB}, s{MB}, 576')
        e(f's_add_u32 s{XB}, s{XB}, s{PAR}')
        e(f's_sub_u32 s{XB}, s{XB}, 60')
        e(f's_mul_i32 s{XB}, s{XB}, 288')
    e(f's_cmp_ge_u32 s{WAVE}, 4')
    e('s_cbranch_scc1 L_helper')
    if o.cpf:
        e('s_lshr_b32 s44, s2, 3')
        e(f's_lshl_b32 s45, s{WAVE}, 5')
        e('s_add_u32 s44, s44, s45')
        e('s_sub_u32 s44, s44, 26')
        e('s_cmp_ge_u32 s44, 5')
        e('s_cbranch_scc1 L_main')
        e('s_getpc_b64 s[46:47]')
        e('L_pc:')
        e('s_lshl_b32 s44, s44, 13')
        e('v_lshl_add_u32 v2, v1, 7, s44')
        e('v_min_u32 v2, L_codeend-L_pc-4, v2')
        e('global_load_dword v63, v2, s[46:47]')
    if o.hfirst: e('s_branch L_main')
    mark = {'main0': len(e.L)}
    e('L_main:')
    e(f's_mov_b32 s{MASK}, 0xffff0000')
    e(f's_mov_b32 s{NPOLL}, 0')
    if o.diag: e('s_mov_b32 s95, 0')
    decode()

    VXO, VXOR, VXD, VXDR, VWL, VEX, VEXP, VOUT = 30, 31, 32, 33, 34, 35, 36, 37
    VF = 40
    VA = 48
    VCL = 60
    e('v_mul_u32_u24 v3, 3641, v0')
    e('v_lshrrev_b32 v3, 16, v3')
    e('v_mul_u32_u24 v2, 18, v3')
    e('v_sub_u32 v2, v0, v2')
    e('v_mul_u32_u24 v3, 1152, v3')
    e('v_lshl_add_u32 v3, v2, 4, v3')
    e(f's_add_u32 s46, s{XB}, 576')
    e(f'v_add_u32 v{VA}, s46, v3')
    e('v_mov_b32 v5, 16192')
    e('v_mov_b32 v6, 17056')
    for k in range(1, 12):
        e('v_cmp_le_u32 vcc, 14, v2')
        e('v_add_u32 v3, 4, v2')
        e('v_subrev_u32 v4, 14, v2')
        e('v_cndmask_b32 v7, v5, v6, vcc')
        e('v_cndmask_b32 v2, v3, v4, vcc')
        e(f'v_add_u32 v{VA+k}, v{VA+k-1}, v7')
    e(f's_lshl_b32 s50, s{WAVE}, 10')
    e(f's_add_u32 s50, s50, {X_O}')
    e(f's_add_u32 s51, s50, {4096*11}')
    e('s_movk_i32 s49, 4096')
    if o.orev:
        e(f's_bitcmp0_b32 s{NB}, 0')
        e('s_cbranch_scc1 L_fwd')
        for k in range(5): e(f'v_swap_b32 v{VA+k}, v{VA+10-k}')
        e(f's_add_u32 s50, s50, {4096*10}')
        e('s_movk_i32 s49, -4096')
        e('L_fwd:')
    e(f'v_mov_b32 v{VF+1}, {CNT}')
    for r in range(4, 8): e(f'v_mov_b32 v{r}, 0')
    e(f'ds_write_b128 v{VF+1}, v[4:7]')
    e(f'ds_write_b128 v{VF+1}, v[4:7] offset:16')
    e('s_waitcnt lgkmcnt(0)')
    e(f's_load_dword s{TAG}, s[12:13], {NONCE}')
    srd(e, S_X, 4, 1152000, add=BOFF)
    def odma(k):
        e(f's_mov_b32 m0, s{51 if k == 11 else 50}')
        e('s_add_u32 s50, s50, s49')
        e(f'buffer_load_dwordx4 v{VA+k}, {sr(S_X)}, 0 offen lds')
    for k in range(o.opre): odma(k)
    e('s_barrier')
    stamp(1)
    for k in range(o.opre, 12):
        if k == 11:
            e(f's_cmp_lg_u32 s{WAVE}, 0')
            e('s_cbranch_scc1 L_o11')
        odma(k)
    e('L_o11:')
    srd(e, S_WS, 12, WS_REC)
    srd(e, S_OUT, 8, 1152000, add=BOFF)
    srd(e, S_DBG, 10, 256)
    e('v_and_b32 v2, 15, v1')
    e('v_lshrrev_b32 v3, 4, v1')
    e('v_subrev_u32 v5, 4, v2')
    e('v_add_u32 v6, 8, v2')
    e('v_cmp_gt_u32 vcc, 4, v2')
    e('v_cmp_le_u32 s[46:47], 12, v2')
    e(f's_and_b32 s{TYP}, s{WAVE}, 1')
    e(f's_lshr_b32 s48, s{WAVE}, 1')
    e('v_cndmask_b32 v5, v5, v6, vcc')
    e('v_cndmask_b32 v5, v5, v2, s[46:47]')
    e('v_mul_u32_u24 v5, 9, v5')
    e('v_mul_u32_u24 v4, 288, v5')
    e('v_lshl_add_u32 v6, v3, 4, v4')
    e('v_and_b32 v7, 1, v3')
    e('v_lshl_add_u32 v7, v7, 4, v4')
    e('v_lshrrev_b32 v8, 1, v3')
    e('v_mul_u32_u24 v8, 2304, v8')
    e('v_add_u32 v7, v7, v8')
    e('v_add_u32 v7, 256, v7')
    e(f's_mul_i32 s49, s{TYP}, {X_D1}')
    e(f'v_add_u32 v{VXO}, {X_O}, v6')
    e(f'v_add_u32 v{VXOR}, {X_O}, v7')
    e(f'v_add_u32 v{VXD}, s49, v6')
    e(f'v_add_u32 v{VXDR}, s49, v7')
    e('v_lshlrev_b32 v6, 4, v1')
    e(f's_mul_i32 s49, s{WAVE}, 9216')
    e(f's_add_u32 s49, s49, {X_O}')
    e(f'v_add_u32 v{VEX}, s49, v6')
    e(f's_xor_b32 s49, s{WAVE}, 1')
    e('s_mul_i32 s49, s49, 9216')
    e(f's_add_u32 s49, s49, {X_O}')
    e(f'v_add_u32 v{VEXP}, s49, v6')
    e('v_and_b32 v8, 0x39, v1')
    e('v_bfe_u32 v9, v1, 1, 1')
    e('v_lshl_add_u32 v8, v9, 2, v8')
    e('v_bfe_u32 v9, v1, 2, 1')
    e('v_lshl_add_u32 v8, v9, 1, v8')
    e(f'v_lshlrev_b32 v{VWL}, 4, v8')
    e(f's_mul_i32 s49, s{TYP}, 576')
    e(f's_add_u32 s49, s49, s{XB}')
    e(f's_add_u32 s49, s49, {60*288}')
    e(f's_lshl_b32 s50, s{NB}, 5')
    e('s_add_u32 s49, s49, s50')
    e('s_lshl_b32 s50, s48, 4')
    e('s_add_u32 s49, s49, s50')
    e('v_mul_u32_u24 v8, 1152, v5')
    e('v_lshl_add_u32 v8, v3, 2, v8')
    e(f'v_add_u32 v{VOUT}, s49, v8')
    e(f'v_add_u32 v{VOUT+1}, 3456, v{VOUT}')
    e(f'v_add_u32 v{VOUT+2}, 6912, v{VOUT}')
    e(f's_lshl_b32 s49, s{NB}, 1')
    e('s_add_u32 s49, s49, s48')
    e('s_lshl_b32 s49, s49, 1')
    e(f's_add_u32 s49, s49, s{TYP}')
    e(f's_mul_i32 s{WSO}, s49, {NSTEP*1024}')
    e(f's_add_u32 s{WSO}, s{WSO}, {WOFF}')
    e(f's_mov_b32 s{C2L}, 0x4038aa3b'); e(f's_mov_b32 s{C2L+1}, 0x4038aa3b')
    e(f's_mov_b32 s{CNL}, 0xbfb8aa3b'); e(f's_mov_b32 s{CNL+1}, 0xbfb8aa3b')
    e(f's_mov_b32 s{C60}, 0x42700000')
    e(f'v_min_u32 v{VF}, 31, v1')
    e(f'v_lshlrev_b32 v{VF}, 7, v{VF}')
    e(f'v_min_u32 v{VF+6}, 47, v1')
    e(f'v_lshlrev_b32 v{VF+6}, 7, v{VF+6}')
    e(f'v_mov_b32 v{VF+2}, 1')
    e('s_lshl_b32 s46, s48, 2')
    e(f'v_add_u32 v{VF+5}, s46, v{VF+1}')
    e(f's_or_b32 s46, s2, s{WAVE}')
    e('v_or_b32 v2, s46, v1')
    e('v_cmp_eq_u32 vcc, 0, v2')
    e(f'v_mov_b32 v{VCL}, -16')
    e(f'v_mov_b32 v{VCL+1}, -16')
    e(f'v_mov_b32 v3, {NONCE}')
    e(f'v_cndmask_b32 v{VCL}, v{VCL}, 4, vcc')
    e(f'v_cndmask_b32 v{VCL+1}, v{VCL+1}, v3, vcc')
    e(f's_lshl_b32 s{FO}, s{TYP}, 13')
    if o.warmb:
        e(f's_cmp_eq_u32 s{TYP}, 1')
        e('s_cbranch_scc1 L_warmB')
        e('L_warmret:')
    e('s_waitcnt vmcnt(0) lgkmcnt(0)')
    stamp(2)
    e('s_mov_b64 exec, 1')
    e(f'ds_add_u32 v{VF+1}, v{VF+2} offset:8')
    e('s_mov_b64 exec, -1')
    e(f's_add_u32 s{TAG}, s{TAG}, {TAGINC}')
    e(f'v_mov_b32 v{VF+3}, s{TAG}')
    def flagwait(tag, vaddr, back):
        e(f'L_fw{tag}:')
        if o.diag and len(tag) == 2: e(f's_add_u32 s95, s95, {1 << (5 * int(tag[1]))}')
        e(f'buffer_load_dword v{VF+4}, v{vaddr}, {sr(S_WS)}, s{FO} offen sc1')
        e(f'ds_read_b32 v{VF+7}, v{VF+1} offset:12')
        e(f's_add_u32 s{NPOLL}, s{NPOLL}, 1')
        e('s_waitcnt vmcnt(0) lgkmcnt(0)')
        e(f'v_cmp_ne_u32 vcc, v{VF+3}, v{VF+4}')
        e(f'v_readfirstlane_b32 s46, v{VF+7}')
        e('s_nop 3')
        e(f's_cbranch_vccz {back}')
        e('s_cmp_lg_u32 s46, 0')
        e(f's_cbranch_scc1 {back}')
        e(f's_cmp_lg_u32 s{NPOLL}, {o.maxpoll}')
        e(f's_cbranch_scc1 L_fw{tag}')
        e(f'v_mov_b32 v{VF+7}, 0x10000')
        e('s_mov_b64 exec, 1')
        e(f'ds_add_u32 v{VF+1}, v{VF+7} offset:4')
        e('s_mov_b64 exec, -1')
        e(f's_branch L_fw{tag}')
    flagwait('0', VF, 'L_go')
    e('L_go:')
    stamp(3)
    e('L_gw:')
    e(f'ds_read_b32 v{VF+4}, v{VF+1} offset:8')
    e('s_waitcnt lgkmcnt(0)')
    e(f'v_cmp_ne_u32 vcc, 4, v{VF+4}')
    e('s_nop 4')
    e('s_cbranch_vccnz L_gw')
    stamp(4)
    e(f's_setprio {o.mprio}')
    e(f's_cmp_eq_u32 s{TYP}, 1')
    e('s_cbranch_scc1 L_typeB')

    ACC = {'P': 64, 'Q': 100}
    WR, TMP = 136, 224
    XRING = [200 + 4 * i for i in range(6)]
    XWIN = [4 + 4 * i for i in range(6)] + [240 + 4 * i for i in range(4)]
    VC = 28
    PF = o.pf
    GT = 98
    wflags = ' sc1' if o.wsc1 else ''
    for typ, S in enumerate(streams()):
        if typ == 1:
            e('.p2align 6')
            if o.warmb: e('L_warmB:'); e('s_branch L_warmret')
            e('L_typeB:')
        ops = []
        vstart = {}
        lastv = GT - 1 if o.tail else NSTEP + 7
        for v in range(lastv + 1):
            vstart[v] = len(ops)
            for j in range(8, -1, -1):
                if 0 <= v - j < NSTEP: ops.append((v - j, j))
        ntail = len(ops)
        if o.tail:
            for j in range(9):
                for g in range(GT - j, NSTEP): ops.append((g, j))
        assert len(ops) == NSTEP * 9 and len(set(ops)) == len(ops)
        N = len(ops)
        def key(n):
            g, j = ops[n]
            pid, arr, ch, c, acc = S[g]
            k = (pid, arr, ch, c + j)
            if n >= ntail and g < GT: k = k + ((n,) if not o.hold else ('h',))
            return k
        first, last = {}, {}
        for n in range(N):
            first.setdefault(key(n), n); last[key(n)] = n
        wfirst, wlast = {}, {}
        for n, (g, j) in enumerate(ops):
            wfirst.setdefault(g, n); wlast[g] = n
        tasks = []
        for k, n0 in first.items():
            win = o.tail and k[2] == 'rem' and k[1] == 'D'
            la = o.xla if n0 < ntail else 6
            if win: la = 40 if k[3] < 8 else 12
            tasks.append([n0 - la, n0 - 1, 'X', k])
        for g in range(NSTEP):
            rel = -100 + g if g < o.pf0 else max(0, wfirst[g] - 9 * PF - (9 * (NSTEP - g) if g >= GT else 0) + (0 if g < GT else 36))
            tasks.append([rel, wfirst[g] - 1, 'W', g])
        def at(v, off=0): return vstart[v] + off
        firstD = min(n for n in range(N) if S[ops[n][0]][1] == 'D')
        lastO = max(n for n in range(N) if S[ops[n][0]][1] == 'O')
        lastP = {j: max(n for n in range(N) if ops[n][1] == j and S[ops[n][0]][4] == 'P') for j in range(9)}
        slow = []
        vused = set()
        def check(v, off, cnt, tag):
            tasks.append([at(v - 1, 3), at(v - 1, 8), 'L', (f'ds_read_b32 v{VC}, v{VF+1} offset:{off}', ('c', tag))])
            tasks.append([at(v, 0), at(v, 1), 'C', (f'v_cmp_ne_u32 vcc, {cnt}, v{VC}', ('c', tag))])
            tasks.append([at(v, 6), at(v, 7), 'I', [f's_cbranch_vccnz L_slow{typ}{tag}', f'L_back{typ}{tag}:']])
            slow.append((tag, off, cnt))
            vused.add(v)
            return at(v, 8)
        def add1(pos, off):
            tasks.append([pos, pos + 4, 'A', off])
        vD = [v for v in vstart if vstart[v] <= firstD - o.xla][-1] - 1
        okD = check(vD, 16, 4, 'D')
        assert okD <= firstD - o.xla
        add1(lastO, 20)
        VP = 47
        okR = check(VP, 20, 4, 'R')
        for j in range(9):
            assert lastP[j] + 12 < at(VP + 1 + j, 2)
            tasks.append([at(VP + 1 + j, 2), at(VP + 1 + j, 8), 'L', (f'ds_write_b128 v{VEX}, {vr(ACC["P"]+4*j,4)} offset:{1024*j}', ('pw', j))])
        tasks.append([at(VP + 10, 0), at(VP + 10, 4), 'A', 'pair'])
        VQ = VP + 13
        okP = check(VQ, 'pair', 2, 'P')
        for j in range(9):
            tasks.append([at(VQ + 1 + j, 2), at(VQ + 1 + j, 8), 'L', (f'ds_read_b128 {vr(TMP+4*(j&1),4)}, v{VEXP} offset:{1024*j}', ('pr', j))])
            v = VQ + 2 + j
            pos = at(v, 8 - (j + 2) - 1) if j <= 6 else at(v, 8 - (j - 7) - 1)
            sh = 1 if j >= 7 else 0
            tasks.append([pos - 1 + sh, pos - 1 + sh, 'Q', (j, 0)])
            tasks.append([pos + sh, pos + sh, 'Q', (j, 1)])
        if typ == 0:
            tasks.append([at(72, 4), at(72, 8), 'S', f'buffer_store_dword v{VCL+1}, v{VCL}, {sr(S_DBG)}, 0 offen sc1'])
            tasks.append([at(92, 4), at(92, 8), 'S', f'buffer_store_dword v{VF+3}, v{VCL+1}, {sr(S_WS)}, 0 offen sc1'])
        fslow = []
        passes = {}
        for g in range(NSTEP): passes.setdefault(S[g][0], g)
        need = [(passes[1], VF, 32 + 64 * typ), (32, VF + 6, 128), (passes[4], VF, 176), (passes[5], VF, 208), (passes[6], VF + 6, 240)]
        for ci, (gn, va, idx) in enumerate(need):
            v = gn - o.pfcs[ci] - 1
            while v in vused: v -= 1
            tasks.append([at(v - o.flead, 4), at(v - o.flead, 8), 'F', (va, idx, ci)])
            tasks.append([at(v, 0), at(v, 1), 'G', ci])
            tasks.append([at(v, 6), at(v, 7), 'I', [f's_cbranch_vccnz L_fw{typ}{ci}', f'L_fb{typ}{ci}:']])
            fslow.append((ci, va))
            assert v not in vused, v
            for t in tasks:
                if t[2] == 'W' and (t[3] >= gn): t[0] = max(t[0], at(v, 8))
        tasks.append([at(v + 1, 2), at(v + 1, 8), 'A', 4])
        if typ == 0:
            for lvl, v in enumerate(o.trig): tasks.append([at(v, 2), at(v, 8), 'P', lvl + 1])
        tasks.sort(key=lambda t: (t[0], t[1]))
        vq, lq = [], []
        dirty = [False]
        xreg, busy = {}, {}
        wn = [0]
        wr = {}
        lastw = [-100]
        BIG = [WR + 4 * i for i in range(16)] + XWIN + [ACC['P'] + 4 * i for i in range(9)]
        for i in range(9): busy[ACC['P'] + 4 * i] = at(VP + 12)
        def wok(t, n):
            if t[2] != 'W': return True
            if t[3] != wn[0]: return False
            free = sum(1 for x in BIG if busy.get(x, -1) <= n)
            if t[1] - n <= 9 * 3: return free > 0
            return n - lastw[0] >= o.wgap and free > (o.wres if n > at(80) else 0)
        since = {}
        fill = []
        def em(x):
            e(x)
            if not x.endswith(':'):
                for jj in since: since[jj] += 1
        def lwait(tag):
            if tag not in lq: return
            i = lq.index(tag)
            em(f's_waitcnt lgkmcnt({0 if dirty[0] else len(lq)-1-i})')
            if dirty[0]: lq.clear(); dirty[0] = False
            else: del lq[:i + 1]
        def vwait(g):
            if g not in vq: return
            i = vq.index(g)
            em(f's_waitcnt vmcnt({len(vq)-1-i})')
            del vq[:i + 1]
        def run(t, n):
            kind, p = t[2], t[3]
            if kind == 'X':
                pool = BIG if (p[-1] == 'h' or (p[2] == 'rem' and p[1] == 'D')) else XRING
                r = [x for x in pool if busy.get(x, -1) <= n]
                assert r, ('no x register', p, n)
                r = min(r, key=lambda x: busy.get(x, -1))
                busy[r] = last[p]; xreg[p] = r
                arr, ch, s_ = p[1], p[2], p[3]
                if ch == 'rem': em(f'ds_read_b128 {vr(r,4)}, v{VXOR if arr == "O" else VXDR} offset:{288*s_}')
                else: em(f'ds_read_b128 {vr(r,4)}, v{VXO if arr == "O" else VXD} offset:{64*ch+288*s_}')
                lq.append(p)
            elif kind == 'W':
                g = p
                r = min([x for x in BIG if busy.get(x, -1) <= n], key=lambda x: busy.get(x, -1))
                busy[r] = wlast[g]; wr[g] = r
                assert g == wn[0]; wn[0] += 1
                lastw[0] = n
                em(f'buffer_load_dwordx4 {vr(r,4)}, v{VWL}, {sr(S_WS)}, s{WSO} offen offset:{1024*(g%4)}{wflags}')
                if g % 4 == 3: em(f's_add_u32 s{WSO}, s{WSO}, 4096')
                vq.append(g)
            elif kind == 'L':
                em(p[0].replace('offset:pair', 'offset:24').replace(f'v{VF+1} offset:24', f'v{VF+5} offset:24')); lq.append(p[1])
            elif kind == 'C':
                lwait(p[1]); em(p[0])
            elif kind == 'I':
                for x in p: em(x)
            elif kind == 'A':
                em('s_mov_b64 exec, 1')
                if p == 'pair': em(f'ds_add_u32 v{VF+5}, v{VF+2} offset:24')
                else: em(f'ds_add_u32 v{VF+1}, v{VF+2} offset:{p}')
                em('s_mov_b64 exec, -1')
                lq.append(('a', p))
            elif kind == 'Q':
                p, hf = p
                lwait(('pr', p))
                q = ACC['Q'] + 4 * p; t_ = TMP + 4 * (p & 1)
                for i in (2 * hf, 2 * hf + 1): em(f'v_add_f32 v{q+i}, v{q+i}, v{t_+i}')
            elif kind == 'S':
                em(p); vq.append(('s', n))
            elif kind == 'F':
                em(f's_mov_b32 s{FO}, {128*p[1]}')
                em(f'buffer_load_dword v{VF+4}, v{p[0]}, {sr(S_WS)}, s{FO} offen {o.fflags}'); vq.append(('f', p[2]))
            elif kind == 'G':
                vwait(('f', p)); em(f'v_cmp_ne_u32 vcc, v{VF+3}, v{VF+4}')
            elif kind == 'P':
                em(f'v_mov_b32 v{VF+7}, {p}')
                em('s_mov_b64 exec, 1')
                em(f'ds_max_u32 v{VF+1}, v{VF+7}')
                em('s_mov_b64 exec, -1')
                lq.append(('p', p))
        def epi(j, pk):
            q = ACC['Q'] + 4 * j
            t = TMP + 8 * (j & 1)
            I = []
            if pk:
                I.append(f'v_pk_mul_f32 {vr(t,2)}, {vr(q,2)}, s[{C2L}:{C2L+1}]')
                I.append(f'v_pk_mul_f32 {vr(t+2,2)}, {vr(q+2,2)}, s[{CNL}:{CNL+1}]')
            else:
                for i in (0, 1): I.append(f'v_mul_f32 v{t+i}, s{C2L}, v{q+i}')
                for i in (2, 3): I.append(f'v_mul_f32 v{t+i}, s{CNL}, v{q+i}')
            I.append(f'v_min_f32 v{t}, s{C60}, v{t}')
            I.append(f'v_min_f32 v{t+1}, s{C60}, v{t+1}')
            for i in (0, 1, 2, 3): I.append(f'v_exp_f32 v{t+i}, v{t+i}')
            if pk:
                I.append(f'v_pk_add_f32 {vr(t+4,2)}, {vr(t,2)}, 1.0 op_sel_hi:[1,0]')
                I.append(f'v_pk_add_f32 {vr(t+6,2)}, {vr(t,2)}, -1.0 op_sel_hi:[1,0]')
                I.append(f'v_pk_fma_f32 {vr(t+4,2)}, {vr(t+4,2)}, {vr(t+2,2)}, {vr(t+4,2)}')
            else:
                for i in (0, 1): I.append(f'v_add_f32 v{t+4+i}, 1.0, v{t+i}')
                for i in (0, 1): I.append(f'v_fma_f32 v{t+4+i}, v{t+4+i}, v{t+2+i}, v{t+4+i}')
            I.append(f'v_rcp_f32 v{t+4}, v{t+4}')
            I.append(f'v_rcp_f32 v{t+5}, v{t+5}')
            if pk:
                I.append('s_nop 0')
                I.append(f'v_pk_mul_f32 {vr(t+6,2)}, {vr(t+6,2)}, {vr(t+4,2)}')
            else:
                for i in (0, 1): I.append(f'v_add_f32 v{t+6+i}, -1.0, v{t+i}')
                for i in (0, 1): I.append(f'v_mul_f32 v{t+6+i}, v{t+6+i}, v{t+4+i}')
            I.append(f'v_cvt_pk_bf16_f32 v{q}, v{t+6}, v{t+7}')
            I.append(f'buffer_store_dword v{q}, v{VOUT + j//3}, {sr(S_OUT)}, 0 offen offset:{1152*(j%3)} {o.oflags}')
            return I
        def cost(x): return 2 if x.startswith(('v_exp', 'v_rcp', 'buffer')) else 1
        while tasks and tasks[0][0] < 0: run(tasks.pop(0), -1)
        inv = {n: v for v, n in vstart.items()}
        lastop = {j: max(n for n in range(N) if ops[n][1] == j) for j in range(9)}
        for n, (g, j) in enumerate(ops):
            if n in inv and o.padto and o.padev == 'm5' and inv[n] == o.padstep:
                e('s_memrealtime s[100:101]'); dirty[0] = True
            if n in inv and o.diag:
                v = inv[n]
                if o.diag == 2 and v in o.marks:
                    kk = o.marks.index(v)
                    e(f's_memtime s[{ST0+2*kk}:{ST0+2*kk+1}]'); dirty[0] = True
                if o.diag in (1, 4) and v == 33: stamp(5); stamp(6); dirty[0] = True
            k = key(n)
            assert k in xreg, (k, n)
            lwait(k); vwait(g)
            acc = S[g][4]
            d = ACC[acc] + 4 * j
            if g == 0: cs = '0'
            elif acc == 'Q' and S[g-1][4] == 'P': cs = vr(ACC['P'] + 4 * j, 4)
            else: cs = vr(d, 4)
            em(f'v_mfma_f32_16x16x32_bf16 {vr(d,4)}, {vr(wr[g],4)}, {vr(xreg[k],4)}, {cs}')
            if n == lastop[j]: since[j] = 0
            budget = 2
            TC = {'X': 1, 'W': 2, 'L': 2, 'C': 1, 'I': 0, 'A': 1, 'Q': 2, 'S': 2, 'F': 2, 'G': 1, 'P': 2}
            while True:
                ready = [t for t in tasks if t[0] <= n and wok(t, n)]
                if not ready: break
                t = min(ready, key=lambda t: t[1])
                assert t[1] >= n, ('late', t, n)
                if TC[t[2]] > budget and t[1] > n:
                    fit = [u for u in ready if TC[u[2]] <= budget]
                    if not fit: break
                    t = min(fit, key=lambda t: t[1])
                tasks.remove(t); run(t, n); budget -= TC[t[2]]
            for jj in sorted(since):
                if 8 <= since[jj] < 10**6:
                    fill += epi(jj, False); since[jj] = 10**6
            budget += o.nfill - 2
            while fill and budget >= cost(fill[0]):
                budget -= cost(fill[0]); em(fill.pop(0))
            assert all(t[1] > n for t in tasks), ('late', n, [t for t in tasks if t[1] <= n])
        assert not tasks
        stamp(7)
        while fill: em(fill.pop(0))
        for jj in [jj for jj in sorted(since) if since[jj] < 10**6]:
            if since[jj] < 8: em(f's_nop {8-since[jj]-1}')
            for x in epi(jj, True): em(x)
        stamp(8)
        if o.padto and o.padev[0] == 'm': padloop(typ)
        if o.diag == 1:
            e('s_waitcnt vmcnt(0)')
            stamp(9)
            dump(10)
        if o.diag == 2:
            kk = len(o.marks)
            e(f's_memtime s[{ST0+2*kk}:{ST0+2*kk+1}]')
            dump(10)
        e('s_endpgm')
        for tag, off, cnt in slow:
            e(f'L_slow{typ}{tag}:')
            e(f'ds_read_b32 v{VC}, v{VF+5 if off == "pair" else VF+1} offset:{24 if off == "pair" else off}')
            e('s_waitcnt lgkmcnt(0)')
            e(f'v_cmp_ne_u32 vcc, {cnt}, v{VC}')
            e('s_nop 4')
            e(f's_cbranch_vccnz L_slow{typ}{tag}')
            e(f's_branch L_back{typ}{tag}')
        for ci, va in fslow: flagwait(f'{typ}{ci}', va, f'L_fb{typ}{ci}')

    mark['help0'] = len(e.L)
    if not o.hfirst: e('.p2align 6')
    e('L_helper:')
    role[0] = 'h'
    e(f's_setprio {o.hprio}')
    e(f's_sub_u32 s{TW0}, s{WAVE}, 4')
    e(f's_mov_b32 s{TW1}, s{WAVE}')
    e(f's_sub_u32 s{PAIR}, s2, {NPROD}')
    e(f's_cselect_b32 s{PAIR}, s2, s{PAIR}')
    e(f's_mov_b32 s{MODE}, 0')
    e(f's_mov_b32 s{NOTASK}, s2')
    e(f's_mov_b32 s{HAS3}, s{TW0}')
    e(f's_lshl_b32 s{SCRB}, s{TW0}, 12')
    e(f's_add_u32 s{SCRB}, s{SCRB}, {SCR}')
    e('L_prod:')
    T = [(28, TW0, 2, 52, 0), (36, TW1, 4, 53, 2048), (44, TW2, 6, 54, 16384)]
    c, kp, q, cc, kk, t = 46, 47, 48, 49, 50, 51
    b = TS
    e('v_mov_b32 v19, 4320')
    e('v_and_b32 v23, 3, v1')
    e('v_lshrrev_b32 v24, 3, v1')
    e('v_mul_u32_u24 v24, 576, v24')
    e('v_bfe_u32 v25, v1, 2, 1')
    e('v_mul_u32_u24 v25, 288, v25')
    e('v_add_u32 v24, v24, v25')
    for (vb, sw, vl, vs, so) in T:
        e(f'v_lshl_add_u32 v8, s{sw}, 2, v23' if sw != TW2 else 'v_add_u32 v8, 32, v23')
        e('v_cmp_le_u32 vcc, 18, v8')
        e(f'v_lshl_add_u32 v{vl}, v8, 4, v24')
        e(f'v_add_u32 v9, v{vl}, v19')
        e(f'v_cndmask_b32 v{vl}, v{vl}, v9, vcc')
    e(f's_and_b32 s{c}, s{PAIR}, 15')
    e(f's_lshr_b32 s{kp}, s{PAIR}, 4')
    e(f's_mul_i32 s{b}, s{c}, 165888')
    e(f's_mul_i32 s{t}, s{kp}, 9216')
    e(f's_add_u32 s{b}, s{b}, s{t}')
    e(f's_add_u32 s{b+1}, s{b}, 82944')
    e(f's_mov_b32 s{S_W+2}, 2571264')
    e(f's_mov_b32 s{S_W+3}, 0x20000')
    e(f's_mov_b32 s{S_WO+3}, 0x20000')
    e(f's_cmp_lg_u32 s{c}, 15')
    e(f's_cselect_b32 s{S_WO+2}, 2571264, 0')
    e(f's_mov_b32 m0, s{SCRB}')
    e('s_waitcnt lgkmcnt(0)')
    e(f's_mov_b32 s{S_W}, s6')
    e(f's_and_b32 s{S_W+1}, s7, 0xffff')
    e(f's_mov_b32 s{S_WO}, s6')
    e(f's_and_b32 s{S_WO+1}, s7, 0xffff')
    e(f's_cmp_ge_u32 s{NOTASK}, {NTASK}')
    e('s_cbranch_scc1 L_a3')
    def cond3(lbl):
        e(f's_cmp_lg_u32 s{HAS3}, 0')
        e(f's_cbranch_scc1 {lbl}')
    for ti, (vb, sw, vl, vs, so) in enumerate(T):
        if ti == 2: cond3('L_a3')
        if ti == 1: e('s_addk_i32 m0, 1024'); e('s_nop 0')
        e(f'buffer_load_dwordx4 v{vl}, {sr(S_W)}, s{b} offen lds')
        e('s_addk_i32 m0, 1024')
        e('s_nop 0')
        e(f'buffer_load_dwordx4 v{vl}, {sr(S_WO)}, s{b+1} offen lds')
        if ti == 1: e(f's_addk_i32 m0, {16384-3072}')
    e('L_a3:')
    stamp(1)
    e(f's_cmp_lg_u32 s{MODE}, 0')
    e('s_cbranch_scc1 L_a4')
    e(f's_load_dword s{TAG}, s[12:13], {NONCE}')
    e(f's_lshr_b32 s{EARLY}, 0x33, s{kp}')
    e(f's_and_b32 s{EARLY}, s{EARLY}, 1')
    e(f's_sub_u32 s{XK}, 2, s{EARLY}')
    e(f's_lshl_b32 s{t}, s{kp}, 1')
    e(f's_lshr_b32 s{YT}, {(3<<12)+(3<<14)+(3<<16)}, s{t}')
    e(f's_and_b32 s{YT}, s{YT}, 3')
    e(f's_lshr_b32 s{t}, s{kp}, 1')
    e(f's_cmp_ge_u32 s2, {NPROD}')
    e(f's_cselect_b32 s{EARLY}, 0, s{EARLY}')
    e(f's_cselect_b32 s{XK}, 3, s{XK}')
    e(f's_cselect_b32 s{YT}, s{t}, s{YT}')
    e(f's_cmp_ge_u32 s2, {NPROD+32}')
    e(f's_cselect_b32 s{XK}, 0, s{XK}')
    e(f's_cmp_ge_u32 s2, {NTASK}')
    e(f's_cselect_b32 s{YT}, 0, s{YT}')
    if not o.b0early:
        e(f's_cmp_lg_u32 s{EARLY}, 0')
        e('s_cbranch_scc1 L_a4')
    e('s_barrier')
    e('L_a4:')
    e(f's_mov_b32 s{MASK}, 0xffff0000')
    e(f's_mov_b32 s{NPOLL}, 0')
    srd(e, S_WS, 12, WS_REC)
    srd(e, S_DBG, 10, 256)
    e(f'v_mov_b32 v10, {CNT}')
    e(f'v_mov_b32 v20, {(256 - 18*2*NSTEP*1024) & 0xffffffff}')
    e(f'v_mov_b32 v26, {2*NSTEP*1024}')
    e('v_bfe_u32 v21, v1, 2, 2')
    e('v_lshlrev_b32 v21, 7, v21')
    e('v_and_b32 v22, 1, v1')
    e('v_lshl_add_u32 v21, v22, 6, v21')
    e('v_bfe_u32 v22, v1, 1, 1')
    e('v_lshl_add_u32 v21, v22, 3, v21')
    e('v_lshrrev_b32 v22, 4, v1')
    e('v_lshl_add_u32 v21, v22, 4, v21')
    e(f'v_add_u32 v21, s{SCRB}, v21')
    e('v_and_b32 v25, 15, v1')
    e('v_lshlrev_b32 v25, 4, v25')
    for (vb, sw, vl, vs, so) in T:
        e(f'v_lshl_add_u32 v8, s{sw}, 2, v22' if sw != TW2 else 'v_add_u32 v8, 32, v22')
        e('v_cmp_le_u32 vcc, 18, v8')
        e(f'v_mad_u32_u24 v{vs}, v8, v26, v25')
        e(f'v_add_u32 v9, v{vs}, v20')
        e(f'v_cndmask_b32 v{vs}, v{vs}, v9, vcc')
    e(f's_lshr_b32 s{q}, s{kp}, 1')
    e(f's_and_b32 s{cc}, s{c}, 7')
    e(f's_lshr_b32 s{kk}, s{c}, 3')
    e(f's_and_b32 s{t}, s{kp}, 1')
    e(f's_cmp_eq_u32 s{kp}, 8')
    e(f's_cselect_b32 s{cc}, s{cc}, s{c}')
    e(f's_cselect_b32 s{kk}, s{kk}, s{t}')
    e(f's_lshl_b32 s{kk}, s{kk}, 9')
    e(f's_add_u32 s{kk}, s{kk}, {WOFF}')
    e(f's_lshl_b32 s{t}, s{q}, 4')
    e(f's_add_u32 s{b+2}, s{t}, s{cc}')
    e(f's_sub_u32 s{b+3}, s{b+2}, s{q}')
    e(f's_cmp_ge_u32 s{q}, 2')
    e(f's_cselect_b32 s{b+4}, 74, 0')
    e(f's_add_u32 s{b+4}, s{b+4}, s{b+2}')
    e(f's_cmp_lt_u32 s{cc}, 2')
    e(f's_cselect_b32 s{t}, 32, 136')
    e(f's_add_u32 s{t}, s{t}, s{cc}')
    e(f's_cmp_eq_u32 s{kp}, 8')
    e(f's_cselect_b32 s{b+4}, s{t}, s{b+4}')
    e(f's_add_u32 s{b+2}, s{b+2}, 34')
    e(f's_add_u32 s{b+3}, s{b+3}, 144')
    for k in (2, 3, 4):
        e(f's_lshl_b32 s{b+k}, s{b+k}, 10')
        e(f's_add_u32 s{b+k}, s{b+k}, s{kk}')
    e(f's_cmp_eq_u32 s{kp}, 8')
    e(f's_cselect_b32 s{t}, 1, 2')
    e(f's_cmp_eq_u32 s{c}, 15')
    e(f's_cselect_b32 s{b+5}, s{t}, 0')
    e(f's_lshl_b32 s46, s{WAVE}, 2')
    e(f's_add_u32 s46, s46, {CNT+16}')
    e('v_mov_b32 v55, s46')
    e('v_mov_b32 v27, 0')
    e('v_mov_b32 v9, 4')
    e('s_waitcnt vmcnt(0) lgkmcnt(0)')
    stamp(2)
    e(f's_cmp_ge_u32 s{NOTASK}, {NTASK}')
    e('s_cbranch_scc1 L_x9')
    e(f's_cmp_lg_u32 s{WAVE}, 4')
    e('s_cbranch_scc1 L_a5')
    e('s_mov_b64 exec, 1')
    e(f'buffer_load_dword v27, v9, {sr(S_DBG)}, 0 offen sc1')
    e('s_mov_b64 exec, -1')
    e('L_a5:')
    for (vb, sw, vl, vs, so) in T:
        for tap in range(2):
            for half in range(2):
                e(f'ds_read_b64_tr_b16 {vr(vb+4*tap+2*half,2)}, v21 offset:{so+1024*tap+512*half}')
    nlab = [0]
    def st01(vb, vs):
        nlab[0] += 1
        e(f'buffer_store_dwordx4 {vr(vb,4)}, v{vs}, {sr(S_WS)}, s{b+2} offen sc1')
        e(f's_cmp_eq_u32 s{b+5}, 2')
        e(f's_cbranch_scc1 L_skip{nlab[0]}')
        e(f'buffer_store_dwordx4 {vr(vb+4,4)}, v{vs}, {sr(S_WS)}, s{b+3} offen sc1')
        e(f'L_skip{nlab[0]}:')
    def st01all(lbl):
        st01(T[0][0], T[0][3]); st01(T[1][0], T[1][3])
        cond3(lbl)
        st01(T[2][0], T[2][3])
    def dosum(vb, tb, ob):
        for i in range(8):
            e(f'v_lshlrev_b32 v{tb+2*i}, 16, v{vb+i}')
            e(f'v_and_b32 v{tb+2*i+1}, s{MASK}, v{vb+i}')
        for i in range(4):
            e(f'v_pk_add_f32 {vr(tb+2*i,2)}, {vr(tb+2*i,2)}, {vr(tb+8+2*i,2)}')
        for i in range(4):
            e(f'v_cvt_pk_bf16_f32 v{ob+i}, v{tb+2*i}, v{tb+2*i+1}')
    def ldswait(off, cmp, operand, tag, slp):
        e(f'L_lw{tag}:')
        e(f'ds_read_b32 v11, v10 offset:{off}')
        e('s_waitcnt lgkmcnt(0)')
        e(f'v_cmp_{cmp}_u32 vcc, {operand}, v11')
        e('s_nop 4')
        e(f's_cbranch_vccnz L_lx{tag}')
        e(f's_sleep {slp}')
        e(f's_branch L_lw{tag}')
        e(f'L_lx{tag}:')
    SO = 240
    e(f's_or_b32 s46, s{EARLY}, s{MODE}')
    e(f's_cmp_eq_u32 s{XK}, 2')
    e('s_cselect_b32 s47, 1, s46')
    e('s_cmp_eq_u32 s47, 0')
    e('s_cbranch_scc1 L_x9')
    for ti, (vb, sw, vl, vs, so) in enumerate(T):
        if ti == 2: cond3('L_x3')
        e(f's_waitcnt lgkmcnt({8-4*ti})')
        dosum(vb, 64 + 16 * ti, SO + 4 * ti)
        e('s_cmp_eq_u32 s46, 0')
        e(f's_cbranch_scc1 L_x5{ti}')
        e(f'buffer_store_dwordx4 {vr(SO+4*ti,4)}, v{vs}, {sr(S_WS)}, s{b+4} offen sc1')
        e(f'L_x5{ti}:')
    e('L_x3:')
    e(f's_cmp_eq_u32 s{MODE}, 0')
    e('s_cbranch_scc1 L_x9')
    e('L_x2:')
    e('s_waitcnt lgkmcnt(0)')
    st01all('L_x4')
    e('L_x4:')
    e(f's_cmp_eq_u32 s{MODE}, 0')
    e('s_cbranch_scc1 L_x9')
    e('s_waitcnt vmcnt(0)')
    e(f's_add_u32 s{PAIR}, s{PAIR}, 1')
    e(f's_cmp_lt_u32 s{PAIR}, {NPROD}')
    e('s_cbranch_scc1 L_prod')
    e('v_mov_b32 v11, 1')
    e('ds_write_b32 v10, v11 offset:12')
    e('s_endpgm')
    e('L_x9:')
    stamp(3)
    decode()
    e('v_subrev_u32 v4, 256, v0')
    e('v_min_u32 v4, 251, v4')
    e('v_mul_u32_u24 v3, 3641, v4')
    e('v_lshrrev_b32 v3, 16, v3')
    e('v_mul_u32_u24 v2, 18, v3')
    e('v_sub_u32 v2, v4, v2')
    e(f'v_mul_u32_u24 v3, {R}, v3')
    e(f'v_min_u32 v3, {160-R}, v3')
    e('v_mul_u32_u24 v4, 1152, v3')
    e('v_lshl_add_u32 v4, v2, 4, v4')
    e(f'v_add_u32 v12, s{XB}, v4')
    e('v_mul_u32_u24 v18, 288, v3')
    e('v_lshl_add_u32 v18, v2, 4, v18')
    e(f'v_add_u32 v19, {X_D1}, v18')
    srd(e, S_X, 4, 1152000, add=BOFF)
    e(f's_add_u32 s46, s{TAG}, {TAGINC}')
    e('v_mov_b32 v56, s46')
    e('s_lshl_b32 s46, s2, 7')
    e('v_mov_b32 v58, s46')
    e(f's_add_u32 s46, s{PAIR}, {NPROD}')
    e('s_lshl_b32 s46, s46, 7')
    e('v_mov_b32 v59, s46')
    def publish(slot, vflag, tag, first, n=0):
        e('s_mov_b64 exec, 1')
        e(f's_waitcnt vmcnt({n})')
        if first: stamp(4)
        e('v_cmp_ne_u32 vcc, 0, v27')
        e('v_not_b32 v57, v56')
        e('s_nop 0')
        e('v_cndmask_b32 v57, v56, v57, vcc')
        e(f'ds_write_b32 v55, v57 offset:{slot}')
        e(f'ds_read_b128 v[20:23], v10 offset:{32+slot}')
        e('s_waitcnt lgkmcnt(0)')
        for i in range(4): e(f'v_xor_b32 v{20+i}, v{20+i}, v56')
        e('v_or3_b32 v20, v20, v21, v22')
        e('v_or_b32 v20, v20, v23')
        e('v_cmp_eq_u32 vcc, 0, v20')
        e('s_and_b64 exec, exec, vcc')
        e(f's_cbranch_execz L_nl{tag}')
        e(f'buffer_store_dword v56, v{vflag}, {sr(S_WS)}, 0 offen sc1')
        e(f'L_nl{tag}:')
        e('s_mov_b64 exec, -1')
    e(f's_cmp_eq_u32 s{EARLY}, 0')
    e('s_cbranch_scc1 L_noflag')
    publish(0, 58, 'x', True)
    if not o.b0early: e('s_barrier')
    e('L_noflag:')
    e(f's_setprio {o.hprio2}')
    RAW, ORAW = 64, 120
    EU = [184, 192]
    OU, DT, DO = 200, 208, 216
    xi = [0]
    NL = R + 1
    hq = []
    def eload():
        k = xi[0]
        if k >= NL: return
        a_ = 12
        if k:
            a_ = 13 + (k & 3)
            e(f'v_add_u32 v{a_}, {1152*k}, v12')
        e(f'buffer_load_dwordx4 {vr(RAW+4*k,4)}, v{a_}, {sr(S_X)}, 0 offen')
        xi[0] += 1
        hq.append(('e', k))
    if o.etouch:
        e(f's_cmp_lt_u32 s2, {NTASK}')
        e('s_cbranch_scc1 L_net')
        e(f's_and_b32 s46, s{NB}, 1')
        e(f's_mul_i32 s46, s46, {1152*6}')
        e('v_add_u32 v12, s46, v12')
        for _ in range(7): eload()
        e('v_subrev_u32 v12, s46, v12')
        e('s_waitcnt vmcnt(0)')
        e('L_net:')
        xi[0] = 0; hq.clear()
    YA = 232
    e(f's_cmp_eq_u32 s{b+5}, 2')
    e('s_cselect_b32 s46, 0x80000000, 0')
    e(f's_cmp_lg_u32 s{HAS3}, 0')
    e('s_cselect_b32 s47, 0x80000000, 0')
    e('s_or_b32 s48, s46, s47')
    for i in range(6):
        m_ = {0: None, 1: 46, 2: None, 3: 46, 4: 47, 5: 48}[i]
        e(f'v_mov_b32 v{YA+i}, v{52+i//2}' if m_ is None else f'v_or_b32 v{YA+i}, s{m_}, v{52+i//2}')
    def ystore(i, a_):
        e(f'buffer_store_dwordx4 {vr(28+4*i,4)}, v{a_}, {sr(S_WS)}, s{b+2+(i&1)} offen sc1')
        hq.append(('y', i))
    stamp(5)
    ldswait(8, 'eq', 4, 'o', 1)
    def unpack(dst, s_):
        for i in range(4):
            e(f'v_lshlrev_b32 v{dst+2*i}, 16, v{s_+i}')
            e(f'v_and_b32 v{dst+2*i+1}, s{MASK}, v{s_+i}')
    def unpackE(dst, k):
        e(f's_waitcnt vmcnt({len(hq)-1-hq.index(("e", k))})')
        unpack(dst, RAW + 4 * k)
        eload()
    def diff(eu, out):
        for i in range(8): e(f'v_sub_f32 v{DT+i}, v{eu+i}, v{OU+i}')
        for i in range(4):
            e(f'v_cvt_pk_bf16_f32 v{out+i}, v{DT+2*i}, v{DT+2*i+1}')
    def rows(hook):
        stamp(6)
        for j in range(R):
            e(f'ds_read_b128 {vr(ORAW+4*j,4)}, v18 offset:{X_O+288*j}')
        unpackE(EU[0], 0)
        e('s_waitcnt lgkmcnt(0)')
        for j in range(R):
            o0 = DO + 8 * (j & 1)
            unpack(OU, ORAW + 4 * j)
            diff(EU[j & 1], o0)
            e(f'ds_write_b128 v18, {vr(o0,4)} offset:{X_D0+288*j}')
            unpackE(EU[(j + 1) & 1], j + 1)
            diff(EU[(j + 1) & 1], o0 + 4)
            e(f'ds_write_b128 v19, {vr(o0+4,4)} offset:{288*j}')
            hook(j)
    e(f's_cmp_ge_u32 s2, {NPROD}')
    e('s_cbranch_scc1 L_pathA')
    e(f's_cmp_lg_u32 s{XK}, 2')
    e('s_cbranch_scc1 L_nox')
    for i in range(3):
        e(f'buffer_store_dwordx4 {vr(SO+4*i,4)}, v{YA+2*i}, {sr(S_WS)}, s{b+4} offen sc1')
    publish(0, 58, 'x2', True)
    e('L_nox:')
    hq.clear(); xi[0] = 0
    for _ in range(o.ein): eload()
    rows(lambda j: None)
    e('s_branch L_rowsdone')
    e('L_pathA:')
    e(f's_cmp_eq_u32 s{XK}, 3')
    e('s_cselect_b32 s47, 0, 0x80000000')
    for i in range(6): e(f'v_or_b32 v{20+i}, s47, v{YA+i}')
    hq.clear(); xi[0] = 0
    for _ in range(NL): eload()
    for i in range(6): ystore(i, 20 + i)
    def hookA(j):
        if j == o.xrow:
            e(f's_cmp_lg_u32 s{XK}, 3')
            e('s_cbranch_scc1 L_xp')
            publish(0, 58, 'x3', True)
            e('L_xp:')
    rows(hookA)
    e('L_rowsdone:')
    e('s_waitcnt lgkmcnt(0)')
    stamp(7)
    e('v_mov_b32 v11, 1')
    e('s_mov_b64 exec, 1')
    e('ds_add_u32 v10, v11 offset:16')
    e('s_mov_b64 exec, -1')
    e(f's_cmp_eq_u32 s{YT}, 0')
    e('s_cbranch_scc1 L_noy')
    e(f's_setprio {o.hprio}')
    e('L_yw:')
    e('ds_read_b64 v[20:21], v10')
    e('s_waitcnt lgkmcnt(0)')
    e('v_lshrrev_b32 v21, 14, v21')
    e('v_and_b32 v21, -4, v21')
    e('v_or_b32 v20, v20, v21')
    e(f'v_cmp_le_u32 vcc, s{YT}, v20')
    e('s_nop 4')
    e('s_cbranch_vccnz L_yx')
    e('s_sleep 4')
    e('s_branch L_yw')
    e('L_yx:')
    for i in range(6):
        ystore(i, YA + i)
        e(f's_waitcnt vmcnt({o.ythr})')
    publish(16, 59, 'y', False)
    if o.diag == 1: stamp(8)
    e('L_noy:')
    e(f's_cmp_lg_u32 s{WAVE}, 4')
    e('s_cbranch_scc1 L_hend')
    e('L_guard:')
    e('ds_read_b32 v11, v10 offset:4')
    e('s_waitcnt lgkmcnt(0)')
    e('v_readfirstlane_b32 s46, v11')
    e('s_nop 3')
    e('s_cmp_eq_u32 s46, 4')
    e('s_cbranch_scc1 L_hend')
    e('s_cmp_lt_u32 s46, 0x10000')
    e('s_cbranch_scc0 L_rescue')
    e('s_sleep 16')
    e('s_branch L_guard')
    e('L_rescue:')
    e(f's_mov_b32 s{MODE}, 1')
    e(f's_mov_b32 s{HAS3}, 1')
    e(f's_mov_b32 s{NOTASK}, 0')
    e(f's_lshr_b32 s{TW0}, s{NB}, 1')
    e(f's_add_u32 s{TW1}, s{NB}, 9')
    e(f's_lshr_b32 s{TW1}, s{TW1}, 1')
    e(f's_mov_b32 s{PAIR}, 0')
    e('s_branch L_prod')
    e('L_hend:')
    if o.padto and o.padev[0] == 'h': padloop('h')
    if o.diag == 1:
        stamp(9)
        dump(10)
    e('L_end:')
    e('s_endpgm')
    if o.hfirst:
        m0, h0 = mark['main0'], mark['help0']
        e.L = e.L[:m0] + e.L[h0:] + ['.p2align 6'] + e.L[m0:h0]
    e('L_codeend:')
    e('.section .rodata,"a"')
    e('.p2align 6')
    e(f'.amdhsa_kernel {KN}')
    for x in ['next_free_vgpr 256', 'next_free_sgpr 102', 'accum_offset 256', 'group_segment_fixed_size 0', 'kernarg_size 40',
              'user_sgpr_count 2', 'user_sgpr_kernarg_segment_ptr 1', 'system_sgpr_workgroup_id_x 1']:
        e('  .amdhsa_' + x)
    e('.end_amdhsa_kernel')
    n = haz.check(e.L)
    if n: print(f'{n} hazards', file=sys.stderr)
    return f'; @launch grid=({NWG},1,1) block=(512,1,1) lds={LDS_BYTES}\n' + e.text()

def opts(argv=None):
    ap = argparse.ArgumentParser()
    ap.add_argument('-o', default='k.s')
    for nm, d in [('diag', 0), ('pf', 16), ('pf0', 8), ('wgap', 4), ('wres', 0), ('wsc1', 0), ('nfill', 2), ('fstride', 128), ('sleep', 0), ('maxpoll', 3000), ('nopoll', 0),
                  ('hprio', 3), ('hprio2', 0), ('mprio', 2), ('epre', 0), ('ein', 7), ('dpre', 7), ('b0early', 0), ('vbd', 33), ('nopk', 1), ('padto', 0), ('npdelay', 0), ('opre', 0), ('etouch', 0), ('orev', 1), ('b0late', 1), ('dec', 1), ('tail', 1), ('xla', 9), ('hold', 1), ('prest', 0), ('xslot', 0), ('noclosed', 0), ('cpf', 1), ('hfirst', 1), ('warmb', 1), ('wsfirst', 0), ('flead', 6), ('ythr', 6), ('xrow', 1), ('padstep', 33), ('probe', 0), ('probeoff', 0x4000000)]:
        ap.add_argument('--' + nm, type=int, default=d)
    ap.add_argument('--oflags', default='')
    ap.add_argument('--pmap', default='18,18,18,18,18,18,18,18')
    ap.add_argument('--padev', default='m0')
    ap.add_argument('--trig', default='10,25,40')
    ap.add_argument('--yrow', default='0,7,2,9,5,11')
    ap.add_argument('--pfcs', default='4,5,5,8,8')
    ap.add_argument('--fflags', default='')
    ap.add_argument('--marks', default='0,4,8,12,16,24,33,47,58')
    o = ap.parse_args(argv)
    o.marks = [int(x) for x in o.marks.split(',')]
    o.yrow = [int(x) for x in o.yrow.split(',')]
    o.pfcs = [int(x) for x in o.pfcs.split(',')]
    o.trig = [int(x) for x in o.trig.split(',')]
    return o

if __name__ == '__main__':
    o = opts()
    open(o.o, 'w').write(gen(o))
```

```python
import re, sys, argparse
import haz

KN = 'standalone__autoregressive_conv_wavernn__speech_kernel'
NWG = 252
NPROD = 144
ARR = 160 * 288
X_D0, X_O, X_D1 = 0, ARR, 2 * ARR
CNT = 3 * ARR
SCR = CNT + 64
LDS_BYTES = SCR + 18432
NSTEP = 106
WOFF = int(__import__('os').environ.get('WOFF', '0x100000'), 0)
NONCE = 0x10000
DIAG = 0x800000
WS_REC = max(0x1000000, WOFF + 0x400000, int(__import__('os').environ.get('WSREC', '0'), 0))
TAGINC = 0x9E3779B9
R = 12

class Em:
    def __init__(self): self.L = []
    def __call__(self, s): self.L.append(s)
    def text(self): return '\n'.join(self.L) + '\n'

def vr(a, n=1): return f'v{a}' if n == 1 else f'v[{a}:{a+n-1}]'
def sr(a, n=4): return f's[{a}:{a+n-1}]'

def streams():
    out = []
    for typ in (0, 1):
        S = []
        pid = [0]
        def add(arr, chunk, cs, acc):
            for c in cs: S.append((pid[0], arr, chunk, c, acc))
            pid[0] += 1
        if typ == 0:
            add('O', 0, range(16), 'P'); add('O', 1, range(16), 'P'); add('O', 'rem', range(0, 2), 'P')
            for q in range(4): add('D', q, range(16), 'Q')
            add('D', 'rem', range(8), 'Q')
        else:
            add('O', 2, range(16), 'P'); add('O', 3, range(16), 'P'); add('O', 'rem', range(2, 8), 'P')
            for q in range(4): add('D', q, range(15), 'Q')
            add('D', 'rem', range(8), 'Q')
        assert len(S) == NSTEP
        out.append(S)
    return out

S_X, S_W, S_WO, S_WS, S_OUT, S_DBG = 20, 24, 28, 32, 36, 40
WAVE, NB, BAT, PAR, MB, BOFF = 14, 15, 16, 17, 18, 19
PAIR0 = 3
XB = 52
MASK = 53
TW0, TW1, TW2, PAIR, HAS3, MODE, SCRB, TAG, LAST, NPOLL = 44, 45, 54, 55, 56, 57, 58, 59, 60, 61
TS = 62
TYP, WSO = 68, 69
EARLY, XK, YT, FIDX = 90, 91, 92, 93
NOTASK = 94
NTASK = NPROD + 96
FO = 97
C2L, CNL, C60 = 90, 92, 94
ST0 = 70

def srd(e, d, ptr, rec, add=None):
    if add is None:
        e(f's_mov_b32 s{d}, s{ptr}')
        e(f's_and_b32 s{d+1}, s{ptr+1}, 0xffff')
    else:
        e(f's_add_u32 s{d}, s{ptr}, s{add}')
        e(f's_addc_u32 s{d+1}, s{ptr+1}, 0')
        e(f's_and_b32 s{d+1}, s{d+1}, 0xffff')
    e(f's_mov_b32 s{d+2}, {rec}')
    e(f's_mov_b32 s{d+3}, 0x20000')

def gen(o):
    e = Em()
    role = ['m']
    def padloop(tag):
        e(f'L_pad{tag}:')
        e('s_memrealtime s[98:99]')
        e('s_waitcnt lgkmcnt(0)')
        e('s_sub_u32 s98, s98, s100')
        e(f's_cmp_lt_u32 s98, {o.padto}')
        e(f's_cbranch_scc1 L_pad{tag}')
    def stamp(k, lvl=1):
        if o.padto and lvl == 1 and o.padev == f'{role[0]}{k}':
            e('s_memrealtime s[100:101]'); e('s_waitcnt lgkmcnt(0)')
        if o.diag == lvl or (o.diag == 4 and lvl == 1): e(f's_memrealtime s[{ST0+2*k}:{ST0+2*k+1}]')
    def dump(nst):
        e('s_waitcnt lgkmcnt(0)')
        e('v_mov_b32 v250, 0')
        for k in range(nst): e(f'v_writelane_b32 v250, s{ST0+2*k}, {k}')
        e(f'v_writelane_b32 v250, s{NPOLL}, 13')
        e(f'v_writelane_b32 v250, s95, 12')
        e(f'v_writelane_b32 v250, s2, 14')
        e('s_getreg_b32 s46, hwreg(HW_REG_XCC_ID)')
        e('v_writelane_b32 v250, s46, 15')
        e(f's_lshl_b32 s46, s2, 3'); e(f's_add_u32 s46, s46, s{WAVE}'); e('s_lshl_b32 s46, s46, 6'); e(f's_add_u32 s46, s46, {DIAG}')
        e('v_lshl_add_u32 v251, v1, 2, s46')
        e('s_mov_b64 exec, 0xffff')
        e(f'buffer_store_dword v250, v251, {sr(S_WS)}, 0 offen')
        e('s_mov_b64 exec, -1')

    e('.amdgcn_target "amdgcn-amd-amdhsa--gfx950"')
    e('.text')
    e(f'.globl {KN}')
    e('.p2align 8')
    e(f'.type {KN},@function')
    e(f'{KN}:')
    e(f's_cmp_ge_u32 s2, {NWG}')
    e('s_cbranch_scc1 L_end')
    stamp(0)
    if o.padto and o.padev != 'm0': e('s_memrealtime s[100:101]')
    e('s_load_dwordx4 s[4:7], s[0:1], 0')
    e('s_load_dwordx4 s[8:11], s[0:1], 16')
    e('s_load_dwordx2 s[12:13], s[0:1], 32')
    e('v_lshrrev_b32 v2, 6, v0')
    e('v_and_b32 v1, 63, v0')
    e(f'v_readfirstlane_b32 s{WAVE}, v2')
    def decode():
        e('s_and_b32 s44, s2, 7')
        e('s_lshr_b32 s45, s2, 3')
        e('s_mul_i32 s46, s44, 31')
        e('s_min_u32 s44, s44, 4')
        e('s_add_u32 s46, s46, s44')
        e('s_add_u32 s46, s46, s45')
        e('s_mul_hi_u32 s47, s46, 68174085')
        e('s_mul_i32 s48, s47, 63')
        e('s_sub_u32 s48, s46, s48')
        e(f's_mul_hi_u32 s{NB}, s48, 613566757')
        e(f's_mul_i32 s49, s{NB}, 7')
        e('s_sub_u32 s49, s48, s49')
        e('s_mul_i32 s47, s47, 7')
        e('s_add_u32 s47, s47, s49')
        e(f's_and_b32 s{PAR}, s47, 1')
        e('s_lshr_b32 s47, s47, 1')
        e('s_cmp_ge_u32 s47, 7')
        e(f's_cselect_b32 s{BOFF}, 1152000, 0')
        e('s_cselect_b32 s48, 7, 0')
        e(f's_sub_u32 s{MB}, s47, s48')
        e(f's_mul_i32 s{XB}, s{MB}, 576')
        e(f's_add_u32 s{XB}, s{XB}, s{PAR}')
        e(f's_sub_u32 s{XB}, s{XB}, 60')
        e(f's_mul_i32 s{XB}, s{XB}, 288')
    e(f's_cmp_ge_u32 s{WAVE}, 4')
    e('s_cbranch_scc1 L_helper')
    if o.cpf:
        e('s_lshr_b32 s44, s2, 3')
        e(f's_lshl_b32 s45, s{WAVE}, 5')
        e('s_add_u32 s44, s44, s45')
        e('s_sub_u32 s44, s44, 26')
        e('s_cmp_ge_u32 s44, 5')
        e('s_cbranch_scc1 L_main')
        e('s_getpc_b64 s[46:47]')
        e('L_pc:')
        e('s_lshl_b32 s44, s44, 13')
        e('v_lshl_add_u32 v2, v1, 7, s44')
        e('v_min_u32 v2, L_codeend-L_pc-4, v2')
        e('global_load_dword v63, v2, s[46:47]')
    if o.hfirst: e('s_branch L_main')
    mark = {'main0': len(e.L)}
    e('L_main:')
    e(f's_mov_b32 s{MASK}, 0xffff0000')
    e(f's_mov_b32 s{NPOLL}, 0')
    if o.diag: e('s_mov_b32 s95, 0')
    decode()

    VXO, VXOR, VXD, VXDR, VWL, VEX, VEXP, VOUT = 30, 31, 32, 33, 34, 35, 36, 37
    VF = 40
    VA = 48
    VCL = 60
    e('v_mul_u32_u24 v3, 3641, v0')
    e('v_lshrrev_b32 v3, 16, v3')
    e('v_mul_u32_u24 v2, 18, v3')
    e('v_sub_u32 v2, v0, v2')
    e('v_mul_u32_u24 v3, 1152, v3')
    e('v_lshl_add_u32 v3, v2, 4, v3')
    e(f's_add_u32 s46, s{XB}, 576')
    e(f'v_add_u32 v{VA}, s46, v3')
    e('v_mov_b32 v5, 16192')
    e('v_mov_b32 v6, 17056')
    for k in range(1, 12):
        e('v_cmp_le_u32 vcc, 14, v2')
        e('v_add_u32 v3, 4, v2')
        e('v_subrev_u32 v4, 14, v2')
        e('v_cndmask_b32 v7, v5, v6, vcc')
        e('v_cndmask_b32 v2, v3, v4, vcc')
        e(f'v_add_u32 v{VA+k}, v{VA+k-1}, v7')
    e(f's_lshl_b32 s50, s{WAVE}, 10')
    e(f's_add_u32 s50, s50, {X_O}')
    e(f's_add_u32 s51, s50, {4096*11}')
    e('s_movk_i32 s49, 4096')
    if o.orev:
        e(f's_bitcmp0_b32 s{NB}, 0')
        e('s_cbranch_scc1 L_fwd')
        for k in range(5): e(f'v_swap_b32 v{VA+k}, v{VA+10-k}')
        e(f's_add_u32 s50, s50, {4096*10}')
        e('s_movk_i32 s49, -4096')
        e('L_fwd:')
    e(f'v_mov_b32 v{VF+1}, {CNT}')
    for r in range(4, 8): e(f'v_mov_b32 v{r}, 0')
    e(f'ds_write_b128 v{VF+1}, v[4:7]')
    e(f'ds_write_b128 v{VF+1}, v[4:7] offset:16')
    e('s_waitcnt lgkmcnt(0)')
    e(f's_load_dword s{TAG}, s[12:13], {NONCE}')
    srd(e, S_X, 4, 1152000, add=BOFF)
    def odma(k):
        e(f's_mov_b32 m0, s{51 if k == 11 else 50}')
        e('s_add_u32 s50, s50, s49')
        e(f'buffer_load_dwordx4 v{VA+k}, {sr(S_X)}, 0 offen lds')
    def etouch():
        e(f'buffer_load_dword v62, v9, {sr(S_X)}, 0 offen')
    if o.mtouch:
        e('v_min_u32 v8, 39, v1')
        e('v_lshrrev_b32 v9, 2, v8')
        e(f's_mul_i32 s46, s{WAVE}, 10')
        e('v_add_u32 v9, s46, v9')
        e(f'v_mul_u32_u24 v9, {4*1152}, v9')
        e('v_and_b32 v8, 3, v8')
        e('v_mul_u32_u24 v8, 92, v8')
        e(f's_and_b32 s46, s{NB}, 3')
        e('s_mul_i32 s46, s46, 1152')
        e(f's_add_u32 s46, s46, s{XB}')
        e('v_add3_u32 v9, v9, v8, s46')
    if o.mtouch == 2: etouch()
    for k in range(o.opre): odma(k)
    e('s_barrier')
    stamp(1)
    if o.mtouch == 3: etouch()
    for k in range(o.opre, 12):
        if k == 11:
            e(f's_cmp_lg_u32 s{WAVE}, 0')
            e('s_cbranch_scc1 L_o11')
        odma(k)
    e('L_o11:')
    if o.mtouch == 1: etouch()
    srd(e, S_WS, 12, WS_REC)
    srd(e, S_OUT, 8, 1152000, add=BOFF)
    srd(e, S_DBG, 10, 256)
    e('v_and_b32 v2, 15, v1')
    e('v_lshrrev_b32 v3, 4, v1')
    e('v_subrev_u32 v5, 4, v2')
    e('v_add_u32 v6, 8, v2')
    e('v_cmp_gt_u32 vcc, 4, v2')
    e('v_cmp_le_u32 s[46:47], 12, v2')
    e(f's_and_b32 s{TYP}, s{WAVE}, 1')
    e(f's_lshr_b32 s48, s{WAVE}, 1')
    e('v_cndmask_b32 v5, v5, v6, vcc')
    e('v_cndmask_b32 v5, v5, v2, s[46:47]')
    e('v_mul_u32_u24 v5, 9, v5')
    e('v_mul_u32_u24 v4, 288, v5')
    e('v_lshl_add_u32 v6, v3, 4, v4')
    e('v_and_b32 v7, 1, v3')
    e('v_lshl_add_u32 v7, v7, 4, v4')
    e('v_lshrrev_b32 v8, 1, v3')
    e('v_mul_u32_u24 v8, 2304, v8')
    e('v_add_u32 v7, v7, v8')
    e('v_add_u32 v7, 256, v7')
    e(f's_mul_i32 s49, s{TYP}, {X_D1}')
    e(f'v_add_u32 v{VXO}, {X_O}, v6')
    e(f'v_add_u32 v{VXOR}, {X_O}, v7')
    e(f'v_add_u32 v{VXD}, s49, v6')
    e(f'v_add_u32 v{VXDR}, s49, v7')
    e('v_lshlrev_b32 v6, 4, v1')
    e(f's_mul_i32 s49, s{WAVE}, 9216')
    e(f's_add_u32 s49, s49, {X_O}')
    e(f'v_add_u32 v{VEX}, s49, v6')
    e(f's_xor_b32 s49, s{WAVE}, 1')
    e('s_mul_i32 s49, s49, 9216')
    e(f's_add_u32 s49, s49, {X_O}')
    e(f'v_add_u32 v{VEXP}, s49, v6')
    e('v_and_b32 v8, 0x39, v1')
    e('v_bfe_u32 v9, v1, 1, 1')
    e('v_lshl_add_u32 v8, v9, 2, v8')
    e('v_bfe_u32 v9, v1, 2, 1')
    e('v_lshl_add_u32 v8, v9, 1, v8')
    e(f'v_lshlrev_b32 v{VWL}, 4, v8')
    e(f's_mul_i32 s49, s{TYP}, 576')
    e(f's_add_u32 s49, s49, s{XB}')
    e(f's_add_u32 s49, s49, {60*288}')
    e(f's_lshl_b32 s50, s{NB}, 5')
    e('s_add_u32 s49, s49, s50')
    e('s_lshl_b32 s50, s48, 4')
    e('s_add_u32 s49, s49, s50')
    e('v_mul_u32_u24 v8, 1152, v5')
    e('v_lshl_add_u32 v8, v3, 2, v8')
    e(f'v_add_u32 v{VOUT}, s49, v8')
    e(f'v_add_u32 v{VOUT+1}, 3456, v{VOUT}')
    e(f'v_add_u32 v{VOUT+2}, 6912, v{VOUT}')
    e(f's_lshl_b32 s49, s{NB}, 1')
    e('s_add_u32 s49, s49, s48')
    e('s_lshl_b32 s49, s49, 1')
    e(f's_add_u32 s49, s49, s{TYP}')
    e(f's_mul_i32 s{WSO}, s49, {NSTEP*1024}')
    e(f's_add_u32 s{WSO}, s{WSO}, {WOFF}')
    e(f's_mov_b32 s{C2L}, 0x4038aa3b'); e(f's_mov_b32 s{C2L+1}, 0x4038aa3b')
    e(f's_mov_b32 s{CNL}, 0xbfb8aa3b'); e(f's_mov_b32 s{CNL+1}, 0xbfb8aa3b')
    e(f's_mov_b32 s{C60}, 0x42700000')
    e(f'v_min_u32 v{VF}, 31, v1')
    e(f'v_lshlrev_b32 v{VF}, 7, v{VF}')
    e(f'v_min_u32 v{VF+6}, 47, v1')
    e(f'v_lshlrev_b32 v{VF+6}, 7, v{VF+6}')
    e(f'v_mov_b32 v{VF+2}, 1')
    e('s_lshl_b32 s46, s48, 2')
    e(f'v_add_u32 v{VF+5}, s46, v{VF+1}')
    e(f's_or_b32 s46, s2, s{WAVE}')
    e('v_or_b32 v2, s46, v1')
    e('v_cmp_eq_u32 vcc, 0, v2')
    e(f'v_mov_b32 v{VCL}, -16')
    e(f'v_mov_b32 v{VCL+1}, -16')
    e(f'v_mov_b32 v3, {NONCE}')
    e(f'v_cndmask_b32 v{VCL}, v{VCL}, 4, vcc')
    e(f'v_cndmask_b32 v{VCL+1}, v{VCL+1}, v3, vcc')
    e(f's_lshl_b32 s{FO}, s{TYP}, 13')
    if o.warmb:
        e(f's_cmp_eq_u32 s{TYP}, 1')
        e('s_cbranch_scc1 L_warmB')
        e('L_warmret:')
    e('s_waitcnt vmcnt(0) lgkmcnt(0)')
    stamp(2)
    e('s_mov_b64 exec, 1')
    e(f'ds_add_u32 v{VF+1}, v{VF+2} offset:8')
    e('s_mov_b64 exec, -1')
    e(f's_add_u32 s{TAG}, s{TAG}, {TAGINC}')
    e(f'v_mov_b32 v{VF+3}, s{TAG}')
    def flagwait(tag, vaddr, back):
        e(f'L_fw{tag}:')
        if o.diag and len(tag) == 2: e(f's_add_u32 s95, s95, {1 << (5 * int(tag[1]))}')
        e(f'buffer_load_dword v{VF+4}, v{vaddr}, {sr(S_WS)}, s{FO} offen sc1')
        e(f'ds_read_b32 v{VF+7}, v{VF+1} offset:12')
        e(f's_add_u32 s{NPOLL}, s{NPOLL}, 1')
        e('s_waitcnt vmcnt(0) lgkmcnt(0)')
        e(f'v_cmp_ne_u32 vcc, v{VF+3}, v{VF+4}')
        e(f'v_readfirstlane_b32 s46, v{VF+7}')
        e('s_nop 3')
        e(f's_cbranch_vccz {back}')
        e('s_cmp_lg_u32 s46, 0')
        e(f's_cbranch_scc1 {back}')
        e(f's_cmp_lg_u32 s{NPOLL}, {o.maxpoll}')
        e(f's_cbranch_scc1 L_fw{tag}')
        e(f'v_mov_b32 v{VF+7}, 0x10000')
        e('s_mov_b64 exec, 1')
        e(f'ds_add_u32 v{VF+1}, v{VF+7} offset:4')
        e('s_mov_b64 exec, -1')
        e(f's_branch L_fw{tag}')
    if o.gate:
        e('L_gate:')
        e(f'ds_read_b32 v{VF+4}, v{VF+1} offset:8')
        e('s_waitcnt lgkmcnt(0)')
        e(f'v_cmp_gt_u32 vcc, 0x400, v{VF+4}')
        e('s_nop 4')
        e('s_cbranch_vccz L_gate2')
        e('s_sleep 1')
        e('s_branch L_gate')
        e('L_gate2:')
    flagwait('0', VF, 'L_go')
    e('L_go:')
    stamp(3)
    e('L_gw:')
    e(f'ds_read_b32 v{VF+4}, v{VF+1} offset:8')
    e('s_waitcnt lgkmcnt(0)')
    e(f'v_and_b32 v{VF+4}, 0xff, v{VF+4}')
    e(f'v_cmp_ne_u32 vcc, 4, v{VF+4}')
    e('s_nop 4')
    e('s_cbranch_vccnz L_gw')
    stamp(4)
    e(f's_setprio {o.mprio}')
    e(f's_cmp_eq_u32 s{TYP}, 1')
    e('s_cbranch_scc1 L_typeB')

    ACC = {'P': 64, 'Q': 100}
    WR, TMP = 136, 224
    XRING = [200 + 4 * i for i in range(6)]
    XWIN = [4 + 4 * i for i in range(6)] + [240 + 4 * i for i in range(4)]
    VC = 28
    PF = o.pf
    GT = 98
    wflags = ' sc1' if o.wsc1 else ''
    for typ, S in enumerate(streams()):
        if typ == 1:
            e('.p2align 6')
            if o.warmb: e('L_warmB:'); e('s_branch L_warmret')
            e('L_typeB:')
        ops = []
        vstart = {}
        lastv = GT - 1 if o.tail else NSTEP + 7
        for v in range(lastv + 1):
            vstart[v] = len(ops)
            for j in range(8, -1, -1):
                if 0 <= v - j < NSTEP: ops.append((v - j, j))
        ntail = len(ops)
        if o.tail:
            for j in range(9):
                for g in range(GT - j, NSTEP): ops.append((g, j))
        assert len(ops) == NSTEP * 9 and len(set(ops)) == len(ops)
        N = len(ops)
        def key(n):
            g, j = ops[n]
            pid, arr, ch, c, acc = S[g]
            k = (pid, arr, ch, c + j)
            if n >= ntail and g < GT: k = k + ((n,) if not o.hold else ('h',))
            return k
        first, last = {}, {}
        for n in range(N):
            first.setdefault(key(n), n); last[key(n)] = n
        wfirst, wlast = {}, {}
        for n, (g, j) in enumerate(ops):
            wfirst.setdefault(g, n); wlast[g] = n
        tasks = []
        for k, n0 in first.items():
            win = o.tail and k[2] == 'rem' and k[1] == 'D'
            la = o.xla if n0 < ntail else 6
            if win: la = 40 if k[3] < 8 else 12
            tasks.append([n0 - la, n0 - 1, 'X', k])
        for g in range(NSTEP):
            rel = -100 + g if g < o.pf0 else max(0, wfirst[g] - 9 * PF - (9 * (NSTEP - g) if g >= GT else 0) + (0 if g < GT else 36))
            tasks.append([rel, wfirst[g] - 1, 'W', g])
        def at(v, off=0): return vstart[v] + off
        firstD = min(n for n in range(N) if S[ops[n][0]][1] == 'D')
        lastO = max(n for n in range(N) if S[ops[n][0]][1] == 'O')
        lastP = {j: max(n for n in range(N) if ops[n][1] == j and S[ops[n][0]][4] == 'P') for j in range(9)}
        slow = []
        vused = set()
        def check(v, off, cnt, tag):
            tasks.append([at(v - 1, 3), at(v - 1, 8), 'L', (f'ds_read_b32 v{VC}, v{VF+1} offset:{off}', ('c', tag))])
            tasks.append([at(v, 0), at(v, 1), 'C', (f'v_cmp_ne_u32 vcc, {cnt}, v{VC}', ('c', tag))])
            tasks.append([at(v, 6), at(v, 7), 'I', [f's_cbranch_vccnz L_slow{typ}{tag}', f'L_back{typ}{tag}:']])
            slow.append((tag, off, cnt))
            vused.add(v)
            return at(v, 8)
        def add1(pos, off):
            tasks.append([pos, pos + 4, 'A', off])
        vD = [v for v in vstart if vstart[v] <= firstD - o.xla][-1] - 1
        okD = check(vD, 16, 4, 'D')
        assert okD <= firstD - o.xla
        add1(lastO, 20)
        VP = 47
        okR = check(VP, 20, 4, 'R')
        for j in range(9):
            assert lastP[j] + 12 < at(VP + 1 + j, 2)
            tasks.append([at(VP + 1 + j, 2), at(VP + 1 + j, 8), 'L', (f'ds_write_b128 v{VEX}, {vr(ACC["P"]+4*j,4)} offset:{1024*j}', ('pw', j))])
        tasks.append([at(VP + 10, 0), at(VP + 10, 4), 'A', 'pair'])
        VQ = VP + 13
        okP = check(VQ, 'pair', 2, 'P')
        for j in range(9):
            tasks.append([at(VQ + 1 + j, 2), at(VQ + 1 + j, 8), 'L', (f'ds_read_b128 {vr(TMP+4*(j&1),4)}, v{VEXP} offset:{1024*j}', ('pr', j))])
            v = VQ + 2 + j
            pos = at(v, 8 - (j + 2) - 1) if j <= 6 else at(v, 8 - (j - 7) - 1)
            sh = 1 if j >= 7 else 0
            tasks.append([pos - 1 + sh, pos - 1 + sh, 'Q', (j, 0)])
            tasks.append([pos + sh, pos + sh, 'Q', (j, 1)])
        if typ == 0:
            tasks.append([at(72, 4), at(72, 8), 'S', f'buffer_store_dword v{VCL+1}, v{VCL}, {sr(S_DBG)}, 0 offen sc1'])
            tasks.append([at(92, 4), at(92, 8), 'S', f'buffer_store_dword v{VF+3}, v{VCL+1}, {sr(S_WS)}, 0 offen sc1'])
        fslow = []
        passes = {}
        for g in range(NSTEP): passes.setdefault(S[g][0], g)
        need = [(passes[1], VF, 32 + 64 * typ), (32, VF + 6, 128), (passes[4], VF, 176), (passes[5], VF, 208), (passes[6], VF + 6, 240)]
        for ci, (gn, va, idx) in enumerate(need):
            v = gn - o.pfcs[ci] - 1
            while v in vused: v -= 1
            tasks.append([at(v - o.flead, 4), at(v - o.flead, 8), 'F', (va, idx, ci)])
            tasks.append([at(v, 0), at(v, 1), 'G', ci])
            tasks.append([at(v, 6), at(v, 7), 'I', [f's_cbranch_vccnz L_fw{typ}{ci}', f'L_fb{typ}{ci}:']])
            fslow.append((ci, va))
            assert v not in vused, v
            for t in tasks:
                if t[2] == 'W' and (t[3] >= gn): t[0] = max(t[0], at(v, 8))
        tasks.append([at(v + 1, 2), at(v + 1, 8), 'A', 4])
        if typ == 0:
            for lvl, v in enumerate(o.trig): tasks.append([at(v, 2), at(v, 8), 'P', lvl + 1])
        tasks.sort(key=lambda t: (t[0], t[1]))
        vq, lq = [], []
        dirty = [False]
        xreg, busy = {}, {}
        wn = [0]
        wr = {}
        lastw = [-100]
        BIG = [WR + 4 * i for i in range(16)] + XWIN + [ACC['P'] + 4 * i for i in range(9)]
        for i in range(9): busy[ACC['P'] + 4 * i] = at(VP + 12)
        def wok(t, n):
            if t[2] != 'W': return True
            if t[3] != wn[0]: return False
            free = sum(1 for x in BIG if busy.get(x, -1) <= n)
            if t[1] - n <= 9 * 3: return free > 0
            return n - lastw[0] >= o.wgap and free > (o.wres if n > at(80) else 0)
        since = {}
        fill = []
        def em(x):
            e(x)
            if not x.endswith(':'):
                for jj in since: since[jj] += 1
        def lwait(tag):
            if tag not in lq: return
            i = lq.index(tag)
            em(f's_waitcnt lgkmcnt({0 if dirty[0] else len(lq)-1-i})')
            if dirty[0]: lq.clear(); dirty[0] = False
            else: del lq[:i + 1]
        def vwait(g):
            if g not in vq: return
            i = vq.index(g)
            em(f's_waitcnt vmcnt({len(vq)-1-i})')
            del vq[:i + 1]
        def run(t, n):
            kind, p = t[2], t[3]
            if kind == 'X':
                pool = BIG if (p[-1] == 'h' or (p[2] == 'rem' and p[1] == 'D')) else XRING
                r = [x for x in pool if busy.get(x, -1) <= n]
                assert r, ('no x register', p, n)
                r = min(r, key=lambda x: busy.get(x, -1))
                busy[r] = last[p]; xreg[p] = r
                arr, ch, s_ = p[1], p[2], p[3]
                if ch == 'rem': em(f'ds_read_b128 {vr(r,4)}, v{VXOR if arr == "O" else VXDR} offset:{288*s_}')
                else: em(f'ds_read_b128 {vr(r,4)}, v{VXO if arr == "O" else VXD} offset:{64*ch+288*s_}')
                lq.append(p)
            elif kind == 'W':
                g = p
                r = min([x for x in BIG if busy.get(x, -1) <= n], key=lambda x: busy.get(x, -1))
                busy[r] = wlast[g]; wr[g] = r
                assert g == wn[0]; wn[0] += 1
                lastw[0] = n
                em(f'buffer_load_dwordx4 {vr(r,4)}, v{VWL}, {sr(S_WS)}, s{WSO} offen offset:{1024*(g%4)}{wflags}')
                if g % 4 == 3: em(f's_add_u32 s{WSO}, s{WSO}, 4096')
                vq.append(g)
            elif kind == 'L':
                em(p[0].replace('offset:pair', 'offset:24').replace(f'v{VF+1} offset:24', f'v{VF+5} offset:24')); lq.append(p[1])
            elif kind == 'C':
                lwait(p[1]); em(p[0])
            elif kind == 'I':
                for x in p: em(x)
            elif kind == 'A':
                em('s_mov_b64 exec, 1')
                if p == 'pair': em(f'ds_add_u32 v{VF+5}, v{VF+2} offset:24')
                else: em(f'ds_add_u32 v{VF+1}, v{VF+2} offset:{p}')
                em('s_mov_b64 exec, -1')
                lq.append(('a', p))
            elif kind == 'Q':
                p, hf = p
                lwait(('pr', p))
                q = ACC['Q'] + 4 * p; t_ = TMP + 4 * (p & 1)
                for i in (2 * hf, 2 * hf + 1): em(f'v_add_f32 v{q+i}, v{q+i}, v{t_+i}')
            elif kind == 'S':
                em(p); vq.append(('s', n))
            elif kind == 'F':
                em(f's_mov_b32 s{FO}, {128*p[1]}')
                em(f'buffer_load_dword v{VF+4}, v{p[0]}, {sr(S_WS)}, s{FO} offen {o.fflags}'); vq.append(('f', p[2]))
            elif kind == 'G':
                vwait(('f', p)); em(f'v_cmp_ne_u32 vcc, v{VF+3}, v{VF+4}')
            elif kind == 'P':
                em(f'v_mov_b32 v{VF+7}, {p}')
                em('s_mov_b64 exec, 1')
                em(f'ds_max_u32 v{VF+1}, v{VF+7}')
                em('s_mov_b64 exec, -1')
                lq.append(('p', p))
        def epi(j, pk):
            q = ACC['Q'] + 4 * j
            t = TMP + 8 * (j & 1)
            I = []
            if pk:
                I.append(f'v_pk_mul_f32 {vr(t,2)}, {vr(q,2)}, s[{C2L}:{C2L+1}]')
                I.append(f'v_pk_mul_f32 {vr(t+2,2)}, {vr(q+2,2)}, s[{CNL}:{CNL+1}]')
            else:
                for i in (0, 1): I.append(f'v_mul_f32 v{t+i}, s{C2L}, v{q+i}')
                for i in (2, 3): I.append(f'v_mul_f32 v{t+i}, s{CNL}, v{q+i}')
            I.append(f'v_min_f32 v{t}, s{C60}, v{t}')
            I.append(f'v_min_f32 v{t+1}, s{C60}, v{t+1}')
            for i in (0, 1, 2, 3): I.append(f'v_exp_f32 v{t+i}, v{t+i}')
            if pk:
                I.append(f'v_pk_add_f32 {vr(t+4,2)}, {vr(t,2)}, 1.0 op_sel_hi:[1,0]')
                I.append(f'v_pk_add_f32 {vr(t+6,2)}, {vr(t,2)}, -1.0 op_sel_hi:[1,0]')
                I.append(f'v_pk_fma_f32 {vr(t+4,2)}, {vr(t+4,2)}, {vr(t+2,2)}, {vr(t+4,2)}')
            else:
                for i in (0, 1): I.append(f'v_add_f32 v{t+4+i}, 1.0, v{t+i}')
                for i in (0, 1): I.append(f'v_fma_f32 v{t+4+i}, v{t+4+i}, v{t+2+i}, v{t+4+i}')
            I.append(f'v_rcp_f32 v{t+4}, v{t+4}')
            I.append(f'v_rcp_f32 v{t+5}, v{t+5}')
            if pk:
                I.append('s_nop 0')
                I.append(f'v_pk_mul_f32 {vr(t+6,2)}, {vr(t+6,2)}, {vr(t+4,2)}')
            else:
                for i in (0, 1): I.append(f'v_add_f32 v{t+6+i}, -1.0, v{t+i}')
                for i in (0, 1): I.append(f'v_mul_f32 v{t+6+i}, v{t+6+i}, v{t+4+i}')
            I.append(f'v_cvt_pk_bf16_f32 v{q}, v{t+6}, v{t+7}')
            I.append(f'buffer_store_dword v{q}, v{VOUT + j//3}, {sr(S_OUT)}, 0 offen offset:{1152*(j%3)} {o.oflags}')
            return I
        def cost(x): return 2 if x.startswith(('v_exp', 'v_rcp', 'buffer')) else 1
        while tasks and tasks[0][0] < 0: run(tasks.pop(0), -1)
        inv = {n: v for v, n in vstart.items()}
        lastop = {j: max(n for n in range(N) if ops[n][1] == j) for j in range(9)}
        for n, (g, j) in enumerate(ops):
            if n in inv and o.padto and o.padev == 'm5' and inv[n] == o.padstep:
                e('s_memrealtime s[100:101]'); dirty[0] = True
            if n in inv and o.diag:
                v = inv[n]
                if o.diag == 2 and v in o.marks:
                    kk = o.marks.index(v)
                    e(f's_memtime s[{ST0+2*kk}:{ST0+2*kk+1}]'); dirty[0] = True
                if o.diag in (1, 4) and v == 33: stamp(5); stamp(6); dirty[0] = True
            k = key(n)
            assert k in xreg, (k, n)
            lwait(k); vwait(g)
            acc = S[g][4]
            d = ACC[acc] + 4 * j
            if g == 0: cs = '0'
            elif acc == 'Q' and S[g-1][4] == 'P': cs = vr(ACC['P'] + 4 * j, 4)
            else: cs = vr(d, 4)
            em(f'v_mfma_f32_16x16x32_bf16 {vr(d,4)}, {vr(wr[g],4)}, {vr(xreg[k],4)}, {cs}')
            if n == lastop[j]: since[j] = 0
            budget = 2
            TC = {'X': 1, 'W': 2, 'L': 2, 'C': 1, 'I': 0, 'A': 1, 'Q': 2, 'S': 2, 'F': 2, 'G': 1, 'P': 2}
            while True:
                ready = [t for t in tasks if t[0] <= n and wok(t, n)]
                if not ready: break
                t = min(ready, key=lambda t: t[1])
                assert t[1] >= n, ('late', t, n)
                if TC[t[2]] > budget and t[1] > n:
                    fit = [u for u in ready if TC[u[2]] <= budget]
                    if not fit: break
                    t = min(fit, key=lambda t: t[1])
                tasks.remove(t); run(t, n); budget -= TC[t[2]]
            for jj in sorted(since):
                if 8 <= since[jj] < 10**6:
                    fill += epi(jj, False); since[jj] = 10**6
            budget += o.nfill - 2
            while fill and budget >= cost(fill[0]):
                budget -= cost(fill[0]); em(fill.pop(0))
            assert all(t[1] > n for t in tasks), ('late', n, [t for t in tasks if t[1] <= n])
        assert not tasks
        stamp(7)
        while fill: em(fill.pop(0))
        for jj in [jj for jj in sorted(since) if since[jj] < 10**6]:
            if since[jj] < 8: em(f's_nop {8-since[jj]-1}')
            for x in epi(jj, True): em(x)
        stamp(8)
        if o.padto and o.padev[0] == 'm': padloop(typ)
        if o.diag == 1:
            e('s_waitcnt vmcnt(0)')
            stamp(9)
            dump(10)
        if o.diag == 2:
            kk = len(o.marks)
            e(f's_memtime s[{ST0+2*kk}:{ST0+2*kk+1}]')
            dump(10)
        e('s_endpgm')
        for tag, off, cnt in slow:
            e(f'L_slow{typ}{tag}:')
            e(f'ds_read_b32 v{VC}, v{VF+5 if off == "pair" else VF+1} offset:{24 if off == "pair" else off}')
            e('s_waitcnt lgkmcnt(0)')
            e(f'v_cmp_ne_u32 vcc, {cnt}, v{VC}')
            e('s_nop 4')
            e(f's_cbranch_vccnz L_slow{typ}{tag}')
            e(f's_branch L_back{typ}{tag}')
        for ci, va in fslow: flagwait(f'{typ}{ci}', va, f'L_fb{typ}{ci}')

    mark['help0'] = len(e.L)
    if not o.hfirst: e('.p2align 6')
    e('L_helper:')
    role[0] = 'h'
    e(f's_setprio {o.hprio}')
    e(f's_sub_u32 s{TW0}, s{WAVE}, 4')
    e(f's_mov_b32 s{TW1}, s{WAVE}')
    e(f's_sub_u32 s{PAIR}, s2, {NPROD}')
    e(f's_cselect_b32 s{PAIR}, s2, s{PAIR}')
    e(f's_mov_b32 s{MODE}, 0')
    e(f's_mov_b32 s{NOTASK}, s2')
    e(f's_mov_b32 s{HAS3}, s{TW0}')
    e(f's_lshl_b32 s{SCRB}, s{TW0}, 12')
    e(f's_add_u32 s{SCRB}, s{SCRB}, {SCR}')
    e('L_prod:')
    T = [(28, TW0, 2, 52, 0), (36, TW1, 4, 53, 2048), (44, TW2, 6, 54, 16384)]
    c, kp, q, cc, kk, t = 46, 47, 48, 49, 50, 51
    b = TS
    e('v_mov_b32 v19, 4320')
    e('v_and_b32 v23, 3, v1')
    e('v_lshrrev_b32 v24, 3, v1')
    e('v_mul_u32_u24 v24, 576, v24')
    e('v_bfe_u32 v25, v1, 2, 1')
    e('v_mul_u32_u24 v25, 288, v25')
    e('v_add_u32 v24, v24, v25')
    for (vb, sw, vl, vs, so) in T:
        e(f'v_lshl_add_u32 v8, s{sw}, 2, v23' if sw != TW2 else 'v_add_u32 v8, 32, v23')
        e('v_cmp_le_u32 vcc, 18, v8')
        e(f'v_lshl_add_u32 v{vl}, v8, 4, v24')
        e(f'v_add_u32 v9, v{vl}, v19')
        e(f'v_cndmask_b32 v{vl}, v{vl}, v9, vcc')
    e(f's_and_b32 s{c}, s{PAIR}, 15')
    e(f's_lshr_b32 s{kp}, s{PAIR}, 4')
    e(f's_mul_i32 s{b}, s{c}, 165888')
    e(f's_mul_i32 s{t}, s{kp}, 9216')
    e(f's_add_u32 s{b}, s{b}, s{t}')
    e(f's_add_u32 s{b+1}, s{b}, 82944')
    e(f's_mov_b32 s{S_W+2}, 2571264')
    e(f's_mov_b32 s{S_W+3}, 0x20000')
    e(f's_mov_b32 s{S_WO+3}, 0x20000')
    e(f's_cmp_lg_u32 s{c}, 15')
    e(f's_cselect_b32 s{S_WO+2}, 2571264, 0')
    e(f's_mov_b32 m0, s{SCRB}')
    e('s_waitcnt lgkmcnt(0)')
    e(f's_mov_b32 s{S_W}, s6')
    e(f's_and_b32 s{S_W+1}, s7, 0xffff')
    e(f's_mov_b32 s{S_WO}, s6')
    e(f's_and_b32 s{S_WO+1}, s7, 0xffff')
    e(f's_cmp_ge_u32 s{NOTASK}, {NTASK}')
    e('s_cbranch_scc1 L_a3')
    def cond3(lbl):
        e(f's_cmp_lg_u32 s{HAS3}, 0')
        e(f's_cbranch_scc1 {lbl}')
    for ti, (vb, sw, vl, vs, so) in enumerate(T):
        if ti == 2: cond3('L_a3')
        if ti == 1: e('s_addk_i32 m0, 1024'); e('s_nop 0')
        e(f'buffer_load_dwordx4 v{vl}, {sr(S_W)}, s{b} offen lds')
        e('s_addk_i32 m0, 1024')
        e('s_nop 0')
        e(f'buffer_load_dwordx4 v{vl}, {sr(S_WO)}, s{b+1} offen lds')
        if ti == 1: e(f's_addk_i32 m0, {16384-3072}')
    e('L_a3:')
    stamp(1)
    e(f's_cmp_lg_u32 s{MODE}, 0')
    e('s_cbranch_scc1 L_a4')
    e(f's_load_dword s{TAG}, s[12:13], {NONCE}')
    e(f's_lshr_b32 s{EARLY}, 0x33, s{kp}')
    e(f's_and_b32 s{EARLY}, s{EARLY}, 1')
    e(f's_sub_u32 s{XK}, 2, s{EARLY}')
    e(f's_lshl_b32 s{t}, s{kp}, 1')
    e(f's_lshr_b32 s{YT}, {(3<<12)+(3<<14)+(3<<16)}, s{t}')
    e(f's_and_b32 s{YT}, s{YT}, 3')
    e(f's_lshr_b32 s{t}, s{kp}, 1')
    e(f's_cmp_ge_u32 s2, {NPROD}')
    e(f's_cselect_b32 s{EARLY}, 0, s{EARLY}')
    e(f's_cselect_b32 s{XK}, 3, s{XK}')
    e(f's_cselect_b32 s{YT}, s{t}, s{YT}')
    e(f's_cmp_ge_u32 s2, {NPROD+32}')
    e(f's_cselect_b32 s{XK}, 0, s{XK}')
    e(f's_cmp_ge_u32 s2, {NTASK}')
    e(f's_cselect_b32 s{YT}, 0, s{YT}')
    if not o.b0early:
        e(f's_cmp_lg_u32 s{EARLY}, 0')
        e('s_cbranch_scc1 L_a4')
    e('s_barrier')
    e('L_a4:')
    e(f's_mov_b32 s{MASK}, 0xffff0000')
    e(f's_mov_b32 s{NPOLL}, 0')
    srd(e, S_WS, 12, WS_REC)
    srd(e, S_DBG, 10, 256)
    e(f'v_mov_b32 v10, {CNT}')
    e(f'v_mov_b32 v20, {(256 - 18*2*NSTEP*1024) & 0xffffffff}')
    e(f'v_mov_b32 v26, {2*NSTEP*1024}')
    e('v_bfe_u32 v21, v1, 2, 2')
    e('v_lshlrev_b32 v21, 7, v21')
    e('v_and_b32 v22, 1, v1')
    e('v_lshl_add_u32 v21, v22, 6, v21')
    e('v_bfe_u32 v22, v1, 1, 1')
    e('v_lshl_add_u32 v21, v22, 3, v21')
    e('v_lshrrev_b32 v22, 4, v1')
    e('v_lshl_add_u32 v21, v22, 4, v21')
    e(f'v_add_u32 v21, s{SCRB}, v21')
    e('v_and_b32 v25, 15, v1')
    e('v_lshlrev_b32 v25, 4, v25')
    for (vb, sw, vl, vs, so) in T:
        e(f'v_lshl_add_u32 v8, s{sw}, 2, v22' if sw != TW2 else 'v_add_u32 v8, 32, v22')
        e('v_cmp_le_u32 vcc, 18, v8')
        e(f'v_mad_u32_u24 v{vs}, v8, v26, v25')
        e(f'v_add_u32 v9, v{vs}, v20')
        e(f'v_cndmask_b32 v{vs}, v{vs}, v9, vcc')
    e(f's_lshr_b32 s{q}, s{kp}, 1')
    e(f's_and_b32 s{cc}, s{c}, 7')
    e(f's_lshr_b32 s{kk}, s{c}, 3')
    e(f's_and_b32 s{t}, s{kp}, 1')
    e(f's_cmp_eq_u32 s{kp}, 8')
    e(f's_cselect_b32 s{cc}, s{cc}, s{c}')
    e(f's_cselect_b32 s{kk}, s{kk}, s{t}')
    e(f's_lshl_b32 s{kk}, s{kk}, 9')
    e(f's_add_u32 s{kk}, s{kk}, {WOFF}')
    e(f's_lshl_b32 s{t}, s{q}, 4')
    e(f's_add_u32 s{b+2}, s{t}, s{cc}')
    e(f's_sub_u32 s{b+3}, s{b+2}, s{q}')
    e(f's_cmp_ge_u32 s{q}, 2')
    e(f's_cselect_b32 s{b+4}, 74, 0')
    e(f's_add_u32 s{b+4}, s{b+4}, s{b+2}')
    e(f's_cmp_lt_u32 s{cc}, 2')
    e(f's_cselect_b32 s{t}, 32, 136')
    e(f's_add_u32 s{t}, s{t}, s{cc}')
    e(f's_cmp_eq_u32 s{kp}, 8')
    e(f's_cselect_b32 s{b+4}, s{t}, s{b+4}')
    e(f's_add_u32 s{b+2}, s{b+2}, 34')
    e(f's_add_u32 s{b+3}, s{b+3}, 144')
    for k in (2, 3, 4):
        e(f's_lshl_b32 s{b+k}, s{b+k}, 10')
        e(f's_add_u32 s{b+k}, s{b+k}, s{kk}')
    e(f's_cmp_eq_u32 s{kp}, 8')
    e(f's_cselect_b32 s{t}, 1, 2')
    e(f's_cmp_eq_u32 s{c}, 15')
    e(f's_cselect_b32 s{b+5}, s{t}, 0')
    e(f's_lshl_b32 s46, s{WAVE}, 2')
    e(f's_add_u32 s46, s46, {CNT+16}')
    e('v_mov_b32 v55, s46')
    e('v_mov_b32 v27, 0')
    e('v_mov_b32 v9, 4')
    e('s_waitcnt vmcnt(0) lgkmcnt(0)')
    stamp(2)
    e(f's_cmp_ge_u32 s{NOTASK}, {NTASK}')
    e('s_cbranch_scc1 L_x9')
    e(f's_cmp_lg_u32 s{WAVE}, 4')
    e('s_cbranch_scc1 L_a5')
    e('s_mov_b64 exec, 1')
    e(f'buffer_load_dword v27, v9, {sr(S_DBG)}, 0 offen sc1')
    e('s_mov_b64 exec, -1')
    e('L_a5:')
    for (vb, sw, vl, vs, so) in T:
        for tap in range(2):
            for half in range(2):
                e(f'ds_read_b64_tr_b16 {vr(vb+4*tap+2*half,2)}, v21 offset:{so+1024*tap+512*half}')
    nlab = [0]
    def st01(vb, vs):
        nlab[0] += 1
        e(f'buffer_store_dwordx4 {vr(vb,4)}, v{vs}, {sr(S_WS)}, s{b+2} offen sc1')
        e(f's_cmp_eq_u32 s{b+5}, 2')
        e(f's_cbranch_scc1 L_skip{nlab[0]}')
        e(f'buffer_store_dwordx4 {vr(vb+4,4)}, v{vs}, {sr(S_WS)}, s{b+3} offen sc1')
        e(f'L_skip{nlab[0]}:')
    def st01all(lbl):
        st01(T[0][0], T[0][3]); st01(T[1][0], T[1][3])
        cond3(lbl)
        st01(T[2][0], T[2][3])
    def dosum(vb, tb, ob):
        for i in range(8):
            e(f'v_lshlrev_b32 v{tb+2*i}, 16, v{vb+i}')
            e(f'v_and_b32 v{tb+2*i+1}, s{MASK}, v{vb+i}')
        for i in range(4):
            e(f'v_pk_add_f32 {vr(tb+2*i,2)}, {vr(tb+2*i,2)}, {vr(tb+8+2*i,2)}')
        for i in range(4):
            e(f'v_cvt_pk_bf16_f32 v{ob+i}, v{tb+2*i}, v{tb+2*i+1}')
    def ldswait(off, cmp, operand, tag, slp):
        e(f'L_lw{tag}:')
        e(f'ds_read_b32 v11, v10 offset:{off}')
        e('s_waitcnt lgkmcnt(0)')
        e('v_and_b32 v11, 0xff, v11')
        e(f'v_cmp_{cmp}_u32 vcc, {operand}, v11')
        e('s_nop 4')
        e(f's_cbranch_vccnz L_lx{tag}')
        e(f's_sleep {slp}')
        e(f's_branch L_lw{tag}')
        e(f'L_lx{tag}:')
    SO = 240
    e(f's_or_b32 s46, s{EARLY}, s{MODE}')
    e(f's_cmp_eq_u32 s{XK}, 2')
    e('s_cselect_b32 s47, 1, s46')
    e('s_cmp_eq_u32 s47, 0')
    e('s_cbranch_scc1 L_x9')
    for ti, (vb, sw, vl, vs, so) in enumerate(T):
        if ti == 2: cond3('L_x3')
        e(f's_waitcnt lgkmcnt({8-4*ti})')
        dosum(vb, 64 + 16 * ti, SO + 4 * ti)
        e('s_cmp_eq_u32 s46, 0')
        e(f's_cbranch_scc1 L_x5{ti}')
        e(f'buffer_store_dwordx4 {vr(SO+4*ti,4)}, v{vs}, {sr(S_WS)}, s{b+4} offen sc1')
        e(f'L_x5{ti}:')
    e('L_x3:')
    e(f's_cmp_eq_u32 s{MODE}, 0')
    e('s_cbranch_scc1 L_x9')
    e('L_x2:')
    e('s_waitcnt lgkmcnt(0)')
    st01all('L_x4')
    e('L_x4:')
    e(f's_cmp_eq_u32 s{MODE}, 0')
    e('s_cbranch_scc1 L_x9')
    e('s_waitcnt vmcnt(0)')
    e(f's_add_u32 s{PAIR}, s{PAIR}, 1')
    e(f's_cmp_lt_u32 s{PAIR}, {NPROD}')
    e('s_cbranch_scc1 L_prod')
    e('v_mov_b32 v11, 1')
    e('ds_write_b32 v10, v11 offset:12')
    e('s_endpgm')
    e('L_x9:')
    stamp(3)
    decode()
    e('v_subrev_u32 v4, 256, v0')
    e('v_min_u32 v4, 251, v4')
    e('v_mul_u32_u24 v3, 3641, v4')
    e('v_lshrrev_b32 v3, 16, v3')
    e('v_mul_u32_u24 v2, 18, v3')
    e('v_sub_u32 v2, v4, v2')
    e(f'v_mul_u32_u24 v3, {R}, v3')
    e(f'v_min_u32 v3, {160-R}, v3')
    e('v_mul_u32_u24 v4, 1152, v3')
    e('v_lshl_add_u32 v4, v2, 4, v4')
    e(f'v_add_u32 v12, s{XB}, v4')
    e('v_mul_u32_u24 v18, 288, v3')
    e('v_lshl_add_u32 v18, v2, 4, v18')
    e(f'v_add_u32 v19, {X_D1}, v18')
    srd(e, S_X, 4, 1152000, add=BOFF)
    e(f's_add_u32 s46, s{TAG}, {TAGINC}')
    e('v_mov_b32 v56, s46')
    e('s_lshl_b32 s46, s2, 7')
    e('v_mov_b32 v58, s46')
    e(f's_add_u32 s46, s{PAIR}, {NPROD}')
    e('s_lshl_b32 s46, s46, 7')
    e('v_mov_b32 v59, s46')
    def publish(slot, vflag, tag, first, n=0):
        e('s_mov_b64 exec, 1')
        e(f's_waitcnt vmcnt({n})')
        if first: stamp(4)
        e('v_cmp_ne_u32 vcc, 0, v27')
        e('v_not_b32 v57, v56')
        e('s_nop 0')
        e('v_cndmask_b32 v57, v56, v57, vcc')
        e(f'ds_write_b32 v55, v57 offset:{slot}')
        e(f'ds_read_b128 v[20:23], v10 offset:{32+slot}')
        e('s_waitcnt lgkmcnt(0)')
        for i in range(4): e(f'v_xor_b32 v{20+i}, v{20+i}, v56')
        e('v_or3_b32 v20, v20, v21, v22')
        e('v_or_b32 v20, v20, v23')
        e('v_cmp_eq_u32 vcc, 0, v20')
        e('s_and_b64 exec, exec, vcc')
        e(f's_cbranch_execz L_nl{tag}')
        e(f'buffer_store_dword v56, v{vflag}, {sr(S_WS)}, 0 offen sc1')
        e(f'L_nl{tag}:')
        e('s_mov_b64 exec, -1')
    e(f's_cmp_eq_u32 s{EARLY}, 0')
    e('s_cbranch_scc1 L_noflag')
    publish(0, 58, 'x', True)
    if not o.b0early: e('s_barrier')
    e('L_noflag:')
    e(f's_setprio {o.hprio2}')
    RAW, ORAW = 64, 120
    EU = [184, 192]
    OU, DT, DO = 200, 208, 216
    xi = [0]
    NL = R + 1
    hq = []
    def eload():
        k = xi[0]
        if k >= NL: return
        a_ = 12
        if k:
            a_ = 13 + (k & 3)
            e(f'v_add_u32 v{a_}, {1152*k}, v12')
        e(f'buffer_load_dwordx4 {vr(RAW+4*k,4)}, v{a_}, {sr(S_X)}, 0 offen')
        xi[0] += 1
        hq.append(('e', k))
    if o.etouch:
        e(f's_cmp_lt_u32 s2, {NTASK}')
        e('s_cbranch_scc1 L_net')
        e(f's_and_b32 s46, s{NB}, 1')
        e(f's_mul_i32 s46, s46, {1152*6}')
        e('v_add_u32 v12, s46, v12')
        for _ in range(7): eload()
        e('v_subrev_u32 v12, s46, v12')
        e('s_waitcnt vmcnt(0)')
        e('L_net:')
        xi[0] = 0; hq.clear()
    YA = 232
    e(f's_cmp_eq_u32 s{b+5}, 2')
    e('s_cselect_b32 s46, 0x80000000, 0')
    e(f's_cmp_lg_u32 s{HAS3}, 0')
    e('s_cselect_b32 s47, 0x80000000, 0')
    e('s_or_b32 s48, s46, s47')
    for i in range(6):
        m_ = {0: None, 1: 46, 2: None, 3: 46, 4: 47, 5: 48}[i]
        e(f'v_mov_b32 v{YA+i}, v{52+i//2}' if m_ is None else f'v_or_b32 v{YA+i}, s{m_}, v{52+i//2}')
    def ystore(i, a_):
        e(f'buffer_store_dwordx4 {vr(28+4*i,4)}, v{a_}, {sr(S_WS)}, s{b+2+(i&1)} offen sc1')
        hq.append(('y', i))
    stamp(5)
    ldswait(8, 'eq', 4, 'o', 1)
    def unpack(dst, s_):
        for i in range(4):
            e(f'v_lshlrev_b32 v{dst+2*i}, 16, v{s_+i}')
            e(f'v_and_b32 v{dst+2*i+1}, s{MASK}, v{s_+i}')
    def unpackE(dst, k):
        e(f's_waitcnt vmcnt({len(hq)-1-hq.index(("e", k))})')
        unpack(dst, RAW + 4 * k)
        eload()
    def diff(eu, out):
        for i in range(8): e(f'v_sub_f32 v{DT+i}, v{eu+i}, v{OU+i}')
        for i in range(4):
            e(f'v_cvt_pk_bf16_f32 v{out+i}, v{DT+2*i}, v{DT+2*i+1}')
    def opengate():
        if not o.gate: return
        e('v_mov_b32 v11, 0x100')
        e('s_mov_b64 exec, 1')
        e('ds_add_u32 v10, v11 offset:8')
        e('s_mov_b64 exec, -1')
    def rows(hook):
        stamp(6)
        for j in range(R):
            e(f'ds_read_b128 {vr(ORAW+4*j,4)}, v18 offset:{X_O+288*j}')
        unpackE(EU[0], 0)
        e('s_waitcnt lgkmcnt(0)')
        for j in range(R):
            o0 = DO + 8 * (j & 1)
            unpack(OU, ORAW + 4 * j)
            diff(EU[j & 1], o0)
            e(f'ds_write_b128 v18, {vr(o0,4)} offset:{X_D0+288*j}')
            unpackE(EU[(j + 1) & 1], j + 1)
            diff(EU[(j + 1) & 1], o0 + 4)
            e(f'ds_write_b128 v19, {vr(o0+4,4)} offset:{288*j}')
            hook(j)
    e(f's_cmp_ge_u32 s2, {NPROD}')
    e('s_cbranch_scc1 L_pathA')
    e(f's_cmp_lg_u32 s{XK}, 2')
    e('s_cbranch_scc1 L_nox')
    for i in range(3):
        e(f'buffer_store_dwordx4 {vr(SO+4*i,4)}, v{YA+2*i}, {sr(S_WS)}, s{b+4} offen sc1')
    publish(0, 58, 'x2', True)
    e('L_nox:')
    opengate()
    hq.clear(); xi[0] = 0
    for _ in range(o.ein): eload()
    rows(lambda j: None)
    e('s_branch L_rowsdone')
    e('L_pathA:')
    e(f's_cmp_eq_u32 s{XK}, 3')
    e('s_cselect_b32 s47, 0, 0x80000000')
    for i in range(6): e(f'v_or_b32 v{20+i}, s47, v{YA+i}')
    hq.clear(); xi[0] = 0
    for _ in range(NL): eload()
    for i in range(6): ystore(i, 20 + i)
    def hookA(j):
        if j == o.grow:
            e(f's_waitcnt vmcnt({len(hq)-1-hq.index(("e", NL-1))})')
            opengate()
        if j == o.xrow:
            e(f's_cmp_lg_u32 s{XK}, 3')
            e('s_cbranch_scc1 L_xp')
            publish(0, 58, 'x3', True)
            e('L_xp:')
    rows(hookA)
    e('L_rowsdone:')
    e('s_waitcnt lgkmcnt(0)')
    stamp(7)
    e('v_mov_b32 v11, 1')
    e('s_mov_b64 exec, 1')
    e('ds_add_u32 v10, v11 offset:16')
    e('s_mov_b64 exec, -1')
    e(f's_cmp_eq_u32 s{YT}, 0')
    e('s_cbranch_scc1 L_noy')
    e(f's_setprio {o.hprio}')
    e('L_yw:')
    e('ds_read_b64 v[20:21], v10')
    e('s_waitcnt lgkmcnt(0)')
    e('v_lshrrev_b32 v21, 14, v21')
    e('v_and_b32 v21, -4, v21')
    e('v_or_b32 v20, v20, v21')
    e(f'v_cmp_le_u32 vcc, s{YT}, v20')
    e('s_nop 4')
    e('s_cbranch_vccnz L_yx')
    e('s_sleep 4')
    e('s_branch L_yw')
    e('L_yx:')
    for i in range(6):
        ystore(i, YA + i)
        e(f's_waitcnt vmcnt({o.ythr})')
    publish(16, 59, 'y', False)
    if o.diag == 1: stamp(8)
    e('L_noy:')
    e(f's_cmp_lg_u32 s{WAVE}, 4')
    e('s_cbranch_scc1 L_hend')
    e('L_guard:')
    e('ds_read_b32 v11, v10 offset:4')
    e('s_waitcnt lgkmcnt(0)')
    e('v_readfirstlane_b32 s46, v11')
    e('s_nop 3')
    e('s_cmp_eq_u32 s46, 4')
    e('s_cbranch_scc1 L_hend')
    e('s_cmp_lt_u32 s46, 0x10000')
    e('s_cbranch_scc0 L_rescue')
    e('s_sleep 16')
    e('s_branch L_guard')
    e('L_rescue:')
    e(f's_mov_b32 s{MODE}, 1')
    e(f's_mov_b32 s{HAS3}, 1')
    e(f's_mov_b32 s{NOTASK}, 0')
    e(f's_lshr_b32 s{TW0}, s{NB}, 1')
    e(f's_add_u32 s{TW1}, s{NB}, 9')
    e(f's_lshr_b32 s{TW1}, s{TW1}, 1')
    e(f's_mov_b32 s{PAIR}, 0')
    e('s_branch L_prod')
    e('L_hend:')
    if o.padto and o.padev[0] == 'h': padloop('h')
    if o.diag == 1:
        stamp(9)
        dump(10)
    e('L_end:')
    e('s_endpgm')
    if o.hfirst:
        m0, h0 = mark['main0'], mark['help0']
        e.L = e.L[:m0] + e.L[h0:] + ['.p2align 6'] + e.L[m0:h0]
    e('L_codeend:')
    e('.section .rodata,"a"')
    e('.p2align 6')
    e(f'.amdhsa_kernel {KN}')
    for x in ['next_free_vgpr 256', 'next_free_sgpr 102', 'accum_offset 256', 'group_segment_fixed_size 0', 'kernarg_size 40',
              'user_sgpr_count 2', 'user_sgpr_kernarg_segment_ptr 1', 'system_sgpr_workgroup_id_x 1']:
        e('  .amdhsa_' + x)
    e('.end_amdhsa_kernel')
    n = haz.check(e.L)
    if n: print(f'{n} hazards', file=sys.stderr)
    return f'; @launch grid=({NWG},1,1) block=(512,1,1) lds={LDS_BYTES}\n' + e.text()

def opts(argv=None):
    ap = argparse.ArgumentParser()
    ap.add_argument('-o', default='k.s')
    for nm, d in [('diag', 0), ('pf', 16), ('pf0', 8), ('wgap', 4), ('wres', 0), ('wsc1', 0), ('nfill', 2), ('fstride', 128), ('sleep', 0), ('maxpoll', 3000), ('nopoll', 0),
                  ('hprio', 3), ('hprio2', 0), ('mprio', 2), ('epre', 0), ('ein', 7), ('dpre', 7), ('b0early', 0), ('mtouch', 3), ('gate', 1), ('grow', 1), ('vbd', 33), ('nopk', 1), ('padto', 0), ('npdelay', 0), ('opre', 0), ('etouch', 0), ('orev', 1), ('b0late', 1), ('dec', 1), ('tail', 1), ('xla', 9), ('hold', 1), ('prest', 0), ('xslot', 0), ('noclosed', 0), ('cpf', 1), ('hfirst', 1), ('warmb', 1), ('wsfirst', 0), ('flead', 6), ('ythr', 6), ('xrow', 3), ('padstep', 33), ('probe', 0), ('probeoff', 0x4000000)]:
        ap.add_argument('--' + nm, type=int, default=d)
    ap.add_argument('--oflags', default='')
    ap.add_argument('--pmap', default='18,18,18,18,18,18,18,18')
    ap.add_argument('--padev', default='m0')
    ap.add_argument('--trig', default='10,25,40')
    ap.add_argument('--yrow', default='0,7,2,9,5,11')
    ap.add_argument('--pfcs', default='4,5,5,8,8')
    ap.add_argument('--fflags', default='')
    ap.add_argument('--marks', default='0,4,8,12,16,24,33,47,58')
    o = ap.parse_args(argv)
    o.marks = [int(x) for x in o.marks.split(',')]
    o.yrow = [int(x) for x in o.yrow.split(',')]
    o.pfcs = [int(x) for x in o.pfcs.split(',')]
    o.trig = [int(x) for x in o.trig.split(',')]
    return o

if __name__ == '__main__':
    o = opts()
    open(o.o, 'w').write(gen(o))
```

```python
import re, sys, argparse
import haz

KN = 'standalone__autoregressive_conv_wavernn__speech_kernel'
NWG = 252
NPROD = 144
ARR = 160 * 288
X_D0, X_O, X_D1 = 0, ARR, 2 * ARR
CNT = 3 * ARR
SCR = CNT + 64
LDS_BYTES = SCR + 18432
NSTEP = 106
WOFF = int(__import__('os').environ.get('WOFF', '0x100000'), 0)
NONCE = 0x10000
DIAG = 0x800000
WS_REC = max(0x1000000, WOFF + 0x400000, int(__import__('os').environ.get('WSREC', '0'), 0))
TAGINC = 0x9E3779B9
R = 12

class Em:
    def __init__(self): self.L = []
    def __call__(self, s): self.L.append(s)
    def text(self): return '\n'.join(self.L) + '\n'

def vr(a, n=1): return f'v{a}' if n == 1 else f'v[{a}:{a+n-1}]'
def sr(a, n=4): return f's[{a}:{a+n-1}]'

def streams():
    out = []
    for typ in (0, 1):
        S = []
        pid = [0]
        def add(arr, chunk, cs, acc):
            for c in cs: S.append((pid[0], arr, chunk, c, acc))
            pid[0] += 1
        if typ == 0:
            add('O', 0, range(16), 'P'); add('O', 1, range(16), 'P'); add('O', 'rem', range(0, 2), 'P')
            for q in range(4): add('D', q, range(16), 'Q')
            add('D', 'rem', range(8), 'Q')
        else:
            add('O', 2, range(16), 'P'); add('O', 3, range(16), 'P'); add('O', 'rem', range(2, 8), 'P')
            for q in range(4): add('D', q, range(15), 'Q')
            add('D', 'rem', range(8), 'Q')
        assert len(S) == NSTEP
        out.append(S)
    return out

S_X, S_W, S_WO, S_WS, S_OUT, S_DBG = 20, 24, 28, 32, 36, 40
WAVE, NB, BAT, PAR, MB, BOFF = 14, 15, 16, 17, 18, 19
PAIR0 = 3
XB = 52
MASK = 53
TW0, TW1, TW2, PAIR, HAS3, MODE, SCRB, TAG, LAST, NPOLL = 44, 45, 54, 55, 56, 57, 58, 59, 60, 61
TS = 62
TYP, WSO = 68, 69
EARLY, XK, YT, FIDX = 90, 91, 92, 93
NOTASK = 94
NTASK = NPROD + 96
FO = 97
C2L, CNL, C60 = 90, 92, 94
ST0 = 70

def srd(e, d, ptr, rec, add=None):
    if add is None:
        e(f's_mov_b32 s{d}, s{ptr}')
        e(f's_and_b32 s{d+1}, s{ptr+1}, 0xffff')
    else:
        e(f's_add_u32 s{d}, s{ptr}, s{add}')
        e(f's_addc_u32 s{d+1}, s{ptr+1}, 0')
        e(f's_and_b32 s{d+1}, s{d+1}, 0xffff')
    e(f's_mov_b32 s{d+2}, {rec}')
    e(f's_mov_b32 s{d+3}, 0x20000')

def gen(o):
    e = Em()
    role = ['m']
    def padloop(tag):
        e(f'L_pad{tag}:')
        e('s_memrealtime s[98:99]')
        e('s_waitcnt lgkmcnt(0)')
        e('s_sub_u32 s98, s98, s100')
        e(f's_cmp_lt_u32 s98, {o.padto}')
        e(f's_cbranch_scc1 L_pad{tag}')
    def stamp(k, lvl=1):
        if o.padto and lvl == 1 and o.padev == f'{role[0]}{k}':
            e('s_memrealtime s[100:101]'); e('s_waitcnt lgkmcnt(0)')
        if o.diag == lvl or (o.diag == 4 and lvl == 1): e(f's_memrealtime s[{ST0+2*k}:{ST0+2*k+1}]')
    def dump(nst):
        e('s_waitcnt lgkmcnt(0)')
        e('v_mov_b32 v250, 0')
        for k in range(nst): e(f'v_writelane_b32 v250, s{ST0+2*k}, {k}')
        e(f'v_writelane_b32 v250, s{NPOLL}, 13')
        e(f'v_writelane_b32 v250, s95, 12')
        e(f'v_writelane_b32 v250, s2, 14')
        e('s_getreg_b32 s46, hwreg(HW_REG_XCC_ID)')
        e('v_writelane_b32 v250, s46, 15')
        e(f's_lshl_b32 s46, s2, 3'); e(f's_add_u32 s46, s46, s{WAVE}'); e('s_lshl_b32 s46, s46, 6'); e(f's_add_u32 s46, s46, {DIAG}')
        e('v_lshl_add_u32 v251, v1, 2, s46')
        e('s_mov_b64 exec, 0xffff')
        e(f'buffer_store_dword v250, v251, {sr(S_WS)}, 0 offen')
        e('s_mov_b64 exec, -1')

    e('.amdgcn_target "amdgcn-amd-amdhsa--gfx950"')
    e('.text')
    e(f'.globl {KN}')
    e('.p2align 8')
    e(f'.type {KN},@function')
    e(f'{KN}:')
    e(f's_cmp_ge_u32 s2, {NWG}')
    e('s_cbranch_scc1 L_end')
    stamp(0)
    if o.padto and o.padev != 'm0': e('s_memrealtime s[100:101]')
    e('s_load_dwordx4 s[4:7], s[0:1], 0')
    e('s_load_dwordx4 s[8:11], s[0:1], 16')
    e('s_load_dwordx2 s[12:13], s[0:1], 32')
    e('v_lshrrev_b32 v2, 6, v0')
    e('v_and_b32 v1, 63, v0')
    e(f'v_readfirstlane_b32 s{WAVE}, v2')
    def decode():
        e('s_and_b32 s44, s2, 7')
        e('s_lshr_b32 s45, s2, 3')
        e('s_mul_i32 s46, s44, 31')
        e('s_min_u32 s44, s44, 4')
        e('s_add_u32 s46, s46, s44')
        e('s_add_u32 s46, s46, s45')
        e('s_mul_hi_u32 s47, s46, 68174085')
        e('s_mul_i32 s48, s47, 63')
        e('s_sub_u32 s48, s46, s48')
        e(f's_mul_hi_u32 s{NB}, s48, 613566757')
        e(f's_mul_i32 s49, s{NB}, 7')
        e('s_sub_u32 s49, s48, s49')
        e('s_mul_i32 s47, s47, 7')
        e('s_add_u32 s47, s47, s49')
        e(f's_and_b32 s{PAR}, s47, 1')
        e('s_lshr_b32 s47, s47, 1')
        e('s_cmp_ge_u32 s47, 7')
        e(f's_cselect_b32 s{BOFF}, 1152000, 0')
        e('s_cselect_b32 s48, 7, 0')
        e(f's_sub_u32 s{MB}, s47, s48')
        e(f's_mul_i32 s{XB}, s{MB}, 576')
        e(f's_add_u32 s{XB}, s{XB}, s{PAR}')
        e(f's_sub_u32 s{XB}, s{XB}, 60')
        e(f's_mul_i32 s{XB}, s{XB}, 288')
    e(f's_cmp_ge_u32 s{WAVE}, 4')
    e('s_cbranch_scc1 L_helper')
    if o.cpf:
        e('s_lshr_b32 s44, s2, 3')
        e(f's_lshl_b32 s45, s{WAVE}, 5')
        e('s_add_u32 s44, s44, s45')
        e('s_sub_u32 s44, s44, 26')
        e('s_cmp_ge_u32 s44, 5')
        e('s_cbranch_scc1 L_main')
        e('s_getpc_b64 s[46:47]')
        e('L_pc:')
        e('s_lshl_b32 s44, s44, 13')
        e('v_lshl_add_u32 v2, v1, 7, s44')
        e('v_min_u32 v2, L_codeend-L_pc-4, v2')
        e('global_load_dword v63, v2, s[46:47]')
    if o.hfirst: e('s_branch L_main')
    mark = {'main0': len(e.L)}
    e('L_main:')
    e(f's_mov_b32 s{MASK}, 0xffff0000')
    e(f's_mov_b32 s{NPOLL}, 0')
    if o.diag: e('s_mov_b32 s95, 0')
    decode()

    VXO, VXOR, VXD, VXDR, VWL, VEX, VEXP, VOUT = 30, 31, 32, 33, 34, 35, 36, 37
    VF = 40
    VA = 48
    VCL = 60
    e('v_mul_u32_u24 v3, 3641, v0')
    e('v_lshrrev_b32 v3, 16, v3')
    e('v_mul_u32_u24 v2, 18, v3')
    e('v_sub_u32 v2, v0, v2')
    e('v_mul_u32_u24 v3, 1152, v3')
    e('v_lshl_add_u32 v3, v2, 4, v3')
    e(f's_add_u32 s46, s{XB}, 576')
    e(f'v_add_u32 v{VA}, s46, v3')
    e('v_mov_b32 v5, 16192')
    e('v_mov_b32 v6, 17056')
    for k in range(1, 12):
        e('v_cmp_le_u32 vcc, 14, v2')
        e('v_add_u32 v3, 4, v2')
        e('v_subrev_u32 v4, 14, v2')
        e('v_cndmask_b32 v7, v5, v6, vcc')
        e('v_cndmask_b32 v2, v3, v4, vcc')
        e(f'v_add_u32 v{VA+k}, v{VA+k-1}, v7')
    e(f's_lshl_b32 s50, s{WAVE}, 10')
    e(f's_add_u32 s50, s50, {X_O}')
    e(f's_add_u32 s51, s50, {4096*11}')
    e('s_movk_i32 s49, 4096')
    if o.orev:
        e(f's_bitcmp0_b32 s{NB}, 0')
        e('s_cbranch_scc1 L_fwd')
        for k in range(5): e(f'v_swap_b32 v{VA+k}, v{VA+10-k}')
        e(f's_add_u32 s50, s50, {4096*10}')
        e('s_movk_i32 s49, -4096')
        e('L_fwd:')
    e(f'v_mov_b32 v{VF+1}, {CNT}')
    for r in range(4, 8): e(f'v_mov_b32 v{r}, 0')
    e(f'ds_write_b128 v{VF+1}, v[4:7]')
    e(f'ds_write_b128 v{VF+1}, v[4:7] offset:16')
    e('s_waitcnt lgkmcnt(0)')
    e(f's_load_dword s{TAG}, s[12:13], {NONCE}')
    srd(e, S_X, 4, 1152000, add=BOFF)
    def odma(k):
        e(f's_mov_b32 m0, s{51 if k == 11 else 50}')
        e('s_add_u32 s50, s50, s49')
        e(f'buffer_load_dwordx4 v{VA+k}, {sr(S_X)}, 0 offen lds')
    def etouch():
        e(f'buffer_load_dword v62, v9, {sr(S_X)}, 0 offen')
    if o.mtouch:
        e('v_min_u32 v8, 39, v1')
        e('v_lshrrev_b32 v9, 2, v8')
        e(f's_mul_i32 s46, s{WAVE}, 10')
        e('v_add_u32 v9, s46, v9')
        e(f'v_mul_u32_u24 v9, {4*1152}, v9')
        e('v_and_b32 v8, 3, v8')
        e('v_mul_u32_u24 v8, 92, v8')
        e(f's_and_b32 s46, s{NB}, 3')
        e('s_mul_i32 s46, s46, 1152')
        e(f's_add_u32 s46, s46, s{XB}')
        e('v_add3_u32 v9, v9, v8, s46')
    if o.mtouch == 2: etouch()
    for k in range(o.opre): odma(k)
    e('s_barrier')
    stamp(1)
    if o.mtouch == 3: etouch()
    for k in range(o.opre, 12):
        if k == 11:
            e(f's_cmp_lg_u32 s{WAVE}, 0')
            e('s_cbranch_scc1 L_o11')
        odma(k)
    e('L_o11:')
    if o.mtouch == 1: etouch()
    srd(e, S_WS, 12, WS_REC)
    srd(e, S_OUT, 8, 1152000, add=BOFF)
    srd(e, S_DBG, 10, 256)
    e('v_and_b32 v2, 15, v1')
    e('v_lshrrev_b32 v3, 4, v1')
    e('v_subrev_u32 v5, 4, v2')
    e('v_add_u32 v6, 8, v2')
    e('v_cmp_gt_u32 vcc, 4, v2')
    e('v_cmp_le_u32 s[46:47], 12, v2')
    e(f's_and_b32 s{TYP}, s{WAVE}, 1')
    e(f's_lshr_b32 s48, s{WAVE}, 1')
    e('v_cndmask_b32 v5, v5, v6, vcc')
    e('v_cndmask_b32 v5, v5, v2, s[46:47]')
    e('v_mul_u32_u24 v5, 9, v5')
    e('v_mul_u32_u24 v4, 288, v5')
    e('v_lshl_add_u32 v6, v3, 4, v4')
    e('v_and_b32 v7, 1, v3')
    e('v_lshl_add_u32 v7, v7, 4, v4')
    e('v_lshrrev_b32 v8, 1, v3')
    e('v_mul_u32_u24 v8, 2304, v8')
    e('v_add_u32 v7, v7, v8')
    e('v_add_u32 v7, 256, v7')
    e(f's_mul_i32 s49, s{TYP}, {X_D1}')
    e(f'v_add_u32 v{VXO}, {X_O}, v6')
    e(f'v_add_u32 v{VXOR}, {X_O}, v7')
    e(f'v_add_u32 v{VXD}, s49, v6')
    e(f'v_add_u32 v{VXDR}, s49, v7')
    e('v_lshlrev_b32 v6, 4, v1')
    e(f's_mul_i32 s49, s{WAVE}, 9216')
    e(f's_add_u32 s49, s49, {X_O}')
    e(f'v_add_u32 v{VEX}, s49, v6')
    e(f's_xor_b32 s49, s{WAVE}, 1')
    e('s_mul_i32 s49, s49, 9216')
    e(f's_add_u32 s49, s49, {X_O}')
    e(f'v_add_u32 v{VEXP}, s49, v6')
    e('v_and_b32 v8, 0x39, v1')
    e('v_bfe_u32 v9, v1, 1, 1')
    e('v_lshl_add_u32 v8, v9, 2, v8')
    e('v_bfe_u32 v9, v1, 2, 1')
    e('v_lshl_add_u32 v8, v9, 1, v8')
    e(f'v_lshlrev_b32 v{VWL}, 4, v8')
    e(f's_mul_i32 s49, s{TYP}, 576')
    e(f's_add_u32 s49, s49, s{XB}')
    e(f's_add_u32 s49, s49, {60*288}')
    e(f's_lshl_b32 s50, s{NB}, 5')
    e('s_add_u32 s49, s49, s50')
    e('s_lshl_b32 s50, s48, 4')
    e('s_add_u32 s49, s49, s50')
    e('v_mul_u32_u24 v8, 1152, v5')
    e('v_lshl_add_u32 v8, v3, 2, v8')
    e(f'v_add_u32 v{VOUT}, s49, v8')
    e(f'v_add_u32 v{VOUT+1}, 3456, v{VOUT}')
    e(f'v_add_u32 v{VOUT+2}, 6912, v{VOUT}')
    e(f's_lshl_b32 s49, s{NB}, 1')
    e('s_add_u32 s49, s49, s48')
    e('s_lshl_b32 s49, s49, 1')
    e(f's_add_u32 s49, s49, s{TYP}')
    e(f's_mul_i32 s{WSO}, s49, {NSTEP*1024}')
    e(f's_add_u32 s{WSO}, s{WSO}, {WOFF}')
    e(f's_mov_b32 s{C2L}, 0x4038aa3b'); e(f's_mov_b32 s{C2L+1}, 0x4038aa3b')
    e(f's_mov_b32 s{CNL}, 0xbfb8aa3b'); e(f's_mov_b32 s{CNL+1}, 0xbfb8aa3b')
    e(f's_mov_b32 s{C60}, 0x42700000')
    e(f'v_min_u32 v{VF}, 31, v1')
    e(f'v_lshlrev_b32 v{VF}, 7, v{VF}')
    e(f'v_min_u32 v{VF+6}, 47, v1')
    e(f'v_lshlrev_b32 v{VF+6}, 7, v{VF+6}')
    e(f'v_mov_b32 v{VF+2}, 1')
    e('s_lshl_b32 s46, s48, 2')
    e(f'v_add_u32 v{VF+5}, s46, v{VF+1}')
    e(f's_or_b32 s46, s2, s{WAVE}')
    e('v_or_b32 v2, s46, v1')
    e('v_cmp_eq_u32 vcc, 0, v2')
    e(f'v_mov_b32 v{VCL}, -16')
    e(f'v_mov_b32 v{VCL+1}, -16')
    e(f'v_mov_b32 v3, {NONCE}')
    e(f'v_cndmask_b32 v{VCL}, v{VCL}, 4, vcc')
    e(f'v_cndmask_b32 v{VCL+1}, v{VCL+1}, v3, vcc')
    e(f's_lshl_b32 s{FO}, s{TYP}, 13')
    if o.warmb:
        e(f's_cmp_eq_u32 s{TYP}, 1')
        e('s_cbranch_scc1 L_warmB')
        e('L_warmret:')
    e('s_waitcnt vmcnt(0) lgkmcnt(0)')
    stamp(2)
    e('s_mov_b64 exec, 1')
    e(f'ds_add_u32 v{VF+1}, v{VF+2} offset:8')
    e('s_mov_b64 exec, -1')
    e(f's_add_u32 s{TAG}, s{TAG}, {TAGINC}')
    e(f'v_mov_b32 v{VF+3}, s{TAG}')
    def flagwait(tag, vaddr, back):
        e(f'L_fw{tag}:')
        if o.diag and len(tag) == 2: e(f's_add_u32 s95, s95, {1 << (5 * int(tag[1]))}')
        e(f'buffer_load_dword v{VF+4}, v{vaddr}, {sr(S_WS)}, s{FO} offen sc1')
        e(f'ds_read_b32 v{VF+7}, v{VF+1} offset:12')
        e(f's_add_u32 s{NPOLL}, s{NPOLL}, 1')
        e('s_waitcnt vmcnt(0) lgkmcnt(0)')
        e(f'v_cmp_ne_u32 vcc, v{VF+3}, v{VF+4}')
        e(f'v_readfirstlane_b32 s46, v{VF+7}')
        e('s_nop 3')
        e(f's_cbranch_vccz {back}')
        e('s_cmp_lg_u32 s46, 0')
        e(f's_cbranch_scc1 {back}')
        e(f's_cmp_lg_u32 s{NPOLL}, {o.maxpoll}')
        e(f's_cbranch_scc1 L_fw{tag}')
        e(f'v_mov_b32 v{VF+7}, 0x10000')
        e('s_mov_b64 exec, 1')
        e(f'ds_add_u32 v{VF+1}, v{VF+7} offset:4')
        e('s_mov_b64 exec, -1')
        e(f's_branch L_fw{tag}')
    if o.gate:
        e('L_gate:')
        e(f'ds_read_b32 v{VF+4}, v{VF+1} offset:8')
        e('s_waitcnt lgkmcnt(0)')
        e(f'v_cmp_gt_u32 vcc, 0x400, v{VF+4}')
        e('s_nop 4')
        e('s_cbranch_vccz L_gate2')
        e('s_sleep 1')
        e('s_branch L_gate')
        e('L_gate2:')
    flagwait('0', VF, 'L_go')
    e('L_go:')
    stamp(3)
    e('L_gw:')
    e(f'ds_read_b32 v{VF+4}, v{VF+1} offset:8')
    e('s_waitcnt lgkmcnt(0)')
    e(f'v_and_b32 v{VF+4}, 0xff, v{VF+4}')
    e(f'v_cmp_ne_u32 vcc, 4, v{VF+4}')
    e('s_nop 4')
    e('s_cbranch_vccnz L_gw')
    stamp(4)
    e(f's_setprio {o.mprio}')
    e(f's_cmp_eq_u32 s{TYP}, 1')
    e('s_cbranch_scc1 L_typeB')

    ACC = {'P': 64, 'Q': 100}
    WR, TMP = 136, 224
    XRING = [200 + 4 * i for i in range(6)]
    XWIN = [4 + 4 * i for i in range(6)] + [240 + 4 * i for i in range(4)]
    VC = 28
    PF = o.pf
    GT = 98
    wflags = ' sc1' if o.wsc1 else ''
    for typ, S in enumerate(streams()):
        if typ == 1:
            e('.p2align 6')
            if o.warmb: e('L_warmB:'); e('s_branch L_warmret')
            e('L_typeB:')
        ops = []
        vstart = {}
        lastv = GT - 1 if o.tail else NSTEP + 7
        for v in range(lastv + 1):
            vstart[v] = len(ops)
            for j in range(8, -1, -1):
                if 0 <= v - j < NSTEP: ops.append((v - j, j))
        ntail = len(ops)
        if o.tail:
            for j in range(9):
                for g in range(GT - j, NSTEP): ops.append((g, j))
        assert len(ops) == NSTEP * 9 and len(set(ops)) == len(ops)
        N = len(ops)
        def key(n):
            g, j = ops[n]
            pid, arr, ch, c, acc = S[g]
            k = (pid, arr, ch, c + j)
            if n >= ntail and g < GT: k = k + ((n,) if not o.hold else ('h',))
            return k
        first, last = {}, {}
        for n in range(N):
            first.setdefault(key(n), n); last[key(n)] = n
        wfirst, wlast = {}, {}
        for n, (g, j) in enumerate(ops):
            wfirst.setdefault(g, n); wlast[g] = n
        tasks = []
        for k, n0 in first.items():
            win = o.tail and k[2] == 'rem' and k[1] == 'D'
            la = o.xla if n0 < ntail else 6
            if win: la = 40 if k[3] < 8 else 12
            tasks.append([n0 - la, n0 - 1, 'X', k])
        for g in range(NSTEP):
            rel = -100 + g if g < o.pf0 else max(0, wfirst[g] - 9 * PF - (9 * (NSTEP - g) if g >= GT else 0) + (0 if g < GT else 36))
            tasks.append([rel, wfirst[g] - 1, 'W', g])
        def at(v, off=0): return vstart[v] + off
        firstD = min(n for n in range(N) if S[ops[n][0]][1] == 'D')
        lastO = max(n for n in range(N) if S[ops[n][0]][1] == 'O')
        lastP = {j: max(n for n in range(N) if ops[n][1] == j and S[ops[n][0]][4] == 'P') for j in range(9)}
        slow = []
        vused = set()
        def check(v, off, cnt, tag):
            tasks.append([at(v - 1, 3), at(v - 1, 8), 'L', (f'ds_read_b32 v{VC}, v{VF+1} offset:{off}', ('c', tag))])
            tasks.append([at(v, 0), at(v, 1), 'C', (f'v_cmp_ne_u32 vcc, {cnt}, v{VC}', ('c', tag))])
            tasks.append([at(v, 6), at(v, 7), 'I', [f's_cbranch_vccnz L_slow{typ}{tag}', f'L_back{typ}{tag}:']])
            slow.append((tag, off, cnt))
            vused.add(v)
            return at(v, 8)
        def add1(pos, off):
            tasks.append([pos, pos + 4, 'A', off])
        vD = [v for v in vstart if vstart[v] <= firstD - o.xla][-1] - 1
        okD = check(vD, 16, 4, 'D')
        assert okD <= firstD - o.xla
        add1(lastO, 20)
        VP = 47
        okR = check(VP, 20, 4, 'R')
        for j in range(9):
            assert lastP[j] + 12 < at(VP + 1 + j, 2)
            tasks.append([at(VP + 1 + j, 2), at(VP + 1 + j, 8), 'L', (f'ds_write_b128 v{VEX}, {vr(ACC["P"]+4*j,4)} offset:{1024*j}', ('pw', j))])
        tasks.append([at(VP + 10, 0), at(VP + 10, 4), 'A', 'pair'])
        VQ = VP + 13
        okP = check(VQ, 'pair', 2, 'P')
        for j in range(9):
            tasks.append([at(VQ + 1 + j, 2), at(VQ + 1 + j, 8), 'L', (f'ds_read_b128 {vr(TMP+4*(j&1),4)}, v{VEXP} offset:{1024*j}', ('pr', j))])
            v = VQ + 2 + j
            pos = at(v, 8 - (j + 2) - 1) if j <= 6 else at(v, 8 - (j - 7) - 1)
            sh = 1 if j >= 7 else 0
            tasks.append([pos - 1 + sh, pos - 1 + sh, 'Q', (j, 0)])
            tasks.append([pos + sh, pos + sh, 'Q', (j, 1)])
        if typ == 0:
            tasks.append([at(72, 4), at(72, 8), 'S', f'buffer_store_dword v{VCL+1}, v{VCL}, {sr(S_DBG)}, 0 offen sc1'])
            tasks.append([at(92, 4), at(92, 8), 'S', f'buffer_store_dword v{VF+3}, v{VCL+1}, {sr(S_WS)}, 0 offen sc1'])
        fslow = []
        passes = {}
        for g in range(NSTEP): passes.setdefault(S[g][0], g)
        need = [(passes[1], VF, 32 + 64 * typ), (32, VF + 6, 128), (passes[4], VF, 176), (passes[5], VF, 208), (passes[6], VF + 6, 240)]
        for ci, (gn, va, idx) in enumerate(need):
            v = gn - o.pfcs[ci] - 1
            while v in vused: v -= 1
            tasks.append([at(v - o.flead, 4), at(v - o.flead, 8), 'F', (va, idx, ci)])
            tasks.append([at(v, 0), at(v, 1), 'G', ci])
            tasks.append([at(v, 6), at(v, 7), 'I', [f's_cbranch_vccnz L_fw{typ}{ci}', f'L_fb{typ}{ci}:']])
            fslow.append((ci, va))
            assert v not in vused, v
            for t in tasks:
                if t[2] == 'W' and (t[3] >= gn): t[0] = max(t[0], at(v, 8))
        tasks.append([at(v + 1, 2), at(v + 1, 8), 'A', 4])
        if typ == 0:
            for lvl, v in enumerate(o.trig): tasks.append([at(v, 2), at(v, 8), 'P', lvl + 1])
        tasks.sort(key=lambda t: (t[0], t[1]))
        vq, lq = [], []
        dirty = [False]
        xreg, busy = {}, {}
        wn = [0]
        wr = {}
        lastw = [-100]
        BIG = [WR + 4 * i for i in range(16)] + XWIN + [ACC['P'] + 4 * i for i in range(9)]
        for i in range(9): busy[ACC['P'] + 4 * i] = at(VP + 12)
        def wok(t, n):
            if t[2] != 'W': return True
            if t[3] != wn[0]: return False
            free = sum(1 for x in BIG if busy.get(x, -1) <= n)
            if t[1] - n <= 9 * 3: return free > 0
            return n - lastw[0] >= o.wgap and free > (o.wres if n > at(80) else 0)
        since = {}
        fill = []
        def em(x):
            e(x)
            if not x.endswith(':'):
                for jj in since: since[jj] += 1
        def lwait(tag):
            if tag not in lq: return
            i = lq.index(tag)
            em(f's_waitcnt lgkmcnt({0 if dirty[0] else len(lq)-1-i})')
            if dirty[0]: lq.clear(); dirty[0] = False
            else: del lq[:i + 1]
        def vwait(g):
            if g not in vq: return
            i = vq.index(g)
            em(f's_waitcnt vmcnt({len(vq)-1-i})')
            del vq[:i + 1]
        def run(t, n):
            kind, p = t[2], t[3]
            if kind == 'X':
                pool = BIG if (p[-1] == 'h' or (p[2] == 'rem' and p[1] == 'D')) else XRING
                r = [x for x in pool if busy.get(x, -1) <= n]
                assert r, ('no x register', p, n)
                r = min(r, key=lambda x: busy.get(x, -1))
                busy[r] = last[p]; xreg[p] = r
                arr, ch, s_ = p[1], p[2], p[3]
                if o.nolds and n > 9 * 30: return
                if ch == 'rem': em(f'ds_read_b128 {vr(r,4)}, v{VXOR if arr == "O" else VXDR} offset:{288*s_}')
                else: em(f'ds_read_b128 {vr(r,4)}, v{VXO if arr == "O" else VXD} offset:{64*ch+288*s_}')
                lq.append(p)
            elif kind == 'W':
                g = p
                r = min([x for x in BIG if busy.get(x, -1) <= n], key=lambda x: busy.get(x, -1))
                busy[r] = wlast[g]; wr[g] = r
                assert g == wn[0]; wn[0] += 1
                lastw[0] = n
                if o.now and g > 40: return
                if o.wsame and g > 40:
                    em(f'buffer_load_dwordx4 {vr(r,4)}, v{VWL}, {sr(S_WS)}, s{WSO} offen offset:{1024*(g%4)}{wflags}'); vq.append(g); return
                em(f'buffer_load_dwordx4 {vr(r,4)}, v{VWL}, {sr(S_WS)}, s{WSO} offen offset:{1024*(g%4)}{wflags}')
                if g % 4 == 3: em(f's_add_u32 s{WSO}, s{WSO}, 4096')
                vq.append(g)
            elif kind == 'L':
                em(p[0].replace('offset:pair', 'offset:24').replace(f'v{VF+1} offset:24', f'v{VF+5} offset:24')); lq.append(p[1])
            elif kind == 'C':
                lwait(p[1]); em(p[0])
            elif kind == 'I':
                for x in p: em(x)
            elif kind == 'A':
                em('s_mov_b64 exec, 1')
                if p == 'pair': em(f'ds_add_u32 v{VF+5}, v{VF+2} offset:24')
                else: em(f'ds_add_u32 v{VF+1}, v{VF+2} offset:{p}')
                em('s_mov_b64 exec, -1')
                lq.append(('a', p))
            elif kind == 'Q':
                p, hf = p
                lwait(('pr', p))
                q = ACC['Q'] + 4 * p; t_ = TMP + 4 * (p & 1)
                for i in (2 * hf, 2 * hf + 1): em(f'v_add_f32 v{q+i}, v{q+i}, v{t_+i}')
            elif kind == 'S':
                em(p); vq.append(('s', n))
            elif kind == 'F':
                em(f's_mov_b32 s{FO}, {128*p[1]}')
                em(f'buffer_load_dword v{VF+4}, v{p[0]}, {sr(S_WS)}, s{FO} offen {o.fflags}'); vq.append(('f', p[2]))
            elif kind == 'G':
                vwait(('f', p)); em(f'v_cmp_ne_u32 vcc, v{VF+3}, v{VF+4}')
            elif kind == 'P':
                em(f'v_mov_b32 v{VF+7}, {p}')
                em('s_mov_b64 exec, 1')
                em(f'ds_max_u32 v{VF+1}, v{VF+7}')
                em('s_mov_b64 exec, -1')
                lq.append(('p', p))
        def epi(j, pk):
            q = ACC['Q'] + 4 * j
            t = TMP + 8 * (j & 1)
            I = []
            if pk:
                I.append(f'v_pk_mul_f32 {vr(t,2)}, {vr(q,2)}, s[{C2L}:{C2L+1}]')
                I.append(f'v_pk_mul_f32 {vr(t+2,2)}, {vr(q+2,2)}, s[{CNL}:{CNL+1}]')
            else:
                for i in (0, 1): I.append(f'v_mul_f32 v{t+i}, s{C2L}, v{q+i}')
                for i in (2, 3): I.append(f'v_mul_f32 v{t+i}, s{CNL}, v{q+i}')
            I.append(f'v_min_f32 v{t}, s{C60}, v{t}')
            I.append(f'v_min_f32 v{t+1}, s{C60}, v{t+1}')
            for i in (0, 1, 2, 3): I.append(f'v_exp_f32 v{t+i}, v{t+i}')
            if pk:
                I.append(f'v_pk_add_f32 {vr(t+4,2)}, {vr(t,2)}, 1.0 op_sel_hi:[1,0]')
                I.append(f'v_pk_add_f32 {vr(t+6,2)}, {vr(t,2)}, -1.0 op_sel_hi:[1,0]')
                I.append(f'v_pk_fma_f32 {vr(t+4,2)}, {vr(t+4,2)}, {vr(t+2,2)}, {vr(t+4,2)}')
            else:
                for i in (0, 1): I.append(f'v_add_f32 v{t+4+i}, 1.0, v{t+i}')
                for i in (0, 1): I.append(f'v_fma_f32 v{t+4+i}, v{t+4+i}, v{t+2+i}, v{t+4+i}')
            I.append(f'v_rcp_f32 v{t+4}, v{t+4}')
            I.append(f'v_rcp_f32 v{t+5}, v{t+5}')
            if pk:
                I.append('s_nop 0')
                I.append(f'v_pk_mul_f32 {vr(t+6,2)}, {vr(t+6,2)}, {vr(t+4,2)}')
            else:
                for i in (0, 1): I.append(f'v_add_f32 v{t+6+i}, -1.0, v{t+i}')
                for i in (0, 1): I.append(f'v_mul_f32 v{t+6+i}, v{t+6+i}, v{t+4+i}')
            I.append(f'v_cvt_pk_bf16_f32 v{q}, v{t+6}, v{t+7}')
            I.append(f'buffer_store_dword v{q}, v{VOUT + j//3}, {sr(S_OUT)}, 0 offen offset:{1152*(j%3)} {o.oflags if j < o.oj else ""}')
            return I
        def cost(x): return 2 if x.startswith(('v_exp', 'v_rcp', 'buffer')) else 1
        while tasks and tasks[0][0] < 0: run(tasks.pop(0), -1)
        inv = {n: v for v, n in vstart.items()}
        lastop = {j: max(n for n in range(N) if ops[n][1] == j) for j in range(9)}
        for n, (g, j) in enumerate(ops):
            if n in inv and o.padto and o.padev == 'm5' and inv[n] == o.padstep:
                e('s_memrealtime s[100:101]'); dirty[0] = True
            if n in inv and o.diag:
                v = inv[n]
                if o.diag == 2 and v in o.marks:
                    kk = o.marks.index(v)
                    e(f's_memtime s[{ST0+2*kk}:{ST0+2*kk+1}]'); dirty[0] = True
                if o.diag in (1, 4) and v == 33: stamp(5); stamp(6); dirty[0] = True
            k = key(n)
            assert k in xreg, (k, n)
            lwait(k); vwait(g)
            acc = S[g][4]
            d = ACC[acc] + 4 * j
            if g == 0: cs = '0'
            elif acc == 'Q' and S[g-1][4] == 'P': cs = vr(ACC['P'] + 4 * j, 4)
            else: cs = vr(d, 4)
            em(f'v_mfma_f32_16x16x32_bf16 {vr(d,4)}, {vr(wr[g],4)}, {vr(xreg[k],4)}, {cs}' if not o.swapab else f'v_mfma_f32_16x16x32_bf16 {vr(d,4)}, {vr(xreg[k],4)}, {vr(wr[g],4)}, {cs}')
            if n == lastop[j]: since[j] = 0
            budget = 2
            TC = {'X': 1, 'W': 2, 'L': 2, 'C': 1, 'I': 0, 'A': 1, 'Q': 2, 'S': 2, 'F': 2, 'G': 1, 'P': 2}
            while True:
                ready = [t for t in tasks if t[0] <= n and wok(t, n)]
                if not ready: break
                t = min(ready, key=lambda t: t[1])
                assert t[1] >= n, ('late', t, n)
                if TC[t[2]] > budget and t[1] > n:
                    fit = [u for u in ready if TC[u[2]] <= budget]
                    if not fit: break
                    t = min(fit, key=lambda t: t[1])
                tasks.remove(t); run(t, n); budget -= TC[t[2]]
            for jj in sorted(since):
                if 8 <= since[jj] < 10**6:
                    fill += epi(jj, False); since[jj] = 10**6
            budget += o.nfill - 2
            while fill and budget >= cost(fill[0]):
                budget -= cost(fill[0]); em(fill.pop(0))
            assert all(t[1] > n for t in tasks), ('late', n, [t for t in tasks if t[1] <= n])
        assert not tasks
        stamp(7)
        while fill: em(fill.pop(0))
        for jj in [jj for jj in sorted(since) if since[jj] < 10**6]:
            if since[jj] < 8: em(f's_nop {8-since[jj]-1}')
            for x in epi(jj, True): em(x)
        stamp(8)
        if o.padto and o.padev[0] == 'm': padloop(typ)
        if o.diag == 1:
            e('s_waitcnt vmcnt(0)')
            stamp(9)
            dump(10)
        if o.diag == 2:
            kk = len(o.marks)
            e(f's_memtime s[{ST0+2*kk}:{ST0+2*kk+1}]')
            dump(10)
        e('s_endpgm')
        for tag, off, cnt in slow:
            e(f'L_slow{typ}{tag}:')
            e(f'ds_read_b32 v{VC}, v{VF+5 if off == "pair" else VF+1} offset:{24 if off == "pair" else off}')
            e('s_waitcnt lgkmcnt(0)')
            e(f'v_cmp_ne_u32 vcc, {cnt}, v{VC}')
            e('s_nop 4')
            e(f's_cbranch_vccnz L_slow{typ}{tag}')
            e(f's_branch L_back{typ}{tag}')
        for ci, va in fslow: flagwait(f'{typ}{ci}', va, f'L_fb{typ}{ci}')

    mark['help0'] = len(e.L)
    if not o.hfirst: e('.p2align 6')
    e('L_helper:')
    role[0] = 'h'
    e(f's_setprio {o.hprio}')
    e(f's_sub_u32 s{TW0}, s{WAVE}, 4')
    e(f's_mov_b32 s{TW1}, s{WAVE}')
    e(f's_sub_u32 s{PAIR}, s2, {NPROD}')
    e(f's_cselect_b32 s{PAIR}, s2, s{PAIR}')
    e(f's_mov_b32 s{MODE}, 0')
    e(f's_mov_b32 s{NOTASK}, s2')
    e(f's_mov_b32 s{HAS3}, s{TW0}')
    e(f's_lshl_b32 s{SCRB}, s{TW0}, 12')
    e(f's_add_u32 s{SCRB}, s{SCRB}, {SCR}')
    e('L_prod:')
    T = [(28, TW0, 2, 52, 0), (36, TW1, 4, 53, 2048), (44, TW2, 6, 54, 16384)]
    c, kp, q, cc, kk, t = 46, 47, 48, 49, 50, 51
    b = TS
    e('v_mov_b32 v19, 4320')
    e('v_and_b32 v23, 3, v1')
    e('v_lshrrev_b32 v24, 3, v1')
    e('v_mul_u32_u24 v24, 576, v24')
    e('v_bfe_u32 v25, v1, 2, 1')
    e('v_mul_u32_u24 v25, 288, v25')
    e('v_add_u32 v24, v24, v25')
    for (vb, sw, vl, vs, so) in T:
        e(f'v_lshl_add_u32 v8, s{sw}, 2, v23' if sw != TW2 else 'v_add_u32 v8, 32, v23')
        e('v_cmp_le_u32 vcc, 18, v8')
        e(f'v_lshl_add_u32 v{vl}, v8, 4, v24')
        e(f'v_add_u32 v9, v{vl}, v19')
        e(f'v_cndmask_b32 v{vl}, v{vl}, v9, vcc')
    e(f's_and_b32 s{c}, s{PAIR}, 15')
    e(f's_lshr_b32 s{kp}, s{PAIR}, 4')
    e(f's_mul_i32 s{b}, s{c}, 165888')
    e(f's_mul_i32 s{t}, s{kp}, 9216')
    e(f's_add_u32 s{b}, s{b}, s{t}')
    e(f's_add_u32 s{b+1}, s{b}, 82944')
    e(f's_mov_b32 s{S_W+2}, 2571264')
    e(f's_mov_b32 s{S_W+3}, 0x20000')
    e(f's_mov_b32 s{S_WO+3}, 0x20000')
    e(f's_cmp_lg_u32 s{c}, 15')
    e(f's_cselect_b32 s{S_WO+2}, 2571264, 0')
    e(f's_mov_b32 m0, s{SCRB}')
    e('s_waitcnt lgkmcnt(0)')
    e(f's_mov_b32 s{S_W}, s6')
    e(f's_and_b32 s{S_W+1}, s7, 0xffff')
    e(f's_mov_b32 s{S_WO}, s6')
    e(f's_and_b32 s{S_WO+1}, s7, 0xffff')
    e(f's_cmp_ge_u32 s{NOTASK}, {NTASK}')
    e('s_cbranch_scc1 L_a3')
    def cond3(lbl):
        e(f's_cmp_lg_u32 s{HAS3}, 0')
        e(f's_cbranch_scc1 {lbl}')
    for ti, (vb, sw, vl, vs, so) in enumerate(T):
        if ti == 2: cond3('L_a3')
        if ti == 1: e('s_addk_i32 m0, 1024'); e('s_nop 0')
        e(f'buffer_load_dwordx4 v{vl}, {sr(S_W)}, s{b} offen lds')
        e('s_addk_i32 m0, 1024')
        e('s_nop 0')
        e(f'buffer_load_dwordx4 v{vl}, {sr(S_WO)}, s{b+1} offen lds')
        if ti == 1: e(f's_addk_i32 m0, {16384-3072}')
    e('L_a3:')
    stamp(1)
    e(f's_cmp_lg_u32 s{MODE}, 0')
    e('s_cbranch_scc1 L_a4')
    e(f's_load_dword s{TAG}, s[12:13], {NONCE}')
    e(f's_lshr_b32 s{EARLY}, 0x33, s{kp}')
    e(f's_and_b32 s{EARLY}, s{EARLY}, 1')
    e(f's_sub_u32 s{XK}, 2, s{EARLY}')
    e(f's_lshl_b32 s{t}, s{kp}, 1')
    e(f's_lshr_b32 s{YT}, {(3<<12)+(3<<14)+(3<<16)}, s{t}')
    e(f's_and_b32 s{YT}, s{YT}, 3')
    e(f's_lshr_b32 s{t}, s{kp}, 1')
    e(f's_cmp_ge_u32 s2, {NPROD}')
    e(f's_cselect_b32 s{EARLY}, 0, s{EARLY}')
    e(f's_cselect_b32 s{XK}, 3, s{XK}')
    e(f's_cselect_b32 s{YT}, s{t}, s{YT}')
    e(f's_cmp_ge_u32 s2, {NPROD+32}')
    e(f's_cselect_b32 s{XK}, 0, s{XK}')
    e(f's_cmp_ge_u32 s2, {NTASK}')
    e(f's_cselect_b32 s{YT}, 0, s{YT}')
    if not o.b0early:
        e(f's_cmp_lg_u32 s{EARLY}, 0')
        e('s_cbranch_scc1 L_a4')
    e('s_barrier')
    e('L_a4:')
    e(f's_mov_b32 s{MASK}, 0xffff0000')
    e(f's_mov_b32 s{NPOLL}, 0')
    srd(e, S_WS, 12, WS_REC)
    srd(e, S_DBG, 10, 256)
    e(f'v_mov_b32 v10, {CNT}')
    e(f'v_mov_b32 v20, {(256 - 18*2*NSTEP*1024) & 0xffffffff}')
    e(f'v_mov_b32 v26, {2*NSTEP*1024}')
    e('v_bfe_u32 v21, v1, 2, 2')
    e('v_lshlrev_b32 v21, 7, v21')
    e('v_and_b32 v22, 1, v1')
    e('v_lshl_add_u32 v21, v22, 6, v21')
    e('v_bfe_u32 v22, v1, 1, 1')
    e('v_lshl_add_u32 v21, v22, 3, v21')
    e('v_lshrrev_b32 v22, 4, v1')
    e('v_lshl_add_u32 v21, v22, 4, v21')
    e(f'v_add_u32 v21, s{SCRB}, v21')
    e('v_and_b32 v25, 15, v1')
    e('v_lshlrev_b32 v25, 4, v25')
    for (vb, sw, vl, vs, so) in T:
        e(f'v_lshl_add_u32 v8, s{sw}, 2, v22' if sw != TW2 else 'v_add_u32 v8, 32, v22')
        e('v_cmp_le_u32 vcc, 18, v8')
        e(f'v_mad_u32_u24 v{vs}, v8, v26, v25')
        e(f'v_add_u32 v9, v{vs}, v20')
        e(f'v_cndmask_b32 v{vs}, v{vs}, v9, vcc')
    e(f's_lshr_b32 s{q}, s{kp}, 1')
    e(f's_and_b32 s{cc}, s{c}, 7')
    e(f's_lshr_b32 s{kk}, s{c}, 3')
    e(f's_and_b32 s{t}, s{kp}, 1')
    e(f's_cmp_eq_u32 s{kp}, 8')
    e(f's_cselect_b32 s{cc}, s{cc}, s{c}')
    e(f's_cselect_b32 s{kk}, s{kk}, s{t}')
    e(f's_lshl_b32 s{kk}, s{kk}, 9')
    e(f's_add_u32 s{kk}, s{kk}, {WOFF}')
    e(f's_lshl_b32 s{t}, s{q}, 4')
    e(f's_add_u32 s{b+2}, s{t}, s{cc}')
    e(f's_sub_u32 s{b+3}, s{b+2}, s{q}')
    e(f's_cmp_ge_u32 s{q}, 2')
    e(f's_cselect_b32 s{b+4}, 74, 0')
    e(f's_add_u32 s{b+4}, s{b+4}, s{b+2}')
    e(f's_cmp_lt_u32 s{cc}, 2')
    e(f's_cselect_b32 s{t}, 32, 136')
    e(f's_add_u32 s{t}, s{t}, s{cc}')
    e(f's_cmp_eq_u32 s{kp}, 8')
    e(f's_cselect_b32 s{b+4}, s{t}, s{b+4}')
    e(f's_add_u32 s{b+2}, s{b+2}, 34')
    e(f's_add_u32 s{b+3}, s{b+3}, 144')
    for k in (2, 3, 4):
        e(f's_lshl_b32 s{b+k}, s{b+k}, 10')
        e(f's_add_u32 s{b+k}, s{b+k}, s{kk}')
    e(f's_cmp_eq_u32 s{kp}, 8')
    e(f's_cselect_b32 s{t}, 1, 2')
    e(f's_cmp_eq_u32 s{c}, 15')
    e(f's_cselect_b32 s{b+5}, s{t}, 0')
    e(f's_lshl_b32 s46, s{WAVE}, 2')
    e(f's_add_u32 s46, s46, {CNT+16}')
    e('v_mov_b32 v55, s46')
    e('v_mov_b32 v27, 0')
    e('v_mov_b32 v9, 4')
    e('s_waitcnt vmcnt(0) lgkmcnt(0)')
    stamp(2)
    e(f's_cmp_ge_u32 s{NOTASK}, {NTASK}')
    e('s_cbranch_scc1 L_x9')
    e(f's_cmp_lg_u32 s{WAVE}, 4')
    e('s_cbranch_scc1 L_a5')
    e('s_mov_b64 exec, 1')
    e(f'buffer_load_dword v27, v9, {sr(S_DBG)}, 0 offen sc1')
    e('s_mov_b64 exec, -1')
    e('L_a5:')
    for (vb, sw, vl, vs, so) in T:
        for tap in range(2):
            for half in range(2):
                e(f'ds_read_b64_tr_b16 {vr(vb+4*tap+2*half,2)}, v21 offset:{so+1024*tap+512*half}')
    nlab = [0]
    def st01(vb, vs):
        nlab[0] += 1
        e(f'buffer_store_dwordx4 {vr(vb,4)}, v{vs}, {sr(S_WS)}, s{b+2} offen sc1')
        e(f's_cmp_eq_u32 s{b+5}, 2')
        e(f's_cbranch_scc1 L_skip{nlab[0]}')
        e(f'buffer_store_dwordx4 {vr(vb+4,4)}, v{vs}, {sr(S_WS)}, s{b+3} offen sc1')
        e(f'L_skip{nlab[0]}:')
    def st01all(lbl):
        st01(T[0][0], T[0][3]); st01(T[1][0], T[1][3])
        cond3(lbl)
        st01(T[2][0], T[2][3])
    def dosum(vb, tb, ob):
        for i in range(8):
            e(f'v_lshlrev_b32 v{tb+2*i}, 16, v{vb+i}')
            e(f'v_and_b32 v{tb+2*i+1}, s{MASK}, v{vb+i}')
        for i in range(4):
            e(f'v_pk_add_f32 {vr(tb+2*i,2)}, {vr(tb+2*i,2)}, {vr(tb+8+2*i,2)}')
        for i in range(4):
            e(f'v_cvt_pk_bf16_f32 v{ob+i}, v{tb+2*i}, v{tb+2*i+1}')
    def ldswait(off, cmp, operand, tag, slp):
        e(f'L_lw{tag}:')
        e(f'ds_read_b32 v11, v10 offset:{off}')
        e('s_waitcnt lgkmcnt(0)')
        e('v_and_b32 v11, 0xff, v11')
        e(f'v_cmp_{cmp}_u32 vcc, {operand}, v11')
        e('s_nop 4')
        e(f's_cbranch_vccnz L_lx{tag}')
        e(f's_sleep {slp}')
        e(f's_branch L_lw{tag}')
        e(f'L_lx{tag}:')
    SO = 240
    e(f's_or_b32 s46, s{EARLY}, s{MODE}')
    e(f's_cmp_eq_u32 s{XK}, 2')
    e('s_cselect_b32 s47, 1, s46')
    e('s_cmp_eq_u32 s47, 0')
    e('s_cbranch_scc1 L_x9')
    for ti, (vb, sw, vl, vs, so) in enumerate(T):
        if ti == 2: cond3('L_x3')
        e(f's_waitcnt lgkmcnt({8-4*ti})')
        dosum(vb, 64 + 16 * ti, SO + 4 * ti)
        e('s_cmp_eq_u32 s46, 0')
        e(f's_cbranch_scc1 L_x5{ti}')
        e(f'buffer_store_dwordx4 {vr(SO+4*ti,4)}, v{vs}, {sr(S_WS)}, s{b+4} offen sc1')
        e(f'L_x5{ti}:')
    e('L_x3:')
    e(f's_cmp_eq_u32 s{MODE}, 0')
    e('s_cbranch_scc1 L_x9')
    e('L_x2:')
    e('s_waitcnt lgkmcnt(0)')
    st01all('L_x4')
    e('L_x4:')
    e(f's_cmp_eq_u32 s{MODE}, 0')
    e('s_cbranch_scc1 L_x9')
    e('s_waitcnt vmcnt(0)')
    e(f's_add_u32 s{PAIR}, s{PAIR}, 1')
    e(f's_cmp_lt_u32 s{PAIR}, {NPROD}')
    e('s_cbranch_scc1 L_prod')
    e('v_mov_b32 v11, 1')
    e('ds_write_b32 v10, v11 offset:12')
    e('s_endpgm')
    e('L_x9:')
    stamp(3)
    decode()
    e('v_subrev_u32 v4, 256, v0')
    e('v_min_u32 v4, 251, v4')
    e('v_mul_u32_u24 v3, 3641, v4')
    e('v_lshrrev_b32 v3, 16, v3')
    e('v_mul_u32_u24 v2, 18, v3')
    e('v_sub_u32 v2, v4, v2')
    e(f'v_mul_u32_u24 v3, {R}, v3')
    e(f'v_min_u32 v3, {160-R}, v3')
    e('v_mul_u32_u24 v4, 1152, v3')
    e('v_lshl_add_u32 v4, v2, 4, v4')
    e(f'v_add_u32 v12, s{XB}, v4')
    e('v_mul_u32_u24 v18, 288, v3')
    e('v_lshl_add_u32 v18, v2, 4, v18')
    e(f'v_add_u32 v19, {X_D1}, v18')
    srd(e, S_X, 4, 1152000, add=BOFF)
    e(f's_add_u32 s46, s{TAG}, {TAGINC}')
    e('v_mov_b32 v56, s46')
    e('s_lshl_b32 s46, s2, 7')
    e('v_mov_b32 v58, s46')
    e(f's_add_u32 s46, s{PAIR}, {NPROD}')
    e('s_lshl_b32 s46, s46, 7')
    e('v_mov_b32 v59, s46')
    def publish(slot, vflag, tag, first, n=0):
        e('s_mov_b64 exec, 1')
        e(f's_waitcnt vmcnt({n})')
        if first: stamp(4)
        e('v_cmp_ne_u32 vcc, 0, v27')
        e('v_not_b32 v57, v56')
        e('s_nop 0')
        e('v_cndmask_b32 v57, v56, v57, vcc')
        e(f'ds_write_b32 v55, v57 offset:{slot}')
        e(f'ds_read_b128 v[20:23], v10 offset:{32+slot}')
        e('s_waitcnt lgkmcnt(0)')
        for i in range(4): e(f'v_xor_b32 v{20+i}, v{20+i}, v56')
        e('v_or3_b32 v20, v20, v21, v22')
        e('v_or_b32 v20, v20, v23')
        e('v_cmp_eq_u32 vcc, 0, v20')
        e('s_and_b64 exec, exec, vcc')
        e(f's_cbranch_execz L_nl{tag}')
        e(f'buffer_store_dword v56, v{vflag}, {sr(S_WS)}, 0 offen sc1')
        e(f'L_nl{tag}:')
        e('s_mov_b64 exec, -1')
    e(f's_cmp_eq_u32 s{EARLY}, 0')
    e('s_cbranch_scc1 L_noflag')
    publish(0, 58, 'x', True)
    if not o.b0early: e('s_barrier')
    e('L_noflag:')
    e(f's_setprio {o.hprio2}')
    RAW, ORAW = 64, 120
    EU = [184, 192]
    OU, DT, DO = 200, 208, 216
    xi = [0]
    NL = R + 1
    hq = []
    def eload():
        k = xi[0]
        if k >= NL: return
        a_ = 12
        if k:
            a_ = 13 + (k & 3)
            e(f'v_add_u32 v{a_}, {1152*k}, v12')
        e(f'buffer_load_dwordx4 {vr(RAW+4*k,4)}, v{a_}, {sr(S_X)}, 0 offen')
        xi[0] += 1
        hq.append(('e', k))
    if o.etouch:
        e(f's_cmp_lt_u32 s2, {NTASK}')
        e('s_cbranch_scc1 L_net')
        e(f's_and_b32 s46, s{NB}, 1')
        e(f's_mul_i32 s46, s46, {1152*6}')
        e('v_add_u32 v12, s46, v12')
        for _ in range(7): eload()
        e('v_subrev_u32 v12, s46, v12')
        e('s_waitcnt vmcnt(0)')
        e('L_net:')
        xi[0] = 0; hq.clear()
    YA = 232
    e(f's_cmp_eq_u32 s{b+5}, 2')
    e('s_cselect_b32 s46, 0x80000000, 0')
    e(f's_cmp_lg_u32 s{HAS3}, 0')
    e('s_cselect_b32 s47, 0x80000000, 0')
    e('s_or_b32 s48, s46, s47')
    for i in range(6):
        m_ = {0: None, 1: 46, 2: None, 3: 46, 4: 47, 5: 48}[i]
        e(f'v_mov_b32 v{YA+i}, v{52+i//2}' if m_ is None else f'v_or_b32 v{YA+i}, s{m_}, v{52+i//2}')
    def ystore(i, a_):
        e(f'buffer_store_dwordx4 {vr(28+4*i,4)}, v{a_}, {sr(S_WS)}, s{b+2+(i&1)} offen sc1')
        hq.append(('y', i))
    stamp(5)
    ldswait(8, 'eq', 4, 'o', 1)
    def unpack(dst, s_):
        for i in range(4):
            e(f'v_lshlrev_b32 v{dst+2*i}, 16, v{s_+i}')
            e(f'v_and_b32 v{dst+2*i+1}, s{MASK}, v{s_+i}')
    def unpackE(dst, k):
        e(f's_waitcnt vmcnt({len(hq)-1-hq.index(("e", k))})')
        unpack(dst, RAW + 4 * k)
        eload()
    def diff(eu, out):
        for i in range(8): e(f'v_sub_f32 v{DT+i}, v{eu+i}, v{OU+i}')
        for i in range(4):
            e(f'v_cvt_pk_bf16_f32 v{out+i}, v{DT+2*i}, v{DT+2*i+1}')
    def opengate():
        if not o.gate: return
        e('v_mov_b32 v11, 0x100')
        e('s_mov_b64 exec, 1')
        e('ds_add_u32 v10, v11 offset:8')
        e('s_mov_b64 exec, -1')
    def rows(hook):
        stamp(6)
        for j in range(R):
            e(f'ds_read_b128 {vr(ORAW+4*j,4)}, v18 offset:{X_O+288*j}')
        unpackE(EU[0], 0)
        e('s_waitcnt lgkmcnt(0)')
        for j in range(R):
            o0 = DO + 8 * (j & 1)
            unpack(OU, ORAW + 4 * j)
            diff(EU[j & 1], o0)
            e(f'ds_write_b128 v18, {vr(o0,4)} offset:{X_D0+288*j}')
            unpackE(EU[(j + 1) & 1], j + 1)
            diff(EU[(j + 1) & 1], o0 + 4)
            e(f'ds_write_b128 v19, {vr(o0+4,4)} offset:{288*j}')
            hook(j)
    e(f's_cmp_ge_u32 s2, {NPROD + (32 if o.d0p else 0)}')
    e('s_cbranch_scc1 L_pathA')
    e(f's_cmp_lt_u32 s{XK}, 2')
    e('s_cbranch_scc1 L_nox')
    if o.d0p:
        e(f's_cmp_eq_u32 s{XK}, 3')
        e('s_cbranch_scc1 L_xd')
    for i in range(3):
        e(f'buffer_store_dwordx4 {vr(SO+4*i,4)}, v{YA+2*i}, {sr(S_WS)}, s{b+4} offen sc1')
    if o.d0p:
        e('s_branch L_xe')
        e('L_xd:')
        for i in range(6): ystore(i, YA + i)
        e('L_xe:')
    publish(0, 58, 'x2', True)
    e('L_nox:')
    opengate()
    hq.clear(); xi[0] = 0
    for _ in range(o.ein): eload()
    rows(lambda j: None)
    e('s_branch L_rowsdone')
    e('L_pathA:')
    if not o.d0p:
        e(f's_cmp_eq_u32 s{XK}, 3')
        e('s_cselect_b32 s47, 0, 0x80000000')
        for i in range(6): e(f'v_or_b32 v{20+i}, s47, v{YA+i}')
    hq.clear(); xi[0] = 0
    for _ in range(NL): eload()
    if not o.d0p:
        for i in range(6): ystore(i, 20 + i)
    def hookA(j):
        if j == o.grow:
            e(f's_waitcnt vmcnt({len(hq)-1-hq.index(("e", NL-1))})')
            opengate()
        if j == o.xrow and not o.d0p:
            e(f's_cmp_lg_u32 s{XK}, 3')
            e('s_cbranch_scc1 L_xp')
            publish(0, 58, 'x3', True)
            e('L_xp:')
    rows(hookA)
    e('L_rowsdone:')
    e('s_waitcnt lgkmcnt(0)')
    stamp(7)
    e('v_mov_b32 v11, 1')
    e('s_mov_b64 exec, 1')
    e('ds_add_u32 v10, v11 offset:16')
    e('s_mov_b64 exec, -1')
    e(f's_cmp_eq_u32 s{YT}, 0')
    e('s_cbranch_scc1 L_noy')
    e(f's_setprio {o.hprio}')
    e('L_yw:')
    e('ds_read_b64 v[20:21], v10')
    e('s_waitcnt lgkmcnt(0)')
    e('v_lshrrev_b32 v21, 14, v21')
    e('v_and_b32 v21, -4, v21')
    e('v_or_b32 v20, v20, v21')
    e(f'v_cmp_le_u32 vcc, s{YT}, v20')
    e('s_nop 4')
    e('s_cbranch_vccnz L_yx')
    e('s_sleep 4')
    e('s_branch L_yw')
    e('L_yx:')
    for i in range(6):
        ystore(i, YA + i)
        e(f's_waitcnt vmcnt({o.ythr})')
    publish(16, 59, 'y', False)
    if o.diag == 1: stamp(8)
    e('L_noy:')
    e(f's_cmp_lg_u32 s{WAVE}, 4')
    e('s_cbranch_scc1 L_hend')
    e('L_guard:')
    e('ds_read_b32 v11, v10 offset:4')
    e('s_waitcnt lgkmcnt(0)')
    e('v_readfirstlane_b32 s46, v11')
    e('s_nop 3')
    e('s_cmp_eq_u32 s46, 4')
    e('s_cbranch_scc1 L_hend')
    e('s_cmp_lt_u32 s46, 0x10000')
    e('s_cbranch_scc0 L_rescue')
    e('s_sleep 16')
    e('s_branch L_guard')
    e('L_rescue:')
    e(f's_mov_b32 s{MODE}, 1')
    e(f's_mov_b32 s{HAS3}, 1')
    e(f's_mov_b32 s{NOTASK}, 0')
    e(f's_lshr_b32 s{TW0}, s{NB}, 1')
    e(f's_add_u32 s{TW1}, s{NB}, 9')
    e(f's_lshr_b32 s{TW1}, s{TW1}, 1')
    e(f's_mov_b32 s{PAIR}, 0')
    e('s_branch L_prod')
    e('L_hend:')
    if o.padto and o.padev[0] == 'h': padloop('h')
    if o.diag == 1:
        stamp(9)
        dump(10)
    e('L_end:')
    e('s_endpgm')
    if o.hfirst:
        m0, h0 = mark['main0'], mark['help0']
        e.L = e.L[:m0] + e.L[h0:] + ['.p2align 6'] + e.L[m0:h0]
    e('L_codeend:')
    e('.section .rodata,"a"')
    e('.p2align 6')
    e(f'.amdhsa_kernel {KN}')
    for x in ['next_free_vgpr 256', 'next_free_sgpr 102', 'accum_offset 256', 'group_segment_fixed_size 0', 'kernarg_size 40',
              'user_sgpr_count 2', 'user_sgpr_kernarg_segment_ptr 1', 'system_sgpr_workgroup_id_x 1']:
        e('  .amdhsa_' + x)
    e('.end_amdhsa_kernel')
    n = haz.check(e.L)
    if n: print(f'{n} hazards', file=sys.stderr)
    return f'; @launch grid=({NWG},1,1) block=(512,1,1) lds={LDS_BYTES}\n' + e.text()

def opts(argv=None):
    ap = argparse.ArgumentParser()
    ap.add_argument('-o', default='k.s')
    for nm, d in [('diag', 0), ('pf', 16), ('pf0', 8), ('wgap', 4), ('wres', 0), ('wsc1', 0), ('nfill', 2), ('fstride', 128), ('sleep', 0), ('maxpoll', 3000), ('nopoll', 0),
                  ('hprio', 3), ('hprio2', 0), ('mprio', 2), ('epre', 0), ('ein', 7), ('dpre', 7), ('b0early', 0), ('mtouch', 3), ('gate', 1), ('swapab', 0), ('d0p', 0), ('oj', 9), ('nolds', 0), ('now', 0), ('wsame', 0), ('grow', 1), ('vbd', 33), ('nopk', 1), ('padto', 0), ('npdelay', 0), ('opre', 0), ('etouch', 0), ('orev', 1), ('b0late', 1), ('dec', 1), ('tail', 1), ('xla', 9), ('hold', 1), ('prest', 0), ('xslot', 0), ('noclosed', 0), ('cpf', 1), ('hfirst', 1), ('warmb', 1), ('wsfirst', 0), ('flead', 6), ('ythr', 6), ('xrow', 3), ('padstep', 33), ('probe', 0), ('probeoff', 0x4000000)]:
        ap.add_argument('--' + nm, type=int, default=d)
    ap.add_argument('--oflags', default='')
    ap.add_argument('--pmap', default='18,18,18,18,18,18,18,18')
    ap.add_argument('--padev', default='m0')
    ap.add_argument('--trig', default='10,25,40')
    ap.add_argument('--yrow', default='0,7,2,9,5,11')
    ap.add_argument('--pfcs', default='4,5,5,8,8')
    ap.add_argument('--fflags', default='')
    ap.add_argument('--marks', default='0,4,8,12,16,24,33,47,58')
    o = ap.parse_args(argv)
    o.marks = [int(x) for x in o.marks.split(',')]
    o.yrow = [int(x) for x in o.yrow.split(',')]
    o.pfcs = [int(x) for x in o.pfcs.split(',')]
    o.trig = [int(x) for x in o.trig.split(',')]
    return o

if __name__ == '__main__':
    o = opts()
    open(o.o, 'w').write(gen(o))
```

```python
import re, sys, argparse
import haz

KN = 'standalone__autoregressive_conv_wavernn__speech_kernel'
NWG = 252
NPROD = 144
ARR = 160 * 288
X_D0, X_O, X_D1 = 0, ARR, 2 * ARR
CNT = 3 * ARR
SCR = CNT + 64
LDS_BYTES = SCR + 18432
NSTEP = 106
WOFF = int(__import__('os').environ.get('WOFF', '0x100000'), 0)
NONCE = 0x10000
DIAG = 0x800000
WS_REC = max(0x1000000, WOFF + 0x400000, int(__import__('os').environ.get('WSREC', '0'), 0))
TAGINC = 0x9E3779B9
R = 12

class Em:
    def __init__(self): self.L = []
    def __call__(self, s): self.L.append(s)
    def text(self): return '\n'.join(self.L) + '\n'

def vr(a, n=1): return f'v{a}' if n == 1 else f'v[{a}:{a+n-1}]'
def sr(a, n=4): return f's[{a}:{a+n-1}]'

def streams():
    out = []
    for typ in (0, 1):
        S = []
        pid = [0]
        def add(arr, chunk, cs, acc):
            for c in cs: S.append((pid[0], arr, chunk, c, acc))
            pid[0] += 1
        if typ == 0:
            add('O', 0, range(16), 'P'); add('O', 1, range(16), 'P'); add('O', 'rem', range(0, 2), 'P')
            for q in range(4): add('D', q, range(16), 'Q')
            add('D', 'rem', range(8), 'Q')
        else:
            add('O', 2, range(16), 'P'); add('O', 3, range(16), 'P'); add('O', 'rem', range(2, 8), 'P')
            for q in range(4): add('D', q, range(15), 'Q')
            add('D', 'rem', range(8), 'Q')
        assert len(S) == NSTEP
        out.append(S)
    return out

S_X, S_W, S_WO, S_WS, S_OUT, S_DBG = 20, 24, 28, 32, 36, 40
WAVE, NB, BAT, PAR, MB, BOFF = 14, 15, 16, 17, 18, 19
PAIR0 = 3
XB = 52
MASK = 53
TW0, TW1, TW2, PAIR, HAS3, MODE, SCRB, TAG, LAST, NPOLL = 44, 45, 54, 55, 56, 57, 58, 59, 60, 61
TS = 62
TYP, WSO = 68, 69
EARLY, XK, YT, FIDX = 90, 91, 92, 93
NOTASK = 94
NTASK = NPROD + 96
FO = 97
C2L, CNL, C60 = 90, 92, 94
ST0 = 70

def srd(e, d, ptr, rec, add=None):
    if add is None:
        e(f's_mov_b32 s{d}, s{ptr}')
        e(f's_and_b32 s{d+1}, s{ptr+1}, 0xffff')
    else:
        e(f's_add_u32 s{d}, s{ptr}, s{add}')
        e(f's_addc_u32 s{d+1}, s{ptr+1}, 0')
        e(f's_and_b32 s{d+1}, s{d+1}, 0xffff')
    e(f's_mov_b32 s{d+2}, {rec}')
    e(f's_mov_b32 s{d+3}, 0x20000')

def gen(o):
    e = Em()
    role = ['m']
    def padloop(tag):
        e(f'L_pad{tag}:')
        e('s_memrealtime s[98:99]')
        e('s_waitcnt lgkmcnt(0)')
        e('s_sub_u32 s98, s98, s100')
        e(f's_cmp_lt_u32 s98, {o.padto}')
        e(f's_cbranch_scc1 L_pad{tag}')
    def stamp(k, lvl=1):
        if o.padto and lvl == 1 and o.padev == f'{role[0]}{k}':
            e('s_memrealtime s[100:101]'); e('s_waitcnt lgkmcnt(0)')
        if o.diag == lvl or (o.diag == 4 and lvl == 1): e(f's_memrealtime s[{ST0+2*k}:{ST0+2*k+1}]')
    def dump(nst):
        e('s_waitcnt lgkmcnt(0)')
        e('v_mov_b32 v250, 0')
        for k in range(nst): e(f'v_writelane_b32 v250, s{ST0+2*k}, {k}')
        e(f'v_writelane_b32 v250, s{NPOLL}, 13')
        e(f'v_writelane_b32 v250, s95, 12')
        e(f'v_writelane_b32 v250, s2, 14')
        e('s_getreg_b32 s46, hwreg(HW_REG_XCC_ID)')
        e('v_writelane_b32 v250, s46, 15')
        e(f's_lshl_b32 s46, s2, 3'); e(f's_add_u32 s46, s46, s{WAVE}'); e('s_lshl_b32 s46, s46, 6'); e(f's_add_u32 s46, s46, {DIAG}')
        e('v_lshl_add_u32 v251, v1, 2, s46')
        e('s_mov_b64 exec, 0xffff')
        e(f'buffer_store_dword v250, v251, {sr(S_WS)}, 0 offen')
        e('s_mov_b64 exec, -1')

    e('.amdgcn_target "amdgcn-amd-amdhsa--gfx950"')
    e('.text')
    e(f'.globl {KN}')
    e('.p2align 8')
    e(f'.type {KN},@function')
    e(f'{KN}:')
    e(f's_cmp_ge_u32 s2, {NWG}')
    e('s_cbranch_scc1 L_end')
    stamp(0)
    if o.padto and o.padev != 'm0': e('s_memrealtime s[100:101]')
    e('s_load_dwordx4 s[4:7], s[0:1], 0')
    e('s_load_dwordx4 s[8:11], s[0:1], 16')
    e('s_load_dwordx2 s[12:13], s[0:1], 32')
    e('v_lshrrev_b32 v2, 6, v0')
    e('v_and_b32 v1, 63, v0')
    e(f'v_readfirstlane_b32 s{WAVE}, v2')
    def decode():
        e('s_and_b32 s44, s2, 7')
        e('s_lshr_b32 s45, s2, 3')
        e('s_mul_i32 s46, s44, 31')
        e('s_min_u32 s44, s44, 4')
        e('s_add_u32 s46, s46, s44')
        e('s_add_u32 s46, s46, s45')
        if o.map == 0:
            e('s_mul_hi_u32 s47, s46, 68174085')
            e('s_mul_i32 s48, s47, 63')
            e('s_sub_u32 s48, s46, s48')
            e(f's_mul_hi_u32 s{NB}, s48, 613566757')
            e(f's_mul_i32 s49, s{NB}, 7')
            e('s_sub_u32 s49, s48, s49')
            e('s_mul_i32 s47, s47, 7')
            e('s_add_u32 s47, s47, s49')
        elif o.map == 1:
            e('s_mul_hi_u32 s47, s46, 477218589')
            e('s_mul_i32 s48, s47, 9')
            e(f's_sub_u32 s{NB}, s46, s48')
        else:
            e('s_mul_hi_u32 s47, s46, 34087043')
            e('s_mul_i32 s48, s47, 126')
            e('s_sub_u32 s48, s46, s48')
            e(f's_mul_hi_u32 s{NB}, s48, 306783379')
            e(f's_mul_i32 s49, s{NB}, 14')
            e('s_sub_u32 s49, s48, s49')
            e('s_mul_i32 s47, s47, 14')
            e('s_add_u32 s47, s47, s49')
        e(f's_and_b32 s{PAR}, s47, 1')
        e('s_lshr_b32 s47, s47, 1')
        e('s_cmp_ge_u32 s47, 7')
        e(f's_cselect_b32 s{BOFF}, 1152000, 0')
        e('s_cselect_b32 s48, 7, 0')
        e(f's_sub_u32 s{MB}, s47, s48')
        e(f's_mul_i32 s{XB}, s{MB}, 576')
        e(f's_add_u32 s{XB}, s{XB}, s{PAR}')
        e(f's_sub_u32 s{XB}, s{XB}, 60')
        e(f's_mul_i32 s{XB}, s{XB}, 288')
    e(f's_cmp_ge_u32 s{WAVE}, 4')
    e('s_cbranch_scc1 L_helper')
    if o.cpf:
        e('s_lshr_b32 s44, s2, 3')
        e(f's_lshl_b32 s45, s{WAVE}, 5')
        e('s_add_u32 s44, s44, s45')
        e('s_sub_u32 s44, s44, 26')
        e('s_cmp_ge_u32 s44, 5')
        e('s_cbranch_scc1 L_main')
        e('s_getpc_b64 s[46:47]')
        e('L_pc:')
        e('s_lshl_b32 s44, s44, 13')
        e('v_lshl_add_u32 v2, v1, 7, s44')
        e('v_min_u32 v2, L_codeend-L_pc-4, v2')
        e('global_load_dword v63, v2, s[46:47]')
    if o.hfirst: e('s_branch L_main')
    mark = {'main0': len(e.L)}
    e('L_main:')
    e(f's_mov_b32 s{MASK}, 0xffff0000')
    e(f's_mov_b32 s{NPOLL}, 0')
    if o.diag: e('s_mov_b32 s95, 0')
    decode()

    VXO, VXOR, VXD, VXDR, VWL, VEX, VEXP, VOUT = 30, 31, 32, 33, 34, 35, 36, 37
    VF = 40
    VA = 48
    VCL = 60
    e('v_mul_u32_u24 v3, 3641, v0')
    e('v_lshrrev_b32 v3, 16, v3')
    e('v_mul_u32_u24 v2, 18, v3')
    e('v_sub_u32 v2, v0, v2')
    e('v_mul_u32_u24 v3, 1152, v3')
    e('v_lshl_add_u32 v3, v2, 4, v3')
    e(f's_add_u32 s46, s{XB}, 576')
    e(f'v_add_u32 v{VA}, s46, v3')
    e('v_mov_b32 v5, 16192')
    e('v_mov_b32 v6, 17056')
    for k in range(1, 12):
        e('v_cmp_le_u32 vcc, 14, v2')
        e('v_add_u32 v3, 4, v2')
        e('v_subrev_u32 v4, 14, v2')
        e('v_cndmask_b32 v7, v5, v6, vcc')
        e('v_cndmask_b32 v2, v3, v4, vcc')
        e(f'v_add_u32 v{VA+k}, v{VA+k-1}, v7')
    e(f's_lshl_b32 s50, s{WAVE}, 10')
    e(f's_add_u32 s50, s50, {X_O}')
    e(f's_add_u32 s51, s50, {4096*11}')
    e('s_movk_i32 s49, 4096')
    if o.orev:
        e(f's_bitcmp0_b32 s{NB}, 0')
        e('s_cbranch_scc1 L_fwd')
        for k in range(5): e(f'v_swap_b32 v{VA+k}, v{VA+10-k}')
        e(f's_add_u32 s50, s50, {4096*10}')
        e('s_movk_i32 s49, -4096')
        e('L_fwd:')
    e(f'v_mov_b32 v{VF+1}, {CNT}')
    for r in range(4, 8): e(f'v_mov_b32 v{r}, 0')
    e(f'ds_write_b128 v{VF+1}, v[4:7]')
    e(f'ds_write_b128 v{VF+1}, v[4:7] offset:16')
    e('s_waitcnt lgkmcnt(0)')
    e(f's_load_dword s{TAG}, s[12:13], {NONCE}')
    srd(e, S_X, 4, 1152000, add=BOFF)
    def odma(k):
        e(f's_mov_b32 m0, s{51 if k == 11 else 50}')
        e('s_add_u32 s50, s50, s49')
        e(f'buffer_load_dwordx4 v{VA+k}, {sr(S_X)}, 0 offen lds')
    def etouch():
        e(f'buffer_load_dword v62, v9, {sr(S_X)}, 0 offen')
    if o.mtouch:
        e('v_min_u32 v8, 39, v1')
        e('v_lshrrev_b32 v9, 2, v8')
        e(f's_mul_i32 s46, s{WAVE}, 10')
        e('v_add_u32 v9, s46, v9')
        e(f'v_mul_u32_u24 v9, {4*1152}, v9')
        e('v_and_b32 v8, 3, v8')
        e('v_mul_u32_u24 v8, 92, v8')
        e(f's_and_b32 s46, s{NB}, 3')
        e('s_mul_i32 s46, s46, 1152')
        e(f's_add_u32 s46, s46, s{XB}')
        e('v_add3_u32 v9, v9, v8, s46')
    if o.mtouch == 2: etouch()
    for k in range(o.opre): odma(k)
    e('s_barrier')
    stamp(1)
    if o.mtouch == 3: etouch()
    for k in range(o.opre, 12):
        if k == 11:
            e(f's_cmp_lg_u32 s{WAVE}, 0')
            e('s_cbranch_scc1 L_o11')
        odma(k)
    e('L_o11:')
    if o.mtouch == 1: etouch()
    srd(e, S_WS, 12, WS_REC)
    srd(e, S_OUT, 8, 1152000, add=BOFF)
    srd(e, S_DBG, 10, 256)
    e('v_and_b32 v2, 15, v1')
    e('v_lshrrev_b32 v3, 4, v1')
    e('v_subrev_u32 v5, 4, v2')
    e('v_add_u32 v6, 8, v2')
    e('v_cmp_gt_u32 vcc, 4, v2')
    e('v_cmp_le_u32 s[46:47], 12, v2')
    e(f's_and_b32 s{TYP}, s{WAVE}, 1')
    e(f's_lshr_b32 s48, s{WAVE}, 1')
    e('v_cndmask_b32 v5, v5, v6, vcc')
    e('v_cndmask_b32 v5, v5, v2, s[46:47]')
    e('v_mul_u32_u24 v5, 9, v5')
    e('v_mul_u32_u24 v4, 288, v5')
    e('v_lshl_add_u32 v6, v3, 4, v4')
    e('v_and_b32 v7, 1, v3')
    e('v_lshl_add_u32 v7, v7, 4, v4')
    e('v_lshrrev_b32 v8, 1, v3')
    e('v_mul_u32_u24 v8, 2304, v8')
    e('v_add_u32 v7, v7, v8')
    e('v_add_u32 v7, 256, v7')
    e(f's_mul_i32 s49, s{TYP}, {X_D1}')
    e(f'v_add_u32 v{VXO}, {X_O}, v6')
    e(f'v_add_u32 v{VXOR}, {X_O}, v7')
    e(f'v_add_u32 v{VXD}, s49, v6')
    e(f'v_add_u32 v{VXDR}, s49, v7')
    e('v_lshlrev_b32 v6, 4, v1')
    e(f's_mul_i32 s49, s{WAVE}, 9216')
    e(f's_add_u32 s49, s49, {X_O}')
    e(f'v_add_u32 v{VEX}, s49, v6')
    e(f's_xor_b32 s49, s{WAVE}, 1')
    e('s_mul_i32 s49, s49, 9216')
    e(f's_add_u32 s49, s49, {X_O}')
    e(f'v_add_u32 v{VEXP}, s49, v6')
    e('v_and_b32 v8, 0x39, v1')
    e('v_bfe_u32 v9, v1, 1, 1')
    e('v_lshl_add_u32 v8, v9, 2, v8')
    e('v_bfe_u32 v9, v1, 2, 1')
    e('v_lshl_add_u32 v8, v9, 1, v8')
    e(f'v_lshlrev_b32 v{VWL}, 4, v8')
    e(f's_mul_i32 s49, s{TYP}, 576')
    e(f's_add_u32 s49, s49, s{XB}')
    e(f's_add_u32 s49, s49, {60*288}')
    e(f's_lshl_b32 s50, s{NB}, 5')
    e('s_add_u32 s49, s49, s50')
    e('s_lshl_b32 s50, s48, 4')
    e('s_add_u32 s49, s49, s50')
    e('v_mul_u32_u24 v8, 1152, v5')
    e('v_lshl_add_u32 v8, v3, 2, v8')
    e(f'v_add_u32 v{VOUT}, s49, v8')
    e(f'v_add_u32 v{VOUT+1}, 3456, v{VOUT}')
    e(f'v_add_u32 v{VOUT+2}, 6912, v{VOUT}')
    e(f's_lshl_b32 s49, s{NB}, 1')
    e('s_add_u32 s49, s49, s48')
    e('s_lshl_b32 s49, s49, 1')
    e(f's_add_u32 s49, s49, s{TYP}')
    e(f's_mul_i32 s{WSO}, s49, {NSTEP*1024}')
    e(f's_add_u32 s{WSO}, s{WSO}, {WOFF}')
    e(f's_mov_b32 s{C2L}, 0x4038aa3b'); e(f's_mov_b32 s{C2L+1}, 0x4038aa3b')
    e(f's_mov_b32 s{CNL}, 0xbfb8aa3b'); e(f's_mov_b32 s{CNL+1}, 0xbfb8aa3b')
    e(f's_mov_b32 s{C60}, 0x42700000')
    e(f'v_min_u32 v{VF}, 31, v1')
    e(f'v_lshlrev_b32 v{VF}, 7, v{VF}')
    e(f'v_min_u32 v{VF+6}, 47, v1')
    e(f'v_lshlrev_b32 v{VF+6}, 7, v{VF+6}')
    e(f'v_mov_b32 v{VF+2}, 1')
    e('s_lshl_b32 s46, s48, 2')
    e(f'v_add_u32 v{VF+5}, s46, v{VF+1}')
    e(f's_or_b32 s46, s2, s{WAVE}')
    e('v_or_b32 v2, s46, v1')
    e('v_cmp_eq_u32 vcc, 0, v2')
    e(f'v_mov_b32 v{VCL}, -16')
    e(f'v_mov_b32 v{VCL+1}, -16')
    e(f'v_mov_b32 v3, {NONCE}')
    e(f'v_cndmask_b32 v{VCL}, v{VCL}, 4, vcc')
    e(f'v_cndmask_b32 v{VCL+1}, v{VCL+1}, v3, vcc')
    e(f's_lshl_b32 s{FO}, s{TYP}, 13')
    if o.warmb:
        e(f's_cmp_eq_u32 s{TYP}, 1')
        e('s_cbranch_scc1 L_warmB')
        e('L_warmret:')
    e('s_waitcnt vmcnt(0) lgkmcnt(0)')
    stamp(2)
    e('s_mov_b64 exec, 1')
    e(f'ds_add_u32 v{VF+1}, v{VF+2} offset:8')
    e('s_mov_b64 exec, -1')
    e(f's_add_u32 s{TAG}, s{TAG}, {TAGINC}')
    e(f'v_mov_b32 v{VF+3}, s{TAG}')
    def flagwait(tag, vaddr, back):
        e(f'L_fw{tag}:')
        if o.diag and len(tag) == 2: e(f's_add_u32 s95, s95, {1 << (5 * int(tag[1]))}')
        e(f'buffer_load_dword v{VF+4}, v{vaddr}, {sr(S_WS)}, s{FO} offen sc1')
        e(f'ds_read_b32 v{VF+7}, v{VF+1} offset:12')
        e(f's_add_u32 s{NPOLL}, s{NPOLL}, 1')
        e('s_waitcnt vmcnt(0) lgkmcnt(0)')
        e(f'v_cmp_ne_u32 vcc, v{VF+3}, v{VF+4}')
        e(f'v_readfirstlane_b32 s46, v{VF+7}')
        e('s_nop 3')
        e(f's_cbranch_vccz {back}')
        e('s_cmp_lg_u32 s46, 0')
        e(f's_cbranch_scc1 {back}')
        e(f's_cmp_lg_u32 s{NPOLL}, {o.maxpoll}')
        e(f's_cbranch_scc1 L_fw{tag}')
        e(f'v_mov_b32 v{VF+7}, 0x10000')
        e('s_mov_b64 exec, 1')
        e(f'ds_add_u32 v{VF+1}, v{VF+7} offset:4')
        e('s_mov_b64 exec, -1')
        e(f's_branch L_fw{tag}')
    if o.gate:
        e('L_gate:')
        e(f'ds_read_b32 v{VF+4}, v{VF+1} offset:8')
        e('s_waitcnt lgkmcnt(0)')
        e(f'v_cmp_gt_u32 vcc, 0x400, v{VF+4}')
        e('s_nop 4')
        e('s_cbranch_vccz L_gate2')
        e('s_sleep 1')
        e('s_branch L_gate')
        e('L_gate2:')
    flagwait('0', VF, 'L_go')
    e('L_go:')
    stamp(3)
    e('L_gw:')
    e(f'ds_read_b32 v{VF+4}, v{VF+1} offset:8')
    e('s_waitcnt lgkmcnt(0)')
    e(f'v_and_b32 v{VF+4}, 0xff, v{VF+4}')
    e(f'v_cmp_ne_u32 vcc, 4, v{VF+4}')
    e('s_nop 4')
    e('s_cbranch_vccnz L_gw')
    stamp(4)
    e(f's_setprio {o.mprio}')
    e(f's_cmp_eq_u32 s{TYP}, 1')
    e('s_cbranch_scc1 L_typeB')

    ACC = {'P': 64, 'Q': 100}
    WR, TMP = 136, 224
    XRING = [200 + 4 * i for i in range(6)]
    XWIN = [4 + 4 * i for i in range(6)] + [240 + 4 * i for i in range(4)]
    VC = 28
    PF = o.pf
    GT = 98
    wflags = ' sc1' if o.wsc1 else ''
    for typ, S in enumerate(streams()):
        if typ == 1:
            e('.p2align 6')
            if o.warmb: e('L_warmB:'); e('s_branch L_warmret')
            e('L_typeB:')
        ops = []
        vstart = {}
        lastv = GT - 1 if o.tail else NSTEP + 7
        for v in range(lastv + 1):
            vstart[v] = len(ops)
            for j in range(8, -1, -1):
                if 0 <= v - j < NSTEP: ops.append((v - j, j))
        ntail = len(ops)
        if o.tail:
            for j in range(9):
                for g in range(GT - j, NSTEP): ops.append((g, j))
        assert len(ops) == NSTEP * 9 and len(set(ops)) == len(ops)
        N = len(ops)
        def key(n):
            g, j = ops[n]
            pid, arr, ch, c, acc = S[g]
            k = (pid, arr, ch, c + j)
            if n >= ntail and g < GT: k = k + ((n,) if not o.hold else ('h',))
            return k
        first, last = {}, {}
        for n in range(N):
            first.setdefault(key(n), n); last[key(n)] = n
        wfirst, wlast = {}, {}
        for n, (g, j) in enumerate(ops):
            wfirst.setdefault(g, n); wlast[g] = n
        tasks = []
        for k, n0 in first.items():
            win = o.tail and k[2] == 'rem' and k[1] == 'D'
            la = o.xla if n0 < ntail else 6
            if win: la = 40 if k[3] < 8 else 12
            tasks.append([n0 - la, n0 - 1, 'X', k])
        for g in range(NSTEP):
            rel = -100 + g if g < o.pf0 else max(0, wfirst[g] - 9 * PF - (9 * (NSTEP - g) if g >= GT else 0) + (0 if g < GT else 36))
            tasks.append([rel, wfirst[g] - 1, 'W', g])
        def at(v, off=0): return vstart[v] + off
        firstD = min(n for n in range(N) if S[ops[n][0]][1] == 'D')
        lastO = max(n for n in range(N) if S[ops[n][0]][1] == 'O')
        lastP = {j: max(n for n in range(N) if ops[n][1] == j and S[ops[n][0]][4] == 'P') for j in range(9)}
        slow = []
        vused = set()
        def check(v, off, cnt, tag):
            tasks.append([at(v - 1, 3), at(v - 1, 8), 'L', (f'ds_read_b32 v{VC}, v{VF+1} offset:{off}', ('c', tag))])
            tasks.append([at(v, 0), at(v, 1), 'C', (f'v_cmp_ne_u32 vcc, {cnt}, v{VC}', ('c', tag))])
            tasks.append([at(v, 6), at(v, 7), 'I', [f's_cbranch_vccnz L_slow{typ}{tag}', f'L_back{typ}{tag}:']])
            slow.append((tag, off, cnt))
            vused.add(v)
            return at(v, 8)
        def add1(pos, off):
            tasks.append([pos, pos + 4, 'A', off])
        vD = [v for v in vstart if vstart[v] <= firstD - o.xla][-1] - 1
        okD = check(vD, 16, 4, 'D')
        assert okD <= firstD - o.xla
        add1(lastO, 20)
        VP = 47
        okR = check(VP, 20, 4, 'R')
        for j in range(9):
            assert lastP[j] + 12 < at(VP + 1 + j, 2)
            tasks.append([at(VP + 1 + j, 2), at(VP + 1 + j, 8), 'L', (f'ds_write_b128 v{VEX}, {vr(ACC["P"]+4*j,4)} offset:{1024*j}', ('pw', j))])
        tasks.append([at(VP + 10, 0), at(VP + 10, 4), 'A', 'pair'])
        VQ = VP + 13
        okP = check(VQ, 'pair', 2, 'P')
        for j in range(9):
            tasks.append([at(VQ + 1 + j, 2), at(VQ + 1 + j, 8), 'L', (f'ds_read_b128 {vr(TMP+4*(j&1),4)}, v{VEXP} offset:{1024*j}', ('pr', j))])
            v = VQ + 2 + j
            pos = at(v, 8 - (j + 2) - 1) if j <= 6 else at(v, 8 - (j - 7) - 1)
            sh = 1 if j >= 7 else 0
            tasks.append([pos - 1 + sh, pos - 1 + sh, 'Q', (j, 0)])
            tasks.append([pos + sh, pos + sh, 'Q', (j, 1)])
        if typ == 0:
            tasks.append([at(72, 4), at(72, 8), 'S', f'buffer_store_dword v{VCL+1}, v{VCL}, {sr(S_DBG)}, 0 offen sc1'])
            tasks.append([at(92, 4), at(92, 8), 'S', f'buffer_store_dword v{VF+3}, v{VCL+1}, {sr(S_WS)}, 0 offen sc1'])
        fslow = []
        passes = {}
        for g in range(NSTEP): passes.setdefault(S[g][0], g)
        need = [(passes[1], VF, 32 + 64 * typ), (32, VF + 6, 128), (passes[4], VF, 176), (passes[5], VF, 208), (passes[6], VF + 6, 240)]
        for ci, (gn, va, idx) in enumerate(need):
            v = gn - o.pfcs[ci] - 1
            while v in vused: v -= 1
            tasks.append([at(v - o.flead, 4), at(v - o.flead, 8), 'F', (va, idx, ci)])
            tasks.append([at(v, 0), at(v, 1), 'G', ci])
            tasks.append([at(v, 6), at(v, 7), 'I', [f's_cbranch_vccnz L_fw{typ}{ci}', f'L_fb{typ}{ci}:']])
            fslow.append((ci, va))
            assert v not in vused, v
            for t in tasks:
                if t[2] == 'W' and (t[3] >= gn): t[0] = max(t[0], at(v, 8))
        tasks.append([at(v + 1, 2), at(v + 1, 8), 'A', 4])
        if typ == 0:
            for lvl, v in enumerate(o.trig): tasks.append([at(v, 2), at(v, 8), 'P', lvl + 1])
        tasks.sort(key=lambda t: (t[0], t[1]))
        vq, lq = [], []
        dirty = [False]
        xreg, busy = {}, {}
        wn = [0]
        wr = {}
        lastw = [-100]
        BIG = [WR + 4 * i for i in range(16)] + XWIN + [ACC['P'] + 4 * i for i in range(9)]
        for i in range(9): busy[ACC['P'] + 4 * i] = at(VP + 12)
        def wok(t, n):
            if t[2] != 'W': return True
            if t[3] != wn[0]: return False
            free = sum(1 for x in BIG if busy.get(x, -1) <= n)
            if t[1] - n <= 9 * 3: return free > 0
            return n - lastw[0] >= o.wgap and free > (o.wres if n > at(80) else 0)
        since = {}
        fill = []
        def em(x):
            e(x)
            if not x.endswith(':'):
                for jj in since: since[jj] += 1
        def lwait(tag):
            if tag not in lq: return
            i = lq.index(tag)
            em(f's_waitcnt lgkmcnt({0 if dirty[0] else len(lq)-1-i})')
            if dirty[0]: lq.clear(); dirty[0] = False
            else: del lq[:i + 1]
        def vwait(g):
            if g not in vq: return
            i = vq.index(g)
            em(f's_waitcnt vmcnt({len(vq)-1-i})')
            del vq[:i + 1]
        def run(t, n):
            kind, p = t[2], t[3]
            if kind == 'X':
                pool = BIG if (p[-1] == 'h' or (p[2] == 'rem' and p[1] == 'D')) else XRING
                r = [x for x in pool if busy.get(x, -1) <= n]
                assert r, ('no x register', p, n)
                r = min(r, key=lambda x: busy.get(x, -1))
                busy[r] = last[p]; xreg[p] = r
                arr, ch, s_ = p[1], p[2], p[3]
                if o.nolds and n > 9 * 30: return
                if ch == 'rem': em(f'ds_read_b128 {vr(r,4)}, v{VXOR if arr == "O" else VXDR} offset:{288*s_}')
                else: em(f'ds_read_b128 {vr(r,4)}, v{VXO if arr == "O" else VXD} offset:{64*ch+288*s_}')
                lq.append(p)
            elif kind == 'W':
                g = p
                r = min([x for x in BIG if busy.get(x, -1) <= n], key=lambda x: busy.get(x, -1))
                busy[r] = wlast[g]; wr[g] = r
                assert g == wn[0]; wn[0] += 1
                lastw[0] = n
                if o.now and g > 40: return
                if o.wsame and g > 40:
                    em(f'buffer_load_dwordx4 {vr(r,4)}, v{VWL}, {sr(S_WS)}, s{WSO} offen offset:{1024*(g%4)}{wflags}'); vq.append(g); return
                em(f'buffer_load_dwordx4 {vr(r,4)}, v{VWL}, {sr(S_WS)}, s{WSO} offen offset:{1024*(g%4)}{wflags}')
                if g % 4 == 3: em(f's_add_u32 s{WSO}, s{WSO}, 4096')
                vq.append(g)
            elif kind == 'L':
                em(p[0].replace('offset:pair', 'offset:24').replace(f'v{VF+1} offset:24', f'v{VF+5} offset:24')); lq.append(p[1])
            elif kind == 'C':
                lwait(p[1]); em(p[0])
            elif kind == 'I':
                for x in p: em(x)
            elif kind == 'A':
                em('s_mov_b64 exec, 1')
                if p == 'pair': em(f'ds_add_u32 v{VF+5}, v{VF+2} offset:24')
                else: em(f'ds_add_u32 v{VF+1}, v{VF+2} offset:{p}')
                em('s_mov_b64 exec, -1')
                lq.append(('a', p))
            elif kind == 'Q':
                p, hf = p
                lwait(('pr', p))
                q = ACC['Q'] + 4 * p; t_ = TMP + 4 * (p & 1)
                for i in (2 * hf, 2 * hf + 1): em(f'v_add_f32 v{q+i}, v{q+i}, v{t_+i}')
            elif kind == 'S':
                em(p); vq.append(('s', n))
            elif kind == 'F':
                em(f's_mov_b32 s{FO}, {128*p[1]}')
                em(f'buffer_load_dword v{VF+4}, v{p[0]}, {sr(S_WS)}, s{FO} offen {o.fflags}'); vq.append(('f', p[2]))
            elif kind == 'G':
                vwait(('f', p)); em(f'v_cmp_ne_u32 vcc, v{VF+3}, v{VF+4}')
            elif kind == 'P':
                em(f'v_mov_b32 v{VF+7}, {p}')
                em('s_mov_b64 exec, 1')
                em(f'ds_max_u32 v{VF+1}, v{VF+7}')
                em('s_mov_b64 exec, -1')
                lq.append(('p', p))
        def epi(j, pk):
            q = ACC['Q'] + 4 * j
            t = TMP + 8 * (j & 1)
            I = []
            if pk:
                I.append(f'v_pk_mul_f32 {vr(t,2)}, {vr(q,2)}, s[{C2L}:{C2L+1}]')
                I.append(f'v_pk_mul_f32 {vr(t+2,2)}, {vr(q+2,2)}, s[{CNL}:{CNL+1}]')
            else:
                for i in (0, 1): I.append(f'v_mul_f32 v{t+i}, s{C2L}, v{q+i}')
                for i in (2, 3): I.append(f'v_mul_f32 v{t+i}, s{CNL}, v{q+i}')
            I.append(f'v_min_f32 v{t}, s{C60}, v{t}')
            I.append(f'v_min_f32 v{t+1}, s{C60}, v{t+1}')
            for i in (0, 1, 2, 3): I.append(f'v_exp_f32 v{t+i}, v{t+i}')
            if pk:
                I.append(f'v_pk_add_f32 {vr(t+4,2)}, {vr(t,2)}, 1.0 op_sel_hi:[1,0]')
                I.append(f'v_pk_add_f32 {vr(t+6,2)}, {vr(t,2)}, -1.0 op_sel_hi:[1,0]')
                I.append(f'v_pk_fma_f32 {vr(t+4,2)}, {vr(t+4,2)}, {vr(t+2,2)}, {vr(t+4,2)}')
            else:
                for i in (0, 1): I.append(f'v_add_f32 v{t+4+i}, 1.0, v{t+i}')
                for i in (0, 1): I.append(f'v_fma_f32 v{t+4+i}, v{t+4+i}, v{t+2+i}, v{t+4+i}')
            I.append(f'v_rcp_f32 v{t+4}, v{t+4}')
            I.append(f'v_rcp_f32 v{t+5}, v{t+5}')
            if pk:
                I.append('s_nop 0')
                I.append(f'v_pk_mul_f32 {vr(t+6,2)}, {vr(t+6,2)}, {vr(t+4,2)}')
            else:
                for i in (0, 1): I.append(f'v_add_f32 v{t+6+i}, -1.0, v{t+i}')
                for i in (0, 1): I.append(f'v_mul_f32 v{t+6+i}, v{t+6+i}, v{t+4+i}')
            I.append(f'v_cvt_pk_bf16_f32 v{q}, v{t+6}, v{t+7}')
            I.append(f'buffer_store_dword v{q}, v{VOUT + j//3}, {sr(S_OUT)}, 0 offen offset:{1152*(j%3)} {o.oflags if j < o.oj else ""}')
            return I
        def cost(x): return 2 if x.startswith(('v_exp', 'v_rcp', 'buffer')) else 1
        while tasks and tasks[0][0] < 0: run(tasks.pop(0), -1)
        inv = {n: v for v, n in vstart.items()}
        lastop = {j: max(n for n in range(N) if ops[n][1] == j) for j in range(9)}
        for n, (g, j) in enumerate(ops):
            if n in inv and o.padto and o.padev == 'm5' and inv[n] == o.padstep:
                e('s_memrealtime s[100:101]'); dirty[0] = True
            if n in inv and o.diag:
                v = inv[n]
                if o.diag == 2 and v in o.marks:
                    kk = o.marks.index(v)
                    e(f's_memtime s[{ST0+2*kk}:{ST0+2*kk+1}]'); dirty[0] = True
                if o.diag in (1, 4) and v == 33: stamp(5); stamp(6); dirty[0] = True
            k = key(n)
            assert k in xreg, (k, n)
            lwait(k); vwait(g)
            acc = S[g][4]
            d = ACC[acc] + 4 * j
            if g == 0: cs = '0'
            elif acc == 'Q' and S[g-1][4] == 'P': cs = vr(ACC['P'] + 4 * j, 4)
            else: cs = vr(d, 4)
            em(f'v_mfma_f32_16x16x32_bf16 {vr(d,4)}, {vr(wr[g],4)}, {vr(xreg[k],4)}, {cs}' if not o.swapab else f'v_mfma_f32_16x16x32_bf16 {vr(d,4)}, {vr(xreg[k],4)}, {vr(wr[g],4)}, {cs}')
            if n == lastop[j]: since[j] = 0
            budget = 2
            TC = {'X': 1, 'W': 2, 'L': 2, 'C': 1, 'I': 0, 'A': 1, 'Q': 2, 'S': 2, 'F': 2, 'G': 1, 'P': 2}
            while True:
                ready = [t for t in tasks if t[0] <= n and wok(t, n)]
                if not ready: break
                t = min(ready, key=lambda t: t[1])
                assert t[1] >= n, ('late', t, n)
                if TC[t[2]] > budget and t[1] > n:
                    fit = [u for u in ready if TC[u[2]] <= budget]
                    if not fit: break
                    t = min(fit, key=lambda t: t[1])
                tasks.remove(t); run(t, n); budget -= TC[t[2]]
            for jj in sorted(since):
                if 8 <= since[jj] < 10**6:
                    fill += epi(jj, False); since[jj] = 10**6
            budget += o.nfill - 2
            while fill and budget >= cost(fill[0]):
                budget -= cost(fill[0]); em(fill.pop(0))
            assert all(t[1] > n for t in tasks), ('late', n, [t for t in tasks if t[1] <= n])
        assert not tasks
        stamp(7)
        while fill: em(fill.pop(0))
        for jj in [jj for jj in sorted(since) if since[jj] < 10**6]:
            if since[jj] < 8: em(f's_nop {8-since[jj]-1}')
            for x in epi(jj, True): em(x)
        stamp(8)
        if o.padto and o.padev[0] == 'm': padloop(typ)
        if o.diag == 1:
            e('s_waitcnt vmcnt(0)')
            stamp(9)
            dump(10)
        if o.diag == 2:
            kk = len(o.marks)
            e(f's_memtime s[{ST0+2*kk}:{ST0+2*kk+1}]')
            dump(10)
        e('s_endpgm')
        for tag, off, cnt in slow:
            e(f'L_slow{typ}{tag}:')
            e(f'ds_read_b32 v{VC}, v{VF+5 if off == "pair" else VF+1} offset:{24 if off == "pair" else off}')
            e('s_waitcnt lgkmcnt(0)')
            e(f'v_cmp_ne_u32 vcc, {cnt}, v{VC}')
            e('s_nop 4')
            e(f's_cbranch_vccnz L_slow{typ}{tag}')
            e(f's_branch L_back{typ}{tag}')
        for ci, va in fslow: flagwait(f'{typ}{ci}', va, f'L_fb{typ}{ci}')

    mark['help0'] = len(e.L)
    if not o.hfirst: e('.p2align 6')
    e('L_helper:')
    role[0] = 'h'
    e(f's_setprio {o.hprio}')
    e(f's_sub_u32 s{TW0}, s{WAVE}, 4')
    e(f's_mov_b32 s{TW1}, s{WAVE}')
    e(f's_sub_u32 s{PAIR}, s2, {NPROD}')
    e(f's_cselect_b32 s{PAIR}, s2, s{PAIR}')
    e(f's_mov_b32 s{MODE}, 0')
    e(f's_mov_b32 s{NOTASK}, s2')
    e(f's_mov_b32 s{HAS3}, s{TW0}')
    e(f's_lshl_b32 s{SCRB}, s{TW0}, 12')
    e(f's_add_u32 s{SCRB}, s{SCRB}, {SCR}')
    e('L_prod:')
    T = [(28, TW0, 2, 52, 0), (36, TW1, 4, 53, 2048), (44, TW2, 6, 54, 16384)]
    c, kp, q, cc, kk, t = 46, 47, 48, 49, 50, 51
    b = TS
    e('v_mov_b32 v19, 4320')
    e('v_and_b32 v23, 3, v1')
    e('v_lshrrev_b32 v24, 3, v1')
    e('v_mul_u32_u24 v24, 576, v24')
    e('v_bfe_u32 v25, v1, 2, 1')
    e('v_mul_u32_u24 v25, 288, v25')
    e('v_add_u32 v24, v24, v25')
    for (vb, sw, vl, vs, so) in T:
        e(f'v_lshl_add_u32 v8, s{sw}, 2, v23' if sw != TW2 else 'v_add_u32 v8, 32, v23')
        e('v_cmp_le_u32 vcc, 18, v8')
        e(f'v_lshl_add_u32 v{vl}, v8, 4, v24')
        e(f'v_add_u32 v9, v{vl}, v19')
        e(f'v_cndmask_b32 v{vl}, v{vl}, v9, vcc')
    e(f's_and_b32 s{c}, s{PAIR}, 15')
    e(f's_lshr_b32 s{kp}, s{PAIR}, 4')
    e(f's_mul_i32 s{b}, s{c}, 165888')
    e(f's_mul_i32 s{t}, s{kp}, 9216')
    e(f's_add_u32 s{b}, s{b}, s{t}')
    e(f's_add_u32 s{b+1}, s{b}, 82944')
    e(f's_mov_b32 s{S_W+2}, 2571264')
    e(f's_mov_b32 s{S_W+3}, 0x20000')
    e(f's_mov_b32 s{S_WO+3}, 0x20000')
    e(f's_cmp_lg_u32 s{c}, 15')
    e(f's_cselect_b32 s{S_WO+2}, 2571264, 0')
    e(f's_mov_b32 m0, s{SCRB}')
    e('s_waitcnt lgkmcnt(0)')
    e(f's_mov_b32 s{S_W}, s6')
    e(f's_and_b32 s{S_W+1}, s7, 0xffff')
    e(f's_mov_b32 s{S_WO}, s6')
    e(f's_and_b32 s{S_WO+1}, s7, 0xffff')
    e(f's_cmp_ge_u32 s{NOTASK}, {NTASK}')
    e('s_cbranch_scc1 L_a3')
    def cond3(lbl):
        e(f's_cmp_lg_u32 s{HAS3}, 0')
        e(f's_cbranch_scc1 {lbl}')
    for ti, (vb, sw, vl, vs, so) in enumerate(T):
        if ti == 2: cond3('L_a3')
        if ti == 1: e('s_addk_i32 m0, 1024'); e('s_nop 0')
        e(f'buffer_load_dwordx4 v{vl}, {sr(S_W)}, s{b} offen lds')
        e('s_addk_i32 m0, 1024')
        e('s_nop 0')
        e(f'buffer_load_dwordx4 v{vl}, {sr(S_WO)}, s{b+1} offen lds')
        if ti == 1: e(f's_addk_i32 m0, {16384-3072}')
    e('L_a3:')
    stamp(1)
    e(f's_cmp_lg_u32 s{MODE}, 0')
    e('s_cbranch_scc1 L_a4')
    e(f's_load_dword s{TAG}, s[12:13], {NONCE}')
    e(f's_lshr_b32 s{EARLY}, 0x33, s{kp}')
    e(f's_and_b32 s{EARLY}, s{EARLY}, 1')
    e(f's_sub_u32 s{XK}, 2, s{EARLY}')
    e(f's_lshl_b32 s{t}, s{kp}, 1')
    e(f's_lshr_b32 s{YT}, {(3<<12)+(3<<14)+(3<<16)}, s{t}')
    e(f's_and_b32 s{YT}, s{YT}, 3')
    e(f's_lshr_b32 s{t}, s{kp}, 1')
    e(f's_cmp_ge_u32 s2, {NPROD}')
    e(f's_cselect_b32 s{EARLY}, 0, s{EARLY}')
    e(f's_cselect_b32 s{XK}, 3, s{XK}')
    e(f's_cselect_b32 s{YT}, s{t}, s{YT}')
    e(f's_cmp_ge_u32 s2, {NPROD+32}')
    e(f's_cselect_b32 s{XK}, 0, s{XK}')
    e(f's_cmp_ge_u32 s2, {NTASK}')
    e(f's_cselect_b32 s{YT}, 0, s{YT}')
    if not o.b0early:
        e(f's_cmp_lg_u32 s{EARLY}, 0')
        e('s_cbranch_scc1 L_a4')
    e('s_barrier')
    e('L_a4:')
    e(f's_mov_b32 s{MASK}, 0xffff0000')
    e(f's_mov_b32 s{NPOLL}, 0')
    srd(e, S_WS, 12, WS_REC)
    srd(e, S_DBG, 10, 256)
    e(f'v_mov_b32 v10, {CNT}')
    e(f'v_mov_b32 v20, {(256 - 18*2*NSTEP*1024) & 0xffffffff}')
    e(f'v_mov_b32 v26, {2*NSTEP*1024}')
    e('v_bfe_u32 v21, v1, 2, 2')
    e('v_lshlrev_b32 v21, 7, v21')
    e('v_and_b32 v22, 1, v1')
    e('v_lshl_add_u32 v21, v22, 6, v21')
    e('v_bfe_u32 v22, v1, 1, 1')
    e('v_lshl_add_u32 v21, v22, 3, v21')
    e('v_lshrrev_b32 v22, 4, v1')
    e('v_lshl_add_u32 v21, v22, 4, v21')
    e(f'v_add_u32 v21, s{SCRB}, v21')
    e('v_and_b32 v25, 15, v1')
    e('v_lshlrev_b32 v25, 4, v25')
    for (vb, sw, vl, vs, so) in T:
        e(f'v_lshl_add_u32 v8, s{sw}, 2, v22' if sw != TW2 else 'v_add_u32 v8, 32, v22')
        e('v_cmp_le_u32 vcc, 18, v8')
        e(f'v_mad_u32_u24 v{vs}, v8, v26, v25')
        e(f'v_add_u32 v9, v{vs}, v20')
        e(f'v_cndmask_b32 v{vs}, v{vs}, v9, vcc')
    e(f's_lshr_b32 s{q}, s{kp}, 1')
    e(f's_and_b32 s{cc}, s{c}, 7')
    e(f's_lshr_b32 s{kk}, s{c}, 3')
    e(f's_and_b32 s{t}, s{kp}, 1')
    e(f's_cmp_eq_u32 s{kp}, 8')
    e(f's_cselect_b32 s{cc}, s{cc}, s{c}')
    e(f's_cselect_b32 s{kk}, s{kk}, s{t}')
    e(f's_lshl_b32 s{kk}, s{kk}, 9')
    e(f's_add_u32 s{kk}, s{kk}, {WOFF}')
    e(f's_lshl_b32 s{t}, s{q}, 4')
    e(f's_add_u32 s{b+2}, s{t}, s{cc}')
    e(f's_sub_u32 s{b+3}, s{b+2}, s{q}')
    e(f's_cmp_ge_u32 s{q}, 2')
    e(f's_cselect_b32 s{b+4}, 74, 0')
    e(f's_add_u32 s{b+4}, s{b+4}, s{b+2}')
    e(f's_cmp_lt_u32 s{cc}, 2')
    e(f's_cselect_b32 s{t}, 32, 136')
    e(f's_add_u32 s{t}, s{t}, s{cc}')
    e(f's_cmp_eq_u32 s{kp}, 8')
    e(f's_cselect_b32 s{b+4}, s{t}, s{b+4}')
    e(f's_add_u32 s{b+2}, s{b+2}, 34')
    e(f's_add_u32 s{b+3}, s{b+3}, 144')
    for k in (2, 3, 4):
        e(f's_lshl_b32 s{b+k}, s{b+k}, 10')
        e(f's_add_u32 s{b+k}, s{b+k}, s{kk}')
    e(f's_cmp_eq_u32 s{kp}, 8')
    e(f's_cselect_b32 s{t}, 1, 2')
    e(f's_cmp_eq_u32 s{c}, 15')
    e(f's_cselect_b32 s{b+5}, s{t}, 0')
    e(f's_lshl_b32 s46, s{WAVE}, 2')
    e(f's_add_u32 s46, s46, {CNT+16}')
    e('v_mov_b32 v55, s46')
    e('v_mov_b32 v27, 0')
    e('v_mov_b32 v9, 4')
    e('s_waitcnt vmcnt(0) lgkmcnt(0)')
    stamp(2)
    e(f's_cmp_ge_u32 s{NOTASK}, {NTASK}')
    e('s_cbranch_scc1 L_x9')
    e(f's_cmp_lg_u32 s{WAVE}, 4')
    e('s_cbranch_scc1 L_a5')
    e('s_mov_b64 exec, 1')
    e(f'buffer_load_dword v27, v9, {sr(S_DBG)}, 0 offen sc1')
    e('s_mov_b64 exec, -1')
    e('L_a5:')
    for (vb, sw, vl, vs, so) in T:
        for tap in range(2):
            for half in range(2):
                e(f'ds_read_b64_tr_b16 {vr(vb+4*tap+2*half,2)}, v21 offset:{so+1024*tap+512*half}')
    nlab = [0]
    def st01(vb, vs):
        nlab[0] += 1
        e(f'buffer_store_dwordx4 {vr(vb,4)}, v{vs}, {sr(S_WS)}, s{b+2} offen sc1')
        e(f's_cmp_eq_u32 s{b+5}, 2')
        e(f's_cbranch_scc1 L_skip{nlab[0]}')
        e(f'buffer_store_dwordx4 {vr(vb+4,4)}, v{vs}, {sr(S_WS)}, s{b+3} offen sc1')
        e(f'L_skip{nlab[0]}:')
    def st01all(lbl):
        st01(T[0][0], T[0][3]); st01(T[1][0], T[1][3])
        cond3(lbl)
        st01(T[2][0], T[2][3])
    def dosum(vb, tb, ob):
        for i in range(8):
            e(f'v_lshlrev_b32 v{tb+2*i}, 16, v{vb+i}')
            e(f'v_and_b32 v{tb+2*i+1}, s{MASK}, v{vb+i}')
        for i in range(4):
            e(f'v_pk_add_f32 {vr(tb+2*i,2)}, {vr(tb+2*i,2)}, {vr(tb+8+2*i,2)}')
        for i in range(4):
            e(f'v_cvt_pk_bf16_f32 v{ob+i}, v{tb+2*i}, v{tb+2*i+1}')
    def ldswait(off, cmp, operand, tag, slp):
        e(f'L_lw{tag}:')
        e(f'ds_read_b32 v11, v10 offset:{off}')
        e('s_waitcnt lgkmcnt(0)')
        e('v_and_b32 v11, 0xff, v11')
        e(f'v_cmp_{cmp}_u32 vcc, {operand}, v11')
        e('s_nop 4')
        e(f's_cbranch_vccnz L_lx{tag}')
        e(f's_sleep {slp}')
        e(f's_branch L_lw{tag}')
        e(f'L_lx{tag}:')
    SO = 240
    e(f's_or_b32 s46, s{EARLY}, s{MODE}')
    e(f's_cmp_eq_u32 s{XK}, 2')
    e('s_cselect_b32 s47, 1, s46')
    e('s_cmp_eq_u32 s47, 0')
    e('s_cbranch_scc1 L_x9')
    for ti, (vb, sw, vl, vs, so) in enumerate(T):
        if ti == 2: cond3('L_x3')
        e(f's_waitcnt lgkmcnt({8-4*ti})')
        dosum(vb, 64 + 16 * ti, SO + 4 * ti)
        e('s_cmp_eq_u32 s46, 0')
        e(f's_cbranch_scc1 L_x5{ti}')
        e(f'buffer_store_dwordx4 {vr(SO+4*ti,4)}, v{vs}, {sr(S_WS)}, s{b+4} offen sc1')
        e(f'L_x5{ti}:')
    e('L_x3:')
    e(f's_cmp_eq_u32 s{MODE}, 0')
    e('s_cbranch_scc1 L_x9')
    e('L_x2:')
    e('s_waitcnt lgkmcnt(0)')
    st01all('L_x4')
    e('L_x4:')
    e(f's_cmp_eq_u32 s{MODE}, 0')
    e('s_cbranch_scc1 L_x9')
    e('s_waitcnt vmcnt(0)')
    e(f's_add_u32 s{PAIR}, s{PAIR}, 1')
    e(f's_cmp_lt_u32 s{PAIR}, {NPROD}')
    e('s_cbranch_scc1 L_prod')
    e('v_mov_b32 v11, 1')
    e('ds_write_b32 v10, v11 offset:12')
    e('s_endpgm')
    e('L_x9:')
    stamp(3)
    decode()
    e('v_subrev_u32 v4, 256, v0')
    e('v_min_u32 v4, 251, v4')
    e('v_mul_u32_u24 v3, 3641, v4')
    e('v_lshrrev_b32 v3, 16, v3')
    e('v_mul_u32_u24 v2, 18, v3')
    e('v_sub_u32 v2, v4, v2')
    e(f'v_mul_u32_u24 v3, {R}, v3')
    e(f'v_min_u32 v3, {160-R}, v3')
    e('v_mul_u32_u24 v4, 1152, v3')
    e('v_lshl_add_u32 v4, v2, 4, v4')
    e(f'v_add_u32 v12, s{XB}, v4')
    e('v_mul_u32_u24 v18, 288, v3')
    e('v_lshl_add_u32 v18, v2, 4, v18')
    e(f'v_add_u32 v19, {X_D1}, v18')
    srd(e, S_X, 4, 1152000, add=BOFF)
    e(f's_add_u32 s46, s{TAG}, {TAGINC}')
    e('v_mov_b32 v56, s46')
    e('s_lshl_b32 s46, s2, 7')
    e('v_mov_b32 v58, s46')
    e(f's_add_u32 s46, s{PAIR}, {NPROD}')
    e('s_lshl_b32 s46, s46, 7')
    e('v_mov_b32 v59, s46')
    def publish(slot, vflag, tag, first, n=0):
        e('s_mov_b64 exec, 1')
        e(f's_waitcnt vmcnt({n})')
        if first: stamp(4)
        e('v_cmp_ne_u32 vcc, 0, v27')
        e('v_not_b32 v57, v56')
        e('s_nop 0')
        e('v_cndmask_b32 v57, v56, v57, vcc')
        e(f'ds_write_b32 v55, v57 offset:{slot}')
        e(f'ds_read_b128 v[20:23], v10 offset:{32+slot}')
        e('s_waitcnt lgkmcnt(0)')
        for i in range(4): e(f'v_xor_b32 v{20+i}, v{20+i}, v56')
        e('v_or3_b32 v20, v20, v21, v22')
        e('v_or_b32 v20, v20, v23')
        e('v_cmp_eq_u32 vcc, 0, v20')
        e('s_and_b64 exec, exec, vcc')
        e(f's_cbranch_execz L_nl{tag}')
        e(f'buffer_store_dword v56, v{vflag}, {sr(S_WS)}, 0 offen sc1')
        e(f'L_nl{tag}:')
        e('s_mov_b64 exec, -1')
    e(f's_cmp_eq_u32 s{EARLY}, 0')
    e('s_cbranch_scc1 L_noflag')
    publish(0, 58, 'x', True)
    if not o.b0early: e('s_barrier')
    e('L_noflag:')
    e(f's_setprio {o.hprio2}')
    RAW, ORAW = 64, 120
    EU = [184, 192]
    OU, DT, DO = 200, 208, 216
    xi = [0]
    NL = R + 1
    hq = []
    def eload():
        k = xi[0]
        if k >= NL: return
        a_ = 12
        if k:
            a_ = 13 + (k & 3)
            e(f'v_add_u32 v{a_}, {1152*k}, v12')
        e(f'buffer_load_dwordx4 {vr(RAW+4*k,4)}, v{a_}, {sr(S_X)}, 0 offen')
        xi[0] += 1
        hq.append(('e', k))
    if o.etouch:
        e(f's_cmp_lt_u32 s2, {NTASK}')
        e('s_cbranch_scc1 L_net')
        e(f's_and_b32 s46, s{NB}, 1')
        e(f's_mul_i32 s46, s46, {1152*6}')
        e('v_add_u32 v12, s46, v12')
        for _ in range(7): eload()
        e('v_subrev_u32 v12, s46, v12')
        e('s_waitcnt vmcnt(0)')
        e('L_net:')
        xi[0] = 0; hq.clear()
    YA = 232
    e(f's_cmp_eq_u32 s{b+5}, 2')
    e('s_cselect_b32 s46, 0x80000000, 0')
    e(f's_cmp_lg_u32 s{HAS3}, 0')
    e('s_cselect_b32 s47, 0x80000000, 0')
    e('s_or_b32 s48, s46, s47')
    for i in range(6):
        m_ = {0: None, 1: 46, 2: None, 3: 46, 4: 47, 5: 48}[i]
        e(f'v_mov_b32 v{YA+i}, v{52+i//2}' if m_ is None else f'v_or_b32 v{YA+i}, s{m_}, v{52+i//2}')
    def ystore(i, a_):
        e(f'buffer_store_dwordx4 {vr(28+4*i,4)}, v{a_}, {sr(S_WS)}, s{b+2+(i&1)} offen sc1')
        hq.append(('y', i))
    stamp(5)
    ldswait(8, 'eq', 4, 'o', 1)
    def unpack(dst, s_):
        for i in range(4):
            e(f'v_lshlrev_b32 v{dst+2*i}, 16, v{s_+i}')
            e(f'v_and_b32 v{dst+2*i+1}, s{MASK}, v{s_+i}')
    def unpackE(dst, k):
        e(f's_waitcnt vmcnt({len(hq)-1-hq.index(("e", k))})')
        unpack(dst, RAW + 4 * k)
        eload()
    def diff(eu, out):
        for i in range(8): e(f'v_sub_f32 v{DT+i}, v{eu+i}, v{OU+i}')
        for i in range(4):
            e(f'v_cvt_pk_bf16_f32 v{out+i}, v{DT+2*i}, v{DT+2*i+1}')
    def opengate():
        if not o.gate: return
        e('v_mov_b32 v11, 0x100')
        e('s_mov_b64 exec, 1')
        e('ds_add_u32 v10, v11 offset:8')
        e('s_mov_b64 exec, -1')
    def rows(hook):
        stamp(6)
        for j in range(R):
            e(f'ds_read_b128 {vr(ORAW+4*j,4)}, v18 offset:{X_O+288*j}')
        unpackE(EU[0], 0)
        e('s_waitcnt lgkmcnt(0)')
        for j in range(R):
            o0 = DO + 8 * (j & 1)
            unpack(OU, ORAW + 4 * j)
            diff(EU[j & 1], o0)
            e(f'ds_write_b128 v18, {vr(o0,4)} offset:{X_D0+288*j}')
            unpackE(EU[(j + 1) & 1], j + 1)
            diff(EU[(j + 1) & 1], o0 + 4)
            e(f'ds_write_b128 v19, {vr(o0+4,4)} offset:{288*j}')
            hook(j)
    e(f's_cmp_ge_u32 s2, {NPROD + (32 if o.d0p else 0)}')
    e('s_cbranch_scc1 L_pathA')
    e(f's_cmp_lt_u32 s{XK}, 2')
    e('s_cbranch_scc1 L_nox')
    if o.d0p:
        e(f's_cmp_eq_u32 s{XK}, 3')
        e('s_cbranch_scc1 L_xd')
    for i in range(3):
        e(f'buffer_store_dwordx4 {vr(SO+4*i,4)}, v{YA+2*i}, {sr(S_WS)}, s{b+4} offen sc1')
    if o.d0p:
        e('s_branch L_xe')
        e('L_xd:')
        for i in range(6): ystore(i, YA + i)
        e('L_xe:')
    publish(0, 58, 'x2', True)
    e('L_nox:')
    opengate()
    hq.clear(); xi[0] = 0
    for _ in range(o.ein): eload()
    rows(lambda j: None)
    e('s_branch L_rowsdone')
    e('L_pathA:')
    if not o.d0p:
        e(f's_cmp_eq_u32 s{XK}, 3')
        e('s_cselect_b32 s47, 0, 0x80000000')
        for i in range(6): e(f'v_or_b32 v{20+i}, s47, v{YA+i}')
    hq.clear(); xi[0] = 0
    for _ in range(NL): eload()
    if not o.d0p:
        for i in range(6): ystore(i, 20 + i)
    def hookA(j):
        if j == o.grow:
            e(f's_waitcnt vmcnt({len(hq)-1-hq.index(("e", NL-1))})')
            opengate()
        if j == o.xrow and not o.d0p:
            e(f's_cmp_lg_u32 s{XK}, 3')
            e('s_cbranch_scc1 L_xp')
            publish(0, 58, 'x3', True)
            e('L_xp:')
    rows(hookA)
    e('L_rowsdone:')
    e('s_waitcnt lgkmcnt(0)')
    stamp(7)
    e('v_mov_b32 v11, 1')
    e('s_mov_b64 exec, 1')
    e('ds_add_u32 v10, v11 offset:16')
    e('s_mov_b64 exec, -1')
    e(f's_cmp_eq_u32 s{YT}, 0')
    e('s_cbranch_scc1 L_noy')
    e(f's_setprio {o.hprio}')
    e('L_yw:')
    e('ds_read_b64 v[20:21], v10')
    e('s_waitcnt lgkmcnt(0)')
    e('v_lshrrev_b32 v21, 14, v21')
    e('v_and_b32 v21, -4, v21')
    e('v_or_b32 v20, v20, v21')
    e(f'v_cmp_le_u32 vcc, s{YT}, v20')
    e('s_nop 4')
    e('s_cbranch_vccnz L_yx')
    e('s_sleep 4')
    e('s_branch L_yw')
    e('L_yx:')
    for i in range(6):
        ystore(i, YA + i)
        e(f's_waitcnt vmcnt({o.ythr})')
    publish(16, 59, 'y', False)
    if o.diag == 1: stamp(8)
    e('L_noy:')
    e(f's_cmp_lg_u32 s{WAVE}, 4')
    e('s_cbranch_scc1 L_hend')
    e('L_guard:')
    e('ds_read_b32 v11, v10 offset:4')
    e('s_waitcnt lgkmcnt(0)')
    e('v_readfirstlane_b32 s46, v11')
    e('s_nop 3')
    e('s_cmp_eq_u32 s46, 4')
    e('s_cbranch_scc1 L_hend')
    e('s_cmp_lt_u32 s46, 0x10000')
    e('s_cbranch_scc0 L_rescue')
    e('s_sleep 16')
    e('s_branch L_guard')
    e('L_rescue:')
    e(f's_mov_b32 s{MODE}, 1')
    e(f's_mov_b32 s{HAS3}, 1')
    e(f's_mov_b32 s{NOTASK}, 0')
    e(f's_lshr_b32 s{TW0}, s{NB}, 1')
    e(f's_add_u32 s{TW1}, s{NB}, 9')
    e(f's_lshr_b32 s{TW1}, s{TW1}, 1')
    e(f's_mov_b32 s{PAIR}, 0')
    e('s_branch L_prod')
    e('L_hend:')
    if o.padto and o.padev[0] == 'h': padloop('h')
    if o.diag == 1:
        stamp(9)
        dump(10)
    e('L_end:')
    e('s_endpgm')
    if o.hfirst:
        m0, h0 = mark['main0'], mark['help0']
        e.L = e.L[:m0] + e.L[h0:] + ['.p2align 6'] + e.L[m0:h0]
    e('L_codeend:')
    e('.section .rodata,"a"')
    e('.p2align 6')
    e(f'.amdhsa_kernel {KN}')
    for x in ['next_free_vgpr 256', 'next_free_sgpr 102', 'accum_offset 256', 'group_segment_fixed_size 0', 'kernarg_size 40',
              'user_sgpr_count 2', 'user_sgpr_kernarg_segment_ptr 1', 'system_sgpr_workgroup_id_x 1']:
        e('  .amdhsa_' + x)
    e('.end_amdhsa_kernel')
    n = haz.check(e.L)
    if n: print(f'{n} hazards', file=sys.stderr)
    return f'; @launch grid=({NWG},1,1) block=(512,1,1) lds={LDS_BYTES}\n' + e.text()

def opts(argv=None):
    ap = argparse.ArgumentParser()
    ap.add_argument('-o', default='k.s')
    for nm, d in [('diag', 0), ('pf', 16), ('pf0', 8), ('wgap', 4), ('wres', 0), ('wsc1', 0), ('nfill', 2), ('fstride', 128), ('sleep', 0), ('maxpoll', 3000), ('nopoll', 0),
                  ('hprio', 3), ('hprio2', 0), ('mprio', 2), ('epre', 0), ('ein', 7), ('dpre', 7), ('b0early', 0), ('mtouch', 3), ('gate', 1), ('swapab', 0), ('d0p', 1), ('map', 0), ('oj', 9), ('nolds', 0), ('now', 0), ('wsame', 0), ('grow', 1), ('vbd', 33), ('nopk', 1), ('padto', 0), ('npdelay', 0), ('opre', 0), ('etouch', 0), ('orev', 1), ('b0late', 1), ('dec', 1), ('tail', 1), ('xla', 9), ('hold', 1), ('prest', 0), ('xslot', 0), ('noclosed', 0), ('cpf', 1), ('hfirst', 1), ('warmb', 1), ('wsfirst', 0), ('flead', 6), ('ythr', 6), ('xrow', 3), ('padstep', 33), ('probe', 0), ('probeoff', 0x4000000)]:
        ap.add_argument('--' + nm, type=int, default=d)
    ap.add_argument('--oflags', default='')
    ap.add_argument('--pmap', default='18,18,18,18,18,18,18,18')
    ap.add_argument('--padev', default='m0')
    ap.add_argument('--trig', default='10,25,40')
    ap.add_argument('--yrow', default='0,7,2,9,5,11')
    ap.add_argument('--pfcs', default='4,5,5,8,8')
    ap.add_argument('--fflags', default='')
    ap.add_argument('--marks', default='0,4,8,12,16,24,33,47,58')
    o = ap.parse_args(argv)
    o.marks = [int(x) for x in o.marks.split(',')]
    o.yrow = [int(x) for x in o.yrow.split(',')]
    o.pfcs = [int(x) for x in o.pfcs.split(',')]
    o.trig = [int(x) for x in o.trig.split(',')]
    return o

if __name__ == '__main__':
    o = opts()
    open(o.o, 'w').write(gen(o))
```

```python
import re, sys, argparse
import haz

KN = 'standalone__autoregressive_conv_wavernn__speech_kernel'
NWG = 252
NPROD = 144
ARR = 160 * 288
X_D0, X_O, X_D1 = 0, ARR, 2 * ARR
CNT = 3 * ARR
SCR = CNT + 64
LDS_BYTES = SCR + 18432
NSTEP = 106
WOFF = int(__import__('os').environ.get('WOFF', '0x100000'), 0)
NONCE = 0x10000
DIAG = 0x800000
WS_REC = max(0x1000000, WOFF + 0x400000, int(__import__('os').environ.get('WSREC', '0'), 0))
TAGINC = 0x9E3779B9
R = 12

class Em:
    def __init__(self): self.L = []
    def __call__(self, s): self.L.append(s)
    def text(self): return '\n'.join(self.L) + '\n'

def vr(a, n=1): return f'v{a}' if n == 1 else f'v[{a}:{a+n-1}]'
def sr(a, n=4): return f's[{a}:{a+n-1}]'

def streams():
    out = []
    for typ in (0, 1):
        S = []
        pid = [0]
        def add(arr, chunk, cs, acc):
            for c in cs: S.append((pid[0], arr, chunk, c, acc))
            pid[0] += 1
        if typ == 0:
            add('O', 0, range(16), 'P'); add('O', 1, range(16), 'P'); add('O', 'rem', range(0, 2), 'P')
            for q in range(4): add('D', q, range(16), 'Q')
            add('D', 'rem', range(8), 'Q')
        else:
            add('O', 2, range(16), 'P'); add('O', 3, range(16), 'P'); add('O', 'rem', range(2, 8), 'P')
            for q in range(4): add('D', q, range(15), 'Q')
            add('D', 'rem', range(8), 'Q')
        assert len(S) == NSTEP
        out.append(S)
    return out

S_X, S_W, S_WO, S_WS, S_OUT, S_DBG = 20, 24, 28, 32, 36, 40
WAVE, NB, BAT, PAR, MB, BOFF = 14, 15, 16, 17, 18, 19
PAIR0 = 3
XB = 52
MASK = 53
TW0, TW1, TW2, PAIR, HAS3, MODE, SCRB, TAG, LAST, NPOLL = 44, 45, 54, 55, 56, 57, 58, 59, 60, 61
TS = 62
TYP, WSO = 68, 69
EARLY, XK, YT, FIDX = 90, 91, 92, 93
NOTASK = 94
NTASK = NPROD + 96
FO = 97
C2L, CNL, C60 = 90, 92, 94
ST0 = 70

def srd(e, d, ptr, rec, add=None):
    if add is None:
        e(f's_mov_b32 s{d}, s{ptr}')
        e(f's_and_b32 s{d+1}, s{ptr+1}, 0xffff')
    else:
        e(f's_add_u32 s{d}, s{ptr}, s{add}')
        e(f's_addc_u32 s{d+1}, s{ptr+1}, 0')
        e(f's_and_b32 s{d+1}, s{d+1}, 0xffff')
    e(f's_mov_b32 s{d+2}, {rec}')
    e(f's_mov_b32 s{d+3}, 0x20000')

def gen(o):
    e = Em()
    role = ['m']
    def padloop(tag):
        e(f'L_pad{tag}:')
        e('s_memrealtime s[98:99]')
        e('s_waitcnt lgkmcnt(0)')
        e('s_sub_u32 s98, s98, s100')
        e(f's_cmp_lt_u32 s98, {o.padto}')
        e(f's_cbranch_scc1 L_pad{tag}')
    def stamp(k, lvl=1):
        if o.padto and lvl == 1 and o.padev == f'{role[0]}{k}':
            e('s_memrealtime s[100:101]'); e('s_waitcnt lgkmcnt(0)')
        if o.diag == lvl or (o.diag == 4 and lvl == 1): e(f's_memrealtime s[{ST0+2*k}:{ST0+2*k+1}]')
    def dump(nst):
        e('s_waitcnt lgkmcnt(0)')
        e('v_mov_b32 v250, 0')
        for k in range(nst): e(f'v_writelane_b32 v250, s{ST0+2*k}, {k}')
        e(f'v_writelane_b32 v250, s{NPOLL}, 13')
        e(f'v_writelane_b32 v250, s95, 12')
        e(f'v_writelane_b32 v250, s2, 14')
        e('s_getreg_b32 s46, hwreg(HW_REG_XCC_ID)')
        e('v_writelane_b32 v250, s46, 15')
        e(f's_lshl_b32 s46, s2, 3'); e(f's_add_u32 s46, s46, s{WAVE}'); e('s_lshl_b32 s46, s46, 6'); e(f's_add_u32 s46, s46, {DIAG}')
        e('v_lshl_add_u32 v251, v1, 2, s46')
        e('s_mov_b64 exec, 0xffff')
        e(f'buffer_store_dword v250, v251, {sr(S_WS)}, 0 offen')
        e('s_mov_b64 exec, -1')

    e('.amdgcn_target "amdgcn-amd-amdhsa--gfx950"')
    e('.text')
    e(f'.globl {KN}')
    e('.p2align 8')
    e(f'.type {KN},@function')
    e(f'{KN}:')
    e(f's_cmp_ge_u32 s2, {NWG}')
    e('s_cbranch_scc1 L_end')
    stamp(0)
    if o.padto and o.padev != 'm0': e('s_memrealtime s[100:101]')
    e('s_load_dwordx4 s[4:7], s[0:1], 0')
    e('s_load_dwordx4 s[8:11], s[0:1], 16')
    e('s_load_dwordx2 s[12:13], s[0:1], 32')
    e('v_lshrrev_b32 v2, 6, v0')
    e('v_and_b32 v1, 63, v0')
    e(f'v_readfirstlane_b32 s{WAVE}, v2')
    def decode():
        e('s_and_b32 s44, s2, 7')
        e('s_lshr_b32 s45, s2, 3')
        e('s_mul_i32 s46, s44, 31')
        e('s_min_u32 s44, s44, 4')
        e('s_add_u32 s46, s46, s44')
        e('s_add_u32 s46, s46, s45')
        if o.map == 0:
            e('s_mul_hi_u32 s47, s46, 68174085')
            e('s_mul_i32 s48, s47, 63')
            e('s_sub_u32 s48, s46, s48')
            e(f's_mul_hi_u32 s{NB}, s48, 613566757')
            e(f's_mul_i32 s49, s{NB}, 7')
            e('s_sub_u32 s49, s48, s49')
            e('s_mul_i32 s47, s47, 7')
            e('s_add_u32 s47, s47, s49')
        elif o.map == 1:
            e('s_mul_hi_u32 s47, s46, 477218589')
            e('s_mul_i32 s48, s47, 9')
            e(f's_sub_u32 s{NB}, s46, s48')
        else:
            e('s_mul_hi_u32 s47, s46, 34087043')
            e('s_mul_i32 s48, s47, 126')
            e('s_sub_u32 s48, s46, s48')
            e(f's_mul_hi_u32 s{NB}, s48, 306783379')
            e(f's_mul_i32 s49, s{NB}, 14')
            e('s_sub_u32 s49, s48, s49')
            e('s_mul_i32 s47, s47, 14')
            e('s_add_u32 s47, s47, s49')
        e(f's_and_b32 s{PAR}, s47, 1')
        e('s_lshr_b32 s47, s47, 1')
        e('s_cmp_ge_u32 s47, 7')
        e(f's_cselect_b32 s{BOFF}, 1152000, 0')
        e('s_cselect_b32 s48, 7, 0')
        e(f's_sub_u32 s{MB}, s47, s48')
        e(f's_mul_i32 s{XB}, s{MB}, 576')
        e(f's_add_u32 s{XB}, s{XB}, s{PAR}')
        e(f's_sub_u32 s{XB}, s{XB}, 60')
        e(f's_mul_i32 s{XB}, s{XB}, 288')
    e(f's_cmp_ge_u32 s{WAVE}, 4')
    e('s_cbranch_scc1 L_helper')
    if o.cpf:
        e('s_lshr_b32 s44, s2, 3')
        e(f's_lshl_b32 s45, s{WAVE}, 5')
        e('s_add_u32 s44, s44, s45')
        e('s_sub_u32 s44, s44, 26')
        e('s_cmp_ge_u32 s44, 5')
        e('s_cbranch_scc1 L_main')
        e('s_getpc_b64 s[46:47]')
        e('L_pc:')
        e('s_lshl_b32 s44, s44, 13')
        e('v_lshl_add_u32 v2, v1, 7, s44')
        e('v_min_u32 v2, L_codeend-L_pc-4, v2')
        e('global_load_dword v63, v2, s[46:47]')
    if o.hfirst: e('s_branch L_main')
    mark = {'main0': len(e.L)}
    e('L_main:')
    e(f's_mov_b32 s{MASK}, 0xffff0000')
    e(f's_mov_b32 s{NPOLL}, 0')
    if o.diag: e('s_mov_b32 s95, 0')
    decode()

    VXO, VXOR, VXD, VXDR, VWL, VEX, VEXP, VOUT = 30, 31, 32, 33, 34, 35, 36, 37
    VF = 40
    VA = 48
    VCL = 60
    e('v_mul_u32_u24 v3, 3641, v0')
    e('v_lshrrev_b32 v3, 16, v3')
    e('v_mul_u32_u24 v2, 18, v3')
    e('v_sub_u32 v2, v0, v2')
    e('v_mul_u32_u24 v3, 1152, v3')
    e('v_lshl_add_u32 v3, v2, 4, v3')
    e(f's_add_u32 s46, s{XB}, 576')
    e(f'v_add_u32 v{VA}, s46, v3')
    e('v_mov_b32 v5, 16192')
    e('v_mov_b32 v6, 17056')
    for k in range(1, 12):
        e('v_cmp_le_u32 vcc, 14, v2')
        e('v_add_u32 v3, 4, v2')
        e('v_subrev_u32 v4, 14, v2')
        e('v_cndmask_b32 v7, v5, v6, vcc')
        e('v_cndmask_b32 v2, v3, v4, vcc')
        e(f'v_add_u32 v{VA+k}, v{VA+k-1}, v7')
    e(f's_lshl_b32 s50, s{WAVE}, 10')
    e(f's_add_u32 s50, s50, {X_O}')
    e(f's_add_u32 s51, s50, {4096*11}')
    e('s_movk_i32 s49, 4096')
    if o.orev:
        e(f's_bitcmp0_b32 s{NB}, 0')
        e('s_cbranch_scc1 L_fwd')
        for k in range(5): e(f'v_swap_b32 v{VA+k}, v{VA+10-k}')
        e(f's_add_u32 s50, s50, {4096*10}')
        e('s_movk_i32 s49, -4096')
        e('L_fwd:')
    e(f'v_mov_b32 v{VF+1}, {CNT}')
    for r in range(4, 8): e(f'v_mov_b32 v{r}, 0')
    e(f'ds_write_b128 v{VF+1}, v[4:7]')
    e(f'ds_write_b128 v{VF+1}, v[4:7] offset:16')
    e('s_waitcnt lgkmcnt(0)')
    e(f's_load_dword s{TAG}, s[12:13], {NONCE}')
    srd(e, S_X, 4, 1152000, add=BOFF)
    def odma(k):
        e(f's_mov_b32 m0, s{51 if k == 11 else 50}')
        e('s_add_u32 s50, s50, s49')
        e(f'buffer_load_dwordx4 v{VA+k}, {sr(S_X)}, 0 offen lds')
    def etouch():
        e(f'buffer_load_dword v62, v9, {sr(S_X)}, 0 offen')
    if o.mtouch:
        e('v_min_u32 v8, 39, v1')
        e('v_lshrrev_b32 v9, 2, v8')
        e(f's_mul_i32 s46, s{WAVE}, 10')
        e('v_add_u32 v9, s46, v9')
        e(f'v_mul_u32_u24 v9, {4*1152}, v9')
        e('v_and_b32 v8, 3, v8')
        e('v_mul_u32_u24 v8, 92, v8')
        e(f's_and_b32 s46, s{NB}, 3')
        e('s_mul_i32 s46, s46, 1152')
        e(f's_add_u32 s46, s46, s{XB}')
        e('v_add3_u32 v9, v9, v8, s46')
    if o.mtouch == 2: etouch()
    for k in range(o.opre): odma(k)
    e('s_barrier')
    stamp(1)
    if o.mtouch == 3: etouch()
    for k in range(o.opre, 12):
        if k == 11:
            e(f's_cmp_lg_u32 s{WAVE}, 0')
            e('s_cbranch_scc1 L_o11')
        odma(k)
    e('L_o11:')
    if o.mtouch == 1: etouch()
    srd(e, S_WS, 12, WS_REC)
    srd(e, S_OUT, 8, 1152000, add=BOFF)
    srd(e, S_DBG, 10, 256)
    e('v_and_b32 v2, 15, v1')
    e('v_lshrrev_b32 v3, 4, v1')
    e('v_subrev_u32 v5, 4, v2')
    e('v_add_u32 v6, 8, v2')
    e('v_cmp_gt_u32 vcc, 4, v2')
    e('v_cmp_le_u32 s[46:47], 12, v2')
    e(f's_and_b32 s{TYP}, s{WAVE}, 1')
    e(f's_lshr_b32 s48, s{WAVE}, 1')
    e('v_cndmask_b32 v5, v5, v6, vcc')
    e('v_cndmask_b32 v5, v5, v2, s[46:47]')
    e('v_mul_u32_u24 v5, 9, v5')
    e('v_mul_u32_u24 v4, 288, v5')
    e('v_lshl_add_u32 v6, v3, 4, v4')
    e('v_and_b32 v7, 1, v3')
    e('v_lshl_add_u32 v7, v7, 4, v4')
    e('v_lshrrev_b32 v8, 1, v3')
    e('v_mul_u32_u24 v8, 2304, v8')
    e('v_add_u32 v7, v7, v8')
    e('v_add_u32 v7, 256, v7')
    e(f's_mul_i32 s49, s{TYP}, {X_D1}')
    e(f'v_add_u32 v{VXO}, {X_O}, v6')
    e(f'v_add_u32 v{VXOR}, {X_O}, v7')
    e(f'v_add_u32 v{VXD}, s49, v6')
    e(f'v_add_u32 v{VXDR}, s49, v7')
    e('v_lshlrev_b32 v6, 4, v1')
    e(f's_mul_i32 s49, s{WAVE}, 9216')
    e(f's_add_u32 s49, s49, {X_O}')
    e(f'v_add_u32 v{VEX}, s49, v6')
    e(f's_xor_b32 s49, s{WAVE}, 1')
    e('s_mul_i32 s49, s49, 9216')
    e(f's_add_u32 s49, s49, {X_O}')
    e(f'v_add_u32 v{VEXP}, s49, v6')
    e('v_and_b32 v8, 0x39, v1')
    e('v_bfe_u32 v9, v1, 1, 1')
    e('v_lshl_add_u32 v8, v9, 2, v8')
    e('v_bfe_u32 v9, v1, 2, 1')
    e('v_lshl_add_u32 v8, v9, 1, v8')
    e(f'v_lshlrev_b32 v{VWL}, 4, v8')
    e(f's_mul_i32 s49, s{TYP}, 576')
    e(f's_add_u32 s49, s49, s{XB}')
    e(f's_add_u32 s49, s49, {60*288}')
    e(f's_lshl_b32 s50, s{NB}, 5')
    e('s_add_u32 s49, s49, s50')
    e('s_lshl_b32 s50, s48, 4')
    e('s_add_u32 s49, s49, s50')
    e('v_mul_u32_u24 v8, 1152, v5')
    e('v_lshl_add_u32 v8, v3, 2, v8')
    e(f'v_add_u32 v{VOUT}, s49, v8')
    e(f'v_add_u32 v{VOUT+1}, 3456, v{VOUT}')
    e(f'v_add_u32 v{VOUT+2}, 6912, v{VOUT}')
    e(f's_lshl_b32 s49, s{NB}, 1')
    e('s_add_u32 s49, s49, s48')
    e('s_lshl_b32 s49, s49, 1')
    e(f's_add_u32 s49, s49, s{TYP}')
    e(f's_mul_i32 s{WSO}, s49, {NSTEP*1024}')
    e(f's_add_u32 s{WSO}, s{WSO}, {WOFF}')
    e(f's_mov_b32 s{C2L}, 0x4038aa3b'); e(f's_mov_b32 s{C2L+1}, 0x4038aa3b')
    e(f's_mov_b32 s{CNL}, 0xbfb8aa3b'); e(f's_mov_b32 s{CNL+1}, 0xbfb8aa3b')
    e(f's_mov_b32 s{C60}, 0x42700000')
    e(f'v_min_u32 v{VF}, 31, v1')
    e(f'v_lshlrev_b32 v{VF}, 7, v{VF}')
    e(f'v_min_u32 v{VF+6}, 47, v1')
    e(f'v_lshlrev_b32 v{VF+6}, 7, v{VF+6}')
    e(f'v_mov_b32 v{VF+2}, 1')
    e('s_lshl_b32 s46, s48, 2')
    e(f'v_add_u32 v{VF+5}, s46, v{VF+1}')
    e(f's_or_b32 s46, s2, s{WAVE}')
    e('v_or_b32 v2, s46, v1')
    e('v_cmp_eq_u32 vcc, 0, v2')
    e(f'v_mov_b32 v{VCL}, -16')
    e(f'v_mov_b32 v{VCL+1}, -16')
    e(f'v_mov_b32 v3, {NONCE}')
    e(f'v_cndmask_b32 v{VCL}, v{VCL}, 4, vcc')
    e(f'v_cndmask_b32 v{VCL+1}, v{VCL+1}, v3, vcc')
    e(f's_lshl_b32 s{FO}, s{TYP}, 13')
    if o.warmb:
        e(f's_cmp_eq_u32 s{TYP}, 1')
        e('s_cbranch_scc1 L_warmB')
        e('L_warmret:')
    e('s_waitcnt vmcnt(0) lgkmcnt(0)')
    stamp(2)
    e('s_mov_b64 exec, 1')
    e(f'ds_add_u32 v{VF+1}, v{VF+2} offset:8')
    e('s_mov_b64 exec, -1')
    e(f's_add_u32 s{TAG}, s{TAG}, {TAGINC}')
    e(f'v_mov_b32 v{VF+3}, s{TAG}')
    def flagwait(tag, vaddr, back):
        e(f'L_fw{tag}:')
        if o.diag and len(tag) == 2: e(f's_add_u32 s95, s95, {1 << (5 * int(tag[1]))}')
        e(f'buffer_load_dword v{VF+4}, v{vaddr}, {sr(S_WS)}, s{FO} offen sc1')
        e(f'ds_read_b32 v{VF+7}, v{VF+1} offset:12')
        e(f's_add_u32 s{NPOLL}, s{NPOLL}, 1')
        e('s_waitcnt vmcnt(0) lgkmcnt(0)')
        e(f'v_cmp_ne_u32 vcc, v{VF+3}, v{VF+4}')
        e(f'v_readfirstlane_b32 s46, v{VF+7}')
        e('s_nop 3')
        e(f's_cbranch_vccz {back}')
        e('s_cmp_lg_u32 s46, 0')
        e(f's_cbranch_scc1 {back}')
        e(f's_cmp_lg_u32 s{NPOLL}, {o.maxpoll}')
        e(f's_cbranch_scc1 L_fw{tag}')
        e(f'v_mov_b32 v{VF+7}, 0x10000')
        e('s_mov_b64 exec, 1')
        e(f'ds_add_u32 v{VF+1}, v{VF+7} offset:4')
        e('s_mov_b64 exec, -1')
        e(f's_branch L_fw{tag}')
    if o.gate:
        e('L_gate:')
        e(f'ds_read_b32 v{VF+4}, v{VF+1} offset:8')
        e('s_waitcnt lgkmcnt(0)')
        e(f'v_cmp_gt_u32 vcc, 0x400, v{VF+4}')
        e('s_nop 4')
        e('s_cbranch_vccz L_gate2')
        e('s_sleep 1')
        e('s_branch L_gate')
        e('L_gate2:')
    flagwait('0', VF, 'L_go')
    e('L_go:')
    stamp(3)
    e('L_gw:')
    e(f'ds_read_b32 v{VF+4}, v{VF+1} offset:8')
    e('s_waitcnt lgkmcnt(0)')
    e(f'v_and_b32 v{VF+4}, 0xff, v{VF+4}')
    e(f'v_cmp_ne_u32 vcc, 4, v{VF+4}')
    e('s_nop 4')
    e('s_cbranch_vccnz L_gw')
    stamp(4)
    e(f's_setprio {o.mprio}')
    e(f's_cmp_eq_u32 s{TYP}, 1')
    e('s_cbranch_scc1 L_typeB')

    ACC = {'P': 64, 'Q': 100}
    WR, TMP = 136, 224
    XRING = [200 + 4 * i for i in range(6)]
    XWIN = [4 + 4 * i for i in range(6)] + [240 + 4 * i for i in range(4)]
    VC = 28
    PF = o.pf
    GT = 98
    wflags = ' sc1' if o.wsc1 else ''
    for typ, S in enumerate(streams()):
        if typ == 1:
            e('.p2align 6')
            if o.warmb: e('L_warmB:'); e('s_branch L_warmret')
            e('L_typeB:')
        ops = []
        vstart = {}
        lastv = GT - 1 if o.tail else NSTEP + 7
        v0 = 0
        while v0 <= lastv:
            ch = 1 if v0 < o.chfrom else min(o.chain, lastv + 1 - v0)
            n0 = len(ops)
            for j in range(8, -1, -1):
                us = range(ch) if j % 2 == 0 else range(ch - 1, -1, -1)
                first_ = [u for u in us if v0 + u - j == 0 or (0 < v0 + u - j < NSTEP and S[v0+u-j][4] == 'Q' and S[v0+u-j-1][4] == 'P')]
                if first_: us = range(ch)
                for u in us:
                    if 0 <= v0 + u - j < NSTEP: ops.append((v0 + u - j, j))
            for u in range(ch): vstart[v0 + u] = n0 + (len(ops) - n0) * u // ch
            v0 += ch
        ntail = len(ops)
        if o.tail:
            for j in range(9):
                for g in range(GT - j, NSTEP): ops.append((g, j))
        assert len(ops) == NSTEP * 9 and len(set(ops)) == len(ops)
        N = len(ops)
        def key(n):
            g, j = ops[n]
            pid, arr, ch, c, acc = S[g]
            k = (pid, arr, ch, c + j)
            if n >= ntail and g < GT: k = k + ((n,) if not o.hold else ('h',))
            return k
        first, last = {}, {}
        for n in range(N):
            first.setdefault(key(n), n); last[key(n)] = n
        wfirst, wlast = {}, {}
        for n, (g, j) in enumerate(ops):
            wfirst.setdefault(g, n); wlast[g] = n
        tasks = []
        for k, n0 in first.items():
            win = o.tail and k[2] == 'rem' and k[1] == 'D'
            la = o.xla if n0 < ntail else 6
            if win: la = 40 if k[3] < 8 else 12
            tasks.append([n0 - la, n0 - 1, 'X', k])
        for g in range(NSTEP):
            rel = -100 + g if g < o.pf0 else max(0, wfirst[g] - 9 * PF - (9 * (NSTEP - g) if g >= GT else 0) + (0 if g < GT else 36))
            tasks.append([rel, wfirst[g] - 1, 'W', g])
        def at(v, off=0): return vstart[v] + off
        firstD = min(n for n in range(N) if S[ops[n][0]][1] == 'D')
        lastO = max(n for n in range(N) if S[ops[n][0]][1] == 'O')
        lastP = {j: max(n for n in range(N) if ops[n][1] == j and S[ops[n][0]][4] == 'P') for j in range(9)}
        slow = []
        vused = set()
        def check(v, off, cnt, tag):
            tasks.append([at(v - 1, 3), at(v - 1, 8), 'L', (f'ds_read_b32 v{VC}, v{VF+1} offset:{off}', ('c', tag))])
            tasks.append([at(v, 0), at(v, 1), 'C', (f'v_cmp_ne_u32 vcc, {cnt}, v{VC}', ('c', tag))])
            tasks.append([at(v, 6), at(v, 7), 'I', [f's_cbranch_vccnz L_slow{typ}{tag}', f'L_back{typ}{tag}:']])
            slow.append((tag, off, cnt))
            vused.add(v)
            return at(v, 8)
        def add1(pos, off):
            tasks.append([pos, pos + 4, 'A', off])
        vD = [v for v in vstart if vstart[v] <= firstD - o.xla][-1] - 1
        okD = check(vD, 16, 4, 'D')
        assert okD <= firstD - o.xla
        add1(lastO, 20)
        VP = 47
        okR = check(VP, 20, 4, 'R')
        for j in range(9):
            assert lastP[j] + 12 < at(VP + 1 + j, 2)
            tasks.append([at(VP + 1 + j, 2), at(VP + 1 + j, 8), 'L', (f'ds_write_b128 v{VEX}, {vr(ACC["P"]+4*j,4)} offset:{1024*j}', ('pw', j))])
        tasks.append([at(VP + 10, 0), at(VP + 10, 4), 'A', 'pair'])
        VQ = VP + 13
        okP = check(VQ, 'pair', 2, 'P')
        for j in range(9):
            tasks.append([at(VQ + 1 + j, 2), at(VQ + 1 + j, 8), 'L', (f'ds_read_b128 {vr(TMP+4*(j&1),4)}, v{VEXP} offset:{1024*j}', ('pr', j))])
            v = VQ + 2 + j
            pos = at(v, 8 - (j + 2) - 1) if j <= 6 else at(v, 8 - (j - 7) - 1)
            sh = 1 if j >= 7 else 0
            if o.chain > 1:
                own = [n for n in range(N) if ops[n][1] == j]
                pos = [a_ + 10 for a_, b_ in zip(own, own[1:]) if b_ - a_ >= 14 and a_ + 9 >= at(v, 0) ][0]
                sh = 0
                tasks[-1][0] = pos - 9; tasks[-1][1] = pos - 4
                tasks[-1][3] = (f'ds_read_b128 {vr(TMP+4*(j&3),4)}, v{VEXP} offset:{1024*j}', ('pr', j))
            tasks.append([pos - 1 + sh, pos - 1 + sh, 'Q', (j, 0)])
            tasks.append([pos + sh, pos + sh, 'Q', (j, 1)])
        if typ == 0:
            tasks.append([at(72, 4), at(72, 8), 'S', f'buffer_store_dword v{VCL+1}, v{VCL}, {sr(S_DBG)}, 0 offen sc1'])
            tasks.append([at(92, 4), at(92, 8), 'S', f'buffer_store_dword v{VF+3}, v{VCL+1}, {sr(S_WS)}, 0 offen sc1'])
        fslow = []
        passes = {}
        for g in range(NSTEP): passes.setdefault(S[g][0], g)
        need = [(passes[1], VF, 32 + 64 * typ), (32, VF + 6, 128), (passes[4], VF, 176), (passes[5], VF, 208), (passes[6], VF + 6, 240)]
        for ci, (gn, va, idx) in enumerate(need):
            v = gn - o.pfcs[ci] - 1
            while v in vused: v -= 1
            tasks.append([at(v - o.flead, 4), at(v - o.flead, 8), 'F', (va, idx, ci)])
            tasks.append([at(v, 0), at(v, 1), 'G', ci])
            tasks.append([at(v, 6), at(v, 7), 'I', [f's_cbranch_vccnz L_fw{typ}{ci}', f'L_fb{typ}{ci}:']])
            fslow.append((ci, va))
            assert v not in vused, v
            for t in tasks:
                if t[2] == 'W' and (t[3] >= gn): t[0] = max(t[0], at(v, 8))
        tasks.append([at(v + 1, 2), at(v + 1, 8), 'A', 4])
        if typ == 0:
            for lvl, v in enumerate(o.trig): tasks.append([at(v, 2), at(v, 8), 'P', lvl + 1])
        tasks.sort(key=lambda t: (t[0], t[1]))
        vq, lq = [], []
        dirty = [False]
        xreg, busy = {}, {}
        wn = [0]
        wr = {}
        lastw = [-100]
        BIG = [WR + 4 * i for i in range(16)] + XWIN + [ACC['P'] + 4 * i for i in range(9)]
        for i in range(9): busy[ACC['P'] + 4 * i] = at(VP + 12)
        until = {}
        if o.chain > 1:
            BIG += XRING
            for i in range(9):
                BIG.append(ACC['Q'] + 4 * i)
                until[ACC['Q'] + 4 * i] = min(n for n in range(N) if ops[n][1] == i and S[ops[n][0]][4] == 'Q') - 3
        def freeregs(n, end): return [x for x in BIG if busy.get(x, -1) <= n and end < until.get(x, 10**9)]
        def wok(t, n):
            if t[2] != 'W': return True
            if t[3] != wn[0]: return False
            free = len(freeregs(n, wlast[t[3]]))
            if t[1] - n <= 9 * 3: return free > 0
            return n - lastw[0] >= o.wgap and free > o.wres
        since = {}
        fill = []
        def em(x):
            e(x)
            if not x.endswith(':'):
                for jj in since: since[jj] += 1
        def lwait(tag):
            if tag not in lq: return
            i = lq.index(tag)
            em(f's_waitcnt lgkmcnt({0 if dirty[0] else len(lq)-1-i})')
            if dirty[0]: lq.clear(); dirty[0] = False
            else: del lq[:i + 1]
        def vwait(g):
            if g not in vq: return
            i = vq.index(g)
            em(f's_waitcnt vmcnt({len(vq)-1-i})')
            del vq[:i + 1]
        def run(t, n):
            kind, p = t[2], t[3]
            if kind == 'X':
                pool = BIG if (o.chain > 1 or p[-1] == 'h' or (p[2] == 'rem' and p[1] == 'D')) else XRING
                r = [x for x in pool if busy.get(x, -1) <= n and last[p] < until.get(x, 10**9)]
                assert r, ('no x register', p, n)
                r = min(r, key=lambda x: (until.get(x, 10**9), busy.get(x, -1)))
                busy[r] = last[p]; xreg[p] = r
                arr, ch, s_ = p[1], p[2], p[3]
                if o.nolds and n > 9 * 30: return
                if ch == 'rem': em(f'ds_read_b128 {vr(r,4)}, v{VXOR if arr == "O" else VXDR} offset:{288*s_}')
                else: em(f'ds_read_b128 {vr(r,4)}, v{VXO if arr == "O" else VXD} offset:{64*ch+288*s_}')
                lq.append(p)
            elif kind == 'W':
                g = p
                r = min(freeregs(n, wlast[g]), key=lambda x: (until.get(x, 10**9), busy.get(x, -1)))
                busy[r] = wlast[g]; wr[g] = r
                assert g == wn[0]; wn[0] += 1
                lastw[0] = n
                if o.now and g > 40: return
                if o.wsame and g > 40:
                    em(f'buffer_load_dwordx4 {vr(r,4)}, v{VWL}, {sr(S_WS)}, s{WSO} offen offset:{1024*(g%4)}{wflags}'); vq.append(g); return
                em(f'buffer_load_dwordx4 {vr(r,4)}, v{VWL}, {sr(S_WS)}, s{WSO} offen offset:{1024*(g%4)}{wflags}')
                if g % 4 == 3: em(f's_add_u32 s{WSO}, s{WSO}, 4096')
                vq.append(g)
            elif kind == 'L':
                em(p[0].replace('offset:pair', 'offset:24').replace(f'v{VF+1} offset:24', f'v{VF+5} offset:24')); lq.append(p[1])
            elif kind == 'C':
                lwait(p[1]); em(p[0])
            elif kind == 'I':
                for x in p: em(x)
            elif kind == 'A':
                em('s_mov_b64 exec, 1')
                if p == 'pair': em(f'ds_add_u32 v{VF+5}, v{VF+2} offset:24')
                else: em(f'ds_add_u32 v{VF+1}, v{VF+2} offset:{p}')
                em('s_mov_b64 exec, -1')
                lq.append(('a', p))
            elif kind == 'Q':
                p, hf = p
                lwait(('pr', p))
                q = ACC['Q'] + 4 * p; t_ = TMP + 4 * (p & (3 if o.chain > 1 else 1))
                for i in (2 * hf, 2 * hf + 1): em(f'v_add_f32 v{q+i}, v{q+i}, v{t_+i}')
            elif kind == 'S':
                em(p); vq.append(('s', n))
            elif kind == 'F':
                em(f's_mov_b32 s{FO}, {128*p[1]}')
                em(f'buffer_load_dword v{VF+4}, v{p[0]}, {sr(S_WS)}, s{FO} offen {o.fflags}'); vq.append(('f', p[2]))
            elif kind == 'G':
                vwait(('f', p)); em(f'v_cmp_ne_u32 vcc, v{VF+3}, v{VF+4}')
            elif kind == 'P':
                em(f'v_mov_b32 v{VF+7}, {p}')
                em('s_mov_b64 exec, 1')
                em(f'ds_max_u32 v{VF+1}, v{VF+7}')
                em('s_mov_b64 exec, -1')
                lq.append(('p', p))
        def epi(j, pk):
            q = ACC['Q'] + 4 * j
            t = TMP + 8 * (j & 1)
            I = []
            if pk:
                I.append(f'v_pk_mul_f32 {vr(t,2)}, {vr(q,2)}, s[{C2L}:{C2L+1}]')
                I.append(f'v_pk_mul_f32 {vr(t+2,2)}, {vr(q+2,2)}, s[{CNL}:{CNL+1}]')
            else:
                for i in (0, 1): I.append(f'v_mul_f32 v{t+i}, s{C2L}, v{q+i}')
                for i in (2, 3): I.append(f'v_mul_f32 v{t+i}, s{CNL}, v{q+i}')
            I.append(f'v_min_f32 v{t}, s{C60}, v{t}')
            I.append(f'v_min_f32 v{t+1}, s{C60}, v{t+1}')
            for i in (0, 1, 2, 3): I.append(f'v_exp_f32 v{t+i}, v{t+i}')
            if pk:
                I.append(f'v_pk_add_f32 {vr(t+4,2)}, {vr(t,2)}, 1.0 op_sel_hi:[1,0]')
                I.append(f'v_pk_add_f32 {vr(t+6,2)}, {vr(t,2)}, -1.0 op_sel_hi:[1,0]')
                I.append(f'v_pk_fma_f32 {vr(t+4,2)}, {vr(t+4,2)}, {vr(t+2,2)}, {vr(t+4,2)}')
            else:
                for i in (0, 1): I.append(f'v_add_f32 v{t+4+i}, 1.0, v{t+i}')
                for i in (0, 1): I.append(f'v_fma_f32 v{t+4+i}, v{t+4+i}, v{t+2+i}, v{t+4+i}')
            I.append(f'v_rcp_f32 v{t+4}, v{t+4}')
            I.append(f'v_rcp_f32 v{t+5}, v{t+5}')
            if pk:
                I.append('s_nop 0')
                I.append(f'v_pk_mul_f32 {vr(t+6,2)}, {vr(t+6,2)}, {vr(t+4,2)}')
            else:
                for i in (0, 1): I.append(f'v_add_f32 v{t+6+i}, -1.0, v{t+i}')
                for i in (0, 1): I.append(f'v_mul_f32 v{t+6+i}, v{t+6+i}, v{t+4+i}')
            I.append(f'v_cvt_pk_bf16_f32 v{q}, v{t+6}, v{t+7}')
            I.append(f'buffer_store_dword v{q}, v{VOUT + j//3}, {sr(S_OUT)}, 0 offen offset:{1152*(j%3)} {o.oflags if j < o.oj else ""}')
            return I
        def cost(x): return 2 if x.startswith(('v_exp', 'v_rcp', 'buffer')) else 1
        while tasks and tasks[0][0] < 0: run(tasks.pop(0), -1)
        inv = {n: v for v, n in vstart.items()}
        lastop = {j: max(n for n in range(N) if ops[n][1] == j) for j in range(9)}
        for n, (g, j) in enumerate(ops):
            if n in inv and o.padto and o.padev == 'm5' and inv[n] == o.padstep:
                e('s_memrealtime s[100:101]'); dirty[0] = True
            if n in inv and o.diag:
                v = inv[n]
                if o.diag == 2 and v in o.marks:
                    kk = o.marks.index(v)
                    e(f's_memtime s[{ST0+2*kk}:{ST0+2*kk+1}]'); dirty[0] = True
                if o.diag in (1, 4) and v == 33: stamp(5); stamp(6); dirty[0] = True
            k = key(n)
            assert k in xreg, (k, n)
            lwait(k); vwait(g)
            acc = S[g][4]
            d = ACC[acc] + 4 * j
            if g == 0: cs = '0'
            elif acc == 'Q' and S[g-1][4] == 'P': cs = vr(ACC['P'] + 4 * j, 4)
            else: cs = vr(d, 4)
            em(f'v_mfma_f32_16x16x32_bf16 {vr(d,4)}, {vr(wr[g],4)}, {vr(xreg[k],4)}, {cs}' if not o.swapab else f'v_mfma_f32_16x16x32_bf16 {vr(d,4)}, {vr(xreg[k],4)}, {vr(wr[g],4)}, {cs}')
            if n == lastop[j]: since[j] = 0
            budget = 2
            TC = {'X': 1, 'W': 2, 'L': 2, 'C': 1, 'I': 0, 'A': 1, 'Q': 2, 'S': 2, 'F': 2, 'G': 1, 'P': 2}
            while True:
                ready = [t for t in tasks if t[0] <= n and wok(t, n)]
                if not ready: break
                t = min(ready, key=lambda t: t[1])
                assert t[1] >= n, ('late', t, n)
                if TC[t[2]] > budget and t[1] > n:
                    fit = [u for u in ready if TC[u[2]] <= budget]
                    if not fit: break
                    t = min(fit, key=lambda t: t[1])
                tasks.remove(t); run(t, n); budget -= TC[t[2]]
            for jj in sorted(since):
                if 8 <= since[jj] < 10**6:
                    fill += epi(jj, False); since[jj] = 10**6
            budget += o.nfill - 2
            while fill and budget >= cost(fill[0]):
                budget -= cost(fill[0]); em(fill.pop(0))
            assert all(t[1] > n for t in tasks), ('late', n, [t for t in tasks if t[1] <= n])
        assert not tasks
        stamp(7)
        while fill: em(fill.pop(0))
        for jj in [jj for jj in sorted(since) if since[jj] < 10**6]:
            if since[jj] < 8: em(f's_nop {8-since[jj]-1}')
            for x in epi(jj, True): em(x)
        stamp(8)
        if o.padto and o.padev[0] == 'm': padloop(typ)
        if o.diag == 1:
            e('s_waitcnt vmcnt(0)')
            stamp(9)
            dump(10)
        if o.diag == 2:
            kk = len(o.marks)
            e(f's_memtime s[{ST0+2*kk}:{ST0+2*kk+1}]')
            dump(10)
        e('s_endpgm')
        for tag, off, cnt in slow:
            e(f'L_slow{typ}{tag}:')
            e(f'ds_read_b32 v{VC}, v{VF+5 if off == "pair" else VF+1} offset:{24 if off == "pair" else off}')
            e('s_waitcnt lgkmcnt(0)')
            e(f'v_cmp_ne_u32 vcc, {cnt}, v{VC}')
            e('s_nop 4')
            e(f's_cbranch_vccnz L_slow{typ}{tag}')
            e(f's_branch L_back{typ}{tag}')
        for ci, va in fslow: flagwait(f'{typ}{ci}', va, f'L_fb{typ}{ci}')

    mark['help0'] = len(e.L)
    if not o.hfirst: e('.p2align 6')
    e('L_helper:')
    role[0] = 'h'
    e(f's_setprio {o.hprio}')
    e(f's_sub_u32 s{TW0}, s{WAVE}, 4')
    e(f's_mov_b32 s{TW1}, s{WAVE}')
    e(f's_sub_u32 s{PAIR}, s2, {NPROD}')
    e(f's_cselect_b32 s{PAIR}, s2, s{PAIR}')
    e(f's_mov_b32 s{MODE}, 0')
    e(f's_mov_b32 s{NOTASK}, s2')
    e(f's_mov_b32 s{HAS3}, s{TW0}')
    e(f's_lshl_b32 s{SCRB}, s{TW0}, 12')
    e(f's_add_u32 s{SCRB}, s{SCRB}, {SCR}')
    e('L_prod:')
    T = [(28, TW0, 2, 52, 0), (36, TW1, 4, 53, 2048), (44, TW2, 6, 54, 16384)]
    c, kp, q, cc, kk, t = 46, 47, 48, 49, 50, 51
    b = TS
    e('v_mov_b32 v19, 4320')
    e('v_and_b32 v23, 3, v1')
    e('v_lshrrev_b32 v24, 3, v1')
    e('v_mul_u32_u24 v24, 576, v24')
    e('v_bfe_u32 v25, v1, 2, 1')
    e('v_mul_u32_u24 v25, 288, v25')
    e('v_add_u32 v24, v24, v25')
    for (vb, sw, vl, vs, so) in T:
        e(f'v_lshl_add_u32 v8, s{sw}, 2, v23' if sw != TW2 else 'v_add_u32 v8, 32, v23')
        e('v_cmp_le_u32 vcc, 18, v8')
        e(f'v_lshl_add_u32 v{vl}, v8, 4, v24')
        e(f'v_add_u32 v9, v{vl}, v19')
        e(f'v_cndmask_b32 v{vl}, v{vl}, v9, vcc')
    e(f's_and_b32 s{c}, s{PAIR}, 15')
    e(f's_lshr_b32 s{kp}, s{PAIR}, 4')
    e(f's_mul_i32 s{b}, s{c}, 165888')
    e(f's_mul_i32 s{t}, s{kp}, 9216')
    e(f's_add_u32 s{b}, s{b}, s{t}')
    e(f's_add_u32 s{b+1}, s{b}, 82944')
    e(f's_mov_b32 s{S_W+2}, 2571264')
    e(f's_mov_b32 s{S_W+3}, 0x20000')
    e(f's_mov_b32 s{S_WO+3}, 0x20000')
    e(f's_cmp_lg_u32 s{c}, 15')
    e(f's_cselect_b32 s{S_WO+2}, 2571264, 0')
    e(f's_mov_b32 m0, s{SCRB}')
    e('s_waitcnt lgkmcnt(0)')
    e(f's_mov_b32 s{S_W}, s6')
    e(f's_and_b32 s{S_W+1}, s7, 0xffff')
    e(f's_mov_b32 s{S_WO}, s6')
    e(f's_and_b32 s{S_WO+1}, s7, 0xffff')
    e(f's_cmp_ge_u32 s{NOTASK}, {NTASK}')
    e('s_cbranch_scc1 L_a3')
    def cond3(lbl):
        e(f's_cmp_lg_u32 s{HAS3}, 0')
        e(f's_cbranch_scc1 {lbl}')
    for ti, (vb, sw, vl, vs, so) in enumerate(T):
        if ti == 2: cond3('L_a3')
        if ti == 1: e('s_addk_i32 m0, 1024'); e('s_nop 0')
        e(f'buffer_load_dwordx4 v{vl}, {sr(S_W)}, s{b} offen lds')
        e('s_addk_i32 m0, 1024')
        e('s_nop 0')
        e(f'buffer_load_dwordx4 v{vl}, {sr(S_WO)}, s{b+1} offen lds')
        if ti == 1: e(f's_addk_i32 m0, {16384-3072}')
    e('L_a3:')
    stamp(1)
    e(f's_cmp_lg_u32 s{MODE}, 0')
    e('s_cbranch_scc1 L_a4')
    e(f's_load_dword s{TAG}, s[12:13], {NONCE}')
    e(f's_lshr_b32 s{EARLY}, 0x33, s{kp}')
    e(f's_and_b32 s{EARLY}, s{EARLY}, 1')
    e(f's_sub_u32 s{XK}, 2, s{EARLY}')
    e(f's_lshl_b32 s{t}, s{kp}, 1')
    e(f's_lshr_b32 s{YT}, {(3<<12)+(3<<14)+(3<<16)}, s{t}')
    e(f's_and_b32 s{YT}, s{YT}, 3')
    e(f's_lshr_b32 s{t}, s{kp}, 1')
    e(f's_cmp_ge_u32 s2, {NPROD}')
    e(f's_cselect_b32 s{EARLY}, 0, s{EARLY}')
    e(f's_cselect_b32 s{XK}, 3, s{XK}')
    e(f's_cselect_b32 s{YT}, s{t}, s{YT}')
    e(f's_cmp_ge_u32 s2, {NPROD+32}')
    e(f's_cselect_b32 s{XK}, 0, s{XK}')
    e(f's_cmp_ge_u32 s2, {NTASK}')
    e(f's_cselect_b32 s{YT}, 0, s{YT}')
    if not o.b0early:
        e(f's_cmp_lg_u32 s{EARLY}, 0')
        e('s_cbranch_scc1 L_a4')
    e('s_barrier')
    e('L_a4:')
    e(f's_mov_b32 s{MASK}, 0xffff0000')
    e(f's_mov_b32 s{NPOLL}, 0')
    srd(e, S_WS, 12, WS_REC)
    srd(e, S_DBG, 10, 256)
    e(f'v_mov_b32 v10, {CNT}')
    e(f'v_mov_b32 v20, {(256 - 18*2*NSTEP*1024) & 0xffffffff}')
    e(f'v_mov_b32 v26, {2*NSTEP*1024}')
    e('v_bfe_u32 v21, v1, 2, 2')
    e('v_lshlrev_b32 v21, 7, v21')
    e('v_and_b32 v22, 1, v1')
    e('v_lshl_add_u32 v21, v22, 6, v21')
    e('v_bfe_u32 v22, v1, 1, 1')
    e('v_lshl_add_u32 v21, v22, 3, v21')
    e('v_lshrrev_b32 v22, 4, v1')
    e('v_lshl_add_u32 v21, v22, 4, v21')
    e(f'v_add_u32 v21, s{SCRB}, v21')
    e('v_and_b32 v25, 15, v1')
    e('v_lshlrev_b32 v25, 4, v25')
    for (vb, sw, vl, vs, so) in T:
        e(f'v_lshl_add_u32 v8, s{sw}, 2, v22' if sw != TW2 else 'v_add_u32 v8, 32, v22')
        e('v_cmp_le_u32 vcc, 18, v8')
        e(f'v_mad_u32_u24 v{vs}, v8, v26, v25')
        e(f'v_add_u32 v9, v{vs}, v20')
        e(f'v_cndmask_b32 v{vs}, v{vs}, v9, vcc')
    e(f's_lshr_b32 s{q}, s{kp}, 1')
    e(f's_and_b32 s{cc}, s{c}, 7')
    e(f's_lshr_b32 s{kk}, s{c}, 3')
    e(f's_and_b32 s{t}, s{kp}, 1')
    e(f's_cmp_eq_u32 s{kp}, 8')
    e(f's_cselect_b32 s{cc}, s{cc}, s{c}')
    e(f's_cselect_b32 s{kk}, s{kk}, s{t}')
    e(f's_lshl_b32 s{kk}, s{kk}, 9')
    e(f's_add_u32 s{kk}, s{kk}, {WOFF}')
    e(f's_lshl_b32 s{t}, s{q}, 4')
    e(f's_add_u32 s{b+2}, s{t}, s{cc}')
    e(f's_sub_u32 s{b+3}, s{b+2}, s{q}')
    e(f's_cmp_ge_u32 s{q}, 2')
    e(f's_cselect_b32 s{b+4}, 74, 0')
    e(f's_add_u32 s{b+4}, s{b+4}, s{b+2}')
    e(f's_cmp_lt_u32 s{cc}, 2')
    e(f's_cselect_b32 s{t}, 32, 136')
    e(f's_add_u32 s{t}, s{t}, s{cc}')
    e(f's_cmp_eq_u32 s{kp}, 8')
    e(f's_cselect_b32 s{b+4}, s{t}, s{b+4}')
    e(f's_add_u32 s{b+2}, s{b+2}, 34')
    e(f's_add_u32 s{b+3}, s{b+3}, 144')
    for k in (2, 3, 4):
        e(f's_lshl_b32 s{b+k}, s{b+k}, 10')
        e(f's_add_u32 s{b+k}, s{b+k}, s{kk}')
    e(f's_cmp_eq_u32 s{kp}, 8')
    e(f's_cselect_b32 s{t}, 1, 2')
    e(f's_cmp_eq_u32 s{c}, 15')
    e(f's_cselect_b32 s{b+5}, s{t}, 0')
    e(f's_lshl_b32 s46, s{WAVE}, 2')
    e(f's_add_u32 s46, s46, {CNT+16}')
    e('v_mov_b32 v55, s46')
    e('v_mov_b32 v27, 0')
    e('v_mov_b32 v9, 4')
    e('s_waitcnt vmcnt(0) lgkmcnt(0)')
    stamp(2)
    e(f's_cmp_ge_u32 s{NOTASK}, {NTASK}')
    e('s_cbranch_scc1 L_x9')
    e(f's_cmp_lg_u32 s{WAVE}, 4')
    e('s_cbranch_scc1 L_a5')
    e('s_mov_b64 exec, 1')
    e(f'buffer_load_dword v27, v9, {sr(S_DBG)}, 0 offen sc1')
    e('s_mov_b64 exec, -1')
    e('L_a5:')
    for (vb, sw, vl, vs, so) in T:
        for tap in range(2):
            for half in range(2):
                e(f'ds_read_b64_tr_b16 {vr(vb+4*tap+2*half,2)}, v21 offset:{so+1024*tap+512*half}')
    nlab = [0]
    def st01(vb, vs):
        nlab[0] += 1
        e(f'buffer_store_dwordx4 {vr(vb,4)}, v{vs}, {sr(S_WS)}, s{b+2} offen sc1')
        e(f's_cmp_eq_u32 s{b+5}, 2')
        e(f's_cbranch_scc1 L_skip{nlab[0]}')
        e(f'buffer_store_dwordx4 {vr(vb+4,4)}, v{vs}, {sr(S_WS)}, s{b+3} offen sc1')
        e(f'L_skip{nlab[0]}:')
    def st01all(lbl):
        st01(T[0][0], T[0][3]); st01(T[1][0], T[1][3])
        cond3(lbl)
        st01(T[2][0], T[2][3])
    def dosum(vb, tb, ob):
        for i in range(8):
            e(f'v_lshlrev_b32 v{tb+2*i}, 16, v{vb+i}')
            e(f'v_and_b32 v{tb+2*i+1}, s{MASK}, v{vb+i}')
        for i in range(4):
            e(f'v_pk_add_f32 {vr(tb+2*i,2)}, {vr(tb+2*i,2)}, {vr(tb+8+2*i,2)}')
        for i in range(4):
            e(f'v_cvt_pk_bf16_f32 v{ob+i}, v{tb+2*i}, v{tb+2*i+1}')
    def ldswait(off, cmp, operand, tag, slp):
        e(f'L_lw{tag}:')
        e(f'ds_read_b32 v11, v10 offset:{off}')
        e('s_waitcnt lgkmcnt(0)')
        e('v_and_b32 v11, 0xff, v11')
        e(f'v_cmp_{cmp}_u32 vcc, {operand}, v11')
        e('s_nop 4')
        e(f's_cbranch_vccnz L_lx{tag}')
        e(f's_sleep {slp}')
        e(f's_branch L_lw{tag}')
        e(f'L_lx{tag}:')
    SO = 240
    e(f's_or_b32 s46, s{EARLY}, s{MODE}')
    e(f's_cmp_eq_u32 s{XK}, 2')
    e('s_cselect_b32 s47, 1, s46')
    e('s_cmp_eq_u32 s47, 0')
    e('s_cbranch_scc1 L_x9')
    for ti, (vb, sw, vl, vs, so) in enumerate(T):
        if ti == 2: cond3('L_x3')
        e(f's_waitcnt lgkmcnt({8-4*ti})')
        dosum(vb, 64 + 16 * ti, SO + 4 * ti)
        e('s_cmp_eq_u32 s46, 0')
        e(f's_cbranch_scc1 L_x5{ti}')
        e(f'buffer_store_dwordx4 {vr(SO+4*ti,4)}, v{vs}, {sr(S_WS)}, s{b+4} offen sc1')
        e(f'L_x5{ti}:')
    e('L_x3:')
    e(f's_cmp_eq_u32 s{MODE}, 0')
    e('s_cbranch_scc1 L_x9')
    e('L_x2:')
    e('s_waitcnt lgkmcnt(0)')
    st01all('L_x4')
    e('L_x4:')
    e(f's_cmp_eq_u32 s{MODE}, 0')
    e('s_cbranch_scc1 L_x9')
    e('s_waitcnt vmcnt(0)')
    e(f's_add_u32 s{PAIR}, s{PAIR}, 1')
    e(f's_cmp_lt_u32 s{PAIR}, {NPROD}')
    e('s_cbranch_scc1 L_prod')
    e('v_mov_b32 v11, 1')
    e('ds_write_b32 v10, v11 offset:12')
    e('s_endpgm')
    e('L_x9:')
    stamp(3)
    decode()
    e('v_subrev_u32 v4, 256, v0')
    e('v_min_u32 v4, 251, v4')
    e('v_mul_u32_u24 v3, 3641, v4')
    e('v_lshrrev_b32 v3, 16, v3')
    e('v_mul_u32_u24 v2, 18, v3')
    e('v_sub_u32 v2, v4, v2')
    e(f'v_mul_u32_u24 v3, {R}, v3')
    e(f'v_min_u32 v3, {160-R}, v3')
    e('v_mul_u32_u24 v4, 1152, v3')
    e('v_lshl_add_u32 v4, v2, 4, v4')
    e(f'v_add_u32 v12, s{XB}, v4')
    e('v_mul_u32_u24 v18, 288, v3')
    e('v_lshl_add_u32 v18, v2, 4, v18')
    e(f'v_add_u32 v19, {X_D1}, v18')
    srd(e, S_X, 4, 1152000, add=BOFF)
    e(f's_add_u32 s46, s{TAG}, {TAGINC}')
    e('v_mov_b32 v56, s46')
    e('s_lshl_b32 s46, s2, 7')
    e('v_mov_b32 v58, s46')
    e(f's_add_u32 s46, s{PAIR}, {NPROD}')
    e('s_lshl_b32 s46, s46, 7')
    e('v_mov_b32 v59, s46')
    def publish(slot, vflag, tag, first, n=0):
        e('s_mov_b64 exec, 1')
        e(f's_waitcnt vmcnt({n})')
        if first: stamp(4)
        if o.padto and tag == 'x': stamp(12)
        e('v_cmp_ne_u32 vcc, 0, v27')
        e('v_not_b32 v57, v56')
        e('s_nop 0')
        e('v_cndmask_b32 v57, v56, v57, vcc')
        e(f'ds_write_b32 v55, v57 offset:{slot}')
        e(f'ds_read_b128 v[20:23], v10 offset:{32+slot}')
        e('s_waitcnt lgkmcnt(0)')
        for i in range(4): e(f'v_xor_b32 v{20+i}, v{20+i}, v56')
        e('v_or3_b32 v20, v20, v21, v22')
        e('v_or_b32 v20, v20, v23')
        e('v_cmp_eq_u32 vcc, 0, v20')
        e('s_and_b64 exec, exec, vcc')
        e(f's_cbranch_execz L_nl{tag}')
        e(f'buffer_store_dword v56, v{vflag}, {sr(S_WS)}, 0 offen sc1')
        e(f'L_nl{tag}:')
        e('s_mov_b64 exec, -1')
    e(f's_cmp_eq_u32 s{EARLY}, 0')
    e('s_cbranch_scc1 L_noflag')
    publish(0, 58, 'x', True)
    if not o.b0early: e('s_barrier')
    e('L_noflag:')
    e(f's_setprio {o.hprio2}')
    RAW, ORAW = 64, 120
    EU = [184, 192]
    OU, DT, DO = 200, 208, 216
    xi = [0]
    NL = R + 1
    hq = []
    def eload():
        k = xi[0]
        if k >= NL: return
        a_ = 12
        if k:
            a_ = 13 + (k & 3)
            e(f'v_add_u32 v{a_}, {1152*k}, v12')
        e(f'buffer_load_dwordx4 {vr(RAW+4*k,4)}, v{a_}, {sr(S_X)}, 0 offen')
        xi[0] += 1
        hq.append(('e', k))
    if o.etouch:
        e(f's_cmp_lt_u32 s2, {NTASK}')
        e('s_cbranch_scc1 L_net')
        e(f's_and_b32 s46, s{NB}, 1')
        e(f's_mul_i32 s46, s46, {1152*6}')
        e('v_add_u32 v12, s46, v12')
        for _ in range(7): eload()
        e('v_subrev_u32 v12, s46, v12')
        e('s_waitcnt vmcnt(0)')
        e('L_net:')
        xi[0] = 0; hq.clear()
    YA = 232
    e(f's_cmp_eq_u32 s{b+5}, 2')
    e('s_cselect_b32 s46, 0x80000000, 0')
    e(f's_cmp_lg_u32 s{HAS3}, 0')
    e('s_cselect_b32 s47, 0x80000000, 0')
    e('s_or_b32 s48, s46, s47')
    for i in range(6):
        m_ = {0: None, 1: 46, 2: None, 3: 46, 4: 47, 5: 48}[i]
        e(f'v_mov_b32 v{YA+i}, v{52+i//2}' if m_ is None else f'v_or_b32 v{YA+i}, s{m_}, v{52+i//2}')
    def ystore(i, a_):
        e(f'buffer_store_dwordx4 {vr(28+4*i,4)}, v{a_}, {sr(S_WS)}, s{b+2+(i&1)} offen sc1')
        hq.append(('y', i))
    stamp(5)
    ldswait(8, 'eq', 4, 'o', 1)
    def unpack(dst, s_):
        for i in range(4):
            e(f'v_lshlrev_b32 v{dst+2*i}, 16, v{s_+i}')
            e(f'v_and_b32 v{dst+2*i+1}, s{MASK}, v{s_+i}')
    def unpackE(dst, k):
        e(f's_waitcnt vmcnt({len(hq)-1-hq.index(("e", k))})')
        unpack(dst, RAW + 4 * k)
        eload()
    def diff(eu, out):
        for i in range(8): e(f'v_sub_f32 v{DT+i}, v{eu+i}, v{OU+i}')
        for i in range(4):
            e(f'v_cvt_pk_bf16_f32 v{out+i}, v{DT+2*i}, v{DT+2*i+1}')
    def opengate():
        if not o.gate: return
        e('v_mov_b32 v11, 0x100')
        e('s_mov_b64 exec, 1')
        e('ds_add_u32 v10, v11 offset:8')
        e('s_mov_b64 exec, -1')
    def rows(hook):
        stamp(6)
        for j in range(R):
            e(f'ds_read_b128 {vr(ORAW+4*j,4)}, v18 offset:{X_O+288*j}')
        unpackE(EU[0], 0)
        e('s_waitcnt lgkmcnt(0)')
        for j in range(R):
            o0 = DO + 8 * (j & 1)
            unpack(OU, ORAW + 4 * j)
            diff(EU[j & 1], o0)
            e(f'ds_write_b128 v18, {vr(o0,4)} offset:{X_D0+288*j}')
            unpackE(EU[(j + 1) & 1], j + 1)
            diff(EU[(j + 1) & 1], o0 + 4)
            e(f'ds_write_b128 v19, {vr(o0+4,4)} offset:{288*j}')
            hook(j)
    e(f's_cmp_ge_u32 s2, {NPROD + (32 if o.d0p else 0)}')
    e('s_cbranch_scc1 L_pathA')
    e(f's_cmp_lt_u32 s{XK}, 2')
    e('s_cbranch_scc1 L_nox')
    if o.d0p:
        e(f's_cmp_eq_u32 s{XK}, 3')
        e('s_cbranch_scc1 L_xd')
    for i in range(3):
        e(f'buffer_store_dwordx4 {vr(SO+4*i,4)}, v{YA+2*i}, {sr(S_WS)}, s{b+4} offen sc1')
    if o.d0p:
        e('s_branch L_xe')
        e('L_xd:')
        for i in range(6): ystore(i, YA + i)
        e('L_xe:')
    publish(0, 58, 'x2', True)
    e('L_nox:')
    opengate()
    hq.clear(); xi[0] = 0
    for _ in range(o.ein): eload()
    rows(lambda j: None)
    e('s_branch L_rowsdone')
    e('L_pathA:')
    if not o.d0p:
        e(f's_cmp_eq_u32 s{XK}, 3')
        e('s_cselect_b32 s47, 0, 0x80000000')
        for i in range(6): e(f'v_or_b32 v{20+i}, s47, v{YA+i}')
    hq.clear(); xi[0] = 0
    for _ in range(NL): eload()
    if not o.d0p:
        for i in range(6): ystore(i, 20 + i)
    def hookA(j):
        if j == o.grow:
            e(f's_waitcnt vmcnt({len(hq)-1-hq.index(("e", NL-1))})')
            opengate()
        if j == o.xrow and not o.d0p:
            e(f's_cmp_lg_u32 s{XK}, 3')
            e('s_cbranch_scc1 L_xp')
            publish(0, 58, 'x3', True)
            e('L_xp:')
    rows(hookA)
    e('L_rowsdone:')
    e('s_waitcnt lgkmcnt(0)')
    stamp(7)
    e('v_mov_b32 v11, 1')
    e('s_mov_b64 exec, 1')
    e('ds_add_u32 v10, v11 offset:16')
    e('s_mov_b64 exec, -1')
    e(f's_cmp_eq_u32 s{YT}, 0')
    e('s_cbranch_scc1 L_noy')
    e(f's_setprio {o.hprio}')
    e('L_yw:')
    e('ds_read_b64 v[20:21], v10')
    e('s_waitcnt lgkmcnt(0)')
    e('v_lshrrev_b32 v21, 14, v21')
    e('v_and_b32 v21, -4, v21')
    e('v_or_b32 v20, v20, v21')
    e(f'v_cmp_le_u32 vcc, s{YT}, v20')
    e('s_nop 4')
    e('s_cbranch_vccnz L_yx')
    e('s_sleep 4')
    e('s_branch L_yw')
    e('L_yx:')
    for i in range(6):
        ystore(i, YA + i)
        e(f's_waitcnt vmcnt({o.ythr})')
    publish(16, 59, 'y', False)
    if o.diag == 1: stamp(8)
    e('L_noy:')
    e(f's_cmp_lg_u32 s{WAVE}, 4')
    e('s_cbranch_scc1 L_hend')
    e('L_guard:')
    e('ds_read_b32 v11, v10 offset:4')
    e('s_waitcnt lgkmcnt(0)')
    e('v_readfirstlane_b32 s46, v11')
    e('s_nop 3')
    e('s_cmp_eq_u32 s46, 4')
    e('s_cbranch_scc1 L_hend')
    e('s_cmp_lt_u32 s46, 0x10000')
    e('s_cbranch_scc0 L_rescue')
    e('s_sleep 16')
    e('s_branch L_guard')
    e('L_rescue:')
    e(f's_mov_b32 s{MODE}, 1')
    e(f's_mov_b32 s{HAS3}, 1')
    e(f's_mov_b32 s{NOTASK}, 0')
    e(f's_lshr_b32 s{TW0}, s{NB}, 1')
    e(f's_add_u32 s{TW1}, s{NB}, 9')
    e(f's_lshr_b32 s{TW1}, s{TW1}, 1')
    e(f's_mov_b32 s{PAIR}, 0')
    e('s_branch L_prod')
    e('L_hend:')
    if o.padto and o.padev[0] == 'h': padloop('h')
    if o.diag == 1:
        stamp(9)
        dump(10)
    e('L_end:')
    e('s_endpgm')
    if o.hfirst:
        m0, h0 = mark['main0'], mark['help0']
        e.L = e.L[:m0] + e.L[h0:] + ['.p2align 6'] + e.L[m0:h0]
    e('L_codeend:')
    e('.section .rodata,"a"')
    e('.p2align 6')
    e(f'.amdhsa_kernel {KN}')
    for x in ['next_free_vgpr 256', 'next_free_sgpr 102', 'accum_offset 256', 'group_segment_fixed_size 0', 'kernarg_size 40',
              'user_sgpr_count 2', 'user_sgpr_kernarg_segment_ptr 1', 'system_sgpr_workgroup_id_x 1']:
        e('  .amdhsa_' + x)
    e('.end_amdhsa_kernel')
    n = haz.check(e.L)
    if n: print(f'{n} hazards', file=sys.stderr)
    return f'; @launch grid=({NWG},1,1) block=(512,1,1) lds={LDS_BYTES}\n' + e.text()

def opts(argv=None):
    ap = argparse.ArgumentParser()
    ap.add_argument('-o', default='k.s')
    for nm, d in [('diag', 0), ('pf', 16), ('pf0', 8), ('wgap', 4), ('wres', 4), ('wsc1', 0), ('nfill', 2), ('fstride', 128), ('sleep', 0), ('maxpoll', 3000), ('nopoll', 0),
                  ('hprio', 3), ('hprio2', 0), ('mprio', 2), ('epre', 0), ('ein', 7), ('dpre', 7), ('b0early', 0), ('mtouch', 3), ('gate', 1), ('swapab', 0), ('d0p', 1), ('map', 1), ('chain', 4), ('chfrom', 8), ('oj', 9), ('nolds', 0), ('now', 0), ('wsame', 0), ('grow', 1), ('vbd', 33), ('nopk', 1), ('padto', 0), ('npdelay', 0), ('opre', 0), ('etouch', 0), ('orev', 1), ('b0late', 1), ('dec', 1), ('tail', 1), ('xla', 9), ('hold', 1), ('prest', 0), ('xslot', 0), ('noclosed', 0), ('cpf', 1), ('hfirst', 1), ('warmb', 1), ('wsfirst', 0), ('flead', 6), ('ythr', 6), ('xrow', 3), ('padstep', 33), ('probe', 0), ('probeoff', 0x4000000)]:
        ap.add_argument('--' + nm, type=int, default=d)
    ap.add_argument('--oflags', default='')
    ap.add_argument('--pmap', default='18,18,18,18,18,18,18,18')
    ap.add_argument('--padev', default='m0')
    ap.add_argument('--trig', default='10,25,40')
    ap.add_argument('--yrow', default='0,7,2,9,5,11')
    ap.add_argument('--pfcs', default='4,5,5,8,8')
    ap.add_argument('--fflags', default='')
    ap.add_argument('--marks', default='0,4,8,12,16,24,33,47,58')
    o = ap.parse_args(argv)
    o.marks = [int(x) for x in o.marks.split(',')]
    o.yrow = [int(x) for x in o.yrow.split(',')]
    o.pfcs = [int(x) for x in o.pfcs.split(',')]
    o.trig = [int(x) for x in o.trig.split(',')]
    return o

if __name__ == '__main__':
    o = opts()
    open(o.o, 'w').write(gen(o))
```

```python
import re, sys, argparse
import haz

KN = 'standalone__autoregressive_conv_wavernn__speech_kernel'
NWG = 252
NPROD = 144
ARR = 160 * 288
X_D0, X_O, X_D1 = 0, ARR, 2 * ARR
CNT = 3 * ARR
SCR = CNT + 64
LDS_BYTES = SCR + 18432
NSTEP = 106
WOFF = int(__import__('os').environ.get('WOFF', '0x100000'), 0)
NONCE = 0x10000
DIAG = 0x800000
WS_REC = max(0x1000000, WOFF + 0x400000, int(__import__('os').environ.get('WSREC', '0'), 0))
TAGINC = 0x9E3779B9
R = 12

class Em:
    def __init__(self): self.L = []
    def __call__(self, s): self.L.append(s)
    def text(self): return '\n'.join(self.L) + '\n'

def vr(a, n=1): return f'v{a}' if n == 1 else f'v[{a}:{a+n-1}]'
def sr(a, n=4): return f's[{a}:{a+n-1}]'

def streams():
    out = []
    for typ in (0, 1):
        S = []
        pid = [0]
        def add(arr, chunk, cs, acc):
            for c in cs: S.append((pid[0], arr, chunk, c, acc))
            pid[0] += 1
        if typ == 0:
            add('O', 0, range(16), 'P'); add('O', 1, range(16), 'P'); add('O', 'rem', range(0, 2), 'P')
            for q in range(4): add('D', q, range(16), 'Q')
            add('D', 'rem', range(8), 'Q')
        else:
            add('O', 2, range(16), 'P'); add('O', 3, range(16), 'P'); add('O', 'rem', range(2, 8), 'P')
            for q in range(4): add('D', q, range(15), 'Q')
            add('D', 'rem', range(8), 'Q')
        assert len(S) == NSTEP
        out.append(S)
    return out

S_X, S_W, S_WO, S_WS, S_OUT, S_DBG = 20, 24, 28, 32, 36, 40
WAVE, NB, BAT, PAR, MB, BOFF = 14, 15, 16, 17, 18, 19
PAIR0 = 3
XB = 52
MASK = 53
TW0, TW1, TW2, PAIR, HAS3, MODE, SCRB, TAG, LAST, NPOLL = 44, 45, 54, 55, 56, 57, 58, 59, 60, 61
TS = 62
TYP, WSO = 68, 69
EARLY, XK, YT, FIDX = 90, 91, 92, 93
NOTASK = 94
NTASK = NPROD + 96
FO = 97
C2L, CNL, C60 = 90, 92, 94
ST0 = 70

def srd(e, d, ptr, rec, add=None):
    if add is None:
        e(f's_mov_b32 s{d}, s{ptr}')
        e(f's_and_b32 s{d+1}, s{ptr+1}, 0xffff')
    else:
        e(f's_add_u32 s{d}, s{ptr}, s{add}')
        e(f's_addc_u32 s{d+1}, s{ptr+1}, 0')
        e(f's_and_b32 s{d+1}, s{d+1}, 0xffff')
    e(f's_mov_b32 s{d+2}, {rec}')
    e(f's_mov_b32 s{d+3}, 0x20000')

def gen(o):
    e = Em()
    role = ['m']
    def padloop(tag):
        e(f'L_pad{tag}:')
        e('s_memrealtime s[98:99]')
        e('s_waitcnt lgkmcnt(0)')
        e('s_sub_u32 s98, s98, s100')
        e(f's_cmp_lt_u32 s98, {o.padto}')
        e(f's_cbranch_scc1 L_pad{tag}')
    def stamp(k, lvl=1):
        if o.padto and lvl == 1 and o.padev == f'{role[0]}{k}':
            e('s_memrealtime s[100:101]'); e('s_waitcnt lgkmcnt(0)')
        if o.diag == lvl or (o.diag == 4 and lvl == 1): e(f's_memrealtime s[{ST0+2*k}:{ST0+2*k+1}]')
    def dump(nst):
        e('s_waitcnt lgkmcnt(0)')
        e('v_mov_b32 v250, 0')
        for k in range(nst): e(f'v_writelane_b32 v250, s{ST0+2*k}, {k}')
        e(f'v_writelane_b32 v250, s{NPOLL}, 13')
        e(f'v_writelane_b32 v250, s95, 12')
        e(f'v_writelane_b32 v250, s2, 14')
        e('s_getreg_b32 s46, hwreg(HW_REG_XCC_ID)')
        e('v_writelane_b32 v250, s46, 15')
        e(f's_lshl_b32 s46, s2, 3'); e(f's_add_u32 s46, s46, s{WAVE}'); e('s_lshl_b32 s46, s46, 6'); e(f's_add_u32 s46, s46, {DIAG}')
        e('v_lshl_add_u32 v251, v1, 2, s46')
        e('s_mov_b64 exec, 0xffff')
        e(f'buffer_store_dword v250, v251, {sr(S_WS)}, 0 offen')
        e('s_mov_b64 exec, -1')

    e('.amdgcn_target "amdgcn-amd-amdhsa--gfx950"')
    e('.text')
    e(f'.globl {KN}')
    e('.p2align 8')
    e(f'.type {KN},@function')
    e(f'{KN}:')
    e(f's_cmp_ge_u32 s2, {NWG}')
    e('s_cbranch_scc1 L_end')
    stamp(0)
    if o.padto and o.padev != 'm0': e('s_memrealtime s[100:101]')
    e('s_load_dwordx4 s[4:7], s[0:1], 0')
    e('s_load_dwordx4 s[8:11], s[0:1], 16')
    e('s_load_dwordx2 s[12:13], s[0:1], 32')
    e('v_lshrrev_b32 v2, 6, v0')
    e('v_and_b32 v1, 63, v0')
    e(f'v_readfirstlane_b32 s{WAVE}, v2')
    def decode():
        e('s_and_b32 s44, s2, 7')
        e('s_lshr_b32 s45, s2, 3')
        e('s_mul_i32 s46, s44, 31')
        e('s_min_u32 s44, s44, 4')
        e('s_add_u32 s46, s46, s44')
        e('s_add_u32 s46, s46, s45')
        if o.map == 0:
            e('s_mul_hi_u32 s47, s46, 68174085')
            e('s_mul_i32 s48, s47, 63')
            e('s_sub_u32 s48, s46, s48')
            e(f's_mul_hi_u32 s{NB}, s48, 613566757')
            e(f's_mul_i32 s49, s{NB}, 7')
            e('s_sub_u32 s49, s48, s49')
            e('s_mul_i32 s47, s47, 7')
            e('s_add_u32 s47, s47, s49')
        elif o.map == 1:
            e('s_mul_hi_u32 s47, s46, 477218589')
            e('s_mul_i32 s48, s47, 9')
            e(f's_sub_u32 s{NB}, s46, s48')
        else:
            e('s_mul_hi_u32 s47, s46, 34087043')
            e('s_mul_i32 s48, s47, 126')
            e('s_sub_u32 s48, s46, s48')
            e(f's_mul_hi_u32 s{NB}, s48, 306783379')
            e(f's_mul_i32 s49, s{NB}, 14')
            e('s_sub_u32 s49, s48, s49')
            e('s_mul_i32 s47, s47, 14')
            e('s_add_u32 s47, s47, s49')
        e(f's_and_b32 s{PAR}, s47, 1')
        e('s_lshr_b32 s47, s47, 1')
        e('s_cmp_ge_u32 s47, 7')
        e(f's_cselect_b32 s{BOFF}, 1152000, 0')
        e('s_cselect_b32 s48, 7, 0')
        e(f's_sub_u32 s{MB}, s47, s48')
        e(f's_mul_i32 s{XB}, s{MB}, 576')
        e(f's_add_u32 s{XB}, s{XB}, s{PAR}')
        e(f's_sub_u32 s{XB}, s{XB}, 60')
        e(f's_mul_i32 s{XB}, s{XB}, 288')
    e(f's_cmp_ge_u32 s{WAVE}, 4')
    e('s_cbranch_scc1 L_helper')
    if o.cpf:
        e('s_lshr_b32 s44, s2, 3')
        e(f's_lshl_b32 s45, s{WAVE}, 5')
        e('s_add_u32 s44, s44, s45')
        e('s_sub_u32 s44, s44, 26')
        e('s_cmp_ge_u32 s44, 5')
        e('s_cbranch_scc1 L_main')
        e('s_getpc_b64 s[46:47]')
        e('L_pc:')
        e('s_lshl_b32 s44, s44, 13')
        e('v_lshl_add_u32 v2, v1, 7, s44')
        e('v_min_u32 v2, L_codeend-L_pc-4, v2')
        e('global_load_dword v63, v2, s[46:47]')
    if o.hfirst: e('s_branch L_main')
    mark = {'main0': len(e.L)}
    e('L_main:')
    e(f's_mov_b32 s{MASK}, 0xffff0000')
    e(f's_mov_b32 s{NPOLL}, 0')
    if o.diag: e('s_mov_b32 s95, 0')
    decode()

    VXO, VXOR, VXD, VXDR, VWL, VEX, VEXP, VOUT = 30, 31, 32, 33, 34, 35, 36, 37
    VF = 40
    VA = 48
    VCL = 60
    e('v_mul_u32_u24 v3, 3641, v0')
    e('v_lshrrev_b32 v3, 16, v3')
    e('v_mul_u32_u24 v2, 18, v3')
    e('v_sub_u32 v2, v0, v2')
    e('v_mul_u32_u24 v3, 1152, v3')
    e('v_lshl_add_u32 v3, v2, 4, v3')
    e(f's_add_u32 s46, s{XB}, 576')
    e(f'v_add_u32 v{VA}, s46, v3')
    e('v_mov_b32 v5, 16192')
    e('v_mov_b32 v6, 17056')
    for k in range(1, 12):
        e('v_cmp_le_u32 vcc, 14, v2')
        e('v_add_u32 v3, 4, v2')
        e('v_subrev_u32 v4, 14, v2')
        e('v_cndmask_b32 v7, v5, v6, vcc')
        e('v_cndmask_b32 v2, v3, v4, vcc')
        e(f'v_add_u32 v{VA+k}, v{VA+k-1}, v7')
    e(f's_lshl_b32 s50, s{WAVE}, 10')
    e(f's_add_u32 s50, s50, {X_O}')
    e(f's_add_u32 s51, s50, {4096*11}')
    e('s_movk_i32 s49, 4096')
    if o.orev:
        e(f's_bitcmp0_b32 s{NB}, 0')
        e('s_cbranch_scc1 L_fwd')
        for k in range(5): e(f'v_swap_b32 v{VA+k}, v{VA+10-k}')
        e(f's_add_u32 s50, s50, {4096*10}')
        e('s_movk_i32 s49, -4096')
        e('L_fwd:')
    e(f'v_mov_b32 v{VF+1}, {CNT}')
    for r in range(4, 8): e(f'v_mov_b32 v{r}, 0')
    e(f'ds_write_b128 v{VF+1}, v[4:7]')
    e(f'ds_write_b128 v{VF+1}, v[4:7] offset:16')
    e('s_waitcnt lgkmcnt(0)')
    e(f's_load_dword s{TAG}, s[12:13], {NONCE}')
    srd(e, S_X, 4, 1152000, add=BOFF)
    def odma(k):
        e(f's_mov_b32 m0, s{51 if k == 11 else 50}')
        e('s_add_u32 s50, s50, s49')
        e(f'buffer_load_dwordx4 v{VA+k}, {sr(S_X)}, 0 offen lds')
    def etouch():
        e(f'buffer_load_dword v62, v9, {sr(S_X)}, 0 offen')
    if o.mtouch and o.tskip:
        e('s_lshr_b32 s47, s2, 4')
        e('s_lshr_b32 s47, 0x33, s47')
        e('s_lshl_b32 s47, s47, 31')
    if o.mtouch:
        e('v_min_u32 v8, 39, v1')
        e('v_lshrrev_b32 v9, 2, v8')
        e(f's_mul_i32 s46, s{WAVE}, 10')
        e('v_add_u32 v9, s46, v9')
        e(f'v_mul_u32_u24 v9, {4*1152}, v9')
        e('v_and_b32 v8, 3, v8')
        e('v_mul_u32_u24 v8, 92, v8')
        e(f's_and_b32 s46, s{NB}, 3')
        e('s_mul_i32 s46, s46, 1152')
        e(f's_add_u32 s46, s46, s{XB}')
        e('v_add3_u32 v9, v9, v8, s46')
        if o.tskip: e('v_or_b32 v9, s47, v9')
    if o.mtouch == 2: etouch()
    for k in range(o.opre): odma(k)
    e('s_barrier')
    stamp(1)
    if o.mtouch == 3: etouch()
    for k in range(o.opre, 12):
        if k == 11:
            e(f's_cmp_lg_u32 s{WAVE}, 0')
            e('s_cbranch_scc1 L_o11')
        odma(k)
    e('L_o11:')
    if o.mtouch == 1: etouch()
    srd(e, S_WS, 12, WS_REC)
    srd(e, S_OUT, 8, 1152000, add=BOFF)
    srd(e, S_DBG, 10, 256)
    e('v_and_b32 v2, 15, v1')
    e('v_lshrrev_b32 v3, 4, v1')
    e('v_subrev_u32 v5, 4, v2')
    e('v_add_u32 v6, 8, v2')
    e('v_cmp_gt_u32 vcc, 4, v2')
    e('v_cmp_le_u32 s[46:47], 12, v2')
    e(f's_and_b32 s{TYP}, s{WAVE}, 1')
    e(f's_lshr_b32 s48, s{WAVE}, 1')
    e('v_cndmask_b32 v5, v5, v6, vcc')
    e('v_cndmask_b32 v5, v5, v2, s[46:47]')
    e('v_mul_u32_u24 v5, 9, v5')
    e('v_mul_u32_u24 v4, 288, v5')
    e('v_lshl_add_u32 v6, v3, 4, v4')
    e('v_and_b32 v7, 1, v3')
    e('v_lshl_add_u32 v7, v7, 4, v4')
    e('v_lshrrev_b32 v8, 1, v3')
    e('v_mul_u32_u24 v8, 2304, v8')
    e('v_add_u32 v7, v7, v8')
    e('v_add_u32 v7, 256, v7')
    e(f's_mul_i32 s49, s{TYP}, {X_D1}')
    e(f'v_add_u32 v{VXO}, {X_O}, v6')
    e(f'v_add_u32 v{VXOR}, {X_O}, v7')
    e(f'v_add_u32 v{VXD}, s49, v6')
    e(f'v_add_u32 v{VXDR}, s49, v7')
    e('v_lshlrev_b32 v6, 4, v1')
    e(f's_mul_i32 s49, s{WAVE}, 9216')
    e(f's_add_u32 s49, s49, {X_O}')
    e(f'v_add_u32 v{VEX}, s49, v6')
    e(f's_xor_b32 s49, s{WAVE}, 1')
    e('s_mul_i32 s49, s49, 9216')
    e(f's_add_u32 s49, s49, {X_O}')
    e(f'v_add_u32 v{VEXP}, s49, v6')
    e('v_and_b32 v8, 0x39, v1')
    e('v_bfe_u32 v9, v1, 1, 1')
    e('v_lshl_add_u32 v8, v9, 2, v8')
    e('v_bfe_u32 v9, v1, 2, 1')
    e('v_lshl_add_u32 v8, v9, 1, v8')
    e(f'v_lshlrev_b32 v{VWL}, 4, v8')
    e(f's_mul_i32 s49, s{TYP}, 576')
    e(f's_add_u32 s49, s49, s{XB}')
    e(f's_add_u32 s49, s49, {60*288}')
    e(f's_lshl_b32 s50, s{NB}, 5')
    e('s_add_u32 s49, s49, s50')
    e('s_lshl_b32 s50, s48, 4')
    e('s_add_u32 s49, s49, s50')
    e('v_mul_u32_u24 v8, 1152, v5')
    e('v_lshl_add_u32 v8, v3, 2, v8')
    e(f'v_add_u32 v{VOUT}, s49, v8')
    e(f'v_add_u32 v{VOUT+1}, 3456, v{VOUT}')
    e(f'v_add_u32 v{VOUT+2}, 6912, v{VOUT}')
    e(f's_lshl_b32 s49, s{NB}, 1')
    e('s_add_u32 s49, s49, s48')
    e('s_lshl_b32 s49, s49, 1')
    e(f's_add_u32 s49, s49, s{TYP}')
    e(f's_mul_i32 s{WSO}, s49, {NSTEP*1024}')
    e(f's_add_u32 s{WSO}, s{WSO}, {WOFF}')
    e(f's_mov_b32 s{C2L}, 0x4038aa3b'); e(f's_mov_b32 s{C2L+1}, 0x4038aa3b')
    e(f's_mov_b32 s{CNL}, 0xbfb8aa3b'); e(f's_mov_b32 s{CNL+1}, 0xbfb8aa3b')
    e(f's_mov_b32 s{C60}, 0x42700000')
    e(f'v_min_u32 v{VF}, 31, v1')
    e(f'v_lshlrev_b32 v{VF}, 7, v{VF}')
    e(f'v_min_u32 v{VF+6}, 47, v1')
    e(f'v_lshlrev_b32 v{VF+6}, 7, v{VF+6}')
    e(f'v_mov_b32 v{VF+2}, 1')
    e('s_lshl_b32 s46, s48, 2')
    e(f'v_add_u32 v{VF+5}, s46, v{VF+1}')
    e(f's_or_b32 s46, s2, s{WAVE}')
    e('v_or_b32 v2, s46, v1')
    e('v_cmp_eq_u32 vcc, 0, v2')
    e(f'v_mov_b32 v{VCL}, -16')
    e(f'v_mov_b32 v{VCL+1}, -16')
    e(f'v_mov_b32 v3, {NONCE}')
    e(f'v_cndmask_b32 v{VCL}, v{VCL}, 4, vcc')
    e(f'v_cndmask_b32 v{VCL+1}, v{VCL+1}, v3, vcc')
    e(f's_lshl_b32 s{FO}, s{TYP}, 13')
    if o.warmb:
        e(f's_cmp_eq_u32 s{TYP}, 1')
        e('s_cbranch_scc1 L_warmB')
        e('L_warmret:')
    e(f's_waitcnt vmcnt({1 if o.mtouch == 1 else 0}) lgkmcnt(0)')
    stamp(2)
    e('s_mov_b64 exec, 1')
    e(f'ds_add_u32 v{VF+1}, v{VF+2} offset:8')
    e('s_mov_b64 exec, -1')
    e(f's_add_u32 s{TAG}, s{TAG}, {TAGINC}')
    e(f'v_mov_b32 v{VF+3}, s{TAG}')
    def flagwait(tag, vaddr, back):
        e(f'L_fw{tag}:')
        if o.diag and len(tag) == 2: e(f's_add_u32 s95, s95, {1 << (5 * int(tag[1]))}')
        e(f'buffer_load_dword v{VF+4}, v{vaddr}, {sr(S_WS)}, s{FO} offen sc1')
        e(f'ds_read_b32 v{VF+7}, v{VF+1} offset:12')
        e(f's_add_u32 s{NPOLL}, s{NPOLL}, 1')
        e('s_waitcnt vmcnt(0) lgkmcnt(0)')
        e(f'v_cmp_ne_u32 vcc, v{VF+3}, v{VF+4}')
        e(f'v_readfirstlane_b32 s46, v{VF+7}')
        e('s_nop 3')
        e(f's_cbranch_vccz {back}')
        e('s_cmp_lg_u32 s46, 0')
        e(f's_cbranch_scc1 {back}')
        e(f's_cmp_lg_u32 s{NPOLL}, {o.maxpoll}')
        e(f's_cbranch_scc1 L_fw{tag}')
        e(f'v_mov_b32 v{VF+7}, 0x10000')
        e('s_mov_b64 exec, 1')
        e(f'ds_add_u32 v{VF+1}, v{VF+7} offset:4')
        e('s_mov_b64 exec, -1')
        e(f's_branch L_fw{tag}')
    if o.gate:
        e('L_gate:')
        e(f'ds_read_b32 v{VF+4}, v{VF+1} offset:8')
        e('s_waitcnt lgkmcnt(0)')
        e(f'v_cmp_gt_u32 vcc, 0x400, v{VF+4}')
        e('s_nop 4')
        e('s_cbranch_vccz L_gate2')
        e('s_sleep 1')
        e('s_branch L_gate')
        e('L_gate2:')
    flagwait('0', VF, 'L_go')
    e('L_go:')
    stamp(3)
    e('L_gw:')
    e(f'ds_read_b32 v{VF+4}, v{VF+1} offset:8')
    e('s_waitcnt lgkmcnt(0)')
    e(f'v_and_b32 v{VF+4}, 0xff, v{VF+4}')
    e(f'v_cmp_ne_u32 vcc, 4, v{VF+4}')
    e('s_nop 4')
    e('s_cbranch_vccnz L_gw')
    stamp(4)
    e(f's_setprio {o.mprio}')
    e(f's_cmp_eq_u32 s{TYP}, 1')
    e('s_cbranch_scc1 L_typeB')

    ACC = {'P': 64, 'Q': 100}
    WR, TMP = 136, 224
    XRING = [200 + 4 * i for i in range(6)]
    XWIN = [4 + 4 * i for i in range(6)] + [240 + 4 * i for i in range(4)]
    VC = 28
    PF = o.pf
    GT = 98
    wflags = ' sc1' if o.wsc1 else ''
    for typ, S in enumerate(streams()):
        if typ == 1:
            e('.p2align 6')
            if o.warmb: e('L_warmB:'); e('s_branch L_warmret')
            e('L_typeB:')
        ops = []
        vstart = {}
        lastv = GT - 1 if o.tail else NSTEP + 7
        v0 = 0
        while v0 <= lastv:
            ch = 1 if v0 < o.chfrom else min(o.chain, lastv + 1 - v0)
            n0 = len(ops)
            for j in range(8, -1, -1):
                us = range(ch) if j % 2 == 0 else range(ch - 1, -1, -1)
                first_ = [u for u in us if v0 + u - j == 0 or (0 < v0 + u - j < NSTEP and S[v0+u-j][4] == 'Q' and S[v0+u-j-1][4] == 'P')]
                if first_: us = range(ch)
                for u in us:
                    if 0 <= v0 + u - j < NSTEP: ops.append((v0 + u - j, j))
            for u in range(ch): vstart[v0 + u] = n0 + (len(ops) - n0) * u // ch
            v0 += ch
        ntail = len(ops)
        if o.tail:
            for j in range(9):
                for g in range(GT - j, NSTEP): ops.append((g, j))
        assert len(ops) == NSTEP * 9 and len(set(ops)) == len(ops)
        N = len(ops)
        def key(n):
            g, j = ops[n]
            pid, arr, ch, c, acc = S[g]
            k = (pid, arr, ch, c + j)
            if n >= ntail and g < GT: k = k + ((n,) if not o.hold else ('h',))
            return k
        first, last = {}, {}
        for n in range(N):
            first.setdefault(key(n), n); last[key(n)] = n
        wfirst, wlast = {}, {}
        for n, (g, j) in enumerate(ops):
            wfirst.setdefault(g, n); wlast[g] = n
        tasks = []
        for k, n0 in first.items():
            win = o.tail and k[2] == 'rem' and k[1] == 'D'
            la = o.xla if n0 < ntail else 6
            if win: la = 40 if k[3] < 8 else 12
            tasks.append([n0 - la, n0 - 1, 'X', k])
        for g in range(NSTEP):
            rel = -100 + g if g < o.pf0 else max(0, wfirst[g] - 9 * PF - (9 * (NSTEP - g) if g >= GT else 0) + (0 if g < GT else 36))
            tasks.append([rel, wfirst[g] - 1, 'W', g])
        def at(v, off=0): return vstart[v] + off
        firstD = min(n for n in range(N) if S[ops[n][0]][1] == 'D')
        lastO = max(n for n in range(N) if S[ops[n][0]][1] == 'O')
        lastP = {j: max(n for n in range(N) if ops[n][1] == j and S[ops[n][0]][4] == 'P') for j in range(9)}
        slow = []
        vused = set()
        def check(v, off, cnt, tag):
            tasks.append([at(v - 1, 3), at(v - 1, 8), 'L', (f'ds_read_b32 v{VC}, v{VF+1} offset:{off}', ('c', tag))])
            tasks.append([at(v, 0), at(v, 1), 'C', (f'v_cmp_ne_u32 vcc, {cnt}, v{VC}', ('c', tag))])
            tasks.append([at(v, 6), at(v, 7), 'I', [f's_cbranch_vccnz L_slow{typ}{tag}', f'L_back{typ}{tag}:']])
            slow.append((tag, off, cnt))
            vused.add(v)
            return at(v, 8)
        def add1(pos, off):
            tasks.append([pos, pos + 4, 'A', off])
        vD = [v for v in vstart if vstart[v] <= firstD - o.xla][-1] - 1
        okD = check(vD, 16, 4, 'D')
        assert okD <= firstD - o.xla
        add1(lastO, 20)
        VP = 47
        okR = check(VP, 20, 4, 'R')
        for j in range(9):
            assert lastP[j] + 12 < at(VP + 1 + j, 2)
            tasks.append([at(VP + 1 + j, 2), at(VP + 1 + j, 8), 'L', (f'ds_write_b128 v{VEX}, {vr(ACC["P"]+4*j,4)} offset:{1024*j}', ('pw', j))])
        tasks.append([at(VP + 10, 0), at(VP + 10, 4), 'A', 'pair'])
        VQ = VP + 13
        okP = check(VQ, 'pair', 2, 'P')
        for j in range(9):
            tasks.append([at(VQ + 1 + j, 2), at(VQ + 1 + j, 8), 'L', (f'ds_read_b128 {vr(TMP+4*(j&1),4)}, v{VEXP} offset:{1024*j}', ('pr', j))])
            v = VQ + 2 + j
            pos = at(v, 8 - (j + 2) - 1) if j <= 6 else at(v, 8 - (j - 7) - 1)
            sh = 1 if j >= 7 else 0
            if o.chain > 1:
                own = [n for n in range(N) if ops[n][1] == j]
                pos = [a_ + 10 for a_, b_ in zip(own, own[1:]) if b_ - a_ >= 14 and a_ + 9 >= at(v, 0) ][0]
                sh = 0
                tasks[-1][0] = pos - 9; tasks[-1][1] = pos - 4
                tasks[-1][3] = (f'ds_read_b128 {vr(TMP+4*(j&3),4)}, v{VEXP} offset:{1024*j}', ('pr', j))
            tasks.append([pos - 1 + sh, pos - 1 + sh, 'Q', (j, 0)])
            tasks.append([pos + sh, pos + sh, 'Q', (j, 1)])
        if typ == 0:
            tasks.append([at(72, 4), at(72, 8), 'S', f'buffer_store_dword v{VCL+1}, v{VCL}, {sr(S_DBG)}, 0 offen sc1'])
            tasks.append([at(92, 4), at(92, 8), 'S', f'buffer_store_dword v{VF+3}, v{VCL+1}, {sr(S_WS)}, 0 offen sc1'])
        fslow = []
        passes = {}
        for g in range(NSTEP): passes.setdefault(S[g][0], g)
        need = [(passes[1], VF, 32 + 64 * typ), (32, VF + 6, 128), (passes[4], VF, 176), (passes[5], VF, 208), (passes[6], VF + 6, 240)]
        for ci, (gn, va, idx) in enumerate(need):
            v = gn - o.pfcs[ci] - 1
            while v in vused: v -= 1
            tasks.append([at(v - o.flead, 4), at(v - o.flead, 8), 'F', (va, idx, ci)])
            tasks.append([at(v, 0), at(v, 1), 'G', ci])
            tasks.append([at(v, 6), at(v, 7), 'I', [f's_cbranch_vccnz L_fw{typ}{ci}', f'L_fb{typ}{ci}:']])
            fslow.append((ci, va))
            assert v not in vused, v
            for t in tasks:
                if t[2] == 'W' and (t[3] >= gn): t[0] = max(t[0], at(v, 8))
        tasks.append([at(v + 1, 2), at(v + 1, 8), 'A', 4])
        if typ == 0:
            for lvl, v in enumerate(o.trig): tasks.append([at(v, 2), at(v, 8), 'P', lvl + 1])
        tasks.sort(key=lambda t: (t[0], t[1]))
        vq, lq = [], []
        dirty = [False]
        xreg, busy = {}, {}
        wn = [0]
        wr = {}
        lastw = [-100]
        BIG = [WR + 4 * i for i in range(16)] + XWIN + [ACC['P'] + 4 * i for i in range(9)]
        for i in range(9): busy[ACC['P'] + 4 * i] = at(VP + 12)
        until = {}
        if o.chain > 1:
            BIG += XRING
            for i in range(9):
                BIG.append(ACC['Q'] + 4 * i)
                until[ACC['Q'] + 4 * i] = min(n for n in range(N) if ops[n][1] == i and S[ops[n][0]][4] == 'Q') - 3
        def freeregs(n, end): return [x for x in BIG if busy.get(x, -1) <= n and end < until.get(x, 10**9)]
        def wok(t, n):
            if t[2] != 'W': return True
            if t[3] != wn[0]: return False
            free = len(freeregs(n, wlast[t[3]]))
            if t[1] - n <= 9 * 3: return free > 0
            return n - lastw[0] >= o.wgap and free > o.wres
        since = {}
        fill = []
        def em(x):
            e(x)
            if not x.endswith(':'):
                for jj in since: since[jj] += 1
        def lwait(tag):
            if tag not in lq: return
            i = lq.index(tag)
            em(f's_waitcnt lgkmcnt({0 if dirty[0] else len(lq)-1-i})')
            if dirty[0]: lq.clear(); dirty[0] = False
            else: del lq[:i + 1]
        def vwait(g):
            if g not in vq: return
            i = vq.index(g)
            em(f's_waitcnt vmcnt({len(vq)-1-i})')
            del vq[:i + 1]
        def run(t, n):
            kind, p = t[2], t[3]
            if kind == 'X':
                pool = BIG if (o.chain > 1 or p[-1] == 'h' or (p[2] == 'rem' and p[1] == 'D')) else XRING
                r = [x for x in pool if busy.get(x, -1) <= n and last[p] < until.get(x, 10**9)]
                assert r, ('no x register', p, n)
                r = min(r, key=lambda x: (until.get(x, 10**9), busy.get(x, -1)))
                busy[r] = last[p]; xreg[p] = r
                arr, ch, s_ = p[1], p[2], p[3]
                if o.nolds and n > 9 * 30: return
                if ch == 'rem': em(f'ds_read_b128 {vr(r,4)}, v{VXOR if arr == "O" else VXDR} offset:{288*s_}')
                else: em(f'ds_read_b128 {vr(r,4)}, v{VXO if arr == "O" else VXD} offset:{64*ch+288*s_}')
                lq.append(p)
            elif kind == 'W':
                g = p
                r = min(freeregs(n, wlast[g]), key=lambda x: (until.get(x, 10**9), busy.get(x, -1)))
                busy[r] = wlast[g]; wr[g] = r
                assert g == wn[0]; wn[0] += 1
                lastw[0] = n
                if o.now and g > 40: return
                if o.wsame and g > 40:
                    em(f'buffer_load_dwordx4 {vr(r,4)}, v{VWL}, {sr(S_WS)}, s{WSO} offen offset:{1024*(g%4)}{wflags}'); vq.append(g); return
                em(f'buffer_load_dwordx4 {vr(r,4)}, v{VWL}, {sr(S_WS)}, s{WSO} offen offset:{1024*(g%4)}{wflags}')
                if g % 4 == 3: em(f's_add_u32 s{WSO}, s{WSO}, 4096')
                vq.append(g)
            elif kind == 'L':
                em(p[0].replace('offset:pair', 'offset:24').replace(f'v{VF+1} offset:24', f'v{VF+5} offset:24')); lq.append(p[1])
            elif kind == 'C':
                lwait(p[1]); em(p[0])
            elif kind == 'I':
                for x in p: em(x)
            elif kind == 'A':
                em('s_mov_b64 exec, 1')
                if p == 'pair': em(f'ds_add_u32 v{VF+5}, v{VF+2} offset:24')
                else: em(f'ds_add_u32 v{VF+1}, v{VF+2} offset:{p}')
                em('s_mov_b64 exec, -1')
                lq.append(('a', p))
            elif kind == 'Q':
                p, hf = p
                lwait(('pr', p))
                q = ACC['Q'] + 4 * p; t_ = TMP + 4 * (p & (3 if o.chain > 1 else 1))
                for i in (2 * hf, 2 * hf + 1): em(f'v_add_f32 v{q+i}, v{q+i}, v{t_+i}')
            elif kind == 'S':
                em(p); vq.append(('s', n))
            elif kind == 'F':
                em(f's_mov_b32 s{FO}, {128*p[1]}')
                em(f'buffer_load_dword v{VF+4}, v{p[0]}, {sr(S_WS)}, s{FO} offen {o.fflags}'); vq.append(('f', p[2]))
            elif kind == 'G':
                vwait(('f', p)); em(f'v_cmp_ne_u32 vcc, v{VF+3}, v{VF+4}')
            elif kind == 'P':
                em(f'v_mov_b32 v{VF+7}, {p}')
                em('s_mov_b64 exec, 1')
                em(f'ds_max_u32 v{VF+1}, v{VF+7}')
                em('s_mov_b64 exec, -1')
                lq.append(('p', p))
        def epi(j, pk):
            q = ACC['Q'] + 4 * j
            t = TMP + 8 * (j & 1)
            I = []
            if pk:
                I.append(f'v_pk_mul_f32 {vr(t,2)}, {vr(q,2)}, s[{C2L}:{C2L+1}]')
                I.append(f'v_pk_mul_f32 {vr(t+2,2)}, {vr(q+2,2)}, s[{CNL}:{CNL+1}]')
            else:
                for i in (0, 1): I.append(f'v_mul_f32 v{t+i}, s{C2L}, v{q+i}')
                for i in (2, 3): I.append(f'v_mul_f32 v{t+i}, s{CNL}, v{q+i}')
            I.append(f'v_min_f32 v{t}, s{C60}, v{t}')
            I.append(f'v_min_f32 v{t+1}, s{C60}, v{t+1}')
            for i in (0, 1, 2, 3): I.append(f'v_exp_f32 v{t+i}, v{t+i}')
            if pk:
                I.append(f'v_pk_add_f32 {vr(t+4,2)}, {vr(t,2)}, 1.0 op_sel_hi:[1,0]')
                I.append(f'v_pk_add_f32 {vr(t+6,2)}, {vr(t,2)}, -1.0 op_sel_hi:[1,0]')
                I.append(f'v_pk_fma_f32 {vr(t+4,2)}, {vr(t+4,2)}, {vr(t+2,2)}, {vr(t+4,2)}')
            else:
                for i in (0, 1): I.append(f'v_add_f32 v{t+4+i}, 1.0, v{t+i}')
                for i in (0, 1): I.append(f'v_fma_f32 v{t+4+i}, v{t+4+i}, v{t+2+i}, v{t+4+i}')
            I.append(f'v_rcp_f32 v{t+4}, v{t+4}')
            I.append(f'v_rcp_f32 v{t+5}, v{t+5}')
            if pk:
                I.append('s_nop 0')
                I.append(f'v_pk_mul_f32 {vr(t+6,2)}, {vr(t+6,2)}, {vr(t+4,2)}')
            else:
                for i in (0, 1): I.append(f'v_add_f32 v{t+6+i}, -1.0, v{t+i}')
                for i in (0, 1): I.append(f'v_mul_f32 v{t+6+i}, v{t+6+i}, v{t+4+i}')
            I.append(f'v_cvt_pk_bf16_f32 v{q}, v{t+6}, v{t+7}')
            I.append(f'buffer_store_dword v{q}, v{VOUT + j//3}, {sr(S_OUT)}, 0 offen offset:{1152*(j%3)} {o.oflags if j < o.oj else ""}')
            return I
        def cost(x): return 2 if x.startswith(('v_exp', 'v_rcp', 'buffer')) else 1
        while tasks and tasks[0][0] < 0: run(tasks.pop(0), -1)
        inv = {n: v for v, n in vstart.items()}
        lastop = {j: max(n for n in range(N) if ops[n][1] == j) for j in range(9)}
        for n, (g, j) in enumerate(ops):
            if n in inv and o.padto and o.padev == 'm5' and inv[n] == o.padstep:
                e('s_memrealtime s[100:101]'); dirty[0] = True
            if n in inv and o.diag:
                v = inv[n]
                if o.diag == 2 and v in o.marks:
                    kk = o.marks.index(v)
                    e(f's_memtime s[{ST0+2*kk}:{ST0+2*kk+1}]'); dirty[0] = True
                if o.diag in (1, 4) and v == 33: stamp(5); stamp(6); dirty[0] = True
            k = key(n)
            assert k in xreg, (k, n)
            lwait(k); vwait(g)
            acc = S[g][4]
            d = ACC[acc] + 4 * j
            if g == 0: cs = '0'
            elif acc == 'Q' and S[g-1][4] == 'P': cs = vr(ACC['P'] + 4 * j, 4)
            else: cs = vr(d, 4)
            em(f'v_mfma_f32_16x16x32_bf16 {vr(d,4)}, {vr(wr[g],4)}, {vr(xreg[k],4)}, {cs}' if not o.swapab else f'v_mfma_f32_16x16x32_bf16 {vr(d,4)}, {vr(xreg[k],4)}, {vr(wr[g],4)}, {cs}')
            if n == lastop[j]: since[j] = 0
            budget = 2
            TC = {'X': 1, 'W': 2, 'L': 2, 'C': 1, 'I': 0, 'A': 1, 'Q': 2, 'S': 2, 'F': 2, 'G': 1, 'P': 2}
            while True:
                ready = [t for t in tasks if t[0] <= n and wok(t, n)]
                if not ready: break
                t = min(ready, key=lambda t: t[1])
                assert t[1] >= n, ('late', t, n)
                if TC[t[2]] > budget and t[1] > n:
                    fit = [u for u in ready if TC[u[2]] <= budget]
                    if not fit: break
                    t = min(fit, key=lambda t: t[1])
                tasks.remove(t); run(t, n); budget -= TC[t[2]]
            for jj in sorted(since):
                if 8 <= since[jj] < 10**6:
                    fill += epi(jj, False); since[jj] = 10**6
            budget += o.nfill - 2
            while fill and budget >= cost(fill[0]):
                budget -= cost(fill[0]); em(fill.pop(0))
            assert all(t[1] > n for t in tasks), ('late', n, [t for t in tasks if t[1] <= n])
        assert not tasks
        stamp(7)
        while fill: em(fill.pop(0))
        for jj in [jj for jj in sorted(since) if since[jj] < 10**6]:
            if since[jj] < 8: em(f's_nop {8-since[jj]-1}')
            for x in epi(jj, True): em(x)
        stamp(8)
        if o.padto and o.padev[0] == 'm': padloop(typ)
        if o.diag == 1:
            e('s_waitcnt vmcnt(0)')
            stamp(9)
            dump(10)
        if o.diag == 2:
            kk = len(o.marks)
            e(f's_memtime s[{ST0+2*kk}:{ST0+2*kk+1}]')
            dump(10)
        e('s_endpgm')
        for tag, off, cnt in slow:
            e(f'L_slow{typ}{tag}:')
            e(f'ds_read_b32 v{VC}, v{VF+5 if off == "pair" else VF+1} offset:{24 if off == "pair" else off}')
            e('s_waitcnt lgkmcnt(0)')
            e(f'v_cmp_ne_u32 vcc, {cnt}, v{VC}')
            e('s_nop 4')
            e(f's_cbranch_vccnz L_slow{typ}{tag}')
            e(f's_branch L_back{typ}{tag}')
        for ci, va in fslow: flagwait(f'{typ}{ci}', va, f'L_fb{typ}{ci}')

    mark['help0'] = len(e.L)
    if not o.hfirst: e('.p2align 6')
    e('L_helper:')
    role[0] = 'h'
    e(f's_setprio {o.hprio}')
    e(f's_sub_u32 s{TW0}, s{WAVE}, 4')
    e(f's_mov_b32 s{TW1}, s{WAVE}')
    e(f's_sub_u32 s{PAIR}, s2, {NPROD}')
    e(f's_cselect_b32 s{PAIR}, s2, s{PAIR}')
    e(f's_mov_b32 s{MODE}, 0')
    e(f's_mov_b32 s{NOTASK}, s2')
    e(f's_mov_b32 s{HAS3}, s{TW0}')
    e(f's_lshl_b32 s{SCRB}, s{TW0}, 12')
    e(f's_add_u32 s{SCRB}, s{SCRB}, {SCR}')
    e('L_prod:')
    T = [(28, TW0, 2, 52, 0), (36, TW1, 4, 53, 2048), (44, TW2, 6, 54, 16384)]
    c, kp, q, cc, kk, t = 46, 47, 48, 49, 50, 51
    b = TS
    e('v_mov_b32 v19, 4320')
    e('v_and_b32 v23, 3, v1')
    e('v_lshrrev_b32 v24, 3, v1')
    e('v_mul_u32_u24 v24, 576, v24')
    e('v_bfe_u32 v25, v1, 2, 1')
    e('v_mul_u32_u24 v25, 288, v25')
    e('v_add_u32 v24, v24, v25')
    for (vb, sw, vl, vs, so) in T:
        e(f'v_lshl_add_u32 v8, s{sw}, 2, v23' if sw != TW2 else 'v_add_u32 v8, 32, v23')
        e('v_cmp_le_u32 vcc, 18, v8')
        e(f'v_lshl_add_u32 v{vl}, v8, 4, v24')
        e(f'v_add_u32 v9, v{vl}, v19')
        e(f'v_cndmask_b32 v{vl}, v{vl}, v9, vcc')
    e(f's_and_b32 s{c}, s{PAIR}, 15')
    e(f's_lshr_b32 s{kp}, s{PAIR}, 4')
    e(f's_mul_i32 s{b}, s{c}, 165888')
    e(f's_mul_i32 s{t}, s{kp}, 9216')
    e(f's_add_u32 s{b}, s{b}, s{t}')
    e(f's_add_u32 s{b+1}, s{b}, 82944')
    e(f's_mov_b32 s{S_W+2}, 2571264')
    e(f's_mov_b32 s{S_W+3}, 0x20000')
    e(f's_mov_b32 s{S_WO+3}, 0x20000')
    e(f's_cmp_lg_u32 s{c}, 15')
    e(f's_cselect_b32 s{S_WO+2}, 2571264, 0')
    e(f's_mov_b32 m0, s{SCRB}')
    e('s_waitcnt lgkmcnt(0)')
    e(f's_mov_b32 s{S_W}, s6')
    e(f's_and_b32 s{S_W+1}, s7, 0xffff')
    e(f's_mov_b32 s{S_WO}, s6')
    e(f's_and_b32 s{S_WO+1}, s7, 0xffff')
    e(f's_cmp_ge_u32 s{NOTASK}, {NTASK}')
    e('s_cbranch_scc1 L_a3')
    def cond3(lbl):
        e(f's_cmp_lg_u32 s{HAS3}, 0')
        e(f's_cbranch_scc1 {lbl}')
    for ti, (vb, sw, vl, vs, so) in enumerate(T):
        if ti == 2: cond3('L_a3')
        if ti == 1: e('s_addk_i32 m0, 1024'); e('s_nop 0')
        e(f'buffer_load_dwordx4 v{vl}, {sr(S_W)}, s{b} offen lds')
        e('s_addk_i32 m0, 1024')
        e('s_nop 0')
        e(f'buffer_load_dwordx4 v{vl}, {sr(S_WO)}, s{b+1} offen lds')
        if ti == 1: e(f's_addk_i32 m0, {16384-3072}')
    e('L_a3:')
    stamp(1)
    e(f's_cmp_lg_u32 s{MODE}, 0')
    e('s_cbranch_scc1 L_a4')
    e(f's_load_dword s{TAG}, s[12:13], {NONCE}')
    e(f's_lshr_b32 s{EARLY}, 0x33, s{kp}')
    e(f's_and_b32 s{EARLY}, s{EARLY}, 1')
    e(f's_sub_u32 s{XK}, 2, s{EARLY}')
    e(f's_lshl_b32 s{t}, s{kp}, 1')
    e(f's_lshr_b32 s{YT}, {(3<<12)+(3<<14)+(3<<16)}, s{t}')
    e(f's_and_b32 s{YT}, s{YT}, 3')
    e(f's_lshr_b32 s{t}, s{kp}, 1')
    e(f's_cmp_ge_u32 s2, {NPROD}')
    e(f's_cselect_b32 s{EARLY}, 0, s{EARLY}')
    e(f's_cselect_b32 s{XK}, 3, s{XK}')
    e(f's_cselect_b32 s{YT}, s{t}, s{YT}')
    e(f's_cmp_ge_u32 s2, {NPROD+32}')
    e(f's_cselect_b32 s{XK}, 0, s{XK}')
    e(f's_cmp_ge_u32 s2, {NTASK}')
    e(f's_cselect_b32 s{YT}, 0, s{YT}')
    if not o.b0early:
        e(f's_cmp_lg_u32 s{EARLY}, 0')
        e('s_cbranch_scc1 L_a4')
    e('s_barrier')
    e('L_a4:')
    e(f's_mov_b32 s{MASK}, 0xffff0000')
    e(f's_mov_b32 s{NPOLL}, 0')
    srd(e, S_WS, 12, WS_REC)
    srd(e, S_DBG, 10, 256)
    e(f'v_mov_b32 v10, {CNT}')
    e(f'v_mov_b32 v20, {(256 - 18*2*NSTEP*1024) & 0xffffffff}')
    e(f'v_mov_b32 v26, {2*NSTEP*1024}')
    e('v_bfe_u32 v21, v1, 2, 2')
    e('v_lshlrev_b32 v21, 7, v21')
    e('v_and_b32 v22, 1, v1')
    e('v_lshl_add_u32 v21, v22, 6, v21')
    e('v_bfe_u32 v22, v1, 1, 1')
    e('v_lshl_add_u32 v21, v22, 3, v21')
    e('v_lshrrev_b32 v22, 4, v1')
    e('v_lshl_add_u32 v21, v22, 4, v21')
    e(f'v_add_u32 v21, s{SCRB}, v21')
    e('v_and_b32 v25, 15, v1')
    e('v_lshlrev_b32 v25, 4, v25')
    for (vb, sw, vl, vs, so) in T:
        e(f'v_lshl_add_u32 v8, s{sw}, 2, v22' if sw != TW2 else 'v_add_u32 v8, 32, v22')
        e('v_cmp_le_u32 vcc, 18, v8')
        e(f'v_mad_u32_u24 v{vs}, v8, v26, v25')
        e(f'v_add_u32 v9, v{vs}, v20')
        e(f'v_cndmask_b32 v{vs}, v{vs}, v9, vcc')
    e(f's_lshr_b32 s{q}, s{kp}, 1')
    e(f's_and_b32 s{cc}, s{c}, 7')
    e(f's_lshr_b32 s{kk}, s{c}, 3')
    e(f's_and_b32 s{t}, s{kp}, 1')
    e(f's_cmp_eq_u32 s{kp}, 8')
    e(f's_cselect_b32 s{cc}, s{cc}, s{c}')
    e(f's_cselect_b32 s{kk}, s{kk}, s{t}')
    e(f's_lshl_b32 s{kk}, s{kk}, 9')
    e(f's_add_u32 s{kk}, s{kk}, {WOFF}')
    e(f's_lshl_b32 s{t}, s{q}, 4')
    e(f's_add_u32 s{b+2}, s{t}, s{cc}')
    e(f's_sub_u32 s{b+3}, s{b+2}, s{q}')
    e(f's_cmp_ge_u32 s{q}, 2')
    e(f's_cselect_b32 s{b+4}, 74, 0')
    e(f's_add_u32 s{b+4}, s{b+4}, s{b+2}')
    e(f's_cmp_lt_u32 s{cc}, 2')
    e(f's_cselect_b32 s{t}, 32, 136')
    e(f's_add_u32 s{t}, s{t}, s{cc}')
    e(f's_cmp_eq_u32 s{kp}, 8')
    e(f's_cselect_b32 s{b+4}, s{t}, s{b+4}')
    e(f's_add_u32 s{b+2}, s{b+2}, 34')
    e(f's_add_u32 s{b+3}, s{b+3}, 144')
    for k in (2, 3, 4):
        e(f's_lshl_b32 s{b+k}, s{b+k}, 10')
        e(f's_add_u32 s{b+k}, s{b+k}, s{kk}')
    e(f's_cmp_eq_u32 s{kp}, 8')
    e(f's_cselect_b32 s{t}, 1, 2')
    e(f's_cmp_eq_u32 s{c}, 15')
    e(f's_cselect_b32 s{b+5}, s{t}, 0')
    e(f's_lshl_b32 s46, s{WAVE}, 2')
    e(f's_add_u32 s46, s46, {CNT+16}')
    e('v_mov_b32 v55, s46')
    e('v_mov_b32 v27, 0')
    e('v_mov_b32 v9, 4')
    e('s_waitcnt vmcnt(0) lgkmcnt(0)')
    stamp(2)
    e(f's_cmp_ge_u32 s{NOTASK}, {NTASK}')
    e('s_cbranch_scc1 L_x9')
    e(f's_cmp_lg_u32 s{WAVE}, 4')
    e('s_cbranch_scc1 L_a5')
    e('s_mov_b64 exec, 1')
    e(f'buffer_load_dword v27, v9, {sr(S_DBG)}, 0 offen sc1')
    e('s_mov_b64 exec, -1')
    e('L_a5:')
    for (vb, sw, vl, vs, so) in T:
        for tap in range(2):
            for half in range(2):
                e(f'ds_read_b64_tr_b16 {vr(vb+4*tap+2*half,2)}, v21 offset:{so+1024*tap+512*half}')
    nlab = [0]
    def st01(vb, vs):
        nlab[0] += 1
        e(f'buffer_store_dwordx4 {vr(vb,4)}, v{vs}, {sr(S_WS)}, s{b+2} offen sc1')
        e(f's_cmp_eq_u32 s{b+5}, 2')
        e(f's_cbranch_scc1 L_skip{nlab[0]}')
        e(f'buffer_store_dwordx4 {vr(vb+4,4)}, v{vs}, {sr(S_WS)}, s{b+3} offen sc1')
        e(f'L_skip{nlab[0]}:')
    def st01all(lbl):
        st01(T[0][0], T[0][3]); st01(T[1][0], T[1][3])
        cond3(lbl)
        st01(T[2][0], T[2][3])
    def dosum(vb, tb, ob):
        for i in range(8):
            e(f'v_lshlrev_b32 v{tb+2*i}, 16, v{vb+i}')
            e(f'v_and_b32 v{tb+2*i+1}, s{MASK}, v{vb+i}')
        for i in range(4):
            e(f'v_pk_add_f32 {vr(tb+2*i,2)}, {vr(tb+2*i,2)}, {vr(tb+8+2*i,2)}')
        for i in range(4):
            e(f'v_cvt_pk_bf16_f32 v{ob+i}, v{tb+2*i}, v{tb+2*i+1}')
    def ldswait(off, cmp, operand, tag, slp):
        e(f'L_lw{tag}:')
        e(f'ds_read_b32 v11, v10 offset:{off}')
        e('s_waitcnt lgkmcnt(0)')
        e('v_and_b32 v11, 0xff, v11')
        e(f'v_cmp_{cmp}_u32 vcc, {operand}, v11')
        e('s_nop 4')
        e(f's_cbranch_vccnz L_lx{tag}')
        e(f's_sleep {slp}')
        e(f's_branch L_lw{tag}')
        e(f'L_lx{tag}:')
    SO = 240
    e(f's_or_b32 s46, s{EARLY}, s{MODE}')
    e(f's_cmp_eq_u32 s{XK}, 2')
    e('s_cselect_b32 s47, 1, s46')
    e('s_cmp_eq_u32 s47, 0')
    e('s_cbranch_scc1 L_x9')
    for ti, (vb, sw, vl, vs, so) in enumerate(T):
        if ti == 2: cond3('L_x3')
        e(f's_waitcnt lgkmcnt({8-4*ti})')
        dosum(vb, 64 + 16 * ti, SO + 4 * ti)
        e('s_cmp_eq_u32 s46, 0')
        e(f's_cbranch_scc1 L_x5{ti}')
        e(f'buffer_store_dwordx4 {vr(SO+4*ti,4)}, v{vs}, {sr(S_WS)}, s{b+4} offen sc1')
        e(f'L_x5{ti}:')
    e('L_x3:')
    e(f's_cmp_eq_u32 s{MODE}, 0')
    e('s_cbranch_scc1 L_x9')
    e('L_x2:')
    e('s_waitcnt lgkmcnt(0)')
    st01all('L_x4')
    e('L_x4:')
    e(f's_cmp_eq_u32 s{MODE}, 0')
    e('s_cbranch_scc1 L_x9')
    e('s_waitcnt vmcnt(0)')
    e(f's_add_u32 s{PAIR}, s{PAIR}, 1')
    e(f's_cmp_lt_u32 s{PAIR}, {NPROD}')
    e('s_cbranch_scc1 L_prod')
    e('v_mov_b32 v11, 1')
    e('ds_write_b32 v10, v11 offset:12')
    e('s_endpgm')
    e('L_x9:')
    stamp(3)
    decode()
    e('v_subrev_u32 v4, 256, v0')
    e('v_min_u32 v4, 251, v4')
    e('v_mul_u32_u24 v3, 3641, v4')
    e('v_lshrrev_b32 v3, 16, v3')
    e('v_mul_u32_u24 v2, 18, v3')
    e('v_sub_u32 v2, v4, v2')
    e(f'v_mul_u32_u24 v3, {R}, v3')
    e(f'v_min_u32 v3, {160-R}, v3')
    e('v_mul_u32_u24 v4, 1152, v3')
    e('v_lshl_add_u32 v4, v2, 4, v4')
    e(f'v_add_u32 v12, s{XB}, v4')
    e('v_mul_u32_u24 v18, 288, v3')
    e('v_lshl_add_u32 v18, v2, 4, v18')
    e(f'v_add_u32 v19, {X_D1}, v18')
    srd(e, S_X, 4, 1152000, add=BOFF)
    e(f's_add_u32 s46, s{TAG}, {TAGINC}')
    e('v_mov_b32 v56, s46')
    e('s_lshl_b32 s46, s2, 7')
    e('v_mov_b32 v58, s46')
    e(f's_add_u32 s46, s{PAIR}, {NPROD}')
    e('s_lshl_b32 s46, s46, 7')
    e('v_mov_b32 v59, s46')
    def publish(slot, vflag, tag, first, n=0):
        e('s_mov_b64 exec, 1')
        e(f's_waitcnt vmcnt({n})')
        if first: stamp(4)
        if o.padto and tag == 'x': stamp(12)
        e('v_cmp_ne_u32 vcc, 0, v27')
        e('v_not_b32 v57, v56')
        e('s_nop 0')
        e('v_cndmask_b32 v57, v56, v57, vcc')
        e(f'ds_write_b32 v55, v57 offset:{slot}')
        e(f'ds_read_b128 v[20:23], v10 offset:{32+slot}')
        e('s_waitcnt lgkmcnt(0)')
        for i in range(4): e(f'v_xor_b32 v{20+i}, v{20+i}, v56')
        e('v_or3_b32 v20, v20, v21, v22')
        e('v_or_b32 v20, v20, v23')
        e('v_cmp_eq_u32 vcc, 0, v20')
        e('s_and_b64 exec, exec, vcc')
        e(f's_cbranch_execz L_nl{tag}')
        e(f'buffer_store_dword v56, v{vflag}, {sr(S_WS)}, 0 offen sc1')
        e(f'L_nl{tag}:')
        e('s_mov_b64 exec, -1')
    e(f's_cmp_eq_u32 s{EARLY}, 0')
    e('s_cbranch_scc1 L_noflag')
    publish(0, 58, 'x', True)
    if not o.b0early: e('s_barrier')
    e('L_noflag:')
    e(f's_setprio {o.hprio2}')
    RAW, ORAW = 64, 120
    EU = [184, 192]
    OU, DT, DO = 200, 208, 216
    xi = [0]
    NL = R + 1
    hq = []
    def eload():
        k = xi[0]
        if k >= NL: return
        a_ = 12
        if k:
            a_ = 13 + (k & 3)
            e(f'v_add_u32 v{a_}, {1152*k}, v12')
        e(f'buffer_load_dwordx4 {vr(RAW+4*k,4)}, v{a_}, {sr(S_X)}, 0 offen')
        xi[0] += 1
        hq.append(('e', k))
    if o.etouch:
        e(f's_cmp_lt_u32 s2, {NTASK}')
        e('s_cbranch_scc1 L_net')
        e(f's_and_b32 s46, s{NB}, 1')
        e(f's_mul_i32 s46, s46, {1152*6}')
        e('v_add_u32 v12, s46, v12')
        for _ in range(7): eload()
        e('v_subrev_u32 v12, s46, v12')
        e('s_waitcnt vmcnt(0)')
        e('L_net:')
        xi[0] = 0; hq.clear()
    YA = 232
    e(f's_cmp_eq_u32 s{b+5}, 2')
    e('s_cselect_b32 s46, 0x80000000, 0')
    e(f's_cmp_lg_u32 s{HAS3}, 0')
    e('s_cselect_b32 s47, 0x80000000, 0')
    e('s_or_b32 s48, s46, s47')
    for i in range(6):
        m_ = {0: None, 1: 46, 2: None, 3: 46, 4: 47, 5: 48}[i]
        e(f'v_mov_b32 v{YA+i}, v{52+i//2}' if m_ is None else f'v_or_b32 v{YA+i}, s{m_}, v{52+i//2}')
    def ystore(i, a_):
        e(f'buffer_store_dwordx4 {vr(28+4*i,4)}, v{a_}, {sr(S_WS)}, s{b+2+(i&1)} offen sc1')
        hq.append(('y', i))
    stamp(5)
    ldswait(8, 'eq', 4, 'o', 1)
    def unpack(dst, s_):
        for i in range(4):
            e(f'v_lshlrev_b32 v{dst+2*i}, 16, v{s_+i}')
            e(f'v_and_b32 v{dst+2*i+1}, s{MASK}, v{s_+i}')
    def unpackE(dst, k):
        e(f's_waitcnt vmcnt({len(hq)-1-hq.index(("e", k))})')
        unpack(dst, RAW + 4 * k)
        eload()
    def diff(eu, out):
        for i in range(8): e(f'v_sub_f32 v{DT+i}, v{eu+i}, v{OU+i}')
        for i in range(4):
            e(f'v_cvt_pk_bf16_f32 v{out+i}, v{DT+2*i}, v{DT+2*i+1}')
    def opengate():
        if not o.gate: return
        e('v_mov_b32 v11, 0x100')
        e('s_mov_b64 exec, 1')
        e('ds_add_u32 v10, v11 offset:8')
        e('s_mov_b64 exec, -1')
    def rows(hook):
        stamp(6)
        for j in range(R):
            e(f'ds_read_b128 {vr(ORAW+4*j,4)}, v18 offset:{X_O+288*j}')
        unpackE(EU[0], 0)
        e('s_waitcnt lgkmcnt(0)')
        for j in range(R):
            o0 = DO + 8 * (j & 1)
            unpack(OU, ORAW + 4 * j)
            diff(EU[j & 1], o0)
            e(f'ds_write_b128 v18, {vr(o0,4)} offset:{X_D0+288*j}')
            unpackE(EU[(j + 1) & 1], j + 1)
            diff(EU[(j + 1) & 1], o0 + 4)
            e(f'ds_write_b128 v19, {vr(o0+4,4)} offset:{288*j}')
            hook(j)
    e(f's_cmp_ge_u32 s2, {NPROD + (32 if o.d0p else 0)}')
    e('s_cbranch_scc1 L_pathA')
    e(f's_cmp_lt_u32 s{XK}, 2')
    e('s_cbranch_scc1 L_nox')
    if o.d0p:
        e(f's_cmp_eq_u32 s{XK}, 3')
        e('s_cbranch_scc1 L_xd')
    for i in range(3):
        e(f'buffer_store_dwordx4 {vr(SO+4*i,4)}, v{YA+2*i}, {sr(S_WS)}, s{b+4} offen sc1')
    if o.d0p:
        e('s_branch L_xe')
        e('L_xd:')
        for i in range(6): ystore(i, YA + i)
        e('L_xe:')
    if o.gearly:
        opengate()
        publish(0, 58, 'x2', True)
        e('s_branch L_nox2')
        e('L_nox:')
        opengate()
        e('L_nox2:')
    else:
        publish(0, 58, 'x2', True)
        e('L_nox:')
        opengate()
    hq.clear(); xi[0] = 0
    for _ in range(o.ein): eload()
    rows(lambda j: None)
    e('s_branch L_rowsdone')
    e('L_pathA:')
    if not o.d0p:
        e(f's_cmp_eq_u32 s{XK}, 3')
        e('s_cselect_b32 s47, 0, 0x80000000')
        for i in range(6): e(f'v_or_b32 v{20+i}, s47, v{YA+i}')
    hq.clear(); xi[0] = 0
    for _ in range(NL): eload()
    if not o.d0p:
        for i in range(6): ystore(i, 20 + i)
    def hookA(j):
        if j == o.grow:
            e(f's_waitcnt vmcnt({len(hq)-1-hq.index(("e", NL-1))})')
            opengate()
        if j == o.xrow and not o.d0p:
            e(f's_cmp_lg_u32 s{XK}, 3')
            e('s_cbranch_scc1 L_xp')
            publish(0, 58, 'x3', True)
            e('L_xp:')
    rows(hookA)
    e('L_rowsdone:')
    e('s_waitcnt lgkmcnt(0)')
    stamp(7)
    e('v_mov_b32 v11, 1')
    e('s_mov_b64 exec, 1')
    e('ds_add_u32 v10, v11 offset:16')
    e('s_mov_b64 exec, -1')
    e(f's_cmp_eq_u32 s{YT}, 0')
    e('s_cbranch_scc1 L_noy')
    e(f's_setprio {o.hprio}')
    e('L_yw:')
    e('ds_read_b64 v[20:21], v10')
    e('s_waitcnt lgkmcnt(0)')
    e('v_lshrrev_b32 v21, 14, v21')
    e('v_and_b32 v21, -4, v21')
    e('v_or_b32 v20, v20, v21')
    e(f'v_cmp_le_u32 vcc, s{YT}, v20')
    e('s_nop 4')
    e('s_cbranch_vccnz L_yx')
    e('s_sleep 4')
    e('s_branch L_yw')
    e('L_yx:')
    for i in range(6):
        ystore(i, YA + i)
        e(f's_waitcnt vmcnt({o.ythr})')
    publish(16, 59, 'y', False)
    if o.diag == 1: stamp(8)
    e('L_noy:')
    e(f's_cmp_lg_u32 s{WAVE}, 4')
    e('s_cbranch_scc1 L_hend')
    e('L_guard:')
    e('ds_read_b32 v11, v10 offset:4')
    e('s_waitcnt lgkmcnt(0)')
    e('v_readfirstlane_b32 s46, v11')
    e('s_nop 3')
    e('s_cmp_eq_u32 s46, 4')
    e('s_cbranch_scc1 L_hend')
    e('s_cmp_lt_u32 s46, 0x10000')
    e('s_cbranch_scc0 L_rescue')
    e('s_sleep 16')
    e('s_branch L_guard')
    e('L_rescue:')
    e(f's_mov_b32 s{MODE}, 1')
    e(f's_mov_b32 s{HAS3}, 1')
    e(f's_mov_b32 s{NOTASK}, 0')
    e(f's_lshr_b32 s{TW0}, s{NB}, 1')
    e(f's_add_u32 s{TW1}, s{NB}, 9')
    e(f's_lshr_b32 s{TW1}, s{TW1}, 1')
    e(f's_mov_b32 s{PAIR}, 0')
    e('s_branch L_prod')
    e('L_hend:')
    if o.padto and o.padev[0] == 'h': padloop('h')
    if o.diag == 1:
        stamp(9)
        dump(10)
    e('L_end:')
    e('s_endpgm')
    if o.hfirst:
        m0, h0 = mark['main0'], mark['help0']
        e.L = e.L[:m0] + e.L[h0:] + ['.p2align 6'] + e.L[m0:h0]
    e('L_codeend:')
    e('.section .rodata,"a"')
    e('.p2align 6')
    e(f'.amdhsa_kernel {KN}')
    for x in ['next_free_vgpr 256', 'next_free_sgpr 102', 'accum_offset 256', 'group_segment_fixed_size 0', 'kernarg_size 40',
              'user_sgpr_count 2', 'user_sgpr_kernarg_segment_ptr 1', 'system_sgpr_workgroup_id_x 1']:
        e('  .amdhsa_' + x)
    e('.end_amdhsa_kernel')
    n = haz.check(e.L)
    if n: print(f'{n} hazards', file=sys.stderr)
    return f'; @launch grid=({NWG},1,1) block=(512,1,1) lds={LDS_BYTES}\n' + e.text()

def opts(argv=None):
    ap = argparse.ArgumentParser()
    ap.add_argument('-o', default='k.s')
    for nm, d in [('diag', 0), ('pf', 16), ('pf0', 8), ('wgap', 4), ('wres', 4), ('wsc1', 0), ('nfill', 2), ('fstride', 128), ('sleep', 0), ('maxpoll', 3000), ('nopoll', 0),
                  ('hprio', 3), ('hprio2', 0), ('mprio', 2), ('epre', 0), ('ein', 7), ('dpre', 7), ('b0early', 0), ('mtouch', 3), ('gate', 1), ('swapab', 0), ('d0p', 1), ('map', 1), ('chain', 4), ('tskip', 1), ('gearly', 0), ('chfrom', 8), ('oj', 9), ('nolds', 0), ('now', 0), ('wsame', 0), ('grow', 1), ('vbd', 33), ('nopk', 1), ('padto', 0), ('npdelay', 0), ('opre', 0), ('etouch', 0), ('orev', 1), ('b0late', 1), ('dec', 1), ('tail', 1), ('xla', 9), ('hold', 1), ('prest', 0), ('xslot', 0), ('noclosed', 0), ('cpf', 1), ('hfirst', 1), ('warmb', 1), ('wsfirst', 0), ('flead', 6), ('ythr', 6), ('xrow', 3), ('padstep', 33), ('probe', 0), ('probeoff', 0x4000000)]:
        ap.add_argument('--' + nm, type=int, default=d)
    ap.add_argument('--oflags', default='')
    ap.add_argument('--pmap', default='18,18,18,18,18,18,18,18')
    ap.add_argument('--padev', default='m0')
    ap.add_argument('--trig', default='10,25,40')
    ap.add_argument('--yrow', default='0,7,2,9,5,11')
    ap.add_argument('--pfcs', default='4,5,5,8,8')
    ap.add_argument('--fflags', default='')
    ap.add_argument('--marks', default='0,4,8,12,16,24,33,47,58')
    o = ap.parse_args(argv)
    o.marks = [int(x) for x in o.marks.split(',')]
    o.yrow = [int(x) for x in o.yrow.split(',')]
    o.pfcs = [int(x) for x in o.pfcs.split(',')]
    o.trig = [int(x) for x in o.trig.split(',')]
    return o

if __name__ == '__main__':
    o = opts()
    open(o.o, 'w').write(gen(o))
```

```python
import re, sys, argparse
import haz

KN = 'standalone__autoregressive_conv_wavernn__speech_kernel'
NWG = 252
NPROD = 144
ARR = 160 * 288
X_D0, X_O, X_D1 = 0, ARR, 2 * ARR
CNT = 3 * ARR
SCR = CNT + 64
LDS_BYTES = SCR + 18432
NSTEP = 106
WOFF = int(__import__('os').environ.get('WOFF', '0x100000'), 0)
NONCE = 0x10000
DIAG = 0x800000
WS_REC = max(0x1000000, WOFF + 0x400000, int(__import__('os').environ.get('WSREC', '0'), 0))
TAGINC = 0x9E3779B9
R = 12

class Em:
    def __init__(self): self.L = []
    def __call__(self, s): self.L.append(s)
    def text(self): return '\n'.join(self.L) + '\n'

def vr(a, n=1): return f'v{a}' if n == 1 else f'v[{a}:{a+n-1}]'
def sr(a, n=4): return f's[{a}:{a+n-1}]'

def streams():
    out = []
    for typ in (0, 1):
        S = []
        pid = [0]
        def add(arr, chunk, cs, acc):
            for c in cs: S.append((pid[0], arr, chunk, c, acc))
            pid[0] += 1
        if typ == 0:
            add('O', 0, range(16), 'P'); add('O', 1, range(16), 'P'); add('O', 'rem', range(0, 2), 'P')
            for q in range(4): add('D', q, range(16), 'Q')
            add('D', 'rem', range(8), 'Q')
        else:
            add('O', 2, range(16), 'P'); add('O', 3, range(16), 'P'); add('O', 'rem', range(2, 8), 'P')
            for q in range(4): add('D', q, range(15), 'Q')
            add('D', 'rem', range(8), 'Q')
        assert len(S) == NSTEP
        out.append(S)
    return out

S_X, S_W, S_WO, S_WS, S_OUT, S_DBG = 20, 24, 28, 32, 36, 40
WAVE, NB, BAT, PAR, MB, BOFF = 14, 15, 16, 17, 18, 19
PAIR0 = 3
XB = 52
MASK = 53
TW0, TW1, TW2, PAIR, HAS3, MODE, SCRB, TAG, LAST, NPOLL = 44, 45, 54, 55, 56, 57, 58, 59, 60, 61
TS = 62
TYP, WSO = 68, 69
EARLY, XK, YT, FIDX = 90, 91, 92, 93
NOTASK = 94
NTASK = NPROD + 96
FO = 97
C2L, CNL, C60 = 90, 92, 94
ST0 = 70

def srd(e, d, ptr, rec, add=None):
    if add is None:
        e(f's_mov_b32 s{d}, s{ptr}')
        e(f's_and_b32 s{d+1}, s{ptr+1}, 0xffff')
    else:
        e(f's_add_u32 s{d}, s{ptr}, s{add}')
        e(f's_addc_u32 s{d+1}, s{ptr+1}, 0')
        e(f's_and_b32 s{d+1}, s{d+1}, 0xffff')
    e(f's_mov_b32 s{d+2}, {rec}')
    e(f's_mov_b32 s{d+3}, 0x20000')

def gen(o):
    e = Em()
    role = ['m']
    def padloop(tag):
        e(f'L_pad{tag}:')
        e('s_memrealtime s[98:99]')
        e('s_waitcnt lgkmcnt(0)')
        e('s_sub_u32 s98, s98, s100')
        e(f's_cmp_lt_u32 s98, {o.padto}')
        e(f's_cbranch_scc1 L_pad{tag}')
    def stamp(k, lvl=1):
        if o.padto and lvl == 1 and o.padev == f'{role[0]}{k}':
            e('s_memrealtime s[100:101]'); e('s_waitcnt lgkmcnt(0)')
        if o.diag == lvl or (o.diag == 4 and lvl == 1): e(f's_memrealtime s[{ST0+2*k}:{ST0+2*k+1}]')
    def dump(nst):
        e('s_waitcnt lgkmcnt(0)')
        e('v_mov_b32 v250, 0')
        for k in range(nst): e(f'v_writelane_b32 v250, s{ST0+2*k}, {k}')
        e(f'v_writelane_b32 v250, s{NPOLL}, 13')
        e(f'v_writelane_b32 v250, s95, 12')
        e(f'v_writelane_b32 v250, s2, 14')
        e('s_getreg_b32 s46, hwreg(HW_REG_XCC_ID)')
        e('v_writelane_b32 v250, s46, 15')
        e(f's_lshl_b32 s46, s2, 3'); e(f's_add_u32 s46, s46, s{WAVE}'); e('s_lshl_b32 s46, s46, 6'); e(f's_add_u32 s46, s46, {DIAG}')
        e('v_lshl_add_u32 v251, v1, 2, s46')
        e('s_mov_b64 exec, 0xffff')
        e(f'buffer_store_dword v250, v251, {sr(S_WS)}, 0 offen')
        e('s_mov_b64 exec, -1')

    e('.amdgcn_target "amdgcn-amd-amdhsa--gfx950"')
    e('.text')
    e(f'.globl {KN}')
    e('.p2align 8')
    e(f'.type {KN},@function')
    e(f'{KN}:')
    e(f's_cmp_ge_u32 s2, {NWG}')
    e('s_cbranch_scc1 L_end')
    stamp(0)
    if o.padto and o.padev != 'm0': e('s_memrealtime s[100:101]')
    e('s_load_dwordx4 s[4:7], s[0:1], 0')
    e('s_load_dwordx4 s[8:11], s[0:1], 16')
    e('s_load_dwordx2 s[12:13], s[0:1], 32')
    e('v_lshrrev_b32 v2, 6, v0')
    e('v_and_b32 v1, 63, v0')
    e(f'v_readfirstlane_b32 s{WAVE}, v2')
    def decode():
        e('s_and_b32 s44, s2, 7')
        e('s_lshr_b32 s45, s2, 3')
        e('s_mul_i32 s46, s44, 31')
        e('s_min_u32 s44, s44, 4')
        e('s_add_u32 s46, s46, s44')
        e('s_add_u32 s46, s46, s45')
        if o.map == 0:
            e('s_mul_hi_u32 s47, s46, 68174085')
            e('s_mul_i32 s48, s47, 63')
            e('s_sub_u32 s48, s46, s48')
            e(f's_mul_hi_u32 s{NB}, s48, 613566757')
            e(f's_mul_i32 s49, s{NB}, 7')
            e('s_sub_u32 s49, s48, s49')
            e('s_mul_i32 s47, s47, 7')
            e('s_add_u32 s47, s47, s49')
        elif o.map == 1:
            e('s_mul_hi_u32 s47, s46, 477218589')
            e('s_mul_i32 s48, s47, 9')
            e(f's_sub_u32 s{NB}, s46, s48')
        else:
            e('s_mul_hi_u32 s47, s46, 34087043')
            e('s_mul_i32 s48, s47, 126')
            e('s_sub_u32 s48, s46, s48')
            e(f's_mul_hi_u32 s{NB}, s48, 306783379')
            e(f's_mul_i32 s49, s{NB}, 14')
            e('s_sub_u32 s49, s48, s49')
            e('s_mul_i32 s47, s47, 14')
            e('s_add_u32 s47, s47, s49')
        e(f's_and_b32 s{PAR}, s47, 1')
        e('s_lshr_b32 s47, s47, 1')
        e('s_cmp_ge_u32 s47, 7')
        e(f's_cselect_b32 s{BOFF}, 1152000, 0')
        e('s_cselect_b32 s48, 7, 0')
        e(f's_sub_u32 s{MB}, s47, s48')
        e(f's_mul_i32 s{XB}, s{MB}, 576')
        e(f's_add_u32 s{XB}, s{XB}, s{PAR}')
        e(f's_sub_u32 s{XB}, s{XB}, 60')
        e(f's_mul_i32 s{XB}, s{XB}, 288')
    e(f's_cmp_ge_u32 s{WAVE}, 4')
    e('s_cbranch_scc1 L_helper')
    if o.cpf:
        e('s_lshr_b32 s44, s2, 3')
        e(f's_lshl_b32 s45, s{WAVE}, 5')
        e('s_add_u32 s44, s44, s45')
        e('s_sub_u32 s44, s44, 26')
        e('s_cmp_ge_u32 s44, 5')
        e('s_cbranch_scc1 L_main')
        e('s_getpc_b64 s[46:47]')
        e('L_pc:')
        e('s_lshl_b32 s44, s44, 13')
        e('v_lshl_add_u32 v2, v1, 7, s44')
        e('v_min_u32 v2, L_codeend-L_pc-4, v2')
        e('global_load_dword v63, v2, s[46:47]')
    if o.hfirst: e('s_branch L_main')
    mark = {'main0': len(e.L)}
    e('L_main:')
    e(f's_mov_b32 s{MASK}, 0xffff0000')
    e(f's_mov_b32 s{NPOLL}, 0')
    if o.diag: e('s_mov_b32 s95, 0')
    decode()

    VXO, VXOR, VXD, VXDR, VWL, VEX, VEXP, VOUT = 30, 31, 32, 33, 34, 35, 36, 37
    VF = 40
    VA = 48
    VCL = 60
    e('v_mul_u32_u24 v3, 3641, v0')
    e('v_lshrrev_b32 v3, 16, v3')
    e('v_mul_u32_u24 v2, 18, v3')
    e('v_sub_u32 v2, v0, v2')
    e('v_mul_u32_u24 v3, 1152, v3')
    e('v_lshl_add_u32 v3, v2, 4, v3')
    e(f's_add_u32 s46, s{XB}, 576')
    e(f'v_add_u32 v{VA}, s46, v3')
    e('v_mov_b32 v5, 16192')
    e('v_mov_b32 v6, 17056')
    for k in range(1, 12):
        e('v_cmp_le_u32 vcc, 14, v2')
        e('v_add_u32 v3, 4, v2')
        e('v_subrev_u32 v4, 14, v2')
        e('v_cndmask_b32 v7, v5, v6, vcc')
        e('v_cndmask_b32 v2, v3, v4, vcc')
        e(f'v_add_u32 v{VA+k}, v{VA+k-1}, v7')
    e(f's_lshl_b32 s50, s{WAVE}, 10')
    e(f's_add_u32 s50, s50, {X_O}')
    e(f's_add_u32 s51, s50, {4096*11}')
    e('s_movk_i32 s49, 4096')
    if o.orev:
        e(f's_bitcmp0_b32 s{NB}, 0')
        e('s_cbranch_scc1 L_fwd')
        for k in range(5): e(f'v_swap_b32 v{VA+k}, v{VA+10-k}')
        e(f's_add_u32 s50, s50, {4096*10}')
        e('s_movk_i32 s49, -4096')
        e('L_fwd:')
    e(f'v_mov_b32 v{VF+1}, {CNT}')
    for r in range(4, 8): e(f'v_mov_b32 v{r}, 0')
    e(f'ds_write_b128 v{VF+1}, v[4:7]')
    e(f'ds_write_b128 v{VF+1}, v[4:7] offset:16')
    e('s_waitcnt lgkmcnt(0)')
    e(f's_load_dword s{TAG}, s[12:13], {NONCE}')
    srd(e, S_X, 4, 1152000, add=BOFF)
    def odma(k):
        e(f's_mov_b32 m0, s{51 if k == 11 else 50}')
        e('s_add_u32 s50, s50, s49')
        e(f'buffer_load_dwordx4 v{VA+k}, {sr(S_X)}, 0 offen lds')
    def etouch():
        e(f'buffer_load_dword v62, v9, {sr(S_X)}, 0 offen')
    if o.mtouch and o.tskip:
        e('s_lshr_b32 s47, s2, 4')
        e('s_lshr_b32 s47, 0x33, s47')
        e('s_lshl_b32 s47, s47, 31')
    if o.mtouch:
        e('v_min_u32 v8, 39, v1')
        e('v_lshrrev_b32 v9, 2, v8')
        e(f's_mul_i32 s46, s{WAVE}, 10')
        e('v_add_u32 v9, s46, v9')
        e(f'v_mul_u32_u24 v9, {4*1152}, v9')
        e('v_and_b32 v8, 3, v8')
        e('v_mul_u32_u24 v8, 92, v8')
        e(f's_and_b32 s46, s{NB}, 3')
        e('s_mul_i32 s46, s46, 1152')
        e(f's_add_u32 s46, s46, s{XB}')
        e('v_add3_u32 v9, v9, v8, s46')
        if o.tskip: e('v_or_b32 v9, s47, v9')
    if o.mtouch == 2: etouch()
    for k in range(o.opre): odma(k)
    e('s_barrier')
    stamp(1)
    if o.mtouch == 3: etouch()
    for k in range(o.opre, 12):
        if k == 11:
            e(f's_cmp_lg_u32 s{WAVE}, 0')
            e('s_cbranch_scc1 L_o11')
        odma(k)
    e('L_o11:')
    if o.mtouch == 1: etouch()
    srd(e, S_WS, 12, WS_REC)
    srd(e, S_OUT, 8, 1152000, add=BOFF)
    srd(e, S_DBG, 10, 256)
    e('v_and_b32 v2, 15, v1')
    e('v_lshrrev_b32 v3, 4, v1')
    e('v_subrev_u32 v5, 4, v2')
    e('v_add_u32 v6, 8, v2')
    e('v_cmp_gt_u32 vcc, 4, v2')
    e('v_cmp_le_u32 s[46:47], 12, v2')
    e(f's_and_b32 s{TYP}, s{WAVE}, 1')
    e(f's_lshr_b32 s48, s{WAVE}, 1')
    e('v_cndmask_b32 v5, v5, v6, vcc')
    e('v_cndmask_b32 v5, v5, v2, s[46:47]')
    e('v_mul_u32_u24 v5, 9, v5')
    e('v_mul_u32_u24 v4, 288, v5')
    e('v_lshl_add_u32 v6, v3, 4, v4')
    e('v_and_b32 v7, 1, v3')
    e('v_lshl_add_u32 v7, v7, 4, v4')
    e('v_lshrrev_b32 v8, 1, v3')
    e('v_mul_u32_u24 v8, 2304, v8')
    e('v_add_u32 v7, v7, v8')
    e('v_add_u32 v7, 256, v7')
    e(f's_mul_i32 s49, s{TYP}, {X_D1}')
    e(f'v_add_u32 v{VXO}, {X_O}, v6')
    e(f'v_add_u32 v{VXOR}, {X_O}, v7')
    e(f'v_add_u32 v{VXD}, s49, v6')
    e(f'v_add_u32 v{VXDR}, s49, v7')
    e('v_lshlrev_b32 v6, 4, v1')
    e(f's_mul_i32 s49, s{WAVE}, 9216')
    e(f's_add_u32 s49, s49, {X_O}')
    e(f'v_add_u32 v{VEX}, s49, v6')
    e(f's_xor_b32 s49, s{WAVE}, 1')
    e('s_mul_i32 s49, s49, 9216')
    e(f's_add_u32 s49, s49, {X_O}')
    e(f'v_add_u32 v{VEXP}, s49, v6')
    e('v_and_b32 v8, 0x39, v1')
    e('v_bfe_u32 v9, v1, 1, 1')
    e('v_lshl_add_u32 v8, v9, 2, v8')
    e('v_bfe_u32 v9, v1, 2, 1')
    e('v_lshl_add_u32 v8, v9, 1, v8')
    e(f'v_lshlrev_b32 v{VWL}, 4, v8')
    e(f's_mul_i32 s49, s{TYP}, 576')
    e(f's_add_u32 s49, s49, s{XB}')
    e(f's_add_u32 s49, s49, {60*288}')
    e(f's_lshl_b32 s50, s{NB}, 5')
    e('s_add_u32 s49, s49, s50')
    e('s_lshl_b32 s50, s48, 4')
    e('s_add_u32 s49, s49, s50')
    e('v_mul_u32_u24 v8, 1152, v5')
    e('v_lshl_add_u32 v8, v3, 2, v8')
    e(f'v_add_u32 v{VOUT}, s49, v8')
    e(f'v_add_u32 v{VOUT+1}, 3456, v{VOUT}')
    e(f'v_add_u32 v{VOUT+2}, 6912, v{VOUT}')
    e(f's_lshl_b32 s49, s{NB}, 1')
    e('s_add_u32 s49, s49, s48')
    e('s_lshl_b32 s49, s49, 1')
    e(f's_add_u32 s49, s49, s{TYP}')
    e(f's_mul_i32 s{WSO}, s49, {NSTEP*1024}')
    e(f's_add_u32 s{WSO}, s{WSO}, {WOFF}')
    e(f's_mov_b32 s{C2L}, 0x4038aa3b'); e(f's_mov_b32 s{C2L+1}, 0x4038aa3b')
    e(f's_mov_b32 s{CNL}, 0xbfb8aa3b'); e(f's_mov_b32 s{CNL+1}, 0xbfb8aa3b')
    e(f's_mov_b32 s{C60}, 0x42700000')
    e(f'v_min_u32 v{VF}, 31, v1')
    e(f'v_lshlrev_b32 v{VF}, 7, v{VF}')
    e(f'v_min_u32 v{VF+6}, 47, v1')
    e(f'v_lshlrev_b32 v{VF+6}, 7, v{VF+6}')
    e(f'v_mov_b32 v{VF+2}, 1')
    e('s_lshl_b32 s46, s48, 2')
    e(f'v_add_u32 v{VF+5}, s46, v{VF+1}')
    e(f's_or_b32 s46, s2, s{WAVE}')
    e('v_or_b32 v2, s46, v1')
    e('v_cmp_eq_u32 vcc, 0, v2')
    e(f'v_mov_b32 v{VCL}, -16')
    e(f'v_mov_b32 v{VCL+1}, -16')
    e(f'v_mov_b32 v3, {NONCE}')
    e(f'v_cndmask_b32 v{VCL}, v{VCL}, 4, vcc')
    e(f'v_cndmask_b32 v{VCL+1}, v{VCL+1}, v3, vcc')
    e(f's_lshl_b32 s{FO}, s{TYP}, 13')
    if o.warmb:
        e(f's_cmp_eq_u32 s{TYP}, 1')
        e('s_cbranch_scc1 L_warmB')
        e('L_warmret:')
    e(f's_waitcnt vmcnt({1 if o.mtouch == 1 else 0}) lgkmcnt(0)')
    stamp(2)
    e('s_mov_b64 exec, 1')
    e(f'ds_add_u32 v{VF+1}, v{VF+2} offset:8')
    e('s_mov_b64 exec, -1')
    e(f's_add_u32 s{TAG}, s{TAG}, {TAGINC}')
    e(f'v_mov_b32 v{VF+3}, s{TAG}')
    def flagwait(tag, vaddr, back):
        e(f'L_fw{tag}:')
        if o.diag and len(tag) == 2: e(f's_add_u32 s95, s95, {1 << (5 * int(tag[1]))}')
        e(f'buffer_load_dword v{VF+4}, v{vaddr}, {sr(S_WS)}, s{FO} offen sc1')
        e(f'ds_read_b32 v{VF+7}, v{VF+1} offset:12')
        e(f's_add_u32 s{NPOLL}, s{NPOLL}, 1')
        e('s_waitcnt vmcnt(0) lgkmcnt(0)')
        e(f'v_cmp_ne_u32 vcc, v{VF+3}, v{VF+4}')
        e(f'v_readfirstlane_b32 s46, v{VF+7}')
        e('s_nop 3')
        e(f's_cbranch_vccz {back}')
        e('s_cmp_lg_u32 s46, 0')
        e(f's_cbranch_scc1 {back}')
        e(f's_cmp_lg_u32 s{NPOLL}, {o.maxpoll}')
        e(f's_cbranch_scc1 L_fw{tag}')
        e(f'v_mov_b32 v{VF+7}, 0x10000')
        e('s_mov_b64 exec, 1')
        e(f'ds_add_u32 v{VF+1}, v{VF+7} offset:4')
        e('s_mov_b64 exec, -1')
        e(f's_branch L_fw{tag}')
    if o.gate:
        e('L_gate:')
        e(f'ds_read_b32 v{VF+4}, v{VF+1} offset:8')
        e('s_waitcnt lgkmcnt(0)')
        e(f'v_cmp_gt_u32 vcc, 0x400, v{VF+4}')
        e('s_nop 4')
        e('s_cbranch_vccz L_gate2')
        e('s_sleep 1')
        e('s_branch L_gate')
        e('L_gate2:')
    flagwait('0', VF, 'L_go')
    e('L_go:')
    stamp(3)
    e('L_gw:')
    e(f'ds_read_b32 v{VF+4}, v{VF+1} offset:8')
    e('s_waitcnt lgkmcnt(0)')
    e(f'v_and_b32 v{VF+4}, 0xff, v{VF+4}')
    e(f'v_cmp_ne_u32 vcc, 4, v{VF+4}')
    e('s_nop 4')
    e('s_cbranch_vccnz L_gw')
    stamp(4)
    e(f's_setprio {o.mprio}')
    e(f's_cmp_eq_u32 s{TYP}, 1')
    e('s_cbranch_scc1 L_typeB')

    ACC = {'P': 64, 'Q': 100}
    WR, TMP = 136, 224
    XRING = [200 + 4 * i for i in range(6)]
    XWIN = [4 + 4 * i for i in range(6)] + [240 + 4 * i for i in range(4)]
    VC = 28
    PF = o.pf
    GT = 98
    wflags = ' sc1' if o.wsc1 else ''
    for typ, S in enumerate(streams()):
        if typ == 1:
            e('.p2align 6')
            if o.warmb: e('L_warmB:'); e('s_branch L_warmret')
            e('L_typeB:')
        ops = []
        vstart = {}
        lastv = o.vt - 1
        v0 = 0
        while v0 <= lastv:
            ch = 1 if v0 < o.chfrom else min(o.chain, lastv + 1 - v0)
            n0 = len(ops)
            for j in range(8, -1, -1):
                us = range(ch) if j % 2 == 0 else range(ch - 1, -1, -1)
                first_ = [u for u in us if v0 + u - j == 0 or (0 < v0 + u - j < NSTEP and S[v0+u-j][4] == 'Q' and S[v0+u-j-1][4] == 'P')]
                if first_: us = range(ch)
                for u in us:
                    if 0 <= v0 + u - j < NSTEP: ops.append((v0 + u - j, j))
            for u in range(ch): vstart[v0 + u] = n0 + (len(ops) - n0) * u // ch
            v0 += ch
        ntail = len(ops)
        if o.tail:
            for j in range(9):
                for g in range(o.vt - j, NSTEP): ops.append((g, j))
        assert len(ops) == NSTEP * 9 and len(set(ops)) == len(ops)
        N = len(ops)
        def key(n):
            g, j = ops[n]
            pid, arr, ch, c, acc = S[g]
            k = (pid, arr, ch, c + j)
            if n >= ntail and g < GT: k = k + ((n,) if not o.hold else ('h',))
            return k
        first, last = {}, {}
        for n in range(N):
            first.setdefault(key(n), n); last[key(n)] = n
        wfirst, wlast = {}, {}
        for n, (g, j) in enumerate(ops):
            wfirst.setdefault(g, n); wlast[g] = n
        tasks = []
        for k, n0 in first.items():
            win = o.tail and k[2] == 'rem' and k[1] == 'D'
            la = o.xla if n0 < ntail else 6
            if n0 >= ntail and ops[n0][1] == 0: la = o.tla
            elif win: la = 12
            tasks.append([n0 - la, n0 - 1, 'X', k])
        for g in range(NSTEP):
            rel = -100 + g if g < o.pf0 else max(0, wfirst[g] - 9 * PF)
            tasks.append([rel, wfirst[g] - 1, 'W', g])
        def at(v, off=0): return vstart[v] + off
        firstD = min(n for n in range(N) if S[ops[n][0]][1] == 'D')
        lastO = max(n for n in range(N) if S[ops[n][0]][1] == 'O')
        lastP = {j: max(n for n in range(N) if ops[n][1] == j and S[ops[n][0]][4] == 'P') for j in range(9)}
        slow = []
        vused = set()
        def check(v, off, cnt, tag):
            tasks.append([at(v - 1, 3), at(v - 1, 8), 'L', (f'ds_read_b32 v{VC}, v{VF+1} offset:{off}', ('c', tag))])
            tasks.append([at(v, 0), at(v, 1), 'C', (f'v_cmp_ne_u32 vcc, {cnt}, v{VC}', ('c', tag))])
            tasks.append([at(v, 6), at(v, 7), 'I', [f's_cbranch_vccnz L_slow{typ}{tag}', f'L_back{typ}{tag}:']])
            slow.append((tag, off, cnt))
            vused.add(v)
            return at(v, 8)
        def add1(pos, off):
            tasks.append([pos, pos + 4, 'A', off])
        vD = [v for v in vstart if vstart[v] <= firstD - o.xla][-1] - 1
        okD = check(vD, 16, 4, 'D')
        assert okD <= firstD - o.xla
        add1(lastO, 20)
        VP = 47
        okR = check(VP, 20, 4, 'R')
        for j in range(9):
            assert lastP[j] + 12 < at(VP + 1 + j, 2)
            tasks.append([at(VP + 1 + j, 2), at(VP + 1 + j, 8), 'L', (f'ds_write_b128 v{VEX}, {vr(ACC["P"]+4*j,4)} offset:{1024*j}', ('pw', j))])
        tasks.append([at(VP + 10, 0), at(VP + 10, 4), 'A', 'pair'])
        VQ = VP + 13
        okP = check(VQ, 'pair', 2, 'P')
        for j in range(9):
            tasks.append([at(VQ + 1 + j, 2), at(VQ + 1 + j, 8), 'L', (f'ds_read_b128 {vr(TMP+4*(j&1),4)}, v{VEXP} offset:{1024*j}', ('pr', j))])
            v = VQ + 2 + j
            pos = at(v, 8 - (j + 2) - 1) if j <= 6 else at(v, 8 - (j - 7) - 1)
            sh = 1 if j >= 7 else 0
            if o.chain > 1:
                own = [n for n in range(N) if ops[n][1] == j]
                pos = [a_ + 10 for a_, b_ in zip(own, own[1:]) if b_ - a_ >= 14 and a_ + 9 >= at(v, 0) ][0]
                sh = 0
                tasks[-1][0] = pos - 9; tasks[-1][1] = pos - 4
                tasks[-1][3] = (f'ds_read_b128 {vr(TMP+4*(j&3),4)}, v{VEXP} offset:{1024*j}', ('pr', j))
            tasks.append([pos - 1 + sh, pos - 1 + sh, 'Q', (j, 0)])
            tasks.append([pos + sh, pos + sh, 'Q', (j, 1)])
        if typ == 0:
            tasks.append([at(72, 4), at(72, 8), 'S', f'buffer_store_dword v{VCL+1}, v{VCL}, {sr(S_DBG)}, 0 offen sc1'])
            tasks.append([at(88, 4), at(88, 8), 'S', f'buffer_store_dword v{VF+3}, v{VCL+1}, {sr(S_WS)}, 0 offen sc1'])
        fslow = []
        passes = {}
        for g in range(NSTEP): passes.setdefault(S[g][0], g)
        need = [(passes[1], VF, 32 + 64 * typ), (32, VF + 6, 128), (passes[4], VF, 176), (passes[5], VF, 208), (passes[6], VF + 6, 240)]
        for ci, (gn, va, idx) in enumerate(need):
            v = gn - o.pfcs[ci] - 1
            while v in vused: v -= 1
            tasks.append([at(v - o.flead, 4), at(v - o.flead, 8), 'F', (va, idx, ci)])
            tasks.append([at(v, 0), at(v, 1), 'G', ci])
            tasks.append([at(v, 6), at(v, 7), 'I', [f's_cbranch_vccnz L_fw{typ}{ci}', f'L_fb{typ}{ci}:']])
            fslow.append((ci, va))
            assert v not in vused, v
            for t in tasks:
                if t[2] == 'W' and (t[3] >= gn): t[0] = max(t[0], at(v, 8))
        tasks.append([at(v + 1, 2), at(v + 1, 8), 'A', 4])
        if typ == 0:
            for lvl, v in enumerate(o.trig): tasks.append([at(v, 2), at(v, 8), 'P', lvl + 1])
        tasks.sort(key=lambda t: (t[0], t[1]))
        vq, lq = [], []
        dirty = [False]
        xreg, busy = {}, {}
        wn = [0]
        wr = {}
        lastw = [-100]
        later = []
        BIG = [WR + 4 * i for i in range(16)] + XWIN + [ACC['P'] + 4 * i for i in range(9)]
        for i in range(9): busy[ACC['P'] + 4 * i] = at(VP + 12)
        until = {}
        if o.chain > 1:
            BIG += XRING
            for i in range(9):
                BIG.append(ACC['Q'] + 4 * i)
                until[ACC['Q'] + 4 * i] = min(n for n in range(N) if ops[n][1] == i and S[ops[n][0]][4] == 'Q') - 3
        def freeregs(n, end): return [x for x in BIG if busy.get(x, -1) <= n and end < until.get(x, 10**9)]
        def wok(t, n):
            if t[2] != 'W': return True
            if t[3] != wn[0]: return False
            free = len(freeregs(n, wlast[t[3]]))
            if t[1] - n <= 9 * 3: return free > 0
            return n - lastw[0] >= o.wgap and free > o.wres
        since = {}
        fill = []
        def em(x):
            e(x)
            if not x.endswith(':'):
                for jj in since: since[jj] += 1
        def lwait(tag):
            if tag not in lq: return
            i = lq.index(tag)
            em(f's_waitcnt lgkmcnt({0 if dirty[0] else len(lq)-1-i})')
            if dirty[0]: lq.clear(); dirty[0] = False
            else: del lq[:i + 1]
        def vwait(g):
            if g not in vq: return
            i = vq.index(g)
            em(f's_waitcnt vmcnt({len(vq)-1-i})')
            del vq[:i + 1]
        def run(t, n):
            kind, p = t[2], t[3]
            if kind == 'X':
                pool = BIG if (o.chain > 1 or p[-1] == 'h' or (p[2] == 'rem' and p[1] == 'D')) else XRING
                r = [x for x in pool if busy.get(x, -1) <= n and last[p] < until.get(x, 10**9)]
                assert r, ('no x register', p, n)
                r = min(r, key=lambda x: (until.get(x, 10**9), busy.get(x, -1)))
                busy[r] = last[p]; xreg[p] = r
                arr, ch, s_ = p[1], p[2], p[3]
                if o.nolds and n > 9 * 30: return
                if ch == 'rem': em(f'ds_read_b128 {vr(r,4)}, v{VXOR if arr == "O" else VXDR} offset:{288*s_}')
                else: em(f'ds_read_b128 {vr(r,4)}, v{VXO if arr == "O" else VXD} offset:{64*ch+288*s_}')
                lq.append(p)
            elif kind == 'W':
                g = p
                r = min(freeregs(n, wlast[g]), key=lambda x: (until.get(x, 10**9), busy.get(x, -1)))
                busy[r] = wlast[g]; wr[g] = r
                assert g == wn[0]; wn[0] += 1
                lastw[0] = n
                if o.now and g > 40: return
                if o.wsame and g > 40:
                    em(f'buffer_load_dwordx4 {vr(r,4)}, v{VWL}, {sr(S_WS)}, s{WSO} offen offset:{1024*(g%4)}{wflags}'); vq.append(g); return
                em(f'buffer_load_dwordx4 {vr(r,4)}, v{VWL}, {sr(S_WS)}, s{WSO} offen offset:{1024*(g%4)}{wflags}')
                if g % 4 == 3:
                    if n < 0: em(f's_add_u32 s{WSO}, s{WSO}, 4096')
                    else: later.append(f's_add_u32 s{WSO}, s{WSO}, 4096')
                vq.append(g)
            elif kind == 'L':
                em(p[0].replace('offset:pair', 'offset:24').replace(f'v{VF+1} offset:24', f'v{VF+5} offset:24')); lq.append(p[1])
            elif kind == 'C':
                lwait(p[1]); em(p[0])
            elif kind == 'I':
                for x in p: em(x)
            elif kind == 'A':
                em('s_mov_b64 exec, 1')
                if p == 'pair': em(f'ds_add_u32 v{VF+5}, v{VF+2} offset:24')
                else: em(f'ds_add_u32 v{VF+1}, v{VF+2} offset:{p}')
                em('s_mov_b64 exec, -1')
                lq.append(('a', p))
            elif kind == 'Q':
                p, hf = p
                lwait(('pr', p))
                q = ACC['Q'] + 4 * p; t_ = TMP + 4 * (p & (3 if o.chain > 1 else 1))
                for i in (2 * hf, 2 * hf + 1): em(f'v_add_f32 v{q+i}, v{q+i}, v{t_+i}')
            elif kind == 'S':
                em(p); vq.append(('s', n))
            elif kind == 'F':
                em(f's_mov_b32 s{FO}, {128*p[1]}')
                em(f'buffer_load_dword v{VF+4}, v{p[0]}, {sr(S_WS)}, s{FO} offen {o.fflags}'); vq.append(('f', p[2]))
            elif kind == 'G':
                vwait(('f', p)); em(f'v_cmp_ne_u32 vcc, v{VF+3}, v{VF+4}')
            elif kind == 'P':
                em(f'v_mov_b32 v{VF+7}, {p}')
                em('s_mov_b64 exec, 1')
                em(f'ds_max_u32 v{VF+1}, v{VF+7}')
                em('s_mov_b64 exec, -1')
                lq.append(('p', p))
        def epi(j, pk):
            q = ACC['Q'] + 4 * j
            t = TMP + 8 * (j & 1)
            I = []
            if pk:
                I.append(f'v_pk_mul_f32 {vr(t,2)}, {vr(q,2)}, s[{C2L}:{C2L+1}]')
                I.append(f'v_pk_mul_f32 {vr(t+2,2)}, {vr(q+2,2)}, s[{CNL}:{CNL+1}]')
            else:
                for i in (0, 1): I.append(f'v_mul_f32 v{t+i}, s{C2L}, v{q+i}')
                for i in (2, 3): I.append(f'v_mul_f32 v{t+i}, s{CNL}, v{q+i}')
            I.append(f'v_min_f32 v{t}, s{C60}, v{t}')
            I.append(f'v_min_f32 v{t+1}, s{C60}, v{t+1}')
            for i in (0, 1, 2, 3): I.append(f'v_exp_f32 v{t+i}, v{t+i}')
            if pk:
                I.append(f'v_pk_add_f32 {vr(t+4,2)}, {vr(t,2)}, 1.0 op_sel_hi:[1,0]')
                I.append(f'v_pk_add_f32 {vr(t+6,2)}, {vr(t,2)}, -1.0 op_sel_hi:[1,0]')
                I.append(f'v_pk_fma_f32 {vr(t+4,2)}, {vr(t+4,2)}, {vr(t+2,2)}, {vr(t+4,2)}')
            else:
                for i in (0, 1): I.append(f'v_add_f32 v{t+4+i}, 1.0, v{t+i}')
                for i in (0, 1): I.append(f'v_fma_f32 v{t+4+i}, v{t+4+i}, v{t+2+i}, v{t+4+i}')
            I.append(f'v_rcp_f32 v{t+4}, v{t+4}')
            I.append(f'v_rcp_f32 v{t+5}, v{t+5}')
            if pk:
                I.append('s_nop 0')
                I.append(f'v_pk_mul_f32 {vr(t+6,2)}, {vr(t+6,2)}, {vr(t+4,2)}')
            else:
                for i in (0, 1): I.append(f'v_add_f32 v{t+6+i}, -1.0, v{t+i}')
                for i in (0, 1): I.append(f'v_mul_f32 v{t+6+i}, v{t+6+i}, v{t+4+i}')
            I.append(f'v_cvt_pk_bf16_f32 v{q}, v{t+6}, v{t+7}')
            I.append(f'buffer_store_dword v{q}, v{VOUT + j//3}, {sr(S_OUT)}, 0 offen offset:{1152*(j%3)} {o.oflags if j < o.oj else ""}')
            return I
        def cost(x): return 2 if x.startswith(('v_exp', 'v_rcp', 'buffer')) else 1
        while tasks and tasks[0][0] < 0: run(tasks.pop(0), -1)
        inv = {n: v for v, n in vstart.items()}
        lastop = {j: max(n for n in range(N) if ops[n][1] == j) for j in range(9)}
        for n, (g, j) in enumerate(ops):
            if n in inv and o.padto and o.padev == 'm5' and inv[n] == o.padstep:
                e('s_memrealtime s[100:101]'); dirty[0] = True
            if n in inv and o.diag:
                v = inv[n]
                if o.diag == 2 and v in o.marks:
                    kk = o.marks.index(v)
                    e(f's_memtime s[{ST0+2*kk}:{ST0+2*kk+1}]'); dirty[0] = True
                if o.diag in (1, 4) and v == 33: stamp(5); stamp(6); dirty[0] = True
            k = key(n)
            assert k in xreg, (k, n)
            lwait(k); vwait(g)
            acc = S[g][4]
            d = ACC[acc] + 4 * j
            if g == 0: cs = '0'
            elif acc == 'Q' and S[g-1][4] == 'P': cs = vr(ACC['P'] + 4 * j, 4)
            else: cs = vr(d, 4)
            em(f'v_mfma_f32_16x16x32_bf16 {vr(d,4)}, {vr(wr[g],4)}, {vr(xreg[k],4)}, {cs}' if not o.swapab else f'v_mfma_f32_16x16x32_bf16 {vr(d,4)}, {vr(xreg[k],4)}, {vr(wr[g],4)}, {cs}')
            if n == lastop[j]: since[j] = 0
            while later: em(later.pop(0))
            budget = 2
            TC = {'X': 1, 'W': 2, 'L': 2, 'C': 1, 'I': 0, 'A': 1, 'Q': 2, 'S': 2, 'F': 2, 'G': 1, 'P': 2}
            while True:
                ready = [t for t in tasks if t[0] <= n and wok(t, n)]
                if not ready: break
                t = min(ready, key=lambda t: t[1])
                assert t[1] >= n, ('late', t, n)
                if TC[t[2]] > budget and t[1] > n:
                    fit = [u for u in ready if TC[u[2]] <= budget]
                    if not fit: break
                    t = min(fit, key=lambda t: t[1])
                tasks.remove(t); run(t, n); budget -= TC[t[2]]
            for jj in sorted(since):
                if 8 <= since[jj] < 10**6:
                    fill += epi(jj, False); since[jj] = 10**6
            budget += o.nfill - 2
            while fill and budget >= cost(fill[0]):
                budget -= cost(fill[0]); em(fill.pop(0))
            assert all(t[1] > n for t in tasks), ('late', n, [t for t in tasks if t[1] <= n])
        assert not tasks
        stamp(7)
        while fill: em(fill.pop(0))
        for jj in [jj for jj in sorted(since) if since[jj] < 10**6]:
            if since[jj] < 8: em(f's_nop {8-since[jj]-1}')
            for x in epi(jj, True): em(x)
        stamp(8)
        if o.padto and o.padev[0] == 'm': padloop(typ)
        if o.diag == 1:
            e('s_waitcnt vmcnt(0)')
            stamp(9)
            dump(10)
        if o.diag == 2:
            kk = len(o.marks)
            e(f's_memtime s[{ST0+2*kk}:{ST0+2*kk+1}]')
            dump(10)
        e('s_endpgm')
        for tag, off, cnt in slow:
            e(f'L_slow{typ}{tag}:')
            e(f'ds_read_b32 v{VC}, v{VF+5 if off == "pair" else VF+1} offset:{24 if off == "pair" else off}')
            e('s_waitcnt lgkmcnt(0)')
            e(f'v_cmp_ne_u32 vcc, {cnt}, v{VC}')
            e('s_nop 4')
            e(f's_cbranch_vccnz L_slow{typ}{tag}')
            e(f's_branch L_back{typ}{tag}')
        for ci, va in fslow: flagwait(f'{typ}{ci}', va, f'L_fb{typ}{ci}')

    mark['help0'] = len(e.L)
    if not o.hfirst: e('.p2align 6')
    e('L_helper:')
    role[0] = 'h'
    e(f's_setprio {o.hprio}')
    e(f's_sub_u32 s{TW0}, s{WAVE}, 4')
    e(f's_mov_b32 s{TW1}, s{WAVE}')
    e(f's_sub_u32 s{PAIR}, s2, {NPROD}')
    e(f's_cselect_b32 s{PAIR}, s2, s{PAIR}')
    e(f's_mov_b32 s{MODE}, 0')
    e(f's_mov_b32 s{NOTASK}, s2')
    e(f's_mov_b32 s{HAS3}, s{TW0}')
    e(f's_lshl_b32 s{SCRB}, s{TW0}, 12')
    e(f's_add_u32 s{SCRB}, s{SCRB}, {SCR}')
    e('L_prod:')
    T = [(28, TW0, 2, 52, 0), (36, TW1, 4, 53, 2048), (44, TW2, 6, 54, 16384)]
    c, kp, q, cc, kk, t = 46, 47, 48, 49, 50, 51
    b = TS
    e('v_mov_b32 v19, 4320')
    e('v_and_b32 v23, 3, v1')
    e('v_lshrrev_b32 v24, 3, v1')
    e('v_mul_u32_u24 v24, 576, v24')
    e('v_bfe_u32 v25, v1, 2, 1')
    e('v_mul_u32_u24 v25, 288, v25')
    e('v_add_u32 v24, v24, v25')
    for (vb, sw, vl, vs, so) in T:
        e(f'v_lshl_add_u32 v8, s{sw}, 2, v23' if sw != TW2 else 'v_add_u32 v8, 32, v23')
        e('v_cmp_le_u32 vcc, 18, v8')
        e(f'v_lshl_add_u32 v{vl}, v8, 4, v24')
        e(f'v_add_u32 v9, v{vl}, v19')
        e(f'v_cndmask_b32 v{vl}, v{vl}, v9, vcc')
    e(f's_and_b32 s{c}, s{PAIR}, 15')
    e(f's_lshr_b32 s{kp}, s{PAIR}, 4')
    e(f's_mul_i32 s{b}, s{c}, 165888')
    e(f's_mul_i32 s{t}, s{kp}, 9216')
    e(f's_add_u32 s{b}, s{b}, s{t}')
    e(f's_add_u32 s{b+1}, s{b}, 82944')
    e(f's_mov_b32 s{S_W+2}, 2571264')
    e(f's_mov_b32 s{S_W+3}, 0x20000')
    e(f's_mov_b32 s{S_WO+3}, 0x20000')
    e(f's_cmp_lg_u32 s{c}, 15')
    e(f's_cselect_b32 s{S_WO+2}, 2571264, 0')
    e(f's_mov_b32 m0, s{SCRB}')
    e('s_waitcnt lgkmcnt(0)')
    e(f's_mov_b32 s{S_W}, s6')
    e(f's_and_b32 s{S_W+1}, s7, 0xffff')
    e(f's_mov_b32 s{S_WO}, s6')
    e(f's_and_b32 s{S_WO+1}, s7, 0xffff')
    e(f's_cmp_ge_u32 s{NOTASK}, {NTASK}')
    e('s_cbranch_scc1 L_a3')
    def cond3(lbl):
        e(f's_cmp_lg_u32 s{HAS3}, 0')
        e(f's_cbranch_scc1 {lbl}')
    for ti, (vb, sw, vl, vs, so) in enumerate(T):
        if ti == 2: cond3('L_a3')
        if ti == 1: e('s_addk_i32 m0, 1024'); e('s_nop 0')
        e(f'buffer_load_dwordx4 v{vl}, {sr(S_W)}, s{b} offen lds')
        e('s_addk_i32 m0, 1024')
        e('s_nop 0')
        e(f'buffer_load_dwordx4 v{vl}, {sr(S_WO)}, s{b+1} offen lds')
        if ti == 1: e(f's_addk_i32 m0, {16384-3072}')
    e('L_a3:')
    stamp(1)
    e(f's_cmp_lg_u32 s{MODE}, 0')
    e('s_cbranch_scc1 L_a4')
    e(f's_load_dword s{TAG}, s[12:13], {NONCE}')
    e(f's_lshr_b32 s{EARLY}, 0x33, s{kp}')
    e(f's_and_b32 s{EARLY}, s{EARLY}, 1')
    e(f's_sub_u32 s{XK}, 2, s{EARLY}')
    e(f's_lshl_b32 s{t}, s{kp}, 1')
    e(f's_lshr_b32 s{YT}, {(3<<12)+(3<<14)+(3<<16)}, s{t}')
    e(f's_and_b32 s{YT}, s{YT}, 3')
    e(f's_lshr_b32 s{t}, s{kp}, 1')
    e(f's_cmp_ge_u32 s2, {NPROD}')
    e(f's_cselect_b32 s{EARLY}, 0, s{EARLY}')
    e(f's_cselect_b32 s{XK}, 3, s{XK}')
    e(f's_cselect_b32 s{YT}, s{t}, s{YT}')
    e(f's_cmp_ge_u32 s2, {NPROD+32}')
    e(f's_cselect_b32 s{XK}, 0, s{XK}')
    e(f's_cmp_ge_u32 s2, {NTASK}')
    e(f's_cselect_b32 s{YT}, 0, s{YT}')
    if not o.b0early:
        e(f's_cmp_lg_u32 s{EARLY}, 0')
        e('s_cbranch_scc1 L_a4')
    e('s_barrier')
    e('L_a4:')
    e(f's_mov_b32 s{MASK}, 0xffff0000')
    e(f's_mov_b32 s{NPOLL}, 0')
    srd(e, S_WS, 12, WS_REC)
    srd(e, S_DBG, 10, 256)
    e(f'v_mov_b32 v10, {CNT}')
    e(f'v_mov_b32 v20, {(256 - 18*2*NSTEP*1024) & 0xffffffff}')
    e(f'v_mov_b32 v26, {2*NSTEP*1024}')
    e('v_bfe_u32 v21, v1, 2, 2')
    e('v_lshlrev_b32 v21, 7, v21')
    e('v_and_b32 v22, 1, v1')
    e('v_lshl_add_u32 v21, v22, 6, v21')
    e('v_bfe_u32 v22, v1, 1, 1')
    e('v_lshl_add_u32 v21, v22, 3, v21')
    e('v_lshrrev_b32 v22, 4, v1')
    e('v_lshl_add_u32 v21, v22, 4, v21')
    e(f'v_add_u32 v21, s{SCRB}, v21')
    e('v_and_b32 v25, 15, v1')
    e('v_lshlrev_b32 v25, 4, v25')
    for (vb, sw, vl, vs, so) in T:
        e(f'v_lshl_add_u32 v8, s{sw}, 2, v22' if sw != TW2 else 'v_add_u32 v8, 32, v22')
        e('v_cmp_le_u32 vcc, 18, v8')
        e(f'v_mad_u32_u24 v{vs}, v8, v26, v25')
        e(f'v_add_u32 v9, v{vs}, v20')
        e(f'v_cndmask_b32 v{vs}, v{vs}, v9, vcc')
    e(f's_lshr_b32 s{q}, s{kp}, 1')
    e(f's_and_b32 s{cc}, s{c}, 7')
    e(f's_lshr_b32 s{kk}, s{c}, 3')
    e(f's_and_b32 s{t}, s{kp}, 1')
    e(f's_cmp_eq_u32 s{kp}, 8')
    e(f's_cselect_b32 s{cc}, s{cc}, s{c}')
    e(f's_cselect_b32 s{kk}, s{kk}, s{t}')
    e(f's_lshl_b32 s{kk}, s{kk}, 9')
    e(f's_add_u32 s{kk}, s{kk}, {WOFF}')
    e(f's_lshl_b32 s{t}, s{q}, 4')
    e(f's_add_u32 s{b+2}, s{t}, s{cc}')
    e(f's_sub_u32 s{b+3}, s{b+2}, s{q}')
    e(f's_cmp_ge_u32 s{q}, 2')
    e(f's_cselect_b32 s{b+4}, 74, 0')
    e(f's_add_u32 s{b+4}, s{b+4}, s{b+2}')
    e(f's_cmp_lt_u32 s{cc}, 2')
    e(f's_cselect_b32 s{t}, 32, 136')
    e(f's_add_u32 s{t}, s{t}, s{cc}')
    e(f's_cmp_eq_u32 s{kp}, 8')
    e(f's_cselect_b32 s{b+4}, s{t}, s{b+4}')
    e(f's_add_u32 s{b+2}, s{b+2}, 34')
    e(f's_add_u32 s{b+3}, s{b+3}, 144')
    for k in (2, 3, 4):
        e(f's_lshl_b32 s{b+k}, s{b+k}, 10')
        e(f's_add_u32 s{b+k}, s{b+k}, s{kk}')
    e(f's_cmp_eq_u32 s{kp}, 8')
    e(f's_cselect_b32 s{t}, 1, 2')
    e(f's_cmp_eq_u32 s{c}, 15')
    e(f's_cselect_b32 s{b+5}, s{t}, 0')
    e(f's_lshl_b32 s46, s{WAVE}, 2')
    e(f's_add_u32 s46, s46, {CNT+16}')
    e('v_mov_b32 v55, s46')
    e('v_mov_b32 v27, 0')
    e('v_mov_b32 v9, 4')
    e('s_waitcnt vmcnt(0) lgkmcnt(0)')
    stamp(2)
    e(f's_cmp_ge_u32 s{NOTASK}, {NTASK}')
    e('s_cbranch_scc1 L_x9')
    e(f's_cmp_lg_u32 s{WAVE}, 4')
    e('s_cbranch_scc1 L_a5')
    e('s_mov_b64 exec, 1')
    e(f'buffer_load_dword v27, v9, {sr(S_DBG)}, 0 offen sc1')
    e('s_mov_b64 exec, -1')
    e('L_a5:')
    for (vb, sw, vl, vs, so) in T:
        for tap in range(2):
            for half in range(2):
                e(f'ds_read_b64_tr_b16 {vr(vb+4*tap+2*half,2)}, v21 offset:{so+1024*tap+512*half}')
    nlab = [0]
    def st01(vb, vs):
        nlab[0] += 1
        e(f'buffer_store_dwordx4 {vr(vb,4)}, v{vs}, {sr(S_WS)}, s{b+2} offen sc1')
        e(f's_cmp_eq_u32 s{b+5}, 2')
        e(f's_cbranch_scc1 L_skip{nlab[0]}')
        e(f'buffer_store_dwordx4 {vr(vb+4,4)}, v{vs}, {sr(S_WS)}, s{b+3} offen sc1')
        e(f'L_skip{nlab[0]}:')
    def st01all(lbl):
        st01(T[0][0], T[0][3]); st01(T[1][0], T[1][3])
        cond3(lbl)
        st01(T[2][0], T[2][3])
    def dosum(vb, tb, ob):
        for i in range(8):
            e(f'v_lshlrev_b32 v{tb+2*i}, 16, v{vb+i}')
            e(f'v_and_b32 v{tb+2*i+1}, s{MASK}, v{vb+i}')
        for i in range(4):
            e(f'v_pk_add_f32 {vr(tb+2*i,2)}, {vr(tb+2*i,2)}, {vr(tb+8+2*i,2)}')
        for i in range(4):
            e(f'v_cvt_pk_bf16_f32 v{ob+i}, v{tb+2*i}, v{tb+2*i+1}')
    def ldswait(off, cmp, operand, tag, slp):
        e(f'L_lw{tag}:')
        e(f'ds_read_b32 v11, v10 offset:{off}')
        e('s_waitcnt lgkmcnt(0)')
        e('v_and_b32 v11, 0xff, v11')
        e(f'v_cmp_{cmp}_u32 vcc, {operand}, v11')
        e('s_nop 4')
        e(f's_cbranch_vccnz L_lx{tag}')
        e(f's_sleep {slp}')
        e(f's_branch L_lw{tag}')
        e(f'L_lx{tag}:')
    SO = 240
    e(f's_or_b32 s46, s{EARLY}, s{MODE}')
    e(f's_cmp_eq_u32 s{XK}, 2')
    e('s_cselect_b32 s47, 1, s46')
    e('s_cmp_eq_u32 s47, 0')
    e('s_cbranch_scc1 L_x9')
    for ti, (vb, sw, vl, vs, so) in enumerate(T):
        if ti == 2: cond3('L_x3')
        e(f's_waitcnt lgkmcnt({8-4*ti})')
        dosum(vb, 64 + 16 * ti, SO + 4 * ti)
        e('s_cmp_eq_u32 s46, 0')
        e(f's_cbranch_scc1 L_x5{ti}')
        e(f'buffer_store_dwordx4 {vr(SO+4*ti,4)}, v{vs}, {sr(S_WS)}, s{b+4} offen sc1')
        e(f'L_x5{ti}:')
    e('L_x3:')
    e(f's_cmp_eq_u32 s{MODE}, 0')
    e('s_cbranch_scc1 L_x9')
    e('L_x2:')
    e('s_waitcnt lgkmcnt(0)')
    st01all('L_x4')
    e('L_x4:')
    e(f's_cmp_eq_u32 s{MODE}, 0')
    e('s_cbranch_scc1 L_x9')
    e('s_waitcnt vmcnt(0)')
    e(f's_add_u32 s{PAIR}, s{PAIR}, 1')
    e(f's_cmp_lt_u32 s{PAIR}, {NPROD}')
    e('s_cbranch_scc1 L_prod')
    e('v_mov_b32 v11, 1')
    e('ds_write_b32 v10, v11 offset:12')
    e('s_endpgm')
    e('L_x9:')
    stamp(3)
    decode()
    e('v_subrev_u32 v4, 256, v0')
    e('v_min_u32 v4, 251, v4')
    e('v_mul_u32_u24 v3, 3641, v4')
    e('v_lshrrev_b32 v3, 16, v3')
    e('v_mul_u32_u24 v2, 18, v3')
    e('v_sub_u32 v2, v4, v2')
    e(f'v_mul_u32_u24 v3, {R}, v3')
    e(f'v_min_u32 v3, {160-R}, v3')
    e('v_mul_u32_u24 v4, 1152, v3')
    e('v_lshl_add_u32 v4, v2, 4, v4')
    e(f'v_add_u32 v12, s{XB}, v4')
    e('v_mul_u32_u24 v18, 288, v3')
    e('v_lshl_add_u32 v18, v2, 4, v18')
    e(f'v_add_u32 v19, {X_D1}, v18')
    srd(e, S_X, 4, 1152000, add=BOFF)
    e(f's_add_u32 s46, s{TAG}, {TAGINC}')
    e('v_mov_b32 v56, s46')
    e('s_lshl_b32 s46, s2, 7')
    e('v_mov_b32 v58, s46')
    e(f's_add_u32 s46, s{PAIR}, {NPROD}')
    e('s_lshl_b32 s46, s46, 7')
    e('v_mov_b32 v59, s46')
    def publish(slot, vflag, tag, first, n=0):
        e('s_mov_b64 exec, 1')
        e(f's_waitcnt vmcnt({n})')
        if first: stamp(4)
        if o.padto and tag == 'x': stamp(12)
        e('v_cmp_ne_u32 vcc, 0, v27')
        e('v_not_b32 v57, v56')
        e('s_nop 0')
        e('v_cndmask_b32 v57, v56, v57, vcc')
        e(f'ds_write_b32 v55, v57 offset:{slot}')
        e(f'ds_read_b128 v[20:23], v10 offset:{32+slot}')
        e('s_waitcnt lgkmcnt(0)')
        for i in range(4): e(f'v_xor_b32 v{20+i}, v{20+i}, v56')
        e('v_or3_b32 v20, v20, v21, v22')
        e('v_or_b32 v20, v20, v23')
        e('v_cmp_eq_u32 vcc, 0, v20')
        e('s_and_b64 exec, exec, vcc')
        e(f's_cbranch_execz L_nl{tag}')
        e(f'buffer_store_dword v56, v{vflag}, {sr(S_WS)}, 0 offen sc1')
        e(f'L_nl{tag}:')
        e('s_mov_b64 exec, -1')
    e(f's_cmp_eq_u32 s{EARLY}, 0')
    e('s_cbranch_scc1 L_noflag')
    publish(0, 58, 'x', True)
    if not o.b0early: e('s_barrier')
    e('L_noflag:')
    e(f's_setprio {o.hprio2}')
    RAW, ORAW = 64, 120
    EU = [184, 192]
    OU, DT, DO = 200, 208, 216
    xi = [0]
    NL = R + 1
    hq = []
    def eload():
        k = xi[0]
        if k >= NL: return
        a_ = 12
        if k:
            a_ = 13 + (k & 3)
            e(f'v_add_u32 v{a_}, {1152*k}, v12')
        e(f'buffer_load_dwordx4 {vr(RAW+4*k,4)}, v{a_}, {sr(S_X)}, 0 offen')
        xi[0] += 1
        hq.append(('e', k))
    if o.etouch:
        e(f's_cmp_lt_u32 s2, {NTASK}')
        e('s_cbranch_scc1 L_net')
        e(f's_and_b32 s46, s{NB}, 1')
        e(f's_mul_i32 s46, s46, {1152*6}')
        e('v_add_u32 v12, s46, v12')
        for _ in range(7): eload()
        e('v_subrev_u32 v12, s46, v12')
        e('s_waitcnt vmcnt(0)')
        e('L_net:')
        xi[0] = 0; hq.clear()
    YA = 232
    e(f's_cmp_eq_u32 s{b+5}, 2')
    e('s_cselect_b32 s46, 0x80000000, 0')
    e(f's_cmp_lg_u32 s{HAS3}, 0')
    e('s_cselect_b32 s47, 0x80000000, 0')
    e('s_or_b32 s48, s46, s47')
    for i in range(6):
        m_ = {0: None, 1: 46, 2: None, 3: 46, 4: 47, 5: 48}[i]
        e(f'v_mov_b32 v{YA+i}, v{52+i//2}' if m_ is None else f'v_or_b32 v{YA+i}, s{m_}, v{52+i//2}')
    def ystore(i, a_):
        e(f'buffer_store_dwordx4 {vr(28+4*i,4)}, v{a_}, {sr(S_WS)}, s{b+2+(i&1)} offen sc1')
        hq.append(('y', i))
    stamp(5)
    ldswait(8, 'eq', 4, 'o', 1)
    def unpack(dst, s_):
        for i in range(4):
            e(f'v_lshlrev_b32 v{dst+2*i}, 16, v{s_+i}')
            e(f'v_and_b32 v{dst+2*i+1}, s{MASK}, v{s_+i}')
    def unpackE(dst, k):
        e(f's_waitcnt vmcnt({len(hq)-1-hq.index(("e", k))})')
        unpack(dst, RAW + 4 * k)
        eload()
    def diff(eu, out):
        for i in range(8): e(f'v_sub_f32 v{DT+i}, v{eu+i}, v{OU+i}')
        for i in range(4):
            e(f'v_cvt_pk_bf16_f32 v{out+i}, v{DT+2*i}, v{DT+2*i+1}')
    def opengate():
        if not o.gate: return
        e('v_mov_b32 v11, 0x100')
        e('s_mov_b64 exec, 1')
        e('ds_add_u32 v10, v11 offset:8')
        e('s_mov_b64 exec, -1')
    def rows(hook):
        stamp(6)
        for j in range(R):
            e(f'ds_read_b128 {vr(ORAW+4*j,4)}, v18 offset:{X_O+288*j}')
        unpackE(EU[0], 0)
        e('s_waitcnt lgkmcnt(0)')
        for j in range(R):
            o0 = DO + 8 * (j & 1)
            unpack(OU, ORAW + 4 * j)
            diff(EU[j & 1], o0)
            e(f'ds_write_b128 v18, {vr(o0,4)} offset:{X_D0+288*j}')
            unpackE(EU[(j + 1) & 1], j + 1)
            diff(EU[(j + 1) & 1], o0 + 4)
            e(f'ds_write_b128 v19, {vr(o0+4,4)} offset:{288*j}')
            hook(j)
    e(f's_cmp_ge_u32 s2, {NPROD + (32 if o.d0p else 0)}')
    e('s_cbranch_scc1 L_pathA')
    e(f's_cmp_lt_u32 s{XK}, 2')
    e('s_cbranch_scc1 L_nox')
    if o.d0p:
        e(f's_cmp_eq_u32 s{XK}, 3')
        e('s_cbranch_scc1 L_xd')
    for i in range(3):
        e(f'buffer_store_dwordx4 {vr(SO+4*i,4)}, v{YA+2*i}, {sr(S_WS)}, s{b+4} offen sc1')
    if o.d0p:
        e('s_branch L_xe')
        e('L_xd:')
        for i in range(6): ystore(i, YA + i)
        e('L_xe:')
    if o.gearly:
        opengate()
        publish(0, 58, 'x2', True)
        e('s_branch L_nox2')
        e('L_nox:')
        opengate()
        e('L_nox2:')
    else:
        publish(0, 58, 'x2', True)
        e('L_nox:')
        opengate()
    hq.clear(); xi[0] = 0
    for _ in range(o.ein): eload()
    rows(lambda j: None)
    e('s_branch L_rowsdone')
    e('L_pathA:')
    if not o.d0p:
        e(f's_cmp_eq_u32 s{XK}, 3')
        e('s_cselect_b32 s47, 0, 0x80000000')
        for i in range(6): e(f'v_or_b32 v{20+i}, s47, v{YA+i}')
    hq.clear(); xi[0] = 0
    for _ in range(NL): eload()
    if not o.d0p:
        for i in range(6): ystore(i, 20 + i)
    def hookA(j):
        if j == o.grow:
            e(f's_waitcnt vmcnt({len(hq)-1-hq.index(("e", NL-1))})')
            opengate()
        if j == o.xrow and not o.d0p:
            e(f's_cmp_lg_u32 s{XK}, 3')
            e('s_cbranch_scc1 L_xp')
            publish(0, 58, 'x3', True)
            e('L_xp:')
    rows(hookA)
    e('L_rowsdone:')
    e('s_waitcnt lgkmcnt(0)')
    stamp(7)
    e('v_mov_b32 v11, 1')
    e('s_mov_b64 exec, 1')
    e('ds_add_u32 v10, v11 offset:16')
    e('s_mov_b64 exec, -1')
    e(f's_cmp_eq_u32 s{YT}, 0')
    e('s_cbranch_scc1 L_noy')
    e(f's_setprio {o.hprio}')
    e('L_yw:')
    e('ds_read_b64 v[20:21], v10')
    e('s_waitcnt lgkmcnt(0)')
    e('v_lshrrev_b32 v21, 14, v21')
    e('v_and_b32 v21, -4, v21')
    e('v_or_b32 v20, v20, v21')
    e(f'v_cmp_le_u32 vcc, s{YT}, v20')
    e('s_nop 4')
    e('s_cbranch_vccnz L_yx')
    e('s_sleep 4')
    e('s_branch L_yw')
    e('L_yx:')
    for i in range(6):
        ystore(i, YA + i)
        e(f's_waitcnt vmcnt({o.ythr})')
    publish(16, 59, 'y', False)
    if o.diag == 1: stamp(8)
    e('L_noy:')
    e(f's_cmp_lg_u32 s{WAVE}, 4')
    e('s_cbranch_scc1 L_hend')
    e('L_guard:')
    e('ds_read_b32 v11, v10 offset:4')
    e('s_waitcnt lgkmcnt(0)')
    e('v_readfirstlane_b32 s46, v11')
    e('s_nop 3')
    e('s_cmp_eq_u32 s46, 4')
    e('s_cbranch_scc1 L_hend')
    e('s_cmp_lt_u32 s46, 0x10000')
    e('s_cbranch_scc0 L_rescue')
    e('s_sleep 16')
    e('s_branch L_guard')
    e('L_rescue:')
    e(f's_mov_b32 s{MODE}, 1')
    e(f's_mov_b32 s{HAS3}, 1')
    e(f's_mov_b32 s{NOTASK}, 0')
    e(f's_lshr_b32 s{TW0}, s{NB}, 1')
    e(f's_add_u32 s{TW1}, s{NB}, 9')
    e(f's_lshr_b32 s{TW1}, s{TW1}, 1')
    e(f's_mov_b32 s{PAIR}, 0')
    e('s_branch L_prod')
    e('L_hend:')
    if o.padto and o.padev[0] == 'h': padloop('h')
    if o.diag == 1:
        stamp(9)
        dump(10)
    e('L_end:')
    e('s_endpgm')
    if o.hfirst:
        m0, h0 = mark['main0'], mark['help0']
        e.L = e.L[:m0] + e.L[h0:] + ['.p2align 6'] + e.L[m0:h0]
    e('L_codeend:')
    e('.section .rodata,"a"')
    e('.p2align 6')
    e(f'.amdhsa_kernel {KN}')
    for x in ['next_free_vgpr 256', 'next_free_sgpr 102', 'accum_offset 256', 'group_segment_fixed_size 0', 'kernarg_size 40',
              'user_sgpr_count 2', 'user_sgpr_kernarg_segment_ptr 1', 'system_sgpr_workgroup_id_x 1']:
        e('  .amdhsa_' + x)
    e('.end_amdhsa_kernel')
    n = haz.check(e.L)
    if n: print(f'{n} hazards', file=sys.stderr)
    return f'; @launch grid=({NWG},1,1) block=(512,1,1) lds={LDS_BYTES}\n' + e.text()

def opts(argv=None):
    ap = argparse.ArgumentParser()
    ap.add_argument('-o', default='k.s')
    for nm, d in [('diag', 0), ('pf', 16), ('pf0', 8), ('wgap', 4), ('wres', 4), ('wsc1', 0), ('nfill', 2), ('fstride', 128), ('sleep', 0), ('maxpoll', 3000), ('nopoll', 0),
                  ('hprio', 3), ('hprio2', 0), ('mprio', 2), ('epre', 0), ('ein', 7), ('dpre', 7), ('b0early', 0), ('mtouch', 1), ('gate', 1), ('swapab', 0), ('d0p', 1), ('map', 1), ('chain', 4), ('vt', 94), ('tla', 40), ('tskip', 1), ('gearly', 1), ('chfrom', 8), ('oj', 9), ('nolds', 0), ('now', 0), ('wsame', 0), ('grow', 1), ('vbd', 33), ('nopk', 1), ('padto', 0), ('npdelay', 0), ('opre', 5), ('etouch', 0), ('orev', 1), ('b0late', 1), ('dec', 1), ('tail', 1), ('xla', 9), ('hold', 1), ('prest', 0), ('xslot', 0), ('noclosed', 0), ('cpf', 1), ('hfirst', 1), ('warmb', 1), ('wsfirst', 0), ('flead', 6), ('ythr', 6), ('xrow', 3), ('padstep', 33), ('probe', 0), ('probeoff', 0x4000000)]:
        ap.add_argument('--' + nm, type=int, default=d)
    ap.add_argument('--oflags', default='')
    ap.add_argument('--pmap', default='18,18,18,18,18,18,18,18')
    ap.add_argument('--padev', default='m0')
    ap.add_argument('--trig', default='10,25,40')
    ap.add_argument('--yrow', default='0,7,2,9,5,11')
    ap.add_argument('--pfcs', default='4,5,5,8,8')
    ap.add_argument('--fflags', default='')
    ap.add_argument('--marks', default='0,4,8,12,16,24,33,47,58')
    o = ap.parse_args(argv)
    o.marks = [int(x) for x in o.marks.split(',')]
    o.yrow = [int(x) for x in o.yrow.split(',')]
    o.pfcs = [int(x) for x in o.pfcs.split(',')]
    o.trig = [int(x) for x in o.trig.split(',')]
    return o

if __name__ == '__main__':
    o = opts()
    open(o.o, 'w').write(gen(o))
```

```python
import re, sys, argparse
import haz

KN = 'standalone__autoregressive_conv_wavernn__speech_kernel'
NWG = 252
NPROD = 144
ARR = 160 * 288
X_D0, X_O, X_D1 = 0, ARR, 2 * ARR
CNT = 3 * ARR
SCR = CNT + 64
LDS_BYTES = SCR + 18432
NSTEP = 106
WOFF = int(__import__('os').environ.get('WOFF', '0x100000'), 0)
NONCE = 0x10000
DIAG = 0x800000
WS_REC = max(0x1000000, WOFF + 0x400000, int(__import__('os').environ.get('WSREC', '0'), 0))
TAGINC = 0x9E3779B9
R = 12

class Em:
    def __init__(self): self.L = []
    def __call__(self, s): self.L.append(s)
    def text(self): return '\n'.join(self.L) + '\n'

def vr(a, n=1): return f'v{a}' if n == 1 else f'v[{a}:{a+n-1}]'
def sr(a, n=4): return f's[{a}:{a+n-1}]'

def streams():
    out = []
    for typ in (0, 1):
        S = []
        pid = [0]
        def add(arr, chunk, cs, acc):
            for c in cs: S.append((pid[0], arr, chunk, c, acc))
            pid[0] += 1
        if typ == 0:
            add('O', 0, range(16), 'P'); add('O', 1, range(16), 'P'); add('O', 'rem', range(0, 2), 'P')
            for q in range(4): add('D', q, range(16), 'Q')
            add('D', 'rem', range(8), 'Q')
        else:
            add('O', 2, range(16), 'P'); add('O', 3, range(16), 'P'); add('O', 'rem', range(2, 8), 'P')
            for q in range(4): add('D', q, range(15), 'Q')
            add('D', 'rem', range(8), 'Q')
        assert len(S) == NSTEP
        out.append(S)
    return out

S_X, S_W, S_WO, S_WS, S_OUT, S_DBG = 20, 24, 28, 32, 36, 40
WAVE, NB, BAT, PAR, MB, BOFF = 14, 15, 16, 17, 18, 19
PAIR0 = 3
XB = 52
MASK = 53
TW0, TW1, TW2, PAIR, HAS3, MODE, SCRB, TAG, LAST, NPOLL = 44, 45, 54, 55, 56, 57, 58, 59, 60, 61
TS = 62
TYP, WSO = 68, 69
EARLY, XK, YT, FIDX = 90, 91, 92, 93
NOTASK = 94
NTASK = NPROD + 96
FO = 97
C2L, CNL, C60 = 90, 92, 94
ST0 = 70

def srd(e, d, ptr, rec, add=None):
    if add is None:
        e(f's_mov_b32 s{d}, s{ptr}')
        e(f's_and_b32 s{d+1}, s{ptr+1}, 0xffff')
    else:
        e(f's_add_u32 s{d}, s{ptr}, s{add}')
        e(f's_addc_u32 s{d+1}, s{ptr+1}, 0')
        e(f's_and_b32 s{d+1}, s{d+1}, 0xffff')
    e(f's_mov_b32 s{d+2}, {rec}')
    e(f's_mov_b32 s{d+3}, 0x20000')

def gen(o):
    e = Em()
    role = ['m']
    def padloop(tag):
        e(f'L_pad{tag}:')
        e('s_memrealtime s[98:99]')
        e('s_waitcnt lgkmcnt(0)')
        e('s_sub_u32 s98, s98, s100')
        e(f's_cmp_lt_u32 s98, {o.padto}')
        e(f's_cbranch_scc1 L_pad{tag}')
    def stamp(k, lvl=1):
        if o.padto and lvl == 1 and o.padev == f'{role[0]}{k}':
            e('s_memrealtime s[100:101]'); e('s_waitcnt lgkmcnt(0)')
        if o.diag == lvl or (o.diag == 4 and lvl == 1): e(f's_memrealtime s[{ST0+2*k}:{ST0+2*k+1}]')
    def dump(nst):
        e('s_waitcnt lgkmcnt(0)')
        e('v_mov_b32 v250, 0')
        for k in range(nst): e(f'v_writelane_b32 v250, s{ST0+2*k}, {k}')
        e(f'v_writelane_b32 v250, s{NPOLL}, 13')
        e(f'v_writelane_b32 v250, s95, 12')
        e(f'v_writelane_b32 v250, s2, 14')
        e('s_getreg_b32 s46, hwreg(HW_REG_XCC_ID)')
        e('v_writelane_b32 v250, s46, 15')
        e(f's_lshl_b32 s46, s2, 3'); e(f's_add_u32 s46, s46, s{WAVE}'); e('s_lshl_b32 s46, s46, 6'); e(f's_add_u32 s46, s46, {DIAG}')
        e('v_lshl_add_u32 v251, v1, 2, s46')
        e('s_mov_b64 exec, 0xffff')
        e(f'buffer_store_dword v250, v251, {sr(S_WS)}, 0 offen')
        e('s_mov_b64 exec, -1')

    e('.amdgcn_target "amdgcn-amd-amdhsa--gfx950"')
    e('.text')
    e(f'.globl {KN}')
    e('.p2align 8')
    e(f'.type {KN},@function')
    e(f'{KN}:')
    e(f's_cmp_ge_u32 s2, {NWG}')
    e('s_cbranch_scc1 L_end')
    stamp(0)
    if o.padto and o.padev != 'm0': e('s_memrealtime s[100:101]')
    e('s_load_dwordx4 s[4:7], s[0:1], 0')
    e('s_load_dwordx4 s[8:11], s[0:1], 16')
    e('s_load_dwordx2 s[12:13], s[0:1], 32')
    e('v_lshrrev_b32 v2, 6, v0')
    e('v_and_b32 v1, 63, v0')
    e(f'v_readfirstlane_b32 s{WAVE}, v2')
    def decode():
        e('s_and_b32 s44, s2, 7')
        e('s_lshr_b32 s45, s2, 3')
        e('s_mul_i32 s46, s44, 31')
        e('s_min_u32 s44, s44, 4')
        e('s_add_u32 s46, s46, s44')
        e('s_add_u32 s46, s46, s45')
        if o.map == 0:
            e('s_mul_hi_u32 s47, s46, 68174085')
            e('s_mul_i32 s48, s47, 63')
            e('s_sub_u32 s48, s46, s48')
            e(f's_mul_hi_u32 s{NB}, s48, 613566757')
            e(f's_mul_i32 s49, s{NB}, 7')
            e('s_sub_u32 s49, s48, s49')
            e('s_mul_i32 s47, s47, 7')
            e('s_add_u32 s47, s47, s49')
        elif o.map == 1:
            e('s_mul_hi_u32 s47, s46, 477218589')
            e('s_mul_i32 s48, s47, 9')
            e(f's_sub_u32 s{NB}, s46, s48')
        else:
            e('s_mul_hi_u32 s47, s46, 34087043')
            e('s_mul_i32 s48, s47, 126')
            e('s_sub_u32 s48, s46, s48')
            e(f's_mul_hi_u32 s{NB}, s48, 306783379')
            e(f's_mul_i32 s49, s{NB}, 14')
            e('s_sub_u32 s49, s48, s49')
            e('s_mul_i32 s47, s47, 14')
            e('s_add_u32 s47, s47, s49')
        e(f's_and_b32 s{PAR}, s47, 1')
        e('s_lshr_b32 s47, s47, 1')
        e('s_cmp_ge_u32 s47, 7')
        e(f's_cselect_b32 s{BOFF}, 1152000, 0')
        e('s_cselect_b32 s48, 7, 0')
        e(f's_sub_u32 s{MB}, s47, s48')
        e(f's_mul_i32 s{XB}, s{MB}, 576')
        e(f's_add_u32 s{XB}, s{XB}, s{PAR}')
        e(f's_sub_u32 s{XB}, s{XB}, 60')
        e(f's_mul_i32 s{XB}, s{XB}, 288')
    e(f's_cmp_ge_u32 s{WAVE}, 4')
    e('s_cbranch_scc1 L_helper')
    if o.cpf:
        e('s_lshr_b32 s44, s2, 3')
        e(f's_lshl_b32 s45, s{WAVE}, 5')
        e('s_add_u32 s44, s44, s45')
        e('s_sub_u32 s44, s44, 26')
        e('s_cmp_ge_u32 s44, 5')
        e('s_cbranch_scc1 L_main')
        e('s_getpc_b64 s[46:47]')
        e('L_pc:')
        e('s_lshl_b32 s44, s44, 13')
        e('v_lshl_add_u32 v2, v1, 7, s44')
        e('v_min_u32 v2, L_codeend-L_pc-4, v2')
        e('global_load_dword v63, v2, s[46:47]')
    if o.hfirst: e('s_branch L_main')
    mark = {'main0': len(e.L)}
    e('L_main:')
    e(f's_mov_b32 s{MASK}, 0xffff0000')
    e(f's_mov_b32 s{NPOLL}, 0')
    if o.diag: e('s_mov_b32 s95, 0')
    decode()

    VXO, VXOR, VXD, VXDR, VWL, VEX, VEXP, VOUT = 30, 31, 32, 33, 34, 35, 36, 37
    VF = 40
    VA = 48
    VCL = 60
    e('v_mul_u32_u24 v3, 3641, v0')
    e('v_lshrrev_b32 v3, 16, v3')
    e('v_mul_u32_u24 v2, 18, v3')
    e('v_sub_u32 v2, v0, v2')
    e('v_mul_u32_u24 v3, 1152, v3')
    e('v_lshl_add_u32 v3, v2, 4, v3')
    e(f's_add_u32 s46, s{XB}, 576')
    e(f'v_add_u32 v{VA}, s46, v3')
    e('v_mov_b32 v5, 16192')
    e('v_mov_b32 v6, 17056')
    for k in range(1, 12):
        e('v_cmp_le_u32 vcc, 14, v2')
        e('v_add_u32 v3, 4, v2')
        e('v_subrev_u32 v4, 14, v2')
        e('v_cndmask_b32 v7, v5, v6, vcc')
        e('v_cndmask_b32 v2, v3, v4, vcc')
        e(f'v_add_u32 v{VA+k}, v{VA+k-1}, v7')
    e(f's_lshl_b32 s50, s{WAVE}, 10')
    e(f's_add_u32 s50, s50, {X_O}')
    e(f's_add_u32 s51, s50, {4096*11}')
    e('s_movk_i32 s49, 4096')
    if o.orev:
        e(f's_bitcmp0_b32 s{NB}, 0')
        e('s_cbranch_scc1 L_fwd')
        for k in range(5): e(f'v_swap_b32 v{VA+k}, v{VA+10-k}')
        e(f's_add_u32 s50, s50, {4096*10}')
        e('s_movk_i32 s49, -4096')
        e('L_fwd:')
    e(f'v_mov_b32 v{VF+1}, {CNT}')
    for r in range(4, 8): e(f'v_mov_b32 v{r}, 0')
    e(f'ds_write_b128 v{VF+1}, v[4:7]')
    e(f'ds_write_b128 v{VF+1}, v[4:7] offset:16')
    e('s_waitcnt lgkmcnt(0)')
    e(f's_load_dword s{TAG}, s[12:13], {NONCE}')
    srd(e, S_X, 4, 1152000, add=BOFF)
    def odma(k):
        e(f's_mov_b32 m0, s{51 if k == 11 else 50}')
        e('s_add_u32 s50, s50, s49')
        e(f'buffer_load_dwordx4 v{VA+k}, {sr(S_X)}, 0 offen lds')
    def etouch():
        e(f'buffer_load_dword v62, v9, {sr(S_X)}, 0 offen')
    if o.mtouch and o.tskip:
        e('s_lshr_b32 s47, s2, 4')
        e('s_lshr_b32 s47, 0x33, s47')
        e('s_lshl_b32 s47, s47, 31')
    if o.mtouch:
        e('v_min_u32 v8, 39, v1')
        e('v_lshrrev_b32 v9, 2, v8')
        e(f's_mul_i32 s46, s{WAVE}, 10')
        e('v_add_u32 v9, s46, v9')
        e(f'v_mul_u32_u24 v9, {4*1152}, v9')
        e('v_and_b32 v8, 3, v8')
        e('v_mul_u32_u24 v8, 92, v8')
        e(f's_and_b32 s46, s{NB}, 3')
        e('s_mul_i32 s46, s46, 1152')
        e(f's_add_u32 s46, s46, s{XB}')
        e('v_add3_u32 v9, v9, v8, s46')
        if o.tskip: e('v_or_b32 v9, s47, v9')
    if o.mtouch == 2: etouch()
    for k in range(o.opre): odma(k)
    e('s_barrier')
    stamp(1)
    if o.mtouch == 3: etouch()
    for k in range(o.opre, 12):
        if k == 11:
            e(f's_cmp_lg_u32 s{WAVE}, 0')
            e('s_cbranch_scc1 L_o11')
        odma(k)
    e('L_o11:')
    if o.mtouch == 1: etouch()
    srd(e, S_WS, 12, WS_REC)
    srd(e, S_OUT, 8, 1152000, add=BOFF)
    srd(e, S_DBG, 10, 256)
    e('v_and_b32 v2, 15, v1')
    e('v_lshrrev_b32 v3, 4, v1')
    e('v_subrev_u32 v5, 4, v2')
    e('v_add_u32 v6, 8, v2')
    e('v_cmp_gt_u32 vcc, 4, v2')
    e('v_cmp_le_u32 s[46:47], 12, v2')
    e(f's_and_b32 s{TYP}, s{WAVE}, 1')
    e(f's_lshr_b32 s48, s{WAVE}, 1')
    e('v_cndmask_b32 v5, v5, v6, vcc')
    e('v_cndmask_b32 v5, v5, v2, s[46:47]')
    e('v_mul_u32_u24 v5, 9, v5')
    e('v_mul_u32_u24 v4, 288, v5')
    e('v_lshl_add_u32 v6, v3, 4, v4')
    e('v_and_b32 v7, 1, v3')
    e('v_lshl_add_u32 v7, v7, 4, v4')
    e('v_lshrrev_b32 v8, 1, v3')
    e('v_mul_u32_u24 v8, 2304, v8')
    e('v_add_u32 v7, v7, v8')
    e('v_add_u32 v7, 256, v7')
    e(f's_mul_i32 s49, s{TYP}, {X_D1}')
    e(f'v_add_u32 v{VXO}, {X_O}, v6')
    e(f'v_add_u32 v{VXOR}, {X_O}, v7')
    e(f'v_add_u32 v{VXD}, s49, v6')
    e(f'v_add_u32 v{VXDR}, s49, v7')
    e('v_lshlrev_b32 v6, 4, v1')
    e(f's_mul_i32 s49, s{WAVE}, 9216')
    e(f's_add_u32 s49, s49, {X_O}')
    e(f'v_add_u32 v{VEX}, s49, v6')
    e(f's_xor_b32 s49, s{WAVE}, 1')
    e('s_mul_i32 s49, s49, 9216')
    e(f's_add_u32 s49, s49, {X_O}')
    e(f'v_add_u32 v{VEXP}, s49, v6')
    e('v_and_b32 v8, 0x39, v1')
    e('v_bfe_u32 v9, v1, 1, 1')
    e('v_lshl_add_u32 v8, v9, 2, v8')
    e('v_bfe_u32 v9, v1, 2, 1')
    e('v_lshl_add_u32 v8, v9, 1, v8')
    e(f'v_lshlrev_b32 v{VWL}, 4, v8')
    e(f's_mul_i32 s49, s{TYP}, 576')
    e(f's_add_u32 s49, s49, s{XB}')
    e(f's_add_u32 s49, s49, {60*288}')
    e(f's_lshl_b32 s50, s{NB}, 5')
    e('s_add_u32 s49, s49, s50')
    e('s_lshl_b32 s50, s48, 4')
    e('s_add_u32 s49, s49, s50')
    e('v_mul_u32_u24 v8, 1152, v5')
    e('v_lshl_add_u32 v8, v3, 2, v8')
    e(f'v_add_u32 v{VOUT}, s49, v8')
    e(f'v_add_u32 v{VOUT+1}, 3456, v{VOUT}')
    e(f'v_add_u32 v{VOUT+2}, 6912, v{VOUT}')
    e(f's_lshl_b32 s49, s{NB}, 1')
    e('s_add_u32 s49, s49, s48')
    e('s_lshl_b32 s49, s49, 1')
    e(f's_add_u32 s49, s49, s{TYP}')
    e(f's_mul_i32 s{WSO}, s49, {NSTEP*1024}')
    e(f's_add_u32 s{WSO}, s{WSO}, {WOFF}')
    e(f's_mov_b32 s{C2L}, 0x4038aa3b'); e(f's_mov_b32 s{C2L+1}, 0x4038aa3b')
    e(f's_mov_b32 s{CNL}, 0xbfb8aa3b'); e(f's_mov_b32 s{CNL+1}, 0xbfb8aa3b')
    e(f's_mov_b32 s{C60}, 0x42700000')
    e(f'v_min_u32 v{VF}, 31, v1')
    e(f'v_lshlrev_b32 v{VF}, 7, v{VF}')
    e(f'v_min_u32 v{VF+6}, 47, v1')
    e(f'v_lshlrev_b32 v{VF+6}, 7, v{VF+6}')
    e(f'v_mov_b32 v{VF+2}, 1')
    e('s_lshl_b32 s46, s48, 2')
    e(f'v_add_u32 v{VF+5}, s46, v{VF+1}')
    e(f's_or_b32 s46, s2, s{WAVE}')
    e('v_or_b32 v2, s46, v1')
    e('v_cmp_eq_u32 vcc, 0, v2')
    e(f'v_mov_b32 v{VCL}, -16')
    e(f'v_mov_b32 v{VCL+1}, -16')
    e(f'v_mov_b32 v3, {NONCE}')
    e(f'v_cndmask_b32 v{VCL}, v{VCL}, 4, vcc')
    e(f'v_cndmask_b32 v{VCL+1}, v{VCL+1}, v3, vcc')
    e(f's_lshl_b32 s{FO}, s{TYP}, 13')
    if o.warmb:
        e(f's_cmp_eq_u32 s{TYP}, 1')
        e('s_cbranch_scc1 L_warmB')
        e('L_warmret:')
    e(f's_waitcnt vmcnt({1 if o.mtouch == 1 else 0}) lgkmcnt(0)')
    stamp(2)
    e('s_mov_b64 exec, 1')
    e(f'ds_add_u32 v{VF+1}, v{VF+2} offset:8')
    e('s_mov_b64 exec, -1')
    e(f's_add_u32 s{TAG}, s{TAG}, {TAGINC}')
    e(f'v_mov_b32 v{VF+3}, s{TAG}')
    def flagwait(tag, vaddr, back):
        e(f'L_fw{tag}:')
        if o.diag and len(tag) == 2: e(f's_add_u32 s95, s95, {1 << (5 * int(tag[1]))}')
        e(f'buffer_load_dword v{VF+4}, v{vaddr}, {sr(S_WS)}, s{FO} offen sc1')
        e(f'ds_read_b32 v{VF+7}, v{VF+1} offset:12')
        e(f's_add_u32 s{NPOLL}, s{NPOLL}, 1')
        e('s_waitcnt vmcnt(0) lgkmcnt(0)')
        e(f'v_cmp_ne_u32 vcc, v{VF+3}, v{VF+4}')
        e(f'v_readfirstlane_b32 s46, v{VF+7}')
        e('s_nop 3')
        e(f's_cbranch_vccz {back}')
        e('s_cmp_lg_u32 s46, 0')
        e(f's_cbranch_scc1 {back}')
        e(f's_cmp_lg_u32 s{NPOLL}, {o.maxpoll}')
        e(f's_cbranch_scc1 L_fw{tag}')
        e(f'v_mov_b32 v{VF+7}, 0x10000')
        e('s_mov_b64 exec, 1')
        e(f'ds_add_u32 v{VF+1}, v{VF+7} offset:4')
        e('s_mov_b64 exec, -1')
        e(f's_branch L_fw{tag}')
    if o.gate:
        e('L_gate:')
        e(f'ds_read_b32 v{VF+4}, v{VF+1} offset:8')
        e('s_waitcnt lgkmcnt(0)')
        e(f'v_cmp_gt_u32 vcc, 0x400, v{VF+4}')
        e('s_nop 4')
        e('s_cbranch_vccz L_gate2')
        e('s_sleep 1')
        e('s_branch L_gate')
        e('L_gate2:')
    flagwait('0', VF, 'L_go')
    e('L_go:')
    stamp(3)
    e('L_gw:')
    e(f'ds_read_b32 v{VF+4}, v{VF+1} offset:8')
    e('s_waitcnt lgkmcnt(0)')
    e(f'v_and_b32 v{VF+4}, 0xff, v{VF+4}')
    e(f'v_cmp_ne_u32 vcc, 4, v{VF+4}')
    e('s_nop 4')
    e('s_cbranch_vccnz L_gw')
    stamp(4)
    e(f's_setprio {o.mprio}')
    e(f's_cmp_eq_u32 s{TYP}, 1')
    e('s_cbranch_scc1 L_typeB')

    ACC = {'P': 64, 'Q': 100}
    WR, TMP = 136, 224
    XRING = [200 + 4 * i for i in range(6)]
    XWIN = [4 + 4 * i for i in range(6)] + [240 + 4 * i for i in range(4)]
    VC = 28
    PF = o.pf
    GT = 98
    wflags = ' sc1' if o.wsc1 else ''
    for typ, S in enumerate(streams()):
        if typ == 1:
            e('.p2align 6')
            if o.warmb: e('L_warmB:'); e('s_branch L_warmret')
            e('L_typeB:')
        ops = []
        vstart = {}
        lastv = o.vt - 1
        v0 = 0
        while v0 <= lastv:
            ch = 1 if v0 < o.chfrom else min(o.chain, lastv + 1 - v0)
            n0 = len(ops)
            for j in range(8, -1, -1):
                us = range(ch) if j % 2 == 0 else range(ch - 1, -1, -1)
                first_ = [u for u in us if v0 + u - j == 0 or (0 < v0 + u - j < NSTEP and S[v0+u-j][4] == 'Q' and S[v0+u-j-1][4] == 'P')]
                if first_: us = range(ch)
                for u in us:
                    if 0 <= v0 + u - j < NSTEP: ops.append((v0 + u - j, j))
            for u in range(ch): vstart[v0 + u] = n0 + (len(ops) - n0) * u // ch
            v0 += ch
        ntail = len(ops)
        if o.tail:
            for j in range(9):
                for g in range(o.vt - j, NSTEP): ops.append((g, j))
        assert len(ops) == NSTEP * 9 and len(set(ops)) == len(ops)
        N = len(ops)
        def key(n):
            g, j = ops[n]
            pid, arr, ch, c, acc = S[g]
            k = (pid, arr, ch, c + j)
            if n >= ntail and g < GT: k = k + ((n,) if not o.hold else ('h',))
            return k
        first, last = {}, {}
        for n in range(N):
            first.setdefault(key(n), n); last[key(n)] = n
        wfirst, wlast = {}, {}
        for n, (g, j) in enumerate(ops):
            wfirst.setdefault(g, n); wlast[g] = n
        tasks = []
        for k, n0 in first.items():
            win = o.tail and k[2] == 'rem' and k[1] == 'D'
            la = o.xla if n0 < ntail else 6
            if n0 >= ntail and ops[n0][1] == 0: la = o.tla
            elif win: la = 12
            tasks.append([n0 - la, n0 - 1, 'X', k])
        for g in range(NSTEP):
            rel = -100 + g if g < o.pf0 else max(0, wfirst[g] - 9 * PF)
            tasks.append([rel, wfirst[g] - 1, 'W', g])
        def at(v, off=0): return vstart[v] + off
        firstD = min(n for n in range(N) if S[ops[n][0]][1] == 'D')
        lastO = max(n for n in range(N) if S[ops[n][0]][1] == 'O')
        lastP = {j: max(n for n in range(N) if ops[n][1] == j and S[ops[n][0]][4] == 'P') for j in range(9)}
        slow = []
        vused = set()
        def check(v, off, cnt, tag):
            tasks.append([at(v - 1, 3), at(v - 1, 8), 'L', (f'ds_read_b32 v{VC}, v{VF+1} offset:{off}', ('c', tag))])
            tasks.append([at(v, 0), at(v, 1), 'C', (f'v_cmp_ne_u32 vcc, {cnt}, v{VC}', ('c', tag))])
            tasks.append([at(v, 6), at(v, 7), 'I', [f's_cbranch_vccnz L_slow{typ}{tag}', f'L_back{typ}{tag}:']])
            slow.append((tag, off, cnt))
            vused.add(v)
            return at(v, 8)
        def add1(pos, off):
            tasks.append([pos, pos + 4, 'A', off])
        vD = [v for v in vstart if vstart[v] <= firstD - o.xla][-1] - 1
        okD = check(vD, 16, 4, 'D')
        assert okD <= firstD - o.xla
        add1(lastO, 20)
        VP = 47
        okR = check(VP, 20, 4, 'R')
        for j in range(9):
            assert lastP[j] + 12 < at(VP + 1 + j, 2)
            tasks.append([at(VP + 1 + j, 2), at(VP + 1 + j, 8), 'L', (f'ds_write_b128 v{VEX}, {vr(ACC["P"]+4*j,4)} offset:{1024*j}', ('pw', j))])
        tasks.append([at(VP + 10, 0), at(VP + 10, 4), 'A', 'pair'])
        VQ = VP + 13
        okP = check(VQ, 'pair', 2, 'P')
        for j in range(9):
            tasks.append([at(VQ + 1 + j, 2), at(VQ + 1 + j, 8), 'L', (f'ds_read_b128 {vr(TMP+4*(j&1),4)}, v{VEXP} offset:{1024*j}', ('pr', j))])
            v = VQ + 2 + j
            pos = at(v, 8 - (j + 2) - 1) if j <= 6 else at(v, 8 - (j - 7) - 1)
            sh = 1 if j >= 7 else 0
            if o.chain > 1:
                own = [n for n in range(N) if ops[n][1] == j]
                pos = [a_ + 10 for a_, b_ in zip(own, own[1:]) if b_ - a_ >= 14 and a_ + 9 >= at(v, 0) ][0]
                sh = 0
                tasks[-1][0] = pos - 9; tasks[-1][1] = pos - 4
                tasks[-1][3] = (f'ds_read_b128 {vr(TMP+4*(j&3),4)}, v{VEXP} offset:{1024*j}', ('pr', j))
            tasks.append([pos - 1 + sh, pos - 1 + sh, 'Q', (j, 0)])
            tasks.append([pos + sh, pos + sh, 'Q', (j, 1)])
        if typ == 0:
            tasks.append([at(64, 4), at(64, 8), 'S', f'buffer_store_dword v{VCL+1}, v{VCL}, {sr(S_DBG)}, 0 offen sc1'])
            tasks.append([at(84, 4), at(84, 8), 'S', f'buffer_store_dword v{VF+3}, v{VCL+1}, {sr(S_WS)}, 0 offen sc1'])
        fslow = []
        passes = {}
        for g in range(NSTEP): passes.setdefault(S[g][0], g)
        need = [(passes[1], VF, 32 + 64 * typ), (32, VF + 6, 128), (passes[4], VF, 176), (passes[5], VF, 208), (passes[6], VF + 6, 240)]
        for ci, (gn, va, idx) in enumerate(need):
            v = gn - o.pfcs[ci] - 1
            while v in vused: v -= 1
            tasks.append([at(v - o.flead, 4), at(v - o.flead, 8), 'F', (va, idx, ci)])
            tasks.append([at(v, 0), at(v, 1), 'G', ci])
            tasks.append([at(v, 6), at(v, 7), 'I', [f's_cbranch_vccnz L_fw{typ}{ci}', f'L_fb{typ}{ci}:']])
            fslow.append((ci, va))
            assert v not in vused, v
            for t in tasks:
                if t[2] == 'W' and (t[3] >= gn): t[0] = max(t[0], at(v, 8))
        tasks.append([at(v + 1, 2), at(v + 1, 8), 'A', 4])
        if typ == 0:
            for lvl, v in enumerate(o.trig): tasks.append([at(v, 2), at(v, 8), 'P', lvl + 1])
        tasks.sort(key=lambda t: (t[0], t[1]))
        vq, lq = [], []
        dirty = [False]
        xreg, busy = {}, {}
        wn = [0]
        wr = {}
        lastw = [-100]
        later = []
        BIG = [WR + 4 * i for i in range(16)] + XWIN + [ACC['P'] + 4 * i for i in range(9)]
        for i in range(9): busy[ACC['P'] + 4 * i] = at(VP + 12)
        until = {}
        if o.chain > 1:
            BIG += XRING + [VA, VA + 4, VA + 8]
            for i in range(9):
                BIG.append(ACC['Q'] + 4 * i)
                until[ACC['Q'] + 4 * i] = min(n for n in range(N) if ops[n][1] == i and S[ops[n][0]][4] == 'Q') - 3
        def freeregs(n, end): return [x for x in BIG if busy.get(x, -1) <= n and end < until.get(x, 10**9)]
        def wok(t, n):
            if t[2] != 'W': return True
            if t[3] != wn[0]: return False
            free = len(freeregs(n, wlast[t[3]]))
            if t[1] - n <= 9 * 3: return free > 0
            return n - lastw[0] >= o.wgap and free > o.wres
        since = {}
        fill = []
        def em(x):
            e(x)
            if not x.endswith(':'):
                for jj in since: since[jj] += 1
        def lwait(tag):
            if tag not in lq: return
            i = lq.index(tag)
            em(f's_waitcnt lgkmcnt({0 if dirty[0] else len(lq)-1-i})')
            if dirty[0]: lq.clear(); dirty[0] = False
            else: del lq[:i + 1]
        def vwait(g):
            if g not in vq: return
            i = vq.index(g)
            em(f's_waitcnt vmcnt({len(vq)-1-i})')
            del vq[:i + 1]
        def run(t, n):
            kind, p = t[2], t[3]
            if kind == 'X':
                pool = BIG if (o.chain > 1 or p[-1] == 'h' or (p[2] == 'rem' and p[1] == 'D')) else XRING
                r = [x for x in pool if busy.get(x, -1) <= n and last[p] < until.get(x, 10**9)]
                assert r, ('no x register', p, n)
                r = min(r, key=lambda x: (until.get(x, 10**9), busy.get(x, -1)))
                busy[r] = last[p]; xreg[p] = r
                arr, ch, s_ = p[1], p[2], p[3]
                if o.nolds and n > 9 * 30: return
                if ch == 'rem': em(f'ds_read_b128 {vr(r,4)}, v{VXOR if arr == "O" else VXDR} offset:{288*s_}')
                else: em(f'ds_read_b128 {vr(r,4)}, v{VXO if arr == "O" else VXD} offset:{64*ch+288*s_}')
                lq.append(p)
            elif kind == 'W':
                g = p
                r = min(freeregs(n, wlast[g]), key=lambda x: (until.get(x, 10**9), busy.get(x, -1)))
                busy[r] = wlast[g]; wr[g] = r
                assert g == wn[0]; wn[0] += 1
                lastw[0] = n
                if o.now and g > 40: return
                if o.wsame and g > 40:
                    em(f'buffer_load_dwordx4 {vr(r,4)}, v{VWL}, {sr(S_WS)}, s{WSO} offen offset:{1024*(g%4)}{wflags}'); vq.append(g); return
                em(f'buffer_load_dwordx4 {vr(r,4)}, v{VWL}, {sr(S_WS)}, s{WSO} offen offset:{1024*(g%4)}{wflags}')
                if g % 4 == 3:
                    if n < 0: em(f's_add_u32 s{WSO}, s{WSO}, 4096')
                    else: later.append(f's_add_u32 s{WSO}, s{WSO}, 4096')
                vq.append(g)
            elif kind == 'L':
                em(p[0].replace('offset:pair', 'offset:24').replace(f'v{VF+1} offset:24', f'v{VF+5} offset:24')); lq.append(p[1])
            elif kind == 'C':
                lwait(p[1]); em(p[0])
            elif kind == 'I':
                for x in p: em(x)
            elif kind == 'A':
                em('s_mov_b64 exec, 1')
                if p == 'pair': em(f'ds_add_u32 v{VF+5}, v{VF+2} offset:24')
                else: em(f'ds_add_u32 v{VF+1}, v{VF+2} offset:{p}')
                em('s_mov_b64 exec, -1')
                lq.append(('a', p))
            elif kind == 'Q':
                p, hf = p
                lwait(('pr', p))
                q = ACC['Q'] + 4 * p; t_ = TMP + 4 * (p & (3 if o.chain > 1 else 1))
                for i in (2 * hf, 2 * hf + 1): em(f'v_add_f32 v{q+i}, v{q+i}, v{t_+i}')
            elif kind == 'S':
                assert not any(isinstance(x, tuple) and x[0] == 's' for x in vq)
                em(p); vq.append(('s', n))
            elif kind == 'F':
                em(f's_mov_b32 s{FO}, {128*p[1]}')
                em(f'buffer_load_dword v{VF+4}, v{p[0]}, {sr(S_WS)}, s{FO} offen {o.fflags}'); vq.append(('f', p[2]))
            elif kind == 'G':
                vwait(('f', p)); em(f'v_cmp_ne_u32 vcc, v{VF+3}, v{VF+4}')
            elif kind == 'P':
                em(f'v_mov_b32 v{VF+7}, {p}')
                em('s_mov_b64 exec, 1')
                em(f'ds_max_u32 v{VF+1}, v{VF+7}')
                em('s_mov_b64 exec, -1')
                lq.append(('p', p))
        def epi(j, pk):
            q = ACC['Q'] + 4 * j
            t = TMP + 8 * (j & 1)
            I = []
            if pk:
                I.append(f'v_pk_mul_f32 {vr(t,2)}, {vr(q,2)}, s[{C2L}:{C2L+1}]')
                I.append(f'v_pk_mul_f32 {vr(t+2,2)}, {vr(q+2,2)}, s[{CNL}:{CNL+1}]')
            else:
                for i in (0, 1): I.append(f'v_mul_f32 v{t+i}, s{C2L}, v{q+i}')
                for i in (2, 3): I.append(f'v_mul_f32 v{t+i}, s{CNL}, v{q+i}')
            I.append(f'v_min_f32 v{t}, s{C60}, v{t}')
            I.append(f'v_min_f32 v{t+1}, s{C60}, v{t+1}')
            for i in (0, 1, 2, 3): I.append(f'v_exp_f32 v{t+i}, v{t+i}')
            if pk:
                I.append(f'v_pk_add_f32 {vr(t+4,2)}, {vr(t,2)}, 1.0 op_sel_hi:[1,0]')
                I.append(f'v_pk_add_f32 {vr(t+6,2)}, {vr(t,2)}, -1.0 op_sel_hi:[1,0]')
                I.append(f'v_pk_fma_f32 {vr(t+4,2)}, {vr(t+4,2)}, {vr(t+2,2)}, {vr(t+4,2)}')
            else:
                for i in (0, 1): I.append(f'v_add_f32 v{t+4+i}, 1.0, v{t+i}')
                for i in (0, 1): I.append(f'v_fma_f32 v{t+4+i}, v{t+4+i}, v{t+2+i}, v{t+4+i}')
            I.append(f'v_rcp_f32 v{t+4}, v{t+4}')
            I.append(f'v_rcp_f32 v{t+5}, v{t+5}')
            if pk:
                I.append('s_nop 0')
                I.append(f'v_pk_mul_f32 {vr(t+6,2)}, {vr(t+6,2)}, {vr(t+4,2)}')
            else:
                for i in (0, 1): I.append(f'v_add_f32 v{t+6+i}, -1.0, v{t+i}')
                for i in (0, 1): I.append(f'v_mul_f32 v{t+6+i}, v{t+6+i}, v{t+4+i}')
            I.append(f'v_cvt_pk_bf16_f32 v{q}, v{t+6}, v{t+7}')
            I.append(f'buffer_store_dword v{q}, v{VOUT + j//3}, {sr(S_OUT)}, 0 offen offset:{1152*(j%3)} {o.oflags if j < o.oj else ""}')
            return I
        def cost(x): return 2 if x.startswith(('v_exp', 'v_rcp', 'buffer')) else 1
        while tasks and tasks[0][0] < 0: run(tasks.pop(0), -1)
        inv = {n: v for v, n in vstart.items()}
        lastop = {j: max(n for n in range(N) if ops[n][1] == j) for j in range(9)}
        for n, (g, j) in enumerate(ops):
            if n in inv and o.padto and o.padev == 'm5' and inv[n] == o.padstep:
                e('s_memrealtime s[100:101]'); dirty[0] = True
            if n in inv and o.diag:
                v = inv[n]
                if o.diag == 2 and v in o.marks:
                    kk = o.marks.index(v)
                    e(f's_memtime s[{ST0+2*kk}:{ST0+2*kk+1}]'); dirty[0] = True
                if o.diag in (1, 4) and v == 33: stamp(5); stamp(6); dirty[0] = True
            k = key(n)
            assert k in xreg, (k, n)
            lwait(k); vwait(g)
            acc = S[g][4]
            d = ACC[acc] + 4 * j
            if g == 0: cs = '0'
            elif acc == 'Q' and S[g-1][4] == 'P': cs = vr(ACC['P'] + 4 * j, 4)
            else: cs = vr(d, 4)
            em(f'v_mfma_f32_16x16x32_bf16 {vr(d,4)}, {vr(wr[g],4)}, {vr(xreg[k],4)}, {cs}' if not o.swapab else f'v_mfma_f32_16x16x32_bf16 {vr(d,4)}, {vr(xreg[k],4)}, {vr(wr[g],4)}, {cs}')
            if n == lastop[j]: since[j] = 0
            while later: em(later.pop(0))
            budget = 2
            TC = {'X': 1, 'W': 2, 'L': 2, 'C': 1, 'I': 0, 'A': 1, 'Q': 2, 'S': 2, 'F': 2, 'G': 1, 'P': 2}
            while True:
                ready = [t for t in tasks if t[0] <= n and wok(t, n)]
                if not ready: break
                t = min(ready, key=lambda t: t[1])
                assert t[1] >= n, ('late', t, n)
                if TC[t[2]] > budget and t[1] > n:
                    fit = [u for u in ready if TC[u[2]] <= budget]
                    if not fit: break
                    t = min(fit, key=lambda t: t[1])
                tasks.remove(t); run(t, n); budget -= TC[t[2]]
            for jj in sorted(since):
                if 8 <= since[jj] < 10**6:
                    fill += epi(jj, False); since[jj] = 10**6
            budget += o.nfill - 2
            while fill and budget >= cost(fill[0]):
                budget -= cost(fill[0])
                if fill[0].startswith('buffer_store'):
                    q_ = int(re.match(r'buffer_store_dword v(\d+)', fill[0]).group(1))
                    until.pop(q_, None); busy[q_] = n + 2
                em(fill.pop(0))
            assert all(t[1] > n for t in tasks), ('late', n, [t for t in tasks if t[1] <= n])
        assert not tasks
        stamp(7)
        while fill: em(fill.pop(0))
        for jj in [jj for jj in sorted(since) if since[jj] < 10**6]:
            if since[jj] < 8: em(f's_nop {8-since[jj]-1}')
            for x in epi(jj, True): em(x)
        stamp(8)
        if o.padto and o.padev[0] == 'm': padloop(typ)
        if o.diag == 1:
            e('s_waitcnt vmcnt(0)')
            stamp(9)
            dump(10)
        if o.diag == 2:
            kk = len(o.marks)
            e(f's_memtime s[{ST0+2*kk}:{ST0+2*kk+1}]')
            dump(10)
        e('s_endpgm')
        for tag, off, cnt in slow:
            e(f'L_slow{typ}{tag}:')
            e(f'ds_read_b32 v{VC}, v{VF+5 if off == "pair" else VF+1} offset:{24 if off == "pair" else off}')
            e('s_waitcnt lgkmcnt(0)')
            e(f'v_cmp_ne_u32 vcc, {cnt}, v{VC}')
            e('s_nop 4')
            e(f's_cbranch_vccnz L_slow{typ}{tag}')
            e(f's_branch L_back{typ}{tag}')
        for ci, va in fslow: flagwait(f'{typ}{ci}', va, f'L_fb{typ}{ci}')

    mark['help0'] = len(e.L)
    if not o.hfirst: e('.p2align 6')
    e('L_helper:')
    role[0] = 'h'
    e(f's_setprio {o.hprio}')
    e(f's_sub_u32 s{TW0}, s{WAVE}, 4')
    e(f's_mov_b32 s{TW1}, s{WAVE}')
    e(f's_sub_u32 s{PAIR}, s2, {NPROD}')
    e(f's_cselect_b32 s{PAIR}, s2, s{PAIR}')
    e(f's_mov_b32 s{MODE}, 0')
    e(f's_mov_b32 s{NOTASK}, s2')
    e(f's_mov_b32 s{HAS3}, s{TW0}')
    e(f's_lshl_b32 s{SCRB}, s{TW0}, 12')
    e(f's_add_u32 s{SCRB}, s{SCRB}, {SCR}')
    e('L_prod:')
    T = [(28, TW0, 2, 52, 0), (36, TW1, 4, 53, 2048), (44, TW2, 6, 54, 16384)]
    c, kp, q, cc, kk, t = 46, 47, 48, 49, 50, 51
    b = TS
    e('v_mov_b32 v19, 4320')
    e('v_and_b32 v23, 3, v1')
    e('v_lshrrev_b32 v24, 3, v1')
    e('v_mul_u32_u24 v24, 576, v24')
    e('v_bfe_u32 v25, v1, 2, 1')
    e('v_mul_u32_u24 v25, 288, v25')
    e('v_add_u32 v24, v24, v25')
    for (vb, sw, vl, vs, so) in T:
        e(f'v_lshl_add_u32 v8, s{sw}, 2, v23' if sw != TW2 else 'v_add_u32 v8, 32, v23')
        e('v_cmp_le_u32 vcc, 18, v8')
        e(f'v_lshl_add_u32 v{vl}, v8, 4, v24')
        e(f'v_add_u32 v9, v{vl}, v19')
        e(f'v_cndmask_b32 v{vl}, v{vl}, v9, vcc')
    e(f's_and_b32 s{c}, s{PAIR}, 15')
    e(f's_lshr_b32 s{kp}, s{PAIR}, 4')
    e(f's_mul_i32 s{b}, s{c}, 165888')
    e(f's_mul_i32 s{t}, s{kp}, 9216')
    e(f's_add_u32 s{b}, s{b}, s{t}')
    e(f's_add_u32 s{b+1}, s{b}, 82944')
    e(f's_mov_b32 s{S_W+2}, 2571264')
    e(f's_mov_b32 s{S_W+3}, 0x20000')
    e(f's_mov_b32 s{S_WO+3}, 0x20000')
    e(f's_cmp_lg_u32 s{c}, 15')
    e(f's_cselect_b32 s{S_WO+2}, 2571264, 0')
    e(f's_mov_b32 m0, s{SCRB}')
    e('s_waitcnt lgkmcnt(0)')
    e(f's_mov_b32 s{S_W}, s6')
    e(f's_and_b32 s{S_W+1}, s7, 0xffff')
    e(f's_mov_b32 s{S_WO}, s6')
    e(f's_and_b32 s{S_WO+1}, s7, 0xffff')
    e(f's_cmp_ge_u32 s{NOTASK}, {NTASK}')
    e('s_cbranch_scc1 L_a3')
    def cond3(lbl):
        e(f's_cmp_lg_u32 s{HAS3}, 0')
        e(f's_cbranch_scc1 {lbl}')
    for ti, (vb, sw, vl, vs, so) in enumerate(T):
        if ti == 2: cond3('L_a3')
        if ti == 1: e('s_addk_i32 m0, 1024'); e('s_nop 0')
        e(f'buffer_load_dwordx4 v{vl}, {sr(S_W)}, s{b} offen lds')
        e('s_addk_i32 m0, 1024')
        e('s_nop 0')
        e(f'buffer_load_dwordx4 v{vl}, {sr(S_WO)}, s{b+1} offen lds')
        if ti == 1: e(f's_addk_i32 m0, {16384-3072}')
    e('L_a3:')
    stamp(1)
    e(f's_cmp_lg_u32 s{MODE}, 0')
    e('s_cbranch_scc1 L_a4')
    e(f's_load_dword s{TAG}, s[12:13], {NONCE}')
    e(f's_lshr_b32 s{EARLY}, 0x33, s{kp}')
    e(f's_and_b32 s{EARLY}, s{EARLY}, 1')
    e(f's_sub_u32 s{XK}, 2, s{EARLY}')
    e(f's_lshl_b32 s{t}, s{kp}, 1')
    e(f's_lshr_b32 s{YT}, {(3<<12)+(3<<14)+(3<<16)}, s{t}')
    e(f's_and_b32 s{YT}, s{YT}, 3')
    e(f's_lshr_b32 s{t}, s{kp}, 1')
    e(f's_cmp_ge_u32 s2, {NPROD}')
    e(f's_cselect_b32 s{EARLY}, 0, s{EARLY}')
    e(f's_cselect_b32 s{XK}, 3, s{XK}')
    e(f's_cselect_b32 s{YT}, s{t}, s{YT}')
    e(f's_cmp_ge_u32 s2, {NPROD+32}')
    e(f's_cselect_b32 s{XK}, 0, s{XK}')
    e(f's_cmp_ge_u32 s2, {NTASK}')
    e(f's_cselect_b32 s{YT}, 0, s{YT}')
    if not o.b0early:
        e(f's_cmp_lg_u32 s{EARLY}, 0')
        e('s_cbranch_scc1 L_a4')
    e('s_barrier')
    e('L_a4:')
    e(f's_mov_b32 s{MASK}, 0xffff0000')
    e(f's_mov_b32 s{NPOLL}, 0')
    srd(e, S_WS, 12, WS_REC)
    srd(e, S_DBG, 10, 256)
    e(f'v_mov_b32 v10, {CNT}')
    e(f'v_mov_b32 v20, {(256 - 18*2*NSTEP*1024) & 0xffffffff}')
    e(f'v_mov_b32 v26, {2*NSTEP*1024}')
    e('v_bfe_u32 v21, v1, 2, 2')
    e('v_lshlrev_b32 v21, 7, v21')
    e('v_and_b32 v22, 1, v1')
    e('v_lshl_add_u32 v21, v22, 6, v21')
    e('v_bfe_u32 v22, v1, 1, 1')
    e('v_lshl_add_u32 v21, v22, 3, v21')
    e('v_lshrrev_b32 v22, 4, v1')
    e('v_lshl_add_u32 v21, v22, 4, v21')
    e(f'v_add_u32 v21, s{SCRB}, v21')
    e('v_and_b32 v25, 15, v1')
    e('v_lshlrev_b32 v25, 4, v25')
    for (vb, sw, vl, vs, so) in T:
        e(f'v_lshl_add_u32 v8, s{sw}, 2, v22' if sw != TW2 else 'v_add_u32 v8, 32, v22')
        e('v_cmp_le_u32 vcc, 18, v8')
        e(f'v_mad_u32_u24 v{vs}, v8, v26, v25')
        e(f'v_add_u32 v9, v{vs}, v20')
        e(f'v_cndmask_b32 v{vs}, v{vs}, v9, vcc')
    e(f's_lshr_b32 s{q}, s{kp}, 1')
    e(f's_and_b32 s{cc}, s{c}, 7')
    e(f's_lshr_b32 s{kk}, s{c}, 3')
    e(f's_and_b32 s{t}, s{kp}, 1')
    e(f's_cmp_eq_u32 s{kp}, 8')
    e(f's_cselect_b32 s{cc}, s{cc}, s{c}')
    e(f's_cselect_b32 s{kk}, s{kk}, s{t}')
    e(f's_lshl_b32 s{kk}, s{kk}, 9')
    e(f's_add_u32 s{kk}, s{kk}, {WOFF}')
    e(f's_lshl_b32 s{t}, s{q}, 4')
    e(f's_add_u32 s{b+2}, s{t}, s{cc}')
    e(f's_sub_u32 s{b+3}, s{b+2}, s{q}')
    e(f's_cmp_ge_u32 s{q}, 2')
    e(f's_cselect_b32 s{b+4}, 74, 0')
    e(f's_add_u32 s{b+4}, s{b+4}, s{b+2}')
    e(f's_cmp_lt_u32 s{cc}, 2')
    e(f's_cselect_b32 s{t}, 32, 136')
    e(f's_add_u32 s{t}, s{t}, s{cc}')
    e(f's_cmp_eq_u32 s{kp}, 8')
    e(f's_cselect_b32 s{b+4}, s{t}, s{b+4}')
    e(f's_add_u32 s{b+2}, s{b+2}, 34')
    e(f's_add_u32 s{b+3}, s{b+3}, 144')
    for k in (2, 3, 4):
        e(f's_lshl_b32 s{b+k}, s{b+k}, 10')
        e(f's_add_u32 s{b+k}, s{b+k}, s{kk}')
    e(f's_cmp_eq_u32 s{kp}, 8')
    e(f's_cselect_b32 s{t}, 1, 2')
    e(f's_cmp_eq_u32 s{c}, 15')
    e(f's_cselect_b32 s{b+5}, s{t}, 0')
    e(f's_lshl_b32 s46, s{WAVE}, 2')
    e(f's_add_u32 s46, s46, {CNT+16}')
    e('v_mov_b32 v55, s46')
    e('v_mov_b32 v27, 0')
    e('v_mov_b32 v9, 4')
    e('s_waitcnt vmcnt(0) lgkmcnt(0)')
    stamp(2)
    e(f's_cmp_ge_u32 s{NOTASK}, {NTASK}')
    e('s_cbranch_scc1 L_x9')
    e(f's_cmp_lg_u32 s{WAVE}, 4')
    e('s_cbranch_scc1 L_a5')
    e('s_mov_b64 exec, 1')
    e(f'buffer_load_dword v27, v9, {sr(S_DBG)}, 0 offen sc1')
    e('s_mov_b64 exec, -1')
    e('L_a5:')
    for (vb, sw, vl, vs, so) in T:
        for tap in range(2):
            for half in range(2):
                e(f'ds_read_b64_tr_b16 {vr(vb+4*tap+2*half,2)}, v21 offset:{so+1024*tap+512*half}')
    nlab = [0]
    def st01(vb, vs):
        nlab[0] += 1
        e(f'buffer_store_dwordx4 {vr(vb,4)}, v{vs}, {sr(S_WS)}, s{b+2} offen sc1')
        e(f's_cmp_eq_u32 s{b+5}, 2')
        e(f's_cbranch_scc1 L_skip{nlab[0]}')
        e(f'buffer_store_dwordx4 {vr(vb+4,4)}, v{vs}, {sr(S_WS)}, s{b+3} offen sc1')
        e(f'L_skip{nlab[0]}:')
    def st01all(lbl):
        st01(T[0][0], T[0][3]); st01(T[1][0], T[1][3])
        cond3(lbl)
        st01(T[2][0], T[2][3])
    def dosum(vb, tb, ob):
        for i in range(8):
            e(f'v_lshlrev_b32 v{tb+2*i}, 16, v{vb+i}')
            e(f'v_and_b32 v{tb+2*i+1}, s{MASK}, v{vb+i}')
        for i in range(4):
            e(f'v_pk_add_f32 {vr(tb+2*i,2)}, {vr(tb+2*i,2)}, {vr(tb+8+2*i,2)}')
        for i in range(4):
            e(f'v_cvt_pk_bf16_f32 v{ob+i}, v{tb+2*i}, v{tb+2*i+1}')
    def ldswait(off, cmp, operand, tag, slp):
        e(f'L_lw{tag}:')
        e(f'ds_read_b32 v11, v10 offset:{off}')
        e('s_waitcnt lgkmcnt(0)')
        e('v_and_b32 v11, 0xff, v11')
        e(f'v_cmp_{cmp}_u32 vcc, {operand}, v11')
        e('s_nop 4')
        e(f's_cbranch_vccnz L_lx{tag}')
        e(f's_sleep {slp}')
        e(f's_branch L_lw{tag}')
        e(f'L_lx{tag}:')
    SO = 240
    e(f's_or_b32 s46, s{EARLY}, s{MODE}')
    e(f's_cmp_eq_u32 s{XK}, 2')
    e('s_cselect_b32 s47, 1, s46')
    e('s_cmp_eq_u32 s47, 0')
    e('s_cbranch_scc1 L_x9')
    for ti, (vb, sw, vl, vs, so) in enumerate(T):
        if ti == 2: cond3('L_x3')
        e(f's_waitcnt lgkmcnt({8-4*ti})')
        dosum(vb, 64 + 16 * ti, SO + 4 * ti)
        e('s_cmp_eq_u32 s46, 0')
        e(f's_cbranch_scc1 L_x5{ti}')
        e(f'buffer_store_dwordx4 {vr(SO+4*ti,4)}, v{vs}, {sr(S_WS)}, s{b+4} offen sc1')
        e(f'L_x5{ti}:')
    e('L_x3:')
    e(f's_cmp_eq_u32 s{MODE}, 0')
    e('s_cbranch_scc1 L_x9')
    e('L_x2:')
    e('s_waitcnt lgkmcnt(0)')
    st01all('L_x4')
    e('L_x4:')
    e(f's_cmp_eq_u32 s{MODE}, 0')
    e('s_cbranch_scc1 L_x9')
    e('s_waitcnt vmcnt(0)')
    e(f's_add_u32 s{PAIR}, s{PAIR}, 1')
    e(f's_cmp_lt_u32 s{PAIR}, {NPROD}')
    e('s_cbranch_scc1 L_prod')
    e('v_mov_b32 v11, 1')
    e('ds_write_b32 v10, v11 offset:12')
    e('s_endpgm')
    e('L_x9:')
    stamp(3)
    decode()
    e('v_subrev_u32 v4, 256, v0')
    e('v_min_u32 v4, 251, v4')
    e('v_mul_u32_u24 v3, 3641, v4')
    e('v_lshrrev_b32 v3, 16, v3')
    e('v_mul_u32_u24 v2, 18, v3')
    e('v_sub_u32 v2, v4, v2')
    e(f'v_mul_u32_u24 v3, {R}, v3')
    e(f'v_min_u32 v3, {160-R}, v3')
    e('v_mul_u32_u24 v4, 1152, v3')
    e('v_lshl_add_u32 v4, v2, 4, v4')
    e(f'v_add_u32 v12, s{XB}, v4')
    e('v_mul_u32_u24 v18, 288, v3')
    e('v_lshl_add_u32 v18, v2, 4, v18')
    e(f'v_add_u32 v19, {X_D1}, v18')
    srd(e, S_X, 4, 1152000, add=BOFF)
    e(f's_add_u32 s46, s{TAG}, {TAGINC}')
    e('v_mov_b32 v56, s46')
    e('s_lshl_b32 s46, s2, 7')
    e('v_mov_b32 v58, s46')
    e(f's_add_u32 s46, s{PAIR}, {NPROD}')
    e('s_lshl_b32 s46, s46, 7')
    e('v_mov_b32 v59, s46')
    def publish(slot, vflag, tag, first, n=0):
        e('s_mov_b64 exec, 1')
        e(f's_waitcnt vmcnt({n})')
        if first: stamp(4)
        if o.padto and tag == 'x': stamp(12)
        e('v_cmp_ne_u32 vcc, 0, v27')
        e('v_not_b32 v57, v56')
        e('s_nop 0')
        e('v_cndmask_b32 v57, v56, v57, vcc')
        e(f'ds_write_b32 v55, v57 offset:{slot}')
        e(f'ds_read_b128 v[20:23], v10 offset:{32+slot}')
        e('s_waitcnt lgkmcnt(0)')
        for i in range(4): e(f'v_xor_b32 v{20+i}, v{20+i}, v56')
        e('v_or3_b32 v20, v20, v21, v22')
        e('v_or_b32 v20, v20, v23')
        e('v_cmp_eq_u32 vcc, 0, v20')
        e('s_and_b64 exec, exec, vcc')
        e(f's_cbranch_execz L_nl{tag}')
        e(f'buffer_store_dword v56, v{vflag}, {sr(S_WS)}, 0 offen sc1')
        e(f'L_nl{tag}:')
        e('s_mov_b64 exec, -1')
    e(f's_cmp_eq_u32 s{EARLY}, 0')
    e('s_cbranch_scc1 L_noflag')
    publish(0, 58, 'x', True)
    if not o.b0early: e('s_barrier')
    e('L_noflag:')
    e(f's_setprio {o.hprio2}')
    RAW, ORAW = 64, 120
    EU = [184, 192]
    OU, DT, DO = 200, 208, 216
    xi = [0]
    NL = R + 1
    hq = []
    def eload():
        k = xi[0]
        if k >= NL: return
        a_ = 12
        if k:
            a_ = 13 + (k & 3)
            e(f'v_add_u32 v{a_}, {1152*k}, v12')
        e(f'buffer_load_dwordx4 {vr(RAW+4*k,4)}, v{a_}, {sr(S_X)}, 0 offen')
        xi[0] += 1
        hq.append(('e', k))
    if o.etouch:
        e(f's_cmp_lt_u32 s2, {NTASK}')
        e('s_cbranch_scc1 L_net')
        e(f's_and_b32 s46, s{NB}, 1')
        e(f's_mul_i32 s46, s46, {1152*6}')
        e('v_add_u32 v12, s46, v12')
        for _ in range(7): eload()
        e('v_subrev_u32 v12, s46, v12')
        e('s_waitcnt vmcnt(0)')
        e('L_net:')
        xi[0] = 0; hq.clear()
    YA = 232
    e(f's_cmp_eq_u32 s{b+5}, 2')
    e('s_cselect_b32 s46, 0x80000000, 0')
    e(f's_cmp_lg_u32 s{HAS3}, 0')
    e('s_cselect_b32 s47, 0x80000000, 0')
    e('s_or_b32 s48, s46, s47')
    for i in range(6):
        m_ = {0: None, 1: 46, 2: None, 3: 46, 4: 47, 5: 48}[i]
        e(f'v_mov_b32 v{YA+i}, v{52+i//2}' if m_ is None else f'v_or_b32 v{YA+i}, s{m_}, v{52+i//2}')
    def ystore(i, a_):
        e(f'buffer_store_dwordx4 {vr(28+4*i,4)}, v{a_}, {sr(S_WS)}, s{b+2+(i&1)} offen sc1')
        hq.append(('y', i))
    stamp(5)
    ldswait(8, 'eq', 4, 'o', 1)
    def unpack(dst, s_):
        for i in range(4):
            e(f'v_lshlrev_b32 v{dst+2*i}, 16, v{s_+i}')
            e(f'v_and_b32 v{dst+2*i+1}, s{MASK}, v{s_+i}')
    def unpackE(dst, k):
        e(f's_waitcnt vmcnt({len(hq)-1-hq.index(("e", k))})')
        unpack(dst, RAW + 4 * k)
        eload()
    def diff(eu, out):
        for i in range(8): e(f'v_sub_f32 v{DT+i}, v{eu+i}, v{OU+i}')
        for i in range(4):
            e(f'v_cvt_pk_bf16_f32 v{out+i}, v{DT+2*i}, v{DT+2*i+1}')
    def opengate():
        if not o.gate: return
        e('v_mov_b32 v11, 0x100')
        e('s_mov_b64 exec, 1')
        e('ds_add_u32 v10, v11 offset:8')
        e('s_mov_b64 exec, -1')
    def rows(hook):
        stamp(6)
        for j in range(R):
            e(f'ds_read_b128 {vr(ORAW+4*j,4)}, v18 offset:{X_O+288*j}')
        unpackE(EU[0], 0)
        e('s_waitcnt lgkmcnt(0)')
        for j in range(R):
            o0 = DO + 8 * (j & 1)
            unpack(OU, ORAW + 4 * j)
            diff(EU[j & 1], o0)
            e(f'ds_write_b128 v18, {vr(o0,4)} offset:{X_D0+288*j}')
            unpackE(EU[(j + 1) & 1], j + 1)
            diff(EU[(j + 1) & 1], o0 + 4)
            e(f'ds_write_b128 v19, {vr(o0+4,4)} offset:{288*j}')
            hook(j)
    e(f's_cmp_ge_u32 s2, {NPROD + (32 if o.d0p else 0)}')
    e('s_cbranch_scc1 L_pathA')
    e(f's_cmp_lt_u32 s{XK}, 2')
    e('s_cbranch_scc1 L_nox')
    if o.d0p:
        e(f's_cmp_eq_u32 s{XK}, 3')
        e('s_cbranch_scc1 L_xd')
    for i in range(3):
        e(f'buffer_store_dwordx4 {vr(SO+4*i,4)}, v{YA+2*i}, {sr(S_WS)}, s{b+4} offen sc1')
    if o.d0p:
        e('s_branch L_xe')
        e('L_xd:')
        for i in range(6): ystore(i, YA + i)
        e('L_xe:')
    if o.gearly:
        opengate()
        publish(0, 58, 'x2', True)
        e('s_branch L_nox2')
        e('L_nox:')
        opengate()
        e('L_nox2:')
    else:
        publish(0, 58, 'x2', True)
        e('L_nox:')
        opengate()
    hq.clear(); xi[0] = 0
    for _ in range(o.ein): eload()
    rows(lambda j: None)
    e('s_branch L_rowsdone')
    e('L_pathA:')
    if not o.d0p:
        e(f's_cmp_eq_u32 s{XK}, 3')
        e('s_cselect_b32 s47, 0, 0x80000000')
        for i in range(6): e(f'v_or_b32 v{20+i}, s47, v{YA+i}')
    hq.clear(); xi[0] = 0
    for _ in range(NL): eload()
    if not o.d0p:
        for i in range(6): ystore(i, 20 + i)
    def hookA(j):
        if j == o.grow:
            e(f's_waitcnt vmcnt({len(hq)-1-hq.index(("e", NL-1))})')
            opengate()
        if j == o.xrow and not o.d0p:
            e(f's_cmp_lg_u32 s{XK}, 3')
            e('s_cbranch_scc1 L_xp')
            publish(0, 58, 'x3', True)
            e('L_xp:')
    rows(hookA)
    e('L_rowsdone:')
    e('s_waitcnt lgkmcnt(0)')
    stamp(7)
    e('v_mov_b32 v11, 1')
    e('s_mov_b64 exec, 1')
    e('ds_add_u32 v10, v11 offset:16')
    e('s_mov_b64 exec, -1')
    e(f's_cmp_eq_u32 s{YT}, 0')
    e('s_cbranch_scc1 L_noy')
    e(f's_setprio {o.hprio}')
    e('L_yw:')
    e('ds_read_b64 v[20:21], v10')
    e('s_waitcnt lgkmcnt(0)')
    e('v_lshrrev_b32 v21, 14, v21')
    e('v_and_b32 v21, -4, v21')
    e('v_or_b32 v20, v20, v21')
    e(f'v_cmp_le_u32 vcc, s{YT}, v20')
    e('s_nop 4')
    e('s_cbranch_vccnz L_yx')
    e('s_sleep 4')
    e('s_branch L_yw')
    e('L_yx:')
    for i in range(6):
        ystore(i, YA + i)
        e(f's_waitcnt vmcnt({o.ythr})')
    publish(16, 59, 'y', False)
    if o.diag == 1: stamp(8)
    e('L_noy:')
    e(f's_cmp_lg_u32 s{WAVE}, 4')
    e('s_cbranch_scc1 L_hend')
    e('L_guard:')
    e('ds_read_b32 v11, v10 offset:4')
    e('s_waitcnt lgkmcnt(0)')
    e('v_readfirstlane_b32 s46, v11')
    e('s_nop 3')
    e('s_cmp_eq_u32 s46, 4')
    e('s_cbranch_scc1 L_hend')
    e('s_cmp_lt_u32 s46, 0x10000')
    e('s_cbranch_scc0 L_rescue')
    e('s_sleep 16')
    e('s_branch L_guard')
    e('L_rescue:')
    e(f's_mov_b32 s{MODE}, 1')
    e(f's_mov_b32 s{HAS3}, 1')
    e(f's_mov_b32 s{NOTASK}, 0')
    e(f's_lshr_b32 s{TW0}, s{NB}, 1')
    e(f's_add_u32 s{TW1}, s{NB}, 9')
    e(f's_lshr_b32 s{TW1}, s{TW1}, 1')
    e(f's_mov_b32 s{PAIR}, 0')
    e('s_branch L_prod')
    e('L_hend:')
    if o.padto and o.padev[0] == 'h': padloop('h')
    if o.diag == 1:
        stamp(9)
        dump(10)
    e('L_end:')
    e('s_endpgm')
    if o.hfirst:
        m0, h0 = mark['main0'], mark['help0']
        e.L = e.L[:m0] + e.L[h0:] + ['.p2align 6'] + e.L[m0:h0]
    e('L_codeend:')
    e('.section .rodata,"a"')
    e('.p2align 6')
    e(f'.amdhsa_kernel {KN}')
    for x in ['next_free_vgpr 256', 'next_free_sgpr 102', 'accum_offset 256', 'group_segment_fixed_size 0', 'kernarg_size 40',
              'user_sgpr_count 2', 'user_sgpr_kernarg_segment_ptr 1', 'system_sgpr_workgroup_id_x 1']:
        e('  .amdhsa_' + x)
    e('.end_amdhsa_kernel')
    n = haz.check(e.L)
    if n: print(f'{n} hazards', file=sys.stderr)
    return f'; @launch grid=({NWG},1,1) block=(512,1,1) lds={LDS_BYTES}\n' + e.text()

def opts(argv=None):
    ap = argparse.ArgumentParser()
    ap.add_argument('-o', default='k.s')
    for nm, d in [('diag', 0), ('pf', 16), ('pf0', 8), ('wgap', 4), ('wres', 4), ('wsc1', 0), ('nfill', 2), ('fstride', 128), ('sleep', 0), ('maxpoll', 3000), ('nopoll', 0),
                  ('hprio', 3), ('hprio2', 0), ('mprio', 2), ('epre', 0), ('ein', 7), ('dpre', 7), ('b0early', 0), ('mtouch', 1), ('gate', 1), ('swapab', 0), ('d0p', 1), ('map', 1), ('chain', 4), ('vt', 94), ('tla', 40), ('tskip', 1), ('gearly', 1), ('chfrom', 8), ('oj', 9), ('nolds', 0), ('now', 0), ('wsame', 0), ('grow', 1), ('vbd', 33), ('nopk', 1), ('padto', 0), ('npdelay', 0), ('opre', 5), ('etouch', 0), ('orev', 1), ('b0late', 1), ('dec', 1), ('tail', 1), ('xla', 9), ('hold', 1), ('prest', 0), ('xslot', 0), ('noclosed', 0), ('cpf', 1), ('hfirst', 1), ('warmb', 1), ('wsfirst', 0), ('flead', 6), ('ythr', 6), ('xrow', 3), ('padstep', 33), ('probe', 0), ('probeoff', 0x4000000)]:
        ap.add_argument('--' + nm, type=int, default=d)
    ap.add_argument('--oflags', default='')
    ap.add_argument('--pmap', default='18,18,18,18,18,18,18,18')
    ap.add_argument('--padev', default='m0')
    ap.add_argument('--trig', default='10,25,40')
    ap.add_argument('--yrow', default='0,7,2,9,5,11')
    ap.add_argument('--pfcs', default='4,5,5,8,8')
    ap.add_argument('--fflags', default='')
    ap.add_argument('--marks', default='0,4,8,12,16,24,33,47,58')
    o = ap.parse_args(argv)
    o.marks = [int(x) for x in o.marks.split(',')]
    o.yrow = [int(x) for x in o.yrow.split(',')]
    o.pfcs = [int(x) for x in o.pfcs.split(',')]
    o.trig = [int(x) for x in o.trig.split(',')]
    return o

if __name__ == '__main__':
    o = opts()
    open(o.o, 'w').write(gen(o))
```

```python
import re, sys, argparse
import haz

KN = 'standalone__autoregressive_conv_wavernn__speech_kernel'
NWG = 252
NPROD = 144
ARR = 160 * 288
X_D0, X_O, X_D1 = 0, ARR, 2 * ARR
CNT = 3 * ARR
SCR = CNT + 64
LDS_BYTES = SCR + 18432
NSTEP = 106
WOFF = int(__import__('os').environ.get('WOFF', '0x100000'), 0)
NONCE = 0x10000
DIAG = 0x800000
WS_REC = max(0x1000000, WOFF + 0x400000, int(__import__('os').environ.get('WSREC', '0'), 0))
TAGINC = 0x9E3779B9
R = 12

class Em:
    def __init__(self): self.L = []
    def __call__(self, s): self.L.append(s)
    def text(self): return '\n'.join(self.L) + '\n'

def vr(a, n=1): return f'v{a}' if n == 1 else f'v[{a}:{a+n-1}]'
def sr(a, n=4): return f's[{a}:{a+n-1}]'

def streams():
    out = []
    for typ in (0, 1):
        S = []
        pid = [0]
        def add(arr, chunk, cs, acc):
            for c in cs: S.append((pid[0], arr, chunk, c, acc))
            pid[0] += 1
        if typ == 0:
            add('O', 0, range(16), 'P'); add('O', 1, range(16), 'P'); add('O', 'rem', range(0, 2), 'P')
            for q in range(4): add('D', q, range(16), 'Q')
            add('D', 'rem', range(8), 'Q')
        else:
            add('O', 2, range(16), 'P'); add('O', 3, range(16), 'P'); add('O', 'rem', range(2, 8), 'P')
            for q in range(4): add('D', q, range(15), 'Q')
            add('D', 'rem', range(8), 'Q')
        assert len(S) == NSTEP
        out.append(S)
    return out

S_X, S_W, S_WO, S_WS, S_OUT, S_DBG = 20, 24, 28, 32, 36, 40
WAVE, NB, BAT, PAR, MB, BOFF = 14, 15, 16, 17, 18, 19
PAIR0 = 3
XB = 52
MASK = 53
TW0, TW1, TW2, PAIR, HAS3, MODE, SCRB, TAG, LAST, NPOLL = 44, 45, 54, 55, 56, 57, 58, 59, 60, 61
TS = 62
TYP, WSO = 68, 69
EARLY, XK, YT, FIDX = 90, 91, 92, 93
NOTASK = 94
NTASK = NPROD + 96
FO = 97
C2L, CNL, C60 = 90, 92, 94
ST0 = 70

def srd(e, d, ptr, rec, add=None):
    if add is None:
        e(f's_mov_b32 s{d}, s{ptr}')
        e(f's_and_b32 s{d+1}, s{ptr+1}, 0xffff')
    else:
        e(f's_add_u32 s{d}, s{ptr}, s{add}')
        e(f's_addc_u32 s{d+1}, s{ptr+1}, 0')
        e(f's_and_b32 s{d+1}, s{d+1}, 0xffff')
    e(f's_mov_b32 s{d+2}, {rec}')
    e(f's_mov_b32 s{d+3}, 0x20000')

def gen(o):
    e = Em()
    role = ['m']
    def padloop(tag):
        e(f'L_pad{tag}:')
        e('s_memrealtime s[98:99]')
        e('s_waitcnt lgkmcnt(0)')
        e('s_sub_u32 s98, s98, s100')
        e(f's_cmp_lt_u32 s98, {o.padto}')
        e(f's_cbranch_scc1 L_pad{tag}')
    def stamp(k, lvl=1):
        if o.padto and lvl == 1 and o.padev == f'{role[0]}{k}':
            e('s_memrealtime s[100:101]'); e('s_waitcnt lgkmcnt(0)')
        if o.diag == lvl or (o.diag == 4 and lvl == 1): e(f's_memrealtime s[{ST0+2*k}:{ST0+2*k+1}]')
    def dump(nst):
        e('s_waitcnt lgkmcnt(0)')
        e('v_mov_b32 v250, 0')
        for k in range(nst): e(f'v_writelane_b32 v250, s{ST0+2*k}, {k}')
        e(f'v_writelane_b32 v250, s{NPOLL}, 13')
        e(f'v_writelane_b32 v250, s95, 12')
        e(f'v_writelane_b32 v250, s2, 14')
        e('s_getreg_b32 s46, hwreg(HW_REG_XCC_ID)')
        e('v_writelane_b32 v250, s46, 15')
        e(f's_lshl_b32 s46, s2, 3'); e(f's_add_u32 s46, s46, s{WAVE}'); e('s_lshl_b32 s46, s46, 6'); e(f's_add_u32 s46, s46, {DIAG}')
        e('v_lshl_add_u32 v251, v1, 2, s46')
        e('s_mov_b64 exec, 0xffff')
        e(f'buffer_store_dword v250, v251, {sr(S_WS)}, 0 offen')
        e('s_mov_b64 exec, -1')

    e('.amdgcn_target "amdgcn-amd-amdhsa--gfx950"')
    e('.text')
    e(f'.globl {KN}')
    e('.p2align 8')
    e(f'.type {KN},@function')
    e(f'{KN}:')
    e(f's_cmp_ge_u32 s2, {NWG}')
    e('s_cbranch_scc1 L_end')
    stamp(0)
    if o.padto and o.padev != 'm0': e('s_memrealtime s[100:101]')
    e('s_load_dwordx4 s[4:7], s[0:1], 0')
    e('s_load_dwordx4 s[8:11], s[0:1], 16')
    e('s_load_dwordx2 s[12:13], s[0:1], 32')
    e('v_lshrrev_b32 v2, 6, v0')
    e('v_and_b32 v1, 63, v0')
    e(f'v_readfirstlane_b32 s{WAVE}, v2')
    def decode():
        e('s_and_b32 s44, s2, 7')
        e('s_lshr_b32 s45, s2, 3')
        e('s_mul_i32 s46, s44, 31')
        e('s_min_u32 s44, s44, 4')
        e('s_add_u32 s46, s46, s44')
        e('s_add_u32 s46, s46, s45')
        if o.map == 0:
            e('s_mul_hi_u32 s47, s46, 68174085')
            e('s_mul_i32 s48, s47, 63')
            e('s_sub_u32 s48, s46, s48')
            e(f's_mul_hi_u32 s{NB}, s48, 613566757')
            e(f's_mul_i32 s49, s{NB}, 7')
            e('s_sub_u32 s49, s48, s49')
            e('s_mul_i32 s47, s47, 7')
            e('s_add_u32 s47, s47, s49')
        elif o.map == 1:
            e('s_mul_hi_u32 s47, s46, 477218589')
            e('s_mul_i32 s48, s47, 9')
            e(f's_sub_u32 s{NB}, s46, s48')
        else:
            e('s_mul_hi_u32 s47, s46, 34087043')
            e('s_mul_i32 s48, s47, 126')
            e('s_sub_u32 s48, s46, s48')
            e(f's_mul_hi_u32 s{NB}, s48, 306783379')
            e(f's_mul_i32 s49, s{NB}, 14')
            e('s_sub_u32 s49, s48, s49')
            e('s_mul_i32 s47, s47, 14')
            e('s_add_u32 s47, s47, s49')
        e(f's_and_b32 s{PAR}, s47, 1')
        e('s_lshr_b32 s47, s47, 1')
        e('s_cmp_ge_u32 s47, 7')
        e(f's_cselect_b32 s{BOFF}, 1152000, 0')
        e('s_cselect_b32 s48, 7, 0')
        e(f's_sub_u32 s{MB}, s47, s48')
        e(f's_mul_i32 s{XB}, s{MB}, 576')
        e(f's_add_u32 s{XB}, s{XB}, s{PAR}')
        e(f's_sub_u32 s{XB}, s{XB}, 60')
        e(f's_mul_i32 s{XB}, s{XB}, 288')
    e(f's_cmp_ge_u32 s{WAVE}, 4')
    e('s_cbranch_scc1 L_helper')
    if o.cpf:
        e('s_lshr_b32 s44, s2, 3')
        e(f's_lshl_b32 s45, s{WAVE}, 5')
        e('s_add_u32 s44, s44, s45')
        e('s_sub_u32 s44, s44, 26')
        e('s_cmp_ge_u32 s44, 5')
        e('s_cbranch_scc1 L_main')
        e('s_getpc_b64 s[46:47]')
        e('L_pc:')
        e('s_lshl_b32 s44, s44, 13')
        e('v_lshl_add_u32 v2, v1, 7, s44')
        e('v_min_u32 v2, L_codeend-L_pc-4, v2')
        e('global_load_dword v63, v2, s[46:47]')
    if o.hfirst: e('s_branch L_main')
    mark = {'main0': len(e.L)}
    e('L_main:')
    e(f's_mov_b32 s{MASK}, 0xffff0000')
    e(f's_mov_b32 s{NPOLL}, 0')
    if o.diag: e('s_mov_b32 s95, 0')
    decode()

    VXO, VXOR, VXD, VXDR, VWL, VEX, VEXP, VOUT = 30, 31, 32, 33, 34, 35, 36, 37
    VF = 40
    VA = 48
    VCL = 60
    e('v_mul_u32_u24 v3, 3641, v0')
    e('v_lshrrev_b32 v3, 16, v3')
    e('v_mul_u32_u24 v2, 18, v3')
    e('v_sub_u32 v2, v0, v2')
    e('v_mul_u32_u24 v3, 1152, v3')
    e('v_lshl_add_u32 v3, v2, 4, v3')
    e(f's_add_u32 s46, s{XB}, 576')
    e(f'v_add_u32 v{VA}, s46, v3')
    e('v_mov_b32 v5, 16192')
    e('v_mov_b32 v6, 17056')
    for k in range(1, 12):
        e('v_cmp_le_u32 vcc, 14, v2')
        e('v_add_u32 v3, 4, v2')
        e('v_subrev_u32 v4, 14, v2')
        e('v_cndmask_b32 v7, v5, v6, vcc')
        e('v_cndmask_b32 v2, v3, v4, vcc')
        e(f'v_add_u32 v{VA+k}, v{VA+k-1}, v7')
    e(f's_lshl_b32 s50, s{WAVE}, 10')
    e(f's_add_u32 s50, s50, {X_O}')
    e(f's_add_u32 s51, s50, {4096*11}')
    e('s_movk_i32 s49, 4096')
    if o.orev:
        e(f's_bitcmp0_b32 s{NB}, 0')
        e('s_cbranch_scc1 L_fwd')
        for k in range(5): e(f'v_swap_b32 v{VA+k}, v{VA+10-k}')
        e(f's_add_u32 s50, s50, {4096*10}')
        e('s_movk_i32 s49, -4096')
        e('L_fwd:')
    e(f'v_mov_b32 v{VF+1}, {CNT}')
    for r in range(4, 8): e(f'v_mov_b32 v{r}, 0')
    e(f'ds_write_b128 v{VF+1}, v[4:7]')
    e(f'ds_write_b128 v{VF+1}, v[4:7] offset:16')
    e('s_waitcnt lgkmcnt(0)')
    e(f's_load_dword s{TAG}, s[12:13], {NONCE}')
    srd(e, S_X, 4, 1152000, add=BOFF)
    def odma(k):
        e(f's_mov_b32 m0, s{51 if k == 11 else 50}')
        e('s_add_u32 s50, s50, s49')
        e(f'buffer_load_dwordx4 v{VA+k}, {sr(S_X)}, 0 offen lds')
    def etouch():
        e(f'buffer_load_dword v62, v9, {sr(S_X)}, 0 offen')
    if o.mtouch and o.tskip:
        e('s_lshr_b32 s47, s2, 4')
        e('s_lshr_b32 s47, 0x33, s47')
        e('s_lshl_b32 s47, s47, 31')
    if o.mtouch:
        e('v_min_u32 v8, 39, v1')
        e('v_lshrrev_b32 v9, 2, v8')
        e(f's_mul_i32 s46, s{WAVE}, 10')
        e('v_add_u32 v9, s46, v9')
        e(f'v_mul_u32_u24 v9, {4*1152}, v9')
        e('v_and_b32 v8, 3, v8')
        e('v_mul_u32_u24 v8, 92, v8')
        e(f's_and_b32 s46, s{NB}, 3')
        e('s_mul_i32 s46, s46, 1152')
        e(f's_add_u32 s46, s46, s{XB}')
        e('v_add3_u32 v9, v9, v8, s46')
        if o.tskip: e('v_or_b32 v9, s47, v9')
    if o.mtouch == 2: etouch()
    for k in range(o.opre): odma(k)
    e('s_barrier')
    stamp(1)
    if o.mtouch == 3: etouch()
    for k in range(o.opre, 12):
        if k == 11:
            e(f's_cmp_lg_u32 s{WAVE}, 0')
            e('s_cbranch_scc1 L_o11')
        odma(k)
    e('L_o11:')
    if o.mtouch == 1: etouch()
    srd(e, S_WS, 12, WS_REC)
    srd(e, S_OUT, 8, 1152000, add=BOFF)
    srd(e, S_DBG, 10, 256)
    e('v_and_b32 v2, 15, v1')
    e('v_lshrrev_b32 v3, 4, v1')
    e('v_subrev_u32 v5, 4, v2')
    e('v_add_u32 v6, 8, v2')
    e('v_cmp_gt_u32 vcc, 4, v2')
    e('v_cmp_le_u32 s[46:47], 12, v2')
    e(f's_and_b32 s{TYP}, s{WAVE}, 1')
    e(f's_lshr_b32 s48, s{WAVE}, 1')
    e('v_cndmask_b32 v5, v5, v6, vcc')
    e('v_cndmask_b32 v5, v5, v2, s[46:47]')
    e('v_mul_u32_u24 v5, 9, v5')
    e('v_mul_u32_u24 v4, 288, v5')
    e('v_lshl_add_u32 v6, v3, 4, v4')
    e('v_and_b32 v7, 1, v3')
    e('v_lshl_add_u32 v7, v7, 4, v4')
    e('v_lshrrev_b32 v8, 1, v3')
    e('v_mul_u32_u24 v8, 2304, v8')
    e('v_add_u32 v7, v7, v8')
    e('v_add_u32 v7, 256, v7')
    e(f's_mul_i32 s49, s{TYP}, {X_D1}')
    e(f'v_add_u32 v{VXO}, {X_O}, v6')
    e(f'v_add_u32 v{VXOR}, {X_O}, v7')
    e(f'v_add_u32 v{VXD}, s49, v6')
    e(f'v_add_u32 v{VXDR}, s49, v7')
    e('v_lshlrev_b32 v6, 4, v1')
    e(f's_mul_i32 s49, s{WAVE}, 9216')
    e(f's_add_u32 s49, s49, {X_O}')
    e(f'v_add_u32 v{VEX}, s49, v6')
    e(f's_xor_b32 s49, s{WAVE}, 1')
    e('s_mul_i32 s49, s49, 9216')
    e(f's_add_u32 s49, s49, {X_O}')
    e(f'v_add_u32 v{VEXP}, s49, v6')
    e('v_and_b32 v8, 0x39, v1')
    e('v_bfe_u32 v9, v1, 1, 1')
    e('v_lshl_add_u32 v8, v9, 2, v8')
    e('v_bfe_u32 v9, v1, 2, 1')
    e('v_lshl_add_u32 v8, v9, 1, v8')
    e(f'v_lshlrev_b32 v{VWL}, 4, v8')
    e(f's_mul_i32 s49, s{TYP}, 576')
    e(f's_add_u32 s49, s49, s{XB}')
    e(f's_add_u32 s49, s49, {60*288}')
    e(f's_lshl_b32 s50, s{NB}, 5')
    e('s_add_u32 s49, s49, s50')
    e('s_lshl_b32 s50, s48, 4')
    e('s_add_u32 s49, s49, s50')
    e('v_mul_u32_u24 v8, 1152, v5')
    e('v_lshl_add_u32 v8, v3, 2, v8')
    e(f'v_add_u32 v{VOUT}, s49, v8')
    e(f'v_add_u32 v{VOUT+1}, 3456, v{VOUT}')
    e(f'v_add_u32 v{VOUT+2}, 6912, v{VOUT}')
    e(f's_lshl_b32 s49, s{NB}, 1')
    e('s_add_u32 s49, s49, s48')
    e('s_lshl_b32 s49, s49, 1')
    e(f's_add_u32 s49, s49, s{TYP}')
    e(f's_mul_i32 s{WSO}, s49, {NSTEP*1024}')
    e(f's_add_u32 s{WSO}, s{WSO}, {WOFF}')
    e(f's_mov_b32 s{C2L}, 0x4038aa3b'); e(f's_mov_b32 s{C2L+1}, 0x4038aa3b')
    e(f's_mov_b32 s{CNL}, 0xbfb8aa3b'); e(f's_mov_b32 s{CNL+1}, 0xbfb8aa3b')
    e(f's_mov_b32 s{C60}, 0x42700000')
    e(f'v_min_u32 v{VF}, 31, v1')
    e(f'v_lshlrev_b32 v{VF}, 7, v{VF}')
    e(f'v_min_u32 v{VF+6}, 47, v1')
    e(f'v_lshlrev_b32 v{VF+6}, 7, v{VF+6}')
    e(f'v_mov_b32 v{VF+2}, 1')
    e('s_lshl_b32 s46, s48, 2')
    e(f'v_add_u32 v{VF+5}, s46, v{VF+1}')
    e(f's_or_b32 s46, s2, s{WAVE}')
    e('v_or_b32 v2, s46, v1')
    e('v_cmp_eq_u32 vcc, 0, v2')
    e(f'v_mov_b32 v{VCL}, -16')
    e(f'v_mov_b32 v{VCL+1}, -16')
    e(f'v_mov_b32 v3, {NONCE}')
    e(f'v_cndmask_b32 v{VCL}, v{VCL}, 4, vcc')
    e(f'v_cndmask_b32 v{VCL+1}, v{VCL+1}, v3, vcc')
    e(f's_lshl_b32 s{FO}, s{TYP}, 13')
    if o.warmb:
        e(f's_cmp_eq_u32 s{TYP}, 1')
        e('s_cbranch_scc1 L_warmB')
        e('L_warmret:')
    e(f's_waitcnt vmcnt({1 if o.mtouch == 1 else 0}) lgkmcnt(0)')
    stamp(2)
    e('s_mov_b64 exec, 1')
    e(f'ds_add_u32 v{VF+1}, v{VF+2} offset:8')
    e('s_mov_b64 exec, -1')
    e(f's_add_u32 s{TAG}, s{TAG}, {TAGINC}')
    e(f'v_mov_b32 v{VF+3}, s{TAG}')
    def flagwait(tag, vaddr, back):
        e(f'L_fw{tag}:')
        if o.diag and len(tag) == 2: e(f's_add_u32 s95, s95, {1 << (5 * int(tag[1]))}')
        e(f'buffer_load_dword v{VF+4}, v{vaddr}, {sr(S_WS)}, s{FO} offen sc1')
        e(f'ds_read_b32 v{VF+7}, v{VF+1} offset:12')
        e(f's_add_u32 s{NPOLL}, s{NPOLL}, 1')
        e('s_waitcnt vmcnt(0) lgkmcnt(0)')
        e(f'v_cmp_ne_u32 vcc, v{VF+3}, v{VF+4}')
        e(f'v_readfirstlane_b32 s46, v{VF+7}')
        e('s_nop 3')
        e(f's_cbranch_vccz {back}')
        e('s_cmp_lg_u32 s46, 0')
        e(f's_cbranch_scc1 {back}')
        e(f's_cmp_lg_u32 s{NPOLL}, {o.maxpoll}')
        e(f's_cbranch_scc1 L_fw{tag}')
        e(f'v_mov_b32 v{VF+7}, 0x10000')
        e('s_mov_b64 exec, 1')
        e(f'ds_add_u32 v{VF+1}, v{VF+7} offset:4')
        e('s_mov_b64 exec, -1')
        e(f's_branch L_fw{tag}')
    if o.gate:
        e('L_gate:')
        e(f'ds_read_b32 v{VF+4}, v{VF+1} offset:8')
        e('s_waitcnt lgkmcnt(0)')
        e(f'v_cmp_gt_u32 vcc, 0x400, v{VF+4}')
        e('s_nop 4')
        e('s_cbranch_vccz L_gate2')
        e('s_sleep 1')
        e('s_branch L_gate')
        e('L_gate2:')
    flagwait('0', VF, 'L_go')
    e('L_go:')
    stamp(3)
    e('L_gw:')
    e(f'ds_read_b32 v{VF+4}, v{VF+1} offset:8')
    e('s_waitcnt lgkmcnt(0)')
    e(f'v_and_b32 v{VF+4}, 0xff, v{VF+4}')
    e(f'v_cmp_ne_u32 vcc, 4, v{VF+4}')
    e('s_nop 4')
    e('s_cbranch_vccnz L_gw')
    stamp(4)
    e(f's_setprio {o.mprio}')
    e(f's_cmp_eq_u32 s{TYP}, 1')
    e('s_cbranch_scc1 L_typeB')

    ACC = {'P': 64, 'Q': 100}
    WR, TMP = 136, 224
    XRING = [200 + 4 * i for i in range(6)]
    XWIN = [4 + 4 * i for i in range(6)] + [240 + 4 * i for i in range(4)]
    VC = 28
    PF = o.pf
    GT = 98
    wflags = ' sc1' if o.wsc1 else ''
    for typ, S in enumerate(streams()):
        if typ == 1:
            e('.p2align 6')
            if o.warmb: e('L_warmB:'); e('s_branch L_warmret')
            e('L_typeB:')
        ops = []
        vstart = {}
        lastv = o.vt - 1
        v0 = 0
        while v0 <= lastv:
            ch = 1 if v0 < o.chfrom else min(o.chain, lastv + 1 - v0)
            n0 = len(ops)
            for j in range(8, -1, -1):
                us = range(ch) if j % 2 == 0 else range(ch - 1, -1, -1)
                first_ = [u for u in us if v0 + u - j == 0 or (0 < v0 + u - j < NSTEP and S[v0+u-j][4] == 'Q' and S[v0+u-j-1][4] == 'P')]
                if first_: us = range(ch)
                for u in us:
                    if 0 <= v0 + u - j < NSTEP: ops.append((v0 + u - j, j))
            for u in range(ch): vstart[v0 + u] = n0 + (len(ops) - n0) * u // ch
            v0 += ch
        ntail = len(ops)
        if o.tail:
            for j in range(9):
                for g in range(o.vt - j, NSTEP): ops.append((g, j))
        assert len(ops) == NSTEP * 9 and len(set(ops)) == len(ops)
        N = len(ops)
        def key(n):
            g, j = ops[n]
            pid, arr, ch, c, acc = S[g]
            k = (pid, arr, ch, c + j)
            if n >= ntail and g < GT: k = k + ((n,) if not o.hold else ('h',))
            return k
        first, last = {}, {}
        for n in range(N):
            first.setdefault(key(n), n); last[key(n)] = n
        wfirst, wlast = {}, {}
        for n, (g, j) in enumerate(ops):
            wfirst.setdefault(g, n); wlast[g] = n
        tasks = []
        for k, n0 in first.items():
            win = o.tail and k[2] == 'rem' and k[1] == 'D'
            la = o.xla if n0 < ntail else 6
            if n0 >= ntail and ops[n0][1] == 0: la = o.tla
            elif win: la = 12
            tasks.append([n0 - la, n0 - 1, 'X', k])
        for g in range(NSTEP):
            rel = -100 + g if g < o.pf0 else max(0, wfirst[g] - 9 * PF)
            tasks.append([rel, wfirst[g] - 1, 'W', g])
        def at(v, off=0): return vstart[v] + off
        firstD = min(n for n in range(N) if S[ops[n][0]][1] == 'D')
        lastO = max(n for n in range(N) if S[ops[n][0]][1] == 'O')
        lastP = {j: max(n for n in range(N) if ops[n][1] == j and S[ops[n][0]][4] == 'P') for j in range(9)}
        slow = []
        vused = set()
        def check(v, off, cnt, tag):
            tasks.append([at(v - 1, 3), at(v - 1, 8), 'L', (f'ds_read_b32 v{VC}, v{VF+1} offset:{off}', ('c', tag))])
            tasks.append([at(v, 0), at(v, 1), 'C', (f'v_cmp_ne_u32 vcc, {cnt}, v{VC}', ('c', tag))])
            tasks.append([at(v, 6), at(v, 7), 'I', [f's_cbranch_vccnz L_slow{typ}{tag}', f'L_back{typ}{tag}:']])
            slow.append((tag, off, cnt))
            vused.add(v)
            return at(v, 8)
        def add1(pos, off):
            tasks.append([pos, pos + 4, 'A', off])
        vD = [v for v in vstart if vstart[v] <= firstD - o.xla][-1] - 1
        okD = check(vD, 16, 4, 'D')
        assert okD <= firstD - o.xla
        add1(lastO, 20)
        VP = 47
        okR = check(VP, 20, 4, 'R')
        for j in range(9):
            assert lastP[j] + 12 < at(VP + 1 + j, 2)
            tasks.append([at(VP + 1 + j, 2), at(VP + 1 + j, 8), 'L', (f'ds_write_b128 v{VEX}, {vr(ACC["P"]+4*j,4)} offset:{1024*j}', ('pw', j))])
        tasks.append([at(VP + 10, 0), at(VP + 10, 4), 'A', 'pair'])
        VQ = VP + 13
        okP = check(VQ, 'pair', 2, 'P')
        for j in range(9):
            tasks.append([at(VQ + 1 + j, 2), at(VQ + 1 + j, 8), 'L', (f'ds_read_b128 {vr(TMP+4*(j&1),4)}, v{VEXP} offset:{1024*j}', ('pr', j))])
            v = VQ + 2 + j
            pos = at(v, 8 - (j + 2) - 1) if j <= 6 else at(v, 8 - (j - 7) - 1)
            sh = 1 if j >= 7 else 0
            if o.chain > 1:
                own = [n for n in range(N) if ops[n][1] == j]
                pos = [a_ + 10 for a_, b_ in zip(own, own[1:]) if b_ - a_ >= 14 and a_ + 9 >= at(v, 0) ][0]
                sh = 0
                tasks[-1][0] = pos - 9; tasks[-1][1] = pos - 4
                tasks[-1][3] = (f'ds_read_b128 {vr(TMP+4*(j&3),4)}, v{VEXP} offset:{1024*j}', ('pr', j))
            tasks.append([pos - 1 + sh, pos - 1 + sh, 'Q', (j, 0)])
            tasks.append([pos + sh, pos + sh, 'Q', (j, 1)])
        if typ == 0:
            tasks.append([at(64, 4), at(64, 8), 'S', f'buffer_store_dword v{VCL+1}, v{VCL}, {sr(S_DBG)}, 0 offen sc1'])
            tasks.append([at(84, 4), at(84, 8), 'S', f'buffer_store_dword v{VF+3}, v{VCL+1}, {sr(S_WS)}, 0 offen sc1'])
        fslow = []
        passes = {}
        for g in range(NSTEP): passes.setdefault(S[g][0], g)
        need = [(passes[1], VF, 32 + 64 * typ), (32, VF + 6, 128), (passes[4], VF, 176), (passes[5], VF, 208), (passes[6], VF + 6, 240)]
        for ci, (gn, va, idx) in enumerate(need):
            v = gn - o.pfcs[ci] - 1
            while v in vused: v -= 1
            tasks.append([at(v - o.fleads[ci], 4), at(v - o.fleads[ci], 8), 'F', (va, idx, ci)])
            tasks.append([at(v, 0), at(v, 1), 'G', ci])
            tasks.append([at(v, 6), at(v, 7), 'I', [f's_cbranch_vccnz L_fw{typ}{ci}', f'L_fb{typ}{ci}:']])
            fslow.append((ci, va))
            assert v not in vused, v
            for t in tasks:
                if t[2] == 'W' and (t[3] >= gn): t[0] = max(t[0], at(v, 8))
        tasks.append([at(v + 1, 2), at(v + 1, 8), 'A', 4])
        if typ == 0:
            for lvl, v in enumerate(o.trig): tasks.append([at(v, 2), at(v, 8), 'P', lvl + 1])
        tasks.sort(key=lambda t: (t[0], t[1]))
        vq, lq = [], []
        dirty = [False]
        xreg, busy = {}, {}
        wn = [0]
        wr = {}
        lastw = [-100]
        later = []
        BIG = [WR + 4 * i for i in range(16)] + XWIN + [ACC['P'] + 4 * i for i in range(9)]
        for i in range(9): busy[ACC['P'] + 4 * i] = at(VP + 12)
        until = {}
        if o.chain > 1:
            BIG += XRING + [VA, VA + 4, VA + 8]
            for i in range(9):
                BIG.append(ACC['Q'] + 4 * i)
                until[ACC['Q'] + 4 * i] = min(n for n in range(N) if ops[n][1] == i and S[ops[n][0]][4] == 'Q') - 3
        def freeregs(n, end): return [x for x in BIG if busy.get(x, -1) <= n and end < until.get(x, 10**9)]
        def wok(t, n):
            if t[2] != 'W': return True
            if t[3] != wn[0]: return False
            free = len(freeregs(n, wlast[t[3]]))
            if t[1] - n <= 9 * 3: return free > 0
            return n - lastw[0] >= o.wgap and free > o.wres
        since = {}
        fill = []
        def em(x):
            e(x)
            if not x.endswith(':'):
                for jj in since: since[jj] += 1
        def lwait(tag):
            if tag not in lq: return
            i = lq.index(tag)
            em(f's_waitcnt lgkmcnt({0 if dirty[0] else len(lq)-1-i})')
            if dirty[0]: lq.clear(); dirty[0] = False
            else: del lq[:i + 1]
        def vwait(g):
            if g not in vq: return
            i = vq.index(g)
            em(f's_waitcnt vmcnt({len(vq)-1-i})')
            del vq[:i + 1]
        def run(t, n):
            kind, p = t[2], t[3]
            if kind == 'X':
                pool = BIG if (o.chain > 1 or p[-1] == 'h' or (p[2] == 'rem' and p[1] == 'D')) else XRING
                r = [x for x in pool if busy.get(x, -1) <= n and last[p] < until.get(x, 10**9)]
                assert r, ('no x register', p, n)
                r = min(r, key=lambda x: (until.get(x, 10**9), busy.get(x, -1)))
                busy[r] = last[p]; xreg[p] = r
                arr, ch, s_ = p[1], p[2], p[3]
                if o.nolds and n > 9 * 30: return
                if ch == 'rem': em(f'ds_read_b128 {vr(r,4)}, v{VXOR if arr == "O" else VXDR} offset:{288*s_}')
                else: em(f'ds_read_b128 {vr(r,4)}, v{VXO if arr == "O" else VXD} offset:{64*ch+288*s_}')
                lq.append(p)
            elif kind == 'W':
                g = p
                r = min(freeregs(n, wlast[g]), key=lambda x: (until.get(x, 10**9), busy.get(x, -1)))
                busy[r] = wlast[g]; wr[g] = r
                assert g == wn[0]; wn[0] += 1
                lastw[0] = n
                if o.now and g > 40: return
                if o.wsame and g > 40:
                    em(f'buffer_load_dwordx4 {vr(r,4)}, v{VWL}, {sr(S_WS)}, s{WSO} offen offset:{1024*(g%4)}{wflags}'); vq.append(g); return
                em(f'buffer_load_dwordx4 {vr(r,4)}, v{VWL}, {sr(S_WS)}, s{WSO} offen offset:{1024*(g%4)}{wflags}')
                if g % 4 == 3:
                    if n < 0: em(f's_add_u32 s{WSO}, s{WSO}, 4096')
                    else: later.append(f's_add_u32 s{WSO}, s{WSO}, 4096')
                vq.append(g)
            elif kind == 'L':
                em(p[0].replace('offset:pair', 'offset:24').replace(f'v{VF+1} offset:24', f'v{VF+5} offset:24')); lq.append(p[1])
            elif kind == 'C':
                lwait(p[1]); em(p[0])
            elif kind == 'I':
                for x in p: em(x)
            elif kind == 'A':
                em('s_mov_b64 exec, 1')
                if p == 'pair': em(f'ds_add_u32 v{VF+5}, v{VF+2} offset:24')
                else: em(f'ds_add_u32 v{VF+1}, v{VF+2} offset:{p}')
                em('s_mov_b64 exec, -1')
                lq.append(('a', p))
            elif kind == 'Q':
                p, hf = p
                lwait(('pr', p))
                q = ACC['Q'] + 4 * p; t_ = TMP + 4 * (p & (3 if o.chain > 1 else 1))
                for i in (2 * hf, 2 * hf + 1): em(f'v_add_f32 v{q+i}, v{q+i}, v{t_+i}')
            elif kind == 'S':
                assert not any(isinstance(x, tuple) and x[0] == 's' for x in vq)
                em(p); vq.append(('s', n))
            elif kind == 'F':
                em(f's_mov_b32 s{FO}, {128*p[1]}')
                em(f'buffer_load_dword v{VF+4}, v{p[0]}, {sr(S_WS)}, s{FO} offen {o.fflags}'); vq.append(('f', p[2]))
            elif kind == 'G':
                vwait(('f', p)); em(f'v_cmp_ne_u32 vcc, v{VF+3}, v{VF+4}')
            elif kind == 'P':
                em(f'v_mov_b32 v{VF+7}, {p}')
                em('s_mov_b64 exec, 1')
                em(f'ds_max_u32 v{VF+1}, v{VF+7}')
                em('s_mov_b64 exec, -1')
                lq.append(('p', p))
        def epi(j, pk):
            q = ACC['Q'] + 4 * j
            t = TMP + 8 * (j & 1)
            I = []
            if pk:
                I.append(f'v_pk_mul_f32 {vr(t,2)}, {vr(q,2)}, s[{C2L}:{C2L+1}]')
                I.append(f'v_pk_mul_f32 {vr(t+2,2)}, {vr(q+2,2)}, s[{CNL}:{CNL+1}]')
            else:
                for i in (0, 1): I.append(f'v_mul_f32 v{t+i}, s{C2L}, v{q+i}')
                for i in (2, 3): I.append(f'v_mul_f32 v{t+i}, s{CNL}, v{q+i}')
            I.append(f'v_min_f32 v{t}, s{C60}, v{t}')
            I.append(f'v_min_f32 v{t+1}, s{C60}, v{t+1}')
            for i in (0, 1, 2, 3): I.append(f'v_exp_f32 v{t+i}, v{t+i}')
            if pk:
                I.append(f'v_pk_add_f32 {vr(t+4,2)}, {vr(t,2)}, 1.0 op_sel_hi:[1,0]')
                I.append(f'v_pk_add_f32 {vr(t+6,2)}, {vr(t,2)}, -1.0 op_sel_hi:[1,0]')
                I.append(f'v_pk_fma_f32 {vr(t+4,2)}, {vr(t+4,2)}, {vr(t+2,2)}, {vr(t+4,2)}')
            else:
                for i in (0, 1): I.append(f'v_add_f32 v{t+4+i}, 1.0, v{t+i}')
                for i in (0, 1): I.append(f'v_fma_f32 v{t+4+i}, v{t+4+i}, v{t+2+i}, v{t+4+i}')
            I.append(f'v_rcp_f32 v{t+4}, v{t+4}')
            I.append(f'v_rcp_f32 v{t+5}, v{t+5}')
            if pk:
                I.append('s_nop 0')
                I.append(f'v_pk_mul_f32 {vr(t+6,2)}, {vr(t+6,2)}, {vr(t+4,2)}')
            else:
                for i in (0, 1): I.append(f'v_add_f32 v{t+6+i}, -1.0, v{t+i}')
                for i in (0, 1): I.append(f'v_mul_f32 v{t+6+i}, v{t+6+i}, v{t+4+i}')
            I.append(f'v_cvt_pk_bf16_f32 v{q}, v{t+6}, v{t+7}')
            I.append(f'buffer_store_dword v{q}, v{VOUT + j//3}, {sr(S_OUT)}, 0 offen offset:{1152*(j%3)} {o.oflags if j < o.oj else ""}')
            return I
        def cost(x): return 2 if x.startswith(('v_exp', 'v_rcp', 'buffer')) else 1
        while tasks and tasks[0][0] < 0: run(tasks.pop(0), -1)
        inv = {n: v for v, n in vstart.items()}
        lastop = {j: max(n for n in range(N) if ops[n][1] == j) for j in range(9)}
        for n, (g, j) in enumerate(ops):
            if n in inv and o.padto and o.padev == 'm5' and inv[n] == o.padstep:
                e('s_memrealtime s[100:101]'); dirty[0] = True
            if n in inv and o.diag:
                v = inv[n]
                if o.diag == 2 and v in o.marks:
                    kk = o.marks.index(v)
                    e(f's_memtime s[{ST0+2*kk}:{ST0+2*kk+1}]'); dirty[0] = True
                if o.diag in (1, 4) and v == 33: stamp(5); stamp(6); dirty[0] = True
            k = key(n)
            assert k in xreg, (k, n)
            lwait(k); vwait(g)
            acc = S[g][4]
            d = ACC[acc] + 4 * j
            if g == 0: cs = '0'
            elif acc == 'Q' and S[g-1][4] == 'P': cs = vr(ACC['P'] + 4 * j, 4)
            else: cs = vr(d, 4)
            em(f'v_mfma_f32_16x16x32_bf16 {vr(d,4)}, {vr(wr[g],4)}, {vr(xreg[k],4)}, {cs}' if not o.swapab else f'v_mfma_f32_16x16x32_bf16 {vr(d,4)}, {vr(xreg[k],4)}, {vr(wr[g],4)}, {cs}')
            if n == lastop[j]: since[j] = 0
            while later: em(later.pop(0))
            budget = 2
            TC = {'X': 1, 'W': 2, 'L': 2, 'C': 1, 'I': 0, 'A': 1, 'Q': 2, 'S': 2, 'F': 2, 'G': 1, 'P': 2}
            while True:
                ready = [t for t in tasks if t[0] <= n and wok(t, n)]
                if not ready: break
                t = min(ready, key=lambda t: t[1])
                assert t[1] >= n, ('late', t, n)
                if TC[t[2]] > budget and t[1] > n:
                    fit = [u for u in ready if TC[u[2]] <= budget]
                    if not fit: break
                    t = min(fit, key=lambda t: t[1])
                tasks.remove(t); run(t, n); budget -= TC[t[2]]
            for jj in sorted(since):
                if 8 <= since[jj] < 10**6:
                    fill += epi(jj, False); since[jj] = 10**6
            budget += o.nfill - 2
            while fill and budget >= cost(fill[0]):
                budget -= cost(fill[0])
                if fill[0].startswith('buffer_store'):
                    q_ = int(re.match(r'buffer_store_dword v(\d+)', fill[0]).group(1))
                    until.pop(q_, None); busy[q_] = n + 2
                em(fill.pop(0))
            assert all(t[1] > n for t in tasks), ('late', n, [t for t in tasks if t[1] <= n])
        assert not tasks
        stamp(7)
        while fill: em(fill.pop(0))
        for jj in [jj for jj in sorted(since) if since[jj] < 10**6]:
            if since[jj] < 8: em(f's_nop {8-since[jj]-1}')
            for x in epi(jj, True): em(x)
        stamp(8)
        if o.padto and o.padev[0] == 'm': padloop(typ)
        if o.diag == 1:
            e('s_waitcnt vmcnt(0)')
            stamp(9)
            dump(10)
        if o.diag == 2:
            kk = len(o.marks)
            e(f's_memtime s[{ST0+2*kk}:{ST0+2*kk+1}]')
            dump(10)
        e('s_endpgm')
        for tag, off, cnt in slow:
            e(f'L_slow{typ}{tag}:')
            e(f'ds_read_b32 v{VC}, v{VF+5 if off == "pair" else VF+1} offset:{24 if off == "pair" else off}')
            e('s_waitcnt lgkmcnt(0)')
            e(f'v_cmp_ne_u32 vcc, {cnt}, v{VC}')
            e('s_nop 4')
            e(f's_cbranch_vccnz L_slow{typ}{tag}')
            e(f's_branch L_back{typ}{tag}')
        for ci, va in fslow: flagwait(f'{typ}{ci}', va, f'L_fb{typ}{ci}')

    mark['help0'] = len(e.L)
    if not o.hfirst: e('.p2align 6')
    e('L_helper:')
    role[0] = 'h'
    e(f's_setprio {o.hprio}')
    e(f's_sub_u32 s{TW0}, s{WAVE}, 4')
    e(f's_mov_b32 s{TW1}, s{WAVE}')
    e(f's_sub_u32 s{PAIR}, s2, {NPROD}')
    e(f's_cselect_b32 s{PAIR}, s2, s{PAIR}')
    e(f's_mov_b32 s{MODE}, 0')
    e(f's_mov_b32 s{NOTASK}, s2')
    e(f's_mov_b32 s{HAS3}, s{TW0}')
    e(f's_lshl_b32 s{SCRB}, s{TW0}, 12')
    e(f's_add_u32 s{SCRB}, s{SCRB}, {SCR}')
    e('L_prod:')
    T = [(28, TW0, 2, 52, 0), (36, TW1, 4, 53, 2048), (44, TW2, 6, 54, 16384)]
    c, kp, q, cc, kk, t = 46, 47, 48, 49, 50, 51
    b = TS
    e('v_mov_b32 v19, 4320')
    e('v_and_b32 v23, 3, v1')
    e('v_lshrrev_b32 v24, 3, v1')
    e('v_mul_u32_u24 v24, 576, v24')
    e('v_bfe_u32 v25, v1, 2, 1')
    e('v_mul_u32_u24 v25, 288, v25')
    e('v_add_u32 v24, v24, v25')
    for (vb, sw, vl, vs, so) in T:
        e(f'v_lshl_add_u32 v8, s{sw}, 2, v23' if sw != TW2 else 'v_add_u32 v8, 32, v23')
        e('v_cmp_le_u32 vcc, 18, v8')
        e(f'v_lshl_add_u32 v{vl}, v8, 4, v24')
        e(f'v_add_u32 v9, v{vl}, v19')
        e(f'v_cndmask_b32 v{vl}, v{vl}, v9, vcc')
    e(f's_and_b32 s{c}, s{PAIR}, 15')
    e(f's_lshr_b32 s{kp}, s{PAIR}, 4')
    e(f's_mul_i32 s{b}, s{c}, 165888')
    e(f's_mul_i32 s{t}, s{kp}, 9216')
    e(f's_add_u32 s{b}, s{b}, s{t}')
    e(f's_add_u32 s{b+1}, s{b}, 82944')
    e(f's_mov_b32 s{S_W+2}, 2571264')
    e(f's_mov_b32 s{S_W+3}, 0x20000')
    e(f's_mov_b32 s{S_WO+3}, 0x20000')
    e(f's_cmp_lg_u32 s{c}, 15')
    e(f's_cselect_b32 s{S_WO+2}, 2571264, 0')
    e(f's_mov_b32 m0, s{SCRB}')
    e('s_waitcnt lgkmcnt(0)')
    e(f's_mov_b32 s{S_W}, s6')
    e(f's_and_b32 s{S_W+1}, s7, 0xffff')
    e(f's_mov_b32 s{S_WO}, s6')
    e(f's_and_b32 s{S_WO+1}, s7, 0xffff')
    e(f's_cmp_ge_u32 s{NOTASK}, {NTASK}')
    e('s_cbranch_scc1 L_a3')
    def cond3(lbl):
        e(f's_cmp_lg_u32 s{HAS3}, 0')
        e(f's_cbranch_scc1 {lbl}')
    for ti, (vb, sw, vl, vs, so) in enumerate(T):
        if ti == 2: cond3('L_a3')
        if ti == 1: e('s_addk_i32 m0, 1024'); e('s_nop 0')
        e(f'buffer_load_dwordx4 v{vl}, {sr(S_W)}, s{b} offen lds')
        e('s_addk_i32 m0, 1024')
        e('s_nop 0')
        e(f'buffer_load_dwordx4 v{vl}, {sr(S_WO)}, s{b+1} offen lds')
        if ti == 1: e(f's_addk_i32 m0, {16384-3072}')
    e('L_a3:')
    stamp(1)
    e(f's_cmp_lg_u32 s{MODE}, 0')
    e('s_cbranch_scc1 L_a4')
    e(f's_load_dword s{TAG}, s[12:13], {NONCE}')
    e(f's_lshr_b32 s{EARLY}, 0x33, s{kp}')
    e(f's_and_b32 s{EARLY}, s{EARLY}, 1')
    e(f's_sub_u32 s{XK}, 2, s{EARLY}')
    e(f's_lshl_b32 s{t}, s{kp}, 1')
    e(f's_lshr_b32 s{YT}, {(3<<12)+(3<<14)+(3<<16)}, s{t}')
    e(f's_and_b32 s{YT}, s{YT}, 3')
    e(f's_lshr_b32 s{t}, s{kp}, 1')
    e(f's_cmp_ge_u32 s2, {NPROD}')
    e(f's_cselect_b32 s{EARLY}, 0, s{EARLY}')
    e(f's_cselect_b32 s{XK}, 3, s{XK}')
    e(f's_cselect_b32 s{YT}, s{t}, s{YT}')
    e(f's_cmp_ge_u32 s2, {NPROD+32}')
    e(f's_cselect_b32 s{XK}, 0, s{XK}')
    e(f's_cmp_ge_u32 s2, {NTASK}')
    e(f's_cselect_b32 s{YT}, 0, s{YT}')
    if not o.b0early:
        e(f's_cmp_lg_u32 s{EARLY}, 0')
        e('s_cbranch_scc1 L_a4')
    e('s_barrier')
    e('L_a4:')
    e(f's_mov_b32 s{MASK}, 0xffff0000')
    e(f's_mov_b32 s{NPOLL}, 0')
    srd(e, S_WS, 12, WS_REC)
    srd(e, S_DBG, 10, 256)
    e(f'v_mov_b32 v10, {CNT}')
    e(f'v_mov_b32 v20, {(256 - 18*2*NSTEP*1024) & 0xffffffff}')
    e(f'v_mov_b32 v26, {2*NSTEP*1024}')
    e('v_bfe_u32 v21, v1, 2, 2')
    e('v_lshlrev_b32 v21, 7, v21')
    e('v_and_b32 v22, 1, v1')
    e('v_lshl_add_u32 v21, v22, 6, v21')
    e('v_bfe_u32 v22, v1, 1, 1')
    e('v_lshl_add_u32 v21, v22, 3, v21')
    e('v_lshrrev_b32 v22, 4, v1')
    e('v_lshl_add_u32 v21, v22, 4, v21')
    e(f'v_add_u32 v21, s{SCRB}, v21')
    e('v_and_b32 v25, 15, v1')
    e('v_lshlrev_b32 v25, 4, v25')
    for (vb, sw, vl, vs, so) in T:
        e(f'v_lshl_add_u32 v8, s{sw}, 2, v22' if sw != TW2 else 'v_add_u32 v8, 32, v22')
        e('v_cmp_le_u32 vcc, 18, v8')
        e(f'v_mad_u32_u24 v{vs}, v8, v26, v25')
        e(f'v_add_u32 v9, v{vs}, v20')
        e(f'v_cndmask_b32 v{vs}, v{vs}, v9, vcc')
    e(f's_lshr_b32 s{q}, s{kp}, 1')
    e(f's_and_b32 s{cc}, s{c}, 7')
    e(f's_lshr_b32 s{kk}, s{c}, 3')
    e(f's_and_b32 s{t}, s{kp}, 1')
    e(f's_cmp_eq_u32 s{kp}, 8')
    e(f's_cselect_b32 s{cc}, s{cc}, s{c}')
    e(f's_cselect_b32 s{kk}, s{kk}, s{t}')
    e(f's_lshl_b32 s{kk}, s{kk}, 9')
    e(f's_add_u32 s{kk}, s{kk}, {WOFF}')
    e(f's_lshl_b32 s{t}, s{q}, 4')
    e(f's_add_u32 s{b+2}, s{t}, s{cc}')
    e(f's_sub_u32 s{b+3}, s{b+2}, s{q}')
    e(f's_cmp_ge_u32 s{q}, 2')
    e(f's_cselect_b32 s{b+4}, 74, 0')
    e(f's_add_u32 s{b+4}, s{b+4}, s{b+2}')
    e(f's_cmp_lt_u32 s{cc}, 2')
    e(f's_cselect_b32 s{t}, 32, 136')
    e(f's_add_u32 s{t}, s{t}, s{cc}')
    e(f's_cmp_eq_u32 s{kp}, 8')
    e(f's_cselect_b32 s{b+4}, s{t}, s{b+4}')
    e(f's_add_u32 s{b+2}, s{b+2}, 34')
    e(f's_add_u32 s{b+3}, s{b+3}, 144')
    for k in (2, 3, 4):
        e(f's_lshl_b32 s{b+k}, s{b+k}, 10')
        e(f's_add_u32 s{b+k}, s{b+k}, s{kk}')
    e(f's_cmp_eq_u32 s{kp}, 8')
    e(f's_cselect_b32 s{t}, 1, 2')
    e(f's_cmp_eq_u32 s{c}, 15')
    e(f's_cselect_b32 s{b+5}, s{t}, 0')
    e(f's_lshl_b32 s46, s{WAVE}, 2')
    e(f's_add_u32 s46, s46, {CNT+16}')
    e('v_mov_b32 v55, s46')
    e('v_mov_b32 v27, 0')
    e('v_mov_b32 v9, 4')
    e('s_waitcnt vmcnt(0) lgkmcnt(0)')
    stamp(2)
    e(f's_cmp_ge_u32 s{NOTASK}, {NTASK}')
    e('s_cbranch_scc1 L_x9')
    e(f's_cmp_lg_u32 s{WAVE}, 4')
    e('s_cbranch_scc1 L_a5')
    e('s_mov_b64 exec, 1')
    e(f'buffer_load_dword v27, v9, {sr(S_DBG)}, 0 offen sc1')
    e('s_mov_b64 exec, -1')
    e('L_a5:')
    for (vb, sw, vl, vs, so) in T:
        for tap in range(2):
            for half in range(2):
                e(f'ds_read_b64_tr_b16 {vr(vb+4*tap+2*half,2)}, v21 offset:{so+1024*tap+512*half}')
    nlab = [0]
    def st01(vb, vs):
        nlab[0] += 1
        e(f'buffer_store_dwordx4 {vr(vb,4)}, v{vs}, {sr(S_WS)}, s{b+2} offen sc1')
        e(f's_cmp_eq_u32 s{b+5}, 2')
        e(f's_cbranch_scc1 L_skip{nlab[0]}')
        e(f'buffer_store_dwordx4 {vr(vb+4,4)}, v{vs}, {sr(S_WS)}, s{b+3} offen sc1')
        e(f'L_skip{nlab[0]}:')
    def st01all(lbl):
        st01(T[0][0], T[0][3]); st01(T[1][0], T[1][3])
        cond3(lbl)
        st01(T[2][0], T[2][3])
    def dosum(vb, tb, ob):
        for i in range(8):
            e(f'v_lshlrev_b32 v{tb+2*i}, 16, v{vb+i}')
            e(f'v_and_b32 v{tb+2*i+1}, s{MASK}, v{vb+i}')
        for i in range(4):
            e(f'v_pk_add_f32 {vr(tb+2*i,2)}, {vr(tb+2*i,2)}, {vr(tb+8+2*i,2)}')
        for i in range(4):
            e(f'v_cvt_pk_bf16_f32 v{ob+i}, v{tb+2*i}, v{tb+2*i+1}')
    def ldswait(off, cmp, operand, tag, slp):
        e(f'L_lw{tag}:')
        e(f'ds_read_b32 v11, v10 offset:{off}')
        e('s_waitcnt lgkmcnt(0)')
        e('v_and_b32 v11, 0xff, v11')
        e(f'v_cmp_{cmp}_u32 vcc, {operand}, v11')
        e('s_nop 4')
        e(f's_cbranch_vccnz L_lx{tag}')
        e(f's_sleep {slp}')
        e(f's_branch L_lw{tag}')
        e(f'L_lx{tag}:')
    SO = 240
    e(f's_or_b32 s46, s{EARLY}, s{MODE}')
    e(f's_cmp_eq_u32 s{XK}, 2')
    e('s_cselect_b32 s47, 1, s46')
    e('s_cmp_eq_u32 s47, 0')
    e('s_cbranch_scc1 L_x9')
    for ti, (vb, sw, vl, vs, so) in enumerate(T):
        if ti == 2: cond3('L_x3')
        e(f's_waitcnt lgkmcnt({8-4*ti})')
        dosum(vb, 64 + 16 * ti, SO + 4 * ti)
        e('s_cmp_eq_u32 s46, 0')
        e(f's_cbranch_scc1 L_x5{ti}')
        e(f'buffer_store_dwordx4 {vr(SO+4*ti,4)}, v{vs}, {sr(S_WS)}, s{b+4} offen sc1')
        e(f'L_x5{ti}:')
    e('L_x3:')
    e(f's_cmp_eq_u32 s{MODE}, 0')
    e('s_cbranch_scc1 L_x9')
    e('L_x2:')
    e('s_waitcnt lgkmcnt(0)')
    st01all('L_x4')
    e('L_x4:')
    e(f's_cmp_eq_u32 s{MODE}, 0')
    e('s_cbranch_scc1 L_x9')
    e('s_waitcnt vmcnt(0)')
    e(f's_add_u32 s{PAIR}, s{PAIR}, 1')
    e(f's_cmp_lt_u32 s{PAIR}, {NPROD}')
    e('s_cbranch_scc1 L_prod')
    e('v_mov_b32 v11, 1')
    e('ds_write_b32 v10, v11 offset:12')
    e('s_endpgm')
    e('L_x9:')
    stamp(3)
    decode()
    e('v_subrev_u32 v4, 256, v0')
    e('v_min_u32 v4, 251, v4')
    e('v_mul_u32_u24 v3, 3641, v4')
    e('v_lshrrev_b32 v3, 16, v3')
    e('v_mul_u32_u24 v2, 18, v3')
    e('v_sub_u32 v2, v4, v2')
    e(f'v_mul_u32_u24 v3, {R}, v3')
    e(f'v_min_u32 v3, {160-R}, v3')
    e('v_mul_u32_u24 v4, 1152, v3')
    e('v_lshl_add_u32 v4, v2, 4, v4')
    e(f'v_add_u32 v12, s{XB}, v4')
    e('v_mul_u32_u24 v18, 288, v3')
    e('v_lshl_add_u32 v18, v2, 4, v18')
    e(f'v_add_u32 v19, {X_D1}, v18')
    srd(e, S_X, 4, 1152000, add=BOFF)
    e(f's_add_u32 s46, s{TAG}, {TAGINC}')
    e('v_mov_b32 v56, s46')
    e('s_lshl_b32 s46, s2, 7')
    e('v_mov_b32 v58, s46')
    e(f's_add_u32 s46, s{PAIR}, {NPROD}')
    e('s_lshl_b32 s46, s46, 7')
    e('v_mov_b32 v59, s46')
    def publish(slot, vflag, tag, first, n=0):
        e('s_mov_b64 exec, 1')
        e(f's_waitcnt vmcnt({n})')
        if first: stamp(4)
        if o.padto and tag == 'x': stamp(12)
        e('v_cmp_ne_u32 vcc, 0, v27')
        e('v_not_b32 v57, v56')
        e('s_nop 0')
        e('v_cndmask_b32 v57, v56, v57, vcc')
        e(f'ds_write_b32 v55, v57 offset:{slot}')
        e(f'ds_read_b128 v[20:23], v10 offset:{32+slot}')
        e('s_waitcnt lgkmcnt(0)')
        for i in range(4): e(f'v_xor_b32 v{20+i}, v{20+i}, v56')
        e('v_or3_b32 v20, v20, v21, v22')
        e('v_or_b32 v20, v20, v23')
        e('v_cmp_eq_u32 vcc, 0, v20')
        e('s_and_b64 exec, exec, vcc')
        e(f's_cbranch_execz L_nl{tag}')
        e(f'buffer_store_dword v56, v{vflag}, {sr(S_WS)}, 0 offen sc1')
        e(f'L_nl{tag}:')
        e('s_mov_b64 exec, -1')
    e(f's_cmp_eq_u32 s{EARLY}, 0')
    e('s_cbranch_scc1 L_noflag')
    publish(0, 58, 'x', True)
    if not o.b0early: e('s_barrier')
    e('L_noflag:')
    e(f's_setprio {o.hprio2}')
    RAW, ORAW = 64, 120
    EU = [184, 192]
    OU, DT, DO = 200, 208, 216
    xi = [0]
    NL = R + 1
    hq = []
    def eload():
        k = xi[0]
        if k >= NL: return
        a_ = 12
        if k:
            a_ = 13 + (k & 3)
            e(f'v_add_u32 v{a_}, {1152*k}, v12')
        e(f'buffer_load_dwordx4 {vr(RAW+4*k,4)}, v{a_}, {sr(S_X)}, 0 offen')
        xi[0] += 1
        hq.append(('e', k))
    if o.etouch:
        e(f's_cmp_lt_u32 s2, {NTASK}')
        e('s_cbranch_scc1 L_net')
        e(f's_and_b32 s46, s{NB}, 1')
        e(f's_mul_i32 s46, s46, {1152*6}')
        e('v_add_u32 v12, s46, v12')
        for _ in range(7): eload()
        e('v_subrev_u32 v12, s46, v12')
        e('s_waitcnt vmcnt(0)')
        e('L_net:')
        xi[0] = 0; hq.clear()
    YA = 232
    e(f's_cmp_eq_u32 s{b+5}, 2')
    e('s_cselect_b32 s46, 0x80000000, 0')
    e(f's_cmp_lg_u32 s{HAS3}, 0')
    e('s_cselect_b32 s47, 0x80000000, 0')
    e('s_or_b32 s48, s46, s47')
    for i in range(6):
        m_ = {0: None, 1: 46, 2: None, 3: 46, 4: 47, 5: 48}[i]
        e(f'v_mov_b32 v{YA+i}, v{52+i//2}' if m_ is None else f'v_or_b32 v{YA+i}, s{m_}, v{52+i//2}')
    def ystore(i, a_):
        e(f'buffer_store_dwordx4 {vr(28+4*i,4)}, v{a_}, {sr(S_WS)}, s{b+2+(i&1)} offen sc1')
        hq.append(('y', i))
    stamp(5)
    ldswait(8, 'eq', 4, 'o', 1)
    def unpack(dst, s_):
        for i in range(4):
            e(f'v_lshlrev_b32 v{dst+2*i}, 16, v{s_+i}')
            e(f'v_and_b32 v{dst+2*i+1}, s{MASK}, v{s_+i}')
    def unpackE(dst, k):
        e(f's_waitcnt vmcnt({len(hq)-1-hq.index(("e", k))})')
        unpack(dst, RAW + 4 * k)
        eload()
    def diff(eu, out):
        for i in range(8): e(f'v_sub_f32 v{DT+i}, v{eu+i}, v{OU+i}')
        for i in range(4):
            e(f'v_cvt_pk_bf16_f32 v{out+i}, v{DT+2*i}, v{DT+2*i+1}')
    def opengate():
        if not o.gate: return
        e('v_mov_b32 v11, 0x100')
        e('s_mov_b64 exec, 1')
        e('ds_add_u32 v10, v11 offset:8')
        e('s_mov_b64 exec, -1')
    def rows(hook):
        stamp(6)
        for j in range(R):
            e(f'ds_read_b128 {vr(ORAW+4*j,4)}, v18 offset:{X_O+288*j}')
        unpackE(EU[0], 0)
        e('s_waitcnt lgkmcnt(0)')
        for j in range(R):
            o0 = DO + 8 * (j & 1)
            unpack(OU, ORAW + 4 * j)
            diff(EU[j & 1], o0)
            e(f'ds_write_b128 v18, {vr(o0,4)} offset:{X_D0+288*j}')
            unpackE(EU[(j + 1) & 1], j + 1)
            diff(EU[(j + 1) & 1], o0 + 4)
            e(f'ds_write_b128 v19, {vr(o0+4,4)} offset:{288*j}')
            hook(j)
    e(f's_cmp_ge_u32 s2, {NPROD + (32 if o.d0p else 0)}')
    e('s_cbranch_scc1 L_pathA')
    e(f's_cmp_lt_u32 s{XK}, 2')
    e('s_cbranch_scc1 L_nox')
    if o.d0p:
        e(f's_cmp_eq_u32 s{XK}, 3')
        e('s_cbranch_scc1 L_xd')
    for i in range(3):
        e(f'buffer_store_dwordx4 {vr(SO+4*i,4)}, v{YA+2*i}, {sr(S_WS)}, s{b+4} offen sc1')
    if o.d0p:
        e('s_branch L_xe')
        e('L_xd:')
        for i in range(6): ystore(i, YA + i)
        e('L_xe:')
    if o.gearly:
        opengate()
        publish(0, 58, 'x2', True)
        e('s_branch L_nox2')
        e('L_nox:')
        opengate()
        e('L_nox2:')
    else:
        publish(0, 58, 'x2', True)
        e('L_nox:')
        opengate()
    hq.clear(); xi[0] = 0
    for _ in range(o.ein): eload()
    rows(lambda j: None)
    e('s_branch L_rowsdone')
    e('L_pathA:')
    if not o.d0p:
        e(f's_cmp_eq_u32 s{XK}, 3')
        e('s_cselect_b32 s47, 0, 0x80000000')
        for i in range(6): e(f'v_or_b32 v{20+i}, s47, v{YA+i}')
    hq.clear(); xi[0] = 0
    for _ in range(NL): eload()
    if not o.d0p:
        for i in range(6): ystore(i, 20 + i)
    def hookA(j):
        if j == o.grow:
            e(f's_waitcnt vmcnt({len(hq)-1-hq.index(("e", NL-1))})')
            opengate()
        if j == o.xrow and not o.d0p:
            e(f's_cmp_lg_u32 s{XK}, 3')
            e('s_cbranch_scc1 L_xp')
            publish(0, 58, 'x3', True)
            e('L_xp:')
    rows(hookA)
    e('L_rowsdone:')
    e('s_waitcnt lgkmcnt(0)')
    stamp(7)
    e('v_mov_b32 v11, 1')
    e('s_mov_b64 exec, 1')
    e('ds_add_u32 v10, v11 offset:16')
    e('s_mov_b64 exec, -1')
    e(f's_cmp_eq_u32 s{YT}, 0')
    e('s_cbranch_scc1 L_noy')
    e(f's_setprio {o.yprio}')
    e('L_yw:')
    e('ds_read_b64 v[20:21], v10')
    e('s_waitcnt lgkmcnt(0)')
    e('v_lshrrev_b32 v21, 14, v21')
    e('v_and_b32 v21, -4, v21')
    e('v_or_b32 v20, v20, v21')
    e(f'v_cmp_le_u32 vcc, s{YT}, v20')
    e('s_nop 4')
    e('s_cbranch_vccnz L_yx')
    e('s_sleep 4')
    e('s_branch L_yw')
    e('L_yx:')
    for i in range(6):
        ystore(i, YA + i)
        e(f's_waitcnt vmcnt({o.ythr})')
        if o.ysleep: e(f's_sleep {o.ysleep}')
    publish(16, 59, 'y', False)
    if o.diag == 1: stamp(8)
    e('L_noy:')
    e(f's_cmp_lg_u32 s{WAVE}, 4')
    e('s_cbranch_scc1 L_hend')
    e('L_guard:')
    e('ds_read_b32 v11, v10 offset:4')
    e('s_waitcnt lgkmcnt(0)')
    e('v_readfirstlane_b32 s46, v11')
    e('s_nop 3')
    e('s_cmp_eq_u32 s46, 4')
    e('s_cbranch_scc1 L_hend')
    e('s_cmp_lt_u32 s46, 0x10000')
    e('s_cbranch_scc0 L_rescue')
    e('s_sleep 16')
    e('s_branch L_guard')
    e('L_rescue:')
    e(f's_mov_b32 s{MODE}, 1')
    e(f's_mov_b32 s{HAS3}, 1')
    e(f's_mov_b32 s{NOTASK}, 0')
    e(f's_lshr_b32 s{TW0}, s{NB}, 1')
    e(f's_add_u32 s{TW1}, s{NB}, 9')
    e(f's_lshr_b32 s{TW1}, s{TW1}, 1')
    e(f's_mov_b32 s{PAIR}, 0')
    e('s_branch L_prod')
    e('L_hend:')
    if o.padto and o.padev[0] == 'h': padloop('h')
    if o.diag == 1:
        stamp(9)
        dump(10)
    e('L_end:')
    e('s_endpgm')
    if o.hfirst:
        m0, h0 = mark['main0'], mark['help0']
        e.L = e.L[:m0] + e.L[h0:] + ['.p2align 6'] + e.L[m0:h0]
    e('L_codeend:')
    e('.section .rodata,"a"')
    e('.p2align 6')
    e(f'.amdhsa_kernel {KN}')
    for x in ['next_free_vgpr 256', 'next_free_sgpr 102', 'accum_offset 256', 'group_segment_fixed_size 0', 'kernarg_size 40',
              'user_sgpr_count 2', 'user_sgpr_kernarg_segment_ptr 1', 'system_sgpr_workgroup_id_x 1']:
        e('  .amdhsa_' + x)
    e('.end_amdhsa_kernel')
    n = haz.check(e.L)
    if n: print(f'{n} hazards', file=sys.stderr)
    return f'; @launch grid=({NWG},1,1) block=(512,1,1) lds={LDS_BYTES}\n' + e.text()

def opts(argv=None):
    ap = argparse.ArgumentParser()
    ap.add_argument('-o', default='k.s')
    for nm, d in [('diag', 0), ('pf', 16), ('pf0', 8), ('wgap', 4), ('wres', 4), ('wsc1', 0), ('nfill', 2), ('fstride', 128), ('sleep', 0), ('maxpoll', 3000), ('nopoll', 0),
                  ('hprio', 3), ('hprio2', 0), ('mprio', 2), ('epre', 0), ('ein', 7), ('dpre', 7), ('b0early', 0), ('mtouch', 1), ('gate', 1), ('swapab', 0), ('d0p', 1), ('map', 1), ('chain', 4), ('yprio', 3), ('ysleep', 0), ('vt', 94), ('tla', 40), ('tskip', 1), ('gearly', 1), ('chfrom', 8), ('oj', 9), ('nolds', 0), ('now', 0), ('wsame', 0), ('grow', 1), ('vbd', 33), ('nopk', 1), ('padto', 0), ('npdelay', 0), ('opre', 5), ('etouch', 0), ('orev', 1), ('b0late', 1), ('dec', 1), ('tail', 1), ('xla', 9), ('hold', 1), ('prest', 0), ('xslot', 0), ('noclosed', 0), ('cpf', 1), ('hfirst', 1), ('warmb', 1), ('wsfirst', 0), ('flead', 6), ('ythr', 6), ('xrow', 3), ('padstep', 33), ('probe', 0), ('probeoff', 0x4000000)]:
        ap.add_argument('--' + nm, type=int, default=d)
    ap.add_argument('--oflags', default='')
    ap.add_argument('--pmap', default='18,18,18,18,18,18,18,18')
    ap.add_argument('--padev', default='m0')
    ap.add_argument('--trig', default='10,25,40')
    ap.add_argument('--yrow', default='0,7,2,9,5,11')
    ap.add_argument('--pfcs', default='4,5,5,8,8')
    ap.add_argument('--fflags', default='')
    ap.add_argument('--fleads', default='6,6,6,6,6')
    ap.add_argument('--marks', default='0,4,8,12,16,24,33,47,58')
    o = ap.parse_args(argv)
    o.marks = [int(x) for x in o.marks.split(',')]
    o.yrow = [int(x) for x in o.yrow.split(',')]
    o.pfcs = [int(x) for x in o.pfcs.split(',')]
    o.fleads = [int(x) for x in o.fleads.split(',')]
    o.trig = [int(x) for x in o.trig.split(',')]
    return o

if __name__ == '__main__':
    o = opts()
    open(o.o, 'w').write(gen(o))
```

```python
import re, sys, argparse
import haz

KN = 'standalone__autoregressive_conv_wavernn__speech_kernel'
NWG = 252
NPROD = 144
ARR = 160 * 288
X_D0, X_O, X_D1 = 0, ARR, 2 * ARR
CNT = 3 * ARR
SCR = CNT + 64
LDS_BYTES = SCR + 18432
NSTEP = 106
WOFF = int(__import__('os').environ.get('WOFF', '0x100000'), 0)
NONCE = 0x10000
DIAG = 0x800000
WS_REC = max(0x1000000, WOFF + 0x400000, int(__import__('os').environ.get('WSREC', '0'), 0))
TAGINC = 0x9E3779B9
R = 12

class Em:
    def __init__(self): self.L = []
    def __call__(self, s): self.L.append(s)
    def text(self): return '\n'.join(self.L) + '\n'

def vr(a, n=1): return f'v{a}' if n == 1 else f'v[{a}:{a+n-1}]'
def sr(a, n=4): return f's[{a}:{a+n-1}]'

def streams():
    out = []
    for typ in (0, 1):
        S = []
        pid = [0]
        def add(arr, chunk, cs, acc):
            for c in cs: S.append((pid[0], arr, chunk, c, acc))
            pid[0] += 1
        if typ == 0:
            add('O', 0, range(16), 'P'); add('O', 1, range(16), 'P'); add('O', 'rem', range(0, 2), 'P')
            for q in range(4): add('D', q, range(16), 'Q')
            add('D', 'rem', range(8), 'Q')
        else:
            add('O', 2, range(16), 'P'); add('O', 3, range(16), 'P'); add('O', 'rem', range(2, 8), 'P')
            for q in range(4): add('D', q, range(15), 'Q')
            add('D', 'rem', range(8), 'Q')
        assert len(S) == NSTEP
        out.append(S)
    return out

S_X, S_W, S_WO, S_WS, S_OUT, S_DBG = 20, 24, 28, 32, 36, 40
WAVE, NB, BAT, PAR, MB, BOFF = 14, 15, 16, 17, 18, 19
PAIR0 = 3
XB = 52
MASK = 53
TW0, TW1, TW2, PAIR, HAS3, MODE, SCRB, TAG, LAST, NPOLL = 44, 45, 54, 55, 56, 57, 58, 59, 60, 61
TS = 62
TYP, WSO = 68, 69
EARLY, XK, YT, FIDX = 90, 91, 92, 93
NOTASK = 94
NTASK = NPROD + 96
FO = 97
C2L, CNL, C60 = 90, 92, 94
ST0 = 70

def srd(e, d, ptr, rec, add=None):
    if add is None:
        e(f's_mov_b32 s{d}, s{ptr}')
        e(f's_and_b32 s{d+1}, s{ptr+1}, 0xffff')
    else:
        e(f's_add_u32 s{d}, s{ptr}, s{add}')
        e(f's_addc_u32 s{d+1}, s{ptr+1}, 0')
        e(f's_and_b32 s{d+1}, s{d+1}, 0xffff')
    e(f's_mov_b32 s{d+2}, {rec}')
    e(f's_mov_b32 s{d+3}, 0x20000')

def gen(o):
    e = Em()
    role = ['m']
    def padloop(tag):
        e(f'L_pad{tag}:')
        e('s_memrealtime s[98:99]')
        e('s_waitcnt lgkmcnt(0)')
        e('s_sub_u32 s98, s98, s100')
        e(f's_cmp_lt_u32 s98, {o.padto}')
        e(f's_cbranch_scc1 L_pad{tag}')
    def stamp(k, lvl=1):
        if o.padto and lvl == 1 and o.padev == f'{role[0]}{k}':
            e('s_memrealtime s[100:101]'); e('s_waitcnt lgkmcnt(0)')
        if o.diag == lvl or (o.diag == 4 and lvl == 1): e(f's_memrealtime s[{ST0+2*k}:{ST0+2*k+1}]')
    def dump(nst):
        e('s_waitcnt lgkmcnt(0)')
        e('v_mov_b32 v250, 0')
        for k in range(nst): e(f'v_writelane_b32 v250, s{ST0+2*k}, {k}')
        e(f'v_writelane_b32 v250, s{NPOLL}, 13')
        e(f'v_writelane_b32 v250, s95, 12')
        e(f'v_writelane_b32 v250, s2, 14')
        e('s_getreg_b32 s46, hwreg(HW_REG_XCC_ID)')
        e('v_writelane_b32 v250, s46, 15')
        e(f's_lshl_b32 s46, s2, 3'); e(f's_add_u32 s46, s46, s{WAVE}'); e('s_lshl_b32 s46, s46, 6'); e(f's_add_u32 s46, s46, {DIAG}')
        e('v_lshl_add_u32 v251, v1, 2, s46')
        e('s_mov_b64 exec, 0xffff')
        e(f'buffer_store_dword v250, v251, {sr(S_WS)}, 0 offen')
        e('s_mov_b64 exec, -1')

    e('.amdgcn_target "amdgcn-amd-amdhsa--gfx950"')
    e('.text')
    e(f'.globl {KN}')
    e('.p2align 8')
    e(f'.type {KN},@function')
    e(f'{KN}:')
    e(f's_cmp_ge_u32 s2, {NWG}')
    e('s_cbranch_scc1 L_end')
    stamp(0)
    if o.padto and o.padev != 'm0': e('s_memrealtime s[100:101]')
    e('s_load_dwordx4 s[4:7], s[0:1], 0')
    e('s_load_dwordx4 s[8:11], s[0:1], 16')
    e('s_load_dwordx2 s[12:13], s[0:1], 32')
    e('v_lshrrev_b32 v2, 6, v0')
    e('v_and_b32 v1, 63, v0')
    e(f'v_readfirstlane_b32 s{WAVE}, v2')
    def decode():
        e('s_and_b32 s44, s2, 7')
        e('s_lshr_b32 s45, s2, 3')
        e('s_mul_i32 s46, s44, 31')
        e('s_min_u32 s44, s44, 4')
        e('s_add_u32 s46, s46, s44')
        e('s_add_u32 s46, s46, s45')
        if o.map == 0:
            e('s_mul_hi_u32 s47, s46, 68174085')
            e('s_mul_i32 s48, s47, 63')
            e('s_sub_u32 s48, s46, s48')
            e(f's_mul_hi_u32 s{NB}, s48, 613566757')
            e(f's_mul_i32 s49, s{NB}, 7')
            e('s_sub_u32 s49, s48, s49')
            e('s_mul_i32 s47, s47, 7')
            e('s_add_u32 s47, s47, s49')
        elif o.map == 1:
            e('s_mul_hi_u32 s47, s46, 477218589')
            e('s_mul_i32 s48, s47, 9')
            e(f's_sub_u32 s{NB}, s46, s48')
        else:
            e('s_mul_hi_u32 s47, s46, 34087043')
            e('s_mul_i32 s48, s47, 126')
            e('s_sub_u32 s48, s46, s48')
            e(f's_mul_hi_u32 s{NB}, s48, 306783379')
            e(f's_mul_i32 s49, s{NB}, 14')
            e('s_sub_u32 s49, s48, s49')
            e('s_mul_i32 s47, s47, 14')
            e('s_add_u32 s47, s47, s49')
        e(f's_and_b32 s{PAR}, s47, 1')
        e('s_lshr_b32 s47, s47, 1')
        e('s_cmp_ge_u32 s47, 7')
        e(f's_cselect_b32 s{BOFF}, 1152000, 0')
        e('s_cselect_b32 s48, 7, 0')
        e(f's_sub_u32 s{MB}, s47, s48')
        e(f's_mul_i32 s{XB}, s{MB}, 576')
        e(f's_add_u32 s{XB}, s{XB}, s{PAR}')
        e(f's_sub_u32 s{XB}, s{XB}, 60')
        e(f's_mul_i32 s{XB}, s{XB}, 288')
    e(f's_cmp_ge_u32 s{WAVE}, 4')
    e('s_cbranch_scc1 L_helper')
    if o.cpf:
        e('s_lshr_b32 s44, s2, 3')
        e(f's_lshl_b32 s45, s{WAVE}, 5')
        e('s_add_u32 s44, s44, s45')
        e('s_sub_u32 s44, s44, 26')
        e('s_cmp_ge_u32 s44, 5')
        e('s_cbranch_scc1 L_main')
        e('s_getpc_b64 s[46:47]')
        e('L_pc:')
        e('s_lshl_b32 s44, s44, 13')
        e('v_lshl_add_u32 v2, v1, 7, s44')
        e('v_min_u32 v2, L_codeend-L_pc-4, v2')
        e('global_load_dword v63, v2, s[46:47]')
    if o.hfirst: e('s_branch L_main')
    mark = {'main0': len(e.L)}
    e('L_main:')
    e(f's_mov_b32 s{MASK}, 0xffff0000')
    e(f's_mov_b32 s{NPOLL}, 0')
    if o.diag: e('s_mov_b32 s95, 0')
    decode()

    VXO, VXOR, VXD, VXDR, VWL, VEX, VEXP, VOUT = 30, 31, 32, 33, 34, 35, 36, 37
    VF = 40
    VA = 48
    VCL = 60
    e('v_mul_u32_u24 v3, 3641, v0')
    e('v_lshrrev_b32 v3, 16, v3')
    e('v_mul_u32_u24 v2, 18, v3')
    e('v_sub_u32 v2, v0, v2')
    e('v_mul_u32_u24 v3, 1152, v3')
    e('v_lshl_add_u32 v3, v2, 4, v3')
    e(f's_add_u32 s46, s{XB}, 576')
    e(f'v_add_u32 v{VA}, s46, v3')
    e('v_mov_b32 v5, 16192')
    e('v_mov_b32 v6, 17056')
    for k in range(1, 12):
        e('v_cmp_le_u32 vcc, 14, v2')
        e('v_add_u32 v3, 4, v2')
        e('v_subrev_u32 v4, 14, v2')
        e('v_cndmask_b32 v7, v5, v6, vcc')
        e('v_cndmask_b32 v2, v3, v4, vcc')
        e(f'v_add_u32 v{VA+k}, v{VA+k-1}, v7')
    e(f's_lshl_b32 s50, s{WAVE}, 10')
    e(f's_add_u32 s50, s50, {X_O}')
    e(f's_add_u32 s51, s50, {4096*11}')
    e('s_movk_i32 s49, 4096')
    if o.orev:
        e(f's_bitcmp0_b32 s{NB}, 0')
        e('s_cbranch_scc1 L_fwd')
        for k in range(5): e(f'v_swap_b32 v{VA+k}, v{VA+10-k}')
        e(f's_add_u32 s50, s50, {4096*10}')
        e('s_movk_i32 s49, -4096')
        e('L_fwd:')
    e(f'v_mov_b32 v{VF+1}, {CNT}')
    for r in range(4, 8): e(f'v_mov_b32 v{r}, 0')
    e(f'ds_write_b128 v{VF+1}, v[4:7]')
    e(f'ds_write_b128 v{VF+1}, v[4:7] offset:16')
    e('s_waitcnt lgkmcnt(0)')
    e(f's_load_dword s{TAG}, s[12:13], {NONCE}')
    srd(e, S_X, 4, 1152000, add=BOFF)
    def odma(k):
        e(f's_mov_b32 m0, s{51 if k == 11 else 50}')
        e('s_add_u32 s50, s50, s49')
        e(f'buffer_load_dwordx4 v{VA+k}, {sr(S_X)}, 0 offen lds')
    def etouch():
        e(f'buffer_load_dword v62, v9, {sr(S_X)}, 0 offen')
    if o.mtouch and o.tskip:
        e('s_lshr_b32 s47, s2, 4')
        e('s_lshr_b32 s47, 0x33, s47')
        e('s_lshl_b32 s47, s47, 31')
    if o.mtouch:
        e('v_min_u32 v8, 39, v1')
        e('v_lshrrev_b32 v9, 2, v8')
        e(f's_mul_i32 s46, s{WAVE}, 10')
        e('v_add_u32 v9, s46, v9')
        e(f'v_mul_u32_u24 v9, {4*1152}, v9')
        e('v_and_b32 v8, 3, v8')
        e('v_mul_u32_u24 v8, 92, v8')
        e(f's_and_b32 s46, s{NB}, 3')
        e('s_mul_i32 s46, s46, 1152')
        e(f's_add_u32 s46, s46, s{XB}')
        e('v_add3_u32 v9, v9, v8, s46')
        if o.tskip: e('v_or_b32 v9, s47, v9')
    if o.mtouch == 2: etouch()
    for k in range(o.opre): odma(k)
    e('s_barrier')
    stamp(1)
    if o.mtouch == 3: etouch()
    for k in range(o.opre, 12):
        if k == 11:
            e(f's_cmp_lg_u32 s{WAVE}, 0')
            e('s_cbranch_scc1 L_o11')
        odma(k)
    e('L_o11:')
    if o.mtouch == 1: etouch()
    srd(e, S_WS, 12, WS_REC)
    srd(e, S_OUT, 8, 1152000, add=BOFF)
    srd(e, S_DBG, 10, 256)
    e('v_and_b32 v2, 15, v1')
    e('v_lshrrev_b32 v3, 4, v1')
    e('v_subrev_u32 v5, 4, v2')
    e('v_add_u32 v6, 8, v2')
    e('v_cmp_gt_u32 vcc, 4, v2')
    e('v_cmp_le_u32 s[46:47], 12, v2')
    e(f's_and_b32 s{TYP}, s{WAVE}, 1')
    e(f's_lshr_b32 s48, s{WAVE}, 1')
    e('v_cndmask_b32 v5, v5, v6, vcc')
    e('v_cndmask_b32 v5, v5, v2, s[46:47]')
    e('v_mul_u32_u24 v5, 9, v5')
    e('v_mul_u32_u24 v4, 288, v5')
    e('v_lshl_add_u32 v6, v3, 4, v4')
    e('v_and_b32 v7, 1, v3')
    e('v_lshl_add_u32 v7, v7, 4, v4')
    e('v_lshrrev_b32 v8, 1, v3')
    e('v_mul_u32_u24 v8, 2304, v8')
    e('v_add_u32 v7, v7, v8')
    e('v_add_u32 v7, 256, v7')
    e(f's_mul_i32 s49, s{TYP}, {X_D1}')
    e(f'v_add_u32 v{VXO}, {X_O}, v6')
    e(f'v_add_u32 v{VXOR}, {X_O}, v7')
    e(f'v_add_u32 v{VXD}, s49, v6')
    e(f'v_add_u32 v{VXDR}, s49, v7')
    e('v_lshlrev_b32 v6, 4, v1')
    e(f's_mul_i32 s49, s{WAVE}, 9216')
    e(f's_add_u32 s49, s49, {X_O}')
    e(f'v_add_u32 v{VEX}, s49, v6')
    e(f's_xor_b32 s49, s{WAVE}, 1')
    e('s_mul_i32 s49, s49, 9216')
    e(f's_add_u32 s49, s49, {X_O}')
    e(f'v_add_u32 v{VEXP}, s49, v6')
    e('v_and_b32 v8, 0x39, v1')
    e('v_bfe_u32 v9, v1, 1, 1')
    e('v_lshl_add_u32 v8, v9, 2, v8')
    e('v_bfe_u32 v9, v1, 2, 1')
    e('v_lshl_add_u32 v8, v9, 1, v8')
    e(f'v_lshlrev_b32 v{VWL}, 4, v8')
    e(f's_mul_i32 s49, s{TYP}, 576')
    e(f's_add_u32 s49, s49, s{XB}')
    e(f's_add_u32 s49, s49, {60*288}')
    e(f's_lshl_b32 s50, s{NB}, 5')
    e('s_add_u32 s49, s49, s50')
    e('s_lshl_b32 s50, s48, 4')
    e('s_add_u32 s49, s49, s50')
    e('v_mul_u32_u24 v8, 1152, v5')
    e('v_lshl_add_u32 v8, v3, 2, v8')
    e(f'v_add_u32 v{VOUT}, s49, v8')
    e(f'v_add_u32 v{VOUT+1}, 3456, v{VOUT}')
    e(f'v_add_u32 v{VOUT+2}, 6912, v{VOUT}')
    e(f's_lshl_b32 s49, s{NB}, 1')
    e('s_add_u32 s49, s49, s48')
    e('s_lshl_b32 s49, s49, 1')
    e(f's_add_u32 s49, s49, s{TYP}')
    e(f's_mul_i32 s{WSO}, s49, {NSTEP*1024}')
    e(f's_add_u32 s{WSO}, s{WSO}, {WOFF}')
    e(f's_mov_b32 s{C2L}, 0x4038aa3b'); e(f's_mov_b32 s{C2L+1}, 0x4038aa3b')
    e(f's_mov_b32 s{CNL}, 0xbfb8aa3b'); e(f's_mov_b32 s{CNL+1}, 0xbfb8aa3b')
    e(f's_mov_b32 s{C60}, 0x42700000')
    e(f'v_min_u32 v{VF}, 31, v1')
    e(f'v_lshlrev_b32 v{VF}, 7, v{VF}')
    e(f'v_min_u32 v{VF+6}, 47, v1')
    e(f'v_lshlrev_b32 v{VF+6}, 7, v{VF+6}')
    e(f'v_mov_b32 v{VF+2}, 1')
    e('s_lshl_b32 s46, s48, 2')
    e(f'v_add_u32 v{VF+5}, s46, v{VF+1}')
    e(f's_or_b32 s46, s2, s{WAVE}')
    e('v_or_b32 v2, s46, v1')
    e('v_cmp_eq_u32 vcc, 0, v2')
    e(f'v_mov_b32 v{VCL}, -16')
    e(f'v_mov_b32 v{VCL+1}, -16')
    e(f'v_mov_b32 v3, {NONCE}')
    e(f'v_cndmask_b32 v{VCL}, v{VCL}, 4, vcc')
    e(f'v_cndmask_b32 v{VCL+1}, v{VCL+1}, v3, vcc')
    e(f's_lshl_b32 s{FO}, s{TYP}, 13')
    if o.warmb:
        e(f's_cmp_eq_u32 s{TYP}, 1')
        e('s_cbranch_scc1 L_warmB')
        e('L_warmret:')
    e(f's_waitcnt vmcnt({1 if o.mtouch == 1 else 0}) lgkmcnt(0)')
    stamp(2)
    e('s_mov_b64 exec, 1')
    e(f'ds_add_u32 v{VF+1}, v{VF+2} offset:8')
    e('s_mov_b64 exec, -1')
    e(f's_add_u32 s{TAG}, s{TAG}, {TAGINC}')
    e(f'v_mov_b32 v{VF+3}, s{TAG}')
    def flagwait(tag, vaddr, back):
        e(f'L_fw{tag}:')
        if o.diag and len(tag) == 2: e(f's_add_u32 s95, s95, {1 << (5 * int(tag[1]))}')
        e(f'buffer_load_dword v{VF+4}, v{vaddr}, {sr(S_WS)}, s{FO} offen sc1')
        e(f'ds_read_b32 v{VF+7}, v{VF+1} offset:12')
        e(f's_add_u32 s{NPOLL}, s{NPOLL}, 1')
        e('s_waitcnt vmcnt(0) lgkmcnt(0)')
        e(f'v_cmp_ne_u32 vcc, v{VF+3}, v{VF+4}')
        e(f'v_readfirstlane_b32 s46, v{VF+7}')
        e('s_nop 3')
        e(f's_cbranch_vccz {back}')
        e('s_cmp_lg_u32 s46, 0')
        e(f's_cbranch_scc1 {back}')
        e(f's_cmp_lg_u32 s{NPOLL}, {o.maxpoll}')
        e(f's_cbranch_scc1 L_fw{tag}')
        e(f'v_mov_b32 v{VF+7}, 0x10000')
        e('s_mov_b64 exec, 1')
        e(f'ds_add_u32 v{VF+1}, v{VF+7} offset:4')
        e('s_mov_b64 exec, -1')
        e(f's_branch L_fw{tag}')
    if o.gate:
        e('L_gate:')
        e(f'ds_read_b32 v{VF+4}, v{VF+1} offset:8')
        e('s_waitcnt lgkmcnt(0)')
        e(f'v_cmp_gt_u32 vcc, 0x400, v{VF+4}')
        e('s_nop 4')
        e('s_cbranch_vccz L_gate2')
        e('s_sleep 1')
        e('s_branch L_gate')
        e('L_gate2:')
    if o.ppoll:
        e(f'buffer_load_dword v{VF+4}, v{VF}, {sr(S_WS)}, s{FO} offen sc1')
        e('L_pp:')
        for a_, b_ in ((VF + 4, 62), (62, VF + 4)):
            e(f's_sleep {o.ppoll}')
            e(f'buffer_load_dword v{b_}, v{VF}, {sr(S_WS)}, s{FO} offen sc1')
            e('s_waitcnt vmcnt(1)')
            e(f'v_cmp_ne_u32 vcc, v{VF+3}, v{a_}')
            e(f's_add_u32 s{NPOLL}, s{NPOLL}, 1')
            e('s_nop 3')
            e('s_cbranch_vccz L_go')
        e(f's_cmp_lt_u32 s{NPOLL}, 40')
        e('s_cbranch_scc1 L_pp')
        e(f's_mov_b32 s{NPOLL}, 0')
    flagwait('0', VF, 'L_go')
    e('L_go:')
    stamp(3)
    e('L_gw:')
    e(f'ds_read_b32 v{VF+7}, v{VF+1} offset:8')
    e('s_waitcnt lgkmcnt(0)')
    e(f'v_and_b32 v{VF+7}, 0xff, v{VF+7}')
    e(f'v_cmp_ne_u32 vcc, 4, v{VF+7}')
    e('s_nop 4')
    e('s_cbranch_vccnz L_gw')
    stamp(4)
    e(f's_setprio {o.mprio}')
    e(f's_cmp_eq_u32 s{TYP}, 1')
    e('s_cbranch_scc1 L_typeB')

    ACC = {'P': 64, 'Q': 100}
    WR, TMP = 136, 224
    XRING = [200 + 4 * i for i in range(6)]
    XWIN = [4 + 4 * i for i in range(6)] + [240 + 4 * i for i in range(4)]
    VC = 28
    PF = o.pf
    GT = 98
    wflags = ' sc1' if o.wsc1 else ''
    for typ, S in enumerate(streams()):
        if typ == 1:
            e('.p2align 6')
            if o.warmb: e('L_warmB:'); e('s_branch L_warmret')
            e('L_typeB:')
        ops = []
        vstart = {}
        lastv = o.vt - 1
        v0 = 0
        while v0 <= lastv:
            ch = 1 if v0 < o.chfrom else min(o.chain, lastv + 1 - v0)
            n0 = len(ops)
            for j in range(8, -1, -1):
                us = range(ch) if j % 2 == 0 else range(ch - 1, -1, -1)
                first_ = [u for u in us if v0 + u - j == 0 or (0 < v0 + u - j < NSTEP and S[v0+u-j][4] == 'Q' and S[v0+u-j-1][4] == 'P')]
                if first_: us = range(ch)
                for u in us:
                    if 0 <= v0 + u - j < NSTEP: ops.append((v0 + u - j, j))
            for u in range(ch): vstart[v0 + u] = n0 + (len(ops) - n0) * u // ch
            v0 += ch
        ntail = len(ops)
        if o.tail:
            for j in range(9):
                for g in range(o.vt - j, NSTEP): ops.append((g, j))
        assert len(ops) == NSTEP * 9 and len(set(ops)) == len(ops)
        N = len(ops)
        def key(n):
            g, j = ops[n]
            pid, arr, ch, c, acc = S[g]
            k = (pid, arr, ch, c + j)
            if n >= ntail and g < GT: k = k + ((n,) if not o.hold else ('h',))
            return k
        first, last = {}, {}
        for n in range(N):
            first.setdefault(key(n), n); last[key(n)] = n
        wfirst, wlast = {}, {}
        for n, (g, j) in enumerate(ops):
            wfirst.setdefault(g, n); wlast[g] = n
        tasks = []
        for k, n0 in first.items():
            win = o.tail and k[2] == 'rem' and k[1] == 'D'
            la = o.xla if n0 < ntail else 6
            if n0 >= ntail and ops[n0][1] == 0: la = o.tla
            elif win: la = 12
            tasks.append([n0 - la, n0 - 1, 'X', k])
        for g in range(NSTEP):
            rel = -100 + g if g < o.pf0 else max(0, wfirst[g] - 9 * PF)
            tasks.append([rel, wfirst[g] - 1, 'W', g])
        def at(v, off=0): return vstart[v] + off
        firstD = min(n for n in range(N) if S[ops[n][0]][1] == 'D')
        lastO = max(n for n in range(N) if S[ops[n][0]][1] == 'O')
        lastP = {j: max(n for n in range(N) if ops[n][1] == j and S[ops[n][0]][4] == 'P') for j in range(9)}
        slow = []
        vused = set()
        def check(v, off, cnt, tag):
            tasks.append([at(v - 1, 3), at(v - 1, 8), 'L', (f'ds_read_b32 v{VC}, v{VF+1} offset:{off}', ('c', tag))])
            tasks.append([at(v, 0), at(v, 1), 'C', (f'v_cmp_ne_u32 vcc, {cnt}, v{VC}', ('c', tag))])
            tasks.append([at(v, 6), at(v, 7), 'I', [f's_cbranch_vccnz L_slow{typ}{tag}', f'L_back{typ}{tag}:']])
            slow.append((tag, off, cnt))
            vused.add(v)
            return at(v, 8)
        def add1(pos, off):
            tasks.append([pos, pos + 4, 'A', off])
        vD = [v for v in vstart if vstart[v] <= firstD - o.xla][-1] - 1
        okD = check(vD, 16, 4, 'D')
        assert okD <= firstD - o.xla
        add1(lastO, 20)
        VP = 47
        okR = check(VP, 20, 4, 'R')
        for j in range(9):
            assert lastP[j] + 12 < at(VP + 1 + j, 2)
            tasks.append([at(VP + 1 + j, 2), at(VP + 1 + j, 8), 'L', (f'ds_write_b128 v{VEX}, {vr(ACC["P"]+4*j,4)} offset:{1024*j}', ('pw', j))])
        tasks.append([at(VP + 10, 0), at(VP + 10, 4), 'A', 'pair'])
        VQ = VP + 13
        okP = check(VQ, 'pair', 2, 'P')
        for j in range(9):
            tasks.append([at(VQ + 1 + j, 2), at(VQ + 1 + j, 8), 'L', (f'ds_read_b128 {vr(TMP+4*(j&1),4)}, v{VEXP} offset:{1024*j}', ('pr', j))])
            v = VQ + 2 + j
            pos = at(v, 8 - (j + 2) - 1) if j <= 6 else at(v, 8 - (j - 7) - 1)
            sh = 1 if j >= 7 else 0
            if o.chain > 1:
                own = [n for n in range(N) if ops[n][1] == j]
                pos = [a_ + 10 for a_, b_ in zip(own, own[1:]) if b_ - a_ >= 14 and a_ + 9 >= at(v, 0) ][0]
                sh = 0
                tasks[-1][0] = pos - 9; tasks[-1][1] = pos - 4
                tasks[-1][3] = (f'ds_read_b128 {vr(TMP+4*(j&3),4)}, v{VEXP} offset:{1024*j}', ('pr', j))
            tasks.append([pos - 1 + sh, pos - 1 + sh, 'Q', (j, 0)])
            tasks.append([pos + sh, pos + sh, 'Q', (j, 1)])
        if typ == 0:
            tasks.append([at(64, 4), at(64, 8), 'S', f'buffer_store_dword v{VCL+1}, v{VCL}, {sr(S_DBG)}, 0 offen sc1'])
            tasks.append([at(84, 4), at(84, 8), 'S', f'buffer_store_dword v{VF+3}, v{VCL+1}, {sr(S_WS)}, 0 offen sc1'])
        fslow = []
        passes = {}
        for g in range(NSTEP): passes.setdefault(S[g][0], g)
        need = [(passes[1], VF, 32 + 64 * typ), (32, VF + 6, 128), (passes[4], VF, 176), (passes[5], VF, 208), (passes[6], VF + 6, 240)]
        for ci, (gn, va, idx) in enumerate(need):
            v = gn - o.pfcs[ci] - 1
            while v in vused: v -= 1
            tasks.append([at(v - o.fleads[ci], 4), at(v - o.fleads[ci], 8), 'F', (va, idx, ci)])
            tasks.append([at(v, 0), at(v, 1), 'G', ci])
            tasks.append([at(v, 6), at(v, 7), 'I', [f's_cbranch_vccnz L_fw{typ}{ci}', f'L_fb{typ}{ci}:']])
            fslow.append((ci, va))
            assert v not in vused, v
            for t in tasks:
                if t[2] == 'W' and (t[3] >= gn): t[0] = max(t[0], at(v, 8))
        tasks.append([at(v + 1, 2), at(v + 1, 8), 'A', 4])
        if typ == 0:
            for lvl, v in enumerate(o.trig): tasks.append([at(v, 2), at(v, 8), 'P', lvl + 1])
        tasks.sort(key=lambda t: (t[0], t[1]))
        vq, lq = [], []
        dirty = [False]
        xreg, busy = {}, {}
        wn = [0]
        wr = {}
        lastw = [-100]
        later = []
        BIG = [WR + 4 * i for i in range(16)] + XWIN + [ACC['P'] + 4 * i for i in range(9)]
        for i in range(9): busy[ACC['P'] + 4 * i] = at(VP + 12)
        until = {}
        if o.chain > 1:
            BIG += XRING + [VA, VA + 4, VA + 8]
            for i in range(9):
                BIG.append(ACC['Q'] + 4 * i)
                until[ACC['Q'] + 4 * i] = min(n for n in range(N) if ops[n][1] == i and S[ops[n][0]][4] == 'Q') - 3
        def freeregs(n, end): return [x for x in BIG if busy.get(x, -1) <= n and end < until.get(x, 10**9)]
        def wok(t, n):
            if t[2] != 'W': return True
            if t[3] != wn[0]: return False
            free = len(freeregs(n, wlast[t[3]]))
            if t[1] - n <= 9 * 3: return free > 0
            return n - lastw[0] >= o.wgap and free > o.wres
        since = {}
        fill = []
        def em(x):
            e(x)
            if not x.endswith(':'):
                for jj in since: since[jj] += 1
        def lwait(tag):
            if tag not in lq: return
            i = lq.index(tag)
            em(f's_waitcnt lgkmcnt({0 if dirty[0] else len(lq)-1-i})')
            if dirty[0]: lq.clear(); dirty[0] = False
            else: del lq[:i + 1]
        def vwait(g):
            if g not in vq: return
            i = vq.index(g)
            em(f's_waitcnt vmcnt({len(vq)-1-i})')
            del vq[:i + 1]
        def run(t, n):
            kind, p = t[2], t[3]
            if kind == 'X':
                pool = BIG if (o.chain > 1 or p[-1] == 'h' or (p[2] == 'rem' and p[1] == 'D')) else XRING
                r = [x for x in pool if busy.get(x, -1) <= n and last[p] < until.get(x, 10**9)]
                assert r, ('no x register', p, n)
                r = min(r, key=lambda x: (until.get(x, 10**9), busy.get(x, -1)))
                busy[r] = last[p]; xreg[p] = r
                arr, ch, s_ = p[1], p[2], p[3]
                if o.nolds and n > 9 * 30: return
                if ch == 'rem': em(f'ds_read_b128 {vr(r,4)}, v{VXOR if arr == "O" else VXDR} offset:{288*s_}')
                else: em(f'ds_read_b128 {vr(r,4)}, v{VXO if arr == "O" else VXD} offset:{64*ch+288*s_}')
                lq.append(p)
            elif kind == 'W':
                g = p
                r = min(freeregs(n, wlast[g]), key=lambda x: (until.get(x, 10**9), busy.get(x, -1)))
                busy[r] = wlast[g]; wr[g] = r
                assert g == wn[0]; wn[0] += 1
                lastw[0] = n
                if o.now and g > 40: return
                if o.wsame and g > 40:
                    em(f'buffer_load_dwordx4 {vr(r,4)}, v{VWL}, {sr(S_WS)}, s{WSO} offen offset:{1024*(g%4)}{wflags}'); vq.append(g); return
                em(f'buffer_load_dwordx4 {vr(r,4)}, v{VWL}, {sr(S_WS)}, s{WSO} offen offset:{1024*(g%4)}{wflags}')
                if g % 4 == 3:
                    if n < 0: em(f's_add_u32 s{WSO}, s{WSO}, 4096')
                    else: later.append(f's_add_u32 s{WSO}, s{WSO}, 4096')
                vq.append(g)
            elif kind == 'L':
                em(p[0].replace('offset:pair', 'offset:24').replace(f'v{VF+1} offset:24', f'v{VF+5} offset:24')); lq.append(p[1])
            elif kind == 'C':
                lwait(p[1]); em(p[0])
            elif kind == 'I':
                for x in p: em(x)
            elif kind == 'A':
                em('s_mov_b64 exec, 1')
                if p == 'pair': em(f'ds_add_u32 v{VF+5}, v{VF+2} offset:24')
                else: em(f'ds_add_u32 v{VF+1}, v{VF+2} offset:{p}')
                em('s_mov_b64 exec, -1')
                lq.append(('a', p))
            elif kind == 'Q':
                p, hf = p
                lwait(('pr', p))
                q = ACC['Q'] + 4 * p; t_ = TMP + 4 * (p & (3 if o.chain > 1 else 1))
                for i in (2 * hf, 2 * hf + 1): em(f'v_add_f32 v{q+i}, v{q+i}, v{t_+i}')
            elif kind == 'S':
                assert not any(isinstance(x, tuple) and x[0] == 's' for x in vq)
                em(p); vq.append(('s', n))
            elif kind == 'F':
                em(f's_mov_b32 s{FO}, {128*p[1]}')
                em(f'buffer_load_dword v{VF+4}, v{p[0]}, {sr(S_WS)}, s{FO} offen {o.fflags}'); vq.append(('f', p[2]))
            elif kind == 'G':
                vwait(('f', p)); em(f'v_cmp_ne_u32 vcc, v{VF+3}, v{VF+4}')
            elif kind == 'P':
                em(f'v_mov_b32 v{VF+7}, {p}')
                em('s_mov_b64 exec, 1')
                em(f'ds_max_u32 v{VF+1}, v{VF+7}')
                em('s_mov_b64 exec, -1')
                lq.append(('p', p))
        def epi(j, pk):
            q = ACC['Q'] + 4 * j
            t = TMP + 8 * (j & 1)
            I = []
            if pk:
                I.append(f'v_pk_mul_f32 {vr(t,2)}, {vr(q,2)}, s[{C2L}:{C2L+1}]')
                I.append(f'v_pk_mul_f32 {vr(t+2,2)}, {vr(q+2,2)}, s[{CNL}:{CNL+1}]')
            else:
                for i in (0, 1): I.append(f'v_mul_f32 v{t+i}, s{C2L}, v{q+i}')
                for i in (2, 3): I.append(f'v_mul_f32 v{t+i}, s{CNL}, v{q+i}')
            I.append(f'v_min_f32 v{t}, s{C60}, v{t}')
            I.append(f'v_min_f32 v{t+1}, s{C60}, v{t+1}')
            for i in (0, 1, 2, 3): I.append(f'v_exp_f32 v{t+i}, v{t+i}')
            if pk:
                I.append(f'v_pk_add_f32 {vr(t+4,2)}, {vr(t,2)}, 1.0 op_sel_hi:[1,0]')
                I.append(f'v_pk_add_f32 {vr(t+6,2)}, {vr(t,2)}, -1.0 op_sel_hi:[1,0]')
                I.append(f'v_pk_fma_f32 {vr(t+4,2)}, {vr(t+4,2)}, {vr(t+2,2)}, {vr(t+4,2)}')
            else:
                for i in (0, 1): I.append(f'v_add_f32 v{t+4+i}, 1.0, v{t+i}')
                for i in (0, 1): I.append(f'v_fma_f32 v{t+4+i}, v{t+4+i}, v{t+2+i}, v{t+4+i}')
            I.append(f'v_rcp_f32 v{t+4}, v{t+4}')
            I.append(f'v_rcp_f32 v{t+5}, v{t+5}')
            if pk:
                I.append('s_nop 0')
                I.append(f'v_pk_mul_f32 {vr(t+6,2)}, {vr(t+6,2)}, {vr(t+4,2)}')
            else:
                for i in (0, 1): I.append(f'v_add_f32 v{t+6+i}, -1.0, v{t+i}')
                for i in (0, 1): I.append(f'v_mul_f32 v{t+6+i}, v{t+6+i}, v{t+4+i}')
            I.append(f'v_cvt_pk_bf16_f32 v{q}, v{t+6}, v{t+7}')
            I.append(f'buffer_store_dword v{q}, v{VOUT + j//3}, {sr(S_OUT)}, 0 offen offset:{1152*(j%3)} {o.oflags if j < o.oj else ""}')
            return I
        def cost(x): return 2 if x.startswith(('v_exp', 'v_rcp', 'buffer')) else 1
        while tasks and tasks[0][0] < 0: run(tasks.pop(0), -1)
        inv = {n: v for v, n in vstart.items()}
        lastop = {j: max(n for n in range(N) if ops[n][1] == j) for j in range(9)}
        for n, (g, j) in enumerate(ops):
            if n in inv and o.padto and o.padev == 'm5' and inv[n] == o.padstep:
                e('s_memrealtime s[100:101]'); dirty[0] = True
            if n in inv and o.diag:
                v = inv[n]
                if o.diag == 2 and v in o.marks:
                    kk = o.marks.index(v)
                    e(f's_memtime s[{ST0+2*kk}:{ST0+2*kk+1}]'); dirty[0] = True
                if o.diag in (1, 4) and v == 33: stamp(5); stamp(6); dirty[0] = True
            k = key(n)
            assert k in xreg, (k, n)
            lwait(k); vwait(g)
            acc = S[g][4]
            d = ACC[acc] + 4 * j
            if g == 0: cs = '0'
            elif acc == 'Q' and S[g-1][4] == 'P': cs = vr(ACC['P'] + 4 * j, 4)
            else: cs = vr(d, 4)
            em(f'v_mfma_f32_16x16x32_bf16 {vr(d,4)}, {vr(wr[g],4)}, {vr(xreg[k],4)}, {cs}' if not o.swapab else f'v_mfma_f32_16x16x32_bf16 {vr(d,4)}, {vr(xreg[k],4)}, {vr(wr[g],4)}, {cs}')
            if n == lastop[j]: since[j] = 0
            while later: em(later.pop(0))
            budget = 2
            TC = {'X': 1, 'W': 2, 'L': 2, 'C': 1, 'I': 0, 'A': 1, 'Q': 2, 'S': 2, 'F': 2, 'G': 1, 'P': 2}
            while True:
                ready = [t for t in tasks if t[0] <= n and wok(t, n)]
                if not ready: break
                t = min(ready, key=lambda t: t[1])
                assert t[1] >= n, ('late', t, n)
                if TC[t[2]] > budget and t[1] > n:
                    fit = [u for u in ready if TC[u[2]] <= budget]
                    if not fit: break
                    t = min(fit, key=lambda t: t[1])
                tasks.remove(t); run(t, n); budget -= TC[t[2]]
            for jj in sorted(since):
                if 8 <= since[jj] < 10**6:
                    fill += epi(jj, False); since[jj] = 10**6
            budget += o.nfill - 2
            while fill and budget >= cost(fill[0]):
                budget -= cost(fill[0])
                if fill[0].startswith('buffer_store'):
                    q_ = int(re.match(r'buffer_store_dword v(\d+)', fill[0]).group(1))
                    until.pop(q_, None); busy[q_] = n + 2
                em(fill.pop(0))
            assert all(t[1] > n for t in tasks), ('late', n, [t for t in tasks if t[1] <= n])
        assert not tasks
        stamp(7)
        while fill: em(fill.pop(0))
        for jj in [jj for jj in sorted(since) if since[jj] < 10**6]:
            if since[jj] < 8: em(f's_nop {8-since[jj]-1}')
            for x in epi(jj, True): em(x)
        stamp(8)
        if o.padto and o.padev[0] == 'm': padloop(typ)
        if o.diag == 1:
            e('s_waitcnt vmcnt(0)')
            stamp(9)
            dump(10)
        if o.diag == 2:
            kk = len(o.marks)
            e(f's_memtime s[{ST0+2*kk}:{ST0+2*kk+1}]')
            dump(10)
        e('s_endpgm')
        for tag, off, cnt in slow:
            e(f'L_slow{typ}{tag}:')
            e(f'ds_read_b32 v{VC}, v{VF+5 if off == "pair" else VF+1} offset:{24 if off == "pair" else off}')
            e('s_waitcnt lgkmcnt(0)')
            e(f'v_cmp_ne_u32 vcc, {cnt}, v{VC}')
            e('s_nop 4')
            e(f's_cbranch_vccnz L_slow{typ}{tag}')
            e(f's_branch L_back{typ}{tag}')
        for ci, va in fslow: flagwait(f'{typ}{ci}', va, f'L_fb{typ}{ci}')

    mark['help0'] = len(e.L)
    if not o.hfirst: e('.p2align 6')
    e('L_helper:')
    role[0] = 'h'
    e(f's_setprio {o.hprio}')
    e(f's_sub_u32 s{TW0}, s{WAVE}, 4')
    e(f's_mov_b32 s{TW1}, s{WAVE}')
    e(f's_sub_u32 s{PAIR}, s2, {NPROD}')
    e(f's_cselect_b32 s{PAIR}, s2, s{PAIR}')
    e(f's_mov_b32 s{MODE}, 0')
    e(f's_mov_b32 s{NOTASK}, s2')
    e(f's_mov_b32 s{HAS3}, s{TW0}')
    e(f's_lshl_b32 s{SCRB}, s{TW0}, 12')
    e(f's_add_u32 s{SCRB}, s{SCRB}, {SCR}')
    e('L_prod:')
    T = [(28, TW0, 2, 52, 0), (36, TW1, 4, 53, 2048), (44, TW2, 6, 54, 16384)]
    c, kp, q, cc, kk, t = 46, 47, 48, 49, 50, 51
    b = TS
    e('v_mov_b32 v19, 4320')
    e('v_and_b32 v23, 3, v1')
    e('v_lshrrev_b32 v24, 3, v1')
    e('v_mul_u32_u24 v24, 576, v24')
    e('v_bfe_u32 v25, v1, 2, 1')
    e('v_mul_u32_u24 v25, 288, v25')
    e('v_add_u32 v24, v24, v25')
    for (vb, sw, vl, vs, so) in T:
        e(f'v_lshl_add_u32 v8, s{sw}, 2, v23' if sw != TW2 else 'v_add_u32 v8, 32, v23')
        e('v_cmp_le_u32 vcc, 18, v8')
        e(f'v_lshl_add_u32 v{vl}, v8, 4, v24')
        e(f'v_add_u32 v9, v{vl}, v19')
        e(f'v_cndmask_b32 v{vl}, v{vl}, v9, vcc')
    e(f's_and_b32 s{c}, s{PAIR}, 15')
    e(f's_lshr_b32 s{kp}, s{PAIR}, 4')
    e(f's_mul_i32 s{b}, s{c}, 165888')
    e(f's_mul_i32 s{t}, s{kp}, 9216')
    e(f's_add_u32 s{b}, s{b}, s{t}')
    e(f's_add_u32 s{b+1}, s{b}, 82944')
    e(f's_mov_b32 s{S_W+2}, 2571264')
    e(f's_mov_b32 s{S_W+3}, 0x20000')
    e(f's_mov_b32 s{S_WO+3}, 0x20000')
    e(f's_cmp_lg_u32 s{c}, 15')
    e(f's_cselect_b32 s{S_WO+2}, 2571264, 0')
    e(f's_mov_b32 m0, s{SCRB}')
    e('s_waitcnt lgkmcnt(0)')
    e(f's_mov_b32 s{S_W}, s6')
    e(f's_and_b32 s{S_W+1}, s7, 0xffff')
    e(f's_mov_b32 s{S_WO}, s6')
    e(f's_and_b32 s{S_WO+1}, s7, 0xffff')
    e(f's_cmp_ge_u32 s{NOTASK}, {NTASK}')
    e('s_cbranch_scc1 L_a3')
    def cond3(lbl):
        e(f's_cmp_lg_u32 s{HAS3}, 0')
        e(f's_cbranch_scc1 {lbl}')
    for ti, (vb, sw, vl, vs, so) in enumerate(T):
        if ti == 2: cond3('L_a3')
        if ti == 1: e('s_addk_i32 m0, 1024'); e('s_nop 0')
        e(f'buffer_load_dwordx4 v{vl}, {sr(S_W)}, s{b} offen lds')
        e('s_addk_i32 m0, 1024')
        e('s_nop 0')
        e(f'buffer_load_dwordx4 v{vl}, {sr(S_WO)}, s{b+1} offen lds')
        if ti == 1: e(f's_addk_i32 m0, {16384-3072}')
    e('L_a3:')
    stamp(1)
    e(f's_cmp_lg_u32 s{MODE}, 0')
    e('s_cbranch_scc1 L_a4')
    e(f's_load_dword s{TAG}, s[12:13], {NONCE}')
    e(f's_lshr_b32 s{EARLY}, 0x33, s{kp}')
    e(f's_and_b32 s{EARLY}, s{EARLY}, 1')
    e(f's_sub_u32 s{XK}, 2, s{EARLY}')
    e(f's_lshl_b32 s{t}, s{kp}, 1')
    e(f's_lshr_b32 s{YT}, {(3<<12)+(3<<14)+(3<<16)}, s{t}')
    e(f's_and_b32 s{YT}, s{YT}, 3')
    e(f's_lshr_b32 s{t}, s{kp}, 1')
    e(f's_cmp_ge_u32 s2, {NPROD}')
    e(f's_cselect_b32 s{EARLY}, 0, s{EARLY}')
    e(f's_cselect_b32 s{XK}, 3, s{XK}')
    e(f's_cselect_b32 s{YT}, s{t}, s{YT}')
    e(f's_cmp_ge_u32 s2, {NPROD+32}')
    e(f's_cselect_b32 s{XK}, 0, s{XK}')
    e(f's_cmp_ge_u32 s2, {NTASK}')
    e(f's_cselect_b32 s{YT}, 0, s{YT}')
    if not o.b0early:
        e(f's_cmp_lg_u32 s{EARLY}, 0')
        e('s_cbranch_scc1 L_a4')
    e('s_barrier')
    e('L_a4:')
    e(f's_mov_b32 s{MASK}, 0xffff0000')
    e(f's_mov_b32 s{NPOLL}, 0')
    srd(e, S_WS, 12, WS_REC)
    srd(e, S_DBG, 10, 256)
    e(f'v_mov_b32 v10, {CNT}')
    e(f'v_mov_b32 v20, {(256 - 18*2*NSTEP*1024) & 0xffffffff}')
    e(f'v_mov_b32 v26, {2*NSTEP*1024}')
    e('v_bfe_u32 v21, v1, 2, 2')
    e('v_lshlrev_b32 v21, 7, v21')
    e('v_and_b32 v22, 1, v1')
    e('v_lshl_add_u32 v21, v22, 6, v21')
    e('v_bfe_u32 v22, v1, 1, 1')
    e('v_lshl_add_u32 v21, v22, 3, v21')
    e('v_lshrrev_b32 v22, 4, v1')
    e('v_lshl_add_u32 v21, v22, 4, v21')
    e(f'v_add_u32 v21, s{SCRB}, v21')
    e('v_and_b32 v25, 15, v1')
    e('v_lshlrev_b32 v25, 4, v25')
    for (vb, sw, vl, vs, so) in T:
        e(f'v_lshl_add_u32 v8, s{sw}, 2, v22' if sw != TW2 else 'v_add_u32 v8, 32, v22')
        e('v_cmp_le_u32 vcc, 18, v8')
        e(f'v_mad_u32_u24 v{vs}, v8, v26, v25')
        e(f'v_add_u32 v9, v{vs}, v20')
        e(f'v_cndmask_b32 v{vs}, v{vs}, v9, vcc')
    e(f's_lshr_b32 s{q}, s{kp}, 1')
    e(f's_and_b32 s{cc}, s{c}, 7')
    e(f's_lshr_b32 s{kk}, s{c}, 3')
    e(f's_and_b32 s{t}, s{kp}, 1')
    e(f's_cmp_eq_u32 s{kp}, 8')
    e(f's_cselect_b32 s{cc}, s{cc}, s{c}')
    e(f's_cselect_b32 s{kk}, s{kk}, s{t}')
    e(f's_lshl_b32 s{kk}, s{kk}, 9')
    e(f's_add_u32 s{kk}, s{kk}, {WOFF}')
    e(f's_lshl_b32 s{t}, s{q}, 4')
    e(f's_add_u32 s{b+2}, s{t}, s{cc}')
    e(f's_sub_u32 s{b+3}, s{b+2}, s{q}')
    e(f's_cmp_ge_u32 s{q}, 2')
    e(f's_cselect_b32 s{b+4}, 74, 0')
    e(f's_add_u32 s{b+4}, s{b+4}, s{b+2}')
    e(f's_cmp_lt_u32 s{cc}, 2')
    e(f's_cselect_b32 s{t}, 32, 136')
    e(f's_add_u32 s{t}, s{t}, s{cc}')
    e(f's_cmp_eq_u32 s{kp}, 8')
    e(f's_cselect_b32 s{b+4}, s{t}, s{b+4}')
    e(f's_add_u32 s{b+2}, s{b+2}, 34')
    e(f's_add_u32 s{b+3}, s{b+3}, 144')
    for k in (2, 3, 4):
        e(f's_lshl_b32 s{b+k}, s{b+k}, 10')
        e(f's_add_u32 s{b+k}, s{b+k}, s{kk}')
    e(f's_cmp_eq_u32 s{kp}, 8')
    e(f's_cselect_b32 s{t}, 1, 2')
    e(f's_cmp_eq_u32 s{c}, 15')
    e(f's_cselect_b32 s{b+5}, s{t}, 0')
    e(f's_lshl_b32 s46, s{WAVE}, 2')
    e(f's_add_u32 s46, s46, {CNT+16}')
    e('v_mov_b32 v55, s46')
    e('v_mov_b32 v27, 0')
    e('v_mov_b32 v9, 4')
    e('s_waitcnt vmcnt(0) lgkmcnt(0)')
    stamp(2)
    e(f's_cmp_ge_u32 s{NOTASK}, {NTASK}')
    e('s_cbranch_scc1 L_x9')
    e(f's_cmp_lg_u32 s{WAVE}, 4')
    e('s_cbranch_scc1 L_a5')
    e('s_mov_b64 exec, 1')
    e(f'buffer_load_dword v27, v9, {sr(S_DBG)}, 0 offen sc1')
    e('s_mov_b64 exec, -1')
    e('L_a5:')
    for (vb, sw, vl, vs, so) in T:
        for tap in range(2):
            for half in range(2):
                e(f'ds_read_b64_tr_b16 {vr(vb+4*tap+2*half,2)}, v21 offset:{so+1024*tap+512*half}')
    nlab = [0]
    def st01(vb, vs):
        nlab[0] += 1
        e(f'buffer_store_dwordx4 {vr(vb,4)}, v{vs}, {sr(S_WS)}, s{b+2} offen sc1')
        e(f's_cmp_eq_u32 s{b+5}, 2')
        e(f's_cbranch_scc1 L_skip{nlab[0]}')
        e(f'buffer_store_dwordx4 {vr(vb+4,4)}, v{vs}, {sr(S_WS)}, s{b+3} offen sc1')
        e(f'L_skip{nlab[0]}:')
    def st01all(lbl):
        st01(T[0][0], T[0][3]); st01(T[1][0], T[1][3])
        cond3(lbl)
        st01(T[2][0], T[2][3])
    def dosum(vb, tb, ob):
        for i in range(8):
            e(f'v_lshlrev_b32 v{tb+2*i}, 16, v{vb+i}')
            e(f'v_and_b32 v{tb+2*i+1}, s{MASK}, v{vb+i}')
        for i in range(4):
            e(f'v_pk_add_f32 {vr(tb+2*i,2)}, {vr(tb+2*i,2)}, {vr(tb+8+2*i,2)}')
        for i in range(4):
            e(f'v_cvt_pk_bf16_f32 v{ob+i}, v{tb+2*i}, v{tb+2*i+1}')
    def ldswait(off, cmp, operand, tag, slp):
        e(f'L_lw{tag}:')
        e(f'ds_read_b32 v11, v10 offset:{off}')
        e('s_waitcnt lgkmcnt(0)')
        e('v_and_b32 v11, 0xff, v11')
        e(f'v_cmp_{cmp}_u32 vcc, {operand}, v11')
        e('s_nop 4')
        e(f's_cbranch_vccnz L_lx{tag}')
        e(f's_sleep {slp}')
        e(f's_branch L_lw{tag}')
        e(f'L_lx{tag}:')
    SO = 240
    e(f's_or_b32 s46, s{EARLY}, s{MODE}')
    e(f's_cmp_eq_u32 s{XK}, 2')
    e('s_cselect_b32 s47, 1, s46')
    e('s_cmp_eq_u32 s47, 0')
    e('s_cbranch_scc1 L_x9')
    for ti, (vb, sw, vl, vs, so) in enumerate(T):
        if ti == 2: cond3('L_x3')
        e(f's_waitcnt lgkmcnt({8-4*ti})')
        dosum(vb, 64 + 16 * ti, SO + 4 * ti)
        e('s_cmp_eq_u32 s46, 0')
        e(f's_cbranch_scc1 L_x5{ti}')
        e(f'buffer_store_dwordx4 {vr(SO+4*ti,4)}, v{vs}, {sr(S_WS)}, s{b+4} offen sc1')
        e(f'L_x5{ti}:')
    e('L_x3:')
    e(f's_cmp_eq_u32 s{MODE}, 0')
    e('s_cbranch_scc1 L_x9')
    e('L_x2:')
    e('s_waitcnt lgkmcnt(0)')
    st01all('L_x4')
    e('L_x4:')
    e(f's_cmp_eq_u32 s{MODE}, 0')
    e('s_cbranch_scc1 L_x9')
    e('s_waitcnt vmcnt(0)')
    e(f's_add_u32 s{PAIR}, s{PAIR}, 1')
    e(f's_cmp_lt_u32 s{PAIR}, {NPROD}')
    e('s_cbranch_scc1 L_prod')
    e('v_mov_b32 v11, 1')
    e('ds_write_b32 v10, v11 offset:12')
    e('s_endpgm')
    e('L_x9:')
    stamp(3)
    decode()
    e('v_subrev_u32 v4, 256, v0')
    e('v_min_u32 v4, 251, v4')
    e('v_mul_u32_u24 v3, 3641, v4')
    e('v_lshrrev_b32 v3, 16, v3')
    e('v_mul_u32_u24 v2, 18, v3')
    e('v_sub_u32 v2, v4, v2')
    e(f'v_mul_u32_u24 v3, {R}, v3')
    e(f'v_min_u32 v3, {160-R}, v3')
    e('v_mul_u32_u24 v4, 1152, v3')
    e('v_lshl_add_u32 v4, v2, 4, v4')
    e(f'v_add_u32 v12, s{XB}, v4')
    e('v_mul_u32_u24 v18, 288, v3')
    e('v_lshl_add_u32 v18, v2, 4, v18')
    e(f'v_add_u32 v19, {X_D1}, v18')
    srd(e, S_X, 4, 1152000, add=BOFF)
    e(f's_add_u32 s46, s{TAG}, {TAGINC}')
    e('v_mov_b32 v56, s46')
    e('s_lshl_b32 s46, s2, 7')
    e('v_mov_b32 v58, s46')
    e(f's_add_u32 s46, s{PAIR}, {NPROD}')
    e('s_lshl_b32 s46, s46, 7')
    e('v_mov_b32 v59, s46')
    def publish(slot, vflag, tag, first, n=0):
        e('s_mov_b64 exec, 1')
        e(f's_waitcnt vmcnt({n})')
        if first: stamp(4)
        if o.padto and tag == 'x': stamp(12)
        e('v_cmp_ne_u32 vcc, 0, v27')
        e('v_not_b32 v57, v56')
        e('s_nop 0')
        e('v_cndmask_b32 v57, v56, v57, vcc')
        e(f'ds_write_b32 v55, v57 offset:{slot}')
        e(f'ds_read_b128 v[20:23], v10 offset:{32+slot}')
        e('s_waitcnt lgkmcnt(0)')
        for i in range(4): e(f'v_xor_b32 v{20+i}, v{20+i}, v56')
        e('v_or3_b32 v20, v20, v21, v22')
        e('v_or_b32 v20, v20, v23')
        e('v_cmp_eq_u32 vcc, 0, v20')
        e('s_and_b64 exec, exec, vcc')
        e(f's_cbranch_execz L_nl{tag}')
        e(f'buffer_store_dword v56, v{vflag}, {sr(S_WS)}, 0 offen sc1')
        e(f'L_nl{tag}:')
        e('s_mov_b64 exec, -1')
    e(f's_cmp_eq_u32 s{EARLY}, 0')
    e('s_cbranch_scc1 L_noflag')
    publish(0, 58, 'x', True)
    if not o.b0early: e('s_barrier')
    e('L_noflag:')
    e(f's_setprio {o.hprio2}')
    RAW, ORAW = 64, 120
    EU = [184, 192]
    OU, DT, DO = 200, 208, 216
    xi = [0]
    NL = R + 1
    hq = []
    def eload():
        k = xi[0]
        if k >= NL: return
        a_ = 12
        if k:
            a_ = 13 + (k & 3)
            e(f'v_add_u32 v{a_}, {1152*k}, v12')
        e(f'buffer_load_dwordx4 {vr(RAW+4*k,4)}, v{a_}, {sr(S_X)}, 0 offen')
        xi[0] += 1
        hq.append(('e', k))
    if o.etouch:
        e(f's_cmp_lt_u32 s2, {NTASK}')
        e('s_cbranch_scc1 L_net')
        e(f's_and_b32 s46, s{NB}, 1')
        e(f's_mul_i32 s46, s46, {1152*6}')
        e('v_add_u32 v12, s46, v12')
        for _ in range(7): eload()
        e('v_subrev_u32 v12, s46, v12')
        e('s_waitcnt vmcnt(0)')
        e('L_net:')
        xi[0] = 0; hq.clear()
    YA = 232
    e(f's_cmp_eq_u32 s{b+5}, 2')
    e('s_cselect_b32 s46, 0x80000000, 0')
    e(f's_cmp_lg_u32 s{HAS3}, 0')
    e('s_cselect_b32 s47, 0x80000000, 0')
    e('s_or_b32 s48, s46, s47')
    for i in range(6):
        m_ = {0: None, 1: 46, 2: None, 3: 46, 4: 47, 5: 48}[i]
        e(f'v_mov_b32 v{YA+i}, v{52+i//2}' if m_ is None else f'v_or_b32 v{YA+i}, s{m_}, v{52+i//2}')
    def ystore(i, a_):
        e(f'buffer_store_dwordx4 {vr(28+4*i,4)}, v{a_}, {sr(S_WS)}, s{b+2+(i&1)} offen sc1')
        hq.append(('y', i))
    stamp(5)
    ldswait(8, 'eq', 4, 'o', 1)
    def unpack(dst, s_):
        for i in range(4):
            e(f'v_lshlrev_b32 v{dst+2*i}, 16, v{s_+i}')
            e(f'v_and_b32 v{dst+2*i+1}, s{MASK}, v{s_+i}')
    def unpackE(dst, k):
        e(f's_waitcnt vmcnt({len(hq)-1-hq.index(("e", k))})')
        unpack(dst, RAW + 4 * k)
        eload()
    def diff(eu, out):
        for i in range(8): e(f'v_sub_f32 v{DT+i}, v{eu+i}, v{OU+i}')
        for i in range(4):
            e(f'v_cvt_pk_bf16_f32 v{out+i}, v{DT+2*i}, v{DT+2*i+1}')
    def opengate():
        if not o.gate: return
        e('v_mov_b32 v11, 0x100')
        e('s_mov_b64 exec, 1')
        e('ds_add_u32 v10, v11 offset:8')
        e('s_mov_b64 exec, -1')
    def rows(hook):
        stamp(6)
        for j in range(R):
            e(f'ds_read_b128 {vr(ORAW+4*j,4)}, v18 offset:{X_O+288*j}')
        unpackE(EU[0], 0)
        e('s_waitcnt lgkmcnt(0)')
        for j in range(R):
            o0 = DO + 8 * (j & 1)
            unpack(OU, ORAW + 4 * j)
            diff(EU[j & 1], o0)
            e(f'ds_write_b128 v18, {vr(o0,4)} offset:{X_D0+288*j}')
            unpackE(EU[(j + 1) & 1], j + 1)
            diff(EU[(j + 1) & 1], o0 + 4)
            e(f'ds_write_b128 v19, {vr(o0+4,4)} offset:{288*j}')
            hook(j)
    e(f's_cmp_ge_u32 s2, {NPROD + (32 if o.d0p else 0)}')
    e('s_cbranch_scc1 L_pathA')
    e(f's_cmp_lt_u32 s{XK}, 2')
    e('s_cbranch_scc1 L_nox')
    if o.d0p:
        e(f's_cmp_eq_u32 s{XK}, 3')
        e('s_cbranch_scc1 L_xd')
    for i in range(3):
        e(f'buffer_store_dwordx4 {vr(SO+4*i,4)}, v{YA+2*i}, {sr(S_WS)}, s{b+4} offen sc1')
    if o.d0p:
        e('s_branch L_xe')
        e('L_xd:')
        for i in range(6): ystore(i, YA + i)
        e('L_xe:')
    if o.gearly:
        opengate()
        publish(0, 58, 'x2', True)
        e('s_branch L_nox2')
        e('L_nox:')
        opengate()
        e('L_nox2:')
    else:
        publish(0, 58, 'x2', True)
        e('L_nox:')
        opengate()
    hq.clear(); xi[0] = 0
    for _ in range(o.ein): eload()
    rows(lambda j: None)
    e('s_branch L_rowsdone')
    e('L_pathA:')
    if not o.d0p:
        e(f's_cmp_eq_u32 s{XK}, 3')
        e('s_cselect_b32 s47, 0, 0x80000000')
        for i in range(6): e(f'v_or_b32 v{20+i}, s47, v{YA+i}')
    hq.clear(); xi[0] = 0
    for _ in range(NL): eload()
    if not o.d0p:
        for i in range(6): ystore(i, 20 + i)
    def hookA(j):
        if j == o.grow:
            e(f's_waitcnt vmcnt({len(hq)-1-hq.index(("e", NL-1))})')
            opengate()
        if j == o.xrow and not o.d0p:
            e(f's_cmp_lg_u32 s{XK}, 3')
            e('s_cbranch_scc1 L_xp')
            publish(0, 58, 'x3', True)
            e('L_xp:')
    rows(hookA)
    e('L_rowsdone:')
    e('s_waitcnt lgkmcnt(0)')
    stamp(7)
    e('v_mov_b32 v11, 1')
    e('s_mov_b64 exec, 1')
    e('ds_add_u32 v10, v11 offset:16')
    e('s_mov_b64 exec, -1')
    e(f's_cmp_eq_u32 s{YT}, 0')
    e('s_cbranch_scc1 L_noy')
    e(f's_setprio {o.yprio}')
    e('L_yw:')
    e('ds_read_b64 v[20:21], v10')
    e('s_waitcnt lgkmcnt(0)')
    e('v_lshrrev_b32 v21, 14, v21')
    e('v_and_b32 v21, -4, v21')
    e('v_or_b32 v20, v20, v21')
    e(f'v_cmp_le_u32 vcc, s{YT}, v20')
    e('s_nop 4')
    e('s_cbranch_vccnz L_yx')
    e('s_sleep 4')
    e('s_branch L_yw')
    e('L_yx:')
    for i in range(6):
        ystore(i, YA + i)
        e(f's_waitcnt vmcnt({o.ythr})')
        if o.ysleep: e(f's_sleep {o.ysleep}')
    publish(16, 59, 'y', False)
    if o.diag == 1: stamp(8)
    e('L_noy:')
    e(f's_cmp_lg_u32 s{WAVE}, 4')
    e('s_cbranch_scc1 L_hend')
    e('L_guard:')
    e('ds_read_b32 v11, v10 offset:4')
    e('s_waitcnt lgkmcnt(0)')
    e('v_readfirstlane_b32 s46, v11')
    e('s_nop 3')
    e('s_cmp_eq_u32 s46, 4')
    e('s_cbranch_scc1 L_hend')
    e('s_cmp_lt_u32 s46, 0x10000')
    e('s_cbranch_scc0 L_rescue')
    e('s_sleep 16')
    e('s_branch L_guard')
    e('L_rescue:')
    e(f's_mov_b32 s{MODE}, 1')
    e(f's_mov_b32 s{HAS3}, 1')
    e(f's_mov_b32 s{NOTASK}, 0')
    e(f's_lshr_b32 s{TW0}, s{NB}, 1')
    e(f's_add_u32 s{TW1}, s{NB}, 9')
    e(f's_lshr_b32 s{TW1}, s{TW1}, 1')
    e(f's_mov_b32 s{PAIR}, 0')
    e('s_branch L_prod')
    e('L_hend:')
    if o.padto and o.padev[0] == 'h': padloop('h')
    if o.diag == 1:
        stamp(9)
        dump(10)
    e('L_end:')
    e('s_endpgm')
    if o.hfirst:
        m0, h0 = mark['main0'], mark['help0']
        e.L = e.L[:m0] + e.L[h0:] + ['.p2align 6'] + e.L[m0:h0]
    e('L_codeend:')
    e('.section .rodata,"a"')
    e('.p2align 6')
    e(f'.amdhsa_kernel {KN}')
    for x in ['next_free_vgpr 256', 'next_free_sgpr 102', 'accum_offset 256', 'group_segment_fixed_size 0', 'kernarg_size 40',
              'user_sgpr_count 2', 'user_sgpr_kernarg_segment_ptr 1', 'system_sgpr_workgroup_id_x 1']:
        e('  .amdhsa_' + x)
    e('.end_amdhsa_kernel')
    n = haz.check(e.L)
    if n: print(f'{n} hazards', file=sys.stderr)
    return f'; @launch grid=({NWG},1,1) block=(512,1,1) lds={LDS_BYTES}\n' + e.text()

def opts(argv=None):
    ap = argparse.ArgumentParser()
    ap.add_argument('-o', default='k.s')
    for nm, d in [('diag', 0), ('pf', 16), ('pf0', 8), ('wgap', 4), ('wres', 4), ('wsc1', 0), ('nfill', 2), ('fstride', 128), ('sleep', 0), ('maxpoll', 3000), ('nopoll', 0),
                  ('hprio', 3), ('hprio2', 0), ('mprio', 2), ('epre', 0), ('ein', 7), ('dpre', 7), ('b0early', 0), ('mtouch', 1), ('gate', 1), ('swapab', 0), ('d0p', 1), ('map', 1), ('chain', 4), ('ppoll', 0), ('yprio', 3), ('ysleep', 0), ('vt', 94), ('tla', 40), ('tskip', 1), ('gearly', 1), ('chfrom', 8), ('oj', 9), ('nolds', 0), ('now', 0), ('wsame', 0), ('grow', 1), ('vbd', 33), ('nopk', 1), ('padto', 0), ('npdelay', 0), ('opre', 5), ('etouch', 0), ('orev', 1), ('b0late', 1), ('dec', 1), ('tail', 1), ('xla', 9), ('hold', 1), ('prest', 0), ('xslot', 0), ('noclosed', 0), ('cpf', 1), ('hfirst', 1), ('warmb', 1), ('wsfirst', 0), ('flead', 6), ('ythr', 6), ('xrow', 3), ('padstep', 33), ('probe', 0), ('probeoff', 0x4000000)]:
        ap.add_argument('--' + nm, type=int, default=d)
    ap.add_argument('--oflags', default='')
    ap.add_argument('--pmap', default='18,18,18,18,18,18,18,18')
    ap.add_argument('--padev', default='m0')
    ap.add_argument('--trig', default='10,25,40')
    ap.add_argument('--yrow', default='0,7,2,9,5,11')
    ap.add_argument('--pfcs', default='4,5,5,8,8')
    ap.add_argument('--fflags', default='')
    ap.add_argument('--fleads', default='6,6,6,6,6')
    ap.add_argument('--marks', default='0,4,8,12,16,24,33,47,58')
    o = ap.parse_args(argv)
    o.marks = [int(x) for x in o.marks.split(',')]
    o.yrow = [int(x) for x in o.yrow.split(',')]
    o.pfcs = [int(x) for x in o.pfcs.split(',')]
    o.fleads = [int(x) for x in o.fleads.split(',')]
    o.trig = [int(x) for x in o.trig.split(',')]
    return o

if __name__ == '__main__':
    o = opts()
    open(o.o, 'w').write(gen(o))
```

```python
import re, sys, argparse
import haz

KN = 'standalone__autoregressive_conv_wavernn__speech_kernel'
NWG = 252
NPROD = 144
ARR = 160 * 288
X_D0, X_O, X_D1 = 0, ARR, 2 * ARR
CNT = 3 * ARR
SCR = CNT + 64
LDS_BYTES = SCR + 18432
NSTEP = 106
WOFF = int(__import__('os').environ.get('WOFF', '0x100000'), 0)
NONCE = 0x10000
DIAG = 0x800000
WS_REC = max(0x1000000, WOFF + 0x400000, int(__import__('os').environ.get('WSREC', '0'), 0))
TAGINC = 0x9E3779B9
R = 12

class Em:
    def __init__(self): self.L = []
    def __call__(self, s): self.L.append(s)
    def text(self): return '\n'.join(self.L) + '\n'

def vr(a, n=1): return f'v{a}' if n == 1 else f'v[{a}:{a+n-1}]'
def sr(a, n=4): return f's[{a}:{a+n-1}]'

def streams():
    out = []
    for typ in (0, 1):
        S = []
        pid = [0]
        def add(arr, chunk, cs, acc):
            for c in cs: S.append((pid[0], arr, chunk, c, acc))
            pid[0] += 1
        if typ == 0:
            add('O', 0, range(16), 'P'); add('O', 1, range(16), 'P'); add('O', 'rem', range(0, 2), 'P')
            for q in range(4): add('D', q, range(16), 'Q')
            add('D', 'rem', range(8), 'Q')
        else:
            add('O', 2, range(16), 'P'); add('O', 3, range(16), 'P'); add('O', 'rem', range(2, 8), 'P')
            for q in range(4): add('D', q, range(15), 'Q')
            add('D', 'rem', range(8), 'Q')
        assert len(S) == NSTEP
        out.append(S)
    return out

S_X, S_W, S_WO, S_WS, S_OUT, S_DBG = 20, 24, 28, 32, 36, 40
WAVE, NB, BAT, PAR, MB, BOFF = 14, 15, 16, 17, 18, 19
PAIR0 = 3
XB = 52
MASK = 53
TW0, TW1, TW2, PAIR, HAS3, MODE, SCRB, TAG, LAST, NPOLL = 44, 45, 54, 55, 56, 57, 58, 59, 60, 61
TS = 62
TYP, WSO = 68, 69
EARLY, XK, YT, FIDX = 90, 91, 92, 93
NOTASK = 94
NTASK = NPROD + 96
FO = 97
C2L, CNL, C60 = 90, 92, 94
ST0 = 70

def srd(e, d, ptr, rec, add=None):
    if add is None:
        e(f's_mov_b32 s{d}, s{ptr}')
        e(f's_and_b32 s{d+1}, s{ptr+1}, 0xffff')
    else:
        e(f's_add_u32 s{d}, s{ptr}, s{add}')
        e(f's_addc_u32 s{d+1}, s{ptr+1}, 0')
        e(f's_and_b32 s{d+1}, s{d+1}, 0xffff')
    e(f's_mov_b32 s{d+2}, {rec}')
    e(f's_mov_b32 s{d+3}, 0x20000')

def gen(o):
    e = Em()
    role = ['m']
    def padloop(tag):
        e(f'L_pad{tag}:')
        e('s_memrealtime s[98:99]')
        e('s_waitcnt lgkmcnt(0)')
        e('s_sub_u32 s98, s98, s100')
        e(f's_cmp_lt_u32 s98, {o.padto}')
        e(f's_cbranch_scc1 L_pad{tag}')
    def stamp(k, lvl=1):
        if o.padto and lvl == 1 and o.padev == f'{role[0]}{k}':
            e('s_memrealtime s[100:101]'); e('s_waitcnt lgkmcnt(0)')
        if o.diag == lvl or (o.diag == 4 and lvl == 1): e(f's_memrealtime s[{ST0+2*k}:{ST0+2*k+1}]')
    def dump(nst):
        e('s_waitcnt lgkmcnt(0)')
        e('v_mov_b32 v250, 0')
        for k in range(nst): e(f'v_writelane_b32 v250, s{ST0+2*k}, {k}')
        e(f'v_writelane_b32 v250, s{NPOLL}, 13')
        e(f'v_writelane_b32 v250, s95, 12')
        e(f'v_writelane_b32 v250, s2, 14')
        e('s_getreg_b32 s46, hwreg(HW_REG_XCC_ID)')
        e('v_writelane_b32 v250, s46, 15')
        e(f's_lshl_b32 s46, s2, 3'); e(f's_add_u32 s46, s46, s{WAVE}'); e('s_lshl_b32 s46, s46, 6'); e(f's_add_u32 s46, s46, {DIAG}')
        e('v_lshl_add_u32 v251, v1, 2, s46')
        e('s_mov_b64 exec, 0xffff')
        e(f'buffer_store_dword v250, v251, {sr(S_WS)}, 0 offen')
        e('s_mov_b64 exec, -1')

    e('.amdgcn_target "amdgcn-amd-amdhsa--gfx950"')
    e('.text')
    e(f'.globl {KN}')
    e('.p2align 8')
    e(f'.type {KN},@function')
    e(f'{KN}:')
    e(f's_cmp_ge_u32 s2, {NWG}')
    e('s_cbranch_scc1 L_end')
    stamp(0)
    if o.padto and o.padev != 'm0': e('s_memrealtime s[100:101]')
    e('s_load_dwordx4 s[4:7], s[0:1], 0')
    e('s_load_dwordx4 s[8:11], s[0:1], 16')
    e('s_load_dwordx2 s[12:13], s[0:1], 32')
    e('v_lshrrev_b32 v2, 6, v0')
    e('v_and_b32 v1, 63, v0')
    e(f'v_readfirstlane_b32 s{WAVE}, v2')
    def decode():
        e('s_and_b32 s44, s2, 7')
        e('s_lshr_b32 s45, s2, 3')
        e('s_mul_i32 s46, s44, 31')
        e('s_min_u32 s44, s44, 4')
        e('s_add_u32 s46, s46, s44')
        e('s_add_u32 s46, s46, s45')
        if o.map == 0:
            e('s_mul_hi_u32 s47, s46, 68174085')
            e('s_mul_i32 s48, s47, 63')
            e('s_sub_u32 s48, s46, s48')
            e(f's_mul_hi_u32 s{NB}, s48, 613566757')
            e(f's_mul_i32 s49, s{NB}, 7')
            e('s_sub_u32 s49, s48, s49')
            e('s_mul_i32 s47, s47, 7')
            e('s_add_u32 s47, s47, s49')
        elif o.map == 1:
            e('s_mul_hi_u32 s47, s46, 477218589')
            e('s_mul_i32 s48, s47, 9')
            e(f's_sub_u32 s{NB}, s46, s48')
        else:
            e('s_mul_hi_u32 s47, s46, 34087043')
            e('s_mul_i32 s48, s47, 126')
            e('s_sub_u32 s48, s46, s48')
            e(f's_mul_hi_u32 s{NB}, s48, 306783379')
            e(f's_mul_i32 s49, s{NB}, 14')
            e('s_sub_u32 s49, s48, s49')
            e('s_mul_i32 s47, s47, 14')
            e('s_add_u32 s47, s47, s49')
        e(f's_and_b32 s{PAR}, s47, 1')
        e('s_lshr_b32 s47, s47, 1')
        e('s_cmp_ge_u32 s47, 7')
        e(f's_cselect_b32 s{BOFF}, 1152000, 0')
        e('s_cselect_b32 s48, 7, 0')
        e(f's_sub_u32 s{MB}, s47, s48')
        e(f's_mul_i32 s{XB}, s{MB}, 576')
        e(f's_add_u32 s{XB}, s{XB}, s{PAR}')
        e(f's_sub_u32 s{XB}, s{XB}, 60')
        e(f's_mul_i32 s{XB}, s{XB}, 288')
    e(f's_cmp_ge_u32 s{WAVE}, 4')
    e('s_cbranch_scc1 L_helper')
    if o.cpf:
        e('s_lshr_b32 s44, s2, 3')
        e(f's_lshl_b32 s45, s{WAVE}, 5')
        e('s_add_u32 s44, s44, s45')
        e('s_sub_u32 s44, s44, 26')
        e('s_cmp_ge_u32 s44, 5')
        e('s_cbranch_scc1 L_main')
        e('s_getpc_b64 s[46:47]')
        e('L_pc:')
        e('s_lshl_b32 s44, s44, 13')
        e('v_lshl_add_u32 v2, v1, 7, s44')
        e('v_min_u32 v2, L_codeend-L_pc-4, v2')
        e('global_load_dword v63, v2, s[46:47]')
    if o.hfirst: e('s_branch L_main')
    mark = {'main0': len(e.L)}
    e('L_main:')
    e(f's_mov_b32 s{MASK}, 0xffff0000')
    e(f's_mov_b32 s{NPOLL}, 0')
    if o.diag: e('s_mov_b32 s95, 0')
    decode()

    VXO, VXOR, VXD, VXDR, VWL, VEX, VEXP, VOUT = 30, 31, 32, 33, 34, 35, 36, 37
    VF = 40
    VA = 48
    VCL = 60
    e('v_mul_u32_u24 v3, 3641, v0')
    e('v_lshrrev_b32 v3, 16, v3')
    e('v_mul_u32_u24 v2, 18, v3')
    e('v_sub_u32 v2, v0, v2')
    e('v_mul_u32_u24 v3, 1152, v3')
    e('v_lshl_add_u32 v3, v2, 4, v3')
    e(f's_add_u32 s46, s{XB}, 576')
    e(f'v_add_u32 v{VA}, s46, v3')
    e('v_mov_b32 v5, 16192')
    e('v_mov_b32 v6, 17056')
    for k in range(1, 12):
        e('v_cmp_le_u32 vcc, 14, v2')
        e('v_add_u32 v3, 4, v2')
        e('v_subrev_u32 v4, 14, v2')
        e('v_cndmask_b32 v7, v5, v6, vcc')
        e('v_cndmask_b32 v2, v3, v4, vcc')
        e(f'v_add_u32 v{VA+k}, v{VA+k-1}, v7')
    e(f's_lshl_b32 s50, s{WAVE}, 10')
    e(f's_add_u32 s50, s50, {X_O}')
    e(f's_add_u32 s51, s50, {4096*11}')
    e('s_movk_i32 s49, 4096')
    if o.orev:
        e(f's_bitcmp0_b32 s{NB}, 0')
        e('s_cbranch_scc1 L_fwd')
        for k in range(5): e(f'v_swap_b32 v{VA+k}, v{VA+10-k}')
        e(f's_add_u32 s50, s50, {4096*10}')
        e('s_movk_i32 s49, -4096')
        e('L_fwd:')
    e(f'v_mov_b32 v{VF+1}, {CNT}')
    for r in range(4, 8): e(f'v_mov_b32 v{r}, 0')
    e(f'ds_write_b128 v{VF+1}, v[4:7]')
    e(f'ds_write_b128 v{VF+1}, v[4:7] offset:16')
    e('s_waitcnt lgkmcnt(0)')
    e(f's_load_dword s{TAG}, s[12:13], {NONCE}')
    srd(e, S_X, 4, 1152000, add=BOFF)
    def odma(k):
        e(f's_mov_b32 m0, s{51 if k == 11 else 50}')
        e('s_add_u32 s50, s50, s49')
        e(f'buffer_load_dwordx4 v{VA+k}, {sr(S_X)}, 0 offen lds')
    def etouch():
        e(f'buffer_load_dword v62, v9, {sr(S_X)}, 0 offen')
    if o.mtouch and o.tskip:
        e('s_lshr_b32 s47, s2, 4')
        e('s_lshr_b32 s47, 0x33, s47')
        e('s_lshl_b32 s47, s47, 31')
    if o.mtouch:
        e('v_min_u32 v8, 39, v1')
        e('v_lshrrev_b32 v9, 2, v8')
        e(f's_mul_i32 s46, s{WAVE}, 10')
        e('v_add_u32 v9, s46, v9')
        e(f'v_mul_u32_u24 v9, {4*1152}, v9')
        e('v_and_b32 v8, 3, v8')
        e('v_mul_u32_u24 v8, 92, v8')
        e(f's_and_b32 s46, s{NB}, 3')
        e('s_mul_i32 s46, s46, 1152')
        e(f's_add_u32 s46, s46, s{XB}')
        e('v_add3_u32 v9, v9, v8, s46')
        if o.tskip: e('v_or_b32 v9, s47, v9')
    if o.mtouch == 2: etouch()
    for k in range(o.opre): odma(k)
    e('s_barrier')
    stamp(1)
    if o.mtouch == 3: etouch()
    for k in range(o.opre, 12):
        if k == 11:
            e(f's_cmp_lg_u32 s{WAVE}, 0')
            e('s_cbranch_scc1 L_o11')
        odma(k)
    e('L_o11:')
    if o.mtouch == 1: etouch()
    srd(e, S_WS, 12, WS_REC)
    if o.epoll:
        assert o.mtouch == 1 and o.tskip
        e(f's_and_b32 s{TYP}, s{WAVE}, 1')
        e(f's_lshl_b32 s{FO}, s{TYP}, 13')
        e('s_mov_b32 s96, s47')
        e('s_xor_b32 s46, s47, 0x80000000')
        e(f'v_min_u32 v{VF}, 31, v1')
        e(f'v_lshlrev_b32 v{VF}, 7, v{VF}')
        e(f'v_or_b32 v2, s46, v{VF}')
        e(f'buffer_load_dword v{VF+4}, v2, {sr(S_WS)}, s{FO} offen sc1')
    srd(e, S_OUT, 8, 1152000, add=BOFF)
    srd(e, S_DBG, 10, 256)
    e('v_and_b32 v2, 15, v1')
    e('v_lshrrev_b32 v3, 4, v1')
    e('v_subrev_u32 v5, 4, v2')
    e('v_add_u32 v6, 8, v2')
    e('v_cmp_gt_u32 vcc, 4, v2')
    e('v_cmp_le_u32 s[46:47], 12, v2')
    e(f's_and_b32 s{TYP}, s{WAVE}, 1')
    e(f's_lshr_b32 s48, s{WAVE}, 1')
    e('v_cndmask_b32 v5, v5, v6, vcc')
    e('v_cndmask_b32 v5, v5, v2, s[46:47]')
    e('v_mul_u32_u24 v5, 9, v5')
    e('v_mul_u32_u24 v4, 288, v5')
    e('v_lshl_add_u32 v6, v3, 4, v4')
    e('v_and_b32 v7, 1, v3')
    e('v_lshl_add_u32 v7, v7, 4, v4')
    e('v_lshrrev_b32 v8, 1, v3')
    e('v_mul_u32_u24 v8, 2304, v8')
    e('v_add_u32 v7, v7, v8')
    e('v_add_u32 v7, 256, v7')
    e(f's_mul_i32 s49, s{TYP}, {X_D1}')
    e(f'v_add_u32 v{VXO}, {X_O}, v6')
    e(f'v_add_u32 v{VXOR}, {X_O}, v7')
    e(f'v_add_u32 v{VXD}, s49, v6')
    e(f'v_add_u32 v{VXDR}, s49, v7')
    e('v_lshlrev_b32 v6, 4, v1')
    e(f's_mul_i32 s49, s{WAVE}, 9216')
    e(f's_add_u32 s49, s49, {X_O}')
    e(f'v_add_u32 v{VEX}, s49, v6')
    e(f's_xor_b32 s49, s{WAVE}, 1')
    e('s_mul_i32 s49, s49, 9216')
    e(f's_add_u32 s49, s49, {X_O}')
    e(f'v_add_u32 v{VEXP}, s49, v6')
    e('v_and_b32 v8, 0x39, v1')
    e('v_bfe_u32 v9, v1, 1, 1')
    e('v_lshl_add_u32 v8, v9, 2, v8')
    e('v_bfe_u32 v9, v1, 2, 1')
    e('v_lshl_add_u32 v8, v9, 1, v8')
    e(f'v_lshlrev_b32 v{VWL}, 4, v8')
    e(f's_mul_i32 s49, s{TYP}, 576')
    e(f's_add_u32 s49, s49, s{XB}')
    e(f's_add_u32 s49, s49, {60*288}')
    e(f's_lshl_b32 s50, s{NB}, 5')
    e('s_add_u32 s49, s49, s50')
    e('s_lshl_b32 s50, s48, 4')
    e('s_add_u32 s49, s49, s50')
    e('v_mul_u32_u24 v8, 1152, v5')
    e('v_lshl_add_u32 v8, v3, 2, v8')
    e(f'v_add_u32 v{VOUT}, s49, v8')
    e(f'v_add_u32 v{VOUT+1}, 3456, v{VOUT}')
    e(f'v_add_u32 v{VOUT+2}, 6912, v{VOUT}')
    e(f's_lshl_b32 s49, s{NB}, 1')
    e('s_add_u32 s49, s49, s48')
    e('s_lshl_b32 s49, s49, 1')
    e(f's_add_u32 s49, s49, s{TYP}')
    e(f's_mul_i32 s{WSO}, s49, {NSTEP*1024}')
    e(f's_add_u32 s{WSO}, s{WSO}, {WOFF}')
    e(f's_mov_b32 s{C2L}, 0x4038aa3b'); e(f's_mov_b32 s{C2L+1}, 0x4038aa3b')
    e(f's_mov_b32 s{CNL}, 0xbfb8aa3b'); e(f's_mov_b32 s{CNL+1}, 0xbfb8aa3b')
    e(f's_mov_b32 s{C60}, 0x42700000')
    e(f'v_min_u32 v{VF}, 31, v1')
    e(f'v_lshlrev_b32 v{VF}, 7, v{VF}')
    e(f'v_min_u32 v{VF+6}, 47, v1')
    e(f'v_lshlrev_b32 v{VF+6}, 7, v{VF+6}')
    e(f'v_mov_b32 v{VF+2}, 1')
    e('s_lshl_b32 s46, s48, 2')
    e(f'v_add_u32 v{VF+5}, s46, v{VF+1}')
    e(f's_or_b32 s46, s2, s{WAVE}')
    e('v_or_b32 v2, s46, v1')
    e('v_cmp_eq_u32 vcc, 0, v2')
    e(f'v_mov_b32 v{VCL}, -16')
    e(f'v_mov_b32 v{VCL+1}, -16')
    e(f'v_mov_b32 v3, {NONCE}')
    e(f'v_cndmask_b32 v{VCL}, v{VCL}, 4, vcc')
    e(f'v_cndmask_b32 v{VCL+1}, v{VCL+1}, v3, vcc')
    e(f's_lshl_b32 s{FO}, s{TYP}, 13')
    if o.warmb:
        e(f's_cmp_eq_u32 s{TYP}, 1')
        e('s_cbranch_scc1 L_warmB')
        e('L_warmret:')
    e(f's_waitcnt vmcnt({(1 if o.mtouch == 1 else 0) + o.epoll}) lgkmcnt(0)')
    stamp(2)
    e('s_mov_b64 exec, 1')
    e(f'ds_add_u32 v{VF+1}, v{VF+2} offset:8')
    e('s_mov_b64 exec, -1')
    e(f's_add_u32 s{TAG}, s{TAG}, {TAGINC}')
    e(f'v_mov_b32 v{VF+3}, s{TAG}')
    def flagwait(tag, vaddr, back):
        e(f'L_fw{tag}:')
        if o.diag and len(tag) == 2: e(f's_add_u32 s95, s95, {1 << (5 * int(tag[1]))}')
        e(f'buffer_load_dword v{VF+4}, v{vaddr}, {sr(S_WS)}, s{FO} offen sc1')
        e(f'ds_read_b32 v{VF+7}, v{VF+1} offset:12')
        e(f's_add_u32 s{NPOLL}, s{NPOLL}, 1')
        e('s_waitcnt vmcnt(0) lgkmcnt(0)')
        e(f'v_cmp_ne_u32 vcc, v{VF+3}, v{VF+4}')
        e(f'v_readfirstlane_b32 s46, v{VF+7}')
        e('s_nop 3')
        e(f's_cbranch_vccz {back}')
        e('s_cmp_lg_u32 s46, 0')
        e(f's_cbranch_scc1 {back}')
        e(f's_cmp_lg_u32 s{NPOLL}, {o.maxpoll}')
        e(f's_cbranch_scc1 L_fw{tag}')
        e(f'v_mov_b32 v{VF+7}, 0x10000')
        e('s_mov_b64 exec, 1')
        e(f'ds_add_u32 v{VF+1}, v{VF+7} offset:4')
        e('s_mov_b64 exec, -1')
        e(f's_branch L_fw{tag}')
    if o.epoll:
        e('s_cmp_eq_u32 s96, 0')
        e('s_cbranch_scc1 L_gate')
        e('s_waitcnt vmcnt(0)')
        e(f'v_cmp_ne_u32 vcc, v{VF+3}, v{VF+4}')
        e('s_nop 4')
        e('s_cbranch_vccz L_go')
    if o.gate:
        e('L_gate:')
        e(f'ds_read_b32 v{VF+4}, v{VF+1} offset:8')
        e('s_waitcnt lgkmcnt(0)')
        e(f'v_cmp_gt_u32 vcc, 0x400, v{VF+4}')
        e('s_nop 4')
        e('s_cbranch_vccz L_gate2')
        e('s_sleep 1')
        e('s_branch L_gate')
        e('L_gate2:')
    if o.ppoll:
        e(f'buffer_load_dword v{VF+4}, v{VF}, {sr(S_WS)}, s{FO} offen sc1')
        e('L_pp:')
        for a_, b_ in ((VF + 4, 62), (62, VF + 4)):
            e(f's_sleep {o.ppoll}')
            e(f'buffer_load_dword v{b_}, v{VF}, {sr(S_WS)}, s{FO} offen sc1')
            e('s_waitcnt vmcnt(1)')
            e(f'v_cmp_ne_u32 vcc, v{VF+3}, v{a_}')
            e(f's_add_u32 s{NPOLL}, s{NPOLL}, 1')
            e('s_nop 3')
            e('s_cbranch_vccz L_go')
        e(f's_cmp_lt_u32 s{NPOLL}, 40')
        e('s_cbranch_scc1 L_pp')
        e(f's_mov_b32 s{NPOLL}, 0')
    flagwait('0', VF, 'L_go')
    e('L_go:')
    stamp(3)
    e('L_gw:')
    e(f'ds_read_b32 v{VF+7}, v{VF+1} offset:8')
    e('s_waitcnt lgkmcnt(0)')
    e(f'v_and_b32 v{VF+7}, 0xff, v{VF+7}')
    e(f'v_cmp_ne_u32 vcc, 4, v{VF+7}')
    e('s_nop 4')
    e('s_cbranch_vccnz L_gw')
    stamp(4)
    e(f's_setprio {o.mprio}')
    e(f's_cmp_eq_u32 s{TYP}, 1')
    e('s_cbranch_scc1 L_typeB')

    ACC = {'P': 64, 'Q': 100}
    WR, TMP = 136, 224
    XRING = [200 + 4 * i for i in range(6)]
    XWIN = [4 + 4 * i for i in range(6)] + [240 + 4 * i for i in range(4)]
    VC = 28
    PF = o.pf
    GT = 98
    wflags = ' sc1' if o.wsc1 else ''
    for typ, S in enumerate(streams()):
        if typ == 1:
            e('.p2align 6')
            if o.warmb: e('L_warmB:'); e('s_branch L_warmret')
            e('L_typeB:')
        ops = []
        vstart = {}
        lastv = o.vt - 1
        v0 = 0
        while v0 <= lastv:
            ch = 1 if v0 < o.chfrom else min(o.chain, lastv + 1 - v0)
            n0 = len(ops)
            for j in range(8, -1, -1):
                us = range(ch) if j % 2 == 0 else range(ch - 1, -1, -1)
                first_ = [u for u in us if v0 + u - j == 0 or (0 < v0 + u - j < NSTEP and S[v0+u-j][4] == 'Q' and S[v0+u-j-1][4] == 'P')]
                if first_: us = range(ch)
                for u in us:
                    if 0 <= v0 + u - j < NSTEP: ops.append((v0 + u - j, j))
            for u in range(ch): vstart[v0 + u] = n0 + (len(ops) - n0) * u // ch
            v0 += ch
        ntail = len(ops)
        if o.tail:
            for j in range(9):
                for g in range(o.vt - j, NSTEP): ops.append((g, j))
        assert len(ops) == NSTEP * 9 and len(set(ops)) == len(ops)
        N = len(ops)
        def key(n):
            g, j = ops[n]
            pid, arr, ch, c, acc = S[g]
            k = (pid, arr, ch, c + j)
            if n >= ntail and g < GT: k = k + ((n,) if not o.hold else ('h',))
            return k
        first, last = {}, {}
        for n in range(N):
            first.setdefault(key(n), n); last[key(n)] = n
        wfirst, wlast = {}, {}
        for n, (g, j) in enumerate(ops):
            wfirst.setdefault(g, n); wlast[g] = n
        tasks = []
        for k, n0 in first.items():
            win = o.tail and k[2] == 'rem' and k[1] == 'D'
            la = o.xla if n0 < ntail else 6
            if n0 >= ntail and ops[n0][1] == 0: la = o.tla
            elif win: la = 12
            tasks.append([n0 - la, n0 - 1, 'X', k])
        for g in range(NSTEP):
            rel = -100 + g if g < o.pf0 else max(0, wfirst[g] - 9 * PF)
            tasks.append([rel, wfirst[g] - 1, 'W', g])
        def at(v, off=0): return vstart[v] + off
        firstD = min(n for n in range(N) if S[ops[n][0]][1] == 'D')
        lastO = max(n for n in range(N) if S[ops[n][0]][1] == 'O')
        lastP = {j: max(n for n in range(N) if ops[n][1] == j and S[ops[n][0]][4] == 'P') for j in range(9)}
        slow = []
        vused = set()
        def check(v, off, cnt, tag):
            tasks.append([at(v - 1, 3), at(v - 1, 8), 'L', (f'ds_read_b32 v{VC}, v{VF+1} offset:{off}', ('c', tag))])
            tasks.append([at(v, 0), at(v, 1), 'C', (f'v_cmp_ne_u32 vcc, {cnt}, v{VC}', ('c', tag))])
            tasks.append([at(v, 6), at(v, 7), 'I', [f's_cbranch_vccnz L_slow{typ}{tag}', f'L_back{typ}{tag}:']])
            slow.append((tag, off, cnt))
            vused.add(v)
            return at(v, 8)
        def add1(pos, off):
            tasks.append([pos, pos + 4, 'A', off])
        vD = [v for v in vstart if vstart[v] <= firstD - o.xla][-1] - 1
        okD = check(vD, 16, 4, 'D')
        assert okD <= firstD - o.xla
        add1(lastO, 20)
        VP = 47
        okR = check(VP, 20, 4, 'R')
        for j in range(9):
            assert lastP[j] + 12 < at(VP + 1 + j, 2)
            tasks.append([at(VP + 1 + j, 2), at(VP + 1 + j, 8), 'L', (f'ds_write_b128 v{VEX}, {vr(ACC["P"]+4*j,4)} offset:{1024*j}', ('pw', j))])
        tasks.append([at(VP + 10, 0), at(VP + 10, 4), 'A', 'pair'])
        VQ = VP + 13
        okP = check(VQ, 'pair', 2, 'P')
        for j in range(9):
            tasks.append([at(VQ + 1 + j, 2), at(VQ + 1 + j, 8), 'L', (f'ds_read_b128 {vr(TMP+4*(j&1),4)}, v{VEXP} offset:{1024*j}', ('pr', j))])
            v = VQ + 2 + j
            pos = at(v, 8 - (j + 2) - 1) if j <= 6 else at(v, 8 - (j - 7) - 1)
            sh = 1 if j >= 7 else 0
            if o.chain > 1:
                own = [n for n in range(N) if ops[n][1] == j]
                pos = [a_ + 10 for a_, b_ in zip(own, own[1:]) if b_ - a_ >= 14 and a_ + 9 >= at(v, 0) ][0]
                sh = 0
                tasks[-1][0] = pos - 9; tasks[-1][1] = pos - 4
                tasks[-1][3] = (f'ds_read_b128 {vr(TMP+4*(j&3),4)}, v{VEXP} offset:{1024*j}', ('pr', j))
            tasks.append([pos - 1 + sh, pos - 1 + sh, 'Q', (j, 0)])
            tasks.append([pos + sh, pos + sh, 'Q', (j, 1)])
        if typ == 0:
            tasks.append([at(64, 4), at(64, 8), 'S', f'buffer_store_dword v{VCL+1}, v{VCL}, {sr(S_DBG)}, 0 offen sc1'])
            tasks.append([at(84, 4), at(84, 8), 'S', f'buffer_store_dword v{VF+3}, v{VCL+1}, {sr(S_WS)}, 0 offen sc1'])
        fslow = []
        passes = {}
        for g in range(NSTEP): passes.setdefault(S[g][0], g)
        need = [(passes[1], VF, 32 + 64 * typ), (32, VF + 6, 128), (passes[4], VF, 176), (passes[5], VF, 208), (passes[6], VF + 6, 240)]
        for ci, (gn, va, idx) in enumerate(need):
            v = gn - o.pfcs[ci] - 1
            while v in vused: v -= 1
            tasks.append([at(v - o.fleads[ci], 4), at(v - o.fleads[ci], 8), 'F', (va, idx, ci)])
            tasks.append([at(v, 0), at(v, 1), 'G', ci])
            tasks.append([at(v, 6), at(v, 7), 'I', [f's_cbranch_vccnz L_fw{typ}{ci}', f'L_fb{typ}{ci}:']])
            fslow.append((ci, va))
            assert v not in vused, v
            for t in tasks:
                if t[2] == 'W' and (t[3] >= gn): t[0] = max(t[0], at(v, 8))
        tasks.append([at(v + 1, 2), at(v + 1, 8), 'A', 4])
        if typ == 0:
            for lvl, v in enumerate(o.trig): tasks.append([at(v, 2), at(v, 8), 'P', lvl + 1])
        tasks.sort(key=lambda t: (t[0], t[1]))
        vq, lq = [], []
        dirty = [False]
        xreg, busy = {}, {}
        wn = [0]
        wr = {}
        lastw = [-100]
        later = []
        BIG = [WR + 4 * i for i in range(16)] + XWIN + [ACC['P'] + 4 * i for i in range(9)]
        for i in range(9): busy[ACC['P'] + 4 * i] = at(VP + 12)
        until = {}
        if o.chain > 1:
            BIG += XRING + [VA, VA + 4, VA + 8]
            for i in range(9):
                BIG.append(ACC['Q'] + 4 * i)
                until[ACC['Q'] + 4 * i] = min(n for n in range(N) if ops[n][1] == i and S[ops[n][0]][4] == 'Q') - 3
        def freeregs(n, end): return [x for x in BIG if busy.get(x, -1) <= n and end < until.get(x, 10**9)]
        def wok(t, n):
            if t[2] != 'W': return True
            if t[3] != wn[0]: return False
            free = len(freeregs(n, wlast[t[3]]))
            if t[1] - n <= 9 * 3: return free > 0
            return n - lastw[0] >= o.wgap and free > o.wres
        since = {}
        fill = []
        def em(x):
            e(x)
            if not x.endswith(':'):
                for jj in since: since[jj] += 1
        def lwait(tag):
            if tag not in lq: return
            i = lq.index(tag)
            em(f's_waitcnt lgkmcnt({0 if dirty[0] else len(lq)-1-i})')
            if dirty[0]: lq.clear(); dirty[0] = False
            else: del lq[:i + 1]
        def vwait(g):
            if g not in vq: return
            i = vq.index(g)
            em(f's_waitcnt vmcnt({len(vq)-1-i})')
            del vq[:i + 1]
        def run(t, n):
            kind, p = t[2], t[3]
            if kind == 'X':
                pool = BIG if (o.chain > 1 or p[-1] == 'h' or (p[2] == 'rem' and p[1] == 'D')) else XRING
                r = [x for x in pool if busy.get(x, -1) <= n and last[p] < until.get(x, 10**9)]
                assert r, ('no x register', p, n)
                r = min(r, key=lambda x: (until.get(x, 10**9), busy.get(x, -1)))
                busy[r] = last[p]; xreg[p] = r
                arr, ch, s_ = p[1], p[2], p[3]
                if o.nolds and n > 9 * 30: return
                if ch == 'rem': em(f'ds_read_b128 {vr(r,4)}, v{VXOR if arr == "O" else VXDR} offset:{288*s_}')
                else: em(f'ds_read_b128 {vr(r,4)}, v{VXO if arr == "O" else VXD} offset:{64*ch+288*s_}')
                lq.append(p)
            elif kind == 'W':
                g = p
                r = min(freeregs(n, wlast[g]), key=lambda x: (until.get(x, 10**9), busy.get(x, -1)))
                busy[r] = wlast[g]; wr[g] = r
                assert g == wn[0]; wn[0] += 1
                lastw[0] = n
                if o.now and g > 40: return
                if o.wsame and g > 40:
                    em(f'buffer_load_dwordx4 {vr(r,4)}, v{VWL}, {sr(S_WS)}, s{WSO} offen offset:{1024*(g%4)}{wflags}'); vq.append(g); return
                em(f'buffer_load_dwordx4 {vr(r,4)}, v{VWL}, {sr(S_WS)}, s{WSO} offen offset:{1024*(g%4)}{wflags}')
                if g % 4 == 3:
                    if n < 0: em(f's_add_u32 s{WSO}, s{WSO}, 4096')
                    else: later.append(f's_add_u32 s{WSO}, s{WSO}, 4096')
                vq.append(g)
            elif kind == 'L':
                em(p[0].replace('offset:pair', 'offset:24').replace(f'v{VF+1} offset:24', f'v{VF+5} offset:24')); lq.append(p[1])
            elif kind == 'C':
                lwait(p[1]); em(p[0])
            elif kind == 'I':
                for x in p: em(x)
            elif kind == 'A':
                em('s_mov_b64 exec, 1')
                if p == 'pair': em(f'ds_add_u32 v{VF+5}, v{VF+2} offset:24')
                else: em(f'ds_add_u32 v{VF+1}, v{VF+2} offset:{p}')
                em('s_mov_b64 exec, -1')
                lq.append(('a', p))
            elif kind == 'Q':
                p, hf = p
                lwait(('pr', p))
                q = ACC['Q'] + 4 * p; t_ = TMP + 4 * (p & (3 if o.chain > 1 else 1))
                for i in (2 * hf, 2 * hf + 1): em(f'v_add_f32 v{q+i}, v{q+i}, v{t_+i}')
            elif kind == 'S':
                assert not any(isinstance(x, tuple) and x[0] == 's' for x in vq)
                em(p); vq.append(('s', n))
            elif kind == 'F':
                em(f's_mov_b32 s{FO}, {128*p[1]}')
                em(f'buffer_load_dword v{VF+4}, v{p[0]}, {sr(S_WS)}, s{FO} offen {o.fflags}'); vq.append(('f', p[2]))
            elif kind == 'G':
                vwait(('f', p)); em(f'v_cmp_ne_u32 vcc, v{VF+3}, v{VF+4}')
            elif kind == 'P':
                em(f'v_mov_b32 v{VF+7}, {p}')
                em('s_mov_b64 exec, 1')
                em(f'ds_max_u32 v{VF+1}, v{VF+7}')
                em('s_mov_b64 exec, -1')
                lq.append(('p', p))
        def epi(j, pk):
            q = ACC['Q'] + 4 * j
            t = TMP + 8 * (j & 1)
            I = []
            if pk:
                I.append(f'v_pk_mul_f32 {vr(t,2)}, {vr(q,2)}, s[{C2L}:{C2L+1}]')
                I.append(f'v_pk_mul_f32 {vr(t+2,2)}, {vr(q+2,2)}, s[{CNL}:{CNL+1}]')
            else:
                for i in (0, 1): I.append(f'v_mul_f32 v{t+i}, s{C2L}, v{q+i}')
                for i in (2, 3): I.append(f'v_mul_f32 v{t+i}, s{CNL}, v{q+i}')
            I.append(f'v_min_f32 v{t}, s{C60}, v{t}')
            I.append(f'v_min_f32 v{t+1}, s{C60}, v{t+1}')
            for i in (0, 1, 2, 3): I.append(f'v_exp_f32 v{t+i}, v{t+i}')
            if pk:
                I.append(f'v_pk_add_f32 {vr(t+4,2)}, {vr(t,2)}, 1.0 op_sel_hi:[1,0]')
                I.append(f'v_pk_add_f32 {vr(t+6,2)}, {vr(t,2)}, -1.0 op_sel_hi:[1,0]')
                I.append(f'v_pk_fma_f32 {vr(t+4,2)}, {vr(t+4,2)}, {vr(t+2,2)}, {vr(t+4,2)}')
            else:
                for i in (0, 1): I.append(f'v_add_f32 v{t+4+i}, 1.0, v{t+i}')
                for i in (0, 1): I.append(f'v_fma_f32 v{t+4+i}, v{t+4+i}, v{t+2+i}, v{t+4+i}')
            I.append(f'v_rcp_f32 v{t+4}, v{t+4}')
            I.append(f'v_rcp_f32 v{t+5}, v{t+5}')
            if pk:
                I.append('s_nop 0')
                I.append(f'v_pk_mul_f32 {vr(t+6,2)}, {vr(t+6,2)}, {vr(t+4,2)}')
            else:
                for i in (0, 1): I.append(f'v_add_f32 v{t+6+i}, -1.0, v{t+i}')
                for i in (0, 1): I.append(f'v_mul_f32 v{t+6+i}, v{t+6+i}, v{t+4+i}')
            I.append(f'v_cvt_pk_bf16_f32 v{q}, v{t+6}, v{t+7}')
            I.append(f'buffer_store_dword v{q}, v{VOUT + j//3}, {sr(S_OUT)}, 0 offen offset:{1152*(j%3)} {o.oflags if j < o.oj else ""}')
            return I
        def cost(x): return 2 if x.startswith(('v_exp', 'v_rcp', 'buffer')) else 1
        while tasks and tasks[0][0] < 0: run(tasks.pop(0), -1)
        inv = {n: v for v, n in vstart.items()}
        lastop = {j: max(n for n in range(N) if ops[n][1] == j) for j in range(9)}
        for n, (g, j) in enumerate(ops):
            if n in inv and o.padto and o.padev == 'm5' and inv[n] == o.padstep:
                e('s_memrealtime s[100:101]'); dirty[0] = True
            if n in inv and o.diag:
                v = inv[n]
                if o.diag == 2 and v in o.marks:
                    kk = o.marks.index(v)
                    e(f's_memtime s[{ST0+2*kk}:{ST0+2*kk+1}]'); dirty[0] = True
                if o.diag in (1, 4) and v == 33: stamp(5); stamp(6); dirty[0] = True
            k = key(n)
            assert k in xreg, (k, n)
            lwait(k); vwait(g)
            acc = S[g][4]
            d = ACC[acc] + 4 * j
            if g == 0: cs = '0'
            elif acc == 'Q' and S[g-1][4] == 'P': cs = vr(ACC['P'] + 4 * j, 4)
            else: cs = vr(d, 4)
            em(f'v_mfma_f32_16x16x32_bf16 {vr(d,4)}, {vr(wr[g],4)}, {vr(xreg[k],4)}, {cs}' if not o.swapab else f'v_mfma_f32_16x16x32_bf16 {vr(d,4)}, {vr(xreg[k],4)}, {vr(wr[g],4)}, {cs}')
            if n == lastop[j]: since[j] = 0
            while later: em(later.pop(0))
            budget = 2
            TC = {'X': 1, 'W': 2, 'L': 2, 'C': 1, 'I': 0, 'A': 1, 'Q': 2, 'S': 2, 'F': 2, 'G': 1, 'P': 2}
            while True:
                ready = [t for t in tasks if t[0] <= n and wok(t, n)]
                if not ready: break
                t = min(ready, key=lambda t: t[1])
                assert t[1] >= n, ('late', t, n)
                if TC[t[2]] > budget and t[1] > n:
                    fit = [u for u in ready if TC[u[2]] <= budget]
                    if not fit: break
                    t = min(fit, key=lambda t: t[1])
                tasks.remove(t); run(t, n); budget -= TC[t[2]]
            for jj in sorted(since):
                if 8 <= since[jj] < 10**6:
                    fill += epi(jj, False); since[jj] = 10**6
            budget += o.nfill - 2
            while fill and budget >= cost(fill[0]):
                budget -= cost(fill[0])
                if fill[0].startswith('buffer_store'):
                    q_ = int(re.match(r'buffer_store_dword v(\d+)', fill[0]).group(1))
                    until.pop(q_, None); busy[q_] = n + 2
                em(fill.pop(0))
            assert all(t[1] > n for t in tasks), ('late', n, [t for t in tasks if t[1] <= n])
        assert not tasks
        stamp(7)
        while fill: em(fill.pop(0))
        for jj in [jj for jj in sorted(since) if since[jj] < 10**6]:
            if since[jj] < 8: em(f's_nop {8-since[jj]-1}')
            for x in epi(jj, True): em(x)
        stamp(8)
        if o.padto and o.padev[0] == 'm': padloop(typ)
        if o.diag == 1:
            e('s_waitcnt vmcnt(0)')
            stamp(9)
            dump(10)
        if o.diag == 2:
            kk = len(o.marks)
            e(f's_memtime s[{ST0+2*kk}:{ST0+2*kk+1}]')
            dump(10)
        e('s_endpgm')
        for tag, off, cnt in slow:
            e(f'L_slow{typ}{tag}:')
            e(f'ds_read_b32 v{VC}, v{VF+5 if off == "pair" else VF+1} offset:{24 if off == "pair" else off}')
            e('s_waitcnt lgkmcnt(0)')
            e(f'v_cmp_ne_u32 vcc, {cnt}, v{VC}')
            e('s_nop 4')
            e(f's_cbranch_vccnz L_slow{typ}{tag}')
            e(f's_branch L_back{typ}{tag}')
        for ci, va in fslow: flagwait(f'{typ}{ci}', va, f'L_fb{typ}{ci}')

    mark['help0'] = len(e.L)
    if not o.hfirst: e('.p2align 6')
    e('L_helper:')
    role[0] = 'h'
    e(f's_setprio {o.hprio}')
    e(f's_sub_u32 s{TW0}, s{WAVE}, 4')
    e(f's_mov_b32 s{TW1}, s{WAVE}')
    e(f's_sub_u32 s{PAIR}, s2, {NPROD}')
    e(f's_cselect_b32 s{PAIR}, s2, s{PAIR}')
    e(f's_mov_b32 s{MODE}, 0')
    e(f's_mov_b32 s{NOTASK}, s2')
    e(f's_mov_b32 s{HAS3}, s{TW0}')
    e(f's_lshl_b32 s{SCRB}, s{TW0}, 12')
    e(f's_add_u32 s{SCRB}, s{SCRB}, {SCR}')
    e('L_prod:')
    T = [(28, TW0, 2, 52, 0), (36, TW1, 4, 53, 2048), (44, TW2, 6, 54, 16384)]
    c, kp, q, cc, kk, t = 46, 47, 48, 49, 50, 51
    b = TS
    e('v_mov_b32 v19, 4320')
    e('v_and_b32 v23, 3, v1')
    e('v_lshrrev_b32 v24, 3, v1')
    e('v_mul_u32_u24 v24, 576, v24')
    e('v_bfe_u32 v25, v1, 2, 1')
    e('v_mul_u32_u24 v25, 288, v25')
    e('v_add_u32 v24, v24, v25')
    for (vb, sw, vl, vs, so) in T:
        e(f'v_lshl_add_u32 v8, s{sw}, 2, v23' if sw != TW2 else 'v_add_u32 v8, 32, v23')
        e('v_cmp_le_u32 vcc, 18, v8')
        e(f'v_lshl_add_u32 v{vl}, v8, 4, v24')
        e(f'v_add_u32 v9, v{vl}, v19')
        e(f'v_cndmask_b32 v{vl}, v{vl}, v9, vcc')
    e(f's_and_b32 s{c}, s{PAIR}, 15')
    e(f's_lshr_b32 s{kp}, s{PAIR}, 4')
    e(f's_mul_i32 s{b}, s{c}, 165888')
    e(f's_mul_i32 s{t}, s{kp}, 9216')
    e(f's_add_u32 s{b}, s{b}, s{t}')
    e(f's_add_u32 s{b+1}, s{b}, 82944')
    e(f's_mov_b32 s{S_W+2}, 2571264')
    e(f's_mov_b32 s{S_W+3}, 0x20000')
    e(f's_mov_b32 s{S_WO+3}, 0x20000')
    e(f's_cmp_lg_u32 s{c}, 15')
    e(f's_cselect_b32 s{S_WO+2}, 2571264, 0')
    e(f's_mov_b32 m0, s{SCRB}')
    e('s_waitcnt lgkmcnt(0)')
    e(f's_mov_b32 s{S_W}, s6')
    e(f's_and_b32 s{S_W+1}, s7, 0xffff')
    e(f's_mov_b32 s{S_WO}, s6')
    e(f's_and_b32 s{S_WO+1}, s7, 0xffff')
    e(f's_cmp_ge_u32 s{NOTASK}, {NTASK}')
    e('s_cbranch_scc1 L_a3')
    def cond3(lbl):
        e(f's_cmp_lg_u32 s{HAS3}, 0')
        e(f's_cbranch_scc1 {lbl}')
    for ti, (vb, sw, vl, vs, so) in enumerate(T):
        if ti == 2: cond3('L_a3')
        if ti == 1: e('s_addk_i32 m0, 1024'); e('s_nop 0')
        e(f'buffer_load_dwordx4 v{vl}, {sr(S_W)}, s{b} offen lds')
        e('s_addk_i32 m0, 1024')
        e('s_nop 0')
        e(f'buffer_load_dwordx4 v{vl}, {sr(S_WO)}, s{b+1} offen lds')
        if ti == 1: e(f's_addk_i32 m0, {16384-3072}')
    e('L_a3:')
    stamp(1)
    e(f's_cmp_lg_u32 s{MODE}, 0')
    e('s_cbranch_scc1 L_a4')
    e(f's_load_dword s{TAG}, s[12:13], {NONCE}')
    e(f's_lshr_b32 s{EARLY}, 0x33, s{kp}')
    e(f's_and_b32 s{EARLY}, s{EARLY}, 1')
    e(f's_sub_u32 s{XK}, 2, s{EARLY}')
    e(f's_lshl_b32 s{t}, s{kp}, 1')
    e(f's_lshr_b32 s{YT}, {(3<<12)+(3<<14)+(3<<16)}, s{t}')
    e(f's_and_b32 s{YT}, s{YT}, 3')
    e(f's_lshr_b32 s{t}, s{kp}, 1')
    e(f's_cmp_ge_u32 s2, {NPROD}')
    e(f's_cselect_b32 s{EARLY}, 0, s{EARLY}')
    e(f's_cselect_b32 s{XK}, 3, s{XK}')
    e(f's_cselect_b32 s{YT}, s{t}, s{YT}')
    e(f's_cmp_ge_u32 s2, {NPROD+32}')
    e(f's_cselect_b32 s{XK}, 0, s{XK}')
    e(f's_cmp_ge_u32 s2, {NTASK}')
    e(f's_cselect_b32 s{YT}, 0, s{YT}')
    if not o.b0early:
        e(f's_cmp_lg_u32 s{EARLY}, 0')
        e('s_cbranch_scc1 L_a4')
    e('s_barrier')
    e('L_a4:')
    e(f's_mov_b32 s{MASK}, 0xffff0000')
    e(f's_mov_b32 s{NPOLL}, 0')
    srd(e, S_WS, 12, WS_REC)
    srd(e, S_DBG, 10, 256)
    e(f'v_mov_b32 v10, {CNT}')
    e(f'v_mov_b32 v20, {(256 - 18*2*NSTEP*1024) & 0xffffffff}')
    e(f'v_mov_b32 v26, {2*NSTEP*1024}')
    e('v_bfe_u32 v21, v1, 2, 2')
    e('v_lshlrev_b32 v21, 7, v21')
    e('v_and_b32 v22, 1, v1')
    e('v_lshl_add_u32 v21, v22, 6, v21')
    e('v_bfe_u32 v22, v1, 1, 1')
    e('v_lshl_add_u32 v21, v22, 3, v21')
    e('v_lshrrev_b32 v22, 4, v1')
    e('v_lshl_add_u32 v21, v22, 4, v21')
    e(f'v_add_u32 v21, s{SCRB}, v21')
    e('v_and_b32 v25, 15, v1')
    e('v_lshlrev_b32 v25, 4, v25')
    for (vb, sw, vl, vs, so) in T:
        e(f'v_lshl_add_u32 v8, s{sw}, 2, v22' if sw != TW2 else 'v_add_u32 v8, 32, v22')
        e('v_cmp_le_u32 vcc, 18, v8')
        e(f'v_mad_u32_u24 v{vs}, v8, v26, v25')
        e(f'v_add_u32 v9, v{vs}, v20')
        e(f'v_cndmask_b32 v{vs}, v{vs}, v9, vcc')
    e(f's_lshr_b32 s{q}, s{kp}, 1')
    e(f's_and_b32 s{cc}, s{c}, 7')
    e(f's_lshr_b32 s{kk}, s{c}, 3')
    e(f's_and_b32 s{t}, s{kp}, 1')
    e(f's_cmp_eq_u32 s{kp}, 8')
    e(f's_cselect_b32 s{cc}, s{cc}, s{c}')
    e(f's_cselect_b32 s{kk}, s{kk}, s{t}')
    e(f's_lshl_b32 s{kk}, s{kk}, 9')
    e(f's_add_u32 s{kk}, s{kk}, {WOFF}')
    e(f's_lshl_b32 s{t}, s{q}, 4')
    e(f's_add_u32 s{b+2}, s{t}, s{cc}')
    e(f's_sub_u32 s{b+3}, s{b+2}, s{q}')
    e(f's_cmp_ge_u32 s{q}, 2')
    e(f's_cselect_b32 s{b+4}, 74, 0')
    e(f's_add_u32 s{b+4}, s{b+4}, s{b+2}')
    e(f's_cmp_lt_u32 s{cc}, 2')
    e(f's_cselect_b32 s{t}, 32, 136')
    e(f's_add_u32 s{t}, s{t}, s{cc}')
    e(f's_cmp_eq_u32 s{kp}, 8')
    e(f's_cselect_b32 s{b+4}, s{t}, s{b+4}')
    e(f's_add_u32 s{b+2}, s{b+2}, 34')
    e(f's_add_u32 s{b+3}, s{b+3}, 144')
    for k in (2, 3, 4):
        e(f's_lshl_b32 s{b+k}, s{b+k}, 10')
        e(f's_add_u32 s{b+k}, s{b+k}, s{kk}')
    e(f's_cmp_eq_u32 s{kp}, 8')
    e(f's_cselect_b32 s{t}, 1, 2')
    e(f's_cmp_eq_u32 s{c}, 15')
    e(f's_cselect_b32 s{b+5}, s{t}, 0')
    e(f's_lshl_b32 s46, s{WAVE}, 2')
    e(f's_add_u32 s46, s46, {CNT+16}')
    e('v_mov_b32 v55, s46')
    e('v_mov_b32 v27, 0')
    e('v_mov_b32 v9, 4')
    e('s_waitcnt vmcnt(0) lgkmcnt(0)')
    stamp(2)
    e(f's_cmp_ge_u32 s{NOTASK}, {NTASK}')
    e('s_cbranch_scc1 L_x9')
    e(f's_cmp_lg_u32 s{WAVE}, 4')
    e('s_cbranch_scc1 L_a5')
    e('s_mov_b64 exec, 1')
    e(f'buffer_load_dword v27, v9, {sr(S_DBG)}, 0 offen sc1')
    e('s_mov_b64 exec, -1')
    e('L_a5:')
    for (vb, sw, vl, vs, so) in T:
        for tap in range(2):
            for half in range(2):
                e(f'ds_read_b64_tr_b16 {vr(vb+4*tap+2*half,2)}, v21 offset:{so+1024*tap+512*half}')
    nlab = [0]
    def st01(vb, vs):
        nlab[0] += 1
        e(f'buffer_store_dwordx4 {vr(vb,4)}, v{vs}, {sr(S_WS)}, s{b+2} offen sc1')
        e(f's_cmp_eq_u32 s{b+5}, 2')
        e(f's_cbranch_scc1 L_skip{nlab[0]}')
        e(f'buffer_store_dwordx4 {vr(vb+4,4)}, v{vs}, {sr(S_WS)}, s{b+3} offen sc1')
        e(f'L_skip{nlab[0]}:')
    def st01all(lbl):
        st01(T[0][0], T[0][3]); st01(T[1][0], T[1][3])
        cond3(lbl)
        st01(T[2][0], T[2][3])
    def dosum(vb, tb, ob):
        for i in range(8):
            e(f'v_lshlrev_b32 v{tb+2*i}, 16, v{vb+i}')
            e(f'v_and_b32 v{tb+2*i+1}, s{MASK}, v{vb+i}')
        for i in range(4):
            e(f'v_pk_add_f32 {vr(tb+2*i,2)}, {vr(tb+2*i,2)}, {vr(tb+8+2*i,2)}')
        for i in range(4):
            e(f'v_cvt_pk_bf16_f32 v{ob+i}, v{tb+2*i}, v{tb+2*i+1}')
    def ldswait(off, cmp, operand, tag, slp):
        e(f'L_lw{tag}:')
        e(f'ds_read_b32 v11, v10 offset:{off}')
        e('s_waitcnt lgkmcnt(0)')
        e('v_and_b32 v11, 0xff, v11')
        e(f'v_cmp_{cmp}_u32 vcc, {operand}, v11')
        e('s_nop 4')
        e(f's_cbranch_vccnz L_lx{tag}')
        e(f's_sleep {slp}')
        e(f's_branch L_lw{tag}')
        e(f'L_lx{tag}:')
    SO = 240
    e(f's_or_b32 s46, s{EARLY}, s{MODE}')
    e(f's_cmp_eq_u32 s{XK}, 2')
    e('s_cselect_b32 s47, 1, s46')
    e('s_cmp_eq_u32 s47, 0')
    e('s_cbranch_scc1 L_x9')
    for ti, (vb, sw, vl, vs, so) in enumerate(T):
        if ti == 2: cond3('L_x3')
        e(f's_waitcnt lgkmcnt({8-4*ti})')
        dosum(vb, 64 + 16 * ti, SO + 4 * ti)
        e('s_cmp_eq_u32 s46, 0')
        e(f's_cbranch_scc1 L_x5{ti}')
        e(f'buffer_store_dwordx4 {vr(SO+4*ti,4)}, v{vs}, {sr(S_WS)}, s{b+4} offen sc1')
        e(f'L_x5{ti}:')
    e('L_x3:')
    e(f's_cmp_eq_u32 s{MODE}, 0')
    e('s_cbranch_scc1 L_x9')
    e('L_x2:')
    e('s_waitcnt lgkmcnt(0)')
    st01all('L_x4')
    e('L_x4:')
    e(f's_cmp_eq_u32 s{MODE}, 0')
    e('s_cbranch_scc1 L_x9')
    e('s_waitcnt vmcnt(0)')
    e(f's_add_u32 s{PAIR}, s{PAIR}, 1')
    e(f's_cmp_lt_u32 s{PAIR}, {NPROD}')
    e('s_cbranch_scc1 L_prod')
    e('v_mov_b32 v11, 1')
    e('ds_write_b32 v10, v11 offset:12')
    e('s_endpgm')
    e('L_x9:')
    stamp(3)
    decode()
    e('v_subrev_u32 v4, 256, v0')
    e('v_min_u32 v4, 251, v4')
    e('v_mul_u32_u24 v3, 3641, v4')
    e('v_lshrrev_b32 v3, 16, v3')
    e('v_mul_u32_u24 v2, 18, v3')
    e('v_sub_u32 v2, v4, v2')
    e(f'v_mul_u32_u24 v3, {R}, v3')
    e(f'v_min_u32 v3, {160-R}, v3')
    e('v_mul_u32_u24 v4, 1152, v3')
    e('v_lshl_add_u32 v4, v2, 4, v4')
    e(f'v_add_u32 v12, s{XB}, v4')
    e('v_mul_u32_u24 v18, 288, v3')
    e('v_lshl_add_u32 v18, v2, 4, v18')
    e(f'v_add_u32 v19, {X_D1}, v18')
    srd(e, S_X, 4, 1152000, add=BOFF)
    e(f's_add_u32 s46, s{TAG}, {TAGINC}')
    e('v_mov_b32 v56, s46')
    e('s_lshl_b32 s46, s2, 7')
    e('v_mov_b32 v58, s46')
    e(f's_add_u32 s46, s{PAIR}, {NPROD}')
    e('s_lshl_b32 s46, s46, 7')
    e('v_mov_b32 v59, s46')
    def publish(slot, vflag, tag, first, n=0):
        e('s_mov_b64 exec, 1')
        e(f's_waitcnt vmcnt({n})')
        if first: stamp(4)
        if o.padto and tag == 'x': stamp(12)
        e('v_cmp_ne_u32 vcc, 0, v27')
        e('v_not_b32 v57, v56')
        e('s_nop 0')
        e('v_cndmask_b32 v57, v56, v57, vcc')
        e(f'ds_write_b32 v55, v57 offset:{slot}')
        e(f'ds_read_b128 v[20:23], v10 offset:{32+slot}')
        e('s_waitcnt lgkmcnt(0)')
        for i in range(4): e(f'v_xor_b32 v{20+i}, v{20+i}, v56')
        e('v_or3_b32 v20, v20, v21, v22')
        e('v_or_b32 v20, v20, v23')
        e('v_cmp_eq_u32 vcc, 0, v20')
        e('s_and_b64 exec, exec, vcc')
        e(f's_cbranch_execz L_nl{tag}')
        e(f'buffer_store_dword v56, v{vflag}, {sr(S_WS)}, 0 offen sc1')
        e(f'L_nl{tag}:')
        e('s_mov_b64 exec, -1')
    e(f's_cmp_eq_u32 s{EARLY}, 0')
    e('s_cbranch_scc1 L_noflag')
    publish(0, 58, 'x', True)
    if not o.b0early: e('s_barrier')
    e('L_noflag:')
    e(f's_setprio {o.hprio2}')
    RAW, ORAW = 64, 120
    EU = [184, 192]
    OU, DT, DO = 200, 208, 216
    xi = [0]
    NL = R + 1
    hq = []
    def eload():
        k = xi[0]
        if k >= NL: return
        a_ = 12
        if k:
            a_ = 13 + (k & 3)
            e(f'v_add_u32 v{a_}, {1152*k}, v12')
        e(f'buffer_load_dwordx4 {vr(RAW+4*k,4)}, v{a_}, {sr(S_X)}, 0 offen')
        xi[0] += 1
        hq.append(('e', k))
    if o.etouch:
        e(f's_cmp_lt_u32 s2, {NTASK}')
        e('s_cbranch_scc1 L_net')
        e(f's_and_b32 s46, s{NB}, 1')
        e(f's_mul_i32 s46, s46, {1152*6}')
        e('v_add_u32 v12, s46, v12')
        for _ in range(7): eload()
        e('v_subrev_u32 v12, s46, v12')
        e('s_waitcnt vmcnt(0)')
        e('L_net:')
        xi[0] = 0; hq.clear()
    YA = 232
    e(f's_cmp_eq_u32 s{b+5}, 2')
    e('s_cselect_b32 s46, 0x80000000, 0')
    e(f's_cmp_lg_u32 s{HAS3}, 0')
    e('s_cselect_b32 s47, 0x80000000, 0')
    e('s_or_b32 s48, s46, s47')
    for i in range(6):
        m_ = {0: None, 1: 46, 2: None, 3: 46, 4: 47, 5: 48}[i]
        e(f'v_mov_b32 v{YA+i}, v{52+i//2}' if m_ is None else f'v_or_b32 v{YA+i}, s{m_}, v{52+i//2}')
    def ystore(i, a_):
        e(f'buffer_store_dwordx4 {vr(28+4*i,4)}, v{a_}, {sr(S_WS)}, s{b+2+(i&1)} offen sc1')
        hq.append(('y', i))
    stamp(5)
    ldswait(8, 'eq', 4, 'o', 1)
    def unpack(dst, s_):
        for i in range(4):
            e(f'v_lshlrev_b32 v{dst+2*i}, 16, v{s_+i}')
            e(f'v_and_b32 v{dst+2*i+1}, s{MASK}, v{s_+i}')
    def unpackE(dst, k):
        e(f's_waitcnt vmcnt({len(hq)-1-hq.index(("e", k))})')
        unpack(dst, RAW + 4 * k)
        eload()
    def diff(eu, out):
        for i in range(8): e(f'v_sub_f32 v{DT+i}, v{eu+i}, v{OU+i}')
        for i in range(4):
            e(f'v_cvt_pk_bf16_f32 v{out+i}, v{DT+2*i}, v{DT+2*i+1}')
    def opengate():
        if not o.gate: return
        e('v_mov_b32 v11, 0x100')
        e('s_mov_b64 exec, 1')
        e('ds_add_u32 v10, v11 offset:8')
        e('s_mov_b64 exec, -1')
    def rows(hook):
        stamp(6)
        for j in range(R):
            e(f'ds_read_b128 {vr(ORAW+4*j,4)}, v18 offset:{X_O+288*j}')
        unpackE(EU[0], 0)
        e('s_waitcnt lgkmcnt(0)')
        for j in range(R):
            o0 = DO + 8 * (j & 1)
            unpack(OU, ORAW + 4 * j)
            diff(EU[j & 1], o0)
            e(f'ds_write_b128 v18, {vr(o0,4)} offset:{X_D0+288*j}')
            unpackE(EU[(j + 1) & 1], j + 1)
            diff(EU[(j + 1) & 1], o0 + 4)
            e(f'ds_write_b128 v19, {vr(o0+4,4)} offset:{288*j}')
            hook(j)
    e(f's_cmp_ge_u32 s2, {NPROD + (32 if o.d0p else 0)}')
    e('s_cbranch_scc1 L_pathA')
    e(f's_cmp_lt_u32 s{XK}, 2')
    e('s_cbranch_scc1 L_nox')
    if o.d0p:
        e(f's_cmp_eq_u32 s{XK}, 3')
        e('s_cbranch_scc1 L_xd')
    for i in range(3):
        e(f'buffer_store_dwordx4 {vr(SO+4*i,4)}, v{YA+2*i}, {sr(S_WS)}, s{b+4} offen sc1')
    if o.d0p:
        e('s_branch L_xe')
        e('L_xd:')
        for i in range(6): ystore(i, YA + i)
        e('L_xe:')
    if o.gearly:
        opengate()
        publish(0, 58, 'x2', True)
        e('s_branch L_nox2')
        e('L_nox:')
        opengate()
        e('L_nox2:')
    else:
        publish(0, 58, 'x2', True)
        e('L_nox:')
        opengate()
    hq.clear(); xi[0] = 0
    for _ in range(o.ein): eload()
    rows(lambda j: None)
    e('s_branch L_rowsdone')
    e('L_pathA:')
    if not o.d0p:
        e(f's_cmp_eq_u32 s{XK}, 3')
        e('s_cselect_b32 s47, 0, 0x80000000')
        for i in range(6): e(f'v_or_b32 v{20+i}, s47, v{YA+i}')
    hq.clear(); xi[0] = 0
    for _ in range(NL): eload()
    if not o.d0p:
        for i in range(6): ystore(i, 20 + i)
    def hookA(j):
        if j == o.grow:
            e(f's_waitcnt vmcnt({len(hq)-1-hq.index(("e", NL-1))})')
            opengate()
        if j == o.xrow and not o.d0p:
            e(f's_cmp_lg_u32 s{XK}, 3')
            e('s_cbranch_scc1 L_xp')
            publish(0, 58, 'x3', True)
            e('L_xp:')
    rows(hookA)
    e('L_rowsdone:')
    e('s_waitcnt lgkmcnt(0)')
    stamp(7)
    e('v_mov_b32 v11, 1')
    e('s_mov_b64 exec, 1')
    e('ds_add_u32 v10, v11 offset:16')
    e('s_mov_b64 exec, -1')
    e(f's_cmp_eq_u32 s{YT}, 0')
    e('s_cbranch_scc1 L_noy')
    e(f's_setprio {o.yprio}')
    e('L_yw:')
    e('ds_read_b64 v[20:21], v10')
    e('s_waitcnt lgkmcnt(0)')
    e('v_lshrrev_b32 v21, 14, v21')
    e('v_and_b32 v21, -4, v21')
    e('v_or_b32 v20, v20, v21')
    e(f'v_cmp_le_u32 vcc, s{YT}, v20')
    e('s_nop 4')
    e('s_cbranch_vccnz L_yx')
    e('s_sleep 4')
    e('s_branch L_yw')
    e('L_yx:')
    for i in range(6):
        ystore(i, YA + i)
        e(f's_waitcnt vmcnt({o.ythr})')
        if o.ysleep: e(f's_sleep {o.ysleep}')
    publish(16, 59, 'y', False)
    if o.diag == 1: stamp(8)
    e('L_noy:')
    e(f's_cmp_lg_u32 s{WAVE}, 4')
    e('s_cbranch_scc1 L_hend')
    e('L_guard:')
    e('ds_read_b32 v11, v10 offset:4')
    e('s_waitcnt lgkmcnt(0)')
    e('v_readfirstlane_b32 s46, v11')
    e('s_nop 3')
    e('s_cmp_eq_u32 s46, 4')
    e('s_cbranch_scc1 L_hend')
    e('s_cmp_lt_u32 s46, 0x10000')
    e('s_cbranch_scc0 L_rescue')
    e('s_sleep 16')
    e('s_branch L_guard')
    e('L_rescue:')
    e(f's_mov_b32 s{MODE}, 1')
    e(f's_mov_b32 s{HAS3}, 1')
    e(f's_mov_b32 s{NOTASK}, 0')
    e(f's_lshr_b32 s{TW0}, s{NB}, 1')
    e(f's_add_u32 s{TW1}, s{NB}, 9')
    e(f's_lshr_b32 s{TW1}, s{TW1}, 1')
    e(f's_mov_b32 s{PAIR}, 0')
    e('s_branch L_prod')
    e('L_hend:')
    if o.padto and o.padev[0] == 'h': padloop('h')
    if o.diag == 1:
        stamp(9)
        dump(10)
    e('L_end:')
    e('s_endpgm')
    if o.hfirst:
        m0, h0 = mark['main0'], mark['help0']
        e.L = e.L[:m0] + e.L[h0:] + ['.p2align 6'] + e.L[m0:h0]
    e('L_codeend:')
    e('.section .rodata,"a"')
    e('.p2align 6')
    e(f'.amdhsa_kernel {KN}')
    for x in ['next_free_vgpr 256', 'next_free_sgpr 102', 'accum_offset 256', 'group_segment_fixed_size 0', 'kernarg_size 40',
              'user_sgpr_count 2', 'user_sgpr_kernarg_segment_ptr 1', 'system_sgpr_workgroup_id_x 1']:
        e('  .amdhsa_' + x)
    e('.end_amdhsa_kernel')
    n = haz.check(e.L)
    if n: print(f'{n} hazards', file=sys.stderr)
    return f'; @launch grid=({NWG},1,1) block=(512,1,1) lds={LDS_BYTES}\n' + e.text()

def opts(argv=None):
    ap = argparse.ArgumentParser()
    ap.add_argument('-o', default='k.s')
    for nm, d in [('diag', 0), ('pf', 16), ('pf0', 8), ('wgap', 4), ('wres', 4), ('wsc1', 0), ('nfill', 2), ('fstride', 128), ('sleep', 0), ('maxpoll', 3000), ('nopoll', 0),
                  ('hprio', 3), ('hprio2', 0), ('mprio', 2), ('epre', 0), ('ein', 7), ('dpre', 7), ('b0early', 0), ('mtouch', 1), ('gate', 1), ('swapab', 0), ('d0p', 1), ('map', 1), ('chain', 4), ('epoll', 0), ('ppoll', 0), ('yprio', 3), ('ysleep', 0), ('vt', 94), ('tla', 40), ('tskip', 1), ('gearly', 1), ('chfrom', 8), ('oj', 9), ('nolds', 0), ('now', 0), ('wsame', 0), ('grow', 1), ('vbd', 33), ('nopk', 1), ('padto', 0), ('npdelay', 0), ('opre', 5), ('etouch', 0), ('orev', 1), ('b0late', 1), ('dec', 1), ('tail', 1), ('xla', 9), ('hold', 1), ('prest', 0), ('xslot', 0), ('noclosed', 0), ('cpf', 1), ('hfirst', 1), ('warmb', 1), ('wsfirst', 0), ('flead', 6), ('ythr', 6), ('xrow', 3), ('padstep', 33), ('probe', 0), ('probeoff', 0x4000000)]:
        ap.add_argument('--' + nm, type=int, default=d)
    ap.add_argument('--oflags', default='')
    ap.add_argument('--pmap', default='18,18,18,18,18,18,18,18')
    ap.add_argument('--padev', default='m0')
    ap.add_argument('--trig', default='10,25,40')
    ap.add_argument('--yrow', default='0,7,2,9,5,11')
    ap.add_argument('--pfcs', default='4,5,5,8,8')
    ap.add_argument('--fflags', default='')
    ap.add_argument('--fleads', default='6,6,6,6,6')
    ap.add_argument('--marks', default='0,4,8,12,16,24,33,47,58')
    o = ap.parse_args(argv)
    o.marks = [int(x) for x in o.marks.split(',')]
    o.yrow = [int(x) for x in o.yrow.split(',')]
    o.pfcs = [int(x) for x in o.pfcs.split(',')]
    o.fleads = [int(x) for x in o.fleads.split(',')]
    o.trig = [int(x) for x in o.trig.split(',')]
    return o

if __name__ == '__main__':
    o = opts()
    open(o.o, 'w').write(gen(o))
```

```python
import re, sys, argparse
import haz

KN = 'standalone__autoregressive_conv_wavernn__speech_kernel'
NWG = 252
NPROD = 144
ARR = 160 * 288
X_D0, X_O, X_D1 = 0, ARR, 2 * ARR
CNT = 3 * ARR
SCR = CNT + 64
LDS_BYTES = SCR + 18432
NSTEP = 106
WOFF = int(__import__('os').environ.get('WOFF', '0x100000'), 0)
NONCE = 0x10000
DIAG = 0x800000
WS_REC = max(0x1000000, WOFF + 0x400000, int(__import__('os').environ.get('WSREC', '0'), 0))
TAGINC = 0x9E3779B9
R = 12

class Em:
    def __init__(self): self.L = []
    def __call__(self, s): self.L.append(s)
    def text(self): return '\n'.join(self.L) + '\n'

def vr(a, n=1): return f'v{a}' if n == 1 else f'v[{a}:{a+n-1}]'
def sr(a, n=4): return f's[{a}:{a+n-1}]'

def streams():
    out = []
    for typ in (0, 1):
        S = []
        pid = [0]
        def add(arr, chunk, cs, acc):
            for c in cs: S.append((pid[0], arr, chunk, c, acc))
            pid[0] += 1
        if typ == 0:
            add('O', 0, range(16), 'P'); add('O', 1, range(16), 'P'); add('O', 'rem', range(0, 2), 'P')
            for q in range(4): add('D', q, range(16), 'Q')
            add('D', 'rem', range(8), 'Q')
        else:
            add('O', 2, range(16), 'P'); add('O', 3, range(16), 'P'); add('O', 'rem', range(2, 8), 'P')
            for q in range(4): add('D', q, range(15), 'Q')
            add('D', 'rem', range(8), 'Q')
        assert len(S) == NSTEP
        out.append(S)
    return out

S_X, S_W, S_WO, S_WS, S_OUT, S_DBG = 20, 24, 28, 32, 36, 40
WAVE, NB, BAT, PAR, MB, BOFF = 14, 15, 16, 17, 18, 19
PAIR0 = 3
XB = 52
MASK = 53
TW0, TW1, TW2, PAIR, HAS3, MODE, SCRB, TAG, LAST, NPOLL = 44, 45, 54, 55, 56, 57, 58, 59, 60, 61
TS = 62
TYP, WSO = 68, 69
EARLY, XK, YT, FIDX = 90, 91, 92, 93
NOTASK = 94
NTASK = NPROD + 96
FO = 97
C2L, CNL, C60 = 90, 92, 94
ST0 = 70

def srd(e, d, ptr, rec, add=None):
    if add is None:
        e(f's_mov_b32 s{d}, s{ptr}')
        e(f's_and_b32 s{d+1}, s{ptr+1}, 0xffff')
    else:
        e(f's_add_u32 s{d}, s{ptr}, s{add}')
        e(f's_addc_u32 s{d+1}, s{ptr+1}, 0')
        e(f's_and_b32 s{d+1}, s{d+1}, 0xffff')
    e(f's_mov_b32 s{d+2}, {rec}')
    e(f's_mov_b32 s{d+3}, 0x20000')

def gen(o):
    e = Em()
    NSTR = 2 * NSTEP * 1024 + (65536 if o.tagp else 0)
    if o.tagp: o.epoll = 0
    role = ['m']
    def padloop(tag):
        e(f'L_pad{tag}:')
        e('s_memrealtime s[98:99]')
        e('s_waitcnt lgkmcnt(0)')
        e('s_sub_u32 s98, s98, s100')
        e(f's_cmp_lt_u32 s98, {o.padto}')
        e(f's_cbranch_scc1 L_pad{tag}')
    def stamp(k, lvl=1):
        if o.padto and lvl == 1 and o.padev == f'{role[0]}{k}':
            e('s_memrealtime s[100:101]'); e('s_waitcnt lgkmcnt(0)')
        if o.diag == lvl or (o.diag == 4 and lvl == 1): e(f's_memrealtime s[{ST0+2*k}:{ST0+2*k+1}]')
    def dump(nst):
        e('s_waitcnt lgkmcnt(0)')
        e('v_mov_b32 v250, 0')
        for k in range(nst): e(f'v_writelane_b32 v250, s{ST0+2*k}, {k}')
        e(f'v_writelane_b32 v250, s{NPOLL}, 13')
        e(f'v_writelane_b32 v250, s95, 12')
        e(f'v_writelane_b32 v250, s2, 14')
        e('s_getreg_b32 s46, hwreg(HW_REG_XCC_ID)')
        e('v_writelane_b32 v250, s46, 15')
        e(f's_lshl_b32 s46, s2, 3'); e(f's_add_u32 s46, s46, s{WAVE}'); e('s_lshl_b32 s46, s46, 6'); e(f's_add_u32 s46, s46, {DIAG}')
        e('v_lshl_add_u32 v251, v1, 2, s46')
        e('s_mov_b64 exec, 0xffff')
        e(f'buffer_store_dword v250, v251, {sr(S_WS)}, 0 offen')
        e('s_mov_b64 exec, -1')

    e('.amdgcn_target "amdgcn-amd-amdhsa--gfx950"')
    e('.text')
    e(f'.globl {KN}')
    e('.p2align 8')
    e(f'.type {KN},@function')
    e(f'{KN}:')
    e(f's_cmp_ge_u32 s2, {NWG}')
    e('s_cbranch_scc1 L_end')
    stamp(0)
    if o.padto and o.padev != 'm0': e('s_memrealtime s[100:101]')
    e('s_load_dwordx4 s[4:7], s[0:1], 0')
    e('s_load_dwordx4 s[8:11], s[0:1], 16')
    e('s_load_dwordx2 s[12:13], s[0:1], 32')
    e('v_lshrrev_b32 v2, 6, v0')
    e('v_and_b32 v1, 63, v0')
    e(f'v_readfirstlane_b32 s{WAVE}, v2')
    def decode():
        e('s_and_b32 s44, s2, 7')
        e('s_lshr_b32 s45, s2, 3')
        e('s_mul_i32 s46, s44, 31')
        e('s_min_u32 s44, s44, 4')
        e('s_add_u32 s46, s46, s44')
        e('s_add_u32 s46, s46, s45')
        if o.map == 0:
            e('s_mul_hi_u32 s47, s46, 68174085')
            e('s_mul_i32 s48, s47, 63')
            e('s_sub_u32 s48, s46, s48')
            e(f's_mul_hi_u32 s{NB}, s48, 613566757')
            e(f's_mul_i32 s49, s{NB}, 7')
            e('s_sub_u32 s49, s48, s49')
            e('s_mul_i32 s47, s47, 7')
            e('s_add_u32 s47, s47, s49')
        elif o.map == 1:
            e('s_mul_hi_u32 s47, s46, 477218589')
            e('s_mul_i32 s48, s47, 9')
            e(f's_sub_u32 s{NB}, s46, s48')
        else:
            e('s_mul_hi_u32 s47, s46, 34087043')
            e('s_mul_i32 s48, s47, 126')
            e('s_sub_u32 s48, s46, s48')
            e(f's_mul_hi_u32 s{NB}, s48, 306783379')
            e(f's_mul_i32 s49, s{NB}, 14')
            e('s_sub_u32 s49, s48, s49')
            e('s_mul_i32 s47, s47, 14')
            e('s_add_u32 s47, s47, s49')
        e(f's_and_b32 s{PAR}, s47, 1')
        e('s_lshr_b32 s47, s47, 1')
        e('s_cmp_ge_u32 s47, 7')
        e(f's_cselect_b32 s{BOFF}, 1152000, 0')
        e('s_cselect_b32 s48, 7, 0')
        e(f's_sub_u32 s{MB}, s47, s48')
        e(f's_mul_i32 s{XB}, s{MB}, 576')
        e(f's_add_u32 s{XB}, s{XB}, s{PAR}')
        e(f's_sub_u32 s{XB}, s{XB}, 60')
        e(f's_mul_i32 s{XB}, s{XB}, 288')
    e(f's_cmp_ge_u32 s{WAVE}, 4')
    e('s_cbranch_scc1 L_helper')
    if o.cpf:
        e('s_lshr_b32 s44, s2, 3')
        e(f's_lshl_b32 s45, s{WAVE}, 5')
        e('s_add_u32 s44, s44, s45')
        e('s_sub_u32 s44, s44, 26')
        e('s_cmp_ge_u32 s44, 5')
        e('s_cbranch_scc1 L_main')
        e('s_getpc_b64 s[46:47]')
        e('L_pc:')
        e('s_lshl_b32 s44, s44, 13')
        e('v_lshl_add_u32 v2, v1, 7, s44')
        e('v_min_u32 v2, L_codeend-L_pc-4, v2')
        e('global_load_dword v63, v2, s[46:47]')
    if o.hfirst: e('s_branch L_main')
    mark = {'main0': len(e.L)}
    e('L_main:')
    e(f's_mov_b32 s{MASK}, 0xffff0000')
    e(f's_mov_b32 s{NPOLL}, 0')
    if o.diag: e('s_mov_b32 s95, 0')
    decode()

    VXO, VXOR, VXD, VXDR, VWL, VEX, VEXP, VOUT = 30, 31, 32, 33, 34, 35, 36, 37
    VF = 40
    VA = 48
    VCL = 60
    e('v_mul_u32_u24 v3, 3641, v0')
    e('v_lshrrev_b32 v3, 16, v3')
    e('v_mul_u32_u24 v2, 18, v3')
    e('v_sub_u32 v2, v0, v2')
    e('v_mul_u32_u24 v3, 1152, v3')
    e('v_lshl_add_u32 v3, v2, 4, v3')
    e(f's_add_u32 s46, s{XB}, 576')
    e(f'v_add_u32 v{VA}, s46, v3')
    e('v_mov_b32 v5, 16192')
    e('v_mov_b32 v6, 17056')
    for k in range(1, 12):
        e('v_cmp_le_u32 vcc, 14, v2')
        e('v_add_u32 v3, 4, v2')
        e('v_subrev_u32 v4, 14, v2')
        e('v_cndmask_b32 v7, v5, v6, vcc')
        e('v_cndmask_b32 v2, v3, v4, vcc')
        e(f'v_add_u32 v{VA+k}, v{VA+k-1}, v7')
    e(f's_lshl_b32 s50, s{WAVE}, 10')
    e(f's_add_u32 s50, s50, {X_O}')
    e(f's_add_u32 s51, s50, {4096*11}')
    e('s_movk_i32 s49, 4096')
    if o.orev:
        e(f's_bitcmp0_b32 s{NB}, 0')
        e('s_cbranch_scc1 L_fwd')
        for k in range(5): e(f'v_swap_b32 v{VA+k}, v{VA+10-k}')
        e(f's_add_u32 s50, s50, {4096*10}')
        e('s_movk_i32 s49, -4096')
        e('L_fwd:')
    e(f'v_mov_b32 v{VF+1}, {CNT}')
    for r in range(4, 8): e(f'v_mov_b32 v{r}, 0')
    e(f'ds_write_b128 v{VF+1}, v[4:7]')
    e(f'ds_write_b128 v{VF+1}, v[4:7] offset:16')
    e('s_waitcnt lgkmcnt(0)')
    e(f's_load_dword s{TAG}, s[12:13], {NONCE}')
    srd(e, S_X, 4, 1152000, add=BOFF)
    def odma(k):
        e(f's_mov_b32 m0, s{51 if k == 11 else 50}')
        e('s_add_u32 s50, s50, s49')
        e(f'buffer_load_dwordx4 v{VA+k}, {sr(S_X)}, 0 offen lds')
    def etouch():
        e(f'buffer_load_dword v62, v9, {sr(S_X)}, 0 offen')
    if o.mtouch and o.tskip:
        e('s_lshr_b32 s47, s2, 4')
        e('s_lshr_b32 s47, 0x33, s47')
        e('s_lshl_b32 s47, s47, 31')
    if o.mtouch:
        e('v_min_u32 v8, 39, v1')
        e('v_lshrrev_b32 v9, 2, v8')
        e(f's_mul_i32 s46, s{WAVE}, 10')
        e('v_add_u32 v9, s46, v9')
        e(f'v_mul_u32_u24 v9, {4*1152}, v9')
        e('v_and_b32 v8, 3, v8')
        e('v_mul_u32_u24 v8, 92, v8')
        e(f's_and_b32 s46, s{NB}, 3')
        e('s_mul_i32 s46, s46, 1152')
        e(f's_add_u32 s46, s46, s{XB}')
        e('v_add3_u32 v9, v9, v8, s46')
        if o.tskip: e('v_or_b32 v9, s47, v9')
    if o.mtouch == 2: etouch()
    for k in range(o.opre): odma(k)
    e('s_barrier')
    stamp(1)
    if o.mtouch == 3: etouch()
    for k in range(o.opre, 12):
        if k == 11:
            e(f's_cmp_lg_u32 s{WAVE}, 0')
            e('s_cbranch_scc1 L_o11')
        odma(k)
    e('L_o11:')
    if o.mtouch == 1: etouch()
    srd(e, S_WS, 12, WS_REC)
    if o.epoll:
        assert o.mtouch == 1 and o.tskip
        e(f's_and_b32 s{TYP}, s{WAVE}, 1')
        e(f's_lshl_b32 s{FO}, s{TYP}, 13')
        e('s_mov_b32 s96, s47')
        e('s_xor_b32 s46, s47, 0x80000000')
        e(f'v_min_u32 v{VF}, 31, v1')
        e(f'v_lshlrev_b32 v{VF}, 7, v{VF}')
        e(f'v_or_b32 v2, s46, v{VF}')
        e(f'buffer_load_dword v{VF+4}, v2, {sr(S_WS)}, s{FO} offen sc1')
    srd(e, S_OUT, 8, 1152000, add=BOFF)
    srd(e, S_DBG, 10, 256)
    e('v_and_b32 v2, 15, v1')
    e('v_lshrrev_b32 v3, 4, v1')
    e('v_subrev_u32 v5, 4, v2')
    e('v_add_u32 v6, 8, v2')
    e('v_cmp_gt_u32 vcc, 4, v2')
    e('v_cmp_le_u32 s[46:47], 12, v2')
    e(f's_and_b32 s{TYP}, s{WAVE}, 1')
    e(f's_lshr_b32 s48, s{WAVE}, 1')
    e('v_cndmask_b32 v5, v5, v6, vcc')
    e('v_cndmask_b32 v5, v5, v2, s[46:47]')
    e('v_mul_u32_u24 v5, 9, v5')
    e('v_mul_u32_u24 v4, 288, v5')
    e('v_lshl_add_u32 v6, v3, 4, v4')
    e('v_and_b32 v7, 1, v3')
    e('v_lshl_add_u32 v7, v7, 4, v4')
    e('v_lshrrev_b32 v8, 1, v3')
    e('v_mul_u32_u24 v8, 2304, v8')
    e('v_add_u32 v7, v7, v8')
    e('v_add_u32 v7, 256, v7')
    e(f's_mul_i32 s49, s{TYP}, {X_D1}')
    e(f'v_add_u32 v{VXO}, {X_O}, v6')
    e(f'v_add_u32 v{VXOR}, {X_O}, v7')
    e(f'v_add_u32 v{VXD}, s49, v6')
    e(f'v_add_u32 v{VXDR}, s49, v7')
    e('v_lshlrev_b32 v6, 4, v1')
    e(f's_mul_i32 s49, s{WAVE}, 9216')
    e(f's_add_u32 s49, s49, {X_O}')
    e(f'v_add_u32 v{VEX}, s49, v6')
    e(f's_xor_b32 s49, s{WAVE}, 1')
    e('s_mul_i32 s49, s49, 9216')
    e(f's_add_u32 s49, s49, {X_O}')
    e(f'v_add_u32 v{VEXP}, s49, v6')
    e('v_and_b32 v8, 0x39, v1')
    e('v_bfe_u32 v9, v1, 1, 1')
    e('v_lshl_add_u32 v8, v9, 2, v8')
    e('v_bfe_u32 v9, v1, 2, 1')
    e('v_lshl_add_u32 v8, v9, 1, v8')
    e(f'v_lshlrev_b32 v{VWL}, 4, v8')
    e(f's_mul_i32 s49, s{TYP}, 576')
    e(f's_add_u32 s49, s49, s{XB}')
    e(f's_add_u32 s49, s49, {60*288}')
    e(f's_lshl_b32 s50, s{NB}, 5')
    e('s_add_u32 s49, s49, s50')
    e('s_lshl_b32 s50, s48, 4')
    e('s_add_u32 s49, s49, s50')
    e('v_mul_u32_u24 v8, 1152, v5')
    e('v_lshl_add_u32 v8, v3, 2, v8')
    e(f'v_add_u32 v{VOUT}, s49, v8')
    e(f'v_add_u32 v{VOUT+1}, 3456, v{VOUT}')
    e(f'v_add_u32 v{VOUT+2}, 6912, v{VOUT}')
    e(f's_lshl_b32 s49, s{NB}, 1')
    e('s_add_u32 s49, s49, s48')
    e(f's_mul_i32 s49, s49, {NSTR}')
    e(f's_mul_i32 s{WSO}, s{TYP}, {NSTEP*1024}')
    e(f's_add_u32 s{WSO}, s{WSO}, s49')
    e(f's_add_u32 s{WSO}, s{WSO}, {WOFF + (16384 if o.tagp else 0)}')
    if o.tagp:
        e(f's_lshl_b32 s96, s{TYP}, 15')
        e('s_add_u32 s96, s96, s49')
        e(f's_add_u32 s96, s96, {WOFF + 2*NSTEP*1024}')
    e(f's_mov_b32 s{C2L}, 0x4038aa3b'); e(f's_mov_b32 s{C2L+1}, 0x4038aa3b')
    e(f's_mov_b32 s{CNL}, 0xbfb8aa3b'); e(f's_mov_b32 s{CNL+1}, 0xbfb8aa3b')
    e(f's_mov_b32 s{C60}, 0x42700000')
    e(f'v_min_u32 v{VF}, 31, v1')
    e(f'v_lshlrev_b32 v{VF}, 7, v{VF}')
    e(f'v_min_u32 v{VF+6}, 47, v1')
    e(f'v_lshlrev_b32 v{VF+6}, 7, v{VF+6}')
    e(f'v_mov_b32 v{VF+2}, 1')
    e('s_lshl_b32 s46, s48, 2')
    e(f'v_add_u32 v{VF+5}, s46, v{VF+1}')
    e(f's_or_b32 s46, s2, s{WAVE}')
    e('v_or_b32 v2, s46, v1')
    e('v_cmp_eq_u32 vcc, 0, v2')
    e(f'v_mov_b32 v{VCL}, -16')
    e(f'v_mov_b32 v{VCL+1}, -16')
    e(f'v_mov_b32 v3, {NONCE}')
    e(f'v_cndmask_b32 v{VCL}, v{VCL}, 4, vcc')
    e(f'v_cndmask_b32 v{VCL+1}, v{VCL+1}, v3, vcc')
    e(f's_lshl_b32 s{FO}, s{TYP}, 13')
    if o.warmb:
        e(f's_cmp_eq_u32 s{TYP}, 1')
        e('s_cbranch_scc1 L_warmB')
        e('L_warmret:')
    e(f's_waitcnt vmcnt({(1 if o.mtouch == 1 else 0) + o.epoll}) lgkmcnt(0)')
    stamp(2)
    e('s_mov_b64 exec, 1')
    e(f'ds_add_u32 v{VF+1}, v{VF+2} offset:8')
    e('s_mov_b64 exec, -1')
    e(f's_add_u32 s{TAG}, s{TAG}, {TAGINC}')
    e(f'v_mov_b32 v{VF+3}, s{TAG}')
    def flagwait(tag, vaddr, back):
        e(f'L_fw{tag}:')
        if o.diag and len(tag) == 2: e(f's_add_u32 s95, s95, {1 << (5 * int(tag[1]))}')
        e(f'buffer_load_dword v{VF+4}, v{vaddr}, {sr(S_WS)}, s{FO} offen sc1')
        e(f'ds_read_b32 v{VF+7}, v{VF+1} offset:12')
        e(f's_add_u32 s{NPOLL}, s{NPOLL}, 1')
        e('s_waitcnt vmcnt(0) lgkmcnt(0)')
        e(f'v_cmp_ne_u32 vcc, v{VF+3}, v{VF+4}')
        e(f'v_readfirstlane_b32 s46, v{VF+7}')
        e('s_nop 3')
        e(f's_cbranch_vccz {back}')
        e('s_cmp_lg_u32 s46, 0')
        e(f's_cbranch_scc1 {back}')
        e(f's_cmp_lg_u32 s{NPOLL}, {o.maxpoll}')
        e(f's_cbranch_scc1 L_fw{tag}')
        e(f'v_mov_b32 v{VF+7}, 0x10000')
        e('s_mov_b64 exec, 1')
        e(f'ds_add_u32 v{VF+1}, v{VF+7} offset:4')
        e('s_mov_b64 exec, -1')
        e(f's_branch L_fw{tag}')
    if o.epoll:
        e('s_cmp_eq_u32 s96, 0')
        e('s_cbranch_scc1 L_gate')
        e('s_waitcnt vmcnt(0)')
        e(f'v_cmp_ne_u32 vcc, v{VF+3}, v{VF+4}')
        e('s_nop 4')
        e('s_cbranch_vccz L_go')
    if o.gate:
        e('L_gate:')
        e(f'ds_read_b32 v{VF+4}, v{VF+1} offset:8')
        e('s_waitcnt lgkmcnt(0)')
        e(f'v_and_b32 v{VF+4}, 0xffff, v{VF+4}')
        e(f'v_cmp_gt_u32 vcc, 0x400, v{VF+4}')
        e('s_nop 4')
        e('s_cbranch_vccz L_gate2')
        e('s_sleep 1')
        e('s_branch L_gate')
        e('L_gate2:')
    if o.ppoll:
        e(f'buffer_load_dword v{VF+4}, v{VF}, {sr(S_WS)}, s{FO} offen sc1')
        e('L_pp:')
        for a_, b_ in ((VF + 4, 62), (62, VF + 4)):
            e(f's_sleep {o.ppoll}')
            e(f'buffer_load_dword v{b_}, v{VF}, {sr(S_WS)}, s{FO} offen sc1')
            e('s_waitcnt vmcnt(1)')
            e(f'v_cmp_ne_u32 vcc, v{VF+3}, v{a_}')
            e(f's_add_u32 s{NPOLL}, s{NPOLL}, 1')
            e('s_nop 3')
            e('s_cbranch_vccz L_go')
        e(f's_cmp_lt_u32 s{NPOLL}, 40')
        e('s_cbranch_scc1 L_pp')
        e(f's_mov_b32 s{NPOLL}, 0')
    if o.p0plain:
        e(f'buffer_load_dword v{VF+4}, v{VF}, {sr(S_WS)}, s{FO} offen')
        e('s_waitcnt vmcnt(0)')
        e(f'v_cmp_ne_u32 vcc, v{VF+3}, v{VF+4}')
        e('s_nop 4')
        e('s_cbranch_vccz L_go')
    if o.onepoll:
        e(f's_cmp_lt_u32 s{WAVE}, 2')
        e('s_cbranch_scc1 L_fw0')
        e('L_op:')
        e(f'ds_read_b32 v{VF+7}, v{VF+1} offset:8')
        e('s_waitcnt lgkmcnt(0)')
        e(f's_add_u32 s46, s{TYP}, 16')
        e(f'v_lshrrev_b32 v{VF+7}, s46, v{VF+7}')
        e(f'v_and_b32 v{VF+7}, 1, v{VF+7}')
        e(f'v_cmp_eq_u32 vcc, 0, v{VF+7}')
        e('s_nop 4')
        e('s_cbranch_vccnz L_op')
        e('s_branch L_go2')
    if not o.tagp: flagwait('0', VF, 'L_go')
    e('L_go:')
    if o.tagp: e('s_mov_b32 s50, s96')
    if o.onepoll:
        e(f's_lshl_b32 s46, 0x10000, s{TYP}')
        e(f'v_mov_b32 v{VF+7}, s46')
        e('s_mov_b64 exec, 1')
        e(f'ds_or_b32 v{VF+1}, v{VF+7} offset:8')
        e('s_mov_b64 exec, -1')
        e('L_go2:')
    stamp(3)
    e('L_gw:')
    e(f'ds_read_b32 v{VF+7}, v{VF+1} offset:8')
    e('s_waitcnt lgkmcnt(0)')
    e(f'v_and_b32 v{VF+7}, 0xff, v{VF+7}')
    e(f'v_cmp_ne_u32 vcc, 4, v{VF+7}')
    e('s_nop 4')
    e('s_cbranch_vccnz L_gw')
    stamp(4)
    e(f's_setprio {o.mprio}')
    e(f's_cmp_eq_u32 s{TYP}, 1')
    e('s_cbranch_scc1 L_typeB')

    ACC = {'P': 64, 'Q': 100}
    WR, TMP = 136, 224
    XRING = [200 + 4 * i for i in range(6)]
    XWIN = [4 + 4 * i for i in range(6)] + [240 + 4 * i for i in range(4)]
    VC = 28
    PF = o.pf
    GT = 98
    wflags = ' sc1' if o.wsc1 else ''
    for typ, S in enumerate(streams()):
        if typ == 1:
            e('.p2align 6')
            if o.warmb: e('L_warmB:'); e('s_branch L_warmret')
            e('L_typeB:')
        ops = []
        vstart = {}
        lastv = o.vt - 1
        v0 = 0
        while v0 <= lastv:
            ch = 1 if v0 < o.chfrom else min(o.chain, lastv + 1 - v0)
            n0 = len(ops)
            for j in range(8, -1, -1):
                us = range(ch) if j % 2 == 0 else range(ch - 1, -1, -1)
                first_ = [u for u in us if v0 + u - j == 0 or (0 < v0 + u - j < NSTEP and S[v0+u-j][4] == 'Q' and S[v0+u-j-1][4] == 'P')]
                if first_: us = range(ch)
                for u in us:
                    if 0 <= v0 + u - j < NSTEP: ops.append((v0 + u - j, j))
            for u in range(ch): vstart[v0 + u] = n0 + (len(ops) - n0) * u // ch
            v0 += ch
        ntail = len(ops)
        if o.tail:
            for j in range(9):
                for g in range(o.vt - j, NSTEP): ops.append((g, j))
        assert len(ops) == NSTEP * 9 and len(set(ops)) == len(ops)
        N = len(ops)
        def key(n):
            g, j = ops[n]
            pid, arr, ch, c, acc = S[g]
            k = (pid, arr, ch, c + j)
            if n >= ntail and g < GT: k = k + ((n,) if not o.hold else ('h',))
            return k
        first, last = {}, {}
        for n in range(N):
            first.setdefault(key(n), n); last[key(n)] = n
        wfirst, wlast = {}, {}
        for n, (g, j) in enumerate(ops):
            wfirst.setdefault(g, n); wlast[g] = n
        tasks = []
        for k, n0 in first.items():
            win = o.tail and k[2] == 'rem' and k[1] == 'D'
            la = o.xla if n0 < ntail else 6
            if n0 >= ntail and ops[n0][1] == 0: la = o.tla
            elif win: la = 12
            tasks.append([n0 - la, n0 - 1, 'X', k])
        for g in range(NSTEP):
            rel = -100 + g if g < o.pf0 else max(0, wfirst[g] - 9 * PF)
            if o.tagp and g < 16:
                rel = -100 + g if g < 4 else max(0, wfirst[g] - 9 * o.tpf)
                tasks.append([rel, wfirst[g & ~1] - 9, 'W', g])
                continue
            tasks.append([rel, wfirst[g] - 1, 'W', g])
        def at(v, off=0): return vstart[v] + off
        firstD = min(n for n in range(N) if S[ops[n][0]][1] == 'D')
        lastO = max(n for n in range(N) if S[ops[n][0]][1] == 'O')
        lastP = {j: max(n for n in range(N) if ops[n][1] == j and S[ops[n][0]][4] == 'P') for j in range(9)}
        slow = []
        vused = set()
        def check(v, off, cnt, tag):
            tasks.append([at(v - 1, 3), at(v - 1, 8), 'L', (f'ds_read_b32 v{VC}, v{VF+1} offset:{off}', ('c', tag))])
            tasks.append([at(v, 0), at(v, 1), 'C', (f'v_cmp_ne_u32 vcc, {cnt}, v{VC}', ('c', tag))])
            tasks.append([at(v, 6), at(v, 7), 'I', [f's_cbranch_vccnz L_slow{typ}{tag}', f'L_back{typ}{tag}:']])
            slow.append((tag, off, cnt))
            vused.add(v)
            return at(v, 8)
        def add1(pos, off):
            tasks.append([pos, pos + 4, 'A', off])
        vD = [v for v in vstart if vstart[v] <= firstD - o.xla][-1] - 1
        okD = check(vD, 16, 4, 'D')
        assert okD <= firstD - o.xla
        add1(lastO, 20)
        VP = 47
        okR = check(VP, 20, 4, 'R')
        for j in range(9):
            assert lastP[j] + 12 < at(VP + 1 + j, 2)
            tasks.append([at(VP + 1 + j, 2), at(VP + 1 + j, 8), 'L', (f'ds_write_b128 v{VEX}, {vr(ACC["P"]+4*j,4)} offset:{1024*j}', ('pw', j))])
        tasks.append([at(VP + 10, 0), at(VP + 10, 4), 'A', 'pair'])
        VQ = VP + 13
        okP = check(VQ, 'pair', 2, 'P')
        for j in range(9):
            tasks.append([at(VQ + 1 + j, 2), at(VQ + 1 + j, 8), 'L', (f'ds_read_b128 {vr(TMP+4*(j&1),4)}, v{VEXP} offset:{1024*j}', ('pr', j))])
            v = VQ + 2 + j
            pos = at(v, 8 - (j + 2) - 1) if j <= 6 else at(v, 8 - (j - 7) - 1)
            sh = 1 if j >= 7 else 0
            if o.chain > 1:
                own = [n for n in range(N) if ops[n][1] == j]
                pos = [a_ + 10 for a_, b_ in zip(own, own[1:]) if b_ - a_ >= 14 and a_ + 9 >= at(v, 0) ][0]
                sh = 0
                tasks[-1][0] = pos - 9; tasks[-1][1] = pos - 4
                tasks[-1][3] = (f'ds_read_b128 {vr(TMP+4*(j&3),4)}, v{VEXP} offset:{1024*j}', ('pr', j))
            tasks.append([pos - 1 + sh, pos - 1 + sh, 'Q', (j, 0)])
            tasks.append([pos + sh, pos + sh, 'Q', (j, 1)])
        if typ == 0:
            tasks.append([at(64, 4), at(64, 8), 'S', f'buffer_store_dword v{VCL+1}, v{VCL}, {sr(S_DBG)}, 0 offen sc1'])
            tasks.append([at(84, 4), at(84, 8), 'S', f'buffer_store_dword v{VF+3}, v{VCL+1}, {sr(S_WS)}, 0 offen sc1'])
        fslow = []
        kslow = []
        if o.tagp:
            for g in range(0, 16, 2):
                n0 = wfirst[g]
                if g < 4: continue
                tasks.append([n0 - 8, n0 - 7, 'K', g])
                tasks.append([n0 - 2, n0 - 1, 'I', ['s_cmp_lg_u64 s[48:49], 0', f's_cbranch_scc1 L_ks{typ}{g}', f'L_kb{typ}{g}:']])
        passes = {}
        for g in range(NSTEP): passes.setdefault(S[g][0], g)
        need = [(passes[1], VF, 32 + 64 * typ), (32, VF + 6, 128), (passes[4], VF, 176), (passes[5], VF, 208), (passes[6], VF + 6, 240)]
        for ci, (gn, va, idx) in enumerate(need):
            v = gn - o.pfcs[ci] - 1
            while v in vused: v -= 1
            tasks.append([at(v - o.fleads[ci], 4), at(v - o.fleads[ci], 8), 'F', (va, idx, ci)])
            tasks.append([at(v, 0), at(v, 1), 'G', ci])
            tasks.append([at(v, 6), at(v, 7), 'I', [f's_cbranch_vccnz L_fw{typ}{ci}', f'L_fb{typ}{ci}:']])
            fslow.append((ci, va))
            assert v not in vused, v
            for t in tasks:
                if t[2] == 'W' and (t[3] >= gn): t[0] = max(t[0], at(v, 8))
        tasks.append([at(v + 1, 2), at(v + 1, 8), 'A', 4])
        if typ == 0:
            for lvl, v in enumerate(o.trig): tasks.append([at(v, 2), at(v, 8), 'P', lvl + 1])
        tasks.sort(key=lambda t: (t[0], t[1]))
        vq, lq = [], []
        dirty = [False]
        xreg, busy = {}, {}
        wn = [0]
        wr = {}
        lastw = [-100]
        later = []
        BIG = [WR + 4 * i for i in range(16)] + XWIN + [ACC['P'] + 4 * i for i in range(9)]
        for i in range(9): busy[ACC['P'] + 4 * i] = at(VP + 12)
        until = {}
        if o.chain > 1:
            BIG += XRING + [VA, VA + 4, VA + 8]
            for i in range(9):
                BIG.append(ACC['Q'] + 4 * i)
                until[ACC['Q'] + 4 * i] = min(n for n in range(N) if ops[n][1] == i and S[ops[n][0]][4] == 'Q') - 3
        def freeregs(n, end): return [x for x in BIG if busy.get(x, -1) <= n and end < until.get(x, 10**9)]
        def freepairs(n, end):
            f_ = set(freeregs(n, end))
            return [x for x in sorted(f_) if x % 8 == PAR8.get(x, -1) and x + 4 in f_]
        PAR8 = {x: x % 8 for x in list(range(WR, WR + 64, 8)) + [4, 12, 20, 240, 248, 200, 208, 216, 100, 108, 116, 124, VA]}
        def kcheck(g):
            vwait(g + 1)
            for i, gg in enumerate((g, g + 1)):
                a_ = wr[gg] - 2
                em(f'v_bitop3_b32 v{VC+i}, v{a_+1}, v{a_+6}, v{VF+3} bitop3:0x7e')
            em(f'v_or_b32 v{VC}, v{VC}, v{VC+1}')
            em(f'v_cmp_ne_u32 s[48:49], 0, v{VC}')
            kslow.append((g, wr[g] - 2, wr[g + 1] - 2))
        def wok(t, n):
            if t[2] != 'W': return True
            if t[3] != wn[0]: return False
            if o.tagp and t[3] < 16:
                return bool(freepairs(n, wlast[t[3]])) and (n - lastw[0] >= 2 or t[1] - n <= 4)
            free = len(freeregs(n, wlast[t[3]]))
            if t[1] - n <= 9 * 3: return free > 0
            return n - lastw[0] >= o.wgap and free > o.wres
        since = {}
        fill = []
        def em(x):
            e(x)
            if not x.endswith(':'):
                for jj in since: since[jj] += 1
        def lwait(tag):
            if tag not in lq: return
            i = lq.index(tag)
            em(f's_waitcnt lgkmcnt({0 if dirty[0] else len(lq)-1-i})')
            if dirty[0]: lq.clear(); dirty[0] = False
            else: del lq[:i + 1]
        def vwait(g):
            if g not in vq: return
            i = vq.index(g)
            em(f's_waitcnt vmcnt({len(vq)-1-i})')
            del vq[:i + 1]
        def run(t, n):
            kind, p = t[2], t[3]
            if kind == 'X':
                pool = BIG if (o.chain > 1 or p[-1] == 'h' or (p[2] == 'rem' and p[1] == 'D')) else XRING
                r = [x for x in pool if busy.get(x, -1) <= n and last[p] < until.get(x, 10**9)]
                assert r, ('no x register', p, n)
                r = min(r, key=lambda x: (until.get(x, 10**9), busy.get(x, -1)))
                busy[r] = last[p]; xreg[p] = r
                arr, ch, s_ = p[1], p[2], p[3]
                if o.nolds and n > 9 * 30: return
                if ch == 'rem': em(f'ds_read_b128 {vr(r,4)}, v{VXOR if arr == "O" else VXDR} offset:{288*s_}')
                else: em(f'ds_read_b128 {vr(r,4)}, v{VXO if arr == "O" else VXD} offset:{64*ch+288*s_}')
                lq.append(p)
            elif kind == 'W':
                g = p
                if o.tagp and g < 16:
                    r = min(freepairs(n, wlast[g]), key=lambda x: (until.get(x, 10**9), busy.get(x, -1)))
                    busy[r] = busy[r + 4] = wlast[g]; wr[g] = r + 2
                    assert g == wn[0]; wn[0] += 1
                    lastw[0] = n
                    em(f'buffer_load_dwordx4 {vr(r,4)}, v{VWL}, {sr(S_WS)}, s50 offen offset:{2048*(g%2)}')
                    em(f'buffer_load_dwordx4 {vr(r+4,4)}, v{VWL}, {sr(S_WS)}, s50 offen offset:{2048*(g%2)+1024}')
                    vq.append(('h', g)); vq.append(g)
                    if g % 2 == 1:
                        if n < 0: em('s_add_u32 s50, s50, 4096')
                        else: later.append('s_add_u32 s50, s50, 4096')
                    return
                r = min(freeregs(n, wlast[g]), key=lambda x: (until.get(x, 10**9), busy.get(x, -1)))
                busy[r] = wlast[g]; wr[g] = r
                assert g == wn[0]; wn[0] += 1
                lastw[0] = n
                if o.now and g > 40: return
                if o.wsame and g > 40:
                    em(f'buffer_load_dwordx4 {vr(r,4)}, v{VWL}, {sr(S_WS)}, s{WSO} offen offset:{1024*(g%4)}{wflags}'); vq.append(g); return
                em(f'buffer_load_dwordx4 {vr(r,4)}, v{VWL}, {sr(S_WS)}, s{WSO} offen offset:{1024*(g%4)}{wflags}')
                if g % 4 == 3:
                    if n < 0: em(f's_add_u32 s{WSO}, s{WSO}, 4096')
                    else: later.append(f's_add_u32 s{WSO}, s{WSO}, 4096')
                vq.append(g)
            elif kind == 'L':
                em(p[0].replace('offset:pair', 'offset:24').replace(f'v{VF+1} offset:24', f'v{VF+5} offset:24')); lq.append(p[1])
            elif kind == 'C':
                lwait(p[1]); em(p[0])
            elif kind == 'I':
                for x in p: em(x)
            elif kind == 'A':
                em('s_mov_b64 exec, 1')
                if p == 'pair': em(f'ds_add_u32 v{VF+5}, v{VF+2} offset:24')
                else: em(f'ds_add_u32 v{VF+1}, v{VF+2} offset:{p}')
                em('s_mov_b64 exec, -1')
                lq.append(('a', p))
            elif kind == 'Q':
                p, hf = p
                lwait(('pr', p))
                q = ACC['Q'] + 4 * p; t_ = TMP + 4 * (p & (3 if o.chain > 1 else 1))
                for i in (2 * hf, 2 * hf + 1): em(f'v_add_f32 v{q+i}, v{q+i}, v{t_+i}')
            elif kind == 'S':
                assert not any(isinstance(x, tuple) and x[0] == 's' for x in vq)
                em(p); vq.append(('s', n))
            elif kind == 'F':
                em(f's_mov_b32 s{FO}, {128*p[1]}')
                em(f'buffer_load_dword v{VF+4}, v{p[0]}, {sr(S_WS)}, s{FO} offen {o.fflags}'); vq.append(('f', p[2]))
            elif kind == 'K':
                kcheck(p)
            elif kind == 'G':
                vwait(('f', p)); em(f'v_cmp_ne_u32 vcc, v{VF+3}, v{VF+4}')
            elif kind == 'P':
                em(f'v_mov_b32 v{VF+7}, {p}')
                em('s_mov_b64 exec, 1')
                em(f'ds_max_u32 v{VF+1}, v{VF+7}')
                em('s_mov_b64 exec, -1')
                lq.append(('p', p))
        def epi(j, pk):
            q = ACC['Q'] + 4 * j
            t = TMP + 8 * (j & 1)
            I = []
            if pk:
                I.append(f'v_pk_mul_f32 {vr(t,2)}, {vr(q,2)}, s[{C2L}:{C2L+1}]')
                I.append(f'v_pk_mul_f32 {vr(t+2,2)}, {vr(q+2,2)}, s[{CNL}:{CNL+1}]')
            else:
                for i in (0, 1): I.append(f'v_mul_f32 v{t+i}, s{C2L}, v{q+i}')
                for i in (2, 3): I.append(f'v_mul_f32 v{t+i}, s{CNL}, v{q+i}')
            I.append(f'v_min_f32 v{t}, s{C60}, v{t}')
            I.append(f'v_min_f32 v{t+1}, s{C60}, v{t+1}')
            for i in (0, 1, 2, 3): I.append(f'v_exp_f32 v{t+i}, v{t+i}')
            if pk:
                I.append(f'v_pk_add_f32 {vr(t+4,2)}, {vr(t,2)}, 1.0 op_sel_hi:[1,0]')
                I.append(f'v_pk_add_f32 {vr(t+6,2)}, {vr(t,2)}, -1.0 op_sel_hi:[1,0]')
                I.append(f'v_pk_fma_f32 {vr(t+4,2)}, {vr(t+4,2)}, {vr(t+2,2)}, {vr(t+4,2)}')
            else:
                for i in (0, 1): I.append(f'v_add_f32 v{t+4+i}, 1.0, v{t+i}')
                for i in (0, 1): I.append(f'v_fma_f32 v{t+4+i}, v{t+4+i}, v{t+2+i}, v{t+4+i}')
            I.append(f'v_rcp_f32 v{t+4}, v{t+4}')
            I.append(f'v_rcp_f32 v{t+5}, v{t+5}')
            if pk:
                I.append('s_nop 0')
                I.append(f'v_pk_mul_f32 {vr(t+6,2)}, {vr(t+6,2)}, {vr(t+4,2)}')
            else:
                for i in (0, 1): I.append(f'v_add_f32 v{t+6+i}, -1.0, v{t+i}')
                for i in (0, 1): I.append(f'v_mul_f32 v{t+6+i}, v{t+6+i}, v{t+4+i}')
            I.append(f'v_cvt_pk_bf16_f32 v{q}, v{t+6}, v{t+7}')
            I.append(f'buffer_store_dword v{q}, v{VOUT + j//3}, {sr(S_OUT)}, 0 offen offset:{1152*(j%3)} {o.oflags if j < o.oj else ""}')
            return I
        def cost(x): return 2 if x.startswith(('v_exp', 'v_rcp', 'buffer')) else 1
        while tasks and tasks[0][0] < 0: run(tasks.pop(0), -1)
        if o.tagp:
            for g in (0, 2):
                vwait(g + 1)
                for gg in (g + 4, g + 5):
                    t_ = [t for t in tasks if t[2] == 'W' and t[3] == gg][0]
                    tasks.remove(t_); run(t_, -1)
                kcheck(g)
                em('s_nop 2')
                em('s_cmp_lg_u64 s[48:49], 0')
                em(f's_cbranch_scc1 L_ks{typ}{g}')
                em(f'L_kb{typ}{g}:')
        inv = {n: v for v, n in vstart.items()}
        lastop = {j: max(n for n in range(N) if ops[n][1] == j) for j in range(9)}
        for n, (g, j) in enumerate(ops):
            if n in inv and o.padto and o.padev == 'm5' and inv[n] == o.padstep:
                e('s_memrealtime s[100:101]'); dirty[0] = True
            if n in inv and o.diag:
                v = inv[n]
                if o.diag == 2 and v in o.marks:
                    kk = o.marks.index(v)
                    e(f's_memtime s[{ST0+2*kk}:{ST0+2*kk+1}]'); dirty[0] = True
                if o.diag in (1, 4) and v == 33: stamp(5); stamp(6); dirty[0] = True
            k = key(n)
            assert k in xreg, (k, n)
            lwait(k); vwait(g)
            acc = S[g][4]
            d = ACC[acc] + 4 * j
            if g == 0: cs = '0'
            elif acc == 'Q' and S[g-1][4] == 'P': cs = vr(ACC['P'] + 4 * j, 4)
            else: cs = vr(d, 4)
            em(f'v_mfma_f32_16x16x32_bf16 {vr(d,4)}, {vr(wr[g],4)}, {vr(xreg[k],4)}, {cs}' if not o.swapab else f'v_mfma_f32_16x16x32_bf16 {vr(d,4)}, {vr(xreg[k],4)}, {vr(wr[g],4)}, {cs}')
            if n == lastop[j]: since[j] = 0
            while later: em(later.pop(0))
            budget = 2
            TC = {'X': 1, 'W': 2, 'L': 2, 'C': 1, 'I': 0, 'A': 1, 'Q': 2, 'S': 2, 'F': 2, 'G': 1, 'P': 2, 'K': 2}
            while True:
                ready = [t for t in tasks if t[0] <= n and wok(t, n)]
                if not ready: break
                t = min(ready, key=lambda t: t[1])
                assert t[1] >= n, ('late', t, n)
                if TC[t[2]] > budget and t[1] > n:
                    fit = [u for u in ready if TC[u[2]] <= budget]
                    if not fit: break
                    t = min(fit, key=lambda t: t[1])
                tasks.remove(t); run(t, n); budget -= TC[t[2]]
            for jj in sorted(since):
                if 8 <= since[jj] < 10**6:
                    fill += epi(jj, False); since[jj] = 10**6
            budget += o.nfill - 2
            while fill and budget >= cost(fill[0]):
                budget -= cost(fill[0])
                if fill[0].startswith('buffer_store'):
                    q_ = int(re.match(r'buffer_store_dword v(\d+)', fill[0]).group(1))
                    until.pop(q_, None); busy[q_] = n + 2
                em(fill.pop(0))
            assert all(t[1] > n for t in tasks), ('late', n, [t for t in tasks if t[1] <= n])
        assert not tasks
        stamp(7)
        while fill: em(fill.pop(0))
        for jj in [jj for jj in sorted(since) if since[jj] < 10**6]:
            if since[jj] < 8: em(f's_nop {8-since[jj]-1}')
            for x in epi(jj, True): em(x)
        stamp(8)
        if o.padto and o.padev[0] == 'm': padloop(typ)
        if o.diag == 1:
            e('s_waitcnt vmcnt(0)')
            stamp(9)
            dump(10)
        if o.diag == 2:
            kk = len(o.marks)
            e(f's_memtime s[{ST0+2*kk}:{ST0+2*kk+1}]')
            dump(10)
        e('s_endpgm')
        for tag, off, cnt in slow:
            e(f'L_slow{typ}{tag}:')
            e(f'ds_read_b32 v{VC}, v{VF+5 if off == "pair" else VF+1} offset:{24 if off == "pair" else off}')
            e('s_waitcnt lgkmcnt(0)')
            e(f'v_cmp_ne_u32 vcc, {cnt}, v{VC}')
            e('s_nop 4')
            e(f's_cbranch_vccnz L_slow{typ}{tag}')
            e(f's_branch L_back{typ}{tag}')
        for ci, va in fslow: flagwait(f'{typ}{ci}', va, f'L_fb{typ}{ci}')
        for g, a0_, a1_ in kslow:
            e(f'L_ks{typ}{g}:')
            if o.diag: e(f's_add_u32 s95, s95, {1 << 25}')
            e(f'ds_read_b32 v{VF+7}, v{VF+1} offset:12')
            e(f's_add_u32 s47, s96, {2048*g}')
            e('s_waitcnt lgkmcnt(0)')
            for i, a_ in enumerate((a0_, a0_ + 4, a1_, a1_ + 4)):
                e(f'buffer_load_dwordx4 {vr(a_,4)}, v{VWL}, {sr(S_WS)}, s47 offen offset:{1024*i} sc1')
            e(f'v_readfirstlane_b32 s46, v{VF+7}')
            e(f's_add_u32 s{NPOLL}, s{NPOLL}, 1')
            e('s_waitcnt vmcnt(0)')
            e('s_cmp_lg_u32 s46, 0')
            e(f's_cbranch_scc1 L_kb{typ}{g}')
            e(f'v_bitop3_b32 v{VC}, v{a0_+1}, v{a0_+6}, v{VF+3} bitop3:0x7e')
            e(f'v_bitop3_b32 v{VC+1}, v{a1_+1}, v{a1_+6}, v{VF+3} bitop3:0x7e')
            e(f'v_or_b32 v{VC}, v{VC}, v{VC+1}')
            e(f'v_cmp_ne_u32 s[48:49], 0, v{VC}')
            e('s_nop 2')
            e('s_cmp_eq_u64 s[48:49], 0')
            e(f's_cbranch_scc1 L_kb{typ}{g}')
            e(f's_cmp_lg_u32 s{NPOLL}, {o.maxpoll}')
            e(f's_cbranch_scc1 L_ks{typ}{g}')
            e(f'v_mov_b32 v{VF+7}, 0x10000')
            e('s_mov_b64 exec, 1')
            e(f'ds_add_u32 v{VF+1}, v{VF+7} offset:4')
            e('s_mov_b64 exec, -1')
            e(f's_branch L_ks{typ}{g}')

    mark['help0'] = len(e.L)
    if not o.hfirst: e('.p2align 6')
    e('L_helper:')
    role[0] = 'h'
    e(f's_setprio {o.hprio}')
    e(f's_sub_u32 s{TW0}, s{WAVE}, 4')
    e(f's_mov_b32 s{TW1}, s{WAVE}')
    e(f's_sub_u32 s{PAIR}, s2, {NPROD}')
    e(f's_cselect_b32 s{PAIR}, s2, s{PAIR}')
    e(f's_mov_b32 s{MODE}, 0')
    e(f's_mov_b32 s{NOTASK}, s2')
    e(f's_mov_b32 s{HAS3}, s{TW0}')
    e(f's_lshl_b32 s{SCRB}, s{TW0}, 12')
    e(f's_add_u32 s{SCRB}, s{SCRB}, {SCR}')
    e('L_prod:')
    T = [(28, TW0, 2, 52, 0), (36, TW1, 4, 53, 2048), (44, TW2, 6, 54, 16384)]
    c, kp, q, cc, kk, t = 46, 47, 48, 49, 50, 51
    b = TS
    e('v_mov_b32 v19, 4320')
    e('v_and_b32 v23, 3, v1')
    e('v_lshrrev_b32 v24, 3, v1')
    e('v_mul_u32_u24 v24, 576, v24')
    e('v_bfe_u32 v25, v1, 2, 1')
    e('v_mul_u32_u24 v25, 288, v25')
    e('v_add_u32 v24, v24, v25')
    for (vb, sw, vl, vs, so) in T:
        e(f'v_lshl_add_u32 v8, s{sw}, 2, v23' if sw != TW2 else 'v_add_u32 v8, 32, v23')
        e('v_cmp_le_u32 vcc, 18, v8')
        e(f'v_lshl_add_u32 v{vl}, v8, 4, v24')
        e(f'v_add_u32 v9, v{vl}, v19')
        e(f'v_cndmask_b32 v{vl}, v{vl}, v9, vcc')
    e(f's_and_b32 s{c}, s{PAIR}, 15')
    e(f's_lshr_b32 s{kp}, s{PAIR}, 4')
    e(f's_mul_i32 s{b}, s{c}, 165888')
    e(f's_mul_i32 s{t}, s{kp}, 9216')
    e(f's_add_u32 s{b}, s{b}, s{t}')
    e(f's_add_u32 s{b+1}, s{b}, 82944')
    e(f's_mov_b32 s{S_W+2}, 2571264')
    e(f's_mov_b32 s{S_W+3}, 0x20000')
    e(f's_mov_b32 s{S_WO+3}, 0x20000')
    e(f's_cmp_lg_u32 s{c}, 15')
    e(f's_cselect_b32 s{S_WO+2}, 2571264, 0')
    e(f's_mov_b32 m0, s{SCRB}')
    e('s_waitcnt lgkmcnt(0)')
    e(f's_mov_b32 s{S_W}, s6')
    e(f's_and_b32 s{S_W+1}, s7, 0xffff')
    e(f's_mov_b32 s{S_WO}, s6')
    e(f's_and_b32 s{S_WO+1}, s7, 0xffff')
    e(f's_cmp_ge_u32 s{NOTASK}, {NTASK}')
    e('s_cbranch_scc1 L_a3')
    def cond3(lbl):
        e(f's_cmp_lg_u32 s{HAS3}, 0')
        e(f's_cbranch_scc1 {lbl}')
    for ti, (vb, sw, vl, vs, so) in enumerate(T):
        if ti == 2: cond3('L_a3')
        if ti == 1: e('s_addk_i32 m0, 1024'); e('s_nop 0')
        e(f'buffer_load_dwordx4 v{vl}, {sr(S_W)}, s{b} offen lds')
        e('s_addk_i32 m0, 1024')
        e('s_nop 0')
        e(f'buffer_load_dwordx4 v{vl}, {sr(S_WO)}, s{b+1} offen lds')
        if ti == 1: e(f's_addk_i32 m0, {16384-3072}')
    e('L_a3:')
    stamp(1)
    e(f's_cmp_lg_u32 s{MODE}, 0')
    e('s_cbranch_scc1 L_a4')
    e(f's_load_dword s{TAG}, s[12:13], {NONCE}')
    e(f's_lshr_b32 s{EARLY}, 0x33, s{kp}')
    e(f's_and_b32 s{EARLY}, s{EARLY}, 1')
    e(f's_sub_u32 s{XK}, 2, s{EARLY}')
    e(f's_lshl_b32 s{t}, s{kp}, 1')
    e(f's_lshr_b32 s{YT}, {(3<<12)+(3<<14)+(3<<16)}, s{t}')
    e(f's_and_b32 s{YT}, s{YT}, 3')
    e(f's_lshr_b32 s{t}, s{kp}, 1')
    e(f's_cmp_ge_u32 s2, {NPROD}')
    e(f's_cselect_b32 s{EARLY}, 0, s{EARLY}')
    e(f's_cselect_b32 s{XK}, 3, s{XK}')
    e(f's_cselect_b32 s{YT}, s{t}, s{YT}')
    e(f's_cmp_ge_u32 s2, {NPROD+32}')
    e(f's_cselect_b32 s{XK}, 0, s{XK}')
    e(f's_cmp_ge_u32 s2, {NTASK}')
    e(f's_cselect_b32 s{YT}, 0, s{YT}')
    if not o.b0early:
        e(f's_cmp_lg_u32 s{EARLY}, 0')
        e('s_cbranch_scc1 L_a4')
    e('s_barrier')
    e('L_a4:')
    e(f's_mov_b32 s{MASK}, 0xffff0000')
    e(f's_mov_b32 s{NPOLL}, 0')
    srd(e, S_WS, 12, WS_REC)
    srd(e, S_DBG, 10, 256)
    e(f'v_mov_b32 v10, {CNT}')
    e(f'v_mov_b32 v20, {(256 - 18*NSTR) & 0xffffffff}')
    e(f'v_mov_b32 v26, {NSTR}')
    e('v_bfe_u32 v21, v1, 2, 2')
    e('v_lshlrev_b32 v21, 7, v21')
    e('v_and_b32 v22, 1, v1')
    e('v_lshl_add_u32 v21, v22, 6, v21')
    e('v_bfe_u32 v22, v1, 1, 1')
    e('v_lshl_add_u32 v21, v22, 3, v21')
    e('v_lshrrev_b32 v22, 4, v1')
    e('v_lshl_add_u32 v21, v22, 4, v21')
    e(f'v_add_u32 v21, s{SCRB}, v21')
    e('v_and_b32 v25, 15, v1')
    e('v_lshlrev_b32 v25, 4, v25')
    for (vb, sw, vl, vs, so) in T:
        e(f'v_lshl_add_u32 v8, s{sw}, 2, v22' if sw != TW2 else 'v_add_u32 v8, 32, v22')
        e('v_cmp_le_u32 vcc, 18, v8')
        e(f'v_mad_u32_u24 v{vs}, v8, v26, v25')
        e(f'v_add_u32 v9, v{vs}, v20')
        e(f'v_cndmask_b32 v{vs}, v{vs}, v9, vcc')
    if o.tagp:
        e(f's_cmp_eq_u32 s{WAVE}, 4')
        e(f's_cselect_b32 s{t}, 1, s{EARLY}')
        e(f's_cmp_ge_u32 s{NOTASK}, {NTASK}')
        e(f's_cselect_b32 s{t}, 0, s{t}')
        e(f's_cmp_lg_u32 s{t}, 0')
        e(f's_cselect_b32 s{t}, 4, -16')
        e(f'v_mov_b32 v9, s{t}')
        e('s_waitcnt lgkmcnt(0)')
        e('s_mov_b64 exec, 1')
        e(f'buffer_load_dword v27, v9, {sr(S_DBG)}, 0 offen sc1')
        e('s_mov_b64 exec, -1')
        e(f's_lshr_b32 s97, 0x33, s{kp}')
        e('s_and_b32 s97, s97, 1')
        e(f's_lshr_b32 s96, s{kp}, 2')
        e('s_lshl_b32 s96, s96, 4')
        e(f's_add_u32 s96, s96, s{c}')
        e('s_lshl_b32 s96, s96, 2')
        e(f's_and_b32 s{t}, s{kp}, 1')
        e(f's_add_u32 s96, s96, s{t}')
        e('s_lshl_b32 s96, s96, 9')
        e(f's_add_u32 s96, s96, {WOFF + 2*NSTEP*1024}')
    e(f's_lshr_b32 s{q}, s{kp}, 1')
    e(f's_and_b32 s{cc}, s{c}, 7')
    e(f's_lshr_b32 s{kk}, s{c}, 3')
    e(f's_and_b32 s{t}, s{kp}, 1')
    e(f's_cmp_eq_u32 s{kp}, 8')
    e(f's_cselect_b32 s{cc}, s{cc}, s{c}')
    e(f's_cselect_b32 s{kk}, s{kk}, s{t}')
    e(f's_lshl_b32 s{kk}, s{kk}, 9')
    e(f's_add_u32 s{kk}, s{kk}, {WOFF}')
    e(f's_lshl_b32 s{t}, s{q}, 4')
    e(f's_add_u32 s{b+2}, s{t}, s{cc}')
    e(f's_sub_u32 s{b+3}, s{b+2}, s{q}')
    e(f's_cmp_ge_u32 s{q}, 2')
    e(f's_cselect_b32 s{b+4}, 74, 0')
    e(f's_add_u32 s{b+4}, s{b+4}, s{b+2}')
    e(f's_cmp_lt_u32 s{cc}, 2')
    e(f's_cselect_b32 s{t}, 32, 136')
    e(f's_add_u32 s{t}, s{t}, s{cc}')
    e(f's_cmp_eq_u32 s{kp}, 8')
    e(f's_cselect_b32 s{b+4}, s{t}, s{b+4}')
    e(f's_add_u32 s{b+2}, s{b+2}, 34')
    e(f's_add_u32 s{b+3}, s{b+3}, 144')
    for k in (2, 3, 4):
        e(f's_lshl_b32 s{b+k}, s{b+k}, 10')
        e(f's_add_u32 s{b+k}, s{b+k}, s{kk}')
    e(f's_cmp_eq_u32 s{kp}, 8')
    e(f's_cselect_b32 s{t}, 1, 2')
    e(f's_cmp_eq_u32 s{c}, 15')
    e(f's_cselect_b32 s{b+5}, s{t}, 0')
    e(f's_lshl_b32 s46, s{WAVE}, 2')
    e(f's_add_u32 s46, s46, {CNT+16}')
    e('v_mov_b32 v55, s46')
    if o.tagp:
        e('s_waitcnt vmcnt(1)')
        stamp(2)
        e(f's_cmp_ge_u32 s{NOTASK}, {NTASK}')
        e('s_cbranch_scc1 L_x9')
    else:
        e('v_mov_b32 v27, 0')
        e('v_mov_b32 v9, 4')
        e('s_waitcnt vmcnt(0) lgkmcnt(0)')
        stamp(2)
        e(f's_cmp_ge_u32 s{NOTASK}, {NTASK}')
        e('s_cbranch_scc1 L_x9')
        e(f's_cmp_lg_u32 s{WAVE}, 4')
        e('s_cbranch_scc1 L_a5')
        e('s_mov_b64 exec, 1')
        e(f'buffer_load_dword v27, v9, {sr(S_DBG)}, 0 offen sc1')
        e('s_mov_b64 exec, -1')
        e('L_a5:')
    for (vb, sw, vl, vs, so) in T:
        for tap in range(2):
            for half in range(2):
                e(f'ds_read_b64_tr_b16 {vr(vb+4*tap+2*half,2)}, v21 offset:{so+1024*tap+512*half}')
    nlab = [0]
    def st01(vb, vs):
        nlab[0] += 1
        e(f'buffer_store_dwordx4 {vr(vb,4)}, v{vs}, {sr(S_WS)}, s{b+2} offen sc1')
        e(f's_cmp_eq_u32 s{b+5}, 2')
        e(f's_cbranch_scc1 L_skip{nlab[0]}')
        e(f'buffer_store_dwordx4 {vr(vb+4,4)}, v{vs}, {sr(S_WS)}, s{b+3} offen sc1')
        e(f'L_skip{nlab[0]}:')
    def st01all(lbl):
        st01(T[0][0], T[0][3]); st01(T[1][0], T[1][3])
        cond3(lbl)
        st01(T[2][0], T[2][3])
    def dosum(vb, tb, ob):
        for i in range(8):
            e(f'v_lshlrev_b32 v{tb+2*i}, 16, v{vb+i}')
            e(f'v_and_b32 v{tb+2*i+1}, s{MASK}, v{vb+i}')
        for i in range(4):
            e(f'v_pk_add_f32 {vr(tb+2*i,2)}, {vr(tb+2*i,2)}, {vr(tb+8+2*i,2)}')
        for i in range(4):
            e(f'v_cvt_pk_bf16_f32 v{ob+i}, v{tb+2*i}, v{tb+2*i+1}')
    def ldswait(off, cmp, operand, tag, slp):
        e(f'L_lw{tag}:')
        e(f'ds_read_b32 v11, v10 offset:{off}')
        e('s_waitcnt lgkmcnt(0)')
        e('v_and_b32 v11, 0xff, v11')
        e(f'v_cmp_{cmp}_u32 vcc, {operand}, v11')
        e('s_nop 4')
        e(f's_cbranch_vccnz L_lx{tag}')
        e(f's_sleep {slp}')
        e(f's_branch L_lw{tag}')
        e(f'L_lx{tag}:')
    SOR = lambda ti: (210 + 8 * ti) if o.tagp else (240 + 4 * ti)
    e(f's_or_b32 s46, s{EARLY}, s{MODE}')
    e(f's_cmp_eq_u32 s{XK}, 2')
    e('s_cselect_b32 s47, 1, s46')
    if o.xl: e('s_mov_b32 s46, s47')
    e('s_cmp_eq_u32 s47, 0')
    e('s_cbranch_scc1 L_x9')
    for ti, (vb, sw, vl, vs, so) in enumerate(T):
        if ti == 2: cond3('L_x3')
        e(f's_waitcnt lgkmcnt({8-4*ti})')
        dosum(vb, 64 + 16 * ti, SOR(ti))
        e('s_cmp_eq_u32 s46, 0')
        e(f's_cbranch_scc1 L_x5{ti}')
        if o.tagp:
            e('s_cmp_eq_u32 s97, 0')
            e(f's_cbranch_scc1 L_x6{ti}')
            if ti == 0:
                e('s_waitcnt vmcnt(0)')
                e('v_readfirstlane_b32 s48, v27')
                e(f's_add_u32 s49, s{TAG}, {TAGINC}')
                e('s_not_b32 s47, s49')
                e(f's_or_b32 s48, s48, s{MODE}')
                e('s_cselect_b32 s49, s47, s49')
            e(f'v_mov_b32 v{SOR(ti)-1}, s49')
            e(f'v_mov_b32 v{SOR(ti)+4}, s49')
            e(f'buffer_store_dwordx4 {vr(SOR(ti)-2,4)}, v{vs}, {sr(S_WS)}, s96 offen sc1')
            e(f'buffer_store_dwordx4 {vr(SOR(ti)+2,4)}, v{vs}, {sr(S_WS)}, s96 offen offset:1024 sc1')
            e(f's_branch L_x5{ti}')
            e(f'L_x6{ti}:')
        e(f'buffer_store_dwordx4 {vr(SOR(ti),4)}, v{vs}, {sr(S_WS)}, s{b+4} offen sc1')
        e(f'L_x5{ti}:')
    e('L_x3:')
    e(f's_cmp_eq_u32 s{MODE}, 0')
    e('s_cbranch_scc1 L_x9')
    e('L_x2:')
    e('s_waitcnt lgkmcnt(0)')
    st01all('L_x4')
    e('L_x4:')
    e(f's_cmp_eq_u32 s{MODE}, 0')
    e('s_cbranch_scc1 L_x9')
    e('s_waitcnt vmcnt(0)')
    e(f's_add_u32 s{PAIR}, s{PAIR}, 1')
    e(f's_cmp_lt_u32 s{PAIR}, {NPROD}')
    e('s_cbranch_scc1 L_prod')
    e('v_mov_b32 v11, 1')
    e('ds_write_b32 v10, v11 offset:12')
    e('s_endpgm')
    e('L_x9:')
    if o.tagp:
        e(f's_cmp_eq_u32 s{EARLY}, 0')
        e('s_cbranch_scc1 L_x10')
        e('s_barrier')
        e('L_x10:')
    stamp(3)
    decode()
    e('v_subrev_u32 v4, 256, v0')
    e('v_min_u32 v4, 251, v4')
    e('v_mul_u32_u24 v3, 3641, v4')
    e('v_lshrrev_b32 v3, 16, v3')
    e('v_mul_u32_u24 v2, 18, v3')
    e('v_sub_u32 v2, v4, v2')
    e(f'v_mul_u32_u24 v3, {R}, v3')
    e(f'v_min_u32 v3, {160-R}, v3')
    e('v_mul_u32_u24 v4, 1152, v3')
    e('v_lshl_add_u32 v4, v2, 4, v4')
    e(f'v_add_u32 v12, s{XB}, v4')
    e('v_mul_u32_u24 v18, 288, v3')
    e('v_lshl_add_u32 v18, v2, 4, v18')
    e(f'v_add_u32 v19, {X_D1}, v18')
    srd(e, S_X, 4, 1152000, add=BOFF)
    e(f's_add_u32 s46, s{TAG}, {TAGINC}')
    e('v_mov_b32 v56, s46')
    e('s_lshl_b32 s46, s2, 7')
    e('v_mov_b32 v58, s46')
    e(f's_add_u32 s46, s{PAIR}, {NPROD}')
    e('s_lshl_b32 s46, s46, 7')
    e('v_mov_b32 v59, s46')
    def publish(slot, vflag, tag, first, n=0):
        e('s_mov_b64 exec, 1')
        e(f's_waitcnt vmcnt({n})')
        if first: stamp(4)
        if o.padto and tag == 'x': stamp(12)
        e('v_cmp_ne_u32 vcc, 0, v27')
        e('v_not_b32 v57, v56')
        e('s_nop 0')
        e('v_cndmask_b32 v57, v56, v57, vcc')
        e(f'ds_write_b32 v55, v57 offset:{slot}')
        e(f'ds_read_b128 v[20:23], v10 offset:{32+slot}')
        e('s_waitcnt lgkmcnt(0)')
        for i in range(4): e(f'v_xor_b32 v{20+i}, v{20+i}, v56')
        e('v_or3_b32 v20, v20, v21, v22')
        e('v_or_b32 v20, v20, v23')
        e('v_cmp_eq_u32 vcc, 0, v20')
        e('s_and_b64 exec, exec, vcc')
        e(f's_cbranch_execz L_nl{tag}')
        e(f'buffer_store_dword v56, v{vflag}, {sr(S_WS)}, 0 offen sc1')
        e(f'L_nl{tag}:')
        e('s_mov_b64 exec, -1')
    if o.tagp and o.xl:
        e(f's_cmp_lg_u32 s{XK}, 2')
        e('s_cbranch_scc1 L_noflag')
        publish(0, 58, 'x', True)
        e(f's_mov_b32 s{XK}, 0')
    elif not o.tagp:
        e(f's_cmp_eq_u32 s{EARLY}, 0')
        e('s_cbranch_scc1 L_noflag')
        publish(0, 58, 'x', True)
        if not o.b0early: e('s_barrier')
    e('L_noflag:')
    e(f's_setprio {o.hprio2}')
    RAW, ORAW = 64, 120
    EU = [184, 192]
    OU, DT, DO = 200, 208, 216
    xi = [0]
    NL = R + 1
    hq = []
    def eload():
        k = xi[0]
        if k >= NL: return
        a_ = 12
        if k:
            a_ = 13 + (k & 3)
            e(f'v_add_u32 v{a_}, {1152*k}, v12')
        e(f'buffer_load_dwordx4 {vr(RAW+4*k,4)}, v{a_}, {sr(S_X)}, 0 offen')
        xi[0] += 1
        hq.append(('e', k))
    if o.etouch:
        e(f's_cmp_lt_u32 s2, {NTASK}')
        e('s_cbranch_scc1 L_net')
        e(f's_and_b32 s46, s{NB}, 1')
        e(f's_mul_i32 s46, s46, {1152*6}')
        e('v_add_u32 v12, s46, v12')
        for _ in range(7): eload()
        e('v_subrev_u32 v12, s46, v12')
        e('s_waitcnt vmcnt(0)')
        e('L_net:')
        xi[0] = 0; hq.clear()
    YA = 232
    e(f's_cmp_eq_u32 s{b+5}, 2')
    e('s_cselect_b32 s46, 0x80000000, 0')
    e(f's_cmp_lg_u32 s{HAS3}, 0')
    e('s_cselect_b32 s47, 0x80000000, 0')
    e('s_or_b32 s48, s46, s47')
    for i in range(6):
        m_ = {0: None, 1: 46, 2: None, 3: 46, 4: 47, 5: 48}[i]
        e(f'v_mov_b32 v{YA+i}, v{52+i//2}' if m_ is None else f'v_or_b32 v{YA+i}, s{m_}, v{52+i//2}')
    def ystore(i, a_):
        e(f'buffer_store_dwordx4 {vr(28+4*i,4)}, v{a_}, {sr(S_WS)}, s{b+2+(i&1)} offen sc1')
        hq.append(('y', i))
    stamp(5)
    ldswait(8, 'eq', 4, 'o', 1)
    def unpack(dst, s_):
        for i in range(4):
            e(f'v_lshlrev_b32 v{dst+2*i}, 16, v{s_+i}')
            e(f'v_and_b32 v{dst+2*i+1}, s{MASK}, v{s_+i}')
    def unpackE(dst, k):
        e(f's_waitcnt vmcnt({len(hq)-1-hq.index(("e", k))})')
        unpack(dst, RAW + 4 * k)
        eload()
    def diff(eu, out):
        for i in range(8): e(f'v_sub_f32 v{DT+i}, v{eu+i}, v{OU+i}')
        for i in range(4):
            e(f'v_cvt_pk_bf16_f32 v{out+i}, v{DT+2*i}, v{DT+2*i+1}')
    def opengate():
        if not o.gate: return
        e('v_mov_b32 v11, 0x100')
        e('s_mov_b64 exec, 1')
        e('ds_add_u32 v10, v11 offset:8')
        e('s_mov_b64 exec, -1')
    def rows(hook):
        stamp(6)
        for j in range(R):
            e(f'ds_read_b128 {vr(ORAW+4*j,4)}, v18 offset:{X_O+288*j}')
        unpackE(EU[0], 0)
        e('s_waitcnt lgkmcnt(0)')
        for j in range(R):
            o0 = DO + 8 * (j & 1)
            unpack(OU, ORAW + 4 * j)
            diff(EU[j & 1], o0)
            e(f'ds_write_b128 v18, {vr(o0,4)} offset:{X_D0+288*j}')
            unpackE(EU[(j + 1) & 1], j + 1)
            diff(EU[(j + 1) & 1], o0 + 4)
            e(f'ds_write_b128 v19, {vr(o0+4,4)} offset:{288*j}')
            hook(j)
    e(f's_cmp_ge_u32 s2, {NPROD + (32 if o.d0p else 0)}')
    e('s_cbranch_scc1 L_pathA')
    e(f's_cmp_lt_u32 s{XK}, 2')
    e('s_cbranch_scc1 L_nox')
    if o.d0p:
        e(f's_cmp_eq_u32 s{XK}, 3')
        e('s_cbranch_scc1 L_xd')
    for i in range(3):
        e(f'buffer_store_dwordx4 {vr(SOR(i),4)}, v{YA+2*i}, {sr(S_WS)}, s{b+4} offen sc1')
    if o.d0p:
        e('s_branch L_xe')
        e('L_xd:')
        for i in range(6): ystore(i, YA + i)
        e('L_xe:')
    if o.gearly:
        opengate()
        publish(0, 58, 'x2', True)
        e('s_branch L_nox2')
        e('L_nox:')
        opengate()
        e('L_nox2:')
    else:
        publish(0, 58, 'x2', True)
        e('L_nox:')
        opengate()
    hq.clear(); xi[0] = 0
    for _ in range(o.ein): eload()
    rows(lambda j: None)
    e('s_branch L_rowsdone')
    e('L_pathA:')
    if not o.d0p:
        e(f's_cmp_eq_u32 s{XK}, 3')
        e('s_cselect_b32 s47, 0, 0x80000000')
        for i in range(6): e(f'v_or_b32 v{20+i}, s47, v{YA+i}')
    hq.clear(); xi[0] = 0
    for _ in range(NL): eload()
    if not o.d0p:
        for i in range(6): ystore(i, 20 + i)
    def hookA(j):
        if j == o.grow:
            e(f's_waitcnt vmcnt({len(hq)-1-hq.index(("e", NL-1))})')
            opengate()
        if j == o.xrow and not o.d0p:
            e(f's_cmp_lg_u32 s{XK}, 3')
            e('s_cbranch_scc1 L_xp')
            publish(0, 58, 'x3', True)
            e('L_xp:')
    rows(hookA)
    e('L_rowsdone:')
    e('s_waitcnt lgkmcnt(0)')
    stamp(7)
    e('v_mov_b32 v11, 1')
    e('s_mov_b64 exec, 1')
    e('ds_add_u32 v10, v11 offset:16')
    e('s_mov_b64 exec, -1')
    e(f's_cmp_eq_u32 s{YT}, 0')
    e('s_cbranch_scc1 L_noy')
    e(f's_setprio {o.yprio}')
    e('L_yw:')
    e('ds_read_b64 v[20:21], v10')
    e('s_waitcnt lgkmcnt(0)')
    e('v_lshrrev_b32 v21, 14, v21')
    e('v_and_b32 v21, -4, v21')
    e('v_or_b32 v20, v20, v21')
    e(f'v_cmp_le_u32 vcc, s{YT}, v20')
    e('s_nop 4')
    e('s_cbranch_vccnz L_yx')
    e('s_sleep 4')
    e('s_branch L_yw')
    e('L_yx:')
    for i in range(6):
        ystore(i, YA + i)
        e(f's_waitcnt vmcnt({o.ythr})')
        if o.ysleep: e(f's_sleep {o.ysleep}')
    publish(16, 59, 'y', False)
    if o.diag == 1: stamp(8)
    e('L_noy:')
    e(f's_cmp_lg_u32 s{WAVE}, 4')
    e('s_cbranch_scc1 L_hend')
    e('L_guard:')
    e('ds_read_b32 v11, v10 offset:4')
    e('s_waitcnt lgkmcnt(0)')
    e('v_readfirstlane_b32 s46, v11')
    e('s_nop 3')
    e('s_cmp_eq_u32 s46, 4')
    e('s_cbranch_scc1 L_hend')
    e('s_cmp_lt_u32 s46, 0x10000')
    e('s_cbranch_scc0 L_rescue')
    e('s_sleep 16')
    e('s_branch L_guard')
    e('L_rescue:')
    e(f's_mov_b32 s{MODE}, 1')
    e(f's_mov_b32 s{HAS3}, 1')
    e(f's_mov_b32 s{NOTASK}, 0')
    e(f's_lshr_b32 s{TW0}, s{NB}, 1')
    e(f's_add_u32 s{TW1}, s{NB}, 9')
    e(f's_lshr_b32 s{TW1}, s{TW1}, 1')
    e(f's_mov_b32 s{PAIR}, 0')
    e('s_branch L_prod')
    e('L_hend:')
    if o.padto and o.padev[0] == 'h': padloop('h')
    if o.diag == 1:
        stamp(9)
        dump(10)
    e('L_end:')
    e('s_endpgm')
    if o.hfirst:
        m0, h0 = mark['main0'], mark['help0']
        e.L = e.L[:m0] + e.L[h0:] + ['.p2align 6'] + e.L[m0:h0]
    e('L_codeend:')
    e('.section .rodata,"a"')
    e('.p2align 6')
    e(f'.amdhsa_kernel {KN}')
    for x in ['next_free_vgpr 256', 'next_free_sgpr 102', 'accum_offset 256', 'group_segment_fixed_size 0', 'kernarg_size 40',
              'user_sgpr_count 2', 'user_sgpr_kernarg_segment_ptr 1', 'system_sgpr_workgroup_id_x 1']:
        e('  .amdhsa_' + x)
    e('.end_amdhsa_kernel')
    n = haz.check(e.L)
    if n: print(f'{n} hazards', file=sys.stderr)
    return f'; @launch grid=({NWG},1,1) block=(512,1,1) lds={LDS_BYTES}\n' + e.text()

def opts(argv=None):
    ap = argparse.ArgumentParser()
    ap.add_argument('-o', default='k.s')
    for nm, d in [('diag', 0), ('pf', 16), ('pf0', 8), ('wgap', 4), ('wres', 4), ('wsc1', 0), ('nfill', 2), ('fstride', 128), ('sleep', 0), ('maxpoll', 3000), ('nopoll', 0),
                  ('hprio', 3), ('hprio2', 0), ('mprio', 2), ('epre', 0), ('ein', 7), ('dpre', 7), ('b0early', 0), ('mtouch', 1), ('gate', 1), ('swapab', 0), ('d0p', 1), ('map', 1), ('chain', 4), ('tagp', 0), ('tpf', 5), ('xl', 0), ('p0plain', 0), ('onepoll', 0), ('epoll', 1), ('ppoll', 0), ('yprio', 3), ('ysleep', 0), ('vt', 94), ('tla', 40), ('tskip', 1), ('gearly', 1), ('chfrom', 8), ('oj', 9), ('nolds', 0), ('now', 0), ('wsame', 0), ('grow', 1), ('vbd', 33), ('nopk', 1), ('padto', 0), ('npdelay', 0), ('opre', 5), ('etouch', 0), ('orev', 1), ('b0late', 1), ('dec', 1), ('tail', 1), ('xla', 9), ('hold', 1), ('prest', 0), ('xslot', 0), ('noclosed', 0), ('cpf', 1), ('hfirst', 1), ('warmb', 1), ('wsfirst', 0), ('flead', 6), ('ythr', 6), ('xrow', 3), ('padstep', 33), ('probe', 0), ('probeoff', 0x4000000)]:
        ap.add_argument('--' + nm, type=int, default=d)
    ap.add_argument('--oflags', default='')
    ap.add_argument('--pmap', default='18,18,18,18,18,18,18,18')
    ap.add_argument('--padev', default='m0')
    ap.add_argument('--trig', default='10,25,40')
    ap.add_argument('--yrow', default='0,7,2,9,5,11')
    ap.add_argument('--pfcs', default='4,5,5,8,8')
    ap.add_argument('--fflags', default='')
    ap.add_argument('--fleads', default='6,6,6,6,6')
    ap.add_argument('--marks', default='0,4,8,12,16,24,33,47,58')
    o = ap.parse_args(argv)
    o.marks = [int(x) for x in o.marks.split(',')]
    o.yrow = [int(x) for x in o.yrow.split(',')]
    o.pfcs = [int(x) for x in o.pfcs.split(',')]
    o.fleads = [int(x) for x in o.fleads.split(',')]
    o.trig = [int(x) for x in o.trig.split(',')]
    return o

if __name__ == '__main__':
    o = opts()
    open(o.o, 'w').write(gen(o))
```

```python
import re, sys, argparse
import haz

KN = 'standalone__autoregressive_conv_wavernn__speech_kernel'
NWG = 252
NPROD = 144
ARR = 160 * 288
X_D0, X_O, X_D1 = 0, ARR, 2 * ARR
CNT = 3 * ARR
SCR = CNT + 64
LDS_BYTES = SCR + 18432
NSTEP = 106
WOFF = int(__import__('os').environ.get('WOFF', '0x100000'), 0)
NONCE = 0x10000
DIAG = 0x800000
WS_REC = max(0x1000000, WOFF + 0x400000, int(__import__('os').environ.get('WSREC', '0'), 0))
TAGINC = 0x9E3779B9
R = 12

class Em:
    def __init__(self): self.L = []
    def __call__(self, s): self.L.append(s)
    def text(self): return '\n'.join(self.L) + '\n'

def vr(a, n=1): return f'v{a}' if n == 1 else f'v[{a}:{a+n-1}]'
def sr(a, n=4): return f's[{a}:{a+n-1}]'

def streams():
    out = []
    for typ in (0, 1):
        S = []
        pid = [0]
        def add(arr, chunk, cs, acc):
            for c in cs: S.append((pid[0], arr, chunk, c, acc))
            pid[0] += 1
        if typ == 0:
            add('O', 0, range(16), 'P'); add('O', 1, range(16), 'P'); add('O', 'rem', range(0, 2), 'P')
            for q in range(4): add('D', q, range(16), 'Q')
            add('D', 'rem', range(8), 'Q')
        else:
            add('O', 2, range(16), 'P'); add('O', 3, range(16), 'P'); add('O', 'rem', range(2, 8), 'P')
            for q in range(4): add('D', q, range(15), 'Q')
            add('D', 'rem', range(8), 'Q')
        assert len(S) == NSTEP
        out.append(S)
    return out

S_X, S_W, S_WO, S_WS, S_OUT, S_DBG = 20, 24, 28, 32, 36, 40
WAVE, NB, BAT, PAR, MB, BOFF = 14, 15, 16, 17, 18, 19
PAIR0 = 3
XB = 52
MASK = 53
TW0, TW1, TW2, PAIR, HAS3, MODE, SCRB, TAG, LAST, NPOLL = 44, 45, 54, 55, 56, 57, 58, 59, 60, 61
TS = 62
TYP, WSO = 68, 69
EARLY, XK, YT, FIDX = 90, 91, 92, 93
NOTASK = 94
NTASK = NPROD + 96
FO = 97
C2L, CNL, C60 = 90, 92, 94
ST0 = 70

def srd(e, d, ptr, rec, add=None):
    if add is None:
        e(f's_mov_b32 s{d}, s{ptr}')
        e(f's_and_b32 s{d+1}, s{ptr+1}, 0xffff')
    else:
        e(f's_add_u32 s{d}, s{ptr}, s{add}')
        e(f's_addc_u32 s{d+1}, s{ptr+1}, 0')
        e(f's_and_b32 s{d+1}, s{d+1}, 0xffff')
    e(f's_mov_b32 s{d+2}, {rec}')
    e(f's_mov_b32 s{d+3}, 0x20000')

def gen(o):
    e = Em()
    NSTR = 2 * NSTEP * 1024 + (65536 if o.tagp else 0)
    if o.tagp: o.epoll = 0
    role = ['m']
    def padloop(tag):
        e(f'L_pad{tag}:')
        e('s_memrealtime s[98:99]')
        e('s_waitcnt lgkmcnt(0)')
        e('s_sub_u32 s98, s98, s100')
        e(f's_cmp_lt_u32 s98, {o.padto}')
        e(f's_cbranch_scc1 L_pad{tag}')
    def stamp(k, lvl=1):
        if o.padto and lvl == 1 and o.padev == f'{role[0]}{k}':
            e('s_memrealtime s[100:101]'); e('s_waitcnt lgkmcnt(0)')
        if o.diag == lvl or (o.diag == 4 and lvl == 1): e(f's_memrealtime s[{ST0+2*k}:{ST0+2*k+1}]')
    def dump(nst):
        e('s_waitcnt lgkmcnt(0)')
        e('v_mov_b32 v250, 0')
        for k in range(nst): e(f'v_writelane_b32 v250, s{ST0+2*k}, {k}')
        e(f'v_writelane_b32 v250, s{NPOLL}, 13')
        e(f'v_writelane_b32 v250, s95, 12')
        e(f'v_writelane_b32 v250, s2, 14')
        e('s_getreg_b32 s46, hwreg(HW_REG_XCC_ID)')
        e('v_writelane_b32 v250, s46, 15')
        e(f's_lshl_b32 s46, s2, 3'); e(f's_add_u32 s46, s46, s{WAVE}'); e('s_lshl_b32 s46, s46, 6'); e(f's_add_u32 s46, s46, {DIAG}')
        e('v_lshl_add_u32 v251, v1, 2, s46')
        e('s_mov_b64 exec, 0xffff')
        e(f'buffer_store_dword v250, v251, {sr(S_WS)}, 0 offen')
        e('s_mov_b64 exec, -1')

    e('.amdgcn_target "amdgcn-amd-amdhsa--gfx950"')
    e('.text')
    e(f'.globl {KN}')
    e('.p2align 8')
    e(f'.type {KN},@function')
    e(f'{KN}:')
    e(f's_cmp_ge_u32 s2, {NWG}')
    e('s_cbranch_scc1 L_end')
    stamp(0)
    if o.padto and o.padev != 'm0': e('s_memrealtime s[100:101]')
    e('s_load_dwordx4 s[4:7], s[0:1], 0')
    e('s_load_dwordx4 s[8:11], s[0:1], 16')
    e('s_load_dwordx2 s[12:13], s[0:1], 32')
    e('v_lshrrev_b32 v2, 6, v0')
    e('v_and_b32 v1, 63, v0')
    e(f'v_readfirstlane_b32 s{WAVE}, v2')
    def decode():
        e('s_and_b32 s44, s2, 7')
        e('s_lshr_b32 s45, s2, 3')
        e('s_mul_i32 s46, s44, 31')
        e('s_min_u32 s44, s44, 4')
        e('s_add_u32 s46, s46, s44')
        e('s_add_u32 s46, s46, s45')
        if o.map == 0:
            e('s_mul_hi_u32 s47, s46, 68174085')
            e('s_mul_i32 s48, s47, 63')
            e('s_sub_u32 s48, s46, s48')
            e(f's_mul_hi_u32 s{NB}, s48, 613566757')
            e(f's_mul_i32 s49, s{NB}, 7')
            e('s_sub_u32 s49, s48, s49')
            e('s_mul_i32 s47, s47, 7')
            e('s_add_u32 s47, s47, s49')
        elif o.map == 1:
            e('s_mul_hi_u32 s47, s46, 477218589')
            e('s_mul_i32 s48, s47, 9')
            e(f's_sub_u32 s{NB}, s46, s48')
        else:
            e('s_mul_hi_u32 s47, s46, 34087043')
            e('s_mul_i32 s48, s47, 126')
            e('s_sub_u32 s48, s46, s48')
            e(f's_mul_hi_u32 s{NB}, s48, 306783379')
            e(f's_mul_i32 s49, s{NB}, 14')
            e('s_sub_u32 s49, s48, s49')
            e('s_mul_i32 s47, s47, 14')
            e('s_add_u32 s47, s47, s49')
        e(f's_and_b32 s{PAR}, s47, 1')
        e('s_lshr_b32 s47, s47, 1')
        e('s_cmp_ge_u32 s47, 7')
        e(f's_cselect_b32 s{BOFF}, 1152000, 0')
        e('s_cselect_b32 s48, 7, 0')
        e(f's_sub_u32 s{MB}, s47, s48')
        e(f's_mul_i32 s{XB}, s{MB}, 576')
        e(f's_add_u32 s{XB}, s{XB}, s{PAR}')
        e(f's_sub_u32 s{XB}, s{XB}, 60')
        e(f's_mul_i32 s{XB}, s{XB}, 288')
    e(f's_cmp_ge_u32 s{WAVE}, 4')
    e('s_cbranch_scc1 L_helper')
    if o.cpf:
        e('s_lshr_b32 s44, s2, 3')
        e(f's_lshl_b32 s45, s{WAVE}, 5')
        e('s_add_u32 s44, s44, s45')
        e('s_sub_u32 s44, s44, 26')
        e('s_cmp_ge_u32 s44, 5')
        e('s_cbranch_scc1 L_main')
        e('s_getpc_b64 s[46:47]')
        e('L_pc:')
        e('s_lshl_b32 s44, s44, 13')
        e('v_lshl_add_u32 v2, v1, 7, s44')
        e('v_min_u32 v2, L_codeend-L_pc-4, v2')
        e('global_load_dword v63, v2, s[46:47]')
    if o.hfirst: e('s_branch L_main')
    mark = {'main0': len(e.L)}
    e('L_main:')
    e(f's_mov_b32 s{MASK}, 0xffff0000')
    e(f's_mov_b32 s{NPOLL}, 0')
    if o.diag: e('s_mov_b32 s95, 0')
    decode()

    VXO, VXOR, VXD, VXDR, VWL, VEX, VEXP, VOUT = 30, 31, 32, 33, 34, 35, 36, 37
    VF = 40
    VA = 48
    VCL = 60
    e('v_mul_u32_u24 v3, 3641, v0')
    e('v_lshrrev_b32 v3, 16, v3')
    e('v_mul_u32_u24 v2, 18, v3')
    e('v_sub_u32 v2, v0, v2')
    e('v_mul_u32_u24 v3, 1152, v3')
    e('v_lshl_add_u32 v3, v2, 4, v3')
    e(f's_add_u32 s46, s{XB}, 576')
    e(f'v_add_u32 v{VA}, s46, v3')
    e('v_mov_b32 v5, 16192')
    e('v_mov_b32 v6, 17056')
    for k in range(1, 12):
        e('v_cmp_le_u32 vcc, 14, v2')
        e('v_add_u32 v3, 4, v2')
        e('v_subrev_u32 v4, 14, v2')
        e('v_cndmask_b32 v7, v5, v6, vcc')
        e('v_cndmask_b32 v2, v3, v4, vcc')
        e(f'v_add_u32 v{VA+k}, v{VA+k-1}, v7')
    e(f's_lshl_b32 s50, s{WAVE}, 10')
    e(f's_add_u32 s50, s50, {X_O}')
    e(f's_add_u32 s51, s50, {4096*11}')
    e('s_movk_i32 s49, 4096')
    if o.orev:
        e(f's_bitcmp0_b32 s{NB}, 0')
        e('s_cbranch_scc1 L_fwd')
        for k in range(5): e(f'v_swap_b32 v{VA+k}, v{VA+10-k}')
        e(f's_add_u32 s50, s50, {4096*10}')
        e('s_movk_i32 s49, -4096')
        e('L_fwd:')
    e(f'v_mov_b32 v{VF+1}, {CNT}')
    for r in range(4, 8): e(f'v_mov_b32 v{r}, 0')
    e(f'ds_write_b128 v{VF+1}, v[4:7]')
    e(f'ds_write_b128 v{VF+1}, v[4:7] offset:16')
    e('s_waitcnt lgkmcnt(0)')
    e(f's_load_dword s{TAG}, s[12:13], {NONCE}')
    srd(e, S_X, 4, 1152000, add=BOFF)
    def odma(k):
        e(f's_mov_b32 m0, s{51 if k == 11 else 50}')
        e('s_add_u32 s50, s50, s49')
        e(f'buffer_load_dwordx4 v{VA+k}, {sr(S_X)}, 0 offen lds')
    def etouch():
        e(f'buffer_load_dword v62, v9, {sr(S_X)}, 0 offen')
    if o.mtouch and o.tskip:
        e('s_lshr_b32 s47, s2, 4')
        e('s_lshr_b32 s47, 0x33, s47')
        e('s_lshl_b32 s47, s47, 31')
    if o.mtouch:
        e('v_min_u32 v8, 39, v1')
        e('v_lshrrev_b32 v9, 2, v8')
        e(f's_mul_i32 s46, s{WAVE}, 10')
        e('v_add_u32 v9, s46, v9')
        e(f'v_mul_u32_u24 v9, {4*1152}, v9')
        e('v_and_b32 v8, 3, v8')
        e('v_mul_u32_u24 v8, 92, v8')
        e(f's_and_b32 s46, s{NB}, 3')
        e('s_mul_i32 s46, s46, 1152')
        e(f's_add_u32 s46, s46, s{XB}')
        e('v_add3_u32 v9, v9, v8, s46')
        if o.tskip: e('v_or_b32 v9, s47, v9')
    if o.mtouch == 2: etouch()
    for k in range(o.opre): odma(k)
    e('s_barrier')
    stamp(1)
    if o.mtouch == 3: etouch()
    for k in range(o.opre, 12):
        if k == 11:
            e(f's_cmp_lg_u32 s{WAVE}, 0')
            e('s_cbranch_scc1 L_o11')
        odma(k)
    e('L_o11:')
    if o.mtouch == 1: etouch()
    srd(e, S_WS, 12, WS_REC)
    if o.epoll:
        assert o.mtouch == 1 and o.tskip
        e(f's_and_b32 s{TYP}, s{WAVE}, 1')
        e(f's_lshl_b32 s{FO}, s{TYP}, 13')
        e('s_mov_b32 s96, s47')
        e('s_xor_b32 s46, s47, 0x80000000')
        e(f'v_min_u32 v{VF}, 31, v1')
        e(f'v_lshlrev_b32 v{VF}, 7, v{VF}')
        e(f'v_or_b32 v2, s46, v{VF}')
        e(f'buffer_load_dword v{VF+4}, v2, {sr(S_WS)}, s{FO} offen sc1')
    srd(e, S_OUT, 8, 1152000, add=BOFF)
    srd(e, S_DBG, 10, 256)
    e('v_and_b32 v2, 15, v1')
    e('v_lshrrev_b32 v3, 4, v1')
    e('v_subrev_u32 v5, 4, v2')
    e('v_add_u32 v6, 8, v2')
    e('v_cmp_gt_u32 vcc, 4, v2')
    e('v_cmp_le_u32 s[46:47], 12, v2')
    e(f's_and_b32 s{TYP}, s{WAVE}, 1')
    e(f's_lshr_b32 s48, s{WAVE}, 1')
    e('v_cndmask_b32 v5, v5, v6, vcc')
    e('v_cndmask_b32 v5, v5, v2, s[46:47]')
    e('v_mul_u32_u24 v5, 9, v5')
    e('v_mul_u32_u24 v4, 288, v5')
    e('v_lshl_add_u32 v6, v3, 4, v4')
    e('v_and_b32 v7, 1, v3')
    e('v_lshl_add_u32 v7, v7, 4, v4')
    e('v_lshrrev_b32 v8, 1, v3')
    e('v_mul_u32_u24 v8, 2304, v8')
    e('v_add_u32 v7, v7, v8')
    e('v_add_u32 v7, 256, v7')
    e(f's_mul_i32 s49, s{TYP}, {X_D1}')
    e(f'v_add_u32 v{VXO}, {X_O}, v6')
    e(f'v_add_u32 v{VXOR}, {X_O}, v7')
    e(f'v_add_u32 v{VXD}, s49, v6')
    e(f'v_add_u32 v{VXDR}, s49, v7')
    e('v_lshlrev_b32 v6, 4, v1')
    e(f's_mul_i32 s49, s{WAVE}, 9216')
    e(f's_add_u32 s49, s49, {X_O}')
    e(f'v_add_u32 v{VEX}, s49, v6')
    e(f's_xor_b32 s49, s{WAVE}, 1')
    e('s_mul_i32 s49, s49, 9216')
    e(f's_add_u32 s49, s49, {X_O}')
    e(f'v_add_u32 v{VEXP}, s49, v6')
    e('v_and_b32 v8, 0x39, v1')
    e('v_bfe_u32 v9, v1, 1, 1')
    e('v_lshl_add_u32 v8, v9, 2, v8')
    e('v_bfe_u32 v9, v1, 2, 1')
    e('v_lshl_add_u32 v8, v9, 1, v8')
    e(f'v_lshlrev_b32 v{VWL}, 4, v8')
    e(f's_mul_i32 s49, s{TYP}, 576')
    e(f's_add_u32 s49, s49, s{XB}')
    e(f's_add_u32 s49, s49, {60*288}')
    e(f's_lshl_b32 s50, s{NB}, 5')
    e('s_add_u32 s49, s49, s50')
    e('s_lshl_b32 s50, s48, 4')
    e('s_add_u32 s49, s49, s50')
    e('v_mul_u32_u24 v8, 1152, v5')
    e('v_lshl_add_u32 v8, v3, 2, v8')
    e(f'v_add_u32 v{VOUT}, s49, v8')
    e(f'v_add_u32 v{VOUT+1}, 3456, v{VOUT}')
    e(f'v_add_u32 v{VOUT+2}, 6912, v{VOUT}')
    e(f's_lshl_b32 s49, s{NB}, 1')
    e('s_add_u32 s49, s49, s48')
    e(f's_mul_i32 s49, s49, {NSTR}')
    e(f's_mul_i32 s{WSO}, s{TYP}, {NSTEP*1024}')
    e(f's_add_u32 s{WSO}, s{WSO}, s49')
    e(f's_add_u32 s{WSO}, s{WSO}, {WOFF + (16384 if o.tagp else 0)}')
    if o.tagp:
        e(f's_lshl_b32 s96, s{TYP}, 15')
        e('s_add_u32 s96, s96, s49')
        e(f's_add_u32 s96, s96, {WOFF + 2*NSTEP*1024}')
    e(f's_mov_b32 s{C2L}, 0x4038aa3b'); e(f's_mov_b32 s{C2L+1}, 0x4038aa3b')
    e(f's_mov_b32 s{CNL}, 0xbfb8aa3b'); e(f's_mov_b32 s{CNL+1}, 0xbfb8aa3b')
    e(f's_mov_b32 s{C60}, 0x42700000')
    e(f'v_min_u32 v{VF}, 31, v1')
    e(f'v_lshlrev_b32 v{VF}, 7, v{VF}')
    e(f'v_min_u32 v{VF+6}, 47, v1')
    e(f'v_lshlrev_b32 v{VF+6}, 7, v{VF+6}')
    e(f'v_mov_b32 v{VF+2}, 1')
    e('s_lshl_b32 s46, s48, 2')
    e(f'v_add_u32 v{VF+5}, s46, v{VF+1}')
    e(f's_or_b32 s46, s2, s{WAVE}')
    e('v_or_b32 v2, s46, v1')
    e('v_cmp_eq_u32 vcc, 0, v2')
    e(f'v_mov_b32 v{VCL}, -16')
    e(f'v_mov_b32 v{VCL+1}, -16')
    e(f'v_mov_b32 v3, {NONCE}')
    e(f'v_cndmask_b32 v{VCL}, v{VCL}, 4, vcc')
    e(f'v_cndmask_b32 v{VCL+1}, v{VCL+1}, v3, vcc')
    e(f's_lshl_b32 s{FO}, s{TYP}, 13')
    if o.warmb:
        e(f's_cmp_eq_u32 s{TYP}, 1')
        e('s_cbranch_scc1 L_warmB')
        e('L_warmret:')
    e(f's_waitcnt vmcnt({(1 if o.mtouch == 1 else 0) + o.epoll}) lgkmcnt(0)')
    stamp(2)
    e('s_mov_b64 exec, 1')
    e(f'ds_add_u32 v{VF+1}, v{VF+2} offset:8')
    e('s_mov_b64 exec, -1')
    e(f's_add_u32 s{TAG}, s{TAG}, {TAGINC}')
    e(f'v_mov_b32 v{VF+3}, s{TAG}')
    def flagwait(tag, vaddr, back):
        e(f'L_fw{tag}:')
        if o.diag and len(tag) == 2: e(f's_add_u32 s95, s95, {1 << (5 * int(tag[1]))}')
        e(f'buffer_load_dword v{VF+4}, v{vaddr}, {sr(S_WS)}, s{FO} offen sc1')
        e(f'ds_read_b32 v{VF+7}, v{VF+1} offset:12')
        e(f's_add_u32 s{NPOLL}, s{NPOLL}, 1')
        e('s_waitcnt vmcnt(0) lgkmcnt(0)')
        e(f'v_cmp_ne_u32 vcc, v{VF+3}, v{VF+4}')
        e(f'v_readfirstlane_b32 s46, v{VF+7}')
        e('s_nop 3')
        e(f's_cbranch_vccz {back}')
        e('s_cmp_lg_u32 s46, 0')
        e(f's_cbranch_scc1 {back}')
        e(f's_cmp_lg_u32 s{NPOLL}, {o.maxpoll}')
        e(f's_cbranch_scc1 L_fw{tag}')
        e(f'v_mov_b32 v{VF+7}, 0x10000')
        e('s_mov_b64 exec, 1')
        e(f'ds_add_u32 v{VF+1}, v{VF+7} offset:4')
        e('s_mov_b64 exec, -1')
        e(f's_branch L_fw{tag}')
    if o.epoll:
        e('s_cmp_eq_u32 s96, 0')
        e('s_cbranch_scc1 L_gate')
        e('s_waitcnt vmcnt(0)')
        e(f'v_cmp_ne_u32 vcc, v{VF+3}, v{VF+4}')
        e('s_nop 4')
        e('s_cbranch_vccz L_go')
    if o.gate:
        e('L_gate:')
        e(f'ds_read_b32 v{VF+4}, v{VF+1} offset:8')
        e('s_waitcnt lgkmcnt(0)')
        e(f'v_and_b32 v{VF+4}, 0xffff, v{VF+4}')
        e(f'v_cmp_gt_u32 vcc, 0x400, v{VF+4}')
        e('s_nop 4')
        e('s_cbranch_vccz L_gate2')
        e('s_sleep 1')
        e('s_branch L_gate')
        e('L_gate2:')
    if o.ppoll:
        e(f'buffer_load_dword v{VF+4}, v{VF}, {sr(S_WS)}, s{FO} offen sc1')
        e('L_pp:')
        for a_, b_ in ((VF + 4, 62), (62, VF + 4)):
            e(f's_sleep {o.ppoll}')
            e(f'buffer_load_dword v{b_}, v{VF}, {sr(S_WS)}, s{FO} offen sc1')
            e('s_waitcnt vmcnt(1)')
            e(f'v_cmp_ne_u32 vcc, v{VF+3}, v{a_}')
            e(f's_add_u32 s{NPOLL}, s{NPOLL}, 1')
            e('s_nop 3')
            e('s_cbranch_vccz L_go')
        e(f's_cmp_lt_u32 s{NPOLL}, 40')
        e('s_cbranch_scc1 L_pp')
        e(f's_mov_b32 s{NPOLL}, 0')
    if o.p0plain:
        e(f'buffer_load_dword v{VF+4}, v{VF}, {sr(S_WS)}, s{FO} offen')
        e('s_waitcnt vmcnt(0)')
        e(f'v_cmp_ne_u32 vcc, v{VF+3}, v{VF+4}')
        e('s_nop 4')
        e('s_cbranch_vccz L_go')
    if o.onepoll:
        e(f's_cmp_lt_u32 s{WAVE}, 2')
        e('s_cbranch_scc1 L_fw0')
        e('L_op:')
        e(f'ds_read_b32 v{VF+7}, v{VF+1} offset:8')
        e('s_waitcnt lgkmcnt(0)')
        e(f's_add_u32 s46, s{TYP}, 16')
        e(f'v_lshrrev_b32 v{VF+7}, s46, v{VF+7}')
        e(f'v_and_b32 v{VF+7}, 1, v{VF+7}')
        e(f'v_cmp_eq_u32 vcc, 0, v{VF+7}')
        e('s_nop 4')
        e('s_cbranch_vccnz L_op')
        e('s_branch L_go2')
    if not o.tagp: flagwait('0', VF, 'L_go')
    e('L_go:')
    if o.tagp: e('s_mov_b32 s50, s96')
    if o.onepoll:
        e(f's_lshl_b32 s46, 0x10000, s{TYP}')
        e(f'v_mov_b32 v{VF+7}, s46')
        e('s_mov_b64 exec, 1')
        e(f'ds_or_b32 v{VF+1}, v{VF+7} offset:8')
        e('s_mov_b64 exec, -1')
        e('L_go2:')
    stamp(3)
    e('L_gw:')
    e(f'ds_read_b32 v{VF+7}, v{VF+1} offset:8')
    e('s_waitcnt lgkmcnt(0)')
    e(f'v_and_b32 v{VF+7}, 0xff, v{VF+7}')
    e(f'v_cmp_ne_u32 vcc, 4, v{VF+7}')
    e('s_nop 4')
    e('s_cbranch_vccnz L_gw')
    stamp(4)
    e(f's_setprio {o.mprio}')
    e(f's_cmp_eq_u32 s{TYP}, 1')
    e('s_cbranch_scc1 L_typeB')

    ACC = {'P': 64, 'Q': 100}
    WR, TMP = 136, 224
    XRING = [200 + 4 * i for i in range(6)]
    XWIN = [4 + 4 * i for i in range(6)] + [240 + 4 * i for i in range(4)]
    VC = 28
    PF = o.pf
    GT = 98
    wflags = ' sc1' if o.wsc1 else ''
    for typ, S in enumerate(streams()):
        if typ == 1:
            e('.p2align 6')
            if o.warmb: e('L_warmB:'); e('s_branch L_warmret')
            e('L_typeB:')
        ops = []
        vstart = {}
        lastv = o.vt - 1
        v0 = 0
        G0 = 0
        if o.flat0:
            for g in range(16):
                vstart[g] = len(ops)
                for j in (range(9) if g % 2 == 0 or not o.flatzz else range(8, -1, -1)): ops.append((g, j))
            v0 = G0 = 16
        while v0 <= lastv:
            ch = 1 if v0 < o.chfrom + G0 else min(o.chain, lastv + 1 - v0)
            n0 = len(ops)
            for j in range(8, -1, -1):
                us = range(ch) if j % 2 == 0 else range(ch - 1, -1, -1)
                first_ = [u for u in us if v0 + u - j == 0 or (0 < v0 + u - j < NSTEP and S[v0+u-j][4] == 'Q' and S[v0+u-j-1][4] == 'P')]
                if first_: us = range(ch)
                for u in us:
                    if G0 <= v0 + u - j < NSTEP: ops.append((v0 + u - j, j))
            for u in range(ch): vstart[v0 + u] = n0 + (len(ops) - n0) * u // ch
            v0 += ch
        ntail = len(ops)
        if o.tail:
            for j in range(9):
                for g in range(o.vt - j, NSTEP): ops.append((g, j))
        assert len(ops) == NSTEP * 9 and len(set(ops)) == len(ops)
        N = len(ops)
        def key(n):
            g, j = ops[n]
            pid, arr, ch, c, acc = S[g]
            k = (pid, arr, ch, c + j)
            if n >= ntail and g < GT: k = k + ((n,) if not o.hold else ('h',))
            return k
        first, last = {}, {}
        for n in range(N):
            first.setdefault(key(n), n); last[key(n)] = n
        wfirst, wlast = {}, {}
        for n, (g, j) in enumerate(ops):
            wfirst.setdefault(g, n); wlast[g] = n
        tasks = []
        for k, n0 in first.items():
            win = o.tail and k[2] == 'rem' and k[1] == 'D'
            la = o.xla if n0 < ntail else 6
            if n0 >= ntail and ops[n0][1] == 0: la = o.tla
            elif win: la = 12
            tasks.append([n0 - la, n0 - 1, 'X', k])
        for g in range(NSTEP):
            rel = -100 + g if g < o.pf0 else max(0, wfirst[g] - 9 * PF)
            if o.tagp and g < 16:
                rel = -100 + g if g < 4 else max(0, wfirst[g] - 9 * o.tpf)
                tasks.append([rel, wfirst[g & ~1] - 9, 'W', g])
                continue
            tasks.append([rel, wfirst[g] - 1, 'W', g])
        def at(v, off=0): return vstart[v] + off
        firstD = min(n for n in range(N) if S[ops[n][0]][1] == 'D')
        lastO = max(n for n in range(N) if S[ops[n][0]][1] == 'O')
        lastP = {j: max(n for n in range(N) if ops[n][1] == j and S[ops[n][0]][4] == 'P') for j in range(9)}
        slow = []
        vused = set()
        def check(v, off, cnt, tag):
            tasks.append([at(v - 1, 3), at(v - 1, 8), 'L', (f'ds_read_b32 v{VC}, v{VF+1} offset:{off}', ('c', tag))])
            tasks.append([at(v, 0), at(v, 1), 'C', (f'v_cmp_ne_u32 vcc, {cnt}, v{VC}', ('c', tag))])
            tasks.append([at(v, 6), at(v, 7), 'I', [f's_cbranch_vccnz L_slow{typ}{tag}', f'L_back{typ}{tag}:']])
            slow.append((tag, off, cnt))
            vused.add(v)
            return at(v, 8)
        def add1(pos, off):
            tasks.append([pos, pos + 4, 'A', off])
        vD = [v for v in vstart if vstart[v] <= firstD - o.xla][-1] - 1
        okD = check(vD, 16, 4, 'D')
        assert okD <= firstD - o.xla
        add1(lastO, 20)
        VP = 47
        okR = check(VP, 20, 4, 'R')
        for j in range(9):
            assert lastP[j] + 12 < at(VP + 1 + j, 2)
            tasks.append([at(VP + 1 + j, 2), at(VP + 1 + j, 8), 'L', (f'ds_write_b128 v{VEX}, {vr(ACC["P"]+4*j,4)} offset:{1024*j}', ('pw', j))])
        tasks.append([at(VP + 10, 0), at(VP + 10, 4), 'A', 'pair'])
        VQ = VP + 13
        okP = check(VQ, 'pair', 2, 'P')
        for j in range(9):
            tasks.append([at(VQ + 1 + j, 2), at(VQ + 1 + j, 8), 'L', (f'ds_read_b128 {vr(TMP+4*(j&1),4)}, v{VEXP} offset:{1024*j}', ('pr', j))])
            v = VQ + 2 + j
            pos = at(v, 8 - (j + 2) - 1) if j <= 6 else at(v, 8 - (j - 7) - 1)
            sh = 1 if j >= 7 else 0
            if o.chain > 1:
                own = [n for n in range(N) if ops[n][1] == j]
                pos = [a_ + 10 for a_, b_ in zip(own, own[1:]) if b_ - a_ >= 14 and a_ + 9 >= at(v, 0) ][0]
                sh = 0
                tasks[-1][0] = pos - 9; tasks[-1][1] = pos - 4
                tasks[-1][3] = (f'ds_read_b128 {vr(TMP+4*(j&3),4)}, v{VEXP} offset:{1024*j}', ('pr', j))
            tasks.append([pos - 1 + sh, pos - 1 + sh, 'Q', (j, 0)])
            tasks.append([pos + sh, pos + sh, 'Q', (j, 1)])
        if typ == 0:
            tasks.append([at(64, 4), at(64, 8), 'S', f'buffer_store_dword v{VCL+1}, v{VCL}, {sr(S_DBG)}, 0 offen sc1'])
            tasks.append([at(84, 4), at(84, 8), 'S', f'buffer_store_dword v{VF+3}, v{VCL+1}, {sr(S_WS)}, 0 offen sc1'])
        fslow = []
        kslow = []
        if o.tagp:
            for g in range(0, 16, 2):
                n0 = wfirst[g]
                if g < 4: continue
                tasks.append([n0 - 8, n0 - 7, 'K', g])
                tasks.append([n0 - 2, n0 - 1, 'I', ['s_cmp_lg_u64 s[48:49], 0', f's_cbranch_scc1 L_ks{typ}{g}', f'L_kb{typ}{g}:']])
        passes = {}
        for g in range(NSTEP): passes.setdefault(S[g][0], g)
        need = [(passes[1], VF, 32 + 64 * typ), (32, VF + 6, 128), (passes[4], VF, 176), (passes[5], VF, 208), (passes[6], VF + 6, 240)]
        for ci, (gn, va, idx) in enumerate(need):
            v = gn - o.pfcs[ci] - 1
            while v in vused: v -= 1
            tasks.append([at(v - o.fleads[ci], 4), at(v - o.fleads[ci], 8), 'F', (va, idx, ci)])
            tasks.append([at(v, 0), at(v, 1), 'G', ci])
            tasks.append([at(v, 6), at(v, 7), 'I', [f's_cbranch_vccnz L_fw{typ}{ci}', f'L_fb{typ}{ci}:']])
            fslow.append((ci, va))
            assert v not in vused, v
            for t in tasks:
                if t[2] == 'W' and (t[3] >= gn): t[0] = max(t[0], at(v, 8))
        tasks.append([at(v + 1, 2), at(v + 1, 8), 'A', 4])
        if typ == 0:
            for lvl, v in enumerate(o.trig): tasks.append([at(v, 2), at(v, 8), 'P', lvl + 1])
        tasks.sort(key=lambda t: (t[0], t[1]))
        vq, lq = [], []
        dirty = [False]
        xreg, busy = {}, {}
        wn = [0]
        wr = {}
        lastw = [-100]
        later = []
        BIG = [WR + 4 * i for i in range(16)] + XWIN + [ACC['P'] + 4 * i for i in range(9)]
        for i in range(9): busy[ACC['P'] + 4 * i] = at(VP + 12)
        until = {}
        if o.chain > 1:
            BIG += XRING + [VA, VA + 4, VA + 8]
            for i in range(9):
                BIG.append(ACC['Q'] + 4 * i)
                until[ACC['Q'] + 4 * i] = min(n for n in range(N) if ops[n][1] == i and S[ops[n][0]][4] == 'Q') - 3
        def freeregs(n, end): return [x for x in BIG if busy.get(x, -1) <= n and end < until.get(x, 10**9)]
        def freepairs(n, end):
            f_ = set(freeregs(n, end))
            return [x for x in sorted(f_) if x % 8 == PAR8.get(x, -1) and x + 4 in f_]
        PAR8 = {x: x % 8 for x in list(range(WR, WR + 64, 8)) + [4, 12, 20, 240, 248, 200, 208, 216, 100, 108, 116, 124, VA]}
        def kcheck(g):
            vwait(g + 1)
            for i, gg in enumerate((g, g + 1)):
                a_ = wr[gg] - 2
                em(f'v_bitop3_b32 v{VC+i}, v{a_+1}, v{a_+6}, v{VF+3} bitop3:0x7e')
            em(f'v_or_b32 v{VC}, v{VC}, v{VC+1}')
            em(f'v_cmp_ne_u32 s[48:49], 0, v{VC}')
            kslow.append((g, wr[g] - 2, wr[g + 1] - 2))
        def wok(t, n):
            if t[2] != 'W': return True
            if t[3] != wn[0]: return False
            if o.tagp and t[3] < 16:
                return bool(freepairs(n, wlast[t[3]])) and (n - lastw[0] >= 2 or t[1] - n <= 4)
            free = len(freeregs(n, wlast[t[3]]))
            if t[1] - n <= 9 * 3: return free > 0
            return n - lastw[0] >= o.wgap and free > o.wres
        since = {}
        fill = []
        def em(x):
            e(x)
            if not x.endswith(':'):
                for jj in since: since[jj] += 1
        def lwait(tag):
            if tag not in lq: return
            i = lq.index(tag)
            em(f's_waitcnt lgkmcnt({0 if dirty[0] else len(lq)-1-i})')
            if dirty[0]: lq.clear(); dirty[0] = False
            else: del lq[:i + 1]
        def vwait(g):
            if g not in vq: return
            i = vq.index(g)
            em(f's_waitcnt vmcnt({len(vq)-1-i})')
            del vq[:i + 1]
        def run(t, n):
            kind, p = t[2], t[3]
            if kind == 'X':
                pool = BIG if (o.chain > 1 or p[-1] == 'h' or (p[2] == 'rem' and p[1] == 'D')) else XRING
                r = [x for x in pool if busy.get(x, -1) <= n and last[p] < until.get(x, 10**9)]
                assert r, ('no x register', p, n)
                r = min(r, key=lambda x: (until.get(x, 10**9), busy.get(x, -1)))
                busy[r] = last[p]; xreg[p] = r
                arr, ch, s_ = p[1], p[2], p[3]
                if o.nolds and n > 9 * 30: return
                if ch == 'rem': em(f'ds_read_b128 {vr(r,4)}, v{VXOR if arr == "O" else VXDR} offset:{288*s_}')
                else: em(f'ds_read_b128 {vr(r,4)}, v{VXO if arr == "O" else VXD} offset:{64*ch+288*s_}')
                lq.append(p)
            elif kind == 'W':
                g = p
                if o.tagp and g < 16:
                    r = min(freepairs(n, wlast[g]), key=lambda x: (until.get(x, 10**9), busy.get(x, -1)))
                    busy[r] = busy[r + 4] = wlast[g]; wr[g] = r + 2
                    assert g == wn[0]; wn[0] += 1
                    lastw[0] = n
                    em(f'buffer_load_dwordx4 {vr(r,4)}, v{VWL}, {sr(S_WS)}, s50 offen offset:{2048*(g%2)}')
                    em(f'buffer_load_dwordx4 {vr(r+4,4)}, v{VWL}, {sr(S_WS)}, s50 offen offset:{2048*(g%2)+1024}')
                    vq.append(('h', g)); vq.append(g)
                    if g % 2 == 1:
                        if n < 0: em('s_add_u32 s50, s50, 4096')
                        else: later.append('s_add_u32 s50, s50, 4096')
                    return
                r = min(freeregs(n, wlast[g]), key=lambda x: (until.get(x, 10**9), busy.get(x, -1)))
                busy[r] = wlast[g]; wr[g] = r
                assert g == wn[0]; wn[0] += 1
                lastw[0] = n
                if o.now and g > 40: return
                if o.wsame and g > 40:
                    em(f'buffer_load_dwordx4 {vr(r,4)}, v{VWL}, {sr(S_WS)}, s{WSO} offen offset:{1024*(g%4)}{wflags}'); vq.append(g); return
                em(f'buffer_load_dwordx4 {vr(r,4)}, v{VWL}, {sr(S_WS)}, s{WSO} offen offset:{1024*(g%4)}{wflags}')
                if g % 4 == 3:
                    if n < 0: em(f's_add_u32 s{WSO}, s{WSO}, 4096')
                    else: later.append(f's_add_u32 s{WSO}, s{WSO}, 4096')
                vq.append(g)
            elif kind == 'L':
                em(p[0].replace('offset:pair', 'offset:24').replace(f'v{VF+1} offset:24', f'v{VF+5} offset:24')); lq.append(p[1])
            elif kind == 'C':
                lwait(p[1]); em(p[0])
            elif kind == 'I':
                for x in p: em(x)
            elif kind == 'A':
                em('s_mov_b64 exec, 1')
                if p == 'pair': em(f'ds_add_u32 v{VF+5}, v{VF+2} offset:24')
                else: em(f'ds_add_u32 v{VF+1}, v{VF+2} offset:{p}')
                em('s_mov_b64 exec, -1')
                lq.append(('a', p))
            elif kind == 'Q':
                p, hf = p
                lwait(('pr', p))
                q = ACC['Q'] + 4 * p; t_ = TMP + 4 * (p & (3 if o.chain > 1 else 1))
                for i in (2 * hf, 2 * hf + 1): em(f'v_add_f32 v{q+i}, v{q+i}, v{t_+i}')
            elif kind == 'S':
                assert not any(isinstance(x, tuple) and x[0] == 's' for x in vq)
                em(p); vq.append(('s', n))
            elif kind == 'F':
                em(f's_mov_b32 s{FO}, {128*p[1]}')
                em(f'buffer_load_dword v{VF+4}, v{p[0]}, {sr(S_WS)}, s{FO} offen {o.fflags}'); vq.append(('f', p[2]))
            elif kind == 'K':
                kcheck(p)
            elif kind == 'G':
                vwait(('f', p)); em(f'v_cmp_ne_u32 vcc, v{VF+3}, v{VF+4}')
            elif kind == 'P':
                em(f'v_mov_b32 v{VF+7}, {p}')
                em('s_mov_b64 exec, 1')
                em(f'ds_max_u32 v{VF+1}, v{VF+7}')
                em('s_mov_b64 exec, -1')
                lq.append(('p', p))
        def epi(j, pk):
            q = ACC['Q'] + 4 * j
            t = TMP + 8 * (j & 1)
            I = []
            if pk:
                I.append(f'v_pk_mul_f32 {vr(t,2)}, {vr(q,2)}, s[{C2L}:{C2L+1}]')
                I.append(f'v_pk_mul_f32 {vr(t+2,2)}, {vr(q+2,2)}, s[{CNL}:{CNL+1}]')
            else:
                for i in (0, 1): I.append(f'v_mul_f32 v{t+i}, s{C2L}, v{q+i}')
                for i in (2, 3): I.append(f'v_mul_f32 v{t+i}, s{CNL}, v{q+i}')
            I.append(f'v_min_f32 v{t}, s{C60}, v{t}')
            I.append(f'v_min_f32 v{t+1}, s{C60}, v{t+1}')
            for i in (0, 1, 2, 3): I.append(f'v_exp_f32 v{t+i}, v{t+i}')
            if pk:
                I.append(f'v_pk_add_f32 {vr(t+4,2)}, {vr(t,2)}, 1.0 op_sel_hi:[1,0]')
                I.append(f'v_pk_add_f32 {vr(t+6,2)}, {vr(t,2)}, -1.0 op_sel_hi:[1,0]')
                I.append(f'v_pk_fma_f32 {vr(t+4,2)}, {vr(t+4,2)}, {vr(t+2,2)}, {vr(t+4,2)}')
            else:
                for i in (0, 1): I.append(f'v_add_f32 v{t+4+i}, 1.0, v{t+i}')
                for i in (0, 1): I.append(f'v_fma_f32 v{t+4+i}, v{t+4+i}, v{t+2+i}, v{t+4+i}')
            I.append(f'v_rcp_f32 v{t+4}, v{t+4}')
            I.append(f'v_rcp_f32 v{t+5}, v{t+5}')
            if pk:
                I.append('s_nop 0')
                I.append(f'v_pk_mul_f32 {vr(t+6,2)}, {vr(t+6,2)}, {vr(t+4,2)}')
            else:
                for i in (0, 1): I.append(f'v_add_f32 v{t+6+i}, -1.0, v{t+i}')
                for i in (0, 1): I.append(f'v_mul_f32 v{t+6+i}, v{t+6+i}, v{t+4+i}')
            I.append(f'v_cvt_pk_bf16_f32 v{q}, v{t+6}, v{t+7}')
            I.append(f'buffer_store_dword v{q}, v{VOUT + j//3}, {sr(S_OUT)}, 0 offen offset:{1152*(j%3)} {o.oflags if j < o.oj else ""}')
            return I
        def cost(x): return 2 if x.startswith(('v_exp', 'v_rcp', 'buffer')) else 1
        while tasks and tasks[0][0] < 0: run(tasks.pop(0), -1)
        if o.tagp:
            for g in (0, 2):
                vwait(g + 1)
                for gg in (g + 4, g + 5):
                    t_ = [t for t in tasks if t[2] == 'W' and t[3] == gg][0]
                    tasks.remove(t_); run(t_, -1)
                kcheck(g)
                em('s_nop 2')
                em('s_cmp_lg_u64 s[48:49], 0')
                em(f's_cbranch_scc1 L_ks{typ}{g}')
                em(f'L_kb{typ}{g}:')
        inv = {n: v for v, n in vstart.items()}
        lastop = {j: max(n for n in range(N) if ops[n][1] == j) for j in range(9)}
        for n, (g, j) in enumerate(ops):
            if n in inv and o.padto and o.padev == 'm5' and inv[n] == o.padstep:
                e('s_memrealtime s[100:101]'); dirty[0] = True
            if n in inv and o.diag:
                v = inv[n]
                if o.diag == 2 and v in o.marks:
                    kk = o.marks.index(v)
                    e(f's_memtime s[{ST0+2*kk}:{ST0+2*kk+1}]'); dirty[0] = True
                if o.diag in (1, 4) and v == 33: stamp(5); stamp(6); dirty[0] = True
            k = key(n)
            assert k in xreg, (k, n)
            lwait(k); vwait(g)
            acc = S[g][4]
            d = ACC[acc] + 4 * j
            if g == 0: cs = '0'
            elif acc == 'Q' and S[g-1][4] == 'P': cs = vr(ACC['P'] + 4 * j, 4)
            else: cs = vr(d, 4)
            em(f'v_mfma_f32_16x16x32_bf16 {vr(d,4)}, {vr(wr[g],4)}, {vr(xreg[k],4)}, {cs}' if not o.swapab else f'v_mfma_f32_16x16x32_bf16 {vr(d,4)}, {vr(xreg[k],4)}, {vr(wr[g],4)}, {cs}')
            if n == lastop[j]: since[j] = 0
            while later: em(later.pop(0))
            budget = 2
            TC = {'X': 1, 'W': 2, 'L': 2, 'C': 1, 'I': 0, 'A': 1, 'Q': 2, 'S': 2, 'F': 2, 'G': 1, 'P': 2, 'K': 2}
            while True:
                ready = [t for t in tasks if t[0] <= n and wok(t, n)]
                if not ready: break
                t = min(ready, key=lambda t: t[1])
                assert t[1] >= n, ('late', t, n)
                if TC[t[2]] > budget and t[1] > n:
                    fit = [u for u in ready if TC[u[2]] <= budget]
                    if not fit: break
                    t = min(fit, key=lambda t: t[1])
                tasks.remove(t); run(t, n); budget -= TC[t[2]]
            for jj in sorted(since):
                if 8 <= since[jj] < 10**6:
                    fill += epi(jj, False); since[jj] = 10**6
            budget += o.nfill - 2
            while fill and budget >= cost(fill[0]):
                budget -= cost(fill[0])
                if fill[0].startswith('buffer_store'):
                    q_ = int(re.match(r'buffer_store_dword v(\d+)', fill[0]).group(1))
                    until.pop(q_, None); busy[q_] = n + 2
                em(fill.pop(0))
            assert all(t[1] > n for t in tasks), ('late', n, [t for t in tasks if t[1] <= n])
        assert not tasks
        stamp(7)
        while fill: em(fill.pop(0))
        for jj in [jj for jj in sorted(since) if since[jj] < 10**6]:
            if since[jj] < 8: em(f's_nop {8-since[jj]-1}')
            for x in epi(jj, True): em(x)
        stamp(8)
        if o.padto and o.padev[0] == 'm': padloop(typ)
        if o.diag == 1:
            e('s_waitcnt vmcnt(0)')
            stamp(9)
            dump(10)
        if o.diag == 2:
            kk = len(o.marks)
            e(f's_memtime s[{ST0+2*kk}:{ST0+2*kk+1}]')
            dump(10)
        e('s_endpgm')
        for tag, off, cnt in slow:
            e(f'L_slow{typ}{tag}:')
            e(f'ds_read_b32 v{VC}, v{VF+5 if off == "pair" else VF+1} offset:{24 if off == "pair" else off}')
            e('s_waitcnt lgkmcnt(0)')
            e(f'v_cmp_ne_u32 vcc, {cnt}, v{VC}')
            e('s_nop 4')
            e(f's_cbranch_vccnz L_slow{typ}{tag}')
            e(f's_branch L_back{typ}{tag}')
        for ci, va in fslow: flagwait(f'{typ}{ci}', va, f'L_fb{typ}{ci}')
        for g, a0_, a1_ in kslow:
            e(f'L_ks{typ}{g}:')
            if o.diag: e(f's_add_u32 s95, s95, {1 << 25}')
            e(f'ds_read_b32 v{VF+7}, v{VF+1} offset:12')
            e(f's_add_u32 s47, s96, {2048*g}')
            e('s_waitcnt lgkmcnt(0)')
            for i, a_ in enumerate((a0_, a0_ + 4, a1_, a1_ + 4)):
                e(f'buffer_load_dwordx4 {vr(a_,4)}, v{VWL}, {sr(S_WS)}, s47 offen offset:{1024*i} sc1')
            e(f'v_readfirstlane_b32 s46, v{VF+7}')
            e(f's_add_u32 s{NPOLL}, s{NPOLL}, 1')
            e('s_waitcnt vmcnt(0)')
            e('s_cmp_lg_u32 s46, 0')
            e(f's_cbranch_scc1 L_kb{typ}{g}')
            e(f'v_bitop3_b32 v{VC}, v{a0_+1}, v{a0_+6}, v{VF+3} bitop3:0x7e')
            e(f'v_bitop3_b32 v{VC+1}, v{a1_+1}, v{a1_+6}, v{VF+3} bitop3:0x7e')
            e(f'v_or_b32 v{VC}, v{VC}, v{VC+1}')
            e(f'v_cmp_ne_u32 s[48:49], 0, v{VC}')
            e('s_nop 2')
            e('s_cmp_eq_u64 s[48:49], 0')
            e(f's_cbranch_scc1 L_kb{typ}{g}')
            e(f's_cmp_lg_u32 s{NPOLL}, {o.maxpoll}')
            e(f's_cbranch_scc1 L_ks{typ}{g}')
            e(f'v_mov_b32 v{VF+7}, 0x10000')
            e('s_mov_b64 exec, 1')
            e(f'ds_add_u32 v{VF+1}, v{VF+7} offset:4')
            e('s_mov_b64 exec, -1')
            e(f's_branch L_ks{typ}{g}')

    mark['help0'] = len(e.L)
    if not o.hfirst: e('.p2align 6')
    e('L_helper:')
    role[0] = 'h'
    e(f's_setprio {o.hprio}')
    e(f's_sub_u32 s{TW0}, s{WAVE}, 4')
    e(f's_mov_b32 s{TW1}, s{WAVE}')
    e(f's_sub_u32 s{PAIR}, s2, {NPROD}')
    e(f's_cselect_b32 s{PAIR}, s2, s{PAIR}')
    e(f's_mov_b32 s{MODE}, 0')
    e(f's_mov_b32 s{NOTASK}, s2')
    e(f's_mov_b32 s{HAS3}, s{TW0}')
    e(f's_lshl_b32 s{SCRB}, s{TW0}, 12')
    e(f's_add_u32 s{SCRB}, s{SCRB}, {SCR}')
    e('L_prod:')
    T = [(28, TW0, 2, 52, 0), (36, TW1, 4, 53, 2048), (44, TW2, 6, 54, 16384)]
    c, kp, q, cc, kk, t = 46, 47, 48, 49, 50, 51
    b = TS
    e('v_mov_b32 v19, 4320')
    e('v_and_b32 v23, 3, v1')
    e('v_lshrrev_b32 v24, 3, v1')
    e('v_mul_u32_u24 v24, 576, v24')
    e('v_bfe_u32 v25, v1, 2, 1')
    e('v_mul_u32_u24 v25, 288, v25')
    e('v_add_u32 v24, v24, v25')
    for (vb, sw, vl, vs, so) in T:
        e(f'v_lshl_add_u32 v8, s{sw}, 2, v23' if sw != TW2 else 'v_add_u32 v8, 32, v23')
        e('v_cmp_le_u32 vcc, 18, v8')
        e(f'v_lshl_add_u32 v{vl}, v8, 4, v24')
        e(f'v_add_u32 v9, v{vl}, v19')
        e(f'v_cndmask_b32 v{vl}, v{vl}, v9, vcc')
    e(f's_and_b32 s{c}, s{PAIR}, 15')
    e(f's_lshr_b32 s{kp}, s{PAIR}, 4')
    e(f's_mul_i32 s{b}, s{c}, 165888')
    e(f's_mul_i32 s{t}, s{kp}, 9216')
    e(f's_add_u32 s{b}, s{b}, s{t}')
    e(f's_add_u32 s{b+1}, s{b}, 82944')
    e(f's_mov_b32 s{S_W+2}, 2571264')
    e(f's_mov_b32 s{S_W+3}, 0x20000')
    e(f's_mov_b32 s{S_WO+3}, 0x20000')
    e(f's_cmp_lg_u32 s{c}, 15')
    e(f's_cselect_b32 s{S_WO+2}, 2571264, 0')
    e(f's_mov_b32 m0, s{SCRB}')
    e('s_waitcnt lgkmcnt(0)')
    e(f's_mov_b32 s{S_W}, s6')
    e(f's_and_b32 s{S_W+1}, s7, 0xffff')
    e(f's_mov_b32 s{S_WO}, s6')
    e(f's_and_b32 s{S_WO+1}, s7, 0xffff')
    e(f's_cmp_ge_u32 s{NOTASK}, {NTASK}')
    e('s_cbranch_scc1 L_a3')
    def cond3(lbl):
        e(f's_cmp_lg_u32 s{HAS3}, 0')
        e(f's_cbranch_scc1 {lbl}')
    for ti, (vb, sw, vl, vs, so) in enumerate(T):
        if ti == 2: cond3('L_a3')
        if ti == 1: e('s_addk_i32 m0, 1024'); e('s_nop 0')
        e(f'buffer_load_dwordx4 v{vl}, {sr(S_W)}, s{b} offen lds')
        e('s_addk_i32 m0, 1024')
        e('s_nop 0')
        e(f'buffer_load_dwordx4 v{vl}, {sr(S_WO)}, s{b+1} offen lds')
        if ti == 1: e(f's_addk_i32 m0, {16384-3072}')
    e('L_a3:')
    stamp(1)
    e(f's_cmp_lg_u32 s{MODE}, 0')
    e('s_cbranch_scc1 L_a4')
    e(f's_load_dword s{TAG}, s[12:13], {NONCE}')
    e(f's_lshr_b32 s{EARLY}, 0x33, s{kp}')
    e(f's_and_b32 s{EARLY}, s{EARLY}, 1')
    e(f's_sub_u32 s{XK}, 2, s{EARLY}')
    e(f's_lshl_b32 s{t}, s{kp}, 1')
    e(f's_lshr_b32 s{YT}, {(3<<12)+(3<<14)+(3<<16)}, s{t}')
    e(f's_and_b32 s{YT}, s{YT}, 3')
    e(f's_lshr_b32 s{t}, s{kp}, 1')
    e(f's_cmp_ge_u32 s2, {NPROD}')
    e(f's_cselect_b32 s{EARLY}, 0, s{EARLY}')
    e(f's_cselect_b32 s{XK}, 3, s{XK}')
    e(f's_cselect_b32 s{YT}, s{t}, s{YT}')
    e(f's_cmp_ge_u32 s2, {NPROD+32}')
    e(f's_cselect_b32 s{XK}, 0, s{XK}')
    e(f's_cmp_ge_u32 s2, {NTASK}')
    e(f's_cselect_b32 s{YT}, 0, s{YT}')
    if not o.b0early:
        e(f's_cmp_lg_u32 s{EARLY}, 0')
        e('s_cbranch_scc1 L_a4')
    e('s_barrier')
    e('L_a4:')
    e(f's_mov_b32 s{MASK}, 0xffff0000')
    e(f's_mov_b32 s{NPOLL}, 0')
    srd(e, S_WS, 12, WS_REC)
    srd(e, S_DBG, 10, 256)
    e(f'v_mov_b32 v10, {CNT}')
    e(f'v_mov_b32 v20, {(256 - 18*NSTR) & 0xffffffff}')
    e(f'v_mov_b32 v26, {NSTR}')
    e('v_bfe_u32 v21, v1, 2, 2')
    e('v_lshlrev_b32 v21, 7, v21')
    e('v_and_b32 v22, 1, v1')
    e('v_lshl_add_u32 v21, v22, 6, v21')
    e('v_bfe_u32 v22, v1, 1, 1')
    e('v_lshl_add_u32 v21, v22, 3, v21')
    e('v_lshrrev_b32 v22, 4, v1')
    e('v_lshl_add_u32 v21, v22, 4, v21')
    e(f'v_add_u32 v21, s{SCRB}, v21')
    e('v_and_b32 v25, 15, v1')
    e('v_lshlrev_b32 v25, 4, v25')
    for (vb, sw, vl, vs, so) in T:
        e(f'v_lshl_add_u32 v8, s{sw}, 2, v22' if sw != TW2 else 'v_add_u32 v8, 32, v22')
        e('v_cmp_le_u32 vcc, 18, v8')
        e(f'v_mad_u32_u24 v{vs}, v8, v26, v25')
        e(f'v_add_u32 v9, v{vs}, v20')
        e(f'v_cndmask_b32 v{vs}, v{vs}, v9, vcc')
    if o.tagp:
        e(f's_cmp_eq_u32 s{WAVE}, 4')
        e(f's_cselect_b32 s{t}, 1, s{EARLY}')
        e(f's_cmp_ge_u32 s{NOTASK}, {NTASK}')
        e(f's_cselect_b32 s{t}, 0, s{t}')
        e(f's_cmp_lg_u32 s{t}, 0')
        e(f's_cselect_b32 s{t}, 4, -16')
        e(f'v_mov_b32 v9, s{t}')
        e('s_waitcnt lgkmcnt(0)')
        e('s_mov_b64 exec, 1')
        e(f'buffer_load_dword v27, v9, {sr(S_DBG)}, 0 offen sc1')
        e('s_mov_b64 exec, -1')
        e(f's_lshr_b32 s97, 0x33, s{kp}')
        e('s_and_b32 s97, s97, 1')
        e(f's_lshr_b32 s96, s{kp}, 2')
        e('s_lshl_b32 s96, s96, 4')
        e(f's_add_u32 s96, s96, s{c}')
        e('s_lshl_b32 s96, s96, 2')
        e(f's_and_b32 s{t}, s{kp}, 1')
        e(f's_add_u32 s96, s96, s{t}')
        e('s_lshl_b32 s96, s96, 9')
        e(f's_add_u32 s96, s96, {WOFF + 2*NSTEP*1024}')
    e(f's_lshr_b32 s{q}, s{kp}, 1')
    e(f's_and_b32 s{cc}, s{c}, 7')
    e(f's_lshr_b32 s{kk}, s{c}, 3')
    e(f's_and_b32 s{t}, s{kp}, 1')
    e(f's_cmp_eq_u32 s{kp}, 8')
    e(f's_cselect_b32 s{cc}, s{cc}, s{c}')
    e(f's_cselect_b32 s{kk}, s{kk}, s{t}')
    e(f's_lshl_b32 s{kk}, s{kk}, 9')
    e(f's_add_u32 s{kk}, s{kk}, {WOFF}')
    e(f's_lshl_b32 s{t}, s{q}, 4')
    e(f's_add_u32 s{b+2}, s{t}, s{cc}')
    e(f's_sub_u32 s{b+3}, s{b+2}, s{q}')
    e(f's_cmp_ge_u32 s{q}, 2')
    e(f's_cselect_b32 s{b+4}, 74, 0')
    e(f's_add_u32 s{b+4}, s{b+4}, s{b+2}')
    e(f's_cmp_lt_u32 s{cc}, 2')
    e(f's_cselect_b32 s{t}, 32, 136')
    e(f's_add_u32 s{t}, s{t}, s{cc}')
    e(f's_cmp_eq_u32 s{kp}, 8')
    e(f's_cselect_b32 s{b+4}, s{t}, s{b+4}')
    e(f's_add_u32 s{b+2}, s{b+2}, 34')
    e(f's_add_u32 s{b+3}, s{b+3}, 144')
    for k in (2, 3, 4):
        e(f's_lshl_b32 s{b+k}, s{b+k}, 10')
        e(f's_add_u32 s{b+k}, s{b+k}, s{kk}')
    e(f's_cmp_eq_u32 s{kp}, 8')
    e(f's_cselect_b32 s{t}, 1, 2')
    e(f's_cmp_eq_u32 s{c}, 15')
    e(f's_cselect_b32 s{b+5}, s{t}, 0')
    e(f's_lshl_b32 s46, s{WAVE}, 2')
    e(f's_add_u32 s46, s46, {CNT+16}')
    e('v_mov_b32 v55, s46')
    if o.tagp:
        e('s_waitcnt vmcnt(1)')
        stamp(2)
        e(f's_cmp_ge_u32 s{NOTASK}, {NTASK}')
        e('s_cbranch_scc1 L_x9')
    else:
        e('v_mov_b32 v27, 0')
        e('v_mov_b32 v9, 4')
        e('s_waitcnt vmcnt(0) lgkmcnt(0)')
        stamp(2)
        e(f's_cmp_ge_u32 s{NOTASK}, {NTASK}')
        e('s_cbranch_scc1 L_x9')
        e(f's_cmp_lg_u32 s{WAVE}, 4')
        e('s_cbranch_scc1 L_a5')
        e('s_mov_b64 exec, 1')
        e(f'buffer_load_dword v27, v9, {sr(S_DBG)}, 0 offen sc1')
        e('s_mov_b64 exec, -1')
        e('L_a5:')
    for (vb, sw, vl, vs, so) in T:
        for tap in range(2):
            for half in range(2):
                e(f'ds_read_b64_tr_b16 {vr(vb+4*tap+2*half,2)}, v21 offset:{so+1024*tap+512*half}')
    nlab = [0]
    def st01(vb, vs):
        nlab[0] += 1
        e(f'buffer_store_dwordx4 {vr(vb,4)}, v{vs}, {sr(S_WS)}, s{b+2} offen sc1')
        e(f's_cmp_eq_u32 s{b+5}, 2')
        e(f's_cbranch_scc1 L_skip{nlab[0]}')
        e(f'buffer_store_dwordx4 {vr(vb+4,4)}, v{vs}, {sr(S_WS)}, s{b+3} offen sc1')
        e(f'L_skip{nlab[0]}:')
    def st01all(lbl):
        st01(T[0][0], T[0][3]); st01(T[1][0], T[1][3])
        cond3(lbl)
        st01(T[2][0], T[2][3])
    def dosum(vb, tb, ob):
        for i in range(8):
            e(f'v_lshlrev_b32 v{tb+2*i}, 16, v{vb+i}')
            e(f'v_and_b32 v{tb+2*i+1}, s{MASK}, v{vb+i}')
        for i in range(4):
            e(f'v_pk_add_f32 {vr(tb+2*i,2)}, {vr(tb+2*i,2)}, {vr(tb+8+2*i,2)}')
        for i in range(4):
            e(f'v_cvt_pk_bf16_f32 v{ob+i}, v{tb+2*i}, v{tb+2*i+1}')
    def ldswait(off, cmp, operand, tag, slp):
        e(f'L_lw{tag}:')
        e(f'ds_read_b32 v11, v10 offset:{off}')
        e('s_waitcnt lgkmcnt(0)')
        e('v_and_b32 v11, 0xff, v11')
        e(f'v_cmp_{cmp}_u32 vcc, {operand}, v11')
        e('s_nop 4')
        e(f's_cbranch_vccnz L_lx{tag}')
        e(f's_sleep {slp}')
        e(f's_branch L_lw{tag}')
        e(f'L_lx{tag}:')
    SOR = lambda ti: (210 + 8 * ti) if o.tagp else (240 + 4 * ti)
    e(f's_or_b32 s46, s{EARLY}, s{MODE}')
    e(f's_cmp_eq_u32 s{XK}, 2')
    e('s_cselect_b32 s47, 1, s46')
    if o.xl: e('s_mov_b32 s46, s47')
    e('s_cmp_eq_u32 s47, 0')
    e('s_cbranch_scc1 L_x9')
    for ti, (vb, sw, vl, vs, so) in enumerate(T):
        if ti == 2: cond3('L_x3')
        e(f's_waitcnt lgkmcnt({8-4*ti})')
        dosum(vb, 64 + 16 * ti, SOR(ti))
        e('s_cmp_eq_u32 s46, 0')
        e(f's_cbranch_scc1 L_x5{ti}')
        if o.tagp:
            e('s_cmp_eq_u32 s97, 0')
            e(f's_cbranch_scc1 L_x6{ti}')
            if ti == 0:
                e('s_waitcnt vmcnt(0)')
                e('v_readfirstlane_b32 s48, v27')
                e(f's_add_u32 s49, s{TAG}, {TAGINC}')
                e('s_not_b32 s47, s49')
                e(f's_or_b32 s48, s48, s{MODE}')
                e('s_cselect_b32 s49, s47, s49')
            e(f'v_mov_b32 v{SOR(ti)-1}, s49')
            e(f'v_mov_b32 v{SOR(ti)+4}, s49')
            e(f'buffer_store_dwordx4 {vr(SOR(ti)-2,4)}, v{vs}, {sr(S_WS)}, s96 offen sc1')
            e(f'buffer_store_dwordx4 {vr(SOR(ti)+2,4)}, v{vs}, {sr(S_WS)}, s96 offen offset:1024 sc1')
            e(f's_branch L_x5{ti}')
            e(f'L_x6{ti}:')
        e(f'buffer_store_dwordx4 {vr(SOR(ti),4)}, v{vs}, {sr(S_WS)}, s{b+4} offen sc1')
        e(f'L_x5{ti}:')
    e('L_x3:')
    e(f's_cmp_eq_u32 s{MODE}, 0')
    e('s_cbranch_scc1 L_x9')
    e('L_x2:')
    e('s_waitcnt lgkmcnt(0)')
    st01all('L_x4')
    e('L_x4:')
    e(f's_cmp_eq_u32 s{MODE}, 0')
    e('s_cbranch_scc1 L_x9')
    e('s_waitcnt vmcnt(0)')
    e(f's_add_u32 s{PAIR}, s{PAIR}, 1')
    e(f's_cmp_lt_u32 s{PAIR}, {NPROD}')
    e('s_cbranch_scc1 L_prod')
    e('v_mov_b32 v11, 1')
    e('ds_write_b32 v10, v11 offset:12')
    e('s_endpgm')
    e('L_x9:')
    if o.tagp:
        e(f's_cmp_eq_u32 s{EARLY}, 0')
        e('s_cbranch_scc1 L_x10')
        e('s_barrier')
        e('L_x10:')
    stamp(3)
    decode()
    e('v_subrev_u32 v4, 256, v0')
    e('v_min_u32 v4, 251, v4')
    e('v_mul_u32_u24 v3, 3641, v4')
    e('v_lshrrev_b32 v3, 16, v3')
    e('v_mul_u32_u24 v2, 18, v3')
    e('v_sub_u32 v2, v4, v2')
    e(f'v_mul_u32_u24 v3, {R}, v3')
    e(f'v_min_u32 v3, {160-R}, v3')
    e('v_mul_u32_u24 v4, 1152, v3')
    e('v_lshl_add_u32 v4, v2, 4, v4')
    e(f'v_add_u32 v12, s{XB}, v4')
    e('v_mul_u32_u24 v18, 288, v3')
    e('v_lshl_add_u32 v18, v2, 4, v18')
    e(f'v_add_u32 v19, {X_D1}, v18')
    srd(e, S_X, 4, 1152000, add=BOFF)
    e(f's_add_u32 s46, s{TAG}, {TAGINC}')
    e('v_mov_b32 v56, s46')
    e('s_lshl_b32 s46, s2, 7')
    e('v_mov_b32 v58, s46')
    e(f's_add_u32 s46, s{PAIR}, {NPROD}')
    e('s_lshl_b32 s46, s46, 7')
    e('v_mov_b32 v59, s46')
    def publish(slot, vflag, tag, first, n=0):
        e('s_mov_b64 exec, 1')
        e(f's_waitcnt vmcnt({n})')
        if first: stamp(4)
        if o.padto and tag == 'x': stamp(12)
        e('v_cmp_ne_u32 vcc, 0, v27')
        e('v_not_b32 v57, v56')
        e('s_nop 0')
        e('v_cndmask_b32 v57, v56, v57, vcc')
        e(f'ds_write_b32 v55, v57 offset:{slot}')
        e(f'ds_read_b128 v[20:23], v10 offset:{32+slot}')
        e('s_waitcnt lgkmcnt(0)')
        for i in range(4): e(f'v_xor_b32 v{20+i}, v{20+i}, v56')
        e('v_or3_b32 v20, v20, v21, v22')
        e('v_or_b32 v20, v20, v23')
        e('v_cmp_eq_u32 vcc, 0, v20')
        e('s_and_b64 exec, exec, vcc')
        e(f's_cbranch_execz L_nl{tag}')
        e(f'buffer_store_dword v56, v{vflag}, {sr(S_WS)}, 0 offen sc1')
        e(f'L_nl{tag}:')
        e('s_mov_b64 exec, -1')
    if o.tagp and o.xl:
        e(f's_cmp_lg_u32 s{XK}, 2')
        e('s_cbranch_scc1 L_noflag')
        publish(0, 58, 'x', True)
        e(f's_mov_b32 s{XK}, 0')
    elif not o.tagp:
        e(f's_cmp_eq_u32 s{EARLY}, 0')
        e('s_cbranch_scc1 L_noflag')
        publish(0, 58, 'x', True)
        if not o.b0early: e('s_barrier')
    e('L_noflag:')
    e(f's_setprio {o.hprio2}')
    RAW, ORAW = 64, 120
    EU = [184, 192]
    OU, DT, DO = 200, 208, 216
    xi = [0]
    NL = R + 1
    hq = []
    def eload():
        k = xi[0]
        if k >= NL: return
        a_ = 12
        if k:
            a_ = 13 + (k & 3)
            e(f'v_add_u32 v{a_}, {1152*k}, v12')
        e(f'buffer_load_dwordx4 {vr(RAW+4*k,4)}, v{a_}, {sr(S_X)}, 0 offen')
        xi[0] += 1
        hq.append(('e', k))
    if o.etouch:
        e(f's_cmp_lt_u32 s2, {NTASK}')
        e('s_cbranch_scc1 L_net')
        e(f's_and_b32 s46, s{NB}, 1')
        e(f's_mul_i32 s46, s46, {1152*6}')
        e('v_add_u32 v12, s46, v12')
        for _ in range(7): eload()
        e('v_subrev_u32 v12, s46, v12')
        e('s_waitcnt vmcnt(0)')
        e('L_net:')
        xi[0] = 0; hq.clear()
    YA = 232
    e(f's_cmp_eq_u32 s{b+5}, 2')
    e('s_cselect_b32 s46, 0x80000000, 0')
    e(f's_cmp_lg_u32 s{HAS3}, 0')
    e('s_cselect_b32 s47, 0x80000000, 0')
    e('s_or_b32 s48, s46, s47')
    for i in range(6):
        m_ = {0: None, 1: 46, 2: None, 3: 46, 4: 47, 5: 48}[i]
        e(f'v_mov_b32 v{YA+i}, v{52+i//2}' if m_ is None else f'v_or_b32 v{YA+i}, s{m_}, v{52+i//2}')
    def ystore(i, a_):
        e(f'buffer_store_dwordx4 {vr(28+4*i,4)}, v{a_}, {sr(S_WS)}, s{b+2+(i&1)} offen sc1')
        hq.append(('y', i))
    stamp(5)
    ldswait(8, 'eq', 4, 'o', 1)
    def unpack(dst, s_):
        for i in range(4):
            e(f'v_lshlrev_b32 v{dst+2*i}, 16, v{s_+i}')
            e(f'v_and_b32 v{dst+2*i+1}, s{MASK}, v{s_+i}')
    def unpackE(dst, k):
        e(f's_waitcnt vmcnt({len(hq)-1-hq.index(("e", k))})')
        unpack(dst, RAW + 4 * k)
        eload()
    def diff(eu, out):
        for i in range(8): e(f'v_sub_f32 v{DT+i}, v{eu+i}, v{OU+i}')
        for i in range(4):
            e(f'v_cvt_pk_bf16_f32 v{out+i}, v{DT+2*i}, v{DT+2*i+1}')
    def opengate():
        if not o.gate: return
        e('v_mov_b32 v11, 0x100')
        e('s_mov_b64 exec, 1')
        e('ds_add_u32 v10, v11 offset:8')
        e('s_mov_b64 exec, -1')
    def rows(hook):
        stamp(6)
        for j in range(R):
            e(f'ds_read_b128 {vr(ORAW+4*j,4)}, v18 offset:{X_O+288*j}')
        unpackE(EU[0], 0)
        e('s_waitcnt lgkmcnt(0)')
        for j in range(R):
            o0 = DO + 8 * (j & 1)
            unpack(OU, ORAW + 4 * j)
            diff(EU[j & 1], o0)
            e(f'ds_write_b128 v18, {vr(o0,4)} offset:{X_D0+288*j}')
            unpackE(EU[(j + 1) & 1], j + 1)
            diff(EU[(j + 1) & 1], o0 + 4)
            e(f'ds_write_b128 v19, {vr(o0+4,4)} offset:{288*j}')
            hook(j)
    e(f's_cmp_ge_u32 s2, {NPROD + (32 if o.d0p else 0)}')
    e('s_cbranch_scc1 L_pathA')
    e(f's_cmp_lt_u32 s{XK}, 2')
    e('s_cbranch_scc1 L_nox')
    if o.d0p:
        e(f's_cmp_eq_u32 s{XK}, 3')
        e('s_cbranch_scc1 L_xd')
    for i in range(3):
        e(f'buffer_store_dwordx4 {vr(SOR(i),4)}, v{YA+2*i}, {sr(S_WS)}, s{b+4} offen sc1')
    if o.d0p:
        e('s_branch L_xe')
        e('L_xd:')
        for i in range(6): ystore(i, YA + i)
        e('L_xe:')
    if o.gearly:
        opengate()
        publish(0, 58, 'x2', True)
        e('s_branch L_nox2')
        e('L_nox:')
        opengate()
        e('L_nox2:')
    else:
        publish(0, 58, 'x2', True)
        e('L_nox:')
        opengate()
    hq.clear(); xi[0] = 0
    for _ in range(o.ein): eload()
    rows(lambda j: None)
    e('s_branch L_rowsdone')
    e('L_pathA:')
    if not o.d0p:
        e(f's_cmp_eq_u32 s{XK}, 3')
        e('s_cselect_b32 s47, 0, 0x80000000')
        for i in range(6): e(f'v_or_b32 v{20+i}, s47, v{YA+i}')
    hq.clear(); xi[0] = 0
    for _ in range(NL): eload()
    if not o.d0p:
        for i in range(6): ystore(i, 20 + i)
    def hookA(j):
        if j == o.grow:
            e(f's_waitcnt vmcnt({len(hq)-1-hq.index(("e", NL-1))})')
            opengate()
        if j == o.xrow and not o.d0p:
            e(f's_cmp_lg_u32 s{XK}, 3')
            e('s_cbranch_scc1 L_xp')
            publish(0, 58, 'x3', True)
            e('L_xp:')
    rows(hookA)
    e('L_rowsdone:')
    e('s_waitcnt lgkmcnt(0)')
    stamp(7)
    e('v_mov_b32 v11, 1')
    e('s_mov_b64 exec, 1')
    e('ds_add_u32 v10, v11 offset:16')
    e('s_mov_b64 exec, -1')
    e(f's_cmp_eq_u32 s{YT}, 0')
    e('s_cbranch_scc1 L_noy')
    e(f's_setprio {o.yprio}')
    e('L_yw:')
    e('ds_read_b64 v[20:21], v10')
    e('s_waitcnt lgkmcnt(0)')
    e('v_lshrrev_b32 v21, 14, v21')
    e('v_and_b32 v21, -4, v21')
    e('v_or_b32 v20, v20, v21')
    e(f'v_cmp_le_u32 vcc, s{YT}, v20')
    e('s_nop 4')
    e('s_cbranch_vccnz L_yx')
    e('s_sleep 4')
    e('s_branch L_yw')
    e('L_yx:')
    for i in range(6):
        ystore(i, YA + i)
        e(f's_waitcnt vmcnt({o.ythr})')
        if o.ysleep: e(f's_sleep {o.ysleep}')
    publish(16, 59, 'y', False)
    if o.diag == 1: stamp(8)
    e('L_noy:')
    e(f's_cmp_lg_u32 s{WAVE}, 4')
    e('s_cbranch_scc1 L_hend')
    e('L_guard:')
    e('ds_read_b32 v11, v10 offset:4')
    e('s_waitcnt lgkmcnt(0)')
    e('v_readfirstlane_b32 s46, v11')
    e('s_nop 3')
    e('s_cmp_eq_u32 s46, 4')
    e('s_cbranch_scc1 L_hend')
    e('s_cmp_lt_u32 s46, 0x10000')
    e('s_cbranch_scc0 L_rescue')
    e('s_sleep 16')
    e('s_branch L_guard')
    e('L_rescue:')
    e(f's_mov_b32 s{MODE}, 1')
    e(f's_mov_b32 s{HAS3}, 1')
    e(f's_mov_b32 s{NOTASK}, 0')
    e(f's_lshr_b32 s{TW0}, s{NB}, 1')
    e(f's_add_u32 s{TW1}, s{NB}, 9')
    e(f's_lshr_b32 s{TW1}, s{TW1}, 1')
    e(f's_mov_b32 s{PAIR}, 0')
    e('s_branch L_prod')
    e('L_hend:')
    if o.padto and o.padev[0] == 'h': padloop('h')
    if o.diag == 1:
        stamp(9)
        dump(10)
    e('L_end:')
    e('s_endpgm')
    if o.hfirst:
        m0, h0 = mark['main0'], mark['help0']
        e.L = e.L[:m0] + e.L[h0:] + ['.p2align 6'] + e.L[m0:h0]
    e('L_codeend:')
    e('.section .rodata,"a"')
    e('.p2align 6')
    e(f'.amdhsa_kernel {KN}')
    for x in ['next_free_vgpr 256', 'next_free_sgpr 102', 'accum_offset 256', 'group_segment_fixed_size 0', 'kernarg_size 40',
              'user_sgpr_count 2', 'user_sgpr_kernarg_segment_ptr 1', 'system_sgpr_workgroup_id_x 1']:
        e('  .amdhsa_' + x)
    e('.end_amdhsa_kernel')
    n = haz.check(e.L)
    if n: print(f'{n} hazards', file=sys.stderr)
    return f'; @launch grid=({NWG},1,1) block=(512,1,1) lds={LDS_BYTES}\n' + e.text()

def opts(argv=None):
    ap = argparse.ArgumentParser()
    ap.add_argument('-o', default='k.s')
    for nm, d in [('diag', 0), ('pf', 16), ('pf0', 8), ('wgap', 4), ('wres', 4), ('wsc1', 0), ('nfill', 2), ('fstride', 128), ('sleep', 0), ('maxpoll', 3000), ('nopoll', 0),
                  ('hprio', 3), ('hprio2', 0), ('mprio', 2), ('epre', 0), ('ein', 7), ('dpre', 7), ('b0early', 0), ('mtouch', 1), ('gate', 1), ('swapab', 0), ('d0p', 1), ('map', 1), ('chain', 4), ('flat0', 0), ('flatzz', 0), ('tagp', 0), ('tpf', 5), ('xl', 0), ('p0plain', 0), ('onepoll', 0), ('epoll', 1), ('ppoll', 0), ('yprio', 3), ('ysleep', 0), ('vt', 94), ('tla', 40), ('tskip', 1), ('gearly', 1), ('chfrom', 8), ('oj', 9), ('nolds', 0), ('now', 0), ('wsame', 0), ('grow', 1), ('vbd', 33), ('nopk', 1), ('padto', 0), ('npdelay', 0), ('opre', 5), ('etouch', 0), ('orev', 1), ('b0late', 1), ('dec', 1), ('tail', 1), ('xla', 9), ('hold', 1), ('prest', 0), ('xslot', 0), ('noclosed', 0), ('cpf', 1), ('hfirst', 1), ('warmb', 1), ('wsfirst', 0), ('flead', 6), ('ythr', 6), ('xrow', 3), ('padstep', 33), ('probe', 0), ('probeoff', 0x4000000)]:
        ap.add_argument('--' + nm, type=int, default=d)
    ap.add_argument('--oflags', default='')
    ap.add_argument('--pmap', default='18,18,18,18,18,18,18,18')
    ap.add_argument('--padev', default='m0')
    ap.add_argument('--trig', default='10,25,40')
    ap.add_argument('--yrow', default='0,7,2,9,5,11')
    ap.add_argument('--pfcs', default='4,5,5,8,8')
    ap.add_argument('--fflags', default='')
    ap.add_argument('--fleads', default='6,6,6,6,6')
    ap.add_argument('--marks', default='0,4,8,12,16,24,33,47,58')
    o = ap.parse_args(argv)
    o.marks = [int(x) for x in o.marks.split(',')]
    o.yrow = [int(x) for x in o.yrow.split(',')]
    o.pfcs = [int(x) for x in o.pfcs.split(',')]
    o.fleads = [int(x) for x in o.fleads.split(',')]
    o.trig = [int(x) for x in o.trig.split(',')]
    return o

if __name__ == '__main__':
    o = opts()
    open(o.o, 'w').write(gen(o))
```

```python
import re, sys, argparse
import haz

KN = 'standalone__autoregressive_conv_wavernn__speech_kernel'
NWG = 252
NPROD = 144
ARR = 160 * 288
X_D0, X_O, X_D1 = 0, ARR, 2 * ARR
CNT = 3 * ARR
SCR = CNT + 64
LDS_BYTES = SCR + 18432
NSTEP = 106
WOFF = int(__import__('os').environ.get('WOFF', '0x100000'), 0)
NONCE = 0x10000
DIAG = 0x800000
WS_REC = max(0x1000000, WOFF + 0x400000, int(__import__('os').environ.get('WSREC', '0'), 0))
TAGINC = 0x9E3779B9
R = 12

class Em:
    def __init__(self): self.L = []
    def __call__(self, s): self.L.append(s)
    def text(self): return '\n'.join(self.L) + '\n'

def vr(a, n=1): return f'v{a}' if n == 1 else f'v[{a}:{a+n-1}]'
def sr(a, n=4): return f's[{a}:{a+n-1}]'

def streams():
    out = []
    for typ in (0, 1):
        S = []
        pid = [0]
        def add(arr, chunk, cs, acc):
            for c in cs: S.append((pid[0], arr, chunk, c, acc))
            pid[0] += 1
        if typ == 0:
            add('O', 0, range(16), 'P'); add('O', 1, range(16), 'P'); add('O', 'rem', range(0, 2), 'P')
            for q in range(4): add('D', q, range(16), 'Q')
            add('D', 'rem', range(8), 'Q')
        else:
            add('O', 2, range(16), 'P'); add('O', 3, range(16), 'P'); add('O', 'rem', range(2, 8), 'P')
            for q in range(4): add('D', q, range(15), 'Q')
            add('D', 'rem', range(8), 'Q')
        assert len(S) == NSTEP
        out.append(S)
    return out

S_X, S_W, S_WO, S_WS, S_OUT, S_DBG = 20, 24, 28, 32, 36, 40
WAVE, NB, BAT, PAR, MB, BOFF = 14, 15, 16, 17, 18, 19
PAIR0 = 3
XB = 52
MASK = 53
TW0, TW1, TW2, PAIR, HAS3, MODE, SCRB, TAG, LAST, NPOLL = 44, 45, 54, 55, 56, 57, 58, 59, 60, 61
TS = 62
TYP, WSO = 68, 69
EARLY, XK, YT, FIDX = 90, 91, 92, 93
NOTASK = 94
NTASK = NPROD + 96
FO = 97
C2L, CNL, C60 = 90, 92, 94
ST0 = 70

def srd(e, d, ptr, rec, add=None):
    if add is None:
        e(f's_mov_b32 s{d}, s{ptr}')
        e(f's_and_b32 s{d+1}, s{ptr+1}, 0xffff')
    else:
        e(f's_add_u32 s{d}, s{ptr}, s{add}')
        e(f's_addc_u32 s{d+1}, s{ptr+1}, 0')
        e(f's_and_b32 s{d+1}, s{d+1}, 0xffff')
    e(f's_mov_b32 s{d+2}, {rec}')
    e(f's_mov_b32 s{d+3}, 0x20000')

def gen(o):
    e = Em()
    NSTR = 2 * NSTEP * 1024 + (65536 if o.tagp else 0)
    if o.tagp: o.epoll = 0
    role = ['m']
    def padloop(tag):
        e(f'L_pad{tag}:')
        e('s_memrealtime s[98:99]')
        e('s_waitcnt lgkmcnt(0)')
        e('s_sub_u32 s98, s98, s100')
        e(f's_cmp_lt_u32 s98, {o.padto}')
        e(f's_cbranch_scc1 L_pad{tag}')
    def stamp(k, lvl=1):
        if o.padto and lvl == 1 and o.padev == f'{role[0]}{k}':
            e('s_memrealtime s[100:101]'); e('s_waitcnt lgkmcnt(0)')
        if o.diag == lvl or (o.diag == 4 and lvl == 1): e(f's_memrealtime s[{ST0+2*k}:{ST0+2*k+1}]')
    def dump(nst):
        e('s_waitcnt lgkmcnt(0)')
        e('v_mov_b32 v250, 0')
        for k in range(nst): e(f'v_writelane_b32 v250, s{ST0+2*k}, {k}')
        e(f'v_writelane_b32 v250, s{NPOLL}, 13')
        e(f'v_writelane_b32 v250, s95, 12')
        e(f'v_writelane_b32 v250, s2, 14')
        e('s_getreg_b32 s46, hwreg(HW_REG_XCC_ID)')
        e('v_writelane_b32 v250, s46, 15')
        e(f's_lshl_b32 s46, s2, 3'); e(f's_add_u32 s46, s46, s{WAVE}'); e('s_lshl_b32 s46, s46, 6'); e(f's_add_u32 s46, s46, {DIAG}')
        e('v_lshl_add_u32 v251, v1, 2, s46')
        e('s_mov_b64 exec, 0xffff')
        e(f'buffer_store_dword v250, v251, {sr(S_WS)}, 0 offen')
        e('s_mov_b64 exec, -1')

    e('.amdgcn_target "amdgcn-amd-amdhsa--gfx950"')
    e('.text')
    e(f'.globl {KN}')
    e('.p2align 8')
    e(f'.type {KN},@function')
    e(f'{KN}:')
    e(f's_cmp_ge_u32 s2, {NWG}')
    e('s_cbranch_scc1 L_end')
    stamp(0)
    if o.padto and o.padev != 'm0': e('s_memrealtime s[100:101]')
    e('s_load_dwordx4 s[4:7], s[0:1], 0')
    e('s_load_dwordx4 s[8:11], s[0:1], 16')
    e('s_load_dwordx2 s[12:13], s[0:1], 32')
    e('v_lshrrev_b32 v2, 6, v0')
    e('v_and_b32 v1, 63, v0')
    e(f'v_readfirstlane_b32 s{WAVE}, v2')
    def decode():
        e('s_and_b32 s44, s2, 7')
        e('s_lshr_b32 s45, s2, 3')
        e('s_mul_i32 s46, s44, 31')
        e('s_min_u32 s44, s44, 4')
        e('s_add_u32 s46, s46, s44')
        e('s_add_u32 s46, s46, s45')
        if o.map == 0:
            e('s_mul_hi_u32 s47, s46, 68174085')
            e('s_mul_i32 s48, s47, 63')
            e('s_sub_u32 s48, s46, s48')
            e(f's_mul_hi_u32 s{NB}, s48, 613566757')
            e(f's_mul_i32 s49, s{NB}, 7')
            e('s_sub_u32 s49, s48, s49')
            e('s_mul_i32 s47, s47, 7')
            e('s_add_u32 s47, s47, s49')
        elif o.map == 1:
            e('s_mul_hi_u32 s47, s46, 477218589')
            e('s_mul_i32 s48, s47, 9')
            e(f's_sub_u32 s{NB}, s46, s48')
        else:
            e('s_mul_hi_u32 s47, s46, 34087043')
            e('s_mul_i32 s48, s47, 126')
            e('s_sub_u32 s48, s46, s48')
            e(f's_mul_hi_u32 s{NB}, s48, 306783379')
            e(f's_mul_i32 s49, s{NB}, 14')
            e('s_sub_u32 s49, s48, s49')
            e('s_mul_i32 s47, s47, 14')
            e('s_add_u32 s47, s47, s49')
        e(f's_and_b32 s{PAR}, s47, 1')
        e('s_lshr_b32 s47, s47, 1')
        e('s_cmp_ge_u32 s47, 7')
        e(f's_cselect_b32 s{BOFF}, 1152000, 0')
        e('s_cselect_b32 s48, 7, 0')
        e(f's_sub_u32 s{MB}, s47, s48')
        e(f's_mul_i32 s{XB}, s{MB}, 576')
        e(f's_add_u32 s{XB}, s{XB}, s{PAR}')
        e(f's_sub_u32 s{XB}, s{XB}, 60')
        e(f's_mul_i32 s{XB}, s{XB}, 288')
    e(f's_cmp_ge_u32 s{WAVE}, 4')
    e('s_cbranch_scc1 L_helper')
    if o.cpf:
        e('s_lshr_b32 s44, s2, 3')
        e(f's_lshl_b32 s45, s{WAVE}, 5')
        e('s_add_u32 s44, s44, s45')
        e('s_sub_u32 s44, s44, 26')
        e('s_cmp_ge_u32 s44, 5')
        e('s_cbranch_scc1 L_main')
        e('s_getpc_b64 s[46:47]')
        e('L_pc:')
        e('s_lshl_b32 s44, s44, 13')
        e('v_lshl_add_u32 v2, v1, 7, s44')
        e('v_min_u32 v2, L_codeend-L_pc-4, v2')
        e('global_load_dword v63, v2, s[46:47]')
    if o.hfirst: e('s_branch L_main')
    mark = {'main0': len(e.L)}
    e('L_main:')
    e(f's_mov_b32 s{MASK}, 0xffff0000')
    e(f's_mov_b32 s{NPOLL}, 0')
    if o.diag: e('s_mov_b32 s95, 0')
    decode()

    VXO, VXOR, VXD, VXDR, VWL, VEX, VEXP, VOUT = 30, 31, 32, 33, 34, 35, 36, 37
    VF = 40
    VA = 48
    VCL = 60
    e('v_mul_u32_u24 v3, 3641, v0')
    e('v_lshrrev_b32 v3, 16, v3')
    e('v_mul_u32_u24 v2, 18, v3')
    e('v_sub_u32 v2, v0, v2')
    e('v_mul_u32_u24 v3, 1152, v3')
    e('v_lshl_add_u32 v3, v2, 4, v3')
    e(f's_add_u32 s46, s{XB}, 576')
    e(f'v_add_u32 v{VA}, s46, v3')
    e('v_mov_b32 v5, 16192')
    e('v_mov_b32 v6, 17056')
    for k in range(1, 12):
        e('v_cmp_le_u32 vcc, 14, v2')
        e('v_add_u32 v3, 4, v2')
        e('v_subrev_u32 v4, 14, v2')
        e('v_cndmask_b32 v7, v5, v6, vcc')
        e('v_cndmask_b32 v2, v3, v4, vcc')
        e(f'v_add_u32 v{VA+k}, v{VA+k-1}, v7')
    e(f's_lshl_b32 s50, s{WAVE}, 10')
    e(f's_add_u32 s50, s50, {X_O}')
    e(f's_add_u32 s51, s50, {4096*11}')
    e('s_movk_i32 s49, 4096')
    if o.orev:
        e(f's_bitcmp0_b32 s{NB}, 0')
        e('s_cbranch_scc1 L_fwd')
        for k in range(5): e(f'v_swap_b32 v{VA+k}, v{VA+10-k}')
        e(f's_add_u32 s50, s50, {4096*10}')
        e('s_movk_i32 s49, -4096')
        e('L_fwd:')
    e(f'v_mov_b32 v{VF+1}, {CNT}')
    for r in range(4, 8): e(f'v_mov_b32 v{r}, 0')
    e(f'ds_write_b128 v{VF+1}, v[4:7]')
    e(f'ds_write_b128 v{VF+1}, v[4:7] offset:16')
    e('s_waitcnt lgkmcnt(0)')
    e(f's_load_dword s{TAG}, s[12:13], {NONCE}')
    srd(e, S_X, 4, 1152000, add=BOFF)
    def odma(k):
        e(f's_mov_b32 m0, s{51 if k == 11 else 50}')
        e('s_add_u32 s50, s50, s49')
        e(f'buffer_load_dwordx4 v{VA+k}, {sr(S_X)}, 0 offen lds')
    def etouch():
        e(f'buffer_load_dword v62, v9, {sr(S_X)}, 0 offen')
    if o.mtouch and o.tskip:
        e('s_lshr_b32 s47, s2, 4')
        e('s_lshr_b32 s47, 0x33, s47')
        e('s_lshl_b32 s47, s47, 31')
    if o.mtouch:
        e('v_min_u32 v8, 39, v1')
        e('v_lshrrev_b32 v9, 2, v8')
        e(f's_mul_i32 s46, s{WAVE}, 10')
        e('v_add_u32 v9, s46, v9')
        e(f'v_mul_u32_u24 v9, {4*1152}, v9')
        e('v_and_b32 v8, 3, v8')
        e('v_mul_u32_u24 v8, 92, v8')
        e(f's_and_b32 s46, s{NB}, 3')
        e('s_mul_i32 s46, s46, 1152')
        e(f's_add_u32 s46, s46, s{XB}')
        e('v_add3_u32 v9, v9, v8, s46')
        if o.tskip: e('v_or_b32 v9, s47, v9')
    if o.mtouch == 2: etouch()
    if o.padto: stamp(10)
    for k in range(o.opre): odma(k)
    e('s_barrier')
    stamp(1)
    if o.mtouch == 3: etouch()
    for k in range(o.opre, 12):
        if k == 11:
            e(f's_cmp_lg_u32 s{WAVE}, 0')
            e('s_cbranch_scc1 L_o11')
        odma(k)
    e('L_o11:')
    if o.mtouch == 1: etouch()
    srd(e, S_WS, 12, WS_REC)
    if o.epoll:
        assert o.mtouch == 1 and o.tskip
        e(f's_and_b32 s{TYP}, s{WAVE}, 1')
        e(f's_lshl_b32 s{FO}, s{TYP}, 13')
        e('s_mov_b32 s96, s47')
        e('s_xor_b32 s46, s47, 0x80000000')
        e(f'v_min_u32 v{VF}, 31, v1')
        e(f'v_lshlrev_b32 v{VF}, 7, v{VF}')
        e(f'v_or_b32 v2, s46, v{VF}')
        e(f'buffer_load_dword v{VF+4}, v2, {sr(S_WS)}, s{FO} offen sc1')
    srd(e, S_OUT, 8, 1152000, add=BOFF)
    srd(e, S_DBG, 10, 256)
    e('v_and_b32 v2, 15, v1')
    e('v_lshrrev_b32 v3, 4, v1')
    e('v_subrev_u32 v5, 4, v2')
    e('v_add_u32 v6, 8, v2')
    e('v_cmp_gt_u32 vcc, 4, v2')
    e('v_cmp_le_u32 s[46:47], 12, v2')
    e(f's_and_b32 s{TYP}, s{WAVE}, 1')
    e(f's_lshr_b32 s48, s{WAVE}, 1')
    e('v_cndmask_b32 v5, v5, v6, vcc')
    e('v_cndmask_b32 v5, v5, v2, s[46:47]')
    e('v_mul_u32_u24 v5, 9, v5')
    e('v_mul_u32_u24 v4, 288, v5')
    e('v_lshl_add_u32 v6, v3, 4, v4')
    e('v_and_b32 v7, 1, v3')
    e('v_lshl_add_u32 v7, v7, 4, v4')
    e('v_lshrrev_b32 v8, 1, v3')
    e('v_mul_u32_u24 v8, 2304, v8')
    e('v_add_u32 v7, v7, v8')
    e('v_add_u32 v7, 256, v7')
    e(f's_mul_i32 s49, s{TYP}, {X_D1}')
    e(f'v_add_u32 v{VXO}, {X_O}, v6')
    e(f'v_add_u32 v{VXOR}, {X_O}, v7')
    e(f'v_add_u32 v{VXD}, s49, v6')
    e(f'v_add_u32 v{VXDR}, s49, v7')
    e('v_lshlrev_b32 v6, 4, v1')
    e(f's_mul_i32 s49, s{WAVE}, 9216')
    e(f's_add_u32 s49, s49, {X_O}')
    e(f'v_add_u32 v{VEX}, s49, v6')
    e(f's_xor_b32 s49, s{WAVE}, 1')
    e('s_mul_i32 s49, s49, 9216')
    e(f's_add_u32 s49, s49, {X_O}')
    e(f'v_add_u32 v{VEXP}, s49, v6')
    e('v_and_b32 v8, 0x39, v1')
    e('v_bfe_u32 v9, v1, 1, 1')
    e('v_lshl_add_u32 v8, v9, 2, v8')
    e('v_bfe_u32 v9, v1, 2, 1')
    e('v_lshl_add_u32 v8, v9, 1, v8')
    e(f'v_lshlrev_b32 v{VWL}, 4, v8')
    e(f's_mul_i32 s49, s{TYP}, 576')
    e(f's_add_u32 s49, s49, s{XB}')
    e(f's_add_u32 s49, s49, {60*288}')
    e(f's_lshl_b32 s50, s{NB}, 5')
    e('s_add_u32 s49, s49, s50')
    e('s_lshl_b32 s50, s48, 4')
    e('s_add_u32 s49, s49, s50')
    e('v_mul_u32_u24 v8, 1152, v5')
    e('v_lshl_add_u32 v8, v3, 2, v8')
    e(f'v_add_u32 v{VOUT}, s49, v8')
    e(f'v_add_u32 v{VOUT+1}, 3456, v{VOUT}')
    e(f'v_add_u32 v{VOUT+2}, 6912, v{VOUT}')
    e(f's_lshl_b32 s49, s{NB}, 1')
    e('s_add_u32 s49, s49, s48')
    e(f's_mul_i32 s49, s49, {NSTR}')
    e(f's_mul_i32 s{WSO}, s{TYP}, {NSTEP*1024}')
    e(f's_add_u32 s{WSO}, s{WSO}, s49')
    e(f's_add_u32 s{WSO}, s{WSO}, {WOFF + (16384 if o.tagp else 0)}')
    if o.tagp:
        e(f's_lshl_b32 s96, s{TYP}, 15')
        e('s_add_u32 s96, s96, s49')
        e(f's_add_u32 s96, s96, {WOFF + 2*NSTEP*1024}')
    e(f's_mov_b32 s{C2L}, 0x4038aa3b'); e(f's_mov_b32 s{C2L+1}, 0x4038aa3b')
    e(f's_mov_b32 s{CNL}, 0xbfb8aa3b'); e(f's_mov_b32 s{CNL+1}, 0xbfb8aa3b')
    e(f's_mov_b32 s{C60}, 0x42700000')
    e(f'v_min_u32 v{VF}, 31, v1')
    e(f'v_lshlrev_b32 v{VF}, 7, v{VF}')
    e(f'v_min_u32 v{VF+6}, 47, v1')
    e(f'v_lshlrev_b32 v{VF+6}, 7, v{VF+6}')
    e(f'v_mov_b32 v{VF+2}, 1')
    e('s_lshl_b32 s46, s48, 2')
    e(f'v_add_u32 v{VF+5}, s46, v{VF+1}')
    e(f's_or_b32 s46, s2, s{WAVE}')
    e('v_or_b32 v2, s46, v1')
    e('v_cmp_eq_u32 vcc, 0, v2')
    e(f'v_mov_b32 v{VCL}, -16')
    e(f'v_mov_b32 v{VCL+1}, -16')
    e(f'v_mov_b32 v3, {NONCE}')
    e(f'v_cndmask_b32 v{VCL}, v{VCL}, 4, vcc')
    e(f'v_cndmask_b32 v{VCL+1}, v{VCL+1}, v3, vcc')
    e(f's_lshl_b32 s{FO}, s{TYP}, 13')
    if o.warmb:
        e(f's_cmp_eq_u32 s{TYP}, 1')
        e('s_cbranch_scc1 L_warmB')
        e('L_warmret:')
    e(f's_waitcnt vmcnt({(1 if o.mtouch == 1 else 0) + o.epoll}) lgkmcnt(0)')
    stamp(2)
    if o.padto and o.padev in ('m11', 'm12'):
        e('s_lshr_b32 s46, s2, 4')
        e('s_lshr_b32 s46, 0x33, s46')
        e('s_bitcmp1_b32 s46, 0')
        e(f's_cbranch_scc{1 if o.padev == "m11" else 0} L_pk')
        e('s_memrealtime s[100:101]'); e('s_waitcnt lgkmcnt(0)')
        e('L_pk:')
    e('s_mov_b64 exec, 1')
    e(f'ds_add_u32 v{VF+1}, v{VF+2} offset:8')
    e('s_mov_b64 exec, -1')
    e(f's_add_u32 s{TAG}, s{TAG}, {TAGINC}')
    e(f'v_mov_b32 v{VF+3}, s{TAG}')
    def flagwait(tag, vaddr, back):
        e(f'L_fw{tag}:')
        if o.diag and len(tag) == 2: e(f's_add_u32 s95, s95, {1 << (5 * int(tag[1]))}')
        e(f'buffer_load_dword v{VF+4}, v{vaddr}, {sr(S_WS)}, s{FO} offen sc1')
        e(f'ds_read_b32 v{VF+7}, v{VF+1} offset:12')
        e(f's_add_u32 s{NPOLL}, s{NPOLL}, 1')
        e('s_waitcnt vmcnt(0) lgkmcnt(0)')
        e(f'v_cmp_ne_u32 vcc, v{VF+3}, v{VF+4}')
        e(f'v_readfirstlane_b32 s46, v{VF+7}')
        e('s_nop 3')
        e(f's_cbranch_vccz {back}')
        e('s_cmp_lg_u32 s46, 0')
        e(f's_cbranch_scc1 {back}')
        e(f's_cmp_lg_u32 s{NPOLL}, {o.maxpoll}')
        e(f's_cbranch_scc1 L_fw{tag}')
        e(f'v_mov_b32 v{VF+7}, 0x10000')
        e('s_mov_b64 exec, 1')
        e(f'ds_add_u32 v{VF+1}, v{VF+7} offset:4')
        e('s_mov_b64 exec, -1')
        e(f's_branch L_fw{tag}')
    if o.epoll:
        e('s_cmp_eq_u32 s96, 0')
        e('s_cbranch_scc1 L_gate')
        e('s_waitcnt vmcnt(0)')
        e(f'v_cmp_ne_u32 vcc, v{VF+3}, v{VF+4}')
        e('s_nop 4')
        e('s_cbranch_vccz L_go')
    if o.gate:
        e('L_gate:')
        e(f'ds_read_b32 v{VF+4}, v{VF+1} offset:8')
        e('s_waitcnt lgkmcnt(0)')
        e(f'v_and_b32 v{VF+4}, 0xffff, v{VF+4}')
        e(f'v_cmp_gt_u32 vcc, 0x400, v{VF+4}')
        e('s_nop 4')
        e('s_cbranch_vccz L_gate2')
        e('s_sleep 1')
        e('s_branch L_gate')
        e('L_gate2:')
    if o.ppoll:
        e(f'buffer_load_dword v{VF+4}, v{VF}, {sr(S_WS)}, s{FO} offen sc1')
        e('L_pp:')
        for a_, b_ in ((VF + 4, 62), (62, VF + 4)):
            e(f's_sleep {o.ppoll}')
            e(f'buffer_load_dword v{b_}, v{VF}, {sr(S_WS)}, s{FO} offen sc1')
            e('s_waitcnt vmcnt(1)')
            e(f'v_cmp_ne_u32 vcc, v{VF+3}, v{a_}')
            e(f's_add_u32 s{NPOLL}, s{NPOLL}, 1')
            e('s_nop 3')
            e('s_cbranch_vccz L_go')
        e(f's_cmp_lt_u32 s{NPOLL}, 40')
        e('s_cbranch_scc1 L_pp')
        e(f's_mov_b32 s{NPOLL}, 0')
    if o.p0plain:
        e(f'buffer_load_dword v{VF+4}, v{VF}, {sr(S_WS)}, s{FO} offen')
        e('s_waitcnt vmcnt(0)')
        e(f'v_cmp_ne_u32 vcc, v{VF+3}, v{VF+4}')
        e('s_nop 4')
        e('s_cbranch_vccz L_go')
    if o.onepoll:
        e(f's_cmp_lt_u32 s{WAVE}, 2')
        e('s_cbranch_scc1 L_fw0')
        e('L_op:')
        e(f'ds_read_b32 v{VF+7}, v{VF+1} offset:8')
        e('s_waitcnt lgkmcnt(0)')
        e(f's_add_u32 s46, s{TYP}, 16')
        e(f'v_lshrrev_b32 v{VF+7}, s46, v{VF+7}')
        e(f'v_and_b32 v{VF+7}, 1, v{VF+7}')
        e(f'v_cmp_eq_u32 vcc, 0, v{VF+7}')
        e('s_nop 4')
        e('s_cbranch_vccnz L_op')
        e('s_branch L_go2')
    if not o.tagp: flagwait('0', VF, 'L_go')
    e('L_go:')
    if o.tagp: e('s_mov_b32 s50, s96')
    if o.onepoll:
        e(f's_lshl_b32 s46, 0x10000, s{TYP}')
        e(f'v_mov_b32 v{VF+7}, s46')
        e('s_mov_b64 exec, 1')
        e(f'ds_or_b32 v{VF+1}, v{VF+7} offset:8')
        e('s_mov_b64 exec, -1')
        e('L_go2:')
    stamp(3)
    e('L_gw:')
    e(f'ds_read_b32 v{VF+7}, v{VF+1} offset:8')
    e('s_waitcnt lgkmcnt(0)')
    e(f'v_and_b32 v{VF+7}, 0xff, v{VF+7}')
    e(f'v_cmp_ne_u32 vcc, 4, v{VF+7}')
    e('s_nop 4')
    e('s_cbranch_vccnz L_gw')
    stamp(4)
    e(f's_setprio {o.mprio}')
    e(f's_cmp_eq_u32 s{TYP}, 1')
    e('s_cbranch_scc1 L_typeB')

    ACC = {'P': 64, 'Q': 100}
    WR, TMP = 136, 224
    XRING = [200 + 4 * i for i in range(6)]
    XWIN = [4 + 4 * i for i in range(6)] + [240 + 4 * i for i in range(4)]
    VC = 28
    PF = o.pf
    GT = 98
    wflags = ' sc1' if o.wsc1 else ''
    for typ, S in enumerate(streams()):
        if typ == 1:
            e('.p2align 6')
            if o.warmb: e('L_warmB:'); e('s_branch L_warmret')
            e('L_typeB:')
        ops = []
        vstart = {}
        lastv = o.vt - 1
        v0 = 0
        G0 = 0
        if o.flat0:
            for g in range(16):
                vstart[g] = len(ops)
                for j in (range(9) if g % 2 == 0 or not o.flatzz else range(8, -1, -1)): ops.append((g, j))
            v0 = G0 = 16
        while v0 <= lastv:
            ch = 1 if v0 < o.chfrom + G0 else min(o.chain, lastv + 1 - v0)
            n0 = len(ops)
            for j in range(8, -1, -1):
                us = range(ch) if j % 2 == 0 else range(ch - 1, -1, -1)
                first_ = [u for u in us if v0 + u - j == 0 or (0 < v0 + u - j < NSTEP and S[v0+u-j][4] == 'Q' and S[v0+u-j-1][4] == 'P')]
                if first_: us = range(ch)
                for u in us:
                    if G0 <= v0 + u - j < NSTEP: ops.append((v0 + u - j, j))
            for u in range(ch): vstart[v0 + u] = n0 + (len(ops) - n0) * u // ch
            v0 += ch
        ntail = len(ops)
        if o.tail:
            for j in range(9):
                for g in range(o.vt - j, NSTEP): ops.append((g, j))
        assert len(ops) == NSTEP * 9 and len(set(ops)) == len(ops)
        N = len(ops)
        def key(n):
            g, j = ops[n]
            pid, arr, ch, c, acc = S[g]
            k = (pid, arr, ch, c + j)
            if n >= ntail and g < GT: k = k + ((n,) if not o.hold else ('h',))
            return k
        first, last = {}, {}
        for n in range(N):
            first.setdefault(key(n), n); last[key(n)] = n
        wfirst, wlast = {}, {}
        for n, (g, j) in enumerate(ops):
            wfirst.setdefault(g, n); wlast[g] = n
        tasks = []
        for k, n0 in first.items():
            win = o.tail and k[2] == 'rem' and k[1] == 'D'
            la = o.xla if n0 < ntail else 6
            if n0 >= ntail and ops[n0][1] == 0: la = o.tla
            elif win: la = 12
            tasks.append([n0 - la, n0 - 1, 'X', k])
        for g in range(NSTEP):
            rel = -100 + g if g < o.pf0 else max(0, wfirst[g] - 9 * PF)
            if o.tagp and g < 16:
                rel = -100 + g if g < 4 else max(0, wfirst[g] - 9 * o.tpf)
                tasks.append([rel, wfirst[g & ~1] - 9, 'W', g])
                continue
            tasks.append([rel, wfirst[g] - 1, 'W', g])
        def at(v, off=0): return vstart[v] + off
        firstD = min(n for n in range(N) if S[ops[n][0]][1] == 'D')
        lastO = max(n for n in range(N) if S[ops[n][0]][1] == 'O')
        lastP = {j: max(n for n in range(N) if ops[n][1] == j and S[ops[n][0]][4] == 'P') for j in range(9)}
        slow = []
        vused = set()
        def check(v, off, cnt, tag):
            tasks.append([at(v - 1, 3), at(v - 1, 8), 'L', (f'ds_read_b32 v{VC}, v{VF+1} offset:{off}', ('c', tag))])
            tasks.append([at(v, 0), at(v, 1), 'C', (f'v_cmp_ne_u32 vcc, {cnt}, v{VC}', ('c', tag))])
            tasks.append([at(v, 6), at(v, 7), 'I', [f's_cbranch_vccnz L_slow{typ}{tag}', f'L_back{typ}{tag}:']])
            slow.append((tag, off, cnt))
            vused.add(v)
            return at(v, 8)
        def add1(pos, off):
            tasks.append([pos, pos + 4, 'A', off])
        vD = [v for v in vstart if vstart[v] <= firstD - o.xla][-1] - 1
        okD = check(vD, 16, 4, 'D')
        assert okD <= firstD - o.xla
        add1(lastO, 20)
        VP = 47
        okR = check(VP, 20, 4, 'R')
        for j in range(9):
            assert lastP[j] + 12 < at(VP + 1 + j, 2)
            tasks.append([at(VP + 1 + j, 2), at(VP + 1 + j, 8), 'L', (f'ds_write_b128 v{VEX}, {vr(ACC["P"]+4*j,4)} offset:{1024*j}', ('pw', j))])
        tasks.append([at(VP + 10, 0), at(VP + 10, 4), 'A', 'pair'])
        VQ = VP + 13
        okP = check(VQ, 'pair', 2, 'P')
        for j in range(9):
            tasks.append([at(VQ + 1 + j, 2), at(VQ + 1 + j, 8), 'L', (f'ds_read_b128 {vr(TMP+4*(j&1),4)}, v{VEXP} offset:{1024*j}', ('pr', j))])
            v = VQ + 2 + j
            pos = at(v, 8 - (j + 2) - 1) if j <= 6 else at(v, 8 - (j - 7) - 1)
            sh = 1 if j >= 7 else 0
            if o.chain > 1:
                own = [n for n in range(N) if ops[n][1] == j]
                pos = [a_ + 10 for a_, b_ in zip(own, own[1:]) if b_ - a_ >= 14 and a_ + 9 >= at(v, 0) ][0]
                sh = 0
                tasks[-1][0] = pos - 9; tasks[-1][1] = pos - 4
                tasks[-1][3] = (f'ds_read_b128 {vr(TMP+4*(j&3),4)}, v{VEXP} offset:{1024*j}', ('pr', j))
            tasks.append([pos - 1 + sh, pos - 1 + sh, 'Q', (j, 0)])
            tasks.append([pos + sh, pos + sh, 'Q', (j, 1)])
        if typ == 0:
            tasks.append([at(64, 4), at(64, 8), 'S', f'buffer_store_dword v{VCL+1}, v{VCL}, {sr(S_DBG)}, 0 offen sc1'])
            tasks.append([at(84, 4), at(84, 8), 'S', f'buffer_store_dword v{VF+3}, v{VCL+1}, {sr(S_WS)}, 0 offen sc1'])
        fslow = []
        kslow = []
        if o.tagp:
            for g in range(0, 16, 2):
                n0 = wfirst[g]
                if g < 4: continue
                tasks.append([n0 - 8, n0 - 7, 'K', g])
                tasks.append([n0 - 2, n0 - 1, 'I', ['s_cmp_lg_u64 s[48:49], 0', f's_cbranch_scc1 L_ks{typ}{g}', f'L_kb{typ}{g}:']])
        passes = {}
        for g in range(NSTEP): passes.setdefault(S[g][0], g)
        need = [(passes[1], VF, 32 + 64 * typ), (32, VF + 6, 128), (passes[4], VF, 176), (passes[5], VF, 208), (passes[6], VF + 6, 240)]
        for ci, (gn, va, idx) in enumerate(need):
            v = gn - o.pfcs[ci] - 1
            while v in vused: v -= 1
            tasks.append([at(v - o.fleads[ci], 4), at(v - o.fleads[ci], 8), 'F', (va, idx, ci)])
            tasks.append([at(v, 0), at(v, 1), 'G', ci])
            tasks.append([at(v, 6), at(v, 7), 'I', [f's_cbranch_vccnz L_fw{typ}{ci}', f'L_fb{typ}{ci}:']])
            fslow.append((ci, va))
            assert v not in vused, v
            for t in tasks:
                if t[2] == 'W' and (t[3] >= gn): t[0] = max(t[0], at(v, 8))
        tasks.append([at(v + 1, 2), at(v + 1, 8), 'A', 4])
        if typ == 0:
            for lvl, v in enumerate(o.trig): tasks.append([at(v, 2), at(v, 8), 'P', lvl + 1])
        tasks.sort(key=lambda t: (t[0], t[1]))
        vq, lq = [], []
        dirty = [False]
        xreg, busy = {}, {}
        wn = [0]
        wr = {}
        lastw = [-100]
        later = []
        BIG = [WR + 4 * i for i in range(16)] + XWIN + [ACC['P'] + 4 * i for i in range(9)]
        for i in range(9): busy[ACC['P'] + 4 * i] = at(VP + 12)
        until = {}
        if o.chain > 1:
            BIG += XRING + [VA, VA + 4, VA + 8]
            for i in range(9):
                BIG.append(ACC['Q'] + 4 * i)
                until[ACC['Q'] + 4 * i] = min(n for n in range(N) if ops[n][1] == i and S[ops[n][0]][4] == 'Q') - 3
        def freeregs(n, end): return [x for x in BIG if busy.get(x, -1) <= n and end < until.get(x, 10**9)]
        def freepairs(n, end):
            f_ = set(freeregs(n, end))
            return [x for x in sorted(f_) if x % 8 == PAR8.get(x, -1) and x + 4 in f_]
        PAR8 = {x: x % 8 for x in list(range(WR, WR + 64, 8)) + [4, 12, 20, 240, 248, 200, 208, 216, 100, 108, 116, 124, VA]}
        def kcheck(g):
            vwait(g + 1)
            for i, gg in enumerate((g, g + 1)):
                a_ = wr[gg] - 2
                em(f'v_bitop3_b32 v{VC+i}, v{a_+1}, v{a_+6}, v{VF+3} bitop3:0x7e')
            em(f'v_or_b32 v{VC}, v{VC}, v{VC+1}')
            em(f'v_cmp_ne_u32 s[48:49], 0, v{VC}')
            kslow.append((g, wr[g] - 2, wr[g + 1] - 2))
        def wok(t, n):
            if t[2] != 'W': return True
            if t[3] != wn[0]: return False
            if o.tagp and t[3] < 16:
                return bool(freepairs(n, wlast[t[3]])) and (n - lastw[0] >= 2 or t[1] - n <= 4)
            free = len(freeregs(n, wlast[t[3]]))
            if t[1] - n <= 9 * 3: return free > 0
            return n - lastw[0] >= o.wgap and free > o.wres
        since = {}
        fill = []
        def em(x):
            e(x)
            if not x.endswith(':'):
                for jj in since: since[jj] += 1
        def lwait(tag):
            if tag not in lq: return
            i = lq.index(tag)
            em(f's_waitcnt lgkmcnt({0 if dirty[0] else len(lq)-1-i})')
            if dirty[0]: lq.clear(); dirty[0] = False
            else: del lq[:i + 1]
        def vwait(g):
            if g not in vq: return
            i = vq.index(g)
            em(f's_waitcnt vmcnt({len(vq)-1-i})')
            del vq[:i + 1]
        def run(t, n):
            kind, p = t[2], t[3]
            if kind == 'X':
                pool = BIG if (o.chain > 1 or p[-1] == 'h' or (p[2] == 'rem' and p[1] == 'D')) else XRING
                r = [x for x in pool if busy.get(x, -1) <= n and last[p] < until.get(x, 10**9)]
                assert r, ('no x register', p, n)
                r = min(r, key=lambda x: (until.get(x, 10**9), busy.get(x, -1)))
                busy[r] = last[p]; xreg[p] = r
                arr, ch, s_ = p[1], p[2], p[3]
                if o.nolds and n > 9 * 30: return
                if ch == 'rem': em(f'ds_read_b128 {vr(r,4)}, v{VXOR if arr == "O" else VXDR} offset:{288*s_}')
                else: em(f'ds_read_b128 {vr(r,4)}, v{VXO if arr == "O" else VXD} offset:{64*ch+288*s_}')
                lq.append(p)
            elif kind == 'W':
                g = p
                if o.tagp and g < 16:
                    r = min(freepairs(n, wlast[g]), key=lambda x: (until.get(x, 10**9), busy.get(x, -1)))
                    busy[r] = busy[r + 4] = wlast[g]; wr[g] = r + 2
                    assert g == wn[0]; wn[0] += 1
                    lastw[0] = n
                    em(f'buffer_load_dwordx4 {vr(r,4)}, v{VWL}, {sr(S_WS)}, s50 offen offset:{2048*(g%2)}')
                    em(f'buffer_load_dwordx4 {vr(r+4,4)}, v{VWL}, {sr(S_WS)}, s50 offen offset:{2048*(g%2)+1024}')
                    vq.append(('h', g)); vq.append(g)
                    if g % 2 == 1:
                        if n < 0: em('s_add_u32 s50, s50, 4096')
                        else: later.append('s_add_u32 s50, s50, 4096')
                    return
                r = min(freeregs(n, wlast[g]), key=lambda x: (until.get(x, 10**9), busy.get(x, -1)))
                busy[r] = wlast[g]; wr[g] = r
                assert g == wn[0]; wn[0] += 1
                lastw[0] = n
                if o.now and g > 40: return
                if o.wsame and g > 40:
                    em(f'buffer_load_dwordx4 {vr(r,4)}, v{VWL}, {sr(S_WS)}, s{WSO} offen offset:{1024*(g%4)}{wflags}'); vq.append(g); return
                em(f'buffer_load_dwordx4 {vr(r,4)}, v{VWL}, {sr(S_WS)}, s{WSO} offen offset:{1024*(g%4)}{wflags}')
                if g % 4 == 3:
                    if n < 0: em(f's_add_u32 s{WSO}, s{WSO}, 4096')
                    else: later.append(f's_add_u32 s{WSO}, s{WSO}, 4096')
                vq.append(g)
            elif kind == 'L':
                em(p[0].replace('offset:pair', 'offset:24').replace(f'v{VF+1} offset:24', f'v{VF+5} offset:24')); lq.append(p[1])
            elif kind == 'C':
                lwait(p[1]); em(p[0])
            elif kind == 'I':
                for x in p: em(x)
            elif kind == 'A':
                em('s_mov_b64 exec, 1')
                if p == 'pair': em(f'ds_add_u32 v{VF+5}, v{VF+2} offset:24')
                else: em(f'ds_add_u32 v{VF+1}, v{VF+2} offset:{p}')
                em('s_mov_b64 exec, -1')
                lq.append(('a', p))
            elif kind == 'Q':
                p, hf = p
                lwait(('pr', p))
                q = ACC['Q'] + 4 * p; t_ = TMP + 4 * (p & (3 if o.chain > 1 else 1))
                for i in (2 * hf, 2 * hf + 1): em(f'v_add_f32 v{q+i}, v{q+i}, v{t_+i}')
            elif kind == 'S':
                assert not any(isinstance(x, tuple) and x[0] == 's' for x in vq)
                em(p); vq.append(('s', n))
            elif kind == 'F':
                em(f's_mov_b32 s{FO}, {128*p[1]}')
                em(f'buffer_load_dword v{VF+4}, v{p[0]}, {sr(S_WS)}, s{FO} offen {o.fflags}'); vq.append(('f', p[2]))
            elif kind == 'K':
                kcheck(p)
            elif kind == 'G':
                vwait(('f', p)); em(f'v_cmp_ne_u32 vcc, v{VF+3}, v{VF+4}')
            elif kind == 'P':
                em(f'v_mov_b32 v{VF+7}, {p}')
                em('s_mov_b64 exec, 1')
                em(f'ds_max_u32 v{VF+1}, v{VF+7}')
                em('s_mov_b64 exec, -1')
                lq.append(('p', p))
        def epi(j, pk):
            q = ACC['Q'] + 4 * j
            t = TMP + 8 * (j & 1)
            I = []
            if pk:
                I.append(f'v_pk_mul_f32 {vr(t,2)}, {vr(q,2)}, s[{C2L}:{C2L+1}]')
                I.append(f'v_pk_mul_f32 {vr(t+2,2)}, {vr(q+2,2)}, s[{CNL}:{CNL+1}]')
            else:
                for i in (0, 1): I.append(f'v_mul_f32 v{t+i}, s{C2L}, v{q+i}')
                for i in (2, 3): I.append(f'v_mul_f32 v{t+i}, s{CNL}, v{q+i}')
            I.append(f'v_min_f32 v{t}, s{C60}, v{t}')
            I.append(f'v_min_f32 v{t+1}, s{C60}, v{t+1}')
            for i in (0, 1, 2, 3): I.append(f'v_exp_f32 v{t+i}, v{t+i}')
            if pk:
                I.append(f'v_pk_add_f32 {vr(t+4,2)}, {vr(t,2)}, 1.0 op_sel_hi:[1,0]')
                I.append(f'v_pk_add_f32 {vr(t+6,2)}, {vr(t,2)}, -1.0 op_sel_hi:[1,0]')
                I.append(f'v_pk_fma_f32 {vr(t+4,2)}, {vr(t+4,2)}, {vr(t+2,2)}, {vr(t+4,2)}')
            else:
                for i in (0, 1): I.append(f'v_add_f32 v{t+4+i}, 1.0, v{t+i}')
                for i in (0, 1): I.append(f'v_fma_f32 v{t+4+i}, v{t+4+i}, v{t+2+i}, v{t+4+i}')
            I.append(f'v_rcp_f32 v{t+4}, v{t+4}')
            I.append(f'v_rcp_f32 v{t+5}, v{t+5}')
            if pk:
                I.append('s_nop 0')
                I.append(f'v_pk_mul_f32 {vr(t+6,2)}, {vr(t+6,2)}, {vr(t+4,2)}')
            else:
                for i in (0, 1): I.append(f'v_add_f32 v{t+6+i}, -1.0, v{t+i}')
                for i in (0, 1): I.append(f'v_mul_f32 v{t+6+i}, v{t+6+i}, v{t+4+i}')
            I.append(f'v_cvt_pk_bf16_f32 v{q}, v{t+6}, v{t+7}')
            I.append(f'buffer_store_dword v{q}, v{VOUT + j//3}, {sr(S_OUT)}, 0 offen offset:{1152*(j%3)} {o.oflags if j < o.oj else ""}')
            return I
        def cost(x): return 2 if x.startswith(('v_exp', 'v_rcp', 'buffer')) else 1
        while tasks and tasks[0][0] < 0: run(tasks.pop(0), -1)
        if o.tagp:
            for g in (0, 2):
                vwait(g + 1)
                for gg in (g + 4, g + 5):
                    t_ = [t for t in tasks if t[2] == 'W' and t[3] == gg][0]
                    tasks.remove(t_); run(t_, -1)
                kcheck(g)
                em('s_nop 2')
                em('s_cmp_lg_u64 s[48:49], 0')
                em(f's_cbranch_scc1 L_ks{typ}{g}')
                em(f'L_kb{typ}{g}:')
        inv = {n: v for v, n in vstart.items()}
        lastop = {j: max(n for n in range(N) if ops[n][1] == j) for j in range(9)}
        for n, (g, j) in enumerate(ops):
            if n in inv and o.padto and o.padev == 'm5' and inv[n] == o.padstep:
                e('s_memrealtime s[100:101]'); dirty[0] = True
            if n in inv and o.diag:
                v = inv[n]
                if o.diag == 2 and v in o.marks:
                    kk = o.marks.index(v)
                    e(f's_memtime s[{ST0+2*kk}:{ST0+2*kk+1}]'); dirty[0] = True
                if o.diag in (1, 4) and v == 33: stamp(5); stamp(6); dirty[0] = True
            k = key(n)
            assert k in xreg, (k, n)
            lwait(k); vwait(g)
            acc = S[g][4]
            d = ACC[acc] + 4 * j
            if g == 0: cs = '0'
            elif acc == 'Q' and S[g-1][4] == 'P': cs = vr(ACC['P'] + 4 * j, 4)
            else: cs = vr(d, 4)
            em(f'v_mfma_f32_16x16x32_bf16 {vr(d,4)}, {vr(wr[g],4)}, {vr(xreg[k],4)}, {cs}' if not o.swapab else f'v_mfma_f32_16x16x32_bf16 {vr(d,4)}, {vr(xreg[k],4)}, {vr(wr[g],4)}, {cs}')
            if n == lastop[j]: since[j] = 0
            while later: em(later.pop(0))
            budget = 2
            TC = {'X': 1, 'W': 2, 'L': 2, 'C': 1, 'I': 0, 'A': 1, 'Q': 2, 'S': 2, 'F': 2, 'G': 1, 'P': 2, 'K': 2}
            while True:
                ready = [t for t in tasks if t[0] <= n and wok(t, n)]
                if not ready: break
                t = min(ready, key=lambda t: t[1])
                assert t[1] >= n, ('late', t, n)
                if TC[t[2]] > budget and t[1] > n:
                    fit = [u for u in ready if TC[u[2]] <= budget]
                    if not fit: break
                    t = min(fit, key=lambda t: t[1])
                tasks.remove(t); run(t, n); budget -= TC[t[2]]
            for jj in sorted(since):
                if 8 <= since[jj] < 10**6:
                    fill += epi(jj, False); since[jj] = 10**6
            budget += o.nfill - 2
            while fill and budget >= cost(fill[0]):
                budget -= cost(fill[0])
                if fill[0].startswith('buffer_store'):
                    q_ = int(re.match(r'buffer_store_dword v(\d+)', fill[0]).group(1))
                    until.pop(q_, None); busy[q_] = n + 2
                em(fill.pop(0))
            assert all(t[1] > n for t in tasks), ('late', n, [t for t in tasks if t[1] <= n])
        assert not tasks
        stamp(7)
        while fill: em(fill.pop(0))
        for jj in [jj for jj in sorted(since) if since[jj] < 10**6]:
            if since[jj] < 8: em(f's_nop {8-since[jj]-1}')
            for x in epi(jj, True): em(x)
        stamp(8)
        if o.padto and o.padev[0] == 'm': padloop(typ)
        if o.diag == 1:
            e('s_waitcnt vmcnt(0)')
            stamp(9)
            dump(10)
        if o.diag == 2:
            kk = len(o.marks)
            e(f's_memtime s[{ST0+2*kk}:{ST0+2*kk+1}]')
            dump(10)
        e('s_endpgm')
        for tag, off, cnt in slow:
            e(f'L_slow{typ}{tag}:')
            e(f'ds_read_b32 v{VC}, v{VF+5 if off == "pair" else VF+1} offset:{24 if off == "pair" else off}')
            e('s_waitcnt lgkmcnt(0)')
            e(f'v_cmp_ne_u32 vcc, {cnt}, v{VC}')
            e('s_nop 4')
            e(f's_cbranch_vccnz L_slow{typ}{tag}')
            e(f's_branch L_back{typ}{tag}')
        for ci, va in fslow: flagwait(f'{typ}{ci}', va, f'L_fb{typ}{ci}')
        for g, a0_, a1_ in kslow:
            e(f'L_ks{typ}{g}:')
            if o.diag: e(f's_add_u32 s95, s95, {1 << 25}')
            e(f'ds_read_b32 v{VF+7}, v{VF+1} offset:12')
            e(f's_add_u32 s47, s96, {2048*g}')
            e('s_waitcnt lgkmcnt(0)')
            for i, a_ in enumerate((a0_, a0_ + 4, a1_, a1_ + 4)):
                e(f'buffer_load_dwordx4 {vr(a_,4)}, v{VWL}, {sr(S_WS)}, s47 offen offset:{1024*i} sc1')
            e(f'v_readfirstlane_b32 s46, v{VF+7}')
            e(f's_add_u32 s{NPOLL}, s{NPOLL}, 1')
            e('s_waitcnt vmcnt(0)')
            e('s_cmp_lg_u32 s46, 0')
            e(f's_cbranch_scc1 L_kb{typ}{g}')
            e(f'v_bitop3_b32 v{VC}, v{a0_+1}, v{a0_+6}, v{VF+3} bitop3:0x7e')
            e(f'v_bitop3_b32 v{VC+1}, v{a1_+1}, v{a1_+6}, v{VF+3} bitop3:0x7e')
            e(f'v_or_b32 v{VC}, v{VC}, v{VC+1}')
            e(f'v_cmp_ne_u32 s[48:49], 0, v{VC}')
            e('s_nop 2')
            e('s_cmp_eq_u64 s[48:49], 0')
            e(f's_cbranch_scc1 L_kb{typ}{g}')
            e(f's_cmp_lg_u32 s{NPOLL}, {o.maxpoll}')
            e(f's_cbranch_scc1 L_ks{typ}{g}')
            e(f'v_mov_b32 v{VF+7}, 0x10000')
            e('s_mov_b64 exec, 1')
            e(f'ds_add_u32 v{VF+1}, v{VF+7} offset:4')
            e('s_mov_b64 exec, -1')
            e(f's_branch L_ks{typ}{g}')

    mark['help0'] = len(e.L)
    if not o.hfirst: e('.p2align 6')
    e('L_helper:')
    role[0] = 'h'
    e(f's_setprio {o.hprio}')
    e(f's_sub_u32 s{TW0}, s{WAVE}, 4')
    e(f's_mov_b32 s{TW1}, s{WAVE}')
    e(f's_sub_u32 s{PAIR}, s2, {NPROD}')
    e(f's_cselect_b32 s{PAIR}, s2, s{PAIR}')
    e(f's_mov_b32 s{MODE}, 0')
    e(f's_mov_b32 s{NOTASK}, s2')
    e(f's_mov_b32 s{HAS3}, s{TW0}')
    e(f's_lshl_b32 s{SCRB}, s{TW0}, 12')
    e(f's_add_u32 s{SCRB}, s{SCRB}, {SCR}')
    e('L_prod:')
    T = [(28, TW0, 2, 52, 0), (36, TW1, 4, 53, 2048), (44, TW2, 6, 54, 16384)]
    c, kp, q, cc, kk, t = 46, 47, 48, 49, 50, 51
    b = TS
    e('v_mov_b32 v19, 4320')
    e('v_and_b32 v23, 3, v1')
    e('v_lshrrev_b32 v24, 3, v1')
    e('v_mul_u32_u24 v24, 576, v24')
    e('v_bfe_u32 v25, v1, 2, 1')
    e('v_mul_u32_u24 v25, 288, v25')
    e('v_add_u32 v24, v24, v25')
    for (vb, sw, vl, vs, so) in T:
        e(f'v_lshl_add_u32 v8, s{sw}, 2, v23' if sw != TW2 else 'v_add_u32 v8, 32, v23')
        e('v_cmp_le_u32 vcc, 18, v8')
        e(f'v_lshl_add_u32 v{vl}, v8, 4, v24')
        e(f'v_add_u32 v9, v{vl}, v19')
        e(f'v_cndmask_b32 v{vl}, v{vl}, v9, vcc')
    e(f's_and_b32 s{c}, s{PAIR}, 15')
    e(f's_lshr_b32 s{kp}, s{PAIR}, 4')
    e(f's_mul_i32 s{b}, s{c}, 165888')
    e(f's_mul_i32 s{t}, s{kp}, 9216')
    e(f's_add_u32 s{b}, s{b}, s{t}')
    e(f's_add_u32 s{b+1}, s{b}, 82944')
    e(f's_mov_b32 s{S_W+2}, 2571264')
    e(f's_mov_b32 s{S_W+3}, 0x20000')
    e(f's_mov_b32 s{S_WO+3}, 0x20000')
    e(f's_cmp_lg_u32 s{c}, 15')
    e(f's_cselect_b32 s{S_WO+2}, 2571264, 0')
    e(f's_mov_b32 m0, s{SCRB}')
    e('s_waitcnt lgkmcnt(0)')
    e(f's_mov_b32 s{S_W}, s6')
    e(f's_and_b32 s{S_W+1}, s7, 0xffff')
    e(f's_mov_b32 s{S_WO}, s6')
    e(f's_and_b32 s{S_WO+1}, s7, 0xffff')
    e(f's_cmp_ge_u32 s{NOTASK}, {NTASK}')
    e('s_cbranch_scc1 L_a3')
    def cond3(lbl):
        e(f's_cmp_lg_u32 s{HAS3}, 0')
        e(f's_cbranch_scc1 {lbl}')
    for ti, (vb, sw, vl, vs, so) in enumerate(T):
        if ti == 2: cond3('L_a3')
        if ti == 1: e('s_addk_i32 m0, 1024'); e('s_nop 0')
        e(f'buffer_load_dwordx4 v{vl}, {sr(S_W)}, s{b} offen lds')
        e('s_addk_i32 m0, 1024')
        e('s_nop 0')
        e(f'buffer_load_dwordx4 v{vl}, {sr(S_WO)}, s{b+1} offen lds')
        if ti == 1: e(f's_addk_i32 m0, {16384-3072}')
    e('L_a3:')
    stamp(1)
    e(f's_cmp_lg_u32 s{MODE}, 0')
    e('s_cbranch_scc1 L_a4')
    e(f's_load_dword s{TAG}, s[12:13], {NONCE}')
    e(f's_lshr_b32 s{EARLY}, 0x33, s{kp}')
    e(f's_and_b32 s{EARLY}, s{EARLY}, 1')
    e(f's_sub_u32 s{XK}, 2, s{EARLY}')
    e(f's_lshl_b32 s{t}, s{kp}, 1')
    e(f's_lshr_b32 s{YT}, {(3<<12)+(3<<14)+(3<<16)}, s{t}')
    e(f's_and_b32 s{YT}, s{YT}, 3')
    e(f's_lshr_b32 s{t}, s{kp}, 1')
    e(f's_cmp_ge_u32 s2, {NPROD}')
    e(f's_cselect_b32 s{EARLY}, 0, s{EARLY}')
    e(f's_cselect_b32 s{XK}, 3, s{XK}')
    e(f's_cselect_b32 s{YT}, s{t}, s{YT}')
    e(f's_cmp_ge_u32 s2, {NPROD+32}')
    e(f's_cselect_b32 s{XK}, 0, s{XK}')
    e(f's_cmp_ge_u32 s2, {NTASK}')
    e(f's_cselect_b32 s{YT}, 0, s{YT}')
    if not o.b0early:
        e(f's_cmp_lg_u32 s{EARLY}, 0')
        e('s_cbranch_scc1 L_a4')
    e('s_barrier')
    e('L_a4:')
    e(f's_mov_b32 s{MASK}, 0xffff0000')
    e(f's_mov_b32 s{NPOLL}, 0')
    srd(e, S_WS, 12, WS_REC)
    srd(e, S_DBG, 10, 256)
    e(f'v_mov_b32 v10, {CNT}')
    e(f'v_mov_b32 v20, {(256 - 18*NSTR) & 0xffffffff}')
    e(f'v_mov_b32 v26, {NSTR}')
    e('v_bfe_u32 v21, v1, 2, 2')
    e('v_lshlrev_b32 v21, 7, v21')
    e('v_and_b32 v22, 1, v1')
    e('v_lshl_add_u32 v21, v22, 6, v21')
    e('v_bfe_u32 v22, v1, 1, 1')
    e('v_lshl_add_u32 v21, v22, 3, v21')
    e('v_lshrrev_b32 v22, 4, v1')
    e('v_lshl_add_u32 v21, v22, 4, v21')
    e(f'v_add_u32 v21, s{SCRB}, v21')
    e('v_and_b32 v25, 15, v1')
    e('v_lshlrev_b32 v25, 4, v25')
    for (vb, sw, vl, vs, so) in T:
        e(f'v_lshl_add_u32 v8, s{sw}, 2, v22' if sw != TW2 else 'v_add_u32 v8, 32, v22')
        e('v_cmp_le_u32 vcc, 18, v8')
        e(f'v_mad_u32_u24 v{vs}, v8, v26, v25')
        e(f'v_add_u32 v9, v{vs}, v20')
        e(f'v_cndmask_b32 v{vs}, v{vs}, v9, vcc')
    if o.tagp:
        e(f's_cmp_eq_u32 s{WAVE}, 4')
        e(f's_cselect_b32 s{t}, 1, s{EARLY}')
        e(f's_cmp_ge_u32 s{NOTASK}, {NTASK}')
        e(f's_cselect_b32 s{t}, 0, s{t}')
        e(f's_cmp_lg_u32 s{t}, 0')
        e(f's_cselect_b32 s{t}, 4, -16')
        e(f'v_mov_b32 v9, s{t}')
        e('s_waitcnt lgkmcnt(0)')
        e('s_mov_b64 exec, 1')
        e(f'buffer_load_dword v27, v9, {sr(S_DBG)}, 0 offen sc1')
        e('s_mov_b64 exec, -1')
        e(f's_lshr_b32 s97, 0x33, s{kp}')
        e('s_and_b32 s97, s97, 1')
        e(f's_lshr_b32 s96, s{kp}, 2')
        e('s_lshl_b32 s96, s96, 4')
        e(f's_add_u32 s96, s96, s{c}')
        e('s_lshl_b32 s96, s96, 2')
        e(f's_and_b32 s{t}, s{kp}, 1')
        e(f's_add_u32 s96, s96, s{t}')
        e('s_lshl_b32 s96, s96, 9')
        e(f's_add_u32 s96, s96, {WOFF + 2*NSTEP*1024}')
    e(f's_lshr_b32 s{q}, s{kp}, 1')
    e(f's_and_b32 s{cc}, s{c}, 7')
    e(f's_lshr_b32 s{kk}, s{c}, 3')
    e(f's_and_b32 s{t}, s{kp}, 1')
    e(f's_cmp_eq_u32 s{kp}, 8')
    e(f's_cselect_b32 s{cc}, s{cc}, s{c}')
    e(f's_cselect_b32 s{kk}, s{kk}, s{t}')
    e(f's_lshl_b32 s{kk}, s{kk}, 9')
    e(f's_add_u32 s{kk}, s{kk}, {WOFF}')
    e(f's_lshl_b32 s{t}, s{q}, 4')
    e(f's_add_u32 s{b+2}, s{t}, s{cc}')
    e(f's_sub_u32 s{b+3}, s{b+2}, s{q}')
    e(f's_cmp_ge_u32 s{q}, 2')
    e(f's_cselect_b32 s{b+4}, 74, 0')
    e(f's_add_u32 s{b+4}, s{b+4}, s{b+2}')
    e(f's_cmp_lt_u32 s{cc}, 2')
    e(f's_cselect_b32 s{t}, 32, 136')
    e(f's_add_u32 s{t}, s{t}, s{cc}')
    e(f's_cmp_eq_u32 s{kp}, 8')
    e(f's_cselect_b32 s{b+4}, s{t}, s{b+4}')
    e(f's_add_u32 s{b+2}, s{b+2}, 34')
    e(f's_add_u32 s{b+3}, s{b+3}, 144')
    for k in (2, 3, 4):
        e(f's_lshl_b32 s{b+k}, s{b+k}, 10')
        e(f's_add_u32 s{b+k}, s{b+k}, s{kk}')
    e(f's_cmp_eq_u32 s{kp}, 8')
    e(f's_cselect_b32 s{t}, 1, 2')
    e(f's_cmp_eq_u32 s{c}, 15')
    e(f's_cselect_b32 s{b+5}, s{t}, 0')
    e(f's_lshl_b32 s46, s{WAVE}, 2')
    e(f's_add_u32 s46, s46, {CNT+16}')
    e('v_mov_b32 v55, s46')
    if o.tagp:
        e('s_waitcnt vmcnt(1)')
        stamp(2)
        e(f's_cmp_ge_u32 s{NOTASK}, {NTASK}')
        e('s_cbranch_scc1 L_x9')
    else:
        e('v_mov_b32 v27, 0')
        e('v_mov_b32 v9, 4')
        e('s_waitcnt vmcnt(0) lgkmcnt(0)')
        stamp(2)
        e(f's_cmp_ge_u32 s{NOTASK}, {NTASK}')
        e('s_cbranch_scc1 L_x9')
        e(f's_cmp_lg_u32 s{WAVE}, 4')
        e('s_cbranch_scc1 L_a5')
        e('s_mov_b64 exec, 1')
        e(f'buffer_load_dword v27, v9, {sr(S_DBG)}, 0 offen sc1')
        e('s_mov_b64 exec, -1')
        e('L_a5:')
    for (vb, sw, vl, vs, so) in T:
        for tap in range(2):
            for half in range(2):
                e(f'ds_read_b64_tr_b16 {vr(vb+4*tap+2*half,2)}, v21 offset:{so+1024*tap+512*half}')
    nlab = [0]
    def st01(vb, vs):
        nlab[0] += 1
        e(f'buffer_store_dwordx4 {vr(vb,4)}, v{vs}, {sr(S_WS)}, s{b+2} offen sc1')
        e(f's_cmp_eq_u32 s{b+5}, 2')
        e(f's_cbranch_scc1 L_skip{nlab[0]}')
        e(f'buffer_store_dwordx4 {vr(vb+4,4)}, v{vs}, {sr(S_WS)}, s{b+3} offen sc1')
        e(f'L_skip{nlab[0]}:')
    def st01all(lbl):
        st01(T[0][0], T[0][3]); st01(T[1][0], T[1][3])
        cond3(lbl)
        st01(T[2][0], T[2][3])
    def dosum(vb, tb, ob):
        for i in range(8):
            e(f'v_lshlrev_b32 v{tb+2*i}, 16, v{vb+i}')
            e(f'v_and_b32 v{tb+2*i+1}, s{MASK}, v{vb+i}')
        for i in range(4):
            e(f'v_pk_add_f32 {vr(tb+2*i,2)}, {vr(tb+2*i,2)}, {vr(tb+8+2*i,2)}')
        for i in range(4):
            e(f'v_cvt_pk_bf16_f32 v{ob+i}, v{tb+2*i}, v{tb+2*i+1}')
    def ldswait(off, cmp, operand, tag, slp):
        e(f'L_lw{tag}:')
        e(f'ds_read_b32 v11, v10 offset:{off}')
        e('s_waitcnt lgkmcnt(0)')
        e('v_and_b32 v11, 0xff, v11')
        e(f'v_cmp_{cmp}_u32 vcc, {operand}, v11')
        e('s_nop 4')
        e(f's_cbranch_vccnz L_lx{tag}')
        e(f's_sleep {slp}')
        e(f's_branch L_lw{tag}')
        e(f'L_lx{tag}:')
    SOR = lambda ti: (210 + 8 * ti) if o.tagp else (240 + 4 * ti)
    e(f's_or_b32 s46, s{EARLY}, s{MODE}')
    e(f's_cmp_eq_u32 s{XK}, 2')
    e('s_cselect_b32 s47, 1, s46')
    if o.xl: e('s_mov_b32 s46, s47')
    e('s_cmp_eq_u32 s47, 0')
    e('s_cbranch_scc1 L_x9')
    for ti, (vb, sw, vl, vs, so) in enumerate(T):
        if ti == 2: cond3('L_x3')
        e(f's_waitcnt lgkmcnt({8-4*ti})')
        dosum(vb, 64 + 16 * ti, SOR(ti))
        e('s_cmp_eq_u32 s46, 0')
        e(f's_cbranch_scc1 L_x5{ti}')
        if o.tagp:
            e('s_cmp_eq_u32 s97, 0')
            e(f's_cbranch_scc1 L_x6{ti}')
            if ti == 0:
                e('s_waitcnt vmcnt(0)')
                e('v_readfirstlane_b32 s48, v27')
                e(f's_add_u32 s49, s{TAG}, {TAGINC}')
                e('s_not_b32 s47, s49')
                e(f's_or_b32 s48, s48, s{MODE}')
                e('s_cselect_b32 s49, s47, s49')
            e(f'v_mov_b32 v{SOR(ti)-1}, s49')
            e(f'v_mov_b32 v{SOR(ti)+4}, s49')
            e(f'buffer_store_dwordx4 {vr(SOR(ti)-2,4)}, v{vs}, {sr(S_WS)}, s96 offen sc1')
            e(f'buffer_store_dwordx4 {vr(SOR(ti)+2,4)}, v{vs}, {sr(S_WS)}, s96 offen offset:1024 sc1')
            e(f's_branch L_x5{ti}')
            e(f'L_x6{ti}:')
        e(f'buffer_store_dwordx4 {vr(SOR(ti),4)}, v{vs}, {sr(S_WS)}, s{b+4} offen sc1')
        e(f'L_x5{ti}:')
    e('L_x3:')
    e(f's_cmp_eq_u32 s{MODE}, 0')
    e('s_cbranch_scc1 L_x9')
    e('L_x2:')
    e('s_waitcnt lgkmcnt(0)')
    st01all('L_x4')
    e('L_x4:')
    e(f's_cmp_eq_u32 s{MODE}, 0')
    e('s_cbranch_scc1 L_x9')
    e('s_waitcnt vmcnt(0)')
    e(f's_add_u32 s{PAIR}, s{PAIR}, 1')
    e(f's_cmp_lt_u32 s{PAIR}, {NPROD}')
    e('s_cbranch_scc1 L_prod')
    e('v_mov_b32 v11, 1')
    e('ds_write_b32 v10, v11 offset:12')
    e('s_endpgm')
    e('L_x9:')
    if o.tagp:
        e(f's_cmp_eq_u32 s{EARLY}, 0')
        e('s_cbranch_scc1 L_x10')
        e('s_barrier')
        e('L_x10:')
    stamp(3)
    decode()
    e('v_subrev_u32 v4, 256, v0')
    e('v_min_u32 v4, 251, v4')
    e('v_mul_u32_u24 v3, 3641, v4')
    e('v_lshrrev_b32 v3, 16, v3')
    e('v_mul_u32_u24 v2, 18, v3')
    e('v_sub_u32 v2, v4, v2')
    e(f'v_mul_u32_u24 v3, {R}, v3')
    e(f'v_min_u32 v3, {160-R}, v3')
    e('v_mul_u32_u24 v4, 1152, v3')
    e('v_lshl_add_u32 v4, v2, 4, v4')
    e(f'v_add_u32 v12, s{XB}, v4')
    e('v_mul_u32_u24 v18, 288, v3')
    e('v_lshl_add_u32 v18, v2, 4, v18')
    e(f'v_add_u32 v19, {X_D1}, v18')
    srd(e, S_X, 4, 1152000, add=BOFF)
    e(f's_add_u32 s46, s{TAG}, {TAGINC}')
    e('v_mov_b32 v56, s46')
    e('s_lshl_b32 s46, s2, 7')
    e('v_mov_b32 v58, s46')
    e(f's_add_u32 s46, s{PAIR}, {NPROD}')
    e('s_lshl_b32 s46, s46, 7')
    e('v_mov_b32 v59, s46')
    def publish(slot, vflag, tag, first, n=0):
        e('s_mov_b64 exec, 1')
        e(f's_waitcnt vmcnt({n})')
        if first: stamp(4)
        if o.padto and tag == 'x': stamp(12)
        e('v_cmp_ne_u32 vcc, 0, v27')
        e('v_not_b32 v57, v56')
        e('s_nop 0')
        e('v_cndmask_b32 v57, v56, v57, vcc')
        e(f'ds_write_b32 v55, v57 offset:{slot}')
        e(f'ds_read_b128 v[20:23], v10 offset:{32+slot}')
        e('s_waitcnt lgkmcnt(0)')
        for i in range(4): e(f'v_xor_b32 v{20+i}, v{20+i}, v56')
        e('v_or3_b32 v20, v20, v21, v22')
        e('v_or_b32 v20, v20, v23')
        e('v_cmp_eq_u32 vcc, 0, v20')
        e('s_and_b64 exec, exec, vcc')
        e(f's_cbranch_execz L_nl{tag}')
        e(f'buffer_store_dword v56, v{vflag}, {sr(S_WS)}, 0 offen sc1')
        e(f'L_nl{tag}:')
        e('s_mov_b64 exec, -1')
    if o.tagp and o.xl:
        e(f's_cmp_lg_u32 s{XK}, 2')
        e('s_cbranch_scc1 L_noflag')
        publish(0, 58, 'x', True)
        e(f's_mov_b32 s{XK}, 0')
    elif not o.tagp:
        e(f's_cmp_eq_u32 s{EARLY}, 0')
        e('s_cbranch_scc1 L_noflag')
        publish(0, 58, 'x', True)
        if not o.b0early: e('s_barrier')
    e('L_noflag:')
    e(f's_setprio {o.hprio2}')
    RAW, ORAW = 64, 120
    EU = [184, 192]
    OU, DT, DO = 200, 208, 216
    xi = [0]
    NL = R + 1
    hq = []
    def eload():
        k = xi[0]
        if k >= NL: return
        a_ = 12
        if k:
            a_ = 13 + (k & 3)
            e(f'v_add_u32 v{a_}, {1152*k}, v12')
        e(f'buffer_load_dwordx4 {vr(RAW+4*k,4)}, v{a_}, {sr(S_X)}, 0 offen')
        xi[0] += 1
        hq.append(('e', k))
    if o.etouch:
        e(f's_cmp_lt_u32 s2, {NTASK}')
        e('s_cbranch_scc1 L_net')
        e(f's_and_b32 s46, s{NB}, 1')
        e(f's_mul_i32 s46, s46, {1152*6}')
        e('v_add_u32 v12, s46, v12')
        for _ in range(7): eload()
        e('v_subrev_u32 v12, s46, v12')
        e('s_waitcnt vmcnt(0)')
        e('L_net:')
        xi[0] = 0; hq.clear()
    YA = 232
    e(f's_cmp_eq_u32 s{b+5}, 2')
    e('s_cselect_b32 s46, 0x80000000, 0')
    e(f's_cmp_lg_u32 s{HAS3}, 0')
    e('s_cselect_b32 s47, 0x80000000, 0')
    e('s_or_b32 s48, s46, s47')
    for i in range(6):
        m_ = {0: None, 1: 46, 2: None, 3: 46, 4: 47, 5: 48}[i]
        e(f'v_mov_b32 v{YA+i}, v{52+i//2}' if m_ is None else f'v_or_b32 v{YA+i}, s{m_}, v{52+i//2}')
    def ystore(i, a_):
        e(f'buffer_store_dwordx4 {vr(28+4*i,4)}, v{a_}, {sr(S_WS)}, s{b+2+(i&1)} offen sc1')
        hq.append(('y', i))
    stamp(5)
    ldswait(8, 'eq', 4, 'o', 1)
    def unpack(dst, s_):
        for i in range(4):
            e(f'v_lshlrev_b32 v{dst+2*i}, 16, v{s_+i}')
            e(f'v_and_b32 v{dst+2*i+1}, s{MASK}, v{s_+i}')
    def unpackE(dst, k):
        e(f's_waitcnt vmcnt({len(hq)-1-hq.index(("e", k))})')
        unpack(dst, RAW + 4 * k)
        eload()
    def diff(eu, out):
        for i in range(8): e(f'v_sub_f32 v{DT+i}, v{eu+i}, v{OU+i}')
        for i in range(4):
            e(f'v_cvt_pk_bf16_f32 v{out+i}, v{DT+2*i}, v{DT+2*i+1}')
    def opengate():
        if not o.gate: return
        e('v_mov_b32 v11, 0x100')
        e('s_mov_b64 exec, 1')
        e('ds_add_u32 v10, v11 offset:8')
        e('s_mov_b64 exec, -1')
    def rows(hook):
        stamp(6)
        for j in range(R):
            e(f'ds_read_b128 {vr(ORAW+4*j,4)}, v18 offset:{X_O+288*j}')
        unpackE(EU[0], 0)
        e('s_waitcnt lgkmcnt(0)')
        for j in range(R):
            o0 = DO + 8 * (j & 1)
            unpack(OU, ORAW + 4 * j)
            diff(EU[j & 1], o0)
            e(f'ds_write_b128 v18, {vr(o0,4)} offset:{X_D0+288*j}')
            unpackE(EU[(j + 1) & 1], j + 1)
            diff(EU[(j + 1) & 1], o0 + 4)
            e(f'ds_write_b128 v19, {vr(o0+4,4)} offset:{288*j}')
            hook(j)
    e(f's_cmp_ge_u32 s2, {NPROD + (32 if o.d0p else 0)}')
    e('s_cbranch_scc1 L_pathA')
    e(f's_cmp_lt_u32 s{XK}, 2')
    e('s_cbranch_scc1 L_nox')
    if o.d0p:
        e(f's_cmp_eq_u32 s{XK}, 3')
        e('s_cbranch_scc1 L_xd')
    for i in range(3):
        e(f'buffer_store_dwordx4 {vr(SOR(i),4)}, v{YA+2*i}, {sr(S_WS)}, s{b+4} offen sc1')
    if o.d0p:
        e('s_branch L_xe')
        e('L_xd:')
        for i in range(6): ystore(i, YA + i)
        e('L_xe:')
    if o.gearly:
        opengate()
        publish(0, 58, 'x2', True)
        e('s_branch L_nox2')
        e('L_nox:')
        opengate()
        e('L_nox2:')
    else:
        publish(0, 58, 'x2', True)
        e('L_nox:')
        opengate()
    hq.clear(); xi[0] = 0
    for _ in range(o.ein): eload()
    rows(lambda j: None)
    e('s_branch L_rowsdone')
    e('L_pathA:')
    if not o.d0p:
        e(f's_cmp_eq_u32 s{XK}, 3')
        e('s_cselect_b32 s47, 0, 0x80000000')
        for i in range(6): e(f'v_or_b32 v{20+i}, s47, v{YA+i}')
    hq.clear(); xi[0] = 0
    for _ in range(NL): eload()
    if not o.d0p:
        for i in range(6): ystore(i, 20 + i)
    def hookA(j):
        if j == o.grow:
            e(f's_waitcnt vmcnt({len(hq)-1-hq.index(("e", NL-1))})')
            opengate()
        if j == o.xrow and not o.d0p:
            e(f's_cmp_lg_u32 s{XK}, 3')
            e('s_cbranch_scc1 L_xp')
            publish(0, 58, 'x3', True)
            e('L_xp:')
    rows(hookA)
    e('L_rowsdone:')
    e('s_waitcnt lgkmcnt(0)')
    stamp(7)
    e('v_mov_b32 v11, 1')
    e('s_mov_b64 exec, 1')
    e('ds_add_u32 v10, v11 offset:16')
    e('s_mov_b64 exec, -1')
    e(f's_cmp_eq_u32 s{YT}, 0')
    e('s_cbranch_scc1 L_noy')
    e(f's_setprio {o.yprio}')
    e('L_yw:')
    e('ds_read_b64 v[20:21], v10')
    e('s_waitcnt lgkmcnt(0)')
    e('v_lshrrev_b32 v21, 14, v21')
    e('v_and_b32 v21, -4, v21')
    e('v_or_b32 v20, v20, v21')
    e(f'v_cmp_le_u32 vcc, s{YT}, v20')
    e('s_nop 4')
    e('s_cbranch_vccnz L_yx')
    e('s_sleep 4')
    e('s_branch L_yw')
    e('L_yx:')
    for i in range(6):
        ystore(i, YA + i)
        e(f's_waitcnt vmcnt({o.ythr})')
        if o.ysleep: e(f's_sleep {o.ysleep}')
    publish(16, 59, 'y', False)
    if o.diag == 1: stamp(8)
    e('L_noy:')
    e(f's_cmp_lg_u32 s{WAVE}, 4')
    e('s_cbranch_scc1 L_hend')
    e('L_guard:')
    e('ds_read_b32 v11, v10 offset:4')
    e('s_waitcnt lgkmcnt(0)')
    e('v_readfirstlane_b32 s46, v11')
    e('s_nop 3')
    e('s_cmp_eq_u32 s46, 4')
    e('s_cbranch_scc1 L_hend')
    e('s_cmp_lt_u32 s46, 0x10000')
    e('s_cbranch_scc0 L_rescue')
    e('s_sleep 16')
    e('s_branch L_guard')
    e('L_rescue:')
    e(f's_mov_b32 s{MODE}, 1')
    e(f's_mov_b32 s{HAS3}, 1')
    e(f's_mov_b32 s{NOTASK}, 0')
    e(f's_lshr_b32 s{TW0}, s{NB}, 1')
    e(f's_add_u32 s{TW1}, s{NB}, 9')
    e(f's_lshr_b32 s{TW1}, s{TW1}, 1')
    e(f's_mov_b32 s{PAIR}, 0')
    e('s_branch L_prod')
    e('L_hend:')
    if o.padto and o.padev[0] == 'h': padloop('h')
    if o.diag == 1:
        stamp(9)
        dump(10)
    e('L_end:')
    e('s_endpgm')
    if o.hfirst:
        m0, h0 = mark['main0'], mark['help0']
        e.L = e.L[:m0] + e.L[h0:] + ['.p2align 6'] + e.L[m0:h0]
    e('L_codeend:')
    e('.section .rodata,"a"')
    e('.p2align 6')
    e(f'.amdhsa_kernel {KN}')
    for x in ['next_free_vgpr 256', 'next_free_sgpr 102', 'accum_offset 256', 'group_segment_fixed_size 0', 'kernarg_size 40',
              'user_sgpr_count 2', 'user_sgpr_kernarg_segment_ptr 1', 'system_sgpr_workgroup_id_x 1']:
        e('  .amdhsa_' + x)
    e('.end_amdhsa_kernel')
    n = haz.check(e.L)
    if n: print(f'{n} hazards', file=sys.stderr)
    return f'; @launch grid=({NWG},1,1) block=(512,1,1) lds={LDS_BYTES}\n' + e.text()

def opts(argv=None):
    ap = argparse.ArgumentParser()
    ap.add_argument('-o', default='k.s')
    for nm, d in [('diag', 0), ('pf', 16), ('pf0', 8), ('wgap', 4), ('wres', 4), ('wsc1', 0), ('nfill', 2), ('fstride', 128), ('sleep', 0), ('maxpoll', 3000), ('nopoll', 0),
                  ('hprio', 3), ('hprio2', 0), ('mprio', 2), ('epre', 0), ('ein', 7), ('dpre', 7), ('b0early', 0), ('mtouch', 1), ('gate', 1), ('swapab', 0), ('d0p', 1), ('map', 1), ('chain', 4), ('flat0', 0), ('flatzz', 0), ('tagp', 0), ('tpf', 5), ('xl', 0), ('p0plain', 0), ('onepoll', 0), ('epoll', 1), ('ppoll', 0), ('yprio', 3), ('ysleep', 0), ('vt', 94), ('tla', 40), ('tskip', 1), ('gearly', 1), ('chfrom', 8), ('oj', 9), ('nolds', 0), ('now', 0), ('wsame', 0), ('grow', 1), ('vbd', 33), ('nopk', 1), ('padto', 0), ('npdelay', 0), ('opre', 5), ('etouch', 0), ('orev', 1), ('b0late', 1), ('dec', 1), ('tail', 1), ('xla', 9), ('hold', 1), ('prest', 0), ('xslot', 0), ('noclosed', 0), ('cpf', 1), ('hfirst', 1), ('warmb', 1), ('wsfirst', 0), ('flead', 6), ('ythr', 6), ('xrow', 3), ('padstep', 33), ('probe', 0), ('probeoff', 0x4000000)]:
        ap.add_argument('--' + nm, type=int, default=d)
    ap.add_argument('--oflags', default='')
    ap.add_argument('--pmap', default='18,18,18,18,18,18,18,18')
    ap.add_argument('--padev', default='m0')
    ap.add_argument('--trig', default='10,25,40')
    ap.add_argument('--yrow', default='0,7,2,9,5,11')
    ap.add_argument('--pfcs', default='4,5,5,8,8')
    ap.add_argument('--fflags', default='')
    ap.add_argument('--fleads', default='6,6,6,6,6')
    ap.add_argument('--marks', default='0,4,8,12,16,24,33,47,58')
    o = ap.parse_args(argv)
    o.marks = [int(x) for x in o.marks.split(',')]
    o.yrow = [int(x) for x in o.yrow.split(',')]
    o.pfcs = [int(x) for x in o.pfcs.split(',')]
    o.fleads = [int(x) for x in o.fleads.split(',')]
    o.trig = [int(x) for x in o.trig.split(',')]
    return o

if __name__ == '__main__':
    o = opts()
    open(o.o, 'w').write(gen(o))
```

```python
import re, sys, argparse
import haz

KN = 'standalone__autoregressive_conv_wavernn__speech_kernel'
NWG = 252
NPROD = 144
ARR = 160 * 288
X_D0, X_O, X_D1 = 0, ARR, 2 * ARR
CNT = 3 * ARR
SCR = CNT + 64
LDS_BYTES = SCR + 18432
NSTEP = 106
WOFF = int(__import__('os').environ.get('WOFF', '0x100000'), 0)
NONCE = 0x10000
DIAG = 0x800000
WS_REC = max(0x1000000, WOFF + 0x400000, int(__import__('os').environ.get('WSREC', '0'), 0))
TAGINC = 0x9E3779B9
R = 12

class Em:
    def __init__(self): self.L = []
    def __call__(self, s): self.L.append(s)
    def text(self): return '\n'.join(self.L) + '\n'

def vr(a, n=1): return f'v{a}' if n == 1 else f'v[{a}:{a+n-1}]'
def sr(a, n=4): return f's[{a}:{a+n-1}]'

def streams():
    out = []
    for typ in (0, 1):
        S = []
        pid = [0]
        def add(arr, chunk, cs, acc):
            for c in cs: S.append((pid[0], arr, chunk, c, acc))
            pid[0] += 1
        if typ == 0:
            add('O', 0, range(16), 'P'); add('O', 1, range(16), 'P'); add('O', 'rem', range(0, 2), 'P')
            for q in range(4): add('D', q, range(16), 'Q')
            add('D', 'rem', range(8), 'Q')
        else:
            add('O', 2, range(16), 'P'); add('O', 3, range(16), 'P'); add('O', 'rem', range(2, 8), 'P')
            for q in range(4): add('D', q, range(15), 'Q')
            add('D', 'rem', range(8), 'Q')
        assert len(S) == NSTEP
        out.append(S)
    return out

S_X, S_W, S_WO, S_WS, S_OUT, S_DBG = 20, 24, 28, 32, 36, 40
WAVE, NB, BAT, PAR, MB, BOFF = 14, 15, 16, 17, 18, 19
PAIR0 = 3
XB = 52
MASK = 53
TW0, TW1, TW2, PAIR, HAS3, MODE, SCRB, TAG, LAST, NPOLL = 44, 45, 54, 55, 56, 57, 58, 59, 60, 61
TS = 62
TYP, WSO = 68, 69
EARLY, XK, YT, FIDX = 90, 91, 92, 93
NOTASK = 94
NTASK = NPROD + 96
FO = 97
C2L, CNL, C60 = 90, 92, 94
ST0 = 70

def srd(e, d, ptr, rec, add=None):
    if add is None:
        e(f's_mov_b32 s{d}, s{ptr}')
        e(f's_and_b32 s{d+1}, s{ptr+1}, 0xffff')
    else:
        e(f's_add_u32 s{d}, s{ptr}, s{add}')
        e(f's_addc_u32 s{d+1}, s{ptr+1}, 0')
        e(f's_and_b32 s{d+1}, s{d+1}, 0xffff')
    e(f's_mov_b32 s{d+2}, {rec}')
    e(f's_mov_b32 s{d+3}, 0x20000')

def gen(o):
    e = Em()
    NSTR = 2 * NSTEP * 1024 + (65536 if o.tagp else 0)
    if o.tagp: o.epoll = 0
    role = ['m']
    def padloop(tag):
        e(f'L_pad{tag}:')
        e('s_memrealtime s[98:99]')
        e('s_waitcnt lgkmcnt(0)')
        e('s_sub_u32 s98, s98, s100')
        e(f's_cmp_lt_u32 s98, {o.padto}')
        e(f's_cbranch_scc1 L_pad{tag}')
    def stamp(k, lvl=1):
        if o.padto and lvl == 1 and o.padev == f'{role[0]}{k}':
            e('s_memrealtime s[100:101]'); e('s_waitcnt lgkmcnt(0)')
        if o.diag == lvl or (o.diag == 4 and lvl == 1): e(f's_memrealtime s[{ST0+2*k}:{ST0+2*k+1}]')
    def dump(nst):
        e('s_waitcnt lgkmcnt(0)')
        e('v_mov_b32 v250, 0')
        for k in range(nst): e(f'v_writelane_b32 v250, s{ST0+2*k}, {k}')
        e(f'v_writelane_b32 v250, s{NPOLL}, 13')
        e(f'v_writelane_b32 v250, s95, 12')
        e(f'v_writelane_b32 v250, s2, 14')
        e('s_getreg_b32 s46, hwreg(HW_REG_XCC_ID)')
        e('v_writelane_b32 v250, s46, 15')
        e(f's_lshl_b32 s46, s2, 3'); e(f's_add_u32 s46, s46, s{WAVE}'); e('s_lshl_b32 s46, s46, 6'); e(f's_add_u32 s46, s46, {DIAG}')
        e('v_lshl_add_u32 v251, v1, 2, s46')
        e('s_mov_b64 exec, 0xffff')
        e(f'buffer_store_dword v250, v251, {sr(S_WS)}, 0 offen')
        e('s_mov_b64 exec, -1')

    e('.amdgcn_target "amdgcn-amd-amdhsa--gfx950"')
    e('.text')
    e(f'.globl {KN}')
    e('.p2align 8')
    e(f'.type {KN},@function')
    e(f'{KN}:')
    e(f's_cmp_ge_u32 s2, {NWG}')
    e('s_cbranch_scc1 L_end')
    stamp(0)
    if o.padto and o.padev != 'm0': e('s_memrealtime s[100:101]')
    e('s_load_dwordx4 s[4:7], s[0:1], 0')
    e('s_load_dwordx4 s[8:11], s[0:1], 16')
    e('s_load_dwordx2 s[12:13], s[0:1], 32')
    e('v_lshrrev_b32 v2, 6, v0')
    e('v_and_b32 v1, 63, v0')
    e(f'v_readfirstlane_b32 s{WAVE}, v2')
    def decode():
        e('s_and_b32 s44, s2, 7')
        e('s_lshr_b32 s45, s2, 3')
        e('s_mul_i32 s46, s44, 31')
        e('s_min_u32 s44, s44, 4')
        e('s_add_u32 s46, s46, s44')
        e('s_add_u32 s46, s46, s45')
        if o.map == 0:
            e('s_mul_hi_u32 s47, s46, 68174085')
            e('s_mul_i32 s48, s47, 63')
            e('s_sub_u32 s48, s46, s48')
            e(f's_mul_hi_u32 s{NB}, s48, 613566757')
            e(f's_mul_i32 s49, s{NB}, 7')
            e('s_sub_u32 s49, s48, s49')
            e('s_mul_i32 s47, s47, 7')
            e('s_add_u32 s47, s47, s49')
        elif o.map == 1:
            e('s_mul_hi_u32 s47, s46, 477218589')
            e('s_mul_i32 s48, s47, 9')
            e(f's_sub_u32 s{NB}, s46, s48')
        else:
            e('s_mul_hi_u32 s47, s46, 34087043')
            e('s_mul_i32 s48, s47, 126')
            e('s_sub_u32 s48, s46, s48')
            e(f's_mul_hi_u32 s{NB}, s48, 306783379')
            e(f's_mul_i32 s49, s{NB}, 14')
            e('s_sub_u32 s49, s48, s49')
            e('s_mul_i32 s47, s47, 14')
            e('s_add_u32 s47, s47, s49')
        e(f's_and_b32 s{PAR}, s47, 1')
        e('s_lshr_b32 s47, s47, 1')
        e('s_cmp_ge_u32 s47, 7')
        e(f's_cselect_b32 s{BOFF}, 1152000, 0')
        e('s_cselect_b32 s48, 7, 0')
        e(f's_sub_u32 s{MB}, s47, s48')
        e(f's_mul_i32 s{XB}, s{MB}, 576')
        e(f's_add_u32 s{XB}, s{XB}, s{PAR}')
        e(f's_sub_u32 s{XB}, s{XB}, 60')
        e(f's_mul_i32 s{XB}, s{XB}, 288')
    e(f's_cmp_ge_u32 s{WAVE}, 4')
    e('s_cbranch_scc1 L_helper')
    if o.cpf:
        e('s_lshr_b32 s44, s2, 3')
        e(f's_lshl_b32 s45, s{WAVE}, 5')
        e('s_add_u32 s44, s44, s45')
        e('s_sub_u32 s44, s44, 26')
        e('s_cmp_ge_u32 s44, 5')
        e('s_cbranch_scc1 L_main')
        e('s_getpc_b64 s[46:47]')
        e('L_pc:')
        e('s_lshl_b32 s44, s44, 13')
        e('v_lshl_add_u32 v2, v1, 7, s44')
        e('v_min_u32 v2, L_codeend-L_pc-4, v2')
        e('global_load_dword v63, v2, s[46:47]')
    if o.hfirst: e('s_branch L_main')
    mark = {'main0': len(e.L)}
    e('L_main:')
    e(f's_mov_b32 s{MASK}, 0xffff0000')
    e(f's_mov_b32 s{NPOLL}, 0')
    if o.diag: e('s_mov_b32 s95, 0')
    decode()

    VXO, VXOR, VXD, VXDR, VWL, VEX, VEXP, VOUT = 30, 31, 32, 33, 34, 35, 36, 37
    VF = 40
    VA = 48
    VCL = 60
    e('v_mul_u32_u24 v3, 3641, v0')
    e('v_lshrrev_b32 v3, 16, v3')
    e('v_mul_u32_u24 v2, 18, v3')
    e('v_sub_u32 v2, v0, v2')
    e('v_mul_u32_u24 v3, 1152, v3')
    e('v_lshl_add_u32 v3, v2, 4, v3')
    e(f's_add_u32 s46, s{XB}, 576')
    e(f'v_add_u32 v{VA}, s46, v3')
    e('v_mov_b32 v5, 16192')
    e('v_mov_b32 v6, 17056')
    for k in range(1, 12):
        e('v_cmp_le_u32 vcc, 14, v2')
        e('v_add_u32 v3, 4, v2')
        e('v_subrev_u32 v4, 14, v2')
        e('v_cndmask_b32 v7, v5, v6, vcc')
        e('v_cndmask_b32 v2, v3, v4, vcc')
        e(f'v_add_u32 v{VA+k}, v{VA+k-1}, v7')
    e(f's_lshl_b32 s50, s{WAVE}, 10')
    e(f's_add_u32 s50, s50, {X_O}')
    e(f's_add_u32 s51, s50, {4096*11}')
    e('s_movk_i32 s49, 4096')
    if o.orev:
        e(f's_bitcmp0_b32 s{NB}, 0')
        e('s_cbranch_scc1 L_fwd')
        for k in range(5): e(f'v_swap_b32 v{VA+k}, v{VA+10-k}')
        e(f's_add_u32 s50, s50, {4096*10}')
        e('s_movk_i32 s49, -4096')
        e('L_fwd:')
    e(f'v_mov_b32 v{VF+1}, {CNT}')
    for r in range(4, 8): e(f'v_mov_b32 v{r}, 0')
    e(f'ds_write_b128 v{VF+1}, v[4:7]')
    e(f'ds_write_b128 v{VF+1}, v[4:7] offset:16')
    e('s_waitcnt lgkmcnt(0)')
    e(f's_load_dword s{TAG}, s[12:13], {NONCE}')
    srd(e, S_X, 4, 1152000, add=BOFF)
    def odma(k):
        e(f's_mov_b32 m0, s{51 if k == 11 else 50}')
        e('s_add_u32 s50, s50, s49')
        e(f'buffer_load_dwordx4 v{VA+k}, {sr(S_X)}, 0 offen lds')
    def etouch():
        e(f'buffer_load_dword v62, v9, {sr(S_X)}, 0 offen')
    if o.mtouch and o.tskip:
        e('s_lshr_b32 s47, s2, 4')
        e('s_lshr_b32 s47, 0x33, s47')
        e('s_lshl_b32 s47, s47, 31')
    if o.mtouch:
        e('v_min_u32 v8, 39, v1')
        e('v_lshrrev_b32 v9, 2, v8')
        e(f's_mul_i32 s46, s{WAVE}, 10')
        e('v_add_u32 v9, s46, v9')
        e(f'v_mul_u32_u24 v9, {4*1152}, v9')
        e('v_and_b32 v8, 3, v8')
        e('v_mul_u32_u24 v8, 92, v8')
        e(f's_and_b32 s46, s{NB}, {7 if o.mtouch == 4 else 3}')
        e(f's_mul_i32 s46, s46, {576 if o.mtouch == 4 else 1152}')
        e(f's_add_u32 s46, s46, s{XB}')
        e('v_add3_u32 v9, v9, v8, s46')
        if o.tskip == 1: e('v_or_b32 v9, s47, v9')
    if o.mtouch == 4 and o.tskip == 2:
        e('s_cmp_eq_u32 s47, 0')
        e('s_cbranch_scc1 L_tn')
        e('s_waitcnt lgkmcnt(0)')
        e('L_tn:')
    if o.mtouch in (2, 4): etouch()
    if o.padto: stamp(10)
    for k in range(o.opre): odma(k)
    e('s_barrier')
    stamp(1)
    if o.mtouch == 3: etouch()
    for k in range(o.opre, 12):
        if k == 11:
            e(f's_cmp_lg_u32 s{WAVE}, 0')
            e('s_cbranch_scc1 L_o11')
        odma(k)
    e('L_o11:')
    if o.mtouch == 1: etouch()
    srd(e, S_WS, 12, WS_REC)
    if o.epoll:
        assert o.mtouch in (1, 4) and o.tskip
        e(f's_and_b32 s{TYP}, s{WAVE}, 1')
        e(f's_lshl_b32 s{FO}, s{TYP}, 13')
        e('s_mov_b32 s96, s47')
        e('s_xor_b32 s46, s47, 0x80000000')
        e(f'v_min_u32 v{VF}, 31, v1')
        e(f'v_lshlrev_b32 v{VF}, 7, v{VF}')
        e(f'v_or_b32 v2, s46, v{VF}')
        e(f'buffer_load_dword v{VF+4}, v2, {sr(S_WS)}, s{FO} offen sc1')
    srd(e, S_OUT, 8, 1152000, add=BOFF)
    srd(e, S_DBG, 10, 256)
    e('v_and_b32 v2, 15, v1')
    e('v_lshrrev_b32 v3, 4, v1')
    e('v_subrev_u32 v5, 4, v2')
    e('v_add_u32 v6, 8, v2')
    e('v_cmp_gt_u32 vcc, 4, v2')
    e('v_cmp_le_u32 s[46:47], 12, v2')
    e(f's_and_b32 s{TYP}, s{WAVE}, 1')
    e(f's_lshr_b32 s48, s{WAVE}, 1')
    e('v_cndmask_b32 v5, v5, v6, vcc')
    e('v_cndmask_b32 v5, v5, v2, s[46:47]')
    e('v_mul_u32_u24 v5, 9, v5')
    e('v_mul_u32_u24 v4, 288, v5')
    e('v_lshl_add_u32 v6, v3, 4, v4')
    e('v_and_b32 v7, 1, v3')
    e('v_lshl_add_u32 v7, v7, 4, v4')
    e('v_lshrrev_b32 v8, 1, v3')
    e('v_mul_u32_u24 v8, 2304, v8')
    e('v_add_u32 v7, v7, v8')
    e('v_add_u32 v7, 256, v7')
    e(f's_mul_i32 s49, s{TYP}, {X_D1}')
    e(f'v_add_u32 v{VXO}, {X_O}, v6')
    e(f'v_add_u32 v{VXOR}, {X_O}, v7')
    e(f'v_add_u32 v{VXD}, s49, v6')
    e(f'v_add_u32 v{VXDR}, s49, v7')
    e('v_lshlrev_b32 v6, 4, v1')
    e(f's_mul_i32 s49, s{WAVE}, 9216')
    e(f's_add_u32 s49, s49, {X_O}')
    e(f'v_add_u32 v{VEX}, s49, v6')
    e(f's_xor_b32 s49, s{WAVE}, 1')
    e('s_mul_i32 s49, s49, 9216')
    e(f's_add_u32 s49, s49, {X_O}')
    e(f'v_add_u32 v{VEXP}, s49, v6')
    e('v_and_b32 v8, 0x39, v1')
    e('v_bfe_u32 v9, v1, 1, 1')
    e('v_lshl_add_u32 v8, v9, 2, v8')
    e('v_bfe_u32 v9, v1, 2, 1')
    e('v_lshl_add_u32 v8, v9, 1, v8')
    e(f'v_lshlrev_b32 v{VWL}, 4, v8')
    e(f's_mul_i32 s49, s{TYP}, 576')
    e(f's_add_u32 s49, s49, s{XB}')
    e(f's_add_u32 s49, s49, {60*288}')
    e(f's_lshl_b32 s50, s{NB}, 5')
    e('s_add_u32 s49, s49, s50')
    e('s_lshl_b32 s50, s48, 4')
    e('s_add_u32 s49, s49, s50')
    e('v_mul_u32_u24 v8, 1152, v5')
    e('v_lshl_add_u32 v8, v3, 2, v8')
    e(f'v_add_u32 v{VOUT}, s49, v8')
    e(f'v_add_u32 v{VOUT+1}, 3456, v{VOUT}')
    e(f'v_add_u32 v{VOUT+2}, 6912, v{VOUT}')
    e(f's_lshl_b32 s49, s{NB}, 1')
    e('s_add_u32 s49, s49, s48')
    e(f's_mul_i32 s49, s49, {NSTR}')
    e(f's_mul_i32 s{WSO}, s{TYP}, {NSTEP*1024}')
    e(f's_add_u32 s{WSO}, s{WSO}, s49')
    e(f's_add_u32 s{WSO}, s{WSO}, {WOFF + (16384 if o.tagp else 0)}')
    if o.tagp:
        e(f's_lshl_b32 s96, s{TYP}, 15')
        e('s_add_u32 s96, s96, s49')
        e(f's_add_u32 s96, s96, {WOFF + 2*NSTEP*1024}')
    e(f's_mov_b32 s{C2L}, 0x4038aa3b'); e(f's_mov_b32 s{C2L+1}, 0x4038aa3b')
    e(f's_mov_b32 s{CNL}, 0xbfb8aa3b'); e(f's_mov_b32 s{CNL+1}, 0xbfb8aa3b')
    e(f's_mov_b32 s{C60}, 0x42700000')
    e(f'v_min_u32 v{VF}, 31, v1')
    e(f'v_lshlrev_b32 v{VF}, 7, v{VF}')
    e(f'v_min_u32 v{VF+6}, 47, v1')
    e(f'v_lshlrev_b32 v{VF+6}, 7, v{VF+6}')
    e(f'v_mov_b32 v{VF+2}, 1')
    e('s_lshl_b32 s46, s48, 2')
    e(f'v_add_u32 v{VF+5}, s46, v{VF+1}')
    e(f's_or_b32 s46, s2, s{WAVE}')
    e('v_or_b32 v2, s46, v1')
    e('v_cmp_eq_u32 vcc, 0, v2')
    e(f'v_mov_b32 v{VCL}, -16')
    e(f'v_mov_b32 v{VCL+1}, -16')
    e(f'v_mov_b32 v3, {NONCE}')
    e(f'v_cndmask_b32 v{VCL}, v{VCL}, 4, vcc')
    e(f'v_cndmask_b32 v{VCL+1}, v{VCL+1}, v3, vcc')
    e(f's_lshl_b32 s{FO}, s{TYP}, 13')
    if o.warmb:
        e(f's_cmp_eq_u32 s{TYP}, 1')
        e('s_cbranch_scc1 L_warmB')
        e('L_warmret:')
    e(f's_waitcnt vmcnt({(1 if o.mtouch == 1 else 0) + o.epoll}) lgkmcnt(0)')
    stamp(2)
    if o.padto and o.padev in ('m11', 'm12'):
        e('s_lshr_b32 s46, s2, 4')
        e('s_lshr_b32 s46, 0x33, s46')
        e('s_bitcmp1_b32 s46, 0')
        e(f's_cbranch_scc{1 if o.padev == "m11" else 0} L_pk')
        e('s_memrealtime s[100:101]'); e('s_waitcnt lgkmcnt(0)')
        e('L_pk:')
    e('s_mov_b64 exec, 1')
    e(f'ds_add_u32 v{VF+1}, v{VF+2} offset:8')
    e('s_mov_b64 exec, -1')
    e(f's_add_u32 s{TAG}, s{TAG}, {TAGINC}')
    e(f'v_mov_b32 v{VF+3}, s{TAG}')
    def flagwait(tag, vaddr, back):
        e(f'L_fw{tag}:')
        if o.diag and len(tag) == 2: e(f's_add_u32 s95, s95, {1 << (5 * int(tag[1]))}')
        e(f'buffer_load_dword v{VF+4}, v{vaddr}, {sr(S_WS)}, s{FO} offen sc1')
        e(f'ds_read_b32 v{VF+7}, v{VF+1} offset:12')
        e(f's_add_u32 s{NPOLL}, s{NPOLL}, 1')
        e('s_waitcnt vmcnt(0) lgkmcnt(0)')
        e(f'v_cmp_ne_u32 vcc, v{VF+3}, v{VF+4}')
        e(f'v_readfirstlane_b32 s46, v{VF+7}')
        e('s_nop 3')
        e(f's_cbranch_vccz {back}')
        e('s_cmp_lg_u32 s46, 0')
        e(f's_cbranch_scc1 {back}')
        e(f's_cmp_lg_u32 s{NPOLL}, {o.maxpoll}')
        e(f's_cbranch_scc1 L_fw{tag}')
        e(f'v_mov_b32 v{VF+7}, 0x10000')
        e('s_mov_b64 exec, 1')
        e(f'ds_add_u32 v{VF+1}, v{VF+7} offset:4')
        e('s_mov_b64 exec, -1')
        e(f's_branch L_fw{tag}')
    if o.epoll:
        e('s_cmp_eq_u32 s96, 0')
        e('s_cbranch_scc1 L_gate')
        e('s_waitcnt vmcnt(0)')
        e(f'v_cmp_ne_u32 vcc, v{VF+3}, v{VF+4}')
        e('s_nop 4')
        e('s_cbranch_vccz L_go')
    if o.gate:
        e('L_gate:')
        e(f'ds_read_b32 v{VF+4}, v{VF+1} offset:8')
        e('s_waitcnt lgkmcnt(0)')
        e(f'v_and_b32 v{VF+4}, 0xffff, v{VF+4}')
        e(f'v_cmp_gt_u32 vcc, 0x400, v{VF+4}')
        e('s_nop 4')
        e('s_cbranch_vccz L_gate2')
        e('s_sleep 1')
        e('s_branch L_gate')
        e('L_gate2:')
    if o.ppoll:
        e(f'buffer_load_dword v{VF+4}, v{VF}, {sr(S_WS)}, s{FO} offen sc1')
        e('L_pp:')
        for a_, b_ in ((VF + 4, 62), (62, VF + 4)):
            e(f's_sleep {o.ppoll}')
            e(f'buffer_load_dword v{b_}, v{VF}, {sr(S_WS)}, s{FO} offen sc1')
            e('s_waitcnt vmcnt(1)')
            e(f'v_cmp_ne_u32 vcc, v{VF+3}, v{a_}')
            e(f's_add_u32 s{NPOLL}, s{NPOLL}, 1')
            e('s_nop 3')
            e('s_cbranch_vccz L_go')
        e(f's_cmp_lt_u32 s{NPOLL}, 40')
        e('s_cbranch_scc1 L_pp')
        e(f's_mov_b32 s{NPOLL}, 0')
    if o.p0plain:
        e(f'buffer_load_dword v{VF+4}, v{VF}, {sr(S_WS)}, s{FO} offen')
        e('s_waitcnt vmcnt(0)')
        e(f'v_cmp_ne_u32 vcc, v{VF+3}, v{VF+4}')
        e('s_nop 4')
        e('s_cbranch_vccz L_go')
    if o.onepoll:
        e(f's_cmp_lt_u32 s{WAVE}, 2')
        e('s_cbranch_scc1 L_fw0')
        e('L_op:')
        e(f'ds_read_b32 v{VF+7}, v{VF+1} offset:8')
        e('s_waitcnt lgkmcnt(0)')
        e(f's_add_u32 s46, s{TYP}, 16')
        e(f'v_lshrrev_b32 v{VF+7}, s46, v{VF+7}')
        e(f'v_and_b32 v{VF+7}, 1, v{VF+7}')
        e(f'v_cmp_eq_u32 vcc, 0, v{VF+7}')
        e('s_nop 4')
        e('s_cbranch_vccnz L_op')
        e('s_branch L_go2')
    if not o.tagp: flagwait('0', VF, 'L_go')
    e('L_go:')
    if o.tagp: e('s_mov_b32 s50, s96')
    if o.onepoll:
        e(f's_lshl_b32 s46, 0x10000, s{TYP}')
        e(f'v_mov_b32 v{VF+7}, s46')
        e('s_mov_b64 exec, 1')
        e(f'ds_or_b32 v{VF+1}, v{VF+7} offset:8')
        e('s_mov_b64 exec, -1')
        e('L_go2:')
    stamp(3)
    e('L_gw:')
    e(f'ds_read_b32 v{VF+7}, v{VF+1} offset:8')
    e('s_waitcnt lgkmcnt(0)')
    e(f'v_and_b32 v{VF+7}, 0xff, v{VF+7}')
    e(f'v_cmp_ne_u32 vcc, 4, v{VF+7}')
    e('s_nop 4')
    e('s_cbranch_vccnz L_gw')
    stamp(4)
    e(f's_setprio {o.mprio}')
    e(f's_cmp_eq_u32 s{TYP}, 1')
    e('s_cbranch_scc1 L_typeB')

    ACC = {'P': 64, 'Q': 100}
    WR, TMP = 136, 224
    XRING = [200 + 4 * i for i in range(6)]
    XWIN = [4 + 4 * i for i in range(6)] + [240 + 4 * i for i in range(4)]
    VC = 28
    PF = o.pf
    GT = 98
    wflags = ' sc1' if o.wsc1 else ''
    for typ, S in enumerate(streams()):
        if typ == 1:
            e('.p2align 6')
            if o.warmb: e('L_warmB:'); e('s_branch L_warmret')
            e('L_typeB:')
        ops = []
        vstart = {}
        lastv = o.vt - 1
        v0 = 0
        G0 = 0
        if o.flat0:
            for g in range(16):
                vstart[g] = len(ops)
                for j in (range(9) if g % 2 == 0 or not o.flatzz else range(8, -1, -1)): ops.append((g, j))
            v0 = G0 = 16
        while v0 <= lastv:
            ch = 1 if v0 < o.chfrom + G0 else min(o.chain, lastv + 1 - v0)
            n0 = len(ops)
            for j in range(8, -1, -1):
                us = range(ch) if j % 2 == 0 else range(ch - 1, -1, -1)
                first_ = [u for u in us if v0 + u - j == 0 or (0 < v0 + u - j < NSTEP and S[v0+u-j][4] == 'Q' and S[v0+u-j-1][4] == 'P')]
                if first_: us = range(ch)
                for u in us:
                    if G0 <= v0 + u - j < NSTEP: ops.append((v0 + u - j, j))
            for u in range(ch): vstart[v0 + u] = n0 + (len(ops) - n0) * u // ch
            v0 += ch
        ntail = len(ops)
        if o.tail:
            for j in range(9):
                for g in range(o.vt - j, NSTEP): ops.append((g, j))
        assert len(ops) == NSTEP * 9 and len(set(ops)) == len(ops)
        N = len(ops)
        def key(n):
            g, j = ops[n]
            pid, arr, ch, c, acc = S[g]
            k = (pid, arr, ch, c + j)
            if n >= ntail and g < GT: k = k + ((n,) if not o.hold else ('h',))
            return k
        first, last = {}, {}
        for n in range(N):
            first.setdefault(key(n), n); last[key(n)] = n
        wfirst, wlast = {}, {}
        for n, (g, j) in enumerate(ops):
            wfirst.setdefault(g, n); wlast[g] = n
        tasks = []
        for k, n0 in first.items():
            win = o.tail and k[2] == 'rem' and k[1] == 'D'
            la = o.xla if n0 < ntail else 6
            if n0 >= ntail and ops[n0][1] == 0: la = o.tla
            elif win: la = 12
            tasks.append([n0 - la, n0 - 1, 'X', k])
        for g in range(NSTEP):
            rel = -100 + g if g < o.pf0 else max(0, wfirst[g] - 9 * PF)
            if o.tagp and g < 16:
                rel = -100 + g if g < 4 else max(0, wfirst[g] - 9 * o.tpf)
                tasks.append([rel, wfirst[g & ~1] - 9, 'W', g])
                continue
            tasks.append([rel, wfirst[g] - 1, 'W', g])
        def at(v, off=0): return vstart[v] + off
        firstD = min(n for n in range(N) if S[ops[n][0]][1] == 'D')
        lastO = max(n for n in range(N) if S[ops[n][0]][1] == 'O')
        lastP = {j: max(n for n in range(N) if ops[n][1] == j and S[ops[n][0]][4] == 'P') for j in range(9)}
        slow = []
        vused = set()
        def check(v, off, cnt, tag):
            tasks.append([at(v - 1, 3), at(v - 1, 8), 'L', (f'ds_read_b32 v{VC}, v{VF+1} offset:{off}', ('c', tag))])
            tasks.append([at(v, 0), at(v, 1), 'C', (f'v_cmp_ne_u32 vcc, {cnt}, v{VC}', ('c', tag))])
            tasks.append([at(v, 6), at(v, 7), 'I', [f's_cbranch_vccnz L_slow{typ}{tag}', f'L_back{typ}{tag}:']])
            slow.append((tag, off, cnt))
            vused.add(v)
            return at(v, 8)
        def add1(pos, off):
            tasks.append([pos, pos + 4, 'A', off])
        vD = [v for v in vstart if vstart[v] <= firstD - o.xla][-1] - 1
        okD = check(vD, 16, 4, 'D')
        assert okD <= firstD - o.xla
        add1(lastO, 20)
        VP = 47
        okR = check(VP, 20, 4, 'R')
        for j in range(9):
            assert lastP[j] + 12 < at(VP + 1 + j, 2)
            tasks.append([at(VP + 1 + j, 2), at(VP + 1 + j, 8), 'L', (f'ds_write_b128 v{VEX}, {vr(ACC["P"]+4*j,4)} offset:{1024*j}', ('pw', j))])
        tasks.append([at(VP + 10, 0), at(VP + 10, 4), 'A', 'pair'])
        VQ = VP + 13
        okP = check(VQ, 'pair', 2, 'P')
        for j in range(9):
            tasks.append([at(VQ + 1 + j, 2), at(VQ + 1 + j, 8), 'L', (f'ds_read_b128 {vr(TMP+4*(j&1),4)}, v{VEXP} offset:{1024*j}', ('pr', j))])
            v = VQ + 2 + j
            pos = at(v, 8 - (j + 2) - 1) if j <= 6 else at(v, 8 - (j - 7) - 1)
            sh = 1 if j >= 7 else 0
            if o.chain > 1:
                own = [n for n in range(N) if ops[n][1] == j]
                pos = [a_ + 10 for a_, b_ in zip(own, own[1:]) if b_ - a_ >= 14 and a_ + 9 >= at(v, 0) ][0]
                sh = 0
                tasks[-1][0] = pos - 9; tasks[-1][1] = pos - 4
                tasks[-1][3] = (f'ds_read_b128 {vr(TMP+4*(j&3),4)}, v{VEXP} offset:{1024*j}', ('pr', j))
            tasks.append([pos - 1 + sh, pos - 1 + sh, 'Q', (j, 0)])
            tasks.append([pos + sh, pos + sh, 'Q', (j, 1)])
        if typ == 0:
            tasks.append([at(64, 4), at(64, 8), 'S', f'buffer_store_dword v{VCL+1}, v{VCL}, {sr(S_DBG)}, 0 offen sc1'])
            tasks.append([at(84, 4), at(84, 8), 'S', f'buffer_store_dword v{VF+3}, v{VCL+1}, {sr(S_WS)}, 0 offen sc1'])
        fslow = []
        kslow = []
        if o.tagp:
            for g in range(0, 16, 2):
                n0 = wfirst[g]
                if g < 4: continue
                tasks.append([n0 - 8, n0 - 7, 'K', g])
                tasks.append([n0 - 2, n0 - 1, 'I', ['s_cmp_lg_u64 s[48:49], 0', f's_cbranch_scc1 L_ks{typ}{g}', f'L_kb{typ}{g}:']])
        passes = {}
        for g in range(NSTEP): passes.setdefault(S[g][0], g)
        need = [(passes[1], VF, 32 + 64 * typ), (32, VF + 6, 128), (passes[4], VF, 176), (passes[5], VF, 208), (passes[6], VF + 6, 240)]
        for ci, (gn, va, idx) in enumerate(need):
            v = gn - o.pfcs[ci] - 1
            while v in vused: v -= 1
            tasks.append([at(v - o.fleads[ci], 4), at(v - o.fleads[ci], 8), 'F', (va, idx, ci)])
            tasks.append([at(v, 0), at(v, 1), 'G', ci])
            tasks.append([at(v, 6), at(v, 7), 'I', [f's_cbranch_vccnz L_fw{typ}{ci}', f'L_fb{typ}{ci}:']])
            fslow.append((ci, va))
            assert v not in vused, v
            for t in tasks:
                if t[2] == 'W' and (t[3] >= gn): t[0] = max(t[0], at(v, 8))
        tasks.append([at(v + 1, 2), at(v + 1, 8), 'A', 4])
        if typ == 0:
            for lvl, v in enumerate(o.trig): tasks.append([at(v, 2), at(v, 8), 'P', lvl + 1])
        tasks.sort(key=lambda t: (t[0], t[1]))
        vq, lq = [], []
        dirty = [False]
        xreg, busy = {}, {}
        wn = [0]
        wr = {}
        lastw = [-100]
        later = []
        BIG = [WR + 4 * i for i in range(16)] + XWIN + [ACC['P'] + 4 * i for i in range(9)]
        for i in range(9): busy[ACC['P'] + 4 * i] = at(VP + 12)
        until = {}
        if o.chain > 1:
            BIG += XRING + [VA, VA + 4, VA + 8]
            for i in range(9):
                BIG.append(ACC['Q'] + 4 * i)
                until[ACC['Q'] + 4 * i] = min(n for n in range(N) if ops[n][1] == i and S[ops[n][0]][4] == 'Q') - 3
        def freeregs(n, end): return [x for x in BIG if busy.get(x, -1) <= n and end < until.get(x, 10**9)]
        def freepairs(n, end):
            f_ = set(freeregs(n, end))
            return [x for x in sorted(f_) if x % 8 == PAR8.get(x, -1) and x + 4 in f_]
        PAR8 = {x: x % 8 for x in list(range(WR, WR + 64, 8)) + [4, 12, 20, 240, 248, 200, 208, 216, 100, 108, 116, 124, VA]}
        def kcheck(g):
            vwait(g + 1)
            for i, gg in enumerate((g, g + 1)):
                a_ = wr[gg] - 2
                em(f'v_bitop3_b32 v{VC+i}, v{a_+1}, v{a_+6}, v{VF+3} bitop3:0x7e')
            em(f'v_or_b32 v{VC}, v{VC}, v{VC+1}')
            em(f'v_cmp_ne_u32 s[48:49], 0, v{VC}')
            kslow.append((g, wr[g] - 2, wr[g + 1] - 2))
        def wok(t, n):
            if t[2] != 'W': return True
            if t[3] != wn[0]: return False
            if o.tagp and t[3] < 16:
                return bool(freepairs(n, wlast[t[3]])) and (n - lastw[0] >= 2 or t[1] - n <= 4)
            free = len(freeregs(n, wlast[t[3]]))
            if t[1] - n <= 9 * 3: return free > 0
            return n - lastw[0] >= o.wgap and free > o.wres
        since = {}
        fill = []
        def em(x):
            e(x)
            if not x.endswith(':'):
                for jj in since: since[jj] += 1
        def lwait(tag):
            if tag not in lq: return
            i = lq.index(tag)
            em(f's_waitcnt lgkmcnt({0 if dirty[0] else len(lq)-1-i})')
            if dirty[0]: lq.clear(); dirty[0] = False
            else: del lq[:i + 1]
        def vwait(g):
            if g not in vq: return
            i = vq.index(g)
            em(f's_waitcnt vmcnt({len(vq)-1-i})')
            del vq[:i + 1]
        def run(t, n):
            kind, p = t[2], t[3]
            if kind == 'X':
                pool = BIG if (o.chain > 1 or p[-1] == 'h' or (p[2] == 'rem' and p[1] == 'D')) else XRING
                r = [x for x in pool if busy.get(x, -1) <= n and last[p] < until.get(x, 10**9)]
                assert r, ('no x register', p, n)
                r = min(r, key=lambda x: (until.get(x, 10**9), busy.get(x, -1)))
                busy[r] = last[p]; xreg[p] = r
                arr, ch, s_ = p[1], p[2], p[3]
                if o.nolds and n > 9 * 30: return
                if ch == 'rem': em(f'ds_read_b128 {vr(r,4)}, v{VXOR if arr == "O" else VXDR} offset:{288*s_}')
                else: em(f'ds_read_b128 {vr(r,4)}, v{VXO if arr == "O" else VXD} offset:{64*ch+288*s_}')
                lq.append(p)
            elif kind == 'W':
                g = p
                if o.tagp and g < 16:
                    r = min(freepairs(n, wlast[g]), key=lambda x: (until.get(x, 10**9), busy.get(x, -1)))
                    busy[r] = busy[r + 4] = wlast[g]; wr[g] = r + 2
                    assert g == wn[0]; wn[0] += 1
                    lastw[0] = n
                    em(f'buffer_load_dwordx4 {vr(r,4)}, v{VWL}, {sr(S_WS)}, s50 offen offset:{2048*(g%2)}')
                    em(f'buffer_load_dwordx4 {vr(r+4,4)}, v{VWL}, {sr(S_WS)}, s50 offen offset:{2048*(g%2)+1024}')
                    vq.append(('h', g)); vq.append(g)
                    if g % 2 == 1:
                        if n < 0: em('s_add_u32 s50, s50, 4096')
                        else: later.append('s_add_u32 s50, s50, 4096')
                    return
                r = min(freeregs(n, wlast[g]), key=lambda x: (until.get(x, 10**9), busy.get(x, -1)))
                busy[r] = wlast[g]; wr[g] = r
                assert g == wn[0]; wn[0] += 1
                lastw[0] = n
                if o.now and g > 40: return
                if o.wsame and g > 40:
                    em(f'buffer_load_dwordx4 {vr(r,4)}, v{VWL}, {sr(S_WS)}, s{WSO} offen offset:{1024*(g%4)}{wflags}'); vq.append(g); return
                em(f'buffer_load_dwordx4 {vr(r,4)}, v{VWL}, {sr(S_WS)}, s{WSO} offen offset:{1024*(g%4)}{wflags}')
                if g % 4 == 3:
                    if n < 0: em(f's_add_u32 s{WSO}, s{WSO}, 4096')
                    else: later.append(f's_add_u32 s{WSO}, s{WSO}, 4096')
                vq.append(g)
            elif kind == 'L':
                em(p[0].replace('offset:pair', 'offset:24').replace(f'v{VF+1} offset:24', f'v{VF+5} offset:24')); lq.append(p[1])
            elif kind == 'C':
                lwait(p[1]); em(p[0])
            elif kind == 'I':
                for x in p: em(x)
            elif kind == 'A':
                em('s_mov_b64 exec, 1')
                if p == 'pair': em(f'ds_add_u32 v{VF+5}, v{VF+2} offset:24')
                else: em(f'ds_add_u32 v{VF+1}, v{VF+2} offset:{p}')
                em('s_mov_b64 exec, -1')
                lq.append(('a', p))
            elif kind == 'Q':
                p, hf = p
                lwait(('pr', p))
                q = ACC['Q'] + 4 * p; t_ = TMP + 4 * (p & (3 if o.chain > 1 else 1))
                for i in (2 * hf, 2 * hf + 1): em(f'v_add_f32 v{q+i}, v{q+i}, v{t_+i}')
            elif kind == 'S':
                assert not any(isinstance(x, tuple) and x[0] == 's' for x in vq)
                em(p); vq.append(('s', n))
            elif kind == 'F':
                em(f's_mov_b32 s{FO}, {128*p[1]}')
                em(f'buffer_load_dword v{VF+4}, v{p[0]}, {sr(S_WS)}, s{FO} offen {o.fflags}'); vq.append(('f', p[2]))
            elif kind == 'K':
                kcheck(p)
            elif kind == 'G':
                vwait(('f', p)); em(f'v_cmp_ne_u32 vcc, v{VF+3}, v{VF+4}')
            elif kind == 'P':
                em(f'v_mov_b32 v{VF+7}, {p}')
                em('s_mov_b64 exec, 1')
                em(f'ds_max_u32 v{VF+1}, v{VF+7}')
                em('s_mov_b64 exec, -1')
                lq.append(('p', p))
        def epi(j, pk):
            q = ACC['Q'] + 4 * j
            t = TMP + 8 * (j & 1)
            I = []
            if pk:
                I.append(f'v_pk_mul_f32 {vr(t,2)}, {vr(q,2)}, s[{C2L}:{C2L+1}]')
                I.append(f'v_pk_mul_f32 {vr(t+2,2)}, {vr(q+2,2)}, s[{CNL}:{CNL+1}]')
            else:
                for i in (0, 1): I.append(f'v_mul_f32 v{t+i}, s{C2L}, v{q+i}')
                for i in (2, 3): I.append(f'v_mul_f32 v{t+i}, s{CNL}, v{q+i}')
            I.append(f'v_min_f32 v{t}, s{C60}, v{t}')
            I.append(f'v_min_f32 v{t+1}, s{C60}, v{t+1}')
            for i in (0, 1, 2, 3): I.append(f'v_exp_f32 v{t+i}, v{t+i}')
            if pk:
                I.append(f'v_pk_add_f32 {vr(t+4,2)}, {vr(t,2)}, 1.0 op_sel_hi:[1,0]')
                I.append(f'v_pk_add_f32 {vr(t+6,2)}, {vr(t,2)}, -1.0 op_sel_hi:[1,0]')
                I.append(f'v_pk_fma_f32 {vr(t+4,2)}, {vr(t+4,2)}, {vr(t+2,2)}, {vr(t+4,2)}')
            else:
                for i in (0, 1): I.append(f'v_add_f32 v{t+4+i}, 1.0, v{t+i}')
                for i in (0, 1): I.append(f'v_fma_f32 v{t+4+i}, v{t+4+i}, v{t+2+i}, v{t+4+i}')
            I.append(f'v_rcp_f32 v{t+4}, v{t+4}')
            I.append(f'v_rcp_f32 v{t+5}, v{t+5}')
            if pk:
                I.append('s_nop 0')
                I.append(f'v_pk_mul_f32 {vr(t+6,2)}, {vr(t+6,2)}, {vr(t+4,2)}')
            else:
                for i in (0, 1): I.append(f'v_add_f32 v{t+6+i}, -1.0, v{t+i}')
                for i in (0, 1): I.append(f'v_mul_f32 v{t+6+i}, v{t+6+i}, v{t+4+i}')
            I.append(f'v_cvt_pk_bf16_f32 v{q}, v{t+6}, v{t+7}')
            I.append(f'buffer_store_dword v{q}, v{VOUT + j//3}, {sr(S_OUT)}, 0 offen offset:{1152*(j%3)} {o.oflags if j < o.oj else ""}')
            return I
        def cost(x): return 2 if x.startswith(('v_exp', 'v_rcp', 'buffer')) else 1
        while tasks and tasks[0][0] < 0: run(tasks.pop(0), -1)
        if o.tagp:
            for g in (0, 2):
                vwait(g + 1)
                for gg in (g + 4, g + 5):
                    t_ = [t for t in tasks if t[2] == 'W' and t[3] == gg][0]
                    tasks.remove(t_); run(t_, -1)
                kcheck(g)
                em('s_nop 2')
                em('s_cmp_lg_u64 s[48:49], 0')
                em(f's_cbranch_scc1 L_ks{typ}{g}')
                em(f'L_kb{typ}{g}:')
        inv = {n: v for v, n in vstart.items()}
        lastop = {j: max(n for n in range(N) if ops[n][1] == j) for j in range(9)}
        for n, (g, j) in enumerate(ops):
            if n in inv and o.padto and o.padev == 'm5' and inv[n] == o.padstep:
                e('s_memrealtime s[100:101]'); dirty[0] = True
            if n in inv and o.diag:
                v = inv[n]
                if o.diag == 2 and v in o.marks:
                    kk = o.marks.index(v)
                    e(f's_memtime s[{ST0+2*kk}:{ST0+2*kk+1}]'); dirty[0] = True
                if o.diag in (1, 4) and v == 33: stamp(5); stamp(6); dirty[0] = True
            k = key(n)
            assert k in xreg, (k, n)
            lwait(k); vwait(g)
            acc = S[g][4]
            d = ACC[acc] + 4 * j
            if g == 0: cs = '0'
            elif acc == 'Q' and S[g-1][4] == 'P': cs = vr(ACC['P'] + 4 * j, 4)
            else: cs = vr(d, 4)
            em(f'v_mfma_f32_16x16x32_bf16 {vr(d,4)}, {vr(wr[g],4)}, {vr(xreg[k],4)}, {cs}' if not o.swapab else f'v_mfma_f32_16x16x32_bf16 {vr(d,4)}, {vr(xreg[k],4)}, {vr(wr[g],4)}, {cs}')
            if n == lastop[j]: since[j] = 0
            while later: em(later.pop(0))
            budget = 2
            TC = {'X': 1, 'W': 2, 'L': 2, 'C': 1, 'I': 0, 'A': 1, 'Q': 2, 'S': 2, 'F': 2, 'G': 1, 'P': 2, 'K': 2}
            while True:
                ready = [t for t in tasks if t[0] <= n and wok(t, n)]
                if not ready: break
                t = min(ready, key=lambda t: t[1])
                assert t[1] >= n, ('late', t, n)
                if TC[t[2]] > budget and t[1] > n:
                    fit = [u for u in ready if TC[u[2]] <= budget]
                    if not fit: break
                    t = min(fit, key=lambda t: t[1])
                tasks.remove(t); run(t, n); budget -= TC[t[2]]
            for jj in sorted(since):
                if 8 <= since[jj] < 10**6:
                    fill += epi(jj, False); since[jj] = 10**6
            budget += o.nfill - 2
            while fill and budget >= cost(fill[0]):
                budget -= cost(fill[0])
                if fill[0].startswith('buffer_store'):
                    q_ = int(re.match(r'buffer_store_dword v(\d+)', fill[0]).group(1))
                    until.pop(q_, None); busy[q_] = n + 2
                em(fill.pop(0))
            assert all(t[1] > n for t in tasks), ('late', n, [t for t in tasks if t[1] <= n])
        assert not tasks
        stamp(7)
        while fill: em(fill.pop(0))
        for jj in [jj for jj in sorted(since) if since[jj] < 10**6]:
            if since[jj] < 8: em(f's_nop {8-since[jj]-1}')
            for x in epi(jj, True): em(x)
        stamp(8)
        if o.padto and o.padev[0] == 'm': padloop(typ)
        if o.diag == 1:
            e('s_waitcnt vmcnt(0)')
            stamp(9)
            dump(10)
        if o.diag == 2:
            kk = len(o.marks)
            e(f's_memtime s[{ST0+2*kk}:{ST0+2*kk+1}]')
            dump(10)
        e('s_endpgm')
        for tag, off, cnt in slow:
            e(f'L_slow{typ}{tag}:')
            e(f'ds_read_b32 v{VC}, v{VF+5 if off == "pair" else VF+1} offset:{24 if off == "pair" else off}')
            e('s_waitcnt lgkmcnt(0)')
            e(f'v_cmp_ne_u32 vcc, {cnt}, v{VC}')
            e('s_nop 4')
            e(f's_cbranch_vccnz L_slow{typ}{tag}')
            e(f's_branch L_back{typ}{tag}')
        for ci, va in fslow: flagwait(f'{typ}{ci}', va, f'L_fb{typ}{ci}')
        for g, a0_, a1_ in kslow:
            e(f'L_ks{typ}{g}:')
            if o.diag: e(f's_add_u32 s95, s95, {1 << 25}')
            e(f'ds_read_b32 v{VF+7}, v{VF+1} offset:12')
            e(f's_add_u32 s47, s96, {2048*g}')
            e('s_waitcnt lgkmcnt(0)')
            for i, a_ in enumerate((a0_, a0_ + 4, a1_, a1_ + 4)):
                e(f'buffer_load_dwordx4 {vr(a_,4)}, v{VWL}, {sr(S_WS)}, s47 offen offset:{1024*i} sc1')
            e(f'v_readfirstlane_b32 s46, v{VF+7}')
            e(f's_add_u32 s{NPOLL}, s{NPOLL}, 1')
            e('s_waitcnt vmcnt(0)')
            e('s_cmp_lg_u32 s46, 0')
            e(f's_cbranch_scc1 L_kb{typ}{g}')
            e(f'v_bitop3_b32 v{VC}, v{a0_+1}, v{a0_+6}, v{VF+3} bitop3:0x7e')
            e(f'v_bitop3_b32 v{VC+1}, v{a1_+1}, v{a1_+6}, v{VF+3} bitop3:0x7e')
            e(f'v_or_b32 v{VC}, v{VC}, v{VC+1}')
            e(f'v_cmp_ne_u32 s[48:49], 0, v{VC}')
            e('s_nop 2')
            e('s_cmp_eq_u64 s[48:49], 0')
            e(f's_cbranch_scc1 L_kb{typ}{g}')
            e(f's_cmp_lg_u32 s{NPOLL}, {o.maxpoll}')
            e(f's_cbranch_scc1 L_ks{typ}{g}')
            e(f'v_mov_b32 v{VF+7}, 0x10000')
            e('s_mov_b64 exec, 1')
            e(f'ds_add_u32 v{VF+1}, v{VF+7} offset:4')
            e('s_mov_b64 exec, -1')
            e(f's_branch L_ks{typ}{g}')

    mark['help0'] = len(e.L)
    if not o.hfirst: e('.p2align 6')
    e('L_helper:')
    role[0] = 'h'
    e(f's_setprio {o.hprio}')
    e(f's_sub_u32 s{TW0}, s{WAVE}, 4')
    e(f's_mov_b32 s{TW1}, s{WAVE}')
    e(f's_sub_u32 s{PAIR}, s2, {NPROD}')
    e(f's_cselect_b32 s{PAIR}, s2, s{PAIR}')
    e(f's_mov_b32 s{MODE}, 0')
    e(f's_mov_b32 s{NOTASK}, s2')
    e(f's_mov_b32 s{HAS3}, s{TW0}')
    e(f's_lshl_b32 s{SCRB}, s{TW0}, 12')
    e(f's_add_u32 s{SCRB}, s{SCRB}, {SCR}')
    e('L_prod:')
    T = [(28, TW0, 2, 52, 0), (36, TW1, 4, 53, 2048), (44, TW2, 6, 54, 16384)]
    c, kp, q, cc, kk, t = 46, 47, 48, 49, 50, 51
    b = TS
    e('v_mov_b32 v19, 4320')
    e('v_and_b32 v23, 3, v1')
    e('v_lshrrev_b32 v24, 3, v1')
    e('v_mul_u32_u24 v24, 576, v24')
    e('v_bfe_u32 v25, v1, 2, 1')
    e('v_mul_u32_u24 v25, 288, v25')
    e('v_add_u32 v24, v24, v25')
    for (vb, sw, vl, vs, so) in T:
        e(f'v_lshl_add_u32 v8, s{sw}, 2, v23' if sw != TW2 else 'v_add_u32 v8, 32, v23')
        e('v_cmp_le_u32 vcc, 18, v8')
        e(f'v_lshl_add_u32 v{vl}, v8, 4, v24')
        e(f'v_add_u32 v9, v{vl}, v19')
        e(f'v_cndmask_b32 v{vl}, v{vl}, v9, vcc')
    e(f's_and_b32 s{c}, s{PAIR}, 15')
    e(f's_lshr_b32 s{kp}, s{PAIR}, 4')
    e(f's_mul_i32 s{b}, s{c}, 165888')
    e(f's_mul_i32 s{t}, s{kp}, 9216')
    e(f's_add_u32 s{b}, s{b}, s{t}')
    e(f's_add_u32 s{b+1}, s{b}, 82944')
    e(f's_mov_b32 s{S_W+2}, 2571264')
    e(f's_mov_b32 s{S_W+3}, 0x20000')
    e(f's_mov_b32 s{S_WO+3}, 0x20000')
    e(f's_cmp_lg_u32 s{c}, 15')
    e(f's_cselect_b32 s{S_WO+2}, 2571264, 0')
    e(f's_mov_b32 m0, s{SCRB}')
    e('s_waitcnt lgkmcnt(0)')
    e(f's_mov_b32 s{S_W}, s6')
    e(f's_and_b32 s{S_W+1}, s7, 0xffff')
    e(f's_mov_b32 s{S_WO}, s6')
    e(f's_and_b32 s{S_WO+1}, s7, 0xffff')
    e(f's_cmp_ge_u32 s{NOTASK}, {NTASK}')
    e('s_cbranch_scc1 L_a3')
    def cond3(lbl):
        e(f's_cmp_lg_u32 s{HAS3}, 0')
        e(f's_cbranch_scc1 {lbl}')
    for ti, (vb, sw, vl, vs, so) in enumerate(T):
        if ti == 2: cond3('L_a3')
        if ti == 1: e('s_addk_i32 m0, 1024'); e('s_nop 0')
        e(f'buffer_load_dwordx4 v{vl}, {sr(S_W)}, s{b} offen lds')
        e('s_addk_i32 m0, 1024')
        e('s_nop 0')
        e(f'buffer_load_dwordx4 v{vl}, {sr(S_WO)}, s{b+1} offen lds')
        if ti == 1: e(f's_addk_i32 m0, {16384-3072}')
    e('L_a3:')
    stamp(1)
    e(f's_cmp_lg_u32 s{MODE}, 0')
    e('s_cbranch_scc1 L_a4')
    e(f's_load_dword s{TAG}, s[12:13], {NONCE}')
    e(f's_lshr_b32 s{EARLY}, 0x33, s{kp}')
    e(f's_and_b32 s{EARLY}, s{EARLY}, 1')
    e(f's_sub_u32 s{XK}, 2, s{EARLY}')
    e(f's_lshl_b32 s{t}, s{kp}, 1')
    e(f's_lshr_b32 s{YT}, {(3<<12)+(3<<14)+(3<<16)}, s{t}')
    e(f's_and_b32 s{YT}, s{YT}, 3')
    e(f's_lshr_b32 s{t}, s{kp}, 1')
    e(f's_cmp_ge_u32 s2, {NPROD}')
    e(f's_cselect_b32 s{EARLY}, 0, s{EARLY}')
    e(f's_cselect_b32 s{XK}, 3, s{XK}')
    e(f's_cselect_b32 s{YT}, s{t}, s{YT}')
    e(f's_cmp_ge_u32 s2, {NPROD+32}')
    e(f's_cselect_b32 s{XK}, 0, s{XK}')
    e(f's_cmp_ge_u32 s2, {NTASK}')
    e(f's_cselect_b32 s{YT}, 0, s{YT}')
    if not o.b0early:
        e(f's_cmp_lg_u32 s{EARLY}, 0')
        e('s_cbranch_scc1 L_a4')
    e('s_barrier')
    e('L_a4:')
    e(f's_mov_b32 s{MASK}, 0xffff0000')
    e(f's_mov_b32 s{NPOLL}, 0')
    srd(e, S_WS, 12, WS_REC)
    srd(e, S_DBG, 10, 256)
    e(f'v_mov_b32 v10, {CNT}')
    e(f'v_mov_b32 v20, {(256 - 18*NSTR) & 0xffffffff}')
    e(f'v_mov_b32 v26, {NSTR}')
    e('v_bfe_u32 v21, v1, 2, 2')
    e('v_lshlrev_b32 v21, 7, v21')
    e('v_and_b32 v22, 1, v1')
    e('v_lshl_add_u32 v21, v22, 6, v21')
    e('v_bfe_u32 v22, v1, 1, 1')
    e('v_lshl_add_u32 v21, v22, 3, v21')
    e('v_lshrrev_b32 v22, 4, v1')
    e('v_lshl_add_u32 v21, v22, 4, v21')
    e(f'v_add_u32 v21, s{SCRB}, v21')
    e('v_and_b32 v25, 15, v1')
    e('v_lshlrev_b32 v25, 4, v25')
    for (vb, sw, vl, vs, so) in T:
        e(f'v_lshl_add_u32 v8, s{sw}, 2, v22' if sw != TW2 else 'v_add_u32 v8, 32, v22')
        e('v_cmp_le_u32 vcc, 18, v8')
        e(f'v_mad_u32_u24 v{vs}, v8, v26, v25')
        e(f'v_add_u32 v9, v{vs}, v20')
        e(f'v_cndmask_b32 v{vs}, v{vs}, v9, vcc')
    if o.tagp:
        e(f's_cmp_eq_u32 s{WAVE}, 4')
        e(f's_cselect_b32 s{t}, 1, s{EARLY}')
        e(f's_cmp_ge_u32 s{NOTASK}, {NTASK}')
        e(f's_cselect_b32 s{t}, 0, s{t}')
        e(f's_cmp_lg_u32 s{t}, 0')
        e(f's_cselect_b32 s{t}, 4, -16')
        e(f'v_mov_b32 v9, s{t}')
        e('s_waitcnt lgkmcnt(0)')
        e('s_mov_b64 exec, 1')
        e(f'buffer_load_dword v27, v9, {sr(S_DBG)}, 0 offen sc1')
        e('s_mov_b64 exec, -1')
        e(f's_lshr_b32 s97, 0x33, s{kp}')
        e('s_and_b32 s97, s97, 1')
        e(f's_lshr_b32 s96, s{kp}, 2')
        e('s_lshl_b32 s96, s96, 4')
        e(f's_add_u32 s96, s96, s{c}')
        e('s_lshl_b32 s96, s96, 2')
        e(f's_and_b32 s{t}, s{kp}, 1')
        e(f's_add_u32 s96, s96, s{t}')
        e('s_lshl_b32 s96, s96, 9')
        e(f's_add_u32 s96, s96, {WOFF + 2*NSTEP*1024}')
    e(f's_lshr_b32 s{q}, s{kp}, 1')
    e(f's_and_b32 s{cc}, s{c}, 7')
    e(f's_lshr_b32 s{kk}, s{c}, 3')
    e(f's_and_b32 s{t}, s{kp}, 1')
    e(f's_cmp_eq_u32 s{kp}, 8')
    e(f's_cselect_b32 s{cc}, s{cc}, s{c}')
    e(f's_cselect_b32 s{kk}, s{kk}, s{t}')
    e(f's_lshl_b32 s{kk}, s{kk}, 9')
    e(f's_add_u32 s{kk}, s{kk}, {WOFF}')
    e(f's_lshl_b32 s{t}, s{q}, 4')
    e(f's_add_u32 s{b+2}, s{t}, s{cc}')
    e(f's_sub_u32 s{b+3}, s{b+2}, s{q}')
    e(f's_cmp_ge_u32 s{q}, 2')
    e(f's_cselect_b32 s{b+4}, 74, 0')
    e(f's_add_u32 s{b+4}, s{b+4}, s{b+2}')
    e(f's_cmp_lt_u32 s{cc}, 2')
    e(f's_cselect_b32 s{t}, 32, 136')
    e(f's_add_u32 s{t}, s{t}, s{cc}')
    e(f's_cmp_eq_u32 s{kp}, 8')
    e(f's_cselect_b32 s{b+4}, s{t}, s{b+4}')
    e(f's_add_u32 s{b+2}, s{b+2}, 34')
    e(f's_add_u32 s{b+3}, s{b+3}, 144')
    for k in (2, 3, 4):
        e(f's_lshl_b32 s{b+k}, s{b+k}, 10')
        e(f's_add_u32 s{b+k}, s{b+k}, s{kk}')
    e(f's_cmp_eq_u32 s{kp}, 8')
    e(f's_cselect_b32 s{t}, 1, 2')
    e(f's_cmp_eq_u32 s{c}, 15')
    e(f's_cselect_b32 s{b+5}, s{t}, 0')
    e(f's_lshl_b32 s46, s{WAVE}, 2')
    e(f's_add_u32 s46, s46, {CNT+16}')
    e('v_mov_b32 v55, s46')
    if o.tagp:
        e('s_waitcnt vmcnt(1)')
        stamp(2)
        e(f's_cmp_ge_u32 s{NOTASK}, {NTASK}')
        e('s_cbranch_scc1 L_x9')
    else:
        e('v_mov_b32 v27, 0')
        e('v_mov_b32 v9, 4')
        e('s_waitcnt vmcnt(0) lgkmcnt(0)')
        stamp(2)
        e(f's_cmp_ge_u32 s{NOTASK}, {NTASK}')
        e('s_cbranch_scc1 L_x9')
        e(f's_cmp_lg_u32 s{WAVE}, 4')
        e('s_cbranch_scc1 L_a5')
        e('s_mov_b64 exec, 1')
        e(f'buffer_load_dword v27, v9, {sr(S_DBG)}, 0 offen sc1')
        e('s_mov_b64 exec, -1')
        e('L_a5:')
    for (vb, sw, vl, vs, so) in T:
        for tap in range(2):
            for half in range(2):
                e(f'ds_read_b64_tr_b16 {vr(vb+4*tap+2*half,2)}, v21 offset:{so+1024*tap+512*half}')
    nlab = [0]
    def st01(vb, vs):
        nlab[0] += 1
        e(f'buffer_store_dwordx4 {vr(vb,4)}, v{vs}, {sr(S_WS)}, s{b+2} offen sc1')
        e(f's_cmp_eq_u32 s{b+5}, 2')
        e(f's_cbranch_scc1 L_skip{nlab[0]}')
        e(f'buffer_store_dwordx4 {vr(vb+4,4)}, v{vs}, {sr(S_WS)}, s{b+3} offen sc1')
        e(f'L_skip{nlab[0]}:')
    def st01all(lbl):
        st01(T[0][0], T[0][3]); st01(T[1][0], T[1][3])
        cond3(lbl)
        st01(T[2][0], T[2][3])
    def dosum(vb, tb, ob):
        for i in range(8):
            e(f'v_lshlrev_b32 v{tb+2*i}, 16, v{vb+i}')
            e(f'v_and_b32 v{tb+2*i+1}, s{MASK}, v{vb+i}')
        for i in range(4):
            e(f'v_pk_add_f32 {vr(tb+2*i,2)}, {vr(tb+2*i,2)}, {vr(tb+8+2*i,2)}')
        for i in range(4):
            e(f'v_cvt_pk_bf16_f32 v{ob+i}, v{tb+2*i}, v{tb+2*i+1}')
    def ldswait(off, cmp, operand, tag, slp):
        e(f'L_lw{tag}:')
        e(f'ds_read_b32 v11, v10 offset:{off}')
        e('s_waitcnt lgkmcnt(0)')
        e('v_and_b32 v11, 0xff, v11')
        e(f'v_cmp_{cmp}_u32 vcc, {operand}, v11')
        e('s_nop 4')
        e(f's_cbranch_vccnz L_lx{tag}')
        e(f's_sleep {slp}')
        e(f's_branch L_lw{tag}')
        e(f'L_lx{tag}:')
    SOR = lambda ti: (210 + 8 * ti) if o.tagp else (240 + 4 * ti)
    e(f's_or_b32 s46, s{EARLY}, s{MODE}')
    e(f's_cmp_eq_u32 s{XK}, 2')
    e('s_cselect_b32 s47, 1, s46')
    if o.xl: e('s_mov_b32 s46, s47')
    e('s_cmp_eq_u32 s47, 0')
    e('s_cbranch_scc1 L_x9')
    for ti, (vb, sw, vl, vs, so) in enumerate(T):
        if ti == 2: cond3('L_x3')
        e(f's_waitcnt lgkmcnt({8-4*ti})')
        dosum(vb, 64 + 16 * ti, SOR(ti))
        e('s_cmp_eq_u32 s46, 0')
        e(f's_cbranch_scc1 L_x5{ti}')
        if o.tagp:
            e('s_cmp_eq_u32 s97, 0')
            e(f's_cbranch_scc1 L_x6{ti}')
            if ti == 0:
                e('s_waitcnt vmcnt(0)')
                e('v_readfirstlane_b32 s48, v27')
                e(f's_add_u32 s49, s{TAG}, {TAGINC}')
                e('s_not_b32 s47, s49')
                e(f's_or_b32 s48, s48, s{MODE}')
                e('s_cselect_b32 s49, s47, s49')
            e(f'v_mov_b32 v{SOR(ti)-1}, s49')
            e(f'v_mov_b32 v{SOR(ti)+4}, s49')
            e(f'buffer_store_dwordx4 {vr(SOR(ti)-2,4)}, v{vs}, {sr(S_WS)}, s96 offen sc1')
            e(f'buffer_store_dwordx4 {vr(SOR(ti)+2,4)}, v{vs}, {sr(S_WS)}, s96 offen offset:1024 sc1')
            e(f's_branch L_x5{ti}')
            e(f'L_x6{ti}:')
        e(f'buffer_store_dwordx4 {vr(SOR(ti),4)}, v{vs}, {sr(S_WS)}, s{b+4} offen sc1')
        e(f'L_x5{ti}:')
    e('L_x3:')
    e(f's_cmp_eq_u32 s{MODE}, 0')
    e('s_cbranch_scc1 L_x9')
    e('L_x2:')
    e('s_waitcnt lgkmcnt(0)')
    st01all('L_x4')
    e('L_x4:')
    e(f's_cmp_eq_u32 s{MODE}, 0')
    e('s_cbranch_scc1 L_x9')
    e('s_waitcnt vmcnt(0)')
    e(f's_add_u32 s{PAIR}, s{PAIR}, 1')
    e(f's_cmp_lt_u32 s{PAIR}, {NPROD}')
    e('s_cbranch_scc1 L_prod')
    e('v_mov_b32 v11, 1')
    e('ds_write_b32 v10, v11 offset:12')
    e('s_endpgm')
    e('L_x9:')
    if o.tagp:
        e(f's_cmp_eq_u32 s{EARLY}, 0')
        e('s_cbranch_scc1 L_x10')
        e('s_barrier')
        e('L_x10:')
    stamp(3)
    decode()
    e('v_subrev_u32 v4, 256, v0')
    e('v_min_u32 v4, 251, v4')
    e('v_mul_u32_u24 v3, 3641, v4')
    e('v_lshrrev_b32 v3, 16, v3')
    e('v_mul_u32_u24 v2, 18, v3')
    e('v_sub_u32 v2, v4, v2')
    e(f'v_mul_u32_u24 v3, {R}, v3')
    e(f'v_min_u32 v3, {160-R}, v3')
    e('v_mul_u32_u24 v4, 1152, v3')
    e('v_lshl_add_u32 v4, v2, 4, v4')
    e(f'v_add_u32 v12, s{XB}, v4')
    e('v_mul_u32_u24 v18, 288, v3')
    e('v_lshl_add_u32 v18, v2, 4, v18')
    e(f'v_add_u32 v19, {X_D1}, v18')
    srd(e, S_X, 4, 1152000, add=BOFF)
    e(f's_add_u32 s46, s{TAG}, {TAGINC}')
    e('v_mov_b32 v56, s46')
    e('s_lshl_b32 s46, s2, 7')
    e('v_mov_b32 v58, s46')
    e(f's_add_u32 s46, s{PAIR}, {NPROD}')
    e('s_lshl_b32 s46, s46, 7')
    e('v_mov_b32 v59, s46')
    def publish(slot, vflag, tag, first, n=0):
        e('s_mov_b64 exec, 1')
        e(f's_waitcnt vmcnt({n})')
        if first: stamp(4)
        if o.padto and tag == 'x': stamp(12)
        e('v_cmp_ne_u32 vcc, 0, v27')
        e('v_not_b32 v57, v56')
        e('s_nop 0')
        e('v_cndmask_b32 v57, v56, v57, vcc')
        e(f'ds_write_b32 v55, v57 offset:{slot}')
        e(f'ds_read_b128 v[20:23], v10 offset:{32+slot}')
        e('s_waitcnt lgkmcnt(0)')
        for i in range(4): e(f'v_xor_b32 v{20+i}, v{20+i}, v56')
        e('v_or3_b32 v20, v20, v21, v22')
        e('v_or_b32 v20, v20, v23')
        e('v_cmp_eq_u32 vcc, 0, v20')
        e('s_and_b64 exec, exec, vcc')
        e(f's_cbranch_execz L_nl{tag}')
        e(f'buffer_store_dword v56, v{vflag}, {sr(S_WS)}, 0 offen sc1')
        e(f'L_nl{tag}:')
        e('s_mov_b64 exec, -1')
    if o.tagp and o.xl:
        e(f's_cmp_lg_u32 s{XK}, 2')
        e('s_cbranch_scc1 L_noflag')
        publish(0, 58, 'x', True)
        e(f's_mov_b32 s{XK}, 0')
    elif not o.tagp:
        e(f's_cmp_eq_u32 s{EARLY}, 0')
        e('s_cbranch_scc1 L_noflag')
        publish(0, 58, 'x', True)
        if not o.b0early: e('s_barrier')
    e('L_noflag:')
    e(f's_setprio {o.hprio2}')
    RAW, ORAW = 64, 120
    EU = [184, 192]
    OU, DT, DO = 200, 208, 216
    xi = [0]
    NL = R + 1
    hq = []
    def eload():
        k = xi[0]
        if k >= NL: return
        a_ = 12
        if k:
            a_ = 13 + (k & 3)
            e(f'v_add_u32 v{a_}, {1152*k}, v12')
        e(f'buffer_load_dwordx4 {vr(RAW+4*k,4)}, v{a_}, {sr(S_X)}, 0 offen')
        xi[0] += 1
        hq.append(('e', k))
    if o.etouch:
        e(f's_cmp_lt_u32 s2, {NTASK}')
        e('s_cbranch_scc1 L_net')
        e(f's_and_b32 s46, s{NB}, 1')
        e(f's_mul_i32 s46, s46, {1152*6}')
        e('v_add_u32 v12, s46, v12')
        for _ in range(7): eload()
        e('v_subrev_u32 v12, s46, v12')
        e('s_waitcnt vmcnt(0)')
        e('L_net:')
        xi[0] = 0; hq.clear()
    YA = 232
    e(f's_cmp_eq_u32 s{b+5}, 2')
    e('s_cselect_b32 s46, 0x80000000, 0')
    e(f's_cmp_lg_u32 s{HAS3}, 0')
    e('s_cselect_b32 s47, 0x80000000, 0')
    e('s_or_b32 s48, s46, s47')
    for i in range(6):
        m_ = {0: None, 1: 46, 2: None, 3: 46, 4: 47, 5: 48}[i]
        e(f'v_mov_b32 v{YA+i}, v{52+i//2}' if m_ is None else f'v_or_b32 v{YA+i}, s{m_}, v{52+i//2}')
    def ystore(i, a_):
        e(f'buffer_store_dwordx4 {vr(28+4*i,4)}, v{a_}, {sr(S_WS)}, s{b+2+(i&1)} offen sc1')
        hq.append(('y', i))
    stamp(5)
    ldswait(8, 'eq', 4, 'o', 1)
    def unpack(dst, s_):
        for i in range(4):
            e(f'v_lshlrev_b32 v{dst+2*i}, 16, v{s_+i}')
            e(f'v_and_b32 v{dst+2*i+1}, s{MASK}, v{s_+i}')
    def unpackE(dst, k):
        e(f's_waitcnt vmcnt({len(hq)-1-hq.index(("e", k))})')
        unpack(dst, RAW + 4 * k)
        eload()
    def diff(eu, out):
        for i in range(8): e(f'v_sub_f32 v{DT+i}, v{eu+i}, v{OU+i}')
        for i in range(4):
            e(f'v_cvt_pk_bf16_f32 v{out+i}, v{DT+2*i}, v{DT+2*i+1}')
    def opengate():
        if not o.gate: return
        e('v_mov_b32 v11, 0x100')
        e('s_mov_b64 exec, 1')
        e('ds_add_u32 v10, v11 offset:8')
        e('s_mov_b64 exec, -1')
    def rows(hook):
        stamp(6)
        for j in range(R):
            e(f'ds_read_b128 {vr(ORAW+4*j,4)}, v18 offset:{X_O+288*j}')
        unpackE(EU[0], 0)
        e('s_waitcnt lgkmcnt(0)')
        for j in range(R):
            o0 = DO + 8 * (j & 1)
            unpack(OU, ORAW + 4 * j)
            diff(EU[j & 1], o0)
            e(f'ds_write_b128 v18, {vr(o0,4)} offset:{X_D0+288*j}')
            unpackE(EU[(j + 1) & 1], j + 1)
            diff(EU[(j + 1) & 1], o0 + 4)
            e(f'ds_write_b128 v19, {vr(o0+4,4)} offset:{288*j}')
            hook(j)
    e(f's_cmp_ge_u32 s2, {NPROD + (32 if o.d0p else 0)}')
    e('s_cbranch_scc1 L_pathA')
    e(f's_cmp_lt_u32 s{XK}, 2')
    e('s_cbranch_scc1 L_nox')
    if o.d0p:
        e(f's_cmp_eq_u32 s{XK}, 3')
        e('s_cbranch_scc1 L_xd')
    for i in range(3):
        e(f'buffer_store_dwordx4 {vr(SOR(i),4)}, v{YA+2*i}, {sr(S_WS)}, s{b+4} offen sc1')
    if o.d0p:
        e('s_branch L_xe')
        e('L_xd:')
        for i in range(6): ystore(i, YA + i)
        e('L_xe:')
    if o.gearly:
        opengate()
        publish(0, 58, 'x2', True)
        e('s_branch L_nox2')
        e('L_nox:')
        opengate()
        e('L_nox2:')
    else:
        publish(0, 58, 'x2', True)
        e('L_nox:')
        opengate()
    hq.clear(); xi[0] = 0
    for _ in range(o.ein): eload()
    rows(lambda j: None)
    e('s_branch L_rowsdone')
    e('L_pathA:')
    if not o.d0p:
        e(f's_cmp_eq_u32 s{XK}, 3')
        e('s_cselect_b32 s47, 0, 0x80000000')
        for i in range(6): e(f'v_or_b32 v{20+i}, s47, v{YA+i}')
    hq.clear(); xi[0] = 0
    for _ in range(NL): eload()
    if not o.d0p:
        for i in range(6): ystore(i, 20 + i)
    def hookA(j):
        if j == o.grow:
            e(f's_waitcnt vmcnt({len(hq)-1-hq.index(("e", NL-1))})')
            opengate()
        if j == o.xrow and not o.d0p:
            e(f's_cmp_lg_u32 s{XK}, 3')
            e('s_cbranch_scc1 L_xp')
            publish(0, 58, 'x3', True)
            e('L_xp:')
    rows(hookA)
    e('L_rowsdone:')
    e('s_waitcnt lgkmcnt(0)')
    stamp(7)
    e('v_mov_b32 v11, 1')
    e('s_mov_b64 exec, 1')
    e('ds_add_u32 v10, v11 offset:16')
    e('s_mov_b64 exec, -1')
    e(f's_cmp_eq_u32 s{YT}, 0')
    e('s_cbranch_scc1 L_noy')
    e(f's_setprio {o.yprio}')
    e('L_yw:')
    e('ds_read_b64 v[20:21], v10')
    e('s_waitcnt lgkmcnt(0)')
    e('v_lshrrev_b32 v21, 14, v21')
    e('v_and_b32 v21, -4, v21')
    e('v_or_b32 v20, v20, v21')
    e(f'v_cmp_le_u32 vcc, s{YT}, v20')
    e('s_nop 4')
    e('s_cbranch_vccnz L_yx')
    e('s_sleep 4')
    e('s_branch L_yw')
    e('L_yx:')
    for i in range(6):
        ystore(i, YA + i)
        e(f's_waitcnt vmcnt({o.ythr})')
        if o.ysleep: e(f's_sleep {o.ysleep}')
    publish(16, 59, 'y', False)
    if o.diag == 1: stamp(8)
    e('L_noy:')
    e(f's_cmp_lg_u32 s{WAVE}, 4')
    e('s_cbranch_scc1 L_hend')
    e('L_guard:')
    e('ds_read_b32 v11, v10 offset:4')
    e('s_waitcnt lgkmcnt(0)')
    e('v_readfirstlane_b32 s46, v11')
    e('s_nop 3')
    e('s_cmp_eq_u32 s46, 4')
    e('s_cbranch_scc1 L_hend')
    e('s_cmp_lt_u32 s46, 0x10000')
    e('s_cbranch_scc0 L_rescue')
    e('s_sleep 16')
    e('s_branch L_guard')
    e('L_rescue:')
    e(f's_mov_b32 s{MODE}, 1')
    e(f's_mov_b32 s{HAS3}, 1')
    e(f's_mov_b32 s{NOTASK}, 0')
    e(f's_lshr_b32 s{TW0}, s{NB}, 1')
    e(f's_add_u32 s{TW1}, s{NB}, 9')
    e(f's_lshr_b32 s{TW1}, s{TW1}, 1')
    e(f's_mov_b32 s{PAIR}, 0')
    e('s_branch L_prod')
    e('L_hend:')
    if o.padto and o.padev[0] == 'h': padloop('h')
    if o.diag == 1:
        stamp(9)
        dump(10)
    e('L_end:')
    e('s_endpgm')
    if o.hfirst:
        m0, h0 = mark['main0'], mark['help0']
        e.L = e.L[:m0] + e.L[h0:] + ['.p2align 6'] + e.L[m0:h0]
    e('L_codeend:')
    e('.section .rodata,"a"')
    e('.p2align 6')
    e(f'.amdhsa_kernel {KN}')
    for x in ['next_free_vgpr 256', 'next_free_sgpr 102', 'accum_offset 256', 'group_segment_fixed_size 0', 'kernarg_size 40',
              'user_sgpr_count 2', 'user_sgpr_kernarg_segment_ptr 1', 'system_sgpr_workgroup_id_x 1']:
        e('  .amdhsa_' + x)
    e('.end_amdhsa_kernel')
    n = haz.check(e.L)
    if n: print(f'{n} hazards', file=sys.stderr)
    return f'; @launch grid=({NWG},1,1) block=(512,1,1) lds={LDS_BYTES}\n' + e.text()

def opts(argv=None):
    ap = argparse.ArgumentParser()
    ap.add_argument('-o', default='k.s')
    for nm, d in [('diag', 0), ('pf', 16), ('pf0', 8), ('wgap', 4), ('wres', 4), ('wsc1', 0), ('nfill', 2), ('fstride', 128), ('sleep', 0), ('maxpoll', 3000), ('nopoll', 0),
                  ('hprio', 3), ('hprio2', 0), ('mprio', 2), ('epre', 0), ('ein', 7), ('dpre', 7), ('b0early', 0), ('mtouch', 1), ('gate', 1), ('swapab', 0), ('d0p', 1), ('map', 1), ('chain', 4), ('flat0', 0), ('flatzz', 0), ('tagp', 0), ('tpf', 5), ('xl', 0), ('p0plain', 0), ('onepoll', 0), ('epoll', 1), ('ppoll', 0), ('yprio', 3), ('ysleep', 0), ('vt', 94), ('tla', 40), ('tskip', 1), ('gearly', 1), ('chfrom', 8), ('oj', 9), ('nolds', 0), ('now', 0), ('wsame', 0), ('grow', 1), ('vbd', 33), ('nopk', 1), ('padto', 0), ('npdelay', 0), ('opre', 5), ('etouch', 0), ('orev', 1), ('b0late', 1), ('dec', 1), ('tail', 1), ('xla', 9), ('hold', 1), ('prest', 0), ('xslot', 0), ('noclosed', 0), ('cpf', 1), ('hfirst', 1), ('warmb', 1), ('wsfirst', 0), ('flead', 6), ('ythr', 6), ('xrow', 3), ('padstep', 33), ('probe', 0), ('probeoff', 0x4000000)]:
        ap.add_argument('--' + nm, type=int, default=d)
    ap.add_argument('--oflags', default='')
    ap.add_argument('--pmap', default='18,18,18,18,18,18,18,18')
    ap.add_argument('--padev', default='m0')
    ap.add_argument('--trig', default='10,25,40')
    ap.add_argument('--yrow', default='0,7,2,9,5,11')
    ap.add_argument('--pfcs', default='4,5,5,8,8')
    ap.add_argument('--fflags', default='')
    ap.add_argument('--fleads', default='6,6,6,6,6')
    ap.add_argument('--marks', default='0,4,8,12,16,24,33,47,58')
    o = ap.parse_args(argv)
    o.marks = [int(x) for x in o.marks.split(',')]
    o.yrow = [int(x) for x in o.yrow.split(',')]
    o.pfcs = [int(x) for x in o.pfcs.split(',')]
    o.fleads = [int(x) for x in o.fleads.split(',')]
    o.trig = [int(x) for x in o.trig.split(',')]
    return o

if __name__ == '__main__':
    o = opts()
    open(o.o, 'w').write(gen(o))
```

```python
import re, sys, argparse
import haz

KN = 'standalone__autoregressive_conv_wavernn__speech_kernel'
NWG = 252
NPROD = 144
ARR = 160 * 288
X_D0, X_O, X_D1 = 0, ARR, 2 * ARR
CNT = 3 * ARR
SCR = CNT + 64
LDS_BYTES = SCR + 18432
NSTEP = 106
WOFF = int(__import__('os').environ.get('WOFF', '0x100000'), 0)
NONCE = 0x10000
DIAG = 0x800000
WS_REC = max(0x1000000, WOFF + 0x400000, int(__import__('os').environ.get('WSREC', '0'), 0))
TAGINC = 0x9E3779B9
R = 12

class Em:
    def __init__(self): self.L = []
    def __call__(self, s): self.L.append(s)
    def text(self): return '\n'.join(self.L) + '\n'

def vr(a, n=1): return f'v{a}' if n == 1 else f'v[{a}:{a+n-1}]'
def sr(a, n=4): return f's[{a}:{a+n-1}]'

def streams():
    out = []
    for typ in (0, 1):
        S = []
        pid = [0]
        def add(arr, chunk, cs, acc):
            for c in cs: S.append((pid[0], arr, chunk, c, acc))
            pid[0] += 1
        if typ == 0:
            add('O', 0, range(16), 'P'); add('O', 1, range(16), 'P'); add('O', 'rem', range(0, 2), 'P')
            for q in range(4): add('D', q, range(16), 'Q')
            add('D', 'rem', range(8), 'Q')
        else:
            add('O', 2, range(16), 'P'); add('O', 3, range(16), 'P'); add('O', 'rem', range(2, 8), 'P')
            for q in range(4): add('D', q, range(15), 'Q')
            add('D', 'rem', range(8), 'Q')
        assert len(S) == NSTEP
        out.append(S)
    return out

S_X, S_W, S_WO, S_WS, S_OUT, S_DBG = 20, 24, 28, 32, 36, 40
WAVE, NB, BAT, PAR, MB, BOFF = 14, 15, 16, 17, 18, 19
PAIR0 = 3
XB = 52
MASK = 53
TW0, TW1, TW2, PAIR, HAS3, MODE, SCRB, TAG, LAST, NPOLL = 44, 45, 54, 55, 56, 57, 58, 59, 60, 61
TS = 62
TYP, WSO = 68, 69
EARLY, XK, YT, FIDX = 90, 91, 92, 93
NOTASK = 94
NTASK = NPROD + 96
FO = 97
C2L, CNL, C60 = 90, 92, 94
ST0 = 70

def srd(e, d, ptr, rec, add=None):
    if add is None:
        e(f's_mov_b32 s{d}, s{ptr}')
        e(f's_and_b32 s{d+1}, s{ptr+1}, 0xffff')
    else:
        e(f's_add_u32 s{d}, s{ptr}, s{add}')
        e(f's_addc_u32 s{d+1}, s{ptr+1}, 0')
        e(f's_and_b32 s{d+1}, s{d+1}, 0xffff')
    e(f's_mov_b32 s{d+2}, {rec}')
    e(f's_mov_b32 s{d+3}, 0x20000')

def gen(o):
    e = Em()
    NSTR = 2 * NSTEP * 1024 + (65536 if o.tagp else 0)
    if o.tagp: o.epoll = 0
    role = ['m']
    def padloop(tag):
        e(f'L_pad{tag}:')
        e('s_memrealtime s[98:99]')
        e('s_waitcnt lgkmcnt(0)')
        e('s_sub_u32 s98, s98, s100')
        e(f's_cmp_lt_u32 s98, {o.padto}')
        e(f's_cbranch_scc1 L_pad{tag}')
    def stamp(k, lvl=1):
        if o.padto and lvl == 1 and o.padev == f'{role[0]}{k}':
            e('s_memrealtime s[100:101]'); e('s_waitcnt lgkmcnt(0)')
        if o.diag == lvl or (o.diag == 4 and lvl == 1): e(f's_memrealtime s[{ST0+2*k}:{ST0+2*k+1}]')
    def dump(nst):
        e('s_waitcnt lgkmcnt(0)')
        e('v_mov_b32 v250, 0')
        for k in range(nst): e(f'v_writelane_b32 v250, s{ST0+2*k}, {k}')
        e(f'v_writelane_b32 v250, s{NPOLL}, 13')
        e(f'v_writelane_b32 v250, s95, 12')
        e(f'v_writelane_b32 v250, s2, 14')
        e('s_getreg_b32 s46, hwreg(HW_REG_XCC_ID)')
        e('v_writelane_b32 v250, s46, 15')
        e(f's_lshl_b32 s46, s2, 3'); e(f's_add_u32 s46, s46, s{WAVE}'); e('s_lshl_b32 s46, s46, 6'); e(f's_add_u32 s46, s46, {DIAG}')
        e('v_lshl_add_u32 v251, v1, 2, s46')
        e('s_mov_b64 exec, 0xffff')
        e(f'buffer_store_dword v250, v251, {sr(S_WS)}, 0 offen')
        e('s_mov_b64 exec, -1')

    e('.amdgcn_target "amdgcn-amd-amdhsa--gfx950"')
    e('.text')
    e(f'.globl {KN}')
    e('.p2align 8')
    e(f'.type {KN},@function')
    e(f'{KN}:')
    e(f's_cmp_ge_u32 s2, {NWG}')
    e('s_cbranch_scc1 L_end')
    stamp(0)
    if o.padto and o.padev != 'm0': e('s_memrealtime s[100:101]')
    e('s_load_dwordx4 s[4:7], s[0:1], 0')
    e('s_load_dwordx4 s[8:11], s[0:1], 16')
    e('s_load_dwordx2 s[12:13], s[0:1], 32')
    e('v_lshrrev_b32 v2, 6, v0')
    e('v_and_b32 v1, 63, v0')
    e(f'v_readfirstlane_b32 s{WAVE}, v2')
    def decode():
        e('s_and_b32 s44, s2, 7')
        e('s_lshr_b32 s45, s2, 3')
        e('s_mul_i32 s46, s44, 31')
        e('s_min_u32 s44, s44, 4')
        e('s_add_u32 s46, s46, s44')
        e('s_add_u32 s46, s46, s45')
        if o.map == 0:
            e('s_mul_hi_u32 s47, s46, 68174085')
            e('s_mul_i32 s48, s47, 63')
            e('s_sub_u32 s48, s46, s48')
            e(f's_mul_hi_u32 s{NB}, s48, 613566757')
            e(f's_mul_i32 s49, s{NB}, 7')
            e('s_sub_u32 s49, s48, s49')
            e('s_mul_i32 s47, s47, 7')
            e('s_add_u32 s47, s47, s49')
        elif o.map == 1:
            e('s_mul_hi_u32 s47, s46, 477218589')
            e('s_mul_i32 s48, s47, 9')
            e(f's_sub_u32 s{NB}, s46, s48')
        else:
            e('s_mul_hi_u32 s47, s46, 34087043')
            e('s_mul_i32 s48, s47, 126')
            e('s_sub_u32 s48, s46, s48')
            e(f's_mul_hi_u32 s{NB}, s48, 306783379')
            e(f's_mul_i32 s49, s{NB}, 14')
            e('s_sub_u32 s49, s48, s49')
            e('s_mul_i32 s47, s47, 14')
            e('s_add_u32 s47, s47, s49')
        e(f's_and_b32 s{PAR}, s47, 1')
        e('s_lshr_b32 s47, s47, 1')
        e('s_cmp_ge_u32 s47, 7')
        e(f's_cselect_b32 s{BOFF}, 1152000, 0')
        e('s_cselect_b32 s48, 7, 0')
        e(f's_sub_u32 s{MB}, s47, s48')
        e(f's_mul_i32 s{XB}, s{MB}, 576')
        e(f's_add_u32 s{XB}, s{XB}, s{PAR}')
        e(f's_sub_u32 s{XB}, s{XB}, 60')
        e(f's_mul_i32 s{XB}, s{XB}, 288')
    e(f's_cmp_ge_u32 s{WAVE}, 4')
    e('s_cbranch_scc1 L_helper')
    if o.cpf:
        e('s_lshr_b32 s44, s2, 3')
        e(f's_lshl_b32 s45, s{WAVE}, 5')
        e('s_add_u32 s44, s44, s45')
        e('s_sub_u32 s44, s44, 26')
        e('s_cmp_ge_u32 s44, 5')
        e('s_cbranch_scc1 L_main')
        e('s_getpc_b64 s[46:47]')
        e('L_pc:')
        e('s_lshl_b32 s44, s44, 13')
        e('v_lshl_add_u32 v2, v1, 7, s44')
        e('v_min_u32 v2, L_codeend-L_pc-4, v2')
        e('global_load_dword v63, v2, s[46:47]')
    if o.hfirst: e('s_branch L_main')
    mark = {'main0': len(e.L)}
    e('L_main:')
    e(f's_mov_b32 s{MASK}, 0xffff0000')
    e(f's_mov_b32 s{NPOLL}, 0')
    if o.diag: e('s_mov_b32 s95, 0')
    decode()

    VXO, VXOR, VXD, VXDR, VWL, VEX, VEXP, VOUT = 30, 31, 32, 33, 34, 35, 36, 37
    VF = 40
    VA = 48
    VCL = 60
    e('v_mul_u32_u24 v3, 3641, v0')
    e('v_lshrrev_b32 v3, 16, v3')
    e('v_mul_u32_u24 v2, 18, v3')
    e('v_sub_u32 v2, v0, v2')
    e('v_mul_u32_u24 v3, 1152, v3')
    e('v_lshl_add_u32 v3, v2, 4, v3')
    e(f's_add_u32 s46, s{XB}, 576')
    e(f'v_add_u32 v{VA}, s46, v3')
    e('v_mov_b32 v5, 16192')
    e('v_mov_b32 v6, 17056')
    for k in range(1, 12):
        e('v_cmp_le_u32 vcc, 14, v2')
        e('v_add_u32 v3, 4, v2')
        e('v_subrev_u32 v4, 14, v2')
        e('v_cndmask_b32 v7, v5, v6, vcc')
        e('v_cndmask_b32 v2, v3, v4, vcc')
        e(f'v_add_u32 v{VA+k}, v{VA+k-1}, v7')
    e(f's_lshl_b32 s50, s{WAVE}, 10')
    e(f's_add_u32 s50, s50, {X_O}')
    e(f's_add_u32 s51, s50, {4096*11}')
    e('s_movk_i32 s49, 4096')
    if o.orev:
        e(f's_bitcmp0_b32 s{NB}, 0')
        e('s_cbranch_scc1 L_fwd')
        for k in range(5): e(f'v_swap_b32 v{VA+k}, v{VA+10-k}')
        e(f's_add_u32 s50, s50, {4096*10}')
        e('s_movk_i32 s49, -4096')
        e('L_fwd:')
    e(f'v_mov_b32 v{VF+1}, {CNT}')
    for r in range(4, 8): e(f'v_mov_b32 v{r}, 0')
    e(f'ds_write_b128 v{VF+1}, v[4:7]')
    e(f'ds_write_b128 v{VF+1}, v[4:7] offset:16')
    e('s_waitcnt lgkmcnt(0)')
    e(f's_load_dword s{TAG}, s[12:13], {NONCE}')
    srd(e, S_X, 4, 1152000, add=BOFF)
    def odma(k):
        e(f's_mov_b32 m0, s{51 if k == 11 else 50}')
        e('s_add_u32 s50, s50, s49')
        e(f'buffer_load_dwordx4 v{VA+k}, {sr(S_X)}, 0 offen lds')
    def etouch():
        e(f'buffer_load_dword v62, v9, {sr(S_X)}, 0 offen')
    if o.mtouch and o.tskip:
        e('s_lshr_b32 s47, s2, 4')
        e('s_lshr_b32 s47, 0x33, s47')
        e('s_lshl_b32 s47, s47, 31')
    if o.mtouch:
        e('v_min_u32 v8, 39, v1')
        e('v_lshrrev_b32 v9, 2, v8')
        e(f's_mul_i32 s46, s{WAVE}, 10')
        e('v_add_u32 v9, s46, v9')
        e(f'v_mul_u32_u24 v9, {4*1152}, v9')
        e('v_and_b32 v8, 3, v8')
        e('v_mul_u32_u24 v8, 92, v8')
        e(f's_and_b32 s46, s{NB}, {7 if o.mtouch == 4 else 3}')
        e(f's_mul_i32 s46, s46, {576 if o.mtouch == 4 else 1152}')
        e(f's_add_u32 s46, s46, s{XB}')
        e('v_add3_u32 v9, v9, v8, s46')
        if o.tskip == 1: e('v_or_b32 v9, s47, v9')
    if o.mtouch == 4 and o.tskip == 2:
        e('s_cmp_eq_u32 s47, 0')
        e('s_cbranch_scc1 L_tn')
        e('s_waitcnt lgkmcnt(0)')
        e('L_tn:')
    if o.mtouch in (2, 4): etouch()
    if o.padto and o.padev == 'm13':
        e('s_waitcnt vmcnt(0)'); stamp(13)
    if o.padto and o.padev == 'm14':
        odma(0); e('s_sub_u32 s50, s50, s49'); e('s_waitcnt vmcnt(0)'); stamp(14)
    if o.padto: stamp(10)
    for k in range(o.opre): odma(k)
    e('s_barrier')
    stamp(1)
    if o.mtouch == 3: etouch()
    for k in range(o.opre, 12):
        if k == 11:
            e(f's_cmp_lg_u32 s{WAVE}, 0')
            e('s_cbranch_scc1 L_o11')
        odma(k)
    e('L_o11:')
    if o.mtouch == 1: etouch()
    srd(e, S_WS, 12, WS_REC)
    if o.epoll:
        assert o.mtouch in (1, 4) and o.tskip
        e(f's_and_b32 s{TYP}, s{WAVE}, 1')
        e(f's_lshl_b32 s{FO}, s{TYP}, 13')
        e('s_mov_b32 s96, s47')
        e('s_xor_b32 s46, s47, 0x80000000')
        e(f'v_min_u32 v{VF}, 31, v1')
        e(f'v_lshlrev_b32 v{VF}, 7, v{VF}')
        e(f'v_or_b32 v2, s46, v{VF}')
        e(f'buffer_load_dword v{VF+4}, v2, {sr(S_WS)}, s{FO} offen sc1')
    srd(e, S_OUT, 8, 1152000, add=BOFF)
    srd(e, S_DBG, 10, 256)
    e('v_and_b32 v2, 15, v1')
    e('v_lshrrev_b32 v3, 4, v1')
    e('v_subrev_u32 v5, 4, v2')
    e('v_add_u32 v6, 8, v2')
    e('v_cmp_gt_u32 vcc, 4, v2')
    e('v_cmp_le_u32 s[46:47], 12, v2')
    e(f's_and_b32 s{TYP}, s{WAVE}, 1')
    e(f's_lshr_b32 s48, s{WAVE}, 1')
    e('v_cndmask_b32 v5, v5, v6, vcc')
    e('v_cndmask_b32 v5, v5, v2, s[46:47]')
    e('v_mul_u32_u24 v5, 9, v5')
    e('v_mul_u32_u24 v4, 288, v5')
    e('v_lshl_add_u32 v6, v3, 4, v4')
    e('v_and_b32 v7, 1, v3')
    e('v_lshl_add_u32 v7, v7, 4, v4')
    e('v_lshrrev_b32 v8, 1, v3')
    e('v_mul_u32_u24 v8, 2304, v8')
    e('v_add_u32 v7, v7, v8')
    e('v_add_u32 v7, 256, v7')
    e(f's_mul_i32 s49, s{TYP}, {X_D1}')
    e(f'v_add_u32 v{VXO}, {X_O}, v6')
    e(f'v_add_u32 v{VXOR}, {X_O}, v7')
    e(f'v_add_u32 v{VXD}, s49, v6')
    e(f'v_add_u32 v{VXDR}, s49, v7')
    e('v_lshlrev_b32 v6, 4, v1')
    e(f's_mul_i32 s49, s{WAVE}, 9216')
    e(f's_add_u32 s49, s49, {X_O}')
    e(f'v_add_u32 v{VEX}, s49, v6')
    e(f's_xor_b32 s49, s{WAVE}, 1')
    e('s_mul_i32 s49, s49, 9216')
    e(f's_add_u32 s49, s49, {X_O}')
    e(f'v_add_u32 v{VEXP}, s49, v6')
    e('v_and_b32 v8, 0x39, v1')
    e('v_bfe_u32 v9, v1, 1, 1')
    e('v_lshl_add_u32 v8, v9, 2, v8')
    e('v_bfe_u32 v9, v1, 2, 1')
    e('v_lshl_add_u32 v8, v9, 1, v8')
    e(f'v_lshlrev_b32 v{VWL}, 4, v8')
    e(f's_mul_i32 s49, s{TYP}, 576')
    e(f's_add_u32 s49, s49, s{XB}')
    e(f's_add_u32 s49, s49, {60*288}')
    e(f's_lshl_b32 s50, s{NB}, 5')
    e('s_add_u32 s49, s49, s50')
    e('s_lshl_b32 s50, s48, 4')
    e('s_add_u32 s49, s49, s50')
    e('v_mul_u32_u24 v8, 1152, v5')
    e('v_lshl_add_u32 v8, v3, 2, v8')
    e(f'v_add_u32 v{VOUT}, s49, v8')
    e(f'v_add_u32 v{VOUT+1}, 3456, v{VOUT}')
    e(f'v_add_u32 v{VOUT+2}, 6912, v{VOUT}')
    e(f's_lshl_b32 s49, s{NB}, 1')
    e('s_add_u32 s49, s49, s48')
    e(f's_mul_i32 s49, s49, {NSTR}')
    e(f's_mul_i32 s{WSO}, s{TYP}, {NSTEP*1024}')
    e(f's_add_u32 s{WSO}, s{WSO}, s49')
    e(f's_add_u32 s{WSO}, s{WSO}, {WOFF + (16384 if o.tagp else 0)}')
    if o.tagp:
        e(f's_lshl_b32 s96, s{TYP}, 15')
        e('s_add_u32 s96, s96, s49')
        e(f's_add_u32 s96, s96, {WOFF + 2*NSTEP*1024}')
    e(f's_mov_b32 s{C2L}, 0x4038aa3b'); e(f's_mov_b32 s{C2L+1}, 0x4038aa3b')
    e(f's_mov_b32 s{CNL}, 0xbfb8aa3b'); e(f's_mov_b32 s{CNL+1}, 0xbfb8aa3b')
    e(f's_mov_b32 s{C60}, 0x42700000')
    e(f'v_min_u32 v{VF}, 31, v1')
    e(f'v_lshlrev_b32 v{VF}, 7, v{VF}')
    e(f'v_min_u32 v{VF+6}, 47, v1')
    e(f'v_lshlrev_b32 v{VF+6}, 7, v{VF+6}')
    e(f'v_mov_b32 v{VF+2}, 1')
    e('s_lshl_b32 s46, s48, 2')
    e(f'v_add_u32 v{VF+5}, s46, v{VF+1}')
    e(f's_or_b32 s46, s2, s{WAVE}')
    e('v_or_b32 v2, s46, v1')
    e('v_cmp_eq_u32 vcc, 0, v2')
    e(f'v_mov_b32 v{VCL}, -16')
    e(f'v_mov_b32 v{VCL+1}, -16')
    e(f'v_mov_b32 v3, {NONCE}')
    e(f'v_cndmask_b32 v{VCL}, v{VCL}, 4, vcc')
    e(f'v_cndmask_b32 v{VCL+1}, v{VCL+1}, v3, vcc')
    e(f's_lshl_b32 s{FO}, s{TYP}, 13')
    if o.warmb:
        e(f's_cmp_eq_u32 s{TYP}, 1')
        e('s_cbranch_scc1 L_warmB')
        e('L_warmret:')
    e(f's_waitcnt vmcnt({(1 if o.mtouch == 1 else 0) + o.epoll}) lgkmcnt(0)')
    stamp(2)
    if o.padto and o.padev in ('m11', 'm12'):
        e('s_lshr_b32 s46, s2, 4')
        e('s_lshr_b32 s46, 0x33, s46')
        e('s_bitcmp1_b32 s46, 0')
        e(f's_cbranch_scc{1 if o.padev == "m11" else 0} L_pk')
        e('s_memrealtime s[100:101]'); e('s_waitcnt lgkmcnt(0)')
        e('L_pk:')
    e('s_mov_b64 exec, 1')
    e(f'ds_add_u32 v{VF+1}, v{VF+2} offset:8')
    e('s_mov_b64 exec, -1')
    e(f's_add_u32 s{TAG}, s{TAG}, {TAGINC}')
    e(f'v_mov_b32 v{VF+3}, s{TAG}')
    def flagwait(tag, vaddr, back):
        e(f'L_fw{tag}:')
        if o.diag and len(tag) == 2: e(f's_add_u32 s95, s95, {1 << (5 * int(tag[1]))}')
        e(f'buffer_load_dword v{VF+4}, v{vaddr}, {sr(S_WS)}, s{FO} offen sc1')
        e(f'ds_read_b32 v{VF+7}, v{VF+1} offset:12')
        e(f's_add_u32 s{NPOLL}, s{NPOLL}, 1')
        e('s_waitcnt vmcnt(0) lgkmcnt(0)')
        e(f'v_cmp_ne_u32 vcc, v{VF+3}, v{VF+4}')
        e(f'v_readfirstlane_b32 s46, v{VF+7}')
        e('s_nop 3')
        e(f's_cbranch_vccz {back}')
        e('s_cmp_lg_u32 s46, 0')
        e(f's_cbranch_scc1 {back}')
        e(f's_cmp_lg_u32 s{NPOLL}, {o.maxpoll}')
        e(f's_cbranch_scc1 L_fw{tag}')
        e(f'v_mov_b32 v{VF+7}, 0x10000')
        e('s_mov_b64 exec, 1')
        e(f'ds_add_u32 v{VF+1}, v{VF+7} offset:4')
        e('s_mov_b64 exec, -1')
        e(f's_branch L_fw{tag}')
    if o.epoll:
        e('s_cmp_eq_u32 s96, 0')
        e('s_cbranch_scc1 L_gate')
        e('s_waitcnt vmcnt(0)')
        e(f'v_cmp_ne_u32 vcc, v{VF+3}, v{VF+4}')
        e('s_nop 4')
        e('s_cbranch_vccz L_go')
    if o.gate:
        e('L_gate:')
        e(f'ds_read_b32 v{VF+4}, v{VF+1} offset:8')
        e('s_waitcnt lgkmcnt(0)')
        e(f'v_and_b32 v{VF+4}, 0xffff, v{VF+4}')
        e(f'v_cmp_gt_u32 vcc, 0x400, v{VF+4}')
        e('s_nop 4')
        e('s_cbranch_vccz L_gate2')
        e('s_sleep 1')
        e('s_branch L_gate')
        e('L_gate2:')
    if o.ppoll:
        e(f'buffer_load_dword v{VF+4}, v{VF}, {sr(S_WS)}, s{FO} offen sc1')
        e('L_pp:')
        for a_, b_ in ((VF + 4, 62), (62, VF + 4)):
            e(f's_sleep {o.ppoll}')
            e(f'buffer_load_dword v{b_}, v{VF}, {sr(S_WS)}, s{FO} offen sc1')
            e('s_waitcnt vmcnt(1)')
            e(f'v_cmp_ne_u32 vcc, v{VF+3}, v{a_}')
            e(f's_add_u32 s{NPOLL}, s{NPOLL}, 1')
            e('s_nop 3')
            e('s_cbranch_vccz L_go')
        e(f's_cmp_lt_u32 s{NPOLL}, 40')
        e('s_cbranch_scc1 L_pp')
        e(f's_mov_b32 s{NPOLL}, 0')
    if o.p0plain:
        e(f'buffer_load_dword v{VF+4}, v{VF}, {sr(S_WS)}, s{FO} offen')
        e('s_waitcnt vmcnt(0)')
        e(f'v_cmp_ne_u32 vcc, v{VF+3}, v{VF+4}')
        e('s_nop 4')
        e('s_cbranch_vccz L_go')
    if o.onepoll:
        e(f's_cmp_lt_u32 s{WAVE}, 2')
        e('s_cbranch_scc1 L_fw0')
        e('L_op:')
        e(f'ds_read_b32 v{VF+7}, v{VF+1} offset:8')
        e('s_waitcnt lgkmcnt(0)')
        e(f's_add_u32 s46, s{TYP}, 16')
        e(f'v_lshrrev_b32 v{VF+7}, s46, v{VF+7}')
        e(f'v_and_b32 v{VF+7}, 1, v{VF+7}')
        e(f'v_cmp_eq_u32 vcc, 0, v{VF+7}')
        e('s_nop 4')
        e('s_cbranch_vccnz L_op')
        e('s_branch L_go2')
    if not o.tagp: flagwait('0', VF, 'L_go')
    e('L_go:')
    if o.tagp: e('s_mov_b32 s50, s96')
    if o.onepoll:
        e(f's_lshl_b32 s46, 0x10000, s{TYP}')
        e(f'v_mov_b32 v{VF+7}, s46')
        e('s_mov_b64 exec, 1')
        e(f'ds_or_b32 v{VF+1}, v{VF+7} offset:8')
        e('s_mov_b64 exec, -1')
        e('L_go2:')
    stamp(3)
    e('L_gw:')
    e(f'ds_read_b32 v{VF+7}, v{VF+1} offset:8')
    e('s_waitcnt lgkmcnt(0)')
    e(f'v_and_b32 v{VF+7}, 0xff, v{VF+7}')
    e(f'v_cmp_ne_u32 vcc, 4, v{VF+7}')
    e('s_nop 4')
    e('s_cbranch_vccnz L_gw')
    stamp(4)
    e(f's_setprio {o.mprio}')
    e(f's_cmp_eq_u32 s{TYP}, 1')
    e('s_cbranch_scc1 L_typeB')

    ACC = {'P': 64, 'Q': 100}
    WR, TMP = 136, 224
    XRING = [200 + 4 * i for i in range(6)]
    XWIN = [4 + 4 * i for i in range(6)] + [240 + 4 * i for i in range(4)]
    VC = 28
    PF = o.pf
    GT = 98
    wflags = ' sc1' if o.wsc1 else ''
    for typ, S in enumerate(streams()):
        if typ == 1:
            e('.p2align 6')
            if o.warmb: e('L_warmB:'); e('s_branch L_warmret')
            e('L_typeB:')
        ops = []
        vstart = {}
        lastv = o.vt - 1
        v0 = 0
        G0 = 0
        if o.flat0:
            for g in range(16):
                vstart[g] = len(ops)
                for j in (range(9) if g % 2 == 0 or not o.flatzz else range(8, -1, -1)): ops.append((g, j))
            v0 = G0 = 16
        while v0 <= lastv:
            ch = 1 if v0 < o.chfrom + G0 else min(o.chain, lastv + 1 - v0)
            n0 = len(ops)
            for j in range(8, -1, -1):
                us = range(ch) if j % 2 == 0 else range(ch - 1, -1, -1)
                first_ = [u for u in us if v0 + u - j == 0 or (0 < v0 + u - j < NSTEP and S[v0+u-j][4] == 'Q' and S[v0+u-j-1][4] == 'P')]
                if first_: us = range(ch)
                for u in us:
                    if G0 <= v0 + u - j < NSTEP: ops.append((v0 + u - j, j))
            for u in range(ch): vstart[v0 + u] = n0 + (len(ops) - n0) * u // ch
            v0 += ch
        ntail = len(ops)
        if o.tail:
            for j in range(9):
                for g in range(o.vt - j, NSTEP): ops.append((g, j))
        assert len(ops) == NSTEP * 9 and len(set(ops)) == len(ops)
        N = len(ops)
        def key(n):
            g, j = ops[n]
            pid, arr, ch, c, acc = S[g]
            k = (pid, arr, ch, c + j)
            if n >= ntail and g < GT: k = k + ((n,) if not o.hold else ('h',))
            return k
        first, last = {}, {}
        for n in range(N):
            first.setdefault(key(n), n); last[key(n)] = n
        wfirst, wlast = {}, {}
        for n, (g, j) in enumerate(ops):
            wfirst.setdefault(g, n); wlast[g] = n
        tasks = []
        for k, n0 in first.items():
            win = o.tail and k[2] == 'rem' and k[1] == 'D'
            la = o.xla if n0 < ntail else 6
            if n0 >= ntail and ops[n0][1] == 0: la = o.tla
            elif win: la = 12
            tasks.append([n0 - la, n0 - 1, 'X', k])
        for g in range(NSTEP):
            rel = -100 + g if g < o.pf0 else max(0, wfirst[g] - 9 * PF)
            if o.tagp and g < 16:
                rel = -100 + g if g < 4 else max(0, wfirst[g] - 9 * o.tpf)
                tasks.append([rel, wfirst[g & ~1] - 9, 'W', g])
                continue
            tasks.append([rel, wfirst[g] - 1, 'W', g])
        def at(v, off=0): return vstart[v] + off
        firstD = min(n for n in range(N) if S[ops[n][0]][1] == 'D')
        lastO = max(n for n in range(N) if S[ops[n][0]][1] == 'O')
        lastP = {j: max(n for n in range(N) if ops[n][1] == j and S[ops[n][0]][4] == 'P') for j in range(9)}
        slow = []
        vused = set()
        def check(v, off, cnt, tag):
            tasks.append([at(v - 1, 3), at(v - 1, 8), 'L', (f'ds_read_b32 v{VC}, v{VF+1} offset:{off}', ('c', tag))])
            tasks.append([at(v, 0), at(v, 1), 'C', (f'v_cmp_ne_u32 vcc, {cnt}, v{VC}', ('c', tag))])
            tasks.append([at(v, 6), at(v, 7), 'I', [f's_cbranch_vccnz L_slow{typ}{tag}', f'L_back{typ}{tag}:']])
            slow.append((tag, off, cnt))
            vused.add(v)
            return at(v, 8)
        def add1(pos, off):
            tasks.append([pos, pos + 4, 'A', off])
        vD = [v for v in vstart if vstart[v] <= firstD - o.xla][-1] - 1
        okD = check(vD, 16, 4, 'D')
        assert okD <= firstD - o.xla
        add1(lastO, 20)
        VP = 47
        okR = check(VP, 20, 4, 'R')
        for j in range(9):
            assert lastP[j] + 12 < at(VP + 1 + j, 2)
            tasks.append([at(VP + 1 + j, 2), at(VP + 1 + j, 8), 'L', (f'ds_write_b128 v{VEX}, {vr(ACC["P"]+4*j,4)} offset:{1024*j}', ('pw', j))])
        tasks.append([at(VP + 10, 0), at(VP + 10, 4), 'A', 'pair'])
        VQ = VP + 13
        okP = check(VQ, 'pair', 2, 'P')
        for j in range(9):
            tasks.append([at(VQ + 1 + j, 2), at(VQ + 1 + j, 8), 'L', (f'ds_read_b128 {vr(TMP+4*(j&1),4)}, v{VEXP} offset:{1024*j}', ('pr', j))])
            v = VQ + 2 + j
            pos = at(v, 8 - (j + 2) - 1) if j <= 6 else at(v, 8 - (j - 7) - 1)
            sh = 1 if j >= 7 else 0
            if o.chain > 1:
                own = [n for n in range(N) if ops[n][1] == j]
                pos = [a_ + 10 for a_, b_ in zip(own, own[1:]) if b_ - a_ >= 14 and a_ + 9 >= at(v, 0) ][0]
                sh = 0
                tasks[-1][0] = pos - 9; tasks[-1][1] = pos - 4
                tasks[-1][3] = (f'ds_read_b128 {vr(TMP+4*(j&3),4)}, v{VEXP} offset:{1024*j}', ('pr', j))
            tasks.append([pos - 1 + sh, pos - 1 + sh, 'Q', (j, 0)])
            tasks.append([pos + sh, pos + sh, 'Q', (j, 1)])
        if typ == 0:
            tasks.append([at(64, 4), at(64, 8), 'S', f'buffer_store_dword v{VCL+1}, v{VCL}, {sr(S_DBG)}, 0 offen sc1'])
            tasks.append([at(84, 4), at(84, 8), 'S', f'buffer_store_dword v{VF+3}, v{VCL+1}, {sr(S_WS)}, 0 offen sc1'])
        fslow = []
        kslow = []
        if o.tagp:
            for g in range(0, 16, 2):
                n0 = wfirst[g]
                if g < 4: continue
                tasks.append([n0 - 8, n0 - 7, 'K', g])
                tasks.append([n0 - 2, n0 - 1, 'I', ['s_cmp_lg_u64 s[48:49], 0', f's_cbranch_scc1 L_ks{typ}{g}', f'L_kb{typ}{g}:']])
        passes = {}
        for g in range(NSTEP): passes.setdefault(S[g][0], g)
        need = [(passes[1], VF, 32 + 64 * typ), (32, VF + 6, 128), (passes[4], VF, 176), (passes[5], VF, 208), (passes[6], VF + 6, 240)]
        for ci, (gn, va, idx) in enumerate(need):
            v = gn - o.pfcs[ci] - 1
            while v in vused: v -= 1
            tasks.append([at(v - o.fleads[ci], 4), at(v - o.fleads[ci], 8), 'F', (va, idx, ci)])
            tasks.append([at(v, 0), at(v, 1), 'G', ci])
            tasks.append([at(v, 6), at(v, 7), 'I', [f's_cbranch_vccnz L_fw{typ}{ci}', f'L_fb{typ}{ci}:']])
            fslow.append((ci, va))
            assert v not in vused, v
            for t in tasks:
                if t[2] == 'W' and (t[3] >= gn): t[0] = max(t[0], at(v, 8))
        tasks.append([at(v + 1, 2), at(v + 1, 8), 'A', 4])
        if typ == 0:
            for lvl, v in enumerate(o.trig): tasks.append([at(v, 2), at(v, 8), 'P', lvl + 1])
        tasks.sort(key=lambda t: (t[0], t[1]))
        vq, lq = [], []
        dirty = [False]
        xreg, busy = {}, {}
        wn = [0]
        wr = {}
        lastw = [-100]
        later = []
        BIG = [WR + 4 * i for i in range(16)] + XWIN + [ACC['P'] + 4 * i for i in range(9)]
        for i in range(9): busy[ACC['P'] + 4 * i] = at(VP + 12)
        until = {}
        if o.chain > 1:
            BIG += XRING + [VA, VA + 4, VA + 8]
            for i in range(9):
                BIG.append(ACC['Q'] + 4 * i)
                until[ACC['Q'] + 4 * i] = min(n for n in range(N) if ops[n][1] == i and S[ops[n][0]][4] == 'Q') - 3
        def freeregs(n, end): return [x for x in BIG if busy.get(x, -1) <= n and end < until.get(x, 10**9)]
        def freepairs(n, end):
            f_ = set(freeregs(n, end))
            return [x for x in sorted(f_) if x % 8 == PAR8.get(x, -1) and x + 4 in f_]
        PAR8 = {x: x % 8 for x in list(range(WR, WR + 64, 8)) + [4, 12, 20, 240, 248, 200, 208, 216, 100, 108, 116, 124, VA]}
        def kcheck(g):
            vwait(g + 1)
            for i, gg in enumerate((g, g + 1)):
                a_ = wr[gg] - 2
                em(f'v_bitop3_b32 v{VC+i}, v{a_+1}, v{a_+6}, v{VF+3} bitop3:0x7e')
            em(f'v_or_b32 v{VC}, v{VC}, v{VC+1}')
            em(f'v_cmp_ne_u32 s[48:49], 0, v{VC}')
            kslow.append((g, wr[g] - 2, wr[g + 1] - 2))
        def wok(t, n):
            if t[2] != 'W': return True
            if t[3] != wn[0]: return False
            if o.tagp and t[3] < 16:
                return bool(freepairs(n, wlast[t[3]])) and (n - lastw[0] >= 2 or t[1] - n <= 4)
            free = len(freeregs(n, wlast[t[3]]))
            if t[1] - n <= 9 * 3: return free > 0
            return n - lastw[0] >= o.wgap and free > o.wres
        since = {}
        fill = []
        def em(x):
            e(x)
            if not x.endswith(':'):
                for jj in since: since[jj] += 1
        def lwait(tag):
            if tag not in lq: return
            i = lq.index(tag)
            em(f's_waitcnt lgkmcnt({0 if dirty[0] else len(lq)-1-i})')
            if dirty[0]: lq.clear(); dirty[0] = False
            else: del lq[:i + 1]
        def vwait(g):
            if g not in vq: return
            i = vq.index(g)
            em(f's_waitcnt vmcnt({len(vq)-1-i})')
            del vq[:i + 1]
        def run(t, n):
            kind, p = t[2], t[3]
            if kind == 'X':
                pool = BIG if (o.chain > 1 or p[-1] == 'h' or (p[2] == 'rem' and p[1] == 'D')) else XRING
                r = [x for x in pool if busy.get(x, -1) <= n and last[p] < until.get(x, 10**9)]
                assert r, ('no x register', p, n)
                r = min(r, key=lambda x: (until.get(x, 10**9), busy.get(x, -1)))
                busy[r] = last[p]; xreg[p] = r
                arr, ch, s_ = p[1], p[2], p[3]
                if o.nolds and n > 9 * 30: return
                if ch == 'rem': em(f'ds_read_b128 {vr(r,4)}, v{VXOR if arr == "O" else VXDR} offset:{288*s_}')
                else: em(f'ds_read_b128 {vr(r,4)}, v{VXO if arr == "O" else VXD} offset:{64*ch+288*s_}')
                lq.append(p)
            elif kind == 'W':
                g = p
                if o.tagp and g < 16:
                    r = min(freepairs(n, wlast[g]), key=lambda x: (until.get(x, 10**9), busy.get(x, -1)))
                    busy[r] = busy[r + 4] = wlast[g]; wr[g] = r + 2
                    assert g == wn[0]; wn[0] += 1
                    lastw[0] = n
                    em(f'buffer_load_dwordx4 {vr(r,4)}, v{VWL}, {sr(S_WS)}, s50 offen offset:{2048*(g%2)}')
                    em(f'buffer_load_dwordx4 {vr(r+4,4)}, v{VWL}, {sr(S_WS)}, s50 offen offset:{2048*(g%2)+1024}')
                    vq.append(('h', g)); vq.append(g)
                    if g % 2 == 1:
                        if n < 0: em('s_add_u32 s50, s50, 4096')
                        else: later.append('s_add_u32 s50, s50, 4096')
                    return
                r = min(freeregs(n, wlast[g]), key=lambda x: (until.get(x, 10**9), busy.get(x, -1)))
                busy[r] = wlast[g]; wr[g] = r
                assert g == wn[0]; wn[0] += 1
                lastw[0] = n
                if o.now and g > 40: return
                if o.wsame and g > 40:
                    em(f'buffer_load_dwordx4 {vr(r,4)}, v{VWL}, {sr(S_WS)}, s{WSO} offen offset:{1024*(g%4)}{wflags}'); vq.append(g); return
                em(f'buffer_load_dwordx4 {vr(r,4)}, v{VWL}, {sr(S_WS)}, s{WSO} offen offset:{1024*(g%4)}{wflags}')
                if g % 4 == 3:
                    if n < 0: em(f's_add_u32 s{WSO}, s{WSO}, 4096')
                    else: later.append(f's_add_u32 s{WSO}, s{WSO}, 4096')
                vq.append(g)
            elif kind == 'L':
                em(p[0].replace('offset:pair', 'offset:24').replace(f'v{VF+1} offset:24', f'v{VF+5} offset:24')); lq.append(p[1])
            elif kind == 'C':
                lwait(p[1]); em(p[0])
            elif kind == 'I':
                for x in p: em(x)
            elif kind == 'A':
                em('s_mov_b64 exec, 1')
                if p == 'pair': em(f'ds_add_u32 v{VF+5}, v{VF+2} offset:24')
                else: em(f'ds_add_u32 v{VF+1}, v{VF+2} offset:{p}')
                em('s_mov_b64 exec, -1')
                lq.append(('a', p))
            elif kind == 'Q':
                p, hf = p
                lwait(('pr', p))
                q = ACC['Q'] + 4 * p; t_ = TMP + 4 * (p & (3 if o.chain > 1 else 1))
                for i in (2 * hf, 2 * hf + 1): em(f'v_add_f32 v{q+i}, v{q+i}, v{t_+i}')
            elif kind == 'S':
                assert not any(isinstance(x, tuple) and x[0] == 's' for x in vq)
                em(p); vq.append(('s', n))
            elif kind == 'F':
                em(f's_mov_b32 s{FO}, {128*p[1]}')
                em(f'buffer_load_dword v{VF+4}, v{p[0]}, {sr(S_WS)}, s{FO} offen {o.fflags}'); vq.append(('f', p[2]))
            elif kind == 'K':
                kcheck(p)
            elif kind == 'G':
                vwait(('f', p)); em(f'v_cmp_ne_u32 vcc, v{VF+3}, v{VF+4}')
            elif kind == 'P':
                em(f'v_mov_b32 v{VF+7}, {p}')
                em('s_mov_b64 exec, 1')
                em(f'ds_max_u32 v{VF+1}, v{VF+7}')
                em('s_mov_b64 exec, -1')
                lq.append(('p', p))
        def epi(j, pk):
            q = ACC['Q'] + 4 * j
            t = TMP + 8 * (j & 1)
            I = []
            if pk:
                I.append(f'v_pk_mul_f32 {vr(t,2)}, {vr(q,2)}, s[{C2L}:{C2L+1}]')
                I.append(f'v_pk_mul_f32 {vr(t+2,2)}, {vr(q+2,2)}, s[{CNL}:{CNL+1}]')
            else:
                for i in (0, 1): I.append(f'v_mul_f32 v{t+i}, s{C2L}, v{q+i}')
                for i in (2, 3): I.append(f'v_mul_f32 v{t+i}, s{CNL}, v{q+i}')
            I.append(f'v_min_f32 v{t}, s{C60}, v{t}')
            I.append(f'v_min_f32 v{t+1}, s{C60}, v{t+1}')
            for i in (0, 1, 2, 3): I.append(f'v_exp_f32 v{t+i}, v{t+i}')
            if pk:
                I.append(f'v_pk_add_f32 {vr(t+4,2)}, {vr(t,2)}, 1.0 op_sel_hi:[1,0]')
                I.append(f'v_pk_add_f32 {vr(t+6,2)}, {vr(t,2)}, -1.0 op_sel_hi:[1,0]')
                I.append(f'v_pk_fma_f32 {vr(t+4,2)}, {vr(t+4,2)}, {vr(t+2,2)}, {vr(t+4,2)}')
            else:
                for i in (0, 1): I.append(f'v_add_f32 v{t+4+i}, 1.0, v{t+i}')
                for i in (0, 1): I.append(f'v_fma_f32 v{t+4+i}, v{t+4+i}, v{t+2+i}, v{t+4+i}')
            I.append(f'v_rcp_f32 v{t+4}, v{t+4}')
            I.append(f'v_rcp_f32 v{t+5}, v{t+5}')
            if pk:
                I.append('s_nop 0')
                I.append(f'v_pk_mul_f32 {vr(t+6,2)}, {vr(t+6,2)}, {vr(t+4,2)}')
            else:
                for i in (0, 1): I.append(f'v_add_f32 v{t+6+i}, -1.0, v{t+i}')
                for i in (0, 1): I.append(f'v_mul_f32 v{t+6+i}, v{t+6+i}, v{t+4+i}')
            I.append(f'v_cvt_pk_bf16_f32 v{q}, v{t+6}, v{t+7}')
            I.append(f'buffer_store_dword v{q}, v{VOUT + j//3}, {sr(S_OUT)}, 0 offen offset:{1152*(j%3)} {o.oflags if j < o.oj else ""}')
            return I
        def cost(x): return 2 if x.startswith(('v_exp', 'v_rcp', 'buffer')) else 1
        while tasks and tasks[0][0] < 0: run(tasks.pop(0), -1)
        if o.tagp:
            for g in (0, 2):
                vwait(g + 1)
                for gg in (g + 4, g + 5):
                    t_ = [t for t in tasks if t[2] == 'W' and t[3] == gg][0]
                    tasks.remove(t_); run(t_, -1)
                kcheck(g)
                em('s_nop 2')
                em('s_cmp_lg_u64 s[48:49], 0')
                em(f's_cbranch_scc1 L_ks{typ}{g}')
                em(f'L_kb{typ}{g}:')
        inv = {n: v for v, n in vstart.items()}
        lastop = {j: max(n for n in range(N) if ops[n][1] == j) for j in range(9)}
        for n, (g, j) in enumerate(ops):
            if n in inv and o.padto and o.padev == 'm5' and inv[n] == o.padstep:
                e('s_memrealtime s[100:101]'); dirty[0] = True
            if n in inv and o.diag:
                v = inv[n]
                if o.diag == 2 and v in o.marks:
                    kk = o.marks.index(v)
                    e(f's_memtime s[{ST0+2*kk}:{ST0+2*kk+1}]'); dirty[0] = True
                if o.diag in (1, 4) and v == 33: stamp(5); stamp(6); dirty[0] = True
            k = key(n)
            assert k in xreg, (k, n)
            lwait(k); vwait(g)
            acc = S[g][4]
            d = ACC[acc] + 4 * j
            if g == 0: cs = '0'
            elif acc == 'Q' and S[g-1][4] == 'P': cs = vr(ACC['P'] + 4 * j, 4)
            else: cs = vr(d, 4)
            em(f'v_mfma_f32_16x16x32_bf16 {vr(d,4)}, {vr(wr[g],4)}, {vr(xreg[k],4)}, {cs}' if not o.swapab else f'v_mfma_f32_16x16x32_bf16 {vr(d,4)}, {vr(xreg[k],4)}, {vr(wr[g],4)}, {cs}')
            if n == lastop[j]: since[j] = 0
            while later: em(later.pop(0))
            budget = 2
            TC = {'X': 1, 'W': 2, 'L': 2, 'C': 1, 'I': 0, 'A': 1, 'Q': 2, 'S': 2, 'F': 2, 'G': 1, 'P': 2, 'K': 2}
            while True:
                ready = [t for t in tasks if t[0] <= n and wok(t, n)]
                if not ready: break
                t = min(ready, key=lambda t: t[1])
                assert t[1] >= n, ('late', t, n)
                if TC[t[2]] > budget and t[1] > n:
                    fit = [u for u in ready if TC[u[2]] <= budget]
                    if not fit: break
                    t = min(fit, key=lambda t: t[1])
                tasks.remove(t); run(t, n); budget -= TC[t[2]]
            for jj in sorted(since):
                if 8 <= since[jj] < 10**6:
                    fill += epi(jj, False); since[jj] = 10**6
            budget += o.nfill - 2
            while fill and budget >= cost(fill[0]):
                budget -= cost(fill[0])
                if fill[0].startswith('buffer_store'):
                    q_ = int(re.match(r'buffer_store_dword v(\d+)', fill[0]).group(1))
                    until.pop(q_, None); busy[q_] = n + 2
                em(fill.pop(0))
            assert all(t[1] > n for t in tasks), ('late', n, [t for t in tasks if t[1] <= n])
        assert not tasks
        stamp(7)
        while fill: em(fill.pop(0))
        for jj in [jj for jj in sorted(since) if since[jj] < 10**6]:
            if since[jj] < 8: em(f's_nop {8-since[jj]-1}')
            for x in epi(jj, True): em(x)
        stamp(8)
        if o.padto and o.padev[0] == 'm': padloop(typ)
        if o.diag == 1:
            e('s_waitcnt vmcnt(0)')
            stamp(9)
            dump(10)
        if o.diag == 2:
            kk = len(o.marks)
            e(f's_memtime s[{ST0+2*kk}:{ST0+2*kk+1}]')
            dump(10)
        e('s_endpgm')
        for tag, off, cnt in slow:
            e(f'L_slow{typ}{tag}:')
            e(f'ds_read_b32 v{VC}, v{VF+5 if off == "pair" else VF+1} offset:{24 if off == "pair" else off}')
            e('s_waitcnt lgkmcnt(0)')
            e(f'v_cmp_ne_u32 vcc, {cnt}, v{VC}')
            e('s_nop 4')
            e(f's_cbranch_vccnz L_slow{typ}{tag}')
            e(f's_branch L_back{typ}{tag}')
        for ci, va in fslow: flagwait(f'{typ}{ci}', va, f'L_fb{typ}{ci}')
        for g, a0_, a1_ in kslow:
            e(f'L_ks{typ}{g}:')
            if o.diag: e(f's_add_u32 s95, s95, {1 << 25}')
            e(f'ds_read_b32 v{VF+7}, v{VF+1} offset:12')
            e(f's_add_u32 s47, s96, {2048*g}')
            e('s_waitcnt lgkmcnt(0)')
            for i, a_ in enumerate((a0_, a0_ + 4, a1_, a1_ + 4)):
                e(f'buffer_load_dwordx4 {vr(a_,4)}, v{VWL}, {sr(S_WS)}, s47 offen offset:{1024*i} sc1')
            e(f'v_readfirstlane_b32 s46, v{VF+7}')
            e(f's_add_u32 s{NPOLL}, s{NPOLL}, 1')
            e('s_waitcnt vmcnt(0)')
            e('s_cmp_lg_u32 s46, 0')
            e(f's_cbranch_scc1 L_kb{typ}{g}')
            e(f'v_bitop3_b32 v{VC}, v{a0_+1}, v{a0_+6}, v{VF+3} bitop3:0x7e')
            e(f'v_bitop3_b32 v{VC+1}, v{a1_+1}, v{a1_+6}, v{VF+3} bitop3:0x7e')
            e(f'v_or_b32 v{VC}, v{VC}, v{VC+1}')
            e(f'v_cmp_ne_u32 s[48:49], 0, v{VC}')
            e('s_nop 2')
            e('s_cmp_eq_u64 s[48:49], 0')
            e(f's_cbranch_scc1 L_kb{typ}{g}')
            e(f's_cmp_lg_u32 s{NPOLL}, {o.maxpoll}')
            e(f's_cbranch_scc1 L_ks{typ}{g}')
            e(f'v_mov_b32 v{VF+7}, 0x10000')
            e('s_mov_b64 exec, 1')
            e(f'ds_add_u32 v{VF+1}, v{VF+7} offset:4')
            e('s_mov_b64 exec, -1')
            e(f's_branch L_ks{typ}{g}')

    mark['help0'] = len(e.L)
    if not o.hfirst: e('.p2align 6')
    e('L_helper:')
    role[0] = 'h'
    e(f's_setprio {o.hprio}')
    e(f's_sub_u32 s{TW0}, s{WAVE}, 4')
    e(f's_mov_b32 s{TW1}, s{WAVE}')
    e(f's_sub_u32 s{PAIR}, s2, {NPROD}')
    e(f's_cselect_b32 s{PAIR}, s2, s{PAIR}')
    e(f's_mov_b32 s{MODE}, 0')
    e(f's_mov_b32 s{NOTASK}, s2')
    e(f's_mov_b32 s{HAS3}, s{TW0}')
    e(f's_lshl_b32 s{SCRB}, s{TW0}, 12')
    e(f's_add_u32 s{SCRB}, s{SCRB}, {SCR}')
    e('L_prod:')
    T = [(28, TW0, 2, 52, 0), (36, TW1, 4, 53, 2048), (44, TW2, 6, 54, 16384)]
    c, kp, q, cc, kk, t = 46, 47, 48, 49, 50, 51
    b = TS
    e('v_mov_b32 v19, 4320')
    e('v_and_b32 v23, 3, v1')
    e('v_lshrrev_b32 v24, 3, v1')
    e('v_mul_u32_u24 v24, 576, v24')
    e('v_bfe_u32 v25, v1, 2, 1')
    e('v_mul_u32_u24 v25, 288, v25')
    e('v_add_u32 v24, v24, v25')
    for (vb, sw, vl, vs, so) in T:
        e(f'v_lshl_add_u32 v8, s{sw}, 2, v23' if sw != TW2 else 'v_add_u32 v8, 32, v23')
        e('v_cmp_le_u32 vcc, 18, v8')
        e(f'v_lshl_add_u32 v{vl}, v8, 4, v24')
        e(f'v_add_u32 v9, v{vl}, v19')
        e(f'v_cndmask_b32 v{vl}, v{vl}, v9, vcc')
    e(f's_and_b32 s{c}, s{PAIR}, 15')
    e(f's_lshr_b32 s{kp}, s{PAIR}, 4')
    e(f's_mul_i32 s{b}, s{c}, 165888')
    e(f's_mul_i32 s{t}, s{kp}, 9216')
    e(f's_add_u32 s{b}, s{b}, s{t}')
    e(f's_add_u32 s{b+1}, s{b}, 82944')
    e(f's_mov_b32 s{S_W+2}, 2571264')
    e(f's_mov_b32 s{S_W+3}, 0x20000')
    e(f's_mov_b32 s{S_WO+3}, 0x20000')
    e(f's_cmp_lg_u32 s{c}, 15')
    e(f's_cselect_b32 s{S_WO+2}, 2571264, 0')
    e(f's_mov_b32 m0, s{SCRB}')
    e('s_waitcnt lgkmcnt(0)')
    e(f's_mov_b32 s{S_W}, s6')
    e(f's_and_b32 s{S_W+1}, s7, 0xffff')
    e(f's_mov_b32 s{S_WO}, s6')
    e(f's_and_b32 s{S_WO+1}, s7, 0xffff')
    e(f's_cmp_ge_u32 s{NOTASK}, {NTASK}')
    e('s_cbranch_scc1 L_a3')
    def cond3(lbl):
        e(f's_cmp_lg_u32 s{HAS3}, 0')
        e(f's_cbranch_scc1 {lbl}')
    for ti, (vb, sw, vl, vs, so) in enumerate(T):
        if ti == 2: cond3('L_a3')
        if ti == 1: e('s_addk_i32 m0, 1024'); e('s_nop 0')
        e(f'buffer_load_dwordx4 v{vl}, {sr(S_W)}, s{b} offen lds')
        e('s_addk_i32 m0, 1024')
        e('s_nop 0')
        e(f'buffer_load_dwordx4 v{vl}, {sr(S_WO)}, s{b+1} offen lds')
        if ti == 1: e(f's_addk_i32 m0, {16384-3072}')
    e('L_a3:')
    stamp(1)
    e(f's_cmp_lg_u32 s{MODE}, 0')
    e('s_cbranch_scc1 L_a4')
    e(f's_load_dword s{TAG}, s[12:13], {NONCE}')
    e(f's_lshr_b32 s{EARLY}, 0x33, s{kp}')
    e(f's_and_b32 s{EARLY}, s{EARLY}, 1')
    e(f's_sub_u32 s{XK}, 2, s{EARLY}')
    e(f's_lshl_b32 s{t}, s{kp}, 1')
    e(f's_lshr_b32 s{YT}, {(3<<12)+(3<<14)+(3<<16)}, s{t}')
    e(f's_and_b32 s{YT}, s{YT}, 3')
    e(f's_lshr_b32 s{t}, s{kp}, 1')
    e(f's_cmp_ge_u32 s2, {NPROD}')
    e(f's_cselect_b32 s{EARLY}, 0, s{EARLY}')
    e(f's_cselect_b32 s{XK}, 3, s{XK}')
    e(f's_cselect_b32 s{YT}, s{t}, s{YT}')
    e(f's_cmp_ge_u32 s2, {NPROD+32}')
    e(f's_cselect_b32 s{XK}, 0, s{XK}')
    e(f's_cmp_ge_u32 s2, {NTASK}')
    e(f's_cselect_b32 s{YT}, 0, s{YT}')
    if not o.b0early:
        e(f's_cmp_lg_u32 s{EARLY}, 0')
        e('s_cbranch_scc1 L_a4')
    e('s_barrier')
    e('L_a4:')
    e(f's_mov_b32 s{MASK}, 0xffff0000')
    e(f's_mov_b32 s{NPOLL}, 0')
    srd(e, S_WS, 12, WS_REC)
    srd(e, S_DBG, 10, 256)
    e(f'v_mov_b32 v10, {CNT}')
    e(f'v_mov_b32 v20, {(256 - 18*NSTR) & 0xffffffff}')
    e(f'v_mov_b32 v26, {NSTR}')
    e('v_bfe_u32 v21, v1, 2, 2')
    e('v_lshlrev_b32 v21, 7, v21')
    e('v_and_b32 v22, 1, v1')
    e('v_lshl_add_u32 v21, v22, 6, v21')
    e('v_bfe_u32 v22, v1, 1, 1')
    e('v_lshl_add_u32 v21, v22, 3, v21')
    e('v_lshrrev_b32 v22, 4, v1')
    e('v_lshl_add_u32 v21, v22, 4, v21')
    e(f'v_add_u32 v21, s{SCRB}, v21')
    e('v_and_b32 v25, 15, v1')
    e('v_lshlrev_b32 v25, 4, v25')
    for (vb, sw, vl, vs, so) in T:
        e(f'v_lshl_add_u32 v8, s{sw}, 2, v22' if sw != TW2 else 'v_add_u32 v8, 32, v22')
        e('v_cmp_le_u32 vcc, 18, v8')
        e(f'v_mad_u32_u24 v{vs}, v8, v26, v25')
        e(f'v_add_u32 v9, v{vs}, v20')
        e(f'v_cndmask_b32 v{vs}, v{vs}, v9, vcc')
    if o.tagp:
        e(f's_cmp_eq_u32 s{WAVE}, 4')
        e(f's_cselect_b32 s{t}, 1, s{EARLY}')
        e(f's_cmp_ge_u32 s{NOTASK}, {NTASK}')
        e(f's_cselect_b32 s{t}, 0, s{t}')
        e(f's_cmp_lg_u32 s{t}, 0')
        e(f's_cselect_b32 s{t}, 4, -16')
        e(f'v_mov_b32 v9, s{t}')
        e('s_waitcnt lgkmcnt(0)')
        e('s_mov_b64 exec, 1')
        e(f'buffer_load_dword v27, v9, {sr(S_DBG)}, 0 offen sc1')
        e('s_mov_b64 exec, -1')
        e(f's_lshr_b32 s97, 0x33, s{kp}')
        e('s_and_b32 s97, s97, 1')
        e(f's_lshr_b32 s96, s{kp}, 2')
        e('s_lshl_b32 s96, s96, 4')
        e(f's_add_u32 s96, s96, s{c}')
        e('s_lshl_b32 s96, s96, 2')
        e(f's_and_b32 s{t}, s{kp}, 1')
        e(f's_add_u32 s96, s96, s{t}')
        e('s_lshl_b32 s96, s96, 9')
        e(f's_add_u32 s96, s96, {WOFF + 2*NSTEP*1024}')
    e(f's_lshr_b32 s{q}, s{kp}, 1')
    e(f's_and_b32 s{cc}, s{c}, 7')
    e(f's_lshr_b32 s{kk}, s{c}, 3')
    e(f's_and_b32 s{t}, s{kp}, 1')
    e(f's_cmp_eq_u32 s{kp}, 8')
    e(f's_cselect_b32 s{cc}, s{cc}, s{c}')
    e(f's_cselect_b32 s{kk}, s{kk}, s{t}')
    e(f's_lshl_b32 s{kk}, s{kk}, 9')
    e(f's_add_u32 s{kk}, s{kk}, {WOFF}')
    e(f's_lshl_b32 s{t}, s{q}, 4')
    e(f's_add_u32 s{b+2}, s{t}, s{cc}')
    e(f's_sub_u32 s{b+3}, s{b+2}, s{q}')
    e(f's_cmp_ge_u32 s{q}, 2')
    e(f's_cselect_b32 s{b+4}, 74, 0')
    e(f's_add_u32 s{b+4}, s{b+4}, s{b+2}')
    e(f's_cmp_lt_u32 s{cc}, 2')
    e(f's_cselect_b32 s{t}, 32, 136')
    e(f's_add_u32 s{t}, s{t}, s{cc}')
    e(f's_cmp_eq_u32 s{kp}, 8')
    e(f's_cselect_b32 s{b+4}, s{t}, s{b+4}')
    e(f's_add_u32 s{b+2}, s{b+2}, 34')
    e(f's_add_u32 s{b+3}, s{b+3}, 144')
    for k in (2, 3, 4):
        e(f's_lshl_b32 s{b+k}, s{b+k}, 10')
        e(f's_add_u32 s{b+k}, s{b+k}, s{kk}')
    e(f's_cmp_eq_u32 s{kp}, 8')
    e(f's_cselect_b32 s{t}, 1, 2')
    e(f's_cmp_eq_u32 s{c}, 15')
    e(f's_cselect_b32 s{b+5}, s{t}, 0')
    e(f's_lshl_b32 s46, s{WAVE}, 2')
    e(f's_add_u32 s46, s46, {CNT+16}')
    e('v_mov_b32 v55, s46')
    if o.tagp:
        e('s_waitcnt vmcnt(1)')
        stamp(2)
        e(f's_cmp_ge_u32 s{NOTASK}, {NTASK}')
        e('s_cbranch_scc1 L_x9')
    else:
        e('v_mov_b32 v27, 0')
        e('v_mov_b32 v9, 4')
        e('s_waitcnt vmcnt(0) lgkmcnt(0)')
        stamp(2)
        e(f's_cmp_ge_u32 s{NOTASK}, {NTASK}')
        e('s_cbranch_scc1 L_x9')
        e(f's_cmp_lg_u32 s{WAVE}, 4')
        e('s_cbranch_scc1 L_a5')
        e('s_mov_b64 exec, 1')
        e(f'buffer_load_dword v27, v9, {sr(S_DBG)}, 0 offen sc1')
        e('s_mov_b64 exec, -1')
        e('L_a5:')
    for (vb, sw, vl, vs, so) in T:
        for tap in range(2):
            for half in range(2):
                e(f'ds_read_b64_tr_b16 {vr(vb+4*tap+2*half,2)}, v21 offset:{so+1024*tap+512*half}')
    nlab = [0]
    def st01(vb, vs):
        nlab[0] += 1
        e(f'buffer_store_dwordx4 {vr(vb,4)}, v{vs}, {sr(S_WS)}, s{b+2} offen sc1')
        e(f's_cmp_eq_u32 s{b+5}, 2')
        e(f's_cbranch_scc1 L_skip{nlab[0]}')
        e(f'buffer_store_dwordx4 {vr(vb+4,4)}, v{vs}, {sr(S_WS)}, s{b+3} offen sc1')
        e(f'L_skip{nlab[0]}:')
    def st01all(lbl):
        st01(T[0][0], T[0][3]); st01(T[1][0], T[1][3])
        cond3(lbl)
        st01(T[2][0], T[2][3])
    def dosum(vb, tb, ob):
        for i in range(8):
            e(f'v_lshlrev_b32 v{tb+2*i}, 16, v{vb+i}')
            e(f'v_and_b32 v{tb+2*i+1}, s{MASK}, v{vb+i}')
        for i in range(4):
            e(f'v_pk_add_f32 {vr(tb+2*i,2)}, {vr(tb+2*i,2)}, {vr(tb+8+2*i,2)}')
        for i in range(4):
            e(f'v_cvt_pk_bf16_f32 v{ob+i}, v{tb+2*i}, v{tb+2*i+1}')
    def ldswait(off, cmp, operand, tag, slp):
        e(f'L_lw{tag}:')
        e(f'ds_read_b32 v11, v10 offset:{off}')
        e('s_waitcnt lgkmcnt(0)')
        e('v_and_b32 v11, 0xff, v11')
        e(f'v_cmp_{cmp}_u32 vcc, {operand}, v11')
        e('s_nop 4')
        e(f's_cbranch_vccnz L_lx{tag}')
        e(f's_sleep {slp}')
        e(f's_branch L_lw{tag}')
        e(f'L_lx{tag}:')
    SOR = lambda ti: (210 + 8 * ti) if o.tagp else (240 + 4 * ti)
    e(f's_or_b32 s46, s{EARLY}, s{MODE}')
    e(f's_cmp_eq_u32 s{XK}, 2')
    e('s_cselect_b32 s47, 1, s46')
    if o.xl: e('s_mov_b32 s46, s47')
    e('s_cmp_eq_u32 s47, 0')
    e('s_cbranch_scc1 L_x9')
    for ti, (vb, sw, vl, vs, so) in enumerate(T):
        if ti == 2: cond3('L_x3')
        e(f's_waitcnt lgkmcnt({8-4*ti})')
        dosum(vb, 64 + 16 * ti, SOR(ti))
        e('s_cmp_eq_u32 s46, 0')
        e(f's_cbranch_scc1 L_x5{ti}')
        if o.tagp:
            e('s_cmp_eq_u32 s97, 0')
            e(f's_cbranch_scc1 L_x6{ti}')
            if ti == 0:
                e('s_waitcnt vmcnt(0)')
                e('v_readfirstlane_b32 s48, v27')
                e(f's_add_u32 s49, s{TAG}, {TAGINC}')
                e('s_not_b32 s47, s49')
                e(f's_or_b32 s48, s48, s{MODE}')
                e('s_cselect_b32 s49, s47, s49')
            e(f'v_mov_b32 v{SOR(ti)-1}, s49')
            e(f'v_mov_b32 v{SOR(ti)+4}, s49')
            e(f'buffer_store_dwordx4 {vr(SOR(ti)-2,4)}, v{vs}, {sr(S_WS)}, s96 offen sc1')
            e(f'buffer_store_dwordx4 {vr(SOR(ti)+2,4)}, v{vs}, {sr(S_WS)}, s96 offen offset:1024 sc1')
            e(f's_branch L_x5{ti}')
            e(f'L_x6{ti}:')
        e(f'buffer_store_dwordx4 {vr(SOR(ti),4)}, v{vs}, {sr(S_WS)}, s{b+4} offen sc1')
        e(f'L_x5{ti}:')
    e('L_x3:')
    e(f's_cmp_eq_u32 s{MODE}, 0')
    e('s_cbranch_scc1 L_x9')
    e('L_x2:')
    e('s_waitcnt lgkmcnt(0)')
    st01all('L_x4')
    e('L_x4:')
    e(f's_cmp_eq_u32 s{MODE}, 0')
    e('s_cbranch_scc1 L_x9')
    e('s_waitcnt vmcnt(0)')
    e(f's_add_u32 s{PAIR}, s{PAIR}, 1')
    e(f's_cmp_lt_u32 s{PAIR}, {NPROD}')
    e('s_cbranch_scc1 L_prod')
    e('v_mov_b32 v11, 1')
    e('ds_write_b32 v10, v11 offset:12')
    e('s_endpgm')
    e('L_x9:')
    if o.tagp:
        e(f's_cmp_eq_u32 s{EARLY}, 0')
        e('s_cbranch_scc1 L_x10')
        e('s_barrier')
        e('L_x10:')
    stamp(3)
    decode()
    e('v_subrev_u32 v4, 256, v0')
    e('v_min_u32 v4, 251, v4')
    e('v_mul_u32_u24 v3, 3641, v4')
    e('v_lshrrev_b32 v3, 16, v3')
    e('v_mul_u32_u24 v2, 18, v3')
    e('v_sub_u32 v2, v4, v2')
    e(f'v_mul_u32_u24 v3, {R}, v3')
    e(f'v_min_u32 v3, {160-R}, v3')
    e('v_mul_u32_u24 v4, 1152, v3')
    e('v_lshl_add_u32 v4, v2, 4, v4')
    e(f'v_add_u32 v12, s{XB}, v4')
    e('v_mul_u32_u24 v18, 288, v3')
    e('v_lshl_add_u32 v18, v2, 4, v18')
    e(f'v_add_u32 v19, {X_D1}, v18')
    srd(e, S_X, 4, 1152000, add=BOFF)
    e(f's_add_u32 s46, s{TAG}, {TAGINC}')
    e('v_mov_b32 v56, s46')
    e('s_lshl_b32 s46, s2, 7')
    e('v_mov_b32 v58, s46')
    e(f's_add_u32 s46, s{PAIR}, {NPROD}')
    e('s_lshl_b32 s46, s46, 7')
    e('v_mov_b32 v59, s46')
    def publish(slot, vflag, tag, first, n=0):
        e('s_mov_b64 exec, 1')
        e(f's_waitcnt vmcnt({n})')
        if first: stamp(4)
        if o.padto and tag == 'x': stamp(12)
        e('v_cmp_ne_u32 vcc, 0, v27')
        e('v_not_b32 v57, v56')
        e('s_nop 0')
        e('v_cndmask_b32 v57, v56, v57, vcc')
        e(f'ds_write_b32 v55, v57 offset:{slot}')
        e(f'ds_read_b128 v[20:23], v10 offset:{32+slot}')
        e('s_waitcnt lgkmcnt(0)')
        for i in range(4): e(f'v_xor_b32 v{20+i}, v{20+i}, v56')
        e('v_or3_b32 v20, v20, v21, v22')
        e('v_or_b32 v20, v20, v23')
        e('v_cmp_eq_u32 vcc, 0, v20')
        e('s_and_b64 exec, exec, vcc')
        e(f's_cbranch_execz L_nl{tag}')
        e(f'buffer_store_dword v56, v{vflag}, {sr(S_WS)}, 0 offen sc1')
        e(f'L_nl{tag}:')
        e('s_mov_b64 exec, -1')
    if o.tagp and o.xl:
        e(f's_cmp_lg_u32 s{XK}, 2')
        e('s_cbranch_scc1 L_noflag')
        publish(0, 58, 'x', True)
        e(f's_mov_b32 s{XK}, 0')
    elif not o.tagp:
        e(f's_cmp_eq_u32 s{EARLY}, 0')
        e('s_cbranch_scc1 L_noflag')
        publish(0, 58, 'x', True)
        if not o.b0early: e('s_barrier')
    e('L_noflag:')
    e(f's_setprio {o.hprio2}')
    RAW, ORAW = 64, 120
    EU = [184, 192]
    OU, DT, DO = 200, 208, 216
    xi = [0]
    NL = R + 1
    hq = []
    def eload():
        k = xi[0]
        if k >= NL: return
        a_ = 12
        if k:
            a_ = 13 + (k & 3)
            e(f'v_add_u32 v{a_}, {1152*k}, v12')
        e(f'buffer_load_dwordx4 {vr(RAW+4*k,4)}, v{a_}, {sr(S_X)}, 0 offen')
        xi[0] += 1
        hq.append(('e', k))
    if o.etouch:
        e(f's_cmp_lt_u32 s2, {NTASK}')
        e('s_cbranch_scc1 L_net')
        e(f's_and_b32 s46, s{NB}, 1')
        e(f's_mul_i32 s46, s46, {1152*6}')
        e('v_add_u32 v12, s46, v12')
        for _ in range(7): eload()
        e('v_subrev_u32 v12, s46, v12')
        e('s_waitcnt vmcnt(0)')
        e('L_net:')
        xi[0] = 0; hq.clear()
    YA = 232
    e(f's_cmp_eq_u32 s{b+5}, 2')
    e('s_cselect_b32 s46, 0x80000000, 0')
    e(f's_cmp_lg_u32 s{HAS3}, 0')
    e('s_cselect_b32 s47, 0x80000000, 0')
    e('s_or_b32 s48, s46, s47')
    for i in range(6):
        m_ = {0: None, 1: 46, 2: None, 3: 46, 4: 47, 5: 48}[i]
        e(f'v_mov_b32 v{YA+i}, v{52+i//2}' if m_ is None else f'v_or_b32 v{YA+i}, s{m_}, v{52+i//2}')
    def ystore(i, a_):
        e(f'buffer_store_dwordx4 {vr(28+4*i,4)}, v{a_}, {sr(S_WS)}, s{b+2+(i&1)} offen sc1')
        hq.append(('y', i))
    stamp(5)
    ldswait(8, 'eq', 4, 'o', 1)
    def unpack(dst, s_):
        for i in range(4):
            e(f'v_lshlrev_b32 v{dst+2*i}, 16, v{s_+i}')
            e(f'v_and_b32 v{dst+2*i+1}, s{MASK}, v{s_+i}')
    def unpackE(dst, k):
        e(f's_waitcnt vmcnt({len(hq)-1-hq.index(("e", k))})')
        unpack(dst, RAW + 4 * k)
        eload()
    def diff(eu, out):
        for i in range(8): e(f'v_sub_f32 v{DT+i}, v{eu+i}, v{OU+i}')
        for i in range(4):
            e(f'v_cvt_pk_bf16_f32 v{out+i}, v{DT+2*i}, v{DT+2*i+1}')
    def opengate():
        if not o.gate: return
        e('v_mov_b32 v11, 0x100')
        e('s_mov_b64 exec, 1')
        e('ds_add_u32 v10, v11 offset:8')
        e('s_mov_b64 exec, -1')
    def rows(hook):
        stamp(6)
        for j in range(R):
            e(f'ds_read_b128 {vr(ORAW+4*j,4)}, v18 offset:{X_O+288*j}')
        unpackE(EU[0], 0)
        e('s_waitcnt lgkmcnt(0)')
        for j in range(R):
            o0 = DO + 8 * (j & 1)
            unpack(OU, ORAW + 4 * j)
            diff(EU[j & 1], o0)
            e(f'ds_write_b128 v18, {vr(o0,4)} offset:{X_D0+288*j}')
            unpackE(EU[(j + 1) & 1], j + 1)
            diff(EU[(j + 1) & 1], o0 + 4)
            e(f'ds_write_b128 v19, {vr(o0+4,4)} offset:{288*j}')
            hook(j)
    e(f's_cmp_ge_u32 s2, {NPROD + (32 if o.d0p else 0)}')
    e('s_cbranch_scc1 L_pathA')
    e(f's_cmp_lt_u32 s{XK}, 2')
    e('s_cbranch_scc1 L_nox')
    if o.d0p:
        e(f's_cmp_eq_u32 s{XK}, 3')
        e('s_cbranch_scc1 L_xd')
    for i in range(3):
        e(f'buffer_store_dwordx4 {vr(SOR(i),4)}, v{YA+2*i}, {sr(S_WS)}, s{b+4} offen sc1')
    if o.d0p:
        e('s_branch L_xe')
        e('L_xd:')
        for i in range(6): ystore(i, YA + i)
        e('L_xe:')
    if o.gearly:
        opengate()
        publish(0, 58, 'x2', True)
        e('s_branch L_nox2')
        e('L_nox:')
        opengate()
        e('L_nox2:')
    else:
        publish(0, 58, 'x2', True)
        e('L_nox:')
        opengate()
    hq.clear(); xi[0] = 0
    for _ in range(o.ein): eload()
    rows(lambda j: None)
    e('s_branch L_rowsdone')
    e('L_pathA:')
    if not o.d0p:
        e(f's_cmp_eq_u32 s{XK}, 3')
        e('s_cselect_b32 s47, 0, 0x80000000')
        for i in range(6): e(f'v_or_b32 v{20+i}, s47, v{YA+i}')
    hq.clear(); xi[0] = 0
    for _ in range(NL): eload()
    if not o.d0p:
        for i in range(6): ystore(i, 20 + i)
    def hookA(j):
        if j == o.grow:
            e(f's_waitcnt vmcnt({len(hq)-1-hq.index(("e", NL-1))})')
            opengate()
        if j == o.xrow and not o.d0p:
            e(f's_cmp_lg_u32 s{XK}, 3')
            e('s_cbranch_scc1 L_xp')
            publish(0, 58, 'x3', True)
            e('L_xp:')
    rows(hookA)
    e('L_rowsdone:')
    e('s_waitcnt lgkmcnt(0)')
    stamp(7)
    e('v_mov_b32 v11, 1')
    e('s_mov_b64 exec, 1')
    e('ds_add_u32 v10, v11 offset:16')
    e('s_mov_b64 exec, -1')
    e(f's_cmp_eq_u32 s{YT}, 0')
    e('s_cbranch_scc1 L_noy')
    e(f's_setprio {o.yprio}')
    e('L_yw:')
    e('ds_read_b64 v[20:21], v10')
    e('s_waitcnt lgkmcnt(0)')
    e('v_lshrrev_b32 v21, 14, v21')
    e('v_and_b32 v21, -4, v21')
    e('v_or_b32 v20, v20, v21')
    e(f'v_cmp_le_u32 vcc, s{YT}, v20')
    e('s_nop 4')
    e('s_cbranch_vccnz L_yx')
    e('s_sleep 4')
    e('s_branch L_yw')
    e('L_yx:')
    for i in range(6):
        ystore(i, YA + i)
        e(f's_waitcnt vmcnt({o.ythr})')
        if o.ysleep: e(f's_sleep {o.ysleep}')
    publish(16, 59, 'y', False)
    if o.diag == 1: stamp(8)
    e('L_noy:')
    e(f's_cmp_lg_u32 s{WAVE}, 4')
    e('s_cbranch_scc1 L_hend')
    e('L_guard:')
    e('ds_read_b32 v11, v10 offset:4')
    e('s_waitcnt lgkmcnt(0)')
    e('v_readfirstlane_b32 s46, v11')
    e('s_nop 3')
    e('s_cmp_eq_u32 s46, 4')
    e('s_cbranch_scc1 L_hend')
    e('s_cmp_lt_u32 s46, 0x10000')
    e('s_cbranch_scc0 L_rescue')
    e('s_sleep 16')
    e('s_branch L_guard')
    e('L_rescue:')
    e(f's_mov_b32 s{MODE}, 1')
    e(f's_mov_b32 s{HAS3}, 1')
    e(f's_mov_b32 s{NOTASK}, 0')
    e(f's_lshr_b32 s{TW0}, s{NB}, 1')
    e(f's_add_u32 s{TW1}, s{NB}, 9')
    e(f's_lshr_b32 s{TW1}, s{TW1}, 1')
    e(f's_mov_b32 s{PAIR}, 0')
    e('s_branch L_prod')
    e('L_hend:')
    if o.padto and o.padev[0] == 'h': padloop('h')
    if o.diag == 1:
        stamp(9)
        dump(10)
    e('L_end:')
    e('s_endpgm')
    if o.hfirst:
        m0, h0 = mark['main0'], mark['help0']
        e.L = e.L[:m0] + e.L[h0:] + ['.p2align 6'] + e.L[m0:h0]
    e('L_codeend:')
    e('.section .rodata,"a"')
    e('.p2align 6')
    e(f'.amdhsa_kernel {KN}')
    for x in ['next_free_vgpr 256', 'next_free_sgpr 102', 'accum_offset 256', 'group_segment_fixed_size 0', 'kernarg_size 40',
              'user_sgpr_count 2', 'user_sgpr_kernarg_segment_ptr 1', 'system_sgpr_workgroup_id_x 1']:
        e('  .amdhsa_' + x)
    e('.end_amdhsa_kernel')
    n = haz.check(e.L)
    if n: print(f'{n} hazards', file=sys.stderr)
    return f'; @launch grid=({NWG},1,1) block=(512,1,1) lds={LDS_BYTES}\n' + e.text()

def opts(argv=None):
    ap = argparse.ArgumentParser()
    ap.add_argument('-o', default='k.s')
    for nm, d in [('diag', 0), ('pf', 16), ('pf0', 8), ('wgap', 4), ('wres', 4), ('wsc1', 0), ('nfill', 2), ('fstride', 128), ('sleep', 0), ('maxpoll', 3000), ('nopoll', 0),
                  ('hprio', 3), ('hprio2', 0), ('mprio', 2), ('epre', 0), ('ein', 7), ('dpre', 7), ('b0early', 0), ('mtouch', 1), ('gate', 1), ('swapab', 0), ('d0p', 1), ('map', 1), ('chain', 4), ('flat0', 0), ('flatzz', 0), ('tagp', 0), ('tpf', 5), ('xl', 0), ('p0plain', 0), ('onepoll', 0), ('epoll', 1), ('ppoll', 0), ('yprio', 3), ('ysleep', 0), ('vt', 94), ('tla', 40), ('tskip', 1), ('gearly', 1), ('chfrom', 8), ('oj', 9), ('nolds', 0), ('now', 0), ('wsame', 0), ('grow', 1), ('vbd', 33), ('nopk', 1), ('padto', 0), ('npdelay', 0), ('opre', 5), ('etouch', 0), ('orev', 1), ('b0late', 1), ('dec', 1), ('tail', 1), ('xla', 9), ('hold', 1), ('prest', 0), ('xslot', 0), ('noclosed', 0), ('cpf', 1), ('hfirst', 1), ('warmb', 1), ('wsfirst', 0), ('flead', 6), ('ythr', 6), ('xrow', 3), ('padstep', 33), ('probe', 0), ('probeoff', 0x4000000)]:
        ap.add_argument('--' + nm, type=int, default=d)
    ap.add_argument('--oflags', default='')
    ap.add_argument('--pmap', default='18,18,18,18,18,18,18,18')
    ap.add_argument('--padev', default='m0')
    ap.add_argument('--trig', default='10,25,40')
    ap.add_argument('--yrow', default='0,7,2,9,5,11')
    ap.add_argument('--pfcs', default='4,5,5,8,8')
    ap.add_argument('--fflags', default='')
    ap.add_argument('--fleads', default='6,6,6,6,6')
    ap.add_argument('--marks', default='0,4,8,12,16,24,33,47,58')
    o = ap.parse_args(argv)
    o.marks = [int(x) for x in o.marks.split(',')]
    o.yrow = [int(x) for x in o.yrow.split(',')]
    o.pfcs = [int(x) for x in o.pfcs.split(',')]
    o.fleads = [int(x) for x in o.fleads.split(',')]
    o.trig = [int(x) for x in o.trig.split(',')]
    return o

if __name__ == '__main__':
    o = opts()
    open(o.o, 'w').write(gen(o))
```

```python
import re, sys, argparse
import haz

KN = 'standalone__autoregressive_conv_wavernn__speech_kernel'
NWG = 252
NPROD = 144
ARR = 160 * 288
X_D0, X_O, X_D1 = 0, ARR, 2 * ARR
CNT = 3 * ARR
SCR = CNT + 64
LDS_BYTES = SCR + 18432
NSTEP = 106
WOFF = int(__import__('os').environ.get('WOFF', '0x100000'), 0)
NONCE = 0x10000
DIAG = 0x800000
WS_REC = max(0x1000000, WOFF + 0x400000, int(__import__('os').environ.get('WSREC', '0'), 0))
TAGINC = 0x9E3779B9
R = 12

class Em:
    def __init__(self): self.L = []
    def __call__(self, s): self.L.append(s)
    def text(self): return '\n'.join(self.L) + '\n'

def vr(a, n=1): return f'v{a}' if n == 1 else f'v[{a}:{a+n-1}]'
def sr(a, n=4): return f's[{a}:{a+n-1}]'

def streams():
    out = []
    for typ in (0, 1):
        S = []
        pid = [0]
        def add(arr, chunk, cs, acc):
            for c in cs: S.append((pid[0], arr, chunk, c, acc))
            pid[0] += 1
        if typ == 0:
            add('O', 0, range(16), 'P'); add('O', 1, range(16), 'P'); add('O', 'rem', range(0, 2), 'P')
            for q in range(4): add('D', q, range(16), 'Q')
            add('D', 'rem', range(8), 'Q')
        else:
            add('O', 2, range(16), 'P'); add('O', 3, range(16), 'P'); add('O', 'rem', range(2, 8), 'P')
            for q in range(4): add('D', q, range(15), 'Q')
            add('D', 'rem', range(8), 'Q')
        assert len(S) == NSTEP
        out.append(S)
    return out

S_X, S_W, S_WO, S_WS, S_OUT, S_DBG = 20, 24, 28, 32, 36, 40
WAVE, NB, BAT, PAR, MB, BOFF = 14, 15, 16, 17, 18, 19
PAIR0 = 3
XB = 52
MASK = 53
TW0, TW1, TW2, PAIR, HAS3, MODE, SCRB, TAG, LAST, NPOLL = 44, 45, 54, 55, 56, 57, 58, 59, 60, 61
TS = 62
TYP, WSO = 68, 69
EARLY, XK, YT, FIDX = 90, 91, 92, 93
NOTASK = 94
NTASK = NPROD + 96
FO = 97
C2L, CNL, C60 = 90, 92, 94
ST0 = 70

def srd(e, d, ptr, rec, add=None):
    if add is None:
        e(f's_mov_b32 s{d}, s{ptr}')
        e(f's_and_b32 s{d+1}, s{ptr+1}, 0xffff')
    else:
        e(f's_add_u32 s{d}, s{ptr}, s{add}')
        e(f's_addc_u32 s{d+1}, s{ptr+1}, 0')
        e(f's_and_b32 s{d+1}, s{d+1}, 0xffff')
    e(f's_mov_b32 s{d+2}, {rec}')
    e(f's_mov_b32 s{d+3}, 0x20000')

def gen(o):
    e = Em()
    role = ['m']
    def padloop(tag):
        e(f'L_pad{tag}:')
        e('s_memrealtime s[98:99]')
        e('s_waitcnt lgkmcnt(0)')
        e('s_sub_u32 s98, s98, s100')
        e(f's_cmp_lt_u32 s98, {o.padto}')
        e(f's_cbranch_scc1 L_pad{tag}')
    def stamp(k, lvl=1):
        if o.padto and lvl == 1 and o.padev == f'{role[0]}{k}':
            e('s_memrealtime s[100:101]'); e('s_waitcnt lgkmcnt(0)')
        if o.diag == lvl or (o.diag == 4 and lvl == 1): e(f's_memrealtime s[{ST0+2*k}:{ST0+2*k+1}]')
    def dump(nst):
        e('s_waitcnt lgkmcnt(0)')
        e('v_mov_b32 v250, 0')
        for k in range(nst): e(f'v_writelane_b32 v250, s{ST0+2*k}, {k}')
        e(f'v_writelane_b32 v250, s{NPOLL}, 13')
        e(f'v_writelane_b32 v250, s95, 12')
        e(f'v_writelane_b32 v250, s2, 14')
        e('s_getreg_b32 s46, hwreg(HW_REG_XCC_ID)')
        e('v_writelane_b32 v250, s46, 15')
        e(f's_lshl_b32 s46, s2, 3'); e(f's_add_u32 s46, s46, s{WAVE}'); e('s_lshl_b32 s46, s46, 6'); e(f's_add_u32 s46, s46, {DIAG}')
        e('v_lshl_add_u32 v251, v1, 2, s46')
        e('s_mov_b64 exec, 0xffff')
        e(f'buffer_store_dword v250, v251, {sr(S_WS)}, 0 offen')
        e('s_mov_b64 exec, -1')

    e('.amdgcn_target "amdgcn-amd-amdhsa--gfx950"')
    e('.text')
    e(f'.globl {KN}')
    e('.p2align 8')
    e(f'.type {KN},@function')
    e(f'{KN}:')
    e(f's_cmp_ge_u32 s2, {NWG}')
    e('s_cbranch_scc1 L_end')
    stamp(0)
    if o.padto and o.padev != 'm0': e('s_memrealtime s[100:101]')
    e('s_load_dwordx4 s[4:7], s[0:1], 0')
    e('s_load_dwordx4 s[8:11], s[0:1], 16')
    e('s_load_dwordx2 s[12:13], s[0:1], 32')
    e('v_lshrrev_b32 v2, 6, v0')
    e('v_and_b32 v1, 63, v0')
    e(f'v_readfirstlane_b32 s{WAVE}, v2')
    def decode():
        e('s_and_b32 s44, s2, 7')
        e('s_lshr_b32 s45, s2, 3')
        e('s_mul_i32 s46, s44, 31')
        e('s_min_u32 s44, s44, 4')
        e('s_add_u32 s46, s46, s44')
        e('s_add_u32 s46, s46, s45')
        if o.map == 0:
            e('s_mul_hi_u32 s47, s46, 68174085')
            e('s_mul_i32 s48, s47, 63')
            e('s_sub_u32 s48, s46, s48')
            e(f's_mul_hi_u32 s{NB}, s48, 613566757')
            e(f's_mul_i32 s49, s{NB}, 7')
            e('s_sub_u32 s49, s48, s49')
            e('s_mul_i32 s47, s47, 7')
            e('s_add_u32 s47, s47, s49')
        elif o.map == 1:
            e('s_mul_hi_u32 s47, s46, 477218589')
            e('s_mul_i32 s48, s47, 9')
            e(f's_sub_u32 s{NB}, s46, s48')
        else:
            e('s_mul_hi_u32 s47, s46, 34087043')
            e('s_mul_i32 s48, s47, 126')
            e('s_sub_u32 s48, s46, s48')
            e(f's_mul_hi_u32 s{NB}, s48, 306783379')
            e(f's_mul_i32 s49, s{NB}, 14')
            e('s_sub_u32 s49, s48, s49')
            e('s_mul_i32 s47, s47, 14')
            e('s_add_u32 s47, s47, s49')
        e(f's_and_b32 s{PAR}, s47, 1')
        e('s_lshr_b32 s47, s47, 1')
        e('s_cmp_ge_u32 s47, 7')
        e(f's_cselect_b32 s{BOFF}, 1152000, 0')
        e('s_cselect_b32 s48, 7, 0')
        e(f's_sub_u32 s{MB}, s47, s48')
        e(f's_mul_i32 s{XB}, s{MB}, 576')
        e(f's_add_u32 s{XB}, s{XB}, s{PAR}')
        e(f's_sub_u32 s{XB}, s{XB}, 60')
        e(f's_mul_i32 s{XB}, s{XB}, 288')
    e(f's_cmp_ge_u32 s{WAVE}, 4')
    e('s_cbranch_scc1 L_helper')
    if o.cpf:
        e('s_lshr_b32 s44, s2, 3')
        e(f's_lshl_b32 s45, s{WAVE}, 5')
        e('s_add_u32 s44, s44, s45')
        e('s_sub_u32 s44, s44, 26')
        e('s_cmp_ge_u32 s44, 5')
        e('s_cbranch_scc1 L_main')
        e('s_getpc_b64 s[46:47]')
        e('L_pc:')
        e('s_lshl_b32 s44, s44, 13')
        e('v_lshl_add_u32 v2, v1, 7, s44')
        e('v_min_u32 v2, L_codeend-L_pc-4, v2')
        e('global_load_dword v63, v2, s[46:47]')
    if o.hfirst: e('s_branch L_main')
    mark = {'main0': len(e.L)}
    e('L_main:')
    e(f's_mov_b32 s{MASK}, 0xffff0000')
    e(f's_mov_b32 s{NPOLL}, 0')
    if o.diag: e('s_mov_b32 s95, 0')
    decode()

    VXO, VXOR, VXD, VXDR, VWL, VEX, VEXP, VOUT = 30, 31, 32, 33, 34, 35, 36, 37
    VF = 40
    VA = 48
    VCL = 60
    e('v_mul_u32_u24 v3, 3641, v0')
    e('v_lshrrev_b32 v3, 16, v3')
    e('v_mul_u32_u24 v2, 18, v3')
    e('v_sub_u32 v2, v0, v2')
    e('v_mul_u32_u24 v3, 1152, v3')
    e('v_lshl_add_u32 v3, v2, 4, v3')
    e(f's_add_u32 s46, s{XB}, 576')
    e(f'v_add_u32 v{VA}, s46, v3')
    e('v_mov_b32 v5, 16192')
    e('v_mov_b32 v6, 17056')
    for k in range(1, 12):
        e('v_cmp_le_u32 vcc, 14, v2')
        e('v_add_u32 v3, 4, v2')
        e('v_subrev_u32 v4, 14, v2')
        e('v_cndmask_b32 v7, v5, v6, vcc')
        e('v_cndmask_b32 v2, v3, v4, vcc')
        e(f'v_add_u32 v{VA+k}, v{VA+k-1}, v7')
    e(f's_lshl_b32 s50, s{WAVE}, 10')
    e(f's_add_u32 s50, s50, {X_O}')
    e(f's_add_u32 s51, s50, {4096*11}')
    e('s_movk_i32 s49, 4096')
    if o.orev:
        e(f's_bitcmp0_b32 s{NB}, 0')
        e('s_cbranch_scc1 L_fwd')
        for k in range(5): e(f'v_swap_b32 v{VA+k}, v{VA+10-k}')
        e(f's_add_u32 s50, s50, {4096*10}')
        e('s_movk_i32 s49, -4096')
        e('L_fwd:')
    e(f'v_mov_b32 v{VF+1}, {CNT}')
    for r in range(4, 8): e(f'v_mov_b32 v{r}, 0')
    e(f'ds_write_b128 v{VF+1}, v[4:7]')
    e(f'ds_write_b128 v{VF+1}, v[4:7] offset:16')
    e('s_waitcnt lgkmcnt(0)')
    e(f's_load_dword s{TAG}, s[12:13], {NONCE}')
    srd(e, S_X, 4, 1152000, add=BOFF)
    def odma(k):
        e(f's_mov_b32 m0, s{51 if k == 11 else 50}')
        e('s_add_u32 s50, s50, s49')
        e(f'buffer_load_dwordx4 v{VA+k}, {sr(S_X)}, 0 offen lds')
    def etouch():
        e(f'buffer_load_dword v62, v9, {sr(S_X)}, 0 offen')
    if o.mtouch and o.tskip:
        e('s_lshr_b32 s47, s2, 4')
        e('s_lshr_b32 s47, 0x33, s47')
        e('s_lshl_b32 s47, s47, 31')
    if o.mtouch:
        e('v_min_u32 v8, 39, v1')
        e('v_lshrrev_b32 v9, 2, v8')
        e(f's_mul_i32 s46, s{WAVE}, 10')
        e('v_add_u32 v9, s46, v9')
        e(f'v_mul_u32_u24 v9, {4*1152}, v9')
        e('v_and_b32 v8, 3, v8')
        e('v_mul_u32_u24 v8, 92, v8')
        e(f's_and_b32 s46, s{NB}, 3')
        e('s_mul_i32 s46, s46, 1152')
        e(f's_add_u32 s46, s46, s{XB}')
        e('v_add3_u32 v9, v9, v8, s46')
        if o.tskip: e('v_or_b32 v9, s47, v9')
    if o.mtouch == 2: etouch()
    for k in range(o.opre): odma(k)
    e('s_barrier')
    stamp(1)
    if o.mtouch == 3: etouch()
    for k in range(o.opre, 12):
        if k == 11:
            e(f's_cmp_lg_u32 s{WAVE}, 0')
            e('s_cbranch_scc1 L_o11')
        odma(k)
    e('L_o11:')
    if o.mtouch == 1: etouch()
    srd(e, S_WS, 12, WS_REC)
    if o.epoll:
        assert o.mtouch == 1 and o.tskip
        e(f's_and_b32 s{TYP}, s{WAVE}, 1')
        e(f's_lshl_b32 s{FO}, s{TYP}, 13')
        e('s_mov_b32 s96, s47')
        e('s_xor_b32 s46, s47, 0x80000000')
        e(f'v_min_u32 v{VF}, 31, v1')
        e(f'v_lshlrev_b32 v{VF}, 7, v{VF}')
        e(f'v_or_b32 v2, s46, v{VF}')
        e(f'buffer_load_dword v{VF+4}, v2, {sr(S_WS)}, s{FO} offen sc1')
    srd(e, S_OUT, 8, 1152000, add=BOFF)
    srd(e, S_DBG, 10, 256)
    e('v_and_b32 v2, 15, v1')
    e('v_lshrrev_b32 v3, 4, v1')
    e('v_subrev_u32 v5, 4, v2')
    e('v_add_u32 v6, 8, v2')
    e('v_cmp_gt_u32 vcc, 4, v2')
    e('v_cmp_le_u32 s[46:47], 12, v2')
    e(f's_and_b32 s{TYP}, s{WAVE}, 1')
    e(f's_lshr_b32 s48, s{WAVE}, 1')
    e('v_cndmask_b32 v5, v5, v6, vcc')
    e('v_cndmask_b32 v5, v5, v2, s[46:47]')
    e('v_mul_u32_u24 v5, 9, v5')
    e('v_mul_u32_u24 v4, 288, v5')
    e('v_lshl_add_u32 v6, v3, 4, v4')
    e('v_and_b32 v7, 1, v3')
    e('v_lshl_add_u32 v7, v7, 4, v4')
    e('v_lshrrev_b32 v8, 1, v3')
    e('v_mul_u32_u24 v8, 2304, v8')
    e('v_add_u32 v7, v7, v8')
    e('v_add_u32 v7, 256, v7')
    e(f's_mul_i32 s49, s{TYP}, {X_D1}')
    e(f'v_add_u32 v{VXO}, {X_O}, v6')
    e(f'v_add_u32 v{VXOR}, {X_O}, v7')
    e(f'v_add_u32 v{VXD}, s49, v6')
    e(f'v_add_u32 v{VXDR}, s49, v7')
    e('v_lshlrev_b32 v6, 4, v1')
    e(f's_mul_i32 s49, s{WAVE}, 9216')
    e(f's_add_u32 s49, s49, {X_O}')
    e(f'v_add_u32 v{VEX}, s49, v6')
    e(f's_xor_b32 s49, s{WAVE}, 1')
    e('s_mul_i32 s49, s49, 9216')
    e(f's_add_u32 s49, s49, {X_O}')
    e(f'v_add_u32 v{VEXP}, s49, v6')
    e('v_and_b32 v8, 0x39, v1')
    e('v_bfe_u32 v9, v1, 1, 1')
    e('v_lshl_add_u32 v8, v9, 2, v8')
    e('v_bfe_u32 v9, v1, 2, 1')
    e('v_lshl_add_u32 v8, v9, 1, v8')
    e(f'v_lshlrev_b32 v{VWL}, 4, v8')
    e(f's_mul_i32 s49, s{TYP}, 576')
    e(f's_add_u32 s49, s49, s{XB}')
    e(f's_add_u32 s49, s49, {60*288}')
    e(f's_lshl_b32 s50, s{NB}, 5')
    e('s_add_u32 s49, s49, s50')
    e('s_lshl_b32 s50, s48, 4')
    e('s_add_u32 s49, s49, s50')
    e('v_mul_u32_u24 v8, 1152, v5')
    e('v_lshl_add_u32 v8, v3, 2, v8')
    e(f'v_add_u32 v{VOUT}, s49, v8')
    e(f'v_add_u32 v{VOUT+1}, 3456, v{VOUT}')
    e(f'v_add_u32 v{VOUT+2}, 6912, v{VOUT}')
    e(f's_lshl_b32 s49, s{NB}, 1')
    e('s_add_u32 s49, s49, s48')
    e('s_lshl_b32 s49, s49, 1')
    e(f's_add_u32 s49, s49, s{TYP}')
    e(f's_mul_i32 s{WSO}, s49, {NSTEP*1024}')
    e(f's_add_u32 s{WSO}, s{WSO}, {WOFF}')
    e(f's_mov_b32 s{C2L}, 0x4038aa3b'); e(f's_mov_b32 s{C2L+1}, 0x4038aa3b')
    e(f's_mov_b32 s{CNL}, 0xbfb8aa3b'); e(f's_mov_b32 s{CNL+1}, 0xbfb8aa3b')
    e(f's_mov_b32 s{C60}, 0x42700000')
    e(f'v_min_u32 v{VF}, 31, v1')
    e(f'v_lshlrev_b32 v{VF}, 7, v{VF}')
    e(f'v_min_u32 v{VF+6}, 47, v1')
    e(f'v_lshlrev_b32 v{VF+6}, 7, v{VF+6}')
    e(f'v_mov_b32 v{VF+2}, 1')
    e('s_lshl_b32 s46, s48, 2')
    e(f'v_add_u32 v{VF+5}, s46, v{VF+1}')
    e(f's_or_b32 s46, s2, s{WAVE}')
    e('v_or_b32 v2, s46, v1')
    e('v_cmp_eq_u32 vcc, 0, v2')
    e(f'v_mov_b32 v{VCL}, -16')
    e(f'v_mov_b32 v{VCL+1}, -16')
    e(f'v_mov_b32 v3, {NONCE}')
    e(f'v_cndmask_b32 v{VCL}, v{VCL}, 4, vcc')
    e(f'v_cndmask_b32 v{VCL+1}, v{VCL+1}, v3, vcc')
    e(f's_lshl_b32 s{FO}, s{TYP}, 13')
    if o.warmb:
        e(f's_cmp_eq_u32 s{TYP}, 1')
        e('s_cbranch_scc1 L_warmB')
        e('L_warmret:')
    e(f's_waitcnt vmcnt({(1 if o.mtouch == 1 else 0) + o.epoll}) lgkmcnt(0)')
    stamp(2)
    e('s_mov_b64 exec, 1')
    e(f'ds_add_u32 v{VF+1}, v{VF+2} offset:8')
    e('s_mov_b64 exec, -1')
    e(f's_add_u32 s{TAG}, s{TAG}, {TAGINC}')
    e(f'v_mov_b32 v{VF+3}, s{TAG}')
    def flagwait(tag, vaddr, back):
        e(f'L_fw{tag}:')
        if o.diag and len(tag) == 2: e(f's_add_u32 s95, s95, {1 << (5 * int(tag[1]))}')
        e(f'buffer_load_dword v{VF+4}, v{vaddr}, {sr(S_WS)}, s{FO} offen sc1')
        e(f'ds_read_b32 v{VF+7}, v{VF+1} offset:12')
        e(f's_add_u32 s{NPOLL}, s{NPOLL}, 1')
        e('s_waitcnt vmcnt(0) lgkmcnt(0)')
        e(f'v_cmp_ne_u32 vcc, v{VF+3}, v{VF+4}')
        e(f'v_readfirstlane_b32 s46, v{VF+7}')
        e('s_nop 3')
        e(f's_cbranch_vccz {back}')
        e('s_cmp_lg_u32 s46, 0')
        e(f's_cbranch_scc1 {back}')
        e(f's_cmp_lg_u32 s{NPOLL}, {o.maxpoll}')
        e(f's_cbranch_scc1 L_fw{tag}')
        e(f'v_mov_b32 v{VF+7}, 0x10000')
        e('s_mov_b64 exec, 1')
        e(f'ds_add_u32 v{VF+1}, v{VF+7} offset:4')
        e('s_mov_b64 exec, -1')
        e(f's_branch L_fw{tag}')
    if o.epoll:
        e('s_cmp_eq_u32 s96, 0')
        e('s_cbranch_scc1 L_gate')
        e('s_waitcnt vmcnt(0)')
        e(f'v_cmp_ne_u32 vcc, v{VF+3}, v{VF+4}')
        e('s_nop 4')
        e('s_cbranch_vccz L_go')
    if o.gate:
        e('L_gate:')
        e(f'ds_read_b32 v{VF+4}, v{VF+1} offset:8')
        e('s_waitcnt lgkmcnt(0)')
        e(f'v_and_b32 v{VF+4}, 0xffff, v{VF+4}')
        e(f'v_cmp_gt_u32 vcc, 0x400, v{VF+4}')
        e('s_nop 4')
        e('s_cbranch_vccz L_gate2')
        e('s_sleep 1')
        e('s_branch L_gate')
        e('L_gate2:')
    if o.ppoll:
        e(f'buffer_load_dword v{VF+4}, v{VF}, {sr(S_WS)}, s{FO} offen sc1')
        e('L_pp:')
        for a_, b_ in ((VF + 4, 62), (62, VF + 4)):
            e(f's_sleep {o.ppoll}')
            e(f'buffer_load_dword v{b_}, v{VF}, {sr(S_WS)}, s{FO} offen sc1')
            e('s_waitcnt vmcnt(1)')
            e(f'v_cmp_ne_u32 vcc, v{VF+3}, v{a_}')
            e(f's_add_u32 s{NPOLL}, s{NPOLL}, 1')
            e('s_nop 3')
            e('s_cbranch_vccz L_go')
        e(f's_cmp_lt_u32 s{NPOLL}, 40')
        e('s_cbranch_scc1 L_pp')
        e(f's_mov_b32 s{NPOLL}, 0')
    if o.p0plain:
        e(f'buffer_load_dword v{VF+4}, v{VF}, {sr(S_WS)}, s{FO} offen')
        e('s_waitcnt vmcnt(0)')
        e(f'v_cmp_ne_u32 vcc, v{VF+3}, v{VF+4}')
        e('s_nop 4')
        e('s_cbranch_vccz L_go')
    if o.onepoll:
        e(f's_cmp_lt_u32 s{WAVE}, 2')
        e('s_cbranch_scc1 L_fw0')
        e('L_op:')
        e(f'ds_read_b32 v{VF+7}, v{VF+1} offset:8')
        e('s_waitcnt lgkmcnt(0)')
        e(f's_add_u32 s46, s{TYP}, 16')
        e(f'v_lshrrev_b32 v{VF+7}, s46, v{VF+7}')
        e(f'v_and_b32 v{VF+7}, 1, v{VF+7}')
        e(f'v_cmp_eq_u32 vcc, 0, v{VF+7}')
        e('s_nop 4')
        e('s_cbranch_vccnz L_op')
        e('s_branch L_go2')
    flagwait('0', VF, 'L_go')
    e('L_go:')
    if o.onepoll:
        e(f's_lshl_b32 s46, 0x10000, s{TYP}')
        e(f'v_mov_b32 v{VF+7}, s46')
        e('s_mov_b64 exec, 1')
        e(f'ds_or_b32 v{VF+1}, v{VF+7} offset:8')
        e('s_mov_b64 exec, -1')
        e('L_go2:')
    stamp(3)
    e('L_gw:')
    e(f'ds_read_b32 v{VF+7}, v{VF+1} offset:8')
    e('s_waitcnt lgkmcnt(0)')
    e(f'v_and_b32 v{VF+7}, 0xff, v{VF+7}')
    e(f'v_cmp_ne_u32 vcc, 4, v{VF+7}')
    e('s_nop 4')
    e('s_cbranch_vccnz L_gw')
    stamp(4)
    e(f's_setprio {o.mprio}')
    e(f's_cmp_eq_u32 s{TYP}, 1')
    e('s_cbranch_scc1 L_typeB')

    ACC = {'P': 64, 'Q': 100}
    WR, TMP = 136, 224
    XRING = [200 + 4 * i for i in range(6)]
    XWIN = [4 + 4 * i for i in range(6)] + [240 + 4 * i for i in range(4)]
    VC = 28
    PF = o.pf
    GT = 98
    wflags = ' sc1' if o.wsc1 else ''
    for typ, S in enumerate(streams()):
        if typ == 1:
            e('.p2align 6')
            if o.warmb: e('L_warmB:'); e('s_branch L_warmret')
            e('L_typeB:')
        ops = []
        vstart = {}
        lastv = o.vt - 1
        v0 = 0
        while v0 <= lastv:
            ch = 1 if v0 < o.chfrom else min(o.chain, lastv + 1 - v0)
            n0 = len(ops)
            for j in range(8, -1, -1):
                us = range(ch) if j % 2 == 0 else range(ch - 1, -1, -1)
                first_ = [u for u in us if v0 + u - j == 0 or (0 < v0 + u - j < NSTEP and S[v0+u-j][4] == 'Q' and S[v0+u-j-1][4] == 'P')]
                if first_: us = range(ch)
                for u in us:
                    if 0 <= v0 + u - j < NSTEP: ops.append((v0 + u - j, j))
            for u in range(ch): vstart[v0 + u] = n0 + (len(ops) - n0) * u // ch
            v0 += ch
        ntail = len(ops)
        if o.tail:
            for j in range(9):
                for g in range(o.vt - j, NSTEP): ops.append((g, j))
        assert len(ops) == NSTEP * 9 and len(set(ops)) == len(ops)
        N = len(ops)
        def key(n):
            g, j = ops[n]
            pid, arr, ch, c, acc = S[g]
            k = (pid, arr, ch, c + j)
            if n >= ntail and g < GT: k = k + ((n,) if not o.hold else ('h',))
            return k
        first, last = {}, {}
        for n in range(N):
            first.setdefault(key(n), n); last[key(n)] = n
        wfirst, wlast = {}, {}
        for n, (g, j) in enumerate(ops):
            wfirst.setdefault(g, n); wlast[g] = n
        tasks = []
        for k, n0 in first.items():
            win = o.tail and k[2] == 'rem' and k[1] == 'D'
            la = o.xla if n0 < ntail else 6
            if n0 >= ntail and ops[n0][1] == 0: la = o.tla
            elif win: la = 12
            tasks.append([n0 - la, n0 - 1, 'X', k])
        for g in range(NSTEP):
            rel = -100 + g if g < o.pf0 else max(0, wfirst[g] - 9 * PF)
            tasks.append([rel, wfirst[g] - 1, 'W', g])
        def at(v, off=0): return vstart[v] + off
        firstD = min(n for n in range(N) if S[ops[n][0]][1] == 'D')
        lastO = max(n for n in range(N) if S[ops[n][0]][1] == 'O')
        lastP = {j: max(n for n in range(N) if ops[n][1] == j and S[ops[n][0]][4] == 'P') for j in range(9)}
        slow = []
        vused = set()
        def check(v, off, cnt, tag):
            tasks.append([at(v - 1, 3), at(v - 1, 8), 'L', (f'ds_read_b32 v{VC}, v{VF+1} offset:{off}', ('c', tag))])
            tasks.append([at(v, 0), at(v, 1), 'C', (f'v_cmp_ne_u32 vcc, {cnt}, v{VC}', ('c', tag))])
            tasks.append([at(v, 6), at(v, 7), 'I', [f's_cbranch_vccnz L_slow{typ}{tag}', f'L_back{typ}{tag}:']])
            slow.append((tag, off, cnt))
            vused.add(v)
            return at(v, 8)
        def add1(pos, off):
            tasks.append([pos, pos + 4, 'A', off])
        vD = [v for v in vstart if vstart[v] <= firstD - o.xla][-1] - 1
        okD = check(vD, 16, 4, 'D')
        assert okD <= firstD - o.xla
        add1(lastO, 20)
        VP = 47
        okR = check(VP, 20, 4, 'R')
        for j in range(9):
            assert lastP[j] + 12 < at(VP + 1 + j, 2)
            tasks.append([at(VP + 1 + j, 2), at(VP + 1 + j, 8), 'L', (f'ds_write_b128 v{VEX}, {vr(ACC["P"]+4*j,4)} offset:{1024*j}', ('pw', j))])
        tasks.append([at(VP + 10, 0), at(VP + 10, 4), 'A', 'pair'])
        VQ = VP + 13
        okP = check(VQ, 'pair', 2, 'P')
        for j in range(9):
            tasks.append([at(VQ + 1 + j, 2), at(VQ + 1 + j, 8), 'L', (f'ds_read_b128 {vr(TMP+4*(j&1),4)}, v{VEXP} offset:{1024*j}', ('pr', j))])
            v = VQ + 2 + j
            pos = at(v, 8 - (j + 2) - 1) if j <= 6 else at(v, 8 - (j - 7) - 1)
            sh = 1 if j >= 7 else 0
            if o.chain > 1:
                own = [n for n in range(N) if ops[n][1] == j]
                pos = [a_ + 10 for a_, b_ in zip(own, own[1:]) if b_ - a_ >= 14 and a_ + 9 >= at(v, 0) ][0]
                sh = 0
                tasks[-1][0] = pos - 9; tasks[-1][1] = pos - 4
                tasks[-1][3] = (f'ds_read_b128 {vr(TMP+4*(j&3),4)}, v{VEXP} offset:{1024*j}', ('pr', j))
            tasks.append([pos - 1 + sh, pos - 1 + sh, 'Q', (j, 0)])
            tasks.append([pos + sh, pos + sh, 'Q', (j, 1)])
        if typ == 0:
            tasks.append([at(64, 4), at(64, 8), 'S', f'buffer_store_dword v{VCL+1}, v{VCL}, {sr(S_DBG)}, 0 offen sc1'])
            tasks.append([at(84, 4), at(84, 8), 'S', f'buffer_store_dword v{VF+3}, v{VCL+1}, {sr(S_WS)}, 0 offen sc1'])
        fslow = []
        passes = {}
        for g in range(NSTEP): passes.setdefault(S[g][0], g)
        need = [(passes[1], VF, 32 + 64 * typ), (32, VF + 6, 128), (passes[4], VF, 176), (passes[5], VF, 208), (passes[6], VF + 6, 240)]
        for ci, (gn, va, idx) in enumerate(need):
            v = gn - o.pfcs[ci] - 1
            while v in vused: v -= 1
            tasks.append([at(v - o.fleads[ci], 4), at(v - o.fleads[ci], 8), 'F', (va, idx, ci)])
            tasks.append([at(v, 0), at(v, 1), 'G', ci])
            tasks.append([at(v, 6), at(v, 7), 'I', [f's_cbranch_vccnz L_fw{typ}{ci}', f'L_fb{typ}{ci}:']])
            fslow.append((ci, va))
            assert v not in vused, v
            for t in tasks:
                if t[2] == 'W' and (t[3] >= gn): t[0] = max(t[0], at(v, 8))
        tasks.append([at(v + 1, 2), at(v + 1, 8), 'A', 4])
        if typ == 0:
            for lvl, v in enumerate(o.trig): tasks.append([at(v, 2), at(v, 8), 'P', lvl + 1])
        tasks.sort(key=lambda t: (t[0], t[1]))
        vq, lq = [], []
        dirty = [False]
        xreg, busy = {}, {}
        wn = [0]
        wr = {}
        lastw = [-100]
        later = []
        BIG = [WR + 4 * i for i in range(16)] + XWIN + [ACC['P'] + 4 * i for i in range(9)]
        for i in range(9): busy[ACC['P'] + 4 * i] = at(VP + 12)
        until = {}
        if o.chain > 1:
            BIG += XRING + [VA, VA + 4, VA + 8]
            for i in range(9):
                BIG.append(ACC['Q'] + 4 * i)
                until[ACC['Q'] + 4 * i] = min(n for n in range(N) if ops[n][1] == i and S[ops[n][0]][4] == 'Q') - 3
        def freeregs(n, end): return [x for x in BIG if busy.get(x, -1) <= n and end < until.get(x, 10**9)]
        def wok(t, n):
            if t[2] != 'W': return True
            if t[3] != wn[0]: return False
            free = len(freeregs(n, wlast[t[3]]))
            if t[1] - n <= 9 * 3: return free > 0
            return n - lastw[0] >= o.wgap and free > o.wres
        since = {}
        fill = []
        def em(x):
            e(x)
            if not x.endswith(':'):
                for jj in since: since[jj] += 1
        def lwait(tag):
            if tag not in lq: return
            i = lq.index(tag)
            em(f's_waitcnt lgkmcnt({0 if dirty[0] else len(lq)-1-i})')
            if dirty[0]: lq.clear(); dirty[0] = False
            else: del lq[:i + 1]
        def vwait(g):
            if g not in vq: return
            i = vq.index(g)
            em(f's_waitcnt vmcnt({len(vq)-1-i})')
            del vq[:i + 1]
        def run(t, n):
            kind, p = t[2], t[3]
            if kind == 'X':
                pool = BIG if (o.chain > 1 or p[-1] == 'h' or (p[2] == 'rem' and p[1] == 'D')) else XRING
                r = [x for x in pool if busy.get(x, -1) <= n and last[p] < until.get(x, 10**9)]
                assert r, ('no x register', p, n)
                r = min(r, key=lambda x: (until.get(x, 10**9), busy.get(x, -1)))
                busy[r] = last[p]; xreg[p] = r
                arr, ch, s_ = p[1], p[2], p[3]
                if o.nolds and n > 9 * 30: return
                if ch == 'rem': em(f'ds_read_b128 {vr(r,4)}, v{VXOR if arr == "O" else VXDR} offset:{288*s_}')
                else: em(f'ds_read_b128 {vr(r,4)}, v{VXO if arr == "O" else VXD} offset:{64*ch+288*s_}')
                lq.append(p)
            elif kind == 'W':
                g = p
                r = min(freeregs(n, wlast[g]), key=lambda x: (until.get(x, 10**9), busy.get(x, -1)))
                busy[r] = wlast[g]; wr[g] = r
                assert g == wn[0]; wn[0] += 1
                lastw[0] = n
                if o.now and g > 40: return
                if o.wsame and g > 40:
                    em(f'buffer_load_dwordx4 {vr(r,4)}, v{VWL}, {sr(S_WS)}, s{WSO} offen offset:{1024*(g%4)}{wflags}'); vq.append(g); return
                em(f'buffer_load_dwordx4 {vr(r,4)}, v{VWL}, {sr(S_WS)}, s{WSO} offen offset:{1024*(g%4)}{wflags}')
                if g % 4 == 3:
                    if n < 0: em(f's_add_u32 s{WSO}, s{WSO}, 4096')
                    else: later.append(f's_add_u32 s{WSO}, s{WSO}, 4096')
                vq.append(g)
            elif kind == 'L':
                em(p[0].replace('offset:pair', 'offset:24').replace(f'v{VF+1} offset:24', f'v{VF+5} offset:24')); lq.append(p[1])
            elif kind == 'C':
                lwait(p[1]); em(p[0])
            elif kind == 'I':
                for x in p: em(x)
            elif kind == 'A':
                em('s_mov_b64 exec, 1')
                if p == 'pair': em(f'ds_add_u32 v{VF+5}, v{VF+2} offset:24')
                else: em(f'ds_add_u32 v{VF+1}, v{VF+2} offset:{p}')
                em('s_mov_b64 exec, -1')
                lq.append(('a', p))
            elif kind == 'Q':
                p, hf = p
                lwait(('pr', p))
                q = ACC['Q'] + 4 * p; t_ = TMP + 4 * (p & (3 if o.chain > 1 else 1))
                for i in (2 * hf, 2 * hf + 1): em(f'v_add_f32 v{q+i}, v{q+i}, v{t_+i}')
            elif kind == 'S':
                assert not any(isinstance(x, tuple) and x[0] == 's' for x in vq)
                em(p); vq.append(('s', n))
            elif kind == 'F':
                em(f's_mov_b32 s{FO}, {128*p[1]}')
                em(f'buffer_load_dword v{VF+4}, v{p[0]}, {sr(S_WS)}, s{FO} offen {o.fflags}'); vq.append(('f', p[2]))
            elif kind == 'G':
                vwait(('f', p)); em(f'v_cmp_ne_u32 vcc, v{VF+3}, v{VF+4}')
            elif kind == 'P':
                em(f'v_mov_b32 v{VF+7}, {p}')
                em('s_mov_b64 exec, 1')
                em(f'ds_max_u32 v{VF+1}, v{VF+7}')
                em('s_mov_b64 exec, -1')
                lq.append(('p', p))
        def epi(j, pk):
            q = ACC['Q'] + 4 * j
            t = TMP + 8 * (j & 1)
            I = []
            if pk:
                I.append(f'v_pk_mul_f32 {vr(t,2)}, {vr(q,2)}, s[{C2L}:{C2L+1}]')
                I.append(f'v_pk_mul_f32 {vr(t+2,2)}, {vr(q+2,2)}, s[{CNL}:{CNL+1}]')
            else:
                for i in (0, 1): I.append(f'v_mul_f32 v{t+i}, s{C2L}, v{q+i}')
                for i in (2, 3): I.append(f'v_mul_f32 v{t+i}, s{CNL}, v{q+i}')
            I.append(f'v_min_f32 v{t}, s{C60}, v{t}')
            I.append(f'v_min_f32 v{t+1}, s{C60}, v{t+1}')
            for i in (0, 1, 2, 3): I.append(f'v_exp_f32 v{t+i}, v{t+i}')
            if pk:
                I.append(f'v_pk_add_f32 {vr(t+4,2)}, {vr(t,2)}, 1.0 op_sel_hi:[1,0]')
                I.append(f'v_pk_add_f32 {vr(t+6,2)}, {vr(t,2)}, -1.0 op_sel_hi:[1,0]')
                I.append(f'v_pk_fma_f32 {vr(t+4,2)}, {vr(t+4,2)}, {vr(t+2,2)}, {vr(t+4,2)}')
            else:
                for i in (0, 1): I.append(f'v_add_f32 v{t+4+i}, 1.0, v{t+i}')
                for i in (0, 1): I.append(f'v_fma_f32 v{t+4+i}, v{t+4+i}, v{t+2+i}, v{t+4+i}')
            I.append(f'v_rcp_f32 v{t+4}, v{t+4}')
            I.append(f'v_rcp_f32 v{t+5}, v{t+5}')
            if pk:
                I.append('s_nop 0')
                I.append(f'v_pk_mul_f32 {vr(t+6,2)}, {vr(t+6,2)}, {vr(t+4,2)}')
            else:
                for i in (0, 1): I.append(f'v_add_f32 v{t+6+i}, -1.0, v{t+i}')
                for i in (0, 1): I.append(f'v_mul_f32 v{t+6+i}, v{t+6+i}, v{t+4+i}')
            I.append(f'v_cvt_pk_bf16_f32 v{q}, v{t+6}, v{t+7}')
            I.append(f'buffer_store_dword v{q}, v{VOUT + j//3}, {sr(S_OUT)}, 0 offen offset:{1152*(j%3)} {o.oflags if j < o.oj else ""}')
            return I
        def cost(x): return 2 if x.startswith(('v_exp', 'v_rcp', 'buffer')) else 1
        while tasks and tasks[0][0] < 0: run(tasks.pop(0), -1)
        inv = {n: v for v, n in vstart.items()}
        lastop = {j: max(n for n in range(N) if ops[n][1] == j) for j in range(9)}
        for n, (g, j) in enumerate(ops):
            if n in inv and o.padto and o.padev == 'm5' and inv[n] == o.padstep:
                e('s_memrealtime s[100:101]'); dirty[0] = True
            if n in inv and o.diag:
                v = inv[n]
                if o.diag == 2 and v in o.marks:
                    kk = o.marks.index(v)
                    e(f's_memtime s[{ST0+2*kk}:{ST0+2*kk+1}]'); dirty[0] = True
                if o.diag in (1, 4) and v == 33: stamp(5); stamp(6); dirty[0] = True
            k = key(n)
            assert k in xreg, (k, n)
            lwait(k); vwait(g)
            acc = S[g][4]
            d = ACC[acc] + 4 * j
            if g == 0: cs = '0'
            elif acc == 'Q' and S[g-1][4] == 'P': cs = vr(ACC['P'] + 4 * j, 4)
            else: cs = vr(d, 4)
            em(f'v_mfma_f32_16x16x32_bf16 {vr(d,4)}, {vr(wr[g],4)}, {vr(xreg[k],4)}, {cs}' if not o.swapab else f'v_mfma_f32_16x16x32_bf16 {vr(d,4)}, {vr(xreg[k],4)}, {vr(wr[g],4)}, {cs}')
            if n == lastop[j]: since[j] = 0
            while later: em(later.pop(0))
            budget = 2
            TC = {'X': 1, 'W': 2, 'L': 2, 'C': 1, 'I': 0, 'A': 1, 'Q': 2, 'S': 2, 'F': 2, 'G': 1, 'P': 2}
            while True:
                ready = [t for t in tasks if t[0] <= n and wok(t, n)]
                if not ready: break
                t = min(ready, key=lambda t: t[1])
                assert t[1] >= n, ('late', t, n)
                if TC[t[2]] > budget and t[1] > n:
                    fit = [u for u in ready if TC[u[2]] <= budget]
                    if not fit: break
                    t = min(fit, key=lambda t: t[1])
                tasks.remove(t); run(t, n); budget -= TC[t[2]]
            for jj in sorted(since):
                if 8 <= since[jj] < 10**6:
                    fill += epi(jj, False); since[jj] = 10**6
            budget += o.nfill - 2
            while fill and budget >= cost(fill[0]):
                budget -= cost(fill[0])
                if fill[0].startswith('buffer_store'):
                    q_ = int(re.match(r'buffer_store_dword v(\d+)', fill[0]).group(1))
                    until.pop(q_, None); busy[q_] = n + 2
                em(fill.pop(0))
            assert all(t[1] > n for t in tasks), ('late', n, [t for t in tasks if t[1] <= n])
        assert not tasks
        stamp(7)
        while fill: em(fill.pop(0))
        for jj in [jj for jj in sorted(since) if since[jj] < 10**6]:
            if since[jj] < 8: em(f's_nop {8-since[jj]-1}')
            for x in epi(jj, True): em(x)
        stamp(8)
        if o.padto and o.padev[0] == 'm': padloop(typ)
        if o.diag == 1:
            e('s_waitcnt vmcnt(0)')
            stamp(9)
            dump(10)
        if o.diag == 2:
            kk = len(o.marks)
            e(f's_memtime s[{ST0+2*kk}:{ST0+2*kk+1}]')
            dump(10)
        e('s_endpgm')
        for tag, off, cnt in slow:
            e(f'L_slow{typ}{tag}:')
            e(f'ds_read_b32 v{VC}, v{VF+5 if off == "pair" else VF+1} offset:{24 if off == "pair" else off}')
            e('s_waitcnt lgkmcnt(0)')
            e(f'v_cmp_ne_u32 vcc, {cnt}, v{VC}')
            e('s_nop 4')
            e(f's_cbranch_vccnz L_slow{typ}{tag}')
            e(f's_branch L_back{typ}{tag}')
        for ci, va in fslow: flagwait(f'{typ}{ci}', va, f'L_fb{typ}{ci}')

    mark['help0'] = len(e.L)
    if not o.hfirst: e('.p2align 6')
    e('L_helper:')
    role[0] = 'h'
    e(f's_setprio {o.hprio}')
    e(f's_sub_u32 s{TW0}, s{WAVE}, 4')
    e(f's_mov_b32 s{TW1}, s{WAVE}')
    e(f's_sub_u32 s{PAIR}, s2, {NPROD}')
    e(f's_cselect_b32 s{PAIR}, s2, s{PAIR}')
    e(f's_mov_b32 s{MODE}, 0')
    e(f's_mov_b32 s{NOTASK}, s2')
    e(f's_mov_b32 s{HAS3}, s{TW0}')
    e(f's_lshl_b32 s{SCRB}, s{TW0}, 12')
    e(f's_add_u32 s{SCRB}, s{SCRB}, {SCR}')
    e('L_prod:')
    T = [(28, TW0, 2, 52, 0), (36, TW1, 4, 53, 2048), (44, TW2, 6, 54, 16384)]
    c, kp, q, cc, kk, t = 46, 47, 48, 49, 50, 51
    b = TS
    e('v_mov_b32 v19, 4320')
    e('v_and_b32 v23, 3, v1')
    e('v_lshrrev_b32 v24, 3, v1')
    e('v_mul_u32_u24 v24, 576, v24')
    e('v_bfe_u32 v25, v1, 2, 1')
    e('v_mul_u32_u24 v25, 288, v25')
    e('v_add_u32 v24, v24, v25')
    for (vb, sw, vl, vs, so) in T:
        e(f'v_lshl_add_u32 v8, s{sw}, 2, v23' if sw != TW2 else 'v_add_u32 v8, 32, v23')
        e('v_cmp_le_u32 vcc, 18, v8')
        e(f'v_lshl_add_u32 v{vl}, v8, 4, v24')
        e(f'v_add_u32 v9, v{vl}, v19')
        e(f'v_cndmask_b32 v{vl}, v{vl}, v9, vcc')
    e(f's_and_b32 s{c}, s{PAIR}, 15')
    e(f's_lshr_b32 s{kp}, s{PAIR}, 4')
    e(f's_mul_i32 s{b}, s{c}, 165888')
    e(f's_mul_i32 s{t}, s{kp}, 9216')
    e(f's_add_u32 s{b}, s{b}, s{t}')
    e(f's_add_u32 s{b+1}, s{b}, 82944')
    e(f's_mov_b32 s{S_W+2}, 2571264')
    e(f's_mov_b32 s{S_W+3}, 0x20000')
    e(f's_mov_b32 s{S_WO+3}, 0x20000')
    e(f's_cmp_lg_u32 s{c}, 15')
    e(f's_cselect_b32 s{S_WO+2}, 2571264, 0')
    e(f's_mov_b32 m0, s{SCRB}')
    e('s_waitcnt lgkmcnt(0)')
    e(f's_mov_b32 s{S_W}, s6')
    e(f's_and_b32 s{S_W+1}, s7, 0xffff')
    e(f's_mov_b32 s{S_WO}, s6')
    e(f's_and_b32 s{S_WO+1}, s7, 0xffff')
    e(f's_cmp_ge_u32 s{NOTASK}, {NTASK}')
    e('s_cbranch_scc1 L_a3')
    def cond3(lbl):
        e(f's_cmp_lg_u32 s{HAS3}, 0')
        e(f's_cbranch_scc1 {lbl}')
    for ti, (vb, sw, vl, vs, so) in enumerate(T):
        if ti == 2: cond3('L_a3')
        if ti == 1: e('s_addk_i32 m0, 1024'); e('s_nop 0')
        e(f'buffer_load_dwordx4 v{vl}, {sr(S_W)}, s{b} offen lds')
        e('s_addk_i32 m0, 1024')
        e('s_nop 0')
        e(f'buffer_load_dwordx4 v{vl}, {sr(S_WO)}, s{b+1} offen lds')
        if ti == 1: e(f's_addk_i32 m0, {16384-3072}')
    e('L_a3:')
    stamp(1)
    e(f's_cmp_lg_u32 s{MODE}, 0')
    e('s_cbranch_scc1 L_a4')
    e(f's_load_dword s{TAG}, s[12:13], {NONCE}')
    e(f's_lshr_b32 s{EARLY}, 0x33, s{kp}')
    e(f's_and_b32 s{EARLY}, s{EARLY}, 1')
    e(f's_sub_u32 s{XK}, 2, s{EARLY}')
    e(f's_lshl_b32 s{t}, s{kp}, 1')
    e(f's_lshr_b32 s{YT}, {(3<<12)+(3<<14)+(3<<16)}, s{t}')
    e(f's_and_b32 s{YT}, s{YT}, 3')
    e(f's_lshr_b32 s{t}, s{kp}, 1')
    e(f's_cmp_ge_u32 s2, {NPROD}')
    e(f's_cselect_b32 s{EARLY}, 0, s{EARLY}')
    e(f's_cselect_b32 s{XK}, 3, s{XK}')
    e(f's_cselect_b32 s{YT}, s{t}, s{YT}')
    e(f's_cmp_ge_u32 s2, {NPROD+32}')
    e(f's_cselect_b32 s{XK}, 0, s{XK}')
    e(f's_cmp_ge_u32 s2, {NTASK}')
    e(f's_cselect_b32 s{YT}, 0, s{YT}')
    if not o.b0early:
        e(f's_cmp_lg_u32 s{EARLY}, 0')
        e('s_cbranch_scc1 L_a4')
    e('s_barrier')
    e('L_a4:')
    e(f's_mov_b32 s{MASK}, 0xffff0000')
    e(f's_mov_b32 s{NPOLL}, 0')
    srd(e, S_WS, 12, WS_REC)
    srd(e, S_DBG, 10, 256)
    e(f'v_mov_b32 v10, {CNT}')
    e(f'v_mov_b32 v20, {(256 - 18*2*NSTEP*1024) & 0xffffffff}')
    e(f'v_mov_b32 v26, {2*NSTEP*1024}')
    e('v_bfe_u32 v21, v1, 2, 2')
    e('v_lshlrev_b32 v21, 7, v21')
    e('v_and_b32 v22, 1, v1')
    e('v_lshl_add_u32 v21, v22, 6, v21')
    e('v_bfe_u32 v22, v1, 1, 1')
    e('v_lshl_add_u32 v21, v22, 3, v21')
    e('v_lshrrev_b32 v22, 4, v1')
    e('v_lshl_add_u32 v21, v22, 4, v21')
    e(f'v_add_u32 v21, s{SCRB}, v21')
    e('v_and_b32 v25, 15, v1')
    e('v_lshlrev_b32 v25, 4, v25')
    for (vb, sw, vl, vs, so) in T:
        e(f'v_lshl_add_u32 v8, s{sw}, 2, v22' if sw != TW2 else 'v_add_u32 v8, 32, v22')
        e('v_cmp_le_u32 vcc, 18, v8')
        e(f'v_mad_u32_u24 v{vs}, v8, v26, v25')
        e(f'v_add_u32 v9, v{vs}, v20')
        e(f'v_cndmask_b32 v{vs}, v{vs}, v9, vcc')
    e(f's_lshr_b32 s{q}, s{kp}, 1')
    e(f's_and_b32 s{cc}, s{c}, 7')
    e(f's_lshr_b32 s{kk}, s{c}, 3')
    e(f's_and_b32 s{t}, s{kp}, 1')
    e(f's_cmp_eq_u32 s{kp}, 8')
    e(f's_cselect_b32 s{cc}, s{cc}, s{c}')
    e(f's_cselect_b32 s{kk}, s{kk}, s{t}')
    e(f's_lshl_b32 s{kk}, s{kk}, 9')
    e(f's_add_u32 s{kk}, s{kk}, {WOFF}')
    e(f's_lshl_b32 s{t}, s{q}, 4')
    e(f's_add_u32 s{b+2}, s{t}, s{cc}')
    e(f's_sub_u32 s{b+3}, s{b+2}, s{q}')
    e(f's_cmp_ge_u32 s{q}, 2')
    e(f's_cselect_b32 s{b+4}, 74, 0')
    e(f's_add_u32 s{b+4}, s{b+4}, s{b+2}')
    e(f's_cmp_lt_u32 s{cc}, 2')
    e(f's_cselect_b32 s{t}, 32, 136')
    e(f's_add_u32 s{t}, s{t}, s{cc}')
    e(f's_cmp_eq_u32 s{kp}, 8')
    e(f's_cselect_b32 s{b+4}, s{t}, s{b+4}')
    e(f's_add_u32 s{b+2}, s{b+2}, 34')
    e(f's_add_u32 s{b+3}, s{b+3}, 144')
    for k in (2, 3, 4):
        e(f's_lshl_b32 s{b+k}, s{b+k}, 10')
        e(f's_add_u32 s{b+k}, s{b+k}, s{kk}')
    e(f's_cmp_eq_u32 s{kp}, 8')
    e(f's_cselect_b32 s{t}, 1, 2')
    e(f's_cmp_eq_u32 s{c}, 15')
    e(f's_cselect_b32 s{b+5}, s{t}, 0')
    e(f's_lshl_b32 s46, s{WAVE}, 2')
    e(f's_add_u32 s46, s46, {CNT+16}')
    e('v_mov_b32 v55, s46')
    e('v_mov_b32 v27, 0')
    e('v_mov_b32 v9, 4')
    e('s_waitcnt vmcnt(0) lgkmcnt(0)')
    stamp(2)
    e(f's_cmp_ge_u32 s{NOTASK}, {NTASK}')
    e('s_cbranch_scc1 L_x9')
    e(f's_cmp_lg_u32 s{WAVE}, 4')
    e('s_cbranch_scc1 L_a5')
    e('s_mov_b64 exec, 1')
    e(f'buffer_load_dword v27, v9, {sr(S_DBG)}, 0 offen sc1')
    e('s_mov_b64 exec, -1')
    e('L_a5:')
    for (vb, sw, vl, vs, so) in T:
        for tap in range(2):
            for half in range(2):
                e(f'ds_read_b64_tr_b16 {vr(vb+4*tap+2*half,2)}, v21 offset:{so+1024*tap+512*half}')
    nlab = [0]
    def st01(vb, vs):
        nlab[0] += 1
        e(f'buffer_store_dwordx4 {vr(vb,4)}, v{vs}, {sr(S_WS)}, s{b+2} offen sc1')
        e(f's_cmp_eq_u32 s{b+5}, 2')
        e(f's_cbranch_scc1 L_skip{nlab[0]}')
        e(f'buffer_store_dwordx4 {vr(vb+4,4)}, v{vs}, {sr(S_WS)}, s{b+3} offen sc1')
        e(f'L_skip{nlab[0]}:')
    def st01all(lbl):
        st01(T[0][0], T[0][3]); st01(T[1][0], T[1][3])
        cond3(lbl)
        st01(T[2][0], T[2][3])
    def dosum(vb, tb, ob):
        for i in range(8):
            e(f'v_lshlrev_b32 v{tb+2*i}, 16, v{vb+i}')
            e(f'v_and_b32 v{tb+2*i+1}, s{MASK}, v{vb+i}')
        for i in range(4):
            e(f'v_pk_add_f32 {vr(tb+2*i,2)}, {vr(tb+2*i,2)}, {vr(tb+8+2*i,2)}')
        for i in range(4):
            e(f'v_cvt_pk_bf16_f32 v{ob+i}, v{tb+2*i}, v{tb+2*i+1}')
    def ldswait(off, cmp, operand, tag, slp):
        e(f'L_lw{tag}:')
        e(f'ds_read_b32 v11, v10 offset:{off}')
        e('s_waitcnt lgkmcnt(0)')
        e('v_and_b32 v11, 0xff, v11')
        e(f'v_cmp_{cmp}_u32 vcc, {operand}, v11')
        e('s_nop 4')
        e(f's_cbranch_vccnz L_lx{tag}')
        e(f's_sleep {slp}')
        e(f's_branch L_lw{tag}')
        e(f'L_lx{tag}:')
    SO = 240
    e(f's_or_b32 s46, s{EARLY}, s{MODE}')
    e(f's_cmp_eq_u32 s{XK}, 2')
    e('s_cselect_b32 s47, 1, s46')
    e('s_cmp_eq_u32 s47, 0')
    e('s_cbranch_scc1 L_x9')
    for ti, (vb, sw, vl, vs, so) in enumerate(T):
        if ti == 2: cond3('L_x3')
        e(f's_waitcnt lgkmcnt({8-4*ti})')
        dosum(vb, 64 + 16 * ti, SO + 4 * ti)
        e('s_cmp_eq_u32 s46, 0')
        e(f's_cbranch_scc1 L_x5{ti}')
        e(f'buffer_store_dwordx4 {vr(SO+4*ti,4)}, v{vs}, {sr(S_WS)}, s{b+4} offen sc1')
        e(f'L_x5{ti}:')
    e('L_x3:')
    e(f's_cmp_eq_u32 s{MODE}, 0')
    e('s_cbranch_scc1 L_x9')
    e('L_x2:')
    e('s_waitcnt lgkmcnt(0)')
    st01all('L_x4')
    e('L_x4:')
    e(f's_cmp_eq_u32 s{MODE}, 0')
    e('s_cbranch_scc1 L_x9')
    e('s_waitcnt vmcnt(0)')
    e(f's_add_u32 s{PAIR}, s{PAIR}, 1')
    e(f's_cmp_lt_u32 s{PAIR}, {NPROD}')
    e('s_cbranch_scc1 L_prod')
    e('v_mov_b32 v11, 1')
    e('ds_write_b32 v10, v11 offset:12')
    e('s_endpgm')
    e('L_x9:')
    stamp(3)
    decode()
    e('v_subrev_u32 v4, 256, v0')
    e('v_min_u32 v4, 251, v4')
    e('v_mul_u32_u24 v3, 3641, v4')
    e('v_lshrrev_b32 v3, 16, v3')
    e('v_mul_u32_u24 v2, 18, v3')
    e('v_sub_u32 v2, v4, v2')
    e(f'v_mul_u32_u24 v3, {R}, v3')
    e(f'v_min_u32 v3, {160-R}, v3')
    e('v_mul_u32_u24 v4, 1152, v3')
    e('v_lshl_add_u32 v4, v2, 4, v4')
    e(f'v_add_u32 v12, s{XB}, v4')
    e('v_mul_u32_u24 v18, 288, v3')
    e('v_lshl_add_u32 v18, v2, 4, v18')
    e(f'v_add_u32 v19, {X_D1}, v18')
    srd(e, S_X, 4, 1152000, add=BOFF)
    e(f's_add_u32 s46, s{TAG}, {TAGINC}')
    e('v_mov_b32 v56, s46')
    e('s_lshl_b32 s46, s2, 7')
    e('v_mov_b32 v58, s46')
    e(f's_add_u32 s46, s{PAIR}, {NPROD}')
    e('s_lshl_b32 s46, s46, 7')
    e('v_mov_b32 v59, s46')
    def publish(slot, vflag, tag, first, n=0):
        e('s_mov_b64 exec, 1')
        e(f's_waitcnt vmcnt({n})')
        if first: stamp(4)
        if o.padto and tag == 'x': stamp(12)
        e('v_cmp_ne_u32 vcc, 0, v27')
        e('v_not_b32 v57, v56')
        e('s_nop 0')
        e('v_cndmask_b32 v57, v56, v57, vcc')
        e(f'ds_write_b32 v55, v57 offset:{slot}')
        e(f'ds_read_b128 v[20:23], v10 offset:{32+slot}')
        e('s_waitcnt lgkmcnt(0)')
        for i in range(4): e(f'v_xor_b32 v{20+i}, v{20+i}, v56')
        e('v_or3_b32 v20, v20, v21, v22')
        e('v_or_b32 v20, v20, v23')
        e('v_cmp_eq_u32 vcc, 0, v20')
        e('s_and_b64 exec, exec, vcc')
        e(f's_cbranch_execz L_nl{tag}')
        e(f'buffer_store_dword v56, v{vflag}, {sr(S_WS)}, 0 offen sc1')
        e(f'L_nl{tag}:')
        e('s_mov_b64 exec, -1')
    e(f's_cmp_eq_u32 s{EARLY}, 0')
    e('s_cbranch_scc1 L_noflag')
    publish(0, 58, 'x', True)
    if not o.b0early: e('s_barrier')
    e('L_noflag:')
    e(f's_setprio {o.hprio2}')
    RAW, ORAW = 64, 120
    EU = [184, 192]
    OU, DT, DO = 200, 208, 216
    xi = [0]
    NL = R + 1
    hq = []
    def eload():
        k = xi[0]
        if k >= NL: return
        a_ = 12
        if k:
            a_ = 13 + (k & 3)
            e(f'v_add_u32 v{a_}, {1152*k}, v12')
        e(f'buffer_load_dwordx4 {vr(RAW+4*k,4)}, v{a_}, {sr(S_X)}, 0 offen')
        xi[0] += 1
        hq.append(('e', k))
    if o.etouch:
        e(f's_cmp_lt_u32 s2, {NTASK}')
        e('s_cbranch_scc1 L_net')
        e(f's_and_b32 s46, s{NB}, 1')
        e(f's_mul_i32 s46, s46, {1152*6}')
        e('v_add_u32 v12, s46, v12')
        for _ in range(7): eload()
        e('v_subrev_u32 v12, s46, v12')
        e('s_waitcnt vmcnt(0)')
        e('L_net:')
        xi[0] = 0; hq.clear()
    YA = 232
    e(f's_cmp_eq_u32 s{b+5}, 2')
    e('s_cselect_b32 s46, 0x80000000, 0')
    e(f's_cmp_lg_u32 s{HAS3}, 0')
    e('s_cselect_b32 s47, 0x80000000, 0')
    e('s_or_b32 s48, s46, s47')
    for i in range(6):
        m_ = {0: None, 1: 46, 2: None, 3: 46, 4: 47, 5: 48}[i]
        e(f'v_mov_b32 v{YA+i}, v{52+i//2}' if m_ is None else f'v_or_b32 v{YA+i}, s{m_}, v{52+i//2}')
    def ystore(i, a_):
        e(f'buffer_store_dwordx4 {vr(28+4*i,4)}, v{a_}, {sr(S_WS)}, s{b+2+(i&1)} offen sc1')
        hq.append(('y', i))
    stamp(5)
    ldswait(8, 'eq', 4, 'o', 1)
    def unpack(dst, s_):
        for i in range(4):
            e(f'v_lshlrev_b32 v{dst+2*i}, 16, v{s_+i}')
            e(f'v_and_b32 v{dst+2*i+1}, s{MASK}, v{s_+i}')
    def unpackE(dst, k):
        e(f's_waitcnt vmcnt({len(hq)-1-hq.index(("e", k))})')
        unpack(dst, RAW + 4 * k)
        eload()
    def diff(eu, out):
        for i in range(8): e(f'v_sub_f32 v{DT+i}, v{eu+i}, v{OU+i}')
        for i in range(4):
            e(f'v_cvt_pk_bf16_f32 v{out+i}, v{DT+2*i}, v{DT+2*i+1}')
    def opengate():
        if not o.gate: return
        e('v_mov_b32 v11, 0x100')
        e('s_mov_b64 exec, 1')
        e('ds_add_u32 v10, v11 offset:8')
        e('s_mov_b64 exec, -1')
    def rows(hook):
        stamp(6)
        for j in range(R):
            e(f'ds_read_b128 {vr(ORAW+4*j,4)}, v18 offset:{X_O+288*j}')
        unpackE(EU[0], 0)
        e('s_waitcnt lgkmcnt(0)')
        for j in range(R):
            o0 = DO + 8 * (j & 1)
            unpack(OU, ORAW + 4 * j)
            diff(EU[j & 1], o0)
            e(f'ds_write_b128 v18, {vr(o0,4)} offset:{X_D0+288*j}')
            unpackE(EU[(j + 1) & 1], j + 1)
            diff(EU[(j + 1) & 1], o0 + 4)
            e(f'ds_write_b128 v19, {vr(o0+4,4)} offset:{288*j}')
            hook(j)
    e(f's_cmp_ge_u32 s2, {NPROD + (32 if o.d0p else 0)}')
    e('s_cbranch_scc1 L_pathA')
    e(f's_cmp_lt_u32 s{XK}, 2')
    e('s_cbranch_scc1 L_nox')
    if o.d0p:
        e(f's_cmp_eq_u32 s{XK}, 3')
        e('s_cbranch_scc1 L_xd')
    for i in range(3):
        e(f'buffer_store_dwordx4 {vr(SO+4*i,4)}, v{YA+2*i}, {sr(S_WS)}, s{b+4} offen sc1')
    if o.d0p:
        e('s_branch L_xe')
        e('L_xd:')
        for i in range(6): ystore(i, YA + i)
        e('L_xe:')
    if o.gearly:
        opengate()
        publish(0, 58, 'x2', True)
        e('s_branch L_nox2')
        e('L_nox:')
        opengate()
        e('L_nox2:')
    else:
        publish(0, 58, 'x2', True)
        e('L_nox:')
        opengate()
    hq.clear(); xi[0] = 0
    for _ in range(o.ein): eload()
    rows(lambda j: None)
    e('s_branch L_rowsdone')
    e('L_pathA:')
    if not o.d0p:
        e(f's_cmp_eq_u32 s{XK}, 3')
        e('s_cselect_b32 s47, 0, 0x80000000')
        for i in range(6): e(f'v_or_b32 v{20+i}, s47, v{YA+i}')
    hq.clear(); xi[0] = 0
    for _ in range(NL): eload()
    if not o.d0p:
        for i in range(6): ystore(i, 20 + i)
    def hookA(j):
        if j == o.grow:
            e(f's_waitcnt vmcnt({len(hq)-1-hq.index(("e", NL-1))})')
            opengate()
        if j == o.xrow and not o.d0p:
            e(f's_cmp_lg_u32 s{XK}, 3')
            e('s_cbranch_scc1 L_xp')
            publish(0, 58, 'x3', True)
            e('L_xp:')
    rows(hookA)
    e('L_rowsdone:')
    e('s_waitcnt lgkmcnt(0)')
    stamp(7)
    e('v_mov_b32 v11, 1')
    e('s_mov_b64 exec, 1')
    e('ds_add_u32 v10, v11 offset:16')
    e('s_mov_b64 exec, -1')
    e(f's_cmp_eq_u32 s{YT}, 0')
    e('s_cbranch_scc1 L_noy')
    e(f's_setprio {o.yprio}')
    e('L_yw:')
    e('ds_read_b64 v[20:21], v10')
    e('s_waitcnt lgkmcnt(0)')
    e('v_lshrrev_b32 v21, 14, v21')
    e('v_and_b32 v21, -4, v21')
    e('v_or_b32 v20, v20, v21')
    e(f'v_cmp_le_u32 vcc, s{YT}, v20')
    e('s_nop 4')
    e('s_cbranch_vccnz L_yx')
    e('s_sleep 4')
    e('s_branch L_yw')
    e('L_yx:')
    for i in range(6):
        ystore(i, YA + i)
        e(f's_waitcnt vmcnt({o.ythr})')
        if o.ysleep: e(f's_sleep {o.ysleep}')
    publish(16, 59, 'y', False)
    if o.diag == 1: stamp(8)
    e('L_noy:')
    e(f's_cmp_lg_u32 s{WAVE}, 4')
    e('s_cbranch_scc1 L_hend')
    e('L_guard:')
    e('ds_read_b32 v11, v10 offset:4')
    e('s_waitcnt lgkmcnt(0)')
    e('v_readfirstlane_b32 s46, v11')
    e('s_nop 3')
    e('s_cmp_eq_u32 s46, 4')
    e('s_cbranch_scc1 L_hend')
    e('s_cmp_lt_u32 s46, 0x10000')
    e('s_cbranch_scc0 L_rescue')
    e('s_sleep 16')
    e('s_branch L_guard')
    e('L_rescue:')
    e(f's_mov_b32 s{MODE}, 1')
    e(f's_mov_b32 s{HAS3}, 1')
    e(f's_mov_b32 s{NOTASK}, 0')
    e(f's_lshr_b32 s{TW0}, s{NB}, 1')
    e(f's_add_u32 s{TW1}, s{NB}, 9')
    e(f's_lshr_b32 s{TW1}, s{TW1}, 1')
    e(f's_mov_b32 s{PAIR}, 0')
    e('s_branch L_prod')
    e('L_hend:')
    if o.padto and o.padev[0] == 'h': padloop('h')
    if o.diag == 1:
        stamp(9)
        dump(10)
    e('L_end:')
    e('s_endpgm')
    if o.hfirst:
        m0, h0 = mark['main0'], mark['help0']
        e.L = e.L[:m0] + e.L[h0:] + ['.p2align 6'] + e.L[m0:h0]
    e('L_codeend:')
    e('.section .rodata,"a"')
    e('.p2align 6')
    e(f'.amdhsa_kernel {KN}')
    for x in ['next_free_vgpr 256', 'next_free_sgpr 102', 'accum_offset 256', 'group_segment_fixed_size 0', 'kernarg_size 40',
              'user_sgpr_count 2', 'user_sgpr_kernarg_segment_ptr 1', 'system_sgpr_workgroup_id_x 1']:
        e('  .amdhsa_' + x)
    e('.end_amdhsa_kernel')
    n = haz.check(e.L)
    if n: print(f'{n} hazards', file=sys.stderr)
    return f'; @launch grid=({NWG},1,1) block=(512,1,1) lds={LDS_BYTES}\n' + e.text()

def opts(argv=None):
    ap = argparse.ArgumentParser()
    ap.add_argument('-o', default='k.s')
    for nm, d in [('diag', 0), ('pf', 16), ('pf0', 8), ('wgap', 4), ('wres', 4), ('wsc1', 0), ('nfill', 2), ('fstride', 128), ('sleep', 0), ('maxpoll', 3000), ('nopoll', 0),
                  ('hprio', 3), ('hprio2', 0), ('mprio', 2), ('epre', 0), ('ein', 7), ('dpre', 7), ('b0early', 0), ('mtouch', 1), ('gate', 1), ('swapab', 0), ('d0p', 1), ('map', 1), ('chain', 4), ('p0plain', 0), ('onepoll', 0), ('epoll', 1), ('ppoll', 0), ('yprio', 3), ('ysleep', 0), ('vt', 94), ('tla', 40), ('tskip', 1), ('gearly', 1), ('chfrom', 8), ('oj', 9), ('nolds', 0), ('now', 0), ('wsame', 0), ('grow', 1), ('vbd', 33), ('nopk', 1), ('padto', 0), ('npdelay', 0), ('opre', 5), ('etouch', 0), ('orev', 1), ('b0late', 1), ('dec', 1), ('tail', 1), ('xla', 9), ('hold', 1), ('prest', 0), ('xslot', 0), ('noclosed', 0), ('cpf', 1), ('hfirst', 1), ('warmb', 1), ('wsfirst', 0), ('flead', 6), ('ythr', 6), ('xrow', 3), ('padstep', 33), ('probe', 0), ('probeoff', 0x4000000)]:
        ap.add_argument('--' + nm, type=int, default=d)
    ap.add_argument('--oflags', default='')
    ap.add_argument('--pmap', default='18,18,18,18,18,18,18,18')
    ap.add_argument('--padev', default='m0')
    ap.add_argument('--trig', default='10,25,40')
    ap.add_argument('--yrow', default='0,7,2,9,5,11')
    ap.add_argument('--pfcs', default='4,5,5,8,8')
    ap.add_argument('--fflags', default='')
    ap.add_argument('--fleads', default='6,6,6,6,6')
    ap.add_argument('--marks', default='0,4,8,12,16,24,33,47,58')
    o = ap.parse_args(argv)
    o.marks = [int(x) for x in o.marks.split(',')]
    o.yrow = [int(x) for x in o.yrow.split(',')]
    o.pfcs = [int(x) for x in o.pfcs.split(',')]
    o.fleads = [int(x) for x in o.fleads.split(',')]
    o.trig = [int(x) for x in o.trig.split(',')]
    return o

if __name__ == '__main__':
    o = opts()
    open(o.o, 'w').write(gen(o))
```

```python
import re, sys, argparse
import haz

KN = 'standalone__autoregressive_conv_wavernn__speech_kernel'
NWG = 252
NPROD = 144
ARR = 160 * 288
X_D0, X_O, X_D1 = 0, ARR, 2 * ARR
CNT = 3 * ARR
SCR = CNT + 64
LDS_BYTES = SCR + 18432
NSTEP = 106
WOFF = int(__import__('os').environ.get('WOFF', '0x100000'), 0)
NONCE = 0x10000
DIAG = 0x800000
WS_REC = max(0x1000000, WOFF + 0x400000, int(__import__('os').environ.get('WSREC', '0'), 0))
TAGINC = 0x9E3779B9
R = 12

class Em:
    def __init__(self): self.L = []
    def __call__(self, s): self.L.append(s)
    def text(self): return '\n'.join(self.L) + '\n'

def vr(a, n=1): return f'v{a}' if n == 1 else f'v[{a}:{a+n-1}]'
def sr(a, n=4): return f's[{a}:{a+n-1}]'

def streams():
    out = []
    for typ in (0, 1):
        S = []
        pid = [0]
        def add(arr, chunk, cs, acc):
            for c in cs: S.append((pid[0], arr, chunk, c, acc))
            pid[0] += 1
        if typ == 0:
            add('O', 0, range(16), 'P'); add('O', 1, range(16), 'P'); add('O', 'rem', range(0, 2), 'P')
            for q in range(4): add('D', q, range(16), 'Q')
            add('D', 'rem', range(8), 'Q')
        else:
            add('O', 2, range(16), 'P'); add('O', 3, range(16), 'P'); add('O', 'rem', range(2, 8), 'P')
            for q in range(4): add('D', q, range(15), 'Q')
            add('D', 'rem', range(8), 'Q')
        assert len(S) == NSTEP
        out.append(S)
    return out

S_X, S_W, S_WO, S_WS, S_OUT, S_DBG = 20, 24, 28, 32, 36, 40
WAVE, NB, BAT, PAR, MB, BOFF = 14, 15, 16, 17, 18, 19
PAIR0 = 3
XB = 52
MASK = 53
TW0, TW1, TW2, PAIR, HAS3, MODE, SCRB, TAG, LAST, NPOLL = 44, 45, 54, 55, 56, 57, 58, 59, 60, 61
TS = 62
TYP, WSO = 68, 69
EARLY, XK, YT, FIDX = 90, 91, 92, 93
NOTASK = 94
FO = 97
C2L, CNL, C60 = 90, 92, 94
ST0 = 70

def srd(e, d, ptr, rec, add=None):
    if add is None:
        e(f's_mov_b32 s{d}, s{ptr}')
        e(f's_and_b32 s{d+1}, s{ptr+1}, 0xffff')
    else:
        e(f's_add_u32 s{d}, s{ptr}, s{add}')
        e(f's_addc_u32 s{d+1}, s{ptr+1}, 0')
        e(f's_and_b32 s{d+1}, s{d+1}, 0xffff')
    e(f's_mov_b32 s{d+2}, {rec}')
    e(f's_mov_b32 s{d+3}, 0x20000')

def gen(o):
    e = Em()
    NSTR = 2 * NSTEP * 1024 + (65536 if o.tagp else 0)
    if o.tagp: o.epoll = 0
    NTASK = NPROD + (32 if o.yall else 96)
    role = ['m']
    def padloop(tag):
        e(f'L_pad{tag}:')
        e('s_memrealtime s[98:99]')
        e('s_waitcnt lgkmcnt(0)')
        e('s_sub_u32 s98, s98, s100')
        e(f's_cmp_lt_u32 s98, {o.padto}')
        e(f's_cbranch_scc1 L_pad{tag}')
    def stamp(k, lvl=1):
        if o.padto and lvl == 1 and o.padev == f'{role[0]}{k}':
            e('s_memrealtime s[100:101]'); e('s_waitcnt lgkmcnt(0)')
        if o.diag == lvl or (o.diag == 4 and lvl == 1): e(f's_memrealtime s[{ST0+2*k}:{ST0+2*k+1}]')
    def dump(nst):
        e('s_waitcnt lgkmcnt(0)')
        e('v_mov_b32 v250, 0')
        for k in range(nst): e(f'v_writelane_b32 v250, s{ST0+2*k}, {k}')
        e(f'v_writelane_b32 v250, s{NPOLL}, 13')
        e(f'v_writelane_b32 v250, s95, 12')
        e(f'v_writelane_b32 v250, s2, 14')
        e('s_getreg_b32 s46, hwreg(HW_REG_XCC_ID)')
        e('v_writelane_b32 v250, s46, 15')
        e(f's_lshl_b32 s46, s2, 3'); e(f's_add_u32 s46, s46, s{WAVE}'); e('s_lshl_b32 s46, s46, 6'); e(f's_add_u32 s46, s46, {DIAG}')
        e('v_lshl_add_u32 v251, v1, 2, s46')
        e('s_mov_b64 exec, 0xffff')
        e(f'buffer_store_dword v250, v251, {sr(S_WS)}, 0 offen')
        e('s_mov_b64 exec, -1')

    e('.amdgcn_target "amdgcn-amd-amdhsa--gfx950"')
    e('.text')
    e(f'.globl {KN}')
    e('.p2align 8')
    e(f'.type {KN},@function')
    e(f'{KN}:')
    e(f's_cmp_ge_u32 s2, {NWG}')
    e('s_cbranch_scc1 L_end')
    stamp(0)
    if o.padto and o.padev != 'm0': e('s_memrealtime s[100:101]')
    e('s_load_dwordx4 s[4:7], s[0:1], 0')
    e('s_load_dwordx4 s[8:11], s[0:1], 16')
    e('s_load_dwordx2 s[12:13], s[0:1], 32')
    e('v_lshrrev_b32 v2, 6, v0')
    e('v_and_b32 v1, 63, v0')
    e(f'v_readfirstlane_b32 s{WAVE}, v2')
    def decode():
        e('s_and_b32 s44, s2, 7')
        e('s_lshr_b32 s45, s2, 3')
        e('s_mul_i32 s46, s44, 31')
        e('s_min_u32 s44, s44, 4')
        e('s_add_u32 s46, s46, s44')
        e('s_add_u32 s46, s46, s45')
        if o.map == 0:
            e('s_mul_hi_u32 s47, s46, 68174085')
            e('s_mul_i32 s48, s47, 63')
            e('s_sub_u32 s48, s46, s48')
            e(f's_mul_hi_u32 s{NB}, s48, 613566757')
            e(f's_mul_i32 s49, s{NB}, 7')
            e('s_sub_u32 s49, s48, s49')
            e('s_mul_i32 s47, s47, 7')
            e('s_add_u32 s47, s47, s49')
        elif o.map == 1:
            e('s_mul_hi_u32 s47, s46, 477218589')
            e('s_mul_i32 s48, s47, 9')
            e(f's_sub_u32 s{NB}, s46, s48')
        else:
            e('s_mul_hi_u32 s47, s46, 34087043')
            e('s_mul_i32 s48, s47, 126')
            e('s_sub_u32 s48, s46, s48')
            e(f's_mul_hi_u32 s{NB}, s48, 306783379')
            e(f's_mul_i32 s49, s{NB}, 14')
            e('s_sub_u32 s49, s48, s49')
            e('s_mul_i32 s47, s47, 14')
            e('s_add_u32 s47, s47, s49')
        e(f's_and_b32 s{PAR}, s47, 1')
        e('s_lshr_b32 s47, s47, 1')
        e('s_cmp_ge_u32 s47, 7')
        e(f's_cselect_b32 s{BOFF}, 1152000, 0')
        e('s_cselect_b32 s48, 7, 0')
        e(f's_sub_u32 s{MB}, s47, s48')
        e(f's_mul_i32 s{XB}, s{MB}, 576')
        e(f's_add_u32 s{XB}, s{XB}, s{PAR}')
        e(f's_sub_u32 s{XB}, s{XB}, 60')
        e(f's_mul_i32 s{XB}, s{XB}, 288')
    e(f's_cmp_ge_u32 s{WAVE}, 4')
    e('s_cbranch_scc1 L_helper')
    if o.cpf:
        e('s_lshr_b32 s44, s2, 3')
        e(f's_lshl_b32 s45, s{WAVE}, 5')
        e('s_add_u32 s44, s44, s45')
        e('s_sub_u32 s44, s44, 26')
        e('s_cmp_ge_u32 s44, 5')
        e('s_cbranch_scc1 L_main')
        e('s_getpc_b64 s[46:47]')
        e('L_pc:')
        e('s_lshl_b32 s44, s44, 13')
        e('v_lshl_add_u32 v2, v1, 7, s44')
        e('v_min_u32 v2, L_codeend-L_pc-4, v2')
        e('global_load_dword v63, v2, s[46:47]')
    if o.hfirst: e('s_branch L_main')
    mark = {'main0': len(e.L)}
    e('L_main:')
    e(f's_mov_b32 s{MASK}, 0xffff0000')
    e(f's_mov_b32 s{NPOLL}, 0')
    if o.diag: e('s_mov_b32 s95, 0')
    decode()

    VXO, VXOR, VXD, VXDR, VWL, VEX, VEXP, VOUT = 30, 31, 32, 33, 34, 35, 36, 37
    VF = 40
    VA = 48
    VCL = 60
    e('v_mul_u32_u24 v3, 3641, v0')
    e('v_lshrrev_b32 v3, 16, v3')
    e('v_mul_u32_u24 v2, 18, v3')
    e('v_sub_u32 v2, v0, v2')
    e('v_mul_u32_u24 v3, 1152, v3')
    e('v_lshl_add_u32 v3, v2, 4, v3')
    e(f's_add_u32 s46, s{XB}, 576')
    e(f'v_add_u32 v{VA}, s46, v3')
    e('v_mov_b32 v5, 16192')
    e('v_mov_b32 v6, 17056')
    for k in range(1, 12):
        e('v_cmp_le_u32 vcc, 14, v2')
        e('v_add_u32 v3, 4, v2')
        e('v_subrev_u32 v4, 14, v2')
        e('v_cndmask_b32 v7, v5, v6, vcc')
        e('v_cndmask_b32 v2, v3, v4, vcc')
        e(f'v_add_u32 v{VA+k}, v{VA+k-1}, v7')
    e(f's_lshl_b32 s50, s{WAVE}, 10')
    e(f's_add_u32 s50, s50, {X_O}')
    e(f's_add_u32 s51, s50, {4096*11}')
    e('s_movk_i32 s49, 4096')
    if o.orev:
        e(f's_bitcmp0_b32 s{NB}, 0')
        e('s_cbranch_scc1 L_fwd')
        for k in range(5): e(f'v_swap_b32 v{VA+k}, v{VA+10-k}')
        e(f's_add_u32 s50, s50, {4096*10}')
        e('s_movk_i32 s49, -4096')
        e('L_fwd:')
    e(f'v_mov_b32 v{VF+1}, {CNT}')
    for r in range(4, 8): e(f'v_mov_b32 v{r}, 0')
    e(f'ds_write_b128 v{VF+1}, v[4:7]')
    e(f'ds_write_b128 v{VF+1}, v[4:7] offset:16')
    e('s_waitcnt lgkmcnt(0)')
    e(f's_load_dword s{TAG}, s[12:13], {NONCE}')
    srd(e, S_X, 4, 1152000, add=BOFF)
    def odma(k):
        e(f's_mov_b32 m0, s{51 if k == 11 else 50}')
        e('s_add_u32 s50, s50, s49')
        e(f'buffer_load_dwordx4 v{VA+k}, {sr(S_X)}, 0 offen lds')
    def etouch():
        e(f'buffer_load_dword v62, v9, {sr(S_X)}, 0 offen')
    if o.mtouch and o.tskip:
        e('s_lshr_b32 s47, s2, 4')
        e('s_lshr_b32 s47, 0x33, s47')
        e('s_lshl_b32 s47, s47, 31')
    if o.mtouch:
        e('v_min_u32 v8, 39, v1')
        e('v_lshrrev_b32 v9, 2, v8')
        e(f's_mul_i32 s46, s{WAVE}, 10')
        e('v_add_u32 v9, s46, v9')
        e(f'v_mul_u32_u24 v9, {4*1152}, v9')
        e('v_and_b32 v8, 3, v8')
        e('v_mul_u32_u24 v8, 92, v8')
        e(f's_and_b32 s46, s{NB}, {7 if o.mtouch == 4 else 3}')
        e(f's_mul_i32 s46, s46, {576 if o.mtouch == 4 else 1152}')
        e(f's_add_u32 s46, s46, s{XB}')
        e('v_add3_u32 v9, v9, v8, s46')
        if o.tskip == 1: e('v_or_b32 v9, s47, v9')
    if o.mtouch == 4 and o.tskip == 2:
        e('s_cmp_eq_u32 s47, 0')
        e('s_cbranch_scc1 L_tn')
        e('s_waitcnt lgkmcnt(0)')
        e('L_tn:')
    if o.mtouch in (2, 4): etouch()
    if o.padto and o.padev == 'm13':
        e('s_waitcnt vmcnt(0)'); stamp(13)
    if o.padto and o.padev == 'm14':
        odma(0); e('s_sub_u32 s50, s50, s49'); e('s_waitcnt vmcnt(0)'); stamp(14)
    if o.padto: stamp(10)
    for k in range(o.opre): odma(k)
    e('s_barrier')
    stamp(1)
    if o.mtouch == 3: etouch()
    for k in range(o.opre, 12):
        if k == 11:
            e(f's_cmp_lg_u32 s{WAVE}, 0')
            e('s_cbranch_scc1 L_o11')
        odma(k)
    e('L_o11:')
    if o.mtouch == 1: etouch()
    srd(e, S_WS, 12, WS_REC)
    if o.epoll:
        assert o.mtouch in (1, 4) and o.tskip
        e(f's_and_b32 s{TYP}, s{WAVE}, 1')
        e(f's_lshl_b32 s{FO}, s{TYP}, 13')
        e('s_mov_b32 s96, s47')
        e('s_xor_b32 s46, s47, 0x80000000')
        e(f'v_min_u32 v{VF}, 31, v1')
        e(f'v_lshlrev_b32 v{VF}, 7, v{VF}')
        e(f'v_or_b32 v2, s46, v{VF}')
        e(f'buffer_load_dword v{VF+4}, v2, {sr(S_WS)}, s{FO} offen sc1')
    srd(e, S_OUT, 8, 1152000, add=BOFF)
    srd(e, S_DBG, 10, 256)
    e('v_and_b32 v2, 15, v1')
    e('v_lshrrev_b32 v3, 4, v1')
    e('v_subrev_u32 v5, 4, v2')
    e('v_add_u32 v6, 8, v2')
    e('v_cmp_gt_u32 vcc, 4, v2')
    e('v_cmp_le_u32 s[46:47], 12, v2')
    e(f's_and_b32 s{TYP}, s{WAVE}, 1')
    e(f's_lshr_b32 s48, s{WAVE}, 1')
    e('v_cndmask_b32 v5, v5, v6, vcc')
    e('v_cndmask_b32 v5, v5, v2, s[46:47]')
    e('v_mul_u32_u24 v5, 9, v5')
    e('v_mul_u32_u24 v4, 288, v5')
    e('v_lshl_add_u32 v6, v3, 4, v4')
    e('v_and_b32 v7, 1, v3')
    e('v_lshl_add_u32 v7, v7, 4, v4')
    e('v_lshrrev_b32 v8, 1, v3')
    e('v_mul_u32_u24 v8, 2304, v8')
    e('v_add_u32 v7, v7, v8')
    e('v_add_u32 v7, 256, v7')
    e(f's_mul_i32 s49, s{TYP}, {X_D1}')
    e(f'v_add_u32 v{VXO}, {X_O}, v6')
    e(f'v_add_u32 v{VXOR}, {X_O}, v7')
    e(f'v_add_u32 v{VXD}, s49, v6')
    e(f'v_add_u32 v{VXDR}, s49, v7')
    e('v_lshlrev_b32 v6, 4, v1')
    e(f's_mul_i32 s49, s{WAVE}, 9216')
    e(f's_add_u32 s49, s49, {X_O}')
    e(f'v_add_u32 v{VEX}, s49, v6')
    e(f's_xor_b32 s49, s{WAVE}, 1')
    e('s_mul_i32 s49, s49, 9216')
    e(f's_add_u32 s49, s49, {X_O}')
    e(f'v_add_u32 v{VEXP}, s49, v6')
    e('v_and_b32 v8, 0x39, v1')
    e('v_bfe_u32 v9, v1, 1, 1')
    e('v_lshl_add_u32 v8, v9, 2, v8')
    e('v_bfe_u32 v9, v1, 2, 1')
    e('v_lshl_add_u32 v8, v9, 1, v8')
    e(f'v_lshlrev_b32 v{VWL}, 4, v8')
    e(f's_mul_i32 s49, s{TYP}, 576')
    e(f's_add_u32 s49, s49, s{XB}')
    e(f's_add_u32 s49, s49, {60*288}')
    e(f's_lshl_b32 s50, s{NB}, 5')
    e('s_add_u32 s49, s49, s50')
    e('s_lshl_b32 s50, s48, 4')
    e('s_add_u32 s49, s49, s50')
    e('v_mul_u32_u24 v8, 1152, v5')
    e('v_lshl_add_u32 v8, v3, 2, v8')
    e(f'v_add_u32 v{VOUT}, s49, v8')
    e(f'v_add_u32 v{VOUT+1}, 3456, v{VOUT}')
    e(f'v_add_u32 v{VOUT+2}, 6912, v{VOUT}')
    e(f's_lshl_b32 s49, s{NB}, 1')
    e('s_add_u32 s49, s49, s48')
    e(f's_mul_i32 s49, s49, {NSTR}')
    e(f's_mul_i32 s{WSO}, s{TYP}, {NSTEP*1024}')
    e(f's_add_u32 s{WSO}, s{WSO}, s49')
    e(f's_add_u32 s{WSO}, s{WSO}, {WOFF + (16384 if o.tagp else 0)}')
    if o.tagp:
        e(f's_lshl_b32 s96, s{TYP}, 15')
        e('s_add_u32 s96, s96, s49')
        e(f's_add_u32 s96, s96, {WOFF + 2*NSTEP*1024}')
    e(f's_mov_b32 s{C2L}, 0x4038aa3b'); e(f's_mov_b32 s{C2L+1}, 0x4038aa3b')
    e(f's_mov_b32 s{CNL}, 0xbfb8aa3b'); e(f's_mov_b32 s{CNL+1}, 0xbfb8aa3b')
    e(f's_mov_b32 s{C60}, 0x42700000')
    e(f'v_min_u32 v{VF}, 31, v1')
    e(f'v_lshlrev_b32 v{VF}, 7, v{VF}')
    e(f'v_min_u32 v{VF+6}, 47, v1')
    e(f'v_lshlrev_b32 v{VF+6}, 7, v{VF+6}')
    e(f'v_mov_b32 v{VF+2}, 1')
    e('s_lshl_b32 s46, s48, 2')
    e(f'v_add_u32 v{VF+5}, s46, v{VF+1}')
    e(f's_or_b32 s46, s2, s{WAVE}')
    e('v_or_b32 v2, s46, v1')
    e('v_cmp_eq_u32 vcc, 0, v2')
    e(f'v_mov_b32 v{VCL}, -16')
    e(f'v_mov_b32 v{VCL+1}, -16')
    e(f'v_mov_b32 v3, {NONCE}')
    e(f'v_cndmask_b32 v{VCL}, v{VCL}, 4, vcc')
    e(f'v_cndmask_b32 v{VCL+1}, v{VCL+1}, v3, vcc')
    if o.yall:
        e(f's_lshr_b32 s46, s{NB}, 1')
        e(f's_add_u32 s47, s{NB}, 9')
        e('s_lshr_b32 s47, s47, 1')
        e('v_mov_b32 v4, s46')
        e('v_mov_b32 v5, s47')
        e('v_cmp_gt_u32 vcc, 32, v1')
        e('v_and_b32 v2, 7, v1')
        e('v_and_b32 v3, 15, v1')
        e('v_cndmask_b32 v4, v5, v4, vcc')
        e('v_min_u32 v3, 11, v3')
        e('v_mad_u32_u24 v2, v2, 9, v4')
        e('v_mad_u32_u24 v3, v3, 9, v4')
        e('v_lshlrev_b32 v2, 7, v2')
        e('v_lshlrev_b32 v3, 7, v3')
    e(f's_lshl_b32 s{FO}, s{TYP}, 13')
    if o.warmb:
        e(f's_cmp_eq_u32 s{TYP}, 1')
        e('s_cbranch_scc1 L_warmB')
        e('L_warmret:')
    e(f's_waitcnt vmcnt({(1 if o.mtouch == 1 else 0) + o.epoll}) lgkmcnt(0)')
    stamp(2)
    if o.padto and o.padev in ('m11', 'm12'):
        e('s_lshr_b32 s46, s2, 4')
        e('s_lshr_b32 s46, 0x33, s46')
        e('s_bitcmp1_b32 s46, 0')
        e(f's_cbranch_scc{1 if o.padev == "m11" else 0} L_pk')
        e('s_memrealtime s[100:101]'); e('s_waitcnt lgkmcnt(0)')
        e('L_pk:')
    e('s_mov_b64 exec, 1')
    e(f'ds_add_u32 v{VF+1}, v{VF+2} offset:8')
    e('s_mov_b64 exec, -1')
    e(f's_add_u32 s{TAG}, s{TAG}, {TAGINC}')
    e(f'v_mov_b32 v{VF+3}, s{TAG}')
    def flagwait(tag, vaddr, back):
        e(f'L_fw{tag}:')
        if o.diag and len(tag) == 2: e(f's_add_u32 s95, s95, {1 << (5 * int(tag[1]))}')
        e(f'buffer_load_dword v{VF+4}, v{vaddr}, {sr(S_WS)}, s{FO} offen sc1')
        e(f'ds_read_b32 v{VF+7}, v{VF+1} offset:12')
        e(f's_add_u32 s{NPOLL}, s{NPOLL}, 1')
        e('s_waitcnt vmcnt(0) lgkmcnt(0)')
        e(f'v_cmp_ne_u32 vcc, v{VF+3}, v{VF+4}')
        e(f'v_readfirstlane_b32 s46, v{VF+7}')
        e('s_nop 3')
        e(f's_cbranch_vccz {back}')
        e('s_cmp_lg_u32 s46, 0')
        e(f's_cbranch_scc1 {back}')
        e(f's_cmp_lg_u32 s{NPOLL}, {o.maxpoll}')
        e(f's_cbranch_scc1 L_fw{tag}')
        e(f'v_mov_b32 v{VF+7}, 0x10000')
        e('s_mov_b64 exec, 1')
        e(f'ds_add_u32 v{VF+1}, v{VF+7} offset:4')
        e('s_mov_b64 exec, -1')
        e(f's_branch L_fw{tag}')
    if o.epoll:
        e('s_cmp_eq_u32 s96, 0')
        e('s_cbranch_scc1 L_gate')
        e('s_waitcnt vmcnt(0)')
        e(f'v_cmp_ne_u32 vcc, v{VF+3}, v{VF+4}')
        e('s_nop 4')
        e('s_cbranch_vccz L_go')
    if o.gate:
        e('L_gate:')
        e(f'ds_read_b32 v{VF+4}, v{VF+1} offset:8')
        e('s_waitcnt lgkmcnt(0)')
        e(f'v_and_b32 v{VF+4}, 0xffff, v{VF+4}')
        e(f'v_cmp_gt_u32 vcc, 0x400, v{VF+4}')
        e('s_nop 4')
        e('s_cbranch_vccz L_gate2')
        e('s_sleep 1')
        e('s_branch L_gate')
        e('L_gate2:')
    if o.ppoll:
        e(f'buffer_load_dword v{VF+4}, v{VF}, {sr(S_WS)}, s{FO} offen sc1')
        e('L_pp:')
        for a_, b_ in ((VF + 4, 62), (62, VF + 4)):
            e(f's_sleep {o.ppoll}')
            e(f'buffer_load_dword v{b_}, v{VF}, {sr(S_WS)}, s{FO} offen sc1')
            e('s_waitcnt vmcnt(1)')
            e(f'v_cmp_ne_u32 vcc, v{VF+3}, v{a_}')
            e(f's_add_u32 s{NPOLL}, s{NPOLL}, 1')
            e('s_nop 3')
            e('s_cbranch_vccz L_go')
        e(f's_cmp_lt_u32 s{NPOLL}, 40')
        e('s_cbranch_scc1 L_pp')
        e(f's_mov_b32 s{NPOLL}, 0')
    if o.p0plain:
        e(f'buffer_load_dword v{VF+4}, v{VF}, {sr(S_WS)}, s{FO} offen')
        e('s_waitcnt vmcnt(0)')
        e(f'v_cmp_ne_u32 vcc, v{VF+3}, v{VF+4}')
        e('s_nop 4')
        e('s_cbranch_vccz L_go')
    if o.onepoll:
        e(f's_cmp_lt_u32 s{WAVE}, 2')
        e('s_cbranch_scc1 L_fw0')
        e('L_op:')
        e(f'ds_read_b32 v{VF+7}, v{VF+1} offset:8')
        e('s_waitcnt lgkmcnt(0)')
        e(f's_add_u32 s46, s{TYP}, 16')
        e(f'v_lshrrev_b32 v{VF+7}, s46, v{VF+7}')
        e(f'v_and_b32 v{VF+7}, 1, v{VF+7}')
        e(f'v_cmp_eq_u32 vcc, 0, v{VF+7}')
        e('s_nop 4')
        e('s_cbranch_vccnz L_op')
        e('s_branch L_go2')
    if not o.tagp: flagwait('0', VF, 'L_go')
    e('L_go:')
    if o.tagp: e('s_mov_b32 s50, s96')
    if o.onepoll:
        e(f's_lshl_b32 s46, 0x10000, s{TYP}')
        e(f'v_mov_b32 v{VF+7}, s46')
        e('s_mov_b64 exec, 1')
        e(f'ds_or_b32 v{VF+1}, v{VF+7} offset:8')
        e('s_mov_b64 exec, -1')
        e('L_go2:')
    stamp(3)
    e('L_gw:')
    e(f'ds_read_b32 v{VF+7}, v{VF+1} offset:8')
    e('s_waitcnt lgkmcnt(0)')
    e(f'v_and_b32 v{VF+7}, 0xff, v{VF+7}')
    e(f'v_cmp_ne_u32 vcc, 4, v{VF+7}')
    e('s_nop 4')
    e('s_cbranch_vccnz L_gw')
    stamp(4)
    e(f's_setprio {o.mprio}')
    e(f's_cmp_eq_u32 s{TYP}, 1')
    e('s_cbranch_scc1 L_typeB')

    ACC = {'P': 64, 'Q': 100}
    WR, TMP = 136, 224
    XRING = [200 + 4 * i for i in range(6)]
    XWIN = [4 + 4 * i for i in range(6)] + [240 + 4 * i for i in range(4)]
    VC = 28
    PF = o.pf
    GT = 98
    wflags = {0: '', 1: ' sc1', 2: ' nt', 3: ' sc0'}[o.wsc1]
    for typ, S in enumerate(streams()):
        if typ == 1:
            e('.p2align 6')
            if o.warmb: e('L_warmB:'); e('s_branch L_warmret')
            e('L_typeB:')
        ops = []
        vstart = {}
        lastv = o.vt - 1
        v0 = 0
        G0 = 0
        if o.flat0:
            for g in range(16):
                vstart[g] = len(ops)
                for j in (range(9) if g % 2 == 0 or not o.flatzz else range(8, -1, -1)): ops.append((g, j))
            v0 = G0 = 16
        while v0 <= lastv:
            ch = 1 if v0 < o.chfrom + G0 else min(o.chain, lastv + 1 - v0)
            n0 = len(ops)
            for j in range(8, -1, -1):
                us = range(ch) if j % 2 == 0 else range(ch - 1, -1, -1)
                first_ = [u for u in us if v0 + u - j == 0 or (0 < v0 + u - j < NSTEP and S[v0+u-j][4] == 'Q' and S[v0+u-j-1][4] == 'P')]
                if first_: us = range(ch)
                for u in us:
                    if G0 <= v0 + u - j < NSTEP: ops.append((v0 + u - j, j))
            for u in range(ch): vstart[v0 + u] = n0 + (len(ops) - n0) * u // ch
            v0 += ch
        ntail = len(ops)
        if o.tail:
            for j in range(9):
                for g in range(o.vt - j, NSTEP): ops.append((g, j))
        assert len(ops) == NSTEP * 9 and len(set(ops)) == len(ops)
        N = len(ops)
        def key(n):
            g, j = ops[n]
            pid, arr, ch, c, acc = S[g]
            k = (pid, arr, ch, c + j)
            if n >= ntail and g < GT: k = k + ((n,) if not o.hold else ('h',))
            return k
        first, last = {}, {}
        for n in range(N):
            first.setdefault(key(n), n); last[key(n)] = n
        wfirst, wlast = {}, {}
        for n, (g, j) in enumerate(ops):
            wfirst.setdefault(g, n); wlast[g] = n
        tasks = []
        for k, n0 in first.items():
            win = o.tail and k[2] == 'rem' and k[1] == 'D'
            la = o.xla if n0 < ntail else 6
            if n0 >= ntail and ops[n0][1] == 0: la = o.tla
            elif win: la = 12
            tasks.append([n0 - la, n0 - 1, 'X', k])
        for g in range(NSTEP):
            rel = -100 + g if g < o.pf0 else max(0, wfirst[g] - 9 * PF)
            if o.tagp and g < 16:
                rel = -100 + g if g < 4 else max(0, wfirst[g] - 9 * o.tpf)
                tasks.append([rel, wfirst[g & ~1] - 9, 'W', g])
                continue
            tasks.append([rel, wfirst[g] - 1, 'W', g])
        def at(v, off=0): return vstart[v] + off
        firstD = min(n for n in range(N) if S[ops[n][0]][1] == 'D')
        lastO = max(n for n in range(N) if S[ops[n][0]][1] == 'O')
        lastP = {j: max(n for n in range(N) if ops[n][1] == j and S[ops[n][0]][4] == 'P') for j in range(9)}
        slow = []
        vused = set()
        def check(v, off, cnt, tag):
            tasks.append([at(v - 1, 3), at(v - 1, 8), 'L', (f'ds_read_b32 v{VC}, v{VF+1} offset:{off}', ('c', tag))])
            tasks.append([at(v, 0), at(v, 1), 'C', (f'v_cmp_ne_u32 vcc, {cnt}, v{VC}', ('c', tag))])
            tasks.append([at(v, 6), at(v, 7), 'I', [f's_cbranch_vccnz L_slow{typ}{tag}', f'L_back{typ}{tag}:']])
            slow.append((tag, off, cnt))
            vused.add(v)
            return at(v, 8)
        def add1(pos, off):
            tasks.append([pos, pos + 4, 'A', off])
        vD = [v for v in vstart if vstart[v] <= firstD - o.xla][-1] - 1
        okD = check(vD, 16, 4, 'D')
        assert okD <= firstD - o.xla
        add1(lastO, 20)
        VP = 47
        okR = check(VP, 20, 4, 'R')
        for j in range(9):
            assert lastP[j] + 12 < at(VP + 1 + j, 2)
            tasks.append([at(VP + 1 + j, 2), at(VP + 1 + j, 8), 'L', (f'ds_write_b128 v{VEX}, {vr(ACC["P"]+4*j,4)} offset:{1024*j}', ('pw', j))])
        tasks.append([at(VP + 10, 0), at(VP + 10, 4), 'A', 'pair'])
        VQ = VP + 13
        okP = check(VQ, 'pair', 2, 'P')
        for j in range(9):
            tasks.append([at(VQ + 1 + j, 2), at(VQ + 1 + j, 8), 'L', (f'ds_read_b128 {vr(TMP+4*(j&1),4)}, v{VEXP} offset:{1024*j}', ('pr', j))])
            v = VQ + 2 + j
            pos = at(v, 8 - (j + 2) - 1) if j <= 6 else at(v, 8 - (j - 7) - 1)
            sh = 1 if j >= 7 else 0
            if o.chain > 1:
                own = [n for n in range(N) if ops[n][1] == j]
                pos = [a_ + 10 for a_, b_ in zip(own, own[1:]) if b_ - a_ >= 14 and a_ + 9 >= at(v, 0) ][0]
                sh = 0
                tasks[-1][0] = pos - 9; tasks[-1][1] = pos - 4
                tasks[-1][3] = (f'ds_read_b128 {vr(TMP+4*(j&3),4)}, v{VEXP} offset:{1024*j}', ('pr', j))
            tasks.append([pos - 1 + sh, pos - 1 + sh, 'Q', (j, 0)])
            tasks.append([pos + sh, pos + sh, 'Q', (j, 1)])
        if typ == 0:
            tasks.append([at(64, 4), at(64, 8), 'S', f'buffer_store_dword v{VCL+1}, v{VCL}, {sr(S_DBG)}, 0 offen sc1'])
            tasks.append([at(84, 4), at(84, 8), 'S', f'buffer_store_dword v{VF+3}, v{VCL+1}, {sr(S_WS)}, 0 offen sc1'])
        fslow = []
        kslow = []
        if o.tagp:
            for g in range(0, 16, 2):
                n0 = wfirst[g]
                if g < 4: continue
                tasks.append([n0 - 8, n0 - 7, 'K', g])
                tasks.append([n0 - 2, n0 - 1, 'I', ['s_cmp_lg_u64 s[48:49], 0', f's_cbranch_scc1 L_ks{typ}{g}', f'L_kb{typ}{g}:']])
        passes = {}
        for g in range(NSTEP): passes.setdefault(S[g][0], g)
        need = [(passes[1], VF, 32 + 64 * typ), (32, VF + 6, 128), (passes[4], VF, 176), (passes[5], VF, 208), (passes[6], VF + 6, 240)]
        if o.yall: need[2:] = [(passes[4], 2, 176), (passes[5], 2, 176 + 72), (passes[6], 3, 176 + 144)]
        for ci, (gn, va, idx) in enumerate(need):
            v = gn - o.pfcs[ci] - 1
            while v in vused: v -= 1
            tasks.append([at(v - o.fleads[ci], 4), at(v - o.fleads[ci], 8), 'F', (va, idx, ci)])
            tasks.append([at(v, 0), at(v, 1), 'G', ci])
            tasks.append([at(v, 6), at(v, 7), 'I', [f's_cbranch_vccnz L_fw{typ}{ci}', f'L_fb{typ}{ci}:']])
            fslow.append((ci, va))
            assert v not in vused, v
            for t in tasks:
                if t[2] == 'W' and (t[3] >= gn): t[0] = max(t[0], at(v, 8))
        tasks.append([at(v + 1, 2), at(v + 1, 8), 'A', 4])
        if typ == 0:
            for lvl, v in enumerate(o.trig): tasks.append([at(v, 2), at(v, 8), 'P', lvl + 1])
        tasks.sort(key=lambda t: (t[0], t[1]))
        vq, lq = [], []
        dirty = [False]
        xreg, busy = {}, {}
        wn = [0]
        wr = {}
        lastw = [-100]
        later = []
        BIG = [WR + 4 * i for i in range(16)] + XWIN + [ACC['P'] + 4 * i for i in range(9)]
        for i in range(9): busy[ACC['P'] + 4 * i] = at(VP + 12)
        until = {}
        if o.chain > 1:
            BIG += XRING + [VA, VA + 4, VA + 8]
            for i in range(9):
                BIG.append(ACC['Q'] + 4 * i)
                until[ACC['Q'] + 4 * i] = min(n for n in range(N) if ops[n][1] == i and S[ops[n][0]][4] == 'Q') - 3
        def freeregs(n, end): return [x for x in BIG if busy.get(x, -1) <= n and end < until.get(x, 10**9)]
        def freepairs(n, end):
            f_ = set(freeregs(n, end))
            return [x for x in sorted(f_) if x % 8 == PAR8.get(x, -1) and x + 4 in f_]
        PAR8 = {x: x % 8 for x in list(range(WR, WR + 64, 8)) + [4, 12, 20, 240, 248, 200, 208, 216, 100, 108, 116, 124, VA]}
        def kcheck(g):
            vwait(g + 1)
            for i, gg in enumerate((g, g + 1)):
                a_ = wr[gg] - 2
                em(f'v_bitop3_b32 v{VC+i}, v{a_+1}, v{a_+6}, v{VF+3} bitop3:0x7e')
            em(f'v_or_b32 v{VC}, v{VC}, v{VC+1}')
            em(f'v_cmp_ne_u32 s[48:49], 0, v{VC}')
            kslow.append((g, wr[g] - 2, wr[g + 1] - 2))
        def wok(t, n):
            if t[2] != 'W': return True
            if t[3] != wn[0]: return False
            if o.tagp and t[3] < 16:
                return bool(freepairs(n, wlast[t[3]])) and (n - lastw[0] >= 2 or t[1] - n <= 4)
            free = len(freeregs(n, wlast[t[3]]))
            if t[1] - n <= 9 * 3: return free > 0
            return n - lastw[0] >= o.wgap and free > o.wres
        since = {}
        fill = []
        def em(x):
            e(x)
            if not x.endswith(':'):
                for jj in since: since[jj] += 1
        def lwait(tag):
            if tag not in lq: return
            i = lq.index(tag)
            em(f's_waitcnt lgkmcnt({0 if dirty[0] else len(lq)-1-i})')
            if dirty[0]: lq.clear(); dirty[0] = False
            else: del lq[:i + 1]
        def vwait(g):
            if g not in vq: return
            i = vq.index(g)
            em(f's_waitcnt vmcnt({len(vq)-1-i})')
            del vq[:i + 1]
        def run(t, n):
            kind, p = t[2], t[3]
            if kind == 'X':
                pool = BIG if (o.chain > 1 or p[-1] == 'h' or (p[2] == 'rem' and p[1] == 'D')) else XRING
                r = [x for x in pool if busy.get(x, -1) <= n and last[p] < until.get(x, 10**9)]
                assert r, ('no x register', p, n)
                r = min(r, key=lambda x: (until.get(x, 10**9), busy.get(x, -1)))
                busy[r] = last[p]; xreg[p] = r
                arr, ch, s_ = p[1], p[2], p[3]
                if o.nolds and n > 9 * 30: return
                if ch == 'rem': em(f'ds_read_b128 {vr(r,4)}, v{VXOR if arr == "O" else VXDR} offset:{288*s_}')
                else: em(f'ds_read_b128 {vr(r,4)}, v{VXO if arr == "O" else VXD} offset:{64*ch+288*s_}')
                lq.append(p)
            elif kind == 'W':
                g = p
                if o.tagp and g < 16:
                    r = min(freepairs(n, wlast[g]), key=lambda x: (until.get(x, 10**9), busy.get(x, -1)))
                    busy[r] = busy[r + 4] = wlast[g]; wr[g] = r + 2
                    assert g == wn[0]; wn[0] += 1
                    lastw[0] = n
                    em(f'buffer_load_dwordx4 {vr(r,4)}, v{VWL}, {sr(S_WS)}, s50 offen offset:{2048*(g%2)}')
                    em(f'buffer_load_dwordx4 {vr(r+4,4)}, v{VWL}, {sr(S_WS)}, s50 offen offset:{2048*(g%2)+1024}')
                    vq.append(('h', g)); vq.append(g)
                    if g % 2 == 1:
                        if n < 0: em('s_add_u32 s50, s50, 4096')
                        else: later.append('s_add_u32 s50, s50, 4096')
                    return
                r = min(freeregs(n, wlast[g]), key=lambda x: (until.get(x, 10**9), busy.get(x, -1)))
                busy[r] = wlast[g]; wr[g] = r
                assert g == wn[0]; wn[0] += 1
                lastw[0] = n
                if o.now and g > 40: return
                if o.wsame and g > 40:
                    em(f'buffer_load_dwordx4 {vr(r,4)}, v{VWL}, {sr(S_WS)}, s{WSO} offen offset:{1024*(g%4)}{wflags}'); vq.append(g); return
                em(f'buffer_load_dwordx4 {vr(r,4)}, v{VWL}, {sr(S_WS)}, s{WSO} offen offset:{1024*(g%4)}{wflags}')
                if g % 4 == 3:
                    if n < 0: em(f's_add_u32 s{WSO}, s{WSO}, 4096')
                    else: later.append(f's_add_u32 s{WSO}, s{WSO}, 4096')
                vq.append(g)
            elif kind == 'L':
                em(p[0].replace('offset:pair', 'offset:24').replace(f'v{VF+1} offset:24', f'v{VF+5} offset:24')); lq.append(p[1])
            elif kind == 'C':
                lwait(p[1]); em(p[0])
            elif kind == 'I':
                for x in p: em(x)
            elif kind == 'A':
                em('s_mov_b64 exec, 1')
                if p == 'pair': em(f'ds_add_u32 v{VF+5}, v{VF+2} offset:24')
                else: em(f'ds_add_u32 v{VF+1}, v{VF+2} offset:{p}')
                em('s_mov_b64 exec, -1')
                lq.append(('a', p))
            elif kind == 'Q':
                p, hf = p
                lwait(('pr', p))
                q = ACC['Q'] + 4 * p; t_ = TMP + 4 * (p & (3 if o.chain > 1 else 1))
                for i in (2 * hf, 2 * hf + 1): em(f'v_add_f32 v{q+i}, v{q+i}, v{t_+i}')
            elif kind == 'S':
                assert not any(isinstance(x, tuple) and x[0] == 's' for x in vq)
                em(p); vq.append(('s', n))
            elif kind == 'F':
                em(f's_mov_b32 s{FO}, {128*p[1]}')
                em(f'buffer_load_dword v{VF+4}, v{p[0]}, {sr(S_WS)}, s{FO} offen {o.fflags}'); vq.append(('f', p[2]))
            elif kind == 'K':
                kcheck(p)
            elif kind == 'G':
                vwait(('f', p)); em(f'v_cmp_ne_u32 vcc, v{VF+3}, v{VF+4}')
            elif kind == 'P':
                em(f'v_mov_b32 v{VF+7}, {p}')
                em('s_mov_b64 exec, 1')
                em(f'ds_max_u32 v{VF+1}, v{VF+7}')
                em('s_mov_b64 exec, -1')
                lq.append(('p', p))
        def epi(j, pk):
            q = ACC['Q'] + 4 * j
            t = TMP + 8 * (j & 1)
            I = []
            if pk:
                I.append(f'v_pk_mul_f32 {vr(t,2)}, {vr(q,2)}, s[{C2L}:{C2L+1}]')
                I.append(f'v_pk_mul_f32 {vr(t+2,2)}, {vr(q+2,2)}, s[{CNL}:{CNL+1}]')
            else:
                for i in (0, 1): I.append(f'v_mul_f32 v{t+i}, s{C2L}, v{q+i}')
                for i in (2, 3): I.append(f'v_mul_f32 v{t+i}, s{CNL}, v{q+i}')
            I.append(f'v_min_f32 v{t}, s{C60}, v{t}')
            I.append(f'v_min_f32 v{t+1}, s{C60}, v{t+1}')
            for i in (0, 1, 2, 3): I.append(f'v_exp_f32 v{t+i}, v{t+i}')
            if pk:
                I.append(f'v_pk_add_f32 {vr(t+4,2)}, {vr(t,2)}, 1.0 op_sel_hi:[1,0]')
                I.append(f'v_pk_add_f32 {vr(t+6,2)}, {vr(t,2)}, -1.0 op_sel_hi:[1,0]')
                I.append(f'v_pk_fma_f32 {vr(t+4,2)}, {vr(t+4,2)}, {vr(t+2,2)}, {vr(t+4,2)}')
            else:
                for i in (0, 1): I.append(f'v_add_f32 v{t+4+i}, 1.0, v{t+i}')
                for i in (0, 1): I.append(f'v_fma_f32 v{t+4+i}, v{t+4+i}, v{t+2+i}, v{t+4+i}')
            I.append(f'v_rcp_f32 v{t+4}, v{t+4}')
            I.append(f'v_rcp_f32 v{t+5}, v{t+5}')
            if pk:
                I.append('s_nop 0')
                I.append(f'v_pk_mul_f32 {vr(t+6,2)}, {vr(t+6,2)}, {vr(t+4,2)}')
            else:
                for i in (0, 1): I.append(f'v_add_f32 v{t+6+i}, -1.0, v{t+i}')
                for i in (0, 1): I.append(f'v_mul_f32 v{t+6+i}, v{t+6+i}, v{t+4+i}')
            I.append(f'v_cvt_pk_bf16_f32 v{q}, v{t+6}, v{t+7}')
            I.append(f'buffer_store_dword v{q}, v{VOUT + j//3}, {sr(S_OUT)}, 0 offen offset:{1152*(j%3)} {o.oflags if j < o.oj else ""}')
            return I
        def cost(x): return 2 if x.startswith(('v_exp', 'v_rcp', 'buffer')) else 1
        while tasks and tasks[0][0] < 0: run(tasks.pop(0), -1)
        if o.tagp:
            for g in (0, 2):
                vwait(g + 1)
                for gg in (g + 4, g + 5):
                    t_ = [t for t in tasks if t[2] == 'W' and t[3] == gg][0]
                    tasks.remove(t_); run(t_, -1)
                kcheck(g)
                em('s_nop 2')
                em('s_cmp_lg_u64 s[48:49], 0')
                em(f's_cbranch_scc1 L_ks{typ}{g}')
                em(f'L_kb{typ}{g}:')
        inv = {n: v for v, n in vstart.items()}
        lastop = {j: max(n for n in range(N) if ops[n][1] == j) for j in range(9)}
        for n, (g, j) in enumerate(ops):
            if n in inv and o.padto and o.padev == 'm5' and inv[n] == o.padstep:
                e('s_memrealtime s[100:101]'); dirty[0] = True
            if n in inv and o.diag:
                v = inv[n]
                if o.diag == 2 and v in o.marks:
                    kk = o.marks.index(v)
                    e(f's_memtime s[{ST0+2*kk}:{ST0+2*kk+1}]'); dirty[0] = True
                if o.diag in (1, 4) and v == 33: stamp(5); stamp(6); dirty[0] = True
            k = key(n)
            assert k in xreg, (k, n)
            lwait(k); vwait(g)
            acc = S[g][4]
            d = ACC[acc] + 4 * j
            if g == 0: cs = '0'
            elif acc == 'Q' and S[g-1][4] == 'P': cs = vr(ACC['P'] + 4 * j, 4)
            else: cs = vr(d, 4)
            em(f'v_mfma_f32_16x16x32_bf16 {vr(d,4)}, {vr(wr[g],4)}, {vr(xreg[k],4)}, {cs}' if not o.swapab else f'v_mfma_f32_16x16x32_bf16 {vr(d,4)}, {vr(xreg[k],4)}, {vr(wr[g],4)}, {cs}')
            if n == lastop[j]: since[j] = 0
            while later: em(later.pop(0))
            budget = 2
            TC = {'X': 1, 'W': 2, 'L': 2, 'C': 1, 'I': 0, 'A': 1, 'Q': 2, 'S': 2, 'F': 2, 'G': 1, 'P': 2, 'K': 2}
            while True:
                ready = [t for t in tasks if t[0] <= n and wok(t, n)]
                if not ready: break
                t = min(ready, key=lambda t: t[1])
                assert t[1] >= n, ('late', t, n)
                if TC[t[2]] > budget and t[1] > n:
                    fit = [u for u in ready if TC[u[2]] <= budget]
                    if not fit: break
                    t = min(fit, key=lambda t: t[1])
                tasks.remove(t); run(t, n); budget -= TC[t[2]]
            for jj in sorted(since):
                if 8 <= since[jj] < 10**6:
                    fill += epi(jj, False); since[jj] = 10**6
            budget += o.nfill - 2
            while fill and budget >= cost(fill[0]):
                budget -= cost(fill[0])
                if fill[0].startswith('buffer_store'):
                    q_ = int(re.match(r'buffer_store_dword v(\d+)', fill[0]).group(1))
                    until.pop(q_, None); busy[q_] = n + 2
                em(fill.pop(0))
            assert all(t[1] > n for t in tasks), ('late', n, [t for t in tasks if t[1] <= n])
        assert not tasks
        stamp(7)
        while fill: em(fill.pop(0))
        for jj in [jj for jj in sorted(since) if since[jj] < 10**6]:
            if since[jj] < 8: em(f's_nop {8-since[jj]-1}')
            for x in epi(jj, True): em(x)
        stamp(8)
        if o.padto and o.padev[0] == 'm': padloop(typ)
        if o.diag == 1:
            e('s_waitcnt vmcnt(0)')
            stamp(9)
            dump(10)
        if o.diag == 2:
            kk = len(o.marks)
            e(f's_memtime s[{ST0+2*kk}:{ST0+2*kk+1}]')
            dump(10)
        e('s_endpgm')
        for tag, off, cnt in slow:
            e(f'L_slow{typ}{tag}:')
            e(f'ds_read_b32 v{VC}, v{VF+5 if off == "pair" else VF+1} offset:{24 if off == "pair" else off}')
            e('s_waitcnt lgkmcnt(0)')
            e(f'v_cmp_ne_u32 vcc, {cnt}, v{VC}')
            e('s_nop 4')
            e(f's_cbranch_vccnz L_slow{typ}{tag}')
            e(f's_branch L_back{typ}{tag}')
        for ci, va in fslow: flagwait(f'{typ}{ci}', va, f'L_fb{typ}{ci}')
        for g, a0_, a1_ in kslow:
            e(f'L_ks{typ}{g}:')
            if o.diag: e(f's_add_u32 s95, s95, {1 << 25}')
            e(f'ds_read_b32 v{VF+7}, v{VF+1} offset:12')
            e(f's_add_u32 s47, s96, {2048*g}')
            e('s_waitcnt lgkmcnt(0)')
            for i, a_ in enumerate((a0_, a0_ + 4, a1_, a1_ + 4)):
                e(f'buffer_load_dwordx4 {vr(a_,4)}, v{VWL}, {sr(S_WS)}, s47 offen offset:{1024*i} sc1')
            e(f'v_readfirstlane_b32 s46, v{VF+7}')
            e(f's_add_u32 s{NPOLL}, s{NPOLL}, 1')
            e('s_waitcnt vmcnt(0)')
            e('s_cmp_lg_u32 s46, 0')
            e(f's_cbranch_scc1 L_kb{typ}{g}')
            e(f'v_bitop3_b32 v{VC}, v{a0_+1}, v{a0_+6}, v{VF+3} bitop3:0x7e')
            e(f'v_bitop3_b32 v{VC+1}, v{a1_+1}, v{a1_+6}, v{VF+3} bitop3:0x7e')
            e(f'v_or_b32 v{VC}, v{VC}, v{VC+1}')
            e(f'v_cmp_ne_u32 s[48:49], 0, v{VC}')
            e('s_nop 2')
            e('s_cmp_eq_u64 s[48:49], 0')
            e(f's_cbranch_scc1 L_kb{typ}{g}')
            e(f's_cmp_lg_u32 s{NPOLL}, {o.maxpoll}')
            e(f's_cbranch_scc1 L_ks{typ}{g}')
            e(f'v_mov_b32 v{VF+7}, 0x10000')
            e('s_mov_b64 exec, 1')
            e(f'ds_add_u32 v{VF+1}, v{VF+7} offset:4')
            e('s_mov_b64 exec, -1')
            e(f's_branch L_ks{typ}{g}')

    mark['help0'] = len(e.L)
    if not o.hfirst: e('.p2align 6')
    e('L_helper:')
    role[0] = 'h'
    e(f's_setprio {o.hprio}')
    e(f's_sub_u32 s{TW0}, s{WAVE}, 4')
    e(f's_mov_b32 s{TW1}, s{WAVE}')
    e(f's_sub_u32 s{PAIR}, s2, {NPROD}')
    e(f's_cselect_b32 s{PAIR}, s2, s{PAIR}')
    e(f's_mov_b32 s{MODE}, 0')
    e(f's_mov_b32 s{NOTASK}, s2')
    e(f's_mov_b32 s{HAS3}, s{TW0}')
    e(f's_lshl_b32 s{SCRB}, s{TW0}, 12')
    e(f's_add_u32 s{SCRB}, s{SCRB}, {SCR}')
    e('L_prod:')
    T = [(28, TW0, 2, 52, 0), (36, TW1, 4, 53, 2048), (44, TW2, 6, 54, 16384)]
    c, kp, q, cc, kk, t = 46, 47, 48, 49, 50, 51
    b = TS
    e('v_mov_b32 v19, 4320')
    e('v_and_b32 v23, 3, v1')
    e('v_lshrrev_b32 v24, 3, v1')
    e('v_mul_u32_u24 v24, 576, v24')
    e('v_bfe_u32 v25, v1, 2, 1')
    e('v_mul_u32_u24 v25, 288, v25')
    e('v_add_u32 v24, v24, v25')
    for (vb, sw, vl, vs, so) in T:
        e(f'v_lshl_add_u32 v8, s{sw}, 2, v23' if sw != TW2 else 'v_add_u32 v8, 32, v23')
        e('v_cmp_le_u32 vcc, 18, v8')
        e(f'v_lshl_add_u32 v{vl}, v8, 4, v24')
        e(f'v_add_u32 v9, v{vl}, v19')
        e(f'v_cndmask_b32 v{vl}, v{vl}, v9, vcc')
    e(f's_and_b32 s{c}, s{PAIR}, 15')
    e(f's_lshr_b32 s{kp}, s{PAIR}, 4')
    e(f's_mul_i32 s{b}, s{c}, 165888')
    e(f's_mul_i32 s{t}, s{kp}, 9216')
    e(f's_add_u32 s{b}, s{b}, s{t}')
    e(f's_add_u32 s{b+1}, s{b}, 82944')
    e(f's_mov_b32 s{S_W+2}, 2571264')
    e(f's_mov_b32 s{S_W+3}, 0x20000')
    e(f's_mov_b32 s{S_WO+3}, 0x20000')
    e(f's_cmp_lg_u32 s{c}, 15')
    e(f's_cselect_b32 s{S_WO+2}, 2571264, 0')
    e(f's_mov_b32 m0, s{SCRB}')
    e('s_waitcnt lgkmcnt(0)')
    e(f's_mov_b32 s{S_W}, s6')
    e(f's_and_b32 s{S_W+1}, s7, 0xffff')
    e(f's_mov_b32 s{S_WO}, s6')
    e(f's_and_b32 s{S_WO+1}, s7, 0xffff')
    e(f's_cmp_ge_u32 s{NOTASK}, {NTASK}')
    e('s_cbranch_scc1 L_a3')
    def cond3(lbl):
        e(f's_cmp_lg_u32 s{HAS3}, 0')
        e(f's_cbranch_scc1 {lbl}')
    for ti, (vb, sw, vl, vs, so) in enumerate(T):
        if ti == 2: cond3('L_a3')
        if ti == 1: e('s_addk_i32 m0, 1024'); e('s_nop 0')
        e(f'buffer_load_dwordx4 v{vl}, {sr(S_W)}, s{b} offen lds')
        e('s_addk_i32 m0, 1024')
        e('s_nop 0')
        e(f'buffer_load_dwordx4 v{vl}, {sr(S_WO)}, s{b+1} offen lds')
        if ti == 1: e(f's_addk_i32 m0, {16384-3072}')
    e('L_a3:')
    stamp(1)
    e(f's_cmp_lg_u32 s{MODE}, 0')
    e('s_cbranch_scc1 L_a4')
    e(f's_load_dword s{TAG}, s[12:13], {NONCE}')
    e(f's_lshr_b32 s{EARLY}, 0x33, s{kp}')
    e(f's_and_b32 s{EARLY}, s{EARLY}, 1')
    e(f's_sub_u32 s{XK}, 2, s{EARLY}')
    e(f's_lshl_b32 s{t}, s{kp}, 1')
    e(f's_lshr_b32 s{YT}, {(3<<12)+(3<<14)+(3<<16)}, s{t}')
    e(f's_and_b32 s{YT}, s{YT}, 3')
    e(f's_lshr_b32 s{t}, s{kp}, 1')
    e(f's_cmp_ge_u32 s2, {NPROD}')
    e(f's_cselect_b32 s{EARLY}, 0, s{EARLY}')
    e(f's_cselect_b32 s{XK}, 3, s{XK}')
    e(f's_cselect_b32 s{YT}, s{t}, s{YT}')
    e(f's_cmp_ge_u32 s2, {NPROD+32}')
    e(f's_cselect_b32 s{XK}, 0, s{XK}')
    e(f's_cmp_ge_u32 s2, {NTASK}')
    e(f's_cselect_b32 s{YT}, 0, s{YT}')
    if not o.b0early:
        e(f's_cmp_lg_u32 s{EARLY}, 0')
        e('s_cbranch_scc1 L_a4')
    e('s_barrier')
    e('L_a4:')
    e(f's_mov_b32 s{MASK}, 0xffff0000')
    e(f's_mov_b32 s{NPOLL}, 0')
    srd(e, S_WS, 12, WS_REC)
    srd(e, S_DBG, 10, 256)
    e(f'v_mov_b32 v10, {CNT}')
    e(f'v_mov_b32 v20, {(256 - 18*NSTR) & 0xffffffff}')
    e(f'v_mov_b32 v26, {NSTR}')
    e('v_bfe_u32 v21, v1, 2, 2')
    e('v_lshlrev_b32 v21, 7, v21')
    e('v_and_b32 v22, 1, v1')
    e('v_lshl_add_u32 v21, v22, 6, v21')
    e('v_bfe_u32 v22, v1, 1, 1')
    e('v_lshl_add_u32 v21, v22, 3, v21')
    e('v_lshrrev_b32 v22, 4, v1')
    e('v_lshl_add_u32 v21, v22, 4, v21')
    e(f'v_add_u32 v21, s{SCRB}, v21')
    if o.yall: e('v_mov_b32 v62, v21')
    e('v_and_b32 v25, 15, v1')
    e('v_lshlrev_b32 v25, 4, v25')
    for (vb, sw, vl, vs, so) in T:
        e(f'v_lshl_add_u32 v8, s{sw}, 2, v22' if sw != TW2 else 'v_add_u32 v8, 32, v22')
        e('v_cmp_le_u32 vcc, 18, v8')
        e(f'v_mad_u32_u24 v{vs}, v8, v26, v25')
        e(f'v_add_u32 v9, v{vs}, v20')
        e(f'v_cndmask_b32 v{vs}, v{vs}, v9, vcc')
    if o.tagp:
        e(f's_cmp_eq_u32 s{WAVE}, 4')
        e(f's_cselect_b32 s{t}, 1, s{EARLY}')
        e(f's_cmp_lg_u32 s{t}, 0')
        e(f's_cselect_b32 s{t}, 4, -16')
        e(f'v_mov_b32 v9, s{t}')
        e('s_waitcnt lgkmcnt(0)')
        e('s_mov_b64 exec, 1')
        e(f'buffer_load_dword v27, v9, {sr(S_DBG)}, 0 offen sc1')
        e('s_mov_b64 exec, -1')
        e(f's_lshr_b32 s97, 0x33, s{kp}')
        e('s_and_b32 s97, s97, 1')
        e(f's_lshr_b32 s96, s{kp}, 2')
        e('s_lshl_b32 s96, s96, 4')
        e(f's_add_u32 s96, s96, s{c}')
        e('s_lshl_b32 s96, s96, 2')
        e(f's_and_b32 s{t}, s{kp}, 1')
        e(f's_add_u32 s96, s96, s{t}')
        e('s_lshl_b32 s96, s96, 9')
        e(f's_add_u32 s96, s96, {WOFF + 2*NSTEP*1024}')
    e(f's_lshr_b32 s{q}, s{kp}, 1')
    e(f's_and_b32 s{cc}, s{c}, 7')
    e(f's_lshr_b32 s{kk}, s{c}, 3')
    e(f's_and_b32 s{t}, s{kp}, 1')
    e(f's_cmp_eq_u32 s{kp}, 8')
    e(f's_cselect_b32 s{cc}, s{cc}, s{c}')
    e(f's_cselect_b32 s{kk}, s{kk}, s{t}')
    e(f's_lshl_b32 s{kk}, s{kk}, 9')
    e(f's_add_u32 s{kk}, s{kk}, {WOFF}')
    e(f's_lshl_b32 s{t}, s{q}, 4')
    e(f's_add_u32 s{b+2}, s{t}, s{cc}')
    e(f's_sub_u32 s{b+3}, s{b+2}, s{q}')
    e(f's_cmp_ge_u32 s{q}, 2')
    e(f's_cselect_b32 s{b+4}, 74, 0')
    e(f's_add_u32 s{b+4}, s{b+4}, s{b+2}')
    e(f's_cmp_lt_u32 s{cc}, 2')
    e(f's_cselect_b32 s{t}, 32, 136')
    e(f's_add_u32 s{t}, s{t}, s{cc}')
    e(f's_cmp_eq_u32 s{kp}, 8')
    e(f's_cselect_b32 s{b+4}, s{t}, s{b+4}')
    e(f's_add_u32 s{b+2}, s{b+2}, 34')
    e(f's_add_u32 s{b+3}, s{b+3}, 144')
    for k in (2, 3, 4):
        e(f's_lshl_b32 s{b+k}, s{b+k}, 10')
        e(f's_add_u32 s{b+k}, s{b+k}, s{kk}')
    e(f's_cmp_eq_u32 s{kp}, 8')
    e(f's_cselect_b32 s{t}, 1, 2')
    e(f's_cmp_eq_u32 s{c}, 15')
    e(f's_cselect_b32 s{b+5}, s{t}, 0')
    e(f's_lshl_b32 s46, s{WAVE}, 2')
    e(f's_add_u32 s46, s46, {CNT+16}')
    e('v_mov_b32 v55, s46')
    if o.tagp:
        e('s_waitcnt vmcnt(1)')
        stamp(2)
        e(f's_cmp_ge_u32 s{NOTASK}, {NTASK}')
        e('s_cbranch_scc1 L_x9')
    else:
        e('v_mov_b32 v27, 0')
        e('v_mov_b32 v9, 4')
        e('s_waitcnt vmcnt(0) lgkmcnt(0)')
        stamp(2)
        e(f's_cmp_lg_u32 s{WAVE}, 4')
        e('s_cbranch_scc1 L_a5')
        e('s_mov_b64 exec, 1')
        e(f'buffer_load_dword v27, v9, {sr(S_DBG)}, 0 offen sc1')
        e('s_mov_b64 exec, -1')
        e('L_a5:')
        e(f's_cmp_ge_u32 s{NOTASK}, {NTASK}')
        e('s_cbranch_scc1 L_x9')
    for (vb, sw, vl, vs, so) in T:
        for tap in range(2):
            for half in range(2):
                e(f'ds_read_b64_tr_b16 {vr(vb+4*tap+2*half,2)}, v21 offset:{so+1024*tap+512*half}')
    nlab = [0]
    def st01(vb, vs):
        nlab[0] += 1
        e(f'buffer_store_dwordx4 {vr(vb,4)}, v{vs}, {sr(S_WS)}, s{b+2} offen {o.stf}')
        e(f's_cmp_eq_u32 s{b+5}, 2')
        e(f's_cbranch_scc1 L_skip{nlab[0]}')
        e(f'buffer_store_dwordx4 {vr(vb+4,4)}, v{vs}, {sr(S_WS)}, s{b+3} offen {o.stf}')
        e(f'L_skip{nlab[0]}:')
    def st01all(lbl):
        st01(T[0][0], T[0][3]); st01(T[1][0], T[1][3])
        cond3(lbl)
        st01(T[2][0], T[2][3])
    def dosum(vb, tb, ob):
        for i in range(8):
            e(f'v_lshlrev_b32 v{tb+2*i}, 16, v{vb+i}')
            e(f'v_and_b32 v{tb+2*i+1}, s{MASK}, v{vb+i}')
        for i in range(4):
            e(f'v_pk_add_f32 {vr(tb+2*i,2)}, {vr(tb+2*i,2)}, {vr(tb+8+2*i,2)}')
        for i in range(4):
            e(f'v_cvt_pk_bf16_f32 v{ob+i}, v{tb+2*i}, v{tb+2*i+1}')
    def ldswait(off, cmp, operand, tag, slp):
        e(f'L_lw{tag}:')
        e(f'ds_read_b32 v11, v10 offset:{off}')
        e('s_waitcnt lgkmcnt(0)')
        e('v_and_b32 v11, 0xff, v11')
        e(f'v_cmp_{cmp}_u32 vcc, {operand}, v11')
        e('s_nop 4')
        e(f's_cbranch_vccnz L_lx{tag}')
        e(f's_sleep {slp}')
        e(f's_branch L_lw{tag}')
        e(f'L_lx{tag}:')
    SOR = lambda ti: (210 + 8 * ti) if o.tagp else (240 + 4 * ti)
    e(f's_or_b32 s46, s{EARLY}, s{MODE}')
    e(f's_cmp_eq_u32 s{XK}, 2')
    e('s_cselect_b32 s47, 1, s46')
    if o.xl: e('s_mov_b32 s46, s47')
    e('s_cmp_eq_u32 s47, 0')
    e('s_cbranch_scc1 L_x9')
    for ti, (vb, sw, vl, vs, so) in enumerate(T):
        if ti == 2: cond3('L_x3')
        e(f's_waitcnt lgkmcnt({8-4*ti})')
        dosum(vb, 64 + 16 * ti, SOR(ti))
        e('s_cmp_eq_u32 s46, 0')
        e(f's_cbranch_scc1 L_x5{ti}')
        if o.tagp:
            e('s_cmp_eq_u32 s97, 0')
            e(f's_cbranch_scc1 L_x6{ti}')
            if ti == 0:
                e('s_waitcnt vmcnt(0)')
                e('v_readfirstlane_b32 s48, v27')
                e(f's_add_u32 s49, s{TAG}, {TAGINC}')
                e('s_not_b32 s47, s49')
                e(f's_or_b32 s48, s48, s{MODE}')
                e('s_cselect_b32 s49, s47, s49')
            e(f'v_mov_b32 v{SOR(ti)-1}, s49')
            e(f'v_mov_b32 v{SOR(ti)+4}, s49')
            e(f'buffer_store_dwordx4 {vr(SOR(ti)-2,4)}, v{vs}, {sr(S_WS)}, s96 offen {o.stf}')
            e(f'buffer_store_dwordx4 {vr(SOR(ti)+2,4)}, v{vs}, {sr(S_WS)}, s96 offen offset:1024 {o.stf}')
            e(f's_branch L_x5{ti}')
            e(f'L_x6{ti}:')
        e(f'buffer_store_dwordx4 {vr(SOR(ti),4)}, v{vs}, {sr(S_WS)}, s{b+4} offen {o.stf}')
        e(f'L_x5{ti}:')
    e('L_x3:')
    e(f's_cmp_eq_u32 s{MODE}, 0')
    e('s_cbranch_scc1 L_x9')
    e('L_x2:')
    e('s_waitcnt lgkmcnt(0)')
    st01all('L_x4')
    e('L_x4:')
    e(f's_cmp_eq_u32 s{MODE}, 0')
    e('s_cbranch_scc1 L_x9')
    e('s_waitcnt vmcnt(0)')
    e(f's_add_u32 s{PAIR}, s{PAIR}, 1')
    e(f's_cmp_lt_u32 s{PAIR}, {NPROD}')
    e('s_cbranch_scc1 L_prod')
    e('v_mov_b32 v11, 1')
    e('ds_write_b32 v10, v11 offset:12')
    e('s_endpgm')
    e('L_x9:')
    if o.tagp:
        e(f's_cmp_eq_u32 s{EARLY}, 0')
        e('s_cbranch_scc1 L_x10')
        e('s_barrier')
        e('L_x10:')
    stamp(3)
    decode()
    e('v_subrev_u32 v4, 256, v0')
    e('v_min_u32 v4, 251, v4')
    e('v_mul_u32_u24 v3, 3641, v4')
    e('v_lshrrev_b32 v3, 16, v3')
    e('v_mul_u32_u24 v2, 18, v3')
    e('v_sub_u32 v2, v4, v2')
    e(f'v_mul_u32_u24 v3, {R}, v3')
    e(f'v_min_u32 v3, {160-R}, v3')
    e('v_mul_u32_u24 v4, 1152, v3')
    e('v_lshl_add_u32 v4, v2, 4, v4')
    e(f'v_add_u32 v12, s{XB}, v4')
    e('v_mul_u32_u24 v18, 288, v3')
    e('v_lshl_add_u32 v18, v2, 4, v18')
    e(f'v_add_u32 v19, {X_D1}, v18')
    srd(e, S_X, 4, 1152000, add=BOFF)
    e(f's_add_u32 s46, s{TAG}, {TAGINC}')
    e('v_mov_b32 v56, s46')
    e('s_lshl_b32 s46, s2, 7')
    e('v_mov_b32 v58, s46')
    e(f's_add_u32 s46, s{PAIR}, {NPROD}')
    e('s_lshl_b32 s46, s46, 7')
    e('v_mov_b32 v59, s46')
    def publish(slot, vflag, tag, first, n=0):
        e('s_mov_b64 exec, 1')
        e(f's_waitcnt vmcnt({n})')
        if first: stamp(4)
        if o.padto and tag == 'x': stamp(12)
        e('v_cmp_ne_u32 vcc, 0, v27')
        e('v_not_b32 v57, v56')
        e('s_nop 0')
        e('v_cndmask_b32 v57, v56, v57, vcc')
        e(f'ds_write_b32 v55, v57 offset:{slot}')
        e(f'ds_read_b128 v[20:23], v10 offset:{32+slot}')
        e('s_waitcnt lgkmcnt(0)')
        for i in range(4): e(f'v_xor_b32 v{20+i}, v{20+i}, v56')
        e('v_or3_b32 v20, v20, v21, v22')
        e('v_or_b32 v20, v20, v23')
        e('v_cmp_eq_u32 vcc, 0, v20')
        e('s_and_b64 exec, exec, vcc')
        e(f's_cbranch_execz L_nl{tag}')
        e(f'buffer_store_dword v56, v{vflag}, {sr(S_WS)}, 0 offen sc1')
        e(f'L_nl{tag}:')
        e('s_mov_b64 exec, -1')
    if o.tagp and o.xl:
        e(f's_cmp_lg_u32 s{XK}, 2')
        e('s_cbranch_scc1 L_noflag')
        publish(0, 58, 'x', True)
        e(f's_mov_b32 s{XK}, 0')
    elif o.xl:
        e(f's_cmp_ge_u32 s2, {NPROD}')
        e('s_cbranch_scc1 L_noflag')
        publish(0, 58, 'x', True)
        e(f's_mov_b32 s{XK}, 0')
        e(f's_cmp_eq_u32 s{EARLY}, 0')
        e('s_cbranch_scc1 L_noflag')
        if not o.b0early: e('s_barrier')
    elif not o.tagp:
        e(f's_cmp_eq_u32 s{EARLY}, 0')
        e('s_cbranch_scc1 L_noflag')
        publish(0, 58, 'x', True)
        if not o.b0early: e('s_barrier')
    e('L_noflag:')
    e(f's_setprio {o.hprio2}')
    RAW, ORAW = 64, 120
    EU = [184, 192]
    OU, DT, DO = 200, 208, 216
    xi = [0]
    NL = R + 1
    hq = []
    def eload():
        k = xi[0]
        if k >= NL: return
        a_ = 12
        if k:
            a_ = 13 + (k & 3)
            e(f'v_add_u32 v{a_}, {1152*k}, v12')
        e(f'buffer_load_dwordx4 {vr(RAW+4*k,4)}, v{a_}, {sr(S_X)}, 0 offen')
        xi[0] += 1
        hq.append(('e', k))
    if o.etouch:
        e(f's_cmp_lt_u32 s2, {NTASK}')
        e('s_cbranch_scc1 L_net')
        e(f's_and_b32 s46, s{NB}, 1')
        e(f's_mul_i32 s46, s46, {1152*6}')
        e('v_add_u32 v12, s46, v12')
        for _ in range(7): eload()
        e('v_subrev_u32 v12, s46, v12')
        e('s_waitcnt vmcnt(0)')
        e('L_net:')
        xi[0] = 0; hq.clear()
    YA = 232
    e(f's_cmp_eq_u32 s{b+5}, 2')
    e('s_cselect_b32 s46, 0x80000000, 0')
    e(f's_cmp_lg_u32 s{HAS3}, 0')
    e('s_cselect_b32 s47, 0x80000000, 0')
    e('s_or_b32 s48, s46, s47')
    for i in range(6):
        m_ = {0: None, 1: 46, 2: None, 3: 46, 4: 47, 5: 48}[i]
        e(f'v_mov_b32 v{YA+i}, v{52+i//2}' if m_ is None else f'v_or_b32 v{YA+i}, s{m_}, v{52+i//2}')
    def ystore(i, a_):
        e(f'buffer_store_dwordx4 {vr(28+4*i,4)}, v{a_}, {sr(S_WS)}, s{b+2+(i&1)} offen {o.stf}')
        hq.append(('y', i))
    if o.yall:
        assert o.d0p
        e('s_add_u32 s44, s2, 76')
        e(f's_cmp_ge_u32 s44, {NWG}')
        e(f's_cselect_b32 s45, {NWG}, 0')
        e('s_sub_u32 s44, s44, s45')
        e(f's_add_u32 s46, s44, {NPROD + 32}')
        e('s_lshl_b32 s46, s46, 7')
        e('v_mov_b32 v59, s46')
        e('s_mul_hi_u32 s45, s44, 477218589')
        e('s_mul_i32 s46, s45, 9')
        e('s_sub_u32 s44, s44, s46')
        e(f's_lshr_b32 s{YT}, s45, 3')
        e(f's_add_u32 s{YT}, s{YT}, 1')
        e(f's_min_u32 s{YT}, s{YT}, 3')
        e('s_lshl_b32 s45, s45, 2')
        e(f's_add_u32 s45, s45, s{WAVE}')
        e('s_add_u32 s45, s45, 28')
        e('s_and_b32 s46, s45, 15')
        e('s_lshr_b32 s47, s45, 4')
        e('s_mul_i32 s54, s46, 165888')
        e('s_mul_i32 s48, s47, 9216')
        e('s_add_u32 s54, s54, s48')
        e('s_add_u32 s95, s54, 82944')
        e('s_cmp_lg_u32 s46, 15')
        e(f's_cselect_b32 s{S_WO+2}, 2571264, 0')
        e('s_cselect_b32 s51, 0, 0x80000000')
        e('s_lshr_b32 s48, s47, 1')
        e('s_and_b32 s49, s46, 7')
        e('s_lshr_b32 s50, s46, 3')
        e('s_and_b32 s45, s47, 1')
        e('s_cmp_eq_u32 s47, 8')
        e('s_cselect_b32 s49, s49, s46')
        e('s_cselect_b32 s50, s50, s45')
        e('s_cselect_b32 s51, 0, s51')
        e('s_lshl_b32 s50, s50, 9')
        e(f's_add_u32 s50, s50, {WOFF}')
        e('s_lshl_b32 s68, s48, 4')
        e('s_add_u32 s68, s68, s49')
        e('s_sub_u32 s69, s68, s48')
        e('s_add_u32 s68, s68, 34')
        e('s_add_u32 s69, s69, 144')
        for r_ in (68, 69):
            e(f's_lshl_b32 s{r_}, s{r_}, 10')
            e(f's_add_u32 s{r_}, s{r_}, s50')
        e('v_and_b32 v2, 3, v1')
        e('v_lshl_add_u32 v2, s44, 2, v2')
        e('v_lshrrev_b32 v3, 4, v1')
        e('v_lshl_add_u32 v3, s44, 2, v3')
        e('v_cmp_le_u32 vcc, 18, v2')
        e('v_cmp_le_u32 s[46:47], 18, v3')
        e('v_lshl_add_u32 v63, v2, 4, v24')
        e('v_mad_u32_u24 v60, v3, v26, v25')
        e('v_add_u32 v2, 4320, v63')
        e(f'v_add_u32 v3, {(256 - 18*NSTR) & 0xffffffff}, v60')
        e('v_cndmask_b32 v63, v63, v2, vcc')
        e('v_cndmask_b32 v60, v60, v3, s[46:47]')
        e('v_or_b32 v61, s51, v60')
    def ydma():
        if not o.yall: return
        e(f's_mov_b32 m0, s{SCRB}')
        e('s_nop 0')
        e(f'buffer_load_dwordx4 v63, {sr(S_W)}, s54 offen lds')
        e('s_addk_i32 m0, 1024')
        e('s_nop 0')
        e(f'buffer_load_dwordx4 v63, {sr(S_WO)}, s95 offen lds')
        hq.append('d0'); hq.append('d1')
    stamp(5)
    ldswait(8, 'eq', 4, 'o', 1)
    def unpack(dst, s_):
        for i in range(4):
            e(f'v_lshlrev_b32 v{dst+2*i}, 16, v{s_+i}')
            e(f'v_and_b32 v{dst+2*i+1}, s{MASK}, v{s_+i}')
    def unpackE(dst, k):
        e(f's_waitcnt vmcnt({len(hq)-1-hq.index(("e", k))})')
        unpack(dst, RAW + 4 * k)
        eload()
    def diff(eu, out):
        for i in range(8): e(f'v_sub_f32 v{DT+i}, v{eu+i}, v{OU+i}')
        for i in range(4):
            e(f'v_cvt_pk_bf16_f32 v{out+i}, v{DT+2*i}, v{DT+2*i+1}')
    def opengate():
        if not o.gate: return
        e('v_mov_b32 v11, 0x100')
        e('s_mov_b64 exec, 1')
        e('ds_add_u32 v10, v11 offset:8')
        e('s_mov_b64 exec, -1')
    def rows(hook):
        stamp(6)
        for j in range(R):
            e(f'ds_read_b128 {vr(ORAW+4*j,4)}, v18 offset:{X_O+288*j}')
        unpackE(EU[0], 0)
        e('s_waitcnt lgkmcnt(0)')
        for j in range(R):
            o0 = DO + 8 * (j & 1)
            unpack(OU, ORAW + 4 * j)
            diff(EU[j & 1], o0)
            e(f'ds_write_b128 v18, {vr(o0,4)} offset:{X_D0+288*j}')
            unpackE(EU[(j + 1) & 1], j + 1)
            diff(EU[(j + 1) & 1], o0 + 4)
            e(f'ds_write_b128 v19, {vr(o0+4,4)} offset:{288*j}')
            hook(j)
    e(f's_cmp_ge_u32 s2, {NPROD + (32 if o.d0p else 0)}')
    e('s_cbranch_scc1 L_pathA')
    e(f's_cmp_lt_u32 s{XK}, 2')
    e('s_cbranch_scc1 L_nox')
    if o.d0p:
        e(f's_cmp_eq_u32 s{XK}, 3')
        e('s_cbranch_scc1 L_xd')
    for i in range(3):
        e(f'buffer_store_dwordx4 {vr(SOR(i),4)}, v{YA+2*i}, {sr(S_WS)}, s{b+4} offen {o.stf}')
    if o.d0p:
        e('s_branch L_xe')
        e('L_xd:')
        for i in range(6): ystore(i, YA + i)
        e('L_xe:')
    if o.gearly:
        opengate()
        publish(0, 58, 'x2', True)
        e('s_branch L_nox2')
        e('L_nox:')
        opengate()
        e('L_nox2:')
    else:
        publish(0, 58, 'x2', True)
        e('L_nox:')
        opengate()
    hq.clear(); xi[0] = 0
    for _ in range(o.ein): eload()
    rows(lambda j: ydma() if j == o.ydrow else None)
    e('s_branch L_rowsdone')
    e('L_pathA:')
    if not o.d0p:
        e(f's_cmp_eq_u32 s{XK}, 3')
        e('s_cselect_b32 s47, 0, 0x80000000')
        for i in range(6): e(f'v_or_b32 v{20+i}, s47, v{YA+i}')
    hq.clear(); xi[0] = 0
    for _ in range(NL): eload()
    if not o.d0p:
        for i in range(6): ystore(i, 20 + i)
    def hookA(j):
        if j == o.grow + 1: ydma()
        if j == o.grow:
            e(f's_waitcnt vmcnt({len(hq)-1-hq.index(("e", NL-1))})')
            opengate()
        if j == o.xrow and not o.d0p:
            e(f's_cmp_lg_u32 s{XK}, 3')
            e('s_cbranch_scc1 L_xp')
            publish(0, 58, 'x3', True)
            e('L_xp:')
    rows(hookA)
    e('L_rowsdone:')
    e('s_waitcnt lgkmcnt(0)')
    stamp(7)
    e('v_mov_b32 v11, 1')
    e('s_mov_b64 exec, 1')
    e('ds_add_u32 v10, v11 offset:16')
    e('s_mov_b64 exec, -1')
    e(f's_cmp_eq_u32 s{YT}, 0')
    e('s_cbranch_scc1 L_noy')
    e(f's_setprio {o.yprio}')
    if o.yall:
        e('s_waitcnt vmcnt(0)')
        for tap in range(2):
            for half in range(2):
                e(f'ds_read_b64_tr_b16 {vr(28+4*tap+2*half,2)}, v62 offset:{1024*tap+512*half}')
    e('L_yw:')
    e('ds_read_b64 v[20:21], v10')
    e('s_waitcnt lgkmcnt(0)')
    e('v_lshrrev_b32 v21, 14, v21')
    e('v_and_b32 v21, -4, v21')
    e('v_or_b32 v20, v20, v21')
    e(f'v_cmp_le_u32 vcc, s{YT}, v20')
    e('s_nop 4')
    e('s_cbranch_vccnz L_yx')
    e('s_sleep 4')
    e('s_branch L_yw')
    e('L_yx:')
    if o.yall:
        e(f'buffer_store_dwordx4 v[28:31], v60, {sr(S_WS)}, s68 offen {o.stf}')
        e(f'buffer_store_dwordx4 v[32:35], v61, {sr(S_WS)}, s69 offen {o.stf}')
    else:
      for i in range(6):
        ystore(i, YA + i)
        e(f's_waitcnt vmcnt({o.ythr})')
        if o.ysleep: e(f's_sleep {o.ysleep}')
    publish(16, 59, 'y', False)
    if o.diag == 1: stamp(8)
    e('L_noy:')
    e(f's_cmp_lg_u32 s{WAVE}, 4')
    e('s_cbranch_scc1 L_hend')
    e('L_guard:')
    e('ds_read_b32 v11, v10 offset:4')
    e('s_waitcnt lgkmcnt(0)')
    e('v_readfirstlane_b32 s46, v11')
    e('s_nop 3')
    e('s_cmp_eq_u32 s46, 4')
    e('s_cbranch_scc1 L_hend')
    e('s_cmp_lt_u32 s46, 0x10000')
    e('s_cbranch_scc0 L_rescue')
    e('s_sleep 16')
    e('s_branch L_guard')
    e('L_rescue:')
    e(f's_mov_b32 s{MODE}, 1')
    e(f's_mov_b32 s{HAS3}, 1')
    e(f's_mov_b32 s{NOTASK}, 0')
    e(f's_lshr_b32 s{TW0}, s{NB}, 1')
    e(f's_add_u32 s{TW1}, s{NB}, 9')
    e(f's_lshr_b32 s{TW1}, s{TW1}, 1')
    e(f's_mov_b32 s{PAIR}, 0')
    e('s_branch L_prod')
    e('L_hend:')
    if o.padto and o.padev[0] == 'h': padloop('h')
    if o.diag == 1:
        stamp(9)
        dump(10)
    e('L_end:')
    e('s_endpgm')
    if o.hfirst:
        m0, h0 = mark['main0'], mark['help0']
        e.L = e.L[:m0] + e.L[h0:] + ['.p2align 6'] + e.L[m0:h0]
    e('L_codeend:')
    e('.section .rodata,"a"')
    e('.p2align 6')
    e(f'.amdhsa_kernel {KN}')
    for x in ['next_free_vgpr 256', 'next_free_sgpr 102', 'accum_offset 256', 'group_segment_fixed_size 0', 'kernarg_size 40',
              'user_sgpr_count 2', 'user_sgpr_kernarg_segment_ptr 1', 'system_sgpr_workgroup_id_x 1']:
        e('  .amdhsa_' + x)
    e('.end_amdhsa_kernel')
    n = haz.check(e.L)
    if n: print(f'{n} hazards', file=sys.stderr)
    return f'; @launch grid=({NWG},1,1) block=(512,1,1) lds={LDS_BYTES}\n' + e.text()

def opts(argv=None):
    ap = argparse.ArgumentParser()
    ap.add_argument('-o', default='k.s')
    for nm, d in [('diag', 0), ('pf', 16), ('pf0', 8), ('wgap', 4), ('wres', 4), ('wsc1', 0), ('nfill', 2), ('fstride', 128), ('sleep', 0), ('maxpoll', 3000), ('nopoll', 0),
                  ('hprio', 3), ('hprio2', 0), ('mprio', 2), ('epre', 0), ('ein', 7), ('dpre', 7), ('b0early', 0), ('mtouch', 1), ('gate', 1), ('swapab', 0), ('d0p', 1), ('map', 1), ('chain', 4), ('yall', 0), ('ydrow', 6), ('flat0', 0), ('flatzz', 0), ('tagp', 0), ('tpf', 5), ('xl', 0), ('p0plain', 0), ('onepoll', 0), ('epoll', 1), ('ppoll', 0), ('yprio', 3), ('ysleep', 0), ('vt', 94), ('tla', 40), ('tskip', 1), ('gearly', 1), ('chfrom', 8), ('oj', 9), ('nolds', 0), ('now', 0), ('wsame', 0), ('grow', 1), ('vbd', 33), ('nopk', 1), ('padto', 0), ('npdelay', 0), ('opre', 5), ('etouch', 0), ('orev', 1), ('b0late', 1), ('dec', 1), ('tail', 1), ('xla', 9), ('hold', 1), ('prest', 0), ('xslot', 0), ('noclosed', 0), ('cpf', 1), ('hfirst', 1), ('warmb', 1), ('wsfirst', 0), ('flead', 6), ('ythr', 6), ('xrow', 3), ('padstep', 33), ('probe', 0), ('probeoff', 0x4000000)]:
        ap.add_argument('--' + nm, type=int, default=d)
    ap.add_argument('--oflags', default='')
    ap.add_argument('--pmap', default='18,18,18,18,18,18,18,18')
    ap.add_argument('--padev', default='m0')
    ap.add_argument('--trig', default='10,25,40')
    ap.add_argument('--yrow', default='0,7,2,9,5,11')
    ap.add_argument('--pfcs', default='4,5,5,8,8')
    ap.add_argument('--fflags', default='')
    ap.add_argument('--fleads', default='6,6,6,6,6')
    ap.add_argument('--stf', default='sc1')
    ap.add_argument('--marks', default='0,4,8,12,16,24,33,47,58')
    o = ap.parse_args(argv)
    o.marks = [int(x) for x in o.marks.split(',')]
    o.yrow = [int(x) for x in o.yrow.split(',')]
    o.pfcs = [int(x) for x in o.pfcs.split(',')]
    o.fleads = [int(x) for x in o.fleads.split(',')]
    o.trig = [int(x) for x in o.trig.split(',')]
    return o

if __name__ == '__main__':
    o = opts()
    open(o.o, 'w').write(gen(o))
```

```python
import re, sys, argparse
import haz

KN = 'standalone__autoregressive_conv_wavernn__speech_kernel'
NWG = 252
NPROD = 144
ARR = 160 * 288
X_D0, X_O, X_D1 = 0, ARR, 2 * ARR
CNT = 3 * ARR
SCR = CNT + 64
LDS_BYTES = SCR + 18432
NSTEP = 106
WOFF = int(__import__('os').environ.get('WOFF', '0x100000'), 0)
NONCE = 0x10000
DIAG = 0x800000
WS_REC = max(0x1000000, WOFF + 0x400000, int(__import__('os').environ.get('WSREC', '0'), 0))
TAGINC = 0x9E3779B9
R = 12

class Em:
    def __init__(self): self.L = []
    def __call__(self, s): self.L.append(s)
    def text(self): return '\n'.join(self.L) + '\n'

def vr(a, n=1): return f'v{a}' if n == 1 else f'v[{a}:{a+n-1}]'
def sr(a, n=4): return f's[{a}:{a+n-1}]'

def streams():
    out = []
    for typ in (0, 1):
        S = []
        pid = [0]
        def add(arr, chunk, cs, acc):
            for c in cs: S.append((pid[0], arr, chunk, c, acc))
            pid[0] += 1
        if typ == 0:
            add('O', 0, range(16), 'P'); add('O', 1, range(16), 'P'); add('O', 'rem', range(0, 2), 'P')
            for q in range(4): add('D', q, range(16), 'Q')
            add('D', 'rem', range(8), 'Q')
        else:
            add('O', 2, range(16), 'P'); add('O', 3, range(16), 'P'); add('O', 'rem', range(2, 8), 'P')
            for q in range(4): add('D', q, range(15), 'Q')
            add('D', 'rem', range(8), 'Q')
        assert len(S) == NSTEP
        out.append(S)
    return out

S_X, S_W, S_WO, S_WS, S_OUT, S_DBG = 20, 24, 28, 32, 36, 40
WAVE, NB, BAT, PAR, MB, BOFF = 14, 15, 16, 17, 18, 19
PAIR0 = 3
XB = 52
MASK = 53
TW0, TW1, TW2, PAIR, HAS3, MODE, SCRB, TAG, LAST, NPOLL = 44, 45, 54, 55, 56, 57, 58, 59, 60, 61
TS = 62
TYP, WSO = 68, 69
EARLY, XK, YT, FIDX = 90, 91, 92, 93
NOTASK = 94
FO = 97
C2L, CNL, C60 = 90, 92, 94
ST0 = 70

def srd(e, d, ptr, rec, add=None):
    if add is None:
        e(f's_mov_b32 s{d}, s{ptr}')
        e(f's_and_b32 s{d+1}, s{ptr+1}, 0xffff')
    else:
        e(f's_add_u32 s{d}, s{ptr}, s{add}')
        e(f's_addc_u32 s{d+1}, s{ptr+1}, 0')
        e(f's_and_b32 s{d+1}, s{d+1}, 0xffff')
    e(f's_mov_b32 s{d+2}, {rec}')
    e(f's_mov_b32 s{d+3}, 0x20000')

def gen(o):
    e = Em()
    NSTR = 2 * NSTEP * 1024 + (65536 if o.tagp else 0)
    if o.tagp: o.epoll = 0
    NTASK = NPROD + (32 if o.yall else 96)
    role = ['m']
    def padloop(tag):
        e(f'L_pad{tag}:')
        e('s_memrealtime s[98:99]')
        e('s_waitcnt lgkmcnt(0)')
        e('s_sub_u32 s98, s98, s100')
        e(f's_cmp_lt_u32 s98, {o.padto}')
        e(f's_cbranch_scc1 L_pad{tag}')
    def stamp(k, lvl=1):
        if o.padto and lvl == 1 and o.padev == f'{role[0]}{k}':
            e('s_memrealtime s[100:101]'); e('s_waitcnt lgkmcnt(0)')
        if o.diag == lvl or (o.diag == 4 and lvl == 1): e(f's_memrealtime s[{ST0+2*k}:{ST0+2*k+1}]')
    def dump(nst):
        e('s_waitcnt lgkmcnt(0)')
        e('v_mov_b32 v250, 0')
        for k in range(nst): e(f'v_writelane_b32 v250, s{ST0+2*k}, {k}')
        e(f'v_writelane_b32 v250, s{NPOLL}, 13')
        e(f'v_writelane_b32 v250, s95, 12')
        e(f'v_writelane_b32 v250, s{3 if o.rmap else 2}, 14')
        e('s_getreg_b32 s46, hwreg(HW_REG_XCC_ID)')
        e('v_writelane_b32 v250, s46, 15')
        e(f's_lshl_b32 s46, s2, 3'); e(f's_add_u32 s46, s46, s{WAVE}'); e('s_lshl_b32 s46, s46, 6'); e(f's_add_u32 s46, s46, {DIAG}')
        e('v_lshl_add_u32 v251, v1, 2, s46')
        e('s_mov_b64 exec, 0xffff')
        e(f'buffer_store_dword v250, v251, {sr(S_WS)}, 0 offen')
        e('s_mov_b64 exec, -1')

    e('.amdgcn_target "amdgcn-amd-amdhsa--gfx950"')
    e('.text')
    e(f'.globl {KN}')
    e('.p2align 8')
    e(f'.type {KN},@function')
    e(f'{KN}:')
    e(f's_cmp_ge_u32 s2, {NWG}')
    e('s_cbranch_scc1 L_end')
    stamp(0)
    if o.padto and o.padev != 'm0': e('s_memrealtime s[100:101]')
    e('s_load_dwordx4 s[4:7], s[0:1], 0')
    e('s_load_dwordx4 s[8:11], s[0:1], 16')
    e('s_load_dwordx2 s[12:13], s[0:1], 32')
    e('v_lshrrev_b32 v2, 6, v0')
    e('v_and_b32 v1, 63, v0')
    e(f'v_readfirstlane_b32 s{WAVE}, v2')
    def decode():
        e('s_and_b32 s44, s2, 7')
        e('s_lshr_b32 s45, s2, 3')
        e('s_mul_i32 s46, s44, 31')
        e('s_min_u32 s44, s44, 4')
        e('s_add_u32 s46, s46, s44')
        e('s_add_u32 s46, s46, s45')
        if o.map == 0:
            e('s_mul_hi_u32 s47, s46, 68174085')
            e('s_mul_i32 s48, s47, 63')
            e('s_sub_u32 s48, s46, s48')
            e(f's_mul_hi_u32 s{NB}, s48, 613566757')
            e(f's_mul_i32 s49, s{NB}, 7')
            e('s_sub_u32 s49, s48, s49')
            e('s_mul_i32 s47, s47, 7')
            e('s_add_u32 s47, s47, s49')
        elif o.map == 1:
            e('s_mul_hi_u32 s47, s46, 477218589')
            e('s_mul_i32 s48, s47, 9')
            e(f's_sub_u32 s{NB}, s46, s48')
        else:
            e('s_mul_hi_u32 s47, s46, 34087043')
            e('s_mul_i32 s48, s47, 126')
            e('s_sub_u32 s48, s46, s48')
            e(f's_mul_hi_u32 s{NB}, s48, 306783379')
            e(f's_mul_i32 s49, s{NB}, 14')
            e('s_sub_u32 s49, s48, s49')
            e('s_mul_i32 s47, s47, 14')
            e('s_add_u32 s47, s47, s49')
        e(f's_and_b32 s{PAR}, s47, 1')
        e('s_lshr_b32 s47, s47, 1')
        e('s_cmp_ge_u32 s47, 7')
        e(f's_cselect_b32 s{BOFF}, 1152000, 0')
        e('s_cselect_b32 s48, 7, 0')
        e(f's_sub_u32 s{MB}, s47, s48')
        e(f's_mul_i32 s{XB}, s{MB}, 576')
        e(f's_add_u32 s{XB}, s{XB}, s{PAR}')
        e(f's_sub_u32 s{XB}, s{XB}, 60')
        e(f's_mul_i32 s{XB}, s{XB}, 288')
    RID = 3 if o.rmap else 2
    if o.rmap:
        e('s_and_b32 s44, s2, 3')
        e('s_lshr_b32 s45, s2, 3')
        e('s_lshl2_add_u32 s3, s45, s44')
        e('s_and_b32 s44, s2, 4')
        e('s_lshl_b32 s44, s44, 5')
        e('s_add_u32 s3, s3, s44')
    e(f's_cmp_ge_u32 s{WAVE}, 4')
    e('s_cbranch_scc1 L_helper')
    if o.cpf:
        e('s_lshr_b32 s44, s2, 3')
        e(f's_lshl_b32 s45, s{WAVE}, 5')
        e('s_add_u32 s44, s44, s45')
        e('s_sub_u32 s44, s44, 26')
        e('s_cmp_ge_u32 s44, 5')
        e('s_cbranch_scc1 L_main')
        e('s_getpc_b64 s[46:47]')
        e('L_pc:')
        e('s_lshl_b32 s44, s44, 13')
        e('v_lshl_add_u32 v2, v1, 7, s44')
        e('v_min_u32 v2, L_codeend-L_pc-4, v2')
        e('global_load_dword v63, v2, s[46:47]')
    if o.hfirst: e('s_branch L_main')
    mark = {'main0': len(e.L)}
    e('L_main:')
    e(f's_mov_b32 s{MASK}, 0xffff0000')
    e(f's_mov_b32 s{NPOLL}, 0')
    if o.diag: e('s_mov_b32 s95, 0')
    decode()

    VXO, VXOR, VXD, VXDR, VWL, VEX, VEXP, VOUT = 30, 31, 32, 33, 34, 35, 36, 37
    VF = 40
    VA = 48
    VCL = 60
    e('v_mul_u32_u24 v3, 3641, v0')
    e('v_lshrrev_b32 v3, 16, v3')
    e('v_mul_u32_u24 v2, 18, v3')
    e('v_sub_u32 v2, v0, v2')
    e('v_mul_u32_u24 v3, 1152, v3')
    e('v_lshl_add_u32 v3, v2, 4, v3')
    e(f's_add_u32 s46, s{XB}, 576')
    e(f'v_add_u32 v{VA}, s46, v3')
    e('v_mov_b32 v5, 16192')
    e('v_mov_b32 v6, 17056')
    for k in range(1, 12):
        e('v_cmp_le_u32 vcc, 14, v2')
        e('v_add_u32 v3, 4, v2')
        e('v_subrev_u32 v4, 14, v2')
        e('v_cndmask_b32 v7, v5, v6, vcc')
        e('v_cndmask_b32 v2, v3, v4, vcc')
        e(f'v_add_u32 v{VA+k}, v{VA+k-1}, v7')
    e(f's_lshl_b32 s50, s{WAVE}, 10')
    e(f's_add_u32 s50, s50, {X_O}')
    e(f's_add_u32 s51, s50, {4096*11}')
    e('s_movk_i32 s49, 4096')
    if o.orev:
        e(f's_bitcmp0_b32 s{NB}, 0')
        e('s_cbranch_scc1 L_fwd')
        for k in range(5): e(f'v_swap_b32 v{VA+k}, v{VA+10-k}')
        e(f's_add_u32 s50, s50, {4096*10}')
        e('s_movk_i32 s49, -4096')
        e('L_fwd:')
    e(f'v_mov_b32 v{VF+1}, {CNT}')
    for r in range(4, 8): e(f'v_mov_b32 v{r}, 0')
    e(f'ds_write_b128 v{VF+1}, v[4:7]')
    e(f'ds_write_b128 v{VF+1}, v[4:7] offset:16')
    e('s_waitcnt lgkmcnt(0)')
    e(f's_load_dword s{TAG}, s[12:13], {NONCE}')
    srd(e, S_X, 4, 1152000, add=BOFF)
    def odma(k):
        e(f's_mov_b32 m0, s{51 if k == 11 else 50}')
        e('s_add_u32 s50, s50, s49')
        e(f'buffer_load_dwordx4 v{VA+k}, {sr(S_X)}, 0 offen lds')
    def etouch():
        e(f'buffer_load_dword v62, v9, {sr(S_X)}, 0 offen')
    if o.mtouch and o.tskip:
        e(f's_lshr_b32 s47, s{RID}, 4')
        e('s_lshr_b32 s47, 0x33, s47')
        e('s_lshl_b32 s47, s47, 31')
    if o.mtouch:
        e('v_min_u32 v8, 39, v1')
        e('v_lshrrev_b32 v9, 2, v8')
        e(f's_mul_i32 s46, s{WAVE}, 10')
        e('v_add_u32 v9, s46, v9')
        e(f'v_mul_u32_u24 v9, {4*1152}, v9')
        e('v_and_b32 v8, 3, v8')
        e('v_mul_u32_u24 v8, 92, v8')
        e(f's_and_b32 s46, s{NB}, {7 if o.mtouch == 4 else 3}')
        e(f's_mul_i32 s46, s46, {576 if o.mtouch == 4 else 1152}')
        e(f's_add_u32 s46, s46, s{XB}')
        e('v_add3_u32 v9, v9, v8, s46')
        if o.tskip == 1: e('v_or_b32 v9, s47, v9')
    if o.mtouch == 4 and o.tskip == 2:
        e('s_cmp_eq_u32 s47, 0')
        e('s_cbranch_scc1 L_tn')
        e('s_waitcnt lgkmcnt(0)')
        e('L_tn:')
    if o.mtouch in (2, 4): etouch()
    if o.padto and o.padev == 'm13':
        e('s_waitcnt vmcnt(0)'); stamp(13)
    if o.padto and o.padev == 'm14':
        odma(0); e('s_sub_u32 s50, s50, s49'); e('s_waitcnt vmcnt(0)'); stamp(14)
    if o.padto: stamp(10)
    for k in range(o.opre): odma(k)
    e('s_barrier')
    stamp(1)
    if o.mtouch == 3: etouch()
    for k in range(o.opre, 12):
        if k == 11:
            e(f's_cmp_lg_u32 s{WAVE}, 0')
            e('s_cbranch_scc1 L_o11')
        odma(k)
    e('L_o11:')
    if o.mtouch == 1: etouch()
    srd(e, S_WS, 12, WS_REC)
    if o.epoll:
        assert o.mtouch in (1, 4) and o.tskip
        e(f's_and_b32 s{TYP}, s{WAVE}, 1')
        e(f's_lshl_b32 s{FO}, s{TYP}, 13')
        e('s_mov_b32 s96, s47')
        e('s_xor_b32 s46, s47, 0x80000000')
        e(f'v_min_u32 v{VF}, 31, v1')
        e(f'v_lshlrev_b32 v{VF}, 7, v{VF}')
        e(f'v_or_b32 v2, s46, v{VF}')
        e(f'buffer_load_dword v{VF+4}, v2, {sr(S_WS)}, s{FO} offen sc1')
    srd(e, S_OUT, 8, 1152000, add=BOFF)
    srd(e, S_DBG, 10, 256)
    e('v_and_b32 v2, 15, v1')
    e('v_lshrrev_b32 v3, 4, v1')
    e('v_subrev_u32 v5, 4, v2')
    e('v_add_u32 v6, 8, v2')
    e('v_cmp_gt_u32 vcc, 4, v2')
    e('v_cmp_le_u32 s[46:47], 12, v2')
    e(f's_and_b32 s{TYP}, s{WAVE}, 1')
    e(f's_lshr_b32 s48, s{WAVE}, 1')
    e('v_cndmask_b32 v5, v5, v6, vcc')
    e('v_cndmask_b32 v5, v5, v2, s[46:47]')
    e('v_mul_u32_u24 v5, 9, v5')
    e('v_mul_u32_u24 v4, 288, v5')
    e('v_lshl_add_u32 v6, v3, 4, v4')
    e('v_and_b32 v7, 1, v3')
    e('v_lshl_add_u32 v7, v7, 4, v4')
    e('v_lshrrev_b32 v8, 1, v3')
    e('v_mul_u32_u24 v8, 2304, v8')
    e('v_add_u32 v7, v7, v8')
    e('v_add_u32 v7, 256, v7')
    e(f's_mul_i32 s49, s{TYP}, {X_D1}')
    e(f'v_add_u32 v{VXO}, {X_O}, v6')
    e(f'v_add_u32 v{VXOR}, {X_O}, v7')
    e(f'v_add_u32 v{VXD}, s49, v6')
    e(f'v_add_u32 v{VXDR}, s49, v7')
    e('v_lshlrev_b32 v6, 4, v1')
    e(f's_mul_i32 s49, s{WAVE}, 9216')
    e(f's_add_u32 s49, s49, {X_O}')
    e(f'v_add_u32 v{VEX}, s49, v6')
    e(f's_xor_b32 s49, s{WAVE}, 1')
    e('s_mul_i32 s49, s49, 9216')
    e(f's_add_u32 s49, s49, {X_O}')
    e(f'v_add_u32 v{VEXP}, s49, v6')
    e('v_and_b32 v8, 0x39, v1')
    e('v_bfe_u32 v9, v1, 1, 1')
    e('v_lshl_add_u32 v8, v9, 2, v8')
    e('v_bfe_u32 v9, v1, 2, 1')
    e('v_lshl_add_u32 v8, v9, 1, v8')
    e(f'v_lshlrev_b32 v{VWL}, 4, v8')
    e(f's_mul_i32 s49, s{TYP}, 576')
    e(f's_add_u32 s49, s49, s{XB}')
    e(f's_add_u32 s49, s49, {60*288}')
    e(f's_lshl_b32 s50, s{NB}, 5')
    e('s_add_u32 s49, s49, s50')
    e('s_lshl_b32 s50, s48, 4')
    e('s_add_u32 s49, s49, s50')
    e('v_mul_u32_u24 v8, 1152, v5')
    e('v_lshl_add_u32 v8, v3, 2, v8')
    e(f'v_add_u32 v{VOUT}, s49, v8')
    e(f'v_add_u32 v{VOUT+1}, 3456, v{VOUT}')
    e(f'v_add_u32 v{VOUT+2}, 6912, v{VOUT}')
    e(f's_lshl_b32 s49, s{NB}, 1')
    e('s_add_u32 s49, s49, s48')
    e(f's_mul_i32 s49, s49, {NSTR}')
    e(f's_mul_i32 s{WSO}, s{TYP}, {NSTEP*1024}')
    e(f's_add_u32 s{WSO}, s{WSO}, s49')
    e(f's_add_u32 s{WSO}, s{WSO}, {WOFF + (16384 if o.tagp else 0)}')
    if o.tagp:
        e(f's_lshl_b32 s96, s{TYP}, 15')
        e('s_add_u32 s96, s96, s49')
        e(f's_add_u32 s96, s96, {WOFF + 2*NSTEP*1024}')
    e(f's_mov_b32 s{C2L}, 0x4038aa3b'); e(f's_mov_b32 s{C2L+1}, 0x4038aa3b')
    e(f's_mov_b32 s{CNL}, 0xbfb8aa3b'); e(f's_mov_b32 s{CNL+1}, 0xbfb8aa3b')
    e(f's_mov_b32 s{C60}, 0x42700000')
    e(f'v_min_u32 v{VF}, 31, v1')
    e(f'v_lshlrev_b32 v{VF}, 7, v{VF}')
    e(f'v_min_u32 v{VF+6}, 47, v1')
    e(f'v_lshlrev_b32 v{VF+6}, 7, v{VF+6}')
    e(f'v_mov_b32 v{VF+2}, 1')
    e('s_lshl_b32 s46, s48, 2')
    e(f'v_add_u32 v{VF+5}, s46, v{VF+1}')
    e(f's_or_b32 s46, s2, s{WAVE}')
    e('v_or_b32 v2, s46, v1')
    e('v_cmp_eq_u32 vcc, 0, v2')
    e(f'v_mov_b32 v{VCL}, -16')
    e(f'v_mov_b32 v{VCL+1}, -16')
    e(f'v_mov_b32 v3, {NONCE}')
    e(f'v_cndmask_b32 v{VCL}, v{VCL}, 4, vcc')
    e(f'v_cndmask_b32 v{VCL+1}, v{VCL+1}, v3, vcc')
    if o.yall:
        e(f's_lshr_b32 s46, s{NB}, 1')
        e(f's_add_u32 s47, s{NB}, 9')
        e('s_lshr_b32 s47, s47, 1')
        e('v_mov_b32 v4, s46')
        e('v_mov_b32 v5, s47')
        e('v_cmp_gt_u32 vcc, 32, v1')
        e('v_and_b32 v2, 7, v1')
        e('v_and_b32 v3, 15, v1')
        e('v_cndmask_b32 v4, v5, v4, vcc')
        e('v_min_u32 v3, 11, v3')
        e('v_mad_u32_u24 v2, v2, 9, v4')
        e('v_mad_u32_u24 v3, v3, 9, v4')
        e('v_lshlrev_b32 v2, 7, v2')
        e('v_lshlrev_b32 v3, 7, v3')
    e(f's_lshl_b32 s{FO}, s{TYP}, 13')
    if o.warmb:
        e(f's_cmp_eq_u32 s{TYP}, 1')
        e('s_cbranch_scc1 L_warmB')
        e('L_warmret:')
    e(f's_waitcnt vmcnt({(1 if o.mtouch == 1 else 0) + o.epoll}) lgkmcnt(0)')
    stamp(2)
    if o.padto and o.padev in ('m11', 'm12'):
        e(f's_lshr_b32 s46, s{RID}, 4')
        e('s_lshr_b32 s46, 0x33, s46')
        e('s_bitcmp1_b32 s46, 0')
        e(f's_cbranch_scc{1 if o.padev == "m11" else 0} L_pk')
        e('s_memrealtime s[100:101]'); e('s_waitcnt lgkmcnt(0)')
        e('L_pk:')
    e('s_mov_b64 exec, 1')
    e(f'ds_add_u32 v{VF+1}, v{VF+2} offset:8')
    e('s_mov_b64 exec, -1')
    e(f's_add_u32 s{TAG}, s{TAG}, {TAGINC}')
    e(f'v_mov_b32 v{VF+3}, s{TAG}')
    def flagwait(tag, vaddr, back):
        e(f'L_fw{tag}:')
        if o.diag and len(tag) == 2: e(f's_add_u32 s95, s95, {1 << (5 * int(tag[1]))}')
        e(f'buffer_load_dword v{VF+4}, v{vaddr}, {sr(S_WS)}, s{FO} offen sc1')
        e(f'ds_read_b32 v{VF+7}, v{VF+1} offset:12')
        e(f's_add_u32 s{NPOLL}, s{NPOLL}, 1')
        e('s_waitcnt vmcnt(0) lgkmcnt(0)')
        e(f'v_cmp_ne_u32 vcc, v{VF+3}, v{VF+4}')
        e(f'v_readfirstlane_b32 s46, v{VF+7}')
        e('s_nop 3')
        e(f's_cbranch_vccz {back}')
        e('s_cmp_lg_u32 s46, 0')
        e(f's_cbranch_scc1 {back}')
        e(f's_cmp_lg_u32 s{NPOLL}, {o.maxpoll}')
        e(f's_cbranch_scc1 L_fw{tag}')
        e(f'v_mov_b32 v{VF+7}, 0x10000')
        e('s_mov_b64 exec, 1')
        e(f'ds_add_u32 v{VF+1}, v{VF+7} offset:4')
        e('s_mov_b64 exec, -1')
        e(f's_branch L_fw{tag}')
    if o.epoll:
        e('s_cmp_eq_u32 s96, 0')
        e('s_cbranch_scc1 L_gate')
        e('s_waitcnt vmcnt(0)')
        e(f'v_cmp_ne_u32 vcc, v{VF+3}, v{VF+4}')
        e('s_nop 4')
        e('s_cbranch_vccz L_go')
    if o.gate:
        e('L_gate:')
        e(f'ds_read_b32 v{VF+4}, v{VF+1} offset:8')
        e('s_waitcnt lgkmcnt(0)')
        e(f'v_and_b32 v{VF+4}, 0xffff, v{VF+4}')
        e(f'v_cmp_gt_u32 vcc, 0x400, v{VF+4}')
        e('s_nop 4')
        e('s_cbranch_vccz L_gate2')
        e('s_sleep 1')
        e('s_branch L_gate')
        e('L_gate2:')
    if o.ppoll:
        e(f'buffer_load_dword v{VF+4}, v{VF}, {sr(S_WS)}, s{FO} offen sc1')
        e('L_pp:')
        for a_, b_ in ((VF + 4, 62), (62, VF + 4)):
            e(f's_sleep {o.ppoll}')
            e(f'buffer_load_dword v{b_}, v{VF}, {sr(S_WS)}, s{FO} offen sc1')
            e('s_waitcnt vmcnt(1)')
            e(f'v_cmp_ne_u32 vcc, v{VF+3}, v{a_}')
            e(f's_add_u32 s{NPOLL}, s{NPOLL}, 1')
            e('s_nop 3')
            e('s_cbranch_vccz L_go')
        e(f's_cmp_lt_u32 s{NPOLL}, 40')
        e('s_cbranch_scc1 L_pp')
        e(f's_mov_b32 s{NPOLL}, 0')
    if o.p0plain:
        e(f'buffer_load_dword v{VF+4}, v{VF}, {sr(S_WS)}, s{FO} offen')
        e('s_waitcnt vmcnt(0)')
        e(f'v_cmp_ne_u32 vcc, v{VF+3}, v{VF+4}')
        e('s_nop 4')
        e('s_cbranch_vccz L_go')
    if o.onepoll:
        e(f's_cmp_lt_u32 s{WAVE}, 2')
        e('s_cbranch_scc1 L_fw0')
        e('L_op:')
        e(f'ds_read_b32 v{VF+7}, v{VF+1} offset:8')
        e('s_waitcnt lgkmcnt(0)')
        e(f's_add_u32 s46, s{TYP}, 16')
        e(f'v_lshrrev_b32 v{VF+7}, s46, v{VF+7}')
        e(f'v_and_b32 v{VF+7}, 1, v{VF+7}')
        e(f'v_cmp_eq_u32 vcc, 0, v{VF+7}')
        e('s_nop 4')
        e('s_cbranch_vccnz L_op')
        e('s_branch L_go2')
    if not o.tagp: flagwait('0', VF, 'L_go')
    e('L_go:')
    if o.tagp: e('s_mov_b32 s50, s96')
    if o.onepoll:
        e(f's_lshl_b32 s46, 0x10000, s{TYP}')
        e(f'v_mov_b32 v{VF+7}, s46')
        e('s_mov_b64 exec, 1')
        e(f'ds_or_b32 v{VF+1}, v{VF+7} offset:8')
        e('s_mov_b64 exec, -1')
        e('L_go2:')
    stamp(3)
    e('L_gw:')
    e(f'ds_read_b32 v{VF+7}, v{VF+1} offset:8')
    e('s_waitcnt lgkmcnt(0)')
    e(f'v_and_b32 v{VF+7}, 0xff, v{VF+7}')
    e(f'v_cmp_ne_u32 vcc, 4, v{VF+7}')
    e('s_nop 4')
    e('s_cbranch_vccnz L_gw')
    stamp(4)
    e(f's_setprio {o.mprio}')
    e(f's_cmp_eq_u32 s{TYP}, 1')
    e('s_cbranch_scc1 L_typeB')

    ACC = {'P': 64, 'Q': 100}
    WR, TMP = 136, 224
    XRING = [200 + 4 * i for i in range(6)]
    XWIN = [4 + 4 * i for i in range(6)] + [240 + 4 * i for i in range(4)]
    VC = 28
    PF = o.pf
    GT = 98
    wflags = {0: '', 1: ' sc1', 2: ' nt', 3: ' sc0'}[o.wsc1]
    for typ, S in enumerate(streams()):
        if typ == 1:
            e('.p2align 6')
            if o.warmb: e('L_warmB:'); e('s_branch L_warmret')
            e('L_typeB:')
        ops = []
        vstart = {}
        lastv = o.vt - 1
        v0 = 0
        G0 = 0
        if o.flat0:
            for g in range(16):
                vstart[g] = len(ops)
                for j in (range(9) if g % 2 == 0 or not o.flatzz else range(8, -1, -1)): ops.append((g, j))
            v0 = G0 = 16
        while v0 <= lastv:
            ch = 1 if v0 < o.chfrom + G0 else min(o.chain, lastv + 1 - v0)
            n0 = len(ops)
            for j in range(8, -1, -1):
                us = range(ch) if j % 2 == 0 else range(ch - 1, -1, -1)
                first_ = [u for u in us if v0 + u - j == 0 or (0 < v0 + u - j < NSTEP and S[v0+u-j][4] == 'Q' and S[v0+u-j-1][4] == 'P')]
                if first_: us = range(ch)
                for u in us:
                    if G0 <= v0 + u - j < NSTEP: ops.append((v0 + u - j, j))
            for u in range(ch): vstart[v0 + u] = n0 + (len(ops) - n0) * u // ch
            v0 += ch
        ntail = len(ops)
        if o.tail:
            for j in range(9):
                for g in range(o.vt - j, NSTEP): ops.append((g, j))
        assert len(ops) == NSTEP * 9 and len(set(ops)) == len(ops)
        N = len(ops)
        def key(n):
            g, j = ops[n]
            pid, arr, ch, c, acc = S[g]
            k = (pid, arr, ch, c + j)
            if n >= ntail and g < GT: k = k + ((n,) if not o.hold else ('h',))
            return k
        first, last = {}, {}
        for n in range(N):
            first.setdefault(key(n), n); last[key(n)] = n
        wfirst, wlast = {}, {}
        for n, (g, j) in enumerate(ops):
            wfirst.setdefault(g, n); wlast[g] = n
        tasks = []
        for k, n0 in first.items():
            win = o.tail and k[2] == 'rem' and k[1] == 'D'
            la = o.xla if n0 < ntail else 6
            if n0 >= ntail and ops[n0][1] == 0: la = o.tla
            elif win: la = 12
            tasks.append([n0 - la, n0 - 1, 'X', k])
        for g in range(NSTEP):
            rel = -100 + g if g < o.pf0 else max(0, wfirst[g] - 9 * PF)
            if o.tagp and g < 16:
                rel = -100 + g if g < 4 else max(0, wfirst[g] - 9 * o.tpf)
                tasks.append([rel, wfirst[g & ~1] - 9, 'W', g])
                continue
            tasks.append([rel, wfirst[g] - 1, 'W', g])
        def at(v, off=0): return vstart[v] + off
        firstD = min(n for n in range(N) if S[ops[n][0]][1] == 'D')
        lastO = max(n for n in range(N) if S[ops[n][0]][1] == 'O')
        lastP = {j: max(n for n in range(N) if ops[n][1] == j and S[ops[n][0]][4] == 'P') for j in range(9)}
        slow = []
        vused = set()
        def check(v, off, cnt, tag):
            tasks.append([at(v - 1, 3), at(v - 1, 8), 'L', (f'ds_read_b32 v{VC}, v{VF+1} offset:{off}', ('c', tag))])
            tasks.append([at(v, 0), at(v, 1), 'C', (f'v_cmp_ne_u32 vcc, {cnt}, v{VC}', ('c', tag))])
            tasks.append([at(v, 6), at(v, 7), 'I', [f's_cbranch_vccnz L_slow{typ}{tag}', f'L_back{typ}{tag}:']])
            slow.append((tag, off, cnt))
            vused.add(v)
            return at(v, 8)
        def add1(pos, off):
            tasks.append([pos, pos + 4, 'A', off])
        vD = [v for v in vstart if vstart[v] <= firstD - o.xla][-1] - 1
        okD = check(vD, 16, 4, 'D')
        assert okD <= firstD - o.xla
        add1(lastO, 20)
        VP = 47
        okR = check(VP, 20, 4, 'R')
        for j in range(9):
            assert lastP[j] + 12 < at(VP + 1 + j, 2)
            tasks.append([at(VP + 1 + j, 2), at(VP + 1 + j, 8), 'L', (f'ds_write_b128 v{VEX}, {vr(ACC["P"]+4*j,4)} offset:{1024*j}', ('pw', j))])
        tasks.append([at(VP + 10, 0), at(VP + 10, 4), 'A', 'pair'])
        VQ = VP + 13
        okP = check(VQ, 'pair', 2, 'P')
        for j in range(9):
            tasks.append([at(VQ + 1 + j, 2), at(VQ + 1 + j, 8), 'L', (f'ds_read_b128 {vr(TMP+4*(j&1),4)}, v{VEXP} offset:{1024*j}', ('pr', j))])
            v = VQ + 2 + j
            pos = at(v, 8 - (j + 2) - 1) if j <= 6 else at(v, 8 - (j - 7) - 1)
            sh = 1 if j >= 7 else 0
            if o.chain > 1:
                own = [n for n in range(N) if ops[n][1] == j]
                pos = [a_ + 10 for a_, b_ in zip(own, own[1:]) if b_ - a_ >= 14 and a_ + 9 >= at(v, 0) ][0]
                sh = 0
                tasks[-1][0] = pos - 9; tasks[-1][1] = pos - 4
                tasks[-1][3] = (f'ds_read_b128 {vr(TMP+4*(j&3),4)}, v{VEXP} offset:{1024*j}', ('pr', j))
            tasks.append([pos - 1 + sh, pos - 1 + sh, 'Q', (j, 0)])
            tasks.append([pos + sh, pos + sh, 'Q', (j, 1)])
        if typ == 0:
            tasks.append([at(64, 4), at(64, 8), 'S', f'buffer_store_dword v{VCL+1}, v{VCL}, {sr(S_DBG)}, 0 offen sc1'])
            tasks.append([at(84, 4), at(84, 8), 'S', f'buffer_store_dword v{VF+3}, v{VCL+1}, {sr(S_WS)}, 0 offen sc1'])
        fslow = []
        kslow = []
        if o.tagp:
            for g in range(0, 16, 2):
                n0 = wfirst[g]
                if g < 4: continue
                tasks.append([n0 - 8, n0 - 7, 'K', g])
                tasks.append([n0 - 2, n0 - 1, 'I', ['s_cmp_lg_u64 s[48:49], 0', f's_cbranch_scc1 L_ks{typ}{g}', f'L_kb{typ}{g}:']])
        passes = {}
        for g in range(NSTEP): passes.setdefault(S[g][0], g)
        need = [(passes[1], VF, 32 + 64 * typ), (32, VF + 6, 128), (passes[4], VF, 176), (passes[5], VF, 208), (passes[6], VF + 6, 240)]
        if o.yall: need[2:] = [(passes[4], 2, 176), (passes[5], 2, 176 + 72), (passes[6], 3, 176 + 144)]
        for ci, (gn, va, idx) in enumerate(need):
            v = gn - o.pfcs[ci] - 1
            while v in vused: v -= 1
            tasks.append([at(v - o.fleads[ci], 4), at(v - o.fleads[ci], 8), 'F', (va, idx, ci)])
            tasks.append([at(v, 0), at(v, 1), 'G', ci])
            tasks.append([at(v, 6), at(v, 7), 'I', [f's_cbranch_vccnz L_fw{typ}{ci}', f'L_fb{typ}{ci}:']])
            fslow.append((ci, va))
            assert v not in vused, v
            for t in tasks:
                if t[2] == 'W' and (t[3] >= gn): t[0] = max(t[0], at(v, 8))
        tasks.append([at(v + 1, 2), at(v + 1, 8), 'A', 4])
        if typ == 0:
            for lvl, v in enumerate(o.trig): tasks.append([at(v, 2), at(v, 8), 'P', lvl + 1])
        tasks.sort(key=lambda t: (t[0], t[1]))
        vq, lq = [], []
        dirty = [False]
        xreg, busy = {}, {}
        wn = [0]
        wr = {}
        lastw = [-100]
        later = []
        BIG = [WR + 4 * i for i in range(16)] + XWIN + [ACC['P'] + 4 * i for i in range(9)]
        for i in range(9): busy[ACC['P'] + 4 * i] = at(VP + 12)
        until = {}
        if o.chain > 1:
            BIG += XRING + [VA, VA + 4, VA + 8]
            for i in range(9):
                BIG.append(ACC['Q'] + 4 * i)
                until[ACC['Q'] + 4 * i] = min(n for n in range(N) if ops[n][1] == i and S[ops[n][0]][4] == 'Q') - 3
        def freeregs(n, end): return [x for x in BIG if busy.get(x, -1) <= n and end < until.get(x, 10**9)]
        def freepairs(n, end):
            f_ = set(freeregs(n, end))
            return [x for x in sorted(f_) if x % 8 == PAR8.get(x, -1) and x + 4 in f_]
        PAR8 = {x: x % 8 for x in list(range(WR, WR + 64, 8)) + [4, 12, 20, 240, 248, 200, 208, 216, 100, 108, 116, 124, VA]}
        def kcheck(g):
            vwait(g + 1)
            for i, gg in enumerate((g, g + 1)):
                a_ = wr[gg] - 2
                em(f'v_bitop3_b32 v{VC+i}, v{a_+1}, v{a_+6}, v{VF+3} bitop3:0x7e')
            em(f'v_or_b32 v{VC}, v{VC}, v{VC+1}')
            em(f'v_cmp_ne_u32 s[48:49], 0, v{VC}')
            kslow.append((g, wr[g] - 2, wr[g + 1] - 2))
        def wok(t, n):
            if t[2] != 'W': return True
            if t[3] != wn[0]: return False
            if o.tagp and t[3] < 16:
                return bool(freepairs(n, wlast[t[3]])) and (n - lastw[0] >= 2 or t[1] - n <= 4)
            free = len(freeregs(n, wlast[t[3]]))
            if t[1] - n <= 9 * 3: return free > 0
            return n - lastw[0] >= o.wgap and free > o.wres
        since = {}
        fill = []
        def em(x):
            e(x)
            if not x.endswith(':'):
                for jj in since: since[jj] += 1
        def lwait(tag):
            if tag not in lq: return
            i = lq.index(tag)
            em(f's_waitcnt lgkmcnt({0 if dirty[0] else len(lq)-1-i})')
            if dirty[0]: lq.clear(); dirty[0] = False
            else: del lq[:i + 1]
        def vwait(g):
            if g not in vq: return
            i = vq.index(g)
            em(f's_waitcnt vmcnt({len(vq)-1-i})')
            del vq[:i + 1]
        def run(t, n):
            kind, p = t[2], t[3]
            if kind == 'X':
                pool = BIG if (o.chain > 1 or p[-1] == 'h' or (p[2] == 'rem' and p[1] == 'D')) else XRING
                r = [x for x in pool if busy.get(x, -1) <= n and last[p] < until.get(x, 10**9)]
                assert r, ('no x register', p, n)
                r = min(r, key=lambda x: (until.get(x, 10**9), busy.get(x, -1)))
                busy[r] = last[p]; xreg[p] = r
                arr, ch, s_ = p[1], p[2], p[3]
                if o.nolds and n > 9 * 30: return
                if ch == 'rem': em(f'ds_read_b128 {vr(r,4)}, v{VXOR if arr == "O" else VXDR} offset:{288*s_}')
                else: em(f'ds_read_b128 {vr(r,4)}, v{VXO if arr == "O" else VXD} offset:{64*ch+288*s_}')
                lq.append(p)
            elif kind == 'W':
                g = p
                if o.tagp and g < 16:
                    r = min(freepairs(n, wlast[g]), key=lambda x: (until.get(x, 10**9), busy.get(x, -1)))
                    busy[r] = busy[r + 4] = wlast[g]; wr[g] = r + 2
                    assert g == wn[0]; wn[0] += 1
                    lastw[0] = n
                    em(f'buffer_load_dwordx4 {vr(r,4)}, v{VWL}, {sr(S_WS)}, s50 offen offset:{2048*(g%2)}')
                    em(f'buffer_load_dwordx4 {vr(r+4,4)}, v{VWL}, {sr(S_WS)}, s50 offen offset:{2048*(g%2)+1024}')
                    vq.append(('h', g)); vq.append(g)
                    if g % 2 == 1:
                        if n < 0: em('s_add_u32 s50, s50, 4096')
                        else: later.append('s_add_u32 s50, s50, 4096')
                    return
                r = min(freeregs(n, wlast[g]), key=lambda x: (until.get(x, 10**9), busy.get(x, -1)))
                busy[r] = wlast[g]; wr[g] = r
                assert g == wn[0]; wn[0] += 1
                lastw[0] = n
                if o.now and g > 40: return
                if o.wsame and g > 40:
                    em(f'buffer_load_dwordx4 {vr(r,4)}, v{VWL}, {sr(S_WS)}, s{WSO} offen offset:{1024*(g%4)}{wflags}'); vq.append(g); return
                em(f'buffer_load_dwordx4 {vr(r,4)}, v{VWL}, {sr(S_WS)}, s{WSO} offen offset:{1024*(g%4)}{wflags}')
                if g % 4 == 3:
                    if n < 0: em(f's_add_u32 s{WSO}, s{WSO}, 4096')
                    else: later.append(f's_add_u32 s{WSO}, s{WSO}, 4096')
                vq.append(g)
            elif kind == 'L':
                em(p[0].replace('offset:pair', 'offset:24').replace(f'v{VF+1} offset:24', f'v{VF+5} offset:24')); lq.append(p[1])
            elif kind == 'C':
                lwait(p[1]); em(p[0])
            elif kind == 'I':
                for x in p: em(x)
            elif kind == 'A':
                em('s_mov_b64 exec, 1')
                if p == 'pair': em(f'ds_add_u32 v{VF+5}, v{VF+2} offset:24')
                else: em(f'ds_add_u32 v{VF+1}, v{VF+2} offset:{p}')
                em('s_mov_b64 exec, -1')
                lq.append(('a', p))
            elif kind == 'Q':
                p, hf = p
                lwait(('pr', p))
                q = ACC['Q'] + 4 * p; t_ = TMP + 4 * (p & (3 if o.chain > 1 else 1))
                for i in (2 * hf, 2 * hf + 1): em(f'v_add_f32 v{q+i}, v{q+i}, v{t_+i}')
            elif kind == 'S':
                assert not any(isinstance(x, tuple) and x[0] == 's' for x in vq)
                em(p); vq.append(('s', n))
            elif kind == 'F':
                em(f's_mov_b32 s{FO}, {128*p[1]}')
                em(f'buffer_load_dword v{VF+4}, v{p[0]}, {sr(S_WS)}, s{FO} offen {o.fflags}'); vq.append(('f', p[2]))
            elif kind == 'K':
                kcheck(p)
            elif kind == 'G':
                vwait(('f', p)); em(f'v_cmp_ne_u32 vcc, v{VF+3}, v{VF+4}')
            elif kind == 'P':
                em(f'v_mov_b32 v{VF+7}, {p}')
                em('s_mov_b64 exec, 1')
                em(f'ds_max_u32 v{VF+1}, v{VF+7}')
                em('s_mov_b64 exec, -1')
                lq.append(('p', p))
        def epi(j, pk):
            q = ACC['Q'] + 4 * j
            t = TMP + 8 * (j & 1)
            I = []
            if pk:
                I.append(f'v_pk_mul_f32 {vr(t,2)}, {vr(q,2)}, s[{C2L}:{C2L+1}]')
                I.append(f'v_pk_mul_f32 {vr(t+2,2)}, {vr(q+2,2)}, s[{CNL}:{CNL+1}]')
            else:
                for i in (0, 1): I.append(f'v_mul_f32 v{t+i}, s{C2L}, v{q+i}')
                for i in (2, 3): I.append(f'v_mul_f32 v{t+i}, s{CNL}, v{q+i}')
            I.append(f'v_min_f32 v{t}, s{C60}, v{t}')
            I.append(f'v_min_f32 v{t+1}, s{C60}, v{t+1}')
            for i in (0, 1, 2, 3): I.append(f'v_exp_f32 v{t+i}, v{t+i}')
            if pk:
                I.append(f'v_pk_add_f32 {vr(t+4,2)}, {vr(t,2)}, 1.0 op_sel_hi:[1,0]')
                I.append(f'v_pk_add_f32 {vr(t+6,2)}, {vr(t,2)}, -1.0 op_sel_hi:[1,0]')
                I.append(f'v_pk_fma_f32 {vr(t+4,2)}, {vr(t+4,2)}, {vr(t+2,2)}, {vr(t+4,2)}')
            else:
                for i in (0, 1): I.append(f'v_add_f32 v{t+4+i}, 1.0, v{t+i}')
                for i in (0, 1): I.append(f'v_fma_f32 v{t+4+i}, v{t+4+i}, v{t+2+i}, v{t+4+i}')
            I.append(f'v_rcp_f32 v{t+4}, v{t+4}')
            I.append(f'v_rcp_f32 v{t+5}, v{t+5}')
            if pk:
                I.append('s_nop 0')
                I.append(f'v_pk_mul_f32 {vr(t+6,2)}, {vr(t+6,2)}, {vr(t+4,2)}')
            else:
                for i in (0, 1): I.append(f'v_add_f32 v{t+6+i}, -1.0, v{t+i}')
                for i in (0, 1): I.append(f'v_mul_f32 v{t+6+i}, v{t+6+i}, v{t+4+i}')
            I.append(f'v_cvt_pk_bf16_f32 v{q}, v{t+6}, v{t+7}')
            I.append(f'buffer_store_dword v{q}, v{VOUT + j//3}, {sr(S_OUT)}, 0 offen offset:{1152*(j%3)} {o.oflags if j < o.oj else ""}')
            return I
        def cost(x): return 2 if x.startswith(('v_exp', 'v_rcp', 'buffer')) else 1
        while tasks and tasks[0][0] < 0: run(tasks.pop(0), -1)
        if o.tagp:
            for g in (0, 2):
                vwait(g + 1)
                for gg in (g + 4, g + 5):
                    t_ = [t for t in tasks if t[2] == 'W' and t[3] == gg][0]
                    tasks.remove(t_); run(t_, -1)
                kcheck(g)
                em('s_nop 2')
                em('s_cmp_lg_u64 s[48:49], 0')
                em(f's_cbranch_scc1 L_ks{typ}{g}')
                em(f'L_kb{typ}{g}:')
        inv = {n: v for v, n in vstart.items()}
        lastop = {j: max(n for n in range(N) if ops[n][1] == j) for j in range(9)}
        for n, (g, j) in enumerate(ops):
            if n in inv and o.padto and o.padev == 'm5' and inv[n] == o.padstep:
                e('s_memrealtime s[100:101]'); dirty[0] = True
            if n in inv and o.diag:
                v = inv[n]
                if o.diag == 2 and v in o.marks:
                    kk = o.marks.index(v)
                    e(f's_memtime s[{ST0+2*kk}:{ST0+2*kk+1}]'); dirty[0] = True
                if o.diag in (1, 4) and v == 33: stamp(5); stamp(6); dirty[0] = True
            k = key(n)
            assert k in xreg, (k, n)
            lwait(k); vwait(g)
            acc = S[g][4]
            d = ACC[acc] + 4 * j
            if g == 0: cs = '0'
            elif acc == 'Q' and S[g-1][4] == 'P': cs = vr(ACC['P'] + 4 * j, 4)
            else: cs = vr(d, 4)
            em(f'v_mfma_f32_16x16x32_bf16 {vr(d,4)}, {vr(wr[g],4)}, {vr(xreg[k],4)}, {cs}' if not o.swapab else f'v_mfma_f32_16x16x32_bf16 {vr(d,4)}, {vr(xreg[k],4)}, {vr(wr[g],4)}, {cs}')
            if n == lastop[j]: since[j] = 0
            while later: em(later.pop(0))
            budget = 2
            TC = {'X': 1, 'W': 2, 'L': 2, 'C': 1, 'I': 0, 'A': 1, 'Q': 2, 'S': 2, 'F': 2, 'G': 1, 'P': 2, 'K': 2}
            while True:
                ready = [t for t in tasks if t[0] <= n and wok(t, n)]
                if not ready: break
                t = min(ready, key=lambda t: t[1])
                assert t[1] >= n, ('late', t, n)
                if TC[t[2]] > budget and t[1] > n:
                    fit = [u for u in ready if TC[u[2]] <= budget]
                    if not fit: break
                    t = min(fit, key=lambda t: t[1])
                tasks.remove(t); run(t, n); budget -= TC[t[2]]
            for jj in sorted(since):
                if 8 <= since[jj] < 10**6:
                    fill += epi(jj, False); since[jj] = 10**6
            budget += o.nfill - 2
            while fill and budget >= cost(fill[0]):
                budget -= cost(fill[0])
                if fill[0].startswith('buffer_store'):
                    q_ = int(re.match(r'buffer_store_dword v(\d+)', fill[0]).group(1))
                    until.pop(q_, None); busy[q_] = n + 2
                em(fill.pop(0))
            assert all(t[1] > n for t in tasks), ('late', n, [t for t in tasks if t[1] <= n])
        assert not tasks
        stamp(7)
        while fill: em(fill.pop(0))
        for jj in [jj for jj in sorted(since) if since[jj] < 10**6]:
            if since[jj] < 8: em(f's_nop {8-since[jj]-1}')
            for x in epi(jj, True): em(x)
        stamp(8)
        if o.padto and o.padev[0] == 'm': padloop(typ)
        if o.diag == 1:
            e('s_waitcnt vmcnt(0)')
            stamp(9)
            dump(10)
        if o.diag == 2:
            kk = len(o.marks)
            e(f's_memtime s[{ST0+2*kk}:{ST0+2*kk+1}]')
            dump(10)
        e('s_endpgm')
        for tag, off, cnt in slow:
            e(f'L_slow{typ}{tag}:')
            e(f'ds_read_b32 v{VC}, v{VF+5 if off == "pair" else VF+1} offset:{24 if off == "pair" else off}')
            e('s_waitcnt lgkmcnt(0)')
            e(f'v_cmp_ne_u32 vcc, {cnt}, v{VC}')
            e('s_nop 4')
            e(f's_cbranch_vccnz L_slow{typ}{tag}')
            e(f's_branch L_back{typ}{tag}')
        for ci, va in fslow: flagwait(f'{typ}{ci}', va, f'L_fb{typ}{ci}')
        for g, a0_, a1_ in kslow:
            e(f'L_ks{typ}{g}:')
            if o.diag: e(f's_add_u32 s95, s95, {1 << 25}')
            e(f'ds_read_b32 v{VF+7}, v{VF+1} offset:12')
            e(f's_add_u32 s47, s96, {2048*g}')
            e('s_waitcnt lgkmcnt(0)')
            for i, a_ in enumerate((a0_, a0_ + 4, a1_, a1_ + 4)):
                e(f'buffer_load_dwordx4 {vr(a_,4)}, v{VWL}, {sr(S_WS)}, s47 offen offset:{1024*i} sc1')
            e(f'v_readfirstlane_b32 s46, v{VF+7}')
            e(f's_add_u32 s{NPOLL}, s{NPOLL}, 1')
            e('s_waitcnt vmcnt(0)')
            e('s_cmp_lg_u32 s46, 0')
            e(f's_cbranch_scc1 L_kb{typ}{g}')
            e(f'v_bitop3_b32 v{VC}, v{a0_+1}, v{a0_+6}, v{VF+3} bitop3:0x7e')
            e(f'v_bitop3_b32 v{VC+1}, v{a1_+1}, v{a1_+6}, v{VF+3} bitop3:0x7e')
            e(f'v_or_b32 v{VC}, v{VC}, v{VC+1}')
            e(f'v_cmp_ne_u32 s[48:49], 0, v{VC}')
            e('s_nop 2')
            e('s_cmp_eq_u64 s[48:49], 0')
            e(f's_cbranch_scc1 L_kb{typ}{g}')
            e(f's_cmp_lg_u32 s{NPOLL}, {o.maxpoll}')
            e(f's_cbranch_scc1 L_ks{typ}{g}')
            e(f'v_mov_b32 v{VF+7}, 0x10000')
            e('s_mov_b64 exec, 1')
            e(f'ds_add_u32 v{VF+1}, v{VF+7} offset:4')
            e('s_mov_b64 exec, -1')
            e(f's_branch L_ks{typ}{g}')

    mark['help0'] = len(e.L)
    if not o.hfirst: e('.p2align 6')
    e('L_helper:')
    role[0] = 'h'
    e(f's_setprio {o.hprio}')
    e(f's_sub_u32 s{TW0}, s{WAVE}, 4')
    e(f's_mov_b32 s{TW1}, s{WAVE}')
    e(f's_sub_u32 s{PAIR}, s{RID}, {NPROD}')
    e(f's_cselect_b32 s{PAIR}, s{RID}, s{PAIR}')
    e(f's_mov_b32 s{MODE}, 0')
    e(f's_mov_b32 s{NOTASK}, s{RID}')
    e(f's_mov_b32 s{HAS3}, s{TW0}')
    e(f's_lshl_b32 s{SCRB}, s{TW0}, 12')
    e(f's_add_u32 s{SCRB}, s{SCRB}, {SCR}')
    e('L_prod:')
    T = [(28, TW0, 2, 52, 0), (36, TW1, 4, 53, 2048), (44, TW2, 6, 54, 16384)]
    c, kp, q, cc, kk, t = 46, 47, 48, 49, 50, 51
    b = TS
    e('v_mov_b32 v19, 4320')
    e('v_and_b32 v23, 3, v1')
    e('v_lshrrev_b32 v24, 2, v1')
    e('v_mul_u32_u24 v24, 288, v24')
    for (vb, sw, vl, vs, so) in T:
        e(f'v_lshl_add_u32 v8, s{sw}, 2, v23' if sw != TW2 else 'v_add_u32 v8, 32, v23')
        e('v_cmp_le_u32 vcc, 18, v8')
        e(f'v_lshl_add_u32 v{vl}, v8, 4, v24')
        e(f'v_add_u32 v9, v{vl}, v19')
        e(f'v_cndmask_b32 v{vl}, v{vl}, v9, vcc')
    e(f's_and_b32 s{c}, s{PAIR}, 15')
    e(f's_lshr_b32 s{kp}, s{PAIR}, 4')
    e(f's_mul_i32 s{b}, s{c}, 165888')
    e(f's_mul_i32 s{t}, s{kp}, 9216')
    e(f's_add_u32 s{b}, s{b}, s{t}')
    e(f's_add_u32 s{b+1}, s{b}, 82944')
    e(f's_mov_b32 s{S_W+2}, 2571264')
    e(f's_mov_b32 s{S_W+3}, 0x20000')
    e(f's_mov_b32 s{S_WO+3}, s{S_W+3}')
    e(f's_cmp_lg_u32 s{c}, 15')
    e(f's_cselect_b32 s{S_WO+2}, s{S_W+2}, 0')
    e(f's_mov_b32 m0, s{SCRB}')
    e('s_waitcnt lgkmcnt(0)')
    e(f's_mov_b32 s{S_W}, s6')
    e(f's_and_b32 s{S_W+1}, s7, 0xffff')
    e(f's_mov_b32 s{S_WO}, s6')
    e(f's_and_b32 s{S_WO+1}, s7, 0xffff')
    e(f's_cmp_ge_u32 s{NOTASK}, {NTASK}')
    e('s_cbranch_scc1 L_a3')
    def cond3(lbl):
        e(f's_cmp_lg_u32 s{HAS3}, 0')
        e(f's_cbranch_scc1 {lbl}')
    for ti, (vb, sw, vl, vs, so) in enumerate(T):
        if ti == 2: cond3('L_a3')
        if ti == 1: e('s_addk_i32 m0, 1024'); e('s_nop 0')
        e(f'buffer_load_dwordx4 v{vl}, {sr(S_W)}, s{b} offen lds')
        e('s_addk_i32 m0, 1024')
        e('s_nop 0')
        e(f'buffer_load_dwordx4 v{vl}, {sr(S_WO)}, s{b+1} offen lds')
        if ti == 1: e(f's_addk_i32 m0, {16384-3072}')
    e('L_a3:')
    stamp(1)
    e(f's_cmp_lg_u32 s{MODE}, 0')
    e('s_cbranch_scc1 L_a4')
    e(f's_load_dword s{TAG}, s[12:13], {NONCE}')
    e(f's_lshr_b32 s{EARLY}, 0x33, s{kp}')
    e(f's_and_b32 s{EARLY}, s{EARLY}, 1')
    e(f's_sub_u32 s{XK}, 2, s{EARLY}')
    e(f's_lshl_b32 s{t}, s{kp}, 1')
    e(f's_lshr_b32 s{YT}, {(3<<12)+(3<<14)+(3<<16)}, s{t}')
    e(f's_and_b32 s{YT}, s{YT}, 3')
    e(f's_lshr_b32 s{t}, s{kp}, 1')
    e(f's_cmp_ge_u32 s{RID}, {NPROD}')
    e(f's_cselect_b32 s{EARLY}, 0, s{EARLY}')
    e(f's_cselect_b32 s{XK}, 3, s{XK}')
    e(f's_cselect_b32 s{YT}, s{t}, s{YT}')
    e(f's_cmp_ge_u32 s{RID}, {NPROD+32}')
    e(f's_cselect_b32 s{XK}, 0, s{XK}')
    e(f's_cmp_ge_u32 s{RID}, {NTASK}')
    e(f's_cselect_b32 s{YT}, 0, s{YT}')
    if not o.b0early:
        e(f's_cmp_lg_u32 s{EARLY}, 0')
        e('s_cbranch_scc1 L_a4')
    e('s_barrier')
    e('L_a4:')
    e(f's_mov_b32 s{MASK}, 0xffff0000')
    e(f's_mov_b32 s{NPOLL}, 0')
    srd(e, S_WS, 12, WS_REC)
    srd(e, S_DBG, 10, 256)
    e(f'v_mov_b32 v10, {CNT}')
    e(f'v_mov_b32 v20, {(256 - 18*NSTR) & 0xffffffff}')
    e(f'v_mov_b32 v26, {NSTR}')
    e('v_bfe_u32 v21, v1, 2, 2')
    e('v_lshlrev_b32 v21, 7, v21')
    e('v_and_b32 v22, 1, v1')
    e('v_lshl_add_u32 v21, v22, 6, v21')
    e('v_bfe_u32 v22, v1, 1, 1')
    e('v_lshl_add_u32 v21, v22, 3, v21')
    e('v_lshrrev_b32 v22, 4, v1')
    e('v_lshl_add_u32 v21, v22, 4, v21')
    e(f'v_add_u32 v21, s{SCRB}, v21')
    if o.yall: e('v_mov_b32 v62, v21')
    e('v_and_b32 v25, 15, v1')
    e('v_lshlrev_b32 v25, 4, v25')
    for (vb, sw, vl, vs, so) in T:
        e(f'v_lshl_add_u32 v8, s{sw}, 2, v22' if sw != TW2 else 'v_add_u32 v8, 32, v22')
        e('v_cmp_le_u32 vcc, 18, v8')
        e(f'v_mad_u32_u24 v{vs}, v8, v26, v25')
        e(f'v_add_u32 v9, v{vs}, v20')
        e(f'v_cndmask_b32 v{vs}, v{vs}, v9, vcc')
    if o.tagp:
        e(f's_cmp_eq_u32 s{WAVE}, 4')
        e(f's_cselect_b32 s{t}, 1, s{EARLY}')
        e(f's_cmp_lg_u32 s{t}, 0')
        e(f's_cselect_b32 s{t}, 4, -16')
        e(f'v_mov_b32 v9, s{t}')
        e('s_waitcnt lgkmcnt(0)')
        e('s_mov_b64 exec, 1')
        e(f'buffer_load_dword v27, v9, {sr(S_DBG)}, 0 offen sc1')
        e('s_mov_b64 exec, -1')
        e(f's_lshr_b32 s97, 0x33, s{kp}')
        e('s_and_b32 s97, s97, 1')
        e(f's_lshr_b32 s96, s{kp}, 2')
        e('s_lshl_b32 s96, s96, 4')
        e(f's_add_u32 s96, s96, s{c}')
        e('s_lshl_b32 s96, s96, 2')
        e(f's_and_b32 s{t}, s{kp}, 1')
        e(f's_add_u32 s96, s96, s{t}')
        e('s_lshl_b32 s96, s96, 9')
        e(f's_add_u32 s96, s96, {WOFF + 2*NSTEP*1024}')
    e(f's_lshr_b32 s{q}, s{kp}, 1')
    e(f's_and_b32 s{cc}, s{c}, 7')
    e(f's_lshr_b32 s{kk}, s{c}, 3')
    e(f's_and_b32 s{t}, s{kp}, 1')
    e(f's_cmp_eq_u32 s{kp}, 8')
    e(f's_cselect_b32 s{cc}, s{cc}, s{c}')
    e(f's_cselect_b32 s{kk}, s{kk}, s{t}')
    e(f's_lshl_b32 s{kk}, s{kk}, 9')
    e(f's_add_u32 s{kk}, s{kk}, {WOFF}')
    e(f's_lshl_b32 s{t}, s{q}, 4')
    e(f's_add_u32 s{b+2}, s{t}, s{cc}')
    e(f's_sub_u32 s{b+3}, s{b+2}, s{q}')
    e(f's_cmp_ge_u32 s{q}, 2')
    e(f's_cselect_b32 s{b+4}, 74, 0')
    e(f's_add_u32 s{b+4}, s{b+4}, s{b+2}')
    e(f's_cmp_lt_u32 s{cc}, 2')
    e(f's_cselect_b32 s{t}, 32, 136')
    e(f's_add_u32 s{t}, s{t}, s{cc}')
    e(f's_cmp_eq_u32 s{kp}, 8')
    e(f's_cselect_b32 s{b+4}, s{t}, s{b+4}')
    e(f's_add_u32 s{b+2}, s{b+2}, 34')
    e(f's_add_u32 s{b+3}, s{b+3}, 144')
    for k in (2, 3, 4):
        e(f's_lshl_b32 s{b+k}, s{b+k}, 10')
        e(f's_add_u32 s{b+k}, s{b+k}, s{kk}')
    e(f's_cmp_eq_u32 s{kp}, 8')
    e(f's_cselect_b32 s{t}, 1, 2')
    e(f's_cmp_eq_u32 s{c}, 15')
    e(f's_cselect_b32 s{b+5}, s{t}, 0')
    e(f's_lshl_b32 s46, s{WAVE}, 2')
    e(f's_add_u32 s46, s46, {CNT+16}')
    e('v_mov_b32 v55, s46')
    if o.tagp:
        e('s_waitcnt vmcnt(1)')
        stamp(2)
        e(f's_cmp_ge_u32 s{NOTASK}, {NTASK}')
        e('s_cbranch_scc1 L_x9')
    else:
        e('v_mov_b32 v27, 0')
        e('v_mov_b32 v9, 4')
        e('s_waitcnt vmcnt(0) lgkmcnt(0)')
        stamp(2)
        e(f's_cmp_lg_u32 s{WAVE}, 4')
        e('s_cbranch_scc1 L_a5')
        e('s_mov_b64 exec, 1')
        e(f'buffer_load_dword v27, v9, {sr(S_DBG)}, 0 offen sc1')
        e('s_mov_b64 exec, -1')
        e('L_a5:')
        e(f's_cmp_ge_u32 s{NOTASK}, {NTASK}')
        e('s_cbranch_scc1 L_x9')
    for (vb, sw, vl, vs, so) in T:
        for tap in range(2):
            for half in range(2):
                e(f'ds_read_b64_tr_b16 {vr(vb+4*tap+2*half,2)}, v21 offset:{so+1024*tap+512*half}')
    nlab = [0]
    def st01(vb, vs):
        nlab[0] += 1
        e(f'buffer_store_dwordx4 {vr(vb,4)}, v{vs}, {sr(S_WS)}, s{b+2} offen {o.stf}')
        e(f's_cmp_eq_u32 s{b+5}, 2')
        e(f's_cbranch_scc1 L_skip{nlab[0]}')
        e(f'buffer_store_dwordx4 {vr(vb+4,4)}, v{vs}, {sr(S_WS)}, s{b+3} offen {o.stf}')
        e(f'L_skip{nlab[0]}:')
    def st01all(lbl):
        st01(T[0][0], T[0][3]); st01(T[1][0], T[1][3])
        cond3(lbl)
        st01(T[2][0], T[2][3])
    def dosum(vb, tb, ob):
        for i in range(8):
            e(f'v_lshlrev_b32 v{tb+2*i}, 16, v{vb+i}')
            e(f'v_and_b32 v{tb+2*i+1}, s{MASK}, v{vb+i}')
        for i in range(4):
            e(f'v_pk_add_f32 {vr(tb+2*i,2)}, {vr(tb+2*i,2)}, {vr(tb+8+2*i,2)}')
        for i in range(4):
            e(f'v_cvt_pk_bf16_f32 v{ob+i}, v{tb+2*i}, v{tb+2*i+1}')
    def ldswait(off, cmp, operand, tag, slp):
        e(f'L_lw{tag}:')
        e(f'ds_read_b32 v11, v10 offset:{off}')
        e('s_waitcnt lgkmcnt(0)')
        e('v_and_b32 v11, 0xff, v11')
        e(f'v_cmp_{cmp}_u32 vcc, {operand}, v11')
        e('s_nop 4')
        e(f's_cbranch_vccnz L_lx{tag}')
        e(f's_sleep {slp}')
        e(f's_branch L_lw{tag}')
        e(f'L_lx{tag}:')
    SOR = lambda ti: (210 + 8 * ti) if o.tagp else (240 + 4 * ti)
    e(f's_or_b32 s46, s{EARLY}, s{MODE}')
    e(f's_cmp_eq_u32 s{XK}, 2')
    e('s_cselect_b32 s47, 1, s46')
    if o.xl: e('s_mov_b32 s46, s47')
    e('s_cmp_eq_u32 s47, 0')
    e('s_cbranch_scc1 L_x9')
    for ti, (vb, sw, vl, vs, so) in enumerate(T):
        if ti == 2: cond3('L_x3')
        e(f's_waitcnt lgkmcnt({8-4*ti})')
        dosum(vb, 64 + 16 * ti, SOR(ti))
        e('s_cmp_eq_u32 s46, 0')
        e(f's_cbranch_scc1 L_x5{ti}')
        if o.tagp:
            e('s_cmp_eq_u32 s97, 0')
            e(f's_cbranch_scc1 L_x6{ti}')
            if ti == 0:
                e('s_waitcnt vmcnt(0)')
                e('v_readfirstlane_b32 s48, v27')
                e(f's_add_u32 s49, s{TAG}, {TAGINC}')
                e('s_not_b32 s47, s49')
                e(f's_or_b32 s48, s48, s{MODE}')
                e('s_cselect_b32 s49, s47, s49')
            e(f'v_mov_b32 v{SOR(ti)-1}, s49')
            e(f'v_mov_b32 v{SOR(ti)+4}, s49')
            e(f'buffer_store_dwordx4 {vr(SOR(ti)-2,4)}, v{vs}, {sr(S_WS)}, s96 offen {o.stf}')
            e(f'buffer_store_dwordx4 {vr(SOR(ti)+2,4)}, v{vs}, {sr(S_WS)}, s96 offen offset:1024 {o.stf}')
            e(f's_branch L_x5{ti}')
            e(f'L_x6{ti}:')
        e(f'buffer_store_dwordx4 {vr(SOR(ti),4)}, v{vs}, {sr(S_WS)}, s{b+4} offen {o.stf}')
        e(f'L_x5{ti}:')
    e('L_x3:')
    e(f's_cmp_eq_u32 s{MODE}, 0')
    e('s_cbranch_scc1 L_x9')
    e('L_x2:')
    e('s_waitcnt lgkmcnt(0)')
    st01all('L_x4')
    e('L_x4:')
    e(f's_cmp_eq_u32 s{MODE}, 0')
    e('s_cbranch_scc1 L_x9')
    e('s_waitcnt vmcnt(0)')
    e(f's_add_u32 s{PAIR}, s{PAIR}, 1')
    e(f's_cmp_lt_u32 s{PAIR}, {NPROD}')
    e('s_cbranch_scc1 L_prod')
    e('v_mov_b32 v11, 1')
    e('ds_write_b32 v10, v11 offset:12')
    e('s_endpgm')
    e('L_x9:')
    if o.tagp:
        e(f's_cmp_eq_u32 s{EARLY}, 0')
        e('s_cbranch_scc1 L_x10')
        e('s_barrier')
        e('L_x10:')
    stamp(3)
    decode()
    e('v_subrev_u32 v4, 256, v0')
    e('v_min_u32 v4, 251, v4')
    e('v_mul_u32_u24 v3, 3641, v4')
    e('v_lshrrev_b32 v3, 16, v3')
    e('v_mul_u32_u24 v2, 18, v3')
    e('v_sub_u32 v2, v4, v2')
    e(f'v_mul_u32_u24 v3, {R}, v3')
    e(f'v_min_u32 v3, {160-R}, v3')
    e('v_mul_u32_u24 v4, 1152, v3')
    e('v_lshl_add_u32 v4, v2, 4, v4')
    e(f'v_add_u32 v12, s{XB}, v4')
    e('v_mul_u32_u24 v18, 288, v3')
    e('v_lshl_add_u32 v18, v2, 4, v18')
    e(f'v_add_u32 v19, {X_D1}, v18')
    srd(e, S_X, 4, 1152000, add=BOFF)
    e(f's_add_u32 s46, s{TAG}, {TAGINC}')
    e('v_mov_b32 v56, s46')
    e(f's_lshl_b32 s46, s{RID}, 7')
    e('v_mov_b32 v58, s46')
    e(f's_add_u32 s46, s{PAIR}, {NPROD}')
    e('s_lshl_b32 s46, s46, 7')
    e('v_mov_b32 v59, s46')
    def publish(slot, vflag, tag, first, n=0):
        e('s_mov_b64 exec, 1')
        e(f's_waitcnt vmcnt({n})')
        if first: stamp(4)
        if o.padto and tag == 'x': stamp(12)
        e('v_cmp_ne_u32 vcc, 0, v27')
        e('v_not_b32 v57, v56')
        e('s_nop 0')
        e('v_cndmask_b32 v57, v56, v57, vcc')
        e(f'ds_write_b32 v55, v57 offset:{slot}')
        e(f'ds_read_b128 v[20:23], v10 offset:{32+slot}')
        e('s_waitcnt lgkmcnt(0)')
        for i in range(4): e(f'v_xor_b32 v{20+i}, v{20+i}, v56')
        e('v_or3_b32 v20, v20, v21, v22')
        e('v_or_b32 v20, v20, v23')
        e('v_cmp_eq_u32 vcc, 0, v20')
        e('s_and_b64 exec, exec, vcc')
        e(f's_cbranch_execz L_nl{tag}')
        e(f'buffer_store_dword v56, v{vflag}, {sr(S_WS)}, 0 offen sc1')
        e(f'L_nl{tag}:')
        e('s_mov_b64 exec, -1')
    if o.tagp and o.xl:
        e(f's_cmp_lg_u32 s{XK}, 2')
        e('s_cbranch_scc1 L_noflag')
        publish(0, 58, 'x', True)
        e(f's_mov_b32 s{XK}, 0')
    elif o.xl:
        e(f's_cmp_ge_u32 s{RID}, {NPROD}')
        e('s_cbranch_scc1 L_noflag')
        publish(0, 58, 'x', True)
        e(f's_mov_b32 s{XK}, 0')
        e(f's_cmp_eq_u32 s{EARLY}, 0')
        e('s_cbranch_scc1 L_noflag')
        if not o.b0early: e('s_barrier')
    elif not o.tagp:
        e(f's_cmp_eq_u32 s{EARLY}, 0')
        e('s_cbranch_scc1 L_noflag')
        publish(0, 58, 'x', True)
        if not o.b0early: e('s_barrier')
    e('L_noflag:')
    e(f's_setprio {o.hprio2}')
    RAW, ORAW = 64, 120
    EU = [184, 192]
    OU, DT, DO = 200, 208, 216
    xi = [0]
    NL = R + 1
    hq = []
    def eload():
        k = xi[0]
        if k >= NL: return
        a_ = 12
        if k:
            a_ = 13 + (k & 3)
            e(f'v_add_u32 v{a_}, {1152*k}, v12')
        e(f'buffer_load_dwordx4 {vr(RAW+4*k,4)}, v{a_}, {sr(S_X)}, 0 offen')
        xi[0] += 1
        hq.append(('e', k))
    if o.etouch:
        e(f's_cmp_lt_u32 s{RID}, {NTASK}')
        e('s_cbranch_scc1 L_net')
        e(f's_and_b32 s46, s{NB}, 1')
        e(f's_mul_i32 s46, s46, {1152*6}')
        e('v_add_u32 v12, s46, v12')
        for _ in range(7): eload()
        e('v_subrev_u32 v12, s46, v12')
        e('s_waitcnt vmcnt(0)')
        e('L_net:')
        xi[0] = 0; hq.clear()
    YA = 232
    e(f's_cmp_eq_u32 s{b+5}, 2')
    e('s_cselect_b32 s46, 0x80000000, 0')
    e(f's_cmp_lg_u32 s{HAS3}, 0')
    e('s_cselect_b32 s47, 0x80000000, 0')
    e('s_or_b32 s48, s46, s47')
    for i in range(6):
        m_ = {0: None, 1: 46, 2: None, 3: 46, 4: 47, 5: 48}[i]
        e(f'v_mov_b32 v{YA+i}, v{52+i//2}' if m_ is None else f'v_or_b32 v{YA+i}, s{m_}, v{52+i//2}')
    def ystore(i, a_):
        e(f'buffer_store_dwordx4 {vr(28+4*i,4)}, v{a_}, {sr(S_WS)}, s{b+2+(i&1)} offen {o.stf}')
        hq.append(('y', i))
    if o.yall:
        assert o.d0p
        e(f's_add_u32 s44, s{RID}, 76')
        e(f's_cmp_ge_u32 s44, {NWG}')
        e(f's_cselect_b32 s45, {NWG}, 0')
        e('s_sub_u32 s44, s44, s45')
        e(f's_add_u32 s46, s44, {NPROD + 32}')
        e('s_lshl_b32 s46, s46, 7')
        e('v_mov_b32 v59, s46')
        e('s_mul_hi_u32 s45, s44, 477218589')
        e('s_mul_i32 s46, s45, 9')
        e('s_sub_u32 s44, s44, s46')
        e(f's_lshr_b32 s{YT}, s45, 3')
        e(f's_add_u32 s{YT}, s{YT}, 1')
        e(f's_min_u32 s{YT}, s{YT}, 3')
        e('s_lshl_b32 s45, s45, 2')
        e(f's_add_u32 s45, s45, s{WAVE}')
        e('s_add_u32 s45, s45, 28')
        e('s_and_b32 s46, s45, 15')
        e('s_lshr_b32 s47, s45, 4')
        e('s_mul_i32 s54, s46, 165888')
        e('s_mul_i32 s48, s47, 9216')
        e('s_add_u32 s54, s54, s48')
        e('s_add_u32 s95, s54, 82944')
        e('s_cmp_lg_u32 s46, 15')
        e(f's_cselect_b32 s{S_WO+2}, 2571264, 0')
        e('s_cselect_b32 s51, 0, 0x80000000')
        e('s_lshr_b32 s48, s47, 1')
        e('s_and_b32 s49, s46, 7')
        e('s_lshr_b32 s50, s46, 3')
        e('s_and_b32 s45, s47, 1')
        e('s_cmp_eq_u32 s47, 8')
        e('s_cselect_b32 s49, s49, s46')
        e('s_cselect_b32 s50, s50, s45')
        e('s_cselect_b32 s51, 0, s51')
        e('s_lshl_b32 s50, s50, 9')
        e(f's_add_u32 s50, s50, {WOFF}')
        e('s_lshl_b32 s68, s48, 4')
        e('s_add_u32 s68, s68, s49')
        e('s_sub_u32 s69, s68, s48')
        e('s_add_u32 s68, s68, 34')
        e('s_add_u32 s69, s69, 144')
        for r_ in (68, 69):
            e(f's_lshl_b32 s{r_}, s{r_}, 10')
            e(f's_add_u32 s{r_}, s{r_}, s50')
        e('v_and_b32 v2, 3, v1')
        e('v_lshl_add_u32 v2, s44, 2, v2')
        e('v_lshrrev_b32 v3, 4, v1')
        e('v_lshl_add_u32 v3, s44, 2, v3')
        e('v_cmp_le_u32 vcc, 18, v2')
        e('v_cmp_le_u32 s[46:47], 18, v3')
        e('v_lshl_add_u32 v63, v2, 4, v24')
        e('v_mad_u32_u24 v60, v3, v26, v25')
        e('v_add_u32 v2, 4320, v63')
        e(f'v_add_u32 v3, {(256 - 18*NSTR) & 0xffffffff}, v60')
        e('v_cndmask_b32 v63, v63, v2, vcc')
        e('v_cndmask_b32 v60, v60, v3, s[46:47]')
        e('v_or_b32 v61, s51, v60')
    def ydma():
        if not o.yall: return
        e(f's_mov_b32 m0, s{SCRB}')
        e('s_nop 0')
        e(f'buffer_load_dwordx4 v63, {sr(S_W)}, s54 offen lds')
        e('s_addk_i32 m0, 1024')
        e('s_nop 0')
        e(f'buffer_load_dwordx4 v63, {sr(S_WO)}, s95 offen lds')
        hq.append('d0'); hq.append('d1')
    stamp(5)
    ldswait(8, 'eq', 4, 'o', 1)
    def unpack(dst, s_):
        for i in range(4):
            e(f'v_lshlrev_b32 v{dst+2*i}, 16, v{s_+i}')
            e(f'v_and_b32 v{dst+2*i+1}, s{MASK}, v{s_+i}')
    def unpackE(dst, k):
        e(f's_waitcnt vmcnt({len(hq)-1-hq.index(("e", k))})')
        unpack(dst, RAW + 4 * k)
        eload()
    def diff(eu, out):
        for i in range(8): e(f'v_sub_f32 v{DT+i}, v{eu+i}, v{OU+i}')
        for i in range(4):
            e(f'v_cvt_pk_bf16_f32 v{out+i}, v{DT+2*i}, v{DT+2*i+1}')
    def opengate():
        if not o.gate: return
        e('v_mov_b32 v11, 0x100')
        e('s_mov_b64 exec, 1')
        e('ds_add_u32 v10, v11 offset:8')
        e('s_mov_b64 exec, -1')
    def rows(hook):
        stamp(6)
        for j in range(R):
            e(f'ds_read_b128 {vr(ORAW+4*j,4)}, v18 offset:{X_O+288*j}')
        unpackE(EU[0], 0)
        e('s_waitcnt lgkmcnt(0)')
        for j in range(R):
            o0 = DO + 8 * (j & 1)
            unpack(OU, ORAW + 4 * j)
            diff(EU[j & 1], o0)
            e(f'ds_write_b128 v18, {vr(o0,4)} offset:{X_D0+288*j}')
            unpackE(EU[(j + 1) & 1], j + 1)
            diff(EU[(j + 1) & 1], o0 + 4)
            e(f'ds_write_b128 v19, {vr(o0+4,4)} offset:{288*j}')
            hook(j)
    e(f's_cmp_ge_u32 s{RID}, {NPROD + (32 if o.d0p else 0)}')
    e('s_cbranch_scc1 L_pathA')
    e(f's_cmp_lt_u32 s{XK}, 2')
    e('s_cbranch_scc1 L_nox')
    if o.d0p:
        e(f's_cmp_eq_u32 s{XK}, 3')
        e('s_cbranch_scc1 L_xd')
    for i in range(3):
        e(f'buffer_store_dwordx4 {vr(SOR(i),4)}, v{YA+2*i}, {sr(S_WS)}, s{b+4} offen {o.stf}')
    if o.d0p:
        e('s_branch L_xe')
        e('L_xd:')
        for i in range(6): ystore(i, YA + i)
        e('L_xe:')
    if o.gearly:
        opengate()
        publish(0, 58, 'x2', True)
        e('s_branch L_nox2')
        e('L_nox:')
        opengate()
        e('L_nox2:')
    else:
        publish(0, 58, 'x2', True)
        e('L_nox:')
        opengate()
    hq.clear(); xi[0] = 0
    for _ in range(o.ein): eload()
    rows(lambda j: ydma() if j == o.ydrow else None)
    e('s_branch L_rowsdone')
    e('L_pathA:')
    if not o.d0p:
        e(f's_cmp_eq_u32 s{XK}, 3')
        e('s_cselect_b32 s47, 0, 0x80000000')
        for i in range(6): e(f'v_or_b32 v{20+i}, s47, v{YA+i}')
    hq.clear(); xi[0] = 0
    for _ in range(NL): eload()
    if not o.d0p:
        for i in range(6): ystore(i, 20 + i)
    def hookA(j):
        if j == o.grow + 1: ydma()
        if j == o.grow:
            e(f's_waitcnt vmcnt({len(hq)-1-hq.index(("e", NL-1))})')
            opengate()
        if j == o.xrow and not o.d0p:
            e(f's_cmp_lg_u32 s{XK}, 3')
            e('s_cbranch_scc1 L_xp')
            publish(0, 58, 'x3', True)
            e('L_xp:')
    rows(hookA)
    e('L_rowsdone:')
    e('s_waitcnt lgkmcnt(0)')
    stamp(7)
    e('v_mov_b32 v11, 1')
    e('s_mov_b64 exec, 1')
    e('ds_add_u32 v10, v11 offset:16')
    e('s_mov_b64 exec, -1')
    e(f's_cmp_eq_u32 s{YT}, 0')
    e('s_cbranch_scc1 L_noy')
    e(f's_setprio {o.yprio}')
    if o.yall:
        e('s_waitcnt vmcnt(0)')
        for tap in range(2):
            for half in range(2):
                e(f'ds_read_b64_tr_b16 {vr(28+4*tap+2*half,2)}, v62 offset:{1024*tap+512*half}')
    e('L_yw:')
    e('ds_read_b64 v[20:21], v10')
    e('s_waitcnt lgkmcnt(0)')
    e('v_lshrrev_b32 v21, 14, v21')
    e('v_and_b32 v21, -4, v21')
    e('v_or_b32 v20, v20, v21')
    e(f'v_cmp_le_u32 vcc, s{YT}, v20')
    e('s_nop 4')
    e('s_cbranch_vccnz L_yx')
    e('s_sleep 4')
    e('s_branch L_yw')
    e('L_yx:')
    if o.yall:
        e(f'buffer_store_dwordx4 v[28:31], v60, {sr(S_WS)}, s68 offen {o.stf}')
        e(f'buffer_store_dwordx4 v[32:35], v61, {sr(S_WS)}, s69 offen {o.stf}')
    else:
      for i in range(6):
        ystore(i, YA + i)
        e(f's_waitcnt vmcnt({o.ythr})')
        if o.ysleep: e(f's_sleep {o.ysleep}')
    publish(16, 59, 'y', False)
    if o.diag == 1: stamp(8)
    e('L_noy:')
    e(f's_cmp_lg_u32 s{WAVE}, 4')
    e('s_cbranch_scc1 L_hend')
    e('L_guard:')
    e('ds_read_b32 v11, v10 offset:4')
    e('s_waitcnt lgkmcnt(0)')
    e('v_readfirstlane_b32 s46, v11')
    e('s_nop 3')
    e('s_cmp_eq_u32 s46, 4')
    e('s_cbranch_scc1 L_hend')
    e('s_cmp_lt_u32 s46, 0x10000')
    e('s_cbranch_scc0 L_rescue')
    e('s_sleep 16')
    e('s_branch L_guard')
    e('L_rescue:')
    e(f's_mov_b32 s{MODE}, 1')
    e(f's_mov_b32 s{HAS3}, 1')
    e(f's_mov_b32 s{NOTASK}, 0')
    e(f's_lshr_b32 s{TW0}, s{NB}, 1')
    e(f's_add_u32 s{TW1}, s{NB}, 9')
    e(f's_lshr_b32 s{TW1}, s{TW1}, 1')
    e(f's_mov_b32 s{PAIR}, 0')
    e('s_branch L_prod')
    e('L_hend:')
    if o.padto and o.padev[0] == 'h': padloop('h')
    if o.diag == 1:
        stamp(9)
        dump(10)
    e('L_end:')
    e('s_endpgm')
    if o.hfirst:
        m0, h0 = mark['main0'], mark['help0']
        e.L = e.L[:m0] + e.L[h0:] + ['.p2align 6'] + e.L[m0:h0]
    e('L_codeend:')
    e('.section .rodata,"a"')
    e('.p2align 6')
    e(f'.amdhsa_kernel {KN}')
    for x in ['next_free_vgpr 256', 'next_free_sgpr 102', 'accum_offset 256', 'group_segment_fixed_size 0', 'kernarg_size 40',
              'user_sgpr_count 2', 'user_sgpr_kernarg_segment_ptr 1', 'system_sgpr_workgroup_id_x 1']:
        e('  .amdhsa_' + x)
    e('.end_amdhsa_kernel')
    n = haz.check(e.L)
    if n: print(f'{n} hazards', file=sys.stderr)
    return f'; @launch grid=({NWG},1,1) block=(512,1,1) lds={LDS_BYTES}\n' + e.text()

def opts(argv=None):
    ap = argparse.ArgumentParser()
    ap.add_argument('-o', default='k.s')
    for nm, d in [('diag', 0), ('pf', 16), ('pf0', 8), ('wgap', 4), ('wres', 4), ('wsc1', 0), ('nfill', 2), ('fstride', 128), ('sleep', 0), ('maxpoll', 3000), ('nopoll', 0),
                  ('hprio', 3), ('hprio2', 0), ('mprio', 2), ('epre', 0), ('ein', 7), ('dpre', 7), ('b0early', 0), ('mtouch', 1), ('gate', 1), ('swapab', 0), ('d0p', 1), ('map', 1), ('chain', 4), ('rmap', 0), ('yall', 0), ('ydrow', 6), ('flat0', 0), ('flatzz', 0), ('tagp', 0), ('tpf', 5), ('xl', 0), ('p0plain', 0), ('onepoll', 0), ('epoll', 1), ('ppoll', 0), ('yprio', 3), ('ysleep', 0), ('vt', 94), ('tla', 40), ('tskip', 1), ('gearly', 1), ('chfrom', 8), ('oj', 9), ('nolds', 0), ('now', 0), ('wsame', 0), ('grow', 1), ('vbd', 33), ('nopk', 1), ('padto', 0), ('npdelay', 0), ('opre', 5), ('etouch', 0), ('orev', 1), ('b0late', 1), ('dec', 1), ('tail', 1), ('xla', 9), ('hold', 1), ('prest', 0), ('xslot', 0), ('noclosed', 0), ('cpf', 1), ('hfirst', 1), ('warmb', 1), ('wsfirst', 0), ('flead', 6), ('ythr', 6), ('xrow', 3), ('padstep', 33), ('probe', 0), ('probeoff', 0x4000000)]:
        ap.add_argument('--' + nm, type=int, default=d)
    ap.add_argument('--oflags', default='')
    ap.add_argument('--pmap', default='18,18,18,18,18,18,18,18')
    ap.add_argument('--padev', default='m0')
    ap.add_argument('--trig', default='10,25,40')
    ap.add_argument('--yrow', default='0,7,2,9,5,11')
    ap.add_argument('--pfcs', default='4,5,5,8,8')
    ap.add_argument('--fflags', default='')
    ap.add_argument('--fleads', default='6,6,6,6,6')
    ap.add_argument('--stf', default='sc1')
    ap.add_argument('--marks', default='0,4,8,12,16,24,33,47,58')
    o = ap.parse_args(argv)
    o.marks = [int(x) for x in o.marks.split(',')]
    o.yrow = [int(x) for x in o.yrow.split(',')]
    o.pfcs = [int(x) for x in o.pfcs.split(',')]
    o.fleads = [int(x) for x in o.fleads.split(',')]
    o.trig = [int(x) for x in o.trig.split(',')]
    return o

if __name__ == '__main__':
    o = opts()
    open(o.o, 'w').write(gen(o))
```

```python
import re, sys, argparse
import haz

KN = 'standalone__autoregressive_conv_wavernn__speech_kernel'
NWG = 252
NPROD = 144
ARR = 160 * 288
X_D0, X_O, X_D1 = 0, ARR, 2 * ARR
CNT = 3 * ARR
SCR = CNT + 64
LDS_BYTES = SCR + 18432
NSTEP = 106
WOFF = int(__import__('os').environ.get('WOFF', '0x100000'), 0)
NONCE = 0x10000
DIAG = 0x800000
WS_REC = max(0x1000000, WOFF + 0x400000, int(__import__('os').environ.get('WSREC', '0'), 0))
TAGINC = 0x9E3779B9
R = 12

class Em:
    def __init__(self): self.L = []
    def __call__(self, s): self.L.append(s)
    def text(self): return '\n'.join(self.L) + '\n'

def vr(a, n=1): return f'v{a}' if n == 1 else f'v[{a}:{a+n-1}]'
def sr(a, n=4): return f's[{a}:{a+n-1}]'

def streams():
    out = []
    for typ in (0, 1):
        S = []
        pid = [0]
        def add(arr, chunk, cs, acc):
            for c in cs: S.append((pid[0], arr, chunk, c, acc))
            pid[0] += 1
        if typ == 0:
            add('O', 0, range(16), 'P'); add('O', 1, range(16), 'P'); add('O', 'rem', range(0, 2), 'P')
            for q in range(4): add('D', q, range(16), 'Q')
            add('D', 'rem', range(8), 'Q')
        else:
            add('O', 2, range(16), 'P'); add('O', 3, range(16), 'P'); add('O', 'rem', range(2, 8), 'P')
            for q in range(4): add('D', q, range(15), 'Q')
            add('D', 'rem', range(8), 'Q')
        assert len(S) == NSTEP
        out.append(S)
    return out

S_X, S_W, S_WO, S_WS, S_OUT, S_DBG = 20, 24, 28, 32, 36, 40
WAVE, NB, BAT, PAR, MB, BOFF = 14, 15, 16, 17, 18, 19
PAIR0 = 3
XB = 52
MASK = 53
TW0, TW1, TW2, PAIR, HAS3, MODE, SCRB, TAG, LAST, NPOLL = 44, 45, 54, 55, 56, 57, 58, 59, 60, 61
TS = 62
TYP, WSO = 68, 69
EARLY, XK, YT, FIDX = 90, 91, 92, 93
NOTASK = 94
FO = 97
C2L, CNL, C60 = 90, 92, 94
ST0 = 70

def srd(e, d, ptr, rec, add=None):
    if add is None:
        e(f's_mov_b32 s{d}, s{ptr}')
        e(f's_and_b32 s{d+1}, s{ptr+1}, 0xffff')
    else:
        e(f's_add_u32 s{d}, s{ptr}, s{add}')
        e(f's_addc_u32 s{d+1}, s{ptr+1}, 0')
        e(f's_and_b32 s{d+1}, s{d+1}, 0xffff')
    e(f's_mov_b32 s{d+2}, {rec}')
    e(f's_mov_b32 s{d+3}, 0x20000')

def gen(o):
    e = Em()
    NSTR = 2 * NSTEP * 1024 + (65536 if o.tagp else 0)
    if o.tagp: o.epoll = 0
    NTASK = NPROD + (32 if o.yall else 96)
    role = ['m']
    jn = [0]
    def jit():
        if not o.jit: return
        jn[0] += 1
        k = jn[0]
        e(f's_mul_i32 s98, s2, {37 + 2 * k + o.jit * 10}')
        e(f's_mul_i32 s99, s{WAVE}, {11 + 6 * k + o.jit}')
        e('s_add_u32 s98, s98, s99')
        e('s_bitcmp1_b32 s98, 3')
        e(f's_cbranch_scc1 L_jit{k}')
        e(f's_sleep {30 + (k * 17 + o.jit * 5) % 90}')
        e(f'L_jit{k}:')
    def padloop(tag):
        e(f'L_pad{tag}:')
        e('s_memrealtime s[98:99]')
        e('s_waitcnt lgkmcnt(0)')
        e('s_sub_u32 s98, s98, s100')
        e(f's_cmp_lt_u32 s98, {o.padto}')
        e(f's_cbranch_scc1 L_pad{tag}')
    def stamp(k, lvl=1):
        if o.padto and lvl == 1 and o.padev == f'{role[0]}{k}':
            e('s_memrealtime s[100:101]'); e('s_waitcnt lgkmcnt(0)')
        if o.diag == lvl or (o.diag == 4 and lvl == 1): e(f's_memrealtime s[{ST0+2*k}:{ST0+2*k+1}]')
    def dump(nst):
        e('s_waitcnt lgkmcnt(0)')
        e('v_mov_b32 v250, 0')
        for k in range(nst): e(f'v_writelane_b32 v250, s{ST0+2*k}, {k}')
        e(f'v_writelane_b32 v250, s{NPOLL}, 13')
        e(f'v_writelane_b32 v250, s95, 12')
        e(f'v_writelane_b32 v250, s{3 if o.rmap else 2}, 14')
        e('s_getreg_b32 s46, hwreg(HW_REG_XCC_ID)')
        e('v_writelane_b32 v250, s46, 15')
        e(f's_lshl_b32 s46, s2, 3'); e(f's_add_u32 s46, s46, s{WAVE}'); e('s_lshl_b32 s46, s46, 6'); e(f's_add_u32 s46, s46, {DIAG}')
        e('v_lshl_add_u32 v251, v1, 2, s46')
        e('s_mov_b64 exec, 0xffff')
        e(f'buffer_store_dword v250, v251, {sr(S_WS)}, 0 offen')
        e('s_mov_b64 exec, -1')

    e('.amdgcn_target "amdgcn-amd-amdhsa--gfx950"')
    e('.text')
    e(f'.globl {KN}')
    e('.p2align 8')
    e(f'.type {KN},@function')
    e(f'{KN}:')
    e(f's_cmp_ge_u32 s2, {NWG}')
    e('s_cbranch_scc1 L_end')
    stamp(0)
    if o.padto and o.padev != 'm0': e('s_memrealtime s[100:101]')
    e('s_load_dwordx4 s[4:7], s[0:1], 0')
    e('s_load_dwordx4 s[8:11], s[0:1], 16')
    e('s_load_dwordx2 s[12:13], s[0:1], 32')
    e('v_lshrrev_b32 v2, 6, v0')
    e('v_and_b32 v1, 63, v0')
    e(f'v_readfirstlane_b32 s{WAVE}, v2')
    def decode():
        e('s_and_b32 s44, s2, 7')
        e('s_lshr_b32 s45, s2, 3')
        e('s_mul_i32 s46, s44, 31')
        e('s_min_u32 s44, s44, 4')
        e('s_add_u32 s46, s46, s44')
        e('s_add_u32 s46, s46, s45')
        if o.map == 0:
            e('s_mul_hi_u32 s47, s46, 68174085')
            e('s_mul_i32 s48, s47, 63')
            e('s_sub_u32 s48, s46, s48')
            e(f's_mul_hi_u32 s{NB}, s48, 613566757')
            e(f's_mul_i32 s49, s{NB}, 7')
            e('s_sub_u32 s49, s48, s49')
            e('s_mul_i32 s47, s47, 7')
            e('s_add_u32 s47, s47, s49')
        elif o.map == 1:
            e('s_mul_hi_u32 s47, s46, 477218589')
            e('s_mul_i32 s48, s47, 9')
            e(f's_sub_u32 s{NB}, s46, s48')
        else:
            e('s_mul_hi_u32 s47, s46, 34087043')
            e('s_mul_i32 s48, s47, 126')
            e('s_sub_u32 s48, s46, s48')
            e(f's_mul_hi_u32 s{NB}, s48, 306783379')
            e(f's_mul_i32 s49, s{NB}, 14')
            e('s_sub_u32 s49, s48, s49')
            e('s_mul_i32 s47, s47, 14')
            e('s_add_u32 s47, s47, s49')
        e(f's_and_b32 s{PAR}, s47, 1')
        e('s_lshr_b32 s47, s47, 1')
        e('s_cmp_ge_u32 s47, 7')
        e(f's_cselect_b32 s{BOFF}, 1152000, 0')
        e('s_cselect_b32 s48, 7, 0')
        e(f's_sub_u32 s{MB}, s47, s48')
        e(f's_mul_i32 s{XB}, s{MB}, 576')
        e(f's_add_u32 s{XB}, s{XB}, s{PAR}')
        e(f's_sub_u32 s{XB}, s{XB}, 60')
        e(f's_mul_i32 s{XB}, s{XB}, 288')
    RID = 3 if o.rmap else 2
    if o.rmap:
        e('s_and_b32 s44, s2, 3')
        e('s_lshr_b32 s45, s2, 3')
        e('s_lshl2_add_u32 s3, s45, s44')
        e('s_and_b32 s44, s2, 4')
        e('s_lshl_b32 s44, s44, 5')
        e('s_add_u32 s3, s3, s44')
    e(f's_cmp_ge_u32 s{WAVE}, 4')
    e('s_cbranch_scc1 L_helper')
    if o.cpf:
        e('s_lshr_b32 s44, s2, 3')
        e(f's_lshl_b32 s45, s{WAVE}, 5')
        e('s_add_u32 s44, s44, s45')
        e('s_sub_u32 s44, s44, 26')
        e('s_cmp_ge_u32 s44, 5')
        e('s_cbranch_scc1 L_main')
        e('s_getpc_b64 s[46:47]')
        e('L_pc:')
        e('s_lshl_b32 s44, s44, 13')
        e('v_lshl_add_u32 v2, v1, 7, s44')
        e('v_min_u32 v2, L_codeend-L_pc-4, v2')
        e('global_load_dword v63, v2, s[46:47]')
    if o.hfirst: e('s_branch L_main')
    mark = {'main0': len(e.L)}
    e('L_main:')
    e(f's_mov_b32 s{MASK}, 0xffff0000')
    e(f's_mov_b32 s{NPOLL}, 0')
    if o.diag: e('s_mov_b32 s95, 0')
    decode()

    VXO, VXOR, VXD, VXDR, VWL, VEX, VEXP, VOUT = 30, 31, 32, 33, 34, 35, 36, 37
    VF = 40
    VA = 48
    VCL = 60
    e('v_mul_u32_u24 v3, 3641, v0')
    e('v_lshrrev_b32 v3, 16, v3')
    e('v_mul_u32_u24 v2, 18, v3')
    e('v_sub_u32 v2, v0, v2')
    e('v_mul_u32_u24 v3, 1152, v3')
    e('v_lshl_add_u32 v3, v2, 4, v3')
    e(f's_add_u32 s46, s{XB}, 576')
    e(f'v_add_u32 v{VA}, s46, v3')
    e('v_mov_b32 v5, 16192')
    e('v_mov_b32 v6, 17056')
    for k in range(1, 12):
        e('v_cmp_le_u32 vcc, 14, v2')
        e('v_add_u32 v3, 4, v2')
        e('v_subrev_u32 v4, 14, v2')
        e('v_cndmask_b32 v7, v5, v6, vcc')
        e('v_cndmask_b32 v2, v3, v4, vcc')
        e(f'v_add_u32 v{VA+k}, v{VA+k-1}, v7')
    e(f's_lshl_b32 s50, s{WAVE}, 10')
    e(f's_add_u32 s50, s50, {X_O}')
    e(f's_add_u32 s51, s50, {4096*11}')
    e('s_movk_i32 s49, 4096')
    if o.orev:
        e(f's_bitcmp0_b32 s{NB}, 0')
        e('s_cbranch_scc1 L_fwd')
        for k in range(5): e(f'v_swap_b32 v{VA+k}, v{VA+10-k}')
        e(f's_add_u32 s50, s50, {4096*10}')
        e('s_movk_i32 s49, -4096')
        e('L_fwd:')
    e(f'v_mov_b32 v{VF+1}, {CNT}')
    for r in range(4, 8): e(f'v_mov_b32 v{r}, 0')
    e(f'ds_write_b128 v{VF+1}, v[4:7]')
    e(f'ds_write_b128 v{VF+1}, v[4:7] offset:16')
    e('s_waitcnt lgkmcnt(0)')
    e(f's_load_dword s{TAG}, s[12:13], {NONCE}')
    srd(e, S_X, 4, 1152000, add=BOFF)
    def odma(k):
        e(f's_mov_b32 m0, s{51 if k == 11 else 50}')
        e('s_add_u32 s50, s50, s49')
        e(f'buffer_load_dwordx4 v{VA+k}, {sr(S_X)}, 0 offen lds')
    def etouch():
        e(f'buffer_load_dword v62, v9, {sr(S_X)}, 0 offen')
    if o.mtouch and o.tskip:
        e(f's_lshr_b32 s47, s{RID}, 4')
        e('s_lshr_b32 s47, 0x33, s47')
        e('s_lshl_b32 s47, s47, 31')
    if o.mtouch:
        e('v_min_u32 v8, 39, v1')
        e('v_lshrrev_b32 v9, 2, v8')
        e(f's_mul_i32 s46, s{WAVE}, 10')
        e('v_add_u32 v9, s46, v9')
        e(f'v_mul_u32_u24 v9, {4*1152}, v9')
        e('v_and_b32 v8, 3, v8')
        e('v_mul_u32_u24 v8, 92, v8')
        e(f's_and_b32 s46, s{NB}, {7 if o.mtouch == 4 else 3}')
        e(f's_mul_i32 s46, s46, {576 if o.mtouch == 4 else 1152}')
        e(f's_add_u32 s46, s46, s{XB}')
        e('v_add3_u32 v9, v9, v8, s46')
        if o.tskip == 1: e('v_or_b32 v9, s47, v9')
    if o.mtouch == 4 and o.tskip == 2:
        e('s_cmp_eq_u32 s47, 0')
        e('s_cbranch_scc1 L_tn')
        e('s_waitcnt lgkmcnt(0)')
        e('L_tn:')
    if o.mtouch in (2, 4): etouch()
    if o.padto and o.padev == 'm13':
        e('s_waitcnt vmcnt(0)'); stamp(13)
    if o.padto and o.padev == 'm14':
        odma(0); e('s_sub_u32 s50, s50, s49'); e('s_waitcnt vmcnt(0)'); stamp(14)
    if o.padto: stamp(10)
    for k in range(o.opre): odma(k)
    e('s_barrier')
    stamp(1)
    jit()
    if o.mtouch == 3: etouch()
    for k in range(o.opre, 12):
        if k == 11:
            e(f's_cmp_lg_u32 s{WAVE}, 0')
            e('s_cbranch_scc1 L_o11')
        odma(k)
    e('L_o11:')
    if o.mtouch == 1: etouch()
    srd(e, S_WS, 12, WS_REC)
    if o.epoll:
        assert o.mtouch in (1, 4) and o.tskip
        e(f's_and_b32 s{TYP}, s{WAVE}, 1')
        e(f's_lshl_b32 s{FO}, s{TYP}, 13')
        e('s_mov_b32 s96, s47')
        e('s_xor_b32 s46, s47, 0x80000000')
        e(f'v_min_u32 v{VF}, 31, v1')
        e(f'v_lshlrev_b32 v{VF}, 7, v{VF}')
        e(f'v_or_b32 v2, s46, v{VF}')
        e(f'buffer_load_dword v{VF+4}, v2, {sr(S_WS)}, s{FO} offen sc1')
    srd(e, S_OUT, 8, 1152000, add=BOFF)
    srd(e, S_DBG, 10, 256)
    e('v_and_b32 v2, 15, v1')
    e('v_lshrrev_b32 v3, 4, v1')
    e('v_subrev_u32 v5, 4, v2')
    e('v_add_u32 v6, 8, v2')
    e('v_cmp_gt_u32 vcc, 4, v2')
    e('v_cmp_le_u32 s[46:47], 12, v2')
    e(f's_and_b32 s{TYP}, s{WAVE}, 1')
    e(f's_lshr_b32 s48, s{WAVE}, 1')
    e('v_cndmask_b32 v5, v5, v6, vcc')
    e('v_cndmask_b32 v5, v5, v2, s[46:47]')
    e('v_mul_u32_u24 v5, 9, v5')
    e('v_mul_u32_u24 v4, 288, v5')
    e('v_lshl_add_u32 v6, v3, 4, v4')
    e('v_and_b32 v7, 1, v3')
    e('v_lshl_add_u32 v7, v7, 4, v4')
    e('v_lshrrev_b32 v8, 1, v3')
    e('v_mul_u32_u24 v8, 2304, v8')
    e('v_add_u32 v7, v7, v8')
    e('v_add_u32 v7, 256, v7')
    e(f's_mul_i32 s49, s{TYP}, {X_D1}')
    e(f'v_add_u32 v{VXO}, {X_O}, v6')
    e(f'v_add_u32 v{VXOR}, {X_O}, v7')
    e(f'v_add_u32 v{VXD}, s49, v6')
    e(f'v_add_u32 v{VXDR}, s49, v7')
    e('v_lshlrev_b32 v6, 4, v1')
    e(f's_mul_i32 s49, s{WAVE}, 9216')
    e(f's_add_u32 s49, s49, {X_O}')
    e(f'v_add_u32 v{VEX}, s49, v6')
    e(f's_xor_b32 s49, s{WAVE}, 1')
    e('s_mul_i32 s49, s49, 9216')
    e(f's_add_u32 s49, s49, {X_O}')
    e(f'v_add_u32 v{VEXP}, s49, v6')
    e('v_and_b32 v8, 0x39, v1')
    e('v_bfe_u32 v9, v1, 1, 1')
    e('v_lshl_add_u32 v8, v9, 2, v8')
    e('v_bfe_u32 v9, v1, 2, 1')
    e('v_lshl_add_u32 v8, v9, 1, v8')
    e(f'v_lshlrev_b32 v{VWL}, 4, v8')
    e(f's_mul_i32 s49, s{TYP}, 576')
    e(f's_add_u32 s49, s49, s{XB}')
    e(f's_add_u32 s49, s49, {60*288}')
    e(f's_lshl_b32 s50, s{NB}, 5')
    e('s_add_u32 s49, s49, s50')
    e('s_lshl_b32 s50, s48, 4')
    e('s_add_u32 s49, s49, s50')
    e('v_mul_u32_u24 v8, 1152, v5')
    e('v_lshl_add_u32 v8, v3, 2, v8')
    e(f'v_add_u32 v{VOUT}, s49, v8')
    e(f'v_add_u32 v{VOUT+1}, 3456, v{VOUT}')
    e(f'v_add_u32 v{VOUT+2}, 6912, v{VOUT}')
    e(f's_lshl_b32 s49, s{NB}, 1')
    e('s_add_u32 s49, s49, s48')
    e(f's_mul_i32 s49, s49, {NSTR}')
    e(f's_mul_i32 s{WSO}, s{TYP}, {NSTEP*1024}')
    e(f's_add_u32 s{WSO}, s{WSO}, s49')
    e(f's_add_u32 s{WSO}, s{WSO}, {WOFF + (16384 if o.tagp else 0)}')
    if o.tagp:
        e(f's_lshl_b32 s96, s{TYP}, 15')
        e('s_add_u32 s96, s96, s49')
        e(f's_add_u32 s96, s96, {WOFF + 2*NSTEP*1024}')
    e(f's_mov_b32 s{C2L}, 0x4038aa3b'); e(f's_mov_b32 s{C2L+1}, 0x4038aa3b')
    e(f's_mov_b32 s{CNL}, 0xbfb8aa3b'); e(f's_mov_b32 s{CNL+1}, 0xbfb8aa3b')
    e(f's_mov_b32 s{C60}, 0x42700000')
    e(f'v_min_u32 v{VF}, 31, v1')
    e(f'v_lshlrev_b32 v{VF}, 7, v{VF}')
    e(f'v_min_u32 v{VF+6}, 47, v1')
    e(f'v_lshlrev_b32 v{VF+6}, 7, v{VF+6}')
    e(f'v_mov_b32 v{VF+2}, 1')
    e('s_lshl_b32 s46, s48, 2')
    e(f'v_add_u32 v{VF+5}, s46, v{VF+1}')
    e(f's_or_b32 s46, s2, s{WAVE}')
    e('v_or_b32 v2, s46, v1')
    e('v_cmp_eq_u32 vcc, 0, v2')
    e(f'v_mov_b32 v{VCL}, -16')
    e(f'v_mov_b32 v{VCL+1}, -16')
    e(f'v_mov_b32 v3, {NONCE}')
    e(f'v_cndmask_b32 v{VCL}, v{VCL}, 4, vcc')
    e(f'v_cndmask_b32 v{VCL+1}, v{VCL+1}, v3, vcc')
    if o.yall:
        e(f's_lshr_b32 s46, s{NB}, 1')
        e(f's_add_u32 s47, s{NB}, 9')
        e('s_lshr_b32 s47, s47, 1')
        e('v_mov_b32 v4, s46')
        e('v_mov_b32 v5, s47')
        e('v_cmp_gt_u32 vcc, 32, v1')
        e('v_and_b32 v2, 7, v1')
        e('v_and_b32 v3, 15, v1')
        e('v_cndmask_b32 v4, v5, v4, vcc')
        e('v_min_u32 v3, 11, v3')
        e('v_mad_u32_u24 v2, v2, 9, v4')
        e('v_mad_u32_u24 v3, v3, 9, v4')
        e('v_lshlrev_b32 v2, 7, v2')
        e('v_lshlrev_b32 v3, 7, v3')
    e(f's_lshl_b32 s{FO}, s{TYP}, 13')
    if o.warmb:
        e(f's_cmp_eq_u32 s{TYP}, 1')
        e('s_cbranch_scc1 L_warmB')
        e('L_warmret:')
    e(f's_waitcnt vmcnt({(1 if o.mtouch == 1 else 0) + o.epoll}) lgkmcnt(0)')
    stamp(2)
    if o.padto and o.padev in ('m11', 'm12'):
        e(f's_lshr_b32 s46, s{RID}, 4')
        e('s_lshr_b32 s46, 0x33, s46')
        e('s_bitcmp1_b32 s46, 0')
        e(f's_cbranch_scc{1 if o.padev == "m11" else 0} L_pk')
        e('s_memrealtime s[100:101]'); e('s_waitcnt lgkmcnt(0)')
        e('L_pk:')
    e('s_mov_b64 exec, 1')
    e(f'ds_add_u32 v{VF+1}, v{VF+2} offset:8')
    e('s_mov_b64 exec, -1')
    e(f's_add_u32 s{TAG}, s{TAG}, {TAGINC}')
    e(f'v_mov_b32 v{VF+3}, s{TAG}')
    def flagwait(tag, vaddr, back):
        e(f'L_fw{tag}:')
        if o.diag and len(tag) == 2: e(f's_add_u32 s95, s95, {1 << (5 * int(tag[1]))}')
        e(f'buffer_load_dword v{VF+4}, v{vaddr}, {sr(S_WS)}, s{FO} offen sc1')
        e(f'ds_read_b32 v{VF+7}, v{VF+1} offset:12')
        e(f's_add_u32 s{NPOLL}, s{NPOLL}, 1')
        e('s_waitcnt vmcnt(0) lgkmcnt(0)')
        e(f'v_cmp_ne_u32 vcc, v{VF+3}, v{VF+4}')
        e(f'v_readfirstlane_b32 s46, v{VF+7}')
        e('s_nop 3')
        e(f's_cbranch_vccz {back}')
        e('s_cmp_lg_u32 s46, 0')
        e(f's_cbranch_scc1 {back}')
        e(f's_cmp_lg_u32 s{NPOLL}, {o.maxpoll}')
        e(f's_cbranch_scc1 L_fw{tag}')
        e(f'v_mov_b32 v{VF+7}, 0x10000')
        e('s_mov_b64 exec, 1')
        e(f'ds_add_u32 v{VF+1}, v{VF+7} offset:4')
        e('s_mov_b64 exec, -1')
        e(f's_branch L_fw{tag}')
    if o.epoll:
        e('s_cmp_eq_u32 s96, 0')
        e('s_cbranch_scc1 L_gate')
        e('s_waitcnt vmcnt(0)')
        e(f'v_cmp_ne_u32 vcc, v{VF+3}, v{VF+4}')
        e('s_nop 4')
        e('s_cbranch_vccz L_go')
    if o.gate:
        e('L_gate:')
        e(f'ds_read_b32 v{VF+4}, v{VF+1} offset:8')
        e('s_waitcnt lgkmcnt(0)')
        e(f'v_and_b32 v{VF+4}, 0xffff, v{VF+4}')
        e(f'v_cmp_gt_u32 vcc, 0x400, v{VF+4}')
        e('s_nop 4')
        e('s_cbranch_vccz L_gate2')
        e('s_sleep 1')
        e('s_branch L_gate')
        e('L_gate2:')
    if o.ppoll:
        e(f'buffer_load_dword v{VF+4}, v{VF}, {sr(S_WS)}, s{FO} offen sc1')
        e('L_pp:')
        for a_, b_ in ((VF + 4, 62), (62, VF + 4)):
            e(f's_sleep {o.ppoll}')
            e(f'buffer_load_dword v{b_}, v{VF}, {sr(S_WS)}, s{FO} offen sc1')
            e('s_waitcnt vmcnt(1)')
            e(f'v_cmp_ne_u32 vcc, v{VF+3}, v{a_}')
            e(f's_add_u32 s{NPOLL}, s{NPOLL}, 1')
            e('s_nop 3')
            e('s_cbranch_vccz L_go')
        e(f's_cmp_lt_u32 s{NPOLL}, 40')
        e('s_cbranch_scc1 L_pp')
        e(f's_mov_b32 s{NPOLL}, 0')
    if o.p0plain:
        e(f'buffer_load_dword v{VF+4}, v{VF}, {sr(S_WS)}, s{FO} offen')
        e('s_waitcnt vmcnt(0)')
        e(f'v_cmp_ne_u32 vcc, v{VF+3}, v{VF+4}')
        e('s_nop 4')
        e('s_cbranch_vccz L_go')
    if o.onepoll:
        e(f's_cmp_lt_u32 s{WAVE}, 2')
        e('s_cbranch_scc1 L_fw0')
        e('L_op:')
        e(f'ds_read_b32 v{VF+7}, v{VF+1} offset:8')
        e('s_waitcnt lgkmcnt(0)')
        e(f's_add_u32 s46, s{TYP}, 16')
        e(f'v_lshrrev_b32 v{VF+7}, s46, v{VF+7}')
        e(f'v_and_b32 v{VF+7}, 1, v{VF+7}')
        e(f'v_cmp_eq_u32 vcc, 0, v{VF+7}')
        e('s_nop 4')
        e('s_cbranch_vccnz L_op')
        e('s_branch L_go2')
    if not o.tagp: flagwait('0', VF, 'L_go')
    e('L_go:')
    jit()
    if o.tagp: e('s_mov_b32 s50, s96')
    if o.onepoll:
        e(f's_lshl_b32 s46, 0x10000, s{TYP}')
        e(f'v_mov_b32 v{VF+7}, s46')
        e('s_mov_b64 exec, 1')
        e(f'ds_or_b32 v{VF+1}, v{VF+7} offset:8')
        e('s_mov_b64 exec, -1')
        e('L_go2:')
    stamp(3)
    e('L_gw:')
    e(f'ds_read_b32 v{VF+7}, v{VF+1} offset:8')
    e('s_waitcnt lgkmcnt(0)')
    e(f'v_and_b32 v{VF+7}, 0xff, v{VF+7}')
    e(f'v_cmp_ne_u32 vcc, 4, v{VF+7}')
    e('s_nop 4')
    e('s_cbranch_vccnz L_gw')
    stamp(4)
    e(f's_setprio {o.mprio}')
    e(f's_cmp_eq_u32 s{TYP}, 1')
    e('s_cbranch_scc1 L_typeB')

    ACC = {'P': 64, 'Q': 100}
    WR, TMP = 136, 224
    XRING = [200 + 4 * i for i in range(6)]
    XWIN = [4 + 4 * i for i in range(6)] + [240 + 4 * i for i in range(4)]
    VC = 28
    PF = o.pf
    GT = 98
    wflags = {0: '', 1: ' sc1', 2: ' nt', 3: ' sc0'}[o.wsc1]
    for typ, S in enumerate(streams()):
        if typ == 1:
            e('.p2align 6')
            if o.warmb: e('L_warmB:'); e('s_branch L_warmret')
            e('L_typeB:')
        ops = []
        vstart = {}
        lastv = o.vt - 1
        v0 = 0
        G0 = 0
        if o.flat0:
            for g in range(16):
                vstart[g] = len(ops)
                for j in (range(9) if g % 2 == 0 or not o.flatzz else range(8, -1, -1)): ops.append((g, j))
            v0 = G0 = 16
        while v0 <= lastv:
            ch = 1 if v0 < o.chfrom + G0 else min(o.chain, lastv + 1 - v0)
            n0 = len(ops)
            for j in range(8, -1, -1):
                us = range(ch) if j % 2 == 0 else range(ch - 1, -1, -1)
                first_ = [u for u in us if v0 + u - j == 0 or (0 < v0 + u - j < NSTEP and S[v0+u-j][4] == 'Q' and S[v0+u-j-1][4] == 'P')]
                if first_: us = range(ch)
                for u in us:
                    if G0 <= v0 + u - j < NSTEP: ops.append((v0 + u - j, j))
            for u in range(ch): vstart[v0 + u] = n0 + (len(ops) - n0) * u // ch
            v0 += ch
        ntail = len(ops)
        if o.tail:
            for j in range(9):
                for g in range(o.vt - j, NSTEP): ops.append((g, j))
        assert len(ops) == NSTEP * 9 and len(set(ops)) == len(ops)
        N = len(ops)
        def key(n):
            g, j = ops[n]
            pid, arr, ch, c, acc = S[g]
            k = (pid, arr, ch, c + j)
            if n >= ntail and g < GT: k = k + ((n,) if not o.hold else ('h',))
            return k
        first, last = {}, {}
        for n in range(N):
            first.setdefault(key(n), n); last[key(n)] = n
        wfirst, wlast = {}, {}
        for n, (g, j) in enumerate(ops):
            wfirst.setdefault(g, n); wlast[g] = n
        tasks = []
        for k, n0 in first.items():
            win = o.tail and k[2] == 'rem' and k[1] == 'D'
            la = o.xla if n0 < ntail else 6
            if n0 >= ntail and ops[n0][1] == 0: la = o.tla
            elif win: la = 12
            tasks.append([n0 - la, n0 - 1, 'X', k])
        for g in range(NSTEP):
            rel = -100 + g if g < o.pf0 else max(0, wfirst[g] - 9 * PF)
            if o.tagp and g < 16:
                rel = -100 + g if g < 4 else max(0, wfirst[g] - 9 * o.tpf)
                tasks.append([rel, wfirst[g & ~1] - 9, 'W', g])
                continue
            tasks.append([rel, wfirst[g] - 1, 'W', g])
        def at(v, off=0): return vstart[v] + off
        firstD = min(n for n in range(N) if S[ops[n][0]][1] == 'D')
        lastO = max(n for n in range(N) if S[ops[n][0]][1] == 'O')
        lastP = {j: max(n for n in range(N) if ops[n][1] == j and S[ops[n][0]][4] == 'P') for j in range(9)}
        slow = []
        vused = set()
        def check(v, off, cnt, tag):
            tasks.append([at(v - 1, 3), at(v - 1, 8), 'L', (f'ds_read_b32 v{VC}, v{VF+1} offset:{off}', ('c', tag))])
            tasks.append([at(v, 0), at(v, 1), 'C', (f'v_cmp_ne_u32 vcc, {cnt}, v{VC}', ('c', tag))])
            tasks.append([at(v, 6), at(v, 7), 'I', [f's_cbranch_vccnz L_slow{typ}{tag}', f'L_back{typ}{tag}:']])
            slow.append((tag, off, cnt))
            vused.add(v)
            return at(v, 8)
        def add1(pos, off):
            tasks.append([pos, pos + 4, 'A', off])
        vD = [v for v in vstart if vstart[v] <= firstD - o.xla][-1] - 1
        okD = check(vD, 16, 4, 'D')
        assert okD <= firstD - o.xla
        add1(lastO, 20)
        VP = 47
        okR = check(VP, 20, 4, 'R')
        for j in range(9):
            assert lastP[j] + 12 < at(VP + 1 + j, 2)
            tasks.append([at(VP + 1 + j, 2), at(VP + 1 + j, 8), 'L', (f'ds_write_b128 v{VEX}, {vr(ACC["P"]+4*j,4)} offset:{1024*j}', ('pw', j))])
        tasks.append([at(VP + 10, 0), at(VP + 10, 4), 'A', 'pair'])
        VQ = VP + 13
        okP = check(VQ, 'pair', 2, 'P')
        for j in range(9):
            tasks.append([at(VQ + 1 + j, 2), at(VQ + 1 + j, 8), 'L', (f'ds_read_b128 {vr(TMP+4*(j&1),4)}, v{VEXP} offset:{1024*j}', ('pr', j))])
            v = VQ + 2 + j
            pos = at(v, 8 - (j + 2) - 1) if j <= 6 else at(v, 8 - (j - 7) - 1)
            sh = 1 if j >= 7 else 0
            if o.chain > 1:
                own = [n for n in range(N) if ops[n][1] == j]
                pos = [a_ + 10 for a_, b_ in zip(own, own[1:]) if b_ - a_ >= 14 and a_ + 9 >= at(v, 0) ][0]
                sh = 0
                tasks[-1][0] = pos - 9; tasks[-1][1] = pos - 4
                tasks[-1][3] = (f'ds_read_b128 {vr(TMP+4*(j&3),4)}, v{VEXP} offset:{1024*j}', ('pr', j))
            tasks.append([pos - 1 + sh, pos - 1 + sh, 'Q', (j, 0)])
            tasks.append([pos + sh, pos + sh, 'Q', (j, 1)])
        if typ == 0:
            tasks.append([at(64, 4), at(64, 8), 'S', f'buffer_store_dword v{VCL+1}, v{VCL}, {sr(S_DBG)}, 0 offen sc1'])
            tasks.append([at(84, 4), at(84, 8), 'S', f'buffer_store_dword v{VF+3}, v{VCL+1}, {sr(S_WS)}, 0 offen sc1'])
        fslow = []
        kslow = []
        if o.tagp:
            for g in range(0, 16, 2):
                n0 = wfirst[g]
                if g < 4: continue
                tasks.append([n0 - 8, n0 - 7, 'K', g])
                tasks.append([n0 - 2, n0 - 1, 'I', ['s_cmp_lg_u64 s[48:49], 0', f's_cbranch_scc1 L_ks{typ}{g}', f'L_kb{typ}{g}:']])
        passes = {}
        for g in range(NSTEP): passes.setdefault(S[g][0], g)
        need = [(passes[1], VF, 32 + 64 * typ), (32, VF + 6, 128), (passes[4], VF, 176), (passes[5], VF, 208), (passes[6], VF + 6, 240)]
        if o.yall: need[2:] = [(passes[4], 2, 176), (passes[5], 2, 176 + 72), (passes[6], 3, 176 + 144)]
        for ci, (gn, va, idx) in enumerate(need):
            v = gn - o.pfcs[ci] - 1
            while v in vused: v -= 1
            tasks.append([at(v - o.fleads[ci], 4), at(v - o.fleads[ci], 8), 'F', (va, idx, ci)])
            tasks.append([at(v, 0), at(v, 1), 'G', ci])
            tasks.append([at(v, 6), at(v, 7), 'I', [f's_cbranch_vccnz L_fw{typ}{ci}', f'L_fb{typ}{ci}:']])
            fslow.append((ci, va))
            assert v not in vused, v
            for t in tasks:
                if t[2] == 'W' and (t[3] >= gn): t[0] = max(t[0], at(v, 8))
        tasks.append([at(v + 1, 2), at(v + 1, 8), 'A', 4])
        if typ == 0:
            for lvl, v in enumerate(o.trig): tasks.append([at(v, 2), at(v, 8), 'P', lvl + 1])
        tasks.sort(key=lambda t: (t[0], t[1]))
        vq, lq = [], []
        dirty = [False]
        xreg, busy = {}, {}
        wn = [0]
        wr = {}
        lastw = [-100]
        later = []
        BIG = [WR + 4 * i for i in range(16)] + XWIN + [ACC['P'] + 4 * i for i in range(9)]
        for i in range(9): busy[ACC['P'] + 4 * i] = at(VP + 12)
        until = {}
        if o.chain > 1:
            BIG += XRING + [VA, VA + 4, VA + 8]
            for i in range(9):
                BIG.append(ACC['Q'] + 4 * i)
                until[ACC['Q'] + 4 * i] = min(n for n in range(N) if ops[n][1] == i and S[ops[n][0]][4] == 'Q') - 3
        def freeregs(n, end): return [x for x in BIG if busy.get(x, -1) <= n and end < until.get(x, 10**9)]
        def freepairs(n, end):
            f_ = set(freeregs(n, end))
            return [x for x in sorted(f_) if x % 8 == PAR8.get(x, -1) and x + 4 in f_]
        PAR8 = {x: x % 8 for x in list(range(WR, WR + 64, 8)) + [4, 12, 20, 240, 248, 200, 208, 216, 100, 108, 116, 124, VA]}
        def kcheck(g):
            vwait(g + 1)
            for i, gg in enumerate((g, g + 1)):
                a_ = wr[gg] - 2
                em(f'v_bitop3_b32 v{VC+i}, v{a_+1}, v{a_+6}, v{VF+3} bitop3:0x7e')
            em(f'v_or_b32 v{VC}, v{VC}, v{VC+1}')
            em(f'v_cmp_ne_u32 s[48:49], 0, v{VC}')
            kslow.append((g, wr[g] - 2, wr[g + 1] - 2))
        def wok(t, n):
            if t[2] != 'W': return True
            if t[3] != wn[0]: return False
            if o.tagp and t[3] < 16:
                return bool(freepairs(n, wlast[t[3]])) and (n - lastw[0] >= 2 or t[1] - n <= 4)
            free = len(freeregs(n, wlast[t[3]]))
            if t[1] - n <= 9 * 3: return free > 0
            return n - lastw[0] >= o.wgap and free > o.wres
        since = {}
        fill = []
        def em(x):
            e(x)
            if not x.endswith(':'):
                for jj in since: since[jj] += 1
        def lwait(tag):
            if tag not in lq: return
            i = lq.index(tag)
            em(f's_waitcnt lgkmcnt({0 if dirty[0] else len(lq)-1-i})')
            if dirty[0]: lq.clear(); dirty[0] = False
            else: del lq[:i + 1]
        def vwait(g):
            if g not in vq: return
            i = vq.index(g)
            em(f's_waitcnt vmcnt({len(vq)-1-i})')
            del vq[:i + 1]
        def run(t, n):
            kind, p = t[2], t[3]
            if kind == 'X':
                pool = BIG if (o.chain > 1 or p[-1] == 'h' or (p[2] == 'rem' and p[1] == 'D')) else XRING
                r = [x for x in pool if busy.get(x, -1) <= n and last[p] < until.get(x, 10**9)]
                assert r, ('no x register', p, n)
                r = min(r, key=lambda x: (until.get(x, 10**9), busy.get(x, -1)))
                busy[r] = last[p]; xreg[p] = r
                arr, ch, s_ = p[1], p[2], p[3]
                if o.nolds and n > 9 * 30: return
                if ch == 'rem': em(f'ds_read_b128 {vr(r,4)}, v{VXOR if arr == "O" else VXDR} offset:{288*s_}')
                else: em(f'ds_read_b128 {vr(r,4)}, v{VXO if arr == "O" else VXD} offset:{64*ch+288*s_}')
                lq.append(p)
            elif kind == 'W':
                g = p
                if o.tagp and g < 16:
                    r = min(freepairs(n, wlast[g]), key=lambda x: (until.get(x, 10**9), busy.get(x, -1)))
                    busy[r] = busy[r + 4] = wlast[g]; wr[g] = r + 2
                    assert g == wn[0]; wn[0] += 1
                    lastw[0] = n
                    em(f'buffer_load_dwordx4 {vr(r,4)}, v{VWL}, {sr(S_WS)}, s50 offen offset:{2048*(g%2)}')
                    em(f'buffer_load_dwordx4 {vr(r+4,4)}, v{VWL}, {sr(S_WS)}, s50 offen offset:{2048*(g%2)+1024}')
                    vq.append(('h', g)); vq.append(g)
                    if g % 2 == 1:
                        if n < 0: em('s_add_u32 s50, s50, 4096')
                        else: later.append('s_add_u32 s50, s50, 4096')
                    return
                r = min(freeregs(n, wlast[g]), key=lambda x: (until.get(x, 10**9), busy.get(x, -1)))
                busy[r] = wlast[g]; wr[g] = r
                assert g == wn[0]; wn[0] += 1
                lastw[0] = n
                if o.now and g > 40: return
                if o.wsame and g > 40:
                    em(f'buffer_load_dwordx4 {vr(r,4)}, v{VWL}, {sr(S_WS)}, s{WSO} offen offset:{1024*(g%4)}{wflags}'); vq.append(g); return
                em(f'buffer_load_dwordx4 {vr(r,4)}, v{VWL}, {sr(S_WS)}, s{WSO} offen offset:{1024*(g%4)}{wflags}')
                if g % 4 == 3:
                    if n < 0: em(f's_add_u32 s{WSO}, s{WSO}, 4096')
                    else: later.append(f's_add_u32 s{WSO}, s{WSO}, 4096')
                vq.append(g)
            elif kind == 'L':
                em(p[0].replace('offset:pair', 'offset:24').replace(f'v{VF+1} offset:24', f'v{VF+5} offset:24')); lq.append(p[1])
            elif kind == 'C':
                lwait(p[1]); em(p[0])
            elif kind == 'I':
                for x in p: em(x)
            elif kind == 'A':
                em('s_mov_b64 exec, 1')
                if p == 'pair': em(f'ds_add_u32 v{VF+5}, v{VF+2} offset:24')
                else: em(f'ds_add_u32 v{VF+1}, v{VF+2} offset:{p}')
                em('s_mov_b64 exec, -1')
                lq.append(('a', p))
            elif kind == 'Q':
                p, hf = p
                lwait(('pr', p))
                q = ACC['Q'] + 4 * p; t_ = TMP + 4 * (p & (3 if o.chain > 1 else 1))
                for i in (2 * hf, 2 * hf + 1): em(f'v_add_f32 v{q+i}, v{q+i}, v{t_+i}')
            elif kind == 'S':
                assert not any(isinstance(x, tuple) and x[0] == 's' for x in vq)
                em(p); vq.append(('s', n))
            elif kind == 'F':
                em(f's_mov_b32 s{FO}, {128*p[1]}')
                em(f'buffer_load_dword v{VF+4}, v{p[0]}, {sr(S_WS)}, s{FO} offen {o.fflags}'); vq.append(('f', p[2]))
            elif kind == 'K':
                kcheck(p)
            elif kind == 'G':
                vwait(('f', p)); em(f'v_cmp_ne_u32 vcc, v{VF+3}, v{VF+4}')
            elif kind == 'P':
                em(f'v_mov_b32 v{VF+7}, {p}')
                em('s_mov_b64 exec, 1')
                em(f'ds_max_u32 v{VF+1}, v{VF+7}')
                em('s_mov_b64 exec, -1')
                lq.append(('p', p))
        def epi(j, pk):
            q = ACC['Q'] + 4 * j
            t = TMP + 8 * (j & 1)
            I = []
            if pk:
                I.append(f'v_pk_mul_f32 {vr(t,2)}, {vr(q,2)}, s[{C2L}:{C2L+1}]')
                I.append(f'v_pk_mul_f32 {vr(t+2,2)}, {vr(q+2,2)}, s[{CNL}:{CNL+1}]')
            else:
                for i in (0, 1): I.append(f'v_mul_f32 v{t+i}, s{C2L}, v{q+i}')
                for i in (2, 3): I.append(f'v_mul_f32 v{t+i}, s{CNL}, v{q+i}')
            I.append(f'v_min_f32 v{t}, s{C60}, v{t}')
            I.append(f'v_min_f32 v{t+1}, s{C60}, v{t+1}')
            for i in (0, 1, 2, 3): I.append(f'v_exp_f32 v{t+i}, v{t+i}')
            if pk:
                I.append(f'v_pk_add_f32 {vr(t+4,2)}, {vr(t,2)}, 1.0 op_sel_hi:[1,0]')
                I.append(f'v_pk_add_f32 {vr(t+6,2)}, {vr(t,2)}, -1.0 op_sel_hi:[1,0]')
                I.append(f'v_pk_fma_f32 {vr(t+4,2)}, {vr(t+4,2)}, {vr(t+2,2)}, {vr(t+4,2)}')
            else:
                for i in (0, 1): I.append(f'v_add_f32 v{t+4+i}, 1.0, v{t+i}')
                for i in (0, 1): I.append(f'v_fma_f32 v{t+4+i}, v{t+4+i}, v{t+2+i}, v{t+4+i}')
            I.append(f'v_rcp_f32 v{t+4}, v{t+4}')
            I.append(f'v_rcp_f32 v{t+5}, v{t+5}')
            if pk:
                I.append('s_nop 0')
                I.append(f'v_pk_mul_f32 {vr(t+6,2)}, {vr(t+6,2)}, {vr(t+4,2)}')
            else:
                for i in (0, 1): I.append(f'v_add_f32 v{t+6+i}, -1.0, v{t+i}')
                for i in (0, 1): I.append(f'v_mul_f32 v{t+6+i}, v{t+6+i}, v{t+4+i}')
            I.append(f'v_cvt_pk_bf16_f32 v{q}, v{t+6}, v{t+7}')
            I.append(f'buffer_store_dword v{q}, v{VOUT + j//3}, {sr(S_OUT)}, 0 offen offset:{1152*(j%3)} {o.oflags if j < o.oj else ""}')
            return I
        def cost(x): return 2 if x.startswith(('v_exp', 'v_rcp', 'buffer')) else 1
        while tasks and tasks[0][0] < 0: run(tasks.pop(0), -1)
        if o.tagp:
            for g in (0, 2):
                vwait(g + 1)
                for gg in (g + 4, g + 5):
                    t_ = [t for t in tasks if t[2] == 'W' and t[3] == gg][0]
                    tasks.remove(t_); run(t_, -1)
                kcheck(g)
                em('s_nop 2')
                em('s_cmp_lg_u64 s[48:49], 0')
                em(f's_cbranch_scc1 L_ks{typ}{g}')
                em(f'L_kb{typ}{g}:')
        inv = {n: v for v, n in vstart.items()}
        lastop = {j: max(n for n in range(N) if ops[n][1] == j) for j in range(9)}
        for n, (g, j) in enumerate(ops):
            if n in inv and o.padto and o.padev == 'm5' and inv[n] == o.padstep:
                e('s_memrealtime s[100:101]'); dirty[0] = True
            if n in inv and o.diag:
                v = inv[n]
                if o.diag == 2 and v in o.marks:
                    kk = o.marks.index(v)
                    e(f's_memtime s[{ST0+2*kk}:{ST0+2*kk+1}]'); dirty[0] = True
                if o.diag in (1, 4) and v == 33: stamp(5); stamp(6); dirty[0] = True
            if o.jit and n in inv and inv[n] in (20, 36, 44, 52, 60, 70, 90): jit()
            k = key(n)
            assert k in xreg, (k, n)
            lwait(k); vwait(g)
            acc = S[g][4]
            d = ACC[acc] + 4 * j
            if g == 0: cs = '0'
            elif acc == 'Q' and S[g-1][4] == 'P': cs = vr(ACC['P'] + 4 * j, 4)
            else: cs = vr(d, 4)
            em(f'v_mfma_f32_16x16x32_bf16 {vr(d,4)}, {vr(wr[g],4)}, {vr(xreg[k],4)}, {cs}' if not o.swapab else f'v_mfma_f32_16x16x32_bf16 {vr(d,4)}, {vr(xreg[k],4)}, {vr(wr[g],4)}, {cs}')
            if n == lastop[j]: since[j] = 0
            while later: em(later.pop(0))
            budget = 2
            TC = {'X': 1, 'W': 2, 'L': 2, 'C': 1, 'I': 0, 'A': 1, 'Q': 2, 'S': 2, 'F': 2, 'G': 1, 'P': 2, 'K': 2}
            while True:
                ready = [t for t in tasks if t[0] <= n and wok(t, n)]
                if not ready: break
                t = min(ready, key=lambda t: t[1])
                assert t[1] >= n, ('late', t, n)
                if TC[t[2]] > budget and t[1] > n:
                    fit = [u for u in ready if TC[u[2]] <= budget]
                    if not fit: break
                    t = min(fit, key=lambda t: t[1])
                tasks.remove(t); run(t, n); budget -= TC[t[2]]
            for jj in sorted(since):
                if 8 <= since[jj] < 10**6:
                    fill += epi(jj, False); since[jj] = 10**6
            budget += o.nfill - 2
            while fill and budget >= cost(fill[0]):
                budget -= cost(fill[0])
                if fill[0].startswith('buffer_store'):
                    q_ = int(re.match(r'buffer_store_dword v(\d+)', fill[0]).group(1))
                    until.pop(q_, None); busy[q_] = n + 2
                em(fill.pop(0))
            assert all(t[1] > n for t in tasks), ('late', n, [t for t in tasks if t[1] <= n])
        assert not tasks
        stamp(7)
        while fill: em(fill.pop(0))
        for jj in [jj for jj in sorted(since) if since[jj] < 10**6]:
            if since[jj] < 8: em(f's_nop {8-since[jj]-1}')
            for x in epi(jj, True): em(x)
        stamp(8)
        if o.padto and o.padev[0] == 'm': padloop(typ)
        if o.diag == 1:
            e('s_waitcnt vmcnt(0)')
            stamp(9)
            dump(10)
        if o.diag == 2:
            kk = len(o.marks)
            e(f's_memtime s[{ST0+2*kk}:{ST0+2*kk+1}]')
            dump(10)
        e('s_endpgm')
        for tag, off, cnt in slow:
            e(f'L_slow{typ}{tag}:')
            e(f'ds_read_b32 v{VC}, v{VF+5 if off == "pair" else VF+1} offset:{24 if off == "pair" else off}')
            e('s_waitcnt lgkmcnt(0)')
            e(f'v_cmp_ne_u32 vcc, {cnt}, v{VC}')
            e('s_nop 4')
            e(f's_cbranch_vccnz L_slow{typ}{tag}')
            e(f's_branch L_back{typ}{tag}')
        for ci, va in fslow: flagwait(f'{typ}{ci}', va, f'L_fb{typ}{ci}')
        for g, a0_, a1_ in kslow:
            e(f'L_ks{typ}{g}:')
            if o.diag: e(f's_add_u32 s95, s95, {1 << 25}')
            e(f'ds_read_b32 v{VF+7}, v{VF+1} offset:12')
            e(f's_add_u32 s47, s96, {2048*g}')
            e('s_waitcnt lgkmcnt(0)')
            for i, a_ in enumerate((a0_, a0_ + 4, a1_, a1_ + 4)):
                e(f'buffer_load_dwordx4 {vr(a_,4)}, v{VWL}, {sr(S_WS)}, s47 offen offset:{1024*i} sc1')
            e(f'v_readfirstlane_b32 s46, v{VF+7}')
            e(f's_add_u32 s{NPOLL}, s{NPOLL}, 1')
            e('s_waitcnt vmcnt(0)')
            e('s_cmp_lg_u32 s46, 0')
            e(f's_cbranch_scc1 L_kb{typ}{g}')
            e(f'v_bitop3_b32 v{VC}, v{a0_+1}, v{a0_+6}, v{VF+3} bitop3:0x7e')
            e(f'v_bitop3_b32 v{VC+1}, v{a1_+1}, v{a1_+6}, v{VF+3} bitop3:0x7e')
            e(f'v_or_b32 v{VC}, v{VC}, v{VC+1}')
            e(f'v_cmp_ne_u32 s[48:49], 0, v{VC}')
            e('s_nop 2')
            e('s_cmp_eq_u64 s[48:49], 0')
            e(f's_cbranch_scc1 L_kb{typ}{g}')
            e(f's_cmp_lg_u32 s{NPOLL}, {o.maxpoll}')
            e(f's_cbranch_scc1 L_ks{typ}{g}')
            e(f'v_mov_b32 v{VF+7}, 0x10000')
            e('s_mov_b64 exec, 1')
            e(f'ds_add_u32 v{VF+1}, v{VF+7} offset:4')
            e('s_mov_b64 exec, -1')
            e(f's_branch L_ks{typ}{g}')

    mark['help0'] = len(e.L)
    if not o.hfirst: e('.p2align 6')
    e('L_helper:')
    role[0] = 'h'
    e(f's_setprio {o.hprio}')
    e(f's_sub_u32 s{TW0}, s{WAVE}, 4')
    e(f's_mov_b32 s{TW1}, s{WAVE}')
    e(f's_sub_u32 s{PAIR}, s{RID}, {NPROD}')
    e(f's_cselect_b32 s{PAIR}, s{RID}, s{PAIR}')
    e(f's_mov_b32 s{MODE}, 0')
    e(f's_mov_b32 s{NOTASK}, s{RID}')
    e(f's_mov_b32 s{HAS3}, s{TW0}')
    e(f's_lshl_b32 s{SCRB}, s{TW0}, 12')
    e(f's_add_u32 s{SCRB}, s{SCRB}, {SCR}')
    e('L_prod:')
    T = [(28, TW0, 2, 52, 0), (36, TW1, 4, 53, 2048), (44, TW2, 6, 54, 16384)]
    c, kp, q, cc, kk, t = 46, 47, 48, 49, 50, 51
    b = TS
    e('v_mov_b32 v19, 4320')
    e('v_and_b32 v23, 3, v1')
    e('v_lshrrev_b32 v24, 2, v1')
    e('v_mul_u32_u24 v24, 288, v24')
    for (vb, sw, vl, vs, so) in T:
        e(f'v_lshl_add_u32 v8, s{sw}, 2, v23' if sw != TW2 else 'v_add_u32 v8, 32, v23')
        e('v_cmp_le_u32 vcc, 18, v8')
        e(f'v_lshl_add_u32 v{vl}, v8, 4, v24')
        e(f'v_add_u32 v9, v{vl}, v19')
        e(f'v_cndmask_b32 v{vl}, v{vl}, v9, vcc')
    e(f's_and_b32 s{c}, s{PAIR}, 15')
    e(f's_lshr_b32 s{kp}, s{PAIR}, 4')
    e(f's_mul_i32 s{b}, s{c}, 165888')
    e(f's_mul_i32 s{t}, s{kp}, 9216')
    e(f's_add_u32 s{b}, s{b}, s{t}')
    e(f's_add_u32 s{b+1}, s{b}, 82944')
    e(f's_mov_b32 s{S_W+2}, 2571264')
    e(f's_mov_b32 s{S_W+3}, 0x20000')
    e(f's_mov_b32 s{S_WO+3}, s{S_W+3}')
    e(f's_cmp_lg_u32 s{c}, 15')
    e(f's_cselect_b32 s{S_WO+2}, s{S_W+2}, 0')
    e(f's_mov_b32 m0, s{SCRB}')
    e('s_waitcnt lgkmcnt(0)')
    e(f's_mov_b32 s{S_W}, s6')
    e(f's_and_b32 s{S_W+1}, s7, 0xffff')
    e(f's_mov_b32 s{S_WO}, s6')
    e(f's_and_b32 s{S_WO+1}, s7, 0xffff')
    e(f's_cmp_ge_u32 s{NOTASK}, {NTASK}')
    e('s_cbranch_scc1 L_a3')
    def cond3(lbl):
        e(f's_cmp_lg_u32 s{HAS3}, 0')
        e(f's_cbranch_scc1 {lbl}')
    for ti, (vb, sw, vl, vs, so) in enumerate(T):
        if ti == 2: cond3('L_a3')
        if ti == 1: e('s_addk_i32 m0, 1024'); e('s_nop 0')
        e(f'buffer_load_dwordx4 v{vl}, {sr(S_W)}, s{b} offen lds')
        e('s_addk_i32 m0, 1024')
        e('s_nop 0')
        e(f'buffer_load_dwordx4 v{vl}, {sr(S_WO)}, s{b+1} offen lds')
        if ti == 1: e(f's_addk_i32 m0, {16384-3072}')
    e('L_a3:')
    stamp(1)
    e(f's_cmp_lg_u32 s{MODE}, 0')
    e('s_cbranch_scc1 L_a4')
    e(f's_load_dword s{TAG}, s[12:13], {NONCE}')
    e(f's_lshr_b32 s{EARLY}, 0x33, s{kp}')
    e(f's_and_b32 s{EARLY}, s{EARLY}, 1')
    e(f's_sub_u32 s{XK}, 2, s{EARLY}')
    e(f's_lshl_b32 s{t}, s{kp}, 1')
    e(f's_lshr_b32 s{YT}, {(3<<12)+(3<<14)+(3<<16)}, s{t}')
    e(f's_and_b32 s{YT}, s{YT}, 3')
    e(f's_lshr_b32 s{t}, s{kp}, 1')
    e(f's_cmp_ge_u32 s{RID}, {NPROD}')
    e(f's_cselect_b32 s{EARLY}, 0, s{EARLY}')
    e(f's_cselect_b32 s{XK}, 3, s{XK}')
    e(f's_cselect_b32 s{YT}, s{t}, s{YT}')
    e(f's_cmp_ge_u32 s{RID}, {NPROD+32}')
    e(f's_cselect_b32 s{XK}, 0, s{XK}')
    e(f's_cmp_ge_u32 s{RID}, {NTASK}')
    e(f's_cselect_b32 s{YT}, 0, s{YT}')
    if not o.b0early:
        e(f's_cmp_lg_u32 s{EARLY}, 0')
        e('s_cbranch_scc1 L_a4')
    e('s_barrier')
    e('L_a4:')
    jit()
    e(f's_mov_b32 s{MASK}, 0xffff0000')
    e(f's_mov_b32 s{NPOLL}, 0')
    srd(e, S_WS, 12, WS_REC)
    srd(e, S_DBG, 10, 256)
    e(f'v_mov_b32 v10, {CNT}')
    e(f'v_mov_b32 v20, {(256 - 18*NSTR) & 0xffffffff}')
    e(f'v_mov_b32 v26, {NSTR}')
    e('v_bfe_u32 v21, v1, 2, 2')
    e('v_lshlrev_b32 v21, 7, v21')
    e('v_and_b32 v22, 1, v1')
    e('v_lshl_add_u32 v21, v22, 6, v21')
    e('v_bfe_u32 v22, v1, 1, 1')
    e('v_lshl_add_u32 v21, v22, 3, v21')
    e('v_lshrrev_b32 v22, 4, v1')
    e('v_lshl_add_u32 v21, v22, 4, v21')
    e(f'v_add_u32 v21, s{SCRB}, v21')
    if o.yall: e('v_mov_b32 v62, v21')
    e('v_and_b32 v25, 15, v1')
    e('v_lshlrev_b32 v25, 4, v25')
    for (vb, sw, vl, vs, so) in T:
        e(f'v_lshl_add_u32 v8, s{sw}, 2, v22' if sw != TW2 else 'v_add_u32 v8, 32, v22')
        e('v_cmp_le_u32 vcc, 18, v8')
        e(f'v_mad_u32_u24 v{vs}, v8, v26, v25')
        e(f'v_add_u32 v9, v{vs}, v20')
        e(f'v_cndmask_b32 v{vs}, v{vs}, v9, vcc')
    if o.tagp:
        e(f's_cmp_eq_u32 s{WAVE}, 4')
        e(f's_cselect_b32 s{t}, 1, s{EARLY}')
        e(f's_cmp_lg_u32 s{t}, 0')
        e(f's_cselect_b32 s{t}, 4, -16')
        e(f'v_mov_b32 v9, s{t}')
        e('s_waitcnt lgkmcnt(0)')
        e('s_mov_b64 exec, 1')
        e(f'buffer_load_dword v27, v9, {sr(S_DBG)}, 0 offen sc1')
        e('s_mov_b64 exec, -1')
        e(f's_lshr_b32 s97, 0x33, s{kp}')
        e('s_and_b32 s97, s97, 1')
        e(f's_lshr_b32 s96, s{kp}, 2')
        e('s_lshl_b32 s96, s96, 4')
        e(f's_add_u32 s96, s96, s{c}')
        e('s_lshl_b32 s96, s96, 2')
        e(f's_and_b32 s{t}, s{kp}, 1')
        e(f's_add_u32 s96, s96, s{t}')
        e('s_lshl_b32 s96, s96, 9')
        e(f's_add_u32 s96, s96, {WOFF + 2*NSTEP*1024}')
    e(f's_lshr_b32 s{q}, s{kp}, 1')
    e(f's_and_b32 s{cc}, s{c}, 7')
    e(f's_lshr_b32 s{kk}, s{c}, 3')
    e(f's_and_b32 s{t}, s{kp}, 1')
    e(f's_cmp_eq_u32 s{kp}, 8')
    e(f's_cselect_b32 s{cc}, s{cc}, s{c}')
    e(f's_cselect_b32 s{kk}, s{kk}, s{t}')
    e(f's_lshl_b32 s{kk}, s{kk}, 9')
    e(f's_add_u32 s{kk}, s{kk}, {WOFF}')
    e(f's_lshl_b32 s{t}, s{q}, 4')
    e(f's_add_u32 s{b+2}, s{t}, s{cc}')
    e(f's_sub_u32 s{b+3}, s{b+2}, s{q}')
    e(f's_cmp_ge_u32 s{q}, 2')
    e(f's_cselect_b32 s{b+4}, 74, 0')
    e(f's_add_u32 s{b+4}, s{b+4}, s{b+2}')
    e(f's_cmp_lt_u32 s{cc}, 2')
    e(f's_cselect_b32 s{t}, 32, 136')
    e(f's_add_u32 s{t}, s{t}, s{cc}')
    e(f's_cmp_eq_u32 s{kp}, 8')
    e(f's_cselect_b32 s{b+4}, s{t}, s{b+4}')
    e(f's_add_u32 s{b+2}, s{b+2}, 34')
    e(f's_add_u32 s{b+3}, s{b+3}, 144')
    for k in (2, 3, 4):
        e(f's_lshl_b32 s{b+k}, s{b+k}, 10')
        e(f's_add_u32 s{b+k}, s{b+k}, s{kk}')
    e(f's_cmp_eq_u32 s{kp}, 8')
    e(f's_cselect_b32 s{t}, 1, 2')
    e(f's_cmp_eq_u32 s{c}, 15')
    e(f's_cselect_b32 s{b+5}, s{t}, 0')
    e(f's_lshl_b32 s46, s{WAVE}, 2')
    e(f's_add_u32 s46, s46, {CNT+16}')
    e('v_mov_b32 v55, s46')
    if o.tagp:
        e('s_waitcnt vmcnt(1)')
        stamp(2)
        e(f's_cmp_ge_u32 s{NOTASK}, {NTASK}')
        e('s_cbranch_scc1 L_x9')
    else:
        e('v_mov_b32 v27, 0')
        e('v_mov_b32 v9, 4')
        e('s_waitcnt vmcnt(0) lgkmcnt(0)')
        stamp(2)
        e(f's_cmp_lg_u32 s{WAVE}, 4')
        e('s_cbranch_scc1 L_a5')
        e('s_mov_b64 exec, 1')
        e(f'buffer_load_dword v27, v9, {sr(S_DBG)}, 0 offen sc1')
        e('s_mov_b64 exec, -1')
        e('L_a5:')
        e(f's_cmp_ge_u32 s{NOTASK}, {NTASK}')
        e('s_cbranch_scc1 L_x9')
    for (vb, sw, vl, vs, so) in T:
        for tap in range(2):
            for half in range(2):
                e(f'ds_read_b64_tr_b16 {vr(vb+4*tap+2*half,2)}, v21 offset:{so+1024*tap+512*half}')
    nlab = [0]
    def st01(vb, vs):
        nlab[0] += 1
        e(f'buffer_store_dwordx4 {vr(vb,4)}, v{vs}, {sr(S_WS)}, s{b+2} offen {o.stf}')
        e(f's_cmp_eq_u32 s{b+5}, 2')
        e(f's_cbranch_scc1 L_skip{nlab[0]}')
        e(f'buffer_store_dwordx4 {vr(vb+4,4)}, v{vs}, {sr(S_WS)}, s{b+3} offen {o.stf}')
        e(f'L_skip{nlab[0]}:')
    def st01all(lbl):
        st01(T[0][0], T[0][3]); st01(T[1][0], T[1][3])
        cond3(lbl)
        st01(T[2][0], T[2][3])
    def dosum(vb, tb, ob):
        for i in range(8):
            e(f'v_lshlrev_b32 v{tb+2*i}, 16, v{vb+i}')
            e(f'v_and_b32 v{tb+2*i+1}, s{MASK}, v{vb+i}')
        for i in range(4):
            e(f'v_pk_add_f32 {vr(tb+2*i,2)}, {vr(tb+2*i,2)}, {vr(tb+8+2*i,2)}')
        for i in range(4):
            e(f'v_cvt_pk_bf16_f32 v{ob+i}, v{tb+2*i}, v{tb+2*i+1}')
    def ldswait(off, cmp, operand, tag, slp):
        e(f'L_lw{tag}:')
        e(f'ds_read_b32 v11, v10 offset:{off}')
        e('s_waitcnt lgkmcnt(0)')
        e('v_and_b32 v11, 0xff, v11')
        e(f'v_cmp_{cmp}_u32 vcc, {operand}, v11')
        e('s_nop 4')
        e(f's_cbranch_vccnz L_lx{tag}')
        e(f's_sleep {slp}')
        e(f's_branch L_lw{tag}')
        e(f'L_lx{tag}:')
    SOR = lambda ti: (210 + 8 * ti) if o.tagp else (240 + 4 * ti)
    e(f's_or_b32 s46, s{EARLY}, s{MODE}')
    e(f's_cmp_eq_u32 s{XK}, 2')
    e('s_cselect_b32 s47, 1, s46')
    if o.xl: e('s_mov_b32 s46, s47')
    e('s_cmp_eq_u32 s47, 0')
    e('s_cbranch_scc1 L_x9')
    for ti, (vb, sw, vl, vs, so) in enumerate(T):
        if ti == 2: cond3('L_x3')
        e(f's_waitcnt lgkmcnt({8-4*ti})')
        dosum(vb, 64 + 16 * ti, SOR(ti))
        e('s_cmp_eq_u32 s46, 0')
        e(f's_cbranch_scc1 L_x5{ti}')
        if o.tagp:
            e('s_cmp_eq_u32 s97, 0')
            e(f's_cbranch_scc1 L_x6{ti}')
            if ti == 0:
                e('s_waitcnt vmcnt(0)')
                e('v_readfirstlane_b32 s48, v27')
                e(f's_add_u32 s49, s{TAG}, {TAGINC}')
                e('s_not_b32 s47, s49')
                e(f's_or_b32 s48, s48, s{MODE}')
                e('s_cselect_b32 s49, s47, s49')
            e(f'v_mov_b32 v{SOR(ti)-1}, s49')
            e(f'v_mov_b32 v{SOR(ti)+4}, s49')
            e(f'buffer_store_dwordx4 {vr(SOR(ti)-2,4)}, v{vs}, {sr(S_WS)}, s96 offen {o.stf}')
            e(f'buffer_store_dwordx4 {vr(SOR(ti)+2,4)}, v{vs}, {sr(S_WS)}, s96 offen offset:1024 {o.stf}')
            e(f's_branch L_x5{ti}')
            e(f'L_x6{ti}:')
        e(f'buffer_store_dwordx4 {vr(SOR(ti),4)}, v{vs}, {sr(S_WS)}, s{b+4} offen {o.stf}')
        e(f'L_x5{ti}:')
    e('L_x3:')
    e(f's_cmp_eq_u32 s{MODE}, 0')
    e('s_cbranch_scc1 L_x9')
    e('L_x2:')
    e('s_waitcnt lgkmcnt(0)')
    st01all('L_x4')
    e('L_x4:')
    e(f's_cmp_eq_u32 s{MODE}, 0')
    e('s_cbranch_scc1 L_x9')
    e('s_waitcnt vmcnt(0)')
    e(f's_add_u32 s{PAIR}, s{PAIR}, 1')
    e(f's_cmp_lt_u32 s{PAIR}, {NPROD}')
    e('s_cbranch_scc1 L_prod')
    e('v_mov_b32 v11, 1')
    e('ds_write_b32 v10, v11 offset:12')
    e('s_endpgm')
    e('L_x9:')
    jit()
    if o.tagp:
        e(f's_cmp_eq_u32 s{EARLY}, 0')
        e('s_cbranch_scc1 L_x10')
        e('s_barrier')
        e('L_x10:')
    stamp(3)
    decode()
    e('v_subrev_u32 v4, 256, v0')
    e('v_min_u32 v4, 251, v4')
    e('v_mul_u32_u24 v3, 3641, v4')
    e('v_lshrrev_b32 v3, 16, v3')
    e('v_mul_u32_u24 v2, 18, v3')
    e('v_sub_u32 v2, v4, v2')
    e(f'v_mul_u32_u24 v3, {R}, v3')
    e(f'v_min_u32 v3, {160-R}, v3')
    e('v_mul_u32_u24 v4, 1152, v3')
    e('v_lshl_add_u32 v4, v2, 4, v4')
    e(f'v_add_u32 v12, s{XB}, v4')
    e('v_mul_u32_u24 v18, 288, v3')
    e('v_lshl_add_u32 v18, v2, 4, v18')
    e(f'v_add_u32 v19, {X_D1}, v18')
    srd(e, S_X, 4, 1152000, add=BOFF)
    e(f's_add_u32 s46, s{TAG}, {TAGINC}')
    e('v_mov_b32 v56, s46')
    e(f's_lshl_b32 s46, s{RID}, 7')
    e('v_mov_b32 v58, s46')
    e(f's_add_u32 s46, s{PAIR}, {NPROD}')
    e('s_lshl_b32 s46, s46, 7')
    e('v_mov_b32 v59, s46')
    def publish(slot, vflag, tag, first, n=0):
        e('s_mov_b64 exec, 1')
        e(f's_waitcnt vmcnt({n})')
        if first: stamp(4)
        if o.padto and tag == 'x': stamp(12)
        e('v_cmp_ne_u32 vcc, 0, v27')
        e('v_not_b32 v57, v56')
        e('s_nop 0')
        e('v_cndmask_b32 v57, v56, v57, vcc')
        e(f'ds_write_b32 v55, v57 offset:{slot}')
        e(f'ds_read_b128 v[20:23], v10 offset:{32+slot}')
        e('s_waitcnt lgkmcnt(0)')
        for i in range(4): e(f'v_xor_b32 v{20+i}, v{20+i}, v56')
        e('v_or3_b32 v20, v20, v21, v22')
        e('v_or_b32 v20, v20, v23')
        e('v_cmp_eq_u32 vcc, 0, v20')
        e('s_and_b64 exec, exec, vcc')
        e(f's_cbranch_execz L_nl{tag}')
        e(f'buffer_store_dword v56, v{vflag}, {sr(S_WS)}, 0 offen sc1')
        e(f'L_nl{tag}:')
        e('s_mov_b64 exec, -1')
    if o.tagp and o.xl:
        e(f's_cmp_lg_u32 s{XK}, 2')
        e('s_cbranch_scc1 L_noflag')
        publish(0, 58, 'x', True)
        e(f's_mov_b32 s{XK}, 0')
    elif o.xl:
        e(f's_cmp_ge_u32 s{RID}, {NPROD}')
        e('s_cbranch_scc1 L_noflag')
        publish(0, 58, 'x', True)
        e(f's_mov_b32 s{XK}, 0')
        e(f's_cmp_eq_u32 s{EARLY}, 0')
        e('s_cbranch_scc1 L_noflag')
        if not o.b0early: e('s_barrier')
    elif not o.tagp:
        e(f's_cmp_eq_u32 s{EARLY}, 0')
        e('s_cbranch_scc1 L_noflag')
        publish(0, 58, 'x', True)
        if not o.b0early: e('s_barrier')
    e('L_noflag:')
    e(f's_setprio {o.hprio2}')
    RAW, ORAW = 64, 120
    EU = [184, 192]
    OU, DT, DO = 200, 208, 216
    xi = [0]
    NL = R + 1
    hq = []
    def eload():
        k = xi[0]
        if k >= NL: return
        a_ = 12
        if k:
            a_ = 13 + (k & 3)
            e(f'v_add_u32 v{a_}, {1152*k}, v12')
        e(f'buffer_load_dwordx4 {vr(RAW+4*k,4)}, v{a_}, {sr(S_X)}, 0 offen')
        xi[0] += 1
        hq.append(('e', k))
    if o.etouch:
        e(f's_cmp_lt_u32 s{RID}, {NTASK}')
        e('s_cbranch_scc1 L_net')
        e(f's_and_b32 s46, s{NB}, 1')
        e(f's_mul_i32 s46, s46, {1152*6}')
        e('v_add_u32 v12, s46, v12')
        for _ in range(7): eload()
        e('v_subrev_u32 v12, s46, v12')
        e('s_waitcnt vmcnt(0)')
        e('L_net:')
        xi[0] = 0; hq.clear()
    YA = 232
    e(f's_cmp_eq_u32 s{b+5}, 2')
    e('s_cselect_b32 s46, 0x80000000, 0')
    e(f's_cmp_lg_u32 s{HAS3}, 0')
    e('s_cselect_b32 s47, 0x80000000, 0')
    e('s_or_b32 s48, s46, s47')
    for i in range(6):
        m_ = {0: None, 1: 46, 2: None, 3: 46, 4: 47, 5: 48}[i]
        e(f'v_mov_b32 v{YA+i}, v{52+i//2}' if m_ is None else f'v_or_b32 v{YA+i}, s{m_}, v{52+i//2}')
    def ystore(i, a_):
        e(f'buffer_store_dwordx4 {vr(28+4*i,4)}, v{a_}, {sr(S_WS)}, s{b+2+(i&1)} offen {o.stf}')
        hq.append(('y', i))
    if o.yall:
        assert o.d0p
        e(f's_add_u32 s44, s{RID}, 76')
        e(f's_cmp_ge_u32 s44, {NWG}')
        e(f's_cselect_b32 s45, {NWG}, 0')
        e('s_sub_u32 s44, s44, s45')
        e(f's_add_u32 s46, s44, {NPROD + 32}')
        e('s_lshl_b32 s46, s46, 7')
        e('v_mov_b32 v59, s46')
        e('s_mul_hi_u32 s45, s44, 477218589')
        e('s_mul_i32 s46, s45, 9')
        e('s_sub_u32 s44, s44, s46')
        e(f's_lshr_b32 s{YT}, s45, 3')
        e(f's_add_u32 s{YT}, s{YT}, 1')
        e(f's_min_u32 s{YT}, s{YT}, 3')
        e('s_lshl_b32 s45, s45, 2')
        e(f's_add_u32 s45, s45, s{WAVE}')
        e('s_add_u32 s45, s45, 28')
        e('s_and_b32 s46, s45, 15')
        e('s_lshr_b32 s47, s45, 4')
        e('s_mul_i32 s54, s46, 165888')
        e('s_mul_i32 s48, s47, 9216')
        e('s_add_u32 s54, s54, s48')
        e('s_add_u32 s95, s54, 82944')
        e('s_cmp_lg_u32 s46, 15')
        e(f's_cselect_b32 s{S_WO+2}, 2571264, 0')
        e('s_cselect_b32 s51, 0, 0x80000000')
        e('s_lshr_b32 s48, s47, 1')
        e('s_and_b32 s49, s46, 7')
        e('s_lshr_b32 s50, s46, 3')
        e('s_and_b32 s45, s47, 1')
        e('s_cmp_eq_u32 s47, 8')
        e('s_cselect_b32 s49, s49, s46')
        e('s_cselect_b32 s50, s50, s45')
        e('s_cselect_b32 s51, 0, s51')
        e('s_lshl_b32 s50, s50, 9')
        e(f's_add_u32 s50, s50, {WOFF}')
        e('s_lshl_b32 s68, s48, 4')
        e('s_add_u32 s68, s68, s49')
        e('s_sub_u32 s69, s68, s48')
        e('s_add_u32 s68, s68, 34')
        e('s_add_u32 s69, s69, 144')
        for r_ in (68, 69):
            e(f's_lshl_b32 s{r_}, s{r_}, 10')
            e(f's_add_u32 s{r_}, s{r_}, s50')
        e('v_and_b32 v2, 3, v1')
        e('v_lshl_add_u32 v2, s44, 2, v2')
        e('v_lshrrev_b32 v3, 4, v1')
        e('v_lshl_add_u32 v3, s44, 2, v3')
        e('v_cmp_le_u32 vcc, 18, v2')
        e('v_cmp_le_u32 s[46:47], 18, v3')
        e('v_lshl_add_u32 v63, v2, 4, v24')
        e('v_mad_u32_u24 v60, v3, v26, v25')
        e('v_add_u32 v2, 4320, v63')
        e(f'v_add_u32 v3, {(256 - 18*NSTR) & 0xffffffff}, v60')
        e('v_cndmask_b32 v63, v63, v2, vcc')
        e('v_cndmask_b32 v60, v60, v3, s[46:47]')
        e('v_or_b32 v61, s51, v60')
    def ydma():
        if not o.yall: return
        e(f's_mov_b32 m0, s{SCRB}')
        e('s_nop 0')
        e(f'buffer_load_dwordx4 v63, {sr(S_W)}, s54 offen lds')
        e('s_addk_i32 m0, 1024')
        e('s_nop 0')
        e(f'buffer_load_dwordx4 v63, {sr(S_WO)}, s95 offen lds')
        hq.append('d0'); hq.append('d1')
    stamp(5)
    ldswait(8, 'eq', 4, 'o', 1)
    def unpack(dst, s_):
        for i in range(4):
            e(f'v_lshlrev_b32 v{dst+2*i}, 16, v{s_+i}')
            e(f'v_and_b32 v{dst+2*i+1}, s{MASK}, v{s_+i}')
    def unpackE(dst, k):
        e(f's_waitcnt vmcnt({len(hq)-1-hq.index(("e", k))})')
        unpack(dst, RAW + 4 * k)
        eload()
    def diff(eu, out):
        for i in range(8): e(f'v_sub_f32 v{DT+i}, v{eu+i}, v{OU+i}')
        for i in range(4):
            e(f'v_cvt_pk_bf16_f32 v{out+i}, v{DT+2*i}, v{DT+2*i+1}')
    def opengate():
        if not o.gate: return
        e('v_mov_b32 v11, 0x100')
        e('s_mov_b64 exec, 1')
        e('ds_add_u32 v10, v11 offset:8')
        e('s_mov_b64 exec, -1')
    def rows(hook):
        jit()
        stamp(6)
        for j in range(R):
            e(f'ds_read_b128 {vr(ORAW+4*j,4)}, v18 offset:{X_O+288*j}')
        unpackE(EU[0], 0)
        e('s_waitcnt lgkmcnt(0)')
        for j in range(R):
            o0 = DO + 8 * (j & 1)
            unpack(OU, ORAW + 4 * j)
            diff(EU[j & 1], o0)
            e(f'ds_write_b128 v18, {vr(o0,4)} offset:{X_D0+288*j}')
            unpackE(EU[(j + 1) & 1], j + 1)
            diff(EU[(j + 1) & 1], o0 + 4)
            e(f'ds_write_b128 v19, {vr(o0+4,4)} offset:{288*j}')
            hook(j)
    if o.apath:
        e(f's_cmp_ge_u32 s{RID}, {NPROD + (32 if o.d0p else 0)}')
        e('s_cbranch_scc1 L_pathA')
    e(f's_cmp_lt_u32 s{XK}, 2')
    e('s_cbranch_scc1 L_nox')
    if o.d0p:
        e(f's_cmp_eq_u32 s{XK}, 3')
        e('s_cbranch_scc1 L_xd')
    for i in range(3):
        e(f'buffer_store_dwordx4 {vr(SOR(i),4)}, v{YA+2*i}, {sr(S_WS)}, s{b+4} offen {o.stf}')
    if o.d0p:
        e('s_branch L_xe')
        e('L_xd:')
        for i in range(6): ystore(i, YA + i)
        e('L_xe:')
    if o.gearly:
        opengate()
        publish(0, 58, 'x2', True)
        e('s_branch L_nox2')
        e('L_nox:')
        opengate()
        e('L_nox2:')
    else:
        publish(0, 58, 'x2', True)
        e('L_nox:')
        opengate()
    hq.clear(); xi[0] = 0
    for _ in range(o.ein): eload()
    rows(lambda j: ydma() if j == o.ydrow else None)
    if o.apath:
        e('s_branch L_rowsdone')
        e('L_pathA:')
        if not o.d0p:
            e(f's_cmp_eq_u32 s{XK}, 3')
            e('s_cselect_b32 s47, 0, 0x80000000')
            for i in range(6): e(f'v_or_b32 v{20+i}, s47, v{YA+i}')
        hq.clear(); xi[0] = 0
        for _ in range(NL): eload()
        if not o.d0p:
            for i in range(6): ystore(i, 20 + i)
        def hookA(j):
            if j == o.grow + 1: ydma()
            if j == o.grow:
                e(f's_waitcnt vmcnt({len(hq)-1-hq.index(("e", NL-1))})')
                opengate()
            if j == o.xrow and not o.d0p:
                e(f's_cmp_lg_u32 s{XK}, 3')
                e('s_cbranch_scc1 L_xp')
                publish(0, 58, 'x3', True)
                e('L_xp:')
        rows(hookA)
    e('L_rowsdone:')
    e('s_waitcnt lgkmcnt(0)')
    stamp(7)
    e('v_mov_b32 v11, 1')
    e('s_mov_b64 exec, 1')
    e('ds_add_u32 v10, v11 offset:16')
    e('s_mov_b64 exec, -1')
    e(f's_cmp_eq_u32 s{YT}, 0')
    e('s_cbranch_scc1 L_noy')
    e(f's_setprio {o.yprio}')
    if o.yall:
        e('s_waitcnt vmcnt(0)')
        for tap in range(2):
            for half in range(2):
                e(f'ds_read_b64_tr_b16 {vr(28+4*tap+2*half,2)}, v62 offset:{1024*tap+512*half}')
    e('L_yw:')
    e('ds_read_b64 v[20:21], v10')
    e('s_waitcnt lgkmcnt(0)')
    e('v_lshrrev_b32 v21, 14, v21')
    e('v_and_b32 v21, -4, v21')
    e('v_or_b32 v20, v20, v21')
    e(f'v_cmp_le_u32 vcc, s{YT}, v20')
    e('s_nop 4')
    e('s_cbranch_vccnz L_yx')
    e('s_sleep 4')
    e('s_branch L_yw')
    e('L_yx:')
    jit()
    if o.yall:
        e(f'buffer_store_dwordx4 v[28:31], v60, {sr(S_WS)}, s68 offen {o.stf}')
        e(f'buffer_store_dwordx4 v[32:35], v61, {sr(S_WS)}, s69 offen {o.stf}')
    else:
      for i in range(6):
        ystore(i, YA + i)
        e(f's_waitcnt vmcnt({o.ythr})')
        if o.ysleep: e(f's_sleep {o.ysleep}')
    publish(16, 59, 'y', False)
    if o.diag == 1: stamp(8)
    e('L_noy:')
    e(f's_cmp_lg_u32 s{WAVE}, 4')
    e('s_cbranch_scc1 L_hend')
    e('L_guard:')
    e('ds_read_b32 v11, v10 offset:4')
    e('s_waitcnt lgkmcnt(0)')
    e('v_readfirstlane_b32 s46, v11')
    e('s_nop 3')
    e('s_cmp_eq_u32 s46, 4')
    e('s_cbranch_scc1 L_hend')
    e('s_cmp_lt_u32 s46, 0x10000')
    e('s_cbranch_scc0 L_rescue')
    e('s_sleep 16')
    e('s_branch L_guard')
    e('L_rescue:')
    e(f's_mov_b32 s{MODE}, 1')
    e(f's_mov_b32 s{HAS3}, 1')
    e(f's_mov_b32 s{NOTASK}, 0')
    e(f's_lshr_b32 s{TW0}, s{NB}, 1')
    e(f's_add_u32 s{TW1}, s{NB}, 9')
    e(f's_lshr_b32 s{TW1}, s{TW1}, 1')
    e(f's_mov_b32 s{PAIR}, 0')
    e('s_branch L_prod')
    e('L_hend:')
    if o.padto and o.padev[0] == 'h': padloop('h')
    if o.diag == 1:
        stamp(9)
        dump(10)
    e('L_end:')
    e('s_endpgm')
    if o.hfirst:
        m0, h0 = mark['main0'], mark['help0']
        e.L = e.L[:m0] + e.L[h0:] + ['.p2align 6'] + e.L[m0:h0]
    e('L_codeend:')
    e('.section .rodata,"a"')
    e('.p2align 6')
    e(f'.amdhsa_kernel {KN}')
    for x in ['next_free_vgpr 256', 'next_free_sgpr 102', 'accum_offset 256', 'group_segment_fixed_size 0', 'kernarg_size 40',
              'user_sgpr_count 2', 'user_sgpr_kernarg_segment_ptr 1', 'system_sgpr_workgroup_id_x 1']:
        e('  .amdhsa_' + x)
    e('.end_amdhsa_kernel')
    n = haz.check(e.L)
    if n: print(f'{n} hazards', file=sys.stderr)
    return f'; @launch grid=({NWG},1,1) block=(512,1,1) lds={LDS_BYTES}\n' + e.text()

def opts(argv=None):
    ap = argparse.ArgumentParser()
    ap.add_argument('-o', default='k.s')
    for nm, d in [('diag', 0), ('pf', 16), ('pf0', 8), ('wgap', 4), ('wres', 4), ('wsc1', 0), ('nfill', 2), ('fstride', 128), ('sleep', 0), ('maxpoll', 3000), ('nopoll', 0),
                  ('hprio', 3), ('hprio2', 0), ('mprio', 2), ('epre', 0), ('ein', 7), ('dpre', 7), ('b0early', 0), ('mtouch', 1), ('gate', 1), ('swapab', 0), ('d0p', 1), ('map', 1), ('chain', 4), ('jit', 0), ('apath', 1), ('rmap', 0), ('yall', 0), ('ydrow', 6), ('flat0', 0), ('flatzz', 0), ('tagp', 0), ('tpf', 5), ('xl', 0), ('p0plain', 0), ('onepoll', 0), ('epoll', 1), ('ppoll', 0), ('yprio', 3), ('ysleep', 0), ('vt', 94), ('tla', 40), ('tskip', 1), ('gearly', 1), ('chfrom', 8), ('oj', 9), ('nolds', 0), ('now', 0), ('wsame', 0), ('grow', 1), ('vbd', 33), ('nopk', 1), ('padto', 0), ('npdelay', 0), ('opre', 5), ('etouch', 0), ('orev', 1), ('b0late', 1), ('dec', 1), ('tail', 1), ('xla', 9), ('hold', 1), ('prest', 0), ('xslot', 0), ('noclosed', 0), ('cpf', 1), ('hfirst', 1), ('warmb', 1), ('wsfirst', 0), ('flead', 6), ('ythr', 6), ('xrow', 3), ('padstep', 33), ('probe', 0), ('probeoff', 0x4000000)]:
        ap.add_argument('--' + nm, type=int, default=d)
    ap.add_argument('--oflags', default='')
    ap.add_argument('--pmap', default='18,18,18,18,18,18,18,18')
    ap.add_argument('--padev', default='m0')
    ap.add_argument('--trig', default='10,25,40')
    ap.add_argument('--yrow', default='0,7,2,9,5,11')
    ap.add_argument('--pfcs', default='4,5,5,5,5')
    ap.add_argument('--fflags', default='')
    ap.add_argument('--fleads', default='6,6,6,6,6')
    ap.add_argument('--stf', default='sc1')
    ap.add_argument('--marks', default='0,4,8,12,16,24,33,47,58')
    o = ap.parse_args(argv)
    o.marks = [int(x) for x in o.marks.split(',')]
    o.yrow = [int(x) for x in o.yrow.split(',')]
    o.pfcs = [int(x) for x in o.pfcs.split(',')]
    o.fleads = [int(x) for x in o.fleads.split(',')]
    o.trig = [int(x) for x in o.trig.split(',')]
    return o

if __name__ == '__main__':
    o = opts()
    open(o.o, 'w').write(gen(o))
```

```python
import re, sys, argparse
import haz

KN = 'standalone__autoregressive_conv_wavernn__speech_kernel'
NWG = 252
NPROD = 144
ARR = 160 * 288
X_D0, X_O, X_D1 = 0, ARR, 2 * ARR
CNT = 3 * ARR
SCR = CNT + 64
LDS_BYTES = SCR + 18432
NSTEP = 106
WOFF = int(__import__('os').environ.get('WOFF', '0x100000'), 0)
NONCE = 0x10000
DIAG = 0x800000
WS_REC = max(0x1000000, WOFF + 0x400000, int(__import__('os').environ.get('WSREC', '0'), 0))
TAGINC = 0x9E3779B9
R = 12


HEADER = """; Gated dilated causal convolution, out = tanh(f) * sigmoid(g), h = [f g] = sum_i x[t + 2i - 60] w[i].
;
; A workgroup owns 144 output pairs x 16 output columns (f and g). Waves 0-3 run the matrix loop (two column tiles x
"""

class Em:
    def __init__(self): self.L = []
    def __call__(self, s): self.L.append(s)
    def text(self): return '\n'.join(self.L) + '\n'

def vr(a, n=1): return f'v{a}' if n == 1 else f'v[{a}:{a+n-1}]'
def sr(a, n=4): return f's[{a}:{a+n-1}]'

def streams():
    out = []
    for typ in (0, 1):
        S = []
        pid = [0]
        def add(arr, chunk, cs, acc):
            for c in cs: S.append((pid[0], arr, chunk, c, acc))
            pid[0] += 1
        if typ == 0:
            add('O', 0, range(16), 'P'); add('O', 1, range(16), 'P'); add('O', 'rem', range(0, 2), 'P')
            for q in range(4): add('D', q, range(16), 'Q')
            add('D', 'rem', range(8), 'Q')
        else:
            add('O', 2, range(16), 'P'); add('O', 3, range(16), 'P'); add('O', 'rem', range(2, 8), 'P')
            for q in range(4): add('D', q, range(15), 'Q')
            add('D', 'rem', range(8), 'Q')
        assert len(S) == NSTEP
        out.append(S)
    return out

S_X, S_W, S_WO, S_WS, S_OUT, S_DBG = 20, 24, 28, 32, 36, 40
WAVE, NB, BAT, PAR, MB, BOFF = 14, 15, 16, 17, 18, 19
PAIR0 = 3
XB = 52
MASK = 53
TW0, TW1, TW2, PAIR, HAS3, MODE, SCRB, TAG, LAST, NPOLL = 44, 45, 54, 55, 56, 57, 58, 59, 60, 61
TS = 62
TYP, WSO = 68, 69
EARLY, XK, YT, FIDX = 90, 91, 92, 93
NOTASK = 94
FO = 97
C2L, CNL, C60 = 90, 92, 94
ST0 = 70

def srd(e, d, ptr, rec, add=None):
    if add is None:
        e(f's_mov_b32 s{d}, s{ptr}')
        e(f's_and_b32 s{d+1}, s{ptr+1}, 0xffff')
    else:
        e(f's_add_u32 s{d}, s{ptr}, s{add}')
        e(f's_addc_u32 s{d+1}, s{ptr+1}, 0')
        e(f's_and_b32 s{d+1}, s{d+1}, 0xffff')
    e(f's_mov_b32 s{d+2}, {rec}')
    e(f's_mov_b32 s{d+3}, 0x20000')

def gen(o):
    e = Em()
    NSTR = 2 * NSTEP * 1024 + (65536 if o.tagp else 0)
    if o.tagp: o.epoll = 0
    NTASK = NPROD + (32 if o.yall else 96)
    role = ['m']
    jn = [0]
    def jit():
        if not o.jit: return
        jn[0] += 1
        k = jn[0]
        e(f's_mul_i32 s98, s2, {37 + 2 * k + o.jit * 10}')
        e(f's_mul_i32 s99, s{WAVE}, {11 + 6 * k + o.jit}')
        e('s_add_u32 s98, s98, s99')
        e('s_bitcmp1_b32 s98, 3')
        e(f's_cbranch_scc1 L_jit{k}')
        e(f's_sleep {30 + (k * 17 + o.jit * 5) % 90}')
        e(f'L_jit{k}:')
    def padloop(tag):
        e(f'L_pad{tag}:')
        e('s_memrealtime s[98:99]')
        e('s_waitcnt lgkmcnt(0)')
        e('s_sub_u32 s98, s98, s100')
        e(f's_cmp_lt_u32 s98, {o.padto}')
        e(f's_cbranch_scc1 L_pad{tag}')
    def stamp(k, lvl=1):
        if o.padto and lvl == 1 and o.padev == f'{role[0]}{k}':
            e('s_memrealtime s[100:101]'); e('s_waitcnt lgkmcnt(0)')
        if o.diag == lvl or (o.diag == 4 and lvl == 1): e(f's_memrealtime s[{ST0+2*k}:{ST0+2*k+1}]')
    def dump(nst):
        e('s_waitcnt lgkmcnt(0)')
        e('v_mov_b32 v250, 0')
        for k in range(nst): e(f'v_writelane_b32 v250, s{ST0+2*k}, {k}')
        e(f'v_writelane_b32 v250, s{NPOLL}, 13')
        e(f'v_writelane_b32 v250, s95, 12')
        e(f'v_writelane_b32 v250, s{3 if o.rmap else 2}, 14')
        e('s_getreg_b32 s46, hwreg(HW_REG_XCC_ID)')
        e('v_writelane_b32 v250, s46, 15')
        e(f's_lshl_b32 s46, s2, 3'); e(f's_add_u32 s46, s46, s{WAVE}'); e('s_lshl_b32 s46, s46, 6'); e(f's_add_u32 s46, s46, {DIAG}')
        e('v_lshl_add_u32 v251, v1, 2, s46')
        e('s_mov_b64 exec, 0xffff')
        e(f'buffer_store_dword v250, v251, {sr(S_WS)}, 0 offen')
        e('s_mov_b64 exec, -1')

    e('.amdgcn_target "amdgcn-amd-amdhsa--gfx950"')
    e('.text')
    e(f'.globl {KN}')
    e('.p2align 8')
    e(f'.type {KN},@function')
    e(f'{KN}:')
    e(f's_cmp_ge_u32 s2, {NWG}')
    e('s_cbranch_scc1 L_end')
    stamp(0)
    if o.padto and o.padev != 'm0': e('s_memrealtime s[100:101]')
    e('s_load_dwordx4 s[4:7], s[0:1], 0')
    e('s_load_dwordx4 s[8:11], s[0:1], 16')
    e('s_load_dwordx2 s[12:13], s[0:1], 32')
    e('v_lshrrev_b32 v2, 6, v0')
    e('v_and_b32 v1, 63, v0')
    e(f'v_readfirstlane_b32 s{WAVE}, v2')
    def decode():
        e('s_and_b32 s44, s2, 7')
        e('s_lshr_b32 s45, s2, 3')
        e('s_mul_i32 s46, s44, 31')
        e('s_min_u32 s44, s44, 4')
        e('s_add_u32 s46, s46, s44')
        e('s_add_u32 s46, s46, s45')
        if o.map == 0:
            e('s_mul_hi_u32 s47, s46, 68174085')
            e('s_mul_i32 s48, s47, 63')
            e('s_sub_u32 s48, s46, s48')
            e(f's_mul_hi_u32 s{NB}, s48, 613566757')
            e(f's_mul_i32 s49, s{NB}, 7')
            e('s_sub_u32 s49, s48, s49')
            e('s_mul_i32 s47, s47, 7')
            e('s_add_u32 s47, s47, s49')
        elif o.map == 1:
            e('s_mul_hi_u32 s47, s46, 477218589')
            e('s_mul_i32 s48, s47, 9')
            e(f's_sub_u32 s{NB}, s46, s48')
        else:
            e('s_mul_hi_u32 s47, s46, 34087043')
            e('s_mul_i32 s48, s47, 126')
            e('s_sub_u32 s48, s46, s48')
            e(f's_mul_hi_u32 s{NB}, s48, 306783379')
            e(f's_mul_i32 s49, s{NB}, 14')
            e('s_sub_u32 s49, s48, s49')
            e('s_mul_i32 s47, s47, 14')
            e('s_add_u32 s47, s47, s49')
        e(f's_and_b32 s{PAR}, s47, 1')
        e('s_lshr_b32 s47, s47, 1')
        e('s_cmp_ge_u32 s47, 7')
        e(f's_cselect_b32 s{BOFF}, 1152000, 0')
        e('s_cselect_b32 s48, 7, 0')
        e(f's_sub_u32 s{MB}, s47, s48')
        e(f's_mul_i32 s{XB}, s{MB}, 576')
        e(f's_add_u32 s{XB}, s{XB}, s{PAR}')
        e(f's_sub_u32 s{XB}, s{XB}, 60')
        e(f's_mul_i32 s{XB}, s{XB}, 288')
    RID = 3 if o.rmap else 2
    if o.rmap:
        e('s_and_b32 s44, s2, 3')
        e('s_lshr_b32 s45, s2, 3')
        e('s_lshl2_add_u32 s3, s45, s44')
        e('s_and_b32 s44, s2, 4')
        e('s_lshl_b32 s44, s44, 5')
        e('s_add_u32 s3, s3, s44')
    e(f's_cmp_ge_u32 s{WAVE}, 4')
    e('s_cbranch_scc1 L_helper')
    if o.cpf:
        e('s_lshr_b32 s44, s2, 3')
        e(f's_lshl_b32 s45, s{WAVE}, 5')
        e('s_add_u32 s44, s44, s45')
        e('s_sub_u32 s44, s44, 26')
        e('s_cmp_ge_u32 s44, 5')
        e('s_cbranch_scc1 L_main')
        e('s_getpc_b64 s[46:47]')
        e('L_pc:')
        e('s_lshl_b32 s44, s44, 13')
        e('v_lshl_add_u32 v2, v1, 7, s44')
        e('v_min_u32 v2, L_codeend-L_pc-4, v2')
        e('global_load_dword v63, v2, s[46:47]')
    if o.hfirst: e('s_branch L_main')
    mark = {'main0': len(e.L)}
    e('L_main:')
    e(f's_mov_b32 s{MASK}, 0xffff0000')
    e(f's_mov_b32 s{NPOLL}, 0')
    if o.diag: e('s_mov_b32 s95, 0')
    decode()

    VXO, VXOR, VXD, VXDR, VWL, VEX, VEXP, VOUT = 30, 31, 32, 33, 34, 35, 36, 37
    VF = 40
    VA = 48
    VCL = 60
    e('v_mul_u32_u24 v3, 3641, v0')
    e('v_lshrrev_b32 v3, 16, v3')
    e('v_mul_u32_u24 v2, 18, v3')
    e('v_sub_u32 v2, v0, v2')
    e('v_mul_u32_u24 v3, 1152, v3')
    e('v_lshl_add_u32 v3, v2, 4, v3')
    e(f's_add_u32 s46, s{XB}, 576')
    e(f'v_add_u32 v{VA}, s46, v3')
    e('v_mov_b32 v5, 16192')
    e('v_mov_b32 v6, 17056')
    for k in range(1, 12):
        e('v_cmp_le_u32 vcc, 14, v2')
        e('v_add_u32 v3, 4, v2')
        e('v_subrev_u32 v4, 14, v2')
        e('v_cndmask_b32 v7, v5, v6, vcc')
        e('v_cndmask_b32 v2, v3, v4, vcc')
        e(f'v_add_u32 v{VA+k}, v{VA+k-1}, v7')
    e(f's_lshl_b32 s50, s{WAVE}, 10')
    e(f's_add_u32 s50, s50, {X_O}')
    e(f's_add_u32 s51, s50, {4096*11}')
    e('s_movk_i32 s49, 4096')
    if o.orev:
        e(f's_bitcmp0_b32 s{NB}, 0')
        e('s_cbranch_scc1 L_fwd')
        for k in range(5): e(f'v_swap_b32 v{VA+k}, v{VA+10-k}')
        e(f's_add_u32 s50, s50, {4096*10}')
        e('s_movk_i32 s49, -4096')
        e('L_fwd:')
    e(f'v_mov_b32 v{VF+1}, {CNT}')
    for r in range(4, 8): e(f'v_mov_b32 v{r}, 0')
    e(f'ds_write_b128 v{VF+1}, v[4:7]')
    e(f'ds_write_b128 v{VF+1}, v[4:7] offset:16')
    e('s_waitcnt lgkmcnt(0)')
    e(f's_load_dword s{TAG}, s[12:13], {NONCE}')
    srd(e, S_X, 4, 1152000, add=BOFF)
    def odma(k):
        e(f's_mov_b32 m0, s{51 if k == 11 else 50}')
        e('s_add_u32 s50, s50, s49')
        e(f'buffer_load_dwordx4 v{VA+k}, {sr(S_X)}, 0 offen lds')
    def etouch():
        e(f'buffer_load_dword v62, v9, {sr(S_X)}, 0 offen')
    if o.mtouch and o.tskip:
        e(f's_lshr_b32 s47, s{RID}, 4')
        e('s_lshr_b32 s47, 0x33, s47')
        e('s_lshl_b32 s47, s47, 31')
    if o.mtouch:
        e('v_min_u32 v8, 39, v1')
        e('v_lshrrev_b32 v9, 2, v8')
        e(f's_mul_i32 s46, s{WAVE}, 10')
        e('v_add_u32 v9, s46, v9')
        e(f'v_mul_u32_u24 v9, {4*1152}, v9')
        e('v_and_b32 v8, 3, v8')
        e('v_mul_u32_u24 v8, 92, v8')
        e(f's_and_b32 s46, s{NB}, {7 if o.mtouch == 4 else 3}')
        e(f's_mul_i32 s46, s46, {576 if o.mtouch == 4 else 1152}')
        e(f's_add_u32 s46, s46, s{XB}')
        e('v_add3_u32 v9, v9, v8, s46')
        if o.tskip == 1: e('v_or_b32 v9, s47, v9')
    if o.mtouch == 4 and o.tskip == 2:
        e('s_cmp_eq_u32 s47, 0')
        e('s_cbranch_scc1 L_tn')
        e('s_waitcnt lgkmcnt(0)')
        e('L_tn:')
    if o.mtouch in (2, 4): etouch()
    if o.padto and o.padev == 'm13':
        e('s_waitcnt vmcnt(0)'); stamp(13)
    if o.padto and o.padev == 'm14':
        odma(0); e('s_sub_u32 s50, s50, s49'); e('s_waitcnt vmcnt(0)'); stamp(14)
    if o.padto: stamp(10)
    for k in range(o.opre): odma(k)
    e('s_barrier')
    stamp(1)
    jit()
    if o.mtouch == 3: etouch()
    for k in range(o.opre, 12):
        if k == 11:
            e(f's_cmp_lg_u32 s{WAVE}, 0')
            e('s_cbranch_scc1 L_o11')
        odma(k)
    e('L_o11:')
    if o.mtouch == 1: etouch()
    srd(e, S_WS, 12, WS_REC)
    if o.epoll:
        assert o.mtouch in (1, 4) and o.tskip
        e(f's_and_b32 s{TYP}, s{WAVE}, 1')
        e(f's_lshl_b32 s{FO}, s{TYP}, 13')
        e('s_mov_b32 s96, s47')
        e('s_xor_b32 s46, s47, 0x80000000')
        e(f'v_min_u32 v{VF}, 31, v1')
        e(f'v_lshlrev_b32 v{VF}, 7, v{VF}')
        e(f'v_or_b32 v2, s46, v{VF}')
        e(f'buffer_load_dword v{VF+4}, v2, {sr(S_WS)}, s{FO} offen sc1')
    srd(e, S_OUT, 8, 1152000, add=BOFF)
    srd(e, S_DBG, 10, 256)
    e('v_and_b32 v2, 15, v1')
    e('v_lshrrev_b32 v3, 4, v1')
    e('v_subrev_u32 v5, 4, v2')
    e('v_add_u32 v6, 8, v2')
    e('v_cmp_gt_u32 vcc, 4, v2')
    e('v_cmp_le_u32 s[46:47], 12, v2')
    e(f's_and_b32 s{TYP}, s{WAVE}, 1')
    e(f's_lshr_b32 s48, s{WAVE}, 1')
    e('v_cndmask_b32 v5, v5, v6, vcc')
    e('v_cndmask_b32 v5, v5, v2, s[46:47]')
    e('v_mul_u32_u24 v5, 9, v5')
    e('v_mul_u32_u24 v4, 288, v5')
    e('v_lshl_add_u32 v6, v3, 4, v4')
    e('v_and_b32 v7, 1, v3')
    e('v_lshl_add_u32 v7, v7, 4, v4')
    e('v_lshrrev_b32 v8, 1, v3')
    e('v_mul_u32_u24 v8, 2304, v8')
    e('v_add_u32 v7, v7, v8')
    e('v_add_u32 v7, 256, v7')
    e(f's_mul_i32 s49, s{TYP}, {X_D1}')
    e(f'v_add_u32 v{VXO}, {X_O}, v6')
    e(f'v_add_u32 v{VXOR}, {X_O}, v7')
    e(f'v_add_u32 v{VXD}, s49, v6')
    e(f'v_add_u32 v{VXDR}, s49, v7')
    e('v_lshlrev_b32 v6, 4, v1')
    e(f's_mul_i32 s49, s{WAVE}, 9216')
    e(f's_add_u32 s49, s49, {X_O}')
    e(f'v_add_u32 v{VEX}, s49, v6')
    e(f's_xor_b32 s49, s{WAVE}, 1')
    e('s_mul_i32 s49, s49, 9216')
    e(f's_add_u32 s49, s49, {X_O}')
    e(f'v_add_u32 v{VEXP}, s49, v6')
    e('v_and_b32 v8, 0x39, v1')
    e('v_bfe_u32 v9, v1, 1, 1')
    e('v_lshl_add_u32 v8, v9, 2, v8')
    e('v_bfe_u32 v9, v1, 2, 1')
    e('v_lshl_add_u32 v8, v9, 1, v8')
    e(f'v_lshlrev_b32 v{VWL}, 4, v8')
    e(f's_mul_i32 s49, s{TYP}, 576')
    e(f's_add_u32 s49, s49, s{XB}')
    e(f's_add_u32 s49, s49, {60*288}')
    e(f's_lshl_b32 s50, s{NB}, 5')
    e('s_add_u32 s49, s49, s50')
    e('s_lshl_b32 s50, s48, 4')
    e('s_add_u32 s49, s49, s50')
    e('v_mul_u32_u24 v8, 1152, v5')
    e('v_lshl_add_u32 v8, v3, 2, v8')
    e(f'v_add_u32 v{VOUT}, s49, v8')
    e(f'v_add_u32 v{VOUT+1}, 3456, v{VOUT}')
    e(f'v_add_u32 v{VOUT+2}, 6912, v{VOUT}')
    e(f's_lshl_b32 s49, s{NB}, 1')
    e('s_add_u32 s49, s49, s48')
    e(f's_mul_i32 s49, s49, {NSTR}')
    e(f's_mul_i32 s{WSO}, s{TYP}, {NSTEP*1024}')
    e(f's_add_u32 s{WSO}, s{WSO}, s49')
    e(f's_add_u32 s{WSO}, s{WSO}, {WOFF + (16384 if o.tagp else 0)}')
    if o.tagp:
        e(f's_lshl_b32 s96, s{TYP}, 15')
        e('s_add_u32 s96, s96, s49')
        e(f's_add_u32 s96, s96, {WOFF + 2*NSTEP*1024}')
    e(f's_mov_b32 s{C2L}, 0x4038aa3b'); e(f's_mov_b32 s{C2L+1}, 0x4038aa3b')
    e(f's_mov_b32 s{CNL}, 0xbfb8aa3b'); e(f's_mov_b32 s{CNL+1}, 0xbfb8aa3b')
    e(f's_mov_b32 s{C60}, 0x42700000')
    e(f'v_min_u32 v{VF}, 31, v1')
    e(f'v_lshlrev_b32 v{VF}, 7, v{VF}')
    e(f'v_min_u32 v{VF+6}, 47, v1')
    e(f'v_lshlrev_b32 v{VF+6}, 7, v{VF+6}')
    e(f'v_mov_b32 v{VF+2}, 1')
    e('s_lshl_b32 s46, s48, 2')
    e(f'v_add_u32 v{VF+5}, s46, v{VF+1}')
    e(f's_or_b32 s46, s2, s{WAVE}')
    e('v_or_b32 v2, s46, v1')
    e('v_cmp_eq_u32 vcc, 0, v2')
    e(f'v_mov_b32 v{VCL}, -16')
    e(f'v_mov_b32 v{VCL+1}, -16')
    e(f'v_mov_b32 v3, {NONCE}')
    e(f'v_cndmask_b32 v{VCL}, v{VCL}, 4, vcc')
    e(f'v_cndmask_b32 v{VCL+1}, v{VCL+1}, v3, vcc')
    if o.yall:
        e(f's_lshr_b32 s46, s{NB}, 1')
        e(f's_add_u32 s47, s{NB}, 9')
        e('s_lshr_b32 s47, s47, 1')
        e('v_mov_b32 v4, s46')
        e('v_mov_b32 v5, s47')
        e('v_cmp_gt_u32 vcc, 32, v1')
        e('v_and_b32 v2, 7, v1')
        e('v_and_b32 v3, 15, v1')
        e('v_cndmask_b32 v4, v5, v4, vcc')
        e('v_min_u32 v3, 11, v3')
        e('v_mad_u32_u24 v2, v2, 9, v4')
        e('v_mad_u32_u24 v3, v3, 9, v4')
        e('v_lshlrev_b32 v2, 7, v2')
        e('v_lshlrev_b32 v3, 7, v3')
    e(f's_lshl_b32 s{FO}, s{TYP}, 13')
    if o.warmb:
        e(f's_cmp_eq_u32 s{TYP}, 1')
        e('s_cbranch_scc1 L_warmB')
        e('L_warmret:')
    e(f's_waitcnt vmcnt({(1 if o.mtouch == 1 else 0) + o.epoll}) lgkmcnt(0)')
    stamp(2)
    if o.padto and o.padev in ('m11', 'm12'):
        e(f's_lshr_b32 s46, s{RID}, 4')
        e('s_lshr_b32 s46, 0x33, s46')
        e('s_bitcmp1_b32 s46, 0')
        e(f's_cbranch_scc{1 if o.padev == "m11" else 0} L_pk')
        e('s_memrealtime s[100:101]'); e('s_waitcnt lgkmcnt(0)')
        e('L_pk:')
    e('s_mov_b64 exec, 1')
    e(f'ds_add_u32 v{VF+1}, v{VF+2} offset:8')
    e('s_mov_b64 exec, -1')
    e(f's_add_u32 s{TAG}, s{TAG}, {TAGINC}')
    e(f'v_mov_b32 v{VF+3}, s{TAG}')
    def flagwait(tag, vaddr, back):
        e(f'L_fw{tag}:')
        if o.diag and len(tag) == 2: e(f's_add_u32 s95, s95, {1 << (5 * int(tag[1]))}')
        e(f'buffer_load_dword v{VF+4}, v{vaddr}, {sr(S_WS)}, s{FO} offen sc1')
        e(f'ds_read_b32 v{VF+7}, v{VF+1} offset:12')
        e(f's_add_u32 s{NPOLL}, s{NPOLL}, 1')
        e('s_waitcnt vmcnt(0) lgkmcnt(0)')
        e(f'v_cmp_ne_u32 vcc, v{VF+3}, v{VF+4}')
        e(f'v_readfirstlane_b32 s46, v{VF+7}')
        e('s_nop 3')
        e(f's_cbranch_vccz {back}')
        e('s_cmp_lg_u32 s46, 0')
        e(f's_cbranch_scc1 {back}')
        e(f's_cmp_lg_u32 s{NPOLL}, {o.maxpoll}')
        e(f's_cbranch_scc1 L_fw{tag}')
        e(f'v_mov_b32 v{VF+7}, 0x10000')
        e('s_mov_b64 exec, 1')
        e(f'ds_add_u32 v{VF+1}, v{VF+7} offset:4')
        e('s_mov_b64 exec, -1')
        e(f's_branch L_fw{tag}')
    if o.epoll:
        e('s_cmp_eq_u32 s96, 0')
        e('s_cbranch_scc1 L_gate')
        e('s_waitcnt vmcnt(0)')
        e(f'v_cmp_ne_u32 vcc, v{VF+3}, v{VF+4}')
        e('s_nop 4')
        e('s_cbranch_vccz L_go')
    if o.gate:
        e('L_gate:')
        e(f'ds_read_b32 v{VF+4}, v{VF+1} offset:8')
        e('s_waitcnt lgkmcnt(0)')
        e(f'v_and_b32 v{VF+4}, 0xffff, v{VF+4}')
        e(f'v_cmp_gt_u32 vcc, 0x400, v{VF+4}')
        e('s_nop 4')
        e('s_cbranch_vccz L_gate2')
        e('s_sleep 1')
        e('s_branch L_gate')
        e('L_gate2:')
    if o.ppoll:
        e(f'buffer_load_dword v{VF+4}, v{VF}, {sr(S_WS)}, s{FO} offen sc1')
        e('L_pp:')
        for a_, b_ in ((VF + 4, 62), (62, VF + 4)):
            e(f's_sleep {o.ppoll}')
            e(f'buffer_load_dword v{b_}, v{VF}, {sr(S_WS)}, s{FO} offen sc1')
            e('s_waitcnt vmcnt(1)')
            e(f'v_cmp_ne_u32 vcc, v{VF+3}, v{a_}')
            e(f's_add_u32 s{NPOLL}, s{NPOLL}, 1')
            e('s_nop 3')
            e('s_cbranch_vccz L_go')
        e(f's_cmp_lt_u32 s{NPOLL}, 40')
        e('s_cbranch_scc1 L_pp')
        e(f's_mov_b32 s{NPOLL}, 0')
    if o.p0plain:
        e(f'buffer_load_dword v{VF+4}, v{VF}, {sr(S_WS)}, s{FO} offen')
        e('s_waitcnt vmcnt(0)')
        e(f'v_cmp_ne_u32 vcc, v{VF+3}, v{VF+4}')
        e('s_nop 4')
        e('s_cbranch_vccz L_go')
    if o.onepoll:
        e(f's_cmp_lt_u32 s{WAVE}, 2')
        e('s_cbranch_scc1 L_fw0')
        e('L_op:')
        e(f'ds_read_b32 v{VF+7}, v{VF+1} offset:8')
        e('s_waitcnt lgkmcnt(0)')
        e(f's_add_u32 s46, s{TYP}, 16')
        e(f'v_lshrrev_b32 v{VF+7}, s46, v{VF+7}')
        e(f'v_and_b32 v{VF+7}, 1, v{VF+7}')
        e(f'v_cmp_eq_u32 vcc, 0, v{VF+7}')
        e('s_nop 4')
        e('s_cbranch_vccnz L_op')
        e('s_branch L_go2')
    if not o.tagp: flagwait('0', VF, 'L_go')
    e('L_go:')
    jit()
    if o.tagp: e('s_mov_b32 s50, s96')
    if o.onepoll:
        e(f's_lshl_b32 s46, 0x10000, s{TYP}')
        e(f'v_mov_b32 v{VF+7}, s46')
        e('s_mov_b64 exec, 1')
        e(f'ds_or_b32 v{VF+1}, v{VF+7} offset:8')
        e('s_mov_b64 exec, -1')
        e('L_go2:')
    stamp(3)
    e('L_gw:')
    e(f'ds_read_b32 v{VF+7}, v{VF+1} offset:8')
    e('s_waitcnt lgkmcnt(0)')
    e(f'v_and_b32 v{VF+7}, 0xff, v{VF+7}')
    e(f'v_cmp_ne_u32 vcc, 4, v{VF+7}')
    e('s_nop 4')
    e('s_cbranch_vccnz L_gw')
    stamp(4)
    e(f's_setprio {o.mprio}')
    e(f's_cmp_eq_u32 s{TYP}, 1')
    e('s_cbranch_scc1 L_typeB')

    ACC = {'P': 64, 'Q': 100}
    WR, TMP = 136, 224
    XRING = [200 + 4 * i for i in range(6)]
    XWIN = [4 + 4 * i for i in range(6)] + [240 + 4 * i for i in range(4)]
    VC = 28
    PF = o.pf
    GT = 98
    wflags = {0: '', 1: ' sc1', 2: ' nt', 3: ' sc0'}[o.wsc1]
    for typ, S in enumerate(streams()):
        if typ == 1:
            e('.p2align 6')
            if o.warmb: e('L_warmB:'); e('s_branch L_warmret')
            e('L_typeB:')
        ops = []
        vstart = {}
        lastv = o.vt - 1
        v0 = 0
        G0 = 0
        if o.flat0:
            for g in range(16):
                vstart[g] = len(ops)
                for j in (range(9) if g % 2 == 0 or not o.flatzz else range(8, -1, -1)): ops.append((g, j))
            v0 = G0 = 16
        while v0 <= lastv:
            ch = 1 if v0 < o.chfrom + G0 else min(o.chain, lastv + 1 - v0)
            n0 = len(ops)
            for j in range(8, -1, -1):
                us = range(ch) if j % 2 == 0 else range(ch - 1, -1, -1)
                first_ = [u for u in us if v0 + u - j == 0 or (0 < v0 + u - j < NSTEP and S[v0+u-j][4] == 'Q' and S[v0+u-j-1][4] == 'P')]
                if first_: us = range(ch)
                for u in us:
                    if G0 <= v0 + u - j < NSTEP: ops.append((v0 + u - j, j))
            for u in range(ch): vstart[v0 + u] = n0 + (len(ops) - n0) * u // ch
            v0 += ch
        ntail = len(ops)
        if o.tail:
            for j in range(9):
                for g in range(o.vt - j, NSTEP): ops.append((g, j))
        assert len(ops) == NSTEP * 9 and len(set(ops)) == len(ops)
        N = len(ops)
        def key(n):
            g, j = ops[n]
            pid, arr, ch, c, acc = S[g]
            k = (pid, arr, ch, c + j)
            if n >= ntail and g < GT: k = k + ((n,) if not o.hold else ('h',))
            return k
        first, last = {}, {}
        for n in range(N):
            first.setdefault(key(n), n); last[key(n)] = n
        wfirst, wlast = {}, {}
        for n, (g, j) in enumerate(ops):
            wfirst.setdefault(g, n); wlast[g] = n
        tasks = []
        for k, n0 in first.items():
            win = o.tail and k[2] == 'rem' and k[1] == 'D'
            la = o.xla if n0 < ntail else 6
            if n0 >= ntail and ops[n0][1] == 0: la = o.tla
            elif win: la = 12
            tasks.append([n0 - la, n0 - 1, 'X', k])
        for g in range(NSTEP):
            rel = -100 + g if g < o.pf0 else max(0, wfirst[g] - 9 * PF)
            if o.tagp and g < 16:
                rel = -100 + g if g < 4 else max(0, wfirst[g] - 9 * o.tpf)
                tasks.append([rel, wfirst[g & ~1] - 9, 'W', g])
                continue
            tasks.append([rel, wfirst[g] - 1, 'W', g])
        def at(v, off=0): return vstart[v] + off
        firstD = min(n for n in range(N) if S[ops[n][0]][1] == 'D')
        lastO = max(n for n in range(N) if S[ops[n][0]][1] == 'O')
        lastP = {j: max(n for n in range(N) if ops[n][1] == j and S[ops[n][0]][4] == 'P') for j in range(9)}
        slow = []
        vused = set()
        def check(v, off, cnt, tag):
            tasks.append([at(v - 1, 3), at(v - 1, 8), 'L', (f'ds_read_b32 v{VC}, v{VF+1} offset:{off}', ('c', tag))])
            tasks.append([at(v, 0), at(v, 1), 'C', (f'v_cmp_ne_u32 vcc, {cnt}, v{VC}', ('c', tag))])
            tasks.append([at(v, 6), at(v, 7), 'I', [f's_cbranch_vccnz L_slow{typ}{tag}', f'L_back{typ}{tag}:']])
            slow.append((tag, off, cnt))
            vused.add(v)
            return at(v, 8)
        def add1(pos, off):
            tasks.append([pos, pos + 4, 'A', off])
        vD = [v for v in vstart if vstart[v] <= firstD - o.xla][-1] - 1
        okD = check(vD, 16, 4, 'D')
        assert okD <= firstD - o.xla
        add1(lastO, 20)
        VP = 47
        okR = check(VP, 20, 4, 'R')
        for j in range(9):
            assert lastP[j] + 12 < at(VP + 1 + j, 2)
            tasks.append([at(VP + 1 + j, 2), at(VP + 1 + j, 8), 'L', (f'ds_write_b128 v{VEX}, {vr(ACC["P"]+4*j,4)} offset:{1024*j}', ('pw', j))])
        tasks.append([at(VP + 10, 0), at(VP + 10, 4), 'A', 'pair'])
        VQ = VP + 13
        okP = check(VQ, 'pair', 2, 'P')
        for j in range(9):
            tasks.append([at(VQ + 1 + j, 2), at(VQ + 1 + j, 8), 'L', (f'ds_read_b128 {vr(TMP+4*(j&1),4)}, v{VEXP} offset:{1024*j}', ('pr', j))])
            v = VQ + 2 + j
            pos = at(v, 8 - (j + 2) - 1) if j <= 6 else at(v, 8 - (j - 7) - 1)
            sh = 1 if j >= 7 else 0
            if o.chain > 1:
                own = [n for n in range(N) if ops[n][1] == j]
                pos = [a_ + 10 for a_, b_ in zip(own, own[1:]) if b_ - a_ >= 14 and a_ + 9 >= at(v, 0) ][0]
                sh = 0
                tasks[-1][0] = pos - 9; tasks[-1][1] = pos - 4
                tasks[-1][3] = (f'ds_read_b128 {vr(TMP+4*(j&3),4)}, v{VEXP} offset:{1024*j}', ('pr', j))
            tasks.append([pos - 1 + sh, pos - 1 + sh, 'Q', (j, 0)])
            tasks.append([pos + sh, pos + sh, 'Q', (j, 1)])
        if typ == 0:
            tasks.append([at(64, 4), at(64, 8), 'S', f'buffer_store_dword v{VCL+1}, v{VCL}, {sr(S_DBG)}, 0 offen sc1'])
            tasks.append([at(84, 4), at(84, 8), 'S', f'buffer_store_dword v{VF+3}, v{VCL+1}, {sr(S_WS)}, 0 offen sc1'])
        fslow = []
        kslow = []
        if o.tagp:
            for g in range(0, 16, 2):
                n0 = wfirst[g]
                if g < 4: continue
                tasks.append([n0 - 8, n0 - 7, 'K', g])
                tasks.append([n0 - 2, n0 - 1, 'I', ['s_cmp_lg_u64 s[48:49], 0', f's_cbranch_scc1 L_ks{typ}{g}', f'L_kb{typ}{g}:']])
        passes = {}
        for g in range(NSTEP): passes.setdefault(S[g][0], g)
        need = [(passes[1], VF, 32 + 64 * typ), (32, VF + 6, 128), (passes[4], VF, 176), (passes[5], VF, 208), (passes[6], VF + 6, 240)]
        if o.yall: need[2:] = [(passes[4], 2, 176), (passes[5], 2, 176 + 72), (passes[6], 3, 176 + 144)]
        for ci, (gn, va, idx) in enumerate(need):
            v = gn - o.pfcs[ci] - 1
            while v in vused: v -= 1
            tasks.append([at(v - o.fleads[ci], 4), at(v - o.fleads[ci], 8), 'F', (va, idx, ci)])
            tasks.append([at(v, 0), at(v, 1), 'G', ci])
            tasks.append([at(v, 6), at(v, 7), 'I', [f's_cbranch_vccnz L_fw{typ}{ci}', f'L_fb{typ}{ci}:']])
            fslow.append((ci, va))
            assert v not in vused, v
            for t in tasks:
                if t[2] == 'W' and (t[3] >= gn): t[0] = max(t[0], at(v, 8))
        tasks.append([at(v + 1, 2), at(v + 1, 8), 'A', 4])
        if typ == 0:
            for lvl, v in enumerate(o.trig): tasks.append([at(v, 2), at(v, 8), 'P', lvl + 1])
        tasks.sort(key=lambda t: (t[0], t[1]))
        vq, lq = [], []
        dirty = [False]
        xreg, busy = {}, {}
        wn = [0]
        wr = {}
        lastw = [-100]
        later = []
        BIG = [WR + 4 * i for i in range(16)] + XWIN + [ACC['P'] + 4 * i for i in range(9)]
        for i in range(9): busy[ACC['P'] + 4 * i] = at(VP + 12)
        until = {}
        if o.chain > 1:
            BIG += XRING + [VA, VA + 4, VA + 8]
            for i in range(9):
                BIG.append(ACC['Q'] + 4 * i)
                until[ACC['Q'] + 4 * i] = min(n for n in range(N) if ops[n][1] == i and S[ops[n][0]][4] == 'Q') - 3
        def freeregs(n, end): return [x for x in BIG if busy.get(x, -1) <= n and end < until.get(x, 10**9)]
        def freepairs(n, end):
            f_ = set(freeregs(n, end))
            return [x for x in sorted(f_) if x % 8 == PAR8.get(x, -1) and x + 4 in f_]
        PAR8 = {x: x % 8 for x in list(range(WR, WR + 64, 8)) + [4, 12, 20, 240, 248, 200, 208, 216, 100, 108, 116, 124, VA]}
        def kcheck(g):
            vwait(g + 1)
            for i, gg in enumerate((g, g + 1)):
                a_ = wr[gg] - 2
                em(f'v_bitop3_b32 v{VC+i}, v{a_+1}, v{a_+6}, v{VF+3} bitop3:0x7e')
            em(f'v_or_b32 v{VC}, v{VC}, v{VC+1}')
            em(f'v_cmp_ne_u32 s[48:49], 0, v{VC}')
            kslow.append((g, wr[g] - 2, wr[g + 1] - 2))
        def wok(t, n):
            if t[2] != 'W': return True
            if t[3] != wn[0]: return False
            if o.tagp and t[3] < 16:
                return bool(freepairs(n, wlast[t[3]])) and (n - lastw[0] >= 2 or t[1] - n <= 4)
            free = len(freeregs(n, wlast[t[3]]))
            if t[1] - n <= 9 * 3: return free > 0
            return n - lastw[0] >= o.wgap and free > o.wres
        since = {}
        fill = []
        def em(x):
            e(x)
            if not x.endswith(':'):
                for jj in since: since[jj] += 1
        def lwait(tag):
            if tag not in lq: return
            i = lq.index(tag)
            em(f's_waitcnt lgkmcnt({0 if dirty[0] else len(lq)-1-i})')
            if dirty[0]: lq.clear(); dirty[0] = False
            else: del lq[:i + 1]
        def vwait(g):
            if g not in vq: return
            i = vq.index(g)
            em(f's_waitcnt vmcnt({len(vq)-1-i})')
            del vq[:i + 1]
        def run(t, n):
            kind, p = t[2], t[3]
            if kind == 'X':
                pool = BIG if (o.chain > 1 or p[-1] == 'h' or (p[2] == 'rem' and p[1] == 'D')) else XRING
                r = [x for x in pool if busy.get(x, -1) <= n and last[p] < until.get(x, 10**9)]
                assert r, ('no x register', p, n)
                r = min(r, key=lambda x: (until.get(x, 10**9), busy.get(x, -1)))
                busy[r] = last[p]; xreg[p] = r
                arr, ch, s_ = p[1], p[2], p[3]
                if o.nolds and n > 9 * 30: return
                if ch == 'rem': em(f'ds_read_b128 {vr(r,4)}, v{VXOR if arr == "O" else VXDR} offset:{288*s_}')
                else: em(f'ds_read_b128 {vr(r,4)}, v{VXO if arr == "O" else VXD} offset:{64*ch+288*s_}')
                lq.append(p)
            elif kind == 'W':
                g = p
                if o.tagp and g < 16:
                    r = min(freepairs(n, wlast[g]), key=lambda x: (until.get(x, 10**9), busy.get(x, -1)))
                    busy[r] = busy[r + 4] = wlast[g]; wr[g] = r + 2
                    assert g == wn[0]; wn[0] += 1
                    lastw[0] = n
                    em(f'buffer_load_dwordx4 {vr(r,4)}, v{VWL}, {sr(S_WS)}, s50 offen offset:{2048*(g%2)}')
                    em(f'buffer_load_dwordx4 {vr(r+4,4)}, v{VWL}, {sr(S_WS)}, s50 offen offset:{2048*(g%2)+1024}')
                    vq.append(('h', g)); vq.append(g)
                    if g % 2 == 1:
                        if n < 0: em('s_add_u32 s50, s50, 4096')
                        else: later.append('s_add_u32 s50, s50, 4096')
                    return
                r = min(freeregs(n, wlast[g]), key=lambda x: (until.get(x, 10**9), busy.get(x, -1)))
                busy[r] = wlast[g]; wr[g] = r
                assert g == wn[0]; wn[0] += 1
                lastw[0] = n
                if o.now and g > 40: return
                if o.wsame and g > 40:
                    em(f'buffer_load_dwordx4 {vr(r,4)}, v{VWL}, {sr(S_WS)}, s{WSO} offen offset:{1024*(g%4)}{wflags}'); vq.append(g); return
                em(f'buffer_load_dwordx4 {vr(r,4)}, v{VWL}, {sr(S_WS)}, s{WSO} offen offset:{1024*(g%4)}{wflags}')
                if g % 4 == 3:
                    if n < 0: em(f's_add_u32 s{WSO}, s{WSO}, 4096')
                    else: later.append(f's_add_u32 s{WSO}, s{WSO}, 4096')
                vq.append(g)
            elif kind == 'L':
                em(p[0].replace('offset:pair', 'offset:24').replace(f'v{VF+1} offset:24', f'v{VF+5} offset:24')); lq.append(p[1])
            elif kind == 'C':
                lwait(p[1]); em(p[0])
            elif kind == 'I':
                for x in p: em(x)
            elif kind == 'A':
                em('s_mov_b64 exec, 1')
                if p == 'pair': em(f'ds_add_u32 v{VF+5}, v{VF+2} offset:24')
                else: em(f'ds_add_u32 v{VF+1}, v{VF+2} offset:{p}')
                em('s_mov_b64 exec, -1')
                lq.append(('a', p))
            elif kind == 'Q':
                p, hf = p
                lwait(('pr', p))
                q = ACC['Q'] + 4 * p; t_ = TMP + 4 * (p & (3 if o.chain > 1 else 1))
                for i in (2 * hf, 2 * hf + 1): em(f'v_add_f32 v{q+i}, v{q+i}, v{t_+i}')
            elif kind == 'S':
                assert not any(isinstance(x, tuple) and x[0] == 's' for x in vq)
                em(p); vq.append(('s', n))
            elif kind == 'F':
                em(f's_mov_b32 s{FO}, {128*p[1]}')
                em(f'buffer_load_dword v{VF+4}, v{p[0]}, {sr(S_WS)}, s{FO} offen {o.fflags}'); vq.append(('f', p[2]))
            elif kind == 'K':
                kcheck(p)
            elif kind == 'G':
                vwait(('f', p)); em(f'v_cmp_ne_u32 vcc, v{VF+3}, v{VF+4}')
            elif kind == 'P':
                em(f'v_mov_b32 v{VF+7}, {p}')
                em('s_mov_b64 exec, 1')
                em(f'ds_max_u32 v{VF+1}, v{VF+7}')
                em('s_mov_b64 exec, -1')
                lq.append(('p', p))
        def epi(j, pk):
            q = ACC['Q'] + 4 * j
            t = TMP + 8 * (j & 1)
            I = []
            if pk:
                I.append(f'v_pk_mul_f32 {vr(t,2)}, {vr(q,2)}, s[{C2L}:{C2L+1}]')
                I.append(f'v_pk_mul_f32 {vr(t+2,2)}, {vr(q+2,2)}, s[{CNL}:{CNL+1}]')
            else:
                for i in (0, 1): I.append(f'v_mul_f32 v{t+i}, s{C2L}, v{q+i}')
                for i in (2, 3): I.append(f'v_mul_f32 v{t+i}, s{CNL}, v{q+i}')
            I.append(f'v_min_f32 v{t}, s{C60}, v{t}')
            I.append(f'v_min_f32 v{t+1}, s{C60}, v{t+1}')
            for i in (0, 1, 2, 3): I.append(f'v_exp_f32 v{t+i}, v{t+i}')
            if pk:
                I.append(f'v_pk_add_f32 {vr(t+4,2)}, {vr(t,2)}, 1.0 op_sel_hi:[1,0]')
                I.append(f'v_pk_add_f32 {vr(t+6,2)}, {vr(t,2)}, -1.0 op_sel_hi:[1,0]')
                I.append(f'v_pk_fma_f32 {vr(t+4,2)}, {vr(t+4,2)}, {vr(t+2,2)}, {vr(t+4,2)}')
            else:
                for i in (0, 1): I.append(f'v_add_f32 v{t+4+i}, 1.0, v{t+i}')
                for i in (0, 1): I.append(f'v_fma_f32 v{t+4+i}, v{t+4+i}, v{t+2+i}, v{t+4+i}')
            I.append(f'v_rcp_f32 v{t+4}, v{t+4}')
            I.append(f'v_rcp_f32 v{t+5}, v{t+5}')
            if pk:
                I.append('s_nop 0')
                I.append(f'v_pk_mul_f32 {vr(t+6,2)}, {vr(t+6,2)}, {vr(t+4,2)}')
            else:
                for i in (0, 1): I.append(f'v_add_f32 v{t+6+i}, -1.0, v{t+i}')
                for i in (0, 1): I.append(f'v_mul_f32 v{t+6+i}, v{t+6+i}, v{t+4+i}')
            I.append(f'v_cvt_pk_bf16_f32 v{q}, v{t+6}, v{t+7}')
            I.append(f'buffer_store_dword v{q}, v{VOUT + j//3}, {sr(S_OUT)}, 0 offen offset:{1152*(j%3)} {o.oflags if j < o.oj else ""}')
            return I
        def cost(x): return 2 if x.startswith(('v_exp', 'v_rcp', 'buffer')) else 1
        while tasks and tasks[0][0] < 0: run(tasks.pop(0), -1)
        if o.tagp:
            for g in (0, 2):
                vwait(g + 1)
                for gg in (g + 4, g + 5):
                    t_ = [t for t in tasks if t[2] == 'W' and t[3] == gg][0]
                    tasks.remove(t_); run(t_, -1)
                kcheck(g)
                em('s_nop 2')
                em('s_cmp_lg_u64 s[48:49], 0')
                em(f's_cbranch_scc1 L_ks{typ}{g}')
                em(f'L_kb{typ}{g}:')
        inv = {n: v for v, n in vstart.items()}
        lastop = {j: max(n for n in range(N) if ops[n][1] == j) for j in range(9)}
        for n, (g, j) in enumerate(ops):
            if n in inv and o.padto and o.padev == 'm5' and inv[n] == o.padstep:
                e('s_memrealtime s[100:101]'); dirty[0] = True
            if n in inv and o.diag:
                v = inv[n]
                if o.diag == 2 and v in o.marks:
                    kk = o.marks.index(v)
                    e(f's_memtime s[{ST0+2*kk}:{ST0+2*kk+1}]'); dirty[0] = True
                if o.diag in (1, 4) and v == 33: stamp(5); stamp(6); dirty[0] = True
            if o.jit and n in inv and inv[n] in (20, 36, 44, 52, 60, 70, 90): jit()
            k = key(n)
            assert k in xreg, (k, n)
            lwait(k); vwait(g)
            acc = S[g][4]
            d = ACC[acc] + 4 * j
            if g == 0: cs = '0'
            elif acc == 'Q' and S[g-1][4] == 'P': cs = vr(ACC['P'] + 4 * j, 4)
            else: cs = vr(d, 4)
            em(f'v_mfma_f32_16x16x32_bf16 {vr(d,4)}, {vr(wr[g],4)}, {vr(xreg[k],4)}, {cs}' if not o.swapab else f'v_mfma_f32_16x16x32_bf16 {vr(d,4)}, {vr(xreg[k],4)}, {vr(wr[g],4)}, {cs}')
            if n == lastop[j]: since[j] = 0
            while later: em(later.pop(0))
            budget = 2
            TC = {'X': 1, 'W': 2, 'L': 2, 'C': 1, 'I': 0, 'A': 1, 'Q': 2, 'S': 2, 'F': 2, 'G': 1, 'P': 2, 'K': 2}
            while True:
                ready = [t for t in tasks if t[0] <= n and wok(t, n)]
                if not ready: break
                t = min(ready, key=lambda t: t[1])
                assert t[1] >= n, ('late', t, n)
                if TC[t[2]] > budget and t[1] > n:
                    fit = [u for u in ready if TC[u[2]] <= budget]
                    if not fit: break
                    t = min(fit, key=lambda t: t[1])
                tasks.remove(t); run(t, n); budget -= TC[t[2]]
            for jj in sorted(since):
                if 8 <= since[jj] < 10**6:
                    fill += epi(jj, False); since[jj] = 10**6
            budget += o.nfill - 2
            while fill and budget >= cost(fill[0]):
                budget -= cost(fill[0])
                if fill[0].startswith('buffer_store'):
                    q_ = int(re.match(r'buffer_store_dword v(\d+)', fill[0]).group(1))
                    until.pop(q_, None); busy[q_] = n + 2
                em(fill.pop(0))
            assert all(t[1] > n for t in tasks), ('late', n, [t for t in tasks if t[1] <= n])
        assert not tasks
        stamp(7)
        while fill: em(fill.pop(0))
        for jj in [jj for jj in sorted(since) if since[jj] < 10**6]:
            if since[jj] < 8: em(f's_nop {8-since[jj]-1}')
            for x in epi(jj, True): em(x)
        stamp(8)
        if o.padto and o.padev[0] == 'm': padloop(typ)
        if o.diag == 1:
            e('s_waitcnt vmcnt(0)')
            stamp(9)
            dump(10)
        if o.diag == 2:
            kk = len(o.marks)
            e(f's_memtime s[{ST0+2*kk}:{ST0+2*kk+1}]')
            dump(10)
        e('s_endpgm')
        for tag, off, cnt in slow:
            e(f'L_slow{typ}{tag}:')
            e(f'ds_read_b32 v{VC}, v{VF+5 if off == "pair" else VF+1} offset:{24 if off == "pair" else off}')
            e('s_waitcnt lgkmcnt(0)')
            e(f'v_cmp_ne_u32 vcc, {cnt}, v{VC}')
            e('s_nop 4')
            e(f's_cbranch_vccnz L_slow{typ}{tag}')
            e(f's_branch L_back{typ}{tag}')
        for ci, va in fslow: flagwait(f'{typ}{ci}', va, f'L_fb{typ}{ci}')
        for g, a0_, a1_ in kslow:
            e(f'L_ks{typ}{g}:')
            if o.diag: e(f's_add_u32 s95, s95, {1 << 25}')
            e(f'ds_read_b32 v{VF+7}, v{VF+1} offset:12')
            e(f's_add_u32 s47, s96, {2048*g}')
            e('s_waitcnt lgkmcnt(0)')
            for i, a_ in enumerate((a0_, a0_ + 4, a1_, a1_ + 4)):
                e(f'buffer_load_dwordx4 {vr(a_,4)}, v{VWL}, {sr(S_WS)}, s47 offen offset:{1024*i} sc1')
            e(f'v_readfirstlane_b32 s46, v{VF+7}')
            e(f's_add_u32 s{NPOLL}, s{NPOLL}, 1')
            e('s_waitcnt vmcnt(0)')
            e('s_cmp_lg_u32 s46, 0')
            e(f's_cbranch_scc1 L_kb{typ}{g}')
            e(f'v_bitop3_b32 v{VC}, v{a0_+1}, v{a0_+6}, v{VF+3} bitop3:0x7e')
            e(f'v_bitop3_b32 v{VC+1}, v{a1_+1}, v{a1_+6}, v{VF+3} bitop3:0x7e')
            e(f'v_or_b32 v{VC}, v{VC}, v{VC+1}')
            e(f'v_cmp_ne_u32 s[48:49], 0, v{VC}')
            e('s_nop 2')
            e('s_cmp_eq_u64 s[48:49], 0')
            e(f's_cbranch_scc1 L_kb{typ}{g}')
            e(f's_cmp_lg_u32 s{NPOLL}, {o.maxpoll}')
            e(f's_cbranch_scc1 L_ks{typ}{g}')
            e(f'v_mov_b32 v{VF+7}, 0x10000')
            e('s_mov_b64 exec, 1')
            e(f'ds_add_u32 v{VF+1}, v{VF+7} offset:4')
            e('s_mov_b64 exec, -1')
            e(f's_branch L_ks{typ}{g}')

    mark['help0'] = len(e.L)
    if not o.hfirst: e('.p2align 6')
    e('L_helper:')
    role[0] = 'h'
    e(f's_setprio {o.hprio}')
    e(f's_sub_u32 s{TW0}, s{WAVE}, 4')
    e(f's_mov_b32 s{TW1}, s{WAVE}')
    e(f's_sub_u32 s{PAIR}, s{RID}, {NPROD}')
    e(f's_cselect_b32 s{PAIR}, s{RID}, s{PAIR}')
    e(f's_mov_b32 s{MODE}, 0')
    e(f's_mov_b32 s{NOTASK}, s{RID}')
    e(f's_mov_b32 s{HAS3}, s{TW0}')
    e(f's_lshl_b32 s{SCRB}, s{TW0}, 12')
    e(f's_add_u32 s{SCRB}, s{SCRB}, {SCR}')
    e('L_prod:')
    T = [(28, TW0, 2, 52, 0), (36, TW1, 4, 53, 2048), (44, TW2, 6, 54, 16384)]
    c, kp, q, cc, kk, t = 46, 47, 48, 49, 50, 51
    b = TS
    e('v_mov_b32 v19, 4320')
    e('v_and_b32 v23, 3, v1')
    e('v_lshrrev_b32 v24, 2, v1')
    e('v_mul_u32_u24 v24, 288, v24')
    for (vb, sw, vl, vs, so) in T:
        e(f'v_lshl_add_u32 v8, s{sw}, 2, v23' if sw != TW2 else 'v_add_u32 v8, 32, v23')
        e('v_cmp_le_u32 vcc, 18, v8')
        e(f'v_lshl_add_u32 v{vl}, v8, 4, v24')
        e(f'v_add_u32 v9, v{vl}, v19')
        e(f'v_cndmask_b32 v{vl}, v{vl}, v9, vcc')
    e(f's_and_b32 s{c}, s{PAIR}, 15')
    e(f's_lshr_b32 s{kp}, s{PAIR}, 4')
    e(f's_mul_i32 s{b}, s{c}, 165888')
    e(f's_mul_i32 s{t}, s{kp}, 9216')
    e(f's_add_u32 s{b}, s{b}, s{t}')
    e(f's_add_u32 s{b+1}, s{b}, 82944')
    e(f's_mov_b32 s{S_W+2}, 2571264')
    e(f's_mov_b32 s{S_W+3}, 0x20000')
    e(f's_mov_b32 s{S_WO+3}, s{S_W+3}')
    e(f's_cmp_lg_u32 s{c}, 15')
    e(f's_cselect_b32 s{S_WO+2}, s{S_W+2}, 0')
    e(f's_mov_b32 m0, s{SCRB}')
    e('s_waitcnt lgkmcnt(0)')
    e(f's_mov_b32 s{S_W}, s6')
    e(f's_and_b32 s{S_W+1}, s7, 0xffff')
    e(f's_mov_b32 s{S_WO}, s6')
    e(f's_and_b32 s{S_WO+1}, s7, 0xffff')
    e(f's_cmp_ge_u32 s{NOTASK}, {NTASK}')
    e('s_cbranch_scc1 L_a3')
    def cond3(lbl):
        e(f's_cmp_lg_u32 s{HAS3}, 0')
        e(f's_cbranch_scc1 {lbl}')
    for ti, (vb, sw, vl, vs, so) in enumerate(T):
        if ti == 2: cond3('L_a3')
        if ti == 1: e('s_addk_i32 m0, 1024'); e('s_nop 0')
        e(f'buffer_load_dwordx4 v{vl}, {sr(S_W)}, s{b} offen lds')
        e('s_addk_i32 m0, 1024')
        e('s_nop 0')
        e(f'buffer_load_dwordx4 v{vl}, {sr(S_WO)}, s{b+1} offen lds')
        if ti == 1: e(f's_addk_i32 m0, {16384-3072}')
    e('L_a3:')
    stamp(1)
    e(f's_cmp_lg_u32 s{MODE}, 0')
    e('s_cbranch_scc1 L_a4')
    e(f's_load_dword s{TAG}, s[12:13], {NONCE}')
    e(f's_lshr_b32 s{EARLY}, 0x33, s{kp}')
    e(f's_and_b32 s{EARLY}, s{EARLY}, 1')
    e(f's_sub_u32 s{XK}, 2, s{EARLY}')
    e(f's_lshl_b32 s{t}, s{kp}, 1')
    e(f's_lshr_b32 s{YT}, {(3<<12)+(3<<14)+(3<<16)}, s{t}')
    e(f's_and_b32 s{YT}, s{YT}, 3')
    e(f's_lshr_b32 s{t}, s{kp}, 1')
    e(f's_cmp_ge_u32 s{RID}, {NPROD}')
    e(f's_cselect_b32 s{EARLY}, 0, s{EARLY}')
    e(f's_cselect_b32 s{XK}, 3, s{XK}')
    e(f's_cselect_b32 s{YT}, s{t}, s{YT}')
    e(f's_cmp_ge_u32 s{RID}, {NPROD+32}')
    e(f's_cselect_b32 s{XK}, 0, s{XK}')
    e(f's_cmp_ge_u32 s{RID}, {NTASK}')
    e(f's_cselect_b32 s{YT}, 0, s{YT}')
    if not o.b0early:
        e(f's_cmp_lg_u32 s{EARLY}, 0')
        e('s_cbranch_scc1 L_a4')
    e('s_barrier')
    e('L_a4:')
    jit()
    e(f's_mov_b32 s{MASK}, 0xffff0000')
    e(f's_mov_b32 s{NPOLL}, 0')
    srd(e, S_WS, 12, WS_REC)
    srd(e, S_DBG, 10, 256)
    e(f'v_mov_b32 v10, {CNT}')
    e(f'v_mov_b32 v20, {(256 - 18*NSTR) & 0xffffffff}')
    e(f'v_mov_b32 v26, {NSTR}')
    e('v_bfe_u32 v21, v1, 2, 2')
    e('v_lshlrev_b32 v21, 7, v21')
    e('v_and_b32 v22, 1, v1')
    e('v_lshl_add_u32 v21, v22, 6, v21')
    e('v_bfe_u32 v22, v1, 1, 1')
    e('v_lshl_add_u32 v21, v22, 3, v21')
    e('v_lshrrev_b32 v22, 4, v1')
    e('v_lshl_add_u32 v21, v22, 4, v21')
    e(f'v_add_u32 v21, s{SCRB}, v21')
    if o.yall: e('v_mov_b32 v62, v21')
    e('v_and_b32 v25, 15, v1')
    e('v_lshlrev_b32 v25, 4, v25')
    for (vb, sw, vl, vs, so) in T:
        e(f'v_lshl_add_u32 v8, s{sw}, 2, v22' if sw != TW2 else 'v_add_u32 v8, 32, v22')
        e('v_cmp_le_u32 vcc, 18, v8')
        e(f'v_mad_u32_u24 v{vs}, v8, v26, v25')
        e(f'v_add_u32 v9, v{vs}, v20')
        e(f'v_cndmask_b32 v{vs}, v{vs}, v9, vcc')
    if o.tagp:
        e(f's_cmp_eq_u32 s{WAVE}, 4')
        e(f's_cselect_b32 s{t}, 1, s{EARLY}')
        e(f's_cmp_lg_u32 s{t}, 0')
        e(f's_cselect_b32 s{t}, 4, -16')
        e(f'v_mov_b32 v9, s{t}')
        e('s_waitcnt lgkmcnt(0)')
        e('s_mov_b64 exec, 1')
        e(f'buffer_load_dword v27, v9, {sr(S_DBG)}, 0 offen sc1')
        e('s_mov_b64 exec, -1')
        e(f's_lshr_b32 s97, 0x33, s{kp}')
        e('s_and_b32 s97, s97, 1')
        e(f's_lshr_b32 s96, s{kp}, 2')
        e('s_lshl_b32 s96, s96, 4')
        e(f's_add_u32 s96, s96, s{c}')
        e('s_lshl_b32 s96, s96, 2')
        e(f's_and_b32 s{t}, s{kp}, 1')
        e(f's_add_u32 s96, s96, s{t}')
        e('s_lshl_b32 s96, s96, 9')
        e(f's_add_u32 s96, s96, {WOFF + 2*NSTEP*1024}')
    e(f's_lshr_b32 s{q}, s{kp}, 1')
    e(f's_and_b32 s{cc}, s{c}, 7')
    e(f's_lshr_b32 s{kk}, s{c}, 3')
    e(f's_and_b32 s{t}, s{kp}, 1')
    e(f's_cmp_eq_u32 s{kp}, 8')
    e(f's_cselect_b32 s{cc}, s{cc}, s{c}')
    e(f's_cselect_b32 s{kk}, s{kk}, s{t}')
    e(f's_lshl_b32 s{kk}, s{kk}, 9')
    e(f's_add_u32 s{kk}, s{kk}, {WOFF}')
    e(f's_lshl_b32 s{t}, s{q}, 4')
    e(f's_add_u32 s{b+2}, s{t}, s{cc}')
    e(f's_sub_u32 s{b+3}, s{b+2}, s{q}')
    e(f's_cmp_ge_u32 s{q}, 2')
    e(f's_cselect_b32 s{b+4}, 74, 0')
    e(f's_add_u32 s{b+4}, s{b+4}, s{b+2}')
    e(f's_cmp_lt_u32 s{cc}, 2')
    e(f's_cselect_b32 s{t}, 32, 136')
    e(f's_add_u32 s{t}, s{t}, s{cc}')
    e(f's_cmp_eq_u32 s{kp}, 8')
    e(f's_cselect_b32 s{b+4}, s{t}, s{b+4}')
    e(f's_add_u32 s{b+2}, s{b+2}, 34')
    e(f's_add_u32 s{b+3}, s{b+3}, 144')
    for k in (2, 3, 4):
        e(f's_lshl_b32 s{b+k}, s{b+k}, 10')
        e(f's_add_u32 s{b+k}, s{b+k}, s{kk}')
    e(f's_cmp_eq_u32 s{kp}, 8')
    e(f's_cselect_b32 s{t}, 1, 2')
    e(f's_cmp_eq_u32 s{c}, 15')
    e(f's_cselect_b32 s{b+5}, s{t}, 0')
    e(f's_lshl_b32 s46, s{WAVE}, 2')
    e(f's_add_u32 s46, s46, {CNT+16}')
    e('v_mov_b32 v55, s46')
    if o.tagp:
        e('s_waitcnt vmcnt(1)')
        stamp(2)
        e(f's_cmp_ge_u32 s{NOTASK}, {NTASK}')
        e('s_cbranch_scc1 L_x9')
    else:
        e('v_mov_b32 v27, 0')
        e('v_mov_b32 v9, 4')
        e('s_waitcnt vmcnt(0) lgkmcnt(0)')
        stamp(2)
        e(f's_cmp_lg_u32 s{WAVE}, 4')
        e('s_cbranch_scc1 L_a5')
        e('s_mov_b64 exec, 1')
        e(f'buffer_load_dword v27, v9, {sr(S_DBG)}, 0 offen sc1')
        e('s_mov_b64 exec, -1')
        e('L_a5:')
        e(f's_cmp_ge_u32 s{NOTASK}, {NTASK}')
        e('s_cbranch_scc1 L_x9')
    for (vb, sw, vl, vs, so) in T:
        for tap in range(2):
            for half in range(2):
                e(f'ds_read_b64_tr_b16 {vr(vb+4*tap+2*half,2)}, v21 offset:{so+1024*tap+512*half}')
    nlab = [0]
    def st01(vb, vs):
        nlab[0] += 1
        e(f'buffer_store_dwordx4 {vr(vb,4)}, v{vs}, {sr(S_WS)}, s{b+2} offen {o.stf}')
        e(f's_cmp_eq_u32 s{b+5}, 2')
        e(f's_cbranch_scc1 L_skip{nlab[0]}')
        e(f'buffer_store_dwordx4 {vr(vb+4,4)}, v{vs}, {sr(S_WS)}, s{b+3} offen {o.stf}')
        e(f'L_skip{nlab[0]}:')
    def st01all(lbl):
        st01(T[0][0], T[0][3]); st01(T[1][0], T[1][3])
        cond3(lbl)
        st01(T[2][0], T[2][3])
    def dosum(vb, tb, ob):
        for i in range(8):
            e(f'v_lshlrev_b32 v{tb+2*i}, 16, v{vb+i}')
            e(f'v_and_b32 v{tb+2*i+1}, s{MASK}, v{vb+i}')
        for i in range(4):
            e(f'v_pk_add_f32 {vr(tb+2*i,2)}, {vr(tb+2*i,2)}, {vr(tb+8+2*i,2)}')
        for i in range(4):
            e(f'v_cvt_pk_bf16_f32 v{ob+i}, v{tb+2*i}, v{tb+2*i+1}')
    def ldswait(off, cmp, operand, tag, slp):
        e(f'L_lw{tag}:')
        e(f'ds_read_b32 v11, v10 offset:{off}')
        e('s_waitcnt lgkmcnt(0)')
        e('v_and_b32 v11, 0xff, v11')
        e(f'v_cmp_{cmp}_u32 vcc, {operand}, v11')
        e('s_nop 4')
        e(f's_cbranch_vccnz L_lx{tag}')
        e(f's_sleep {slp}')
        e(f's_branch L_lw{tag}')
        e(f'L_lx{tag}:')
    SOR = lambda ti: (210 + 8 * ti) if o.tagp else (240 + 4 * ti)
    e(f's_or_b32 s46, s{EARLY}, s{MODE}')
    e(f's_cmp_eq_u32 s{XK}, 2')
    e('s_cselect_b32 s47, 1, s46')
    if o.xl: e('s_mov_b32 s46, s47')
    e('s_cmp_eq_u32 s47, 0')
    e('s_cbranch_scc1 L_x9')
    for ti, (vb, sw, vl, vs, so) in enumerate(T):
        if ti == 2: cond3('L_x3')
        e(f's_waitcnt lgkmcnt({8-4*ti})')
        dosum(vb, 64 + 16 * ti, SOR(ti))
        e('s_cmp_eq_u32 s46, 0')
        e(f's_cbranch_scc1 L_x5{ti}')
        if o.tagp:
            e('s_cmp_eq_u32 s97, 0')
            e(f's_cbranch_scc1 L_x6{ti}')
            if ti == 0:
                e('s_waitcnt vmcnt(0)')
                e('v_readfirstlane_b32 s48, v27')
                e(f's_add_u32 s49, s{TAG}, {TAGINC}')
                e('s_not_b32 s47, s49')
                e(f's_or_b32 s48, s48, s{MODE}')
                e('s_cselect_b32 s49, s47, s49')
            e(f'v_mov_b32 v{SOR(ti)-1}, s49')
            e(f'v_mov_b32 v{SOR(ti)+4}, s49')
            e(f'buffer_store_dwordx4 {vr(SOR(ti)-2,4)}, v{vs}, {sr(S_WS)}, s96 offen {o.stf}')
            e(f'buffer_store_dwordx4 {vr(SOR(ti)+2,4)}, v{vs}, {sr(S_WS)}, s96 offen offset:1024 {o.stf}')
            e(f's_branch L_x5{ti}')
            e(f'L_x6{ti}:')
        e(f'buffer_store_dwordx4 {vr(SOR(ti),4)}, v{vs}, {sr(S_WS)}, s{b+4} offen {o.stf}')
        e(f'L_x5{ti}:')
    e('L_x3:')
    e(f's_cmp_eq_u32 s{MODE}, 0')
    e('s_cbranch_scc1 L_x9')
    e('L_x2:')
    e('s_waitcnt lgkmcnt(0)')
    st01all('L_x4')
    e('L_x4:')
    e(f's_cmp_eq_u32 s{MODE}, 0')
    e('s_cbranch_scc1 L_x9')
    e('s_waitcnt vmcnt(0)')
    e(f's_add_u32 s{PAIR}, s{PAIR}, 1')
    e(f's_cmp_lt_u32 s{PAIR}, {NPROD}')
    e('s_cbranch_scc1 L_prod')
    e('v_mov_b32 v11, 1')
    e('ds_write_b32 v10, v11 offset:12')
    e('s_endpgm')
    e('L_x9:')
    jit()
    if o.tagp:
        e(f's_cmp_eq_u32 s{EARLY}, 0')
        e('s_cbranch_scc1 L_x10')
        e('s_barrier')
        e('L_x10:')
    stamp(3)
    decode()
    e('v_subrev_u32 v4, 256, v0')
    e('v_min_u32 v4, 251, v4')
    e('v_mul_u32_u24 v3, 3641, v4')
    e('v_lshrrev_b32 v3, 16, v3')
    e('v_mul_u32_u24 v2, 18, v3')
    e('v_sub_u32 v2, v4, v2')
    e(f'v_mul_u32_u24 v3, {R}, v3')
    e(f'v_min_u32 v3, {160-R}, v3')
    e('v_mul_u32_u24 v4, 1152, v3')
    e('v_lshl_add_u32 v4, v2, 4, v4')
    e(f'v_add_u32 v12, s{XB}, v4')
    e('v_mul_u32_u24 v18, 288, v3')
    e('v_lshl_add_u32 v18, v2, 4, v18')
    e(f'v_add_u32 v19, {X_D1}, v18')
    srd(e, S_X, 4, 1152000, add=BOFF)
    e(f's_add_u32 s46, s{TAG}, {TAGINC}')
    e('v_mov_b32 v56, s46')
    e(f's_lshl_b32 s46, s{RID}, 7')
    e('v_mov_b32 v58, s46')
    e(f's_add_u32 s46, s{PAIR}, {NPROD}')
    e('s_lshl_b32 s46, s46, 7')
    e('v_mov_b32 v59, s46')
    def publish(slot, vflag, tag, first, n=0):
        e('s_mov_b64 exec, 1')
        e(f's_waitcnt vmcnt({n})')
        if first: stamp(4)
        if o.padto and tag == 'x': stamp(12)
        e('v_cmp_ne_u32 vcc, 0, v27')
        e('v_not_b32 v57, v56')
        e('s_nop 0')
        e('v_cndmask_b32 v57, v56, v57, vcc')
        e(f'ds_write_b32 v55, v57 offset:{slot}')
        e(f'ds_read_b128 v[20:23], v10 offset:{32+slot}')
        e('s_waitcnt lgkmcnt(0)')
        for i in range(4): e(f'v_xor_b32 v{20+i}, v{20+i}, v56')
        e('v_or3_b32 v20, v20, v21, v22')
        e('v_or_b32 v20, v20, v23')
        e('v_cmp_eq_u32 vcc, 0, v20')
        e('s_and_b64 exec, exec, vcc')
        e(f's_cbranch_execz L_nl{tag}')
        e(f'buffer_store_dword v56, v{vflag}, {sr(S_WS)}, 0 offen sc1')
        e(f'L_nl{tag}:')
        e('s_mov_b64 exec, -1')
    if o.tagp and o.xl:
        e(f's_cmp_lg_u32 s{XK}, 2')
        e('s_cbranch_scc1 L_noflag')
        publish(0, 58, 'x', True)
        e(f's_mov_b32 s{XK}, 0')
    elif o.xl:
        e(f's_cmp_ge_u32 s{RID}, {NPROD}')
        e('s_cbranch_scc1 L_noflag')
        publish(0, 58, 'x', True)
        e(f's_mov_b32 s{XK}, 0')
        e(f's_cmp_eq_u32 s{EARLY}, 0')
        e('s_cbranch_scc1 L_noflag')
        if not o.b0early: e('s_barrier')
    elif not o.tagp:
        e(f's_cmp_eq_u32 s{EARLY}, 0')
        e('s_cbranch_scc1 L_noflag')
        publish(0, 58, 'x', True)
        if not o.b0early: e('s_barrier')
    e('L_noflag:')
    e(f's_setprio {o.hprio2}')
    RAW, ORAW = 64, 120
    EU = [184, 192]
    OU, DT, DO = 200, 208, 216
    xi = [0]
    NL = R + 1
    hq = []
    def eload():
        k = xi[0]
        if k >= NL: return
        a_ = 12
        if k:
            a_ = 13 + (k & 3)
            e(f'v_add_u32 v{a_}, {1152*k}, v12')
        e(f'buffer_load_dwordx4 {vr(RAW+4*k,4)}, v{a_}, {sr(S_X)}, 0 offen')
        xi[0] += 1
        hq.append(('e', k))
    if o.etouch:
        e(f's_cmp_lt_u32 s{RID}, {NTASK}')
        e('s_cbranch_scc1 L_net')
        e(f's_and_b32 s46, s{NB}, 1')
        e(f's_mul_i32 s46, s46, {1152*6}')
        e('v_add_u32 v12, s46, v12')
        for _ in range(7): eload()
        e('v_subrev_u32 v12, s46, v12')
        e('s_waitcnt vmcnt(0)')
        e('L_net:')
        xi[0] = 0; hq.clear()
    YA = 232
    e(f's_cmp_eq_u32 s{b+5}, 2')
    e('s_cselect_b32 s46, 0x80000000, 0')
    e(f's_cmp_lg_u32 s{HAS3}, 0')
    e('s_cselect_b32 s47, 0x80000000, 0')
    e('s_or_b32 s48, s46, s47')
    for i in range(6):
        m_ = {0: None, 1: 46, 2: None, 3: 46, 4: 47, 5: 48}[i]
        e(f'v_mov_b32 v{YA+i}, v{52+i//2}' if m_ is None else f'v_or_b32 v{YA+i}, s{m_}, v{52+i//2}')
    def ystore(i, a_):
        e(f'buffer_store_dwordx4 {vr(28+4*i,4)}, v{a_}, {sr(S_WS)}, s{b+2+(i&1)} offen {o.stf}')
        hq.append(('y', i))
    if o.yall:
        assert o.d0p
        e(f's_add_u32 s44, s{RID}, 76')
        e(f's_cmp_ge_u32 s44, {NWG}')
        e(f's_cselect_b32 s45, {NWG}, 0')
        e('s_sub_u32 s44, s44, s45')
        e(f's_add_u32 s46, s44, {NPROD + 32}')
        e('s_lshl_b32 s46, s46, 7')
        e('v_mov_b32 v59, s46')
        e('s_mul_hi_u32 s45, s44, 477218589')
        e('s_mul_i32 s46, s45, 9')
        e('s_sub_u32 s44, s44, s46')
        e(f's_lshr_b32 s{YT}, s45, 3')
        e(f's_add_u32 s{YT}, s{YT}, 1')
        e(f's_min_u32 s{YT}, s{YT}, 3')
        e('s_lshl_b32 s45, s45, 2')
        e(f's_add_u32 s45, s45, s{WAVE}')
        e('s_add_u32 s45, s45, 28')
        e('s_and_b32 s46, s45, 15')
        e('s_lshr_b32 s47, s45, 4')
        e('s_mul_i32 s54, s46, 165888')
        e('s_mul_i32 s48, s47, 9216')
        e('s_add_u32 s54, s54, s48')
        e('s_add_u32 s95, s54, 82944')
        e('s_cmp_lg_u32 s46, 15')
        e(f's_cselect_b32 s{S_WO+2}, 2571264, 0')
        e('s_cselect_b32 s51, 0, 0x80000000')
        e('s_lshr_b32 s48, s47, 1')
        e('s_and_b32 s49, s46, 7')
        e('s_lshr_b32 s50, s46, 3')
        e('s_and_b32 s45, s47, 1')
        e('s_cmp_eq_u32 s47, 8')
        e('s_cselect_b32 s49, s49, s46')
        e('s_cselect_b32 s50, s50, s45')
        e('s_cselect_b32 s51, 0, s51')
        e('s_lshl_b32 s50, s50, 9')
        e(f's_add_u32 s50, s50, {WOFF}')
        e('s_lshl_b32 s68, s48, 4')
        e('s_add_u32 s68, s68, s49')
        e('s_sub_u32 s69, s68, s48')
        e('s_add_u32 s68, s68, 34')
        e('s_add_u32 s69, s69, 144')
        for r_ in (68, 69):
            e(f's_lshl_b32 s{r_}, s{r_}, 10')
            e(f's_add_u32 s{r_}, s{r_}, s50')
        e('v_and_b32 v2, 3, v1')
        e('v_lshl_add_u32 v2, s44, 2, v2')
        e('v_lshrrev_b32 v3, 4, v1')
        e('v_lshl_add_u32 v3, s44, 2, v3')
        e('v_cmp_le_u32 vcc, 18, v2')
        e('v_cmp_le_u32 s[46:47], 18, v3')
        e('v_lshl_add_u32 v63, v2, 4, v24')
        e('v_mad_u32_u24 v60, v3, v26, v25')
        e('v_add_u32 v2, 4320, v63')
        e(f'v_add_u32 v3, {(256 - 18*NSTR) & 0xffffffff}, v60')
        e('v_cndmask_b32 v63, v63, v2, vcc')
        e('v_cndmask_b32 v60, v60, v3, s[46:47]')
        e('v_or_b32 v61, s51, v60')
    def ydma():
        if not o.yall: return
        e(f's_mov_b32 m0, s{SCRB}')
        e('s_nop 0')
        e(f'buffer_load_dwordx4 v63, {sr(S_W)}, s54 offen lds')
        e('s_addk_i32 m0, 1024')
        e('s_nop 0')
        e(f'buffer_load_dwordx4 v63, {sr(S_WO)}, s95 offen lds')
        hq.append('d0'); hq.append('d1')
    stamp(5)
    ldswait(8, 'eq', 4, 'o', 1)
    def unpack(dst, s_):
        for i in range(4):
            e(f'v_lshlrev_b32 v{dst+2*i}, 16, v{s_+i}')
            e(f'v_and_b32 v{dst+2*i+1}, s{MASK}, v{s_+i}')
    def unpackE(dst, k):
        e(f's_waitcnt vmcnt({len(hq)-1-hq.index(("e", k))})')
        unpack(dst, RAW + 4 * k)
        eload()
    def diff(eu, out):
        for i in range(8): e(f'v_sub_f32 v{DT+i}, v{eu+i}, v{OU+i}')
        for i in range(4):
            e(f'v_cvt_pk_bf16_f32 v{out+i}, v{DT+2*i}, v{DT+2*i+1}')
    def opengate():
        if not o.gate: return
        e('v_mov_b32 v11, 0x100')
        e('s_mov_b64 exec, 1')
        e('ds_add_u32 v10, v11 offset:8')
        e('s_mov_b64 exec, -1')
    def rows(hook):
        jit()
        stamp(6)
        for j in range(R):
            e(f'ds_read_b128 {vr(ORAW+4*j,4)}, v18 offset:{X_O+288*j}')
        unpackE(EU[0], 0)
        e('s_waitcnt lgkmcnt(0)')
        for j in range(R):
            o0 = DO + 8 * (j & 1)
            unpack(OU, ORAW + 4 * j)
            diff(EU[j & 1], o0)
            e(f'ds_write_b128 v18, {vr(o0,4)} offset:{X_D0+288*j}')
            unpackE(EU[(j + 1) & 1], j + 1)
            diff(EU[(j + 1) & 1], o0 + 4)
            e(f'ds_write_b128 v19, {vr(o0+4,4)} offset:{288*j}')
            hook(j)
    if o.apath:
        e(f's_cmp_ge_u32 s{RID}, {NPROD + (32 if o.d0p else 0)}')
        e('s_cbranch_scc1 L_pathA')
    e(f's_cmp_lt_u32 s{XK}, 2')
    e('s_cbranch_scc1 L_nox')
    if o.d0p:
        e(f's_cmp_eq_u32 s{XK}, 3')
        e('s_cbranch_scc1 L_xd')
    for i in range(3):
        e(f'buffer_store_dwordx4 {vr(SOR(i),4)}, v{YA+2*i}, {sr(S_WS)}, s{b+4} offen {o.stf}')
    if o.d0p:
        e('s_branch L_xe')
        e('L_xd:')
        for i in range(6): ystore(i, YA + i)
        e('L_xe:')
    if o.gearly:
        opengate()
        publish(0, 58, 'x2', True)
        e('s_branch L_nox2')
        e('L_nox:')
        opengate()
        e('L_nox2:')
    else:
        publish(0, 58, 'x2', True)
        e('L_nox:')
        opengate()
    hq.clear(); xi[0] = 0
    for _ in range(o.ein): eload()
    rows(lambda j: ydma() if j == o.ydrow else None)
    if o.apath:
        e('s_branch L_rowsdone')
        e('L_pathA:')
        if not o.d0p:
            e(f's_cmp_eq_u32 s{XK}, 3')
            e('s_cselect_b32 s47, 0, 0x80000000')
            for i in range(6): e(f'v_or_b32 v{20+i}, s47, v{YA+i}')
        hq.clear(); xi[0] = 0
        for _ in range(NL): eload()
        if not o.d0p:
            for i in range(6): ystore(i, 20 + i)
        def hookA(j):
            if j == o.grow + 1: ydma()
            if j == o.grow:
                e(f's_waitcnt vmcnt({len(hq)-1-hq.index(("e", NL-1))})')
                opengate()
            if j == o.xrow and not o.d0p:
                e(f's_cmp_lg_u32 s{XK}, 3')
                e('s_cbranch_scc1 L_xp')
                publish(0, 58, 'x3', True)
                e('L_xp:')
        rows(hookA)
    e('L_rowsdone:')
    e('s_waitcnt lgkmcnt(0)')
    stamp(7)
    e('v_mov_b32 v11, 1')
    e('s_mov_b64 exec, 1')
    e('ds_add_u32 v10, v11 offset:16')
    e('s_mov_b64 exec, -1')
    e(f's_cmp_eq_u32 s{YT}, 0')
    e('s_cbranch_scc1 L_noy')
    e(f's_setprio {o.yprio}')
    if o.yall:
        e('s_waitcnt vmcnt(0)')
        for tap in range(2):
            for half in range(2):
                e(f'ds_read_b64_tr_b16 {vr(28+4*tap+2*half,2)}, v62 offset:{1024*tap+512*half}')
    e('L_yw:')
    e('ds_read_b64 v[20:21], v10')
    e('s_waitcnt lgkmcnt(0)')
    e('v_lshrrev_b32 v21, 14, v21')
    e('v_and_b32 v21, -4, v21')
    e('v_or_b32 v20, v20, v21')
    e(f'v_cmp_le_u32 vcc, s{YT}, v20')
    e('s_nop 4')
    e('s_cbranch_vccnz L_yx')
    e('s_sleep 4')
    e('s_branch L_yw')
    e('L_yx:')
    jit()
    if o.yall:
        e(f'buffer_store_dwordx4 v[28:31], v60, {sr(S_WS)}, s68 offen {o.stf}')
        e(f'buffer_store_dwordx4 v[32:35], v61, {sr(S_WS)}, s69 offen {o.stf}')
    else:
      for i in range(6):
        ystore(i, YA + i)
        e(f's_waitcnt vmcnt({o.ythr})')
        if o.ysleep: e(f's_sleep {o.ysleep}')
    publish(16, 59, 'y', False)
    if o.diag == 1: stamp(8)
    e('L_noy:')
    e(f's_cmp_lg_u32 s{WAVE}, 4')
    e('s_cbranch_scc1 L_hend')
    e('L_guard:')
    e('ds_read_b32 v11, v10 offset:4')
    e('s_waitcnt lgkmcnt(0)')
    e('v_readfirstlane_b32 s46, v11')
    e('s_nop 3')
    e('s_cmp_eq_u32 s46, 4')
    e('s_cbranch_scc1 L_hend')
    e('s_cmp_lt_u32 s46, 0x10000')
    e('s_cbranch_scc0 L_rescue')
    e('s_sleep 16')
    e('s_branch L_guard')
    e('L_rescue:')
    e(f's_mov_b32 s{MODE}, 1')
    e(f's_mov_b32 s{HAS3}, 1')
    e(f's_mov_b32 s{NOTASK}, 0')
    e(f's_lshr_b32 s{TW0}, s{NB}, 1')
    e(f's_add_u32 s{TW1}, s{NB}, 9')
    e(f's_lshr_b32 s{TW1}, s{TW1}, 1')
    e(f's_mov_b32 s{PAIR}, 0')
    e('s_branch L_prod')
    e('L_hend:')
    if o.padto and o.padev[0] == 'h': padloop('h')
    if o.diag == 1:
        stamp(9)
        dump(10)
    e('L_end:')
    e('s_endpgm')
    if o.hfirst:
        m0, h0 = mark['main0'], mark['help0']
        e.L = e.L[:m0] + e.L[h0:] + ['.p2align 6'] + e.L[m0:h0]
    e('L_codeend:')
    e('.section .rodata,"a"')
    e('.p2align 6')
    e(f'.amdhsa_kernel {KN}')
    for x in ['next_free_vgpr 256', 'next_free_sgpr 102', 'accum_offset 256', 'group_segment_fixed_size 0', 'kernarg_size 40',
              'user_sgpr_count 2', 'user_sgpr_kernarg_segment_ptr 1', 'system_sgpr_workgroup_id_x 1']:
        e('  .amdhsa_' + x)
    e('.end_amdhsa_kernel')
    n = haz.check(e.L)
    if n: print(f'{n} hazards', file=sys.stderr)
    return f'; @launch grid=({NWG},1,1) block=(512,1,1) lds={LDS_BYTES}\n' + HEADER + e.text()

def opts(argv=None):
    ap = argparse.ArgumentParser()
    ap.add_argument('-o', default='k.s')
    for nm, d in [('diag', 0), ('pf', 16), ('pf0', 8), ('wgap', 4), ('wres', 4), ('wsc1', 0), ('nfill', 2), ('fstride', 128), ('sleep', 0), ('maxpoll', 3000), ('nopoll', 0),
                  ('hprio', 3), ('hprio2', 0), ('mprio', 2), ('epre', 0), ('ein', 7), ('dpre', 7), ('b0early', 0), ('mtouch', 1), ('gate', 1), ('swapab', 0), ('d0p', 1), ('map', 1), ('chain', 4), ('jit', 0), ('apath', 1), ('rmap', 0), ('yall', 0), ('ydrow', 6), ('flat0', 0), ('flatzz', 0), ('tagp', 0), ('tpf', 5), ('xl', 0), ('p0plain', 0), ('onepoll', 0), ('epoll', 1), ('ppoll', 0), ('yprio', 3), ('ysleep', 0), ('vt', 94), ('tla', 40), ('tskip', 1), ('gearly', 1), ('chfrom', 8), ('oj', 9), ('nolds', 0), ('now', 0), ('wsame', 0), ('grow', 1), ('vbd', 33), ('nopk', 1), ('padto', 0), ('npdelay', 0), ('opre', 5), ('etouch', 0), ('orev', 1), ('b0late', 1), ('dec', 1), ('tail', 1), ('xla', 9), ('hold', 1), ('prest', 0), ('xslot', 0), ('noclosed', 0), ('cpf', 1), ('hfirst', 1), ('warmb', 1), ('wsfirst', 0), ('flead', 6), ('ythr', 6), ('xrow', 3), ('padstep', 33), ('probe', 0), ('probeoff', 0x4000000)]:
        ap.add_argument('--' + nm, type=int, default=d)
    ap.add_argument('--oflags', default='')
    ap.add_argument('--pmap', default='18,18,18,18,18,18,18,18')
    ap.add_argument('--padev', default='m0')
    ap.add_argument('--trig', default='10,25,40')
    ap.add_argument('--yrow', default='0,7,2,9,5,11')
    ap.add_argument('--pfcs', default='4,5,5,5,5')
    ap.add_argument('--fflags', default='')
    ap.add_argument('--fleads', default='6,6,6,6,6')
    ap.add_argument('--stf', default='sc1')
    ap.add_argument('--marks', default='0,4,8,12,16,24,33,47,58')
    o = ap.parse_args(argv)
    o.marks = [int(x) for x in o.marks.split(',')]
    o.yrow = [int(x) for x in o.yrow.split(',')]
    o.pfcs = [int(x) for x in o.pfcs.split(',')]
    o.fleads = [int(x) for x in o.fleads.split(',')]
    o.trig = [int(x) for x in o.trig.split(',')]
    return o

if __name__ == '__main__':
    o = opts()
    open(o.o, 'w').write(gen(o))
```

```python
import re, sys, argparse
import haz

KN = 'standalone__autoregressive_conv_wavernn__speech_kernel'
NWG = 252
NPROD = 144
ARR = 160 * 288
X_D0, X_O, X_D1 = 0, ARR, 2 * ARR
CNT = 3 * ARR
SCR = CNT + 64
LDS_BYTES = SCR + 18432
NSTEP = 106
WOFF = int(__import__('os').environ.get('WOFF', '0x100000'), 0)
NONCE = 0x10000
DIAG = 0x800000
WS_REC = max(0x1000000, WOFF + 0x400000, int(__import__('os').environ.get('WSREC', '0'), 0))
TAGINC = 0x9E3779B9
R = 12


HEADER = """; Gated dilated causal convolution, out = tanh(f) * sigmoid(g), h = [f g] = sum_i x[t + 2i - 60] w[i].
;
; A workgroup owns 144 output pairs x 16 output columns (f and g). Waves 0-3 run the matrix loop (two column tiles x
"""

class Em:
    def __init__(self): self.L = []
    def __call__(self, s): self.L.append(s)
    def text(self): return '\n'.join(self.L) + '\n'

def vr(a, n=1): return f'v{a}' if n == 1 else f'v[{a}:{a+n-1}]'
def sr(a, n=4): return f's[{a}:{a+n-1}]'

def streams():
    out = []
    for typ in (0, 1):
        S = []
        pid = [0]
        def add(arr, chunk, cs, acc):
            for c in cs: S.append((pid[0], arr, chunk, c, acc))
            pid[0] += 1
        if typ == 0:
            add('O', 0, range(16), 'P'); add('O', 1, range(16), 'P'); add('O', 'rem', range(0, 2), 'P')
            for q in range(4): add('D', q, range(16), 'Q')
            add('D', 'rem', range(8), 'Q')
        else:
            add('O', 2, range(16), 'P'); add('O', 3, range(16), 'P'); add('O', 'rem', range(2, 8), 'P')
            for q in range(4): add('D', q, range(15), 'Q')
            add('D', 'rem', range(8), 'Q')
        assert len(S) == NSTEP
        out.append(S)
    return out

S_X, S_W, S_WO, S_WS, S_OUT, S_DBG = 20, 24, 28, 32, 36, 40
WAVE, NB, BAT, PAR, MB, BOFF = 14, 15, 16, 17, 18, 19
PAIR0 = 3
XB = 52
MASK = 53
TW0, TW1, TW2, PAIR, HAS3, MODE, SCRB, TAG, LAST, NPOLL = 44, 45, 54, 55, 56, 57, 58, 59, 60, 61
TS = 62
TYP, WSO = 68, 69
EARLY, XK, YT, FIDX = 90, 91, 92, 93
NOTASK = 94
FO = 97
C2L, CNL, C60 = 90, 92, 94
ST0 = 70

def srd(e, d, ptr, rec, add=None):
    if add is None:
        e(f's_mov_b32 s{d}, s{ptr}')
        e(f's_and_b32 s{d+1}, s{ptr+1}, 0xffff')
    else:
        e(f's_add_u32 s{d}, s{ptr}, s{add}')
        e(f's_addc_u32 s{d+1}, s{ptr+1}, 0')
        e(f's_and_b32 s{d+1}, s{d+1}, 0xffff')
    e(f's_mov_b32 s{d+2}, {rec}')
    e(f's_mov_b32 s{d+3}, 0x20000')

def gen(o):
    e = Em()
    NSTR = 2 * NSTEP * 1024 + (65536 if o.tagp else 0)
    if o.tagp: o.epoll = 0
    NTASK = NPROD + (32 if o.yall else 96)
    role = ['m']
    jn = [0]
    def jit():
        if not o.jit: return
        jn[0] += 1
        k = jn[0]
        e(f's_mul_i32 s98, s2, {37 + 2 * k + o.jit * 10}')
        e(f's_mul_i32 s99, s{WAVE}, {11 + 6 * k + o.jit}')
        e('s_add_u32 s98, s98, s99')
        e('s_bitcmp1_b32 s98, 3')
        e(f's_cbranch_scc1 L_jit{k}')
        e(f's_sleep {30 + (k * 17 + o.jit * 5) % 90}')
        e(f'L_jit{k}:')
    def padloop(tag):
        e(f'L_pad{tag}:')
        e('s_memrealtime s[98:99]')
        e('s_waitcnt lgkmcnt(0)')
        e('s_sub_u32 s98, s98, s100')
        e(f's_cmp_lt_u32 s98, {o.padto}')
        e(f's_cbranch_scc1 L_pad{tag}')
    def stamp(k, lvl=1):
        if o.padto and lvl == 1 and o.padev == f'{role[0]}{k}':
            e('s_memrealtime s[100:101]'); e('s_waitcnt lgkmcnt(0)')
        if o.diag == lvl or (o.diag == 4 and lvl == 1): e(f's_memrealtime s[{ST0+2*k}:{ST0+2*k+1}]')
    def dump(nst):
        e('s_waitcnt lgkmcnt(0)')
        e('v_mov_b32 v250, 0')
        for k in range(nst): e(f'v_writelane_b32 v250, s{ST0+2*k}, {k}')
        e(f'v_writelane_b32 v250, s{NPOLL}, 13')
        e(f'v_writelane_b32 v250, s95, 12')
        e(f'v_writelane_b32 v250, s{3 if o.rmap else 2}, 14')
        e('s_getreg_b32 s46, hwreg(HW_REG_XCC_ID)')
        e('v_writelane_b32 v250, s46, 15')
        e(f's_lshl_b32 s46, s2, 3'); e(f's_add_u32 s46, s46, s{WAVE}'); e('s_lshl_b32 s46, s46, 6'); e(f's_add_u32 s46, s46, {DIAG}')
        e('v_lshl_add_u32 v251, v1, 2, s46')
        e('s_mov_b64 exec, 0xffff')
        e(f'buffer_store_dword v250, v251, {sr(S_WS)}, 0 offen')
        e('s_mov_b64 exec, -1')

    e('.amdgcn_target "amdgcn-amd-amdhsa--gfx950"')
    e('.text')
    e(f'.globl {KN}')
    e('.p2align 8')
    e(f'.type {KN},@function')
    e(f'{KN}:')
    e(f's_cmp_ge_u32 s2, {NWG}')
    e('s_cbranch_scc1 L_end')
    stamp(0)
    if o.padto and o.padev != 'm0': e('s_memrealtime s[100:101]')
    e('s_load_dwordx4 s[4:7], s[0:1], 0')
    e('s_load_dwordx4 s[8:11], s[0:1], 16')
    e('s_load_dwordx2 s[12:13], s[0:1], 32')
    e('v_lshrrev_b32 v2, 6, v0')
    e('v_and_b32 v1, 63, v0')
    e(f'v_readfirstlane_b32 s{WAVE}, v2')
    def decode():
        e('s_and_b32 s44, s2, 7')
        e('s_lshr_b32 s45, s2, 3')
        e('s_mul_i32 s46, s44, 31')
        e('s_min_u32 s44, s44, 4')
        e('s_add_u32 s46, s46, s44')
        e('s_add_u32 s46, s46, s45')
        if o.map == 0:
            e('s_mul_hi_u32 s47, s46, 68174085')
            e('s_mul_i32 s48, s47, 63')
            e('s_sub_u32 s48, s46, s48')
            e(f's_mul_hi_u32 s{NB}, s48, 613566757')
            e(f's_mul_i32 s49, s{NB}, 7')
            e('s_sub_u32 s49, s48, s49')
            e('s_mul_i32 s47, s47, 7')
            e('s_add_u32 s47, s47, s49')
        elif o.map == 1:
            e('s_mul_hi_u32 s47, s46, 477218589')
            e('s_mul_i32 s48, s47, 9')
            e(f's_sub_u32 s{NB}, s46, s48')
        else:
            e('s_mul_hi_u32 s47, s46, 34087043')
            e('s_mul_i32 s48, s47, 126')
            e('s_sub_u32 s48, s46, s48')
            e(f's_mul_hi_u32 s{NB}, s48, 306783379')
            e(f's_mul_i32 s49, s{NB}, 14')
            e('s_sub_u32 s49, s48, s49')
            e('s_mul_i32 s47, s47, 14')
            e('s_add_u32 s47, s47, s49')
        e(f's_and_b32 s{PAR}, s47, 1')
        e('s_lshr_b32 s47, s47, 1')
        e('s_cmp_ge_u32 s47, 7')
        e(f's_cselect_b32 s{BOFF}, 1152000, 0')
        e('s_cselect_b32 s48, 7, 0')
        e(f's_sub_u32 s{MB}, s47, s48')
        e(f's_mul_i32 s{XB}, s{MB}, 576')
        e(f's_add_u32 s{XB}, s{XB}, s{PAR}')
        e(f's_sub_u32 s{XB}, s{XB}, 60')
        e(f's_mul_i32 s{XB}, s{XB}, 288')
    RID = 3 if o.rmap else 2
    if o.rmap:
        e('s_and_b32 s44, s2, 3')
        e('s_lshr_b32 s45, s2, 3')
        e('s_lshl2_add_u32 s3, s45, s44')
        e('s_and_b32 s44, s2, 4')
        e('s_lshl_b32 s44, s44, 5')
        e('s_add_u32 s3, s3, s44')
    e(f's_cmp_ge_u32 s{WAVE}, 4')
    e('s_cbranch_scc1 L_helper')
    if o.cpf:
        e('s_lshr_b32 s44, s2, 3')
        e(f's_lshl_b32 s45, s{WAVE}, 5')
        e('s_add_u32 s44, s44, s45')
        e('s_sub_u32 s44, s44, 26')
        e('s_cmp_ge_u32 s44, 5')
        e('s_cbranch_scc1 L_main')
        e('s_getpc_b64 s[46:47]')
        e('L_pc:')
        e('s_lshl_b32 s44, s44, 13')
        e('v_lshl_add_u32 v2, v1, 7, s44')
        e('v_min_u32 v2, L_codeend-L_pc-4, v2')
        e('global_load_dword v63, v2, s[46:47]')
    if o.hfirst: e('s_branch L_main')
    mark = {'main0': len(e.L)}
    e('L_main:')
    e(f's_mov_b32 s{MASK}, 0xffff0000')
    e(f's_mov_b32 s{NPOLL}, 0')
    if o.diag: e('s_mov_b32 s95, 0')
    decode()

    VXO, VXOR, VXD, VXDR, VWL, VEX, VEXP, VOUT = 30, 31, 32, 33, 34, 35, 36, 37
    VF = 40
    VA = 48
    VCL = 60
    e('v_mul_u32_u24 v3, 3641, v0')
    e('v_lshrrev_b32 v3, 16, v3')
    e('v_mul_u32_u24 v2, 18, v3')
    e('v_sub_u32 v2, v0, v2')
    e('v_mul_u32_u24 v3, 1152, v3')
    e('v_lshl_add_u32 v3, v2, 4, v3')
    e(f's_add_u32 s46, s{XB}, 576')
    e(f'v_add_u32 v{VA}, s46, v3')
    e('v_mov_b32 v5, 16192')
    e('v_mov_b32 v6, 17056')
    for k in range(1, 12):
        e('v_cmp_le_u32 vcc, 14, v2')
        e('v_add_u32 v3, 4, v2')
        e('v_subrev_u32 v4, 14, v2')
        e('v_cndmask_b32 v7, v5, v6, vcc')
        e('v_cndmask_b32 v2, v3, v4, vcc')
        e(f'v_add_u32 v{VA+k}, v{VA+k-1}, v7')
    e(f's_lshl_b32 s50, s{WAVE}, 10')
    e(f's_add_u32 s50, s50, {X_O}')
    e(f's_add_u32 s51, s50, {4096*11}')
    e('s_movk_i32 s49, 4096')
    if o.orev:
        e(f's_bitcmp0_b32 s{NB}, 0')
        e('s_cbranch_scc1 L_fwd')
        for k in range(5): e(f'v_swap_b32 v{VA+k}, v{VA+10-k}')
        e(f's_add_u32 s50, s50, {4096*10}')
        e('s_movk_i32 s49, -4096')
        e('L_fwd:')
    e(f'v_mov_b32 v{VF+1}, {CNT}')
    for r in range(4, 8): e(f'v_mov_b32 v{r}, 0')
    e(f'ds_write_b128 v{VF+1}, v[4:7]')
    e(f'ds_write_b128 v{VF+1}, v[4:7] offset:16')
    e('s_waitcnt lgkmcnt(0)')
    e(f's_load_dword s{TAG}, s[12:13], {NONCE}')
    srd(e, S_X, 4, 1152000, add=BOFF)
    def odma(k):
        e(f's_mov_b32 m0, s{51 if k == 11 else 50}')
        e('s_add_u32 s50, s50, s49')
        e(f'buffer_load_dwordx4 v{VA+k}, {sr(S_X)}, 0 offen lds')
    def etouch():
        e(f'buffer_load_dword v62, v9, {sr(S_X)}, 0 offen')
    if o.mtouch and o.tskip:
        e(f's_lshr_b32 s47, s{RID}, 4')
        e('s_lshr_b32 s47, 0x33, s47')
        e('s_lshl_b32 s47, s47, 31')
    if o.mtouch:
        e('v_min_u32 v8, 39, v1')
        e('v_lshrrev_b32 v9, 2, v8')
        e(f's_mul_i32 s46, s{WAVE}, 10')
        e('v_add_u32 v9, s46, v9')
        e(f'v_mul_u32_u24 v9, {4*1152}, v9')
        e('v_and_b32 v8, 3, v8')
        e('v_mul_u32_u24 v8, 92, v8')
        e(f's_and_b32 s46, s{NB}, {7 if o.mtouch == 4 else 3}')
        e(f's_mul_i32 s46, s46, {576 if o.mtouch == 4 else 1152}')
        e(f's_add_u32 s46, s46, s{XB}')
        e('v_add3_u32 v9, v9, v8, s46')
        if o.tskip == 1: e('v_or_b32 v9, s47, v9')
    if o.mtouch == 4 and o.tskip == 2:
        e('s_cmp_eq_u32 s47, 0')
        e('s_cbranch_scc1 L_tn')
        e('s_waitcnt lgkmcnt(0)')
        e('L_tn:')
    if o.mtouch in (2, 4): etouch()
    if o.padto and o.padev == 'm13':
        e('s_waitcnt vmcnt(0)'); stamp(13)
    if o.padto and o.padev == 'm14':
        odma(0); e('s_sub_u32 s50, s50, s49'); e('s_waitcnt vmcnt(0)'); stamp(14)
    if o.padto: stamp(10)
    for k in range(o.opre): odma(k)
    e('s_barrier')
    stamp(1)
    jit()
    if o.mtouch == 3: etouch()
    for k in range(o.opre, 12):
        if k == 11:
            e(f's_cmp_lg_u32 s{WAVE}, 0')
            e('s_cbranch_scc1 L_o11')
        odma(k)
    e('L_o11:')
    if o.mtouch == 1: etouch()
    srd(e, S_WS, 12, WS_REC)
    if o.epoll:
        assert o.mtouch in (1, 4) and o.tskip
        e(f's_and_b32 s{TYP}, s{WAVE}, 1')
        e(f's_lshl_b32 s{FO}, s{TYP}, 13')
        e('s_mov_b32 s96, s47')
        e('s_xor_b32 s46, s47, 0x80000000')
        e(f'v_min_u32 v{VF}, 31, v1')
        e(f'v_lshlrev_b32 v{VF}, 7, v{VF}')
        e(f'v_or_b32 v2, s46, v{VF}')
        e(f'buffer_load_dword v{VF+4}, v2, {sr(S_WS)}, s{FO} offen sc1')
    srd(e, S_OUT, 8, 1152000, add=BOFF)
    srd(e, S_DBG, 10, 256)
    e('v_and_b32 v2, 15, v1')
    e('v_lshrrev_b32 v3, 4, v1')
    e('v_subrev_u32 v5, 4, v2')
    e('v_add_u32 v6, 8, v2')
    e('v_cmp_gt_u32 vcc, 4, v2')
    e('v_cmp_le_u32 s[46:47], 12, v2')
    e(f's_and_b32 s{TYP}, s{WAVE}, 1')
    e(f's_lshr_b32 s48, s{WAVE}, 1')
    e('v_cndmask_b32 v5, v5, v6, vcc')
    e('v_cndmask_b32 v5, v5, v2, s[46:47]')
    e('v_mul_u32_u24 v5, 9, v5')
    e('v_mul_u32_u24 v4, 288, v5')
    e('v_lshl_add_u32 v6, v3, 4, v4')
    e('v_and_b32 v7, 1, v3')
    e('v_lshl_add_u32 v7, v7, 4, v4')
    e('v_lshrrev_b32 v8, 1, v3')
    e('v_mul_u32_u24 v8, 2304, v8')
    e('v_add_u32 v7, v7, v8')
    e('v_add_u32 v7, 256, v7')
    e(f's_mul_i32 s49, s{TYP}, {X_D1}')
    e(f'v_add_u32 v{VXO}, {X_O}, v6')
    e(f'v_add_u32 v{VXOR}, {X_O}, v7')
    e(f'v_add_u32 v{VXD}, s49, v6')
    e(f'v_add_u32 v{VXDR}, s49, v7')
    e('v_lshlrev_b32 v6, 4, v1')
    e(f's_mul_i32 s49, s{WAVE}, 9216')
    e(f's_add_u32 s49, s49, {X_O}')
    e(f'v_add_u32 v{VEX}, s49, v6')
    e(f's_xor_b32 s49, s{WAVE}, 1')
    e('s_mul_i32 s49, s49, 9216')
    e(f's_add_u32 s49, s49, {X_O}')
    e(f'v_add_u32 v{VEXP}, s49, v6')
    e('v_and_b32 v8, 0x39, v1')
    e('v_bfe_u32 v9, v1, 1, 1')
    e('v_lshl_add_u32 v8, v9, 2, v8')
    e('v_bfe_u32 v9, v1, 2, 1')
    e('v_lshl_add_u32 v8, v9, 1, v8')
    e(f'v_lshlrev_b32 v{VWL}, 4, v8')
    e(f's_mul_i32 s49, s{TYP}, 576')
    e(f's_add_u32 s49, s49, s{XB}')
    e(f's_add_u32 s49, s49, {60*288}')
    e(f's_lshl_b32 s50, s{NB}, 5')
    e('s_add_u32 s49, s49, s50')
    e('s_lshl_b32 s50, s48, 4')
    e('s_add_u32 s49, s49, s50')
    e('v_mul_u32_u24 v8, 1152, v5')
    e('v_lshl_add_u32 v8, v3, 2, v8')
    e(f'v_add_u32 v{VOUT}, s49, v8')
    e(f'v_add_u32 v{VOUT+1}, 3456, v{VOUT}')
    e(f'v_add_u32 v{VOUT+2}, 6912, v{VOUT}')
    e(f's_lshl_b32 s49, s{NB}, 1')
    e('s_add_u32 s49, s49, s48')
    e(f's_mul_i32 s49, s49, {NSTR}')
    e(f's_mul_i32 s{WSO}, s{TYP}, {NSTEP*1024}')
    e(f's_add_u32 s{WSO}, s{WSO}, s49')
    e(f's_add_u32 s{WSO}, s{WSO}, {WOFF + (16384 if o.tagp else 0)}')
    if o.tagp:
        e(f's_lshl_b32 s96, s{TYP}, 15')
        e('s_add_u32 s96, s96, s49')
        e(f's_add_u32 s96, s96, {WOFF + 2*NSTEP*1024}')
    e(f's_mov_b32 s{C2L}, 0x4038aa3b'); e(f's_mov_b32 s{C2L+1}, 0x4038aa3b')
    e(f's_mov_b32 s{CNL}, 0xbfb8aa3b'); e(f's_mov_b32 s{CNL+1}, 0xbfb8aa3b')
    e(f's_mov_b32 s{C60}, 0x42700000')
    e(f'v_min_u32 v{VF}, 31, v1')
    e(f'v_lshlrev_b32 v{VF}, 7, v{VF}')
    e(f'v_min_u32 v{VF+6}, 47, v1')
    e(f'v_lshlrev_b32 v{VF+6}, 7, v{VF+6}')
    e(f'v_mov_b32 v{VF+2}, 1')
    e('s_lshl_b32 s46, s48, 2')
    e(f'v_add_u32 v{VF+5}, s46, v{VF+1}')
    e(f's_or_b32 s46, s2, s{WAVE}')
    e('v_or_b32 v2, s46, v1')
    e('v_cmp_eq_u32 vcc, 0, v2')
    e(f'v_mov_b32 v{VCL}, -16')
    e(f'v_mov_b32 v{VCL+1}, -16')
    e(f'v_mov_b32 v3, {NONCE}')
    e(f'v_cndmask_b32 v{VCL}, v{VCL}, 4, vcc')
    e(f'v_cndmask_b32 v{VCL+1}, v{VCL+1}, v3, vcc')
    if o.yall:
        e(f's_lshr_b32 s46, s{NB}, 1')
        e(f's_add_u32 s47, s{NB}, 9')
        e('s_lshr_b32 s47, s47, 1')
        e('v_mov_b32 v4, s46')
        e('v_mov_b32 v5, s47')
        e('v_cmp_gt_u32 vcc, 32, v1')
        e('v_and_b32 v2, 7, v1')
        e('v_and_b32 v3, 15, v1')
        e('v_cndmask_b32 v4, v5, v4, vcc')
        e('v_min_u32 v3, 11, v3')
        e('v_mad_u32_u24 v2, v2, 9, v4')
        e('v_mad_u32_u24 v3, v3, 9, v4')
        e('v_lshlrev_b32 v2, 7, v2')
        e('v_lshlrev_b32 v3, 7, v3')
    e(f's_lshl_b32 s{FO}, s{TYP}, 13')
    if o.warmb:
        e(f's_cmp_eq_u32 s{TYP}, 1')
        e('s_cbranch_scc1 L_warmB')
        e('L_warmret:')
    e(f's_waitcnt vmcnt({(1 if o.mtouch == 1 else 0) + o.epoll}) lgkmcnt(0)')
    stamp(2)
    if o.padto and o.padev in ('m11', 'm12'):
        e(f's_lshr_b32 s46, s{RID}, 4')
        e('s_lshr_b32 s46, 0x33, s46')
        e('s_bitcmp1_b32 s46, 0')
        e(f's_cbranch_scc{1 if o.padev == "m11" else 0} L_pk')
        e('s_memrealtime s[100:101]'); e('s_waitcnt lgkmcnt(0)')
        e('L_pk:')
    e('s_mov_b64 exec, 1')
    e(f'ds_add_u32 v{VF+1}, v{VF+2} offset:8')
    e('s_mov_b64 exec, -1')
    e(f's_add_u32 s{TAG}, s{TAG}, {TAGINC}')
    e(f'v_mov_b32 v{VF+3}, s{TAG}')
    def flagwait(tag, vaddr, back):
        e(f'L_fw{tag}:')
        if o.diag and len(tag) == 2: e(f's_add_u32 s95, s95, {1 << (5 * int(tag[1]))}')
        e(f'buffer_load_dword v{VF+4}, v{vaddr}, {sr(S_WS)}, s{FO} offen sc1')
        e(f'ds_read_b32 v{VF+7}, v{VF+1} offset:12')
        e(f's_add_u32 s{NPOLL}, s{NPOLL}, 1')
        e('s_waitcnt vmcnt(0) lgkmcnt(0)')
        e(f'v_cmp_ne_u32 vcc, v{VF+3}, v{VF+4}')
        e(f'v_readfirstlane_b32 s46, v{VF+7}')
        e('s_nop 3')
        e(f's_cbranch_vccz {back}')
        e('s_cmp_lg_u32 s46, 0')
        e(f's_cbranch_scc1 {back}')
        e(f's_cmp_lg_u32 s{NPOLL}, {o.maxpoll}')
        e(f's_cbranch_scc1 L_fw{tag}')
        e(f'v_mov_b32 v{VF+7}, 0x10000')
        e('s_mov_b64 exec, 1')
        e(f'ds_add_u32 v{VF+1}, v{VF+7} offset:4')
        e('s_mov_b64 exec, -1')
        e(f's_branch L_fw{tag}')
    if o.epoll:
        e('s_cmp_eq_u32 s96, 0')
        e('s_cbranch_scc1 L_gate')
        e('s_waitcnt vmcnt(0)')
        e(f'v_cmp_ne_u32 vcc, v{VF+3}, v{VF+4}')
        e('s_nop 4')
        e('s_cbranch_vccz L_go')
    if o.gate:
        e('L_gate:')
        e(f'ds_read_b32 v{VF+4}, v{VF+1} offset:8')
        e('s_waitcnt lgkmcnt(0)')
        e(f'v_and_b32 v{VF+4}, 0xffff, v{VF+4}')
        e(f'v_cmp_gt_u32 vcc, 0x400, v{VF+4}')
        e('s_nop 4')
        e('s_cbranch_vccz L_gate2')
        e('s_sleep 1')
        e('s_branch L_gate')
        e('L_gate2:')
    if o.ppoll:
        e(f'buffer_load_dword v{VF+4}, v{VF}, {sr(S_WS)}, s{FO} offen sc1')
        e('L_pp:')
        for a_, b_ in ((VF + 4, 62), (62, VF + 4)):
            e(f's_sleep {o.ppoll}')
            e(f'buffer_load_dword v{b_}, v{VF}, {sr(S_WS)}, s{FO} offen sc1')
            e('s_waitcnt vmcnt(1)')
            e(f'v_cmp_ne_u32 vcc, v{VF+3}, v{a_}')
            e(f's_add_u32 s{NPOLL}, s{NPOLL}, 1')
            e('s_nop 3')
            e('s_cbranch_vccz L_go')
        e(f's_cmp_lt_u32 s{NPOLL}, 40')
        e('s_cbranch_scc1 L_pp')
        e(f's_mov_b32 s{NPOLL}, 0')
    if o.p0plain:
        e(f'buffer_load_dword v{VF+4}, v{VF}, {sr(S_WS)}, s{FO} offen')
        e('s_waitcnt vmcnt(0)')
        e(f'v_cmp_ne_u32 vcc, v{VF+3}, v{VF+4}')
        e('s_nop 4')
        e('s_cbranch_vccz L_go')
    if o.onepoll:
        e(f's_cmp_lt_u32 s{WAVE}, 2')
        e('s_cbranch_scc1 L_fw0')
        e('L_op:')
        e(f'ds_read_b32 v{VF+7}, v{VF+1} offset:8')
        e('s_waitcnt lgkmcnt(0)')
        e(f's_add_u32 s46, s{TYP}, 16')
        e(f'v_lshrrev_b32 v{VF+7}, s46, v{VF+7}')
        e(f'v_and_b32 v{VF+7}, 1, v{VF+7}')
        e(f'v_cmp_eq_u32 vcc, 0, v{VF+7}')
        e('s_nop 4')
        e('s_cbranch_vccnz L_op')
        e('s_branch L_go2')
    if not o.tagp: flagwait('0', VF, 'L_go')
    e('L_go:')
    jit()
    if o.tagp: e('s_mov_b32 s50, s96')
    if o.onepoll:
        e(f's_lshl_b32 s46, 0x10000, s{TYP}')
        e(f'v_mov_b32 v{VF+7}, s46')
        e('s_mov_b64 exec, 1')
        e(f'ds_or_b32 v{VF+1}, v{VF+7} offset:8')
        e('s_mov_b64 exec, -1')
        e('L_go2:')
    stamp(3)
    e('L_gw:')
    e(f'ds_read_b32 v{VF+7}, v{VF+1} offset:8')
    e('s_waitcnt lgkmcnt(0)')
    e(f'v_and_b32 v{VF+7}, 0xff, v{VF+7}')
    e(f'v_cmp_ne_u32 vcc, 4, v{VF+7}')
    e('s_nop 4')
    e('s_cbranch_vccnz L_gw')
    stamp(4)
    e(f's_setprio {o.mprio}')
    e(f's_cmp_eq_u32 s{TYP}, 1')
    e('s_cbranch_scc1 L_typeB')

    ACC = {'P': 64, 'Q': 100}
    WR, TMP = 136, 224
    XRING = [200 + 4 * i for i in range(6)]
    XWIN = [4 + 4 * i for i in range(6)] + [240 + 4 * i for i in range(4)]
    VC = 28
    PF = o.pf
    GT = 98
    wflags = {0: '', 1: ' sc1', 2: ' nt', 3: ' sc0'}[o.wsc1]
    for typ, S in enumerate(streams()):
        if typ == 1:
            e('.p2align 6')
            if o.warmb: e('L_warmB:'); e('s_branch L_warmret')
            e('L_typeB:')
        ops = []
        vstart = {}
        lastv = o.vt - 1
        v0 = 0
        G0 = 0
        if o.flat0:
            for g in range(16):
                vstart[g] = len(ops)
                for j in (range(9) if g % 2 == 0 or not o.flatzz else range(8, -1, -1)): ops.append((g, j))
            v0 = G0 = 16
        while v0 <= lastv:
            ch = 1 if v0 < o.chfrom + G0 else min(o.chain, lastv + 1 - v0)
            n0 = len(ops)
            for j in range(8, -1, -1):
                us = range(ch) if j % 2 == 0 else range(ch - 1, -1, -1)
                first_ = [u for u in us if v0 + u - j == 0 or (0 < v0 + u - j < NSTEP and S[v0+u-j][4] == 'Q' and S[v0+u-j-1][4] == 'P')]
                if first_: us = range(ch)
                for u in us:
                    if G0 <= v0 + u - j < NSTEP: ops.append((v0 + u - j, j))
            for u in range(ch): vstart[v0 + u] = n0 + (len(ops) - n0) * u // ch
            v0 += ch
        ntail = len(ops)
        if o.tail:
            for j in range(9):
                for g in range(o.vt - j, NSTEP): ops.append((g, j))
        assert len(ops) == NSTEP * 9 and len(set(ops)) == len(ops)
        N = len(ops)
        def key(n):
            g, j = ops[n]
            pid, arr, ch, c, acc = S[g]
            k = (pid, arr, ch, c + j)
            if n >= ntail and g < GT: k = k + ((n,) if not o.hold else ('h',))
            return k
        first, last = {}, {}
        for n in range(N):
            first.setdefault(key(n), n); last[key(n)] = n
        wfirst, wlast = {}, {}
        for n, (g, j) in enumerate(ops):
            wfirst.setdefault(g, n); wlast[g] = n
        tasks = []
        for k, n0 in first.items():
            win = o.tail and k[2] == 'rem' and k[1] == 'D'
            la = o.xla if n0 < ntail else 6
            if n0 >= ntail and ops[n0][1] == 0: la = o.tla
            elif win: la = 12
            tasks.append([n0 - la, n0 - 1, 'X', k])
        for g in range(NSTEP):
            rel = -100 + g if g < o.pf0 else max(0, wfirst[g] - 9 * PF)
            if o.tagp and g < 16:
                rel = -100 + g if g < 4 else max(0, wfirst[g] - 9 * o.tpf)
                tasks.append([rel, wfirst[g & ~1] - 9, 'W', g])
                continue
            tasks.append([rel, wfirst[g] - 1, 'W', g])
        def at(v, off=0): return vstart[v] + off
        firstD = min(n for n in range(N) if S[ops[n][0]][1] == 'D')
        lastO = max(n for n in range(N) if S[ops[n][0]][1] == 'O')
        lastP = {j: max(n for n in range(N) if ops[n][1] == j and S[ops[n][0]][4] == 'P') for j in range(9)}
        slow = []
        vused = set()
        def check(v, off, cnt, tag):
            tasks.append([at(v - 1, 3), at(v - 1, 8), 'L', (f'ds_read_b32 v{VC}, v{VF+1} offset:{off}', ('c', tag))])
            tasks.append([at(v, 0), at(v, 1), 'C', (f'v_cmp_ne_u32 vcc, {cnt}, v{VC}', ('c', tag))])
            tasks.append([at(v, 6), at(v, 7), 'I', [f's_cbranch_vccnz L_slow{typ}{tag}', f'L_back{typ}{tag}:']])
            slow.append((tag, off, cnt))
            vused.add(v)
            return at(v, 8)
        def add1(pos, off):
            tasks.append([pos, pos + 4, 'A', off])
        vD = [v for v in vstart if vstart[v] <= firstD - o.xla][-1] - 1
        okD = check(vD, 16, 4, 'D')
        assert okD <= firstD - o.xla
        add1(lastO, 20)
        VP = 47
        okR = check(VP, 20, 4, 'R')
        for j in range(9):
            assert lastP[j] + 12 < at(VP + 1 + j, 2)
            tasks.append([at(VP + 1 + j, 2), at(VP + 1 + j, 8), 'L', (f'ds_write_b128 v{VEX}, {vr(ACC["P"]+4*j,4)} offset:{1024*j}', ('pw', j))])
        tasks.append([at(VP + 10, 0), at(VP + 10, 4), 'A', 'pair'])
        VQ = VP + 13
        okP = check(VQ, 'pair', 2, 'P')
        for j in range(9):
            tasks.append([at(VQ + 1 + j, 2), at(VQ + 1 + j, 8), 'L', (f'ds_read_b128 {vr(TMP+4*(j&1),4)}, v{VEXP} offset:{1024*j}', ('pr', j))])
            v = VQ + 2 + j
            pos = at(v, 8 - (j + 2) - 1) if j <= 6 else at(v, 8 - (j - 7) - 1)
            sh = 1 if j >= 7 else 0
            if o.chain > 1:
                own = [n for n in range(N) if ops[n][1] == j]
                pos = [a_ + 10 for a_, b_ in zip(own, own[1:]) if b_ - a_ >= 14 and a_ + 9 >= at(v, 0) ][0]
                sh = 0
                tasks[-1][0] = pos - 9; tasks[-1][1] = pos - 4
                tasks[-1][3] = (f'ds_read_b128 {vr(TMP+4*(j&3),4)}, v{VEXP} offset:{1024*j}', ('pr', j))
            tasks.append([pos - 1 + sh, pos - 1 + sh, 'Q', (j, 0)])
            tasks.append([pos + sh, pos + sh, 'Q', (j, 1)])
        if typ == 0:
            tasks.append([at(64, 4), at(64, 8), 'S', f'buffer_store_dword v{VCL+1}, v{VCL}, {sr(S_DBG)}, 0 offen sc1'])
            tasks.append([at(84, 4), at(84, 8), 'S', f'buffer_store_dword v{VF+3}, v{VCL+1}, {sr(S_WS)}, 0 offen sc1'])
        fslow = []
        kslow = []
        if o.tagp:
            for g in range(0, 16, 2):
                n0 = wfirst[g]
                if g < 4: continue
                tasks.append([n0 - 8, n0 - 7, 'K', g])
                tasks.append([n0 - 2, n0 - 1, 'I', ['s_cmp_lg_u64 s[48:49], 0', f's_cbranch_scc1 L_ks{typ}{g}', f'L_kb{typ}{g}:']])
        passes = {}
        for g in range(NSTEP): passes.setdefault(S[g][0], g)
        need = [(passes[1], VF, 32 + 64 * typ), (32, VF + 6, 128), (passes[4], VF, 176), (passes[5], VF, 208), (passes[6], VF + 6, 240)]
        if o.yall: need[2:] = [(passes[4], 2, 176), (passes[5], 2, 176 + 72), (passes[6], 3, 176 + 144)]
        for ci, (gn, va, idx) in enumerate(need):
            v = gn - o.pfcs[ci] - 1
            while v in vused: v -= 1
            tasks.append([at(v - o.fleads[ci], 4), at(v - o.fleads[ci], 8), 'F', (va, idx, ci)])
            tasks.append([at(v, 0), at(v, 1), 'G', ci])
            tasks.append([at(v, 6), at(v, 7), 'I', [f's_cbranch_vccnz L_fw{typ}{ci}', f'L_fb{typ}{ci}:']])
            fslow.append((ci, va))
            assert v not in vused, v
            for t in tasks:
                if t[2] == 'W' and (t[3] >= gn): t[0] = max(t[0], at(v, 8))
        tasks.append([at(v + 1, 2), at(v + 1, 8), 'A', 4])
        if typ == 0:
            for lvl, v in enumerate(o.trig): tasks.append([at(v, 2), at(v, 8), 'P', lvl + 1])
            if o.wbat: tasks.append([ntail + o.wbat, ntail + o.wbat + 6, 'P', 4])
        tasks.sort(key=lambda t: (t[0], t[1]))
        vq, lq = [], []
        dirty = [False]
        xreg, busy = {}, {}
        wn = [0]
        wr = {}
        lastw = [-100]
        later = []
        BIG = [WR + 4 * i for i in range(16)] + XWIN + [ACC['P'] + 4 * i for i in range(9)]
        for i in range(9): busy[ACC['P'] + 4 * i] = at(VP + 12)
        until = {}
        if o.chain > 1:
            BIG += XRING + [VA, VA + 4, VA + 8]
            for i in range(9):
                BIG.append(ACC['Q'] + 4 * i)
                until[ACC['Q'] + 4 * i] = min(n for n in range(N) if ops[n][1] == i and S[ops[n][0]][4] == 'Q') - 3
        def freeregs(n, end): return [x for x in BIG if busy.get(x, -1) <= n and end < until.get(x, 10**9)]
        def freepairs(n, end):
            f_ = set(freeregs(n, end))
            return [x for x in sorted(f_) if x % 8 == PAR8.get(x, -1) and x + 4 in f_]
        PAR8 = {x: x % 8 for x in list(range(WR, WR + 64, 8)) + [4, 12, 20, 240, 248, 200, 208, 216, 100, 108, 116, 124, VA]}
        def kcheck(g):
            vwait(g + 1)
            for i, gg in enumerate((g, g + 1)):
                a_ = wr[gg] - 2
                em(f'v_bitop3_b32 v{VC+i}, v{a_+1}, v{a_+6}, v{VF+3} bitop3:0x7e')
            em(f'v_or_b32 v{VC}, v{VC}, v{VC+1}')
            em(f'v_cmp_ne_u32 s[48:49], 0, v{VC}')
            kslow.append((g, wr[g] - 2, wr[g + 1] - 2))
        def wok(t, n):
            if t[2] != 'W': return True
            if t[3] != wn[0]: return False
            if o.tagp and t[3] < 16:
                return bool(freepairs(n, wlast[t[3]])) and (n - lastw[0] >= 2 or t[1] - n <= 4)
            free = len(freeregs(n, wlast[t[3]]))
            if t[1] - n <= 9 * 3: return free > 0
            return n - lastw[0] >= o.wgap and free > o.wres
        since = {}
        fill = []
        def em(x):
            e(x)
            if not x.endswith(':'):
                for jj in since: since[jj] += 1
        def lwait(tag):
            if tag not in lq: return
            i = lq.index(tag)
            em(f's_waitcnt lgkmcnt({0 if dirty[0] else len(lq)-1-i})')
            if dirty[0]: lq.clear(); dirty[0] = False
            else: del lq[:i + 1]
        def vwait(g):
            if g not in vq: return
            i = vq.index(g)
            em(f's_waitcnt vmcnt({len(vq)-1-i})')
            del vq[:i + 1]
        def run(t, n):
            kind, p = t[2], t[3]
            if kind == 'X':
                pool = BIG if (o.chain > 1 or p[-1] == 'h' or (p[2] == 'rem' and p[1] == 'D')) else XRING
                r = [x for x in pool if busy.get(x, -1) <= n and last[p] < until.get(x, 10**9)]
                assert r, ('no x register', p, n)
                r = min(r, key=lambda x: (until.get(x, 10**9), busy.get(x, -1)))
                busy[r] = last[p]; xreg[p] = r
                arr, ch, s_ = p[1], p[2], p[3]
                if o.nolds and n > 9 * 30: return
                if ch == 'rem': em(f'ds_read_b128 {vr(r,4)}, v{VXOR if arr == "O" else VXDR} offset:{288*s_}')
                else: em(f'ds_read_b128 {vr(r,4)}, v{VXO if arr == "O" else VXD} offset:{64*ch+288*s_}')
                lq.append(p)
            elif kind == 'W':
                g = p
                if o.tagp and g < 16:
                    r = min(freepairs(n, wlast[g]), key=lambda x: (until.get(x, 10**9), busy.get(x, -1)))
                    busy[r] = busy[r + 4] = wlast[g]; wr[g] = r + 2
                    assert g == wn[0]; wn[0] += 1
                    lastw[0] = n
                    em(f'buffer_load_dwordx4 {vr(r,4)}, v{VWL}, {sr(S_WS)}, s50 offen offset:{2048*(g%2)}')
                    em(f'buffer_load_dwordx4 {vr(r+4,4)}, v{VWL}, {sr(S_WS)}, s50 offen offset:{2048*(g%2)+1024}')
                    vq.append(('h', g)); vq.append(g)
                    if g % 2 == 1:
                        if n < 0: em('s_add_u32 s50, s50, 4096')
                        else: later.append('s_add_u32 s50, s50, 4096')
                    return
                r = min(freeregs(n, wlast[g]), key=lambda x: (until.get(x, 10**9), busy.get(x, -1)))
                busy[r] = wlast[g]; wr[g] = r
                assert g == wn[0]; wn[0] += 1
                lastw[0] = n
                if o.now and g > 40: return
                if o.wsame and g > 40:
                    em(f'buffer_load_dwordx4 {vr(r,4)}, v{VWL}, {sr(S_WS)}, s{WSO} offen offset:{1024*(g%4)}{wflags}'); vq.append(g); return
                em(f'buffer_load_dwordx4 {vr(r,4)}, v{VWL}, {sr(S_WS)}, s{WSO} offen offset:{1024*(g%4)}{wflags}')
                if g % 4 == 3:
                    if n < 0: em(f's_add_u32 s{WSO}, s{WSO}, 4096')
                    else: later.append(f's_add_u32 s{WSO}, s{WSO}, 4096')
                vq.append(g)
            elif kind == 'L':
                em(p[0].replace('offset:pair', 'offset:24').replace(f'v{VF+1} offset:24', f'v{VF+5} offset:24')); lq.append(p[1])
            elif kind == 'C':
                lwait(p[1]); em(p[0])
            elif kind == 'I':
                for x in p: em(x)
            elif kind == 'A':
                em('s_mov_b64 exec, 1')
                if p == 'pair': em(f'ds_add_u32 v{VF+5}, v{VF+2} offset:24')
                else: em(f'ds_add_u32 v{VF+1}, v{VF+2} offset:{p}')
                em('s_mov_b64 exec, -1')
                lq.append(('a', p))
            elif kind == 'Q':
                p, hf = p
                lwait(('pr', p))
                q = ACC['Q'] + 4 * p; t_ = TMP + 4 * (p & (3 if o.chain > 1 else 1))
                for i in (2 * hf, 2 * hf + 1): em(f'v_add_f32 v{q+i}, v{q+i}, v{t_+i}')
            elif kind == 'S':
                assert not any(isinstance(x, tuple) and x[0] == 's' for x in vq)
                em(p); vq.append(('s', n))
            elif kind == 'F':
                em(f's_mov_b32 s{FO}, {128*p[1]}')
                em(f'buffer_load_dword v{VF+4}, v{p[0]}, {sr(S_WS)}, s{FO} offen {o.fflags}'); vq.append(('f', p[2]))
            elif kind == 'K':
                kcheck(p)
            elif kind == 'G':
                vwait(('f', p)); em(f'v_cmp_ne_u32 vcc, v{VF+3}, v{VF+4}')
            elif kind == 'P':
                em(f'v_mov_b32 v{VF+7}, {p}')
                em('s_mov_b64 exec, 1')
                em(f'ds_max_u32 v{VF+1}, v{VF+7}')
                em('s_mov_b64 exec, -1')
                lq.append(('p', p))
        def epi(j, pk):
            q = ACC['Q'] + 4 * j
            t = TMP + 8 * (j & 1)
            I = []
            if pk:
                I.append(f'v_pk_mul_f32 {vr(t,2)}, {vr(q,2)}, s[{C2L}:{C2L+1}]')
                I.append(f'v_pk_mul_f32 {vr(t+2,2)}, {vr(q+2,2)}, s[{CNL}:{CNL+1}]')
            else:
                for i in (0, 1): I.append(f'v_mul_f32 v{t+i}, s{C2L}, v{q+i}')
                for i in (2, 3): I.append(f'v_mul_f32 v{t+i}, s{CNL}, v{q+i}')
            I.append(f'v_min_f32 v{t}, s{C60}, v{t}')
            I.append(f'v_min_f32 v{t+1}, s{C60}, v{t+1}')
            for i in (0, 1, 2, 3): I.append(f'v_exp_f32 v{t+i}, v{t+i}')
            if pk:
                I.append(f'v_pk_add_f32 {vr(t+4,2)}, {vr(t,2)}, 1.0 op_sel_hi:[1,0]')
                I.append(f'v_pk_add_f32 {vr(t+6,2)}, {vr(t,2)}, -1.0 op_sel_hi:[1,0]')
                I.append(f'v_pk_fma_f32 {vr(t+4,2)}, {vr(t+4,2)}, {vr(t+2,2)}, {vr(t+4,2)}')
            else:
                for i in (0, 1): I.append(f'v_add_f32 v{t+4+i}, 1.0, v{t+i}')
                for i in (0, 1): I.append(f'v_fma_f32 v{t+4+i}, v{t+4+i}, v{t+2+i}, v{t+4+i}')
            I.append(f'v_rcp_f32 v{t+4}, v{t+4}')
            I.append(f'v_rcp_f32 v{t+5}, v{t+5}')
            if pk:
                I.append('s_nop 0')
                I.append(f'v_pk_mul_f32 {vr(t+6,2)}, {vr(t+6,2)}, {vr(t+4,2)}')
            else:
                for i in (0, 1): I.append(f'v_add_f32 v{t+6+i}, -1.0, v{t+i}')
                for i in (0, 1): I.append(f'v_mul_f32 v{t+6+i}, v{t+6+i}, v{t+4+i}')
            I.append(f'v_cvt_pk_bf16_f32 v{q}, v{t+6}, v{t+7}')
            I.append(f'buffer_store_dword v{q}, v{VOUT + j//3}, {sr(S_OUT)}, 0 offen offset:{1152*(j%3)} {o.oflags if j < o.oj else ""}')
            return I
        def cost(x): return 2 if x.startswith(('v_exp', 'v_rcp', 'buffer')) else 1
        while tasks and tasks[0][0] < 0: run(tasks.pop(0), -1)
        if o.tagp:
            for g in (0, 2):
                vwait(g + 1)
                for gg in (g + 4, g + 5):
                    t_ = [t for t in tasks if t[2] == 'W' and t[3] == gg][0]
                    tasks.remove(t_); run(t_, -1)
                kcheck(g)
                em('s_nop 2')
                em('s_cmp_lg_u64 s[48:49], 0')
                em(f's_cbranch_scc1 L_ks{typ}{g}')
                em(f'L_kb{typ}{g}:')
        inv = {n: v for v, n in vstart.items()}
        lastop = {j: max(n for n in range(N) if ops[n][1] == j) for j in range(9)}
        for n, (g, j) in enumerate(ops):
            if n in inv and o.padto and o.padev == 'm5' and inv[n] == o.padstep:
                e('s_memrealtime s[100:101]'); dirty[0] = True
            if n in inv and o.diag:
                v = inv[n]
                if o.diag == 2 and v in o.marks:
                    kk = o.marks.index(v)
                    e(f's_memtime s[{ST0+2*kk}:{ST0+2*kk+1}]'); dirty[0] = True
                if o.diag in (1, 4) and v == 33: stamp(5); stamp(6); dirty[0] = True
            if o.jit and n in inv and inv[n] in (20, 36, 44, 52, 60, 70, 90): jit()
            k = key(n)
            assert k in xreg, (k, n)
            lwait(k); vwait(g)
            acc = S[g][4]
            d = ACC[acc] + 4 * j
            if g == 0: cs = '0'
            elif acc == 'Q' and S[g-1][4] == 'P': cs = vr(ACC['P'] + 4 * j, 4)
            else: cs = vr(d, 4)
            em(f'v_mfma_f32_16x16x32_bf16 {vr(d,4)}, {vr(wr[g],4)}, {vr(xreg[k],4)}, {cs}' if not o.swapab else f'v_mfma_f32_16x16x32_bf16 {vr(d,4)}, {vr(xreg[k],4)}, {vr(wr[g],4)}, {cs}')
            if n == lastop[j]: since[j] = 0
            while later: em(later.pop(0))
            budget = 2
            TC = {'X': 1, 'W': 2, 'L': 2, 'C': 1, 'I': 0, 'A': 1, 'Q': 2, 'S': 2, 'F': 2, 'G': 1, 'P': 2, 'K': 2}
            while True:
                ready = [t for t in tasks if t[0] <= n and wok(t, n)]
                if not ready: break
                t = min(ready, key=lambda t: t[1])
                assert t[1] >= n, ('late', t, n)
                if TC[t[2]] > budget and t[1] > n:
                    fit = [u for u in ready if TC[u[2]] <= budget]
                    if not fit: break
                    t = min(fit, key=lambda t: t[1])
                tasks.remove(t); run(t, n); budget -= TC[t[2]]
            for jj in sorted(since):
                if 8 <= since[jj] < 10**6:
                    fill += epi(jj, False); since[jj] = 10**6
            budget += o.nfill - 2
            while fill and budget >= cost(fill[0]):
                budget -= cost(fill[0])
                if fill[0].startswith('buffer_store'):
                    q_ = int(re.match(r'buffer_store_dword v(\d+)', fill[0]).group(1))
                    until.pop(q_, None); busy[q_] = n + 2
                em(fill.pop(0))
            assert all(t[1] > n for t in tasks), ('late', n, [t for t in tasks if t[1] <= n])
        assert not tasks
        stamp(7)
        while fill: em(fill.pop(0))
        for jj in [jj for jj in sorted(since) if since[jj] < 10**6]:
            if since[jj] < 8: em(f's_nop {8-since[jj]-1}')
            for x in epi(jj, True): em(x)
        stamp(8)
        if o.padto and o.padev[0] == 'm': padloop(typ)
        if o.diag == 1:
            e('s_waitcnt vmcnt(0)')
            stamp(9)
            dump(10)
        if o.diag == 2:
            kk = len(o.marks)
            e(f's_memtime s[{ST0+2*kk}:{ST0+2*kk+1}]')
            dump(10)
        e('s_endpgm')
        for tag, off, cnt in slow:
            e(f'L_slow{typ}{tag}:')
            e(f'ds_read_b32 v{VC}, v{VF+5 if off == "pair" else VF+1} offset:{24 if off == "pair" else off}')
            e('s_waitcnt lgkmcnt(0)')
            e(f'v_cmp_ne_u32 vcc, {cnt}, v{VC}')
            e('s_nop 4')
            e(f's_cbranch_vccnz L_slow{typ}{tag}')
            e(f's_branch L_back{typ}{tag}')
        for ci, va in fslow: flagwait(f'{typ}{ci}', va, f'L_fb{typ}{ci}')
        for g, a0_, a1_ in kslow:
            e(f'L_ks{typ}{g}:')
            if o.diag: e(f's_add_u32 s95, s95, {1 << 25}')
            e(f'ds_read_b32 v{VF+7}, v{VF+1} offset:12')
            e(f's_add_u32 s47, s96, {2048*g}')
            e('s_waitcnt lgkmcnt(0)')
            for i, a_ in enumerate((a0_, a0_ + 4, a1_, a1_ + 4)):
                e(f'buffer_load_dwordx4 {vr(a_,4)}, v{VWL}, {sr(S_WS)}, s47 offen offset:{1024*i} sc1')
            e(f'v_readfirstlane_b32 s46, v{VF+7}')
            e(f's_add_u32 s{NPOLL}, s{NPOLL}, 1')
            e('s_waitcnt vmcnt(0)')
            e('s_cmp_lg_u32 s46, 0')
            e(f's_cbranch_scc1 L_kb{typ}{g}')
            e(f'v_bitop3_b32 v{VC}, v{a0_+1}, v{a0_+6}, v{VF+3} bitop3:0x7e')
            e(f'v_bitop3_b32 v{VC+1}, v{a1_+1}, v{a1_+6}, v{VF+3} bitop3:0x7e')
            e(f'v_or_b32 v{VC}, v{VC}, v{VC+1}')
            e(f'v_cmp_ne_u32 s[48:49], 0, v{VC}')
            e('s_nop 2')
            e('s_cmp_eq_u64 s[48:49], 0')
            e(f's_cbranch_scc1 L_kb{typ}{g}')
            e(f's_cmp_lg_u32 s{NPOLL}, {o.maxpoll}')
            e(f's_cbranch_scc1 L_ks{typ}{g}')
            e(f'v_mov_b32 v{VF+7}, 0x10000')
            e('s_mov_b64 exec, 1')
            e(f'ds_add_u32 v{VF+1}, v{VF+7} offset:4')
            e('s_mov_b64 exec, -1')
            e(f's_branch L_ks{typ}{g}')

    mark['help0'] = len(e.L)
    if not o.hfirst: e('.p2align 6')
    e('L_helper:')
    role[0] = 'h'
    e(f's_setprio {o.hprio}')
    e(f's_sub_u32 s{TW0}, s{WAVE}, 4')
    e(f's_mov_b32 s{TW1}, s{WAVE}')
    e(f's_sub_u32 s{PAIR}, s{RID}, {NPROD}')
    e(f's_cselect_b32 s{PAIR}, s{RID}, s{PAIR}')
    e(f's_mov_b32 s{MODE}, 0')
    e(f's_mov_b32 s{NOTASK}, s{RID}')
    e(f's_mov_b32 s{HAS3}, s{TW0}')
    e(f's_lshl_b32 s{SCRB}, s{TW0}, 12')
    e(f's_add_u32 s{SCRB}, s{SCRB}, {SCR}')
    e('L_prod:')
    T = [(28, TW0, 2, 52, 0), (36, TW1, 4, 53, 2048), (44, TW2, 6, 54, 16384)]
    c, kp, q, cc, kk, t = 46, 47, 48, 49, 50, 51
    b = TS
    e('v_mov_b32 v19, 4320')
    e('v_and_b32 v23, 3, v1')
    e('v_lshrrev_b32 v24, 2, v1')
    e('v_mul_u32_u24 v24, 288, v24')
    for (vb, sw, vl, vs, so) in T:
        e(f'v_lshl_add_u32 v8, s{sw}, 2, v23' if sw != TW2 else 'v_add_u32 v8, 32, v23')
        e('v_cmp_le_u32 vcc, 18, v8')
        e(f'v_lshl_add_u32 v{vl}, v8, 4, v24')
        e(f'v_add_u32 v9, v{vl}, v19')
        e(f'v_cndmask_b32 v{vl}, v{vl}, v9, vcc')
    e(f's_and_b32 s{c}, s{PAIR}, 15')
    e(f's_lshr_b32 s{kp}, s{PAIR}, 4')
    e(f's_mul_i32 s{b}, s{c}, 165888')
    e(f's_mul_i32 s{t}, s{kp}, 9216')
    e(f's_add_u32 s{b}, s{b}, s{t}')
    e(f's_add_u32 s{b+1}, s{b}, 82944')
    e(f's_mov_b32 s{S_W+2}, 2571264')
    e(f's_mov_b32 s{S_W+3}, 0x20000')
    e(f's_mov_b32 s{S_WO+3}, s{S_W+3}')
    e(f's_cmp_lg_u32 s{c}, 15')
    e(f's_cselect_b32 s{S_WO+2}, s{S_W+2}, 0')
    e(f's_mov_b32 m0, s{SCRB}')
    e('s_waitcnt lgkmcnt(0)')
    e(f's_mov_b32 s{S_W}, s6')
    e(f's_and_b32 s{S_W+1}, s7, 0xffff')
    e(f's_mov_b32 s{S_WO}, s6')
    e(f's_and_b32 s{S_WO+1}, s7, 0xffff')
    e(f's_cmp_ge_u32 s{NOTASK}, {NTASK}')
    e('s_cbranch_scc1 L_a3')
    def cond3(lbl):
        e(f's_cmp_lg_u32 s{HAS3}, 0')
        e(f's_cbranch_scc1 {lbl}')
    for ti, (vb, sw, vl, vs, so) in enumerate(T):
        if ti == 2: cond3('L_a3')
        if ti == 1: e('s_addk_i32 m0, 1024'); e('s_nop 0')
        e(f'buffer_load_dwordx4 v{vl}, {sr(S_W)}, s{b} offen lds')
        e('s_addk_i32 m0, 1024')
        e('s_nop 0')
        e(f'buffer_load_dwordx4 v{vl}, {sr(S_WO)}, s{b+1} offen lds')
        if ti == 1: e(f's_addk_i32 m0, {16384-3072}')
    e('L_a3:')
    stamp(1)
    e(f's_cmp_lg_u32 s{MODE}, 0')
    e('s_cbranch_scc1 L_a4')
    e(f's_load_dword s{TAG}, s[12:13], {NONCE}')
    e(f's_lshr_b32 s{EARLY}, 0x33, s{kp}')
    e(f's_and_b32 s{EARLY}, s{EARLY}, 1')
    e(f's_sub_u32 s{XK}, 2, s{EARLY}')
    e(f's_lshl_b32 s{t}, s{kp}, 1')
    e(f's_lshr_b32 s{YT}, {(3<<12)+(3<<14)+(3<<16)}, s{t}')
    e(f's_and_b32 s{YT}, s{YT}, 3')
    e(f's_lshr_b32 s{t}, s{kp}, 1')
    e(f's_cmp_ge_u32 s{RID}, {NPROD}')
    e(f's_cselect_b32 s{EARLY}, 0, s{EARLY}')
    e(f's_cselect_b32 s{XK}, 3, s{XK}')
    e(f's_cselect_b32 s{YT}, s{t}, s{YT}')
    e(f's_cmp_ge_u32 s{RID}, {NPROD+32}')
    e(f's_cselect_b32 s{XK}, 0, s{XK}')
    e(f's_cmp_ge_u32 s{RID}, {NTASK}')
    e(f's_cselect_b32 s{YT}, 0, s{YT}')
    if not o.b0early:
        e(f's_cmp_lg_u32 s{EARLY}, 0')
        e('s_cbranch_scc1 L_a4')
    e('s_barrier')
    e('L_a4:')
    jit()
    e(f's_mov_b32 s{MASK}, 0xffff0000')
    e(f's_mov_b32 s{NPOLL}, 0')
    srd(e, S_WS, 12, WS_REC)
    srd(e, S_DBG, 10, 256)
    e(f'v_mov_b32 v10, {CNT}')
    e(f'v_mov_b32 v20, {(256 - 18*NSTR) & 0xffffffff}')
    e(f'v_mov_b32 v26, {NSTR}')
    e('v_bfe_u32 v21, v1, 2, 2')
    e('v_lshlrev_b32 v21, 7, v21')
    e('v_and_b32 v22, 1, v1')
    e('v_lshl_add_u32 v21, v22, 6, v21')
    e('v_bfe_u32 v22, v1, 1, 1')
    e('v_lshl_add_u32 v21, v22, 3, v21')
    e('v_lshrrev_b32 v22, 4, v1')
    e('v_lshl_add_u32 v21, v22, 4, v21')
    e(f'v_add_u32 v21, s{SCRB}, v21')
    if o.yall: e('v_mov_b32 v62, v21')
    e('v_and_b32 v25, 15, v1')
    e('v_lshlrev_b32 v25, 4, v25')
    for (vb, sw, vl, vs, so) in T:
        e(f'v_lshl_add_u32 v8, s{sw}, 2, v22' if sw != TW2 else 'v_add_u32 v8, 32, v22')
        e('v_cmp_le_u32 vcc, 18, v8')
        e(f'v_mad_u32_u24 v{vs}, v8, v26, v25')
        e(f'v_add_u32 v9, v{vs}, v20')
        e(f'v_cndmask_b32 v{vs}, v{vs}, v9, vcc')
    if o.tagp:
        e(f's_cmp_eq_u32 s{WAVE}, 4')
        e(f's_cselect_b32 s{t}, 1, s{EARLY}')
        e(f's_cmp_lg_u32 s{t}, 0')
        e(f's_cselect_b32 s{t}, 4, -16')
        e(f'v_mov_b32 v9, s{t}')
        e('s_waitcnt lgkmcnt(0)')
        e('s_mov_b64 exec, 1')
        e(f'buffer_load_dword v27, v9, {sr(S_DBG)}, 0 offen sc1')
        e('s_mov_b64 exec, -1')
        e(f's_lshr_b32 s97, 0x33, s{kp}')
        e('s_and_b32 s97, s97, 1')
        e(f's_lshr_b32 s96, s{kp}, 2')
        e('s_lshl_b32 s96, s96, 4')
        e(f's_add_u32 s96, s96, s{c}')
        e('s_lshl_b32 s96, s96, 2')
        e(f's_and_b32 s{t}, s{kp}, 1')
        e(f's_add_u32 s96, s96, s{t}')
        e('s_lshl_b32 s96, s96, 9')
        e(f's_add_u32 s96, s96, {WOFF + 2*NSTEP*1024}')
    e(f's_lshr_b32 s{q}, s{kp}, 1')
    e(f's_and_b32 s{cc}, s{c}, 7')
    e(f's_lshr_b32 s{kk}, s{c}, 3')
    e(f's_and_b32 s{t}, s{kp}, 1')
    e(f's_cmp_eq_u32 s{kp}, 8')
    e(f's_cselect_b32 s{cc}, s{cc}, s{c}')
    e(f's_cselect_b32 s{kk}, s{kk}, s{t}')
    e(f's_lshl_b32 s{kk}, s{kk}, 9')
    e(f's_add_u32 s{kk}, s{kk}, {WOFF}')
    e(f's_lshl_b32 s{t}, s{q}, 4')
    e(f's_add_u32 s{b+2}, s{t}, s{cc}')
    e(f's_sub_u32 s{b+3}, s{b+2}, s{q}')
    e(f's_cmp_ge_u32 s{q}, 2')
    e(f's_cselect_b32 s{b+4}, 74, 0')
    e(f's_add_u32 s{b+4}, s{b+4}, s{b+2}')
    e(f's_cmp_lt_u32 s{cc}, 2')
    e(f's_cselect_b32 s{t}, 32, 136')
    e(f's_add_u32 s{t}, s{t}, s{cc}')
    e(f's_cmp_eq_u32 s{kp}, 8')
    e(f's_cselect_b32 s{b+4}, s{t}, s{b+4}')
    e(f's_add_u32 s{b+2}, s{b+2}, 34')
    e(f's_add_u32 s{b+3}, s{b+3}, 144')
    for k in (2, 3, 4):
        e(f's_lshl_b32 s{b+k}, s{b+k}, 10')
        e(f's_add_u32 s{b+k}, s{b+k}, s{kk}')
    e(f's_cmp_eq_u32 s{kp}, 8')
    e(f's_cselect_b32 s{t}, 1, 2')
    e(f's_cmp_eq_u32 s{c}, 15')
    e(f's_cselect_b32 s{b+5}, s{t}, 0')
    e(f's_lshl_b32 s46, s{WAVE}, 2')
    e(f's_add_u32 s46, s46, {CNT+16}')
    e('v_mov_b32 v55, s46')
    if o.tagp:
        e('s_waitcnt vmcnt(1)')
        stamp(2)
        e(f's_cmp_ge_u32 s{NOTASK}, {NTASK}')
        e('s_cbranch_scc1 L_x9')
    else:
        e('v_mov_b32 v27, 0')
        e('v_mov_b32 v9, 4')
        e('s_waitcnt vmcnt(0) lgkmcnt(0)')
        stamp(2)
        e(f's_cmp_lg_u32 s{WAVE}, 4')
        e('s_cbranch_scc1 L_a5')
        e('s_mov_b64 exec, 1')
        e(f'buffer_load_dword v27, v9, {sr(S_DBG)}, 0 offen sc1')
        e('s_mov_b64 exec, -1')
        e('L_a5:')
        e(f's_cmp_ge_u32 s{NOTASK}, {NTASK}')
        e('s_cbranch_scc1 L_x9')
    for (vb, sw, vl, vs, so) in T:
        for tap in range(2):
            for half in range(2):
                e(f'ds_read_b64_tr_b16 {vr(vb+4*tap+2*half,2)}, v21 offset:{so+1024*tap+512*half}')
    nlab = [0]
    def st01(vb, vs):
        nlab[0] += 1
        e(f'buffer_store_dwordx4 {vr(vb,4)}, v{vs}, {sr(S_WS)}, s{b+2} offen {o.stf}')
        e(f's_cmp_eq_u32 s{b+5}, 2')
        e(f's_cbranch_scc1 L_skip{nlab[0]}')
        e(f'buffer_store_dwordx4 {vr(vb+4,4)}, v{vs}, {sr(S_WS)}, s{b+3} offen {o.stf}')
        e(f'L_skip{nlab[0]}:')
    def st01all(lbl):
        st01(T[0][0], T[0][3]); st01(T[1][0], T[1][3])
        cond3(lbl)
        st01(T[2][0], T[2][3])
    def dosum(vb, tb, ob):
        for i in range(8):
            e(f'v_lshlrev_b32 v{tb+2*i}, 16, v{vb+i}')
            e(f'v_and_b32 v{tb+2*i+1}, s{MASK}, v{vb+i}')
        for i in range(4):
            e(f'v_pk_add_f32 {vr(tb+2*i,2)}, {vr(tb+2*i,2)}, {vr(tb+8+2*i,2)}')
        for i in range(4):
            e(f'v_cvt_pk_bf16_f32 v{ob+i}, v{tb+2*i}, v{tb+2*i+1}')
    def ldswait(off, cmp, operand, tag, slp):
        e(f'L_lw{tag}:')
        e(f'ds_read_b32 v11, v10 offset:{off}')
        e('s_waitcnt lgkmcnt(0)')
        e('v_and_b32 v11, 0xff, v11')
        e(f'v_cmp_{cmp}_u32 vcc, {operand}, v11')
        e('s_nop 4')
        e(f's_cbranch_vccnz L_lx{tag}')
        e(f's_sleep {slp}')
        e(f's_branch L_lw{tag}')
        e(f'L_lx{tag}:')
    SOR = lambda ti: (210 + 8 * ti) if o.tagp else (240 + 4 * ti)
    e(f's_or_b32 s46, s{EARLY}, s{MODE}')
    e(f's_cmp_eq_u32 s{XK}, 2')
    e('s_cselect_b32 s47, 1, s46')
    if o.xl: e('s_mov_b32 s46, s47')
    e('s_cmp_eq_u32 s47, 0')
    e('s_cbranch_scc1 L_x9')
    for ti, (vb, sw, vl, vs, so) in enumerate(T):
        if ti == 2: cond3('L_x3')
        e(f's_waitcnt lgkmcnt({8-4*ti})')
        dosum(vb, 64 + 16 * ti, SOR(ti))
        e('s_cmp_eq_u32 s46, 0')
        e(f's_cbranch_scc1 L_x5{ti}')
        if o.tagp:
            e('s_cmp_eq_u32 s97, 0')
            e(f's_cbranch_scc1 L_x6{ti}')
            if ti == 0:
                e('s_waitcnt vmcnt(0)')
                e('v_readfirstlane_b32 s48, v27')
                e(f's_add_u32 s49, s{TAG}, {TAGINC}')
                e('s_not_b32 s47, s49')
                e(f's_or_b32 s48, s48, s{MODE}')
                e('s_cselect_b32 s49, s47, s49')
            e(f'v_mov_b32 v{SOR(ti)-1}, s49')
            e(f'v_mov_b32 v{SOR(ti)+4}, s49')
            e(f'buffer_store_dwordx4 {vr(SOR(ti)-2,4)}, v{vs}, {sr(S_WS)}, s96 offen {o.stf}')
            e(f'buffer_store_dwordx4 {vr(SOR(ti)+2,4)}, v{vs}, {sr(S_WS)}, s96 offen offset:1024 {o.stf}')
            e(f's_branch L_x5{ti}')
            e(f'L_x6{ti}:')
        e(f'buffer_store_dwordx4 {vr(SOR(ti),4)}, v{vs}, {sr(S_WS)}, s{b+4} offen {o.stf}')
        e(f'L_x5{ti}:')
    e('L_x3:')
    e(f's_cmp_eq_u32 s{MODE}, 0')
    e('s_cbranch_scc1 L_x9')
    e('L_x2:')
    e('s_waitcnt lgkmcnt(0)')
    st01all('L_x4')
    e('L_x4:')
    e(f's_cmp_eq_u32 s{MODE}, 0')
    e('s_cbranch_scc1 L_x9')
    e('s_waitcnt vmcnt(0)')
    e(f's_add_u32 s{PAIR}, s{PAIR}, 1')
    e(f's_cmp_lt_u32 s{PAIR}, {NPROD}')
    e('s_cbranch_scc1 L_prod')
    e('v_mov_b32 v11, 1')
    e('ds_write_b32 v10, v11 offset:12')
    e('s_endpgm')
    e('L_x9:')
    jit()
    if o.tagp:
        e(f's_cmp_eq_u32 s{EARLY}, 0')
        e('s_cbranch_scc1 L_x10')
        e('s_barrier')
        e('L_x10:')
    stamp(3)
    decode()
    e('v_subrev_u32 v4, 256, v0')
    e('v_min_u32 v4, 251, v4')
    e('v_mul_u32_u24 v3, 3641, v4')
    e('v_lshrrev_b32 v3, 16, v3')
    e('v_mul_u32_u24 v2, 18, v3')
    e('v_sub_u32 v2, v4, v2')
    e(f'v_mul_u32_u24 v3, {R}, v3')
    e(f'v_min_u32 v3, {160-R}, v3')
    e('v_mul_u32_u24 v4, 1152, v3')
    e('v_lshl_add_u32 v4, v2, 4, v4')
    e(f'v_add_u32 v12, s{XB}, v4')
    e('v_mul_u32_u24 v18, 288, v3')
    e('v_lshl_add_u32 v18, v2, 4, v18')
    e(f'v_add_u32 v19, {X_D1}, v18')
    srd(e, S_X, 4, 1152000, add=BOFF)
    e(f's_add_u32 s46, s{TAG}, {TAGINC}')
    e('v_mov_b32 v56, s46')
    e(f's_lshl_b32 s46, s{RID}, 7')
    e('v_mov_b32 v58, s46')
    e(f's_add_u32 s46, s{PAIR}, {NPROD}')
    e('s_lshl_b32 s46, s46, 7')
    e('v_mov_b32 v59, s46')
    def publish(slot, vflag, tag, first, n=0):
        e('s_mov_b64 exec, 1')
        e(f's_waitcnt vmcnt({n})')
        if first: stamp(4)
        if o.padto and tag == 'x': stamp(12)
        e('v_cmp_ne_u32 vcc, 0, v27')
        e('v_not_b32 v57, v56')
        e('s_nop 0')
        e('v_cndmask_b32 v57, v56, v57, vcc')
        e(f'ds_write_b32 v55, v57 offset:{slot}')
        e(f'ds_read_b128 v[20:23], v10 offset:{32+slot}')
        e('s_waitcnt lgkmcnt(0)')
        for i in range(4): e(f'v_xor_b32 v{20+i}, v{20+i}, v56')
        e('v_or3_b32 v20, v20, v21, v22')
        e('v_or_b32 v20, v20, v23')
        e('v_cmp_eq_u32 vcc, 0, v20')
        e('s_and_b64 exec, exec, vcc')
        e(f's_cbranch_execz L_nl{tag}')
        e(f'buffer_store_dword v56, v{vflag}, {sr(S_WS)}, 0 offen sc1')
        e(f'L_nl{tag}:')
        e('s_mov_b64 exec, -1')
    if o.tagp and o.xl:
        e(f's_cmp_lg_u32 s{XK}, 2')
        e('s_cbranch_scc1 L_noflag')
        publish(0, 58, 'x', True)
        e(f's_mov_b32 s{XK}, 0')
    elif o.xl:
        e(f's_cmp_ge_u32 s{RID}, {NPROD}')
        e('s_cbranch_scc1 L_noflag')
        publish(0, 58, 'x', True)
        e(f's_mov_b32 s{XK}, 0')
        e(f's_cmp_eq_u32 s{EARLY}, 0')
        e('s_cbranch_scc1 L_noflag')
        if not o.b0early: e('s_barrier')
    elif not o.tagp:
        e(f's_cmp_eq_u32 s{EARLY}, 0')
        e('s_cbranch_scc1 L_noflag')
        publish(0, 58, 'x', True)
        if not o.b0early: e('s_barrier')
    e('L_noflag:')
    e(f's_setprio {o.hprio2}')
    RAW, ORAW = 64, 120
    EU = [184, 192]
    OU, DT, DO = 200, 208, 216
    xi = [0]
    NL = R + 1
    hq = []
    def eload():
        k = xi[0]
        if k >= NL: return
        a_ = 12
        if k:
            a_ = 13 + (k & 3)
            e(f'v_add_u32 v{a_}, {1152*k}, v12')
        e(f'buffer_load_dwordx4 {vr(RAW+4*k,4)}, v{a_}, {sr(S_X)}, 0 offen')
        xi[0] += 1
        hq.append(('e', k))
    if o.etouch:
        e(f's_cmp_lt_u32 s{RID}, {NTASK}')
        e('s_cbranch_scc1 L_net')
        e(f's_and_b32 s46, s{NB}, 1')
        e(f's_mul_i32 s46, s46, {1152*6}')
        e('v_add_u32 v12, s46, v12')
        for _ in range(7): eload()
        e('v_subrev_u32 v12, s46, v12')
        e('s_waitcnt vmcnt(0)')
        e('L_net:')
        xi[0] = 0; hq.clear()
    YA = 232
    e(f's_cmp_eq_u32 s{b+5}, 2')
    e('s_cselect_b32 s46, 0x80000000, 0')
    e(f's_cmp_lg_u32 s{HAS3}, 0')
    e('s_cselect_b32 s47, 0x80000000, 0')
    e('s_or_b32 s48, s46, s47')
    for i in range(6):
        m_ = {0: None, 1: 46, 2: None, 3: 46, 4: 47, 5: 48}[i]
        e(f'v_mov_b32 v{YA+i}, v{52+i//2}' if m_ is None else f'v_or_b32 v{YA+i}, s{m_}, v{52+i//2}')
    def ystore(i, a_):
        e(f'buffer_store_dwordx4 {vr(28+4*i,4)}, v{a_}, {sr(S_WS)}, s{b+2+(i&1)} offen {o.stf}')
        hq.append(('y', i))
    if o.yall:
        assert o.d0p
        e(f's_add_u32 s44, s{RID}, 76')
        e(f's_cmp_ge_u32 s44, {NWG}')
        e(f's_cselect_b32 s45, {NWG}, 0')
        e('s_sub_u32 s44, s44, s45')
        e(f's_add_u32 s46, s44, {NPROD + 32}')
        e('s_lshl_b32 s46, s46, 7')
        e('v_mov_b32 v59, s46')
        e('s_mul_hi_u32 s45, s44, 477218589')
        e('s_mul_i32 s46, s45, 9')
        e('s_sub_u32 s44, s44, s46')
        e(f's_lshr_b32 s{YT}, s45, 3')
        e(f's_add_u32 s{YT}, s{YT}, 1')
        e(f's_min_u32 s{YT}, s{YT}, 3')
        e('s_lshl_b32 s45, s45, 2')
        e(f's_add_u32 s45, s45, s{WAVE}')
        e('s_add_u32 s45, s45, 28')
        e('s_and_b32 s46, s45, 15')
        e('s_lshr_b32 s47, s45, 4')
        e('s_mul_i32 s54, s46, 165888')
        e('s_mul_i32 s48, s47, 9216')
        e('s_add_u32 s54, s54, s48')
        e('s_add_u32 s95, s54, 82944')
        e('s_cmp_lg_u32 s46, 15')
        e(f's_cselect_b32 s{S_WO+2}, 2571264, 0')
        e('s_cselect_b32 s51, 0, 0x80000000')
        e('s_lshr_b32 s48, s47, 1')
        e('s_and_b32 s49, s46, 7')
        e('s_lshr_b32 s50, s46, 3')
        e('s_and_b32 s45, s47, 1')
        e('s_cmp_eq_u32 s47, 8')
        e('s_cselect_b32 s49, s49, s46')
        e('s_cselect_b32 s50, s50, s45')
        e('s_cselect_b32 s51, 0, s51')
        e('s_lshl_b32 s50, s50, 9')
        e(f's_add_u32 s50, s50, {WOFF}')
        e('s_lshl_b32 s68, s48, 4')
        e('s_add_u32 s68, s68, s49')
        e('s_sub_u32 s69, s68, s48')
        e('s_add_u32 s68, s68, 34')
        e('s_add_u32 s69, s69, 144')
        for r_ in (68, 69):
            e(f's_lshl_b32 s{r_}, s{r_}, 10')
            e(f's_add_u32 s{r_}, s{r_}, s50')
        e('v_and_b32 v2, 3, v1')
        e('v_lshl_add_u32 v2, s44, 2, v2')
        e('v_lshrrev_b32 v3, 4, v1')
        e('v_lshl_add_u32 v3, s44, 2, v3')
        e('v_cmp_le_u32 vcc, 18, v2')
        e('v_cmp_le_u32 s[46:47], 18, v3')
        e('v_lshl_add_u32 v63, v2, 4, v24')
        e('v_mad_u32_u24 v60, v3, v26, v25')
        e('v_add_u32 v2, 4320, v63')
        e(f'v_add_u32 v3, {(256 - 18*NSTR) & 0xffffffff}, v60')
        e('v_cndmask_b32 v63, v63, v2, vcc')
        e('v_cndmask_b32 v60, v60, v3, s[46:47]')
        e('v_or_b32 v61, s51, v60')
    def ydma():
        if not o.yall: return
        e(f's_mov_b32 m0, s{SCRB}')
        e('s_nop 0')
        e(f'buffer_load_dwordx4 v63, {sr(S_W)}, s54 offen lds')
        e('s_addk_i32 m0, 1024')
        e('s_nop 0')
        e(f'buffer_load_dwordx4 v63, {sr(S_WO)}, s95 offen lds')
        hq.append('d0'); hq.append('d1')
    stamp(5)
    ldswait(8, 'eq', 4, 'o', 1)
    def unpack(dst, s_):
        for i in range(4):
            e(f'v_lshlrev_b32 v{dst+2*i}, 16, v{s_+i}')
            e(f'v_and_b32 v{dst+2*i+1}, s{MASK}, v{s_+i}')
    def unpackE(dst, k):
        e(f's_waitcnt vmcnt({len(hq)-1-hq.index(("e", k))})')
        unpack(dst, RAW + 4 * k)
        eload()
    def diff(eu, out):
        for i in range(8): e(f'v_sub_f32 v{DT+i}, v{eu+i}, v{OU+i}')
        for i in range(4):
            e(f'v_cvt_pk_bf16_f32 v{out+i}, v{DT+2*i}, v{DT+2*i+1}')
    def opengate():
        if not o.gate: return
        e('v_mov_b32 v11, 0x100')
        e('s_mov_b64 exec, 1')
        e('ds_add_u32 v10, v11 offset:8')
        e('s_mov_b64 exec, -1')
    def rows(hook):
        jit()
        stamp(6)
        for j in range(R):
            e(f'ds_read_b128 {vr(ORAW+4*j,4)}, v18 offset:{X_O+288*j}')
        unpackE(EU[0], 0)
        e('s_waitcnt lgkmcnt(0)')
        for j in range(R):
            o0 = DO + 8 * (j & 1)
            unpack(OU, ORAW + 4 * j)
            diff(EU[j & 1], o0)
            e(f'ds_write_b128 v18, {vr(o0,4)} offset:{X_D0+288*j}')
            unpackE(EU[(j + 1) & 1], j + 1)
            diff(EU[(j + 1) & 1], o0 + 4)
            e(f'ds_write_b128 v19, {vr(o0+4,4)} offset:{288*j}')
            hook(j)
    if o.apath:
        e(f's_cmp_ge_u32 s{RID}, {NPROD + (32 if o.d0p else 0)}')
        e('s_cbranch_scc1 L_pathA')
    e(f's_cmp_lt_u32 s{XK}, 2')
    e('s_cbranch_scc1 L_nox')
    if o.d0p:
        e(f's_cmp_eq_u32 s{XK}, 3')
        e('s_cbranch_scc1 L_xd')
    for i in range(3):
        e(f'buffer_store_dwordx4 {vr(SOR(i),4)}, v{YA+2*i}, {sr(S_WS)}, s{b+4} offen {o.stf}')
    if o.d0p:
        e('s_branch L_xe')
        e('L_xd:')
        for i in range(6): ystore(i, YA + i)
        e('L_xe:')
    if o.gearly:
        opengate()
        publish(0, 58, 'x2', True)
        e('s_branch L_nox2')
        e('L_nox:')
        opengate()
        e('L_nox2:')
    else:
        publish(0, 58, 'x2', True)
        e('L_nox:')
        opengate()
    hq.clear(); xi[0] = 0
    for _ in range(o.ein): eload()
    rows(lambda j: ydma() if j == o.ydrow else None)
    if o.apath:
        e('s_branch L_rowsdone')
        e('L_pathA:')
        if not o.d0p:
            e(f's_cmp_eq_u32 s{XK}, 3')
            e('s_cselect_b32 s47, 0, 0x80000000')
            for i in range(6): e(f'v_or_b32 v{20+i}, s47, v{YA+i}')
        hq.clear(); xi[0] = 0
        for _ in range(NL): eload()
        if not o.d0p:
            for i in range(6): ystore(i, 20 + i)
        def hookA(j):
            if j == o.grow + 1: ydma()
            if j == o.grow:
                e(f's_waitcnt vmcnt({len(hq)-1-hq.index(("e", NL-1))})')
                opengate()
            if j == o.xrow and not o.d0p:
                e(f's_cmp_lg_u32 s{XK}, 3')
                e('s_cbranch_scc1 L_xp')
                publish(0, 58, 'x3', True)
                e('L_xp:')
        rows(hookA)
    e('L_rowsdone:')
    e('s_waitcnt lgkmcnt(0)')
    stamp(7)
    e('v_mov_b32 v11, 1')
    e('s_mov_b64 exec, 1')
    e('ds_add_u32 v10, v11 offset:16')
    e('s_mov_b64 exec, -1')
    e(f's_cmp_eq_u32 s{YT}, 0')
    e('s_cbranch_scc1 L_noy')
    e(f's_setprio {o.yprio}')
    if o.yall:
        e('s_waitcnt vmcnt(0)')
        for tap in range(2):
            for half in range(2):
                e(f'ds_read_b64_tr_b16 {vr(28+4*tap+2*half,2)}, v62 offset:{1024*tap+512*half}')
    e('L_yw:')
    e('ds_read_b64 v[20:21], v10')
    e('s_waitcnt lgkmcnt(0)')
    e('v_lshrrev_b32 v21, 14, v21')
    e('v_and_b32 v21, -4, v21')
    e('v_or_b32 v20, v20, v21')
    e(f'v_cmp_le_u32 vcc, s{YT}, v20')
    e('s_nop 4')
    e('s_cbranch_vccnz L_yx')
    e('s_sleep 4')
    e('s_branch L_yw')
    e('L_yx:')
    jit()
    if o.yall:
        e(f'buffer_store_dwordx4 v[28:31], v60, {sr(S_WS)}, s68 offen {o.stf}')
        e(f'buffer_store_dwordx4 v[32:35], v61, {sr(S_WS)}, s69 offen {o.stf}')
    else:
      for i in range(6):
        ystore(i, YA + i)
        e(f's_waitcnt vmcnt({o.ythr})')
        if o.ysleep: e(f's_sleep {o.ysleep}')
    publish(16, 59, 'y', False)
    if o.diag == 1: stamp(8)
    e('L_noy:')
    e(f's_cmp_lg_u32 s{WAVE}, 4')
    e('s_cbranch_scc1 L_hend')
    e('L_guard:')
    e('ds_read_b32 v11, v10 offset:4')
    e('s_waitcnt lgkmcnt(0)')
    e('v_readfirstlane_b32 s46, v11')
    e('s_nop 3')
    e('s_cmp_eq_u32 s46, 4')
    e(f's_cbranch_scc1 {"L_wb" if o.wbat else "L_hend"}')
    e('s_cmp_lt_u32 s46, 0x10000')
    e('s_cbranch_scc0 L_rescue')
    e('s_sleep 16')
    e('s_branch L_guard')
    if o.wbat:
        e('L_wb:')
        e('s_lshr_b32 s46, s2, 3')
        e(f's_cmp_lg_u32 s46, 5')
        e('s_cbranch_scc1 L_hend')
        ldswait(0, 'eq', 4, 'w', 2)
        e('buffer_wbl2 sc1')
        e('s_waitcnt vmcnt(0)')
        e('s_branch L_hend')
    e('L_rescue:')
    e(f's_mov_b32 s{MODE}, 1')
    e(f's_mov_b32 s{HAS3}, 1')
    e(f's_mov_b32 s{NOTASK}, 0')
    e(f's_lshr_b32 s{TW0}, s{NB}, 1')
    e(f's_add_u32 s{TW1}, s{NB}, 9')
    e(f's_lshr_b32 s{TW1}, s{TW1}, 1')
    e(f's_mov_b32 s{PAIR}, 0')
    e('s_branch L_prod')
    e('L_hend:')
    if o.padto and o.padev[0] == 'h': padloop('h')
    if o.diag == 1:
        stamp(9)
        dump(10)
    e('L_end:')
    e('s_endpgm')
    if o.hfirst:
        m0, h0 = mark['main0'], mark['help0']
        e.L = e.L[:m0] + e.L[h0:] + ['.p2align 6'] + e.L[m0:h0]
    e('L_codeend:')
    e('.section .rodata,"a"')
    e('.p2align 6')
    e(f'.amdhsa_kernel {KN}')
    for x in ['next_free_vgpr 256', 'next_free_sgpr 102', 'accum_offset 256', 'group_segment_fixed_size 0', 'kernarg_size 40',
              'user_sgpr_count 2', 'user_sgpr_kernarg_segment_ptr 1', 'system_sgpr_workgroup_id_x 1']:
        e('  .amdhsa_' + x)
    e('.end_amdhsa_kernel')
    n = haz.check(e.L)
    if n: print(f'{n} hazards', file=sys.stderr)
    return f'; @launch grid=({NWG},1,1) block=(512,1,1) lds={LDS_BYTES}\n' + HEADER + e.text()

def opts(argv=None):
    ap = argparse.ArgumentParser()
    ap.add_argument('-o', default='k.s')
    for nm, d in [('diag', 0), ('pf', 16), ('pf0', 8), ('wgap', 4), ('wres', 4), ('wsc1', 0), ('nfill', 2), ('fstride', 128), ('sleep', 0), ('maxpoll', 3000), ('nopoll', 0),
                  ('hprio', 3), ('hprio2', 0), ('mprio', 2), ('epre', 0), ('ein', 7), ('dpre', 7), ('b0early', 0), ('mtouch', 1), ('gate', 1), ('swapab', 0), ('d0p', 1), ('map', 1), ('chain', 4), ('wbat', 0), ('jit', 0), ('apath', 1), ('rmap', 0), ('yall', 0), ('ydrow', 6), ('flat0', 0), ('flatzz', 0), ('tagp', 0), ('tpf', 5), ('xl', 0), ('p0plain', 0), ('onepoll', 0), ('epoll', 1), ('ppoll', 0), ('yprio', 3), ('ysleep', 0), ('vt', 94), ('tla', 40), ('tskip', 1), ('gearly', 1), ('chfrom', 8), ('oj', 9), ('nolds', 0), ('now', 0), ('wsame', 0), ('grow', 1), ('vbd', 33), ('nopk', 1), ('padto', 0), ('npdelay', 0), ('opre', 5), ('etouch', 0), ('orev', 1), ('b0late', 1), ('dec', 1), ('tail', 1), ('xla', 9), ('hold', 1), ('prest', 0), ('xslot', 0), ('noclosed', 0), ('cpf', 1), ('hfirst', 1), ('warmb', 1), ('wsfirst', 0), ('flead', 6), ('ythr', 6), ('xrow', 3), ('padstep', 33), ('probe', 0), ('probeoff', 0x4000000)]:
        ap.add_argument('--' + nm, type=int, default=d)
    ap.add_argument('--oflags', default='')
    ap.add_argument('--pmap', default='18,18,18,18,18,18,18,18')
    ap.add_argument('--padev', default='m0')
    ap.add_argument('--trig', default='10,25,40')
    ap.add_argument('--yrow', default='0,7,2,9,5,11')
    ap.add_argument('--pfcs', default='4,5,5,5,5')
    ap.add_argument('--fflags', default='')
    ap.add_argument('--fleads', default='6,6,6,6,6')
    ap.add_argument('--stf', default='sc1')
    ap.add_argument('--marks', default='0,4,8,12,16,24,33,47,58')
    o = ap.parse_args(argv)
    o.marks = [int(x) for x in o.marks.split(',')]
    o.yrow = [int(x) for x in o.yrow.split(',')]
    o.pfcs = [int(x) for x in o.pfcs.split(',')]
    o.fleads = [int(x) for x in o.fleads.split(',')]
    o.trig = [int(x) for x in o.trig.split(',')]
    return o

if __name__ == '__main__':
    o = opts()
    open(o.o, 'w').write(gen(o))
```

```python
import re, sys, argparse
import haz

KN = 'standalone__autoregressive_conv_wavernn__speech_kernel'
NWG = 252
NPROD = 144
ARR = 160 * 288
X_D0, X_O, X_D1 = 0, ARR, 2 * ARR
CNT = 3 * ARR
SCR = CNT + 64
LDS_BYTES = SCR + 18432
NSTEP = 106
WOFF = int(__import__('os').environ.get('WOFF', '0x100000'), 0)
NONCE = 0x10000
DIAG = 0x800000
WS_REC = max(0x1000000, WOFF + 0x400000, int(__import__('os').environ.get('WSREC', '0'), 0))
TAGINC = 0x9E3779B9
R = 12


HEADER = """; Gated dilated causal convolution, out = tanh(f) * sigmoid(g), h = [f g] = sum_i x[t + 2i - 60] w[i].
;
; A workgroup owns 144 output pairs x 16 output columns (f and g). Waves 0-3 run the matrix loop (two column tiles x
"""

class Em:
    def __init__(self): self.L = []
    def __call__(self, s): self.L.append(s)
    def text(self): return '\n'.join(self.L) + '\n'

def vr(a, n=1): return f'v{a}' if n == 1 else f'v[{a}:{a+n-1}]'
def sr(a, n=4): return f's[{a}:{a+n-1}]'

def streams():
    out = []
    for typ in (0, 1):
        S = []
        pid = [0]
        def add(arr, chunk, cs, acc):
            for c in cs: S.append((pid[0], arr, chunk, c, acc))
            pid[0] += 1
        if typ == 0:
            add('O', 0, range(16), 'P'); add('O', 1, range(16), 'P'); add('O', 'rem', range(0, 2), 'P')
            for q in range(4): add('D', q, range(16), 'Q')
            add('D', 'rem', range(8), 'Q')
        else:
            add('O', 2, range(16), 'P'); add('O', 3, range(16), 'P'); add('O', 'rem', range(2, 8), 'P')
            for q in range(4): add('D', q, range(15), 'Q')
            add('D', 'rem', range(8), 'Q')
        assert len(S) == NSTEP
        out.append(S)
    return out

S_X, S_W, S_WO, S_WS, S_OUT, S_DBG = 20, 24, 28, 32, 36, 40
WAVE, NB, BAT, PAR, MB, BOFF = 14, 15, 16, 17, 18, 19
PAIR0 = 3
XB = 52
MASK = 53
TW0, TW1, TW2, PAIR, HAS3, MODE, SCRB, TAG, LAST, NPOLL = 44, 45, 54, 55, 56, 57, 58, 59, 60, 61
TS = 62
TYP, WSO = 68, 69
EARLY, XK, YT, FIDX = 90, 91, 92, 93
NOTASK = 94
FO = 97
C2L, CNL, C60 = 90, 92, 94
ST0 = 70

def srd(e, d, ptr, rec, add=None):
    if add is None:
        e(f's_mov_b32 s{d}, s{ptr}')
        e(f's_and_b32 s{d+1}, s{ptr+1}, 0xffff')
    else:
        e(f's_add_u32 s{d}, s{ptr}, s{add}')
        e(f's_addc_u32 s{d+1}, s{ptr+1}, 0')
        e(f's_and_b32 s{d+1}, s{d+1}, 0xffff')
    e(f's_mov_b32 s{d+2}, {rec}')
    e(f's_mov_b32 s{d+3}, 0x20000')

def gen(o):
    e = Em()
    NSTR = 2 * NSTEP * 1024 + (65536 if o.tagp else 0)
    if o.tagp: o.epoll = 0
    NTASK = NPROD + (32 if o.yall else 96)
    role = ['m']
    jn = [0]
    def jit():
        if not o.jit: return
        jn[0] += 1
        k = jn[0]
        e(f's_mul_i32 s98, s2, {37 + 2 * k + o.jit * 10}')
        e(f's_mul_i32 s99, s{WAVE}, {11 + 6 * k + o.jit}')
        e('s_add_u32 s98, s98, s99')
        e('s_bitcmp1_b32 s98, 3')
        e(f's_cbranch_scc1 L_jit{k}')
        e(f's_sleep {30 + (k * 17 + o.jit * 5) % 90}')
        e(f'L_jit{k}:')
    def padloop(tag):
        e(f'L_pad{tag}:')
        e('s_memrealtime s[98:99]')
        e('s_waitcnt lgkmcnt(0)')
        e('s_sub_u32 s98, s98, s100')
        e(f's_cmp_lt_u32 s98, {o.padto}')
        e(f's_cbranch_scc1 L_pad{tag}')
    def stamp(k, lvl=1):
        if o.padto and lvl == 1 and o.padev == f'{role[0]}{k}':
            e('s_memrealtime s[100:101]'); e('s_waitcnt lgkmcnt(0)')
        if o.diag == lvl or (o.diag == 4 and lvl == 1): e(f's_memrealtime s[{ST0+2*k}:{ST0+2*k+1}]')
    def dump(nst):
        e('s_waitcnt lgkmcnt(0)')
        e('v_mov_b32 v250, 0')
        for k in range(nst): e(f'v_writelane_b32 v250, s{ST0+2*k}, {k}')
        e(f'v_writelane_b32 v250, s{NPOLL}, 13')
        e(f'v_writelane_b32 v250, s95, 12')
        e(f'v_writelane_b32 v250, s{3 if o.rmap else 2}, 14')
        e('s_getreg_b32 s46, hwreg(HW_REG_XCC_ID)')
        e('v_writelane_b32 v250, s46, 15')
        e(f's_lshl_b32 s46, s2, 3'); e(f's_add_u32 s46, s46, s{WAVE}'); e('s_lshl_b32 s46, s46, 6'); e(f's_add_u32 s46, s46, {DIAG}')
        e('v_lshl_add_u32 v251, v1, 2, s46')
        e('s_mov_b64 exec, 0xffff')
        e(f'buffer_store_dword v250, v251, {sr(S_WS)}, 0 offen')
        e('s_mov_b64 exec, -1')

    e('.amdgcn_target "amdgcn-amd-amdhsa--gfx950"')
    e('.text')
    e(f'.globl {KN}')
    e('.p2align 8')
    e(f'.type {KN},@function')
    e(f'{KN}:')
    e(f's_cmp_ge_u32 s2, {NWG}')
    e('s_cbranch_scc1 L_end')
    stamp(0)
    if o.padto and o.padev != 'm0': e('s_memrealtime s[100:101]')
    e('s_load_dwordx4 s[4:7], s[0:1], 0')
    e('s_load_dwordx4 s[8:11], s[0:1], 16')
    e('s_load_dwordx2 s[12:13], s[0:1], 32')
    e('v_lshrrev_b32 v2, 6, v0')
    e('v_and_b32 v1, 63, v0')
    e(f'v_readfirstlane_b32 s{WAVE}, v2')
    def decode():
        e('s_and_b32 s44, s2, 7')
        e('s_lshr_b32 s45, s2, 3')
        e('s_mul_i32 s46, s44, 31')
        e('s_min_u32 s44, s44, 4')
        e('s_add_u32 s46, s46, s44')
        e('s_add_u32 s46, s46, s45')
        if o.map == 0:
            e('s_mul_hi_u32 s47, s46, 68174085')
            e('s_mul_i32 s48, s47, 63')
            e('s_sub_u32 s48, s46, s48')
            e(f's_mul_hi_u32 s{NB}, s48, 613566757')
            e(f's_mul_i32 s49, s{NB}, 7')
            e('s_sub_u32 s49, s48, s49')
            e('s_mul_i32 s47, s47, 7')
            e('s_add_u32 s47, s47, s49')
        elif o.map == 1:
            e('s_mul_hi_u32 s47, s46, 477218589')
            e('s_mul_i32 s48, s47, 9')
            e(f's_sub_u32 s{NB}, s46, s48')
        else:
            e('s_mul_hi_u32 s47, s46, 34087043')
            e('s_mul_i32 s48, s47, 126')
            e('s_sub_u32 s48, s46, s48')
            e(f's_mul_hi_u32 s{NB}, s48, 306783379')
            e(f's_mul_i32 s49, s{NB}, 14')
            e('s_sub_u32 s49, s48, s49')
            e('s_mul_i32 s47, s47, 14')
            e('s_add_u32 s47, s47, s49')
        e(f's_and_b32 s{PAR}, s47, 1')
        e('s_lshr_b32 s47, s47, 1')
        e('s_cmp_ge_u32 s47, 7')
        e(f's_cselect_b32 s{BOFF}, 1152000, 0')
        e('s_cselect_b32 s48, 7, 0')
        e(f's_sub_u32 s{MB}, s47, s48')
        e(f's_mul_i32 s{XB}, s{MB}, 576')
        e(f's_add_u32 s{XB}, s{XB}, s{PAR}')
        e(f's_sub_u32 s{XB}, s{XB}, 60')
        e(f's_mul_i32 s{XB}, s{XB}, 288')
    RID = 3 if o.rmap else 2
    if o.rmap:
        e('s_and_b32 s44, s2, 3')
        e('s_lshr_b32 s45, s2, 3')
        e('s_lshl2_add_u32 s3, s45, s44')
        e('s_and_b32 s44, s2, 4')
        e('s_lshl_b32 s44, s44, 5')
        e('s_add_u32 s3, s3, s44')
    e(f's_cmp_ge_u32 s{WAVE}, 4')
    e('s_cbranch_scc1 L_helper')
    if o.cpf:
        e('s_lshr_b32 s44, s2, 3')
        e(f's_lshl_b32 s45, s{WAVE}, 5')
        e('s_add_u32 s44, s44, s45')
        e('s_sub_u32 s44, s44, 26')
        e('s_cmp_ge_u32 s44, 5')
        e('s_cbranch_scc1 L_main')
        e('s_getpc_b64 s[46:47]')
        e('L_pc:')
        e('s_lshl_b32 s44, s44, 13')
        e('v_lshl_add_u32 v2, v1, 7, s44')
        e('v_min_u32 v2, L_codeend-L_pc-4, v2')
        e('global_load_dword v63, v2, s[46:47]')
    if o.hfirst: e('s_branch L_main')
    mark = {'main0': len(e.L)}
    e('L_main:')
    e(f's_mov_b32 s{MASK}, 0xffff0000')
    e(f's_mov_b32 s{NPOLL}, 0')
    if o.diag: e('s_mov_b32 s95, 0')
    decode()

    VXO, VXOR, VXD, VXDR, VWL, VEX, VEXP, VOUT = 30, 31, 32, 33, 34, 35, 36, 37
    VF = 40
    VA = 48
    VCL = 60
    e('v_mul_u32_u24 v3, 3641, v0')
    e('v_lshrrev_b32 v3, 16, v3')
    e('v_mul_u32_u24 v2, 18, v3')
    e('v_sub_u32 v2, v0, v2')
    e('v_mul_u32_u24 v3, 1152, v3')
    e('v_lshl_add_u32 v3, v2, 4, v3')
    e(f's_add_u32 s46, s{XB}, 576')
    e(f'v_add_u32 v{VA}, s46, v3')
    e('v_mov_b32 v5, 16192')
    e('v_mov_b32 v6, 17056')
    for k in range(1, 12):
        e('v_cmp_le_u32 vcc, 14, v2')
        e('v_add_u32 v3, 4, v2')
        e('v_subrev_u32 v4, 14, v2')
        e('v_cndmask_b32 v7, v5, v6, vcc')
        e('v_cndmask_b32 v2, v3, v4, vcc')
        e(f'v_add_u32 v{VA+k}, v{VA+k-1}, v7')
    e(f's_lshl_b32 s50, s{WAVE}, 10')
    e(f's_add_u32 s50, s50, {X_O}')
    e(f's_add_u32 s51, s50, {4096*11}')
    e('s_movk_i32 s49, 4096')
    if o.orev:
        e(f's_bitcmp0_b32 s{NB}, 0')
        e('s_cbranch_scc1 L_fwd')
        for k in range(5): e(f'v_swap_b32 v{VA+k}, v{VA+10-k}')
        e(f's_add_u32 s50, s50, {4096*10}')
        e('s_movk_i32 s49, -4096')
        e('L_fwd:')
    e(f'v_mov_b32 v{VF+1}, {CNT}')
    for r in range(4, 8): e(f'v_mov_b32 v{r}, 0')
    e(f'ds_write_b128 v{VF+1}, v[4:7]')
    e(f'ds_write_b128 v{VF+1}, v[4:7] offset:16')
    e('s_waitcnt lgkmcnt(0)')
    e(f's_load_dword s{TAG}, s[12:13], {NONCE}')
    srd(e, S_X, 4, 1152000, add=BOFF)
    def odma(k):
        e(f's_mov_b32 m0, s{51 if k == 11 else 50}')
        e('s_add_u32 s50, s50, s49')
        e(f'buffer_load_dwordx4 v{VA+k}, {sr(S_X)}, 0 offen lds')
    def etouch():
        e(f'buffer_load_dword v62, v9, {sr(S_X)}, 0 offen')
    if o.mtouch and o.tskip:
        e(f's_lshr_b32 s47, s{RID}, 4')
        e('s_lshr_b32 s47, 0x33, s47')
        e('s_lshl_b32 s47, s47, 31')
    if o.mtouch:
        e('v_min_u32 v8, 39, v1')
        e('v_lshrrev_b32 v9, 2, v8')
        e(f's_mul_i32 s46, s{WAVE}, 10')
        e('v_add_u32 v9, s46, v9')
        e(f'v_mul_u32_u24 v9, {4*1152}, v9')
        e('v_and_b32 v8, 3, v8')
        e('v_mul_u32_u24 v8, 92, v8')
        e(f's_and_b32 s46, s{NB}, {7 if o.mtouch == 4 else 3}')
        e(f's_mul_i32 s46, s46, {576 if o.mtouch == 4 else 1152}')
        e(f's_add_u32 s46, s46, s{XB}')
        e('v_add3_u32 v9, v9, v8, s46')
        if o.tskip == 1: e('v_or_b32 v9, s47, v9')
    if o.mtouch == 4 and o.tskip == 2:
        e('s_cmp_eq_u32 s47, 0')
        e('s_cbranch_scc1 L_tn')
        e('s_waitcnt lgkmcnt(0)')
        e('L_tn:')
    if o.mtouch in (2, 4): etouch()
    if o.padto and o.padev == 'm13':
        e('s_waitcnt vmcnt(0)'); stamp(13)
    if o.padto and o.padev == 'm14':
        odma(0); e('s_sub_u32 s50, s50, s49'); e('s_waitcnt vmcnt(0)'); stamp(14)
    if o.padto: stamp(10)
    for k in range(o.opre): odma(k)
    e('s_barrier')
    stamp(1)
    jit()
    if o.mtouch == 3: etouch()
    for k in range(o.opre, 12):
        if k == 11:
            e(f's_cmp_lg_u32 s{WAVE}, 0')
            e('s_cbranch_scc1 L_o11')
        odma(k)
    e('L_o11:')
    if o.mtouch == 1: etouch()
    srd(e, S_WS, 12, WS_REC)
    if o.epoll:
        assert o.mtouch in (1, 4) and o.tskip
        e(f's_and_b32 s{TYP}, s{WAVE}, 1')
        e(f's_lshl_b32 s{FO}, s{TYP}, 13')
        e('s_mov_b32 s96, s47')
        e('s_xor_b32 s46, s47, 0x80000000')
        e(f'v_min_u32 v{VF}, 31, v1')
        e(f'v_lshlrev_b32 v{VF}, 7, v{VF}')
        e(f'v_or_b32 v2, s46, v{VF}')
        e(f'buffer_load_dword v{VF+4}, v2, {sr(S_WS)}, s{FO} offen sc1')
    srd(e, S_OUT, 8, 1152000, add=BOFF)
    srd(e, S_DBG, 10, 256)
    e('v_and_b32 v2, 15, v1')
    e('v_lshrrev_b32 v3, 4, v1')
    e('v_subrev_u32 v5, 4, v2')
    e('v_add_u32 v6, 8, v2')
    e('v_cmp_gt_u32 vcc, 4, v2')
    e('v_cmp_le_u32 s[46:47], 12, v2')
    e(f's_and_b32 s{TYP}, s{WAVE}, 1')
    e(f's_lshr_b32 s48, s{WAVE}, 1')
    e('v_cndmask_b32 v5, v5, v6, vcc')
    e('v_cndmask_b32 v5, v5, v2, s[46:47]')
    e('v_mul_u32_u24 v5, 9, v5')
    e('v_mul_u32_u24 v4, 288, v5')
    e('v_lshl_add_u32 v6, v3, 4, v4')
    e('v_and_b32 v7, 1, v3')
    e('v_lshl_add_u32 v7, v7, 4, v4')
    e('v_lshrrev_b32 v8, 1, v3')
    e('v_mul_u32_u24 v8, 2304, v8')
    e('v_add_u32 v7, v7, v8')
    e('v_add_u32 v7, 256, v7')
    e(f's_mul_i32 s49, s{TYP}, {X_D1}')
    e(f'v_add_u32 v{VXO}, {X_O}, v6')
    e(f'v_add_u32 v{VXOR}, {X_O}, v7')
    e(f'v_add_u32 v{VXD}, s49, v6')
    e(f'v_add_u32 v{VXDR}, s49, v7')
    e('v_lshlrev_b32 v6, 4, v1')
    e(f's_mul_i32 s49, s{WAVE}, 9216')
    e(f's_add_u32 s49, s49, {X_O}')
    e(f'v_add_u32 v{VEX}, s49, v6')
    e(f's_xor_b32 s49, s{WAVE}, 1')
    e('s_mul_i32 s49, s49, 9216')
    e(f's_add_u32 s49, s49, {X_O}')
    e(f'v_add_u32 v{VEXP}, s49, v6')
    e('v_and_b32 v8, 0x39, v1')
    e('v_bfe_u32 v9, v1, 1, 1')
    e('v_lshl_add_u32 v8, v9, 2, v8')
    e('v_bfe_u32 v9, v1, 2, 1')
    e('v_lshl_add_u32 v8, v9, 1, v8')
    e(f'v_lshlrev_b32 v{VWL}, 4, v8')
    e(f's_mul_i32 s49, s{TYP}, 576')
    e(f's_add_u32 s49, s49, s{XB}')
    e(f's_add_u32 s49, s49, {60*288}')
    e(f's_lshl_b32 s50, s{NB}, 5')
    e('s_add_u32 s49, s49, s50')
    e('s_lshl_b32 s50, s48, 4')
    e('s_add_u32 s49, s49, s50')
    e('v_mul_u32_u24 v8, 1152, v5')
    e('v_lshl_add_u32 v8, v3, 2, v8')
    e(f'v_add_u32 v{VOUT}, s49, v8')
    e(f'v_add_u32 v{VOUT+1}, 3456, v{VOUT}')
    e(f'v_add_u32 v{VOUT+2}, 6912, v{VOUT}')
    e(f's_lshl_b32 s49, s{NB}, 1')
    e('s_add_u32 s49, s49, s48')
    e(f's_mul_i32 s49, s49, {NSTR}')
    e(f's_mul_i32 s{WSO}, s{TYP}, {NSTEP*1024}')
    e(f's_add_u32 s{WSO}, s{WSO}, s49')
    e(f's_add_u32 s{WSO}, s{WSO}, {WOFF + (16384 if o.tagp else 0)}')
    if o.tagp:
        e(f's_lshl_b32 s96, s{TYP}, 15')
        e('s_add_u32 s96, s96, s49')
        e(f's_add_u32 s96, s96, {WOFF + 2*NSTEP*1024}')
    e(f's_mov_b32 s{C2L}, 0x4038aa3b'); e(f's_mov_b32 s{C2L+1}, 0x4038aa3b')
    e(f's_mov_b32 s{CNL}, 0xbfb8aa3b'); e(f's_mov_b32 s{CNL+1}, 0xbfb8aa3b')
    e(f's_mov_b32 s{C60}, 0x42700000')
    e(f'v_min_u32 v{VF}, 31, v1')
    e(f'v_lshlrev_b32 v{VF}, 7, v{VF}')
    e(f'v_min_u32 v{VF+6}, 47, v1')
    e(f'v_lshlrev_b32 v{VF+6}, 7, v{VF+6}')
    e(f'v_mov_b32 v{VF+2}, 1')
    e('s_lshl_b32 s46, s48, 2')
    e(f'v_add_u32 v{VF+5}, s46, v{VF+1}')
    e(f's_or_b32 s46, s2, s{WAVE}')
    e('v_or_b32 v2, s46, v1')
    e('v_cmp_eq_u32 vcc, 0, v2')
    e(f'v_mov_b32 v{VCL}, -16')
    e(f'v_mov_b32 v{VCL+1}, -16')
    e(f'v_mov_b32 v3, {NONCE}')
    e(f'v_cndmask_b32 v{VCL}, v{VCL}, 4, vcc')
    e(f'v_cndmask_b32 v{VCL+1}, v{VCL+1}, v3, vcc')
    if o.yall:
        e(f's_lshr_b32 s46, s{NB}, 1')
        e(f's_add_u32 s47, s{NB}, 9')
        e('s_lshr_b32 s47, s47, 1')
        e('v_mov_b32 v4, s46')
        e('v_mov_b32 v5, s47')
        e('v_cmp_gt_u32 vcc, 32, v1')
        e('v_and_b32 v2, 7, v1')
        e('v_and_b32 v3, 15, v1')
        e('v_cndmask_b32 v4, v5, v4, vcc')
        e('v_min_u32 v3, 11, v3')
        e('v_mad_u32_u24 v2, v2, 9, v4')
        e('v_mad_u32_u24 v3, v3, 9, v4')
        e('v_lshlrev_b32 v2, 7, v2')
        e('v_lshlrev_b32 v3, 7, v3')
    e(f's_lshl_b32 s{FO}, s{TYP}, 13')
    if o.warmb:
        e(f's_cmp_eq_u32 s{TYP}, 1')
        e('s_cbranch_scc1 L_warmB')
        e('L_warmret:')
    e(f's_waitcnt vmcnt({(1 if o.mtouch == 1 else 0) + o.epoll}) lgkmcnt(0)')
    stamp(2)
    if o.padto and o.padev in ('m11', 'm12'):
        e(f's_lshr_b32 s46, s{RID}, 4')
        e('s_lshr_b32 s46, 0x33, s46')
        e('s_bitcmp1_b32 s46, 0')
        e(f's_cbranch_scc{1 if o.padev == "m11" else 0} L_pk')
        e('s_memrealtime s[100:101]'); e('s_waitcnt lgkmcnt(0)')
        e('L_pk:')
    e('s_mov_b64 exec, 1')
    e(f'ds_add_u32 v{VF+1}, v{VF+2} offset:8')
    e('s_mov_b64 exec, -1')
    e(f's_add_u32 s{TAG}, s{TAG}, {TAGINC}')
    e(f'v_mov_b32 v{VF+3}, s{TAG}')
    def flagwait(tag, vaddr, back):
        e(f'L_fw{tag}:')
        if o.diag and len(tag) == 2: e(f's_add_u32 s95, s95, {1 << (5 * int(tag[1]))}')
        e(f'buffer_load_dword v{VF+4}, v{vaddr}, {sr(S_WS)}, s{FO} offen sc1')
        e(f'ds_read_b32 v{VF+7}, v{VF+1} offset:12')
        e(f's_add_u32 s{NPOLL}, s{NPOLL}, 1')
        e('s_waitcnt vmcnt(0) lgkmcnt(0)')
        e(f'v_cmp_ne_u32 vcc, v{VF+3}, v{VF+4}')
        e(f'v_readfirstlane_b32 s46, v{VF+7}')
        e('s_nop 3')
        e(f's_cbranch_vccz {back}')
        e('s_cmp_lg_u32 s46, 0')
        e(f's_cbranch_scc1 {back}')
        e(f's_cmp_lg_u32 s{NPOLL}, {o.maxpoll}')
        e(f's_cbranch_scc1 L_fw{tag}')
        e(f'v_mov_b32 v{VF+7}, 0x10000')
        e('s_mov_b64 exec, 1')
        e(f'ds_add_u32 v{VF+1}, v{VF+7} offset:4')
        e('s_mov_b64 exec, -1')
        e(f's_branch L_fw{tag}')
    if o.epoll:
        e('s_cmp_eq_u32 s96, 0')
        e('s_cbranch_scc1 L_gate')
        e('s_waitcnt vmcnt(0)')
        e(f'v_cmp_ne_u32 vcc, v{VF+3}, v{VF+4}')
        e('s_nop 4')
        e('s_cbranch_vccz L_go')
    if o.gate:
        e('L_gate:')
        e(f'ds_read_b32 v{VF+4}, v{VF+1} offset:8')
        e('s_waitcnt lgkmcnt(0)')
        e(f'v_and_b32 v{VF+4}, 0xffff, v{VF+4}')
        e(f'v_cmp_gt_u32 vcc, 0x400, v{VF+4}')
        e('s_nop 4')
        e('s_cbranch_vccz L_gate2')
        e('s_sleep 1')
        e('s_branch L_gate')
        e('L_gate2:')
    if o.ppoll:
        e(f'buffer_load_dword v{VF+4}, v{VF}, {sr(S_WS)}, s{FO} offen sc1')
        e('L_pp:')
        for a_, b_ in ((VF + 4, 62), (62, VF + 4)):
            e(f's_sleep {o.ppoll}')
            e(f'buffer_load_dword v{b_}, v{VF}, {sr(S_WS)}, s{FO} offen sc1')
            e('s_waitcnt vmcnt(1)')
            e(f'v_cmp_ne_u32 vcc, v{VF+3}, v{a_}')
            e(f's_add_u32 s{NPOLL}, s{NPOLL}, 1')
            e('s_nop 3')
            e('s_cbranch_vccz L_go')
        e(f's_cmp_lt_u32 s{NPOLL}, 40')
        e('s_cbranch_scc1 L_pp')
        e(f's_mov_b32 s{NPOLL}, 0')
    if o.p0plain:
        e(f'buffer_load_dword v{VF+4}, v{VF}, {sr(S_WS)}, s{FO} offen')
        e('s_waitcnt vmcnt(0)')
        e(f'v_cmp_ne_u32 vcc, v{VF+3}, v{VF+4}')
        e('s_nop 4')
        e('s_cbranch_vccz L_go')
    if o.onepoll:
        e(f's_cmp_lt_u32 s{WAVE}, 2')
        e('s_cbranch_scc1 L_fw0')
        e('L_op:')
        e(f'ds_read_b32 v{VF+7}, v{VF+1} offset:8')
        e('s_waitcnt lgkmcnt(0)')
        e(f's_add_u32 s46, s{TYP}, 16')
        e(f'v_lshrrev_b32 v{VF+7}, s46, v{VF+7}')
        e(f'v_and_b32 v{VF+7}, 1, v{VF+7}')
        e(f'v_cmp_eq_u32 vcc, 0, v{VF+7}')
        e('s_nop 4')
        e('s_cbranch_vccnz L_op')
        e('s_branch L_go2')
    if not o.tagp: flagwait('0', VF, 'L_go')
    e('L_go:')
    jit()
    if o.tagp: e('s_mov_b32 s50, s96')
    if o.onepoll:
        e(f's_lshl_b32 s46, 0x10000, s{TYP}')
        e(f'v_mov_b32 v{VF+7}, s46')
        e('s_mov_b64 exec, 1')
        e(f'ds_or_b32 v{VF+1}, v{VF+7} offset:8')
        e('s_mov_b64 exec, -1')
        e('L_go2:')
    stamp(3)
    e('L_gw:')
    e(f'ds_read_b32 v{VF+7}, v{VF+1} offset:8')
    e('s_waitcnt lgkmcnt(0)')
    e(f'v_and_b32 v{VF+7}, 0xff, v{VF+7}')
    e(f'v_cmp_ne_u32 vcc, 4, v{VF+7}')
    e('s_nop 4')
    e('s_cbranch_vccnz L_gw')
    stamp(4)
    e(f's_setprio {o.mprio}')
    e(f's_cmp_eq_u32 s{TYP}, 1')
    e('s_cbranch_scc1 L_typeB')

    ACC = {'P': 64, 'Q': 100}
    WR, TMP = 136, 224
    XRING = [200 + 4 * i for i in range(6)]
    XWIN = [4 + 4 * i for i in range(6)] + [240 + 4 * i for i in range(4)]
    VC = 28
    PF = o.pf
    GT = 98
    wflags = {0: '', 1: ' sc1', 2: ' nt', 3: ' sc0'}[o.wsc1]
    for typ, S in enumerate(streams()):
        if typ == 1:
            e('.p2align 6')
            if o.warmb: e('L_warmB:'); e('s_branch L_warmret')
            e('L_typeB:')
        ops = []
        vstart = {}
        lastv = o.vt - 1
        v0 = 0
        G0 = 0
        if o.flat0:
            for g in range(16):
                vstart[g] = len(ops)
                for j in (range(9) if g % 2 == 0 or not o.flatzz else range(8, -1, -1)): ops.append((g, j))
            v0 = G0 = 16
        while v0 <= lastv:
            ch = 1 if v0 < o.chfrom + G0 else min(o.chain, lastv + 1 - v0)
            n0 = len(ops)
            for j in range(8, -1, -1):
                us = range(ch) if j % 2 == 0 else range(ch - 1, -1, -1)
                first_ = [u for u in us if v0 + u - j == 0 or (0 < v0 + u - j < NSTEP and S[v0+u-j][4] == 'Q' and S[v0+u-j-1][4] == 'P')]
                if first_: us = range(ch)
                for u in us:
                    if G0 <= v0 + u - j < NSTEP: ops.append((v0 + u - j, j))
            for u in range(ch): vstart[v0 + u] = n0 + (len(ops) - n0) * u // ch
            v0 += ch
        ntail = len(ops)
        if o.tail:
            for j in range(9):
                for g in range(o.vt - j, NSTEP): ops.append((g, j))
        assert len(ops) == NSTEP * 9 and len(set(ops)) == len(ops)
        N = len(ops)
        def key(n):
            g, j = ops[n]
            pid, arr, ch, c, acc = S[g]
            k = (pid, arr, ch, c + j)
            if n >= ntail and g < GT: k = k + ((n,) if not o.hold else ('h',))
            return k
        first, last = {}, {}
        for n in range(N):
            first.setdefault(key(n), n); last[key(n)] = n
        wfirst, wlast = {}, {}
        for n, (g, j) in enumerate(ops):
            wfirst.setdefault(g, n); wlast[g] = n
        tasks = []
        for k, n0 in first.items():
            win = o.tail and k[2] == 'rem' and k[1] == 'D'
            la = o.xla if n0 < ntail else 6
            if n0 >= ntail and ops[n0][1] == 0: la = o.tla
            elif win: la = 12
            tasks.append([n0 - la, n0 - 1, 'X', k])
        for g in range(NSTEP):
            rel = -100 + g if g < o.pf0 else max(0, wfirst[g] - 9 * PF)
            if o.tagp and g < 16:
                rel = -100 + g if g < 4 else max(0, wfirst[g] - 9 * o.tpf)
                tasks.append([rel, wfirst[g & ~1] - 9, 'W', g])
                continue
            tasks.append([rel, wfirst[g] - 1, 'W', g])
        def at(v, off=0): return vstart[v] + off
        firstD = min(n for n in range(N) if S[ops[n][0]][1] == 'D')
        lastO = max(n for n in range(N) if S[ops[n][0]][1] == 'O')
        lastP = {j: max(n for n in range(N) if ops[n][1] == j and S[ops[n][0]][4] == 'P') for j in range(9)}
        slow = []
        vused = set()
        def check(v, off, cnt, tag):
            tasks.append([at(v - 1, 3), at(v - 1, 8), 'L', (f'ds_read_b32 v{VC}, v{VF+1} offset:{off}', ('c', tag))])
            tasks.append([at(v, 0), at(v, 1), 'C', (f'v_cmp_ne_u32 vcc, {cnt}, v{VC}', ('c', tag))])
            tasks.append([at(v, 6), at(v, 7), 'I', [f's_cbranch_vccnz L_slow{typ}{tag}', f'L_back{typ}{tag}:']])
            slow.append((tag, off, cnt))
            vused.add(v)
            return at(v, 8)
        def add1(pos, off):
            tasks.append([pos, pos + 4, 'A', off])
        vD = [v for v in vstart if vstart[v] <= firstD - o.xla][-1] - 1
        okD = check(vD, 16, 4, 'D')
        assert okD <= firstD - o.xla
        add1(lastO, 20)
        VP = 47
        okR = check(VP, 20, 4, 'R')
        for j in range(9):
            assert lastP[j] + 12 < at(VP + 1 + j, 2)
            tasks.append([at(VP + 1 + j, 2), at(VP + 1 + j, 8), 'L', (f'ds_write_b128 v{VEX}, {vr(ACC["P"]+4*j,4)} offset:{1024*j}', ('pw', j))])
        tasks.append([at(VP + 10, 0), at(VP + 10, 4), 'A', 'pair'])
        VQ = VP + 13
        okP = check(VQ, 'pair', 2, 'P')
        for j in range(9):
            tasks.append([at(VQ + 1 + j, 2), at(VQ + 1 + j, 8), 'L', (f'ds_read_b128 {vr(TMP+4*(j&1),4)}, v{VEXP} offset:{1024*j}', ('pr', j))])
            v = VQ + 2 + j
            pos = at(v, 8 - (j + 2) - 1) if j <= 6 else at(v, 8 - (j - 7) - 1)
            sh = 1 if j >= 7 else 0
            if o.chain > 1:
                own = [n for n in range(N) if ops[n][1] == j]
                pos = [a_ + 10 for a_, b_ in zip(own, own[1:]) if b_ - a_ >= 14 and a_ + 9 >= at(v, 0) ][0]
                sh = 0
                tasks[-1][0] = pos - 9; tasks[-1][1] = pos - 4
                tasks[-1][3] = (f'ds_read_b128 {vr(TMP+4*(j&3),4)}, v{VEXP} offset:{1024*j}', ('pr', j))
            tasks.append([pos - 1 + sh, pos - 1 + sh, 'Q', (j, 0)])
            tasks.append([pos + sh, pos + sh, 'Q', (j, 1)])
        if typ == 0:
            tasks.append([at(64, 4), at(64, 8), 'S', f'buffer_store_dword v{VCL+1}, v{VCL}, {sr(S_DBG)}, 0 offen sc1'])
            tasks.append([at(84, 4), at(84, 8), 'S', f'buffer_store_dword v{VF+3}, v{VCL+1}, {sr(S_WS)}, 0 offen sc1'])
        fslow = []
        kslow = []
        if o.tagp:
            for g in range(0, 16, 2):
                n0 = wfirst[g]
                if g < 4: continue
                tasks.append([n0 - 8, n0 - 7, 'K', g])
                tasks.append([n0 - 2, n0 - 1, 'I', ['s_cmp_lg_u64 s[48:49], 0', f's_cbranch_scc1 L_ks{typ}{g}', f'L_kb{typ}{g}:']])
        passes = {}
        for g in range(NSTEP): passes.setdefault(S[g][0], g)
        need = [(passes[1], VF, 32 + 64 * typ), (32, VF + 6, 128), (passes[4], VF, 176), (passes[5], VF, 208), (passes[6], VF + 6, 240)]
        if o.yall: need[2:] = [(passes[4], 2, 176), (passes[5], 2, 176 + 72), (passes[6], 3, 176 + 144)]
        for ci, (gn, va, idx) in enumerate(need):
            v = gn - o.pfcs[ci] - 1
            while v in vused: v -= 1
            tasks.append([at(v - o.fleads[ci], 4), at(v - o.fleads[ci], 8), 'F', (va, idx, ci)])
            tasks.append([at(v, 0), at(v, 1), 'G', ci])
            tasks.append([at(v, 6), at(v, 7), 'I', [f's_cbranch_vccnz L_fw{typ}{ci}', f'L_fb{typ}{ci}:']])
            fslow.append((ci, va))
            assert v not in vused, v
            for t in tasks:
                if t[2] == 'W' and (t[3] >= gn): t[0] = max(t[0], at(v, 8))
        tasks.append([at(v + 1, 2), at(v + 1, 8), 'A', 4])
        if typ == 0:
            for lvl, v in enumerate(o.trig): tasks.append([at(v, 2), at(v, 8), 'P', lvl + 1])
            if o.wbat: tasks.append([ntail + o.wbat, ntail + o.wbat + 6, 'P', 4])
        tasks.sort(key=lambda t: (t[0], t[1]))
        vq, lq = [], []
        dirty = [False]
        xreg, busy = {}, {}
        wn = [0]
        wr = {}
        lastw = [-100]
        later = []
        BIG = [WR + 4 * i for i in range(16)] + XWIN + [ACC['P'] + 4 * i for i in range(9)]
        for i in range(9): busy[ACC['P'] + 4 * i] = at(VP + 12)
        until = {}
        if o.chain > 1:
            BIG += XRING + [VA, VA + 4, VA + 8]
            for i in range(9):
                BIG.append(ACC['Q'] + 4 * i)
                until[ACC['Q'] + 4 * i] = min(n for n in range(N) if ops[n][1] == i and S[ops[n][0]][4] == 'Q') - 3
        def freeregs(n, end): return [x for x in BIG if busy.get(x, -1) <= n and end < until.get(x, 10**9)]
        def freepairs(n, end):
            f_ = set(freeregs(n, end))
            return [x for x in sorted(f_) if x % 8 == PAR8.get(x, -1) and x + 4 in f_]
        PAR8 = {x: x % 8 for x in list(range(WR, WR + 64, 8)) + [4, 12, 20, 240, 248, 200, 208, 216, 100, 108, 116, 124, VA]}
        def kcheck(g):
            vwait(g + 1)
            for i, gg in enumerate((g, g + 1)):
                a_ = wr[gg] - 2
                em(f'v_bitop3_b32 v{VC+i}, v{a_+1}, v{a_+6}, v{VF+3} bitop3:0x7e')
            em(f'v_or_b32 v{VC}, v{VC}, v{VC+1}')
            em(f'v_cmp_ne_u32 s[48:49], 0, v{VC}')
            kslow.append((g, wr[g] - 2, wr[g + 1] - 2))
        def wok(t, n):
            if t[2] != 'W': return True
            if t[3] != wn[0]: return False
            if o.tagp and t[3] < 16:
                return bool(freepairs(n, wlast[t[3]])) and (n - lastw[0] >= 2 or t[1] - n <= 4)
            free = len(freeregs(n, wlast[t[3]]))
            if t[1] - n <= 9 * 3: return free > 0
            return n - lastw[0] >= o.wgap and free > o.wres
        since = {}
        fill = []
        def em(x):
            e(x)
            if not x.endswith(':'):
                for jj in since: since[jj] += 1
        def lwait(tag):
            if tag not in lq: return
            i = lq.index(tag)
            em(f's_waitcnt lgkmcnt({0 if dirty[0] else len(lq)-1-i})')
            if dirty[0]: lq.clear(); dirty[0] = False
            else: del lq[:i + 1]
        def vwait(g):
            if g not in vq: return
            i = vq.index(g)
            em(f's_waitcnt vmcnt({len(vq)-1-i})')
            del vq[:i + 1]
        def run(t, n):
            kind, p = t[2], t[3]
            if kind == 'X':
                pool = BIG if (o.chain > 1 or p[-1] == 'h' or (p[2] == 'rem' and p[1] == 'D')) else XRING
                r = [x for x in pool if busy.get(x, -1) <= n and last[p] < until.get(x, 10**9)]
                assert r, ('no x register', p, n)
                r = min(r, key=lambda x: (until.get(x, 10**9), busy.get(x, -1)))
                busy[r] = last[p]; xreg[p] = r
                arr, ch, s_ = p[1], p[2], p[3]
                if o.nolds and n > 9 * 30: return
                if ch == 'rem': em(f'ds_read_b128 {vr(r,4)}, v{VXOR if arr == "O" else VXDR} offset:{288*s_}')
                else: em(f'ds_read_b128 {vr(r,4)}, v{VXO if arr == "O" else VXD} offset:{64*ch+288*s_}')
                lq.append(p)
            elif kind == 'W':
                g = p
                if o.tagp and g < 16:
                    r = min(freepairs(n, wlast[g]), key=lambda x: (until.get(x, 10**9), busy.get(x, -1)))
                    busy[r] = busy[r + 4] = wlast[g]; wr[g] = r + 2
                    assert g == wn[0]; wn[0] += 1
                    lastw[0] = n
                    em(f'buffer_load_dwordx4 {vr(r,4)}, v{VWL}, {sr(S_WS)}, s50 offen offset:{2048*(g%2)}')
                    em(f'buffer_load_dwordx4 {vr(r+4,4)}, v{VWL}, {sr(S_WS)}, s50 offen offset:{2048*(g%2)+1024}')
                    vq.append(('h', g)); vq.append(g)
                    if g % 2 == 1:
                        if n < 0: em('s_add_u32 s50, s50, 4096')
                        else: later.append('s_add_u32 s50, s50, 4096')
                    return
                r = min(freeregs(n, wlast[g]), key=lambda x: (until.get(x, 10**9), busy.get(x, -1)))
                busy[r] = wlast[g]; wr[g] = r
                assert g == wn[0]; wn[0] += 1
                lastw[0] = n
                if o.now and g > 40: return
                if o.wsame and g > 40:
                    em(f'buffer_load_dwordx4 {vr(r,4)}, v{VWL}, {sr(S_WS)}, s{WSO} offen offset:{1024*(g%4)}{wflags}'); vq.append(g); return
                em(f'buffer_load_dwordx4 {vr(r,4)}, v{VWL}, {sr(S_WS)}, s{WSO} offen offset:{1024*(g%4)}{wflags}')
                if g % 4 == 3:
                    if n < 0: em(f's_add_u32 s{WSO}, s{WSO}, 4096')
                    else: later.append(f's_add_u32 s{WSO}, s{WSO}, 4096')
                vq.append(g)
            elif kind == 'L':
                em(p[0].replace('offset:pair', 'offset:24').replace(f'v{VF+1} offset:24', f'v{VF+5} offset:24')); lq.append(p[1])
            elif kind == 'C':
                lwait(p[1]); em(p[0])
            elif kind == 'I':
                for x in p: em(x)
            elif kind == 'A':
                em('s_mov_b64 exec, 1')
                if p == 'pair': em(f'ds_add_u32 v{VF+5}, v{VF+2} offset:24')
                else: em(f'ds_add_u32 v{VF+1}, v{VF+2} offset:{p}')
                em('s_mov_b64 exec, -1')
                lq.append(('a', p))
            elif kind == 'Q':
                p, hf = p
                lwait(('pr', p))
                q = ACC['Q'] + 4 * p; t_ = TMP + 4 * (p & (3 if o.chain > 1 else 1))
                for i in (2 * hf, 2 * hf + 1): em(f'v_add_f32 v{q+i}, v{q+i}, v{t_+i}')
            elif kind == 'S':
                assert not any(isinstance(x, tuple) and x[0] == 's' for x in vq)
                em(p); vq.append(('s', n))
            elif kind == 'F':
                em(f's_mov_b32 s{FO}, {128*p[1]}')
                em(f'buffer_load_dword v{VF+4}, v{p[0]}, {sr(S_WS)}, s{FO} offen {o.fflags}'); vq.append(('f', p[2]))
            elif kind == 'K':
                kcheck(p)
            elif kind == 'G':
                vwait(('f', p)); em(f'v_cmp_ne_u32 vcc, v{VF+3}, v{VF+4}')
            elif kind == 'P':
                em(f'v_mov_b32 v{VF+7}, {p}')
                em('s_mov_b64 exec, 1')
                em(f'ds_max_u32 v{VF+1}, v{VF+7}')
                em('s_mov_b64 exec, -1')
                lq.append(('p', p))
        def epi(j, pk):
            q = ACC['Q'] + 4 * j
            t = TMP + 8 * (j & 1)
            I = []
            if pk:
                I.append(f'v_pk_mul_f32 {vr(t,2)}, {vr(q,2)}, s[{C2L}:{C2L+1}]')
                I.append(f'v_pk_mul_f32 {vr(t+2,2)}, {vr(q+2,2)}, s[{CNL}:{CNL+1}]')
            else:
                for i in (0, 1): I.append(f'v_mul_f32 v{t+i}, s{C2L}, v{q+i}')
                for i in (2, 3): I.append(f'v_mul_f32 v{t+i}, s{CNL}, v{q+i}')
            I.append(f'v_min_f32 v{t}, s{C60}, v{t}')
            I.append(f'v_min_f32 v{t+1}, s{C60}, v{t+1}')
            for i in (0, 1, 2, 3): I.append(f'v_exp_f32 v{t+i}, v{t+i}')
            if pk:
                I.append(f'v_pk_add_f32 {vr(t+4,2)}, {vr(t,2)}, 1.0 op_sel_hi:[1,0]')
                I.append(f'v_pk_add_f32 {vr(t+6,2)}, {vr(t,2)}, -1.0 op_sel_hi:[1,0]')
                I.append(f'v_pk_fma_f32 {vr(t+4,2)}, {vr(t+4,2)}, {vr(t+2,2)}, {vr(t+4,2)}')
            else:
                for i in (0, 1): I.append(f'v_add_f32 v{t+4+i}, 1.0, v{t+i}')
                for i in (0, 1): I.append(f'v_fma_f32 v{t+4+i}, v{t+4+i}, v{t+2+i}, v{t+4+i}')
            I.append(f'v_rcp_f32 v{t+4}, v{t+4}')
            I.append(f'v_rcp_f32 v{t+5}, v{t+5}')
            if pk:
                I.append('s_nop 0')
                I.append(f'v_pk_mul_f32 {vr(t+6,2)}, {vr(t+6,2)}, {vr(t+4,2)}')
            else:
                for i in (0, 1): I.append(f'v_add_f32 v{t+6+i}, -1.0, v{t+i}')
                for i in (0, 1): I.append(f'v_mul_f32 v{t+6+i}, v{t+6+i}, v{t+4+i}')
            I.append(f'v_cvt_pk_bf16_f32 v{q}, v{t+6}, v{t+7}')
            I.append(f'buffer_store_dword v{q}, v{VOUT + j//3}, {sr(S_OUT)}, 0 offen offset:{1152*(j%3)} {o.oflags if j < o.oj else ""}')
            return I
        def cost(x): return 2 if x.startswith(('v_exp', 'v_rcp', 'buffer')) else 1
        while tasks and tasks[0][0] < 0: run(tasks.pop(0), -1)
        if o.tagp:
            for g in (0, 2):
                vwait(g + 1)
                for gg in (g + 4, g + 5):
                    t_ = [t for t in tasks if t[2] == 'W' and t[3] == gg][0]
                    tasks.remove(t_); run(t_, -1)
                kcheck(g)
                em('s_nop 2')
                em('s_cmp_lg_u64 s[48:49], 0')
                em(f's_cbranch_scc1 L_ks{typ}{g}')
                em(f'L_kb{typ}{g}:')
        inv = {n: v for v, n in vstart.items()}
        lastop = {j: max(n for n in range(N) if ops[n][1] == j) for j in range(9)}
        for n, (g, j) in enumerate(ops):
            if n in inv and o.padto and o.padev == 'm5' and inv[n] == o.padstep:
                e('s_memrealtime s[100:101]'); dirty[0] = True
            if n in inv and o.diag:
                v = inv[n]
                if o.diag == 2 and v in o.marks:
                    kk = o.marks.index(v)
                    e(f's_memtime s[{ST0+2*kk}:{ST0+2*kk+1}]'); dirty[0] = True
                if o.diag in (1, 4) and v == 33: stamp(5); stamp(6); dirty[0] = True
            if o.jit and n in inv and inv[n] in (20, 36, 44, 52, 60, 70, 90): jit()
            k = key(n)
            assert k in xreg, (k, n)
            lwait(k); vwait(g)
            acc = S[g][4]
            d = ACC[acc] + 4 * j
            if g == 0: cs = '0'
            elif acc == 'Q' and S[g-1][4] == 'P': cs = vr(ACC['P'] + 4 * j, 4)
            else: cs = vr(d, 4)
            em(f'v_mfma_f32_16x16x32_bf16 {vr(d,4)}, {vr(wr[g],4)}, {vr(xreg[k],4)}, {cs}' if not o.swapab else f'v_mfma_f32_16x16x32_bf16 {vr(d,4)}, {vr(xreg[k],4)}, {vr(wr[g],4)}, {cs}')
            if n == lastop[j]: since[j] = 0
            while later: em(later.pop(0))
            budget = 2
            TC = {'X': 1, 'W': 2, 'L': 2, 'C': 1, 'I': 0, 'A': 1, 'Q': 2, 'S': 2, 'F': 2, 'G': 1, 'P': 2, 'K': 2}
            while True:
                ready = [t for t in tasks if t[0] <= n and wok(t, n)]
                if not ready: break
                t = min(ready, key=lambda t: t[1])
                assert t[1] >= n, ('late', t, n)
                if TC[t[2]] > budget and t[1] > n:
                    fit = [u for u in ready if TC[u[2]] <= budget]
                    if not fit: break
                    t = min(fit, key=lambda t: t[1])
                tasks.remove(t); run(t, n); budget -= TC[t[2]]
            for jj in sorted(since):
                if 8 <= since[jj] < 10**6:
                    fill += epi(jj, False); since[jj] = 10**6
            budget += o.nfill - 2
            while fill and budget >= cost(fill[0]):
                budget -= cost(fill[0])
                if fill[0].startswith('buffer_store'):
                    q_ = int(re.match(r'buffer_store_dword v(\d+)', fill[0]).group(1))
                    until.pop(q_, None); busy[q_] = n + 2
                em(fill.pop(0))
            assert all(t[1] > n for t in tasks), ('late', n, [t for t in tasks if t[1] <= n])
        assert not tasks
        stamp(7)
        while fill: em(fill.pop(0))
        for jj in [jj for jj in sorted(since) if since[jj] < 10**6]:
            if since[jj] < 8: em(f's_nop {8-since[jj]-1}')
            for x in epi(jj, True): em(x)
        stamp(8)
        if o.padto and o.padev[0] == 'm': padloop(typ)
        if o.diag == 1:
            e('s_waitcnt vmcnt(0)')
            stamp(9)
            dump(10)
        if o.diag == 2:
            kk = len(o.marks)
            e(f's_memtime s[{ST0+2*kk}:{ST0+2*kk+1}]')
            dump(10)
        e('s_endpgm')
        for tag, off, cnt in slow:
            e(f'L_slow{typ}{tag}:')
            e(f'ds_read_b32 v{VC}, v{VF+5 if off == "pair" else VF+1} offset:{24 if off == "pair" else off}')
            e('s_waitcnt lgkmcnt(0)')
            e(f'v_cmp_ne_u32 vcc, {cnt}, v{VC}')
            e('s_nop 4')
            e(f's_cbranch_vccnz L_slow{typ}{tag}')
            e(f's_branch L_back{typ}{tag}')
        for ci, va in fslow: flagwait(f'{typ}{ci}', va, f'L_fb{typ}{ci}')
        for g, a0_, a1_ in kslow:
            e(f'L_ks{typ}{g}:')
            if o.diag: e(f's_add_u32 s95, s95, {1 << 25}')
            e(f'ds_read_b32 v{VF+7}, v{VF+1} offset:12')
            e(f's_add_u32 s47, s96, {2048*g}')
            e('s_waitcnt lgkmcnt(0)')
            for i, a_ in enumerate((a0_, a0_ + 4, a1_, a1_ + 4)):
                e(f'buffer_load_dwordx4 {vr(a_,4)}, v{VWL}, {sr(S_WS)}, s47 offen offset:{1024*i} sc1')
            e(f'v_readfirstlane_b32 s46, v{VF+7}')
            e(f's_add_u32 s{NPOLL}, s{NPOLL}, 1')
            e('s_waitcnt vmcnt(0)')
            e('s_cmp_lg_u32 s46, 0')
            e(f's_cbranch_scc1 L_kb{typ}{g}')
            e(f'v_bitop3_b32 v{VC}, v{a0_+1}, v{a0_+6}, v{VF+3} bitop3:0x7e')
            e(f'v_bitop3_b32 v{VC+1}, v{a1_+1}, v{a1_+6}, v{VF+3} bitop3:0x7e')
            e(f'v_or_b32 v{VC}, v{VC}, v{VC+1}')
            e(f'v_cmp_ne_u32 s[48:49], 0, v{VC}')
            e('s_nop 2')
            e('s_cmp_eq_u64 s[48:49], 0')
            e(f's_cbranch_scc1 L_kb{typ}{g}')
            e(f's_cmp_lg_u32 s{NPOLL}, {o.maxpoll}')
            e(f's_cbranch_scc1 L_ks{typ}{g}')
            e(f'v_mov_b32 v{VF+7}, 0x10000')
            e('s_mov_b64 exec, 1')
            e(f'ds_add_u32 v{VF+1}, v{VF+7} offset:4')
            e('s_mov_b64 exec, -1')
            e(f's_branch L_ks{typ}{g}')

    mark['help0'] = len(e.L)
    if not o.hfirst: e('.p2align 6')
    e('L_helper:')
    role[0] = 'h'
    e(f's_setprio {o.hprio}')
    e(f's_sub_u32 s{TW0}, s{WAVE}, 4')
    e(f's_mov_b32 s{TW1}, s{WAVE}')
    e(f's_sub_u32 s{PAIR}, s{RID}, {NPROD}')
    e(f's_cselect_b32 s{PAIR}, s{RID}, s{PAIR}')
    e(f's_mov_b32 s{MODE}, 0')
    e(f's_mov_b32 s{NOTASK}, s{RID}')
    e(f's_mov_b32 s{HAS3}, s{TW0}')
    e(f's_lshl_b32 s{SCRB}, s{TW0}, 12')
    e(f's_add_u32 s{SCRB}, s{SCRB}, {SCR}')
    e('L_prod:')
    T = [(28, TW0, 2, 52, 0), (36, TW1, 4, 53, 2048), (44, TW2, 6, 54, 16384)]
    c, kp, q, cc, kk, t = 46, 47, 48, 49, 50, 51
    b = TS
    e('v_mov_b32 v19, 4320')
    e('v_and_b32 v23, 3, v1')
    e('v_lshrrev_b32 v24, 2, v1')
    e('v_mul_u32_u24 v24, 288, v24')
    for (vb, sw, vl, vs, so) in T:
        e(f'v_lshl_add_u32 v8, s{sw}, 2, v23' if sw != TW2 else 'v_add_u32 v8, 32, v23')
        e('v_cmp_le_u32 vcc, 18, v8')
        e(f'v_lshl_add_u32 v{vl}, v8, 4, v24')
        e(f'v_add_u32 v9, v{vl}, v19')
        e(f'v_cndmask_b32 v{vl}, v{vl}, v9, vcc')
    e(f's_and_b32 s{c}, s{PAIR}, 15')
    e(f's_lshr_b32 s{kp}, s{PAIR}, 4')
    e(f's_mul_i32 s{b}, s{c}, 165888')
    e(f's_mul_i32 s{t}, s{kp}, 9216')
    e(f's_add_u32 s{b}, s{b}, s{t}')
    e(f's_add_u32 s{b+1}, s{b}, 82944')
    e(f's_mov_b32 s{S_W+2}, 2571264')
    e(f's_mov_b32 s{S_W+3}, 0x20000')
    e(f's_mov_b32 s{S_WO+3}, s{S_W+3}')
    e(f's_cmp_lg_u32 s{c}, 15')
    e(f's_cselect_b32 s{S_WO+2}, s{S_W+2}, 0')
    e(f's_mov_b32 m0, s{SCRB}')
    e('s_waitcnt lgkmcnt(0)')
    e(f's_mov_b32 s{S_W}, s6')
    e(f's_and_b32 s{S_W+1}, s7, 0xffff')
    e(f's_mov_b32 s{S_WO}, s6')
    e(f's_and_b32 s{S_WO+1}, s7, 0xffff')
    e(f's_cmp_ge_u32 s{NOTASK}, {NTASK}')
    e('s_cbranch_scc1 L_a3')
    def cond3(lbl):
        e(f's_cmp_lg_u32 s{HAS3}, 0')
        e(f's_cbranch_scc1 {lbl}')
    for ti, (vb, sw, vl, vs, so) in enumerate(T):
        if ti == 2: cond3('L_a3')
        if ti == 1: e('s_addk_i32 m0, 1024'); e('s_nop 0')
        e(f'buffer_load_dwordx4 v{vl}, {sr(S_W)}, s{b} offen lds')
        e('s_addk_i32 m0, 1024')
        e('s_nop 0')
        e(f'buffer_load_dwordx4 v{vl}, {sr(S_WO)}, s{b+1} offen lds')
        if ti == 1: e(f's_addk_i32 m0, {16384-3072}')
    e('L_a3:')
    stamp(1)
    e(f's_cmp_lg_u32 s{MODE}, 0')
    e('s_cbranch_scc1 L_a4')
    e(f's_load_dword s{TAG}, s[12:13], {NONCE}')
    e(f's_lshr_b32 s{EARLY}, 0x33, s{kp}')
    e(f's_and_b32 s{EARLY}, s{EARLY}, 1')
    e(f's_sub_u32 s{XK}, 2, s{EARLY}')
    e(f's_lshl_b32 s{t}, s{kp}, 1')
    e(f's_lshr_b32 s{YT}, {(3<<12)+(3<<14)+(3<<16)}, s{t}')
    e(f's_and_b32 s{YT}, s{YT}, 3')
    e(f's_lshr_b32 s{t}, s{kp}, 1')
    e(f's_cmp_ge_u32 s{RID}, {NPROD}')
    e(f's_cselect_b32 s{EARLY}, 0, s{EARLY}')
    e(f's_cselect_b32 s{XK}, 3, s{XK}')
    e(f's_cselect_b32 s{YT}, s{t}, s{YT}')
    e(f's_cmp_ge_u32 s{RID}, {NPROD+32}')
    e(f's_cselect_b32 s{XK}, 0, s{XK}')
    e(f's_cmp_ge_u32 s{RID}, {NTASK}')
    e(f's_cselect_b32 s{YT}, 0, s{YT}')
    if not o.b0early:
        e(f's_cmp_lg_u32 s{EARLY}, 0')
        e('s_cbranch_scc1 L_a4')
    e('s_barrier')
    e('L_a4:')
    jit()
    e(f's_mov_b32 s{MASK}, 0xffff0000')
    e(f's_mov_b32 s{NPOLL}, 0')
    srd(e, S_WS, 12, WS_REC)
    srd(e, S_DBG, 10, 256)
    e(f'v_mov_b32 v10, {CNT}')
    e(f'v_mov_b32 v20, {(256 - 18*NSTR) & 0xffffffff}')
    e(f'v_mov_b32 v26, {NSTR}')
    e('v_bfe_u32 v21, v1, 2, 2')
    e('v_lshlrev_b32 v21, 7, v21')
    e('v_and_b32 v22, 1, v1')
    e('v_lshl_add_u32 v21, v22, 6, v21')
    e('v_bfe_u32 v22, v1, 1, 1')
    e('v_lshl_add_u32 v21, v22, 3, v21')
    e('v_lshrrev_b32 v22, 4, v1')
    e('v_lshl_add_u32 v21, v22, 4, v21')
    e(f'v_add_u32 v21, s{SCRB}, v21')
    if o.yall: e('v_mov_b32 v62, v21')
    e('v_and_b32 v25, 15, v1')
    e('v_lshlrev_b32 v25, 4, v25')
    for (vb, sw, vl, vs, so) in T:
        e(f'v_lshl_add_u32 v8, s{sw}, 2, v22' if sw != TW2 else 'v_add_u32 v8, 32, v22')
        e('v_cmp_le_u32 vcc, 18, v8')
        e(f'v_mad_u32_u24 v{vs}, v8, v26, v25')
        e(f'v_add_u32 v9, v{vs}, v20')
        e(f'v_cndmask_b32 v{vs}, v{vs}, v9, vcc')
    if o.tagp:
        e(f's_cmp_eq_u32 s{WAVE}, 4')
        e(f's_cselect_b32 s{t}, 1, s{EARLY}')
        e(f's_cmp_lg_u32 s{t}, 0')
        e(f's_cselect_b32 s{t}, 4, -16')
        e(f'v_mov_b32 v9, s{t}')
        e('s_waitcnt lgkmcnt(0)')
        e('s_mov_b64 exec, 1')
        e(f'buffer_load_dword v27, v9, {sr(S_DBG)}, 0 offen sc1')
        e('s_mov_b64 exec, -1')
        e(f's_lshr_b32 s97, 0x33, s{kp}')
        e('s_and_b32 s97, s97, 1')
        e(f's_lshr_b32 s96, s{kp}, 2')
        e('s_lshl_b32 s96, s96, 4')
        e(f's_add_u32 s96, s96, s{c}')
        e('s_lshl_b32 s96, s96, 2')
        e(f's_and_b32 s{t}, s{kp}, 1')
        e(f's_add_u32 s96, s96, s{t}')
        e('s_lshl_b32 s96, s96, 9')
        e(f's_add_u32 s96, s96, {WOFF + 2*NSTEP*1024}')
    e(f's_lshr_b32 s{q}, s{kp}, 1')
    e(f's_and_b32 s{cc}, s{c}, 7')
    e(f's_lshr_b32 s{kk}, s{c}, 3')
    e(f's_and_b32 s{t}, s{kp}, 1')
    e(f's_cmp_eq_u32 s{kp}, 8')
    e(f's_cselect_b32 s{cc}, s{cc}, s{c}')
    e(f's_cselect_b32 s{kk}, s{kk}, s{t}')
    e(f's_lshl_b32 s{kk}, s{kk}, 9')
    e(f's_add_u32 s{kk}, s{kk}, {WOFF}')
    e(f's_lshl_b32 s{t}, s{q}, 4')
    e(f's_add_u32 s{b+2}, s{t}, s{cc}')
    e(f's_sub_u32 s{b+3}, s{b+2}, s{q}')
    e(f's_cmp_ge_u32 s{q}, 2')
    e(f's_cselect_b32 s{b+4}, 74, 0')
    e(f's_add_u32 s{b+4}, s{b+4}, s{b+2}')
    e(f's_cmp_lt_u32 s{cc}, 2')
    e(f's_cselect_b32 s{t}, 32, 136')
    e(f's_add_u32 s{t}, s{t}, s{cc}')
    e(f's_cmp_eq_u32 s{kp}, 8')
    e(f's_cselect_b32 s{b+4}, s{t}, s{b+4}')
    e(f's_add_u32 s{b+2}, s{b+2}, 34')
    e(f's_add_u32 s{b+3}, s{b+3}, 144')
    for k in (2, 3, 4):
        e(f's_lshl_b32 s{b+k}, s{b+k}, 10')
        e(f's_add_u32 s{b+k}, s{b+k}, s{kk}')
    e(f's_cmp_eq_u32 s{kp}, 8')
    e(f's_cselect_b32 s{t}, 1, 2')
    e(f's_cmp_eq_u32 s{c}, 15')
    e(f's_cselect_b32 s{b+5}, s{t}, 0')
    e(f's_lshl_b32 s46, s{WAVE}, 2')
    e(f's_add_u32 s46, s46, {CNT+16}')
    e('v_mov_b32 v55, s46')
    if o.tagp:
        e('s_waitcnt vmcnt(1)')
        stamp(2)
        e(f's_cmp_ge_u32 s{NOTASK}, {NTASK}')
        e('s_cbranch_scc1 L_x9')
    else:
        e('v_mov_b32 v27, 0')
        e('v_mov_b32 v9, 4')
        e('s_waitcnt vmcnt(0) lgkmcnt(0)')
        stamp(2)
        e(f's_cmp_lg_u32 s{WAVE}, 4')
        e('s_cbranch_scc1 L_a5')
        e('s_mov_b64 exec, 1')
        e(f'buffer_load_dword v27, v9, {sr(S_DBG)}, 0 offen sc1')
        e('s_mov_b64 exec, -1')
        e('L_a5:')
        e(f's_cmp_ge_u32 s{NOTASK}, {NTASK}')
        e('s_cbranch_scc1 L_x9')
    for (vb, sw, vl, vs, so) in T:
        for tap in range(2):
            for half in range(2):
                e(f'ds_read_b64_tr_b16 {vr(vb+4*tap+2*half,2)}, v21 offset:{so+1024*tap+512*half}')
    nlab = [0]
    def st01(vb, vs):
        nlab[0] += 1
        e(f'buffer_store_dwordx4 {vr(vb,4)}, v{vs}, {sr(S_WS)}, s{b+2} offen {o.stf}')
        e(f's_cmp_eq_u32 s{b+5}, 2')
        e(f's_cbranch_scc1 L_skip{nlab[0]}')
        e(f'buffer_store_dwordx4 {vr(vb+4,4)}, v{vs}, {sr(S_WS)}, s{b+3} offen {o.stf}')
        e(f'L_skip{nlab[0]}:')
    def st01all(lbl):
        st01(T[0][0], T[0][3]); st01(T[1][0], T[1][3])
        cond3(lbl)
        st01(T[2][0], T[2][3])
    def dosum(vb, tb, ob):
        for i in range(8):
            e(f'v_lshlrev_b32 v{tb+2*i}, 16, v{vb+i}')
            e(f'v_and_b32 v{tb+2*i+1}, s{MASK}, v{vb+i}')
        for i in range(4):
            e(f'v_pk_add_f32 {vr(tb+2*i,2)}, {vr(tb+2*i,2)}, {vr(tb+8+2*i,2)}')
        for i in range(4):
            e(f'v_cvt_pk_bf16_f32 v{ob+i}, v{tb+2*i}, v{tb+2*i+1}')
    def ldswait(off, cmp, operand, tag, slp):
        e(f'L_lw{tag}:')
        e(f'ds_read_b32 v11, v10 offset:{off}')
        e('s_waitcnt lgkmcnt(0)')
        e('v_and_b32 v11, 0xff, v11')
        e(f'v_cmp_{cmp}_u32 vcc, {operand}, v11')
        e('s_nop 4')
        e(f's_cbranch_vccnz L_lx{tag}')
        e(f's_sleep {slp}')
        e(f's_branch L_lw{tag}')
        e(f'L_lx{tag}:')
    SOR = lambda ti: (210 + 8 * ti) if o.tagp else (240 + 4 * ti)
    e(f's_or_b32 s46, s{EARLY}, s{MODE}')
    e(f's_cmp_eq_u32 s{XK}, 2')
    e('s_cselect_b32 s47, 1, s46')
    if o.xl: e('s_mov_b32 s46, s47')
    e('s_cmp_eq_u32 s47, 0')
    e('s_cbranch_scc1 L_x9')
    for ti, (vb, sw, vl, vs, so) in enumerate(T):
        if ti == 2: cond3('L_x3')
        e(f's_waitcnt lgkmcnt({8-4*ti})')
        dosum(vb, 64 + 16 * ti, SOR(ti))
        e('s_cmp_eq_u32 s46, 0')
        e(f's_cbranch_scc1 L_x5{ti}')
        if o.tagp:
            e('s_cmp_eq_u32 s97, 0')
            e(f's_cbranch_scc1 L_x6{ti}')
            if ti == 0:
                e('s_waitcnt vmcnt(0)')
                e('v_readfirstlane_b32 s48, v27')
                e(f's_add_u32 s49, s{TAG}, {TAGINC}')
                e('s_not_b32 s47, s49')
                e(f's_or_b32 s48, s48, s{MODE}')
                e('s_cselect_b32 s49, s47, s49')
            e(f'v_mov_b32 v{SOR(ti)-1}, s49')
            e(f'v_mov_b32 v{SOR(ti)+4}, s49')
            e(f'buffer_store_dwordx4 {vr(SOR(ti)-2,4)}, v{vs}, {sr(S_WS)}, s96 offen {o.stf}')
            e(f'buffer_store_dwordx4 {vr(SOR(ti)+2,4)}, v{vs}, {sr(S_WS)}, s96 offen offset:1024 {o.stf}')
            e(f's_branch L_x5{ti}')
            e(f'L_x6{ti}:')
        e(f'buffer_store_dwordx4 {vr(SOR(ti),4)}, v{vs}, {sr(S_WS)}, s{b+4} offen {o.stf}')
        e(f'L_x5{ti}:')
    e('L_x3:')
    e(f's_cmp_eq_u32 s{MODE}, 0')
    e('s_cbranch_scc1 L_x9')
    e('L_x2:')
    e('s_waitcnt lgkmcnt(0)')
    st01all('L_x4')
    e('L_x4:')
    e(f's_cmp_eq_u32 s{MODE}, 0')
    e('s_cbranch_scc1 L_x9')
    e('s_waitcnt vmcnt(0)')
    e(f's_add_u32 s{PAIR}, s{PAIR}, 1')
    e(f's_cmp_lt_u32 s{PAIR}, {NPROD}')
    e('s_cbranch_scc1 L_prod')
    e('v_mov_b32 v11, 1')
    e('ds_write_b32 v10, v11 offset:12')
    e('s_endpgm')
    e('L_x9:')
    jit()
    if o.tagp:
        e(f's_cmp_eq_u32 s{EARLY}, 0')
        e('s_cbranch_scc1 L_x10')
        e('s_barrier')
        e('L_x10:')
    stamp(3)
    decode()
    e('v_subrev_u32 v4, 256, v0')
    e('v_min_u32 v4, 251, v4')
    e('v_mul_u32_u24 v3, 3641, v4')
    e('v_lshrrev_b32 v3, 16, v3')
    e('v_mul_u32_u24 v2, 18, v3')
    e('v_sub_u32 v2, v4, v2')
    e(f'v_mul_u32_u24 v3, {R}, v3')
    e(f'v_min_u32 v3, {160-R}, v3')
    e('v_mul_u32_u24 v4, 1152, v3')
    e('v_lshl_add_u32 v4, v2, 4, v4')
    e(f'v_add_u32 v12, s{XB}, v4')
    e('v_mul_u32_u24 v18, 288, v3')
    e('v_lshl_add_u32 v18, v2, 4, v18')
    e(f'v_add_u32 v19, {X_D1}, v18')
    srd(e, S_X, 4, 1152000, add=BOFF)
    e(f's_add_u32 s46, s{TAG}, {TAGINC}')
    e('v_mov_b32 v56, s46')
    e(f's_lshl_b32 s46, s{RID}, 7')
    e('v_mov_b32 v58, s46')
    e(f's_add_u32 s46, s{PAIR}, {NPROD}')
    e('s_lshl_b32 s46, s46, 7')
    e('v_mov_b32 v59, s46')
    def publish(slot, vflag, tag, first, n=0):
        e('s_mov_b64 exec, 1')
        e(f's_waitcnt vmcnt({n})')
        if first: stamp(4)
        if o.padto and tag == 'x': stamp(12)
        e('v_cmp_ne_u32 vcc, 0, v27')
        e('v_not_b32 v57, v56')
        e('s_nop 0')
        e('v_cndmask_b32 v57, v56, v57, vcc')
        e(f'ds_write_b32 v55, v57 offset:{slot}')
        e(f'ds_read_b128 v[20:23], v10 offset:{32+slot}')
        e('s_waitcnt lgkmcnt(0)')
        for i in range(4): e(f'v_xor_b32 v{20+i}, v{20+i}, v56')
        e('v_or3_b32 v20, v20, v21, v22')
        e('v_or_b32 v20, v20, v23')
        e('v_cmp_eq_u32 vcc, 0, v20')
        e('s_and_b64 exec, exec, vcc')
        e(f's_cbranch_execz L_nl{tag}')
        e(f'buffer_store_dword v56, v{vflag}, {sr(S_WS)}, 0 offen sc1')
        e(f'L_nl{tag}:')
        e('s_mov_b64 exec, -1')
    if o.tagp and o.xl:
        e(f's_cmp_lg_u32 s{XK}, 2')
        e('s_cbranch_scc1 L_noflag')
        publish(0, 58, 'x', True)
        e(f's_mov_b32 s{XK}, 0')
    elif o.xl:
        e(f's_cmp_ge_u32 s{RID}, {NPROD}')
        e('s_cbranch_scc1 L_noflag')
        publish(0, 58, 'x', True)
        e(f's_mov_b32 s{XK}, 0')
        e(f's_cmp_eq_u32 s{EARLY}, 0')
        e('s_cbranch_scc1 L_noflag')
        if not o.b0early: e('s_barrier')
    elif not o.tagp:
        e(f's_cmp_eq_u32 s{EARLY}, 0')
        e('s_cbranch_scc1 L_noflag')
        publish(0, 58, 'x', True)
        if not o.b0early: e('s_barrier')
    e('L_noflag:')
    e(f's_setprio {o.hprio2}')
    RAW, ORAW = 64, 120
    EU = [184, 192]
    OU, DT, DO = 200, 208, 216
    xi = [0]
    NL = R + 1
    hq = []
    def eload():
        k = xi[0]
        if k >= NL: return
        a_ = 12
        if k:
            a_ = 13 + (k & 3)
            e(f'v_add_u32 v{a_}, {1152*k}, v12')
        e(f'buffer_load_dwordx4 {vr(RAW+4*k,4)}, v{a_}, {sr(S_X)}, 0 offen')
        xi[0] += 1
        hq.append(('e', k))
    if o.etouch:
        e(f's_cmp_lt_u32 s{RID}, {NTASK}')
        e('s_cbranch_scc1 L_net')
        e(f's_and_b32 s46, s{NB}, 1')
        e(f's_mul_i32 s46, s46, {1152*6}')
        e('v_add_u32 v12, s46, v12')
        for _ in range(7): eload()
        e('v_subrev_u32 v12, s46, v12')
        e('s_waitcnt vmcnt(0)')
        e('L_net:')
        xi[0] = 0; hq.clear()
    YA = 232
    e(f's_cmp_eq_u32 s{b+5}, 2')
    e('s_cselect_b32 s46, 0x80000000, 0')
    e(f's_cmp_lg_u32 s{HAS3}, 0')
    e('s_cselect_b32 s47, 0x80000000, 0')
    e('s_or_b32 s48, s46, s47')
    for i in range(6):
        m_ = {0: None, 1: 46, 2: None, 3: 46, 4: 47, 5: 48}[i]
        e(f'v_mov_b32 v{YA+i}, v{52+i//2}' if m_ is None else f'v_or_b32 v{YA+i}, s{m_}, v{52+i//2}')
    def ystore(i, a_):
        e(f'buffer_store_dwordx4 {vr(28+4*i,4)}, v{a_}, {sr(S_WS)}, s{b+2+(i&1)} offen {o.stf}')
        hq.append(('y', i))
    if o.yall:
        assert o.d0p
        e(f's_add_u32 s44, s{RID}, 76')
        e(f's_cmp_ge_u32 s44, {NWG}')
        e(f's_cselect_b32 s45, {NWG}, 0')
        e('s_sub_u32 s44, s44, s45')
        e(f's_add_u32 s46, s44, {NPROD + 32}')
        e('s_lshl_b32 s46, s46, 7')
        e('v_mov_b32 v59, s46')
        e('s_mul_hi_u32 s45, s44, 477218589')
        e('s_mul_i32 s46, s45, 9')
        e('s_sub_u32 s44, s44, s46')
        e(f's_lshr_b32 s{YT}, s45, 3')
        e(f's_add_u32 s{YT}, s{YT}, 1')
        e(f's_min_u32 s{YT}, s{YT}, 3')
        e('s_lshl_b32 s45, s45, 2')
        e(f's_add_u32 s45, s45, s{WAVE}')
        e('s_add_u32 s45, s45, 28')
        e('s_and_b32 s46, s45, 15')
        e('s_lshr_b32 s47, s45, 4')
        e('s_mul_i32 s54, s46, 165888')
        e('s_mul_i32 s48, s47, 9216')
        e('s_add_u32 s54, s54, s48')
        e('s_add_u32 s95, s54, 82944')
        e('s_cmp_lg_u32 s46, 15')
        e(f's_cselect_b32 s{S_WO+2}, 2571264, 0')
        e('s_cselect_b32 s51, 0, 0x80000000')
        e('s_lshr_b32 s48, s47, 1')
        e('s_and_b32 s49, s46, 7')
        e('s_lshr_b32 s50, s46, 3')
        e('s_and_b32 s45, s47, 1')
        e('s_cmp_eq_u32 s47, 8')
        e('s_cselect_b32 s49, s49, s46')
        e('s_cselect_b32 s50, s50, s45')
        e('s_cselect_b32 s51, 0, s51')
        e('s_lshl_b32 s50, s50, 9')
        e(f's_add_u32 s50, s50, {WOFF}')
        e('s_lshl_b32 s68, s48, 4')
        e('s_add_u32 s68, s68, s49')
        e('s_sub_u32 s69, s68, s48')
        e('s_add_u32 s68, s68, 34')
        e('s_add_u32 s69, s69, 144')
        for r_ in (68, 69):
            e(f's_lshl_b32 s{r_}, s{r_}, 10')
            e(f's_add_u32 s{r_}, s{r_}, s50')
        e('v_and_b32 v2, 3, v1')
        e('v_lshl_add_u32 v2, s44, 2, v2')
        e('v_lshrrev_b32 v3, 4, v1')
        e('v_lshl_add_u32 v3, s44, 2, v3')
        e('v_cmp_le_u32 vcc, 18, v2')
        e('v_cmp_le_u32 s[46:47], 18, v3')
        e('v_lshl_add_u32 v63, v2, 4, v24')
        e('v_mad_u32_u24 v60, v3, v26, v25')
        e('v_add_u32 v2, 4320, v63')
        e(f'v_add_u32 v3, {(256 - 18*NSTR) & 0xffffffff}, v60')
        e('v_cndmask_b32 v63, v63, v2, vcc')
        e('v_cndmask_b32 v60, v60, v3, s[46:47]')
        e('v_or_b32 v61, s51, v60')
    def ydma():
        if not o.yall: return
        e(f's_mov_b32 m0, s{SCRB}')
        e('s_nop 0')
        e(f'buffer_load_dwordx4 v63, {sr(S_W)}, s54 offen lds')
        e('s_addk_i32 m0, 1024')
        e('s_nop 0')
        e(f'buffer_load_dwordx4 v63, {sr(S_WO)}, s95 offen lds')
        hq.append('d0'); hq.append('d1')
    stamp(5)
    ldswait(8, 'eq', 4, 'o', 1)
    def unpack(dst, s_):
        for i in range(4):
            e(f'v_lshlrev_b32 v{dst+2*i}, 16, v{s_+i}')
            e(f'v_and_b32 v{dst+2*i+1}, s{MASK}, v{s_+i}')
    def unpackE(dst, k):
        e(f's_waitcnt vmcnt({len(hq)-1-hq.index(("e", k))})')
        unpack(dst, RAW + 4 * k)
        eload()
    def diff(eu, out):
        for i in range(8): e(f'v_sub_f32 v{DT+i}, v{eu+i}, v{OU+i}')
        for i in range(4):
            e(f'v_cvt_pk_bf16_f32 v{out+i}, v{DT+2*i}, v{DT+2*i+1}')
    def opengate():
        if not o.gate: return
        e('v_mov_b32 v11, 0x100')
        e('s_mov_b64 exec, 1')
        e('ds_add_u32 v10, v11 offset:8')
        e('s_mov_b64 exec, -1')
    def rows(hook):
        jit()
        stamp(6)
        for j in range(R):
            e(f'ds_read_b128 {vr(ORAW+4*j,4)}, v18 offset:{X_O+288*j}')
        unpackE(EU[0], 0)
        e('s_waitcnt lgkmcnt(0)')
        for j in range(R):
            o0 = DO + 8 * (j & 1)
            unpack(OU, ORAW + 4 * j)
            diff(EU[j & 1], o0)
            e(f'ds_write_b128 v18, {vr(o0,4)} offset:{X_D0+288*j}')
            unpackE(EU[(j + 1) & 1], j + 1)
            diff(EU[(j + 1) & 1], o0 + 4)
            e(f'ds_write_b128 v19, {vr(o0+4,4)} offset:{288*j}')
            hook(j)
    if o.apath:
        e(f's_cmp_ge_u32 s{RID}, {NPROD + (32 if o.d0p else 0)}')
        e('s_cbranch_scc1 L_pathA')
    e(f's_cmp_lt_u32 s{XK}, 2')
    e('s_cbranch_scc1 L_nox')
    if o.d0p:
        e(f's_cmp_eq_u32 s{XK}, 3')
        e('s_cbranch_scc1 L_xd')
    for i in range(3):
        e(f'buffer_store_dwordx4 {vr(SOR(i),4)}, v{YA+2*i}, {sr(S_WS)}, s{b+4} offen {o.stf}')
    if o.d0p:
        e('s_branch L_xe')
        e('L_xd:')
        for i in range(6): ystore(i, YA + i)
        e('L_xe:')
    if o.gearly:
        opengate()
        publish(0, 58, 'x2', True)
        e('s_branch L_nox2')
        e('L_nox:')
        opengate()
        e('L_nox2:')
    else:
        publish(0, 58, 'x2', True)
        e('L_nox:')
        opengate()
    hq.clear(); xi[0] = 0
    for _ in range(o.ein): eload()
    def hookP(j):
        if j == o.ydrow: ydma()
        if o.ymid and j == o.ymid:
            e(f's_cmp_lg_u32 s{YT}, 1')
            e('s_cbranch_scc1 L_ym1')
            keep = list(hq)
            for i in range(6): ystore(i, YA + i)
            hq[:] = keep
            e('L_ym1:')
        if o.ymid and j == o.ymid + o.ymid2:
            e(f's_cmp_lg_u32 s{YT}, 1')
            e('s_cbranch_scc1 L_ym2')
            publish(16, 59, 'ym', False)
            if o.diag == 1: stamp(8)
            e(f's_mov_b32 s{YT}, 0')
            e('L_ym2:')
    rows(hookP)
    if o.apath:
        e('s_branch L_rowsdone')
        e('L_pathA:')
        if not o.d0p:
            e(f's_cmp_eq_u32 s{XK}, 3')
            e('s_cselect_b32 s47, 0, 0x80000000')
            for i in range(6): e(f'v_or_b32 v{20+i}, s47, v{YA+i}')
        hq.clear(); xi[0] = 0
        for _ in range(NL): eload()
        if not o.d0p:
            for i in range(6): ystore(i, 20 + i)
        def hookA(j):
            if j == o.grow + 1: ydma()
            if j == o.grow:
                e(f's_waitcnt vmcnt({len(hq)-1-hq.index(("e", NL-1))})')
                opengate()
            if j == o.xrow and not o.d0p:
                e(f's_cmp_lg_u32 s{XK}, 3')
                e('s_cbranch_scc1 L_xp')
                publish(0, 58, 'x3', True)
                e('L_xp:')
        rows(hookA)
    e('L_rowsdone:')
    e('s_waitcnt lgkmcnt(0)')
    stamp(7)
    e('v_mov_b32 v11, 1')
    e('s_mov_b64 exec, 1')
    e('ds_add_u32 v10, v11 offset:16')
    e('s_mov_b64 exec, -1')
    e(f's_cmp_eq_u32 s{YT}, 0')
    e('s_cbranch_scc1 L_noy')
    e(f's_setprio {o.yprio}')
    if o.yall:
        e('s_waitcnt vmcnt(0)')
        for tap in range(2):
            for half in range(2):
                e(f'ds_read_b64_tr_b16 {vr(28+4*tap+2*half,2)}, v62 offset:{1024*tap+512*half}')
    e('L_yw:')
    e('ds_read_b64 v[20:21], v10')
    e('s_waitcnt lgkmcnt(0)')
    e('v_lshrrev_b32 v21, 14, v21')
    e('v_and_b32 v21, -4, v21')
    e('v_or_b32 v20, v20, v21')
    e(f'v_cmp_le_u32 vcc, s{YT}, v20')
    e('s_nop 4')
    e('s_cbranch_vccnz L_yx')
    e('s_sleep 4')
    e('s_branch L_yw')
    e('L_yx:')
    jit()
    if o.yall:
        e(f'buffer_store_dwordx4 v[28:31], v60, {sr(S_WS)}, s68 offen {o.stf}')
        e(f'buffer_store_dwordx4 v[32:35], v61, {sr(S_WS)}, s69 offen {o.stf}')
    else:
      for i in range(6):
        ystore(i, YA + i)
        e(f's_waitcnt vmcnt({o.ythr})')
        if o.ysleep: e(f's_sleep {o.ysleep}')
    publish(16, 59, 'y', False)
    if o.diag == 1: stamp(8)
    e('L_noy:')
    e(f's_cmp_lg_u32 s{WAVE}, 4')
    e('s_cbranch_scc1 L_hend')
    e('L_guard:')
    e('ds_read_b32 v11, v10 offset:4')
    e('s_waitcnt lgkmcnt(0)')
    e('v_readfirstlane_b32 s46, v11')
    e('s_nop 3')
    e('s_cmp_eq_u32 s46, 4')
    e(f's_cbranch_scc1 {"L_wb" if o.wbat else "L_hend"}')
    e('s_cmp_lt_u32 s46, 0x10000')
    e('s_cbranch_scc0 L_rescue')
    e('s_sleep 16')
    e('s_branch L_guard')
    if o.wbat:
        e('L_wb:')
        e('s_lshr_b32 s46, s2, 3')
        e(f's_cmp_lg_u32 s46, 5')
        e('s_cbranch_scc1 L_hend')
        ldswait(0, 'eq', 4, 'w', 2)
        e('buffer_wbl2 sc1')
        e('s_waitcnt vmcnt(0)')
        e('s_branch L_hend')
    e('L_rescue:')
    e(f's_mov_b32 s{MODE}, 1')
    e(f's_mov_b32 s{HAS3}, 1')
    e(f's_mov_b32 s{NOTASK}, 0')
    e(f's_lshr_b32 s{TW0}, s{NB}, 1')
    e(f's_add_u32 s{TW1}, s{NB}, 9')
    e(f's_lshr_b32 s{TW1}, s{TW1}, 1')
    e(f's_mov_b32 s{PAIR}, 0')
    e('s_branch L_prod')
    e('L_hend:')
    if o.padto and o.padev[0] == 'h': padloop('h')
    if o.diag == 1:
        stamp(9)
        dump(10)
    e('L_end:')
    e('s_endpgm')
    if o.hfirst:
        m0, h0 = mark['main0'], mark['help0']
        e.L = e.L[:m0] + e.L[h0:] + ['.p2align 6'] + e.L[m0:h0]
    e('L_codeend:')
    e('.section .rodata,"a"')
    e('.p2align 6')
    e(f'.amdhsa_kernel {KN}')
    for x in ['next_free_vgpr 256', 'next_free_sgpr 102', 'accum_offset 256', 'group_segment_fixed_size 0', 'kernarg_size 40',
              'user_sgpr_count 2', 'user_sgpr_kernarg_segment_ptr 1', 'system_sgpr_workgroup_id_x 1']:
        e('  .amdhsa_' + x)
    e('.end_amdhsa_kernel')
    n = haz.check(e.L)
    if n: print(f'{n} hazards', file=sys.stderr)
    return f'; @launch grid=({NWG},1,1) block=(512,1,1) lds={LDS_BYTES}\n' + HEADER + e.text()

def opts(argv=None):
    ap = argparse.ArgumentParser()
    ap.add_argument('-o', default='k.s')
    for nm, d in [('diag', 0), ('pf', 16), ('pf0', 8), ('wgap', 4), ('wres', 4), ('wsc1', 0), ('nfill', 2), ('fstride', 128), ('sleep', 0), ('maxpoll', 3000), ('nopoll', 0),
                  ('hprio', 3), ('hprio2', 0), ('mprio', 2), ('epre', 0), ('ein', 3), ('dpre', 7), ('b0early', 0), ('mtouch', 4), ('gate', 1), ('swapab', 0), ('d0p', 1), ('map', 1), ('chain', 4), ('ymid', 0), ('ymid2', 2), ('wbat', 0), ('jit', 0), ('apath', 0), ('rmap', 0), ('yall', 0), ('ydrow', 6), ('flat0', 1), ('flatzz', 0), ('tagp', 1), ('tpf', 5), ('xl', 1), ('p0plain', 0), ('onepoll', 0), ('epoll', 1), ('ppoll', 0), ('yprio', 3), ('ysleep', 0), ('vt', 94), ('tla', 40), ('tskip', 2), ('gearly', 1), ('chfrom', 8), ('oj', 9), ('nolds', 0), ('now', 0), ('wsame', 0), ('grow', 1), ('vbd', 33), ('nopk', 1), ('padto', 0), ('npdelay', 0), ('opre', 0), ('etouch', 0), ('orev', 1), ('b0late', 1), ('dec', 1), ('tail', 1), ('xla', 9), ('hold', 1), ('prest', 0), ('xslot', 0), ('noclosed', 0), ('cpf', 1), ('hfirst', 1), ('warmb', 1), ('wsfirst', 0), ('flead', 6), ('ythr', 6), ('xrow', 3), ('padstep', 33), ('probe', 0), ('probeoff', 0x4000000)]:
        ap.add_argument('--' + nm, type=int, default=d)
    ap.add_argument('--oflags', default='')
    ap.add_argument('--pmap', default='18,18,18,18,18,18,18,18')
    ap.add_argument('--padev', default='m0')
    ap.add_argument('--trig', default='10,25,40')
    ap.add_argument('--yrow', default='0,7,2,9,5,11')
    ap.add_argument('--pfcs', default='4,5,5,5,5')
    ap.add_argument('--fflags', default='')
    ap.add_argument('--fleads', default='6,6,6,6,6')
    ap.add_argument('--stf', default='sc1')
    ap.add_argument('--marks', default='0,4,8,12,16,24,33,47,58')
    o = ap.parse_args(argv)
    o.marks = [int(x) for x in o.marks.split(',')]
    o.yrow = [int(x) for x in o.yrow.split(',')]
    o.pfcs = [int(x) for x in o.pfcs.split(',')]
    o.fleads = [int(x) for x in o.fleads.split(',')]
    o.trig = [int(x) for x in o.trig.split(',')]
    return o

if __name__ == '__main__':
    o = opts()
    open(o.o, 'w').write(gen(o))
```

```python
import re, sys, argparse
import haz

KN = 'standalone__autoregressive_conv_wavernn__speech_kernel'
NWG = 252
NPROD = 144
ARR = 160 * 288
X_D0, X_O, X_D1 = 0, ARR, 2 * ARR
CNT = 3 * ARR
SCR = CNT + 64
LDS_BYTES = SCR + 18432
NSTEP = 106
WOFF = int(__import__('os').environ.get('WOFF', '0x100000'), 0)
NONCE = 0x10000
DIAG = 0x800000
WS_REC = max(0x1000000, WOFF + 0x400000, int(__import__('os').environ.get('WSREC', '0'), 0))
TAGINC = 0x9E3779B9
R = 12


HEADER = """; Gated dilated causal convolution, out = tanh(f) * sigmoid(g), h = [f g] = sum_i x[t + 2i - 60] w[i].
;
; A workgroup owns 144 output pairs x 16 output columns (f and g). Waves 0-3 run the matrix loop (two column tiles x
"""

class Em:
    def __init__(self): self.L = []
    def __call__(self, s): self.L.append(s)
    def text(self): return '\n'.join(self.L) + '\n'

def vr(a, n=1): return f'v{a}' if n == 1 else f'v[{a}:{a+n-1}]'
def sr(a, n=4): return f's[{a}:{a+n-1}]'

def streams():
    out = []
    for typ in (0, 1):
        S = []
        pid = [0]
        def add(arr, chunk, cs, acc):
            for c in cs: S.append((pid[0], arr, chunk, c, acc))
            pid[0] += 1
        if typ == 0:
            add('O', 0, range(16), 'P'); add('O', 1, range(16), 'P'); add('O', 'rem', range(0, 2), 'P')
            for q in range(4): add('D', q, range(16), 'Q')
            add('D', 'rem', range(8), 'Q')
        else:
            add('O', 2, range(16), 'P'); add('O', 3, range(16), 'P'); add('O', 'rem', range(2, 8), 'P')
            for q in range(4): add('D', q, range(15), 'Q')
            add('D', 'rem', range(8), 'Q')
        assert len(S) == NSTEP
        out.append(S)
    return out

S_X, S_W, S_WO, S_WS, S_OUT, S_DBG = 20, 24, 28, 32, 36, 40
WAVE, NB, BAT, PAR, MB, BOFF = 14, 15, 16, 17, 18, 19
PAIR0 = 3
XB = 52
MASK = 53
TW0, TW1, TW2, PAIR, HAS3, MODE, SCRB, TAG, LAST, NPOLL = 44, 45, 54, 55, 56, 57, 58, 59, 60, 61
TS = 62
TYP, WSO = 68, 69
EARLY, XK, YT, FIDX = 90, 91, 92, 93
NOTASK = 94
FO = 97
C2L, CNL, C60 = 90, 92, 94
ST0 = 70

def srd(e, d, ptr, rec, add=None):
    if add is None:
        e(f's_mov_b32 s{d}, s{ptr}')
        e(f's_and_b32 s{d+1}, s{ptr+1}, 0xffff')
    else:
        e(f's_add_u32 s{d}, s{ptr}, s{add}')
        e(f's_addc_u32 s{d+1}, s{ptr+1}, 0')
        e(f's_and_b32 s{d+1}, s{d+1}, 0xffff')
    e(f's_mov_b32 s{d+2}, {rec}')
    e(f's_mov_b32 s{d+3}, 0x20000')

def gen(o):
    e = Em()
    NSTR = 2 * NSTEP * 1024 + (65536 if o.tagp else 0)
    if o.tagp: o.epoll = 0
    NTASK = NPROD + (32 if o.yall else 96)
    role = ['m']
    jn = [0]
    def jit():
        if not o.jit: return
        jn[0] += 1
        k = jn[0]
        e(f's_mul_i32 s98, s2, {37 + 2 * k + o.jit * 10}')
        e(f's_mul_i32 s99, s{WAVE}, {11 + 6 * k + o.jit}')
        e('s_add_u32 s98, s98, s99')
        e('s_bitcmp1_b32 s98, 3')
        e(f's_cbranch_scc1 L_jit{k}')
        e(f's_sleep {30 + (k * 17 + o.jit * 5) % 90}')
        e(f'L_jit{k}:')
    def padloop(tag):
        e(f'L_pad{tag}:')
        e('s_memrealtime s[98:99]')
        e('s_waitcnt lgkmcnt(0)')
        e('s_sub_u32 s98, s98, s100')
        e(f's_cmp_lt_u32 s98, {o.padto}')
        e(f's_cbranch_scc1 L_pad{tag}')
    def stamp(k, lvl=1):
        if o.padto and lvl == 1 and o.padev == f'{role[0]}{k}':
            e('s_memrealtime s[100:101]'); e('s_waitcnt lgkmcnt(0)')
        if o.diag == lvl or (o.diag == 4 and lvl == 1): e(f's_memrealtime s[{ST0+2*k}:{ST0+2*k+1}]')
    def dump(nst):
        e('s_waitcnt lgkmcnt(0)')
        e('v_mov_b32 v250, 0')
        for k in range(nst): e(f'v_writelane_b32 v250, s{ST0+2*k}, {k}')
        e(f'v_writelane_b32 v250, s{NPOLL}, 13')
        e(f'v_writelane_b32 v250, s95, 12')
        e(f'v_writelane_b32 v250, s{3 if o.rmap else 2}, 14')
        e('s_getreg_b32 s46, hwreg(HW_REG_XCC_ID)')
        e('v_writelane_b32 v250, s46, 15')
        e(f's_lshl_b32 s46, s2, 3'); e(f's_add_u32 s46, s46, s{WAVE}'); e('s_lshl_b32 s46, s46, 6'); e(f's_add_u32 s46, s46, {DIAG}')
        e('v_lshl_add_u32 v251, v1, 2, s46')
        e('s_mov_b64 exec, 0xffff')
        e(f'buffer_store_dword v250, v251, {sr(S_WS)}, 0 offen')
        e('s_mov_b64 exec, -1')

    e('.amdgcn_target "amdgcn-amd-amdhsa--gfx950"')
    e('.text')
    e(f'.globl {KN}')
    e('.p2align 8')
    e(f'.type {KN},@function')
    e(f'{KN}:')
    e(f's_cmp_ge_u32 s2, {NWG}')
    e('s_cbranch_scc1 L_end')
    stamp(0)
    if o.padto and o.padev != 'm0': e('s_memrealtime s[100:101]')
    e('s_load_dwordx4 s[4:7], s[0:1], 0')
    e('s_load_dwordx4 s[8:11], s[0:1], 16')
    e('s_load_dwordx2 s[12:13], s[0:1], 32')
    e('v_lshrrev_b32 v2, 6, v0')
    e('v_and_b32 v1, 63, v0')
    e(f'v_readfirstlane_b32 s{WAVE}, v2')
    def decode():
        e('s_and_b32 s44, s2, 7')
        e('s_lshr_b32 s45, s2, 3')
        e('s_mul_i32 s46, s44, 31')
        e('s_min_u32 s44, s44, 4')
        e('s_add_u32 s46, s46, s44')
        e('s_add_u32 s46, s46, s45')
        if o.map == 0:
            e('s_mul_hi_u32 s47, s46, 68174085')
            e('s_mul_i32 s48, s47, 63')
            e('s_sub_u32 s48, s46, s48')
            e(f's_mul_hi_u32 s{NB}, s48, 613566757')
            e(f's_mul_i32 s49, s{NB}, 7')
            e('s_sub_u32 s49, s48, s49')
            e('s_mul_i32 s47, s47, 7')
            e('s_add_u32 s47, s47, s49')
        elif o.map == 1:
            e('s_mul_hi_u32 s47, s46, 477218589')
            e('s_mul_i32 s48, s47, 9')
            e(f's_sub_u32 s{NB}, s46, s48')
        else:
            e('s_mul_hi_u32 s47, s46, 34087043')
            e('s_mul_i32 s48, s47, 126')
            e('s_sub_u32 s48, s46, s48')
            e(f's_mul_hi_u32 s{NB}, s48, 306783379')
            e(f's_mul_i32 s49, s{NB}, 14')
            e('s_sub_u32 s49, s48, s49')
            e('s_mul_i32 s47, s47, 14')
            e('s_add_u32 s47, s47, s49')
        e(f's_and_b32 s{PAR}, s47, 1')
        e('s_lshr_b32 s47, s47, 1')
        e('s_cmp_ge_u32 s47, 7')
        e(f's_cselect_b32 s{BOFF}, 1152000, 0')
        e('s_cselect_b32 s48, 7, 0')
        e(f's_sub_u32 s{MB}, s47, s48')
        e(f's_mul_i32 s{XB}, s{MB}, 576')
        e(f's_add_u32 s{XB}, s{XB}, s{PAR}')
        e(f's_sub_u32 s{XB}, s{XB}, 60')
        e(f's_mul_i32 s{XB}, s{XB}, 288')
    RID = 3 if o.rmap else 2
    if o.rmap:
        e('s_and_b32 s44, s2, 3')
        e('s_lshr_b32 s45, s2, 3')
        e('s_lshl2_add_u32 s3, s45, s44')
        e('s_and_b32 s44, s2, 4')
        e('s_lshl_b32 s44, s44, 5')
        e('s_add_u32 s3, s3, s44')
    e(f's_cmp_ge_u32 s{WAVE}, 4')
    e('s_cbranch_scc1 L_helper')
    if o.cpf:
        e('s_lshr_b32 s44, s2, 3')
        e(f's_lshl_b32 s45, s{WAVE}, 5')
        e('s_add_u32 s44, s44, s45')
        e('s_sub_u32 s44, s44, 26')
        e('s_cmp_ge_u32 s44, 5')
        e('s_cbranch_scc1 L_main')
        e('s_getpc_b64 s[46:47]')
        e('L_pc:')
        e('s_lshl_b32 s44, s44, 13')
        e('v_lshl_add_u32 v2, v1, 7, s44')
        e('v_min_u32 v2, L_codeend-L_pc-4, v2')
        e('global_load_dword v63, v2, s[46:47]')
    if o.hfirst: e('s_branch L_main')
    mark = {'main0': len(e.L)}
    e('L_main:')
    e(f's_mov_b32 s{MASK}, 0xffff0000')
    e(f's_mov_b32 s{NPOLL}, 0')
    if o.diag: e('s_mov_b32 s95, 0')
    decode()

    VXO, VXOR, VXD, VXDR, VWL, VEX, VEXP, VOUT = 30, 31, 32, 33, 34, 35, 36, 37
    VF = 40
    VA = 48
    VCL = 60
    e('v_mul_u32_u24 v3, 3641, v0')
    e('v_lshrrev_b32 v3, 16, v3')
    e('v_mul_u32_u24 v2, 18, v3')
    e('v_sub_u32 v2, v0, v2')
    e('v_mul_u32_u24 v3, 1152, v3')
    e('v_lshl_add_u32 v3, v2, 4, v3')
    e(f's_add_u32 s46, s{XB}, 576')
    e(f'v_add_u32 v{VA}, s46, v3')
    e('v_mov_b32 v5, 16192')
    e('v_mov_b32 v6, 17056')
    for k in range(1, 12):
        e('v_cmp_le_u32 vcc, 14, v2')
        e('v_add_u32 v3, 4, v2')
        e('v_subrev_u32 v4, 14, v2')
        e('v_cndmask_b32 v7, v5, v6, vcc')
        e('v_cndmask_b32 v2, v3, v4, vcc')
        e(f'v_add_u32 v{VA+k}, v{VA+k-1}, v7')
    e(f's_lshl_b32 s50, s{WAVE}, 10')
    e(f's_add_u32 s50, s50, {X_O}')
    e(f's_add_u32 s51, s50, {4096*11}')
    e('s_movk_i32 s49, 4096')
    if o.orev:
        e(f's_bitcmp0_b32 s{NB}, 0')
        e('s_cbranch_scc1 L_fwd')
        for k in range(5): e(f'v_swap_b32 v{VA+k}, v{VA+10-k}')
        e(f's_add_u32 s50, s50, {4096*10}')
        e('s_movk_i32 s49, -4096')
        e('L_fwd:')
    e(f'v_mov_b32 v{VF+1}, {CNT}')
    for r in range(4, 8): e(f'v_mov_b32 v{r}, 0')
    e(f'ds_write_b128 v{VF+1}, v[4:7]')
    e(f'ds_write_b128 v{VF+1}, v[4:7] offset:16')
    e('s_waitcnt lgkmcnt(0)')
    e(f's_load_dword s{TAG}, s[12:13], {NONCE}')
    srd(e, S_X, 4, 1152000, add=BOFF)
    def odma(k):
        e(f's_mov_b32 m0, s{51 if k == 11 else 50}')
        e('s_add_u32 s50, s50, s49')
        e(f'buffer_load_dwordx4 v{VA+k}, {sr(S_X)}, 0 offen lds')
    def etouch():
        e(f'buffer_load_dword v62, v9, {sr(S_X)}, 0 offen')
    if o.mtouch and o.tskip:
        e(f's_lshr_b32 s47, s{RID}, 4')
        e('s_lshr_b32 s47, 0x33, s47')
        e('s_lshl_b32 s47, s47, 31')
    if o.mtouch:
        e('v_min_u32 v8, 39, v1')
        e('v_lshrrev_b32 v9, 2, v8')
        e(f's_mul_i32 s46, s{WAVE}, 10')
        e('v_add_u32 v9, s46, v9')
        e(f'v_mul_u32_u24 v9, {4*1152}, v9')
        e('v_and_b32 v8, 3, v8')
        e('v_mul_u32_u24 v8, 92, v8')
        e(f's_and_b32 s46, s{NB}, {7 if o.mtouch == 4 else 3}')
        e(f's_mul_i32 s46, s46, {576 if o.mtouch == 4 else 1152}')
        e(f's_add_u32 s46, s46, s{XB}')
        e('v_add3_u32 v9, v9, v8, s46')
        if o.tskip == 1: e('v_or_b32 v9, s47, v9')
    if o.mtouch == 4 and o.tskip == 2:
        e('s_cmp_eq_u32 s47, 0')
        e('s_cbranch_scc1 L_tn')
        e('s_waitcnt lgkmcnt(0)')
        e('L_tn:')
    if o.mtouch in (2, 4): etouch()
    if o.padto and o.padev == 'm13':
        e('s_waitcnt vmcnt(0)'); stamp(13)
    if o.padto and o.padev == 'm14':
        odma(0); e('s_sub_u32 s50, s50, s49'); e('s_waitcnt vmcnt(0)'); stamp(14)
    if o.padto: stamp(10)
    for k in range(o.opre): odma(k)
    e('s_barrier')
    stamp(1)
    jit()
    if o.mtouch == 3: etouch()
    for k in range(o.opre, 12):
        if k == 11:
            e(f's_cmp_lg_u32 s{WAVE}, 0')
            e('s_cbranch_scc1 L_o11')
        odma(k)
    e('L_o11:')
    if o.mtouch == 1: etouch()
    srd(e, S_WS, 12, WS_REC)
    if o.epoll:
        assert o.mtouch in (1, 4) and o.tskip
        e(f's_and_b32 s{TYP}, s{WAVE}, 1')
        e(f's_lshl_b32 s{FO}, s{TYP}, 13')
        e('s_mov_b32 s96, s47')
        e('s_xor_b32 s46, s47, 0x80000000')
        e(f'v_min_u32 v{VF}, 31, v1')
        e(f'v_lshlrev_b32 v{VF}, 7, v{VF}')
        e(f'v_or_b32 v2, s46, v{VF}')
        e(f'buffer_load_dword v{VF+4}, v2, {sr(S_WS)}, s{FO} offen sc1')
    srd(e, S_OUT, 8, 1152000, add=BOFF)
    srd(e, S_DBG, 10, 256)
    e('v_and_b32 v2, 15, v1')
    e('v_lshrrev_b32 v3, 4, v1')
    e('v_subrev_u32 v5, 4, v2')
    e('v_add_u32 v6, 8, v2')
    e('v_cmp_gt_u32 vcc, 4, v2')
    e('v_cmp_le_u32 s[46:47], 12, v2')
    e(f's_and_b32 s{TYP}, s{WAVE}, 1')
    e(f's_lshr_b32 s48, s{WAVE}, 1')
    e('v_cndmask_b32 v5, v5, v6, vcc')
    e('v_cndmask_b32 v5, v5, v2, s[46:47]')
    e('v_mul_u32_u24 v5, 9, v5')
    e('v_mul_u32_u24 v4, 288, v5')
    e('v_lshl_add_u32 v6, v3, 4, v4')
    e('v_and_b32 v7, 1, v3')
    e('v_lshl_add_u32 v7, v7, 4, v4')
    e('v_lshrrev_b32 v8, 1, v3')
    e('v_mul_u32_u24 v8, 2304, v8')
    e('v_add_u32 v7, v7, v8')
    e('v_add_u32 v7, 256, v7')
    e(f's_mul_i32 s49, s{TYP}, {X_D1}')
    e(f'v_add_u32 v{VXO}, {X_O}, v6')
    e(f'v_add_u32 v{VXOR}, {X_O}, v7')
    e(f'v_add_u32 v{VXD}, s49, v6')
    e(f'v_add_u32 v{VXDR}, s49, v7')
    e('v_lshlrev_b32 v6, 4, v1')
    e(f's_mul_i32 s49, s{WAVE}, 9216')
    e(f's_add_u32 s49, s49, {X_O}')
    e(f'v_add_u32 v{VEX}, s49, v6')
    e(f's_xor_b32 s49, s{WAVE}, 1')
    e('s_mul_i32 s49, s49, 9216')
    e(f's_add_u32 s49, s49, {X_O}')
    e(f'v_add_u32 v{VEXP}, s49, v6')
    e('v_and_b32 v8, 0x39, v1')
    e('v_bfe_u32 v9, v1, 1, 1')
    e('v_lshl_add_u32 v8, v9, 2, v8')
    e('v_bfe_u32 v9, v1, 2, 1')
    e('v_lshl_add_u32 v8, v9, 1, v8')
    e(f'v_lshlrev_b32 v{VWL}, 4, v8')
    e(f's_mul_i32 s49, s{TYP}, 576')
    e(f's_add_u32 s49, s49, s{XB}')
    e(f's_add_u32 s49, s49, {60*288}')
    e(f's_lshl_b32 s50, s{NB}, 5')
    e('s_add_u32 s49, s49, s50')
    e('s_lshl_b32 s50, s48, 4')
    e('s_add_u32 s49, s49, s50')
    e('v_mul_u32_u24 v8, 1152, v5')
    e('v_lshl_add_u32 v8, v3, 2, v8')
    e(f'v_add_u32 v{VOUT}, s49, v8')
    e(f'v_add_u32 v{VOUT+1}, 3456, v{VOUT}')
    e(f'v_add_u32 v{VOUT+2}, 6912, v{VOUT}')
    e(f's_lshl_b32 s49, s{NB}, 1')
    e('s_add_u32 s49, s49, s48')
    e(f's_mul_i32 s49, s49, {NSTR}')
    e(f's_mul_i32 s{WSO}, s{TYP}, {NSTEP*1024}')
    e(f's_add_u32 s{WSO}, s{WSO}, s49')
    e(f's_add_u32 s{WSO}, s{WSO}, {WOFF + (16384 if o.tagp else 0)}')
    if o.tagp:
        e(f's_lshl_b32 s96, s{TYP}, 15')
        e('s_add_u32 s96, s96, s49')
        e(f's_add_u32 s96, s96, {WOFF + 2*NSTEP*1024}')
    e(f's_mov_b32 s{C2L}, 0x4038aa3b'); e(f's_mov_b32 s{C2L+1}, 0x4038aa3b')
    e(f's_mov_b32 s{CNL}, 0xbfb8aa3b'); e(f's_mov_b32 s{CNL+1}, 0xbfb8aa3b')
    e(f's_mov_b32 s{C60}, 0x42700000')
    e(f'v_min_u32 v{VF}, 31, v1')
    e(f'v_lshlrev_b32 v{VF}, 7, v{VF}')
    e(f'v_min_u32 v{VF+6}, 47, v1')
    e(f'v_lshlrev_b32 v{VF+6}, 7, v{VF+6}')
    e(f'v_mov_b32 v{VF+2}, 1')
    e('s_lshl_b32 s46, s48, 2')
    e(f'v_add_u32 v{VF+5}, s46, v{VF+1}')
    e(f's_or_b32 s46, s2, s{WAVE}')
    e('v_or_b32 v2, s46, v1')
    e('v_cmp_eq_u32 vcc, 0, v2')
    e(f'v_mov_b32 v{VCL}, -16')
    e(f'v_mov_b32 v{VCL+1}, -16')
    e(f'v_mov_b32 v3, {NONCE}')
    e(f'v_cndmask_b32 v{VCL}, v{VCL}, 4, vcc')
    e(f'v_cndmask_b32 v{VCL+1}, v{VCL+1}, v3, vcc')
    if o.yall:
        e(f's_lshr_b32 s46, s{NB}, 1')
        e(f's_add_u32 s47, s{NB}, 9')
        e('s_lshr_b32 s47, s47, 1')
        e('v_mov_b32 v4, s46')
        e('v_mov_b32 v5, s47')
        e('v_cmp_gt_u32 vcc, 32, v1')
        e('v_and_b32 v2, 7, v1')
        e('v_and_b32 v3, 15, v1')
        e('v_cndmask_b32 v4, v5, v4, vcc')
        e('v_min_u32 v3, 11, v3')
        e('v_mad_u32_u24 v2, v2, 9, v4')
        e('v_mad_u32_u24 v3, v3, 9, v4')
        e('v_lshlrev_b32 v2, 7, v2')
        e('v_lshlrev_b32 v3, 7, v3')
    e(f's_lshl_b32 s{FO}, s{TYP}, 13')
    if o.warmb:
        e(f's_cmp_eq_u32 s{TYP}, 1')
        e('s_cbranch_scc1 L_warmB')
        e('L_warmret:')
    e(f's_waitcnt vmcnt({(1 if o.mtouch == 1 else 0) + o.epoll}) lgkmcnt(0)')
    stamp(2)
    if o.padto and o.padev in ('m11', 'm12'):
        e(f's_lshr_b32 s46, s{RID}, 4')
        e('s_lshr_b32 s46, 0x33, s46')
        e('s_bitcmp1_b32 s46, 0')
        e(f's_cbranch_scc{1 if o.padev == "m11" else 0} L_pk')
        e('s_memrealtime s[100:101]'); e('s_waitcnt lgkmcnt(0)')
        e('L_pk:')
    e('s_mov_b64 exec, 1')
    e(f'ds_add_u32 v{VF+1}, v{VF+2} offset:8')
    e('s_mov_b64 exec, -1')
    e(f's_add_u32 s{TAG}, s{TAG}, {TAGINC}')
    e(f'v_mov_b32 v{VF+3}, s{TAG}')
    def flagwait(tag, vaddr, back):
        e(f'L_fw{tag}:')
        if o.diag and len(tag) == 2: e(f's_add_u32 s95, s95, {1 << (5 * int(tag[1]))}')
        e(f'buffer_load_dword v{VF+4}, v{vaddr}, {sr(S_WS)}, s{FO} offen sc1')
        e(f'ds_read_b32 v{VF+7}, v{VF+1} offset:12')
        e(f's_add_u32 s{NPOLL}, s{NPOLL}, 1')
        e('s_waitcnt vmcnt(0) lgkmcnt(0)')
        e(f'v_cmp_ne_u32 vcc, v{VF+3}, v{VF+4}')
        e(f'v_readfirstlane_b32 s46, v{VF+7}')
        e('s_nop 3')
        e(f's_cbranch_vccz {back}')
        e('s_cmp_lg_u32 s46, 0')
        e(f's_cbranch_scc1 {back}')
        e(f's_cmp_lg_u32 s{NPOLL}, {o.maxpoll}')
        e(f's_cbranch_scc1 L_fw{tag}')
        e(f'v_mov_b32 v{VF+7}, 0x10000')
        e('s_mov_b64 exec, 1')
        e(f'ds_add_u32 v{VF+1}, v{VF+7} offset:4')
        e('s_mov_b64 exec, -1')
        e(f's_branch L_fw{tag}')
    if o.epoll:
        e('s_cmp_eq_u32 s96, 0')
        e('s_cbranch_scc1 L_gate')
        e('s_waitcnt vmcnt(0)')
        e(f'v_cmp_ne_u32 vcc, v{VF+3}, v{VF+4}')
        e('s_nop 4')
        e('s_cbranch_vccz L_go')
    if o.gate:
        e('L_gate:')
        e(f'ds_read_b32 v{VF+4}, v{VF+1} offset:8')
        e('s_waitcnt lgkmcnt(0)')
        e(f'v_and_b32 v{VF+4}, 0xffff, v{VF+4}')
        e(f'v_cmp_gt_u32 vcc, 0x400, v{VF+4}')
        e('s_nop 4')
        e('s_cbranch_vccz L_gate2')
        e('s_sleep 1')
        e('s_branch L_gate')
        e('L_gate2:')
    if o.ppoll:
        e(f'buffer_load_dword v{VF+4}, v{VF}, {sr(S_WS)}, s{FO} offen sc1')
        e('L_pp:')
        for a_, b_ in ((VF + 4, 62), (62, VF + 4)):
            e(f's_sleep {o.ppoll}')
            e(f'buffer_load_dword v{b_}, v{VF}, {sr(S_WS)}, s{FO} offen sc1')
            e('s_waitcnt vmcnt(1)')
            e(f'v_cmp_ne_u32 vcc, v{VF+3}, v{a_}')
            e(f's_add_u32 s{NPOLL}, s{NPOLL}, 1')
            e('s_nop 3')
            e('s_cbranch_vccz L_go')
        e(f's_cmp_lt_u32 s{NPOLL}, 40')
        e('s_cbranch_scc1 L_pp')
        e(f's_mov_b32 s{NPOLL}, 0')
    if o.p0plain:
        e(f'buffer_load_dword v{VF+4}, v{VF}, {sr(S_WS)}, s{FO} offen')
        e('s_waitcnt vmcnt(0)')
        e(f'v_cmp_ne_u32 vcc, v{VF+3}, v{VF+4}')
        e('s_nop 4')
        e('s_cbranch_vccz L_go')
    if o.onepoll:
        e(f's_cmp_lt_u32 s{WAVE}, 2')
        e('s_cbranch_scc1 L_fw0')
        e('L_op:')
        e(f'ds_read_b32 v{VF+7}, v{VF+1} offset:8')
        e('s_waitcnt lgkmcnt(0)')
        e(f's_add_u32 s46, s{TYP}, 16')
        e(f'v_lshrrev_b32 v{VF+7}, s46, v{VF+7}')
        e(f'v_and_b32 v{VF+7}, 1, v{VF+7}')
        e(f'v_cmp_eq_u32 vcc, 0, v{VF+7}')
        e('s_nop 4')
        e('s_cbranch_vccnz L_op')
        e('s_branch L_go2')
    if not o.tagp: flagwait('0', VF, 'L_go')
    e('L_go:')
    jit()
    if o.tagp: e('s_mov_b32 s50, s96')
    if o.onepoll:
        e(f's_lshl_b32 s46, 0x10000, s{TYP}')
        e(f'v_mov_b32 v{VF+7}, s46')
        e('s_mov_b64 exec, 1')
        e(f'ds_or_b32 v{VF+1}, v{VF+7} offset:8')
        e('s_mov_b64 exec, -1')
        e('L_go2:')
    stamp(3)
    e('L_gw:')
    e(f'ds_read_b32 v{VF+7}, v{VF+1} offset:8')
    e('s_waitcnt lgkmcnt(0)')
    e(f'v_and_b32 v{VF+7}, 0xff, v{VF+7}')
    e(f'v_cmp_ne_u32 vcc, 4, v{VF+7}')
    e('s_nop 4')
    e('s_cbranch_vccnz L_gw')
    stamp(4)
    e(f's_setprio {o.mprio}')
    e(f's_cmp_eq_u32 s{TYP}, 1')
    e('s_cbranch_scc1 L_typeB')

    ACC = {'P': 64, 'Q': 100}
    WR, TMP = 136, 224
    XRING = [200 + 4 * i for i in range(6)]
    XWIN = [4 + 4 * i for i in range(6)] + [240 + 4 * i for i in range(4)]
    VC = 28
    PF = o.pf
    GT = 98
    wflags = {0: '', 1: ' sc1', 2: ' nt', 3: ' sc0'}[o.wsc1]
    for typ, S in enumerate(streams()):
        if typ == 1:
            e('.p2align 6')
            if o.warmb: e('L_warmB:'); e('s_branch L_warmret')
            e('L_typeB:')
        ops = []
        vstart = {}
        lastv = o.vt - 1
        v0 = 0
        G0 = 0
        if o.flat0:
            for g in range(16):
                vstart[g] = len(ops)
                for j in (range(9) if g % 2 == 0 or not o.flatzz else range(8, -1, -1)): ops.append((g, j))
            v0 = G0 = 16
        while v0 <= lastv:
            ch = 1 if v0 < o.chfrom + G0 else min(o.chain, lastv + 1 - v0)
            n0 = len(ops)
            for j in range(8, -1, -1):
                us = range(ch) if j % 2 == 0 else range(ch - 1, -1, -1)
                first_ = [u for u in us if v0 + u - j == 0 or (0 < v0 + u - j < NSTEP and S[v0+u-j][4] == 'Q' and S[v0+u-j-1][4] == 'P')]
                if first_: us = range(ch)
                for u in us:
                    if G0 <= v0 + u - j < NSTEP: ops.append((v0 + u - j, j))
            for u in range(ch): vstart[v0 + u] = n0 + (len(ops) - n0) * u // ch
            v0 += ch
        ntail = len(ops)
        if o.tail:
            for j in range(9):
                for g in range(o.vt - j, NSTEP): ops.append((g, j))
        assert len(ops) == NSTEP * 9 and len(set(ops)) == len(ops)
        N = len(ops)
        def key(n):
            g, j = ops[n]
            pid, arr, ch, c, acc = S[g]
            k = (pid, arr, ch, c + j)
            if n >= ntail and g < GT: k = k + ((n,) if not o.hold else ('h',))
            return k
        first, last = {}, {}
        for n in range(N):
            first.setdefault(key(n), n); last[key(n)] = n
        wfirst, wlast = {}, {}
        for n, (g, j) in enumerate(ops):
            wfirst.setdefault(g, n); wlast[g] = n
        tasks = []
        for k, n0 in first.items():
            win = o.tail and k[2] == 'rem' and k[1] == 'D'
            la = o.xla if n0 < ntail else 6
            if n0 >= ntail and ops[n0][1] == 0: la = o.tla
            elif win: la = 12
            tasks.append([n0 - la, n0 - 1, 'X', k])
        for g in range(NSTEP):
            rel = -100 + g if g < o.pf0 else max(0, wfirst[g] - 9 * PF)
            if o.tagp and g < 16:
                rel = -100 + g if g < 4 else max(0, wfirst[g] - 9 * o.tpf)
                tasks.append([rel, wfirst[g & ~1] - 9, 'W', g])
                continue
            tasks.append([rel, wfirst[g] - 1, 'W', g])
        def at(v, off=0): return vstart[v] + off
        firstD = min(n for n in range(N) if S[ops[n][0]][1] == 'D')
        lastO = max(n for n in range(N) if S[ops[n][0]][1] == 'O')
        lastP = {j: max(n for n in range(N) if ops[n][1] == j and S[ops[n][0]][4] == 'P') for j in range(9)}
        slow = []
        vused = set()
        def check(v, off, cnt, tag):
            tasks.append([at(v - 1, 3), at(v - 1, 8), 'L', (f'ds_read_b32 v{VC}, v{VF+1} offset:{off}', ('c', tag))])
            tasks.append([at(v, 0), at(v, 1), 'C', (f'v_cmp_ne_u32 vcc, {cnt}, v{VC}', ('c', tag))])
            tasks.append([at(v, 6), at(v, 7), 'I', [f's_cbranch_vccnz L_slow{typ}{tag}', f'L_back{typ}{tag}:']])
            slow.append((tag, off, cnt))
            vused.add(v)
            return at(v, 8)
        def add1(pos, off):
            tasks.append([pos, pos + 4, 'A', off])
        vD = [v for v in vstart if vstart[v] <= firstD - o.xla][-1] - 1
        okD = check(vD, 16, 4, 'D')
        assert okD <= firstD - o.xla
        add1(lastO, 20)
        VP = 47
        okR = check(VP, 20, 4, 'R')
        for j in range(9):
            assert lastP[j] + 12 < at(VP + 1 + j, 2)
            tasks.append([at(VP + 1 + j, 2), at(VP + 1 + j, 8), 'L', (f'ds_write_b128 v{VEX}, {vr(ACC["P"]+4*j,4)} offset:{1024*j}', ('pw', j))])
        tasks.append([at(VP + 10, 0), at(VP + 10, 4), 'A', 'pair'])
        VQ = VP + 13
        okP = check(VQ, 'pair', 2, 'P')
        for j in range(9):
            tasks.append([at(VQ + 1 + j, 2), at(VQ + 1 + j, 8), 'L', (f'ds_read_b128 {vr(TMP+4*(j&1),4)}, v{VEXP} offset:{1024*j}', ('pr', j))])
            v = VQ + 2 + j
            pos = at(v, 8 - (j + 2) - 1) if j <= 6 else at(v, 8 - (j - 7) - 1)
            sh = 1 if j >= 7 else 0
            if o.chain > 1:
                own = [n for n in range(N) if ops[n][1] == j]
                pos = [a_ + 10 for a_, b_ in zip(own, own[1:]) if b_ - a_ >= 14 and a_ + 9 >= at(v, 0) ][0]
                sh = 0
                tasks[-1][0] = pos - 9; tasks[-1][1] = pos - 4
                tasks[-1][3] = (f'ds_read_b128 {vr(TMP+4*(j&3),4)}, v{VEXP} offset:{1024*j}', ('pr', j))
            tasks.append([pos - 1 + sh, pos - 1 + sh, 'Q', (j, 0)])
            tasks.append([pos + sh, pos + sh, 'Q', (j, 1)])
        if typ == 0:
            tasks.append([at(64, 4), at(64, 8), 'S', f'buffer_store_dword v{VCL+1}, v{VCL}, {sr(S_DBG)}, 0 offen sc1'])
            tasks.append([at(84, 4), at(84, 8), 'S', f'buffer_store_dword v{VF+3}, v{VCL+1}, {sr(S_WS)}, 0 offen sc1'])
        fslow = []
        kslow = []
        if o.tagp:
            for g in range(0, 16, 2):
                n0 = wfirst[g]
                if g < 4: continue
                tasks.append([n0 - 8, n0 - 7, 'K', g])
                tasks.append([n0 - 2, n0 - 1, 'I', ['s_cmp_lg_u64 s[48:49], 0', f's_cbranch_scc1 L_ks{typ}{g}', f'L_kb{typ}{g}:']])
        passes = {}
        for g in range(NSTEP): passes.setdefault(S[g][0], g)
        need = [(passes[1], VF, 32 + 64 * typ), (32, VF + 6, 128), (passes[4], VF, 176), (passes[5], VF, 208), (passes[6], VF + 6, 240)]
        if o.yall: need[2:] = [(passes[4], 2, 176), (passes[5], 2, 176 + 72), (passes[6], 3, 176 + 144)]
        for ci, (gn, va, idx) in enumerate(need):
            v = gn - o.pfcs[ci] - 1
            while v in vused: v -= 1
            tasks.append([at(v - o.fleads[ci], 4), at(v - o.fleads[ci], 8), 'F', (va, idx, ci)])
            tasks.append([at(v, 0), at(v, 1), 'G', ci])
            tasks.append([at(v, 6), at(v, 7), 'I', [f's_cbranch_vccnz L_fw{typ}{ci}', f'L_fb{typ}{ci}:']])
            fslow.append((ci, va))
            assert v not in vused, v
            for t in tasks:
                if t[2] == 'W' and (t[3] >= gn): t[0] = max(t[0], at(v, 8))
        tasks.append([at(v + 1, 2), at(v + 1, 8), 'A', 4])
        if typ == 0:
            for lvl, v in enumerate(o.trig): tasks.append([at(v, 2), at(v, 8), 'P', lvl + 1])
            if o.wbat: tasks.append([ntail + o.wbat, ntail + o.wbat + 6, 'P', 4])
        tasks.sort(key=lambda t: (t[0], t[1]))
        vq, lq = [], []
        dirty = [False]
        xreg, busy = {}, {}
        wn = [0]
        wr = {}
        lastw = [-100]
        later = []
        BIG = [WR + 4 * i for i in range(16)] + XWIN + [ACC['P'] + 4 * i for i in range(9)]
        for i in range(9): busy[ACC['P'] + 4 * i] = at(VP + 12)
        until = {}
        if o.chain > 1:
            BIG += XRING + [VA, VA + 4, VA + 8]
            for i in range(9):
                BIG.append(ACC['Q'] + 4 * i)
                until[ACC['Q'] + 4 * i] = min(n for n in range(N) if ops[n][1] == i and S[ops[n][0]][4] == 'Q') - 3
        def freeregs(n, end): return [x for x in BIG if busy.get(x, -1) <= n and end < until.get(x, 10**9)]
        def freepairs(n, end):
            f_ = set(freeregs(n, end))
            return [x for x in sorted(f_) if x % 8 == PAR8.get(x, -1) and x + 4 in f_]
        PAR8 = {x: x % 8 for x in list(range(WR, WR + 64, 8)) + [4, 12, 20, 240, 248, 200, 208, 216, 100, 108, 116, 124, VA]}
        def kcheck(g):
            vwait(g + 1)
            for i, gg in enumerate((g, g + 1)):
                a_ = wr[gg] - 2
                em(f'v_bitop3_b32 v{VC+i}, v{a_+1}, v{a_+6}, v{VF+3} bitop3:0x7e')
            em(f'v_or_b32 v{VC}, v{VC}, v{VC+1}')
            em(f'v_cmp_ne_u32 s[48:49], 0, v{VC}')
            kslow.append((g, wr[g] - 2, wr[g + 1] - 2))
        def wok(t, n):
            if t[2] != 'W': return True
            if t[3] != wn[0]: return False
            if o.tagp and t[3] < 16:
                return bool(freepairs(n, wlast[t[3]])) and (n - lastw[0] >= 2 or t[1] - n <= 4)
            free = len(freeregs(n, wlast[t[3]]))
            if t[1] - n <= 9 * 3: return free > 0
            return n - lastw[0] >= o.wgap and free > o.wres
        since = {}
        fill = []
        def em(x):
            e(x)
            if not x.endswith(':'):
                for jj in since: since[jj] += 1
        def lwait(tag):
            if tag not in lq: return
            i = lq.index(tag)
            em(f's_waitcnt lgkmcnt({0 if dirty[0] else len(lq)-1-i})')
            if dirty[0]: lq.clear(); dirty[0] = False
            else: del lq[:i + 1]
        def vwait(g):
            if g not in vq: return
            i = vq.index(g)
            em(f's_waitcnt vmcnt({len(vq)-1-i})')
            del vq[:i + 1]
        def run(t, n):
            kind, p = t[2], t[3]
            if kind == 'X':
                pool = BIG if (o.chain > 1 or p[-1] == 'h' or (p[2] == 'rem' and p[1] == 'D')) else XRING
                r = [x for x in pool if busy.get(x, -1) <= n and last[p] < until.get(x, 10**9)]
                assert r, ('no x register', p, n)
                r = min(r, key=lambda x: (until.get(x, 10**9), busy.get(x, -1)))
                busy[r] = last[p]; xreg[p] = r
                arr, ch, s_ = p[1], p[2], p[3]
                if o.nolds and n > 9 * 30: return
                if ch == 'rem': em(f'ds_read_b128 {vr(r,4)}, v{VXOR if arr == "O" else VXDR} offset:{288*s_}')
                else: em(f'ds_read_b128 {vr(r,4)}, v{VXO if arr == "O" else VXD} offset:{64*ch+288*s_}')
                lq.append(p)
            elif kind == 'W':
                g = p
                if o.tagp and g < 16:
                    r = min(freepairs(n, wlast[g]), key=lambda x: (until.get(x, 10**9), busy.get(x, -1)))
                    busy[r] = busy[r + 4] = wlast[g]; wr[g] = r + 2
                    assert g == wn[0]; wn[0] += 1
                    lastw[0] = n
                    em(f'buffer_load_dwordx4 {vr(r,4)}, v{VWL}, {sr(S_WS)}, s50 offen offset:{2048*(g%2)}')
                    em(f'buffer_load_dwordx4 {vr(r+4,4)}, v{VWL}, {sr(S_WS)}, s50 offen offset:{2048*(g%2)+1024}')
                    vq.append(('h', g)); vq.append(g)
                    if g % 2 == 1:
                        if n < 0: em('s_add_u32 s50, s50, 4096')
                        else: later.append('s_add_u32 s50, s50, 4096')
                    return
                r = min(freeregs(n, wlast[g]), key=lambda x: (until.get(x, 10**9), busy.get(x, -1)))
                busy[r] = wlast[g]; wr[g] = r
                assert g == wn[0]; wn[0] += 1
                lastw[0] = n
                if o.now and g > 40: return
                if o.wsame and g > 40:
                    em(f'buffer_load_dwordx4 {vr(r,4)}, v{VWL}, {sr(S_WS)}, s{WSO} offen offset:{1024*(g%4)}{wflags}'); vq.append(g); return
                em(f'buffer_load_dwordx4 {vr(r,4)}, v{VWL}, {sr(S_WS)}, s{WSO} offen offset:{1024*(g%4)}{wflags}')
                if g % 4 == 3:
                    if n < 0: em(f's_add_u32 s{WSO}, s{WSO}, 4096')
                    else: later.append(f's_add_u32 s{WSO}, s{WSO}, 4096')
                vq.append(g)
            elif kind == 'L':
                em(p[0].replace('offset:pair', 'offset:24').replace(f'v{VF+1} offset:24', f'v{VF+5} offset:24')); lq.append(p[1])
            elif kind == 'C':
                lwait(p[1]); em(p[0])
            elif kind == 'I':
                for x in p: em(x)
            elif kind == 'A':
                em('s_mov_b64 exec, 1')
                if p == 'pair': em(f'ds_add_u32 v{VF+5}, v{VF+2} offset:24')
                else: em(f'ds_add_u32 v{VF+1}, v{VF+2} offset:{p}')
                em('s_mov_b64 exec, -1')
                lq.append(('a', p))
            elif kind == 'Q':
                p, hf = p
                lwait(('pr', p))
                q = ACC['Q'] + 4 * p; t_ = TMP + 4 * (p & (3 if o.chain > 1 else 1))
                for i in (2 * hf, 2 * hf + 1): em(f'v_add_f32 v{q+i}, v{q+i}, v{t_+i}')
            elif kind == 'S':
                assert not any(isinstance(x, tuple) and x[0] == 's' for x in vq)
                em(p); vq.append(('s', n))
            elif kind == 'F':
                em(f's_mov_b32 s{FO}, {128*p[1]}')
                em(f'buffer_load_dword v{VF+4}, v{p[0]}, {sr(S_WS)}, s{FO} offen {o.fflags}'); vq.append(('f', p[2]))
            elif kind == 'K':
                kcheck(p)
            elif kind == 'G':
                vwait(('f', p)); em(f'v_cmp_ne_u32 vcc, v{VF+3}, v{VF+4}')
            elif kind == 'P':
                em(f'v_mov_b32 v{VF+7}, {p}')
                em('s_mov_b64 exec, 1')
                em(f'ds_max_u32 v{VF+1}, v{VF+7}')
                em('s_mov_b64 exec, -1')
                lq.append(('p', p))
        def epi(j, pk):
            q = ACC['Q'] + 4 * j
            t = TMP + 8 * (j & 1)
            I = []
            if pk:
                I.append(f'v_pk_mul_f32 {vr(t,2)}, {vr(q,2)}, s[{C2L}:{C2L+1}]')
                I.append(f'v_pk_mul_f32 {vr(t+2,2)}, {vr(q+2,2)}, s[{CNL}:{CNL+1}]')
            else:
                for i in (0, 1): I.append(f'v_mul_f32 v{t+i}, s{C2L}, v{q+i}')
                for i in (2, 3): I.append(f'v_mul_f32 v{t+i}, s{CNL}, v{q+i}')
            I.append(f'v_min_f32 v{t}, s{C60}, v{t}')
            I.append(f'v_min_f32 v{t+1}, s{C60}, v{t+1}')
            for i in (0, 1, 2, 3): I.append(f'v_exp_f32 v{t+i}, v{t+i}')
            if pk:
                I.append(f'v_pk_add_f32 {vr(t+4,2)}, {vr(t,2)}, 1.0 op_sel_hi:[1,0]')
                I.append(f'v_pk_add_f32 {vr(t+6,2)}, {vr(t,2)}, -1.0 op_sel_hi:[1,0]')
                I.append(f'v_pk_fma_f32 {vr(t+4,2)}, {vr(t+4,2)}, {vr(t+2,2)}, {vr(t+4,2)}')
            else:
                for i in (0, 1): I.append(f'v_add_f32 v{t+4+i}, 1.0, v{t+i}')
                for i in (0, 1): I.append(f'v_fma_f32 v{t+4+i}, v{t+4+i}, v{t+2+i}, v{t+4+i}')
            I.append(f'v_rcp_f32 v{t+4}, v{t+4}')
            I.append(f'v_rcp_f32 v{t+5}, v{t+5}')
            if pk:
                I.append('s_nop 0')
                I.append(f'v_pk_mul_f32 {vr(t+6,2)}, {vr(t+6,2)}, {vr(t+4,2)}')
            else:
                for i in (0, 1): I.append(f'v_add_f32 v{t+6+i}, -1.0, v{t+i}')
                for i in (0, 1): I.append(f'v_mul_f32 v{t+6+i}, v{t+6+i}, v{t+4+i}')
            I.append(f'v_cvt_pk_bf16_f32 v{q}, v{t+6}, v{t+7}')
            I.append(f'buffer_store_dword v{q}, v{VOUT + j//3}, {sr(S_OUT)}, 0 offen offset:{1152*(j%3)} {o.oflags if j < o.oj else ""}')
            return I
        def cost(x): return 2 if x.startswith(('v_exp', 'v_rcp', 'buffer')) else 1
        while tasks and tasks[0][0] < 0: run(tasks.pop(0), -1)
        if o.tagp:
            for g in (0, 2):
                vwait(g + 1)
                for gg in (g + 4, g + 5):
                    t_ = [t for t in tasks if t[2] == 'W' and t[3] == gg][0]
                    tasks.remove(t_); run(t_, -1)
                kcheck(g)
                em('s_nop 2')
                em('s_cmp_lg_u64 s[48:49], 0')
                em(f's_cbranch_scc1 L_ks{typ}{g}')
                em(f'L_kb{typ}{g}:')
        inv = {n: v for v, n in vstart.items()}
        lastop = {j: max(n for n in range(N) if ops[n][1] == j) for j in range(9)}
        for n, (g, j) in enumerate(ops):
            if n in inv and o.padto and o.padev == 'm5' and inv[n] == o.padstep:
                e('s_memrealtime s[100:101]'); dirty[0] = True
            if n in inv and o.diag:
                v = inv[n]
                if o.diag == 2 and v in o.marks:
                    kk = o.marks.index(v)
                    e(f's_memtime s[{ST0+2*kk}:{ST0+2*kk+1}]'); dirty[0] = True
                if o.diag in (1, 4) and v == 33: stamp(5); stamp(6); dirty[0] = True
            if o.jit and n in inv and inv[n] in (20, 36, 44, 52, 60, 70, 90): jit()
            k = key(n)
            assert k in xreg, (k, n)
            lwait(k); vwait(g)
            acc = S[g][4]
            d = ACC[acc] + 4 * j
            if g == 0: cs = '0'
            elif acc == 'Q' and S[g-1][4] == 'P': cs = vr(ACC['P'] + 4 * j, 4)
            else: cs = vr(d, 4)
            em(f'v_mfma_f32_16x16x32_bf16 {vr(d,4)}, {vr(wr[g],4)}, {vr(xreg[k],4)}, {cs}' if not o.swapab else f'v_mfma_f32_16x16x32_bf16 {vr(d,4)}, {vr(xreg[k],4)}, {vr(wr[g],4)}, {cs}')
            if n == lastop[j]: since[j] = 0
            while later: em(later.pop(0))
            budget = 2
            TC = {'X': 1, 'W': 2, 'L': 2, 'C': 1, 'I': 0, 'A': 1, 'Q': 2, 'S': 2, 'F': 2, 'G': 1, 'P': 2, 'K': 2}
            while True:
                ready = [t for t in tasks if t[0] <= n and wok(t, n)]
                if not ready: break
                t = min(ready, key=lambda t: t[1])
                assert t[1] >= n, ('late', t, n)
                if TC[t[2]] > budget and t[1] > n:
                    fit = [u for u in ready if TC[u[2]] <= budget]
                    if not fit: break
                    t = min(fit, key=lambda t: t[1])
                tasks.remove(t); run(t, n); budget -= TC[t[2]]
            for jj in sorted(since):
                if 8 <= since[jj] < 10**6:
                    fill += epi(jj, False); since[jj] = 10**6
            budget += o.nfill - 2
            while fill and budget >= cost(fill[0]):
                budget -= cost(fill[0])
                if fill[0].startswith('buffer_store'):
                    q_ = int(re.match(r'buffer_store_dword v(\d+)', fill[0]).group(1))
                    until.pop(q_, None); busy[q_] = n + 2
                em(fill.pop(0))
            assert all(t[1] > n for t in tasks), ('late', n, [t for t in tasks if t[1] <= n])
        assert not tasks
        stamp(7)
        while fill: em(fill.pop(0))
        for jj in [jj for jj in sorted(since) if since[jj] < 10**6]:
            if since[jj] < 8: em(f's_nop {8-since[jj]-1}')
            for x in epi(jj, True): em(x)
        stamp(8)
        if o.padto and o.padev[0] == 'm': padloop(typ)
        if o.diag == 1:
            e('s_waitcnt vmcnt(0)')
            stamp(9)
            dump(10)
        if o.diag == 2:
            kk = len(o.marks)
            e(f's_memtime s[{ST0+2*kk}:{ST0+2*kk+1}]')
            dump(10)
        e('s_endpgm')
        for tag, off, cnt in slow:
            e(f'L_slow{typ}{tag}:')
            e(f'ds_read_b32 v{VC}, v{VF+5 if off == "pair" else VF+1} offset:{24 if off == "pair" else off}')
            e('s_waitcnt lgkmcnt(0)')
            e(f'v_cmp_ne_u32 vcc, {cnt}, v{VC}')
            e('s_nop 4')
            e(f's_cbranch_vccnz L_slow{typ}{tag}')
            e(f's_branch L_back{typ}{tag}')
        for ci, va in fslow: flagwait(f'{typ}{ci}', va, f'L_fb{typ}{ci}')
        for g, a0_, a1_ in kslow:
            e(f'L_ks{typ}{g}:')
            if o.diag: e(f's_add_u32 s95, s95, {1 << 25}')
            e(f'ds_read_b32 v{VF+7}, v{VF+1} offset:12')
            e(f's_add_u32 s47, s96, {2048*g}')
            e('s_waitcnt lgkmcnt(0)')
            for i, a_ in enumerate((a0_, a0_ + 4, a1_, a1_ + 4)):
                e(f'buffer_load_dwordx4 {vr(a_,4)}, v{VWL}, {sr(S_WS)}, s47 offen offset:{1024*i} sc1')
            e(f'v_readfirstlane_b32 s46, v{VF+7}')
            e(f's_add_u32 s{NPOLL}, s{NPOLL}, 1')
            e('s_waitcnt vmcnt(0)')
            e('s_cmp_lg_u32 s46, 0')
            e(f's_cbranch_scc1 L_kb{typ}{g}')
            e(f'v_bitop3_b32 v{VC}, v{a0_+1}, v{a0_+6}, v{VF+3} bitop3:0x7e')
            e(f'v_bitop3_b32 v{VC+1}, v{a1_+1}, v{a1_+6}, v{VF+3} bitop3:0x7e')
            e(f'v_or_b32 v{VC}, v{VC}, v{VC+1}')
            e(f'v_cmp_ne_u32 s[48:49], 0, v{VC}')
            e('s_nop 2')
            e('s_cmp_eq_u64 s[48:49], 0')
            e(f's_cbranch_scc1 L_kb{typ}{g}')
            e(f's_cmp_lg_u32 s{NPOLL}, {o.maxpoll}')
            e(f's_cbranch_scc1 L_ks{typ}{g}')
            e(f'v_mov_b32 v{VF+7}, 0x10000')
            e('s_mov_b64 exec, 1')
            e(f'ds_add_u32 v{VF+1}, v{VF+7} offset:4')
            e('s_mov_b64 exec, -1')
            e(f's_branch L_ks{typ}{g}')

    mark['help0'] = len(e.L)
    if not o.hfirst: e('.p2align 6')
    e('L_helper:')
    role[0] = 'h'
    e(f's_setprio {o.hprio}')
    e(f's_sub_u32 s{TW0}, s{WAVE}, 4')
    e(f's_mov_b32 s{TW1}, s{WAVE}')
    e(f's_sub_u32 s{PAIR}, s{RID}, {NPROD}')
    e(f's_cselect_b32 s{PAIR}, s{RID}, s{PAIR}')
    e(f's_mov_b32 s{MODE}, 0')
    e(f's_mov_b32 s{NOTASK}, s{RID}')
    e(f's_mov_b32 s{HAS3}, s{TW0}')
    e(f's_lshl_b32 s{SCRB}, s{TW0}, 12')
    e(f's_add_u32 s{SCRB}, s{SCRB}, {SCR}')
    e('L_prod:')
    T = [(28, TW0, 2, 52, 0), (36, TW1, 4, 53, 2048), (44, TW2, 6, 54, 16384)]
    c, kp, q, cc, kk, t = 46, 47, 48, 49, 50, 51
    b = TS
    e('v_mov_b32 v19, 4320')
    e('v_and_b32 v23, 3, v1')
    e('v_lshrrev_b32 v24, 2, v1')
    e('v_mul_u32_u24 v24, 288, v24')
    for (vb, sw, vl, vs, so) in T:
        e(f'v_lshl_add_u32 v8, s{sw}, 2, v23' if sw != TW2 else 'v_add_u32 v8, 32, v23')
        e('v_cmp_le_u32 vcc, 18, v8')
        e(f'v_lshl_add_u32 v{vl}, v8, 4, v24')
        e(f'v_add_u32 v9, v{vl}, v19')
        e(f'v_cndmask_b32 v{vl}, v{vl}, v9, vcc')
    e(f's_and_b32 s{c}, s{PAIR}, 15')
    e(f's_lshr_b32 s{kp}, s{PAIR}, 4')
    e(f's_mul_i32 s{b}, s{c}, 165888')
    e(f's_mul_i32 s{t}, s{kp}, 9216')
    e(f's_add_u32 s{b}, s{b}, s{t}')
    e(f's_add_u32 s{b+1}, s{b}, 82944')
    e(f's_mov_b32 s{S_W+2}, 2571264')
    e(f's_mov_b32 s{S_W+3}, 0x20000')
    e(f's_mov_b32 s{S_WO+3}, s{S_W+3}')
    e(f's_cmp_lg_u32 s{c}, 15')
    e(f's_cselect_b32 s{S_WO+2}, s{S_W+2}, 0')
    e(f's_mov_b32 m0, s{SCRB}')
    e('s_waitcnt lgkmcnt(0)')
    e(f's_mov_b32 s{S_W}, s6')
    e(f's_and_b32 s{S_W+1}, s7, 0xffff')
    e(f's_mov_b32 s{S_WO}, s6')
    e(f's_and_b32 s{S_WO+1}, s7, 0xffff')
    e(f's_cmp_ge_u32 s{NOTASK}, {NTASK}')
    e('s_cbranch_scc1 L_a3')
    def cond3(lbl):
        e(f's_cmp_lg_u32 s{HAS3}, 0')
        e(f's_cbranch_scc1 {lbl}')
    for ti, (vb, sw, vl, vs, so) in enumerate(T):
        if ti == 2: cond3('L_a3')
        if ti == 1: e('s_addk_i32 m0, 1024'); e('s_nop 0')
        e(f'buffer_load_dwordx4 v{vl}, {sr(S_W)}, s{b} offen lds')
        e('s_addk_i32 m0, 1024')
        e('s_nop 0')
        e(f'buffer_load_dwordx4 v{vl}, {sr(S_WO)}, s{b+1} offen lds')
        if ti == 1: e(f's_addk_i32 m0, {16384-3072}')
    e('L_a3:')
    stamp(1)
    e(f's_cmp_lg_u32 s{MODE}, 0')
    e('s_cbranch_scc1 L_a4')
    e(f's_load_dword s{TAG}, s[12:13], {NONCE}')
    e(f's_lshr_b32 s{EARLY}, 0x33, s{kp}')
    e(f's_and_b32 s{EARLY}, s{EARLY}, 1')
    e(f's_sub_u32 s{XK}, 2, s{EARLY}')
    e(f's_lshl_b32 s{t}, s{kp}, 1')
    e(f's_lshr_b32 s{YT}, {(3<<12)+(3<<14)+(3<<16)}, s{t}')
    e(f's_and_b32 s{YT}, s{YT}, 3')
    e(f's_lshr_b32 s{t}, s{kp}, 1')
    e(f's_cmp_ge_u32 s{RID}, {NPROD}')
    e(f's_cselect_b32 s{EARLY}, 0, s{EARLY}')
    e(f's_cselect_b32 s{XK}, 3, s{XK}')
    e(f's_cselect_b32 s{YT}, s{t}, s{YT}')
    e(f's_cmp_ge_u32 s{RID}, {NPROD+32}')
    e(f's_cselect_b32 s{XK}, 0, s{XK}')
    e(f's_cmp_ge_u32 s{RID}, {NTASK}')
    e(f's_cselect_b32 s{YT}, 0, s{YT}')
    if not o.b0early:
        e(f's_cmp_lg_u32 s{EARLY}, 0')
        e('s_cbranch_scc1 L_a4')
    e('s_barrier')
    e('L_a4:')
    jit()
    e(f's_mov_b32 s{MASK}, 0xffff0000')
    e(f's_mov_b32 s{NPOLL}, 0')
    srd(e, S_WS, 12, WS_REC)
    srd(e, S_DBG, 10, 256)
    e(f'v_mov_b32 v10, {CNT}')
    e(f'v_mov_b32 v20, {(256 - 18*NSTR) & 0xffffffff}')
    e(f'v_mov_b32 v26, {NSTR}')
    e('v_bfe_u32 v21, v1, 2, 2')
    e('v_lshlrev_b32 v21, 7, v21')
    e('v_and_b32 v22, 1, v1')
    e('v_lshl_add_u32 v21, v22, 6, v21')
    e('v_bfe_u32 v22, v1, 1, 1')
    e('v_lshl_add_u32 v21, v22, 3, v21')
    e('v_lshrrev_b32 v22, 4, v1')
    e('v_lshl_add_u32 v21, v22, 4, v21')
    e(f'v_add_u32 v21, s{SCRB}, v21')
    if o.yall: e('v_mov_b32 v62, v21')
    e('v_and_b32 v25, 15, v1')
    e('v_lshlrev_b32 v25, 4, v25')
    for (vb, sw, vl, vs, so) in T:
        e(f'v_lshl_add_u32 v8, s{sw}, 2, v22' if sw != TW2 else 'v_add_u32 v8, 32, v22')
        e('v_cmp_le_u32 vcc, 18, v8')
        e(f'v_mad_u32_u24 v{vs}, v8, v26, v25')
        e(f'v_add_u32 v9, v{vs}, v20')
        e(f'v_cndmask_b32 v{vs}, v{vs}, v9, vcc')
    if o.tagp:
        e(f's_lshr_b32 s97, 0x33, s{kp}')
        e('s_and_b32 s97, s97, 1')
        e(f's_cmp_eq_u32 s{WAVE}, 4')
        e(f's_cselect_b32 s{t}, 1, s{97 if o.split1 else EARLY}')
        e(f's_cmp_lg_u32 s{t}, 0')
        e(f's_cselect_b32 s{t}, 4, -16')
        e(f'v_mov_b32 v9, s{t}')
        e('s_waitcnt lgkmcnt(0)')
        e('s_mov_b64 exec, 1')
        e(f'buffer_load_dword v27, v9, {sr(S_DBG)}, 0 offen sc1')
        e('s_mov_b64 exec, -1')
        e(f's_lshr_b32 s96, s{kp}, 2')
        e('s_lshl_b32 s96, s96, 4')
        e(f's_add_u32 s96, s96, s{c}')
        e('s_lshl_b32 s96, s96, 2')
        e(f's_and_b32 s{t}, s{kp}, 1')
        e(f's_add_u32 s96, s96, s{t}')
        e('s_lshl_b32 s96, s96, 9')
        e(f's_add_u32 s96, s96, {WOFF + 2*NSTEP*1024}')
    e(f's_lshr_b32 s{q}, s{kp}, 1')
    e(f's_and_b32 s{cc}, s{c}, 7')
    e(f's_lshr_b32 s{kk}, s{c}, 3')
    e(f's_and_b32 s{t}, s{kp}, 1')
    e(f's_cmp_eq_u32 s{kp}, 8')
    e(f's_cselect_b32 s{cc}, s{cc}, s{c}')
    e(f's_cselect_b32 s{kk}, s{kk}, s{t}')
    e(f's_lshl_b32 s{kk}, s{kk}, 9')
    e(f's_add_u32 s{kk}, s{kk}, {WOFF}')
    e(f's_lshl_b32 s{t}, s{q}, 4')
    e(f's_add_u32 s{b+2}, s{t}, s{cc}')
    e(f's_sub_u32 s{b+3}, s{b+2}, s{q}')
    e(f's_cmp_ge_u32 s{q}, 2')
    e(f's_cselect_b32 s{b+4}, 74, 0')
    e(f's_add_u32 s{b+4}, s{b+4}, s{b+2}')
    e(f's_cmp_lt_u32 s{cc}, 2')
    e(f's_cselect_b32 s{t}, 32, 136')
    e(f's_add_u32 s{t}, s{t}, s{cc}')
    e(f's_cmp_eq_u32 s{kp}, 8')
    e(f's_cselect_b32 s{b+4}, s{t}, s{b+4}')
    e(f's_add_u32 s{b+2}, s{b+2}, 34')
    e(f's_add_u32 s{b+3}, s{b+3}, 144')
    for k in (2, 3, 4):
        e(f's_lshl_b32 s{b+k}, s{b+k}, 10')
        e(f's_add_u32 s{b+k}, s{b+k}, s{kk}')
    e(f's_cmp_eq_u32 s{kp}, 8')
    e(f's_cselect_b32 s{t}, 1, 2')
    e(f's_cmp_eq_u32 s{c}, 15')
    e(f's_cselect_b32 s{b+5}, s{t}, 0')
    e(f's_lshl_b32 s46, s{WAVE}, 2')
    e(f's_add_u32 s46, s46, {CNT+16}')
    e('v_mov_b32 v55, s46')
    if o.tagp:
        e('s_waitcnt vmcnt(1)')
        stamp(2)
        e(f's_cmp_ge_u32 s{NOTASK}, {NTASK}')
        e('s_cbranch_scc1 L_x9')
    else:
        e('v_mov_b32 v27, 0')
        e('v_mov_b32 v9, 4')
        e('s_waitcnt vmcnt(0) lgkmcnt(0)')
        stamp(2)
        e(f's_cmp_lg_u32 s{WAVE}, 4')
        e('s_cbranch_scc1 L_a5')
        e('s_mov_b64 exec, 1')
        e(f'buffer_load_dword v27, v9, {sr(S_DBG)}, 0 offen sc1')
        e('s_mov_b64 exec, -1')
        e('L_a5:')
        e(f's_cmp_ge_u32 s{NOTASK}, {NTASK}')
        e('s_cbranch_scc1 L_x9')
    for (vb, sw, vl, vs, so) in T:
        for tap in range(2):
            for half in range(2):
                e(f'ds_read_b64_tr_b16 {vr(vb+4*tap+2*half,2)}, v21 offset:{so+1024*tap+512*half}')
    nlab = [0]
    def st01(vb, vs):
        nlab[0] += 1
        e(f'buffer_store_dwordx4 {vr(vb,4)}, v{vs}, {sr(S_WS)}, s{b+2} offen {o.stf}')
        e(f's_cmp_eq_u32 s{b+5}, 2')
        e(f's_cbranch_scc1 L_skip{nlab[0]}')
        e(f'buffer_store_dwordx4 {vr(vb+4,4)}, v{vs}, {sr(S_WS)}, s{b+3} offen {o.stf}')
        e(f'L_skip{nlab[0]}:')
    def st01all(lbl):
        st01(T[0][0], T[0][3]); st01(T[1][0], T[1][3])
        cond3(lbl)
        st01(T[2][0], T[2][3])
    def dosum(vb, tb, ob):
        for i in range(8):
            e(f'v_lshlrev_b32 v{tb+2*i}, 16, v{vb+i}')
            e(f'v_and_b32 v{tb+2*i+1}, s{MASK}, v{vb+i}')
        for i in range(4):
            e(f'v_pk_add_f32 {vr(tb+2*i,2)}, {vr(tb+2*i,2)}, {vr(tb+8+2*i,2)}')
        for i in range(4):
            e(f'v_cvt_pk_bf16_f32 v{ob+i}, v{tb+2*i}, v{tb+2*i+1}')
    def ldswait(off, cmp, operand, tag, slp):
        e(f'L_lw{tag}:')
        e(f'ds_read_b32 v11, v10 offset:{off}')
        e('s_waitcnt lgkmcnt(0)')
        e('v_and_b32 v11, 0xff, v11')
        e(f'v_cmp_{cmp}_u32 vcc, {operand}, v11')
        e('s_nop 4')
        e(f's_cbranch_vccnz L_lx{tag}')
        e(f's_sleep {slp}')
        e(f's_branch L_lw{tag}')
        e(f'L_lx{tag}:')
    SOR = lambda ti: (210 + 8 * ti) if o.tagp else (240 + 4 * ti)
    e(f's_or_b32 s46, s{EARLY}, s{MODE}')
    e(f's_cmp_eq_u32 s{XK}, 2')
    e('s_cselect_b32 s47, 1, s46')
    if o.xl: e('s_mov_b32 s46, s47')
    if o.split1:
        assert o.tagp and o.xl
        e('s_or_b32 s47, s47, s97')
        e(f's_andn2_b32 s50, s97, s{MODE}')
    e('s_cmp_eq_u32 s47, 0')
    e('s_cbranch_scc1 L_x9')
    if o.tagp:
        e('s_cmp_eq_u32 s97, 0')
        e('s_cbranch_scc1 L_x7')
        e('s_waitcnt vmcnt(0)')
        e('v_readfirstlane_b32 s48, v27')
        e(f's_add_u32 s49, s{TAG}, {TAGINC}')
        e('s_not_b32 s47, s49')
        e(f's_or_b32 s48, s48, s{MODE}')
        e('s_cselect_b32 s49, s47, s49')
        for ti in range(3):
            e(f'v_mov_b32 v{SOR(ti)-1}, s49')
            e(f'v_mov_b32 v{SOR(ti)+4}, s49')
        e('L_x7:')
    for ti, (vb, sw, vl, vs, so) in enumerate(T):
        if ti == 2: cond3('L_x3')
        if o.split1:
            if ti == 1: e(f's_and_b32 s47, s50, s{EARLY}')
            else: e(f's_andn2_b32 s47, s50, s{EARLY}')
            e(f's_cbranch_scc1 L_x5{ti}')
        e(f's_waitcnt lgkmcnt({8-4*ti})')
        dosum(vb, 64 + 16 * ti, SOR(ti))
        if not o.split1:
            e('s_cmp_eq_u32 s46, 0')
            e(f's_cbranch_scc1 L_x5{ti}')
        if o.tagp:
            e('s_cmp_eq_u32 s97, 0')
            e(f's_cbranch_scc1 L_x6{ti}')
            e(f'buffer_store_dwordx4 {vr(SOR(ti)-2,4)}, v{vs}, {sr(S_WS)}, s96 offen {o.stf}')
            e(f'buffer_store_dwordx4 {vr(SOR(ti)+2,4)}, v{vs}, {sr(S_WS)}, s96 offen offset:1024 {o.stf}')
            e(f's_branch L_x5{ti}')
            e(f'L_x6{ti}:')
        e(f'buffer_store_dwordx4 {vr(SOR(ti),4)}, v{vs}, {sr(S_WS)}, s{b+4} offen {o.stf}')
        e(f'L_x5{ti}:')
    e('L_x3:')
    e(f's_cmp_eq_u32 s{MODE}, 0')
    e('s_cbranch_scc1 L_x9')
    e('L_x2:')
    e('s_waitcnt lgkmcnt(0)')
    st01all('L_x4')
    e('L_x4:')
    e(f's_cmp_eq_u32 s{MODE}, 0')
    e('s_cbranch_scc1 L_x9')
    e('s_waitcnt vmcnt(0)')
    e(f's_add_u32 s{PAIR}, s{PAIR}, 1')
    e(f's_cmp_lt_u32 s{PAIR}, {NPROD}')
    e('s_cbranch_scc1 L_prod')
    e('v_mov_b32 v11, 1')
    e('ds_write_b32 v10, v11 offset:12')
    e('s_endpgm')
    e('L_x9:')
    jit()
    if o.tagp and not o.b0early:
        e(f's_cmp_eq_u32 s{EARLY}, 0')
        e('s_cbranch_scc1 L_x10')
        e('s_barrier')
        e('L_x10:')
    stamp(3)
    decode()
    e('v_subrev_u32 v4, 256, v0')
    e('v_min_u32 v4, 251, v4')
    e('v_mul_u32_u24 v3, 3641, v4')
    e('v_lshrrev_b32 v3, 16, v3')
    e('v_mul_u32_u24 v2, 18, v3')
    e('v_sub_u32 v2, v4, v2')
    e(f'v_mul_u32_u24 v3, {R}, v3')
    e(f'v_min_u32 v3, {160-R}, v3')
    e('v_mul_u32_u24 v4, 1152, v3')
    e('v_lshl_add_u32 v4, v2, 4, v4')
    e(f'v_add_u32 v12, s{XB}, v4')
    e('v_mul_u32_u24 v18, 288, v3')
    e('v_lshl_add_u32 v18, v2, 4, v18')
    e(f'v_add_u32 v19, {X_D1}, v18')
    srd(e, S_X, 4, 1152000, add=BOFF)
    e(f's_add_u32 s46, s{TAG}, {TAGINC}')
    e('v_mov_b32 v56, s46')
    e(f's_lshl_b32 s46, s{RID}, 7')
    e('v_mov_b32 v58, s46')
    e(f's_add_u32 s46, s{PAIR}, {NPROD}')
    e('s_lshl_b32 s46, s46, 7')
    e('v_mov_b32 v59, s46')
    def publish(slot, vflag, tag, first, n=0):
        e('s_mov_b64 exec, 1')
        e(f's_waitcnt vmcnt({n})')
        if first: stamp(4)
        if o.padto and tag == 'x': stamp(12)
        e('v_cmp_ne_u32 vcc, 0, v27')
        e('v_not_b32 v57, v56')
        e('s_nop 0')
        e('v_cndmask_b32 v57, v56, v57, vcc')
        e(f'ds_write_b32 v55, v57 offset:{slot}')
        e(f'ds_read_b128 v[20:23], v10 offset:{32+slot}')
        e('s_waitcnt lgkmcnt(0)')
        for i in range(4): e(f'v_xor_b32 v{20+i}, v{20+i}, v56')
        e('v_or3_b32 v20, v20, v21, v22')
        e('v_or_b32 v20, v20, v23')
        e('v_cmp_eq_u32 vcc, 0, v20')
        e('s_and_b64 exec, exec, vcc')
        e(f's_cbranch_execz L_nl{tag}')
        e(f'buffer_store_dword v56, v{vflag}, {sr(S_WS)}, 0 offen sc1')
        e(f'L_nl{tag}:')
        e('s_mov_b64 exec, -1')
    if o.tagp and o.xl:
        e(f's_cmp_lg_u32 s{XK}, 2')
        e('s_cbranch_scc1 L_noflag')
        publish(0, 58, 'x', True)
        e(f's_mov_b32 s{XK}, 0')
    elif o.xl:
        e(f's_cmp_ge_u32 s{RID}, {NPROD}')
        e('s_cbranch_scc1 L_noflag')
        publish(0, 58, 'x', True)
        e(f's_mov_b32 s{XK}, 0')
        e(f's_cmp_eq_u32 s{EARLY}, 0')
        e('s_cbranch_scc1 L_noflag')
        if not o.b0early: e('s_barrier')
    elif not o.tagp:
        e(f's_cmp_eq_u32 s{EARLY}, 0')
        e('s_cbranch_scc1 L_noflag')
        publish(0, 58, 'x', True)
        if not o.b0early: e('s_barrier')
    e('L_noflag:')
    e(f's_setprio {o.hprio2}')
    RAW, ORAW = 64, 120
    EU = [184, 192]
    OU, DT, DO = 200, 208, 216
    xi = [0]
    NL = R + 1
    hq = []
    def eload():
        k = xi[0]
        if k >= NL: return
        a_ = 12
        if k:
            a_ = 13 + (k & 3)
            e(f'v_add_u32 v{a_}, {1152*k}, v12')
        e(f'buffer_load_dwordx4 {vr(RAW+4*k,4)}, v{a_}, {sr(S_X)}, 0 offen')
        xi[0] += 1
        hq.append(('e', k))
    if o.etouch:
        e(f's_cmp_lt_u32 s{RID}, {NTASK}')
        e('s_cbranch_scc1 L_net')
        e(f's_and_b32 s46, s{NB}, 1')
        e(f's_mul_i32 s46, s46, {1152*6}')
        e('v_add_u32 v12, s46, v12')
        for _ in range(7): eload()
        e('v_subrev_u32 v12, s46, v12')
        e('s_waitcnt vmcnt(0)')
        e('L_net:')
        xi[0] = 0; hq.clear()
    YA = 232
    e(f's_cmp_eq_u32 s{b+5}, 2')
    e('s_cselect_b32 s46, 0x80000000, 0')
    e(f's_cmp_lg_u32 s{HAS3}, 0')
    e('s_cselect_b32 s47, 0x80000000, 0')
    e('s_or_b32 s48, s46, s47')
    for i in range(6):
        m_ = {0: None, 1: 46, 2: None, 3: 46, 4: 47, 5: 48}[i]
        e(f'v_mov_b32 v{YA+i}, v{52+i//2}' if m_ is None else f'v_or_b32 v{YA+i}, s{m_}, v{52+i//2}')
    def ystore(i, a_):
        e(f'buffer_store_dwordx4 {vr(28+4*i,4)}, v{a_}, {sr(S_WS)}, s{b+2+(i&1)} offen {o.stf}')
        hq.append(('y', i))
    if o.yall:
        assert o.d0p
        e(f's_add_u32 s44, s{RID}, 76')
        e(f's_cmp_ge_u32 s44, {NWG}')
        e(f's_cselect_b32 s45, {NWG}, 0')
        e('s_sub_u32 s44, s44, s45')
        e(f's_add_u32 s46, s44, {NPROD + 32}')
        e('s_lshl_b32 s46, s46, 7')
        e('v_mov_b32 v59, s46')
        e('s_mul_hi_u32 s45, s44, 477218589')
        e('s_mul_i32 s46, s45, 9')
        e('s_sub_u32 s44, s44, s46')
        e(f's_lshr_b32 s{YT}, s45, 3')
        e(f's_add_u32 s{YT}, s{YT}, 1')
        e(f's_min_u32 s{YT}, s{YT}, 3')
        e('s_lshl_b32 s45, s45, 2')
        e(f's_add_u32 s45, s45, s{WAVE}')
        e('s_add_u32 s45, s45, 28')
        e('s_and_b32 s46, s45, 15')
        e('s_lshr_b32 s47, s45, 4')
        e('s_mul_i32 s54, s46, 165888')
        e('s_mul_i32 s48, s47, 9216')
        e('s_add_u32 s54, s54, s48')
        e('s_add_u32 s95, s54, 82944')
        e('s_cmp_lg_u32 s46, 15')
        e(f's_cselect_b32 s{S_WO+2}, 2571264, 0')
        e('s_cselect_b32 s51, 0, 0x80000000')
        e('s_lshr_b32 s48, s47, 1')
        e('s_and_b32 s49, s46, 7')
        e('s_lshr_b32 s50, s46, 3')
        e('s_and_b32 s45, s47, 1')
        e('s_cmp_eq_u32 s47, 8')
        e('s_cselect_b32 s49, s49, s46')
        e('s_cselect_b32 s50, s50, s45')
        e('s_cselect_b32 s51, 0, s51')
        e('s_lshl_b32 s50, s50, 9')
        e(f's_add_u32 s50, s50, {WOFF}')
        e('s_lshl_b32 s68, s48, 4')
        e('s_add_u32 s68, s68, s49')
        e('s_sub_u32 s69, s68, s48')
        e('s_add_u32 s68, s68, 34')
        e('s_add_u32 s69, s69, 144')
        for r_ in (68, 69):
            e(f's_lshl_b32 s{r_}, s{r_}, 10')
            e(f's_add_u32 s{r_}, s{r_}, s50')
        e('v_and_b32 v2, 3, v1')
        e('v_lshl_add_u32 v2, s44, 2, v2')
        e('v_lshrrev_b32 v3, 4, v1')
        e('v_lshl_add_u32 v3, s44, 2, v3')
        e('v_cmp_le_u32 vcc, 18, v2')
        e('v_cmp_le_u32 s[46:47], 18, v3')
        e('v_lshl_add_u32 v63, v2, 4, v24')
        e('v_mad_u32_u24 v60, v3, v26, v25')
        e('v_add_u32 v2, 4320, v63')
        e(f'v_add_u32 v3, {(256 - 18*NSTR) & 0xffffffff}, v60')
        e('v_cndmask_b32 v63, v63, v2, vcc')
        e('v_cndmask_b32 v60, v60, v3, s[46:47]')
        e('v_or_b32 v61, s51, v60')
    def ydma():
        if not o.yall: return
        e(f's_mov_b32 m0, s{SCRB}')
        e('s_nop 0')
        e(f'buffer_load_dwordx4 v63, {sr(S_W)}, s54 offen lds')
        e('s_addk_i32 m0, 1024')
        e('s_nop 0')
        e(f'buffer_load_dwordx4 v63, {sr(S_WO)}, s95 offen lds')
        hq.append('d0'); hq.append('d1')
    stamp(5)
    ldswait(8, 'eq', 4, 'o', 1)
    def unpack(dst, s_):
        for i in range(4):
            e(f'v_lshlrev_b32 v{dst+2*i}, 16, v{s_+i}')
            e(f'v_and_b32 v{dst+2*i+1}, s{MASK}, v{s_+i}')
    def unpackE(dst, k):
        e(f's_waitcnt vmcnt({len(hq)-1-hq.index(("e", k))})')
        unpack(dst, RAW + 4 * k)
        eload()
    def diff(eu, out):
        for i in range(8): e(f'v_sub_f32 v{DT+i}, v{eu+i}, v{OU+i}')
        for i in range(4):
            e(f'v_cvt_pk_bf16_f32 v{out+i}, v{DT+2*i}, v{DT+2*i+1}')
    def opengate():
        if not o.gate: return
        e('v_mov_b32 v11, 0x100')
        e('s_mov_b64 exec, 1')
        e('ds_add_u32 v10, v11 offset:8')
        e('s_mov_b64 exec, -1')
    def rows(hook):
        jit()
        stamp(6)
        for j in range(R):
            e(f'ds_read_b128 {vr(ORAW+4*j,4)}, v18 offset:{X_O+288*j}')
        unpackE(EU[0], 0)
        e('s_waitcnt lgkmcnt(0)')
        for j in range(R):
            o0 = DO + 8 * (j & 1)
            unpack(OU, ORAW + 4 * j)
            diff(EU[j & 1], o0)
            e(f'ds_write_b128 v18, {vr(o0,4)} offset:{X_D0+288*j}')
            unpackE(EU[(j + 1) & 1], j + 1)
            diff(EU[(j + 1) & 1], o0 + 4)
            e(f'ds_write_b128 v19, {vr(o0+4,4)} offset:{288*j}')
            hook(j)
    if o.apath:
        e(f's_cmp_ge_u32 s{RID}, {NPROD + (32 if o.d0p else 0)}')
        e('s_cbranch_scc1 L_pathA')
    e(f's_cmp_lt_u32 s{XK}, 2')
    e('s_cbranch_scc1 L_nox')
    if o.d0p:
        e(f's_cmp_eq_u32 s{XK}, 3')
        e('s_cbranch_scc1 L_xd')
    for i in range(3):
        e(f'buffer_store_dwordx4 {vr(SOR(i),4)}, v{YA+2*i}, {sr(S_WS)}, s{b+4} offen {o.stf}')
    if o.d0p:
        e('s_branch L_xe')
        e('L_xd:')
        for i in range(6): ystore(i, YA + i)
        e('L_xe:')
    if o.gearly:
        opengate()
        publish(0, 58, 'x2', True)
        e('s_branch L_nox2')
        e('L_nox:')
        opengate()
        e('L_nox2:')
    else:
        publish(0, 58, 'x2', True)
        e('L_nox:')
        opengate()
    hq.clear(); xi[0] = 0
    for _ in range(o.ein): eload()
    def hookP(j):
        if j == o.ydrow: ydma()
        if o.ymid and j == o.ymid:
            e(f's_cmp_lg_u32 s{YT}, 1')
            e('s_cbranch_scc1 L_ym1')
            keep = list(hq)
            for i in range(6): ystore(i, YA + i)
            hq[:] = keep
            e('L_ym1:')
        if o.ymid and j == o.ymid + o.ymid2:
            e(f's_cmp_lg_u32 s{YT}, 1')
            e('s_cbranch_scc1 L_ym2')
            publish(16, 59, 'ym', False)
            if o.diag == 1: stamp(8)
            e(f's_mov_b32 s{YT}, 0')
            e('L_ym2:')
    rows(hookP)
    if o.apath:
        e('s_branch L_rowsdone')
        e('L_pathA:')
        if not o.d0p:
            e(f's_cmp_eq_u32 s{XK}, 3')
            e('s_cselect_b32 s47, 0, 0x80000000')
            for i in range(6): e(f'v_or_b32 v{20+i}, s47, v{YA+i}')
        hq.clear(); xi[0] = 0
        for _ in range(NL): eload()
        if not o.d0p:
            for i in range(6): ystore(i, 20 + i)
        def hookA(j):
            if j == o.grow + 1: ydma()
            if j == o.grow:
                e(f's_waitcnt vmcnt({len(hq)-1-hq.index(("e", NL-1))})')
                opengate()
            if j == o.xrow and not o.d0p:
                e(f's_cmp_lg_u32 s{XK}, 3')
                e('s_cbranch_scc1 L_xp')
                publish(0, 58, 'x3', True)
                e('L_xp:')
        rows(hookA)
    e('L_rowsdone:')
    e('s_waitcnt lgkmcnt(0)')
    stamp(7)
    e('v_mov_b32 v11, 1')
    e('s_mov_b64 exec, 1')
    e('ds_add_u32 v10, v11 offset:16')
    e('s_mov_b64 exec, -1')
    e(f's_cmp_eq_u32 s{YT}, 0')
    e('s_cbranch_scc1 L_noy')
    e(f's_setprio {o.yprio}')
    if o.yall:
        e('s_waitcnt vmcnt(0)')
        for tap in range(2):
            for half in range(2):
                e(f'ds_read_b64_tr_b16 {vr(28+4*tap+2*half,2)}, v62 offset:{1024*tap+512*half}')
    e('L_yw:')
    e('ds_read_b64 v[20:21], v10')
    e('s_waitcnt lgkmcnt(0)')
    e('v_lshrrev_b32 v21, 14, v21')
    e('v_and_b32 v21, -4, v21')
    e('v_or_b32 v20, v20, v21')
    e(f'v_cmp_le_u32 vcc, s{YT}, v20')
    e('s_nop 4')
    e('s_cbranch_vccnz L_yx')
    e('s_sleep 4')
    e('s_branch L_yw')
    e('L_yx:')
    jit()
    if o.yall:
        e(f'buffer_store_dwordx4 v[28:31], v60, {sr(S_WS)}, s68 offen {o.stf}')
        e(f'buffer_store_dwordx4 v[32:35], v61, {sr(S_WS)}, s69 offen {o.stf}')
    else:
      for i in range(6):
        ystore(i, YA + i)
        e(f's_waitcnt vmcnt({o.ythr})')
        if o.ysleep: e(f's_sleep {o.ysleep}')
    publish(16, 59, 'y', False)
    if o.diag == 1: stamp(8)
    e('L_noy:')
    e(f's_cmp_lg_u32 s{WAVE}, 4')
    e('s_cbranch_scc1 L_hend')
    e('L_guard:')
    e('ds_read_b32 v11, v10 offset:4')
    e('s_waitcnt lgkmcnt(0)')
    e('v_readfirstlane_b32 s46, v11')
    e('s_nop 3')
    e('s_cmp_eq_u32 s46, 4')
    e(f's_cbranch_scc1 {"L_wb" if o.wbat else "L_hend"}')
    e('s_cmp_lt_u32 s46, 0x10000')
    e('s_cbranch_scc0 L_rescue')
    e('s_sleep 16')
    e('s_branch L_guard')
    if o.wbat:
        e('L_wb:')
        e('s_lshr_b32 s46, s2, 3')
        e(f's_cmp_lg_u32 s46, 5')
        e('s_cbranch_scc1 L_hend')
        ldswait(0, 'eq', 4, 'w', 2)
        e('buffer_wbl2 sc1')
        e('s_waitcnt vmcnt(0)')
        e('s_branch L_hend')
    e('L_rescue:')
    e(f's_mov_b32 s{MODE}, 1')
    e(f's_mov_b32 s{HAS3}, 1')
    e(f's_mov_b32 s{NOTASK}, 0')
    e(f's_lshr_b32 s{TW0}, s{NB}, 1')
    e(f's_add_u32 s{TW1}, s{NB}, 9')
    e(f's_lshr_b32 s{TW1}, s{TW1}, 1')
    e(f's_mov_b32 s{PAIR}, 0')
    e('s_branch L_prod')
    e('L_hend:')
    if o.padto and o.padev[0] == 'h': padloop('h')
    if o.diag == 1:
        stamp(9)
        dump(10)
    e('L_end:')
    e('s_endpgm')
    if o.hfirst:
        m0, h0 = mark['main0'], mark['help0']
        e.L = e.L[:m0] + e.L[h0:] + ['.p2align 6'] + e.L[m0:h0]
    e('L_codeend:')
    e('.section .rodata,"a"')
    e('.p2align 6')
    e(f'.amdhsa_kernel {KN}')
    for x in ['next_free_vgpr 256', 'next_free_sgpr 102', 'accum_offset 256', 'group_segment_fixed_size 0', 'kernarg_size 40',
              'user_sgpr_count 2', 'user_sgpr_kernarg_segment_ptr 1', 'system_sgpr_workgroup_id_x 1']:
        e('  .amdhsa_' + x)
    e('.end_amdhsa_kernel')
    n = haz.check(e.L)
    if n: print(f'{n} hazards', file=sys.stderr)
    return f'; @launch grid=({NWG},1,1) block=(512,1,1) lds={LDS_BYTES}\n' + HEADER + e.text()

def opts(argv=None):
    ap = argparse.ArgumentParser()
    ap.add_argument('-o', default='k.s')
    for nm, d in [('diag', 0), ('pf', 16), ('pf0', 8), ('wgap', 4), ('wres', 4), ('wsc1', 0), ('nfill', 2), ('fstride', 128), ('sleep', 0), ('maxpoll', 3000), ('nopoll', 0),
                  ('hprio', 3), ('hprio2', 0), ('mprio', 2), ('epre', 0), ('ein', 4), ('dpre', 7), ('b0early', 0), ('mtouch', 4), ('gate', 1), ('swapab', 0), ('d0p', 1), ('map', 1), ('chain', 4), ('split1', 0), ('ymid', 2), ('ymid2', 2), ('wbat', 0), ('jit', 0), ('apath', 0), ('rmap', 0), ('yall', 0), ('ydrow', 6), ('flat0', 1), ('flatzz', 0), ('tagp', 1), ('tpf', 5), ('xl', 1), ('p0plain', 0), ('onepoll', 0), ('epoll', 1), ('ppoll', 0), ('yprio', 3), ('ysleep', 0), ('vt', 94), ('tla', 40), ('tskip', 2), ('gearly', 1), ('chfrom', 8), ('oj', 9), ('nolds', 0), ('now', 0), ('wsame', 0), ('grow', 1), ('vbd', 33), ('nopk', 1), ('padto', 0), ('npdelay', 0), ('opre', 4), ('etouch', 0), ('orev', 1), ('b0late', 1), ('dec', 1), ('tail', 1), ('xla', 9), ('hold', 1), ('prest', 0), ('xslot', 0), ('noclosed', 0), ('cpf', 1), ('hfirst', 1), ('warmb', 1), ('wsfirst', 0), ('flead', 6), ('ythr', 6), ('xrow', 3), ('padstep', 33), ('probe', 0), ('probeoff', 0x4000000)]:
        ap.add_argument('--' + nm, type=int, default=d)
    ap.add_argument('--oflags', default='')
    ap.add_argument('--pmap', default='18,18,18,18,18,18,18,18')
    ap.add_argument('--padev', default='m0')
    ap.add_argument('--trig', default='10,25,40')
    ap.add_argument('--yrow', default='0,7,2,9,5,11')
    ap.add_argument('--pfcs', default='4,5,5,5,5')
    ap.add_argument('--fflags', default='')
    ap.add_argument('--fleads', default='6,6,6,6,6')
    ap.add_argument('--stf', default='sc1')
    ap.add_argument('--marks', default='0,4,8,12,16,24,33,47,58')
    o = ap.parse_args(argv)
    o.marks = [int(x) for x in o.marks.split(',')]
    o.yrow = [int(x) for x in o.yrow.split(',')]
    o.pfcs = [int(x) for x in o.pfcs.split(',')]
    o.fleads = [int(x) for x in o.fleads.split(',')]
    o.trig = [int(x) for x in o.trig.split(',')]
    return o

if __name__ == '__main__':
    o = opts()
    open(o.o, 'w').write(gen(o))
```

```python
import re, sys, argparse
import haz

KN = 'standalone__autoregressive_conv_wavernn__speech_kernel'
NWG = 252
NPROD = 144
ARR = 160 * 288
X_D0, X_O, X_D1 = 0, ARR, 2 * ARR
CNT = 3 * ARR
SCR = CNT + 64
LDS_BYTES = SCR + 18432
NSTEP = 106
WOFF = int(__import__('os').environ.get('WOFF', '0x100000'), 0)
NONCE = 0x10000
DIAG = 0x800000
WS_REC = max(0x1000000, WOFF + 0x400000, int(__import__('os').environ.get('WSREC', '0'), 0))
TAGINC = 0x9E3779B9
R = 12


HEADER = """; Gated dilated causal convolution, out = tanh(f) * sigmoid(g), h = [f g] = sum_i x[t + 2i - 60] w[i].
;
; A workgroup owns 144 output pairs x 16 output columns (f and g). Waves 0-3 run the matrix loop (two column tiles x
"""

class Em:
    def __init__(self): self.L = []
    def __call__(self, s): self.L.append(s)
    def text(self): return '\n'.join(self.L) + '\n'

def vr(a, n=1): return f'v{a}' if n == 1 else f'v[{a}:{a+n-1}]'
def sr(a, n=4): return f's[{a}:{a+n-1}]'

def streams():
    out = []
    for typ in (0, 1):
        S = []
        pid = [0]
        def add(arr, chunk, cs, acc):
            for c in cs: S.append((pid[0], arr, chunk, c, acc))
            pid[0] += 1
        if typ == 0:
            add('O', 0, range(16), 'P'); add('O', 1, range(16), 'P'); add('O', 'rem', range(0, 2), 'P')
            for q in range(4): add('D', q, range(16), 'Q')
            add('D', 'rem', range(8), 'Q')
        else:
            add('O', 2, range(16), 'P'); add('O', 3, range(16), 'P'); add('O', 'rem', range(2, 8), 'P')
            for q in range(4): add('D', q, range(15), 'Q')
            add('D', 'rem', range(8), 'Q')
        assert len(S) == NSTEP
        out.append(S)
    return out

S_X, S_W, S_WO, S_WS, S_OUT, S_DBG = 20, 24, 28, 32, 36, 40
WAVE, NB, BAT, PAR, MB, BOFF = 14, 15, 16, 17, 18, 19
PAIR0 = 3
XB = 52
MASK = 53
TW0, TW1, TW2, PAIR, HAS3, MODE, SCRB, TAG, LAST, NPOLL = 44, 45, 54, 55, 56, 57, 58, 59, 60, 61
TS = 62
TYP, WSO = 68, 69
EARLY, XK, YT, FIDX = 90, 91, 92, 93
NOTASK = 94
FO = 97
C2L, CNL, C60 = 90, 92, 94
ST0 = 70

def srd(e, d, ptr, rec, add=None):
    if add is None:
        e(f's_mov_b32 s{d}, s{ptr}')
        e(f's_and_b32 s{d+1}, s{ptr+1}, 0xffff')
    else:
        e(f's_add_u32 s{d}, s{ptr}, s{add}')
        e(f's_addc_u32 s{d+1}, s{ptr+1}, 0')
        e(f's_and_b32 s{d+1}, s{d+1}, 0xffff')
    e(f's_mov_b32 s{d+2}, {rec}')
    e(f's_mov_b32 s{d+3}, 0x20000')

def gen(o):
    e = Em()
    NSTR = 2 * NSTEP * 1024 + (65536 if o.tagp else 0)
    if o.tagp: o.epoll = 0
    NTASK = NPROD + (32 if o.yall else 96)
    role = ['m']
    jn = [0]
    def jit():
        if not o.jit: return
        jn[0] += 1
        k = jn[0]
        e(f's_mul_i32 s98, s2, {37 + 2 * k + o.jit * 10}')
        e(f's_mul_i32 s99, s{WAVE}, {11 + 6 * k + o.jit}')
        e('s_add_u32 s98, s98, s99')
        e('s_bitcmp1_b32 s98, 3')
        e(f's_cbranch_scc1 L_jit{k}')
        e(f's_sleep {30 + (k * 17 + o.jit * 5) % 90}')
        e(f'L_jit{k}:')
    def padloop(tag):
        e(f'L_pad{tag}:')
        e('s_memrealtime s[98:99]')
        e('s_waitcnt lgkmcnt(0)')
        e('s_sub_u32 s98, s98, s100')
        e(f's_cmp_lt_u32 s98, {o.padto}')
        e(f's_cbranch_scc1 L_pad{tag}')
    def stamp(k, lvl=1):
        if o.padto and lvl == 1 and o.padev == f'{role[0]}{k}':
            e('s_memrealtime s[100:101]'); e('s_waitcnt lgkmcnt(0)')
        if o.diag == lvl or (o.diag == 4 and lvl == 1): e(f's_memrealtime s[{ST0+2*k}:{ST0+2*k+1}]')
    def dump(nst):
        e('s_waitcnt lgkmcnt(0)')
        e('v_mov_b32 v250, 0')
        for k in range(nst): e(f'v_writelane_b32 v250, s{ST0+2*k}, {k}')
        e(f'v_writelane_b32 v250, s{NPOLL}, 13')
        e(f'v_writelane_b32 v250, s95, 12')
        e(f'v_writelane_b32 v250, s{3 if o.rmap else 2}, 14')
        e('s_getreg_b32 s46, hwreg(HW_REG_XCC_ID)')
        e('v_writelane_b32 v250, s46, 15')
        e(f's_lshl_b32 s46, s2, 3'); e(f's_add_u32 s46, s46, s{WAVE}'); e('s_lshl_b32 s46, s46, 6'); e(f's_add_u32 s46, s46, {DIAG}')
        e('v_lshl_add_u32 v251, v1, 2, s46')
        e('s_mov_b64 exec, 0xffff')
        e(f'buffer_store_dword v250, v251, {sr(S_WS)}, 0 offen')
        e('s_mov_b64 exec, -1')

    e('.amdgcn_target "amdgcn-amd-amdhsa--gfx950"')
    e('.text')
    e(f'.globl {KN}')
    e('.p2align 8')
    e(f'.type {KN},@function')
    e(f'{KN}:')
    e(f's_cmp_ge_u32 s2, {NWG}')
    e('s_cbranch_scc1 L_end')
    stamp(0)
    if o.padto and o.padev != 'm0': e('s_memrealtime s[100:101]')
    e('s_load_dwordx4 s[4:7], s[0:1], 0')
    e('s_load_dwordx4 s[8:11], s[0:1], 16')
    e('s_load_dwordx2 s[12:13], s[0:1], 32')
    e('v_lshrrev_b32 v2, 6, v0')
    e('v_and_b32 v1, 63, v0')
    e(f'v_readfirstlane_b32 s{WAVE}, v2')
    def decode():
        e('s_and_b32 s44, s2, 7')
        e('s_lshr_b32 s45, s2, 3')
        e('s_mul_i32 s46, s44, 31')
        e('s_min_u32 s44, s44, 4')
        e('s_add_u32 s46, s46, s44')
        e('s_add_u32 s46, s46, s45')
        if o.map == 0:
            e('s_mul_hi_u32 s47, s46, 68174085')
            e('s_mul_i32 s48, s47, 63')
            e('s_sub_u32 s48, s46, s48')
            e(f's_mul_hi_u32 s{NB}, s48, 613566757')
            e(f's_mul_i32 s49, s{NB}, 7')
            e('s_sub_u32 s49, s48, s49')
            e('s_mul_i32 s47, s47, 7')
            e('s_add_u32 s47, s47, s49')
        elif o.map == 1:
            e('s_mul_hi_u32 s47, s46, 477218589')
            e('s_mul_i32 s48, s47, 9')
            e(f's_sub_u32 s{NB}, s46, s48')
        else:
            e('s_mul_hi_u32 s47, s46, 34087043')
            e('s_mul_i32 s48, s47, 126')
            e('s_sub_u32 s48, s46, s48')
            e(f's_mul_hi_u32 s{NB}, s48, 306783379')
            e(f's_mul_i32 s49, s{NB}, 14')
            e('s_sub_u32 s49, s48, s49')
            e('s_mul_i32 s47, s47, 14')
            e('s_add_u32 s47, s47, s49')
        e(f's_and_b32 s{PAR}, s47, 1')
        e('s_lshr_b32 s47, s47, 1')
        e('s_cmp_ge_u32 s47, 7')
        e(f's_cselect_b32 s{BOFF}, 1152000, 0')
        e('s_cselect_b32 s48, 7, 0')
        e(f's_sub_u32 s{MB}, s47, s48')
        e(f's_mul_i32 s{XB}, s{MB}, 576')
        e(f's_add_u32 s{XB}, s{XB}, s{PAR}')
        e(f's_sub_u32 s{XB}, s{XB}, 60')
        e(f's_mul_i32 s{XB}, s{XB}, 288')
    RID = 3 if o.rmap else 2
    if o.rmap:
        e('s_and_b32 s44, s2, 3')
        e('s_lshr_b32 s45, s2, 3')
        e('s_lshl2_add_u32 s3, s45, s44')
        e('s_and_b32 s44, s2, 4')
        e('s_lshl_b32 s44, s44, 5')
        e('s_add_u32 s3, s3, s44')
    e(f's_cmp_ge_u32 s{WAVE}, 4')
    e('s_cbranch_scc1 L_helper')
    if o.cpf:
        e('s_lshr_b32 s44, s2, 3')
        e(f's_lshl_b32 s45, s{WAVE}, 5')
        e('s_add_u32 s44, s44, s45')
        e('s_sub_u32 s44, s44, 26')
        e('s_cmp_ge_u32 s44, 5')
        e('s_cbranch_scc1 L_main')
        e('s_getpc_b64 s[46:47]')
        e('L_pc:')
        e('s_lshl_b32 s44, s44, 13')
        e('v_lshl_add_u32 v2, v1, 7, s44')
        e('v_min_u32 v2, L_codeend-L_pc-4, v2')
        e('global_load_dword v63, v2, s[46:47]')
    if o.hfirst: e('s_branch L_main')
    mark = {'main0': len(e.L)}
    e('L_main:')
    e(f's_mov_b32 s{MASK}, 0xffff0000')
    e(f's_mov_b32 s{NPOLL}, 0')
    if o.diag: e('s_mov_b32 s95, 0')
    decode()

    VXO, VXOR, VXD, VXDR, VWL, VEX, VEXP, VOUT = 30, 31, 32, 33, 34, 35, 36, 37
    VF = 40
    VA = 48
    VCL = 60
    e('v_mul_u32_u24 v3, 3641, v0')
    e('v_lshrrev_b32 v3, 16, v3')
    e('v_mul_u32_u24 v2, 18, v3')
    e('v_sub_u32 v2, v0, v2')
    e('v_mul_u32_u24 v3, 1152, v3')
    e('v_lshl_add_u32 v3, v2, 4, v3')
    e(f's_add_u32 s46, s{XB}, 576')
    e(f'v_add_u32 v{VA}, s46, v3')
    e('v_mov_b32 v5, 16192')
    e('v_mov_b32 v6, 17056')
    for k in range(1, 12):
        e('v_cmp_le_u32 vcc, 14, v2')
        e('v_add_u32 v3, 4, v2')
        e('v_subrev_u32 v4, 14, v2')
        e('v_cndmask_b32 v7, v5, v6, vcc')
        e('v_cndmask_b32 v2, v3, v4, vcc')
        e(f'v_add_u32 v{VA+k}, v{VA+k-1}, v7')
    e(f's_lshl_b32 s50, s{WAVE}, 10')
    e(f's_add_u32 s50, s50, {X_O}')
    e(f's_add_u32 s51, s50, {4096*11}')
    e('s_movk_i32 s49, 4096')
    if o.orev:
        e(f's_bitcmp0_b32 s{NB}, 0')
        e('s_cbranch_scc1 L_fwd')
        for k in range(5): e(f'v_swap_b32 v{VA+k}, v{VA+10-k}')
        e(f's_add_u32 s50, s50, {4096*10}')
        e('s_movk_i32 s49, -4096')
        e('L_fwd:')
    e(f'v_mov_b32 v{VF+1}, {CNT}')
    for r in range(4, 8): e(f'v_mov_b32 v{r}, 0')
    e(f'ds_write_b128 v{VF+1}, v[4:7]')
    e(f'ds_write_b128 v{VF+1}, v[4:7] offset:16')
    e('s_waitcnt lgkmcnt(0)')
    e(f's_load_dword s{TAG}, s[12:13], {NONCE}')
    srd(e, S_X, 4, 1152000, add=BOFF)
    def odma(k):
        e(f's_mov_b32 m0, s{51 if k == 11 else 50}')
        e('s_add_u32 s50, s50, s49')
        e(f'buffer_load_dwordx4 v{VA+k}, {sr(S_X)}, 0 offen lds')
    def etouch():
        e(f'buffer_load_dword v62, v9, {sr(S_X)}, 0 offen')
    if o.mtouch and o.tskip:
        e(f's_lshr_b32 s47, s{RID}, 4')
        e('s_lshr_b32 s47, 0x33, s47')
        e('s_lshl_b32 s47, s47, 31')
    if o.mtouch:
        e('v_min_u32 v8, 39, v1')
        e('v_lshrrev_b32 v9, 2, v8')
        e(f's_mul_i32 s46, s{WAVE}, 10')
        e('v_add_u32 v9, s46, v9')
        e(f'v_mul_u32_u24 v9, {4*1152}, v9')
        e('v_and_b32 v8, 3, v8')
        e('v_mul_u32_u24 v8, 92, v8')
        e(f's_and_b32 s46, s{NB}, {7 if o.mtouch == 4 else 3}')
        e(f's_mul_i32 s46, s46, {576 if o.mtouch == 4 else 1152}')
        e(f's_add_u32 s46, s46, s{XB}')
        e('v_add3_u32 v9, v9, v8, s46')
        if o.tskip == 1: e('v_or_b32 v9, s47, v9')
    if o.mtouch == 4 and o.tskip == 2:
        e('s_cmp_eq_u32 s47, 0')
        e('s_cbranch_scc1 L_tn')
        e('s_waitcnt lgkmcnt(0)')
        e('L_tn:')
    if o.mtouch in (2, 4): etouch()
    if o.padto and o.padev == 'm13':
        e('s_waitcnt vmcnt(0)'); stamp(13)
    if o.padto and o.padev == 'm14':
        odma(0); e('s_sub_u32 s50, s50, s49'); e('s_waitcnt vmcnt(0)'); stamp(14)
    if o.padto: stamp(10)
    for k in range(o.opre): odma(k)
    e('s_barrier')
    stamp(1)
    jit()
    if o.mtouch == 3: etouch()
    for k in range(o.opre, 12):
        if k == 11:
            e(f's_cmp_lg_u32 s{WAVE}, 0')
            e('s_cbranch_scc1 L_o11')
        odma(k)
    e('L_o11:')
    if o.mtouch == 1: etouch()
    srd(e, S_WS, 12, WS_REC)
    if o.epoll:
        assert o.mtouch in (1, 4) and o.tskip
        e(f's_and_b32 s{TYP}, s{WAVE}, 1')
        e(f's_lshl_b32 s{FO}, s{TYP}, 13')
        e('s_mov_b32 s96, s47')
        e('s_xor_b32 s46, s47, 0x80000000')
        e(f'v_min_u32 v{VF}, 31, v1')
        e(f'v_lshlrev_b32 v{VF}, 7, v{VF}')
        e(f'v_or_b32 v2, s46, v{VF}')
        e(f'buffer_load_dword v{VF+4}, v2, {sr(S_WS)}, s{FO} offen sc1')
    srd(e, S_OUT, 8, 1152000, add=BOFF)
    srd(e, S_DBG, 10, 256)
    e('v_and_b32 v2, 15, v1')
    e('v_lshrrev_b32 v3, 4, v1')
    e('v_subrev_u32 v5, 4, v2')
    e('v_add_u32 v6, 8, v2')
    e('v_cmp_gt_u32 vcc, 4, v2')
    e('v_cmp_le_u32 s[46:47], 12, v2')
    e(f's_and_b32 s{TYP}, s{WAVE}, 1')
    e(f's_lshr_b32 s48, s{WAVE}, 1')
    e('v_cndmask_b32 v5, v5, v6, vcc')
    e('v_cndmask_b32 v5, v5, v2, s[46:47]')
    e('v_mul_u32_u24 v5, 9, v5')
    e('v_mul_u32_u24 v4, 288, v5')
    e('v_lshl_add_u32 v6, v3, 4, v4')
    e('v_and_b32 v7, 1, v3')
    e('v_lshl_add_u32 v7, v7, 4, v4')
    e('v_lshrrev_b32 v8, 1, v3')
    e('v_mul_u32_u24 v8, 2304, v8')
    e('v_add_u32 v7, v7, v8')
    e('v_add_u32 v7, 256, v7')
    e(f's_mul_i32 s49, s{TYP}, {X_D1}')
    e(f'v_add_u32 v{VXO}, {X_O}, v6')
    e(f'v_add_u32 v{VXOR}, {X_O}, v7')
    e(f'v_add_u32 v{VXD}, s49, v6')
    e(f'v_add_u32 v{VXDR}, s49, v7')
    e('v_lshlrev_b32 v6, 4, v1')
    e(f's_mul_i32 s49, s{WAVE}, 9216')
    e(f's_add_u32 s49, s49, {X_O}')
    e(f'v_add_u32 v{VEX}, s49, v6')
    e(f's_xor_b32 s49, s{WAVE}, 1')
    e('s_mul_i32 s49, s49, 9216')
    e(f's_add_u32 s49, s49, {X_O}')
    e(f'v_add_u32 v{VEXP}, s49, v6')
    e('v_and_b32 v8, 0x39, v1')
    e('v_bfe_u32 v9, v1, 1, 1')
    e('v_lshl_add_u32 v8, v9, 2, v8')
    e('v_bfe_u32 v9, v1, 2, 1')
    e('v_lshl_add_u32 v8, v9, 1, v8')
    e(f'v_lshlrev_b32 v{VWL}, 4, v8')
    e(f's_mul_i32 s49, s{TYP}, 576')
    e(f's_add_u32 s49, s49, s{XB}')
    e(f's_add_u32 s49, s49, {60*288}')
    e(f's_lshl_b32 s50, s{NB}, 5')
    e('s_add_u32 s49, s49, s50')
    e('s_lshl_b32 s50, s48, 4')
    e('s_add_u32 s49, s49, s50')
    e('v_mul_u32_u24 v8, 1152, v5')
    e('v_lshl_add_u32 v8, v3, 2, v8')
    e(f'v_add_u32 v{VOUT}, s49, v8')
    e(f'v_add_u32 v{VOUT+1}, 3456, v{VOUT}')
    e(f'v_add_u32 v{VOUT+2}, 6912, v{VOUT}')
    e(f's_lshl_b32 s49, s{NB}, 1')
    e('s_add_u32 s49, s49, s48')
    e(f's_mul_i32 s49, s49, {NSTR}')
    e(f's_mul_i32 s{WSO}, s{TYP}, {NSTEP*1024}')
    e(f's_add_u32 s{WSO}, s{WSO}, s49')
    e(f's_add_u32 s{WSO}, s{WSO}, {WOFF + (16384 if o.tagp else 0)}')
    if o.tagp:
        e(f's_lshl_b32 s96, s{TYP}, 15')
        e('s_add_u32 s96, s96, s49')
        e(f's_add_u32 s96, s96, {WOFF + 2*NSTEP*1024}')
    e(f's_mov_b32 s{C2L}, 0x4038aa3b'); e(f's_mov_b32 s{C2L+1}, 0x4038aa3b')
    e(f's_mov_b32 s{CNL}, 0xbfb8aa3b'); e(f's_mov_b32 s{CNL+1}, 0xbfb8aa3b')
    e(f's_mov_b32 s{C60}, 0x42700000')
    e(f'v_min_u32 v{VF}, 31, v1')
    e(f'v_lshlrev_b32 v{VF}, 7, v{VF}')
    e(f'v_min_u32 v{VF+6}, 47, v1')
    e(f'v_lshlrev_b32 v{VF+6}, 7, v{VF+6}')
    e(f'v_mov_b32 v{VF+2}, 1')
    e('s_lshl_b32 s46, s48, 2')
    e(f'v_add_u32 v{VF+5}, s46, v{VF+1}')
    e(f's_or_b32 s46, s2, s{WAVE}')
    e('v_or_b32 v2, s46, v1')
    e('v_cmp_eq_u32 vcc, 0, v2')
    e(f'v_mov_b32 v{VCL}, -16')
    e(f'v_mov_b32 v{VCL+1}, -16')
    e(f'v_mov_b32 v3, {NONCE}')
    e(f'v_cndmask_b32 v{VCL}, v{VCL}, 4, vcc')
    e(f'v_cndmask_b32 v{VCL+1}, v{VCL+1}, v3, vcc')
    if o.yall:
        e(f's_lshr_b32 s46, s{NB}, 1')
        e(f's_add_u32 s47, s{NB}, 9')
        e('s_lshr_b32 s47, s47, 1')
        e('v_mov_b32 v4, s46')
        e('v_mov_b32 v5, s47')
        e('v_cmp_gt_u32 vcc, 32, v1')
        e('v_and_b32 v2, 7, v1')
        e('v_and_b32 v3, 15, v1')
        e('v_cndmask_b32 v4, v5, v4, vcc')
        e('v_min_u32 v3, 11, v3')
        e('v_mad_u32_u24 v2, v2, 9, v4')
        e('v_mad_u32_u24 v3, v3, 9, v4')
        e('v_lshlrev_b32 v2, 7, v2')
        e('v_lshlrev_b32 v3, 7, v3')
    e(f's_lshl_b32 s{FO}, s{TYP}, 13')
    if o.warmb:
        e(f's_cmp_eq_u32 s{TYP}, 1')
        e('s_cbranch_scc1 L_warmB')
        e('L_warmret:')
    e(f's_waitcnt vmcnt({(1 if o.mtouch == 1 else 0) + o.epoll}) lgkmcnt(0)')
    stamp(2)
    if o.padto and o.padev in ('m11', 'm12'):
        e(f's_lshr_b32 s46, s{RID}, 4')
        e('s_lshr_b32 s46, 0x33, s46')
        e('s_bitcmp1_b32 s46, 0')
        e(f's_cbranch_scc{1 if o.padev == "m11" else 0} L_pk')
        e('s_memrealtime s[100:101]'); e('s_waitcnt lgkmcnt(0)')
        e('L_pk:')
    e('s_mov_b64 exec, 1')
    e(f'ds_add_u32 v{VF+1}, v{VF+2} offset:8')
    e('s_mov_b64 exec, -1')
    e(f's_add_u32 s{TAG}, s{TAG}, {TAGINC}')
    e(f'v_mov_b32 v{VF+3}, s{TAG}')
    def flagwait(tag, vaddr, back):
        e(f'L_fw{tag}:')
        if o.diag and len(tag) == 2: e(f's_add_u32 s95, s95, {1 << (5 * int(tag[1]))}')
        e(f'buffer_load_dword v{VF+4}, v{vaddr}, {sr(S_WS)}, s{FO} offen sc1')
        e(f'ds_read_b32 v{VF+7}, v{VF+1} offset:12')
        e(f's_add_u32 s{NPOLL}, s{NPOLL}, 1')
        e('s_waitcnt vmcnt(0) lgkmcnt(0)')
        e(f'v_cmp_ne_u32 vcc, v{VF+3}, v{VF+4}')
        e(f'v_readfirstlane_b32 s46, v{VF+7}')
        e('s_nop 3')
        e(f's_cbranch_vccz {back}')
        e('s_cmp_lg_u32 s46, 0')
        e(f's_cbranch_scc1 {back}')
        e(f's_cmp_lg_u32 s{NPOLL}, {o.maxpoll}')
        e(f's_cbranch_scc1 L_fw{tag}')
        e(f'v_mov_b32 v{VF+7}, 0x10000')
        e('s_mov_b64 exec, 1')
        e(f'ds_add_u32 v{VF+1}, v{VF+7} offset:4')
        e('s_mov_b64 exec, -1')
        e(f's_branch L_fw{tag}')
    if o.epoll:
        e('s_cmp_eq_u32 s96, 0')
        e('s_cbranch_scc1 L_gate')
        e('s_waitcnt vmcnt(0)')
        e(f'v_cmp_ne_u32 vcc, v{VF+3}, v{VF+4}')
        e('s_nop 4')
        e('s_cbranch_vccz L_go')
    if o.gate:
        e('L_gate:')
        e(f'ds_read_b32 v{VF+4}, v{VF+1} offset:8')
        e('s_waitcnt lgkmcnt(0)')
        e(f'v_and_b32 v{VF+4}, 0xffff, v{VF+4}')
        e(f'v_cmp_gt_u32 vcc, 0x400, v{VF+4}')
        e('s_nop 4')
        e('s_cbranch_vccz L_gate2')
        e('s_sleep 1')
        e('s_branch L_gate')
        e('L_gate2:')
    if o.ppoll:
        e(f'buffer_load_dword v{VF+4}, v{VF}, {sr(S_WS)}, s{FO} offen sc1')
        e('L_pp:')
        for a_, b_ in ((VF + 4, 62), (62, VF + 4)):
            e(f's_sleep {o.ppoll}')
            e(f'buffer_load_dword v{b_}, v{VF}, {sr(S_WS)}, s{FO} offen sc1')
            e('s_waitcnt vmcnt(1)')
            e(f'v_cmp_ne_u32 vcc, v{VF+3}, v{a_}')
            e(f's_add_u32 s{NPOLL}, s{NPOLL}, 1')
            e('s_nop 3')
            e('s_cbranch_vccz L_go')
        e(f's_cmp_lt_u32 s{NPOLL}, 40')
        e('s_cbranch_scc1 L_pp')
        e(f's_mov_b32 s{NPOLL}, 0')
    if o.p0plain:
        e(f'buffer_load_dword v{VF+4}, v{VF}, {sr(S_WS)}, s{FO} offen')
        e('s_waitcnt vmcnt(0)')
        e(f'v_cmp_ne_u32 vcc, v{VF+3}, v{VF+4}')
        e('s_nop 4')
        e('s_cbranch_vccz L_go')
    if o.onepoll:
        e(f's_cmp_lt_u32 s{WAVE}, 2')
        e('s_cbranch_scc1 L_fw0')
        e('L_op:')
        e(f'ds_read_b32 v{VF+7}, v{VF+1} offset:8')
        e('s_waitcnt lgkmcnt(0)')
        e(f's_add_u32 s46, s{TYP}, 16')
        e(f'v_lshrrev_b32 v{VF+7}, s46, v{VF+7}')
        e(f'v_and_b32 v{VF+7}, 1, v{VF+7}')
        e(f'v_cmp_eq_u32 vcc, 0, v{VF+7}')
        e('s_nop 4')
        e('s_cbranch_vccnz L_op')
        e('s_branch L_go2')
    if not o.tagp: flagwait('0', VF, 'L_go')
    e('L_go:')
    jit()
    if o.tagp: e('s_mov_b32 s50, s96')
    if o.onepoll:
        e(f's_lshl_b32 s46, 0x10000, s{TYP}')
        e(f'v_mov_b32 v{VF+7}, s46')
        e('s_mov_b64 exec, 1')
        e(f'ds_or_b32 v{VF+1}, v{VF+7} offset:8')
        e('s_mov_b64 exec, -1')
        e('L_go2:')
    stamp(3)
    e('L_gw:')
    e(f'ds_read_b32 v{VF+7}, v{VF+1} offset:8')
    e('s_waitcnt lgkmcnt(0)')
    e(f'v_and_b32 v{VF+7}, 0xff, v{VF+7}')
    e(f'v_cmp_ne_u32 vcc, 4, v{VF+7}')
    e('s_nop 4')
    e('s_cbranch_vccnz L_gw')
    stamp(4)
    e(f's_setprio {o.mprio}')
    e(f's_cmp_eq_u32 s{TYP}, 1')
    e('s_cbranch_scc1 L_typeB')

    ACC = {'P': 64, 'Q': 100}
    WR, TMP = 136, 224
    XRING = [200 + 4 * i for i in range(6)]
    XWIN = [4 + 4 * i for i in range(6)] + [240 + 4 * i for i in range(4)]
    VC = 28
    PF = o.pf
    GT = 98
    wflags = {0: '', 1: ' sc1', 2: ' nt', 3: ' sc0'}[o.wsc1]
    for typ, S in enumerate(streams()):
        if typ == 1:
            e('.p2align 6')
            if o.warmb: e('L_warmB:'); e('s_branch L_warmret')
            e('L_typeB:')
        ops = []
        vstart = {}
        lastv = o.vt - 1
        v0 = 0
        G0 = 0
        if o.flat0:
            for g in range(16):
                vstart[g] = len(ops)
                for j in (range(9) if g % 2 == 0 or not o.flatzz else range(8, -1, -1)): ops.append((g, j))
            v0 = G0 = 16
        while v0 <= lastv:
            ch = 1 if v0 < o.chfrom + G0 else min(o.chain, lastv + 1 - v0)
            n0 = len(ops)
            for j in range(8, -1, -1):
                us = range(ch) if j % 2 == 0 else range(ch - 1, -1, -1)
                first_ = [u for u in us if v0 + u - j == 0 or (0 < v0 + u - j < NSTEP and S[v0+u-j][4] == 'Q' and S[v0+u-j-1][4] == 'P')]
                if first_: us = range(ch)
                for u in us:
                    if G0 <= v0 + u - j < NSTEP: ops.append((v0 + u - j, j))
            for u in range(ch): vstart[v0 + u] = n0 + (len(ops) - n0) * u // ch
            v0 += ch
        ntail = len(ops)
        if o.tail:
            for j in range(9):
                for g in range(o.vt - j, NSTEP): ops.append((g, j))
        assert len(ops) == NSTEP * 9 and len(set(ops)) == len(ops)
        N = len(ops)
        def key(n):
            g, j = ops[n]
            pid, arr, ch, c, acc = S[g]
            k = (pid, arr, ch, c + j)
            if n >= ntail and g < GT: k = k + ((n,) if not o.hold else ('h',))
            return k
        first, last = {}, {}
        for n in range(N):
            first.setdefault(key(n), n); last[key(n)] = n
        wfirst, wlast = {}, {}
        for n, (g, j) in enumerate(ops):
            wfirst.setdefault(g, n); wlast[g] = n
        tasks = []
        for k, n0 in first.items():
            win = o.tail and k[2] == 'rem' and k[1] == 'D'
            la = o.xla if n0 < ntail else 6
            if n0 >= ntail and ops[n0][1] == 0: la = o.tla
            elif win: la = 12
            tasks.append([n0 - la, n0 - 1, 'X', k])
        for g in range(NSTEP):
            rel = -100 + g if g < o.pf0 else max(0, wfirst[g] - 9 * PF)
            if o.tagp and g < 16:
                rel = -100 + g if g < 4 else max(0, wfirst[g] - 9 * o.tpf)
                tasks.append([rel, wfirst[g & ~1] - 9, 'W', g])
                continue
            tasks.append([rel, wfirst[g] - 1, 'W', g])
        def at(v, off=0): return vstart[v] + off
        firstD = min(n for n in range(N) if S[ops[n][0]][1] == 'D')
        lastO = max(n for n in range(N) if S[ops[n][0]][1] == 'O')
        lastP = {j: max(n for n in range(N) if ops[n][1] == j and S[ops[n][0]][4] == 'P') for j in range(9)}
        slow = []
        vused = set()
        def check(v, off, cnt, tag):
            tasks.append([at(v - 1, 3), at(v - 1, 8), 'L', (f'ds_read_b32 v{VC}, v{VF+1} offset:{off}', ('c', tag))])
            tasks.append([at(v, 0), at(v, 1), 'C', (f'v_cmp_ne_u32 vcc, {cnt}, v{VC}', ('c', tag))])
            tasks.append([at(v, 6), at(v, 7), 'I', [f's_cbranch_vccnz L_slow{typ}{tag}', f'L_back{typ}{tag}:']])
            slow.append((tag, off, cnt))
            vused.add(v)
            return at(v, 8)
        def add1(pos, off):
            tasks.append([pos, pos + 4, 'A', off])
        vD = [v for v in vstart if vstart[v] <= firstD - o.xla][-1] - 1
        okD = check(vD, 16, 4, 'D')
        assert okD <= firstD - o.xla
        add1(lastO, 20)
        VP = 47
        okR = check(VP, 20, 4, 'R')
        for j in range(9):
            assert lastP[j] + 12 < at(VP + 1 + j, 2)
            tasks.append([at(VP + 1 + j, 2), at(VP + 1 + j, 8), 'L', (f'ds_write_b128 v{VEX}, {vr(ACC["P"]+4*j,4)} offset:{1024*j}', ('pw', j))])
        tasks.append([at(VP + 10, 0), at(VP + 10, 4), 'A', 'pair'])
        VQ = VP + 13
        okP = check(VQ, 'pair', 2, 'P')
        for j in range(9):
            tasks.append([at(VQ + 1 + j, 2), at(VQ + 1 + j, 8), 'L', (f'ds_read_b128 {vr(TMP+4*(j&1),4)}, v{VEXP} offset:{1024*j}', ('pr', j))])
            v = VQ + 2 + j
            pos = at(v, 8 - (j + 2) - 1) if j <= 6 else at(v, 8 - (j - 7) - 1)
            sh = 1 if j >= 7 else 0
            if o.chain > 1:
                own = [n for n in range(N) if ops[n][1] == j]
                pos = [a_ + 10 for a_, b_ in zip(own, own[1:]) if b_ - a_ >= 14 and a_ + 9 >= at(v, 0) ][0]
                sh = 0
                tasks[-1][0] = pos - 9; tasks[-1][1] = pos - 4
                tasks[-1][3] = (f'ds_read_b128 {vr(TMP+4*(j&3),4)}, v{VEXP} offset:{1024*j}', ('pr', j))
            tasks.append([pos - 1 + sh, pos - 1 + sh, 'Q', (j, 0)])
            tasks.append([pos + sh, pos + sh, 'Q', (j, 1)])
        if typ == 0:
            tasks.append([at(64, 4), at(64, 8), 'S', f'buffer_store_dword v{VCL+1}, v{VCL}, {sr(S_DBG)}, 0 offen sc1'])
            tasks.append([at(84, 4), at(84, 8), 'S', f'buffer_store_dword v{VF+3}, v{VCL+1}, {sr(S_WS)}, 0 offen sc1'])
        fslow = []
        kslow = []
        if o.tagp:
            for g in range(0, 16, 2):
                n0 = wfirst[g]
                if g < 4: continue
                tasks.append([n0 - 8, n0 - 7, 'K', g])
                tasks.append([n0 - 2, n0 - 1, 'I', ['s_cmp_lg_u64 s[48:49], 0', f's_cbranch_scc1 L_ks{typ}{g}', f'L_kb{typ}{g}:']])
        passes = {}
        for g in range(NSTEP): passes.setdefault(S[g][0], g)
        need = [(passes[1], VF, 32 + 64 * typ), (32, VF + 6, 128), (passes[4], VF, 176), (passes[5], VF, 208), (passes[6], VF + 6, 240)]
        if o.yall: need[2:] = [(passes[4], 2, 176), (passes[5], 2, 176 + 72), (passes[6], 3, 176 + 144)]
        for ci, (gn, va, idx) in enumerate(need):
            v = gn - o.pfcs[ci] - 1
            while v in vused: v -= 1
            tasks.append([at(v - o.fleads[ci], 4), at(v - o.fleads[ci], 8), 'F', (va, idx, ci)])
            tasks.append([at(v, 0), at(v, 1), 'G', ci])
            tasks.append([at(v, 6), at(v, 7), 'I', [f's_cbranch_vccnz L_fw{typ}{ci}', f'L_fb{typ}{ci}:']])
            fslow.append((ci, va))
            assert v not in vused, v
            for t in tasks:
                if t[2] == 'W' and (t[3] >= gn): t[0] = max(t[0], at(v, 8))
        tasks.append([at(v + 1, 2), at(v + 1, 8), 'A', 4])
        if typ == 0:
            for lvl, v in enumerate(o.trig): tasks.append([at(v, 2), at(v, 8), 'P', lvl + 1])
            if o.wbat: tasks.append([ntail + o.wbat, ntail + o.wbat + 6, 'P', 4])
        tasks.sort(key=lambda t: (t[0], t[1]))
        vq, lq = [], []
        dirty = [False]
        xreg, busy = {}, {}
        wn = [0]
        wr = {}
        lastw = [-100]
        later = []
        BIG = [WR + 4 * i for i in range(16)] + XWIN + [ACC['P'] + 4 * i for i in range(9)]
        for i in range(9): busy[ACC['P'] + 4 * i] = at(VP + 12)
        until = {}
        if o.chain > 1:
            BIG += XRING + [VA, VA + 4, VA + 8]
            for i in range(9):
                BIG.append(ACC['Q'] + 4 * i)
                until[ACC['Q'] + 4 * i] = min(n for n in range(N) if ops[n][1] == i and S[ops[n][0]][4] == 'Q') - 3
        def freeregs(n, end): return [x for x in BIG if busy.get(x, -1) <= n and end < until.get(x, 10**9)]
        def freepairs(n, end):
            f_ = set(freeregs(n, end))
            return [x for x in sorted(f_) if x % 8 == PAR8.get(x, -1) and x + 4 in f_]
        PAR8 = {x: x % 8 for x in list(range(WR, WR + 64, 8)) + [4, 12, 20, 240, 248, 200, 208, 216, 100, 108, 116, 124, VA]}
        def kcheck(g):
            vwait(g + 1)
            for i, gg in enumerate((g, g + 1)):
                a_ = wr[gg] - 2
                em(f'v_bitop3_b32 v{VC+i}, v{a_+1}, v{a_+6}, v{VF+3} bitop3:0x7e')
            em(f'v_or_b32 v{VC}, v{VC}, v{VC+1}')
            em(f'v_cmp_ne_u32 s[48:49], 0, v{VC}')
            kslow.append((g, wr[g] - 2, wr[g + 1] - 2))
        def wok(t, n):
            if t[2] != 'W': return True
            if t[3] != wn[0]: return False
            if o.tagp and t[3] < 16:
                return bool(freepairs(n, wlast[t[3]])) and (n - lastw[0] >= 2 or t[1] - n <= 4)
            free = len(freeregs(n, wlast[t[3]]))
            if t[1] - n <= 9 * 3: return free > 0
            return n - lastw[0] >= o.wgap and free > o.wres
        since = {}
        fill = []
        def em(x):
            e(x)
            if not x.endswith(':'):
                for jj in since: since[jj] += 1
        def lwait(tag):
            if tag not in lq: return
            i = lq.index(tag)
            em(f's_waitcnt lgkmcnt({0 if dirty[0] else len(lq)-1-i})')
            if dirty[0]: lq.clear(); dirty[0] = False
            else: del lq[:i + 1]
        def vwait(g):
            if g not in vq: return
            i = vq.index(g)
            em(f's_waitcnt vmcnt({len(vq)-1-i})')
            del vq[:i + 1]
        def run(t, n):
            kind, p = t[2], t[3]
            if kind == 'X':
                pool = BIG if (o.chain > 1 or p[-1] == 'h' or (p[2] == 'rem' and p[1] == 'D')) else XRING
                r = [x for x in pool if busy.get(x, -1) <= n and last[p] < until.get(x, 10**9)]
                assert r, ('no x register', p, n)
                r = min(r, key=lambda x: (until.get(x, 10**9), busy.get(x, -1)))
                busy[r] = last[p]; xreg[p] = r
                arr, ch, s_ = p[1], p[2], p[3]
                if o.nolds and n > 9 * 30: return
                if ch == 'rem': em(f'ds_read_b128 {vr(r,4)}, v{VXOR if arr == "O" else VXDR} offset:{288*s_}')
                else: em(f'ds_read_b128 {vr(r,4)}, v{VXO if arr == "O" else VXD} offset:{64*ch+288*s_}')
                lq.append(p)
            elif kind == 'W':
                g = p
                if o.tagp and g < 16:
                    r = min(freepairs(n, wlast[g]), key=lambda x: (until.get(x, 10**9), busy.get(x, -1)))
                    busy[r] = busy[r + 4] = wlast[g]; wr[g] = r + 2
                    assert g == wn[0]; wn[0] += 1
                    lastw[0] = n
                    em(f'buffer_load_dwordx4 {vr(r,4)}, v{VWL}, {sr(S_WS)}, s50 offen offset:{2048*(g%2)}')
                    em(f'buffer_load_dwordx4 {vr(r+4,4)}, v{VWL}, {sr(S_WS)}, s50 offen offset:{2048*(g%2)+1024}')
                    vq.append(('h', g)); vq.append(g)
                    if g % 2 == 1:
                        if n < 0: em('s_add_u32 s50, s50, 4096')
                        else: later.append('s_add_u32 s50, s50, 4096')
                    return
                r = min(freeregs(n, wlast[g]), key=lambda x: (until.get(x, 10**9), busy.get(x, -1)))
                busy[r] = wlast[g]; wr[g] = r
                assert g == wn[0]; wn[0] += 1
                lastw[0] = n
                if o.now and g > 40: return
                if o.wsame and g > 40:
                    em(f'buffer_load_dwordx4 {vr(r,4)}, v{VWL}, {sr(S_WS)}, s{WSO} offen offset:{1024*(g%4)}{wflags}'); vq.append(g); return
                em(f'buffer_load_dwordx4 {vr(r,4)}, v{VWL}, {sr(S_WS)}, s{WSO} offen offset:{1024*(g%4)}{wflags}')
                if g % 4 == 3:
                    if n < 0: em(f's_add_u32 s{WSO}, s{WSO}, 4096')
                    else: later.append(f's_add_u32 s{WSO}, s{WSO}, 4096')
                vq.append(g)
            elif kind == 'L':
                em(p[0].replace('offset:pair', 'offset:24').replace(f'v{VF+1} offset:24', f'v{VF+5} offset:24')); lq.append(p[1])
            elif kind == 'C':
                lwait(p[1]); em(p[0])
            elif kind == 'I':
                for x in p: em(x)
            elif kind == 'A':
                em('s_mov_b64 exec, 1')
                if p == 'pair': em(f'ds_add_u32 v{VF+5}, v{VF+2} offset:24')
                else: em(f'ds_add_u32 v{VF+1}, v{VF+2} offset:{p}')
                em('s_mov_b64 exec, -1')
                lq.append(('a', p))
            elif kind == 'Q':
                p, hf = p
                lwait(('pr', p))
                q = ACC['Q'] + 4 * p; t_ = TMP + 4 * (p & (3 if o.chain > 1 else 1))
                for i in (2 * hf, 2 * hf + 1): em(f'v_add_f32 v{q+i}, v{q+i}, v{t_+i}')
            elif kind == 'S':
                assert not any(isinstance(x, tuple) and x[0] == 's' for x in vq)
                em(p); vq.append(('s', n))
            elif kind == 'F':
                em(f's_mov_b32 s{FO}, {128*p[1]}')
                em(f'buffer_load_dword v{VF+4}, v{p[0]}, {sr(S_WS)}, s{FO} offen {o.fflags}'); vq.append(('f', p[2]))
            elif kind == 'K':
                kcheck(p)
            elif kind == 'G':
                vwait(('f', p)); em(f'v_cmp_ne_u32 vcc, v{VF+3}, v{VF+4}')
            elif kind == 'P':
                em(f'v_mov_b32 v{VF+7}, {p}')
                em('s_mov_b64 exec, 1')
                em(f'ds_max_u32 v{VF+1}, v{VF+7}')
                em('s_mov_b64 exec, -1')
                lq.append(('p', p))
        def epi(j, pk):
            q = ACC['Q'] + 4 * j
            t = TMP + 8 * (j & 1)
            I = []
            if pk:
                I.append(f'v_pk_mul_f32 {vr(t,2)}, {vr(q,2)}, s[{C2L}:{C2L+1}]')
                I.append(f'v_pk_mul_f32 {vr(t+2,2)}, {vr(q+2,2)}, s[{CNL}:{CNL+1}]')
            else:
                for i in (0, 1): I.append(f'v_mul_f32 v{t+i}, s{C2L}, v{q+i}')
                for i in (2, 3): I.append(f'v_mul_f32 v{t+i}, s{CNL}, v{q+i}')
            I.append(f'v_min_f32 v{t}, s{C60}, v{t}')
            I.append(f'v_min_f32 v{t+1}, s{C60}, v{t+1}')
            for i in (0, 1, 2, 3): I.append(f'v_exp_f32 v{t+i}, v{t+i}')
            if pk:
                I.append(f'v_pk_add_f32 {vr(t+4,2)}, {vr(t,2)}, 1.0 op_sel_hi:[1,0]')
                I.append(f'v_pk_add_f32 {vr(t+6,2)}, {vr(t,2)}, -1.0 op_sel_hi:[1,0]')
                I.append(f'v_pk_fma_f32 {vr(t+4,2)}, {vr(t+4,2)}, {vr(t+2,2)}, {vr(t+4,2)}')
            else:
                for i in (0, 1): I.append(f'v_add_f32 v{t+4+i}, 1.0, v{t+i}')
                for i in (0, 1): I.append(f'v_fma_f32 v{t+4+i}, v{t+4+i}, v{t+2+i}, v{t+4+i}')
            I.append(f'v_rcp_f32 v{t+4}, v{t+4}')
            I.append(f'v_rcp_f32 v{t+5}, v{t+5}')
            if pk:
                I.append('s_nop 0')
                I.append(f'v_pk_mul_f32 {vr(t+6,2)}, {vr(t+6,2)}, {vr(t+4,2)}')
            else:
                for i in (0, 1): I.append(f'v_add_f32 v{t+6+i}, -1.0, v{t+i}')
                for i in (0, 1): I.append(f'v_mul_f32 v{t+6+i}, v{t+6+i}, v{t+4+i}')
            I.append(f'v_cvt_pk_bf16_f32 v{q}, v{t+6}, v{t+7}')
            I.append(f'buffer_store_dword v{q}, v{VOUT + j//3}, {sr(S_OUT)}, 0 offen offset:{1152*(j%3)} {o.oflags if j < o.oj else ""}')
            return I
        def cost(x): return 2 if x.startswith(('v_exp', 'v_rcp', 'buffer')) else 1
        while tasks and tasks[0][0] < 0: run(tasks.pop(0), -1)
        if o.tagp:
            for g in (0, 2):
                vwait(g + 1)
                for gg in (g + 4, g + 5):
                    t_ = [t for t in tasks if t[2] == 'W' and t[3] == gg][0]
                    tasks.remove(t_); run(t_, -1)
                kcheck(g)
                em('s_nop 2')
                em('s_cmp_lg_u64 s[48:49], 0')
                em(f's_cbranch_scc1 L_ks{typ}{g}')
                em(f'L_kb{typ}{g}:')
        inv = {n: v for v, n in vstart.items()}
        lastop = {j: max(n for n in range(N) if ops[n][1] == j) for j in range(9)}
        for n, (g, j) in enumerate(ops):
            if n in inv and o.padto and o.padev == 'm5' and inv[n] == o.padstep:
                e('s_memrealtime s[100:101]'); dirty[0] = True
            if n in inv and o.diag:
                v = inv[n]
                if o.diag == 2 and v in o.marks:
                    kk = o.marks.index(v)
                    e(f's_memtime s[{ST0+2*kk}:{ST0+2*kk+1}]'); dirty[0] = True
                if o.diag in (1, 4) and v == 33: stamp(5); stamp(6); dirty[0] = True
            if o.jit and n in inv and inv[n] in (20, 36, 44, 52, 60, 70, 90): jit()
            k = key(n)
            assert k in xreg, (k, n)
            lwait(k); vwait(g)
            acc = S[g][4]
            d = ACC[acc] + 4 * j
            if g == 0: cs = '0'
            elif acc == 'Q' and S[g-1][4] == 'P': cs = vr(ACC['P'] + 4 * j, 4)
            else: cs = vr(d, 4)
            em(f'v_mfma_f32_16x16x32_bf16 {vr(d,4)}, {vr(wr[g],4)}, {vr(xreg[k],4)}, {cs}' if not o.swapab else f'v_mfma_f32_16x16x32_bf16 {vr(d,4)}, {vr(xreg[k],4)}, {vr(wr[g],4)}, {cs}')
            if n == lastop[j]: since[j] = 0
            while later: em(later.pop(0))
            budget = 2
            TC = {'X': 1, 'W': 2, 'L': 2, 'C': 1, 'I': 0, 'A': 1, 'Q': 2, 'S': 2, 'F': 2, 'G': 1, 'P': 2, 'K': 2}
            while True:
                ready = [t for t in tasks if t[0] <= n and wok(t, n)]
                if not ready: break
                t = min(ready, key=lambda t: t[1])
                assert t[1] >= n, ('late', t, n)
                if TC[t[2]] > budget and t[1] > n:
                    fit = [u for u in ready if TC[u[2]] <= budget]
                    if not fit: break
                    t = min(fit, key=lambda t: t[1])
                tasks.remove(t); run(t, n); budget -= TC[t[2]]
            for jj in sorted(since):
                if 8 <= since[jj] < 10**6:
                    fill += epi(jj, False); since[jj] = 10**6
            budget += o.nfill - 2
            while fill and budget >= cost(fill[0]):
                budget -= cost(fill[0])
                if fill[0].startswith('buffer_store'):
                    q_ = int(re.match(r'buffer_store_dword v(\d+)', fill[0]).group(1))
                    until.pop(q_, None); busy[q_] = n + 2
                em(fill.pop(0))
            assert all(t[1] > n for t in tasks), ('late', n, [t for t in tasks if t[1] <= n])
        assert not tasks
        stamp(7)
        while fill: em(fill.pop(0))
        for jj in [jj for jj in sorted(since) if since[jj] < 10**6]:
            if since[jj] < 8: em(f's_nop {8-since[jj]-1}')
            for x in epi(jj, True): em(x)
        stamp(8)
        if o.padto and o.padev[0] == 'm': padloop(typ)
        if o.diag == 1:
            e('s_waitcnt vmcnt(0)')
            stamp(9)
            dump(10)
        if o.diag == 2:
            kk = len(o.marks)
            e(f's_memtime s[{ST0+2*kk}:{ST0+2*kk+1}]')
            dump(10)
        e('s_endpgm')
        for tag, off, cnt in slow:
            e(f'L_slow{typ}{tag}:')
            e(f'ds_read_b32 v{VC}, v{VF+5 if off == "pair" else VF+1} offset:{24 if off == "pair" else off}')
            e('s_waitcnt lgkmcnt(0)')
            e(f'v_cmp_ne_u32 vcc, {cnt}, v{VC}')
            e('s_nop 4')
            e(f's_cbranch_vccnz L_slow{typ}{tag}')
            e(f's_branch L_back{typ}{tag}')
        for ci, va in fslow: flagwait(f'{typ}{ci}', va, f'L_fb{typ}{ci}')
        for g, a0_, a1_ in kslow:
            e(f'L_ks{typ}{g}:')
            if o.diag: e(f's_add_u32 s95, s95, {1 << 25}')
            e(f'ds_read_b32 v{VF+7}, v{VF+1} offset:12')
            e(f's_add_u32 s47, s96, {2048*g}')
            e('s_waitcnt lgkmcnt(0)')
            for i, a_ in enumerate((a0_, a0_ + 4, a1_, a1_ + 4)):
                e(f'buffer_load_dwordx4 {vr(a_,4)}, v{VWL}, {sr(S_WS)}, s47 offen offset:{1024*i} sc1')
            e(f'v_readfirstlane_b32 s46, v{VF+7}')
            e(f's_add_u32 s{NPOLL}, s{NPOLL}, 1')
            e('s_waitcnt vmcnt(0)')
            e('s_cmp_lg_u32 s46, 0')
            e(f's_cbranch_scc1 L_kb{typ}{g}')
            e(f'v_bitop3_b32 v{VC}, v{a0_+1}, v{a0_+6}, v{VF+3} bitop3:0x7e')
            e(f'v_bitop3_b32 v{VC+1}, v{a1_+1}, v{a1_+6}, v{VF+3} bitop3:0x7e')
            e(f'v_or_b32 v{VC}, v{VC}, v{VC+1}')
            e(f'v_cmp_ne_u32 s[48:49], 0, v{VC}')
            e('s_nop 2')
            e('s_cmp_eq_u64 s[48:49], 0')
            e(f's_cbranch_scc1 L_kb{typ}{g}')
            e(f's_cmp_lg_u32 s{NPOLL}, {o.maxpoll}')
            e(f's_cbranch_scc1 L_ks{typ}{g}')
            e(f'v_mov_b32 v{VF+7}, 0x10000')
            e('s_mov_b64 exec, 1')
            e(f'ds_add_u32 v{VF+1}, v{VF+7} offset:4')
            e('s_mov_b64 exec, -1')
            e(f's_branch L_ks{typ}{g}')

    mark['help0'] = len(e.L)
    if not o.hfirst: e('.p2align 6')
    e('L_helper:')
    role[0] = 'h'
    e(f's_setprio {o.hprio}')
    e(f's_sub_u32 s{TW0}, s{WAVE}, 4')
    e(f's_mov_b32 s{TW1}, s{WAVE}')
    e(f's_sub_u32 s{PAIR}, s{RID}, {NPROD}')
    e(f's_cselect_b32 s{PAIR}, s{RID}, s{PAIR}')
    e(f's_mov_b32 s{MODE}, 0')
    e(f's_mov_b32 s{NOTASK}, s{RID}')
    e(f's_mov_b32 s{HAS3}, s{TW0}')
    e(f's_lshl_b32 s{SCRB}, s{TW0}, 12')
    e(f's_add_u32 s{SCRB}, s{SCRB}, {SCR}')
    e('L_prod:')
    T = [(28, TW0, 2, 52, 0), (36, TW1, 4, 53, 2048), (44, TW2, 6, 54, 16384)]
    c, kp, q, cc, kk, t = 46, 47, 48, 49, 50, 51
    b = TS
    e('v_mov_b32 v19, 4320')
    e('v_and_b32 v23, 3, v1')
    e('v_lshrrev_b32 v24, 2, v1')
    e('v_mul_u32_u24 v24, 288, v24')
    for (vb, sw, vl, vs, so) in T:
        e(f'v_lshl_add_u32 v8, s{sw}, 2, v23' if sw != TW2 else 'v_add_u32 v8, 32, v23')
        e('v_cmp_le_u32 vcc, 18, v8')
        e(f'v_lshl_add_u32 v{vl}, v8, 4, v24')
        e(f'v_add_u32 v9, v{vl}, v19')
        e(f'v_cndmask_b32 v{vl}, v{vl}, v9, vcc')
    e(f's_and_b32 s{c}, s{PAIR}, 15')
    e(f's_lshr_b32 s{kp}, s{PAIR}, 4')
    e(f's_mul_i32 s{b}, s{c}, 165888')
    e(f's_mul_i32 s{t}, s{kp}, 9216')
    e(f's_add_u32 s{b}, s{b}, s{t}')
    e(f's_add_u32 s{b+1}, s{b}, 82944')
    e(f's_mov_b32 s{S_W+2}, 2571264')
    e(f's_mov_b32 s{S_W+3}, 0x20000')
    e(f's_mov_b32 s{S_WO+3}, s{S_W+3}')
    e(f's_cmp_lg_u32 s{c}, 15')
    e(f's_cselect_b32 s{S_WO+2}, s{S_W+2}, 0')
    e(f's_mov_b32 m0, s{SCRB}')
    e('s_waitcnt lgkmcnt(0)')
    e(f's_mov_b32 s{S_W}, s6')
    e(f's_and_b32 s{S_W+1}, s7, 0xffff')
    e(f's_mov_b32 s{S_WO}, s6')
    e(f's_and_b32 s{S_WO+1}, s7, 0xffff')
    e(f's_cmp_ge_u32 s{NOTASK}, {NTASK}')
    e('s_cbranch_scc1 L_a3')
    def cond3(lbl):
        e(f's_cmp_lg_u32 s{HAS3}, 0')
        e(f's_cbranch_scc1 {lbl}')
    for ti, (vb, sw, vl, vs, so) in enumerate(T):
        if ti == 2: cond3('L_a3')
        if ti == 1: e('s_addk_i32 m0, 1024'); e('s_nop 0')
        e(f'buffer_load_dwordx4 v{vl}, {sr(S_W)}, s{b} offen lds')
        e('s_addk_i32 m0, 1024')
        e('s_nop 0')
        e(f'buffer_load_dwordx4 v{vl}, {sr(S_WO)}, s{b+1} offen lds')
        if ti == 1: e(f's_addk_i32 m0, {16384-3072}')
    e('L_a3:')
    stamp(1)
    e(f's_cmp_lg_u32 s{MODE}, 0')
    e('s_cbranch_scc1 L_a4')
    e(f's_load_dword s{TAG}, s[12:13], {NONCE}')
    e(f's_lshr_b32 s{EARLY}, 0x33, s{kp}')
    e(f's_and_b32 s{EARLY}, s{EARLY}, 1')
    e(f's_sub_u32 s{XK}, 2, s{EARLY}')
    e(f's_lshl_b32 s{t}, s{kp}, 1')
    e(f's_lshr_b32 s{YT}, {(3<<12)+(3<<14)+(3<<16)}, s{t}')
    e(f's_and_b32 s{YT}, s{YT}, 3')
    e(f's_lshr_b32 s{t}, s{kp}, 1')
    e(f's_cmp_ge_u32 s{RID}, {NPROD}')
    e(f's_cselect_b32 s{EARLY}, 0, s{EARLY}')
    e(f's_cselect_b32 s{XK}, 3, s{XK}')
    e(f's_cselect_b32 s{YT}, s{t}, s{YT}')
    e(f's_cmp_ge_u32 s{RID}, {NPROD+32}')
    e(f's_cselect_b32 s{XK}, 0, s{XK}')
    e(f's_cmp_ge_u32 s{RID}, {NTASK}')
    e(f's_cselect_b32 s{YT}, 0, s{YT}')
    if not o.b0early:
        e(f's_cmp_lg_u32 s{EARLY}, 0')
        e('s_cbranch_scc1 L_a4')
    e('s_barrier')
    e('L_a4:')
    jit()
    e(f's_mov_b32 s{MASK}, 0xffff0000')
    e(f's_mov_b32 s{NPOLL}, 0')
    srd(e, S_WS, 12, WS_REC)
    srd(e, S_DBG, 10, 256)
    e(f'v_mov_b32 v10, {CNT}')
    e(f'v_mov_b32 v20, {(256 - 18*NSTR) & 0xffffffff}')
    e(f'v_mov_b32 v26, {NSTR}')
    e('v_bfe_u32 v21, v1, 2, 2')
    e('v_lshlrev_b32 v21, 7, v21')
    e('v_and_b32 v22, 1, v1')
    e('v_lshl_add_u32 v21, v22, 6, v21')
    e('v_bfe_u32 v22, v1, 1, 1')
    e('v_lshl_add_u32 v21, v22, 3, v21')
    e('v_lshrrev_b32 v22, 4, v1')
    e('v_lshl_add_u32 v21, v22, 4, v21')
    e(f'v_add_u32 v21, s{SCRB}, v21')
    if o.yall: e('v_mov_b32 v62, v21')
    e('v_and_b32 v25, 15, v1')
    e('v_lshlrev_b32 v25, 4, v25')
    for (vb, sw, vl, vs, so) in T:
        e(f'v_lshl_add_u32 v8, s{sw}, 2, v22' if sw != TW2 else 'v_add_u32 v8, 32, v22')
        e('v_cmp_le_u32 vcc, 18, v8')
        e(f'v_mad_u32_u24 v{vs}, v8, v26, v25')
        e(f'v_add_u32 v9, v{vs}, v20')
        e(f'v_cndmask_b32 v{vs}, v{vs}, v9, vcc')
    if o.tagp:
        e(f's_lshr_b32 s97, 0x33, s{kp}')
        e('s_and_b32 s97, s97, 1')
        e(f's_cmp_eq_u32 s{WAVE}, 4')
        e(f's_cselect_b32 s{t}, 1, s{97 if o.split1 else EARLY}')
        e(f's_cmp_lg_u32 s{t}, 0')
        e(f's_cselect_b32 s{t}, 4, -16')
        e(f'v_mov_b32 v9, s{t}')
        e('s_waitcnt lgkmcnt(0)')
        e('s_mov_b64 exec, 1')
        e(f'buffer_load_dword v27, v9, {sr(S_DBG)}, 0 offen sc1')
        e('s_mov_b64 exec, -1')
        e(f's_lshr_b32 s96, s{kp}, 2')
        e('s_lshl_b32 s96, s96, 4')
        e(f's_add_u32 s96, s96, s{c}')
        e('s_lshl_b32 s96, s96, 2')
        e(f's_and_b32 s{t}, s{kp}, 1')
        e(f's_add_u32 s96, s96, s{t}')
        e('s_lshl_b32 s96, s96, 9')
        e(f's_add_u32 s96, s96, {WOFF + 2*NSTEP*1024}')
    e(f's_lshr_b32 s{q}, s{kp}, 1')
    e(f's_and_b32 s{cc}, s{c}, 7')
    e(f's_lshr_b32 s{kk}, s{c}, 3')
    e(f's_and_b32 s{t}, s{kp}, 1')
    e(f's_cmp_eq_u32 s{kp}, 8')
    e(f's_cselect_b32 s{cc}, s{cc}, s{c}')
    e(f's_cselect_b32 s{kk}, s{kk}, s{t}')
    e(f's_lshl_b32 s{kk}, s{kk}, 9')
    e(f's_add_u32 s{kk}, s{kk}, {WOFF}')
    e(f's_lshl_b32 s{t}, s{q}, 4')
    e(f's_add_u32 s{b+2}, s{t}, s{cc}')
    e(f's_sub_u32 s{b+3}, s{b+2}, s{q}')
    e(f's_cmp_ge_u32 s{q}, 2')
    e(f's_cselect_b32 s{b+4}, 74, 0')
    e(f's_add_u32 s{b+4}, s{b+4}, s{b+2}')
    e(f's_cmp_lt_u32 s{cc}, 2')
    e(f's_cselect_b32 s{t}, 32, 136')
    e(f's_add_u32 s{t}, s{t}, s{cc}')
    e(f's_cmp_eq_u32 s{kp}, 8')
    e(f's_cselect_b32 s{b+4}, s{t}, s{b+4}')
    e(f's_add_u32 s{b+2}, s{b+2}, 34')
    e(f's_add_u32 s{b+3}, s{b+3}, 144')
    for k in (2, 3, 4):
        e(f's_lshl_b32 s{b+k}, s{b+k}, 10')
        e(f's_add_u32 s{b+k}, s{b+k}, s{kk}')
    e(f's_cmp_eq_u32 s{kp}, 8')
    e(f's_cselect_b32 s{t}, 1, 2')
    e(f's_cmp_eq_u32 s{c}, 15')
    e(f's_cselect_b32 s{b+5}, s{t}, 0')
    e(f's_lshl_b32 s46, s{WAVE}, 2')
    e(f's_add_u32 s46, s46, {CNT+16}')
    e('v_mov_b32 v55, s46')
    if o.tagp:
        e('s_waitcnt vmcnt(1)')
        stamp(2)
        e(f's_cmp_ge_u32 s{NOTASK}, {NTASK}')
        e('s_cbranch_scc1 L_x9')
    else:
        e('v_mov_b32 v27, 0')
        e('v_mov_b32 v9, 4')
        e('s_waitcnt vmcnt(0) lgkmcnt(0)')
        stamp(2)
        e(f's_cmp_lg_u32 s{WAVE}, 4')
        e('s_cbranch_scc1 L_a5')
        e('s_mov_b64 exec, 1')
        e(f'buffer_load_dword v27, v9, {sr(S_DBG)}, 0 offen sc1')
        e('s_mov_b64 exec, -1')
        e('L_a5:')
        e(f's_cmp_ge_u32 s{NOTASK}, {NTASK}')
        e('s_cbranch_scc1 L_x9')
    for (vb, sw, vl, vs, so) in T:
        for tap in range(2):
            for half in range(2):
                e(f'ds_read_b64_tr_b16 {vr(vb+4*tap+2*half,2)}, v21 offset:{so+1024*tap+512*half}')
    nlab = [0]
    def st01(vb, vs):
        nlab[0] += 1
        e(f'buffer_store_dwordx4 {vr(vb,4)}, v{vs}, {sr(S_WS)}, s{b+2} offen {o.stf}')
        e(f's_cmp_eq_u32 s{b+5}, 2')
        e(f's_cbranch_scc1 L_skip{nlab[0]}')
        e(f'buffer_store_dwordx4 {vr(vb+4,4)}, v{vs}, {sr(S_WS)}, s{b+3} offen {o.stf}')
        e(f'L_skip{nlab[0]}:')
    def st01all(lbl):
        st01(T[0][0], T[0][3]); st01(T[1][0], T[1][3])
        cond3(lbl)
        st01(T[2][0], T[2][3])
    def dosum(vb, tb, ob):
        for i in range(8):
            e(f'v_lshlrev_b32 v{tb+2*i}, 16, v{vb+i}')
            e(f'v_and_b32 v{tb+2*i+1}, s{MASK}, v{vb+i}')
        for i in range(4):
            e(f'v_pk_add_f32 {vr(tb+2*i,2)}, {vr(tb+2*i,2)}, {vr(tb+8+2*i,2)}')
        for i in range(4):
            e(f'v_cvt_pk_bf16_f32 v{ob+i}, v{tb+2*i}, v{tb+2*i+1}')
    def ldswait(off, cmp, operand, tag, slp):
        e(f'L_lw{tag}:')
        e(f'ds_read_b32 v11, v10 offset:{off}')
        e('s_waitcnt lgkmcnt(0)')
        e('v_and_b32 v11, 0xff, v11')
        e(f'v_cmp_{cmp}_u32 vcc, {operand}, v11')
        e('s_nop 4')
        e(f's_cbranch_vccnz L_lx{tag}')
        e(f's_sleep {slp}')
        e(f's_branch L_lw{tag}')
        e(f'L_lx{tag}:')
    SOR = lambda ti: (210 + 8 * ti) if o.tagp else (240 + 4 * ti)
    e(f's_or_b32 s46, s{EARLY}, s{MODE}')
    e(f's_cmp_eq_u32 s{XK}, 2')
    e('s_cselect_b32 s47, 1, s46')
    if o.xl: e('s_mov_b32 s46, s47')
    if o.split1:
        assert o.tagp and o.xl
        e('s_or_b32 s47, s47, s97')
        e(f's_andn2_b32 s50, s97, s{MODE}')
    e('s_cmp_eq_u32 s47, 0')
    e('s_cbranch_scc1 L_x9')
    if o.tagp:
        e('s_cmp_eq_u32 s97, 0')
        e('s_cbranch_scc1 L_x7')
        e('s_waitcnt vmcnt(0)')
        e('v_readfirstlane_b32 s48, v27')
        e(f's_add_u32 s49, s{TAG}, {TAGINC}')
        e('s_not_b32 s47, s49')
        e(f's_or_b32 s48, s48, s{MODE}')
        e('s_cselect_b32 s49, s47, s49')
        for ti in range(3):
            e(f'v_mov_b32 v{SOR(ti)-1}, s49')
            e(f'v_mov_b32 v{SOR(ti)+4}, s49')
        e('L_x7:')
    for ti, (vb, sw, vl, vs, so) in enumerate(T):
        if ti == 2: cond3('L_x3')
        if o.split1:
            if ti == 1: e(f's_and_b32 s47, s50, s{EARLY}')
            else: e(f's_andn2_b32 s47, s50, s{EARLY}')
            e(f's_cbranch_scc1 L_x5{ti}')
        e(f's_waitcnt lgkmcnt({8-4*ti})')
        dosum(vb, 64 + 16 * ti, SOR(ti))
        if not o.split1:
            e('s_cmp_eq_u32 s46, 0')
            e(f's_cbranch_scc1 L_x5{ti}')
        if o.tagp:
            e('s_cmp_eq_u32 s97, 0')
            e(f's_cbranch_scc1 L_x6{ti}')
            e(f'buffer_store_dwordx4 {vr(SOR(ti)-2,4)}, v{vs}, {sr(S_WS)}, s96 offen {o.stf}')
            e(f'buffer_store_dwordx4 {vr(SOR(ti)+2,4)}, v{vs}, {sr(S_WS)}, s96 offen offset:1024 {o.stf}')
            e(f's_branch L_x5{ti}')
            e(f'L_x6{ti}:')
        e(f'buffer_store_dwordx4 {vr(SOR(ti),4)}, v{vs}, {sr(S_WS)}, s{b+4} offen {o.stf}')
        e(f'L_x5{ti}:')
    e('L_x3:')
    e(f's_cmp_eq_u32 s{MODE}, 0')
    e('s_cbranch_scc1 L_x9')
    e('L_x2:')
    e('s_waitcnt lgkmcnt(0)')
    st01all('L_x4')
    e('L_x4:')
    e(f's_cmp_eq_u32 s{MODE}, 0')
    e('s_cbranch_scc1 L_x9')
    e('s_waitcnt vmcnt(0)')
    e(f's_add_u32 s{PAIR}, s{PAIR}, 1')
    e(f's_cmp_lt_u32 s{PAIR}, {NPROD}')
    e('s_cbranch_scc1 L_prod')
    e('v_mov_b32 v11, 1')
    e('ds_write_b32 v10, v11 offset:12')
    e('s_endpgm')
    e('L_x9:')
    jit()
    if o.tagp and not o.b0early:
        e(f's_cmp_eq_u32 s{EARLY}, 0')
        e('s_cbranch_scc1 L_x10')
        e('s_barrier')
        e('L_x10:')
    stamp(3)
    decode()
    e('v_subrev_u32 v4, 256, v0')
    e('v_min_u32 v4, 251, v4')
    e('v_mul_u32_u24 v3, 3641, v4')
    e('v_lshrrev_b32 v3, 16, v3')
    e('v_mul_u32_u24 v2, 18, v3')
    e('v_sub_u32 v2, v4, v2')
    e(f'v_mul_u32_u24 v3, {R}, v3')
    e(f'v_min_u32 v3, {160-R}, v3')
    e('v_mul_u32_u24 v4, 1152, v3')
    e('v_lshl_add_u32 v4, v2, 4, v4')
    e(f'v_add_u32 v12, s{XB}, v4')
    e('v_mul_u32_u24 v18, 288, v3')
    e('v_lshl_add_u32 v18, v2, 4, v18')
    e(f'v_add_u32 v19, {X_D1}, v18')
    srd(e, S_X, 4, 1152000, add=BOFF)
    e(f's_add_u32 s46, s{TAG}, {TAGINC}')
    e('v_mov_b32 v56, s46')
    e(f's_lshl_b32 s46, s{RID}, 7')
    e('v_mov_b32 v58, s46')
    e(f's_add_u32 s46, s{PAIR}, {NPROD}')
    e('s_lshl_b32 s46, s46, 7')
    e('v_mov_b32 v59, s46')
    def publish(slot, vflag, tag, first, n=0):
        e('s_mov_b64 exec, 1')
        e(f's_waitcnt vmcnt({n})')
        if first: stamp(4)
        if o.padto and tag == 'x': stamp(12)
        e('v_cmp_ne_u32 vcc, 0, v27')
        e('v_not_b32 v57, v56')
        e('s_nop 0')
        e('v_cndmask_b32 v57, v56, v57, vcc')
        e(f'ds_write_b32 v55, v57 offset:{slot}')
        e(f'ds_read_b128 v[20:23], v10 offset:{32+slot}')
        e('s_waitcnt lgkmcnt(0)')
        for i in range(4): e(f'v_xor_b32 v{20+i}, v{20+i}, v56')
        e('v_or3_b32 v20, v20, v21, v22')
        e('v_or_b32 v20, v20, v23')
        e('v_cmp_eq_u32 vcc, 0, v20')
        e('s_and_b64 exec, exec, vcc')
        e(f's_cbranch_execz L_nl{tag}')
        e(f'buffer_store_dword v56, v{vflag}, {sr(S_WS)}, 0 offen sc1')
        e(f'L_nl{tag}:')
        e('s_mov_b64 exec, -1')
    if o.tagp and o.xl:
        e(f's_cmp_lg_u32 s{XK}, 2')
        e('s_cbranch_scc1 L_noflag')
        publish(0, 58, 'x', True)
        e(f's_mov_b32 s{XK}, 0')
    elif o.xl:
        e(f's_cmp_ge_u32 s{RID}, {NPROD}')
        e('s_cbranch_scc1 L_noflag')
        publish(0, 58, 'x', True)
        e(f's_mov_b32 s{XK}, 0')
        e(f's_cmp_eq_u32 s{EARLY}, 0')
        e('s_cbranch_scc1 L_noflag')
        if not o.b0early: e('s_barrier')
    elif not o.tagp:
        e(f's_cmp_eq_u32 s{EARLY}, 0')
        e('s_cbranch_scc1 L_noflag')
        publish(0, 58, 'x', True)
        if not o.b0early: e('s_barrier')
    e('L_noflag:')
    e(f's_setprio {o.hprio2}')
    RAW, ORAW = 64, 120
    EU = [184, 192]
    OU, DT, DO = 200, 208, 216
    xi = [0]
    NL = R + 1
    hq = []
    def eload():
        k = xi[0]
        if k >= NL: return
        a_ = 12
        if k:
            a_ = 13 + (k & 3)
            e(f'v_add_u32 v{a_}, {1152*k}, v12')
        e(f'buffer_load_dwordx4 {vr(RAW+4*k,4)}, v{a_}, {sr(S_X)}, 0 offen')
        xi[0] += 1
        hq.append(('e', k))
    if o.etouch:
        e(f's_cmp_lt_u32 s{RID}, {NTASK}')
        e('s_cbranch_scc1 L_net')
        e(f's_and_b32 s46, s{NB}, 1')
        e(f's_mul_i32 s46, s46, {1152*6}')
        e('v_add_u32 v12, s46, v12')
        for _ in range(7): eload()
        e('v_subrev_u32 v12, s46, v12')
        e('s_waitcnt vmcnt(0)')
        e('L_net:')
        xi[0] = 0; hq.clear()
    YA = 232
    e(f's_cmp_eq_u32 s{b+5}, 2')
    e('s_cselect_b32 s46, 0x80000000, 0')
    e(f's_cmp_lg_u32 s{HAS3}, 0')
    e('s_cselect_b32 s47, 0x80000000, 0')
    e('s_or_b32 s48, s46, s47')
    for i in range(6):
        m_ = {0: None, 1: 46, 2: None, 3: 46, 4: 47, 5: 48}[i]
        e(f'v_mov_b32 v{YA+i}, v{52+i//2}' if m_ is None else f'v_or_b32 v{YA+i}, s{m_}, v{52+i//2}')
    def ystore(i, a_):
        e(f'buffer_store_dwordx4 {vr(28+4*i,4)}, v{a_}, {sr(S_WS)}, s{b+2+(i&1)} offen {o.stf}')
        hq.append(('y', i))
    if o.yall:
        assert o.d0p
        e(f's_add_u32 s44, s{RID}, 76')
        e(f's_cmp_ge_u32 s44, {NWG}')
        e(f's_cselect_b32 s45, {NWG}, 0')
        e('s_sub_u32 s44, s44, s45')
        e(f's_add_u32 s46, s44, {NPROD + 32}')
        e('s_lshl_b32 s46, s46, 7')
        e('v_mov_b32 v59, s46')
        e('s_mul_hi_u32 s45, s44, 477218589')
        e('s_mul_i32 s46, s45, 9')
        e('s_sub_u32 s44, s44, s46')
        e(f's_lshr_b32 s{YT}, s45, 3')
        e(f's_add_u32 s{YT}, s{YT}, 1')
        e(f's_min_u32 s{YT}, s{YT}, 3')
        e('s_lshl_b32 s45, s45, 2')
        e(f's_add_u32 s45, s45, s{WAVE}')
        e('s_add_u32 s45, s45, 28')
        e('s_and_b32 s46, s45, 15')
        e('s_lshr_b32 s47, s45, 4')
        e('s_mul_i32 s54, s46, 165888')
        e('s_mul_i32 s48, s47, 9216')
        e('s_add_u32 s54, s54, s48')
        e('s_add_u32 s95, s54, 82944')
        e('s_cmp_lg_u32 s46, 15')
        e(f's_cselect_b32 s{S_WO+2}, 2571264, 0')
        e('s_cselect_b32 s51, 0, 0x80000000')
        e('s_lshr_b32 s48, s47, 1')
        e('s_and_b32 s49, s46, 7')
        e('s_lshr_b32 s50, s46, 3')
        e('s_and_b32 s45, s47, 1')
        e('s_cmp_eq_u32 s47, 8')
        e('s_cselect_b32 s49, s49, s46')
        e('s_cselect_b32 s50, s50, s45')
        e('s_cselect_b32 s51, 0, s51')
        e('s_lshl_b32 s50, s50, 9')
        e(f's_add_u32 s50, s50, {WOFF}')
        e('s_lshl_b32 s68, s48, 4')
        e('s_add_u32 s68, s68, s49')
        e('s_sub_u32 s69, s68, s48')
        e('s_add_u32 s68, s68, 34')
        e('s_add_u32 s69, s69, 144')
        for r_ in (68, 69):
            e(f's_lshl_b32 s{r_}, s{r_}, 10')
            e(f's_add_u32 s{r_}, s{r_}, s50')
        e('v_and_b32 v2, 3, v1')
        e('v_lshl_add_u32 v2, s44, 2, v2')
        e('v_lshrrev_b32 v3, 4, v1')
        e('v_lshl_add_u32 v3, s44, 2, v3')
        e('v_cmp_le_u32 vcc, 18, v2')
        e('v_cmp_le_u32 s[46:47], 18, v3')
        e('v_lshl_add_u32 v63, v2, 4, v24')
        e('v_mad_u32_u24 v60, v3, v26, v25')
        e('v_add_u32 v2, 4320, v63')
        e(f'v_add_u32 v3, {(256 - 18*NSTR) & 0xffffffff}, v60')
        e('v_cndmask_b32 v63, v63, v2, vcc')
        e('v_cndmask_b32 v60, v60, v3, s[46:47]')
        e('v_or_b32 v61, s51, v60')
    def ydma():
        if not o.yall: return
        e(f's_mov_b32 m0, s{SCRB}')
        e('s_nop 0')
        e(f'buffer_load_dwordx4 v63, {sr(S_W)}, s54 offen lds')
        e('s_addk_i32 m0, 1024')
        e('s_nop 0')
        e(f'buffer_load_dwordx4 v63, {sr(S_WO)}, s95 offen lds')
        hq.append('d0'); hq.append('d1')
    stamp(5)
    ldswait(8, 'eq', 4, 'o', 1)
    def unpack(dst, s_):
        for i in range(4):
            e(f'v_lshlrev_b32 v{dst+2*i}, 16, v{s_+i}')
            e(f'v_and_b32 v{dst+2*i+1}, s{MASK}, v{s_+i}')
    def unpackE(dst, k):
        e(f's_waitcnt vmcnt({len(hq)-1-hq.index(("e", k))})')
        unpack(dst, RAW + 4 * k)
        eload()
    def diff(eu, out):
        for i in range(8): e(f'v_sub_f32 v{DT+i}, v{eu+i}, v{OU+i}')
        for i in range(4):
            e(f'v_cvt_pk_bf16_f32 v{out+i}, v{DT+2*i}, v{DT+2*i+1}')
    def opengate():
        if not o.gate: return
        e('v_mov_b32 v11, 0x100')
        e('s_mov_b64 exec, 1')
        e('ds_add_u32 v10, v11 offset:8')
        e('s_mov_b64 exec, -1')
    def rows(hook):
        jit()
        stamp(6)
        for j in range(R):
            e(f'ds_read_b128 {vr(ORAW+4*j,4)}, v18 offset:{X_O+288*j}')
        unpackE(EU[0], 0)
        e('s_waitcnt lgkmcnt(0)')
        for j in range(R):
            o0 = DO + 8 * (j & 1)
            unpack(OU, ORAW + 4 * j)
            diff(EU[j & 1], o0)
            e(f'ds_write_b128 v18, {vr(o0,4)} offset:{X_D0+288*j}')
            unpackE(EU[(j + 1) & 1], j + 1)
            diff(EU[(j + 1) & 1], o0 + 4)
            e(f'ds_write_b128 v19, {vr(o0+4,4)} offset:{288*j}')
            hook(j)
    if o.apath:
        e(f's_cmp_ge_u32 s{RID}, {NPROD + (32 if o.d0p else 0)}')
        e('s_cbranch_scc1 L_pathA')
    if o.d0row >= 0: e(f's_cmp_lg_u32 s{XK}, 2')
    else: e(f's_cmp_lt_u32 s{XK}, 2')
    e('s_cbranch_scc1 L_nox')
    if o.d0p:
        e(f's_cmp_eq_u32 s{XK}, 3')
        e('s_cbranch_scc1 L_xd')
    for i in range(3):
        e(f'buffer_store_dwordx4 {vr(SOR(i),4)}, v{YA+2*i}, {sr(S_WS)}, s{b+4} offen {o.stf}')
    if o.d0p:
        e('s_branch L_xe')
        e('L_xd:')
        for i in range(6): ystore(i, YA + i)
        e('L_xe:')
    if o.gearly:
        opengate()
        publish(0, 58, 'x2', True)
        e('s_branch L_nox2')
        e('L_nox:')
        opengate()
        e('L_nox2:')
    else:
        publish(0, 58, 'x2', True)
        e('L_nox:')
        opengate()
    hq.clear(); xi[0] = 0
    for _ in range(o.ein): eload()
    def hookP(j):
        if j == o.ydrow: ydma()
        if j == o.d0row:
            e(f's_cmp_lg_u32 s{XK}, 3')
            e('s_cbranch_scc1 L_yn1')
            keep = list(hq)
            for i in range(6): ystore(i, YA + i)
            hq[:] = keep
            e('L_yn1:')
        if o.d0row >= 0 and j == o.d0row + o.d0row2:
            e(f's_cmp_lg_u32 s{XK}, 3')
            e('s_cbranch_scc1 L_yn2')
            publish(0, 58, 'yn', True)
            e('L_yn2:')
        if o.ymid and j == o.ymid:
            e(f's_cmp_lg_u32 s{YT}, 1')
            e('s_cbranch_scc1 L_ym1')
            keep = list(hq)
            for i in range(6): ystore(i, YA + i)
            hq[:] = keep
            e('L_ym1:')
        if o.ymid and j == o.ymid + o.ymid2:
            e(f's_cmp_lg_u32 s{YT}, 1')
            e('s_cbranch_scc1 L_ym2')
            publish(16, 59, 'ym', False)
            if o.diag == 1: stamp(8)
            e(f's_mov_b32 s{YT}, 0')
            e('L_ym2:')
    rows(hookP)
    if o.apath:
        e('s_branch L_rowsdone')
        e('L_pathA:')
        if not o.d0p:
            e(f's_cmp_eq_u32 s{XK}, 3')
            e('s_cselect_b32 s47, 0, 0x80000000')
            for i in range(6): e(f'v_or_b32 v{20+i}, s47, v{YA+i}')
        hq.clear(); xi[0] = 0
        for _ in range(NL): eload()
        if not o.d0p:
            for i in range(6): ystore(i, 20 + i)
        def hookA(j):
            if j == o.grow + 1: ydma()
            if j == o.grow:
                e(f's_waitcnt vmcnt({len(hq)-1-hq.index(("e", NL-1))})')
                opengate()
            if j == o.xrow and not o.d0p:
                e(f's_cmp_lg_u32 s{XK}, 3')
                e('s_cbranch_scc1 L_xp')
                publish(0, 58, 'x3', True)
                e('L_xp:')
        rows(hookA)
    e('L_rowsdone:')
    e('s_waitcnt lgkmcnt(0)')
    stamp(7)
    e('v_mov_b32 v11, 1')
    e('s_mov_b64 exec, 1')
    e('ds_add_u32 v10, v11 offset:16')
    e('s_mov_b64 exec, -1')
    e(f's_cmp_eq_u32 s{YT}, 0')
    e('s_cbranch_scc1 L_noy')
    e(f's_setprio {o.yprio}')
    if o.yall:
        e('s_waitcnt vmcnt(0)')
        for tap in range(2):
            for half in range(2):
                e(f'ds_read_b64_tr_b16 {vr(28+4*tap+2*half,2)}, v62 offset:{1024*tap+512*half}')
    e('L_yw:')
    e('ds_read_b64 v[20:21], v10')
    e('s_waitcnt lgkmcnt(0)')
    e('v_lshrrev_b32 v21, 14, v21')
    e('v_and_b32 v21, -4, v21')
    e('v_or_b32 v20, v20, v21')
    e(f'v_cmp_le_u32 vcc, s{YT}, v20')
    e('s_nop 4')
    e('s_cbranch_vccnz L_yx')
    e('s_sleep 4')
    e('s_branch L_yw')
    e('L_yx:')
    jit()
    if o.yall:
        e(f'buffer_store_dwordx4 v[28:31], v60, {sr(S_WS)}, s68 offen {o.stf}')
        e(f'buffer_store_dwordx4 v[32:35], v61, {sr(S_WS)}, s69 offen {o.stf}')
    else:
      for i in range(6):
        ystore(i, YA + i)
        e(f's_waitcnt vmcnt({o.ythr})')
        if o.ysleep: e(f's_sleep {o.ysleep}')
    publish(16, 59, 'y', False)
    if o.diag == 1: stamp(8)
    e('L_noy:')
    e(f's_cmp_lg_u32 s{WAVE}, 4')
    e('s_cbranch_scc1 L_hend')
    e('L_guard:')
    e('ds_read_b32 v11, v10 offset:4')
    e('s_waitcnt lgkmcnt(0)')
    e('v_readfirstlane_b32 s46, v11')
    e('s_nop 3')
    e('s_cmp_eq_u32 s46, 4')
    e(f's_cbranch_scc1 {"L_wb" if o.wbat else "L_hend"}')
    e('s_cmp_lt_u32 s46, 0x10000')
    e('s_cbranch_scc0 L_rescue')
    e('s_sleep 16')
    e('s_branch L_guard')
    if o.wbat:
        e('L_wb:')
        e('s_lshr_b32 s46, s2, 3')
        e(f's_cmp_lg_u32 s46, 5')
        e('s_cbranch_scc1 L_hend')
        ldswait(0, 'eq', 4, 'w', 2)
        e('buffer_wbl2 sc1')
        e('s_waitcnt vmcnt(0)')
        e('s_branch L_hend')
    e('L_rescue:')
    e(f's_mov_b32 s{MODE}, 1')
    e(f's_mov_b32 s{HAS3}, 1')
    e(f's_mov_b32 s{NOTASK}, 0')
    e(f's_lshr_b32 s{TW0}, s{NB}, 1')
    e(f's_add_u32 s{TW1}, s{NB}, 9')
    e(f's_lshr_b32 s{TW1}, s{TW1}, 1')
    e(f's_mov_b32 s{PAIR}, 0')
    e('s_branch L_prod')
    e('L_hend:')
    if o.padto and o.padev[0] == 'h': padloop('h')
    if o.diag == 1:
        stamp(9)
        dump(10)
    e('L_end:')
    e('s_endpgm')
    if o.hfirst:
        m0, h0 = mark['main0'], mark['help0']
        e.L = e.L[:m0] + e.L[h0:] + ['.p2align 6'] + e.L[m0:h0]
    e('L_codeend:')
    e('.section .rodata,"a"')
    e('.p2align 6')
    e(f'.amdhsa_kernel {KN}')
    for x in ['next_free_vgpr 256', 'next_free_sgpr 102', 'accum_offset 256', 'group_segment_fixed_size 0', 'kernarg_size 40',
              'user_sgpr_count 2', 'user_sgpr_kernarg_segment_ptr 1', 'system_sgpr_workgroup_id_x 1']:
        e('  .amdhsa_' + x)
    e('.end_amdhsa_kernel')
    n = haz.check(e.L)
    if n: print(f'{n} hazards', file=sys.stderr)
    return f'; @launch grid=({NWG},1,1) block=(512,1,1) lds={LDS_BYTES}\n' + HEADER + e.text()

def opts(argv=None):
    ap = argparse.ArgumentParser()
    ap.add_argument('-o', default='k.s')
    for nm, d in [('diag', 0), ('pf', 16), ('pf0', 8), ('wgap', 4), ('wres', 4), ('wsc1', 0), ('nfill', 2), ('fstride', 128), ('sleep', 0), ('maxpoll', 3000), ('nopoll', 0),
                  ('hprio', 3), ('hprio2', 0), ('mprio', 2), ('epre', 0), ('ein', 4), ('dpre', 7), ('b0early', 0), ('mtouch', 4), ('gate', 1), ('swapab', 0), ('d0p', 1), ('map', 1), ('chain', 4), ('d0row', -1), ('d0row2', 1), ('split1', 0), ('ymid', 2), ('ymid2', 2), ('wbat', 0), ('jit', 0), ('apath', 0), ('rmap', 0), ('yall', 0), ('ydrow', 6), ('flat0', 1), ('flatzz', 0), ('tagp', 1), ('tpf', 5), ('xl', 1), ('p0plain', 0), ('onepoll', 0), ('epoll', 1), ('ppoll', 0), ('yprio', 3), ('ysleep', 0), ('vt', 94), ('tla', 40), ('tskip', 2), ('gearly', 1), ('chfrom', 8), ('oj', 9), ('nolds', 0), ('now', 0), ('wsame', 0), ('grow', 1), ('vbd', 33), ('nopk', 1), ('padto', 0), ('npdelay', 0), ('opre', 4), ('etouch', 0), ('orev', 1), ('b0late', 1), ('dec', 1), ('tail', 1), ('xla', 9), ('hold', 1), ('prest', 0), ('xslot', 0), ('noclosed', 0), ('cpf', 1), ('hfirst', 1), ('warmb', 1), ('wsfirst', 0), ('flead', 6), ('ythr', 6), ('xrow', 3), ('padstep', 33), ('probe', 0), ('probeoff', 0x4000000)]:
        ap.add_argument('--' + nm, type=int, default=d)
    ap.add_argument('--oflags', default='')
    ap.add_argument('--pmap', default='18,18,18,18,18,18,18,18')
    ap.add_argument('--padev', default='m0')
    ap.add_argument('--trig', default='10,25,40')
    ap.add_argument('--yrow', default='0,7,2,9,5,11')
    ap.add_argument('--pfcs', default='4,5,5,5,5')
    ap.add_argument('--fflags', default='')
    ap.add_argument('--fleads', default='6,6,6,6,6')
    ap.add_argument('--stf', default='sc1')
    ap.add_argument('--marks', default='0,4,8,12,16,24,33,47,58')
    o = ap.parse_args(argv)
    o.marks = [int(x) for x in o.marks.split(',')]
    o.yrow = [int(x) for x in o.yrow.split(',')]
    o.pfcs = [int(x) for x in o.pfcs.split(',')]
    o.fleads = [int(x) for x in o.fleads.split(',')]
    o.trig = [int(x) for x in o.trig.split(',')]
    return o

if __name__ == '__main__':
    o = opts()
    open(o.o, 'w').write(gen(o))
```

```python
import re, sys, argparse
import haz

KN = 'standalone__autoregressive_conv_wavernn__speech_kernel'
NWG = 252
NPROD = 144
ARR = 160 * 288
X_D0, X_O, X_D1 = 0, ARR, 2 * ARR
CNT = 3 * ARR
SCR = CNT + 64
LDS_BYTES = SCR + 18432
NSTEP = 106
WOFF = int(__import__('os').environ.get('WOFF', '0x100000'), 0)
NONCE = 0x10000
DIAG = 0x800000
WS_REC = max(0x1000000, WOFF + 0x400000, int(__import__('os').environ.get('WSREC', '0'), 0))
TAGINC = 0x9E3779B9
R = 12


HEADER = """; Gated dilated causal convolution, out = tanh(f) * sigmoid(g), h = [f g] = sum_i x[t + 2i - 60] w[i].
;
; A workgroup owns 144 output pairs x 16 output columns (f and g). Waves 0-3 run the matrix loop (two column tiles x
"""

class Em:
    def __init__(self): self.L = []
    def __call__(self, s): self.L.append(s)
    def text(self): return '\n'.join(self.L) + '\n'

def vr(a, n=1): return f'v{a}' if n == 1 else f'v[{a}:{a+n-1}]'
def sr(a, n=4): return f's[{a}:{a+n-1}]'

def streams():
    out = []
    for typ in (0, 1):
        S = []
        pid = [0]
        def add(arr, chunk, cs, acc):
            for c in cs: S.append((pid[0], arr, chunk, c, acc))
            pid[0] += 1
        if typ == 0:
            add('O', 0, range(16), 'P'); add('O', 1, range(16), 'P'); add('O', 'rem', range(0, 2), 'P')
            for q in range(4): add('D', q, range(16), 'Q')
            add('D', 'rem', range(8), 'Q')
        else:
            add('O', 2, range(16), 'P'); add('O', 3, range(16), 'P'); add('O', 'rem', range(2, 8), 'P')
            for q in range(4): add('D', q, range(15), 'Q')
            add('D', 'rem', range(8), 'Q')
        assert len(S) == NSTEP
        out.append(S)
    return out

S_X, S_W, S_WO, S_WS, S_OUT, S_DBG = 20, 24, 28, 32, 36, 40
WAVE, NB, BAT, PAR, MB, BOFF = 14, 15, 16, 17, 18, 19
PAIR0 = 3
XB = 52
MASK = 53
TW0, TW1, TW2, PAIR, HAS3, MODE, SCRB, TAG, LAST, NPOLL = 44, 45, 54, 55, 56, 57, 58, 59, 60, 61
TS = 62
TYP, WSO = 68, 69
EARLY, XK, YT, FIDX = 90, 91, 92, 93
NOTASK = 94
FO = 97
C2L, CNL, C60 = 90, 92, 94
ST0 = 70

def srd(e, d, ptr, rec, add=None):
    if add is None:
        e(f's_mov_b32 s{d}, s{ptr}')
        e(f's_and_b32 s{d+1}, s{ptr+1}, 0xffff')
    else:
        e(f's_add_u32 s{d}, s{ptr}, s{add}')
        e(f's_addc_u32 s{d+1}, s{ptr+1}, 0')
        e(f's_and_b32 s{d+1}, s{d+1}, 0xffff')
    e(f's_mov_b32 s{d+2}, {rec}')
    e(f's_mov_b32 s{d+3}, 0x20000')

def gen(o):
    e = Em()
    NSTR = 2 * NSTEP * 1024 + (65536 if o.tagp else 0)
    if o.tagp: o.epoll = 0
    NTASK = NPROD + (32 if o.yall else 96)
    role = ['m']
    jn = [0]
    def jit():
        if not o.jit: return
        jn[0] += 1
        k = jn[0]
        e(f's_mul_i32 s98, s2, {37 + 2 * k + o.jit * 10}')
        e(f's_mul_i32 s99, s{WAVE}, {11 + 6 * k + o.jit}')
        e('s_add_u32 s98, s98, s99')
        e('s_bitcmp1_b32 s98, 3')
        e(f's_cbranch_scc1 L_jit{k}')
        e(f's_sleep {30 + (k * 17 + o.jit * 5) % 90}')
        e(f'L_jit{k}:')
    def padloop(tag):
        e(f'L_pad{tag}:')
        e('s_memrealtime s[98:99]')
        e('s_waitcnt lgkmcnt(0)')
        e('s_sub_u32 s98, s98, s100')
        e(f's_cmp_lt_u32 s98, {o.padto}')
        e(f's_cbranch_scc1 L_pad{tag}')
    def stamp(k, lvl=1):
        if o.padto and lvl == 1 and o.padev == f'{role[0]}{k}':
            e('s_memrealtime s[100:101]'); e('s_waitcnt lgkmcnt(0)')
        if o.diag == lvl or (o.diag == 4 and lvl == 1): e(f's_memrealtime s[{ST0+2*k}:{ST0+2*k+1}]')
    def dump(nst):
        e('s_waitcnt lgkmcnt(0)')
        e('v_mov_b32 v250, 0')
        for k in range(nst): e(f'v_writelane_b32 v250, s{ST0+2*k}, {k}')
        e(f'v_writelane_b32 v250, s{NPOLL}, 13')
        e(f'v_writelane_b32 v250, s95, 12')
        e(f'v_writelane_b32 v250, s{3 if o.rmap else 2}, 14')
        e('s_getreg_b32 s46, hwreg(HW_REG_XCC_ID)')
        e('v_writelane_b32 v250, s46, 15')
        e(f's_lshl_b32 s46, s2, 3'); e(f's_add_u32 s46, s46, s{WAVE}'); e('s_lshl_b32 s46, s46, 6'); e(f's_add_u32 s46, s46, {DIAG}')
        e('v_lshl_add_u32 v251, v1, 2, s46')
        e('s_mov_b64 exec, 0xffff')
        e(f'buffer_store_dword v250, v251, {sr(S_WS)}, 0 offen')
        e('s_mov_b64 exec, -1')

    e('.amdgcn_target "amdgcn-amd-amdhsa--gfx950"')
    e('.text')
    e(f'.globl {KN}')
    e('.p2align 8')
    e(f'.type {KN},@function')
    e(f'{KN}:')
    e(f's_cmp_ge_u32 s2, {NWG}')
    e('s_cbranch_scc1 L_end')
    stamp(0)
    if o.padto and o.padev != 'm0': e('s_memrealtime s[100:101]')
    e('s_load_dwordx4 s[4:7], s[0:1], 0')
    e('s_load_dwordx4 s[8:11], s[0:1], 16')
    e('s_load_dwordx2 s[12:13], s[0:1], 32')
    e('v_lshrrev_b32 v2, 6, v0')
    e('v_and_b32 v1, 63, v0')
    e(f'v_readfirstlane_b32 s{WAVE}, v2')
    def decode():
        e('s_and_b32 s44, s2, 7')
        e('s_lshr_b32 s45, s2, 3')
        e('s_mul_i32 s46, s44, 31')
        e('s_min_u32 s44, s44, 4')
        e('s_add_u32 s46, s46, s44')
        e('s_add_u32 s46, s46, s45')
        if o.map == 0:
            e('s_mul_hi_u32 s47, s46, 68174085')
            e('s_mul_i32 s48, s47, 63')
            e('s_sub_u32 s48, s46, s48')
            e(f's_mul_hi_u32 s{NB}, s48, 613566757')
            e(f's_mul_i32 s49, s{NB}, 7')
            e('s_sub_u32 s49, s48, s49')
            e('s_mul_i32 s47, s47, 7')
            e('s_add_u32 s47, s47, s49')
        elif o.map == 1:
            e('s_mul_hi_u32 s47, s46, 477218589')
            e('s_mul_i32 s48, s47, 9')
            e(f's_sub_u32 s{NB}, s46, s48')
        else:
            e('s_mul_hi_u32 s47, s46, 34087043')
            e('s_mul_i32 s48, s47, 126')
            e('s_sub_u32 s48, s46, s48')
            e(f's_mul_hi_u32 s{NB}, s48, 306783379')
            e(f's_mul_i32 s49, s{NB}, 14')
            e('s_sub_u32 s49, s48, s49')
            e('s_mul_i32 s47, s47, 14')
            e('s_add_u32 s47, s47, s49')
        e(f's_and_b32 s{PAR}, s47, 1')
        e('s_lshr_b32 s47, s47, 1')
        e('s_cmp_ge_u32 s47, 7')
        e(f's_cselect_b32 s{BOFF}, 1152000, 0')
        e('s_cselect_b32 s48, 7, 0')
        e(f's_sub_u32 s{MB}, s47, s48')
        e(f's_mul_i32 s{XB}, s{MB}, 576')
        e(f's_add_u32 s{XB}, s{XB}, s{PAR}')
        e(f's_sub_u32 s{XB}, s{XB}, 60')
        e(f's_mul_i32 s{XB}, s{XB}, 288')
    RID = 3 if o.rmap else 2
    if o.rmap:
        e('s_and_b32 s44, s2, 3')
        e('s_lshr_b32 s45, s2, 3')
        e('s_lshl2_add_u32 s3, s45, s44')
        e('s_and_b32 s44, s2, 4')
        e('s_lshl_b32 s44, s44, 5')
        e('s_add_u32 s3, s3, s44')
    e(f's_cmp_ge_u32 s{WAVE}, 4')
    e('s_cbranch_scc1 L_helper')
    if o.cpf:
        e('s_lshr_b32 s44, s2, 3')
        e(f's_lshl_b32 s45, s{WAVE}, 5')
        e('s_add_u32 s44, s44, s45')
        e('s_sub_u32 s44, s44, 26')
        e('s_cmp_ge_u32 s44, 5')
        e('s_cbranch_scc1 L_main')
        e('s_getpc_b64 s[46:47]')
        e('L_pc:')
        e('s_lshl_b32 s44, s44, 13')
        e('v_lshl_add_u32 v2, v1, 7, s44')
        e('v_min_u32 v2, L_codeend-L_pc-4, v2')
        e('global_load_dword v63, v2, s[46:47]')
    if o.hfirst: e('s_branch L_main')
    mark = {'main0': len(e.L)}
    e('L_main:')
    e(f's_mov_b32 s{MASK}, 0xffff0000')
    e(f's_mov_b32 s{NPOLL}, 0')
    if o.diag: e('s_mov_b32 s95, 0')
    decode()

    VXO, VXOR, VXD, VXDR, VWL, VEX, VEXP, VOUT = 30, 31, 32, 33, 34, 35, 36, 37
    VF = 40
    VA = 48
    VCL = 60
    e('v_mul_u32_u24 v3, 3641, v0')
    e('v_lshrrev_b32 v3, 16, v3')
    e('v_mul_u32_u24 v2, 18, v3')
    e('v_sub_u32 v2, v0, v2')
    e('v_mul_u32_u24 v3, 1152, v3')
    e('v_lshl_add_u32 v3, v2, 4, v3')
    e(f's_add_u32 s46, s{XB}, 576')
    e(f'v_add_u32 v{VA}, s46, v3')
    e('v_mov_b32 v5, 16192')
    e('v_mov_b32 v6, 17056')
    for k in range(1, 12):
        e('v_cmp_le_u32 vcc, 14, v2')
        e('v_add_u32 v3, 4, v2')
        e('v_subrev_u32 v4, 14, v2')
        e('v_cndmask_b32 v7, v5, v6, vcc')
        e('v_cndmask_b32 v2, v3, v4, vcc')
        e(f'v_add_u32 v{VA+k}, v{VA+k-1}, v7')
    e(f's_lshl_b32 s50, s{WAVE}, 10')
    e(f's_add_u32 s50, s50, {X_O}')
    e(f's_add_u32 s51, s50, {4096*11}')
    e('s_movk_i32 s49, 4096')
    if o.orev:
        e(f's_bitcmp0_b32 s{NB}, 0')
        e('s_cbranch_scc1 L_fwd')
        for k in range(5): e(f'v_swap_b32 v{VA+k}, v{VA+10-k}')
        e(f's_add_u32 s50, s50, {4096*10}')
        e('s_movk_i32 s49, -4096')
        e('L_fwd:')
    e(f'v_mov_b32 v{VF+1}, {CNT}')
    for r in range(4, 8): e(f'v_mov_b32 v{r}, 0')
    e(f'ds_write_b128 v{VF+1}, v[4:7]')
    e(f'ds_write_b128 v{VF+1}, v[4:7] offset:16')
    e('s_waitcnt lgkmcnt(0)')
    e(f's_load_dword s{TAG}, s[12:13], {NONCE}')
    srd(e, S_X, 4, 1152000, add=BOFF)
    def odma(k):
        e(f's_mov_b32 m0, s{51 if k == 11 else 50}')
        e('s_add_u32 s50, s50, s49')
        e(f'buffer_load_dwordx4 v{VA+k}, {sr(S_X)}, 0 offen lds')
    def etouch():
        e(f'buffer_load_dword v62, v9, {sr(S_X)}, 0 offen')
    if o.mtouch and o.tskip:
        e(f's_lshr_b32 s47, s{RID}, 4')
        e('s_lshr_b32 s47, 0x33, s47')
        e('s_lshl_b32 s47, s47, 31')
    if o.mtouch:
        e('v_min_u32 v8, 39, v1')
        e('v_lshrrev_b32 v9, 2, v8')
        e(f's_mul_i32 s46, s{WAVE}, 10')
        e('v_add_u32 v9, s46, v9')
        e(f'v_mul_u32_u24 v9, {4*1152}, v9')
        e('v_and_b32 v8, 3, v8')
        e('v_mul_u32_u24 v8, 92, v8')
        e(f's_and_b32 s46, s{NB}, {7 if o.mtouch == 4 else 3}')
        e(f's_mul_i32 s46, s46, {576 if o.mtouch == 4 else 1152}')
        e(f's_add_u32 s46, s46, s{XB}')
        e('v_add3_u32 v9, v9, v8, s46')
        if o.tskip == 1: e('v_or_b32 v9, s47, v9')
    if o.mtouch == 4 and o.tskip == 2:
        e('s_cmp_eq_u32 s47, 0')
        e('s_cbranch_scc1 L_tn')
        e('s_waitcnt lgkmcnt(0)')
        e('L_tn:')
    if o.mtouch in (2, 4): etouch()
    if o.padto and o.padev == 'm13':
        e('s_waitcnt vmcnt(0)'); stamp(13)
    if o.padto and o.padev == 'm14':
        odma(0); e('s_sub_u32 s50, s50, s49'); e('s_waitcnt vmcnt(0)'); stamp(14)
    if o.padto: stamp(10)
    for k in range(o.opre): odma(k)
    e('s_barrier')
    stamp(1)
    jit()
    if o.mtouch == 3: etouch()
    for k in range(o.opre, 12):
        if k == 11:
            e(f's_cmp_lg_u32 s{WAVE}, 0')
            e('s_cbranch_scc1 L_o11')
        odma(k)
    e('L_o11:')
    if o.mtouch == 1: etouch()
    srd(e, S_WS, 12, WS_REC)
    if o.epoll:
        assert o.mtouch in (1, 4) and o.tskip
        e(f's_and_b32 s{TYP}, s{WAVE}, 1')
        e(f's_lshl_b32 s{FO}, s{TYP}, 13')
        e('s_mov_b32 s96, s47')
        e('s_xor_b32 s46, s47, 0x80000000')
        e(f'v_min_u32 v{VF}, 31, v1')
        e(f'v_lshlrev_b32 v{VF}, 7, v{VF}')
        e(f'v_or_b32 v2, s46, v{VF}')
        e(f'buffer_load_dword v{VF+4}, v2, {sr(S_WS)}, s{FO} offen sc1')
    srd(e, S_OUT, 8, 1152000, add=BOFF)
    srd(e, S_DBG, 10, 256)
    e('v_and_b32 v2, 15, v1')
    e('v_lshrrev_b32 v3, 4, v1')
    e('v_subrev_u32 v5, 4, v2')
    e('v_add_u32 v6, 8, v2')
    e('v_cmp_gt_u32 vcc, 4, v2')
    e('v_cmp_le_u32 s[46:47], 12, v2')
    e(f's_and_b32 s{TYP}, s{WAVE}, 1')
    e(f's_lshr_b32 s48, s{WAVE}, 1')
    e('v_cndmask_b32 v5, v5, v6, vcc')
    e('v_cndmask_b32 v5, v5, v2, s[46:47]')
    e('v_mul_u32_u24 v5, 9, v5')
    e('v_mul_u32_u24 v4, 288, v5')
    e('v_lshl_add_u32 v6, v3, 4, v4')
    e('v_and_b32 v7, 1, v3')
    e('v_lshl_add_u32 v7, v7, 4, v4')
    e('v_lshrrev_b32 v8, 1, v3')
    e('v_mul_u32_u24 v8, 2304, v8')
    e('v_add_u32 v7, v7, v8')
    e('v_add_u32 v7, 256, v7')
    e(f's_mul_i32 s49, s{TYP}, {X_D1}')
    e(f'v_add_u32 v{VXO}, {X_O}, v6')
    e(f'v_add_u32 v{VXOR}, {X_O}, v7')
    e(f'v_add_u32 v{VXD}, s49, v6')
    e(f'v_add_u32 v{VXDR}, s49, v7')
    e('v_lshlrev_b32 v6, 4, v1')
    e(f's_mul_i32 s49, s{WAVE}, 9216')
    e(f's_add_u32 s49, s49, {X_O}')
    e(f'v_add_u32 v{VEX}, s49, v6')
    e(f's_xor_b32 s49, s{WAVE}, 1')
    e('s_mul_i32 s49, s49, 9216')
    e(f's_add_u32 s49, s49, {X_O}')
    e(f'v_add_u32 v{VEXP}, s49, v6')
    e('v_and_b32 v8, 0x39, v1')
    e('v_bfe_u32 v9, v1, 1, 1')
    e('v_lshl_add_u32 v8, v9, 2, v8')
    e('v_bfe_u32 v9, v1, 2, 1')
    e('v_lshl_add_u32 v8, v9, 1, v8')
    e(f'v_lshlrev_b32 v{VWL}, 4, v8')
    e(f's_mul_i32 s49, s{TYP}, 576')
    e(f's_add_u32 s49, s49, s{XB}')
    e(f's_add_u32 s49, s49, {60*288}')
    e(f's_lshl_b32 s50, s{NB}, 5')
    e('s_add_u32 s49, s49, s50')
    e('s_lshl_b32 s50, s48, 4')
    e('s_add_u32 s49, s49, s50')
    e('v_mul_u32_u24 v8, 1152, v5')
    e('v_lshl_add_u32 v8, v3, 2, v8')
    e(f'v_add_u32 v{VOUT}, s49, v8')
    e(f'v_add_u32 v{VOUT+1}, 3456, v{VOUT}')
    e(f'v_add_u32 v{VOUT+2}, 6912, v{VOUT}')
    e(f's_lshl_b32 s49, s{NB}, 1')
    e('s_add_u32 s49, s49, s48')
    e(f's_mul_i32 s49, s49, {NSTR}')
    e(f's_mul_i32 s{WSO}, s{TYP}, {NSTEP*1024}')
    e(f's_add_u32 s{WSO}, s{WSO}, s49')
    e(f's_add_u32 s{WSO}, s{WSO}, {WOFF + (16384 if o.tagp else 0)}')
    if o.tagp:
        e(f's_lshl_b32 s96, s{TYP}, 15')
        e('s_add_u32 s96, s96, s49')
        e(f's_add_u32 s96, s96, {WOFF + 2*NSTEP*1024}')
    e(f's_mov_b32 s{C2L}, 0x4038aa3b'); e(f's_mov_b32 s{C2L+1}, 0x4038aa3b')
    e(f's_mov_b32 s{CNL}, 0xbfb8aa3b'); e(f's_mov_b32 s{CNL+1}, 0xbfb8aa3b')
    e(f's_mov_b32 s{C60}, 0x42700000')
    e(f'v_min_u32 v{VF}, 31, v1')
    e(f'v_lshlrev_b32 v{VF}, 7, v{VF}')
    e(f'v_min_u32 v{VF+6}, 47, v1')
    e(f'v_lshlrev_b32 v{VF+6}, 7, v{VF+6}')
    e(f'v_mov_b32 v{VF+2}, 1')
    e('s_lshl_b32 s46, s48, 2')
    e(f'v_add_u32 v{VF+5}, s46, v{VF+1}')
    e(f's_or_b32 s46, s2, s{WAVE}')
    e('v_or_b32 v2, s46, v1')
    e('v_cmp_eq_u32 vcc, 0, v2')
    e(f'v_mov_b32 v{VCL}, -16')
    e(f'v_mov_b32 v{VCL+1}, -16')
    e(f'v_mov_b32 v3, {NONCE}')
    e(f'v_cndmask_b32 v{VCL}, v{VCL}, 4, vcc')
    e(f'v_cndmask_b32 v{VCL+1}, v{VCL+1}, v3, vcc')
    if o.yall:
        e(f's_lshr_b32 s46, s{NB}, 1')
        e(f's_add_u32 s47, s{NB}, 9')
        e('s_lshr_b32 s47, s47, 1')
        e('v_mov_b32 v4, s46')
        e('v_mov_b32 v5, s47')
        e('v_cmp_gt_u32 vcc, 32, v1')
        e('v_and_b32 v2, 7, v1')
        e('v_and_b32 v3, 15, v1')
        e('v_cndmask_b32 v4, v5, v4, vcc')
        e('v_min_u32 v3, 11, v3')
        e('v_mad_u32_u24 v2, v2, 9, v4')
        e('v_mad_u32_u24 v3, v3, 9, v4')
        e('v_lshlrev_b32 v2, 7, v2')
        e('v_lshlrev_b32 v3, 7, v3')
    e(f's_lshl_b32 s{FO}, s{TYP}, 13')
    if o.warmb:
        e(f's_cmp_eq_u32 s{TYP}, 1')
        e('s_cbranch_scc1 L_warmB')
        e('L_warmret:')
    e(f's_waitcnt vmcnt({(1 if o.mtouch == 1 else 0) + o.epoll}) lgkmcnt(0)')
    stamp(2)
    if o.padto and o.padev in ('m11', 'm12'):
        e(f's_lshr_b32 s46, s{RID}, 4')
        e('s_lshr_b32 s46, 0x33, s46')
        e('s_bitcmp1_b32 s46, 0')
        e(f's_cbranch_scc{1 if o.padev == "m11" else 0} L_pk')
        e('s_memrealtime s[100:101]'); e('s_waitcnt lgkmcnt(0)')
        e('L_pk:')
    e('s_mov_b64 exec, 1')
    e(f'ds_add_u32 v{VF+1}, v{VF+2} offset:8')
    e('s_mov_b64 exec, -1')
    e(f's_add_u32 s{TAG}, s{TAG}, {TAGINC}')
    e(f'v_mov_b32 v{VF+3}, s{TAG}')
    def flagwait(tag, vaddr, back):
        e(f'L_fw{tag}:')
        if o.diag and len(tag) == 2: e(f's_add_u32 s95, s95, {1 << (4 * int(tag[1]))}')
        e(f'buffer_load_dword v{VF+4}, v{vaddr}, {sr(S_WS)}, s{FO} offen sc1')
        e(f'ds_read_b32 v{VF+7}, v{VF+1} offset:12')
        e(f's_add_u32 s{NPOLL}, s{NPOLL}, 1')
        e('s_waitcnt vmcnt(0) lgkmcnt(0)')
        e(f'v_cmp_ne_u32 vcc, v{VF+3}, v{VF+4}')
        e(f'v_readfirstlane_b32 s46, v{VF+7}')
        e('s_nop 3')
        e(f's_cbranch_vccz {back}')
        e('s_cmp_lg_u32 s46, 0')
        e(f's_cbranch_scc1 {back}')
        e(f's_cmp_lg_u32 s{NPOLL}, {o.maxpoll}')
        e(f's_cbranch_scc1 L_fw{tag}')
        e(f'v_mov_b32 v{VF+7}, 0x10000')
        e('s_mov_b64 exec, 1')
        e(f'ds_add_u32 v{VF+1}, v{VF+7} offset:4')
        e('s_mov_b64 exec, -1')
        e(f's_branch L_fw{tag}')
    if o.epoll:
        e('s_cmp_eq_u32 s96, 0')
        e('s_cbranch_scc1 L_gate')
        e('s_waitcnt vmcnt(0)')
        e(f'v_cmp_ne_u32 vcc, v{VF+3}, v{VF+4}')
        e('s_nop 4')
        e('s_cbranch_vccz L_go')
    if o.gate:
        e('L_gate:')
        e(f'ds_read_b32 v{VF+4}, v{VF+1} offset:8')
        e('s_waitcnt lgkmcnt(0)')
        e(f'v_and_b32 v{VF+4}, 0xffff, v{VF+4}')
        e(f'v_cmp_gt_u32 vcc, 0x400, v{VF+4}')
        e('s_nop 4')
        e('s_cbranch_vccz L_gate2')
        e('s_sleep 1')
        e('s_branch L_gate')
        e('L_gate2:')
    if o.ppoll:
        e(f'buffer_load_dword v{VF+4}, v{VF}, {sr(S_WS)}, s{FO} offen sc1')
        e('L_pp:')
        for a_, b_ in ((VF + 4, 62), (62, VF + 4)):
            e(f's_sleep {o.ppoll}')
            e(f'buffer_load_dword v{b_}, v{VF}, {sr(S_WS)}, s{FO} offen sc1')
            e('s_waitcnt vmcnt(1)')
            e(f'v_cmp_ne_u32 vcc, v{VF+3}, v{a_}')
            e(f's_add_u32 s{NPOLL}, s{NPOLL}, 1')
            e('s_nop 3')
            e('s_cbranch_vccz L_go')
        e(f's_cmp_lt_u32 s{NPOLL}, 40')
        e('s_cbranch_scc1 L_pp')
        e(f's_mov_b32 s{NPOLL}, 0')
    if o.p0plain:
        e(f'buffer_load_dword v{VF+4}, v{VF}, {sr(S_WS)}, s{FO} offen')
        e('s_waitcnt vmcnt(0)')
        e(f'v_cmp_ne_u32 vcc, v{VF+3}, v{VF+4}')
        e('s_nop 4')
        e('s_cbranch_vccz L_go')
    if o.onepoll:
        e(f's_cmp_lt_u32 s{WAVE}, 2')
        e('s_cbranch_scc1 L_fw0')
        e('L_op:')
        e(f'ds_read_b32 v{VF+7}, v{VF+1} offset:8')
        e('s_waitcnt lgkmcnt(0)')
        e(f's_add_u32 s46, s{TYP}, 16')
        e(f'v_lshrrev_b32 v{VF+7}, s46, v{VF+7}')
        e(f'v_and_b32 v{VF+7}, 1, v{VF+7}')
        e(f'v_cmp_eq_u32 vcc, 0, v{VF+7}')
        e('s_nop 4')
        e('s_cbranch_vccnz L_op')
        e('s_branch L_go2')
    if not o.tagp: flagwait('0', VF, 'L_go')
    e('L_go:')
    jit()
    if o.tagp: e('s_mov_b32 s50, s96')
    if o.onepoll:
        e(f's_lshl_b32 s46, 0x10000, s{TYP}')
        e(f'v_mov_b32 v{VF+7}, s46')
        e('s_mov_b64 exec, 1')
        e(f'ds_or_b32 v{VF+1}, v{VF+7} offset:8')
        e('s_mov_b64 exec, -1')
        e('L_go2:')
    stamp(3)
    e('L_gw:')
    e(f'ds_read_b32 v{VF+7}, v{VF+1} offset:8')
    e('s_waitcnt lgkmcnt(0)')
    e(f'v_and_b32 v{VF+7}, 0xff, v{VF+7}')
    e(f'v_cmp_ne_u32 vcc, 4, v{VF+7}')
    e('s_nop 4')
    e('s_cbranch_vccnz L_gw')
    stamp(4)
    e(f's_setprio {o.mprio}')
    e(f's_cmp_eq_u32 s{TYP}, 1')
    e('s_cbranch_scc1 L_typeB')

    ACC = {'P': 64, 'Q': 100}
    WR, TMP = 136, 224
    XRING = [200 + 4 * i for i in range(6)]
    XWIN = [4 + 4 * i for i in range(6)] + [240 + 4 * i for i in range(4)]
    VC = 28
    PF = o.pf
    GT = 98
    wflags = {0: '', 1: ' sc1', 2: ' nt', 3: ' sc0'}[o.wsc1]
    for typ, S in enumerate(streams()):
        if typ == 1:
            e('.p2align 6')
            if o.warmb: e('L_warmB:'); e('s_branch L_warmret')
            e('L_typeB:')
        ops = []
        vstart = {}
        lastv = o.vt - 1
        v0 = 0
        G0 = 0
        if o.flat0:
            for g in range(16):
                vstart[g] = len(ops)
                for j in (range(9) if g % 2 == 0 or not o.flatzz else range(8, -1, -1)): ops.append((g, j))
            v0 = G0 = 16
        while v0 <= lastv:
            ch = 1 if v0 < o.chfrom + G0 else min(o.chain, lastv + 1 - v0)
            n0 = len(ops)
            for j in range(8, -1, -1):
                us = range(ch) if j % 2 == 0 else range(ch - 1, -1, -1)
                first_ = [u for u in us if v0 + u - j == 0 or (0 < v0 + u - j < NSTEP and S[v0+u-j][4] == 'Q' and S[v0+u-j-1][4] == 'P')]
                if first_: us = range(ch)
                for u in us:
                    if G0 <= v0 + u - j < NSTEP: ops.append((v0 + u - j, j))
            for u in range(ch): vstart[v0 + u] = n0 + (len(ops) - n0) * u // ch
            v0 += ch
        ntail = len(ops)
        if o.tail:
            for j in range(9):
                for g in range(o.vt - j, NSTEP): ops.append((g, j))
        assert len(ops) == NSTEP * 9 and len(set(ops)) == len(ops)
        N = len(ops)
        def key(n):
            g, j = ops[n]
            pid, arr, ch, c, acc = S[g]
            k = (pid, arr, ch, c + j)
            if n >= ntail and g < GT: k = k + ((n,) if not o.hold else ('h',))
            return k
        first, last = {}, {}
        for n in range(N):
            first.setdefault(key(n), n); last[key(n)] = n
        wfirst, wlast = {}, {}
        for n, (g, j) in enumerate(ops):
            wfirst.setdefault(g, n); wlast[g] = n
        tasks = []
        for k, n0 in first.items():
            win = o.tail and k[2] == 'rem' and k[1] == 'D'
            la = o.xla if n0 < ntail else 6
            if n0 >= ntail and ops[n0][1] == 0: la = o.tla
            elif win: la = 12
            tasks.append([n0 - la, n0 - 1, 'X', k])
        for g in range(NSTEP):
            rel = -100 + g if g < o.pf0 else max(0, wfirst[g] - 9 * PF)
            if o.tagp and g < 16:
                rel = -100 + g if g < 4 else max(0, wfirst[g] - 9 * o.tpf)
                tasks.append([rel, wfirst[g & ~1] - 9, 'W', g])
                continue
            tasks.append([rel, wfirst[g] - 1, 'W', g])
        def at(v, off=0): return vstart[v] + off
        firstD = min(n for n in range(N) if S[ops[n][0]][1] == 'D')
        lastO = max(n for n in range(N) if S[ops[n][0]][1] == 'O')
        lastP = {j: max(n for n in range(N) if ops[n][1] == j and S[ops[n][0]][4] == 'P') for j in range(9)}
        slow = []
        vused = set()
        def check(v, off, cnt, tag):
            tasks.append([at(v - 1, 3), at(v - 1, 8), 'L', (f'ds_read_b32 v{VC}, v{VF+1} offset:{off}', ('c', tag))])
            tasks.append([at(v, 0), at(v, 1), 'C', (f'v_cmp_ne_u32 vcc, {cnt}, v{VC}', ('c', tag))])
            tasks.append([at(v, 6), at(v, 7), 'I', [f's_cbranch_vccnz L_slow{typ}{tag}', f'L_back{typ}{tag}:']])
            slow.append((tag, off, cnt))
            vused.add(v)
            return at(v, 8)
        def add1(pos, off):
            tasks.append([pos, pos + 4, 'A', off])
        vD = [v for v in vstart if vstart[v] <= firstD - o.xla][-1] - 1
        okD = check(vD, 16, 4, 'D')
        assert okD <= firstD - o.xla
        add1(lastO, 20)
        VP = 47
        okR = check(VP, 20, 4, 'R')
        for j in range(9):
            assert lastP[j] + 12 < at(VP + 1 + j, 2)
            tasks.append([at(VP + 1 + j, 2), at(VP + 1 + j, 8), 'L', (f'ds_write_b128 v{VEX}, {vr(ACC["P"]+4*j,4)} offset:{1024*j}', ('pw', j))])
        tasks.append([at(VP + 10, 0), at(VP + 10, 4), 'A', 'pair'])
        VQ = VP + 13
        okP = check(VQ, 'pair', 2, 'P')
        for j in range(9):
            tasks.append([at(VQ + 1 + j, 2), at(VQ + 1 + j, 8), 'L', (f'ds_read_b128 {vr(TMP+4*(j&1),4)}, v{VEXP} offset:{1024*j}', ('pr', j))])
            v = VQ + 2 + j
            pos = at(v, 8 - (j + 2) - 1) if j <= 6 else at(v, 8 - (j - 7) - 1)
            sh = 1 if j >= 7 else 0
            if o.chain > 1:
                own = [n for n in range(N) if ops[n][1] == j]
                pos = [a_ + 10 for a_, b_ in zip(own, own[1:]) if b_ - a_ >= 14 and a_ + 9 >= at(v, 0) ][0]
                sh = 0
                tasks[-1][0] = pos - 9; tasks[-1][1] = pos - 4
                tasks[-1][3] = (f'ds_read_b128 {vr(TMP+4*(j&3),4)}, v{VEXP} offset:{1024*j}', ('pr', j))
            tasks.append([pos - 1 + sh, pos - 1 + sh, 'Q', (j, 0)])
            tasks.append([pos + sh, pos + sh, 'Q', (j, 1)])
        if typ == 0:
            tasks.append([at(64, 4), at(64, 8), 'S', f'buffer_store_dword v{VCL+1}, v{VCL}, {sr(S_DBG)}, 0 offen sc1'])
            tasks.append([at(84, 4), at(84, 8), 'S', f'buffer_store_dword v{VF+3}, v{VCL+1}, {sr(S_WS)}, 0 offen sc1'])
        fslow = []
        kslow = []
        if o.tagp:
            for g in range(0, 16, 2):
                n0 = wfirst[g]
                if g < 4: continue
                tasks.append([n0 - 8, n0 - 7, 'K', g])
                tasks.append([n0 - 2, n0 - 1, 'I', ['s_cmp_lg_u64 s[48:49], 0', f's_cbranch_scc1 L_ks{typ}{g}', f'L_kb{typ}{g}:']])
        passes = {}
        for g in range(NSTEP): passes.setdefault(S[g][0], g)
        need = [(passes[1], VF, 32 + 64 * typ), (32, VF + 6, 128), (passes[4], VF, 176), (passes[5], VF, 208), (passes[6], VF + 6, 240)]
        if o.c2split:
            need[1:2] = [(32, VF, 112), (passes[3], VF, 144)]
            o.pfcs6 = [o.pfcs[0], 10] + o.pfcs[1:]; o.fleads6 = [o.fleads[0], 8] + o.fleads[1:]
        else:
            o.pfcs6 = o.pfcs; o.fleads6 = o.fleads
        if o.yall: need[2:] = [(passes[4], 2, 176), (passes[5], 2, 176 + 72), (passes[6], 3, 176 + 144)]
        lastG = -1
        for ci, (gn, va, idx) in enumerate(need):
            v = gn - o.pfcs6[ci] - 1
            while v in vused: v -= 1
            tasks.append([at(v - o.fleads6[ci], 4), at(v - o.fleads6[ci], 8), 'F', (va, idx, ci)])
            tasks.append([at(v, 0), at(v, 1), 'G', ci])
            tasks.append([at(v, 6), at(v, 7), 'I', [f's_cbranch_vccnz L_fw{typ}{ci}', f'L_fb{typ}{ci}:']])
            fslow.append((ci, va))
            assert v not in vused, v
            vused.add(v)
            assert at(v - o.fleads6[ci], 4) > lastG, (ci, v)
            lastG = at(v, 7)
            for t in tasks:
                if t[2] == 'W' and (t[3] >= gn): t[0] = max(t[0], at(v, 8))
        tasks.append([at(v + 1, 2), at(v + 1, 8), 'A', 4])
        if typ == 0:
            for lvl, v in enumerate(o.trig): tasks.append([at(v, 2), at(v, 8), 'P', lvl + 1])
            if o.wbat: tasks.append([ntail + o.wbat, ntail + o.wbat + 6, 'P', 4])
        tasks.sort(key=lambda t: (t[0], t[1]))
        vq, lq = [], []
        dirty = [False]
        xreg, busy = {}, {}
        wn = [0]
        wr = {}
        lastw = [-100]
        later = []
        BIG = [WR + 4 * i for i in range(16)] + XWIN + [ACC['P'] + 4 * i for i in range(9)]
        for i in range(9): busy[ACC['P'] + 4 * i] = at(VP + 12)
        until = {}
        if o.chain > 1:
            BIG += XRING + [VA, VA + 4, VA + 8]
            for i in range(9):
                BIG.append(ACC['Q'] + 4 * i)
                until[ACC['Q'] + 4 * i] = min(n for n in range(N) if ops[n][1] == i and S[ops[n][0]][4] == 'Q') - 3
        def freeregs(n, end): return [x for x in BIG if busy.get(x, -1) <= n and end < until.get(x, 10**9)]
        def freepairs(n, end):
            f_ = set(freeregs(n, end))
            return [x for x in sorted(f_) if x % 8 == PAR8.get(x, -1) and x + 4 in f_]
        PAR8 = {x: x % 8 for x in list(range(WR, WR + 64, 8)) + [4, 12, 20, 240, 248, 200, 208, 216, 100, 108, 116, 124, VA]}
        def kcheck(g):
            vwait(g + 1)
            for i, gg in enumerate((g, g + 1)):
                a_ = wr[gg] - 2
                em(f'v_bitop3_b32 v{VC+i}, v{a_+1}, v{a_+6}, v{VF+3} bitop3:0x7e')
            em(f'v_or_b32 v{VC}, v{VC}, v{VC+1}')
            em(f'v_cmp_ne_u32 s[48:49], 0, v{VC}')
            kslow.append((g, wr[g] - 2, wr[g + 1] - 2))
        def wok(t, n):
            if t[2] != 'W': return True
            if t[3] != wn[0]: return False
            if o.tagp and t[3] < 16:
                return bool(freepairs(n, wlast[t[3]])) and (n - lastw[0] >= 2 or t[1] - n <= 4)
            free = len(freeregs(n, wlast[t[3]]))
            if t[1] - n <= 9 * 3: return free > 0
            return n - lastw[0] >= o.wgap and free > o.wres
        since = {}
        fill = []
        def em(x):
            e(x)
            if not x.endswith(':'):
                for jj in since: since[jj] += 1
        def lwait(tag):
            if tag not in lq: return
            i = lq.index(tag)
            em(f's_waitcnt lgkmcnt({0 if dirty[0] else len(lq)-1-i})')
            if dirty[0]: lq.clear(); dirty[0] = False
            else: del lq[:i + 1]
        def vwait(g):
            if g not in vq: return
            i = vq.index(g)
            em(f's_waitcnt vmcnt({len(vq)-1-i})')
            del vq[:i + 1]
        def run(t, n):
            kind, p = t[2], t[3]
            if kind == 'X':
                pool = BIG if (o.chain > 1 or p[-1] == 'h' or (p[2] == 'rem' and p[1] == 'D')) else XRING
                r = [x for x in pool if busy.get(x, -1) <= n and last[p] < until.get(x, 10**9)]
                assert r, ('no x register', p, n)
                r = min(r, key=lambda x: (until.get(x, 10**9), busy.get(x, -1)))
                busy[r] = last[p]; xreg[p] = r
                arr, ch, s_ = p[1], p[2], p[3]
                if o.nolds and n > 9 * 30: return
                if ch == 'rem': em(f'ds_read_b128 {vr(r,4)}, v{VXOR if arr == "O" else VXDR} offset:{288*s_}')
                else: em(f'ds_read_b128 {vr(r,4)}, v{VXO if arr == "O" else VXD} offset:{64*ch+288*s_}')
                lq.append(p)
            elif kind == 'W':
                g = p
                if o.tagp and g < 16:
                    r = min(freepairs(n, wlast[g]), key=lambda x: (until.get(x, 10**9), busy.get(x, -1)))
                    busy[r] = busy[r + 4] = wlast[g]; wr[g] = r + 2
                    assert g == wn[0]; wn[0] += 1
                    lastw[0] = n
                    em(f'buffer_load_dwordx4 {vr(r,4)}, v{VWL}, {sr(S_WS)}, s50 offen offset:{2048*(g%2)}')
                    em(f'buffer_load_dwordx4 {vr(r+4,4)}, v{VWL}, {sr(S_WS)}, s50 offen offset:{2048*(g%2)+1024}')
                    vq.append(('h', g)); vq.append(g)
                    if g % 2 == 1:
                        if n < 0: em('s_add_u32 s50, s50, 4096')
                        else: later.append('s_add_u32 s50, s50, 4096')
                    return
                r = min(freeregs(n, wlast[g]), key=lambda x: (until.get(x, 10**9), busy.get(x, -1)))
                busy[r] = wlast[g]; wr[g] = r
                assert g == wn[0]; wn[0] += 1
                lastw[0] = n
                if o.now and g > 40: return
                if o.wsame and g > 40:
                    em(f'buffer_load_dwordx4 {vr(r,4)}, v{VWL}, {sr(S_WS)}, s{WSO} offen offset:{1024*(g%4)}{wflags}'); vq.append(g); return
                em(f'buffer_load_dwordx4 {vr(r,4)}, v{VWL}, {sr(S_WS)}, s{WSO} offen offset:{1024*(g%4)}{wflags}')
                if g % 4 == 3:
                    if n < 0: em(f's_add_u32 s{WSO}, s{WSO}, 4096')
                    else: later.append(f's_add_u32 s{WSO}, s{WSO}, 4096')
                vq.append(g)
            elif kind == 'L':
                em(p[0].replace('offset:pair', 'offset:24').replace(f'v{VF+1} offset:24', f'v{VF+5} offset:24')); lq.append(p[1])
            elif kind == 'C':
                lwait(p[1]); em(p[0])
            elif kind == 'I':
                for x in p: em(x)
            elif kind == 'A':
                em('s_mov_b64 exec, 1')
                if p == 'pair': em(f'ds_add_u32 v{VF+5}, v{VF+2} offset:24')
                else: em(f'ds_add_u32 v{VF+1}, v{VF+2} offset:{p}')
                em('s_mov_b64 exec, -1')
                lq.append(('a', p))
            elif kind == 'Q':
                p, hf = p
                lwait(('pr', p))
                q = ACC['Q'] + 4 * p; t_ = TMP + 4 * (p & (3 if o.chain > 1 else 1))
                for i in (2 * hf, 2 * hf + 1): em(f'v_add_f32 v{q+i}, v{q+i}, v{t_+i}')
            elif kind == 'S':
                assert not any(isinstance(x, tuple) and x[0] == 's' for x in vq)
                em(p); vq.append(('s', n))
            elif kind == 'F':
                em(f's_mov_b32 s{FO}, {128*p[1]}')
                em(f'buffer_load_dword v{VF+4}, v{p[0]}, {sr(S_WS)}, s{FO} offen {o.fflags}'); vq.append(('f', p[2]))
            elif kind == 'K':
                kcheck(p)
            elif kind == 'G':
                vwait(('f', p)); em(f'v_cmp_ne_u32 vcc, v{VF+3}, v{VF+4}')
            elif kind == 'P':
                em(f'v_mov_b32 v{VF+7}, {p}')
                em('s_mov_b64 exec, 1')
                em(f'ds_max_u32 v{VF+1}, v{VF+7}')
                em('s_mov_b64 exec, -1')
                lq.append(('p', p))
        def epi(j, pk):
            q = ACC['Q'] + 4 * j
            t = TMP + 8 * (j & 1)
            I = []
            if pk:
                I.append(f'v_pk_mul_f32 {vr(t,2)}, {vr(q,2)}, s[{C2L}:{C2L+1}]')
                I.append(f'v_pk_mul_f32 {vr(t+2,2)}, {vr(q+2,2)}, s[{CNL}:{CNL+1}]')
            else:
                for i in (0, 1): I.append(f'v_mul_f32 v{t+i}, s{C2L}, v{q+i}')
                for i in (2, 3): I.append(f'v_mul_f32 v{t+i}, s{CNL}, v{q+i}')
            I.append(f'v_min_f32 v{t}, s{C60}, v{t}')
            I.append(f'v_min_f32 v{t+1}, s{C60}, v{t+1}')
            for i in (0, 1, 2, 3): I.append(f'v_exp_f32 v{t+i}, v{t+i}')
            if pk:
                I.append(f'v_pk_add_f32 {vr(t+4,2)}, {vr(t,2)}, 1.0 op_sel_hi:[1,0]')
                I.append(f'v_pk_add_f32 {vr(t+6,2)}, {vr(t,2)}, -1.0 op_sel_hi:[1,0]')
                I.append(f'v_pk_fma_f32 {vr(t+4,2)}, {vr(t+4,2)}, {vr(t+2,2)}, {vr(t+4,2)}')
            else:
                for i in (0, 1): I.append(f'v_add_f32 v{t+4+i}, 1.0, v{t+i}')
                for i in (0, 1): I.append(f'v_fma_f32 v{t+4+i}, v{t+4+i}, v{t+2+i}, v{t+4+i}')
            I.append(f'v_rcp_f32 v{t+4}, v{t+4}')
            I.append(f'v_rcp_f32 v{t+5}, v{t+5}')
            if pk:
                I.append('s_nop 0')
                I.append(f'v_pk_mul_f32 {vr(t+6,2)}, {vr(t+6,2)}, {vr(t+4,2)}')
            else:
                for i in (0, 1): I.append(f'v_add_f32 v{t+6+i}, -1.0, v{t+i}')
                for i in (0, 1): I.append(f'v_mul_f32 v{t+6+i}, v{t+6+i}, v{t+4+i}')
            I.append(f'v_cvt_pk_bf16_f32 v{q}, v{t+6}, v{t+7}')
            I.append(f'buffer_store_dword v{q}, v{VOUT + j//3}, {sr(S_OUT)}, 0 offen offset:{1152*(j%3)} {o.oflags if j < o.oj else ""}')
            return I
        def cost(x): return 2 if x.startswith(('v_exp', 'v_rcp', 'buffer')) else 1
        while tasks and tasks[0][0] < 0: run(tasks.pop(0), -1)
        if o.tagp:
            for g in (0, 2):
                vwait(g + 1)
                for gg in (g + 4, g + 5):
                    t_ = [t for t in tasks if t[2] == 'W' and t[3] == gg][0]
                    tasks.remove(t_); run(t_, -1)
                kcheck(g)
                em('s_nop 2')
                em('s_cmp_lg_u64 s[48:49], 0')
                em(f's_cbranch_scc1 L_ks{typ}{g}')
                em(f'L_kb{typ}{g}:')
        inv = {n: v for v, n in vstart.items()}
        lastop = {j: max(n for n in range(N) if ops[n][1] == j) for j in range(9)}
        for n, (g, j) in enumerate(ops):
            if n in inv and o.padto and o.padev == 'm5' and inv[n] == o.padstep:
                e('s_memrealtime s[100:101]'); dirty[0] = True
            if n in inv and o.diag:
                v = inv[n]
                if o.diag == 2 and v in o.marks:
                    kk = o.marks.index(v)
                    e(f's_memtime s[{ST0+2*kk}:{ST0+2*kk+1}]'); dirty[0] = True
                if o.diag in (1, 4) and v == 33: stamp(5); stamp(6); dirty[0] = True
            if o.jit and n in inv and inv[n] in (20, 36, 44, 52, 60, 70, 90): jit()
            k = key(n)
            assert k in xreg, (k, n)
            lwait(k); vwait(g)
            acc = S[g][4]
            d = ACC[acc] + 4 * j
            if g == 0: cs = '0'
            elif acc == 'Q' and S[g-1][4] == 'P': cs = vr(ACC['P'] + 4 * j, 4)
            else: cs = vr(d, 4)
            em(f'v_mfma_f32_16x16x32_bf16 {vr(d,4)}, {vr(wr[g],4)}, {vr(xreg[k],4)}, {cs}' if not o.swapab else f'v_mfma_f32_16x16x32_bf16 {vr(d,4)}, {vr(xreg[k],4)}, {vr(wr[g],4)}, {cs}')
            if n == lastop[j]: since[j] = 0
            while later: em(later.pop(0))
            budget = 2
            TC = {'X': 1, 'W': 2, 'L': 2, 'C': 1, 'I': 0, 'A': 1, 'Q': 2, 'S': 2, 'F': 2, 'G': 1, 'P': 2, 'K': 2}
            while True:
                ready = [t for t in tasks if t[0] <= n and wok(t, n)]
                if not ready: break
                t = min(ready, key=lambda t: t[1])
                assert t[1] >= n, ('late', t, n)
                if TC[t[2]] > budget and t[1] > n:
                    fit = [u for u in ready if TC[u[2]] <= budget]
                    if not fit: break
                    t = min(fit, key=lambda t: t[1])
                tasks.remove(t); run(t, n); budget -= TC[t[2]]
            for jj in sorted(since):
                if 8 <= since[jj] < 10**6:
                    fill += epi(jj, False); since[jj] = 10**6
            budget += o.nfill - 2
            while fill and budget >= cost(fill[0]):
                budget -= cost(fill[0])
                if fill[0].startswith('buffer_store'):
                    q_ = int(re.match(r'buffer_store_dword v(\d+)', fill[0]).group(1))
                    until.pop(q_, None); busy[q_] = n + 2
                em(fill.pop(0))
            assert all(t[1] > n for t in tasks), ('late', n, [t for t in tasks if t[1] <= n])
        assert not tasks
        stamp(7)
        while fill: em(fill.pop(0))
        for jj in [jj for jj in sorted(since) if since[jj] < 10**6]:
            if since[jj] < 8: em(f's_nop {8-since[jj]-1}')
            for x in epi(jj, True): em(x)
        stamp(8)
        if o.padto and o.padev[0] == 'm': padloop(typ)
        if o.diag == 1:
            e('s_waitcnt vmcnt(0)')
            stamp(9)
            dump(10)
        if o.diag == 2:
            kk = len(o.marks)
            e(f's_memtime s[{ST0+2*kk}:{ST0+2*kk+1}]')
            dump(10)
        e('s_endpgm')
        for tag, off, cnt in slow:
            e(f'L_slow{typ}{tag}:')
            e(f'ds_read_b32 v{VC}, v{VF+5 if off == "pair" else VF+1} offset:{24 if off == "pair" else off}')
            e('s_waitcnt lgkmcnt(0)')
            e(f'v_cmp_ne_u32 vcc, {cnt}, v{VC}')
            e('s_nop 4')
            e(f's_cbranch_vccnz L_slow{typ}{tag}')
            e(f's_branch L_back{typ}{tag}')
        for ci, va in fslow: flagwait(f'{typ}{ci}', va, f'L_fb{typ}{ci}')
        for g, a0_, a1_ in kslow:
            e(f'L_ks{typ}{g}:')
            if o.diag: e(f's_add_u32 s95, s95, {1 << 24}')
            e(f'ds_read_b32 v{VF+7}, v{VF+1} offset:12')
            e(f's_add_u32 s47, s96, {2048*g}')
            e('s_waitcnt lgkmcnt(0)')
            for i, a_ in enumerate((a0_, a0_ + 4, a1_, a1_ + 4)):
                e(f'buffer_load_dwordx4 {vr(a_,4)}, v{VWL}, {sr(S_WS)}, s47 offen offset:{1024*i} sc1')
            e(f'v_readfirstlane_b32 s46, v{VF+7}')
            e(f's_add_u32 s{NPOLL}, s{NPOLL}, 1')
            e('s_waitcnt vmcnt(0)')
            e('s_cmp_lg_u32 s46, 0')
            e(f's_cbranch_scc1 L_kb{typ}{g}')
            e(f'v_bitop3_b32 v{VC}, v{a0_+1}, v{a0_+6}, v{VF+3} bitop3:0x7e')
            e(f'v_bitop3_b32 v{VC+1}, v{a1_+1}, v{a1_+6}, v{VF+3} bitop3:0x7e')
            e(f'v_or_b32 v{VC}, v{VC}, v{VC+1}')
            e(f'v_cmp_ne_u32 s[48:49], 0, v{VC}')
            e('s_nop 2')
            e('s_cmp_eq_u64 s[48:49], 0')
            e(f's_cbranch_scc1 L_kb{typ}{g}')
            e(f's_cmp_lg_u32 s{NPOLL}, {o.maxpoll}')
            e(f's_cbranch_scc1 L_ks{typ}{g}')
            e(f'v_mov_b32 v{VF+7}, 0x10000')
            e('s_mov_b64 exec, 1')
            e(f'ds_add_u32 v{VF+1}, v{VF+7} offset:4')
            e('s_mov_b64 exec, -1')
            e(f's_branch L_ks{typ}{g}')

    mark['help0'] = len(e.L)
    if not o.hfirst: e('.p2align 6')
    e('L_helper:')
    role[0] = 'h'
    e(f's_setprio {o.hprio}')
    e(f's_sub_u32 s{TW0}, s{WAVE}, 4')
    e(f's_mov_b32 s{TW1}, s{WAVE}')
    e(f's_sub_u32 s{PAIR}, s{RID}, {NPROD}')
    e(f's_cselect_b32 s{PAIR}, s{RID}, s{PAIR}')
    e(f's_mov_b32 s{MODE}, 0')
    e(f's_mov_b32 s{NOTASK}, s{RID}')
    e(f's_mov_b32 s{HAS3}, s{TW0}')
    e(f's_lshl_b32 s{SCRB}, s{TW0}, 12')
    e(f's_add_u32 s{SCRB}, s{SCRB}, {SCR}')
    e('L_prod:')
    T = [(28, TW0, 2, 52, 0), (36, TW1, 4, 53, 2048), (44, TW2, 6, 54, 16384)]
    c, kp, q, cc, kk, t = 46, 47, 48, 49, 50, 51
    b = TS
    e('v_mov_b32 v19, 4320')
    e('v_and_b32 v23, 3, v1')
    e('v_lshrrev_b32 v24, 2, v1')
    e('v_mul_u32_u24 v24, 288, v24')
    for (vb, sw, vl, vs, so) in T:
        e(f'v_lshl_add_u32 v8, s{sw}, 2, v23' if sw != TW2 else 'v_add_u32 v8, 32, v23')
        e('v_cmp_le_u32 vcc, 18, v8')
        e(f'v_lshl_add_u32 v{vl}, v8, 4, v24')
        e(f'v_add_u32 v9, v{vl}, v19')
        e(f'v_cndmask_b32 v{vl}, v{vl}, v9, vcc')
    e(f's_and_b32 s{c}, s{PAIR}, 15')
    e(f's_lshr_b32 s{kp}, s{PAIR}, 4')
    e(f's_mul_i32 s{b}, s{c}, 165888')
    e(f's_mul_i32 s{t}, s{kp}, 9216')
    e(f's_add_u32 s{b}, s{b}, s{t}')
    e(f's_add_u32 s{b+1}, s{b}, 82944')
    e(f's_mov_b32 s{S_W+2}, 2571264')
    e(f's_mov_b32 s{S_W+3}, 0x20000')
    e(f's_mov_b32 s{S_WO+3}, s{S_W+3}')
    e(f's_cmp_lg_u32 s{c}, 15')
    e(f's_cselect_b32 s{S_WO+2}, s{S_W+2}, 0')
    e(f's_mov_b32 m0, s{SCRB}')
    e('s_waitcnt lgkmcnt(0)')
    e(f's_mov_b32 s{S_W}, s6')
    e(f's_and_b32 s{S_W+1}, s7, 0xffff')
    e(f's_mov_b32 s{S_WO}, s6')
    e(f's_and_b32 s{S_WO+1}, s7, 0xffff')
    e(f's_cmp_ge_u32 s{NOTASK}, {NTASK}')
    e('s_cbranch_scc1 L_a3')
    def cond3(lbl):
        e(f's_cmp_lg_u32 s{HAS3}, 0')
        e(f's_cbranch_scc1 {lbl}')
    for ti, (vb, sw, vl, vs, so) in enumerate(T):
        if ti == 2: cond3('L_a3')
        if ti == 1: e('s_addk_i32 m0, 1024'); e('s_nop 0')
        e(f'buffer_load_dwordx4 v{vl}, {sr(S_W)}, s{b} offen lds')
        e('s_addk_i32 m0, 1024')
        e('s_nop 0')
        e(f'buffer_load_dwordx4 v{vl}, {sr(S_WO)}, s{b+1} offen lds')
        if ti == 1: e(f's_addk_i32 m0, {16384-3072}')
    e('L_a3:')
    stamp(1)
    e(f's_cmp_lg_u32 s{MODE}, 0')
    e('s_cbranch_scc1 L_a4')
    e(f's_load_dword s{TAG}, s[12:13], {NONCE}')
    e(f's_lshr_b32 s{EARLY}, 0x33, s{kp}')
    e(f's_and_b32 s{EARLY}, s{EARLY}, 1')
    e(f's_sub_u32 s{XK}, 2, s{EARLY}')
    e(f's_lshl_b32 s{t}, s{kp}, 1')
    e(f's_lshr_b32 s{YT}, {(3<<12)+(3<<14)+(3<<16)}, s{t}')
    e(f's_and_b32 s{YT}, s{YT}, 3')
    e(f's_lshr_b32 s{t}, s{kp}, 1')
    e(f's_cmp_ge_u32 s{RID}, {NPROD}')
    e(f's_cselect_b32 s{EARLY}, 0, s{EARLY}')
    e(f's_cselect_b32 s{XK}, 3, s{XK}')
    e(f's_cselect_b32 s{YT}, s{t}, s{YT}')
    e(f's_cmp_ge_u32 s{RID}, {NPROD+32}')
    e(f's_cselect_b32 s{XK}, 0, s{XK}')
    e(f's_cmp_ge_u32 s{RID}, {NTASK}')
    e(f's_cselect_b32 s{YT}, 0, s{YT}')
    if not o.b0early:
        e(f's_cmp_lg_u32 s{EARLY}, 0')
        e('s_cbranch_scc1 L_a4')
    e('s_barrier')
    e('L_a4:')
    jit()
    e(f's_mov_b32 s{MASK}, 0xffff0000')
    e(f's_mov_b32 s{NPOLL}, 0')
    srd(e, S_WS, 12, WS_REC)
    srd(e, S_DBG, 10, 256)
    e(f'v_mov_b32 v10, {CNT}')
    e(f'v_mov_b32 v20, {(256 - 18*NSTR) & 0xffffffff}')
    e(f'v_mov_b32 v26, {NSTR}')
    e('v_bfe_u32 v21, v1, 2, 2')
    e('v_lshlrev_b32 v21, 7, v21')
    e('v_and_b32 v22, 1, v1')
    e('v_lshl_add_u32 v21, v22, 6, v21')
    e('v_bfe_u32 v22, v1, 1, 1')
    e('v_lshl_add_u32 v21, v22, 3, v21')
    e('v_lshrrev_b32 v22, 4, v1')
    e('v_lshl_add_u32 v21, v22, 4, v21')
    e(f'v_add_u32 v21, s{SCRB}, v21')
    if o.yall: e('v_mov_b32 v62, v21')
    e('v_and_b32 v25, 15, v1')
    e('v_lshlrev_b32 v25, 4, v25')
    for (vb, sw, vl, vs, so) in T:
        e(f'v_lshl_add_u32 v8, s{sw}, 2, v22' if sw != TW2 else 'v_add_u32 v8, 32, v22')
        e('v_cmp_le_u32 vcc, 18, v8')
        e(f'v_mad_u32_u24 v{vs}, v8, v26, v25')
        e(f'v_add_u32 v9, v{vs}, v20')
        e(f'v_cndmask_b32 v{vs}, v{vs}, v9, vcc')
    if o.tagp:
        e(f's_lshr_b32 s97, 0x33, s{kp}')
        e('s_and_b32 s97, s97, 1')
        e(f's_cmp_eq_u32 s{WAVE}, 4')
        e(f's_cselect_b32 s{t}, 1, s{97 if o.split1 else EARLY}')
        e(f's_cmp_lg_u32 s{t}, 0')
        e(f's_cselect_b32 s{t}, 4, -16')
        e(f'v_mov_b32 v9, s{t}')
        e('s_waitcnt lgkmcnt(0)')
        e('s_mov_b64 exec, 1')
        e(f'buffer_load_dword v27, v9, {sr(S_DBG)}, 0 offen sc1')
        e('s_mov_b64 exec, -1')
        e(f's_lshr_b32 s96, s{kp}, 2')
        e('s_lshl_b32 s96, s96, 4')
        e(f's_add_u32 s96, s96, s{c}')
        e('s_lshl_b32 s96, s96, 2')
        e(f's_and_b32 s{t}, s{kp}, 1')
        e(f's_add_u32 s96, s96, s{t}')
        e('s_lshl_b32 s96, s96, 9')
        e(f's_add_u32 s96, s96, {WOFF + 2*NSTEP*1024}')
    e(f's_lshr_b32 s{q}, s{kp}, 1')
    e(f's_and_b32 s{cc}, s{c}, 7')
    e(f's_lshr_b32 s{kk}, s{c}, 3')
    e(f's_and_b32 s{t}, s{kp}, 1')
    e(f's_cmp_eq_u32 s{kp}, 8')
    e(f's_cselect_b32 s{cc}, s{cc}, s{c}')
    e(f's_cselect_b32 s{kk}, s{kk}, s{t}')
    e(f's_lshl_b32 s{kk}, s{kk}, 9')
    e(f's_add_u32 s{kk}, s{kk}, {WOFF}')
    e(f's_lshl_b32 s{t}, s{q}, 4')
    e(f's_add_u32 s{b+2}, s{t}, s{cc}')
    e(f's_sub_u32 s{b+3}, s{b+2}, s{q}')
    e(f's_cmp_ge_u32 s{q}, 2')
    e(f's_cselect_b32 s{b+4}, 74, 0')
    e(f's_add_u32 s{b+4}, s{b+4}, s{b+2}')
    e(f's_cmp_lt_u32 s{cc}, 2')
    e(f's_cselect_b32 s{t}, 32, 136')
    e(f's_add_u32 s{t}, s{t}, s{cc}')
    e(f's_cmp_eq_u32 s{kp}, 8')
    e(f's_cselect_b32 s{b+4}, s{t}, s{b+4}')
    e(f's_add_u32 s{b+2}, s{b+2}, 34')
    e(f's_add_u32 s{b+3}, s{b+3}, 144')
    for k in (2, 3, 4):
        e(f's_lshl_b32 s{b+k}, s{b+k}, 10')
        e(f's_add_u32 s{b+k}, s{b+k}, s{kk}')
    e(f's_cmp_eq_u32 s{kp}, 8')
    e(f's_cselect_b32 s{t}, 1, 2')
    e(f's_cmp_eq_u32 s{c}, 15')
    e(f's_cselect_b32 s{b+5}, s{t}, 0')
    e(f's_lshl_b32 s46, s{WAVE}, 2')
    e(f's_add_u32 s46, s46, {CNT+16}')
    e('v_mov_b32 v55, s46')
    if o.tagp:
        e('s_waitcnt vmcnt(1)')
        stamp(2)
        e(f's_cmp_ge_u32 s{NOTASK}, {NTASK}')
        e('s_cbranch_scc1 L_x9')
    else:
        e('v_mov_b32 v27, 0')
        e('v_mov_b32 v9, 4')
        e('s_waitcnt vmcnt(0) lgkmcnt(0)')
        stamp(2)
        e(f's_cmp_lg_u32 s{WAVE}, 4')
        e('s_cbranch_scc1 L_a5')
        e('s_mov_b64 exec, 1')
        e(f'buffer_load_dword v27, v9, {sr(S_DBG)}, 0 offen sc1')
        e('s_mov_b64 exec, -1')
        e('L_a5:')
        e(f's_cmp_ge_u32 s{NOTASK}, {NTASK}')
        e('s_cbranch_scc1 L_x9')
    for (vb, sw, vl, vs, so) in T:
        for tap in range(2):
            for half in range(2):
                e(f'ds_read_b64_tr_b16 {vr(vb+4*tap+2*half,2)}, v21 offset:{so+1024*tap+512*half}')
    nlab = [0]
    def st01(vb, vs):
        nlab[0] += 1
        e(f'buffer_store_dwordx4 {vr(vb,4)}, v{vs}, {sr(S_WS)}, s{b+2} offen {o.stf}')
        e(f's_cmp_eq_u32 s{b+5}, 2')
        e(f's_cbranch_scc1 L_skip{nlab[0]}')
        e(f'buffer_store_dwordx4 {vr(vb+4,4)}, v{vs}, {sr(S_WS)}, s{b+3} offen {o.stf}')
        e(f'L_skip{nlab[0]}:')
    def st01all(lbl):
        st01(T[0][0], T[0][3]); st01(T[1][0], T[1][3])
        cond3(lbl)
        st01(T[2][0], T[2][3])
    def dosum(vb, tb, ob):
        for i in range(8):
            e(f'v_lshlrev_b32 v{tb+2*i}, 16, v{vb+i}')
            e(f'v_and_b32 v{tb+2*i+1}, s{MASK}, v{vb+i}')
        for i in range(4):
            e(f'v_pk_add_f32 {vr(tb+2*i,2)}, {vr(tb+2*i,2)}, {vr(tb+8+2*i,2)}')
        for i in range(4):
            e(f'v_cvt_pk_bf16_f32 v{ob+i}, v{tb+2*i}, v{tb+2*i+1}')
    def ldswait(off, cmp, operand, tag, slp):
        e(f'L_lw{tag}:')
        e(f'ds_read_b32 v11, v10 offset:{off}')
        e('s_waitcnt lgkmcnt(0)')
        e('v_and_b32 v11, 0xff, v11')
        e(f'v_cmp_{cmp}_u32 vcc, {operand}, v11')
        e('s_nop 4')
        e(f's_cbranch_vccnz L_lx{tag}')
        e(f's_sleep {slp}')
        e(f's_branch L_lw{tag}')
        e(f'L_lx{tag}:')
    SOR = lambda ti: (210 + 8 * ti) if o.tagp else (240 + 4 * ti)
    e(f's_or_b32 s46, s{EARLY}, s{MODE}')
    e(f's_cmp_eq_u32 s{XK}, 2')
    e('s_cselect_b32 s47, 1, s46')
    if o.xl: e('s_mov_b32 s46, s47')
    if o.split1:
        assert o.tagp and o.xl
        e('s_or_b32 s47, s47, s97')
        e(f's_andn2_b32 s50, s97, s{MODE}')
    e('s_cmp_eq_u32 s47, 0')
    e('s_cbranch_scc1 L_x9')
    if o.tagp:
        e('s_cmp_eq_u32 s97, 0')
        e('s_cbranch_scc1 L_x7')
        e('s_waitcnt vmcnt(0)')
        e('v_readfirstlane_b32 s48, v27')
        e(f's_add_u32 s49, s{TAG}, {TAGINC}')
        e('s_not_b32 s47, s49')
        e(f's_or_b32 s48, s48, s{MODE}')
        e('s_cselect_b32 s49, s47, s49')
        for ti in range(3):
            e(f'v_mov_b32 v{SOR(ti)-1}, s49')
            e(f'v_mov_b32 v{SOR(ti)+4}, s49')
        e('L_x7:')
    for ti, (vb, sw, vl, vs, so) in enumerate(T):
        if ti == 2: cond3('L_x3')
        if o.split1:
            if ti == 1: e(f's_and_b32 s47, s50, s{EARLY}')
            else: e(f's_andn2_b32 s47, s50, s{EARLY}')
            e(f's_cbranch_scc1 L_x5{ti}')
        e(f's_waitcnt lgkmcnt({8-4*ti})')
        dosum(vb, 64 + 16 * ti, SOR(ti))
        if not o.split1:
            e('s_cmp_eq_u32 s46, 0')
            e(f's_cbranch_scc1 L_x5{ti}')
        if o.tagp:
            e('s_cmp_eq_u32 s97, 0')
            e(f's_cbranch_scc1 L_x6{ti}')
            e(f'buffer_store_dwordx4 {vr(SOR(ti)-2,4)}, v{vs}, {sr(S_WS)}, s96 offen {o.stf}')
            e(f'buffer_store_dwordx4 {vr(SOR(ti)+2,4)}, v{vs}, {sr(S_WS)}, s96 offen offset:1024 {o.stf}')
            e(f's_branch L_x5{ti}')
            e(f'L_x6{ti}:')
        e(f'buffer_store_dwordx4 {vr(SOR(ti),4)}, v{vs}, {sr(S_WS)}, s{b+4} offen {o.stf}')
        e(f'L_x5{ti}:')
    e('L_x3:')
    e(f's_cmp_eq_u32 s{MODE}, 0')
    e('s_cbranch_scc1 L_x9')
    e('L_x2:')
    e('s_waitcnt lgkmcnt(0)')
    st01all('L_x4')
    e('L_x4:')
    e(f's_cmp_eq_u32 s{MODE}, 0')
    e('s_cbranch_scc1 L_x9')
    e('s_waitcnt vmcnt(0)')
    e(f's_add_u32 s{PAIR}, s{PAIR}, 1')
    e(f's_cmp_lt_u32 s{PAIR}, {NPROD}')
    e('s_cbranch_scc1 L_prod')
    e('v_mov_b32 v11, 1')
    e('ds_write_b32 v10, v11 offset:12')
    e('s_endpgm')
    e('L_x9:')
    jit()
    if o.tagp and not o.b0early:
        e(f's_cmp_eq_u32 s{EARLY}, 0')
        e('s_cbranch_scc1 L_x10')
        e('s_barrier')
        e('L_x10:')
    stamp(3)
    decode()
    e('v_subrev_u32 v4, 256, v0')
    e('v_min_u32 v4, 251, v4')
    e('v_mul_u32_u24 v3, 3641, v4')
    e('v_lshrrev_b32 v3, 16, v3')
    e('v_mul_u32_u24 v2, 18, v3')
    e('v_sub_u32 v2, v4, v2')
    e(f'v_mul_u32_u24 v3, {R}, v3')
    e(f'v_min_u32 v3, {160-R}, v3')
    e('v_mul_u32_u24 v4, 1152, v3')
    e('v_lshl_add_u32 v4, v2, 4, v4')
    e(f'v_add_u32 v12, s{XB}, v4')
    e('v_mul_u32_u24 v18, 288, v3')
    e('v_lshl_add_u32 v18, v2, 4, v18')
    e(f'v_add_u32 v19, {X_D1}, v18')
    srd(e, S_X, 4, 1152000, add=BOFF)
    e(f's_add_u32 s46, s{TAG}, {TAGINC}')
    e('v_mov_b32 v56, s46')
    e(f's_lshl_b32 s46, s{RID}, 7')
    e('v_mov_b32 v58, s46')
    e(f's_add_u32 s46, s{PAIR}, {NPROD}')
    e('s_lshl_b32 s46, s46, 7')
    e('v_mov_b32 v59, s46')
    def publish(slot, vflag, tag, first, n=0):
        e('s_mov_b64 exec, 1')
        e(f's_waitcnt vmcnt({n})')
        if first: stamp(4)
        if o.padto and tag == 'x': stamp(12)
        e('v_cmp_ne_u32 vcc, 0, v27')
        e('v_not_b32 v57, v56')
        e('s_nop 0')
        e('v_cndmask_b32 v57, v56, v57, vcc')
        e(f'ds_write_b32 v55, v57 offset:{slot}')
        e(f'ds_read_b128 v[20:23], v10 offset:{32+slot}')
        e('s_waitcnt lgkmcnt(0)')
        for i in range(4): e(f'v_xor_b32 v{20+i}, v{20+i}, v56')
        e('v_or3_b32 v20, v20, v21, v22')
        e('v_or_b32 v20, v20, v23')
        e('v_cmp_eq_u32 vcc, 0, v20')
        e('s_and_b64 exec, exec, vcc')
        e(f's_cbranch_execz L_nl{tag}')
        e(f'buffer_store_dword v56, v{vflag}, {sr(S_WS)}, 0 offen sc1')
        e(f'L_nl{tag}:')
        e('s_mov_b64 exec, -1')
    if o.tagp and o.xl:
        e(f's_cmp_lg_u32 s{XK}, 2')
        e('s_cbranch_scc1 L_noflag')
        publish(0, 58, 'x', True)
        e(f's_mov_b32 s{XK}, 0')
    elif o.xl:
        e(f's_cmp_ge_u32 s{RID}, {NPROD}')
        e('s_cbranch_scc1 L_noflag')
        publish(0, 58, 'x', True)
        e(f's_mov_b32 s{XK}, 0')
        e(f's_cmp_eq_u32 s{EARLY}, 0')
        e('s_cbranch_scc1 L_noflag')
        if not o.b0early: e('s_barrier')
    elif not o.tagp:
        e(f's_cmp_eq_u32 s{EARLY}, 0')
        e('s_cbranch_scc1 L_noflag')
        publish(0, 58, 'x', True)
        if not o.b0early: e('s_barrier')
    e('L_noflag:')
    e(f's_setprio {o.hprio2}')
    RAW, ORAW = 64, 120
    EU = [184, 192]
    OU, DT, DO = 200, 208, 216
    xi = [0]
    NL = R + 1
    hq = []
    def eload():
        k = xi[0]
        if k >= NL: return
        a_ = 12
        if k:
            a_ = 13 + (k & 3)
            e(f'v_add_u32 v{a_}, {1152*k}, v12')
        e(f'buffer_load_dwordx4 {vr(RAW+4*k,4)}, v{a_}, {sr(S_X)}, 0 offen')
        xi[0] += 1
        hq.append(('e', k))
    if o.etouch:
        e(f's_cmp_lt_u32 s{RID}, {NTASK}')
        e('s_cbranch_scc1 L_net')
        e(f's_and_b32 s46, s{NB}, 1')
        e(f's_mul_i32 s46, s46, {1152*6}')
        e('v_add_u32 v12, s46, v12')
        for _ in range(7): eload()
        e('v_subrev_u32 v12, s46, v12')
        e('s_waitcnt vmcnt(0)')
        e('L_net:')
        xi[0] = 0; hq.clear()
    YA = 232
    e(f's_cmp_eq_u32 s{b+5}, 2')
    e('s_cselect_b32 s46, 0x80000000, 0')
    e(f's_cmp_lg_u32 s{HAS3}, 0')
    e('s_cselect_b32 s47, 0x80000000, 0')
    e('s_or_b32 s48, s46, s47')
    for i in range(6):
        m_ = {0: None, 1: 46, 2: None, 3: 46, 4: 47, 5: 48}[i]
        e(f'v_mov_b32 v{YA+i}, v{52+i//2}' if m_ is None else f'v_or_b32 v{YA+i}, s{m_}, v{52+i//2}')
    def ystore(i, a_):
        e(f'buffer_store_dwordx4 {vr(28+4*i,4)}, v{a_}, {sr(S_WS)}, s{b+2+(i&1)} offen {o.stf}')
        hq.append(('y', i))
    if o.yall:
        assert o.d0p
        e(f's_add_u32 s44, s{RID}, 76')
        e(f's_cmp_ge_u32 s44, {NWG}')
        e(f's_cselect_b32 s45, {NWG}, 0')
        e('s_sub_u32 s44, s44, s45')
        e(f's_add_u32 s46, s44, {NPROD + 32}')
        e('s_lshl_b32 s46, s46, 7')
        e('v_mov_b32 v59, s46')
        e('s_mul_hi_u32 s45, s44, 477218589')
        e('s_mul_i32 s46, s45, 9')
        e('s_sub_u32 s44, s44, s46')
        e(f's_lshr_b32 s{YT}, s45, 3')
        e(f's_add_u32 s{YT}, s{YT}, 1')
        e(f's_min_u32 s{YT}, s{YT}, 3')
        e('s_lshl_b32 s45, s45, 2')
        e(f's_add_u32 s45, s45, s{WAVE}')
        e('s_add_u32 s45, s45, 28')
        e('s_and_b32 s46, s45, 15')
        e('s_lshr_b32 s47, s45, 4')
        e('s_mul_i32 s54, s46, 165888')
        e('s_mul_i32 s48, s47, 9216')
        e('s_add_u32 s54, s54, s48')
        e('s_add_u32 s95, s54, 82944')
        e('s_cmp_lg_u32 s46, 15')
        e(f's_cselect_b32 s{S_WO+2}, 2571264, 0')
        e('s_cselect_b32 s51, 0, 0x80000000')
        e('s_lshr_b32 s48, s47, 1')
        e('s_and_b32 s49, s46, 7')
        e('s_lshr_b32 s50, s46, 3')
        e('s_and_b32 s45, s47, 1')
        e('s_cmp_eq_u32 s47, 8')
        e('s_cselect_b32 s49, s49, s46')
        e('s_cselect_b32 s50, s50, s45')
        e('s_cselect_b32 s51, 0, s51')
        e('s_lshl_b32 s50, s50, 9')
        e(f's_add_u32 s50, s50, {WOFF}')
        e('s_lshl_b32 s68, s48, 4')
        e('s_add_u32 s68, s68, s49')
        e('s_sub_u32 s69, s68, s48')
        e('s_add_u32 s68, s68, 34')
        e('s_add_u32 s69, s69, 144')
        for r_ in (68, 69):
            e(f's_lshl_b32 s{r_}, s{r_}, 10')
            e(f's_add_u32 s{r_}, s{r_}, s50')
        e('v_and_b32 v2, 3, v1')
        e('v_lshl_add_u32 v2, s44, 2, v2')
        e('v_lshrrev_b32 v3, 4, v1')
        e('v_lshl_add_u32 v3, s44, 2, v3')
        e('v_cmp_le_u32 vcc, 18, v2')
        e('v_cmp_le_u32 s[46:47], 18, v3')
        e('v_lshl_add_u32 v63, v2, 4, v24')
        e('v_mad_u32_u24 v60, v3, v26, v25')
        e('v_add_u32 v2, 4320, v63')
        e(f'v_add_u32 v3, {(256 - 18*NSTR) & 0xffffffff}, v60')
        e('v_cndmask_b32 v63, v63, v2, vcc')
        e('v_cndmask_b32 v60, v60, v3, s[46:47]')
        e('v_or_b32 v61, s51, v60')
    def ydma():
        if not o.yall: return
        e(f's_mov_b32 m0, s{SCRB}')
        e('s_nop 0')
        e(f'buffer_load_dwordx4 v63, {sr(S_W)}, s54 offen lds')
        e('s_addk_i32 m0, 1024')
        e('s_nop 0')
        e(f'buffer_load_dwordx4 v63, {sr(S_WO)}, s95 offen lds')
        hq.append('d0'); hq.append('d1')
    stamp(5)
    ldswait(8, 'eq', 4, 'o', 1)
    def unpack(dst, s_):
        for i in range(4):
            e(f'v_lshlrev_b32 v{dst+2*i}, 16, v{s_+i}')
            e(f'v_and_b32 v{dst+2*i+1}, s{MASK}, v{s_+i}')
    def unpackE(dst, k):
        e(f's_waitcnt vmcnt({len(hq)-1-hq.index(("e", k))})')
        unpack(dst, RAW + 4 * k)
        eload()
    def diff(eu, out):
        for i in range(8): e(f'v_sub_f32 v{DT+i}, v{eu+i}, v{OU+i}')
        for i in range(4):
            e(f'v_cvt_pk_bf16_f32 v{out+i}, v{DT+2*i}, v{DT+2*i+1}')
    def opengate():
        if not o.gate: return
        e('v_mov_b32 v11, 0x100')
        e('s_mov_b64 exec, 1')
        e('ds_add_u32 v10, v11 offset:8')
        e('s_mov_b64 exec, -1')
    def rows(hook):
        jit()
        stamp(6)
        for j in range(R):
            e(f'ds_read_b128 {vr(ORAW+4*j,4)}, v18 offset:{X_O+288*j}')
        unpackE(EU[0], 0)
        e('s_waitcnt lgkmcnt(0)')
        for j in range(R):
            o0 = DO + 8 * (j & 1)
            unpack(OU, ORAW + 4 * j)
            diff(EU[j & 1], o0)
            e(f'ds_write_b128 v18, {vr(o0,4)} offset:{X_D0+288*j}')
            unpackE(EU[(j + 1) & 1], j + 1)
            diff(EU[(j + 1) & 1], o0 + 4)
            e(f'ds_write_b128 v19, {vr(o0+4,4)} offset:{288*j}')
            hook(j)
    if o.apath:
        e(f's_cmp_ge_u32 s{RID}, {NPROD + (32 if o.d0p else 0)}')
        e('s_cbranch_scc1 L_pathA')
    if o.d0row >= 0: e(f's_cmp_lg_u32 s{XK}, 2')
    else: e(f's_cmp_lt_u32 s{XK}, 2')
    e('s_cbranch_scc1 L_nox')
    if o.d0p:
        e(f's_cmp_eq_u32 s{XK}, 3')
        e('s_cbranch_scc1 L_xd')
    for i in range(3):
        e(f'buffer_store_dwordx4 {vr(SOR(i),4)}, v{YA+2*i}, {sr(S_WS)}, s{b+4} offen {o.stf}')
    if o.d0p:
        e('s_branch L_xe')
        e('L_xd:')
        for i in range(6): ystore(i, YA + i)
        e('L_xe:')
    if o.gearly:
        opengate()
        publish(0, 58, 'x2', True)
        e('s_branch L_nox2')
        e('L_nox:')
        opengate()
        e('L_nox2:')
    else:
        publish(0, 58, 'x2', True)
        e('L_nox:')
        opengate()
    hq.clear(); xi[0] = 0
    for _ in range(o.ein): eload()
    def hookP(j):
        if j == o.ydrow: ydma()
        if j == o.d0row:
            e(f's_cmp_lg_u32 s{XK}, 3')
            e('s_cbranch_scc1 L_yn1')
            keep = list(hq)
            for i in range(6): ystore(i, YA + i)
            hq[:] = keep
            e('L_yn1:')
        if o.d0row >= 0 and j == o.d0row + o.d0row2:
            e(f's_cmp_lg_u32 s{XK}, 3')
            e('s_cbranch_scc1 L_yn2')
            publish(0, 58, 'yn', True)
            e('L_yn2:')
        if o.ymid and j == o.ymid:
            e(f's_cmp_lg_u32 s{YT}, 1')
            e('s_cbranch_scc1 L_ym1')
            keep = list(hq)
            for i in range(6): ystore(i, YA + i)
            hq[:] = keep
            e('L_ym1:')
        if o.ymid and j == o.ymid + o.ymid2:
            e(f's_cmp_lg_u32 s{YT}, 1')
            e('s_cbranch_scc1 L_ym2')
            publish(16, 59, 'ym', False)
            if o.diag == 1: stamp(8)
            e(f's_mov_b32 s{YT}, 0')
            e('L_ym2:')
    rows(hookP)
    if o.apath:
        e('s_branch L_rowsdone')
        e('L_pathA:')
        if not o.d0p:
            e(f's_cmp_eq_u32 s{XK}, 3')
            e('s_cselect_b32 s47, 0, 0x80000000')
            for i in range(6): e(f'v_or_b32 v{20+i}, s47, v{YA+i}')
        hq.clear(); xi[0] = 0
        for _ in range(NL): eload()
        if not o.d0p:
            for i in range(6): ystore(i, 20 + i)
        def hookA(j):
            if j == o.grow + 1: ydma()
            if j == o.grow:
                e(f's_waitcnt vmcnt({len(hq)-1-hq.index(("e", NL-1))})')
                opengate()
            if j == o.xrow and not o.d0p:
                e(f's_cmp_lg_u32 s{XK}, 3')
                e('s_cbranch_scc1 L_xp')
                publish(0, 58, 'x3', True)
                e('L_xp:')
        rows(hookA)
    e('L_rowsdone:')
    e('s_waitcnt lgkmcnt(0)')
    stamp(7)
    e('v_mov_b32 v11, 1')
    e('s_mov_b64 exec, 1')
    e('ds_add_u32 v10, v11 offset:16')
    e('s_mov_b64 exec, -1')
    e(f's_cmp_eq_u32 s{YT}, 0')
    e('s_cbranch_scc1 L_noy')
    e(f's_setprio {o.yprio}')
    if o.yall:
        e('s_waitcnt vmcnt(0)')
        for tap in range(2):
            for half in range(2):
                e(f'ds_read_b64_tr_b16 {vr(28+4*tap+2*half,2)}, v62 offset:{1024*tap+512*half}')
    e('L_yw:')
    e('ds_read_b64 v[20:21], v10')
    e('s_waitcnt lgkmcnt(0)')
    e('v_lshrrev_b32 v21, 14, v21')
    e('v_and_b32 v21, -4, v21')
    e('v_or_b32 v20, v20, v21')
    e(f'v_cmp_le_u32 vcc, s{YT}, v20')
    e('s_nop 4')
    e('s_cbranch_vccnz L_yx')
    e('s_sleep 4')
    e('s_branch L_yw')
    e('L_yx:')
    jit()
    if o.yall:
        e(f'buffer_store_dwordx4 v[28:31], v60, {sr(S_WS)}, s68 offen {o.stf}')
        e(f'buffer_store_dwordx4 v[32:35], v61, {sr(S_WS)}, s69 offen {o.stf}')
    else:
      for i in range(6):
        ystore(i, YA + i)
        e(f's_waitcnt vmcnt({o.ythr})')
        if o.ysleep: e(f's_sleep {o.ysleep}')
    publish(16, 59, 'y', False)
    if o.diag == 1: stamp(8)
    e('L_noy:')
    e(f's_cmp_lg_u32 s{WAVE}, 4')
    e('s_cbranch_scc1 L_hend')
    e('L_guard:')
    e('ds_read_b32 v11, v10 offset:4')
    e('s_waitcnt lgkmcnt(0)')
    e('v_readfirstlane_b32 s46, v11')
    e('s_nop 3')
    e('s_cmp_eq_u32 s46, 4')
    e(f's_cbranch_scc1 {"L_wb" if o.wbat else "L_hend"}')
    e('s_cmp_lt_u32 s46, 0x10000')
    e('s_cbranch_scc0 L_rescue')
    e('s_sleep 16')
    e('s_branch L_guard')
    if o.wbat:
        e('L_wb:')
        e('s_lshr_b32 s46, s2, 3')
        e(f's_cmp_lg_u32 s46, 5')
        e('s_cbranch_scc1 L_hend')
        ldswait(0, 'eq', 4, 'w', 2)
        e('buffer_wbl2 sc1')
        e('s_waitcnt vmcnt(0)')
        e('s_branch L_hend')
    e('L_rescue:')
    e(f's_mov_b32 s{MODE}, 1')
    e(f's_mov_b32 s{HAS3}, 1')
    e(f's_mov_b32 s{NOTASK}, 0')
    e(f's_lshr_b32 s{TW0}, s{NB}, 1')
    e(f's_add_u32 s{TW1}, s{NB}, 9')
    e(f's_lshr_b32 s{TW1}, s{TW1}, 1')
    e(f's_mov_b32 s{PAIR}, 0')
    e('s_branch L_prod')
    e('L_hend:')
    if o.padto and o.padev[0] == 'h': padloop('h')
    if o.diag == 1:
        stamp(9)
        dump(10)
    e('L_end:')
    e('s_endpgm')
    if o.hfirst:
        m0, h0 = mark['main0'], mark['help0']
        e.L = e.L[:m0] + e.L[h0:] + ['.p2align 6'] + e.L[m0:h0]
    e('L_codeend:')
    e('.section .rodata,"a"')
    e('.p2align 6')
    e(f'.amdhsa_kernel {KN}')
    for x in ['next_free_vgpr 256', 'next_free_sgpr 102', 'accum_offset 256', 'group_segment_fixed_size 0', 'kernarg_size 40',
              'user_sgpr_count 2', 'user_sgpr_kernarg_segment_ptr 1', 'system_sgpr_workgroup_id_x 1']:
        e('  .amdhsa_' + x)
    e('.end_amdhsa_kernel')
    n = haz.check(e.L)
    if n: print(f'{n} hazards', file=sys.stderr)
    return f'; @launch grid=({NWG},1,1) block=(512,1,1) lds={LDS_BYTES}\n' + HEADER + e.text()

def opts(argv=None):
    ap = argparse.ArgumentParser()
    ap.add_argument('-o', default='k.s')
    for nm, d in [('diag', 0), ('pf', 16), ('pf0', 8), ('wgap', 4), ('wres', 4), ('wsc1', 0), ('nfill', 2), ('fstride', 128), ('sleep', 0), ('maxpoll', 3000), ('nopoll', 0),
                  ('hprio', 3), ('hprio2', 0), ('mprio', 2), ('epre', 0), ('ein', 4), ('dpre', 7), ('b0early', 0), ('mtouch', 4), ('gate', 1), ('swapab', 0), ('d0p', 1), ('map', 1), ('chain', 4), ('d0row', 1), ('c2split', 1), ('d0row2', 1), ('split1', 0), ('ymid', 4), ('ymid2', 2), ('wbat', 0), ('jit', 0), ('apath', 0), ('rmap', 0), ('yall', 0), ('ydrow', 6), ('flat0', 1), ('flatzz', 0), ('tagp', 1), ('tpf', 5), ('xl', 1), ('p0plain', 0), ('onepoll', 0), ('epoll', 1), ('ppoll', 0), ('yprio', 3), ('ysleep', 0), ('vt', 94), ('tla', 40), ('tskip', 2), ('gearly', 1), ('chfrom', 8), ('oj', 9), ('nolds', 0), ('now', 0), ('wsame', 0), ('grow', 1), ('vbd', 33), ('nopk', 1), ('padto', 0), ('npdelay', 0), ('opre', 4), ('etouch', 0), ('orev', 1), ('b0late', 1), ('dec', 1), ('tail', 1), ('xla', 9), ('hold', 1), ('prest', 0), ('xslot', 0), ('noclosed', 0), ('cpf', 1), ('hfirst', 1), ('warmb', 1), ('wsfirst', 0), ('flead', 6), ('ythr', 6), ('xrow', 3), ('padstep', 33), ('probe', 0), ('probeoff', 0x4000000)]:
        ap.add_argument('--' + nm, type=int, default=d)
    ap.add_argument('--oflags', default='')
    ap.add_argument('--pmap', default='18,18,18,18,18,18,18,18')
    ap.add_argument('--padev', default='m0')
    ap.add_argument('--trig', default='10,25,40')
    ap.add_argument('--yrow', default='0,7,2,9,5,11')
    ap.add_argument('--pfcs', default='4,3,5,5,5')
    ap.add_argument('--fflags', default='')
    ap.add_argument('--fleads', default='6,5,6,6,6')
    ap.add_argument('--stf', default='sc1')
    ap.add_argument('--marks', default='0,4,8,12,16,24,33,47,58')
    o = ap.parse_args(argv)
    o.marks = [int(x) for x in o.marks.split(',')]
    o.yrow = [int(x) for x in o.yrow.split(',')]
    o.pfcs = [int(x) for x in o.pfcs.split(',')]
    o.fleads = [int(x) for x in o.fleads.split(',')]
    o.trig = [int(x) for x in o.trig.split(',')]
    return o

if __name__ == '__main__':
    o = opts()
    open(o.o, 'w').write(gen(o))
```

```python
import re, sys, argparse
import haz

KN = 'standalone__autoregressive_conv_wavernn__speech_kernel'
NWG = 252
NPROD = 144
ARR = 160 * 288
X_D0, X_O, X_D1 = 0, ARR, 2 * ARR
CNT = 3 * ARR
SCR = CNT + 64
LDS_BYTES = SCR + 18432
NSTEP = 106
WOFF = int(__import__('os').environ.get('WOFF', '0x100000'), 0)
NONCE = 0x10000
DIAG = 0x800000
WS_REC = max(0x1000000, WOFF + 0x400000, int(__import__('os').environ.get('WSREC', '0'), 0))
TAGINC = 0x9E3779B9
R = 12


HEADER = """; Gated dilated causal convolution, out = tanh(f) * sigmoid(g), h = [f g] = sum_i x[t + 2i - 60] w[i].
;
; A workgroup owns 144 output pairs x 16 output columns (f and g). Waves 0-3 run the matrix loop (two column tiles x
"""

class Em:
    def __init__(self): self.L = []
    def __call__(self, s): self.L.append(s)
    def text(self): return '\n'.join(self.L) + '\n'

def vr(a, n=1): return f'v{a}' if n == 1 else f'v[{a}:{a+n-1}]'
def sr(a, n=4): return f's[{a}:{a+n-1}]'

def streams():
    out = []
    for typ in (0, 1):
        S = []
        pid = [0]
        def add(arr, chunk, cs, acc):
            for c in cs: S.append((pid[0], arr, chunk, c, acc))
            pid[0] += 1
        if typ == 0:
            add('O', 0, range(16), 'P'); add('O', 1, range(16), 'P'); add('O', 'rem', range(0, 2), 'P')
            for q in range(4): add('D', q, range(16), 'Q')
            add('D', 'rem', range(8), 'Q')
        else:
            add('O', 2, range(16), 'P'); add('O', 3, range(16), 'P'); add('O', 'rem', range(2, 8), 'P')
            for q in range(4): add('D', q, range(15), 'Q')
            add('D', 'rem', range(8), 'Q')
        assert len(S) == NSTEP
        out.append(S)
    return out

S_X, S_W, S_WO, S_WS, S_OUT, S_DBG = 20, 24, 28, 32, 36, 40
WAVE, NB, BAT, PAR, MB, BOFF = 14, 15, 16, 17, 18, 19
PAIR0 = 3
XB = 52
MASK = 53
TW0, TW1, TW2, PAIR, HAS3, MODE, SCRB, TAG, LAST, NPOLL = 44, 45, 54, 55, 56, 57, 58, 59, 60, 61
TS = 62
TYP, WSO = 68, 69
EARLY, XK, YT, FIDX = 90, 91, 92, 93
NOTASK = 94
FO = 97
C2L, CNL, C60 = 90, 92, 94
ST0 = 70

def srd(e, d, ptr, rec, add=None):
    if add is None:
        e(f's_mov_b32 s{d}, s{ptr}')
        e(f's_and_b32 s{d+1}, s{ptr+1}, 0xffff')
    else:
        e(f's_add_u32 s{d}, s{ptr}, s{add}')
        e(f's_addc_u32 s{d+1}, s{ptr+1}, 0')
        e(f's_and_b32 s{d+1}, s{d+1}, 0xffff')
    e(f's_mov_b32 s{d+2}, {rec}')
    e(f's_mov_b32 s{d+3}, 0x20000')

def gen(o):
    e = Em()
    NSTR = 2 * NSTEP * 1024 + (65536 if o.tagp else 0)
    if o.tagp: o.epoll = 0
    NTASK = NPROD + (32 if o.yall else 96)
    role = ['m']
    jn = [0]
    def jit():
        if not o.jit: return
        jn[0] += 1
        k = jn[0]
        e(f's_mul_i32 s98, s2, {37 + 2 * k + o.jit * 10}')
        e(f's_mul_i32 s99, s{WAVE}, {11 + 6 * k + o.jit}')
        e('s_add_u32 s98, s98, s99')
        e('s_bitcmp1_b32 s98, 3')
        e(f's_cbranch_scc1 L_jit{k}')
        e(f's_sleep {30 + (k * 17 + o.jit * 5) % 90}')
        e(f'L_jit{k}:')
    def padloop(tag):
        e(f'L_pad{tag}:')
        e('s_memrealtime s[98:99]')
        e('s_waitcnt lgkmcnt(0)')
        e('s_sub_u32 s98, s98, s100')
        e(f's_cmp_lt_u32 s98, {o.padto}')
        e(f's_cbranch_scc1 L_pad{tag}')
    def stamp(k, lvl=1):
        if o.padto and lvl == 1 and o.padev == f'{role[0]}{k}':
            e('s_memrealtime s[100:101]'); e('s_waitcnt lgkmcnt(0)')
        if o.diag == lvl or (o.diag == 4 and lvl == 1): e(f's_memrealtime s[{ST0+2*k}:{ST0+2*k+1}]')
    def dump(nst):
        e('s_waitcnt lgkmcnt(0)')
        e('v_mov_b32 v250, 0')
        for k in range(nst): e(f'v_writelane_b32 v250, s{ST0+2*k}, {k}')
        e(f'v_writelane_b32 v250, s{NPOLL}, 13')
        e(f'v_writelane_b32 v250, s95, 12')
        e(f'v_writelane_b32 v250, s{3 if o.rmap else 2}, 14')
        e('s_getreg_b32 s46, hwreg(HW_REG_XCC_ID)')
        e('v_writelane_b32 v250, s46, 15')
        e(f's_lshl_b32 s46, s2, 3'); e(f's_add_u32 s46, s46, s{WAVE}'); e('s_lshl_b32 s46, s46, 6'); e(f's_add_u32 s46, s46, {DIAG}')
        e('v_lshl_add_u32 v251, v1, 2, s46')
        e('s_mov_b64 exec, 0xffff')
        e(f'buffer_store_dword v250, v251, {sr(S_WS)}, 0 offen')
        e('s_mov_b64 exec, -1')

    e('.amdgcn_target "amdgcn-amd-amdhsa--gfx950"')
    e('.text')
    e(f'.globl {KN}')
    e('.p2align 8')
    e(f'.type {KN},@function')
    e(f'{KN}:')
    e(f's_cmp_ge_u32 s2, {NWG}')
    e('s_cbranch_scc1 L_end')
    stamp(0)
    if o.padto and o.padev != 'm0': e('s_memrealtime s[100:101]')
    e('s_load_dwordx4 s[4:7], s[0:1], 0')
    e('s_load_dwordx4 s[8:11], s[0:1], 16')
    e('s_load_dwordx2 s[12:13], s[0:1], 32')
    e('v_lshrrev_b32 v2, 6, v0')
    e('v_and_b32 v1, 63, v0')
    e(f'v_readfirstlane_b32 s{WAVE}, v2')
    def decode():
        e('s_and_b32 s44, s2, 7')
        e('s_lshr_b32 s45, s2, 3')
        e('s_mul_i32 s46, s44, 31')
        e('s_min_u32 s44, s44, 4')
        e('s_add_u32 s46, s46, s44')
        e('s_add_u32 s46, s46, s45')
        if o.map == 0:
            e('s_mul_hi_u32 s47, s46, 68174085')
            e('s_mul_i32 s48, s47, 63')
            e('s_sub_u32 s48, s46, s48')
            e(f's_mul_hi_u32 s{NB}, s48, 613566757')
            e(f's_mul_i32 s49, s{NB}, 7')
            e('s_sub_u32 s49, s48, s49')
            e('s_mul_i32 s47, s47, 7')
            e('s_add_u32 s47, s47, s49')
        elif o.map == 1:
            e('s_mul_hi_u32 s47, s46, 477218589')
            e('s_mul_i32 s48, s47, 9')
            e(f's_sub_u32 s{NB}, s46, s48')
        else:
            e('s_mul_hi_u32 s47, s46, 34087043')
            e('s_mul_i32 s48, s47, 126')
            e('s_sub_u32 s48, s46, s48')
            e(f's_mul_hi_u32 s{NB}, s48, 306783379')
            e(f's_mul_i32 s49, s{NB}, 14')
            e('s_sub_u32 s49, s48, s49')
            e('s_mul_i32 s47, s47, 14')
            e('s_add_u32 s47, s47, s49')
        e(f's_and_b32 s{PAR}, s47, 1')
        e('s_lshr_b32 s47, s47, 1')
        e('s_cmp_ge_u32 s47, 7')
        e(f's_cselect_b32 s{BOFF}, 1152000, 0')
        e('s_cselect_b32 s48, 7, 0')
        e(f's_sub_u32 s{MB}, s47, s48')
        e(f's_mul_i32 s{XB}, s{MB}, 576')
        e(f's_add_u32 s{XB}, s{XB}, s{PAR}')
        e(f's_sub_u32 s{XB}, s{XB}, 60')
        e(f's_mul_i32 s{XB}, s{XB}, 288')
    RID = 3 if o.rmap else 2
    if o.rmap:
        e('s_and_b32 s44, s2, 3')
        e('s_lshr_b32 s45, s2, 3')
        e('s_lshl2_add_u32 s3, s45, s44')
        e('s_and_b32 s44, s2, 4')
        e('s_lshl_b32 s44, s44, 5')
        e('s_add_u32 s3, s3, s44')
    e(f's_cmp_ge_u32 s{WAVE}, 4')
    e('s_cbranch_scc1 L_helper')
    if o.cpf:
        e('s_lshr_b32 s44, s2, 3')
        e(f's_lshl_b32 s45, s{WAVE}, 5')
        e('s_add_u32 s44, s44, s45')
        e('s_sub_u32 s44, s44, 26')
        e('s_cmp_ge_u32 s44, 5')
        e('s_cbranch_scc1 L_main')
        e('s_getpc_b64 s[46:47]')
        e('L_pc:')
        e('s_lshl_b32 s44, s44, 13')
        e('v_lshl_add_u32 v2, v1, 7, s44')
        e('v_min_u32 v2, L_codeend-L_pc-4, v2')
        e('global_load_dword v63, v2, s[46:47]')
    if o.hfirst: e('s_branch L_main')
    mark = {'main0': len(e.L)}
    e('L_main:')
    e(f's_mov_b32 s{MASK}, 0xffff0000')
    e(f's_mov_b32 s{NPOLL}, 0')
    if o.diag: e('s_mov_b32 s95, 0')
    decode()

    VXO, VXOR, VXD, VXDR, VWL, VEX, VEXP, VOUT = 30, 31, 32, 33, 34, 35, 36, 37
    VF = 40
    VA = 48
    VCL = 60
    e('v_mul_u32_u24 v3, 3641, v0')
    e('v_lshrrev_b32 v3, 16, v3')
    e('v_mul_u32_u24 v2, 18, v3')
    e('v_sub_u32 v2, v0, v2')
    e('v_mul_u32_u24 v3, 1152, v3')
    e('v_lshl_add_u32 v3, v2, 4, v3')
    e(f's_add_u32 s46, s{XB}, 576')
    e(f'v_add_u32 v{VA}, s46, v3')
    e('v_mov_b32 v5, 16192')
    e('v_mov_b32 v6, 17056')
    for k in range(1, 12):
        e('v_cmp_le_u32 vcc, 14, v2')
        e('v_add_u32 v3, 4, v2')
        e('v_subrev_u32 v4, 14, v2')
        e('v_cndmask_b32 v7, v5, v6, vcc')
        e('v_cndmask_b32 v2, v3, v4, vcc')
        e(f'v_add_u32 v{VA+k}, v{VA+k-1}, v7')
    e(f's_lshl_b32 s50, s{WAVE}, 10')
    e(f's_add_u32 s50, s50, {X_O}')
    e(f's_add_u32 s51, s50, {4096*11}')
    e('s_movk_i32 s49, 4096')
    if o.orev:
        e(f's_bitcmp0_b32 s{NB}, 0')
        e('s_cbranch_scc1 L_fwd')
        for k in range(5): e(f'v_swap_b32 v{VA+k}, v{VA+10-k}')
        e(f's_add_u32 s50, s50, {4096*10}')
        e('s_movk_i32 s49, -4096')
        e('L_fwd:')
    e(f'v_mov_b32 v{VF+1}, {CNT}')
    for r in range(4, 8): e(f'v_mov_b32 v{r}, 0')
    e(f'ds_write_b128 v{VF+1}, v[4:7]')
    e(f'ds_write_b128 v{VF+1}, v[4:7] offset:16')
    e('s_waitcnt lgkmcnt(0)')
    e(f's_load_dword s{TAG}, s[12:13], {NONCE}')
    srd(e, S_X, 4, 1152000, add=BOFF)
    def odma(k):
        e(f's_mov_b32 m0, s{51 if k == 11 else 50}')
        e('s_add_u32 s50, s50, s49')
        e(f'buffer_load_dwordx4 v{VA+k}, {sr(S_X)}, 0 offen lds')
    def etouch():
        e(f'buffer_load_dword v62, v9, {sr(S_X)}, 0 offen')
    if o.mtouch and o.tskip:
        e(f's_lshr_b32 s47, s{RID}, 4')
        e('s_lshr_b32 s47, 0x33, s47')
        e('s_lshl_b32 s47, s47, 31')
    if o.mtouch:
        e('v_min_u32 v8, 39, v1')
        e('v_lshrrev_b32 v9, 2, v8')
        e(f's_mul_i32 s46, s{WAVE}, 10')
        e('v_add_u32 v9, s46, v9')
        e(f'v_mul_u32_u24 v9, {4*1152}, v9')
        e('v_and_b32 v8, 3, v8')
        e('v_mul_u32_u24 v8, 92, v8')
        e(f's_and_b32 s46, s{NB}, {7 if o.mtouch == 4 else 3}')
        e(f's_mul_i32 s46, s46, {576 if o.mtouch == 4 else 1152}')
        e(f's_add_u32 s46, s46, s{XB}')
        e('v_add3_u32 v9, v9, v8, s46')
        if o.tskip == 1: e('v_or_b32 v9, s47, v9')
    if o.mtouch == 4 and o.tskip == 2:
        e('s_cmp_eq_u32 s47, 0')
        e('s_cbranch_scc1 L_tn')
        e('s_waitcnt lgkmcnt(0)')
        e('L_tn:')
    if o.mtouch in (2, 4): etouch()
    if o.padto and o.padev == 'm13':
        e('s_waitcnt vmcnt(0)'); stamp(13)
    if o.padto and o.padev == 'm14':
        odma(0); e('s_sub_u32 s50, s50, s49'); e('s_waitcnt vmcnt(0)'); stamp(14)
    if o.padto: stamp(10)
    for k in range(o.opre): odma(k)
    e('s_barrier')
    stamp(1)
    jit()
    if o.mtouch == 3: etouch()
    for k in range(o.opre, 12):
        if k == 11:
            e(f's_cmp_lg_u32 s{WAVE}, 0')
            e('s_cbranch_scc1 L_o11')
        odma(k)
    e('L_o11:')
    if o.mtouch == 1: etouch()
    srd(e, S_WS, 12, WS_REC)
    if o.epoll:
        assert o.mtouch in (1, 4) and o.tskip
        e(f's_and_b32 s{TYP}, s{WAVE}, 1')
        e(f's_lshl_b32 s{FO}, s{TYP}, 13')
        e('s_mov_b32 s96, s47')
        e('s_xor_b32 s46, s47, 0x80000000')
        e(f'v_min_u32 v{VF}, 31, v1')
        e(f'v_lshlrev_b32 v{VF}, 7, v{VF}')
        e(f'v_or_b32 v2, s46, v{VF}')
        e(f'buffer_load_dword v{VF+4}, v2, {sr(S_WS)}, s{FO} offen sc1')
    srd(e, S_OUT, 8, 1152000, add=BOFF)
    srd(e, S_DBG, 10, 256)
    e('v_and_b32 v2, 15, v1')
    e('v_lshrrev_b32 v3, 4, v1')
    e('v_subrev_u32 v5, 4, v2')
    e('v_add_u32 v6, 8, v2')
    e('v_cmp_gt_u32 vcc, 4, v2')
    e('v_cmp_le_u32 s[46:47], 12, v2')
    e(f's_and_b32 s{TYP}, s{WAVE}, 1')
    e(f's_lshr_b32 s48, s{WAVE}, 1')
    e('v_cndmask_b32 v5, v5, v6, vcc')
    e('v_cndmask_b32 v5, v5, v2, s[46:47]')
    e('v_mul_u32_u24 v5, 9, v5')
    e('v_mul_u32_u24 v4, 288, v5')
    e('v_lshl_add_u32 v6, v3, 4, v4')
    e('v_and_b32 v7, 1, v3')
    e('v_lshl_add_u32 v7, v7, 4, v4')
    e('v_lshrrev_b32 v8, 1, v3')
    e('v_mul_u32_u24 v8, 2304, v8')
    e('v_add_u32 v7, v7, v8')
    e('v_add_u32 v7, 256, v7')
    e(f's_mul_i32 s49, s{TYP}, {X_D1}')
    e(f'v_add_u32 v{VXO}, {X_O}, v6')
    e(f'v_add_u32 v{VXOR}, {X_O}, v7')
    e(f'v_add_u32 v{VXD}, s49, v6')
    e(f'v_add_u32 v{VXDR}, s49, v7')
    e('v_lshlrev_b32 v6, 4, v1')
    e(f's_mul_i32 s49, s{WAVE}, 9216')
    e(f's_add_u32 s49, s49, {X_O}')
    e(f'v_add_u32 v{VEX}, s49, v6')
    e(f's_xor_b32 s49, s{WAVE}, 1')
    e('s_mul_i32 s49, s49, 9216')
    e(f's_add_u32 s49, s49, {X_O}')
    e(f'v_add_u32 v{VEXP}, s49, v6')
    e('v_and_b32 v8, 0x39, v1')
    e('v_bfe_u32 v9, v1, 1, 1')
    e('v_lshl_add_u32 v8, v9, 2, v8')
    e('v_bfe_u32 v9, v1, 2, 1')
    e('v_lshl_add_u32 v8, v9, 1, v8')
    e(f'v_lshlrev_b32 v{VWL}, 4, v8')
    e(f's_mul_i32 s49, s{TYP}, 576')
    e(f's_add_u32 s49, s49, s{XB}')
    e(f's_add_u32 s49, s49, {60*288}')
    e(f's_lshl_b32 s50, s{NB}, 5')
    e('s_add_u32 s49, s49, s50')
    e('s_lshl_b32 s50, s48, 4')
    e('s_add_u32 s49, s49, s50')
    e('v_mul_u32_u24 v8, 1152, v5')
    e('v_lshl_add_u32 v8, v3, 2, v8')
    e(f'v_add_u32 v{VOUT}, s49, v8')
    e(f'v_add_u32 v{VOUT+1}, 3456, v{VOUT}')
    e(f'v_add_u32 v{VOUT+2}, 6912, v{VOUT}')
    e(f's_lshl_b32 s49, s{NB}, 1')
    e('s_add_u32 s49, s49, s48')
    e(f's_mul_i32 s49, s49, {NSTR}')
    e(f's_mul_i32 s{WSO}, s{TYP}, {NSTEP*1024}')
    e(f's_add_u32 s{WSO}, s{WSO}, s49')
    e(f's_add_u32 s{WSO}, s{WSO}, {WOFF + (16384 if o.tagp else 0)}')
    if o.tagp:
        e(f's_lshl_b32 s96, s{TYP}, 15')
        e('s_add_u32 s96, s96, s49')
        e(f's_add_u32 s96, s96, {WOFF + 2*NSTEP*1024}')
    e(f's_mov_b32 s{C2L}, 0x4038aa3b'); e(f's_mov_b32 s{C2L+1}, 0x4038aa3b')
    e(f's_mov_b32 s{CNL}, 0xbfb8aa3b'); e(f's_mov_b32 s{CNL+1}, 0xbfb8aa3b')
    e(f's_mov_b32 s{C60}, 0x42700000')
    e(f'v_min_u32 v{VF}, 31, v1')
    e(f'v_lshlrev_b32 v{VF}, 7, v{VF}')
    e(f'v_min_u32 v{VF+6}, 47, v1')
    e(f'v_lshlrev_b32 v{VF+6}, 7, v{VF+6}')
    e(f'v_mov_b32 v{VF+2}, 1')
    e('s_lshl_b32 s46, s48, 2')
    e(f'v_add_u32 v{VF+5}, s46, v{VF+1}')
    e(f's_or_b32 s46, s2, s{WAVE}')
    e('v_or_b32 v2, s46, v1')
    e('v_cmp_eq_u32 vcc, 0, v2')
    e(f'v_mov_b32 v{VCL}, -16')
    e(f'v_mov_b32 v{VCL+1}, -16')
    e(f'v_mov_b32 v3, {NONCE}')
    e(f'v_cndmask_b32 v{VCL}, v{VCL}, 4, vcc')
    e(f'v_cndmask_b32 v{VCL+1}, v{VCL+1}, v3, vcc')
    if o.yall:
        e(f's_lshr_b32 s46, s{NB}, 1')
        e(f's_add_u32 s47, s{NB}, 9')
        e('s_lshr_b32 s47, s47, 1')
        e('v_mov_b32 v4, s46')
        e('v_mov_b32 v5, s47')
        e('v_cmp_gt_u32 vcc, 32, v1')
        e('v_and_b32 v2, 7, v1')
        e('v_and_b32 v3, 15, v1')
        e('v_cndmask_b32 v4, v5, v4, vcc')
        e('v_min_u32 v3, 11, v3')
        e('v_mad_u32_u24 v2, v2, 9, v4')
        e('v_mad_u32_u24 v3, v3, 9, v4')
        e('v_lshlrev_b32 v2, 7, v2')
        e('v_lshlrev_b32 v3, 7, v3')
    e(f's_lshl_b32 s{FO}, s{TYP}, 13')
    if o.warmb:
        e(f's_cmp_eq_u32 s{TYP}, 1')
        e('s_cbranch_scc1 L_warmB')
        e('L_warmret:')
    e(f's_waitcnt vmcnt({(1 if o.mtouch == 1 else 0) + o.epoll}) lgkmcnt(0)')
    stamp(2)
    if o.padto and o.padev in ('m11', 'm12'):
        e(f's_lshr_b32 s46, s{RID}, 4')
        e('s_lshr_b32 s46, 0x33, s46')
        e('s_bitcmp1_b32 s46, 0')
        e(f's_cbranch_scc{1 if o.padev == "m11" else 0} L_pk')
        e('s_memrealtime s[100:101]'); e('s_waitcnt lgkmcnt(0)')
        e('L_pk:')
    e('s_mov_b64 exec, 1')
    e(f'ds_add_u32 v{VF+1}, v{VF+2} offset:8')
    e('s_mov_b64 exec, -1')
    e(f's_add_u32 s{TAG}, s{TAG}, {TAGINC}')
    e(f'v_mov_b32 v{VF+3}, s{TAG}')
    def flagwait(tag, vaddr, back):
        e(f'L_fw{tag}:')
        if o.diag and len(tag) == 2: e(f's_add_u32 s95, s95, {1 << (4 * int(tag[1]))}')
        e(f'buffer_load_dword v{VF+4}, v{vaddr}, {sr(S_WS)}, s{FO} offen sc1')
        e(f'ds_read_b32 v{VF+7}, v{VF+1} offset:12')
        e(f's_add_u32 s{NPOLL}, s{NPOLL}, 1')
        e('s_waitcnt vmcnt(0) lgkmcnt(0)')
        e(f'v_cmp_ne_u32 vcc, v{VF+3}, v{VF+4}')
        e(f'v_readfirstlane_b32 s46, v{VF+7}')
        e('s_nop 3')
        e(f's_cbranch_vccz {back}')
        e('s_cmp_lg_u32 s46, 0')
        e(f's_cbranch_scc1 {back}')
        e(f's_cmp_lg_u32 s{NPOLL}, {o.maxpoll}')
        e(f's_cbranch_scc1 L_fw{tag}')
        e(f'v_mov_b32 v{VF+7}, 0x10000')
        e('s_mov_b64 exec, 1')
        e(f'ds_add_u32 v{VF+1}, v{VF+7} offset:4')
        e('s_mov_b64 exec, -1')
        e(f's_branch L_fw{tag}')
    if o.epoll:
        e('s_cmp_eq_u32 s96, 0')
        e('s_cbranch_scc1 L_gate')
        e('s_waitcnt vmcnt(0)')
        e(f'v_cmp_ne_u32 vcc, v{VF+3}, v{VF+4}')
        e('s_nop 4')
        e('s_cbranch_vccz L_go')
    if o.gate:
        e('L_gate:')
        e(f'ds_read_b32 v{VF+4}, v{VF+1} offset:8')
        e('s_waitcnt lgkmcnt(0)')
        e(f'v_and_b32 v{VF+4}, 0xffff, v{VF+4}')
        e(f'v_cmp_gt_u32 vcc, 0x400, v{VF+4}')
        e('s_nop 4')
        e('s_cbranch_vccz L_gate2')
        e('s_sleep 1')
        e('s_branch L_gate')
        e('L_gate2:')
    if o.ppoll:
        e(f'buffer_load_dword v{VF+4}, v{VF}, {sr(S_WS)}, s{FO} offen sc1')
        e('L_pp:')
        for a_, b_ in ((VF + 4, 62), (62, VF + 4)):
            e(f's_sleep {o.ppoll}')
            e(f'buffer_load_dword v{b_}, v{VF}, {sr(S_WS)}, s{FO} offen sc1')
            e('s_waitcnt vmcnt(1)')
            e(f'v_cmp_ne_u32 vcc, v{VF+3}, v{a_}')
            e(f's_add_u32 s{NPOLL}, s{NPOLL}, 1')
            e('s_nop 3')
            e('s_cbranch_vccz L_go')
        e(f's_cmp_lt_u32 s{NPOLL}, 40')
        e('s_cbranch_scc1 L_pp')
        e(f's_mov_b32 s{NPOLL}, 0')
    if o.p0plain:
        e(f'buffer_load_dword v{VF+4}, v{VF}, {sr(S_WS)}, s{FO} offen')
        e('s_waitcnt vmcnt(0)')
        e(f'v_cmp_ne_u32 vcc, v{VF+3}, v{VF+4}')
        e('s_nop 4')
        e('s_cbranch_vccz L_go')
    if o.onepoll:
        e(f's_cmp_lt_u32 s{WAVE}, 2')
        e('s_cbranch_scc1 L_fw0')
        e('L_op:')
        e(f'ds_read_b32 v{VF+7}, v{VF+1} offset:8')
        e('s_waitcnt lgkmcnt(0)')
        e(f's_add_u32 s46, s{TYP}, 16')
        e(f'v_lshrrev_b32 v{VF+7}, s46, v{VF+7}')
        e(f'v_and_b32 v{VF+7}, 1, v{VF+7}')
        e(f'v_cmp_eq_u32 vcc, 0, v{VF+7}')
        e('s_nop 4')
        e('s_cbranch_vccnz L_op')
        e('s_branch L_go2')
    if not o.tagp: flagwait('0', VF, 'L_go')
    e('L_go:')
    jit()
    if o.tagp: e('s_mov_b32 s50, s96')
    if o.onepoll:
        e(f's_lshl_b32 s46, 0x10000, s{TYP}')
        e(f'v_mov_b32 v{VF+7}, s46')
        e('s_mov_b64 exec, 1')
        e(f'ds_or_b32 v{VF+1}, v{VF+7} offset:8')
        e('s_mov_b64 exec, -1')
        e('L_go2:')
    stamp(3)
    e('L_gw:')
    e(f'ds_read_b32 v{VF+7}, v{VF+1} offset:8')
    e('s_waitcnt lgkmcnt(0)')
    e(f'v_and_b32 v{VF+7}, 0xff, v{VF+7}')
    e(f'v_cmp_ne_u32 vcc, 4, v{VF+7}')
    e('s_nop 4')
    e('s_cbranch_vccnz L_gw')
    stamp(4)
    e(f's_setprio {o.mprio}')
    e(f's_cmp_eq_u32 s{TYP}, 1')
    e('s_cbranch_scc1 L_typeB')

    ACC = {'P': 64, 'Q': 100}
    WR, TMP = 136, 224
    XRING = [200 + 4 * i for i in range(6)]
    XWIN = [4 + 4 * i for i in range(6)] + [240 + 4 * i for i in range(4)]
    VC = 28
    PF = o.pf
    GT = 98
    wflags = {0: '', 1: ' sc1', 2: ' nt', 3: ' sc0'}[o.wsc1]
    for typ, S in enumerate(streams()):
        if typ == 1:
            e('.p2align 6')
            if o.warmb: e('L_warmB:'); e('s_branch L_warmret')
            e('L_typeB:')
        ops = []
        vstart = {}
        lastv = o.vt - 1
        v0 = 0
        G0 = 0
        if o.flat0:
            for g in range(16):
                vstart[g] = len(ops)
                for j in (range(9) if g % 2 == 0 or not o.flatzz else range(8, -1, -1)): ops.append((g, j))
            v0 = G0 = 16
        while v0 <= lastv:
            ch = 1 if v0 < o.chfrom + G0 else min(o.chain, lastv + 1 - v0)
            n0 = len(ops)
            for j in range(8, -1, -1):
                us = range(ch) if j % 2 == 0 else range(ch - 1, -1, -1)
                first_ = [u for u in us if v0 + u - j == 0 or (0 < v0 + u - j < NSTEP and S[v0+u-j][4] == 'Q' and S[v0+u-j-1][4] == 'P')]
                if first_: us = range(ch)
                for u in us:
                    if G0 <= v0 + u - j < NSTEP: ops.append((v0 + u - j, j))
            for u in range(ch): vstart[v0 + u] = n0 + (len(ops) - n0) * u // ch
            v0 += ch
        ntail = len(ops)
        if o.tail:
            for j in range(9):
                for g in range(o.vt - j, NSTEP): ops.append((g, j))
        assert len(ops) == NSTEP * 9 and len(set(ops)) == len(ops)
        N = len(ops)
        def key(n):
            g, j = ops[n]
            pid, arr, ch, c, acc = S[g]
            k = (pid, arr, ch, c + j)
            if n >= ntail and g < GT: k = k + ((n,) if not o.hold else ('h',))
            return k
        first, last = {}, {}
        for n in range(N):
            first.setdefault(key(n), n); last[key(n)] = n
        wfirst, wlast = {}, {}
        for n, (g, j) in enumerate(ops):
            wfirst.setdefault(g, n); wlast[g] = n
        tasks = []
        for k, n0 in first.items():
            win = o.tail and k[2] == 'rem' and k[1] == 'D'
            la = o.xla if n0 < ntail else 6
            if n0 >= ntail and ops[n0][1] == 0: la = o.tla
            elif win: la = 12
            tasks.append([n0 - la, n0 - 1, 'X', k])
        for g in range(NSTEP):
            rel = -100 + g if g < o.pf0 else max(0, wfirst[g] - 9 * PF)
            if o.tagp and g < 16:
                rel = -100 + g if g < 4 else max(0, wfirst[g] - 9 * o.tpf)
                tasks.append([rel, wfirst[g & ~1] - 9, 'W', g])
                continue
            tasks.append([rel, wfirst[g] - 1, 'W', g])
        def at(v, off=0): return vstart[v] + off
        firstD = min(n for n in range(N) if S[ops[n][0]][1] == 'D')
        lastO = max(n for n in range(N) if S[ops[n][0]][1] == 'O')
        lastP = {j: max(n for n in range(N) if ops[n][1] == j and S[ops[n][0]][4] == 'P') for j in range(9)}
        slow = []
        vused = set()
        def check(v, off, cnt, tag):
            tasks.append([at(v - 1, 3), at(v - 1, 8), 'L', (f'ds_read_b32 v{VC}, v{VF+1} offset:{off}', ('c', tag))])
            tasks.append([at(v, 0), at(v, 1), 'C', (f'v_cmp_ne_u32 vcc, {cnt}, v{VC}', ('c', tag))])
            tasks.append([at(v, 6), at(v, 7), 'I', [f's_cbranch_vccnz L_slow{typ}{tag}', f'L_back{typ}{tag}:']])
            slow.append((tag, off, cnt))
            vused.add(v)
            return at(v, 8)
        def add1(pos, off):
            tasks.append([pos, pos + 4, 'A', off])
        vD = [v for v in vstart if vstart[v] <= firstD - o.xla][-1] - 1
        okD = check(vD, 16, 4, 'D')
        assert okD <= firstD - o.xla
        add1(lastO, 20)
        VP = 47
        okR = check(VP, 20, 4, 'R')
        for j in range(9):
            assert lastP[j] + 12 < at(VP + 1 + j, 2)
            tasks.append([at(VP + 1 + j, 2), at(VP + 1 + j, 8), 'L', (f'ds_write_b128 v{VEX}, {vr(ACC["P"]+4*j,4)} offset:{1024*j}', ('pw', j))])
        tasks.append([at(VP + 10, 0), at(VP + 10, 4), 'A', 'pair'])
        VQ = VP + 13
        okP = check(VQ, 'pair', 2, 'P')
        for j in range(9):
            tasks.append([at(VQ + 1 + j, 2), at(VQ + 1 + j, 8), 'L', (f'ds_read_b128 {vr(TMP+4*(j&1),4)}, v{VEXP} offset:{1024*j}', ('pr', j))])
            v = VQ + 2 + j
            pos = at(v, 8 - (j + 2) - 1) if j <= 6 else at(v, 8 - (j - 7) - 1)
            sh = 1 if j >= 7 else 0
            if o.chain > 1:
                own = [n for n in range(N) if ops[n][1] == j]
                pos = [a_ + 10 for a_, b_ in zip(own, own[1:]) if b_ - a_ >= 14 and a_ + 9 >= at(v, 0) ][0]
                sh = 0
                tasks[-1][0] = pos - 9; tasks[-1][1] = pos - 4
                tasks[-1][3] = (f'ds_read_b128 {vr(TMP+4*(j&3),4)}, v{VEXP} offset:{1024*j}', ('pr', j))
            tasks.append([pos - 1 + sh, pos - 1 + sh, 'Q', (j, 0)])
            tasks.append([pos + sh, pos + sh, 'Q', (j, 1)])
        if typ == 0:
            tasks.append([at(64, 4), at(64, 8), 'S', f'buffer_store_dword v{VCL+1}, v{VCL}, {sr(S_DBG)}, 0 offen sc1'])
            tasks.append([at(84, 4), at(84, 8), 'S', f'buffer_store_dword v{VF+3}, v{VCL+1}, {sr(S_WS)}, 0 offen sc1'])
        fslow = []
        kslow = []
        if o.tagp:
            for g in range(0, 16, 2):
                n0 = wfirst[g]
                if g < 4: continue
                tasks.append([n0 - 8, n0 - 7, 'K', g])
                tasks.append([n0 - 2, n0 - 1, 'I', ['s_cmp_lg_u64 s[48:49], 0', f's_cbranch_scc1 L_ks{typ}{g}', f'L_kb{typ}{g}:']])
        passes = {}
        for g in range(NSTEP): passes.setdefault(S[g][0], g)
        need = [(passes[1], VF, 32 + 64 * typ), (32, VF + 6, 128), (passes[4], VF, 176), (passes[5], VF, 208), (passes[6], VF + 6, 240)]
        if o.c2split:
            need[1:2] = [(32, VF, 112), (passes[3], VF, 144)]
            o.pfcs6 = [o.pfcs[0], 10] + o.pfcs[1:]; o.fleads6 = [o.fleads[0], 8] + o.fleads[1:]
        else:
            o.pfcs6 = o.pfcs; o.fleads6 = o.fleads
        if o.yall: need[2:] = [(passes[4], 2, 176), (passes[5], 2, 176 + 72), (passes[6], 3, 176 + 144)]
        lastG = -1
        for ci, (gn, va, idx) in enumerate(need):
            v = gn - o.pfcs6[ci] - 1
            while v in vused: v -= 1
            tasks.append([at(v - o.fleads6[ci], 4), at(v - o.fleads6[ci], 8), 'F', (va, idx, ci)])
            tasks.append([at(v, 0), at(v, 1), 'G', ci])
            tasks.append([at(v, 6), at(v, 7), 'I', [f's_cbranch_vccnz L_fw{typ}{ci}', f'L_fb{typ}{ci}:']])
            fslow.append((ci, va))
            assert v not in vused, v
            vused.add(v)
            assert at(v - o.fleads6[ci], 4) > lastG, (ci, v)
            lastG = at(v, 7)
            for t in tasks:
                if t[2] == 'W' and (t[3] >= gn): t[0] = max(t[0], at(v, 8))
        tasks.append([at(v + 1, 2), at(v + 1, 8), 'A', 4])
        if typ == 0:
            for lvl, v in enumerate(o.trig): tasks.append([at(v, 2), at(v, 8), 'P', lvl + 1])
            if o.wbat: tasks.append([ntail + o.wbat, ntail + o.wbat + 6, 'P', 4])
        tasks.sort(key=lambda t: (t[0], t[1]))
        vq, lq = [], []
        dirty = [False]
        xreg, busy = {}, {}
        wn = [0]
        wr = {}
        lastw = [-100]
        later = []
        BIG = [WR + 4 * i for i in range(16)] + XWIN + [ACC['P'] + 4 * i for i in range(9)]
        for i in range(9): busy[ACC['P'] + 4 * i] = at(VP + 12)
        until = {}
        if o.chain > 1:
            BIG += XRING + [VA, VA + 4, VA + 8]
            for i in range(9):
                BIG.append(ACC['Q'] + 4 * i)
                until[ACC['Q'] + 4 * i] = min(n for n in range(N) if ops[n][1] == i and S[ops[n][0]][4] == 'Q') - 3
        def freeregs(n, end): return [x for x in BIG if busy.get(x, -1) <= n and end < until.get(x, 10**9)]
        def freepairs(n, end):
            f_ = set(freeregs(n, end))
            return [x for x in sorted(f_) if x % 8 == PAR8.get(x, -1) and x + 4 in f_]
        PAR8 = {x: x % 8 for x in list(range(WR, WR + 64, 8)) + [4, 12, 20, 240, 248, 200, 208, 216, 100, 108, 116, 124, VA]}
        def kcheck(g):
            vwait(g + 1)
            for i, gg in enumerate((g, g + 1)):
                a_ = wr[gg] - 2
                em(f'v_bitop3_b32 v{VC+i}, v{a_+1}, v{a_+6}, v{VF+3} bitop3:0x7e')
            em(f'v_or_b32 v{VC}, v{VC}, v{VC+1}')
            em(f'v_cmp_ne_u32 s[48:49], 0, v{VC}')
            kslow.append((g, wr[g] - 2, wr[g + 1] - 2))
        def wok(t, n):
            if t[2] != 'W': return True
            if t[3] != wn[0]: return False
            if o.tagp and t[3] < 16:
                return bool(freepairs(n, wlast[t[3]])) and (n - lastw[0] >= 2 or t[1] - n <= 4)
            free = len(freeregs(n, wlast[t[3]]))
            if t[1] - n <= 9 * 3: return free > 0
            return n - lastw[0] >= o.wgap and free > o.wres
        since = {}
        fill = []
        def em(x):
            e(x)
            if not x.endswith(':'):
                for jj in since: since[jj] += 1
        def lwait(tag):
            if tag not in lq: return
            i = lq.index(tag)
            em(f's_waitcnt lgkmcnt({0 if dirty[0] else len(lq)-1-i})')
            if dirty[0]: lq.clear(); dirty[0] = False
            else: del lq[:i + 1]
        def vwait(g):
            if g not in vq: return
            i = vq.index(g)
            em(f's_waitcnt vmcnt({len(vq)-1-i})')
            del vq[:i + 1]
        def run(t, n):
            kind, p = t[2], t[3]
            if kind == 'X':
                pool = BIG if (o.chain > 1 or p[-1] == 'h' or (p[2] == 'rem' and p[1] == 'D')) else XRING
                r = [x for x in pool if busy.get(x, -1) <= n and last[p] < until.get(x, 10**9)]
                assert r, ('no x register', p, n)
                r = min(r, key=lambda x: (until.get(x, 10**9), busy.get(x, -1)))
                busy[r] = last[p]; xreg[p] = r
                arr, ch, s_ = p[1], p[2], p[3]
                if o.nolds and n > 9 * 30: return
                if ch == 'rem': em(f'ds_read_b128 {vr(r,4)}, v{VXOR if arr == "O" else VXDR} offset:{288*s_}')
                else: em(f'ds_read_b128 {vr(r,4)}, v{VXO if arr == "O" else VXD} offset:{64*ch+288*s_}')
                lq.append(p)
            elif kind == 'W':
                g = p
                if o.tagp and g < 16:
                    r = min(freepairs(n, wlast[g]), key=lambda x: (until.get(x, 10**9), busy.get(x, -1)))
                    busy[r] = busy[r + 4] = wlast[g]; wr[g] = r + 2
                    assert g == wn[0]; wn[0] += 1
                    lastw[0] = n
                    em(f'buffer_load_dwordx4 {vr(r,4)}, v{VWL}, {sr(S_WS)}, s50 offen offset:{2048*(g%2)}')
                    em(f'buffer_load_dwordx4 {vr(r+4,4)}, v{VWL}, {sr(S_WS)}, s50 offen offset:{2048*(g%2)+1024}')
                    vq.append(('h', g)); vq.append(g)
                    if g % 2 == 1:
                        if n < 0: em('s_add_u32 s50, s50, 4096')
                        else: later.append('s_add_u32 s50, s50, 4096')
                    return
                r = min(freeregs(n, wlast[g]), key=lambda x: (until.get(x, 10**9), busy.get(x, -1)))
                busy[r] = wlast[g]; wr[g] = r
                assert g == wn[0]; wn[0] += 1
                lastw[0] = n
                if o.now and g > 40: return
                if o.wsame and g > 40:
                    em(f'buffer_load_dwordx4 {vr(r,4)}, v{VWL}, {sr(S_WS)}, s{WSO} offen offset:{1024*(g%4)}{wflags}'); vq.append(g); return
                em(f'buffer_load_dwordx4 {vr(r,4)}, v{VWL}, {sr(S_WS)}, s{WSO} offen offset:{1024*(g%4)}{wflags}')
                if g % 4 == 3:
                    if n < 0: em(f's_add_u32 s{WSO}, s{WSO}, 4096')
                    else: later.append(f's_add_u32 s{WSO}, s{WSO}, 4096')
                vq.append(g)
            elif kind == 'L':
                em(p[0].replace('offset:pair', 'offset:24').replace(f'v{VF+1} offset:24', f'v{VF+5} offset:24')); lq.append(p[1])
            elif kind == 'C':
                lwait(p[1]); em(p[0])
            elif kind == 'I':
                for x in p: em(x)
            elif kind == 'A':
                em('s_mov_b64 exec, 1')
                if p == 'pair': em(f'ds_add_u32 v{VF+5}, v{VF+2} offset:24')
                else: em(f'ds_add_u32 v{VF+1}, v{VF+2} offset:{p}')
                em('s_mov_b64 exec, -1')
                lq.append(('a', p))
            elif kind == 'Q':
                p, hf = p
                lwait(('pr', p))
                q = ACC['Q'] + 4 * p; t_ = TMP + 4 * (p & (3 if o.chain > 1 else 1))
                for i in (2 * hf, 2 * hf + 1): em(f'v_add_f32 v{q+i}, v{q+i}, v{t_+i}')
            elif kind == 'S':
                assert not any(isinstance(x, tuple) and x[0] == 's' for x in vq)
                em(p); vq.append(('s', n))
            elif kind == 'F':
                em(f's_mov_b32 s{FO}, {128*p[1]}')
                em(f'buffer_load_dword v{VF+4}, v{p[0]}, {sr(S_WS)}, s{FO} offen {o.fflags}'); vq.append(('f', p[2]))
            elif kind == 'K':
                kcheck(p)
            elif kind == 'G':
                vwait(('f', p)); em(f'v_cmp_ne_u32 vcc, v{VF+3}, v{VF+4}')
            elif kind == 'P':
                em(f'v_mov_b32 v{VF+7}, {p}')
                em('s_mov_b64 exec, 1')
                em(f'ds_max_u32 v{VF+1}, v{VF+7}')
                em('s_mov_b64 exec, -1')
                lq.append(('p', p))
        def epi(j, pk):
            q = ACC['Q'] + 4 * j
            t = TMP + 8 * (j & 1)
            I = []
            if pk:
                I.append(f'v_pk_mul_f32 {vr(t,2)}, {vr(q,2)}, s[{C2L}:{C2L+1}]')
                I.append(f'v_pk_mul_f32 {vr(t+2,2)}, {vr(q+2,2)}, s[{CNL}:{CNL+1}]')
            else:
                for i in (0, 1): I.append(f'v_mul_f32 v{t+i}, s{C2L}, v{q+i}')
                for i in (2, 3): I.append(f'v_mul_f32 v{t+i}, s{CNL}, v{q+i}')
            I.append(f'v_min_f32 v{t}, s{C60}, v{t}')
            I.append(f'v_min_f32 v{t+1}, s{C60}, v{t+1}')
            for i in (0, 1, 2, 3): I.append(f'v_exp_f32 v{t+i}, v{t+i}')
            if pk:
                I.append(f'v_pk_add_f32 {vr(t+4,2)}, {vr(t,2)}, 1.0 op_sel_hi:[1,0]')
                I.append(f'v_pk_add_f32 {vr(t+6,2)}, {vr(t,2)}, -1.0 op_sel_hi:[1,0]')
                I.append(f'v_pk_fma_f32 {vr(t+4,2)}, {vr(t+4,2)}, {vr(t+2,2)}, {vr(t+4,2)}')
            else:
                for i in (0, 1): I.append(f'v_add_f32 v{t+4+i}, 1.0, v{t+i}')
                for i in (0, 1): I.append(f'v_fma_f32 v{t+4+i}, v{t+4+i}, v{t+2+i}, v{t+4+i}')
            I.append(f'v_rcp_f32 v{t+4}, v{t+4}')
            I.append(f'v_rcp_f32 v{t+5}, v{t+5}')
            if pk:
                I.append('s_nop 0')
                I.append(f'v_pk_mul_f32 {vr(t+6,2)}, {vr(t+6,2)}, {vr(t+4,2)}')
            else:
                for i in (0, 1): I.append(f'v_add_f32 v{t+6+i}, -1.0, v{t+i}')
                for i in (0, 1): I.append(f'v_mul_f32 v{t+6+i}, v{t+6+i}, v{t+4+i}')
            I.append(f'v_cvt_pk_bf16_f32 v{q}, v{t+6}, v{t+7}')
            I.append(f'buffer_store_dword v{q}, v{VOUT + j//3}, {sr(S_OUT)}, 0 offen offset:{1152*(j%3)} {o.oflags if j < o.oj else ""}')
            return I
        def cost(x): return 2 if x.startswith(('v_exp', 'v_rcp', 'buffer')) else 1
        while tasks and tasks[0][0] < 0: run(tasks.pop(0), -1)
        if o.tagp:
            for g in (0, 2):
                vwait(g + 1)
                for gg in (g + 4, g + 5):
                    t_ = [t for t in tasks if t[2] == 'W' and t[3] == gg][0]
                    tasks.remove(t_); run(t_, -1)
                kcheck(g)
                em('s_nop 2')
                em('s_cmp_lg_u64 s[48:49], 0')
                em(f's_cbranch_scc1 L_ks{typ}{g}')
                em(f'L_kb{typ}{g}:')
        inv = {n: v for v, n in vstart.items()}
        lastop = {j: max(n for n in range(N) if ops[n][1] == j) for j in range(9)}
        for n, (g, j) in enumerate(ops):
            if n in inv and o.padto and o.padev == 'm5' and inv[n] == o.padstep:
                e(f's_sub_u32 s98, s2, {o.padlo}')
                e(f's_cmp_ge_u32 s98, {o.padhi - o.padlo}')
                e(f's_cbranch_scc1 L_pr{typ}')
                e('s_memrealtime s[100:101]'); dirty[0] = True
                e(f'L_pr{typ}:')
            if n in inv and o.diag:
                v = inv[n]
                if o.diag == 2 and v in o.marks:
                    kk = o.marks.index(v)
                    e(f's_memtime s[{ST0+2*kk}:{ST0+2*kk+1}]'); dirty[0] = True
                if o.diag in (1, 4) and v == 33: stamp(5); stamp(6); dirty[0] = True
            if o.jit and n in inv and inv[n] in (20, 36, 44, 52, 60, 70, 90): jit()
            k = key(n)
            assert k in xreg, (k, n)
            lwait(k); vwait(g)
            acc = S[g][4]
            d = ACC[acc] + 4 * j
            if g == 0: cs = '0'
            elif acc == 'Q' and S[g-1][4] == 'P': cs = vr(ACC['P'] + 4 * j, 4)
            else: cs = vr(d, 4)
            em(f'v_mfma_f32_16x16x32_bf16 {vr(d,4)}, {vr(wr[g],4)}, {vr(xreg[k],4)}, {cs}' if not o.swapab else f'v_mfma_f32_16x16x32_bf16 {vr(d,4)}, {vr(xreg[k],4)}, {vr(wr[g],4)}, {cs}')
            if n == lastop[j]: since[j] = 0
            while later: em(later.pop(0))
            budget = 2
            TC = {'X': 1, 'W': 2, 'L': 2, 'C': 1, 'I': 0, 'A': 1, 'Q': 2, 'S': 2, 'F': 2, 'G': 1, 'P': 2, 'K': 2}
            while True:
                ready = [t for t in tasks if t[0] <= n and wok(t, n)]
                if not ready: break
                t = min(ready, key=lambda t: t[1])
                assert t[1] >= n, ('late', t, n)
                if TC[t[2]] > budget and t[1] > n:
                    fit = [u for u in ready if TC[u[2]] <= budget]
                    if not fit: break
                    t = min(fit, key=lambda t: t[1])
                tasks.remove(t); run(t, n); budget -= TC[t[2]]
            for jj in sorted(since):
                if 8 <= since[jj] < 10**6:
                    fill += epi(jj, False); since[jj] = 10**6
            budget += o.nfill - 2
            while fill and budget >= cost(fill[0]):
                budget -= cost(fill[0])
                if fill[0].startswith('buffer_store'):
                    q_ = int(re.match(r'buffer_store_dword v(\d+)', fill[0]).group(1))
                    until.pop(q_, None); busy[q_] = n + 2
                em(fill.pop(0))
            assert all(t[1] > n for t in tasks), ('late', n, [t for t in tasks if t[1] <= n])
        assert not tasks
        stamp(7)
        while fill: em(fill.pop(0))
        for jj in [jj for jj in sorted(since) if since[jj] < 10**6]:
            if since[jj] < 8: em(f's_nop {8-since[jj]-1}')
            for x in epi(jj, True): em(x)
        stamp(8)
        if o.padto and o.padev[0] == 'm': padloop(typ)
        if o.diag == 1:
            e('s_waitcnt vmcnt(0)')
            stamp(9)
            dump(10)
        if o.diag == 2:
            kk = len(o.marks)
            e(f's_memtime s[{ST0+2*kk}:{ST0+2*kk+1}]')
            dump(10)
        e('s_endpgm')
        for tag, off, cnt in slow:
            e(f'L_slow{typ}{tag}:')
            e(f'ds_read_b32 v{VC}, v{VF+5 if off == "pair" else VF+1} offset:{24 if off == "pair" else off}')
            e('s_waitcnt lgkmcnt(0)')
            e(f'v_cmp_ne_u32 vcc, {cnt}, v{VC}')
            e('s_nop 4')
            e(f's_cbranch_vccnz L_slow{typ}{tag}')
            e(f's_branch L_back{typ}{tag}')
        for ci, va in fslow: flagwait(f'{typ}{ci}', va, f'L_fb{typ}{ci}')
        for g, a0_, a1_ in kslow:
            e(f'L_ks{typ}{g}:')
            if o.diag: e(f's_add_u32 s95, s95, {1 << 24}')
            e(f'ds_read_b32 v{VF+7}, v{VF+1} offset:12')
            e(f's_add_u32 s47, s96, {2048*g}')
            e('s_waitcnt lgkmcnt(0)')
            for i, a_ in enumerate((a0_, a0_ + 4, a1_, a1_ + 4)):
                e(f'buffer_load_dwordx4 {vr(a_,4)}, v{VWL}, {sr(S_WS)}, s47 offen offset:{1024*i} sc1')
            e(f'v_readfirstlane_b32 s46, v{VF+7}')
            e(f's_add_u32 s{NPOLL}, s{NPOLL}, 1')
            e('s_waitcnt vmcnt(0)')
            e('s_cmp_lg_u32 s46, 0')
            e(f's_cbranch_scc1 L_kb{typ}{g}')
            e(f'v_bitop3_b32 v{VC}, v{a0_+1}, v{a0_+6}, v{VF+3} bitop3:0x7e')
            e(f'v_bitop3_b32 v{VC+1}, v{a1_+1}, v{a1_+6}, v{VF+3} bitop3:0x7e')
            e(f'v_or_b32 v{VC}, v{VC}, v{VC+1}')
            e(f'v_cmp_ne_u32 s[48:49], 0, v{VC}')
            e('s_nop 2')
            e('s_cmp_eq_u64 s[48:49], 0')
            e(f's_cbranch_scc1 L_kb{typ}{g}')
            e(f's_cmp_lg_u32 s{NPOLL}, {o.maxpoll}')
            e(f's_cbranch_scc1 L_ks{typ}{g}')
            e(f'v_mov_b32 v{VF+7}, 0x10000')
            e('s_mov_b64 exec, 1')
            e(f'ds_add_u32 v{VF+1}, v{VF+7} offset:4')
            e('s_mov_b64 exec, -1')
            e(f's_branch L_ks{typ}{g}')

    mark['help0'] = len(e.L)
    if not o.hfirst: e('.p2align 6')
    e('L_helper:')
    role[0] = 'h'
    e(f's_setprio {o.hprio}')
    e(f's_sub_u32 s{TW0}, s{WAVE}, 4')
    e(f's_mov_b32 s{TW1}, s{WAVE}')
    e(f's_sub_u32 s{PAIR}, s{RID}, {NPROD}')
    e(f's_cselect_b32 s{PAIR}, s{RID}, s{PAIR}')
    e(f's_mov_b32 s{MODE}, 0')
    e(f's_mov_b32 s{NOTASK}, s{RID}')
    e(f's_mov_b32 s{HAS3}, s{TW0}')
    e(f's_lshl_b32 s{SCRB}, s{TW0}, 12')
    e(f's_add_u32 s{SCRB}, s{SCRB}, {SCR}')
    e('L_prod:')
    T = [(28, TW0, 2, 52, 0), (36, TW1, 4, 53, 2048), (44, TW2, 6, 54, 16384)]
    c, kp, q, cc, kk, t = 46, 47, 48, 49, 50, 51
    b = TS
    e('v_mov_b32 v19, 4320')
    e('v_and_b32 v23, 3, v1')
    e('v_lshrrev_b32 v24, 2, v1')
    e('v_mul_u32_u24 v24, 288, v24')
    for (vb, sw, vl, vs, so) in T:
        e(f'v_lshl_add_u32 v8, s{sw}, 2, v23' if sw != TW2 else 'v_add_u32 v8, 32, v23')
        e('v_cmp_le_u32 vcc, 18, v8')
        e(f'v_lshl_add_u32 v{vl}, v8, 4, v24')
        e(f'v_add_u32 v9, v{vl}, v19')
        e(f'v_cndmask_b32 v{vl}, v{vl}, v9, vcc')
    e(f's_and_b32 s{c}, s{PAIR}, 15')
    e(f's_lshr_b32 s{kp}, s{PAIR}, 4')
    e(f's_mul_i32 s{b}, s{c}, 165888')
    e(f's_mul_i32 s{t}, s{kp}, 9216')
    e(f's_add_u32 s{b}, s{b}, s{t}')
    e(f's_add_u32 s{b+1}, s{b}, 82944')
    e(f's_mov_b32 s{S_W+2}, 2571264')
    e(f's_mov_b32 s{S_W+3}, 0x20000')
    e(f's_mov_b32 s{S_WO+3}, s{S_W+3}')
    e(f's_cmp_lg_u32 s{c}, 15')
    e(f's_cselect_b32 s{S_WO+2}, s{S_W+2}, 0')
    e(f's_mov_b32 m0, s{SCRB}')
    e('s_waitcnt lgkmcnt(0)')
    e(f's_mov_b32 s{S_W}, s6')
    e(f's_and_b32 s{S_W+1}, s7, 0xffff')
    e(f's_mov_b32 s{S_WO}, s6')
    e(f's_and_b32 s{S_WO+1}, s7, 0xffff')
    e(f's_cmp_ge_u32 s{NOTASK}, {NTASK}')
    e('s_cbranch_scc1 L_a3')
    def cond3(lbl):
        e(f's_cmp_lg_u32 s{HAS3}, 0')
        e(f's_cbranch_scc1 {lbl}')
    for ti, (vb, sw, vl, vs, so) in enumerate(T):
        if ti == 2: cond3('L_a3')
        if ti == 1: e('s_addk_i32 m0, 1024'); e('s_nop 0')
        e(f'buffer_load_dwordx4 v{vl}, {sr(S_W)}, s{b} offen lds')
        e('s_addk_i32 m0, 1024')
        e('s_nop 0')
        e(f'buffer_load_dwordx4 v{vl}, {sr(S_WO)}, s{b+1} offen lds')
        if ti == 1: e(f's_addk_i32 m0, {16384-3072}')
    e('L_a3:')
    stamp(1)
    e(f's_cmp_lg_u32 s{MODE}, 0')
    e('s_cbranch_scc1 L_a4')
    e(f's_load_dword s{TAG}, s[12:13], {NONCE}')
    e(f's_lshr_b32 s{EARLY}, 0x33, s{kp}')
    e(f's_and_b32 s{EARLY}, s{EARLY}, 1')
    e(f's_sub_u32 s{XK}, 2, s{EARLY}')
    e(f's_lshl_b32 s{t}, s{kp}, 1')
    e(f's_lshr_b32 s{YT}, {(3<<12)+(3<<14)+(3<<16)}, s{t}')
    e(f's_and_b32 s{YT}, s{YT}, 3')
    e(f's_lshr_b32 s{t}, s{kp}, 1')
    e(f's_cmp_ge_u32 s{RID}, {NPROD}')
    e(f's_cselect_b32 s{EARLY}, 0, s{EARLY}')
    e(f's_cselect_b32 s{XK}, 3, s{XK}')
    e(f's_cselect_b32 s{YT}, s{t}, s{YT}')
    e(f's_cmp_ge_u32 s{RID}, {NPROD+32}')
    e(f's_cselect_b32 s{XK}, 0, s{XK}')
    e(f's_cmp_ge_u32 s{RID}, {NTASK}')
    e(f's_cselect_b32 s{YT}, 0, s{YT}')
    if not o.b0early:
        e(f's_cmp_lg_u32 s{EARLY}, 0')
        e('s_cbranch_scc1 L_a4')
    e('s_barrier')
    e('L_a4:')
    jit()
    e(f's_mov_b32 s{MASK}, 0xffff0000')
    e(f's_mov_b32 s{NPOLL}, 0')
    srd(e, S_WS, 12, WS_REC)
    srd(e, S_DBG, 10, 256)
    e(f'v_mov_b32 v10, {CNT}')
    e(f'v_mov_b32 v20, {(256 - 18*NSTR) & 0xffffffff}')
    e(f'v_mov_b32 v26, {NSTR}')
    e('v_bfe_u32 v21, v1, 2, 2')
    e('v_lshlrev_b32 v21, 7, v21')
    e('v_and_b32 v22, 1, v1')
    e('v_lshl_add_u32 v21, v22, 6, v21')
    e('v_bfe_u32 v22, v1, 1, 1')
    e('v_lshl_add_u32 v21, v22, 3, v21')
    e('v_lshrrev_b32 v22, 4, v1')
    e('v_lshl_add_u32 v21, v22, 4, v21')
    e(f'v_add_u32 v21, s{SCRB}, v21')
    if o.yall: e('v_mov_b32 v62, v21')
    e('v_and_b32 v25, 15, v1')
    e('v_lshlrev_b32 v25, 4, v25')
    for (vb, sw, vl, vs, so) in T:
        e(f'v_lshl_add_u32 v8, s{sw}, 2, v22' if sw != TW2 else 'v_add_u32 v8, 32, v22')
        e('v_cmp_le_u32 vcc, 18, v8')
        e(f'v_mad_u32_u24 v{vs}, v8, v26, v25')
        e(f'v_add_u32 v9, v{vs}, v20')
        e(f'v_cndmask_b32 v{vs}, v{vs}, v9, vcc')
    if o.tagp:
        e(f's_lshr_b32 s97, 0x33, s{kp}')
        e('s_and_b32 s97, s97, 1')
        e(f's_cmp_eq_u32 s{WAVE}, 4')
        e(f's_cselect_b32 s{t}, 1, s{97 if o.split1 else EARLY}')
        e(f's_cmp_lg_u32 s{t}, 0')
        e(f's_cselect_b32 s{t}, 4, -16')
        e(f'v_mov_b32 v9, s{t}')
        e('s_waitcnt lgkmcnt(0)')
        e('s_mov_b64 exec, 1')
        e(f'buffer_load_dword v27, v9, {sr(S_DBG)}, 0 offen sc1')
        e('s_mov_b64 exec, -1')
        e(f's_lshr_b32 s96, s{kp}, 2')
        e('s_lshl_b32 s96, s96, 4')
        e(f's_add_u32 s96, s96, s{c}')
        e('s_lshl_b32 s96, s96, 2')
        e(f's_and_b32 s{t}, s{kp}, 1')
        e(f's_add_u32 s96, s96, s{t}')
        e('s_lshl_b32 s96, s96, 9')
        e(f's_add_u32 s96, s96, {WOFF + 2*NSTEP*1024}')
    e(f's_lshr_b32 s{q}, s{kp}, 1')
    e(f's_and_b32 s{cc}, s{c}, 7')
    e(f's_lshr_b32 s{kk}, s{c}, 3')
    e(f's_and_b32 s{t}, s{kp}, 1')
    e(f's_cmp_eq_u32 s{kp}, 8')
    e(f's_cselect_b32 s{cc}, s{cc}, s{c}')
    e(f's_cselect_b32 s{kk}, s{kk}, s{t}')
    e(f's_lshl_b32 s{kk}, s{kk}, 9')
    e(f's_add_u32 s{kk}, s{kk}, {WOFF}')
    e(f's_lshl_b32 s{t}, s{q}, 4')
    e(f's_add_u32 s{b+2}, s{t}, s{cc}')
    e(f's_sub_u32 s{b+3}, s{b+2}, s{q}')
    e(f's_cmp_ge_u32 s{q}, 2')
    e(f's_cselect_b32 s{b+4}, 74, 0')
    e(f's_add_u32 s{b+4}, s{b+4}, s{b+2}')
    e(f's_cmp_lt_u32 s{cc}, 2')
    e(f's_cselect_b32 s{t}, 32, 136')
    e(f's_add_u32 s{t}, s{t}, s{cc}')
    e(f's_cmp_eq_u32 s{kp}, 8')
    e(f's_cselect_b32 s{b+4}, s{t}, s{b+4}')
    e(f's_add_u32 s{b+2}, s{b+2}, 34')
    e(f's_add_u32 s{b+3}, s{b+3}, 144')
    for k in (2, 3, 4):
        e(f's_lshl_b32 s{b+k}, s{b+k}, 10')
        e(f's_add_u32 s{b+k}, s{b+k}, s{kk}')
    e(f's_cmp_eq_u32 s{kp}, 8')
    e(f's_cselect_b32 s{t}, 1, 2')
    e(f's_cmp_eq_u32 s{c}, 15')
    e(f's_cselect_b32 s{b+5}, s{t}, 0')
    e(f's_lshl_b32 s46, s{WAVE}, 2')
    e(f's_add_u32 s46, s46, {CNT+16}')
    e('v_mov_b32 v55, s46')
    if o.tagp:
        e('s_waitcnt vmcnt(1)')
        stamp(2)
        e(f's_cmp_ge_u32 s{NOTASK}, {NTASK}')
        e('s_cbranch_scc1 L_x9')
    else:
        e('v_mov_b32 v27, 0')
        e('v_mov_b32 v9, 4')
        e('s_waitcnt vmcnt(0) lgkmcnt(0)')
        stamp(2)
        e(f's_cmp_lg_u32 s{WAVE}, 4')
        e('s_cbranch_scc1 L_a5')
        e('s_mov_b64 exec, 1')
        e(f'buffer_load_dword v27, v9, {sr(S_DBG)}, 0 offen sc1')
        e('s_mov_b64 exec, -1')
        e('L_a5:')
        e(f's_cmp_ge_u32 s{NOTASK}, {NTASK}')
        e('s_cbranch_scc1 L_x9')
    for (vb, sw, vl, vs, so) in T:
        for tap in range(2):
            for half in range(2):
                e(f'ds_read_b64_tr_b16 {vr(vb+4*tap+2*half,2)}, v21 offset:{so+1024*tap+512*half}')
    nlab = [0]
    def st01(vb, vs):
        nlab[0] += 1
        e(f'buffer_store_dwordx4 {vr(vb,4)}, v{vs}, {sr(S_WS)}, s{b+2} offen {o.stf}')
        e(f's_cmp_eq_u32 s{b+5}, 2')
        e(f's_cbranch_scc1 L_skip{nlab[0]}')
        e(f'buffer_store_dwordx4 {vr(vb+4,4)}, v{vs}, {sr(S_WS)}, s{b+3} offen {o.stf}')
        e(f'L_skip{nlab[0]}:')
    def st01all(lbl):
        st01(T[0][0], T[0][3]); st01(T[1][0], T[1][3])
        cond3(lbl)
        st01(T[2][0], T[2][3])
    def dosum(vb, tb, ob):
        for i in range(8):
            e(f'v_lshlrev_b32 v{tb+2*i}, 16, v{vb+i}')
            e(f'v_and_b32 v{tb+2*i+1}, s{MASK}, v{vb+i}')
        for i in range(4):
            e(f'v_pk_add_f32 {vr(tb+2*i,2)}, {vr(tb+2*i,2)}, {vr(tb+8+2*i,2)}')
        for i in range(4):
            e(f'v_cvt_pk_bf16_f32 v{ob+i}, v{tb+2*i}, v{tb+2*i+1}')
    def ldswait(off, cmp, operand, tag, slp):
        e(f'L_lw{tag}:')
        e(f'ds_read_b32 v11, v10 offset:{off}')
        e('s_waitcnt lgkmcnt(0)')
        e('v_and_b32 v11, 0xff, v11')
        e(f'v_cmp_{cmp}_u32 vcc, {operand}, v11')
        e('s_nop 4')
        e(f's_cbranch_vccnz L_lx{tag}')
        e(f's_sleep {slp}')
        e(f's_branch L_lw{tag}')
        e(f'L_lx{tag}:')
    SOR = lambda ti: (210 + 8 * ti) if o.tagp else (240 + 4 * ti)
    e(f's_or_b32 s46, s{EARLY}, s{MODE}')
    e(f's_cmp_eq_u32 s{XK}, 2')
    e('s_cselect_b32 s47, 1, s46')
    if o.xl: e('s_mov_b32 s46, s47')
    if o.split1:
        assert o.tagp and o.xl
        e('s_or_b32 s47, s47, s97')
        e(f's_andn2_b32 s50, s97, s{MODE}')
    e('s_cmp_eq_u32 s47, 0')
    e('s_cbranch_scc1 L_x9')
    if o.tagp:
        e('s_cmp_eq_u32 s97, 0')
        e('s_cbranch_scc1 L_x7')
        e('s_waitcnt vmcnt(0)')
        e('v_readfirstlane_b32 s48, v27')
        e(f's_add_u32 s49, s{TAG}, {TAGINC}')
        e('s_not_b32 s47, s49')
        e(f's_or_b32 s48, s48, s{MODE}')
        e('s_cselect_b32 s49, s47, s49')
        for ti in range(3):
            e(f'v_mov_b32 v{SOR(ti)-1}, s49')
            e(f'v_mov_b32 v{SOR(ti)+4}, s49')
        e('L_x7:')
    for ti, (vb, sw, vl, vs, so) in enumerate(T):
        if ti == 2: cond3('L_x3')
        if o.split1:
            if ti == 1: e(f's_and_b32 s47, s50, s{EARLY}')
            else: e(f's_andn2_b32 s47, s50, s{EARLY}')
            e(f's_cbranch_scc1 L_x5{ti}')
        e(f's_waitcnt lgkmcnt({8-4*ti})')
        dosum(vb, 64 + 16 * ti, SOR(ti))
        if not o.split1:
            e('s_cmp_eq_u32 s46, 0')
            e(f's_cbranch_scc1 L_x5{ti}')
        if o.tagp:
            e('s_cmp_eq_u32 s97, 0')
            e(f's_cbranch_scc1 L_x6{ti}')
            e(f'buffer_store_dwordx4 {vr(SOR(ti)-2,4)}, v{vs}, {sr(S_WS)}, s96 offen {o.stf}')
            e(f'buffer_store_dwordx4 {vr(SOR(ti)+2,4)}, v{vs}, {sr(S_WS)}, s96 offen offset:1024 {o.stf}')
            e(f's_branch L_x5{ti}')
            e(f'L_x6{ti}:')
        e(f'buffer_store_dwordx4 {vr(SOR(ti),4)}, v{vs}, {sr(S_WS)}, s{b+4} offen {o.stf}')
        e(f'L_x5{ti}:')
    e('L_x3:')
    e(f's_cmp_eq_u32 s{MODE}, 0')
    e('s_cbranch_scc1 L_x9')
    e('L_x2:')
    e('s_waitcnt lgkmcnt(0)')
    st01all('L_x4')
    e('L_x4:')
    e(f's_cmp_eq_u32 s{MODE}, 0')
    e('s_cbranch_scc1 L_x9')
    e('s_waitcnt vmcnt(0)')
    e(f's_add_u32 s{PAIR}, s{PAIR}, 1')
    e(f's_cmp_lt_u32 s{PAIR}, {NPROD}')
    e('s_cbranch_scc1 L_prod')
    e('v_mov_b32 v11, 1')
    e('ds_write_b32 v10, v11 offset:12')
    e('s_endpgm')
    e('L_x9:')
    jit()
    if o.tagp and not o.b0early:
        e(f's_cmp_eq_u32 s{EARLY}, 0')
        e('s_cbranch_scc1 L_x10')
        e('s_barrier')
        e('L_x10:')
    stamp(3)
    decode()
    e('v_subrev_u32 v4, 256, v0')
    e('v_min_u32 v4, 251, v4')
    e('v_mul_u32_u24 v3, 3641, v4')
    e('v_lshrrev_b32 v3, 16, v3')
    e('v_mul_u32_u24 v2, 18, v3')
    e('v_sub_u32 v2, v4, v2')
    e(f'v_mul_u32_u24 v3, {R}, v3')
    e(f'v_min_u32 v3, {160-R}, v3')
    e('v_mul_u32_u24 v4, 1152, v3')
    e('v_lshl_add_u32 v4, v2, 4, v4')
    e(f'v_add_u32 v12, s{XB}, v4')
    e('v_mul_u32_u24 v18, 288, v3')
    e('v_lshl_add_u32 v18, v2, 4, v18')
    e(f'v_add_u32 v19, {X_D1}, v18')
    srd(e, S_X, 4, 1152000, add=BOFF)
    e(f's_add_u32 s46, s{TAG}, {TAGINC}')
    e('v_mov_b32 v56, s46')
    e(f's_lshl_b32 s46, s{RID}, 7')
    e('v_mov_b32 v58, s46')
    e(f's_add_u32 s46, s{PAIR}, {NPROD}')
    e('s_lshl_b32 s46, s46, 7')
    e('v_mov_b32 v59, s46')
    def publish(slot, vflag, tag, first, n=0):
        e('s_mov_b64 exec, 1')
        e(f's_waitcnt vmcnt({n})')
        if first: stamp(4)
        if o.padto and tag == 'x': stamp(12)
        e('v_cmp_ne_u32 vcc, 0, v27')
        e('v_not_b32 v57, v56')
        e('s_nop 0')
        e('v_cndmask_b32 v57, v56, v57, vcc')
        e(f'ds_write_b32 v55, v57 offset:{slot}')
        e(f'ds_read_b128 v[20:23], v10 offset:{32+slot}')
        e('s_waitcnt lgkmcnt(0)')
        for i in range(4): e(f'v_xor_b32 v{20+i}, v{20+i}, v56')
        e('v_or3_b32 v20, v20, v21, v22')
        e('v_or_b32 v20, v20, v23')
        e('v_cmp_eq_u32 vcc, 0, v20')
        e('s_and_b64 exec, exec, vcc')
        e(f's_cbranch_execz L_nl{tag}')
        e(f'buffer_store_dword v56, v{vflag}, {sr(S_WS)}, 0 offen sc1')
        e(f'L_nl{tag}:')
        e('s_mov_b64 exec, -1')
    if o.tagp and o.xl:
        e(f's_cmp_lg_u32 s{XK}, 2')
        e('s_cbranch_scc1 L_noflag')
        publish(0, 58, 'x', True)
        e(f's_mov_b32 s{XK}, 0')
    elif o.xl:
        e(f's_cmp_ge_u32 s{RID}, {NPROD}')
        e('s_cbranch_scc1 L_noflag')
        publish(0, 58, 'x', True)
        e(f's_mov_b32 s{XK}, 0')
        e(f's_cmp_eq_u32 s{EARLY}, 0')
        e('s_cbranch_scc1 L_noflag')
        if not o.b0early: e('s_barrier')
    elif not o.tagp:
        e(f's_cmp_eq_u32 s{EARLY}, 0')
        e('s_cbranch_scc1 L_noflag')
        publish(0, 58, 'x', True)
        if not o.b0early: e('s_barrier')
    e('L_noflag:')
    e(f's_setprio {o.hprio2}')
    RAW, ORAW = 64, 120
    EU = [184, 192]
    OU, DT, DO = 200, 208, 216
    xi = [0]
    NL = R + 1
    hq = []
    def eload():
        k = xi[0]
        if k >= NL: return
        a_ = 12
        if k:
            a_ = 13 + (k & 3)
            e(f'v_add_u32 v{a_}, {1152*k}, v12')
        e(f'buffer_load_dwordx4 {vr(RAW+4*k,4)}, v{a_}, {sr(S_X)}, 0 offen')
        xi[0] += 1
        hq.append(('e', k))
    if o.etouch:
        e(f's_cmp_lt_u32 s{RID}, {NTASK}')
        e('s_cbranch_scc1 L_net')
        e(f's_and_b32 s46, s{NB}, 1')
        e(f's_mul_i32 s46, s46, {1152*6}')
        e('v_add_u32 v12, s46, v12')
        for _ in range(7): eload()
        e('v_subrev_u32 v12, s46, v12')
        e('s_waitcnt vmcnt(0)')
        e('L_net:')
        xi[0] = 0; hq.clear()
    YA = 232
    e(f's_cmp_eq_u32 s{b+5}, 2')
    e('s_cselect_b32 s46, 0x80000000, 0')
    e(f's_cmp_lg_u32 s{HAS3}, 0')
    e('s_cselect_b32 s47, 0x80000000, 0')
    e('s_or_b32 s48, s46, s47')
    for i in range(6):
        m_ = {0: None, 1: 46, 2: None, 3: 46, 4: 47, 5: 48}[i]
        e(f'v_mov_b32 v{YA+i}, v{52+i//2}' if m_ is None else f'v_or_b32 v{YA+i}, s{m_}, v{52+i//2}')
    def ystore(i, a_):
        e(f'buffer_store_dwordx4 {vr(28+4*i,4)}, v{a_}, {sr(S_WS)}, s{b+2+(i&1)} offen {o.stf}')
        hq.append(('y', i))
    if o.yall:
        assert o.d0p
        e(f's_add_u32 s44, s{RID}, 76')
        e(f's_cmp_ge_u32 s44, {NWG}')
        e(f's_cselect_b32 s45, {NWG}, 0')
        e('s_sub_u32 s44, s44, s45')
        e(f's_add_u32 s46, s44, {NPROD + 32}')
        e('s_lshl_b32 s46, s46, 7')
        e('v_mov_b32 v59, s46')
        e('s_mul_hi_u32 s45, s44, 477218589')
        e('s_mul_i32 s46, s45, 9')
        e('s_sub_u32 s44, s44, s46')
        e(f's_lshr_b32 s{YT}, s45, 3')
        e(f's_add_u32 s{YT}, s{YT}, 1')
        e(f's_min_u32 s{YT}, s{YT}, 3')
        e('s_lshl_b32 s45, s45, 2')
        e(f's_add_u32 s45, s45, s{WAVE}')
        e('s_add_u32 s45, s45, 28')
        e('s_and_b32 s46, s45, 15')
        e('s_lshr_b32 s47, s45, 4')
        e('s_mul_i32 s54, s46, 165888')
        e('s_mul_i32 s48, s47, 9216')
        e('s_add_u32 s54, s54, s48')
        e('s_add_u32 s95, s54, 82944')
        e('s_cmp_lg_u32 s46, 15')
        e(f's_cselect_b32 s{S_WO+2}, 2571264, 0')
        e('s_cselect_b32 s51, 0, 0x80000000')
        e('s_lshr_b32 s48, s47, 1')
        e('s_and_b32 s49, s46, 7')
        e('s_lshr_b32 s50, s46, 3')
        e('s_and_b32 s45, s47, 1')
        e('s_cmp_eq_u32 s47, 8')
        e('s_cselect_b32 s49, s49, s46')
        e('s_cselect_b32 s50, s50, s45')
        e('s_cselect_b32 s51, 0, s51')
        e('s_lshl_b32 s50, s50, 9')
        e(f's_add_u32 s50, s50, {WOFF}')
        e('s_lshl_b32 s68, s48, 4')
        e('s_add_u32 s68, s68, s49')
        e('s_sub_u32 s69, s68, s48')
        e('s_add_u32 s68, s68, 34')
        e('s_add_u32 s69, s69, 144')
        for r_ in (68, 69):
            e(f's_lshl_b32 s{r_}, s{r_}, 10')
            e(f's_add_u32 s{r_}, s{r_}, s50')
        e('v_and_b32 v2, 3, v1')
        e('v_lshl_add_u32 v2, s44, 2, v2')
        e('v_lshrrev_b32 v3, 4, v1')
        e('v_lshl_add_u32 v3, s44, 2, v3')
        e('v_cmp_le_u32 vcc, 18, v2')
        e('v_cmp_le_u32 s[46:47], 18, v3')
        e('v_lshl_add_u32 v63, v2, 4, v24')
        e('v_mad_u32_u24 v60, v3, v26, v25')
        e('v_add_u32 v2, 4320, v63')
        e(f'v_add_u32 v3, {(256 - 18*NSTR) & 0xffffffff}, v60')
        e('v_cndmask_b32 v63, v63, v2, vcc')
        e('v_cndmask_b32 v60, v60, v3, s[46:47]')
        e('v_or_b32 v61, s51, v60')
    def ydma():
        if not o.yall: return
        e(f's_mov_b32 m0, s{SCRB}')
        e('s_nop 0')
        e(f'buffer_load_dwordx4 v63, {sr(S_W)}, s54 offen lds')
        e('s_addk_i32 m0, 1024')
        e('s_nop 0')
        e(f'buffer_load_dwordx4 v63, {sr(S_WO)}, s95 offen lds')
        hq.append('d0'); hq.append('d1')
    stamp(5)
    ldswait(8, 'eq', 4, 'o', 1)
    def unpack(dst, s_):
        for i in range(4):
            e(f'v_lshlrev_b32 v{dst+2*i}, 16, v{s_+i}')
            e(f'v_and_b32 v{dst+2*i+1}, s{MASK}, v{s_+i}')
    def unpackE(dst, k):
        e(f's_waitcnt vmcnt({len(hq)-1-hq.index(("e", k))})')
        unpack(dst, RAW + 4 * k)
        eload()
    def diff(eu, out):
        for i in range(8): e(f'v_sub_f32 v{DT+i}, v{eu+i}, v{OU+i}')
        for i in range(4):
            e(f'v_cvt_pk_bf16_f32 v{out+i}, v{DT+2*i}, v{DT+2*i+1}')
    def opengate():
        if not o.gate: return
        e('v_mov_b32 v11, 0x100')
        e('s_mov_b64 exec, 1')
        e('ds_add_u32 v10, v11 offset:8')
        e('s_mov_b64 exec, -1')
    def rows(hook):
        jit()
        stamp(6)
        for j in range(R):
            e(f'ds_read_b128 {vr(ORAW+4*j,4)}, v18 offset:{X_O+288*j}')
        unpackE(EU[0], 0)
        e('s_waitcnt lgkmcnt(0)')
        for j in range(R):
            o0 = DO + 8 * (j & 1)
            unpack(OU, ORAW + 4 * j)
            diff(EU[j & 1], o0)
            e(f'ds_write_b128 v18, {vr(o0,4)} offset:{X_D0+288*j}')
            unpackE(EU[(j + 1) & 1], j + 1)
            diff(EU[(j + 1) & 1], o0 + 4)
            e(f'ds_write_b128 v19, {vr(o0+4,4)} offset:{288*j}')
            hook(j)
    if o.apath:
        e(f's_cmp_ge_u32 s{RID}, {NPROD + (32 if o.d0p else 0)}')
        e('s_cbranch_scc1 L_pathA')
    if o.d0row >= 0: e(f's_cmp_lg_u32 s{XK}, 2')
    else: e(f's_cmp_lt_u32 s{XK}, 2')
    e('s_cbranch_scc1 L_nox')
    if o.d0p:
        e(f's_cmp_eq_u32 s{XK}, 3')
        e('s_cbranch_scc1 L_xd')
    for i in range(3):
        e(f'buffer_store_dwordx4 {vr(SOR(i),4)}, v{YA+2*i}, {sr(S_WS)}, s{b+4} offen {o.stf}')
    if o.d0p:
        e('s_branch L_xe')
        e('L_xd:')
        for i in range(6): ystore(i, YA + i)
        e('L_xe:')
    if o.gearly:
        opengate()
        publish(0, 58, 'x2', True)
        e('s_branch L_nox2')
        e('L_nox:')
        opengate()
        e('L_nox2:')
    else:
        publish(0, 58, 'x2', True)
        e('L_nox:')
        opengate()
    hq.clear(); xi[0] = 0
    for _ in range(o.ein): eload()
    def hookP(j):
        if j == o.ydrow: ydma()
        if j == o.d0row:
            e(f's_cmp_lg_u32 s{XK}, 3')
            e('s_cbranch_scc1 L_yn1')
            keep = list(hq)
            for i in range(6): ystore(i, YA + i)
            hq[:] = keep
            e('L_yn1:')
        if o.d0row >= 0 and j == o.d0row + o.d0row2:
            e(f's_cmp_lg_u32 s{XK}, 3')
            e('s_cbranch_scc1 L_yn2')
            publish(0, 58, 'yn', True)
            e('L_yn2:')
        if o.ymid and j == o.ymid:
            e(f's_cmp_lg_u32 s{YT}, 1')
            e('s_cbranch_scc1 L_ym1')
            keep = list(hq)
            for i in range(6): ystore(i, YA + i)
            hq[:] = keep
            e('L_ym1:')
        if o.ymid and j == o.ymid + o.ymid2:
            e(f's_cmp_lg_u32 s{YT}, 1')
            e('s_cbranch_scc1 L_ym2')
            publish(16, 59, 'ym', False)
            if o.diag == 1: stamp(8)
            e(f's_mov_b32 s{YT}, 0')
            e('L_ym2:')
    rows(hookP)
    if o.apath:
        e('s_branch L_rowsdone')
        e('L_pathA:')
        if not o.d0p:
            e(f's_cmp_eq_u32 s{XK}, 3')
            e('s_cselect_b32 s47, 0, 0x80000000')
            for i in range(6): e(f'v_or_b32 v{20+i}, s47, v{YA+i}')
        hq.clear(); xi[0] = 0
        for _ in range(NL): eload()
        if not o.d0p:
            for i in range(6): ystore(i, 20 + i)
        def hookA(j):
            if j == o.grow + 1: ydma()
            if j == o.grow:
                e(f's_waitcnt vmcnt({len(hq)-1-hq.index(("e", NL-1))})')
                opengate()
            if j == o.xrow and not o.d0p:
                e(f's_cmp_lg_u32 s{XK}, 3')
                e('s_cbranch_scc1 L_xp')
                publish(0, 58, 'x3', True)
                e('L_xp:')
        rows(hookA)
    e('L_rowsdone:')
    e('s_waitcnt lgkmcnt(0)')
    stamp(7)
    e('v_mov_b32 v11, 1')
    e('s_mov_b64 exec, 1')
    e('ds_add_u32 v10, v11 offset:16')
    e('s_mov_b64 exec, -1')
    e(f's_cmp_eq_u32 s{YT}, 0')
    e('s_cbranch_scc1 L_noy')
    e(f's_setprio {o.yprio}')
    if o.yall:
        e('s_waitcnt vmcnt(0)')
        for tap in range(2):
            for half in range(2):
                e(f'ds_read_b64_tr_b16 {vr(28+4*tap+2*half,2)}, v62 offset:{1024*tap+512*half}')
    e('L_yw:')
    e('ds_read_b64 v[20:21], v10')
    e('s_waitcnt lgkmcnt(0)')
    e('v_lshrrev_b32 v21, 14, v21')
    e('v_and_b32 v21, -4, v21')
    e('v_or_b32 v20, v20, v21')
    e(f'v_cmp_le_u32 vcc, s{YT}, v20')
    e('s_nop 4')
    e('s_cbranch_vccnz L_yx')
    e('s_sleep 4')
    e('s_branch L_yw')
    e('L_yx:')
    jit()
    if o.yall:
        e(f'buffer_store_dwordx4 v[28:31], v60, {sr(S_WS)}, s68 offen {o.stf}')
        e(f'buffer_store_dwordx4 v[32:35], v61, {sr(S_WS)}, s69 offen {o.stf}')
    else:
      for i in range(6):
        ystore(i, YA + i)
        e(f's_waitcnt vmcnt({o.ythr})')
        if o.ysleep: e(f's_sleep {o.ysleep}')
    publish(16, 59, 'y', False)
    if o.diag == 1: stamp(8)
    e('L_noy:')
    e(f's_cmp_lg_u32 s{WAVE}, 4')
    e('s_cbranch_scc1 L_hend')
    e('L_guard:')
    e('ds_read_b32 v11, v10 offset:4')
    e('s_waitcnt lgkmcnt(0)')
    e('v_readfirstlane_b32 s46, v11')
    e('s_nop 3')
    e('s_cmp_eq_u32 s46, 4')
    e(f's_cbranch_scc1 {"L_wb" if o.wbat else "L_hend"}')
    e('s_cmp_lt_u32 s46, 0x10000')
    e('s_cbranch_scc0 L_rescue')
    e('s_sleep 16')
    e('s_branch L_guard')
    if o.wbat:
        e('L_wb:')
        e('s_lshr_b32 s46, s2, 3')
        e(f's_cmp_lg_u32 s46, 5')
        e('s_cbranch_scc1 L_hend')
        ldswait(0, 'eq', 4, 'w', 2)
        e('buffer_wbl2 sc1')
        e('s_waitcnt vmcnt(0)')
        e('s_branch L_hend')
    e('L_rescue:')
    e(f's_mov_b32 s{MODE}, 1')
    e(f's_mov_b32 s{HAS3}, 1')
    e(f's_mov_b32 s{NOTASK}, 0')
    e(f's_lshr_b32 s{TW0}, s{NB}, 1')
    e(f's_add_u32 s{TW1}, s{NB}, 9')
    e(f's_lshr_b32 s{TW1}, s{TW1}, 1')
    e(f's_mov_b32 s{PAIR}, 0')
    e('s_branch L_prod')
    e('L_hend:')
    if o.padto and o.padev[0] == 'h': padloop('h')
    if o.diag == 1:
        stamp(9)
        dump(10)
    e('L_end:')
    e('s_endpgm')
    if o.hfirst:
        m0, h0 = mark['main0'], mark['help0']
        e.L = e.L[:m0] + e.L[h0:] + ['.p2align 6'] + e.L[m0:h0]
    e('L_codeend:')
    e('.section .rodata,"a"')
    e('.p2align 6')
    e(f'.amdhsa_kernel {KN}')
    for x in ['next_free_vgpr 256', 'next_free_sgpr 102', 'accum_offset 256', 'group_segment_fixed_size 0', 'kernarg_size 40',
              'user_sgpr_count 2', 'user_sgpr_kernarg_segment_ptr 1', 'system_sgpr_workgroup_id_x 1']:
        e('  .amdhsa_' + x)
    e('.end_amdhsa_kernel')
    n = haz.check(e.L)
    if n: print(f'{n} hazards', file=sys.stderr)
    return f'; @launch grid=({NWG},1,1) block=(512,1,1) lds={LDS_BYTES}\n' + HEADER + e.text()

def opts(argv=None):
    ap = argparse.ArgumentParser()
    ap.add_argument('-o', default='k.s')
    for nm, d in [('diag', 0), ('pf', 16), ('pf0', 8), ('wgap', 4), ('wres', 4), ('wsc1', 0), ('nfill', 2), ('fstride', 128), ('sleep', 0), ('maxpoll', 3000), ('nopoll', 0),
                  ('hprio', 3), ('hprio2', 0), ('mprio', 2), ('epre', 0), ('ein', 4), ('dpre', 7), ('b0early', 0), ('mtouch', 4), ('gate', 1), ('swapab', 0), ('d0p', 1), ('map', 1), ('chain', 4), ('padlo', 0), ('padhi', 252), ('d0row', 1), ('c2split', 1), ('d0row2', 1), ('split1', 0), ('ymid', 4), ('ymid2', 2), ('wbat', 0), ('jit', 0), ('apath', 0), ('rmap', 0), ('yall', 0), ('ydrow', 6), ('flat0', 1), ('flatzz', 0), ('tagp', 1), ('tpf', 5), ('xl', 1), ('p0plain', 0), ('onepoll', 0), ('epoll', 1), ('ppoll', 0), ('yprio', 3), ('ysleep', 0), ('vt', 94), ('tla', 40), ('tskip', 2), ('gearly', 1), ('chfrom', 8), ('oj', 9), ('nolds', 0), ('now', 0), ('wsame', 0), ('grow', 1), ('vbd', 33), ('nopk', 1), ('padto', 0), ('npdelay', 0), ('opre', 4), ('etouch', 0), ('orev', 1), ('b0late', 1), ('dec', 1), ('tail', 1), ('xla', 9), ('hold', 1), ('prest', 0), ('xslot', 0), ('noclosed', 0), ('cpf', 1), ('hfirst', 1), ('warmb', 1), ('wsfirst', 0), ('flead', 6), ('ythr', 6), ('xrow', 3), ('padstep', 33), ('probe', 0), ('probeoff', 0x4000000)]:
        ap.add_argument('--' + nm, type=int, default=d)
    ap.add_argument('--oflags', default='')
    ap.add_argument('--pmap', default='18,18,18,18,18,18,18,18')
    ap.add_argument('--padev', default='m0')
    ap.add_argument('--trig', default='10,25,40')
    ap.add_argument('--yrow', default='0,7,2,9,5,11')
    ap.add_argument('--pfcs', default='4,3,5,5,5')
    ap.add_argument('--fflags', default='')
    ap.add_argument('--fleads', default='6,5,6,6,6')
    ap.add_argument('--stf', default='sc1')
    ap.add_argument('--marks', default='0,4,8,12,16,24,33,47,58')
    o = ap.parse_args(argv)
    o.marks = [int(x) for x in o.marks.split(',')]
    o.yrow = [int(x) for x in o.yrow.split(',')]
    o.pfcs = [int(x) for x in o.pfcs.split(',')]
    o.fleads = [int(x) for x in o.fleads.split(',')]
    o.trig = [int(x) for x in o.trig.split(',')]
    return o

if __name__ == '__main__':
    o = opts()
    open(o.o, 'w').write(gen(o))
```

```python
import re, sys, argparse
import haz

KN = 'standalone__autoregressive_conv_wavernn__speech_kernel'
NWG = 252
NPROD = 144
ARR = 160 * 288
X_D0, X_O, X_D1 = 0, ARR, 2 * ARR
CNT = 3 * ARR
SCR = CNT + 64
LDS_BYTES = SCR + 18432
NSTEP = 106
WOFF = int(__import__('os').environ.get('WOFF', '0x100000'), 0)
NONCE = 0x10000
DIAG = 0x800000
WS_REC = max(0x1000000, WOFF + 0x400000, int(__import__('os').environ.get('WSREC', '0'), 0))
TAGINC = 0x9E3779B9
R = 12


HEADER = """; Gated dilated causal convolution, out = tanh(f) * sigmoid(g), h = [f g] = sum_i x[t + 2i - 60] w[i].
;
; A workgroup owns 144 output pairs x 16 output columns (f and g). Waves 0-3 run the matrix loop (two column tiles x
"""

class Em:
    def __init__(self): self.L = []
    def __call__(self, s): self.L.append(s)
    def text(self): return '\n'.join(self.L) + '\n'

def vr(a, n=1): return f'v{a}' if n == 1 else f'v[{a}:{a+n-1}]'
def sr(a, n=4): return f's[{a}:{a+n-1}]'

def streams():
    out = []
    for typ in (0, 1):
        S = []
        pid = [0]
        def add(arr, chunk, cs, acc):
            for c in cs: S.append((pid[0], arr, chunk, c, acc))
            pid[0] += 1
        if typ == 0:
            add('O', 0, range(16), 'P'); add('O', 1, range(16), 'P'); add('O', 'rem', range(0, 2), 'P')
            for q in range(4): add('D', q, range(16), 'Q')
            add('D', 'rem', range(8), 'Q')
        else:
            add('O', 2, range(16), 'P'); add('O', 3, range(16), 'P'); add('O', 'rem', range(2, 8), 'P')
            for q in range(4): add('D', q, range(15), 'Q')
            add('D', 'rem', range(8), 'Q')
        assert len(S) == NSTEP
        out.append(S)
    return out

S_X, S_W, S_WO, S_WS, S_OUT, S_DBG = 20, 24, 28, 32, 36, 40
WAVE, NB, BAT, PAR, MB, BOFF = 14, 15, 16, 17, 18, 19
PAIR0 = 3
XB = 52
MASK = 53
TW0, TW1, TW2, PAIR, HAS3, MODE, SCRB, TAG, LAST, NPOLL = 44, 45, 54, 55, 56, 57, 58, 59, 60, 61
TS = 62
TYP, WSO = 68, 69
EARLY, XK, YT, FIDX = 90, 91, 92, 93
NOTASK = 94
FO = 97
C2L, CNL, C60 = 90, 92, 94
ST0 = 70

def srd(e, d, ptr, rec, add=None):
    if add is None:
        e(f's_mov_b32 s{d}, s{ptr}')
        e(f's_and_b32 s{d+1}, s{ptr+1}, 0xffff')
    else:
        e(f's_add_u32 s{d}, s{ptr}, s{add}')
        e(f's_addc_u32 s{d+1}, s{ptr+1}, 0')
        e(f's_and_b32 s{d+1}, s{d+1}, 0xffff')
    e(f's_mov_b32 s{d+2}, {rec}')
    e(f's_mov_b32 s{d+3}, 0x20000')

def gen(o):
    e = Em()
    NSTR = 2 * NSTEP * 1024 + (65536 if o.tagp else 0)
    if o.tagp: o.epoll = 0
    NTASK = NPROD + (32 if o.yall else 96)
    role = ['m']
    jn = [0]
    def jit():
        if not o.jit: return
        jn[0] += 1
        k = jn[0]
        e(f's_mul_i32 s98, s2, {37 + 2 * k + o.jit * 10}')
        e(f's_mul_i32 s99, s{WAVE}, {11 + 6 * k + o.jit}')
        e('s_add_u32 s98, s98, s99')
        e('s_bitcmp1_b32 s98, 3')
        e(f's_cbranch_scc1 L_jit{k}')
        e(f's_sleep {30 + (k * 17 + o.jit * 5) % 90}')
        e(f'L_jit{k}:')
    def padloop(tag):
        e(f'L_pad{tag}:')
        e('s_memrealtime s[98:99]')
        e('s_waitcnt lgkmcnt(0)')
        e('s_sub_u32 s98, s98, s100')
        e(f's_cmp_lt_u32 s98, {o.padto}')
        e(f's_cbranch_scc1 L_pad{tag}')
    def stamp(k, lvl=1):
        if o.padto and lvl == 1 and o.padev == f'{role[0]}{k}':
            e('s_memrealtime s[100:101]'); e('s_waitcnt lgkmcnt(0)')
        if o.diag == lvl or (o.diag == 4 and lvl == 1): e(f's_memrealtime s[{ST0+2*k}:{ST0+2*k+1}]')
    def dump(nst):
        e('s_waitcnt lgkmcnt(0)')
        e('v_mov_b32 v250, 0')
        for k in range(nst): e(f'v_writelane_b32 v250, s{ST0+2*k}, {k}')
        e(f'v_writelane_b32 v250, s{NPOLL}, 13')
        e(f'v_writelane_b32 v250, s95, 12')
        e(f'v_writelane_b32 v250, s{3 if o.rmap else 2}, 14')
        e('s_getreg_b32 s46, hwreg(HW_REG_XCC_ID)')
        e('v_writelane_b32 v250, s46, 15')
        e(f's_lshl_b32 s46, s2, 3'); e(f's_add_u32 s46, s46, s{WAVE}'); e('s_lshl_b32 s46, s46, 6'); e(f's_add_u32 s46, s46, {DIAG}')
        e('v_lshl_add_u32 v251, v1, 2, s46')
        e('s_mov_b64 exec, 0xffff')
        e(f'buffer_store_dword v250, v251, {sr(S_WS)}, 0 offen')
        e('s_mov_b64 exec, -1')

    e('.amdgcn_target "amdgcn-amd-amdhsa--gfx950"')
    e('.text')
    e(f'.globl {KN}')
    e('.p2align 8')
    e(f'.type {KN},@function')
    e(f'{KN}:')
    e(f's_cmp_ge_u32 s2, {NWG}')
    e('s_cbranch_scc1 L_end')
    stamp(0)
    if o.padto and o.padev != 'm0': e('s_memrealtime s[100:101]')
    e('s_load_dwordx4 s[4:7], s[0:1], 0')
    e('s_load_dwordx4 s[8:11], s[0:1], 16')
    e('s_load_dwordx2 s[12:13], s[0:1], 32')
    e('v_lshrrev_b32 v2, 6, v0')
    e('v_and_b32 v1, 63, v0')
    e(f'v_readfirstlane_b32 s{WAVE}, v2')
    def decode():
        e('s_and_b32 s44, s2, 7')
        e('s_lshr_b32 s45, s2, 3')
        e('s_mul_i32 s46, s44, 31')
        e('s_min_u32 s44, s44, 4')
        e('s_add_u32 s46, s46, s44')
        e('s_add_u32 s46, s46, s45')
        if o.map == 0:
            e('s_mul_hi_u32 s47, s46, 68174085')
            e('s_mul_i32 s48, s47, 63')
            e('s_sub_u32 s48, s46, s48')
            e(f's_mul_hi_u32 s{NB}, s48, 613566757')
            e(f's_mul_i32 s49, s{NB}, 7')
            e('s_sub_u32 s49, s48, s49')
            e('s_mul_i32 s47, s47, 7')
            e('s_add_u32 s47, s47, s49')
        elif o.map == 1:
            e('s_mul_hi_u32 s47, s46, 477218589')
            e('s_mul_i32 s48, s47, 9')
            e(f's_sub_u32 s{NB}, s46, s48')
        else:
            e('s_mul_hi_u32 s47, s46, 34087043')
            e('s_mul_i32 s48, s47, 126')
            e('s_sub_u32 s48, s46, s48')
            e(f's_mul_hi_u32 s{NB}, s48, 306783379')
            e(f's_mul_i32 s49, s{NB}, 14')
            e('s_sub_u32 s49, s48, s49')
            e('s_mul_i32 s47, s47, 14')
            e('s_add_u32 s47, s47, s49')
        e(f's_and_b32 s{PAR}, s47, 1')
        e('s_lshr_b32 s47, s47, 1')
        e('s_cmp_ge_u32 s47, 7')
        e(f's_cselect_b32 s{BOFF}, 1152000, 0')
        e('s_cselect_b32 s48, 7, 0')
        e(f's_sub_u32 s{MB}, s47, s48')
        e(f's_mul_i32 s{XB}, s{MB}, 576')
        e(f's_add_u32 s{XB}, s{XB}, s{PAR}')
        e(f's_sub_u32 s{XB}, s{XB}, 60')
        e(f's_mul_i32 s{XB}, s{XB}, 288')
    RID = 3 if o.rmap else 2
    if o.rmap:
        e('s_and_b32 s44, s2, 3')
        e('s_lshr_b32 s45, s2, 3')
        e('s_lshl2_add_u32 s3, s45, s44')
        e('s_and_b32 s44, s2, 4')
        e('s_lshl_b32 s44, s44, 5')
        e('s_add_u32 s3, s3, s44')
    e(f's_cmp_ge_u32 s{WAVE}, 4')
    e('s_cbranch_scc1 L_helper')
    if o.cpf:
        e('s_lshr_b32 s44, s2, 3')
        e(f's_lshl_b32 s45, s{WAVE}, 5')
        e('s_add_u32 s44, s44, s45')
        e('s_sub_u32 s44, s44, 26')
        e('s_cmp_ge_u32 s44, 5')
        e('s_cbranch_scc1 L_main')
        e('s_getpc_b64 s[46:47]')
        e('L_pc:')
        e('s_lshl_b32 s44, s44, 13')
        e('v_lshl_add_u32 v2, v1, 7, s44')
        e('v_min_u32 v2, L_codeend-L_pc-4, v2')
        e('global_load_dword v63, v2, s[46:47]')
    if o.hfirst: e('s_branch L_main')
    mark = {'main0': len(e.L)}
    e('L_main:')
    e(f's_mov_b32 s{MASK}, 0xffff0000')
    e(f's_mov_b32 s{NPOLL}, 0')
    if o.diag: e('s_mov_b32 s95, 0')
    decode()

    VXO, VXOR, VXD, VXDR, VWL, VEX, VEXP, VOUT = 30, 31, 32, 33, 34, 35, 36, 37
    VF = 40
    VA = 48
    VCL = 60
    e('v_mul_u32_u24 v3, 3641, v0')
    e('v_lshrrev_b32 v3, 16, v3')
    e('v_mul_u32_u24 v2, 18, v3')
    e('v_sub_u32 v2, v0, v2')
    e('v_mul_u32_u24 v3, 1152, v3')
    e('v_lshl_add_u32 v3, v2, 4, v3')
    e(f's_add_u32 s46, s{XB}, 576')
    e(f'v_add_u32 v{VA}, s46, v3')
    e('v_mov_b32 v5, 16192')
    e('v_mov_b32 v6, 17056')
    for k in range(1, 12):
        e('v_cmp_le_u32 vcc, 14, v2')
        e('v_add_u32 v3, 4, v2')
        e('v_subrev_u32 v4, 14, v2')
        e('v_cndmask_b32 v7, v5, v6, vcc')
        e('v_cndmask_b32 v2, v3, v4, vcc')
        e(f'v_add_u32 v{VA+k}, v{VA+k-1}, v7')
    e(f's_lshl_b32 s50, s{WAVE}, 10')
    e(f's_add_u32 s50, s50, {X_O}')
    e(f's_add_u32 s51, s50, {4096*11}')
    e('s_movk_i32 s49, 4096')
    if o.orev:
        e(f's_bitcmp0_b32 s{NB}, 0')
        e('s_cbranch_scc1 L_fwd')
        for k in range(5): e(f'v_swap_b32 v{VA+k}, v{VA+10-k}')
        e(f's_add_u32 s50, s50, {4096*10}')
        e('s_movk_i32 s49, -4096')
        e('L_fwd:')
    e(f'v_mov_b32 v{VF+1}, {CNT}')
    for r in range(4, 8): e(f'v_mov_b32 v{r}, 0')
    e(f'ds_write_b128 v{VF+1}, v[4:7]')
    e(f'ds_write_b128 v{VF+1}, v[4:7] offset:16')
    e('s_waitcnt lgkmcnt(0)')
    e(f's_load_dword s{TAG}, s[12:13], {NONCE}')
    srd(e, S_X, 4, 1152000, add=BOFF)
    def odma(k):
        e(f's_mov_b32 m0, s{51 if k == 11 else 50}')
        e('s_add_u32 s50, s50, s49')
        e(f'buffer_load_dwordx4 v{VA+k}, {sr(S_X)}, 0 offen lds')
    def etouch():
        e(f'buffer_load_dword v62, v9, {sr(S_X)}, 0 offen')
    if o.mtouch and o.tskip:
        e(f's_lshr_b32 s47, s{RID}, 4')
        e('s_lshr_b32 s47, 0x33, s47')
        e('s_lshl_b32 s47, s47, 31')
    if o.mtouch:
        e('v_min_u32 v8, 39, v1')
        e('v_lshrrev_b32 v9, 2, v8')
        e(f's_mul_i32 s46, s{WAVE}, 10')
        e('v_add_u32 v9, s46, v9')
        e(f'v_mul_u32_u24 v9, {4*1152}, v9')
        e('v_and_b32 v8, 3, v8')
        e('v_mul_u32_u24 v8, 92, v8')
        e(f's_and_b32 s46, s{NB}, {7 if o.mtouch == 4 else 3}')
        e(f's_mul_i32 s46, s46, {576 if o.mtouch == 4 else 1152}')
        e(f's_add_u32 s46, s46, s{XB}')
        e('v_add3_u32 v9, v9, v8, s46')
        if o.tskip == 1: e('v_or_b32 v9, s47, v9')
    if o.mtouch == 4 and o.tskip == 2:
        e('s_cmp_eq_u32 s47, 0')
        e('s_cbranch_scc1 L_tn')
        e('s_waitcnt lgkmcnt(0)')
        e('L_tn:')
    if o.mtouch in (2, 4): etouch()
    if o.padto and o.padev == 'm13':
        e('s_waitcnt vmcnt(0)'); stamp(13)
    if o.padto and o.padev == 'm14':
        odma(0); e('s_sub_u32 s50, s50, s49'); e('s_waitcnt vmcnt(0)'); stamp(14)
    if o.padto: stamp(10)
    for k in range(o.opre): odma(k)
    e('s_barrier')
    stamp(1)
    jit()
    if o.mtouch == 3: etouch()
    for k in range(o.opre, 12):
        if k == 11:
            e(f's_cmp_lg_u32 s{WAVE}, 0')
            e('s_cbranch_scc1 L_o11')
        odma(k)
    e('L_o11:')
    if o.mtouch == 1: etouch()
    srd(e, S_WS, 12, WS_REC)
    if o.epoll:
        assert o.mtouch in (1, 4) and o.tskip
        e(f's_and_b32 s{TYP}, s{WAVE}, 1')
        e(f's_lshl_b32 s{FO}, s{TYP}, 13')
        e('s_mov_b32 s96, s47')
        e('s_xor_b32 s46, s47, 0x80000000')
        e(f'v_min_u32 v{VF}, 31, v1')
        e(f'v_lshlrev_b32 v{VF}, 7, v{VF}')
        e(f'v_or_b32 v2, s46, v{VF}')
        e(f'buffer_load_dword v{VF+4}, v2, {sr(S_WS)}, s{FO} offen sc1')
    srd(e, S_OUT, 8, 1152000, add=BOFF)
    srd(e, S_DBG, 10, 256)
    e('v_and_b32 v2, 15, v1')
    e('v_lshrrev_b32 v3, 4, v1')
    e('v_subrev_u32 v5, 4, v2')
    e('v_add_u32 v6, 8, v2')
    e('v_cmp_gt_u32 vcc, 4, v2')
    e('v_cmp_le_u32 s[46:47], 12, v2')
    e(f's_and_b32 s{TYP}, s{WAVE}, 1')
    e(f's_lshr_b32 s48, s{WAVE}, 1')
    e('v_cndmask_b32 v5, v5, v6, vcc')
    e('v_cndmask_b32 v5, v5, v2, s[46:47]')
    e('v_mul_u32_u24 v5, 9, v5')
    e('v_mul_u32_u24 v4, 288, v5')
    e('v_lshl_add_u32 v6, v3, 4, v4')
    e('v_and_b32 v7, 1, v3')
    e('v_lshl_add_u32 v7, v7, 4, v4')
    e('v_lshrrev_b32 v8, 1, v3')
    e('v_mul_u32_u24 v8, 2304, v8')
    e('v_add_u32 v7, v7, v8')
    e('v_add_u32 v7, 256, v7')
    e(f's_mul_i32 s49, s{TYP}, {X_D1}')
    e(f'v_add_u32 v{VXO}, {X_O}, v6')
    e(f'v_add_u32 v{VXOR}, {X_O}, v7')
    e(f'v_add_u32 v{VXD}, s49, v6')
    e(f'v_add_u32 v{VXDR}, s49, v7')
    e('v_lshlrev_b32 v6, 4, v1')
    e(f's_mul_i32 s49, s{WAVE}, 9216')
    e(f's_add_u32 s49, s49, {X_O}')
    e(f'v_add_u32 v{VEX}, s49, v6')
    e(f's_xor_b32 s49, s{WAVE}, 1')
    e('s_mul_i32 s49, s49, 9216')
    e(f's_add_u32 s49, s49, {X_O}')
    e(f'v_add_u32 v{VEXP}, s49, v6')
    e('v_and_b32 v8, 0x39, v1')
    e('v_bfe_u32 v9, v1, 1, 1')
    e('v_lshl_add_u32 v8, v9, 2, v8')
    e('v_bfe_u32 v9, v1, 2, 1')
    e('v_lshl_add_u32 v8, v9, 1, v8')
    e(f'v_lshlrev_b32 v{VWL}, 4, v8')
    e(f's_mul_i32 s49, s{TYP}, 576')
    e(f's_add_u32 s49, s49, s{XB}')
    e(f's_add_u32 s49, s49, {60*288}')
    e(f's_lshl_b32 s50, s{NB}, 5')
    e('s_add_u32 s49, s49, s50')
    e('s_lshl_b32 s50, s48, 4')
    e('s_add_u32 s49, s49, s50')
    e('v_mul_u32_u24 v8, 1152, v5')
    e('v_lshl_add_u32 v8, v3, 2, v8')
    e(f'v_add_u32 v{VOUT}, s49, v8')
    e(f'v_add_u32 v{VOUT+1}, 3456, v{VOUT}')
    e(f'v_add_u32 v{VOUT+2}, 6912, v{VOUT}')
    e(f's_lshl_b32 s49, s{NB}, 1')
    e('s_add_u32 s49, s49, s48')
    e(f's_mul_i32 s49, s49, {NSTR}')
    e(f's_mul_i32 s{WSO}, s{TYP}, {NSTEP*1024}')
    e(f's_add_u32 s{WSO}, s{WSO}, s49')
    e(f's_add_u32 s{WSO}, s{WSO}, {WOFF + (16384 if o.tagp else 0)}')
    if o.tagp:
        e(f's_lshl_b32 s96, s{TYP}, 15')
        e('s_add_u32 s96, s96, s49')
        e(f's_add_u32 s96, s96, {WOFF + 2*NSTEP*1024}')
    e(f's_mov_b32 s{C2L}, 0x4038aa3b'); e(f's_mov_b32 s{C2L+1}, 0x4038aa3b')
    e(f's_mov_b32 s{CNL}, 0xbfb8aa3b'); e(f's_mov_b32 s{CNL+1}, 0xbfb8aa3b')
    e(f's_mov_b32 s{C60}, 0x42700000')
    e(f'v_min_u32 v{VF}, 31, v1')
    e(f'v_lshlrev_b32 v{VF}, 7, v{VF}')
    e(f'v_min_u32 v{VF+6}, 47, v1')
    e(f'v_lshlrev_b32 v{VF+6}, 7, v{VF+6}')
    e(f'v_mov_b32 v{VF+2}, 1')
    e('s_lshl_b32 s46, s48, 2')
    e(f'v_add_u32 v{VF+5}, s46, v{VF+1}')
    e(f's_or_b32 s46, s2, s{WAVE}')
    e('v_or_b32 v2, s46, v1')
    e('v_cmp_eq_u32 vcc, 0, v2')
    e(f'v_mov_b32 v{VCL}, -16')
    e(f'v_mov_b32 v{VCL+1}, -16')
    e(f'v_mov_b32 v3, {NONCE}')
    e(f'v_cndmask_b32 v{VCL}, v{VCL}, 4, vcc')
    e(f'v_cndmask_b32 v{VCL+1}, v{VCL+1}, v3, vcc')
    if o.yall:
        e(f's_lshr_b32 s46, s{NB}, 1')
        e(f's_add_u32 s47, s{NB}, 9')
        e('s_lshr_b32 s47, s47, 1')
        e('v_mov_b32 v4, s46')
        e('v_mov_b32 v5, s47')
        e('v_cmp_gt_u32 vcc, 32, v1')
        e('v_and_b32 v2, 7, v1')
        e('v_and_b32 v3, 15, v1')
        e('v_cndmask_b32 v4, v5, v4, vcc')
        e('v_min_u32 v3, 11, v3')
        e('v_mad_u32_u24 v2, v2, 9, v4')
        e('v_mad_u32_u24 v3, v3, 9, v4')
        e('v_lshlrev_b32 v2, 7, v2')
        e('v_lshlrev_b32 v3, 7, v3')
    e(f's_lshl_b32 s{FO}, s{TYP}, 13')
    if o.warmb:
        e(f's_cmp_eq_u32 s{TYP}, 1')
        e('s_cbranch_scc1 L_warmB')
        e('L_warmret:')
    e(f's_waitcnt vmcnt({(1 if o.mtouch == 1 else 0) + o.epoll}) lgkmcnt(0)')
    stamp(2)
    if o.padto and o.padev in ('m11', 'm12'):
        e(f's_lshr_b32 s46, s{RID}, 4')
        e('s_lshr_b32 s46, 0x33, s46')
        e('s_bitcmp1_b32 s46, 0')
        e(f's_cbranch_scc{1 if o.padev == "m11" else 0} L_pk')
        e('s_memrealtime s[100:101]'); e('s_waitcnt lgkmcnt(0)')
        e('L_pk:')
    e('s_mov_b64 exec, 1')
    e(f'ds_add_u32 v{VF+1}, v{VF+2} offset:8')
    e('s_mov_b64 exec, -1')
    e(f's_add_u32 s{TAG}, s{TAG}, {TAGINC}')
    e(f'v_mov_b32 v{VF+3}, s{TAG}')
    def flagwait(tag, vaddr, back):
        e(f'L_fw{tag}:')
        if o.diag and len(tag) == 2: e(f's_add_u32 s95, s95, {1 << (4 * int(tag[1]))}')
        e(f'buffer_load_dword v{VF+4}, v{vaddr}, {sr(S_WS)}, s{FO} offen sc1')
        e(f'ds_read_b32 v{VF+7}, v{VF+1} offset:12')
        e(f's_add_u32 s{NPOLL}, s{NPOLL}, 1')
        e('s_waitcnt vmcnt(0) lgkmcnt(0)')
        e(f'v_cmp_ne_u32 vcc, v{VF+3}, v{VF+4}')
        e(f'v_readfirstlane_b32 s46, v{VF+7}')
        e('s_nop 3')
        e(f's_cbranch_vccz {back}')
        e('s_cmp_lg_u32 s46, 0')
        e(f's_cbranch_scc1 {back}')
        e(f's_cmp_lg_u32 s{NPOLL}, {o.maxpoll}')
        e(f's_cbranch_scc1 L_fw{tag}')
        e(f'v_mov_b32 v{VF+7}, 0x10000')
        e('s_mov_b64 exec, 1')
        e(f'ds_add_u32 v{VF+1}, v{VF+7} offset:4')
        e('s_mov_b64 exec, -1')
        e(f's_branch L_fw{tag}')
    if o.epoll:
        e('s_cmp_eq_u32 s96, 0')
        e('s_cbranch_scc1 L_gate')
        e('s_waitcnt vmcnt(0)')
        e(f'v_cmp_ne_u32 vcc, v{VF+3}, v{VF+4}')
        e('s_nop 4')
        e('s_cbranch_vccz L_go')
    if o.gate:
        e('L_gate:')
        e(f'ds_read_b32 v{VF+4}, v{VF+1} offset:8')
        e('s_waitcnt lgkmcnt(0)')
        e(f'v_and_b32 v{VF+4}, 0xffff, v{VF+4}')
        e(f'v_cmp_gt_u32 vcc, 0x400, v{VF+4}')
        e('s_nop 4')
        e('s_cbranch_vccz L_gate2')
        e('s_sleep 1')
        e('s_branch L_gate')
        e('L_gate2:')
    if o.ppoll:
        e(f'buffer_load_dword v{VF+4}, v{VF}, {sr(S_WS)}, s{FO} offen sc1')
        e('L_pp:')
        for a_, b_ in ((VF + 4, 62), (62, VF + 4)):
            e(f's_sleep {o.ppoll}')
            e(f'buffer_load_dword v{b_}, v{VF}, {sr(S_WS)}, s{FO} offen sc1')
            e('s_waitcnt vmcnt(1)')
            e(f'v_cmp_ne_u32 vcc, v{VF+3}, v{a_}')
            e(f's_add_u32 s{NPOLL}, s{NPOLL}, 1')
            e('s_nop 3')
            e('s_cbranch_vccz L_go')
        e(f's_cmp_lt_u32 s{NPOLL}, 40')
        e('s_cbranch_scc1 L_pp')
        e(f's_mov_b32 s{NPOLL}, 0')
    if o.p0plain:
        e(f'buffer_load_dword v{VF+4}, v{VF}, {sr(S_WS)}, s{FO} offen')
        e('s_waitcnt vmcnt(0)')
        e(f'v_cmp_ne_u32 vcc, v{VF+3}, v{VF+4}')
        e('s_nop 4')
        e('s_cbranch_vccz L_go')
    if o.onepoll:
        e(f's_cmp_lt_u32 s{WAVE}, 2')
        e('s_cbranch_scc1 L_fw0')
        e('L_op:')
        e(f'ds_read_b32 v{VF+7}, v{VF+1} offset:8')
        e('s_waitcnt lgkmcnt(0)')
        e(f's_add_u32 s46, s{TYP}, 16')
        e(f'v_lshrrev_b32 v{VF+7}, s46, v{VF+7}')
        e(f'v_and_b32 v{VF+7}, 1, v{VF+7}')
        e(f'v_cmp_eq_u32 vcc, 0, v{VF+7}')
        e('s_nop 4')
        e('s_cbranch_vccnz L_op')
        e('s_branch L_go2')
    if not o.tagp: flagwait('0', VF, 'L_go')
    e('L_go:')
    jit()
    if o.tagp: e('s_mov_b32 s50, s96')
    if o.onepoll:
        e(f's_lshl_b32 s46, 0x10000, s{TYP}')
        e(f'v_mov_b32 v{VF+7}, s46')
        e('s_mov_b64 exec, 1')
        e(f'ds_or_b32 v{VF+1}, v{VF+7} offset:8')
        e('s_mov_b64 exec, -1')
        e('L_go2:')
    stamp(3)
    e('L_gw:')
    e(f'ds_read_b32 v{VF+7}, v{VF+1} offset:8')
    e('s_waitcnt lgkmcnt(0)')
    e(f'v_and_b32 v{VF+7}, 0xff, v{VF+7}')
    e(f'v_cmp_ne_u32 vcc, 4, v{VF+7}')
    e('s_nop 4')
    e('s_cbranch_vccnz L_gw')
    stamp(4)
    e(f's_setprio {o.mprio}')
    e(f's_cmp_eq_u32 s{TYP}, 1')
    e('s_cbranch_scc1 L_typeB')

    ACC = {'P': 64, 'Q': 100}
    WR, TMP = 136, 224
    XRING = [200 + 4 * i for i in range(6)]
    XWIN = [4 + 4 * i for i in range(6)] + [240 + 4 * i for i in range(4)]
    VC = 28
    PF = o.pf
    GT = 98
    wflags = {0: '', 1: ' sc1', 2: ' nt', 3: ' sc0'}[o.wsc1]
    for typ, S in enumerate(streams()):
        if typ == 1:
            e('.p2align 6')
            if o.warmb: e('L_warmB:'); e('s_branch L_warmret')
            e('L_typeB:')
        ops = []
        vstart = {}
        lastv = o.vt - 1
        v0 = 0
        G0 = 0
        if o.flat0:
            for g in range(16):
                vstart[g] = len(ops)
                for j in (range(9) if g % 2 == 0 or not o.flatzz else range(8, -1, -1)): ops.append((g, j))
            v0 = G0 = 16
        while v0 <= lastv:
            ch = 1 if v0 < o.chfrom + G0 else min(o.chain, lastv + 1 - v0)
            n0 = len(ops)
            for j in range(8, -1, -1):
                us = range(ch) if j % 2 == 0 else range(ch - 1, -1, -1)
                first_ = [u for u in us if v0 + u - j == 0 or (0 < v0 + u - j < NSTEP and S[v0+u-j][4] == 'Q' and S[v0+u-j-1][4] == 'P')]
                if first_: us = range(ch)
                for u in us:
                    if G0 <= v0 + u - j < NSTEP: ops.append((v0 + u - j, j))
            for u in range(ch): vstart[v0 + u] = n0 + (len(ops) - n0) * u // ch
            v0 += ch
        ntail = len(ops)
        if o.tail:
            for j in range(9):
                for g in range(o.vt - j, NSTEP): ops.append((g, j))
        assert len(ops) == NSTEP * 9 and len(set(ops)) == len(ops)
        N = len(ops)
        def key(n):
            g, j = ops[n]
            pid, arr, ch, c, acc = S[g]
            k = (pid, arr, ch, c + j)
            if n >= ntail and g < GT: k = k + ((n,) if not o.hold else ('h',))
            return k
        first, last = {}, {}
        for n in range(N):
            first.setdefault(key(n), n); last[key(n)] = n
        wfirst, wlast = {}, {}
        for n, (g, j) in enumerate(ops):
            wfirst.setdefault(g, n); wlast[g] = n
        tasks = []
        for k, n0 in first.items():
            win = o.tail and k[2] == 'rem' and k[1] == 'D'
            la = o.xla if n0 < ntail else 6
            if n0 >= ntail and ops[n0][1] == 0: la = o.tla
            elif win: la = 12
            tasks.append([n0 - la, n0 - 1, 'X', k])
        for g in range(NSTEP):
            rel = -100 + g if g < o.pf0 else max(0, wfirst[g] - 9 * PF)
            if o.tagp and g < 16:
                rel = -100 + g if g < 4 else max(0, wfirst[g] - 9 * o.tpf)
                tasks.append([rel, wfirst[g & ~1] - 9, 'W', g])
                continue
            tasks.append([rel, wfirst[g] - 1, 'W', g])
        def at(v, off=0): return vstart[v] + off
        firstD = min(n for n in range(N) if S[ops[n][0]][1] == 'D')
        lastO = max(n for n in range(N) if S[ops[n][0]][1] == 'O')
        lastP = {j: max(n for n in range(N) if ops[n][1] == j and S[ops[n][0]][4] == 'P') for j in range(9)}
        slow = []
        vused = set()
        def check(v, off, cnt, tag):
            tasks.append([at(v - 1, 3), at(v - 1, 8), 'L', (f'ds_read_b32 v{VC}, v{VF+1} offset:{off}', ('c', tag))])
            tasks.append([at(v, 0), at(v, 1), 'C', (f'v_cmp_ne_u32 vcc, {cnt}, v{VC}', ('c', tag))])
            tasks.append([at(v, 6), at(v, 7), 'I', [f's_cbranch_vccnz L_slow{typ}{tag}', f'L_back{typ}{tag}:']])
            slow.append((tag, off, cnt))
            vused.add(v)
            return at(v, 8)
        def add1(pos, off):
            tasks.append([pos, pos + 4, 'A', off])
        vD = [v for v in vstart if vstart[v] <= firstD - o.xla][-1] - 1
        okD = check(vD, 16, 4, 'D')
        assert okD <= firstD - o.xla
        add1(lastO, 20)
        VP = 47
        okR = check(VP, 20, 4, 'R')
        for j in range(9):
            assert lastP[j] + 12 < at(VP + 1 + j, 2)
            tasks.append([at(VP + 1 + j, 2), at(VP + 1 + j, 8), 'L', (f'ds_write_b128 v{VEX}, {vr(ACC["P"]+4*j,4)} offset:{1024*j}', ('pw', j))])
        tasks.append([at(VP + 10, 0), at(VP + 10, 4), 'A', 'pair'])
        VQ = VP + 13
        okP = check(VQ, 'pair', 2, 'P')
        for j in range(9):
            tasks.append([at(VQ + 1 + j, 2), at(VQ + 1 + j, 8), 'L', (f'ds_read_b128 {vr(TMP+4*(j&1),4)}, v{VEXP} offset:{1024*j}', ('pr', j))])
            v = VQ + 2 + j
            pos = at(v, 8 - (j + 2) - 1) if j <= 6 else at(v, 8 - (j - 7) - 1)
            sh = 1 if j >= 7 else 0
            if o.chain > 1:
                own = [n for n in range(N) if ops[n][1] == j]
                pos = [a_ + 10 for a_, b_ in zip(own, own[1:]) if b_ - a_ >= 14 and a_ + 9 >= at(v, 0) ][0]
                sh = 0
                tasks[-1][0] = pos - 9; tasks[-1][1] = pos - 4
                tasks[-1][3] = (f'ds_read_b128 {vr(TMP+4*(j&3),4)}, v{VEXP} offset:{1024*j}', ('pr', j))
            tasks.append([pos - 1 + sh, pos - 1 + sh, 'Q', (j, 0)])
            tasks.append([pos + sh, pos + sh, 'Q', (j, 1)])
        if typ == 0:
            tasks.append([at(64, 4), at(64, 8), 'S', f'buffer_store_dword v{VCL+1}, v{VCL}, {sr(S_DBG)}, 0 offen sc1'])
            tasks.append([at(84, 4), at(84, 8), 'S', f'buffer_store_dword v{VF+3}, v{VCL+1}, {sr(S_WS)}, 0 offen sc1'])
        fslow = []
        kslow = []
        if o.tagp:
            for g in range(0, 16, 2):
                n0 = wfirst[g]
                if g < 4: continue
                tasks.append([n0 - 8, n0 - 7, 'K', g])
                tasks.append([n0 - 2, n0 - 1, 'I', ['s_cmp_lg_u64 s[48:49], 0', f's_cbranch_scc1 L_ks{typ}{g}', f'L_kb{typ}{g}:']])
        passes = {}
        for g in range(NSTEP): passes.setdefault(S[g][0], g)
        need = [(passes[1], VF, 32 + 64 * typ), (32, VF + 6, 128), (passes[4], VF, 176), (passes[5], VF, 208), (passes[6], VF + 6, 240)]
        if o.c2split:
            need[1:2] = [(32, VF, 112), (passes[3], VF, 144)]
            o.pfcs6 = [o.pfcs[0], 10] + o.pfcs[1:]; o.fleads6 = [o.fleads[0], 8] + o.fleads[1:]
        else:
            o.pfcs6 = o.pfcs; o.fleads6 = o.fleads
        if o.yall: need[2:] = [(passes[4], 2, 176), (passes[5], 2, 176 + 72), (passes[6], 3, 176 + 144)]
        lastG = -1
        for ci, (gn, va, idx) in enumerate(need):
            v = gn - o.pfcs6[ci] - 1
            while v in vused: v -= 1
            tasks.append([at(v - o.fleads6[ci], 4), at(v - o.fleads6[ci], 8), 'F', (va, idx, ci)])
            tasks.append([at(v, 0), at(v, 1), 'G', ci])
            tasks.append([at(v, 6), at(v, 7), 'I', [f's_cbranch_vccnz L_fw{typ}{ci}', f'L_fb{typ}{ci}:']])
            fslow.append((ci, va))
            assert v not in vused, v
            vused.add(v)
            assert at(v - o.fleads6[ci], 4) > lastG, (ci, v)
            lastG = at(v, 7)
            for t in tasks:
                if t[2] == 'W' and (t[3] >= gn): t[0] = max(t[0], at(v, 8))
        tasks.append([at(v + 1, 2), at(v + 1, 8), 'A', 4])
        if typ == 0:
            for lvl, v in enumerate(o.trig): tasks.append([at(v, 2), at(v, 8), 'P', lvl + 1])
            if o.wbat: tasks.append([ntail + o.wbat, ntail + o.wbat + 6, 'P', 4])
        tasks.sort(key=lambda t: (t[0], t[1]))
        vq, lq = [], []
        dirty = [False]
        xreg, busy = {}, {}
        wn = [0]
        wr = {}
        lastw = [-100]
        later = []
        BIG = [WR + 4 * i for i in range(16)] + XWIN + [ACC['P'] + 4 * i for i in range(9)]
        for i in range(9): busy[ACC['P'] + 4 * i] = at(VP + 12)
        until = {}
        if o.chain > 1:
            BIG += XRING + [VA, VA + 4, VA + 8]
            for i in range(9):
                BIG.append(ACC['Q'] + 4 * i)
                until[ACC['Q'] + 4 * i] = min(n for n in range(N) if ops[n][1] == i and S[ops[n][0]][4] == 'Q') - 3
        def freeregs(n, end): return [x for x in BIG if busy.get(x, -1) <= n and end < until.get(x, 10**9)]
        def freepairs(n, end):
            f_ = set(freeregs(n, end))
            return [x for x in sorted(f_) if x % 8 == PAR8.get(x, -1) and x + 4 in f_]
        PAR8 = {x: x % 8 for x in list(range(WR, WR + 64, 8)) + [4, 12, 20, 240, 248, 200, 208, 216, 100, 108, 116, 124, VA]}
        def kcheck(g):
            vwait(g + 1)
            for i, gg in enumerate((g, g + 1)):
                a_ = wr[gg] - 2
                em(f'v_bitop3_b32 v{VC+i}, v{a_+1}, v{a_+6}, v{VF+3} bitop3:0x7e')
            em(f'v_or_b32 v{VC}, v{VC}, v{VC+1}')
            em(f'v_cmp_ne_u32 s[48:49], 0, v{VC}')
            kslow.append((g, wr[g] - 2, wr[g + 1] - 2))
        def wok(t, n):
            if t[2] != 'W': return True
            if t[3] != wn[0]: return False
            if o.tagp and t[3] < 16:
                return bool(freepairs(n, wlast[t[3]])) and (n - lastw[0] >= 2 or t[1] - n <= 4)
            free = len(freeregs(n, wlast[t[3]]))
            if t[1] - n <= 9 * 3: return free > 0
            return n - lastw[0] >= o.wgap and free > o.wres
        since = {}
        fill = []
        def em(x):
            e(x)
            if not x.endswith(':'):
                for jj in since: since[jj] += 1
        def lwait(tag):
            if tag not in lq: return
            i = lq.index(tag)
            em(f's_waitcnt lgkmcnt({0 if dirty[0] else len(lq)-1-i})')
            if dirty[0]: lq.clear(); dirty[0] = False
            else: del lq[:i + 1]
        def vwait(g):
            if g not in vq: return
            i = vq.index(g)
            em(f's_waitcnt vmcnt({len(vq)-1-i})')
            del vq[:i + 1]
        def run(t, n):
            kind, p = t[2], t[3]
            if kind == 'X':
                pool = BIG if (o.chain > 1 or p[-1] == 'h' or (p[2] == 'rem' and p[1] == 'D')) else XRING
                r = [x for x in pool if busy.get(x, -1) <= n and last[p] < until.get(x, 10**9)]
                assert r, ('no x register', p, n)
                r = min(r, key=lambda x: (until.get(x, 10**9), busy.get(x, -1)))
                busy[r] = last[p]; xreg[p] = r
                arr, ch, s_ = p[1], p[2], p[3]
                if o.nolds and n > 9 * 30: return
                if ch == 'rem': em(f'ds_read_b128 {vr(r,4)}, v{VXOR if arr == "O" else VXDR} offset:{288*s_}')
                else: em(f'ds_read_b128 {vr(r,4)}, v{VXO if arr == "O" else VXD} offset:{64*ch+288*s_}')
                lq.append(p)
            elif kind == 'W':
                g = p
                if o.tagp and g < 16:
                    r = min(freepairs(n, wlast[g]), key=lambda x: (until.get(x, 10**9), busy.get(x, -1)))
                    busy[r] = busy[r + 4] = wlast[g]; wr[g] = r + 2
                    assert g == wn[0]; wn[0] += 1
                    lastw[0] = n
                    em(f'buffer_load_dwordx4 {vr(r,4)}, v{VWL}, {sr(S_WS)}, s50 offen offset:{2048*(g%2)}')
                    em(f'buffer_load_dwordx4 {vr(r+4,4)}, v{VWL}, {sr(S_WS)}, s50 offen offset:{2048*(g%2)+1024}')
                    vq.append(('h', g)); vq.append(g)
                    if g % 2 == 1:
                        if n < 0: em('s_add_u32 s50, s50, 4096')
                        else: later.append('s_add_u32 s50, s50, 4096')
                    return
                r = min(freeregs(n, wlast[g]), key=lambda x: (until.get(x, 10**9), busy.get(x, -1)))
                busy[r] = wlast[g]; wr[g] = r
                assert g == wn[0]; wn[0] += 1
                lastw[0] = n
                if o.now and g > 40: return
                if o.wsame and g > 40:
                    em(f'buffer_load_dwordx4 {vr(r,4)}, v{VWL}, {sr(S_WS)}, s{WSO} offen offset:{1024*(g%4)}{wflags}'); vq.append(g); return
                em(f'buffer_load_dwordx4 {vr(r,4)}, v{VWL}, {sr(S_WS)}, s{WSO} offen offset:{1024*(g%4)}{wflags}')
                if g % 4 == 3:
                    if n < 0: em(f's_add_u32 s{WSO}, s{WSO}, 4096')
                    else: later.append(f's_add_u32 s{WSO}, s{WSO}, 4096')
                vq.append(g)
            elif kind == 'L':
                em(p[0].replace('offset:pair', 'offset:24').replace(f'v{VF+1} offset:24', f'v{VF+5} offset:24')); lq.append(p[1])
            elif kind == 'C':
                lwait(p[1]); em(p[0])
            elif kind == 'I':
                for x in p: em(x)
            elif kind == 'A':
                em('s_mov_b64 exec, 1')
                if p == 'pair': em(f'ds_add_u32 v{VF+5}, v{VF+2} offset:24')
                else: em(f'ds_add_u32 v{VF+1}, v{VF+2} offset:{p}')
                em('s_mov_b64 exec, -1')
                lq.append(('a', p))
            elif kind == 'Q':
                p, hf = p
                lwait(('pr', p))
                q = ACC['Q'] + 4 * p; t_ = TMP + 4 * (p & (3 if o.chain > 1 else 1))
                for i in (2 * hf, 2 * hf + 1): em(f'v_add_f32 v{q+i}, v{q+i}, v{t_+i}')
            elif kind == 'S':
                assert not any(isinstance(x, tuple) and x[0] == 's' for x in vq)
                em(p); vq.append(('s', n))
            elif kind == 'F':
                em(f's_mov_b32 s{FO}, {128*p[1]}')
                em(f'buffer_load_dword v{VF+4}, v{p[0]}, {sr(S_WS)}, s{FO} offen {o.fflags}'); vq.append(('f', p[2]))
            elif kind == 'K':
                kcheck(p)
            elif kind == 'G':
                vwait(('f', p)); em(f'v_cmp_ne_u32 vcc, v{VF+3}, v{VF+4}')
            elif kind == 'P':
                em(f'v_mov_b32 v{VF+7}, {p}')
                em('s_mov_b64 exec, 1')
                em(f'ds_max_u32 v{VF+1}, v{VF+7}')
                em('s_mov_b64 exec, -1')
                lq.append(('p', p))
        def epi(j, pk):
            q = ACC['Q'] + 4 * j
            t = TMP + 8 * (j & 1)
            I = []
            if pk:
                I.append(f'v_pk_mul_f32 {vr(t,2)}, {vr(q,2)}, s[{C2L}:{C2L+1}]')
                I.append(f'v_pk_mul_f32 {vr(t+2,2)}, {vr(q+2,2)}, s[{CNL}:{CNL+1}]')
            else:
                for i in (0, 1): I.append(f'v_mul_f32 v{t+i}, s{C2L}, v{q+i}')
                for i in (2, 3): I.append(f'v_mul_f32 v{t+i}, s{CNL}, v{q+i}')
            I.append(f'v_min_f32 v{t}, s{C60}, v{t}')
            I.append(f'v_min_f32 v{t+1}, s{C60}, v{t+1}')
            for i in (0, 1, 2, 3): I.append(f'v_exp_f32 v{t+i}, v{t+i}')
            if pk:
                I.append(f'v_pk_add_f32 {vr(t+4,2)}, {vr(t,2)}, 1.0 op_sel_hi:[1,0]')
                I.append(f'v_pk_add_f32 {vr(t+6,2)}, {vr(t,2)}, -1.0 op_sel_hi:[1,0]')
                I.append(f'v_pk_fma_f32 {vr(t+4,2)}, {vr(t+4,2)}, {vr(t+2,2)}, {vr(t+4,2)}')
            else:
                for i in (0, 1): I.append(f'v_add_f32 v{t+4+i}, 1.0, v{t+i}')
                for i in (0, 1): I.append(f'v_fma_f32 v{t+4+i}, v{t+4+i}, v{t+2+i}, v{t+4+i}')
            I.append(f'v_rcp_f32 v{t+4}, v{t+4}')
            I.append(f'v_rcp_f32 v{t+5}, v{t+5}')
            if pk:
                I.append('s_nop 0')
                I.append(f'v_pk_mul_f32 {vr(t+6,2)}, {vr(t+6,2)}, {vr(t+4,2)}')
            else:
                for i in (0, 1): I.append(f'v_add_f32 v{t+6+i}, -1.0, v{t+i}')
                for i in (0, 1): I.append(f'v_mul_f32 v{t+6+i}, v{t+6+i}, v{t+4+i}')
            I.append(f'v_cvt_pk_bf16_f32 v{q}, v{t+6}, v{t+7}')
            I.append(f'buffer_store_dword v{q}, v{VOUT + j//3}, {sr(S_OUT)}, 0 offen offset:{1152*(j%3)} {o.oflags if j < o.oj else ""}')
            return I
        def cost(x): return 2 if x.startswith(('v_exp', 'v_rcp', 'buffer')) else 1
        while tasks and tasks[0][0] < 0: run(tasks.pop(0), -1)
        if o.tagp and o.retry:
            vwait(3)
            for g in range(4):
                em(f'v_bitop3_b32 v{TMP+g}, v{wr[g]-1}, v{wr[g]+4}, v{VF+3} bitop3:0x7e')
            em(f'v_or3_b32 v{TMP}, v{TMP}, v{TMP+1}, v{TMP+2}')
            em(f'v_or_b32 v{TMP}, v{TMP}, v{TMP+3}')
            em(f'v_cmp_ne_u32 s[48:49], 0, v{TMP}')
            em('s_nop 2')
            em('s_cmp_lg_u64 s[48:49], 0')
            em(f's_cbranch_scc1 L_rt{typ}')
            em(f'L_rb{typ}:')
            first4 = [wr[g] - 2 for g in range(4)]
        elif o.tagp:
            for g in (0, 2):
                vwait(g + 1)
                for gg in (g + 4, g + 5):
                    t_ = [t for t in tasks if t[2] == 'W' and t[3] == gg][0]
                    tasks.remove(t_); run(t_, -1)
                kcheck(g)
                em('s_nop 2')
                em('s_cmp_lg_u64 s[48:49], 0')
                em(f's_cbranch_scc1 L_ks{typ}{g}')
                em(f'L_kb{typ}{g}:')
        inv = {n: v for v, n in vstart.items()}
        lastop = {j: max(n for n in range(N) if ops[n][1] == j) for j in range(9)}
        for n, (g, j) in enumerate(ops):
            if n in inv and o.padto and o.padev == 'm5' and inv[n] == o.padstep:
                e(f's_sub_u32 s98, s2, {o.padlo}')
                e(f's_cmp_ge_u32 s98, {o.padhi - o.padlo}')
                e(f's_cbranch_scc1 L_pr{typ}')
                e('s_memrealtime s[100:101]'); dirty[0] = True
                e(f'L_pr{typ}:')
            if n in inv and o.diag:
                v = inv[n]
                if o.diag == 2 and v in o.marks:
                    kk = o.marks.index(v)
                    e(f's_memtime s[{ST0+2*kk}:{ST0+2*kk+1}]'); dirty[0] = True
                if o.diag in (1, 4) and v == 33: stamp(5); stamp(6); dirty[0] = True
            if o.jit and n in inv and inv[n] in (20, 36, 44, 52, 60, 70, 90): jit()
            k = key(n)
            assert k in xreg, (k, n)
            lwait(k); vwait(g)
            acc = S[g][4]
            d = ACC[acc] + 4 * j
            if g == 0: cs = '0'
            elif acc == 'Q' and S[g-1][4] == 'P': cs = vr(ACC['P'] + 4 * j, 4)
            else: cs = vr(d, 4)
            em(f'v_mfma_f32_16x16x32_bf16 {vr(d,4)}, {vr(wr[g],4)}, {vr(xreg[k],4)}, {cs}' if not o.swapab else f'v_mfma_f32_16x16x32_bf16 {vr(d,4)}, {vr(xreg[k],4)}, {vr(wr[g],4)}, {cs}')
            if n == lastop[j]: since[j] = 0
            while later: em(later.pop(0))
            budget = 2
            TC = {'X': 1, 'W': 2, 'L': 2, 'C': 1, 'I': 0, 'A': 1, 'Q': 2, 'S': 2, 'F': 2, 'G': 1, 'P': 2, 'K': 2}
            while True:
                ready = [t for t in tasks if t[0] <= n and wok(t, n)]
                if not ready: break
                t = min(ready, key=lambda t: t[1])
                assert t[1] >= n, ('late', t, n)
                if TC[t[2]] > budget and t[1] > n:
                    fit = [u for u in ready if TC[u[2]] <= budget]
                    if not fit: break
                    t = min(fit, key=lambda t: t[1])
                tasks.remove(t); run(t, n); budget -= TC[t[2]]
            for jj in sorted(since):
                if 8 <= since[jj] < 10**6:
                    fill += epi(jj, False); since[jj] = 10**6
            budget += o.nfill - 2
            while fill and budget >= cost(fill[0]):
                budget -= cost(fill[0])
                if fill[0].startswith('buffer_store'):
                    q_ = int(re.match(r'buffer_store_dword v(\d+)', fill[0]).group(1))
                    until.pop(q_, None); busy[q_] = n + 2
                em(fill.pop(0))
            assert all(t[1] > n for t in tasks), ('late', n, [t for t in tasks if t[1] <= n])
        assert not tasks
        stamp(7)
        while fill: em(fill.pop(0))
        for jj in [jj for jj in sorted(since) if since[jj] < 10**6]:
            if since[jj] < 8: em(f's_nop {8-since[jj]-1}')
            for x in epi(jj, True): em(x)
        stamp(8)
        if o.padto and o.padev[0] == 'm': padloop(typ)
        if o.diag == 1:
            e('s_waitcnt vmcnt(0)')
            stamp(9)
            dump(10)
        if o.diag == 2:
            kk = len(o.marks)
            e(f's_memtime s[{ST0+2*kk}:{ST0+2*kk+1}]')
            dump(10)
        e('s_endpgm')
        for tag, off, cnt in slow:
            e(f'L_slow{typ}{tag}:')
            e(f'ds_read_b32 v{VC}, v{VF+5 if off == "pair" else VF+1} offset:{24 if off == "pair" else off}')
            e('s_waitcnt lgkmcnt(0)')
            e(f'v_cmp_ne_u32 vcc, {cnt}, v{VC}')
            e('s_nop 4')
            e(f's_cbranch_vccnz L_slow{typ}{tag}')
            e(f's_branch L_back{typ}{tag}')
        for ci, va in fslow: flagwait(f'{typ}{ci}', va, f'L_fb{typ}{ci}')
        if o.tagp and o.retry:
            e(f'L_rt{typ}:')
            if o.diag: e(f's_add_u32 s95, s95, {1 << 24}')
            e(f's_sleep {o.retry}')
            e(f'ds_read_b32 v{VF+7}, v{VF+1} offset:12')
            e('s_add_u32 s47, s96, 4096')
            e('s_waitcnt lgkmcnt(0)')
            for g, a_ in enumerate(first4):
                for hf in range(2):
                    e(f'buffer_load_dwordx4 {vr(a_+4*hf,4)}, v{VWL}, {sr(S_WS)}, s{96 if g < 2 else 47} offen offset:{2048*(g%2)+1024*hf} sc1')
            e(f'v_readfirstlane_b32 s46, v{VF+7}')
            e(f's_add_u32 s{NPOLL}, s{NPOLL}, 1')
            e('s_waitcnt vmcnt(0)')
            e('s_cmp_lg_u32 s46, 0')
            e(f's_cbranch_scc1 L_rb{typ}')
            for g in range(4):
                e(f'v_bitop3_b32 v{TMP+g}, v{first4[g]+1}, v{first4[g]+6}, v{VF+3} bitop3:0x7e')
            e(f'v_or3_b32 v{TMP}, v{TMP}, v{TMP+1}, v{TMP+2}')
            e(f'v_or_b32 v{TMP}, v{TMP}, v{TMP+3}')
            e(f'v_cmp_ne_u32 s[48:49], 0, v{TMP}')
            e('s_nop 2')
            e('s_cmp_eq_u64 s[48:49], 0')
            e(f's_cbranch_scc1 L_rb{typ}')
            e(f's_cmp_lg_u32 s{NPOLL}, {o.maxpoll}')
            e(f's_cbranch_scc1 L_rt{typ}')
            e(f'v_mov_b32 v{VF+7}, 0x10000')
            e('s_mov_b64 exec, 1')
            e(f'ds_add_u32 v{VF+1}, v{VF+7} offset:4')
            e('s_mov_b64 exec, -1')
            e(f's_branch L_rt{typ}')
        for g, a0_, a1_ in kslow:
            e(f'L_ks{typ}{g}:')
            if o.diag: e(f's_add_u32 s95, s95, {1 << 24}')
            e(f'ds_read_b32 v{VF+7}, v{VF+1} offset:12')
            e(f's_add_u32 s47, s96, {2048*g}')
            e('s_waitcnt lgkmcnt(0)')
            for i, a_ in enumerate((a0_, a0_ + 4, a1_, a1_ + 4)):
                e(f'buffer_load_dwordx4 {vr(a_,4)}, v{VWL}, {sr(S_WS)}, s47 offen offset:{1024*i} sc1')
            e(f'v_readfirstlane_b32 s46, v{VF+7}')
            e(f's_add_u32 s{NPOLL}, s{NPOLL}, 1')
            e('s_waitcnt vmcnt(0)')
            e('s_cmp_lg_u32 s46, 0')
            e(f's_cbranch_scc1 L_kb{typ}{g}')
            e(f'v_bitop3_b32 v{VC}, v{a0_+1}, v{a0_+6}, v{VF+3} bitop3:0x7e')
            e(f'v_bitop3_b32 v{VC+1}, v{a1_+1}, v{a1_+6}, v{VF+3} bitop3:0x7e')
            e(f'v_or_b32 v{VC}, v{VC}, v{VC+1}')
            e(f'v_cmp_ne_u32 s[48:49], 0, v{VC}')
            e('s_nop 2')
            e('s_cmp_eq_u64 s[48:49], 0')
            e(f's_cbranch_scc1 L_kb{typ}{g}')
            e(f's_cmp_lg_u32 s{NPOLL}, {o.maxpoll}')
            e(f's_cbranch_scc1 L_ks{typ}{g}')
            e(f'v_mov_b32 v{VF+7}, 0x10000')
            e('s_mov_b64 exec, 1')
            e(f'ds_add_u32 v{VF+1}, v{VF+7} offset:4')
            e('s_mov_b64 exec, -1')
            e(f's_branch L_ks{typ}{g}')

    mark['help0'] = len(e.L)
    if not o.hfirst: e('.p2align 6')
    e('L_helper:')
    role[0] = 'h'
    e(f's_setprio {o.hprio}')
    e(f's_sub_u32 s{TW0}, s{WAVE}, 4')
    e(f's_mov_b32 s{TW1}, s{WAVE}')
    e(f's_sub_u32 s{PAIR}, s{RID}, {NPROD}')
    e(f's_cselect_b32 s{PAIR}, s{RID}, s{PAIR}')
    e(f's_mov_b32 s{MODE}, 0')
    e(f's_mov_b32 s{NOTASK}, s{RID}')
    e(f's_mov_b32 s{HAS3}, s{TW0}')
    e(f's_lshl_b32 s{SCRB}, s{TW0}, 12')
    e(f's_add_u32 s{SCRB}, s{SCRB}, {SCR}')
    e('L_prod:')
    T = [(28, TW0, 2, 52, 0), (36, TW1, 4, 53, 2048), (44, TW2, 6, 54, 16384)]
    c, kp, q, cc, kk, t = 46, 47, 48, 49, 50, 51
    b = TS
    e('v_mov_b32 v19, 4320')
    e('v_and_b32 v23, 3, v1')
    e('v_lshrrev_b32 v24, 2, v1')
    e('v_mul_u32_u24 v24, 288, v24')
    for (vb, sw, vl, vs, so) in T:
        e(f'v_lshl_add_u32 v8, s{sw}, 2, v23' if sw != TW2 else 'v_add_u32 v8, 32, v23')
        e('v_cmp_le_u32 vcc, 18, v8')
        e(f'v_lshl_add_u32 v{vl}, v8, 4, v24')
        e(f'v_add_u32 v9, v{vl}, v19')
        e(f'v_cndmask_b32 v{vl}, v{vl}, v9, vcc')
    e(f's_and_b32 s{c}, s{PAIR}, 15')
    e(f's_lshr_b32 s{kp}, s{PAIR}, 4')
    e(f's_mul_i32 s{b}, s{c}, 165888')
    e(f's_mul_i32 s{t}, s{kp}, 9216')
    e(f's_add_u32 s{b}, s{b}, s{t}')
    e(f's_add_u32 s{b+1}, s{b}, 82944')
    e(f's_mov_b32 s{S_W+2}, 2571264')
    e(f's_mov_b32 s{S_W+3}, 0x20000')
    e(f's_mov_b32 s{S_WO+3}, s{S_W+3}')
    e(f's_cmp_lg_u32 s{c}, 15')
    e(f's_cselect_b32 s{S_WO+2}, s{S_W+2}, 0')
    e(f's_mov_b32 m0, s{SCRB}')
    e('s_waitcnt lgkmcnt(0)')
    e(f's_mov_b32 s{S_W}, s6')
    e(f's_and_b32 s{S_W+1}, s7, 0xffff')
    e(f's_mov_b32 s{S_WO}, s6')
    e(f's_and_b32 s{S_WO+1}, s7, 0xffff')
    e(f's_cmp_ge_u32 s{NOTASK}, {NTASK}')
    e('s_cbranch_scc1 L_a3')
    def cond3(lbl):
        e(f's_cmp_lg_u32 s{HAS3}, 0')
        e(f's_cbranch_scc1 {lbl}')
    for ti, (vb, sw, vl, vs, so) in enumerate(T):
        if ti == 2: cond3('L_a3')
        if ti == 1: e('s_addk_i32 m0, 1024'); e('s_nop 0')
        e(f'buffer_load_dwordx4 v{vl}, {sr(S_W)}, s{b} offen lds')
        e('s_addk_i32 m0, 1024')
        e('s_nop 0')
        e(f'buffer_load_dwordx4 v{vl}, {sr(S_WO)}, s{b+1} offen lds')
        if ti == 1: e(f's_addk_i32 m0, {16384-3072}')
    e('L_a3:')
    stamp(1)
    e(f's_cmp_lg_u32 s{MODE}, 0')
    e('s_cbranch_scc1 L_a4')
    e(f's_load_dword s{TAG}, s[12:13], {NONCE}')
    e(f's_lshr_b32 s{EARLY}, 0x33, s{kp}')
    e(f's_and_b32 s{EARLY}, s{EARLY}, 1')
    e(f's_sub_u32 s{XK}, 2, s{EARLY}')
    e(f's_lshl_b32 s{t}, s{kp}, 1')
    e(f's_lshr_b32 s{YT}, {(3<<12)+(3<<14)+(3<<16)}, s{t}')
    e(f's_and_b32 s{YT}, s{YT}, 3')
    e(f's_lshr_b32 s{t}, s{kp}, 1')
    e(f's_cmp_ge_u32 s{RID}, {NPROD}')
    e(f's_cselect_b32 s{EARLY}, 0, s{EARLY}')
    e(f's_cselect_b32 s{XK}, 3, s{XK}')
    e(f's_cselect_b32 s{YT}, s{t}, s{YT}')
    e(f's_cmp_ge_u32 s{RID}, {NPROD+32}')
    e(f's_cselect_b32 s{XK}, 0, s{XK}')
    e(f's_cmp_ge_u32 s{RID}, {NTASK}')
    e(f's_cselect_b32 s{YT}, 0, s{YT}')
    if not o.b0early:
        e(f's_cmp_lg_u32 s{EARLY}, 0')
        e('s_cbranch_scc1 L_a4')
    e('s_barrier')
    e('L_a4:')
    jit()
    e(f's_mov_b32 s{MASK}, 0xffff0000')
    e(f's_mov_b32 s{NPOLL}, 0')
    srd(e, S_WS, 12, WS_REC)
    srd(e, S_DBG, 10, 256)
    e(f'v_mov_b32 v10, {CNT}')
    e(f'v_mov_b32 v20, {(256 - 18*NSTR) & 0xffffffff}')
    e(f'v_mov_b32 v26, {NSTR}')
    e('v_bfe_u32 v21, v1, 2, 2')
    e('v_lshlrev_b32 v21, 7, v21')
    e('v_and_b32 v22, 1, v1')
    e('v_lshl_add_u32 v21, v22, 6, v21')
    e('v_bfe_u32 v22, v1, 1, 1')
    e('v_lshl_add_u32 v21, v22, 3, v21')
    e('v_lshrrev_b32 v22, 4, v1')
    e('v_lshl_add_u32 v21, v22, 4, v21')
    e(f'v_add_u32 v21, s{SCRB}, v21')
    if o.yall: e('v_mov_b32 v62, v21')
    e('v_and_b32 v25, 15, v1')
    e('v_lshlrev_b32 v25, 4, v25')
    for (vb, sw, vl, vs, so) in T:
        e(f'v_lshl_add_u32 v8, s{sw}, 2, v22' if sw != TW2 else 'v_add_u32 v8, 32, v22')
        e('v_cmp_le_u32 vcc, 18, v8')
        e(f'v_mad_u32_u24 v{vs}, v8, v26, v25')
        e(f'v_add_u32 v9, v{vs}, v20')
        e(f'v_cndmask_b32 v{vs}, v{vs}, v9, vcc')
    if o.tagp:
        e(f's_lshr_b32 s97, 0x33, s{kp}')
        e('s_and_b32 s97, s97, 1')
        e(f's_cmp_eq_u32 s{WAVE}, 4')
        e(f's_cselect_b32 s{t}, 1, s{97 if o.split1 else EARLY}')
        e(f's_cmp_lg_u32 s{t}, 0')
        e(f's_cselect_b32 s{t}, 4, -16')
        e(f'v_mov_b32 v9, s{t}')
        e('s_waitcnt lgkmcnt(0)')
        e('s_mov_b64 exec, 1')
        e(f'buffer_load_dword v27, v9, {sr(S_DBG)}, 0 offen sc1')
        e('s_mov_b64 exec, -1')
        e(f's_lshr_b32 s96, s{kp}, 2')
        e('s_lshl_b32 s96, s96, 4')
        e(f's_add_u32 s96, s96, s{c}')
        e('s_lshl_b32 s96, s96, 2')
        e(f's_and_b32 s{t}, s{kp}, 1')
        e(f's_add_u32 s96, s96, s{t}')
        e('s_lshl_b32 s96, s96, 9')
        e(f's_add_u32 s96, s96, {WOFF + 2*NSTEP*1024}')
    e(f's_lshr_b32 s{q}, s{kp}, 1')
    e(f's_and_b32 s{cc}, s{c}, 7')
    e(f's_lshr_b32 s{kk}, s{c}, 3')
    e(f's_and_b32 s{t}, s{kp}, 1')
    e(f's_cmp_eq_u32 s{kp}, 8')
    e(f's_cselect_b32 s{cc}, s{cc}, s{c}')
    e(f's_cselect_b32 s{kk}, s{kk}, s{t}')
    e(f's_lshl_b32 s{kk}, s{kk}, 9')
    e(f's_add_u32 s{kk}, s{kk}, {WOFF}')
    e(f's_lshl_b32 s{t}, s{q}, 4')
    e(f's_add_u32 s{b+2}, s{t}, s{cc}')
    e(f's_sub_u32 s{b+3}, s{b+2}, s{q}')
    e(f's_cmp_ge_u32 s{q}, 2')
    e(f's_cselect_b32 s{b+4}, 74, 0')
    e(f's_add_u32 s{b+4}, s{b+4}, s{b+2}')
    e(f's_cmp_lt_u32 s{cc}, 2')
    e(f's_cselect_b32 s{t}, 32, 136')
    e(f's_add_u32 s{t}, s{t}, s{cc}')
    e(f's_cmp_eq_u32 s{kp}, 8')
    e(f's_cselect_b32 s{b+4}, s{t}, s{b+4}')
    e(f's_add_u32 s{b+2}, s{b+2}, 34')
    e(f's_add_u32 s{b+3}, s{b+3}, 144')
    for k in (2, 3, 4):
        e(f's_lshl_b32 s{b+k}, s{b+k}, 10')
        e(f's_add_u32 s{b+k}, s{b+k}, s{kk}')
    e(f's_cmp_eq_u32 s{kp}, 8')
    e(f's_cselect_b32 s{t}, 1, 2')
    e(f's_cmp_eq_u32 s{c}, 15')
    e(f's_cselect_b32 s{b+5}, s{t}, 0')
    e(f's_lshl_b32 s46, s{WAVE}, 2')
    e(f's_add_u32 s46, s46, {CNT+16}')
    e('v_mov_b32 v55, s46')
    if o.tagp:
        e('s_waitcnt vmcnt(1)')
        stamp(2)
        e(f's_cmp_ge_u32 s{NOTASK}, {NTASK}')
        e('s_cbranch_scc1 L_x9')
    else:
        e('v_mov_b32 v27, 0')
        e('v_mov_b32 v9, 4')
        e('s_waitcnt vmcnt(0) lgkmcnt(0)')
        stamp(2)
        e(f's_cmp_lg_u32 s{WAVE}, 4')
        e('s_cbranch_scc1 L_a5')
        e('s_mov_b64 exec, 1')
        e(f'buffer_load_dword v27, v9, {sr(S_DBG)}, 0 offen sc1')
        e('s_mov_b64 exec, -1')
        e('L_a5:')
        e(f's_cmp_ge_u32 s{NOTASK}, {NTASK}')
        e('s_cbranch_scc1 L_x9')
    for (vb, sw, vl, vs, so) in T:
        for tap in range(2):
            for half in range(2):
                e(f'ds_read_b64_tr_b16 {vr(vb+4*tap+2*half,2)}, v21 offset:{so+1024*tap+512*half}')
    nlab = [0]
    def st01(vb, vs):
        nlab[0] += 1
        e(f'buffer_store_dwordx4 {vr(vb,4)}, v{vs}, {sr(S_WS)}, s{b+2} offen {o.stf}')
        e(f's_cmp_eq_u32 s{b+5}, 2')
        e(f's_cbranch_scc1 L_skip{nlab[0]}')
        e(f'buffer_store_dwordx4 {vr(vb+4,4)}, v{vs}, {sr(S_WS)}, s{b+3} offen {o.stf}')
        e(f'L_skip{nlab[0]}:')
    def st01all(lbl):
        st01(T[0][0], T[0][3]); st01(T[1][0], T[1][3])
        cond3(lbl)
        st01(T[2][0], T[2][3])
    def dosum(vb, tb, ob):
        for i in range(8):
            e(f'v_lshlrev_b32 v{tb+2*i}, 16, v{vb+i}')
            e(f'v_and_b32 v{tb+2*i+1}, s{MASK}, v{vb+i}')
        for i in range(4):
            e(f'v_pk_add_f32 {vr(tb+2*i,2)}, {vr(tb+2*i,2)}, {vr(tb+8+2*i,2)}')
        for i in range(4):
            e(f'v_cvt_pk_bf16_f32 v{ob+i}, v{tb+2*i}, v{tb+2*i+1}')
    def ldswait(off, cmp, operand, tag, slp):
        e(f'L_lw{tag}:')
        e(f'ds_read_b32 v11, v10 offset:{off}')
        e('s_waitcnt lgkmcnt(0)')
        e('v_and_b32 v11, 0xff, v11')
        e(f'v_cmp_{cmp}_u32 vcc, {operand}, v11')
        e('s_nop 4')
        e(f's_cbranch_vccnz L_lx{tag}')
        e(f's_sleep {slp}')
        e(f's_branch L_lw{tag}')
        e(f'L_lx{tag}:')
    SOR = lambda ti: (210 + 8 * ti) if o.tagp else (240 + 4 * ti)
    e(f's_or_b32 s46, s{EARLY}, s{MODE}')
    e(f's_cmp_eq_u32 s{XK}, 2')
    e('s_cselect_b32 s47, 1, s46')
    if o.xl: e('s_mov_b32 s46, s47')
    if o.split1:
        assert o.tagp and o.xl
        e('s_or_b32 s47, s47, s97')
        e(f's_andn2_b32 s50, s97, s{MODE}')
    e('s_cmp_eq_u32 s47, 0')
    e('s_cbranch_scc1 L_x9')
    if o.tagp:
        e('s_cmp_eq_u32 s97, 0')
        e('s_cbranch_scc1 L_x7')
        e('s_waitcnt vmcnt(0)')
        e('v_readfirstlane_b32 s48, v27')
        e(f's_add_u32 s49, s{TAG}, {TAGINC}')
        e('s_not_b32 s47, s49')
        e(f's_or_b32 s48, s48, s{MODE}')
        e('s_cselect_b32 s49, s47, s49')
        for ti in range(3):
            e(f'v_mov_b32 v{SOR(ti)-1}, s49')
            e(f'v_mov_b32 v{SOR(ti)+4}, s49')
        e('L_x7:')
    for ti, (vb, sw, vl, vs, so) in enumerate(T):
        if ti == 2: cond3('L_x3')
        if o.split1:
            if ti == 1: e(f's_and_b32 s47, s50, s{EARLY}')
            else: e(f's_andn2_b32 s47, s50, s{EARLY}')
            e(f's_cbranch_scc1 L_x5{ti}')
        e(f's_waitcnt lgkmcnt({8-4*ti})')
        dosum(vb, 64 + 16 * ti, SOR(ti))
        if not o.split1:
            e('s_cmp_eq_u32 s46, 0')
            e(f's_cbranch_scc1 L_x5{ti}')
        if o.tagp:
            e('s_cmp_eq_u32 s97, 0')
            e(f's_cbranch_scc1 L_x6{ti}')
            e(f'buffer_store_dwordx4 {vr(SOR(ti)-2,4)}, v{vs}, {sr(S_WS)}, s96 offen {o.stf}')
            e(f'buffer_store_dwordx4 {vr(SOR(ti)+2,4)}, v{vs}, {sr(S_WS)}, s96 offen offset:1024 {o.stf}')
            e(f's_branch L_x5{ti}')
            e(f'L_x6{ti}:')
        e(f'buffer_store_dwordx4 {vr(SOR(ti),4)}, v{vs}, {sr(S_WS)}, s{b+4} offen {o.stf}')
        e(f'L_x5{ti}:')
    e('L_x3:')
    e(f's_cmp_eq_u32 s{MODE}, 0')
    e('s_cbranch_scc1 L_x9')
    e('L_x2:')
    e('s_waitcnt lgkmcnt(0)')
    st01all('L_x4')
    e('L_x4:')
    e(f's_cmp_eq_u32 s{MODE}, 0')
    e('s_cbranch_scc1 L_x9')
    e('s_waitcnt vmcnt(0)')
    e(f's_add_u32 s{PAIR}, s{PAIR}, 1')
    e(f's_cmp_lt_u32 s{PAIR}, {NPROD}')
    e('s_cbranch_scc1 L_prod')
    e('v_mov_b32 v11, 1')
    e('ds_write_b32 v10, v11 offset:12')
    e('s_endpgm')
    e('L_x9:')
    jit()
    if o.tagp and not o.b0early:
        e(f's_cmp_eq_u32 s{EARLY}, 0')
        e('s_cbranch_scc1 L_x10')
        e('s_barrier')
        e('L_x10:')
    stamp(3)
    decode()
    e('v_subrev_u32 v4, 256, v0')
    e('v_min_u32 v4, 251, v4')
    e('v_mul_u32_u24 v3, 3641, v4')
    e('v_lshrrev_b32 v3, 16, v3')
    e('v_mul_u32_u24 v2, 18, v3')
    e('v_sub_u32 v2, v4, v2')
    e(f'v_mul_u32_u24 v3, {R}, v3')
    e(f'v_min_u32 v3, {160-R}, v3')
    e('v_mul_u32_u24 v4, 1152, v3')
    e('v_lshl_add_u32 v4, v2, 4, v4')
    e(f'v_add_u32 v12, s{XB}, v4')
    e('v_mul_u32_u24 v18, 288, v3')
    e('v_lshl_add_u32 v18, v2, 4, v18')
    e(f'v_add_u32 v19, {X_D1}, v18')
    srd(e, S_X, 4, 1152000, add=BOFF)
    e(f's_add_u32 s46, s{TAG}, {TAGINC}')
    e('v_mov_b32 v56, s46')
    e(f's_lshl_b32 s46, s{RID}, 7')
    e('v_mov_b32 v58, s46')
    e(f's_add_u32 s46, s{PAIR}, {NPROD}')
    e('s_lshl_b32 s46, s46, 7')
    e('v_mov_b32 v59, s46')
    def publish(slot, vflag, tag, first, n=0):
        e('s_mov_b64 exec, 1')
        e(f's_waitcnt vmcnt({n})')
        if first: stamp(4)
        if o.padto and tag == 'x': stamp(12)
        e('v_cmp_ne_u32 vcc, 0, v27')
        e('v_not_b32 v57, v56')
        e('s_nop 0')
        e('v_cndmask_b32 v57, v56, v57, vcc')
        e(f'ds_write_b32 v55, v57 offset:{slot}')
        e(f'ds_read_b128 v[20:23], v10 offset:{32+slot}')
        e('s_waitcnt lgkmcnt(0)')
        for i in range(4): e(f'v_xor_b32 v{20+i}, v{20+i}, v56')
        e('v_or3_b32 v20, v20, v21, v22')
        e('v_or_b32 v20, v20, v23')
        e('v_cmp_eq_u32 vcc, 0, v20')
        e('s_and_b64 exec, exec, vcc')
        e(f's_cbranch_execz L_nl{tag}')
        e(f'buffer_store_dword v56, v{vflag}, {sr(S_WS)}, 0 offen sc1')
        e(f'L_nl{tag}:')
        e('s_mov_b64 exec, -1')
    if o.tagp and o.xl:
        e(f's_cmp_lg_u32 s{XK}, 2')
        e('s_cbranch_scc1 L_noflag')
        publish(0, 58, 'x', True)
        e(f's_mov_b32 s{XK}, 0')
    elif o.xl:
        e(f's_cmp_ge_u32 s{RID}, {NPROD}')
        e('s_cbranch_scc1 L_noflag')
        publish(0, 58, 'x', True)
        e(f's_mov_b32 s{XK}, 0')
        e(f's_cmp_eq_u32 s{EARLY}, 0')
        e('s_cbranch_scc1 L_noflag')
        if not o.b0early: e('s_barrier')
    elif not o.tagp:
        e(f's_cmp_eq_u32 s{EARLY}, 0')
        e('s_cbranch_scc1 L_noflag')
        publish(0, 58, 'x', True)
        if not o.b0early: e('s_barrier')
    e('L_noflag:')
    e(f's_setprio {o.hprio2}')
    RAW, ORAW = 64, 120
    EU = [184, 192]
    OU, DT, DO = 200, 208, 216
    xi = [0]
    NL = R + 1
    hq = []
    def eload():
        k = xi[0]
        if k >= NL: return
        a_ = 12
        if k:
            a_ = 13 + (k & 3)
            e(f'v_add_u32 v{a_}, {1152*k}, v12')
        e(f'buffer_load_dwordx4 {vr(RAW+4*k,4)}, v{a_}, {sr(S_X)}, 0 offen')
        xi[0] += 1
        hq.append(('e', k))
    if o.etouch:
        e(f's_cmp_lt_u32 s{RID}, {NTASK}')
        e('s_cbranch_scc1 L_net')
        e(f's_and_b32 s46, s{NB}, 1')
        e(f's_mul_i32 s46, s46, {1152*6}')
        e('v_add_u32 v12, s46, v12')
        for _ in range(7): eload()
        e('v_subrev_u32 v12, s46, v12')
        e('s_waitcnt vmcnt(0)')
        e('L_net:')
        xi[0] = 0; hq.clear()
    YA = 232
    e(f's_cmp_eq_u32 s{b+5}, 2')
    e('s_cselect_b32 s46, 0x80000000, 0')
    e(f's_cmp_lg_u32 s{HAS3}, 0')
    e('s_cselect_b32 s47, 0x80000000, 0')
    e('s_or_b32 s48, s46, s47')
    for i in range(6):
        m_ = {0: None, 1: 46, 2: None, 3: 46, 4: 47, 5: 48}[i]
        e(f'v_mov_b32 v{YA+i}, v{52+i//2}' if m_ is None else f'v_or_b32 v{YA+i}, s{m_}, v{52+i//2}')
    def ystore(i, a_):
        e(f'buffer_store_dwordx4 {vr(28+4*i,4)}, v{a_}, {sr(S_WS)}, s{b+2+(i&1)} offen {o.stf}')
        hq.append(('y', i))
    if o.yall:
        assert o.d0p
        e(f's_add_u32 s44, s{RID}, 76')
        e(f's_cmp_ge_u32 s44, {NWG}')
        e(f's_cselect_b32 s45, {NWG}, 0')
        e('s_sub_u32 s44, s44, s45')
        e(f's_add_u32 s46, s44, {NPROD + 32}')
        e('s_lshl_b32 s46, s46, 7')
        e('v_mov_b32 v59, s46')
        e('s_mul_hi_u32 s45, s44, 477218589')
        e('s_mul_i32 s46, s45, 9')
        e('s_sub_u32 s44, s44, s46')
        e(f's_lshr_b32 s{YT}, s45, 3')
        e(f's_add_u32 s{YT}, s{YT}, 1')
        e(f's_min_u32 s{YT}, s{YT}, 3')
        e('s_lshl_b32 s45, s45, 2')
        e(f's_add_u32 s45, s45, s{WAVE}')
        e('s_add_u32 s45, s45, 28')
        e('s_and_b32 s46, s45, 15')
        e('s_lshr_b32 s47, s45, 4')
        e('s_mul_i32 s54, s46, 165888')
        e('s_mul_i32 s48, s47, 9216')
        e('s_add_u32 s54, s54, s48')
        e('s_add_u32 s95, s54, 82944')
        e('s_cmp_lg_u32 s46, 15')
        e(f's_cselect_b32 s{S_WO+2}, 2571264, 0')
        e('s_cselect_b32 s51, 0, 0x80000000')
        e('s_lshr_b32 s48, s47, 1')
        e('s_and_b32 s49, s46, 7')
        e('s_lshr_b32 s50, s46, 3')
        e('s_and_b32 s45, s47, 1')
        e('s_cmp_eq_u32 s47, 8')
        e('s_cselect_b32 s49, s49, s46')
        e('s_cselect_b32 s50, s50, s45')
        e('s_cselect_b32 s51, 0, s51')
        e('s_lshl_b32 s50, s50, 9')
        e(f's_add_u32 s50, s50, {WOFF}')
        e('s_lshl_b32 s68, s48, 4')
        e('s_add_u32 s68, s68, s49')
        e('s_sub_u32 s69, s68, s48')
        e('s_add_u32 s68, s68, 34')
        e('s_add_u32 s69, s69, 144')
        for r_ in (68, 69):
            e(f's_lshl_b32 s{r_}, s{r_}, 10')
            e(f's_add_u32 s{r_}, s{r_}, s50')
        e('v_and_b32 v2, 3, v1')
        e('v_lshl_add_u32 v2, s44, 2, v2')
        e('v_lshrrev_b32 v3, 4, v1')
        e('v_lshl_add_u32 v3, s44, 2, v3')
        e('v_cmp_le_u32 vcc, 18, v2')
        e('v_cmp_le_u32 s[46:47], 18, v3')
        e('v_lshl_add_u32 v63, v2, 4, v24')
        e('v_mad_u32_u24 v60, v3, v26, v25')
        e('v_add_u32 v2, 4320, v63')
        e(f'v_add_u32 v3, {(256 - 18*NSTR) & 0xffffffff}, v60')
        e('v_cndmask_b32 v63, v63, v2, vcc')
        e('v_cndmask_b32 v60, v60, v3, s[46:47]')
        e('v_or_b32 v61, s51, v60')
    def ydma():
        if not o.yall: return
        e(f's_mov_b32 m0, s{SCRB}')
        e('s_nop 0')
        e(f'buffer_load_dwordx4 v63, {sr(S_W)}, s54 offen lds')
        e('s_addk_i32 m0, 1024')
        e('s_nop 0')
        e(f'buffer_load_dwordx4 v63, {sr(S_WO)}, s95 offen lds')
        hq.append('d0'); hq.append('d1')
    stamp(5)
    ldswait(8, 'eq', 4, 'o', 1)
    def unpack(dst, s_):
        for i in range(4):
            e(f'v_lshlrev_b32 v{dst+2*i}, 16, v{s_+i}')
            e(f'v_and_b32 v{dst+2*i+1}, s{MASK}, v{s_+i}')
    def unpackE(dst, k):
        e(f's_waitcnt vmcnt({len(hq)-1-hq.index(("e", k))})')
        unpack(dst, RAW + 4 * k)
        eload()
    def diff(eu, out):
        for i in range(8): e(f'v_sub_f32 v{DT+i}, v{eu+i}, v{OU+i}')
        for i in range(4):
            e(f'v_cvt_pk_bf16_f32 v{out+i}, v{DT+2*i}, v{DT+2*i+1}')
    def opengate():
        if not o.gate: return
        e('v_mov_b32 v11, 0x100')
        e('s_mov_b64 exec, 1')
        e('ds_add_u32 v10, v11 offset:8')
        e('s_mov_b64 exec, -1')
    def rows(hook):
        jit()
        stamp(6)
        for j in range(R):
            e(f'ds_read_b128 {vr(ORAW+4*j,4)}, v18 offset:{X_O+288*j}')
        unpackE(EU[0], 0)
        e('s_waitcnt lgkmcnt(0)')
        hook(-1)
        for j in range(R):
            o0 = DO + 8 * (j & 1)
            unpack(OU, ORAW + 4 * j)
            diff(EU[j & 1], o0)
            e(f'ds_write_b128 v18, {vr(o0,4)} offset:{X_D0+288*j}')
            unpackE(EU[(j + 1) & 1], j + 1)
            diff(EU[(j + 1) & 1], o0 + 4)
            e(f'ds_write_b128 v19, {vr(o0+4,4)} offset:{288*j}')
            hook(j)
    if o.apath:
        e(f's_cmp_ge_u32 s{RID}, {NPROD + (32 if o.d0p else 0)}')
        e('s_cbranch_scc1 L_pathA')
    if o.d0row >= 0: e(f's_cmp_lg_u32 s{XK}, 2')
    else: e(f's_cmp_lt_u32 s{XK}, 2')
    e('s_cbranch_scc1 L_nox')
    if o.d0p:
        e(f's_cmp_eq_u32 s{XK}, 3')
        e('s_cbranch_scc1 L_xd')
    for i in range(3):
        e(f'buffer_store_dwordx4 {vr(SOR(i),4)}, v{YA+2*i}, {sr(S_WS)}, s{b+4} offen {o.stf}')
    if o.d0p:
        e('s_branch L_xe')
        e('L_xd:')
        for i in range(6): ystore(i, YA + i)
        e('L_xe:')
    if o.gearly:
        opengate()
        publish(0, 58, 'x2', True)
        e('s_branch L_nox2')
        e('L_nox:')
        if o.gdel:
            e(f's_cmp_ge_u32 s{RID}, {NPROD}')
            e('s_cbranch_scc1 L_nox2')
        opengate()
        e('L_nox2:')
    else:
        publish(0, 58, 'x2', True)
        e('L_nox:')
        opengate()
    hq.clear(); xi[0] = 0
    for _ in range(o.ein): eload()
    def hookP(j):
        if j == o.ydrow: ydma()
        if o.gdel and j == o.gdel - 2:
            e(f's_cmp_lt_u32 s{RID}, {NPROD}')
            e('s_cbranch_scc1 L_gd')
            opengate()
            e('L_gd:')
        if j == o.d0row and j >= 0:
            e(f's_cmp_lg_u32 s{XK}, 3')
            e('s_cbranch_scc1 L_yn1')
            keep = list(hq)
            for i in range(6): ystore(i, YA + i)
            hq[:] = keep
            e('L_yn1:')
        if o.d0row >= 0 and j == o.d0row + o.d0row2:
            e(f's_cmp_lg_u32 s{XK}, 3')
            e('s_cbranch_scc1 L_yn2')
            publish(0, 58, 'yn', True)
            e('L_yn2:')
        if o.ymid and j == o.ymid:
            e(f's_cmp_lg_u32 s{YT}, 1')
            e('s_cbranch_scc1 L_ym1')
            keep = list(hq)
            for i in range(6): ystore(i, YA + i)
            hq[:] = keep
            e('L_ym1:')
        if o.ymid and j == o.ymid + o.ymid2:
            e(f's_cmp_lg_u32 s{YT}, 1')
            e('s_cbranch_scc1 L_ym2')
            publish(16, 59, 'ym', False)
            if o.diag == 1: stamp(8)
            e(f's_mov_b32 s{YT}, 0')
            e('L_ym2:')
    rows(hookP)
    if o.apath:
        e('s_branch L_rowsdone')
        e('L_pathA:')
        if not o.d0p:
            e(f's_cmp_eq_u32 s{XK}, 3')
            e('s_cselect_b32 s47, 0, 0x80000000')
            for i in range(6): e(f'v_or_b32 v{20+i}, s47, v{YA+i}')
        hq.clear(); xi[0] = 0
        for _ in range(NL): eload()
        if not o.d0p:
            for i in range(6): ystore(i, 20 + i)
        def hookA(j):
            if j == o.grow + 1: ydma()
            if j == o.grow:
                e(f's_waitcnt vmcnt({len(hq)-1-hq.index(("e", NL-1))})')
                opengate()
            if j == o.xrow and not o.d0p:
                e(f's_cmp_lg_u32 s{XK}, 3')
                e('s_cbranch_scc1 L_xp')
                publish(0, 58, 'x3', True)
                e('L_xp:')
        rows(hookA)
    e('L_rowsdone:')
    e('s_waitcnt lgkmcnt(0)')
    stamp(7)
    e('v_mov_b32 v11, 1')
    e('s_mov_b64 exec, 1')
    e('ds_add_u32 v10, v11 offset:16')
    e('s_mov_b64 exec, -1')
    e(f's_cmp_eq_u32 s{YT}, 0')
    e('s_cbranch_scc1 L_noy')
    e(f's_setprio {o.yprio}')
    if o.yall:
        e('s_waitcnt vmcnt(0)')
        for tap in range(2):
            for half in range(2):
                e(f'ds_read_b64_tr_b16 {vr(28+4*tap+2*half,2)}, v62 offset:{1024*tap+512*half}')
    e('L_yw:')
    e('ds_read_b64 v[20:21], v10')
    e('s_waitcnt lgkmcnt(0)')
    e('v_lshrrev_b32 v21, 14, v21')
    e('v_and_b32 v21, -4, v21')
    e('v_or_b32 v20, v20, v21')
    e(f'v_cmp_le_u32 vcc, s{YT}, v20')
    e('s_nop 4')
    e('s_cbranch_vccnz L_yx')
    e('s_sleep 4')
    e('s_branch L_yw')
    e('L_yx:')
    jit()
    if o.yall:
        e(f'buffer_store_dwordx4 v[28:31], v60, {sr(S_WS)}, s68 offen {o.stf}')
        e(f'buffer_store_dwordx4 v[32:35], v61, {sr(S_WS)}, s69 offen {o.stf}')
    else:
      for i in range(6):
        ystore(i, YA + i)
        e(f's_waitcnt vmcnt({o.ythr})')
        if o.ysleep: e(f's_sleep {o.ysleep}')
    publish(16, 59, 'y', False)
    if o.diag == 1: stamp(8)
    e('L_noy:')
    e(f's_cmp_lg_u32 s{WAVE}, 4')
    e('s_cbranch_scc1 L_hend')
    e('L_guard:')
    e('ds_read_b32 v11, v10 offset:4')
    e('s_waitcnt lgkmcnt(0)')
    e('v_readfirstlane_b32 s46, v11')
    e('s_nop 3')
    e('s_cmp_eq_u32 s46, 4')
    e(f's_cbranch_scc1 {"L_wb" if o.wbat else "L_hend"}')
    e('s_cmp_lt_u32 s46, 0x10000')
    e('s_cbranch_scc0 L_rescue')
    e('s_sleep 16')
    e('s_branch L_guard')
    if o.wbat:
        e('L_wb:')
        e('s_lshr_b32 s46, s2, 3')
        e(f's_cmp_lg_u32 s46, 5')
        e('s_cbranch_scc1 L_hend')
        ldswait(0, 'eq', 4, 'w', 2)
        e('buffer_wbl2 sc1')
        e('s_waitcnt vmcnt(0)')
        e('s_branch L_hend')
    e('L_rescue:')
    e(f's_mov_b32 s{MODE}, 1')
    e(f's_mov_b32 s{HAS3}, 1')
    e(f's_mov_b32 s{NOTASK}, 0')
    e(f's_lshr_b32 s{TW0}, s{NB}, 1')
    e(f's_add_u32 s{TW1}, s{NB}, 9')
    e(f's_lshr_b32 s{TW1}, s{TW1}, 1')
    e(f's_mov_b32 s{PAIR}, 0')
    e('s_branch L_prod')
    e('L_hend:')
    if o.padto and o.padev[0] == 'h': padloop('h')
    if o.diag == 1:
        stamp(9)
        dump(10)
    e('L_end:')
    e('s_endpgm')
    if o.hfirst:
        m0, h0 = mark['main0'], mark['help0']
        e.L = e.L[:m0] + e.L[h0:] + ['.p2align 6'] + e.L[m0:h0]
    e('L_codeend:')
    e('.section .rodata,"a"')
    e('.p2align 6')
    e(f'.amdhsa_kernel {KN}')
    for x in ['next_free_vgpr 256', 'next_free_sgpr 102', 'accum_offset 256', 'group_segment_fixed_size 0', 'kernarg_size 40',
              'user_sgpr_count 2', 'user_sgpr_kernarg_segment_ptr 1', 'system_sgpr_workgroup_id_x 1']:
        e('  .amdhsa_' + x)
    e('.end_amdhsa_kernel')
    n = haz.check(e.L)
    if n: print(f'{n} hazards', file=sys.stderr)
    return f'; @launch grid=({NWG},1,1) block=(512,1,1) lds={LDS_BYTES}\n' + HEADER + e.text()

def opts(argv=None):
    ap = argparse.ArgumentParser()
    ap.add_argument('-o', default='k.s')
    for nm, d in [('diag', 0), ('pf', 16), ('pf0', 8), ('wgap', 4), ('wres', 4), ('wsc1', 0), ('nfill', 2), ('fstride', 128), ('sleep', 0), ('maxpoll', 3000), ('nopoll', 0),
                  ('hprio', 3), ('hprio2', 0), ('mprio', 2), ('epre', 0), ('ein', 4), ('dpre', 7), ('b0early', 0), ('mtouch', 4), ('gate', 1), ('swapab', 0), ('d0p', 1), ('map', 1), ('chain', 4), ('retry', 0), ('gdel', 0), ('padlo', 0), ('padhi', 252), ('d0row', 1), ('c2split', 1), ('d0row2', 1), ('split1', 0), ('ymid', 4), ('ymid2', 2), ('wbat', 0), ('jit', 0), ('apath', 0), ('rmap', 0), ('yall', 0), ('ydrow', 6), ('flat0', 1), ('flatzz', 0), ('tagp', 1), ('tpf', 5), ('xl', 1), ('p0plain', 0), ('onepoll', 0), ('epoll', 1), ('ppoll', 0), ('yprio', 3), ('ysleep', 0), ('vt', 94), ('tla', 40), ('tskip', 2), ('gearly', 1), ('chfrom', 8), ('oj', 9), ('nolds', 0), ('now', 0), ('wsame', 0), ('grow', 1), ('vbd', 33), ('nopk', 1), ('padto', 0), ('npdelay', 0), ('opre', 4), ('etouch', 0), ('orev', 1), ('b0late', 1), ('dec', 1), ('tail', 1), ('xla', 9), ('hold', 1), ('prest', 0), ('xslot', 0), ('noclosed', 0), ('cpf', 1), ('hfirst', 1), ('warmb', 1), ('wsfirst', 0), ('flead', 6), ('ythr', 6), ('xrow', 3), ('padstep', 33), ('probe', 0), ('probeoff', 0x4000000)]:
        ap.add_argument('--' + nm, type=int, default=d)
    ap.add_argument('--oflags', default='')
    ap.add_argument('--pmap', default='18,18,18,18,18,18,18,18')
    ap.add_argument('--padev', default='m0')
    ap.add_argument('--trig', default='10,25,40')
    ap.add_argument('--yrow', default='0,7,2,9,5,11')
    ap.add_argument('--pfcs', default='4,3,5,5,5')
    ap.add_argument('--fflags', default='')
    ap.add_argument('--fleads', default='6,5,6,6,6')
    ap.add_argument('--stf', default='sc1')
    ap.add_argument('--marks', default='0,4,8,12,16,24,33,47,58')
    o = ap.parse_args(argv)
    o.marks = [int(x) for x in o.marks.split(',')]
    o.yrow = [int(x) for x in o.yrow.split(',')]
    o.pfcs = [int(x) for x in o.pfcs.split(',')]
    o.fleads = [int(x) for x in o.fleads.split(',')]
    o.trig = [int(x) for x in o.trig.split(',')]
    return o

if __name__ == '__main__':
    o = opts()
    open(o.o, 'w').write(gen(o))
```

```python
import re, sys, argparse
import haz

KN = 'standalone__autoregressive_conv_wavernn__speech_kernel'
NWG = 252
NPROD = 144
ARR = 160 * 288
X_D0, X_O, X_D1 = 0, ARR, 2 * ARR
CNT = 3 * ARR
SCR = CNT + 64
LDS_BYTES = SCR + 18432
NSTEP = 106
WOFF = int(__import__('os').environ.get('WOFF', '0x100000'), 0)
NONCE = 0x10000
DIAG = 0x800000
WS_REC = max(0x1000000, WOFF + 0x400000, int(__import__('os').environ.get('WSREC', '0'), 0))
TAGINC = 0x9E3779B9
R = 12


HEADER = """; Gated dilated causal convolution, out = tanh(f) * sigmoid(g), h = [f g] = sum_i x[t + 2i - 60] w[i].
;
; A workgroup owns 144 output pairs x 16 output columns (f and g). Waves 0-3 run the matrix loop (two column tiles x
"""

class Em:
    def __init__(self): self.L = []
    def __call__(self, s): self.L.append(s)
    def text(self): return '\n'.join(self.L) + '\n'

def vr(a, n=1): return f'v{a}' if n == 1 else f'v[{a}:{a+n-1}]'
def sr(a, n=4): return f's[{a}:{a+n-1}]'

def streams():
    out = []
    for typ in (0, 1):
        S = []
        pid = [0]
        def add(arr, chunk, cs, acc):
            for c in cs: S.append((pid[0], arr, chunk, c, acc))
            pid[0] += 1
        if typ == 0:
            add('O', 0, range(16), 'P'); add('O', 1, range(16), 'P'); add('O', 'rem', range(0, 2), 'P')
            for q in range(4): add('D', q, range(16), 'Q')
            add('D', 'rem', range(8), 'Q')
        else:
            add('O', 2, range(16), 'P'); add('O', 3, range(16), 'P'); add('O', 'rem', range(2, 8), 'P')
            for q in range(4): add('D', q, range(15), 'Q')
            add('D', 'rem', range(8), 'Q')
        assert len(S) == NSTEP
        out.append(S)
    return out

S_X, S_W, S_WO, S_WS, S_OUT, S_DBG = 20, 24, 28, 32, 36, 40
WAVE, NB, BAT, PAR, MB, BOFF = 14, 15, 16, 17, 18, 19
PAIR0 = 3
XB = 52
MASK = 53
TW0, TW1, TW2, PAIR, HAS3, MODE, SCRB, TAG, LAST, NPOLL = 44, 45, 54, 55, 56, 57, 58, 59, 60, 61
TS = 62
TYP, WSO = 68, 69
EARLY, XK, YT, FIDX = 90, 91, 92, 93
NOTASK = 94
FO = 97
C2L, CNL, C60 = 90, 92, 94
ST0 = 70

def srd(e, d, ptr, rec, add=None):
    if add is None:
        e(f's_mov_b32 s{d}, s{ptr}')
        e(f's_and_b32 s{d+1}, s{ptr+1}, 0xffff')
    else:
        e(f's_add_u32 s{d}, s{ptr}, s{add}')
        e(f's_addc_u32 s{d+1}, s{ptr+1}, 0')
        e(f's_and_b32 s{d+1}, s{d+1}, 0xffff')
    e(f's_mov_b32 s{d+2}, {rec}')
    e(f's_mov_b32 s{d+3}, 0x20000')

def gen(o):
    e = Em()
    NSTR = 2 * NSTEP * 1024 + (65536 if o.tagp else 0)
    if o.tagp: o.epoll = 0
    NTASK = NPROD + (32 if o.yall else 96)
    role = ['m']
    jn = [0]
    def jit():
        if not o.jit: return
        jn[0] += 1
        k = jn[0]
        e(f's_mul_i32 s98, s2, {37 + 2 * k + o.jit * 10}')
        e(f's_mul_i32 s99, s{WAVE}, {11 + 6 * k + o.jit}')
        e('s_add_u32 s98, s98, s99')
        e('s_bitcmp1_b32 s98, 3')
        e(f's_cbranch_scc1 L_jit{k}')
        e(f's_sleep {30 + (k * 17 + o.jit * 5) % 90}')
        e(f'L_jit{k}:')
    def padloop(tag):
        e(f'L_pad{tag}:')
        e('s_memrealtime s[98:99]')
        e('s_waitcnt lgkmcnt(0)')
        e('s_sub_u32 s98, s98, s100')
        e(f's_cmp_lt_u32 s98, {o.padto}')
        e(f's_cbranch_scc1 L_pad{tag}')
    def stamp(k, lvl=1):
        if o.padto and lvl == 1 and o.padev == f'{role[0]}{k}':
            e('s_memrealtime s[100:101]'); e('s_waitcnt lgkmcnt(0)')
        if o.diag == lvl or (o.diag == 4 and lvl == 1): e(f's_memrealtime s[{ST0+2*k}:{ST0+2*k+1}]')
    def dump(nst):
        e('s_waitcnt lgkmcnt(0)')
        e('v_mov_b32 v250, 0')
        for k in range(nst): e(f'v_writelane_b32 v250, s{ST0+2*k}, {k}')
        e(f'v_writelane_b32 v250, s{NPOLL}, 13')
        e(f'v_writelane_b32 v250, s95, 12')
        e(f'v_writelane_b32 v250, s{3 if o.rmap else 2}, 14')
        e('s_getreg_b32 s46, hwreg(HW_REG_XCC_ID)')
        e('v_writelane_b32 v250, s46, 15')
        e(f's_lshl_b32 s46, s2, 3'); e(f's_add_u32 s46, s46, s{WAVE}'); e('s_lshl_b32 s46, s46, 6'); e(f's_add_u32 s46, s46, {DIAG}')
        e('v_lshl_add_u32 v251, v1, 2, s46')
        e('s_mov_b64 exec, 0xffff')
        e(f'buffer_store_dword v250, v251, {sr(S_WS)}, 0 offen')
        e('s_mov_b64 exec, -1')

    e('.amdgcn_target "amdgcn-amd-amdhsa--gfx950"')
    e('.text')
    e(f'.globl {KN}')
    e('.p2align 8')
    e(f'.type {KN},@function')
    e(f'{KN}:')
    e(f's_cmp_ge_u32 s2, {NWG}')
    e('s_cbranch_scc1 L_end')
    stamp(0)
    if o.padto and o.padev != 'm0': e('s_memrealtime s[100:101]')
    e('s_load_dwordx4 s[4:7], s[0:1], 0')
    e('s_load_dwordx4 s[8:11], s[0:1], 16')
    e('s_load_dwordx2 s[12:13], s[0:1], 32')
    e('v_lshrrev_b32 v2, 6, v0')
    e('v_and_b32 v1, 63, v0')
    e(f'v_readfirstlane_b32 s{WAVE}, v2')
    def decode():
        e('s_and_b32 s44, s2, 7')
        e('s_lshr_b32 s45, s2, 3')
        e('s_mul_i32 s46, s44, 31')
        e('s_min_u32 s44, s44, 4')
        e('s_add_u32 s46, s46, s44')
        e('s_add_u32 s46, s46, s45')
        if o.map == 0:
            e('s_mul_hi_u32 s47, s46, 68174085')
            e('s_mul_i32 s48, s47, 63')
            e('s_sub_u32 s48, s46, s48')
            e(f's_mul_hi_u32 s{NB}, s48, 613566757')
            e(f's_mul_i32 s49, s{NB}, 7')
            e('s_sub_u32 s49, s48, s49')
            e('s_mul_i32 s47, s47, 7')
            e('s_add_u32 s47, s47, s49')
        elif o.map == 1:
            e('s_mul_hi_u32 s47, s46, 477218589')
            e('s_mul_i32 s48, s47, 9')
            e(f's_sub_u32 s{NB}, s46, s48')
        else:
            e('s_mul_hi_u32 s47, s46, 34087043')
            e('s_mul_i32 s48, s47, 126')
            e('s_sub_u32 s48, s46, s48')
            e(f's_mul_hi_u32 s{NB}, s48, 306783379')
            e(f's_mul_i32 s49, s{NB}, 14')
            e('s_sub_u32 s49, s48, s49')
            e('s_mul_i32 s47, s47, 14')
            e('s_add_u32 s47, s47, s49')
        e(f's_and_b32 s{PAR}, s47, 1')
        e('s_lshr_b32 s47, s47, 1')
        e('s_cmp_ge_u32 s47, 7')
        e(f's_cselect_b32 s{BOFF}, 1152000, 0')
        e('s_cselect_b32 s48, 7, 0')
        e(f's_sub_u32 s{MB}, s47, s48')
        e(f's_mul_i32 s{XB}, s{MB}, 576')
        e(f's_add_u32 s{XB}, s{XB}, s{PAR}')
        e(f's_sub_u32 s{XB}, s{XB}, 60')
        e(f's_mul_i32 s{XB}, s{XB}, 288')
    RID = 3 if o.rmap else 2
    if o.rmap:
        e('s_and_b32 s44, s2, 3')
        e('s_lshr_b32 s45, s2, 3')
        e('s_lshl2_add_u32 s3, s45, s44')
        e('s_and_b32 s44, s2, 4')
        e('s_lshl_b32 s44, s44, 5')
        e('s_add_u32 s3, s3, s44')
    e(f's_cmp_ge_u32 s{WAVE}, 4')
    e('s_cbranch_scc1 L_helper')
    if o.cpf:
        e('s_lshr_b32 s44, s2, 3')
        e(f's_lshl_b32 s45, s{WAVE}, 5')
        e('s_add_u32 s44, s44, s45')
        e('s_sub_u32 s44, s44, 26')
        e('s_cmp_ge_u32 s44, 5')
        e('s_cbranch_scc1 L_main')
        e('s_getpc_b64 s[46:47]')
        e('L_pc:')
        e('s_lshl_b32 s44, s44, 13')
        e('v_lshl_add_u32 v2, v1, 7, s44')
        e('v_min_u32 v2, L_codeend-L_pc-4, v2')
        e('global_load_dword v63, v2, s[46:47]')
    if o.hfirst: e('s_branch L_main')
    mark = {'main0': len(e.L)}
    e('L_main:')
    e(f's_mov_b32 s{MASK}, 0xffff0000')
    e(f's_mov_b32 s{NPOLL}, 0')
    if o.diag: e('s_mov_b32 s95, 0')
    decode()

    VXO, VXOR, VXD, VXDR, VWL, VEX, VEXP, VOUT = 30, 31, 32, 33, 34, 35, 36, 37
    VF = 40
    VA = 48
    VCL = 60
    e('v_mul_u32_u24 v3, 3641, v0')
    e('v_lshrrev_b32 v3, 16, v3')
    e('v_mul_u32_u24 v2, 18, v3')
    e('v_sub_u32 v2, v0, v2')
    e('v_mul_u32_u24 v3, 1152, v3')
    e('v_lshl_add_u32 v3, v2, 4, v3')
    e(f's_add_u32 s46, s{XB}, 576')
    e(f'v_add_u32 v{VA}, s46, v3')
    e('v_mov_b32 v5, 16192')
    e('v_mov_b32 v6, 17056')
    for k in range(1, 12):
        e('v_cmp_le_u32 vcc, 14, v2')
        e('v_add_u32 v3, 4, v2')
        e('v_subrev_u32 v4, 14, v2')
        e('v_cndmask_b32 v7, v5, v6, vcc')
        e('v_cndmask_b32 v2, v3, v4, vcc')
        e(f'v_add_u32 v{VA+k}, v{VA+k-1}, v7')
    e(f's_lshl_b32 s50, s{WAVE}, 10')
    e(f's_add_u32 s50, s50, {X_O}')
    e(f's_add_u32 s51, s50, {4096*11}')
    e('s_movk_i32 s49, 4096')
    if o.orev:
        e(f's_bitcmp0_b32 s{NB}, 0')
        e('s_cbranch_scc1 L_fwd')
        for k in range(5): e(f'v_swap_b32 v{VA+k}, v{VA+10-k}')
        e(f's_add_u32 s50, s50, {4096*10}')
        e('s_movk_i32 s49, -4096')
        e('L_fwd:')
    e(f'v_mov_b32 v{VF+1}, {CNT}')
    for r in range(4, 8): e(f'v_mov_b32 v{r}, 0')
    e(f'ds_write_b128 v{VF+1}, v[4:7]')
    e(f'ds_write_b128 v{VF+1}, v[4:7] offset:16')
    e('s_waitcnt lgkmcnt(0)')
    e(f's_load_dword s{TAG}, s[12:13], {NONCE}')
    srd(e, S_X, 4, 1152000, add=BOFF)
    def odma(k):
        e(f's_mov_b32 m0, s{51 if k == 11 else 50}')
        e('s_add_u32 s50, s50, s49')
        e(f'buffer_load_dwordx4 v{VA+k}, {sr(S_X)}, 0 offen lds')
    def etouch():
        e(f'buffer_load_dword v62, v9, {sr(S_X)}, 0 offen')
    if o.mtouch and o.tskip:
        e(f's_lshr_b32 s47, s{RID}, 4')
        e('s_lshr_b32 s47, 0x33, s47')
        e('s_lshl_b32 s47, s47, 31')
    if o.mtouch:
        e('v_min_u32 v8, 39, v1')
        e('v_lshrrev_b32 v9, 2, v8')
        e(f's_mul_i32 s46, s{WAVE}, 10')
        e('v_add_u32 v9, s46, v9')
        e(f'v_mul_u32_u24 v9, {4*1152}, v9')
        e('v_and_b32 v8, 3, v8')
        e('v_mul_u32_u24 v8, 92, v8')
        e(f's_and_b32 s46, s{NB}, {7 if o.mtouch == 4 else 3}')
        e(f's_mul_i32 s46, s46, {576 if o.mtouch == 4 else 1152}')
        e(f's_add_u32 s46, s46, s{XB}')
        e('v_add3_u32 v9, v9, v8, s46')
        if o.tskip == 1: e('v_or_b32 v9, s47, v9')
    if o.mtouch == 4 and o.tskip == 2:
        e('s_cmp_eq_u32 s47, 0')
        e('s_cbranch_scc1 L_tn')
        e('s_waitcnt lgkmcnt(0)')
        e('L_tn:')
    if o.mtouch in (2, 4): etouch()
    if o.padto and o.padev == 'm13':
        e('s_waitcnt vmcnt(0)'); stamp(13)
    if o.padto and o.padev == 'm14':
        odma(0); e('s_sub_u32 s50, s50, s49'); e('s_waitcnt vmcnt(0)'); stamp(14)
    if o.padto: stamp(10)
    for k in range(o.opre): odma(k)
    e('s_barrier')
    stamp(1)
    jit()
    if o.mtouch == 3: etouch()
    for k in range(o.opre, 12):
        if k == 11:
            e(f's_cmp_lg_u32 s{WAVE}, 0')
            e('s_cbranch_scc1 L_o11')
        odma(k)
    e('L_o11:')
    if o.mtouch == 1: etouch()
    srd(e, S_WS, 12, WS_REC)
    if o.epoll:
        assert o.mtouch in (1, 4) and o.tskip
        e(f's_and_b32 s{TYP}, s{WAVE}, 1')
        e(f's_lshl_b32 s{FO}, s{TYP}, 13')
        e('s_mov_b32 s96, s47')
        e('s_xor_b32 s46, s47, 0x80000000')
        e(f'v_min_u32 v{VF}, 31, v1')
        e(f'v_lshlrev_b32 v{VF}, 7, v{VF}')
        e(f'v_or_b32 v2, s46, v{VF}')
        e(f'buffer_load_dword v{VF+4}, v2, {sr(S_WS)}, s{FO} offen sc1')
    srd(e, S_OUT, 8, 1152000, add=BOFF)
    srd(e, S_DBG, 10, 256)
    e('v_and_b32 v2, 15, v1')
    e('v_lshrrev_b32 v3, 4, v1')
    e('v_subrev_u32 v5, 4, v2')
    e('v_add_u32 v6, 8, v2')
    e('v_cmp_gt_u32 vcc, 4, v2')
    e('v_cmp_le_u32 s[46:47], 12, v2')
    e(f's_and_b32 s{TYP}, s{WAVE}, 1')
    e(f's_lshr_b32 s48, s{WAVE}, 1')
    e('v_cndmask_b32 v5, v5, v6, vcc')
    e('v_cndmask_b32 v5, v5, v2, s[46:47]')
    e('v_mul_u32_u24 v5, 9, v5')
    e('v_mul_u32_u24 v4, 288, v5')
    e('v_lshl_add_u32 v6, v3, 4, v4')
    e('v_and_b32 v7, 1, v3')
    e('v_lshl_add_u32 v7, v7, 4, v4')
    e('v_lshrrev_b32 v8, 1, v3')
    e('v_mul_u32_u24 v8, 2304, v8')
    e('v_add_u32 v7, v7, v8')
    e('v_add_u32 v7, 256, v7')
    e(f's_mul_i32 s49, s{TYP}, {X_D1}')
    e(f'v_add_u32 v{VXO}, {X_O}, v6')
    e(f'v_add_u32 v{VXOR}, {X_O}, v7')
    e(f'v_add_u32 v{VXD}, s49, v6')
    e(f'v_add_u32 v{VXDR}, s49, v7')
    e('v_lshlrev_b32 v6, 4, v1')
    e(f's_mul_i32 s49, s{WAVE}, 9216')
    e(f's_add_u32 s49, s49, {X_O}')
    e(f'v_add_u32 v{VEX}, s49, v6')
    e(f's_xor_b32 s49, s{WAVE}, 1')
    e('s_mul_i32 s49, s49, 9216')
    e(f's_add_u32 s49, s49, {X_O}')
    e(f'v_add_u32 v{VEXP}, s49, v6')
    e('v_and_b32 v8, 0x39, v1')
    e('v_bfe_u32 v9, v1, 1, 1')
    e('v_lshl_add_u32 v8, v9, 2, v8')
    e('v_bfe_u32 v9, v1, 2, 1')
    e('v_lshl_add_u32 v8, v9, 1, v8')
    e(f'v_lshlrev_b32 v{VWL}, 4, v8')
    e(f's_mul_i32 s49, s{TYP}, 576')
    e(f's_add_u32 s49, s49, s{XB}')
    e(f's_add_u32 s49, s49, {60*288}')
    e(f's_lshl_b32 s50, s{NB}, 5')
    e('s_add_u32 s49, s49, s50')
    e('s_lshl_b32 s50, s48, 4')
    e('s_add_u32 s49, s49, s50')
    e('v_mul_u32_u24 v8, 1152, v5')
    e('v_lshl_add_u32 v8, v3, 2, v8')
    e(f'v_add_u32 v{VOUT}, s49, v8')
    e(f'v_add_u32 v{VOUT+1}, 3456, v{VOUT}')
    e(f'v_add_u32 v{VOUT+2}, 6912, v{VOUT}')
    e(f's_lshl_b32 s49, s{NB}, 1')
    e('s_add_u32 s49, s49, s48')
    e(f's_mul_i32 s49, s49, {NSTR}')
    e(f's_mul_i32 s{WSO}, s{TYP}, {NSTEP*1024}')
    e(f's_add_u32 s{WSO}, s{WSO}, s49')
    e(f's_add_u32 s{WSO}, s{WSO}, {WOFF + (16384 if o.tagp else 0)}')
    if o.tagp:
        e(f's_lshl_b32 s96, s{TYP}, 15')
        e('s_add_u32 s96, s96, s49')
        e(f's_add_u32 s96, s96, {WOFF + 2*NSTEP*1024}')
    e(f's_mov_b32 s{C2L}, 0x4038aa3b'); e(f's_mov_b32 s{C2L+1}, 0x4038aa3b')
    e(f's_mov_b32 s{CNL}, 0xbfb8aa3b'); e(f's_mov_b32 s{CNL+1}, 0xbfb8aa3b')
    e(f's_mov_b32 s{C60}, 0x42700000')
    e(f'v_min_u32 v{VF}, 31, v1')
    e(f'v_lshlrev_b32 v{VF}, 7, v{VF}')
    e(f'v_min_u32 v{VF+6}, 47, v1')
    e(f'v_lshlrev_b32 v{VF+6}, 7, v{VF+6}')
    e(f'v_mov_b32 v{VF+2}, 1')
    e('s_lshl_b32 s46, s48, 2')
    e(f'v_add_u32 v{VF+5}, s46, v{VF+1}')
    e(f's_or_b32 s46, s2, s{WAVE}')
    e('v_or_b32 v2, s46, v1')
    e('v_cmp_eq_u32 vcc, 0, v2')
    e(f'v_mov_b32 v{VCL}, -16')
    e(f'v_mov_b32 v{VCL+1}, -16')
    e(f'v_mov_b32 v3, {NONCE}')
    e(f'v_cndmask_b32 v{VCL}, v{VCL}, 4, vcc')
    e(f'v_cndmask_b32 v{VCL+1}, v{VCL+1}, v3, vcc')
    if o.yall:
        e(f's_lshr_b32 s46, s{NB}, 1')
        e(f's_add_u32 s47, s{NB}, 9')
        e('s_lshr_b32 s47, s47, 1')
        e('v_mov_b32 v4, s46')
        e('v_mov_b32 v5, s47')
        e('v_cmp_gt_u32 vcc, 32, v1')
        e('v_and_b32 v2, 7, v1')
        e('v_and_b32 v3, 15, v1')
        e('v_cndmask_b32 v4, v5, v4, vcc')
        e('v_min_u32 v3, 11, v3')
        e('v_mad_u32_u24 v2, v2, 9, v4')
        e('v_mad_u32_u24 v3, v3, 9, v4')
        e('v_lshlrev_b32 v2, 7, v2')
        e('v_lshlrev_b32 v3, 7, v3')
    e(f's_lshl_b32 s{FO}, s{TYP}, 13')
    if o.warmb:
        e(f's_cmp_eq_u32 s{TYP}, 1')
        e('s_cbranch_scc1 L_warmB')
        e('L_warmret:')
    e(f's_waitcnt vmcnt({(1 if o.mtouch == 1 else 0) + o.epoll}) lgkmcnt(0)')
    stamp(2)
    if o.padto and o.padev in ('m11', 'm12'):
        e(f's_lshr_b32 s46, s{RID}, 4')
        e('s_lshr_b32 s46, 0x33, s46')
        e('s_bitcmp1_b32 s46, 0')
        e(f's_cbranch_scc{1 if o.padev == "m11" else 0} L_pk')
        e('s_memrealtime s[100:101]'); e('s_waitcnt lgkmcnt(0)')
        e('L_pk:')
    e('s_mov_b64 exec, 1')
    e(f'ds_add_u32 v{VF+1}, v{VF+2} offset:8')
    e('s_mov_b64 exec, -1')
    e(f's_add_u32 s{TAG}, s{TAG}, {TAGINC}')
    e(f'v_mov_b32 v{VF+3}, s{TAG}')
    def flagwait(tag, vaddr, back):
        e(f'L_fw{tag}:')
        if o.diag and len(tag) == 2: e(f's_add_u32 s95, s95, {1 << (4 * int(tag[1]))}')
        e(f'buffer_load_dword v{VF+4}, v{vaddr}, {sr(S_WS)}, s{FO} offen sc1')
        e(f'ds_read_b32 v{VF+7}, v{VF+1} offset:12')
        e(f's_add_u32 s{NPOLL}, s{NPOLL}, 1')
        e('s_waitcnt vmcnt(0) lgkmcnt(0)')
        e(f'v_cmp_ne_u32 vcc, v{VF+3}, v{VF+4}')
        e(f'v_readfirstlane_b32 s46, v{VF+7}')
        e('s_nop 3')
        e(f's_cbranch_vccz {back}')
        e('s_cmp_lg_u32 s46, 0')
        e(f's_cbranch_scc1 {back}')
        e(f's_cmp_lg_u32 s{NPOLL}, {o.maxpoll}')
        e(f's_cbranch_scc1 L_fw{tag}')
        e(f'v_mov_b32 v{VF+7}, 0x10000')
        e('s_mov_b64 exec, 1')
        e(f'ds_add_u32 v{VF+1}, v{VF+7} offset:4')
        e('s_mov_b64 exec, -1')
        e(f's_branch L_fw{tag}')
    if o.epoll:
        e('s_cmp_eq_u32 s96, 0')
        e('s_cbranch_scc1 L_gate')
        e('s_waitcnt vmcnt(0)')
        e(f'v_cmp_ne_u32 vcc, v{VF+3}, v{VF+4}')
        e('s_nop 4')
        e('s_cbranch_vccz L_go')
    if o.gate:
        e('L_gate:')
        e(f'ds_read_b32 v{VF+4}, v{VF+1} offset:8')
        e('s_waitcnt lgkmcnt(0)')
        e(f'v_and_b32 v{VF+4}, 0xffff, v{VF+4}')
        e(f'v_cmp_gt_u32 vcc, 0x400, v{VF+4}')
        e('s_nop 4')
        e('s_cbranch_vccz L_gate2')
        e('s_sleep 1')
        e('s_branch L_gate')
        e('L_gate2:')
    if o.ppoll:
        e(f'buffer_load_dword v{VF+4}, v{VF}, {sr(S_WS)}, s{FO} offen sc1')
        e('L_pp:')
        for a_, b_ in ((VF + 4, 62), (62, VF + 4)):
            e(f's_sleep {o.ppoll}')
            e(f'buffer_load_dword v{b_}, v{VF}, {sr(S_WS)}, s{FO} offen sc1')
            e('s_waitcnt vmcnt(1)')
            e(f'v_cmp_ne_u32 vcc, v{VF+3}, v{a_}')
            e(f's_add_u32 s{NPOLL}, s{NPOLL}, 1')
            e('s_nop 3')
            e('s_cbranch_vccz L_go')
        e(f's_cmp_lt_u32 s{NPOLL}, 40')
        e('s_cbranch_scc1 L_pp')
        e(f's_mov_b32 s{NPOLL}, 0')
    if o.p0plain:
        e(f'buffer_load_dword v{VF+4}, v{VF}, {sr(S_WS)}, s{FO} offen')
        e('s_waitcnt vmcnt(0)')
        e(f'v_cmp_ne_u32 vcc, v{VF+3}, v{VF+4}')
        e('s_nop 4')
        e('s_cbranch_vccz L_go')
    if o.onepoll:
        e(f's_cmp_lt_u32 s{WAVE}, 2')
        e('s_cbranch_scc1 L_fw0')
        e('L_op:')
        e(f'ds_read_b32 v{VF+7}, v{VF+1} offset:8')
        e('s_waitcnt lgkmcnt(0)')
        e(f's_add_u32 s46, s{TYP}, 16')
        e(f'v_lshrrev_b32 v{VF+7}, s46, v{VF+7}')
        e(f'v_and_b32 v{VF+7}, 1, v{VF+7}')
        e(f'v_cmp_eq_u32 vcc, 0, v{VF+7}')
        e('s_nop 4')
        e('s_cbranch_vccnz L_op')
        e('s_branch L_go2')
    if not o.tagp: flagwait('0', VF, 'L_go')
    e('L_go:')
    jit()
    if o.tagp: e('s_mov_b32 s50, s96')
    if o.onepoll:
        e(f's_lshl_b32 s46, 0x10000, s{TYP}')
        e(f'v_mov_b32 v{VF+7}, s46')
        e('s_mov_b64 exec, 1')
        e(f'ds_or_b32 v{VF+1}, v{VF+7} offset:8')
        e('s_mov_b64 exec, -1')
        e('L_go2:')
    stamp(3)
    e('L_gw:')
    e(f'ds_read_b32 v{VF+7}, v{VF+1} offset:8')
    e('s_waitcnt lgkmcnt(0)')
    e(f'v_and_b32 v{VF+7}, 0xff, v{VF+7}')
    e(f'v_cmp_ne_u32 vcc, 4, v{VF+7}')
    e('s_nop 4')
    e('s_cbranch_vccnz L_gw')
    stamp(4)
    e(f's_setprio {o.mprio}')
    e(f's_cmp_eq_u32 s{TYP}, 1')
    e('s_cbranch_scc1 L_typeB')

    ACC = {'P': 64, 'Q': 100}
    WR, TMP = 136, 224
    XRING = [200 + 4 * i for i in range(6)]
    XWIN = [4 + 4 * i for i in range(6)] + [240 + 4 * i for i in range(4)]
    VC = 28
    PF = o.pf
    GT = 98
    wflags = {0: '', 1: ' sc1', 2: ' nt', 3: ' sc0'}[o.wsc1]
    for typ, S in enumerate(streams()):
        if typ == 1:
            e('.p2align 6')
            if o.warmb: e('L_warmB:'); e('s_branch L_warmret')
            e('L_typeB:')
        ops = []
        vstart = {}
        lastv = o.vt - 1
        v0 = 0
        G0 = 0
        if o.flat0:
            for g in range(16):
                vstart[g] = len(ops)
                for j in (range(9) if g % 2 == 0 or not o.flatzz else range(8, -1, -1)): ops.append((g, j))
            v0 = G0 = 16
        while v0 <= lastv:
            ch = 1 if v0 < o.chfrom + G0 else min(o.chain, lastv + 1 - v0)
            n0 = len(ops)
            for j in range(8, -1, -1):
                us = range(ch) if j % 2 == 0 else range(ch - 1, -1, -1)
                first_ = [u for u in us if v0 + u - j == 0 or (0 < v0 + u - j < NSTEP and S[v0+u-j][4] == 'Q' and S[v0+u-j-1][4] == 'P')]
                if first_: us = range(ch)
                for u in us:
                    if G0 <= v0 + u - j < NSTEP: ops.append((v0 + u - j, j))
            for u in range(ch): vstart[v0 + u] = n0 + (len(ops) - n0) * u // ch
            v0 += ch
        ntail = len(ops)
        if o.tail:
            for j in range(9):
                for g in range(o.vt - j, NSTEP): ops.append((g, j))
        assert len(ops) == NSTEP * 9 and len(set(ops)) == len(ops)
        N = len(ops)
        def key(n):
            g, j = ops[n]
            pid, arr, ch, c, acc = S[g]
            k = (pid, arr, ch, c + j)
            if n >= ntail and g < GT: k = k + ((n,) if not o.hold else ('h',))
            return k
        first, last = {}, {}
        for n in range(N):
            first.setdefault(key(n), n); last[key(n)] = n
        wfirst, wlast = {}, {}
        for n, (g, j) in enumerate(ops):
            wfirst.setdefault(g, n); wlast[g] = n
        tasks = []
        for k, n0 in first.items():
            win = o.tail and k[2] == 'rem' and k[1] == 'D'
            la = o.xla if n0 < ntail else 6
            if n0 >= ntail and ops[n0][1] == 0: la = o.tla
            elif win: la = 12
            tasks.append([n0 - la, n0 - 1, 'X', k])
        for g in range(NSTEP):
            rel = -100 + g if g < o.pf0 else max(0, wfirst[g] - 9 * PF)
            if o.tagp and g < 16:
                rel = -100 + g if g < 4 else max(0, wfirst[g] - 9 * o.tpf)
                tasks.append([rel, wfirst[g & ~1] - 9, 'W', g])
                continue
            tasks.append([rel, wfirst[g] - 1, 'W', g])
        def at(v, off=0): return vstart[v] + off
        firstD = min(n for n in range(N) if S[ops[n][0]][1] == 'D')
        lastO = max(n for n in range(N) if S[ops[n][0]][1] == 'O')
        lastP = {j: max(n for n in range(N) if ops[n][1] == j and S[ops[n][0]][4] == 'P') for j in range(9)}
        slow = []
        vused = set()
        def check(v, off, cnt, tag):
            tasks.append([at(v - 1, 3), at(v - 1, 8), 'L', (f'ds_read_b32 v{VC}, v{VF+1} offset:{off}', ('c', tag))])
            tasks.append([at(v, 0), at(v, 1), 'C', (f'v_cmp_ne_u32 vcc, {cnt}, v{VC}', ('c', tag))])
            tasks.append([at(v, 6), at(v, 7), 'I', [f's_cbranch_vccnz L_slow{typ}{tag}', f'L_back{typ}{tag}:']])
            slow.append((tag, off, cnt))
            vused.add(v)
            return at(v, 8)
        def add1(pos, off):
            tasks.append([pos, pos + 4, 'A', off])
        vD = [v for v in vstart if vstart[v] <= firstD - o.xla][-1] - 1
        okD = check(vD, 16, 4, 'D')
        assert okD <= firstD - o.xla
        add1(lastO, 20)
        VP = 47
        okR = check(VP, 20, 4, 'R')
        for j in range(9):
            assert lastP[j] + 12 < at(VP + 1 + j, 2)
            tasks.append([at(VP + 1 + j, 2), at(VP + 1 + j, 8), 'L', (f'ds_write_b128 v{VEX}, {vr(ACC["P"]+4*j,4)} offset:{1024*j}', ('pw', j))])
        tasks.append([at(VP + 10, 0), at(VP + 10, 4), 'A', 'pair'])
        VQ = VP + 13
        okP = check(VQ, 'pair', 2, 'P')
        for j in range(9):
            tasks.append([at(VQ + 1 + j, 2), at(VQ + 1 + j, 8), 'L', (f'ds_read_b128 {vr(TMP+4*(j&1),4)}, v{VEXP} offset:{1024*j}', ('pr', j))])
            v = VQ + 2 + j
            pos = at(v, 8 - (j + 2) - 1) if j <= 6 else at(v, 8 - (j - 7) - 1)
            sh = 1 if j >= 7 else 0
            if o.chain > 1:
                own = [n for n in range(N) if ops[n][1] == j]
                pos = [a_ + 10 for a_, b_ in zip(own, own[1:]) if b_ - a_ >= 14 and a_ + 9 >= at(v, 0) ][0]
                sh = 0
                tasks[-1][0] = pos - 9; tasks[-1][1] = pos - 4
                tasks[-1][3] = (f'ds_read_b128 {vr(TMP+4*(j&3),4)}, v{VEXP} offset:{1024*j}', ('pr', j))
            tasks.append([pos - 1 + sh, pos - 1 + sh, 'Q', (j, 0)])
            tasks.append([pos + sh, pos + sh, 'Q', (j, 1)])
        if typ == 0:
            tasks.append([at(64, 4), at(64, 8), 'S', f'buffer_store_dword v{VCL+1}, v{VCL}, {sr(S_DBG)}, 0 offen sc1'])
            tasks.append([at(84, 4), at(84, 8), 'S', f'buffer_store_dword v{VF+3}, v{VCL+1}, {sr(S_WS)}, 0 offen sc1'])
        fslow = []
        kslow = []
        if o.tagp:
            for g in range(0, 16, 2):
                n0 = wfirst[g]
                if g < 4: continue
                tasks.append([n0 - 8, n0 - 7, 'K', g])
                tasks.append([n0 - 2, n0 - 1, 'I', ['s_cmp_lg_u64 s[48:49], 0', f's_cbranch_scc1 L_ks{typ}{g}', f'L_kb{typ}{g}:']])
        passes = {}
        for g in range(NSTEP): passes.setdefault(S[g][0], g)
        need = [(passes[1], VF, 32 + 64 * typ), (32, VF + 6, 128), (passes[4], VF, 176), (passes[5], VF, 208), (passes[6], VF + 6, 240)]
        if o.c2split:
            need[1:2] = [(32, VF, 112), (passes[3], VF, 144)]
            o.pfcs6 = [o.pfcs[0], 10] + o.pfcs[1:]; o.fleads6 = [o.fleads[0], 8] + o.fleads[1:]
        else:
            o.pfcs6 = o.pfcs; o.fleads6 = o.fleads
        if o.yall: need[2:] = [(passes[4], 2, 176), (passes[5], 2, 176 + 72), (passes[6], 3, 176 + 144)]
        lastG = -1
        for ci, (gn, va, idx) in enumerate(need):
            v = gn - o.pfcs6[ci] - 1
            while v in vused: v -= 1
            tasks.append([at(v - o.fleads6[ci], 4), at(v - o.fleads6[ci], 8), 'F', (va, idx, ci)])
            tasks.append([at(v, 0), at(v, 1), 'G', ci])
            tasks.append([at(v, 6), at(v, 7), 'I', [f's_cbranch_vccnz L_fw{typ}{ci}', f'L_fb{typ}{ci}:']])
            fslow.append((ci, va))
            assert v not in vused, v
            vused.add(v)
            assert at(v - o.fleads6[ci], 4) > lastG, (ci, v)
            lastG = at(v, 7)
            for t in tasks:
                if t[2] == 'W' and (t[3] >= gn): t[0] = max(t[0], at(v, 8))
        tasks.append([at(v + 1, 2), at(v + 1, 8), 'A', 4])
        if typ == 0:
            for lvl, v in enumerate(o.trig): tasks.append([at(v, 2), at(v, 8), 'P', lvl + 1])
            if o.wbat: tasks.append([ntail + o.wbat, ntail + o.wbat + 6, 'P', 4])
        tasks.sort(key=lambda t: (t[0], t[1]))
        vq, lq = [], []
        dirty = [False]
        xreg, busy = {}, {}
        wn = [0]
        wr = {}
        lastw = [-100]
        later = []
        BIG = [WR + 4 * i for i in range(16)] + XWIN + [ACC['P'] + 4 * i for i in range(9)]
        for i in range(9): busy[ACC['P'] + 4 * i] = at(VP + 12)
        until = {}
        if o.chain > 1:
            BIG += XRING + [VA, VA + 4, VA + 8]
            for i in range(9):
                BIG.append(ACC['Q'] + 4 * i)
                until[ACC['Q'] + 4 * i] = min(n for n in range(N) if ops[n][1] == i and S[ops[n][0]][4] == 'Q') - 3
        def freeregs(n, end): return [x for x in BIG if busy.get(x, -1) <= n and end < until.get(x, 10**9)]
        def freepairs(n, end):
            f_ = set(freeregs(n, end))
            return [x for x in sorted(f_) if x % 8 == PAR8.get(x, -1) and x + 4 in f_]
        PAR8 = {x: x % 8 for x in list(range(WR, WR + 64, 8)) + [4, 12, 20, 240, 248, 200, 208, 216, 100, 108, 116, 124, VA]}
        def kcheck(g):
            vwait(g + 1)
            for i, gg in enumerate((g, g + 1)):
                a_ = wr[gg] - 2
                em(f'v_bitop3_b32 v{VC+i}, v{a_+1}, v{a_+6}, v{VF+3} bitop3:0x7e')
            em(f'v_or_b32 v{VC}, v{VC}, v{VC+1}')
            em(f'v_cmp_ne_u32 s[48:49], 0, v{VC}')
            kslow.append((g, wr[g] - 2, wr[g + 1] - 2))
        def wok(t, n):
            if t[2] != 'W': return True
            if t[3] != wn[0]: return False
            if o.tagp and t[3] < 16:
                return bool(freepairs(n, wlast[t[3]])) and (n - lastw[0] >= 2 or t[1] - n <= 4)
            free = len(freeregs(n, wlast[t[3]]))
            if t[1] - n <= 9 * 3: return free > 0
            return n - lastw[0] >= o.wgap and free > o.wres
        since = {}
        fill = []
        def em(x):
            e(x)
            if not x.endswith(':'):
                for jj in since: since[jj] += 1
        def lwait(tag):
            if tag not in lq: return
            i = lq.index(tag)
            em(f's_waitcnt lgkmcnt({0 if dirty[0] else len(lq)-1-i})')
            if dirty[0]: lq.clear(); dirty[0] = False
            else: del lq[:i + 1]
        def vwait(g):
            if g not in vq: return
            i = vq.index(g)
            em(f's_waitcnt vmcnt({len(vq)-1-i})')
            del vq[:i + 1]
        def run(t, n):
            kind, p = t[2], t[3]
            if kind == 'X':
                pool = BIG if (o.chain > 1 or p[-1] == 'h' or (p[2] == 'rem' and p[1] == 'D')) else XRING
                r = [x for x in pool if busy.get(x, -1) <= n and last[p] < until.get(x, 10**9)]
                assert r, ('no x register', p, n)
                r = min(r, key=lambda x: (until.get(x, 10**9), busy.get(x, -1)))
                busy[r] = last[p]; xreg[p] = r
                arr, ch, s_ = p[1], p[2], p[3]
                if o.nolds and n > 9 * 30: return
                if ch == 'rem': em(f'ds_read_b128 {vr(r,4)}, v{VXOR if arr == "O" else VXDR} offset:{288*s_}')
                else: em(f'ds_read_b128 {vr(r,4)}, v{VXO if arr == "O" else VXD} offset:{64*ch+288*s_}')
                lq.append(p)
            elif kind == 'W':
                g = p
                if o.tagp and g < 16:
                    r = min(freepairs(n, wlast[g]), key=lambda x: (until.get(x, 10**9), busy.get(x, -1)))
                    busy[r] = busy[r + 4] = wlast[g]; wr[g] = r + 2
                    assert g == wn[0]; wn[0] += 1
                    lastw[0] = n
                    em(f'buffer_load_dwordx4 {vr(r,4)}, v{VWL}, {sr(S_WS)}, s50 offen offset:{2048*(g%2)}')
                    em(f'buffer_load_dwordx4 {vr(r+4,4)}, v{VWL}, {sr(S_WS)}, s50 offen offset:{2048*(g%2)+1024}')
                    vq.append(('h', g)); vq.append(g)
                    if g % 2 == 1:
                        if n < 0: em('s_add_u32 s50, s50, 4096')
                        else: later.append('s_add_u32 s50, s50, 4096')
                    return
                r = min(freeregs(n, wlast[g]), key=lambda x: (until.get(x, 10**9), busy.get(x, -1)))
                busy[r] = wlast[g]; wr[g] = r
                assert g == wn[0]; wn[0] += 1
                lastw[0] = n
                if o.now and g > 40: return
                if o.wsame and g > 40:
                    em(f'buffer_load_dwordx4 {vr(r,4)}, v{VWL}, {sr(S_WS)}, s{WSO} offen offset:{1024*(g%4)}{wflags}'); vq.append(g); return
                em(f'buffer_load_dwordx4 {vr(r,4)}, v{VWL}, {sr(S_WS)}, s{WSO} offen offset:{1024*(g%4)}{wflags}')
                if g % 4 == 3:
                    if n < 0: em(f's_add_u32 s{WSO}, s{WSO}, 4096')
                    else: later.append(f's_add_u32 s{WSO}, s{WSO}, 4096')
                vq.append(g)
            elif kind == 'L':
                em(p[0].replace('offset:pair', 'offset:24').replace(f'v{VF+1} offset:24', f'v{VF+5} offset:24')); lq.append(p[1])
            elif kind == 'C':
                lwait(p[1]); em(p[0])
            elif kind == 'I':
                for x in p: em(x)
            elif kind == 'A':
                em('s_mov_b64 exec, 1')
                if p == 'pair': em(f'ds_add_u32 v{VF+5}, v{VF+2} offset:24')
                else: em(f'ds_add_u32 v{VF+1}, v{VF+2} offset:{p}')
                em('s_mov_b64 exec, -1')
                lq.append(('a', p))
            elif kind == 'Q':
                p, hf = p
                lwait(('pr', p))
                q = ACC['Q'] + 4 * p; t_ = TMP + 4 * (p & (3 if o.chain > 1 else 1))
                for i in (2 * hf, 2 * hf + 1): em(f'v_add_f32 v{q+i}, v{q+i}, v{t_+i}')
            elif kind == 'S':
                assert not any(isinstance(x, tuple) and x[0] == 's' for x in vq)
                em(p); vq.append(('s', n))
            elif kind == 'F':
                em(f's_mov_b32 s{FO}, {128*p[1]}')
                em(f'buffer_load_dword v{VF+4}, v{p[0]}, {sr(S_WS)}, s{FO} offen {o.fflags}'); vq.append(('f', p[2]))
            elif kind == 'K':
                kcheck(p)
            elif kind == 'G':
                vwait(('f', p)); em(f'v_cmp_ne_u32 vcc, v{VF+3}, v{VF+4}')
            elif kind == 'P':
                em(f'v_mov_b32 v{VF+7}, {p}')
                em('s_mov_b64 exec, 1')
                em(f'ds_max_u32 v{VF+1}, v{VF+7}')
                em('s_mov_b64 exec, -1')
                lq.append(('p', p))
        def epi(j, pk):
            q = ACC['Q'] + 4 * j
            t = TMP + 8 * (j & 1)
            I = []
            if pk:
                I.append(f'v_pk_mul_f32 {vr(t,2)}, {vr(q,2)}, s[{C2L}:{C2L+1}]')
                I.append(f'v_pk_mul_f32 {vr(t+2,2)}, {vr(q+2,2)}, s[{CNL}:{CNL+1}]')
            else:
                for i in (0, 1): I.append(f'v_mul_f32 v{t+i}, s{C2L}, v{q+i}')
                for i in (2, 3): I.append(f'v_mul_f32 v{t+i}, s{CNL}, v{q+i}')
            I.append(f'v_min_f32 v{t}, s{C60}, v{t}')
            I.append(f'v_min_f32 v{t+1}, s{C60}, v{t+1}')
            for i in (0, 1, 2, 3): I.append(f'v_exp_f32 v{t+i}, v{t+i}')
            if pk:
                I.append(f'v_pk_add_f32 {vr(t+4,2)}, {vr(t,2)}, 1.0 op_sel_hi:[1,0]')
                I.append(f'v_pk_add_f32 {vr(t+6,2)}, {vr(t,2)}, -1.0 op_sel_hi:[1,0]')
                I.append(f'v_pk_fma_f32 {vr(t+4,2)}, {vr(t+4,2)}, {vr(t+2,2)}, {vr(t+4,2)}')
            else:
                for i in (0, 1): I.append(f'v_add_f32 v{t+4+i}, 1.0, v{t+i}')
                for i in (0, 1): I.append(f'v_fma_f32 v{t+4+i}, v{t+4+i}, v{t+2+i}, v{t+4+i}')
            I.append(f'v_rcp_f32 v{t+4}, v{t+4}')
            I.append(f'v_rcp_f32 v{t+5}, v{t+5}')
            if pk:
                I.append('s_nop 0')
                I.append(f'v_pk_mul_f32 {vr(t+6,2)}, {vr(t+6,2)}, {vr(t+4,2)}')
            else:
                for i in (0, 1): I.append(f'v_add_f32 v{t+6+i}, -1.0, v{t+i}')
                for i in (0, 1): I.append(f'v_mul_f32 v{t+6+i}, v{t+6+i}, v{t+4+i}')
            I.append(f'v_cvt_pk_bf16_f32 v{q}, v{t+6}, v{t+7}')
            I.append(f'buffer_store_dword v{q}, v{VOUT + j//3}, {sr(S_OUT)}, 0 offen offset:{1152*(j%3)} {o.oflags if j < o.oj else ""}')
            return I
        def cost(x): return 2 if x.startswith(('v_exp', 'v_rcp', 'buffer')) else 1
        while tasks and tasks[0][0] < 0: run(tasks.pop(0), -1)
        if o.tagp and o.retry:
            vwait(3)
            for g in range(4):
                em(f'v_bitop3_b32 v{TMP+g}, v{wr[g]-1}, v{wr[g]+4}, v{VF+3} bitop3:0x7e')
            em(f'v_or3_b32 v{TMP}, v{TMP}, v{TMP+1}, v{TMP+2}')
            em(f'v_or_b32 v{TMP}, v{TMP}, v{TMP+3}')
            em(f'v_cmp_ne_u32 s[48:49], 0, v{TMP}')
            em('s_nop 2')
            em('s_cmp_lg_u64 s[48:49], 0')
            em(f's_cbranch_scc1 L_rt{typ}')
            em(f'L_rb{typ}:')
            first4 = [wr[g] - 2 for g in range(4)]
        elif o.tagp:
            for g in (0, 2):
                vwait(g + 1)
                for gg in (g + 4, g + 5):
                    t_ = [t for t in tasks if t[2] == 'W' and t[3] == gg][0]
                    tasks.remove(t_); run(t_, -1)
                kcheck(g)
                em('s_nop 2')
                em('s_cmp_lg_u64 s[48:49], 0')
                em(f's_cbranch_scc1 L_ks{typ}{g}')
                em(f'L_kb{typ}{g}:')
        inv = {n: v for v, n in vstart.items()}
        lastop = {j: max(n for n in range(N) if ops[n][1] == j) for j in range(9)}
        for n, (g, j) in enumerate(ops):
            if n in inv and o.padto and o.padev == 'm5' and inv[n] == o.padstep:
                e(f's_sub_u32 s98, s2, {o.padlo}')
                e(f's_cmp_ge_u32 s98, {o.padhi - o.padlo}')
                e(f's_cbranch_scc1 L_pr{typ}')
                e('s_memrealtime s[100:101]'); dirty[0] = True
                e(f'L_pr{typ}:')
            if n in inv and o.diag:
                v = inv[n]
                if o.diag == 2 and v in o.marks:
                    kk = o.marks.index(v)
                    e(f's_memtime s[{ST0+2*kk}:{ST0+2*kk+1}]'); dirty[0] = True
                if o.diag in (1, 4) and v == 33: stamp(5); stamp(6); dirty[0] = True
            if o.jit and n in inv and inv[n] in (20, 36, 44, 52, 60, 70, 90): jit()
            k = key(n)
            assert k in xreg, (k, n)
            lwait(k); vwait(g)
            acc = S[g][4]
            d = ACC[acc] + 4 * j
            if g == 0: cs = '0'
            elif acc == 'Q' and S[g-1][4] == 'P': cs = vr(ACC['P'] + 4 * j, 4)
            else: cs = vr(d, 4)
            em(f'v_mfma_f32_16x16x32_bf16 {vr(d,4)}, {vr(wr[g],4)}, {vr(xreg[k],4)}, {cs}' if not o.swapab else f'v_mfma_f32_16x16x32_bf16 {vr(d,4)}, {vr(xreg[k],4)}, {vr(wr[g],4)}, {cs}')
            if n == lastop[j]: since[j] = 0
            while later: em(later.pop(0))
            budget = 2
            TC = {'X': 1, 'W': 2, 'L': 2, 'C': 1, 'I': 0, 'A': 1, 'Q': 2, 'S': 2, 'F': 2, 'G': 1, 'P': 2, 'K': 2}
            while True:
                ready = [t for t in tasks if t[0] <= n and wok(t, n)]
                if not ready: break
                t = min(ready, key=lambda t: t[1])
                assert t[1] >= n, ('late', t, n)
                if TC[t[2]] > budget and t[1] > n:
                    fit = [u for u in ready if TC[u[2]] <= budget]
                    if not fit: break
                    t = min(fit, key=lambda t: t[1])
                tasks.remove(t); run(t, n); budget -= TC[t[2]]
            for jj in sorted(since):
                if 8 <= since[jj] < 10**6:
                    fill += epi(jj, False); since[jj] = 10**6
            budget += o.nfill - 2
            while fill and budget >= cost(fill[0]):
                budget -= cost(fill[0])
                if fill[0].startswith('buffer_store'):
                    q_ = int(re.match(r'buffer_store_dword v(\d+)', fill[0]).group(1))
                    until.pop(q_, None); busy[q_] = n + 2
                em(fill.pop(0))
            assert all(t[1] > n for t in tasks), ('late', n, [t for t in tasks if t[1] <= n])
        assert not tasks
        stamp(7)
        while fill: em(fill.pop(0))
        for jj in [jj for jj in sorted(since) if since[jj] < 10**6]:
            if since[jj] < 8: em(f's_nop {8-since[jj]-1}')
            for x in epi(jj, True): em(x)
        stamp(8)
        if o.padto and o.padev[0] == 'm': padloop(typ)
        if o.diag == 1:
            e('s_waitcnt vmcnt(0)')
            stamp(9)
            dump(10)
        if o.diag == 2:
            kk = len(o.marks)
            e(f's_memtime s[{ST0+2*kk}:{ST0+2*kk+1}]')
            dump(10)
        e('s_endpgm')
        for tag, off, cnt in slow:
            e(f'L_slow{typ}{tag}:')
            e(f'ds_read_b32 v{VC}, v{VF+5 if off == "pair" else VF+1} offset:{24 if off == "pair" else off}')
            e('s_waitcnt lgkmcnt(0)')
            e(f'v_cmp_ne_u32 vcc, {cnt}, v{VC}')
            e('s_nop 4')
            e(f's_cbranch_vccnz L_slow{typ}{tag}')
            e(f's_branch L_back{typ}{tag}')
        for ci, va in fslow: flagwait(f'{typ}{ci}', va, f'L_fb{typ}{ci}')
        if o.tagp and o.retry:
            e(f'L_rt{typ}:')
            if o.diag: e(f's_add_u32 s95, s95, {1 << 24}')
            e(f's_sleep {o.retry}')
            e(f'ds_read_b32 v{VF+7}, v{VF+1} offset:12')
            e('s_add_u32 s47, s96, 4096')
            e('s_waitcnt lgkmcnt(0)')
            for g, a_ in enumerate(first4):
                for hf in range(2):
                    e(f'buffer_load_dwordx4 {vr(a_+4*hf,4)}, v{VWL}, {sr(S_WS)}, s{96 if g < 2 else 47} offen offset:{2048*(g%2)+1024*hf} sc1')
            e(f'v_readfirstlane_b32 s46, v{VF+7}')
            e(f's_add_u32 s{NPOLL}, s{NPOLL}, 1')
            e('s_waitcnt vmcnt(0)')
            e('s_cmp_lg_u32 s46, 0')
            e(f's_cbranch_scc1 L_rb{typ}')
            for g in range(4):
                e(f'v_bitop3_b32 v{TMP+g}, v{first4[g]+1}, v{first4[g]+6}, v{VF+3} bitop3:0x7e')
            e(f'v_or3_b32 v{TMP}, v{TMP}, v{TMP+1}, v{TMP+2}')
            e(f'v_or_b32 v{TMP}, v{TMP}, v{TMP+3}')
            e(f'v_cmp_ne_u32 s[48:49], 0, v{TMP}')
            e('s_nop 2')
            e('s_cmp_eq_u64 s[48:49], 0')
            e(f's_cbranch_scc1 L_rb{typ}')
            e(f's_cmp_lg_u32 s{NPOLL}, {o.maxpoll}')
            e(f's_cbranch_scc1 L_rt{typ}')
            e(f'v_mov_b32 v{VF+7}, 0x10000')
            e('s_mov_b64 exec, 1')
            e(f'ds_add_u32 v{VF+1}, v{VF+7} offset:4')
            e('s_mov_b64 exec, -1')
            e(f's_branch L_rt{typ}')
        for g, a0_, a1_ in kslow:
            e(f'L_ks{typ}{g}:')
            if o.diag: e(f's_add_u32 s95, s95, {1 << 24}')
            e(f'ds_read_b32 v{VF+7}, v{VF+1} offset:12')
            e(f's_add_u32 s47, s96, {2048*g}')
            e('s_waitcnt lgkmcnt(0)')
            for i, a_ in enumerate((a0_, a0_ + 4, a1_, a1_ + 4)):
                e(f'buffer_load_dwordx4 {vr(a_,4)}, v{VWL}, {sr(S_WS)}, s47 offen offset:{1024*i} sc1')
            e(f'v_readfirstlane_b32 s46, v{VF+7}')
            e(f's_add_u32 s{NPOLL}, s{NPOLL}, 1')
            e('s_waitcnt vmcnt(0)')
            e('s_cmp_lg_u32 s46, 0')
            e(f's_cbranch_scc1 L_kb{typ}{g}')
            e(f'v_bitop3_b32 v{VC}, v{a0_+1}, v{a0_+6}, v{VF+3} bitop3:0x7e')
            e(f'v_bitop3_b32 v{VC+1}, v{a1_+1}, v{a1_+6}, v{VF+3} bitop3:0x7e')
            e(f'v_or_b32 v{VC}, v{VC}, v{VC+1}')
            e(f'v_cmp_ne_u32 s[48:49], 0, v{VC}')
            e('s_nop 2')
            e('s_cmp_eq_u64 s[48:49], 0')
            e(f's_cbranch_scc1 L_kb{typ}{g}')
            e(f's_cmp_lg_u32 s{NPOLL}, {o.maxpoll}')
            e(f's_cbranch_scc1 L_ks{typ}{g}')
            e(f'v_mov_b32 v{VF+7}, 0x10000')
            e('s_mov_b64 exec, 1')
            e(f'ds_add_u32 v{VF+1}, v{VF+7} offset:4')
            e('s_mov_b64 exec, -1')
            e(f's_branch L_ks{typ}{g}')

    mark['help0'] = len(e.L)
    if not o.hfirst: e('.p2align 6')
    e('L_helper:')
    role[0] = 'h'
    e(f's_setprio {o.hprio}')
    e(f's_sub_u32 s{TW0}, s{WAVE}, 4')
    e(f's_mov_b32 s{TW1}, s{WAVE}')
    e(f's_sub_u32 s{PAIR}, s{RID}, {NPROD}')
    e(f's_cselect_b32 s{PAIR}, s{RID}, s{PAIR}')
    e(f's_mov_b32 s{MODE}, 0')
    e(f's_mov_b32 s{NOTASK}, s{RID}')
    e(f's_mov_b32 s{HAS3}, s{TW0}')
    e(f's_lshl_b32 s{SCRB}, s{TW0}, 12')
    e(f's_add_u32 s{SCRB}, s{SCRB}, {SCR}')
    e('L_prod:')
    T = [(28, TW0, 2, 52, 0), (36, TW1, 4, 53, 2048), (44, TW2, 6, 54, 16384)]
    c, kp, q, cc, kk, t = 46, 47, 48, 49, 50, 51
    b = TS
    e('v_mov_b32 v19, 4320')
    e('v_and_b32 v23, 3, v1')
    e('v_lshrrev_b32 v24, 2, v1')
    e('v_mul_u32_u24 v24, 288, v24')
    for (vb, sw, vl, vs, so) in T:
        e(f'v_lshl_add_u32 v8, s{sw}, 2, v23' if sw != TW2 else 'v_add_u32 v8, 32, v23')
        e('v_cmp_le_u32 vcc, 18, v8')
        e(f'v_lshl_add_u32 v{vl}, v8, 4, v24')
        e(f'v_add_u32 v9, v{vl}, v19')
        e(f'v_cndmask_b32 v{vl}, v{vl}, v9, vcc')
    e(f's_and_b32 s{c}, s{PAIR}, 15')
    e(f's_lshr_b32 s{kp}, s{PAIR}, 4')
    e(f's_mul_i32 s{b}, s{c}, 165888')
    e(f's_mul_i32 s{t}, s{kp}, 9216')
    e(f's_add_u32 s{b}, s{b}, s{t}')
    e(f's_add_u32 s{b+1}, s{b}, 82944')
    e(f's_mov_b32 s{S_W+2}, 2571264')
    e(f's_mov_b32 s{S_W+3}, 0x20000')
    e(f's_mov_b32 s{S_WO+3}, s{S_W+3}')
    e(f's_cmp_lg_u32 s{c}, 15')
    e(f's_cselect_b32 s{S_WO+2}, s{S_W+2}, 0')
    e(f's_mov_b32 m0, s{SCRB}')
    e('s_waitcnt lgkmcnt(0)')
    e(f's_mov_b32 s{S_W}, s6')
    e(f's_and_b32 s{S_W+1}, s7, 0xffff')
    e(f's_mov_b32 s{S_WO}, s6')
    e(f's_and_b32 s{S_WO+1}, s7, 0xffff')
    e(f's_cmp_ge_u32 s{NOTASK}, {NTASK}')
    e('s_cbranch_scc1 L_a3')
    def cond3(lbl):
        e(f's_cmp_lg_u32 s{HAS3}, 0')
        e(f's_cbranch_scc1 {lbl}')
    for ti, (vb, sw, vl, vs, so) in enumerate(T):
        if ti == 2: cond3('L_a3')
        if ti == 1: e('s_addk_i32 m0, 1024'); e('s_nop 0')
        e(f'buffer_load_dwordx4 v{vl}, {sr(S_W)}, s{b} offen lds')
        e('s_addk_i32 m0, 1024')
        e('s_nop 0')
        e(f'buffer_load_dwordx4 v{vl}, {sr(S_WO)}, s{b+1} offen lds')
        if ti == 1: e(f's_addk_i32 m0, {16384-3072}')
    e('L_a3:')
    stamp(1)
    e(f's_cmp_lg_u32 s{MODE}, 0')
    e('s_cbranch_scc1 L_a4')
    e(f's_load_dword s{TAG}, s[12:13], {NONCE}')
    e(f's_lshr_b32 s{EARLY}, 0x33, s{kp}')
    e(f's_and_b32 s{EARLY}, s{EARLY}, 1')
    e(f's_sub_u32 s{XK}, 2, s{EARLY}')
    e(f's_lshl_b32 s{t}, s{kp}, 1')
    e(f's_lshr_b32 s{YT}, {(3<<12)+(3<<14)+(3<<16)}, s{t}')
    e(f's_and_b32 s{YT}, s{YT}, 3')
    e(f's_lshr_b32 s{t}, s{kp}, 1')
    e(f's_cmp_ge_u32 s{RID}, {NPROD}')
    e(f's_cselect_b32 s{EARLY}, 0, s{EARLY}')
    e(f's_cselect_b32 s{XK}, 3, s{XK}')
    e(f's_cselect_b32 s{YT}, s{t}, s{YT}')
    e(f's_cmp_ge_u32 s{RID}, {NPROD+32}')
    e(f's_cselect_b32 s{XK}, 0, s{XK}')
    e(f's_cmp_ge_u32 s{RID}, {NTASK}')
    e(f's_cselect_b32 s{YT}, 0, s{YT}')
    if not o.b0early:
        e(f's_cmp_lg_u32 s{EARLY}, 0')
        e('s_cbranch_scc1 L_a4')
    e('s_barrier')
    e('L_a4:')
    jit()
    e(f's_mov_b32 s{MASK}, 0xffff0000')
    e(f's_mov_b32 s{NPOLL}, 0')
    srd(e, S_WS, 12, WS_REC)
    srd(e, S_DBG, 10, 256)
    e(f'v_mov_b32 v10, {CNT}')
    e(f'v_mov_b32 v20, {(256 - 18*NSTR) & 0xffffffff}')
    e(f'v_mov_b32 v26, {NSTR}')
    e('v_bfe_u32 v21, v1, 2, 2')
    e('v_lshlrev_b32 v21, 7, v21')
    e('v_and_b32 v22, 1, v1')
    e('v_lshl_add_u32 v21, v22, 6, v21')
    e('v_bfe_u32 v22, v1, 1, 1')
    e('v_lshl_add_u32 v21, v22, 3, v21')
    e('v_lshrrev_b32 v22, 4, v1')
    e('v_lshl_add_u32 v21, v22, 4, v21')
    e(f'v_add_u32 v21, s{SCRB}, v21')
    if o.yall: e('v_mov_b32 v62, v21')
    e('v_and_b32 v25, 15, v1')
    e('v_lshlrev_b32 v25, 4, v25')
    for (vb, sw, vl, vs, so) in T:
        e(f'v_lshl_add_u32 v8, s{sw}, 2, v22' if sw != TW2 else 'v_add_u32 v8, 32, v22')
        e('v_cmp_le_u32 vcc, 18, v8')
        e(f'v_mad_u32_u24 v{vs}, v8, v26, v25')
        e(f'v_add_u32 v9, v{vs}, v20')
        e(f'v_cndmask_b32 v{vs}, v{vs}, v9, vcc')
    if o.tagp:
        e(f's_lshr_b32 s97, 0x33, s{kp}')
        e('s_and_b32 s97, s97, 1')
        e(f's_cmp_eq_u32 s{WAVE}, 4')
        e(f's_cselect_b32 s{t}, 1, s{97 if o.split1 else EARLY}')
        e(f's_cmp_lg_u32 s{t}, 0')
        e(f's_cselect_b32 s{t}, 4, -16')
        e(f'v_mov_b32 v9, s{t}')
        e('s_waitcnt lgkmcnt(0)')
        e('s_mov_b64 exec, 1')
        e(f'buffer_load_dword v27, v9, {sr(S_DBG)}, 0 offen sc1')
        e('s_mov_b64 exec, -1')
        e(f's_lshr_b32 s96, s{kp}, 2')
        e('s_lshl_b32 s96, s96, 4')
        e(f's_add_u32 s96, s96, s{c}')
        e('s_lshl_b32 s96, s96, 2')
        e(f's_and_b32 s{t}, s{kp}, 1')
        e(f's_add_u32 s96, s96, s{t}')
        e('s_lshl_b32 s96, s96, 9')
        e(f's_add_u32 s96, s96, {WOFF + 2*NSTEP*1024}')
    e(f's_lshr_b32 s{q}, s{kp}, 1')
    e(f's_and_b32 s{cc}, s{c}, 7')
    e(f's_lshr_b32 s{kk}, s{c}, 3')
    e(f's_and_b32 s{t}, s{kp}, 1')
    e(f's_cmp_eq_u32 s{kp}, 8')
    e(f's_cselect_b32 s{cc}, s{cc}, s{c}')
    e(f's_cselect_b32 s{kk}, s{kk}, s{t}')
    e(f's_lshl_b32 s{kk}, s{kk}, 9')
    e(f's_add_u32 s{kk}, s{kk}, {WOFF}')
    e(f's_lshl_b32 s{t}, s{q}, 4')
    e(f's_add_u32 s{b+2}, s{t}, s{cc}')
    e(f's_sub_u32 s{b+3}, s{b+2}, s{q}')
    e(f's_cmp_ge_u32 s{q}, 2')
    e(f's_cselect_b32 s{b+4}, 74, 0')
    e(f's_add_u32 s{b+4}, s{b+4}, s{b+2}')
    e(f's_cmp_lt_u32 s{cc}, 2')
    e(f's_cselect_b32 s{t}, 32, 136')
    e(f's_add_u32 s{t}, s{t}, s{cc}')
    e(f's_cmp_eq_u32 s{kp}, 8')
    e(f's_cselect_b32 s{b+4}, s{t}, s{b+4}')
    e(f's_add_u32 s{b+2}, s{b+2}, 34')
    e(f's_add_u32 s{b+3}, s{b+3}, 144')
    for k in (2, 3, 4):
        e(f's_lshl_b32 s{b+k}, s{b+k}, 10')
        e(f's_add_u32 s{b+k}, s{b+k}, s{kk}')
    e(f's_cmp_eq_u32 s{kp}, 8')
    e(f's_cselect_b32 s{t}, 1, 2')
    e(f's_cmp_eq_u32 s{c}, 15')
    e(f's_cselect_b32 s{b+5}, s{t}, 0')
    e(f's_lshl_b32 s46, s{WAVE}, 2')
    e(f's_add_u32 s46, s46, {CNT+16}')
    e('v_mov_b32 v55, s46')
    if o.tagp:
        e('s_waitcnt vmcnt(1)')
        stamp(2)
        e(f's_cmp_ge_u32 s{NOTASK}, {NTASK}')
        e('s_cbranch_scc1 L_x9')
    else:
        e('v_mov_b32 v27, 0')
        e('v_mov_b32 v9, 4')
        e('s_waitcnt vmcnt(0) lgkmcnt(0)')
        stamp(2)
        e(f's_cmp_lg_u32 s{WAVE}, 4')
        e('s_cbranch_scc1 L_a5')
        e('s_mov_b64 exec, 1')
        e(f'buffer_load_dword v27, v9, {sr(S_DBG)}, 0 offen sc1')
        e('s_mov_b64 exec, -1')
        e('L_a5:')
        e(f's_cmp_ge_u32 s{NOTASK}, {NTASK}')
        e('s_cbranch_scc1 L_x9')
    for (vb, sw, vl, vs, so) in T:
        for tap in range(2):
            for half in range(2):
                e(f'ds_read_b64_tr_b16 {vr(vb+4*tap+2*half,2)}, v21 offset:{so+1024*tap+512*half}')
    nlab = [0]
    def st01(vb, vs):
        nlab[0] += 1
        e(f'buffer_store_dwordx4 {vr(vb,4)}, v{vs}, {sr(S_WS)}, s{b+2} offen {o.stf}')
        e(f's_cmp_eq_u32 s{b+5}, 2')
        e(f's_cbranch_scc1 L_skip{nlab[0]}')
        e(f'buffer_store_dwordx4 {vr(vb+4,4)}, v{vs}, {sr(S_WS)}, s{b+3} offen {o.stf}')
        e(f'L_skip{nlab[0]}:')
    def st01all(lbl):
        st01(T[0][0], T[0][3]); st01(T[1][0], T[1][3])
        cond3(lbl)
        st01(T[2][0], T[2][3])
    def dosum(vb, tb, ob):
        for i in range(8):
            e(f'v_lshlrev_b32 v{tb+2*i}, 16, v{vb+i}')
            e(f'v_and_b32 v{tb+2*i+1}, s{MASK}, v{vb+i}')
        for i in range(4):
            e(f'v_pk_add_f32 {vr(tb+2*i,2)}, {vr(tb+2*i,2)}, {vr(tb+8+2*i,2)}')
        for i in range(4):
            e(f'v_cvt_pk_bf16_f32 v{ob+i}, v{tb+2*i}, v{tb+2*i+1}')
    def ldswait(off, cmp, operand, tag, slp):
        e(f'L_lw{tag}:')
        e(f'ds_read_b32 v11, v10 offset:{off}')
        e('s_waitcnt lgkmcnt(0)')
        e('v_and_b32 v11, 0xff, v11')
        e(f'v_cmp_{cmp}_u32 vcc, {operand}, v11')
        e('s_nop 4')
        e(f's_cbranch_vccnz L_lx{tag}')
        e(f's_sleep {slp}')
        e(f's_branch L_lw{tag}')
        e(f'L_lx{tag}:')
    SOR = lambda ti: (210 + 8 * ti) if o.tagp else (240 + 4 * ti)
    e(f's_or_b32 s46, s{EARLY}, s{MODE}')
    e(f's_cmp_eq_u32 s{XK}, 2')
    e('s_cselect_b32 s47, 1, s46')
    if o.xl: e('s_mov_b32 s46, s47')
    if o.split1:
        assert o.tagp and o.xl
        e('s_or_b32 s47, s47, s97')
        e(f's_andn2_b32 s50, s97, s{MODE}')
    e('s_cmp_eq_u32 s47, 0')
    e('s_cbranch_scc1 L_x9')
    if o.tagp:
        e('s_cmp_eq_u32 s97, 0')
        e('s_cbranch_scc1 L_x7')
        e('s_waitcnt vmcnt(0)')
        e('v_readfirstlane_b32 s48, v27')
        e(f's_add_u32 s49, s{TAG}, {TAGINC}')
        e('s_not_b32 s47, s49')
        e(f's_or_b32 s48, s48, s{MODE}')
        e('s_cselect_b32 s49, s47, s49')
        for ti in range(3):
            e(f'v_mov_b32 v{SOR(ti)-1}, s49')
            e(f'v_mov_b32 v{SOR(ti)+4}, s49')
        e('L_x7:')
        if o.xdel:
            e(f's_cmp_lg_u32 s{XK}, 2')
            e('s_cbranch_scc1 L_x8')
            e(f's_sleep {o.xdel}')
            e('L_x8:')
    for ti, (vb, sw, vl, vs, so) in enumerate(T):
        if ti == 2: cond3('L_x3')
        if o.split1:
            if ti == 1: e(f's_and_b32 s47, s50, s{EARLY}')
            else: e(f's_andn2_b32 s47, s50, s{EARLY}')
            e(f's_cbranch_scc1 L_x5{ti}')
        e(f's_waitcnt lgkmcnt({8-4*ti})')
        dosum(vb, 64 + 16 * ti, SOR(ti))
        if not o.split1:
            e('s_cmp_eq_u32 s46, 0')
            e(f's_cbranch_scc1 L_x5{ti}')
        if o.tagp:
            e('s_cmp_eq_u32 s97, 0')
            e(f's_cbranch_scc1 L_x6{ti}')
            e(f'buffer_store_dwordx4 {vr(SOR(ti)-2,4)}, v{vs}, {sr(S_WS)}, s96 offen {o.stf}')
            e(f'buffer_store_dwordx4 {vr(SOR(ti)+2,4)}, v{vs}, {sr(S_WS)}, s96 offen offset:1024 {o.stf}')
            e(f's_branch L_x5{ti}')
            e(f'L_x6{ti}:')
        e(f'buffer_store_dwordx4 {vr(SOR(ti),4)}, v{vs}, {sr(S_WS)}, s{b+4} offen {o.stf}')
        e(f'L_x5{ti}:')
    e('L_x3:')
    e(f's_cmp_eq_u32 s{MODE}, 0')
    e('s_cbranch_scc1 L_x9')
    e('L_x2:')
    e('s_waitcnt lgkmcnt(0)')
    st01all('L_x4')
    e('L_x4:')
    e(f's_cmp_eq_u32 s{MODE}, 0')
    e('s_cbranch_scc1 L_x9')
    e('s_waitcnt vmcnt(0)')
    e(f's_add_u32 s{PAIR}, s{PAIR}, 1')
    e(f's_cmp_lt_u32 s{PAIR}, {NPROD}')
    e('s_cbranch_scc1 L_prod')
    e('v_mov_b32 v11, 1')
    e('ds_write_b32 v10, v11 offset:12')
    e('s_endpgm')
    e('L_x9:')
    jit()
    if o.tagp and not o.b0early:
        e(f's_cmp_eq_u32 s{EARLY}, 0')
        e('s_cbranch_scc1 L_x10')
        e('s_barrier')
        e('L_x10:')
    stamp(3)
    decode()
    e('v_subrev_u32 v4, 256, v0')
    e('v_min_u32 v4, 251, v4')
    e('v_mul_u32_u24 v3, 3641, v4')
    e('v_lshrrev_b32 v3, 16, v3')
    e('v_mul_u32_u24 v2, 18, v3')
    e('v_sub_u32 v2, v4, v2')
    e(f'v_mul_u32_u24 v3, {R}, v3')
    e(f'v_min_u32 v3, {160-R}, v3')
    e('v_mul_u32_u24 v4, 1152, v3')
    e('v_lshl_add_u32 v4, v2, 4, v4')
    e(f'v_add_u32 v12, s{XB}, v4')
    e('v_mul_u32_u24 v18, 288, v3')
    e('v_lshl_add_u32 v18, v2, 4, v18')
    e(f'v_add_u32 v19, {X_D1}, v18')
    srd(e, S_X, 4, 1152000, add=BOFF)
    e(f's_add_u32 s46, s{TAG}, {TAGINC}')
    e('v_mov_b32 v56, s46')
    e(f's_lshl_b32 s46, s{RID}, 7')
    e('v_mov_b32 v58, s46')
    e(f's_add_u32 s46, s{PAIR}, {NPROD}')
    e('s_lshl_b32 s46, s46, 7')
    e('v_mov_b32 v59, s46')
    def publish(slot, vflag, tag, first, n=0):
        e('s_mov_b64 exec, 1')
        e(f's_waitcnt vmcnt({n})')
        if first: stamp(4)
        if o.padto and tag == 'x': stamp(12)
        e('v_cmp_ne_u32 vcc, 0, v27')
        e('v_not_b32 v57, v56')
        e('s_nop 0')
        e('v_cndmask_b32 v57, v56, v57, vcc')
        e(f'ds_write_b32 v55, v57 offset:{slot}')
        e(f'ds_read_b128 v[20:23], v10 offset:{32+slot}')
        e('s_waitcnt lgkmcnt(0)')
        for i in range(4): e(f'v_xor_b32 v{20+i}, v{20+i}, v56')
        e('v_or3_b32 v20, v20, v21, v22')
        e('v_or_b32 v20, v20, v23')
        e('v_cmp_eq_u32 vcc, 0, v20')
        e('s_and_b64 exec, exec, vcc')
        e(f's_cbranch_execz L_nl{tag}')
        e(f'buffer_store_dword v56, v{vflag}, {sr(S_WS)}, 0 offen sc1')
        e(f'L_nl{tag}:')
        e('s_mov_b64 exec, -1')
    if o.tagp and o.xl:
        e(f's_cmp_lg_u32 s{XK}, 2')
        e('s_cbranch_scc1 L_noflag')
        publish(0, 58, 'x', True)
        e(f's_mov_b32 s{XK}, 0')
    elif o.xl:
        e(f's_cmp_ge_u32 s{RID}, {NPROD}')
        e('s_cbranch_scc1 L_noflag')
        publish(0, 58, 'x', True)
        e(f's_mov_b32 s{XK}, 0')
        e(f's_cmp_eq_u32 s{EARLY}, 0')
        e('s_cbranch_scc1 L_noflag')
        if not o.b0early: e('s_barrier')
    elif not o.tagp:
        e(f's_cmp_eq_u32 s{EARLY}, 0')
        e('s_cbranch_scc1 L_noflag')
        publish(0, 58, 'x', True)
        if not o.b0early: e('s_barrier')
    e('L_noflag:')
    e(f's_setprio {o.hprio2}')
    RAW, ORAW = 64, 120
    EU = [184, 192]
    OU, DT, DO = 200, 208, 216
    xi = [0]
    NL = R + 1
    hq = []
    def eload():
        k = xi[0]
        if k >= NL: return
        a_ = 12
        if k:
            a_ = 13 + (k & 3)
            e(f'v_add_u32 v{a_}, {1152*k}, v12')
        e(f'buffer_load_dwordx4 {vr(RAW+4*k,4)}, v{a_}, {sr(S_X)}, 0 offen')
        xi[0] += 1
        hq.append(('e', k))
    if o.etouch:
        e(f's_cmp_lt_u32 s{RID}, {NTASK}')
        e('s_cbranch_scc1 L_net')
        e(f's_and_b32 s46, s{NB}, 1')
        e(f's_mul_i32 s46, s46, {1152*6}')
        e('v_add_u32 v12, s46, v12')
        for _ in range(7): eload()
        e('v_subrev_u32 v12, s46, v12')
        e('s_waitcnt vmcnt(0)')
        e('L_net:')
        xi[0] = 0; hq.clear()
    YA = 232
    e(f's_cmp_eq_u32 s{b+5}, 2')
    e('s_cselect_b32 s46, 0x80000000, 0')
    e(f's_cmp_lg_u32 s{HAS3}, 0')
    e('s_cselect_b32 s47, 0x80000000, 0')
    e('s_or_b32 s48, s46, s47')
    for i in range(6):
        m_ = {0: None, 1: 46, 2: None, 3: 46, 4: 47, 5: 48}[i]
        e(f'v_mov_b32 v{YA+i}, v{52+i//2}' if m_ is None else f'v_or_b32 v{YA+i}, s{m_}, v{52+i//2}')
    def ystore(i, a_):
        e(f'buffer_store_dwordx4 {vr(28+4*i,4)}, v{a_}, {sr(S_WS)}, s{b+2+(i&1)} offen {o.stf}')
        hq.append(('y', i))
    if o.yall:
        assert o.d0p
        e(f's_add_u32 s44, s{RID}, 76')
        e(f's_cmp_ge_u32 s44, {NWG}')
        e(f's_cselect_b32 s45, {NWG}, 0')
        e('s_sub_u32 s44, s44, s45')
        e(f's_add_u32 s46, s44, {NPROD + 32}')
        e('s_lshl_b32 s46, s46, 7')
        e('v_mov_b32 v59, s46')
        e('s_mul_hi_u32 s45, s44, 477218589')
        e('s_mul_i32 s46, s45, 9')
        e('s_sub_u32 s44, s44, s46')
        e(f's_lshr_b32 s{YT}, s45, 3')
        e(f's_add_u32 s{YT}, s{YT}, 1')
        e(f's_min_u32 s{YT}, s{YT}, 3')
        e('s_lshl_b32 s45, s45, 2')
        e(f's_add_u32 s45, s45, s{WAVE}')
        e('s_add_u32 s45, s45, 28')
        e('s_and_b32 s46, s45, 15')
        e('s_lshr_b32 s47, s45, 4')
        e('s_mul_i32 s54, s46, 165888')
        e('s_mul_i32 s48, s47, 9216')
        e('s_add_u32 s54, s54, s48')
        e('s_add_u32 s95, s54, 82944')
        e('s_cmp_lg_u32 s46, 15')
        e(f's_cselect_b32 s{S_WO+2}, 2571264, 0')
        e('s_cselect_b32 s51, 0, 0x80000000')
        e('s_lshr_b32 s48, s47, 1')
        e('s_and_b32 s49, s46, 7')
        e('s_lshr_b32 s50, s46, 3')
        e('s_and_b32 s45, s47, 1')
        e('s_cmp_eq_u32 s47, 8')
        e('s_cselect_b32 s49, s49, s46')
        e('s_cselect_b32 s50, s50, s45')
        e('s_cselect_b32 s51, 0, s51')
        e('s_lshl_b32 s50, s50, 9')
        e(f's_add_u32 s50, s50, {WOFF}')
        e('s_lshl_b32 s68, s48, 4')
        e('s_add_u32 s68, s68, s49')
        e('s_sub_u32 s69, s68, s48')
        e('s_add_u32 s68, s68, 34')
        e('s_add_u32 s69, s69, 144')
        for r_ in (68, 69):
            e(f's_lshl_b32 s{r_}, s{r_}, 10')
            e(f's_add_u32 s{r_}, s{r_}, s50')
        e('v_and_b32 v2, 3, v1')
        e('v_lshl_add_u32 v2, s44, 2, v2')
        e('v_lshrrev_b32 v3, 4, v1')
        e('v_lshl_add_u32 v3, s44, 2, v3')
        e('v_cmp_le_u32 vcc, 18, v2')
        e('v_cmp_le_u32 s[46:47], 18, v3')
        e('v_lshl_add_u32 v63, v2, 4, v24')
        e('v_mad_u32_u24 v60, v3, v26, v25')
        e('v_add_u32 v2, 4320, v63')
        e(f'v_add_u32 v3, {(256 - 18*NSTR) & 0xffffffff}, v60')
        e('v_cndmask_b32 v63, v63, v2, vcc')
        e('v_cndmask_b32 v60, v60, v3, s[46:47]')
        e('v_or_b32 v61, s51, v60')
    def ydma():
        if not o.yall: return
        e(f's_mov_b32 m0, s{SCRB}')
        e('s_nop 0')
        e(f'buffer_load_dwordx4 v63, {sr(S_W)}, s54 offen lds')
        e('s_addk_i32 m0, 1024')
        e('s_nop 0')
        e(f'buffer_load_dwordx4 v63, {sr(S_WO)}, s95 offen lds')
        hq.append('d0'); hq.append('d1')
    stamp(5)
    ldswait(8, 'eq', 4, 'o', 1)
    def unpack(dst, s_):
        for i in range(4):
            e(f'v_lshlrev_b32 v{dst+2*i}, 16, v{s_+i}')
            e(f'v_and_b32 v{dst+2*i+1}, s{MASK}, v{s_+i}')
    def unpackE(dst, k):
        e(f's_waitcnt vmcnt({len(hq)-1-hq.index(("e", k))})')
        unpack(dst, RAW + 4 * k)
        eload()
    def diff(eu, out):
        for i in range(8): e(f'v_sub_f32 v{DT+i}, v{eu+i}, v{OU+i}')
        for i in range(4):
            e(f'v_cvt_pk_bf16_f32 v{out+i}, v{DT+2*i}, v{DT+2*i+1}')
    def opengate():
        if not o.gate: return
        e('v_mov_b32 v11, 0x100')
        e('s_mov_b64 exec, 1')
        e('ds_add_u32 v10, v11 offset:8')
        e('s_mov_b64 exec, -1')
    def rows(hook):
        jit()
        stamp(6)
        for j in range(R):
            e(f'ds_read_b128 {vr(ORAW+4*j,4)}, v18 offset:{X_O+288*j}')
        unpackE(EU[0], 0)
        e('s_waitcnt lgkmcnt(0)')
        hook(-1)
        for j in range(R):
            o0 = DO + 8 * (j & 1)
            unpack(OU, ORAW + 4 * j)
            diff(EU[j & 1], o0)
            e(f'ds_write_b128 v18, {vr(o0,4)} offset:{X_D0+288*j}')
            unpackE(EU[(j + 1) & 1], j + 1)
            diff(EU[(j + 1) & 1], o0 + 4)
            e(f'ds_write_b128 v19, {vr(o0+4,4)} offset:{288*j}')
            hook(j)
    if o.apath:
        e(f's_cmp_ge_u32 s{RID}, {NPROD + (32 if o.d0p else 0)}')
        e('s_cbranch_scc1 L_pathA')
    if o.d0row >= 0: e(f's_cmp_lg_u32 s{XK}, 2')
    else: e(f's_cmp_lt_u32 s{XK}, 2')
    e('s_cbranch_scc1 L_nox')
    if o.d0p:
        e(f's_cmp_eq_u32 s{XK}, 3')
        e('s_cbranch_scc1 L_xd')
    for i in range(3):
        e(f'buffer_store_dwordx4 {vr(SOR(i),4)}, v{YA+2*i}, {sr(S_WS)}, s{b+4} offen {o.stf}')
    if o.d0p:
        e('s_branch L_xe')
        e('L_xd:')
        for i in range(6): ystore(i, YA + i)
        e('L_xe:')
    if o.gearly:
        opengate()
        publish(0, 58, 'x2', True)
        e('s_branch L_nox2')
        e('L_nox:')
        if o.gdel:
            e(f's_cmp_ge_u32 s{RID}, {NPROD}')
            e('s_cbranch_scc1 L_nox2')
        opengate()
        e('L_nox2:')
    else:
        publish(0, 58, 'x2', True)
        e('L_nox:')
        opengate()
    hq.clear(); xi[0] = 0
    for _ in range(o.ein): eload()
    def hookP(j):
        if j == o.ydrow: ydma()
        if o.gdel and j == o.gdel - 2:
            e(f's_cmp_lt_u32 s{RID}, {NPROD}')
            e('s_cbranch_scc1 L_gd')
            opengate()
            e('L_gd:')
        if j == o.d0row and j >= 0:
            e(f's_cmp_lg_u32 s{XK}, 3')
            e('s_cbranch_scc1 L_yn1')
            keep = list(hq)
            for i in range(6): ystore(i, YA + i)
            hq[:] = keep
            e('L_yn1:')
        if o.d0row >= 0 and j == o.d0row + o.d0row2:
            e(f's_cmp_lg_u32 s{XK}, 3')
            e('s_cbranch_scc1 L_yn2')
            publish(0, 58, 'yn', True)
            e('L_yn2:')
        if o.ymid and j == o.ymid:
            e(f's_cmp_lg_u32 s{YT}, 1')
            e('s_cbranch_scc1 L_ym1')
            keep = list(hq)
            for i in range(6): ystore(i, YA + i)
            hq[:] = keep
            e('L_ym1:')
        if o.ymid and j == o.ymid + o.ymid2:
            e(f's_cmp_lg_u32 s{YT}, 1')
            e('s_cbranch_scc1 L_ym2')
            publish(16, 59, 'ym', False)
            if o.diag == 1: stamp(8)
            e(f's_mov_b32 s{YT}, 0')
            e('L_ym2:')
    rows(hookP)
    if o.apath:
        e('s_branch L_rowsdone')
        e('L_pathA:')
        if not o.d0p:
            e(f's_cmp_eq_u32 s{XK}, 3')
            e('s_cselect_b32 s47, 0, 0x80000000')
            for i in range(6): e(f'v_or_b32 v{20+i}, s47, v{YA+i}')
        hq.clear(); xi[0] = 0
        for _ in range(NL): eload()
        if not o.d0p:
            for i in range(6): ystore(i, 20 + i)
        def hookA(j):
            if j == o.grow + 1: ydma()
            if j == o.grow:
                e(f's_waitcnt vmcnt({len(hq)-1-hq.index(("e", NL-1))})')
                opengate()
            if j == o.xrow and not o.d0p:
                e(f's_cmp_lg_u32 s{XK}, 3')
                e('s_cbranch_scc1 L_xp')
                publish(0, 58, 'x3', True)
                e('L_xp:')
        rows(hookA)
    e('L_rowsdone:')
    e('s_waitcnt lgkmcnt(0)')
    stamp(7)
    e('v_mov_b32 v11, 1')
    e('s_mov_b64 exec, 1')
    e('ds_add_u32 v10, v11 offset:16')
    e('s_mov_b64 exec, -1')
    e(f's_cmp_eq_u32 s{YT}, 0')
    e('s_cbranch_scc1 L_noy')
    e(f's_setprio {o.yprio}')
    if o.yall:
        e('s_waitcnt vmcnt(0)')
        for tap in range(2):
            for half in range(2):
                e(f'ds_read_b64_tr_b16 {vr(28+4*tap+2*half,2)}, v62 offset:{1024*tap+512*half}')
    e('L_yw:')
    e('ds_read_b64 v[20:21], v10')
    e('s_waitcnt lgkmcnt(0)')
    e('v_lshrrev_b32 v21, 14, v21')
    e('v_and_b32 v21, -4, v21')
    e('v_or_b32 v20, v20, v21')
    e(f'v_cmp_le_u32 vcc, s{YT}, v20')
    e('s_nop 4')
    e('s_cbranch_vccnz L_yx')
    e('s_sleep 4')
    e('s_branch L_yw')
    e('L_yx:')
    jit()
    if o.yall:
        e(f'buffer_store_dwordx4 v[28:31], v60, {sr(S_WS)}, s68 offen {o.stf}')
        e(f'buffer_store_dwordx4 v[32:35], v61, {sr(S_WS)}, s69 offen {o.stf}')
    else:
      for i in range(6):
        ystore(i, YA + i)
        e(f's_waitcnt vmcnt({o.ythr})')
        if o.ysleep: e(f's_sleep {o.ysleep}')
    publish(16, 59, 'y', False)
    if o.diag == 1: stamp(8)
    e('L_noy:')
    e(f's_cmp_lg_u32 s{WAVE}, 4')
    e('s_cbranch_scc1 L_hend')
    e('L_guard:')
    e('ds_read_b32 v11, v10 offset:4')
    e('s_waitcnt lgkmcnt(0)')
    e('v_readfirstlane_b32 s46, v11')
    e('s_nop 3')
    e('s_cmp_eq_u32 s46, 4')
    e(f's_cbranch_scc1 {"L_wb" if o.wbat else "L_hend"}')
    e('s_cmp_lt_u32 s46, 0x10000')
    e('s_cbranch_scc0 L_rescue')
    e('s_sleep 16')
    e('s_branch L_guard')
    if o.wbat:
        e('L_wb:')
        e('s_lshr_b32 s46, s2, 3')
        e(f's_cmp_lg_u32 s46, 5')
        e('s_cbranch_scc1 L_hend')
        ldswait(0, 'eq', 4, 'w', 2)
        e('buffer_wbl2 sc1')
        e('s_waitcnt vmcnt(0)')
        e('s_branch L_hend')
    e('L_rescue:')
    e(f's_mov_b32 s{MODE}, 1')
    e(f's_mov_b32 s{HAS3}, 1')
    e(f's_mov_b32 s{NOTASK}, 0')
    e(f's_lshr_b32 s{TW0}, s{NB}, 1')
    e(f's_add_u32 s{TW1}, s{NB}, 9')
    e(f's_lshr_b32 s{TW1}, s{TW1}, 1')
    e(f's_mov_b32 s{PAIR}, 0')
    e('s_branch L_prod')
    e('L_hend:')
    if o.padto and o.padev[0] == 'h': padloop('h')
    if o.diag == 1:
        stamp(9)
        dump(10)
    e('L_end:')
    e('s_endpgm')
    if o.hfirst:
        m0, h0 = mark['main0'], mark['help0']
        e.L = e.L[:m0] + e.L[h0:] + ['.p2align 6'] + e.L[m0:h0]
    e('L_codeend:')
    e('.section .rodata,"a"')
    e('.p2align 6')
    e(f'.amdhsa_kernel {KN}')
    for x in ['next_free_vgpr 256', 'next_free_sgpr 102', 'accum_offset 256', 'group_segment_fixed_size 0', 'kernarg_size 40',
              'user_sgpr_count 2', 'user_sgpr_kernarg_segment_ptr 1', 'system_sgpr_workgroup_id_x 1']:
        e('  .amdhsa_' + x)
    e('.end_amdhsa_kernel')
    n = haz.check(e.L)
    if n: print(f'{n} hazards', file=sys.stderr)
    return f'; @launch grid=({NWG},1,1) block=(512,1,1) lds={LDS_BYTES}\n' + HEADER + e.text()

def opts(argv=None):
    ap = argparse.ArgumentParser()
    ap.add_argument('-o', default='k.s')
    for nm, d in [('diag', 0), ('pf', 16), ('pf0', 8), ('wgap', 4), ('wres', 4), ('wsc1', 0), ('nfill', 2), ('fstride', 128), ('sleep', 0), ('maxpoll', 3000), ('nopoll', 0),
                  ('hprio', 3), ('hprio2', 0), ('mprio', 2), ('epre', 0), ('ein', 4), ('dpre', 7), ('b0early', 0), ('mtouch', 4), ('gate', 1), ('swapab', 0), ('d0p', 1), ('map', 1), ('chain', 4), ('xdel', 0), ('retry', 0), ('gdel', 0), ('padlo', 0), ('padhi', 252), ('d0row', 1), ('c2split', 1), ('d0row2', 1), ('split1', 0), ('ymid', 4), ('ymid2', 2), ('wbat', 0), ('jit', 0), ('apath', 0), ('rmap', 0), ('yall', 0), ('ydrow', 6), ('flat0', 1), ('flatzz', 0), ('tagp', 1), ('tpf', 5), ('xl', 1), ('p0plain', 0), ('onepoll', 0), ('epoll', 1), ('ppoll', 0), ('yprio', 3), ('ysleep', 0), ('vt', 94), ('tla', 40), ('tskip', 2), ('gearly', 1), ('chfrom', 8), ('oj', 9), ('nolds', 0), ('now', 0), ('wsame', 0), ('grow', 1), ('vbd', 33), ('nopk', 1), ('padto', 0), ('npdelay', 0), ('opre', 4), ('etouch', 0), ('orev', 1), ('b0late', 1), ('dec', 1), ('tail', 1), ('xla', 9), ('hold', 1), ('prest', 0), ('xslot', 0), ('noclosed', 0), ('cpf', 1), ('hfirst', 1), ('warmb', 1), ('wsfirst', 0), ('flead', 6), ('ythr', 6), ('xrow', 3), ('padstep', 33), ('probe', 0), ('probeoff', 0x4000000)]:
        ap.add_argument('--' + nm, type=int, default=d)
    ap.add_argument('--oflags', default='')
    ap.add_argument('--pmap', default='18,18,18,18,18,18,18,18')
    ap.add_argument('--padev', default='m0')
    ap.add_argument('--trig', default='10,25,40')
    ap.add_argument('--yrow', default='0,7,2,9,5,11')
    ap.add_argument('--pfcs', default='4,3,5,5,5')
    ap.add_argument('--fflags', default='')
    ap.add_argument('--fleads', default='6,5,6,6,6')
    ap.add_argument('--stf', default='sc1')
    ap.add_argument('--marks', default='0,4,8,12,16,24,33,47,58')
    o = ap.parse_args(argv)
    o.marks = [int(x) for x in o.marks.split(',')]
    o.yrow = [int(x) for x in o.yrow.split(',')]
    o.pfcs = [int(x) for x in o.pfcs.split(',')]
    o.fleads = [int(x) for x in o.fleads.split(',')]
    o.trig = [int(x) for x in o.trig.split(',')]
    return o

if __name__ == '__main__':
    o = opts()
    open(o.o, 'w').write(gen(o))
```

```python
import re, sys, argparse
import haz

KN = 'standalone__autoregressive_conv_wavernn__speech_kernel'
NWG = 252
NPROD = 144
ARR = 160 * 288
X_D0, X_O, X_D1 = 0, ARR, 2 * ARR
CNT = 3 * ARR
SCR = CNT + 64
LDS_BYTES = SCR + 18432
NSTEP = 106
WOFF = int(__import__('os').environ.get('WOFF', '0x100000'), 0)
NONCE = 0x10000
DIAG = 0x800000
WS_REC = max(0x1000000, WOFF + 0x400000, int(__import__('os').environ.get('WSREC', '0'), 0))
TAGINC = 0x9E3779B9
R = 12


HEADER = """; Gated dilated causal convolution, out = tanh(f) * sigmoid(g), h = [f g] = sum_i x[t + 2i - 60] w[i].
;
; A workgroup owns 144 output pairs x 16 output columns (f and g). Waves 0-3 run the matrix loop (two column tiles x
"""

class Em:
    def __init__(self): self.L = []
    def __call__(self, s): self.L.append(s)
    def text(self): return '\n'.join(self.L) + '\n'

def vr(a, n=1): return f'v{a}' if n == 1 else f'v[{a}:{a+n-1}]'
def sr(a, n=4): return f's[{a}:{a+n-1}]'

def streams():
    out = []
    for typ in (0, 1):
        S = []
        pid = [0]
        def add(arr, chunk, cs, acc):
            for c in cs: S.append((pid[0], arr, chunk, c, acc))
            pid[0] += 1
        if typ == 0:
            add('O', 0, range(16), 'P'); add('O', 1, range(16), 'P'); add('O', 'rem', range(0, 2), 'P')
            for q in range(4): add('D', q, range(16), 'Q')
            add('D', 'rem', range(8), 'Q')
        else:
            add('O', 2, range(16), 'P'); add('O', 3, range(16), 'P'); add('O', 'rem', range(2, 8), 'P')
            for q in range(4): add('D', q, range(15), 'Q')
            add('D', 'rem', range(8), 'Q')
        assert len(S) == NSTEP
        out.append(S)
    return out

S_X, S_W, S_WO, S_WS, S_OUT, S_DBG = 20, 24, 28, 32, 36, 40
WAVE, NB, BAT, PAR, MB, BOFF = 14, 15, 16, 17, 18, 19
PAIR0 = 3
XB = 52
MASK = 53
TW0, TW1, TW2, PAIR, HAS3, MODE, SCRB, TAG, LAST, NPOLL = 44, 45, 54, 55, 56, 57, 58, 59, 60, 61
TS = 62
TYP, WSO = 68, 69
EARLY, XK, YT, FIDX = 90, 91, 92, 93
NOTASK = 94
FO = 97
C2L, CNL, C60 = 90, 92, 94
ST0 = 70

def srd(e, d, ptr, rec, add=None):
    if add is None:
        e(f's_mov_b32 s{d}, s{ptr}')
        e(f's_and_b32 s{d+1}, s{ptr+1}, 0xffff')
    else:
        e(f's_add_u32 s{d}, s{ptr}, s{add}')
        e(f's_addc_u32 s{d+1}, s{ptr+1}, 0')
        e(f's_and_b32 s{d+1}, s{d+1}, 0xffff')
    e(f's_mov_b32 s{d+2}, {rec}')
    e(f's_mov_b32 s{d+3}, 0x20000')

def gen(o):
    e = Em()
    NSTR = 2 * NSTEP * 1024 + (65536 if o.tagp else 0)
    if o.tagp: o.epoll = 0
    NTASK = NPROD + (32 if o.yall else 96)
    role = ['m']
    jn = [0]
    def jit():
        if not o.jit: return
        jn[0] += 1
        k = jn[0]
        e(f's_mul_i32 s98, s2, {37 + 2 * k + o.jit * 10}')
        e(f's_mul_i32 s99, s{WAVE}, {11 + 6 * k + o.jit}')
        e('s_add_u32 s98, s98, s99')
        e('s_bitcmp1_b32 s98, 3')
        e(f's_cbranch_scc1 L_jit{k}')
        e(f's_sleep {30 + (k * 17 + o.jit * 5) % 90}')
        e(f'L_jit{k}:')
    def padloop(tag):
        e(f'L_pad{tag}:')
        e('s_memrealtime s[98:99]')
        e('s_waitcnt lgkmcnt(0)')
        e('s_sub_u32 s98, s98, s100')
        e(f's_cmp_lt_u32 s98, {o.padto}')
        e(f's_cbranch_scc1 L_pad{tag}')
    def stamp(k, lvl=1):
        if o.padto and lvl == 1 and o.padev == f'{role[0]}{k}':
            e('s_memrealtime s[100:101]'); e('s_waitcnt lgkmcnt(0)')
        if o.diag == lvl or (o.diag == 4 and lvl == 1): e(f's_memrealtime s[{ST0+2*k}:{ST0+2*k+1}]')
    def dump(nst):
        e('s_waitcnt lgkmcnt(0)')
        e('v_mov_b32 v250, 0')
        for k in range(nst): e(f'v_writelane_b32 v250, s{ST0+2*k}, {k}')
        e(f'v_writelane_b32 v250, s{NPOLL}, 13')
        e(f'v_writelane_b32 v250, s95, 12')
        e(f'v_writelane_b32 v250, s{3 if o.rmap else 2}, 14')
        e('s_getreg_b32 s46, hwreg(HW_REG_XCC_ID)')
        e('v_writelane_b32 v250, s46, 15')
        e(f's_lshl_b32 s46, s2, 3'); e(f's_add_u32 s46, s46, s{WAVE}'); e('s_lshl_b32 s46, s46, 6'); e(f's_add_u32 s46, s46, {DIAG}')
        e('v_lshl_add_u32 v251, v1, 2, s46')
        e('s_mov_b64 exec, 0xffff')
        e(f'buffer_store_dword v250, v251, {sr(S_WS)}, 0 offen')
        e('s_mov_b64 exec, -1')

    e('.amdgcn_target "amdgcn-amd-amdhsa--gfx950"')
    e('.text')
    e(f'.globl {KN}')
    e('.p2align 8')
    e(f'.type {KN},@function')
    e(f'{KN}:')
    e(f's_cmp_ge_u32 s2, {NWG}')
    e('s_cbranch_scc1 L_end')
    stamp(0)
    if o.padto and o.padev != 'm0': e('s_memrealtime s[100:101]')
    e('s_load_dwordx4 s[4:7], s[0:1], 0')
    e('s_load_dwordx4 s[8:11], s[0:1], 16')
    e('s_load_dwordx2 s[12:13], s[0:1], 32')
    e('v_lshrrev_b32 v2, 6, v0')
    e('v_and_b32 v1, 63, v0')
    e(f'v_readfirstlane_b32 s{WAVE}, v2')
    def decode():
        e('s_and_b32 s44, s2, 7')
        e('s_lshr_b32 s45, s2, 3')
        e('s_mul_i32 s46, s44, 31')
        e('s_min_u32 s44, s44, 4')
        e('s_add_u32 s46, s46, s44')
        e('s_add_u32 s46, s46, s45')
        if o.map == 0:
            e('s_mul_hi_u32 s47, s46, 68174085')
            e('s_mul_i32 s48, s47, 63')
            e('s_sub_u32 s48, s46, s48')
            e(f's_mul_hi_u32 s{NB}, s48, 613566757')
            e(f's_mul_i32 s49, s{NB}, 7')
            e('s_sub_u32 s49, s48, s49')
            e('s_mul_i32 s47, s47, 7')
            e('s_add_u32 s47, s47, s49')
        elif o.map == 1:
            e('s_mul_hi_u32 s47, s46, 477218589')
            e('s_mul_i32 s48, s47, 9')
            e(f's_sub_u32 s{NB}, s46, s48')
        else:
            e('s_mul_hi_u32 s47, s46, 34087043')
            e('s_mul_i32 s48, s47, 126')
            e('s_sub_u32 s48, s46, s48')
            e(f's_mul_hi_u32 s{NB}, s48, 306783379')
            e(f's_mul_i32 s49, s{NB}, 14')
            e('s_sub_u32 s49, s48, s49')
            e('s_mul_i32 s47, s47, 14')
            e('s_add_u32 s47, s47, s49')
        e(f's_and_b32 s{PAR}, s47, 1')
        e('s_lshr_b32 s47, s47, 1')
        e('s_cmp_ge_u32 s47, 7')
        e(f's_cselect_b32 s{BOFF}, 1152000, 0')
        e('s_cselect_b32 s48, 7, 0')
        e(f's_sub_u32 s{MB}, s47, s48')
        e(f's_mul_i32 s{XB}, s{MB}, 576')
        e(f's_add_u32 s{XB}, s{XB}, s{PAR}')
        e(f's_sub_u32 s{XB}, s{XB}, 60')
        e(f's_mul_i32 s{XB}, s{XB}, 288')
    RID = 3 if o.rmap else 2
    if o.rmap:
        e('s_and_b32 s44, s2, 3')
        e('s_lshr_b32 s45, s2, 3')
        e('s_lshl2_add_u32 s3, s45, s44')
        e('s_and_b32 s44, s2, 4')
        e('s_lshl_b32 s44, s44, 5')
        e('s_add_u32 s3, s3, s44')
    e(f's_cmp_ge_u32 s{WAVE}, 4')
    e('s_cbranch_scc1 L_helper')
    if o.cpf:
        e('s_lshr_b32 s44, s2, 3')
        e(f's_lshl_b32 s45, s{WAVE}, 5')
        e('s_add_u32 s44, s44, s45')
        e('s_sub_u32 s44, s44, 26')
        e('s_cmp_ge_u32 s44, 5')
        e('s_cbranch_scc1 L_main')
        e('s_getpc_b64 s[46:47]')
        e('L_pc:')
        e('s_lshl_b32 s44, s44, 13')
        e('v_lshl_add_u32 v2, v1, 7, s44')
        e('v_min_u32 v2, L_codeend-L_pc-4, v2')
        e('global_load_dword v63, v2, s[46:47]')
    if o.hfirst: e('s_branch L_main')
    mark = {'main0': len(e.L)}
    e('L_main:')
    e(f's_mov_b32 s{MASK}, 0xffff0000')
    e(f's_mov_b32 s{NPOLL}, 0')
    if o.diag: e('s_mov_b32 s95, 0')
    decode()

    VXO, VXOR, VXD, VXDR, VWL, VEX, VEXP, VOUT = 30, 31, 32, 33, 34, 35, 36, 37
    VF = 40
    VA = 48
    VCL = 60
    e('v_mul_u32_u24 v3, 3641, v0')
    e('v_lshrrev_b32 v3, 16, v3')
    e('v_mul_u32_u24 v2, 18, v3')
    e('v_sub_u32 v2, v0, v2')
    e('v_mul_u32_u24 v3, 1152, v3')
    e('v_lshl_add_u32 v3, v2, 4, v3')
    e(f's_add_u32 s46, s{XB}, 576')
    e(f'v_add_u32 v{VA}, s46, v3')
    e('v_mov_b32 v5, 16192')
    e('v_mov_b32 v6, 17056')
    for k in range(1, 12):
        e('v_cmp_le_u32 vcc, 14, v2')
        e('v_add_u32 v3, 4, v2')
        e('v_subrev_u32 v4, 14, v2')
        e('v_cndmask_b32 v7, v5, v6, vcc')
        e('v_cndmask_b32 v2, v3, v4, vcc')
        e(f'v_add_u32 v{VA+k}, v{VA+k-1}, v7')
    e(f's_lshl_b32 s50, s{WAVE}, 10')
    e(f's_add_u32 s50, s50, {X_O}')
    e(f's_add_u32 s51, s50, {4096*11}')
    e('s_movk_i32 s49, 4096')
    if o.orev:
        e(f's_bitcmp0_b32 s{NB}, 0')
        e('s_cbranch_scc1 L_fwd')
        for k in range(5): e(f'v_swap_b32 v{VA+k}, v{VA+10-k}')
        e(f's_add_u32 s50, s50, {4096*10}')
        e('s_movk_i32 s49, -4096')
        e('L_fwd:')
    e(f'v_mov_b32 v{VF+1}, {CNT}')
    for r in range(4, 8): e(f'v_mov_b32 v{r}, 0')
    e(f'ds_write_b128 v{VF+1}, v[4:7]')
    e(f'ds_write_b128 v{VF+1}, v[4:7] offset:16')
    e('s_waitcnt lgkmcnt(0)')
    e(f's_load_dword s{TAG}, s[12:13], {NONCE}')
    srd(e, S_X, 4, 1152000, add=BOFF)
    def odma(k):
        e(f's_mov_b32 m0, s{51 if k == 11 else 50}')
        e('s_add_u32 s50, s50, s49')
        e(f'buffer_load_dwordx4 v{VA+k}, {sr(S_X)}, 0 offen lds')
    def etouch():
        e(f'buffer_load_dword v62, v9, {sr(S_X)}, 0 offen')
    if o.mtouch and o.tskip:
        e(f's_lshr_b32 s47, s{RID}, 4')
        e('s_lshr_b32 s47, 0x33, s47')
        e('s_lshl_b32 s47, s47, 31')
    if o.mtouch:
        e('v_min_u32 v8, 39, v1')
        e('v_lshrrev_b32 v9, 2, v8')
        e(f's_mul_i32 s46, s{WAVE}, 10')
        e('v_add_u32 v9, s46, v9')
        e(f'v_mul_u32_u24 v9, {4*1152}, v9')
        e('v_and_b32 v8, 3, v8')
        e('v_mul_u32_u24 v8, 92, v8')
        e(f's_and_b32 s46, s{NB}, {7 if o.mtouch == 4 else 3}')
        e(f's_mul_i32 s46, s46, {576 if o.mtouch == 4 else 1152}')
        e(f's_add_u32 s46, s46, s{XB}')
        e('v_add3_u32 v9, v9, v8, s46')
        if o.tskip == 1: e('v_or_b32 v9, s47, v9')
    if o.mtouch == 4 and o.tskip == 2:
        e('s_cmp_eq_u32 s47, 0')
        e('s_cbranch_scc1 L_tn')
        e('s_waitcnt lgkmcnt(0)')
        e('L_tn:')
    if o.mtouch in (2, 4): etouch()
    if o.padto and o.padev == 'm13':
        e('s_waitcnt vmcnt(0)'); stamp(13)
    if o.padto and o.padev == 'm14':
        odma(0); e('s_sub_u32 s50, s50, s49'); e('s_waitcnt vmcnt(0)'); stamp(14)
    if o.padto: stamp(10)
    for k in range(o.opre): odma(k)
    e('s_barrier')
    stamp(1)
    jit()
    if o.mtouch == 3: etouch()
    for k in range(o.opre, 12):
        if k == 11:
            e(f's_cmp_lg_u32 s{WAVE}, 0')
            e('s_cbranch_scc1 L_o11')
        odma(k)
    e('L_o11:')
    if o.mtouch == 1: etouch()
    srd(e, S_WS, 12, WS_REC)
    if o.epoll:
        assert o.mtouch in (1, 4) and o.tskip
        e(f's_and_b32 s{TYP}, s{WAVE}, 1')
        e(f's_lshl_b32 s{FO}, s{TYP}, 13')
        e('s_mov_b32 s96, s47')
        e('s_xor_b32 s46, s47, 0x80000000')
        e(f'v_min_u32 v{VF}, 31, v1')
        e(f'v_lshlrev_b32 v{VF}, 7, v{VF}')
        e(f'v_or_b32 v2, s46, v{VF}')
        e(f'buffer_load_dword v{VF+4}, v2, {sr(S_WS)}, s{FO} offen sc1')
    srd(e, S_OUT, 8, 1152000, add=BOFF)
    srd(e, S_DBG, 10, 256)
    e('v_and_b32 v2, 15, v1')
    e('v_lshrrev_b32 v3, 4, v1')
    e('v_subrev_u32 v5, 4, v2')
    e('v_add_u32 v6, 8, v2')
    e('v_cmp_gt_u32 vcc, 4, v2')
    e('v_cmp_le_u32 s[46:47], 12, v2')
    e(f's_and_b32 s{TYP}, s{WAVE}, 1')
    e(f's_lshr_b32 s48, s{WAVE}, 1')
    e('v_cndmask_b32 v5, v5, v6, vcc')
    e('v_cndmask_b32 v5, v5, v2, s[46:47]')
    e('v_mul_u32_u24 v5, 9, v5')
    e('v_mul_u32_u24 v4, 288, v5')
    e('v_lshl_add_u32 v6, v3, 4, v4')
    e('v_and_b32 v7, 1, v3')
    e('v_lshl_add_u32 v7, v7, 4, v4')
    e('v_lshrrev_b32 v8, 1, v3')
    e('v_mul_u32_u24 v8, 2304, v8')
    e('v_add_u32 v7, v7, v8')
    e('v_add_u32 v7, 256, v7')
    e(f's_mul_i32 s49, s{TYP}, {X_D1}')
    e(f'v_add_u32 v{VXO}, {X_O}, v6')
    e(f'v_add_u32 v{VXOR}, {X_O}, v7')
    e(f'v_add_u32 v{VXD}, s49, v6')
    e(f'v_add_u32 v{VXDR}, s49, v7')
    e('v_lshlrev_b32 v6, 4, v1')
    e(f's_mul_i32 s49, s{WAVE}, 9216')
    e(f's_add_u32 s49, s49, {X_O}')
    e(f'v_add_u32 v{VEX}, s49, v6')
    e(f's_xor_b32 s49, s{WAVE}, 1')
    e('s_mul_i32 s49, s49, 9216')
    e(f's_add_u32 s49, s49, {X_O}')
    e(f'v_add_u32 v{VEXP}, s49, v6')
    e('v_and_b32 v8, 0x39, v1')
    e('v_bfe_u32 v9, v1, 1, 1')
    e('v_lshl_add_u32 v8, v9, 2, v8')
    e('v_bfe_u32 v9, v1, 2, 1')
    e('v_lshl_add_u32 v8, v9, 1, v8')
    e(f'v_lshlrev_b32 v{VWL}, 4, v8')
    e(f's_mul_i32 s49, s{TYP}, 576')
    e(f's_add_u32 s49, s49, s{XB}')
    e(f's_add_u32 s49, s49, {60*288}')
    e(f's_lshl_b32 s50, s{NB}, 5')
    e('s_add_u32 s49, s49, s50')
    e('s_lshl_b32 s50, s48, 4')
    e('s_add_u32 s49, s49, s50')
    e('v_mul_u32_u24 v8, 1152, v5')
    e('v_lshl_add_u32 v8, v3, 2, v8')
    e(f'v_add_u32 v{VOUT}, s49, v8')
    e(f'v_add_u32 v{VOUT+1}, 3456, v{VOUT}')
    e(f'v_add_u32 v{VOUT+2}, 6912, v{VOUT}')
    e(f's_lshl_b32 s49, s{NB}, 1')
    e('s_add_u32 s49, s49, s48')
    e(f's_mul_i32 s49, s49, {NSTR}')
    e(f's_mul_i32 s{WSO}, s{TYP}, {NSTEP*1024}')
    e(f's_add_u32 s{WSO}, s{WSO}, s49')
    e(f's_add_u32 s{WSO}, s{WSO}, {WOFF + (16384 if o.tagp else 0)}')
    if o.tagp:
        e(f's_lshl_b32 s96, s{TYP}, 15')
        e('s_add_u32 s96, s96, s49')
        e(f's_add_u32 s96, s96, {WOFF + 2*NSTEP*1024}')
    e(f's_mov_b32 s{C2L}, 0x4038aa3b'); e(f's_mov_b32 s{C2L+1}, 0x4038aa3b')
    e(f's_mov_b32 s{CNL}, 0xbfb8aa3b'); e(f's_mov_b32 s{CNL+1}, 0xbfb8aa3b')
    e(f's_mov_b32 s{C60}, 0x42700000')
    e(f'v_min_u32 v{VF}, 31, v1')
    e(f'v_lshlrev_b32 v{VF}, 7, v{VF}')
    e(f'v_min_u32 v{VF+6}, 47, v1')
    e(f'v_lshlrev_b32 v{VF+6}, 7, v{VF+6}')
    e(f'v_mov_b32 v{VF+2}, 1')
    e('s_lshl_b32 s46, s48, 2')
    e(f'v_add_u32 v{VF+5}, s46, v{VF+1}')
    e(f's_or_b32 s46, s2, s{WAVE}')
    e('v_or_b32 v2, s46, v1')
    e('v_cmp_eq_u32 vcc, 0, v2')
    e(f'v_mov_b32 v{VCL}, -16')
    e(f'v_mov_b32 v{VCL+1}, -16')
    e(f'v_mov_b32 v3, {NONCE}')
    e(f'v_cndmask_b32 v{VCL}, v{VCL}, 4, vcc')
    e(f'v_cndmask_b32 v{VCL+1}, v{VCL+1}, v3, vcc')
    if o.yall:
        e(f's_lshr_b32 s46, s{NB}, 1')
        e(f's_add_u32 s47, s{NB}, 9')
        e('s_lshr_b32 s47, s47, 1')
        e('v_mov_b32 v4, s46')
        e('v_mov_b32 v5, s47')
        e('v_cmp_gt_u32 vcc, 32, v1')
        e('v_and_b32 v2, 7, v1')
        e('v_and_b32 v3, 15, v1')
        e('v_cndmask_b32 v4, v5, v4, vcc')
        e('v_min_u32 v3, 11, v3')
        e('v_mad_u32_u24 v2, v2, 9, v4')
        e('v_mad_u32_u24 v3, v3, 9, v4')
        e('v_lshlrev_b32 v2, 7, v2')
        e('v_lshlrev_b32 v3, 7, v3')
    e(f's_lshl_b32 s{FO}, s{TYP}, 13')
    if o.warmb:
        e(f's_cmp_eq_u32 s{TYP}, 1')
        e('s_cbranch_scc1 L_warmB')
        e('L_warmret:')
    if o.xdel < 0:
        e(f's_waitcnt vmcnt({o.xsn})')
        e(f'v_mov_b32 v{VF+7}, 0x10000')
        e('s_mov_b64 exec, 1')
        e(f'ds_add_u32 v{VF+1}, v{VF+7} offset:8')
        e('s_mov_b64 exec, -1')
    e(f's_waitcnt vmcnt({(1 if o.mtouch == 1 else 0) + o.epoll}) lgkmcnt(0)')
    stamp(2)
    if o.padto and o.padev in ('m11', 'm12'):
        e(f's_lshr_b32 s46, s{RID}, 4')
        e('s_lshr_b32 s46, 0x33, s46')
        e('s_bitcmp1_b32 s46, 0')
        e(f's_cbranch_scc{1 if o.padev == "m11" else 0} L_pk')
        e('s_memrealtime s[100:101]'); e('s_waitcnt lgkmcnt(0)')
        e('L_pk:')
    e('s_mov_b64 exec, 1')
    e(f'ds_add_u32 v{VF+1}, v{VF+2} offset:8')
    e('s_mov_b64 exec, -1')
    e(f's_add_u32 s{TAG}, s{TAG}, {TAGINC}')
    e(f'v_mov_b32 v{VF+3}, s{TAG}')
    def flagwait(tag, vaddr, back):
        e(f'L_fw{tag}:')
        if o.diag and len(tag) == 2: e(f's_add_u32 s95, s95, {1 << (4 * int(tag[1]))}')
        e(f'buffer_load_dword v{VF+4}, v{vaddr}, {sr(S_WS)}, s{FO} offen sc1')
        e(f'ds_read_b32 v{VF+7}, v{VF+1} offset:12')
        e(f's_add_u32 s{NPOLL}, s{NPOLL}, 1')
        e('s_waitcnt vmcnt(0) lgkmcnt(0)')
        e(f'v_cmp_ne_u32 vcc, v{VF+3}, v{VF+4}')
        e(f'v_readfirstlane_b32 s46, v{VF+7}')
        e('s_nop 3')
        e(f's_cbranch_vccz {back}')
        e('s_cmp_lg_u32 s46, 0')
        e(f's_cbranch_scc1 {back}')
        e(f's_cmp_lg_u32 s{NPOLL}, {o.maxpoll}')
        e(f's_cbranch_scc1 L_fw{tag}')
        e(f'v_mov_b32 v{VF+7}, 0x10000')
        e('s_mov_b64 exec, 1')
        e(f'ds_add_u32 v{VF+1}, v{VF+7} offset:4')
        e('s_mov_b64 exec, -1')
        e(f's_branch L_fw{tag}')
    if o.epoll:
        e('s_cmp_eq_u32 s96, 0')
        e('s_cbranch_scc1 L_gate')
        e('s_waitcnt vmcnt(0)')
        e(f'v_cmp_ne_u32 vcc, v{VF+3}, v{VF+4}')
        e('s_nop 4')
        e('s_cbranch_vccz L_go')
    if o.gate:
        e('L_gate:')
        e(f'ds_read_b32 v{VF+4}, v{VF+1} offset:8')
        e('s_waitcnt lgkmcnt(0)')
        e(f'v_and_b32 v{VF+4}, 0xffff, v{VF+4}')
        e(f'v_cmp_gt_u32 vcc, 0x400, v{VF+4}')
        e('s_nop 4')
        e('s_cbranch_vccz L_gate2')
        e('s_sleep 1')
        e('s_branch L_gate')
        e('L_gate2:')
    if o.ppoll:
        e(f'buffer_load_dword v{VF+4}, v{VF}, {sr(S_WS)}, s{FO} offen sc1')
        e('L_pp:')
        for a_, b_ in ((VF + 4, 62), (62, VF + 4)):
            e(f's_sleep {o.ppoll}')
            e(f'buffer_load_dword v{b_}, v{VF}, {sr(S_WS)}, s{FO} offen sc1')
            e('s_waitcnt vmcnt(1)')
            e(f'v_cmp_ne_u32 vcc, v{VF+3}, v{a_}')
            e(f's_add_u32 s{NPOLL}, s{NPOLL}, 1')
            e('s_nop 3')
            e('s_cbranch_vccz L_go')
        e(f's_cmp_lt_u32 s{NPOLL}, 40')
        e('s_cbranch_scc1 L_pp')
        e(f's_mov_b32 s{NPOLL}, 0')
    if o.p0plain:
        e(f'buffer_load_dword v{VF+4}, v{VF}, {sr(S_WS)}, s{FO} offen')
        e('s_waitcnt vmcnt(0)')
        e(f'v_cmp_ne_u32 vcc, v{VF+3}, v{VF+4}')
        e('s_nop 4')
        e('s_cbranch_vccz L_go')
    if o.onepoll:
        e(f's_cmp_lt_u32 s{WAVE}, 2')
        e('s_cbranch_scc1 L_fw0')
        e('L_op:')
        e(f'ds_read_b32 v{VF+7}, v{VF+1} offset:8')
        e('s_waitcnt lgkmcnt(0)')
        e(f's_add_u32 s46, s{TYP}, 16')
        e(f'v_lshrrev_b32 v{VF+7}, s46, v{VF+7}')
        e(f'v_and_b32 v{VF+7}, 1, v{VF+7}')
        e(f'v_cmp_eq_u32 vcc, 0, v{VF+7}')
        e('s_nop 4')
        e('s_cbranch_vccnz L_op')
        e('s_branch L_go2')
    if not o.tagp: flagwait('0', VF, 'L_go')
    e('L_go:')
    jit()
    if o.tagp: e('s_mov_b32 s50, s96')
    if o.onepoll:
        e(f's_lshl_b32 s46, 0x10000, s{TYP}')
        e(f'v_mov_b32 v{VF+7}, s46')
        e('s_mov_b64 exec, 1')
        e(f'ds_or_b32 v{VF+1}, v{VF+7} offset:8')
        e('s_mov_b64 exec, -1')
        e('L_go2:')
    stamp(3)
    e('L_gw:')
    e(f'ds_read_b32 v{VF+7}, v{VF+1} offset:8')
    e('s_waitcnt lgkmcnt(0)')
    e(f'v_and_b32 v{VF+7}, 0xff, v{VF+7}')
    e(f'v_cmp_ne_u32 vcc, 4, v{VF+7}')
    e('s_nop 4')
    e('s_cbranch_vccnz L_gw')
    stamp(4)
    e(f's_setprio {o.mprio}')
    e(f's_cmp_eq_u32 s{TYP}, 1')
    e('s_cbranch_scc1 L_typeB')

    ACC = {'P': 64, 'Q': 100}
    WR, TMP = 136, 224
    XRING = [200 + 4 * i for i in range(6)]
    XWIN = [4 + 4 * i for i in range(6)] + [240 + 4 * i for i in range(4)]
    VC = 28
    PF = o.pf
    GT = 98
    wflags = {0: '', 1: ' sc1', 2: ' nt', 3: ' sc0'}[o.wsc1]
    for typ, S in enumerate(streams()):
        if typ == 1:
            e('.p2align 6')
            if o.warmb: e('L_warmB:'); e('s_branch L_warmret')
            e('L_typeB:')
        ops = []
        vstart = {}
        lastv = o.vt - 1
        v0 = 0
        G0 = 0
        if o.flat0:
            for g in range(16):
                vstart[g] = len(ops)
                for j in (range(9) if g % 2 == 0 or not o.flatzz else range(8, -1, -1)): ops.append((g, j))
            v0 = G0 = 16
        while v0 <= lastv:
            ch = 1 if v0 < o.chfrom + G0 else min(o.chain, lastv + 1 - v0)
            n0 = len(ops)
            for j in range(8, -1, -1):
                us = range(ch) if j % 2 == 0 else range(ch - 1, -1, -1)
                first_ = [u for u in us if v0 + u - j == 0 or (0 < v0 + u - j < NSTEP and S[v0+u-j][4] == 'Q' and S[v0+u-j-1][4] == 'P')]
                if first_: us = range(ch)
                for u in us:
                    if G0 <= v0 + u - j < NSTEP: ops.append((v0 + u - j, j))
            for u in range(ch): vstart[v0 + u] = n0 + (len(ops) - n0) * u // ch
            v0 += ch
        ntail = len(ops)
        if o.tail:
            for j in range(9):
                for g in range(o.vt - j, NSTEP): ops.append((g, j))
        assert len(ops) == NSTEP * 9 and len(set(ops)) == len(ops)
        N = len(ops)
        def key(n):
            g, j = ops[n]
            pid, arr, ch, c, acc = S[g]
            k = (pid, arr, ch, c + j)
            if n >= ntail and g < GT: k = k + ((n,) if not o.hold else ('h',))
            return k
        first, last = {}, {}
        for n in range(N):
            first.setdefault(key(n), n); last[key(n)] = n
        wfirst, wlast = {}, {}
        for n, (g, j) in enumerate(ops):
            wfirst.setdefault(g, n); wlast[g] = n
        tasks = []
        for k, n0 in first.items():
            win = o.tail and k[2] == 'rem' and k[1] == 'D'
            la = o.xla if n0 < ntail else 6
            if n0 >= ntail and ops[n0][1] == 0: la = o.tla
            elif win: la = 12
            tasks.append([n0 - la, n0 - 1, 'X', k])
        for g in range(NSTEP):
            rel = -100 + g if g < o.pf0 else max(0, wfirst[g] - 9 * PF)
            if o.tagp and g < 16:
                rel = -100 + g if g < 4 else max(0, wfirst[g] - 9 * o.tpf)
                tasks.append([rel, wfirst[g & ~1] - 9, 'W', g])
                continue
            tasks.append([rel, wfirst[g] - 1, 'W', g])
        def at(v, off=0): return vstart[v] + off
        firstD = min(n for n in range(N) if S[ops[n][0]][1] == 'D')
        lastO = max(n for n in range(N) if S[ops[n][0]][1] == 'O')
        lastP = {j: max(n for n in range(N) if ops[n][1] == j and S[ops[n][0]][4] == 'P') for j in range(9)}
        slow = []
        vused = set()
        def check(v, off, cnt, tag):
            tasks.append([at(v - 1, 3), at(v - 1, 8), 'L', (f'ds_read_b32 v{VC}, v{VF+1} offset:{off}', ('c', tag))])
            tasks.append([at(v, 0), at(v, 1), 'C', (f'v_cmp_ne_u32 vcc, {cnt}, v{VC}', ('c', tag))])
            tasks.append([at(v, 6), at(v, 7), 'I', [f's_cbranch_vccnz L_slow{typ}{tag}', f'L_back{typ}{tag}:']])
            slow.append((tag, off, cnt))
            vused.add(v)
            return at(v, 8)
        def add1(pos, off):
            tasks.append([pos, pos + 4, 'A', off])
        vD = [v for v in vstart if vstart[v] <= firstD - o.xla][-1] - 1
        okD = check(vD, 16, 4, 'D')
        assert okD <= firstD - o.xla
        add1(lastO, 20)
        VP = 47
        okR = check(VP, 20, 4, 'R')
        for j in range(9):
            assert lastP[j] + 12 < at(VP + 1 + j, 2)
            tasks.append([at(VP + 1 + j, 2), at(VP + 1 + j, 8), 'L', (f'ds_write_b128 v{VEX}, {vr(ACC["P"]+4*j,4)} offset:{1024*j}', ('pw', j))])
        tasks.append([at(VP + 10, 0), at(VP + 10, 4), 'A', 'pair'])
        VQ = VP + 13
        okP = check(VQ, 'pair', 2, 'P')
        for j in range(9):
            tasks.append([at(VQ + 1 + j, 2), at(VQ + 1 + j, 8), 'L', (f'ds_read_b128 {vr(TMP+4*(j&1),4)}, v{VEXP} offset:{1024*j}', ('pr', j))])
            v = VQ + 2 + j
            pos = at(v, 8 - (j + 2) - 1) if j <= 6 else at(v, 8 - (j - 7) - 1)
            sh = 1 if j >= 7 else 0
            if o.chain > 1:
                own = [n for n in range(N) if ops[n][1] == j]
                pos = [a_ + 10 for a_, b_ in zip(own, own[1:]) if b_ - a_ >= 14 and a_ + 9 >= at(v, 0) ][0]
                sh = 0
                tasks[-1][0] = pos - 9; tasks[-1][1] = pos - 4
                tasks[-1][3] = (f'ds_read_b128 {vr(TMP+4*(j&3),4)}, v{VEXP} offset:{1024*j}', ('pr', j))
            tasks.append([pos - 1 + sh, pos - 1 + sh, 'Q', (j, 0)])
            tasks.append([pos + sh, pos + sh, 'Q', (j, 1)])
        if typ == 0:
            tasks.append([at(64, 4), at(64, 8), 'S', f'buffer_store_dword v{VCL+1}, v{VCL}, {sr(S_DBG)}, 0 offen sc1'])
            tasks.append([at(84, 4), at(84, 8), 'S', f'buffer_store_dword v{VF+3}, v{VCL+1}, {sr(S_WS)}, 0 offen sc1'])
        fslow = []
        kslow = []
        if o.tagp:
            for g in range(0, 16, 2):
                n0 = wfirst[g]
                if g < 4: continue
                tasks.append([n0 - 8, n0 - 7, 'K', g])
                tasks.append([n0 - 2, n0 - 1, 'I', ['s_cmp_lg_u64 s[48:49], 0', f's_cbranch_scc1 L_ks{typ}{g}', f'L_kb{typ}{g}:']])
        passes = {}
        for g in range(NSTEP): passes.setdefault(S[g][0], g)
        need = [(passes[1], VF, 32 + 64 * typ), (32, VF + 6, 128), (passes[4], VF, 176), (passes[5], VF, 208), (passes[6], VF + 6, 240)]
        if o.c2split:
            need[1:2] = [(32, VF, 112), (passes[3], VF, 144)]
            o.pfcs6 = [o.pfcs[0], 10] + o.pfcs[1:]; o.fleads6 = [o.fleads[0], 8] + o.fleads[1:]
        else:
            o.pfcs6 = o.pfcs; o.fleads6 = o.fleads
        if o.yall: need[2:] = [(passes[4], 2, 176), (passes[5], 2, 176 + 72), (passes[6], 3, 176 + 144)]
        lastG = -1
        for ci, (gn, va, idx) in enumerate(need):
            v = gn - o.pfcs6[ci] - 1
            while v in vused: v -= 1
            tasks.append([at(v - o.fleads6[ci], 4), at(v - o.fleads6[ci], 8), 'F', (va, idx, ci)])
            tasks.append([at(v, 0), at(v, 1), 'G', ci])
            tasks.append([at(v, 6), at(v, 7), 'I', [f's_cbranch_vccnz L_fw{typ}{ci}', f'L_fb{typ}{ci}:']])
            fslow.append((ci, va))
            assert v not in vused, v
            vused.add(v)
            assert at(v - o.fleads6[ci], 4) > lastG, (ci, v)
            lastG = at(v, 7)
            for t in tasks:
                if t[2] == 'W' and (t[3] >= gn): t[0] = max(t[0], at(v, 8))
        tasks.append([at(v + 1, 2), at(v + 1, 8), 'A', 4])
        if typ == 0:
            for lvl, v in enumerate(o.trig): tasks.append([at(v, 2), at(v, 8), 'P', lvl + 1])
            if o.wbat: tasks.append([ntail + o.wbat, ntail + o.wbat + 6, 'P', 4])
        tasks.sort(key=lambda t: (t[0], t[1]))
        vq, lq = [], []
        dirty = [False]
        xreg, busy = {}, {}
        wn = [0]
        wr = {}
        lastw = [-100]
        later = []
        BIG = [WR + 4 * i for i in range(16)] + XWIN + [ACC['P'] + 4 * i for i in range(9)]
        for i in range(9): busy[ACC['P'] + 4 * i] = at(VP + 12)
        until = {}
        if o.chain > 1:
            BIG += XRING + [VA, VA + 4, VA + 8]
            for i in range(9):
                BIG.append(ACC['Q'] + 4 * i)
                until[ACC['Q'] + 4 * i] = min(n for n in range(N) if ops[n][1] == i and S[ops[n][0]][4] == 'Q') - 3
        def freeregs(n, end): return [x for x in BIG if busy.get(x, -1) <= n and end < until.get(x, 10**9)]
        def freepairs(n, end):
            f_ = set(freeregs(n, end))
            return [x for x in sorted(f_) if x % 8 == PAR8.get(x, -1) and x + 4 in f_]
        PAR8 = {x: x % 8 for x in list(range(WR, WR + 64, 8)) + [4, 12, 20, 240, 248, 200, 208, 216, 100, 108, 116, 124, VA]}
        def kcheck(g):
            vwait(g + 1)
            for i, gg in enumerate((g, g + 1)):
                a_ = wr[gg] - 2
                em(f'v_bitop3_b32 v{VC+i}, v{a_+1}, v{a_+6}, v{VF+3} bitop3:0x7e')
            em(f'v_or_b32 v{VC}, v{VC}, v{VC+1}')
            em(f'v_cmp_ne_u32 s[48:49], 0, v{VC}')
            kslow.append((g, wr[g] - 2, wr[g + 1] - 2))
        def wok(t, n):
            if t[2] != 'W': return True
            if t[3] != wn[0]: return False
            if o.tagp and t[3] < 16:
                return bool(freepairs(n, wlast[t[3]])) and (n - lastw[0] >= 2 or t[1] - n <= 4)
            free = len(freeregs(n, wlast[t[3]]))
            if t[1] - n <= 9 * 3: return free > 0
            return n - lastw[0] >= o.wgap and free > o.wres
        since = {}
        fill = []
        def em(x):
            e(x)
            if not x.endswith(':'):
                for jj in since: since[jj] += 1
        def lwait(tag):
            if tag not in lq: return
            i = lq.index(tag)
            em(f's_waitcnt lgkmcnt({0 if dirty[0] else len(lq)-1-i})')
            if dirty[0]: lq.clear(); dirty[0] = False
            else: del lq[:i + 1]
        def vwait(g):
            if g not in vq: return
            i = vq.index(g)
            em(f's_waitcnt vmcnt({len(vq)-1-i})')
            del vq[:i + 1]
        def run(t, n):
            kind, p = t[2], t[3]
            if kind == 'X':
                pool = BIG if (o.chain > 1 or p[-1] == 'h' or (p[2] == 'rem' and p[1] == 'D')) else XRING
                r = [x for x in pool if busy.get(x, -1) <= n and last[p] < until.get(x, 10**9)]
                assert r, ('no x register', p, n)
                r = min(r, key=lambda x: (until.get(x, 10**9), busy.get(x, -1)))
                busy[r] = last[p]; xreg[p] = r
                arr, ch, s_ = p[1], p[2], p[3]
                if o.nolds and n > 9 * 30: return
                if ch == 'rem': em(f'ds_read_b128 {vr(r,4)}, v{VXOR if arr == "O" else VXDR} offset:{288*s_}')
                else: em(f'ds_read_b128 {vr(r,4)}, v{VXO if arr == "O" else VXD} offset:{64*ch+288*s_}')
                lq.append(p)
            elif kind == 'W':
                g = p
                if o.tagp and g < 16:
                    r = min(freepairs(n, wlast[g]), key=lambda x: (until.get(x, 10**9), busy.get(x, -1)))
                    busy[r] = busy[r + 4] = wlast[g]; wr[g] = r + 2
                    assert g == wn[0]; wn[0] += 1
                    lastw[0] = n
                    em(f'buffer_load_dwordx4 {vr(r,4)}, v{VWL}, {sr(S_WS)}, s50 offen offset:{2048*(g%2)}')
                    em(f'buffer_load_dwordx4 {vr(r+4,4)}, v{VWL}, {sr(S_WS)}, s50 offen offset:{2048*(g%2)+1024}')
                    vq.append(('h', g)); vq.append(g)
                    if g % 2 == 1:
                        if n < 0: em('s_add_u32 s50, s50, 4096')
                        else: later.append('s_add_u32 s50, s50, 4096')
                    return
                r = min(freeregs(n, wlast[g]), key=lambda x: (until.get(x, 10**9), busy.get(x, -1)))
                busy[r] = wlast[g]; wr[g] = r
                assert g == wn[0]; wn[0] += 1
                lastw[0] = n
                if o.now and g > 40: return
                if o.wsame and g > 40:
                    em(f'buffer_load_dwordx4 {vr(r,4)}, v{VWL}, {sr(S_WS)}, s{WSO} offen offset:{1024*(g%4)}{wflags}'); vq.append(g); return
                em(f'buffer_load_dwordx4 {vr(r,4)}, v{VWL}, {sr(S_WS)}, s{WSO} offen offset:{1024*(g%4)}{wflags}')
                if g % 4 == 3:
                    if n < 0: em(f's_add_u32 s{WSO}, s{WSO}, 4096')
                    else: later.append(f's_add_u32 s{WSO}, s{WSO}, 4096')
                vq.append(g)
            elif kind == 'L':
                em(p[0].replace('offset:pair', 'offset:24').replace(f'v{VF+1} offset:24', f'v{VF+5} offset:24')); lq.append(p[1])
            elif kind == 'C':
                lwait(p[1]); em(p[0])
            elif kind == 'I':
                for x in p: em(x)
            elif kind == 'A':
                em('s_mov_b64 exec, 1')
                if p == 'pair': em(f'ds_add_u32 v{VF+5}, v{VF+2} offset:24')
                else: em(f'ds_add_u32 v{VF+1}, v{VF+2} offset:{p}')
                em('s_mov_b64 exec, -1')
                lq.append(('a', p))
            elif kind == 'Q':
                p, hf = p
                lwait(('pr', p))
                q = ACC['Q'] + 4 * p; t_ = TMP + 4 * (p & (3 if o.chain > 1 else 1))
                for i in (2 * hf, 2 * hf + 1): em(f'v_add_f32 v{q+i}, v{q+i}, v{t_+i}')
            elif kind == 'S':
                assert not any(isinstance(x, tuple) and x[0] == 's' for x in vq)
                em(p); vq.append(('s', n))
            elif kind == 'F':
                em(f's_mov_b32 s{FO}, {128*p[1]}')
                em(f'buffer_load_dword v{VF+4}, v{p[0]}, {sr(S_WS)}, s{FO} offen {o.fflags}'); vq.append(('f', p[2]))
            elif kind == 'K':
                kcheck(p)
            elif kind == 'G':
                vwait(('f', p)); em(f'v_cmp_ne_u32 vcc, v{VF+3}, v{VF+4}')
            elif kind == 'P':
                em(f'v_mov_b32 v{VF+7}, {p}')
                em('s_mov_b64 exec, 1')
                em(f'ds_max_u32 v{VF+1}, v{VF+7}')
                em('s_mov_b64 exec, -1')
                lq.append(('p', p))
        def epi(j, pk):
            q = ACC['Q'] + 4 * j
            t = TMP + 8 * (j & 1)
            I = []
            if pk:
                I.append(f'v_pk_mul_f32 {vr(t,2)}, {vr(q,2)}, s[{C2L}:{C2L+1}]')
                I.append(f'v_pk_mul_f32 {vr(t+2,2)}, {vr(q+2,2)}, s[{CNL}:{CNL+1}]')
            else:
                for i in (0, 1): I.append(f'v_mul_f32 v{t+i}, s{C2L}, v{q+i}')
                for i in (2, 3): I.append(f'v_mul_f32 v{t+i}, s{CNL}, v{q+i}')
            I.append(f'v_min_f32 v{t}, s{C60}, v{t}')
            I.append(f'v_min_f32 v{t+1}, s{C60}, v{t+1}')
            for i in (0, 1, 2, 3): I.append(f'v_exp_f32 v{t+i}, v{t+i}')
            if pk:
                I.append(f'v_pk_add_f32 {vr(t+4,2)}, {vr(t,2)}, 1.0 op_sel_hi:[1,0]')
                I.append(f'v_pk_add_f32 {vr(t+6,2)}, {vr(t,2)}, -1.0 op_sel_hi:[1,0]')
                I.append(f'v_pk_fma_f32 {vr(t+4,2)}, {vr(t+4,2)}, {vr(t+2,2)}, {vr(t+4,2)}')
            else:
                for i in (0, 1): I.append(f'v_add_f32 v{t+4+i}, 1.0, v{t+i}')
                for i in (0, 1): I.append(f'v_fma_f32 v{t+4+i}, v{t+4+i}, v{t+2+i}, v{t+4+i}')
            I.append(f'v_rcp_f32 v{t+4}, v{t+4}')
            I.append(f'v_rcp_f32 v{t+5}, v{t+5}')
            if pk:
                I.append('s_nop 0')
                I.append(f'v_pk_mul_f32 {vr(t+6,2)}, {vr(t+6,2)}, {vr(t+4,2)}')
            else:
                for i in (0, 1): I.append(f'v_add_f32 v{t+6+i}, -1.0, v{t+i}')
                for i in (0, 1): I.append(f'v_mul_f32 v{t+6+i}, v{t+6+i}, v{t+4+i}')
            I.append(f'v_cvt_pk_bf16_f32 v{q}, v{t+6}, v{t+7}')
            I.append(f'buffer_store_dword v{q}, v{VOUT + j//3}, {sr(S_OUT)}, 0 offen offset:{1152*(j%3)} {o.oflags if j < o.oj else ""}')
            return I
        def cost(x): return 2 if x.startswith(('v_exp', 'v_rcp', 'buffer')) else 1
        while tasks and tasks[0][0] < 0: run(tasks.pop(0), -1)
        if o.tagp and o.retry:
            vwait(3)
            for g in range(4):
                em(f'v_bitop3_b32 v{TMP+g}, v{wr[g]-1}, v{wr[g]+4}, v{VF+3} bitop3:0x7e')
            em(f'v_or3_b32 v{TMP}, v{TMP}, v{TMP+1}, v{TMP+2}')
            em(f'v_or_b32 v{TMP}, v{TMP}, v{TMP+3}')
            em(f'v_cmp_ne_u32 s[48:49], 0, v{TMP}')
            em('s_nop 2')
            em('s_cmp_lg_u64 s[48:49], 0')
            em(f's_cbranch_scc1 L_rt{typ}')
            em(f'L_rb{typ}:')
            first4 = [wr[g] - 2 for g in range(4)]
        elif o.tagp:
            for g in (0, 2):
                vwait(g + 1)
                for gg in (g + 4, g + 5):
                    t_ = [t for t in tasks if t[2] == 'W' and t[3] == gg][0]
                    tasks.remove(t_); run(t_, -1)
                kcheck(g)
                em('s_nop 2')
                em('s_cmp_lg_u64 s[48:49], 0')
                em(f's_cbranch_scc1 L_ks{typ}{g}')
                em(f'L_kb{typ}{g}:')
        inv = {n: v for v, n in vstart.items()}
        lastop = {j: max(n for n in range(N) if ops[n][1] == j) for j in range(9)}
        for n, (g, j) in enumerate(ops):
            if n in inv and o.padto and o.padev == 'm5' and inv[n] == o.padstep:
                e(f's_sub_u32 s98, s2, {o.padlo}')
                e(f's_cmp_ge_u32 s98, {o.padhi - o.padlo}')
                e(f's_cbranch_scc1 L_pr{typ}')
                e('s_memrealtime s[100:101]'); dirty[0] = True
                e(f'L_pr{typ}:')
            if n in inv and o.diag:
                v = inv[n]
                if o.diag == 2 and v in o.marks:
                    kk = o.marks.index(v)
                    e(f's_memtime s[{ST0+2*kk}:{ST0+2*kk+1}]'); dirty[0] = True
                if o.diag in (1, 4) and v == 33: stamp(5); stamp(6); dirty[0] = True
            if o.jit and n in inv and inv[n] in (20, 36, 44, 52, 60, 70, 90): jit()
            k = key(n)
            assert k in xreg, (k, n)
            lwait(k); vwait(g)
            acc = S[g][4]
            d = ACC[acc] + 4 * j
            if g == 0: cs = '0'
            elif acc == 'Q' and S[g-1][4] == 'P': cs = vr(ACC['P'] + 4 * j, 4)
            else: cs = vr(d, 4)
            em(f'v_mfma_f32_16x16x32_bf16 {vr(d,4)}, {vr(wr[g],4)}, {vr(xreg[k],4)}, {cs}' if not o.swapab else f'v_mfma_f32_16x16x32_bf16 {vr(d,4)}, {vr(xreg[k],4)}, {vr(wr[g],4)}, {cs}')
            if n == lastop[j]: since[j] = 0
            while later: em(later.pop(0))
            budget = 2
            TC = {'X': 1, 'W': 2, 'L': 2, 'C': 1, 'I': 0, 'A': 1, 'Q': 2, 'S': 2, 'F': 2, 'G': 1, 'P': 2, 'K': 2}
            while True:
                ready = [t for t in tasks if t[0] <= n and wok(t, n)]
                if not ready: break
                t = min(ready, key=lambda t: t[1])
                assert t[1] >= n, ('late', t, n)
                if TC[t[2]] > budget and t[1] > n:
                    fit = [u for u in ready if TC[u[2]] <= budget]
                    if not fit: break
                    t = min(fit, key=lambda t: t[1])
                tasks.remove(t); run(t, n); budget -= TC[t[2]]
            for jj in sorted(since):
                if 8 <= since[jj] < 10**6:
                    fill += epi(jj, False); since[jj] = 10**6
            budget += o.nfill - 2
            while fill and budget >= cost(fill[0]):
                budget -= cost(fill[0])
                if fill[0].startswith('buffer_store'):
                    q_ = int(re.match(r'buffer_store_dword v(\d+)', fill[0]).group(1))
                    until.pop(q_, None); busy[q_] = n + 2
                em(fill.pop(0))
            assert all(t[1] > n for t in tasks), ('late', n, [t for t in tasks if t[1] <= n])
        assert not tasks
        stamp(7)
        while fill: em(fill.pop(0))
        for jj in [jj for jj in sorted(since) if since[jj] < 10**6]:
            if since[jj] < 8: em(f's_nop {8-since[jj]-1}')
            for x in epi(jj, True): em(x)
        stamp(8)
        if o.padto and o.padev[0] == 'm': padloop(typ)
        if o.diag == 1:
            e('s_waitcnt vmcnt(0)')
            stamp(9)
            dump(10)
        if o.diag == 2:
            kk = len(o.marks)
            e(f's_memtime s[{ST0+2*kk}:{ST0+2*kk+1}]')
            dump(10)
        e('s_endpgm')
        for tag, off, cnt in slow:
            e(f'L_slow{typ}{tag}:')
            e(f'ds_read_b32 v{VC}, v{VF+5 if off == "pair" else VF+1} offset:{24 if off == "pair" else off}')
            e('s_waitcnt lgkmcnt(0)')
            e(f'v_cmp_ne_u32 vcc, {cnt}, v{VC}')
            e('s_nop 4')
            e(f's_cbranch_vccnz L_slow{typ}{tag}')
            e(f's_branch L_back{typ}{tag}')
        for ci, va in fslow: flagwait(f'{typ}{ci}', va, f'L_fb{typ}{ci}')
        if o.tagp and o.retry:
            e(f'L_rt{typ}:')
            if o.diag: e(f's_add_u32 s95, s95, {1 << 24}')
            e(f's_sleep {o.retry}')
            e(f'ds_read_b32 v{VF+7}, v{VF+1} offset:12')
            e('s_add_u32 s47, s96, 4096')
            e('s_waitcnt lgkmcnt(0)')
            for g, a_ in enumerate(first4):
                for hf in range(2):
                    e(f'buffer_load_dwordx4 {vr(a_+4*hf,4)}, v{VWL}, {sr(S_WS)}, s{96 if g < 2 else 47} offen offset:{2048*(g%2)+1024*hf} sc1')
            e(f'v_readfirstlane_b32 s46, v{VF+7}')
            e(f's_add_u32 s{NPOLL}, s{NPOLL}, 1')
            e('s_waitcnt vmcnt(0)')
            e('s_cmp_lg_u32 s46, 0')
            e(f's_cbranch_scc1 L_rb{typ}')
            for g in range(4):
                e(f'v_bitop3_b32 v{TMP+g}, v{first4[g]+1}, v{first4[g]+6}, v{VF+3} bitop3:0x7e')
            e(f'v_or3_b32 v{TMP}, v{TMP}, v{TMP+1}, v{TMP+2}')
            e(f'v_or_b32 v{TMP}, v{TMP}, v{TMP+3}')
            e(f'v_cmp_ne_u32 s[48:49], 0, v{TMP}')
            e('s_nop 2')
            e('s_cmp_eq_u64 s[48:49], 0')
            e(f's_cbranch_scc1 L_rb{typ}')
            e(f's_cmp_lg_u32 s{NPOLL}, {o.maxpoll}')
            e(f's_cbranch_scc1 L_rt{typ}')
            e(f'v_mov_b32 v{VF+7}, 0x10000')
            e('s_mov_b64 exec, 1')
            e(f'ds_add_u32 v{VF+1}, v{VF+7} offset:4')
            e('s_mov_b64 exec, -1')
            e(f's_branch L_rt{typ}')
        for g, a0_, a1_ in kslow:
            e(f'L_ks{typ}{g}:')
            if o.diag: e(f's_add_u32 s95, s95, {1 << 24}')
            e(f'ds_read_b32 v{VF+7}, v{VF+1} offset:12')
            e(f's_add_u32 s47, s96, {2048*g}')
            e('s_waitcnt lgkmcnt(0)')
            for i, a_ in enumerate((a0_, a0_ + 4, a1_, a1_ + 4)):
                e(f'buffer_load_dwordx4 {vr(a_,4)}, v{VWL}, {sr(S_WS)}, s47 offen offset:{1024*i} sc1')
            e(f'v_readfirstlane_b32 s46, v{VF+7}')
            e(f's_add_u32 s{NPOLL}, s{NPOLL}, 1')
            e('s_waitcnt vmcnt(0)')
            e('s_cmp_lg_u32 s46, 0')
            e(f's_cbranch_scc1 L_kb{typ}{g}')
            e(f'v_bitop3_b32 v{VC}, v{a0_+1}, v{a0_+6}, v{VF+3} bitop3:0x7e')
            e(f'v_bitop3_b32 v{VC+1}, v{a1_+1}, v{a1_+6}, v{VF+3} bitop3:0x7e')
            e(f'v_or_b32 v{VC}, v{VC}, v{VC+1}')
            e(f'v_cmp_ne_u32 s[48:49], 0, v{VC}')
            e('s_nop 2')
            e('s_cmp_eq_u64 s[48:49], 0')
            e(f's_cbranch_scc1 L_kb{typ}{g}')
            e(f's_cmp_lg_u32 s{NPOLL}, {o.maxpoll}')
            e(f's_cbranch_scc1 L_ks{typ}{g}')
            e(f'v_mov_b32 v{VF+7}, 0x10000')
            e('s_mov_b64 exec, 1')
            e(f'ds_add_u32 v{VF+1}, v{VF+7} offset:4')
            e('s_mov_b64 exec, -1')
            e(f's_branch L_ks{typ}{g}')

    mark['help0'] = len(e.L)
    if not o.hfirst: e('.p2align 6')
    e('L_helper:')
    role[0] = 'h'
    e(f's_setprio {o.hprio}')
    e(f's_sub_u32 s{TW0}, s{WAVE}, 4')
    e(f's_mov_b32 s{TW1}, s{WAVE}')
    e(f's_sub_u32 s{PAIR}, s{RID}, {NPROD}')
    e(f's_cselect_b32 s{PAIR}, s{RID}, s{PAIR}')
    e(f's_mov_b32 s{MODE}, 0')
    e(f's_mov_b32 s{NOTASK}, s{RID}')
    e(f's_mov_b32 s{HAS3}, s{TW0}')
    e(f's_lshl_b32 s{SCRB}, s{TW0}, 12')
    e(f's_add_u32 s{SCRB}, s{SCRB}, {SCR}')
    e('L_prod:')
    T = [(28, TW0, 2, 52, 0), (36, TW1, 4, 53, 2048), (44, TW2, 6, 54, 16384)]
    c, kp, q, cc, kk, t = 46, 47, 48, 49, 50, 51
    b = TS
    e('v_mov_b32 v19, 4320')
    e('v_and_b32 v23, 3, v1')
    e('v_lshrrev_b32 v24, 2, v1')
    e('v_mul_u32_u24 v24, 288, v24')
    for (vb, sw, vl, vs, so) in T:
        e(f'v_lshl_add_u32 v8, s{sw}, 2, v23' if sw != TW2 else 'v_add_u32 v8, 32, v23')
        e('v_cmp_le_u32 vcc, 18, v8')
        e(f'v_lshl_add_u32 v{vl}, v8, 4, v24')
        e(f'v_add_u32 v9, v{vl}, v19')
        e(f'v_cndmask_b32 v{vl}, v{vl}, v9, vcc')
    e(f's_and_b32 s{c}, s{PAIR}, 15')
    e(f's_lshr_b32 s{kp}, s{PAIR}, 4')
    e(f's_mul_i32 s{b}, s{c}, 165888')
    e(f's_mul_i32 s{t}, s{kp}, 9216')
    e(f's_add_u32 s{b}, s{b}, s{t}')
    e(f's_add_u32 s{b+1}, s{b}, 82944')
    e(f's_mov_b32 s{S_W+2}, 2571264')
    e(f's_mov_b32 s{S_W+3}, 0x20000')
    e(f's_mov_b32 s{S_WO+3}, s{S_W+3}')
    e(f's_cmp_lg_u32 s{c}, 15')
    e(f's_cselect_b32 s{S_WO+2}, s{S_W+2}, 0')
    e(f's_mov_b32 m0, s{SCRB}')
    e('s_waitcnt lgkmcnt(0)')
    e(f's_mov_b32 s{S_W}, s6')
    e(f's_and_b32 s{S_W+1}, s7, 0xffff')
    e(f's_mov_b32 s{S_WO}, s6')
    e(f's_and_b32 s{S_WO+1}, s7, 0xffff')
    e(f's_cmp_ge_u32 s{NOTASK}, {NTASK}')
    e('s_cbranch_scc1 L_a3')
    def cond3(lbl):
        e(f's_cmp_lg_u32 s{HAS3}, 0')
        e(f's_cbranch_scc1 {lbl}')
    for ti, (vb, sw, vl, vs, so) in enumerate(T):
        if ti == 2: cond3('L_a3')
        if ti == 1: e('s_addk_i32 m0, 1024'); e('s_nop 0')
        e(f'buffer_load_dwordx4 v{vl}, {sr(S_W)}, s{b} offen lds')
        e('s_addk_i32 m0, 1024')
        e('s_nop 0')
        e(f'buffer_load_dwordx4 v{vl}, {sr(S_WO)}, s{b+1} offen lds')
        if ti == 1: e(f's_addk_i32 m0, {16384-3072}')
    e('L_a3:')
    stamp(1)
    e(f's_cmp_lg_u32 s{MODE}, 0')
    e('s_cbranch_scc1 L_a4')
    e(f's_load_dword s{TAG}, s[12:13], {NONCE}')
    e(f's_lshr_b32 s{EARLY}, 0x33, s{kp}')
    e(f's_and_b32 s{EARLY}, s{EARLY}, 1')
    e(f's_sub_u32 s{XK}, 2, s{EARLY}')
    e(f's_lshl_b32 s{t}, s{kp}, 1')
    e(f's_lshr_b32 s{YT}, {(3<<12)+(3<<14)+(3<<16)}, s{t}')
    e(f's_and_b32 s{YT}, s{YT}, 3')
    e(f's_lshr_b32 s{t}, s{kp}, 1')
    e(f's_cmp_ge_u32 s{RID}, {NPROD}')
    e(f's_cselect_b32 s{EARLY}, 0, s{EARLY}')
    e(f's_cselect_b32 s{XK}, 3, s{XK}')
    e(f's_cselect_b32 s{YT}, s{t}, s{YT}')
    e(f's_cmp_ge_u32 s{RID}, {NPROD+32}')
    e(f's_cselect_b32 s{XK}, 0, s{XK}')
    e(f's_cmp_ge_u32 s{RID}, {NTASK}')
    e(f's_cselect_b32 s{YT}, 0, s{YT}')
    if not o.b0early:
        e(f's_cmp_lg_u32 s{EARLY}, 0')
        e('s_cbranch_scc1 L_a4')
    e('s_barrier')
    e('L_a4:')
    jit()
    e(f's_mov_b32 s{MASK}, 0xffff0000')
    e(f's_mov_b32 s{NPOLL}, 0')
    srd(e, S_WS, 12, WS_REC)
    srd(e, S_DBG, 10, 256)
    e(f'v_mov_b32 v10, {CNT}')
    e(f'v_mov_b32 v20, {(256 - 18*NSTR) & 0xffffffff}')
    e(f'v_mov_b32 v26, {NSTR}')
    e('v_bfe_u32 v21, v1, 2, 2')
    e('v_lshlrev_b32 v21, 7, v21')
    e('v_and_b32 v22, 1, v1')
    e('v_lshl_add_u32 v21, v22, 6, v21')
    e('v_bfe_u32 v22, v1, 1, 1')
    e('v_lshl_add_u32 v21, v22, 3, v21')
    e('v_lshrrev_b32 v22, 4, v1')
    e('v_lshl_add_u32 v21, v22, 4, v21')
    e(f'v_add_u32 v21, s{SCRB}, v21')
    if o.yall: e('v_mov_b32 v62, v21')
    e('v_and_b32 v25, 15, v1')
    e('v_lshlrev_b32 v25, 4, v25')
    for (vb, sw, vl, vs, so) in T:
        e(f'v_lshl_add_u32 v8, s{sw}, 2, v22' if sw != TW2 else 'v_add_u32 v8, 32, v22')
        e('v_cmp_le_u32 vcc, 18, v8')
        e(f'v_mad_u32_u24 v{vs}, v8, v26, v25')
        e(f'v_add_u32 v9, v{vs}, v20')
        e(f'v_cndmask_b32 v{vs}, v{vs}, v9, vcc')
    if o.tagp:
        e(f's_lshr_b32 s97, 0x33, s{kp}')
        e('s_and_b32 s97, s97, 1')
        e(f's_cmp_eq_u32 s{WAVE}, 4')
        e(f's_cselect_b32 s{t}, 1, s{97 if o.split1 else EARLY}')
        e(f's_cmp_lg_u32 s{t}, 0')
        e(f's_cselect_b32 s{t}, 4, -16')
        e(f'v_mov_b32 v9, s{t}')
        e('s_waitcnt lgkmcnt(0)')
        e('s_mov_b64 exec, 1')
        e(f'buffer_load_dword v27, v9, {sr(S_DBG)}, 0 offen sc1')
        e('s_mov_b64 exec, -1')
        e(f's_lshr_b32 s96, s{kp}, 2')
        e('s_lshl_b32 s96, s96, 4')
        e(f's_add_u32 s96, s96, s{c}')
        e('s_lshl_b32 s96, s96, 2')
        e(f's_and_b32 s{t}, s{kp}, 1')
        e(f's_add_u32 s96, s96, s{t}')
        e('s_lshl_b32 s96, s96, 9')
        e(f's_add_u32 s96, s96, {WOFF + 2*NSTEP*1024}')
    e(f's_lshr_b32 s{q}, s{kp}, 1')
    e(f's_and_b32 s{cc}, s{c}, 7')
    e(f's_lshr_b32 s{kk}, s{c}, 3')
    e(f's_and_b32 s{t}, s{kp}, 1')
    e(f's_cmp_eq_u32 s{kp}, 8')
    e(f's_cselect_b32 s{cc}, s{cc}, s{c}')
    e(f's_cselect_b32 s{kk}, s{kk}, s{t}')
    e(f's_lshl_b32 s{kk}, s{kk}, 9')
    e(f's_add_u32 s{kk}, s{kk}, {WOFF}')
    e(f's_lshl_b32 s{t}, s{q}, 4')
    e(f's_add_u32 s{b+2}, s{t}, s{cc}')
    e(f's_sub_u32 s{b+3}, s{b+2}, s{q}')
    e(f's_cmp_ge_u32 s{q}, 2')
    e(f's_cselect_b32 s{b+4}, 74, 0')
    e(f's_add_u32 s{b+4}, s{b+4}, s{b+2}')
    e(f's_cmp_lt_u32 s{cc}, 2')
    e(f's_cselect_b32 s{t}, 32, 136')
    e(f's_add_u32 s{t}, s{t}, s{cc}')
    e(f's_cmp_eq_u32 s{kp}, 8')
    e(f's_cselect_b32 s{b+4}, s{t}, s{b+4}')
    e(f's_add_u32 s{b+2}, s{b+2}, 34')
    e(f's_add_u32 s{b+3}, s{b+3}, 144')
    for k in (2, 3, 4):
        e(f's_lshl_b32 s{b+k}, s{b+k}, 10')
        e(f's_add_u32 s{b+k}, s{b+k}, s{kk}')
    e(f's_cmp_eq_u32 s{kp}, 8')
    e(f's_cselect_b32 s{t}, 1, 2')
    e(f's_cmp_eq_u32 s{c}, 15')
    e(f's_cselect_b32 s{b+5}, s{t}, 0')
    e(f's_lshl_b32 s46, s{WAVE}, 2')
    e(f's_add_u32 s46, s46, {CNT+16}')
    e('v_mov_b32 v55, s46')
    if o.tagp:
        e('s_waitcnt vmcnt(1)')
        stamp(2)
        e(f's_cmp_ge_u32 s{NOTASK}, {NTASK}')
        e('s_cbranch_scc1 L_x9')
    else:
        e('v_mov_b32 v27, 0')
        e('v_mov_b32 v9, 4')
        e('s_waitcnt vmcnt(0) lgkmcnt(0)')
        stamp(2)
        e(f's_cmp_lg_u32 s{WAVE}, 4')
        e('s_cbranch_scc1 L_a5')
        e('s_mov_b64 exec, 1')
        e(f'buffer_load_dword v27, v9, {sr(S_DBG)}, 0 offen sc1')
        e('s_mov_b64 exec, -1')
        e('L_a5:')
        e(f's_cmp_ge_u32 s{NOTASK}, {NTASK}')
        e('s_cbranch_scc1 L_x9')
    for (vb, sw, vl, vs, so) in T:
        for tap in range(2):
            for half in range(2):
                e(f'ds_read_b64_tr_b16 {vr(vb+4*tap+2*half,2)}, v21 offset:{so+1024*tap+512*half}')
    nlab = [0]
    def st01(vb, vs):
        nlab[0] += 1
        e(f'buffer_store_dwordx4 {vr(vb,4)}, v{vs}, {sr(S_WS)}, s{b+2} offen {o.stf}')
        e(f's_cmp_eq_u32 s{b+5}, 2')
        e(f's_cbranch_scc1 L_skip{nlab[0]}')
        e(f'buffer_store_dwordx4 {vr(vb+4,4)}, v{vs}, {sr(S_WS)}, s{b+3} offen {o.stf}')
        e(f'L_skip{nlab[0]}:')
    def st01all(lbl):
        st01(T[0][0], T[0][3]); st01(T[1][0], T[1][3])
        cond3(lbl)
        st01(T[2][0], T[2][3])
    def dosum(vb, tb, ob):
        for i in range(8):
            e(f'v_lshlrev_b32 v{tb+2*i}, 16, v{vb+i}')
            e(f'v_and_b32 v{tb+2*i+1}, s{MASK}, v{vb+i}')
        for i in range(4):
            e(f'v_pk_add_f32 {vr(tb+2*i,2)}, {vr(tb+2*i,2)}, {vr(tb+8+2*i,2)}')
        for i in range(4):
            e(f'v_cvt_pk_bf16_f32 v{ob+i}, v{tb+2*i}, v{tb+2*i+1}')
    def ldswait(off, cmp, operand, tag, slp):
        e(f'L_lw{tag}:')
        e(f'ds_read_b32 v11, v10 offset:{off}')
        e('s_waitcnt lgkmcnt(0)')
        e('v_and_b32 v11, 0xff, v11')
        e(f'v_cmp_{cmp}_u32 vcc, {operand}, v11')
        e('s_nop 4')
        e(f's_cbranch_vccnz L_lx{tag}')
        e(f's_sleep {slp}')
        e(f's_branch L_lw{tag}')
        e(f'L_lx{tag}:')
    SOR = lambda ti: (210 + 8 * ti) if o.tagp else (240 + 4 * ti)
    e(f's_or_b32 s46, s{EARLY}, s{MODE}')
    e(f's_cmp_eq_u32 s{XK}, 2')
    e('s_cselect_b32 s47, 1, s46')
    if o.xl: e('s_mov_b32 s46, s47')
    if o.split1:
        assert o.tagp and o.xl
        e('s_or_b32 s47, s47, s97')
        e(f's_andn2_b32 s50, s97, s{MODE}')
    e('s_cmp_eq_u32 s47, 0')
    e('s_cbranch_scc1 L_x9')
    if o.tagp:
        e('s_cmp_eq_u32 s97, 0')
        e('s_cbranch_scc1 L_x7')
        e('s_waitcnt vmcnt(0)')
        e('v_readfirstlane_b32 s48, v27')
        e(f's_add_u32 s49, s{TAG}, {TAGINC}')
        e('s_not_b32 s47, s49')
        e(f's_or_b32 s48, s48, s{MODE}')
        e('s_cselect_b32 s49, s47, s49')
        for ti in range(3):
            e(f'v_mov_b32 v{SOR(ti)-1}, s49')
            e(f'v_mov_b32 v{SOR(ti)+4}, s49')
        e('L_x7:')
        if o.xdel:
            e(f's_cmp_lg_u32 s{XK}, 2')
            e('s_cbranch_scc1 L_x8')
            if o.xdel > 0: e(f's_sleep {o.xdel}')
            else:
                e('L_xs:')
                e('ds_read_b32 v11, v10 offset:8')
                e('s_waitcnt lgkmcnt(0)')
                e(f'v_cmp_le_u32 vcc, {0x10000 * -o.xdel}, v11')
                e('s_nop 4')
                e('s_cbranch_vccnz L_x8')
                e('s_sleep 1')
                e('s_branch L_xs')
            e('L_x8:')
    for ti, (vb, sw, vl, vs, so) in enumerate(T):
        if ti == 2: cond3('L_x3')
        if o.split1:
            if ti == 1: e(f's_and_b32 s47, s50, s{EARLY}')
            else: e(f's_andn2_b32 s47, s50, s{EARLY}')
            e(f's_cbranch_scc1 L_x5{ti}')
        e(f's_waitcnt lgkmcnt({8-4*ti})')
        dosum(vb, 64 + 16 * ti, SOR(ti))
        if not o.split1:
            e('s_cmp_eq_u32 s46, 0')
            e(f's_cbranch_scc1 L_x5{ti}')
        if o.tagp:
            e('s_cmp_eq_u32 s97, 0')
            e(f's_cbranch_scc1 L_x6{ti}')
            e(f'buffer_store_dwordx4 {vr(SOR(ti)-2,4)}, v{vs}, {sr(S_WS)}, s96 offen {o.stf}')
            e(f'buffer_store_dwordx4 {vr(SOR(ti)+2,4)}, v{vs}, {sr(S_WS)}, s96 offen offset:1024 {o.stf}')
            e(f's_branch L_x5{ti}')
            e(f'L_x6{ti}:')
        e(f'buffer_store_dwordx4 {vr(SOR(ti),4)}, v{vs}, {sr(S_WS)}, s{b+4} offen {o.stf}')
        e(f'L_x5{ti}:')
    e('L_x3:')
    e(f's_cmp_eq_u32 s{MODE}, 0')
    e('s_cbranch_scc1 L_x9')
    e('L_x2:')
    e('s_waitcnt lgkmcnt(0)')
    st01all('L_x4')
    e('L_x4:')
    e(f's_cmp_eq_u32 s{MODE}, 0')
    e('s_cbranch_scc1 L_x9')
    e('s_waitcnt vmcnt(0)')
    e(f's_add_u32 s{PAIR}, s{PAIR}, 1')
    e(f's_cmp_lt_u32 s{PAIR}, {NPROD}')
    e('s_cbranch_scc1 L_prod')
    e('v_mov_b32 v11, 1')
    e('ds_write_b32 v10, v11 offset:12')
    e('s_endpgm')
    e('L_x9:')
    jit()
    if o.tagp and not o.b0early:
        e(f's_cmp_eq_u32 s{EARLY}, 0')
        e('s_cbranch_scc1 L_x10')
        e('s_barrier')
        e('L_x10:')
    stamp(3)
    decode()
    e('v_subrev_u32 v4, 256, v0')
    e('v_min_u32 v4, 251, v4')
    e('v_mul_u32_u24 v3, 3641, v4')
    e('v_lshrrev_b32 v3, 16, v3')
    e('v_mul_u32_u24 v2, 18, v3')
    e('v_sub_u32 v2, v4, v2')
    e(f'v_mul_u32_u24 v3, {R}, v3')
    e(f'v_min_u32 v3, {160-R}, v3')
    e('v_mul_u32_u24 v4, 1152, v3')
    e('v_lshl_add_u32 v4, v2, 4, v4')
    e(f'v_add_u32 v12, s{XB}, v4')
    e('v_mul_u32_u24 v18, 288, v3')
    e('v_lshl_add_u32 v18, v2, 4, v18')
    e(f'v_add_u32 v19, {X_D1}, v18')
    srd(e, S_X, 4, 1152000, add=BOFF)
    e(f's_add_u32 s46, s{TAG}, {TAGINC}')
    e('v_mov_b32 v56, s46')
    e(f's_lshl_b32 s46, s{RID}, 7')
    e('v_mov_b32 v58, s46')
    e(f's_add_u32 s46, s{PAIR}, {NPROD}')
    e('s_lshl_b32 s46, s46, 7')
    e('v_mov_b32 v59, s46')
    def publish(slot, vflag, tag, first, n=0):
        e('s_mov_b64 exec, 1')
        e(f's_waitcnt vmcnt({n})')
        if first: stamp(4)
        if o.padto and tag == 'x': stamp(12)
        e('v_cmp_ne_u32 vcc, 0, v27')
        e('v_not_b32 v57, v56')
        e('s_nop 0')
        e('v_cndmask_b32 v57, v56, v57, vcc')
        e(f'ds_write_b32 v55, v57 offset:{slot}')
        e(f'ds_read_b128 v[20:23], v10 offset:{32+slot}')
        e('s_waitcnt lgkmcnt(0)')
        for i in range(4): e(f'v_xor_b32 v{20+i}, v{20+i}, v56')
        e('v_or3_b32 v20, v20, v21, v22')
        e('v_or_b32 v20, v20, v23')
        e('v_cmp_eq_u32 vcc, 0, v20')
        e('s_and_b64 exec, exec, vcc')
        e(f's_cbranch_execz L_nl{tag}')
        e(f'buffer_store_dword v56, v{vflag}, {sr(S_WS)}, 0 offen sc1')
        e(f'L_nl{tag}:')
        e('s_mov_b64 exec, -1')
    if o.tagp and o.xl:
        e(f's_cmp_lg_u32 s{XK}, 2')
        e('s_cbranch_scc1 L_noflag')
        publish(0, 58, 'x', True)
        e(f's_mov_b32 s{XK}, 0')
    elif o.xl:
        e(f's_cmp_ge_u32 s{RID}, {NPROD}')
        e('s_cbranch_scc1 L_noflag')
        publish(0, 58, 'x', True)
        e(f's_mov_b32 s{XK}, 0')
        e(f's_cmp_eq_u32 s{EARLY}, 0')
        e('s_cbranch_scc1 L_noflag')
        if not o.b0early: e('s_barrier')
    elif not o.tagp:
        e(f's_cmp_eq_u32 s{EARLY}, 0')
        e('s_cbranch_scc1 L_noflag')
        publish(0, 58, 'x', True)
        if not o.b0early: e('s_barrier')
    e('L_noflag:')
    e(f's_setprio {o.hprio2}')
    RAW, ORAW = 64, 120
    EU = [184, 192]
    OU, DT, DO = 200, 208, 216
    xi = [0]
    NL = R + 1
    hq = []
    def eload():
        k = xi[0]
        if k >= NL: return
        a_ = 12
        if k:
            a_ = 13 + (k & 3)
            e(f'v_add_u32 v{a_}, {1152*k}, v12')
        e(f'buffer_load_dwordx4 {vr(RAW+4*k,4)}, v{a_}, {sr(S_X)}, 0 offen')
        xi[0] += 1
        hq.append(('e', k))
    if o.etouch:
        e(f's_cmp_lt_u32 s{RID}, {NTASK}')
        e('s_cbranch_scc1 L_net')
        e(f's_and_b32 s46, s{NB}, 1')
        e(f's_mul_i32 s46, s46, {1152*6}')
        e('v_add_u32 v12, s46, v12')
        for _ in range(7): eload()
        e('v_subrev_u32 v12, s46, v12')
        e('s_waitcnt vmcnt(0)')
        e('L_net:')
        xi[0] = 0; hq.clear()
    YA = 232
    e(f's_cmp_eq_u32 s{b+5}, 2')
    e('s_cselect_b32 s46, 0x80000000, 0')
    e(f's_cmp_lg_u32 s{HAS3}, 0')
    e('s_cselect_b32 s47, 0x80000000, 0')
    e('s_or_b32 s48, s46, s47')
    for i in range(6):
        m_ = {0: None, 1: 46, 2: None, 3: 46, 4: 47, 5: 48}[i]
        e(f'v_mov_b32 v{YA+i}, v{52+i//2}' if m_ is None else f'v_or_b32 v{YA+i}, s{m_}, v{52+i//2}')
    def ystore(i, a_):
        e(f'buffer_store_dwordx4 {vr(28+4*i,4)}, v{a_}, {sr(S_WS)}, s{b+2+(i&1)} offen {o.stf}')
        hq.append(('y', i))
    if o.yall:
        assert o.d0p
        e(f's_add_u32 s44, s{RID}, 76')
        e(f's_cmp_ge_u32 s44, {NWG}')
        e(f's_cselect_b32 s45, {NWG}, 0')
        e('s_sub_u32 s44, s44, s45')
        e(f's_add_u32 s46, s44, {NPROD + 32}')
        e('s_lshl_b32 s46, s46, 7')
        e('v_mov_b32 v59, s46')
        e('s_mul_hi_u32 s45, s44, 477218589')
        e('s_mul_i32 s46, s45, 9')
        e('s_sub_u32 s44, s44, s46')
        e(f's_lshr_b32 s{YT}, s45, 3')
        e(f's_add_u32 s{YT}, s{YT}, 1')
        e(f's_min_u32 s{YT}, s{YT}, 3')
        e('s_lshl_b32 s45, s45, 2')
        e(f's_add_u32 s45, s45, s{WAVE}')
        e('s_add_u32 s45, s45, 28')
        e('s_and_b32 s46, s45, 15')
        e('s_lshr_b32 s47, s45, 4')
        e('s_mul_i32 s54, s46, 165888')
        e('s_mul_i32 s48, s47, 9216')
        e('s_add_u32 s54, s54, s48')
        e('s_add_u32 s95, s54, 82944')
        e('s_cmp_lg_u32 s46, 15')
        e(f's_cselect_b32 s{S_WO+2}, 2571264, 0')
        e('s_cselect_b32 s51, 0, 0x80000000')
        e('s_lshr_b32 s48, s47, 1')
        e('s_and_b32 s49, s46, 7')
        e('s_lshr_b32 s50, s46, 3')
        e('s_and_b32 s45, s47, 1')
        e('s_cmp_eq_u32 s47, 8')
        e('s_cselect_b32 s49, s49, s46')
        e('s_cselect_b32 s50, s50, s45')
        e('s_cselect_b32 s51, 0, s51')
        e('s_lshl_b32 s50, s50, 9')
        e(f's_add_u32 s50, s50, {WOFF}')
        e('s_lshl_b32 s68, s48, 4')
        e('s_add_u32 s68, s68, s49')
        e('s_sub_u32 s69, s68, s48')
        e('s_add_u32 s68, s68, 34')
        e('s_add_u32 s69, s69, 144')
        for r_ in (68, 69):
            e(f's_lshl_b32 s{r_}, s{r_}, 10')
            e(f's_add_u32 s{r_}, s{r_}, s50')
        e('v_and_b32 v2, 3, v1')
        e('v_lshl_add_u32 v2, s44, 2, v2')
        e('v_lshrrev_b32 v3, 4, v1')
        e('v_lshl_add_u32 v3, s44, 2, v3')
        e('v_cmp_le_u32 vcc, 18, v2')
        e('v_cmp_le_u32 s[46:47], 18, v3')
        e('v_lshl_add_u32 v63, v2, 4, v24')
        e('v_mad_u32_u24 v60, v3, v26, v25')
        e('v_add_u32 v2, 4320, v63')
        e(f'v_add_u32 v3, {(256 - 18*NSTR) & 0xffffffff}, v60')
        e('v_cndmask_b32 v63, v63, v2, vcc')
        e('v_cndmask_b32 v60, v60, v3, s[46:47]')
        e('v_or_b32 v61, s51, v60')
    def ydma():
        if not o.yall: return
        e(f's_mov_b32 m0, s{SCRB}')
        e('s_nop 0')
        e(f'buffer_load_dwordx4 v63, {sr(S_W)}, s54 offen lds')
        e('s_addk_i32 m0, 1024')
        e('s_nop 0')
        e(f'buffer_load_dwordx4 v63, {sr(S_WO)}, s95 offen lds')
        hq.append('d0'); hq.append('d1')
    stamp(5)
    ldswait(8, 'eq', 4, 'o', 1)
    def unpack(dst, s_):
        for i in range(4):
            e(f'v_lshlrev_b32 v{dst+2*i}, 16, v{s_+i}')
            e(f'v_and_b32 v{dst+2*i+1}, s{MASK}, v{s_+i}')
    def unpackE(dst, k):
        e(f's_waitcnt vmcnt({len(hq)-1-hq.index(("e", k))})')
        unpack(dst, RAW + 4 * k)
        eload()
    def diff(eu, out):
        for i in range(8): e(f'v_sub_f32 v{DT+i}, v{eu+i}, v{OU+i}')
        for i in range(4):
            e(f'v_cvt_pk_bf16_f32 v{out+i}, v{DT+2*i}, v{DT+2*i+1}')
    def opengate():
        if not o.gate: return
        e('v_mov_b32 v11, 0x100')
        e('s_mov_b64 exec, 1')
        e('ds_add_u32 v10, v11 offset:8')
        e('s_mov_b64 exec, -1')
    def rows(hook):
        jit()
        stamp(6)
        for j in range(R):
            e(f'ds_read_b128 {vr(ORAW+4*j,4)}, v18 offset:{X_O+288*j}')
        unpackE(EU[0], 0)
        e('s_waitcnt lgkmcnt(0)')
        hook(-1)
        for j in range(R):
            o0 = DO + 8 * (j & 1)
            unpack(OU, ORAW + 4 * j)
            diff(EU[j & 1], o0)
            e(f'ds_write_b128 v18, {vr(o0,4)} offset:{X_D0+288*j}')
            unpackE(EU[(j + 1) & 1], j + 1)
            diff(EU[(j + 1) & 1], o0 + 4)
            e(f'ds_write_b128 v19, {vr(o0+4,4)} offset:{288*j}')
            hook(j)
    if o.apath:
        e(f's_cmp_ge_u32 s{RID}, {NPROD + (32 if o.d0p else 0)}')
        e('s_cbranch_scc1 L_pathA')
    if o.d0row >= 0: e(f's_cmp_lg_u32 s{XK}, 2')
    else: e(f's_cmp_lt_u32 s{XK}, 2')
    e('s_cbranch_scc1 L_nox')
    if o.d0p:
        e(f's_cmp_eq_u32 s{XK}, 3')
        e('s_cbranch_scc1 L_xd')
    for i in range(3):
        e(f'buffer_store_dwordx4 {vr(SOR(i),4)}, v{YA+2*i}, {sr(S_WS)}, s{b+4} offen {o.stf}')
    if o.d0p:
        e('s_branch L_xe')
        e('L_xd:')
        for i in range(6): ystore(i, YA + i)
        e('L_xe:')
    if o.gearly:
        opengate()
        publish(0, 58, 'x2', True)
        e('s_branch L_nox2')
        e('L_nox:')
        if o.gdel:
            e(f's_cmp_ge_u32 s{RID}, {NPROD}')
            e('s_cbranch_scc1 L_nox2')
        opengate()
        e('L_nox2:')
    else:
        publish(0, 58, 'x2', True)
        e('L_nox:')
        opengate()
    hq.clear(); xi[0] = 0
    for _ in range(o.ein): eload()
    def hookP(j):
        if j == o.ydrow: ydma()
        if o.gdel and j == o.gdel - 2:
            e(f's_cmp_lt_u32 s{RID}, {NPROD}')
            e('s_cbranch_scc1 L_gd')
            opengate()
            e('L_gd:')
        if j == o.d0row and j >= 0:
            e(f's_cmp_lg_u32 s{XK}, 3')
            e('s_cbranch_scc1 L_yn1')
            keep = list(hq)
            for i in range(6): ystore(i, YA + i)
            hq[:] = keep
            e('L_yn1:')
        if o.d0row >= 0 and j == o.d0row + o.d0row2:
            e(f's_cmp_lg_u32 s{XK}, 3')
            e('s_cbranch_scc1 L_yn2')
            publish(0, 58, 'yn', True)
            e('L_yn2:')
        if o.ymid and j == o.ymid:
            e(f's_cmp_lg_u32 s{YT}, 1')
            e('s_cbranch_scc1 L_ym1')
            keep = list(hq)
            for i in range(6): ystore(i, YA + i)
            hq[:] = keep
            e('L_ym1:')
        if o.ymid and j == o.ymid + o.ymid2:
            e(f's_cmp_lg_u32 s{YT}, 1')
            e('s_cbranch_scc1 L_ym2')
            publish(16, 59, 'ym', False)
            if o.diag == 1: stamp(8)
            e(f's_mov_b32 s{YT}, 0')
            e('L_ym2:')
    rows(hookP)
    if o.apath:
        e('s_branch L_rowsdone')
        e('L_pathA:')
        if not o.d0p:
            e(f's_cmp_eq_u32 s{XK}, 3')
            e('s_cselect_b32 s47, 0, 0x80000000')
            for i in range(6): e(f'v_or_b32 v{20+i}, s47, v{YA+i}')
        hq.clear(); xi[0] = 0
        for _ in range(NL): eload()
        if not o.d0p:
            for i in range(6): ystore(i, 20 + i)
        def hookA(j):
            if j == o.grow + 1: ydma()
            if j == o.grow:
                e(f's_waitcnt vmcnt({len(hq)-1-hq.index(("e", NL-1))})')
                opengate()
            if j == o.xrow and not o.d0p:
                e(f's_cmp_lg_u32 s{XK}, 3')
                e('s_cbranch_scc1 L_xp')
                publish(0, 58, 'x3', True)
                e('L_xp:')
        rows(hookA)
    e('L_rowsdone:')
    e('s_waitcnt lgkmcnt(0)')
    stamp(7)
    e('v_mov_b32 v11, 1')
    e('s_mov_b64 exec, 1')
    e('ds_add_u32 v10, v11 offset:16')
    e('s_mov_b64 exec, -1')
    e(f's_cmp_eq_u32 s{YT}, 0')
    e('s_cbranch_scc1 L_noy')
    e(f's_setprio {o.yprio}')
    if o.yall:
        e('s_waitcnt vmcnt(0)')
        for tap in range(2):
            for half in range(2):
                e(f'ds_read_b64_tr_b16 {vr(28+4*tap+2*half,2)}, v62 offset:{1024*tap+512*half}')
    e('L_yw:')
    e('ds_read_b64 v[20:21], v10')
    e('s_waitcnt lgkmcnt(0)')
    e('v_lshrrev_b32 v21, 14, v21')
    e('v_and_b32 v21, -4, v21')
    e('v_or_b32 v20, v20, v21')
    e(f'v_cmp_le_u32 vcc, s{YT}, v20')
    e('s_nop 4')
    e('s_cbranch_vccnz L_yx')
    e('s_sleep 4')
    e('s_branch L_yw')
    e('L_yx:')
    jit()
    if o.yall:
        e(f'buffer_store_dwordx4 v[28:31], v60, {sr(S_WS)}, s68 offen {o.stf}')
        e(f'buffer_store_dwordx4 v[32:35], v61, {sr(S_WS)}, s69 offen {o.stf}')
    else:
      for i in range(6):
        ystore(i, YA + i)
        e(f's_waitcnt vmcnt({o.ythr})')
        if o.ysleep: e(f's_sleep {o.ysleep}')
    publish(16, 59, 'y', False)
    if o.diag == 1: stamp(8)
    e('L_noy:')
    e(f's_cmp_lg_u32 s{WAVE}, 4')
    e('s_cbranch_scc1 L_hend')
    e('L_guard:')
    e('ds_read_b32 v11, v10 offset:4')
    e('s_waitcnt lgkmcnt(0)')
    e('v_readfirstlane_b32 s46, v11')
    e('s_nop 3')
    e('s_cmp_eq_u32 s46, 4')
    e(f's_cbranch_scc1 {"L_wb" if o.wbat else "L_hend"}')
    e('s_cmp_lt_u32 s46, 0x10000')
    e('s_cbranch_scc0 L_rescue')
    e('s_sleep 16')
    e('s_branch L_guard')
    if o.wbat:
        e('L_wb:')
        e('s_lshr_b32 s46, s2, 3')
        e(f's_cmp_lg_u32 s46, 5')
        e('s_cbranch_scc1 L_hend')
        ldswait(0, 'eq', 4, 'w', 2)
        e('buffer_wbl2 sc1')
        e('s_waitcnt vmcnt(0)')
        e('s_branch L_hend')
    e('L_rescue:')
    e(f's_mov_b32 s{MODE}, 1')
    e(f's_mov_b32 s{HAS3}, 1')
    e(f's_mov_b32 s{NOTASK}, 0')
    e(f's_lshr_b32 s{TW0}, s{NB}, 1')
    e(f's_add_u32 s{TW1}, s{NB}, 9')
    e(f's_lshr_b32 s{TW1}, s{TW1}, 1')
    e(f's_mov_b32 s{PAIR}, 0')
    e('s_branch L_prod')
    e('L_hend:')
    if o.padto and o.padev[0] == 'h': padloop('h')
    if o.diag == 1:
        stamp(9)
        dump(10)
    e('L_end:')
    e('s_endpgm')
    if o.hfirst:
        m0, h0 = mark['main0'], mark['help0']
        e.L = e.L[:m0] + e.L[h0:] + ['.p2align 6'] + e.L[m0:h0]
    e('L_codeend:')
    e('.section .rodata,"a"')
    e('.p2align 6')
    e(f'.amdhsa_kernel {KN}')
    for x in ['next_free_vgpr 256', 'next_free_sgpr 102', 'accum_offset 256', 'group_segment_fixed_size 0', 'kernarg_size 40',
              'user_sgpr_count 2', 'user_sgpr_kernarg_segment_ptr 1', 'system_sgpr_workgroup_id_x 1']:
        e('  .amdhsa_' + x)
    e('.end_amdhsa_kernel')
    n = haz.check(e.L)
    if n: print(f'{n} hazards', file=sys.stderr)
    return f'; @launch grid=({NWG},1,1) block=(512,1,1) lds={LDS_BYTES}\n' + HEADER + e.text()

def opts(argv=None):
    ap = argparse.ArgumentParser()
    ap.add_argument('-o', default='k.s')
    for nm, d in [('diag', 0), ('pf', 16), ('pf0', 8), ('wgap', 4), ('wres', 4), ('wsc1', 0), ('nfill', 2), ('fstride', 128), ('sleep', 0), ('maxpoll', 3000), ('nopoll', 0),
                  ('hprio', 3), ('hprio2', 0), ('mprio', 2), ('epre', 0), ('ein', 4), ('dpre', 7), ('b0early', 0), ('mtouch', 4), ('gate', 1), ('swapab', 0), ('d0p', 1), ('map', 1), ('chain', 4), ('xdel', -4), ('xsn', 11), ('retry', 0), ('gdel', 0), ('padlo', 0), ('padhi', 252), ('d0row', 1), ('c2split', 1), ('d0row2', 1), ('split1', 0), ('ymid', 4), ('ymid2', 2), ('wbat', 0), ('jit', 0), ('apath', 0), ('rmap', 0), ('yall', 0), ('ydrow', 6), ('flat0', 1), ('flatzz', 0), ('tagp', 1), ('tpf', 5), ('xl', 1), ('p0plain', 0), ('onepoll', 0), ('epoll', 1), ('ppoll', 0), ('yprio', 3), ('ysleep', 0), ('vt', 94), ('tla', 40), ('tskip', 2), ('gearly', 1), ('chfrom', 8), ('oj', 9), ('nolds', 0), ('now', 0), ('wsame', 0), ('grow', 1), ('vbd', 33), ('nopk', 1), ('padto', 0), ('npdelay', 0), ('opre', 4), ('etouch', 0), ('orev', 1), ('b0late', 1), ('dec', 1), ('tail', 1), ('xla', 9), ('hold', 1), ('prest', 0), ('xslot', 0), ('noclosed', 0), ('cpf', 1), ('hfirst', 1), ('warmb', 1), ('wsfirst', 0), ('flead', 6), ('ythr', 6), ('xrow', 3), ('padstep', 33), ('probe', 0), ('probeoff', 0x4000000)]:
        ap.add_argument('--' + nm, type=int, default=d)
    ap.add_argument('--oflags', default='')
    ap.add_argument('--pmap', default='18,18,18,18,18,18,18,18')
    ap.add_argument('--padev', default='m0')
    ap.add_argument('--trig', default='10,25,40')
    ap.add_argument('--yrow', default='0,7,2,9,5,11')
    ap.add_argument('--pfcs', default='4,3,5,5,5')
    ap.add_argument('--fflags', default='')
    ap.add_argument('--fleads', default='6,5,6,6,6')
    ap.add_argument('--stf', default='sc1')
    ap.add_argument('--marks', default='0,4,8,12,16,24,33,47,58')
    o = ap.parse_args(argv)
    o.marks = [int(x) for x in o.marks.split(',')]
    o.yrow = [int(x) for x in o.yrow.split(',')]
    o.pfcs = [int(x) for x in o.pfcs.split(',')]
    o.fleads = [int(x) for x in o.fleads.split(',')]
    o.trig = [int(x) for x in o.trig.split(',')]
    return o

if __name__ == '__main__':
    o = opts()
    open(o.o, 'w').write(gen(o))
```

```python
import re, sys, argparse
import haz

KN = 'standalone__autoregressive_conv_wavernn__speech_kernel'
NWG = 252
NPROD = 144
ARR = 160 * 288
X_D0, X_O, X_D1 = 0, ARR, 2 * ARR
CNT = 3 * ARR
SCR = CNT + 64
LDS_BYTES = SCR + 18432
NSTEP = 106
WOFF = int(__import__('os').environ.get('WOFF', '0x100000'), 0)
NONCE = 0x10000
DIAG = 0x800000
WS_REC = max(0x1000000, WOFF + 0x400000, int(__import__('os').environ.get('WSREC', '0'), 0))
TAGINC = 0x9E3779B9
R = 12


HEADER = """; Gated dilated causal convolution, out = tanh(f) * sigmoid(g), h = [f g] = sum_i x[t + 2i - 60] w[i].
;
; A workgroup owns 144 output pairs x 16 output columns (f and g). Waves 0-3 run the matrix loop (two column tiles x
"""

class Em:
    def __init__(self): self.L = []
    def __call__(self, s): self.L.append(s)
    def text(self): return '\n'.join(self.L) + '\n'

def vr(a, n=1): return f'v{a}' if n == 1 else f'v[{a}:{a+n-1}]'
def sr(a, n=4): return f's[{a}:{a+n-1}]'

def streams():
    out = []
    for typ in (0, 1):
        S = []
        pid = [0]
        def add(arr, chunk, cs, acc):
            for c in cs: S.append((pid[0], arr, chunk, c, acc))
            pid[0] += 1
        if typ == 0:
            add('O', 0, range(16), 'P'); add('O', 1, range(16), 'P'); add('O', 'rem', range(0, 2), 'P')
            for q in range(4): add('D', q, range(16), 'Q')
            add('D', 'rem', range(8), 'Q')
        else:
            add('O', 2, range(16), 'P'); add('O', 3, range(16), 'P'); add('O', 'rem', range(2, 8), 'P')
            for q in range(4): add('D', q, range(15), 'Q')
            add('D', 'rem', range(8), 'Q')
        assert len(S) == NSTEP
        out.append(S)
    return out

S_X, S_W, S_WO, S_WS, S_OUT, S_DBG = 20, 24, 28, 32, 36, 40
WAVE, NB, BAT, PAR, MB, BOFF = 14, 15, 16, 17, 18, 19
PAIR0 = 3
XB = 52
MASK = 53
TW0, TW1, TW2, PAIR, HAS3, MODE, SCRB, TAG, LAST, NPOLL = 44, 45, 54, 55, 56, 57, 58, 59, 60, 61
TS = 62
TYP, WSO = 68, 69
EARLY, XK, YT, FIDX = 90, 91, 92, 93
NOTASK = 94
FO = 97
C2L, CNL, C60 = 90, 92, 94
ST0 = 70

def srd(e, d, ptr, rec, add=None):
    if add is None:
        e(f's_mov_b32 s{d}, s{ptr}')
        e(f's_and_b32 s{d+1}, s{ptr+1}, 0xffff')
    else:
        e(f's_add_u32 s{d}, s{ptr}, s{add}')
        e(f's_addc_u32 s{d+1}, s{ptr+1}, 0')
        e(f's_and_b32 s{d+1}, s{d+1}, 0xffff')
    e(f's_mov_b32 s{d+2}, {rec}')
    e(f's_mov_b32 s{d+3}, 0x20000')

def gen(o):
    e = Em()
    NSTR = 2 * NSTEP * 1024 + (65536 if o.tagp else 0)
    if o.tagp: o.epoll = 0
    NTASK = NPROD + (32 if o.yall else 96)
    role = ['m']
    jn = [0]
    def jit():
        if not o.jit: return
        jn[0] += 1
        k = jn[0]
        e(f's_mul_i32 s98, s2, {37 + 2 * k + o.jit * 10}')
        e(f's_mul_i32 s99, s{WAVE}, {11 + 6 * k + o.jit}')
        e('s_add_u32 s98, s98, s99')
        e('s_bitcmp1_b32 s98, 3')
        e(f's_cbranch_scc1 L_jit{k}')
        e(f's_sleep {30 + (k * 17 + o.jit * 5) % 90}')
        e(f'L_jit{k}:')
    def padloop(tag):
        e(f'L_pad{tag}:')
        e('s_memrealtime s[98:99]')
        e('s_waitcnt lgkmcnt(0)')
        e('s_sub_u32 s98, s98, s100')
        e(f's_cmp_lt_u32 s98, {o.padto}')
        e(f's_cbranch_scc1 L_pad{tag}')
    def stamp(k, lvl=1):
        if o.padto and lvl == 1 and o.padev == f'{role[0]}{k}':
            jn[0] += 1
            e(f's_sub_u32 s98, s2, {o.padlo}')
            e(f's_cmp_ge_u32 s98, {o.padhi - o.padlo}')
            e(f's_cbranch_scc1 L_pf{jn[0]}')
            e('s_memrealtime s[100:101]'); e('s_waitcnt lgkmcnt(0)')
            e(f'L_pf{jn[0]}:')
        if o.diag == lvl or (o.diag == 4 and lvl == 1): e(f's_memrealtime s[{ST0+2*k}:{ST0+2*k+1}]')
    def dump(nst):
        e('s_waitcnt lgkmcnt(0)')
        e('v_mov_b32 v250, 0')
        for k in range(nst): e(f'v_writelane_b32 v250, s{ST0+2*k}, {k}')
        e(f'v_writelane_b32 v250, s{NPOLL}, 13')
        e(f'v_writelane_b32 v250, s95, 12')
        e(f'v_writelane_b32 v250, s{3 if o.rmap else 2}, 14')
        e('s_getreg_b32 s46, hwreg(HW_REG_XCC_ID)')
        e('v_writelane_b32 v250, s46, 15')
        e(f's_lshl_b32 s46, s2, 3'); e(f's_add_u32 s46, s46, s{WAVE}'); e('s_lshl_b32 s46, s46, 6'); e(f's_add_u32 s46, s46, {DIAG}')
        e('v_lshl_add_u32 v251, v1, 2, s46')
        e('s_mov_b64 exec, 0xffff')
        e(f'buffer_store_dword v250, v251, {sr(S_WS)}, 0 offen')
        e('s_mov_b64 exec, -1')

    e('.amdgcn_target "amdgcn-amd-amdhsa--gfx950"')
    e('.text')
    e(f'.globl {KN}')
    e('.p2align 8')
    e(f'.type {KN},@function')
    e(f'{KN}:')
    e(f's_cmp_ge_u32 s2, {NWG}')
    e('s_cbranch_scc1 L_end')
    stamp(0)
    if o.padto and o.padev != 'm0': e('s_memrealtime s[100:101]')
    e('s_load_dwordx4 s[4:7], s[0:1], 0')
    e('s_load_dwordx4 s[8:11], s[0:1], 16')
    e('s_load_dwordx2 s[12:13], s[0:1], 32')
    e('v_lshrrev_b32 v2, 6, v0')
    e('v_and_b32 v1, 63, v0')
    e(f'v_readfirstlane_b32 s{WAVE}, v2')
    def decode():
        e('s_and_b32 s44, s2, 7')
        e('s_lshr_b32 s45, s2, 3')
        e('s_mul_i32 s46, s44, 31')
        e('s_min_u32 s44, s44, 4')
        e('s_add_u32 s46, s46, s44')
        e('s_add_u32 s46, s46, s45')
        if o.map == 0:
            e('s_mul_hi_u32 s47, s46, 68174085')
            e('s_mul_i32 s48, s47, 63')
            e('s_sub_u32 s48, s46, s48')
            e(f's_mul_hi_u32 s{NB}, s48, 613566757')
            e(f's_mul_i32 s49, s{NB}, 7')
            e('s_sub_u32 s49, s48, s49')
            e('s_mul_i32 s47, s47, 7')
            e('s_add_u32 s47, s47, s49')
        elif o.map == 1:
            e('s_mul_hi_u32 s47, s46, 477218589')
            e('s_mul_i32 s48, s47, 9')
            e(f's_sub_u32 s{NB}, s46, s48')
        else:
            e('s_mul_hi_u32 s47, s46, 34087043')
            e('s_mul_i32 s48, s47, 126')
            e('s_sub_u32 s48, s46, s48')
            e(f's_mul_hi_u32 s{NB}, s48, 306783379')
            e(f's_mul_i32 s49, s{NB}, 14')
            e('s_sub_u32 s49, s48, s49')
            e('s_mul_i32 s47, s47, 14')
            e('s_add_u32 s47, s47, s49')
        e(f's_and_b32 s{PAR}, s47, 1')
        e('s_lshr_b32 s47, s47, 1')
        e('s_cmp_ge_u32 s47, 7')
        e(f's_cselect_b32 s{BOFF}, 1152000, 0')
        e('s_cselect_b32 s48, 7, 0')
        e(f's_sub_u32 s{MB}, s47, s48')
        e(f's_mul_i32 s{XB}, s{MB}, 576')
        e(f's_add_u32 s{XB}, s{XB}, s{PAR}')
        e(f's_sub_u32 s{XB}, s{XB}, 60')
        e(f's_mul_i32 s{XB}, s{XB}, 288')
    RID = 3 if o.rmap else 2
    if o.rmap:
        e('s_and_b32 s44, s2, 3')
        e('s_lshr_b32 s45, s2, 3')
        e('s_lshl2_add_u32 s3, s45, s44')
        e('s_and_b32 s44, s2, 4')
        e('s_lshl_b32 s44, s44, 5')
        e('s_add_u32 s3, s3, s44')
    e(f's_cmp_ge_u32 s{WAVE}, 4')
    e('s_cbranch_scc1 L_helper')
    if o.cpf:
        e('s_lshr_b32 s44, s2, 3')
        e(f's_lshl_b32 s45, s{WAVE}, 5')
        e('s_add_u32 s44, s44, s45')
        e('s_sub_u32 s44, s44, 26')
        e('s_cmp_ge_u32 s44, 5')
        e('s_cbranch_scc1 L_main')
        e('s_getpc_b64 s[46:47]')
        e('L_pc:')
        e('s_lshl_b32 s44, s44, 13')
        e('v_lshl_add_u32 v2, v1, 7, s44')
        e('v_min_u32 v2, L_codeend-L_pc-4, v2')
        e('global_load_dword v63, v2, s[46:47]')
    if o.hfirst: e('s_branch L_main')
    mark = {'main0': len(e.L)}
    e('L_main:')
    e(f's_mov_b32 s{MASK}, 0xffff0000')
    e(f's_mov_b32 s{NPOLL}, 0')
    if o.diag: e('s_mov_b32 s95, 0')
    decode()

    VXO, VXOR, VXD, VXDR, VWL, VEX, VEXP, VOUT = 30, 31, 32, 33, 34, 35, 36, 37
    VF = 40
    VA = 48
    VCL = 60
    e('v_mul_u32_u24 v3, 3641, v0')
    e('v_lshrrev_b32 v3, 16, v3')
    e('v_mul_u32_u24 v2, 18, v3')
    e('v_sub_u32 v2, v0, v2')
    e('v_mul_u32_u24 v3, 1152, v3')
    e('v_lshl_add_u32 v3, v2, 4, v3')
    e(f's_add_u32 s46, s{XB}, 576')
    e(f'v_add_u32 v{VA}, s46, v3')
    e('v_mov_b32 v5, 16192')
    e('v_mov_b32 v6, 17056')
    for k in range(1, 12):
        e('v_cmp_le_u32 vcc, 14, v2')
        e('v_add_u32 v3, 4, v2')
        e('v_subrev_u32 v4, 14, v2')
        e('v_cndmask_b32 v7, v5, v6, vcc')
        e('v_cndmask_b32 v2, v3, v4, vcc')
        e(f'v_add_u32 v{VA+k}, v{VA+k-1}, v7')
    e(f's_lshl_b32 s50, s{WAVE}, 10')
    e(f's_add_u32 s50, s50, {X_O}')
    e(f's_add_u32 s51, s50, {4096*11}')
    e('s_movk_i32 s49, 4096')
    if o.orev:
        e(f's_bitcmp0_b32 s{NB}, 0')
        e('s_cbranch_scc1 L_fwd')
        for k in range(5): e(f'v_swap_b32 v{VA+k}, v{VA+10-k}')
        e(f's_add_u32 s50, s50, {4096*10}')
        e('s_movk_i32 s49, -4096')
        e('L_fwd:')
    e(f'v_mov_b32 v{VF+1}, {CNT}')
    for r in range(4, 8): e(f'v_mov_b32 v{r}, 0')
    e(f'ds_write_b128 v{VF+1}, v[4:7]')
    e(f'ds_write_b128 v{VF+1}, v[4:7] offset:16')
    e('s_waitcnt lgkmcnt(0)')
    e(f's_load_dword s{TAG}, s[12:13], {NONCE}')
    srd(e, S_X, 4, 1152000, add=BOFF)
    def odma(k):
        e(f's_mov_b32 m0, s{51 if k == 11 else 50}')
        e('s_add_u32 s50, s50, s49')
        e(f'buffer_load_dwordx4 v{VA+k}, {sr(S_X)}, 0 offen lds')
    def etouch():
        e(f'buffer_load_dword v62, v9, {sr(S_X)}, 0 offen')
    if o.mtouch and o.tskip:
        e(f's_lshr_b32 s47, s{RID}, 4')
        e('s_lshr_b32 s47, 0x33, s47')
        e('s_lshl_b32 s47, s47, 31')
    if o.mtouch:
        e('v_min_u32 v8, 39, v1')
        e('v_lshrrev_b32 v9, 2, v8')
        e(f's_mul_i32 s46, s{WAVE}, 10')
        e('v_add_u32 v9, s46, v9')
        e(f'v_mul_u32_u24 v9, {4*1152}, v9')
        e('v_and_b32 v8, 3, v8')
        e('v_mul_u32_u24 v8, 92, v8')
        e(f's_and_b32 s46, s{NB}, {7 if o.mtouch == 4 else 3}')
        e(f's_mul_i32 s46, s46, {576 if o.mtouch == 4 else 1152}')
        e(f's_add_u32 s46, s46, s{XB}')
        e('v_add3_u32 v9, v9, v8, s46')
        if o.tskip == 1: e('v_or_b32 v9, s47, v9')
    if o.mtouch == 4 and o.tskip == 2:
        e('s_cmp_eq_u32 s47, 0')
        e('s_cbranch_scc1 L_tn')
        e('s_waitcnt lgkmcnt(0)')
        e('L_tn:')
    if o.mtouch in (2, 4): etouch()
    if o.padto and o.padev == 'm13':
        e('s_waitcnt vmcnt(0)'); stamp(13)
    if o.padto and o.padev == 'm14':
        odma(0); e('s_sub_u32 s50, s50, s49'); e('s_waitcnt vmcnt(0)'); stamp(14)
    if o.padto: stamp(10)
    for k in range(o.opre): odma(k)
    e('s_barrier')
    stamp(1)
    jit()
    if o.mtouch == 3: etouch()
    for k in range(o.opre, 12):
        if k == 11:
            e(f's_cmp_lg_u32 s{WAVE}, 0')
            e('s_cbranch_scc1 L_o11')
        odma(k)
    e('L_o11:')
    if o.mtouch == 1: etouch()
    srd(e, S_WS, 12, WS_REC)
    if o.epoll:
        assert o.mtouch in (1, 4) and o.tskip
        e(f's_and_b32 s{TYP}, s{WAVE}, 1')
        e(f's_lshl_b32 s{FO}, s{TYP}, 13')
        e('s_mov_b32 s96, s47')
        e('s_xor_b32 s46, s47, 0x80000000')
        e(f'v_min_u32 v{VF}, 31, v1')
        e(f'v_lshlrev_b32 v{VF}, 7, v{VF}')
        e(f'v_or_b32 v2, s46, v{VF}')
        e(f'buffer_load_dword v{VF+4}, v2, {sr(S_WS)}, s{FO} offen sc1')
    srd(e, S_OUT, 8, 1152000, add=BOFF)
    srd(e, S_DBG, 10, 256)
    e('v_and_b32 v2, 15, v1')
    e('v_lshrrev_b32 v3, 4, v1')
    e('v_subrev_u32 v5, 4, v2')
    e('v_add_u32 v6, 8, v2')
    e('v_cmp_gt_u32 vcc, 4, v2')
    e('v_cmp_le_u32 s[46:47], 12, v2')
    e(f's_and_b32 s{TYP}, s{WAVE}, 1')
    e(f's_lshr_b32 s48, s{WAVE}, 1')
    e('v_cndmask_b32 v5, v5, v6, vcc')
    e('v_cndmask_b32 v5, v5, v2, s[46:47]')
    e('v_mul_u32_u24 v5, 9, v5')
    e('v_mul_u32_u24 v4, 288, v5')
    e('v_lshl_add_u32 v6, v3, 4, v4')
    e('v_and_b32 v7, 1, v3')
    e('v_lshl_add_u32 v7, v7, 4, v4')
    e('v_lshrrev_b32 v8, 1, v3')
    e('v_mul_u32_u24 v8, 2304, v8')
    e('v_add_u32 v7, v7, v8')
    e('v_add_u32 v7, 256, v7')
    e(f's_mul_i32 s49, s{TYP}, {X_D1}')
    e(f'v_add_u32 v{VXO}, {X_O}, v6')
    e(f'v_add_u32 v{VXOR}, {X_O}, v7')
    e(f'v_add_u32 v{VXD}, s49, v6')
    e(f'v_add_u32 v{VXDR}, s49, v7')
    e('v_lshlrev_b32 v6, 4, v1')
    e(f's_mul_i32 s49, s{WAVE}, 9216')
    e(f's_add_u32 s49, s49, {X_O}')
    e(f'v_add_u32 v{VEX}, s49, v6')
    e(f's_xor_b32 s49, s{WAVE}, 1')
    e('s_mul_i32 s49, s49, 9216')
    e(f's_add_u32 s49, s49, {X_O}')
    e(f'v_add_u32 v{VEXP}, s49, v6')
    e('v_and_b32 v8, 0x39, v1')
    e('v_bfe_u32 v9, v1, 1, 1')
    e('v_lshl_add_u32 v8, v9, 2, v8')
    e('v_bfe_u32 v9, v1, 2, 1')
    e('v_lshl_add_u32 v8, v9, 1, v8')
    e(f'v_lshlrev_b32 v{VWL}, 4, v8')
    e(f's_mul_i32 s49, s{TYP}, 576')
    e(f's_add_u32 s49, s49, s{XB}')
    e(f's_add_u32 s49, s49, {60*288}')
    e(f's_lshl_b32 s50, s{NB}, 5')
    e('s_add_u32 s49, s49, s50')
    e('s_lshl_b32 s50, s48, 4')
    e('s_add_u32 s49, s49, s50')
    e('v_mul_u32_u24 v8, 1152, v5')
    e('v_lshl_add_u32 v8, v3, 2, v8')
    e(f'v_add_u32 v{VOUT}, s49, v8')
    e(f'v_add_u32 v{VOUT+1}, 3456, v{VOUT}')
    e(f'v_add_u32 v{VOUT+2}, 6912, v{VOUT}')
    e(f's_lshl_b32 s49, s{NB}, 1')
    e('s_add_u32 s49, s49, s48')
    e(f's_mul_i32 s49, s49, {NSTR}')
    e(f's_mul_i32 s{WSO}, s{TYP}, {NSTEP*1024}')
    e(f's_add_u32 s{WSO}, s{WSO}, s49')
    e(f's_add_u32 s{WSO}, s{WSO}, {WOFF + (16384 if o.tagp else 0)}')
    if o.tagp:
        e(f's_lshl_b32 s96, s{TYP}, 15')
        e('s_add_u32 s96, s96, s49')
        e(f's_add_u32 s96, s96, {WOFF + 2*NSTEP*1024}')
    e(f's_mov_b32 s{C2L}, 0x4038aa3b'); e(f's_mov_b32 s{C2L+1}, 0x4038aa3b')
    e(f's_mov_b32 s{CNL}, 0xbfb8aa3b'); e(f's_mov_b32 s{CNL+1}, 0xbfb8aa3b')
    e(f's_mov_b32 s{C60}, 0x42700000')
    e(f'v_min_u32 v{VF}, 31, v1')
    e(f'v_lshlrev_b32 v{VF}, 7, v{VF}')
    e(f'v_min_u32 v{VF+6}, 47, v1')
    e(f'v_lshlrev_b32 v{VF+6}, 7, v{VF+6}')
    e(f'v_mov_b32 v{VF+2}, 1')
    e('s_lshl_b32 s46, s48, 2')
    e(f'v_add_u32 v{VF+5}, s46, v{VF+1}')
    e(f's_or_b32 s46, s2, s{WAVE}')
    e('v_or_b32 v2, s46, v1')
    e('v_cmp_eq_u32 vcc, 0, v2')
    e(f'v_mov_b32 v{VCL}, -16')
    e(f'v_mov_b32 v{VCL+1}, -16')
    e(f'v_mov_b32 v3, {NONCE}')
    e(f'v_cndmask_b32 v{VCL}, v{VCL}, 4, vcc')
    e(f'v_cndmask_b32 v{VCL+1}, v{VCL+1}, v3, vcc')
    if o.yall:
        e(f's_lshr_b32 s46, s{NB}, 1')
        e(f's_add_u32 s47, s{NB}, 9')
        e('s_lshr_b32 s47, s47, 1')
        e('v_mov_b32 v4, s46')
        e('v_mov_b32 v5, s47')
        e('v_cmp_gt_u32 vcc, 32, v1')
        e('v_and_b32 v2, 7, v1')
        e('v_and_b32 v3, 15, v1')
        e('v_cndmask_b32 v4, v5, v4, vcc')
        e('v_min_u32 v3, 11, v3')
        e('v_mad_u32_u24 v2, v2, 9, v4')
        e('v_mad_u32_u24 v3, v3, 9, v4')
        e('v_lshlrev_b32 v2, 7, v2')
        e('v_lshlrev_b32 v3, 7, v3')
    e(f's_lshl_b32 s{FO}, s{TYP}, 13')
    if o.warmb:
        e(f's_cmp_eq_u32 s{TYP}, 1')
        e('s_cbranch_scc1 L_warmB')
        e('L_warmret:')
    if o.xdel < 0:
        e(f's_waitcnt vmcnt({o.xsn})')
        e(f'v_mov_b32 v{VF+7}, 0x10000')
        e('s_mov_b64 exec, 1')
        e(f'ds_add_u32 v{VF+1}, v{VF+7} offset:8')
        e('s_mov_b64 exec, -1')
    e(f's_waitcnt vmcnt({(1 if o.mtouch == 1 else 0) + o.epoll}) lgkmcnt(0)')
    stamp(2)
    if o.padto and o.padev in ('m11', 'm12'):
        e(f's_lshr_b32 s46, s{RID}, 4')
        e('s_lshr_b32 s46, 0x33, s46')
        e('s_bitcmp1_b32 s46, 0')
        e(f's_cbranch_scc{1 if o.padev == "m11" else 0} L_pk')
        e('s_memrealtime s[100:101]'); e('s_waitcnt lgkmcnt(0)')
        e('L_pk:')
    e('s_mov_b64 exec, 1')
    e(f'ds_add_u32 v{VF+1}, v{VF+2} offset:8')
    e('s_mov_b64 exec, -1')
    e(f's_add_u32 s{TAG}, s{TAG}, {TAGINC}')
    e(f'v_mov_b32 v{VF+3}, s{TAG}')
    def flagwait(tag, vaddr, back):
        e(f'L_fw{tag}:')
        if o.diag and len(tag) == 2: e(f's_add_u32 s95, s95, {1 << (4 * int(tag[1]))}')
        e(f'buffer_load_dword v{VF+4}, v{vaddr}, {sr(S_WS)}, s{FO} offen sc1')
        e(f'ds_read_b32 v{VF+7}, v{VF+1} offset:12')
        e(f's_add_u32 s{NPOLL}, s{NPOLL}, 1')
        e('s_waitcnt vmcnt(0) lgkmcnt(0)')
        e(f'v_cmp_ne_u32 vcc, v{VF+3}, v{VF+4}')
        e(f'v_readfirstlane_b32 s46, v{VF+7}')
        e('s_nop 3')
        e(f's_cbranch_vccz {back}')
        e('s_cmp_lg_u32 s46, 0')
        e(f's_cbranch_scc1 {back}')
        e(f's_cmp_lg_u32 s{NPOLL}, {o.maxpoll}')
        e(f's_cbranch_scc1 L_fw{tag}')
        e(f'v_mov_b32 v{VF+7}, 0x10000')
        e('s_mov_b64 exec, 1')
        e(f'ds_add_u32 v{VF+1}, v{VF+7} offset:4')
        e('s_mov_b64 exec, -1')
        e(f's_branch L_fw{tag}')
    if o.epoll:
        e('s_cmp_eq_u32 s96, 0')
        e('s_cbranch_scc1 L_gate')
        e('s_waitcnt vmcnt(0)')
        e(f'v_cmp_ne_u32 vcc, v{VF+3}, v{VF+4}')
        e('s_nop 4')
        e('s_cbranch_vccz L_go')
    if o.gate:
        e('L_gate:')
        e(f'ds_read_b32 v{VF+4}, v{VF+1} offset:8')
        e('s_waitcnt lgkmcnt(0)')
        e(f'v_and_b32 v{VF+4}, 0xffff, v{VF+4}')
        e(f'v_cmp_gt_u32 vcc, 0x400, v{VF+4}')
        e('s_nop 4')
        e('s_cbranch_vccz L_gate2')
        e('s_sleep 1')
        e('s_branch L_gate')
        e('L_gate2:')
    if o.ppoll:
        e(f'buffer_load_dword v{VF+4}, v{VF}, {sr(S_WS)}, s{FO} offen sc1')
        e('L_pp:')
        for a_, b_ in ((VF + 4, 62), (62, VF + 4)):
            e(f's_sleep {o.ppoll}')
            e(f'buffer_load_dword v{b_}, v{VF}, {sr(S_WS)}, s{FO} offen sc1')
            e('s_waitcnt vmcnt(1)')
            e(f'v_cmp_ne_u32 vcc, v{VF+3}, v{a_}')
            e(f's_add_u32 s{NPOLL}, s{NPOLL}, 1')
            e('s_nop 3')
            e('s_cbranch_vccz L_go')
        e(f's_cmp_lt_u32 s{NPOLL}, 40')
        e('s_cbranch_scc1 L_pp')
        e(f's_mov_b32 s{NPOLL}, 0')
    if o.p0plain:
        e(f'buffer_load_dword v{VF+4}, v{VF}, {sr(S_WS)}, s{FO} offen')
        e('s_waitcnt vmcnt(0)')
        e(f'v_cmp_ne_u32 vcc, v{VF+3}, v{VF+4}')
        e('s_nop 4')
        e('s_cbranch_vccz L_go')
    if o.onepoll:
        e(f's_cmp_lt_u32 s{WAVE}, 2')
        e('s_cbranch_scc1 L_fw0')
        e('L_op:')
        e(f'ds_read_b32 v{VF+7}, v{VF+1} offset:8')
        e('s_waitcnt lgkmcnt(0)')
        e(f's_add_u32 s46, s{TYP}, 16')
        e(f'v_lshrrev_b32 v{VF+7}, s46, v{VF+7}')
        e(f'v_and_b32 v{VF+7}, 1, v{VF+7}')
        e(f'v_cmp_eq_u32 vcc, 0, v{VF+7}')
        e('s_nop 4')
        e('s_cbranch_vccnz L_op')
        e('s_branch L_go2')
    if not o.tagp: flagwait('0', VF, 'L_go')
    e('L_go:')
    jit()
    if o.tagp: e('s_mov_b32 s50, s96')
    if o.onepoll:
        e(f's_lshl_b32 s46, 0x10000, s{TYP}')
        e(f'v_mov_b32 v{VF+7}, s46')
        e('s_mov_b64 exec, 1')
        e(f'ds_or_b32 v{VF+1}, v{VF+7} offset:8')
        e('s_mov_b64 exec, -1')
        e('L_go2:')
    stamp(3)
    e('L_gw:')
    e(f'ds_read_b32 v{VF+7}, v{VF+1} offset:8')
    e('s_waitcnt lgkmcnt(0)')
    e(f'v_and_b32 v{VF+7}, 0xff, v{VF+7}')
    e(f'v_cmp_ne_u32 vcc, 4, v{VF+7}')
    e('s_nop 4')
    e('s_cbranch_vccnz L_gw')
    stamp(4)
    e(f's_setprio {o.mprio}')
    e(f's_cmp_eq_u32 s{TYP}, 1')
    e('s_cbranch_scc1 L_typeB')

    ACC = {'P': 64, 'Q': 100}
    WR, TMP = 136, 224
    XRING = [200 + 4 * i for i in range(6)]
    XWIN = [4 + 4 * i for i in range(6)] + [240 + 4 * i for i in range(4)]
    VC = 28
    PF = o.pf
    GT = 98
    wflags = {0: '', 1: ' sc1', 2: ' nt', 3: ' sc0'}[o.wsc1]
    for typ, S in enumerate(streams()):
        if typ == 1:
            e('.p2align 6')
            if o.warmb: e('L_warmB:'); e('s_branch L_warmret')
            e('L_typeB:')
        ops = []
        vstart = {}
        lastv = o.vt - 1
        v0 = 0
        G0 = 0
        if o.flat0:
            for g in range(16):
                vstart[g] = len(ops)
                for j in (range(9) if g % 2 == 0 or not o.flatzz else range(8, -1, -1)): ops.append((g, j))
            v0 = G0 = 16
        while v0 <= lastv:
            ch = 1 if v0 < o.chfrom + G0 else min(o.chain, lastv + 1 - v0)
            n0 = len(ops)
            for j in range(8, -1, -1):
                us = range(ch) if j % 2 == 0 else range(ch - 1, -1, -1)
                first_ = [u for u in us if v0 + u - j == 0 or (0 < v0 + u - j < NSTEP and S[v0+u-j][4] == 'Q' and S[v0+u-j-1][4] == 'P')]
                if first_: us = range(ch)
                for u in us:
                    if G0 <= v0 + u - j < NSTEP: ops.append((v0 + u - j, j))
            for u in range(ch): vstart[v0 + u] = n0 + (len(ops) - n0) * u // ch
            v0 += ch
        ntail = len(ops)
        if o.tail:
            for j in range(9):
                for g in range(o.vt - j, NSTEP): ops.append((g, j))
        assert len(ops) == NSTEP * 9 and len(set(ops)) == len(ops)
        N = len(ops)
        def key(n):
            g, j = ops[n]
            pid, arr, ch, c, acc = S[g]
            k = (pid, arr, ch, c + j)
            if n >= ntail and g < GT: k = k + ((n,) if not o.hold else ('h',))
            return k
        first, last = {}, {}
        for n in range(N):
            first.setdefault(key(n), n); last[key(n)] = n
        wfirst, wlast = {}, {}
        for n, (g, j) in enumerate(ops):
            wfirst.setdefault(g, n); wlast[g] = n
        tasks = []
        for k, n0 in first.items():
            win = o.tail and k[2] == 'rem' and k[1] == 'D'
            la = o.xla if n0 < ntail else 6
            if n0 >= ntail and ops[n0][1] == 0: la = o.tla
            elif win: la = 12
            tasks.append([n0 - la, n0 - 1, 'X', k])
        for g in range(NSTEP):
            rel = -100 + g if g < o.pf0 else max(0, wfirst[g] - 9 * PF)
            if o.tagp and g < 16:
                rel = -100 + g if g < 4 else max(0, wfirst[g] - 9 * o.tpf)
                tasks.append([rel, wfirst[g & ~1] - 9, 'W', g])
                continue
            tasks.append([rel, wfirst[g] - 1, 'W', g])
        def at(v, off=0): return vstart[v] + off
        firstD = min(n for n in range(N) if S[ops[n][0]][1] == 'D')
        lastO = max(n for n in range(N) if S[ops[n][0]][1] == 'O')
        lastP = {j: max(n for n in range(N) if ops[n][1] == j and S[ops[n][0]][4] == 'P') for j in range(9)}
        slow = []
        vused = set()
        def check(v, off, cnt, tag):
            tasks.append([at(v - 1, 3), at(v - 1, 8), 'L', (f'ds_read_b32 v{VC}, v{VF+1} offset:{off}', ('c', tag))])
            tasks.append([at(v, 0), at(v, 1), 'C', (f'v_cmp_ne_u32 vcc, {cnt}, v{VC}', ('c', tag))])
            tasks.append([at(v, 6), at(v, 7), 'I', [f's_cbranch_vccnz L_slow{typ}{tag}', f'L_back{typ}{tag}:']])
            slow.append((tag, off, cnt))
            vused.add(v)
            return at(v, 8)
        def add1(pos, off):
            tasks.append([pos, pos + 4, 'A', off])
        vD = [v for v in vstart if vstart[v] <= firstD - o.xla][-1] - 1
        okD = check(vD, 16, 4, 'D')
        assert okD <= firstD - o.xla
        add1(lastO, 20)
        VP = 47
        okR = check(VP, 20, 4, 'R')
        for j in range(9):
            assert lastP[j] + 12 < at(VP + 1 + j, 2)
            tasks.append([at(VP + 1 + j, 2), at(VP + 1 + j, 8), 'L', (f'ds_write_b128 v{VEX}, {vr(ACC["P"]+4*j,4)} offset:{1024*j}', ('pw', j))])
        tasks.append([at(VP + 10, 0), at(VP + 10, 4), 'A', 'pair'])
        VQ = VP + 13
        okP = check(VQ, 'pair', 2, 'P')
        for j in range(9):
            tasks.append([at(VQ + 1 + j, 2), at(VQ + 1 + j, 8), 'L', (f'ds_read_b128 {vr(TMP+4*(j&1),4)}, v{VEXP} offset:{1024*j}', ('pr', j))])
            v = VQ + 2 + j
            pos = at(v, 8 - (j + 2) - 1) if j <= 6 else at(v, 8 - (j - 7) - 1)
            sh = 1 if j >= 7 else 0
            if o.chain > 1:
                own = [n for n in range(N) if ops[n][1] == j]
                pos = [a_ + 10 for a_, b_ in zip(own, own[1:]) if b_ - a_ >= 14 and a_ + 9 >= at(v, 0) ][0]
                sh = 0
                tasks[-1][0] = pos - 9; tasks[-1][1] = pos - 4
                tasks[-1][3] = (f'ds_read_b128 {vr(TMP+4*(j&3),4)}, v{VEXP} offset:{1024*j}', ('pr', j))
            tasks.append([pos - 1 + sh, pos - 1 + sh, 'Q', (j, 0)])
            tasks.append([pos + sh, pos + sh, 'Q', (j, 1)])
        if typ == 0:
            tasks.append([at(64, 4), at(64, 8), 'S', f'buffer_store_dword v{VCL+1}, v{VCL}, {sr(S_DBG)}, 0 offen sc1'])
            tasks.append([at(84, 4), at(84, 8), 'S', f'buffer_store_dword v{VF+3}, v{VCL+1}, {sr(S_WS)}, 0 offen sc1'])
        fslow = []
        kslow = []
        if o.tagp:
            for g in range(0, 16, 2):
                n0 = wfirst[g]
                if g < 4: continue
                tasks.append([n0 - 8, n0 - 7, 'K', g])
                tasks.append([n0 - 2, n0 - 1, 'I', ['s_cmp_lg_u64 s[48:49], 0', f's_cbranch_scc1 L_ks{typ}{g}', f'L_kb{typ}{g}:']])
        passes = {}
        for g in range(NSTEP): passes.setdefault(S[g][0], g)
        need = [(passes[1], VF, 32 + 64 * typ), (32, VF + 6, 128), (passes[4], VF, 176), (passes[5], VF, 208), (passes[6], VF + 6, 240)]
        if o.c2split:
            need[1:2] = [(32, VF, 112), (passes[3], VF, 144)]
            o.pfcs6 = [o.pfcs[0], 10] + o.pfcs[1:]; o.fleads6 = [o.fleads[0], 8] + o.fleads[1:]
        else:
            o.pfcs6 = o.pfcs; o.fleads6 = o.fleads
        if o.yall: need[2:] = [(passes[4], 2, 176), (passes[5], 2, 176 + 72), (passes[6], 3, 176 + 144)]
        lastG = -1
        for ci, (gn, va, idx) in enumerate(need):
            v = gn - o.pfcs6[ci] - 1
            while v in vused: v -= 1
            tasks.append([at(v - o.fleads6[ci], 4), at(v - o.fleads6[ci], 8), 'F', (va, idx, ci)])
            tasks.append([at(v, 0), at(v, 1), 'G', ci])
            tasks.append([at(v, 6), at(v, 7), 'I', [f's_cbranch_vccnz L_fw{typ}{ci}', f'L_fb{typ}{ci}:']])
            fslow.append((ci, va))
            assert v not in vused, v
            vused.add(v)
            assert at(v - o.fleads6[ci], 4) > lastG, (ci, v)
            lastG = at(v, 7)
            for t in tasks:
                if t[2] == 'W' and (t[3] >= gn): t[0] = max(t[0], at(v, 8))
        tasks.append([at(v + 1, 2), at(v + 1, 8), 'A', 4])
        if typ == 0:
            for lvl, v in enumerate(o.trig): tasks.append([at(v, 2), at(v, 8), 'P', lvl + 1])
            if o.wbat: tasks.append([ntail + o.wbat, ntail + o.wbat + 6, 'P', 4])
        tasks.sort(key=lambda t: (t[0], t[1]))
        vq, lq = [], []
        dirty = [False]
        xreg, busy = {}, {}
        wn = [0]
        wr = {}
        lastw = [-100]
        later = []
        BIG = [WR + 4 * i for i in range(16)] + XWIN + [ACC['P'] + 4 * i for i in range(9)]
        for i in range(9): busy[ACC['P'] + 4 * i] = at(VP + 12)
        until = {}
        if o.chain > 1:
            BIG += XRING + [VA, VA + 4, VA + 8]
            for i in range(9):
                BIG.append(ACC['Q'] + 4 * i)
                until[ACC['Q'] + 4 * i] = min(n for n in range(N) if ops[n][1] == i and S[ops[n][0]][4] == 'Q') - 3
        def freeregs(n, end): return [x for x in BIG if busy.get(x, -1) <= n and end < until.get(x, 10**9)]
        def freepairs(n, end):
            f_ = set(freeregs(n, end))
            return [x for x in sorted(f_) if x % 8 == PAR8.get(x, -1) and x + 4 in f_]
        PAR8 = {x: x % 8 for x in list(range(WR, WR + 64, 8)) + [4, 12, 20, 240, 248, 200, 208, 216, 100, 108, 116, 124, VA]}
        def kcheck(g):
            vwait(g + 1)
            for i, gg in enumerate((g, g + 1)):
                a_ = wr[gg] - 2
                em(f'v_bitop3_b32 v{VC+i}, v{a_+1}, v{a_+6}, v{VF+3} bitop3:0x7e')
            em(f'v_or_b32 v{VC}, v{VC}, v{VC+1}')
            em(f'v_cmp_ne_u32 s[48:49], 0, v{VC}')
            kslow.append((g, wr[g] - 2, wr[g + 1] - 2))
        def wok(t, n):
            if t[2] != 'W': return True
            if t[3] != wn[0]: return False
            if o.tagp and t[3] < 16:
                return bool(freepairs(n, wlast[t[3]])) and (n - lastw[0] >= 2 or t[1] - n <= 4)
            free = len(freeregs(n, wlast[t[3]]))
            if t[1] - n <= 9 * 3: return free > 0
            return n - lastw[0] >= o.wgap and free > o.wres
        since = {}
        fill = []
        def em(x):
            e(x)
            if not x.endswith(':'):
                for jj in since: since[jj] += 1
        def lwait(tag):
            if tag not in lq: return
            i = lq.index(tag)
            em(f's_waitcnt lgkmcnt({0 if dirty[0] else len(lq)-1-i})')
            if dirty[0]: lq.clear(); dirty[0] = False
            else: del lq[:i + 1]
        def vwait(g):
            if g not in vq: return
            i = vq.index(g)
            em(f's_waitcnt vmcnt({len(vq)-1-i})')
            del vq[:i + 1]
        def run(t, n):
            kind, p = t[2], t[3]
            if kind == 'X':
                pool = BIG if (o.chain > 1 or p[-1] == 'h' or (p[2] == 'rem' and p[1] == 'D')) else XRING
                r = [x for x in pool if busy.get(x, -1) <= n and last[p] < until.get(x, 10**9)]
                assert r, ('no x register', p, n)
                r = min(r, key=lambda x: (until.get(x, 10**9), busy.get(x, -1)))
                busy[r] = last[p]; xreg[p] = r
                arr, ch, s_ = p[1], p[2], p[3]
                if o.nolds and n > 9 * 30: return
                if ch == 'rem': em(f'ds_read_b128 {vr(r,4)}, v{VXOR if arr == "O" else VXDR} offset:{288*s_}')
                else: em(f'ds_read_b128 {vr(r,4)}, v{VXO if arr == "O" else VXD} offset:{64*ch+288*s_}')
                lq.append(p)
            elif kind == 'W':
                g = p
                if o.tagp and g < 16:
                    r = min(freepairs(n, wlast[g]), key=lambda x: (until.get(x, 10**9), busy.get(x, -1)))
                    busy[r] = busy[r + 4] = wlast[g]; wr[g] = r + 2
                    assert g == wn[0]; wn[0] += 1
                    lastw[0] = n
                    em(f'buffer_load_dwordx4 {vr(r,4)}, v{VWL}, {sr(S_WS)}, s50 offen offset:{2048*(g%2)}')
                    em(f'buffer_load_dwordx4 {vr(r+4,4)}, v{VWL}, {sr(S_WS)}, s50 offen offset:{2048*(g%2)+1024}')
                    vq.append(('h', g)); vq.append(g)
                    if g % 2 == 1:
                        if n < 0: em('s_add_u32 s50, s50, 4096')
                        else: later.append('s_add_u32 s50, s50, 4096')
                    return
                r = min(freeregs(n, wlast[g]), key=lambda x: (until.get(x, 10**9), busy.get(x, -1)))
                busy[r] = wlast[g]; wr[g] = r
                assert g == wn[0]; wn[0] += 1
                lastw[0] = n
                if o.now and g > 40: return
                if o.wsame and g > 40:
                    em(f'buffer_load_dwordx4 {vr(r,4)}, v{VWL}, {sr(S_WS)}, s{WSO} offen offset:{1024*(g%4)}{wflags}'); vq.append(g); return
                em(f'buffer_load_dwordx4 {vr(r,4)}, v{VWL}, {sr(S_WS)}, s{WSO} offen offset:{1024*(g%4)}{wflags}')
                if g % 4 == 3:
                    if n < 0: em(f's_add_u32 s{WSO}, s{WSO}, 4096')
                    else: later.append(f's_add_u32 s{WSO}, s{WSO}, 4096')
                vq.append(g)
            elif kind == 'L':
                em(p[0].replace('offset:pair', 'offset:24').replace(f'v{VF+1} offset:24', f'v{VF+5} offset:24')); lq.append(p[1])
            elif kind == 'C':
                lwait(p[1]); em(p[0])
            elif kind == 'I':
                for x in p: em(x)
            elif kind == 'A':
                em('s_mov_b64 exec, 1')
                if p == 'pair': em(f'ds_add_u32 v{VF+5}, v{VF+2} offset:24')
                else: em(f'ds_add_u32 v{VF+1}, v{VF+2} offset:{p}')
                em('s_mov_b64 exec, -1')
                lq.append(('a', p))
            elif kind == 'Q':
                p, hf = p
                lwait(('pr', p))
                q = ACC['Q'] + 4 * p; t_ = TMP + 4 * (p & (3 if o.chain > 1 else 1))
                for i in (2 * hf, 2 * hf + 1): em(f'v_add_f32 v{q+i}, v{q+i}, v{t_+i}')
            elif kind == 'S':
                assert not any(isinstance(x, tuple) and x[0] == 's' for x in vq)
                em(p); vq.append(('s', n))
            elif kind == 'F':
                em(f's_mov_b32 s{FO}, {128*p[1]}')
                em(f'buffer_load_dword v{VF+4}, v{p[0]}, {sr(S_WS)}, s{FO} offen {o.fflags}'); vq.append(('f', p[2]))
            elif kind == 'K':
                kcheck(p)
            elif kind == 'G':
                vwait(('f', p)); em(f'v_cmp_ne_u32 vcc, v{VF+3}, v{VF+4}')
            elif kind == 'P':
                em(f'v_mov_b32 v{VF+7}, {p}')
                em('s_mov_b64 exec, 1')
                em(f'ds_max_u32 v{VF+1}, v{VF+7}')
                em('s_mov_b64 exec, -1')
                lq.append(('p', p))
        def epi(j, pk):
            q = ACC['Q'] + 4 * j
            t = TMP + 8 * (j & 1)
            I = []
            if pk:
                I.append(f'v_pk_mul_f32 {vr(t,2)}, {vr(q,2)}, s[{C2L}:{C2L+1}]')
                I.append(f'v_pk_mul_f32 {vr(t+2,2)}, {vr(q+2,2)}, s[{CNL}:{CNL+1}]')
            else:
                for i in (0, 1): I.append(f'v_mul_f32 v{t+i}, s{C2L}, v{q+i}')
                for i in (2, 3): I.append(f'v_mul_f32 v{t+i}, s{CNL}, v{q+i}')
            I.append(f'v_min_f32 v{t}, s{C60}, v{t}')
            I.append(f'v_min_f32 v{t+1}, s{C60}, v{t+1}')
            for i in (0, 1, 2, 3): I.append(f'v_exp_f32 v{t+i}, v{t+i}')
            if pk:
                I.append(f'v_pk_add_f32 {vr(t+4,2)}, {vr(t,2)}, 1.0 op_sel_hi:[1,0]')
                I.append(f'v_pk_add_f32 {vr(t+6,2)}, {vr(t,2)}, -1.0 op_sel_hi:[1,0]')
                I.append(f'v_pk_fma_f32 {vr(t+4,2)}, {vr(t+4,2)}, {vr(t+2,2)}, {vr(t+4,2)}')
            else:
                for i in (0, 1): I.append(f'v_add_f32 v{t+4+i}, 1.0, v{t+i}')
                for i in (0, 1): I.append(f'v_fma_f32 v{t+4+i}, v{t+4+i}, v{t+2+i}, v{t+4+i}')
            I.append(f'v_rcp_f32 v{t+4}, v{t+4}')
            I.append(f'v_rcp_f32 v{t+5}, v{t+5}')
            if pk:
                I.append('s_nop 0')
                I.append(f'v_pk_mul_f32 {vr(t+6,2)}, {vr(t+6,2)}, {vr(t+4,2)}')
            else:
                for i in (0, 1): I.append(f'v_add_f32 v{t+6+i}, -1.0, v{t+i}')
                for i in (0, 1): I.append(f'v_mul_f32 v{t+6+i}, v{t+6+i}, v{t+4+i}')
            I.append(f'v_cvt_pk_bf16_f32 v{q}, v{t+6}, v{t+7}')
            I.append(f'buffer_store_dword v{q}, v{VOUT + j//3}, {sr(S_OUT)}, 0 offen offset:{1152*(j%3)} {o.oflags if j < o.oj else ""}')
            return I
        def cost(x): return 2 if x.startswith(('v_exp', 'v_rcp', 'buffer')) else 1
        while tasks and tasks[0][0] < 0: run(tasks.pop(0), -1)
        if o.tagp and o.retry:
            vwait(3)
            for g in range(4):
                em(f'v_bitop3_b32 v{TMP+g}, v{wr[g]-1}, v{wr[g]+4}, v{VF+3} bitop3:0x7e')
            em(f'v_or3_b32 v{TMP}, v{TMP}, v{TMP+1}, v{TMP+2}')
            em(f'v_or_b32 v{TMP}, v{TMP}, v{TMP+3}')
            em(f'v_cmp_ne_u32 s[48:49], 0, v{TMP}')
            em('s_nop 2')
            em('s_cmp_lg_u64 s[48:49], 0')
            em(f's_cbranch_scc1 L_rt{typ}')
            em(f'L_rb{typ}:')
            first4 = [wr[g] - 2 for g in range(4)]
        elif o.tagp:
            for g in (0, 2):
                vwait(g + 1)
                for gg in (g + 4, g + 5):
                    t_ = [t for t in tasks if t[2] == 'W' and t[3] == gg][0]
                    tasks.remove(t_); run(t_, -1)
                kcheck(g)
                em('s_nop 2')
                em('s_cmp_lg_u64 s[48:49], 0')
                em(f's_cbranch_scc1 L_ks{typ}{g}')
                em(f'L_kb{typ}{g}:')
        inv = {n: v for v, n in vstart.items()}
        lastop = {j: max(n for n in range(N) if ops[n][1] == j) for j in range(9)}
        for n, (g, j) in enumerate(ops):
            if n in inv and o.padto and o.padev == 'm5' and inv[n] == o.padstep:
                e(f's_sub_u32 s98, s2, {o.padlo}')
                e(f's_cmp_ge_u32 s98, {o.padhi - o.padlo}')
                e(f's_cbranch_scc1 L_pr{typ}')
                e('s_memrealtime s[100:101]'); dirty[0] = True
                e(f'L_pr{typ}:')
            if n in inv and o.diag:
                v = inv[n]
                if o.diag == 2 and v in o.marks:
                    kk = o.marks.index(v)
                    e(f's_memtime s[{ST0+2*kk}:{ST0+2*kk+1}]'); dirty[0] = True
                if o.diag in (1, 4) and v == 33: stamp(5); stamp(6); dirty[0] = True
            if o.jit and n in inv and inv[n] in (20, 36, 44, 52, 60, 70, 90): jit()
            k = key(n)
            assert k in xreg, (k, n)
            lwait(k); vwait(g)
            acc = S[g][4]
            d = ACC[acc] + 4 * j
            if g == 0: cs = '0'
            elif acc == 'Q' and S[g-1][4] == 'P': cs = vr(ACC['P'] + 4 * j, 4)
            else: cs = vr(d, 4)
            em(f'v_mfma_f32_16x16x32_bf16 {vr(d,4)}, {vr(wr[g],4)}, {vr(xreg[k],4)}, {cs}' if not o.swapab else f'v_mfma_f32_16x16x32_bf16 {vr(d,4)}, {vr(xreg[k],4)}, {vr(wr[g],4)}, {cs}')
            if n == lastop[j]: since[j] = 0
            while later: em(later.pop(0))
            budget = 2
            TC = {'X': 1, 'W': 2, 'L': 2, 'C': 1, 'I': 0, 'A': 1, 'Q': 2, 'S': 2, 'F': 2, 'G': 1, 'P': 2, 'K': 2}
            while True:
                ready = [t for t in tasks if t[0] <= n and wok(t, n)]
                if not ready: break
                t = min(ready, key=lambda t: t[1])
                assert t[1] >= n, ('late', t, n)
                if TC[t[2]] > budget and t[1] > n:
                    fit = [u for u in ready if TC[u[2]] <= budget]
                    if not fit: break
                    t = min(fit, key=lambda t: t[1])
                tasks.remove(t); run(t, n); budget -= TC[t[2]]
            for jj in sorted(since):
                if 8 <= since[jj] < 10**6:
                    fill += epi(jj, False); since[jj] = 10**6
            budget += o.nfill - 2
            while fill and budget >= cost(fill[0]):
                budget -= cost(fill[0])
                if fill[0].startswith('buffer_store'):
                    q_ = int(re.match(r'buffer_store_dword v(\d+)', fill[0]).group(1))
                    until.pop(q_, None); busy[q_] = n + 2
                em(fill.pop(0))
            assert all(t[1] > n for t in tasks), ('late', n, [t for t in tasks if t[1] <= n])
        assert not tasks
        stamp(7)
        while fill: em(fill.pop(0))
        for jj in [jj for jj in sorted(since) if since[jj] < 10**6]:
            if since[jj] < 8: em(f's_nop {8-since[jj]-1}')
            for x in epi(jj, True): em(x)
        stamp(8)
        if o.padto and o.padev[0] == 'm': padloop(typ)
        if o.diag == 1:
            e('s_waitcnt vmcnt(0)')
            stamp(9)
            dump(10)
        if o.diag == 2:
            kk = len(o.marks)
            e(f's_memtime s[{ST0+2*kk}:{ST0+2*kk+1}]')
            dump(10)
        e('s_endpgm')
        for tag, off, cnt in slow:
            e(f'L_slow{typ}{tag}:')
            e(f'ds_read_b32 v{VC}, v{VF+5 if off == "pair" else VF+1} offset:{24 if off == "pair" else off}')
            e('s_waitcnt lgkmcnt(0)')
            e(f'v_cmp_ne_u32 vcc, {cnt}, v{VC}')
            e('s_nop 4')
            e(f's_cbranch_vccnz L_slow{typ}{tag}')
            e(f's_branch L_back{typ}{tag}')
        for ci, va in fslow: flagwait(f'{typ}{ci}', va, f'L_fb{typ}{ci}')
        if o.tagp and o.retry:
            e(f'L_rt{typ}:')
            if o.diag: e(f's_add_u32 s95, s95, {1 << 24}')
            e(f's_sleep {o.retry}')
            e(f'ds_read_b32 v{VF+7}, v{VF+1} offset:12')
            e('s_add_u32 s47, s96, 4096')
            e('s_waitcnt lgkmcnt(0)')
            for g, a_ in enumerate(first4):
                for hf in range(2):
                    e(f'buffer_load_dwordx4 {vr(a_+4*hf,4)}, v{VWL}, {sr(S_WS)}, s{96 if g < 2 else 47} offen offset:{2048*(g%2)+1024*hf} sc1')
            e(f'v_readfirstlane_b32 s46, v{VF+7}')
            e(f's_add_u32 s{NPOLL}, s{NPOLL}, 1')
            e('s_waitcnt vmcnt(0)')
            e('s_cmp_lg_u32 s46, 0')
            e(f's_cbranch_scc1 L_rb{typ}')
            for g in range(4):
                e(f'v_bitop3_b32 v{TMP+g}, v{first4[g]+1}, v{first4[g]+6}, v{VF+3} bitop3:0x7e')
            e(f'v_or3_b32 v{TMP}, v{TMP}, v{TMP+1}, v{TMP+2}')
            e(f'v_or_b32 v{TMP}, v{TMP}, v{TMP+3}')
            e(f'v_cmp_ne_u32 s[48:49], 0, v{TMP}')
            e('s_nop 2')
            e('s_cmp_eq_u64 s[48:49], 0')
            e(f's_cbranch_scc1 L_rb{typ}')
            e(f's_cmp_lg_u32 s{NPOLL}, {o.maxpoll}')
            e(f's_cbranch_scc1 L_rt{typ}')
            e(f'v_mov_b32 v{VF+7}, 0x10000')
            e('s_mov_b64 exec, 1')
            e(f'ds_add_u32 v{VF+1}, v{VF+7} offset:4')
            e('s_mov_b64 exec, -1')
            e(f's_branch L_rt{typ}')
        for g, a0_, a1_ in kslow:
            e(f'L_ks{typ}{g}:')
            if o.diag: e(f's_add_u32 s95, s95, {1 << 24}')
            e(f'ds_read_b32 v{VF+7}, v{VF+1} offset:12')
            e(f's_add_u32 s47, s96, {2048*g}')
            e('s_waitcnt lgkmcnt(0)')
            for i, a_ in enumerate((a0_, a0_ + 4, a1_, a1_ + 4)):
                e(f'buffer_load_dwordx4 {vr(a_,4)}, v{VWL}, {sr(S_WS)}, s47 offen offset:{1024*i} sc1')
            e(f'v_readfirstlane_b32 s46, v{VF+7}')
            e(f's_add_u32 s{NPOLL}, s{NPOLL}, 1')
            e('s_waitcnt vmcnt(0)')
            e('s_cmp_lg_u32 s46, 0')
            e(f's_cbranch_scc1 L_kb{typ}{g}')
            e(f'v_bitop3_b32 v{VC}, v{a0_+1}, v{a0_+6}, v{VF+3} bitop3:0x7e')
            e(f'v_bitop3_b32 v{VC+1}, v{a1_+1}, v{a1_+6}, v{VF+3} bitop3:0x7e')
            e(f'v_or_b32 v{VC}, v{VC}, v{VC+1}')
            e(f'v_cmp_ne_u32 s[48:49], 0, v{VC}')
            e('s_nop 2')
            e('s_cmp_eq_u64 s[48:49], 0')
            e(f's_cbranch_scc1 L_kb{typ}{g}')
            e(f's_cmp_lg_u32 s{NPOLL}, {o.maxpoll}')
            e(f's_cbranch_scc1 L_ks{typ}{g}')
            e(f'v_mov_b32 v{VF+7}, 0x10000')
            e('s_mov_b64 exec, 1')
            e(f'ds_add_u32 v{VF+1}, v{VF+7} offset:4')
            e('s_mov_b64 exec, -1')
            e(f's_branch L_ks{typ}{g}')

    mark['help0'] = len(e.L)
    if not o.hfirst: e('.p2align 6')
    e('L_helper:')
    role[0] = 'h'
    e(f's_setprio {o.hprio}')
    e(f's_sub_u32 s{TW0}, s{WAVE}, 4')
    e(f's_mov_b32 s{TW1}, s{WAVE}')
    e(f's_sub_u32 s{PAIR}, s{RID}, {NPROD}')
    e(f's_cselect_b32 s{PAIR}, s{RID}, s{PAIR}')
    e(f's_mov_b32 s{MODE}, 0')
    e(f's_mov_b32 s{NOTASK}, s{RID}')
    e(f's_mov_b32 s{HAS3}, s{TW0}')
    e(f's_lshl_b32 s{SCRB}, s{TW0}, 12')
    e(f's_add_u32 s{SCRB}, s{SCRB}, {SCR}')
    e('L_prod:')
    T = [(28, TW0, 2, 52, 0), (36, TW1, 4, 53, 2048), (44, TW2, 6, 54, 16384)]
    c, kp, q, cc, kk, t = 46, 47, 48, 49, 50, 51
    b = TS
    e('v_mov_b32 v19, 4320')
    e('v_and_b32 v23, 3, v1')
    e('v_lshrrev_b32 v24, 2, v1')
    e('v_mul_u32_u24 v24, 288, v24')
    for (vb, sw, vl, vs, so) in T:
        e(f'v_lshl_add_u32 v8, s{sw}, 2, v23' if sw != TW2 else 'v_add_u32 v8, 32, v23')
        e('v_cmp_le_u32 vcc, 18, v8')
        e(f'v_lshl_add_u32 v{vl}, v8, 4, v24')
        e(f'v_add_u32 v9, v{vl}, v19')
        e(f'v_cndmask_b32 v{vl}, v{vl}, v9, vcc')
    e(f's_and_b32 s{c}, s{PAIR}, 15')
    e(f's_lshr_b32 s{kp}, s{PAIR}, 4')
    e(f's_mul_i32 s{b}, s{c}, 165888')
    e(f's_mul_i32 s{t}, s{kp}, 9216')
    e(f's_add_u32 s{b}, s{b}, s{t}')
    e(f's_add_u32 s{b+1}, s{b}, 82944')
    e(f's_mov_b32 s{S_W+2}, 2571264')
    e(f's_mov_b32 s{S_W+3}, 0x20000')
    e(f's_mov_b32 s{S_WO+3}, s{S_W+3}')
    e(f's_cmp_lg_u32 s{c}, 15')
    e(f's_cselect_b32 s{S_WO+2}, s{S_W+2}, 0')
    e(f's_mov_b32 m0, s{SCRB}')
    e('s_waitcnt lgkmcnt(0)')
    e(f's_mov_b32 s{S_W}, s6')
    e(f's_and_b32 s{S_W+1}, s7, 0xffff')
    e(f's_mov_b32 s{S_WO}, s6')
    e(f's_and_b32 s{S_WO+1}, s7, 0xffff')
    e(f's_cmp_ge_u32 s{NOTASK}, {NTASK}')
    e('s_cbranch_scc1 L_a3')
    def cond3(lbl):
        e(f's_cmp_lg_u32 s{HAS3}, 0')
        e(f's_cbranch_scc1 {lbl}')
    for ti, (vb, sw, vl, vs, so) in enumerate(T):
        if ti == 2: cond3('L_a3')
        if ti == 1: e('s_addk_i32 m0, 1024'); e('s_nop 0')
        e(f'buffer_load_dwordx4 v{vl}, {sr(S_W)}, s{b} offen lds')
        e('s_addk_i32 m0, 1024')
        e('s_nop 0')
        e(f'buffer_load_dwordx4 v{vl}, {sr(S_WO)}, s{b+1} offen lds')
        if ti == 1: e(f's_addk_i32 m0, {16384-3072}')
    e('L_a3:')
    stamp(1)
    e(f's_cmp_lg_u32 s{MODE}, 0')
    e('s_cbranch_scc1 L_a4')
    e(f's_load_dword s{TAG}, s[12:13], {NONCE}')
    e(f's_lshr_b32 s{EARLY}, 0x33, s{kp}')
    e(f's_and_b32 s{EARLY}, s{EARLY}, 1')
    e(f's_sub_u32 s{XK}, 2, s{EARLY}')
    e(f's_lshl_b32 s{t}, s{kp}, 1')
    e(f's_lshr_b32 s{YT}, {(3<<12)+(3<<14)+(3<<16)}, s{t}')
    e(f's_and_b32 s{YT}, s{YT}, 3')
    e(f's_lshr_b32 s{t}, s{kp}, 1')
    e(f's_cmp_ge_u32 s{RID}, {NPROD}')
    e(f's_cselect_b32 s{EARLY}, 0, s{EARLY}')
    e(f's_cselect_b32 s{XK}, 3, s{XK}')
    e(f's_cselect_b32 s{YT}, s{t}, s{YT}')
    e(f's_cmp_ge_u32 s{RID}, {NPROD+32}')
    e(f's_cselect_b32 s{XK}, 0, s{XK}')
    e(f's_cmp_ge_u32 s{RID}, {NTASK}')
    e(f's_cselect_b32 s{YT}, 0, s{YT}')
    if not o.b0early:
        e(f's_cmp_lg_u32 s{EARLY}, 0')
        e('s_cbranch_scc1 L_a4')
    e('s_barrier')
    e('L_a4:')
    jit()
    e(f's_mov_b32 s{MASK}, 0xffff0000')
    e(f's_mov_b32 s{NPOLL}, 0')
    srd(e, S_WS, 12, WS_REC)
    srd(e, S_DBG, 10, 256)
    e(f'v_mov_b32 v10, {CNT}')
    e(f'v_mov_b32 v20, {(256 - 18*NSTR) & 0xffffffff}')
    e(f'v_mov_b32 v26, {NSTR}')
    e('v_bfe_u32 v21, v1, 2, 2')
    e('v_lshlrev_b32 v21, 7, v21')
    e('v_and_b32 v22, 1, v1')
    e('v_lshl_add_u32 v21, v22, 6, v21')
    e('v_bfe_u32 v22, v1, 1, 1')
    e('v_lshl_add_u32 v21, v22, 3, v21')
    e('v_lshrrev_b32 v22, 4, v1')
    e('v_lshl_add_u32 v21, v22, 4, v21')
    e(f'v_add_u32 v21, s{SCRB}, v21')
    if o.yall: e('v_mov_b32 v62, v21')
    e('v_and_b32 v25, 15, v1')
    e('v_lshlrev_b32 v25, 4, v25')
    for (vb, sw, vl, vs, so) in T:
        e(f'v_lshl_add_u32 v8, s{sw}, 2, v22' if sw != TW2 else 'v_add_u32 v8, 32, v22')
        e('v_cmp_le_u32 vcc, 18, v8')
        e(f'v_mad_u32_u24 v{vs}, v8, v26, v25')
        e(f'v_add_u32 v9, v{vs}, v20')
        e(f'v_cndmask_b32 v{vs}, v{vs}, v9, vcc')
    if o.tagp:
        e(f's_lshr_b32 s97, 0x33, s{kp}')
        e('s_and_b32 s97, s97, 1')
        e(f's_cmp_eq_u32 s{WAVE}, 4')
        e(f's_cselect_b32 s{t}, 1, s{97 if o.split1 else EARLY}')
        e(f's_cmp_lg_u32 s{t}, 0')
        e(f's_cselect_b32 s{t}, 4, -16')
        e(f'v_mov_b32 v9, s{t}')
        e('s_waitcnt lgkmcnt(0)')
        e('s_mov_b64 exec, 1')
        e(f'buffer_load_dword v27, v9, {sr(S_DBG)}, 0 offen sc1')
        e('s_mov_b64 exec, -1')
        e(f's_lshr_b32 s96, s{kp}, 2')
        e('s_lshl_b32 s96, s96, 4')
        e(f's_add_u32 s96, s96, s{c}')
        e('s_lshl_b32 s96, s96, 2')
        e(f's_and_b32 s{t}, s{kp}, 1')
        e(f's_add_u32 s96, s96, s{t}')
        e('s_lshl_b32 s96, s96, 9')
        e(f's_add_u32 s96, s96, {WOFF + 2*NSTEP*1024}')
    e(f's_lshr_b32 s{q}, s{kp}, 1')
    e(f's_and_b32 s{cc}, s{c}, 7')
    e(f's_lshr_b32 s{kk}, s{c}, 3')
    e(f's_and_b32 s{t}, s{kp}, 1')
    e(f's_cmp_eq_u32 s{kp}, 8')
    e(f's_cselect_b32 s{cc}, s{cc}, s{c}')
    e(f's_cselect_b32 s{kk}, s{kk}, s{t}')
    e(f's_lshl_b32 s{kk}, s{kk}, 9')
    e(f's_add_u32 s{kk}, s{kk}, {WOFF}')
    e(f's_lshl_b32 s{t}, s{q}, 4')
    e(f's_add_u32 s{b+2}, s{t}, s{cc}')
    e(f's_sub_u32 s{b+3}, s{b+2}, s{q}')
    e(f's_cmp_ge_u32 s{q}, 2')
    e(f's_cselect_b32 s{b+4}, 74, 0')
    e(f's_add_u32 s{b+4}, s{b+4}, s{b+2}')
    e(f's_cmp_lt_u32 s{cc}, 2')
    e(f's_cselect_b32 s{t}, 32, 136')
    e(f's_add_u32 s{t}, s{t}, s{cc}')
    e(f's_cmp_eq_u32 s{kp}, 8')
    e(f's_cselect_b32 s{b+4}, s{t}, s{b+4}')
    e(f's_add_u32 s{b+2}, s{b+2}, 34')
    e(f's_add_u32 s{b+3}, s{b+3}, 144')
    for k in (2, 3, 4):
        e(f's_lshl_b32 s{b+k}, s{b+k}, 10')
        e(f's_add_u32 s{b+k}, s{b+k}, s{kk}')
    e(f's_cmp_eq_u32 s{kp}, 8')
    e(f's_cselect_b32 s{t}, 1, 2')
    e(f's_cmp_eq_u32 s{c}, 15')
    e(f's_cselect_b32 s{b+5}, s{t}, 0')
    e(f's_lshl_b32 s46, s{WAVE}, 2')
    e(f's_add_u32 s46, s46, {CNT+16}')
    e('v_mov_b32 v55, s46')
    if o.tagp:
        e('s_waitcnt vmcnt(1)')
        stamp(2)
        e(f's_cmp_ge_u32 s{NOTASK}, {NTASK}')
        e('s_cbranch_scc1 L_x9')
    else:
        e('v_mov_b32 v27, 0')
        e('v_mov_b32 v9, 4')
        e('s_waitcnt vmcnt(0) lgkmcnt(0)')
        stamp(2)
        e(f's_cmp_lg_u32 s{WAVE}, 4')
        e('s_cbranch_scc1 L_a5')
        e('s_mov_b64 exec, 1')
        e(f'buffer_load_dword v27, v9, {sr(S_DBG)}, 0 offen sc1')
        e('s_mov_b64 exec, -1')
        e('L_a5:')
        e(f's_cmp_ge_u32 s{NOTASK}, {NTASK}')
        e('s_cbranch_scc1 L_x9')
    for (vb, sw, vl, vs, so) in T:
        for tap in range(2):
            for half in range(2):
                e(f'ds_read_b64_tr_b16 {vr(vb+4*tap+2*half,2)}, v21 offset:{so+1024*tap+512*half}')
    nlab = [0]
    def st01(vb, vs):
        nlab[0] += 1
        e(f'buffer_store_dwordx4 {vr(vb,4)}, v{vs}, {sr(S_WS)}, s{b+2} offen {o.stf}')
        e(f's_cmp_eq_u32 s{b+5}, 2')
        e(f's_cbranch_scc1 L_skip{nlab[0]}')
        e(f'buffer_store_dwordx4 {vr(vb+4,4)}, v{vs}, {sr(S_WS)}, s{b+3} offen {o.stf}')
        e(f'L_skip{nlab[0]}:')
    def st01all(lbl):
        st01(T[0][0], T[0][3]); st01(T[1][0], T[1][3])
        cond3(lbl)
        st01(T[2][0], T[2][3])
    def dosum(vb, tb, ob):
        for i in range(8):
            e(f'v_lshlrev_b32 v{tb+2*i}, 16, v{vb+i}')
            e(f'v_and_b32 v{tb+2*i+1}, s{MASK}, v{vb+i}')
        for i in range(4):
            e(f'v_pk_add_f32 {vr(tb+2*i,2)}, {vr(tb+2*i,2)}, {vr(tb+8+2*i,2)}')
        for i in range(4):
            e(f'v_cvt_pk_bf16_f32 v{ob+i}, v{tb+2*i}, v{tb+2*i+1}')
    def ldswait(off, cmp, operand, tag, slp):
        e(f'L_lw{tag}:')
        e(f'ds_read_b32 v11, v10 offset:{off}')
        e('s_waitcnt lgkmcnt(0)')
        e('v_and_b32 v11, 0xff, v11')
        e(f'v_cmp_{cmp}_u32 vcc, {operand}, v11')
        e('s_nop 4')
        e(f's_cbranch_vccnz L_lx{tag}')
        e(f's_sleep {slp}')
        e(f's_branch L_lw{tag}')
        e(f'L_lx{tag}:')
    SOR = lambda ti: (210 + 8 * ti) if o.tagp else (240 + 4 * ti)
    e(f's_or_b32 s46, s{EARLY}, s{MODE}')
    e(f's_cmp_eq_u32 s{XK}, 2')
    e('s_cselect_b32 s47, 1, s46')
    if o.xl: e('s_mov_b32 s46, s47')
    if o.split1:
        assert o.tagp and o.xl
        e('s_or_b32 s47, s47, s97')
        e(f's_andn2_b32 s50, s97, s{MODE}')
    e('s_cmp_eq_u32 s47, 0')
    e('s_cbranch_scc1 L_x9')
    if o.tagp:
        e('s_cmp_eq_u32 s97, 0')
        e('s_cbranch_scc1 L_x7')
        e('s_waitcnt vmcnt(0)')
        e('v_readfirstlane_b32 s48, v27')
        e(f's_add_u32 s49, s{TAG}, {TAGINC}')
        e('s_not_b32 s47, s49')
        e(f's_or_b32 s48, s48, s{MODE}')
        e('s_cselect_b32 s49, s47, s49')
        for ti in range(3):
            e(f'v_mov_b32 v{SOR(ti)-1}, s49')
            e(f'v_mov_b32 v{SOR(ti)+4}, s49')
        e('L_x7:')
        if o.xdel:
            e(f's_cmp_lg_u32 s{XK}, 2')
            e('s_cbranch_scc1 L_x8')
            if o.xdel > 0: e(f's_sleep {o.xdel}')
            else:
                e('L_xs:')
                e('ds_read_b32 v11, v10 offset:8')
                e('s_waitcnt lgkmcnt(0)')
                e(f'v_cmp_le_u32 vcc, {0x10000 * -o.xdel}, v11')
                e('s_nop 4')
                e('s_cbranch_vccnz L_x8')
                e('s_sleep 1')
                e('s_branch L_xs')
            e('L_x8:')
    for ti, (vb, sw, vl, vs, so) in enumerate(T):
        if ti == 2: cond3('L_x3')
        if o.split1:
            if ti == 1: e(f's_and_b32 s47, s50, s{EARLY}')
            else: e(f's_andn2_b32 s47, s50, s{EARLY}')
            e(f's_cbranch_scc1 L_x5{ti}')
        e(f's_waitcnt lgkmcnt({8-4*ti})')
        dosum(vb, 64 + 16 * ti, SOR(ti))
        if not o.split1:
            e('s_cmp_eq_u32 s46, 0')
            e(f's_cbranch_scc1 L_x5{ti}')
        if o.tagp:
            e('s_cmp_eq_u32 s97, 0')
            e(f's_cbranch_scc1 L_x6{ti}')
            e(f'buffer_store_dwordx4 {vr(SOR(ti)-2,4)}, v{vs}, {sr(S_WS)}, s96 offen {o.stf}')
            e(f'buffer_store_dwordx4 {vr(SOR(ti)+2,4)}, v{vs}, {sr(S_WS)}, s96 offen offset:1024 {o.stf}')
            e(f's_branch L_x5{ti}')
            e(f'L_x6{ti}:')
        e(f'buffer_store_dwordx4 {vr(SOR(ti),4)}, v{vs}, {sr(S_WS)}, s{b+4} offen {o.stf}')
        e(f'L_x5{ti}:')
    e('L_x3:')
    e(f's_cmp_eq_u32 s{MODE}, 0')
    e('s_cbranch_scc1 L_x9')
    e('L_x2:')
    e('s_waitcnt lgkmcnt(0)')
    st01all('L_x4')
    e('L_x4:')
    e(f's_cmp_eq_u32 s{MODE}, 0')
    e('s_cbranch_scc1 L_x9')
    e('s_waitcnt vmcnt(0)')
    e(f's_add_u32 s{PAIR}, s{PAIR}, 1')
    e(f's_cmp_lt_u32 s{PAIR}, {NPROD}')
    e('s_cbranch_scc1 L_prod')
    e('v_mov_b32 v11, 1')
    e('ds_write_b32 v10, v11 offset:12')
    e('s_endpgm')
    e('L_x9:')
    jit()
    if o.tagp and not o.b0early:
        e(f's_cmp_eq_u32 s{EARLY}, 0')
        e('s_cbranch_scc1 L_x10')
        e('s_barrier')
        e('L_x10:')
    stamp(3)
    decode()
    e('v_subrev_u32 v4, 256, v0')
    e('v_min_u32 v4, 251, v4')
    e('v_mul_u32_u24 v3, 3641, v4')
    e('v_lshrrev_b32 v3, 16, v3')
    e('v_mul_u32_u24 v2, 18, v3')
    e('v_sub_u32 v2, v4, v2')
    e(f'v_mul_u32_u24 v3, {R}, v3')
    e(f'v_min_u32 v3, {160-R}, v3')
    e('v_mul_u32_u24 v4, 1152, v3')
    e('v_lshl_add_u32 v4, v2, 4, v4')
    e(f'v_add_u32 v12, s{XB}, v4')
    e('v_mul_u32_u24 v18, 288, v3')
    e('v_lshl_add_u32 v18, v2, 4, v18')
    e(f'v_add_u32 v19, {X_D1}, v18')
    srd(e, S_X, 4, 1152000, add=BOFF)
    e(f's_add_u32 s46, s{TAG}, {TAGINC}')
    e('v_mov_b32 v56, s46')
    e(f's_lshl_b32 s46, s{RID}, 7')
    e('v_mov_b32 v58, s46')
    e(f's_add_u32 s46, s{PAIR}, {NPROD}')
    e('s_lshl_b32 s46, s46, 7')
    e('v_mov_b32 v59, s46')
    def publish(slot, vflag, tag, first, n=0):
        e('s_mov_b64 exec, 1')
        e(f's_waitcnt vmcnt({n})')
        if first: stamp(4)
        if o.padto and tag == 'x': stamp(12)
        e('v_cmp_ne_u32 vcc, 0, v27')
        e('v_not_b32 v57, v56')
        e('s_nop 0')
        e('v_cndmask_b32 v57, v56, v57, vcc')
        e(f'ds_write_b32 v55, v57 offset:{slot}')
        e(f'ds_read_b128 v[20:23], v10 offset:{32+slot}')
        e('s_waitcnt lgkmcnt(0)')
        for i in range(4): e(f'v_xor_b32 v{20+i}, v{20+i}, v56')
        e('v_or3_b32 v20, v20, v21, v22')
        e('v_or_b32 v20, v20, v23')
        e('v_cmp_eq_u32 vcc, 0, v20')
        e('s_and_b64 exec, exec, vcc')
        e(f's_cbranch_execz L_nl{tag}')
        e(f'buffer_store_dword v56, v{vflag}, {sr(S_WS)}, 0 offen sc1')
        e(f'L_nl{tag}:')
        e('s_mov_b64 exec, -1')
    if o.tagp and o.xl:
        e(f's_cmp_lg_u32 s{XK}, 2')
        e('s_cbranch_scc1 L_noflag')
        publish(0, 58, 'x', True)
        e(f's_mov_b32 s{XK}, 0')
    elif o.xl:
        e(f's_cmp_ge_u32 s{RID}, {NPROD}')
        e('s_cbranch_scc1 L_noflag')
        publish(0, 58, 'x', True)
        e(f's_mov_b32 s{XK}, 0')
        e(f's_cmp_eq_u32 s{EARLY}, 0')
        e('s_cbranch_scc1 L_noflag')
        if not o.b0early: e('s_barrier')
    elif not o.tagp:
        e(f's_cmp_eq_u32 s{EARLY}, 0')
        e('s_cbranch_scc1 L_noflag')
        publish(0, 58, 'x', True)
        if not o.b0early: e('s_barrier')
    e('L_noflag:')
    e(f's_setprio {o.hprio2}')
    RAW, ORAW = 64, 120
    EU = [184, 192]
    OU, DT, DO = 200, 208, 216
    xi = [0]
    NL = R + 1
    hq = []
    def eload():
        k = xi[0]
        if k >= NL: return
        a_ = 12
        if k:
            a_ = 13 + (k & 3)
            e(f'v_add_u32 v{a_}, {1152*k}, v12')
        e(f'buffer_load_dwordx4 {vr(RAW+4*k,4)}, v{a_}, {sr(S_X)}, 0 offen')
        xi[0] += 1
        hq.append(('e', k))
    if o.etouch:
        e(f's_cmp_lt_u32 s{RID}, {NTASK}')
        e('s_cbranch_scc1 L_net')
        e(f's_and_b32 s46, s{NB}, 1')
        e(f's_mul_i32 s46, s46, {1152*6}')
        e('v_add_u32 v12, s46, v12')
        for _ in range(7): eload()
        e('v_subrev_u32 v12, s46, v12')
        e('s_waitcnt vmcnt(0)')
        e('L_net:')
        xi[0] = 0; hq.clear()
    YA = 232
    e(f's_cmp_eq_u32 s{b+5}, 2')
    e('s_cselect_b32 s46, 0x80000000, 0')
    e(f's_cmp_lg_u32 s{HAS3}, 0')
    e('s_cselect_b32 s47, 0x80000000, 0')
    e('s_or_b32 s48, s46, s47')
    for i in range(6):
        m_ = {0: None, 1: 46, 2: None, 3: 46, 4: 47, 5: 48}[i]
        e(f'v_mov_b32 v{YA+i}, v{52+i//2}' if m_ is None else f'v_or_b32 v{YA+i}, s{m_}, v{52+i//2}')
    def ystore(i, a_):
        e(f'buffer_store_dwordx4 {vr(28+4*i,4)}, v{a_}, {sr(S_WS)}, s{b+2+(i&1)} offen {o.stf}')
        hq.append(('y', i))
    if o.yall:
        assert o.d0p
        e(f's_add_u32 s44, s{RID}, 76')
        e(f's_cmp_ge_u32 s44, {NWG}')
        e(f's_cselect_b32 s45, {NWG}, 0')
        e('s_sub_u32 s44, s44, s45')
        e(f's_add_u32 s46, s44, {NPROD + 32}')
        e('s_lshl_b32 s46, s46, 7')
        e('v_mov_b32 v59, s46')
        e('s_mul_hi_u32 s45, s44, 477218589')
        e('s_mul_i32 s46, s45, 9')
        e('s_sub_u32 s44, s44, s46')
        e(f's_lshr_b32 s{YT}, s45, 3')
        e(f's_add_u32 s{YT}, s{YT}, 1')
        e(f's_min_u32 s{YT}, s{YT}, 3')
        e('s_lshl_b32 s45, s45, 2')
        e(f's_add_u32 s45, s45, s{WAVE}')
        e('s_add_u32 s45, s45, 28')
        e('s_and_b32 s46, s45, 15')
        e('s_lshr_b32 s47, s45, 4')
        e('s_mul_i32 s54, s46, 165888')
        e('s_mul_i32 s48, s47, 9216')
        e('s_add_u32 s54, s54, s48')
        e('s_add_u32 s95, s54, 82944')
        e('s_cmp_lg_u32 s46, 15')
        e(f's_cselect_b32 s{S_WO+2}, 2571264, 0')
        e('s_cselect_b32 s51, 0, 0x80000000')
        e('s_lshr_b32 s48, s47, 1')
        e('s_and_b32 s49, s46, 7')
        e('s_lshr_b32 s50, s46, 3')
        e('s_and_b32 s45, s47, 1')
        e('s_cmp_eq_u32 s47, 8')
        e('s_cselect_b32 s49, s49, s46')
        e('s_cselect_b32 s50, s50, s45')
        e('s_cselect_b32 s51, 0, s51')
        e('s_lshl_b32 s50, s50, 9')
        e(f's_add_u32 s50, s50, {WOFF}')
        e('s_lshl_b32 s68, s48, 4')
        e('s_add_u32 s68, s68, s49')
        e('s_sub_u32 s69, s68, s48')
        e('s_add_u32 s68, s68, 34')
        e('s_add_u32 s69, s69, 144')
        for r_ in (68, 69):
            e(f's_lshl_b32 s{r_}, s{r_}, 10')
            e(f's_add_u32 s{r_}, s{r_}, s50')
        e('v_and_b32 v2, 3, v1')
        e('v_lshl_add_u32 v2, s44, 2, v2')
        e('v_lshrrev_b32 v3, 4, v1')
        e('v_lshl_add_u32 v3, s44, 2, v3')
        e('v_cmp_le_u32 vcc, 18, v2')
        e('v_cmp_le_u32 s[46:47], 18, v3')
        e('v_lshl_add_u32 v63, v2, 4, v24')
        e('v_mad_u32_u24 v60, v3, v26, v25')
        e('v_add_u32 v2, 4320, v63')
        e(f'v_add_u32 v3, {(256 - 18*NSTR) & 0xffffffff}, v60')
        e('v_cndmask_b32 v63, v63, v2, vcc')
        e('v_cndmask_b32 v60, v60, v3, s[46:47]')
        e('v_or_b32 v61, s51, v60')
    def ydma():
        if not o.yall: return
        e(f's_mov_b32 m0, s{SCRB}')
        e('s_nop 0')
        e(f'buffer_load_dwordx4 v63, {sr(S_W)}, s54 offen lds')
        e('s_addk_i32 m0, 1024')
        e('s_nop 0')
        e(f'buffer_load_dwordx4 v63, {sr(S_WO)}, s95 offen lds')
        hq.append('d0'); hq.append('d1')
    stamp(5)
    ldswait(8, 'eq', 4, 'o', 1)
    def unpack(dst, s_):
        for i in range(4):
            e(f'v_lshlrev_b32 v{dst+2*i}, 16, v{s_+i}')
            e(f'v_and_b32 v{dst+2*i+1}, s{MASK}, v{s_+i}')
    def unpackE(dst, k):
        e(f's_waitcnt vmcnt({len(hq)-1-hq.index(("e", k))})')
        unpack(dst, RAW + 4 * k)
        eload()
    def diff(eu, out):
        for i in range(8): e(f'v_sub_f32 v{DT+i}, v{eu+i}, v{OU+i}')
        for i in range(4):
            e(f'v_cvt_pk_bf16_f32 v{out+i}, v{DT+2*i}, v{DT+2*i+1}')
    def opengate():
        if not o.gate: return
        e('v_mov_b32 v11, 0x100')
        e('s_mov_b64 exec, 1')
        e('ds_add_u32 v10, v11 offset:8')
        e('s_mov_b64 exec, -1')
    def rows(hook):
        jit()
        stamp(6)
        for j in range(R):
            e(f'ds_read_b128 {vr(ORAW+4*j,4)}, v18 offset:{X_O+288*j}')
        unpackE(EU[0], 0)
        e('s_waitcnt lgkmcnt(0)')
        hook(-1)
        for j in range(R):
            o0 = DO + 8 * (j & 1)
            unpack(OU, ORAW + 4 * j)
            diff(EU[j & 1], o0)
            e(f'ds_write_b128 v18, {vr(o0,4)} offset:{X_D0+288*j}')
            unpackE(EU[(j + 1) & 1], j + 1)
            diff(EU[(j + 1) & 1], o0 + 4)
            e(f'ds_write_b128 v19, {vr(o0+4,4)} offset:{288*j}')
            hook(j)
    if o.apath:
        e(f's_cmp_ge_u32 s{RID}, {NPROD + (32 if o.d0p else 0)}')
        e('s_cbranch_scc1 L_pathA')
    if o.d0row >= 0: e(f's_cmp_lg_u32 s{XK}, 2')
    else: e(f's_cmp_lt_u32 s{XK}, 2')
    e('s_cbranch_scc1 L_nox')
    if o.d0p:
        e(f's_cmp_eq_u32 s{XK}, 3')
        e('s_cbranch_scc1 L_xd')
    for i in range(3):
        e(f'buffer_store_dwordx4 {vr(SOR(i),4)}, v{YA+2*i}, {sr(S_WS)}, s{b+4} offen {o.stf}')
    if o.d0p:
        e('s_branch L_xe')
        e('L_xd:')
        for i in range(6): ystore(i, YA + i)
        e('L_xe:')
    if o.gearly:
        opengate()
        publish(0, 58, 'x2', True)
        e('s_branch L_nox2')
        e('L_nox:')
        if o.gdel:
            e(f's_cmp_ge_u32 s{RID}, {NPROD}')
            e('s_cbranch_scc1 L_nox2')
        opengate()
        e('L_nox2:')
    else:
        publish(0, 58, 'x2', True)
        e('L_nox:')
        opengate()
    hq.clear(); xi[0] = 0
    for _ in range(o.ein): eload()
    def hookP(j):
        if j == o.ydrow: ydma()
        if o.gdel and j == o.gdel - 2:
            e(f's_cmp_lt_u32 s{RID}, {NPROD}')
            e('s_cbranch_scc1 L_gd')
            opengate()
            e('L_gd:')
        if j == o.d0row and j >= 0:
            e(f's_cmp_lg_u32 s{XK}, 3')
            e('s_cbranch_scc1 L_yn1')
            keep = list(hq)
            for i in range(6): ystore(i, YA + i)
            hq[:] = keep
            e('L_yn1:')
        if o.d0row >= 0 and j == o.d0row + o.d0row2:
            e(f's_cmp_lg_u32 s{XK}, 3')
            e('s_cbranch_scc1 L_yn2')
            publish(0, 58, 'yn', True)
            e('L_yn2:')
        if o.ymid and j == o.ymid:
            e(f's_cmp_lg_u32 s{YT}, 1')
            e('s_cbranch_scc1 L_ym1')
            keep = list(hq)
            for i in range(6): ystore(i, YA + i)
            hq[:] = keep
            e('L_ym1:')
        if o.ymid and j == o.ymid + o.ymid2:
            e(f's_cmp_lg_u32 s{YT}, 1')
            e('s_cbranch_scc1 L_ym2')
            publish(16, 59, 'ym', False)
            if o.diag == 1: stamp(8)
            e(f's_mov_b32 s{YT}, 0')
            e('L_ym2:')
    rows(hookP)
    if o.apath:
        e('s_branch L_rowsdone')
        e('L_pathA:')
        if not o.d0p:
            e(f's_cmp_eq_u32 s{XK}, 3')
            e('s_cselect_b32 s47, 0, 0x80000000')
            for i in range(6): e(f'v_or_b32 v{20+i}, s47, v{YA+i}')
        hq.clear(); xi[0] = 0
        for _ in range(NL): eload()
        if not o.d0p:
            for i in range(6): ystore(i, 20 + i)
        def hookA(j):
            if j == o.grow + 1: ydma()
            if j == o.grow:
                e(f's_waitcnt vmcnt({len(hq)-1-hq.index(("e", NL-1))})')
                opengate()
            if j == o.xrow and not o.d0p:
                e(f's_cmp_lg_u32 s{XK}, 3')
                e('s_cbranch_scc1 L_xp')
                publish(0, 58, 'x3', True)
                e('L_xp:')
        rows(hookA)
    e('L_rowsdone:')
    e('s_waitcnt lgkmcnt(0)')
    stamp(7)
    e('v_mov_b32 v11, 1')
    e('s_mov_b64 exec, 1')
    e('ds_add_u32 v10, v11 offset:16')
    e('s_mov_b64 exec, -1')
    e(f's_cmp_eq_u32 s{YT}, 0')
    e('s_cbranch_scc1 L_noy')
    e(f's_setprio {o.yprio}')
    if o.yall:
        e('s_waitcnt vmcnt(0)')
        for tap in range(2):
            for half in range(2):
                e(f'ds_read_b64_tr_b16 {vr(28+4*tap+2*half,2)}, v62 offset:{1024*tap+512*half}')
    e('L_yw:')
    e('ds_read_b64 v[20:21], v10')
    e('s_waitcnt lgkmcnt(0)')
    e('v_lshrrev_b32 v21, 14, v21')
    e('v_and_b32 v21, -4, v21')
    e('v_or_b32 v20, v20, v21')
    e(f'v_cmp_le_u32 vcc, s{YT}, v20')
    e('s_nop 4')
    e('s_cbranch_vccnz L_yx')
    e('s_sleep 4')
    e('s_branch L_yw')
    e('L_yx:')
    jit()
    if o.yall:
        e(f'buffer_store_dwordx4 v[28:31], v60, {sr(S_WS)}, s68 offen {o.stf}')
        e(f'buffer_store_dwordx4 v[32:35], v61, {sr(S_WS)}, s69 offen {o.stf}')
    else:
      for i in range(6):
        ystore(i, YA + i)
        e(f's_waitcnt vmcnt({o.ythr})')
        if o.ysleep: e(f's_sleep {o.ysleep}')
    publish(16, 59, 'y', False)
    if o.diag == 1: stamp(8)
    e('L_noy:')
    e(f's_cmp_lg_u32 s{WAVE}, 4')
    e('s_cbranch_scc1 L_hend')
    e('L_guard:')
    e('ds_read_b32 v11, v10 offset:4')
    e('s_waitcnt lgkmcnt(0)')
    e('v_readfirstlane_b32 s46, v11')
    e('s_nop 3')
    e('s_cmp_eq_u32 s46, 4')
    e(f's_cbranch_scc1 {"L_wb" if o.wbat else "L_hend"}')
    e('s_cmp_lt_u32 s46, 0x10000')
    e('s_cbranch_scc0 L_rescue')
    e('s_sleep 16')
    e('s_branch L_guard')
    if o.wbat:
        e('L_wb:')
        e('s_lshr_b32 s46, s2, 3')
        e(f's_cmp_lg_u32 s46, 5')
        e('s_cbranch_scc1 L_hend')
        ldswait(0, 'eq', 4, 'w', 2)
        e('buffer_wbl2 sc1')
        e('s_waitcnt vmcnt(0)')
        e('s_branch L_hend')
    e('L_rescue:')
    e(f's_mov_b32 s{MODE}, 1')
    e(f's_mov_b32 s{HAS3}, 1')
    e(f's_mov_b32 s{NOTASK}, 0')
    e(f's_lshr_b32 s{TW0}, s{NB}, 1')
    e(f's_add_u32 s{TW1}, s{NB}, 9')
    e(f's_lshr_b32 s{TW1}, s{TW1}, 1')
    e(f's_mov_b32 s{PAIR}, 0')
    e('s_branch L_prod')
    e('L_hend:')
    if o.padto and o.padev[0] == 'h': padloop('h')
    if o.diag == 1:
        stamp(9)
        dump(10)
    e('L_end:')
    e('s_endpgm')
    if o.hfirst:
        m0, h0 = mark['main0'], mark['help0']
        e.L = e.L[:m0] + e.L[h0:] + ['.p2align 6'] + e.L[m0:h0]
    e('L_codeend:')
    e('.section .rodata,"a"')
    e('.p2align 6')
    e(f'.amdhsa_kernel {KN}')
    for x in ['next_free_vgpr 256', 'next_free_sgpr 102', 'accum_offset 256', 'group_segment_fixed_size 0', 'kernarg_size 40',
              'user_sgpr_count 2', 'user_sgpr_kernarg_segment_ptr 1', 'system_sgpr_workgroup_id_x 1']:
        e('  .amdhsa_' + x)
    e('.end_amdhsa_kernel')
    n = haz.check(e.L)
    if n: print(f'{n} hazards', file=sys.stderr)
    return f'; @launch grid=({NWG},1,1) block=(512,1,1) lds={LDS_BYTES}\n' + HEADER + e.text()

def opts(argv=None):
    ap = argparse.ArgumentParser()
    ap.add_argument('-o', default='k.s')
    for nm, d in [('diag', 0), ('pf', 16), ('pf0', 8), ('wgap', 4), ('wres', 4), ('wsc1', 0), ('nfill', 2), ('fstride', 128), ('sleep', 0), ('maxpoll', 3000), ('nopoll', 0),
                  ('hprio', 3), ('hprio2', 0), ('mprio', 2), ('epre', 0), ('ein', 4), ('dpre', 7), ('b0early', 0), ('mtouch', 4), ('gate', 1), ('swapab', 0), ('d0p', 1), ('map', 1), ('chain', 4), ('xdel', -4), ('xsn', 11), ('retry', 0), ('gdel', 0), ('padlo', 0), ('padhi', 252), ('d0row', 1), ('c2split', 1), ('d0row2', 1), ('split1', 0), ('ymid', 4), ('ymid2', 2), ('wbat', 0), ('jit', 0), ('apath', 0), ('rmap', 0), ('yall', 0), ('ydrow', 6), ('flat0', 1), ('flatzz', 0), ('tagp', 1), ('tpf', 5), ('xl', 1), ('p0plain', 0), ('onepoll', 0), ('epoll', 1), ('ppoll', 0), ('yprio', 3), ('ysleep', 0), ('vt', 94), ('tla', 40), ('tskip', 2), ('gearly', 1), ('chfrom', 8), ('oj', 9), ('nolds', 0), ('now', 0), ('wsame', 0), ('grow', 1), ('vbd', 33), ('nopk', 1), ('padto', 0), ('npdelay', 0), ('opre', 4), ('etouch', 0), ('orev', 1), ('b0late', 1), ('dec', 1), ('tail', 1), ('xla', 9), ('hold', 1), ('prest', 0), ('xslot', 0), ('noclosed', 0), ('cpf', 1), ('hfirst', 1), ('warmb', 1), ('wsfirst', 0), ('flead', 6), ('ythr', 6), ('xrow', 3), ('padstep', 33), ('probe', 0), ('probeoff', 0x4000000)]:
        ap.add_argument('--' + nm, type=int, default=d)
    ap.add_argument('--oflags', default='')
    ap.add_argument('--pmap', default='18,18,18,18,18,18,18,18')
    ap.add_argument('--padev', default='m0')
    ap.add_argument('--trig', default='10,25,40')
    ap.add_argument('--yrow', default='0,7,2,9,5,11')
    ap.add_argument('--pfcs', default='4,3,5,5,5')
    ap.add_argument('--fflags', default='')
    ap.add_argument('--fleads', default='6,5,6,6,6')
    ap.add_argument('--stf', default='sc1')
    ap.add_argument('--marks', default='0,4,8,12,16,24,33,47,58')
    o = ap.parse_args(argv)
    o.marks = [int(x) for x in o.marks.split(',')]
    o.yrow = [int(x) for x in o.yrow.split(',')]
    o.pfcs = [int(x) for x in o.pfcs.split(',')]
    o.fleads = [int(x) for x in o.fleads.split(',')]
    o.trig = [int(x) for x in o.trig.split(',')]
    return o

if __name__ == '__main__':
    o = opts()
    open(o.o, 'w').write(gen(o))
```

```python
import re, sys, argparse
import haz

KN = 'standalone__autoregressive_conv_wavernn__speech_kernel'
NWG = 252
NPROD = 144
ARR = 160 * 288
X_D0, X_O, X_D1 = 0, ARR, 2 * ARR
CNT = 3 * ARR
SCR = CNT + 64
LDS_BYTES = SCR + 18432
NSTEP = 106
WOFF = int(__import__('os').environ.get('WOFF', '0x100000'), 0)
NONCE = 0x10000
DIAG = 0x800000
WS_REC0 = 0x1000000
TAGINC = 0x9E3779B9
R = 12


HEADER = """; Gated dilated causal convolution, out = tanh(f) * sigmoid(g), h = [f g] = sum_i x[t + 2i - 60] w[i].
;
; A workgroup owns 144 output pairs x 16 output columns (f and g). Waves 0-3 run the matrix loop (two column tiles x
"""

class Em:
    def __init__(self): self.L = []
    def __call__(self, s): self.L.append(s)
    def text(self): return '\n'.join(self.L) + '\n'

def vr(a, n=1): return f'v{a}' if n == 1 else f'v[{a}:{a+n-1}]'
def sr(a, n=4): return f's[{a}:{a+n-1}]'

def streams():
    out = []
    for typ in (0, 1):
        S = []
        pid = [0]
        def add(arr, chunk, cs, acc):
            for c in cs: S.append((pid[0], arr, chunk, c, acc))
            pid[0] += 1
        if typ == 0:
            add('O', 0, range(16), 'P'); add('O', 1, range(16), 'P'); add('O', 'rem', range(0, 2), 'P')
            for q in range(4): add('D', q, range(16), 'Q')
            add('D', 'rem', range(8), 'Q')
        else:
            add('O', 2, range(16), 'P'); add('O', 3, range(16), 'P'); add('O', 'rem', range(2, 8), 'P')
            for q in range(4): add('D', q, range(15), 'Q')
            add('D', 'rem', range(8), 'Q')
        assert len(S) == NSTEP
        out.append(S)
    return out

S_X, S_W, S_WO, S_WS, S_OUT, S_DBG = 20, 24, 28, 32, 36, 40
WAVE, NB, BAT, PAR, MB, BOFF = 14, 15, 16, 17, 18, 19
PAIR0 = 3
XB = 52
MASK = 53
TW0, TW1, TW2, PAIR, HAS3, MODE, SCRB, TAG, LAST, NPOLL = 44, 45, 54, 55, 56, 57, 58, 59, 60, 61
TS = 62
TYP, WSO = 68, 69
EARLY, XK, YT, FIDX = 90, 91, 92, 93
NOTASK = 94
FO = 97
C2L, CNL, C60 = 90, 92, 94
ST0 = 70

def srd(e, d, ptr, rec, add=None):
    if add is None:
        e(f's_mov_b32 s{d}, s{ptr}')
        e(f's_and_b32 s{d+1}, s{ptr+1}, 0xffff')
    else:
        e(f's_add_u32 s{d}, s{ptr}, s{add}')
        e(f's_addc_u32 s{d+1}, s{ptr+1}, 0')
        e(f's_and_b32 s{d+1}, s{d+1}, 0xffff')
    e(f's_mov_b32 s{d+2}, {rec}')
    e(f's_mov_b32 s{d+3}, 0x20000')

def gen(o):
    e = Em()
    NSTR = 2 * NSTEP * 1024 + (65536 if o.tagp else 0)
    if o.tagp: o.epoll = 0
    NTASK = NPROD + (32 if o.yall else 96)
    WS_REC = min(WS_REC0, 0x10000000 - o.wsb)
    role = ['m']
    jn = [0]
    def jit():
        if not o.jit: return
        jn[0] += 1
        k = jn[0]
        e(f's_mul_i32 s98, s2, {37 + 2 * k + o.jit * 10}')
        e(f's_mul_i32 s99, s{WAVE}, {11 + 6 * k + o.jit}')
        e('s_add_u32 s98, s98, s99')
        e('s_bitcmp1_b32 s98, 3')
        e(f's_cbranch_scc1 L_jit{k}')
        e(f's_sleep {30 + (k * 17 + o.jit * 5) % 90}')
        e(f'L_jit{k}:')
    def padloop(tag):
        e(f'L_pad{tag}:')
        e('s_memrealtime s[98:99]')
        e('s_waitcnt lgkmcnt(0)')
        e('s_sub_u32 s98, s98, s100')
        e(f's_cmp_lt_u32 s98, {o.padto}')
        e(f's_cbranch_scc1 L_pad{tag}')
    def stamp(k, lvl=1):
        if o.padto and lvl == 1 and o.padev == f'{role[0]}{k}':
            jn[0] += 1
            e(f's_sub_u32 s98, s2, {o.padlo}')
            e(f's_cmp_ge_u32 s98, {o.padhi - o.padlo}')
            e(f's_cbranch_scc1 L_pf{jn[0]}')
            e('s_memrealtime s[100:101]'); e('s_waitcnt lgkmcnt(0)')
            e(f'L_pf{jn[0]}:')
        if o.diag == lvl or (o.diag == 4 and lvl == 1): e(f's_memrealtime s[{ST0+2*k}:{ST0+2*k+1}]')
    def dump(nst):
        e('s_waitcnt lgkmcnt(0)')
        e('v_mov_b32 v250, 0')
        for k in range(nst): e(f'v_writelane_b32 v250, s{ST0+2*k}, {k}')
        e(f'v_writelane_b32 v250, s{NPOLL}, 13')
        e(f'v_writelane_b32 v250, s95, 12')
        e(f'v_writelane_b32 v250, s{3 if o.rmap else 2}, 14')
        e('s_getreg_b32 s46, hwreg(HW_REG_XCC_ID)')
        e('v_writelane_b32 v250, s46, 15')
        e(f's_lshl_b32 s46, s2, 3'); e(f's_add_u32 s46, s46, s{WAVE}'); e('s_lshl_b32 s46, s46, 6'); e(f's_add_u32 s46, s46, {DIAG}')
        e('v_lshl_add_u32 v251, v1, 2, s46')
        e('s_mov_b64 exec, 0xffff')
        e(f'buffer_store_dword v250, v251, {sr(S_WS)}, 0 offen')
        e('s_mov_b64 exec, -1')

    e('.amdgcn_target "amdgcn-amd-amdhsa--gfx950"')
    e('.text')
    e(f'.globl {KN}')
    e('.p2align 8')
    e(f'.type {KN},@function')
    e(f'{KN}:')
    e(f's_cmp_ge_u32 s2, {NWG}')
    e('s_cbranch_scc1 L_end')
    stamp(0)
    if o.padto and o.padev != 'm0': e('s_memrealtime s[100:101]')
    e('s_load_dwordx4 s[4:7], s[0:1], 0')
    e('s_load_dwordx4 s[8:11], s[0:1], 16')
    e('s_load_dwordx2 s[12:13], s[0:1], 32')
    e('v_lshrrev_b32 v2, 6, v0')
    e('v_and_b32 v1, 63, v0')
    e(f'v_readfirstlane_b32 s{WAVE}, v2')
    def decode():
        e('s_and_b32 s44, s2, 7')
        e('s_lshr_b32 s45, s2, 3')
        e('s_mul_i32 s46, s44, 31')
        e('s_min_u32 s44, s44, 4')
        e('s_add_u32 s46, s46, s44')
        e('s_add_u32 s46, s46, s45')
        if o.map == 0:
            e('s_mul_hi_u32 s47, s46, 68174085')
            e('s_mul_i32 s48, s47, 63')
            e('s_sub_u32 s48, s46, s48')
            e(f's_mul_hi_u32 s{NB}, s48, 613566757')
            e(f's_mul_i32 s49, s{NB}, 7')
            e('s_sub_u32 s49, s48, s49')
            e('s_mul_i32 s47, s47, 7')
            e('s_add_u32 s47, s47, s49')
        elif o.map == 1:
            e('s_mul_hi_u32 s47, s46, 477218589')
            e('s_mul_i32 s48, s47, 9')
            e(f's_sub_u32 s{NB}, s46, s48')
        else:
            e('s_mul_hi_u32 s47, s46, 34087043')
            e('s_mul_i32 s48, s47, 126')
            e('s_sub_u32 s48, s46, s48')
            e(f's_mul_hi_u32 s{NB}, s48, 306783379')
            e(f's_mul_i32 s49, s{NB}, 14')
            e('s_sub_u32 s49, s48, s49')
            e('s_mul_i32 s47, s47, 14')
            e('s_add_u32 s47, s47, s49')
        e(f's_and_b32 s{PAR}, s47, 1')
        e('s_lshr_b32 s47, s47, 1')
        e('s_cmp_ge_u32 s47, 7')
        e(f's_cselect_b32 s{BOFF}, 1152000, 0')
        e('s_cselect_b32 s48, 7, 0')
        e(f's_sub_u32 s{MB}, s47, s48')
        e(f's_mul_i32 s{XB}, s{MB}, 576')
        e(f's_add_u32 s{XB}, s{XB}, s{PAR}')
        e(f's_sub_u32 s{XB}, s{XB}, 60')
        e(f's_mul_i32 s{XB}, s{XB}, 288')
    RID = 3 if o.rmap else 2
    if o.rmap:
        e('s_and_b32 s44, s2, 3')
        e('s_lshr_b32 s45, s2, 3')
        e('s_lshl2_add_u32 s3, s45, s44')
        e('s_and_b32 s44, s2, 4')
        e('s_lshl_b32 s44, s44, 5')
        e('s_add_u32 s3, s3, s44')
    e(f's_cmp_ge_u32 s{WAVE}, 4')
    e('s_cbranch_scc1 L_helper')
    if o.cpf:
        e('s_lshr_b32 s44, s2, 3')
        e(f's_lshl_b32 s45, s{WAVE}, 5')
        e('s_add_u32 s44, s44, s45')
        e('s_sub_u32 s44, s44, 26')
        e('s_cmp_ge_u32 s44, 5')
        e('s_cbranch_scc1 L_main')
        e('s_getpc_b64 s[46:47]')
        e('L_pc:')
        e('s_lshl_b32 s44, s44, 13')
        e('v_lshl_add_u32 v2, v1, 7, s44')
        e('v_min_u32 v2, L_codeend-L_pc-4, v2')
        e('global_load_dword v63, v2, s[46:47]')
    if o.hfirst: e('s_branch L_main')
    mark = {'main0': len(e.L)}
    e('L_main:')
    e(f's_mov_b32 s{MASK}, 0xffff0000')
    e(f's_mov_b32 s{NPOLL}, 0')
    if o.diag: e('s_mov_b32 s95, 0')
    decode()

    VXO, VXOR, VXD, VXDR, VWL, VEX, VEXP, VOUT = 30, 31, 32, 33, 34, 35, 36, 37
    VF = 40
    VA = 48
    VCL = 60
    e('v_mul_u32_u24 v3, 3641, v0')
    e('v_lshrrev_b32 v3, 16, v3')
    e('v_mul_u32_u24 v2, 18, v3')
    e('v_sub_u32 v2, v0, v2')
    e('v_mul_u32_u24 v3, 1152, v3')
    e('v_lshl_add_u32 v3, v2, 4, v3')
    e(f's_add_u32 s46, s{XB}, 576')
    e(f'v_add_u32 v{VA}, s46, v3')
    e('v_mov_b32 v5, 16192')
    e('v_mov_b32 v6, 17056')
    for k in range(1, 12):
        e('v_cmp_le_u32 vcc, 14, v2')
        e('v_add_u32 v3, 4, v2')
        e('v_subrev_u32 v4, 14, v2')
        e('v_cndmask_b32 v7, v5, v6, vcc')
        e('v_cndmask_b32 v2, v3, v4, vcc')
        e(f'v_add_u32 v{VA+k}, v{VA+k-1}, v7')
    e(f's_lshl_b32 s50, s{WAVE}, 10')
    e(f's_add_u32 s50, s50, {X_O}')
    e(f's_add_u32 s51, s50, {4096*11}')
    e('s_movk_i32 s49, 4096')
    if o.orev:
        e(f's_bitcmp0_b32 s{NB}, 0')
        e('s_cbranch_scc1 L_fwd')
        for k in range(5): e(f'v_swap_b32 v{VA+k}, v{VA+10-k}')
        e(f's_add_u32 s50, s50, {4096*10}')
        e('s_movk_i32 s49, -4096')
        e('L_fwd:')
    e(f'v_mov_b32 v{VF+1}, {CNT}')
    for r in range(4, 8): e(f'v_mov_b32 v{r}, 0')
    e(f'ds_write_b128 v{VF+1}, v[4:7]')
    e(f'ds_write_b128 v{VF+1}, v[4:7] offset:16')
    e('s_waitcnt lgkmcnt(0)')
    if o.wsb:
        e(f's_add_u32 s12, s12, {o.wsb}'); e('s_addc_u32 s13, s13, 0')
    e(f's_load_dword s{TAG}, s[12:13], {NONCE}')
    srd(e, S_X, 4, 1152000, add=BOFF)
    def odma(k):
        e(f's_mov_b32 m0, s{51 if k == 11 else 50}')
        e('s_add_u32 s50, s50, s49')
        e(f'buffer_load_dwordx4 v{VA+k}, {sr(S_X)}, 0 offen lds')
    def etouch():
        e(f'buffer_load_dword v62, v9, {sr(S_X)}, 0 offen')
    if o.mtouch and o.tskip:
        e(f's_lshr_b32 s47, s{RID}, 4')
        e('s_lshr_b32 s47, 0x33, s47')
        e('s_lshl_b32 s47, s47, 31')
    if o.mtouch:
        e('v_min_u32 v8, 39, v1')
        e('v_lshrrev_b32 v9, 2, v8')
        e(f's_mul_i32 s46, s{WAVE}, 10')
        e('v_add_u32 v9, s46, v9')
        e(f'v_mul_u32_u24 v9, {4*1152}, v9')
        e('v_and_b32 v8, 3, v8')
        e('v_mul_u32_u24 v8, 92, v8')
        e(f's_and_b32 s46, s{NB}, {7 if o.mtouch == 4 else 3}')
        e(f's_mul_i32 s46, s46, {576 if o.mtouch == 4 else 1152}')
        e(f's_add_u32 s46, s46, s{XB}')
        e('v_add3_u32 v9, v9, v8, s46')
        if o.tskip == 1: e('v_or_b32 v9, s47, v9')
    if o.mtouch == 4 and o.tskip == 2:
        e('s_cmp_eq_u32 s47, 0')
        e('s_cbranch_scc1 L_tn')
        e('s_waitcnt lgkmcnt(0)')
        e('L_tn:')
    if o.mtouch in (2, 4): etouch()
    if o.padto and o.padev == 'm13':
        e('s_waitcnt vmcnt(0)'); stamp(13)
    if o.padto and o.padev == 'm14':
        odma(0); e('s_sub_u32 s50, s50, s49'); e('s_waitcnt vmcnt(0)'); stamp(14)
    if o.padto: stamp(10)
    for k in range(o.opre): odma(k)
    e('s_barrier')
    stamp(1)
    jit()
    if o.mtouch == 3: etouch()
    for k in range(o.opre, 12):
        if k == 11:
            e(f's_cmp_lg_u32 s{WAVE}, 0')
            e('s_cbranch_scc1 L_o11')
        odma(k)
    e('L_o11:')
    if o.mtouch == 1: etouch()
    srd(e, S_WS, 12, WS_REC)
    if o.epoll:
        assert o.mtouch in (1, 4) and o.tskip
        e(f's_and_b32 s{TYP}, s{WAVE}, 1')
        e(f's_lshl_b32 s{FO}, s{TYP}, 13')
        e('s_mov_b32 s96, s47')
        e('s_xor_b32 s46, s47, 0x80000000')
        e(f'v_min_u32 v{VF}, 31, v1')
        e(f'v_lshlrev_b32 v{VF}, 7, v{VF}')
        e(f'v_or_b32 v2, s46, v{VF}')
        e(f'buffer_load_dword v{VF+4}, v2, {sr(S_WS)}, s{FO} offen sc1')
    srd(e, S_OUT, 8, 1152000, add=BOFF)
    srd(e, S_DBG, 10, 256)
    e('v_and_b32 v2, 15, v1')
    e('v_lshrrev_b32 v3, 4, v1')
    e('v_subrev_u32 v5, 4, v2')
    e('v_add_u32 v6, 8, v2')
    e('v_cmp_gt_u32 vcc, 4, v2')
    e('v_cmp_le_u32 s[46:47], 12, v2')
    e(f's_and_b32 s{TYP}, s{WAVE}, 1')
    e(f's_lshr_b32 s48, s{WAVE}, 1')
    e('v_cndmask_b32 v5, v5, v6, vcc')
    e('v_cndmask_b32 v5, v5, v2, s[46:47]')
    e('v_mul_u32_u24 v5, 9, v5')
    e('v_mul_u32_u24 v4, 288, v5')
    e('v_lshl_add_u32 v6, v3, 4, v4')
    e('v_and_b32 v7, 1, v3')
    e('v_lshl_add_u32 v7, v7, 4, v4')
    e('v_lshrrev_b32 v8, 1, v3')
    e('v_mul_u32_u24 v8, 2304, v8')
    e('v_add_u32 v7, v7, v8')
    e('v_add_u32 v7, 256, v7')
    e(f's_mul_i32 s49, s{TYP}, {X_D1}')
    e(f'v_add_u32 v{VXO}, {X_O}, v6')
    e(f'v_add_u32 v{VXOR}, {X_O}, v7')
    e(f'v_add_u32 v{VXD}, s49, v6')
    e(f'v_add_u32 v{VXDR}, s49, v7')
    e('v_lshlrev_b32 v6, 4, v1')
    e(f's_mul_i32 s49, s{WAVE}, 9216')
    e(f's_add_u32 s49, s49, {X_O}')
    e(f'v_add_u32 v{VEX}, s49, v6')
    e(f's_xor_b32 s49, s{WAVE}, 1')
    e('s_mul_i32 s49, s49, 9216')
    e(f's_add_u32 s49, s49, {X_O}')
    e(f'v_add_u32 v{VEXP}, s49, v6')
    e('v_and_b32 v8, 0x39, v1')
    e('v_bfe_u32 v9, v1, 1, 1')
    e('v_lshl_add_u32 v8, v9, 2, v8')
    e('v_bfe_u32 v9, v1, 2, 1')
    e('v_lshl_add_u32 v8, v9, 1, v8')
    e(f'v_lshlrev_b32 v{VWL}, 4, v8')
    e(f's_mul_i32 s49, s{TYP}, 576')
    e(f's_add_u32 s49, s49, s{XB}')
    e(f's_add_u32 s49, s49, {60*288}')
    e(f's_lshl_b32 s50, s{NB}, 5')
    e('s_add_u32 s49, s49, s50')
    e('s_lshl_b32 s50, s48, 4')
    e('s_add_u32 s49, s49, s50')
    e('v_mul_u32_u24 v8, 1152, v5')
    e('v_lshl_add_u32 v8, v3, 2, v8')
    e(f'v_add_u32 v{VOUT}, s49, v8')
    e(f'v_add_u32 v{VOUT+1}, 3456, v{VOUT}')
    e(f'v_add_u32 v{VOUT+2}, 6912, v{VOUT}')
    e(f's_lshl_b32 s49, s{NB}, 1')
    e('s_add_u32 s49, s49, s48')
    e(f's_mul_i32 s49, s49, {NSTR}')
    e(f's_mul_i32 s{WSO}, s{TYP}, {NSTEP*1024}')
    e(f's_add_u32 s{WSO}, s{WSO}, s49')
    e(f's_add_u32 s{WSO}, s{WSO}, {WOFF + (16384 if o.tagp else 0)}')
    if o.tagp:
        e(f's_lshl_b32 s96, s{TYP}, 15')
        e('s_add_u32 s96, s96, s49')
        e(f's_add_u32 s96, s96, {WOFF + 2*NSTEP*1024}')
    e(f's_mov_b32 s{C2L}, 0x4038aa3b'); e(f's_mov_b32 s{C2L+1}, 0x4038aa3b')
    e(f's_mov_b32 s{CNL}, 0xbfb8aa3b'); e(f's_mov_b32 s{CNL+1}, 0xbfb8aa3b')
    e(f's_mov_b32 s{C60}, 0x42700000')
    e(f'v_min_u32 v{VF}, 31, v1')
    e(f'v_lshlrev_b32 v{VF}, 7, v{VF}')
    e(f'v_min_u32 v{VF+6}, 47, v1')
    e(f'v_lshlrev_b32 v{VF+6}, 7, v{VF+6}')
    e(f'v_mov_b32 v{VF+2}, 1')
    e('s_lshl_b32 s46, s48, 2')
    e(f'v_add_u32 v{VF+5}, s46, v{VF+1}')
    e(f's_or_b32 s46, s2, s{WAVE}')
    e('v_or_b32 v2, s46, v1')
    e('v_cmp_eq_u32 vcc, 0, v2')
    e(f'v_mov_b32 v{VCL}, -16')
    e(f'v_mov_b32 v{VCL+1}, -16')
    e(f'v_mov_b32 v3, {NONCE}')
    e(f'v_cndmask_b32 v{VCL}, v{VCL}, 4, vcc')
    e(f'v_cndmask_b32 v{VCL+1}, v{VCL+1}, v3, vcc')
    if o.yall:
        e(f's_lshr_b32 s46, s{NB}, 1')
        e(f's_add_u32 s47, s{NB}, 9')
        e('s_lshr_b32 s47, s47, 1')
        e('v_mov_b32 v4, s46')
        e('v_mov_b32 v5, s47')
        e('v_cmp_gt_u32 vcc, 32, v1')
        e('v_and_b32 v2, 7, v1')
        e('v_and_b32 v3, 15, v1')
        e('v_cndmask_b32 v4, v5, v4, vcc')
        e('v_min_u32 v3, 11, v3')
        e('v_mad_u32_u24 v2, v2, 9, v4')
        e('v_mad_u32_u24 v3, v3, 9, v4')
        e('v_lshlrev_b32 v2, 7, v2')
        e('v_lshlrev_b32 v3, 7, v3')
    e(f's_lshl_b32 s{FO}, s{TYP}, 13')
    if o.warmb:
        e(f's_cmp_eq_u32 s{TYP}, 1')
        e('s_cbranch_scc1 L_warmB')
        e('L_warmret:')
    if o.xdel < 0:
        e(f's_waitcnt vmcnt({o.xsn})')
        e(f'v_mov_b32 v{VF+7}, 0x10000')
        e('s_mov_b64 exec, 1')
        e(f'ds_add_u32 v{VF+1}, v{VF+7} offset:8')
        e('s_mov_b64 exec, -1')
    e(f's_waitcnt vmcnt({(1 if o.mtouch == 1 else 0) + o.epoll}) lgkmcnt(0)')
    stamp(2)
    if o.padto and o.padev in ('m11', 'm12'):
        e(f's_lshr_b32 s46, s{RID}, 4')
        e('s_lshr_b32 s46, 0x33, s46')
        e('s_bitcmp1_b32 s46, 0')
        e(f's_cbranch_scc{1 if o.padev == "m11" else 0} L_pk')
        e('s_memrealtime s[100:101]'); e('s_waitcnt lgkmcnt(0)')
        e('L_pk:')
    e('s_mov_b64 exec, 1')
    e(f'ds_add_u32 v{VF+1}, v{VF+2} offset:8')
    e('s_mov_b64 exec, -1')
    e(f's_add_u32 s{TAG}, s{TAG}, {TAGINC}')
    e(f'v_mov_b32 v{VF+3}, s{TAG}')
    def flagwait(tag, vaddr, back):
        e(f'L_fw{tag}:')
        if o.diag and len(tag) == 2: e(f's_add_u32 s95, s95, {1 << (4 * int(tag[1]))}')
        e(f'buffer_load_dword v{VF+4}, v{vaddr}, {sr(S_WS)}, s{FO} offen sc1')
        e(f'ds_read_b32 v{VF+7}, v{VF+1} offset:12')
        e(f's_add_u32 s{NPOLL}, s{NPOLL}, 1')
        e('s_waitcnt vmcnt(0) lgkmcnt(0)')
        e(f'v_cmp_ne_u32 vcc, v{VF+3}, v{VF+4}')
        e(f'v_readfirstlane_b32 s46, v{VF+7}')
        e('s_nop 3')
        e(f's_cbranch_vccz {back}')
        e('s_cmp_lg_u32 s46, 0')
        e(f's_cbranch_scc1 {back}')
        e(f's_cmp_lg_u32 s{NPOLL}, {o.maxpoll}')
        e(f's_cbranch_scc1 L_fw{tag}')
        e(f'v_mov_b32 v{VF+7}, 0x10000')
        e('s_mov_b64 exec, 1')
        e(f'ds_add_u32 v{VF+1}, v{VF+7} offset:4')
        e('s_mov_b64 exec, -1')
        e(f's_branch L_fw{tag}')
    if o.epoll:
        e('s_cmp_eq_u32 s96, 0')
        e('s_cbranch_scc1 L_gate')
        e('s_waitcnt vmcnt(0)')
        e(f'v_cmp_ne_u32 vcc, v{VF+3}, v{VF+4}')
        e('s_nop 4')
        e('s_cbranch_vccz L_go')
    if o.gate:
        e('L_gate:')
        e(f'ds_read_b32 v{VF+4}, v{VF+1} offset:8')
        e('s_waitcnt lgkmcnt(0)')
        e(f'v_and_b32 v{VF+4}, 0xffff, v{VF+4}')
        e(f'v_cmp_gt_u32 vcc, 0x400, v{VF+4}')
        e('s_nop 4')
        e('s_cbranch_vccz L_gate2')
        e('s_sleep 1')
        e('s_branch L_gate')
        e('L_gate2:')
    if o.ppoll:
        e(f'buffer_load_dword v{VF+4}, v{VF}, {sr(S_WS)}, s{FO} offen sc1')
        e('L_pp:')
        for a_, b_ in ((VF + 4, 62), (62, VF + 4)):
            e(f's_sleep {o.ppoll}')
            e(f'buffer_load_dword v{b_}, v{VF}, {sr(S_WS)}, s{FO} offen sc1')
            e('s_waitcnt vmcnt(1)')
            e(f'v_cmp_ne_u32 vcc, v{VF+3}, v{a_}')
            e(f's_add_u32 s{NPOLL}, s{NPOLL}, 1')
            e('s_nop 3')
            e('s_cbranch_vccz L_go')
        e(f's_cmp_lt_u32 s{NPOLL}, 40')
        e('s_cbranch_scc1 L_pp')
        e(f's_mov_b32 s{NPOLL}, 0')
    if o.p0plain:
        e(f'buffer_load_dword v{VF+4}, v{VF}, {sr(S_WS)}, s{FO} offen')
        e('s_waitcnt vmcnt(0)')
        e(f'v_cmp_ne_u32 vcc, v{VF+3}, v{VF+4}')
        e('s_nop 4')
        e('s_cbranch_vccz L_go')
    if o.onepoll:
        e(f's_cmp_lt_u32 s{WAVE}, 2')
        e('s_cbranch_scc1 L_fw0')
        e('L_op:')
        e(f'ds_read_b32 v{VF+7}, v{VF+1} offset:8')
        e('s_waitcnt lgkmcnt(0)')
        e(f's_add_u32 s46, s{TYP}, 16')
        e(f'v_lshrrev_b32 v{VF+7}, s46, v{VF+7}')
        e(f'v_and_b32 v{VF+7}, 1, v{VF+7}')
        e(f'v_cmp_eq_u32 vcc, 0, v{VF+7}')
        e('s_nop 4')
        e('s_cbranch_vccnz L_op')
        e('s_branch L_go2')
    if not o.tagp: flagwait('0', VF, 'L_go')
    e('L_go:')
    jit()
    if o.tagp: e('s_mov_b32 s50, s96')
    if o.onepoll:
        e(f's_lshl_b32 s46, 0x10000, s{TYP}')
        e(f'v_mov_b32 v{VF+7}, s46')
        e('s_mov_b64 exec, 1')
        e(f'ds_or_b32 v{VF+1}, v{VF+7} offset:8')
        e('s_mov_b64 exec, -1')
        e('L_go2:')
    stamp(3)
    e('L_gw:')
    e(f'ds_read_b32 v{VF+7}, v{VF+1} offset:8')
    e('s_waitcnt lgkmcnt(0)')
    e(f'v_and_b32 v{VF+7}, 0xff, v{VF+7}')
    e(f'v_cmp_ne_u32 vcc, 4, v{VF+7}')
    e('s_nop 4')
    e('s_cbranch_vccnz L_gw')
    stamp(4)
    e(f's_setprio {o.mprio}')
    e(f's_cmp_eq_u32 s{TYP}, 1')
    e('s_cbranch_scc1 L_typeB')

    ACC = {'P': 64, 'Q': 100}
    WR, TMP = 136, 224
    XRING = [200 + 4 * i for i in range(6)]
    XWIN = [4 + 4 * i for i in range(6)] + [240 + 4 * i for i in range(4)]
    VC = 28
    PF = o.pf
    GT = 98
    wflags = {0: '', 1: ' sc1', 2: ' nt', 3: ' sc0'}[o.wsc1]
    for typ, S in enumerate(streams()):
        if typ == 1:
            e('.p2align 6')
            if o.warmb: e('L_warmB:'); e('s_branch L_warmret')
            e('L_typeB:')
        ops = []
        vstart = {}
        lastv = o.vt - 1
        v0 = 0
        G0 = 0
        if o.flat0:
            for g in range(16):
                vstart[g] = len(ops)
                for j in (range(9) if g % 2 == 0 or not o.flatzz else range(8, -1, -1)): ops.append((g, j))
            v0 = G0 = 16
        while v0 <= lastv:
            ch = 1 if v0 < o.chfrom + G0 else min(o.chain, lastv + 1 - v0)
            n0 = len(ops)
            for j in range(8, -1, -1):
                us = range(ch) if j % 2 == 0 else range(ch - 1, -1, -1)
                first_ = [u for u in us if v0 + u - j == 0 or (0 < v0 + u - j < NSTEP and S[v0+u-j][4] == 'Q' and S[v0+u-j-1][4] == 'P')]
                if first_: us = range(ch)
                for u in us:
                    if G0 <= v0 + u - j < NSTEP: ops.append((v0 + u - j, j))
            for u in range(ch): vstart[v0 + u] = n0 + (len(ops) - n0) * u // ch
            v0 += ch
        ntail = len(ops)
        if o.tail:
            for j in range(9):
                for g in range(o.vt - j, NSTEP): ops.append((g, j))
        assert len(ops) == NSTEP * 9 and len(set(ops)) == len(ops)
        N = len(ops)
        def key(n):
            g, j = ops[n]
            pid, arr, ch, c, acc = S[g]
            k = (pid, arr, ch, c + j)
            if n >= ntail and g < GT: k = k + ((n,) if not o.hold else ('h',))
            return k
        first, last = {}, {}
        for n in range(N):
            first.setdefault(key(n), n); last[key(n)] = n
        wfirst, wlast = {}, {}
        for n, (g, j) in enumerate(ops):
            wfirst.setdefault(g, n); wlast[g] = n
        tasks = []
        for k, n0 in first.items():
            win = o.tail and k[2] == 'rem' and k[1] == 'D'
            la = o.xla if n0 < ntail else 6
            if n0 >= ntail and ops[n0][1] == 0: la = o.tla
            elif win: la = 12
            tasks.append([n0 - la, n0 - 1, 'X', k])
        for g in range(NSTEP):
            rel = -100 + g if g < o.pf0 else max(0, wfirst[g] - 9 * PF)
            if o.tagp and g < 16:
                rel = -100 + g if g < 4 else max(0, wfirst[g] - 9 * o.tpf)
                tasks.append([rel, wfirst[g & ~1] - 9, 'W', g])
                continue
            tasks.append([rel, wfirst[g] - 1, 'W', g])
        def at(v, off=0): return vstart[v] + off
        firstD = min(n for n in range(N) if S[ops[n][0]][1] == 'D')
        lastO = max(n for n in range(N) if S[ops[n][0]][1] == 'O')
        lastP = {j: max(n for n in range(N) if ops[n][1] == j and S[ops[n][0]][4] == 'P') for j in range(9)}
        slow = []
        vused = set()
        def check(v, off, cnt, tag):
            tasks.append([at(v - 1, 3), at(v - 1, 8), 'L', (f'ds_read_b32 v{VC}, v{VF+1} offset:{off}', ('c', tag))])
            tasks.append([at(v, 0), at(v, 1), 'C', (f'v_cmp_ne_u32 vcc, {cnt}, v{VC}', ('c', tag))])
            tasks.append([at(v, 6), at(v, 7), 'I', [f's_cbranch_vccnz L_slow{typ}{tag}', f'L_back{typ}{tag}:']])
            slow.append((tag, off, cnt))
            vused.add(v)
            return at(v, 8)
        def add1(pos, off):
            tasks.append([pos, pos + 4, 'A', off])
        vD = [v for v in vstart if vstart[v] <= firstD - o.xla][-1] - 1
        okD = check(vD, 16, 4, 'D')
        assert okD <= firstD - o.xla
        add1(lastO, 20)
        VP = 47
        okR = check(VP, 20, 4, 'R')
        for j in range(9):
            assert lastP[j] + 12 < at(VP + 1 + j, 2)
            tasks.append([at(VP + 1 + j, 2), at(VP + 1 + j, 8), 'L', (f'ds_write_b128 v{VEX}, {vr(ACC["P"]+4*j,4)} offset:{1024*j}', ('pw', j))])
        tasks.append([at(VP + 10, 0), at(VP + 10, 4), 'A', 'pair'])
        VQ = VP + 13
        okP = check(VQ, 'pair', 2, 'P')
        for j in range(9):
            tasks.append([at(VQ + 1 + j, 2), at(VQ + 1 + j, 8), 'L', (f'ds_read_b128 {vr(TMP+4*(j&1),4)}, v{VEXP} offset:{1024*j}', ('pr', j))])
            v = VQ + 2 + j
            pos = at(v, 8 - (j + 2) - 1) if j <= 6 else at(v, 8 - (j - 7) - 1)
            sh = 1 if j >= 7 else 0
            if o.chain > 1:
                own = [n for n in range(N) if ops[n][1] == j]
                pos = [a_ + 10 for a_, b_ in zip(own, own[1:]) if b_ - a_ >= 14 and a_ + 9 >= at(v, 0) ][0]
                sh = 0
                tasks[-1][0] = pos - 9; tasks[-1][1] = pos - 4
                tasks[-1][3] = (f'ds_read_b128 {vr(TMP+4*(j&3),4)}, v{VEXP} offset:{1024*j}', ('pr', j))
            tasks.append([pos - 1 + sh, pos - 1 + sh, 'Q', (j, 0)])
            tasks.append([pos + sh, pos + sh, 'Q', (j, 1)])
        if typ == 0:
            tasks.append([at(64, 4), at(64, 8), 'S', f'buffer_store_dword v{VCL+1}, v{VCL}, {sr(S_DBG)}, 0 offen sc1'])
            tasks.append([at(84, 4), at(84, 8), 'S', f'buffer_store_dword v{VF+3}, v{VCL+1}, {sr(S_WS)}, 0 offen sc1'])
        fslow = []
        kslow = []
        if o.tagp:
            for g in range(0, 16, 2):
                n0 = wfirst[g]
                if g < 4: continue
                tasks.append([n0 - 8, n0 - 7, 'K', g])
                tasks.append([n0 - 2, n0 - 1, 'I', ['s_cmp_lg_u64 s[48:49], 0', f's_cbranch_scc1 L_ks{typ}{g}', f'L_kb{typ}{g}:']])
        passes = {}
        for g in range(NSTEP): passes.setdefault(S[g][0], g)
        need = [(passes[1], VF, 32 + 64 * typ), (32, VF + 6, 128), (passes[4], VF, 176), (passes[5], VF, 208), (passes[6], VF + 6, 240)]
        if o.c2split:
            need[1:2] = [(32, VF, 112), (passes[3], VF, 144)]
            o.pfcs6 = [o.pfcs[0], 10] + o.pfcs[1:]; o.fleads6 = [o.fleads[0], 8] + o.fleads[1:]
        else:
            o.pfcs6 = o.pfcs; o.fleads6 = o.fleads
        if o.yall: need[2:] = [(passes[4], 2, 176), (passes[5], 2, 176 + 72), (passes[6], 3, 176 + 144)]
        lastG = -1
        for ci, (gn, va, idx) in enumerate(need):
            v = gn - o.pfcs6[ci] - 1
            while v in vused: v -= 1
            tasks.append([at(v - o.fleads6[ci], 4), at(v - o.fleads6[ci], 8), 'F', (va, idx, ci)])
            tasks.append([at(v, 0), at(v, 1), 'G', ci])
            tasks.append([at(v, 6), at(v, 7), 'I', [f's_cbranch_vccnz L_fw{typ}{ci}', f'L_fb{typ}{ci}:']])
            fslow.append((ci, va))
            assert v not in vused, v
            vused.add(v)
            assert at(v - o.fleads6[ci], 4) > lastG, (ci, v)
            lastG = at(v, 7)
            for t in tasks:
                if t[2] == 'W' and (t[3] >= gn): t[0] = max(t[0], at(v, 8))
        tasks.append([at(v + 1, 2), at(v + 1, 8), 'A', 4])
        if typ == 0:
            for lvl, v in enumerate(o.trig): tasks.append([at(v, 2), at(v, 8), 'P', lvl + 1])
            if o.wbat: tasks.append([ntail + o.wbat, ntail + o.wbat + 6, 'P', 4])
        tasks.sort(key=lambda t: (t[0], t[1]))
        vq, lq = [], []
        dirty = [False]
        xreg, busy = {}, {}
        wn = [0]
        wr = {}
        lastw = [-100]
        later = []
        BIG = [WR + 4 * i for i in range(16)] + XWIN + [ACC['P'] + 4 * i for i in range(9)]
        for i in range(9): busy[ACC['P'] + 4 * i] = at(VP + 12)
        until = {}
        if o.chain > 1:
            BIG += XRING + [VA, VA + 4, VA + 8]
            for i in range(9):
                BIG.append(ACC['Q'] + 4 * i)
                until[ACC['Q'] + 4 * i] = min(n for n in range(N) if ops[n][1] == i and S[ops[n][0]][4] == 'Q') - 3
        def freeregs(n, end): return [x for x in BIG if busy.get(x, -1) <= n and end < until.get(x, 10**9)]
        def freepairs(n, end):
            f_ = set(freeregs(n, end))
            return [x for x in sorted(f_) if x % 8 == PAR8.get(x, -1) and x + 4 in f_]
        PAR8 = {x: x % 8 for x in list(range(WR, WR + 64, 8)) + [4, 12, 20, 240, 248, 200, 208, 216, 100, 108, 116, 124, VA]}
        def kcheck(g):
            vwait(g + 1)
            for i, gg in enumerate((g, g + 1)):
                a_ = wr[gg] - 2
                em(f'v_bitop3_b32 v{VC+i}, v{a_+1}, v{a_+6}, v{VF+3} bitop3:0x7e')
            em(f'v_or_b32 v{VC}, v{VC}, v{VC+1}')
            em(f'v_cmp_ne_u32 s[48:49], 0, v{VC}')
            kslow.append((g, wr[g] - 2, wr[g + 1] - 2))
        def wok(t, n):
            if t[2] != 'W': return True
            if t[3] != wn[0]: return False
            if o.tagp and t[3] < 16:
                return bool(freepairs(n, wlast[t[3]])) and (n - lastw[0] >= 2 or t[1] - n <= 4)
            free = len(freeregs(n, wlast[t[3]]))
            if t[1] - n <= 9 * 3: return free > 0
            return n - lastw[0] >= o.wgap and free > o.wres
        since = {}
        fill = []
        def em(x):
            e(x)
            if not x.endswith(':'):
                for jj in since: since[jj] += 1
        def lwait(tag):
            if tag not in lq: return
            i = lq.index(tag)
            em(f's_waitcnt lgkmcnt({0 if dirty[0] else len(lq)-1-i})')
            if dirty[0]: lq.clear(); dirty[0] = False
            else: del lq[:i + 1]
        def vwait(g):
            if g not in vq: return
            i = vq.index(g)
            em(f's_waitcnt vmcnt({len(vq)-1-i})')
            del vq[:i + 1]
        def run(t, n):
            kind, p = t[2], t[3]
            if kind == 'X':
                pool = BIG if (o.chain > 1 or p[-1] == 'h' or (p[2] == 'rem' and p[1] == 'D')) else XRING
                r = [x for x in pool if busy.get(x, -1) <= n and last[p] < until.get(x, 10**9)]
                assert r, ('no x register', p, n)
                r = min(r, key=lambda x: (until.get(x, 10**9), busy.get(x, -1)))
                busy[r] = last[p]; xreg[p] = r
                arr, ch, s_ = p[1], p[2], p[3]
                if o.nolds and n > 9 * 30: return
                if ch == 'rem': em(f'ds_read_b128 {vr(r,4)}, v{VXOR if arr == "O" else VXDR} offset:{288*s_}')
                else: em(f'ds_read_b128 {vr(r,4)}, v{VXO if arr == "O" else VXD} offset:{64*ch+288*s_}')
                lq.append(p)
            elif kind == 'W':
                g = p
                if o.tagp and g < 16:
                    r = min(freepairs(n, wlast[g]), key=lambda x: (until.get(x, 10**9), busy.get(x, -1)))
                    busy[r] = busy[r + 4] = wlast[g]; wr[g] = r + 2
                    assert g == wn[0]; wn[0] += 1
                    lastw[0] = n
                    em(f'buffer_load_dwordx4 {vr(r,4)}, v{VWL}, {sr(S_WS)}, s50 offen offset:{2048*(g%2)}')
                    em(f'buffer_load_dwordx4 {vr(r+4,4)}, v{VWL}, {sr(S_WS)}, s50 offen offset:{2048*(g%2)+1024}')
                    vq.append(('h', g)); vq.append(g)
                    if g % 2 == 1:
                        if n < 0: em('s_add_u32 s50, s50, 4096')
                        else: later.append('s_add_u32 s50, s50, 4096')
                    return
                r = min(freeregs(n, wlast[g]), key=lambda x: (until.get(x, 10**9), busy.get(x, -1)))
                busy[r] = wlast[g]; wr[g] = r
                assert g == wn[0]; wn[0] += 1
                lastw[0] = n
                if o.now and g > 40: return
                if o.wsame and g > 40:
                    em(f'buffer_load_dwordx4 {vr(r,4)}, v{VWL}, {sr(S_WS)}, s{WSO} offen offset:{1024*(g%4)}{wflags}'); vq.append(g); return
                em(f'buffer_load_dwordx4 {vr(r,4)}, v{VWL}, {sr(S_WS)}, s{WSO} offen offset:{1024*(g%4)}{wflags}')
                if g % 4 == 3:
                    if n < 0: em(f's_add_u32 s{WSO}, s{WSO}, 4096')
                    else: later.append(f's_add_u32 s{WSO}, s{WSO}, 4096')
                vq.append(g)
            elif kind == 'L':
                em(p[0].replace('offset:pair', 'offset:24').replace(f'v{VF+1} offset:24', f'v{VF+5} offset:24')); lq.append(p[1])
            elif kind == 'C':
                lwait(p[1]); em(p[0])
            elif kind == 'I':
                for x in p: em(x)
            elif kind == 'A':
                em('s_mov_b64 exec, 1')
                if p == 'pair': em(f'ds_add_u32 v{VF+5}, v{VF+2} offset:24')
                else: em(f'ds_add_u32 v{VF+1}, v{VF+2} offset:{p}')
                em('s_mov_b64 exec, -1')
                lq.append(('a', p))
            elif kind == 'Q':
                p, hf = p
                lwait(('pr', p))
                q = ACC['Q'] + 4 * p; t_ = TMP + 4 * (p & (3 if o.chain > 1 else 1))
                for i in (2 * hf, 2 * hf + 1): em(f'v_add_f32 v{q+i}, v{q+i}, v{t_+i}')
            elif kind == 'S':
                assert not any(isinstance(x, tuple) and x[0] == 's' for x in vq)
                em(p); vq.append(('s', n))
            elif kind == 'F':
                em(f's_mov_b32 s{FO}, {128*p[1]}')
                em(f'buffer_load_dword v{VF+4}, v{p[0]}, {sr(S_WS)}, s{FO} offen {o.fflags}'); vq.append(('f', p[2]))
            elif kind == 'K':
                kcheck(p)
            elif kind == 'G':
                vwait(('f', p)); em(f'v_cmp_ne_u32 vcc, v{VF+3}, v{VF+4}')
            elif kind == 'P':
                em(f'v_mov_b32 v{VF+7}, {p}')
                em('s_mov_b64 exec, 1')
                em(f'ds_max_u32 v{VF+1}, v{VF+7}')
                em('s_mov_b64 exec, -1')
                lq.append(('p', p))
        def epi(j, pk):
            q = ACC['Q'] + 4 * j
            t = TMP + 8 * (j & 1)
            I = []
            if pk:
                I.append(f'v_pk_mul_f32 {vr(t,2)}, {vr(q,2)}, s[{C2L}:{C2L+1}]')
                I.append(f'v_pk_mul_f32 {vr(t+2,2)}, {vr(q+2,2)}, s[{CNL}:{CNL+1}]')
            else:
                for i in (0, 1): I.append(f'v_mul_f32 v{t+i}, s{C2L}, v{q+i}')
                for i in (2, 3): I.append(f'v_mul_f32 v{t+i}, s{CNL}, v{q+i}')
            I.append(f'v_min_f32 v{t}, s{C60}, v{t}')
            I.append(f'v_min_f32 v{t+1}, s{C60}, v{t+1}')
            for i in (0, 1, 2, 3): I.append(f'v_exp_f32 v{t+i}, v{t+i}')
            if pk:
                I.append(f'v_pk_add_f32 {vr(t+4,2)}, {vr(t,2)}, 1.0 op_sel_hi:[1,0]')
                I.append(f'v_pk_add_f32 {vr(t+6,2)}, {vr(t,2)}, -1.0 op_sel_hi:[1,0]')
                I.append(f'v_pk_fma_f32 {vr(t+4,2)}, {vr(t+4,2)}, {vr(t+2,2)}, {vr(t+4,2)}')
            else:
                for i in (0, 1): I.append(f'v_add_f32 v{t+4+i}, 1.0, v{t+i}')
                for i in (0, 1): I.append(f'v_fma_f32 v{t+4+i}, v{t+4+i}, v{t+2+i}, v{t+4+i}')
            I.append(f'v_rcp_f32 v{t+4}, v{t+4}')
            I.append(f'v_rcp_f32 v{t+5}, v{t+5}')
            if pk:
                I.append('s_nop 0')
                I.append(f'v_pk_mul_f32 {vr(t+6,2)}, {vr(t+6,2)}, {vr(t+4,2)}')
            else:
                for i in (0, 1): I.append(f'v_add_f32 v{t+6+i}, -1.0, v{t+i}')
                for i in (0, 1): I.append(f'v_mul_f32 v{t+6+i}, v{t+6+i}, v{t+4+i}')
            I.append(f'v_cvt_pk_bf16_f32 v{q}, v{t+6}, v{t+7}')
            I.append(f'buffer_store_dword v{q}, v{VOUT + j//3}, {sr(S_OUT)}, 0 offen offset:{1152*(j%3)} {o.oflags if j < o.oj else ""}')
            return I
        def cost(x): return 2 if x.startswith(('v_exp', 'v_rcp', 'buffer')) else 1
        while tasks and tasks[0][0] < 0: run(tasks.pop(0), -1)
        if o.tagp and o.retry:
            vwait(3)
            for g in range(4):
                em(f'v_bitop3_b32 v{TMP+g}, v{wr[g]-1}, v{wr[g]+4}, v{VF+3} bitop3:0x7e')
            em(f'v_or3_b32 v{TMP}, v{TMP}, v{TMP+1}, v{TMP+2}')
            em(f'v_or_b32 v{TMP}, v{TMP}, v{TMP+3}')
            em(f'v_cmp_ne_u32 s[48:49], 0, v{TMP}')
            em('s_nop 2')
            em('s_cmp_lg_u64 s[48:49], 0')
            em(f's_cbranch_scc1 L_rt{typ}')
            em(f'L_rb{typ}:')
            first4 = [wr[g] - 2 for g in range(4)]
        elif o.tagp:
            for g in (0, 2):
                vwait(g + 1)
                for gg in (g + 4, g + 5):
                    t_ = [t for t in tasks if t[2] == 'W' and t[3] == gg][0]
                    tasks.remove(t_); run(t_, -1)
                kcheck(g)
                em('s_nop 2')
                em('s_cmp_lg_u64 s[48:49], 0')
                em(f's_cbranch_scc1 L_ks{typ}{g}')
                em(f'L_kb{typ}{g}:')
        inv = {n: v for v, n in vstart.items()}
        lastop = {j: max(n for n in range(N) if ops[n][1] == j) for j in range(9)}
        for n, (g, j) in enumerate(ops):
            if n in inv and o.padto and o.padev == 'm5' and inv[n] == o.padstep:
                e(f's_sub_u32 s98, s2, {o.padlo}')
                e(f's_cmp_ge_u32 s98, {o.padhi - o.padlo}')
                e(f's_cbranch_scc1 L_pr{typ}')
                e('s_memrealtime s[100:101]'); dirty[0] = True
                e(f'L_pr{typ}:')
            if n in inv and o.diag:
                v = inv[n]
                if o.diag == 2 and v in o.marks:
                    kk = o.marks.index(v)
                    e(f's_memtime s[{ST0+2*kk}:{ST0+2*kk+1}]'); dirty[0] = True
                if o.diag in (1, 4) and v == 33: stamp(5); stamp(6); dirty[0] = True
            if o.jit and n in inv and inv[n] in (20, 36, 44, 52, 60, 70, 90): jit()
            k = key(n)
            assert k in xreg, (k, n)
            lwait(k); vwait(g)
            acc = S[g][4]
            d = ACC[acc] + 4 * j
            if g == 0: cs = '0'
            elif acc == 'Q' and S[g-1][4] == 'P': cs = vr(ACC['P'] + 4 * j, 4)
            else: cs = vr(d, 4)
            em(f'v_mfma_f32_16x16x32_bf16 {vr(d,4)}, {vr(wr[g],4)}, {vr(xreg[k],4)}, {cs}' if not o.swapab else f'v_mfma_f32_16x16x32_bf16 {vr(d,4)}, {vr(xreg[k],4)}, {vr(wr[g],4)}, {cs}')
            if n == lastop[j]: since[j] = 0
            while later: em(later.pop(0))
            budget = 2
            TC = {'X': 1, 'W': 2, 'L': 2, 'C': 1, 'I': 0, 'A': 1, 'Q': 2, 'S': 2, 'F': 2, 'G': 1, 'P': 2, 'K': 2}
            while True:
                ready = [t for t in tasks if t[0] <= n and wok(t, n)]
                if not ready: break
                t = min(ready, key=lambda t: t[1])
                assert t[1] >= n, ('late', t, n)
                if TC[t[2]] > budget and t[1] > n:
                    fit = [u for u in ready if TC[u[2]] <= budget]
                    if not fit: break
                    t = min(fit, key=lambda t: t[1])
                tasks.remove(t); run(t, n); budget -= TC[t[2]]
            for jj in sorted(since):
                if 8 <= since[jj] < 10**6:
                    fill += epi(jj, False); since[jj] = 10**6
            budget += o.nfill - 2
            while fill and budget >= cost(fill[0]):
                budget -= cost(fill[0])
                if fill[0].startswith('buffer_store'):
                    q_ = int(re.match(r'buffer_store_dword v(\d+)', fill[0]).group(1))
                    until.pop(q_, None); busy[q_] = n + 2
                em(fill.pop(0))
            assert all(t[1] > n for t in tasks), ('late', n, [t for t in tasks if t[1] <= n])
        assert not tasks
        stamp(7)
        while fill: em(fill.pop(0))
        for jj in [jj for jj in sorted(since) if since[jj] < 10**6]:
            if since[jj] < 8: em(f's_nop {8-since[jj]-1}')
            for x in epi(jj, True): em(x)
        stamp(8)
        if o.padto and o.padev[0] == 'm': padloop(typ)
        if o.diag == 1:
            e('s_waitcnt vmcnt(0)')
            stamp(9)
            dump(10)
        if o.diag == 2:
            kk = len(o.marks)
            e(f's_memtime s[{ST0+2*kk}:{ST0+2*kk+1}]')
            dump(10)
        e('s_endpgm')
        for tag, off, cnt in slow:
            e(f'L_slow{typ}{tag}:')
            e(f'ds_read_b32 v{VC}, v{VF+5 if off == "pair" else VF+1} offset:{24 if off == "pair" else off}')
            e('s_waitcnt lgkmcnt(0)')
            e(f'v_cmp_ne_u32 vcc, {cnt}, v{VC}')
            e('s_nop 4')
            e(f's_cbranch_vccnz L_slow{typ}{tag}')
            e(f's_branch L_back{typ}{tag}')
        for ci, va in fslow: flagwait(f'{typ}{ci}', va, f'L_fb{typ}{ci}')
        if o.tagp and o.retry:
            e(f'L_rt{typ}:')
            if o.diag: e(f's_add_u32 s95, s95, {1 << 24}')
            e(f's_sleep {o.retry}')
            e(f'ds_read_b32 v{VF+7}, v{VF+1} offset:12')
            e('s_add_u32 s47, s96, 4096')
            e('s_waitcnt lgkmcnt(0)')
            for g, a_ in enumerate(first4):
                for hf in range(2):
                    e(f'buffer_load_dwordx4 {vr(a_+4*hf,4)}, v{VWL}, {sr(S_WS)}, s{96 if g < 2 else 47} offen offset:{2048*(g%2)+1024*hf} sc1')
            e(f'v_readfirstlane_b32 s46, v{VF+7}')
            e(f's_add_u32 s{NPOLL}, s{NPOLL}, 1')
            e('s_waitcnt vmcnt(0)')
            e('s_cmp_lg_u32 s46, 0')
            e(f's_cbranch_scc1 L_rb{typ}')
            for g in range(4):
                e(f'v_bitop3_b32 v{TMP+g}, v{first4[g]+1}, v{first4[g]+6}, v{VF+3} bitop3:0x7e')
            e(f'v_or3_b32 v{TMP}, v{TMP}, v{TMP+1}, v{TMP+2}')
            e(f'v_or_b32 v{TMP}, v{TMP}, v{TMP+3}')
            e(f'v_cmp_ne_u32 s[48:49], 0, v{TMP}')
            e('s_nop 2')
            e('s_cmp_eq_u64 s[48:49], 0')
            e(f's_cbranch_scc1 L_rb{typ}')
            e(f's_cmp_lg_u32 s{NPOLL}, {o.maxpoll}')
            e(f's_cbranch_scc1 L_rt{typ}')
            e(f'v_mov_b32 v{VF+7}, 0x10000')
            e('s_mov_b64 exec, 1')
            e(f'ds_add_u32 v{VF+1}, v{VF+7} offset:4')
            e('s_mov_b64 exec, -1')
            e(f's_branch L_rt{typ}')
        for g, a0_, a1_ in kslow:
            e(f'L_ks{typ}{g}:')
            if o.diag: e(f's_add_u32 s95, s95, {1 << 24}')
            e(f'ds_read_b32 v{VF+7}, v{VF+1} offset:12')
            e(f's_add_u32 s47, s96, {2048*g}')
            e('s_waitcnt lgkmcnt(0)')
            for i, a_ in enumerate((a0_, a0_ + 4, a1_, a1_ + 4)):
                e(f'buffer_load_dwordx4 {vr(a_,4)}, v{VWL}, {sr(S_WS)}, s47 offen offset:{1024*i} sc1')
            e(f'v_readfirstlane_b32 s46, v{VF+7}')
            e(f's_add_u32 s{NPOLL}, s{NPOLL}, 1')
            e('s_waitcnt vmcnt(0)')
            e('s_cmp_lg_u32 s46, 0')
            e(f's_cbranch_scc1 L_kb{typ}{g}')
            e(f'v_bitop3_b32 v{VC}, v{a0_+1}, v{a0_+6}, v{VF+3} bitop3:0x7e')
            e(f'v_bitop3_b32 v{VC+1}, v{a1_+1}, v{a1_+6}, v{VF+3} bitop3:0x7e')
            e(f'v_or_b32 v{VC}, v{VC}, v{VC+1}')
            e(f'v_cmp_ne_u32 s[48:49], 0, v{VC}')
            e('s_nop 2')
            e('s_cmp_eq_u64 s[48:49], 0')
            e(f's_cbranch_scc1 L_kb{typ}{g}')
            e(f's_cmp_lg_u32 s{NPOLL}, {o.maxpoll}')
            e(f's_cbranch_scc1 L_ks{typ}{g}')
            e(f'v_mov_b32 v{VF+7}, 0x10000')
            e('s_mov_b64 exec, 1')
            e(f'ds_add_u32 v{VF+1}, v{VF+7} offset:4')
            e('s_mov_b64 exec, -1')
            e(f's_branch L_ks{typ}{g}')

    mark['help0'] = len(e.L)
    if not o.hfirst: e('.p2align 6')
    e('L_helper:')
    role[0] = 'h'
    e(f's_setprio {o.hprio}')
    e(f's_sub_u32 s{TW0}, s{WAVE}, 4')
    e(f's_mov_b32 s{TW1}, s{WAVE}')
    e(f's_sub_u32 s{PAIR}, s{RID}, {NPROD}')
    e(f's_cselect_b32 s{PAIR}, s{RID}, s{PAIR}')
    e(f's_mov_b32 s{MODE}, 0')
    e(f's_mov_b32 s{NOTASK}, s{RID}')
    e(f's_mov_b32 s{HAS3}, s{TW0}')
    e(f's_lshl_b32 s{SCRB}, s{TW0}, 12')
    e(f's_add_u32 s{SCRB}, s{SCRB}, {SCR}')
    e('L_prod:')
    T = [(28, TW0, 2, 52, 0), (36, TW1, 4, 53, 2048), (44, TW2, 6, 54, 16384)]
    c, kp, q, cc, kk, t = 46, 47, 48, 49, 50, 51
    b = TS
    e('v_mov_b32 v19, 4320')
    e('v_and_b32 v23, 3, v1')
    e('v_lshrrev_b32 v24, 2, v1')
    e('v_mul_u32_u24 v24, 288, v24')
    for (vb, sw, vl, vs, so) in T:
        e(f'v_lshl_add_u32 v8, s{sw}, 2, v23' if sw != TW2 else 'v_add_u32 v8, 32, v23')
        e('v_cmp_le_u32 vcc, 18, v8')
        e(f'v_lshl_add_u32 v{vl}, v8, 4, v24')
        e(f'v_add_u32 v9, v{vl}, v19')
        e(f'v_cndmask_b32 v{vl}, v{vl}, v9, vcc')
    e(f's_and_b32 s{c}, s{PAIR}, 15')
    e(f's_lshr_b32 s{kp}, s{PAIR}, 4')
    e(f's_mul_i32 s{b}, s{c}, 165888')
    e(f's_mul_i32 s{t}, s{kp}, 9216')
    e(f's_add_u32 s{b}, s{b}, s{t}')
    e(f's_add_u32 s{b+1}, s{b}, 82944')
    e(f's_mov_b32 s{S_W+2}, 2571264')
    e(f's_mov_b32 s{S_W+3}, 0x20000')
    e(f's_mov_b32 s{S_WO+3}, s{S_W+3}')
    e(f's_cmp_lg_u32 s{c}, 15')
    e(f's_cselect_b32 s{S_WO+2}, s{S_W+2}, 0')
    e(f's_mov_b32 m0, s{SCRB}')
    e('s_waitcnt lgkmcnt(0)')
    e(f's_mov_b32 s{S_W}, s6')
    e(f's_and_b32 s{S_W+1}, s7, 0xffff')
    e(f's_mov_b32 s{S_WO}, s6')
    e(f's_and_b32 s{S_WO+1}, s7, 0xffff')
    e(f's_cmp_ge_u32 s{NOTASK}, {NTASK}')
    e('s_cbranch_scc1 L_a3')
    def cond3(lbl):
        e(f's_cmp_lg_u32 s{HAS3}, 0')
        e(f's_cbranch_scc1 {lbl}')
    for ti, (vb, sw, vl, vs, so) in enumerate(T):
        if ti == 2: cond3('L_a3')
        if ti == 1: e('s_addk_i32 m0, 1024'); e('s_nop 0')
        e(f'buffer_load_dwordx4 v{vl}, {sr(S_W)}, s{b} offen lds')
        e('s_addk_i32 m0, 1024')
        e('s_nop 0')
        e(f'buffer_load_dwordx4 v{vl}, {sr(S_WO)}, s{b+1} offen lds')
        if ti == 1: e(f's_addk_i32 m0, {16384-3072}')
    e('L_a3:')
    stamp(1)
    e(f's_cmp_lg_u32 s{MODE}, 0')
    e('s_cbranch_scc1 L_a4')
    if o.wsb:
        e(f's_add_u32 s12, s12, {o.wsb}'); e('s_addc_u32 s13, s13, 0')
    e(f's_load_dword s{TAG}, s[12:13], {NONCE}')
    e(f's_lshr_b32 s{EARLY}, 0x33, s{kp}')
    e(f's_and_b32 s{EARLY}, s{EARLY}, 1')
    e(f's_sub_u32 s{XK}, 2, s{EARLY}')
    e(f's_lshl_b32 s{t}, s{kp}, 1')
    e(f's_lshr_b32 s{YT}, {(3<<12)+(3<<14)+(3<<16)}, s{t}')
    e(f's_and_b32 s{YT}, s{YT}, 3')
    e(f's_lshr_b32 s{t}, s{kp}, 1')
    e(f's_cmp_ge_u32 s{RID}, {NPROD}')
    e(f's_cselect_b32 s{EARLY}, 0, s{EARLY}')
    e(f's_cselect_b32 s{XK}, 3, s{XK}')
    e(f's_cselect_b32 s{YT}, s{t}, s{YT}')
    e(f's_cmp_ge_u32 s{RID}, {NPROD+32}')
    e(f's_cselect_b32 s{XK}, 0, s{XK}')
    e(f's_cmp_ge_u32 s{RID}, {NTASK}')
    e(f's_cselect_b32 s{YT}, 0, s{YT}')
    if not o.b0early:
        e(f's_cmp_lg_u32 s{EARLY}, 0')
        e('s_cbranch_scc1 L_a4')
    e('s_barrier')
    e('L_a4:')
    jit()
    e(f's_mov_b32 s{MASK}, 0xffff0000')
    e(f's_mov_b32 s{NPOLL}, 0')
    srd(e, S_WS, 12, WS_REC)
    srd(e, S_DBG, 10, 256)
    e(f'v_mov_b32 v10, {CNT}')
    e(f'v_mov_b32 v20, {(256 - 18*NSTR) & 0xffffffff}')
    e(f'v_mov_b32 v26, {NSTR}')
    e('v_bfe_u32 v21, v1, 2, 2')
    e('v_lshlrev_b32 v21, 7, v21')
    e('v_and_b32 v22, 1, v1')
    e('v_lshl_add_u32 v21, v22, 6, v21')
    e('v_bfe_u32 v22, v1, 1, 1')
    e('v_lshl_add_u32 v21, v22, 3, v21')
    e('v_lshrrev_b32 v22, 4, v1')
    e('v_lshl_add_u32 v21, v22, 4, v21')
    e(f'v_add_u32 v21, s{SCRB}, v21')
    if o.yall: e('v_mov_b32 v62, v21')
    e('v_and_b32 v25, 15, v1')
    e('v_lshlrev_b32 v25, 4, v25')
    for (vb, sw, vl, vs, so) in T:
        e(f'v_lshl_add_u32 v8, s{sw}, 2, v22' if sw != TW2 else 'v_add_u32 v8, 32, v22')
        e('v_cmp_le_u32 vcc, 18, v8')
        e(f'v_mad_u32_u24 v{vs}, v8, v26, v25')
        e(f'v_add_u32 v9, v{vs}, v20')
        e(f'v_cndmask_b32 v{vs}, v{vs}, v9, vcc')
    if o.tagp:
        e(f's_lshr_b32 s97, 0x33, s{kp}')
        e('s_and_b32 s97, s97, 1')
        e(f's_cmp_eq_u32 s{WAVE}, 4')
        e(f's_cselect_b32 s{t}, 1, s{97 if o.split1 else EARLY}')
        e(f's_cmp_lg_u32 s{t}, 0')
        e(f's_cselect_b32 s{t}, 4, -16')
        e(f'v_mov_b32 v9, s{t}')
        e('s_waitcnt lgkmcnt(0)')
        e('s_mov_b64 exec, 1')
        e(f'buffer_load_dword v27, v9, {sr(S_DBG)}, 0 offen sc1')
        e('s_mov_b64 exec, -1')
        e(f's_lshr_b32 s96, s{kp}, 2')
        e('s_lshl_b32 s96, s96, 4')
        e(f's_add_u32 s96, s96, s{c}')
        e('s_lshl_b32 s96, s96, 2')
        e(f's_and_b32 s{t}, s{kp}, 1')
        e(f's_add_u32 s96, s96, s{t}')
        e('s_lshl_b32 s96, s96, 9')
        e(f's_add_u32 s96, s96, {WOFF + 2*NSTEP*1024}')
    e(f's_lshr_b32 s{q}, s{kp}, 1')
    e(f's_and_b32 s{cc}, s{c}, 7')
    e(f's_lshr_b32 s{kk}, s{c}, 3')
    e(f's_and_b32 s{t}, s{kp}, 1')
    e(f's_cmp_eq_u32 s{kp}, 8')
    e(f's_cselect_b32 s{cc}, s{cc}, s{c}')
    e(f's_cselect_b32 s{kk}, s{kk}, s{t}')
    e(f's_lshl_b32 s{kk}, s{kk}, 9')
    e(f's_add_u32 s{kk}, s{kk}, {WOFF}')
    e(f's_lshl_b32 s{t}, s{q}, 4')
    e(f's_add_u32 s{b+2}, s{t}, s{cc}')
    e(f's_sub_u32 s{b+3}, s{b+2}, s{q}')
    e(f's_cmp_ge_u32 s{q}, 2')
    e(f's_cselect_b32 s{b+4}, 74, 0')
    e(f's_add_u32 s{b+4}, s{b+4}, s{b+2}')
    e(f's_cmp_lt_u32 s{cc}, 2')
    e(f's_cselect_b32 s{t}, 32, 136')
    e(f's_add_u32 s{t}, s{t}, s{cc}')
    e(f's_cmp_eq_u32 s{kp}, 8')
    e(f's_cselect_b32 s{b+4}, s{t}, s{b+4}')
    e(f's_add_u32 s{b+2}, s{b+2}, 34')
    e(f's_add_u32 s{b+3}, s{b+3}, 144')
    for k in (2, 3, 4):
        e(f's_lshl_b32 s{b+k}, s{b+k}, 10')
        e(f's_add_u32 s{b+k}, s{b+k}, s{kk}')
    e(f's_cmp_eq_u32 s{kp}, 8')
    e(f's_cselect_b32 s{t}, 1, 2')
    e(f's_cmp_eq_u32 s{c}, 15')
    e(f's_cselect_b32 s{b+5}, s{t}, 0')
    e(f's_lshl_b32 s46, s{WAVE}, 2')
    e(f's_add_u32 s46, s46, {CNT+16}')
    e('v_mov_b32 v55, s46')
    if o.tagp:
        e('s_waitcnt vmcnt(1)')
        stamp(2)
        e(f's_cmp_ge_u32 s{NOTASK}, {NTASK}')
        e('s_cbranch_scc1 L_x9')
    else:
        e('v_mov_b32 v27, 0')
        e('v_mov_b32 v9, 4')
        e('s_waitcnt vmcnt(0) lgkmcnt(0)')
        stamp(2)
        e(f's_cmp_lg_u32 s{WAVE}, 4')
        e('s_cbranch_scc1 L_a5')
        e('s_mov_b64 exec, 1')
        e(f'buffer_load_dword v27, v9, {sr(S_DBG)}, 0 offen sc1')
        e('s_mov_b64 exec, -1')
        e('L_a5:')
        e(f's_cmp_ge_u32 s{NOTASK}, {NTASK}')
        e('s_cbranch_scc1 L_x9')
    for (vb, sw, vl, vs, so) in T:
        for tap in range(2):
            for half in range(2):
                e(f'ds_read_b64_tr_b16 {vr(vb+4*tap+2*half,2)}, v21 offset:{so+1024*tap+512*half}')
    nlab = [0]
    def st01(vb, vs):
        nlab[0] += 1
        e(f'buffer_store_dwordx4 {vr(vb,4)}, v{vs}, {sr(S_WS)}, s{b+2} offen {o.stf}')
        e(f's_cmp_eq_u32 s{b+5}, 2')
        e(f's_cbranch_scc1 L_skip{nlab[0]}')
        e(f'buffer_store_dwordx4 {vr(vb+4,4)}, v{vs}, {sr(S_WS)}, s{b+3} offen {o.stf}')
        e(f'L_skip{nlab[0]}:')
    def st01all(lbl):
        st01(T[0][0], T[0][3]); st01(T[1][0], T[1][3])
        cond3(lbl)
        st01(T[2][0], T[2][3])
    def dosum(vb, tb, ob):
        for i in range(8):
            e(f'v_lshlrev_b32 v{tb+2*i}, 16, v{vb+i}')
            e(f'v_and_b32 v{tb+2*i+1}, s{MASK}, v{vb+i}')
        for i in range(4):
            e(f'v_pk_add_f32 {vr(tb+2*i,2)}, {vr(tb+2*i,2)}, {vr(tb+8+2*i,2)}')
        for i in range(4):
            e(f'v_cvt_pk_bf16_f32 v{ob+i}, v{tb+2*i}, v{tb+2*i+1}')
    def ldswait(off, cmp, operand, tag, slp):
        e(f'L_lw{tag}:')
        e(f'ds_read_b32 v11, v10 offset:{off}')
        e('s_waitcnt lgkmcnt(0)')
        e('v_and_b32 v11, 0xff, v11')
        e(f'v_cmp_{cmp}_u32 vcc, {operand}, v11')
        e('s_nop 4')
        e(f's_cbranch_vccnz L_lx{tag}')
        e(f's_sleep {slp}')
        e(f's_branch L_lw{tag}')
        e(f'L_lx{tag}:')
    SOR = lambda ti: (210 + 8 * ti) if o.tagp else (240 + 4 * ti)
    e(f's_or_b32 s46, s{EARLY}, s{MODE}')
    e(f's_cmp_eq_u32 s{XK}, 2')
    e('s_cselect_b32 s47, 1, s46')
    if o.xl: e('s_mov_b32 s46, s47')
    if o.split1:
        assert o.tagp and o.xl
        e('s_or_b32 s47, s47, s97')
        e(f's_andn2_b32 s50, s97, s{MODE}')
    e('s_cmp_eq_u32 s47, 0')
    e('s_cbranch_scc1 L_x9')
    if o.tagp:
        e('s_cmp_eq_u32 s97, 0')
        e('s_cbranch_scc1 L_x7')
        e('s_waitcnt vmcnt(0)')
        e('v_readfirstlane_b32 s48, v27')
        e(f's_add_u32 s49, s{TAG}, {TAGINC}')
        e('s_not_b32 s47, s49')
        e(f's_or_b32 s48, s48, s{MODE}')
        e('s_cselect_b32 s49, s47, s49')
        for ti in range(3):
            e(f'v_mov_b32 v{SOR(ti)-1}, s49')
            e(f'v_mov_b32 v{SOR(ti)+4}, s49')
        e('L_x7:')
        if o.xdel:
            e(f's_cmp_lg_u32 s{XK}, 2')
            e('s_cbranch_scc1 L_x8')
            if o.xdel > 0: e(f's_sleep {o.xdel}')
            else:
                e('L_xs:')
                e('ds_read_b32 v11, v10 offset:8')
                e('s_waitcnt lgkmcnt(0)')
                e(f'v_cmp_le_u32 vcc, {0x10000 * -o.xdel}, v11')
                e('s_nop 4')
                e('s_cbranch_vccnz L_x8')
                e('s_sleep 1')
                e('s_branch L_xs')
            e('L_x8:')
    for ti, (vb, sw, vl, vs, so) in enumerate(T):
        if ti == 2: cond3('L_x3')
        if o.split1:
            if ti == 1: e(f's_and_b32 s47, s50, s{EARLY}')
            else: e(f's_andn2_b32 s47, s50, s{EARLY}')
            e(f's_cbranch_scc1 L_x5{ti}')
        e(f's_waitcnt lgkmcnt({8-4*ti})')
        dosum(vb, 64 + 16 * ti, SOR(ti))
        if not o.split1:
            e('s_cmp_eq_u32 s46, 0')
            e(f's_cbranch_scc1 L_x5{ti}')
        if o.tagp:
            e('s_cmp_eq_u32 s97, 0')
            e(f's_cbranch_scc1 L_x6{ti}')
            e(f'buffer_store_dwordx4 {vr(SOR(ti)-2,4)}, v{vs}, {sr(S_WS)}, s96 offen {o.stf}')
            e(f'buffer_store_dwordx4 {vr(SOR(ti)+2,4)}, v{vs}, {sr(S_WS)}, s96 offen offset:1024 {o.stf}')
            e(f's_branch L_x5{ti}')
            e(f'L_x6{ti}:')
        e(f'buffer_store_dwordx4 {vr(SOR(ti),4)}, v{vs}, {sr(S_WS)}, s{b+4} offen {o.stf}')
        e(f'L_x5{ti}:')
    e('L_x3:')
    e(f's_cmp_eq_u32 s{MODE}, 0')
    e('s_cbranch_scc1 L_x9')
    e('L_x2:')
    e('s_waitcnt lgkmcnt(0)')
    st01all('L_x4')
    e('L_x4:')
    e(f's_cmp_eq_u32 s{MODE}, 0')
    e('s_cbranch_scc1 L_x9')
    e('s_waitcnt vmcnt(0)')
    e(f's_add_u32 s{PAIR}, s{PAIR}, 1')
    e(f's_cmp_lt_u32 s{PAIR}, {NPROD}')
    e('s_cbranch_scc1 L_prod')
    e('v_mov_b32 v11, 1')
    e('ds_write_b32 v10, v11 offset:12')
    e('s_endpgm')
    e('L_x9:')
    jit()
    if o.tagp and not o.b0early:
        e(f's_cmp_eq_u32 s{EARLY}, 0')
        e('s_cbranch_scc1 L_x10')
        e('s_barrier')
        e('L_x10:')
    stamp(3)
    decode()
    e('v_subrev_u32 v4, 256, v0')
    e('v_min_u32 v4, 251, v4')
    e('v_mul_u32_u24 v3, 3641, v4')
    e('v_lshrrev_b32 v3, 16, v3')
    e('v_mul_u32_u24 v2, 18, v3')
    e('v_sub_u32 v2, v4, v2')
    e(f'v_mul_u32_u24 v3, {R}, v3')
    e(f'v_min_u32 v3, {160-R}, v3')
    e('v_mul_u32_u24 v4, 1152, v3')
    e('v_lshl_add_u32 v4, v2, 4, v4')
    e(f'v_add_u32 v12, s{XB}, v4')
    e('v_mul_u32_u24 v18, 288, v3')
    e('v_lshl_add_u32 v18, v2, 4, v18')
    e(f'v_add_u32 v19, {X_D1}, v18')
    srd(e, S_X, 4, 1152000, add=BOFF)
    e(f's_add_u32 s46, s{TAG}, {TAGINC}')
    e('v_mov_b32 v56, s46')
    e(f's_lshl_b32 s46, s{RID}, 7')
    e('v_mov_b32 v58, s46')
    e(f's_add_u32 s46, s{PAIR}, {NPROD}')
    e('s_lshl_b32 s46, s46, 7')
    e('v_mov_b32 v59, s46')
    def publish(slot, vflag, tag, first, n=0):
        e('s_mov_b64 exec, 1')
        e(f's_waitcnt vmcnt({n})')
        if first: stamp(4)
        if o.padto and tag == 'x': stamp(12)
        e('v_cmp_ne_u32 vcc, 0, v27')
        e('v_not_b32 v57, v56')
        e('s_nop 0')
        e('v_cndmask_b32 v57, v56, v57, vcc')
        e(f'ds_write_b32 v55, v57 offset:{slot}')
        e(f'ds_read_b128 v[20:23], v10 offset:{32+slot}')
        e('s_waitcnt lgkmcnt(0)')
        for i in range(4): e(f'v_xor_b32 v{20+i}, v{20+i}, v56')
        e('v_or3_b32 v20, v20, v21, v22')
        e('v_or_b32 v20, v20, v23')
        e('v_cmp_eq_u32 vcc, 0, v20')
        e('s_and_b64 exec, exec, vcc')
        e(f's_cbranch_execz L_nl{tag}')
        e(f'buffer_store_dword v56, v{vflag}, {sr(S_WS)}, 0 offen sc1')
        e(f'L_nl{tag}:')
        e('s_mov_b64 exec, -1')
    if o.tagp and o.xl:
        e(f's_cmp_lg_u32 s{XK}, 2')
        e('s_cbranch_scc1 L_noflag')
        publish(0, 58, 'x', True)
        e(f's_mov_b32 s{XK}, 0')
    elif o.xl:
        e(f's_cmp_ge_u32 s{RID}, {NPROD}')
        e('s_cbranch_scc1 L_noflag')
        publish(0, 58, 'x', True)
        e(f's_mov_b32 s{XK}, 0')
        e(f's_cmp_eq_u32 s{EARLY}, 0')
        e('s_cbranch_scc1 L_noflag')
        if not o.b0early: e('s_barrier')
    elif not o.tagp:
        e(f's_cmp_eq_u32 s{EARLY}, 0')
        e('s_cbranch_scc1 L_noflag')
        publish(0, 58, 'x', True)
        if not o.b0early: e('s_barrier')
    e('L_noflag:')
    e(f's_setprio {o.hprio2}')
    RAW, ORAW = 64, 120
    EU = [184, 192]
    OU, DT, DO = 200, 208, 216
    xi = [0]
    NL = R + 1
    hq = []
    def eload():
        k = xi[0]
        if k >= NL: return
        a_ = 12
        if k:
            a_ = 13 + (k & 3)
            e(f'v_add_u32 v{a_}, {1152*k}, v12')
        e(f'buffer_load_dwordx4 {vr(RAW+4*k,4)}, v{a_}, {sr(S_X)}, 0 offen')
        xi[0] += 1
        hq.append(('e', k))
    if o.etouch:
        e(f's_cmp_lt_u32 s{RID}, {NTASK}')
        e('s_cbranch_scc1 L_net')
        e(f's_and_b32 s46, s{NB}, 1')
        e(f's_mul_i32 s46, s46, {1152*6}')
        e('v_add_u32 v12, s46, v12')
        for _ in range(7): eload()
        e('v_subrev_u32 v12, s46, v12')
        e('s_waitcnt vmcnt(0)')
        e('L_net:')
        xi[0] = 0; hq.clear()
    YA = 232
    e(f's_cmp_eq_u32 s{b+5}, 2')
    e('s_cselect_b32 s46, 0x80000000, 0')
    e(f's_cmp_lg_u32 s{HAS3}, 0')
    e('s_cselect_b32 s47, 0x80000000, 0')
    e('s_or_b32 s48, s46, s47')
    for i in range(6):
        m_ = {0: None, 1: 46, 2: None, 3: 46, 4: 47, 5: 48}[i]
        e(f'v_mov_b32 v{YA+i}, v{52+i//2}' if m_ is None else f'v_or_b32 v{YA+i}, s{m_}, v{52+i//2}')
    def ystore(i, a_):
        e(f'buffer_store_dwordx4 {vr(28+4*i,4)}, v{a_}, {sr(S_WS)}, s{b+2+(i&1)} offen {o.stf}')
        hq.append(('y', i))
    if o.yall:
        assert o.d0p
        e(f's_add_u32 s44, s{RID}, 76')
        e(f's_cmp_ge_u32 s44, {NWG}')
        e(f's_cselect_b32 s45, {NWG}, 0')
        e('s_sub_u32 s44, s44, s45')
        e(f's_add_u32 s46, s44, {NPROD + 32}')
        e('s_lshl_b32 s46, s46, 7')
        e('v_mov_b32 v59, s46')
        e('s_mul_hi_u32 s45, s44, 477218589')
        e('s_mul_i32 s46, s45, 9')
        e('s_sub_u32 s44, s44, s46')
        e(f's_lshr_b32 s{YT}, s45, 3')
        e(f's_add_u32 s{YT}, s{YT}, 1')
        e(f's_min_u32 s{YT}, s{YT}, 3')
        e('s_lshl_b32 s45, s45, 2')
        e(f's_add_u32 s45, s45, s{WAVE}')
        e('s_add_u32 s45, s45, 28')
        e('s_and_b32 s46, s45, 15')
        e('s_lshr_b32 s47, s45, 4')
        e('s_mul_i32 s54, s46, 165888')
        e('s_mul_i32 s48, s47, 9216')
        e('s_add_u32 s54, s54, s48')
        e('s_add_u32 s95, s54, 82944')
        e('s_cmp_lg_u32 s46, 15')
        e(f's_cselect_b32 s{S_WO+2}, 2571264, 0')
        e('s_cselect_b32 s51, 0, 0x80000000')
        e('s_lshr_b32 s48, s47, 1')
        e('s_and_b32 s49, s46, 7')
        e('s_lshr_b32 s50, s46, 3')
        e('s_and_b32 s45, s47, 1')
        e('s_cmp_eq_u32 s47, 8')
        e('s_cselect_b32 s49, s49, s46')
        e('s_cselect_b32 s50, s50, s45')
        e('s_cselect_b32 s51, 0, s51')
        e('s_lshl_b32 s50, s50, 9')
        e(f's_add_u32 s50, s50, {WOFF}')
        e('s_lshl_b32 s68, s48, 4')
        e('s_add_u32 s68, s68, s49')
        e('s_sub_u32 s69, s68, s48')
        e('s_add_u32 s68, s68, 34')
        e('s_add_u32 s69, s69, 144')
        for r_ in (68, 69):
            e(f's_lshl_b32 s{r_}, s{r_}, 10')
            e(f's_add_u32 s{r_}, s{r_}, s50')
        e('v_and_b32 v2, 3, v1')
        e('v_lshl_add_u32 v2, s44, 2, v2')
        e('v_lshrrev_b32 v3, 4, v1')
        e('v_lshl_add_u32 v3, s44, 2, v3')
        e('v_cmp_le_u32 vcc, 18, v2')
        e('v_cmp_le_u32 s[46:47], 18, v3')
        e('v_lshl_add_u32 v63, v2, 4, v24')
        e('v_mad_u32_u24 v60, v3, v26, v25')
        e('v_add_u32 v2, 4320, v63')
        e(f'v_add_u32 v3, {(256 - 18*NSTR) & 0xffffffff}, v60')
        e('v_cndmask_b32 v63, v63, v2, vcc')
        e('v_cndmask_b32 v60, v60, v3, s[46:47]')
        e('v_or_b32 v61, s51, v60')
    def ydma():
        if not o.yall: return
        e(f's_mov_b32 m0, s{SCRB}')
        e('s_nop 0')
        e(f'buffer_load_dwordx4 v63, {sr(S_W)}, s54 offen lds')
        e('s_addk_i32 m0, 1024')
        e('s_nop 0')
        e(f'buffer_load_dwordx4 v63, {sr(S_WO)}, s95 offen lds')
        hq.append('d0'); hq.append('d1')
    stamp(5)
    ldswait(8, 'eq', 4, 'o', 1)
    def unpack(dst, s_):
        for i in range(4):
            e(f'v_lshlrev_b32 v{dst+2*i}, 16, v{s_+i}')
            e(f'v_and_b32 v{dst+2*i+1}, s{MASK}, v{s_+i}')
    def unpackE(dst, k):
        e(f's_waitcnt vmcnt({len(hq)-1-hq.index(("e", k))})')
        unpack(dst, RAW + 4 * k)
        eload()
    def diff(eu, out):
        for i in range(8): e(f'v_sub_f32 v{DT+i}, v{eu+i}, v{OU+i}')
        for i in range(4):
            e(f'v_cvt_pk_bf16_f32 v{out+i}, v{DT+2*i}, v{DT+2*i+1}')
    def opengate():
        if not o.gate: return
        e('v_mov_b32 v11, 0x100')
        e('s_mov_b64 exec, 1')
        e('ds_add_u32 v10, v11 offset:8')
        e('s_mov_b64 exec, -1')
    def rows(hook):
        jit()
        stamp(6)
        for j in range(R):
            e(f'ds_read_b128 {vr(ORAW+4*j,4)}, v18 offset:{X_O+288*j}')
        unpackE(EU[0], 0)
        e('s_waitcnt lgkmcnt(0)')
        hook(-1)
        for j in range(R):
            o0 = DO + 8 * (j & 1)
            unpack(OU, ORAW + 4 * j)
            diff(EU[j & 1], o0)
            e(f'ds_write_b128 v18, {vr(o0,4)} offset:{X_D0+288*j}')
            unpackE(EU[(j + 1) & 1], j + 1)
            diff(EU[(j + 1) & 1], o0 + 4)
            e(f'ds_write_b128 v19, {vr(o0+4,4)} offset:{288*j}')
            hook(j)
    if o.apath:
        e(f's_cmp_ge_u32 s{RID}, {NPROD + (32 if o.d0p else 0)}')
        e('s_cbranch_scc1 L_pathA')
    if o.d0row >= 0: e(f's_cmp_lg_u32 s{XK}, 2')
    else: e(f's_cmp_lt_u32 s{XK}, 2')
    e('s_cbranch_scc1 L_nox')
    if o.d0p:
        e(f's_cmp_eq_u32 s{XK}, 3')
        e('s_cbranch_scc1 L_xd')
    for i in range(3):
        e(f'buffer_store_dwordx4 {vr(SOR(i),4)}, v{YA+2*i}, {sr(S_WS)}, s{b+4} offen {o.stf}')
    if o.d0p:
        e('s_branch L_xe')
        e('L_xd:')
        for i in range(6): ystore(i, YA + i)
        e('L_xe:')
    if o.gearly:
        opengate()
        publish(0, 58, 'x2', True)
        e('s_branch L_nox2')
        e('L_nox:')
        if o.gdel:
            e(f's_cmp_ge_u32 s{RID}, {NPROD}')
            e('s_cbranch_scc1 L_nox2')
        opengate()
        e('L_nox2:')
    else:
        publish(0, 58, 'x2', True)
        e('L_nox:')
        opengate()
    hq.clear(); xi[0] = 0
    for _ in range(o.ein): eload()
    def hookP(j):
        if j == o.ydrow: ydma()
        if o.gdel and j == o.gdel - 2:
            e(f's_cmp_lt_u32 s{RID}, {NPROD}')
            e('s_cbranch_scc1 L_gd')
            opengate()
            e('L_gd:')
        if j == o.d0row and j >= 0:
            e(f's_cmp_lg_u32 s{XK}, 3')
            e('s_cbranch_scc1 L_yn1')
            keep = list(hq)
            for i in range(6): ystore(i, YA + i)
            hq[:] = keep
            e('L_yn1:')
        if o.d0row >= 0 and j == o.d0row + o.d0row2:
            e(f's_cmp_lg_u32 s{XK}, 3')
            e('s_cbranch_scc1 L_yn2')
            publish(0, 58, 'yn', True)
            e('L_yn2:')
        if o.ymid and j == o.ymid:
            e(f's_cmp_lg_u32 s{YT}, 1')
            e('s_cbranch_scc1 L_ym1')
            keep = list(hq)
            for i in range(6): ystore(i, YA + i)
            hq[:] = keep
            e('L_ym1:')
        if o.ymid and j == o.ymid + o.ymid2:
            e(f's_cmp_lg_u32 s{YT}, 1')
            e('s_cbranch_scc1 L_ym2')
            publish(16, 59, 'ym', False)
            if o.diag == 1: stamp(8)
            e(f's_mov_b32 s{YT}, 0')
            e('L_ym2:')
    rows(hookP)
    if o.apath:
        e('s_branch L_rowsdone')
        e('L_pathA:')
        if not o.d0p:
            e(f's_cmp_eq_u32 s{XK}, 3')
            e('s_cselect_b32 s47, 0, 0x80000000')
            for i in range(6): e(f'v_or_b32 v{20+i}, s47, v{YA+i}')
        hq.clear(); xi[0] = 0
        for _ in range(NL): eload()
        if not o.d0p:
            for i in range(6): ystore(i, 20 + i)
        def hookA(j):
            if j == o.grow + 1: ydma()
            if j == o.grow:
                e(f's_waitcnt vmcnt({len(hq)-1-hq.index(("e", NL-1))})')
                opengate()
            if j == o.xrow and not o.d0p:
                e(f's_cmp_lg_u32 s{XK}, 3')
                e('s_cbranch_scc1 L_xp')
                publish(0, 58, 'x3', True)
                e('L_xp:')
        rows(hookA)
    e('L_rowsdone:')
    e('s_waitcnt lgkmcnt(0)')
    stamp(7)
    e('v_mov_b32 v11, 1')
    e('s_mov_b64 exec, 1')
    e('ds_add_u32 v10, v11 offset:16')
    e('s_mov_b64 exec, -1')
    e(f's_cmp_eq_u32 s{YT}, 0')
    e('s_cbranch_scc1 L_noy')
    e(f's_setprio {o.yprio}')
    if o.yall:
        e('s_waitcnt vmcnt(0)')
        for tap in range(2):
            for half in range(2):
                e(f'ds_read_b64_tr_b16 {vr(28+4*tap+2*half,2)}, v62 offset:{1024*tap+512*half}')
    e('L_yw:')
    e('ds_read_b64 v[20:21], v10')
    e('s_waitcnt lgkmcnt(0)')
    e('v_lshrrev_b32 v21, 14, v21')
    e('v_and_b32 v21, -4, v21')
    e('v_or_b32 v20, v20, v21')
    e(f'v_cmp_le_u32 vcc, s{YT}, v20')
    e('s_nop 4')
    e('s_cbranch_vccnz L_yx')
    e('s_sleep 4')
    e('s_branch L_yw')
    e('L_yx:')
    jit()
    if o.yall:
        e(f'buffer_store_dwordx4 v[28:31], v60, {sr(S_WS)}, s68 offen {o.stf}')
        e(f'buffer_store_dwordx4 v[32:35], v61, {sr(S_WS)}, s69 offen {o.stf}')
    else:
      for i in range(6):
        ystore(i, YA + i)
        e(f's_waitcnt vmcnt({o.ythr})')
        if o.ysleep: e(f's_sleep {o.ysleep}')
    publish(16, 59, 'y', False)
    if o.diag == 1: stamp(8)
    e('L_noy:')
    e(f's_cmp_lg_u32 s{WAVE}, 4')
    e('s_cbranch_scc1 L_hend')
    e('L_guard:')
    e('ds_read_b32 v11, v10 offset:4')
    e('s_waitcnt lgkmcnt(0)')
    e('v_readfirstlane_b32 s46, v11')
    e('s_nop 3')
    e('s_cmp_eq_u32 s46, 4')
    e(f's_cbranch_scc1 {"L_wb" if o.wbat else "L_hend"}')
    e('s_cmp_lt_u32 s46, 0x10000')
    e('s_cbranch_scc0 L_rescue')
    e('s_sleep 16')
    e('s_branch L_guard')
    if o.wbat:
        e('L_wb:')
        e('s_lshr_b32 s46, s2, 3')
        e(f's_cmp_lg_u32 s46, 5')
        e('s_cbranch_scc1 L_hend')
        ldswait(0, 'eq', 4, 'w', 2)
        e('buffer_wbl2 sc1')
        e('s_waitcnt vmcnt(0)')
        e('s_branch L_hend')
    e('L_rescue:')
    e(f's_mov_b32 s{MODE}, 1')
    e(f's_mov_b32 s{HAS3}, 1')
    e(f's_mov_b32 s{NOTASK}, 0')
    e(f's_lshr_b32 s{TW0}, s{NB}, 1')
    e(f's_add_u32 s{TW1}, s{NB}, 9')
    e(f's_lshr_b32 s{TW1}, s{TW1}, 1')
    e(f's_mov_b32 s{PAIR}, 0')
    e('s_branch L_prod')
    e('L_hend:')
    if o.padto and o.padev[0] == 'h': padloop('h')
    if o.diag == 1:
        stamp(9)
        dump(10)
    e('L_end:')
    e('s_endpgm')
    if o.hfirst:
        m0, h0 = mark['main0'], mark['help0']
        e.L = e.L[:m0] + e.L[h0:] + ['.p2align 6'] + e.L[m0:h0]
    e('L_codeend:')
    e('.section .rodata,"a"')
    e('.p2align 6')
    e(f'.amdhsa_kernel {KN}')
    for x in ['next_free_vgpr 256', 'next_free_sgpr 102', 'accum_offset 256', 'group_segment_fixed_size 0', 'kernarg_size 40',
              'user_sgpr_count 2', 'user_sgpr_kernarg_segment_ptr 1', 'system_sgpr_workgroup_id_x 1']:
        e('  .amdhsa_' + x)
    e('.end_amdhsa_kernel')
    n = haz.check(e.L)
    if n: print(f'{n} hazards', file=sys.stderr)
    return f'; @launch grid=({NWG},1,1) block=(512,1,1) lds={LDS_BYTES}\n' + HEADER + e.text()

def opts(argv=None):
    ap = argparse.ArgumentParser()
    ap.add_argument('-o', default='k.s')
    for nm, d in [('diag', 0), ('pf', 16), ('pf0', 8), ('wgap', 4), ('wres', 4), ('wsc1', 0), ('nfill', 2), ('fstride', 128), ('sleep', 0), ('maxpoll', 3000), ('nopoll', 0),
                  ('hprio', 3), ('hprio2', 0), ('mprio', 2), ('epre', 0), ('ein', 4), ('dpre', 7), ('b0early', 0), ('mtouch', 4), ('gate', 1), ('swapab', 0), ('d0p', 1), ('map', 1), ('chain', 4), ('wsb', 0), ('xdel', -4), ('xsn', 11), ('retry', 0), ('gdel', 0), ('padlo', 0), ('padhi', 252), ('d0row', 1), ('c2split', 1), ('d0row2', 1), ('split1', 0), ('ymid', 4), ('ymid2', 2), ('wbat', 0), ('jit', 0), ('apath', 0), ('rmap', 0), ('yall', 0), ('ydrow', 6), ('flat0', 1), ('flatzz', 0), ('tagp', 1), ('tpf', 5), ('xl', 1), ('p0plain', 0), ('onepoll', 0), ('epoll', 1), ('ppoll', 0), ('yprio', 3), ('ysleep', 0), ('vt', 94), ('tla', 40), ('tskip', 2), ('gearly', 1), ('chfrom', 8), ('oj', 9), ('nolds', 0), ('now', 0), ('wsame', 0), ('grow', 1), ('vbd', 33), ('nopk', 1), ('padto', 0), ('npdelay', 0), ('opre', 4), ('etouch', 0), ('orev', 1), ('b0late', 1), ('dec', 1), ('tail', 1), ('xla', 9), ('hold', 1), ('prest', 0), ('xslot', 0), ('noclosed', 0), ('cpf', 1), ('hfirst', 1), ('warmb', 1), ('wsfirst', 0), ('flead', 6), ('ythr', 6), ('xrow', 3), ('padstep', 33), ('probe', 0), ('probeoff', 0x4000000)]:
        ap.add_argument('--' + nm, type=int, default=d)
    ap.add_argument('--oflags', default='')
    ap.add_argument('--pmap', default='18,18,18,18,18,18,18,18')
    ap.add_argument('--padev', default='m0')
    ap.add_argument('--trig', default='10,25,40')
    ap.add_argument('--yrow', default='0,7,2,9,5,11')
    ap.add_argument('--pfcs', default='4,3,5,5,5')
    ap.add_argument('--fflags', default='')
    ap.add_argument('--fleads', default='6,5,6,6,6')
    ap.add_argument('--stf', default='sc1')
    ap.add_argument('--marks', default='0,4,8,12,16,24,33,47,58')
    o = ap.parse_args(argv)
    o.marks = [int(x) for x in o.marks.split(',')]
    o.yrow = [int(x) for x in o.yrow.split(',')]
    o.pfcs = [int(x) for x in o.pfcs.split(',')]
    o.fleads = [int(x) for x in o.fleads.split(',')]
    o.trig = [int(x) for x in o.trig.split(',')]
    return o

if __name__ == '__main__':
    o = opts()
    open(o.o, 'w').write(gen(o))
```

```python
import re, sys, argparse
import haz

KN = 'standalone__autoregressive_conv_wavernn__speech_kernel'
NWG = 252
NPROD = 144
ARR = 160 * 288
X_D0, X_O, X_D1 = 0, ARR, 2 * ARR
CNT = 3 * ARR
SCR = CNT + 64
LDS_BYTES = SCR + 18432
NSTEP = 106
WOFF = int(__import__('os').environ.get('WOFF', '0x100000'), 0)
NONCE = 0x10000
DIAG = 0x800000
WS_REC0 = 0x1000000
TAGINC = 0x9E3779B9
R = 12


HEADER = """; Gated dilated causal convolution, out = tanh(f) * sigmoid(g), h = [f g] = sum_i x[t + 2i - 60] w[i].
;
; A workgroup owns 144 output pairs x 16 output columns (f and g). Waves 0-3 run the matrix loop (two column tiles x
"""

class Em:
    def __init__(self): self.L = []
    def __call__(self, s): self.L.append(s)
    def text(self): return '\n'.join(self.L) + '\n'

def vr(a, n=1): return f'v{a}' if n == 1 else f'v[{a}:{a+n-1}]'
def sr(a, n=4): return f's[{a}:{a+n-1}]'

def streams():
    out = []
    for typ in (0, 1):
        S = []
        pid = [0]
        def add(arr, chunk, cs, acc):
            for c in cs: S.append((pid[0], arr, chunk, c, acc))
            pid[0] += 1
        if typ == 0:
            add('O', 0, range(16), 'P'); add('O', 1, range(16), 'P'); add('O', 'rem', range(0, 2), 'P')
            for q in range(4): add('D', q, range(16), 'Q')
            add('D', 'rem', range(8), 'Q')
        else:
            add('O', 2, range(16), 'P'); add('O', 3, range(16), 'P'); add('O', 'rem', range(2, 8), 'P')
            for q in range(4): add('D', q, range(15), 'Q')
            add('D', 'rem', range(8), 'Q')
        assert len(S) == NSTEP
        out.append(S)
    return out

S_X, S_W, S_WO, S_WS, S_OUT, S_DBG = 20, 24, 28, 32, 36, 40
WAVE, NB, BAT, PAR, MB, BOFF = 14, 15, 16, 17, 18, 19
PAIR0 = 3
XB = 52
MASK = 53
TW0, TW1, TW2, PAIR, HAS3, MODE, SCRB, TAG, LAST, NPOLL = 44, 45, 54, 55, 56, 57, 58, 59, 60, 61
TS = 62
TYP, WSO = 68, 69
EARLY, XK, YT, FIDX = 90, 91, 92, 93
NOTASK = 94
FO = 97
C2L, CNL, C60 = 90, 92, 94
ST0 = 70

def srd(e, d, ptr, rec, add=None):
    if add is None:
        e(f's_mov_b32 s{d}, s{ptr}')
        e(f's_and_b32 s{d+1}, s{ptr+1}, 0xffff')
    else:
        e(f's_add_u32 s{d}, s{ptr}, s{add}')
        e(f's_addc_u32 s{d+1}, s{ptr+1}, 0')
        e(f's_and_b32 s{d+1}, s{d+1}, 0xffff')
    e(f's_mov_b32 s{d+2}, {rec}')
    e(f's_mov_b32 s{d+3}, 0x20000')

def gen(o):
    e = Em()
    NSTR = 2 * NSTEP * 1024 + (65536 if o.tagp else 0)
    if o.tagp: o.epoll = 0
    NTASK = NPROD + (32 if o.yall else 96)
    WS_REC = min(WS_REC0, 0x10000000 - o.wsb)
    role = ['m']
    jn = [0]
    def jit():
        if not o.jit: return
        jn[0] += 1
        k = jn[0]
        e(f's_mul_i32 s98, s2, {37 + 2 * k + o.jit * 10}')
        e(f's_mul_i32 s99, s{WAVE}, {11 + 6 * k + o.jit}')
        e('s_add_u32 s98, s98, s99')
        e('s_bitcmp1_b32 s98, 3')
        e(f's_cbranch_scc1 L_jit{k}')
        e(f's_sleep {30 + (k * 17 + o.jit * 5) % 90}')
        e(f'L_jit{k}:')
    def padloop(tag):
        e(f'L_pad{tag}:')
        e('s_memrealtime s[98:99]')
        e('s_waitcnt lgkmcnt(0)')
        e('s_sub_u32 s98, s98, s100')
        e(f's_cmp_lt_u32 s98, {o.padto}')
        e(f's_cbranch_scc1 L_pad{tag}')
    def stamp(k, lvl=1):
        if o.padto and lvl == 1 and o.padev == f'{role[0]}{k}':
            jn[0] += 1
            e(f's_sub_u32 s98, s2, {o.padlo}')
            e(f's_cmp_ge_u32 s98, {o.padhi - o.padlo}')
            e(f's_cbranch_scc1 L_pf{jn[0]}')
            e('s_memrealtime s[100:101]'); e('s_waitcnt lgkmcnt(0)')
            e(f'L_pf{jn[0]}:')
        if o.diag == lvl or (o.diag == 4 and lvl == 1): e(f's_memrealtime s[{ST0+2*k}:{ST0+2*k+1}]')
    def dump(nst):
        e('s_waitcnt lgkmcnt(0)')
        e('v_mov_b32 v250, 0')
        for k in range(nst): e(f'v_writelane_b32 v250, s{ST0+2*k}, {k}')
        e(f'v_writelane_b32 v250, s{NPOLL}, 13')
        e(f'v_writelane_b32 v250, s95, 12')
        e(f'v_writelane_b32 v250, s{3 if o.rmap else 2}, 14')
        e('s_getreg_b32 s46, hwreg(HW_REG_XCC_ID)')
        e('v_writelane_b32 v250, s46, 15')
        e(f's_lshl_b32 s46, s2, 3'); e(f's_add_u32 s46, s46, s{WAVE}'); e('s_lshl_b32 s46, s46, 6'); e(f's_add_u32 s46, s46, {DIAG}')
        e('v_lshl_add_u32 v251, v1, 2, s46')
        e('s_mov_b64 exec, 0xffff')
        e(f'buffer_store_dword v250, v251, {sr(S_WS)}, 0 offen')
        e('s_mov_b64 exec, -1')

    e('.amdgcn_target "amdgcn-amd-amdhsa--gfx950"')
    e('.text')
    e(f'.globl {KN}')
    e('.p2align 8')
    e(f'.type {KN},@function')
    e(f'{KN}:')
    e(f's_cmp_ge_u32 s2, {NWG}')
    e('s_cbranch_scc1 L_end')
    stamp(0)
    if o.padto and o.padev != 'm0': e('s_memrealtime s[100:101]')
    e('s_load_dwordx4 s[4:7], s[0:1], 0')
    e('s_load_dwordx4 s[8:11], s[0:1], 16')
    e('s_load_dwordx2 s[12:13], s[0:1], 32')
    e('v_lshrrev_b32 v2, 6, v0')
    e('v_and_b32 v1, 63, v0')
    e(f'v_readfirstlane_b32 s{WAVE}, v2')
    def decode():
        e('s_and_b32 s44, s2, 7')
        e('s_lshr_b32 s45, s2, 3')
        e('s_mul_i32 s46, s44, 31')
        e('s_min_u32 s44, s44, 4')
        e('s_add_u32 s46, s46, s44')
        e('s_add_u32 s46, s46, s45')
        if o.map == 0:
            e('s_mul_hi_u32 s47, s46, 68174085')
            e('s_mul_i32 s48, s47, 63')
            e('s_sub_u32 s48, s46, s48')
            e(f's_mul_hi_u32 s{NB}, s48, 613566757')
            e(f's_mul_i32 s49, s{NB}, 7')
            e('s_sub_u32 s49, s48, s49')
            e('s_mul_i32 s47, s47, 7')
            e('s_add_u32 s47, s47, s49')
        elif o.map == 1:
            e('s_mul_hi_u32 s47, s46, 477218589')
            e('s_mul_i32 s48, s47, 9')
            e(f's_sub_u32 s{NB}, s46, s48')
        else:
            e('s_mul_hi_u32 s47, s46, 34087043')
            e('s_mul_i32 s48, s47, 126')
            e('s_sub_u32 s48, s46, s48')
            e(f's_mul_hi_u32 s{NB}, s48, 306783379')
            e(f's_mul_i32 s49, s{NB}, 14')
            e('s_sub_u32 s49, s48, s49')
            e('s_mul_i32 s47, s47, 14')
            e('s_add_u32 s47, s47, s49')
        e(f's_and_b32 s{PAR}, s47, 1')
        e('s_lshr_b32 s47, s47, 1')
        e('s_cmp_ge_u32 s47, 7')
        e(f's_cselect_b32 s{BOFF}, 1152000, 0')
        e('s_cselect_b32 s48, 7, 0')
        e(f's_sub_u32 s{MB}, s47, s48')
        e(f's_mul_i32 s{XB}, s{MB}, 576')
        e(f's_add_u32 s{XB}, s{XB}, s{PAR}')
        e(f's_sub_u32 s{XB}, s{XB}, 60')
        e(f's_mul_i32 s{XB}, s{XB}, 288')
    RID = 3 if o.rmap else 2
    if o.rmap:
        e('s_and_b32 s44, s2, 3')
        e('s_lshr_b32 s45, s2, 3')
        e('s_lshl2_add_u32 s3, s45, s44')
        e('s_and_b32 s44, s2, 4')
        e('s_lshl_b32 s44, s44, 5')
        e('s_add_u32 s3, s3, s44')
    e(f's_cmp_ge_u32 s{WAVE}, 4')
    e('s_cbranch_scc1 L_helper')
    if o.cpf:
        e('s_lshr_b32 s44, s2, 3')
        e(f's_lshl_b32 s45, s{WAVE}, 5')
        e('s_add_u32 s44, s44, s45')
        e('s_sub_u32 s44, s44, 26')
        e('s_cmp_ge_u32 s44, 5')
        e('s_cbranch_scc1 L_main')
        e('s_getpc_b64 s[46:47]')
        e('L_pc:')
        e('s_lshl_b32 s44, s44, 13')
        e('v_lshl_add_u32 v2, v1, 7, s44')
        e('v_min_u32 v2, L_codeend-L_pc-4, v2')
        e('global_load_dword v63, v2, s[46:47]')
    if o.hfirst: e('s_branch L_main')
    mark = {'main0': len(e.L)}
    e('L_main:')
    e(f's_mov_b32 s{MASK}, 0xffff0000')
    e(f's_mov_b32 s{NPOLL}, 0')
    if o.diag: e('s_mov_b32 s95, 0')
    decode()

    VXO, VXOR, VXD, VXDR, VWL, VEX, VEXP, VOUT = 30, 31, 32, 33, 34, 35, 36, 37
    VF = 40
    VA = 48
    VCL = 60
    e('v_mul_u32_u24 v3, 3641, v0')
    e('v_lshrrev_b32 v3, 16, v3')
    e('v_mul_u32_u24 v2, 18, v3')
    e('v_sub_u32 v2, v0, v2')
    e('v_mul_u32_u24 v3, 1152, v3')
    e('v_lshl_add_u32 v3, v2, 4, v3')
    e(f's_add_u32 s46, s{XB}, 576')
    e(f'v_add_u32 v{VA}, s46, v3')
    e('v_mov_b32 v5, 16192')
    e('v_mov_b32 v6, 17056')
    for k in range(1, 12):
        e('v_cmp_le_u32 vcc, 14, v2')
        e('v_add_u32 v3, 4, v2')
        e('v_subrev_u32 v4, 14, v2')
        e('v_cndmask_b32 v7, v5, v6, vcc')
        e('v_cndmask_b32 v2, v3, v4, vcc')
        e(f'v_add_u32 v{VA+k}, v{VA+k-1}, v7')
    e(f's_lshl_b32 s50, s{WAVE}, 10')
    e(f's_add_u32 s50, s50, {X_O}')
    e(f's_add_u32 s51, s50, {4096*11}')
    e('s_movk_i32 s49, 4096')
    if o.orev:
        e(f's_bitcmp0_b32 s{NB}, 0')
        e('s_cbranch_scc1 L_fwd')
        for k in range(5): e(f'v_swap_b32 v{VA+k}, v{VA+10-k}')
        e(f's_add_u32 s50, s50, {4096*10}')
        e('s_movk_i32 s49, -4096')
        e('L_fwd:')
    e(f'v_mov_b32 v{VF+1}, {CNT}')
    for r in range(4, 8): e(f'v_mov_b32 v{r}, 0')
    e(f'ds_write_b128 v{VF+1}, v[4:7]')
    e(f'ds_write_b128 v{VF+1}, v[4:7] offset:16')
    e('s_waitcnt lgkmcnt(0)')
    if o.wsb:
        e(f's_add_u32 s12, s12, {o.wsb}'); e('s_addc_u32 s13, s13, 0')
    e(f's_load_dword s{TAG}, s[12:13], {NONCE}')
    srd(e, S_X, 4, 1152000, add=BOFF)
    def odma(k):
        e(f's_mov_b32 m0, s{51 if k == 11 else 50}')
        e('s_add_u32 s50, s50, s49')
        e(f'buffer_load_dwordx4 v{VA+k}, {sr(S_X)}, 0 offen lds')
    def etouch():
        e(f'buffer_load_dword v62, v9, {sr(S_X)}, 0 offen')
    if o.mtouch and o.tskip:
        e(f's_lshr_b32 s47, s{RID}, 4')
        e('s_lshr_b32 s47, 0x33, s47')
        e('s_lshl_b32 s47, s47, 31')
    if o.mtouch:
        e('v_min_u32 v8, 39, v1')
        e('v_lshrrev_b32 v9, 2, v8')
        e(f's_mul_i32 s46, s{WAVE}, 10')
        e('v_add_u32 v9, s46, v9')
        e(f'v_mul_u32_u24 v9, {4*1152}, v9')
        e('v_and_b32 v8, 3, v8')
        e('v_mul_u32_u24 v8, 92, v8')
        e(f's_and_b32 s46, s{NB}, {7 if o.mtouch == 4 else 3}')
        e(f's_mul_i32 s46, s46, {576 if o.mtouch == 4 else 1152}')
        e(f's_add_u32 s46, s46, s{XB}')
        e('v_add3_u32 v9, v9, v8, s46')
        if o.tskip == 1: e('v_or_b32 v9, s47, v9')
    if o.mtouch == 4 and o.tskip == 2:
        e('s_cmp_eq_u32 s47, 0')
        e('s_cbranch_scc1 L_tn')
        e('s_waitcnt lgkmcnt(0)')
        e('L_tn:')
    if o.mtouch in (2, 4): etouch()
    if o.padto and o.padev == 'm13':
        e('s_waitcnt vmcnt(0)'); stamp(13)
    if o.padto and o.padev == 'm14':
        odma(0); e('s_sub_u32 s50, s50, s49'); e('s_waitcnt vmcnt(0)'); stamp(14)
    if o.padto: stamp(10)
    for k in range(o.opre): odma(k)
    e('s_barrier')
    stamp(1)
    jit()
    if o.mtouch == 3: etouch()
    for k in range(o.opre, 12):
        if k == 11:
            e(f's_cmp_lg_u32 s{WAVE}, 0')
            e('s_cbranch_scc1 L_o11')
        odma(k)
    e('L_o11:')
    if o.mtouch == 1: etouch()
    srd(e, S_WS, 12, WS_REC)
    if o.epoll:
        assert o.mtouch in (1, 4) and o.tskip
        e(f's_and_b32 s{TYP}, s{WAVE}, 1')
        e(f's_lshl_b32 s{FO}, s{TYP}, 13')
        e('s_mov_b32 s96, s47')
        e('s_xor_b32 s46, s47, 0x80000000')
        e(f'v_min_u32 v{VF}, 31, v1')
        e(f'v_lshlrev_b32 v{VF}, 7, v{VF}')
        e(f'v_or_b32 v2, s46, v{VF}')
        e(f'buffer_load_dword v{VF+4}, v2, {sr(S_WS)}, s{FO} offen sc1')
    srd(e, S_OUT, 8, 1152000, add=BOFF)
    srd(e, S_DBG, 10, 256)
    e('v_and_b32 v2, 15, v1')
    e('v_lshrrev_b32 v3, 4, v1')
    e('v_subrev_u32 v5, 4, v2')
    e('v_add_u32 v6, 8, v2')
    e('v_cmp_gt_u32 vcc, 4, v2')
    e('v_cmp_le_u32 s[46:47], 12, v2')
    e(f's_and_b32 s{TYP}, s{WAVE}, 1')
    e(f's_lshr_b32 s48, s{WAVE}, 1')
    e('v_cndmask_b32 v5, v5, v6, vcc')
    e('v_cndmask_b32 v5, v5, v2, s[46:47]')
    e('v_mul_u32_u24 v5, 9, v5')
    e('v_mul_u32_u24 v4, 288, v5')
    e('v_lshl_add_u32 v6, v3, 4, v4')
    e('v_and_b32 v7, 1, v3')
    e('v_lshl_add_u32 v7, v7, 4, v4')
    e('v_lshrrev_b32 v8, 1, v3')
    e('v_mul_u32_u24 v8, 2304, v8')
    e('v_add_u32 v7, v7, v8')
    e('v_add_u32 v7, 256, v7')
    e(f's_mul_i32 s49, s{TYP}, {X_D1}')
    e(f'v_add_u32 v{VXO}, {X_O}, v6')
    e(f'v_add_u32 v{VXOR}, {X_O}, v7')
    e(f'v_add_u32 v{VXD}, s49, v6')
    e(f'v_add_u32 v{VXDR}, s49, v7')
    e('v_lshlrev_b32 v6, 4, v1')
    e(f's_mul_i32 s49, s{WAVE}, 9216')
    e(f's_add_u32 s49, s49, {X_O}')
    e(f'v_add_u32 v{VEX}, s49, v6')
    e(f's_xor_b32 s49, s{WAVE}, 1')
    e('s_mul_i32 s49, s49, 9216')
    e(f's_add_u32 s49, s49, {X_O}')
    e(f'v_add_u32 v{VEXP}, s49, v6')
    e('v_and_b32 v8, 0x39, v1')
    e('v_bfe_u32 v9, v1, 1, 1')
    e('v_lshl_add_u32 v8, v9, 2, v8')
    e('v_bfe_u32 v9, v1, 2, 1')
    e('v_lshl_add_u32 v8, v9, 1, v8')
    e(f'v_lshlrev_b32 v{VWL}, 4, v8')
    e(f's_mul_i32 s49, s{TYP}, 576')
    e(f's_add_u32 s49, s49, s{XB}')
    e(f's_add_u32 s49, s49, {60*288}')
    e(f's_lshl_b32 s50, s{NB}, 5')
    e('s_add_u32 s49, s49, s50')
    e('s_lshl_b32 s50, s48, 4')
    e('s_add_u32 s49, s49, s50')
    e('v_mul_u32_u24 v8, 1152, v5')
    e('v_lshl_add_u32 v8, v3, 2, v8')
    e(f'v_add_u32 v{VOUT}, s49, v8')
    e(f'v_add_u32 v{VOUT+1}, 3456, v{VOUT}')
    e(f'v_add_u32 v{VOUT+2}, 6912, v{VOUT}')
    e(f's_lshl_b32 s49, s{NB}, 1')
    e('s_add_u32 s49, s49, s48')
    e(f's_mul_i32 s49, s49, {NSTR}')
    e(f's_mul_i32 s{WSO}, s{TYP}, {NSTEP*1024}')
    e(f's_add_u32 s{WSO}, s{WSO}, s49')
    e(f's_add_u32 s{WSO}, s{WSO}, {WOFF + (16384 if o.tagp else 0)}')
    if o.tagp:
        e(f's_lshl_b32 s96, s{TYP}, 15')
        e('s_add_u32 s96, s96, s49')
        e(f's_add_u32 s96, s96, {WOFF + 2*NSTEP*1024}')
    e(f's_mov_b32 s{C2L}, 0x4038aa3b'); e(f's_mov_b32 s{C2L+1}, 0x4038aa3b')
    e(f's_mov_b32 s{CNL}, 0xbfb8aa3b'); e(f's_mov_b32 s{CNL+1}, 0xbfb8aa3b')
    e(f's_mov_b32 s{C60}, 0x42700000')
    e(f'v_min_u32 v{VF}, 31, v1')
    e(f'v_lshlrev_b32 v{VF}, 7, v{VF}')
    e(f'v_min_u32 v{VF+6}, 47, v1')
    e(f'v_lshlrev_b32 v{VF+6}, 7, v{VF+6}')
    e(f'v_mov_b32 v{VF+2}, 1')
    e('s_lshl_b32 s46, s48, 2')
    e(f'v_add_u32 v{VF+5}, s46, v{VF+1}')
    e(f's_or_b32 s46, s2, s{WAVE}')
    e('v_or_b32 v2, s46, v1')
    e('v_cmp_eq_u32 vcc, 0, v2')
    e(f'v_mov_b32 v{VCL}, -16')
    e(f'v_mov_b32 v{VCL+1}, -16')
    e(f'v_mov_b32 v3, {NONCE}')
    e(f'v_cndmask_b32 v{VCL}, v{VCL}, 4, vcc')
    e(f'v_cndmask_b32 v{VCL+1}, v{VCL+1}, v3, vcc')
    if o.yall:
        e(f's_lshr_b32 s46, s{NB}, 1')
        e(f's_add_u32 s47, s{NB}, 9')
        e('s_lshr_b32 s47, s47, 1')
        e('v_mov_b32 v4, s46')
        e('v_mov_b32 v5, s47')
        e('v_cmp_gt_u32 vcc, 32, v1')
        e('v_and_b32 v2, 7, v1')
        e('v_and_b32 v3, 15, v1')
        e('v_cndmask_b32 v4, v5, v4, vcc')
        e('v_min_u32 v3, 11, v3')
        e('v_mad_u32_u24 v2, v2, 9, v4')
        e('v_mad_u32_u24 v3, v3, 9, v4')
        e('v_lshlrev_b32 v2, 7, v2')
        e('v_lshlrev_b32 v3, 7, v3')
    e(f's_lshl_b32 s{FO}, s{TYP}, 13')
    if o.warmb:
        e(f's_cmp_eq_u32 s{TYP}, 1')
        e('s_cbranch_scc1 L_warmB')
        e('L_warmret:')
    if o.xdel < 0:
        e(f's_waitcnt vmcnt({o.xsn})')
        e(f'v_mov_b32 v{VF+7}, 0x10000')
        e('s_mov_b64 exec, 1')
        e(f'ds_add_u32 v{VF+1}, v{VF+7} offset:8')
        e('s_mov_b64 exec, -1')
    e(f's_waitcnt vmcnt({(1 if o.mtouch == 1 else 0) + o.epoll}) lgkmcnt(0)')
    stamp(2)
    if o.padto and o.padev in ('m11', 'm12'):
        e(f's_lshr_b32 s46, s{RID}, 4')
        e('s_lshr_b32 s46, 0x33, s46')
        e('s_bitcmp1_b32 s46, 0')
        e(f's_cbranch_scc{1 if o.padev == "m11" else 0} L_pk')
        e('s_memrealtime s[100:101]'); e('s_waitcnt lgkmcnt(0)')
        e('L_pk:')
    e('s_mov_b64 exec, 1')
    e(f'ds_add_u32 v{VF+1}, v{VF+2} offset:8')
    e('s_mov_b64 exec, -1')
    e(f's_add_u32 s{TAG}, s{TAG}, {TAGINC}')
    e(f'v_mov_b32 v{VF+3}, s{TAG}')
    def flagwait(tag, vaddr, back):
        e(f'L_fw{tag}:')
        if o.diag and len(tag) == 2: e(f's_add_u32 s95, s95, {1 << (4 * int(tag[1]))}')
        e(f'buffer_load_dword v{VF+4}, v{vaddr}, {sr(S_WS)}, s{FO} offen sc1')
        e(f'ds_read_b32 v{VF+7}, v{VF+1} offset:12')
        e(f's_add_u32 s{NPOLL}, s{NPOLL}, 1')
        e('s_waitcnt vmcnt(0) lgkmcnt(0)')
        e(f'v_cmp_ne_u32 vcc, v{VF+3}, v{VF+4}')
        e(f'v_readfirstlane_b32 s46, v{VF+7}')
        e('s_nop 3')
        e(f's_cbranch_vccz {back}')
        e('s_cmp_lg_u32 s46, 0')
        e(f's_cbranch_scc1 {back}')
        e(f's_cmp_lg_u32 s{NPOLL}, {o.maxpoll}')
        e(f's_cbranch_scc1 L_fw{tag}')
        e(f'v_mov_b32 v{VF+7}, 0x10000')
        e('s_mov_b64 exec, 1')
        e(f'ds_add_u32 v{VF+1}, v{VF+7} offset:4')
        e('s_mov_b64 exec, -1')
        e(f's_branch L_fw{tag}')
    if o.epoll:
        e('s_cmp_eq_u32 s96, 0')
        e('s_cbranch_scc1 L_gate')
        e('s_waitcnt vmcnt(0)')
        e(f'v_cmp_ne_u32 vcc, v{VF+3}, v{VF+4}')
        e('s_nop 4')
        e('s_cbranch_vccz L_go')
    if o.gate:
        e('L_gate:')
        e(f'ds_read_b32 v{VF+4}, v{VF+1} offset:8')
        e('s_waitcnt lgkmcnt(0)')
        e(f'v_and_b32 v{VF+4}, 0xffff, v{VF+4}')
        e(f'v_cmp_gt_u32 vcc, 0x400, v{VF+4}')
        e('s_nop 4')
        e('s_cbranch_vccz L_gate2')
        e('s_sleep 1')
        e('s_branch L_gate')
        e('L_gate2:')
    if o.ppoll:
        e(f'buffer_load_dword v{VF+4}, v{VF}, {sr(S_WS)}, s{FO} offen sc1')
        e('L_pp:')
        for a_, b_ in ((VF + 4, 62), (62, VF + 4)):
            e(f's_sleep {o.ppoll}')
            e(f'buffer_load_dword v{b_}, v{VF}, {sr(S_WS)}, s{FO} offen sc1')
            e('s_waitcnt vmcnt(1)')
            e(f'v_cmp_ne_u32 vcc, v{VF+3}, v{a_}')
            e(f's_add_u32 s{NPOLL}, s{NPOLL}, 1')
            e('s_nop 3')
            e('s_cbranch_vccz L_go')
        e(f's_cmp_lt_u32 s{NPOLL}, 40')
        e('s_cbranch_scc1 L_pp')
        e(f's_mov_b32 s{NPOLL}, 0')
    if o.p0plain:
        e(f'buffer_load_dword v{VF+4}, v{VF}, {sr(S_WS)}, s{FO} offen')
        e('s_waitcnt vmcnt(0)')
        e(f'v_cmp_ne_u32 vcc, v{VF+3}, v{VF+4}')
        e('s_nop 4')
        e('s_cbranch_vccz L_go')
    if o.onepoll:
        e(f's_cmp_lt_u32 s{WAVE}, 2')
        e('s_cbranch_scc1 L_fw0')
        e('L_op:')
        e(f'ds_read_b32 v{VF+7}, v{VF+1} offset:8')
        e('s_waitcnt lgkmcnt(0)')
        e(f's_add_u32 s46, s{TYP}, 16')
        e(f'v_lshrrev_b32 v{VF+7}, s46, v{VF+7}')
        e(f'v_and_b32 v{VF+7}, 1, v{VF+7}')
        e(f'v_cmp_eq_u32 vcc, 0, v{VF+7}')
        e('s_nop 4')
        e('s_cbranch_vccnz L_op')
        e('s_branch L_go2')
    if not o.tagp: flagwait('0', VF, 'L_go')
    e('L_go:')
    jit()
    if o.tagp: e('s_mov_b32 s50, s96')
    if o.onepoll:
        e(f's_lshl_b32 s46, 0x10000, s{TYP}')
        e(f'v_mov_b32 v{VF+7}, s46')
        e('s_mov_b64 exec, 1')
        e(f'ds_or_b32 v{VF+1}, v{VF+7} offset:8')
        e('s_mov_b64 exec, -1')
        e('L_go2:')
    stamp(3)
    e('L_gw:')
    e(f'ds_read_b32 v{VF+7}, v{VF+1} offset:8')
    e('s_waitcnt lgkmcnt(0)')
    e(f'v_and_b32 v{VF+7}, 0xff, v{VF+7}')
    e(f'v_cmp_ne_u32 vcc, 4, v{VF+7}')
    e('s_nop 4')
    e('s_cbranch_vccnz L_gw')
    stamp(4)
    e(f's_setprio {o.mprio}')
    e(f's_cmp_eq_u32 s{TYP}, 1')
    e('s_cbranch_scc1 L_typeB')

    ACC = {'P': 64, 'Q': 100}
    WR, TMP = 136, 224
    XRING = [200 + 4 * i for i in range(6)]
    XWIN = [4 + 4 * i for i in range(6)] + [240 + 4 * i for i in range(4)]
    VC = 28
    PF = o.pf
    GT = 98
    wflags = {0: '', 1: ' sc1', 2: ' nt', 3: ' sc0'}[o.wsc1]
    for typ, S in enumerate(streams()):
        if typ == 1:
            e('.p2align 6')
            if o.warmb: e('L_warmB:'); e('s_branch L_warmret')
            e('L_typeB:')
        ops = []
        vstart = {}
        lastv = o.vt - 1
        v0 = 0
        G0 = 0
        if o.flat0:
            for g in range(16):
                vstart[g] = len(ops)
                for j in (range(9) if g % 2 == 0 or not o.flatzz else range(8, -1, -1)): ops.append((g, j))
            v0 = G0 = 16
        while v0 <= lastv:
            ch = 1 if v0 < o.chfrom + G0 else min(o.chain, lastv + 1 - v0)
            n0 = len(ops)
            for j in range(8, -1, -1):
                us = range(ch) if j % 2 == 0 else range(ch - 1, -1, -1)
                first_ = [u for u in us if v0 + u - j == 0 or (0 < v0 + u - j < NSTEP and S[v0+u-j][4] == 'Q' and S[v0+u-j-1][4] == 'P')]
                if first_: us = range(ch)
                for u in us:
                    if G0 <= v0 + u - j < NSTEP: ops.append((v0 + u - j, j))
            for u in range(ch): vstart[v0 + u] = n0 + (len(ops) - n0) * u // ch
            v0 += ch
        ntail = len(ops)
        if o.tail:
            for j in range(9):
                for g in range(o.vt - j, NSTEP): ops.append((g, j))
        assert len(ops) == NSTEP * 9 and len(set(ops)) == len(ops)
        N = len(ops)
        def key(n):
            g, j = ops[n]
            pid, arr, ch, c, acc = S[g]
            k = (pid, arr, ch, c + j)
            if n >= ntail and g < GT: k = k + ((n,) if not o.hold else ('h',))
            return k
        first, last = {}, {}
        for n in range(N):
            first.setdefault(key(n), n); last[key(n)] = n
        wfirst, wlast = {}, {}
        for n, (g, j) in enumerate(ops):
            wfirst.setdefault(g, n); wlast[g] = n
        tasks = []
        for k, n0 in first.items():
            win = o.tail and k[2] == 'rem' and k[1] == 'D'
            la = o.xla if n0 < ntail else 6
            if n0 >= ntail and ops[n0][1] == 0: la = o.tla
            elif win: la = 12
            tasks.append([n0 - la, n0 - 1, 'X', k])
        for g in range(NSTEP):
            rel = -100 + g if g < o.pf0 else max(0, wfirst[g] - 9 * PF)
            if o.tagp and g < 16:
                rel = -100 + g if g < 4 else max(0, wfirst[g] - 9 * o.tpf)
                tasks.append([rel, wfirst[g & ~1] - 9, 'W', g])
                continue
            tasks.append([rel, wfirst[g] - 1, 'W', g])
        def at(v, off=0): return vstart[v] + off
        firstD = min(n for n in range(N) if S[ops[n][0]][1] == 'D')
        lastO = max(n for n in range(N) if S[ops[n][0]][1] == 'O')
        lastP = {j: max(n for n in range(N) if ops[n][1] == j and S[ops[n][0]][4] == 'P') for j in range(9)}
        slow = []
        vused = set()
        def check(v, off, cnt, tag):
            tasks.append([at(v - 1, 3), at(v - 1, 8), 'L', (f'ds_read_b32 v{VC}, v{VF+1} offset:{off}', ('c', tag))])
            tasks.append([at(v, 0), at(v, 1), 'C', (f'v_cmp_ne_u32 vcc, {cnt}, v{VC}', ('c', tag))])
            tasks.append([at(v, 6), at(v, 7), 'I', [f's_cbranch_vccnz L_slow{typ}{tag}', f'L_back{typ}{tag}:']])
            slow.append((tag, off, cnt))
            vused.add(v)
            return at(v, 8)
        def add1(pos, off):
            tasks.append([pos, pos + 4, 'A', off])
        vD = [v for v in vstart if vstart[v] <= firstD - o.xla][-1] - 1
        okD = check(vD, 16, 4, 'D')
        assert okD <= firstD - o.xla
        add1(lastO, 20)
        VP = 47
        okR = check(VP, 20, 4, 'R')
        for j in range(9):
            assert lastP[j] + 12 < at(VP + 1 + j, 2)
            tasks.append([at(VP + 1 + j, 2), at(VP + 1 + j, 8), 'L', (f'ds_write_b128 v{VEX}, {vr(ACC["P"]+4*j,4)} offset:{1024*j}', ('pw', j))])
        tasks.append([at(VP + 10, 0), at(VP + 10, 4), 'A', 'pair'])
        VQ = VP + 13
        okP = check(VQ, 'pair', 2, 'P')
        for j in range(9):
            tasks.append([at(VQ + 1 + j, 2), at(VQ + 1 + j, 8), 'L', (f'ds_read_b128 {vr(TMP+4*(j&1),4)}, v{VEXP} offset:{1024*j}', ('pr', j))])
            v = VQ + 2 + j
            pos = at(v, 8 - (j + 2) - 1) if j <= 6 else at(v, 8 - (j - 7) - 1)
            sh = 1 if j >= 7 else 0
            if o.chain > 1:
                own = [n for n in range(N) if ops[n][1] == j]
                pos = [a_ + 10 for a_, b_ in zip(own, own[1:]) if b_ - a_ >= 14 and a_ + 9 >= at(v, 0) ][0]
                sh = 0
                tasks[-1][0] = pos - 9; tasks[-1][1] = pos - 4
                tasks[-1][3] = (f'ds_read_b128 {vr(TMP+4*(j&3),4)}, v{VEXP} offset:{1024*j}', ('pr', j))
            tasks.append([pos - 1 + sh, pos - 1 + sh, 'Q', (j, 0)])
            tasks.append([pos + sh, pos + sh, 'Q', (j, 1)])
        if typ == 0:
            tasks.append([at(o.vclose, 4), at(o.vclose, 8), 'S', f'buffer_store_dword v{VCL+1}, v{VCL}, {sr(S_DBG)}, 0 offen sc1'])
            tasks.append([at(o.vnonce, 4), at(o.vnonce, 8), 'S', f'buffer_store_dword v{VF+3}, v{VCL+1}, {sr(S_WS)}, 0 offen sc1'])
        fslow = []
        kslow = []
        if o.tagp:
            for g in range(0, 16, 2):
                n0 = wfirst[g]
                if g < 4: continue
                tasks.append([n0 - 8, n0 - 7, 'K', g])
                tasks.append([n0 - 2, n0 - 1, 'I', ['s_cmp_lg_u64 s[48:49], 0', f's_cbranch_scc1 L_ks{typ}{g}', f'L_kb{typ}{g}:']])
        passes = {}
        for g in range(NSTEP): passes.setdefault(S[g][0], g)
        need = [(passes[1], VF, 32 + 64 * typ), (32, VF + 6, 128), (passes[4], VF, 176), (passes[5], VF, 208), (passes[6], VF + 6, 240)]
        if o.c2split:
            need[1:2] = [(32, VF, 112), (passes[3], VF, 144)]
            o.pfcs6 = [o.pfcs[0], 10] + o.pfcs[1:]; o.fleads6 = [o.fleads[0], 8] + o.fleads[1:]
        else:
            o.pfcs6 = o.pfcs; o.fleads6 = o.fleads
        if o.yall: need[2:] = [(passes[4], 2, 176), (passes[5], 2, 176 + 72), (passes[6], 3, 176 + 144)]
        lastG = -1
        for ci, (gn, va, idx) in enumerate(need):
            v = gn - o.pfcs6[ci] - 1
            while v in vused: v -= 1
            tasks.append([at(v - o.fleads6[ci], 4), at(v - o.fleads6[ci], 8), 'F', (va, idx, ci)])
            tasks.append([at(v, 0), at(v, 1), 'G', ci])
            tasks.append([at(v, 6), at(v, 7), 'I', [f's_cbranch_vccnz L_fw{typ}{ci}', f'L_fb{typ}{ci}:']])
            fslow.append((ci, va))
            assert v not in vused, v
            vused.add(v)
            assert at(v - o.fleads6[ci], 4) > lastG, (ci, v)
            lastG = at(v, 7)
            for t in tasks:
                if t[2] == 'W' and (t[3] >= gn): t[0] = max(t[0], at(v, 8))
        tasks.append([at(v + 1, 2), at(v + 1, 8), 'A', 4])
        if typ == 0:
            for lvl, v in enumerate(o.trig): tasks.append([at(v, 2), at(v, 8), 'P', lvl + 1])
            if o.wbat: tasks.append([ntail + o.wbat, ntail + o.wbat + 6, 'P', 4])
        tasks.sort(key=lambda t: (t[0], t[1]))
        vq, lq = [], []
        dirty = [False]
        xreg, busy = {}, {}
        wn = [0]
        wr = {}
        lastw = [-100]
        later = []
        sret, cur = [], [0]
        BIG = [WR + 4 * i for i in range(16)] + XWIN + [ACC['P'] + 4 * i for i in range(9)]
        for i in range(9): busy[ACC['P'] + 4 * i] = at(VP + 12)
        until = {}
        if o.chain > 1:
            BIG += XRING + [VA, VA + 4, VA + 8]
            for i in range(9):
                BIG.append(ACC['Q'] + 4 * i)
                until[ACC['Q'] + 4 * i] = min(n for n in range(N) if ops[n][1] == i and S[ops[n][0]][4] == 'Q') - 3
        def freeregs(n, end): return [x for x in BIG if busy.get(x, -1) <= n and end < until.get(x, 10**9)]
        def freepairs(n, end):
            f_ = set(freeregs(n, end))
            return [x for x in sorted(f_) if x % 8 == PAR8.get(x, -1) and x + 4 in f_]
        PAR8 = {x: x % 8 for x in list(range(WR, WR + 64, 8)) + [4, 12, 20, 240, 248, 200, 208, 216, 100, 108, 116, 124, VA]}
        def kcheck(g):
            vwait(g + 1)
            for i, gg in enumerate((g, g + 1)):
                a_ = wr[gg] - 2
                em(f'v_bitop3_b32 v{VC+i}, v{a_+1}, v{a_+6}, v{VF+3} bitop3:0x7e')
            em(f'v_or_b32 v{VC}, v{VC}, v{VC+1}')
            em(f'v_cmp_ne_u32 s[48:49], 0, v{VC}')
            kslow.append((g, wr[g] - 2, wr[g + 1] - 2))
        def wok(t, n):
            if t[2] != 'W': return True
            if t[3] != wn[0]: return False
            if o.tagp and t[3] < 16:
                return bool(freepairs(n, wlast[t[3]])) and (n - lastw[0] >= 2 or t[1] - n <= 4)
            free = len(freeregs(n, wlast[t[3]]))
            if t[1] - n <= 9 * 3: return free > 0
            return n - lastw[0] >= o.wgap and free > o.wres
        since = {}
        fill = []
        def em(x):
            e(x)
            if not x.endswith(':'):
                for jj in since: since[jj] += 1
        def lwait(tag):
            if tag not in lq: return
            i = lq.index(tag)
            em(f's_waitcnt lgkmcnt({0 if dirty[0] else len(lq)-1-i})')
            if dirty[0]: lq.clear(); dirty[0] = False
            else: del lq[:i + 1]
        def vwait(g):
            if g not in vq: return
            i = vq.index(g)
            em(f's_waitcnt vmcnt({len(vq)-1-i})')
            if any(isinstance(x, tuple) and x[0] == 's' for x in vq[:i + 1]): sret.append(cur[0])
            del vq[:i + 1]
        def run(t, n):
            kind, p = t[2], t[3]
            if kind == 'X':
                pool = BIG if (o.chain > 1 or p[-1] == 'h' or (p[2] == 'rem' and p[1] == 'D')) else XRING
                r = [x for x in pool if busy.get(x, -1) <= n and last[p] < until.get(x, 10**9)]
                assert r, ('no x register', p, n)
                r = min(r, key=lambda x: (until.get(x, 10**9), busy.get(x, -1)))
                busy[r] = last[p]; xreg[p] = r
                arr, ch, s_ = p[1], p[2], p[3]
                if o.nolds and n > 9 * 30: return
                if ch == 'rem': em(f'ds_read_b128 {vr(r,4)}, v{VXOR if arr == "O" else VXDR} offset:{288*s_}')
                else: em(f'ds_read_b128 {vr(r,4)}, v{VXO if arr == "O" else VXD} offset:{64*ch+288*s_}')
                lq.append(p)
            elif kind == 'W':
                g = p
                if o.tagp and g < 16:
                    r = min(freepairs(n, wlast[g]), key=lambda x: (until.get(x, 10**9), busy.get(x, -1)))
                    busy[r] = busy[r + 4] = wlast[g]; wr[g] = r + 2
                    assert g == wn[0]; wn[0] += 1
                    lastw[0] = n
                    em(f'buffer_load_dwordx4 {vr(r,4)}, v{VWL}, {sr(S_WS)}, s50 offen offset:{2048*(g%2)}')
                    em(f'buffer_load_dwordx4 {vr(r+4,4)}, v{VWL}, {sr(S_WS)}, s50 offen offset:{2048*(g%2)+1024}')
                    vq.append(('h', g)); vq.append(g)
                    if g % 2 == 1:
                        if n < 0: em('s_add_u32 s50, s50, 4096')
                        else: later.append('s_add_u32 s50, s50, 4096')
                    return
                r = min(freeregs(n, wlast[g]), key=lambda x: (until.get(x, 10**9), busy.get(x, -1)))
                busy[r] = wlast[g]; wr[g] = r
                assert g == wn[0]; wn[0] += 1
                lastw[0] = n
                if o.now and g > 40: return
                if o.wsame and g > 40:
                    em(f'buffer_load_dwordx4 {vr(r,4)}, v{VWL}, {sr(S_WS)}, s{WSO} offen offset:{1024*(g%4)}{wflags}'); vq.append(g); return
                em(f'buffer_load_dwordx4 {vr(r,4)}, v{VWL}, {sr(S_WS)}, s{WSO} offen offset:{1024*(g%4)}{wflags}')
                if g % 4 == 3:
                    if n < 0: em(f's_add_u32 s{WSO}, s{WSO}, 4096')
                    else: later.append(f's_add_u32 s{WSO}, s{WSO}, 4096')
                vq.append(g)
            elif kind == 'L':
                em(p[0].replace('offset:pair', 'offset:24').replace(f'v{VF+1} offset:24', f'v{VF+5} offset:24')); lq.append(p[1])
            elif kind == 'C':
                lwait(p[1]); em(p[0])
            elif kind == 'I':
                for x in p: em(x)
            elif kind == 'A':
                em('s_mov_b64 exec, 1')
                if p == 'pair': em(f'ds_add_u32 v{VF+5}, v{VF+2} offset:24')
                else: em(f'ds_add_u32 v{VF+1}, v{VF+2} offset:{p}')
                em('s_mov_b64 exec, -1')
                lq.append(('a', p))
            elif kind == 'Q':
                p, hf = p
                lwait(('pr', p))
                q = ACC['Q'] + 4 * p; t_ = TMP + 4 * (p & (3 if o.chain > 1 else 1))
                for i in (2 * hf, 2 * hf + 1): em(f'v_add_f32 v{q+i}, v{q+i}, v{t_+i}')
            elif kind == 'S':
                assert not any(isinstance(x, tuple) and x[0] == 's' for x in vq)
                if sret and o.cpar: assert (n - sret[0]) * 16 >= 2.1 * 2400, (n, sret)
                em(p); vq.append(('s', n))
            elif kind == 'F':
                em(f's_mov_b32 s{FO}, {128*p[1]}')
                em(f'buffer_load_dword v{VF+4}, v{p[0]}, {sr(S_WS)}, s{FO} offen {o.fflags}'); vq.append(('f', p[2]))
            elif kind == 'K':
                kcheck(p)
            elif kind == 'G':
                vwait(('f', p)); em(f'v_cmp_ne_u32 vcc, v{VF+3}, v{VF+4}')
            elif kind == 'P':
                em(f'v_mov_b32 v{VF+7}, {p}')
                em('s_mov_b64 exec, 1')
                em(f'ds_max_u32 v{VF+1}, v{VF+7}')
                em('s_mov_b64 exec, -1')
                lq.append(('p', p))
        def epi(j, pk):
            q = ACC['Q'] + 4 * j
            t = TMP + 8 * (j & 1)
            I = []
            if pk:
                I.append(f'v_pk_mul_f32 {vr(t,2)}, {vr(q,2)}, s[{C2L}:{C2L+1}]')
                I.append(f'v_pk_mul_f32 {vr(t+2,2)}, {vr(q+2,2)}, s[{CNL}:{CNL+1}]')
            else:
                for i in (0, 1): I.append(f'v_mul_f32 v{t+i}, s{C2L}, v{q+i}')
                for i in (2, 3): I.append(f'v_mul_f32 v{t+i}, s{CNL}, v{q+i}')
            I.append(f'v_min_f32 v{t}, s{C60}, v{t}')
            I.append(f'v_min_f32 v{t+1}, s{C60}, v{t+1}')
            for i in (0, 1, 2, 3): I.append(f'v_exp_f32 v{t+i}, v{t+i}')
            if pk:
                I.append(f'v_pk_add_f32 {vr(t+4,2)}, {vr(t,2)}, 1.0 op_sel_hi:[1,0]')
                I.append(f'v_pk_add_f32 {vr(t+6,2)}, {vr(t,2)}, -1.0 op_sel_hi:[1,0]')
                I.append(f'v_pk_fma_f32 {vr(t+4,2)}, {vr(t+4,2)}, {vr(t+2,2)}, {vr(t+4,2)}')
            else:
                for i in (0, 1): I.append(f'v_add_f32 v{t+4+i}, 1.0, v{t+i}')
                for i in (0, 1): I.append(f'v_fma_f32 v{t+4+i}, v{t+4+i}, v{t+2+i}, v{t+4+i}')
            I.append(f'v_rcp_f32 v{t+4}, v{t+4}')
            I.append(f'v_rcp_f32 v{t+5}, v{t+5}')
            if pk:
                I.append('s_nop 0')
                I.append(f'v_pk_mul_f32 {vr(t+6,2)}, {vr(t+6,2)}, {vr(t+4,2)}')
            else:
                for i in (0, 1): I.append(f'v_add_f32 v{t+6+i}, -1.0, v{t+i}')
                for i in (0, 1): I.append(f'v_mul_f32 v{t+6+i}, v{t+6+i}, v{t+4+i}')
            I.append(f'v_cvt_pk_bf16_f32 v{q}, v{t+6}, v{t+7}')
            I.append(f'buffer_store_dword v{q}, v{VOUT + j//3}, {sr(S_OUT)}, 0 offen offset:{1152*(j%3)} {o.oflags if j < o.oj else ""}')
            return I
        def cost(x): return 2 if x.startswith(('v_exp', 'v_rcp', 'buffer')) else 1
        while tasks and tasks[0][0] < 0: run(tasks.pop(0), -1)
        if o.tagp and o.retry:
            vwait(3)
            for g in range(4):
                em(f'v_bitop3_b32 v{TMP+g}, v{wr[g]-1}, v{wr[g]+4}, v{VF+3} bitop3:0x7e')
            em(f'v_or3_b32 v{TMP}, v{TMP}, v{TMP+1}, v{TMP+2}')
            em(f'v_or_b32 v{TMP}, v{TMP}, v{TMP+3}')
            em(f'v_cmp_ne_u32 s[48:49], 0, v{TMP}')
            em('s_nop 2')
            em('s_cmp_lg_u64 s[48:49], 0')
            em(f's_cbranch_scc1 L_rt{typ}')
            em(f'L_rb{typ}:')
            first4 = [wr[g] - 2 for g in range(4)]
        elif o.tagp:
            for g in (0, 2):
                vwait(g + 1)
                for gg in (g + 4, g + 5):
                    t_ = [t for t in tasks if t[2] == 'W' and t[3] == gg][0]
                    tasks.remove(t_); run(t_, -1)
                kcheck(g)
                em('s_nop 2')
                em('s_cmp_lg_u64 s[48:49], 0')
                em(f's_cbranch_scc1 L_ks{typ}{g}')
                em(f'L_kb{typ}{g}:')
        inv = {n: v for v, n in vstart.items()}
        lastop = {j: max(n for n in range(N) if ops[n][1] == j) for j in range(9)}
        for n, (g, j) in enumerate(ops):
            if n in inv and o.padto and o.padev == 'm5' and inv[n] == o.padstep:
                e(f's_sub_u32 s98, s2, {o.padlo}')
                e(f's_cmp_ge_u32 s98, {o.padhi - o.padlo}')
                e(f's_cbranch_scc1 L_pr{typ}')
                e('s_memrealtime s[100:101]'); dirty[0] = True
                e(f'L_pr{typ}:')
            if n in inv and o.diag:
                v = inv[n]
                if o.diag == 2 and v in o.marks:
                    kk = o.marks.index(v)
                    e(f's_memtime s[{ST0+2*kk}:{ST0+2*kk+1}]'); dirty[0] = True
                if o.diag in (1, 4) and v == 33: stamp(5); stamp(6); dirty[0] = True
            if o.jit and n in inv and inv[n] in (20, 36, 44, 52, 60, 70, 90): jit()
            cur[0] = n
            k = key(n)
            assert k in xreg, (k, n)
            lwait(k); vwait(g)
            acc = S[g][4]
            d = ACC[acc] + 4 * j
            if g == 0: cs = '0'
            elif acc == 'Q' and S[g-1][4] == 'P': cs = vr(ACC['P'] + 4 * j, 4)
            else: cs = vr(d, 4)
            em(f'v_mfma_f32_16x16x32_bf16 {vr(d,4)}, {vr(wr[g],4)}, {vr(xreg[k],4)}, {cs}' if not o.swapab else f'v_mfma_f32_16x16x32_bf16 {vr(d,4)}, {vr(xreg[k],4)}, {vr(wr[g],4)}, {cs}')
            if n == lastop[j]: since[j] = 0
            while later: em(later.pop(0))
            budget = 2
            TC = {'X': 1, 'W': 2, 'L': 2, 'C': 1, 'I': 0, 'A': 1, 'Q': 2, 'S': 2, 'F': 2, 'G': 1, 'P': 2, 'K': 2}
            while True:
                ready = [t for t in tasks if t[0] <= n and wok(t, n)]
                if not ready: break
                t = min(ready, key=lambda t: t[1])
                assert t[1] >= n, ('late', t, n)
                if TC[t[2]] > budget and t[1] > n:
                    fit = [u for u in ready if TC[u[2]] <= budget]
                    if not fit: break
                    t = min(fit, key=lambda t: t[1])
                tasks.remove(t); run(t, n); budget -= TC[t[2]]
            for jj in sorted(since):
                if 8 <= since[jj] < 10**6:
                    fill += epi(jj, False); since[jj] = 10**6
            budget += o.nfill - 2
            while fill and budget >= cost(fill[0]):
                budget -= cost(fill[0])
                if fill[0].startswith('buffer_store'):
                    q_ = int(re.match(r'buffer_store_dword v(\d+)', fill[0]).group(1))
                    until.pop(q_, None); busy[q_] = n + 2
                em(fill.pop(0))
            assert all(t[1] > n for t in tasks), ('late', n, [t for t in tasks if t[1] <= n])
        assert not tasks
        stamp(7)
        while fill: em(fill.pop(0))
        for jj in [jj for jj in sorted(since) if since[jj] < 10**6]:
            if since[jj] < 8: em(f's_nop {8-since[jj]-1}')
            for x in epi(jj, True): em(x)
        stamp(8)
        if o.padto and o.padev[0] == 'm': padloop(typ)
        if o.diag == 1:
            e('s_waitcnt vmcnt(0)')
            stamp(9)
            dump(10)
        if o.diag == 2:
            kk = len(o.marks)
            e(f's_memtime s[{ST0+2*kk}:{ST0+2*kk+1}]')
            dump(10)
        e('s_endpgm')
        for tag, off, cnt in slow:
            e(f'L_slow{typ}{tag}:')
            e(f'ds_read_b32 v{VC}, v{VF+5 if off == "pair" else VF+1} offset:{24 if off == "pair" else off}')
            e('s_waitcnt lgkmcnt(0)')
            e(f'v_cmp_ne_u32 vcc, {cnt}, v{VC}')
            e('s_nop 4')
            e(f's_cbranch_vccnz L_slow{typ}{tag}')
            e(f's_branch L_back{typ}{tag}')
        for ci, va in fslow: flagwait(f'{typ}{ci}', va, f'L_fb{typ}{ci}')
        if o.tagp and o.retry:
            e(f'L_rt{typ}:')
            if o.diag: e(f's_add_u32 s95, s95, {1 << 24}')
            e(f's_sleep {o.retry}')
            e(f'ds_read_b32 v{VF+7}, v{VF+1} offset:12')
            e('s_add_u32 s47, s96, 4096')
            e('s_waitcnt lgkmcnt(0)')
            for g, a_ in enumerate(first4):
                for hf in range(2):
                    e(f'buffer_load_dwordx4 {vr(a_+4*hf,4)}, v{VWL}, {sr(S_WS)}, s{96 if g < 2 else 47} offen offset:{2048*(g%2)+1024*hf} sc1')
            e(f'v_readfirstlane_b32 s46, v{VF+7}')
            e(f's_add_u32 s{NPOLL}, s{NPOLL}, 1')
            e('s_waitcnt vmcnt(0)')
            e('s_cmp_lg_u32 s46, 0')
            e(f's_cbranch_scc1 L_rb{typ}')
            for g in range(4):
                e(f'v_bitop3_b32 v{TMP+g}, v{first4[g]+1}, v{first4[g]+6}, v{VF+3} bitop3:0x7e')
            e(f'v_or3_b32 v{TMP}, v{TMP}, v{TMP+1}, v{TMP+2}')
            e(f'v_or_b32 v{TMP}, v{TMP}, v{TMP+3}')
            e(f'v_cmp_ne_u32 s[48:49], 0, v{TMP}')
            e('s_nop 2')
            e('s_cmp_eq_u64 s[48:49], 0')
            e(f's_cbranch_scc1 L_rb{typ}')
            e(f's_cmp_lg_u32 s{NPOLL}, {o.maxpoll}')
            e(f's_cbranch_scc1 L_rt{typ}')
            e(f'v_mov_b32 v{VF+7}, 0x10000')
            e('s_mov_b64 exec, 1')
            e(f'ds_add_u32 v{VF+1}, v{VF+7} offset:4')
            e('s_mov_b64 exec, -1')
            e(f's_branch L_rt{typ}')
        for g, a0_, a1_ in kslow:
            e(f'L_ks{typ}{g}:')
            if o.diag: e(f's_add_u32 s95, s95, {1 << 24}')
            e(f'ds_read_b32 v{VF+7}, v{VF+1} offset:12')
            e(f's_add_u32 s47, s96, {2048*g}')
            e('s_waitcnt lgkmcnt(0)')
            for i, a_ in enumerate((a0_, a0_ + 4, a1_, a1_ + 4)):
                e(f'buffer_load_dwordx4 {vr(a_,4)}, v{VWL}, {sr(S_WS)}, s47 offen offset:{1024*i} sc1')
            e(f'v_readfirstlane_b32 s46, v{VF+7}')
            e(f's_add_u32 s{NPOLL}, s{NPOLL}, 1')
            e('s_waitcnt vmcnt(0)')
            e('s_cmp_lg_u32 s46, 0')
            e(f's_cbranch_scc1 L_kb{typ}{g}')
            e(f'v_bitop3_b32 v{VC}, v{a0_+1}, v{a0_+6}, v{VF+3} bitop3:0x7e')
            e(f'v_bitop3_b32 v{VC+1}, v{a1_+1}, v{a1_+6}, v{VF+3} bitop3:0x7e')
            e(f'v_or_b32 v{VC}, v{VC}, v{VC+1}')
            e(f'v_cmp_ne_u32 s[48:49], 0, v{VC}')
            e('s_nop 2')
            e('s_cmp_eq_u64 s[48:49], 0')
            e(f's_cbranch_scc1 L_kb{typ}{g}')
            e(f's_cmp_lg_u32 s{NPOLL}, {o.maxpoll}')
            e(f's_cbranch_scc1 L_ks{typ}{g}')
            e(f'v_mov_b32 v{VF+7}, 0x10000')
            e('s_mov_b64 exec, 1')
            e(f'ds_add_u32 v{VF+1}, v{VF+7} offset:4')
            e('s_mov_b64 exec, -1')
            e(f's_branch L_ks{typ}{g}')

    mark['help0'] = len(e.L)
    if not o.hfirst: e('.p2align 6')
    e('L_helper:')
    role[0] = 'h'
    e(f's_setprio {o.hprio}')
    if o.cpar: e('s_memrealtime s[68:69]')
    e(f's_sub_u32 s{TW0}, s{WAVE}, 4')
    e(f's_mov_b32 s{TW1}, s{WAVE}')
    e(f's_sub_u32 s{PAIR}, s{RID}, {NPROD}')
    e(f's_cselect_b32 s{PAIR}, s{RID}, s{PAIR}')
    e(f's_mov_b32 s{MODE}, 0')
    e(f's_mov_b32 s{NOTASK}, s{RID}')
    e(f's_mov_b32 s{HAS3}, s{TW0}')
    e(f's_lshl_b32 s{SCRB}, s{TW0}, 12')
    e(f's_add_u32 s{SCRB}, s{SCRB}, {SCR}')
    e('L_prod:')
    T = [(28, TW0, 2, 52, 0), (36, TW1, 4, 53, 2048), (44, TW2, 6, 54, 16384)]
    c, kp, q, cc, kk, t = 46, 47, 48, 49, 50, 51
    b = TS
    e('v_mov_b32 v19, 4320')
    e('v_and_b32 v23, 3, v1')
    e('v_lshrrev_b32 v24, 2, v1')
    e('v_mul_u32_u24 v24, 288, v24')
    for (vb, sw, vl, vs, so) in T:
        e(f'v_lshl_add_u32 v8, s{sw}, 2, v23' if sw != TW2 else 'v_add_u32 v8, 32, v23')
        e('v_cmp_le_u32 vcc, 18, v8')
        e(f'v_lshl_add_u32 v{vl}, v8, 4, v24')
        e(f'v_add_u32 v9, v{vl}, v19')
        e(f'v_cndmask_b32 v{vl}, v{vl}, v9, vcc')
    e(f's_and_b32 s{c}, s{PAIR}, 15')
    e(f's_lshr_b32 s{kp}, s{PAIR}, 4')
    e(f's_mul_i32 s{b}, s{c}, 165888')
    e(f's_mul_i32 s{t}, s{kp}, 9216')
    e(f's_add_u32 s{b}, s{b}, s{t}')
    e(f's_add_u32 s{b+1}, s{b}, 82944')
    e(f's_mov_b32 s{S_W+2}, 2571264')
    e(f's_mov_b32 s{S_W+3}, 0x20000')
    e(f's_mov_b32 s{S_WO+3}, s{S_W+3}')
    e(f's_cmp_lg_u32 s{c}, 15')
    e(f's_cselect_b32 s{S_WO+2}, s{S_W+2}, 0')
    e(f's_mov_b32 m0, s{SCRB}')
    e('s_waitcnt lgkmcnt(0)')
    e(f's_mov_b32 s{S_W}, s6')
    e(f's_and_b32 s{S_W+1}, s7, 0xffff')
    e(f's_mov_b32 s{S_WO}, s6')
    e(f's_and_b32 s{S_WO+1}, s7, 0xffff')
    e(f's_cmp_ge_u32 s{NOTASK}, {NTASK}')
    e('s_cbranch_scc1 L_a3')
    def cond3(lbl):
        e(f's_cmp_lg_u32 s{HAS3}, 0')
        e(f's_cbranch_scc1 {lbl}')
    for ti, (vb, sw, vl, vs, so) in enumerate(T):
        if ti == 2: cond3('L_a3')
        if ti == 1: e('s_addk_i32 m0, 1024'); e('s_nop 0')
        e(f'buffer_load_dwordx4 v{vl}, {sr(S_W)}, s{b} offen lds')
        e('s_addk_i32 m0, 1024')
        e('s_nop 0')
        e(f'buffer_load_dwordx4 v{vl}, {sr(S_WO)}, s{b+1} offen lds')
        if ti == 1: e(f's_addk_i32 m0, {16384-3072}')
    e('L_a3:')
    stamp(1)
    e(f's_cmp_lg_u32 s{MODE}, 0')
    e('s_cbranch_scc1 L_a4')
    if o.wsb:
        e(f's_add_u32 s12, s12, {o.wsb}'); e('s_addc_u32 s13, s13, 0')
    e(f's_load_dword s{TAG}, s[12:13], {NONCE}')
    e(f's_lshr_b32 s{EARLY}, 0x33, s{kp}')
    e(f's_and_b32 s{EARLY}, s{EARLY}, 1')
    e(f's_sub_u32 s{XK}, 2, s{EARLY}')
    e(f's_lshl_b32 s{t}, s{kp}, 1')
    e(f's_lshr_b32 s{YT}, {(3<<12)+(3<<14)+(3<<16)}, s{t}')
    e(f's_and_b32 s{YT}, s{YT}, 3')
    e(f's_lshr_b32 s{t}, s{kp}, 1')
    e(f's_cmp_ge_u32 s{RID}, {NPROD}')
    e(f's_cselect_b32 s{EARLY}, 0, s{EARLY}')
    e(f's_cselect_b32 s{XK}, 3, s{XK}')
    e(f's_cselect_b32 s{YT}, s{t}, s{YT}')
    e(f's_cmp_ge_u32 s{RID}, {NPROD+32}')
    e(f's_cselect_b32 s{XK}, 0, s{XK}')
    e(f's_cmp_ge_u32 s{RID}, {NTASK}')
    e(f's_cselect_b32 s{YT}, 0, s{YT}')
    if not o.b0early:
        e(f's_cmp_lg_u32 s{EARLY}, 0')
        e('s_cbranch_scc1 L_a4')
    e('s_barrier')
    e('L_a4:')
    VCA = 17 if o.cpar else 9
    def closedload(wait):
        e(f's_lshr_b32 s97, 0x33, s{kp}')
        e('s_and_b32 s97, s97, 1')
        e(f's_cmp_eq_u32 s{WAVE}, 4')
        e(f's_cselect_b32 s{t}, 1, s{97 if o.split1 else EARLY}')
        e(f's_cmp_lg_u32 s{t}, 0')
        e(f's_cselect_b32 s{t}, 4, -16')
        e(f'v_mov_b32 v{VCA}, s{t}')
        if wait: e('s_waitcnt lgkmcnt(0)')
        e('s_mov_b64 exec, 1')
        e(f'buffer_load_dword v27, v{VCA}, {sr(S_DBG)}, 0 offen sc1')
        e('s_mov_b64 exec, -1')
    jit()
    e(f's_mov_b32 s{MASK}, 0xffff0000')
    e(f's_mov_b32 s{NPOLL}, 0')
    srd(e, S_WS, 12, WS_REC)
    srd(e, S_DBG, 10, 256)
    if o.cpar: closedload(False)
    e(f'v_mov_b32 v10, {CNT}')
    e(f'v_mov_b32 v20, {(256 - 18*NSTR) & 0xffffffff}')
    e(f'v_mov_b32 v26, {NSTR}')
    e('v_bfe_u32 v21, v1, 2, 2')
    e('v_lshlrev_b32 v21, 7, v21')
    e('v_and_b32 v22, 1, v1')
    e('v_lshl_add_u32 v21, v22, 6, v21')
    e('v_bfe_u32 v22, v1, 1, 1')
    e('v_lshl_add_u32 v21, v22, 3, v21')
    e('v_lshrrev_b32 v22, 4, v1')
    e('v_lshl_add_u32 v21, v22, 4, v21')
    e(f'v_add_u32 v21, s{SCRB}, v21')
    if o.yall: e('v_mov_b32 v62, v21')
    e('v_and_b32 v25, 15, v1')
    e('v_lshlrev_b32 v25, 4, v25')
    for (vb, sw, vl, vs, so) in T:
        e(f'v_lshl_add_u32 v8, s{sw}, 2, v22' if sw != TW2 else 'v_add_u32 v8, 32, v22')
        e('v_cmp_le_u32 vcc, 18, v8')
        e(f'v_mad_u32_u24 v{vs}, v8, v26, v25')
        e(f'v_add_u32 v9, v{vs}, v20')
        e(f'v_cndmask_b32 v{vs}, v{vs}, v9, vcc')
    if o.tagp:
        if not o.cpar: closedload(True)
        else:
            e(f's_lshr_b32 s97, 0x33, s{kp}')
            e('s_and_b32 s97, s97, 1')
        e(f's_lshr_b32 s96, s{kp}, 2')
        e('s_lshl_b32 s96, s96, 4')
        e(f's_add_u32 s96, s96, s{c}')
        e('s_lshl_b32 s96, s96, 2')
        e(f's_and_b32 s{t}, s{kp}, 1')
        e(f's_add_u32 s96, s96, s{t}')
        e('s_lshl_b32 s96, s96, 9')
        e(f's_add_u32 s96, s96, {WOFF + 2*NSTEP*1024}')
    e(f's_lshr_b32 s{q}, s{kp}, 1')
    e(f's_and_b32 s{cc}, s{c}, 7')
    e(f's_lshr_b32 s{kk}, s{c}, 3')
    e(f's_and_b32 s{t}, s{kp}, 1')
    e(f's_cmp_eq_u32 s{kp}, 8')
    e(f's_cselect_b32 s{cc}, s{cc}, s{c}')
    e(f's_cselect_b32 s{kk}, s{kk}, s{t}')
    e(f's_lshl_b32 s{kk}, s{kk}, 9')
    e(f's_add_u32 s{kk}, s{kk}, {WOFF}')
    e(f's_lshl_b32 s{t}, s{q}, 4')
    e(f's_add_u32 s{b+2}, s{t}, s{cc}')
    e(f's_sub_u32 s{b+3}, s{b+2}, s{q}')
    e(f's_cmp_ge_u32 s{q}, 2')
    e(f's_cselect_b32 s{b+4}, 74, 0')
    e(f's_add_u32 s{b+4}, s{b+4}, s{b+2}')
    e(f's_cmp_lt_u32 s{cc}, 2')
    e(f's_cselect_b32 s{t}, 32, 136')
    e(f's_add_u32 s{t}, s{t}, s{cc}')
    e(f's_cmp_eq_u32 s{kp}, 8')
    e(f's_cselect_b32 s{b+4}, s{t}, s{b+4}')
    e(f's_add_u32 s{b+2}, s{b+2}, 34')
    e(f's_add_u32 s{b+3}, s{b+3}, 144')
    for k in (2, 3, 4):
        e(f's_lshl_b32 s{b+k}, s{b+k}, 10')
        e(f's_add_u32 s{b+k}, s{b+k}, s{kk}')
    e(f's_cmp_eq_u32 s{kp}, 8')
    e(f's_cselect_b32 s{t}, 1, 2')
    e(f's_cmp_eq_u32 s{c}, 15')
    e(f's_cselect_b32 s{b+5}, s{t}, 0')
    e(f's_lshl_b32 s46, s{WAVE}, 2')
    e(f's_add_u32 s46, s46, {CNT+16}')
    e('v_mov_b32 v55, s46')
    if o.tagp and o.cpar:
        e('s_waitcnt vmcnt(0) lgkmcnt(0)')
        e('s_memrealtime s[48:49]')
        stamp(2)
        e(f's_cmp_ge_u32 s{NOTASK}, {NTASK}')
        e('s_cbranch_scc1 L_c1')
        for (vb, sw, vl, vs, so) in T:
            for tap in range(2):
                for half in range(2):
                    e(f'ds_read_b64_tr_b16 {vr(vb+4*tap+2*half,2)}, v21 offset:{so+1024*tap+512*half}')
        e('L_c1:')
        e('s_waitcnt lgkmcnt(0)')
        e('s_sub_u32 s48, s48, s68')
        e('s_cmp_lt_u32 s48, 200')
        e('s_cbranch_scc1 L_c2')
        e('s_mov_b64 exec, 1')
        e(f'buffer_load_dword v27, v{VCA}, {sr(S_DBG)}, 0 offen sc1')
        e('s_mov_b64 exec, -1')
        e('L_c2:')
        e(f's_cmp_ge_u32 s{NOTASK}, {NTASK}')
        e('s_cbranch_scc1 L_x9')
    elif o.tagp:
        e('s_waitcnt vmcnt(1)')
        stamp(2)
        e(f's_cmp_ge_u32 s{NOTASK}, {NTASK}')
        e('s_cbranch_scc1 L_x9')
    else:
        e('v_mov_b32 v27, 0')
        e('v_mov_b32 v9, 4')
        e('s_waitcnt vmcnt(0) lgkmcnt(0)')
        stamp(2)
        e(f's_cmp_lg_u32 s{WAVE}, 4')
        e('s_cbranch_scc1 L_a5')
        e('s_mov_b64 exec, 1')
        e(f'buffer_load_dword v27, v9, {sr(S_DBG)}, 0 offen sc1')
        e('s_mov_b64 exec, -1')
        e('L_a5:')
        e(f's_cmp_ge_u32 s{NOTASK}, {NTASK}')
        e('s_cbranch_scc1 L_x9')
    for (vb, sw, vl, vs, so) in (T if not o.cpar else []):
        for tap in range(2):
            for half in range(2):
                e(f'ds_read_b64_tr_b16 {vr(vb+4*tap+2*half,2)}, v21 offset:{so+1024*tap+512*half}')
    nlab = [0]
    def st01(vb, vs):
        nlab[0] += 1
        e(f'buffer_store_dwordx4 {vr(vb,4)}, v{vs}, {sr(S_WS)}, s{b+2} offen {o.stf}')
        e(f's_cmp_eq_u32 s{b+5}, 2')
        e(f's_cbranch_scc1 L_skip{nlab[0]}')
        e(f'buffer_store_dwordx4 {vr(vb+4,4)}, v{vs}, {sr(S_WS)}, s{b+3} offen {o.stf}')
        e(f'L_skip{nlab[0]}:')
    def st01all(lbl):
        st01(T[0][0], T[0][3]); st01(T[1][0], T[1][3])
        cond3(lbl)
        st01(T[2][0], T[2][3])
    def dosum(vb, tb, ob):
        for i in range(8):
            e(f'v_lshlrev_b32 v{tb+2*i}, 16, v{vb+i}')
            e(f'v_and_b32 v{tb+2*i+1}, s{MASK}, v{vb+i}')
        for i in range(4):
            e(f'v_pk_add_f32 {vr(tb+2*i,2)}, {vr(tb+2*i,2)}, {vr(tb+8+2*i,2)}')
        for i in range(4):
            e(f'v_cvt_pk_bf16_f32 v{ob+i}, v{tb+2*i}, v{tb+2*i+1}')
    def ldswait(off, cmp, operand, tag, slp):
        e(f'L_lw{tag}:')
        e(f'ds_read_b32 v11, v10 offset:{off}')
        e('s_waitcnt lgkmcnt(0)')
        e('v_and_b32 v11, 0xff, v11')
        e(f'v_cmp_{cmp}_u32 vcc, {operand}, v11')
        e('s_nop 4')
        e(f's_cbranch_vccnz L_lx{tag}')
        e(f's_sleep {slp}')
        e(f's_branch L_lw{tag}')
        e(f'L_lx{tag}:')
    SOR = lambda ti: (210 + 8 * ti) if o.tagp else (240 + 4 * ti)
    e(f's_or_b32 s46, s{EARLY}, s{MODE}')
    e(f's_cmp_eq_u32 s{XK}, 2')
    e('s_cselect_b32 s47, 1, s46')
    if o.xl: e('s_mov_b32 s46, s47')
    if o.split1:
        assert o.tagp and o.xl
        e('s_or_b32 s47, s47, s97')
        e(f's_andn2_b32 s50, s97, s{MODE}')
    e('s_cmp_eq_u32 s47, 0')
    e('s_cbranch_scc1 L_x9')
    if o.tagp:
        e('s_cmp_eq_u32 s97, 0')
        e('s_cbranch_scc1 L_x7')
        e('s_waitcnt vmcnt(0)')
        e('v_readfirstlane_b32 s48, v27')
        e(f's_add_u32 s49, s{TAG}, {TAGINC}')
        e('s_not_b32 s47, s49')
        e(f's_or_b32 s48, s48, s{MODE}')
        e('s_cselect_b32 s49, s47, s49')
        for ti in range(3):
            e(f'v_mov_b32 v{SOR(ti)-1}, s49')
            e(f'v_mov_b32 v{SOR(ti)+4}, s49')
        e('L_x7:')
        if o.xdel:
            e(f's_cmp_lg_u32 s{XK}, 2')
            e('s_cbranch_scc1 L_x8')
            if o.xdel > 0: e(f's_sleep {o.xdel}')
            else:
                e('L_xs:')
                e('ds_read_b32 v11, v10 offset:8')
                e('s_waitcnt lgkmcnt(0)')
                e(f'v_cmp_le_u32 vcc, {0x10000 * -o.xdel}, v11')
                e('s_nop 4')
                e('s_cbranch_vccnz L_x8')
                e('s_sleep 1')
                e('s_branch L_xs')
            e('L_x8:')
    for ti, (vb, sw, vl, vs, so) in enumerate(T):
        if ti == 2: cond3('L_x3')
        if o.split1:
            if ti == 1: e(f's_and_b32 s47, s50, s{EARLY}')
            else: e(f's_andn2_b32 s47, s50, s{EARLY}')
            e(f's_cbranch_scc1 L_x5{ti}')
        e(f's_waitcnt lgkmcnt({8-4*ti})')
        dosum(vb, 64 + 16 * ti, SOR(ti))
        if not o.split1:
            e('s_cmp_eq_u32 s46, 0')
            e(f's_cbranch_scc1 L_x5{ti}')
        if o.tagp:
            e('s_cmp_eq_u32 s97, 0')
            e(f's_cbranch_scc1 L_x6{ti}')
            e(f'buffer_store_dwordx4 {vr(SOR(ti)-2,4)}, v{vs}, {sr(S_WS)}, s96 offen {o.stf}')
            e(f'buffer_store_dwordx4 {vr(SOR(ti)+2,4)}, v{vs}, {sr(S_WS)}, s96 offen offset:1024 {o.stf}')
            e(f's_branch L_x5{ti}')
            e(f'L_x6{ti}:')
        e(f'buffer_store_dwordx4 {vr(SOR(ti),4)}, v{vs}, {sr(S_WS)}, s{b+4} offen {o.stf}')
        e(f'L_x5{ti}:')
    e('L_x3:')
    e(f's_cmp_eq_u32 s{MODE}, 0')
    e('s_cbranch_scc1 L_x9')
    e('L_x2:')
    e('s_waitcnt lgkmcnt(0)')
    st01all('L_x4')
    e('L_x4:')
    e(f's_cmp_eq_u32 s{MODE}, 0')
    e('s_cbranch_scc1 L_x9')
    e('s_waitcnt vmcnt(0)')
    e(f's_add_u32 s{PAIR}, s{PAIR}, 1')
    e(f's_cmp_lt_u32 s{PAIR}, {NPROD}')
    e('s_cbranch_scc1 L_prod')
    e('v_mov_b32 v11, 1')
    e('ds_write_b32 v10, v11 offset:12')
    e('s_endpgm')
    e('L_x9:')
    jit()
    if o.tagp and not o.b0early:
        e(f's_cmp_eq_u32 s{EARLY}, 0')
        e('s_cbranch_scc1 L_x10')
        e('s_barrier')
        e('L_x10:')
    stamp(3)
    decode()
    e('v_subrev_u32 v4, 256, v0')
    e('v_min_u32 v4, 251, v4')
    e('v_mul_u32_u24 v3, 3641, v4')
    e('v_lshrrev_b32 v3, 16, v3')
    e('v_mul_u32_u24 v2, 18, v3')
    e('v_sub_u32 v2, v4, v2')
    e(f'v_mul_u32_u24 v3, {R}, v3')
    e(f'v_min_u32 v3, {160-R}, v3')
    e('v_mul_u32_u24 v4, 1152, v3')
    e('v_lshl_add_u32 v4, v2, 4, v4')
    e(f'v_add_u32 v12, s{XB}, v4')
    e('v_mul_u32_u24 v18, 288, v3')
    e('v_lshl_add_u32 v18, v2, 4, v18')
    e(f'v_add_u32 v19, {X_D1}, v18')
    srd(e, S_X, 4, 1152000, add=BOFF)
    e(f's_add_u32 s46, s{TAG}, {TAGINC}')
    e('v_mov_b32 v56, s46')
    e(f's_lshl_b32 s46, s{RID}, 7')
    e('v_mov_b32 v58, s46')
    e(f's_add_u32 s46, s{PAIR}, {NPROD}')
    e('s_lshl_b32 s46, s46, 7')
    e('v_mov_b32 v59, s46')
    def publish(slot, vflag, tag, first, n=0):
        e('s_mov_b64 exec, 1')
        e(f's_waitcnt vmcnt({n})')
        if first: stamp(4)
        if o.padto and tag == 'x': stamp(12)
        e('v_cmp_ne_u32 vcc, 0, v27')
        e('v_not_b32 v57, v56')
        e('s_nop 0')
        e('v_cndmask_b32 v57, v56, v57, vcc')
        e(f'ds_write_b32 v55, v57 offset:{slot}')
        e(f'ds_read_b128 v[20:23], v10 offset:{32+slot}')
        e('s_waitcnt lgkmcnt(0)')
        for i in range(4): e(f'v_xor_b32 v{20+i}, v{20+i}, v56')
        e('v_or3_b32 v20, v20, v21, v22')
        e('v_or_b32 v20, v20, v23')
        e('v_cmp_eq_u32 vcc, 0, v20')
        e('s_and_b64 exec, exec, vcc')
        e(f's_cbranch_execz L_nl{tag}')
        e(f'buffer_store_dword v56, v{vflag}, {sr(S_WS)}, 0 offen sc1')
        e(f'L_nl{tag}:')
        e('s_mov_b64 exec, -1')
    if o.tagp and o.xl:
        e(f's_cmp_lg_u32 s{XK}, 2')
        e('s_cbranch_scc1 L_noflag')
        publish(0, 58, 'x', True)
        e(f's_mov_b32 s{XK}, 0')
    elif o.xl:
        e(f's_cmp_ge_u32 s{RID}, {NPROD}')
        e('s_cbranch_scc1 L_noflag')
        publish(0, 58, 'x', True)
        e(f's_mov_b32 s{XK}, 0')
        e(f's_cmp_eq_u32 s{EARLY}, 0')
        e('s_cbranch_scc1 L_noflag')
        if not o.b0early: e('s_barrier')
    elif not o.tagp:
        e(f's_cmp_eq_u32 s{EARLY}, 0')
        e('s_cbranch_scc1 L_noflag')
        publish(0, 58, 'x', True)
        if not o.b0early: e('s_barrier')
    e('L_noflag:')
    e(f's_setprio {o.hprio2}')
    RAW, ORAW = 64, 120
    EU = [184, 192]
    OU, DT, DO = 200, 208, 216
    xi = [0]
    NL = R + 1
    hq = []
    def eload():
        k = xi[0]
        if k >= NL: return
        a_ = 12
        if k:
            a_ = 13 + (k & 3)
            e(f'v_add_u32 v{a_}, {1152*k}, v12')
        e(f'buffer_load_dwordx4 {vr(RAW+4*k,4)}, v{a_}, {sr(S_X)}, 0 offen')
        xi[0] += 1
        hq.append(('e', k))
    if o.etouch:
        e(f's_cmp_lt_u32 s{RID}, {NTASK}')
        e('s_cbranch_scc1 L_net')
        e(f's_and_b32 s46, s{NB}, 1')
        e(f's_mul_i32 s46, s46, {1152*6}')
        e('v_add_u32 v12, s46, v12')
        for _ in range(7): eload()
        e('v_subrev_u32 v12, s46, v12')
        e('s_waitcnt vmcnt(0)')
        e('L_net:')
        xi[0] = 0; hq.clear()
    YA = 232
    e(f's_cmp_eq_u32 s{b+5}, 2')
    e('s_cselect_b32 s46, 0x80000000, 0')
    e(f's_cmp_lg_u32 s{HAS3}, 0')
    e('s_cselect_b32 s47, 0x80000000, 0')
    e('s_or_b32 s48, s46, s47')
    for i in range(6):
        m_ = {0: None, 1: 46, 2: None, 3: 46, 4: 47, 5: 48}[i]
        e(f'v_mov_b32 v{YA+i}, v{52+i//2}' if m_ is None else f'v_or_b32 v{YA+i}, s{m_}, v{52+i//2}')
    def ystore(i, a_):
        e(f'buffer_store_dwordx4 {vr(28+4*i,4)}, v{a_}, {sr(S_WS)}, s{b+2+(i&1)} offen {o.stf}')
        hq.append(('y', i))
    if o.yall:
        assert o.d0p
        e(f's_add_u32 s44, s{RID}, 76')
        e(f's_cmp_ge_u32 s44, {NWG}')
        e(f's_cselect_b32 s45, {NWG}, 0')
        e('s_sub_u32 s44, s44, s45')
        e(f's_add_u32 s46, s44, {NPROD + 32}')
        e('s_lshl_b32 s46, s46, 7')
        e('v_mov_b32 v59, s46')
        e('s_mul_hi_u32 s45, s44, 477218589')
        e('s_mul_i32 s46, s45, 9')
        e('s_sub_u32 s44, s44, s46')
        e(f's_lshr_b32 s{YT}, s45, 3')
        e(f's_add_u32 s{YT}, s{YT}, 1')
        e(f's_min_u32 s{YT}, s{YT}, 3')
        e('s_lshl_b32 s45, s45, 2')
        e(f's_add_u32 s45, s45, s{WAVE}')
        e('s_add_u32 s45, s45, 28')
        e('s_and_b32 s46, s45, 15')
        e('s_lshr_b32 s47, s45, 4')
        e('s_mul_i32 s54, s46, 165888')
        e('s_mul_i32 s48, s47, 9216')
        e('s_add_u32 s54, s54, s48')
        e('s_add_u32 s95, s54, 82944')
        e('s_cmp_lg_u32 s46, 15')
        e(f's_cselect_b32 s{S_WO+2}, 2571264, 0')
        e('s_cselect_b32 s51, 0, 0x80000000')
        e('s_lshr_b32 s48, s47, 1')
        e('s_and_b32 s49, s46, 7')
        e('s_lshr_b32 s50, s46, 3')
        e('s_and_b32 s45, s47, 1')
        e('s_cmp_eq_u32 s47, 8')
        e('s_cselect_b32 s49, s49, s46')
        e('s_cselect_b32 s50, s50, s45')
        e('s_cselect_b32 s51, 0, s51')
        e('s_lshl_b32 s50, s50, 9')
        e(f's_add_u32 s50, s50, {WOFF}')
        e('s_lshl_b32 s68, s48, 4')
        e('s_add_u32 s68, s68, s49')
        e('s_sub_u32 s69, s68, s48')
        e('s_add_u32 s68, s68, 34')
        e('s_add_u32 s69, s69, 144')
        for r_ in (68, 69):
            e(f's_lshl_b32 s{r_}, s{r_}, 10')
            e(f's_add_u32 s{r_}, s{r_}, s50')
        e('v_and_b32 v2, 3, v1')
        e('v_lshl_add_u32 v2, s44, 2, v2')
        e('v_lshrrev_b32 v3, 4, v1')
        e('v_lshl_add_u32 v3, s44, 2, v3')
        e('v_cmp_le_u32 vcc, 18, v2')
        e('v_cmp_le_u32 s[46:47], 18, v3')
        e('v_lshl_add_u32 v63, v2, 4, v24')
        e('v_mad_u32_u24 v60, v3, v26, v25')
        e('v_add_u32 v2, 4320, v63')
        e(f'v_add_u32 v3, {(256 - 18*NSTR) & 0xffffffff}, v60')
        e('v_cndmask_b32 v63, v63, v2, vcc')
        e('v_cndmask_b32 v60, v60, v3, s[46:47]')
        e('v_or_b32 v61, s51, v60')
    def ydma():
        if not o.yall: return
        e(f's_mov_b32 m0, s{SCRB}')
        e('s_nop 0')
        e(f'buffer_load_dwordx4 v63, {sr(S_W)}, s54 offen lds')
        e('s_addk_i32 m0, 1024')
        e('s_nop 0')
        e(f'buffer_load_dwordx4 v63, {sr(S_WO)}, s95 offen lds')
        hq.append('d0'); hq.append('d1')
    stamp(5)
    ldswait(8, 'eq', 4, 'o', 1)
    def unpack(dst, s_):
        for i in range(4):
            e(f'v_lshlrev_b32 v{dst+2*i}, 16, v{s_+i}')
            e(f'v_and_b32 v{dst+2*i+1}, s{MASK}, v{s_+i}')
    def unpackE(dst, k):
        e(f's_waitcnt vmcnt({len(hq)-1-hq.index(("e", k))})')
        unpack(dst, RAW + 4 * k)
        eload()
    def diff(eu, out):
        for i in range(8): e(f'v_sub_f32 v{DT+i}, v{eu+i}, v{OU+i}')
        for i in range(4):
            e(f'v_cvt_pk_bf16_f32 v{out+i}, v{DT+2*i}, v{DT+2*i+1}')
    def opengate():
        if not o.gate: return
        e('v_mov_b32 v11, 0x100')
        e('s_mov_b64 exec, 1')
        e('ds_add_u32 v10, v11 offset:8')
        e('s_mov_b64 exec, -1')
    def rows(hook):
        jit()
        stamp(6)
        for j in range(R):
            e(f'ds_read_b128 {vr(ORAW+4*j,4)}, v18 offset:{X_O+288*j}')
        unpackE(EU[0], 0)
        e('s_waitcnt lgkmcnt(0)')
        hook(-1)
        for j in range(R):
            o0 = DO + 8 * (j & 1)
            unpack(OU, ORAW + 4 * j)
            diff(EU[j & 1], o0)
            e(f'ds_write_b128 v18, {vr(o0,4)} offset:{X_D0+288*j}')
            unpackE(EU[(j + 1) & 1], j + 1)
            diff(EU[(j + 1) & 1], o0 + 4)
            e(f'ds_write_b128 v19, {vr(o0+4,4)} offset:{288*j}')
            hook(j)
    if o.apath:
        e(f's_cmp_ge_u32 s{RID}, {NPROD + (32 if o.d0p else 0)}')
        e('s_cbranch_scc1 L_pathA')
    if o.d0row >= 0: e(f's_cmp_lg_u32 s{XK}, 2')
    else: e(f's_cmp_lt_u32 s{XK}, 2')
    e('s_cbranch_scc1 L_nox')
    if o.d0p:
        e(f's_cmp_eq_u32 s{XK}, 3')
        e('s_cbranch_scc1 L_xd')
    for i in range(3):
        e(f'buffer_store_dwordx4 {vr(SOR(i),4)}, v{YA+2*i}, {sr(S_WS)}, s{b+4} offen {o.stf}')
    if o.d0p:
        e('s_branch L_xe')
        e('L_xd:')
        for i in range(6): ystore(i, YA + i)
        e('L_xe:')
    if o.gearly:
        opengate()
        publish(0, 58, 'x2', True)
        e('s_branch L_nox2')
        e('L_nox:')
        if o.gdel:
            e(f's_cmp_ge_u32 s{RID}, {NPROD}')
            e('s_cbranch_scc1 L_nox2')
        opengate()
        e('L_nox2:')
    else:
        publish(0, 58, 'x2', True)
        e('L_nox:')
        opengate()
    hq.clear(); xi[0] = 0
    for _ in range(o.ein): eload()
    def hookP(j):
        if j == o.ydrow: ydma()
        if o.gdel and j == o.gdel - 2:
            e(f's_cmp_lt_u32 s{RID}, {NPROD}')
            e('s_cbranch_scc1 L_gd')
            opengate()
            e('L_gd:')
        if j == o.d0row and j >= 0:
            e(f's_cmp_lg_u32 s{XK}, 3')
            e('s_cbranch_scc1 L_yn1')
            keep = list(hq)
            for i in range(6): ystore(i, YA + i)
            hq[:] = keep
            e('L_yn1:')
        if o.d0row >= 0 and j == o.d0row + o.d0row2:
            e(f's_cmp_lg_u32 s{XK}, 3')
            e('s_cbranch_scc1 L_yn2')
            publish(0, 58, 'yn', True)
            e('L_yn2:')
        if o.ymid and j == o.ymid:
            e(f's_cmp_lg_u32 s{YT}, 1')
            e('s_cbranch_scc1 L_ym1')
            keep = list(hq)
            for i in range(6): ystore(i, YA + i)
            hq[:] = keep
            e('L_ym1:')
        if o.ymid and j == o.ymid + o.ymid2:
            e(f's_cmp_lg_u32 s{YT}, 1')
            e('s_cbranch_scc1 L_ym2')
            publish(16, 59, 'ym', False)
            if o.diag == 1: stamp(8)
            e(f's_mov_b32 s{YT}, 0')
            e('L_ym2:')
    rows(hookP)
    if o.apath:
        e('s_branch L_rowsdone')
        e('L_pathA:')
        if not o.d0p:
            e(f's_cmp_eq_u32 s{XK}, 3')
            e('s_cselect_b32 s47, 0, 0x80000000')
            for i in range(6): e(f'v_or_b32 v{20+i}, s47, v{YA+i}')
        hq.clear(); xi[0] = 0
        for _ in range(NL): eload()
        if not o.d0p:
            for i in range(6): ystore(i, 20 + i)
        def hookA(j):
            if j == o.grow + 1: ydma()
            if j == o.grow:
                e(f's_waitcnt vmcnt({len(hq)-1-hq.index(("e", NL-1))})')
                opengate()
            if j == o.xrow and not o.d0p:
                e(f's_cmp_lg_u32 s{XK}, 3')
                e('s_cbranch_scc1 L_xp')
                publish(0, 58, 'x3', True)
                e('L_xp:')
        rows(hookA)
    e('L_rowsdone:')
    e('s_waitcnt lgkmcnt(0)')
    stamp(7)
    e('v_mov_b32 v11, 1')
    e('s_mov_b64 exec, 1')
    e('ds_add_u32 v10, v11 offset:16')
    e('s_mov_b64 exec, -1')
    e(f's_cmp_eq_u32 s{YT}, 0')
    e('s_cbranch_scc1 L_noy')
    e(f's_setprio {o.yprio}')
    if o.yall:
        e('s_waitcnt vmcnt(0)')
        for tap in range(2):
            for half in range(2):
                e(f'ds_read_b64_tr_b16 {vr(28+4*tap+2*half,2)}, v62 offset:{1024*tap+512*half}')
    e('L_yw:')
    e('ds_read_b64 v[20:21], v10')
    e('s_waitcnt lgkmcnt(0)')
    e('v_lshrrev_b32 v21, 14, v21')
    e('v_and_b32 v21, -4, v21')
    e('v_or_b32 v20, v20, v21')
    e(f'v_cmp_le_u32 vcc, s{YT}, v20')
    e('s_nop 4')
    e('s_cbranch_vccnz L_yx')
    e('s_sleep 4')
    e('s_branch L_yw')
    e('L_yx:')
    jit()
    if o.yall:
        e(f'buffer_store_dwordx4 v[28:31], v60, {sr(S_WS)}, s68 offen {o.stf}')
        e(f'buffer_store_dwordx4 v[32:35], v61, {sr(S_WS)}, s69 offen {o.stf}')
    else:
      for i in range(6):
        ystore(i, YA + i)
        e(f's_waitcnt vmcnt({o.ythr})')
        if o.ysleep: e(f's_sleep {o.ysleep}')
    publish(16, 59, 'y', False)
    if o.diag == 1: stamp(8)
    e('L_noy:')
    e(f's_cmp_lg_u32 s{WAVE}, 4')
    e('s_cbranch_scc1 L_hend')
    e('L_guard:')
    e('ds_read_b32 v11, v10 offset:4')
    e('s_waitcnt lgkmcnt(0)')
    e('v_readfirstlane_b32 s46, v11')
    e('s_nop 3')
    e('s_cmp_eq_u32 s46, 4')
    e(f's_cbranch_scc1 {"L_wb" if o.wbat else "L_hend"}')
    e('s_cmp_lt_u32 s46, 0x10000')
    e('s_cbranch_scc0 L_rescue')
    e('s_sleep 16')
    e('s_branch L_guard')
    if o.wbat:
        e('L_wb:')
        e('s_lshr_b32 s46, s2, 3')
        e(f's_cmp_lg_u32 s46, 5')
        e('s_cbranch_scc1 L_hend')
        ldswait(0, 'eq', 4, 'w', 2)
        e('buffer_wbl2 sc1')
        e('s_waitcnt vmcnt(0)')
        e('s_branch L_hend')
    e('L_rescue:')
    e(f's_mov_b32 s{MODE}, 1')
    e(f's_mov_b32 s{HAS3}, 1')
    e(f's_mov_b32 s{NOTASK}, 0')
    e(f's_lshr_b32 s{TW0}, s{NB}, 1')
    e(f's_add_u32 s{TW1}, s{NB}, 9')
    e(f's_lshr_b32 s{TW1}, s{TW1}, 1')
    e(f's_mov_b32 s{PAIR}, 0')
    e('s_branch L_prod')
    e('L_hend:')
    if o.padto and o.padev[0] == 'h': padloop('h')
    if o.diag == 1:
        stamp(9)
        dump(10)
    e('L_end:')
    e('s_endpgm')
    if o.hfirst:
        m0, h0 = mark['main0'], mark['help0']
        e.L = e.L[:m0] + e.L[h0:] + ['.p2align 6'] + e.L[m0:h0]
    e('L_codeend:')
    e('.section .rodata,"a"')
    e('.p2align 6')
    e(f'.amdhsa_kernel {KN}')
    for x in ['next_free_vgpr 256', 'next_free_sgpr 102', 'accum_offset 256', 'group_segment_fixed_size 0', 'kernarg_size 40',
              'user_sgpr_count 2', 'user_sgpr_kernarg_segment_ptr 1', 'system_sgpr_workgroup_id_x 1']:
        e('  .amdhsa_' + x)
    e('.end_amdhsa_kernel')
    n = haz.check(e.L)
    if n: print(f'{n} hazards', file=sys.stderr)
    return f'; @launch grid=({NWG},1,1) block=(512,1,1) lds={LDS_BYTES}\n' + HEADER + e.text()

def opts(argv=None):
    ap = argparse.ArgumentParser()
    ap.add_argument('-o', default='k.s')
    for nm, d in [('diag', 0), ('pf', 16), ('pf0', 8), ('wgap', 4), ('wres', 4), ('wsc1', 0), ('nfill', 2), ('fstride', 128), ('sleep', 0), ('maxpoll', 3000), ('nopoll', 0),
                  ('hprio', 3), ('hprio2', 0), ('mprio', 2), ('epre', 0), ('ein', 4), ('dpre', 7), ('b0early', 0), ('mtouch', 4), ('gate', 1), ('swapab', 0), ('d0p', 1), ('map', 1), ('chain', 4), ('cpar', 0), ('vclose', 64), ('vnonce', 84), ('wsb', 0), ('xdel', -4), ('xsn', 11), ('retry', 0), ('gdel', 0), ('padlo', 0), ('padhi', 252), ('d0row', 1), ('c2split', 1), ('d0row2', 1), ('split1', 0), ('ymid', 4), ('ymid2', 2), ('wbat', 0), ('jit', 0), ('apath', 0), ('rmap', 0), ('yall', 0), ('ydrow', 6), ('flat0', 1), ('flatzz', 0), ('tagp', 1), ('tpf', 5), ('xl', 1), ('p0plain', 0), ('onepoll', 0), ('epoll', 1), ('ppoll', 0), ('yprio', 3), ('ysleep', 0), ('vt', 94), ('tla', 40), ('tskip', 2), ('gearly', 1), ('chfrom', 8), ('oj', 9), ('nolds', 0), ('now', 0), ('wsame', 0), ('grow', 1), ('vbd', 33), ('nopk', 1), ('padto', 0), ('npdelay', 0), ('opre', 4), ('etouch', 0), ('orev', 1), ('b0late', 1), ('dec', 1), ('tail', 1), ('xla', 9), ('hold', 1), ('prest', 0), ('xslot', 0), ('noclosed', 0), ('cpf', 1), ('hfirst', 1), ('warmb', 1), ('wsfirst', 0), ('flead', 6), ('ythr', 6), ('xrow', 3), ('padstep', 33), ('probe', 0), ('probeoff', 0x4000000)]:
        ap.add_argument('--' + nm, type=int, default=d)
    ap.add_argument('--oflags', default='')
    ap.add_argument('--pmap', default='18,18,18,18,18,18,18,18')
    ap.add_argument('--padev', default='m0')
    ap.add_argument('--trig', default='10,25,40')
    ap.add_argument('--yrow', default='0,7,2,9,5,11')
    ap.add_argument('--pfcs', default='4,3,5,5,5')
    ap.add_argument('--fflags', default='')
    ap.add_argument('--fleads', default='6,5,6,6,6')
    ap.add_argument('--stf', default='sc1')
    ap.add_argument('--marks', default='0,4,8,12,16,24,33,47,58')
    o = ap.parse_args(argv)
    o.marks = [int(x) for x in o.marks.split(',')]
    o.yrow = [int(x) for x in o.yrow.split(',')]
    o.pfcs = [int(x) for x in o.pfcs.split(',')]
    o.fleads = [int(x) for x in o.fleads.split(',')]
    o.trig = [int(x) for x in o.trig.split(',')]
    return o

if __name__ == '__main__':
    o = opts()
    open(o.o, 'w').write(gen(o))
```
